```python
import torch

def _softmax(x, axis=-1):
    return torch.softmax(x, dim=axis)
def _gelu(x):
    return torch.nn.functional.gelu(x, approximate="tanh")
def _silu(x):
    return torch.nn.functional.silu(x)
def _sigmoid(x):
    return torch.sigmoid(x)
def _layernorm(x, axis=-1, eps=1e-5):
    m = x.mean(dim=axis, keepdim=True)
    v = x.var(dim=axis, keepdim=True, unbiased=False)
    return (x - m) / torch.sqrt(v + eps)
def _scatter_add(tgt, idx, src, axis=0):
    return tgt.clone().index_add_(axis, idx, src)
def _segment_sum(src, seg, n):
    out = torch.zeros((n,) + src.shape[1:], dtype=src.dtype)
    return out.index_add_(0, seg, src)
def _pad(x, pw):
    flat = tuple(v for pair in reversed(pw) for v in pair)
    return torch.nn.functional.pad(x, flat)

kernel_name = 'sequential_preLN__sliding_block__moe_arch_mod__prompt'

def setup_inputs():

    _w = (lambda a: (lambda t: t.to(torch.bfloat16) if t.is_floating_point() else t)(torch.as_tensor(a)))
    def _A_setup():
        B, S, D = 1, 2048, 640
        return {
            "x": _w((lambda *s: torch.randn(*s, dtype=torch.bfloat16) * 0.05)(B, S, D)),
            "wqkv": _w((lambda *s: torch.randn(*s, dtype=torch.bfloat16) * 0.05)(D, 3 * D)),
            "wo": _w((lambda *s: torch.randn(*s, dtype=torch.bfloat16) * 0.05)(D, D)),
        }
    _A_in = _A_setup()

    def _B_setup():
        B, S, D, F, C = 1, 2048, 640, 1536, 8
        return {
            "x": _w((lambda *s: torch.randn(*s, dtype=torch.bfloat16) * 0.05)(B, S, D)),
            "w_r": _w((lambda *s: torch.randn(*s, dtype=torch.bfloat16) * 0.05)(D)),
            "w_gate": _w((lambda *s: torch.randn(*s, dtype=torch.bfloat16) * 0.05)(D, F)),
            "w_up": _w((lambda *s: torch.randn(*s, dtype=torch.bfloat16) * 0.05)(D, F)),
            "w_down": _w((lambda *s: torch.randn(*s, dtype=torch.bfloat16) * 0.05)(F, D)),
        }
    _B_in = _B_setup()

    return {
        "A_x": _A_in["x"],
        "A_wqkv": _A_in["wqkv"],
        "A_wo": _A_in["wo"],
        "B_x": _B_in["x"],
        "B_w_r": _B_in["w_r"],
        "B_w_gate": _B_in["w_gate"],
        "B_w_up": _B_in["w_up"],
        "B_w_down": _B_in["w_down"],
    }

def reference(A_x, A_wqkv, A_wo, B_x, B_w_r, B_w_gate, B_w_up, B_w_down):
    def _A_ref(x, wqkv, wo):
        B, S, D = x.shape
        H = 32; Dh = D // H; W = 256
        qkv = (lambda x, *d: x.permute(*d))((x @ wqkv).reshape(B, S, 3, H, Dh), 2, 0, 3, 1, 4)
        q, k, v = qkv[0], qkv[1], qkv[2]
        scores = torch.einsum("bhqd,bhkd->bhqk", q, k) * (Dh ** -0.5)
        idx = torch.arange(S)
        mask = (idx[:, None] - idx[None, :] >= 0) & (idx[:, None] - idx[None, :] < W)
        scores = torch.where(mask[None, None], scores, -1e9)
        p = _softmax(scores, axis=-1)
        o = torch.einsum("bhqk,bhkd->bhqd", p, v)
        return (lambda x, *d: x.permute(*d))(o, 0, 2, 1, 3).reshape(B, S, D) @ wo

    def _B_ref(x, w_r, w_gate, w_up, w_down):
        B, S, D = x.shape
        C = 8
        r = x @ w_r
        idx = torch.argsort(-r, axis=-1)[:, :C]
        idx_e = (lambda x, n, axis: torch.repeat_interleave(x, n, dim=axis))(idx.reshape(B, C, 1), D, axis=2)
        x_sel = (lambda x, i, axis: torch.take_along_dim(x, i, dim=axis))(x, idx_e, axis=1)
        g = _silu(x_sel @ w_gate)
        u = x_sel @ w_up
        y = (g * u) @ w_down
        r_sel = _sigmoid((lambda x, i, axis: torch.take_along_dim(x, i, dim=axis))(r, idx, axis=1))
        y = y * r_sel.reshape(B, C, 1)
        b_off = (torch.arange(B) * S).reshape(B, 1)
        flat_idx = (idx + b_off).reshape(B * C)
        zero = (x * 0.0).reshape(B * S, D)
        upd = _scatter_add(zero, flat_idx, y.reshape(B * C, D), axis=0)
        return x + upd.reshape(B, S, D)

    x = A_x
    h = x + _A_ref(_layernorm(x, axis=-1), A_wqkv, A_wo)
    h2 = h + _B_ref(_layernorm(h, axis=-1), B_w_r, B_w_gate, B_w_up, B_w_down)
    return h2
```

```python
import re, sys
class P:
    def __init__(self): self.L=[]; self.uid=0
    def __call__(self, s):
        for ln in s.split("\n"):
            ln=ln.strip()
            if ln: self.L.append(ln)
        return self
    def lab(self, base):
        self.uid+=1; return f"L{base}_{self.uid}"
    def text(self):
        return "\n".join((l if l.endswith(":") or l.startswith(".") or l.startswith(";") else "  "+l) for l in self.L)+"\n"
def vr(a,n=1): return f"v{a}" if n==1 else f"v[{a}:{a+n-1}]"
def sr(a,n=1): return f"s{a}" if n==1 else f"s[{a}:{a+n-1}]"

TRANS=("v_exp_f32","v_log_f32","v_rcp_f32","v_rsq_f32","v_sqrt_f32","v_sin_f32","v_cos_f32","v_rcp_iflag_f32")
def regs(tok):
    tok=tok.strip()
    neg=tok.lstrip("-").strip("|")
    if neg.startswith("abs(") : neg=neg[4:-1]
    m=re.fullmatch(r"([vsa])(\d+)",neg)
    if m: return [(m.group(1),int(m.group(2)))]
    m=re.fullmatch(r"([vsa])\[(\d+):(\d+)\]",neg)
    if m: return [(m.group(1),i) for i in range(int(m.group(2)),int(m.group(3))+1)]
    if neg=="vcc": return [("s","vcc_lo"),("s","vcc_hi")]
    if neg in("vcc_lo","vcc_hi"): return [("s",neg)]
    if neg=="exec": return [("s","exec_lo"),("s","exec_hi")]
    if neg in("exec_lo","exec_hi"): return [("s",neg)]
    if neg=="m0": return [("s","m0")]
    return []
class I:
    pass
def parse(line):
    line=line.split(";")[0].strip()
    i=I(); i.txt=line
    parts=line.split(None,1); op=parts[0]; i.op=op
    rest=parts[1] if len(parts)>1 else ""
    ops=[]; depth=0; cur=""
    for ch in rest:
        if ch in "[(": depth+=1
        if ch in "])": depth-=1
        if ch=="," and depth==0: ops.append(cur.strip()); cur=""
        else: cur+=ch
    if cur.strip(): ops.append(cur.strip())
    mods=""
    if ops:
        last=ops[-1].split(None,1)
        ops[-1]=last[0]
        if len(last)>1: mods=last[1]
    i.ops=ops; i.mods=mods
    base=re.sub(r"_(e32|e64|dpp|sdwa)$","",op); i.base=base
    i.w=[]; i.r=[]; i.kind="other"; i.passes=0; i.A=i.B=i.C=[]
    R=[regs(o) for o in ops]
    fl=lambda x:[y for z in x for y in z]
    i.dpp = ("_dpp" in op) or bool(re.search(r"quad_perm|row_shr|row_shl|row_ror|row_mirror|row_half_mirror|row_bcast|row_newbcast|wave_",mods))
    if base.startswith("v_mfma"):
        i.kind="mfma"; i.w=R[0]; i.A=R[1]; i.B=R[2]; i.C=R[3]; i.r=fl(R[1:])
        i.passes = 8 if "32x32" in base else (2 if "4x4x4" in base else 4)
        i.sgemm = base.endswith("_f32") and ("x4_f32" in base or "x2_f32" in base)
        if base=="v_mfma_f32_16x16x4_f32": i.passes=8
    elif base.startswith("v_cmpx"):
        i.kind="valu"; i.w=regs("exec"); i.r=fl(R)
    elif base.startswith("v_cmp"):
        i.kind="valu"; i.w=R[0]; i.r=fl(R[1:])
    elif base in("v_readfirstlane_b32","v_readlane_b32"):
        i.kind="valu"; i.w=R[0]; i.r=fl(R[1:])
    elif base.startswith("v_permlane") and "swap" in base:
        i.kind="valu"; i.w=R[0]+R[1]; i.r=R[0]+R[1]
    elif base in("v_add_co_u32","v_sub_co_u32","v_addc_co_u32","v_subb_co_u32","v_subrev_co_u32"):
        i.kind="valu"; i.w=R[0]+R[1]; i.r=fl(R[2:])
    elif base.startswith("v_"):
        i.kind="valu"; i.w=R[0] if R else []; i.r=fl(R[1:])
        if base in("v_fmac_f32","v_mac_f32","v_dot2c_f32_bf16","v_writelane_b32","v_pk_fmac_f16") or i.dpp or "sdwa" in op: i.r=i.r+R[0]
        if base=="v_cndmask_b32" and len(ops)==3: i.r+=regs("vcc")
        if base=="v_nop": i.kind="other"
    elif base.startswith("buffer_") or base.startswith("global_"):
        i.kind="vmem"
        lds=" lds" in " "+mods
        i.lds=lds
        if "load" in base and not lds: i.w=R[0]; i.r=fl(R[1:])
        elif "atomic" in base and " sc0" in " "+mods: i.w=R[0]; i.r=fl(R[1:]) if base.startswith("global") else fl(R)
        else: i.r=fl(R)
        if lds: i.r+=regs("m0")
        i.store = "store" in base
        i.wide = i.store and ("x3" in base or "x4" in base)
        i.data = (R[0] if base.startswith("buffer") else R[1]) if i.store else []
    elif base.startswith("ds_"):
        i.kind="ds"
        if "read" in base or "permute" in base or "swizzle" in base or "_rtn" in base: i.w=R[0]; i.r=fl(R[1:])
        else: i.r=fl(R)
    elif base.startswith("s_load") or base in("s_memtime","s_memrealtime"):
        i.kind="smem"; i.w=R[0]; i.r=fl(R[1:])
    elif base.startswith("s_"):
        i.kind="salu"
        if base.startswith("s_cmp") or base.startswith("s_bitcmp"): i.r=fl(R)
        elif base in("s_waitcnt","s_nop","s_barrier","s_sleep","s_endpgm","s_setprio","s_branch") or base.startswith("s_cbranch"):
            i.kind="ctl"
            if base.startswith("s_cbranch_vcc"): i.r=regs("vcc")
        elif base=="s_setpc_b64": i.kind="ctl"; i.r=fl(R)
        else:
            i.w=R[0] if R else []; i.r=fl(R[1:])
            if "saveexec" in base: i.w=i.w+regs("exec"); i.r+=regs("exec")
            if base in("s_addk_i32","s_mulk_i32","s_cmov_b32","s_cmovk_i32","s_bitset1_b32","s_bitset0_b32"): i.r=i.r+R[0]
    i.trans = base in TRANS
    i.dot = base.startswith("v_dot")
    i.W=set(i.w); i.Rd=set(i.r)
    return i
def need(p,c):
    n=0
    V=lambda s:{x for x in s if x[0] in "va"}
    S=lambda s:{x for x in s if x[0]=="s"}
    if p.kind=="valu":
        sw=S(p.W); vw=V(p.W)
        if sw:
            if c.kind=="vmem" and sw&c.Rd: n=max(n,5)
            if c.kind=="valu" and sw&c.Rd:
                n=max(n,2)
                if c.base in("v_readlane_b32","v_writelane_b32") and sw&set(regs(c.ops[2])): n=max(n,4)
            ex={("s","exec_lo"),("s","exec_hi")}&sw
            if ex:
                if c.kind=="mfma": n=max(n,4)
                if c.kind=="valu" and (c.dpp): n=max(n,5)
                if c.kind=="valu" and (c.base.startswith("v_readl") or c.base.startswith("v_readf") or c.base.startswith("v_writel") or c.base.startswith("v_permlane")): n=max(n,4)
            if c.kind in("salu","ctl") and sw&c.Rd: n=max(n,1)
        if vw:
            if c.kind=="valu" and c.dpp and vw&c.Rd: n=max(n,2)
            if c.kind=="valu" and c.base in("v_readlane_b32","v_readfirstlane_b32") and vw&c.Rd: n=max(n,1)
            if c.kind=="valu" and c.base.startswith("v_permlane") and vw&c.Rd: n=max(n,2)
            if c.kind=="mfma" and vw&c.Rd: n=max(n,3 if p.dot else 2)
            if p.trans and c.kind in("valu",) and not c.trans and vw&c.Rd: n=max(n,1)
            if p.trans and c.kind in ("vmem","ds") and vw&c.Rd: n=max(n,1)
            if p.dot and c.kind!="ctl" and (vw&(c.Rd|c.W)):
                if c.base==p.base and not (vw&set(regs(c.ops[1])+regs(c.ops[2]))): pass
                else: n=max(n,3)
            if ("sdwa" in p.op or "op_sel" in p.mods) and c.kind=="valu" and vw&(c.Rd|c.W) and not p.base.startswith("v_pk"): n=max(n,1)
    if p.kind=="salu" and ("s","m0") in p.W and c.kind=="vmem" and getattr(c,"lds",False): n=max(n,1)
    if p.kind=="vmem" and p.wide and set(p.data)&c.W: n=max(n,2 if c.kind=="valu" else 1)
    if p.kind=="mfma":
        idx={2:0,4:1,8:2,16:3}[p.passes]
        D=p.W
        if c.kind=="mfma":
            if D&set(c.A) or D&set(c.B): n=max(n,([4,6,10,18] if p.sgemm else [5,8,12,20])[idx])
            if D&set(c.C):
                same = (p.w==c.C and p.passes==c.passes and p.sgemm==c.sgemm)
                if same: n=max(n,[2,0,0,0][idx])
                elif p.sgemm and not c.sgemm: pass
                elif p.sgemm: n=max(n,[2,4,8,16][idx])
                else: n=max(n,[4,6,10,18][idx])
            elif D&c.W: n=max(n,[5,8,12,20][idx])
        elif c.kind in("valu","vmem","ds") and D&(c.Rd|c.W): n=max(n,([4,6,10,18] if p.sgemm else [5,8,12,20])[idx])
        if c.kind=="valu" and not p.sgemm and set(p.C)&c.W: n=max(n,[1,3,7,15][idx])
        if c.kind in("ds","vmem") and not p.sgemm and set(p.C)&c.W: n=max(n,[1,3,7,15][idx])
    return n
def states(i):
    if i.base=="s_nop": return int(i.ops[0])+1
    return 1
def check(lines, entry=0, verbose=True):
    ins=[]; labels={}
    for l in lines:
        l2=l.split(";")[0].strip()
        if not l2 or l2.startswith("."): continue
        if l2.endswith(":"): labels[l2[:-1]]=len(ins); continue
        ins.append(parse(l2))
    n=len(ins)
    succ=[[] for _ in range(n)]
    for k,i in enumerate(ins):
        if i.base=="s_endpgm" or i.base=="s_setpc_b64": continue
        if i.base=="s_branch": succ[k].append(labels[i.ops[0]]); continue
        if i.base.startswith("s_cbranch"): succ[k].append(labels[i.ops[0]])
        if k+1<n: succ[k].append(k+1)
    pred=[[] for _ in range(n)]
    for k in range(n):
        for s in succ[k]:
            if s<n: pred[s].append(k)
    errs=[]
    for k,c in enumerate(ins):
        if c.kind in("ctl","other") and not c.Rd: continue
        stack=[(p,0) for p in pred[k]]; seen=set()
        while stack:
            p,d=stack.pop()
            if (p,d) in seen: continue
            seen.add((p,d))
            nd=need(ins[p],c)
            if nd>d: errs.append(f"HAZARD need {nd} have {d}: [{p}] {ins[p].txt}  ->  [{k}] {c.txt}")
            d2=d+states(ins[p])
            if d2<20:
                for q in pred[p]: stack.append((q,d2))
    seen=set(); stack=[(entry,(),())]; werr=set(); steps=0
    while stack:
        k,vm,lg=stack.pop()
        while True:
            if k>=n or (k,vm,lg) in seen: break
            seen.add((k,vm,lg)); steps+=1
            if steps>3000000: werr.add("walk too long"); stack=[]; break
            i=ins[k]
            touch=i.Rd|i.W
            for e in vm:
                if e&touch and not (i.kind=="vmem" and not (e&i.Rd)): werr.add(f"VMCNT pending {sorted(e&touch)[:2]} at [{k}] {i.txt}")
            for t,e in lg:
                if e&touch and not (i.kind=="ds" and t=="ds" and not (e&i.Rd)): werr.add(f"LGKM pending {sorted(e&touch)[:2]} at [{k}] {i.txt}")
            if i.base=="s_waitcnt":
                m=re.search(r"vmcnt\((\d+)\)",i.txt)
                if m:
                    c=int(m.group(1)); vm=vm[len(vm)-c:] if c and len(vm)>c else (vm if c else ())
                m=re.search(r"lgkmcnt\((\d+)\)",i.txt)
                if m:
                    c=int(m.group(1))
                    if c==0: lg=()
                    elif all(t=="ds" for t,e in lg): lg=lg[len(lg)-c:] if len(lg)>c else lg
            elif i.kind=="vmem":
                vm=(vm+(frozenset(i.W),))[-64:]
                while vm and not vm[0]: vm=vm[1:]
            elif i.kind=="ds":
                lg=(lg+(("ds",frozenset(i.W)),))
                while lg and lg[0][0]=="ds" and not lg[0][1]: lg=lg[1:]
                lg=lg[-40:]
            elif i.kind=="smem" and i.base not in ("s_memtime","s_memrealtime"):
                e=("sm",frozenset(x for x in i.W if x not in (('s',100),('s',101))))
                if e[1] or e not in lg: lg=lg+(e,)
            s=succ[k]
            if not s: break
            for x in s[:-1]: stack.append((x,vm,lg))
            k=s[-1]
    errs=sorted(set(errs))+sorted(werr)
    if verbose:
        for e in errs[:60]: print(e)
        print(f"checker: {n} instrs, {len(errs)} findings")
    return errs
```

```python
import sys, math
from asmlib import *
NAME="sequential_preLN__sliding_block__moe_arch_mod__prompt"
CFG=dict(opol='', st=['start','b0|hb0','gend|hb9','E1|hE1','st|halo|clr','fl|g2|wo','fseen|h2','kv','aend','ost'], pt=6, wothr=10, wogate=1, h2sl=1, noh2=0, nowo=0, wos=(0,0,0), sched=(1,1,2,1,1,1,1,0,0,0), dbg=0, stop=99, prof=0, rot=(1,3), force_slow=0, noclr=0, pre=2, ldst=0, nomfma=0, nohello=0)
for a in sys.argv[2:]:
    k,v=a.split("="); CFG[k]=eval(v)
QB,KB,VB,KH,VH,OB=[i*0x280000 for i in range(6)]
CAND=0xF00000
PS=0xFA0000
CA=0xFE0000
ACT=0xFE1000
HB=0x1000000
PROF=0x1300000
H1=0x1280000; H2=0x1281000; EPO=0x1282000; TH=0x1283000
ST1=0x1290000; FL=0x12A0000; FH=0x12A4000
L_STG=0; L_KV=10240; L_WO=55296; L_MISC=157696; L_MW=0
L_CS=L_MISC
L_SA=L_MISC+512
L_SR=L_SA+1024
L_MODE=L_SR+512
L_FLG=L_MODE+64
F_G1,F_G2,F_H2,F_STG,F_SCP,F_DONE,F_WOR,F_MW=[L_FLG+4*i for i in (0,1,2,4,8,9,10,12)]
L_KEYS=L_FLG+128
L_RED=L_WO
sX,sW,sWO,sWG,sWU,sWD,sOUT,sWS,sDBG,sWR=[4+4*i for i in range(10)]
sWAVE,sG,sSLOT,sRQ,sHH,sRB,sCT,sMODE,sEP,sTAG=range(44,54)
sT=54
sLO=76
sPROF=80
p=P()
nstamp=[0,0]
def STAMP(name,w=0):
    i=[k for k,n in enumerate(CFG['st']) if name in n.split('|')]
    if CFG['prof'] and i:
        i=i[0]
        p(f"s_memtime s[{sPROF+2*i}:{sPROF+2*i+1}]")
        if w: p("s_waitcnt lgkmcnt(0)")
def PROFDUMP():
    if not CFG['prof']: return
    p("s_waitcnt vmcnt(0) lgkmcnt(0)")
    p("s_mov_b64 exec, -1")
    for i in range(10): p(f"v_mov_b32 v{2+i}, s{sPROF+2*i}")
    p(f"""s_lshl_b32 s{sT}, s2, 3
    s_add_u32 s{sT}, s{sT}, s{sWAVE}
    s_lshl_b32 s{sT}, s{sT}, 6
    s_add_u32 s{sT}, s{sT}, {PROF}
    v_mov_b32 v1, 0
    s_mov_b64 exec, 1
    buffer_store_dwordx4 v[2:5], v1, s[{sWS}:{sWS+3}], s{sT} offen
    buffer_store_dwordx4 v[6:9], v1, s[{sWS}:{sWS+3}], s{sT} offen offset:16
    buffer_store_dwordx2 v[10:11], v1, s[{sWS}:{sWS+3}], s{sT} offen offset:32""")
def END():
    PROFDUMP(); p("s_endpgm")
S4=lambda r:f"s[{r}:{r+3}]"
SPIN=1<<18

def prologue():
    p(f"""s_cmp_ge_u32 s2, 256
    s_cbranch_scc1 L_exit
    s_load_dwordx2 s[{sX}:{sX+1}], s[0:1], 0
    s_load_dwordx2 s[{sW}:{sW+1}], s[0:1], 8
    s_load_dwordx2 s[{sWS}:{sWS+1}], s[0:1], 80
    s_load_dwordx2 s[{sWO}:{sWO+1}], s[0:1], 16
    s_load_dwordx2 s[{sWR}:{sWR+1}], s[0:1], 32
    s_load_dwordx2 s[{sWG}:{sWG+1}], s[0:1], 40
    s_load_dwordx2 s[{sWU}:{sWU+1}], s[0:1], 48""")
    p(f"""v_lshrrev_b32 v1, 6, v0
    v_and_b32 v0, 63, v0
    v_readfirstlane_b32 s{sWAVE}, v1
    s_and_b32 s{sG}, s2, 7
    s_lshr_b32 s{sSLOT}, s2, 3
    s_lshr_b32 s{sRQ}, s{sG}, 1
    s_and_b32 s{sHH}, s{sG}, 1
    s_and_b32 s{sRB}, s{sSLOT}, 3
    s_lshr_b32 s{sCT}, s{sSLOT}, 2""")
    for r,n in ((sX,2621440),(sW,2457600),(sWS,268435456),(sWO,819200),(sWR,1280),(sWG,1966080),(sWU,1966080),(sWD,1966080),(sOUT,2621440),(sDBG,256)):
        p(f"s_mov_b32 s{r+2}, {n}\ns_mov_b32 s{r+3}, 0x20000")
    p(f"""s_mov_b32 s{sLO}, -1
    s_mov_b32 s{sLO+1}, 0
    s_mov_b32 s{sLO+2}, 0xfffff
    s_mov_b32 s{sLO+3}, 0xfffff
    s_mov_b32 s{sTAG}, {EPO}
    s_waitcnt lgkmcnt(0)
    s_load_dword s{sEP}, s[{sWS}:{sWS+1}], s{sTAG}
    s_load_dwordx2 s[{sWD}:{sWD+1}], s[0:1], 56
    s_load_dwordx2 s[{sOUT}:{sOUT+1}], s[0:1], 64
    s_load_dwordx2 s[{sDBG}:{sDBG+1}], s[0:1], 72""")
    STAMP('start')
    p(f"""s_cmp_ge_u32 s{sWAVE}, 4
    s_cbranch_scc1 L_helper""")
def mktag():
    p(f"""s_mul_i32 s{sTAG}, s{sEP}, 0x9e3779b1
    s_add_u32 s{sTAG}, s{sTAG}, 0x7f4a7c15
    s_and_b32 s{sTAG}, s{sTAG}, -16""")
def colbyte(dst, lc):
    t=sT+18
    p(f"""s_mul_i32 s{t}, s{lc}, 52
    s_lshr_b32 s{t}, s{t}, 8
    s_mul_i32 s{t+1}, s{t}, 5
    s_sub_u32 s{t+1}, s{lc}, s{t+1}
    s_mul_i32 s{t}, s{t}, 1280
    s_lshl_b32 s{t+1}, s{t+1}, 7
    s_mul_i32 s{dst}, s{sHH}, 640
    s_add_u32 s{dst}, s{dst}, s{t}
    s_add_u32 s{dst}, s{dst}, s{t+1}""")

def loader():
    CA_=sT+1; CB_=sT+2; CH=sT+3; XO=sT+4; WO_=sT+5; LB=sT+6; A=sT+7; B=sT+8
    vX=2; vW=6; vt=10
    p(f"""L_helper:
    s_sub_u32 s{HW}, s{sWAVE}, 4
    s_lshl_b32 s{A}, s{sCT}, 1
    s_add_u32 s{B}, s{A}, 1
    s_min_u32 s{B}, s{B}, 14""")
    colbyte(CA_,A); colbyte(CB_,B)
    p(f"""v_lshrrev_b32 v{vt}, 3, v0
    v_mul_u32_u24 v{vX}, 1280, v{vt}
    v_lshrrev_b32 v{vt+1}, 4, v0
    v_and_b32 v{vt+2}, 7, v0
    v_xor_b32 v{vt+2}, v{vt+2}, v{vt+1}
    v_lshl_add_u32 v{vX}, v{vt+2}, 4, v{vX}
    v_xor_b32 v{vX+1}, 64, v{vX}
    v_add_u32 v{vX+1}, {10240-1024}, v{vX+1}
    v_add_u32 v{vX+2}, {2*(10240-1024)}, v{vX}
    v_add_u32 v{vX+3}, {2*(10240-1024)}, v{vX+1}
    v_lshlrev_b32 v{vt+2}, 2, v{vt+1}
    v_and_b32 v{vt+3}, 15, v0
    v_xor_b32 v{vt+2}, v{vt+2}, v{vt+3}
    v_cmp_lt_u32 vcc, 7, v{vt+2}
    v_mov_b32 v{vt+3}, s{CA_}
    v_mov_b32 v{vt+4}, s{CB_}
    v_cndmask_b32 v{vt+3}, v{vt+3}, v{vt+4}, vcc
    v_and_b32 v{vt+2}, 7, v{vt+2}
    v_lshl_add_u32 v{vt+3}, v{vt+2}, 4, v{vt+3}
    v_mul_u32_u24 v{vW}, 3840, v{vt+1}
    v_add_u32 v{vW}, v{vW}, v{vt+3}""")
    for i in range(1,4): p(f"v_add_u32 v{vW+i}, {i*(4*3840-1024)}, v{vW}")
    ra,rb_=CFG['rot']
    p(f"""s_mul_i32 s{CH}, s{sRB}, {ra}
    s_mul_i32 s{A}, s{sCT}, {rb_}
    s_add_u32 s{CH}, s{CH}, s{A}
    s_mul_i32 s{A}, s{CH}, 205
    s_lshr_b32 s{A}, s{A}, 11
    s_mul_i32 s{A}, s{A}, 10
    s_sub_u32 s{CH}, s{CH}, s{A}
    s_lshl_b32 s{A}, s{sRQ}, 2
    s_add_u32 s{A}, s{A}, s{sRB}
    s_lshl_b32 s{A}, s{A}, 2
    s_add_u32 s{A}, s{A}, s{HW}
    s_mul_i32 s{XO}, s{A}, {32*1280}
    s_mul_i32 s{WO_}, s{HW}, {16*3840}
    s_lshl_b32 s{LB}, s{HW}, 12""")
    def issue(c):
        slot=(c%4)*32768
        p(f"""s_lshl_b32 s{A}, s{CH}, 7
        s_add_u32 s{A}, s{A}, s{XO}
        s_add_u32 m0, s{LB}, {slot}
        s_mul_i32 s{B}, s{CH}, {64*3840}""")
        for i in range(4): p(f"buffer_load_dwordx4 v{vX+i}, {S4(sX)}, s{A} offen offset:{i*1024} lds")
        p(f"""s_add_u32 m0, s{LB}, {slot+16384}
        s_add_u32 s{B}, s{B}, s{WO_}""")
        for i in range(4): p(f"buffer_load_dwordx4 v{vW+i}, {S4(sW)}, s{B} offen offset:{i*1024} lds")
        p(f"""s_add_u32 s{CH}, s{CH}, 1
        s_cmp_eq_u32 s{CH}, 10
        s_cselect_b32 s{CH}, 0, s{CH}""")
    pre=CFG['pre']
    for c in range(pre): issue(c)
    p(f"""v_cmp_lt_u32 vcc, 7, v0
    v_lshlrev_b32 v{vt}, 4, v0
    v_add_u32 v{vt}, {L_FLG}, v{vt}
    v_cndmask_b32 v{vt+2}, 0, -1, vcc
    v_cndmask_b32 v{vt+3}, 0, -1, vcc
    v_cndmask_b32 v{vt+4}, 0, -1, vcc
    v_cndmask_b32 v{vt+5}, 0, -1, vcc
    ds_write_b128 v{vt}, v[{vt+2}:{vt+5}]""")
    p("s_waitcnt lgkmcnt(0)")
    mktag()
    issued=pre
    global OPS
    OPS=[c for c in range(pre) for _ in range(8)]
    for c in range(8):
        vmwait(c)
        p("s_barrier")
        STAMP('ld%d'%c)
        if c==0: STAMP('hb0')
        if c==6:
            p(f"""v_lshlrev_b32 v{vH+4}, 4, v0
            v_add_u32 v{vH+4}, {H1}, v{vH+4}
            buffer_load_dwordx4 v[{vH}:{vH+3}], v{vH+4}, {S4(sWS)}, 0 offen sc1""")
            OPS.append('h1')
        for _ in range(CFG['sched'][c]):
            assert issued<min(10,c+4); issue(issued); OPS+=[issued]*8; issued+=1
        if c==CFG['pt']:
            p(f"""s_lshl_b32 s{A}, s{sSLOT}, 2
            s_add_u32 s{A}, s{A}, s{HW}
            s_mul_i32 s{A}, s{A}, 60
            v_min_u32 v{vt}, 59, v0
            v_add_u32 v{vt}, s{A}, v{vt}
            v_mul_u32_u24 v{vt+1}, 6554, v{vt}
            v_lshrrev_b32 v{vt+1}, 20, v{vt+1}
            v_mul_u32_u24 v{vt+2}, 160, v{vt+1}
            v_sub_u32 v{vt}, v{vt}, v{vt+2}
            v_lshlrev_b32 v{vt}, 7, v{vt}
            v_cmp_gt_u32 vcc, 32, v{vt+1}
            v_and_b32 v{vt+2}, 1, v{vt+1}
            v_mul_u32_u24 v{vt+2}, 20480, v{vt+2}
            v_bfe_u32 v{vt+3}, v{vt+1}, 1, 3
            v_mul_u32_u24 v{vt+3}, 163840, v{vt+3}
            v_add_u32 v{vt+2}, v{vt+2}, v{vt+3}
            v_lshrrev_b32 v{vt+3}, 4, v{vt+1}
            v_mul_u32_u24 v{vt+3}, {KB}, v{vt+3}
            s_mul_i32 s{A}, s{sRQ}, 40960
            v_add3_u32 v{vt+2}, v{vt+2}, v{vt+3}, s{A}
            v_and_b32 v{vt+3}, 15, v{vt+1}
            v_mul_u32_u24 v{vt+3}, 81920, v{vt+3}
            s_mul_i32 s{A}, s{sRQ}, 20480
            s_add_u32 s{A}, s{A}, {VB}
            v_add_u32 v{vt+3}, s{A}, v{vt+3}
            v_cndmask_b32 v{vt+2}, v{vt+3}, v{vt+2}, vcc
            v_add_u32 v{vt}, v{vt}, v{vt+2}
            s_mul_i32 s{A}, s{sHH}, {8*163840}
            buffer_load_dword v{vt+5}, v{vt}, {S4(sWS)}, s{A} offen""")
            OPS.append('pt')
    assert issued==10
    p(f"s_cmp_ge_u32 s{HW}, 2\ns_cbranch_scc1 L_helperB")
vH=16
OPS=[]
def vmwait(*tags):
    last=max(i for i,t in enumerate(OPS) if t in tags)
    n=len(OPS)-1-last; assert n<64
    p(f"s_waitcnt vmcnt({n})")
HW=sT
def spin(cnt,lp,ok,sleep=0):
    p(f"s_sub_u32 s{cnt}, s{cnt}, 1\ns_cbranch_scc1 {ok}")
    if sleep: p(f"s_sleep {sleep}")
def lds_wait(addr_v,tmp,cnt,cmp,val,sleep=1):
    lp=p.lab("lw"); ok=p.lab("lwok")
    p(f"""s_mov_b32 s{cnt}, {SPIN*4}
    {lp}:
    ds_read_b32 v{tmp}, v{addr_v}
    s_waitcnt lgkmcnt(0)
    v_cmp_{cmp}_u32 vcc, {val}, v{tmp}
    s_nop 0
    s_cbranch_vccz {ok}""")
    spin(cnt,lp,ok,sleep)
    p(f"s_branch {lp}\n{ok}:")
sHL,sHF,sHO,sPH,sHD,sT0=range(sT+1,sT+7)
def att_ids():
    p(f"""s_lshr_b32 s{sHL}, s{sSLOT}, 1
    s_and_b32 s{sHF}, s{sSLOT}, 1
    s_and_b32 s{sHO}, s{sHL}, 1
    s_lshr_b32 s{sPH}, s{sHL}, 1
    s_lshl_b32 s{sHD}, s{sHH}, 3
    s_add_u32 s{sPH}, s{sPH}, s{sHD}
    s_lshl_b32 s{sHD}, s{sHH}, 4
    s_add_u32 s{sHD}, s{sHD}, s{sHL}
    s_lshl_b32 s{sT0}, s{sRQ}, 1
    s_add_u32 s{sT0}, s{sT0}, s{sHF}
    s_lshl_b32 s{sT0}, s{sT0}, 3""")
def flag_addr(vd,vt,withq,A,B,C):
    p(f"""s_lshr_b32 s{A}, s{sHL}, 1
    s_mul_i32 s{A}, s{A}, 5
    s_lshl_b32 s{B}, s{sHO}, 1
    s_add_u32 s{A}, s{A}, s{B}
    s_add_u32 s{B}, s{A}, 2
    s_lshr_b32 s{A}, s{A}, 3
    s_lshr_b32 s{B}, s{B}, 3
    s_lshl_b32 s{B}, s{B}, 4
    s_or_b32 s{A}, s{A}, s{B}
    s_add_u32 s{B}, s{A}, 0x55
    s_lshl_b32 s{C}, s{B}, 8
    s_or_b32 s{A}, s{C}, s{A if withq else B}
    s_mul_i32 s{B}, s{sHL}, 20
    s_add_u32 s{C}, s{B}, 19
    s_lshr_b32 s{B}, s{B}, 6
    s_lshr_b32 s{C}, s{C}, 6
    s_lshl_b32 s{C}, s{C}, 4
    s_or_b32 s{B}, s{B}, s{C}
    s_add_u32 s{B}, s{B}, 0xaa
    s_lshl_b32 s{B}, s{B}, 16
    s_or_b32 s{A}, s{A}, s{B}
    v_and_b32 v{vt}, 60, v0
    v_min_u32 v{vt}, 20, v{vt}
    v_bfe_u32 v{vt}, s{A}, v{vt}, 4
    v_and_b32 v{vd}, 3, v0
    v_lshlrev_b32 v{vd}, 2, v{vd}
    v_lshl_add_u32 v{vd}, v{vt}, 7, v{vd}""")
def flag_poll(va,vt,soff,cnt,first=True,sleep=0):
    lp=p.lab("fp"); ok=p.lab("fpok");
    p(f"s_mov_b32 s{cnt}, {SPIN}")
    if not first:
        md=p.lab("fpm"); p(f"s_branch {md}")
    p(f"""{lp}:
    buffer_load_dword v{vt}, v{va}, {S4(sWS)}, s{soff} offen sc1""")
    if not first: p(f"{md}:")
    p(f"""s_waitcnt vmcnt(0)
    v_cmp_ne_u32 vcc, s{sTAG}, v{vt}
    s_nop 0
    s_cbranch_vccz {ok}""")
    spin(cnt,lp,ok,sleep)
    p(f"s_branch {lp}\n{ok}:")
def kv_dma(aLin,aTl,sK,sV,sL,A,B):
    p(f"""s_mul_i32 s{A}, s{sHO}, 1536
    s_add_u32 s{A}, s{A}, s{sK}
    s_mov_b32 m0, s{sL}
    s_add_u32 s{B}, s{A}, 1536
    buffer_load_dwordx4 v{aLin}, {S4(sWS)}, s{A} offen sc1 lds
    buffer_load_dwordx4 v{aLin}, {S4(sWS)}, s{B} offen offset:1024 sc1 lds
    s_sub_u32 s{A}, s{sK}, 2048
    s_sub_u32 s{B}, s{sV}, 3072
    buffer_load_dwordx4 v{aTl}, {S4(sWS)}, s{A} offen offset:2048 sc1 lds
    buffer_load_dwordx4 v{aLin}, {S4(sWS)}, s{B} offen offset:3072 sc1 lds
    s_add_u32 m0, s{sL}, 4096
    s_add_u32 s{B}, s{sV}, 1024
    buffer_load_dwordx4 v{aLin}, {S4(sWS)}, s{B} offen sc1 lds
    s_mov_b64 exec, s[{sLO}:{sLO+1}]
    buffer_load_dwordx4 v{aLin}, {S4(sWS)}, s{B} offen offset:1024 sc1 lds
    s_mov_b64 exec, -1""")
def kv_addr(aLin,aTl,t):
    p(f"""v_lshlrev_b32 v{aLin}, 4, v0
    v_lshrrev_b32 v{t}, 5, v0
    v_mul_u32_u24 v{t}, {2560-512}, v{t}
    v_add3_u32 v{aTl}, v{aLin}, v{t}, s{sK1024}""")
sK1024=sT+21

def helperA():
    global OPS
    save=list(OPS)
    A=sT+7; B=sT+8; vt=10; vS=20
    vmwait(8,'h1')
    lp=p.lab("hello"); ok=p.lab("hello_ok"); ne=p.lab("noep")
    p(f"""s_mov_b32 s{A}, {SPIN}
    {lp}:
    v_xor_b32 v{vH}, s{sTAG}, v{vH}
    v_xor_b32 v{vH+1}, s{sTAG}, v{vH+1}
    v_xor_b32 v{vH+2}, s{sTAG}, v{vH+2}
    v_xor_b32 v{vH+3}, s{sTAG}, v{vH+3}
    v_or3_b32 v{vt}, v{vH}, v{vH+1}, v{vH+2}
    v_or_b32 v{vt}, v{vt}, v{vH+3}
    v_cmp_lt_u32 vcc, 15, v{vt}
    s_nop 0
    s_cbranch_vccz {ok}""")
    spin(A,lp,ok,4)
    p(f"""buffer_load_dwordx4 v[{vH}:{vH+3}], v{vH+4}, {S4(sWS)}, 0 offen sc1
    s_waitcnt vmcnt(0)
    s_branch {lp}
    {ok}:
    v_lshl_or_b32 v{vH}, v{vH+1}, 4, v{vH}
    v_lshl_or_b32 v{vH+2}, v{vH+3}, 4, v{vH+2}
    v_lshl_or_b32 v{vH}, v{vH+2}, 8, v{vH}
    v_and_b32 v{vt}, 1, v0
    v_readlane_b32 s{A}, v{vH}, 0
    v_readlane_b32 s{B}, v{vH}, 1
    v_cmp_eq_u32 vcc, 0, v{vt}
    v_mov_b32 v{vt+1}, s{A}
    v_mov_b32 v{vt+2}, s{B}
    v_cndmask_b32 v{vt+1}, v{vt+2}, v{vt+1}, vcc
    v_cmp_ne_u32 vcc, v{vt+1}, v{vH}
    v_mov_b32 v{vt}, {L_MODE}
    s_cmp_lg_u64 vcc, 0
    s_cselect_b32 s{sMODE}, 1, {CFG['force_slow']}
    v_mov_b32 v{vt+1}, s{sMODE}
    ds_write_b32 v{vt}, v{vt+1}
    s_add_u32 s{A}, s2, s{HW}
    s_cmp_lg_u32 s{A}, 0
    s_cbranch_scc1 {ne}
    s_add_u32 s{A}, s{sEP}, 1
    v_mov_b32 v{vt}, {EPO}
    v_mov_b32 v{vt+1}, s{A}
    s_mov_b64 exec, 1
    buffer_store_dword v{vt+1}, v{vt}, {S4(sWS)}, 0 offen sc1
    s_mov_b64 exec, -1
    {ne}:
    s_waitcnt lgkmcnt(0)
    s_barrier""")
    HS=[sT+9,sT+13]; HA=[24,28]
    for k in range(2):
        p(f"s_add_u32 s{sT+5}, s{HW}, {2*k}")
        wave_ids(sT+5,sT+1,sT+2,sT+3,sT+4)
        store_addr(sT+1,sT+3,sT+4,HS[k],HS[k]+1,HS[k]+2,HS[k]+3,HA[k],sT+17,sT+18)
        p(f"""s_add_u32 s{HS[k]}, s{HS[k]}, {KH-KB}
        s_add_u32 s{HS[k]+1}, s{HS[k]+1}, {KH-KB}
        s_add_u32 s{HS[k]+3}, s{HS[k]+3}, {FH-FL}""")
    p("s_waitcnt vmcnt(0)\ns_barrier")
    STAMP('hb9')
    lp=p.lab("stp"); ok=p.lab("stok")
    p(f"""s_lshl_b32 s{A}, s{sG}, 2
    s_add_u32 s{A}, s{A}, s{sRB}
    s_lshl_b32 s{A}, s{A}, 1
    s_add_u32 s{A}, s{A}, s{HW}
    s_lshl_b32 s{A}, s{A}, 10
    s_add_u32 s{A}, s{A}, {ST1}
    v_lshlrev_b32 v{vt}, 4, v0
    buffer_load_dwordx4 v[{vS}:{vS+3}], v{vt}, {S4(sWS)}, s{A} offen sc1
    s_lshl_b32 s{B}, s{HW}, 9
    s_add_u32 s{B}, s{B}, {L_SA}
    v_lshl_add_u32 v{vt+1}, v0, 3, s{B}
    s_lshl_b32 s{B}, s{HW}, 8
    s_add_u32 s{B}, s{B}, {L_SR}
    v_lshl_add_u32 v{vt+2}, v0, 2, s{B}
    s_barrier
    s_mov_b32 s{B}, {SPIN}
    {lp}:
    s_waitcnt vmcnt(0)
    v_cmp_ne_u32 vcc, s{sTAG}, v{vS+2}
    s_nop 0
    s_cbranch_vccz {ok}""")
    spin(B,lp,ok)
    p(f"""buffer_load_dwordx4 v[{vS}:{vS+3}], v{vt}, {S4(sWS)}, s{A} offen sc1
    s_branch {lp}
    {ok}:
    ds_write_b64 v{vt+1}, v[{vS}:{vS+1}]
    ds_write_b32 v{vt+2}, v{vS+1}
    s_waitcnt lgkmcnt(0)
    s_barrier""")
    STAMP('hE1')
    att_ids()
    aLin=6; aTl=7; aF=8; D=32
    p(f"s_mov_b32 s{sK1024}, 1024")
    kv_addr(aLin,aTl,vt)
    flag_addr(aF,vt,0,A,B,sT+17)
    for k in range(2):
        sk=p.lab("nohalo")
        p(f"""s_cmp_eq_u32 s{HS[k]+2}, 0
        s_cbranch_scc1 {sk}
        s_add_u32 s{A}, s{HW}, {2*k}
        s_lshl_b32 s{B}, s{A}, 2
        s_add_u32 s{B}, s{B}, {F_STG}
        v_mov_b32 v{vt}, s{B}
        s_lshl_b32 s{A}, s{A}, 13
        v_add_u32 v{vt+1}, s{A}, v{aLin}""")
        lds_wait(vt,vt+5,B,'eq',0,1)
        for i in range(8): p(f"ds_read_b128 {vr(D+32*k+4*i,4)}, v{vt+1} offset:{L_STG+i*1024}")
        for i in range(8):
            p(f"s_waitcnt lgkmcnt({7-i})\nbuffer_store_dwordx4 {vr(D+32*k+4*i,4)}, v{HA[k]+(i&3)}, {S4(sWS)}, s{HS[k]+(i>>2)} offen sc1")
        p(f"{sk}:")
    p(f"""v_mov_b32 v{vt}, {F_SCP}
    v_mov_b32 v{vt+1}, 1
    v_mov_b32 v{vt+2}, 0
    v_mov_b32 v{vt+3}, s{sTAG}
    s_mov_b64 exec, 1
    ds_add_u32 v{vt}, v{vt+1}
    s_waitcnt vmcnt(0)""")
    for k in range(2):
        sk=p.lab("nohf")
        p(f"""s_cmp_eq_u32 s{HS[k]+2}, 0
        s_cbranch_scc1 {sk}
        buffer_store_dword v{vt+3}, v{vt+2}, {S4(sWS)}, s{HS[k]+3} offen sc1
        {sk}:""")
    p("s_mov_b64 exec, -1")
    STAMP('halo')
    sF=sT+9; sK=sT+10; sV=sT+11; sL=sT+12; C=sT+13
    dn=p.lab("g2done")
    p(f"""s_cmp_eq_u32 s{sT0}, 0
    s_cbranch_scc1 {dn}
    s_cmp_eq_u32 s{sHF}, 0
    s_cselect_b32 s{A}, {FH-2*2048+16-FL}, 0
    s_cselect_b32 s{B}, {KH-KB}, 0
    s_lshl_b32 s{sF}, s{sG}, 11
    s_add_u32 s{sF}, s{sF}, s{A}
    s_add_u32 s{sF}, s{sF}, {FL}
    s_lshl_b32 s{A}, s{HW}, 2
    s_sub_u32 s{A}, s{sT0}, s{A}
    s_sub_u32 s{A}, s{A}, 2
    s_mul_i32 s{sK}, s{A}, 2560
    s_mul_i32 s{sV}, s{A}, 1280
    s_mul_i32 s{A}, s{sPH}, {64*2560}
    s_add_u32 s{sK}, s{sK}, s{A}
    s_add_u32 s{sK}, s{sK}, s{B}
    s_add_u32 s{sK}, s{sK}, {KB}
    s_mul_i32 s{A}, s{sHD}, 81920
    s_add_u32 s{sV}, s{sV}, s{A}
    s_add_u32 s{sV}, s{sV}, s{B}
    s_add_u32 s{sV}, s{sV}, {VB}
    s_mul_i32 s{sL}, s{HW}, {-2*5632}
    s_add_u32 s{sL}, s{sL}, {L_KV+3*5632}""")
    lds_wait(vt,vt+5,C,'gt',2,1)
    flag_poll(aF,vt+5,sF,C,sleep=1)
    kv_dma(aLin,aTl,sK,sV,sL,A,B)
    p(f"""s_sub_u32 s{sK}, s{sK}, 5120
    s_sub_u32 s{sV}, s{sV}, 2560
    s_sub_u32 s{sL}, s{sL}, 5632""")
    kv_dma(aLin,aTl,sK,sV,sL,A,B)
    p(f"""s_waitcnt vmcnt(0)
    {dn}:
    v_mov_b32 v{vt}, {F_G2}
    s_mov_b64 exec, 1
    ds_add_u32 v{vt}, v{vt+1}
    s_mov_b64 exec, -1""")
    STAMP('g2')
    OPS=save

def tr_addr(a0,t):
    tab=[[0,8],[4,12],[16,36],[20,28],[24,32]]
    pk=[sum((tab[u][rd]//4)<<(4*u) for u in range(5)) for rd in range(2)]
    A=sT+7; B=sT+8
    p(f"""s_mov_b32 s{A}, {pk[0]}
    s_mov_b32 s{B}, {pk[1]}
    v_bfe_u32 v{t}, v0, 2, 2
    v_mul_u32_u24 v{t}, 160, v{t}
    v_and_b32 v{t+1}, 3, v0
    v_mad_u32_u24 v{t}, v{t+1}, 40, v{t}
    v_lshrrev_b32 v{t+1}, 4, v0""")
    for s_ in range(5):
        p(f"""v_add_u32 v{t+2}, {4*s_}, v{t+1}
        v_mul_u32_u24 v{t+4}, 52, v{t+2}
        v_lshrrev_b32 v{t+4}, 8, v{t+4}
        v_mul_u32_u24 v{t+5}, 5, v{t+4}
        v_sub_u32 v{t+2}, v{t+2}, v{t+5}
        v_lshlrev_b32 v{t+2}, 2, v{t+2}
        v_mul_u32_u24 v{t+4}, 10, v{t+4}""")
        for rd in range(2):
            p(f"""v_bfe_u32 v{t+3}, s{(A,B)[rd]}, v{t+2}, 4
            v_add_u32 v{t+3}, v{t+3}, v{t+4}
            v_mul_u32_u24 v{t+3}, 640, v{t+3}
            v_add_u32 v{a0+2*s_+rd}, v{t+3}, v{t}""")
sBLK,sJ=sT+9,sT+10
def wo_ids():
    p(f"""s_lshr_b32 s{sBLK}, s{sSLOT}, 3
    s_lshl_b32 s{sJ}, s{sG}, 2
    s_add_u32 s{sBLK}, s{sBLK}, s{sJ}
    s_and_b32 s{sJ}, s{sSLOT}, 7""")
def helperB():
    global OPS
    A=sT+7; B=sT+8; vt=2; aD=20; aT=26; aLin=12; D=40
    sO=sT+1; sL=sT+2; sL0=sT+3; sL1=sT+4; C=sT+5
    p("L_helperB:")
    wo_ids()
    for i in range(5):
        p(f"""v_add_u32 v{vt}, {64*i}, v0
        v_mul_u32_u24 v{vt+1}, 6554, v{vt}
        v_lshrrev_b32 v{vt+1}, 16, v{vt+1}
        v_mul_u32_u24 v{vt+2}, 10, v{vt+1}
        v_sub_u32 v{vt}, v{vt}, v{vt+2}
        v_mul_u32_u24 v{vt+1}, 1280, v{vt+1}
        v_lshl_add_u32 v{aD+i}, v{vt}, 4, v{vt+1}""")
        if 0<i<4: p(f"v_subrev_u32 v{aD+i}, {i*1024}, v{aD+i}")
    p(f"""s_mul_i32 s{sO}, s{HW}, {160*1280}
    s_mul_i32 s{A}, s{sJ}, 160
    s_add_u32 s{sO}, s{sO}, s{A}
    s_mul_i32 s{sL0}, s{HW}, 25600
    s_add_u32 s{sL0}, s{sL0}, {L_WO}
    s_sub_u32 s{sL1}, s{sL0}, 51200
    s_mov_b32 s{sL}, s{sL0}""")
    st=dict(n=0)
    def dma(cnt):
        for _ in range(cnt):
            n=st['n']; i=n%5
            if n==25:
                p(f"s_sub_u32 s{sO}, s{sO}, {(320+160)*1280}\ns_mov_b32 s{sL}, s{sL1}")
            if i==0: p(f"s_mov_b32 m0, s{sL}\ns_nop 0")
            if i==4: p(f"s_add_u32 m0, s{sL}, 4096\ns_add_u32 s{sL}, s{sL}, 5120")
            if not CFG['nowo']: p(f"buffer_load_dwordx4 v{aD+i}, {S4(sWO)}, s{sO} offen offset:{(i&3)*1024} lds")
            if i==4: p(f"s_add_u32 s{sO}, s{sO}, {32*1280}")
            if not CFG['nowo'] or n in (0,25): OPS.append('wo%d'%(n//25))
            st['n']+=1
    n8,n9,n10=CFG['wos']
    vmwait(8); p("s_barrier")
    dma(n8)
    p(f"v_mov_b32 v{vt+8}, {L_MODE}\nds_read_b32 v{vt+9}, v{vt+8}")
    vmwait(9); p("s_barrier")
    dma(n9)
    tr_addr(aT,vt)
    p(f"v_lshlrev_b32 v{aLin}, 4, v0\ns_waitcnt lgkmcnt(0)\nv_readfirstlane_b32 s{sMODE}, v{vt+9}")
    p("s_barrier")
    dma(n10)
    for r in range(4): p(f"v_mov_b32 v{D+r}, -1")
    p("s_barrier")
    STAMP('hE1')
    nc=p.lab("noclr")
    p(f"""s_cmp_lg_u32 s{HW}, {2+8*CFG['noclr']}
    s_cbranch_scc1 {nc}
    s_lshr_b32 s{A}, s{sJ}, 1
    s_lshl_b32 s{B}, s{sBLK}, 2
    s_add_u32 s{A}, s{A}, s{B}
    s_mul_i32 s{A}, s{A}, 20480
    s_and_b32 s{B}, s{sJ}, 1
    s_mul_i32 s{B}, s{B}, 5120
    s_add_u32 s{A}, s{A}, s{B}
    s_add_u32 s{A}, s{A}, {OB}
    s_mul_i32 s{B}, s{sHH}, 10240
    s_add_u32 s{C}, s{A}, 10240
    s_add_u32 s{A}, s{A}, s{B}
    s_sub_u32 s{C}, s{C}, s{B}
    s_add_u32 s{B}, s{C}, 4096""")
    st4=lambda so,off,sc="": f"buffer_store_dwordx4 v[{D}:{D+3}], v{aLin}, {S4(sWS)}, s{so} offen offset:{off}{sc}"
    for i in range(4): p(st4(C,i*1024," sc1"))
    p(st4(B,0," sc1"))
    p(f"""s_mul_i32 s{C}, s2, 2560
    s_add_u32 s{C}, s{C}, {CAND}""")
    p(st4(C,0," sc1")); p(st4(C,1024," sc1")); p(st4(C,1536," sc1"))
    p(f"""s_min_u32 s{C}, s2, 27
    s_lshl_b32 s{C}, s{C}, 10
    s_add_u32 s{C}, s{C}, {CA}""")
    sk=p.lab("noca")
    p(f"s_cmp_ge_u32 s2, 28\ns_cbranch_scc1 {sk}")
    p(st4(C,0," sc1"))
    p(f"""{sk}:
    s_add_u32 s{B}, s{A}, 4096
    s_lshl_b32 s{C}, s{sBLK}, 3
    s_add_u32 s{C}, s{C}, s{sJ}
    s_lshl_b32 s{C}, s{C}, 10
    s_add_u32 s{C}, s{C}, {PS}""")
    dual([st4(A,i*1024) for i in range(4)]+[st4(B,0),st4(C,0)])
    p(f"""v_min_u32 v{vt}, 39, v0
    v_lshlrev_b32 v{vt}, 7, v{vt}
    v_and_b32 v{vt+1}, 7, v0
    v_lshlrev_b32 v{vt+1}, 7, v{vt+1}
    buffer_load_dword v{vt+2}, v{vt}, {S4(sWS)}, s{A} offen
    buffer_load_dword v{vt+3}, v{vt+1}, {S4(sWS)}, s{C} offen""")
    p(f"{nc}:")
    OPS.append('clr')
    if not CFG['wogate']: dma(50-st['n'])
    vmwait('clr')
    nh=p.lab("noh2")
    p(f"""s_cmp_lg_u32 s{HW}, 2
    s_cbranch_scc1 {nh}
    s_lshl_b32 s{A}, s2, 2
    s_add_u32 s{A}, s{A}, {H2}
    v_mov_b32 v{vt}, 0
    v_mov_b32 v{vt+1}, s{sTAG}
    s_mov_b64 exec, 1
    buffer_store_dword v{vt+1}, v{vt}, {S4(sWS)}, s{A} offen sc1
    s_mov_b64 exec, -1
    {nh}:""")
    STAMP('clr')
    if CFG['wogate']:
        p(f"v_mov_b32 v{vt}, {F_G1}")
        lds_wait(vt,vt+1,A,'gt',4,2)
        STAMP('wo_s')
        while st['n']<50:
            dma(5-st['n']%5)
            if st['n']<50: p(f"s_waitcnt vmcnt({CFG['wothr']})")
    def transp(sb):
        for k in range(10): p(f"v_add_u32 v{aT+k}, s{sb}, v{aT+k}")
        p(f"v_add_u32 v{vt}, s{sb}, v{aLin}")
        for s_ in range(5):
            for t in range(5):
                for rd in range(2): p(f"ds_read_b64_tr_b16 {vr(D+20*s_+4*t+2*rd,2)}, v{aT+2*s_+rd} offset:{8*t}")
        p("s_waitcnt lgkmcnt(0)")
        for s_ in range(5):
            for t in range(5): p(f"ds_write_b128 v{vt}, {vr(D+20*s_+4*t,4)} offset:{s_*5120+t*1024}")
    vmwait('wo0')
    STAMP('wo_0')
    transp(sL0)
    STAMP('wo_t0')
    p("s_waitcnt vmcnt(0)")
    for k in range(10): p(f"v_subrev_u32 v{aT+k}, s{sL0}, v{aT+k}")
    STAMP('wo_1')
    transp(sL1)
    p(f"""v_mov_b32 v{vt}, {F_WOR}
    v_mov_b32 v{vt+1}, 1
    s_mov_b64 exec, 1
    ds_add_u32 v{vt}, v{vt+1}
    s_mov_b64 exec, -1""")
    STAMP('wo')
    sk=p.lab("noh2p"); lp=p.lab("h2p"); ok=p.lab("h2ok")
    p(f"""s_cmp_lg_u32 s{HW}, 3
    s_cbranch_scc1 {sk}
    s_mov_b32 s{A}, {SPIN}
    s_mov_b32 s{B}, {H2}
    {'s_branch '+ok if CFG['noh2'] else ''}
    {lp}:
    buffer_load_dwordx4 v[{D}:{D+3}], v{aLin}, {S4(sWS)}, s{B} offen sc1
    s_waitcnt vmcnt(0)
    v_xor_b32 v{D}, s{sTAG}, v{D}
    v_xor_b32 v{D+1}, s{sTAG}, v{D+1}
    v_xor_b32 v{D+2}, s{sTAG}, v{D+2}
    v_xor_b32 v{D+3}, s{sTAG}, v{D+3}
    v_or3_b32 v{D}, v{D}, v{D+1}, v{D+2}
    v_or_b32 v{D}, v{D}, v{D+3}
    v_cmp_ne_u32 vcc, 0, v{D}
    s_nop 0
    s_cbranch_vccz {ok}""")
    spin(A,lp,ok,32)
    p(f"""s_branch {lp}
    {ok}:
    v_mov_b32 v{vt}, {F_H2}
    ds_write_b32 v{vt}, v{vt+1}
    {sk}:""")
    STAMP('h2')

ACC=64; CS=128; XF=132; WF=148; SEL=164; aX=168; aW=172; aST=174; vT=2
sWR_,sWC,sLC,sTY,sSO,sHALO,sFO,sSO2=range(sT,sT+8)
def gemm_setup():
    t=vT; A=sT+10; B=sT+11
    wave_ids(sWAVE,sWR_,sWC,sLC,sTY)
    p(f"""v_and_b32 v{t}, 31, v0
    s_lshl_b32 s{A}, s{sWR_}, 6
    v_add_u32 v{t+1}, s{A}, v{t}
    v_lshlrev_b32 v{t+1}, 7, v{t+1}
    v_lshrrev_b32 v{t+2}, 5, v0
    v_bfe_u32 v{t+3}, v0, 1, 3
    v_xor_b32 v{t+3}, v{t+3}, v{t+2}
    v_lshl_add_u32 v{aX}, v{t+3}, 4, v{t+1}""")
    for s in range(1,4): p(f"v_xor_b32 v{aX+s}, {32*s}, v{aX}")
    p(f"""v_bfe_u32 v{t+3}, v0, 2, 2
    v_lshl_add_u32 v{t+4}, v{t+2}, 3, v{t+3}
    v_lshlrev_b32 v{t+4}, 8, v{t+4}
    s_lshl_b32 s{A}, s{sWC}, 1
    s_or_b32 s{A}, s{A}, s{sWR_}
    v_xor_b32 v{t+3}, s{A}, v{t+3}
    v_lshl_add_u32 v{t+4}, v{t+3}, 6, v{t+4}
    v_bfe_u32 v{t+3}, v0, 4, 1
    v_lshl_add_u32 v{t+4}, v{t+3}, 5, v{t+4}
    v_and_b32 v{t+5}, 3, v0
    v_lshl_add_u32 v{t+4}, v{t+5}, 3, v{t+4}
    v_add_u32 v{aW}, 16384, v{t+4}
    v_xor_b32 v{aW+1}, 64, v{aW}
    v_bfe_u32 v{t+4}, v0, 2, 1
    v_cmp_eq_u32 vcc, v{t+3}, v{t+4}
    v_mov_b32 v{t+5}, 0x3f803f80
    s_nop 0
    v_cndmask_b32 v{SEL}, 0, v{t+5}, vcc
    v_cndmask_b32 v{SEL+1}, 0, v{t+5}, vcc
    v_cndmask_b32 v{SEL+2}, 0, v{t+5}, vcc
    v_cndmask_b32 v{SEL+3}, 0, v{t+5}, vcc""")
    for r in list(range(ACC,ACC+64))+list(range(CS,CS+4)): p(f"v_mov_b32 v{r}, 0")
    store_addr(sWR_,sLC,sTY,sSO,sSO2,sHALO,sFO,aST,sT+10,sT+11)
def wave_ids(wave,wr,wc,lc,ty):
    p(f"""s_and_b32 s{wr}, s{wave}, 1
    s_lshr_b32 s{wc}, s{wave}, 1
    s_lshl_b32 s{lc}, s{sCT}, 1
    s_add_u32 s{lc}, s{lc}, s{wc}
    s_mul_i32 s{ty}, s{lc}, 52
    s_lshr_b32 s{ty}, s{ty}, 8""")
def store_addr(wr,lc,ty,so,so2,halo,fo,ast,A,B):
    t=vT
    p(f"""v_and_b32 v{t}, 31, v0
    v_lshrrev_b32 v{t+2}, 5, v0
    s_mul_i32 s{A}, s{ty}, 5
    s_sub_u32 s{A}, s{lc}, s{A}
    s_mul_i32 s{B}, s{sHH}, 5
    s_add_u32 s{A}, s{A}, s{B}
    s_lshl_b32 s{B}, s{sRQ}, 2
    s_add_u32 s{B}, s{B}, s{sRB}
    s_lshl_b32 s{B}, s{B}, 1
    s_add_u32 s{B}, s{B}, s{wr}
    s_lshl_b32 s{B}, s{B}, 1""")
    isv=p.lab("isv"); jn=p.lab("stj")
    p(f"""s_cmp_ge_u32 s{ty}, 2
    s_cbranch_scc1 {isv}
    s_mul_i32 s{so}, s{B}, 2560
    s_mul_i32 s{B}, s{ty}, {KB}
    s_add_u32 s{so}, s{so}, s{B}
    s_add_u32 s{so2}, s{so}, 2560
    s_lshl_b32 s{A}, s{A}, 3""")
    for cb in range(2):
        for ip in range(2):
            p(f"""s_xor_b32 s{B}, s{wr}, {cb}
            s_lshl_b32 s{B}, s{B}, 2
            s_add_u32 s{B}, s{B}, s{A}
            s_add_u32 s{B}, s{B}, {2*ip}
            v_add_u32 v{t+3}, s{B}, v{t+2}
            v_mul_u32_u24 v{t+4}, 205, v{t+3}
            v_lshrrev_b32 v{t+4}, 10, v{t+4}
            v_mul_u32_u24 v{t+5}, 5, v{t+4}
            v_sub_u32 v{t+5}, v{t+3}, v{t+5}
            v_mul_u32_u24 v{t+4}, {64*2560}, v{t+4}
            v_lshl_add_u32 v{t+4}, v{t+5}, 9, v{t+4}
            v_lshl_add_u32 v{ast+2*cb+ip}, v{t}, 4, v{t+4}""")
    p(f"""s_branch {jn}
    {isv}:
    s_mul_i32 s{so}, s{B}, 1280
    s_add_u32 s{so}, s{so}, {VB}
    s_add_u32 s{so2}, s{so}, 1280
    s_lshl_b32 s{A}, s{A}, 6""")
    for cb in range(2):
        p(f"""s_xor_b32 s{B}, s{wr}, {cb}
        s_lshl_b32 s{B}, s{B}, 5
        s_add_u32 s{B}, s{B}, s{A}
        v_add_u32 v{t+3}, s{B}, v{t}
        v_mul_u32_u24 v{t+4}, 3277, v{t+3}
        v_lshrrev_b32 v{t+4}, 16, v{t+4}
        v_mul_u32_u24 v{t+5}, 20, v{t+4}
        v_sub_u32 v{t+5}, v{t+3}, v{t+5}
        v_mul_u32_u24 v{t+4}, 81920, v{t+4}
        v_lshl_add_u32 v{t+4}, v{t+5}, 4, v{t+4}
        v_mul_u32_u24 v{t+5}, 320, v{t+2}
        v_add_u32 v{ast+2*cb}, v{t+4}, v{t+5}
        v_add_u32 v{ast+2*cb+1}, 640, v{ast+2*cb}""")
    p(f"""{jn}:
    s_sub_u32 s{A}, s{ty}, 1
    s_cmp_lt_u32 s{A}, 2
    s_cselect_b32 s{halo}, 1, 0
    s_cmp_ge_u32 s{sRB}, 2
    s_cselect_b32 s{halo}, s{halo}, 0
    s_cmp_lt_u32 s{sRQ}, 3
    s_cselect_b32 s{halo}, s{halo}, 0
    s_lshl_b32 s{fo}, s{sG}, 4
    s_add_u32 s{fo}, s{fo}, s{lc}
    s_lshl_b32 s{fo}, s{fo}, 5
    s_lshl_b32 s{A}, s{sRB}, 1
    s_add_u32 s{A}, s{A}, s{wr}
    s_add_u32 s{fo}, s{fo}, s{A}
    s_lshl_b32 s{fo}, s{fo}, 2
    s_add_u32 s{fo}, s{fo}, {FL}""")
def xf(buf,xb): return XF+8*buf+4*xb
def wf(buf,cb): return WF+8*buf+4*cb
def reads(kind,buf,par,s):
    L=[]
    for xb in range(2): L.append(f"ds_read_b128 {vr(xf(buf,xb),4)}, v{aX+s} offset:{par*32768+xb*4096}")
    if kind!='S':
        for cb in range(2):
            for rd in range(2): L.append(f"ds_read_b64_tr_b16 {vr(wf(buf,cb)+2*rd,2)}, v{aW+cb} offset:{par*32768+s*4096+rd*1024}")
        L=[L[2],L[3],L[0],L[1],L[4],L[5]]
    return L
def mfmas(kind,buf):
    L=[]
    if kind=='S':
        for xb in range(2):
            x=xf(buf,xb)
            L.append(f"v_mfma_f32_16x16x32_bf16 {vr(ACC+4*xb,4)}, {vr(SEL,4)}, {vr(x,4)}, {vr(ACC+4*xb,4)}")
            L.append(f"v_mfma_f32_4x4x4_16b_bf16 {vr(ACC+8+8*xb,4)}, {vr(x,2)}, {vr(x,2)}, {vr(ACC+8+8*xb,4)}")
            L.append(f"v_mfma_f32_4x4x4_16b_bf16 {vr(ACC+12+8*xb,4)}, {vr(x+2,2)}, {vr(x+2,2)}, {vr(ACC+12+8*xb,4)}")
        return L
    for cb in range(2):
        for xb in range(2):
            a=ACC+16*(2*xb+cb); X=vr(xf(buf,xb),4); W=vr(wf(buf,cb),4)
            L.append(f"v_mfma_f32_32x32x16_bf16 {vr(a,16)}, {W if kind=='T' else X}, {X if kind=='T' else W}, {vr(a,16)}")
    L.insert(2,f"v_mfma_f32_16x16x32_bf16 {vr(CS,4)}, {vr(SEL,4)}, {vr(wf(buf,0),4)}, {vr(CS,4)}")
    return L
def gemm_loop(kind):
    CNT=sT+10
    lp=p.lab("g"+kind)
    p("s_barrier")
    STAMP('b0')
    for r in reads(kind,0,0,0): p(r)
    if kind!='S':
        sk=p.lab("nohello")
        p(f"""s_cmp_lg_u32 s{sWAVE}, 0
        s_cbranch_scc1 {sk}
        s_getreg_b32 s{CNT}, hwreg(HW_REG_XCC_ID, 0, 4)
        s_or_b32 s{CNT}, s{CNT}, s{sTAG}
        v_mov_b32 v{vT}, s{CNT}
        s_lshl_b32 s{CNT}, s2, 2
        s_add_u32 s{CNT}, s{CNT}, {H1}
        v_mov_b32 v{vT+1}, 0
        s_mov_b64 exec, 1
        buffer_store_dword v{vT}, v{vT+1}, {S4(sWS)}, s{CNT} offen sc1
        s_mov_b64 exec, -1
        {sk}:""")
    p(f"s_mov_b32 s{CNT}, 5\n{lp}:")
    for par in range(2):
        for s in range(4):
            buf=s&1
            last=(s==3)
            M=mfmas(kind,buf)
            if CFG['nomfma']: M=M[:1]
            if last and par==1:
                pre=[f"v_xor_b32 v{aX+i}, 0x10000, v{aX+i}" for i in range(4)]+[f"v_xor_b32 v{aW+i}, 0x10000, v{aW+i}" for i in range(2)]
            else: pre=[]
            R=reads(kind,buf^1,(par^1) if last else par,(s+1)&3)
            p("s_waitcnt lgkmcnt(0)")
            if last:
                p(M.pop(0))
                for x in pre: p(x)
                p("s_barrier")
            k=0
            while M or R:
                if R: p(R.pop(0))
                if R: p(R.pop(0))
                if M: p(M.pop(0))
    p(f"""s_sub_u32 s{CNT}, s{CNT}, 1
    s_cmp_lg_u32 s{CNT}, 0
    s_cbranch_scc1 {lp}""")
    STAMP('gend')
def bf16r(dst,src):
    p(f"v_cvt_pk_bf16_f32 v{dst}, v{src}, v{src}\nv_and_b32 v{dst}, 0xffff0000, v{dst}")
def mode_read():
    p(f"""v_mov_b32 v{vT+8}, {L_MODE}
    ds_read_b32 v{vT+9}, v{vT+8}""")
def mode_get():
    p(f"v_readfirstlane_b32 s{sMODE}, v{vT+9}")
def dual(stores):
    sl=p.lab("slow"); jn=p.lab("jn")
    p(f"s_cmp_lg_u32 s{sMODE}, 0\ns_cbranch_scc1 {sl}")
    for s in stores: p(s)
    p(f"s_branch {jn}\n{sl}:")
    for s in stores: p(s+" sc1")
    p(f"{jn}:")
def stats_epi():
    t=vT; A=sT+10
    mode_read()
    p(f"""v_and_b32 v{t}, 3, v0
    v_cmp_eq_u32 s[{A}:{A+1}], 1, v{t}
    v_cmp_eq_u32 s[{A+2}:{A+3}], 2, v{t}
    v_cmp_eq_u32 s[{A+4}:{A+5}], 3, v{t}
    s_nop 4""")
    for xb in range(2):
        g=ACC+8+8*xb
        for j in range(4): p(f"v_add_f32 v{g+j}, v{g+j}, v{g+4+j}")
        p(f"""v_cndmask_b32 v{g}, v{g}, v{g+1}, s[{A}:{A+1}]
        v_cndmask_b32 v{g}, v{g}, v{g+2}, s[{A+2}:{A+3}]
        v_cndmask_b32 v{g}, v{g}, v{g+3}, s[{A+4}:{A+5}]""")
    g0=ACC+8; g1=ACC+16
    p(f"""s_nop 1
    v_permlane32_swap_b32 v{g0}, v{g1}
    v_cndmask_b32 v{t+1}, v{ACC+4}, v{ACC}, s[{sLO}:{sLO+1}]
    v_add_f32 v{t+2}, v{g0}, v{g1}
    v_mul_f32 v{t+1}, {1/640!r}, v{t+1}
    v_mul_f32 v{t+2}, {1/640!r}, v{t+2}
    v_fma_f32 v{t+2}, -v{t+1}, v{t+1}, v{t+2}
    v_max_f32 v{t+2}, 0, v{t+2}""")
    bf16r(t+2,t+2)
    p(f"v_add_f32 v{t+2}, 0x3727c5ac, v{t+2}")
    bf16r(t+2,t+2)
    p(f"v_sqrt_f32 v{t+2}, v{t+2}\nv_xor_b32 v{t+1}, 0x80000000, v{t+1}")
    bf16r(t+2,t+2)
    p(f"""v_rcp_f32 v{t+5}, v{t+2}
    v_cvt_pk_bf16_f32 v{t+4}, v{t+1}, v{t+1}
    v_mov_b32 v{t+6}, s{sTAG}
    v_mov_b32 v{t+7}, s{sTAG}
    s_lshl_b32 s{A}, s{sG}, 2
    s_add_u32 s{A}, s{A}, s{sRB}
    s_lshl_b32 s{A}, s{A}, 1
    s_add_u32 s{A}, s{A}, s{sWR_}
    s_lshl_b32 s{A}, s{A}, 10
    s_add_u32 s{A}, s{A}, {ST1}
    v_lshlrev_b32 v{t+10}, 4, v0
    s_waitcnt lgkmcnt(0)""")
    mode_get()
    p("s_nop 0")
    dual([f"buffer_store_dwordx4 v[{t+4}:{t+7}], v{t+10}, {S4(sWS)}, s{A} offen"])
    p("s_barrier")
def gemm_epi(kind):
    t=vT; A=sT+10
    AU=20
    WA=24
    XA=28
    RS=32
    p(f"""v_and_b32 v{t}, 31, v0
    s_lshl_b32 s{A}, s{sWC}, 1
    s_or_b32 s{A}, s{A}, s{sWR_}
    s_lshl_b32 s{A}, s{A}, 7
    s_add_u32 s{A}, s{A}, {L_CS}
    v_lshl_add_u32 v{t+1}, v{t}, 2, s{A}
    s_lshl_b32 s{A}, s{sWR_}, 9
    s_add_u32 s{A}, s{A}, {L_SA}
    v_lshl_add_u32 v{t+3}, v{t}, 3, s{A}
    ds_write_b32 v{t+1}, v{CS}
    v_xor_b32 v{t+2}, 128, v{t+1}
    v_mov_b32 v{WA+1}, 0
    v_mov_b32 v{WA+3}, 0
    v_mov_b32 v{XA+1}, 0
    v_mov_b32 v{XA+3}, 0""")
    if kind=='V':
        p(f"""v_lshrrev_b32 v{t+4}, 5, v0
        s_lshl_b32 s{A}, s{sWR_}, 8
        s_add_u32 s{A}, s{A}, {L_SR}
        v_lshl_add_u32 v{t+4}, v{t+4}, 4, s{A}""")
    p("s_waitcnt lgkmcnt(0)\ns_barrier")
    STAMP('E1',1)
    p(f"""ds_read_b32 v{CS+1}, v{t+2}
    ds_read_b64 v[{AU}:{AU+1}], v{t+3}
    ds_read_b64 v[{AU+2}:{AU+3}], v{t+3} offset:256""")
    mode_read()
    if kind=='V':
        for xb in range(2):
            for i in range(4): p(f"ds_read_b128 {vr(RS+16*xb+4*i,4)}, v{t+4} offset:{xb*128+i*32}")
    def split(cb):
        c=CS+cb
        p(f"""v_cndmask_b32 v{c}, 0, v{c}, s[{sLO}:{sLO+1}]
        v_cvt_pk_bf16_f32 v{t+5}, v{c}, v{c}
        v_and_b32 v{t+5}, 0xffff0000, v{t+5}
        v_sub_f32 v{t+6}, v{c}, v{t+5}
        v_cvt_pk_bf16_f32 v{WA+2*cb}, v{t+5}, v{t+6}""")
    split(0)
    p(f"s_waitcnt lgkmcnt({8 if kind=='V' else 0})")
    split(1)
    p(f"v_mov_b32 v{XA}, v{AU}\nv_mov_b32 v{XA+2}, v{AU+2}")
    mode_get()
    if kind=='T':
        p(f"""s_cmp_eq_u32 s{sTY}, 0
        s_cselect_b32 s{A}, {hex(f2u(20**-0.5*math.log2(math.e)))}, 1.0
        v_mul_f32 v{AU+1}, s{A}, v{AU+1}
        v_mul_f32 v{AU+3}, s{A}, v{AU+3}""")
    else: p("s_nop 0")
    for xb in range(2):
        for cb in range(2):
            a=ACC+16*(2*xb+cb); X=vr(XA+2*xb,2); W=vr(WA+2*cb,2)
            p(f"v_mfma_f32_32x32x8_bf16 {vr(a,16)}, {W if kind=='T' else X}, {X if kind=='T' else W}, {vr(a,16)}")
    p("s_waitcnt lgkmcnt(0)\ns_nop 7")
    allst=[]
    for xb in range(2):
        st=[]
        for cb in range(2):
            a=ACC+16*(2*xb+cb)
            for k in range(8):
                if kind=='T': p(f"v_pk_mul_f32 {vr(a+2*k,2)}, {vr(a+2*k,2)}, {vr(AU+2*xb,2)} op_sel:[0,1] op_sel_hi:[1,1]")
                else: p(f"v_pk_mul_f32 {vr(a+2*k,2)}, {vr(a+2*k,2)}, {vr(RS+16*xb+2*k,2)}")
            for k in range(8): p(f"v_cvt_pk_bf16_f32 v{a+k}, v{a+2*k}, v{a+2*k+1}")
            if kind=='T':
                p(f"""v_permlane32_swap_b32 v{a}, v{a+2}
                v_permlane32_swap_b32 v{a+1}, v{a+3}
                v_permlane32_swap_b32 v{a+4}, v{a+6}
                v_permlane32_swap_b32 v{a+5}, v{a+7}""")
            for h in range(2):
                st.append(f"buffer_store_dwordx4 {vr(a+4*h,4)}, v{aST+2*cb+h}, {S4(sWS)}, s{sSO2 if xb else sSO} offen")
                allst.append(a+4*h)
        dual(st)
    STAMP('st')
    nh=p.lab("nohalo")
    p(f"""v_mov_b32 v{t}, 0
    v_mov_b32 v{t+1}, s{sTAG}
    s_cmp_eq_u32 s{sHALO}, 0
    s_cbranch_scc1 {nh}
    s_lshl_b32 s{A}, s{sWAVE}, 13
    v_lshl_add_u32 v{t+2}, v0, 4, s{A}
    s_lshl_b32 s{A}, s{sWAVE}, 2
    s_add_u32 s{A}, s{A}, {F_STG}
    v_mov_b32 v{t+3}, s{A}""")
    for i,r in enumerate(allst): p(f"ds_write_b128 v{t+2}, {vr(r,4)} offset:{L_STG+i*1024}")
    p(f"""ds_write_b32 v{t+3}, v{t+3}
    {nh}:
    s_waitcnt vmcnt(0)
    s_mov_b64 exec, 1""")
    dual([f"buffer_store_dword v{t+1}, v{t}, {S4(sWS)}, s{sFO} offen"])
    p(f"s_mov_b64 exec, -1")
    STAMP('fl')
import struct
def f2u(x): return struct.unpack("<I",struct.pack("<f",x))[0]

aLin,aTl,aKm,aKt,aV,aFl,aO=20,21,22,23,24,25,26
QM=[28,34]; QT=[32,38]; PP=40
KM=[48,62]; KT=[52,66]; VV=[[54,58],[68,72]]
SS=[80,96]; OO=[112,128]; CD=144; CF=160
sQ=[sT+9,sT+10]; sOm=[sT+11,sT+12]; sOt=[sT+13,sT+14]; sOSC=sT+15; sFB=sT+16
NINF="0xff800000"
def att_pro():
    t=vT; A=sT+7; B=sT+8; C=sT+17; sF=sT
    wo_pre1()
    att_ids()
    flag_addr(aFl,t,1,A,B,C)
    p(f"""s_lshl_b32 s{sF}, s{sG}, 11
    s_lshl_b32 s{A}, s{sHF}, 4
    s_add_u32 s{sF}, s{sF}, s{A}
    s_add_u32 s{sF}, s{sF}, {FL}
    buffer_load_dword v{t+10}, v{aFl}, {S4(sWS)}, s{sF} offen sc1
    s_mov_b32 s{sK1024}, 1024""")
    kv_addr(aLin,aTl,t)
    p(f"""v_add_u32 v{aKm}, {L_KV}, v{aLin}
    v_and_b32 v{t}, 31, v0
    v_lshrrev_b32 v{t+1}, 5, v0
    v_xor_b32 v{t+2}, s{sHO}, v{t+1}
    v_lshlrev_b32 v{t+2}, 3, v{t+2}
    v_lshl_add_u32 v{t+2}, v{t}, 4, v{t+2}
    v_add_u32 v{aKt}, {L_KV+2048}, v{t+2}
    v_mul_u32_u24 v{t+2}, 320, v{t+1}
    v_lshl_add_u32 v{t+2}, v{t}, 4, v{t+2}
    v_add_u32 v{aV}, {L_KV+3072}, v{t+2}
    v_lshlrev_b32 v{t+2}, 2, v{t+1}
    v_sub_u32 v{t+2}, v{t}, v{t+2}
    v_mov_b32 v{t+3}, {NINF}""")
    for i in range(16):
        m=C+1+2*(i%2)+((C+1)%2)
        ri=8*(i>>2)+(i&3)
        p(f"v_cmp_le_i32 s[{m}:{m+1}], {ri}, v{t+2}")
        if i>0:
            m2=C+1+2*((i-1)%2)+((C+1)%2)
            if i==1: p("s_nop 0")
            p(f"v_cndmask_b32 v{CD+i-1}, v{t+3}, 0, s[{m2}:{m2+1}]\nv_cndmask_b32 v{CF+i-1}, 0, v{t+3}, s[{m2}:{m2+1}]")
    p(f"""s_nop 0
    v_cndmask_b32 v{CD+15}, v{t+3}, 0, s[{m}:{m+1}]
    v_cndmask_b32 v{CF+15}, 0, v{t+3}, s[{m}:{m+1}]
    v_cmp_eq_u32 s[{m}:{m+1}], 20, v{t}
    v_cmp_eq_u32 vcc, 24, v{t}
    v_mov_b32 v{t+4}, 0x3f803f80
    s_or_b64 vcc, vcc, s[{m}:{m+1}]""")
    for b_ in range(2):
        for mm in range(2):
            for r in range(4): p(f"v_cndmask_b32 v{VV[b_][mm]+r}, 0, v{t+4}, vcc")
    for q in range(2): p(f"v_mov_b32 v{QT[q]}, 0\nv_mov_b32 v{QT[q]+1}, 0")
    p(f"""v_bfe_u32 v{t+2}, v0, 4, 1
    v_mul_u32_u24 v{t+2}, 20480, v{t+2}
    v_lshl_add_u32 v{t+2}, v{t+1}, 8, v{t+2}
    v_and_b32 v{t+3}, 15, v0
    v_lshl_add_u32 v{aO}, v{t+3}, 4, v{t+2}
    s_cmp_lg_u32 s{sHF}, s{sHH}
    s_cselect_b32 s{sOSC}, 1, s{sMODE}
    s_mov_b32 s{sFB}, 0""")
    for q in range(2):
        if q==0: p(f"s_add_u32 s{A}, s{sT0}, 7\ns_sub_u32 s{A}, s{A}, s{sWAVE}")
        else: p(f"s_add_u32 s{A}, s{sT0}, s{sWAVE}")
        p(f"""s_mul_i32 s{sQ[q]}, s{A}, 2560
        s_mul_i32 s{B}, s{sPH}, {64*2560}
        s_add_u32 s{sQ[q]}, s{sQ[q]}, s{B}
        s_mul_i32 s{A}, s{A}, 40960
        s_mul_i32 s{B}, s{sPH}, 1280
        s_add_u32 s{A}, s{A}, s{B}
        s_add_u32 s{A}, s{A}, {OB}
        s_mul_i32 s{B}, s{sHO}, 768
        s_add_u32 s{sOm[q]}, s{A}, s{B}
        s_lshl_b32 s{B}, s{sHO}, 3
        s_add_u32 s{sOt[q]}, s{A}, s{B}""")
    sK=C+1; sV=C+2; sL=C+3
    p(f"""s_lshl_b32 s{A}, s{sWAVE}, 1
    s_add_u32 s{A}, s{A}, s{sT0}
    s_mul_i32 s{sK}, s{A}, 2560
    s_mul_i32 s{sV}, s{A}, 1280
    s_mul_i32 s{A}, s{sPH}, {64*2560}
    s_add_u32 s{sK}, s{sK}, s{A}
    s_add_u32 s{sK}, s{sK}, {KB}
    s_mul_i32 s{A}, s{sHD}, 81920
    s_add_u32 s{sV}, s{sV}, s{A}
    s_add_u32 s{sV}, s{sV}, {VB}
    s_mul_i32 s{sL}, s{sWAVE}, 5632
    s_add_u32 s{sL}, s{sL}, {L_KV+4*5632}
    s_mul_i32 s{A}, s{sHO}, 1536
    v_add_u32 v{t+2}, s{A}, v{aLin}
    s_lshl_b32 s{A}, s{sHO}, 3
    v_add_u32 v{t+3}, s{A}, v{aLin}""")
    p("s_waitcnt vmcnt(1)")
    wo_pre2()
    flag_poll(aFl,t+10,sF,C,first=False)
    STAMP('fseen')
    kv_dma(aLin,aTl,sK,sV,sL,A,B)
    for q in range(2): p(f"buffer_load_dwordx4 {vr(QM[q],4)}, v{t+2}, {S4(sWS)}, s{sQ[q]} offen sc1")
    p(f"s_mov_b64 exec, s[{sLO}:{sLO+1}]")
    for q in range(2): p(f"buffer_load_dwordx2 {vr(QT[q],2)}, v{t+3}, {S4(sWS)}, s{sQ[q]} offen offset:1024 sc1")
    p(f"""s_mov_b64 exec, 1
    v_mov_b32 v{t}, {F_G1}
    v_mov_b32 v{t+1}, 1
    s_waitcnt vmcnt(4)
    ds_add_u32 v{t}, v{t+1}
    s_mov_b64 exec, -1
    v_mov_b32 v{aFl}, {F_G1}""")
    lds_wait(aFl,t+5,C,'gt',4,0)
    p(f"s_waitcnt vmcnt(0)")
    STAMP('kv')
    p(f"""s_cmp_eq_u32 s{sWAVE}, 1
    s_cbranch_scc1 L_av1
    s_cmp_eq_u32 s{sWAVE}, 2
    s_cbranch_scc1 L_av2
    s_cmp_eq_u32 s{sWAVE}, 3
    s_cbranch_scc1 L_av3""")
def kreads(n,b_):
    o=(n>>1)*5632
    return [f"ds_read_b128 {vr(KM[b_],4)}, v{aKm} offset:{o+(n&1)*1024}", f"ds_read_b64 {vr(KT[b_],2)}, v{aKt} offset:{o+(n&1)*512}"]
def vreads(n,b_):
    o=(n>>1)*5632+(n&1)*1280
    return [f"s_mov_b64 exec, s[{sLO+2}:{sLO+3}]", f"ds_read_b128 {vr(VV[b_][0],4)}, v{aV} offset:{o}", f"ds_read_b128 {vr(VV[b_][1],4)}, v{aV} offset:{o+640}", "s_mov_b64 exec, -1"]
def att_variant(w):
    U=[]
    for n in range(15-w,8+w,-1): U.append((0,n))
    for n in range(8+w,6-w,-1): U+= [(0,n),(1,n)]
    for n in range(6-w,w-1,-1): U.append((1,n))
    assert len(U)==18
    diag=[15-w,8+w]
    tiles=[]; tau=[]
    for q,n in U:
        if not tiles or tiles[-1]!=n: tiles.append(n)
        tau.append(len(tiles)-1)
    first=[tau.index(i) for i in range(len(tiles))]
    started=[0,0]
    def QK(u):
        q,n=U[u]; b_=tau[u]&1; S=vr(SS[u&1],16)
        c=vr(CD,16) if n==diag[q] else (vr(CF,16) if n==diag[q]-8 else "0")
        return [f"v_mfma_f32_32x32x16_bf16 {S}, {vr(KM[b_],4)}, {vr(QM[q],4)}, {c}", f"v_mfma_f32_32x32x8_bf16 {S}, {vr(KT[b_],2)}, {vr(QT[q],2)}, {S}"]
    def PV(u,m):
        q,n=U[u]; O=vr(OO[q],16)
        c=O if started[q] else "0"; started[q]=1
        return f"v_mfma_f32_32x32x16_bf16 {O}, {vr(VV[tau[u]&1][m],4)}, {vr(PP+4*m,4)}, {c}"
    p(f"L_av{w}:")
    for i,f in enumerate(first):
        if f<=1:
            for x in kreads(tiles[i],i&1): p(x)
    for x in vreads(tiles[0],0): p(x)
    p("s_waitcnt lgkmcnt(0)")
    for x in QK(0): p(x)
    p("s_nop 7\ns_nop 3")
    pend=False
    H=first[tiles.index(7)]
    for u in range(18):
        S=SS[u&1]
        e=lambda i: p(f"v_exp_f32 v{S+i}, v{S+i}")
        c=lambda k: p(f"v_cvt_pk_bf16_f32 v{PP+k}, v{S+2*k}, v{S+2*k+1}")
        kr=[x for i,f in enumerate(first) if f==u+2 for x in kreads(tiles[i],i&1)]
        vr_=[x for i,f in enumerate(first) if f==u+1 for x in vreads(tiles[i],i&1)]
        late=(u+2==H)
        STAMP('u%d'%u)
        e(0); e(1)
        if u>0: p(PV(u-1,1))
        e(2)
        if not late:
            for x in kr: p(x)
        if u+3==H: p(f"ds_read_b32 v{vT}, v{aFl} offset:{F_G2-F_G1}")
        e(3); c(0); c(1)
        if pend: p("s_waitcnt lgkmcnt(0)") if not (kr and not late) and u+3!=H else p(f"s_waitcnt lgkmcnt({(len(kr) if not late else 0)+(1 if u+3==H else 0)})")
        qk=QK(u+1) if u<17 else [None,None]
        if qk[0]: p(qk[0])
        e(4)
        if late:
            p(f"v_cmp_gt_u32 vcc, 2, v{vT}")
        e(5)
        if late:
            p(f"s_cbranch_vccnz L_g2w{w}\nL_g2r{w}:")
            for x in kr: p(x)
        for x in vr_: p(x)
        e(6); e(7); c(2); c(3)
        if qk[1]: p(qk[1])
        e(8); e(9); e(10); e(11)
        p(PV(u,0))
        c(4); c(5); e(12); e(13); e(14); e(15); c(6); c(7)
        pend=bool(kr or vr_ or u+3==H)
        if u==H-1:
            p(f"s_cmp_eq_u32 s{sT0}, 0\ns_cbranch_scc1 L_ex{w}")
            exq=PV(u,1)
    p("s_nop 1")
    p(PV(17,1))
    p("s_branch L_afin")
    p(f"L_g2w{w}:")
    p(f"v_mov_b32 v{vT+1}, {F_G2}")
    lds_wait(vT+1,vT,sT+17,'gt',2,1)
    p(f"s_branch L_g2r{w}\nL_ex{w}:\n{exq}\ns_branch L_afin")
def att_fin():
    t=vT; A=sT+7
    p("L_afin:")
    STAMP('aend')
    p(f"ds_read_b32 v{t+9}, v{aFl} offset:{F_H2-F_G1}")
    p(f"s_mov_b32 s{A}, {hex(f2u(2.0**-40))}\ns_mov_b32 s{A+1}, {hex(f2u(2.0**40)-f2u(2.0**-40))}")
    for q in range(2):
        O=OO[q]
        p(f"""v_cndmask_b32 v{t}, v{O+8}, v{O+12}, s[{sLO}:{sLO+1}]
        v_pk_add_f32 v[{t+2}:{t+3}], v[{O}:{O+1}], v[{O+2}:{O+3}]
        v_rcp_f32 v{t+1}, v{t}
        v_pk_add_f32 v[{t+4}:{t+5}], v[{O+4}:{O+5}], v[{O+6}:{O+7}]
        v_pk_add_f32 v[{t+6}:{t+7}], v[{O+8}:{O+9}], v[{O+10}:{O+11}]
        v_subrev_u32 v{t}, s{A}, v{t}
        v_pk_add_f32 v[{t+2}:{t+3}], v[{t+2}:{t+3}], v[{t+4}:{t+5}]
        v_cmp_lt_u32 s[{A+11}:{A+12}], s{A+1}, v{t}
        v_pk_add_f32 v[{t+2}:{t+3}], v[{t+2}:{t+3}], v[{t+6}:{t+7}]
        v_add_f32 v{t+2}, v{t+2}, v{t+3}""")
        p(f"v_cmp_class_f32 vcc, v{t+2}, v{aCLS}")
        for k in range(6): p(f"v_pk_mul_f32 {vr(O+2*k,2)}, {vr(O+2*k,2)}, {vr(t,2)} op_sel:[0,1] op_sel_hi:[1,1]")
        p(f"""s_or_b64 vcc, vcc, s[{A+11}:{A+12}]
        s_cbranch_scc1 L_afb{q}
        L_afr{q}:""")
        for k in range(6): p(f"v_cvt_pk_bf16_f32 v{O+k}, v{O+2*k}, v{O+2*k+1}")
        if q==0:
            p(f"""s_waitcnt lgkmcnt(0)
            v_cmp_eq_u32 vcc, 0, v{t+9}
            s_cmp_lg_u32 s{sOSC}, 0
            s_cbranch_vccnz L_h2w
            L_h2r:""")
        else: p(f"s_cmp_lg_u32 s{sOSC}, 0")
        st=[f"buffer_store_dwordx4 {vr(O,4)}, v{aO}, {S4(sWS)}, s{sOm[q]} offen", f"s_mov_b64 exec, s[{sLO}:{sLO+1}]",
            f"buffer_store_dwordx2 {vr(O+4,2)}, v{aO}, {S4(sWS)}, s{sOt[q]} offen offset:512", "s_mov_b64 exec, -1"]
        p(f"s_cbranch_scc1 L_osc{q}")
        for x in st: p(x)
        p(f"L_osr{q}:")
        COLD.append(f"L_osc{q}:\n"+"\n".join(x+(" sc1" if x.startswith("buffer") else "") for x in st)+f"\ns_branch L_osr{q}")
    p(f"""v_mov_b32 v{t}, {F_DONE}
    v_mov_b32 v{t+1}, 1
    s_mov_b64 exec, 1
    ds_add_u32 v{t}, v{t+1}
    s_mov_b64 exec, -1""")
    STAMP('ost')
aCLS=27
COLD=[]
def att_cold():
    t=vT; A=sT+7; B=sT+8; N=sT+17; J=sT+18; CN=sT+19; PA=sT+20
    p(f"L_h2w:\nv_mov_b32 v{t+8}, {F_H2}")
    lds_wait(t+8,t+9,A+11,'eq',0,2)
    p(f"s_cmp_lg_u32 s{sOSC}, 0\ns_branch L_h2r")
    for q in range(2): p(f"L_afb{q}:\ns_cmp_lg_u32 s{sFB}, 0\ns_cbranch_scc1 L_afr{q}\ns_branch L_afb")
    p(f"L_afb:\ns_mov_b32 s{sFB}, 1\ns_waitcnt lgkmcnt(0)")
    S=SS[0]; MX=t+10; xa=t+11
    for q in range(2):
        lp=p.lab("fb"); nd=p.lab("fbnd"); nf=p.lab("fbnf"); p2=p.lab("fbp2"); nx=p.lab("fbnx"); ps=p.lab("fbps"); dn=p.lab("fbdn")
        for r in range(16): p(f"v_mov_b32 v{OO[q]+r}, 0")
        p(f"""v_mov_b32 v{MX}, {NINF}
        s_mov_b32 s{PA}, 0
        {ps}:""")
        if q==0: p(f"s_sub_u32 s{N}, 15, s{sWAVE}")
        else: p(f"s_add_u32 s{N}, 8, s{sWAVE}")
        p(f"""s_sub_u32 s{CN}, s{N}, 7
        s_cmp_eq_u32 s{sT0}, 0
        s_cselect_b32 s{CN}, s{CN}, 9
        s_mov_b32 s{J}, 0
        {lp}:
        s_lshr_b32 s{A}, s{N}, 1
        s_mul_i32 s{A}, s{A}, 5632
        s_and_b32 s{B}, s{N}, 1
        s_lshl_b32 s{sT+21}, s{B}, 10
        s_add_u32 s{sT+21}, s{sT+21}, s{A}
        v_add_u32 v{xa}, s{sT+21}, v{aKm}
        s_lshl_b32 s{sT+21}, s{B}, 9
        s_add_u32 s{sT+21}, s{sT+21}, s{A}
        v_add_u32 v{xa+1}, s{sT+21}, v{aKt}
        s_mul_i32 s{B}, s{B}, 1280
        s_add_u32 s{A}, s{A}, s{B}
        v_add_u32 v{xa+2}, s{A}, v{aV}
        ds_read_b128 {vr(KM[0],4)}, v{xa}
        ds_read_b64 {vr(KT[0],2)}, v{xa+1}
        s_mov_b64 exec, s[{sLO+2}:{sLO+3}]
        ds_read_b128 {vr(VV[0][0],4)}, v{xa+2}
        ds_read_b128 {vr(VV[0][1],4)}, v{xa+2} offset:640
        s_mov_b64 exec, -1
        s_waitcnt lgkmcnt(0)
        v_mfma_f32_32x32x16_bf16 {vr(S,16)}, {vr(KM[0],4)}, {vr(QM[q],4)}, 0
        v_mfma_f32_32x32x8_bf16 {vr(S,16)}, {vr(KT[0],2)}, {vr(QT[q],2)}, {vr(S,16)}
        v_mov_b32 v{xa}, {NINF}
        s_nop 11
        s_cmp_lg_u32 s{J}, 0
        s_cbranch_scc1 {nd}""")
        for r in range(16): p(f"v_cmp_eq_u32 vcc, 0, v{CD+r}\ns_nop 1\nv_cndmask_b32 v{S+r}, v{xa}, v{S+r}, vcc")
        p(f"{nd}:\ns_cmp_lg_u32 s{J}, 8\ns_cbranch_scc1 {nf}")
        for r in range(16): p(f"v_cmp_eq_u32 vcc, 0, v{CF+r}\ns_nop 1\nv_cndmask_b32 v{S+r}, v{xa}, v{S+r}, vcc")
        p(f"{nf}:\ns_cmp_lg_u32 s{PA}, 0\ns_cbranch_scc1 {p2}")
        for r in range(0,16,2): p(f"v_max3_f32 v{MX}, v{S+r}, v{S+r+1}, v{MX}")
        p(f"s_branch {nx}\n{p2}:")
        for r in range(16): p(f"v_sub_f32 v{S+r}, v{S+r}, v{MX}")
        for r in range(16): p(f"v_exp_f32 v{S+r}, v{S+r}")
        p("s_nop 0")
        for k in range(8): p(f"v_cvt_pk_bf16_f32 v{PP+k}, v{S+2*k}, v{S+2*k+1}")
        p("s_nop 1")
        for m in range(2): p(f"v_mfma_f32_32x32x16_bf16 {vr(OO[q],16)}, {vr(VV[0][m],4)}, {vr(PP+4*m,4)}, {vr(OO[q],16)}")
        p(f"""s_nop 11
        {nx}:
        s_sub_u32 s{N}, s{N}, 1
        s_add_u32 s{J}, s{J}, 1
        s_cmp_lt_u32 s{J}, s{CN}
        s_cbranch_scc1 {lp}
        s_cmp_lg_u32 s{PA}, 0
        s_cbranch_scc1 {dn}
        v_mov_b32 v{xa}, v{MX}
        s_mov_b32 s{PA}, 1
        s_nop 0
        v_permlane32_swap_b32 v{xa}, v{MX}
        s_nop 1
        v_max_f32 v{MX}, v{MX}, v{xa}
        s_branch {ps}
        {dn}:""")
    p("s_branch L_afin")

BF=28; AF=108; WACC=200; XR=176; WR_=186; aX2=196; aPS=197; aAL=198; aAR=199; SW=220; SELF=221; aPR=222; aKY=223; aCD=224
HP=40; HF_=50; LP=70; OP=80
sRT=sT+1; sOL=sT+2; sOR=sT+5; sXO=sT+11; sPSO=sT+12; sRETRY=sT+13; sPRB=sT+14
def acc_init():
    for k in range(10): p(f"v_lshlrev_b32 v{WACC+2*k}, 16, v{XR+k}\nv_and_b32 v{WACC+2*k+1}, 0xffff0000, v{XR+k}")
def wo_pre1():
    t=vT; A=sT+7; B=sT+8
    wo_ids()
    p(f"""v_and_b32 v{t}, 15, v0
    v_lshrrev_b32 v{t+1}, 4, v0
    v_mul_u32_u24 v{t+2}, 40, v{t+1}
    v_mov_b32 v{t+3}, 1280
    v_mad_u32_u24 v{aX2}, v{t}, v{t+3}, v{t+2}
    s_lshl_b32 s{A}, s{sBLK}, 2
    s_add_u32 s{A}, s{A}, s{sWAVE}
    s_mul_i32 s{A}, s{A}, 20480
    s_mul_i32 s{B}, s{sJ}, 160
    s_add_u32 s{A}, s{A}, s{B}
    buffer_load_dwordx4 {vr(XR,4)}, v{aX2}, {S4(sX)}, s{A} offen
    buffer_load_dwordx4 {vr(XR+4,4)}, v{aX2}, {S4(sX)}, s{A} offen offset:16
    buffer_load_dwordx2 {vr(XR+8,2)}, v{aX2}, {S4(sX)}, s{A} offen offset:32
    buffer_load_dwordx4 {vr(WR_,4)}, v{t+2}, {S4(sWR)}, s{B} offen
    buffer_load_dwordx4 {vr(WR_+4,4)}, v{t+2}, {S4(sWR)}, s{B} offen offset:16
    buffer_load_dwordx2 {vr(WR_+8,2)}, v{t+2}, {S4(sWR)}, s{B} offen offset:32
    v_lshlrev_b32 v{aPS}, 7, v{t}
    v_lshl_add_u32 v{aPS}, v{t+1}, 5, v{aPS}
    v_and_b32 v{t+2}, 3, v0
    v_cmp_eq_u32 vcc, v{t+1}, v{t+2}
    s_mul_i32 s{A}, s{sHH}, 51200
    s_add_u32 s{B}, s{A}, {L_WO}
    v_cndmask_b32 v{SELF}, 0, 1.0, vcc
    v_lshl_add_u32 v{aAL}, v0, 4, s{B}
    s_sub_u32 s{B}, {L_WO+51200}, s{A}
    v_lshl_add_u32 v{aAR}, v0, 4, s{B}
    v_and_b32 v{t+2}, 7, v0
    v_mul_u32_u24 v{t+2}, 1280, v{t+2}
    v_bfe_u32 v{t+3}, v0, 3, 1
    v_lshl_add_u32 v{aPR}, v{t+3}, 7, v{t+2}""")
def wo_pre2():
    acc_init()
    p(f"v_mov_b32 v{SW}, 0\nv_mov_b32 v{vT}, 0x3f803f80\ns_nop 0")
    for k in range(10): p(f"v_dot2_f32_bf16 v{SW}, v{WR_+k}, v{vT}, v{SW}")
def probe(soff,cnt,first=True):
    t=vT
    lp=p.lab("pb"); ok=p.lab("pbok"); md=p.lab("pbm")
    p(f"s_mov_b32 s{cnt}, {SPIN}")
    if not first: p(f"s_branch {md}")
    p(f"""{lp}:
    buffer_load_dwordx3 v[{t+4}:{t+6}], v{aPR}, {S4(sWS)}, s{soff} offen offset:512 sc1""")
    if not first: p(f"{md}:")
    p(f"""s_waitcnt vmcnt(0)
    v_max_u32 v{t+4}, v{t+4}, v{t+6}
    v_cmp_eq_u32 vcc, -1, v{t+4}
    s_nop 0
    s_cbranch_vccz {ok}""")
    spin(cnt,lp,ok)
    p(f"s_branch {lp}\n{ok}:")
def wo_main():
    t=vT; A=sT+7; B=sT+8; C=sT+17; MXS=t+8
    wo_ids()
    p(f"""s_lshl_b32 s{sRT}, s{sBLK}, 2
    s_add_u32 s{sRT}, s{sRT}, s{sWAVE}
    s_mul_i32 s{A}, s{sRT}, 20480
    s_mul_i32 s{B}, s{sJ}, 160
    s_add_u32 s{sXO}, s{A}, s{B}
    s_add_u32 s{A}, s{A}, {OB}
    s_mul_i32 s{B}, s{sHH}, 10240
    s_add_u32 s{sOL}, s{A}, s{B}
    s_add_u32 s{sOL+1}, s{sOL}, 4096
    s_add_u32 s{sOL+2}, s{sOL}, 8192
    s_add_u32 s{A}, s{A}, 10240
    s_sub_u32 s{sOR}, s{A}, s{B}
    s_lshl_b32 s{sPSO}, s{sRT}, 11
    s_add_u32 s{sPSO}, s{sPSO}, {PS}
    s_mov_b32 s{sRETRY}, {1<<16}
    v_mov_b32 v{t}, {F_WOR}""")
    lds_wait(t,t+1,C,'gt',2,0)
    p(f"""s_add_u32 s{sOR+1}, s{sOR}, 4096
    s_add_u32 s{sPRB}, s{sOR}, 8192
    L_wo:""")
    STAMP('wor')
    sROFF=[sOR,sOR+1,sPRB]
    def aread(s_,t_): return f"ds_read_b128 {vr(AF+20*(s_%3)+4*t_,4)}, v{aAL if s_<10 else aAR} offset:{(s_%10)*5120+t_*1024}"
    def bload(s_):
        so=(sOL+(s_%10)//4) if s_<10 else sROFF[(s_%10)//4]
        return f"buffer_load_dwordx4 {vr(BF+4*s_,4)}, v{aLin}, {S4(sWS)}, s{so} offen offset:{(s_%10%4)*1024} sc1"
    for s_ in range(2):
        for t_ in range(5): p(aread(s_,t_))
    p(f"v_mov_b32 v{MXS}, 0")
    probe(sOL,C)
    STAMP('pl')
    for s_ in range(10): p(bload(s_))
    p(f"buffer_load_dwordx3 v[{t+4}:{t+6}], v{aPR}, {S4(sWS)}, s{sOR} offen offset:512 sc1")
    for s_ in range(20):
        if s_==10:
            STAMP('loc')
            probe(sOR,C,first=False)
            STAMP('pr')
            for k in range(10,20): p(bload(k))
        p(f"s_waitcnt vmcnt({(10-s_) if s_<10 else (19-s_)}) lgkmcnt({5 if s_<19 else 0})")
        for t_ in range(5):
            a=vr(WACC+4*t_,4)
            p(f"v_mfma_f32_16x16x32_bf16 {a}, {vr(AF+20*(s_%3)+4*t_,4)}, {vr(BF+4*s_,4)}, {a}")
            if s_+2<20: p(aread(s_+2,t_))
            if t_==0: p(f"v_max3_u32 v{MXS}, v{BF+4*s_}, v{BF+4*s_+2}, v{MXS}")
    p(f"""v_cmp_eq_u32 vcc, -1, v{MXS}
    v_mov_b32 v{t}, 0x3f803f80
    v_mov_b32 v{t+2}, 0
    v_mov_b32 v{t+3}, 0
    v_mov_b32 v{t+4}, 0
    s_cbranch_vccnz L_woredo
    L_wook:""")
    STAMP('wend')
    COLD.append(f"L_woredo:\ns_sub_u32 s{sRETRY}, s{sRETRY}, 1\ns_cbranch_scc1 L_wook\ns_nop 7")
    q=P();
    COLD.append("\n".join(f"v_lshlrev_b32 v{WACC+2*k}, 16, v{XR+k}\nv_and_b32 v{WACC+2*k+1}, 0xffff0000, v{XR+k}" for k in range(10))+"\ns_branch L_wo")
    for k in range(10): p(f"v_cvt_pk_bf16_f32 v{HP+k}, v{WACC+2*k}, v{WACC+2*k+1}")
    for k in range(10):
        p(f"""v_dot2_f32_bf16 v{t+2}, v{HP+k}, v{t}, v{t+2}
        v_dot2_f32_bf16 v{t+3}, v{HP+k}, v{HP+k}, v{t+3}
        v_dot2_f32_bf16 v{t+4}, v{HP+k}, v{WR_+k}, v{t+4}""")
    p(f"""v_mov_b32 v{t+5}, v{SW}
    s_lshl_b32 s{A}, s{sJ}, 2
    s_add_u32 s{A}, s{A}, s{sPSO}
    v_permlane32_swap_b32 v{t+2}, v{t+3}
    v_permlane32_swap_b32 v{t+4}, v{t+5}
    s_nop 0
    v_add_f32 v{t+2}, v{t+2}, v{t+3}
    v_add_f32 v{t+4}, v{t+4}, v{t+5}
    s_cmp_lg_u32 s{sMODE}, 0
    s_nop 0
    v_permlane16_swap_b32 v{t+2}, v{t+4}
    s_nop 0
    v_add_f32 v{t+2}, v{t+2}, v{t+4}
    s_cbranch_scc1 L_pssc
    buffer_store_dword v{t+2}, v{aPS}, {S4(sWS)}, s{A} offen
    L_psr:""")
    COLD.append(f"L_pssc:\nbuffer_store_dword v{t+2}, v{aPS}, {S4(sWS)}, s{A} offen sc1\ns_branch L_psr")
    STAMP('ps')
    G=t+10
    lp=p.lab("ps"); ok=p.lab("psok"); md=p.lab("psm")
    ld=f"""buffer_load_dwordx4 {vr(G,4)}, v{aPS}, {S4(sWS)}, s{sPSO} offen sc1
    buffer_load_dwordx4 {vr(G+4,4)}, v{aPS}, {S4(sWS)}, s{sPSO} offen offset:16 sc1"""
    p(ld)
    for k in range(10): p(f"v_lshlrev_b32 v{HF_+2*k}, 16, v{HP+k}\nv_and_b32 v{HF_+2*k+1}, 0xffff0000, v{HP+k}")
    if CFG['dbg']:
        p(f"s_add_u32 s{A}, s{sXO}, {HB}")
        for o,n in ((0,4),(4,4),(8,2)): p(f"buffer_store_dwordx{n} {vr(HP+o,n)}, v{aX2}, {S4(sWS)}, s{A} offen offset:{4*o}")
    p(f"""s_lshl_b32 s{A}, s{sRT}, 4
    s_sub_u32 s{A}, 2047, s{A}
    v_and_b32 v{t}, 15, v0
    v_sub_u32 v{t+9}, s{A}, v{t}
    v_lshlrev_b32 v{t+9}, 3, v{t+9}
    s_lshl_b32 s{A}, s{sWAVE}, 6
    s_add_u32 s{A}, s{A}, {L_KEYS}
    v_lshl_add_u32 v{aKY}, v{t}, 2, s{A}
    v_and_b32 v{t}, 48, v0
    v_lshlrev_b32 v{t}, 2, v{t}
    v_add_u32 v{t+8}, {L_KEYS}, v{t}
    s_mov_b32 s{C}, {SPIN}
    s_branch {md}
    {lp}:
    {ld}
    {md}:
    s_waitcnt vmcnt(0)
    v_max3_u32 v{t}, v{G}, v{G+1}, v{G+2}
    v_max3_u32 v{t+1}, v{G+3}, v{G+4}, v{G+5}
    v_max3_u32 v{t}, v{G+6}, v{G+7}, v{t}
    v_max_u32 v{t}, v{t}, v{t+1}
    v_cmp_eq_u32 vcc, -1, v{t}
    v_pk_add_f32 {vr(t+2,2)}, {vr(G,2)}, {vr(G+2,2)}
    s_cbranch_vccz {ok}""")
    spin(C,lp,ok)
    p(f"""s_branch {lp}
    {ok}:""")
    STAMP('psr')
    M=t+4
    p(f"""v_pk_add_f32 {vr(t+4,2)}, {vr(G+4,2)}, {vr(G+6,2)}
    v_pk_add_f32 {vr(t+2,2)}, {vr(t+2,2)}, {vr(t+4,2)}
    v_add_f32 v{t+2}, v{t+2}, v{t+3}
    s_nop 1
    v_mfma_f32_16x16x4_f32 {vr(M,4)}, v{SELF}, v{t+2}, 0
    s_nop 9
    v_mul_f32 v{M}, {1/640!r}, v{M}
    v_mul_f32 v{M+2}, {1/640!r}, v{M+2}
    v_fma_f32 v{M+2}, -v{M}, v{M}, v{M+2}
    v_max_f32 v{M+2}, 0, v{M+2}""")
    bf16r(M+2,M+2)
    p(f"v_add_f32 v{M+2}, 0x3727c5ac, v{M+2}")
    bf16r(M+2,M+2)
    p(f"v_sqrt_f32 v{M+2}, v{M+2}")
    bf16r(M,M)
    bf16r(M+2,M+2)
    RS=t+2
    p(f"""v_rcp_f32 v{RS}, v{M+2}
    v_fma_f32 v{M+1}, -v{M}, v{M+3}, v{M+1}
    v_mul_f32 v{M+1}, v{M+1}, v{RS}
    v_cvt_pk_bf16_f32 v{M+1}, v{M+1}, v{M+1}
    v_mul_f32 v{RS+1}, -v{M}, v{RS}
    v_ashrrev_i32 v{M+2}, 31, v{M+1}
    v_or_b32 v{M+2}, 0x80000000, v{M+2}
    v_xor_b32 v{M+1}, v{M+1}, v{M+2}
    v_and_b32 v{M+1}, 0xffff0000, v{M+1}
    v_or_b32 v{KEY}, v{M+1}, v{t+9}
    ds_write_b32 v{aKY}, v{KEY}""")
    for k in range(10): p(f"v_pk_fma_f32 {vr(WACC+2*k,2)}, {vr(HF_+2*k,2)}, {vr(RS,2)}, {vr(RS,2)} op_sel:[0,0,1] op_sel_hi:[1,0,1]")
    K16=AF
    lp=p.lab("ky"); ok=p.lab("kyok")
    p(f"s_mov_b32 s{C}, {SPIN*4}\n{lp}:")
    for i in range(4): p(f"ds_read_b128 {vr(K16+4*i,4)}, v{t+8} offset:{16*i}")
    p("s_waitcnt lgkmcnt(0)")
    p(f"v_max3_u32 v{t}, v{K16}, v{K16+1}, v{K16+2}")
    for i in range(3,15,2): p(f"v_max3_u32 v{t}, v{K16+i}, v{K16+i+1}, v{t}")
    p(f"""v_max_u32 v{t}, v{t}, v{K16+15}
    v_cmp_eq_u32 vcc, -1, v{t}
    v_mov_b32 v{t}, 0
    s_cbranch_vccz {ok}""")
    spin(C,lp,ok)
    p(f"s_branch {lp}\n{ok}:")
    STAMP('keys')
    m0_=sT+18
    for i in range(18):
        if i<16: p(f"v_cmp_gt_u32 s[{m0_+2*(i%2)}:{m0_+2*(i%2)+1}], v{K16+i}, v{KEY}") if False else None
    MK=[sT+14,sT+16,sT+18]
    for i in range(18):
        if i<16: m=MK[i%3]; p(f"v_cmp_gt_u32 s[{m}:{m+1}], v{K16+i}, v{KEY}")
        elif i==16: p("s_nop 0")
        if i>=2: m=MK[(i-2)%3]; p(f"v_addc_co_u32 v{t}, vcc, 0, v{t}, s[{m}:{m+1}]")
    p(f"""v_mov_b32 v{t+1}, v{t}
    v_cvt_pk_bf16_f32 v{LP}, v{WACC}, v{WACC+1}
    v_cvt_pk_bf16_f32 v{LP+1}, v{WACC+2}, v{WACC+3}
    v_permlane32_swap_b32 v{t}, v{t+1}
    v_cvt_pk_bf16_f32 v{LP+2}, v{WACC+4}, v{WACC+5}
    v_add_u32 v{t}, v{t}, v{t+1}
    v_mov_b32 v{t+1}, v{t}
    v_cvt_pk_bf16_f32 v{LP+3}, v{WACC+6}, v{WACC+7}
    v_cvt_pk_bf16_f32 v{LP+4}, v{WACC+8}, v{WACC+9}
    v_permlane16_swap_b32 v{t}, v{t+1}
    v_cvt_pk_bf16_f32 v{LP+5}, v{WACC+10}, v{WACC+11}
    v_add_u32 v{t}, v{t}, v{t+1}
    v_cmp_gt_u32 s[{sCAND}:{sCAND+1}], 8, v{t}
    v_or_b32 v{KEY}, v{KEY}, v{t}
    v_lshlrev_b32 v{t+1}, 2, v{t}
    s_lshl_b32 s{A}, s{sBLK}, 7
    s_add_u32 s{A}, s{A}, {CA}
    s_cmp_eq_u32 s{sJ}, 0
    s_cselect_b32 s{B}, 0xffff, 0
    s_and_b32 exec_lo, s{sCAND}, s{B}
    s_mov_b32 exec_hi, 0
    s_cbranch_scc0 L_noca
    buffer_store_dword v{KEY}, v{t+1}, {S4(sWS)}, s{A} offen sc1
    L_noca:
    s_mov_b64 exec, -1""")
    STAMP('ca')
    for k in range(6,10): p(f"v_cvt_pk_bf16_f32 v{LP+k}, v{WACC+2*k}, v{WACC+2*k+1}")
    p(f"""v_lshrrev_b32 v{t+1}, 4, v0
    v_mul_u32_u24 v{t+1}, 40, v{t+1}
    v_mul_u32_u24 v{t}, 2560, v{t}
    v_add_u32 v{aCD}, v{t}, v{t+1}
    s_mul_i32 s{A}, s{sBLK}, 20480
    s_mul_i32 s{B}, s{sJ}, 160
    s_add_u32 s{A}, s{A}, s{B}
    s_add_u32 s{A}, s{A}, {CAND}
    s_and_b64 exec, s[{sCAND}:{sCAND+1}], -1
    s_cbranch_scc0 L_nocd""")
    for base,off in ((LP,0),(HP,1280)):
        for o,n in ((0,4),(4,4),(8,2)): p(f"buffer_store_dwordx{n} {vr(base+o,n)}, v{aCD}, {S4(sWS)}, s{A} offen offset:{off+4*o} sc1")
    p("L_nocd:\ns_mov_b64 exec, -1")
    for k in range(10): p(f"v_pk_add_f32 {vr(WACC+2*k,2)}, {vr(WACC+2*k,2)}, {vr(HF_+2*k,2)}")
    for k in range(10): p(f"v_cvt_pk_bf16_f32 v{OP+k}, v{WACC+2*k}, v{WACC+2*k+1}")
    p(f"s_andn2_b64 exec, -1, s[{sCAND}:{sCAND+1}]\ns_cbranch_scc0 L_noo1")
    out_store()
    p("L_noo1:\ns_mov_b64 exec, -1")
    STAMP('o1')
KEY=225; sCAND=sT+20
def out_store():
    for o,n in ((0,4),(4,4),(8,2)): p(f"buffer_store_dwordx{n} {vr(OP+o,n)}, v{aX2}, {S4(sOUT)}, s{sXO} offen offset:{4*o} {CFG['opol']}")

def moe_weights():
    A=sT+7; B=sT+8; vt=2; D=40; aW_=12
    gu=p.lab("mwgu"); wr=p.lab("mwwr"); en=p.lab("mwend")
    p(f"""s_cmp_ge_u32 s{sSLOT}, 17
    s_cbranch_scc1 {en}
    v_bfe_u32 v{vt}, v0, 3, 2
    v_lshrrev_b32 v{vt+1}, 5, v0
    v_lshlrev_b32 v{vt}, 1, v{vt}
    v_add_lshl_u32 v{vt}, v{vt}, v{vt+1}, 2
    v_bfe_u32 v{vt+1}, v0, 1, 2
    v_add_u32 v{vt}, v{vt}, v{vt+1}
    v_and_b32 v{vt+1}, 1, v0
    v_lshlrev_b32 v{vt+1}, 4, v{vt+1}
    v_mov_b32 v{vt+4}, {F_DONE}
    s_cmp_lt_u32 s{sSLOT}, 12
    s_cbranch_scc1 {gu}
    v_mul_u32_u24 v{vt}, 1280, v{vt}
    v_add_u32 v{aW_}, v{vt}, v{vt+1}
    s_mul_i32 s{A}, s{sG}, 5
    s_add_u32 s{A}, s{A}, s{sSLOT}
    s_sub_u32 s{A}, s{A}, 12
    s_lshl_b32 s{A}, s{A}, 5
    s_mul_i32 s{B}, s{HW}, {12*32*1280}
    s_add_u32 s{A}, s{A}, s{B}""")
    for s_ in range(12):
        p(f"buffer_load_dwordx4 {vr(D+4*s_,4)}, v{aW_}, {S4(sWD)}, s{A} offen")
        if s_<11: p(f"s_add_u32 s{A}, s{A}, {32*1280}")
    p(f"""s_mul_i32 s{B}, s{HW}, 12288
    s_branch {wr}
    {gu}:
    v_mul_u32_u24 v{vt}, 3072, v{vt}
    v_add_u32 v{aW_}, v{vt}, v{vt+1}
    s_mul_i32 s{A}, s{sG}, 12
    s_add_u32 s{A}, s{A}, s{sSLOT}
    s_lshl_b32 s{A}, s{A}, 5
    s_mul_i32 s{B}, s{HW}, {5*32*3072}
    s_add_u32 s{A}, s{A}, s{B}""")
    for s_ in range(5):
        p(f"buffer_load_dwordx4 {vr(D+8*s_,4)}, v{aW_}, {S4(sWG)}, s{A} offen\nbuffer_load_dwordx4 {vr(D+8*s_+4,4)}, v{aW_}, {S4(sWU)}, s{A} offen")
        if s_<4: p(f"s_add_u32 s{A}, s{A}, {32*3072}")
    p(f"s_mul_i32 s{B}, s{HW}, 12288\n{wr}:\nv_lshl_add_u32 v{vt}, v0, 4, s{B}")
    lds_wait(vt+4,vt+5,A,'gt',4,4)
    p("s_waitcnt vmcnt(0)")
    for s_ in range(12): p(f"ds_write_b128 v{vt}, {vr(D+4*s_,4)} offset:{L_MW+s_*1024}")
    p(f"""s_lshl_b32 s{A}, s{HW}, 2
    s_add_u32 s{A}, s{A}, {F_MW}
    v_mov_b32 v{vt}, s{A}
    ds_write_b32 v{vt}, v{vt}
    s_waitcnt lgkmcnt(0)""")
    STAMP('mw')
    p(f"{en}:")
def top8(R,K2,K1,y,tt):
    def clean(chs):
        seq=[]
        for (x,y_,t_) in chs:
            seq.append([f"v_max_u32_dpp v{y_}, v{x}, v{x} row_shl:4 row_mask:0xf bank_mask:0x5",
                        f"v_min_u32_dpp v{y_}, v{x}, v{x} row_shr:4 row_mask:0xf bank_mask:0xa",
                        None,
                        f"v_mov_b32_dpp v{t_}, v{y_} quad_perm:[2,3,0,1] row_mask:0xf bank_mask:0xf",
                        f"v_med3_u32 v{y_}, v{y_}, v{t_}, v{K2}",
                        None,
                        f"v_mov_b32_dpp v{t_}, v{y_} quad_perm:[1,0,3,2] row_mask:0xf bank_mask:0xf",
                        f"v_med3_u32 v{x}, v{y_}, v{t_}, v{K1}"])
        n=len(chs)
        p(f"s_nop {2-n}")
        for i in range(8):
            if seq[0][i] is None: p(f"s_nop {2-n}")
            else:
                for c in seq: p(c[i])
                if i==0 and n==1: p("s_nop 1")
                elif i==0: p("s_nop 0")
    dp="row_mask:0xf bank_mask:0xf"
    p(f"v_max_u32_dpp v{R}, v{R+1}, v{R} row_half_mirror {dp}\nv_max_u32_dpp v{R+2}, v{R+3}, v{R+2} row_half_mirror {dp}")
    clean([(R,y,tt),(R+2,y+1,tt+1)])
    p(f"s_nop 1\nv_max_u32_dpp v{R}, v{R+2}, v{R} row_half_mirror {dp}")
    clean([(R,y,tt)])
    p(f"s_nop 1\nv_max_u32_dpp v{R}, v{R}, v{R} row_mirror {dp}")
    clean([(R,y,tt)])
    for msk,sw in ((0xa,16),(0xc,32)):
        p(f"""s_nop 1
        v_mov_b32_dpp v{R}, v{R} row_half_mirror row_mask:{hex(msk)} bank_mask:0xf
        v_mov_b32 v{tt}, v{R}
        s_nop 1
        v_permlane{sw}_swap_b32 v{R}, v{tt}
        s_nop 0
        v_max_u32 v{R}, v{R}, v{tt}""")
        clean([(R,y,tt)])
def moe():
    t=vT; A=sT+7; B=sT+8; C=sT+17; sTHR=sT+14
    R=12; K2=16; K1=17; aC=18; AW=108; BB=28-0;
    BL=160
    p(f"""s_cmp_ge_u32 s{sSLOT}, 17
    s_cbranch_scc1 L_plain
    v_lshrrev_b32 v{t}, 3, v0
    v_and_b32 v{t+1}, 7, v0
    v_lshlrev_b32 v{t+1}, 2, v{t+1}
    v_lshl_add_u32 v{aC}, v{t}, 7, v{t+1}
    s_mov_b32 s{B}, {CA}""")
    ld="\n".join(f"buffer_load_dword v{R+i}, v{aC}, {S4(sWS)}, s{B} offen offset:{i*1024} sc1" for i in range(4))
    p(ld)
    p(f"""v_bfe_i32 v{K2}, v0, 1, 1
    v_bfe_i32 v{K1}, v0, 0, 1
    v_not_b32 v{K2}, v{K2}
    v_not_b32 v{K1}, v{K1}
    s_lshl_b32 s{A}, s{sWAVE}, 2
    s_add_u32 s{A}, s{A}, {F_MW}
    v_mov_b32 v{t}, s{A}
    s_mul_i32 s{A}, s{sWAVE}, 12288
    v_lshl_add_u32 v{t+2}, v0, 3, s{A}""")
    lds_wait(t,t+1,C,'eq',0,0)
    STAMP('mwr')
    for s_ in range(12):
        for rd in range(2): p(f"ds_read_b64_tr_b16 {vr(AW+4*s_+2*rd,2)}, v{t+2} offset:{L_MW+s_*1024+rd*512}")
    lp=p.lab("ca"); ok=p.lab("caok"); md=p.lab("cam")
    p(f"""s_mov_b32 s{C}, {SPIN}
    s_branch {md}
    {lp}:
    {ld}
    {md}:
    s_waitcnt vmcnt(0)
    v_max3_u32 v{t}, v{R}, v{R+1}, v{R+2}
    v_max_u32 v{t}, v{t}, v{R+3}
    v_cmp_eq_u32 vcc, -1, v{t}
    s_nop 0
    s_cbranch_vccz {ok}""")
    spin(C,lp,ok)
    p(f"s_branch {lp}\n{ok}:")
    STAMP('car')
    top8(R,K2,K1,t,t+2)
    STAMP('top')
    TOK=t+1; aR=t+2
    p(f"""v_bfe_u32 v{TOK}, v{R}, 3, 11
    v_sub_u32 v{TOK}, 2047, v{TOK}
    v_lshrrev_b32 v{t}, 6, v{TOK}
    v_and_b32 v{aR}, 7, v{R}
    v_lshl_add_u32 v{aR}, v{t}, 3, v{aR}
    v_mul_u32_u24 v{aR}, 2560, v{aR}
    v_lshrrev_b32 v{t}, 4, v0
    v_readlane_b32 s{sTHR}, v{R}, 7
    s_cmp_ge_u32 s{sSLOT}, 12
    s_cbranch_scc1 L_down""")
    def deferred(tag):
        p(f"""v_cmp_gt_u32 vcc, s{sTHR}, v{KEY}
        s_nop 0
        s_and_b64 exec, vcc, s[{sCAND}:{sCAND+1}]
        s_cbranch_scc0 L_nd{tag}""")
        out_store()
        p(f"L_nd{tag}:\ns_mov_b64 exec, -1")
    p(f"""v_lshl_add_u32 v{aR}, v{t}, 4, v{aR}
    s_mul_i32 s{A}, s{sWAVE}, 320
    s_add_u32 s{A}, s{A}, {CAND}""")
    ld="\n".join(f"buffer_load_dwordx4 {vr(BL+4*i,4)}, v{aR}, {S4(sWS)}, s{A} offen offset:{i*64} sc1" for i in range(5))
    lp=p.lab("gl"); ok=p.lab("glok"); md=p.lab("glm"); nt=p.lab("noth")
    p(ld)
    p(f"""s_or_b32 s{B}, s{sSLOT}, s{sWAVE}
    s_cbranch_scc1 {nt}
    v_mov_b32 v{t+4}, s{sTHR}
    v_mov_b32 v{t+5}, s{sTAG}
    s_lshl_b32 s{B}, s{sG}, 7
    s_add_u32 s{B}, s{B}, {TH}
    v_mov_b32 v{t+6}, 0
    s_mov_b64 exec, 1
    buffer_store_dwordx2 v[{t+4}:{t+5}], v{t+6}, {S4(sWS)}, s{B} offen sc1
    s_mov_b64 exec, -1
    {nt}:
    s_lshl_b32 s{B}, s{sWAVE}, 11
    s_add_u32 s{B}, s{B}, {L_RED}
    v_lshl_add_u32 v{t+3}, v0, 4, s{B}
    s_mov_b32 s{C}, {SPIN}
    s_branch {md}
    {lp}:
    {ld}
    {md}:
    s_waitcnt vmcnt(0) lgkmcnt(0)
    v_max3_u32 v{t+4}, v{BL}, v{BL+2}, v{BL+4}
    v_max3_u32 v{t+5}, v{BL+6}, v{BL+8}, v{BL+10}
    v_max3_u32 v{t+4}, v{BL+12}, v{BL+14}, v{t+4}
    v_max3_u32 v{t+5}, v{BL+16}, v{BL+18}, v{t+5}
    v_max_u32 v{t+4}, v{t+4}, v{t+5}
    v_cmp_eq_u32 vcc, -1, v{t+4}
    s_nop 0
    s_cbranch_vccz {ok}""")
    spin(C,lp,ok)
    p(f"s_branch {lp}\n{ok}:")
    STAMP('lr')
    G=20; U=24; X=28
    for s_ in range(5):
        for m_,a_ in ((0,G),(1,U)):
            p(f"v_mfma_f32_16x16x32_bf16 {vr(a_,4)}, {vr(AW+8*s_+4*m_,4)}, {vr(BL+4*s_,4)}, {vr(a_,4) if s_ else 0}")
    w0=p.lab("guw0")
    p(f"""s_cmp_eq_u32 s{sWAVE}, 0
    s_cbranch_scc1 {w0}
    s_nop 5
    ds_write_b128 v{t+3}, {vr(G,4)}
    ds_write_b128 v{t+3}, {vr(U,4)} offset:1024
    s_waitcnt lgkmcnt(0)
    s_barrier""")
    deferred('g1')
    END()
    p(f"""{w0}:
    s_mul_i32 s{A}, s{sG}, 12
    s_add_u32 s{A}, s{A}, s{sSLOT}
    s_lshl_b32 s{A}, s{A}, 8
    s_add_u32 s{A}, s{A}, {ACT}
    v_and_b32 v{t+4}, 7, v0
    v_lshlrev_b32 v{t+4}, 4, v{t+4}
    v_lshrrev_b32 v{t+5}, 5, v0
    v_lshl_add_u32 v{t+4}, v{t+5}, 7, v{t+4}
    v_bfe_u32 v{t+5}, v0, 4, 1
    v_lshl_add_u32 v{t+4}, v{t+5}, 3, v{t+4}
    s_barrier""")
    for w_ in range(1,4):
        for m_ in range(2): p(f"ds_read_b128 {vr(X+8*(w_-1)+4*m_,4)}, v{t+3} offset:{w_*2048+m_*1024}")
    p(f"s_mov_b32 s{B}, {hex(f2u(-math.log2(math.e)))}")
    for w_ in range(3):
        p(f"s_waitcnt lgkmcnt({4-2*w_})")
        for k in range(4): p(f"v_pk_add_f32 {vr(G+2*k,2)}, {vr(G+2*k,2)}, {vr(X+8*w_+2*k,2)}")
    p(f"""v_cvt_pk_bf16_f32 v{X}, v{G}, v{G+1}
    v_cvt_pk_bf16_f32 v{X+1}, v{G+2}, v{G+3}
    v_cvt_pk_bf16_f32 v{X+2}, v{U}, v{U+1}
    v_cvt_pk_bf16_f32 v{X+3}, v{U+2}, v{U+3}""")
    for k in range(4): p(f"v_lshlrev_b32 v{G+2*k}, 16, v{X+k}\nv_and_b32 v{G+2*k+1}, 0xffff0000, v{X+k}")
    for k in range(4): p(f"v_mul_f32 v{X+k}, s{B}, v{G+k}")
    for k in range(4): p(f"v_exp_f32 v{X+k}, v{X+k}")
    for k in range(4): p(f"v_add_f32 v{X+k}, 1.0, v{X+k}")
    for k in range(4): p(f"v_rcp_f32 v{X+k}, v{X+k}")
    for k in range(4): p(f"v_mul_f32 v{G+k}, v{G+k}, v{X+k}")
    p(f"v_cvt_pk_bf16_f32 v{X}, v{G}, v{G+1}\nv_cvt_pk_bf16_f32 v{X+1}, v{G+2}, v{G+3}")
    for k in range(2): p(f"v_lshlrev_b32 v{G+2*k}, 16, v{X+k}\nv_and_b32 v{G+2*k+1}, 0xffff0000, v{X+k}")
    p(f"""v_pk_mul_f32 {vr(G,2)}, {vr(G,2)}, {vr(U,2)}
    v_pk_mul_f32 {vr(G+2,2)}, {vr(G+2,2)}, {vr(U+2,2)}
    v_cvt_pk_bf16_f32 v{X}, v{G}, v{G+1}
    v_cvt_pk_bf16_f32 v{X+1}, v{G+2}, v{G+3}
    s_mov_b32 exec_lo, 0x00ff00ff
    s_mov_b32 exec_hi, 0x00ff00ff
    buffer_store_dwordx2 {vr(X,2)}, v{t+4}, {S4(sWS)}, s{A} offen sc1
    s_mov_b64 exec, -1""")
    STAMP('act')
    deferred('g0')
    END()
    HL=20; Y=24; X=28; SG=t+8; aO2=t+9
    p(f"""L_down:
    v_lshl_add_u32 v{aR}, v{t}, 3, v{aR}
    v_mul_u32_u24 v{aO2}, 1280, v{TOK}
    v_lshl_add_u32 v{aO2}, v{t}, 3, v{aO2}
    v_and_b32 v{t+4}, 7, v0
    v_lshlrev_b32 v{t+4}, 4, v{t+4}
    v_lshl_add_u32 v{t+4}, v{t}, 7, v{t+4}
    s_mul_i32 s{sT+1}, s{sG}, 5
    s_add_u32 s{sT+1}, s{sT+1}, s{sSLOT}
    s_sub_u32 s{sT+1}, s{sT+1}, 12
    s_lshl_b32 s{sT+1}, s{sT+1}, 5
    s_add_u32 s{sT+2}, s{sT+1}, {CAND}
    s_mul_i32 s{A}, s{sWAVE}, 6144
    s_add_u32 s{A}, s{A}, {ACT}
    s_add_u32 s{B}, s{A}, 4096""")
    deferred('d')
    p(f"""v_ashrrev_i32 v{SG}, 31, v{R}
    v_not_b32 v{SG}, v{SG}
    v_or_b32 v{SG}, 0x80000000, v{SG}
    v_xor_b32 v{SG}, v{SG}, v{R}
    v_and_b32 v{SG}, 0xffff0000, v{SG}
    v_mul_f32 v{SG}, {hex(f2u(-math.log2(math.e)))}, v{SG}
    v_exp_f32 v{SG}, v{SG}
    s_lshl_b32 s{C}, s{sWAVE}, 10
    v_add_f32 v{SG}, 1.0, v{SG}
    v_rcp_f32 v{SG}, v{SG}
    s_add_u32 s{C}, s{C}, {L_RED}
    v_lshl_add_u32 v{t+3}, v0, 4, s{C}""")
    bf16r(SG,SG)
    ld="\n".join([f"buffer_load_dwordx4 {vr(BL+4*i,4)}, v{t+4}, {S4(sWS)}, s{A if i<8 else B} offen offset:{(i%8)*512} sc1" for i in range(12)]+
        [f"buffer_load_dwordx2 {vr(HL,2)}, v{aR}, {S4(sWS)}, s{sT+2} offen sc1", f"buffer_load_dwordx2 {vr(HL+2,2)}, v{aR}, {S4(sWS)}, s{sT+2} offen offset:1280 sc1"])
    lp=p.lab("al"); ok=p.lab("alok")
    p(f"""s_mov_b32 s{C}, {SPIN}
    {lp}:
    {ld}
    s_waitcnt vmcnt(0) lgkmcnt(0)
    v_max_u32 v{t+5}, v{HL}, v{HL+2}""")
    for i in range(12): p(f"v_max3_u32 v{t+5}, v{BL+4*i}, v{BL+4*i+2}, v{t+5}")
    p(f"""v_cmp_eq_u32 vcc, -1, v{t+5}
    s_nop 0
    s_cbranch_vccz {ok}""")
    spin(C,lp,ok)
    p(f"s_branch {lp}\n{ok}:")
    STAMP('ar')
    for s_ in range(12): p(f"v_mfma_f32_16x16x32_bf16 {vr(Y,4)}, {vr(AW+4*s_,4)}, {vr(BL+4*s_,4)}, {vr(Y,4) if s_ else 0}")
    w0=p.lab("dnw0")
    p(f"""s_cmp_eq_u32 s{sWAVE}, 0
    s_cbranch_scc1 {w0}
    s_nop 5
    ds_write_b128 v{t+3}, {vr(Y,4)}
    s_waitcnt lgkmcnt(0)
    s_barrier""")
    END()
    p(f"""{w0}:
    v_lshlrev_b32 v{X+12}, 16, v{HL}
    v_and_b32 v{X+13}, 0xffff0000, v{HL}
    v_lshlrev_b32 v{X+14}, 16, v{HL+1}
    v_and_b32 v{X+15}, 0xffff0000, v{HL+1}
    v_lshlrev_b32 v{X+16}, 16, v{HL+2}
    v_and_b32 v{X+17}, 0xffff0000, v{HL+2}
    v_lshlrev_b32 v{X+18}, 16, v{HL+3}
    v_and_b32 v{X+19}, 0xffff0000, v{HL+3}
    s_barrier""")
    for w_ in range(1,4): p(f"ds_read_b128 {vr(X+4*(w_-1),4)}, v{t+3} offset:{w_*1024}")
    for w_ in range(3):
        p(f"s_waitcnt lgkmcnt({2-w_})")
        for k in range(2): p(f"v_pk_add_f32 {vr(Y+2*k,2)}, {vr(Y+2*k,2)}, {vr(X+4*w_+2*k,2)}")
    def rnd():
        p(f"v_cvt_pk_bf16_f32 v{X}, v{Y}, v{Y+1}\nv_cvt_pk_bf16_f32 v{X+1}, v{Y+2}, v{Y+3}")
    def unp():
        for k in range(2): p(f"v_lshlrev_b32 v{Y+2*k}, 16, v{X+k}\nv_and_b32 v{Y+2*k+1}, 0xffff0000, v{X+k}")
    rnd(); unp()
    for k in range(4): p(f"v_mul_f32 v{Y+k}, v{SG}, v{Y+k}")
    rnd(); unp()
    for k in range(2): p(f"v_pk_add_f32 {vr(Y+2*k,2)}, {vr(Y+2*k,2)}, {vr(X+12+2*k,2)}")
    rnd(); unp()
    for k in range(2): p(f"v_pk_add_f32 {vr(Y+2*k,2)}, {vr(Y+2*k,2)}, {vr(X+16+2*k,2)}")
    rnd()
    p(f"""s_mov_b32 exec_lo, 0x00ff00ff
    s_mov_b32 exec_hi, 0x00ff00ff
    buffer_store_dwordx2 {vr(X,2)}, v{aO2}, {S4(sOUT)}, s{sT+1} offen sc1""")
    STAMP('fin')
    END()
    lp=p.lab("th"); ok=p.lab("thok")
    p(f"""L_plain:
    s_lshl_b32 s{B}, s{sG}, 7
    s_add_u32 s{B}, s{B}, {TH}
    v_mov_b32 v{t}, 0
    s_mov_b32 s{C}, {SPIN}
    {lp}:
    s_sleep 16
    buffer_load_dwordx2 v[{t+2}:{t+3}], v{t}, {S4(sWS)}, s{B} offen sc1
    s_waitcnt vmcnt(0)
    v_cmp_ne_u32 vcc, s{sTAG}, v{t+3}
    s_nop 0
    s_cbranch_vccz {ok}""")
    spin(C,lp,ok)
    p(f"""s_branch {lp}
    {ok}:
    v_readfirstlane_b32 s{sTHR}, v{t+2}
    s_nop 1""")
    deferred('p')
    STAMP('fin')

def build():
    prologue()
    gemm_setup()
    p("s_waitcnt lgkmcnt(0)")
    mktag()
    p(f"""    s_cmp_eq_u32 s{sLC}, 15
    s_cbranch_scc1 L_gS
    s_cmp_eq_u32 s{sTY}, 2
    s_cbranch_scc1 L_gV""")
    gemm_loop('T'); gemm_epi('T'); p("s_branch L_att")
    p("L_gS:"); gemm_loop('S'); stats_epi(); p("s_branch L_att")
    p("L_gV:"); gemm_loop('V'); gemm_epi('V')
    p("L_att:")
    p(f"v_mov_b32 v{aCLS}, 0x207")
    att_pro()
    for w in range(4): att_variant(w)
    att_fin()
    wo_main()
    if CFG['stop']<=3:
        p(f"s_and_b64 exec, s[{sCAND}:{sCAND+1}], -1\ns_cbranch_scc0 L_noo2"); out_store(); p("L_noo2:")
    else: moe()
    END()
    att_cold()
    for c in COLD: p(c)
    loader()
    helperA()
    p("s_branch L_mw")
    helperB()
    p("L_mw:")
    moe_weights()
    END()
    p("L_exit:\ns_endpgm")
build()
errs=check(p.L)
hdr=f"""; generated by work/k/gen.py (own generator script)
; @launch grid=(256,1,1) block=(512,1,1) lds=163840
.amdgcn_target "amdgcn-amd-amdhsa--gfx950"
.text
.globl {NAME}_kernel
.p2align 8
.type {NAME}_kernel,@function
{NAME}_kernel:
"""
ftr=f""".section .rodata,"a"
.p2align 6
.amdhsa_kernel {NAME}_kernel
  .amdhsa_next_free_vgpr 256
  .amdhsa_next_free_sgpr 102
  .amdhsa_accum_offset 256
  .amdhsa_group_segment_fixed_size 0
  .amdhsa_kernarg_size 88
  .amdhsa_user_sgpr_count 2
  .amdhsa_user_sgpr_kernarg_segment_ptr 1
  .amdhsa_system_sgpr_workgroup_id_x 1
.end_amdhsa_kernel
"""
open(sys.argv[1],"w").write(hdr+p.text()+ftr)

import subprocess
r=subprocess.run(["clang","-x","assembler","-target","amdgcn-amd-amdhsa","-mcpu=gfx950",sys.argv[1],"-o",sys.argv[1]+".co"],capture_output=True,text=True)
if r.returncode: print(r.stderr[:3000]); sys.exit(1)
r=subprocess.run(["python3","cdna_unwritten_srd_check.py",sys.argv[1]+".co"],capture_output=True,text=True)
if r.returncode: print("SRDCHECK:",r.stdout[-3000:],r.stderr[-1000:])
r=subprocess.run("llvm-size -A "+sys.argv[1]+".co | grep text",shell=True,capture_output=True,text=True); print(r.stdout.strip())
if errs: sys.exit(1)
```

```python
import sys, math
from asmlib import *
NAME="sequential_preLN__sliding_block__moe_arch_mod__prompt"
CFG=dict(cal=None, opol='', st=['start','b0|hb0','gend|hb9','E1|hE1','st|halo|clr','fl|g2|wo','fseen|h2','kv','aend','ost'], pt=6, wothr=10, wogate=1, h2sl=1, noh2=0, nowo=0, wos=(0,0,0), sched=(1,1,2,1,1,1,1,0,0,0), dbg=0, stop=99, prof=0, rot=(1,3), force_slow=0, noclr=0, pre=2, ldst=0, nomfma=0, nohello=0)
for a in sys.argv[2:]:
    k,v=a.split("="); CFG[k]=eval(v)
QB,KB,VB,KH,VH,OB=[i*0x280000 for i in range(6)]
CAND=0xF00000
PS=0xFA0000
CA=0xFE0000
ACT=0xFE1000
HB=0x1000000
PROF=0x1300000
H1=0x1280000; H2=0x1281000; EPO=0x1282000; TH=0x1283000
ST1=0x1290000; FL=0x12A0000; FH=0x12A4000
L_STG=0; L_KV=10240; L_WO=55296; L_MISC=157696; L_MW=0
L_CS=L_MISC
L_SA=L_MISC+512
L_SR=L_SA+1024
L_MODE=L_SR+512
L_FLG=L_MODE+64
F_G1,F_G2,F_H2,F_STG,F_SCP,F_DONE,F_WOR,F_MW=[L_FLG+4*i for i in (0,1,2,4,8,9,10,12)]
L_KEYS=L_FLG+128
L_RED=L_WO
sX,sW,sWO,sWG,sWU,sWD,sOUT,sWS,sDBG,sWR=[4+4*i for i in range(10)]
sWAVE,sG,sSLOT,sRQ,sHH,sRB,sCT,sMODE,sEP,sTAG=range(44,54)
sT=54
sLO=76
sPROF=80
p=P()
nstamp=[0,0]
def STAMP(name,w=0):
    if CFG['cal'] and name in CFG['cal'][0].split('|'):
        p(f"s_memrealtime s[{sPROF}:{sPROF+1}]")
        if w: p("s_waitcnt lgkmcnt(0)")
    i=[k for k,n in enumerate(CFG['st']) if name in n.split('|')]
    if CFG['prof'] and i:
        i=i[0]
        p(f"s_memtime s[{sPROF+2*i}:{sPROF+2*i+1}]")
        if w: p("s_waitcnt lgkmcnt(0)")
def PROFDUMP():
    if not CFG['prof']: return
    p("s_waitcnt vmcnt(0) lgkmcnt(0)")
    p("s_mov_b64 exec, -1")
    for i in range(10): p(f"v_mov_b32 v{2+i}, s{sPROF+2*i}")
    p(f"""s_lshl_b32 s{sT}, s2, 3
    s_add_u32 s{sT}, s{sT}, s{sWAVE}
    s_lshl_b32 s{sT}, s{sT}, 6
    s_add_u32 s{sT}, s{sT}, {PROF}
    v_mov_b32 v1, 0
    s_mov_b64 exec, 1
    buffer_store_dwordx4 v[2:5], v1, s[{sWS}:{sWS+3}], s{sT} offen
    buffer_store_dwordx4 v[6:9], v1, s[{sWS}:{sWS+3}], s{sT} offen offset:16
    buffer_store_dwordx2 v[10:11], v1, s[{sWS}:{sWS+3}], s{sT} offen offset:32""")
def END():
    PROFDUMP()
    if CFG['cal']:
        lp=p.lab("cal"); ok=p.lab("calok")
        p(f"""s_waitcnt vmcnt(0) lgkmcnt(0)
        s_cmp_eq_u32 s{sPROF}, 0
        s_cbranch_scc1 {ok}
        s_mov_b32 s{sPROF+4}, 100000
        {lp}:
        s_sleep 2
        s_memrealtime s[{sPROF+2}:{sPROF+3}]
        s_sub_u32 s{sPROF+4}, s{sPROF+4}, 1
        s_cbranch_scc1 {ok}
        s_waitcnt lgkmcnt(0)
        s_sub_u32 s{sPROF+2}, s{sPROF+2}, s{sPROF}
        s_cmp_lt_u32 s{sPROF+2}, {CFG['cal'][1]}
        s_cbranch_scc1 {lp}
        {ok}:""")
    p("s_endpgm")
S4=lambda r:f"s[{r}:{r+3}]"
SPIN=1<<18

def prologue():
    p(f"""s_cmp_ge_u32 s2, 256
    s_cbranch_scc1 L_exit
    s_load_dwordx2 s[{sX}:{sX+1}], s[0:1], 0
    s_load_dwordx2 s[{sW}:{sW+1}], s[0:1], 8
    s_load_dwordx2 s[{sWS}:{sWS+1}], s[0:1], 80
    s_load_dwordx2 s[{sWO}:{sWO+1}], s[0:1], 16
    s_load_dwordx2 s[{sWR}:{sWR+1}], s[0:1], 32
    s_load_dwordx2 s[{sWG}:{sWG+1}], s[0:1], 40
    s_load_dwordx2 s[{sWU}:{sWU+1}], s[0:1], 48""")
    p(f"""v_lshrrev_b32 v1, 6, v0
    v_and_b32 v0, 63, v0
    v_readfirstlane_b32 s{sWAVE}, v1
    s_and_b32 s{sG}, s2, 7
    s_lshr_b32 s{sSLOT}, s2, 3
    s_lshr_b32 s{sRQ}, s{sG}, 1
    s_and_b32 s{sHH}, s{sG}, 1
    s_and_b32 s{sRB}, s{sSLOT}, 3
    s_lshr_b32 s{sCT}, s{sSLOT}, 2""")
    for r,n in ((sX,2621440),(sW,2457600),(sWS,268435456),(sWO,819200),(sWR,1280),(sWG,1966080),(sWU,1966080),(sWD,1966080),(sOUT,2621440),(sDBG,256)):
        p(f"s_mov_b32 s{r+2}, {n}\ns_mov_b32 s{r+3}, 0x20000")
    p(f"""s_mov_b32 s{sLO}, -1
    s_mov_b32 s{sLO+1}, 0
    s_mov_b32 s{sLO+2}, 0xfffff
    s_mov_b32 s{sLO+3}, 0xfffff
    s_mov_b32 s{sTAG}, {EPO}
    s_waitcnt lgkmcnt(0)
    s_load_dword s{sEP}, s[{sWS}:{sWS+1}], s{sTAG}
    s_load_dwordx2 s[{sWD}:{sWD+1}], s[0:1], 56
    s_load_dwordx2 s[{sOUT}:{sOUT+1}], s[0:1], 64
    s_load_dwordx2 s[{sDBG}:{sDBG+1}], s[0:1], 72""")
    if CFG['cal']: p(f"s_mov_b32 s{sPROF}, 0")
    STAMP('start')
    p(f"""s_cmp_ge_u32 s{sWAVE}, 4
    s_cbranch_scc1 L_helper""")
def mktag():
    p(f"""s_mul_i32 s{sTAG}, s{sEP}, 0x9e3779b1
    s_add_u32 s{sTAG}, s{sTAG}, 0x7f4a7c15
    s_and_b32 s{sTAG}, s{sTAG}, -16""")
def colbyte(dst, lc):
    t=sT+18
    p(f"""s_mul_i32 s{t}, s{lc}, 52
    s_lshr_b32 s{t}, s{t}, 8
    s_mul_i32 s{t+1}, s{t}, 5
    s_sub_u32 s{t+1}, s{lc}, s{t+1}
    s_mul_i32 s{t}, s{t}, 1280
    s_lshl_b32 s{t+1}, s{t+1}, 7
    s_mul_i32 s{dst}, s{sHH}, 640
    s_add_u32 s{dst}, s{dst}, s{t}
    s_add_u32 s{dst}, s{dst}, s{t+1}""")

def loader():
    CA_=sT+1; CB_=sT+2; CH=sT+3; XO=sT+4; WO_=sT+5; LB=sT+6; A=sT+7; B=sT+8
    vX=2; vW=6; vt=10
    p(f"""L_helper:
    s_sub_u32 s{HW}, s{sWAVE}, 4
    s_lshl_b32 s{A}, s{sCT}, 1
    s_add_u32 s{B}, s{A}, 1
    s_min_u32 s{B}, s{B}, 14""")
    colbyte(CA_,A); colbyte(CB_,B)
    p(f"""v_lshrrev_b32 v{vt}, 3, v0
    v_mul_u32_u24 v{vX}, 1280, v{vt}
    v_lshrrev_b32 v{vt+1}, 4, v0
    v_and_b32 v{vt+2}, 7, v0
    v_xor_b32 v{vt+2}, v{vt+2}, v{vt+1}
    v_lshl_add_u32 v{vX}, v{vt+2}, 4, v{vX}
    v_xor_b32 v{vX+1}, 64, v{vX}
    v_add_u32 v{vX+1}, {10240-1024}, v{vX+1}
    v_add_u32 v{vX+2}, {2*(10240-1024)}, v{vX}
    v_add_u32 v{vX+3}, {2*(10240-1024)}, v{vX+1}
    v_lshlrev_b32 v{vt+2}, 2, v{vt+1}
    v_and_b32 v{vt+3}, 15, v0
    v_xor_b32 v{vt+2}, v{vt+2}, v{vt+3}
    v_cmp_lt_u32 vcc, 7, v{vt+2}
    v_mov_b32 v{vt+3}, s{CA_}
    v_mov_b32 v{vt+4}, s{CB_}
    v_cndmask_b32 v{vt+3}, v{vt+3}, v{vt+4}, vcc
    v_and_b32 v{vt+2}, 7, v{vt+2}
    v_lshl_add_u32 v{vt+3}, v{vt+2}, 4, v{vt+3}
    v_mul_u32_u24 v{vW}, 3840, v{vt+1}
    v_add_u32 v{vW}, v{vW}, v{vt+3}""")
    for i in range(1,4): p(f"v_add_u32 v{vW+i}, {i*(4*3840-1024)}, v{vW}")
    ra,rb_=CFG['rot']
    p(f"""s_mul_i32 s{CH}, s{sRB}, {ra}
    s_mul_i32 s{A}, s{sCT}, {rb_}
    s_add_u32 s{CH}, s{CH}, s{A}
    s_mul_i32 s{A}, s{CH}, 205
    s_lshr_b32 s{A}, s{A}, 11
    s_mul_i32 s{A}, s{A}, 10
    s_sub_u32 s{CH}, s{CH}, s{A}
    s_lshl_b32 s{A}, s{sRQ}, 2
    s_add_u32 s{A}, s{A}, s{sRB}
    s_lshl_b32 s{A}, s{A}, 2
    s_add_u32 s{A}, s{A}, s{HW}
    s_mul_i32 s{XO}, s{A}, {32*1280}
    s_mul_i32 s{WO_}, s{HW}, {16*3840}
    s_lshl_b32 s{LB}, s{HW}, 12""")
    def issue(c):
        slot=(c%4)*32768
        p(f"""s_lshl_b32 s{A}, s{CH}, 7
        s_add_u32 s{A}, s{A}, s{XO}
        s_add_u32 m0, s{LB}, {slot}
        s_mul_i32 s{B}, s{CH}, {64*3840}""")
        for i in range(4): p(f"buffer_load_dwordx4 v{vX+i}, {S4(sX)}, s{A} offen offset:{i*1024} lds")
        p(f"""s_add_u32 m0, s{LB}, {slot+16384}
        s_add_u32 s{B}, s{B}, s{WO_}""")
        for i in range(4): p(f"buffer_load_dwordx4 v{vW+i}, {S4(sW)}, s{B} offen offset:{i*1024} lds")
        p(f"""s_add_u32 s{CH}, s{CH}, 1
        s_cmp_eq_u32 s{CH}, 10
        s_cselect_b32 s{CH}, 0, s{CH}""")
    pre=CFG['pre']
    for c in range(pre): issue(c)
    p(f"""v_cmp_lt_u32 vcc, 7, v0
    v_lshlrev_b32 v{vt}, 4, v0
    v_add_u32 v{vt}, {L_FLG}, v{vt}
    v_cndmask_b32 v{vt+2}, 0, -1, vcc
    v_cndmask_b32 v{vt+3}, 0, -1, vcc
    v_cndmask_b32 v{vt+4}, 0, -1, vcc
    v_cndmask_b32 v{vt+5}, 0, -1, vcc
    ds_write_b128 v{vt}, v[{vt+2}:{vt+5}]""")
    p("s_waitcnt lgkmcnt(0)")
    mktag()
    issued=pre
    global OPS
    OPS=[c for c in range(pre) for _ in range(8)]
    for c in range(8):
        vmwait(c)
        p("s_barrier")
        STAMP('ld%d'%c)
        if c==0: STAMP('hb0')
        if c==6:
            p(f"""v_lshlrev_b32 v{vH+4}, 4, v0
            v_add_u32 v{vH+4}, {H1}, v{vH+4}
            buffer_load_dwordx4 v[{vH}:{vH+3}], v{vH+4}, {S4(sWS)}, 0 offen sc1""")
            OPS.append('h1')
        for _ in range(CFG['sched'][c]):
            assert issued<min(10,c+4); issue(issued); OPS+=[issued]*8; issued+=1
        if c==CFG['pt']:
            p(f"""s_lshl_b32 s{A}, s{sSLOT}, 2
            s_add_u32 s{A}, s{A}, s{HW}
            s_mul_i32 s{A}, s{A}, 60
            v_min_u32 v{vt}, 59, v0
            v_add_u32 v{vt}, s{A}, v{vt}
            v_mul_u32_u24 v{vt+1}, 6554, v{vt}
            v_lshrrev_b32 v{vt+1}, 20, v{vt+1}
            v_mul_u32_u24 v{vt+2}, 160, v{vt+1}
            v_sub_u32 v{vt}, v{vt}, v{vt+2}
            v_lshlrev_b32 v{vt}, 7, v{vt}
            v_cmp_gt_u32 vcc, 32, v{vt+1}
            v_and_b32 v{vt+2}, 1, v{vt+1}
            v_mul_u32_u24 v{vt+2}, 20480, v{vt+2}
            v_bfe_u32 v{vt+3}, v{vt+1}, 1, 3
            v_mul_u32_u24 v{vt+3}, 163840, v{vt+3}
            v_add_u32 v{vt+2}, v{vt+2}, v{vt+3}
            v_lshrrev_b32 v{vt+3}, 4, v{vt+1}
            v_mul_u32_u24 v{vt+3}, {KB}, v{vt+3}
            s_mul_i32 s{A}, s{sRQ}, 40960
            v_add3_u32 v{vt+2}, v{vt+2}, v{vt+3}, s{A}
            v_and_b32 v{vt+3}, 15, v{vt+1}
            v_mul_u32_u24 v{vt+3}, 81920, v{vt+3}
            s_mul_i32 s{A}, s{sRQ}, 20480
            s_add_u32 s{A}, s{A}, {VB}
            v_add_u32 v{vt+3}, s{A}, v{vt+3}
            v_cndmask_b32 v{vt+2}, v{vt+3}, v{vt+2}, vcc
            v_add_u32 v{vt}, v{vt}, v{vt+2}
            s_mul_i32 s{A}, s{sHH}, {8*163840}
            buffer_load_dword v{vt+5}, v{vt}, {S4(sWS)}, s{A} offen""")
            OPS.append('pt')
    assert issued==10
    p(f"s_cmp_ge_u32 s{HW}, 2\ns_cbranch_scc1 L_helperB")
vH=16
OPS=[]
def vmwait(*tags):
    last=max(i for i,t in enumerate(OPS) if t in tags)
    n=len(OPS)-1-last; assert n<64
    p(f"s_waitcnt vmcnt({n})")
HW=sT
def spin(cnt,lp,ok,sleep=0):
    p(f"s_sub_u32 s{cnt}, s{cnt}, 1\ns_cbranch_scc1 {ok}")
    if sleep: p(f"s_sleep {sleep}")
def lds_wait(addr_v,tmp,cnt,cmp,val,sleep=1):
    lp=p.lab("lw"); ok=p.lab("lwok")
    p(f"""s_mov_b32 s{cnt}, {SPIN*4}
    {lp}:
    ds_read_b32 v{tmp}, v{addr_v}
    s_waitcnt lgkmcnt(0)
    v_cmp_{cmp}_u32 vcc, {val}, v{tmp}
    s_nop 0
    s_cbranch_vccz {ok}""")
    spin(cnt,lp,ok,sleep)
    p(f"s_branch {lp}\n{ok}:")
sHL,sHF,sHO,sPH,sHD,sT0=range(sT+1,sT+7)
def att_ids():
    p(f"""s_lshr_b32 s{sHL}, s{sSLOT}, 1
    s_and_b32 s{sHF}, s{sSLOT}, 1
    s_and_b32 s{sHO}, s{sHL}, 1
    s_lshr_b32 s{sPH}, s{sHL}, 1
    s_lshl_b32 s{sHD}, s{sHH}, 3
    s_add_u32 s{sPH}, s{sPH}, s{sHD}
    s_lshl_b32 s{sHD}, s{sHH}, 4
    s_add_u32 s{sHD}, s{sHD}, s{sHL}
    s_lshl_b32 s{sT0}, s{sRQ}, 1
    s_add_u32 s{sT0}, s{sT0}, s{sHF}
    s_lshl_b32 s{sT0}, s{sT0}, 3""")
def flag_addr(vd,vt,withq,A,B,C):
    p(f"""s_lshr_b32 s{A}, s{sHL}, 1
    s_mul_i32 s{A}, s{A}, 5
    s_lshl_b32 s{B}, s{sHO}, 1
    s_add_u32 s{A}, s{A}, s{B}
    s_add_u32 s{B}, s{A}, 2
    s_lshr_b32 s{A}, s{A}, 3
    s_lshr_b32 s{B}, s{B}, 3
    s_lshl_b32 s{B}, s{B}, 4
    s_or_b32 s{A}, s{A}, s{B}
    s_add_u32 s{B}, s{A}, 0x55
    s_lshl_b32 s{C}, s{B}, 8
    s_or_b32 s{A}, s{C}, s{A if withq else B}
    s_mul_i32 s{B}, s{sHL}, 20
    s_add_u32 s{C}, s{B}, 19
    s_lshr_b32 s{B}, s{B}, 6
    s_lshr_b32 s{C}, s{C}, 6
    s_lshl_b32 s{C}, s{C}, 4
    s_or_b32 s{B}, s{B}, s{C}
    s_add_u32 s{B}, s{B}, 0xaa
    s_lshl_b32 s{B}, s{B}, 16
    s_or_b32 s{A}, s{A}, s{B}
    v_and_b32 v{vt}, 60, v0
    v_min_u32 v{vt}, 20, v{vt}
    v_bfe_u32 v{vt}, s{A}, v{vt}, 4
    v_and_b32 v{vd}, 3, v0
    v_lshlrev_b32 v{vd}, 2, v{vd}
    v_lshl_add_u32 v{vd}, v{vt}, 7, v{vd}""")
def flag_poll(va,vt,soff,cnt,first=True,sleep=0):
    lp=p.lab("fp"); ok=p.lab("fpok");
    p(f"s_mov_b32 s{cnt}, {SPIN}")
    if not first:
        md=p.lab("fpm"); p(f"s_branch {md}")
    p(f"""{lp}:
    buffer_load_dword v{vt}, v{va}, {S4(sWS)}, s{soff} offen sc1""")
    if not first: p(f"{md}:")
    p(f"""s_waitcnt vmcnt(0)
    v_cmp_ne_u32 vcc, s{sTAG}, v{vt}
    s_nop 0
    s_cbranch_vccz {ok}""")
    spin(cnt,lp,ok,sleep)
    p(f"s_branch {lp}\n{ok}:")
def kv_dma(aLin,aTl,sK,sV,sL,A,B):
    p(f"""s_mul_i32 s{A}, s{sHO}, 1536
    s_add_u32 s{A}, s{A}, s{sK}
    s_mov_b32 m0, s{sL}
    s_add_u32 s{B}, s{A}, 1536
    buffer_load_dwordx4 v{aLin}, {S4(sWS)}, s{A} offen sc1 lds
    buffer_load_dwordx4 v{aLin}, {S4(sWS)}, s{B} offen offset:1024 sc1 lds
    s_sub_u32 s{A}, s{sK}, 2048
    s_sub_u32 s{B}, s{sV}, 3072
    buffer_load_dwordx4 v{aTl}, {S4(sWS)}, s{A} offen offset:2048 sc1 lds
    buffer_load_dwordx4 v{aLin}, {S4(sWS)}, s{B} offen offset:3072 sc1 lds
    s_add_u32 m0, s{sL}, 4096
    s_add_u32 s{B}, s{sV}, 1024
    buffer_load_dwordx4 v{aLin}, {S4(sWS)}, s{B} offen sc1 lds
    s_mov_b64 exec, s[{sLO}:{sLO+1}]
    buffer_load_dwordx4 v{aLin}, {S4(sWS)}, s{B} offen offset:1024 sc1 lds
    s_mov_b64 exec, -1""")
def kv_addr(aLin,aTl,t):
    p(f"""v_lshlrev_b32 v{aLin}, 4, v0
    v_lshrrev_b32 v{t}, 5, v0
    v_mul_u32_u24 v{t}, {2560-512}, v{t}
    v_add3_u32 v{aTl}, v{aLin}, v{t}, s{sK1024}""")
sK1024=sT+21

def helperA():
    global OPS
    save=list(OPS)
    A=sT+7; B=sT+8; vt=10; vS=20
    vmwait(8,'h1')
    lp=p.lab("hello"); ok=p.lab("hello_ok"); ne=p.lab("noep")
    p(f"""s_mov_b32 s{A}, {SPIN}
    {lp}:
    v_xor_b32 v{vH}, s{sTAG}, v{vH}
    v_xor_b32 v{vH+1}, s{sTAG}, v{vH+1}
    v_xor_b32 v{vH+2}, s{sTAG}, v{vH+2}
    v_xor_b32 v{vH+3}, s{sTAG}, v{vH+3}
    v_or3_b32 v{vt}, v{vH}, v{vH+1}, v{vH+2}
    v_or_b32 v{vt}, v{vt}, v{vH+3}
    v_cmp_lt_u32 vcc, 15, v{vt}
    s_nop 0
    s_cbranch_vccz {ok}""")
    spin(A,lp,ok,4)
    p(f"""buffer_load_dwordx4 v[{vH}:{vH+3}], v{vH+4}, {S4(sWS)}, 0 offen sc1
    s_waitcnt vmcnt(0)
    s_branch {lp}
    {ok}:
    v_lshl_or_b32 v{vH}, v{vH+1}, 4, v{vH}
    v_lshl_or_b32 v{vH+2}, v{vH+3}, 4, v{vH+2}
    v_lshl_or_b32 v{vH}, v{vH+2}, 8, v{vH}
    v_and_b32 v{vt}, 1, v0
    v_readlane_b32 s{A}, v{vH}, 0
    v_readlane_b32 s{B}, v{vH}, 1
    v_cmp_eq_u32 vcc, 0, v{vt}
    v_mov_b32 v{vt+1}, s{A}
    v_mov_b32 v{vt+2}, s{B}
    v_cndmask_b32 v{vt+1}, v{vt+2}, v{vt+1}, vcc
    v_cmp_ne_u32 vcc, v{vt+1}, v{vH}
    v_mov_b32 v{vt}, {L_MODE}
    s_cmp_lg_u64 vcc, 0
    s_cselect_b32 s{sMODE}, 1, {CFG['force_slow']}
    v_mov_b32 v{vt+1}, s{sMODE}
    ds_write_b32 v{vt}, v{vt+1}
    s_add_u32 s{A}, s2, s{HW}
    s_cmp_lg_u32 s{A}, 0
    s_cbranch_scc1 {ne}
    s_add_u32 s{A}, s{sEP}, 1
    v_mov_b32 v{vt}, {EPO}
    v_mov_b32 v{vt+1}, s{A}
    s_mov_b64 exec, 1
    buffer_store_dword v{vt+1}, v{vt}, {S4(sWS)}, 0 offen sc1
    s_mov_b64 exec, -1
    {ne}:
    s_waitcnt lgkmcnt(0)
    s_barrier""")
    HS=[sT+9,sT+13]; HA=[24,28]
    for k in range(2):
        p(f"s_add_u32 s{sT+5}, s{HW}, {2*k}")
        wave_ids(sT+5,sT+1,sT+2,sT+3,sT+4)
        store_addr(sT+1,sT+3,sT+4,HS[k],HS[k]+1,HS[k]+2,HS[k]+3,HA[k],sT+17,sT+18)
        p(f"""s_add_u32 s{HS[k]}, s{HS[k]}, {KH-KB}
        s_add_u32 s{HS[k]+1}, s{HS[k]+1}, {KH-KB}
        s_add_u32 s{HS[k]+3}, s{HS[k]+3}, {FH-FL}""")
    p("s_waitcnt vmcnt(0)\ns_barrier")
    STAMP('hb9')
    lp=p.lab("stp"); ok=p.lab("stok")
    p(f"""s_lshl_b32 s{A}, s{sG}, 2
    s_add_u32 s{A}, s{A}, s{sRB}
    s_lshl_b32 s{A}, s{A}, 1
    s_add_u32 s{A}, s{A}, s{HW}
    s_lshl_b32 s{A}, s{A}, 10
    s_add_u32 s{A}, s{A}, {ST1}
    v_lshlrev_b32 v{vt}, 4, v0
    buffer_load_dwordx4 v[{vS}:{vS+3}], v{vt}, {S4(sWS)}, s{A} offen sc1
    s_lshl_b32 s{B}, s{HW}, 9
    s_add_u32 s{B}, s{B}, {L_SA}
    v_lshl_add_u32 v{vt+1}, v0, 3, s{B}
    s_lshl_b32 s{B}, s{HW}, 8
    s_add_u32 s{B}, s{B}, {L_SR}
    v_lshl_add_u32 v{vt+2}, v0, 2, s{B}
    s_barrier
    s_mov_b32 s{B}, {SPIN}
    {lp}:
    s_waitcnt vmcnt(0)
    v_cmp_ne_u32 vcc, s{sTAG}, v{vS+2}
    s_nop 0
    s_cbranch_vccz {ok}""")
    spin(B,lp,ok)
    p(f"""buffer_load_dwordx4 v[{vS}:{vS+3}], v{vt}, {S4(sWS)}, s{A} offen sc1
    s_branch {lp}
    {ok}:
    ds_write_b64 v{vt+1}, v[{vS}:{vS+1}]
    ds_write_b32 v{vt+2}, v{vS+1}
    s_waitcnt lgkmcnt(0)
    s_barrier""")
    STAMP('hE1')
    att_ids()
    aLin=6; aTl=7; aF=8; D=32
    p(f"s_mov_b32 s{sK1024}, 1024")
    kv_addr(aLin,aTl,vt)
    flag_addr(aF,vt,0,A,B,sT+17)
    for k in range(2):
        sk=p.lab("nohalo")
        p(f"""s_cmp_eq_u32 s{HS[k]+2}, 0
        s_cbranch_scc1 {sk}
        s_add_u32 s{A}, s{HW}, {2*k}
        s_lshl_b32 s{B}, s{A}, 2
        s_add_u32 s{B}, s{B}, {F_STG}
        v_mov_b32 v{vt}, s{B}
        s_lshl_b32 s{A}, s{A}, 13
        v_add_u32 v{vt+1}, s{A}, v{aLin}""")
        lds_wait(vt,vt+5,B,'eq',0,1)
        for i in range(8): p(f"ds_read_b128 {vr(D+32*k+4*i,4)}, v{vt+1} offset:{L_STG+i*1024}")
        for i in range(8):
            p(f"s_waitcnt lgkmcnt({7-i})\nbuffer_store_dwordx4 {vr(D+32*k+4*i,4)}, v{HA[k]+(i&3)}, {S4(sWS)}, s{HS[k]+(i>>2)} offen sc1")
        p(f"{sk}:")
    p(f"""v_mov_b32 v{vt}, {F_SCP}
    v_mov_b32 v{vt+1}, 1
    v_mov_b32 v{vt+2}, 0
    v_mov_b32 v{vt+3}, s{sTAG}
    s_mov_b64 exec, 1
    ds_add_u32 v{vt}, v{vt+1}
    s_waitcnt vmcnt(0)""")
    for k in range(2):
        sk=p.lab("nohf")
        p(f"""s_cmp_eq_u32 s{HS[k]+2}, 0
        s_cbranch_scc1 {sk}
        buffer_store_dword v{vt+3}, v{vt+2}, {S4(sWS)}, s{HS[k]+3} offen sc1
        {sk}:""")
    p("s_mov_b64 exec, -1")
    STAMP('halo')
    sF=sT+9; sK=sT+10; sV=sT+11; sL=sT+12; C=sT+13
    dn=p.lab("g2done")
    p(f"""s_cmp_eq_u32 s{sT0}, 0
    s_cbranch_scc1 {dn}
    s_cmp_eq_u32 s{sHF}, 0
    s_cselect_b32 s{A}, {FH-2*2048+16-FL}, 0
    s_cselect_b32 s{B}, {KH-KB}, 0
    s_lshl_b32 s{sF}, s{sG}, 11
    s_add_u32 s{sF}, s{sF}, s{A}
    s_add_u32 s{sF}, s{sF}, {FL}
    s_lshl_b32 s{A}, s{HW}, 2
    s_sub_u32 s{A}, s{sT0}, s{A}
    s_sub_u32 s{A}, s{A}, 2
    s_mul_i32 s{sK}, s{A}, 2560
    s_mul_i32 s{sV}, s{A}, 1280
    s_mul_i32 s{A}, s{sPH}, {64*2560}
    s_add_u32 s{sK}, s{sK}, s{A}
    s_add_u32 s{sK}, s{sK}, s{B}
    s_add_u32 s{sK}, s{sK}, {KB}
    s_mul_i32 s{A}, s{sHD}, 81920
    s_add_u32 s{sV}, s{sV}, s{A}
    s_add_u32 s{sV}, s{sV}, s{B}
    s_add_u32 s{sV}, s{sV}, {VB}
    s_mul_i32 s{sL}, s{HW}, {-2*5632}
    s_add_u32 s{sL}, s{sL}, {L_KV+3*5632}""")
    lds_wait(vt,vt+5,C,'gt',2,1)
    flag_poll(aF,vt+5,sF,C,sleep=1)
    kv_dma(aLin,aTl,sK,sV,sL,A,B)
    p(f"""s_sub_u32 s{sK}, s{sK}, 5120
    s_sub_u32 s{sV}, s{sV}, 2560
    s_sub_u32 s{sL}, s{sL}, 5632""")
    kv_dma(aLin,aTl,sK,sV,sL,A,B)
    p(f"""s_waitcnt vmcnt(0)
    {dn}:
    v_mov_b32 v{vt}, {F_G2}
    s_mov_b64 exec, 1
    ds_add_u32 v{vt}, v{vt+1}
    s_mov_b64 exec, -1""")
    STAMP('g2')
    OPS=save

def tr_addr(a0,t):
    tab=[[0,8],[4,12],[16,36],[20,28],[24,32]]
    pk=[sum((tab[u][rd]//4)<<(4*u) for u in range(5)) for rd in range(2)]
    A=sT+7; B=sT+8
    p(f"""s_mov_b32 s{A}, {pk[0]}
    s_mov_b32 s{B}, {pk[1]}
    v_bfe_u32 v{t}, v0, 2, 2
    v_mul_u32_u24 v{t}, 160, v{t}
    v_and_b32 v{t+1}, 3, v0
    v_mad_u32_u24 v{t}, v{t+1}, 40, v{t}
    v_lshrrev_b32 v{t+1}, 4, v0""")
    for s_ in range(5):
        p(f"""v_add_u32 v{t+2}, {4*s_}, v{t+1}
        v_mul_u32_u24 v{t+4}, 52, v{t+2}
        v_lshrrev_b32 v{t+4}, 8, v{t+4}
        v_mul_u32_u24 v{t+5}, 5, v{t+4}
        v_sub_u32 v{t+2}, v{t+2}, v{t+5}
        v_lshlrev_b32 v{t+2}, 2, v{t+2}
        v_mul_u32_u24 v{t+4}, 10, v{t+4}""")
        for rd in range(2):
            p(f"""v_bfe_u32 v{t+3}, s{(A,B)[rd]}, v{t+2}, 4
            v_add_u32 v{t+3}, v{t+3}, v{t+4}
            v_mul_u32_u24 v{t+3}, 640, v{t+3}
            v_add_u32 v{a0+2*s_+rd}, v{t+3}, v{t}""")
sBLK,sJ=sT+9,sT+10
def wo_ids():
    p(f"""s_lshr_b32 s{sBLK}, s{sSLOT}, 3
    s_lshl_b32 s{sJ}, s{sG}, 2
    s_add_u32 s{sBLK}, s{sBLK}, s{sJ}
    s_and_b32 s{sJ}, s{sSLOT}, 7""")
def helperB():
    global OPS
    A=sT+7; B=sT+8; vt=2; aD=20; aT=26; aLin=12; D=40
    sO=sT+1; sL=sT+2; sL0=sT+3; sL1=sT+4; C=sT+5
    p("L_helperB:")
    wo_ids()
    for i in range(5):
        p(f"""v_add_u32 v{vt}, {64*i}, v0
        v_mul_u32_u24 v{vt+1}, 6554, v{vt}
        v_lshrrev_b32 v{vt+1}, 16, v{vt+1}
        v_mul_u32_u24 v{vt+2}, 10, v{vt+1}
        v_sub_u32 v{vt}, v{vt}, v{vt+2}
        v_mul_u32_u24 v{vt+1}, 1280, v{vt+1}
        v_lshl_add_u32 v{aD+i}, v{vt}, 4, v{vt+1}""")
        if 0<i<4: p(f"v_subrev_u32 v{aD+i}, {i*1024}, v{aD+i}")
    p(f"""s_mul_i32 s{sO}, s{HW}, {160*1280}
    s_mul_i32 s{A}, s{sJ}, 160
    s_add_u32 s{sO}, s{sO}, s{A}
    s_mul_i32 s{sL0}, s{HW}, 25600
    s_add_u32 s{sL0}, s{sL0}, {L_WO}
    s_sub_u32 s{sL1}, s{sL0}, 51200
    s_mov_b32 s{sL}, s{sL0}""")
    st=dict(n=0)
    def dma(cnt):
        for _ in range(cnt):
            n=st['n']; i=n%5
            if n==25:
                p(f"s_sub_u32 s{sO}, s{sO}, {(320+160)*1280}\ns_mov_b32 s{sL}, s{sL1}")
            if i==0: p(f"s_mov_b32 m0, s{sL}\ns_nop 0")
            if i==4: p(f"s_add_u32 m0, s{sL}, 4096\ns_add_u32 s{sL}, s{sL}, 5120")
            if not CFG['nowo']: p(f"buffer_load_dwordx4 v{aD+i}, {S4(sWO)}, s{sO} offen offset:{(i&3)*1024} lds")
            if i==4: p(f"s_add_u32 s{sO}, s{sO}, {32*1280}")
            if not CFG['nowo'] or n in (0,25): OPS.append('wo%d'%(n//25))
            st['n']+=1
    n8,n9,n10=CFG['wos']
    vmwait(8); p("s_barrier")
    dma(n8)
    p(f"v_mov_b32 v{vt+8}, {L_MODE}\nds_read_b32 v{vt+9}, v{vt+8}")
    vmwait(9); p("s_barrier")
    dma(n9)
    tr_addr(aT,vt)
    p(f"v_lshlrev_b32 v{aLin}, 4, v0\ns_waitcnt lgkmcnt(0)\nv_readfirstlane_b32 s{sMODE}, v{vt+9}")
    p("s_barrier")
    dma(n10)
    for r in range(4): p(f"v_mov_b32 v{D+r}, -1")
    p("s_barrier")
    STAMP('hE1')
    nc=p.lab("noclr")
    p(f"""s_cmp_lg_u32 s{HW}, {2+8*CFG['noclr']}
    s_cbranch_scc1 {nc}
    s_lshr_b32 s{A}, s{sJ}, 1
    s_lshl_b32 s{B}, s{sBLK}, 2
    s_add_u32 s{A}, s{A}, s{B}
    s_mul_i32 s{A}, s{A}, 20480
    s_and_b32 s{B}, s{sJ}, 1
    s_mul_i32 s{B}, s{B}, 5120
    s_add_u32 s{A}, s{A}, s{B}
    s_add_u32 s{A}, s{A}, {OB}
    s_mul_i32 s{B}, s{sHH}, 10240
    s_add_u32 s{C}, s{A}, 10240
    s_add_u32 s{A}, s{A}, s{B}
    s_sub_u32 s{C}, s{C}, s{B}
    s_add_u32 s{B}, s{C}, 4096""")
    st4=lambda so,off,sc="": f"buffer_store_dwordx4 v[{D}:{D+3}], v{aLin}, {S4(sWS)}, s{so} offen offset:{off}{sc}"
    for i in range(4): p(st4(C,i*1024," sc1"))
    p(st4(B,0," sc1"))
    p(f"""s_mul_i32 s{C}, s2, 2560
    s_add_u32 s{C}, s{C}, {CAND}""")
    p(st4(C,0," sc1")); p(st4(C,1024," sc1")); p(st4(C,1536," sc1"))
    p(f"""s_min_u32 s{C}, s2, 27
    s_lshl_b32 s{C}, s{C}, 10
    s_add_u32 s{C}, s{C}, {CA}""")
    sk=p.lab("noca")
    p(f"s_cmp_ge_u32 s2, 28\ns_cbranch_scc1 {sk}")
    p(st4(C,0," sc1"))
    p(f"""{sk}:
    s_add_u32 s{B}, s{A}, 4096
    s_lshl_b32 s{C}, s{sBLK}, 3
    s_add_u32 s{C}, s{C}, s{sJ}
    s_lshl_b32 s{C}, s{C}, 10
    s_add_u32 s{C}, s{C}, {PS}""")
    dual([st4(A,i*1024) for i in range(4)]+[st4(B,0),st4(C,0)])
    p(f"""v_min_u32 v{vt}, 39, v0
    v_lshlrev_b32 v{vt}, 7, v{vt}
    v_and_b32 v{vt+1}, 7, v0
    v_lshlrev_b32 v{vt+1}, 7, v{vt+1}
    buffer_load_dword v{vt+2}, v{vt}, {S4(sWS)}, s{A} offen
    buffer_load_dword v{vt+3}, v{vt+1}, {S4(sWS)}, s{C} offen""")
    p(f"{nc}:")
    OPS.append('clr')
    if not CFG['wogate']: dma(50-st['n'])
    vmwait('clr')
    nh=p.lab("noh2")
    p(f"""s_cmp_lg_u32 s{HW}, 2
    s_cbranch_scc1 {nh}
    s_lshl_b32 s{A}, s2, 2
    s_add_u32 s{A}, s{A}, {H2}
    v_mov_b32 v{vt}, 0
    v_mov_b32 v{vt+1}, s{sTAG}
    s_mov_b64 exec, 1
    buffer_store_dword v{vt+1}, v{vt}, {S4(sWS)}, s{A} offen sc1
    s_mov_b64 exec, -1
    {nh}:""")
    STAMP('clr')
    if CFG['wogate']:
        p(f"v_mov_b32 v{vt}, {F_G1}")
        lds_wait(vt,vt+1,A,'gt',4,2)
        STAMP('wo_s')
        while st['n']<50:
            dma(5-st['n']%5)
            if st['n']<50: p(f"s_waitcnt vmcnt({CFG['wothr']})")
    def transp(sb):
        for k in range(10): p(f"v_add_u32 v{aT+k}, s{sb}, v{aT+k}")
        p(f"v_add_u32 v{vt}, s{sb}, v{aLin}")
        for s_ in range(5):
            for t in range(5):
                for rd in range(2): p(f"ds_read_b64_tr_b16 {vr(D+20*s_+4*t+2*rd,2)}, v{aT+2*s_+rd} offset:{8*t}")
        p("s_waitcnt lgkmcnt(0)")
        for s_ in range(5):
            for t in range(5): p(f"ds_write_b128 v{vt}, {vr(D+20*s_+4*t,4)} offset:{s_*5120+t*1024}")
    vmwait('wo0')
    STAMP('wo_0')
    transp(sL0)
    STAMP('wo_t0')
    p("s_waitcnt vmcnt(0)")
    for k in range(10): p(f"v_subrev_u32 v{aT+k}, s{sL0}, v{aT+k}")
    STAMP('wo_1')
    transp(sL1)
    p(f"""v_mov_b32 v{vt}, {F_WOR}
    v_mov_b32 v{vt+1}, 1
    s_mov_b64 exec, 1
    ds_add_u32 v{vt}, v{vt+1}
    s_mov_b64 exec, -1""")
    STAMP('wo')
    sk=p.lab("noh2p"); lp=p.lab("h2p"); ok=p.lab("h2ok")
    p(f"""s_cmp_lg_u32 s{HW}, 3
    s_cbranch_scc1 {sk}
    s_mov_b32 s{A}, {SPIN}
    s_mov_b32 s{B}, {H2}
    {'s_branch '+ok if CFG['noh2'] else ''}
    {lp}:
    buffer_load_dwordx4 v[{D}:{D+3}], v{aLin}, {S4(sWS)}, s{B} offen sc1
    s_waitcnt vmcnt(0)
    v_xor_b32 v{D}, s{sTAG}, v{D}
    v_xor_b32 v{D+1}, s{sTAG}, v{D+1}
    v_xor_b32 v{D+2}, s{sTAG}, v{D+2}
    v_xor_b32 v{D+3}, s{sTAG}, v{D+3}
    v_or3_b32 v{D}, v{D}, v{D+1}, v{D+2}
    v_or_b32 v{D}, v{D}, v{D+3}
    v_cmp_ne_u32 vcc, 0, v{D}
    s_nop 0
    s_cbranch_vccz {ok}""")
    spin(A,lp,ok,32)
    p(f"""s_branch {lp}
    {ok}:
    v_mov_b32 v{vt}, {F_H2}
    ds_write_b32 v{vt}, v{vt+1}
    {sk}:""")
    STAMP('h2')

ACC=64; CS=128; XF=132; WF=148; SEL=164; aX=168; aW=172; aST=174; vT=2
sWR_,sWC,sLC,sTY,sSO,sHALO,sFO,sSO2=range(sT,sT+8)
def gemm_setup():
    t=vT; A=sT+10; B=sT+11
    wave_ids(sWAVE,sWR_,sWC,sLC,sTY)
    p(f"""v_and_b32 v{t}, 31, v0
    s_lshl_b32 s{A}, s{sWR_}, 6
    v_add_u32 v{t+1}, s{A}, v{t}
    v_lshlrev_b32 v{t+1}, 7, v{t+1}
    v_lshrrev_b32 v{t+2}, 5, v0
    v_bfe_u32 v{t+3}, v0, 1, 3
    v_xor_b32 v{t+3}, v{t+3}, v{t+2}
    v_lshl_add_u32 v{aX}, v{t+3}, 4, v{t+1}""")
    for s in range(1,4): p(f"v_xor_b32 v{aX+s}, {32*s}, v{aX}")
    p(f"""v_bfe_u32 v{t+3}, v0, 2, 2
    v_lshl_add_u32 v{t+4}, v{t+2}, 3, v{t+3}
    v_lshlrev_b32 v{t+4}, 8, v{t+4}
    s_lshl_b32 s{A}, s{sWC}, 1
    s_or_b32 s{A}, s{A}, s{sWR_}
    v_xor_b32 v{t+3}, s{A}, v{t+3}
    v_lshl_add_u32 v{t+4}, v{t+3}, 6, v{t+4}
    v_bfe_u32 v{t+3}, v0, 4, 1
    v_lshl_add_u32 v{t+4}, v{t+3}, 5, v{t+4}
    v_and_b32 v{t+5}, 3, v0
    v_lshl_add_u32 v{t+4}, v{t+5}, 3, v{t+4}
    v_add_u32 v{aW}, 16384, v{t+4}
    v_xor_b32 v{aW+1}, 64, v{aW}
    v_bfe_u32 v{t+4}, v0, 2, 1
    v_cmp_eq_u32 vcc, v{t+3}, v{t+4}
    v_mov_b32 v{t+5}, 0x3f803f80
    s_nop 0
    v_cndmask_b32 v{SEL}, 0, v{t+5}, vcc
    v_cndmask_b32 v{SEL+1}, 0, v{t+5}, vcc
    v_cndmask_b32 v{SEL+2}, 0, v{t+5}, vcc
    v_cndmask_b32 v{SEL+3}, 0, v{t+5}, vcc""")
    for r in list(range(ACC,ACC+64))+list(range(CS,CS+4)): p(f"v_mov_b32 v{r}, 0")
    store_addr(sWR_,sLC,sTY,sSO,sSO2,sHALO,sFO,aST,sT+10,sT+11)
def wave_ids(wave,wr,wc,lc,ty):
    p(f"""s_and_b32 s{wr}, s{wave}, 1
    s_lshr_b32 s{wc}, s{wave}, 1
    s_lshl_b32 s{lc}, s{sCT}, 1
    s_add_u32 s{lc}, s{lc}, s{wc}
    s_mul_i32 s{ty}, s{lc}, 52
    s_lshr_b32 s{ty}, s{ty}, 8""")
def store_addr(wr,lc,ty,so,so2,halo,fo,ast,A,B):
    t=vT
    p(f"""v_and_b32 v{t}, 31, v0
    v_lshrrev_b32 v{t+2}, 5, v0
    s_mul_i32 s{A}, s{ty}, 5
    s_sub_u32 s{A}, s{lc}, s{A}
    s_mul_i32 s{B}, s{sHH}, 5
    s_add_u32 s{A}, s{A}, s{B}
    s_lshl_b32 s{B}, s{sRQ}, 2
    s_add_u32 s{B}, s{B}, s{sRB}
    s_lshl_b32 s{B}, s{B}, 1
    s_add_u32 s{B}, s{B}, s{wr}
    s_lshl_b32 s{B}, s{B}, 1""")
    isv=p.lab("isv"); jn=p.lab("stj")
    p(f"""s_cmp_ge_u32 s{ty}, 2
    s_cbranch_scc1 {isv}
    s_mul_i32 s{so}, s{B}, 2560
    s_mul_i32 s{B}, s{ty}, {KB}
    s_add_u32 s{so}, s{so}, s{B}
    s_add_u32 s{so2}, s{so}, 2560
    s_lshl_b32 s{A}, s{A}, 3""")
    for cb in range(2):
        for ip in range(2):
            p(f"""s_xor_b32 s{B}, s{wr}, {cb}
            s_lshl_b32 s{B}, s{B}, 2
            s_add_u32 s{B}, s{B}, s{A}
            s_add_u32 s{B}, s{B}, {2*ip}
            v_add_u32 v{t+3}, s{B}, v{t+2}
            v_mul_u32_u24 v{t+4}, 205, v{t+3}
            v_lshrrev_b32 v{t+4}, 10, v{t+4}
            v_mul_u32_u24 v{t+5}, 5, v{t+4}
            v_sub_u32 v{t+5}, v{t+3}, v{t+5}
            v_mul_u32_u24 v{t+4}, {64*2560}, v{t+4}
            v_lshl_add_u32 v{t+4}, v{t+5}, 9, v{t+4}
            v_lshl_add_u32 v{ast+2*cb+ip}, v{t}, 4, v{t+4}""")
    p(f"""s_branch {jn}
    {isv}:
    s_mul_i32 s{so}, s{B}, 1280
    s_add_u32 s{so}, s{so}, {VB}
    s_add_u32 s{so2}, s{so}, 1280
    s_lshl_b32 s{A}, s{A}, 6""")
    for cb in range(2):
        p(f"""s_xor_b32 s{B}, s{wr}, {cb}
        s_lshl_b32 s{B}, s{B}, 5
        s_add_u32 s{B}, s{B}, s{A}
        v_add_u32 v{t+3}, s{B}, v{t}
        v_mul_u32_u24 v{t+4}, 3277, v{t+3}
        v_lshrrev_b32 v{t+4}, 16, v{t+4}
        v_mul_u32_u24 v{t+5}, 20, v{t+4}
        v_sub_u32 v{t+5}, v{t+3}, v{t+5}
        v_mul_u32_u24 v{t+4}, 81920, v{t+4}
        v_lshl_add_u32 v{t+4}, v{t+5}, 4, v{t+4}
        v_mul_u32_u24 v{t+5}, 320, v{t+2}
        v_add_u32 v{ast+2*cb}, v{t+4}, v{t+5}
        v_add_u32 v{ast+2*cb+1}, 640, v{ast+2*cb}""")
    p(f"""{jn}:
    s_sub_u32 s{A}, s{ty}, 1
    s_cmp_lt_u32 s{A}, 2
    s_cselect_b32 s{halo}, 1, 0
    s_cmp_ge_u32 s{sRB}, 2
    s_cselect_b32 s{halo}, s{halo}, 0
    s_cmp_lt_u32 s{sRQ}, 3
    s_cselect_b32 s{halo}, s{halo}, 0
    s_lshl_b32 s{fo}, s{sG}, 4
    s_add_u32 s{fo}, s{fo}, s{lc}
    s_lshl_b32 s{fo}, s{fo}, 5
    s_lshl_b32 s{A}, s{sRB}, 1
    s_add_u32 s{A}, s{A}, s{wr}
    s_add_u32 s{fo}, s{fo}, s{A}
    s_lshl_b32 s{fo}, s{fo}, 2
    s_add_u32 s{fo}, s{fo}, {FL}""")
def xf(buf,xb): return XF+8*buf+4*xb
def wf(buf,cb): return WF+8*buf+4*cb
def reads(kind,buf,par,s):
    L=[]
    for xb in range(2): L.append(f"ds_read_b128 {vr(xf(buf,xb),4)}, v{aX+s} offset:{par*32768+xb*4096}")
    if kind!='S':
        for cb in range(2):
            for rd in range(2): L.append(f"ds_read_b64_tr_b16 {vr(wf(buf,cb)+2*rd,2)}, v{aW+cb} offset:{par*32768+s*4096+rd*1024}")
        L=[L[2],L[3],L[0],L[1],L[4],L[5]]
    return L
def mfmas(kind,buf):
    L=[]
    if kind=='S':
        for xb in range(2):
            x=xf(buf,xb)
            L.append(f"v_mfma_f32_16x16x32_bf16 {vr(ACC+4*xb,4)}, {vr(SEL,4)}, {vr(x,4)}, {vr(ACC+4*xb,4)}")
            L.append(f"v_mfma_f32_4x4x4_16b_bf16 {vr(ACC+8+8*xb,4)}, {vr(x,2)}, {vr(x,2)}, {vr(ACC+8+8*xb,4)}")
            L.append(f"v_mfma_f32_4x4x4_16b_bf16 {vr(ACC+12+8*xb,4)}, {vr(x+2,2)}, {vr(x+2,2)}, {vr(ACC+12+8*xb,4)}")
        return L
    for cb in range(2):
        for xb in range(2):
            a=ACC+16*(2*xb+cb); X=vr(xf(buf,xb),4); W=vr(wf(buf,cb),4)
            L.append(f"v_mfma_f32_32x32x16_bf16 {vr(a,16)}, {W if kind=='T' else X}, {X if kind=='T' else W}, {vr(a,16)}")
    L.insert(2,f"v_mfma_f32_16x16x32_bf16 {vr(CS,4)}, {vr(SEL,4)}, {vr(wf(buf,0),4)}, {vr(CS,4)}")
    return L
def gemm_loop(kind):
    CNT=sT+10
    lp=p.lab("g"+kind)
    p("s_barrier")
    STAMP('b0')
    for r in reads(kind,0,0,0): p(r)
    if kind!='S':
        sk=p.lab("nohello")
        p(f"""s_cmp_lg_u32 s{sWAVE}, 0
        s_cbranch_scc1 {sk}
        s_getreg_b32 s{CNT}, hwreg(HW_REG_XCC_ID, 0, 4)
        s_or_b32 s{CNT}, s{CNT}, s{sTAG}
        v_mov_b32 v{vT}, s{CNT}
        s_lshl_b32 s{CNT}, s2, 2
        s_add_u32 s{CNT}, s{CNT}, {H1}
        v_mov_b32 v{vT+1}, 0
        s_mov_b64 exec, 1
        buffer_store_dword v{vT}, v{vT+1}, {S4(sWS)}, s{CNT} offen sc1
        s_mov_b64 exec, -1
        {sk}:""")
    p(f"s_mov_b32 s{CNT}, 5\n{lp}:")
    for par in range(2):
        for s in range(4):
            buf=s&1
            last=(s==3)
            M=mfmas(kind,buf)
            if CFG['nomfma']: M=M[:1]
            if last and par==1:
                pre=[f"v_xor_b32 v{aX+i}, 0x10000, v{aX+i}" for i in range(4)]+[f"v_xor_b32 v{aW+i}, 0x10000, v{aW+i}" for i in range(2)]
            else: pre=[]
            R=reads(kind,buf^1,(par^1) if last else par,(s+1)&3)
            p("s_waitcnt lgkmcnt(0)")
            if last:
                p(M.pop(0))
                for x in pre: p(x)
                p("s_barrier")
            k=0
            while M or R:
                if R: p(R.pop(0))
                if R: p(R.pop(0))
                if M: p(M.pop(0))
    p(f"""s_sub_u32 s{CNT}, s{CNT}, 1
    s_cmp_lg_u32 s{CNT}, 0
    s_cbranch_scc1 {lp}""")
    STAMP('gend')
def bf16r(dst,src):
    p(f"v_cvt_pk_bf16_f32 v{dst}, v{src}, v{src}\nv_and_b32 v{dst}, 0xffff0000, v{dst}")
def mode_read():
    p(f"""v_mov_b32 v{vT+8}, {L_MODE}
    ds_read_b32 v{vT+9}, v{vT+8}""")
def mode_get():
    p(f"v_readfirstlane_b32 s{sMODE}, v{vT+9}")
def dual(stores):
    sl=p.lab("slow"); jn=p.lab("jn")
    p(f"s_cmp_lg_u32 s{sMODE}, 0\ns_cbranch_scc1 {sl}")
    for s in stores: p(s)
    p(f"s_branch {jn}\n{sl}:")
    for s in stores: p(s+" sc1")
    p(f"{jn}:")
def stats_epi():
    t=vT; A=sT+10
    mode_read()
    p(f"""v_and_b32 v{t}, 3, v0
    v_cmp_eq_u32 s[{A}:{A+1}], 1, v{t}
    v_cmp_eq_u32 s[{A+2}:{A+3}], 2, v{t}
    v_cmp_eq_u32 s[{A+4}:{A+5}], 3, v{t}
    s_nop 4""")
    for xb in range(2):
        g=ACC+8+8*xb
        for j in range(4): p(f"v_add_f32 v{g+j}, v{g+j}, v{g+4+j}")
        p(f"""v_cndmask_b32 v{g}, v{g}, v{g+1}, s[{A}:{A+1}]
        v_cndmask_b32 v{g}, v{g}, v{g+2}, s[{A+2}:{A+3}]
        v_cndmask_b32 v{g}, v{g}, v{g+3}, s[{A+4}:{A+5}]""")
    g0=ACC+8; g1=ACC+16
    p(f"""s_nop 1
    v_permlane32_swap_b32 v{g0}, v{g1}
    v_cndmask_b32 v{t+1}, v{ACC+4}, v{ACC}, s[{sLO}:{sLO+1}]
    v_add_f32 v{t+2}, v{g0}, v{g1}
    v_mul_f32 v{t+1}, {1/640!r}, v{t+1}
    v_mul_f32 v{t+2}, {1/640!r}, v{t+2}
    v_fma_f32 v{t+2}, -v{t+1}, v{t+1}, v{t+2}
    v_max_f32 v{t+2}, 0, v{t+2}""")
    bf16r(t+2,t+2)
    p(f"v_add_f32 v{t+2}, 0x3727c5ac, v{t+2}")
    bf16r(t+2,t+2)
    p(f"v_sqrt_f32 v{t+2}, v{t+2}\nv_xor_b32 v{t+1}, 0x80000000, v{t+1}")
    bf16r(t+2,t+2)
    p(f"""v_rcp_f32 v{t+5}, v{t+2}
    v_cvt_pk_bf16_f32 v{t+4}, v{t+1}, v{t+1}
    v_mov_b32 v{t+6}, s{sTAG}
    v_mov_b32 v{t+7}, s{sTAG}
    s_lshl_b32 s{A}, s{sG}, 2
    s_add_u32 s{A}, s{A}, s{sRB}
    s_lshl_b32 s{A}, s{A}, 1
    s_add_u32 s{A}, s{A}, s{sWR_}
    s_lshl_b32 s{A}, s{A}, 10
    s_add_u32 s{A}, s{A}, {ST1}
    v_lshlrev_b32 v{t+10}, 4, v0
    s_waitcnt lgkmcnt(0)""")
    mode_get()
    p("s_nop 0")
    dual([f"buffer_store_dwordx4 v[{t+4}:{t+7}], v{t+10}, {S4(sWS)}, s{A} offen"])
    p("s_barrier")
def gemm_epi(kind):
    t=vT; A=sT+10
    AU=20
    WA=24
    XA=28
    RS=32
    p(f"""v_and_b32 v{t}, 31, v0
    s_lshl_b32 s{A}, s{sWC}, 1
    s_or_b32 s{A}, s{A}, s{sWR_}
    s_lshl_b32 s{A}, s{A}, 7
    s_add_u32 s{A}, s{A}, {L_CS}
    v_lshl_add_u32 v{t+1}, v{t}, 2, s{A}
    s_lshl_b32 s{A}, s{sWR_}, 9
    s_add_u32 s{A}, s{A}, {L_SA}
    v_lshl_add_u32 v{t+3}, v{t}, 3, s{A}
    ds_write_b32 v{t+1}, v{CS}
    v_xor_b32 v{t+2}, 128, v{t+1}
    v_mov_b32 v{WA+1}, 0
    v_mov_b32 v{WA+3}, 0
    v_mov_b32 v{XA+1}, 0
    v_mov_b32 v{XA+3}, 0""")
    if kind=='V':
        p(f"""v_lshrrev_b32 v{t+4}, 5, v0
        s_lshl_b32 s{A}, s{sWR_}, 8
        s_add_u32 s{A}, s{A}, {L_SR}
        v_lshl_add_u32 v{t+4}, v{t+4}, 4, s{A}""")
    p("s_waitcnt lgkmcnt(0)\ns_barrier")
    STAMP('E1',1)
    p(f"""ds_read_b32 v{CS+1}, v{t+2}
    ds_read_b64 v[{AU}:{AU+1}], v{t+3}
    ds_read_b64 v[{AU+2}:{AU+3}], v{t+3} offset:256""")
    mode_read()
    if kind=='V':
        for xb in range(2):
            for i in range(4): p(f"ds_read_b128 {vr(RS+16*xb+4*i,4)}, v{t+4} offset:{xb*128+i*32}")
    def split(cb):
        c=CS+cb
        p(f"""v_cndmask_b32 v{c}, 0, v{c}, s[{sLO}:{sLO+1}]
        v_cvt_pk_bf16_f32 v{t+5}, v{c}, v{c}
        v_and_b32 v{t+5}, 0xffff0000, v{t+5}
        v_sub_f32 v{t+6}, v{c}, v{t+5}
        v_cvt_pk_bf16_f32 v{WA+2*cb}, v{t+5}, v{t+6}""")
    split(0)
    p(f"s_waitcnt lgkmcnt({8 if kind=='V' else 0})")
    split(1)
    p(f"v_mov_b32 v{XA}, v{AU}\nv_mov_b32 v{XA+2}, v{AU+2}")
    mode_get()
    if kind=='T':
        p(f"""s_cmp_eq_u32 s{sTY}, 0
        s_cselect_b32 s{A}, {hex(f2u(20**-0.5*math.log2(math.e)))}, 1.0
        v_mul_f32 v{AU+1}, s{A}, v{AU+1}
        v_mul_f32 v{AU+3}, s{A}, v{AU+3}""")
    else: p("s_nop 0")
    for xb in range(2):
        for cb in range(2):
            a=ACC+16*(2*xb+cb); X=vr(XA+2*xb,2); W=vr(WA+2*cb,2)
            p(f"v_mfma_f32_32x32x8_bf16 {vr(a,16)}, {W if kind=='T' else X}, {X if kind=='T' else W}, {vr(a,16)}")
    p("s_waitcnt lgkmcnt(0)\ns_nop 7")
    allst=[]
    for xb in range(2):
        st=[]
        for cb in range(2):
            a=ACC+16*(2*xb+cb)
            for k in range(8):
                if kind=='T': p(f"v_pk_mul_f32 {vr(a+2*k,2)}, {vr(a+2*k,2)}, {vr(AU+2*xb,2)} op_sel:[0,1] op_sel_hi:[1,1]")
                else: p(f"v_pk_mul_f32 {vr(a+2*k,2)}, {vr(a+2*k,2)}, {vr(RS+16*xb+2*k,2)}")
            for k in range(8): p(f"v_cvt_pk_bf16_f32 v{a+k}, v{a+2*k}, v{a+2*k+1}")
            if kind=='T':
                p(f"""v_permlane32_swap_b32 v{a}, v{a+2}
                v_permlane32_swap_b32 v{a+1}, v{a+3}
                v_permlane32_swap_b32 v{a+4}, v{a+6}
                v_permlane32_swap_b32 v{a+5}, v{a+7}""")
            for h in range(2):
                st.append(f"buffer_store_dwordx4 {vr(a+4*h,4)}, v{aST+2*cb+h}, {S4(sWS)}, s{sSO2 if xb else sSO} offen")
                allst.append(a+4*h)
        dual(st)
    STAMP('st')
    nh=p.lab("nohalo")
    p(f"""v_mov_b32 v{t}, 0
    v_mov_b32 v{t+1}, s{sTAG}
    s_cmp_eq_u32 s{sHALO}, 0
    s_cbranch_scc1 {nh}
    s_lshl_b32 s{A}, s{sWAVE}, 13
    v_lshl_add_u32 v{t+2}, v0, 4, s{A}
    s_lshl_b32 s{A}, s{sWAVE}, 2
    s_add_u32 s{A}, s{A}, {F_STG}
    v_mov_b32 v{t+3}, s{A}""")
    for i,r in enumerate(allst): p(f"ds_write_b128 v{t+2}, {vr(r,4)} offset:{L_STG+i*1024}")
    p(f"""ds_write_b32 v{t+3}, v{t+3}
    {nh}:
    s_waitcnt vmcnt(0)
    s_mov_b64 exec, 1""")
    dual([f"buffer_store_dword v{t+1}, v{t}, {S4(sWS)}, s{sFO} offen"])
    p(f"s_mov_b64 exec, -1")
    STAMP('fl')
import struct
def f2u(x): return struct.unpack("<I",struct.pack("<f",x))[0]

aLin,aTl,aKm,aKt,aV,aFl,aO=20,21,22,23,24,25,26
QM=[28,34]; QT=[32,38]; PP=40
KM=[48,62]; KT=[52,66]; VV=[[54,58],[68,72]]
SS=[80,96]; OO=[112,128]; CD=144; CF=160
sQ=[sT+9,sT+10]; sOm=[sT+11,sT+12]; sOt=[sT+13,sT+14]; sOSC=sT+15; sFB=sT+16
NINF="0xff800000"
def att_pro():
    t=vT; A=sT+7; B=sT+8; C=sT+17; sF=sT
    wo_pre1()
    att_ids()
    flag_addr(aFl,t,1,A,B,C)
    p(f"""s_lshl_b32 s{sF}, s{sG}, 11
    s_lshl_b32 s{A}, s{sHF}, 4
    s_add_u32 s{sF}, s{sF}, s{A}
    s_add_u32 s{sF}, s{sF}, {FL}
    buffer_load_dword v{t+10}, v{aFl}, {S4(sWS)}, s{sF} offen sc1
    s_mov_b32 s{sK1024}, 1024""")
    kv_addr(aLin,aTl,t)
    p(f"""v_add_u32 v{aKm}, {L_KV}, v{aLin}
    v_and_b32 v{t}, 31, v0
    v_lshrrev_b32 v{t+1}, 5, v0
    v_xor_b32 v{t+2}, s{sHO}, v{t+1}
    v_lshlrev_b32 v{t+2}, 3, v{t+2}
    v_lshl_add_u32 v{t+2}, v{t}, 4, v{t+2}
    v_add_u32 v{aKt}, {L_KV+2048}, v{t+2}
    v_mul_u32_u24 v{t+2}, 320, v{t+1}
    v_lshl_add_u32 v{t+2}, v{t}, 4, v{t+2}
    v_add_u32 v{aV}, {L_KV+3072}, v{t+2}
    v_lshlrev_b32 v{t+2}, 2, v{t+1}
    v_sub_u32 v{t+2}, v{t}, v{t+2}
    v_mov_b32 v{t+3}, {NINF}""")
    for i in range(16):
        m=C+1+2*(i%2)+((C+1)%2)
        ri=8*(i>>2)+(i&3)
        p(f"v_cmp_le_i32 s[{m}:{m+1}], {ri}, v{t+2}")
        if i>0:
            m2=C+1+2*((i-1)%2)+((C+1)%2)
            if i==1: p("s_nop 0")
            p(f"v_cndmask_b32 v{CD+i-1}, v{t+3}, 0, s[{m2}:{m2+1}]\nv_cndmask_b32 v{CF+i-1}, 0, v{t+3}, s[{m2}:{m2+1}]")
    p(f"""s_nop 0
    v_cndmask_b32 v{CD+15}, v{t+3}, 0, s[{m}:{m+1}]
    v_cndmask_b32 v{CF+15}, 0, v{t+3}, s[{m}:{m+1}]
    v_cmp_eq_u32 s[{m}:{m+1}], 20, v{t}
    v_cmp_eq_u32 vcc, 24, v{t}
    v_mov_b32 v{t+4}, 0x3f803f80
    s_or_b64 vcc, vcc, s[{m}:{m+1}]""")
    for b_ in range(2):
        for mm in range(2):
            for r in range(4): p(f"v_cndmask_b32 v{VV[b_][mm]+r}, 0, v{t+4}, vcc")
    for q in range(2): p(f"v_mov_b32 v{QT[q]}, 0\nv_mov_b32 v{QT[q]+1}, 0")
    p(f"""v_bfe_u32 v{t+2}, v0, 4, 1
    v_mul_u32_u24 v{t+2}, 20480, v{t+2}
    v_lshl_add_u32 v{t+2}, v{t+1}, 8, v{t+2}
    v_and_b32 v{t+3}, 15, v0
    v_lshl_add_u32 v{aO}, v{t+3}, 4, v{t+2}
    s_cmp_lg_u32 s{sHF}, s{sHH}
    s_cselect_b32 s{sOSC}, 1, s{sMODE}
    s_mov_b32 s{sFB}, 0""")
    for q in range(2):
        if q==0: p(f"s_add_u32 s{A}, s{sT0}, 7\ns_sub_u32 s{A}, s{A}, s{sWAVE}")
        else: p(f"s_add_u32 s{A}, s{sT0}, s{sWAVE}")
        p(f"""s_mul_i32 s{sQ[q]}, s{A}, 2560
        s_mul_i32 s{B}, s{sPH}, {64*2560}
        s_add_u32 s{sQ[q]}, s{sQ[q]}, s{B}
        s_mul_i32 s{A}, s{A}, 40960
        s_mul_i32 s{B}, s{sPH}, 1280
        s_add_u32 s{A}, s{A}, s{B}
        s_add_u32 s{A}, s{A}, {OB}
        s_mul_i32 s{B}, s{sHO}, 768
        s_add_u32 s{sOm[q]}, s{A}, s{B}
        s_lshl_b32 s{B}, s{sHO}, 3
        s_add_u32 s{sOt[q]}, s{A}, s{B}""")
    sK=C+1; sV=C+2; sL=C+3
    p(f"""s_lshl_b32 s{A}, s{sWAVE}, 1
    s_add_u32 s{A}, s{A}, s{sT0}
    s_mul_i32 s{sK}, s{A}, 2560
    s_mul_i32 s{sV}, s{A}, 1280
    s_mul_i32 s{A}, s{sPH}, {64*2560}
    s_add_u32 s{sK}, s{sK}, s{A}
    s_add_u32 s{sK}, s{sK}, {KB}
    s_mul_i32 s{A}, s{sHD}, 81920
    s_add_u32 s{sV}, s{sV}, s{A}
    s_add_u32 s{sV}, s{sV}, {VB}
    s_mul_i32 s{sL}, s{sWAVE}, 5632
    s_add_u32 s{sL}, s{sL}, {L_KV+4*5632}
    s_mul_i32 s{A}, s{sHO}, 1536
    v_add_u32 v{t+2}, s{A}, v{aLin}
    s_lshl_b32 s{A}, s{sHO}, 3
    v_add_u32 v{t+3}, s{A}, v{aLin}""")
    p("s_waitcnt vmcnt(1)")
    wo_pre2()
    flag_poll(aFl,t+10,sF,C,first=False)
    STAMP('fseen')
    kv_dma(aLin,aTl,sK,sV,sL,A,B)
    for q in range(2): p(f"buffer_load_dwordx4 {vr(QM[q],4)}, v{t+2}, {S4(sWS)}, s{sQ[q]} offen sc1")
    p(f"s_mov_b64 exec, s[{sLO}:{sLO+1}]")
    for q in range(2): p(f"buffer_load_dwordx2 {vr(QT[q],2)}, v{t+3}, {S4(sWS)}, s{sQ[q]} offen offset:1024 sc1")
    p(f"""s_mov_b64 exec, 1
    v_mov_b32 v{t}, {F_G1}
    v_mov_b32 v{t+1}, 1
    s_waitcnt vmcnt(4)
    ds_add_u32 v{t}, v{t+1}
    s_mov_b64 exec, -1
    v_mov_b32 v{aFl}, {F_G1}""")
    lds_wait(aFl,t+5,C,'gt',4,0)
    p(f"s_waitcnt vmcnt(0)")
    STAMP('kv')
    p(f"""s_cmp_eq_u32 s{sWAVE}, 1
    s_cbranch_scc1 L_av1
    s_cmp_eq_u32 s{sWAVE}, 2
    s_cbranch_scc1 L_av2
    s_cmp_eq_u32 s{sWAVE}, 3
    s_cbranch_scc1 L_av3""")
def kreads(n,b_):
    o=(n>>1)*5632
    return [f"ds_read_b128 {vr(KM[b_],4)}, v{aKm} offset:{o+(n&1)*1024}", f"ds_read_b64 {vr(KT[b_],2)}, v{aKt} offset:{o+(n&1)*512}"]
def vreads(n,b_):
    o=(n>>1)*5632+(n&1)*1280
    return [f"s_mov_b64 exec, s[{sLO+2}:{sLO+3}]", f"ds_read_b128 {vr(VV[b_][0],4)}, v{aV} offset:{o}", f"ds_read_b128 {vr(VV[b_][1],4)}, v{aV} offset:{o+640}", "s_mov_b64 exec, -1"]
def att_variant(w):
    U=[]
    for n in range(15-w,8+w,-1): U.append((0,n))
    for n in range(8+w,6-w,-1): U+= [(0,n),(1,n)]
    for n in range(6-w,w-1,-1): U.append((1,n))
    assert len(U)==18
    diag=[15-w,8+w]
    tiles=[]; tau=[]
    for q,n in U:
        if not tiles or tiles[-1]!=n: tiles.append(n)
        tau.append(len(tiles)-1)
    first=[tau.index(i) for i in range(len(tiles))]
    started=[0,0]
    def QK(u):
        q,n=U[u]; b_=tau[u]&1; S=vr(SS[u&1],16)
        c=vr(CD,16) if n==diag[q] else (vr(CF,16) if n==diag[q]-8 else "0")
        return [f"v_mfma_f32_32x32x16_bf16 {S}, {vr(KM[b_],4)}, {vr(QM[q],4)}, {c}", f"v_mfma_f32_32x32x8_bf16 {S}, {vr(KT[b_],2)}, {vr(QT[q],2)}, {S}"]
    def PV(u,m):
        q,n=U[u]; O=vr(OO[q],16)
        c=O if started[q] else "0"; started[q]=1
        return f"v_mfma_f32_32x32x16_bf16 {O}, {vr(VV[tau[u]&1][m],4)}, {vr(PP+4*m,4)}, {c}"
    p(f"L_av{w}:")
    for i,f in enumerate(first):
        if f<=1:
            for x in kreads(tiles[i],i&1): p(x)
    for x in vreads(tiles[0],0): p(x)
    p("s_waitcnt lgkmcnt(0)")
    for x in QK(0): p(x)
    p("s_nop 7\ns_nop 3")
    pend=False
    H=first[tiles.index(7)]
    for u in range(18):
        S=SS[u&1]
        e=lambda i: p(f"v_exp_f32 v{S+i}, v{S+i}")
        c=lambda k: p(f"v_cvt_pk_bf16_f32 v{PP+k}, v{S+2*k}, v{S+2*k+1}")
        kr=[x for i,f in enumerate(first) if f==u+2 for x in kreads(tiles[i],i&1)]
        vr_=[x for i,f in enumerate(first) if f==u+1 for x in vreads(tiles[i],i&1)]
        late=(u+2==H)
        STAMP('u%d'%u)
        e(0); e(1)
        if u>0: p(PV(u-1,1))
        e(2)
        if not late:
            for x in kr: p(x)
        if u+3==H: p(f"ds_read_b32 v{vT}, v{aFl} offset:{F_G2-F_G1}")
        e(3); c(0); c(1)
        if pend: p("s_waitcnt lgkmcnt(0)") if not (kr and not late) and u+3!=H else p(f"s_waitcnt lgkmcnt({(len(kr) if not late else 0)+(1 if u+3==H else 0)})")
        qk=QK(u+1) if u<17 else [None,None]
        if qk[0]: p(qk[0])
        e(4)
        if late:
            p(f"v_cmp_gt_u32 vcc, 2, v{vT}")
        e(5)
        if late:
            p(f"s_cbranch_vccnz L_g2w{w}\nL_g2r{w}:")
            for x in kr: p(x)
        for x in vr_: p(x)
        e(6); e(7); c(2); c(3)
        if qk[1]: p(qk[1])
        e(8); e(9); e(10); e(11)
        p(PV(u,0))
        c(4); c(5); e(12); e(13); e(14); e(15); c(6); c(7)
        pend=bool(kr or vr_ or u+3==H)
        if u==H-1:
            p(f"s_cmp_eq_u32 s{sT0}, 0\ns_cbranch_scc1 L_ex{w}")
            exq=PV(u,1)
    p("s_nop 1")
    p(PV(17,1))
    p("s_branch L_afin")
    p(f"L_g2w{w}:")
    p(f"v_mov_b32 v{vT+1}, {F_G2}")
    lds_wait(vT+1,vT,sT+17,'gt',2,1)
    p(f"s_branch L_g2r{w}\nL_ex{w}:\n{exq}\ns_branch L_afin")
def att_fin():
    t=vT; A=sT+7
    p("L_afin:")
    STAMP('aend')
    p(f"ds_read_b32 v{t+9}, v{aFl} offset:{F_H2-F_G1}")
    p(f"s_mov_b32 s{A}, {hex(f2u(2.0**-40))}\ns_mov_b32 s{A+1}, {hex(f2u(2.0**40)-f2u(2.0**-40))}")
    for q in range(2):
        O=OO[q]
        p(f"""v_cndmask_b32 v{t}, v{O+8}, v{O+12}, s[{sLO}:{sLO+1}]
        v_pk_add_f32 v[{t+2}:{t+3}], v[{O}:{O+1}], v[{O+2}:{O+3}]
        v_rcp_f32 v{t+1}, v{t}
        v_pk_add_f32 v[{t+4}:{t+5}], v[{O+4}:{O+5}], v[{O+6}:{O+7}]
        v_pk_add_f32 v[{t+6}:{t+7}], v[{O+8}:{O+9}], v[{O+10}:{O+11}]
        v_subrev_u32 v{t}, s{A}, v{t}
        v_pk_add_f32 v[{t+2}:{t+3}], v[{t+2}:{t+3}], v[{t+4}:{t+5}]
        v_cmp_lt_u32 s[{A+11}:{A+12}], s{A+1}, v{t}
        v_pk_add_f32 v[{t+2}:{t+3}], v[{t+2}:{t+3}], v[{t+6}:{t+7}]
        v_add_f32 v{t+2}, v{t+2}, v{t+3}""")
        p(f"v_cmp_class_f32 vcc, v{t+2}, v{aCLS}")
        for k in range(6): p(f"v_pk_mul_f32 {vr(O+2*k,2)}, {vr(O+2*k,2)}, {vr(t,2)} op_sel:[0,1] op_sel_hi:[1,1]")
        p(f"""s_or_b64 vcc, vcc, s[{A+11}:{A+12}]
        s_cbranch_scc1 L_afb{q}
        L_afr{q}:""")
        for k in range(6): p(f"v_cvt_pk_bf16_f32 v{O+k}, v{O+2*k}, v{O+2*k+1}")
        if q==0:
            p(f"""s_waitcnt lgkmcnt(0)
            v_cmp_eq_u32 vcc, 0, v{t+9}
            s_cmp_lg_u32 s{sOSC}, 0
            s_cbranch_vccnz L_h2w
            L_h2r:""")
        else: p(f"s_cmp_lg_u32 s{sOSC}, 0")
        st=[f"buffer_store_dwordx4 {vr(O,4)}, v{aO}, {S4(sWS)}, s{sOm[q]} offen", f"s_mov_b64 exec, s[{sLO}:{sLO+1}]",
            f"buffer_store_dwordx2 {vr(O+4,2)}, v{aO}, {S4(sWS)}, s{sOt[q]} offen offset:512", "s_mov_b64 exec, -1"]
        p(f"s_cbranch_scc1 L_osc{q}")
        for x in st: p(x)
        p(f"L_osr{q}:")
        COLD.append(f"L_osc{q}:\n"+"\n".join(x+(" sc1" if x.startswith("buffer") else "") for x in st)+f"\ns_branch L_osr{q}")
    p(f"""v_mov_b32 v{t}, {F_DONE}
    v_mov_b32 v{t+1}, 1
    s_mov_b64 exec, 1
    ds_add_u32 v{t}, v{t+1}
    s_mov_b64 exec, -1""")
    STAMP('ost')
aCLS=27
COLD=[]
def att_cold():
    t=vT; A=sT+7; B=sT+8; N=sT+17; J=sT+18; CN=sT+19; PA=sT+20
    p(f"L_h2w:\nv_mov_b32 v{t+8}, {F_H2}")
    lds_wait(t+8,t+9,A+11,'eq',0,2)
    p(f"s_cmp_lg_u32 s{sOSC}, 0\ns_branch L_h2r")
    for q in range(2): p(f"L_afb{q}:\ns_cmp_lg_u32 s{sFB}, 0\ns_cbranch_scc1 L_afr{q}\ns_branch L_afb")
    p(f"L_afb:\ns_mov_b32 s{sFB}, 1\ns_waitcnt lgkmcnt(0)")
    S=SS[0]; MX=t+10; xa=t+11
    for q in range(2):
        lp=p.lab("fb"); nd=p.lab("fbnd"); nf=p.lab("fbnf"); p2=p.lab("fbp2"); nx=p.lab("fbnx"); ps=p.lab("fbps"); dn=p.lab("fbdn")
        for r in range(16): p(f"v_mov_b32 v{OO[q]+r}, 0")
        p(f"""v_mov_b32 v{MX}, {NINF}
        s_mov_b32 s{PA}, 0
        {ps}:""")
        if q==0: p(f"s_sub_u32 s{N}, 15, s{sWAVE}")
        else: p(f"s_add_u32 s{N}, 8, s{sWAVE}")
        p(f"""s_sub_u32 s{CN}, s{N}, 7
        s_cmp_eq_u32 s{sT0}, 0
        s_cselect_b32 s{CN}, s{CN}, 9
        s_mov_b32 s{J}, 0
        {lp}:
        s_lshr_b32 s{A}, s{N}, 1
        s_mul_i32 s{A}, s{A}, 5632
        s_and_b32 s{B}, s{N}, 1
        s_lshl_b32 s{sT+21}, s{B}, 10
        s_add_u32 s{sT+21}, s{sT+21}, s{A}
        v_add_u32 v{xa}, s{sT+21}, v{aKm}
        s_lshl_b32 s{sT+21}, s{B}, 9
        s_add_u32 s{sT+21}, s{sT+21}, s{A}
        v_add_u32 v{xa+1}, s{sT+21}, v{aKt}
        s_mul_i32 s{B}, s{B}, 1280
        s_add_u32 s{A}, s{A}, s{B}
        v_add_u32 v{xa+2}, s{A}, v{aV}
        ds_read_b128 {vr(KM[0],4)}, v{xa}
        ds_read_b64 {vr(KT[0],2)}, v{xa+1}
        s_mov_b64 exec, s[{sLO+2}:{sLO+3}]
        ds_read_b128 {vr(VV[0][0],4)}, v{xa+2}
        ds_read_b128 {vr(VV[0][1],4)}, v{xa+2} offset:640
        s_mov_b64 exec, -1
        s_waitcnt lgkmcnt(0)
        v_mfma_f32_32x32x16_bf16 {vr(S,16)}, {vr(KM[0],4)}, {vr(QM[q],4)}, 0
        v_mfma_f32_32x32x8_bf16 {vr(S,16)}, {vr(KT[0],2)}, {vr(QT[q],2)}, {vr(S,16)}
        v_mov_b32 v{xa}, {NINF}
        s_nop 11
        s_cmp_lg_u32 s{J}, 0
        s_cbranch_scc1 {nd}""")
        for r in range(16): p(f"v_cmp_eq_u32 vcc, 0, v{CD+r}\ns_nop 1\nv_cndmask_b32 v{S+r}, v{xa}, v{S+r}, vcc")
        p(f"{nd}:\ns_cmp_lg_u32 s{J}, 8\ns_cbranch_scc1 {nf}")
        for r in range(16): p(f"v_cmp_eq_u32 vcc, 0, v{CF+r}\ns_nop 1\nv_cndmask_b32 v{S+r}, v{xa}, v{S+r}, vcc")
        p(f"{nf}:\ns_cmp_lg_u32 s{PA}, 0\ns_cbranch_scc1 {p2}")
        for r in range(0,16,2): p(f"v_max3_f32 v{MX}, v{S+r}, v{S+r+1}, v{MX}")
        p(f"s_branch {nx}\n{p2}:")
        for r in range(16): p(f"v_sub_f32 v{S+r}, v{S+r}, v{MX}")
        for r in range(16): p(f"v_exp_f32 v{S+r}, v{S+r}")
        p("s_nop 0")
        for k in range(8): p(f"v_cvt_pk_bf16_f32 v{PP+k}, v{S+2*k}, v{S+2*k+1}")
        p("s_nop 1")
        for m in range(2): p(f"v_mfma_f32_32x32x16_bf16 {vr(OO[q],16)}, {vr(VV[0][m],4)}, {vr(PP+4*m,4)}, {vr(OO[q],16)}")
        p(f"""s_nop 11
        {nx}:
        s_sub_u32 s{N}, s{N}, 1
        s_add_u32 s{J}, s{J}, 1
        s_cmp_lt_u32 s{J}, s{CN}
        s_cbranch_scc1 {lp}
        s_cmp_lg_u32 s{PA}, 0
        s_cbranch_scc1 {dn}
        v_mov_b32 v{xa}, v{MX}
        s_mov_b32 s{PA}, 1
        s_nop 0
        v_permlane32_swap_b32 v{xa}, v{MX}
        s_nop 1
        v_max_f32 v{MX}, v{MX}, v{xa}
        s_branch {ps}
        {dn}:""")
    p("s_branch L_afin")

BF=28; AF=108; WACC=200; XR=176; WR_=186; aX2=196; aPS=197; aAL=198; aAR=199; SW=220; SELF=221; aPR=222; aKY=223; aCD=224
HP=40; HF_=50; LP=70; OP=80
sRT=sT+1; sOL=sT+2; sOR=sT+5; sXO=sT+11; sPSO=sT+12; sRETRY=sT+13; sPRB=sT+14
def acc_init():
    for k in range(10): p(f"v_lshlrev_b32 v{WACC+2*k}, 16, v{XR+k}\nv_and_b32 v{WACC+2*k+1}, 0xffff0000, v{XR+k}")
def wo_pre1():
    t=vT; A=sT+7; B=sT+8
    wo_ids()
    p(f"""v_and_b32 v{t}, 15, v0
    v_lshrrev_b32 v{t+1}, 4, v0
    v_mul_u32_u24 v{t+2}, 40, v{t+1}
    v_mov_b32 v{t+3}, 1280
    v_mad_u32_u24 v{aX2}, v{t}, v{t+3}, v{t+2}
    s_lshl_b32 s{A}, s{sBLK}, 2
    s_add_u32 s{A}, s{A}, s{sWAVE}
    s_mul_i32 s{A}, s{A}, 20480
    s_mul_i32 s{B}, s{sJ}, 160
    s_add_u32 s{A}, s{A}, s{B}
    buffer_load_dwordx4 {vr(XR,4)}, v{aX2}, {S4(sX)}, s{A} offen
    buffer_load_dwordx4 {vr(XR+4,4)}, v{aX2}, {S4(sX)}, s{A} offen offset:16
    buffer_load_dwordx2 {vr(XR+8,2)}, v{aX2}, {S4(sX)}, s{A} offen offset:32
    buffer_load_dwordx4 {vr(WR_,4)}, v{t+2}, {S4(sWR)}, s{B} offen
    buffer_load_dwordx4 {vr(WR_+4,4)}, v{t+2}, {S4(sWR)}, s{B} offen offset:16
    buffer_load_dwordx2 {vr(WR_+8,2)}, v{t+2}, {S4(sWR)}, s{B} offen offset:32
    v_lshlrev_b32 v{aPS}, 7, v{t}
    v_lshl_add_u32 v{aPS}, v{t+1}, 5, v{aPS}
    v_and_b32 v{t+2}, 3, v0
    v_cmp_eq_u32 vcc, v{t+1}, v{t+2}
    s_mul_i32 s{A}, s{sHH}, 51200
    s_add_u32 s{B}, s{A}, {L_WO}
    v_cndmask_b32 v{SELF}, 0, 1.0, vcc
    v_lshl_add_u32 v{aAL}, v0, 4, s{B}
    s_sub_u32 s{B}, {L_WO+51200}, s{A}
    v_lshl_add_u32 v{aAR}, v0, 4, s{B}
    v_and_b32 v{t+2}, 7, v0
    v_mul_u32_u24 v{t+2}, 1280, v{t+2}
    v_bfe_u32 v{t+3}, v0, 3, 1
    v_lshl_add_u32 v{aPR}, v{t+3}, 7, v{t+2}""")
def wo_pre2():
    acc_init()
    p(f"v_mov_b32 v{SW}, 0\nv_mov_b32 v{vT}, 0x3f803f80\ns_nop 0")
    for k in range(10): p(f"v_dot2_f32_bf16 v{SW}, v{WR_+k}, v{vT}, v{SW}")
def probe(soff,cnt,first=True):
    t=vT
    lp=p.lab("pb"); ok=p.lab("pbok"); md=p.lab("pbm")
    p(f"s_mov_b32 s{cnt}, {SPIN}")
    if not first: p(f"s_branch {md}")
    p(f"""{lp}:
    buffer_load_dwordx3 v[{t+4}:{t+6}], v{aPR}, {S4(sWS)}, s{soff} offen offset:512 sc1""")
    if not first: p(f"{md}:")
    p(f"""s_waitcnt vmcnt(0)
    v_max_u32 v{t+4}, v{t+4}, v{t+6}
    v_cmp_eq_u32 vcc, -1, v{t+4}
    s_nop 0
    s_cbranch_vccz {ok}""")
    spin(cnt,lp,ok)
    p(f"s_branch {lp}\n{ok}:")
def wo_main():
    t=vT; A=sT+7; B=sT+8; C=sT+17; MXS=t+8
    wo_ids()
    p(f"""s_lshl_b32 s{sRT}, s{sBLK}, 2
    s_add_u32 s{sRT}, s{sRT}, s{sWAVE}
    s_mul_i32 s{A}, s{sRT}, 20480
    s_mul_i32 s{B}, s{sJ}, 160
    s_add_u32 s{sXO}, s{A}, s{B}
    s_add_u32 s{A}, s{A}, {OB}
    s_mul_i32 s{B}, s{sHH}, 10240
    s_add_u32 s{sOL}, s{A}, s{B}
    s_add_u32 s{sOL+1}, s{sOL}, 4096
    s_add_u32 s{sOL+2}, s{sOL}, 8192
    s_add_u32 s{A}, s{A}, 10240
    s_sub_u32 s{sOR}, s{A}, s{B}
    s_lshl_b32 s{sPSO}, s{sRT}, 11
    s_add_u32 s{sPSO}, s{sPSO}, {PS}
    s_mov_b32 s{sRETRY}, {1<<16}
    v_mov_b32 v{t}, {F_WOR}""")
    lds_wait(t,t+1,C,'gt',2,0)
    p(f"""s_add_u32 s{sOR+1}, s{sOR}, 4096
    s_add_u32 s{sPRB}, s{sOR}, 8192
    L_wo:""")
    STAMP('wor')
    sROFF=[sOR,sOR+1,sPRB]
    def aread(s_,t_): return f"ds_read_b128 {vr(AF+20*(s_%3)+4*t_,4)}, v{aAL if s_<10 else aAR} offset:{(s_%10)*5120+t_*1024}"
    def bload(s_):
        so=(sOL+(s_%10)//4) if s_<10 else sROFF[(s_%10)//4]
        return f"buffer_load_dwordx4 {vr(BF+4*s_,4)}, v{aLin}, {S4(sWS)}, s{so} offen offset:{(s_%10%4)*1024} sc1"
    for s_ in range(2):
        for t_ in range(5): p(aread(s_,t_))
    p(f"v_mov_b32 v{MXS}, 0")
    probe(sOL,C)
    STAMP('pl')
    for s_ in range(10): p(bload(s_))
    p(f"buffer_load_dwordx3 v[{t+4}:{t+6}], v{aPR}, {S4(sWS)}, s{sOR} offen offset:512 sc1")
    for s_ in range(20):
        if s_==10:
            STAMP('loc')
            probe(sOR,C,first=False)
            STAMP('pr')
            for k in range(10,20): p(bload(k))
        p(f"s_waitcnt vmcnt({(10-s_) if s_<10 else (19-s_)}) lgkmcnt({5 if s_<19 else 0})")
        for t_ in range(5):
            a=vr(WACC+4*t_,4)
            p(f"v_mfma_f32_16x16x32_bf16 {a}, {vr(AF+20*(s_%3)+4*t_,4)}, {vr(BF+4*s_,4)}, {a}")
            if s_+2<20: p(aread(s_+2,t_))
            if t_==0: p(f"v_max3_u32 v{MXS}, v{BF+4*s_}, v{BF+4*s_+2}, v{MXS}")
    p(f"""v_cmp_eq_u32 vcc, -1, v{MXS}
    v_mov_b32 v{t}, 0x3f803f80
    v_mov_b32 v{t+2}, 0
    v_mov_b32 v{t+3}, 0
    v_mov_b32 v{t+4}, 0
    s_cbranch_vccnz L_woredo
    L_wook:""")
    STAMP('wend')
    COLD.append(f"L_woredo:\ns_sub_u32 s{sRETRY}, s{sRETRY}, 1\ns_cbranch_scc1 L_wook\ns_nop 7")
    q=P();
    COLD.append("\n".join(f"v_lshlrev_b32 v{WACC+2*k}, 16, v{XR+k}\nv_and_b32 v{WACC+2*k+1}, 0xffff0000, v{XR+k}" for k in range(10))+"\ns_branch L_wo")
    for k in range(10): p(f"v_cvt_pk_bf16_f32 v{HP+k}, v{WACC+2*k}, v{WACC+2*k+1}")
    for k in range(10):
        p(f"""v_dot2_f32_bf16 v{t+2}, v{HP+k}, v{t}, v{t+2}
        v_dot2_f32_bf16 v{t+3}, v{HP+k}, v{HP+k}, v{t+3}
        v_dot2_f32_bf16 v{t+4}, v{HP+k}, v{WR_+k}, v{t+4}""")
    p(f"""v_mov_b32 v{t+5}, v{SW}
    s_lshl_b32 s{A}, s{sJ}, 2
    s_add_u32 s{A}, s{A}, s{sPSO}
    v_permlane32_swap_b32 v{t+2}, v{t+3}
    v_permlane32_swap_b32 v{t+4}, v{t+5}
    s_nop 0
    v_add_f32 v{t+2}, v{t+2}, v{t+3}
    v_add_f32 v{t+4}, v{t+4}, v{t+5}
    s_cmp_lg_u32 s{sMODE}, 0
    s_nop 0
    v_permlane16_swap_b32 v{t+2}, v{t+4}
    s_nop 0
    v_add_f32 v{t+2}, v{t+2}, v{t+4}
    s_cbranch_scc1 L_pssc
    buffer_store_dword v{t+2}, v{aPS}, {S4(sWS)}, s{A} offen
    L_psr:""")
    COLD.append(f"L_pssc:\nbuffer_store_dword v{t+2}, v{aPS}, {S4(sWS)}, s{A} offen sc1\ns_branch L_psr")
    STAMP('ps')
    G=t+10
    lp=p.lab("ps"); ok=p.lab("psok"); md=p.lab("psm")
    ld=f"""buffer_load_dwordx4 {vr(G,4)}, v{aPS}, {S4(sWS)}, s{sPSO} offen sc1
    buffer_load_dwordx4 {vr(G+4,4)}, v{aPS}, {S4(sWS)}, s{sPSO} offen offset:16 sc1"""
    p(ld)
    for k in range(10): p(f"v_lshlrev_b32 v{HF_+2*k}, 16, v{HP+k}\nv_and_b32 v{HF_+2*k+1}, 0xffff0000, v{HP+k}")
    if CFG['dbg']:
        p(f"s_add_u32 s{A}, s{sXO}, {HB}")
        for o,n in ((0,4),(4,4),(8,2)): p(f"buffer_store_dwordx{n} {vr(HP+o,n)}, v{aX2}, {S4(sWS)}, s{A} offen offset:{4*o}")
    p(f"""s_lshl_b32 s{A}, s{sRT}, 4
    s_sub_u32 s{A}, 2047, s{A}
    v_and_b32 v{t}, 15, v0
    v_sub_u32 v{t+9}, s{A}, v{t}
    v_lshlrev_b32 v{t+9}, 3, v{t+9}
    s_lshl_b32 s{A}, s{sWAVE}, 6
    s_add_u32 s{A}, s{A}, {L_KEYS}
    v_lshl_add_u32 v{aKY}, v{t}, 2, s{A}
    v_and_b32 v{t}, 48, v0
    v_lshlrev_b32 v{t}, 2, v{t}
    v_add_u32 v{t+8}, {L_KEYS}, v{t}
    s_mov_b32 s{C}, {SPIN}
    s_branch {md}
    {lp}:
    {ld}
    {md}:
    s_waitcnt vmcnt(0)
    v_max3_u32 v{t}, v{G}, v{G+1}, v{G+2}
    v_max3_u32 v{t+1}, v{G+3}, v{G+4}, v{G+5}
    v_max3_u32 v{t}, v{G+6}, v{G+7}, v{t}
    v_max_u32 v{t}, v{t}, v{t+1}
    v_cmp_eq_u32 vcc, -1, v{t}
    v_pk_add_f32 {vr(t+2,2)}, {vr(G,2)}, {vr(G+2,2)}
    s_cbranch_vccz {ok}""")
    spin(C,lp,ok)
    p(f"""s_branch {lp}
    {ok}:""")
    STAMP('psr')
    M=t+4
    p(f"""v_pk_add_f32 {vr(t+4,2)}, {vr(G+4,2)}, {vr(G+6,2)}
    v_pk_add_f32 {vr(t+2,2)}, {vr(t+2,2)}, {vr(t+4,2)}
    v_add_f32 v{t+2}, v{t+2}, v{t+3}
    s_nop 1
    v_mfma_f32_16x16x4_f32 {vr(M,4)}, v{SELF}, v{t+2}, 0
    s_nop 9
    v_mul_f32 v{M}, {1/640!r}, v{M}
    v_mul_f32 v{M+2}, {1/640!r}, v{M+2}
    v_fma_f32 v{M+2}, -v{M}, v{M}, v{M+2}
    v_max_f32 v{M+2}, 0, v{M+2}""")
    bf16r(M+2,M+2)
    p(f"v_add_f32 v{M+2}, 0x3727c5ac, v{M+2}")
    bf16r(M+2,M+2)
    p(f"v_sqrt_f32 v{M+2}, v{M+2}")
    bf16r(M,M)
    bf16r(M+2,M+2)
    RS=t+2
    p(f"""v_rcp_f32 v{RS}, v{M+2}
    v_fma_f32 v{M+1}, -v{M}, v{M+3}, v{M+1}
    v_mul_f32 v{M+1}, v{M+1}, v{RS}
    v_cvt_pk_bf16_f32 v{M+1}, v{M+1}, v{M+1}
    v_mul_f32 v{RS+1}, -v{M}, v{RS}
    v_ashrrev_i32 v{M+2}, 31, v{M+1}
    v_or_b32 v{M+2}, 0x80000000, v{M+2}
    v_xor_b32 v{M+1}, v{M+1}, v{M+2}
    v_and_b32 v{M+1}, 0xffff0000, v{M+1}
    v_or_b32 v{KEY}, v{M+1}, v{t+9}
    ds_write_b32 v{aKY}, v{KEY}""")
    for k in range(10): p(f"v_pk_fma_f32 {vr(WACC+2*k,2)}, {vr(HF_+2*k,2)}, {vr(RS,2)}, {vr(RS,2)} op_sel:[0,0,1] op_sel_hi:[1,0,1]")
    K16=AF
    lp=p.lab("ky"); ok=p.lab("kyok")
    p(f"s_mov_b32 s{C}, {SPIN*4}\n{lp}:")
    for i in range(4): p(f"ds_read_b128 {vr(K16+4*i,4)}, v{t+8} offset:{16*i}")
    p("s_waitcnt lgkmcnt(0)")
    p(f"v_max3_u32 v{t}, v{K16}, v{K16+1}, v{K16+2}")
    for i in range(3,15,2): p(f"v_max3_u32 v{t}, v{K16+i}, v{K16+i+1}, v{t}")
    p(f"""v_max_u32 v{t}, v{t}, v{K16+15}
    v_cmp_eq_u32 vcc, -1, v{t}
    v_mov_b32 v{t}, 0
    s_cbranch_vccz {ok}""")
    spin(C,lp,ok)
    p(f"s_branch {lp}\n{ok}:")
    STAMP('keys')
    m0_=sT+18
    for i in range(18):
        if i<16: p(f"v_cmp_gt_u32 s[{m0_+2*(i%2)}:{m0_+2*(i%2)+1}], v{K16+i}, v{KEY}") if False else None
    MK=[sT+14,sT+16,sT+18]
    for i in range(18):
        if i<16: m=MK[i%3]; p(f"v_cmp_gt_u32 s[{m}:{m+1}], v{K16+i}, v{KEY}")
        elif i==16: p("s_nop 0")
        if i>=2: m=MK[(i-2)%3]; p(f"v_addc_co_u32 v{t}, vcc, 0, v{t}, s[{m}:{m+1}]")
    p(f"""v_mov_b32 v{t+1}, v{t}
    v_cvt_pk_bf16_f32 v{LP}, v{WACC}, v{WACC+1}
    v_cvt_pk_bf16_f32 v{LP+1}, v{WACC+2}, v{WACC+3}
    v_permlane32_swap_b32 v{t}, v{t+1}
    v_cvt_pk_bf16_f32 v{LP+2}, v{WACC+4}, v{WACC+5}
    v_add_u32 v{t}, v{t}, v{t+1}
    v_mov_b32 v{t+1}, v{t}
    v_cvt_pk_bf16_f32 v{LP+3}, v{WACC+6}, v{WACC+7}
    v_cvt_pk_bf16_f32 v{LP+4}, v{WACC+8}, v{WACC+9}
    v_permlane16_swap_b32 v{t}, v{t+1}
    v_cvt_pk_bf16_f32 v{LP+5}, v{WACC+10}, v{WACC+11}
    v_add_u32 v{t}, v{t}, v{t+1}
    v_cmp_gt_u32 s[{sCAND}:{sCAND+1}], 8, v{t}
    v_or_b32 v{KEY}, v{KEY}, v{t}
    v_lshlrev_b32 v{t+1}, 2, v{t}
    s_lshl_b32 s{A}, s{sBLK}, 7
    s_add_u32 s{A}, s{A}, {CA}
    s_cmp_eq_u32 s{sJ}, 0
    s_cselect_b32 s{B}, 0xffff, 0
    s_and_b32 exec_lo, s{sCAND}, s{B}
    s_mov_b32 exec_hi, 0
    s_cbranch_scc0 L_noca
    buffer_store_dword v{KEY}, v{t+1}, {S4(sWS)}, s{A} offen sc1
    L_noca:
    s_mov_b64 exec, -1""")
    STAMP('ca')
    for k in range(6,10): p(f"v_cvt_pk_bf16_f32 v{LP+k}, v{WACC+2*k}, v{WACC+2*k+1}")
    p(f"""v_lshrrev_b32 v{t+1}, 4, v0
    v_mul_u32_u24 v{t+1}, 40, v{t+1}
    v_mul_u32_u24 v{t}, 2560, v{t}
    v_add_u32 v{aCD}, v{t}, v{t+1}
    s_mul_i32 s{A}, s{sBLK}, 20480
    s_mul_i32 s{B}, s{sJ}, 160
    s_add_u32 s{A}, s{A}, s{B}
    s_add_u32 s{A}, s{A}, {CAND}
    s_and_b64 exec, s[{sCAND}:{sCAND+1}], -1
    s_cbranch_scc0 L_nocd""")
    for base,off in ((LP,0),(HP,1280)):
        for o,n in ((0,4),(4,4),(8,2)): p(f"buffer_store_dwordx{n} {vr(base+o,n)}, v{aCD}, {S4(sWS)}, s{A} offen offset:{off+4*o} sc1")
    p("L_nocd:\ns_mov_b64 exec, -1")
    for k in range(10): p(f"v_pk_add_f32 {vr(WACC+2*k,2)}, {vr(WACC+2*k,2)}, {vr(HF_+2*k,2)}")
    for k in range(10): p(f"v_cvt_pk_bf16_f32 v{OP+k}, v{WACC+2*k}, v{WACC+2*k+1}")
    p(f"s_andn2_b64 exec, -1, s[{sCAND}:{sCAND+1}]\ns_cbranch_scc0 L_noo1")
    out_store()
    p("L_noo1:\ns_mov_b64 exec, -1")
    STAMP('o1')
KEY=225; sCAND=sT+20
def out_store():
    for o,n in ((0,4),(4,4),(8,2)): p(f"buffer_store_dwordx{n} {vr(OP+o,n)}, v{aX2}, {S4(sOUT)}, s{sXO} offen offset:{4*o} {CFG['opol']}")

def moe_weights():
    A=sT+7; B=sT+8; vt=2; D=40; aW_=12
    gu=p.lab("mwgu"); wr=p.lab("mwwr"); en=p.lab("mwend")
    p(f"""s_cmp_ge_u32 s{sSLOT}, 17
    s_cbranch_scc1 {en}
    v_bfe_u32 v{vt}, v0, 3, 2
    v_lshrrev_b32 v{vt+1}, 5, v0
    v_lshlrev_b32 v{vt}, 1, v{vt}
    v_add_lshl_u32 v{vt}, v{vt}, v{vt+1}, 2
    v_bfe_u32 v{vt+1}, v0, 1, 2
    v_add_u32 v{vt}, v{vt}, v{vt+1}
    v_and_b32 v{vt+1}, 1, v0
    v_lshlrev_b32 v{vt+1}, 4, v{vt+1}
    v_mov_b32 v{vt+4}, {F_DONE}
    s_cmp_lt_u32 s{sSLOT}, 12
    s_cbranch_scc1 {gu}
    v_mul_u32_u24 v{vt}, 1280, v{vt}
    v_add_u32 v{aW_}, v{vt}, v{vt+1}
    s_mul_i32 s{A}, s{sG}, 5
    s_add_u32 s{A}, s{A}, s{sSLOT}
    s_sub_u32 s{A}, s{A}, 12
    s_lshl_b32 s{A}, s{A}, 5
    s_mul_i32 s{B}, s{HW}, {12*32*1280}
    s_add_u32 s{A}, s{A}, s{B}""")
    for s_ in range(12):
        p(f"buffer_load_dwordx4 {vr(D+4*s_,4)}, v{aW_}, {S4(sWD)}, s{A} offen")
        if s_<11: p(f"s_add_u32 s{A}, s{A}, {32*1280}")
    p(f"""s_mul_i32 s{B}, s{HW}, 12288
    s_branch {wr}
    {gu}:
    v_mul_u32_u24 v{vt}, 3072, v{vt}
    v_add_u32 v{aW_}, v{vt}, v{vt+1}
    s_mul_i32 s{A}, s{sG}, 12
    s_add_u32 s{A}, s{A}, s{sSLOT}
    s_lshl_b32 s{A}, s{A}, 5
    s_mul_i32 s{B}, s{HW}, {5*32*3072}
    s_add_u32 s{A}, s{A}, s{B}""")
    for s_ in range(5):
        p(f"buffer_load_dwordx4 {vr(D+8*s_,4)}, v{aW_}, {S4(sWG)}, s{A} offen\nbuffer_load_dwordx4 {vr(D+8*s_+4,4)}, v{aW_}, {S4(sWU)}, s{A} offen")
        if s_<4: p(f"s_add_u32 s{A}, s{A}, {32*3072}")
    p(f"s_mul_i32 s{B}, s{HW}, 12288\n{wr}:\nv_lshl_add_u32 v{vt}, v0, 4, s{B}")
    lds_wait(vt+4,vt+5,A,'gt',4,4)
    p("s_waitcnt vmcnt(0)")
    for s_ in range(12): p(f"ds_write_b128 v{vt}, {vr(D+4*s_,4)} offset:{L_MW+s_*1024}")
    p(f"""s_lshl_b32 s{A}, s{HW}, 2
    s_add_u32 s{A}, s{A}, {F_MW}
    v_mov_b32 v{vt}, s{A}
    ds_write_b32 v{vt}, v{vt}
    s_waitcnt lgkmcnt(0)""")
    STAMP('mw')
    p(f"{en}:")
def top8(R,K2,K1,y,tt):
    def clean(chs):
        seq=[]
        for (x,y_,t_) in chs:
            seq.append([f"v_max_u32_dpp v{y_}, v{x}, v{x} row_shl:4 row_mask:0xf bank_mask:0x5",
                        f"v_min_u32_dpp v{y_}, v{x}, v{x} row_shr:4 row_mask:0xf bank_mask:0xa",
                        None,
                        f"v_mov_b32_dpp v{t_}, v{y_} quad_perm:[2,3,0,1] row_mask:0xf bank_mask:0xf",
                        f"v_med3_u32 v{y_}, v{y_}, v{t_}, v{K2}",
                        None,
                        f"v_mov_b32_dpp v{t_}, v{y_} quad_perm:[1,0,3,2] row_mask:0xf bank_mask:0xf",
                        f"v_med3_u32 v{x}, v{y_}, v{t_}, v{K1}"])
        n=len(chs)
        p(f"s_nop {2-n}")
        for i in range(8):
            if seq[0][i] is None: p(f"s_nop {2-n}")
            else:
                for c in seq: p(c[i])
                if i==0 and n==1: p("s_nop 1")
                elif i==0: p("s_nop 0")
    dp="row_mask:0xf bank_mask:0xf"
    p(f"v_max_u32_dpp v{R}, v{R+1}, v{R} row_half_mirror {dp}\nv_max_u32_dpp v{R+2}, v{R+3}, v{R+2} row_half_mirror {dp}")
    clean([(R,y,tt),(R+2,y+1,tt+1)])
    p(f"s_nop 1\nv_max_u32_dpp v{R}, v{R+2}, v{R} row_half_mirror {dp}")
    clean([(R,y,tt)])
    p(f"s_nop 1\nv_max_u32_dpp v{R}, v{R}, v{R} row_mirror {dp}")
    clean([(R,y,tt)])
    for msk,sw in ((0xa,16),(0xc,32)):
        p(f"""s_nop 1
        v_mov_b32_dpp v{R}, v{R} row_half_mirror row_mask:{hex(msk)} bank_mask:0xf
        v_mov_b32 v{tt}, v{R}
        s_nop 1
        v_permlane{sw}_swap_b32 v{R}, v{tt}
        s_nop 0
        v_max_u32 v{R}, v{R}, v{tt}""")
        clean([(R,y,tt)])
def moe():
    t=vT; A=sT+7; B=sT+8; C=sT+17; sTHR=sT+14
    R=12; K2=16; K1=17; aC=18; AW=108; BB=28-0;
    BL=160
    p(f"""s_cmp_ge_u32 s{sSLOT}, 17
    s_cbranch_scc1 L_plain
    v_lshrrev_b32 v{t}, 3, v0
    v_and_b32 v{t+1}, 7, v0
    v_lshlrev_b32 v{t+1}, 2, v{t+1}
    v_lshl_add_u32 v{aC}, v{t}, 7, v{t+1}
    s_mov_b32 s{B}, {CA}""")
    ld="\n".join(f"buffer_load_dword v{R+i}, v{aC}, {S4(sWS)}, s{B} offen offset:{i*1024} sc1" for i in range(4))
    p(ld)
    p(f"""v_bfe_i32 v{K2}, v0, 1, 1
    v_bfe_i32 v{K1}, v0, 0, 1
    v_not_b32 v{K2}, v{K2}
    v_not_b32 v{K1}, v{K1}
    s_lshl_b32 s{A}, s{sWAVE}, 2
    s_add_u32 s{A}, s{A}, {F_MW}
    v_mov_b32 v{t}, s{A}
    s_mul_i32 s{A}, s{sWAVE}, 12288
    v_lshl_add_u32 v{t+2}, v0, 3, s{A}""")
    lds_wait(t,t+1,C,'eq',0,0)
    STAMP('mwr')
    for s_ in range(12):
        for rd in range(2): p(f"ds_read_b64_tr_b16 {vr(AW+4*s_+2*rd,2)}, v{t+2} offset:{L_MW+s_*1024+rd*512}")
    lp=p.lab("ca"); ok=p.lab("caok"); md=p.lab("cam")
    p(f"""s_mov_b32 s{C}, {SPIN}
    s_branch {md}
    {lp}:
    {ld}
    {md}:
    s_waitcnt vmcnt(0)
    v_max3_u32 v{t}, v{R}, v{R+1}, v{R+2}
    v_max_u32 v{t}, v{t}, v{R+3}
    v_cmp_eq_u32 vcc, -1, v{t}
    s_nop 0
    s_cbranch_vccz {ok}""")
    spin(C,lp,ok)
    p(f"s_branch {lp}\n{ok}:")
    STAMP('car')
    top8(R,K2,K1,t,t+2)
    STAMP('top')
    TOK=t+1; aR=t+2
    p(f"""v_bfe_u32 v{TOK}, v{R}, 3, 11
    v_sub_u32 v{TOK}, 2047, v{TOK}
    v_lshrrev_b32 v{t}, 6, v{TOK}
    v_and_b32 v{aR}, 7, v{R}
    v_lshl_add_u32 v{aR}, v{t}, 3, v{aR}
    v_mul_u32_u24 v{aR}, 2560, v{aR}
    v_lshrrev_b32 v{t}, 4, v0
    v_readlane_b32 s{sTHR}, v{R}, 7
    s_cmp_ge_u32 s{sSLOT}, 12
    s_cbranch_scc1 L_down""")
    def deferred(tag):
        p(f"""v_cmp_gt_u32 vcc, s{sTHR}, v{KEY}
        s_nop 0
        s_and_b64 exec, vcc, s[{sCAND}:{sCAND+1}]
        s_cbranch_scc0 L_nd{tag}""")
        out_store()
        p(f"L_nd{tag}:\ns_mov_b64 exec, -1")
    p(f"""v_lshl_add_u32 v{aR}, v{t}, 4, v{aR}
    s_mul_i32 s{A}, s{sWAVE}, 320
    s_add_u32 s{A}, s{A}, {CAND}""")
    ld="\n".join(f"buffer_load_dwordx4 {vr(BL+4*i,4)}, v{aR}, {S4(sWS)}, s{A} offen offset:{i*64} sc1" for i in range(5))
    lp=p.lab("gl"); ok=p.lab("glok"); md=p.lab("glm"); nt=p.lab("noth")
    p(ld)
    p(f"""s_or_b32 s{B}, s{sSLOT}, s{sWAVE}
    s_cbranch_scc1 {nt}
    v_mov_b32 v{t+4}, s{sTHR}
    v_mov_b32 v{t+5}, s{sTAG}
    s_lshl_b32 s{B}, s{sG}, 7
    s_add_u32 s{B}, s{B}, {TH}
    v_mov_b32 v{t+6}, 0
    s_mov_b64 exec, 1
    buffer_store_dwordx2 v[{t+4}:{t+5}], v{t+6}, {S4(sWS)}, s{B} offen sc1
    s_mov_b64 exec, -1
    {nt}:
    s_lshl_b32 s{B}, s{sWAVE}, 11
    s_add_u32 s{B}, s{B}, {L_RED}
    v_lshl_add_u32 v{t+3}, v0, 4, s{B}
    s_mov_b32 s{C}, {SPIN}
    s_branch {md}
    {lp}:
    {ld}
    {md}:
    s_waitcnt vmcnt(0) lgkmcnt(0)
    v_max3_u32 v{t+4}, v{BL}, v{BL+2}, v{BL+4}
    v_max3_u32 v{t+5}, v{BL+6}, v{BL+8}, v{BL+10}
    v_max3_u32 v{t+4}, v{BL+12}, v{BL+14}, v{t+4}
    v_max3_u32 v{t+5}, v{BL+16}, v{BL+18}, v{t+5}
    v_max_u32 v{t+4}, v{t+4}, v{t+5}
    v_cmp_eq_u32 vcc, -1, v{t+4}
    s_nop 0
    s_cbranch_vccz {ok}""")
    spin(C,lp,ok)
    p(f"s_branch {lp}\n{ok}:")
    STAMP('lr')
    G=20; U=24; X=28
    for s_ in range(5):
        for m_,a_ in ((0,G),(1,U)):
            p(f"v_mfma_f32_16x16x32_bf16 {vr(a_,4)}, {vr(AW+8*s_+4*m_,4)}, {vr(BL+4*s_,4)}, {vr(a_,4) if s_ else 0}")
    w0=p.lab("guw0")
    p(f"""s_cmp_eq_u32 s{sWAVE}, 0
    s_cbranch_scc1 {w0}
    s_nop 5
    ds_write_b128 v{t+3}, {vr(G,4)}
    ds_write_b128 v{t+3}, {vr(U,4)} offset:1024
    s_waitcnt lgkmcnt(0)
    s_barrier""")
    deferred('g1')
    END()
    p(f"""{w0}:
    s_mul_i32 s{A}, s{sG}, 12
    s_add_u32 s{A}, s{A}, s{sSLOT}
    s_lshl_b32 s{A}, s{A}, 8
    s_add_u32 s{A}, s{A}, {ACT}
    v_and_b32 v{t+4}, 7, v0
    v_lshlrev_b32 v{t+4}, 4, v{t+4}
    v_lshrrev_b32 v{t+5}, 5, v0
    v_lshl_add_u32 v{t+4}, v{t+5}, 7, v{t+4}
    v_bfe_u32 v{t+5}, v0, 4, 1
    v_lshl_add_u32 v{t+4}, v{t+5}, 3, v{t+4}
    s_barrier""")
    for w_ in range(1,4):
        for m_ in range(2): p(f"ds_read_b128 {vr(X+8*(w_-1)+4*m_,4)}, v{t+3} offset:{w_*2048+m_*1024}")
    p(f"s_mov_b32 s{B}, {hex(f2u(-math.log2(math.e)))}")
    for w_ in range(3):
        p(f"s_waitcnt lgkmcnt({4-2*w_})")
        for k in range(4): p(f"v_pk_add_f32 {vr(G+2*k,2)}, {vr(G+2*k,2)}, {vr(X+8*w_+2*k,2)}")
    p(f"""v_cvt_pk_bf16_f32 v{X}, v{G}, v{G+1}
    v_cvt_pk_bf16_f32 v{X+1}, v{G+2}, v{G+3}
    v_cvt_pk_bf16_f32 v{X+2}, v{U}, v{U+1}
    v_cvt_pk_bf16_f32 v{X+3}, v{U+2}, v{U+3}""")
    for k in range(4): p(f"v_lshlrev_b32 v{G+2*k}, 16, v{X+k}\nv_and_b32 v{G+2*k+1}, 0xffff0000, v{X+k}")
    for k in range(4): p(f"v_mul_f32 v{X+k}, s{B}, v{G+k}")
    for k in range(4): p(f"v_exp_f32 v{X+k}, v{X+k}")
    for k in range(4): p(f"v_add_f32 v{X+k}, 1.0, v{X+k}")
    for k in range(4): p(f"v_rcp_f32 v{X+k}, v{X+k}")
    for k in range(4): p(f"v_mul_f32 v{G+k}, v{G+k}, v{X+k}")
    p(f"v_cvt_pk_bf16_f32 v{X}, v{G}, v{G+1}\nv_cvt_pk_bf16_f32 v{X+1}, v{G+2}, v{G+3}")
    for k in range(2): p(f"v_lshlrev_b32 v{G+2*k}, 16, v{X+k}\nv_and_b32 v{G+2*k+1}, 0xffff0000, v{X+k}")
    p(f"""v_pk_mul_f32 {vr(G,2)}, {vr(G,2)}, {vr(U,2)}
    v_pk_mul_f32 {vr(G+2,2)}, {vr(G+2,2)}, {vr(U+2,2)}
    v_cvt_pk_bf16_f32 v{X}, v{G}, v{G+1}
    v_cvt_pk_bf16_f32 v{X+1}, v{G+2}, v{G+3}
    s_mov_b32 exec_lo, 0x00ff00ff
    s_mov_b32 exec_hi, 0x00ff00ff
    buffer_store_dwordx2 {vr(X,2)}, v{t+4}, {S4(sWS)}, s{A} offen sc1
    s_mov_b64 exec, -1""")
    STAMP('act')
    deferred('g0')
    END()
    HL=20; Y=24; X=28; SG=t+8; aO2=t+9
    p(f"""L_down:
    v_lshl_add_u32 v{aR}, v{t}, 3, v{aR}
    v_mul_u32_u24 v{aO2}, 1280, v{TOK}
    v_lshl_add_u32 v{aO2}, v{t}, 3, v{aO2}
    v_and_b32 v{t+4}, 7, v0
    v_lshlrev_b32 v{t+4}, 4, v{t+4}
    v_lshl_add_u32 v{t+4}, v{t}, 7, v{t+4}
    s_mul_i32 s{sT+1}, s{sG}, 5
    s_add_u32 s{sT+1}, s{sT+1}, s{sSLOT}
    s_sub_u32 s{sT+1}, s{sT+1}, 12
    s_lshl_b32 s{sT+1}, s{sT+1}, 5
    s_add_u32 s{sT+2}, s{sT+1}, {CAND}
    s_mul_i32 s{A}, s{sWAVE}, 6144
    s_add_u32 s{A}, s{A}, {ACT}
    s_add_u32 s{B}, s{A}, 4096""")
    deferred('d')
    p(f"""v_ashrrev_i32 v{SG}, 31, v{R}
    v_not_b32 v{SG}, v{SG}
    v_or_b32 v{SG}, 0x80000000, v{SG}
    v_xor_b32 v{SG}, v{SG}, v{R}
    v_and_b32 v{SG}, 0xffff0000, v{SG}
    v_mul_f32 v{SG}, {hex(f2u(-math.log2(math.e)))}, v{SG}
    v_exp_f32 v{SG}, v{SG}
    s_lshl_b32 s{C}, s{sWAVE}, 10
    v_add_f32 v{SG}, 1.0, v{SG}
    v_rcp_f32 v{SG}, v{SG}
    s_add_u32 s{C}, s{C}, {L_RED}
    v_lshl_add_u32 v{t+3}, v0, 4, s{C}""")
    bf16r(SG,SG)
    ld="\n".join([f"buffer_load_dwordx4 {vr(BL+4*i,4)}, v{t+4}, {S4(sWS)}, s{A if i<8 else B} offen offset:{(i%8)*512} sc1" for i in range(12)]+
        [f"buffer_load_dwordx2 {vr(HL,2)}, v{aR}, {S4(sWS)}, s{sT+2} offen sc1", f"buffer_load_dwordx2 {vr(HL+2,2)}, v{aR}, {S4(sWS)}, s{sT+2} offen offset:1280 sc1"])
    lp=p.lab("al"); ok=p.lab("alok")
    p(f"""s_mov_b32 s{C}, {SPIN}
    {lp}:
    {ld}
    s_waitcnt vmcnt(0) lgkmcnt(0)
    v_max_u32 v{t+5}, v{HL}, v{HL+2}""")
    for i in range(12): p(f"v_max3_u32 v{t+5}, v{BL+4*i}, v{BL+4*i+2}, v{t+5}")
    p(f"""v_cmp_eq_u32 vcc, -1, v{t+5}
    s_nop 0
    s_cbranch_vccz {ok}""")
    spin(C,lp,ok)
    p(f"s_branch {lp}\n{ok}:")
    STAMP('ar')
    for s_ in range(12): p(f"v_mfma_f32_16x16x32_bf16 {vr(Y,4)}, {vr(AW+4*s_,4)}, {vr(BL+4*s_,4)}, {vr(Y,4) if s_ else 0}")
    w0=p.lab("dnw0")
    p(f"""s_cmp_eq_u32 s{sWAVE}, 0
    s_cbranch_scc1 {w0}
    s_nop 5
    ds_write_b128 v{t+3}, {vr(Y,4)}
    s_waitcnt lgkmcnt(0)
    s_barrier""")
    END()
    p(f"""{w0}:
    v_lshlrev_b32 v{X+12}, 16, v{HL}
    v_and_b32 v{X+13}, 0xffff0000, v{HL}
    v_lshlrev_b32 v{X+14}, 16, v{HL+1}
    v_and_b32 v{X+15}, 0xffff0000, v{HL+1}
    v_lshlrev_b32 v{X+16}, 16, v{HL+2}
    v_and_b32 v{X+17}, 0xffff0000, v{HL+2}
    v_lshlrev_b32 v{X+18}, 16, v{HL+3}
    v_and_b32 v{X+19}, 0xffff0000, v{HL+3}
    s_barrier""")
    for w_ in range(1,4): p(f"ds_read_b128 {vr(X+4*(w_-1),4)}, v{t+3} offset:{w_*1024}")
    for w_ in range(3):
        p(f"s_waitcnt lgkmcnt({2-w_})")
        for k in range(2): p(f"v_pk_add_f32 {vr(Y+2*k,2)}, {vr(Y+2*k,2)}, {vr(X+4*w_+2*k,2)}")
    def rnd():
        p(f"v_cvt_pk_bf16_f32 v{X}, v{Y}, v{Y+1}\nv_cvt_pk_bf16_f32 v{X+1}, v{Y+2}, v{Y+3}")
    def unp():
        for k in range(2): p(f"v_lshlrev_b32 v{Y+2*k}, 16, v{X+k}\nv_and_b32 v{Y+2*k+1}, 0xffff0000, v{X+k}")
    rnd(); unp()
    for k in range(4): p(f"v_mul_f32 v{Y+k}, v{SG}, v{Y+k}")
    rnd(); unp()
    for k in range(2): p(f"v_pk_add_f32 {vr(Y+2*k,2)}, {vr(Y+2*k,2)}, {vr(X+12+2*k,2)}")
    rnd(); unp()
    for k in range(2): p(f"v_pk_add_f32 {vr(Y+2*k,2)}, {vr(Y+2*k,2)}, {vr(X+16+2*k,2)}")
    rnd()
    p(f"""s_mov_b32 exec_lo, 0x00ff00ff
    s_mov_b32 exec_hi, 0x00ff00ff
    buffer_store_dwordx2 {vr(X,2)}, v{aO2}, {S4(sOUT)}, s{sT+1} offen sc1""")
    STAMP('fin')
    END()
    lp=p.lab("th"); ok=p.lab("thok")
    p(f"""L_plain:
    s_lshl_b32 s{B}, s{sG}, 7
    s_add_u32 s{B}, s{B}, {TH}
    v_mov_b32 v{t}, 0
    s_mov_b32 s{C}, {SPIN}
    {lp}:
    s_sleep 16
    buffer_load_dwordx2 v[{t+2}:{t+3}], v{t}, {S4(sWS)}, s{B} offen sc1
    s_waitcnt vmcnt(0)
    v_cmp_ne_u32 vcc, s{sTAG}, v{t+3}
    s_nop 0
    s_cbranch_vccz {ok}""")
    spin(C,lp,ok)
    p(f"""s_branch {lp}
    {ok}:
    v_readfirstlane_b32 s{sTHR}, v{t+2}
    s_nop 1""")
    deferred('p')
    STAMP('fin')

def build():
    prologue()
    gemm_setup()
    p("s_waitcnt lgkmcnt(0)")
    mktag()
    p(f"""    s_cmp_eq_u32 s{sLC}, 15
    s_cbranch_scc1 L_gS
    s_cmp_eq_u32 s{sTY}, 2
    s_cbranch_scc1 L_gV""")
    gemm_loop('T'); gemm_epi('T'); p("s_branch L_att")
    p("L_gS:"); gemm_loop('S'); stats_epi(); p("s_branch L_att")
    p("L_gV:"); gemm_loop('V'); gemm_epi('V')
    p("L_att:")
    p(f"v_mov_b32 v{aCLS}, 0x207")
    att_pro()
    for w in range(4): att_variant(w)
    att_fin()
    wo_main()
    if CFG['stop']<=3:
        p(f"s_and_b64 exec, s[{sCAND}:{sCAND+1}], -1\ns_cbranch_scc0 L_noo2"); out_store(); p("L_noo2:")
    else: moe()
    END()
    att_cold()
    for c in COLD: p(c)
    loader()
    helperA()
    p("s_branch L_mw")
    helperB()
    p("L_mw:")
    moe_weights()
    END()
    p("L_exit:\ns_endpgm")
build()
errs=check(p.L)
hdr=f"""; generated by work/k/gen.py (own generator script)
; @launch grid=(256,1,1) block=(512,1,1) lds=163840
.amdgcn_target "amdgcn-amd-amdhsa--gfx950"
.text
.globl {NAME}_kernel
.p2align 8
.type {NAME}_kernel,@function
{NAME}_kernel:
"""
ftr=f""".section .rodata,"a"
.p2align 6
.amdhsa_kernel {NAME}_kernel
  .amdhsa_next_free_vgpr 256
  .amdhsa_next_free_sgpr 102
  .amdhsa_accum_offset 256
  .amdhsa_group_segment_fixed_size 0
  .amdhsa_kernarg_size 88
  .amdhsa_user_sgpr_count 2
  .amdhsa_user_sgpr_kernarg_segment_ptr 1
  .amdhsa_system_sgpr_workgroup_id_x 1
.end_amdhsa_kernel
"""
open(sys.argv[1],"w").write(hdr+p.text()+ftr)

import subprocess
r=subprocess.run(["clang","-x","assembler","-target","amdgcn-amd-amdhsa","-mcpu=gfx950",sys.argv[1],"-o",sys.argv[1]+".co"],capture_output=True,text=True)
if r.returncode: print(r.stderr[:3000]); sys.exit(1)
r=subprocess.run(["python3","cdna_unwritten_srd_check.py",sys.argv[1]+".co"],capture_output=True,text=True)
if r.returncode: print("SRDCHECK:",r.stdout[-3000:],r.stderr[-1000:])
r=subprocess.run("llvm-size -A "+sys.argv[1]+".co | grep text",shell=True,capture_output=True,text=True); print(r.stdout.strip())
if errs: sys.exit(1)
```

```python
import sys, math
from asmlib import *
NAME="sequential_preLN__sliding_block__moe_arch_mod__prompt"
CFG=dict(cal=None, opol='', st=['start','b0|hb0','gend|hb9','E1|hE1','st|halo|clr','fl|g2|wo','fseen|h2','kv','aend','ost'], pt=6, wothr=10, wogate=1, h2sl=1, noh2=0, nowo=0, wos=(0,0,0), sched=(1,1,2,1,1,1,1,0,0,0), dbg=0, stop=99, prof=0, rot=(1,3), force_slow=0, noclr=0, pre=2, ldst=0, nomfma=0, nohello=0)
for a in sys.argv[2:]:
    k,v=a.split("="); CFG[k]=eval(v)
QB,KB,VB,KH,VH,OB=[i*0x280000 for i in range(6)]
CAND=0xF00000
PS=0xFA0000
CA=0xFE0000
ACT=0xFE1000
HB=0x1000000
PROF=0x1300000
H1=0x1280000; H2=0x1281000; EPO=0x1282000; TH=0x1283000
ST1=0x1290000; FL=0x12A0000; FH=0x12A4000
L_STG=0; L_KV=10240; L_WO=55296; L_MISC=157696; L_MW=0
L_CS=L_MISC
L_SA=L_MISC+512
L_SR=L_SA+1024
L_MODE=L_SR+512
L_FLG=L_MODE+64
F_G1,F_G2,F_H2,F_STG,F_SCP,F_DONE,F_WOR,F_MW=[L_FLG+4*i for i in (0,1,2,4,8,9,10,12)]
L_KEYS=L_FLG+128
L_RED=L_WO
sX,sW,sWO,sWG,sWU,sWD,sOUT,sWS,sDBG,sWR=[4+4*i for i in range(10)]
sWAVE,sG,sSLOT,sRQ,sHH,sRB,sCT,sMODE,sEP,sTAG=range(44,54)
sT=54
sLO=76
sPROF=80
p=P()
nstamp=[0,0]
CALI=lambda: 's_memtime' if CFG['cal'][1]>20000 else 's_memrealtime'
def STAMP(name,w=0):
    if CFG['cal'] and name in CFG['cal'][0].split('|'):
        p(f"{CALI()} s[{sPROF}:{sPROF+1}]")
        if w: p("s_waitcnt lgkmcnt(0)")
    i=[k for k,n in enumerate(CFG['st']) if name in n.split('|')]
    if CFG['prof'] and i:
        i=i[0]
        p(f"s_memtime s[{sPROF+2*i}:{sPROF+2*i+1}]")
        if w: p("s_waitcnt lgkmcnt(0)")
def PROFDUMP():
    if not CFG['prof']: return
    p("s_waitcnt vmcnt(0) lgkmcnt(0)")
    p("s_mov_b64 exec, -1")
    for i in range(10): p(f"v_mov_b32 v{2+i}, s{sPROF+2*i}")
    p(f"""s_lshl_b32 s{sT}, s2, 3
    s_add_u32 s{sT}, s{sT}, s{sWAVE}
    s_lshl_b32 s{sT}, s{sT}, 6
    s_add_u32 s{sT}, s{sT}, {PROF}
    v_mov_b32 v1, 0
    s_mov_b64 exec, 1
    buffer_store_dwordx4 v[2:5], v1, s[{sWS}:{sWS+3}], s{sT} offen
    buffer_store_dwordx4 v[6:9], v1, s[{sWS}:{sWS+3}], s{sT} offen offset:16
    buffer_store_dwordx2 v[10:11], v1, s[{sWS}:{sWS+3}], s{sT} offen offset:32""")
def END():
    PROFDUMP()
    if CFG['cal']:
        lp=p.lab("cal"); ok=p.lab("calok")
        p(f"""s_waitcnt vmcnt(0) lgkmcnt(0)
        s_cmp_eq_u32 s{sPROF}, 0
        s_cbranch_scc1 {ok}
        s_cmp_ge_u32 s{sWAVE}, 4
        s_cbranch_scc1 {ok}
        s_mov_b32 s{sPROF+4}, 100000
        {lp}:
        s_sleep 2
        {CALI()} s[{sPROF+2}:{sPROF+3}]
        s_sub_u32 s{sPROF+4}, s{sPROF+4}, 1
        s_cbranch_scc1 {ok}
        s_waitcnt lgkmcnt(0)
        s_sub_u32 s{sPROF+2}, s{sPROF+2}, s{sPROF}
        s_cmp_lt_u32 s{sPROF+2}, {CFG['cal'][1]}
        s_cbranch_scc1 {lp}
        {ok}:""")
    p("s_endpgm")
S4=lambda r:f"s[{r}:{r+3}]"
SPIN=1<<18

def prologue():
    p(f"""s_cmp_ge_u32 s2, 256
    s_cbranch_scc1 L_exit
    s_load_dwordx2 s[{sX}:{sX+1}], s[0:1], 0
    s_load_dwordx2 s[{sW}:{sW+1}], s[0:1], 8
    s_load_dwordx2 s[{sWS}:{sWS+1}], s[0:1], 80
    s_load_dwordx2 s[{sWO}:{sWO+1}], s[0:1], 16
    s_load_dwordx2 s[{sWR}:{sWR+1}], s[0:1], 32
    s_load_dwordx2 s[{sWG}:{sWG+1}], s[0:1], 40
    s_load_dwordx2 s[{sWU}:{sWU+1}], s[0:1], 48""")
    p(f"""v_lshrrev_b32 v1, 6, v0
    v_and_b32 v0, 63, v0
    v_readfirstlane_b32 s{sWAVE}, v1
    s_and_b32 s{sG}, s2, 7
    s_lshr_b32 s{sSLOT}, s2, 3
    s_lshr_b32 s{sRQ}, s{sG}, 1
    s_and_b32 s{sHH}, s{sG}, 1
    s_and_b32 s{sRB}, s{sSLOT}, 3
    s_lshr_b32 s{sCT}, s{sSLOT}, 2""")
    for r,n in ((sX,2621440),(sW,2457600),(sWS,268435456),(sWO,819200),(sWR,1280),(sWG,1966080),(sWU,1966080),(sWD,1966080),(sOUT,2621440),(sDBG,256)):
        p(f"s_mov_b32 s{r+2}, {n}\ns_mov_b32 s{r+3}, 0x20000")
    p(f"""s_mov_b32 s{sLO}, -1
    s_mov_b32 s{sLO+1}, 0
    s_mov_b32 s{sLO+2}, 0xfffff
    s_mov_b32 s{sLO+3}, 0xfffff
    s_mov_b32 s{sTAG}, {EPO}
    s_waitcnt lgkmcnt(0)
    s_load_dword s{sEP}, s[{sWS}:{sWS+1}], s{sTAG}
    s_load_dwordx2 s[{sWD}:{sWD+1}], s[0:1], 56
    s_load_dwordx2 s[{sOUT}:{sOUT+1}], s[0:1], 64
    s_load_dwordx2 s[{sDBG}:{sDBG+1}], s[0:1], 72""")
    if CFG['cal']: p(f"s_mov_b32 s{sPROF}, 0")
    STAMP('start')
    p(f"""s_cmp_ge_u32 s{sWAVE}, 4
    s_cbranch_scc1 L_helper""")
def mktag():
    p(f"""s_mul_i32 s{sTAG}, s{sEP}, 0x9e3779b1
    s_add_u32 s{sTAG}, s{sTAG}, 0x7f4a7c15
    s_and_b32 s{sTAG}, s{sTAG}, -16""")
def colbyte(dst, lc):
    t=sT+18
    p(f"""s_mul_i32 s{t}, s{lc}, 52
    s_lshr_b32 s{t}, s{t}, 8
    s_mul_i32 s{t+1}, s{t}, 5
    s_sub_u32 s{t+1}, s{lc}, s{t+1}
    s_mul_i32 s{t}, s{t}, 1280
    s_lshl_b32 s{t+1}, s{t+1}, 7
    s_mul_i32 s{dst}, s{sHH}, 640
    s_add_u32 s{dst}, s{dst}, s{t}
    s_add_u32 s{dst}, s{dst}, s{t+1}""")

def loader():
    CA_=sT+1; CB_=sT+2; CH=sT+3; XO=sT+4; WO_=sT+5; LB=sT+6; A=sT+7; B=sT+8
    vX=2; vW=6; vt=10
    p(f"""L_helper:
    s_sub_u32 s{HW}, s{sWAVE}, 4
    s_lshl_b32 s{A}, s{sCT}, 1
    s_add_u32 s{B}, s{A}, 1
    s_min_u32 s{B}, s{B}, 14""")
    colbyte(CA_,A); colbyte(CB_,B)
    p(f"""v_lshrrev_b32 v{vt}, 3, v0
    v_mul_u32_u24 v{vX}, 1280, v{vt}
    v_lshrrev_b32 v{vt+1}, 4, v0
    v_and_b32 v{vt+2}, 7, v0
    v_xor_b32 v{vt+2}, v{vt+2}, v{vt+1}
    v_lshl_add_u32 v{vX}, v{vt+2}, 4, v{vX}
    v_xor_b32 v{vX+1}, 64, v{vX}
    v_add_u32 v{vX+1}, {10240-1024}, v{vX+1}
    v_add_u32 v{vX+2}, {2*(10240-1024)}, v{vX}
    v_add_u32 v{vX+3}, {2*(10240-1024)}, v{vX+1}
    v_lshlrev_b32 v{vt+2}, 2, v{vt+1}
    v_and_b32 v{vt+3}, 15, v0
    v_xor_b32 v{vt+2}, v{vt+2}, v{vt+3}
    v_cmp_lt_u32 vcc, 7, v{vt+2}
    v_mov_b32 v{vt+3}, s{CA_}
    v_mov_b32 v{vt+4}, s{CB_}
    v_cndmask_b32 v{vt+3}, v{vt+3}, v{vt+4}, vcc
    v_and_b32 v{vt+2}, 7, v{vt+2}
    v_lshl_add_u32 v{vt+3}, v{vt+2}, 4, v{vt+3}
    v_mul_u32_u24 v{vW}, 3840, v{vt+1}
    v_add_u32 v{vW}, v{vW}, v{vt+3}""")
    for i in range(1,4): p(f"v_add_u32 v{vW+i}, {i*(4*3840-1024)}, v{vW}")
    ra,rb_=CFG['rot']
    p(f"""s_mul_i32 s{CH}, s{sRB}, {ra}
    s_mul_i32 s{A}, s{sCT}, {rb_}
    s_add_u32 s{CH}, s{CH}, s{A}
    s_mul_i32 s{A}, s{CH}, 205
    s_lshr_b32 s{A}, s{A}, 11
    s_mul_i32 s{A}, s{A}, 10
    s_sub_u32 s{CH}, s{CH}, s{A}
    s_lshl_b32 s{A}, s{sRQ}, 2
    s_add_u32 s{A}, s{A}, s{sRB}
    s_lshl_b32 s{A}, s{A}, 2
    s_add_u32 s{A}, s{A}, s{HW}
    s_mul_i32 s{XO}, s{A}, {32*1280}
    s_mul_i32 s{WO_}, s{HW}, {16*3840}
    s_lshl_b32 s{LB}, s{HW}, 12""")
    def issue(c):
        slot=(c%4)*32768
        p(f"""s_lshl_b32 s{A}, s{CH}, 7
        s_add_u32 s{A}, s{A}, s{XO}
        s_add_u32 m0, s{LB}, {slot}
        s_mul_i32 s{B}, s{CH}, {64*3840}""")
        for i in range(4): p(f"buffer_load_dwordx4 v{vX+i}, {S4(sX)}, s{A} offen offset:{i*1024} lds")
        p(f"""s_add_u32 m0, s{LB}, {slot+16384}
        s_add_u32 s{B}, s{B}, s{WO_}""")
        for i in range(4): p(f"buffer_load_dwordx4 v{vW+i}, {S4(sW)}, s{B} offen offset:{i*1024} lds")
        p(f"""s_add_u32 s{CH}, s{CH}, 1
        s_cmp_eq_u32 s{CH}, 10
        s_cselect_b32 s{CH}, 0, s{CH}""")
    pre=CFG['pre']
    for c in range(pre): issue(c)
    p(f"""v_cmp_lt_u32 vcc, 7, v0
    v_lshlrev_b32 v{vt}, 4, v0
    v_add_u32 v{vt}, {L_FLG}, v{vt}
    v_cndmask_b32 v{vt+2}, 0, -1, vcc
    v_cndmask_b32 v{vt+3}, 0, -1, vcc
    v_cndmask_b32 v{vt+4}, 0, -1, vcc
    v_cndmask_b32 v{vt+5}, 0, -1, vcc
    ds_write_b128 v{vt}, v[{vt+2}:{vt+5}]""")
    p("s_waitcnt lgkmcnt(0)")
    mktag()
    issued=pre
    global OPS
    OPS=[c for c in range(pre) for _ in range(8)]
    for c in range(8):
        vmwait(c)
        p("s_barrier")
        STAMP('ld%d'%c)
        if c==0: STAMP('hb0')
        if c==6:
            p(f"""v_lshlrev_b32 v{vH+4}, 4, v0
            v_add_u32 v{vH+4}, {H1}, v{vH+4}
            buffer_load_dwordx4 v[{vH}:{vH+3}], v{vH+4}, {S4(sWS)}, 0 offen sc1""")
            OPS.append('h1')
        for _ in range(CFG['sched'][c]):
            assert issued<min(10,c+4); issue(issued); OPS+=[issued]*8; issued+=1
        if c==CFG['pt']:
            p(f"""s_lshl_b32 s{A}, s{sSLOT}, 2
            s_add_u32 s{A}, s{A}, s{HW}
            s_mul_i32 s{A}, s{A}, 60
            v_min_u32 v{vt}, 59, v0
            v_add_u32 v{vt}, s{A}, v{vt}
            v_mul_u32_u24 v{vt+1}, 6554, v{vt}
            v_lshrrev_b32 v{vt+1}, 20, v{vt+1}
            v_mul_u32_u24 v{vt+2}, 160, v{vt+1}
            v_sub_u32 v{vt}, v{vt}, v{vt+2}
            v_lshlrev_b32 v{vt}, 7, v{vt}
            v_cmp_gt_u32 vcc, 32, v{vt+1}
            v_and_b32 v{vt+2}, 1, v{vt+1}
            v_mul_u32_u24 v{vt+2}, 20480, v{vt+2}
            v_bfe_u32 v{vt+3}, v{vt+1}, 1, 3
            v_mul_u32_u24 v{vt+3}, 163840, v{vt+3}
            v_add_u32 v{vt+2}, v{vt+2}, v{vt+3}
            v_lshrrev_b32 v{vt+3}, 4, v{vt+1}
            v_mul_u32_u24 v{vt+3}, {KB}, v{vt+3}
            s_mul_i32 s{A}, s{sRQ}, 40960
            v_add3_u32 v{vt+2}, v{vt+2}, v{vt+3}, s{A}
            v_and_b32 v{vt+3}, 15, v{vt+1}
            v_mul_u32_u24 v{vt+3}, 81920, v{vt+3}
            s_mul_i32 s{A}, s{sRQ}, 20480
            s_add_u32 s{A}, s{A}, {VB}
            v_add_u32 v{vt+3}, s{A}, v{vt+3}
            v_cndmask_b32 v{vt+2}, v{vt+3}, v{vt+2}, vcc
            v_add_u32 v{vt}, v{vt}, v{vt+2}
            s_mul_i32 s{A}, s{sHH}, {8*163840}
            buffer_load_dword v{vt+5}, v{vt}, {S4(sWS)}, s{A} offen""")
            OPS.append('pt')
    assert issued==10
    p(f"s_cmp_ge_u32 s{HW}, 2\ns_cbranch_scc1 L_helperB")
vH=16
OPS=[]
def vmwait(*tags):
    last=max(i for i,t in enumerate(OPS) if t in tags)
    n=len(OPS)-1-last; assert n<64
    p(f"s_waitcnt vmcnt({n})")
HW=sT
def spin(cnt,lp,ok,sleep=0):
    p(f"s_sub_u32 s{cnt}, s{cnt}, 1\ns_cbranch_scc1 {ok}")
    if sleep: p(f"s_sleep {sleep}")
def lds_wait(addr_v,tmp,cnt,cmp,val,sleep=1):
    lp=p.lab("lw"); ok=p.lab("lwok")
    p(f"""s_mov_b32 s{cnt}, {SPIN*4}
    {lp}:
    ds_read_b32 v{tmp}, v{addr_v}
    s_waitcnt lgkmcnt(0)
    v_cmp_{cmp}_u32 vcc, {val}, v{tmp}
    s_nop 0
    s_cbranch_vccz {ok}""")
    spin(cnt,lp,ok,sleep)
    p(f"s_branch {lp}\n{ok}:")
sHL,sHF,sHO,sPH,sHD,sT0=range(sT+1,sT+7)
def att_ids():
    p(f"""s_lshr_b32 s{sHL}, s{sSLOT}, 1
    s_and_b32 s{sHF}, s{sSLOT}, 1
    s_and_b32 s{sHO}, s{sHL}, 1
    s_lshr_b32 s{sPH}, s{sHL}, 1
    s_lshl_b32 s{sHD}, s{sHH}, 3
    s_add_u32 s{sPH}, s{sPH}, s{sHD}
    s_lshl_b32 s{sHD}, s{sHH}, 4
    s_add_u32 s{sHD}, s{sHD}, s{sHL}
    s_lshl_b32 s{sT0}, s{sRQ}, 1
    s_add_u32 s{sT0}, s{sT0}, s{sHF}
    s_lshl_b32 s{sT0}, s{sT0}, 3""")
def flag_addr(vd,vt,withq,A,B,C):
    p(f"""s_lshr_b32 s{A}, s{sHL}, 1
    s_mul_i32 s{A}, s{A}, 5
    s_lshl_b32 s{B}, s{sHO}, 1
    s_add_u32 s{A}, s{A}, s{B}
    s_add_u32 s{B}, s{A}, 2
    s_lshr_b32 s{A}, s{A}, 3
    s_lshr_b32 s{B}, s{B}, 3
    s_lshl_b32 s{B}, s{B}, 4
    s_or_b32 s{A}, s{A}, s{B}
    s_add_u32 s{B}, s{A}, 0x55
    s_lshl_b32 s{C}, s{B}, 8
    s_or_b32 s{A}, s{C}, s{A if withq else B}
    s_mul_i32 s{B}, s{sHL}, 20
    s_add_u32 s{C}, s{B}, 19
    s_lshr_b32 s{B}, s{B}, 6
    s_lshr_b32 s{C}, s{C}, 6
    s_lshl_b32 s{C}, s{C}, 4
    s_or_b32 s{B}, s{B}, s{C}
    s_add_u32 s{B}, s{B}, 0xaa
    s_lshl_b32 s{B}, s{B}, 16
    s_or_b32 s{A}, s{A}, s{B}
    v_and_b32 v{vt}, 60, v0
    v_min_u32 v{vt}, 20, v{vt}
    v_bfe_u32 v{vt}, s{A}, v{vt}, 4
    v_and_b32 v{vd}, 3, v0
    v_lshlrev_b32 v{vd}, 2, v{vd}
    v_lshl_add_u32 v{vd}, v{vt}, 7, v{vd}""")
def flag_poll(va,vt,soff,cnt,first=True,sleep=0):
    lp=p.lab("fp"); ok=p.lab("fpok");
    p(f"s_mov_b32 s{cnt}, {SPIN}")
    if not first:
        md=p.lab("fpm"); p(f"s_branch {md}")
    p(f"""{lp}:
    buffer_load_dword v{vt}, v{va}, {S4(sWS)}, s{soff} offen sc1""")
    if not first: p(f"{md}:")
    p(f"""s_waitcnt vmcnt(0)
    v_cmp_ne_u32 vcc, s{sTAG}, v{vt}
    s_nop 0
    s_cbranch_vccz {ok}""")
    spin(cnt,lp,ok,sleep)
    p(f"s_branch {lp}\n{ok}:")
def kv_dma(aLin,aTl,sK,sV,sL,A,B):
    p(f"""s_mul_i32 s{A}, s{sHO}, 1536
    s_add_u32 s{A}, s{A}, s{sK}
    s_mov_b32 m0, s{sL}
    s_add_u32 s{B}, s{A}, 1536
    buffer_load_dwordx4 v{aLin}, {S4(sWS)}, s{A} offen sc1 lds
    buffer_load_dwordx4 v{aLin}, {S4(sWS)}, s{B} offen offset:1024 sc1 lds
    s_sub_u32 s{A}, s{sK}, 2048
    s_sub_u32 s{B}, s{sV}, 3072
    buffer_load_dwordx4 v{aTl}, {S4(sWS)}, s{A} offen offset:2048 sc1 lds
    buffer_load_dwordx4 v{aLin}, {S4(sWS)}, s{B} offen offset:3072 sc1 lds
    s_add_u32 m0, s{sL}, 4096
    s_add_u32 s{B}, s{sV}, 1024
    buffer_load_dwordx4 v{aLin}, {S4(sWS)}, s{B} offen sc1 lds
    s_mov_b64 exec, s[{sLO}:{sLO+1}]
    buffer_load_dwordx4 v{aLin}, {S4(sWS)}, s{B} offen offset:1024 sc1 lds
    s_mov_b64 exec, -1""")
def kv_addr(aLin,aTl,t):
    p(f"""v_lshlrev_b32 v{aLin}, 4, v0
    v_lshrrev_b32 v{t}, 5, v0
    v_mul_u32_u24 v{t}, {2560-512}, v{t}
    v_add3_u32 v{aTl}, v{aLin}, v{t}, s{sK1024}""")
sK1024=sT+21

def helperA():
    global OPS
    save=list(OPS)
    A=sT+7; B=sT+8; vt=10; vS=20
    vmwait(8,'h1')
    lp=p.lab("hello"); ok=p.lab("hello_ok"); ne=p.lab("noep")
    p(f"""s_mov_b32 s{A}, {SPIN}
    {lp}:
    v_xor_b32 v{vH}, s{sTAG}, v{vH}
    v_xor_b32 v{vH+1}, s{sTAG}, v{vH+1}
    v_xor_b32 v{vH+2}, s{sTAG}, v{vH+2}
    v_xor_b32 v{vH+3}, s{sTAG}, v{vH+3}
    v_or3_b32 v{vt}, v{vH}, v{vH+1}, v{vH+2}
    v_or_b32 v{vt}, v{vt}, v{vH+3}
    v_cmp_lt_u32 vcc, 15, v{vt}
    s_nop 0
    s_cbranch_vccz {ok}""")
    spin(A,lp,ok,4)
    p(f"""buffer_load_dwordx4 v[{vH}:{vH+3}], v{vH+4}, {S4(sWS)}, 0 offen sc1
    s_waitcnt vmcnt(0)
    s_branch {lp}
    {ok}:
    v_lshl_or_b32 v{vH}, v{vH+1}, 4, v{vH}
    v_lshl_or_b32 v{vH+2}, v{vH+3}, 4, v{vH+2}
    v_lshl_or_b32 v{vH}, v{vH+2}, 8, v{vH}
    v_and_b32 v{vt}, 1, v0
    v_readlane_b32 s{A}, v{vH}, 0
    v_readlane_b32 s{B}, v{vH}, 1
    v_cmp_eq_u32 vcc, 0, v{vt}
    v_mov_b32 v{vt+1}, s{A}
    v_mov_b32 v{vt+2}, s{B}
    v_cndmask_b32 v{vt+1}, v{vt+2}, v{vt+1}, vcc
    v_cmp_ne_u32 vcc, v{vt+1}, v{vH}
    v_mov_b32 v{vt}, {L_MODE}
    s_cmp_lg_u64 vcc, 0
    s_cselect_b32 s{sMODE}, 1, {CFG['force_slow']}
    v_mov_b32 v{vt+1}, s{sMODE}
    ds_write_b32 v{vt}, v{vt+1}
    s_add_u32 s{A}, s2, s{HW}
    s_cmp_lg_u32 s{A}, 0
    s_cbranch_scc1 {ne}
    s_add_u32 s{A}, s{sEP}, 1
    v_mov_b32 v{vt}, {EPO}
    v_mov_b32 v{vt+1}, s{A}
    s_mov_b64 exec, 1
    buffer_store_dword v{vt+1}, v{vt}, {S4(sWS)}, 0 offen sc1
    s_mov_b64 exec, -1
    {ne}:
    s_waitcnt lgkmcnt(0)
    s_barrier""")
    HS=[sT+9,sT+13]; HA=[24,28]
    for k in range(2):
        p(f"s_add_u32 s{sT+5}, s{HW}, {2*k}")
        wave_ids(sT+5,sT+1,sT+2,sT+3,sT+4)
        store_addr(sT+1,sT+3,sT+4,HS[k],HS[k]+1,HS[k]+2,HS[k]+3,HA[k],sT+17,sT+18)
        p(f"""s_add_u32 s{HS[k]}, s{HS[k]}, {KH-KB}
        s_add_u32 s{HS[k]+1}, s{HS[k]+1}, {KH-KB}
        s_add_u32 s{HS[k]+3}, s{HS[k]+3}, {FH-FL}""")
    p("s_waitcnt vmcnt(0)\ns_barrier")
    STAMP('hb9')
    lp=p.lab("stp"); ok=p.lab("stok")
    p(f"""s_lshl_b32 s{A}, s{sG}, 2
    s_add_u32 s{A}, s{A}, s{sRB}
    s_lshl_b32 s{A}, s{A}, 1
    s_add_u32 s{A}, s{A}, s{HW}
    s_lshl_b32 s{A}, s{A}, 10
    s_add_u32 s{A}, s{A}, {ST1}
    v_lshlrev_b32 v{vt}, 4, v0
    buffer_load_dwordx4 v[{vS}:{vS+3}], v{vt}, {S4(sWS)}, s{A} offen sc1
    s_lshl_b32 s{B}, s{HW}, 9
    s_add_u32 s{B}, s{B}, {L_SA}
    v_lshl_add_u32 v{vt+1}, v0, 3, s{B}
    s_lshl_b32 s{B}, s{HW}, 8
    s_add_u32 s{B}, s{B}, {L_SR}
    v_lshl_add_u32 v{vt+2}, v0, 2, s{B}
    s_barrier
    s_mov_b32 s{B}, {SPIN}
    {lp}:
    s_waitcnt vmcnt(0)
    v_cmp_ne_u32 vcc, s{sTAG}, v{vS+2}
    s_nop 0
    s_cbranch_vccz {ok}""")
    spin(B,lp,ok)
    p(f"""buffer_load_dwordx4 v[{vS}:{vS+3}], v{vt}, {S4(sWS)}, s{A} offen sc1
    s_branch {lp}
    {ok}:
    ds_write_b64 v{vt+1}, v[{vS}:{vS+1}]
    ds_write_b32 v{vt+2}, v{vS+1}
    s_waitcnt lgkmcnt(0)
    s_barrier""")
    STAMP('hE1')
    att_ids()
    aLin=6; aTl=7; aF=8; D=32
    p(f"s_mov_b32 s{sK1024}, 1024")
    kv_addr(aLin,aTl,vt)
    flag_addr(aF,vt,0,A,B,sT+17)
    for k in range(2):
        sk=p.lab("nohalo")
        p(f"""s_cmp_eq_u32 s{HS[k]+2}, 0
        s_cbranch_scc1 {sk}
        s_add_u32 s{A}, s{HW}, {2*k}
        s_lshl_b32 s{B}, s{A}, 2
        s_add_u32 s{B}, s{B}, {F_STG}
        v_mov_b32 v{vt}, s{B}
        s_lshl_b32 s{A}, s{A}, 13
        v_add_u32 v{vt+1}, s{A}, v{aLin}""")
        lds_wait(vt,vt+5,B,'eq',0,1)
        for i in range(8): p(f"ds_read_b128 {vr(D+32*k+4*i,4)}, v{vt+1} offset:{L_STG+i*1024}")
        for i in range(8):
            p(f"s_waitcnt lgkmcnt({7-i})\nbuffer_store_dwordx4 {vr(D+32*k+4*i,4)}, v{HA[k]+(i&3)}, {S4(sWS)}, s{HS[k]+(i>>2)} offen sc1")
        p(f"{sk}:")
    p(f"""v_mov_b32 v{vt}, {F_SCP}
    v_mov_b32 v{vt+1}, 1
    v_mov_b32 v{vt+2}, 0
    v_mov_b32 v{vt+3}, s{sTAG}
    s_mov_b64 exec, 1
    ds_add_u32 v{vt}, v{vt+1}
    s_waitcnt vmcnt(0)""")
    for k in range(2):
        sk=p.lab("nohf")
        p(f"""s_cmp_eq_u32 s{HS[k]+2}, 0
        s_cbranch_scc1 {sk}
        buffer_store_dword v{vt+3}, v{vt+2}, {S4(sWS)}, s{HS[k]+3} offen sc1
        {sk}:""")
    p("s_mov_b64 exec, -1")
    STAMP('halo')
    sF=sT+9; sK=sT+10; sV=sT+11; sL=sT+12; C=sT+13
    dn=p.lab("g2done")
    p(f"""s_cmp_eq_u32 s{sT0}, 0
    s_cbranch_scc1 {dn}
    s_cmp_eq_u32 s{sHF}, 0
    s_cselect_b32 s{A}, {FH-2*2048+16-FL}, 0
    s_cselect_b32 s{B}, {KH-KB}, 0
    s_lshl_b32 s{sF}, s{sG}, 11
    s_add_u32 s{sF}, s{sF}, s{A}
    s_add_u32 s{sF}, s{sF}, {FL}
    s_lshl_b32 s{A}, s{HW}, 2
    s_sub_u32 s{A}, s{sT0}, s{A}
    s_sub_u32 s{A}, s{A}, 2
    s_mul_i32 s{sK}, s{A}, 2560
    s_mul_i32 s{sV}, s{A}, 1280
    s_mul_i32 s{A}, s{sPH}, {64*2560}
    s_add_u32 s{sK}, s{sK}, s{A}
    s_add_u32 s{sK}, s{sK}, s{B}
    s_add_u32 s{sK}, s{sK}, {KB}
    s_mul_i32 s{A}, s{sHD}, 81920
    s_add_u32 s{sV}, s{sV}, s{A}
    s_add_u32 s{sV}, s{sV}, s{B}
    s_add_u32 s{sV}, s{sV}, {VB}
    s_mul_i32 s{sL}, s{HW}, {-2*5632}
    s_add_u32 s{sL}, s{sL}, {L_KV+3*5632}""")
    lds_wait(vt,vt+5,C,'gt',2,1)
    flag_poll(aF,vt+5,sF,C,sleep=1)
    kv_dma(aLin,aTl,sK,sV,sL,A,B)
    p(f"""s_sub_u32 s{sK}, s{sK}, 5120
    s_sub_u32 s{sV}, s{sV}, 2560
    s_sub_u32 s{sL}, s{sL}, 5632""")
    kv_dma(aLin,aTl,sK,sV,sL,A,B)
    p(f"""s_waitcnt vmcnt(0)
    {dn}:
    v_mov_b32 v{vt}, {F_G2}
    s_mov_b64 exec, 1
    ds_add_u32 v{vt}, v{vt+1}
    s_mov_b64 exec, -1""")
    STAMP('g2')
    OPS=save

def tr_addr(a0,t):
    tab=[[0,8],[4,12],[16,36],[20,28],[24,32]]
    pk=[sum((tab[u][rd]//4)<<(4*u) for u in range(5)) for rd in range(2)]
    A=sT+7; B=sT+8
    p(f"""s_mov_b32 s{A}, {pk[0]}
    s_mov_b32 s{B}, {pk[1]}
    v_bfe_u32 v{t}, v0, 2, 2
    v_mul_u32_u24 v{t}, 160, v{t}
    v_and_b32 v{t+1}, 3, v0
    v_mad_u32_u24 v{t}, v{t+1}, 40, v{t}
    v_lshrrev_b32 v{t+1}, 4, v0""")
    for s_ in range(5):
        p(f"""v_add_u32 v{t+2}, {4*s_}, v{t+1}
        v_mul_u32_u24 v{t+4}, 52, v{t+2}
        v_lshrrev_b32 v{t+4}, 8, v{t+4}
        v_mul_u32_u24 v{t+5}, 5, v{t+4}
        v_sub_u32 v{t+2}, v{t+2}, v{t+5}
        v_lshlrev_b32 v{t+2}, 2, v{t+2}
        v_mul_u32_u24 v{t+4}, 10, v{t+4}""")
        for rd in range(2):
            p(f"""v_bfe_u32 v{t+3}, s{(A,B)[rd]}, v{t+2}, 4
            v_add_u32 v{t+3}, v{t+3}, v{t+4}
            v_mul_u32_u24 v{t+3}, 640, v{t+3}
            v_add_u32 v{a0+2*s_+rd}, v{t+3}, v{t}""")
sBLK,sJ=sT+9,sT+10
def wo_ids():
    p(f"""s_lshr_b32 s{sBLK}, s{sSLOT}, 3
    s_lshl_b32 s{sJ}, s{sG}, 2
    s_add_u32 s{sBLK}, s{sBLK}, s{sJ}
    s_and_b32 s{sJ}, s{sSLOT}, 7""")
def helperB():
    global OPS
    A=sT+7; B=sT+8; vt=2; aD=20; aT=26; aLin=12; D=40
    sO=sT+1; sL=sT+2; sL0=sT+3; sL1=sT+4; C=sT+5
    p("L_helperB:")
    wo_ids()
    for i in range(5):
        p(f"""v_add_u32 v{vt}, {64*i}, v0
        v_mul_u32_u24 v{vt+1}, 6554, v{vt}
        v_lshrrev_b32 v{vt+1}, 16, v{vt+1}
        v_mul_u32_u24 v{vt+2}, 10, v{vt+1}
        v_sub_u32 v{vt}, v{vt}, v{vt+2}
        v_mul_u32_u24 v{vt+1}, 1280, v{vt+1}
        v_lshl_add_u32 v{aD+i}, v{vt}, 4, v{vt+1}""")
        if 0<i<4: p(f"v_subrev_u32 v{aD+i}, {i*1024}, v{aD+i}")
    p(f"""s_mul_i32 s{sO}, s{HW}, {160*1280}
    s_mul_i32 s{A}, s{sJ}, 160
    s_add_u32 s{sO}, s{sO}, s{A}
    s_mul_i32 s{sL0}, s{HW}, 25600
    s_add_u32 s{sL0}, s{sL0}, {L_WO}
    s_sub_u32 s{sL1}, s{sL0}, 51200
    s_mov_b32 s{sL}, s{sL0}""")
    st=dict(n=0)
    def dma(cnt):
        for _ in range(cnt):
            n=st['n']; i=n%5
            if n==25:
                p(f"s_sub_u32 s{sO}, s{sO}, {(320+160)*1280}\ns_mov_b32 s{sL}, s{sL1}")
            if i==0: p(f"s_mov_b32 m0, s{sL}\ns_nop 0")
            if i==4: p(f"s_add_u32 m0, s{sL}, 4096\ns_add_u32 s{sL}, s{sL}, 5120")
            if not CFG['nowo']: p(f"buffer_load_dwordx4 v{aD+i}, {S4(sWO)}, s{sO} offen offset:{(i&3)*1024} lds")
            if i==4: p(f"s_add_u32 s{sO}, s{sO}, {32*1280}")
            if not CFG['nowo'] or n in (0,25): OPS.append('wo%d'%(n//25))
            st['n']+=1
    n8,n9,n10=CFG['wos']
    vmwait(8); p("s_barrier")
    dma(n8)
    p(f"v_mov_b32 v{vt+8}, {L_MODE}\nds_read_b32 v{vt+9}, v{vt+8}")
    vmwait(9); p("s_barrier")
    dma(n9)
    tr_addr(aT,vt)
    p(f"v_lshlrev_b32 v{aLin}, 4, v0\ns_waitcnt lgkmcnt(0)\nv_readfirstlane_b32 s{sMODE}, v{vt+9}")
    p("s_barrier")
    dma(n10)
    for r in range(4): p(f"v_mov_b32 v{D+r}, -1")
    p("s_barrier")
    STAMP('hE1')
    nc=p.lab("noclr")
    p(f"""s_cmp_lg_u32 s{HW}, {2+8*CFG['noclr']}
    s_cbranch_scc1 {nc}
    s_lshr_b32 s{A}, s{sJ}, 1
    s_lshl_b32 s{B}, s{sBLK}, 2
    s_add_u32 s{A}, s{A}, s{B}
    s_mul_i32 s{A}, s{A}, 20480
    s_and_b32 s{B}, s{sJ}, 1
    s_mul_i32 s{B}, s{B}, 5120
    s_add_u32 s{A}, s{A}, s{B}
    s_add_u32 s{A}, s{A}, {OB}
    s_mul_i32 s{B}, s{sHH}, 10240
    s_add_u32 s{C}, s{A}, 10240
    s_add_u32 s{A}, s{A}, s{B}
    s_sub_u32 s{C}, s{C}, s{B}
    s_add_u32 s{B}, s{C}, 4096""")
    st4=lambda so,off,sc="": f"buffer_store_dwordx4 v[{D}:{D+3}], v{aLin}, {S4(sWS)}, s{so} offen offset:{off}{sc}"
    for i in range(4): p(st4(C,i*1024," sc1"))
    p(st4(B,0," sc1"))
    p(f"""s_mul_i32 s{C}, s2, 2560
    s_add_u32 s{C}, s{C}, {CAND}""")
    p(st4(C,0," sc1")); p(st4(C,1024," sc1")); p(st4(C,1536," sc1"))
    p(f"""s_min_u32 s{C}, s2, 27
    s_lshl_b32 s{C}, s{C}, 10
    s_add_u32 s{C}, s{C}, {CA}""")
    sk=p.lab("noca")
    p(f"s_cmp_ge_u32 s2, 28\ns_cbranch_scc1 {sk}")
    p(st4(C,0," sc1"))
    p(f"""{sk}:
    s_add_u32 s{B}, s{A}, 4096
    s_lshl_b32 s{C}, s{sBLK}, 3
    s_add_u32 s{C}, s{C}, s{sJ}
    s_lshl_b32 s{C}, s{C}, 10
    s_add_u32 s{C}, s{C}, {PS}""")
    dual([st4(A,i*1024) for i in range(4)]+[st4(B,0),st4(C,0)])
    p(f"""v_min_u32 v{vt}, 39, v0
    v_lshlrev_b32 v{vt}, 7, v{vt}
    v_and_b32 v{vt+1}, 7, v0
    v_lshlrev_b32 v{vt+1}, 7, v{vt+1}
    buffer_load_dword v{vt+2}, v{vt}, {S4(sWS)}, s{A} offen
    buffer_load_dword v{vt+3}, v{vt+1}, {S4(sWS)}, s{C} offen""")
    p(f"{nc}:")
    OPS.append('clr')
    if not CFG['wogate']: dma(50-st['n'])
    vmwait('clr')
    nh=p.lab("noh2")
    p(f"""s_cmp_lg_u32 s{HW}, 2
    s_cbranch_scc1 {nh}
    s_lshl_b32 s{A}, s2, 2
    s_add_u32 s{A}, s{A}, {H2}
    v_mov_b32 v{vt}, 0
    v_mov_b32 v{vt+1}, s{sTAG}
    s_mov_b64 exec, 1
    buffer_store_dword v{vt+1}, v{vt}, {S4(sWS)}, s{A} offen sc1
    s_mov_b64 exec, -1
    {nh}:""")
    STAMP('clr')
    if CFG['wogate']:
        p(f"v_mov_b32 v{vt}, {F_G1}")
        lds_wait(vt,vt+1,A,'gt',4,2)
        STAMP('wo_s')
        while st['n']<50:
            dma(5-st['n']%5)
            if st['n']<50: p(f"s_waitcnt vmcnt({CFG['wothr']})")
    def transp(sb):
        for k in range(10): p(f"v_add_u32 v{aT+k}, s{sb}, v{aT+k}")
        p(f"v_add_u32 v{vt}, s{sb}, v{aLin}")
        for s_ in range(5):
            for t in range(5):
                for rd in range(2): p(f"ds_read_b64_tr_b16 {vr(D+20*s_+4*t+2*rd,2)}, v{aT+2*s_+rd} offset:{8*t}")
        p("s_waitcnt lgkmcnt(0)")
        for s_ in range(5):
            for t in range(5): p(f"ds_write_b128 v{vt}, {vr(D+20*s_+4*t,4)} offset:{s_*5120+t*1024}")
    vmwait('wo0')
    STAMP('wo_0')
    transp(sL0)
    STAMP('wo_t0')
    p("s_waitcnt vmcnt(0)")
    for k in range(10): p(f"v_subrev_u32 v{aT+k}, s{sL0}, v{aT+k}")
    STAMP('wo_1')
    transp(sL1)
    p(f"""v_mov_b32 v{vt}, {F_WOR}
    v_mov_b32 v{vt+1}, 1
    s_mov_b64 exec, 1
    ds_add_u32 v{vt}, v{vt+1}
    s_mov_b64 exec, -1""")
    STAMP('wo')
    sk=p.lab("noh2p"); lp=p.lab("h2p"); ok=p.lab("h2ok")
    p(f"""s_cmp_lg_u32 s{HW}, 3
    s_cbranch_scc1 {sk}
    s_mov_b32 s{A}, {SPIN}
    s_mov_b32 s{B}, {H2}
    {'s_branch '+ok if CFG['noh2'] else ''}
    {lp}:
    buffer_load_dwordx4 v[{D}:{D+3}], v{aLin}, {S4(sWS)}, s{B} offen sc1
    s_waitcnt vmcnt(0)
    v_xor_b32 v{D}, s{sTAG}, v{D}
    v_xor_b32 v{D+1}, s{sTAG}, v{D+1}
    v_xor_b32 v{D+2}, s{sTAG}, v{D+2}
    v_xor_b32 v{D+3}, s{sTAG}, v{D+3}
    v_or3_b32 v{D}, v{D}, v{D+1}, v{D+2}
    v_or_b32 v{D}, v{D}, v{D+3}
    v_cmp_ne_u32 vcc, 0, v{D}
    s_nop 0
    s_cbranch_vccz {ok}""")
    spin(A,lp,ok,32)
    p(f"""s_branch {lp}
    {ok}:
    v_mov_b32 v{vt}, {F_H2}
    ds_write_b32 v{vt}, v{vt+1}
    {sk}:""")
    STAMP('h2')

ACC=64; CS=128; XF=132; WF=148; SEL=164; aX=168; aW=172; aST=174; vT=2
sWR_,sWC,sLC,sTY,sSO,sHALO,sFO,sSO2=range(sT,sT+8)
def gemm_setup():
    t=vT; A=sT+10; B=sT+11
    wave_ids(sWAVE,sWR_,sWC,sLC,sTY)
    p(f"""v_and_b32 v{t}, 31, v0
    s_lshl_b32 s{A}, s{sWR_}, 6
    v_add_u32 v{t+1}, s{A}, v{t}
    v_lshlrev_b32 v{t+1}, 7, v{t+1}
    v_lshrrev_b32 v{t+2}, 5, v0
    v_bfe_u32 v{t+3}, v0, 1, 3
    v_xor_b32 v{t+3}, v{t+3}, v{t+2}
    v_lshl_add_u32 v{aX}, v{t+3}, 4, v{t+1}""")
    for s in range(1,4): p(f"v_xor_b32 v{aX+s}, {32*s}, v{aX}")
    p(f"""v_bfe_u32 v{t+3}, v0, 2, 2
    v_lshl_add_u32 v{t+4}, v{t+2}, 3, v{t+3}
    v_lshlrev_b32 v{t+4}, 8, v{t+4}
    s_lshl_b32 s{A}, s{sWC}, 1
    s_or_b32 s{A}, s{A}, s{sWR_}
    v_xor_b32 v{t+3}, s{A}, v{t+3}
    v_lshl_add_u32 v{t+4}, v{t+3}, 6, v{t+4}
    v_bfe_u32 v{t+3}, v0, 4, 1
    v_lshl_add_u32 v{t+4}, v{t+3}, 5, v{t+4}
    v_and_b32 v{t+5}, 3, v0
    v_lshl_add_u32 v{t+4}, v{t+5}, 3, v{t+4}
    v_add_u32 v{aW}, 16384, v{t+4}
    v_xor_b32 v{aW+1}, 64, v{aW}
    v_bfe_u32 v{t+4}, v0, 2, 1
    v_cmp_eq_u32 vcc, v{t+3}, v{t+4}
    v_mov_b32 v{t+5}, 0x3f803f80
    s_nop 0
    v_cndmask_b32 v{SEL}, 0, v{t+5}, vcc
    v_cndmask_b32 v{SEL+1}, 0, v{t+5}, vcc
    v_cndmask_b32 v{SEL+2}, 0, v{t+5}, vcc
    v_cndmask_b32 v{SEL+3}, 0, v{t+5}, vcc""")
    for r in list(range(ACC,ACC+64))+list(range(CS,CS+4)): p(f"v_mov_b32 v{r}, 0")
    store_addr(sWR_,sLC,sTY,sSO,sSO2,sHALO,sFO,aST,sT+10,sT+11)
def wave_ids(wave,wr,wc,lc,ty):
    p(f"""s_and_b32 s{wr}, s{wave}, 1
    s_lshr_b32 s{wc}, s{wave}, 1
    s_lshl_b32 s{lc}, s{sCT}, 1
    s_add_u32 s{lc}, s{lc}, s{wc}
    s_mul_i32 s{ty}, s{lc}, 52
    s_lshr_b32 s{ty}, s{ty}, 8""")
def store_addr(wr,lc,ty,so,so2,halo,fo,ast,A,B):
    t=vT
    p(f"""v_and_b32 v{t}, 31, v0
    v_lshrrev_b32 v{t+2}, 5, v0
    s_mul_i32 s{A}, s{ty}, 5
    s_sub_u32 s{A}, s{lc}, s{A}
    s_mul_i32 s{B}, s{sHH}, 5
    s_add_u32 s{A}, s{A}, s{B}
    s_lshl_b32 s{B}, s{sRQ}, 2
    s_add_u32 s{B}, s{B}, s{sRB}
    s_lshl_b32 s{B}, s{B}, 1
    s_add_u32 s{B}, s{B}, s{wr}
    s_lshl_b32 s{B}, s{B}, 1""")
    isv=p.lab("isv"); jn=p.lab("stj")
    p(f"""s_cmp_ge_u32 s{ty}, 2
    s_cbranch_scc1 {isv}
    s_mul_i32 s{so}, s{B}, 2560
    s_mul_i32 s{B}, s{ty}, {KB}
    s_add_u32 s{so}, s{so}, s{B}
    s_add_u32 s{so2}, s{so}, 2560
    s_lshl_b32 s{A}, s{A}, 3""")
    for cb in range(2):
        for ip in range(2):
            p(f"""s_xor_b32 s{B}, s{wr}, {cb}
            s_lshl_b32 s{B}, s{B}, 2
            s_add_u32 s{B}, s{B}, s{A}
            s_add_u32 s{B}, s{B}, {2*ip}
            v_add_u32 v{t+3}, s{B}, v{t+2}
            v_mul_u32_u24 v{t+4}, 205, v{t+3}
            v_lshrrev_b32 v{t+4}, 10, v{t+4}
            v_mul_u32_u24 v{t+5}, 5, v{t+4}
            v_sub_u32 v{t+5}, v{t+3}, v{t+5}
            v_mul_u32_u24 v{t+4}, {64*2560}, v{t+4}
            v_lshl_add_u32 v{t+4}, v{t+5}, 9, v{t+4}
            v_lshl_add_u32 v{ast+2*cb+ip}, v{t}, 4, v{t+4}""")
    p(f"""s_branch {jn}
    {isv}:
    s_mul_i32 s{so}, s{B}, 1280
    s_add_u32 s{so}, s{so}, {VB}
    s_add_u32 s{so2}, s{so}, 1280
    s_lshl_b32 s{A}, s{A}, 6""")
    for cb in range(2):
        p(f"""s_xor_b32 s{B}, s{wr}, {cb}
        s_lshl_b32 s{B}, s{B}, 5
        s_add_u32 s{B}, s{B}, s{A}
        v_add_u32 v{t+3}, s{B}, v{t}
        v_mul_u32_u24 v{t+4}, 3277, v{t+3}
        v_lshrrev_b32 v{t+4}, 16, v{t+4}
        v_mul_u32_u24 v{t+5}, 20, v{t+4}
        v_sub_u32 v{t+5}, v{t+3}, v{t+5}
        v_mul_u32_u24 v{t+4}, 81920, v{t+4}
        v_lshl_add_u32 v{t+4}, v{t+5}, 4, v{t+4}
        v_mul_u32_u24 v{t+5}, 320, v{t+2}
        v_add_u32 v{ast+2*cb}, v{t+4}, v{t+5}
        v_add_u32 v{ast+2*cb+1}, 640, v{ast+2*cb}""")
    p(f"""{jn}:
    s_sub_u32 s{A}, s{ty}, 1
    s_cmp_lt_u32 s{A}, 2
    s_cselect_b32 s{halo}, 1, 0
    s_cmp_ge_u32 s{sRB}, 2
    s_cselect_b32 s{halo}, s{halo}, 0
    s_cmp_lt_u32 s{sRQ}, 3
    s_cselect_b32 s{halo}, s{halo}, 0
    s_lshl_b32 s{fo}, s{sG}, 4
    s_add_u32 s{fo}, s{fo}, s{lc}
    s_lshl_b32 s{fo}, s{fo}, 5
    s_lshl_b32 s{A}, s{sRB}, 1
    s_add_u32 s{A}, s{A}, s{wr}
    s_add_u32 s{fo}, s{fo}, s{A}
    s_lshl_b32 s{fo}, s{fo}, 2
    s_add_u32 s{fo}, s{fo}, {FL}""")
def xf(buf,xb): return XF+8*buf+4*xb
def wf(buf,cb): return WF+8*buf+4*cb
def reads(kind,buf,par,s):
    L=[]
    for xb in range(2): L.append(f"ds_read_b128 {vr(xf(buf,xb),4)}, v{aX+s} offset:{par*32768+xb*4096}")
    if kind!='S':
        for cb in range(2):
            for rd in range(2): L.append(f"ds_read_b64_tr_b16 {vr(wf(buf,cb)+2*rd,2)}, v{aW+cb} offset:{par*32768+s*4096+rd*1024}")
        L=[L[2],L[3],L[0],L[1],L[4],L[5]]
    return L
def mfmas(kind,buf):
    L=[]
    if kind=='S':
        for xb in range(2):
            x=xf(buf,xb)
            L.append(f"v_mfma_f32_16x16x32_bf16 {vr(ACC+4*xb,4)}, {vr(SEL,4)}, {vr(x,4)}, {vr(ACC+4*xb,4)}")
            L.append(f"v_mfma_f32_4x4x4_16b_bf16 {vr(ACC+8+8*xb,4)}, {vr(x,2)}, {vr(x,2)}, {vr(ACC+8+8*xb,4)}")
            L.append(f"v_mfma_f32_4x4x4_16b_bf16 {vr(ACC+12+8*xb,4)}, {vr(x+2,2)}, {vr(x+2,2)}, {vr(ACC+12+8*xb,4)}")
        return L
    for cb in range(2):
        for xb in range(2):
            a=ACC+16*(2*xb+cb); X=vr(xf(buf,xb),4); W=vr(wf(buf,cb),4)
            L.append(f"v_mfma_f32_32x32x16_bf16 {vr(a,16)}, {W if kind=='T' else X}, {X if kind=='T' else W}, {vr(a,16)}")
    L.insert(2,f"v_mfma_f32_16x16x32_bf16 {vr(CS,4)}, {vr(SEL,4)}, {vr(wf(buf,0),4)}, {vr(CS,4)}")
    return L
def gemm_loop(kind):
    CNT=sT+10
    lp=p.lab("g"+kind)
    p("s_barrier")
    STAMP('b0')
    for r in reads(kind,0,0,0): p(r)
    if kind!='S':
        sk=p.lab("nohello")
        p(f"""s_cmp_lg_u32 s{sWAVE}, 0
        s_cbranch_scc1 {sk}
        s_getreg_b32 s{CNT}, hwreg(HW_REG_XCC_ID, 0, 4)
        s_or_b32 s{CNT}, s{CNT}, s{sTAG}
        v_mov_b32 v{vT}, s{CNT}
        s_lshl_b32 s{CNT}, s2, 2
        s_add_u32 s{CNT}, s{CNT}, {H1}
        v_mov_b32 v{vT+1}, 0
        s_mov_b64 exec, 1
        buffer_store_dword v{vT}, v{vT+1}, {S4(sWS)}, s{CNT} offen sc1
        s_mov_b64 exec, -1
        {sk}:""")
    p(f"s_mov_b32 s{CNT}, 5\n{lp}:")
    for par in range(2):
        for s in range(4):
            buf=s&1
            last=(s==3)
            M=mfmas(kind,buf)
            if CFG['nomfma']: M=M[:1]
            if last and par==1:
                pre=[f"v_xor_b32 v{aX+i}, 0x10000, v{aX+i}" for i in range(4)]+[f"v_xor_b32 v{aW+i}, 0x10000, v{aW+i}" for i in range(2)]
            else: pre=[]
            R=reads(kind,buf^1,(par^1) if last else par,(s+1)&3)
            p("s_waitcnt lgkmcnt(0)")
            if last:
                p(M.pop(0))
                for x in pre: p(x)
                p("s_barrier")
            k=0
            while M or R:
                if R: p(R.pop(0))
                if R: p(R.pop(0))
                if M: p(M.pop(0))
    p(f"""s_sub_u32 s{CNT}, s{CNT}, 1
    s_cmp_lg_u32 s{CNT}, 0
    s_cbranch_scc1 {lp}""")
    STAMP('gend')
def bf16r(dst,src):
    p(f"v_cvt_pk_bf16_f32 v{dst}, v{src}, v{src}\nv_and_b32 v{dst}, 0xffff0000, v{dst}")
def mode_read():
    p(f"""v_mov_b32 v{vT+8}, {L_MODE}
    ds_read_b32 v{vT+9}, v{vT+8}""")
def mode_get():
    p(f"v_readfirstlane_b32 s{sMODE}, v{vT+9}")
def dual(stores):
    sl=p.lab("slow"); jn=p.lab("jn")
    p(f"s_cmp_lg_u32 s{sMODE}, 0\ns_cbranch_scc1 {sl}")
    for s in stores: p(s)
    p(f"s_branch {jn}\n{sl}:")
    for s in stores: p(s+" sc1")
    p(f"{jn}:")
def stats_epi():
    t=vT; A=sT+10
    mode_read()
    p(f"""v_and_b32 v{t}, 3, v0
    v_cmp_eq_u32 s[{A}:{A+1}], 1, v{t}
    v_cmp_eq_u32 s[{A+2}:{A+3}], 2, v{t}
    v_cmp_eq_u32 s[{A+4}:{A+5}], 3, v{t}
    s_nop 4""")
    for xb in range(2):
        g=ACC+8+8*xb
        for j in range(4): p(f"v_add_f32 v{g+j}, v{g+j}, v{g+4+j}")
        p(f"""v_cndmask_b32 v{g}, v{g}, v{g+1}, s[{A}:{A+1}]
        v_cndmask_b32 v{g}, v{g}, v{g+2}, s[{A+2}:{A+3}]
        v_cndmask_b32 v{g}, v{g}, v{g+3}, s[{A+4}:{A+5}]""")
    g0=ACC+8; g1=ACC+16
    p(f"""s_nop 1
    v_permlane32_swap_b32 v{g0}, v{g1}
    v_cndmask_b32 v{t+1}, v{ACC+4}, v{ACC}, s[{sLO}:{sLO+1}]
    v_add_f32 v{t+2}, v{g0}, v{g1}
    v_mul_f32 v{t+1}, {1/640!r}, v{t+1}
    v_mul_f32 v{t+2}, {1/640!r}, v{t+2}
    v_fma_f32 v{t+2}, -v{t+1}, v{t+1}, v{t+2}
    v_max_f32 v{t+2}, 0, v{t+2}""")
    bf16r(t+2,t+2)
    p(f"v_add_f32 v{t+2}, 0x3727c5ac, v{t+2}")
    bf16r(t+2,t+2)
    p(f"v_sqrt_f32 v{t+2}, v{t+2}\nv_xor_b32 v{t+1}, 0x80000000, v{t+1}")
    bf16r(t+2,t+2)
    p(f"""v_rcp_f32 v{t+5}, v{t+2}
    v_cvt_pk_bf16_f32 v{t+4}, v{t+1}, v{t+1}
    v_mov_b32 v{t+6}, s{sTAG}
    v_mov_b32 v{t+7}, s{sTAG}
    s_lshl_b32 s{A}, s{sG}, 2
    s_add_u32 s{A}, s{A}, s{sRB}
    s_lshl_b32 s{A}, s{A}, 1
    s_add_u32 s{A}, s{A}, s{sWR_}
    s_lshl_b32 s{A}, s{A}, 10
    s_add_u32 s{A}, s{A}, {ST1}
    v_lshlrev_b32 v{t+10}, 4, v0
    s_waitcnt lgkmcnt(0)""")
    mode_get()
    p("s_nop 0")
    dual([f"buffer_store_dwordx4 v[{t+4}:{t+7}], v{t+10}, {S4(sWS)}, s{A} offen"])
    p("s_barrier")
def gemm_epi(kind):
    t=vT; A=sT+10
    AU=20
    WA=24
    XA=28
    RS=32
    p(f"""v_and_b32 v{t}, 31, v0
    s_lshl_b32 s{A}, s{sWC}, 1
    s_or_b32 s{A}, s{A}, s{sWR_}
    s_lshl_b32 s{A}, s{A}, 7
    s_add_u32 s{A}, s{A}, {L_CS}
    v_lshl_add_u32 v{t+1}, v{t}, 2, s{A}
    s_lshl_b32 s{A}, s{sWR_}, 9
    s_add_u32 s{A}, s{A}, {L_SA}
    v_lshl_add_u32 v{t+3}, v{t}, 3, s{A}
    ds_write_b32 v{t+1}, v{CS}
    v_xor_b32 v{t+2}, 128, v{t+1}
    v_mov_b32 v{WA+1}, 0
    v_mov_b32 v{WA+3}, 0
    v_mov_b32 v{XA+1}, 0
    v_mov_b32 v{XA+3}, 0""")
    if kind=='V':
        p(f"""v_lshrrev_b32 v{t+4}, 5, v0
        s_lshl_b32 s{A}, s{sWR_}, 8
        s_add_u32 s{A}, s{A}, {L_SR}
        v_lshl_add_u32 v{t+4}, v{t+4}, 4, s{A}""")
    p("s_waitcnt lgkmcnt(0)\ns_barrier")
    STAMP('E1',1)
    p(f"""ds_read_b32 v{CS+1}, v{t+2}
    ds_read_b64 v[{AU}:{AU+1}], v{t+3}
    ds_read_b64 v[{AU+2}:{AU+3}], v{t+3} offset:256""")
    mode_read()
    if kind=='V':
        for xb in range(2):
            for i in range(4): p(f"ds_read_b128 {vr(RS+16*xb+4*i,4)}, v{t+4} offset:{xb*128+i*32}")
    def split(cb):
        c=CS+cb
        p(f"""v_cndmask_b32 v{c}, 0, v{c}, s[{sLO}:{sLO+1}]
        v_cvt_pk_bf16_f32 v{t+5}, v{c}, v{c}
        v_and_b32 v{t+5}, 0xffff0000, v{t+5}
        v_sub_f32 v{t+6}, v{c}, v{t+5}
        v_cvt_pk_bf16_f32 v{WA+2*cb}, v{t+5}, v{t+6}""")
    split(0)
    p(f"s_waitcnt lgkmcnt({8 if kind=='V' else 0})")
    split(1)
    p(f"v_mov_b32 v{XA}, v{AU}\nv_mov_b32 v{XA+2}, v{AU+2}")
    mode_get()
    if kind=='T':
        p(f"""s_cmp_eq_u32 s{sTY}, 0
        s_cselect_b32 s{A}, {hex(f2u(20**-0.5*math.log2(math.e)))}, 1.0
        v_mul_f32 v{AU+1}, s{A}, v{AU+1}
        v_mul_f32 v{AU+3}, s{A}, v{AU+3}""")
    else: p("s_nop 0")
    for xb in range(2):
        for cb in range(2):
            a=ACC+16*(2*xb+cb); X=vr(XA+2*xb,2); W=vr(WA+2*cb,2)
            p(f"v_mfma_f32_32x32x8_bf16 {vr(a,16)}, {W if kind=='T' else X}, {X if kind=='T' else W}, {vr(a,16)}")
    p("s_waitcnt lgkmcnt(0)\ns_nop 7")
    allst=[]
    for xb in range(2):
        st=[]
        for cb in range(2):
            a=ACC+16*(2*xb+cb)
            for k in range(8):
                if kind=='T': p(f"v_pk_mul_f32 {vr(a+2*k,2)}, {vr(a+2*k,2)}, {vr(AU+2*xb,2)} op_sel:[0,1] op_sel_hi:[1,1]")
                else: p(f"v_pk_mul_f32 {vr(a+2*k,2)}, {vr(a+2*k,2)}, {vr(RS+16*xb+2*k,2)}")
            for k in range(8): p(f"v_cvt_pk_bf16_f32 v{a+k}, v{a+2*k}, v{a+2*k+1}")
            if kind=='T':
                p(f"""v_permlane32_swap_b32 v{a}, v{a+2}
                v_permlane32_swap_b32 v{a+1}, v{a+3}
                v_permlane32_swap_b32 v{a+4}, v{a+6}
                v_permlane32_swap_b32 v{a+5}, v{a+7}""")
            for h in range(2):
                st.append(f"buffer_store_dwordx4 {vr(a+4*h,4)}, v{aST+2*cb+h}, {S4(sWS)}, s{sSO2 if xb else sSO} offen")
                allst.append(a+4*h)
        dual(st)
    STAMP('st')
    nh=p.lab("nohalo")
    p(f"""v_mov_b32 v{t}, 0
    v_mov_b32 v{t+1}, s{sTAG}
    s_cmp_eq_u32 s{sHALO}, 0
    s_cbranch_scc1 {nh}
    s_lshl_b32 s{A}, s{sWAVE}, 13
    v_lshl_add_u32 v{t+2}, v0, 4, s{A}
    s_lshl_b32 s{A}, s{sWAVE}, 2
    s_add_u32 s{A}, s{A}, {F_STG}
    v_mov_b32 v{t+3}, s{A}""")
    for i,r in enumerate(allst): p(f"ds_write_b128 v{t+2}, {vr(r,4)} offset:{L_STG+i*1024}")
    p(f"""ds_write_b32 v{t+3}, v{t+3}
    {nh}:
    s_waitcnt vmcnt(0)
    s_mov_b64 exec, 1""")
    dual([f"buffer_store_dword v{t+1}, v{t}, {S4(sWS)}, s{sFO} offen"])
    p(f"s_mov_b64 exec, -1")
    STAMP('fl')
import struct
def f2u(x): return struct.unpack("<I",struct.pack("<f",x))[0]

aLin,aTl,aKm,aKt,aV,aFl,aO=20,21,22,23,24,25,26
QM=[28,34]; QT=[32,38]; PP=40
KM=[48,62]; KT=[52,66]; VV=[[54,58],[68,72]]
SS=[80,96]; OO=[112,128]; CD=144; CF=160
sQ=[sT+9,sT+10]; sOm=[sT+11,sT+12]; sOt=[sT+13,sT+14]; sOSC=sT+15; sFB=sT+16
NINF="0xff800000"
def att_pro():
    t=vT; A=sT+7; B=sT+8; C=sT+17; sF=sT
    wo_pre1()
    att_ids()
    flag_addr(aFl,t,1,A,B,C)
    p(f"""s_lshl_b32 s{sF}, s{sG}, 11
    s_lshl_b32 s{A}, s{sHF}, 4
    s_add_u32 s{sF}, s{sF}, s{A}
    s_add_u32 s{sF}, s{sF}, {FL}
    buffer_load_dword v{t+10}, v{aFl}, {S4(sWS)}, s{sF} offen sc1
    s_mov_b32 s{sK1024}, 1024""")
    kv_addr(aLin,aTl,t)
    p(f"""v_add_u32 v{aKm}, {L_KV}, v{aLin}
    v_and_b32 v{t}, 31, v0
    v_lshrrev_b32 v{t+1}, 5, v0
    v_xor_b32 v{t+2}, s{sHO}, v{t+1}
    v_lshlrev_b32 v{t+2}, 3, v{t+2}
    v_lshl_add_u32 v{t+2}, v{t}, 4, v{t+2}
    v_add_u32 v{aKt}, {L_KV+2048}, v{t+2}
    v_mul_u32_u24 v{t+2}, 320, v{t+1}
    v_lshl_add_u32 v{t+2}, v{t}, 4, v{t+2}
    v_add_u32 v{aV}, {L_KV+3072}, v{t+2}
    v_lshlrev_b32 v{t+2}, 2, v{t+1}
    v_sub_u32 v{t+2}, v{t}, v{t+2}
    v_mov_b32 v{t+3}, {NINF}""")
    for i in range(16):
        m=C+1+2*(i%2)+((C+1)%2)
        ri=8*(i>>2)+(i&3)
        p(f"v_cmp_le_i32 s[{m}:{m+1}], {ri}, v{t+2}")
        if i>0:
            m2=C+1+2*((i-1)%2)+((C+1)%2)
            if i==1: p("s_nop 0")
            p(f"v_cndmask_b32 v{CD+i-1}, v{t+3}, 0, s[{m2}:{m2+1}]\nv_cndmask_b32 v{CF+i-1}, 0, v{t+3}, s[{m2}:{m2+1}]")
    p(f"""s_nop 0
    v_cndmask_b32 v{CD+15}, v{t+3}, 0, s[{m}:{m+1}]
    v_cndmask_b32 v{CF+15}, 0, v{t+3}, s[{m}:{m+1}]
    v_cmp_eq_u32 s[{m}:{m+1}], 20, v{t}
    v_cmp_eq_u32 vcc, 24, v{t}
    v_mov_b32 v{t+4}, 0x3f803f80
    s_or_b64 vcc, vcc, s[{m}:{m+1}]""")
    for b_ in range(2):
        for mm in range(2):
            for r in range(4): p(f"v_cndmask_b32 v{VV[b_][mm]+r}, 0, v{t+4}, vcc")
    for q in range(2): p(f"v_mov_b32 v{QT[q]}, 0\nv_mov_b32 v{QT[q]+1}, 0")
    p(f"""v_bfe_u32 v{t+2}, v0, 4, 1
    v_mul_u32_u24 v{t+2}, 20480, v{t+2}
    v_lshl_add_u32 v{t+2}, v{t+1}, 8, v{t+2}
    v_and_b32 v{t+3}, 15, v0
    v_lshl_add_u32 v{aO}, v{t+3}, 4, v{t+2}
    s_cmp_lg_u32 s{sHF}, s{sHH}
    s_cselect_b32 s{sOSC}, 1, s{sMODE}
    s_mov_b32 s{sFB}, 0""")
    for q in range(2):
        if q==0: p(f"s_add_u32 s{A}, s{sT0}, 7\ns_sub_u32 s{A}, s{A}, s{sWAVE}")
        else: p(f"s_add_u32 s{A}, s{sT0}, s{sWAVE}")
        p(f"""s_mul_i32 s{sQ[q]}, s{A}, 2560
        s_mul_i32 s{B}, s{sPH}, {64*2560}
        s_add_u32 s{sQ[q]}, s{sQ[q]}, s{B}
        s_mul_i32 s{A}, s{A}, 40960
        s_mul_i32 s{B}, s{sPH}, 1280
        s_add_u32 s{A}, s{A}, s{B}
        s_add_u32 s{A}, s{A}, {OB}
        s_mul_i32 s{B}, s{sHO}, 768
        s_add_u32 s{sOm[q]}, s{A}, s{B}
        s_lshl_b32 s{B}, s{sHO}, 3
        s_add_u32 s{sOt[q]}, s{A}, s{B}""")
    sK=C+1; sV=C+2; sL=C+3
    p(f"""s_lshl_b32 s{A}, s{sWAVE}, 1
    s_add_u32 s{A}, s{A}, s{sT0}
    s_mul_i32 s{sK}, s{A}, 2560
    s_mul_i32 s{sV}, s{A}, 1280
    s_mul_i32 s{A}, s{sPH}, {64*2560}
    s_add_u32 s{sK}, s{sK}, s{A}
    s_add_u32 s{sK}, s{sK}, {KB}
    s_mul_i32 s{A}, s{sHD}, 81920
    s_add_u32 s{sV}, s{sV}, s{A}
    s_add_u32 s{sV}, s{sV}, {VB}
    s_mul_i32 s{sL}, s{sWAVE}, 5632
    s_add_u32 s{sL}, s{sL}, {L_KV+4*5632}
    s_mul_i32 s{A}, s{sHO}, 1536
    v_add_u32 v{t+2}, s{A}, v{aLin}
    s_lshl_b32 s{A}, s{sHO}, 3
    v_add_u32 v{t+3}, s{A}, v{aLin}""")
    p("s_waitcnt vmcnt(1)")
    wo_pre2()
    flag_poll(aFl,t+10,sF,C,first=False)
    STAMP('fseen')
    kv_dma(aLin,aTl,sK,sV,sL,A,B)
    for q in range(2): p(f"buffer_load_dwordx4 {vr(QM[q],4)}, v{t+2}, {S4(sWS)}, s{sQ[q]} offen sc1")
    p(f"s_mov_b64 exec, s[{sLO}:{sLO+1}]")
    for q in range(2): p(f"buffer_load_dwordx2 {vr(QT[q],2)}, v{t+3}, {S4(sWS)}, s{sQ[q]} offen offset:1024 sc1")
    p(f"""s_mov_b64 exec, 1
    v_mov_b32 v{t}, {F_G1}
    v_mov_b32 v{t+1}, 1
    s_waitcnt vmcnt(4)
    ds_add_u32 v{t}, v{t+1}
    s_mov_b64 exec, -1
    v_mov_b32 v{aFl}, {F_G1}""")
    lds_wait(aFl,t+5,C,'gt',4,0)
    p(f"s_waitcnt vmcnt(0)")
    STAMP('kv')
    p(f"""s_cmp_eq_u32 s{sWAVE}, 1
    s_cbranch_scc1 L_av1
    s_cmp_eq_u32 s{sWAVE}, 2
    s_cbranch_scc1 L_av2
    s_cmp_eq_u32 s{sWAVE}, 3
    s_cbranch_scc1 L_av3""")
def kreads(n,b_):
    o=(n>>1)*5632
    return [f"ds_read_b128 {vr(KM[b_],4)}, v{aKm} offset:{o+(n&1)*1024}", f"ds_read_b64 {vr(KT[b_],2)}, v{aKt} offset:{o+(n&1)*512}"]
def vreads(n,b_):
    o=(n>>1)*5632+(n&1)*1280
    return [f"s_mov_b64 exec, s[{sLO+2}:{sLO+3}]", f"ds_read_b128 {vr(VV[b_][0],4)}, v{aV} offset:{o}", f"ds_read_b128 {vr(VV[b_][1],4)}, v{aV} offset:{o+640}", "s_mov_b64 exec, -1"]
def att_variant(w):
    U=[]
    for n in range(15-w,8+w,-1): U.append((0,n))
    for n in range(8+w,6-w,-1): U+= [(0,n),(1,n)]
    for n in range(6-w,w-1,-1): U.append((1,n))
    assert len(U)==18
    diag=[15-w,8+w]
    tiles=[]; tau=[]
    for q,n in U:
        if not tiles or tiles[-1]!=n: tiles.append(n)
        tau.append(len(tiles)-1)
    first=[tau.index(i) for i in range(len(tiles))]
    started=[0,0]
    def QK(u):
        q,n=U[u]; b_=tau[u]&1; S=vr(SS[u&1],16)
        c=vr(CD,16) if n==diag[q] else (vr(CF,16) if n==diag[q]-8 else "0")
        return [f"v_mfma_f32_32x32x16_bf16 {S}, {vr(KM[b_],4)}, {vr(QM[q],4)}, {c}", f"v_mfma_f32_32x32x8_bf16 {S}, {vr(KT[b_],2)}, {vr(QT[q],2)}, {S}"]
    def PV(u,m):
        q,n=U[u]; O=vr(OO[q],16)
        c=O if started[q] else "0"; started[q]=1
        return f"v_mfma_f32_32x32x16_bf16 {O}, {vr(VV[tau[u]&1][m],4)}, {vr(PP+4*m,4)}, {c}"
    p(f"L_av{w}:")
    for i,f in enumerate(first):
        if f<=1:
            for x in kreads(tiles[i],i&1): p(x)
    for x in vreads(tiles[0],0): p(x)
    p("s_waitcnt lgkmcnt(0)")
    for x in QK(0): p(x)
    p("s_nop 7\ns_nop 3")
    pend=False
    H=first[tiles.index(7)]
    for u in range(18):
        S=SS[u&1]
        e=lambda i: p(f"v_exp_f32 v{S+i}, v{S+i}")
        c=lambda k: p(f"v_cvt_pk_bf16_f32 v{PP+k}, v{S+2*k}, v{S+2*k+1}")
        kr=[x for i,f in enumerate(first) if f==u+2 for x in kreads(tiles[i],i&1)]
        vr_=[x for i,f in enumerate(first) if f==u+1 for x in vreads(tiles[i],i&1)]
        late=(u+2==H)
        STAMP('u%d'%u)
        e(0); e(1)
        if u>0: p(PV(u-1,1))
        e(2)
        if not late:
            for x in kr: p(x)
        if u+3==H: p(f"ds_read_b32 v{vT}, v{aFl} offset:{F_G2-F_G1}")
        e(3); c(0); c(1)
        if pend: p("s_waitcnt lgkmcnt(0)") if not (kr and not late) and u+3!=H else p(f"s_waitcnt lgkmcnt({(len(kr) if not late else 0)+(1 if u+3==H else 0)})")
        qk=QK(u+1) if u<17 else [None,None]
        if qk[0]: p(qk[0])
        e(4)
        if late:
            p(f"v_cmp_gt_u32 vcc, 2, v{vT}")
        e(5)
        if late:
            p(f"s_cbranch_vccnz L_g2w{w}\nL_g2r{w}:")
            for x in kr: p(x)
        for x in vr_: p(x)
        e(6); e(7); c(2); c(3)
        if qk[1]: p(qk[1])
        e(8); e(9); e(10); e(11)
        p(PV(u,0))
        c(4); c(5); e(12); e(13); e(14); e(15); c(6); c(7)
        pend=bool(kr or vr_ or u+3==H)
        if u==H-1:
            p(f"s_cmp_eq_u32 s{sT0}, 0\ns_cbranch_scc1 L_ex{w}")
            exq=PV(u,1)
    p("s_nop 1")
    p(PV(17,1))
    p("s_branch L_afin")
    p(f"L_g2w{w}:")
    p(f"v_mov_b32 v{vT+1}, {F_G2}")
    lds_wait(vT+1,vT,sT+17,'gt',2,1)
    p(f"s_branch L_g2r{w}\nL_ex{w}:\n{exq}\ns_branch L_afin")
def att_fin():
    t=vT; A=sT+7
    p("L_afin:")
    STAMP('aend')
    p(f"ds_read_b32 v{t+9}, v{aFl} offset:{F_H2-F_G1}")
    p(f"s_mov_b32 s{A}, {hex(f2u(2.0**-40))}\ns_mov_b32 s{A+1}, {hex(f2u(2.0**40)-f2u(2.0**-40))}")
    for q in range(2):
        O=OO[q]
        p(f"""v_cndmask_b32 v{t}, v{O+8}, v{O+12}, s[{sLO}:{sLO+1}]
        v_pk_add_f32 v[{t+2}:{t+3}], v[{O}:{O+1}], v[{O+2}:{O+3}]
        v_rcp_f32 v{t+1}, v{t}
        v_pk_add_f32 v[{t+4}:{t+5}], v[{O+4}:{O+5}], v[{O+6}:{O+7}]
        v_pk_add_f32 v[{t+6}:{t+7}], v[{O+8}:{O+9}], v[{O+10}:{O+11}]
        v_subrev_u32 v{t}, s{A}, v{t}
        v_pk_add_f32 v[{t+2}:{t+3}], v[{t+2}:{t+3}], v[{t+4}:{t+5}]
        v_cmp_lt_u32 s[{A+11}:{A+12}], s{A+1}, v{t}
        v_pk_add_f32 v[{t+2}:{t+3}], v[{t+2}:{t+3}], v[{t+6}:{t+7}]
        v_add_f32 v{t+2}, v{t+2}, v{t+3}""")
        p(f"v_cmp_class_f32 vcc, v{t+2}, v{aCLS}")
        for k in range(6): p(f"v_pk_mul_f32 {vr(O+2*k,2)}, {vr(O+2*k,2)}, {vr(t,2)} op_sel:[0,1] op_sel_hi:[1,1]")
        p(f"""s_or_b64 vcc, vcc, s[{A+11}:{A+12}]
        s_cbranch_scc1 L_afb{q}
        L_afr{q}:""")
        for k in range(6): p(f"v_cvt_pk_bf16_f32 v{O+k}, v{O+2*k}, v{O+2*k+1}")
        if q==0:
            p(f"""s_waitcnt lgkmcnt(0)
            v_cmp_eq_u32 vcc, 0, v{t+9}
            s_cmp_lg_u32 s{sOSC}, 0
            s_cbranch_vccnz L_h2w
            L_h2r:""")
        else: p(f"s_cmp_lg_u32 s{sOSC}, 0")
        st=[f"buffer_store_dwordx4 {vr(O,4)}, v{aO}, {S4(sWS)}, s{sOm[q]} offen", f"s_mov_b64 exec, s[{sLO}:{sLO+1}]",
            f"buffer_store_dwordx2 {vr(O+4,2)}, v{aO}, {S4(sWS)}, s{sOt[q]} offen offset:512", "s_mov_b64 exec, -1"]
        p(f"s_cbranch_scc1 L_osc{q}")
        for x in st: p(x)
        p(f"L_osr{q}:")
        COLD.append(f"L_osc{q}:\n"+"\n".join(x+(" sc1" if x.startswith("buffer") else "") for x in st)+f"\ns_branch L_osr{q}")
    p(f"""v_mov_b32 v{t}, {F_DONE}
    v_mov_b32 v{t+1}, 1
    s_mov_b64 exec, 1
    ds_add_u32 v{t}, v{t+1}
    s_mov_b64 exec, -1""")
    STAMP('ost')
aCLS=27
COLD=[]
def att_cold():
    t=vT; A=sT+7; B=sT+8; N=sT+17; J=sT+18; CN=sT+19; PA=sT+20
    p(f"L_h2w:\nv_mov_b32 v{t+8}, {F_H2}")
    lds_wait(t+8,t+9,A+11,'eq',0,2)
    p(f"s_cmp_lg_u32 s{sOSC}, 0\ns_branch L_h2r")
    for q in range(2): p(f"L_afb{q}:\ns_cmp_lg_u32 s{sFB}, 0\ns_cbranch_scc1 L_afr{q}\ns_branch L_afb")
    p(f"L_afb:\ns_mov_b32 s{sFB}, 1\ns_waitcnt lgkmcnt(0)")
    S=SS[0]; MX=t+10; xa=t+11
    for q in range(2):
        lp=p.lab("fb"); nd=p.lab("fbnd"); nf=p.lab("fbnf"); p2=p.lab("fbp2"); nx=p.lab("fbnx"); ps=p.lab("fbps"); dn=p.lab("fbdn")
        for r in range(16): p(f"v_mov_b32 v{OO[q]+r}, 0")
        p(f"""v_mov_b32 v{MX}, {NINF}
        s_mov_b32 s{PA}, 0
        {ps}:""")
        if q==0: p(f"s_sub_u32 s{N}, 15, s{sWAVE}")
        else: p(f"s_add_u32 s{N}, 8, s{sWAVE}")
        p(f"""s_sub_u32 s{CN}, s{N}, 7
        s_cmp_eq_u32 s{sT0}, 0
        s_cselect_b32 s{CN}, s{CN}, 9
        s_mov_b32 s{J}, 0
        {lp}:
        s_lshr_b32 s{A}, s{N}, 1
        s_mul_i32 s{A}, s{A}, 5632
        s_and_b32 s{B}, s{N}, 1
        s_lshl_b32 s{sT+21}, s{B}, 10
        s_add_u32 s{sT+21}, s{sT+21}, s{A}
        v_add_u32 v{xa}, s{sT+21}, v{aKm}
        s_lshl_b32 s{sT+21}, s{B}, 9
        s_add_u32 s{sT+21}, s{sT+21}, s{A}
        v_add_u32 v{xa+1}, s{sT+21}, v{aKt}
        s_mul_i32 s{B}, s{B}, 1280
        s_add_u32 s{A}, s{A}, s{B}
        v_add_u32 v{xa+2}, s{A}, v{aV}
        ds_read_b128 {vr(KM[0],4)}, v{xa}
        ds_read_b64 {vr(KT[0],2)}, v{xa+1}
        s_mov_b64 exec, s[{sLO+2}:{sLO+3}]
        ds_read_b128 {vr(VV[0][0],4)}, v{xa+2}
        ds_read_b128 {vr(VV[0][1],4)}, v{xa+2} offset:640
        s_mov_b64 exec, -1
        s_waitcnt lgkmcnt(0)
        v_mfma_f32_32x32x16_bf16 {vr(S,16)}, {vr(KM[0],4)}, {vr(QM[q],4)}, 0
        v_mfma_f32_32x32x8_bf16 {vr(S,16)}, {vr(KT[0],2)}, {vr(QT[q],2)}, {vr(S,16)}
        v_mov_b32 v{xa}, {NINF}
        s_nop 11
        s_cmp_lg_u32 s{J}, 0
        s_cbranch_scc1 {nd}""")
        for r in range(16): p(f"v_cmp_eq_u32 vcc, 0, v{CD+r}\ns_nop 1\nv_cndmask_b32 v{S+r}, v{xa}, v{S+r}, vcc")
        p(f"{nd}:\ns_cmp_lg_u32 s{J}, 8\ns_cbranch_scc1 {nf}")
        for r in range(16): p(f"v_cmp_eq_u32 vcc, 0, v{CF+r}\ns_nop 1\nv_cndmask_b32 v{S+r}, v{xa}, v{S+r}, vcc")
        p(f"{nf}:\ns_cmp_lg_u32 s{PA}, 0\ns_cbranch_scc1 {p2}")
        for r in range(0,16,2): p(f"v_max3_f32 v{MX}, v{S+r}, v{S+r+1}, v{MX}")
        p(f"s_branch {nx}\n{p2}:")
        for r in range(16): p(f"v_sub_f32 v{S+r}, v{S+r}, v{MX}")
        for r in range(16): p(f"v_exp_f32 v{S+r}, v{S+r}")
        p("s_nop 0")
        for k in range(8): p(f"v_cvt_pk_bf16_f32 v{PP+k}, v{S+2*k}, v{S+2*k+1}")
        p("s_nop 1")
        for m in range(2): p(f"v_mfma_f32_32x32x16_bf16 {vr(OO[q],16)}, {vr(VV[0][m],4)}, {vr(PP+4*m,4)}, {vr(OO[q],16)}")
        p(f"""s_nop 11
        {nx}:
        s_sub_u32 s{N}, s{N}, 1
        s_add_u32 s{J}, s{J}, 1
        s_cmp_lt_u32 s{J}, s{CN}
        s_cbranch_scc1 {lp}
        s_cmp_lg_u32 s{PA}, 0
        s_cbranch_scc1 {dn}
        v_mov_b32 v{xa}, v{MX}
        s_mov_b32 s{PA}, 1
        s_nop 0
        v_permlane32_swap_b32 v{xa}, v{MX}
        s_nop 1
        v_max_f32 v{MX}, v{MX}, v{xa}
        s_branch {ps}
        {dn}:""")
    p("s_branch L_afin")

BF=28; AF=108; WACC=200; XR=176; WR_=186; aX2=196; aPS=197; aAL=198; aAR=199; SW=220; SELF=221; aPR=222; aKY=223; aCD=224
HP=40; HF_=50; LP=70; OP=80
sRT=sT+1; sOL=sT+2; sOR=sT+5; sXO=sT+11; sPSO=sT+12; sRETRY=sT+13; sPRB=sT+14
def acc_init():
    for k in range(10): p(f"v_lshlrev_b32 v{WACC+2*k}, 16, v{XR+k}\nv_and_b32 v{WACC+2*k+1}, 0xffff0000, v{XR+k}")
def wo_pre1():
    t=vT; A=sT+7; B=sT+8
    wo_ids()
    p(f"""v_and_b32 v{t}, 15, v0
    v_lshrrev_b32 v{t+1}, 4, v0
    v_mul_u32_u24 v{t+2}, 40, v{t+1}
    v_mov_b32 v{t+3}, 1280
    v_mad_u32_u24 v{aX2}, v{t}, v{t+3}, v{t+2}
    s_lshl_b32 s{A}, s{sBLK}, 2
    s_add_u32 s{A}, s{A}, s{sWAVE}
    s_mul_i32 s{A}, s{A}, 20480
    s_mul_i32 s{B}, s{sJ}, 160
    s_add_u32 s{A}, s{A}, s{B}
    buffer_load_dwordx4 {vr(XR,4)}, v{aX2}, {S4(sX)}, s{A} offen
    buffer_load_dwordx4 {vr(XR+4,4)}, v{aX2}, {S4(sX)}, s{A} offen offset:16
    buffer_load_dwordx2 {vr(XR+8,2)}, v{aX2}, {S4(sX)}, s{A} offen offset:32
    buffer_load_dwordx4 {vr(WR_,4)}, v{t+2}, {S4(sWR)}, s{B} offen
    buffer_load_dwordx4 {vr(WR_+4,4)}, v{t+2}, {S4(sWR)}, s{B} offen offset:16
    buffer_load_dwordx2 {vr(WR_+8,2)}, v{t+2}, {S4(sWR)}, s{B} offen offset:32
    v_lshlrev_b32 v{aPS}, 7, v{t}
    v_lshl_add_u32 v{aPS}, v{t+1}, 5, v{aPS}
    v_and_b32 v{t+2}, 3, v0
    v_cmp_eq_u32 vcc, v{t+1}, v{t+2}
    s_mul_i32 s{A}, s{sHH}, 51200
    s_add_u32 s{B}, s{A}, {L_WO}
    v_cndmask_b32 v{SELF}, 0, 1.0, vcc
    v_lshl_add_u32 v{aAL}, v0, 4, s{B}
    s_sub_u32 s{B}, {L_WO+51200}, s{A}
    v_lshl_add_u32 v{aAR}, v0, 4, s{B}
    v_and_b32 v{t+2}, 7, v0
    v_mul_u32_u24 v{t+2}, 1280, v{t+2}
    v_bfe_u32 v{t+3}, v0, 3, 1
    v_lshl_add_u32 v{aPR}, v{t+3}, 7, v{t+2}""")
def wo_pre2():
    acc_init()
    p(f"v_mov_b32 v{SW}, 0\nv_mov_b32 v{vT}, 0x3f803f80\ns_nop 0")
    for k in range(10): p(f"v_dot2_f32_bf16 v{SW}, v{WR_+k}, v{vT}, v{SW}")
def probe(soff,cnt,first=True):
    t=vT
    lp=p.lab("pb"); ok=p.lab("pbok"); md=p.lab("pbm")
    p(f"s_mov_b32 s{cnt}, {SPIN}")
    if not first: p(f"s_branch {md}")
    p(f"""{lp}:
    buffer_load_dwordx3 v[{t+4}:{t+6}], v{aPR}, {S4(sWS)}, s{soff} offen offset:512 sc1""")
    if not first: p(f"{md}:")
    p(f"""s_waitcnt vmcnt(0)
    v_max_u32 v{t+4}, v{t+4}, v{t+6}
    v_cmp_eq_u32 vcc, -1, v{t+4}
    s_nop 0
    s_cbranch_vccz {ok}""")
    spin(cnt,lp,ok)
    p(f"s_branch {lp}\n{ok}:")
def wo_main():
    t=vT; A=sT+7; B=sT+8; C=sT+17; MXS=t+8
    wo_ids()
    p(f"""s_lshl_b32 s{sRT}, s{sBLK}, 2
    s_add_u32 s{sRT}, s{sRT}, s{sWAVE}
    s_mul_i32 s{A}, s{sRT}, 20480
    s_mul_i32 s{B}, s{sJ}, 160
    s_add_u32 s{sXO}, s{A}, s{B}
    s_add_u32 s{A}, s{A}, {OB}
    s_mul_i32 s{B}, s{sHH}, 10240
    s_add_u32 s{sOL}, s{A}, s{B}
    s_add_u32 s{sOL+1}, s{sOL}, 4096
    s_add_u32 s{sOL+2}, s{sOL}, 8192
    s_add_u32 s{A}, s{A}, 10240
    s_sub_u32 s{sOR}, s{A}, s{B}
    s_lshl_b32 s{sPSO}, s{sRT}, 11
    s_add_u32 s{sPSO}, s{sPSO}, {PS}
    s_mov_b32 s{sRETRY}, {1<<16}
    v_mov_b32 v{t}, {F_WOR}""")
    lds_wait(t,t+1,C,'gt',2,0)
    p(f"""s_add_u32 s{sOR+1}, s{sOR}, 4096
    s_add_u32 s{sPRB}, s{sOR}, 8192
    L_wo:""")
    STAMP('wor')
    sROFF=[sOR,sOR+1,sPRB]
    def aread(s_,t_): return f"ds_read_b128 {vr(AF+20*(s_%3)+4*t_,4)}, v{aAL if s_<10 else aAR} offset:{(s_%10)*5120+t_*1024}"
    def bload(s_):
        so=(sOL+(s_%10)//4) if s_<10 else sROFF[(s_%10)//4]
        return f"buffer_load_dwordx4 {vr(BF+4*s_,4)}, v{aLin}, {S4(sWS)}, s{so} offen offset:{(s_%10%4)*1024} sc1"
    for s_ in range(2):
        for t_ in range(5): p(aread(s_,t_))
    p(f"v_mov_b32 v{MXS}, 0")
    probe(sOL,C)
    STAMP('pl')
    for s_ in range(10): p(bload(s_))
    p(f"buffer_load_dwordx3 v[{t+4}:{t+6}], v{aPR}, {S4(sWS)}, s{sOR} offen offset:512 sc1")
    for s_ in range(20):
        if s_==10:
            STAMP('loc')
            probe(sOR,C,first=False)
            STAMP('pr')
            for k in range(10,20): p(bload(k))
        p(f"s_waitcnt vmcnt({(10-s_) if s_<10 else (19-s_)}) lgkmcnt({5 if s_<19 else 0})")
        for t_ in range(5):
            a=vr(WACC+4*t_,4)
            p(f"v_mfma_f32_16x16x32_bf16 {a}, {vr(AF+20*(s_%3)+4*t_,4)}, {vr(BF+4*s_,4)}, {a}")
            if s_+2<20: p(aread(s_+2,t_))
            if t_==0: p(f"v_max3_u32 v{MXS}, v{BF+4*s_}, v{BF+4*s_+2}, v{MXS}")
    p(f"""v_cmp_eq_u32 vcc, -1, v{MXS}
    v_mov_b32 v{t}, 0x3f803f80
    v_mov_b32 v{t+2}, 0
    v_mov_b32 v{t+3}, 0
    v_mov_b32 v{t+4}, 0
    s_cbranch_vccnz L_woredo
    L_wook:""")
    STAMP('wend')
    COLD.append(f"L_woredo:\ns_sub_u32 s{sRETRY}, s{sRETRY}, 1\ns_cbranch_scc1 L_wook\ns_nop 7")
    q=P();
    COLD.append("\n".join(f"v_lshlrev_b32 v{WACC+2*k}, 16, v{XR+k}\nv_and_b32 v{WACC+2*k+1}, 0xffff0000, v{XR+k}" for k in range(10))+"\ns_branch L_wo")
    for k in range(10): p(f"v_cvt_pk_bf16_f32 v{HP+k}, v{WACC+2*k}, v{WACC+2*k+1}")
    for k in range(10):
        p(f"""v_dot2_f32_bf16 v{t+2}, v{HP+k}, v{t}, v{t+2}
        v_dot2_f32_bf16 v{t+3}, v{HP+k}, v{HP+k}, v{t+3}
        v_dot2_f32_bf16 v{t+4}, v{HP+k}, v{WR_+k}, v{t+4}""")
    p(f"""v_mov_b32 v{t+5}, v{SW}
    s_lshl_b32 s{A}, s{sJ}, 2
    s_add_u32 s{A}, s{A}, s{sPSO}
    v_permlane32_swap_b32 v{t+2}, v{t+3}
    v_permlane32_swap_b32 v{t+4}, v{t+5}
    s_nop 0
    v_add_f32 v{t+2}, v{t+2}, v{t+3}
    v_add_f32 v{t+4}, v{t+4}, v{t+5}
    s_cmp_lg_u32 s{sMODE}, 0
    s_nop 0
    v_permlane16_swap_b32 v{t+2}, v{t+4}
    s_nop 0
    v_add_f32 v{t+2}, v{t+2}, v{t+4}
    s_cbranch_scc1 L_pssc
    buffer_store_dword v{t+2}, v{aPS}, {S4(sWS)}, s{A} offen
    L_psr:""")
    COLD.append(f"L_pssc:\nbuffer_store_dword v{t+2}, v{aPS}, {S4(sWS)}, s{A} offen sc1\ns_branch L_psr")
    STAMP('ps')
    G=t+10
    lp=p.lab("ps"); ok=p.lab("psok"); md=p.lab("psm")
    ld=f"""buffer_load_dwordx4 {vr(G,4)}, v{aPS}, {S4(sWS)}, s{sPSO} offen sc1
    buffer_load_dwordx4 {vr(G+4,4)}, v{aPS}, {S4(sWS)}, s{sPSO} offen offset:16 sc1"""
    p(ld)
    for k in range(10): p(f"v_lshlrev_b32 v{HF_+2*k}, 16, v{HP+k}\nv_and_b32 v{HF_+2*k+1}, 0xffff0000, v{HP+k}")
    if CFG['dbg']:
        p(f"s_add_u32 s{A}, s{sXO}, {HB}")
        for o,n in ((0,4),(4,4),(8,2)): p(f"buffer_store_dwordx{n} {vr(HP+o,n)}, v{aX2}, {S4(sWS)}, s{A} offen offset:{4*o}")
    p(f"""s_lshl_b32 s{A}, s{sRT}, 4
    s_sub_u32 s{A}, 2047, s{A}
    v_and_b32 v{t}, 15, v0
    v_sub_u32 v{t+9}, s{A}, v{t}
    v_lshlrev_b32 v{t+9}, 3, v{t+9}
    s_lshl_b32 s{A}, s{sWAVE}, 6
    s_add_u32 s{A}, s{A}, {L_KEYS}
    v_lshl_add_u32 v{aKY}, v{t}, 2, s{A}
    v_and_b32 v{t}, 48, v0
    v_lshlrev_b32 v{t}, 2, v{t}
    v_add_u32 v{t+8}, {L_KEYS}, v{t}
    s_mov_b32 s{C}, {SPIN}
    s_branch {md}
    {lp}:
    {ld}
    {md}:
    s_waitcnt vmcnt(0)
    v_max3_u32 v{t}, v{G}, v{G+1}, v{G+2}
    v_max3_u32 v{t+1}, v{G+3}, v{G+4}, v{G+5}
    v_max3_u32 v{t}, v{G+6}, v{G+7}, v{t}
    v_max_u32 v{t}, v{t}, v{t+1}
    v_cmp_eq_u32 vcc, -1, v{t}
    v_pk_add_f32 {vr(t+2,2)}, {vr(G,2)}, {vr(G+2,2)}
    s_cbranch_vccz {ok}""")
    spin(C,lp,ok)
    p(f"""s_branch {lp}
    {ok}:""")
    STAMP('psr')
    M=t+4
    p(f"""v_pk_add_f32 {vr(t+4,2)}, {vr(G+4,2)}, {vr(G+6,2)}
    v_pk_add_f32 {vr(t+2,2)}, {vr(t+2,2)}, {vr(t+4,2)}
    v_add_f32 v{t+2}, v{t+2}, v{t+3}
    s_nop 1
    v_mfma_f32_16x16x4_f32 {vr(M,4)}, v{SELF}, v{t+2}, 0
    s_nop 9
    v_mul_f32 v{M}, {1/640!r}, v{M}
    v_mul_f32 v{M+2}, {1/640!r}, v{M+2}
    v_fma_f32 v{M+2}, -v{M}, v{M}, v{M+2}
    v_max_f32 v{M+2}, 0, v{M+2}""")
    bf16r(M+2,M+2)
    p(f"v_add_f32 v{M+2}, 0x3727c5ac, v{M+2}")
    bf16r(M+2,M+2)
    p(f"v_sqrt_f32 v{M+2}, v{M+2}")
    bf16r(M,M)
    bf16r(M+2,M+2)
    RS=t+2
    p(f"""v_rcp_f32 v{RS}, v{M+2}
    v_fma_f32 v{M+1}, -v{M}, v{M+3}, v{M+1}
    v_mul_f32 v{M+1}, v{M+1}, v{RS}
    v_cvt_pk_bf16_f32 v{M+1}, v{M+1}, v{M+1}
    v_mul_f32 v{RS+1}, -v{M}, v{RS}
    v_ashrrev_i32 v{M+2}, 31, v{M+1}
    v_or_b32 v{M+2}, 0x80000000, v{M+2}
    v_xor_b32 v{M+1}, v{M+1}, v{M+2}
    v_and_b32 v{M+1}, 0xffff0000, v{M+1}
    v_or_b32 v{KEY}, v{M+1}, v{t+9}
    ds_write_b32 v{aKY}, v{KEY}""")
    for k in range(10): p(f"v_pk_fma_f32 {vr(WACC+2*k,2)}, {vr(HF_+2*k,2)}, {vr(RS,2)}, {vr(RS,2)} op_sel:[0,0,1] op_sel_hi:[1,0,1]")
    K16=AF
    lp=p.lab("ky"); ok=p.lab("kyok")
    p(f"s_mov_b32 s{C}, {SPIN*4}\n{lp}:")
    for i in range(4): p(f"ds_read_b128 {vr(K16+4*i,4)}, v{t+8} offset:{16*i}")
    p("s_waitcnt lgkmcnt(0)")
    p(f"v_max3_u32 v{t}, v{K16}, v{K16+1}, v{K16+2}")
    for i in range(3,15,2): p(f"v_max3_u32 v{t}, v{K16+i}, v{K16+i+1}, v{t}")
    p(f"""v_max_u32 v{t}, v{t}, v{K16+15}
    v_cmp_eq_u32 vcc, -1, v{t}
    v_mov_b32 v{t}, 0
    s_cbranch_vccz {ok}""")
    spin(C,lp,ok)
    p(f"s_branch {lp}\n{ok}:")
    STAMP('keys')
    m0_=sT+18
    for i in range(18):
        if i<16: p(f"v_cmp_gt_u32 s[{m0_+2*(i%2)}:{m0_+2*(i%2)+1}], v{K16+i}, v{KEY}") if False else None
    MK=[sT+14,sT+16,sT+18]
    for i in range(18):
        if i<16: m=MK[i%3]; p(f"v_cmp_gt_u32 s[{m}:{m+1}], v{K16+i}, v{KEY}")
        elif i==16: p("s_nop 0")
        if i>=2: m=MK[(i-2)%3]; p(f"v_addc_co_u32 v{t}, vcc, 0, v{t}, s[{m}:{m+1}]")
    p(f"""v_mov_b32 v{t+1}, v{t}
    v_cvt_pk_bf16_f32 v{LP}, v{WACC}, v{WACC+1}
    v_cvt_pk_bf16_f32 v{LP+1}, v{WACC+2}, v{WACC+3}
    v_permlane32_swap_b32 v{t}, v{t+1}
    v_cvt_pk_bf16_f32 v{LP+2}, v{WACC+4}, v{WACC+5}
    v_add_u32 v{t}, v{t}, v{t+1}
    v_mov_b32 v{t+1}, v{t}
    v_cvt_pk_bf16_f32 v{LP+3}, v{WACC+6}, v{WACC+7}
    v_cvt_pk_bf16_f32 v{LP+4}, v{WACC+8}, v{WACC+9}
    v_permlane16_swap_b32 v{t}, v{t+1}
    v_cvt_pk_bf16_f32 v{LP+5}, v{WACC+10}, v{WACC+11}
    v_add_u32 v{t}, v{t}, v{t+1}
    v_cmp_gt_u32 s[{sCAND}:{sCAND+1}], 8, v{t}
    v_or_b32 v{KEY}, v{KEY}, v{t}
    v_lshlrev_b32 v{t+1}, 2, v{t}
    s_lshl_b32 s{A}, s{sBLK}, 7
    s_add_u32 s{A}, s{A}, {CA}
    s_cmp_eq_u32 s{sJ}, 0
    s_cselect_b32 s{B}, 0xffff, 0
    s_and_b32 exec_lo, s{sCAND}, s{B}
    s_mov_b32 exec_hi, 0
    s_cbranch_scc0 L_noca
    buffer_store_dword v{KEY}, v{t+1}, {S4(sWS)}, s{A} offen sc1
    L_noca:
    s_mov_b64 exec, -1""")
    STAMP('ca')
    for k in range(6,10): p(f"v_cvt_pk_bf16_f32 v{LP+k}, v{WACC+2*k}, v{WACC+2*k+1}")
    p(f"""v_lshrrev_b32 v{t+1}, 4, v0
    v_mul_u32_u24 v{t+1}, 40, v{t+1}
    v_mul_u32_u24 v{t}, 2560, v{t}
    v_add_u32 v{aCD}, v{t}, v{t+1}
    s_mul_i32 s{A}, s{sBLK}, 20480
    s_mul_i32 s{B}, s{sJ}, 160
    s_add_u32 s{A}, s{A}, s{B}
    s_add_u32 s{A}, s{A}, {CAND}
    s_and_b64 exec, s[{sCAND}:{sCAND+1}], -1
    s_cbranch_scc0 L_nocd""")
    for base,off in ((LP,0),(HP,1280)):
        for o,n in ((0,4),(4,4),(8,2)): p(f"buffer_store_dwordx{n} {vr(base+o,n)}, v{aCD}, {S4(sWS)}, s{A} offen offset:{off+4*o} sc1")
    p("L_nocd:\ns_mov_b64 exec, -1")
    for k in range(10): p(f"v_pk_add_f32 {vr(WACC+2*k,2)}, {vr(WACC+2*k,2)}, {vr(HF_+2*k,2)}")
    for k in range(10): p(f"v_cvt_pk_bf16_f32 v{OP+k}, v{WACC+2*k}, v{WACC+2*k+1}")
    p(f"s_andn2_b64 exec, -1, s[{sCAND}:{sCAND+1}]\ns_cbranch_scc0 L_noo1")
    out_store()
    p("L_noo1:\ns_mov_b64 exec, -1")
    STAMP('o1')
KEY=225; sCAND=sT+20
def out_store():
    for o,n in ((0,4),(4,4),(8,2)): p(f"buffer_store_dwordx{n} {vr(OP+o,n)}, v{aX2}, {S4(sOUT)}, s{sXO} offen offset:{4*o} {CFG['opol']}")

def moe_weights():
    A=sT+7; B=sT+8; vt=2; D=40; aW_=12
    gu=p.lab("mwgu"); wr=p.lab("mwwr"); en=p.lab("mwend")
    p(f"""s_cmp_ge_u32 s{sSLOT}, 17
    s_cbranch_scc1 {en}
    v_bfe_u32 v{vt}, v0, 3, 2
    v_lshrrev_b32 v{vt+1}, 5, v0
    v_lshlrev_b32 v{vt}, 1, v{vt}
    v_add_lshl_u32 v{vt}, v{vt}, v{vt+1}, 2
    v_bfe_u32 v{vt+1}, v0, 1, 2
    v_add_u32 v{vt}, v{vt}, v{vt+1}
    v_and_b32 v{vt+1}, 1, v0
    v_lshlrev_b32 v{vt+1}, 4, v{vt+1}
    v_mov_b32 v{vt+4}, {F_DONE}
    s_cmp_lt_u32 s{sSLOT}, 12
    s_cbranch_scc1 {gu}
    v_mul_u32_u24 v{vt}, 1280, v{vt}
    v_add_u32 v{aW_}, v{vt}, v{vt+1}
    s_mul_i32 s{A}, s{sG}, 5
    s_add_u32 s{A}, s{A}, s{sSLOT}
    s_sub_u32 s{A}, s{A}, 12
    s_lshl_b32 s{A}, s{A}, 5
    s_mul_i32 s{B}, s{HW}, {12*32*1280}
    s_add_u32 s{A}, s{A}, s{B}""")
    for s_ in range(12):
        p(f"buffer_load_dwordx4 {vr(D+4*s_,4)}, v{aW_}, {S4(sWD)}, s{A} offen")
        if s_<11: p(f"s_add_u32 s{A}, s{A}, {32*1280}")
    p(f"""s_mul_i32 s{B}, s{HW}, 12288
    s_branch {wr}
    {gu}:
    v_mul_u32_u24 v{vt}, 3072, v{vt}
    v_add_u32 v{aW_}, v{vt}, v{vt+1}
    s_mul_i32 s{A}, s{sG}, 12
    s_add_u32 s{A}, s{A}, s{sSLOT}
    s_lshl_b32 s{A}, s{A}, 5
    s_mul_i32 s{B}, s{HW}, {5*32*3072}
    s_add_u32 s{A}, s{A}, s{B}""")
    for s_ in range(5):
        p(f"buffer_load_dwordx4 {vr(D+8*s_,4)}, v{aW_}, {S4(sWG)}, s{A} offen\nbuffer_load_dwordx4 {vr(D+8*s_+4,4)}, v{aW_}, {S4(sWU)}, s{A} offen")
        if s_<4: p(f"s_add_u32 s{A}, s{A}, {32*3072}")
    p(f"s_mul_i32 s{B}, s{HW}, 12288\n{wr}:\nv_lshl_add_u32 v{vt}, v0, 4, s{B}")
    lds_wait(vt+4,vt+5,A,'gt',4,4)
    p("s_waitcnt vmcnt(0)")
    for s_ in range(12): p(f"ds_write_b128 v{vt}, {vr(D+4*s_,4)} offset:{L_MW+s_*1024}")
    p(f"""s_lshl_b32 s{A}, s{HW}, 2
    s_add_u32 s{A}, s{A}, {F_MW}
    v_mov_b32 v{vt}, s{A}
    ds_write_b32 v{vt}, v{vt}
    s_waitcnt lgkmcnt(0)""")
    STAMP('mw')
    p(f"{en}:")
def top8(R,K2,K1,y,tt):
    def clean(chs):
        seq=[]
        for (x,y_,t_) in chs:
            seq.append([f"v_max_u32_dpp v{y_}, v{x}, v{x} row_shl:4 row_mask:0xf bank_mask:0x5",
                        f"v_min_u32_dpp v{y_}, v{x}, v{x} row_shr:4 row_mask:0xf bank_mask:0xa",
                        None,
                        f"v_mov_b32_dpp v{t_}, v{y_} quad_perm:[2,3,0,1] row_mask:0xf bank_mask:0xf",
                        f"v_med3_u32 v{y_}, v{y_}, v{t_}, v{K2}",
                        None,
                        f"v_mov_b32_dpp v{t_}, v{y_} quad_perm:[1,0,3,2] row_mask:0xf bank_mask:0xf",
                        f"v_med3_u32 v{x}, v{y_}, v{t_}, v{K1}"])
        n=len(chs)
        p(f"s_nop {2-n}")
        for i in range(8):
            if seq[0][i] is None: p(f"s_nop {2-n}")
            else:
                for c in seq: p(c[i])
                if i==0 and n==1: p("s_nop 1")
                elif i==0: p("s_nop 0")
    dp="row_mask:0xf bank_mask:0xf"
    p(f"v_max_u32_dpp v{R}, v{R+1}, v{R} row_half_mirror {dp}\nv_max_u32_dpp v{R+2}, v{R+3}, v{R+2} row_half_mirror {dp}")
    clean([(R,y,tt),(R+2,y+1,tt+1)])
    p(f"s_nop 1\nv_max_u32_dpp v{R}, v{R+2}, v{R} row_half_mirror {dp}")
    clean([(R,y,tt)])
    p(f"s_nop 1\nv_max_u32_dpp v{R}, v{R}, v{R} row_mirror {dp}")
    clean([(R,y,tt)])
    for msk,sw in ((0xa,16),(0xc,32)):
        p(f"""s_nop 1
        v_mov_b32_dpp v{R}, v{R} row_half_mirror row_mask:{hex(msk)} bank_mask:0xf
        v_mov_b32 v{tt}, v{R}
        s_nop 1
        v_permlane{sw}_swap_b32 v{R}, v{tt}
        s_nop 0
        v_max_u32 v{R}, v{R}, v{tt}""")
        clean([(R,y,tt)])
def moe():
    t=vT; A=sT+7; B=sT+8; C=sT+17; sTHR=sT+14
    R=12; K2=16; K1=17; aC=18; AW=108; BB=28-0;
    BL=160
    p(f"""s_cmp_ge_u32 s{sSLOT}, 17
    s_cbranch_scc1 L_plain
    v_lshrrev_b32 v{t}, 3, v0
    v_and_b32 v{t+1}, 7, v0
    v_lshlrev_b32 v{t+1}, 2, v{t+1}
    v_lshl_add_u32 v{aC}, v{t}, 7, v{t+1}
    s_mov_b32 s{B}, {CA}""")
    ld="\n".join(f"buffer_load_dword v{R+i}, v{aC}, {S4(sWS)}, s{B} offen offset:{i*1024} sc1" for i in range(4))
    p(ld)
    p(f"""v_bfe_i32 v{K2}, v0, 1, 1
    v_bfe_i32 v{K1}, v0, 0, 1
    v_not_b32 v{K2}, v{K2}
    v_not_b32 v{K1}, v{K1}
    s_lshl_b32 s{A}, s{sWAVE}, 2
    s_add_u32 s{A}, s{A}, {F_MW}
    v_mov_b32 v{t}, s{A}
    s_mul_i32 s{A}, s{sWAVE}, 12288
    v_lshl_add_u32 v{t+2}, v0, 3, s{A}""")
    lds_wait(t,t+1,C,'eq',0,0)
    STAMP('mwr')
    for s_ in range(12):
        for rd in range(2): p(f"ds_read_b64_tr_b16 {vr(AW+4*s_+2*rd,2)}, v{t+2} offset:{L_MW+s_*1024+rd*512}")
    lp=p.lab("ca"); ok=p.lab("caok"); md=p.lab("cam")
    p(f"""s_mov_b32 s{C}, {SPIN}
    s_branch {md}
    {lp}:
    {ld}
    {md}:
    s_waitcnt vmcnt(0)
    v_max3_u32 v{t}, v{R}, v{R+1}, v{R+2}
    v_max_u32 v{t}, v{t}, v{R+3}
    v_cmp_eq_u32 vcc, -1, v{t}
    s_nop 0
    s_cbranch_vccz {ok}""")
    spin(C,lp,ok)
    p(f"s_branch {lp}\n{ok}:")
    STAMP('car')
    top8(R,K2,K1,t,t+2)
    STAMP('top')
    TOK=t+1; aR=t+2
    p(f"""v_bfe_u32 v{TOK}, v{R}, 3, 11
    v_sub_u32 v{TOK}, 2047, v{TOK}
    v_lshrrev_b32 v{t}, 6, v{TOK}
    v_and_b32 v{aR}, 7, v{R}
    v_lshl_add_u32 v{aR}, v{t}, 3, v{aR}
    v_mul_u32_u24 v{aR}, 2560, v{aR}
    v_lshrrev_b32 v{t}, 4, v0
    v_readlane_b32 s{sTHR}, v{R}, 7
    s_cmp_ge_u32 s{sSLOT}, 12
    s_cbranch_scc1 L_down""")
    def deferred(tag):
        p(f"""v_cmp_gt_u32 vcc, s{sTHR}, v{KEY}
        s_nop 0
        s_and_b64 exec, vcc, s[{sCAND}:{sCAND+1}]
        s_cbranch_scc0 L_nd{tag}""")
        out_store()
        p(f"L_nd{tag}:\ns_mov_b64 exec, -1")
    p(f"""v_lshl_add_u32 v{aR}, v{t}, 4, v{aR}
    s_mul_i32 s{A}, s{sWAVE}, 320
    s_add_u32 s{A}, s{A}, {CAND}""")
    ld="\n".join(f"buffer_load_dwordx4 {vr(BL+4*i,4)}, v{aR}, {S4(sWS)}, s{A} offen offset:{i*64} sc1" for i in range(5))
    lp=p.lab("gl"); ok=p.lab("glok"); md=p.lab("glm"); nt=p.lab("noth")
    p(ld)
    p(f"""s_or_b32 s{B}, s{sSLOT}, s{sWAVE}
    s_cbranch_scc1 {nt}
    v_mov_b32 v{t+4}, s{sTHR}
    v_mov_b32 v{t+5}, s{sTAG}
    s_lshl_b32 s{B}, s{sG}, 7
    s_add_u32 s{B}, s{B}, {TH}
    v_mov_b32 v{t+6}, 0
    s_mov_b64 exec, 1
    buffer_store_dwordx2 v[{t+4}:{t+5}], v{t+6}, {S4(sWS)}, s{B} offen sc1
    s_mov_b64 exec, -1
    {nt}:
    s_lshl_b32 s{B}, s{sWAVE}, 11
    s_add_u32 s{B}, s{B}, {L_RED}
    v_lshl_add_u32 v{t+3}, v0, 4, s{B}
    s_mov_b32 s{C}, {SPIN}
    s_branch {md}
    {lp}:
    {ld}
    {md}:
    s_waitcnt vmcnt(0) lgkmcnt(0)
    v_max3_u32 v{t+4}, v{BL}, v{BL+2}, v{BL+4}
    v_max3_u32 v{t+5}, v{BL+6}, v{BL+8}, v{BL+10}
    v_max3_u32 v{t+4}, v{BL+12}, v{BL+14}, v{t+4}
    v_max3_u32 v{t+5}, v{BL+16}, v{BL+18}, v{t+5}
    v_max_u32 v{t+4}, v{t+4}, v{t+5}
    v_cmp_eq_u32 vcc, -1, v{t+4}
    s_nop 0
    s_cbranch_vccz {ok}""")
    spin(C,lp,ok)
    p(f"s_branch {lp}\n{ok}:")
    STAMP('lr')
    G=20; U=24; X=28
    for s_ in range(5):
        for m_,a_ in ((0,G),(1,U)):
            p(f"v_mfma_f32_16x16x32_bf16 {vr(a_,4)}, {vr(AW+8*s_+4*m_,4)}, {vr(BL+4*s_,4)}, {vr(a_,4) if s_ else 0}")
    w0=p.lab("guw0")
    p(f"""s_cmp_eq_u32 s{sWAVE}, 0
    s_cbranch_scc1 {w0}
    s_nop 5
    ds_write_b128 v{t+3}, {vr(G,4)}
    ds_write_b128 v{t+3}, {vr(U,4)} offset:1024
    s_waitcnt lgkmcnt(0)
    s_barrier""")
    deferred('g1')
    END()
    p(f"""{w0}:
    s_mul_i32 s{A}, s{sG}, 12
    s_add_u32 s{A}, s{A}, s{sSLOT}
    s_lshl_b32 s{A}, s{A}, 8
    s_add_u32 s{A}, s{A}, {ACT}
    v_and_b32 v{t+4}, 7, v0
    v_lshlrev_b32 v{t+4}, 4, v{t+4}
    v_lshrrev_b32 v{t+5}, 5, v0
    v_lshl_add_u32 v{t+4}, v{t+5}, 7, v{t+4}
    v_bfe_u32 v{t+5}, v0, 4, 1
    v_lshl_add_u32 v{t+4}, v{t+5}, 3, v{t+4}
    s_barrier""")
    for w_ in range(1,4):
        for m_ in range(2): p(f"ds_read_b128 {vr(X+8*(w_-1)+4*m_,4)}, v{t+3} offset:{w_*2048+m_*1024}")
    p(f"s_mov_b32 s{B}, {hex(f2u(-math.log2(math.e)))}")
    for w_ in range(3):
        p(f"s_waitcnt lgkmcnt({4-2*w_})")
        for k in range(4): p(f"v_pk_add_f32 {vr(G+2*k,2)}, {vr(G+2*k,2)}, {vr(X+8*w_+2*k,2)}")
    p(f"""v_cvt_pk_bf16_f32 v{X}, v{G}, v{G+1}
    v_cvt_pk_bf16_f32 v{X+1}, v{G+2}, v{G+3}
    v_cvt_pk_bf16_f32 v{X+2}, v{U}, v{U+1}
    v_cvt_pk_bf16_f32 v{X+3}, v{U+2}, v{U+3}""")
    for k in range(4): p(f"v_lshlrev_b32 v{G+2*k}, 16, v{X+k}\nv_and_b32 v{G+2*k+1}, 0xffff0000, v{X+k}")
    for k in range(4): p(f"v_mul_f32 v{X+k}, s{B}, v{G+k}")
    for k in range(4): p(f"v_exp_f32 v{X+k}, v{X+k}")
    for k in range(4): p(f"v_add_f32 v{X+k}, 1.0, v{X+k}")
    for k in range(4): p(f"v_rcp_f32 v{X+k}, v{X+k}")
    for k in range(4): p(f"v_mul_f32 v{G+k}, v{G+k}, v{X+k}")
    p(f"v_cvt_pk_bf16_f32 v{X}, v{G}, v{G+1}\nv_cvt_pk_bf16_f32 v{X+1}, v{G+2}, v{G+3}")
    for k in range(2): p(f"v_lshlrev_b32 v{G+2*k}, 16, v{X+k}\nv_and_b32 v{G+2*k+1}, 0xffff0000, v{X+k}")
    p(f"""v_pk_mul_f32 {vr(G,2)}, {vr(G,2)}, {vr(U,2)}
    v_pk_mul_f32 {vr(G+2,2)}, {vr(G+2,2)}, {vr(U+2,2)}
    v_cvt_pk_bf16_f32 v{X}, v{G}, v{G+1}
    v_cvt_pk_bf16_f32 v{X+1}, v{G+2}, v{G+3}
    s_mov_b32 exec_lo, 0x00ff00ff
    s_mov_b32 exec_hi, 0x00ff00ff
    buffer_store_dwordx2 {vr(X,2)}, v{t+4}, {S4(sWS)}, s{A} offen sc1
    s_mov_b64 exec, -1""")
    STAMP('act')
    deferred('g0')
    END()
    HL=20; Y=24; X=28; SG=t+8; aO2=t+9
    p(f"""L_down:
    v_lshl_add_u32 v{aR}, v{t}, 3, v{aR}
    v_mul_u32_u24 v{aO2}, 1280, v{TOK}
    v_lshl_add_u32 v{aO2}, v{t}, 3, v{aO2}
    v_and_b32 v{t+4}, 7, v0
    v_lshlrev_b32 v{t+4}, 4, v{t+4}
    v_lshl_add_u32 v{t+4}, v{t}, 7, v{t+4}
    s_mul_i32 s{sT+1}, s{sG}, 5
    s_add_u32 s{sT+1}, s{sT+1}, s{sSLOT}
    s_sub_u32 s{sT+1}, s{sT+1}, 12
    s_lshl_b32 s{sT+1}, s{sT+1}, 5
    s_add_u32 s{sT+2}, s{sT+1}, {CAND}
    s_mul_i32 s{A}, s{sWAVE}, 6144
    s_add_u32 s{A}, s{A}, {ACT}
    s_add_u32 s{B}, s{A}, 4096""")
    deferred('d')
    p(f"""v_ashrrev_i32 v{SG}, 31, v{R}
    v_not_b32 v{SG}, v{SG}
    v_or_b32 v{SG}, 0x80000000, v{SG}
    v_xor_b32 v{SG}, v{SG}, v{R}
    v_and_b32 v{SG}, 0xffff0000, v{SG}
    v_mul_f32 v{SG}, {hex(f2u(-math.log2(math.e)))}, v{SG}
    v_exp_f32 v{SG}, v{SG}
    s_lshl_b32 s{C}, s{sWAVE}, 10
    v_add_f32 v{SG}, 1.0, v{SG}
    v_rcp_f32 v{SG}, v{SG}
    s_add_u32 s{C}, s{C}, {L_RED}
    v_lshl_add_u32 v{t+3}, v0, 4, s{C}""")
    bf16r(SG,SG)
    ld="\n".join([f"buffer_load_dwordx4 {vr(BL+4*i,4)}, v{t+4}, {S4(sWS)}, s{A if i<8 else B} offen offset:{(i%8)*512} sc1" for i in range(12)]+
        [f"buffer_load_dwordx2 {vr(HL,2)}, v{aR}, {S4(sWS)}, s{sT+2} offen sc1", f"buffer_load_dwordx2 {vr(HL+2,2)}, v{aR}, {S4(sWS)}, s{sT+2} offen offset:1280 sc1"])
    lp=p.lab("al"); ok=p.lab("alok")
    p(f"""s_mov_b32 s{C}, {SPIN}
    {lp}:
    {ld}
    s_waitcnt vmcnt(0) lgkmcnt(0)
    v_max_u32 v{t+5}, v{HL}, v{HL+2}""")
    for i in range(12): p(f"v_max3_u32 v{t+5}, v{BL+4*i}, v{BL+4*i+2}, v{t+5}")
    p(f"""v_cmp_eq_u32 vcc, -1, v{t+5}
    s_nop 0
    s_cbranch_vccz {ok}""")
    spin(C,lp,ok)
    p(f"s_branch {lp}\n{ok}:")
    STAMP('ar')
    for s_ in range(12): p(f"v_mfma_f32_16x16x32_bf16 {vr(Y,4)}, {vr(AW+4*s_,4)}, {vr(BL+4*s_,4)}, {vr(Y,4) if s_ else 0}")
    w0=p.lab("dnw0")
    p(f"""s_cmp_eq_u32 s{sWAVE}, 0
    s_cbranch_scc1 {w0}
    s_nop 5
    ds_write_b128 v{t+3}, {vr(Y,4)}
    s_waitcnt lgkmcnt(0)
    s_barrier""")
    END()
    p(f"""{w0}:
    v_lshlrev_b32 v{X+12}, 16, v{HL}
    v_and_b32 v{X+13}, 0xffff0000, v{HL}
    v_lshlrev_b32 v{X+14}, 16, v{HL+1}
    v_and_b32 v{X+15}, 0xffff0000, v{HL+1}
    v_lshlrev_b32 v{X+16}, 16, v{HL+2}
    v_and_b32 v{X+17}, 0xffff0000, v{HL+2}
    v_lshlrev_b32 v{X+18}, 16, v{HL+3}
    v_and_b32 v{X+19}, 0xffff0000, v{HL+3}
    s_barrier""")
    for w_ in range(1,4): p(f"ds_read_b128 {vr(X+4*(w_-1),4)}, v{t+3} offset:{w_*1024}")
    for w_ in range(3):
        p(f"s_waitcnt lgkmcnt({2-w_})")
        for k in range(2): p(f"v_pk_add_f32 {vr(Y+2*k,2)}, {vr(Y+2*k,2)}, {vr(X+4*w_+2*k,2)}")
    def rnd():
        p(f"v_cvt_pk_bf16_f32 v{X}, v{Y}, v{Y+1}\nv_cvt_pk_bf16_f32 v{X+1}, v{Y+2}, v{Y+3}")
    def unp():
        for k in range(2): p(f"v_lshlrev_b32 v{Y+2*k}, 16, v{X+k}\nv_and_b32 v{Y+2*k+1}, 0xffff0000, v{X+k}")
    rnd(); unp()
    for k in range(4): p(f"v_mul_f32 v{Y+k}, v{SG}, v{Y+k}")
    rnd(); unp()
    for k in range(2): p(f"v_pk_add_f32 {vr(Y+2*k,2)}, {vr(Y+2*k,2)}, {vr(X+12+2*k,2)}")
    rnd(); unp()
    for k in range(2): p(f"v_pk_add_f32 {vr(Y+2*k,2)}, {vr(Y+2*k,2)}, {vr(X+16+2*k,2)}")
    rnd()
    p(f"""s_mov_b32 exec_lo, 0x00ff00ff
    s_mov_b32 exec_hi, 0x00ff00ff
    buffer_store_dwordx2 {vr(X,2)}, v{aO2}, {S4(sOUT)}, s{sT+1} offen sc1""")
    STAMP('fin')
    END()
    lp=p.lab("th"); ok=p.lab("thok")
    p(f"""L_plain:
    s_lshl_b32 s{B}, s{sG}, 7
    s_add_u32 s{B}, s{B}, {TH}
    v_mov_b32 v{t}, 0
    s_mov_b32 s{C}, {SPIN}
    {lp}:
    s_sleep 16
    buffer_load_dwordx2 v[{t+2}:{t+3}], v{t}, {S4(sWS)}, s{B} offen sc1
    s_waitcnt vmcnt(0)
    v_cmp_ne_u32 vcc, s{sTAG}, v{t+3}
    s_nop 0
    s_cbranch_vccz {ok}""")
    spin(C,lp,ok)
    p(f"""s_branch {lp}
    {ok}:
    v_readfirstlane_b32 s{sTHR}, v{t+2}
    s_nop 1""")
    deferred('p')
    STAMP('fin')

def build():
    prologue()
    gemm_setup()
    p("s_waitcnt lgkmcnt(0)")
    mktag()
    p(f"""    s_cmp_eq_u32 s{sLC}, 15
    s_cbranch_scc1 L_gS
    s_cmp_eq_u32 s{sTY}, 2
    s_cbranch_scc1 L_gV""")
    gemm_loop('T'); gemm_epi('T'); p("s_branch L_att")
    p("L_gS:"); gemm_loop('S'); stats_epi(); p("s_branch L_att")
    p("L_gV:"); gemm_loop('V'); gemm_epi('V')
    p("L_att:")
    p(f"v_mov_b32 v{aCLS}, 0x207")
    att_pro()
    for w in range(4): att_variant(w)
    att_fin()
    wo_main()
    if CFG['stop']<=3:
        p(f"s_and_b64 exec, s[{sCAND}:{sCAND+1}], -1\ns_cbranch_scc0 L_noo2"); out_store(); p("L_noo2:")
    else: moe()
    END()
    att_cold()
    for c in COLD: p(c)
    loader()
    helperA()
    p("s_branch L_mw")
    helperB()
    p("L_mw:")
    moe_weights()
    END()
    p("L_exit:\ns_endpgm")
build()
errs=check(p.L)
hdr=f"""; generated by work/k/gen.py (own generator script)
; @launch grid=(256,1,1) block=(512,1,1) lds=163840
.amdgcn_target "amdgcn-amd-amdhsa--gfx950"
.text
.globl {NAME}_kernel
.p2align 8
.type {NAME}_kernel,@function
{NAME}_kernel:
"""
ftr=f""".section .rodata,"a"
.p2align 6
.amdhsa_kernel {NAME}_kernel
  .amdhsa_next_free_vgpr 256
  .amdhsa_next_free_sgpr 102
  .amdhsa_accum_offset 256
  .amdhsa_group_segment_fixed_size 0
  .amdhsa_kernarg_size 88
  .amdhsa_user_sgpr_count 2
  .amdhsa_user_sgpr_kernarg_segment_ptr 1
  .amdhsa_system_sgpr_workgroup_id_x 1
.end_amdhsa_kernel
"""
open(sys.argv[1],"w").write(hdr+p.text()+ftr)

import subprocess
r=subprocess.run(["clang","-x","assembler","-target","amdgcn-amd-amdhsa","-mcpu=gfx950",sys.argv[1],"-o",sys.argv[1]+".co"],capture_output=True,text=True)
if r.returncode: print(r.stderr[:3000]); sys.exit(1)
r=subprocess.run(["python3","cdna_unwritten_srd_check.py",sys.argv[1]+".co"],capture_output=True,text=True)
if r.returncode: print("SRDCHECK:",r.stdout[-3000:],r.stderr[-1000:])
r=subprocess.run("llvm-size -A "+sys.argv[1]+".co | grep text",shell=True,capture_output=True,text=True); print(r.stdout.strip())
if errs: sys.exit(1)
```

```python
import sys, math
from asmlib import *
NAME="sequential_preLN__sliding_block__moe_arch_mod__prompt"
CFG=dict(wla=7, wwe=2, dgate='O1', dstart='O1', gstart='WOD', mdep=1, ddep=12, qpair=1, mpair=1, wpair=0, xnt=10, wnt=0, tpol2='', wtw='no', mtw='w3', wothr1=4, mb=(6,6), mg=('WOD','PR','PR','O1'), mpf=0, mgate='b3', hsplit=0, cpf=0, npf=(0,)*10, wogs=5, clr=0, wot=(), wtpol='', seqs=None, xpol='nt', wpol='', tpol='nt', wopol='', mpol='', cal=None, opol='', st=['start','b0|hb0','gend|hb9','E1|hE1','st|halo|clr','fl|g2|wo','fseen|h2','kv','aend','ost'], pt=6, wothr=16, wogate=1, h2sl=1, noh2=0, nowo=0, wos=(0,0,0), sched=(1,1,2,1,1,1,1,0,0,0), dbg=0, stop=99, prof=0, rot=('0123','03692581','05278052'), force_slow=0, noclr=0, pre=2, ldst=0, nomfma=0, nohello=0)
for a in sys.argv[2:]:
    k,v=a.split("="); CFG[k]=eval(v)
QB,KB,VB,KH,VH,OB=[i*0x280000 for i in range(6)]
CAND=0xF00000
PS=0xFA0000
CA=0xFE0000
ACT=0xFE1000
HB=0x1000000
PROF=0x1300000
H1=0x1280000; H2=0x1281000; EPO=0x1282000; TH=0x1283000
FO=0x1290000; OB2=0x1400000; FL=0x12A0000; FH=0x12A4000
L_STG=0; L_KV=10240; L_WO=55296; L_MISC=157696; L_MW=0
L_CS=L_MISC
L_SA=L_MISC+512
L_SR=L_SA+1024
L_MODE=L_SR+512
L_FLG=L_MODE+64
F_G1,F_G2,F_H2,F_STG,F_SCP,F_DONE,F_WOR,F_MW=[L_FLG+4*i for i in (0,1,2,4,8,9,10,12)]
L_SWS=L_FLG+80; F_O1=L_FLG+44; F_WOD=L_FLG+64; F_PR=L_FLG+68; F_WO2=L_FLG+72; F_PS=L_FLG+76
L_KEYS=L_FLG+128
L_RED=L_WO
sX,sW,sWO,sWG,sWU,sWD,sOUT,sWS,sDBG,sWR=[4+4*i for i in range(10)]
sWAVE,sG,sSLOT,sRQ,sHH,sRB,sCT,sMODE,sEP,sTAG=range(44,54)
sT=54
sLO=76
sPROF=80
p=P()
COLD=[]
CALI=lambda: 's_memtime' if CFG['cal'][1]>20000 else 's_memrealtime'
def STAMP(name,w=0):
    if CFG['cal'] and name in CFG['cal'][0].split('|'):
        p(f"{CALI()} s[{sPROF}:{sPROF+1}]")
        if w: p("s_waitcnt lgkmcnt(0)")
    i=[k for k,n in enumerate(CFG['st']) if name in n.split('|')]
    if CFG['prof'] and i:
        i=i[0]
        p(f"{'s_memrealtime' if CFG['prof']==2 else 's_memtime'} s[{sPROF+2*i}:{sPROF+2*i+1}]")
        if w: p("s_waitcnt lgkmcnt(0)")
def PROFDUMP():
    if not CFG['prof']: return
    p("s_waitcnt vmcnt(0) lgkmcnt(0)")
    p("s_mov_b64 exec, -1")
    for i in range(10): p(f"v_mov_b32 v{2+i}, s{sPROF+2*i}")
    p(f"""s_lshl_b32 s{sT}, s2, 3
    s_add_u32 s{sT}, s{sT}, s{sWAVE}
    s_lshl_b32 s{sT}, s{sT}, 6
    s_add_u32 s{sT}, s{sT}, {PROF}
    v_mov_b32 v1, 0
    s_mov_b64 exec, 1
    buffer_store_dwordx4 v[2:5], v1, s[{sWS}:{sWS+3}], s{sT} offen
    buffer_store_dwordx4 v[6:9], v1, s[{sWS}:{sWS+3}], s{sT} offen offset:16
    buffer_store_dwordx2 v[10:11], v1, s[{sWS}:{sWS+3}], s{sT} offen offset:32""")
def END():
    PROFDUMP()
    if CFG['cal']:
        lp=p.lab("cal"); ok=p.lab("calok")
        p(f"""s_waitcnt vmcnt(0) lgkmcnt(0)
        s_cmp_eq_u32 s{sPROF}, 0
        s_cbranch_scc1 {ok}
        s_cmp_ge_u32 s{sWAVE}, 4
        s_cbranch_scc1 {ok}
        s_mov_b32 s{sPROF+4}, 100000
        {lp}:
        s_sleep 2
        {CALI()} s[{sPROF+2}:{sPROF+3}]
        s_sub_u32 s{sPROF+4}, s{sPROF+4}, 1
        s_cbranch_scc1 {ok}
        s_waitcnt lgkmcnt(0)
        s_sub_u32 s{sPROF+2}, s{sPROF+2}, s{sPROF}
        s_cmp_lt_u32 s{sPROF+2}, {CFG['cal'][1]}
        s_cbranch_scc1 {lp}
        {ok}:""")
    p("s_endpgm")
S4=lambda r:f"s[{r}:{r+3}]"
SPIN=1<<18

def srd(lst):
    for r,n in lst: p(f"s_mov_b32 s{r+2}, {n}\ns_mov_b32 s{r+3}, 0x20000")
def prologue():
    STAMP('entry')
    p(f"""s_cmp_ge_u32 s2, 256
    s_cbranch_scc1 L_exit
    s_load_dwordx2 s[{sX}:{sX+1}], s[0:1], 0
    s_load_dwordx2 s[{sW}:{sW+1}], s[0:1], 8
    s_load_dwordx2 s[{sWS}:{sWS+1}], s[0:1], 80
    v_lshrrev_b32 v1, 6, v0
    v_and_b32 v0, 63, v0
    v_readfirstlane_b32 s{sWAVE}, v1
    s_and_b32 s{sG}, s2, 7
    s_lshr_b32 s{sSLOT}, s2, 3
    s_lshr_b32 s{sRQ}, s{sG}, 1
    s_and_b32 s{sHH}, s{sG}, 1
    s_and_b32 s{sRB}, s{sSLOT}, 3
    s_lshr_b32 s{sCT}, s{sSLOT}, 2""")
    if CFG['cal']: p(f"s_mov_b32 s{sPROF}, 0")
    if CFG['prof']:
        for i in range(1,10): p(f"s_mov_b32 s{sPROF+2*i}, 0")
    p(f"""s_cmp_lt_u32 s{sWAVE}, 4
    s_cbranch_scc1 L_comp""")
def prologue2():
    p(f"""s_mov_b32 s{sTAG}, {EPO}
    s_load_dword s{sEP}, s[{sWS}:{sWS+1}], s{sTAG}
    s_load_dwordx2 s[{sWO}:{sWO+1}], s[0:1], 16
    s_load_dwordx2 s[{sWR}:{sWR+1}], s[0:1], 32
    s_load_dwordx2 s[{sWG}:{sWG+1}], s[0:1], 40
    s_load_dwordx2 s[{sWU}:{sWU+1}], s[0:1], 48
    s_load_dwordx2 s[{sWD}:{sWD+1}], s[0:1], 56
    s_load_dwordx2 s[{sOUT}:{sOUT+1}], s[0:1], 64""")
    srd(((sWS,268435456),(sWO,819200),(sWR,1280),(sWG,1966080),(sWU,1966080),(sWD,1966080),(sOUT,2621440)))
    p(f"""s_mov_b32 s{sLO}, -1
    s_mov_b32 s{sLO+1}, 0
    s_mov_b32 s{sLO+2}, 0xfffff
    s_mov_b32 s{sLO+3}, 0xfffff""")
def mktag():
    p(f"""s_mul_i32 s{sTAG}, s{sEP}, 0x9e3779b1
    s_add_u32 s{sTAG}, s{sTAG}, 0x7f4a7c15
    s_and_b32 s{sTAG}, s{sTAG}, -16""")
def colbyte(dst, lc):
    t=sT+18
    p(f"""s_mul_i32 s{t}, s{lc}, 52
    s_lshr_b32 s{t}, s{t}, 8
    s_mul_i32 s{t+1}, s{t}, 5
    s_sub_u32 s{t+1}, s{lc}, s{t+1}
    s_mul_i32 s{t}, s{t}, 1280
    s_lshl_b32 s{t+1}, s{t+1}, 7
    s_mul_i32 s{dst}, s{sHH}, 640
    s_add_u32 s{dst}, s{dst}, s{t}
    s_add_u32 s{dst}, s{dst}, s{t+1}""")

def loader():
    CA_=sT+1; CB_=sT+2; CH=sT+3; XO=sT+4; WO_=sT+5; LB=sT+6; A=sT+7; B=sT+8; OFF=sT+9; SEQ=sT+10
    vX=2; vW=6; vt=10
    p(f"""s_sub_u32 s{HW}, s{sWAVE}, 4
    s_lshl_b32 s{A}, s{sCT}, 1
    s_add_u32 s{B}, s{A}, 1
    s_min_u32 s{B}, s{B}, 14""")
    colbyte(CA_,A); colbyte(CB_,B)
    p(f"""v_lshrrev_b32 v{vt}, 3, v0
    v_mul_u32_u24 v{vX}, 1280, v{vt}
    v_lshrrev_b32 v{vt+1}, 4, v0
    v_and_b32 v{vt+2}, 7, v0
    v_xor_b32 v{vt+2}, v{vt+2}, v{vt+1}
    v_lshl_add_u32 v{vX}, v{vt+2}, 4, v{vX}
    v_xor_b32 v{vX+1}, 64, v{vX}
    v_add_u32 v{vX+1}, {10240-1024}, v{vX+1}
    v_add_u32 v{vX+2}, {2*(10240-1024)}, v{vX}
    v_add_u32 v{vX+3}, {2*(10240-1024)}, v{vX+1}
    v_lshlrev_b32 v{vt+2}, 2, v{vt+1}
    v_and_b32 v{vt+3}, 15, v0
    v_xor_b32 v{vt+2}, v{vt+2}, v{vt+3}
    v_cmp_lt_u32 vcc, 7, v{vt+2}
    v_mov_b32 v{vt+3}, s{CA_}
    v_mov_b32 v{vt+4}, s{CB_}
    v_cndmask_b32 v{vt+3}, v{vt+3}, v{vt+4}, vcc
    v_and_b32 v{vt+2}, 7, v{vt+2}
    v_lshl_add_u32 v{vt+3}, v{vt+2}, 4, v{vt+3}
    v_mul_u32_u24 v{vW}, 3840, v{vt+1}
    v_add_u32 v{vW}, v{vW}, v{vt+3}""")
    for i in range(1,4): p(f"v_add_u32 v{vW+i}, {i*(4*3840-1024)}, v{vW}")
    ta,tc,tg=CFG['rot']
    pk=lambda t: sum(int(v)<<(4*i) for i,v in enumerate(t))
    p(f"""s_lshl_b32 s{A}, s{sRB}, 2
    s_lshr_b32 s{CH}, {pk(ta)}, s{A}
    s_and_b32 s{CH}, s{CH}, 15
    s_lshl_b32 s{A}, s{sCT}, 2
    s_lshr_b32 s{A}, {hex(pk(tc))}, s{A}
    s_and_b32 s{A}, s{A}, 15
    s_add_u32 s{CH}, s{CH}, s{A}
    s_lshl_b32 s{A}, s{sG}, 2
    s_lshr_b32 s{A}, {hex(pk(tg))}, s{A}
    s_and_b32 s{OFF}, s{A}, 15""")
    seqs=CFG['seqs']
    if seqs:
        n=len(seqs)
        p(f"""s_mul_i32 s{A}, s{CH}, {-(-2048//n)}
        s_lshr_b32 s{A}, s{A}, 11
        s_mul_i32 s{A}, s{A}, {n}
        s_sub_u32 s{CH}, s{CH}, s{A}""")
        for i,q in enumerate(seqs):
            assert sorted(q)==list("0123456789")
            if i: p(f"s_cmp_eq_u32 s{CH}, {i}\ns_cselect_b32 s{SEQ}, {hex(pk(q[:8]))}, s{SEQ}\ns_cselect_b32 s{SEQ+1}, {hex(pk(q[8:]))}, s{SEQ+1}")
            else: p(f"s_mov_b32 s{SEQ}, {hex(pk(q[:8]))}\ns_mov_b32 s{SEQ+1}, {hex(pk(q[8:]))}")
    else:
        p(f"""s_add_u32 s{CH}, s{CH}, s{OFF}
    s_mul_i32 s{A}, s{CH}, 205
    s_lshr_b32 s{A}, s{A}, 11
    s_mul_i32 s{A}, s{A}, 10
    s_sub_u32 s{CH}, s{CH}, s{A}""")
    p(f"""
    s_lshl_b32 s{A}, s{sRQ}, 2
    s_add_u32 s{A}, s{A}, s{sRB}
    s_lshl_b32 s{A}, s{A}, 2
    s_add_u32 s{A}, s{A}, s{HW}
    s_mul_i32 s{XO}, s{A}, {32*1280}
    s_mul_i32 s{WO_}, s{HW}, {16*3840}
    s_lshl_b32 s{LB}, s{HW}, 12""")
    def issue(c):
        slot=(c%4)*32768
        if seqs: p(f"""s_and_b32 s{CH}, s{SEQ}, 15
        s_lshr_b64 s[{SEQ}:{SEQ+1}], s[{SEQ}:{SEQ+1}], 4
        s_add_u32 s{CH}, s{CH}, s{OFF}
        s_sub_u32 s{A}, s{CH}, 10
        s_cselect_b32 s{CH}, s{CH}, s{A}""")
        p(f"""s_lshl_b32 s{A}, s{CH}, 7
        s_add_u32 s{A}, s{A}, s{XO}
        s_add_u32 m0, s{LB}, {slot}
        s_mul_i32 s{B}, s{CH}, {64*3840}""")
        for i in range(4): p(f"buffer_load_dwordx4 v{vX+i}, {S4(sX)}, s{A} offen offset:{i*1024} {CFG['xpol'] if c<CFG['xnt'] else ''} lds")
        p(f"""s_add_u32 m0, s{LB}, {slot+16384}
        s_add_u32 s{B}, s{B}, s{WO_}""")
        for i in range(4): p(f"buffer_load_dwordx4 v{vW+i}, {S4(sW)}, s{B} offen offset:{i*1024} {'nt' if c<CFG['wnt'] else CFG['wpol']} lds")
        if not seqs: p(f"""s_add_u32 s{CH}, s{CH}, 1
        s_cmp_eq_u32 s{CH}, 10
        s_cselect_b32 s{CH}, 0, s{CH}""")
    pre=CFG['pre']
    srd(((sX,2621440),(sW,2457600)))
    p("s_waitcnt lgkmcnt(0)")
    STAMP('i0')
    for c in range(pre):
        issue(c); STAMP('i%d'%(c+1))
        if c==0:
            prologue2()
            p(f"""v_cmp_lt_u32 vcc, 7, v0
            v_lshlrev_b32 v{vt}, 4, v0
            v_add_u32 v{vt}, {L_FLG}, v{vt}
            v_cndmask_b32 v{vt+2}, 0, -1, vcc
            v_cndmask_b32 v{vt+3}, 0, -1, vcc
            v_cndmask_b32 v{vt+4}, 0, -1, vcc
            v_cndmask_b32 v{vt+5}, 0, -1, vcc
            ds_write_b128 v{vt}, v[{vt+2}:{vt+5}]""")
            early()
    p("s_waitcnt lgkmcnt(0)")
    mktag()
    p(f"s_cmp_ge_u32 s{HW}, 2\ns_cbranch_scc1 L_helperB")
    def steps(hook):
        global OPS
        OPS=[c for c in range(pre) for _ in range(8)]
        issued=pre
        for c in range(7):
            vmwait(c)
            p("s_barrier")
            STAMP('ld%d'%c)
            for _ in range(CFG['sched'][c]):
                assert issued<min(10,c+4); issue(issued); OPS+=[issued]*8; issued+=1
            hook(c)
        assert issued==10
    return steps
vPT=21; vDUM=39
HS=sT+12; HA=28
def early():
    A=sT+20; B=sT+21; vt=10
    wave_ids(HW,sT+16,sT+17,sT+18,sT+19)
    store_addr(sT+16,sT+18,sT+19,HS,HS+1,HS+2,HS+3,HA,A,B,t=vt)
    p(f"""s_add_u32 s{HS}, s{HS}, {KH-KB}
    s_add_u32 s{HS+1}, s{HS+1}, {KH-KB}
    s_add_u32 s{HS+3}, s{HS+3}, {FH-FL}""")
    p(f"""s_lshl_b32 s{A}, s{sSLOT}, 2
    s_add_u32 s{A}, s{A}, s{HW}
    s_mul_i32 s{A}, s{A}, 60
    v_min_u32 v{vt}, 59, v0
    v_add_u32 v{vt}, s{A}, v{vt}
    v_mul_u32_u24 v{vt+1}, 6554, v{vt}
    v_lshrrev_b32 v{vt+1}, 20, v{vt+1}
    v_mul_u32_u24 v{vt+2}, 160, v{vt+1}
    v_sub_u32 v{vt}, v{vt}, v{vt+2}
    v_lshlrev_b32 v{vt}, 7, v{vt}
    v_cmp_gt_u32 vcc, 32, v{vt+1}
    v_and_b32 v{vt+2}, 1, v{vt+1}
    v_mul_u32_u24 v{vt+2}, 20480, v{vt+2}
    v_bfe_u32 v{vt+3}, v{vt+1}, 1, 3
    v_mul_u32_u24 v{vt+3}, 163840, v{vt+3}
    v_add_u32 v{vt+2}, v{vt+2}, v{vt+3}
    v_lshrrev_b32 v{vt+3}, 4, v{vt+1}
    v_mul_u32_u24 v{vt+3}, {KB}, v{vt+3}
    s_mul_i32 s{A}, s{sRQ}, 40960
    v_add3_u32 v{vt+2}, v{vt+2}, v{vt+3}, s{A}
    v_and_b32 v{vt+3}, 15, v{vt+1}
    v_mul_u32_u24 v{vt+3}, 81920, v{vt+3}
    s_mul_i32 s{A}, s{sRQ}, 20480
    s_add_u32 s{A}, s{A}, {VB}
    v_add_u32 v{vt+3}, s{A}, v{vt+3}
    v_cndmask_b32 v{vt+2}, v{vt+3}, v{vt+2}, vcc
    s_mul_i32 s{A}, s{sHH}, {8*163840}
    v_add3_u32 v{vPT}, v{vt}, v{vt+2}, s{A}
""")
    nsm=sum(CFG['npf']); per=(100-5*nsm)//2
    if per>0:
        p(f"""s_mul_i32 s{A}, s{sG}, 5
        s_lshr_b32 s{A}, s{A}, 1
        s_mul_i32 s{A}, s{A}, 5
        s_lshr_b32 s{B}, s{HW}, 1
        s_mul_i32 s{B}, s{B}, {per}
        s_add_u32 s{A}, s{A}, s{B}
        s_add_u32 s{A}, s{A}, {5*nsm}
        v_min_u32 v{vt}, {per-1}, v0
        v_add_u32 v{vt}, s{A}, v{vt}
        v_subrev_u32 v{vt+1}, 100, v{vt}
        v_min_u32 v{vt}, v{vt}, v{vt+1}
        s_lshl_b32 s{A}, s{sSLOT}, 1
        s_and_b32 s{B}, s{HW}, 1
        s_add_u32 s{A}, s{A}, s{B}
        s_mul_i32 s{A}, s{A}, 12800
        v_lshl_add_u32 v{vTW}, v{vt}, 7, s{A}""")
    ge=p.lab("mtge"); jn=p.lab("mtj")
    p(f"""s_cmp_ge_u32 s{HW}, 2
    s_cbranch_scc1 {ge}
    v_min_u32 v{vt}, 59, v0
    v_mul_u32_u24 v{vt+1}, 86, v{vt}
    v_lshrrev_b32 v{vt+1}, 8, v{vt+1}
    v_mul_u32_u24 v{vt+1}, {3072-384}, v{vt+1}
    v_lshl_add_u32 v{vt}, v{vt}, 7, v{vt+1}
    s_mul_i32 s{A}, s{sSLOT}, {20*3072}
    s_mul_i32 s{B}, s{sG}, 384
    s_branch {jn}
    {ge}:
    {jn}:
    s_add_u32 s{A}, s{A}, s{B}
    v_add_u32 v{vTM}, s{A}, v{vt}
    s_sub_u32 s{A}, s{sSLOT}, 17
    s_lshl_b32 s{A}, s{A}, 2
    s_add_u32 s{A}, s{A}, s{HW}
    s_mul_i32 s{A}, s{A}, 26
    v_min_u32 v{vt}, 51, v0
    v_lshrrev_b32 v{vt+1}, 1, v{vt}
    v_add_u32 v{vt+1}, s{A}, v{vt+1}
    v_min_u32 v{vt+1}, 1535, v{vt+1}
    v_mul_u32_u24 v{vt+1}, 1280, v{vt+1}
    v_and_b32 v{vt}, 1, v{vt}
    v_lshl_add_u32 v{vt}, v{vt}, 7, v{vt+1}
    s_mul_i32 s{B}, s{sG}, 160
    s_and_b32 s{B}, s{B}, -128
    v_add_u32 v{vTD}, s{B}, v{vt}""")
vTD=25
vTW=22; vTM=24
def touch(va,srd_,pair,pol=''):
    if pair:
        p(f"buffer_load_dword v{vDUM}, v{va}, {S4(srd_)}, 0 offen nt\nbuffer_load_dword v{vDUM}, v{va}, {S4(srd_)}, 0 offen offset:64")
        return 2
    p(f"buffer_load_dword v{vDUM}, v{va}, {S4(srd_)}, 0 offen {pol}")
    return 1
def wtouch(win,isB):
    n=0
    if CFG['wtw']==win and 100-5*sum(CFG['npf'])>0:
        n+=touch(vTW,sWO,CFG['wpair'])
    if CFG['mtw']==win:
        if not isB:
            u=p.lab("tu"); j=p.lab("tj")
            p(f"s_cmp_eq_u32 s{HW}, 0\ns_cbranch_scc0 {u}")
            touch(vTM,sWG,CFG['mpair'])
            p(f"s_branch {j}\n{u}:")
            n+=touch(vTM,sWU,CFG['mpair'])
            p(f"{j}:")
    return n
def qkv_touch():
    if CFG['pt']==99: return
    OPS.extend(['pt']*touch(vPT,sWS,CFG['qpair'],CFG['tpol']))
vH=16
OPS=[]
def vmwait(*tags):
    last=max(i for i,t in enumerate(OPS) if t in tags)
    n=len(OPS)-1-last; assert n<64
    p(f"s_waitcnt vmcnt({n})")
HW=sT
def spin(cnt,lp,ok,sleep=0):
    p(f"s_sub_u32 s{cnt}, s{cnt}, 1\ns_cbranch_scc1 {ok}")
    if sleep: p(f"s_sleep {sleep}")
def lds_wait(addr_v,tmp,cnt,cmp,val,sleep=1):
    lp=p.lab("lw"); ok=p.lab("lwok")
    p(f"""s_mov_b32 s{cnt}, {SPIN*4}
    {lp}:
    ds_read_b32 v{tmp}, v{addr_v}
    s_waitcnt lgkmcnt(0)
    v_cmp_{cmp}_u32 vcc, {val}, v{tmp}
    s_nop 0
    s_cbranch_vccz {ok}""")
    spin(cnt,lp,ok,sleep)
    p(f"s_branch {lp}\n{ok}:")
sHL,sHF,sHO,sPH,sHD,sT0=range(sT+1,sT+7)
def att_ids():
    p(f"""s_lshr_b32 s{sHL}, s{sSLOT}, 1
    s_and_b32 s{sHF}, s{sSLOT}, 1
    s_and_b32 s{sHO}, s{sHL}, 1
    s_lshr_b32 s{sPH}, s{sHL}, 1
    s_lshl_b32 s{sHD}, s{sHH}, 3
    s_add_u32 s{sPH}, s{sPH}, s{sHD}
    s_lshl_b32 s{sHD}, s{sHH}, 4
    s_add_u32 s{sHD}, s{sHD}, s{sHL}
    s_lshl_b32 s{sT0}, s{sRQ}, 1
    s_add_u32 s{sT0}, s{sT0}, s{sHF}
    s_lshl_b32 s{sT0}, s{sT0}, 3""")
def flag_addr(vd,vt,withq,A,B,C):
    p(f"""s_lshr_b32 s{A}, s{sHL}, 1
    s_mul_i32 s{A}, s{A}, 5
    s_lshl_b32 s{B}, s{sHO}, 1
    s_add_u32 s{A}, s{A}, s{B}
    s_add_u32 s{B}, s{A}, 2
    s_lshr_b32 s{A}, s{A}, 3
    s_lshr_b32 s{B}, s{B}, 3
    s_lshl_b32 s{B}, s{B}, 4
    s_or_b32 s{A}, s{A}, s{B}
    s_add_u32 s{B}, s{A}, 0x55
    s_lshl_b32 s{C}, s{B}, 8
    s_or_b32 s{A}, s{C}, s{A if withq else B}
    s_mul_i32 s{B}, s{sHL}, 20
    s_add_u32 s{C}, s{B}, 19
    s_lshr_b32 s{B}, s{B}, 6
    s_lshr_b32 s{C}, s{C}, 6
    s_lshl_b32 s{C}, s{C}, 4
    s_or_b32 s{B}, s{B}, s{C}
    s_add_u32 s{B}, s{B}, 0xaa
    s_lshl_b32 s{B}, s{B}, 16
    s_or_b32 s{A}, s{A}, s{B}
    v_and_b32 v{vt}, 60, v0
    v_min_u32 v{vt}, 20, v{vt}
    v_bfe_u32 v{vt}, s{A}, v{vt}, 4
    v_and_b32 v{vd}, 3, v0
    v_lshlrev_b32 v{vd}, 2, v{vd}
    v_lshl_add_u32 v{vd}, v{vt}, 7, v{vd}""")
def flag_poll(va,vt,soff,cnt,first=True,sleep=0):
    lp=p.lab("fp"); ok=p.lab("fpok");
    p(f"s_mov_b32 s{cnt}, {SPIN}")
    if not first:
        md=p.lab("fpm"); p(f"s_branch {md}")
    p(f"""{lp}:
    buffer_load_dword v{vt}, v{va}, {S4(sWS)}, s{soff} offen sc1""")
    if not first: p(f"{md}:")
    p(f"""s_waitcnt vmcnt(0)
    v_cmp_ne_u32 vcc, s{sTAG}, v{vt}
    s_nop 0
    s_cbranch_vccz {ok}""")
    spin(cnt,lp,ok,sleep)
    p(f"s_branch {lp}\n{ok}:")
def kv_dma(aLin,aTl,sK,sV,sL,A,B):
    p(f"""s_mul_i32 s{A}, s{sHO}, 1536
    s_add_u32 s{A}, s{A}, s{sK}
    s_mov_b32 m0, s{sL}
    s_add_u32 s{B}, s{A}, 1536
    buffer_load_dwordx4 v{aLin}, {S4(sWS)}, s{A} offen sc1 lds
    buffer_load_dwordx4 v{aLin}, {S4(sWS)}, s{B} offen offset:1024 sc1 lds
    s_sub_u32 s{A}, s{sK}, 2048
    s_sub_u32 s{B}, s{sV}, 3072
    buffer_load_dwordx4 v{aTl}, {S4(sWS)}, s{A} offen offset:2048 sc1 lds
    buffer_load_dwordx4 v{aLin}, {S4(sWS)}, s{B} offen offset:3072 sc1 lds
    s_add_u32 m0, s{sL}, 4096
    s_add_u32 s{B}, s{sV}, 1024
    buffer_load_dwordx4 v{aLin}, {S4(sWS)}, s{B} offen sc1 lds
    s_mov_b64 exec, s[{sLO}:{sLO+1}]
    buffer_load_dwordx4 v{aLin}, {S4(sWS)}, s{B} offen offset:1024 sc1 lds
    s_mov_b64 exec, -1""")
def kv_addr(aLin,aTl,t):
    p(f"""v_lshlrev_b32 v{aLin}, 4, v0
    v_lshrrev_b32 v{t}, 5, v0
    v_mul_u32_u24 v{t}, {2560-512}, v{t}
    v_add3_u32 v{aTl}, v{aLin}, v{t}, s{sK1024}""")
sK1024=sT+21

def halo_copy(aLin,vt,D,A,B,isB):
    sk=p.lab("nohalo"); s2_=p.lab("nohf")
    w2=CFG['wtw'][:2]=='w2' or CFG['mtw'][:2]=='w2'
    p(f"""v_mov_b32 v{vt+2}, {F_SCP}
    v_mov_b32 v{vt+3}, 1
    s_lshl_b32 s{B}, s{HW}, 2
    s_add_u32 s{B}, s{B}, {F_STG}
    v_mov_b32 v{vt}, s{B}
    s_cmp_eq_u32 s{HS+2}, 0
    s_cbranch_scc1 {sk}
    s_lshl_b32 s{A}, s{HW}, 13
    v_add_u32 v{vt+1}, s{A}, v{aLin}""")
    for xb in range(2):
        if CFG['hsplit'] or xb==0: lds_wait(vt,vt+5,B,'gt',(xb+1) if CFG['hsplit'] else 2,0)
        STAMP('hs%d'%xb)
        for i in range(4*xb,4*xb+4): p(f"ds_read_b128 {vr(D+4*i,4)}, v{vt+1} offset:{L_STG+i*1024}")
        for i in range(4*xb,4*xb+4):
            p(f"s_waitcnt lgkmcnt({4*xb+3-i})\nbuffer_store_dwordx4 {vr(D+4*i,4)}, v{HA+(i&3)}, {S4(sWS)}, s{HS+(i>>2)} offen sc1")
    n=wtouch('w2',isB)
    p(f"""s_mov_b64 exec, 1
    ds_add_u32 v{vt+2}, v{vt+3}
    v_mov_b32 v{vt}, 0
    v_mov_b32 v{vt+1}, s{sTAG}""")
    STAMP('hi')
    p(f"""s_waitcnt vmcnt({n})
    buffer_store_dword v{vt+1}, v{vt}, {S4(sWS)}, s{HS+3} offen sc1
    s_branch {s2_}
    {sk}:""")
    if w2:
        lds_wait(vt,vt+5,B,'gt',2,0)
        wtouch('w2',isB)
    p(f"""s_mov_b64 exec, 1
    ds_add_u32 v{vt+2}, v{vt+3}
    {s2_}:
    s_mov_b64 exec, -1""")
    STAMP('halo')
def helperA(steps):
    A=sT+7; B=sT+8; vt=10
    aS=44; dS=64; acc=60; one=43
    p(f"""s_lshl_b32 s{sT+16}, s{HW}, 13
    v_bfe_u32 v{vt}, v0, 1, 3
    v_lshlrev_b32 v{vt}, 4, v{vt}
    v_lshl_add_u32 v{vt}, v0, 7, v{vt}
    v_add_u32 v{aS}, s{sT+16}, v{vt}
    v_mov_b32 v{one}, 0x3f803f80""")
    for i in range(1,8): p(f"v_xor_b32 v{aS+i}, {16*i}, v{aS}")
    for i in range(8): p(f"v_add_u32 v{aS+8+i}, 0x10000, v{aS+i}")
    for i in range(4): p(f"v_mov_b32 v{acc+i}, 0")
    def stats(c):
        for i in range(8): p(f"ds_read_b128 {vr(dS+4*i,4)}, v{aS+8*((c>>1)&1)+i} offset:{(c&1)*32768}")
        for i in range(8):
            p(f"s_waitcnt lgkmcnt({7-i})")
            for j in range(4):
                r=dS+4*i+j
                p(f"v_dot2_f32_bf16 v{acc+(j&1)}, v{r}, v{one}, v{acc+(j&1)}\nv_dot2_f32_bf16 v{acc+2+(j&1)}, v{r}, v{r}, v{acc+2+(j&1)}")
    def hook(c):
        if c==6:
            qkv_touch(); OPS.extend(['pt']*wtouch('w1',0))
        stats(c)
    steps(hook)
    for c in (7,8,9):
        vmwait(c); p("s_barrier"); STAMP('ld%d'%c)
        if c==9: STAMP('hb9')
        stats(c)
    t=vt
    p(f"""s_barrier
    s_nop 0
    v_add_f32 v{t+1}, v{acc}, v{acc+1}
    v_add_f32 v{t+2}, v{acc+2}, v{acc+3}
    v_mul_f32 v{t+1}, {1/640!r}, v{t+1}
    v_mul_f32 v{t+2}, {1/640!r}, v{t+2}
    v_fma_f32 v{t+2}, -v{t+1}, v{t+1}, v{t+2}
    v_max_f32 v{t+2}, 0, v{t+2}""")
    bf16r(t+2,t+2)
    p(f"v_add_f32 v{t+2}, 0x3727c5ac, v{t+2}")
    bf16r(t+2,t+2)
    p(f"""v_sqrt_f32 v{t+2}, v{t+2}
    v_xor_b32 v{t+1}, 0x80000000, v{t+1}""")
    bf16r(t+2,t+2)
    p(f"""v_rcp_f32 v{t+5}, v{t+2}
    v_cvt_pk_bf16_f32 v{t+4}, v{t+1}, v{t+1}
    s_lshl_b32 s{B}, s{HW}, 9
    s_add_u32 s{B}, s{B}, {L_SA}
    v_lshl_add_u32 v{t+1}, v0, 3, s{B}
    s_lshl_b32 s{B}, s{HW}, 8
    s_add_u32 s{B}, s{B}, {L_SR}
    v_lshl_add_u32 v{t+2}, v0, 2, s{B}
    ds_write_b64 v{t+1}, v[{t+4}:{t+5}]
    ds_write_b32 v{t+2}, v{t+5}
    s_waitcnt lgkmcnt(0)
    s_barrier""")
    STAMP('hE1')
    att_ids()
    aLin=6; aTl=7; aF=8; D=40
    p(f"s_mov_b32 s{sK1024}, 1024")
    kv_addr(aLin,aTl,vt)
    flag_addr(aF,vt,0,A,B,sT+17)
    halo_copy(aLin,vt,D,A,B,0)
    p(f"v_mov_b32 v{vt}, {F_SCP}\nv_mov_b32 v{vt+1}, 1")
    if 'w2b' in (CFG['wtw'],CFG['mtw']):
        lds_wait(vt,vt+5,sT+17,'gt',4,1); wtouch('w2b',0)
    sF=sT+9; sK=sT+10; sV=sT+11; sL=sT+16; C=sT+17
    dn=p.lab("g2done")
    p(f"""s_cmp_eq_u32 s{sT0}, 0
    s_cbranch_scc1 {dn}
    s_cmp_eq_u32 s{sHF}, 0
    s_cselect_b32 s{A}, {FH-2*2048+16-FL}, 0
    s_cselect_b32 s{B}, {KH-KB}, 0
    s_lshl_b32 s{sF}, s{sG}, 11
    s_add_u32 s{sF}, s{sF}, s{A}
    s_add_u32 s{sF}, s{sF}, {FL}
    s_lshl_b32 s{A}, s{HW}, 2
    s_sub_u32 s{A}, s{sT0}, s{A}
    s_sub_u32 s{A}, s{A}, 2
    s_mul_i32 s{sK}, s{A}, 2560
    s_mul_i32 s{sV}, s{A}, 1280
    s_mul_i32 s{A}, s{sPH}, {64*2560}
    s_add_u32 s{sK}, s{sK}, s{A}
    s_add_u32 s{sK}, s{sK}, s{B}
    s_add_u32 s{sK}, s{sK}, {KB}
    s_mul_i32 s{A}, s{sHD}, 81920
    s_add_u32 s{sV}, s{sV}, s{A}
    s_add_u32 s{sV}, s{sV}, s{B}
    s_add_u32 s{sV}, s{sV}, {VB}
    s_mul_i32 s{sL}, s{HW}, {-2*5632}
    s_add_u32 s{sL}, s{sL}, {L_KV+3*5632}""")
    lds_wait(vt,vt+5,C,'gt',4,1)
    flag_poll(aF,vt+5,sF,C,sleep=1)
    STAMP('hf')
    kv_dma(aLin,aTl,sK,sV,sL,A,B)
    p(f"""s_sub_u32 s{sK}, s{sK}, 5120
    s_sub_u32 s{sV}, s{sV}, 2560
    s_sub_u32 s{sL}, s{sL}, 5632""")
    kv_dma(aLin,aTl,sK,sV,sL,A,B)
    p(f"""s_waitcnt vmcnt(0)
    {dn}:
    v_mov_b32 v{vt}, {F_G2}
    s_mov_b64 exec, 1
    ds_add_u32 v{vt}, v{vt+1}
    s_mov_b64 exec, -1""")
    wtouch('w3',0)
    STAMP('g2')

def tr_addr(a0,t):
    tab=[[0,8],[4,12],[16,36],[20,28],[24,32]]
    pk=[sum((tab[u][rd]//4)<<(4*u) for u in range(5)) for rd in range(2)]
    A=sT+7; B=sT+8
    p(f"""s_mov_b32 s{A}, {pk[0]}
    s_mov_b32 s{B}, {pk[1]}
    v_bfe_u32 v{t}, v0, 2, 2
    v_mul_u32_u24 v{t}, 160, v{t}
    v_and_b32 v{t+1}, 3, v0
    v_mad_u32_u24 v{t}, v{t+1}, 40, v{t}
    v_lshrrev_b32 v{t+1}, 4, v0""")
    for s_ in range(5):
        p(f"""v_add_u32 v{t+2}, {4*s_}, v{t+1}
        v_mul_u32_u24 v{t+4}, 52, v{t+2}
        v_lshrrev_b32 v{t+4}, 8, v{t+4}
        v_mul_u32_u24 v{t+5}, 5, v{t+4}
        v_sub_u32 v{t+2}, v{t+2}, v{t+5}
        v_lshlrev_b32 v{t+2}, 2, v{t+2}
        v_mul_u32_u24 v{t+4}, 10, v{t+4}""")
        for rd in range(2):
            p(f"""v_bfe_u32 v{t+3}, s{(A,B)[rd]}, v{t+2}, 4
            v_add_u32 v{t+3}, v{t+3}, v{t+4}
            v_mul_u32_u24 v{t+3}, 640, v{t+3}
            v_add_u32 v{a0+2*s_+rd}, v{t+3}, v{t}""")
sBLK,sJ=sT+9,sT+10
def wo_ids():
    p(f"""s_lshr_b32 s{sBLK}, s{sSLOT}, 3
    s_lshl_b32 s{sJ}, s{sG}, 2
    s_add_u32 s{sBLK}, s{sBLK}, s{sJ}
    s_and_b32 s{sJ}, s{sSLOT}, 7""")
def clr_ids(A,B,C,D_):
    p(f"""s_lshr_b32 s{C}, s{sSLOT}, 3
    s_lshl_b32 s{B}, s{sG}, 2
    s_add_u32 s{C}, s{C}, s{B}
    s_lshl_b32 s{C}, s{C}, 3
    s_and_b32 s{B}, s{sSLOT}, 7
    s_add_u32 s{D_}, s{C}, s{B}
    s_lshr_b32 s{A}, s{D_}, 1
    s_mul_i32 s{A}, s{A}, 20480
    s_and_b32 s{B}, s{B}, 1
    s_mul_i32 s{B}, s{B}, 5120
    s_add_u32 s{A}, s{A}, s{B}
    s_add_u32 s{A}, s{A}, {OB}
    s_mul_i32 s{B}, s{sHH}, 10240
    s_add_u32 s{C}, s{A}, 10240
    s_add_u32 s{A}, s{A}, s{B}
    s_sub_u32 s{C}, s{C}, s{B}
    s_lshl_b32 s{D_}, s{D_}, 10
    s_add_u32 s{D_}, s{D_}, {PS}""")
def clears(part):
    A=sT+13; B=sT+14; C=sT+15; D_=sT+16; D=8; aL=7
    if part==0:
        clr_ids(A,B,C,D_)
        p(f"v_lshlrev_b32 v{aL}, 4, v0")
        for r in range(4): p(f"v_mov_b32 v{D+r}, -1")
        return
    st4=lambda so,off,sc: f"buffer_store_dwordx4 v[{D}:{D+3}], v{aL}, {S4(sWS)}, s{so} offen offset:{off} {sc}"
    w2=p.lab("clw2"); w3=p.lab("clw3"); dn=p.lab("cldn")
    p(f"""s_cmp_ge_u32 s{sWAVE}, 2
    s_cbranch_scc1 {w2}
    s_mul_i32 s{B}, s{sWAVE}, 2560
    s_add_u32 s{A}, s{A}, s{B}""")
    for o in (0,1024,1536): p(st4(A,o,""))
    p(f"""s_branch {dn}
    {w2}:
    s_cmp_eq_u32 s{sWAVE}, 3
    s_cbranch_scc1 {w3}
    s_mul_i32 s{C}, s2, 2560
    s_add_u32 s{C}, s{C}, {CAND}""")
    for o in (0,1024,1536): p(st4(C,o,"sc1"))
    p(f"""s_branch {dn}
    {w3}:
    s_cmp_ge_u32 s2, 24
    s_cbranch_scc1 {dn}
    s_lshl_b32 s{C}, s2, 10
    s_add_u32 s{C}, s{C}, {ACT}""")
    p(st4(C,0,"sc1"))
    p(f"{dn}:")
def code_pf():
    A=sT+18
    p(f"""s_getpc_b64 s[{A}:{A+1}]
    L_pc:
    s_sub_u32 s{A}, s{A}, L_pc-{NAME}_kernel
    s_subb_u32 s{A+1}, s{A+1}, 0
    s_lshl_b32 s{A+2}, s{sSLOT}, 2
    s_add_u32 s{A+2}, s{A+2}, s{sWAVE}
    s_mul_i32 s{A+2}, s{A+2}, 384
    s_min_u32 s{A+2}, s{A+2}, (L_exit-{NAME}_kernel-384)&0xffffff80""")
    for i in range(3): p(f"s_load_dwordx2 s[100:101], s[{A}:{A+1}], s{A+2} offset:{i*128+60}")
def wave_sum(x,t):
    dp="row_mask:0xf bank_mask:0xf"
    for c in ("quad_perm:[1,0,3,2]","quad_perm:[2,3,0,1]","row_half_mirror","row_mirror"):
        p(f"s_nop 1\nv_add_f32_dpp v{x}, v{x}, v{x} {c} {dp}")
    for sw in (16,32):
        p(f"""v_mov_b32 v{t}, v{x}
        s_nop 1
        v_permlane{sw}_swap_b32 v{x}, v{t}
        s_nop 0
        v_add_f32 v{x}, v{x}, v{t}""")
sPF=sT+16
def pf_group(n=5):
    for i in range(n): p(f"s_load_dwordx2 s[100:101], s[{sWO}:{sWO+1}], s{sPF} offset:{i*128+60}")
    p(f"""s_add_u32 s{sPF}, s{sPF}, {n*128}
    s_sub_u32 s{sPF+2}, s{sPF+2}, 1
    s_add_u32 s{sPF+3}, s{sPF+1}, 12800
    s_cmp_eq_u32 s{sPF}, s{sPF+3}
    s_cselect_b32 s{sPF}, s{sPF+1}, s{sPF}""")
def helperB(steps):
    A=sT+7; B=sT+8; vt=2; aD=140; aT=146; aLin=12; D=40; WRr=32
    sO=sT+1; sL=sT+2; sL0=sT+3; sL1=sT+4; C=sT+5
    p("L_helperB:")
    vM=23; x=10; a=sT+16
    clr_ids(a,a+1,a+2,a+3)
    p(f"""s_mul_i32 s{a+1}, s{HW}, 25
    s_sub_u32 s{a+1}, s{a+1}, 50
    v_min_u32 v{x}, 24, v0
    v_add_u32 v{x}, s{a+1}, v{x}
    v_min_u32 v{x}, 48, v{x}
    s_sub_u32 s{a+3}, s{a+3}, {40*128}
    s_and_b32 s{a+1}, s{sSLOT}, 15
    s_lshl_b32 s{a+2}, s{sG}, 4
    s_add_u32 s{a+1}, s{a+1}, s{a+2}
    s_lshl_b32 s{a+1}, s{a+1}, 7
    s_add_u32 s{a+1}, s{a+1}, {FL-48*128}
    v_mov_b32 v{x+1}, s{a}
    v_mov_b32 v{x+2}, s{a+3}
    v_cmp_le_u32 vcc, 40, v{x}
    v_mov_b32 v{x+3}, s{a+1}
    s_mul_i32 s{a+1}, s{sSLOT}, {200*128}
    v_cndmask_b32 v{x+1}, v{x+1}, v{x+2}, vcc
    v_cmp_le_u32 vcc, 48, v{x}
    s_mul_i32 s{a}, s{HW}, {100*128}
    s_add_u32 s{a+1}, s{a+1}, s{a}
    v_cndmask_b32 v{x+1}, v{x+1}, v{x+3}, vcc
    v_lshl_add_u32 v{vM}, v{x}, 7, v{x+1}
    s_sub_u32 s{sPF+1}, s{a+1}, {200*128}
    s_mul_i32 s{sPF}, s{sG}, 5
    s_lshr_b32 s{sPF}, s{sPF}, 1
    s_mul_i32 s{sPF}, s{sPF}, 640
    s_add_u32 s{sPF}, s{sPF}, s{sPF+1}
    s_mov_b32 s{sPF+2}, 20
    v_lshlrev_b32 v{vH+4}, 4, v0
    v_add_u32 v{vH+4}, {H1}, v{vH+4}
    v_mul_u32_u24 v{WRr+5}, 20, v0""")
    npf=CFG['npf']
    for _ in range(npf[0]): pf_group()
    def hook(c):
        if c==6:
            p(f"buffer_load_dwordx4 v[{vH}:{vH+3}], v{vH+4}, {S4(sWS)}, 0 offen sc1"); OPS.append('h1')
            qkv_touch()
            OPS.extend(['pt']*touch(vM,sWS,CFG['qpair'],CFG['tpol']))
            p(f"buffer_load_dwordx4 {vr(WRr,4)}, v{WRr+5}, {S4(sWR)}, 0 offen\nbuffer_load_dword v{WRr+4}, v{WRr+5}, {S4(sWR)}, 0 offen offset:16"); OPS.extend(['wr','wr'])
            OPS.extend(['pt']*wtouch('w1',1))
        for _ in range(npf[1+c]): pf_group()
    steps(hook)
    vmwait(7); p("s_barrier"); STAMP('ld7')
    for _ in range(npf[8]): pf_group()
    wo_ids()
    T=[[0,2],[1,3],[4,9],[5,7],[6,8]]
    NIB=[sum((10*((4*s5+g_)//5)+T[(4*s5+g_)%5][rd]-(8*s5+2*g_-2))<<(4*(4*rd+g_)) for rd in range(2) for g_ in range(4)) for s5 in range(5)]
    aB=130; sK=sT+11; sN=sT+16; sS=sT+17
    for i in range(5):
        p(f"""v_add_u32 v{vt}, {64*i}, v0
        v_mul_u32_u24 v{vt+1}, 6554, v{vt}
        v_lshrrev_b32 v{vt+1}, 16, v{vt+1}
        v_mul_u32_u24 v{vt+2}, 10, v{vt+1}
        v_sub_u32 v{vt}, v{vt}, v{vt+2}
        v_and_b32 v{aB+5+i}, 28, v{vt+1}
        v_and_b32 v{vt+2}, 3, v{vt+1}
        v_mul_u32_u24 v{vt+2}, 1280, v{vt+2}
        v_lshl_add_u32 v{vt}, v{vt}, 4, v{vt+2}
        v_bfe_u32 v{vt+1}, v{vt+1}, 2, 2
        v_mul_u32_u24 v{vt+1}, 10240, v{vt+1}
        v_add_u32 v{aB+i}, v{vt}, v{vt+1}""")
        if 0<i<4: p(f"v_subrev_u32 v{aB+i}, {i*1024}, v{aB+i}")
    p(f"""s_lshr_b32 s{A}, s{sSLOT}, 3
    s_mul_i32 s{A}, s{A}, 5
    s_lshr_b32 s{A}, s{A}, 1
    s_add_u32 s{A}, s{A}, s{HW}
    s_sub_u32 s{sK}, s{A}, 2
    v_mov_b32 v{vt}, 5120""")
    def woaddr(n):
        p(f"""s_add_u32 s{A}, s{sK}, {2*n}
        s_sub_u32 s{B}, s{A}, 10
        s_cselect_b32 s{A}, s{A}, s{B}
        s_sub_u32 s{B}, s{A}, 5
        s_cselect_b32 s{B}, s{A}, s{B}
        s_mul_i32 s{sS}, s{A}, 40960
        s_sub_u32 s{sS}, s{sS}, 10240
        s_mov_b32 s{sN}, {hex(NIB[0])}""")
        for k in range(1,5): p(f"s_cmp_eq_u32 s{B}, {k}\ns_cselect_b32 s{sN}, {hex(NIB[k])}, s{sN}")
        for i in range(5):
            p(f"""v_bfe_u32 v{vt+1}, s{sN}, v{aB+5+i}, 4
            v_mad_u32_u24 v{vt+1}, v{vt+1}, v{vt}, v{aB+i}
            v_add_u32 v{aD+5*n+i}, s{sS}, v{vt+1}""")
    for n in range(2): woaddr(n)
    st=dict(n=0)
    def dma(cnt):
        for _ in range(min(cnt,50-st['n'])):
            n=st['n']; i=n%5; k=(n//5)%5
            if n==0 or n==25:
                p(f"""s_xor_b32 s{A}, s{sHH}, {n//25}
                s_mul_i32 s{sO}, s{A}, {320*1280}
                s_mul_i32 s{sL0}, s{A}, 51200
                s_add_u32 s{sL0}, s{sL0}, {L_WO}
                s_mul_i32 s{A}, s{sJ}, 160
                s_add_u32 s{sO}, s{sO}, s{A}""")
            if i==0: p(f"""s_add_u32 s{A}, s{sK}, {2*k}
                s_sub_u32 s{B}, s{A}, 10
                s_cselect_b32 s{A}, s{A}, s{B}
                s_mul_i32 s{sL}, s{A}, 5120
                s_add_u32 s{sL}, s{sL}, s{sL0}
                s_mov_b32 m0, s{sL}
                s_nop 0""")
            if i==4: p(f"s_add_u32 m0, s{sL}, 4096\ns_nop 0")
            p(f"buffer_load_dwordx4 v{aD+5*k+i}, {S4(sWO)}, s{sO} offen offset:{(i&3)*1024} {CFG['wopol']} lds")
            OPS.append('wo%d'%(n//25))
            st['n']+=1
    vmwait(8); p("s_barrier")
    for _ in range(npf[9]): pf_group()
    for n in range(2,5): woaddr(n)
    p(f"v_lshlrev_b32 v{aLin}, 4, v0")
    vmwait(9); p("s_barrier")
    vmwait('h1')
    lp=p.lab("hello"); ok=p.lab("hello_ok"); ne=p.lab("noep")
    p(f"""s_mov_b32 s{A}, {SPIN}
    {lp}:
    v_xor_b32 v{vH}, s{sTAG}, v{vH}
    v_xor_b32 v{vH+1}, s{sTAG}, v{vH+1}
    v_xor_b32 v{vH+2}, s{sTAG}, v{vH+2}
    v_xor_b32 v{vH+3}, s{sTAG}, v{vH+3}
    v_or3_b32 v{vt}, v{vH}, v{vH+1}, v{vH+2}
    v_or_b32 v{vt}, v{vt}, v{vH+3}
    v_cmp_lt_u32 vcc, 15, v{vt}
    s_nop 0
    s_cbranch_vccz {ok}""")
    spin(A,lp,ok,4)
    p(f"""buffer_load_dwordx4 v[{vH}:{vH+3}], v{vH+4}, {S4(sWS)}, 0 offen sc1
    s_waitcnt vmcnt(0)
    s_branch {lp}
    {ok}:
    v_lshl_or_b32 v{vH}, v{vH+1}, 4, v{vH}
    v_lshl_or_b32 v{vH+2}, v{vH+3}, 4, v{vH+2}
    v_lshl_or_b32 v{vH}, v{vH+2}, 8, v{vH}
    v_and_b32 v{vt}, 1, v0
    v_readlane_b32 s{A}, v{vH}, 0
    v_readlane_b32 s{B}, v{vH}, 1
    v_cmp_eq_u32 vcc, 0, v{vt}
    v_mov_b32 v{vt+1}, s{A}
    v_mov_b32 v{vt+2}, s{B}
    v_cndmask_b32 v{vt+1}, v{vt+2}, v{vt+1}, vcc
    v_cmp_ne_u32 vcc, v{vt+1}, v{vH}
    v_mov_b32 v{vt}, {L_MODE}
    s_cmp_lg_u64 vcc, 0
    s_cselect_b32 s{sMODE}, 1, {CFG['force_slow']}
    v_mov_b32 v{vt+1}, s{sMODE}
    ds_write_b32 v{vt}, v{vt+1}
    s_barrier
    s_waitcnt lgkmcnt(0)
    s_barrier""")
    vmw=len(OPS)-1-max(i for i,t in enumerate(OPS) if t=='wr')
    STAMP('hE1')
    p(f"""v_mov_b32 v{vt}, 0x3f803f80
    v_mov_b32 v{vt+1}, 0
    s_waitcnt vmcnt({vmw})""")
    for k in range(5): p(f"v_dot2_f32_bf16 v{vt+1}, v{WRr+k}, v{vt}, v{vt+1}")
    p("s_nop 0")
    wave_sum(vt+1,vt+2)
    p(f"v_mov_b32 v{vt}, {L_SWS}\nds_write_b32 v{vt}, v{vt+1}")
    halo_copy(aLin,vt,D,A,B,1)
    p(f"""s_add_u32 s{A}, s2, s{HW}
    s_cmp_lg_u32 s{A}, 2
    s_cbranch_scc1 {ne}
    s_add_u32 s{A}, s{sEP}, 1
    v_mov_b32 v{vt}, {EPO}
    v_mov_b32 v{vt+1}, s{A}
    s_mov_b64 exec, 1
    buffer_store_dword v{vt+1}, v{vt}, {S4(sWS)}, 0 offen sc1
    s_mov_b64 exec, -1
    {ne}:
    v_mov_b32 v{vt}, {F_SCP}""")
    if 'w2b' in (CFG['wtw'],CFG['mtw']):
        lds_wait(vt,vt+1,A,'gt',4,1); wtouch('w2b',1)
    p(f"v_mov_b32 v{vt}, {F_G1}")
    lds_wait(vt,vt+1,A,'gt',4,1)
    wtouch('w3',1)
    STAMP('wo_s')
    del OPS[:]
    thr=CFG['wothr']; gs=CFG['wogs']; thr1=CFG['wothr1']
    def more(n,dyn=False):
        while n>0 and st['n']<50:
            k=min(gs,n)
            if dyn and thr1<thr and st['n']>=thr1:
                sk=p.lab("wog")
                p(f"""ds_read_b32 v{vt+1}, v{vt} offset:{F_G2-F_G1}
                s_waitcnt lgkmcnt(0)
                v_cmp_gt_u32 vcc, 2, v{vt+1}
                s_nop 0
                s_cbranch_vccz {sk}
                s_waitcnt vmcnt({max(0,thr1-k)})
                {sk}:""")
            if st['n']>=thr: p(f"s_waitcnt vmcnt({max(0,thr-k)})")
            dma(k); n-=k
    def sig(f):
        p(f"""v_mov_b32 v{vt+2}, {f}
        v_mov_b32 v{vt+3}, 1
        s_mov_b64 exec, 1
        ds_add_u32 v{vt+2}, v{vt+3}
        s_mov_b64 exec, -1""")
    more(25+min(thr,15),True)
    vmwait('wo0')
    sig(F_WOR)
    STAMP('wo_0')
    more(50)
    sig(F_WOD)
    STAMP('wo_1')
    p("s_waitcnt vmcnt(0)")
    sig(F_WO2)
    STAMP('wo')

ACC=64; CS=128; XF=132; WF=148; SEL=164; aX=168; aW=172; aST=174; aSG=178; vT=2
sWR_,sWC,sLC,sTY,sSO,sHALO,sFO,sSO2=range(sT,sT+8)
def gemm_setup():
    t=vT; A=sT+10; B=sT+11
    wave_ids(sWAVE,sWR_,sWC,sLC,sTY)
    p(f"""v_and_b32 v{t}, 31, v0
    s_lshl_b32 s{A}, s{sWR_}, 6
    v_add_u32 v{t+1}, s{A}, v{t}
    v_lshlrev_b32 v{t+1}, 7, v{t+1}
    v_lshrrev_b32 v{t+2}, 5, v0
    v_bfe_u32 v{t+3}, v0, 1, 3
    v_xor_b32 v{t+3}, v{t+3}, v{t+2}
    v_lshl_add_u32 v{aX}, v{t+3}, 4, v{t+1}""")
    for s in range(1,4): p(f"v_xor_b32 v{aX+s}, {32*s}, v{aX}")
    p(f"""v_bfe_u32 v{t+3}, v0, 2, 2
    v_lshl_add_u32 v{t+4}, v{t+2}, 3, v{t+3}
    v_lshlrev_b32 v{t+4}, 8, v{t+4}
    s_lshl_b32 s{A}, s{sWC}, 1
    s_or_b32 s{A}, s{A}, s{sWR_}
    v_xor_b32 v{t+3}, s{A}, v{t+3}
    v_lshl_add_u32 v{t+4}, v{t+3}, 6, v{t+4}
    v_bfe_u32 v{t+3}, v0, 4, 1
    v_lshl_add_u32 v{t+4}, v{t+3}, 5, v{t+4}
    v_and_b32 v{t+5}, 3, v0
    v_lshl_add_u32 v{t+4}, v{t+5}, 3, v{t+4}
    v_add_u32 v{aW}, 16384, v{t+4}
    v_xor_b32 v{aW+1}, 64, v{aW}
    v_bfe_u32 v{t+4}, v0, 2, 1
    v_cmp_eq_u32 vcc, v{t+3}, v{t+4}
    v_mov_b32 v{t+5}, 0x3f803f80
    s_nop 0
    v_cndmask_b32 v{SEL}, 0, v{t+5}, vcc
    v_cndmask_b32 v{SEL+1}, 0, v{t+5}, vcc
    v_cndmask_b32 v{SEL+2}, 0, v{t+5}, vcc
    v_cndmask_b32 v{SEL+3}, 0, v{t+5}, vcc""")
    for r in list(range(ACC,ACC+64))+list(range(CS,CS+4)): p(f"v_mov_b32 v{r}, 0")
    store_addr(sWR_,sLC,sTY,sSO,sSO2,sHALO,sFO,aST,sT+10,sT+11)
    p(f"""s_lshl_b32 s{A}, s{sWAVE}, 13
    v_lshl_add_u32 v{aSG}, v0, 4, s{A}
    s_lshl_b32 s{A}, s{sWAVE}, 2
    s_add_u32 s{A}, s{A}, {F_STG}
    v_mov_b32 v{aSG+1}, s{A}""")
def wave_ids(wave,wr,wc,lc,ty):
    p(f"""s_and_b32 s{wr}, s{wave}, 1
    s_lshr_b32 s{wc}, s{wave}, 1
    s_lshl_b32 s{lc}, s{sCT}, 1
    s_add_u32 s{lc}, s{lc}, s{wc}
    s_mul_i32 s{ty}, s{lc}, 52
    s_lshr_b32 s{ty}, s{ty}, 8""")
def store_addr(wr,lc,ty,so,so2,halo,fo,ast,A,B,t=2):
    p(f"""v_and_b32 v{t}, 31, v0
    v_lshrrev_b32 v{t+2}, 5, v0
    s_mul_i32 s{A}, s{ty}, 5
    s_sub_u32 s{A}, s{lc}, s{A}
    s_mul_i32 s{B}, s{sHH}, 5
    s_add_u32 s{A}, s{A}, s{B}
    s_lshl_b32 s{B}, s{sRQ}, 2
    s_add_u32 s{B}, s{B}, s{sRB}
    s_lshl_b32 s{B}, s{B}, 1
    s_add_u32 s{B}, s{B}, s{wr}
    s_lshl_b32 s{B}, s{B}, 1""")
    isv=p.lab("isv"); jn=p.lab("stj")
    p(f"""s_cmp_ge_u32 s{ty}, 2
    s_cbranch_scc1 {isv}
    s_mul_i32 s{so}, s{B}, 2560
    s_mul_i32 s{B}, s{ty}, {KB}
    s_add_u32 s{so}, s{so}, s{B}
    s_add_u32 s{so2}, s{so}, 2560
    s_lshl_b32 s{A}, s{A}, 3""")
    for cb in range(2):
        for ip in range(2):
            p(f"""s_xor_b32 s{B}, s{wr}, {cb}
            s_lshl_b32 s{B}, s{B}, 2
            s_add_u32 s{B}, s{B}, s{A}
            s_add_u32 s{B}, s{B}, {2*ip}
            v_add_u32 v{t+3}, s{B}, v{t+2}
            v_mul_u32_u24 v{t+4}, 205, v{t+3}
            v_lshrrev_b32 v{t+4}, 10, v{t+4}
            v_mul_u32_u24 v{t+5}, 5, v{t+4}
            v_sub_u32 v{t+5}, v{t+3}, v{t+5}
            v_mul_u32_u24 v{t+4}, {64*2560}, v{t+4}
            v_lshl_add_u32 v{t+4}, v{t+5}, 9, v{t+4}
            v_lshl_add_u32 v{ast+2*cb+ip}, v{t}, 4, v{t+4}""")
    p(f"""s_branch {jn}
    {isv}:
    s_mul_i32 s{so}, s{B}, 1280
    s_add_u32 s{so}, s{so}, {VB}
    s_add_u32 s{so2}, s{so}, 1280
    s_lshl_b32 s{A}, s{A}, 6""")
    for cb in range(2):
        p(f"""s_xor_b32 s{B}, s{wr}, {cb}
        s_lshl_b32 s{B}, s{B}, 5
        s_add_u32 s{B}, s{B}, s{A}
        v_add_u32 v{t+3}, s{B}, v{t}
        v_mul_u32_u24 v{t+4}, 3277, v{t+3}
        v_lshrrev_b32 v{t+4}, 16, v{t+4}
        v_mul_u32_u24 v{t+5}, 20, v{t+4}
        v_sub_u32 v{t+5}, v{t+3}, v{t+5}
        v_mul_u32_u24 v{t+4}, 81920, v{t+4}
        v_lshl_add_u32 v{t+4}, v{t+5}, 4, v{t+4}
        v_mul_u32_u24 v{t+5}, 320, v{t+2}
        v_add_u32 v{ast+2*cb}, v{t+4}, v{t+5}
        v_add_u32 v{ast+2*cb+1}, 640, v{ast+2*cb}""")
    p(f"""{jn}:
    s_sub_u32 s{A}, s{ty}, 1
    s_cmp_lt_u32 s{A}, 2
    s_cselect_b32 s{halo}, 1, 0
    s_cmp_ge_u32 s{sRB}, 2
    s_cselect_b32 s{halo}, s{halo}, 0
    s_cmp_lt_u32 s{sRQ}, 3
    s_cselect_b32 s{halo}, s{halo}, 0
    s_lshl_b32 s{fo}, s{sG}, 4
    s_add_u32 s{fo}, s{fo}, s{lc}
    s_lshl_b32 s{fo}, s{fo}, 5
    s_lshl_b32 s{A}, s{sRB}, 1
    s_add_u32 s{A}, s{A}, s{wr}
    s_add_u32 s{fo}, s{fo}, s{A}
    s_lshl_b32 s{fo}, s{fo}, 2
    s_add_u32 s{fo}, s{fo}, {FL}""")
def xf(buf,xb): return XF+8*buf+4*xb
def wf(buf,cb): return WF+8*buf+4*cb
def reads(kind,buf,par,s):
    L=[]
    for xb in range(2): L.append(f"ds_read_b128 {vr(xf(buf,xb),4)}, v{aX+s} offset:{par*32768+xb*4096}")
    if kind!='S':
        for cb in range(2):
            for rd in range(2): L.append(f"ds_read_b64_tr_b16 {vr(wf(buf,cb)+2*rd,2)}, v{aW+cb} offset:{par*32768+s*4096+rd*1024}")
        L=[L[2],L[3],L[0],L[1],L[4],L[5]]
    return L
def mfmas(kind,buf):
    L=[]
    if kind=='S':
        for xb in range(2):
            x=xf(buf,xb)
            L.append(f"v_mfma_f32_16x16x32_bf16 {vr(ACC+4*xb,4)}, {vr(SEL,4)}, {vr(x,4)}, {vr(ACC+4*xb,4)}")
            L.append(f"v_mfma_f32_4x4x4_16b_bf16 {vr(ACC+8+8*xb,4)}, {vr(x,2)}, {vr(x,2)}, {vr(ACC+8+8*xb,4)}")
            L.append(f"v_mfma_f32_4x4x4_16b_bf16 {vr(ACC+12+8*xb,4)}, {vr(x+2,2)}, {vr(x+2,2)}, {vr(ACC+12+8*xb,4)}")
        return L
    for cb in range(2):
        for xb in range(2):
            a=ACC+16*(2*xb+cb); X=vr(xf(buf,xb),4); W=vr(wf(buf,cb),4)
            L.append(f"v_mfma_f32_32x32x16_bf16 {vr(a,16)}, {W if kind=='T' else X}, {X if kind=='T' else W}, {vr(a,16)}")
    L.insert(2,f"v_mfma_f32_16x16x32_bf16 {vr(CS,4)}, {vr(SEL,4)}, {vr(wf(buf,0),4)}, {vr(CS,4)}")
    return L
def gemm_loop(kind):
    CNT=sT+10
    lp=p.lab("g"+kind)
    p("s_barrier")
    STAMP('b0')
    for r in reads(kind,0,0,0): p(r)
    if CFG['clr']==1: clears(1)
    hl=p.lab("hello"); hr=p.lab("hellor")
    if kind!='S':
        COLD.append(f"""{hl}:
        s_getreg_b32 s{CNT+1}, hwreg(HW_REG_XCC_ID, 0, 4)
        s_or_b32 s{CNT+1}, s{CNT+1}, s{sTAG}
        v_mov_b32 v{vT}, s{CNT+1}
        s_lshl_b32 s{CNT+1}, s2, 2
        s_add_u32 s{CNT+1}, s{CNT+1}, {H1}
        v_mov_b32 v{vT+1}, 0
        s_mov_b64 exec, 1
        buffer_store_dword v{vT}, v{vT+1}, {S4(sWS)}, s{CNT+1} offen sc1
        s_mov_b64 exec, -1
        s_branch {hr}""")
        p(f"s_lshl_b32 s{CNT+2}, s{sWAVE}, 3\ns_add_u32 s{CNT+2}, s{CNT+2}, {5-CFG['clr']}")
    p(f"s_mov_b32 s{CNT}, 5\n{lp}:")
    for par in range(2):
        for s in range(4):
            buf=s&1
            last=(s==3)
            M=mfmas(kind,buf)
            if CFG['nomfma']: M=M[:1]
            if last and par==1:
                pre=[f"v_xor_b32 v{aX+i}, 0x10000, v{aX+i}" for i in range(4)]+[f"v_xor_b32 v{aW+i}, 0x10000, v{aW+i}" for i in range(2)]
            else: pre=[]
            R=reads(kind,buf^1,(par^1) if last else par,(s+1)&3)
            p("s_waitcnt lgkmcnt(0)")
            if last:
                p(M.pop(0))
                for x in pre: p(x)
                if par==0:
                    w1=p.lab("cw"); w2=p.lab("cwr")
                    p(f"s_cmp_eq_u32 s{CNT}, {5-CFG['clr']}\ns_cbranch_scc1 {w1}\n{w2}:")
                    COLD.append(f"{w1}:\ns_waitcnt vmcnt(0)\ns_branch {w2}")
                p("s_barrier")
                if par==0 and kind!='S': p(f"s_cmp_eq_u32 s{CNT}, s{CNT+2}\ns_cbranch_scc1 {hl}\n{hr}:")
            k=0
            while M or R:
                if R: p(R.pop(0))
                if R: p(R.pop(0))
                if M: p(M.pop(0))
    p(f"""s_sub_u32 s{CNT}, s{CNT}, 1
    s_cmp_lg_u32 s{CNT}, 0
    s_cbranch_scc1 {lp}""")
    STAMP('gend')
def bf16r(dst,src):
    p(f"v_cvt_pk_bf16_f32 v{dst}, v{src}, v{src}\nv_and_b32 v{dst}, 0xffff0000, v{dst}")
def mode_read():
    p(f"""v_mov_b32 v{vT+8}, {L_MODE}
    ds_read_b32 v{vT+9}, v{vT+8}""")
def mode_get():
    p(f"v_readfirstlane_b32 s{sMODE}, v{vT+9}")
def dual(stores):
    sl=p.lab("slow"); jn=p.lab("jn")
    p(f"s_cmp_lg_u32 s{sMODE}, 0\ns_cbranch_scc1 {sl}")
    for s in stores: p(s)
    p(f"s_branch {jn}\n{sl}:")
    for s in stores: p(s+" sc1")
    p(f"{jn}:")
def idle_gemm():
    p("s_barrier")
    if CFG['clr']==1: clears(1)
    for c in range(1,11):
        if c==1+2*CFG['clr']: p("s_waitcnt vmcnt(0)")
        p("s_barrier")
    p("s_barrier")
    mode_read()
    p(f"v_mov_b32 v{vT}, 2\nds_write_b32 v{aSG+1}, v{vT}")
    p("s_waitcnt lgkmcnt(0)")
    mode_get()
def gemm_epi(kind):
    t=vT; A=sT+10
    AU=20
    WA=24
    XA=28
    RS=32
    p(f"""v_and_b32 v{t}, 31, v0
    s_lshl_b32 s{A}, s{sWC}, 1
    s_or_b32 s{A}, s{A}, s{sWR_}
    s_lshl_b32 s{A}, s{A}, 7
    s_add_u32 s{A}, s{A}, {L_CS}
    v_lshl_add_u32 v{t+1}, v{t}, 2, s{A}
    s_lshl_b32 s{A}, s{sWR_}, 9
    s_add_u32 s{A}, s{A}, {L_SA}
    v_lshl_add_u32 v{t+3}, v{t}, 3, s{A}
    ds_write_b32 v{t+1}, v{CS}
    v_xor_b32 v{t+2}, 128, v{t+1}
    v_mov_b32 v{WA+1}, 0
    v_mov_b32 v{WA+3}, 0
    v_mov_b32 v{XA+1}, 0
    v_mov_b32 v{XA+3}, 0""")
    if kind=='V':
        p(f"""v_lshrrev_b32 v{t+4}, 5, v0
        s_lshl_b32 s{A}, s{sWR_}, 8
        s_add_u32 s{A}, s{A}, {L_SR}
        v_lshl_add_u32 v{t+4}, v{t+4}, 4, s{A}""")
    p("s_waitcnt lgkmcnt(0)\ns_barrier")
    STAMP('E1',1)
    p(f"""ds_read_b32 v{CS+1}, v{t+2}
    ds_read_b64 v[{AU}:{AU+1}], v{t+3}
    ds_read_b64 v[{AU+2}:{AU+3}], v{t+3} offset:256""")
    mode_read()
    if kind=='V':
        for xb in range(2):
            for i in range(4): p(f"ds_read_b128 {vr(RS+16*xb+4*i,4)}, v{t+4} offset:{xb*128+i*32}")
    def split(cb):
        c=CS+cb
        p(f"""v_cndmask_b32 v{c}, 0, v{c}, s[{sLO}:{sLO+1}]
        v_cvt_pk_bf16_f32 v{t+5}, v{c}, v{c}
        v_and_b32 v{t+5}, 0xffff0000, v{t+5}
        v_sub_f32 v{t+6}, v{c}, v{t+5}
        v_cvt_pk_bf16_f32 v{WA+2*cb}, v{t+5}, v{t+6}""")
    split(0)
    p(f"s_waitcnt lgkmcnt({8 if kind=='V' else 0})")
    split(1)
    p(f"v_mov_b32 v{XA}, v{AU}\nv_mov_b32 v{XA+2}, v{AU+2}")
    mode_get()
    if kind=='T':
        p(f"""s_cmp_eq_u32 s{sTY}, 0
        s_cselect_b32 s{A}, {hex(f2u(20**-0.5*math.log2(math.e)))}, 1.0
        v_mul_f32 v{AU+1}, s{A}, v{AU+1}
        v_mul_f32 v{AU+3}, s{A}, v{AU+3}""")
    else: p("s_nop 0")
    for xb in range(2):
        for cb in range(2):
            a=ACC+16*(2*xb+cb); X=vr(XA+2*xb,2); W=vr(WA+2*cb,2)
            p(f"v_mfma_f32_32x32x8_bf16 {vr(a,16)}, {W if kind=='T' else X}, {X if kind=='T' else W}, {vr(a,16)}")
    p("s_waitcnt lgkmcnt(0)\ns_nop 7")
    allst=[]
    for xb in range(2):
        st=[]
        for cb in range(2):
            a=ACC+16*(2*xb+cb)
            for k in range(8):
                if kind=='T': p(f"v_pk_mul_f32 {vr(a+2*k,2)}, {vr(a+2*k,2)}, {vr(AU+2*xb,2)} op_sel:[0,1] op_sel_hi:[1,1]")
                else: p(f"v_pk_mul_f32 {vr(a+2*k,2)}, {vr(a+2*k,2)}, {vr(RS+16*xb+2*k,2)}")
            for k in range(8): p(f"v_cvt_pk_bf16_f32 v{a+k}, v{a+2*k}, v{a+2*k+1}")
            if kind=='T':
                p(f"""v_permlane32_swap_b32 v{a}, v{a+2}
                v_permlane32_swap_b32 v{a+1}, v{a+3}
                v_permlane32_swap_b32 v{a+4}, v{a+6}
                v_permlane32_swap_b32 v{a+5}, v{a+7}""")
            for h in range(2):
                st.append(f"buffer_store_dwordx4 {vr(a+4*h,4)}, v{aST+2*cb+h}, {S4(sWS)}, s{sSO2 if xb else sSO} offen")
                allst.append(a+4*h)
        dual(st)
        nh=p.lab("nohalo")
        p(f"s_cmp_eq_u32 s{sHALO}, 0\ns_cbranch_scc1 {nh}")
        for i in range(4*xb,4*xb+4): p(f"ds_write_b128 v{aSG}, {vr(allst[i],4)} offset:{L_STG+i*1024}")
        if xb==0: p(f"v_mov_b32 v{t}, {xb+1}\nds_write_b32 v{aSG+1}, v{t}\n{nh}:")
        else: p(f"{nh}:\nv_mov_b32 v{t}, {xb+1}\nds_write_b32 v{aSG+1}, v{t}")
    STAMP('st')
    p(f"""v_mov_b32 v{t}, 0
    v_mov_b32 v{t+1}, s{sTAG}
    s_waitcnt vmcnt(0)
    s_mov_b64 exec, 1""")
    dual([f"buffer_store_dword v{t+1}, v{t}, {S4(sWS)}, s{sFO} offen"])
    p(f"s_mov_b64 exec, -1")
    STAMP('fl')
import struct
def f2u(x): return struct.unpack("<I",struct.pack("<f",x))[0]

aLin,aTl,aKm,aKt,aV,aFl,aO=20,21,22,23,24,25,26
QM=[28,34]; QT=[32,38]; PP=40
KM=[48,62]; KT=[52,66]; VV=[[54,58],[68,72]]
SS=[80,96]; OO=[112,128]; CD=144; CF=160
sQ=[sT+9,sT+10]; sOm=[sT+11,sT+12]; sOt=[sT+13,sT+14]; sOSC=sT+15; sFB=sT+16
NINF="0xff800000"
def att_pro():
    t=vT; A=sT+7; B=sT+8; C=sT+17; sF=sT
    wo_pre1()
    att_ids()
    flag_addr(aFl,t,1,A,B,C)
    p(f"""s_lshl_b32 s{sF}, s{sG}, 11
    s_lshl_b32 s{A}, s{sHF}, 4
    s_add_u32 s{sF}, s{sF}, s{A}
    s_add_u32 s{sF}, s{sF}, {FL}
    buffer_load_dword v{t+10}, v{aFl}, {S4(sWS)}, s{sF} offen sc1
    s_mov_b32 s{sK1024}, 1024""")
    kv_addr(aLin,aTl,t)
    p(f"""v_add_u32 v{aKm}, {L_KV}, v{aLin}
    v_and_b32 v{t}, 31, v0
    v_lshrrev_b32 v{t+1}, 5, v0
    v_xor_b32 v{t+2}, s{sHO}, v{t+1}
    v_lshlrev_b32 v{t+2}, 3, v{t+2}
    v_lshl_add_u32 v{t+2}, v{t}, 4, v{t+2}
    v_add_u32 v{aKt}, {L_KV+2048}, v{t+2}
    v_mul_u32_u24 v{t+2}, 320, v{t+1}
    v_lshl_add_u32 v{t+2}, v{t}, 4, v{t+2}
    v_add_u32 v{aV}, {L_KV+3072}, v{t+2}
    v_lshlrev_b32 v{t+2}, 2, v{t+1}
    v_sub_u32 v{t+2}, v{t}, v{t+2}
    v_mov_b32 v{t+3}, {NINF}""")
    for i in range(16):
        m=C+1+2*(i%2)+((C+1)%2)
        ri=8*(i>>2)+(i&3)
        p(f"v_cmp_le_i32 s[{m}:{m+1}], {ri}, v{t+2}")
        if i>0:
            m2=C+1+2*((i-1)%2)+((C+1)%2)
            if i==1: p("s_nop 0")
            p(f"v_cndmask_b32 v{CD+i-1}, v{t+3}, 0, s[{m2}:{m2+1}]\nv_cndmask_b32 v{CF+i-1}, 0, v{t+3}, s[{m2}:{m2+1}]")
    p(f"""s_nop 0
    v_cndmask_b32 v{CD+15}, v{t+3}, 0, s[{m}:{m+1}]
    v_cndmask_b32 v{CF+15}, 0, v{t+3}, s[{m}:{m+1}]
    v_cmp_eq_u32 s[{m}:{m+1}], 20, v{t}
    v_cmp_eq_u32 vcc, 24, v{t}
    v_mov_b32 v{t+4}, 0x3f803f80
    s_or_b64 vcc, vcc, s[{m}:{m+1}]""")
    for b_ in range(2):
        for mm in range(2):
            for r in range(4): p(f"v_cndmask_b32 v{VV[b_][mm]+r}, 0, v{t+4}, vcc")
    for q in range(2): p(f"v_mov_b32 v{QT[q]}, 0\nv_mov_b32 v{QT[q]+1}, 0")
    p(f"""v_bfe_u32 v{t+2}, v0, 4, 1
    v_mul_u32_u24 v{t+2}, 20480, v{t+2}
    v_lshl_add_u32 v{t+2}, v{t+1}, 8, v{t+2}
    v_and_b32 v{t+3}, 15, v0
    v_lshl_add_u32 v{aO}, v{t+3}, 4, v{t+2}
    s_cmp_lg_u32 s{sHF}, s{sHH}
    s_cselect_b32 s{sOSC}, 1, s{sMODE}
    s_mov_b32 s{sFB}, 0
    s_lshl_b32 s{A}, s{sWAVE}, 1
    s_sub_u32 s{A}, 7, s{A}
    v_mul_u32_u24 v{t+2}, s{A}, v0
    s_add_u32 s{A}, s{sT0}, s{sWAVE}
    v_add_lshl_u32 v{aFO}, v{t+2}, s{A}, 7
    s_lshl_b32 s{A}, s{sHD}, 2
    s_add_u32 s{A}, s{A}, {FO}
    v_add_u32 v{aFO}, s{A}, v{aFO}
    s_mul_i32 s{C}, s{sMODE}, {OB2-OB}
    s_add_u32 s{C}, s{C}, {OB}""")
    for q in range(2):
        if q==0: p(f"s_add_u32 s{A}, s{sT0}, 7\ns_sub_u32 s{A}, s{A}, s{sWAVE}")
        else: p(f"s_add_u32 s{A}, s{sT0}, s{sWAVE}")
        p(f"""s_mul_i32 s{sQ[q]}, s{A}, 2560
        s_mul_i32 s{B}, s{sPH}, {64*2560}
        s_add_u32 s{sQ[q]}, s{sQ[q]}, s{B}
        s_mul_i32 s{A}, s{A}, 40960
        s_mul_i32 s{B}, s{sPH}, 1280
        s_add_u32 s{A}, s{A}, s{B}
        s_add_u32 s{A}, s{A}, s{C}
        s_mul_i32 s{B}, s{sHO}, 768
        s_add_u32 s{sOm[q]}, s{A}, s{B}
        s_lshl_b32 s{B}, s{sHO}, 3
        s_add_u32 s{sOt[q]}, s{A}, s{B}""")
    sK=C+1; sV=C+2; sL=C+3
    p(f"""s_lshl_b32 s{A}, s{sWAVE}, 1
    s_add_u32 s{A}, s{A}, s{sT0}
    s_mul_i32 s{sK}, s{A}, 2560
    s_mul_i32 s{sV}, s{A}, 1280
    s_mul_i32 s{A}, s{sPH}, {64*2560}
    s_add_u32 s{sK}, s{sK}, s{A}
    s_add_u32 s{sK}, s{sK}, {KB}
    s_mul_i32 s{A}, s{sHD}, 81920
    s_add_u32 s{sV}, s{sV}, s{A}
    s_add_u32 s{sV}, s{sV}, {VB}
    s_mul_i32 s{sL}, s{sWAVE}, 5632
    s_add_u32 s{sL}, s{sL}, {L_KV+4*5632}
    s_mul_i32 s{A}, s{sHO}, 1536
    v_add_u32 v{t+2}, s{A}, v{aLin}
    s_lshl_b32 s{A}, s{sHO}, 3
    v_add_u32 v{t+3}, s{A}, v{aLin}""")
    p("s_waitcnt vmcnt(1)")
    wo_pre2()
    flag_poll(aFl,t+10,sF,C,first=False)
    STAMP('fseen')
    kv_dma(aLin,aTl,sK,sV,sL,A,B)
    for q in range(2): p(f"buffer_load_dwordx4 {vr(QM[q],4)}, v{t+2}, {S4(sWS)}, s{sQ[q]} offen sc1")
    p(f"s_mov_b64 exec, s[{sLO}:{sLO+1}]")
    for q in range(2): p(f"buffer_load_dwordx2 {vr(QT[q],2)}, v{t+3}, {S4(sWS)}, s{sQ[q]} offen offset:1024 sc1")
    p(f"""s_mov_b64 exec, 1
    v_mov_b32 v{t}, {F_G1}
    v_mov_b32 v{t+1}, 1
    s_waitcnt vmcnt(4)
    ds_add_u32 v{t}, v{t+1}
    s_mov_b64 exec, -1
    v_mov_b32 v{aFl}, {F_G1}""")
    lds_wait(aFl,t+5,C,'gt',4,0)
    p(f"s_waitcnt vmcnt(0)")
    STAMP('kv')
    p(f"""s_cmp_eq_u32 s{sWAVE}, 1
    s_cbranch_scc1 L_av1
    s_cmp_eq_u32 s{sWAVE}, 2
    s_cbranch_scc1 L_av2
    s_cmp_eq_u32 s{sWAVE}, 3
    s_cbranch_scc1 L_av3""")
def kreads(n,b_):
    o=(n>>1)*5632
    return [f"ds_read_b128 {vr(KM[b_],4)}, v{aKm} offset:{o+(n&1)*1024}", f"ds_read_b64 {vr(KT[b_],2)}, v{aKt} offset:{o+(n&1)*512}"]
def vreads(n,b_):
    o=(n>>1)*5632+(n&1)*1280
    return [f"s_mov_b64 exec, s[{sLO+2}:{sLO+3}]", f"ds_read_b128 {vr(VV[b_][0],4)}, v{aV} offset:{o}", f"ds_read_b128 {vr(VV[b_][1],4)}, v{aV} offset:{o+640}", "s_mov_b64 exec, -1"]
def att_variant(w):
    U=[]
    for n in range(15-w,8+w,-1): U.append((0,n))
    for n in range(8+w,6-w,-1): U+= [(0,n),(1,n)]
    for n in range(6-w,w-1,-1): U.append((1,n))
    assert len(U)==18
    diag=[15-w,8+w]
    tiles=[]; tau=[]
    for q,n in U:
        if not tiles or tiles[-1]!=n: tiles.append(n)
        tau.append(len(tiles)-1)
    first=[tau.index(i) for i in range(len(tiles))]
    started=[0,0]
    def QK(u):
        q,n=U[u]; b_=tau[u]&1; S=vr(SS[u&1],16)
        c=vr(CD,16) if n==diag[q] else (vr(CF,16) if n==diag[q]-8 else "0")
        return [f"v_mfma_f32_32x32x16_bf16 {S}, {vr(KM[b_],4)}, {vr(QM[q],4)}, {c}", f"v_mfma_f32_32x32x8_bf16 {S}, {vr(KT[b_],2)}, {vr(QT[q],2)}, {S}"]
    def PV(u,m):
        q,n=U[u]; O=vr(OO[q],16)
        c=O if started[q] else "0"; started[q]=1
        return f"v_mfma_f32_32x32x16_bf16 {O}, {vr(VV[tau[u]&1][m],4)}, {vr(PP+4*m,4)}, {c}"
    p(f"L_av{w}:")
    for i,f in enumerate(first):
        if f<=1:
            for x in kreads(tiles[i],i&1): p(x)
    for x in vreads(tiles[0],0): p(x)
    p("s_waitcnt lgkmcnt(0)")
    for x in QK(0): p(x)
    p("s_nop 7\ns_nop 3")
    pend=False
    H=first[tiles.index(7)]
    for u in range(18):
        S=SS[u&1]
        e=lambda i: p(f"v_exp_f32 v{S+i}, v{S+i}")
        c=lambda k: p(f"v_cvt_pk_bf16_f32 v{PP+k}, v{S+2*k}, v{S+2*k+1}")
        kr=[x for i,f in enumerate(first) if f==u+2 for x in kreads(tiles[i],i&1)]
        vr_=[x for i,f in enumerate(first) if f==u+1 for x in vreads(tiles[i],i&1)]
        late=(u+2==H)
        STAMP('u%d'%u)
        e(0); e(1)
        if u>0: p(PV(u-1,1))
        e(2)
        if not late:
            for x in kr: p(x)
        if u+3==H: p(f"ds_read_b32 v{vT}, v{aFl} offset:{F_G2-F_G1}")
        e(3); c(0); c(1)
        if pend: p("s_waitcnt lgkmcnt(0)") if not (kr and not late) and u+3!=H else p(f"s_waitcnt lgkmcnt({(len(kr) if not late else 0)+(1 if u+3==H else 0)})")
        qk=QK(u+1) if u<17 else [None,None]
        if qk[0]: p(qk[0])
        e(4)
        if late:
            p(f"v_cmp_gt_u32 vcc, 2, v{vT}")
        e(5)
        if late:
            p(f"s_cbranch_vccnz L_g2w{w}\nL_g2r{w}:")
            for x in kr: p(x)
        for x in vr_: p(x)
        e(6); e(7); c(2); c(3)
        if qk[1]: p(qk[1])
        e(8); e(9); e(10); e(11)
        p(PV(u,0))
        c(4); c(5); e(12); e(13); e(14); e(15); c(6); c(7)
        pend=bool(kr or vr_ or u+3==H)
        if u==H-1:
            p(f"s_cmp_eq_u32 s{sT0}, 0\ns_cbranch_scc1 L_ex{w}")
            exq=PV(u,1)
    p("s_nop 1")
    p(PV(17,1))
    p("s_branch L_afin")
    p(f"L_g2w{w}:")
    p(f"v_mov_b32 v{vT+1}, {F_G2}")
    lds_wait(vT+1,vT,sT+17,'gt',2,1)
    p(f"s_branch L_g2r{w}\nL_ex{w}:\n{exq}\ns_branch L_afin")
def att_fin():
    t=vT; A=sT+7
    p("L_afin:")
    STAMP('aend')
    p(f"s_mov_b32 s{A}, {hex(f2u(2.0**-40))}\ns_mov_b32 s{A+1}, {hex(f2u(2.0**40)-f2u(2.0**-40))}")
    for q in range(2):
        O=OO[q]
        p(f"""v_cndmask_b32 v{t}, v{O+8}, v{O+12}, s[{sLO}:{sLO+1}]
        v_pk_add_f32 v[{t+2}:{t+3}], v[{O}:{O+1}], v[{O+2}:{O+3}]
        v_rcp_f32 v{t+1}, v{t}
        v_pk_add_f32 v[{t+4}:{t+5}], v[{O+4}:{O+5}], v[{O+6}:{O+7}]
        v_pk_add_f32 v[{t+6}:{t+7}], v[{O+8}:{O+9}], v[{O+10}:{O+11}]
        v_subrev_u32 v{t}, s{A}, v{t}
        v_pk_add_f32 v[{t+2}:{t+3}], v[{t+2}:{t+3}], v[{t+4}:{t+5}]
        v_cmp_lt_u32 s[{A+11}:{A+12}], s{A+1}, v{t}
        v_pk_add_f32 v[{t+2}:{t+3}], v[{t+2}:{t+3}], v[{t+6}:{t+7}]
        v_add_f32 v{t+2}, v{t+2}, v{t+3}""")
        p(f"v_cmp_class_f32 vcc, v{t+2}, v{aCLS}")
        for k in range(6): p(f"v_pk_mul_f32 {vr(O+2*k,2)}, {vr(O+2*k,2)}, {vr(t,2)} op_sel:[0,1] op_sel_hi:[1,1]")
        p(f"""s_or_b64 vcc, vcc, s[{A+11}:{A+12}]
        s_cbranch_scc1 L_afb{q}
        L_afr{q}:""")
        for k in range(6): p(f"v_cvt_pk_bf16_f32 v{O+k}, v{O+2*k}, v{O+2*k+1}")
        p(f"s_cmp_lg_u32 s{sOSC}, 0")
        st=[f"buffer_store_dwordx4 {vr(O,4)}, v{aO}, {S4(sWS)}, s{sOm[q]} offen", f"s_mov_b64 exec, s[{sLO}:{sLO+1}]",
            f"buffer_store_dwordx2 {vr(O+4,2)}, v{aO}, {S4(sWS)}, s{sOt[q]} offen offset:512", "s_mov_b64 exec, -1"]
        p(f"s_cbranch_scc1 L_osc{q}")
        for x in st: p(x)
        p(f"s_branch L_osr{q}\nL_osc{q}:")
        for x in st: p(x+(" sc1" if x.startswith("buffer") else ""))
        p(f"L_osr{q}:")
    p(f"""v_mov_b32 v{t}, {F_DONE}
    v_mov_b32 v{t+1}, 1
    s_mov_b64 exec, 1
    ds_add_u32 v{t}, v{t+1}
    s_mov_b64 exec, -1""")
    STAMP('ost')
aCLS=27; aFO=226; aFR=227
def att_cold():
    t=vT; A=sT+7; B=sT+8; N=sT+17; J=sT+18; CN=sT+19; PA=sT+20
    for q in range(2): p(f"L_afb{q}:\ns_cmp_lg_u32 s{sFB}, 0\ns_cbranch_scc1 L_afr{q}\ns_branch L_afb")
    p(f"L_afb:\ns_mov_b32 s{sFB}, 1\ns_waitcnt lgkmcnt(0)")
    S=SS[0]; MX=t+10; xa=t+11
    for q in range(2):
        lp=p.lab("fb"); nd=p.lab("fbnd"); nf=p.lab("fbnf"); p2=p.lab("fbp2"); nx=p.lab("fbnx"); ps=p.lab("fbps"); dn=p.lab("fbdn")
        for r in range(16): p(f"v_mov_b32 v{OO[q]+r}, 0")
        p(f"""v_mov_b32 v{MX}, {NINF}
        s_mov_b32 s{PA}, 0
        {ps}:""")
        if q==0: p(f"s_sub_u32 s{N}, 15, s{sWAVE}")
        else: p(f"s_add_u32 s{N}, 8, s{sWAVE}")
        p(f"""s_sub_u32 s{CN}, s{N}, 7
        s_cmp_eq_u32 s{sT0}, 0
        s_cselect_b32 s{CN}, s{CN}, 9
        s_mov_b32 s{J}, 0
        {lp}:
        s_lshr_b32 s{A}, s{N}, 1
        s_mul_i32 s{A}, s{A}, 5632
        s_and_b32 s{B}, s{N}, 1
        s_lshl_b32 s{sT+21}, s{B}, 10
        s_add_u32 s{sT+21}, s{sT+21}, s{A}
        v_add_u32 v{xa}, s{sT+21}, v{aKm}
        s_lshl_b32 s{sT+21}, s{B}, 9
        s_add_u32 s{sT+21}, s{sT+21}, s{A}
        v_add_u32 v{xa+1}, s{sT+21}, v{aKt}
        s_mul_i32 s{B}, s{B}, 1280
        s_add_u32 s{A}, s{A}, s{B}
        v_add_u32 v{xa+2}, s{A}, v{aV}
        ds_read_b128 {vr(KM[0],4)}, v{xa}
        ds_read_b64 {vr(KT[0],2)}, v{xa+1}
        s_mov_b64 exec, s[{sLO+2}:{sLO+3}]
        ds_read_b128 {vr(VV[0][0],4)}, v{xa+2}
        ds_read_b128 {vr(VV[0][1],4)}, v{xa+2} offset:640
        s_mov_b64 exec, -1
        s_waitcnt lgkmcnt(0)
        v_mfma_f32_32x32x16_bf16 {vr(S,16)}, {vr(KM[0],4)}, {vr(QM[q],4)}, 0
        v_mfma_f32_32x32x8_bf16 {vr(S,16)}, {vr(KT[0],2)}, {vr(QT[q],2)}, {vr(S,16)}
        v_mov_b32 v{xa}, {NINF}
        s_nop 11
        s_cmp_lg_u32 s{J}, 0
        s_cbranch_scc1 {nd}""")
        for r in range(16): p(f"v_cmp_eq_u32 vcc, 0, v{CD+r}\ns_nop 1\nv_cndmask_b32 v{S+r}, v{xa}, v{S+r}, vcc")
        p(f"{nd}:\ns_cmp_lg_u32 s{J}, 8\ns_cbranch_scc1 {nf}")
        for r in range(16): p(f"v_cmp_eq_u32 vcc, 0, v{CF+r}\ns_nop 1\nv_cndmask_b32 v{S+r}, v{xa}, v{S+r}, vcc")
        p(f"{nf}:\ns_cmp_lg_u32 s{PA}, 0\ns_cbranch_scc1 {p2}")
        for r in range(0,16,2): p(f"v_max3_f32 v{MX}, v{S+r}, v{S+r+1}, v{MX}")
        p(f"s_branch {nx}\n{p2}:")
        for r in range(16): p(f"v_sub_f32 v{S+r}, v{S+r}, v{MX}")
        for r in range(16): p(f"v_exp_f32 v{S+r}, v{S+r}")
        p("s_nop 0")
        for k in range(8): p(f"v_cvt_pk_bf16_f32 v{PP+k}, v{S+2*k}, v{S+2*k+1}")
        p("s_nop 1")
        for m in range(2): p(f"v_mfma_f32_32x32x16_bf16 {vr(OO[q],16)}, {vr(VV[0][m],4)}, {vr(PP+4*m,4)}, {vr(OO[q],16)}")
        p(f"""s_nop 11
        {nx}:
        s_sub_u32 s{N}, s{N}, 1
        s_add_u32 s{J}, s{J}, 1
        s_cmp_lt_u32 s{J}, s{CN}
        s_cbranch_scc1 {lp}
        s_cmp_lg_u32 s{PA}, 0
        s_cbranch_scc1 {dn}
        v_mov_b32 v{xa}, v{MX}
        s_mov_b32 s{PA}, 1
        s_nop 0
        v_permlane32_swap_b32 v{xa}, v{MX}
        s_nop 1
        v_max_f32 v{MX}, v{MX}, v{xa}
        s_branch {ps}
        {dn}:""")
    p("s_branch L_afin")

BF=28; AF=108; WACC=200; XR=176; WR_=186; aX2=196; aPS=197; aAL=198; aAR=199; SW=220; SELF=221; aPR=222; aKY=223; aCD=224
HP=40; HF_=50; LP=70; OP=80
sRT=sT+1; sOL=sT+2; sOR=sT+5; sXO=sT+11; sPSO=sT+12; sRETRY=sT+13; sPRB=sT+14; sFLO=sT+16; sFRE=sT+18
def acc_init():
    for k in range(10): p(f"v_lshlrev_b32 v{WACC+2*k}, 16, v{XR+k}\nv_and_b32 v{WACC+2*k+1}, 0xffff0000, v{XR+k}")
def wo_pre1():
    t=vT; A=sT+7; B=sT+8
    wo_ids()
    p(f"""v_and_b32 v{t}, 15, v0
    v_lshrrev_b32 v{t+1}, 4, v0
    v_mul_u32_u24 v{t+2}, 40, v{t+1}
    v_mov_b32 v{t+3}, 1280
    v_mad_u32_u24 v{aX2}, v{t}, v{t+3}, v{t+2}
    s_lshl_b32 s{A}, s{sBLK}, 2
    s_add_u32 s{A}, s{A}, s{sWAVE}
    s_mul_i32 s{A}, s{A}, 20480
    s_mul_i32 s{B}, s{sJ}, 160
    s_add_u32 s{A}, s{A}, s{B}
    buffer_load_dwordx4 {vr(XR,4)}, v{aX2}, {S4(sX)}, s{A} offen
    buffer_load_dwordx4 {vr(XR+4,4)}, v{aX2}, {S4(sX)}, s{A} offen offset:16
    buffer_load_dwordx2 {vr(XR+8,2)}, v{aX2}, {S4(sX)}, s{A} offen offset:32
    buffer_load_dwordx4 {vr(WR_,4)}, v{t+2}, {S4(sWR)}, s{B} offen
    buffer_load_dwordx4 {vr(WR_+4,4)}, v{t+2}, {S4(sWR)}, s{B} offen offset:16
    buffer_load_dwordx2 {vr(WR_+8,2)}, v{t+2}, {S4(sWR)}, s{B} offen offset:32
    v_lshlrev_b32 v{aPS}, 7, v{t}
    v_lshl_add_u32 v{aPS}, v{t+1}, 5, v{aPS}
    v_lshlrev_b32 v{aFR}, 2, v{t}
    v_mul_u32_u24 v{t+2}, 640, v{t+1}
    v_bfe_u32 v{t+3}, v0, 2, 2
    v_mul_u32_u24 v{t+3}, 160, v{t+3}
    v_and_b32 v{t+4}, 3, v0
    v_mul_u32_u24 v{t+4}, 40, v{t+4}
    v_add3_u32 v{t+2}, v{t+2}, v{t+3}, v{t+4}
    s_mul_i32 s{A}, s{sHH}, 51200
    s_add_u32 s{B}, s{A}, {L_WO}
    v_add_u32 v{aAL}, s{B}, v{t+2}
    s_sub_u32 s{B}, {L_WO+51200}, s{A}
    v_add_u32 v{aAR}, s{B}, v{t+2}
    v_and_b32 v{t+2}, 7, v0
    v_mul_u32_u24 v{t+2}, 1280, v{t+2}
    v_bfe_u32 v{t+3}, v0, 3, 1
    v_lshl_add_u32 v{aPR}, v{t+3}, 7, v{t+2}""")
def wo_pre2():
    acc_init()
def probe(soff,cnt,first=True):
    t=vT
    lp=p.lab("pb"); ok=p.lab("pbok"); md=p.lab("pbm")
    p(f"s_mov_b32 s{cnt}, {SPIN}")
    if not first: p(f"s_branch {md}")
    p(f"""{lp}:
    buffer_load_dwordx3 v[{t+4}:{t+6}], v{aPR}, {S4(sWS)}, s{soff} offen offset:512 sc1""")
    if not first: p(f"{md}:")
    p(f"""s_waitcnt vmcnt(0)
    v_max_u32 v{t+4}, v{t+4}, v{t+6}
    v_cmp_eq_u32 vcc, -1, v{t+4}
    s_nop 0
    s_cbranch_vccz {ok}""")
    spin(cnt,lp,ok)
    p(f"s_branch {lp}\n{ok}:")
def red3(a,b,c,d):
    p(f"""v_mov_b32 v{d}, v{c}
    s_nop 0
    v_permlane32_swap_b32 v{a}, v{b}
    v_permlane32_swap_b32 v{c}, v{d}
    s_nop 0
    v_add_f32 v{a}, v{a}, v{b}
    v_add_f32 v{c}, v{c}, v{d}
    s_nop 1
    v_permlane16_swap_b32 v{a}, v{c}
    s_nop 0
    v_add_f32 v{a}, v{a}, v{c}
    v_add_f32 v{c}, v{a}, 0
    s_nop 1
    v_permlane16_swap_b32 v{a}, v{c}
    s_nop 0
    v_mov_b32 v{b}, v{a}
    s_nop 1
    v_permlane32_swap_b32 v{a}, v{b}""")
def wo_main():
    t=vT; A=sT+7; B=sT+8; C=sT+17; MXS=t+8
    wo_ids()
    p(f"""s_lshl_b32 s{sRT}, s{sBLK}, 2
    s_add_u32 s{sRT}, s{sRT}, s{sWAVE}
    s_mul_i32 s{A}, s{sRT}, 20480
    s_mul_i32 s{B}, s{sJ}, 160
    s_add_u32 s{sXO}, s{A}, s{B}
    s_mul_i32 s{B}, s{sMODE}, {OB2-OB}
    s_add_u32 s{A}, s{A}, s{B}
    s_add_u32 s{A}, s{A}, {OB}
    s_mul_i32 s{B}, s{sHH}, 10240
    s_add_u32 s{sOL}, s{A}, s{B}
    s_add_u32 s{sOL+1}, s{sOL}, 4096
    s_add_u32 s{sOL+2}, s{sOL}, 8192
    s_add_u32 s{A}, s{A}, 10240
    s_sub_u32 s{sOR}, s{A}, s{B}
    s_lshl_b32 s{sPSO}, s{sRT}, 11
    s_add_u32 s{sPSO}, s{sPSO}, {PS}
    s_mov_b32 s{sRETRY}, {1<<16}
    s_add_u32 s{sOR+1}, s{sOR}, 4096
    s_add_u32 s{sPRB}, s{sOR}, 8192
    s_lshr_b32 s{A}, s{sRT}, 1
    s_lshl_b32 s{A}, s{A}, 7
    s_lshl_b32 s{B}, s{sHH}, 6
    s_add_u32 s{A}, s{A}, {FO}
    s_add_u32 s{sFLO}, s{A}, s{B}
    s_xor_b32 s{sFRE}, s{sFLO}, 64
    v_mov_b32 v{t}, {F_WOR}
    v_mov_b32 v{t+1}, s{sTAG}
    s_cmp_eq_u32 s{sOSC}, 0
    s_cbranch_scc1 L_nofo
    s_mov_b64 exec, 3
    s_waitcnt vmcnt(0)
    buffer_store_dword v{t+1}, v{aFO}, {S4(sWS)}, 0 offen sc1
    s_mov_b64 exec, -1
    L_nofo:""")
    STAMP('fo')
    lds_wait(t,t+1,C,'gt',2,0)
    p(f"""ds_read_b32 v{SW}, v{t} offset:{L_SWS-F_WOR}
    L_wo:""")
    STAMP('wor')
    sROFF=[sOR,sOR+1,sPRB]
    LA=CFG['wla']; WE=CFG['wwe']
    LG=[]
    def af(m): return AF+4*(m%15)
    def aread(m):
        s_,t_=divmod(m,5)
        for rd in range(2):
            p(f"ds_read_b64_tr_b16 {vr(af(m)+2*rd,2)}, v{aAL if s_<10 else aAR} offset:{(s_%10)*5120+rd*2560+8*t_}"); LG.append(m)
    def lgw(m):
        k=[i for i,x in enumerate(LG) if x!='x' and x<=m]
        if not k: return None
        n=len(LG)-1-max(k); del LG[:max(k)+1]; return n
    def bload(s_):
        so=(sOL+(s_%10)//4) if s_<10 else sROFF[(s_%10)//4]
        return f"buffer_load_dwordx4 {vr(BF+4*s_,4)}, v{aLin}, {S4(sWS)}, s{so} offen offset:{(s_%10%4)*1024} sc1"
    for m in range(LA): aread(m)
    p(f"v_mov_b32 v{MXS}, 0\nv_mov_b32 v{t+7}, {F_WO2}")
    p(f"s_cmp_lg_u32 s{sMODE}, 0\ns_cbranch_scc1 L_plsl")
    probe(sOL,C)
    p("L_plr:")
    n0=len(p.L)
    p("L_plsl:"); flag_poll(aFR,t+4,sFLO,C); p("s_branch L_plr")
    COLD.append("\n".join(p.L[n0:])); del p.L[n0:]
    STAMP('pl')
    for s_ in range(10): p(bload(s_))
    p(f"buffer_load_dword v{t+4}, v{aFR}, {S4(sWS)}, s{sFRE} offen sc1")
    for m in range(100):
        s_,t_=divmod(m,5)
        if m==50:
            STAMP('loc')
            flag_poll(aFR,t+4,sFRE,C,first=False)
            STAMP('pr')
            for k in range(10,20): p(bload(k))
            if CFG['gstart']=='PR' or CFG['dstart']=='PR' or CFG['dgate']=='PR':
                p(f"""s_mov_b64 exec, 1
                v_mov_b32 v{t+4}, {F_PR}
                v_mov_b32 v{t+5}, 1
                ds_add_u32 v{t+4}, v{t+5}
                s_mov_b64 exec, -1"""); LG.append('x')
        w=[]
        if t_==0: w.append(f"vmcnt({(10-s_) if s_<10 else (19-s_)}")
        if m%WE==0:
            n=lgw(m+WE-1)
            if n is not None: w.append(f"lgkmcnt({n}")
        if w: p("s_waitcnt "+") ".join(w)+")")
        a_=vr(WACC+4*t_,4)
        p(f"v_mfma_f32_16x16x32_bf16 {a_}, {vr(af(m),4)}, {vr(BF+4*s_,4)}, {a_}")
        if m+LA==50-10: p(f"ds_read_b32 v{t+6}, v{t+7}"); LG.append('x')
        if m+LA==50:
            p(f"v_cmp_gt_u32 vcc, 2, v{t+6}\ns_nop 0\ns_cbranch_vccnz L_wo2w\nL_wo2r:")
            n0=len(p.L)
            p("L_wo2w:"); lds_wait(t+7,t+6,C,'gt',2,0); p("s_branch L_wo2r")
            COLD.append("\n".join(p.L[n0:])); del p.L[n0:]
        if m+LA<100: aread(m+LA)
        if t_==0 and s_<10: p(f"v_max3_u32 v{MXS}, v{BF+4*s_}, v{BF+4*s_+2}, v{MXS}")
    p(f"""v_cmp_eq_u32 vcc, -1, v{MXS}
    v_mov_b32 v{t}, 0x3f803f80
    v_mov_b32 v{t+2}, 0
    v_mov_b32 v{t+3}, 0
    v_mov_b32 v{t+4}, 0
    s_cbranch_vccnz L_woredo
    L_wook:""")
    STAMP('wend')
    COLD.append(f"L_woredo:\ns_sub_u32 s{sRETRY}, s{sRETRY}, 1\ns_cbranch_scc1 L_wook\ns_nop 7")
    q=P();
    COLD.append("\n".join(f"v_lshlrev_b32 v{WACC+2*k}, 16, v{XR+k}\nv_and_b32 v{WACC+2*k+1}, 0xffff0000, v{XR+k}" for k in range(10))+"\ns_branch L_wo")
    for k in range(10): p(f"v_cvt_pk_bf16_f32 v{HP+k}, v{WACC+2*k}, v{WACC+2*k+1}")
    for k in range(10):
        p(f"""v_dot2_f32_bf16 v{t+2}, v{HP+k}, v{t}, v{t+2}
        v_dot2_f32_bf16 v{t+4}, v{HP+k}, v{HP+k}, v{t+4}
        v_dot2_f32_bf16 v{t+3}, v{HP+k}, v{WR_+k}, v{t+3}""")
    p(f"""s_lshl_b32 s{A}, s{sJ}, 4
    s_add_u32 s{A}, s{A}, s{sPSO}""")
    red3(t+2,t+3,t+4,t+5)
    p(f"""v_mov_b32 v{t+5}, s{sTAG}
    s_mov_b64 exec, 0xffff
    s_cmp_lg_u32 s{sMODE}, 0
    s_cbranch_scc1 L_pssc
    buffer_store_dwordx4 {vr(t+2,4)}, v{aPS}, {S4(sWS)}, s{A} offen
    L_psr:
    s_mov_b64 exec, -1""")
    COLD.append(f"L_pssc:\nbuffer_store_dwordx4 {vr(t+2,4)}, v{aPS}, {S4(sWS)}, s{A} offen sc1\ns_branch L_psr")
    STAMP('ps')
    G=t+10
    lp=p.lab("ps"); ok=p.lab("psok"); md=p.lab("psm")
    ld=f"""buffer_load_dwordx4 {vr(G,4)}, v{aPS}, {S4(sWS)}, s{sPSO} offen sc1
    buffer_load_dwordx4 {vr(G+4,4)}, v{aPS}, {S4(sWS)}, s{sPSO} offen offset:16 sc1"""
    p(ld)
    for k in range(10): p(f"v_lshlrev_b32 v{HF_+2*k}, 16, v{HP+k}\nv_and_b32 v{HF_+2*k+1}, 0xffff0000, v{HP+k}")
    if CFG['dbg']:
        p(f"s_add_u32 s{A}, s{sXO}, {HB}")
        for o,n in ((0,4),(4,4),(8,2)): p(f"buffer_store_dwordx{n} {vr(HP+o,n)}, v{aX2}, {S4(sWS)}, s{A} offen offset:{4*o}")
    p(f"""s_lshl_b32 s{A}, s{sRT}, 4
    s_sub_u32 s{A}, 2047, s{A}
    v_and_b32 v{t}, 15, v0
    v_sub_u32 v{t+9}, s{A}, v{t}
    v_lshlrev_b32 v{t+9}, 3, v{t+9}
    s_lshl_b32 s{A}, s{sWAVE}, 6
    s_add_u32 s{A}, s{A}, {L_KEYS}
    v_lshl_add_u32 v{aKY}, v{t}, 2, s{A}
    v_and_b32 v{t}, 48, v0
    v_lshlrev_b32 v{t}, 2, v{t}
    v_add_u32 v{t+8}, {L_KEYS}, v{t}
    s_mov_b32 s{C}, {SPIN}
    s_branch {md}
    {lp}:
    {ld}
    {md}:
    s_waitcnt vmcnt(0)
    v_cmp_ne_u32 vcc, s{sTAG}, v{G+3}
    v_cmp_ne_u32 s[{sT+14}:{sT+15}], s{sTAG}, v{G+7}
    v_pk_add_f32 {vr(t+4,2)}, {vr(G,2)}, {vr(G+4,2)}
    v_add_f32 v{t+6}, v{G+2}, v{G+6}
    s_or_b64 vcc, vcc, s[{sT+14}:{sT+15}]
    s_cbranch_scc0 {ok}""")
    spin(C,lp,ok)
    p(f"""s_branch {lp}
    {ok}:""")
    STAMP('psr')
    if CFG['dgate']=='PS': p(f"""s_mov_b64 exec, 1
    v_mov_b32 v{G}, {F_PS}
    v_mov_b32 v{G+1}, 1
    ds_add_u32 v{G}, v{G+1}
    s_mov_b64 exec, -1""")
    M=t+4
    red3(M,M+1,M+2,M+3)
    p(f"""v_mul_f32 v{M}, {1/640!r}, v{M}
    v_mul_f32 v{M+2}, {1/640!r}, v{M+2}
    v_fma_f32 v{M+2}, -v{M}, v{M}, v{M+2}
    v_max_f32 v{M+2}, 0, v{M+2}""")
    bf16r(M+2,M+2)
    p(f"v_add_f32 v{M+2}, 0x3727c5ac, v{M+2}")
    bf16r(M+2,M+2)
    p(f"v_sqrt_f32 v{M+2}, v{M+2}")
    bf16r(M,M)
    bf16r(M+2,M+2)
    RS=t+2
    p(f"""v_rcp_f32 v{RS}, v{M+2}
    v_fma_f32 v{M+1}, -v{M}, v{SW}, v{M+1}
    v_mul_f32 v{M+1}, v{M+1}, v{RS}
    v_cvt_pk_bf16_f32 v{M+1}, v{M+1}, v{M+1}
    v_mul_f32 v{RS+1}, -v{M}, v{RS}
    v_ashrrev_i32 v{M+2}, 31, v{M+1}
    v_or_b32 v{M+2}, 0x80000000, v{M+2}
    v_xor_b32 v{M+1}, v{M+1}, v{M+2}
    v_and_b32 v{M+1}, 0xffff0000, v{M+1}
    v_or_b32 v{KEY}, v{M+1}, v{t+9}
    ds_write_b32 v{aKY}, v{KEY}""")
    for k in range(10): p(f"v_pk_fma_f32 {vr(WACC+2*k,2)}, {vr(HF_+2*k,2)}, {vr(RS,2)}, {vr(RS,2)} op_sel:[0,0,1] op_sel_hi:[1,0,1]")
    K16=AF
    lp=p.lab("ky"); ok=p.lab("kyok")
    p(f"s_mov_b32 s{C}, {SPIN*4}\n{lp}:")
    for i in range(4): p(f"ds_read_b128 {vr(K16+4*i,4)}, v{t+8} offset:{16*i}")
    p("s_waitcnt lgkmcnt(0)")
    p(f"v_max3_u32 v{t}, v{K16}, v{K16+1}, v{K16+2}")
    for i in range(3,15,2): p(f"v_max3_u32 v{t}, v{K16+i}, v{K16+i+1}, v{t}")
    p(f"""v_max_u32 v{t}, v{t}, v{K16+15}
    v_cmp_eq_u32 vcc, -1, v{t}
    v_mov_b32 v{t}, 0
    s_cbranch_vccz {ok}""")
    spin(C,lp,ok)
    p(f"s_branch {lp}\n{ok}:")
    STAMP('keys')
    m0_=sT+18
    for i in range(18):
        if i<16: p(f"v_cmp_gt_u32 s[{m0_+2*(i%2)}:{m0_+2*(i%2)+1}], v{K16+i}, v{KEY}") if False else None
    MK=[sT+14,sT+16,sT+18]
    for i in range(18):
        if i<16: m=MK[i%3]; p(f"v_cmp_gt_u32 s[{m}:{m+1}], v{K16+i}, v{KEY}")
        elif i==16: p("s_nop 0")
        if i>=2: m=MK[(i-2)%3]; p(f"v_addc_co_u32 v{t}, vcc, 0, v{t}, s[{m}:{m+1}]")
    p(f"""v_mov_b32 v{t+1}, v{t}
    v_cvt_pk_bf16_f32 v{LP}, v{WACC}, v{WACC+1}
    v_cvt_pk_bf16_f32 v{LP+1}, v{WACC+2}, v{WACC+3}
    v_permlane32_swap_b32 v{t}, v{t+1}
    v_cvt_pk_bf16_f32 v{LP+2}, v{WACC+4}, v{WACC+5}
    v_add_u32 v{t}, v{t}, v{t+1}
    v_mov_b32 v{t+1}, v{t}
    v_cvt_pk_bf16_f32 v{LP+3}, v{WACC+6}, v{WACC+7}
    v_cvt_pk_bf16_f32 v{LP+4}, v{WACC+8}, v{WACC+9}
    v_permlane16_swap_b32 v{t}, v{t+1}
    v_cvt_pk_bf16_f32 v{LP+5}, v{WACC+10}, v{WACC+11}
    v_add_u32 v{t}, v{t}, v{t+1}
    v_cmp_gt_u32 s[{sCAND}:{sCAND+1}], 8, v{t}
    v_or_b32 v{KEY}, v{KEY}, v{t}
    v_lshlrev_b32 v{t+1}, 3, v{t}
    v_mov_b32 v{KEY+1}, s{sTAG}
    s_lshl_b32 s{A}, s{sBLK}, 7
    s_add_u32 s{A}, s{A}, {CA}
    s_cmp_eq_u32 s{sJ}, 0
    s_cselect_b32 s{B}, 0xffff, 0
    s_and_b32 exec_lo, s{sCAND}, s{B}
    s_mov_b32 exec_hi, 0
    s_cbranch_scc0 L_noca
    buffer_store_dwordx2 {vr(KEY,2)}, v{t+1}, {S4(sWS)}, s{A} offen sc1
    L_noca:
    s_mov_b64 exec, -1""")
    STAMP('ca')
    for k in range(6,10): p(f"v_cvt_pk_bf16_f32 v{LP+k}, v{WACC+2*k}, v{WACC+2*k+1}")
    p(f"""v_lshrrev_b32 v{t+1}, 4, v0
    v_mul_u32_u24 v{t+1}, 40, v{t+1}
    v_mul_u32_u24 v{t}, 2560, v{t}
    v_add_u32 v{aCD}, v{t}, v{t+1}
    s_mul_i32 s{A}, s{sBLK}, 20480
    s_mul_i32 s{B}, s{sJ}, 160
    s_add_u32 s{A}, s{A}, s{B}
    s_add_u32 s{A}, s{A}, {CAND}
    s_and_b64 exec, s[{sCAND}:{sCAND+1}], -1
    s_cbranch_scc0 L_nocd""")
    for base,off in ((LP,0),(HP,1280)):
        for o,n in ((0,4),(4,4),(8,2)): p(f"buffer_store_dwordx{n} {vr(base+o,n)}, v{aCD}, {S4(sWS)}, s{A} offen offset:{off+4*o} sc1")
    p("L_nocd:\ns_mov_b64 exec, -1")
    for k in range(10): p(f"v_pk_add_f32 {vr(WACC+2*k,2)}, {vr(WACC+2*k,2)}, {vr(HF_+2*k,2)}")
    for k in range(10): p(f"v_cvt_pk_bf16_f32 v{OP+k}, v{WACC+2*k}, v{WACC+2*k+1}")
    p(f"s_andn2_b64 exec, -1, s[{sCAND}:{sCAND+1}]\ns_cbranch_scc0 L_noo1")
    out_store()
    p("L_noo1:")
    if 1: p(f"""s_mov_b64 exec, 1
    v_mov_b32 v{t+4}, {F_O1}
    v_mov_b32 v{t+5}, 1
    ds_add_u32 v{t+4}, v{t+5}
    s_mov_b64 exec, -1""")
    else: p("s_mov_b64 exec, -1")
    STAMP('o1')
KEY=228; sCAND=sT+20
def out_store():
    for o,n in ((0,4),(4,4),(8,2)): p(f"buffer_store_dwordx{n} {vr(OP+o,n)}, v{aX2}, {S4(sOUT)}, s{sXO} offen offset:{4*o} {CFG['opol']}")

def moe_weights():
    A=sT+7; B=sT+8; vt=2; D=40; aW_=12
    gu=p.lab("mwgu"); wr=p.lab("mwwr"); en=p.lab("mwend")
    FA=dict(WOD=(F_WOD,2),PR=(F_PR,4),O1=(F_O1,4),DONE=(F_DONE,4),G2=(F_G2,2),PS=(F_PS,4),WO2=(F_WO2,2))
    def gate(k):
        p(f"v_mov_b32 v{vt+4}, {FA[k][0]}")
        lds_wait(vt+4,vt+5,sT+5,'gt',FA[k][1],2)
    pl_=p.lab("mwpl")
    p(f"""s_cmp_ge_u32 s{sSLOT}, 17
    s_cbranch_scc1 {pl_}
    v_bfe_u32 v{vt}, v0, 3, 2
    v_lshrrev_b32 v{vt+1}, 5, v0
    v_lshlrev_b32 v{vt}, 1, v{vt}
    v_add_lshl_u32 v{vt}, v{vt}, v{vt+1}, 2
    v_bfe_u32 v{vt+1}, v0, 1, 2
    v_add_u32 v{vt}, v{vt}, v{vt+1}
    v_and_b32 v{vt+1}, 1, v0
    v_lshlrev_b32 v{vt+1}, 4, v{vt+1}
    s_cmp_lt_u32 s{sSLOT}, 12
    s_cbranch_scc1 {gu}
    v_mul_u32_u24 v{vt}, 1280, v{vt}
    v_add_u32 v{aW_}, v{vt}, v{vt+1}
    s_mul_i32 s{A}, s{sG}, 5
    s_add_u32 s{A}, s{A}, s{sSLOT}
    s_sub_u32 s{A}, s{A}, 12
    s_lshl_b32 s{A}, s{A}, 5
    s_mul_i32 s{B}, s{HW}, {12*32*1280}
    s_add_u32 s{A}, s{A}, s{B}""")
    gate(CFG['dstart'])
    STAMP('mg')
    for s_ in range(12):
        if s_>=CFG['ddep']: p(f"s_waitcnt vmcnt({CFG['ddep']-1})")
        p(f"buffer_load_dwordx4 {vr(D+4*s_,4)}, v{aW_}, {S4(sWD)}, s{A} offen {CFG['mpol']}")
        if s_<11: p(f"s_add_u32 s{A}, s{A}, {32*1280}")
    p(f"""s_mul_i32 s{B}, s{HW}, 12288
    s_branch {wr}
    {pl_}:""")
    if CFG['dgate']!='no':
        gate(CFG['dgate'])
        touch(vTD,sWD,CFG['mpair'])
        STAMP('mg')
        if CFG['prof']: p("s_waitcnt vmcnt(0)"); STAMP('mw')
    p(f"""s_branch {en}
    {gu}:
    v_mul_u32_u24 v{vt}, 3072, v{vt}
    v_add_u32 v{aW_}, v{vt}, v{vt+1}
    s_mul_i32 s{A}, s{sG}, 12
    s_add_u32 s{A}, s{A}, s{sSLOT}
    s_lshl_b32 s{A}, s{A}, 5
    s_mul_i32 s{B}, s{HW}, {5*32*3072}
    s_add_u32 s{A}, s{A}, s{B}""")
    gate(CFG['gstart'])
    STAMP('mg')
    for s_ in range(5):
        for m_ in range(2):
            if 2*s_+m_>=CFG['mdep']: p(f"s_waitcnt vmcnt({CFG['mdep']-1})")
            p(f"buffer_load_dwordx4 {vr(D+8*s_+4*m_,4)}, v{aW_}, {S4((sWG,sWU)[m_])}, s{A} offen {CFG['mpol']}")
        if s_<4: p(f"s_add_u32 s{A}, s{A}, {32*3072}")
    p(f"s_mul_i32 s{B}, s{HW}, 12288\n{wr}:\nv_lshl_add_u32 v{vt}, v0, 4, s{B}")
    gate('DONE')
    p("s_waitcnt vmcnt(0)")
    for s_ in range(12): p(f"ds_write_b128 v{vt}, {vr(D+4*s_,4)} offset:{L_MW+s_*1024}")
    p(f"""s_lshl_b32 s{A}, s{HW}, 2
    s_add_u32 s{A}, s{A}, {F_MW}
    v_mov_b32 v{vt}, s{A}
    ds_write_b32 v{vt}, v{vt}
    s_waitcnt lgkmcnt(0)""")
    STAMP('mw')
    p(f"{en}:")
def top8(R,K2,K1,y,tt):
    def clean(chs):
        seq=[]
        for (x,y_,t_) in chs:
            seq.append([f"v_max_u32_dpp v{y_}, v{x}, v{x} row_shl:4 row_mask:0xf bank_mask:0x5",
                        f"v_min_u32_dpp v{y_}, v{x}, v{x} row_shr:4 row_mask:0xf bank_mask:0xa",
                        None,
                        f"v_mov_b32_dpp v{t_}, v{y_} quad_perm:[2,3,0,1] row_mask:0xf bank_mask:0xf",
                        f"v_med3_u32 v{y_}, v{y_}, v{t_}, v{K2}",
                        None,
                        f"v_mov_b32_dpp v{t_}, v{y_} quad_perm:[1,0,3,2] row_mask:0xf bank_mask:0xf",
                        f"v_med3_u32 v{x}, v{y_}, v{t_}, v{K1}"])
        n=len(chs)
        p(f"s_nop {2-n}")
        for i in range(8):
            if seq[0][i] is None: p(f"s_nop {2-n}")
            else:
                for c in seq: p(c[i])
                if i==0 and n==1: p("s_nop 1")
                elif i==0: p("s_nop 0")
    dp="row_mask:0xf bank_mask:0xf"
    p(f"v_max_u32_dpp v{R}, v{R+2}, v{R} row_half_mirror {dp}\nv_max_u32_dpp v{R+4}, v{R+6}, v{R+4} row_half_mirror {dp}")
    clean([(R,y,tt),(R+4,y+1,tt+1)])
    p(f"s_nop 1\nv_max_u32_dpp v{R}, v{R+4}, v{R} row_half_mirror {dp}")
    clean([(R,y,tt)])
    p(f"s_nop 1\nv_max_u32_dpp v{R}, v{R}, v{R} row_mirror {dp}")
    clean([(R,y,tt)])
    for msk,sw in ((0xa,16),(0xc,32)):
        p(f"""s_nop 1
        v_mov_b32_dpp v{R}, v{R} row_half_mirror row_mask:{hex(msk)} bank_mask:0xf
        v_mov_b32 v{tt}, v{R}
        s_nop 1
        v_permlane{sw}_swap_b32 v{R}, v{tt}
        s_nop 0
        v_max_u32 v{R}, v{R}, v{tt}""")
        clean([(R,y,tt)])
def moe():
    t=vT; A=sT+7; B=sT+8; C=sT+17; sTHR=sT+14
    R=12; K2=20; K1=21; aC=22; AW=108
    BL=160
    p(f"""s_cmp_ge_u32 s{sSLOT}, 17
    s_cbranch_scc1 L_plain
    v_lshrrev_b32 v{t}, 3, v0
    v_and_b32 v{t+1}, 7, v0
    v_lshlrev_b32 v{t+1}, 3, v{t+1}
    v_lshl_add_u32 v{aC}, v{t}, 7, v{t+1}
    s_mov_b32 s{B}, {CA}""")
    ld="\n".join(f"buffer_load_dwordx2 {vr(R+2*i,2)}, v{aC}, {S4(sWS)}, s{B} offen offset:{i*1024} sc1" for i in range(4))
    p(ld)
    p(f"""v_bfe_i32 v{K2}, v0, 1, 1
    v_bfe_i32 v{K1}, v0, 0, 1
    v_not_b32 v{K2}, v{K2}
    v_not_b32 v{K1}, v{K1}
    s_lshl_b32 s{A}, s{sWAVE}, 2
    s_add_u32 s{A}, s{A}, {F_MW}
    v_mov_b32 v{t}, s{A}
    s_mul_i32 s{A}, s{sWAVE}, 12288
    v_lshl_add_u32 v{t+2}, v0, 3, s{A}""")
    lds_wait(t,t+1,C,'eq',0,0)
    STAMP('mwr')
    for s_ in range(12):
        for rd in range(2): p(f"ds_read_b64_tr_b16 {vr(AW+4*s_+2*rd,2)}, v{t+2} offset:{L_MW+s_*1024+rd*512}")
    lp=p.lab("ca"); ok=p.lab("caok"); md=p.lab("cam")
    p(f"""s_mov_b32 s{C}, {SPIN}
    s_branch {md}
    {lp}:
    {ld}
    {md}:
    s_waitcnt vmcnt(0)
    v_xor_b32 v{t}, v{R+1}, v{R+3}
    v_xor_b32 v{t+1}, v{R+5}, v{R+7}
    v_xor_b32 v{R+1}, s{sTAG}, v{R+1}
    v_xor_b32 v{R+5}, s{sTAG}, v{R+5}
    v_or3_b32 v{t}, v{t}, v{t+1}, v{R+1}
    v_or_b32 v{t}, v{t}, v{R+5}
    v_cmp_ne_u32 vcc, 0, v{t}
    s_nop 0
    s_cbranch_vccz {ok}""")
    spin(C,lp,ok)
    p(f"s_branch {lp}\n{ok}:")
    STAMP('car')
    top8(R,K2,K1,t,t+2)
    STAMP('top')
    TOK=t+1; aR=t+2
    p(f"""v_bfe_u32 v{TOK}, v{R}, 3, 11
    v_sub_u32 v{TOK}, 2047, v{TOK}
    v_lshrrev_b32 v{t}, 6, v{TOK}
    v_and_b32 v{aR}, 7, v{R}
    v_lshl_add_u32 v{aR}, v{t}, 3, v{aR}
    v_mul_u32_u24 v{aR}, 2560, v{aR}
    v_lshrrev_b32 v{t}, 4, v0
    v_readlane_b32 s{sTHR}, v{R}, 7
    s_cmp_ge_u32 s{sSLOT}, 12
    s_cbranch_scc1 L_down""")
    def deferred(tag):
        p(f"""v_cmp_gt_u32 vcc, s{sTHR}, v{KEY}
        s_nop 0
        s_and_b64 exec, vcc, s[{sCAND}:{sCAND+1}]
        s_cbranch_scc0 L_nd{tag}""")
        out_store()
        p(f"L_nd{tag}:\ns_mov_b64 exec, -1")
    p(f"""v_lshl_add_u32 v{aR}, v{t}, 4, v{aR}
    s_mul_i32 s{A}, s{sWAVE}, 320
    s_add_u32 s{A}, s{A}, {CAND}""")
    ld="\n".join(f"buffer_load_dwordx4 {vr(BL+4*i,4)}, v{aR}, {S4(sWS)}, s{A} offen offset:{i*64} sc1" for i in range(5))
    lp=p.lab("gl"); ok=p.lab("glok"); md=p.lab("glm"); nt=p.lab("noth")
    p(ld)
    p(f"""s_or_b32 s{B}, s{sSLOT}, s{sWAVE}
    s_cbranch_scc1 {nt}
    v_mov_b32 v{t+4}, s{sTHR}
    v_mov_b32 v{t+5}, s{sTAG}
    s_lshl_b32 s{B}, s{sG}, 7
    s_add_u32 s{B}, s{B}, {TH}
    v_mov_b32 v{t+6}, 0
    s_mov_b64 exec, 1
    buffer_store_dwordx2 v[{t+4}:{t+5}], v{t+6}, {S4(sWS)}, s{B} offen sc1
    s_mov_b64 exec, -1
    {nt}:
    s_lshl_b32 s{B}, s{sWAVE}, 11
    s_add_u32 s{B}, s{B}, {L_RED}
    v_lshl_add_u32 v{t+3}, v0, 4, s{B}
    s_mov_b32 s{C}, {SPIN}
    s_branch {md}
    {lp}:
    {ld}
    {md}:
    s_waitcnt vmcnt(0) lgkmcnt(0)
    v_max3_u32 v{t+4}, v{BL}, v{BL+2}, v{BL+4}
    v_max3_u32 v{t+5}, v{BL+6}, v{BL+8}, v{BL+10}
    v_max3_u32 v{t+4}, v{BL+12}, v{BL+14}, v{t+4}
    v_max3_u32 v{t+5}, v{BL+16}, v{BL+18}, v{t+5}
    v_max_u32 v{t+4}, v{t+4}, v{t+5}
    v_cmp_eq_u32 vcc, -1, v{t+4}
    s_nop 0
    s_cbranch_vccz {ok}""")
    spin(C,lp,ok)
    p(f"s_branch {lp}\n{ok}:")
    STAMP('lr')
    G=20; U=24; X=28
    for s_ in range(5):
        for m_,a_ in ((0,G),(1,U)):
            p(f"v_mfma_f32_16x16x32_bf16 {vr(a_,4)}, {vr(AW+8*s_+4*m_,4)}, {vr(BL+4*s_,4)}, {vr(a_,4) if s_ else 0}")
    w0=p.lab("guw0")
    p(f"""s_cmp_eq_u32 s{sWAVE}, 0
    s_cbranch_scc1 {w0}
    s_nop 5
    ds_write_b128 v{t+3}, {vr(G,4)}
    ds_write_b128 v{t+3}, {vr(U,4)} offset:1024
    s_waitcnt lgkmcnt(0)
    s_barrier""")
    deferred('g1')
    END()
    p(f"""{w0}:
    s_mul_i32 s{A}, s{sG}, 12
    s_add_u32 s{A}, s{A}, s{sSLOT}
    s_lshl_b32 s{A}, s{A}, 8
    s_add_u32 s{A}, s{A}, {ACT}
    v_and_b32 v{t+4}, 7, v0
    v_lshlrev_b32 v{t+4}, 4, v{t+4}
    v_lshrrev_b32 v{t+5}, 5, v0
    v_lshl_add_u32 v{t+4}, v{t+5}, 7, v{t+4}
    v_bfe_u32 v{t+5}, v0, 4, 1
    v_lshl_add_u32 v{t+4}, v{t+5}, 3, v{t+4}
    s_barrier""")
    for w_ in range(1,4):
        for m_ in range(2): p(f"ds_read_b128 {vr(X+8*(w_-1)+4*m_,4)}, v{t+3} offset:{w_*2048+m_*1024}")
    p(f"s_mov_b32 s{B}, {hex(f2u(-math.log2(math.e)))}")
    for w_ in range(3):
        p(f"s_waitcnt lgkmcnt({4-2*w_})")
        for k in range(4): p(f"v_pk_add_f32 {vr(G+2*k,2)}, {vr(G+2*k,2)}, {vr(X+8*w_+2*k,2)}")
    p(f"""v_cvt_pk_bf16_f32 v{X}, v{G}, v{G+1}
    v_cvt_pk_bf16_f32 v{X+1}, v{G+2}, v{G+3}
    v_cvt_pk_bf16_f32 v{X+2}, v{U}, v{U+1}
    v_cvt_pk_bf16_f32 v{X+3}, v{U+2}, v{U+3}""")
    for k in range(4): p(f"v_lshlrev_b32 v{G+2*k}, 16, v{X+k}\nv_and_b32 v{G+2*k+1}, 0xffff0000, v{X+k}")
    for k in range(4): p(f"v_mul_f32 v{X+k}, s{B}, v{G+k}")
    for k in range(4): p(f"v_exp_f32 v{X+k}, v{X+k}")
    for k in range(4): p(f"v_add_f32 v{X+k}, 1.0, v{X+k}")
    for k in range(4): p(f"v_rcp_f32 v{X+k}, v{X+k}")
    for k in range(4): p(f"v_mul_f32 v{G+k}, v{G+k}, v{X+k}")
    p(f"v_cvt_pk_bf16_f32 v{X}, v{G}, v{G+1}\nv_cvt_pk_bf16_f32 v{X+1}, v{G+2}, v{G+3}")
    for k in range(2): p(f"v_lshlrev_b32 v{G+2*k}, 16, v{X+k}\nv_and_b32 v{G+2*k+1}, 0xffff0000, v{X+k}")
    p(f"""v_pk_mul_f32 {vr(G,2)}, {vr(G,2)}, {vr(U,2)}
    v_pk_mul_f32 {vr(G+2,2)}, {vr(G+2,2)}, {vr(U+2,2)}
    v_cvt_pk_bf16_f32 v{X}, v{G}, v{G+1}
    v_cvt_pk_bf16_f32 v{X+1}, v{G+2}, v{G+3}
    s_mov_b32 exec_lo, 0x00ff00ff
    s_mov_b32 exec_hi, 0x00ff00ff
    buffer_store_dwordx2 {vr(X,2)}, v{t+4}, {S4(sWS)}, s{A} offen sc1
    s_mov_b64 exec, -1""")
    STAMP('act')
    deferred('g0')
    END()
    HL=20; Y=24; X=28; SG=t+8; aO2=t+9
    p(f"""L_down:
    v_lshl_add_u32 v{aR}, v{t}, 3, v{aR}
    v_mul_u32_u24 v{aO2}, 1280, v{TOK}
    v_lshl_add_u32 v{aO2}, v{t}, 3, v{aO2}
    v_and_b32 v{t+4}, 7, v0
    v_lshlrev_b32 v{t+4}, 4, v{t+4}
    v_lshl_add_u32 v{t+4}, v{t}, 7, v{t+4}
    s_mul_i32 s{sT+1}, s{sG}, 5
    s_add_u32 s{sT+1}, s{sT+1}, s{sSLOT}
    s_sub_u32 s{sT+1}, s{sT+1}, 12
    s_lshl_b32 s{sT+1}, s{sT+1}, 5
    s_add_u32 s{sT+2}, s{sT+1}, {CAND}
    s_mul_i32 s{A}, s{sWAVE}, 6144
    s_add_u32 s{A}, s{A}, {ACT}
    s_add_u32 s{B}, s{A}, 4096""")
    deferred('d')
    p(f"""v_ashrrev_i32 v{SG}, 31, v{R}
    v_not_b32 v{SG}, v{SG}
    v_or_b32 v{SG}, 0x80000000, v{SG}
    v_xor_b32 v{SG}, v{SG}, v{R}
    v_and_b32 v{SG}, 0xffff0000, v{SG}
    v_mul_f32 v{SG}, {hex(f2u(-math.log2(math.e)))}, v{SG}
    v_exp_f32 v{SG}, v{SG}
    s_lshl_b32 s{C}, s{sWAVE}, 10
    v_add_f32 v{SG}, 1.0, v{SG}
    v_rcp_f32 v{SG}, v{SG}
    s_add_u32 s{C}, s{C}, {L_RED}
    v_lshl_add_u32 v{t+3}, v0, 4, s{C}""")
    bf16r(SG,SG)
    ld="\n".join([f"buffer_load_dwordx4 {vr(BL+4*i,4)}, v{t+4}, {S4(sWS)}, s{A if i<8 else B} offen offset:{(i%8)*512} sc1" for i in range(12)]+
        [f"buffer_load_dwordx2 {vr(HL,2)}, v{aR}, {S4(sWS)}, s{sT+2} offen sc1", f"buffer_load_dwordx2 {vr(HL+2,2)}, v{aR}, {S4(sWS)}, s{sT+2} offen offset:1280 sc1"])
    lp=p.lab("al"); ok=p.lab("alok")
    p(f"""s_mov_b32 s{C}, {SPIN}
    {lp}:
    {ld}
    s_waitcnt vmcnt(0) lgkmcnt(0)
    v_max_u32 v{t+5}, v{HL}, v{HL+2}""")
    for i in range(12): p(f"v_max3_u32 v{t+5}, v{BL+4*i}, v{BL+4*i+2}, v{t+5}")
    p(f"""v_cmp_eq_u32 vcc, -1, v{t+5}
    s_nop 0
    s_cbranch_vccz {ok}""")
    spin(C,lp,ok)
    p(f"s_branch {lp}\n{ok}:")
    STAMP('ar')
    for s_ in range(12): p(f"v_mfma_f32_16x16x32_bf16 {vr(Y,4)}, {vr(AW+4*s_,4)}, {vr(BL+4*s_,4)}, {vr(Y,4) if s_ else 0}")
    w0=p.lab("dnw0")
    p(f"""s_cmp_eq_u32 s{sWAVE}, 0
    s_cbranch_scc1 {w0}
    s_nop 5
    ds_write_b128 v{t+3}, {vr(Y,4)}
    s_waitcnt lgkmcnt(0)
    s_barrier""")
    END()
    p(f"""{w0}:
    v_lshlrev_b32 v{X+12}, 16, v{HL}
    v_and_b32 v{X+13}, 0xffff0000, v{HL}
    v_lshlrev_b32 v{X+14}, 16, v{HL+1}
    v_and_b32 v{X+15}, 0xffff0000, v{HL+1}
    v_lshlrev_b32 v{X+16}, 16, v{HL+2}
    v_and_b32 v{X+17}, 0xffff0000, v{HL+2}
    v_lshlrev_b32 v{X+18}, 16, v{HL+3}
    v_and_b32 v{X+19}, 0xffff0000, v{HL+3}
    s_barrier""")
    for w_ in range(1,4): p(f"ds_read_b128 {vr(X+4*(w_-1),4)}, v{t+3} offset:{w_*1024}")
    for w_ in range(3):
        p(f"s_waitcnt lgkmcnt({2-w_})")
        for k in range(2): p(f"v_pk_add_f32 {vr(Y+2*k,2)}, {vr(Y+2*k,2)}, {vr(X+4*w_+2*k,2)}")
    def rnd():
        p(f"v_cvt_pk_bf16_f32 v{X}, v{Y}, v{Y+1}\nv_cvt_pk_bf16_f32 v{X+1}, v{Y+2}, v{Y+3}")
    def unp():
        for k in range(2): p(f"v_lshlrev_b32 v{Y+2*k}, 16, v{X+k}\nv_and_b32 v{Y+2*k+1}, 0xffff0000, v{X+k}")
    rnd(); unp()
    for k in range(4): p(f"v_mul_f32 v{Y+k}, v{SG}, v{Y+k}")
    rnd(); unp()
    for k in range(2): p(f"v_pk_add_f32 {vr(Y+2*k,2)}, {vr(Y+2*k,2)}, {vr(X+12+2*k,2)}")
    rnd(); unp()
    for k in range(2): p(f"v_pk_add_f32 {vr(Y+2*k,2)}, {vr(Y+2*k,2)}, {vr(X+16+2*k,2)}")
    rnd()
    p(f"""s_mov_b32 exec_lo, 0x00ff00ff
    s_mov_b32 exec_hi, 0x00ff00ff
    buffer_store_dwordx2 {vr(X,2)}, v{aO2}, {S4(sOUT)}, s{sT+1} offen sc1""")
    STAMP('fin')
    END()
    lp=p.lab("th"); ok=p.lab("thok")
    p(f"""L_plain:
    s_lshl_b32 s{B}, s{sG}, 7
    s_add_u32 s{B}, s{B}, {TH}
    v_mov_b32 v{t}, 0
    s_mov_b32 s{C}, {SPIN}
    {lp}:
    s_sleep 16
    buffer_load_dwordx2 v[{t+2}:{t+3}], v{t}, {S4(sWS)}, s{B} offen sc1
    s_waitcnt vmcnt(0)
    v_cmp_ne_u32 vcc, s{sTAG}, v{t+3}
    s_nop 0
    s_cbranch_vccz {ok}""")
    spin(C,lp,ok)
    p(f"""s_branch {lp}
    {ok}:
    v_readfirstlane_b32 s{sTHR}, v{t+2}
    s_nop 1""")
    deferred('p')
    STAMP('fin')

def build():
    prologue()
    steps=loader()
    helperA(steps)
    p("s_branch L_mw")
    helperB(steps)
    p("L_mw:")
    moe_weights()
    END()
    p("L_comp:\ns_waitcnt lgkmcnt(0)")
    STAMP('start')
    prologue2()
    if CFG['cpf']: code_pf()
    srd(((sX,2621440),))
    gemm_setup()
    clears(0)
    if CFG['clr']==0: clears(1)
    p("s_waitcnt lgkmcnt(0)")
    mktag()
    p(f"""    s_cmp_eq_u32 s{sLC}, 15
    s_cbranch_scc1 L_gS
    s_cmp_eq_u32 s{sTY}, 2
    s_cbranch_scc1 L_gV""")
    gemm_loop('T'); gemm_epi('T'); p("s_branch L_att")
    p("L_gS:"); idle_gemm(); p("s_branch L_att")
    p("L_gV:"); gemm_loop('V'); gemm_epi('V')
    p("L_att:")
    p(f"v_mov_b32 v{aCLS}, 0x207")
    att_pro()
    for w in range(4): att_variant(w)
    att_fin()
    wo_main()
    if CFG['stop']<=3:
        p(f"s_and_b64 exec, s[{sCAND}:{sCAND+1}], -1\ns_cbranch_scc0 L_noo2"); out_store(); p("L_noo2:")
    else: moe()
    END()
    att_cold()
    for c in COLD: p(c)
    p("L_exit:\ns_endpgm")
build()
errs=check(p.L)
hdr=f"""; generated by work/k/gen.py (own generator script)
; @launch grid=(256,1,1) block=(512,1,1) lds=163840
.amdgcn_target "amdgcn-amd-amdhsa--gfx950"
.text
.globl {NAME}_kernel
.p2align 8
.type {NAME}_kernel,@function
{NAME}_kernel:
"""
ftr=f""".section .rodata,"a"
.p2align 6
.amdhsa_kernel {NAME}_kernel
  .amdhsa_next_free_vgpr 256
  .amdhsa_next_free_sgpr 102
  .amdhsa_accum_offset 256
  .amdhsa_group_segment_fixed_size 0
  .amdhsa_kernarg_size 88
  .amdhsa_user_sgpr_count 2
  .amdhsa_user_sgpr_kernarg_segment_ptr 1
  .amdhsa_system_sgpr_workgroup_id_x 1
.end_amdhsa_kernel
"""
open(sys.argv[1],"w").write(hdr+p.text()+ftr)

import subprocess
r=subprocess.run(["clang","-x","assembler","-target","amdgcn-amd-amdhsa","-mcpu=gfx950",sys.argv[1],"-o",sys.argv[1]+".co"],capture_output=True,text=True)
if r.returncode: print(r.stderr[:3000]); sys.exit(1)
r=subprocess.run(["python3","cdna_unwritten_srd_check.py",sys.argv[1]+".co"],capture_output=True,text=True)
if r.returncode: print("SRDCHECK:",r.stdout[-3000:],r.stderr[-1000:])
r=subprocess.run("llvm-size -A "+sys.argv[1]+".co | grep text",shell=True,capture_output=True,text=True); print(r.stdout.strip())
if errs: sys.exit(1)
```

```python
from mb import *
src=open('mb15.py').read()
exec(src.split("from mb import *")[1].split("ks.append")[0])
ks=[]
n=0
def tk(tag,pair,usews=0,warm=0,contig=0):
    b=PRO
    b=b.replace("s_load_dword s28, s[0:1], 24","s_load_dword s28, s[0:1], 24\ns_load_dwordx2 s[32:33], s[0:1], 32\ns_load_dwordx2 s[36:37], s[0:1], 40\ns_load_dwordx2 s[76:77], s[0:1], 48")
    setup="""
s_mov_b32 s34, 1966080
s_mov_b32 s35, 0x20000
s_mov_b32 s38, 1966080
s_mov_b32 s39, 0x20000
s_mov_b32 s78, 1966080
s_mov_b32 s79, 0x20000
s_and_b32 s44, s2, 7
s_lshr_b32 s45, s2, 3
s_cmp_ge_u32 s30, 2
s_cbranch_scc1 L_ge_@
v_min_u32 v10, 59, v2
v_mul_u32_u24 v11, 86, v10
v_lshrrev_b32 v11, 8, v11
v_mul_u32_u24 v11, 2688, v11
v_lshl_add_u32 v10, v10, 7, v11
s_mul_i32 s46, s45, 61440
s_mul_i32 s47, s44, 384
s_branch L_j_@
L_ge_@:
v_min_u32 v10, 47, v2
v_lshrrev_b32 v11, 1, v10
v_mul_u32_u24 v11, 1024, v11
v_lshl_add_u32 v10, v10, 7, v11
s_lshl_b32 s46, s45, 1
s_add_u32 s46, s46, s30
s_sub_u32 s46, s46, 2
s_mul_i32 s46, s46, 30720
s_mul_i32 s47, s44, 160
s_and_b32 s47, s47, -128
L_j_@:
s_add_u32 s46, s46, s47
v_add_u32 v9, s46, v10
"""
    if contig:
        setup+="""
v_min_u32 v10, 59, v2
v_lshlrev_b32 v10, 7, v10
s_mul_i32 s46, s2, 7680
s_cmp_eq_u32 s30, 3
s_cselect_b32 s47, 3840, 0
s_cbranch_scc0 L_c_@
v_min_u32 v10, 3712, v10
L_c_@:
s_cmp_eq_u32 s30, 2
s_cbranch_scc0 L_d_@
v_min_u32 v10, 3712, v10
L_d_@:
s_add_u32 s46, s46, s47
v_add_u32 v9, s46, v10
"""
    if warm:
        setup+="v_and_b32 v12, 0xfffff000, v9\nv_add_u32 v12, 0xf80, v12\nv_min_u32 v12, 1966000, v12\n"
        w=lambda S: f"buffer_load_dword v8, v12, {S}, 0 offen nt\n"
        setup+="s_cmp_eq_u32 s30, 0\ns_cbranch_scc1 L_w0_@\ns_cmp_eq_u32 s30, 1\ns_cbranch_scc1 L_w1_@\n"+w("s[76:79]")+"s_branch L_w2_@\nL_w0_@:\n"+w("s[32:35]")+"s_branch L_w2_@\nL_w1_@:\n"+w("s[36:39]")+"L_w2_@:\ns_waitcnt vmcnt(0)\n"
    b=b.replace("; global barrier",setup+"; global barrier")
    def t(S,off=0):
        if pair==1: return f"buffer_load_dword v8, v9, {S}, 0 offen nt\nbuffer_load_dword v8, v9, {S}, 0 offen offset:64\n"
        if pair==2: return f"buffer_load_dword v8, v9, {S}, 0 offen nt\n"
        return f"buffer_load_dword v8, v9, {S}, 0 offen\n"
    if usews:
        b+="s_lshl_b32 s46, s30, 21\ns_min_u32 s46, s46, 0x400000\nv_add_u32 v9, s46, v9\n"+t("s[16:19]")
    else:
        b+="s_cmp_eq_u32 s30, 0\ns_cbranch_scc1 L_t0_@\ns_cmp_eq_u32 s30, 1\ns_cbranch_scc1 L_t1_@\n"+t("s[76:79]")+"s_branch L_t2_@\nL_t0_@:\n"+t("s[32:35]")+"s_branch L_t2_@\nL_t1_@:\n"+t("s[36:39]")+"L_t2_@:\n"
    b+="s_waitcnt vmcnt(0)\n"+stamp(0)+"s_barrier\n"+stamp(1)+stamp(2)+stamp(3)+stamp(4)+stamp(5)
    b+=EPI(6)
    return b.replace("@",tag)
for pair in (0,1,2):
  for usews,warm,contig in ((0,0,0),(1,0,0),(0,1,0),(0,0,1),(1,0,1)):
    n+=1
    ks.append((f"pair{pair}_ws{usews}_warm{warm}_contig{contig}", tk("a%d"%n,pair,usews,warm,contig),128,128))
co=build(ks, "mb22")
M=Mod(co)
out=DeviceBuffer(1<<20)
W=[DeviceBuffer(1966080) for _ in range(3)]
ws=DeviceBuffer(64<<20)
ctr=DeviceBuffer(4096)
big=DeviceBuffer(512<<20)
print([hex(w.ptr) for w in W])
nonce=1000
for name,_,_,_ in ks:
  for cold in (1,):
    acc=[]
    for it in range(6):
        nonce+=1
        memset(ctr,0)
        if cold==1: memset(big, it)
        sync()
        M.launch(name,256,256,[out.ptr,ws.ptr,ctr.ptr,nonce]+[w.ptr for w in W]+[0], lds=100000)
        sync()
        r=out.to_numpy(np.uint32,(256*32,)).reshape(256,4,8)[:,:,:2].astype(np.int64)
        if it>1: acc.append(r)
    r=np.median(np.stack(acc),axis=0)
    print(name, "med", np.median(r,axis=(0,)).astype(int).tolist(), "max", r.max(axis=(0,1)).astype(int).tolist())
```

```python
import sys, math
from asmlib import *
NAME="sequential_preLN__sliding_block__moe_arch_mod__prompt"
CFG=dict(acsl=0, casl=0, xp=(), dw3=0, wla=7, wwe=2, dgate='O1', dstart='O1', gstart='WOD', mdep=1, ddep=12, qpair=1, mpair=1, wpair=0, xnt=10, wnt=0, tpol2='', wtw='no', mtw='w3', wothr1=4, mb=(6,6), mg=('WOD','PR','PR','O1'), mpf=0, mgate='b3', hsplit=0, cpf=1, npf=(0,)*10, wogs=5, clr=0, wot=(), wtpol='', seqs=None, xpol='nt', wpol='', tpol='nt', wopol='', mpol='', cal=None, opol='', st=['start','b0|hb0','gend|hb9','E1|hE1','st|halo|clr','fl|g2|wo','fseen|h2','kv','aend','ost'], pt=6, wothr=16, wogate=1, h2sl=1, noh2=0, nowo=0, wos=(0,0,0), sched=(1,1,2,1,1,1,1,0,0,0), dbg=0, stop=99, prof=0, rot=('0123','03692581','05278052'), force_slow=0, noclr=0, pre=2, ldst=0, nomfma=0, nohello=0)
for a in sys.argv[2:]:
    k,v=a.split("="); CFG[k]=eval(v)
QB,KB,VB,KH,VH,OB=[i*0x280000 for i in range(6)]
CAND=0xF00000
PS=0xFA0000
CA=0xFE0000
ACT=0xFE1000
HB=0x1000000
PROF=0x1300000
H1=0x1280000; H2=0x1281000; EPO=0x1282000; TH=0x1283000
FO=0x1700000; OB2=0x1400000; FL=0x12A0000; FH=0x1740000
L_STG=0; L_KV=10240; L_WO=55296; L_MISC=157696; L_MW=0
L_CS=L_MISC
L_SA=L_MISC+512
L_SR=L_SA+1024
L_MODE=L_SR+512
L_FLG=L_MODE+64
F_G1,F_G2,F_H2,F_STG,F_SCP,F_DONE,F_WOR,F_MW=[L_FLG+4*i for i in (0,1,2,4,8,9,10,12)]
L_SWS=L_FLG+80; F_O1=L_FLG+44; F_WOD=L_FLG+64; F_PR=L_FLG+68; F_WO2=L_FLG+72; F_PS=L_FLG+76
L_KEYS=L_FLG+128
L_CA=L_KEYS+256; L_TOP=L_CA+64
L_RED=L_WO
sX,sW,sWO,sWG,sWU,sWD,sOUT,sWS,sDBG,sWR=[4+4*i for i in range(10)]
sWAVE,sG,sSLOT,sRQ,sHH,sRB,sCT,sMODE,sEP,sTAG=range(44,54)
sT=54
sLO=76
sPROF=80
p=P()
COLD=[]
CALI=lambda: 's_memtime' if CFG['cal'][1]>20000 else 's_memrealtime'
def STAMP(name,w=0):
    if CFG['cal'] and name in CFG['cal'][0].split('|'):
        p(f"{CALI()} s[{sPROF}:{sPROF+1}]")
        if w: p("s_waitcnt lgkmcnt(0)")
    i=[k for k,n in enumerate(CFG['st']) if name in n.split('|')]
    if CFG['prof'] and i:
        i=i[0]
        p(f"{'s_memrealtime' if CFG['prof']==2 else 's_memtime'} s[{sPROF+2*i}:{sPROF+2*i+1}]")
        if w: p("s_waitcnt lgkmcnt(0)")
def PROFDUMP():
    if not CFG['prof']: return
    p("s_waitcnt vmcnt(0) lgkmcnt(0)")
    p("s_mov_b64 exec, -1")
    for i in range(10): p(f"v_mov_b32 v{2+i}, s{sPROF+2*i}")
    p(f"""s_lshl_b32 s{sT}, s2, 3
    s_add_u32 s{sT}, s{sT}, s{sWAVE}
    s_lshl_b32 s{sT}, s{sT}, 6
    s_add_u32 s{sT}, s{sT}, {PROF}
    v_mov_b32 v1, 0
    s_mov_b64 exec, 1
    buffer_store_dwordx4 v[2:5], v1, s[{sWS}:{sWS+3}], s{sT} offen
    buffer_store_dwordx4 v[6:9], v1, s[{sWS}:{sWS+3}], s{sT} offen offset:16
    buffer_store_dwordx2 v[10:11], v1, s[{sWS}:{sWS+3}], s{sT} offen offset:32""")
def END():
    PROFDUMP()
    if CFG['cal']:
        lp=p.lab("cal"); ok=p.lab("calok")
        p(f"""s_waitcnt vmcnt(0) lgkmcnt(0)
        s_cmp_eq_u32 s{sPROF}, 0
        s_cbranch_scc1 {ok}
        s_cmp_ge_u32 s{sWAVE}, 4
        s_cbranch_scc1 {ok}
        s_mov_b32 s{sPROF+4}, 100000
        {lp}:
        s_sleep 2
        {CALI()} s[{sPROF+2}:{sPROF+3}]
        s_sub_u32 s{sPROF+4}, s{sPROF+4}, 1
        s_cbranch_scc1 {ok}
        s_waitcnt lgkmcnt(0)
        s_sub_u32 s{sPROF+2}, s{sPROF+2}, s{sPROF}
        s_cmp_lt_u32 s{sPROF+2}, {CFG['cal'][1]}
        s_cbranch_scc1 {lp}
        {ok}:""")
    p("s_endpgm")
S4=lambda r:f"s[{r}:{r+3}]"
SPIN=1<<18

def srd(lst):
    for r,n in lst: p(f"s_mov_b32 s{r+2}, {n}\ns_mov_b32 s{r+3}, 0x20000")
def prologue():
    STAMP('entry')
    p(f"""s_cmp_ge_u32 s2, 256
    s_cbranch_scc1 L_exit
    s_load_dwordx2 s[{sX}:{sX+1}], s[0:1], 0
    s_load_dwordx2 s[{sW}:{sW+1}], s[0:1], 8
    s_load_dwordx2 s[{sWS}:{sWS+1}], s[0:1], 80
    v_lshrrev_b32 v1, 6, v0
    v_and_b32 v0, 63, v0
    v_readfirstlane_b32 s{sWAVE}, v1
    s_and_b32 s{sG}, s2, 7
    s_lshr_b32 s{sSLOT}, s2, 3
    s_lshr_b32 s{sRQ}, s{sG}, 1
    s_and_b32 s{sHH}, s{sG}, 1
    s_and_b32 s{sRB}, s{sSLOT}, 3
    s_lshr_b32 s{sCT}, s{sSLOT}, 2""")
    if CFG['cal']: p(f"s_mov_b32 s{sPROF}, 0")
    if CFG['prof']:
        for i in range(1,10): p(f"s_mov_b32 s{sPROF+2*i}, 0")
    p(f"""s_cmp_lt_u32 s{sWAVE}, 4
    s_cbranch_scc1 L_comp""")
def prologue2():
    p(f"""s_mov_b32 s{sTAG}, {EPO}
    s_load_dword s{sEP}, s[{sWS}:{sWS+1}], s{sTAG}
    s_load_dwordx2 s[{sWO}:{sWO+1}], s[0:1], 16
    s_load_dwordx2 s[{sWR}:{sWR+1}], s[0:1], 32
    s_load_dwordx2 s[{sWG}:{sWG+1}], s[0:1], 40
    s_load_dwordx2 s[{sWU}:{sWU+1}], s[0:1], 48
    s_load_dwordx2 s[{sWD}:{sWD+1}], s[0:1], 56
    s_load_dwordx2 s[{sOUT}:{sOUT+1}], s[0:1], 64""")
    srd(((sWS,268435456),(sWO,819200),(sWR,1280),(sWG,1966080),(sWU,1966080),(sWD,1966080),(sOUT,2621440)))
    p(f"""s_mov_b32 s{sLO}, -1
    s_mov_b32 s{sLO+1}, 0
    s_mov_b32 s{sLO+2}, 0xfffff
    s_mov_b32 s{sLO+3}, 0xfffff""")
def mktag():
    p(f"""s_mul_i32 s{sTAG}, s{sEP}, 0x9e3779b1
    s_add_u32 s{sTAG}, s{sTAG}, 0x7f4a7c15
    s_and_b32 s{sTAG}, s{sTAG}, -16""")
def colbyte(dst, lc):
    t=sT+18
    p(f"""s_mul_i32 s{t}, s{lc}, 52
    s_lshr_b32 s{t}, s{t}, 8
    s_mul_i32 s{t+1}, s{t}, 5
    s_sub_u32 s{t+1}, s{lc}, s{t+1}
    s_mul_i32 s{t}, s{t}, 1280
    s_lshl_b32 s{t+1}, s{t+1}, 7
    s_mul_i32 s{dst}, s{sHH}, 640
    s_add_u32 s{dst}, s{dst}, s{t}
    s_add_u32 s{dst}, s{dst}, s{t+1}""")

def loader():
    CA_=sT+1; CB_=sT+2; CH=sT+3; XO=sT+4; WO_=sT+5; LB=sT+6; A=sT+7; B=sT+8; OFF=sT+9; SEQ=sT+10
    vX=2; vW=6; vt=10
    p(f"""s_sub_u32 s{HW}, s{sWAVE}, 4
    s_lshl_b32 s{A}, s{sCT}, 1
    s_add_u32 s{B}, s{A}, 1
    s_min_u32 s{B}, s{B}, 14""")
    colbyte(CA_,A); colbyte(CB_,B)
    p(f"""v_lshrrev_b32 v{vt}, 3, v0
    v_mul_u32_u24 v{vX}, 1280, v{vt}
    v_lshrrev_b32 v{vt+1}, 4, v0
    v_and_b32 v{vt+2}, 7, v0
    v_xor_b32 v{vt+2}, v{vt+2}, v{vt+1}
    v_lshl_add_u32 v{vX}, v{vt+2}, 4, v{vX}
    v_xor_b32 v{vX+1}, 64, v{vX}
    v_add_u32 v{vX+1}, {10240-1024}, v{vX+1}
    v_add_u32 v{vX+2}, {2*(10240-1024)}, v{vX}
    v_add_u32 v{vX+3}, {2*(10240-1024)}, v{vX+1}
    v_lshlrev_b32 v{vt+2}, 2, v{vt+1}
    v_and_b32 v{vt+3}, 15, v0
    v_xor_b32 v{vt+2}, v{vt+2}, v{vt+3}
    v_cmp_lt_u32 vcc, 7, v{vt+2}
    v_mov_b32 v{vt+3}, s{CA_}
    v_mov_b32 v{vt+4}, s{CB_}
    v_cndmask_b32 v{vt+3}, v{vt+3}, v{vt+4}, vcc
    v_and_b32 v{vt+2}, 7, v{vt+2}
    v_lshl_add_u32 v{vt+3}, v{vt+2}, 4, v{vt+3}
    v_mul_u32_u24 v{vW}, 3840, v{vt+1}
    v_add_u32 v{vW}, v{vW}, v{vt+3}""")
    for i in range(1,4): p(f"v_add_u32 v{vW+i}, {i*(4*3840-1024)}, v{vW}")
    ta,tc,tg=CFG['rot']
    pk=lambda t: sum(int(v)<<(4*i) for i,v in enumerate(t))
    p(f"""s_lshl_b32 s{A}, s{sRB}, 2
    s_lshr_b32 s{CH}, {pk(ta)}, s{A}
    s_and_b32 s{CH}, s{CH}, 15
    s_lshl_b32 s{A}, s{sCT}, 2
    s_lshr_b32 s{A}, {hex(pk(tc))}, s{A}
    s_and_b32 s{A}, s{A}, 15
    s_add_u32 s{CH}, s{CH}, s{A}
    s_lshl_b32 s{A}, s{sG}, 2
    s_lshr_b32 s{A}, {hex(pk(tg))}, s{A}
    s_and_b32 s{OFF}, s{A}, 15""")
    seqs=CFG['seqs']
    if seqs:
        n=len(seqs)
        p(f"""s_mul_i32 s{A}, s{CH}, {-(-2048//n)}
        s_lshr_b32 s{A}, s{A}, 11
        s_mul_i32 s{A}, s{A}, {n}
        s_sub_u32 s{CH}, s{CH}, s{A}""")
        for i,q in enumerate(seqs):
            assert sorted(q)==list("0123456789")
            if i: p(f"s_cmp_eq_u32 s{CH}, {i}\ns_cselect_b32 s{SEQ}, {hex(pk(q[:8]))}, s{SEQ}\ns_cselect_b32 s{SEQ+1}, {hex(pk(q[8:]))}, s{SEQ+1}")
            else: p(f"s_mov_b32 s{SEQ}, {hex(pk(q[:8]))}\ns_mov_b32 s{SEQ+1}, {hex(pk(q[8:]))}")
    else:
        p(f"""s_add_u32 s{CH}, s{CH}, s{OFF}
    s_mul_i32 s{A}, s{CH}, 205
    s_lshr_b32 s{A}, s{A}, 11
    s_mul_i32 s{A}, s{A}, 10
    s_sub_u32 s{CH}, s{CH}, s{A}""")
    p(f"""
    s_lshl_b32 s{A}, s{sRQ}, 2
    s_add_u32 s{A}, s{A}, s{sRB}
    s_lshl_b32 s{A}, s{A}, 2
    s_add_u32 s{A}, s{A}, s{HW}
    s_mul_i32 s{XO}, s{A}, {32*1280}
    s_mul_i32 s{WO_}, s{HW}, {16*3840}
    s_lshl_b32 s{LB}, s{HW}, 12""")
    def issue(c):
        slot=(c%4)*32768
        if seqs: p(f"""s_and_b32 s{CH}, s{SEQ}, 15
        s_lshr_b64 s[{SEQ}:{SEQ+1}], s[{SEQ}:{SEQ+1}], 4
        s_add_u32 s{CH}, s{CH}, s{OFF}
        s_sub_u32 s{A}, s{CH}, 10
        s_cselect_b32 s{CH}, s{CH}, s{A}""")
        p(f"""s_lshl_b32 s{A}, s{CH}, 7
        s_add_u32 s{A}, s{A}, s{XO}
        s_add_u32 m0, s{LB}, {slot}
        s_mul_i32 s{B}, s{CH}, {64*3840}""")
        for i in range(4): p(f"buffer_load_dwordx4 v{vX+i}, {S4(sX)}, s{A} offen offset:{i*1024} {CFG['xpol'] if c<CFG['xnt'] else ''} lds")
        p(f"""s_add_u32 m0, s{LB}, {slot+16384}
        s_add_u32 s{B}, s{B}, s{WO_}""")
        for i in range(4): p(f"buffer_load_dwordx4 v{vW+i}, {S4(sW)}, s{B} offen offset:{i*1024} {'nt' if c<CFG['wnt'] else CFG['wpol']} lds")
        if not seqs: p(f"""s_add_u32 s{CH}, s{CH}, 1
        s_cmp_eq_u32 s{CH}, 10
        s_cselect_b32 s{CH}, 0, s{CH}""")
    pre=CFG['pre']
    srd(((sX,2621440),(sW,2457600)))
    p("s_waitcnt lgkmcnt(0)")
    STAMP('i0')
    for c in range(pre):
        issue(c); STAMP('i%d'%(c+1))
        if c==0:
            prologue2()
            p(f"""v_cmp_lt_u32 vcc, 7, v0
            v_lshlrev_b32 v{vt}, 4, v0
            v_add_u32 v{vt}, {L_FLG}, v{vt}
            v_cndmask_b32 v{vt+2}, 0, -1, vcc
            v_cndmask_b32 v{vt+3}, 0, -1, vcc
            v_cndmask_b32 v{vt+4}, 0, -1, vcc
            v_cndmask_b32 v{vt+5}, 0, -1, vcc
            ds_write_b128 v{vt}, v[{vt+2}:{vt+5}]""")
            early()
    p("s_waitcnt lgkmcnt(0)")
    mktag()
    p(f"s_cmp_ge_u32 s{HW}, 2\ns_cbranch_scc1 L_helperB")
    def steps(hook):
        global OPS
        OPS=[c for c in range(pre) for _ in range(8)]
        issued=pre
        for c in range(7):
            vmwait(c)
            p("s_barrier")
            STAMP('ld%d'%c)
            for _ in range(CFG['sched'][c]):
                assert issued<min(10,c+4); issue(issued); OPS+=[issued]*8; issued+=1
            hook(c)
        assert issued==10
    return steps
vPT=21; vDUM=39
HS=sT+12; HA=28
def early():
    A=sT+20; B=sT+21; vt=10
    wave_ids(HW,sT+16,sT+17,sT+18,sT+19)
    store_addr(sT+16,sT+18,sT+19,HS,HS+1,HS+2,HS+3,HA,A,B,t=vt)
    p(f"""s_add_u32 s{HS}, s{HS}, {KH-KB}
    s_add_u32 s{HS+1}, s{HS+1}, {KH-KB}
    s_sub_u32 s{A}, s{HS+3}, {FL}
    s_and_b32 s{B}, s{A}, 127
    s_sub_u32 s{A}, s{A}, s{B}
    s_lshl_b32 s{A}, s{A}, 3
    s_lshl_b32 s{B}, s{B}, 5
    s_add_u32 s{A}, s{A}, s{B}
    s_add_u32 s{HS+3}, s{A}, {FH}""")
    p(f"""s_lshl_b32 s{A}, s{sSLOT}, 2
    s_add_u32 s{A}, s{A}, s{HW}
    s_mul_i32 s{A}, s{A}, 60
    v_min_u32 v{vt}, 59, v0
    v_add_u32 v{vt}, s{A}, v{vt}
    v_mul_u32_u24 v{vt+1}, 6554, v{vt}
    v_lshrrev_b32 v{vt+1}, 20, v{vt+1}
    v_mul_u32_u24 v{vt+2}, 160, v{vt+1}
    v_sub_u32 v{vt}, v{vt}, v{vt+2}
    v_lshlrev_b32 v{vt}, 7, v{vt}
    v_cmp_gt_u32 vcc, 32, v{vt+1}
    v_and_b32 v{vt+2}, 1, v{vt+1}
    v_mul_u32_u24 v{vt+2}, 20480, v{vt+2}
    v_bfe_u32 v{vt+3}, v{vt+1}, 1, 3
    v_mul_u32_u24 v{vt+3}, 163840, v{vt+3}
    v_add_u32 v{vt+2}, v{vt+2}, v{vt+3}
    v_lshrrev_b32 v{vt+3}, 4, v{vt+1}
    v_mul_u32_u24 v{vt+3}, {KB}, v{vt+3}
    s_mul_i32 s{A}, s{sRQ}, 40960
    v_add3_u32 v{vt+2}, v{vt+2}, v{vt+3}, s{A}
    v_and_b32 v{vt+3}, 15, v{vt+1}
    v_mul_u32_u24 v{vt+3}, 81920, v{vt+3}
    s_mul_i32 s{A}, s{sRQ}, 20480
    s_add_u32 s{A}, s{A}, {VB}
    v_add_u32 v{vt+3}, s{A}, v{vt+3}
    v_cndmask_b32 v{vt+2}, v{vt+3}, v{vt+2}, vcc
    s_mul_i32 s{A}, s{sHH}, {8*163840}
    v_add3_u32 v{vPT}, v{vt}, v{vt+2}, s{A}
""")
    nsm=sum(CFG['npf']); per=(100-5*nsm)//2
    if per>0:
        p(f"""s_mul_i32 s{A}, s{sG}, 5
        s_lshr_b32 s{A}, s{A}, 1
        s_mul_i32 s{A}, s{A}, 5
        s_lshr_b32 s{B}, s{HW}, 1
        s_mul_i32 s{B}, s{B}, {per}
        s_add_u32 s{A}, s{A}, s{B}
        s_add_u32 s{A}, s{A}, {5*nsm}
        v_min_u32 v{vt}, {per-1}, v0
        v_add_u32 v{vt}, s{A}, v{vt}
        v_subrev_u32 v{vt+1}, 100, v{vt}
        v_min_u32 v{vt}, v{vt}, v{vt+1}
        s_lshl_b32 s{A}, s{sSLOT}, 1
        s_and_b32 s{B}, s{HW}, 1
        s_add_u32 s{A}, s{A}, s{B}
        s_mul_i32 s{A}, s{A}, 12800
        v_lshl_add_u32 v{vTW}, v{vt}, 7, s{A}""")
    ge=p.lab("mtge"); jn=p.lab("mtj")
    p(f"""s_cmp_ge_u32 s{HW}, 2
    s_cbranch_scc1 {ge}
    v_min_u32 v{vt}, 59, v0
    v_mul_u32_u24 v{vt+1}, 86, v{vt}
    v_lshrrev_b32 v{vt+1}, 8, v{vt+1}
    v_mul_u32_u24 v{vt+1}, {3072-384}, v{vt+1}
    v_lshl_add_u32 v{vt}, v{vt}, 7, v{vt+1}
    s_mul_i32 s{A}, s{sSLOT}, {20*3072}
    s_mul_i32 s{B}, s{sG}, 384
    s_branch {jn}
    {ge}:
    {jn}:
    s_add_u32 s{A}, s{A}, s{B}
    v_add_u32 v{vTM}, s{A}, v{vt}
    s_sub_u32 s{A}, s{sSLOT}, {0 if CFG['dw3'] else 17}
    s_lshl_b32 s{A}, s{A}, {1 if CFG['dw3'] else 2}
    s_add_u32 s{A}, s{A}, s{HW}
    s_mul_i32 s{A}, s{A}, {24 if CFG['dw3'] else 26}
    v_min_u32 v{vt}, {47 if CFG['dw3'] else 51}, v0
    v_lshrrev_b32 v{vt+1}, 1, v{vt}
    v_add_u32 v{vt+1}, s{A}, v{vt+1}
    v_min_u32 v{vt+1}, 1535, v{vt+1}
    v_mul_u32_u24 v{vt+1}, 1280, v{vt+1}
    v_and_b32 v{vt}, 1, v{vt}
    v_lshl_add_u32 v{vt}, v{vt}, 7, v{vt+1}
    s_mul_i32 s{B}, s{sG}, 160
    s_and_b32 s{B}, s{B}, -128
    v_add_u32 v{vTD}, s{B}, v{vt}""")
vTD=25
vTW=22; vTM=24
def touch(va,srd_,pair,pol=''):
    if pair:
        p(f"buffer_load_dword v{vDUM}, v{va}, {S4(srd_)}, 0 offen nt\nbuffer_load_dword v{vDUM}, v{va}, {S4(srd_)}, 0 offen offset:64")
        return 2
    p(f"buffer_load_dword v{vDUM}, v{va}, {S4(srd_)}, 0 offen {pol}")
    return 1
def wtouch(win,isB):
    n=0
    if CFG['wtw']==win and 100-5*sum(CFG['npf'])>0:
        n+=touch(vTW,sWO,CFG['wpair'])
    if CFG['mtw']==win:
        if not isB:
            u=p.lab("tu"); j=p.lab("tj")
            p(f"s_cmp_eq_u32 s{HW}, 0\ns_cbranch_scc0 {u}")
            touch(vTM,sWG,CFG['mpair'])
            p(f"s_branch {j}\n{u}:")
            n+=touch(vTM,sWU,CFG['mpair'])
            p(f"{j}:")
    return n
def qkv_touch():
    if CFG['pt']==99: return
    OPS.extend(['pt']*touch(vPT,sWS,CFG['qpair'],CFG['tpol']))
vH=16
OPS=[]
def vmwait(*tags):
    last=max(i for i,t in enumerate(OPS) if t in tags)
    n=len(OPS)-1-last; assert n<64
    p(f"s_waitcnt vmcnt({n})")
HW=sT
def spin(cnt,lp,ok,sleep=0):
    p(f"s_sub_u32 s{cnt}, s{cnt}, 1\ns_cbranch_scc1 {ok}")
    if sleep: p(f"s_sleep {sleep}")
def lds_wait(addr_v,tmp,cnt,cmp,val,sleep=1):
    lp=p.lab("lw"); ok=p.lab("lwok")
    p(f"""s_mov_b32 s{cnt}, {SPIN*4}
    {lp}:
    ds_read_b32 v{tmp}, v{addr_v}
    s_waitcnt lgkmcnt(0)
    v_cmp_{cmp}_u32 vcc, {val}, v{tmp}
    s_nop 0
    s_cbranch_vccz {ok}""")
    spin(cnt,lp,ok,sleep)
    p(f"s_branch {lp}\n{ok}:")
sHL,sHF,sHO,sPH,sHD,sT0=range(sT+1,sT+7)
def att_ids():
    p(f"""s_lshr_b32 s{sHL}, s{sSLOT}, 1
    s_and_b32 s{sHF}, s{sSLOT}, 1
    s_and_b32 s{sHO}, s{sHL}, 1
    s_lshr_b32 s{sPH}, s{sHL}, 1
    s_lshl_b32 s{sHD}, s{sHH}, 3
    s_add_u32 s{sPH}, s{sPH}, s{sHD}
    s_lshl_b32 s{sHD}, s{sHH}, 4
    s_add_u32 s{sHD}, s{sHD}, s{sHL}
    s_lshl_b32 s{sT0}, s{sRQ}, 1
    s_add_u32 s{sT0}, s{sT0}, s{sHF}
    s_lshl_b32 s{sT0}, s{sT0}, 3""")
def flag_addr(vd,vt,withq,A,B,C):
    p(f"""s_lshr_b32 s{A}, s{sHL}, 1
    s_mul_i32 s{A}, s{A}, 5
    s_lshl_b32 s{B}, s{sHO}, 1
    s_add_u32 s{A}, s{A}, s{B}
    s_add_u32 s{B}, s{A}, 2
    s_lshr_b32 s{A}, s{A}, 3
    s_lshr_b32 s{B}, s{B}, 3
    s_lshl_b32 s{B}, s{B}, 4
    s_or_b32 s{A}, s{A}, s{B}
    s_add_u32 s{B}, s{A}, 0x55
    s_lshl_b32 s{C}, s{B}, 8
    s_or_b32 s{A}, s{C}, s{A if withq else B}
    s_mul_i32 s{B}, s{sHL}, 20
    s_add_u32 s{C}, s{B}, 19
    s_lshr_b32 s{B}, s{B}, 6
    s_lshr_b32 s{C}, s{C}, 6
    s_lshl_b32 s{C}, s{C}, 4
    s_or_b32 s{B}, s{B}, s{C}
    s_add_u32 s{B}, s{B}, 0xaa
    s_lshl_b32 s{B}, s{B}, 16
    s_or_b32 s{A}, s{A}, s{B}
    v_and_b32 v{vt}, 60, v0
    v_min_u32 v{vt}, 20, v{vt}
    v_bfe_u32 v{vt}, s{A}, v{vt}, 4
    v_and_b32 v{vd}, 3, v0
    v_lshlrev_b32 v{vd}, 2, v{vd}
    v_lshl_add_u32 v{vd}, v{vt}, 7, v{vd}""")
def flag_poll(va,vt,soff,cnt,first=True,sleep=0):
    lp=p.lab("fp"); ok=p.lab("fpok");
    p(f"s_mov_b32 s{cnt}, {SPIN}")
    if not first:
        md=p.lab("fpm"); p(f"s_branch {md}")
    p(f"""{lp}:
    buffer_load_dword v{vt}, v{va}, {S4(sWS)}, s{soff} offen sc1""")
    if not first: p(f"{md}:")
    p(f"""s_waitcnt vmcnt(0)
    v_cmp_ne_u32 vcc, s{sTAG}, v{vt}
    s_nop 0
    s_cbranch_vccz {ok}""")
    spin(cnt,lp,ok,sleep)
    p(f"s_branch {lp}\n{ok}:")
def kv_dma(aLin,aTl,sK,sV,sL,A,B):
    p(f"""s_mul_i32 s{A}, s{sHO}, 1536
    s_add_u32 s{A}, s{A}, s{sK}
    s_mov_b32 m0, s{sL}
    s_add_u32 s{B}, s{A}, 1536
    buffer_load_dwordx4 v{aLin}, {S4(sWS)}, s{A} offen sc1 lds
    buffer_load_dwordx4 v{aLin}, {S4(sWS)}, s{B} offen offset:1024 sc1 lds
    s_sub_u32 s{A}, s{sK}, 2048
    s_sub_u32 s{B}, s{sV}, 3072
    buffer_load_dwordx4 v{aTl}, {S4(sWS)}, s{A} offen offset:2048 sc1 lds
    buffer_load_dwordx4 v{aLin}, {S4(sWS)}, s{B} offen offset:3072 sc1 lds
    s_add_u32 m0, s{sL}, 4096
    s_add_u32 s{B}, s{sV}, 1024
    buffer_load_dwordx4 v{aLin}, {S4(sWS)}, s{B} offen sc1 lds
    s_mov_b64 exec, s[{sLO}:{sLO+1}]
    buffer_load_dwordx4 v{aLin}, {S4(sWS)}, s{B} offen offset:1024 sc1 lds
    s_mov_b64 exec, -1""")
def kv_addr(aLin,aTl,t):
    p(f"""v_lshlrev_b32 v{aLin}, 4, v0
    v_lshrrev_b32 v{t}, 5, v0
    v_mul_u32_u24 v{t}, {2560-512}, v{t}
    v_add3_u32 v{aTl}, v{aLin}, v{t}, s{sK1024}""")
sK1024=sT+21

def halo_copy(aLin,vt,D,A,B,isB):
    sk=p.lab("nohalo"); s2_=p.lab("nohf")
    w2=CFG['wtw'][:2]=='w2' or CFG['mtw'][:2]=='w2'
    p(f"""v_mov_b32 v{vt+2}, {F_SCP}
    v_mov_b32 v{vt+3}, 1
    s_lshl_b32 s{B}, s{HW}, 2
    s_add_u32 s{B}, s{B}, {F_STG}
    v_mov_b32 v{vt}, s{B}
    s_cmp_eq_u32 s{HS+2}, 0
    s_cbranch_scc1 {sk}
    s_lshl_b32 s{A}, s{HW}, 13
    v_add_u32 v{vt+1}, s{A}, v{aLin}""")
    for xb in range(2):
        if CFG['hsplit'] or xb==0: lds_wait(vt,vt+5,B,'gt',(xb+1) if CFG['hsplit'] else 2,0)
        STAMP('hs%d'%xb)
        for i in range(4*xb,4*xb+4): p(f"ds_read_b128 {vr(D+4*i,4)}, v{vt+1} offset:{L_STG+i*1024}")
        for i in range(4*xb,4*xb+4):
            p(f"s_waitcnt lgkmcnt({4*xb+3-i})\nbuffer_store_dwordx4 {vr(D+4*i,4)}, v{HA+(i&3)}, {S4(sWS)}, s{HS+(i>>2)} offen sc1")
    n=wtouch('w2',isB)
    p(f"""s_mov_b64 exec, 1
    ds_add_u32 v{vt+2}, v{vt+3}
    v_mov_b32 v{vt}, 0
    v_mov_b32 v{vt+1}, s{sTAG}""")
    STAMP('hi')
    p(f"""s_waitcnt vmcnt({n})
    buffer_store_dword v{vt+1}, v{vt}, {S4(sWS)}, s{HS+3} offen sc1
    s_branch {s2_}
    {sk}:""")
    if w2:
        lds_wait(vt,vt+5,B,'gt',2,0)
        wtouch('w2',isB)
    p(f"""s_mov_b64 exec, 1
    ds_add_u32 v{vt+2}, v{vt+3}
    {s2_}:
    s_mov_b64 exec, -1""")
    STAMP('halo')
def helperA(steps):
    A=sT+7; B=sT+8; vt=10
    aS=44; dS=64; acc=60; one=43
    p(f"""s_lshl_b32 s{sT+16}, s{HW}, 13
    v_bfe_u32 v{vt}, v0, 1, 3
    v_lshlrev_b32 v{vt}, 4, v{vt}
    v_lshl_add_u32 v{vt}, v0, 7, v{vt}
    v_add_u32 v{aS}, s{sT+16}, v{vt}
    v_mov_b32 v{one}, 0x3f803f80""")
    for i in range(1,8): p(f"v_xor_b32 v{aS+i}, {16*i}, v{aS}")
    for i in range(8): p(f"v_add_u32 v{aS+8+i}, 0x10000, v{aS+i}")
    for i in range(4): p(f"v_mov_b32 v{acc+i}, 0")
    def stats(c):
        for i in range(8): p(f"ds_read_b128 {vr(dS+4*i,4)}, v{aS+8*((c>>1)&1)+i} offset:{(c&1)*32768}")
        for i in range(8):
            p(f"s_waitcnt lgkmcnt({7-i})")
            for j in range(4):
                r=dS+4*i+j
                p(f"v_dot2_f32_bf16 v{acc+(j&1)}, v{r}, v{one}, v{acc+(j&1)}\nv_dot2_f32_bf16 v{acc+2+(j&1)}, v{r}, v{r}, v{acc+2+(j&1)}")
    def hook(c):
        if c==6:
            qkv_touch(); OPS.extend(['pt']*wtouch('w1',0))
        stats(c)
    steps(hook)
    for c in (7,8,9):
        vmwait(c); p("s_barrier"); STAMP('ld%d'%c)
        if c==9: STAMP('hb9')
        stats(c)
    t=vt
    p(f"""s_barrier
    s_nop 0
    v_add_f32 v{t+1}, v{acc}, v{acc+1}
    v_add_f32 v{t+2}, v{acc+2}, v{acc+3}
    v_mul_f32 v{t+1}, {1/640!r}, v{t+1}
    v_mul_f32 v{t+2}, {1/640!r}, v{t+2}
    v_fma_f32 v{t+2}, -v{t+1}, v{t+1}, v{t+2}
    v_max_f32 v{t+2}, 0, v{t+2}""")
    bf16r(t+2,t+2)
    p(f"v_add_f32 v{t+2}, 0x3727c5ac, v{t+2}")
    bf16r(t+2,t+2)
    p(f"""v_sqrt_f32 v{t+2}, v{t+2}
    v_xor_b32 v{t+1}, 0x80000000, v{t+1}""")
    bf16r(t+2,t+2)
    p(f"""v_rcp_f32 v{t+5}, v{t+2}
    v_cvt_pk_bf16_f32 v{t+4}, v{t+1}, v{t+1}
    s_lshl_b32 s{B}, s{HW}, 9
    s_add_u32 s{B}, s{B}, {L_SA}
    v_lshl_add_u32 v{t+1}, v0, 3, s{B}
    s_lshl_b32 s{B}, s{HW}, 8
    s_add_u32 s{B}, s{B}, {L_SR}
    v_lshl_add_u32 v{t+2}, v0, 2, s{B}
    ds_write_b64 v{t+1}, v[{t+4}:{t+5}]
    ds_write_b32 v{t+2}, v{t+5}
    s_waitcnt lgkmcnt(0)
    s_barrier""")
    STAMP('hE1')
    att_ids()
    aLin=6; aTl=7; aF=8; D=40
    p(f"s_mov_b32 s{sK1024}, 1024")
    kv_addr(aLin,aTl,vt)
    flag_addr(aF,vt,0,A,B,sT+17)
    halo_copy(aLin,vt,D,A,B,0)
    p(f"v_mov_b32 v{vt}, {F_SCP}\nv_mov_b32 v{vt+1}, 1")
    if 'w2b' in (CFG['wtw'],CFG['mtw']):
        lds_wait(vt,vt+5,sT+17,'gt',4,1); wtouch('w2b',0)
    sF=sT+9; sK=sT+10; sV=sT+11; sL=sT+16; C=sT+17
    dn=p.lab("g2done")
    p(f"""s_cmp_eq_u32 s{sT0}, 0
    s_cbranch_scc1 {dn}
    v_and_b32 v{vt+2}, 127, v{aF}
    v_sub_u32 v{vt+3}, v{aF}, v{vt+2}
    v_lshlrev_b32 v{vt+3}, 3, v{vt+3}
    v_lshl_add_u32 v{vt+2}, v{vt+2}, 5, v{vt+3}
    s_cmp_eq_u32 s{sHF}, 0
    s_cselect_b64 vcc, -1, 0
    s_cselect_b32 s{A}, {FH-2*16384+512-FL}, 0
    s_cselect_b32 s{B}, {KH-KB}, 0
    s_cselect_b32 s{sF}, 14, 11
    v_cndmask_b32 v{aF}, v{aF}, v{vt+2}, vcc
    s_lshl_b32 s{sF}, s{sG}, s{sF}
    s_add_u32 s{sF}, s{sF}, s{A}
    s_add_u32 s{sF}, s{sF}, {FL}
    s_lshl_b32 s{A}, s{HW}, 2
    s_sub_u32 s{A}, s{sT0}, s{A}
    s_sub_u32 s{A}, s{A}, 2
    s_mul_i32 s{sK}, s{A}, 2560
    s_mul_i32 s{sV}, s{A}, 1280
    s_mul_i32 s{A}, s{sPH}, {64*2560}
    s_add_u32 s{sK}, s{sK}, s{A}
    s_add_u32 s{sK}, s{sK}, s{B}
    s_add_u32 s{sK}, s{sK}, {KB}
    s_mul_i32 s{A}, s{sHD}, 81920
    s_add_u32 s{sV}, s{sV}, s{A}
    s_add_u32 s{sV}, s{sV}, s{B}
    s_add_u32 s{sV}, s{sV}, {VB}
    s_mul_i32 s{sL}, s{HW}, {-2*5632}
    s_add_u32 s{sL}, s{sL}, {L_KV+3*5632}""")
    lds_wait(vt,vt+5,C,'gt',4,1)
    flag_poll(aF,vt+5,sF,C,sleep=1)
    STAMP('hf')
    kv_dma(aLin,aTl,sK,sV,sL,A,B)
    p(f"""s_sub_u32 s{sK}, s{sK}, 5120
    s_sub_u32 s{sV}, s{sV}, 2560
    s_sub_u32 s{sL}, s{sL}, 5632""")
    kv_dma(aLin,aTl,sK,sV,sL,A,B)
    p(f"""s_waitcnt vmcnt(0)
    {dn}:
    v_mov_b32 v{vt}, {F_G2}
    s_mov_b64 exec, 1
    ds_add_u32 v{vt}, v{vt+1}
    s_mov_b64 exec, -1""")
    STAMP('g2')
    if 'w3' in (CFG['wtw'],CFG['mtw']):
        p(f"v_mov_b32 v{vt}, {F_G1}")
        lds_wait(vt,vt+5,C,'gt',4,1)
        wtouch('w3',0)
        if CFG['dw3']: touch(vTD,sWD,CFG['mpair'])
        STAMP('mt')
        if CFG['prof'] and any('mt2' in x for x in CFG['st']): p("s_waitcnt vmcnt(0)"); STAMP('mt2')

def tr_addr(a0,t):
    tab=[[0,8],[4,12],[16,36],[20,28],[24,32]]
    pk=[sum((tab[u][rd]//4)<<(4*u) for u in range(5)) for rd in range(2)]
    A=sT+7; B=sT+8
    p(f"""s_mov_b32 s{A}, {pk[0]}
    s_mov_b32 s{B}, {pk[1]}
    v_bfe_u32 v{t}, v0, 2, 2
    v_mul_u32_u24 v{t}, 160, v{t}
    v_and_b32 v{t+1}, 3, v0
    v_mad_u32_u24 v{t}, v{t+1}, 40, v{t}
    v_lshrrev_b32 v{t+1}, 4, v0""")
    for s_ in range(5):
        p(f"""v_add_u32 v{t+2}, {4*s_}, v{t+1}
        v_mul_u32_u24 v{t+4}, 52, v{t+2}
        v_lshrrev_b32 v{t+4}, 8, v{t+4}
        v_mul_u32_u24 v{t+5}, 5, v{t+4}
        v_sub_u32 v{t+2}, v{t+2}, v{t+5}
        v_lshlrev_b32 v{t+2}, 2, v{t+2}
        v_mul_u32_u24 v{t+4}, 10, v{t+4}""")
        for rd in range(2):
            p(f"""v_bfe_u32 v{t+3}, s{(A,B)[rd]}, v{t+2}, 4
            v_add_u32 v{t+3}, v{t+3}, v{t+4}
            v_mul_u32_u24 v{t+3}, 640, v{t+3}
            v_add_u32 v{a0+2*s_+rd}, v{t+3}, v{t}""")
sBLK,sJ=sT+9,sT+10
def wo_ids():
    p(f"""s_lshr_b32 s{sBLK}, s{sSLOT}, 3
    s_lshl_b32 s{sJ}, s{sG}, 2
    s_add_u32 s{sBLK}, s{sBLK}, s{sJ}
    s_and_b32 s{sJ}, s{sSLOT}, 7""")
def clr_ids(A,B,C,D_):
    p(f"""s_lshr_b32 s{C}, s{sSLOT}, 3
    s_lshl_b32 s{B}, s{sG}, 2
    s_add_u32 s{C}, s{C}, s{B}
    s_lshl_b32 s{C}, s{C}, 3
    s_and_b32 s{B}, s{sSLOT}, 7
    s_add_u32 s{D_}, s{C}, s{B}
    s_lshr_b32 s{A}, s{D_}, 1
    s_mul_i32 s{A}, s{A}, 20480
    s_and_b32 s{B}, s{B}, 1
    s_mul_i32 s{B}, s{B}, 5120
    s_add_u32 s{A}, s{A}, s{B}
    s_add_u32 s{A}, s{A}, {OB}
    s_mul_i32 s{B}, s{sHH}, 10240
    s_add_u32 s{C}, s{A}, 10240
    s_add_u32 s{A}, s{A}, s{B}
    s_sub_u32 s{C}, s{C}, s{B}
    s_lshl_b32 s{D_}, s{D_}, 10
    s_add_u32 s{D_}, s{D_}, {PS}""")
def clears(part):
    A=sT+13; B=sT+14; C=sT+15; D_=sT+16; D=8; aL=7
    if part==0:
        clr_ids(A,B,C,D_)
        p(f"v_lshlrev_b32 v{aL}, 4, v0")
        for r in range(4): p(f"v_mov_b32 v{D+r}, -1")
        return
    st4=lambda so,off,sc: f"buffer_store_dwordx4 v[{D}:{D+3}], v{aL}, {S4(sWS)}, s{so} offen offset:{off} {sc}"
    w2=p.lab("clw2"); w3=p.lab("clw3"); dn=p.lab("cldn")
    p(f"""s_cmp_ge_u32 s{sWAVE}, 2
    s_cbranch_scc1 {w2}
    s_mul_i32 s{B}, s{sWAVE}, 2560
    s_add_u32 s{A}, s{A}, s{B}""")
    for o in (0,1024,1536): p(st4(A,o,""))
    p(f"""s_branch {dn}
    {w2}:
    s_cmp_eq_u32 s{sWAVE}, 3
    s_cbranch_scc1 {w3}
    s_mul_i32 s{C}, s2, 2560
    s_add_u32 s{C}, s{C}, {CAND}""")
    for o in (0,1024,1536): p(st4(C,o,"sc1"))
    p(f"""s_branch {dn}
    {w3}:
    s_cmp_ge_u32 s2, 24
    s_cbranch_scc1 {dn}
    s_lshl_b32 s{C}, s2, 10
    s_add_u32 s{C}, s{C}, {ACT}""")
    p(st4(C,0,"sc1"))
    p(f"{dn}:")
def code_pf():
    A=sT+18
    p(f"""s_getpc_b64 s[{A}:{A+1}]
    L_pc:
    s_sub_u32 s{A}, s{A}, L_pc-{NAME}_kernel
    s_subb_u32 s{A+1}, s{A+1}, 0
    s_lshl_b32 s{A+2}, s{sSLOT}, 2
    s_add_u32 s{A+2}, s{A+2}, s{sWAVE}
    s_mul_i32 s{A+2}, s{A+2}, 384
    s_min_u32 s{A+2}, s{A+2}, (L_exit-{NAME}_kernel-384)&0xffffff80""")
    for i in range(3): p(f"s_load_dwordx2 s[100:101], s[{A}:{A+1}], s{A+2} offset:{i*128+60}")
def wave_sum(x,t):
    dp="row_mask:0xf bank_mask:0xf"
    for c in ("quad_perm:[1,0,3,2]","quad_perm:[2,3,0,1]","row_half_mirror","row_mirror"):
        p(f"s_nop 1\nv_add_f32_dpp v{x}, v{x}, v{x} {c} {dp}")
    for sw in (16,32):
        p(f"""v_mov_b32 v{t}, v{x}
        s_nop 1
        v_permlane{sw}_swap_b32 v{x}, v{t}
        s_nop 0
        v_add_f32 v{x}, v{x}, v{t}""")
sPF=sT+16
def pf_group(n=5):
    for i in range(n): p(f"s_load_dwordx2 s[100:101], s[{sWO}:{sWO+1}], s{sPF} offset:{i*128+60}")
    p(f"""s_add_u32 s{sPF}, s{sPF}, {n*128}
    s_sub_u32 s{sPF+2}, s{sPF+2}, 1
    s_add_u32 s{sPF+3}, s{sPF+1}, 12800
    s_cmp_eq_u32 s{sPF}, s{sPF+3}
    s_cselect_b32 s{sPF}, s{sPF+1}, s{sPF}""")
def helperB(steps):
    A=sT+7; B=sT+8; vt=2; aD=140; aT=146; aLin=12; D=40; WRr=32
    sO=sT+1; sL=sT+2; sL0=sT+3; sL1=sT+4; C=sT+5
    p("L_helperB:")
    vM=23; x=10; a=sT+16
    clr_ids(a,a+1,a+2,a+3)
    p(f"""s_mul_i32 s{a+1}, s{HW}, 25
    s_sub_u32 s{a+1}, s{a+1}, 50
    v_min_u32 v{x}, 24, v0
    v_add_u32 v{x}, s{a+1}, v{x}
    v_min_u32 v{x}, 48, v{x}
    s_sub_u32 s{a+3}, s{a+3}, {40*128}
    s_and_b32 s{a+1}, s{sSLOT}, 15
    s_lshl_b32 s{a+2}, s{sG}, 4
    s_add_u32 s{a+1}, s{a+1}, s{a+2}
    s_lshl_b32 s{a+1}, s{a+1}, 7
    s_add_u32 s{a+1}, s{a+1}, {FL-48*128}
    v_mov_b32 v{x+1}, s{a}
    v_mov_b32 v{x+2}, s{a+3}
    v_cmp_le_u32 vcc, 40, v{x}
    v_mov_b32 v{x+3}, s{a+1}
    s_mul_i32 s{a+1}, s{sSLOT}, {200*128}
    v_cndmask_b32 v{x+1}, v{x+1}, v{x+2}, vcc
    v_cmp_le_u32 vcc, 48, v{x}
    s_mul_i32 s{a}, s{HW}, {100*128}
    s_add_u32 s{a+1}, s{a+1}, s{a}
    v_cndmask_b32 v{x+1}, v{x+1}, v{x+3}, vcc
    v_lshl_add_u32 v{vM}, v{x}, 7, v{x+1}
    s_sub_u32 s{sPF+1}, s{a+1}, {200*128}
    s_mul_i32 s{sPF}, s{sG}, 5
    s_lshr_b32 s{sPF}, s{sPF}, 1
    s_mul_i32 s{sPF}, s{sPF}, 640
    s_add_u32 s{sPF}, s{sPF}, s{sPF+1}
    s_mov_b32 s{sPF+2}, 20
    v_lshlrev_b32 v{vH+4}, 4, v0
    v_add_u32 v{vH+4}, {H1}, v{vH+4}
    v_mul_u32_u24 v{WRr+5}, 20, v0""")
    npf=CFG['npf']
    for _ in range(npf[0]): pf_group()
    def hook(c):
        if c==6:
            p(f"buffer_load_dwordx4 v[{vH}:{vH+3}], v{vH+4}, {S4(sWS)}, 0 offen sc1"); OPS.append('h1')
            qkv_touch()
            OPS.extend(['pt']*touch(vM,sWS,CFG['qpair'],CFG['tpol']))
            p(f"buffer_load_dwordx4 {vr(WRr,4)}, v{WRr+5}, {S4(sWR)}, 0 offen\nbuffer_load_dword v{WRr+4}, v{WRr+5}, {S4(sWR)}, 0 offen offset:16"); OPS.extend(['wr','wr'])
            OPS.extend(['pt']*wtouch('w1',1))
        for _ in range(npf[1+c]): pf_group()
    steps(hook)
    vmwait(7); p("s_barrier"); STAMP('ld7')
    for _ in range(npf[8]): pf_group()
    wo_ids()
    T=[[0,2],[1,3],[4,9],[5,7],[6,8]]
    NIB=[sum((10*((4*s5+g_)//5)+T[(4*s5+g_)%5][rd]-(8*s5+2*g_-2))<<(4*(4*rd+g_)) for rd in range(2) for g_ in range(4)) for s5 in range(5)]
    aB=130; sK=sT+11; sN=sT+16; sS=sT+17
    for i in range(5):
        p(f"""v_add_u32 v{vt}, {64*i}, v0
        v_mul_u32_u24 v{vt+1}, 6554, v{vt}
        v_lshrrev_b32 v{vt+1}, 16, v{vt+1}
        v_mul_u32_u24 v{vt+2}, 10, v{vt+1}
        v_sub_u32 v{vt}, v{vt}, v{vt+2}
        v_and_b32 v{aB+5+i}, 28, v{vt+1}
        v_and_b32 v{vt+2}, 3, v{vt+1}
        v_mul_u32_u24 v{vt+2}, 1280, v{vt+2}
        v_lshl_add_u32 v{vt}, v{vt}, 4, v{vt+2}
        v_bfe_u32 v{vt+1}, v{vt+1}, 2, 2
        v_mul_u32_u24 v{vt+1}, 10240, v{vt+1}
        v_add_u32 v{aB+i}, v{vt}, v{vt+1}""")
        if 0<i<4: p(f"v_subrev_u32 v{aB+i}, {i*1024}, v{aB+i}")
    p(f"""s_lshr_b32 s{A}, s{sSLOT}, 3
    s_mul_i32 s{A}, s{A}, 5
    s_lshr_b32 s{A}, s{A}, 1
    s_add_u32 s{A}, s{A}, s{HW}
    s_sub_u32 s{sK}, s{A}, 2
    v_mov_b32 v{vt}, 5120""")
    def woaddr(n):
        p(f"""s_add_u32 s{A}, s{sK}, {2*n}
        s_sub_u32 s{B}, s{A}, 10
        s_cselect_b32 s{A}, s{A}, s{B}
        s_sub_u32 s{B}, s{A}, 5
        s_cselect_b32 s{B}, s{A}, s{B}
        s_mul_i32 s{sS}, s{A}, 40960
        s_sub_u32 s{sS}, s{sS}, 10240
        s_mov_b32 s{sN}, {hex(NIB[0])}""")
        for k in range(1,5): p(f"s_cmp_eq_u32 s{B}, {k}\ns_cselect_b32 s{sN}, {hex(NIB[k])}, s{sN}")
        for i in range(5):
            p(f"""v_bfe_u32 v{vt+1}, s{sN}, v{aB+5+i}, 4
            v_mad_u32_u24 v{vt+1}, v{vt+1}, v{vt}, v{aB+i}
            v_add_u32 v{aD+5*n+i}, s{sS}, v{vt+1}""")
    for n in range(2): woaddr(n)
    st=dict(n=0)
    def dma(cnt):
        for _ in range(min(cnt,50-st['n'])):
            n=st['n']; i=n%5; k=(n//5)%5
            if n==0 or n==25:
                p(f"""s_xor_b32 s{A}, s{sHH}, {n//25}
                s_mul_i32 s{sO}, s{A}, {320*1280}
                s_mul_i32 s{sL0}, s{A}, 51200
                s_add_u32 s{sL0}, s{sL0}, {L_WO}
                s_mul_i32 s{A}, s{sJ}, 160
                s_add_u32 s{sO}, s{sO}, s{A}""")
            if i==0: p(f"""s_add_u32 s{A}, s{sK}, {2*k}
                s_sub_u32 s{B}, s{A}, 10
                s_cselect_b32 s{A}, s{A}, s{B}
                s_mul_i32 s{sL}, s{A}, 5120
                s_add_u32 s{sL}, s{sL}, s{sL0}
                s_mov_b32 m0, s{sL}
                s_nop 0""")
            if i==4: p(f"s_add_u32 m0, s{sL}, 4096\ns_nop 0")
            p(f"buffer_load_dwordx4 v{aD+5*k+i}, {S4(sWO)}, s{sO} offen offset:{(i&3)*1024} {CFG['wopol']} lds")
            OPS.append('wo%d'%(n//25))
            st['n']+=1
    vmwait(8); p("s_barrier")
    for _ in range(npf[9]): pf_group()
    for n in range(2,5): woaddr(n)
    p(f"v_lshlrev_b32 v{aLin}, 4, v0")
    vmwait(9); p("s_barrier")
    vmwait('h1')
    lp=p.lab("hello"); ok=p.lab("hello_ok"); ne=p.lab("noep")
    p(f"""s_mov_b32 s{A}, {SPIN}
    {lp}:
    v_xor_b32 v{vH}, s{sTAG}, v{vH}
    v_xor_b32 v{vH+1}, s{sTAG}, v{vH+1}
    v_xor_b32 v{vH+2}, s{sTAG}, v{vH+2}
    v_xor_b32 v{vH+3}, s{sTAG}, v{vH+3}
    v_or3_b32 v{vt}, v{vH}, v{vH+1}, v{vH+2}
    v_or_b32 v{vt}, v{vt}, v{vH+3}
    v_cmp_lt_u32 vcc, 15, v{vt}
    s_nop 0
    s_cbranch_vccz {ok}""")
    spin(A,lp,ok,4)
    p(f"""buffer_load_dwordx4 v[{vH}:{vH+3}], v{vH+4}, {S4(sWS)}, 0 offen sc1
    s_waitcnt vmcnt(0)
    s_branch {lp}
    {ok}:
    v_lshl_or_b32 v{vH}, v{vH+1}, 4, v{vH}
    v_lshl_or_b32 v{vH+2}, v{vH+3}, 4, v{vH+2}
    v_lshl_or_b32 v{vH}, v{vH+2}, 8, v{vH}
    v_and_b32 v{vt}, 1, v0
    v_readlane_b32 s{A}, v{vH}, 0
    v_readlane_b32 s{B}, v{vH}, 1
    v_cmp_eq_u32 vcc, 0, v{vt}
    v_mov_b32 v{vt+1}, s{A}
    v_mov_b32 v{vt+2}, s{B}
    v_cndmask_b32 v{vt+1}, v{vt+2}, v{vt+1}, vcc
    v_cmp_ne_u32 vcc, v{vt+1}, v{vH}
    v_mov_b32 v{vt}, {L_MODE}
    s_cmp_lg_u64 vcc, 0
    s_cselect_b32 s{sMODE}, 1, {CFG['force_slow']}
    v_mov_b32 v{vt+1}, s{sMODE}
    ds_write_b32 v{vt}, v{vt+1}
    s_barrier
    s_waitcnt lgkmcnt(0)
    s_barrier""")
    vmw=len(OPS)-1-max(i for i,t in enumerate(OPS) if t=='wr')
    STAMP('hE1')
    p(f"""v_mov_b32 v{vt}, 0x3f803f80
    v_mov_b32 v{vt+1}, 0
    s_waitcnt vmcnt({vmw})""")
    for k in range(5): p(f"v_dot2_f32_bf16 v{vt+1}, v{WRr+k}, v{vt}, v{vt+1}")
    p("s_nop 0")
    wave_sum(vt+1,vt+2)
    p(f"v_mov_b32 v{vt}, {L_SWS}\nds_write_b32 v{vt}, v{vt+1}")
    halo_copy(aLin,vt,D,A,B,1)
    p(f"""s_add_u32 s{A}, s2, s{HW}
    s_cmp_lg_u32 s{A}, 2
    s_cbranch_scc1 {ne}
    s_add_u32 s{A}, s{sEP}, 1
    v_mov_b32 v{vt}, {EPO}
    v_mov_b32 v{vt+1}, s{A}
    s_mov_b64 exec, 1
    buffer_store_dword v{vt+1}, v{vt}, {S4(sWS)}, 0 offen sc1
    s_mov_b64 exec, -1
    {ne}:
    v_mov_b32 v{vt}, {F_SCP}""")
    if 'w2b' in (CFG['wtw'],CFG['mtw']):
        lds_wait(vt,vt+1,A,'gt',4,1); wtouch('w2b',1)
    p(f"v_mov_b32 v{vt}, {F_G1}")
    lds_wait(vt,vt+1,A,'gt',4,1)
    wtouch('w3',1)
    STAMP('wo_s')
    del OPS[:]
    thr=CFG['wothr']; gs=CFG['wogs']; thr1=CFG['wothr1']
    def more(n,dyn=False):
        while n>0 and st['n']<50:
            k=min(gs,n)
            if dyn and thr1<thr and st['n']>=thr1:
                sk=p.lab("wog")
                p(f"""ds_read_b32 v{vt+1}, v{vt} offset:{F_G2-F_G1}
                s_waitcnt lgkmcnt(0)
                v_cmp_gt_u32 vcc, 2, v{vt+1}
                s_nop 0
                s_cbranch_vccz {sk}
                s_waitcnt vmcnt({max(0,thr1-k)})
                {sk}:""")
            if st['n']>=thr: p(f"s_waitcnt vmcnt({max(0,thr-k)})")
            dma(k); n-=k
    def sig(f):
        p(f"""v_mov_b32 v{vt+2}, {f}
        v_mov_b32 v{vt+3}, 1
        s_mov_b64 exec, 1
        ds_add_u32 v{vt+2}, v{vt+3}
        s_mov_b64 exec, -1""")
    more(25+min(thr,15),True)
    vmwait('wo0')
    sig(F_WOR)
    STAMP('wo_0')
    more(50)
    sig(F_WOD)
    STAMP('wo_1')
    p("s_waitcnt vmcnt(0)")
    sig(F_WO2)
    STAMP('wo')

ACC=64; CS=128; XF=132; WF=148; SEL=164; aX=168; aW=172; aST=174; aSG=178; vT=2
sWR_,sWC,sLC,sTY,sSO,sHALO,sFO,sSO2=range(sT,sT+8)
def gemm_setup():
    t=vT; A=sT+10; B=sT+11
    wave_ids(sWAVE,sWR_,sWC,sLC,sTY)
    p(f"""v_and_b32 v{t}, 31, v0
    s_lshl_b32 s{A}, s{sWR_}, 6
    v_add_u32 v{t+1}, s{A}, v{t}
    v_lshlrev_b32 v{t+1}, 7, v{t+1}
    v_lshrrev_b32 v{t+2}, 5, v0
    v_bfe_u32 v{t+3}, v0, 1, 3
    v_xor_b32 v{t+3}, v{t+3}, v{t+2}
    v_lshl_add_u32 v{aX}, v{t+3}, 4, v{t+1}""")
    for s in range(1,4): p(f"v_xor_b32 v{aX+s}, {32*s}, v{aX}")
    p(f"""v_bfe_u32 v{t+3}, v0, 2, 2
    v_lshl_add_u32 v{t+4}, v{t+2}, 3, v{t+3}
    v_lshlrev_b32 v{t+4}, 8, v{t+4}
    s_lshl_b32 s{A}, s{sWC}, 1
    s_or_b32 s{A}, s{A}, s{sWR_}
    v_xor_b32 v{t+3}, s{A}, v{t+3}
    v_lshl_add_u32 v{t+4}, v{t+3}, 6, v{t+4}
    v_bfe_u32 v{t+3}, v0, 4, 1
    v_lshl_add_u32 v{t+4}, v{t+3}, 5, v{t+4}
    v_and_b32 v{t+5}, 3, v0
    v_lshl_add_u32 v{t+4}, v{t+5}, 3, v{t+4}
    v_add_u32 v{aW}, 16384, v{t+4}
    v_xor_b32 v{aW+1}, 64, v{aW}
    v_bfe_u32 v{t+4}, v0, 2, 1
    v_cmp_eq_u32 vcc, v{t+3}, v{t+4}
    v_mov_b32 v{t+5}, 0x3f803f80
    s_nop 0
    v_cndmask_b32 v{SEL}, 0, v{t+5}, vcc
    v_cndmask_b32 v{SEL+1}, 0, v{t+5}, vcc
    v_cndmask_b32 v{SEL+2}, 0, v{t+5}, vcc
    v_cndmask_b32 v{SEL+3}, 0, v{t+5}, vcc""")
    for r in list(range(ACC,ACC+64))+list(range(CS,CS+4)): p(f"v_mov_b32 v{r}, 0")
    store_addr(sWR_,sLC,sTY,sSO,sSO2,sHALO,sFO,aST,sT+10,sT+11)
    p(f"""s_lshl_b32 s{A}, s{sWAVE}, 13
    v_lshl_add_u32 v{aSG}, v0, 4, s{A}
    s_lshl_b32 s{A}, s{sWAVE}, 2
    s_add_u32 s{A}, s{A}, {F_STG}
    v_mov_b32 v{aSG+1}, s{A}""")
def wave_ids(wave,wr,wc,lc,ty):
    p(f"""s_and_b32 s{wr}, s{wave}, 1
    s_lshr_b32 s{wc}, s{wave}, 1
    s_lshl_b32 s{lc}, s{sCT}, 1
    s_add_u32 s{lc}, s{lc}, s{wc}
    s_mul_i32 s{ty}, s{lc}, 52
    s_lshr_b32 s{ty}, s{ty}, 8""")
def store_addr(wr,lc,ty,so,so2,halo,fo,ast,A,B,t=2):
    p(f"""v_and_b32 v{t}, 31, v0
    v_lshrrev_b32 v{t+2}, 5, v0
    s_mul_i32 s{A}, s{ty}, 5
    s_sub_u32 s{A}, s{lc}, s{A}
    s_mul_i32 s{B}, s{sHH}, 5
    s_add_u32 s{A}, s{A}, s{B}
    s_lshl_b32 s{B}, s{sRQ}, 2
    s_add_u32 s{B}, s{B}, s{sRB}
    s_lshl_b32 s{B}, s{B}, 1
    s_add_u32 s{B}, s{B}, s{wr}
    s_lshl_b32 s{B}, s{B}, 1""")
    isv=p.lab("isv"); jn=p.lab("stj")
    p(f"""s_cmp_ge_u32 s{ty}, 2
    s_cbranch_scc1 {isv}
    s_mul_i32 s{so}, s{B}, 2560
    s_mul_i32 s{B}, s{ty}, {KB}
    s_add_u32 s{so}, s{so}, s{B}
    s_add_u32 s{so2}, s{so}, 2560
    s_lshl_b32 s{A}, s{A}, 3""")
    for cb in range(2):
        for ip in range(2):
            p(f"""s_xor_b32 s{B}, s{wr}, {cb}
            s_lshl_b32 s{B}, s{B}, 2
            s_add_u32 s{B}, s{B}, s{A}
            s_add_u32 s{B}, s{B}, {2*ip}
            v_add_u32 v{t+3}, s{B}, v{t+2}
            v_mul_u32_u24 v{t+4}, 205, v{t+3}
            v_lshrrev_b32 v{t+4}, 10, v{t+4}
            v_mul_u32_u24 v{t+5}, 5, v{t+4}
            v_sub_u32 v{t+5}, v{t+3}, v{t+5}
            v_mul_u32_u24 v{t+4}, {64*2560}, v{t+4}
            v_lshl_add_u32 v{t+4}, v{t+5}, 9, v{t+4}
            v_lshl_add_u32 v{ast+2*cb+ip}, v{t}, 4, v{t+4}""")
    p(f"""s_branch {jn}
    {isv}:
    s_mul_i32 s{so}, s{B}, 1280
    s_add_u32 s{so}, s{so}, {VB}
    s_add_u32 s{so2}, s{so}, 1280
    s_lshl_b32 s{A}, s{A}, 6""")
    for cb in range(2):
        p(f"""s_xor_b32 s{B}, s{wr}, {cb}
        s_lshl_b32 s{B}, s{B}, 5
        s_add_u32 s{B}, s{B}, s{A}
        v_add_u32 v{t+3}, s{B}, v{t}
        v_mul_u32_u24 v{t+4}, 3277, v{t+3}
        v_lshrrev_b32 v{t+4}, 16, v{t+4}
        v_mul_u32_u24 v{t+5}, 20, v{t+4}
        v_sub_u32 v{t+5}, v{t+3}, v{t+5}
        v_mul_u32_u24 v{t+4}, 81920, v{t+4}
        v_lshl_add_u32 v{t+4}, v{t+5}, 4, v{t+4}
        v_mul_u32_u24 v{t+5}, 320, v{t+2}
        v_add_u32 v{ast+2*cb}, v{t+4}, v{t+5}
        v_add_u32 v{ast+2*cb+1}, 640, v{ast+2*cb}""")
    p(f"""{jn}:
    s_sub_u32 s{A}, s{ty}, 1
    s_cmp_lt_u32 s{A}, 2
    s_cselect_b32 s{halo}, 1, 0
    s_cmp_ge_u32 s{sRB}, 2
    s_cselect_b32 s{halo}, s{halo}, 0
    s_cmp_lt_u32 s{sRQ}, 3
    s_cselect_b32 s{halo}, s{halo}, 0
    s_lshl_b32 s{fo}, s{sG}, 4
    s_add_u32 s{fo}, s{fo}, s{lc}
    s_lshl_b32 s{fo}, s{fo}, 5
    s_lshl_b32 s{A}, s{sRB}, 1
    s_add_u32 s{A}, s{A}, s{wr}
    s_add_u32 s{fo}, s{fo}, s{A}
    s_lshl_b32 s{fo}, s{fo}, 2
    s_add_u32 s{fo}, s{fo}, {FL}""")
def xf(buf,xb): return XF+8*buf+4*xb
def wf(buf,cb): return WF+8*buf+4*cb
def reads(kind,buf,par,s):
    L=[]
    for xb in range(2): L.append(f"ds_read_b128 {vr(xf(buf,xb),4)}, v{aX+s} offset:{par*32768+xb*4096}")
    if kind!='S':
        for cb in range(2):
            for rd in range(2): L.append(f"ds_read_b64_tr_b16 {vr(wf(buf,cb)+2*rd,2)}, v{aW+cb} offset:{par*32768+s*4096+rd*1024}")
        L=[L[2],L[3],L[0],L[1],L[4],L[5]]
    return L
def mfmas(kind,buf):
    L=[]
    if kind=='S':
        for xb in range(2):
            x=xf(buf,xb)
            L.append(f"v_mfma_f32_16x16x32_bf16 {vr(ACC+4*xb,4)}, {vr(SEL,4)}, {vr(x,4)}, {vr(ACC+4*xb,4)}")
            L.append(f"v_mfma_f32_4x4x4_16b_bf16 {vr(ACC+8+8*xb,4)}, {vr(x,2)}, {vr(x,2)}, {vr(ACC+8+8*xb,4)}")
            L.append(f"v_mfma_f32_4x4x4_16b_bf16 {vr(ACC+12+8*xb,4)}, {vr(x+2,2)}, {vr(x+2,2)}, {vr(ACC+12+8*xb,4)}")
        return L
    for cb in range(2):
        for xb in range(2):
            a=ACC+16*(2*xb+cb); X=vr(xf(buf,xb),4); W=vr(wf(buf,cb),4)
            L.append(f"v_mfma_f32_32x32x16_bf16 {vr(a,16)}, {W if kind=='T' else X}, {X if kind=='T' else W}, {vr(a,16)}")
    L.insert(2,f"v_mfma_f32_16x16x32_bf16 {vr(CS,4)}, {vr(SEL,4)}, {vr(wf(buf,0),4)}, {vr(CS,4)}")
    return L
def gemm_loop(kind):
    CNT=sT+10
    lp=p.lab("g"+kind)
    p("s_barrier")
    STAMP('b0')
    for r in reads(kind,0,0,0): p(r)
    if CFG['clr']==1: clears(1)
    hl=p.lab("hello"); hr=p.lab("hellor")
    if kind!='S':
        COLD.append(f"""{hl}:
        s_getreg_b32 s{CNT+1}, hwreg(HW_REG_XCC_ID, 0, 4)
        s_or_b32 s{CNT+1}, s{CNT+1}, s{sTAG}
        v_mov_b32 v{vT}, s{CNT+1}
        s_lshl_b32 s{CNT+1}, s2, 2
        s_add_u32 s{CNT+1}, s{CNT+1}, {H1}
        v_mov_b32 v{vT+1}, 0
        s_mov_b64 exec, 1
        buffer_store_dword v{vT}, v{vT+1}, {S4(sWS)}, s{CNT+1} offen sc1
        s_mov_b64 exec, -1
        s_branch {hr}""")
        p(f"s_lshl_b32 s{CNT+2}, s{sWAVE}, 3\ns_add_u32 s{CNT+2}, s{CNT+2}, {5-CFG['clr']}")
    p(f"s_mov_b32 s{CNT}, 5\n{lp}:")
    for par in range(2):
        for s in range(4):
            buf=s&1
            last=(s==3)
            M=mfmas(kind,buf)
            if CFG['nomfma']: M=M[:1]
            if last and par==1:
                pre=[f"v_xor_b32 v{aX+i}, 0x10000, v{aX+i}" for i in range(4)]+[f"v_xor_b32 v{aW+i}, 0x10000, v{aW+i}" for i in range(2)]
            else: pre=[]
            R=reads(kind,buf^1,(par^1) if last else par,(s+1)&3)
            p("s_waitcnt lgkmcnt(0)")
            if last:
                p(M.pop(0))
                for x in pre: p(x)
                if par==0:
                    w1=p.lab("cw"); w2=p.lab("cwr")
                    p(f"s_cmp_eq_u32 s{CNT}, {5-CFG['clr']}\ns_cbranch_scc1 {w1}\n{w2}:")
                    COLD.append(f"{w1}:\ns_waitcnt vmcnt(0)\ns_branch {w2}")
                p("s_barrier")
                if par==0 and kind!='S': p(f"s_cmp_eq_u32 s{CNT}, s{CNT+2}\ns_cbranch_scc1 {hl}\n{hr}:")
            k=0
            while M or R:
                if R: p(R.pop(0))
                if R: p(R.pop(0))
                if M: p(M.pop(0))
    p(f"""s_sub_u32 s{CNT}, s{CNT}, 1
    s_cmp_lg_u32 s{CNT}, 0
    s_cbranch_scc1 {lp}""")
    STAMP('gend')
def bf16r(dst,src):
    p(f"v_cvt_pk_bf16_f32 v{dst}, v{src}, v{src}\nv_and_b32 v{dst}, 0xffff0000, v{dst}")
def mode_read():
    p(f"""v_mov_b32 v{vT+8}, {L_MODE}
    ds_read_b32 v{vT+9}, v{vT+8}""")
def mode_get():
    p(f"v_readfirstlane_b32 s{sMODE}, v{vT+9}")
def dual(stores):
    sl=p.lab("slow"); jn=p.lab("jn")
    p(f"s_cmp_lg_u32 s{sMODE}, 0\ns_cbranch_scc1 {sl}")
    for s in stores: p(s)
    p(f"s_branch {jn}\n{sl}:")
    for s in stores: p(s+" sc1")
    p(f"{jn}:")
def idle_gemm():
    p("s_barrier")
    if CFG['clr']==1: clears(1)
    for c in range(1,11):
        if c==1+2*CFG['clr']: p("s_waitcnt vmcnt(0)")
        p("s_barrier")
    p("s_barrier")
    mode_read()
    p(f"v_mov_b32 v{vT}, 2\nds_write_b32 v{aSG+1}, v{vT}")
    p("s_waitcnt lgkmcnt(0)")
    mode_get()
def gemm_epi(kind):
    t=vT; A=sT+10
    AU=20
    WA=24
    XA=28
    RS=32
    p(f"""v_and_b32 v{t}, 31, v0
    s_lshl_b32 s{A}, s{sWC}, 1
    s_or_b32 s{A}, s{A}, s{sWR_}
    s_lshl_b32 s{A}, s{A}, 7
    s_add_u32 s{A}, s{A}, {L_CS}
    v_lshl_add_u32 v{t+1}, v{t}, 2, s{A}
    s_lshl_b32 s{A}, s{sWR_}, 9
    s_add_u32 s{A}, s{A}, {L_SA}
    v_lshl_add_u32 v{t+3}, v{t}, 3, s{A}
    ds_write_b32 v{t+1}, v{CS}
    v_xor_b32 v{t+2}, 128, v{t+1}
    v_mov_b32 v{WA+1}, 0
    v_mov_b32 v{WA+3}, 0
    v_mov_b32 v{XA+1}, 0
    v_mov_b32 v{XA+3}, 0""")
    if kind=='V':
        p(f"""v_lshrrev_b32 v{t+4}, 5, v0
        s_lshl_b32 s{A}, s{sWR_}, 8
        s_add_u32 s{A}, s{A}, {L_SR}
        v_lshl_add_u32 v{t+4}, v{t+4}, 4, s{A}""")
    p("s_waitcnt lgkmcnt(0)\ns_barrier")
    STAMP('E1',1)
    p(f"""ds_read_b32 v{CS+1}, v{t+2}
    ds_read_b64 v[{AU}:{AU+1}], v{t+3}
    ds_read_b64 v[{AU+2}:{AU+3}], v{t+3} offset:256""")
    mode_read()
    if kind=='V':
        for xb in range(2):
            for i in range(4): p(f"ds_read_b128 {vr(RS+16*xb+4*i,4)}, v{t+4} offset:{xb*128+i*32}")
    def split(cb):
        c=CS+cb
        p(f"""v_cndmask_b32 v{c}, 0, v{c}, s[{sLO}:{sLO+1}]
        v_cvt_pk_bf16_f32 v{t+5}, v{c}, v{c}
        v_and_b32 v{t+5}, 0xffff0000, v{t+5}
        v_sub_f32 v{t+6}, v{c}, v{t+5}
        v_cvt_pk_bf16_f32 v{WA+2*cb}, v{t+5}, v{t+6}""")
    split(0)
    p(f"s_waitcnt lgkmcnt({8 if kind=='V' else 0})")
    split(1)
    p(f"v_mov_b32 v{XA}, v{AU}\nv_mov_b32 v{XA+2}, v{AU+2}")
    mode_get()
    if kind=='T':
        p(f"""s_cmp_eq_u32 s{sTY}, 0
        s_cselect_b32 s{A}, {hex(f2u(20**-0.5*math.log2(math.e)))}, 1.0
        v_mul_f32 v{AU+1}, s{A}, v{AU+1}
        v_mul_f32 v{AU+3}, s{A}, v{AU+3}""")
    else: p("s_nop 0")
    for xb in range(2):
        for cb in range(2):
            a=ACC+16*(2*xb+cb); X=vr(XA+2*xb,2); W=vr(WA+2*cb,2)
            p(f"v_mfma_f32_32x32x8_bf16 {vr(a,16)}, {W if kind=='T' else X}, {X if kind=='T' else W}, {vr(a,16)}")
    p("s_waitcnt lgkmcnt(0)\ns_nop 7")
    allst=[]
    for xb in range(2):
        st=[]
        for cb in range(2):
            a=ACC+16*(2*xb+cb)
            for k in range(8):
                if kind=='T': p(f"v_pk_mul_f32 {vr(a+2*k,2)}, {vr(a+2*k,2)}, {vr(AU+2*xb,2)} op_sel:[0,1] op_sel_hi:[1,1]")
                else: p(f"v_pk_mul_f32 {vr(a+2*k,2)}, {vr(a+2*k,2)}, {vr(RS+16*xb+2*k,2)}")
            for k in range(8): p(f"v_cvt_pk_bf16_f32 v{a+k}, v{a+2*k}, v{a+2*k+1}")
            if kind=='T':
                p(f"""v_permlane32_swap_b32 v{a}, v{a+2}
                v_permlane32_swap_b32 v{a+1}, v{a+3}
                v_permlane32_swap_b32 v{a+4}, v{a+6}
                v_permlane32_swap_b32 v{a+5}, v{a+7}""")
            for h in range(2):
                st.append(f"buffer_store_dwordx4 {vr(a+4*h,4)}, v{aST+2*cb+h}, {S4(sWS)}, s{sSO2 if xb else sSO} offen")
                allst.append(a+4*h)
        dual(st)
        nh=p.lab("nohalo")
        p(f"s_cmp_eq_u32 s{sHALO}, 0\ns_cbranch_scc1 {nh}")
        for i in range(4*xb,4*xb+4): p(f"ds_write_b128 v{aSG}, {vr(allst[i],4)} offset:{L_STG+i*1024}")
        if xb==0: p(f"v_mov_b32 v{t}, {xb+1}\nds_write_b32 v{aSG+1}, v{t}\n{nh}:")
        else: p(f"{nh}:\nv_mov_b32 v{t}, {xb+1}\nds_write_b32 v{aSG+1}, v{t}")
    STAMP('st')
    p(f"""v_mov_b32 v{t}, 0
    v_mov_b32 v{t+1}, s{sTAG}
    s_waitcnt vmcnt(0)
    s_mov_b64 exec, 1""")
    dual([f"buffer_store_dword v{t+1}, v{t}, {S4(sWS)}, s{sFO} offen"])
    p(f"s_mov_b64 exec, -1")
    STAMP('fl')
import struct
def f2u(x): return struct.unpack("<I",struct.pack("<f",x))[0]

aLin,aTl,aKm,aKt,aV,aFl,aO=20,21,22,23,24,25,26
QM=[28,34]; QT=[32,38]; PP=40
KM=[48,62]; KT=[52,66]; VV=[[54,58],[68,72]]
SS=[80,96]; OO=[112,128]; CD=144; CF=160
sQ=[sT+9,sT+10]; sOm=[sT+11,sT+12]; sOt=[sT+13,sT+14]; sOSC=sT+15; sFB=sT+16
NINF="0xff800000"
def att_pro():
    t=vT; A=sT+7; B=sT+8; C=sT+17; sF=sT
    wo_pre1()
    att_ids()
    flag_addr(aFl,t,1,A,B,C)
    p(f"""s_lshl_b32 s{sF}, s{sG}, 11
    s_lshl_b32 s{A}, s{sHF}, 4
    s_add_u32 s{sF}, s{sF}, s{A}
    s_add_u32 s{sF}, s{sF}, {FL}
    buffer_load_dword v{t+10}, v{aFl}, {S4(sWS)}, s{sF} offen sc1
    s_mov_b32 s{sK1024}, 1024""")
    kv_addr(aLin,aTl,t)
    p(f"""v_add_u32 v{aKm}, {L_KV}, v{aLin}
    v_and_b32 v{t}, 31, v0
    v_lshrrev_b32 v{t+1}, 5, v0
    v_xor_b32 v{t+2}, s{sHO}, v{t+1}
    v_lshlrev_b32 v{t+2}, 3, v{t+2}
    v_lshl_add_u32 v{t+2}, v{t}, 4, v{t+2}
    v_add_u32 v{aKt}, {L_KV+2048}, v{t+2}
    v_mul_u32_u24 v{t+2}, 320, v{t+1}
    v_lshl_add_u32 v{t+2}, v{t}, 4, v{t+2}
    v_add_u32 v{aV}, {L_KV+3072}, v{t+2}
    v_lshlrev_b32 v{t+2}, 2, v{t+1}
    v_sub_u32 v{t+2}, v{t}, v{t+2}
    v_mov_b32 v{t+3}, {NINF}""")
    for i in range(16):
        m=C+1+2*(i%2)+((C+1)%2)
        ri=8*(i>>2)+(i&3)
        p(f"v_cmp_le_i32 s[{m}:{m+1}], {ri}, v{t+2}")
        if i>0:
            m2=C+1+2*((i-1)%2)+((C+1)%2)
            if i==1: p("s_nop 0")
            p(f"v_cndmask_b32 v{CD+i-1}, v{t+3}, 0, s[{m2}:{m2+1}]\nv_cndmask_b32 v{CF+i-1}, 0, v{t+3}, s[{m2}:{m2+1}]")
    p(f"""s_nop 0
    v_cndmask_b32 v{CD+15}, v{t+3}, 0, s[{m}:{m+1}]
    v_cndmask_b32 v{CF+15}, 0, v{t+3}, s[{m}:{m+1}]
    v_cmp_eq_u32 s[{m}:{m+1}], 20, v{t}
    v_cmp_eq_u32 vcc, 24, v{t}
    v_mov_b32 v{t+4}, 0x3f803f80
    s_or_b64 vcc, vcc, s[{m}:{m+1}]""")
    for b_ in range(2):
        for mm in range(2):
            for r in range(4): p(f"v_cndmask_b32 v{VV[b_][mm]+r}, 0, v{t+4}, vcc")
    for q in range(2): p(f"v_mov_b32 v{QT[q]}, 0\nv_mov_b32 v{QT[q]+1}, 0")
    p(f"""v_bfe_u32 v{t+2}, v0, 4, 1
    v_mul_u32_u24 v{t+2}, 20480, v{t+2}
    v_lshl_add_u32 v{t+2}, v{t+1}, 8, v{t+2}
    v_and_b32 v{t+3}, 15, v0
    v_lshl_add_u32 v{aO}, v{t+3}, 4, v{t+2}
    s_cmp_lg_u32 s{sHF}, s{sHH}
    s_cselect_b32 s{sOSC}, 1, s{sMODE}
    s_mov_b32 s{sFB}, 0
    s_lshl_b32 s{A}, s{sWAVE}, 1
    s_sub_u32 s{A}, 7, s{A}
    v_mul_u32_u24 v{t+2}, s{A}, v0
    s_add_u32 s{A}, s{sT0}, s{sWAVE}
    v_add_lshl_u32 v{aFO}, v{t+2}, s{A}, 12
    s_lshl_b32 s{A}, s{sHD}, 7
    s_add_u32 s{A}, s{A}, {FO}
    v_add_u32 v{aFO}, s{A}, v{aFO}
    s_mul_i32 s{C}, s{sMODE}, {OB2-OB}
    s_add_u32 s{C}, s{C}, {OB}""")
    for q in range(2):
        if q==0: p(f"s_add_u32 s{A}, s{sT0}, 7\ns_sub_u32 s{A}, s{A}, s{sWAVE}")
        else: p(f"s_add_u32 s{A}, s{sT0}, s{sWAVE}")
        p(f"""s_mul_i32 s{sQ[q]}, s{A}, 2560
        s_mul_i32 s{B}, s{sPH}, {64*2560}
        s_add_u32 s{sQ[q]}, s{sQ[q]}, s{B}
        s_mul_i32 s{A}, s{A}, 40960
        s_mul_i32 s{B}, s{sPH}, 1280
        s_add_u32 s{A}, s{A}, s{B}
        s_add_u32 s{A}, s{A}, s{C}
        s_mul_i32 s{B}, s{sHO}, 768
        s_add_u32 s{sOm[q]}, s{A}, s{B}
        s_lshl_b32 s{B}, s{sHO}, 3
        s_add_u32 s{sOt[q]}, s{A}, s{B}""")
    sK=C+1; sV=C+2; sL=C+3
    p(f"""s_lshl_b32 s{A}, s{sWAVE}, 1
    s_add_u32 s{A}, s{A}, s{sT0}
    s_mul_i32 s{sK}, s{A}, 2560
    s_mul_i32 s{sV}, s{A}, 1280
    s_mul_i32 s{A}, s{sPH}, {64*2560}
    s_add_u32 s{sK}, s{sK}, s{A}
    s_add_u32 s{sK}, s{sK}, {KB}
    s_mul_i32 s{A}, s{sHD}, 81920
    s_add_u32 s{sV}, s{sV}, s{A}
    s_add_u32 s{sV}, s{sV}, {VB}
    s_mul_i32 s{sL}, s{sWAVE}, 5632
    s_add_u32 s{sL}, s{sL}, {L_KV+4*5632}
    s_mul_i32 s{A}, s{sHO}, 1536
    v_add_u32 v{t+2}, s{A}, v{aLin}
    s_lshl_b32 s{A}, s{sHO}, 3
    v_add_u32 v{t+3}, s{A}, v{aLin}""")
    p("s_waitcnt vmcnt(1)")
    wo_pre2()
    flag_poll(aFl,t+10,sF,C,first=False)
    STAMP('fseen')
    kv_dma(aLin,aTl,sK,sV,sL,A,B)
    for q in range(2): p(f"buffer_load_dwordx4 {vr(QM[q],4)}, v{t+2}, {S4(sWS)}, s{sQ[q]} offen sc1")
    p(f"s_mov_b64 exec, s[{sLO}:{sLO+1}]")
    for q in range(2): p(f"buffer_load_dwordx2 {vr(QT[q],2)}, v{t+3}, {S4(sWS)}, s{sQ[q]} offen offset:1024 sc1")
    p(f"""s_mov_b64 exec, 1
    v_mov_b32 v{t}, {F_G1}
    v_mov_b32 v{t+1}, 1
    s_waitcnt vmcnt(4)
    ds_add_u32 v{t}, v{t+1}
    s_mov_b64 exec, -1
    v_mov_b32 v{aFl}, {F_G1}""")
    lds_wait(aFl,t+5,C,'gt',4,0)
    p(f"s_waitcnt vmcnt(0)")
    STAMP('kv')
    p(f"""s_cmp_eq_u32 s{sWAVE}, 1
    s_cbranch_scc1 L_av1
    s_cmp_eq_u32 s{sWAVE}, 2
    s_cbranch_scc1 L_av2
    s_cmp_eq_u32 s{sWAVE}, 3
    s_cbranch_scc1 L_av3""")
def kreads(n,b_):
    o=(n>>1)*5632
    return [f"ds_read_b128 {vr(KM[b_],4)}, v{aKm} offset:{o+(n&1)*1024}", f"ds_read_b64 {vr(KT[b_],2)}, v{aKt} offset:{o+(n&1)*512}"]
def vreads(n,b_):
    o=(n>>1)*5632+(n&1)*1280
    return [f"s_mov_b64 exec, s[{sLO+2}:{sLO+3}]", f"ds_read_b128 {vr(VV[b_][0],4)}, v{aV} offset:{o}", f"ds_read_b128 {vr(VV[b_][1],4)}, v{aV} offset:{o+640}", "s_mov_b64 exec, -1"]
def att_variant(w):
    U=[]
    for n in range(15-w,8+w,-1): U.append((0,n))
    for n in range(8+w,6-w,-1): U+= [(0,n),(1,n)]
    for n in range(6-w,w-1,-1): U.append((1,n))
    assert len(U)==18
    diag=[15-w,8+w]
    tiles=[]; tau=[]
    for q,n in U:
        if not tiles or tiles[-1]!=n: tiles.append(n)
        tau.append(len(tiles)-1)
    first=[tau.index(i) for i in range(len(tiles))]
    started=[0,0]
    def QK(u):
        q,n=U[u]; b_=tau[u]&1; S=vr(SS[u&1],16)
        c=vr(CD,16) if n==diag[q] else (vr(CF,16) if n==diag[q]-8 else "0")
        return [f"v_mfma_f32_32x32x16_bf16 {S}, {vr(KM[b_],4)}, {vr(QM[q],4)}, {c}", f"v_mfma_f32_32x32x8_bf16 {S}, {vr(KT[b_],2)}, {vr(QT[q],2)}, {S}"]
    def PV(u,m):
        q,n=U[u]; O=vr(OO[q],16)
        c=O if started[q] else "0"; started[q]=1
        return f"v_mfma_f32_32x32x16_bf16 {O}, {vr(VV[tau[u]&1][m],4)}, {vr(PP+4*m,4)}, {c}"
    p(f"L_av{w}:")
    for i,f in enumerate(first):
        if f<=1:
            for x in kreads(tiles[i],i&1): p(x)
    for x in vreads(tiles[0],0): p(x)
    p("s_waitcnt lgkmcnt(0)")
    for x in QK(0): p(x)
    p("s_nop 7\ns_nop 3")
    pend=False
    H=first[tiles.index(7)]
    for u in range(18):
        S=SS[u&1]
        e=lambda i: p(f"v_exp_f32 v{S+i}, v{S+i}")
        c=lambda k: p(f"v_cvt_pk_bf16_f32 v{PP+k}, v{S+2*k}, v{S+2*k+1}")
        kr=[x for i,f in enumerate(first) if f==u+2 for x in kreads(tiles[i],i&1)]
        vr_=[x for i,f in enumerate(first) if f==u+1 for x in vreads(tiles[i],i&1)]
        late=(u+2==H)
        STAMP('u%d'%u)
        e(0); e(1)
        if u>0: p(PV(u-1,1))
        e(2)
        if not late:
            for x in kr: p(x)
        if u+3==H: p(f"ds_read_b32 v{vT}, v{aFl} offset:{F_G2-F_G1}")
        e(3); c(0); c(1)
        if pend: p("s_waitcnt lgkmcnt(0)") if not (kr and not late) and u+3!=H else p(f"s_waitcnt lgkmcnt({(len(kr) if not late else 0)+(1 if u+3==H else 0)})")
        qk=QK(u+1) if u<17 else [None,None]
        if qk[0]: p(qk[0])
        e(4)
        if late:
            p(f"v_cmp_gt_u32 vcc, 2, v{vT}")
        e(5)
        if late:
            p(f"s_cbranch_vccnz L_g2w{w}\nL_g2r{w}:")
            for x in kr: p(x)
        for x in vr_: p(x)
        e(6); e(7); c(2); c(3)
        if qk[1]: p(qk[1])
        e(8); e(9); e(10); e(11)
        p(PV(u,0))
        c(4); c(5); e(12); e(13); e(14); e(15); c(6); c(7)
        pend=bool(kr or vr_ or u+3==H)
        if u==H-1:
            p(f"s_cmp_eq_u32 s{sT0}, 0\ns_cbranch_scc1 L_ex{w}")
            exq=PV(u,1)
    p("s_nop 1")
    p(PV(17,1))
    p("s_branch L_afin")
    p(f"L_g2w{w}:")
    p(f"v_mov_b32 v{vT+1}, {F_G2}")
    lds_wait(vT+1,vT,sT+17,'gt',2,1)
    p(f"s_branch L_g2r{w}\nL_ex{w}:\n{exq}\ns_branch L_afin")
def att_fin():
    t=vT; A=sT+7
    p("L_afin:")
    STAMP('aend')
    p(f"s_mov_b32 s{A}, {hex(f2u(2.0**-40))}\ns_mov_b32 s{A+1}, {hex(f2u(2.0**40)-f2u(2.0**-40))}")
    for q in range(2):
        O=OO[q]
        p(f"""v_cndmask_b32 v{t}, v{O+8}, v{O+12}, s[{sLO}:{sLO+1}]
        v_pk_add_f32 v[{t+2}:{t+3}], v[{O}:{O+1}], v[{O+2}:{O+3}]
        v_rcp_f32 v{t+1}, v{t}
        v_pk_add_f32 v[{t+4}:{t+5}], v[{O+4}:{O+5}], v[{O+6}:{O+7}]
        v_pk_add_f32 v[{t+6}:{t+7}], v[{O+8}:{O+9}], v[{O+10}:{O+11}]
        v_subrev_u32 v{t}, s{A}, v{t}
        v_pk_add_f32 v[{t+2}:{t+3}], v[{t+2}:{t+3}], v[{t+4}:{t+5}]
        v_cmp_lt_u32 s[{A+11}:{A+12}], s{A+1}, v{t}
        v_pk_add_f32 v[{t+2}:{t+3}], v[{t+2}:{t+3}], v[{t+6}:{t+7}]
        v_add_f32 v{t+2}, v{t+2}, v{t+3}""")
        p(f"v_cmp_class_f32 vcc, v{t+2}, v{aCLS}")
        for k in range(6): p(f"v_pk_mul_f32 {vr(O+2*k,2)}, {vr(O+2*k,2)}, {vr(t,2)} op_sel:[0,1] op_sel_hi:[1,1]")
        p(f"""s_or_b64 vcc, vcc, s[{A+11}:{A+12}]
        s_cbranch_scc1 L_afb{q}
        L_afr{q}:""")
        for k in range(6): p(f"v_cvt_pk_bf16_f32 v{O+k}, v{O+2*k}, v{O+2*k+1}")
        p(f"s_cmp_lg_u32 s{sOSC}, 0")
        st=[f"buffer_store_dwordx4 {vr(O,4)}, v{aO}, {S4(sWS)}, s{sOm[q]} offen", f"s_mov_b64 exec, s[{sLO}:{sLO+1}]",
            f"buffer_store_dwordx2 {vr(O+4,2)}, v{aO}, {S4(sWS)}, s{sOt[q]} offen offset:512", "s_mov_b64 exec, -1"]
        p(f"s_cbranch_scc1 L_osc{q}")
        for x in st: p(x)
        p(f"s_branch L_osr{q}\nL_osc{q}:")
        for x in st: p(x+(" sc1" if x.startswith("buffer") else ""))
        p(f"L_osr{q}:")
    p(f"""v_mov_b32 v{t}, {F_DONE}
    v_mov_b32 v{t+1}, 1
    s_mov_b64 exec, 1
    ds_add_u32 v{t}, v{t+1}
    s_mov_b64 exec, -1""")
    STAMP('ost')
aCLS=27; aFO=226; aFR=227
def att_cold():
    t=vT; A=sT+7; B=sT+8; N=sT+17; J=sT+18; CN=sT+19; PA=sT+20
    for q in range(2): p(f"L_afb{q}:\ns_cmp_lg_u32 s{sFB}, 0\ns_cbranch_scc1 L_afr{q}\ns_branch L_afb")
    p(f"L_afb:\ns_mov_b32 s{sFB}, 1\ns_waitcnt lgkmcnt(0)")
    S=SS[0]; MX=t+10; xa=t+11
    for q in range(2):
        lp=p.lab("fb"); nd=p.lab("fbnd"); nf=p.lab("fbnf"); p2=p.lab("fbp2"); nx=p.lab("fbnx"); ps=p.lab("fbps"); dn=p.lab("fbdn")
        for r in range(16): p(f"v_mov_b32 v{OO[q]+r}, 0")
        p(f"""v_mov_b32 v{MX}, {NINF}
        s_mov_b32 s{PA}, 0
        {ps}:""")
        if q==0: p(f"s_sub_u32 s{N}, 15, s{sWAVE}")
        else: p(f"s_add_u32 s{N}, 8, s{sWAVE}")
        p(f"""s_sub_u32 s{CN}, s{N}, 7
        s_cmp_eq_u32 s{sT0}, 0
        s_cselect_b32 s{CN}, s{CN}, 9
        s_mov_b32 s{J}, 0
        {lp}:
        s_lshr_b32 s{A}, s{N}, 1
        s_mul_i32 s{A}, s{A}, 5632
        s_and_b32 s{B}, s{N}, 1
        s_lshl_b32 s{sT+21}, s{B}, 10
        s_add_u32 s{sT+21}, s{sT+21}, s{A}
        v_add_u32 v{xa}, s{sT+21}, v{aKm}
        s_lshl_b32 s{sT+21}, s{B}, 9
        s_add_u32 s{sT+21}, s{sT+21}, s{A}
        v_add_u32 v{xa+1}, s{sT+21}, v{aKt}
        s_mul_i32 s{B}, s{B}, 1280
        s_add_u32 s{A}, s{A}, s{B}
        v_add_u32 v{xa+2}, s{A}, v{aV}
        ds_read_b128 {vr(KM[0],4)}, v{xa}
        ds_read_b64 {vr(KT[0],2)}, v{xa+1}
        s_mov_b64 exec, s[{sLO+2}:{sLO+3}]
        ds_read_b128 {vr(VV[0][0],4)}, v{xa+2}
        ds_read_b128 {vr(VV[0][1],4)}, v{xa+2} offset:640
        s_mov_b64 exec, -1
        s_waitcnt lgkmcnt(0)
        v_mfma_f32_32x32x16_bf16 {vr(S,16)}, {vr(KM[0],4)}, {vr(QM[q],4)}, 0
        v_mfma_f32_32x32x8_bf16 {vr(S,16)}, {vr(KT[0],2)}, {vr(QT[q],2)}, {vr(S,16)}
        v_mov_b32 v{xa}, {NINF}
        s_nop 11
        s_cmp_lg_u32 s{J}, 0
        s_cbranch_scc1 {nd}""")
        for r in range(16): p(f"v_cmp_eq_u32 vcc, 0, v{CD+r}\ns_nop 1\nv_cndmask_b32 v{S+r}, v{xa}, v{S+r}, vcc")
        p(f"{nd}:\ns_cmp_lg_u32 s{J}, 8\ns_cbranch_scc1 {nf}")
        for r in range(16): p(f"v_cmp_eq_u32 vcc, 0, v{CF+r}\ns_nop 1\nv_cndmask_b32 v{S+r}, v{xa}, v{S+r}, vcc")
        p(f"{nf}:\ns_cmp_lg_u32 s{PA}, 0\ns_cbranch_scc1 {p2}")
        for r in range(0,16,2): p(f"v_max3_f32 v{MX}, v{S+r}, v{S+r+1}, v{MX}")
        p(f"s_branch {nx}\n{p2}:")
        for r in range(16): p(f"v_sub_f32 v{S+r}, v{S+r}, v{MX}")
        for r in range(16): p(f"v_exp_f32 v{S+r}, v{S+r}")
        p("s_nop 0")
        for k in range(8): p(f"v_cvt_pk_bf16_f32 v{PP+k}, v{S+2*k}, v{S+2*k+1}")
        p("s_nop 1")
        for m in range(2): p(f"v_mfma_f32_32x32x16_bf16 {vr(OO[q],16)}, {vr(VV[0][m],4)}, {vr(PP+4*m,4)}, {vr(OO[q],16)}")
        p(f"""s_nop 11
        {nx}:
        s_sub_u32 s{N}, s{N}, 1
        s_add_u32 s{J}, s{J}, 1
        s_cmp_lt_u32 s{J}, s{CN}
        s_cbranch_scc1 {lp}
        s_cmp_lg_u32 s{PA}, 0
        s_cbranch_scc1 {dn}
        v_mov_b32 v{xa}, v{MX}
        s_mov_b32 s{PA}, 1
        s_nop 0
        v_permlane32_swap_b32 v{xa}, v{MX}
        s_nop 1
        v_max_f32 v{MX}, v{MX}, v{xa}
        s_branch {ps}
        {dn}:""")
    p("s_branch L_afin")

BF=28; AF=108; WACC=200; XR=176; WR_=186; aX2=196; aPS=197; aAL=198; aAR=199; SW=220; SELF=221; aPR=222; aKY=223; aCD=224
HP=40; HF_=50; LP=70; OP=80
sRT=sT+1; sOL=sT+2; sOR=sT+5; sXO=sT+11; sPSO=sT+12; sRETRY=sT+13; sPRB=sT+14; sFLO=sT+16; sFRE=sT+18
def acc_init():
    for k in range(10): p(f"v_lshlrev_b32 v{WACC+2*k}, 16, v{XR+k}\nv_and_b32 v{WACC+2*k+1}, 0xffff0000, v{XR+k}")
def wo_pre1():
    t=vT; A=sT+7; B=sT+8
    wo_ids()
    p(f"""v_and_b32 v{t}, 15, v0
    v_lshrrev_b32 v{t+1}, 4, v0
    v_mul_u32_u24 v{t+2}, 40, v{t+1}
    v_mov_b32 v{t+3}, 1280
    v_mad_u32_u24 v{aX2}, v{t}, v{t+3}, v{t+2}
    s_lshl_b32 s{A}, s{sBLK}, 2
    s_add_u32 s{A}, s{A}, s{sWAVE}
    s_mul_i32 s{A}, s{A}, 20480
    s_mul_i32 s{B}, s{sJ}, 160
    s_add_u32 s{A}, s{A}, s{B}
    buffer_load_dwordx4 {vr(XR,4)}, v{aX2}, {S4(sX)}, s{A} offen
    buffer_load_dwordx4 {vr(XR+4,4)}, v{aX2}, {S4(sX)}, s{A} offen offset:16
    buffer_load_dwordx2 {vr(XR+8,2)}, v{aX2}, {S4(sX)}, s{A} offen offset:32
    buffer_load_dwordx4 {vr(WR_,4)}, v{t+2}, {S4(sWR)}, s{B} offen
    buffer_load_dwordx4 {vr(WR_+4,4)}, v{t+2}, {S4(sWR)}, s{B} offen offset:16
    buffer_load_dwordx2 {vr(WR_+8,2)}, v{t+2}, {S4(sWR)}, s{B} offen offset:32
    v_lshlrev_b32 v{aPS}, 7, v{t}
    v_lshl_add_u32 v{aPS}, v{t+1}, 5, v{aPS}
    v_lshlrev_b32 v{aFR}, 7, v{t}
    v_mul_u32_u24 v{t+2}, 640, v{t+1}
    v_bfe_u32 v{t+3}, v0, 2, 2
    v_mul_u32_u24 v{t+3}, 160, v{t+3}
    v_and_b32 v{t+4}, 3, v0
    v_mul_u32_u24 v{t+4}, 40, v{t+4}
    v_add3_u32 v{t+2}, v{t+2}, v{t+3}, v{t+4}
    s_mul_i32 s{A}, s{sHH}, 51200
    s_add_u32 s{B}, s{A}, {L_WO}
    v_add_u32 v{aAL}, s{B}, v{t+2}
    s_sub_u32 s{B}, {L_WO+51200}, s{A}
    v_add_u32 v{aAR}, s{B}, v{t+2}
    v_and_b32 v{t+2}, 7, v0
    v_mul_u32_u24 v{t+2}, 1280, v{t+2}
    v_bfe_u32 v{t+3}, v0, 3, 1
    v_lshl_add_u32 v{aPR}, v{t+3}, 7, v{t+2}""")
def wo_pre2():
    acc_init()
def probe(soff,cnt,first=True):
    t=vT
    lp=p.lab("pb"); ok=p.lab("pbok"); md=p.lab("pbm")
    p(f"s_mov_b32 s{cnt}, {SPIN}")
    if not first: p(f"s_branch {md}")
    p(f"""{lp}:
    buffer_load_dwordx3 v[{t+4}:{t+6}], v{aPR}, {S4(sWS)}, s{soff} offen offset:512 sc1""")
    if not first: p(f"{md}:")
    p(f"""s_waitcnt vmcnt(0)
    v_max_u32 v{t+4}, v{t+4}, v{t+6}
    v_cmp_eq_u32 vcc, -1, v{t+4}
    s_nop 0
    s_cbranch_vccz {ok}""")
    spin(cnt,lp,ok)
    p(f"s_branch {lp}\n{ok}:")
def red3(a,b,c,d):
    p(f"""v_mov_b32 v{d}, v{c}
    s_nop 0
    v_permlane32_swap_b32 v{a}, v{b}
    v_permlane32_swap_b32 v{c}, v{d}
    s_nop 0
    v_add_f32 v{a}, v{a}, v{b}
    v_add_f32 v{c}, v{c}, v{d}
    s_nop 1
    v_permlane16_swap_b32 v{a}, v{c}
    s_nop 0
    v_add_f32 v{a}, v{a}, v{c}
    v_add_f32 v{c}, v{a}, 0
    s_nop 1
    v_permlane16_swap_b32 v{a}, v{c}
    s_nop 0
    v_mov_b32 v{b}, v{a}
    s_nop 1
    v_permlane32_swap_b32 v{a}, v{b}""")
def wo_main():
    t=vT; A=sT+7; B=sT+8; C=sT+17; MXS=t+8
    wo_ids()
    p(f"""s_lshl_b32 s{sRT}, s{sBLK}, 2
    s_add_u32 s{sRT}, s{sRT}, s{sWAVE}
    s_mul_i32 s{A}, s{sRT}, 20480
    s_mul_i32 s{B}, s{sJ}, 160
    s_add_u32 s{sXO}, s{A}, s{B}
    s_mul_i32 s{B}, s{sMODE}, {OB2-OB}
    s_add_u32 s{A}, s{A}, s{B}
    s_add_u32 s{A}, s{A}, {OB}
    s_mul_i32 s{B}, s{sHH}, 10240
    s_add_u32 s{sOL}, s{A}, s{B}
    s_add_u32 s{sOL+1}, s{sOL}, 4096
    s_add_u32 s{sOL+2}, s{sOL}, 8192
    s_add_u32 s{A}, s{A}, 10240
    s_sub_u32 s{sOR}, s{A}, s{B}
    s_lshl_b32 s{sPSO}, s{sRT}, 11
    s_add_u32 s{sPSO}, s{sPSO}, {PS}
    s_mov_b32 s{sRETRY}, {1<<16}
    s_add_u32 s{sOR+1}, s{sOR}, 4096
    s_add_u32 s{sPRB}, s{sOR}, 8192
    s_lshr_b32 s{A}, s{sRT}, 1
    s_lshl_b32 s{A}, s{A}, 12
    s_lshl_b32 s{B}, s{sHH}, 11
    s_add_u32 s{A}, s{A}, {FO}
    s_add_u32 s{sFLO}, s{A}, s{B}
    s_xor_b32 s{sFRE}, s{sFLO}, 2048
    v_mov_b32 v{t}, {F_WOR}
    v_mov_b32 v{t+1}, s{sTAG}
    s_cmp_eq_u32 s{sOSC}, 0
    s_cbranch_scc1 L_nofo
    s_mov_b64 exec, 3
    s_waitcnt vmcnt(0)
    buffer_store_dword v{t+1}, v{aFO}, {S4(sWS)}, 0 offen sc1
    s_mov_b64 exec, -1
    L_nofo:""")
    STAMP('fo')
    lds_wait(t,t+1,C,'gt',2,0)
    p(f"""ds_read_b32 v{SW}, v{t} offset:{L_SWS-F_WOR}
    L_wo:""")
    STAMP('wor')
    sROFF=[sOR,sOR+1,sPRB]
    LA=CFG['wla']; WE=CFG['wwe']
    LG=[]
    def af(m): return AF+4*(m%15)
    def aread(m):
        s_,t_=divmod(m,5)
        for rd in range(2):
            p(f"ds_read_b64_tr_b16 {vr(af(m)+2*rd,2)}, v{aAL if s_<10 else aAR} offset:{(s_%10)*5120+rd*2560+8*t_}"); LG.append(m)
    def lgw(m):
        k=[i for i,x in enumerate(LG) if x!='x' and x<=m]
        if not k: return None
        n=len(LG)-1-max(k); del LG[:max(k)+1]; return n
    def bload(s_):
        so=(sOL+(s_%10)//4) if s_<10 else sROFF[(s_%10)//4]
        return f"buffer_load_dwordx4 {vr(BF+4*s_,4)}, v{aLin}, {S4(sWS)}, s{so} offen offset:{(s_%10%4)*1024} sc1"
    for m in range(LA): aread(m)
    p(f"v_mov_b32 v{MXS}, 0\nv_mov_b32 v{t+7}, {F_WO2}")
    p(f"s_cmp_lg_u32 s{sMODE}, 0\ns_cbranch_scc1 L_plsl")
    probe(sOL,C)
    p("L_plr:")
    n0=len(p.L)
    p("L_plsl:"); flag_poll(aFR,t+4,sFLO,C); p("s_branch L_plr")
    COLD.append("\n".join(p.L[n0:])); del p.L[n0:]
    STAMP('pl')
    for s_ in range(10): p(bload(s_))
    p(f"buffer_load_dword v{t+4}, v{aFR}, {S4(sWS)}, s{sFRE} offen sc1")
    for m in range(100):
        s_,t_=divmod(m,5)
        if m==50:
            STAMP('loc')
            flag_poll(aFR,t+4,sFRE,C,first=False)
            STAMP('pr')
            for k in range(10,20): p(bload(k))
            if CFG['gstart']=='PR' or CFG['dstart']=='PR' or CFG['dgate']=='PR':
                p(f"""s_mov_b64 exec, 1
                v_mov_b32 v{t+4}, {F_PR}
                v_mov_b32 v{t+5}, 1
                ds_add_u32 v{t+4}, v{t+5}
                s_mov_b64 exec, -1"""); LG.append('x')
        w=[]
        if t_==0: w.append(f"vmcnt({(10-s_) if s_<10 else (19-s_)}")
        if m%WE==0:
            n=lgw(m+WE-1)
            if n is not None: w.append(f"lgkmcnt({n}")
        if w: p("s_waitcnt "+") ".join(w)+")")
        a_=vr(WACC+4*t_,4)
        p(f"v_mfma_f32_16x16x32_bf16 {a_}, {vr(af(m),4)}, {vr(BF+4*s_,4)}, {a_}")
        if m+LA==50-10: p(f"ds_read_b32 v{t+6}, v{t+7}"); LG.append('x')
        if m+LA==50:
            p(f"v_cmp_gt_u32 vcc, 2, v{t+6}\ns_nop 0\ns_cbranch_vccnz L_wo2w\nL_wo2r:")
            n0=len(p.L)
            p("L_wo2w:"); lds_wait(t+7,t+6,C,'gt',2,0); p("s_branch L_wo2r")
            COLD.append("\n".join(p.L[n0:])); del p.L[n0:]
        if m+LA<100: aread(m+LA)
        if t_==0 and s_<10: p(f"v_max3_u32 v{MXS}, v{BF+4*s_}, v{BF+4*s_+2}, v{MXS}")
    p(f"""v_cmp_eq_u32 vcc, -1, v{MXS}
    v_mov_b32 v{t}, 0x3f803f80
    v_mov_b32 v{t+2}, 0
    v_mov_b32 v{t+3}, 0
    v_mov_b32 v{t+4}, 0
    s_cbranch_vccnz L_woredo
    L_wook:""")
    STAMP('wend')
    COLD.append(f"L_woredo:\ns_sub_u32 s{sRETRY}, s{sRETRY}, 1\ns_cbranch_scc1 L_wook\ns_nop 7")
    q=P();
    COLD.append("\n".join(f"v_lshlrev_b32 v{WACC+2*k}, 16, v{XR+k}\nv_and_b32 v{WACC+2*k+1}, 0xffff0000, v{XR+k}" for k in range(10))+"\ns_branch L_wo")
    for k in range(10): p(f"v_cvt_pk_bf16_f32 v{HP+k}, v{WACC+2*k}, v{WACC+2*k+1}")
    for k in range(10):
        p(f"""v_dot2_f32_bf16 v{t+2}, v{HP+k}, v{t}, v{t+2}
        v_dot2_f32_bf16 v{t+4}, v{HP+k}, v{HP+k}, v{t+4}
        v_dot2_f32_bf16 v{t+3}, v{HP+k}, v{WR_+k}, v{t+3}""")
    p(f"""s_lshl_b32 s{A}, s{sJ}, 4
    s_add_u32 s{A}, s{A}, s{sPSO}""")
    red3(t+2,t+3,t+4,t+5)
    p(f"""v_mov_b32 v{t+5}, s{sTAG}
    s_mov_b64 exec, 0xffff
    s_cmp_lg_u32 s{sMODE}, 0
    s_cbranch_scc1 L_pssc
    buffer_store_dwordx4 {vr(t+2,4)}, v{aPS}, {S4(sWS)}, s{A} offen
    L_psr:
    s_mov_b64 exec, -1""")
    COLD.append(f"L_pssc:\nbuffer_store_dwordx4 {vr(t+2,4)}, v{aPS}, {S4(sWS)}, s{A} offen sc1\ns_branch L_psr")
    STAMP('ps')
    G=t+10
    lp=p.lab("ps"); ok=p.lab("psok"); md=p.lab("psm")
    ld=f"""buffer_load_dwordx4 {vr(G,4)}, v{aPS}, {S4(sWS)}, s{sPSO} offen sc1
    buffer_load_dwordx4 {vr(G+4,4)}, v{aPS}, {S4(sWS)}, s{sPSO} offen offset:16 sc1"""
    p(ld)
    for k in range(10): p(f"v_lshlrev_b32 v{HF_+2*k}, 16, v{HP+k}\nv_and_b32 v{HF_+2*k+1}, 0xffff0000, v{HP+k}")
    if CFG['dbg']:
        p(f"s_add_u32 s{A}, s{sXO}, {HB}")
        for o,n in ((0,4),(4,4),(8,2)): p(f"buffer_store_dwordx{n} {vr(HP+o,n)}, v{aX2}, {S4(sWS)}, s{A} offen offset:{4*o}")
    p(f"""s_lshl_b32 s{A}, s{sRT}, 4
    s_sub_u32 s{A}, 2047, s{A}
    v_and_b32 v{t}, 15, v0
    v_sub_u32 v{t+9}, s{A}, v{t}
    v_lshlrev_b32 v{t+9}, 3, v{t+9}
    s_lshl_b32 s{A}, s{sWAVE}, 6
    s_add_u32 s{A}, s{A}, {L_KEYS}
    v_lshl_add_u32 v{aKY}, v{t}, 2, s{A}
    v_and_b32 v{t}, 48, v0
    v_lshlrev_b32 v{t}, 2, v{t}
    v_add_u32 v{t+8}, {L_KEYS}, v{t}
    s_mov_b32 s{C}, {SPIN}
    s_branch {md}
    {lp}:
    {ld}
    {md}:
    s_waitcnt vmcnt(0)
    v_cmp_ne_u32 vcc, s{sTAG}, v{G+3}
    v_cmp_ne_u32 s[{sT+14}:{sT+15}], s{sTAG}, v{G+7}
    v_pk_add_f32 {vr(t+4,2)}, {vr(G,2)}, {vr(G+4,2)}
    v_add_f32 v{t+6}, v{G+2}, v{G+6}
    s_or_b64 vcc, vcc, s[{sT+14}:{sT+15}]
    s_cbranch_scc0 {ok}""")
    spin(C,lp,ok)
    p(f"""s_branch {lp}
    {ok}:""")
    STAMP('psr')
    if CFG['dgate']=='PS': p(f"""s_mov_b64 exec, 1
    v_mov_b32 v{G}, {F_PS}
    v_mov_b32 v{G+1}, 1
    ds_add_u32 v{G}, v{G+1}
    s_mov_b64 exec, -1""")
    M=t+4
    red3(M,M+1,M+2,M+3)
    p(f"""v_mul_f32 v{M}, {1/640!r}, v{M}
    v_mul_f32 v{M+2}, {1/640!r}, v{M+2}
    v_fma_f32 v{M+2}, -v{M}, v{M}, v{M+2}
    v_max_f32 v{M+2}, 0, v{M+2}""")
    bf16r(M+2,M+2)
    p(f"v_add_f32 v{M+2}, 0x3727c5ac, v{M+2}")
    bf16r(M+2,M+2)
    p(f"v_sqrt_f32 v{M+2}, v{M+2}")
    bf16r(M,M)
    bf16r(M+2,M+2)
    RS=t+2
    p(f"""v_rcp_f32 v{RS}, v{M+2}
    v_fma_f32 v{M+1}, -v{M}, v{SW}, v{M+1}
    v_mul_f32 v{M+1}, v{M+1}, v{RS}
    v_cvt_pk_bf16_f32 v{M+1}, v{M+1}, v{M+1}
    v_mul_f32 v{RS+1}, -v{M}, v{RS}
    v_ashrrev_i32 v{M+2}, 31, v{M+1}
    v_or_b32 v{M+2}, 0x80000000, v{M+2}
    v_xor_b32 v{M+1}, v{M+1}, v{M+2}
    v_and_b32 v{M+1}, 0xffff0000, v{M+1}
    v_or_b32 v{KEY}, v{M+1}, v{t+9}
    ds_write_b32 v{aKY}, v{KEY}""")
    for k in range(10): p(f"v_pk_fma_f32 {vr(WACC+2*k,2)}, {vr(HF_+2*k,2)}, {vr(RS,2)}, {vr(RS,2)} op_sel:[0,0,1] op_sel_hi:[1,0,1]")
    K16=AF
    lp=p.lab("ky"); ok=p.lab("kyok")
    p(f"s_mov_b32 s{C}, {SPIN*4}\n{lp}:")
    for i in range(4): p(f"ds_read_b128 {vr(K16+4*i,4)}, v{t+8} offset:{16*i}")
    p("s_waitcnt lgkmcnt(0)")
    p(f"v_max3_u32 v{t}, v{K16}, v{K16+1}, v{K16+2}")
    for i in range(3,15,2): p(f"v_max3_u32 v{t}, v{K16+i}, v{K16+i+1}, v{t}")
    p(f"""v_max_u32 v{t}, v{t}, v{K16+15}
    v_cmp_eq_u32 vcc, -1, v{t}
    v_mov_b32 v{t}, 0
    s_cbranch_vccz {ok}""")
    spin(C,lp,ok)
    p(f"s_branch {lp}\n{ok}:")
    STAMP('keys')
    m0_=sT+18
    for i in range(18):
        if i<16: p(f"v_cmp_gt_u32 s[{m0_+2*(i%2)}:{m0_+2*(i%2)+1}], v{K16+i}, v{KEY}") if False else None
    MK=[sT+14,sT+16,sT+18]
    for i in range(18):
        if i<16: m=MK[i%3]; p(f"v_cmp_gt_u32 s[{m}:{m+1}], v{K16+i}, v{KEY}")
        elif i==16: p("s_nop 0")
        if i>=2: m=MK[(i-2)%3]; p(f"v_addc_co_u32 v{t}, vcc, 0, v{t}, s[{m}:{m+1}]")
    p(f"""v_mov_b32 v{t+1}, v{t}
    v_cvt_pk_bf16_f32 v{LP}, v{WACC}, v{WACC+1}
    v_cvt_pk_bf16_f32 v{LP+1}, v{WACC+2}, v{WACC+3}
    v_permlane32_swap_b32 v{t}, v{t+1}
    v_cvt_pk_bf16_f32 v{LP+2}, v{WACC+4}, v{WACC+5}
    v_add_u32 v{t}, v{t}, v{t+1}
    v_mov_b32 v{t+1}, v{t}
    v_cvt_pk_bf16_f32 v{LP+3}, v{WACC+6}, v{WACC+7}
    v_cvt_pk_bf16_f32 v{LP+4}, v{WACC+8}, v{WACC+9}
    v_permlane16_swap_b32 v{t}, v{t+1}
    v_cvt_pk_bf16_f32 v{LP+5}, v{WACC+10}, v{WACC+11}
    v_add_u32 v{t}, v{t}, v{t+1}
    v_cmp_gt_u32 s[{sCAND}:{sCAND+1}], 8, v{t}
    v_or_b32 v{KEY}, v{KEY}, v{t}
    v_mov_b32 v{t+1}, {L_CA&~0xffff}
    v_lshl_add_u32 v{t+1}, v{t}, 3, v{t+1}
    v_mov_b32 v{KEY+1}, s{sTAG}
    s_cmp_lg_u32 s{sJ}, 0
    s_cbranch_scc1 L_noca
    s_and_b32 exec_lo, s{sCAND}, 0xffff
    s_mov_b32 exec_hi, 0
    ds_write_b64 v{t+1}, {vr(KEY,2)} offset:{L_CA&0xffff}
    s_mov_b64 exec, 0xff
    s_cmp_lg_u32 s{sWAVE}, 0
    s_cbranch_scc1 L_noca
    v_lshlrev_b32 v{t+2}, 3, v0
    v_add_u32 v{t+3}, {L_CA}, v{t+2}
    s_lshl_b32 s{A}, s{sBLK}, 7
    s_add_u32 s{A}, s{A}, {CA}
    s_mov_b32 s{C}, {SPIN*4}
    L_cal:
    ds_read_b64 v[{t+4}:{t+5}], v{t+3}
    s_waitcnt lgkmcnt(0)
    v_cmp_ne_u32 vcc, s{sTAG}, v{t+5}
    s_nop 0
    s_cbranch_vccz L_caok""")
    spin(C,"L_cal","L_caok")
    p(f"""s_branch L_cal
    L_caok:
    buffer_store_dwordx2 v[{t+4}:{t+5}], v{t+2}, {S4(sWS)}, s{A} offen sc1
    L_noca:
    s_mov_b64 exec, -1""")
    STAMP('ca')
    for k in range(6,10): p(f"v_cvt_pk_bf16_f32 v{LP+k}, v{WACC+2*k}, v{WACC+2*k+1}")
    p(f"""v_lshrrev_b32 v{t+1}, 4, v0
    v_mul_u32_u24 v{t+1}, 40, v{t+1}
    v_mul_u32_u24 v{t}, 2560, v{t}
    v_add_u32 v{aCD}, v{t}, v{t+1}
    s_mul_i32 s{A}, s{sBLK}, 20480
    s_mul_i32 s{B}, s{sJ}, 160
    s_add_u32 s{A}, s{A}, s{B}
    s_add_u32 s{A}, s{A}, {CAND}
    s_and_b64 exec, s[{sCAND}:{sCAND+1}], -1
    s_cbranch_scc0 L_nocd""")
    for base,off in ((LP,0),(HP,1280)):
        if 'nocand' in CFG['xp'] or ('noh' in CFG['xp'] and off): continue
        for o,n in ((0,4),(4,4),(8,2)): p(f"buffer_store_dwordx{n} {vr(base+o,n)}, v{aCD}, {S4(sWS)}, s{A} offen offset:{off+4*o} sc1")
    p("L_nocd:\ns_mov_b64 exec, -1")
    for k in range(10): p(f"v_pk_add_f32 {vr(WACC+2*k,2)}, {vr(WACC+2*k,2)}, {vr(HF_+2*k,2)}")
    for k in range(10): p(f"v_cvt_pk_bf16_f32 v{OP+k}, v{WACC+2*k}, v{WACC+2*k+1}")
    p(f"s_andn2_b64 exec, -1, s[{sCAND}:{sCAND+1}]\ns_cbranch_scc0 L_noo1")
    if 'noout' not in CFG['xp']: out_store()
    p("L_noo1:")
    if 1: p(f"""s_mov_b64 exec, 1
    v_mov_b32 v{t+4}, {F_O1}
    v_mov_b32 v{t+5}, 1
    ds_add_u32 v{t+4}, v{t+5}
    s_mov_b64 exec, -1""")
    else: p("s_mov_b64 exec, -1")
    STAMP('o1')
KEY=228; sCAND=sT+20
def out_store():
    for o,n in ((0,4),(4,4),(8,2)): p(f"buffer_store_dwordx{n} {vr(OP+o,n)}, v{aX2}, {S4(sOUT)}, s{sXO} offen offset:{4*o} {CFG['opol']}")

def moe_weights():
    A=sT+7; B=sT+8; vt=2; D=40; aW_=12
    gu=p.lab("mwgu"); wr=p.lab("mwwr"); en=p.lab("mwend")
    FA=dict(WOD=(F_WOD,2),PR=(F_PR,4),O1=(F_O1,4),DONE=(F_DONE,4),G2=(F_G2,2),PS=(F_PS,4),WO2=(F_WO2,2))
    def gate(k):
        p(f"v_mov_b32 v{vt+4}, {FA[k][0]}")
        lds_wait(vt+4,vt+5,sT+5,'gt',FA[k][1],2)
    pl_=p.lab("mwpl")
    p(f"""s_cmp_ge_u32 s{sSLOT}, 17
    s_cbranch_scc1 {pl_}
    v_bfe_u32 v{vt}, v0, 3, 2
    v_lshrrev_b32 v{vt+1}, 5, v0
    v_lshlrev_b32 v{vt}, 1, v{vt}
    v_add_lshl_u32 v{vt}, v{vt}, v{vt+1}, 2
    v_bfe_u32 v{vt+1}, v0, 1, 2
    v_add_u32 v{vt}, v{vt}, v{vt+1}
    v_and_b32 v{vt+1}, 1, v0
    v_lshlrev_b32 v{vt+1}, 4, v{vt+1}
    s_cmp_lt_u32 s{sSLOT}, 12
    s_cbranch_scc1 {gu}
    v_mul_u32_u24 v{vt}, 1280, v{vt}
    v_add_u32 v{aW_}, v{vt}, v{vt+1}
    s_mul_i32 s{A}, s{sG}, 5
    s_add_u32 s{A}, s{A}, s{sSLOT}
    s_sub_u32 s{A}, s{A}, 12
    s_lshl_b32 s{A}, s{A}, 5
    s_mul_i32 s{B}, s{HW}, {12*32*1280}
    s_add_u32 s{A}, s{A}, s{B}""")
    gate(CFG['dstart'])
    STAMP('mg')
    for s_ in range(12):
        if s_>=CFG['ddep']: p(f"s_waitcnt vmcnt({CFG['ddep']-1})")
        p(f"buffer_load_dwordx4 {vr(D+4*s_,4)}, v{aW_}, {S4(sWD)}, s{A} offen {CFG['mpol']}")
        if s_<11: p(f"s_add_u32 s{A}, s{A}, {32*1280}")
    p(f"""s_mul_i32 s{B}, s{HW}, 12288
    s_branch {wr}
    {pl_}:""")
    if CFG['dgate']!='no' and not CFG['dw3']:
        gate(CFG['dgate'])
        touch(vTD,sWD,CFG['mpair'])
        STAMP('mg')
        if CFG['prof']: p("s_waitcnt vmcnt(0)"); STAMP('mw')
    p(f"""s_branch {en}
    {gu}:
    v_mul_u32_u24 v{vt}, 3072, v{vt}
    v_add_u32 v{aW_}, v{vt}, v{vt+1}
    s_mul_i32 s{A}, s{sG}, 12
    s_add_u32 s{A}, s{A}, s{sSLOT}
    s_lshl_b32 s{A}, s{A}, 5
    s_mul_i32 s{B}, s{HW}, {5*32*3072}
    s_add_u32 s{A}, s{A}, s{B}""")
    gate(CFG['gstart'])
    STAMP('mg')
    for s_ in range(5):
        for m_ in range(2):
            if 2*s_+m_>=CFG['mdep']: p(f"s_waitcnt vmcnt({CFG['mdep']-1})")
            p(f"buffer_load_dwordx4 {vr(D+8*s_+4*m_,4)}, v{aW_}, {S4((sWG,sWU)[m_])}, s{A} offen {CFG['mpol']}")
        if s_<4: p(f"s_add_u32 s{A}, s{A}, {32*3072}")
    p(f"s_mul_i32 s{B}, s{HW}, 12288\n{wr}:\nv_lshl_add_u32 v{vt}, v0, 4, s{B}")
    gate('DONE')
    p("s_waitcnt vmcnt(0)")
    for s_ in range(12): p(f"ds_write_b128 v{vt}, {vr(D+4*s_,4)} offset:{L_MW+s_*1024}")
    p(f"""s_lshl_b32 s{A}, s{HW}, 2
    s_add_u32 s{A}, s{A}, {F_MW}
    v_mov_b32 v{vt}, s{A}
    ds_write_b32 v{vt}, v{vt}
    s_waitcnt lgkmcnt(0)""")
    STAMP('mw')
    p(f"{en}:")
def top8(R,K2,K1,y,tt):
    def clean(chs):
        seq=[]
        for (x,y_,t_) in chs:
            seq.append([f"v_max_u32_dpp v{y_}, v{x}, v{x} row_shl:4 row_mask:0xf bank_mask:0x5",
                        f"v_min_u32_dpp v{y_}, v{x}, v{x} row_shr:4 row_mask:0xf bank_mask:0xa",
                        None,
                        f"v_mov_b32_dpp v{t_}, v{y_} quad_perm:[2,3,0,1] row_mask:0xf bank_mask:0xf",
                        f"v_med3_u32 v{y_}, v{y_}, v{t_}, v{K2}",
                        None,
                        f"v_mov_b32_dpp v{t_}, v{y_} quad_perm:[1,0,3,2] row_mask:0xf bank_mask:0xf",
                        f"v_med3_u32 v{x}, v{y_}, v{t_}, v{K1}"])
        n=len(chs)
        p(f"s_nop {2-n}")
        for i in range(8):
            if seq[0][i] is None: p(f"s_nop {2-n}")
            else:
                for c in seq: p(c[i])
                if i==0 and n==1: p("s_nop 1")
                elif i==0: p("s_nop 0")
    dp="row_mask:0xf bank_mask:0xf"
    p(f"v_max_u32_dpp v{R}, v{R+2}, v{R} row_half_mirror {dp}\nv_max_u32_dpp v{R+4}, v{R+6}, v{R+4} row_half_mirror {dp}")
    clean([(R,y,tt),(R+4,y+1,tt+1)])
    p(f"s_nop 1\nv_max_u32_dpp v{R}, v{R+4}, v{R} row_half_mirror {dp}")
    clean([(R,y,tt)])
    p(f"s_nop 1\nv_max_u32_dpp v{R}, v{R}, v{R} row_mirror {dp}")
    clean([(R,y,tt)])
    for msk,sw in ((0xa,16),(0xc,32)):
        p(f"""s_nop 1
        v_mov_b32_dpp v{R}, v{R} row_half_mirror row_mask:{hex(msk)} bank_mask:0xf
        v_mov_b32 v{tt}, v{R}
        s_nop 1
        v_permlane{sw}_swap_b32 v{R}, v{tt}
        s_nop 0
        v_max_u32 v{R}, v{R}, v{tt}""")
        clean([(R,y,tt)])
def moe():
    t=vT; A=sT+7; B=sT+8; C=sT+17; sTHR=sT+14
    R=12; K2=20; K1=21; aC=22; AW=108
    BL=160
    p(f"""s_cmp_ge_u32 s{sSLOT}, 17
    s_cbranch_scc1 L_plain
    v_lshrrev_b32 v{t}, 3, v0
    v_and_b32 v{t+1}, 7, v0
    v_lshlrev_b32 v{t+1}, 3, v{t+1}
    v_lshl_add_u32 v{aC}, v{t}, 7, v{t+1}
    s_mov_b32 s{B}, {CA}""")
    ld="\n".join(f"buffer_load_dwordx2 {vr(R+2*i,2)}, v{aC}, {S4(sWS)}, s{B} offen offset:{i*1024} sc1" for i in range(4))
    aMF=4; aMW=5
    def getw():
        lds_wait(AW-aMF,t+10 if False else AW,C,'eq',0,0)
        STAMP('mwr')
        for s_ in range(12):
            for rd in range(2): p(f"ds_read_b64_tr_b16 {vr(AW+4*s_+2*rd,2)}, v{AW-aMW} offset:{L_MW+s_*1024+rd*512}")
    p(f"""s_cmp_lg_u32 s{sWAVE}, 0
    s_cbranch_scc1 L_nocal
    {ld}
    L_nocal:
    v_bfe_i32 v{K2}, v0, 1, 1
    v_bfe_i32 v{K1}, v0, 0, 1
    v_not_b32 v{K2}, v{K2}
    v_not_b32 v{K1}, v{K1}
    s_lshl_b32 s{A}, s{sWAVE}, 2
    s_add_u32 s{A}, s{A}, {F_MW}
    v_mov_b32 v{AW-aMF}, s{A}
    s_mul_i32 s{A}, s{sWAVE}, 12288
    v_lshl_add_u32 v{AW-aMW}, v0, 3, s{A}
    v_and_b32 v{t}, 7, v0
    v_lshlrev_b32 v{t}, 2, v{t}
    v_add_u32 v{AW-6}, {L_TOP}, v{t}
    s_cmp_ge_u32 s{sSLOT}, 12
    s_cbranch_scc1 L_now""")
    getw()
    lp=p.lab("ca"); ok=p.lab("caok"); md=p.lab("cam")
    p(f"""L_now:
    s_cmp_lg_u32 s{sWAVE}, 0
    s_cbranch_scc1 L_topw
    s_mov_b32 s{C}, {SPIN}
    s_branch {md}
    {lp}:
    {ld}
    {md}:
    s_waitcnt vmcnt(0)
    v_xor_b32 v{t}, v{R+1}, v{R+3}
    v_xor_b32 v{t+1}, v{R+5}, v{R+7}
    v_xor_b32 v{R+1}, s{sTAG}, v{R+1}
    v_xor_b32 v{R+5}, s{sTAG}, v{R+5}
    v_or3_b32 v{t}, v{t}, v{t+1}, v{R+1}
    v_or_b32 v{t}, v{t}, v{R+5}
    v_cmp_ne_u32 vcc, 0, v{t}
    s_nop 0
    s_cbranch_vccz {ok}""")
    spin(C,lp,ok,CFG['casl'])
    p(f"s_branch {lp}\n{ok}:")
    STAMP('car')
    top8(R,K2,K1,t,t+2)
    p(f"ds_write_b32 v{AW-6}, v{R}\ns_branch L_top\nL_topw:\ns_waitcnt vmcnt(0)")
    lds_wait(AW-6,R,C,'eq',-1,0)
    p("L_top:")
    STAMP('top')
    TOK=t+1; aR=t+2
    p(f"""v_bfe_u32 v{TOK}, v{R}, 3, 11
    v_sub_u32 v{TOK}, 2047, v{TOK}
    v_lshrrev_b32 v{t}, 6, v{TOK}
    v_and_b32 v{aR}, 7, v{R}
    v_lshl_add_u32 v{aR}, v{t}, 3, v{aR}
    v_mul_u32_u24 v{aR}, 2560, v{aR}
    v_lshrrev_b32 v{t}, 4, v0
    v_readlane_b32 s{sTHR}, v{R}, 7
    s_cmp_ge_u32 s{sSLOT}, 12
    s_cbranch_scc1 L_down""")
    def deferred(tag):
        p(f"""v_cmp_gt_u32 vcc, s{sTHR}, v{KEY}
        s_nop 0
        s_and_b64 exec, vcc, s[{sCAND}:{sCAND+1}]
        s_cbranch_scc0 L_nd{tag}""")
        out_store()
        p(f"L_nd{tag}:\ns_mov_b64 exec, -1")
    p(f"""v_lshl_add_u32 v{aR}, v{t}, 4, v{aR}
    s_mul_i32 s{A}, s{sWAVE}, 320
    s_add_u32 s{A}, s{A}, {CAND}""")
    ld="\n".join(f"buffer_load_dwordx4 {vr(BL+4*i,4)}, v{aR}, {S4(sWS)}, s{A} offen offset:{i*64} sc1" for i in range(5))
    lp=p.lab("gl"); ok=p.lab("glok"); md=p.lab("glm"); nt=p.lab("noth")
    p(ld)
    p(f"""s_or_b32 s{B}, s{sSLOT}, s{sWAVE}
    s_cbranch_scc1 {nt}
    v_mov_b32 v{t+4}, s{sTHR}
    v_mov_b32 v{t+5}, s{sTAG}
    s_lshl_b32 s{B}, s{sG}, 7
    s_add_u32 s{B}, s{B}, {TH}
    v_mov_b32 v{t+6}, 0
    s_mov_b64 exec, 1
    buffer_store_dwordx2 v[{t+4}:{t+5}], v{t+6}, {S4(sWS)}, s{B} offen sc1
    s_mov_b64 exec, -1
    {nt}:
    s_lshl_b32 s{B}, s{sWAVE}, 11
    s_add_u32 s{B}, s{B}, {L_RED}
    v_lshl_add_u32 v{t+3}, v0, 4, s{B}
    s_mov_b32 s{C}, {SPIN}
    s_branch {md}
    {lp}:
    {ld}
    {md}:
    s_waitcnt vmcnt(0) lgkmcnt(0)
    v_max3_u32 v{t+4}, v{BL}, v{BL+2}, v{BL+4}
    v_max3_u32 v{t+5}, v{BL+6}, v{BL+8}, v{BL+10}
    v_max3_u32 v{t+4}, v{BL+12}, v{BL+14}, v{t+4}
    v_max3_u32 v{t+5}, v{BL+16}, v{BL+18}, v{t+5}
    v_max_u32 v{t+4}, v{t+4}, v{t+5}
    v_cmp_eq_u32 vcc, -1, v{t+4}
    s_nop 0
    {'s_branch' if 'nocand' in CFG['xp'] else 's_cbranch_vccz'} {ok}""")
    spin(C,lp,ok)
    p(f"s_branch {lp}\n{ok}:")
    STAMP('lr')
    G=20; U=24; X=28
    for s_ in range(5):
        for m_,a_ in ((0,G),(1,U)):
            p(f"v_mfma_f32_16x16x32_bf16 {vr(a_,4)}, {vr(AW+8*s_+4*m_,4)}, {vr(BL+4*s_,4)}, {vr(a_,4) if s_ else 0}")
    w0=p.lab("guw0")
    p(f"""s_cmp_eq_u32 s{sWAVE}, 0
    s_cbranch_scc1 {w0}
    s_nop 5
    ds_write_b128 v{t+3}, {vr(G,4)}
    ds_write_b128 v{t+3}, {vr(U,4)} offset:1024
    s_waitcnt lgkmcnt(0)
    s_barrier""")
    deferred('g1')
    END()
    p(f"""{w0}:
    s_mul_i32 s{A}, s{sG}, 12
    s_add_u32 s{A}, s{A}, s{sSLOT}
    s_lshl_b32 s{A}, s{A}, 8
    s_add_u32 s{A}, s{A}, {ACT}
    v_and_b32 v{t+4}, 7, v0
    v_lshlrev_b32 v{t+4}, 4, v{t+4}
    v_lshrrev_b32 v{t+5}, 5, v0
    v_lshl_add_u32 v{t+4}, v{t+5}, 7, v{t+4}
    v_bfe_u32 v{t+5}, v0, 4, 1
    v_lshl_add_u32 v{t+4}, v{t+5}, 3, v{t+4}
    s_barrier""")
    for w_ in range(1,4):
        for m_ in range(2): p(f"ds_read_b128 {vr(X+8*(w_-1)+4*m_,4)}, v{t+3} offset:{w_*2048+m_*1024}")
    p(f"s_mov_b32 s{B}, {hex(f2u(-math.log2(math.e)))}")
    for w_ in range(3):
        p(f"s_waitcnt lgkmcnt({4-2*w_})")
        for k in range(4): p(f"v_pk_add_f32 {vr(G+2*k,2)}, {vr(G+2*k,2)}, {vr(X+8*w_+2*k,2)}")
    p(f"""v_cvt_pk_bf16_f32 v{X}, v{G}, v{G+1}
    v_cvt_pk_bf16_f32 v{X+1}, v{G+2}, v{G+3}
    v_cvt_pk_bf16_f32 v{X+2}, v{U}, v{U+1}
    v_cvt_pk_bf16_f32 v{X+3}, v{U+2}, v{U+3}""")
    for k in range(4): p(f"v_lshlrev_b32 v{G+2*k}, 16, v{X+k}\nv_and_b32 v{G+2*k+1}, 0xffff0000, v{X+k}")
    for k in range(4): p(f"v_mul_f32 v{X+k}, s{B}, v{G+k}")
    for k in range(4): p(f"v_exp_f32 v{X+k}, v{X+k}")
    for k in range(4): p(f"v_add_f32 v{X+k}, 1.0, v{X+k}")
    for k in range(4): p(f"v_rcp_f32 v{X+k}, v{X+k}")
    for k in range(4): p(f"v_mul_f32 v{G+k}, v{G+k}, v{X+k}")
    p(f"v_cvt_pk_bf16_f32 v{X}, v{G}, v{G+1}\nv_cvt_pk_bf16_f32 v{X+1}, v{G+2}, v{G+3}")
    for k in range(2): p(f"v_lshlrev_b32 v{G+2*k}, 16, v{X+k}\nv_and_b32 v{G+2*k+1}, 0xffff0000, v{X+k}")
    p(f"""v_pk_mul_f32 {vr(G,2)}, {vr(G,2)}, {vr(U,2)}
    v_pk_mul_f32 {vr(G+2,2)}, {vr(G+2,2)}, {vr(U+2,2)}
    v_cvt_pk_bf16_f32 v{X}, v{G}, v{G+1}
    v_cvt_pk_bf16_f32 v{X+1}, v{G+2}, v{G+3}
    s_mov_b32 exec_lo, 0x00ff00ff
    s_mov_b32 exec_hi, 0x00ff00ff
    buffer_store_dwordx2 {vr(X,2)}, v{t+4}, {S4(sWS)}, s{A} offen sc1
    s_mov_b64 exec, -1""")
    STAMP('act')
    deferred('g0')
    END()
    HL=20; Y=24; X=28; SG=t+8; aO2=t+9
    p(f"""L_down:
    v_lshl_add_u32 v{aR}, v{t}, 3, v{aR}
    v_mul_u32_u24 v{aO2}, 1280, v{TOK}
    v_lshl_add_u32 v{aO2}, v{t}, 3, v{aO2}
    v_and_b32 v{t+4}, 7, v0
    v_lshlrev_b32 v{t+4}, 4, v{t+4}
    v_lshl_add_u32 v{t+4}, v{t}, 7, v{t+4}
    s_mul_i32 s{sT+1}, s{sG}, 5
    s_add_u32 s{sT+1}, s{sT+1}, s{sSLOT}
    s_sub_u32 s{sT+1}, s{sT+1}, 12
    s_lshl_b32 s{sT+1}, s{sT+1}, 5
    s_add_u32 s{sT+2}, s{sT+1}, {CAND}
    s_mul_i32 s{A}, s{sWAVE}, 6144
    s_add_u32 s{A}, s{A}, {ACT}
    s_add_u32 s{B}, s{A}, 4096""")
    ldh=f"buffer_load_dwordx2 {vr(HL,2)}, v{aR}, {S4(sWS)}, s{sT+2} offen sc1\nbuffer_load_dwordx2 {vr(HL+2,2)}, v{aR}, {S4(sWS)}, s{sT+2} offen offset:1280 sc1"
    p(ldh)
    deferred('d')
    p(f"""v_ashrrev_i32 v{SG}, 31, v{R}
    v_not_b32 v{SG}, v{SG}
    v_or_b32 v{SG}, 0x80000000, v{SG}
    v_xor_b32 v{SG}, v{SG}, v{R}
    v_and_b32 v{SG}, 0xffff0000, v{SG}
    v_mul_f32 v{SG}, {hex(f2u(-math.log2(math.e)))}, v{SG}
    v_exp_f32 v{SG}, v{SG}
    s_lshl_b32 s{C}, s{sWAVE}, 10
    v_add_f32 v{SG}, 1.0, v{SG}
    v_rcp_f32 v{SG}, v{SG}
    s_add_u32 s{C}, s{C}, {L_RED}
    v_lshl_add_u32 v{t+3}, v0, 4, s{C}""")
    bf16r(SG,SG)
    lp=p.lab("hl"); ok=p.lab("hlok"); md=p.lab("hlm")
    p(f"""s_mov_b32 s{C}, {SPIN}
    s_branch {md}
    {lp}:
    {ldh}
    {md}:
    s_waitcnt vmcnt(0)
    v_max_u32 v{t+5}, v{HL}, v{HL+2}
    v_cmp_eq_u32 vcc, -1, v{t+5}
    s_nop 0
    {'s_branch' if CFG['xp'] else 's_cbranch_vccz'} {ok}""")
    spin(C,lp,ok)
    p(f"s_branch {lp}\n{ok}:")
    getw()
    ld="\n".join([f"buffer_load_dwordx4 {vr(BL+4*i,4)}, v{t+4}, {S4(sWS)}, s{A if i<8 else B} offen offset:{(i%8)*512} sc1" for i in range(12)])
    lp=p.lab("al"); ok=p.lab("alok")
    p(f"""s_mov_b32 s{C}, {SPIN}
    {lp}:
    {ld}
    s_waitcnt vmcnt(8)
    v_max3_u32 v{t+5}, v{BL}, v{BL+2}, v{BL+4}
    v_max3_u32 v{t+6}, v{BL+6}, v{BL+8}, v{BL+10}
    v_max3_u32 v{t+5}, v{BL+12}, v{BL+14}, v{t+5}""")
    for i in range(4,12):
        if i%4==0: p(f"s_waitcnt vmcnt({8-i})")
        p(f"v_max3_u32 v{t+5+(i&1)}, v{BL+4*i}, v{BL+4*i+2}, v{t+5+(i&1)}")
    p(f"""v_max_u32 v{t+5}, v{t+5}, v{t+6}
    v_cmp_eq_u32 vcc, -1, v{t+5}
    s_waitcnt lgkmcnt(0)
    s_cbranch_vccz {ok}""")
    spin(C,lp,ok,CFG['acsl'])
    p(f"s_branch {lp}\n{ok}:")
    STAMP('ar')
    for s_ in range(12): p(f"v_mfma_f32_16x16x32_bf16 {vr(Y,4)}, {vr(AW+4*s_,4)}, {vr(BL+4*s_,4)}, {vr(Y,4) if s_ else 0}")
    w0=p.lab("dnw0")
    p(f"""s_cmp_eq_u32 s{sWAVE}, 0
    s_cbranch_scc1 {w0}
    s_nop 5
    ds_write_b128 v{t+3}, {vr(Y,4)}
    s_waitcnt lgkmcnt(0)
    s_barrier""")
    END()
    p(f"""{w0}:
    v_lshlrev_b32 v{X+12}, 16, v{HL}
    v_and_b32 v{X+13}, 0xffff0000, v{HL}
    v_lshlrev_b32 v{X+14}, 16, v{HL+1}
    v_and_b32 v{X+15}, 0xffff0000, v{HL+1}
    v_lshlrev_b32 v{X+16}, 16, v{HL+2}
    v_and_b32 v{X+17}, 0xffff0000, v{HL+2}
    v_lshlrev_b32 v{X+18}, 16, v{HL+3}
    v_and_b32 v{X+19}, 0xffff0000, v{HL+3}
    s_barrier""")
    for w_ in range(1,4): p(f"ds_read_b128 {vr(X+4*(w_-1),4)}, v{t+3} offset:{w_*1024}")
    for w_ in range(3):
        p(f"s_waitcnt lgkmcnt({2-w_})")
        for k in range(2): p(f"v_pk_add_f32 {vr(Y+2*k,2)}, {vr(Y+2*k,2)}, {vr(X+4*w_+2*k,2)}")
    def rnd():
        p(f"v_cvt_pk_bf16_f32 v{X}, v{Y}, v{Y+1}\nv_cvt_pk_bf16_f32 v{X+1}, v{Y+2}, v{Y+3}")
    def unp():
        for k in range(2): p(f"v_lshlrev_b32 v{Y+2*k}, 16, v{X+k}\nv_and_b32 v{Y+2*k+1}, 0xffff0000, v{X+k}")
    rnd(); unp()
    for k in range(4): p(f"v_mul_f32 v{Y+k}, v{SG}, v{Y+k}")
    rnd(); unp()
    for k in range(2): p(f"v_pk_add_f32 {vr(Y+2*k,2)}, {vr(Y+2*k,2)}, {vr(X+12+2*k,2)}")
    rnd(); unp()
    for k in range(2): p(f"v_pk_add_f32 {vr(Y+2*k,2)}, {vr(Y+2*k,2)}, {vr(X+16+2*k,2)}")
    rnd()
    p(f"""s_mov_b32 exec_lo, 0x00ff00ff
    s_mov_b32 exec_hi, 0x00ff00ff
    buffer_store_dwordx2 {vr(X,2)}, v{aO2}, {S4(sOUT)}, s{sT+1} offen sc1""")
    STAMP('fin')
    END()
    lp=p.lab("th"); ok=p.lab("thok")
    p(f"""L_plain:
    s_lshl_b32 s{B}, s{sG}, 7
    s_add_u32 s{B}, s{B}, {TH}
    v_mov_b32 v{t}, 0
    s_mov_b32 s{C}, {SPIN}
    {lp}:
    s_sleep 16
    buffer_load_dwordx2 v[{t+2}:{t+3}], v{t}, {S4(sWS)}, s{B} offen sc1
    s_waitcnt vmcnt(0)
    v_cmp_ne_u32 vcc, s{sTAG}, v{t+3}
    s_nop 0
    s_cbranch_vccz {ok}""")
    spin(C,lp,ok)
    p(f"""s_branch {lp}
    {ok}:
    v_readfirstlane_b32 s{sTHR}, v{t+2}
    s_nop 1""")
    deferred('p')
    STAMP('fin')

def build():
    prologue()
    steps=loader()
    helperA(steps)
    p("s_branch L_mw")
    helperB(steps)
    p("L_mw:")
    moe_weights()
    END()
    p("L_comp:\ns_waitcnt lgkmcnt(0)")
    STAMP('start')
    prologue2()
    if CFG['cpf']: code_pf()
    srd(((sX,2621440),))
    gemm_setup()
    clears(0)
    if CFG['clr']==0: clears(1)
    p("s_waitcnt lgkmcnt(0)")
    mktag()
    p(f"""    s_cmp_eq_u32 s{sLC}, 15
    s_cbranch_scc1 L_gS
    s_cmp_eq_u32 s{sTY}, 2
    s_cbranch_scc1 L_gV""")
    gemm_loop('T'); gemm_epi('T'); p("s_branch L_att")
    p("L_gS:"); idle_gemm(); p("s_branch L_att")
    p("L_gV:"); gemm_loop('V'); gemm_epi('V')
    p("L_att:")
    p(f"v_mov_b32 v{aCLS}, 0x207")
    att_pro()
    for w in range(4): att_variant(w)
    att_fin()
    wo_main()
    if CFG['stop']<=3:
        p(f"s_and_b64 exec, s[{sCAND}:{sCAND+1}], -1\ns_cbranch_scc0 L_noo2"); out_store(); p("L_noo2:")
    else: moe()
    END()
    att_cold()
    for c in COLD: p(c)
    p("L_exit:\ns_endpgm")
build()
errs=check(p.L)
hdr=f"""; generated by work/k/gen.py (own generator script)
; @launch grid=(256,1,1) block=(512,1,1) lds=163840
.amdgcn_target "amdgcn-amd-amdhsa--gfx950"
.text
.globl {NAME}_kernel
.p2align 8
.type {NAME}_kernel,@function
{NAME}_kernel:
"""
ftr=f""".section .rodata,"a"
.p2align 6
.amdhsa_kernel {NAME}_kernel
  .amdhsa_next_free_vgpr 256
  .amdhsa_next_free_sgpr 102
  .amdhsa_accum_offset 256
  .amdhsa_group_segment_fixed_size 0
  .amdhsa_kernarg_size 88
  .amdhsa_user_sgpr_count 2
  .amdhsa_user_sgpr_kernarg_segment_ptr 1
  .amdhsa_system_sgpr_workgroup_id_x 1
.end_amdhsa_kernel
"""
open(sys.argv[1],"w").write(hdr+p.text()+ftr)

import subprocess
r=subprocess.run(["clang","-x","assembler","-target","amdgcn-amd-amdhsa","-mcpu=gfx950",sys.argv[1],"-o",sys.argv[1]+".co"],capture_output=True,text=True)
if r.returncode: print(r.stderr[:3000]); sys.exit(1)
r=subprocess.run(["python3","cdna_unwritten_srd_check.py",sys.argv[1]+".co"],capture_output=True,text=True)
if r.returncode: print("SRDCHECK:",r.stdout[-3000:],r.stderr[-1000:])
r=subprocess.run("llvm-size -A "+sys.argv[1]+".co | grep text",shell=True,capture_output=True,text=True); print(r.stdout.strip())
if errs: sys.exit(1)
```

```python
import sys, math
from asmlib import *
NAME="sequential_preLN__sliding_block__moe_arch_mod__prompt"
CFG=dict(wose=2, late1=1, sdef=(1,1,1,1), pt2=7, qpair2=0, nacc=8, sfirst=1, prio=0, smode='dot', sfill=(), acsl=0, casl=0, xp=(), dw3=0, wla=7, wwe=2, dgate='O1', dstart='O1', gstart='WOD', mdep=1, ddep=12, qpair=0, mpair=1, wpair=0, xnt=10, wnt=0, tpol2='', wtw='no', mtw='w3', wothr1=4, mb=(6,6), mg=('WOD','PR','PR','O1'), mpf=0, mgate='b3', hsplit=0, cpf=1, npf=(0,)*10, wogs=5, clr=0, wot=(), wtpol='', seqs=None, xpol='nt', wpol='', tpol='nt', wopol='', mpol='', cal=None, opol='', st=['start','b0|hb0','gend|hb9','E1|hE1','st|halo|clr','fl|g2|wo','fseen|h2','kv','aend','ost'], pt=7, wothr=16, wogate=1, h2sl=1, noh2=0, nowo=0, wos=(0,0,0), sched=(1,2,1,1,1,1,1,0,0,0), dbg=0, stop=99, prof=0, rot=('0123','36947580','05278052'), force_slow=0, noclr=0, pre=2, ldst=0, nomfma=0, nohello=0)
for a in sys.argv[2:]:
    k,v=a.split("="); CFG[k]=eval(v)
QB,KB,VB,KH,VH,OB=[i*0x280000 for i in range(6)]
CAND=0xF00000
PS=0xFA0000
CA=0xFE0000
ACT=0xFE1000
HB=0x1000000
PROF=0x1300000
H1=0x1280000; H2=0x1281000; EPO=0x1282000; TH=0x1283000
STP=0x1680000; STX=0x1780000
FO=0x1700000; OB2=0x1400000; FL=0x12A0000; FH=0x1740000
L_STG=0; L_KV=10240; L_WO=55296; L_MISC=157696; L_MW=0
L_CS=L_MISC
L_SA=L_MISC+512
L_SR=L_SA+1024
L_MODE=L_SR+512
L_FLG=L_MODE+64
F_G1,F_G2,F_H2,F_STG,F_SCP,F_DONE,F_WOR,F_MW=[L_FLG+4*i for i in (0,1,2,4,8,9,10,12)]
L_SWS=L_FLG+80; F_O1=L_FLG+44; F_WOD=L_FLG+64; F_PR=L_FLG+68; F_WO2=L_FLG+72; F_PS=L_FLG+76
L_KEYS=L_FLG+128
L_CA=L_KEYS+256; L_TOP=L_CA+64
L_RED=L_WO
sX,sW,sWO,sWG,sWU,sWD,sOUT,sWS,sDBG,sWR=[4+4*i for i in range(10)]
sWAVE,sG,sSLOT,sRQ,sHH,sRB,sCT,sMODE,sEP,sTAG=range(44,54)
sT=54
sLO=76
sPROF=80
p=P()
COLD=[]
CALI=lambda: 's_memtime' if CFG['cal'][1]>20000 else 's_memrealtime'
def STAMP(name,w=0):
    if CFG['cal'] and name in CFG['cal'][0].split('|'):
        p(f"{CALI()} s[{sPROF}:{sPROF+1}]")
        if w: p("s_waitcnt lgkmcnt(0)")
    i=[k for k,n in enumerate(CFG['st']) if name in n.split('|')]
    if CFG['prof'] and i:
        i=i[0]
        p(f"{'s_memrealtime' if CFG['prof']==2 else 's_memtime'} s[{sPROF+2*i}:{sPROF+2*i+1}]")
        if w: p("s_waitcnt lgkmcnt(0)")
def PROFDUMP():
    if not CFG['prof']: return
    p("s_waitcnt vmcnt(0) lgkmcnt(0)")
    p("s_mov_b64 exec, -1")
    for i in range(10): p(f"v_mov_b32 v{2+i}, s{sPROF+2*i}")
    p(f"""s_lshl_b32 s{sT}, s2, 3
    s_add_u32 s{sT}, s{sT}, s{sWAVE}
    s_lshl_b32 s{sT}, s{sT}, 6
    s_add_u32 s{sT}, s{sT}, {PROF}
    v_mov_b32 v1, 0
    s_mov_b64 exec, 1
    buffer_store_dwordx4 v[2:5], v1, s[{sWS}:{sWS+3}], s{sT} offen
    buffer_store_dwordx4 v[6:9], v1, s[{sWS}:{sWS+3}], s{sT} offen offset:16
    buffer_store_dwordx2 v[10:11], v1, s[{sWS}:{sWS+3}], s{sT} offen offset:32""")
def END():
    PROFDUMP()
    if CFG['cal']:
        lp=p.lab("cal"); ok=p.lab("calok")
        p(f"""s_waitcnt vmcnt(0) lgkmcnt(0)
        s_cmp_eq_u32 s{sPROF}, 0
        s_cbranch_scc1 {ok}
        s_mov_b32 s{sPROF+4}, 100000
        {lp}:
        s_sleep 2
        {CALI()} s[{sPROF+2}:{sPROF+3}]
        s_sub_u32 s{sPROF+4}, s{sPROF+4}, 1
        s_cbranch_scc1 {ok}
        s_waitcnt lgkmcnt(0)
        s_sub_u32 s{sPROF+2}, s{sPROF+2}, s{sPROF}
        s_cmp_lt_u32 s{sPROF+2}, {CFG['cal'][1]}
        s_cbranch_scc1 {lp}
        {ok}:""")
    p("s_endpgm")
S4=lambda r:f"s[{r}:{r+3}]"
SPIN=1<<18

def srd(lst):
    for r,n in lst: p(f"s_mov_b32 s{r+2}, {n}\ns_mov_b32 s{r+3}, 0x20000")
def prologue():
    STAMP('entry')
    p(f"""s_cmp_ge_u32 s2, 256
    s_cbranch_scc1 L_exit
    s_load_dwordx2 s[{sX}:{sX+1}], s[0:1], 0
    s_load_dwordx2 s[{sW}:{sW+1}], s[0:1], 8
    s_load_dwordx2 s[{sWS}:{sWS+1}], s[0:1], 80
    v_lshrrev_b32 v1, 6, v0
    v_and_b32 v0, 63, v0
    v_readfirstlane_b32 s{sWAVE}, v1
    s_and_b32 s{sG}, s2, 7
    s_lshr_b32 s{sSLOT}, s2, 3
    s_lshr_b32 s{sRQ}, s{sG}, 1
    s_and_b32 s{sHH}, s{sG}, 1
    s_and_b32 s{sRB}, s{sSLOT}, 3
    s_lshr_b32 s{sCT}, s{sSLOT}, 2""")
    if CFG['cal']: p(f"s_mov_b32 s{sPROF}, 0")
    if CFG['prof']:
        for i in range(1,10): p(f"s_mov_b32 s{sPROF+2*i}, 0")
    p(f"""s_cmp_lt_u32 s{sWAVE}, 4
    s_cbranch_scc1 L_comp""")
def prologue2():
    p(f"""s_mov_b32 s{sTAG}, {EPO}
    s_load_dword s{sEP}, s[{sWS}:{sWS+1}], s{sTAG}
    s_load_dwordx2 s[{sWO}:{sWO+1}], s[0:1], 16
    s_load_dwordx2 s[{sWR}:{sWR+1}], s[0:1], 32
    s_load_dwordx2 s[{sWG}:{sWG+1}], s[0:1], 40
    s_load_dwordx2 s[{sWU}:{sWU+1}], s[0:1], 48
    s_load_dwordx2 s[{sWD}:{sWD+1}], s[0:1], 56
    s_load_dwordx2 s[{sOUT}:{sOUT+1}], s[0:1], 64""")
    srd(((sWS,268435456),(sWO,819200),(sWR,1280),(sWG,1966080),(sWU,1966080),(sWD,1966080),(sOUT,2621440)))
    p(f"""s_mov_b32 s{sLO}, -1
    s_mov_b32 s{sLO+1}, 0
    s_mov_b32 s{sLO+2}, 0xfffff
    s_mov_b32 s{sLO+3}, 0xfffff""")
def mktag():
    p(f"""s_mul_i32 s{sTAG}, s{sEP}, 0x9e3779b1
    s_add_u32 s{sTAG}, s{sTAG}, 0x7f4a7c15
    s_and_b32 s{sTAG}, s{sTAG}, -16""")
def colbyte(dst, lc):
    t=sT+18
    p(f"""s_mul_i32 s{t}, s{lc}, 52
    s_lshr_b32 s{t}, s{t}, 8
    s_mul_i32 s{t+1}, s{t}, 5
    s_sub_u32 s{t+1}, s{lc}, s{t+1}
    s_mul_i32 s{t}, s{t}, 1280
    s_lshl_b32 s{t+1}, s{t+1}, 7
    s_mul_i32 s{dst}, s{sHH}, 640
    s_add_u32 s{dst}, s{dst}, s{t}
    s_add_u32 s{dst}, s{dst}, s{t+1}""")

def loader():
    CA_=sT+1; CB_=sT+2; CH=sT+3; XO=sT+4; WO_=sT+5; LB=sT+6; A=sT+7; B=sT+8; OFF=sT+9; SEQ=sT+10
    vX=2; vW=6; vt=10
    p(f"""s_sub_u32 s{HW}, s{sWAVE}, 4
    s_lshl_b32 s{A}, s{sCT}, 1
    s_add_u32 s{B}, s{A}, 1
    s_min_u32 s{B}, s{B}, 14""")
    colbyte(CA_,A); colbyte(CB_,B)
    p(f"""v_lshrrev_b32 v{vt}, 3, v0
    v_mul_u32_u24 v{vX}, 1280, v{vt}
    v_lshrrev_b32 v{vt+1}, 4, v0
    v_and_b32 v{vt+2}, 7, v0
    v_xor_b32 v{vt+2}, v{vt+2}, v{vt+1}
    v_lshl_add_u32 v{vX}, v{vt+2}, 4, v{vX}
    v_xor_b32 v{vX+1}, 64, v{vX}
    v_add_u32 v{vX+1}, {10240-1024}, v{vX+1}
    v_add_u32 v{vX+2}, {2*(10240-1024)}, v{vX}
    v_add_u32 v{vX+3}, {2*(10240-1024)}, v{vX+1}
    v_lshlrev_b32 v{vt+2}, 2, v{vt+1}
    v_and_b32 v{vt+3}, 15, v0
    v_xor_b32 v{vt+2}, v{vt+2}, v{vt+3}
    v_cmp_lt_u32 vcc, 7, v{vt+2}
    v_mov_b32 v{vt+3}, s{CA_}
    v_mov_b32 v{vt+4}, s{CB_}
    v_cndmask_b32 v{vt+3}, v{vt+3}, v{vt+4}, vcc
    v_and_b32 v{vt+2}, 7, v{vt+2}
    v_lshl_add_u32 v{vt+3}, v{vt+2}, 4, v{vt+3}
    v_mul_u32_u24 v{vW}, 3840, v{vt+1}
    v_add_u32 v{vW}, v{vW}, v{vt+3}""")
    for i in range(1,4): p(f"v_add_u32 v{vW+i}, {i*(4*3840-1024)}, v{vW}")
    ta,tc,tg=CFG['rot']
    pk=lambda t: sum(int(v)<<(4*i) for i,v in enumerate(t))
    p(f"""s_lshl_b32 s{A}, s{sRB}, 2
    s_lshr_b32 s{CH}, {pk(ta)}, s{A}
    s_and_b32 s{CH}, s{CH}, 15
    s_lshl_b32 s{A}, s{sCT}, 2
    s_lshr_b32 s{A}, {hex(pk(tc))}, s{A}
    s_and_b32 s{A}, s{A}, 15
    s_add_u32 s{CH}, s{CH}, s{A}
    s_lshl_b32 s{A}, s{sG}, 2
    s_lshr_b32 s{A}, {hex(pk(tg))}, s{A}
    s_and_b32 s{OFF}, s{A}, 15""")
    seqs=CFG['seqs']
    if seqs:
        n=len(seqs)
        p(f"""s_mul_i32 s{A}, s{CH}, {-(-2048//n)}
        s_lshr_b32 s{A}, s{A}, 11
        s_mul_i32 s{A}, s{A}, {n}
        s_sub_u32 s{CH}, s{CH}, s{A}""")
        for i,q in enumerate(seqs):
            assert sorted(q)==list("0123456789")
            if i: p(f"s_cmp_eq_u32 s{CH}, {i}\ns_cselect_b32 s{SEQ}, {hex(pk(q[:8]))}, s{SEQ}\ns_cselect_b32 s{SEQ+1}, {hex(pk(q[8:]))}, s{SEQ+1}")
            else: p(f"s_mov_b32 s{SEQ}, {hex(pk(q[:8]))}\ns_mov_b32 s{SEQ+1}, {hex(pk(q[8:]))}")
    else:
        p(f"""s_add_u32 s{CH}, s{CH}, s{OFF}
    s_mul_i32 s{A}, s{CH}, 205
    s_lshr_b32 s{A}, s{A}, 11
    s_mul_i32 s{A}, s{A}, 10
    s_sub_u32 s{CH}, s{CH}, s{A}""")
    p(f"""
    s_lshl_b32 s{A}, s{sRQ}, 2
    s_add_u32 s{A}, s{A}, s{sRB}
    s_lshl_b32 s{A}, s{A}, 2
    s_add_u32 s{A}, s{A}, s{HW}
    s_mul_i32 s{XO}, s{A}, {32*1280}
    s_mul_i32 s{WO_}, s{HW}, {16*3840}
    s_lshl_b32 s{LB}, s{HW}, 12""")
    def issue(c,fill=()):
        fill=list(fill)
        def fl(i):
            if fill and i in CFG['sfill']: p(fill.pop(0))
        slot=(c%4)*32768
        if seqs: p(f"""s_and_b32 s{CH}, s{SEQ}, 15
        s_lshr_b64 s[{SEQ}:{SEQ+1}], s[{SEQ}:{SEQ+1}], 4
        s_add_u32 s{CH}, s{CH}, s{OFF}
        s_sub_u32 s{A}, s{CH}, 10
        s_cselect_b32 s{CH}, s{CH}, s{A}""")
        p(f"""s_lshl_b32 s{A}, s{CH}, 7
        s_add_u32 s{A}, s{A}, s{XO}
        s_add_u32 m0, s{LB}, {slot}
        s_mul_i32 s{B}, s{CH}, {64*3840}""")
        for i in range(4): p(f"buffer_load_dwordx4 v{vX+i}, {S4(sX)}, s{A} offen offset:{i*1024} {CFG['xpol'] if c<CFG['xnt'] else ''} lds"); fl(i)
        p(f"""s_add_u32 m0, s{LB}, {slot+16384}
        s_add_u32 s{B}, s{B}, s{WO_}""")
        for i in range(4): p(f"buffer_load_dwordx4 v{vW+i}, {S4(sW)}, s{B} offen offset:{i*1024} {'nt' if c<CFG['wnt'] else CFG['wpol']} lds"); fl(4+i)
        if not seqs: p(f"""s_add_u32 s{CH}, s{CH}, 1
        s_cmp_eq_u32 s{CH}, 10
        s_cselect_b32 s{CH}, 0, s{CH}""")
        for x in fill: p(x)
    pre=CFG['pre']
    srd(((sX,2621440),(sW,2457600)))
    p("s_waitcnt lgkmcnt(0)")
    STAMP('i0')
    for c in range(1 if CFG['late1'] else pre):
        issue(c); STAMP('i%d'%(c+1))
        if c==0:
            prologue2()
            p(f"""v_cmp_lt_u32 vcc, 7, v0
            v_lshlrev_b32 v{vt}, 4, v0
            v_add_u32 v{vt}, {L_FLG}, v{vt}
            v_cndmask_b32 v{vt+2}, 0, -1, vcc
            v_cndmask_b32 v{vt+3}, 0, -1, vcc
            v_cndmask_b32 v{vt+4}, 0, -1, vcc
            v_cndmask_b32 v{vt+5}, 0, -1, vcc
            ds_write_b128 v{vt}, v[{vt+2}:{vt+5}]""")
            early()
    p("s_waitcnt lgkmcnt(0)")
    mktag()
    stats_setup()
    p(f"s_cmp_ge_u32 s{HW}, 2\ns_cbranch_scc1 L_helperB")
    def steps(hook):
        global OPS
        OPS=[c for c in range(pre) for _ in range(8)]
        issued=pre
        if CFG['late1']:
            STAMP('i1s')
            for c in range(1,pre): issue(c)
            STAMP('i1e')
        for c in range(7):
            sd=CFG['sdef']
            if c==0 and -1 in sd:
                p(f"s_waitcnt vmcnt({8*pre-4})")
                STAMP('x0')
                fill=stats(0)
                for k in range(4):
                    if sd[k]==-1: p(fill[k])
                if max(sd)==-1: stats_red()
            vmwait(c)
            p("s_barrier")
            STAMP('ld%d'%c)
            if c==0 and -1 not in sd: fill=stats(0)
            for _ in range(CFG['sched'][c]):
                assert issued<min(10,c+4); issue(issued); OPS+=[issued]*8; issued+=1
            if c==0: p("s_waitcnt lgkmcnt(0)")
            for k in range(4):
                if sd[k]==c: p(fill[k])
            if c==max(0,max(sd)):
                if max(sd)>=0: stats_red()
                stats_pub(); OPS.append('stw')
            if c==6: stats_get()
            hook(c)
        assert issued==10
    return steps
aS=44; dS=64; sacc=60; sone=43; sDBL=sDBG; sSTP=sDBG+1
def stats_setup():
    vt=10
    tc=[int(x) for x in CFG['rot'][1]]
    assert not CFG['seqs'] and sorted(tc+[(tc[7]+1)%10,(tc[7]+2)%10])==list(range(10))
    p(f"""s_lshl_b32 s{sT+16}, s{HW}, 12
    v_bfe_u32 v{vt}, v0, 1, 3
    v_lshrrev_b32 v{vt+1}, 5, v0
    v_lshlrev_b32 v{vt+1}, 2, v{vt+1}
    v_xor_b32 v{vt}, v{vt}, v{vt+1}
    v_lshlrev_b32 v{vt}, 4, v{vt}
    v_and_b32 v{vt+1}, 31, v0
    v_lshl_add_u32 v{vt}, v{vt+1}, 7, v{vt}
    v_add_u32 v{aS}, s{sT+16}, v{vt}
    v_mov_b32 v{sone}, 0x3f803f80
    s_lshl_b32 s{sSTP}, s{sG}, 2
    s_add_u32 s{sSTP}, s{sSTP}, s{sRB}
    s_lshl_b32 s{sSTP}, s{sSTP}, 14
    s_lshl_b32 s{sT+16}, s{HW}, 9
    s_add_u32 s{sSTP}, s{sSTP}, s{sT+16}
    s_add_u32 s{sSTP}, s{sSTP}, {STP}
    v_lshrrev_b32 v{vt}, 5, v0
    v_lshlrev_b32 v{vt}, 11, v{vt}
    v_lshl_add_u32 v{aS+4}, v{vt+1}, 4, v{vt}
    s_lshl_b32 s{sT+16}, s{sCT}, 11
    s_cmp_eq_u32 s{sCT}, 7
    s_cselect_b32 s{sT+16}, {STX-STP}, s{sT+16}
    v_lshl_add_u32 v{aS+5}, v{vt+1}, 4, s{sT+16}""")
    for i in range(1,4): p(f"v_xor_b32 v{aS+i}, {16*i}, v{aS}")
    for i in range(4): p(f"v_mov_b32 v{sacc+i}, 0")
    if CFG['smode'] in ('dotx','dotc'):
        for i in range(2*CFG['nacc']): p(f"v_mov_b32 v{102+i}, 0")
def stats(c):
    if 'nostats' in CFG['xp']: return []
    for i in range(4): p(f"ds_read_b128 {vr(dS+4*i,4)}, v{aS+i} offset:{c*32768}")
    L=[]
    for i in range(4):
        g=f"s_waitcnt lgkmcnt({3-i})"
        for j in range(4):
            r=dS+4*i+j
            u=80+2*(j&1)
            if CFG['smode']=='dotx':
                a=102+2*((4*i+j)%CFG['nacc']); g+=f"\nv_dot2_f32_bf16 v{a}, v{r}, v{sone}, v{a}\nv_dot2_f32_bf16 v{a+1}, v{r}, v{r}, v{a+1}"
            elif CFG['smode']=='dotc':
                a=102+2*((4*i+j)%CFG['nacc']); g+=f"\nv_dot2c_f32_bf16 v{a}, v{r}, v{sone}\nv_dot2c_f32_bf16 v{a+1}, v{r}, v{r}"
            elif CFG['smode']=='dot': g+=f"\nv_dot2_f32_bf16 v{sacc+(j&1)}, v{r}, v{sone}, v{sacc+(j&1)}\nv_dot2_f32_bf16 v{sacc+2+(j&1)}, v{r}, v{r}, v{sacc+2+(j&1)}"
            elif CFG['smode']=='valu': g+=f"\nv_lshlrev_b32 v{u}, 16, v{r}\nv_and_b32 v{u+1}, 0xffff0000, v{r}\nv_add_f32 v{sacc}, v{sacc}, v{u}\nv_fmac_f32 v{sacc+2}, v{u}, v{u}\nv_add_f32 v{sacc+1}, v{sacc+1}, v{u+1}\nv_fmac_f32 v{sacc+3}, v{u+1}, v{u+1}"
            elif CFG['smode']=='pk': g+=f"\nv_lshlrev_b32 v{u}, 16, v{r}\nv_and_b32 v{u+1}, 0xffff0000, v{r}\nv_pk_add_f32 v[{sacc}:{sacc+1}], v[{sacc}:{sacc+1}], v[{u}:{u+1}]\nv_pk_fma_f32 v[{sacc+2}:{sacc+3}], v[{u}:{u+1}], v[{u}:{u+1}], v[{sacc+2}:{sacc+3}]"
        L.append(g)
    return L
def stats_red():
    t=sacc
    p(f"""s_nop 1
    v_add_f32 v{t}, v{t}, v{t+1}
    v_add_f32 v{t+1}, v{t+2}, v{t+3}
    v_mov_b32 v{t+2}, s{sTAG}
    s_nop 0
    v_permlane32_swap_b32 v{t}, v{t+1}
    s_nop 0
    v_add_f32 v{t}, v{t}, v{t+1}
    v_mov_b32 v{t+1}, v{t}
    s_nop 1
    v_permlane32_swap_b32 v{t}, v{t+1}""")
def stats_pub():
    t=sacc
    p(f"""s_mov_b64 exec, s[{sLO}:{sLO+1}]
    buffer_store_dwordx4 {vr(t,4)}, v{aS+5}, {S4(sWS)}, s{sSTP} offen sc1
    s_mov_b64 exec, -1""")
def stats_ld():
    return "\n".join(f"s_add_u32 s{sSTP+1}, s{sSTP}, {4096*i}\nbuffer_load_dwordx4 {vr(dS+4*i,4)}, v{aS+4}, {S4(sWS)}, s{sSTP+1} offen sc1" for i in range(4))
def stats_get():
    p(stats_ld()); OPS.extend(['stp']*4)
def stats_fin(t,B):
    vmwait('stp')
    lp=p.lab("stl"); ok=p.lab("stok"); rt=p.lab("strt")
    p(f"""s_mov_b32 s{B}, {SPIN}
    {lp}:
    v_xor_b32 v{t}, v{dS+2}, v{dS+6}
    v_xor_b32 v{t+1}, v{dS+10}, v{dS+14}
    v_xor_b32 v{t+2}, s{sTAG}, v{dS+2}
    v_xor_b32 v{t+3}, s{sTAG}, v{dS+10}
    v_or3_b32 v{t}, v{t}, v{t+1}, v{t+2}
    v_or_b32 v{t}, v{t}, v{t+3}
    v_cmp_ne_u32 vcc, 0, v{t}
    v_add_f32 v{t+1}, v{dS}, v{dS+4}
    v_add_f32 v{t+2}, v{dS+1}, v{dS+5}
    s_cbranch_vccnz {rt}
    {ok}:""")
    n0=len(p.L)
    p(f"{rt}:"); spin(B,lp,ok,1); p(stats_ld()); p(f"s_waitcnt vmcnt(0)\ns_branch {lp}")
    COLD.append("\n".join(p.L[n0:])); del p.L[n0:]
    p(f"""v_add_f32 v{t+3}, v{dS+8}, v{dS+12}
    v_add_f32 v{t+4}, v{dS+9}, v{dS+13}
    v_add_f32 v{t+1}, v{t+1}, v{t+3}
    v_add_f32 v{t+2}, v{t+2}, v{t+4}
    s_nop 1
    v_permlane32_swap_b32 v{t+1}, v{t+2}
    s_nop 0
    v_add_f32 v{t+1}, v{t+1}, v{t+2}
    v_mul_f32 v{t+1}, {1/640!r}, v{t+1}
    v_mov_b32 v{t+2}, v{t+1}
    s_nop 1
    v_permlane32_swap_b32 v{t+1}, v{t+2}
    s_nop 0
    v_fma_f32 v{t+2}, -v{t+1}, v{t+1}, v{t+2}
    v_max_f32 v{t+2}, 0, v{t+2}""")
    bf16r(t+2,t+2)
    p(f"v_add_f32 v{t+2}, 0x3727c5ac, v{t+2}")
    bf16r(t+2,t+2)
    p(f"""v_sqrt_f32 v{t+2}, v{t+2}
    v_xor_b32 v{t+1}, 0x80000000, v{t+1}""")
    bf16r(t+2,t+2)
    p(f"""v_rcp_f32 v{t+5}, v{t+2}
    v_cvt_pk_bf16_f32 v{t+4}, v{t+1}, v{t+1}
    v_and_b32 v{t+3}, 31, v0
    s_lshl_b32 s{B}, s{HW}, 8
    s_add_u32 s{B}, s{B}, {L_SA}
    v_lshl_add_u32 v{t+1}, v{t+3}, 3, s{B}
    s_lshl_b32 s{B}, s{HW}, 7
    s_add_u32 s{B}, s{B}, {L_SR}
    v_lshl_add_u32 v{t+2}, v{t+3}, 2, s{B}
    ds_write_b64 v{t+1}, v[{t+4}:{t+5}]
    ds_write_b32 v{t+2}, v{t+5}""")
vPT=21; vDUM=39
HS=sT+12; HA=28
def early():
    A=sT+20; B=sT+21; vt=10
    wave_ids(HW,sT+16,sT+17,sT+18,sT+19)
    store_addr(sT+16,sT+18,sT+19,HS,HS+1,HS+2,HS+3,HA,A,B,t=vt)
    p(f"""s_add_u32 s{HS}, s{HS}, {KH-KB}
    s_add_u32 s{HS+1}, s{HS+1}, {KH-KB}
    s_sub_u32 s{A}, s{HS+3}, {FL}
    s_and_b32 s{B}, s{A}, 127
    s_sub_u32 s{A}, s{A}, s{B}
    s_lshl_b32 s{A}, s{A}, 3
    s_lshl_b32 s{B}, s{B}, 5
    s_add_u32 s{A}, s{A}, s{B}
    s_add_u32 s{HS+3}, s{A}, {FH}""")
    p(f"""s_lshl_b32 s{A}, s{sSLOT}, 2
    s_add_u32 s{A}, s{A}, s{HW}
    s_mul_i32 s{A}, s{A}, 60
    v_min_u32 v{vt}, 59, v0
    v_add_u32 v{vt}, s{A}, v{vt}
    v_mul_u32_u24 v{vt+1}, 6554, v{vt}
    v_lshrrev_b32 v{vt+1}, 20, v{vt+1}
    v_mul_u32_u24 v{vt+2}, 160, v{vt+1}
    v_sub_u32 v{vt}, v{vt}, v{vt+2}
    v_lshlrev_b32 v{vt}, 7, v{vt}
    v_cmp_gt_u32 vcc, 32, v{vt+1}
    v_and_b32 v{vt+2}, 1, v{vt+1}
    v_mul_u32_u24 v{vt+2}, 20480, v{vt+2}
    v_bfe_u32 v{vt+3}, v{vt+1}, 1, 3
    v_mul_u32_u24 v{vt+3}, 163840, v{vt+3}
    v_add_u32 v{vt+2}, v{vt+2}, v{vt+3}
    v_lshrrev_b32 v{vt+3}, 4, v{vt+1}
    v_mul_u32_u24 v{vt+3}, {KB}, v{vt+3}
    s_mul_i32 s{A}, s{sRQ}, 40960
    v_add3_u32 v{vt+2}, v{vt+2}, v{vt+3}, s{A}
    v_and_b32 v{vt+3}, 15, v{vt+1}
    v_mul_u32_u24 v{vt+3}, 81920, v{vt+3}
    s_mul_i32 s{A}, s{sRQ}, 20480
    s_add_u32 s{A}, s{A}, {VB}
    v_add_u32 v{vt+3}, s{A}, v{vt+3}
    v_cndmask_b32 v{vt+2}, v{vt+3}, v{vt+2}, vcc
    s_mul_i32 s{A}, s{sHH}, {8*163840}
    v_add3_u32 v{vPT}, v{vt}, v{vt+2}, s{A}
""")
    nsm=sum(CFG['npf']); per=(100-5*nsm)//2
    if per>0:
        p(f"""s_mul_i32 s{A}, s{sG}, 5
        s_lshr_b32 s{A}, s{A}, 1
        s_mul_i32 s{A}, s{A}, 5
        s_lshr_b32 s{B}, s{HW}, 1
        s_mul_i32 s{B}, s{B}, {per}
        s_add_u32 s{A}, s{A}, s{B}
        s_add_u32 s{A}, s{A}, {5*nsm}
        v_min_u32 v{vt}, {per-1}, v0
        v_add_u32 v{vt}, s{A}, v{vt}
        v_subrev_u32 v{vt+1}, 100, v{vt}
        v_min_u32 v{vt}, v{vt}, v{vt+1}
        s_lshl_b32 s{A}, s{sSLOT}, 1
        s_and_b32 s{B}, s{HW}, 1
        s_add_u32 s{A}, s{A}, s{B}
        s_mul_i32 s{A}, s{A}, 12800
        v_lshl_add_u32 v{vTW}, v{vt}, 7, s{A}""")
    ge=p.lab("mtge"); jn=p.lab("mtj")
    p(f"""s_cmp_ge_u32 s{HW}, 2
    s_cbranch_scc1 {ge}
    v_min_u32 v{vt}, 59, v0
    v_mul_u32_u24 v{vt+1}, 86, v{vt}
    v_lshrrev_b32 v{vt+1}, 8, v{vt+1}
    v_mul_u32_u24 v{vt+1}, {3072-384}, v{vt+1}
    v_lshl_add_u32 v{vt}, v{vt}, 7, v{vt+1}
    s_mul_i32 s{A}, s{sSLOT}, {20*3072}
    s_mul_i32 s{B}, s{sG}, 384
    s_branch {jn}
    {ge}:
    {jn}:
    s_add_u32 s{A}, s{A}, s{B}
    v_add_u32 v{vTM}, s{A}, v{vt}
    s_sub_u32 s{A}, s{sSLOT}, {0 if CFG['dw3'] else 17}
    s_lshl_b32 s{A}, s{A}, {1 if CFG['dw3'] else 2}
    s_add_u32 s{A}, s{A}, s{HW}
    s_mul_i32 s{A}, s{A}, {24 if CFG['dw3'] else 26}
    v_min_u32 v{vt}, {47 if CFG['dw3'] else 51}, v0
    v_lshrrev_b32 v{vt+1}, 1, v{vt}
    v_add_u32 v{vt+1}, s{A}, v{vt+1}
    v_min_u32 v{vt+1}, 1535, v{vt+1}
    v_mul_u32_u24 v{vt+1}, 1280, v{vt+1}
    v_and_b32 v{vt}, 1, v{vt}
    v_lshl_add_u32 v{vt}, v{vt}, 7, v{vt+1}
    s_mul_i32 s{B}, s{sG}, 160
    s_and_b32 s{B}, s{B}, -128
    v_add_u32 v{vTD}, s{B}, v{vt}""")
vTD=25
vTW=22; vTM=24
def touch(va,srd_,pair,pol=''):
    if pair:
        p(f"buffer_load_dword v{vDUM}, v{va}, {S4(srd_)}, 0 offen nt\nbuffer_load_dword v{vDUM}, v{va}, {S4(srd_)}, 0 offen offset:64")
        return 2
    p(f"buffer_load_dword v{vDUM}, v{va}, {S4(srd_)}, 0 offen {pol}")
    return 1
def wtouch(win,isB):
    n=0
    if CFG['wtw']==win and 100-5*sum(CFG['npf'])>0:
        n+=touch(vTW,sWO,CFG['wpair'])
    if CFG['mtw']==win:
        if not isB:
            u=p.lab("tu"); j=p.lab("tj")
            p(f"s_cmp_eq_u32 s{HW}, 0\ns_cbranch_scc0 {u}")
            touch(vTM,sWG,CFG['mpair'])
            p(f"s_branch {j}\n{u}:")
            n+=touch(vTM,sWU,CFG['mpair'])
            p(f"{j}:")
    return n
def qkv_touch():
    if CFG['pt']==99: return
    OPS.extend(['pt']*touch(vPT,sWS,CFG['qpair'],CFG['tpol']))
vH=16
OPS=[]
def vmwait(*tags):
    last=max(i for i,t in enumerate(OPS) if t in tags)
    n=len(OPS)-1-last; assert n<64
    p(f"s_waitcnt vmcnt({n})")
HW=sT
def spin(cnt,lp,ok,sleep=0):
    p(f"s_sub_u32 s{cnt}, s{cnt}, 1\ns_cbranch_scc1 {ok}")
    if sleep: p(f"s_sleep {sleep}")
def lds_wait(addr_v,tmp,cnt,cmp,val,sleep=1):
    lp=p.lab("lw"); ok=p.lab("lwok")
    p(f"""s_mov_b32 s{cnt}, {SPIN*4}
    {lp}:
    ds_read_b32 v{tmp}, v{addr_v}
    s_waitcnt lgkmcnt(0)
    v_cmp_{cmp}_u32 vcc, {val}, v{tmp}
    s_nop 0
    s_cbranch_vccz {ok}""")
    spin(cnt,lp,ok,sleep)
    p(f"s_branch {lp}\n{ok}:")
sHL,sHF,sHO,sPH,sHD,sT0=range(sT+1,sT+7)
def att_ids():
    p(f"""s_lshr_b32 s{sHL}, s{sSLOT}, 1
    s_and_b32 s{sHF}, s{sSLOT}, 1
    s_and_b32 s{sHO}, s{sHL}, 1
    s_lshr_b32 s{sPH}, s{sHL}, 1
    s_lshl_b32 s{sHD}, s{sHH}, 3
    s_add_u32 s{sPH}, s{sPH}, s{sHD}
    s_lshl_b32 s{sHD}, s{sHH}, 4
    s_add_u32 s{sHD}, s{sHD}, s{sHL}
    s_lshl_b32 s{sT0}, s{sRQ}, 1
    s_add_u32 s{sT0}, s{sT0}, s{sHF}
    s_lshl_b32 s{sT0}, s{sT0}, 3""")
def flag_addr(vd,vt,withq,A,B,C):
    p(f"""s_lshr_b32 s{A}, s{sHL}, 1
    s_mul_i32 s{A}, s{A}, 5
    s_lshl_b32 s{B}, s{sHO}, 1
    s_add_u32 s{A}, s{A}, s{B}
    s_add_u32 s{B}, s{A}, 2
    s_lshr_b32 s{A}, s{A}, 3
    s_lshr_b32 s{B}, s{B}, 3
    s_lshl_b32 s{B}, s{B}, 4
    s_or_b32 s{A}, s{A}, s{B}
    s_add_u32 s{B}, s{A}, 0x55
    s_lshl_b32 s{C}, s{B}, 8
    s_or_b32 s{A}, s{C}, s{A if withq else B}
    s_mul_i32 s{B}, s{sHL}, 20
    s_add_u32 s{C}, s{B}, 19
    s_lshr_b32 s{B}, s{B}, 6
    s_lshr_b32 s{C}, s{C}, 6
    s_lshl_b32 s{C}, s{C}, 4
    s_or_b32 s{B}, s{B}, s{C}
    s_add_u32 s{B}, s{B}, 0xaa
    s_lshl_b32 s{B}, s{B}, 16
    s_or_b32 s{A}, s{A}, s{B}
    v_and_b32 v{vt}, 60, v0
    v_min_u32 v{vt}, 20, v{vt}
    v_bfe_u32 v{vt}, s{A}, v{vt}, 4
    v_and_b32 v{vd}, 3, v0
    v_lshlrev_b32 v{vd}, 2, v{vd}
    v_lshl_add_u32 v{vd}, v{vt}, 7, v{vd}""")
def flag_poll(va,vt,soff,cnt,first=True,sleep=0):
    lp=p.lab("fp"); ok=p.lab("fpok");
    p(f"s_mov_b32 s{cnt}, {SPIN}")
    if not first:
        md=p.lab("fpm"); p(f"s_branch {md}")
    p(f"""{lp}:
    buffer_load_dword v{vt}, v{va}, {S4(sWS)}, s{soff} offen sc1""")
    if not first: p(f"{md}:")
    p(f"""s_waitcnt vmcnt(0)
    v_cmp_ne_u32 vcc, s{sTAG}, v{vt}
    s_nop 0
    s_cbranch_vccz {ok}""")
    spin(cnt,lp,ok,sleep)
    p(f"s_branch {lp}\n{ok}:")
def kv_dma(aLin,aTl,sK,sV,sL,A,B):
    p(f"""s_mul_i32 s{A}, s{sHO}, 1536
    s_add_u32 s{A}, s{A}, s{sK}
    s_mov_b32 m0, s{sL}
    s_add_u32 s{B}, s{A}, 1536
    buffer_load_dwordx4 v{aLin}, {S4(sWS)}, s{A} offen sc1 lds
    buffer_load_dwordx4 v{aLin}, {S4(sWS)}, s{B} offen offset:1024 sc1 lds
    s_sub_u32 s{A}, s{sK}, 2048
    s_sub_u32 s{B}, s{sV}, 3072
    buffer_load_dwordx4 v{aTl}, {S4(sWS)}, s{A} offen offset:2048 sc1 lds
    buffer_load_dwordx4 v{aLin}, {S4(sWS)}, s{B} offen offset:3072 sc1 lds
    s_add_u32 m0, s{sL}, 4096
    s_add_u32 s{B}, s{sV}, 1024
    buffer_load_dwordx4 v{aLin}, {S4(sWS)}, s{B} offen sc1 lds
    s_mov_b64 exec, s[{sLO}:{sLO+1}]
    buffer_load_dwordx4 v{aLin}, {S4(sWS)}, s{B} offen offset:1024 sc1 lds
    s_mov_b64 exec, -1""")
def kv_addr(aLin,aTl,t):
    p(f"""v_lshlrev_b32 v{aLin}, 4, v0
    v_lshrrev_b32 v{t}, 5, v0
    v_mul_u32_u24 v{t}, {2560-512}, v{t}
    v_add3_u32 v{aTl}, v{aLin}, v{t}, s{sK1024}""")
sK1024=sT+21

def halo_copy(aLin,vt,D,A,B,isB):
    sk=p.lab("nohalo"); s2_=p.lab("nohf")
    w2=CFG['wtw'][:2]=='w2' or CFG['mtw'][:2]=='w2'
    p(f"""v_mov_b32 v{vt+2}, {F_SCP}
    v_mov_b32 v{vt+3}, 1
    s_lshl_b32 s{B}, s{HW}, 2
    s_add_u32 s{B}, s{B}, {F_STG}
    v_mov_b32 v{vt}, s{B}
    s_cmp_eq_u32 s{HS+2}, 0
    s_cbranch_scc1 {sk}
    s_lshl_b32 s{A}, s{HW}, 13
    v_add_u32 v{vt+1}, s{A}, v{aLin}""")
    for xb in range(2):
        if CFG['hsplit'] or xb==0: lds_wait(vt,vt+5,B,'gt',(xb+1) if CFG['hsplit'] else 2,0)
        STAMP('hs%d'%xb)
        for i in range(4*xb,4*xb+4): p(f"ds_read_b128 {vr(D+4*i,4)}, v{vt+1} offset:{L_STG+i*1024}")
        for i in range(4*xb,4*xb+4):
            p(f"s_waitcnt lgkmcnt({4*xb+3-i})\nbuffer_store_dwordx4 {vr(D+4*i,4)}, v{HA+(i&3)}, {S4(sWS)}, s{HS+(i>>2)} offen sc1")
    n=wtouch('w2',isB)
    p(f"""s_mov_b64 exec, 1
    ds_add_u32 v{vt+2}, v{vt+3}
    v_mov_b32 v{vt}, 0
    v_mov_b32 v{vt+1}, s{sTAG}""")
    STAMP('hi')
    p(f"""s_waitcnt vmcnt({n})
    buffer_store_dword v{vt+1}, v{vt}, {S4(sWS)}, s{HS+3} offen sc1
    s_branch {s2_}
    {sk}:""")
    if w2:
        lds_wait(vt,vt+5,B,'gt',2,0)
        wtouch('w2',isB)
    p(f"""s_mov_b64 exec, 1
    ds_add_u32 v{vt+2}, v{vt+3}
    {s2_}:
    s_mov_b64 exec, -1""")
    STAMP('halo')
def helperA(steps):
    A=sT+7; B=sT+8; vt=10
    def hook(c):
        if c==CFG['pt']:
            qkv_touch(); OPS.extend(['pt']*wtouch('w1',0))
    steps(hook)
    for c in (7,8,9):
        vmwait(c); p("s_barrier"); STAMP('ld%d'%c)
        if c==9: STAMP('hb9')
        hook(c)
    stats_fin(vt,B)
    p("s_barrier\ns_waitcnt lgkmcnt(0)\ns_barrier")
    STAMP('hE1')
    att_ids()
    aLin=6; aTl=7; aF=8; D=40
    p(f"s_mov_b32 s{sK1024}, 1024")
    kv_addr(aLin,aTl,vt)
    flag_addr(aF,vt,0,A,B,sT+17)
    halo_copy(aLin,vt,D,A,B,0)
    p(f"v_mov_b32 v{vt}, {F_SCP}\nv_mov_b32 v{vt+1}, 1")
    if 'w2b' in (CFG['wtw'],CFG['mtw']):
        lds_wait(vt,vt+5,sT+17,'gt',4,1); wtouch('w2b',0)
    sF=sT+9; sK=sT+10; sV=sT+11; sL=sT+16; C=sT+17
    dn=p.lab("g2done")
    p(f"""s_cmp_eq_u32 s{sT0}, 0
    s_cbranch_scc1 {dn}
    v_and_b32 v{vt+2}, 127, v{aF}
    v_sub_u32 v{vt+3}, v{aF}, v{vt+2}
    v_lshlrev_b32 v{vt+3}, 3, v{vt+3}
    v_lshl_add_u32 v{vt+2}, v{vt+2}, 5, v{vt+3}
    s_cmp_eq_u32 s{sHF}, 0
    s_cselect_b64 vcc, -1, 0
    s_cselect_b32 s{A}, {FH-2*16384+512-FL}, 0
    s_cselect_b32 s{B}, {KH-KB}, 0
    s_cselect_b32 s{sF}, 14, 11
    v_cndmask_b32 v{aF}, v{aF}, v{vt+2}, vcc
    s_lshl_b32 s{sF}, s{sG}, s{sF}
    s_add_u32 s{sF}, s{sF}, s{A}
    s_add_u32 s{sF}, s{sF}, {FL}
    s_lshl_b32 s{A}, s{HW}, 2
    s_sub_u32 s{A}, s{sT0}, s{A}
    s_sub_u32 s{A}, s{A}, 2
    s_mul_i32 s{sK}, s{A}, 2560
    s_mul_i32 s{sV}, s{A}, 1280
    s_mul_i32 s{A}, s{sPH}, {64*2560}
    s_add_u32 s{sK}, s{sK}, s{A}
    s_add_u32 s{sK}, s{sK}, s{B}
    s_add_u32 s{sK}, s{sK}, {KB}
    s_mul_i32 s{A}, s{sHD}, 81920
    s_add_u32 s{sV}, s{sV}, s{A}
    s_add_u32 s{sV}, s{sV}, s{B}
    s_add_u32 s{sV}, s{sV}, {VB}
    s_mul_i32 s{sL}, s{HW}, {-2*5632}
    s_add_u32 s{sL}, s{sL}, {L_KV+3*5632}""")
    lds_wait(vt,vt+5,C,'gt',4,1)
    flag_poll(aF,vt+5,sF,C,sleep=1)
    STAMP('hf')
    kv_dma(aLin,aTl,sK,sV,sL,A,B)
    p(f"""s_sub_u32 s{sK}, s{sK}, 5120
    s_sub_u32 s{sV}, s{sV}, 2560
    s_sub_u32 s{sL}, s{sL}, 5632""")
    kv_dma(aLin,aTl,sK,sV,sL,A,B)
    p(f"""s_waitcnt vmcnt(0)
    {dn}:
    v_mov_b32 v{vt}, {F_G2}
    s_mov_b64 exec, 1
    ds_add_u32 v{vt}, v{vt+1}
    s_mov_b64 exec, -1""")
    STAMP('g2')
    if 'w3' in (CFG['wtw'],CFG['mtw']):
        p(f"v_mov_b32 v{vt}, {F_G1}")
        lds_wait(vt,vt+5,C,'gt',4,1)
        wtouch('w3',0)
        if CFG['dw3']: touch(vTD,sWD,CFG['mpair'])
        STAMP('mt')
        if CFG['prof'] and any('mt2' in x for x in CFG['st']): p("s_waitcnt vmcnt(0)"); STAMP('mt2')

def tr_addr(a0,t):
    tab=[[0,8],[4,12],[16,36],[20,28],[24,32]]
    pk=[sum((tab[u][rd]//4)<<(4*u) for u in range(5)) for rd in range(2)]
    A=sT+7; B=sT+8
    p(f"""s_mov_b32 s{A}, {pk[0]}
    s_mov_b32 s{B}, {pk[1]}
    v_bfe_u32 v{t}, v0, 2, 2
    v_mul_u32_u24 v{t}, 160, v{t}
    v_and_b32 v{t+1}, 3, v0
    v_mad_u32_u24 v{t}, v{t+1}, 40, v{t}
    v_lshrrev_b32 v{t+1}, 4, v0""")
    for s_ in range(5):
        p(f"""v_add_u32 v{t+2}, {4*s_}, v{t+1}
        v_mul_u32_u24 v{t+4}, 52, v{t+2}
        v_lshrrev_b32 v{t+4}, 8, v{t+4}
        v_mul_u32_u24 v{t+5}, 5, v{t+4}
        v_sub_u32 v{t+2}, v{t+2}, v{t+5}
        v_lshlrev_b32 v{t+2}, 2, v{t+2}
        v_mul_u32_u24 v{t+4}, 10, v{t+4}""")
        for rd in range(2):
            p(f"""v_bfe_u32 v{t+3}, s{(A,B)[rd]}, v{t+2}, 4
            v_add_u32 v{t+3}, v{t+3}, v{t+4}
            v_mul_u32_u24 v{t+3}, 640, v{t+3}
            v_add_u32 v{a0+2*s_+rd}, v{t+3}, v{t}""")
sBLK,sJ=sT+9,sT+10
def wo_ids():
    p(f"""s_lshr_b32 s{sBLK}, s{sSLOT}, 3
    s_lshl_b32 s{sJ}, s{sG}, 2
    s_add_u32 s{sBLK}, s{sBLK}, s{sJ}
    s_and_b32 s{sJ}, s{sSLOT}, 7""")
def clr_ids(A,B,C,D_):
    p(f"""s_lshr_b32 s{C}, s{sSLOT}, 3
    s_lshl_b32 s{B}, s{sG}, 2
    s_add_u32 s{C}, s{C}, s{B}
    s_lshl_b32 s{C}, s{C}, 3
    s_and_b32 s{B}, s{sSLOT}, 7
    s_add_u32 s{D_}, s{C}, s{B}
    s_lshr_b32 s{A}, s{D_}, 1
    s_mul_i32 s{A}, s{A}, 20480
    s_and_b32 s{B}, s{B}, 1
    s_mul_i32 s{B}, s{B}, 5120
    s_add_u32 s{A}, s{A}, s{B}
    s_add_u32 s{A}, s{A}, {OB}
    s_mul_i32 s{B}, s{sHH}, 10240
    s_add_u32 s{C}, s{A}, 10240
    s_add_u32 s{A}, s{A}, s{B}
    s_sub_u32 s{C}, s{C}, s{B}
    s_lshl_b32 s{D_}, s{D_}, 10
    s_add_u32 s{D_}, s{D_}, {PS}""")
def clears(part):
    A=sT+13; B=sT+14; C=sT+15; D_=sT+16; D=8; aL=7
    if part==0:
        clr_ids(A,B,C,D_)
        p(f"v_lshlrev_b32 v{aL}, 4, v0")
        for r in range(4): p(f"v_mov_b32 v{D+r}, -1")
        return
    st4=lambda so,off,sc: f"buffer_store_dwordx4 v[{D}:{D+3}], v{aL}, {S4(sWS)}, s{so} offen offset:{off} {sc}"
    w2=p.lab("clw2"); w3=p.lab("clw3"); dn=p.lab("cldn")
    p(f"""s_cmp_ge_u32 s{sWAVE}, 2
    s_cbranch_scc1 {w2}
    s_mul_i32 s{B}, s{sWAVE}, 2560
    s_add_u32 s{A}, s{A}, s{B}""")
    for o in (0,1024,1536): p(st4(A,o,""))
    p(f"""s_branch {dn}
    {w2}:
    s_cmp_eq_u32 s{sWAVE}, 3
    s_cbranch_scc1 {w3}
    s_mul_i32 s{C}, s2, 2560
    s_add_u32 s{C}, s{C}, {CAND}""")
    for o in (0,1024,1536): p(st4(C,o,"sc1"))
    p(f"""s_branch {dn}
    {w3}:
    s_cmp_ge_u32 s2, 24
    s_cbranch_scc1 {dn}
    s_lshl_b32 s{C}, s2, 10
    s_add_u32 s{C}, s{C}, {ACT}""")
    p(st4(C,0,"sc1"))
    p(f"{dn}:")
def code_pf():
    A=sT+18
    p(f"""s_getpc_b64 s[{A}:{A+1}]
    L_pc:
    s_sub_u32 s{A}, s{A}, L_pc-{NAME}_kernel
    s_subb_u32 s{A+1}, s{A+1}, 0
    s_lshl_b32 s{A+2}, s{sSLOT}, 2
    s_add_u32 s{A+2}, s{A+2}, s{sWAVE}
    s_mul_i32 s{A+2}, s{A+2}, 384
    s_min_u32 s{A+2}, s{A+2}, (L_exit-{NAME}_kernel-384)&0xffffff80""")
    for i in range(3): p(f"s_load_dwordx2 s[100:101], s[{A}:{A+1}], s{A+2} offset:{i*128+60}")
def wave_sum(x,t):
    dp="row_mask:0xf bank_mask:0xf"
    for c in ("quad_perm:[1,0,3,2]","quad_perm:[2,3,0,1]","row_half_mirror","row_mirror"):
        p(f"s_nop 1\nv_add_f32_dpp v{x}, v{x}, v{x} {c} {dp}")
    for sw in (16,32):
        p(f"""v_mov_b32 v{t}, v{x}
        s_nop 1
        v_permlane{sw}_swap_b32 v{x}, v{t}
        s_nop 0
        v_add_f32 v{x}, v{x}, v{t}""")
sPF=sT+16
def pf_group(n=5):
    for i in range(n): p(f"s_load_dwordx2 s[100:101], s[{sWO}:{sWO+1}], s{sPF} offset:{i*128+60}")
    p(f"""s_add_u32 s{sPF}, s{sPF}, {n*128}
    s_sub_u32 s{sPF+2}, s{sPF+2}, 1
    s_add_u32 s{sPF+3}, s{sPF+1}, 12800
    s_cmp_eq_u32 s{sPF}, s{sPF+3}
    s_cselect_b32 s{sPF}, s{sPF+1}, s{sPF}""")
def helperB(steps):
    A=sT+7; B=sT+8; vt=2; aD=140; aT=146; aLin=12; D=40; WRr=32
    sO=sT+1; sL=sT+2; sL0=sT+3; sL1=sT+4; C=sT+5
    p("L_helperB:")
    vM=23; x=10; a=sT+16
    clr_ids(a,a+1,a+2,a+3)
    p(f"""s_mul_i32 s{a+1}, s{HW}, 25
    s_sub_u32 s{a+1}, s{a+1}, 50
    v_min_u32 v{x}, 24, v0
    v_add_u32 v{x}, s{a+1}, v{x}
    v_min_u32 v{x}, 48, v{x}
    s_sub_u32 s{a+3}, s{a+3}, {40*128}
    s_and_b32 s{a+1}, s{sSLOT}, 15
    s_lshl_b32 s{a+2}, s{sG}, 4
    s_add_u32 s{a+1}, s{a+1}, s{a+2}
    s_lshl_b32 s{a+1}, s{a+1}, 7
    s_add_u32 s{a+1}, s{a+1}, {FL-48*128}
    v_mov_b32 v{x+1}, s{a}
    v_mov_b32 v{x+2}, s{a+3}
    v_cmp_le_u32 vcc, 40, v{x}
    v_mov_b32 v{x+3}, s{a+1}
    s_mul_i32 s{a+1}, s{sSLOT}, {200*128}
    v_cndmask_b32 v{x+1}, v{x+1}, v{x+2}, vcc
    v_cmp_le_u32 vcc, 48, v{x}
    s_mul_i32 s{a}, s{HW}, {100*128}
    s_add_u32 s{a+1}, s{a+1}, s{a}
    v_cndmask_b32 v{x+1}, v{x+1}, v{x+3}, vcc
    v_lshl_add_u32 v{vM}, v{x}, 7, v{x+1}
    s_sub_u32 s{sPF+1}, s{a+1}, {200*128}
    s_mul_i32 s{sPF}, s{sG}, 5
    s_lshr_b32 s{sPF}, s{sPF}, 1
    s_mul_i32 s{sPF}, s{sPF}, 640
    s_add_u32 s{sPF}, s{sPF}, s{sPF+1}
    s_mov_b32 s{sPF+2}, 20
    v_lshlrev_b32 v{vH+4}, 4, v0
    v_add_u32 v{vH+4}, {H1}, v{vH+4}
    v_mul_u32_u24 v{WRr+5}, 20, v0""")
    aB=130; sK=sT+11; sN=sT+16; sS=sT+17
    def wo_setup():
        va=96
        wo_ids()
        T=[[0,2],[1,3],[4,9],[5,7],[6,8]]
        NIB=[sum((10*((4*s5+g_)//5)+T[(4*s5+g_)%5][rd]-(8*s5+2*g_-2))<<(4*(4*rd+g_)) for rd in range(2) for g_ in range(4)) for s5 in range(5)]
        for i in range(5):
            p(f"""v_add_u32 v{va}, {64*i}, v0
            v_mul_u32_u24 v{va+1}, 6554, v{va}
            v_lshrrev_b32 v{va+1}, 16, v{va+1}
            v_mul_u32_u24 v{va+2}, 10, v{va+1}
            v_sub_u32 v{va}, v{va}, v{va+2}
            v_and_b32 v{aB+5+i}, 28, v{va+1}
            v_and_b32 v{va+2}, 3, v{va+1}
            v_mul_u32_u24 v{va+2}, 1280, v{va+2}
            v_lshl_add_u32 v{va}, v{va}, 4, v{va+2}
            v_bfe_u32 v{va+1}, v{va+1}, 2, 2
            v_mul_u32_u24 v{va+1}, 10240, v{va+1}
            v_add_u32 v{aB+i}, v{va}, v{va+1}""")
            if 0<i<4: p(f"v_subrev_u32 v{aB+i}, {i*1024}, v{aB+i}")
        p(f"""s_lshr_b32 s{A}, s{sSLOT}, 3
        s_mul_i32 s{A}, s{A}, 5
        s_lshr_b32 s{A}, s{A}, 1
        s_add_u32 s{A}, s{A}, s{HW}
        s_sub_u32 s{sK}, s{A}, 2
        v_mov_b32 v{va}, 5120""")
        def woaddr(n):
            p(f"""s_add_u32 s{A}, s{sK}, {2*n}
            s_sub_u32 s{B}, s{A}, 10
            s_cselect_b32 s{A}, s{A}, s{B}
            s_sub_u32 s{B}, s{A}, 5
            s_cselect_b32 s{B}, s{A}, s{B}
            s_mul_i32 s{sS}, s{A}, 40960
            s_sub_u32 s{sS}, s{sS}, 10240
            s_mov_b32 s{sN}, {hex(NIB[0])}""")
            for k in range(1,5): p(f"s_cmp_eq_u32 s{B}, {k}\ns_cselect_b32 s{sN}, {hex(NIB[k])}, s{sN}")
            for i in range(5):
                p(f"""v_bfe_u32 v{va+1}, s{sN}, v{aB+5+i}, 4
                v_mad_u32_u24 v{va+1}, v{va+1}, v{va}, v{aB+i}
                v_add_u32 v{aD+5*n+i}, s{sS}, v{va+1}""")
        for n in range(5): woaddr(n)
    if CFG['wose']==0: wo_setup()
    npf=CFG['npf']
    for _ in range(npf[0]): pf_group()
    def hook(c):
        if c==6:
            p(f"buffer_load_dwordx4 v[{vH}:{vH+3}], v{vH+4}, {S4(sWS)}, 0 offen sc1"); OPS.append('h1')
            p(f"buffer_load_dwordx4 {vr(WRr,4)}, v{WRr+5}, {S4(sWR)}, 0 offen\nbuffer_load_dword v{WRr+4}, v{WRr+5}, {S4(sWR)}, 0 offen offset:16"); OPS.extend(['wr','wr'])
        if c==CFG['pt']:
            qkv_touch()
            OPS.extend(['pt']*wtouch('w1',1))
        if c==CFG['pt2']: OPS.extend(['pt']*touch(vM,sWS,CFG['qpair2'],CFG['tpol']))
    steps(hook)
    vmwait(7); p("s_barrier"); STAMP('ld7'); hook(7)
    st=dict(n=0)
    def dma(cnt):
        for _ in range(min(cnt,50-st['n'])):
            n=st['n']; i=n%5; k=(n//5)%5
            if n==0 or n==25:
                p(f"""s_xor_b32 s{A}, s{sHH}, {n//25}
                s_mul_i32 s{sO}, s{A}, {320*1280}
                s_mul_i32 s{sL0}, s{A}, 51200
                s_add_u32 s{sL0}, s{sL0}, {L_WO}
                s_mul_i32 s{A}, s{sJ}, 160
                s_add_u32 s{sO}, s{sO}, s{A}""")
            if i==0: p(f"""s_add_u32 s{A}, s{sK}, {2*k}
                s_sub_u32 s{B}, s{A}, 10
                s_cselect_b32 s{A}, s{A}, s{B}
                s_mul_i32 s{sL}, s{A}, 5120
                s_add_u32 s{sL}, s{sL}, s{sL0}
                s_mov_b32 m0, s{sL}
                s_nop 0""")
            if i==4: p(f"s_add_u32 m0, s{sL}, 4096\ns_nop 0")
            p(f"buffer_load_dwordx4 v{aD+5*k+i}, {S4(sWO)}, s{sO} offen offset:{(i&3)*1024} {CFG['wopol']} lds")
            OPS.append('wo%d'%(n//25))
            st['n']+=1
    vmwait(8); p("s_barrier"); hook(8)
    p(f"v_lshlrev_b32 v{aLin}, 4, v0")
    vmwait(9); p("s_barrier"); hook(9)
    stats_fin(96,B)
    vmwait('h1')
    lp=p.lab("hello"); ok=p.lab("hello_ok"); ne=p.lab("noep")
    p(f"""s_mov_b32 s{A}, {SPIN}
    {lp}:
    v_xor_b32 v{vH}, s{sTAG}, v{vH}
    v_xor_b32 v{vH+1}, s{sTAG}, v{vH+1}
    v_xor_b32 v{vH+2}, s{sTAG}, v{vH+2}
    v_xor_b32 v{vH+3}, s{sTAG}, v{vH+3}
    v_or3_b32 v{vt}, v{vH}, v{vH+1}, v{vH+2}
    v_or_b32 v{vt}, v{vt}, v{vH+3}
    v_cmp_lt_u32 vcc, 15, v{vt}
    s_nop 0
    s_cbranch_vccz {ok}""")
    spin(A,lp,ok,4)
    p(f"""buffer_load_dwordx4 v[{vH}:{vH+3}], v{vH+4}, {S4(sWS)}, 0 offen sc1
    s_waitcnt vmcnt(0)
    s_branch {lp}
    {ok}:
    v_lshl_or_b32 v{vH}, v{vH+1}, 4, v{vH}
    v_lshl_or_b32 v{vH+2}, v{vH+3}, 4, v{vH+2}
    v_lshl_or_b32 v{vH}, v{vH+2}, 8, v{vH}
    v_and_b32 v{vt}, 1, v0
    v_readlane_b32 s{A}, v{vH}, 0
    v_readlane_b32 s{B}, v{vH}, 1
    v_cmp_eq_u32 vcc, 0, v{vt}
    v_mov_b32 v{vt+1}, s{A}
    v_mov_b32 v{vt+2}, s{B}
    v_cndmask_b32 v{vt+1}, v{vt+2}, v{vt+1}, vcc
    v_cmp_ne_u32 vcc, v{vt+1}, v{vH}
    v_mov_b32 v{vt}, {L_MODE}
    s_cmp_lg_u64 vcc, 0
    s_cselect_b32 s{sMODE}, 1, {CFG['force_slow']}
    v_mov_b32 v{vt+1}, s{sMODE}
    ds_write_b32 v{vt}, v{vt+1}
    s_barrier
    s_waitcnt lgkmcnt(0)
    s_barrier""")
    vmw=len(OPS)-1-max(i for i,t in enumerate(OPS) if t=='wr')
    STAMP('hE1')
    p(f"""v_mov_b32 v{vt}, 0x3f803f80
    v_mov_b32 v{vt+1}, 0
    s_waitcnt vmcnt({vmw})""")
    for k in range(5): p(f"v_dot2_f32_bf16 v{vt+1}, v{WRr+k}, v{vt}, v{vt+1}")
    p("s_nop 0")
    wave_sum(vt+1,vt+2)
    p(f"v_mov_b32 v{vt}, {L_SWS}\nds_write_b32 v{vt}, v{vt+1}")
    if CFG['wose']==1: wo_setup()
    halo_copy(aLin,vt,D,A,B,1)
    if CFG['wose']==2: wo_setup()
    p(f"""s_add_u32 s{A}, s2, s{HW}
    s_cmp_lg_u32 s{A}, 2
    s_cbranch_scc1 {ne}
    s_add_u32 s{A}, s{sEP}, 1
    v_mov_b32 v{vt}, {EPO}
    v_mov_b32 v{vt+1}, s{A}
    s_mov_b64 exec, 1
    buffer_store_dword v{vt+1}, v{vt}, {S4(sWS)}, 0 offen sc1
    s_mov_b64 exec, -1
    {ne}:
    v_mov_b32 v{vt}, {F_SCP}""")
    if 'w2b' in (CFG['wtw'],CFG['mtw']):
        lds_wait(vt,vt+1,A,'gt',4,1); wtouch('w2b',1)
    p(f"v_mov_b32 v{vt}, {F_G1}")
    lds_wait(vt,vt+1,A,'gt',4,1)
    wtouch('w3',1)
    STAMP('wo_s')
    del OPS[:]
    thr=CFG['wothr']; gs=CFG['wogs']; thr1=CFG['wothr1']
    def more(n,dyn=False):
        while n>0 and st['n']<50:
            k=min(gs,n)
            if dyn and thr1<thr and st['n']>=thr1:
                sk=p.lab("wog")
                p(f"""ds_read_b32 v{vt+1}, v{vt} offset:{F_G2-F_G1}
                s_waitcnt lgkmcnt(0)
                v_cmp_gt_u32 vcc, 2, v{vt+1}
                s_nop 0
                s_cbranch_vccz {sk}
                s_waitcnt vmcnt({max(0,thr1-k)})
                {sk}:""")
            if st['n']>=thr: p(f"s_waitcnt vmcnt({max(0,thr-k)})")
            dma(k); n-=k
    def sig(f):
        p(f"""v_mov_b32 v{vt+2}, {f}
        v_mov_b32 v{vt+3}, 1
        s_mov_b64 exec, 1
        ds_add_u32 v{vt+2}, v{vt+3}
        s_mov_b64 exec, -1""")
    more(25+min(thr,15),True)
    vmwait('wo0')
    sig(F_WOR)
    STAMP('wo_0')
    more(50)
    sig(F_WOD)
    STAMP('wo_1')
    p("s_waitcnt vmcnt(0)")
    sig(F_WO2)
    STAMP('wo')

ACC=64; CS=128; XF=132; WF=148; SEL=164; aX=168; aW=172; aST=174; aSG=178; vT=2
sWR_,sWC,sLC,sTY,sSO,sHALO,sFO,sSO2=range(sT,sT+8)
def gemm_setup():
    t=vT; A=sT+10; B=sT+11
    wave_ids(sWAVE,sWR_,sWC,sLC,sTY)
    p(f"""v_and_b32 v{t}, 31, v0
    s_lshl_b32 s{A}, s{sWR_}, 6
    v_add_u32 v{t+1}, s{A}, v{t}
    v_lshlrev_b32 v{t+1}, 7, v{t+1}
    v_lshrrev_b32 v{t+2}, 5, v0
    v_bfe_u32 v{t+3}, v0, 1, 3
    v_xor_b32 v{t+3}, v{t+3}, v{t+2}
    v_lshl_add_u32 v{aX}, v{t+3}, 4, v{t+1}""")
    for s in range(1,4): p(f"v_xor_b32 v{aX+s}, {32*s}, v{aX}")
    p(f"""v_bfe_u32 v{t+3}, v0, 2, 2
    v_lshl_add_u32 v{t+4}, v{t+2}, 3, v{t+3}
    v_lshlrev_b32 v{t+4}, 8, v{t+4}
    s_lshl_b32 s{A}, s{sWC}, 1
    s_or_b32 s{A}, s{A}, s{sWR_}
    v_xor_b32 v{t+3}, s{A}, v{t+3}
    v_lshl_add_u32 v{t+4}, v{t+3}, 6, v{t+4}
    v_bfe_u32 v{t+3}, v0, 4, 1
    v_lshl_add_u32 v{t+4}, v{t+3}, 5, v{t+4}
    v_and_b32 v{t+5}, 3, v0
    v_lshl_add_u32 v{t+4}, v{t+5}, 3, v{t+4}
    v_add_u32 v{aW}, 16384, v{t+4}
    v_xor_b32 v{aW+1}, 64, v{aW}
    v_bfe_u32 v{t+4}, v0, 2, 1
    v_cmp_eq_u32 vcc, v{t+3}, v{t+4}
    v_mov_b32 v{t+5}, 0x3f803f80
    s_nop 0
    v_cndmask_b32 v{SEL}, 0, v{t+5}, vcc
    v_cndmask_b32 v{SEL+1}, 0, v{t+5}, vcc
    v_cndmask_b32 v{SEL+2}, 0, v{t+5}, vcc
    v_cndmask_b32 v{SEL+3}, 0, v{t+5}, vcc""")
    for r in list(range(ACC,ACC+64))+list(range(CS,CS+4)): p(f"v_mov_b32 v{r}, 0")
    store_addr(sWR_,sLC,sTY,sSO,sSO2,sHALO,sFO,aST,sT+10,sT+11)
    p(f"""s_lshl_b32 s{A}, s{sWAVE}, 13
    v_lshl_add_u32 v{aSG}, v0, 4, s{A}
    s_lshl_b32 s{A}, s{sWAVE}, 2
    s_add_u32 s{A}, s{A}, {F_STG}
    v_mov_b32 v{aSG+1}, s{A}""")
def wave_ids(wave,wr,wc,lc,ty):
    p(f"""s_and_b32 s{wr}, s{wave}, 1
    s_lshr_b32 s{wc}, s{wave}, 1
    s_lshl_b32 s{lc}, s{sCT}, 1
    s_add_u32 s{lc}, s{lc}, s{wc}
    s_mul_i32 s{ty}, s{lc}, 52
    s_lshr_b32 s{ty}, s{ty}, 8""")
def store_addr(wr,lc,ty,so,so2,halo,fo,ast,A,B,t=2):
    p(f"""v_and_b32 v{t}, 31, v0
    v_lshrrev_b32 v{t+2}, 5, v0
    s_mul_i32 s{A}, s{ty}, 5
    s_sub_u32 s{A}, s{lc}, s{A}
    s_mul_i32 s{B}, s{sHH}, 5
    s_add_u32 s{A}, s{A}, s{B}
    s_lshl_b32 s{B}, s{sRQ}, 2
    s_add_u32 s{B}, s{B}, s{sRB}
    s_lshl_b32 s{B}, s{B}, 1
    s_add_u32 s{B}, s{B}, s{wr}
    s_lshl_b32 s{B}, s{B}, 1""")
    isv=p.lab("isv"); jn=p.lab("stj")
    p(f"""s_cmp_ge_u32 s{ty}, 2
    s_cbranch_scc1 {isv}
    s_mul_i32 s{so}, s{B}, 2560
    s_mul_i32 s{B}, s{ty}, {KB}
    s_add_u32 s{so}, s{so}, s{B}
    s_add_u32 s{so2}, s{so}, 2560
    s_lshl_b32 s{A}, s{A}, 3""")
    for cb in range(2):
        for ip in range(2):
            p(f"""s_xor_b32 s{B}, s{wr}, {cb}
            s_lshl_b32 s{B}, s{B}, 2
            s_add_u32 s{B}, s{B}, s{A}
            s_add_u32 s{B}, s{B}, {2*ip}
            v_add_u32 v{t+3}, s{B}, v{t+2}
            v_mul_u32_u24 v{t+4}, 205, v{t+3}
            v_lshrrev_b32 v{t+4}, 10, v{t+4}
            v_mul_u32_u24 v{t+5}, 5, v{t+4}
            v_sub_u32 v{t+5}, v{t+3}, v{t+5}
            v_mul_u32_u24 v{t+4}, {64*2560}, v{t+4}
            v_lshl_add_u32 v{t+4}, v{t+5}, 9, v{t+4}
            v_lshl_add_u32 v{ast+2*cb+ip}, v{t}, 4, v{t+4}""")
    p(f"""s_branch {jn}
    {isv}:
    s_mul_i32 s{so}, s{B}, 1280
    s_add_u32 s{so}, s{so}, {VB}
    s_add_u32 s{so2}, s{so}, 1280
    s_lshl_b32 s{A}, s{A}, 6""")
    for cb in range(2):
        p(f"""s_xor_b32 s{B}, s{wr}, {cb}
        s_lshl_b32 s{B}, s{B}, 5
        s_add_u32 s{B}, s{B}, s{A}
        v_add_u32 v{t+3}, s{B}, v{t}
        v_mul_u32_u24 v{t+4}, 3277, v{t+3}
        v_lshrrev_b32 v{t+4}, 16, v{t+4}
        v_mul_u32_u24 v{t+5}, 20, v{t+4}
        v_sub_u32 v{t+5}, v{t+3}, v{t+5}
        v_mul_u32_u24 v{t+4}, 81920, v{t+4}
        v_lshl_add_u32 v{t+4}, v{t+5}, 4, v{t+4}
        v_mul_u32_u24 v{t+5}, 320, v{t+2}
        v_add_u32 v{ast+2*cb}, v{t+4}, v{t+5}
        v_add_u32 v{ast+2*cb+1}, 640, v{ast+2*cb}""")
    p(f"""{jn}:
    s_sub_u32 s{A}, s{ty}, 1
    s_cmp_lt_u32 s{A}, 2
    s_cselect_b32 s{halo}, 1, 0
    s_cmp_ge_u32 s{sRB}, 2
    s_cselect_b32 s{halo}, s{halo}, 0
    s_cmp_lt_u32 s{sRQ}, 3
    s_cselect_b32 s{halo}, s{halo}, 0
    s_lshl_b32 s{fo}, s{sG}, 4
    s_add_u32 s{fo}, s{fo}, s{lc}
    s_lshl_b32 s{fo}, s{fo}, 5
    s_lshl_b32 s{A}, s{sRB}, 1
    s_add_u32 s{A}, s{A}, s{wr}
    s_add_u32 s{fo}, s{fo}, s{A}
    s_lshl_b32 s{fo}, s{fo}, 2
    s_add_u32 s{fo}, s{fo}, {FL}""")
def xf(buf,xb): return XF+8*buf+4*xb
def wf(buf,cb): return WF+8*buf+4*cb
def reads(kind,buf,par,s):
    L=[]
    for xb in range(2): L.append(f"ds_read_b128 {vr(xf(buf,xb),4)}, v{aX+s} offset:{par*32768+xb*4096}")
    if kind!='S':
        for cb in range(2):
            for rd in range(2): L.append(f"ds_read_b64_tr_b16 {vr(wf(buf,cb)+2*rd,2)}, v{aW+cb} offset:{par*32768+s*4096+rd*1024}")
        L=[L[2],L[3],L[0],L[1],L[4],L[5]]
    return L
def mfmas(kind,buf):
    L=[]
    if kind=='S':
        for xb in range(2):
            x=xf(buf,xb)
            L.append(f"v_mfma_f32_16x16x32_bf16 {vr(ACC+4*xb,4)}, {vr(SEL,4)}, {vr(x,4)}, {vr(ACC+4*xb,4)}")
            L.append(f"v_mfma_f32_4x4x4_16b_bf16 {vr(ACC+8+8*xb,4)}, {vr(x,2)}, {vr(x,2)}, {vr(ACC+8+8*xb,4)}")
            L.append(f"v_mfma_f32_4x4x4_16b_bf16 {vr(ACC+12+8*xb,4)}, {vr(x+2,2)}, {vr(x+2,2)}, {vr(ACC+12+8*xb,4)}")
        return L
    for cb in range(2):
        for xb in range(2):
            a=ACC+16*(2*xb+cb); X=vr(xf(buf,xb),4); W=vr(wf(buf,cb),4)
            L.append(f"v_mfma_f32_32x32x16_bf16 {vr(a,16)}, {W if kind=='T' else X}, {X if kind=='T' else W}, {vr(a,16)}")
    L.insert(2,f"v_mfma_f32_16x16x32_bf16 {vr(CS,4)}, {vr(SEL,4)}, {vr(wf(buf,0),4)}, {vr(CS,4)}")
    return L
def gemm_loop(kind):
    CNT=sT+10
    lp=p.lab("g"+kind)
    p("s_barrier")
    STAMP('b0')
    for r in reads(kind,0,0,0): p(r)
    if CFG['clr']==1: clears(1)
    hl=p.lab("hello"); hr=p.lab("hellor")
    if kind!='S':
        COLD.append(f"""{hl}:
        s_getreg_b32 s{CNT+1}, hwreg(HW_REG_XCC_ID, 0, 4)
        s_or_b32 s{CNT+1}, s{CNT+1}, s{sTAG}
        v_mov_b32 v{vT}, s{CNT+1}
        s_lshl_b32 s{CNT+1}, s2, 2
        s_add_u32 s{CNT+1}, s{CNT+1}, {H1}
        v_mov_b32 v{vT+1}, 0
        s_mov_b64 exec, 1
        buffer_store_dword v{vT}, v{vT+1}, {S4(sWS)}, s{CNT+1} offen sc1
        s_mov_b64 exec, -1
        s_branch {hr}""")
        p(f"s_lshl_b32 s{CNT+2}, s{sWAVE}, 3\ns_add_u32 s{CNT+2}, s{CNT+2}, {5-CFG['clr']}")
    p(f"s_mov_b32 s{CNT}, 5\n{lp}:")
    for par in range(2):
        for s in range(4):
            buf=s&1
            last=(s==3)
            M=mfmas(kind,buf)
            if CFG['nomfma']: M=M[:1]
            if last and par==1:
                pre=[f"v_xor_b32 v{aX+i}, 0x10000, v{aX+i}" for i in range(4)]+[f"v_xor_b32 v{aW+i}, 0x10000, v{aW+i}" for i in range(2)]
            else: pre=[]
            R=reads(kind,buf^1,(par^1) if last else par,(s+1)&3)
            p("s_waitcnt lgkmcnt(0)")
            if last:
                p(M.pop(0))
                for x in pre: p(x)
                if par==0:
                    w1=p.lab("cw"); w2=p.lab("cwr")
                    p(f"s_cmp_eq_u32 s{CNT}, {5-CFG['clr']}\ns_cbranch_scc1 {w1}\n{w2}:")
                    COLD.append(f"{w1}:\ns_waitcnt vmcnt(0)\ns_branch {w2}")
                p("s_barrier")
                if par==0 and kind!='S': p(f"s_cmp_eq_u32 s{CNT}, s{CNT+2}\ns_cbranch_scc1 {hl}\n{hr}:")
            k=0
            while M or R:
                if R: p(R.pop(0))
                if R: p(R.pop(0))
                if M: p(M.pop(0))
    p(f"""s_sub_u32 s{CNT}, s{CNT}, 1
    s_cmp_lg_u32 s{CNT}, 0
    s_cbranch_scc1 {lp}""")
    STAMP('gend')
def bf16r(dst,src):
    p(f"v_cvt_pk_bf16_f32 v{dst}, v{src}, v{src}\nv_and_b32 v{dst}, 0xffff0000, v{dst}")
def mode_read():
    p(f"""v_mov_b32 v{vT+8}, {L_MODE}
    ds_read_b32 v{vT+9}, v{vT+8}""")
def mode_get():
    p(f"v_readfirstlane_b32 s{sMODE}, v{vT+9}")
def dual(stores):
    sl=p.lab("slow"); jn=p.lab("jn")
    p(f"s_cmp_lg_u32 s{sMODE}, 0\ns_cbranch_scc1 {sl}")
    for s in stores: p(s)
    p(f"s_branch {jn}\n{sl}:")
    for s in stores: p(s+" sc1")
    p(f"{jn}:")
def idle_gemm():
    vt=10; aI=20; acc=28; one=32; D=64; A=sT+10
    p(f"""s_lshl_b32 s{A}, s{sWR_}, 13
    v_bfe_u32 v{vt}, v0, 1, 3
    v_lshlrev_b32 v{vt}, 4, v{vt}
    v_lshl_add_u32 v{vt}, v0, 7, v{vt}
    v_add_u32 v{aI}, s{A}, v{vt}
    v_mov_b32 v{one}, 0x3f803f80
    s_lshl_b32 s{A}, s{sG}, 2
    s_add_u32 s{A}, s{A}, s{sRB}
    s_lshl_b32 s{A}, s{A}, 14
    s_lshl_b32 s{A+1}, s{sWR_}, 10
    s_add_u32 s{A}, s{A}, s{A+1}
    s_add_u32 s{A}, s{A}, {STP+7*2048}
    v_lshlrev_b32 v{vt}, 4, v0""")
    for i in range(1,8): p(f"v_xor_b32 v{aI+i}, {16*i}, v{aI}")
    for i in range(4): p(f"v_mov_b32 v{acc+i}, 0")
    assert CFG['clr']==0
    for c in range(11):
        if c==1: p("s_waitcnt vmcnt(0)")
        p("s_barrier")
        if c<3:
            if c==2:
                for i in range(8): p(f"v_add_u32 v{aI+i}, 0x10000, v{aI+i}")
            for i in range(8): p(f"ds_read_b128 {vr(D+4*i,4)}, v{aI+i} offset:{(c&1)*32768}")
            for i in range(8):
                p(f"s_waitcnt lgkmcnt({7-i})")
                for j in range(4):
                    r=D+4*i+j
                    p(f"v_dot2_f32_bf16 v{acc+(j&1)}, v{r}, v{one}, v{acc+(j&1)}\nv_dot2_f32_bf16 v{acc+2+(j&1)}, v{r}, v{r}, v{acc+2+(j&1)}")
        if c==2: p(f"""s_nop 1
            v_add_f32 v{acc}, v{acc}, v{acc+1}
            v_add_f32 v{acc+1}, v{acc+2}, v{acc+3}
            v_mov_b32 v{acc+2}, s{sTAG}
            buffer_store_dwordx4 {vr(acc,4)}, v{vt}, {S4(sWS)}, s{A} offen sc1""")
    p("s_barrier")
    mode_read()
    p(f"v_mov_b32 v{vT}, 2\nds_write_b32 v{aSG+1}, v{vT}")
    p("s_waitcnt lgkmcnt(0)")
    mode_get()
def gemm_epi(kind):
    t=vT; A=sT+10
    AU=20
    WA=24
    XA=28
    RS=32
    p(f"""v_and_b32 v{t}, 31, v0
    s_lshl_b32 s{A}, s{sWC}, 1
    s_or_b32 s{A}, s{A}, s{sWR_}
    s_lshl_b32 s{A}, s{A}, 7
    s_add_u32 s{A}, s{A}, {L_CS}
    v_lshl_add_u32 v{t+1}, v{t}, 2, s{A}
    s_lshl_b32 s{A}, s{sWR_}, 9
    s_add_u32 s{A}, s{A}, {L_SA}
    v_lshl_add_u32 v{t+3}, v{t}, 3, s{A}
    ds_write_b32 v{t+1}, v{CS}
    v_xor_b32 v{t+2}, 128, v{t+1}
    v_mov_b32 v{WA+1}, 0
    v_mov_b32 v{WA+3}, 0
    v_mov_b32 v{XA+1}, 0
    v_mov_b32 v{XA+3}, 0""")
    if kind=='V':
        p(f"""v_lshrrev_b32 v{t+4}, 5, v0
        s_lshl_b32 s{A}, s{sWR_}, 8
        s_add_u32 s{A}, s{A}, {L_SR}
        v_lshl_add_u32 v{t+4}, v{t+4}, 4, s{A}""")
    p("s_waitcnt lgkmcnt(0)\ns_barrier")
    STAMP('E1',1)
    p(f"""ds_read_b32 v{CS+1}, v{t+2}
    ds_read_b64 v[{AU}:{AU+1}], v{t+3}
    ds_read_b64 v[{AU+2}:{AU+3}], v{t+3} offset:256""")
    mode_read()
    if kind=='V':
        for xb in range(2):
            for i in range(4): p(f"ds_read_b128 {vr(RS+16*xb+4*i,4)}, v{t+4} offset:{xb*128+i*32}")
    def split(cb):
        c=CS+cb
        p(f"""v_cndmask_b32 v{c}, 0, v{c}, s[{sLO}:{sLO+1}]
        v_cvt_pk_bf16_f32 v{t+5}, v{c}, v{c}
        v_and_b32 v{t+5}, 0xffff0000, v{t+5}
        v_sub_f32 v{t+6}, v{c}, v{t+5}
        v_cvt_pk_bf16_f32 v{WA+2*cb}, v{t+5}, v{t+6}""")
    split(0)
    p(f"s_waitcnt lgkmcnt({8 if kind=='V' else 0})")
    split(1)
    p(f"v_mov_b32 v{XA}, v{AU}\nv_mov_b32 v{XA+2}, v{AU+2}")
    mode_get()
    if kind=='T':
        p(f"""s_cmp_eq_u32 s{sTY}, 0
        s_cselect_b32 s{A}, {hex(f2u(20**-0.5*math.log2(math.e)))}, 1.0
        v_mul_f32 v{AU+1}, s{A}, v{AU+1}
        v_mul_f32 v{AU+3}, s{A}, v{AU+3}""")
    else: p("s_nop 0")
    for xb in range(2):
        for cb in range(2):
            a=ACC+16*(2*xb+cb); X=vr(XA+2*xb,2); W=vr(WA+2*cb,2)
            p(f"v_mfma_f32_32x32x8_bf16 {vr(a,16)}, {W if kind=='T' else X}, {X if kind=='T' else W}, {vr(a,16)}")
    p("s_waitcnt lgkmcnt(0)\ns_nop 7")
    allst=[]
    for xb in range(2):
        st=[]
        for cb in range(2):
            a=ACC+16*(2*xb+cb)
            for k in range(8):
                if kind=='T': p(f"v_pk_mul_f32 {vr(a+2*k,2)}, {vr(a+2*k,2)}, {vr(AU+2*xb,2)} op_sel:[0,1] op_sel_hi:[1,1]")
                else: p(f"v_pk_mul_f32 {vr(a+2*k,2)}, {vr(a+2*k,2)}, {vr(RS+16*xb+2*k,2)}")
            for k in range(8): p(f"v_cvt_pk_bf16_f32 v{a+k}, v{a+2*k}, v{a+2*k+1}")
            if kind=='T':
                p(f"""v_permlane32_swap_b32 v{a}, v{a+2}
                v_permlane32_swap_b32 v{a+1}, v{a+3}
                v_permlane32_swap_b32 v{a+4}, v{a+6}
                v_permlane32_swap_b32 v{a+5}, v{a+7}""")
            for h in range(2):
                st.append(f"buffer_store_dwordx4 {vr(a+4*h,4)}, v{aST+2*cb+h}, {S4(sWS)}, s{sSO2 if xb else sSO} offen")
                allst.append(a+4*h)
        dual(st)
        nh=p.lab("nohalo")
        p(f"s_cmp_eq_u32 s{sHALO}, 0\ns_cbranch_scc1 {nh}")
        for i in range(4*xb,4*xb+4): p(f"ds_write_b128 v{aSG}, {vr(allst[i],4)} offset:{L_STG+i*1024}")
        if xb==0: p(f"v_mov_b32 v{t}, {xb+1}\nds_write_b32 v{aSG+1}, v{t}\n{nh}:")
        else: p(f"{nh}:\nv_mov_b32 v{t}, {xb+1}\nds_write_b32 v{aSG+1}, v{t}")
    STAMP('st')
    p(f"""v_mov_b32 v{t}, 0
    v_mov_b32 v{t+1}, s{sTAG}
    s_waitcnt vmcnt(0)
    s_mov_b64 exec, 1""")
    dual([f"buffer_store_dword v{t+1}, v{t}, {S4(sWS)}, s{sFO} offen"])
    p(f"s_mov_b64 exec, -1")
    STAMP('fl')
import struct
def f2u(x): return struct.unpack("<I",struct.pack("<f",x))[0]

aLin,aTl,aKm,aKt,aV,aFl,aO=20,21,22,23,24,25,26
QM=[28,34]; QT=[32,38]; PP=40
KM=[48,62]; KT=[52,66]; VV=[[54,58],[68,72]]
SS=[80,96]; OO=[112,128]; CD=144; CF=160
sQ=[sT+9,sT+10]; sOm=[sT+11,sT+12]; sOt=[sT+13,sT+14]; sOSC=sT+15; sFB=sT+16
NINF="0xff800000"
def att_pro():
    t=vT; A=sT+7; B=sT+8; C=sT+17; sF=sT
    wo_pre1()
    att_ids()
    flag_addr(aFl,t,1,A,B,C)
    p(f"""s_lshl_b32 s{sF}, s{sG}, 11
    s_lshl_b32 s{A}, s{sHF}, 4
    s_add_u32 s{sF}, s{sF}, s{A}
    s_add_u32 s{sF}, s{sF}, {FL}
    buffer_load_dword v{t+10}, v{aFl}, {S4(sWS)}, s{sF} offen sc1
    s_mov_b32 s{sK1024}, 1024""")
    kv_addr(aLin,aTl,t)
    p(f"""v_add_u32 v{aKm}, {L_KV}, v{aLin}
    v_and_b32 v{t}, 31, v0
    v_lshrrev_b32 v{t+1}, 5, v0
    v_xor_b32 v{t+2}, s{sHO}, v{t+1}
    v_lshlrev_b32 v{t+2}, 3, v{t+2}
    v_lshl_add_u32 v{t+2}, v{t}, 4, v{t+2}
    v_add_u32 v{aKt}, {L_KV+2048}, v{t+2}
    v_mul_u32_u24 v{t+2}, 320, v{t+1}
    v_lshl_add_u32 v{t+2}, v{t}, 4, v{t+2}
    v_add_u32 v{aV}, {L_KV+3072}, v{t+2}
    v_lshlrev_b32 v{t+2}, 2, v{t+1}
    v_sub_u32 v{t+2}, v{t}, v{t+2}
    v_mov_b32 v{t+3}, {NINF}""")
    for i in range(16):
        m=C+1+2*(i%2)+((C+1)%2)
        ri=8*(i>>2)+(i&3)
        p(f"v_cmp_le_i32 s[{m}:{m+1}], {ri}, v{t+2}")
        if i>0:
            m2=C+1+2*((i-1)%2)+((C+1)%2)
            if i==1: p("s_nop 0")
            p(f"v_cndmask_b32 v{CD+i-1}, v{t+3}, 0, s[{m2}:{m2+1}]\nv_cndmask_b32 v{CF+i-1}, 0, v{t+3}, s[{m2}:{m2+1}]")
    p(f"""s_nop 0
    v_cndmask_b32 v{CD+15}, v{t+3}, 0, s[{m}:{m+1}]
    v_cndmask_b32 v{CF+15}, 0, v{t+3}, s[{m}:{m+1}]
    v_cmp_eq_u32 s[{m}:{m+1}], 20, v{t}
    v_cmp_eq_u32 vcc, 24, v{t}
    v_mov_b32 v{t+4}, 0x3f803f80
    s_or_b64 vcc, vcc, s[{m}:{m+1}]""")
    for b_ in range(2):
        for mm in range(2):
            for r in range(4): p(f"v_cndmask_b32 v{VV[b_][mm]+r}, 0, v{t+4}, vcc")
    for q in range(2): p(f"v_mov_b32 v{QT[q]}, 0\nv_mov_b32 v{QT[q]+1}, 0")
    p(f"""v_bfe_u32 v{t+2}, v0, 4, 1
    v_mul_u32_u24 v{t+2}, 20480, v{t+2}
    v_lshl_add_u32 v{t+2}, v{t+1}, 8, v{t+2}
    v_and_b32 v{t+3}, 15, v0
    v_lshl_add_u32 v{aO}, v{t+3}, 4, v{t+2}
    s_cmp_lg_u32 s{sHF}, s{sHH}
    s_cselect_b32 s{sOSC}, 1, s{sMODE}
    s_mov_b32 s{sFB}, 0
    s_lshl_b32 s{A}, s{sWAVE}, 1
    s_sub_u32 s{A}, 7, s{A}
    v_mul_u32_u24 v{t+2}, s{A}, v0
    s_add_u32 s{A}, s{sT0}, s{sWAVE}
    v_add_lshl_u32 v{aFO}, v{t+2}, s{A}, 12
    s_lshl_b32 s{A}, s{sHD}, 7
    s_add_u32 s{A}, s{A}, {FO}
    v_add_u32 v{aFO}, s{A}, v{aFO}
    s_mul_i32 s{C}, s{sMODE}, {OB2-OB}
    s_add_u32 s{C}, s{C}, {OB}""")
    for q in range(2):
        if q==0: p(f"s_add_u32 s{A}, s{sT0}, 7\ns_sub_u32 s{A}, s{A}, s{sWAVE}")
        else: p(f"s_add_u32 s{A}, s{sT0}, s{sWAVE}")
        p(f"""s_mul_i32 s{sQ[q]}, s{A}, 2560
        s_mul_i32 s{B}, s{sPH}, {64*2560}
        s_add_u32 s{sQ[q]}, s{sQ[q]}, s{B}
        s_mul_i32 s{A}, s{A}, 40960
        s_mul_i32 s{B}, s{sPH}, 1280
        s_add_u32 s{A}, s{A}, s{B}
        s_add_u32 s{A}, s{A}, s{C}
        s_mul_i32 s{B}, s{sHO}, 768
        s_add_u32 s{sOm[q]}, s{A}, s{B}
        s_lshl_b32 s{B}, s{sHO}, 3
        s_add_u32 s{sOt[q]}, s{A}, s{B}""")
    sK=C+1; sV=C+2; sL=C+3
    p(f"""s_lshl_b32 s{A}, s{sWAVE}, 1
    s_add_u32 s{A}, s{A}, s{sT0}
    s_mul_i32 s{sK}, s{A}, 2560
    s_mul_i32 s{sV}, s{A}, 1280
    s_mul_i32 s{A}, s{sPH}, {64*2560}
    s_add_u32 s{sK}, s{sK}, s{A}
    s_add_u32 s{sK}, s{sK}, {KB}
    s_mul_i32 s{A}, s{sHD}, 81920
    s_add_u32 s{sV}, s{sV}, s{A}
    s_add_u32 s{sV}, s{sV}, {VB}
    s_mul_i32 s{sL}, s{sWAVE}, 5632
    s_add_u32 s{sL}, s{sL}, {L_KV+4*5632}
    s_mul_i32 s{A}, s{sHO}, 1536
    v_add_u32 v{t+2}, s{A}, v{aLin}
    s_lshl_b32 s{A}, s{sHO}, 3
    v_add_u32 v{t+3}, s{A}, v{aLin}""")
    p("s_waitcnt vmcnt(1)")
    wo_pre2()
    flag_poll(aFl,t+10,sF,C,first=False)
    STAMP('fseen')
    kv_dma(aLin,aTl,sK,sV,sL,A,B)
    for q in range(2): p(f"buffer_load_dwordx4 {vr(QM[q],4)}, v{t+2}, {S4(sWS)}, s{sQ[q]} offen sc1")
    p(f"s_mov_b64 exec, s[{sLO}:{sLO+1}]")
    for q in range(2): p(f"buffer_load_dwordx2 {vr(QT[q],2)}, v{t+3}, {S4(sWS)}, s{sQ[q]} offen offset:1024 sc1")
    p(f"""s_mov_b64 exec, 1
    v_mov_b32 v{t}, {F_G1}
    v_mov_b32 v{t+1}, 1
    s_waitcnt vmcnt(4)
    ds_add_u32 v{t}, v{t+1}
    s_mov_b64 exec, -1
    v_mov_b32 v{aFl}, {F_G1}""")
    lds_wait(aFl,t+5,C,'gt',4,0)
    p(f"s_waitcnt vmcnt(0)")
    STAMP('kv')
    p(f"""s_cmp_eq_u32 s{sWAVE}, 1
    s_cbranch_scc1 L_av1
    s_cmp_eq_u32 s{sWAVE}, 2
    s_cbranch_scc1 L_av2
    s_cmp_eq_u32 s{sWAVE}, 3
    s_cbranch_scc1 L_av3""")
def kreads(n,b_):
    o=(n>>1)*5632
    return [f"ds_read_b128 {vr(KM[b_],4)}, v{aKm} offset:{o+(n&1)*1024}", f"ds_read_b64 {vr(KT[b_],2)}, v{aKt} offset:{o+(n&1)*512}"]
def vreads(n,b_):
    o=(n>>1)*5632+(n&1)*1280
    return [f"s_mov_b64 exec, s[{sLO+2}:{sLO+3}]", f"ds_read_b128 {vr(VV[b_][0],4)}, v{aV} offset:{o}", f"ds_read_b128 {vr(VV[b_][1],4)}, v{aV} offset:{o+640}", "s_mov_b64 exec, -1"]
def att_variant(w):
    U=[]
    for n in range(15-w,8+w,-1): U.append((0,n))
    for n in range(8+w,6-w,-1): U+= [(0,n),(1,n)]
    for n in range(6-w,w-1,-1): U.append((1,n))
    assert len(U)==18
    diag=[15-w,8+w]
    tiles=[]; tau=[]
    for q,n in U:
        if not tiles or tiles[-1]!=n: tiles.append(n)
        tau.append(len(tiles)-1)
    first=[tau.index(i) for i in range(len(tiles))]
    started=[0,0]
    def QK(u):
        q,n=U[u]; b_=tau[u]&1; S=vr(SS[u&1],16)
        c=vr(CD,16) if n==diag[q] else (vr(CF,16) if n==diag[q]-8 else "0")
        return [f"v_mfma_f32_32x32x16_bf16 {S}, {vr(KM[b_],4)}, {vr(QM[q],4)}, {c}", f"v_mfma_f32_32x32x8_bf16 {S}, {vr(KT[b_],2)}, {vr(QT[q],2)}, {S}"]
    def PV(u,m):
        q,n=U[u]; O=vr(OO[q],16)
        c=O if started[q] else "0"; started[q]=1
        return f"v_mfma_f32_32x32x16_bf16 {O}, {vr(VV[tau[u]&1][m],4)}, {vr(PP+4*m,4)}, {c}"
    p(f"L_av{w}:")
    for i,f in enumerate(first):
        if f<=1:
            for x in kreads(tiles[i],i&1): p(x)
    for x in vreads(tiles[0],0): p(x)
    p("s_waitcnt lgkmcnt(0)")
    for x in QK(0): p(x)
    p("s_nop 7\ns_nop 3")
    pend=False
    H=first[tiles.index(7)]
    for u in range(18):
        S=SS[u&1]
        e=lambda i: p(f"v_exp_f32 v{S+i}, v{S+i}")
        c=lambda k: p(f"v_cvt_pk_bf16_f32 v{PP+k}, v{S+2*k}, v{S+2*k+1}")
        kr=[x for i,f in enumerate(first) if f==u+2 for x in kreads(tiles[i],i&1)]
        vr_=[x for i,f in enumerate(first) if f==u+1 for x in vreads(tiles[i],i&1)]
        late=(u+2==H)
        STAMP('u%d'%u)
        e(0); e(1)
        if u>0: p(PV(u-1,1))
        e(2)
        if not late:
            for x in kr: p(x)
        if u+3==H: p(f"ds_read_b32 v{vT}, v{aFl} offset:{F_G2-F_G1}")
        e(3); c(0); c(1)
        if pend: p("s_waitcnt lgkmcnt(0)") if not (kr and not late) and u+3!=H else p(f"s_waitcnt lgkmcnt({(len(kr) if not late else 0)+(1 if u+3==H else 0)})")
        qk=QK(u+1) if u<17 else [None,None]
        if qk[0]: p(qk[0])
        e(4)
        if late:
            p(f"v_cmp_gt_u32 vcc, 2, v{vT}")
        e(5)
        if late:
            p(f"s_cbranch_vccnz L_g2w{w}\nL_g2r{w}:")
            for x in kr: p(x)
        for x in vr_: p(x)
        e(6); e(7); c(2); c(3)
        if qk[1]: p(qk[1])
        e(8); e(9); e(10); e(11)
        p(PV(u,0))
        c(4); c(5); e(12); e(13); e(14); e(15); c(6); c(7)
        pend=bool(kr or vr_ or u+3==H)
        if u==H-1:
            p(f"s_cmp_eq_u32 s{sT0}, 0\ns_cbranch_scc1 L_ex{w}")
            exq=PV(u,1)
    p("s_nop 1")
    p(PV(17,1))
    p("s_branch L_afin")
    p(f"L_g2w{w}:")
    p(f"v_mov_b32 v{vT+1}, {F_G2}")
    lds_wait(vT+1,vT,sT+17,'gt',2,1)
    p(f"s_branch L_g2r{w}\nL_ex{w}:\n{exq}\ns_branch L_afin")
def att_fin():
    t=vT; A=sT+7
    p("L_afin:")
    STAMP('aend')
    p(f"s_mov_b32 s{A}, {hex(f2u(2.0**-40))}\ns_mov_b32 s{A+1}, {hex(f2u(2.0**40)-f2u(2.0**-40))}")
    for q in range(2):
        O=OO[q]
        p(f"""v_cndmask_b32 v{t}, v{O+8}, v{O+12}, s[{sLO}:{sLO+1}]
        v_pk_add_f32 v[{t+2}:{t+3}], v[{O}:{O+1}], v[{O+2}:{O+3}]
        v_rcp_f32 v{t+1}, v{t}
        v_pk_add_f32 v[{t+4}:{t+5}], v[{O+4}:{O+5}], v[{O+6}:{O+7}]
        v_pk_add_f32 v[{t+6}:{t+7}], v[{O+8}:{O+9}], v[{O+10}:{O+11}]
        v_subrev_u32 v{t}, s{A}, v{t}
        v_pk_add_f32 v[{t+2}:{t+3}], v[{t+2}:{t+3}], v[{t+4}:{t+5}]
        v_cmp_lt_u32 s[{A+11}:{A+12}], s{A+1}, v{t}
        v_pk_add_f32 v[{t+2}:{t+3}], v[{t+2}:{t+3}], v[{t+6}:{t+7}]
        v_add_f32 v{t+2}, v{t+2}, v{t+3}""")
        p(f"v_cmp_class_f32 vcc, v{t+2}, v{aCLS}")
        for k in range(6): p(f"v_pk_mul_f32 {vr(O+2*k,2)}, {vr(O+2*k,2)}, {vr(t,2)} op_sel:[0,1] op_sel_hi:[1,1]")
        p(f"""s_or_b64 vcc, vcc, s[{A+11}:{A+12}]
        s_cbranch_scc1 L_afb{q}
        L_afr{q}:""")
        for k in range(6): p(f"v_cvt_pk_bf16_f32 v{O+k}, v{O+2*k}, v{O+2*k+1}")
        p(f"s_cmp_lg_u32 s{sOSC}, 0")
        st=[f"buffer_store_dwordx4 {vr(O,4)}, v{aO}, {S4(sWS)}, s{sOm[q]} offen", f"s_mov_b64 exec, s[{sLO}:{sLO+1}]",
            f"buffer_store_dwordx2 {vr(O+4,2)}, v{aO}, {S4(sWS)}, s{sOt[q]} offen offset:512", "s_mov_b64 exec, -1"]
        p(f"s_cbranch_scc1 L_osc{q}")
        for x in st: p(x)
        p(f"s_branch L_osr{q}\nL_osc{q}:")
        for x in st: p(x+(" sc1" if x.startswith("buffer") else ""))
        p(f"L_osr{q}:")
    p(f"""v_mov_b32 v{t}, {F_DONE}
    v_mov_b32 v{t+1}, 1
    s_mov_b64 exec, 1
    ds_add_u32 v{t}, v{t+1}
    s_mov_b64 exec, -1""")
    STAMP('ost')
aCLS=27; aFO=226; aFR=227
def att_cold():
    t=vT; A=sT+7; B=sT+8; N=sT+17; J=sT+18; CN=sT+19; PA=sT+20
    for q in range(2): p(f"L_afb{q}:\ns_cmp_lg_u32 s{sFB}, 0\ns_cbranch_scc1 L_afr{q}\ns_branch L_afb")
    p(f"L_afb:\ns_mov_b32 s{sFB}, 1\ns_waitcnt lgkmcnt(0)")
    S=SS[0]; MX=t+10; xa=t+11
    for q in range(2):
        lp=p.lab("fb"); nd=p.lab("fbnd"); nf=p.lab("fbnf"); p2=p.lab("fbp2"); nx=p.lab("fbnx"); ps=p.lab("fbps"); dn=p.lab("fbdn")
        for r in range(16): p(f"v_mov_b32 v{OO[q]+r}, 0")
        p(f"""v_mov_b32 v{MX}, {NINF}
        s_mov_b32 s{PA}, 0
        {ps}:""")
        if q==0: p(f"s_sub_u32 s{N}, 15, s{sWAVE}")
        else: p(f"s_add_u32 s{N}, 8, s{sWAVE}")
        p(f"""s_sub_u32 s{CN}, s{N}, 7
        s_cmp_eq_u32 s{sT0}, 0
        s_cselect_b32 s{CN}, s{CN}, 9
        s_mov_b32 s{J}, 0
        {lp}:
        s_lshr_b32 s{A}, s{N}, 1
        s_mul_i32 s{A}, s{A}, 5632
        s_and_b32 s{B}, s{N}, 1
        s_lshl_b32 s{sT+21}, s{B}, 10
        s_add_u32 s{sT+21}, s{sT+21}, s{A}
        v_add_u32 v{xa}, s{sT+21}, v{aKm}
        s_lshl_b32 s{sT+21}, s{B}, 9
        s_add_u32 s{sT+21}, s{sT+21}, s{A}
        v_add_u32 v{xa+1}, s{sT+21}, v{aKt}
        s_mul_i32 s{B}, s{B}, 1280
        s_add_u32 s{A}, s{A}, s{B}
        v_add_u32 v{xa+2}, s{A}, v{aV}
        ds_read_b128 {vr(KM[0],4)}, v{xa}
        ds_read_b64 {vr(KT[0],2)}, v{xa+1}
        s_mov_b64 exec, s[{sLO+2}:{sLO+3}]
        ds_read_b128 {vr(VV[0][0],4)}, v{xa+2}
        ds_read_b128 {vr(VV[0][1],4)}, v{xa+2} offset:640
        s_mov_b64 exec, -1
        s_waitcnt lgkmcnt(0)
        v_mfma_f32_32x32x16_bf16 {vr(S,16)}, {vr(KM[0],4)}, {vr(QM[q],4)}, 0
        v_mfma_f32_32x32x8_bf16 {vr(S,16)}, {vr(KT[0],2)}, {vr(QT[q],2)}, {vr(S,16)}
        v_mov_b32 v{xa}, {NINF}
        s_nop 11
        s_cmp_lg_u32 s{J}, 0
        s_cbranch_scc1 {nd}""")
        for r in range(16): p(f"v_cmp_eq_u32 vcc, 0, v{CD+r}\ns_nop 1\nv_cndmask_b32 v{S+r}, v{xa}, v{S+r}, vcc")
        p(f"{nd}:\ns_cmp_lg_u32 s{J}, 8\ns_cbranch_scc1 {nf}")
        for r in range(16): p(f"v_cmp_eq_u32 vcc, 0, v{CF+r}\ns_nop 1\nv_cndmask_b32 v{S+r}, v{xa}, v{S+r}, vcc")
        p(f"{nf}:\ns_cmp_lg_u32 s{PA}, 0\ns_cbranch_scc1 {p2}")
        for r in range(0,16,2): p(f"v_max3_f32 v{MX}, v{S+r}, v{S+r+1}, v{MX}")
        p(f"s_branch {nx}\n{p2}:")
        for r in range(16): p(f"v_sub_f32 v{S+r}, v{S+r}, v{MX}")
        for r in range(16): p(f"v_exp_f32 v{S+r}, v{S+r}")
        p("s_nop 0")
        for k in range(8): p(f"v_cvt_pk_bf16_f32 v{PP+k}, v{S+2*k}, v{S+2*k+1}")
        p("s_nop 1")
        for m in range(2): p(f"v_mfma_f32_32x32x16_bf16 {vr(OO[q],16)}, {vr(VV[0][m],4)}, {vr(PP+4*m,4)}, {vr(OO[q],16)}")
        p(f"""s_nop 11
        {nx}:
        s_sub_u32 s{N}, s{N}, 1
        s_add_u32 s{J}, s{J}, 1
        s_cmp_lt_u32 s{J}, s{CN}
        s_cbranch_scc1 {lp}
        s_cmp_lg_u32 s{PA}, 0
        s_cbranch_scc1 {dn}
        v_mov_b32 v{xa}, v{MX}
        s_mov_b32 s{PA}, 1
        s_nop 0
        v_permlane32_swap_b32 v{xa}, v{MX}
        s_nop 1
        v_max_f32 v{MX}, v{MX}, v{xa}
        s_branch {ps}
        {dn}:""")
    p("s_branch L_afin")

BF=28; AF=108; WACC=200; XR=176; WR_=186; aX2=196; aPS=197; aAL=198; aAR=199; SW=220; SELF=221; aPR=222; aKY=223; aCD=224
HP=40; HF_=50; LP=70; OP=80
sRT=sT+1; sOL=sT+2; sOR=sT+5; sXO=sT+11; sPSO=sT+12; sRETRY=sT+13; sPRB=sT+14; sFLO=sT+16; sFRE=sT+18
def acc_init():
    for k in range(10): p(f"v_lshlrev_b32 v{WACC+2*k}, 16, v{XR+k}\nv_and_b32 v{WACC+2*k+1}, 0xffff0000, v{XR+k}")
def wo_pre1():
    t=vT; A=sT+7; B=sT+8
    wo_ids()
    p(f"""v_and_b32 v{t}, 15, v0
    v_lshrrev_b32 v{t+1}, 4, v0
    v_mul_u32_u24 v{t+2}, 40, v{t+1}
    v_mov_b32 v{t+3}, 1280
    v_mad_u32_u24 v{aX2}, v{t}, v{t+3}, v{t+2}
    s_lshl_b32 s{A}, s{sBLK}, 2
    s_add_u32 s{A}, s{A}, s{sWAVE}
    s_mul_i32 s{A}, s{A}, 20480
    s_mul_i32 s{B}, s{sJ}, 160
    s_add_u32 s{A}, s{A}, s{B}
    buffer_load_dwordx4 {vr(XR,4)}, v{aX2}, {S4(sX)}, s{A} offen
    buffer_load_dwordx4 {vr(XR+4,4)}, v{aX2}, {S4(sX)}, s{A} offen offset:16
    buffer_load_dwordx2 {vr(XR+8,2)}, v{aX2}, {S4(sX)}, s{A} offen offset:32
    buffer_load_dwordx4 {vr(WR_,4)}, v{t+2}, {S4(sWR)}, s{B} offen
    buffer_load_dwordx4 {vr(WR_+4,4)}, v{t+2}, {S4(sWR)}, s{B} offen offset:16
    buffer_load_dwordx2 {vr(WR_+8,2)}, v{t+2}, {S4(sWR)}, s{B} offen offset:32
    v_lshlrev_b32 v{aPS}, 7, v{t}
    v_lshl_add_u32 v{aPS}, v{t+1}, 5, v{aPS}
    v_lshlrev_b32 v{aFR}, 7, v{t}
    v_mul_u32_u24 v{t+2}, 640, v{t+1}
    v_bfe_u32 v{t+3}, v0, 2, 2
    v_mul_u32_u24 v{t+3}, 160, v{t+3}
    v_and_b32 v{t+4}, 3, v0
    v_mul_u32_u24 v{t+4}, 40, v{t+4}
    v_add3_u32 v{t+2}, v{t+2}, v{t+3}, v{t+4}
    s_mul_i32 s{A}, s{sHH}, 51200
    s_add_u32 s{B}, s{A}, {L_WO}
    v_add_u32 v{aAL}, s{B}, v{t+2}
    s_sub_u32 s{B}, {L_WO+51200}, s{A}
    v_add_u32 v{aAR}, s{B}, v{t+2}
    v_and_b32 v{t+2}, 7, v0
    v_mul_u32_u24 v{t+2}, 1280, v{t+2}
    v_bfe_u32 v{t+3}, v0, 3, 1
    v_lshl_add_u32 v{aPR}, v{t+3}, 7, v{t+2}""")
def wo_pre2():
    acc_init()
def probe(soff,cnt,first=True):
    t=vT
    lp=p.lab("pb"); ok=p.lab("pbok"); md=p.lab("pbm")
    p(f"s_mov_b32 s{cnt}, {SPIN}")
    if not first: p(f"s_branch {md}")
    p(f"""{lp}:
    buffer_load_dwordx3 v[{t+4}:{t+6}], v{aPR}, {S4(sWS)}, s{soff} offen offset:512 sc1""")
    if not first: p(f"{md}:")
    p(f"""s_waitcnt vmcnt(0)
    v_max_u32 v{t+4}, v{t+4}, v{t+6}
    v_cmp_eq_u32 vcc, -1, v{t+4}
    s_nop 0
    s_cbranch_vccz {ok}""")
    spin(cnt,lp,ok)
    p(f"s_branch {lp}\n{ok}:")
def red3(a,b,c,d):
    p(f"""v_mov_b32 v{d}, v{c}
    s_nop 0
    v_permlane32_swap_b32 v{a}, v{b}
    v_permlane32_swap_b32 v{c}, v{d}
    s_nop 0
    v_add_f32 v{a}, v{a}, v{b}
    v_add_f32 v{c}, v{c}, v{d}
    s_nop 1
    v_permlane16_swap_b32 v{a}, v{c}
    s_nop 0
    v_add_f32 v{a}, v{a}, v{c}
    v_add_f32 v{c}, v{a}, 0
    s_nop 1
    v_permlane16_swap_b32 v{a}, v{c}
    s_nop 0
    v_mov_b32 v{b}, v{a}
    s_nop 1
    v_permlane32_swap_b32 v{a}, v{b}""")
def wo_main():
    t=vT; A=sT+7; B=sT+8; C=sT+17; MXS=t+8
    wo_ids()
    p(f"""s_lshl_b32 s{sRT}, s{sBLK}, 2
    s_add_u32 s{sRT}, s{sRT}, s{sWAVE}
    s_mul_i32 s{A}, s{sRT}, 20480
    s_mul_i32 s{B}, s{sJ}, 160
    s_add_u32 s{sXO}, s{A}, s{B}
    s_mul_i32 s{B}, s{sMODE}, {OB2-OB}
    s_add_u32 s{A}, s{A}, s{B}
    s_add_u32 s{A}, s{A}, {OB}
    s_mul_i32 s{B}, s{sHH}, 10240
    s_add_u32 s{sOL}, s{A}, s{B}
    s_add_u32 s{sOL+1}, s{sOL}, 4096
    s_add_u32 s{sOL+2}, s{sOL}, 8192
    s_add_u32 s{A}, s{A}, 10240
    s_sub_u32 s{sOR}, s{A}, s{B}
    s_lshl_b32 s{sPSO}, s{sRT}, 11
    s_add_u32 s{sPSO}, s{sPSO}, {PS}
    s_mov_b32 s{sRETRY}, {1<<16}
    s_add_u32 s{sOR+1}, s{sOR}, 4096
    s_add_u32 s{sPRB}, s{sOR}, 8192
    s_lshr_b32 s{A}, s{sRT}, 1
    s_lshl_b32 s{A}, s{A}, 12
    s_lshl_b32 s{B}, s{sHH}, 11
    s_add_u32 s{A}, s{A}, {FO}
    s_add_u32 s{sFLO}, s{A}, s{B}
    s_xor_b32 s{sFRE}, s{sFLO}, 2048
    v_mov_b32 v{t}, {F_WOR}
    v_mov_b32 v{t+1}, s{sTAG}
    s_cmp_eq_u32 s{sOSC}, 0
    s_cbranch_scc1 L_nofo
    s_mov_b64 exec, 3
    s_waitcnt vmcnt(0)
    buffer_store_dword v{t+1}, v{aFO}, {S4(sWS)}, 0 offen sc1
    s_mov_b64 exec, -1
    L_nofo:""")
    STAMP('fo')
    lds_wait(t,t+1,C,'gt',2,0)
    p(f"""ds_read_b32 v{SW}, v{t} offset:{L_SWS-F_WOR}
    L_wo:""")
    STAMP('wor')
    sROFF=[sOR,sOR+1,sPRB]
    LA=CFG['wla']; WE=CFG['wwe']
    LG=[]
    def af(m): return AF+4*(m%15)
    def aread(m):
        s_,t_=divmod(m,5)
        for rd in range(2):
            p(f"ds_read_b64_tr_b16 {vr(af(m)+2*rd,2)}, v{aAL if s_<10 else aAR} offset:{(s_%10)*5120+rd*2560+8*t_}"); LG.append(m)
    def lgw(m):
        k=[i for i,x in enumerate(LG) if x!='x' and x<=m]
        if not k: return None
        n=len(LG)-1-max(k); del LG[:max(k)+1]; return n
    def bload(s_):
        so=(sOL+(s_%10)//4) if s_<10 else sROFF[(s_%10)//4]
        return f"buffer_load_dwordx4 {vr(BF+4*s_,4)}, v{aLin}, {S4(sWS)}, s{so} offen offset:{(s_%10%4)*1024} sc1"
    for m in range(LA): aread(m)
    p(f"v_mov_b32 v{MXS}, 0\nv_mov_b32 v{t+7}, {F_WO2}")
    p(f"s_cmp_lg_u32 s{sMODE}, 0\ns_cbranch_scc1 L_plsl")
    probe(sOL,C)
    p("L_plr:")
    n0=len(p.L)
    p("L_plsl:"); flag_poll(aFR,t+4,sFLO,C); p("s_branch L_plr")
    COLD.append("\n".join(p.L[n0:])); del p.L[n0:]
    STAMP('pl')
    for s_ in range(10): p(bload(s_))
    p(f"buffer_load_dword v{t+4}, v{aFR}, {S4(sWS)}, s{sFRE} offen sc1")
    for m in range(100):
        s_,t_=divmod(m,5)
        if m==50:
            STAMP('loc')
            flag_poll(aFR,t+4,sFRE,C,first=False)
            STAMP('pr')
            for k in range(10,20): p(bload(k))
            if CFG['gstart']=='PR' or CFG['dstart']=='PR' or CFG['dgate']=='PR':
                p(f"""s_mov_b64 exec, 1
                v_mov_b32 v{t+4}, {F_PR}
                v_mov_b32 v{t+5}, 1
                ds_add_u32 v{t+4}, v{t+5}
                s_mov_b64 exec, -1"""); LG.append('x')
        w=[]
        if t_==0: w.append(f"vmcnt({(10-s_) if s_<10 else (19-s_)}")
        if m%WE==0:
            n=lgw(m+WE-1)
            if n is not None: w.append(f"lgkmcnt({n}")
        if w: p("s_waitcnt "+") ".join(w)+")")
        a_=vr(WACC+4*t_,4)
        p(f"v_mfma_f32_16x16x32_bf16 {a_}, {vr(af(m),4)}, {vr(BF+4*s_,4)}, {a_}")
        if m+LA==50-10: p(f"ds_read_b32 v{t+6}, v{t+7}"); LG.append('x')
        if m+LA==50:
            p(f"v_cmp_gt_u32 vcc, 2, v{t+6}\ns_nop 0\ns_cbranch_vccnz L_wo2w\nL_wo2r:")
            n0=len(p.L)
            p("L_wo2w:"); lds_wait(t+7,t+6,C,'gt',2,0); p("s_branch L_wo2r")
            COLD.append("\n".join(p.L[n0:])); del p.L[n0:]
        if m+LA<100: aread(m+LA)
        if t_==0 and s_<10: p(f"v_max3_u32 v{MXS}, v{BF+4*s_}, v{BF+4*s_+2}, v{MXS}")
    p(f"""v_cmp_eq_u32 vcc, -1, v{MXS}
    v_mov_b32 v{t}, 0x3f803f80
    v_mov_b32 v{t+2}, 0
    v_mov_b32 v{t+3}, 0
    v_mov_b32 v{t+4}, 0
    s_cbranch_vccnz L_woredo
    L_wook:""")
    STAMP('wend')
    COLD.append(f"L_woredo:\ns_sub_u32 s{sRETRY}, s{sRETRY}, 1\ns_cbranch_scc1 L_wook\ns_nop 7")
    q=P();
    COLD.append("\n".join(f"v_lshlrev_b32 v{WACC+2*k}, 16, v{XR+k}\nv_and_b32 v{WACC+2*k+1}, 0xffff0000, v{XR+k}" for k in range(10))+"\ns_branch L_wo")
    for k in range(10): p(f"v_cvt_pk_bf16_f32 v{HP+k}, v{WACC+2*k}, v{WACC+2*k+1}")
    for k in range(10):
        p(f"""v_dot2_f32_bf16 v{t+2}, v{HP+k}, v{t}, v{t+2}
        v_dot2_f32_bf16 v{t+4}, v{HP+k}, v{HP+k}, v{t+4}
        v_dot2_f32_bf16 v{t+3}, v{HP+k}, v{WR_+k}, v{t+3}""")
    p(f"""s_lshl_b32 s{A}, s{sJ}, 4
    s_add_u32 s{A}, s{A}, s{sPSO}""")
    red3(t+2,t+3,t+4,t+5)
    p(f"""v_mov_b32 v{t+5}, s{sTAG}
    s_mov_b64 exec, 0xffff
    s_cmp_lg_u32 s{sMODE}, 0
    s_cbranch_scc1 L_pssc
    buffer_store_dwordx4 {vr(t+2,4)}, v{aPS}, {S4(sWS)}, s{A} offen
    L_psr:
    s_mov_b64 exec, -1""")
    COLD.append(f"L_pssc:\nbuffer_store_dwordx4 {vr(t+2,4)}, v{aPS}, {S4(sWS)}, s{A} offen sc1\ns_branch L_psr")
    STAMP('ps')
    G=t+10
    lp=p.lab("ps"); ok=p.lab("psok"); md=p.lab("psm")
    ld=f"""buffer_load_dwordx4 {vr(G,4)}, v{aPS}, {S4(sWS)}, s{sPSO} offen sc1
    buffer_load_dwordx4 {vr(G+4,4)}, v{aPS}, {S4(sWS)}, s{sPSO} offen offset:16 sc1"""
    p(ld)
    for k in range(10): p(f"v_lshlrev_b32 v{HF_+2*k}, 16, v{HP+k}\nv_and_b32 v{HF_+2*k+1}, 0xffff0000, v{HP+k}")
    if CFG['dbg']:
        p(f"s_add_u32 s{A}, s{sXO}, {HB}")
        for o,n in ((0,4),(4,4),(8,2)): p(f"buffer_store_dwordx{n} {vr(HP+o,n)}, v{aX2}, {S4(sWS)}, s{A} offen offset:{4*o}")
    p(f"""s_lshl_b32 s{A}, s{sRT}, 4
    s_sub_u32 s{A}, 2047, s{A}
    v_and_b32 v{t}, 15, v0
    v_sub_u32 v{t+9}, s{A}, v{t}
    v_lshlrev_b32 v{t+9}, 3, v{t+9}
    s_lshl_b32 s{A}, s{sWAVE}, 6
    s_add_u32 s{A}, s{A}, {L_KEYS}
    v_lshl_add_u32 v{aKY}, v{t}, 2, s{A}
    v_and_b32 v{t}, 48, v0
    v_lshlrev_b32 v{t}, 2, v{t}
    v_add_u32 v{t+8}, {L_KEYS}, v{t}
    s_mov_b32 s{C}, {SPIN}
    s_branch {md}
    {lp}:
    {ld}
    {md}:
    s_waitcnt vmcnt(0)
    v_cmp_ne_u32 vcc, s{sTAG}, v{G+3}
    v_cmp_ne_u32 s[{sT+14}:{sT+15}], s{sTAG}, v{G+7}
    v_pk_add_f32 {vr(t+4,2)}, {vr(G,2)}, {vr(G+4,2)}
    v_add_f32 v{t+6}, v{G+2}, v{G+6}
    s_or_b64 vcc, vcc, s[{sT+14}:{sT+15}]
    s_cbranch_scc0 {ok}""")
    spin(C,lp,ok)
    p(f"""s_branch {lp}
    {ok}:""")
    STAMP('psr')
    if CFG['dgate']=='PS': p(f"""s_mov_b64 exec, 1
    v_mov_b32 v{G}, {F_PS}
    v_mov_b32 v{G+1}, 1
    ds_add_u32 v{G}, v{G+1}
    s_mov_b64 exec, -1""")
    M=t+4
    red3(M,M+1,M+2,M+3)
    p(f"""v_mul_f32 v{M}, {1/640!r}, v{M}
    v_mul_f32 v{M+2}, {1/640!r}, v{M+2}
    v_fma_f32 v{M+2}, -v{M}, v{M}, v{M+2}
    v_max_f32 v{M+2}, 0, v{M+2}""")
    bf16r(M+2,M+2)
    p(f"v_add_f32 v{M+2}, 0x3727c5ac, v{M+2}")
    bf16r(M+2,M+2)
    p(f"v_sqrt_f32 v{M+2}, v{M+2}")
    bf16r(M,M)
    bf16r(M+2,M+2)
    RS=t+2
    p(f"""v_rcp_f32 v{RS}, v{M+2}
    v_fma_f32 v{M+1}, -v{M}, v{SW}, v{M+1}
    v_mul_f32 v{M+1}, v{M+1}, v{RS}
    v_cvt_pk_bf16_f32 v{M+1}, v{M+1}, v{M+1}
    v_mul_f32 v{RS+1}, -v{M}, v{RS}
    v_ashrrev_i32 v{M+2}, 31, v{M+1}
    v_or_b32 v{M+2}, 0x80000000, v{M+2}
    v_xor_b32 v{M+1}, v{M+1}, v{M+2}
    v_and_b32 v{M+1}, 0xffff0000, v{M+1}
    v_or_b32 v{KEY}, v{M+1}, v{t+9}
    ds_write_b32 v{aKY}, v{KEY}""")
    for k in range(10): p(f"v_pk_fma_f32 {vr(WACC+2*k,2)}, {vr(HF_+2*k,2)}, {vr(RS,2)}, {vr(RS,2)} op_sel:[0,0,1] op_sel_hi:[1,0,1]")
    K16=AF
    lp=p.lab("ky"); ok=p.lab("kyok")
    p(f"s_mov_b32 s{C}, {SPIN*4}\n{lp}:")
    for i in range(4): p(f"ds_read_b128 {vr(K16+4*i,4)}, v{t+8} offset:{16*i}")
    p("s_waitcnt lgkmcnt(0)")
    p(f"v_max3_u32 v{t}, v{K16}, v{K16+1}, v{K16+2}")
    for i in range(3,15,2): p(f"v_max3_u32 v{t}, v{K16+i}, v{K16+i+1}, v{t}")
    p(f"""v_max_u32 v{t}, v{t}, v{K16+15}
    v_cmp_eq_u32 vcc, -1, v{t}
    v_mov_b32 v{t}, 0
    s_cbranch_vccz {ok}""")
    spin(C,lp,ok)
    p(f"s_branch {lp}\n{ok}:")
    STAMP('keys')
    m0_=sT+18
    for i in range(18):
        if i<16: p(f"v_cmp_gt_u32 s[{m0_+2*(i%2)}:{m0_+2*(i%2)+1}], v{K16+i}, v{KEY}") if False else None
    MK=[sT+14,sT+16,sT+18]
    for i in range(18):
        if i<16: m=MK[i%3]; p(f"v_cmp_gt_u32 s[{m}:{m+1}], v{K16+i}, v{KEY}")
        elif i==16: p("s_nop 0")
        if i>=2: m=MK[(i-2)%3]; p(f"v_addc_co_u32 v{t}, vcc, 0, v{t}, s[{m}:{m+1}]")
    p(f"""v_mov_b32 v{t+1}, v{t}
    v_cvt_pk_bf16_f32 v{LP}, v{WACC}, v{WACC+1}
    v_cvt_pk_bf16_f32 v{LP+1}, v{WACC+2}, v{WACC+3}
    v_permlane32_swap_b32 v{t}, v{t+1}
    v_cvt_pk_bf16_f32 v{LP+2}, v{WACC+4}, v{WACC+5}
    v_add_u32 v{t}, v{t}, v{t+1}
    v_mov_b32 v{t+1}, v{t}
    v_cvt_pk_bf16_f32 v{LP+3}, v{WACC+6}, v{WACC+7}
    v_cvt_pk_bf16_f32 v{LP+4}, v{WACC+8}, v{WACC+9}
    v_permlane16_swap_b32 v{t}, v{t+1}
    v_cvt_pk_bf16_f32 v{LP+5}, v{WACC+10}, v{WACC+11}
    v_add_u32 v{t}, v{t}, v{t+1}
    v_cmp_gt_u32 s[{sCAND}:{sCAND+1}], 8, v{t}
    v_or_b32 v{KEY}, v{KEY}, v{t}
    v_mov_b32 v{t+1}, {L_CA&~0xffff}
    v_lshl_add_u32 v{t+1}, v{t}, 3, v{t+1}
    v_mov_b32 v{KEY+1}, s{sTAG}
    s_cmp_lg_u32 s{sJ}, 0
    s_cbranch_scc1 L_noca
    s_and_b32 exec_lo, s{sCAND}, 0xffff
    s_mov_b32 exec_hi, 0
    ds_write_b64 v{t+1}, {vr(KEY,2)} offset:{L_CA&0xffff}
    s_mov_b64 exec, 0xff
    s_cmp_lg_u32 s{sWAVE}, 0
    s_cbranch_scc1 L_noca
    v_lshlrev_b32 v{t+2}, 3, v0
    v_add_u32 v{t+3}, {L_CA}, v{t+2}
    s_lshl_b32 s{A}, s{sBLK}, 7
    s_add_u32 s{A}, s{A}, {CA}
    s_mov_b32 s{C}, {SPIN*4}
    L_cal:
    ds_read_b64 v[{t+4}:{t+5}], v{t+3}
    s_waitcnt lgkmcnt(0)
    v_cmp_ne_u32 vcc, s{sTAG}, v{t+5}
    s_nop 0
    s_cbranch_vccz L_caok""")
    spin(C,"L_cal","L_caok")
    p(f"""s_branch L_cal
    L_caok:
    buffer_store_dwordx2 v[{t+4}:{t+5}], v{t+2}, {S4(sWS)}, s{A} offen sc1
    L_noca:
    s_mov_b64 exec, -1""")
    STAMP('ca')
    for k in range(6,10): p(f"v_cvt_pk_bf16_f32 v{LP+k}, v{WACC+2*k}, v{WACC+2*k+1}")
    p(f"""v_lshrrev_b32 v{t+1}, 4, v0
    v_mul_u32_u24 v{t+1}, 40, v{t+1}
    v_mul_u32_u24 v{t}, 2560, v{t}
    v_add_u32 v{aCD}, v{t}, v{t+1}
    s_mul_i32 s{A}, s{sBLK}, 20480
    s_mul_i32 s{B}, s{sJ}, 160
    s_add_u32 s{A}, s{A}, s{B}
    s_add_u32 s{A}, s{A}, {CAND}
    s_and_b64 exec, s[{sCAND}:{sCAND+1}], -1
    s_cbranch_scc0 L_nocd""")
    for base,off in ((LP,0),(HP,1280)):
        if 'nocand' in CFG['xp'] or ('noh' in CFG['xp'] and off): continue
        for o,n in ((0,4),(4,4),(8,2)): p(f"buffer_store_dwordx{n} {vr(base+o,n)}, v{aCD}, {S4(sWS)}, s{A} offen offset:{off+4*o} sc1")
    p("L_nocd:\ns_mov_b64 exec, -1")
    for k in range(10): p(f"v_pk_add_f32 {vr(WACC+2*k,2)}, {vr(WACC+2*k,2)}, {vr(HF_+2*k,2)}")
    for k in range(10): p(f"v_cvt_pk_bf16_f32 v{OP+k}, v{WACC+2*k}, v{WACC+2*k+1}")
    p(f"s_andn2_b64 exec, -1, s[{sCAND}:{sCAND+1}]\ns_cbranch_scc0 L_noo1")
    if 'noout' not in CFG['xp']: out_store()
    p("L_noo1:")
    if 1: p(f"""s_mov_b64 exec, 1
    v_mov_b32 v{t+4}, {F_O1}
    v_mov_b32 v{t+5}, 1
    ds_add_u32 v{t+4}, v{t+5}
    s_mov_b64 exec, -1""")
    else: p("s_mov_b64 exec, -1")
    STAMP('o1')
KEY=228; sCAND=sT+20
def out_store():
    for o,n in ((0,4),(4,4),(8,2)): p(f"buffer_store_dwordx{n} {vr(OP+o,n)}, v{aX2}, {S4(sOUT)}, s{sXO} offen offset:{4*o} {CFG['opol']}")

def moe_weights():
    A=sT+7; B=sT+8; vt=2; D=40; aW_=12
    gu=p.lab("mwgu"); wr=p.lab("mwwr"); en=p.lab("mwend")
    FA=dict(WOD=(F_WOD,2),PR=(F_PR,4),O1=(F_O1,4),DONE=(F_DONE,4),G2=(F_G2,2),PS=(F_PS,4),WO2=(F_WO2,2))
    def gate(k):
        p(f"v_mov_b32 v{vt+4}, {FA[k][0]}")
        lds_wait(vt+4,vt+5,sT+5,'gt',FA[k][1],2)
    pl_=p.lab("mwpl")
    p(f"""s_cmp_ge_u32 s{sSLOT}, 17
    s_cbranch_scc1 {pl_}
    v_bfe_u32 v{vt}, v0, 3, 2
    v_lshrrev_b32 v{vt+1}, 5, v0
    v_lshlrev_b32 v{vt}, 1, v{vt}
    v_add_lshl_u32 v{vt}, v{vt}, v{vt+1}, 2
    v_bfe_u32 v{vt+1}, v0, 1, 2
    v_add_u32 v{vt}, v{vt}, v{vt+1}
    v_and_b32 v{vt+1}, 1, v0
    v_lshlrev_b32 v{vt+1}, 4, v{vt+1}
    s_cmp_lt_u32 s{sSLOT}, 12
    s_cbranch_scc1 {gu}
    v_mul_u32_u24 v{vt}, 1280, v{vt}
    v_add_u32 v{aW_}, v{vt}, v{vt+1}
    s_mul_i32 s{A}, s{sG}, 5
    s_add_u32 s{A}, s{A}, s{sSLOT}
    s_sub_u32 s{A}, s{A}, 12
    s_lshl_b32 s{A}, s{A}, 5
    s_mul_i32 s{B}, s{HW}, {12*32*1280}
    s_add_u32 s{A}, s{A}, s{B}""")
    gate(CFG['dstart'])
    STAMP('mg')
    for s_ in range(12):
        if s_>=CFG['ddep']: p(f"s_waitcnt vmcnt({CFG['ddep']-1})")
        p(f"buffer_load_dwordx4 {vr(D+4*s_,4)}, v{aW_}, {S4(sWD)}, s{A} offen {CFG['mpol']}")
        if s_<11: p(f"s_add_u32 s{A}, s{A}, {32*1280}")
    p(f"""s_mul_i32 s{B}, s{HW}, 12288
    s_branch {wr}
    {pl_}:""")
    if CFG['dgate']!='no' and not CFG['dw3']:
        gate(CFG['dgate'])
        touch(vTD,sWD,CFG['mpair'])
        STAMP('mg')
        if CFG['prof']: p("s_waitcnt vmcnt(0)"); STAMP('mw')
    p(f"""s_branch {en}
    {gu}:
    v_mul_u32_u24 v{vt}, 3072, v{vt}
    v_add_u32 v{aW_}, v{vt}, v{vt+1}
    s_mul_i32 s{A}, s{sG}, 12
    s_add_u32 s{A}, s{A}, s{sSLOT}
    s_lshl_b32 s{A}, s{A}, 5
    s_mul_i32 s{B}, s{HW}, {5*32*3072}
    s_add_u32 s{A}, s{A}, s{B}""")
    gate(CFG['gstart'])
    STAMP('mg')
    for s_ in range(5):
        for m_ in range(2):
            if 2*s_+m_>=CFG['mdep']: p(f"s_waitcnt vmcnt({CFG['mdep']-1})")
            p(f"buffer_load_dwordx4 {vr(D+8*s_+4*m_,4)}, v{aW_}, {S4((sWG,sWU)[m_])}, s{A} offen {CFG['mpol']}")
        if s_<4: p(f"s_add_u32 s{A}, s{A}, {32*3072}")
    p(f"s_mul_i32 s{B}, s{HW}, 12288\n{wr}:\nv_lshl_add_u32 v{vt}, v0, 4, s{B}")
    gate('DONE')
    p("s_waitcnt vmcnt(0)")
    for s_ in range(12): p(f"ds_write_b128 v{vt}, {vr(D+4*s_,4)} offset:{L_MW+s_*1024}")
    p(f"""s_lshl_b32 s{A}, s{HW}, 2
    s_add_u32 s{A}, s{A}, {F_MW}
    v_mov_b32 v{vt}, s{A}
    ds_write_b32 v{vt}, v{vt}
    s_waitcnt lgkmcnt(0)""")
    STAMP('mw')
    p(f"{en}:")
def top8(R,K2,K1,y,tt):
    def clean(chs):
        seq=[]
        for (x,y_,t_) in chs:
            seq.append([f"v_max_u32_dpp v{y_}, v{x}, v{x} row_shl:4 row_mask:0xf bank_mask:0x5",
                        f"v_min_u32_dpp v{y_}, v{x}, v{x} row_shr:4 row_mask:0xf bank_mask:0xa",
                        None,
                        f"v_mov_b32_dpp v{t_}, v{y_} quad_perm:[2,3,0,1] row_mask:0xf bank_mask:0xf",
                        f"v_med3_u32 v{y_}, v{y_}, v{t_}, v{K2}",
                        None,
                        f"v_mov_b32_dpp v{t_}, v{y_} quad_perm:[1,0,3,2] row_mask:0xf bank_mask:0xf",
                        f"v_med3_u32 v{x}, v{y_}, v{t_}, v{K1}"])
        n=len(chs)
        p(f"s_nop {2-n}")
        for i in range(8):
            if seq[0][i] is None: p(f"s_nop {2-n}")
            else:
                for c in seq: p(c[i])
                if i==0 and n==1: p("s_nop 1")
                elif i==0: p("s_nop 0")
    dp="row_mask:0xf bank_mask:0xf"
    p(f"v_max_u32_dpp v{R}, v{R+2}, v{R} row_half_mirror {dp}\nv_max_u32_dpp v{R+4}, v{R+6}, v{R+4} row_half_mirror {dp}")
    clean([(R,y,tt),(R+4,y+1,tt+1)])
    p(f"s_nop 1\nv_max_u32_dpp v{R}, v{R+4}, v{R} row_half_mirror {dp}")
    clean([(R,y,tt)])
    p(f"s_nop 1\nv_max_u32_dpp v{R}, v{R}, v{R} row_mirror {dp}")
    clean([(R,y,tt)])
    for msk,sw in ((0xa,16),(0xc,32)):
        p(f"""s_nop 1
        v_mov_b32_dpp v{R}, v{R} row_half_mirror row_mask:{hex(msk)} bank_mask:0xf
        v_mov_b32 v{tt}, v{R}
        s_nop 1
        v_permlane{sw}_swap_b32 v{R}, v{tt}
        s_nop 0
        v_max_u32 v{R}, v{R}, v{tt}""")
        clean([(R,y,tt)])
def moe():
    t=vT; A=sT+7; B=sT+8; C=sT+17; sTHR=sT+14
    R=12; K2=20; K1=21; aC=22; AW=108
    BL=160
    p(f"""s_cmp_ge_u32 s{sSLOT}, 17
    s_cbranch_scc1 L_plain
    v_lshrrev_b32 v{t}, 3, v0
    v_and_b32 v{t+1}, 7, v0
    v_lshlrev_b32 v{t+1}, 3, v{t+1}
    v_lshl_add_u32 v{aC}, v{t}, 7, v{t+1}
    s_mov_b32 s{B}, {CA}""")
    ld="\n".join(f"buffer_load_dwordx2 {vr(R+2*i,2)}, v{aC}, {S4(sWS)}, s{B} offen offset:{i*1024} sc1" for i in range(4))
    aMF=4; aMW=5
    def getw():
        lds_wait(AW-aMF,t+10 if False else AW,C,'eq',0,0)
        STAMP('mwr')
        for s_ in range(12):
            for rd in range(2): p(f"ds_read_b64_tr_b16 {vr(AW+4*s_+2*rd,2)}, v{AW-aMW} offset:{L_MW+s_*1024+rd*512}")
    p(f"""s_cmp_lg_u32 s{sWAVE}, 0
    s_cbranch_scc1 L_nocal
    {ld}
    L_nocal:
    v_bfe_i32 v{K2}, v0, 1, 1
    v_bfe_i32 v{K1}, v0, 0, 1
    v_not_b32 v{K2}, v{K2}
    v_not_b32 v{K1}, v{K1}
    s_lshl_b32 s{A}, s{sWAVE}, 2
    s_add_u32 s{A}, s{A}, {F_MW}
    v_mov_b32 v{AW-aMF}, s{A}
    s_mul_i32 s{A}, s{sWAVE}, 12288
    v_lshl_add_u32 v{AW-aMW}, v0, 3, s{A}
    v_and_b32 v{t}, 7, v0
    v_lshlrev_b32 v{t}, 2, v{t}
    v_add_u32 v{AW-6}, {L_TOP}, v{t}
    s_cmp_ge_u32 s{sSLOT}, 12
    s_cbranch_scc1 L_now""")
    getw()
    lp=p.lab("ca"); ok=p.lab("caok"); md=p.lab("cam")
    p(f"""L_now:
    s_cmp_lg_u32 s{sWAVE}, 0
    s_cbranch_scc1 L_topw
    s_mov_b32 s{C}, {SPIN}
    s_branch {md}
    {lp}:
    {ld}
    {md}:
    s_waitcnt vmcnt(0)
    v_xor_b32 v{t}, v{R+1}, v{R+3}
    v_xor_b32 v{t+1}, v{R+5}, v{R+7}
    v_xor_b32 v{R+1}, s{sTAG}, v{R+1}
    v_xor_b32 v{R+5}, s{sTAG}, v{R+5}
    v_or3_b32 v{t}, v{t}, v{t+1}, v{R+1}
    v_or_b32 v{t}, v{t}, v{R+5}
    v_cmp_ne_u32 vcc, 0, v{t}
    s_nop 0
    s_cbranch_vccz {ok}""")
    spin(C,lp,ok,CFG['casl'])
    p(f"s_branch {lp}\n{ok}:")
    STAMP('car')
    top8(R,K2,K1,t,t+2)
    p(f"ds_write_b32 v{AW-6}, v{R}\ns_branch L_top\nL_topw:\ns_waitcnt vmcnt(0)")
    lds_wait(AW-6,R,C,'eq',-1,0)
    p("L_top:")
    STAMP('top')
    TOK=t+1; aR=t+2
    p(f"""v_bfe_u32 v{TOK}, v{R}, 3, 11
    v_sub_u32 v{TOK}, 2047, v{TOK}
    v_lshrrev_b32 v{t}, 6, v{TOK}
    v_and_b32 v{aR}, 7, v{R}
    v_lshl_add_u32 v{aR}, v{t}, 3, v{aR}
    v_mul_u32_u24 v{aR}, 2560, v{aR}
    v_lshrrev_b32 v{t}, 4, v0
    v_readlane_b32 s{sTHR}, v{R}, 7
    s_cmp_ge_u32 s{sSLOT}, 12
    s_cbranch_scc1 L_down""")
    def deferred(tag):
        p(f"""v_cmp_gt_u32 vcc, s{sTHR}, v{KEY}
        s_nop 0
        s_and_b64 exec, vcc, s[{sCAND}:{sCAND+1}]
        s_cbranch_scc0 L_nd{tag}""")
        out_store()
        p(f"L_nd{tag}:\ns_mov_b64 exec, -1")
    p(f"""v_lshl_add_u32 v{aR}, v{t}, 4, v{aR}
    s_mul_i32 s{A}, s{sWAVE}, 320
    s_add_u32 s{A}, s{A}, {CAND}""")
    ld="\n".join(f"buffer_load_dwordx4 {vr(BL+4*i,4)}, v{aR}, {S4(sWS)}, s{A} offen offset:{i*64} sc1" for i in range(5))
    lp=p.lab("gl"); ok=p.lab("glok"); md=p.lab("glm"); nt=p.lab("noth")
    p(ld)
    p(f"""s_or_b32 s{B}, s{sSLOT}, s{sWAVE}
    s_cbranch_scc1 {nt}
    v_mov_b32 v{t+4}, s{sTHR}
    v_mov_b32 v{t+5}, s{sTAG}
    s_lshl_b32 s{B}, s{sG}, 7
    s_add_u32 s{B}, s{B}, {TH}
    v_mov_b32 v{t+6}, 0
    s_mov_b64 exec, 1
    buffer_store_dwordx2 v[{t+4}:{t+5}], v{t+6}, {S4(sWS)}, s{B} offen sc1
    s_mov_b64 exec, -1
    {nt}:
    s_lshl_b32 s{B}, s{sWAVE}, 11
    s_add_u32 s{B}, s{B}, {L_RED}
    v_lshl_add_u32 v{t+3}, v0, 4, s{B}
    s_mov_b32 s{C}, {SPIN}
    s_branch {md}
    {lp}:
    {ld}
    {md}:
    s_waitcnt vmcnt(0) lgkmcnt(0)
    v_max3_u32 v{t+4}, v{BL}, v{BL+2}, v{BL+4}
    v_max3_u32 v{t+5}, v{BL+6}, v{BL+8}, v{BL+10}
    v_max3_u32 v{t+4}, v{BL+12}, v{BL+14}, v{t+4}
    v_max3_u32 v{t+5}, v{BL+16}, v{BL+18}, v{t+5}
    v_max_u32 v{t+4}, v{t+4}, v{t+5}
    v_cmp_eq_u32 vcc, -1, v{t+4}
    s_nop 0
    {'s_branch' if 'nocand' in CFG['xp'] else 's_cbranch_vccz'} {ok}""")
    spin(C,lp,ok)
    p(f"s_branch {lp}\n{ok}:")
    STAMP('lr')
    G=20; U=24; X=28
    for s_ in range(5):
        for m_,a_ in ((0,G),(1,U)):
            p(f"v_mfma_f32_16x16x32_bf16 {vr(a_,4)}, {vr(AW+8*s_+4*m_,4)}, {vr(BL+4*s_,4)}, {vr(a_,4) if s_ else 0}")
    w0=p.lab("guw0")
    p(f"""s_cmp_eq_u32 s{sWAVE}, 0
    s_cbranch_scc1 {w0}
    s_nop 5
    ds_write_b128 v{t+3}, {vr(G,4)}
    ds_write_b128 v{t+3}, {vr(U,4)} offset:1024
    s_waitcnt lgkmcnt(0)
    s_barrier""")
    deferred('g1')
    END()
    p(f"""{w0}:
    s_mul_i32 s{A}, s{sG}, 12
    s_add_u32 s{A}, s{A}, s{sSLOT}
    s_lshl_b32 s{A}, s{A}, 8
    s_add_u32 s{A}, s{A}, {ACT}
    v_and_b32 v{t+4}, 7, v0
    v_lshlrev_b32 v{t+4}, 4, v{t+4}
    v_lshrrev_b32 v{t+5}, 5, v0
    v_lshl_add_u32 v{t+4}, v{t+5}, 7, v{t+4}
    v_bfe_u32 v{t+5}, v0, 4, 1
    v_lshl_add_u32 v{t+4}, v{t+5}, 3, v{t+4}
    s_barrier""")
    for w_ in range(1,4):
        for m_ in range(2): p(f"ds_read_b128 {vr(X+8*(w_-1)+4*m_,4)}, v{t+3} offset:{w_*2048+m_*1024}")
    p(f"s_mov_b32 s{B}, {hex(f2u(-math.log2(math.e)))}")
    for w_ in range(3):
        p(f"s_waitcnt lgkmcnt({4-2*w_})")
        for k in range(4): p(f"v_pk_add_f32 {vr(G+2*k,2)}, {vr(G+2*k,2)}, {vr(X+8*w_+2*k,2)}")
    p(f"""v_cvt_pk_bf16_f32 v{X}, v{G}, v{G+1}
    v_cvt_pk_bf16_f32 v{X+1}, v{G+2}, v{G+3}
    v_cvt_pk_bf16_f32 v{X+2}, v{U}, v{U+1}
    v_cvt_pk_bf16_f32 v{X+3}, v{U+2}, v{U+3}""")
    for k in range(4): p(f"v_lshlrev_b32 v{G+2*k}, 16, v{X+k}\nv_and_b32 v{G+2*k+1}, 0xffff0000, v{X+k}")
    for k in range(4): p(f"v_mul_f32 v{X+k}, s{B}, v{G+k}")
    for k in range(4): p(f"v_exp_f32 v{X+k}, v{X+k}")
    for k in range(4): p(f"v_add_f32 v{X+k}, 1.0, v{X+k}")
    for k in range(4): p(f"v_rcp_f32 v{X+k}, v{X+k}")
    for k in range(4): p(f"v_mul_f32 v{G+k}, v{G+k}, v{X+k}")
    p(f"v_cvt_pk_bf16_f32 v{X}, v{G}, v{G+1}\nv_cvt_pk_bf16_f32 v{X+1}, v{G+2}, v{G+3}")
    for k in range(2): p(f"v_lshlrev_b32 v{G+2*k}, 16, v{X+k}\nv_and_b32 v{G+2*k+1}, 0xffff0000, v{X+k}")
    p(f"""v_pk_mul_f32 {vr(G,2)}, {vr(G,2)}, {vr(U,2)}
    v_pk_mul_f32 {vr(G+2,2)}, {vr(G+2,2)}, {vr(U+2,2)}
    v_cvt_pk_bf16_f32 v{X}, v{G}, v{G+1}
    v_cvt_pk_bf16_f32 v{X+1}, v{G+2}, v{G+3}
    s_mov_b32 exec_lo, 0x00ff00ff
    s_mov_b32 exec_hi, 0x00ff00ff
    buffer_store_dwordx2 {vr(X,2)}, v{t+4}, {S4(sWS)}, s{A} offen sc1
    s_mov_b64 exec, -1""")
    STAMP('act')
    deferred('g0')
    END()
    HL=20; Y=24; X=28; SG=t+8; aO2=t+9
    p(f"""L_down:
    v_lshl_add_u32 v{aR}, v{t}, 3, v{aR}
    v_mul_u32_u24 v{aO2}, 1280, v{TOK}
    v_lshl_add_u32 v{aO2}, v{t}, 3, v{aO2}
    v_and_b32 v{t+4}, 7, v0
    v_lshlrev_b32 v{t+4}, 4, v{t+4}
    v_lshl_add_u32 v{t+4}, v{t}, 7, v{t+4}
    s_mul_i32 s{sT+1}, s{sG}, 5
    s_add_u32 s{sT+1}, s{sT+1}, s{sSLOT}
    s_sub_u32 s{sT+1}, s{sT+1}, 12
    s_lshl_b32 s{sT+1}, s{sT+1}, 5
    s_add_u32 s{sT+2}, s{sT+1}, {CAND}
    s_mul_i32 s{A}, s{sWAVE}, 6144
    s_add_u32 s{A}, s{A}, {ACT}
    s_add_u32 s{B}, s{A}, 4096""")
    ldh=f"buffer_load_dwordx2 {vr(HL,2)}, v{aR}, {S4(sWS)}, s{sT+2} offen sc1\nbuffer_load_dwordx2 {vr(HL+2,2)}, v{aR}, {S4(sWS)}, s{sT+2} offen offset:1280 sc1"
    p(ldh)
    deferred('d')
    p(f"""v_ashrrev_i32 v{SG}, 31, v{R}
    v_not_b32 v{SG}, v{SG}
    v_or_b32 v{SG}, 0x80000000, v{SG}
    v_xor_b32 v{SG}, v{SG}, v{R}
    v_and_b32 v{SG}, 0xffff0000, v{SG}
    v_mul_f32 v{SG}, {hex(f2u(-math.log2(math.e)))}, v{SG}
    v_exp_f32 v{SG}, v{SG}
    s_lshl_b32 s{C}, s{sWAVE}, 10
    v_add_f32 v{SG}, 1.0, v{SG}
    v_rcp_f32 v{SG}, v{SG}
    s_add_u32 s{C}, s{C}, {L_RED}
    v_lshl_add_u32 v{t+3}, v0, 4, s{C}""")
    bf16r(SG,SG)
    lp=p.lab("hl"); ok=p.lab("hlok"); md=p.lab("hlm")
    p(f"""s_mov_b32 s{C}, {SPIN}
    s_branch {md}
    {lp}:
    {ldh}
    {md}:
    s_waitcnt vmcnt(0)
    v_max_u32 v{t+5}, v{HL}, v{HL+2}
    v_cmp_eq_u32 vcc, -1, v{t+5}
    s_nop 0
    {'s_branch' if CFG['xp'] else 's_cbranch_vccz'} {ok}""")
    spin(C,lp,ok)
    p(f"s_branch {lp}\n{ok}:")
    getw()
    ld="\n".join([f"buffer_load_dwordx4 {vr(BL+4*i,4)}, v{t+4}, {S4(sWS)}, s{A if i<8 else B} offen offset:{(i%8)*512} sc1" for i in range(12)])
    lp=p.lab("al"); ok=p.lab("alok")
    p(f"""s_mov_b32 s{C}, {SPIN}
    {lp}:
    {ld}
    s_waitcnt vmcnt(8)
    v_max3_u32 v{t+5}, v{BL}, v{BL+2}, v{BL+4}
    v_max3_u32 v{t+6}, v{BL+6}, v{BL+8}, v{BL+10}
    v_max3_u32 v{t+5}, v{BL+12}, v{BL+14}, v{t+5}""")
    for i in range(4,12):
        if i%4==0: p(f"s_waitcnt vmcnt({8-i})")
        p(f"v_max3_u32 v{t+5+(i&1)}, v{BL+4*i}, v{BL+4*i+2}, v{t+5+(i&1)}")
    p(f"""v_max_u32 v{t+5}, v{t+5}, v{t+6}
    v_cmp_eq_u32 vcc, -1, v{t+5}
    s_waitcnt lgkmcnt(0)
    s_cbranch_vccz {ok}""")
    spin(C,lp,ok,CFG['acsl'])
    p(f"s_branch {lp}\n{ok}:")
    STAMP('ar')
    for s_ in range(12): p(f"v_mfma_f32_16x16x32_bf16 {vr(Y,4)}, {vr(AW+4*s_,4)}, {vr(BL+4*s_,4)}, {vr(Y,4) if s_ else 0}")
    w0=p.lab("dnw0")
    p(f"""s_cmp_eq_u32 s{sWAVE}, 0
    s_cbranch_scc1 {w0}
    s_nop 5
    ds_write_b128 v{t+3}, {vr(Y,4)}
    s_waitcnt lgkmcnt(0)
    s_barrier""")
    END()
    p(f"""{w0}:
    v_lshlrev_b32 v{X+12}, 16, v{HL}
    v_and_b32 v{X+13}, 0xffff0000, v{HL}
    v_lshlrev_b32 v{X+14}, 16, v{HL+1}
    v_and_b32 v{X+15}, 0xffff0000, v{HL+1}
    v_lshlrev_b32 v{X+16}, 16, v{HL+2}
    v_and_b32 v{X+17}, 0xffff0000, v{HL+2}
    v_lshlrev_b32 v{X+18}, 16, v{HL+3}
    v_and_b32 v{X+19}, 0xffff0000, v{HL+3}
    s_barrier""")
    for w_ in range(1,4): p(f"ds_read_b128 {vr(X+4*(w_-1),4)}, v{t+3} offset:{w_*1024}")
    for w_ in range(3):
        p(f"s_waitcnt lgkmcnt({2-w_})")
        for k in range(2): p(f"v_pk_add_f32 {vr(Y+2*k,2)}, {vr(Y+2*k,2)}, {vr(X+4*w_+2*k,2)}")
    def rnd():
        p(f"v_cvt_pk_bf16_f32 v{X}, v{Y}, v{Y+1}\nv_cvt_pk_bf16_f32 v{X+1}, v{Y+2}, v{Y+3}")
    def unp():
        for k in range(2): p(f"v_lshlrev_b32 v{Y+2*k}, 16, v{X+k}\nv_and_b32 v{Y+2*k+1}, 0xffff0000, v{X+k}")
    rnd(); unp()
    for k in range(4): p(f"v_mul_f32 v{Y+k}, v{SG}, v{Y+k}")
    rnd(); unp()
    for k in range(2): p(f"v_pk_add_f32 {vr(Y+2*k,2)}, {vr(Y+2*k,2)}, {vr(X+12+2*k,2)}")
    rnd(); unp()
    for k in range(2): p(f"v_pk_add_f32 {vr(Y+2*k,2)}, {vr(Y+2*k,2)}, {vr(X+16+2*k,2)}")
    rnd()
    p(f"""s_mov_b32 exec_lo, 0x00ff00ff
    s_mov_b32 exec_hi, 0x00ff00ff
    buffer_store_dwordx2 {vr(X,2)}, v{aO2}, {S4(sOUT)}, s{sT+1} offen sc1""")
    STAMP('fin')
    END()
    lp=p.lab("th"); ok=p.lab("thok")
    p(f"""L_plain:
    s_lshl_b32 s{B}, s{sG}, 7
    s_add_u32 s{B}, s{B}, {TH}
    v_mov_b32 v{t}, 0
    s_mov_b32 s{C}, {SPIN}
    {lp}:
    s_sleep 16
    buffer_load_dwordx2 v[{t+2}:{t+3}], v{t}, {S4(sWS)}, s{B} offen sc1
    s_waitcnt vmcnt(0)
    v_cmp_ne_u32 vcc, s{sTAG}, v{t+3}
    s_nop 0
    s_cbranch_vccz {ok}""")
    spin(C,lp,ok)
    p(f"""s_branch {lp}
    {ok}:
    v_readfirstlane_b32 s{sTHR}, v{t+2}
    s_nop 1""")
    deferred('p')
    STAMP('fin')

def build():
    prologue()
    steps=loader()
    helperA(steps)
    p("s_branch L_mw")
    helperB(steps)
    p("L_mw:")
    moe_weights()
    END()
    p("L_comp:")
    if CFG['prio']: p(f"s_setprio {CFG['prio']}")
    p("s_waitcnt lgkmcnt(0)")
    STAMP('start')
    prologue2()
    if CFG['cpf']: code_pf()
    srd(((sX,2621440),))
    gemm_setup()
    clears(0)
    if CFG['clr']==0: clears(1)
    p("s_waitcnt lgkmcnt(0)")
    mktag()
    p(f"""    s_cmp_eq_u32 s{sLC}, 15
    s_cbranch_scc1 L_gS
    s_cmp_eq_u32 s{sTY}, 2
    s_cbranch_scc1 L_gV""")
    gemm_loop('T'); gemm_epi('T'); p("s_branch L_att")
    p("L_gS:"); idle_gemm(); p("s_branch L_att")
    p("L_gV:"); gemm_loop('V'); gemm_epi('V')
    p("L_att:")
    p(f"v_mov_b32 v{aCLS}, 0x207")
    att_pro()
    for w in range(4): att_variant(w)
    att_fin()
    wo_main()
    if CFG['stop']<=3:
        p(f"s_and_b64 exec, s[{sCAND}:{sCAND+1}], -1\ns_cbranch_scc0 L_noo2"); out_store(); p("L_noo2:")
    else: moe()
    END()
    att_cold()
    for c in COLD: p(c)
    p("L_exit:\ns_endpgm")
build()
errs=check(p.L)
hdr=f"""; generated by work/k/gen.py (own generator script)
; @launch grid=(256,1,1) block=(512,1,1) lds=163840
.amdgcn_target "amdgcn-amd-amdhsa--gfx950"
.text
.globl {NAME}_kernel
.p2align 8
.type {NAME}_kernel,@function
{NAME}_kernel:
"""
ftr=f""".section .rodata,"a"
.p2align 6
.amdhsa_kernel {NAME}_kernel
  .amdhsa_next_free_vgpr 256
  .amdhsa_next_free_sgpr 102
  .amdhsa_accum_offset 256
  .amdhsa_group_segment_fixed_size 0
  .amdhsa_kernarg_size 88
  .amdhsa_user_sgpr_count 2
  .amdhsa_user_sgpr_kernarg_segment_ptr 1
  .amdhsa_system_sgpr_workgroup_id_x 1
.end_amdhsa_kernel
"""
open(sys.argv[1],"w").write(hdr+p.text()+ftr)

import subprocess
r=subprocess.run(["clang","-x","assembler","-target","amdgcn-amd-amdhsa","-mcpu=gfx950",sys.argv[1],"-o",sys.argv[1]+".co"],capture_output=True,text=True)
if r.returncode: print(r.stderr[:3000]); sys.exit(1)
r=subprocess.run(["python3","cdna_unwritten_srd_check.py",sys.argv[1]+".co"],capture_output=True,text=True)
if r.returncode: print("SRDCHECK:",r.stdout[-3000:],r.stderr[-1000:])
r=subprocess.run("llvm-size -A "+sys.argv[1]+".co | grep text",shell=True,capture_output=True,text=True); print(r.stdout.strip())
if errs: sys.exit(1)
```

```python
import sys, math
from asmlib import *
NAME="sequential_preLN__sliding_block__moe_arch_mod__prompt"
CFG=dict(wose=2, late1=1, sdef=(1,1,1,1), pt2=7, qpair2=0, nacc=8, sfirst=1, prio=0, smode='dot', sfill=(), acsl=0, casl=0, xp=(), dw3=0, wla=7, wwe=2, dgate='O1', dstart='O1', gstart='WOD', mdep=1, ddep=12, qpair=0, mpair=1, wpair=0, xnt=10, wnt=0, tpol2='', wtw='no', mtw='w3', wothr1=4, mb=(6,6), mg=('WOD','PR','PR','O1'), mpf=0, mgate='b3', hsplit=0, cpf=1, npf=(0,)*10, wogs=5, clr=0, wot=(), wtpol='', seqs=None, xpol='nt', wpol='', tpol='nt', wopol='', mpol='', cal=None, opol='', st=['start','b0|hb0','gend|hb9','E1|hE1','st|halo|clr','fl|g2|wo','fseen|h2','kv','aend','ost'], pt=7, wothr=16, wogate=1, h2sl=1, noh2=0, nowo=0, wos=(0,0,0), sched=(1,2,1,1,1,1,1,0,0,0), dbg=0, stop=99, prof=0, rot=('0123','36947580','05278052'), force_slow=0, noclr=0, pre=2, ldst=0, nomfma=0, nohello=0)
for a in sys.argv[2:]:
    k,v=a.split("="); CFG[k]=eval(v)
QB,KB,VB,KH,VH,OB=[i*0x280000 for i in range(6)]
CAND=0xF00000
PS=0xFA0000
CA=0xFE0000
ACT=0xFE1000
HB=0x1000000
PROF=0x1300000
H1=0x1280000; H2=0x1281000; EPO=0x1282000; TH=0x1283000
STP=0x1680000; STX=0x1780000
FO=0x1700000; OB2=0x1400000; FL=0x12A0000; FH=0x1740000
L_STG=0; L_KV=10240; L_WO=55296; L_MISC=157696; L_MW=0
L_CS=L_MISC
L_SA=L_MISC+512
L_SR=L_SA+1024
L_MODE=L_SR+512
L_FLG=L_MODE+64
F_G1,F_G2,F_H2,F_STG,F_SCP,F_DONE,F_WOR,F_MW=[L_FLG+4*i for i in (0,1,2,4,8,9,10,12)]
L_SWS=L_FLG+80; F_O1=L_FLG+44; F_WOD=L_FLG+64; F_PR=L_FLG+68; F_WO2=L_FLG+72; F_PS=L_FLG+76
L_KEYS=L_FLG+128
L_CA=L_KEYS+256; L_TOP=L_CA+64
L_RED=L_WO
sX,sW,sWO,sWG,sWU,sWD,sOUT,sWS,sDBG,sWR=[4+4*i for i in range(10)]
sWAVE,sG,sSLOT,sRQ,sHH,sRB,sCT,sMODE,sEP,sTAG=range(44,54)
sT=54
sLO=76
sPROF=80
p=P()
COLD=[]
CALI=lambda: 's_memtime' if CFG['cal'][1]>20000 else 's_memrealtime'
def STAMP(name,w=0):
    if CFG['cal'] and name in CFG['cal'][0].split('|'):
        p(f"{CALI()} s[{sPROF}:{sPROF+1}]")
        if w: p("s_waitcnt lgkmcnt(0)")
    i=[k for k,n in enumerate(CFG['st']) if name in n.split('|')]
    if CFG['prof'] and i:
        i=i[0]
        p(f"{'s_memrealtime' if CFG['prof']==2 else 's_memtime'} s[{sPROF+2*i}:{sPROF+2*i+1}]")
        if w: p("s_waitcnt lgkmcnt(0)")
def PROFDUMP():
    if not CFG['prof']: return
    p("s_waitcnt vmcnt(0) lgkmcnt(0)")
    p("s_mov_b64 exec, -1")
    for i in range(10): p(f"v_mov_b32 v{2+i}, s{sPROF+2*i}")
    p(f"""s_lshl_b32 s{sT}, s2, 3
    s_add_u32 s{sT}, s{sT}, s{sWAVE}
    s_lshl_b32 s{sT}, s{sT}, 6
    s_add_u32 s{sT}, s{sT}, {PROF}
    v_mov_b32 v1, 0
    s_mov_b64 exec, 1
    buffer_store_dwordx4 v[2:5], v1, s[{sWS}:{sWS+3}], s{sT} offen
    buffer_store_dwordx4 v[6:9], v1, s[{sWS}:{sWS+3}], s{sT} offen offset:16
    buffer_store_dwordx2 v[10:11], v1, s[{sWS}:{sWS+3}], s{sT} offen offset:32""")
def END():
    PROFDUMP()
    if CFG['cal']:
        lp=p.lab("cal"); ok=p.lab("calok")
        p(f"""s_waitcnt vmcnt(0) lgkmcnt(0)
        s_cmp_eq_u32 s{sPROF}, 0
        s_cbranch_scc1 {ok}
        s_cmp_ge_u32 s{sWAVE}, 4
        s_cbranch_scc1 {ok}
        s_mov_b32 s{sPROF+4}, 100000
        {lp}:
        s_sleep 2
        {CALI()} s[{sPROF+2}:{sPROF+3}]
        s_sub_u32 s{sPROF+4}, s{sPROF+4}, 1
        s_cbranch_scc1 {ok}
        s_waitcnt lgkmcnt(0)
        s_sub_u32 s{sPROF+2}, s{sPROF+2}, s{sPROF}
        s_cmp_lt_u32 s{sPROF+2}, {CFG['cal'][1]}
        s_cbranch_scc1 {lp}
        {ok}:""")
    p("s_endpgm")
S4=lambda r:f"s[{r}:{r+3}]"
SPIN=1<<18

def srd(lst):
    for r,n in lst: p(f"s_mov_b32 s{r+2}, {n}\ns_mov_b32 s{r+3}, 0x20000")
def prologue():
    STAMP('entry')
    p(f"""s_cmp_ge_u32 s2, 256
    s_cbranch_scc1 L_exit
    s_load_dwordx2 s[{sX}:{sX+1}], s[0:1], 0
    s_load_dwordx2 s[{sW}:{sW+1}], s[0:1], 8
    s_load_dwordx2 s[{sWS}:{sWS+1}], s[0:1], 80
    v_lshrrev_b32 v1, 6, v0
    v_and_b32 v0, 63, v0
    v_readfirstlane_b32 s{sWAVE}, v1
    s_and_b32 s{sG}, s2, 7
    s_lshr_b32 s{sSLOT}, s2, 3
    s_lshr_b32 s{sRQ}, s{sG}, 1
    s_and_b32 s{sHH}, s{sG}, 1
    s_and_b32 s{sRB}, s{sSLOT}, 3
    s_lshr_b32 s{sCT}, s{sSLOT}, 2""")
    if CFG['cal']: p(f"s_mov_b32 s{sPROF}, 0")
    if CFG['prof']:
        for i in range(1,10): p(f"s_mov_b32 s{sPROF+2*i}, 0")
    p(f"""s_cmp_lt_u32 s{sWAVE}, 4
    s_cbranch_scc1 L_comp""")
def prologue2():
    p(f"""s_mov_b32 s{sTAG}, {EPO}
    s_load_dword s{sEP}, s[{sWS}:{sWS+1}], s{sTAG}
    s_load_dwordx2 s[{sWO}:{sWO+1}], s[0:1], 16
    s_load_dwordx2 s[{sWR}:{sWR+1}], s[0:1], 32
    s_load_dwordx2 s[{sWG}:{sWG+1}], s[0:1], 40
    s_load_dwordx2 s[{sWU}:{sWU+1}], s[0:1], 48
    s_load_dwordx2 s[{sWD}:{sWD+1}], s[0:1], 56
    s_load_dwordx2 s[{sOUT}:{sOUT+1}], s[0:1], 64""")
    srd(((sWS,268435456),(sWO,819200),(sWR,1280),(sWG,1966080),(sWU,1966080),(sWD,1966080),(sOUT,2621440)))
    p(f"""s_mov_b32 s{sLO}, -1
    s_mov_b32 s{sLO+1}, 0
    s_mov_b32 s{sLO+2}, 0xfffff
    s_mov_b32 s{sLO+3}, 0xfffff""")
def mktag():
    p(f"""s_mul_i32 s{sTAG}, s{sEP}, 0x9e3779b1
    s_add_u32 s{sTAG}, s{sTAG}, 0x7f4a7c15
    s_and_b32 s{sTAG}, s{sTAG}, -16""")
def colbyte(dst, lc):
    t=sT+18
    p(f"""s_mul_i32 s{t}, s{lc}, 52
    s_lshr_b32 s{t}, s{t}, 8
    s_mul_i32 s{t+1}, s{t}, 5
    s_sub_u32 s{t+1}, s{lc}, s{t+1}
    s_mul_i32 s{t}, s{t}, 1280
    s_lshl_b32 s{t+1}, s{t+1}, 7
    s_mul_i32 s{dst}, s{sHH}, 640
    s_add_u32 s{dst}, s{dst}, s{t}
    s_add_u32 s{dst}, s{dst}, s{t+1}""")

def loader():
    CA_=sT+1; CB_=sT+2; CH=sT+3; XO=sT+4; WO_=sT+5; LB=sT+6; A=sT+7; B=sT+8; OFF=sT+9; SEQ=sT+10
    vX=2; vW=6; vt=10
    p(f"""s_sub_u32 s{HW}, s{sWAVE}, 4
    s_lshl_b32 s{A}, s{sCT}, 1
    s_add_u32 s{B}, s{A}, 1
    s_min_u32 s{B}, s{B}, 14""")
    colbyte(CA_,A); colbyte(CB_,B)
    p(f"""v_lshrrev_b32 v{vt}, 3, v0
    v_mul_u32_u24 v{vX}, 1280, v{vt}
    v_lshrrev_b32 v{vt+1}, 4, v0
    v_and_b32 v{vt+2}, 7, v0
    v_xor_b32 v{vt+2}, v{vt+2}, v{vt+1}
    v_lshl_add_u32 v{vX}, v{vt+2}, 4, v{vX}
    v_xor_b32 v{vX+1}, 64, v{vX}
    v_add_u32 v{vX+1}, {10240-1024}, v{vX+1}
    v_add_u32 v{vX+2}, {2*(10240-1024)}, v{vX}
    v_add_u32 v{vX+3}, {2*(10240-1024)}, v{vX+1}
    v_lshlrev_b32 v{vt+2}, 2, v{vt+1}
    v_and_b32 v{vt+3}, 15, v0
    v_xor_b32 v{vt+2}, v{vt+2}, v{vt+3}
    v_cmp_lt_u32 vcc, 7, v{vt+2}
    v_mov_b32 v{vt+3}, s{CA_}
    v_mov_b32 v{vt+4}, s{CB_}
    v_cndmask_b32 v{vt+3}, v{vt+3}, v{vt+4}, vcc
    v_and_b32 v{vt+2}, 7, v{vt+2}
    v_lshl_add_u32 v{vt+3}, v{vt+2}, 4, v{vt+3}
    v_mul_u32_u24 v{vW}, 3840, v{vt+1}
    v_add_u32 v{vW}, v{vW}, v{vt+3}""")
    for i in range(1,4): p(f"v_add_u32 v{vW+i}, {i*(4*3840-1024)}, v{vW}")
    ta,tc,tg=CFG['rot']
    pk=lambda t: sum(int(v)<<(4*i) for i,v in enumerate(t))
    p(f"""s_lshl_b32 s{A}, s{sRB}, 2
    s_lshr_b32 s{CH}, {pk(ta)}, s{A}
    s_and_b32 s{CH}, s{CH}, 15
    s_lshl_b32 s{A}, s{sCT}, 2
    s_lshr_b32 s{A}, {hex(pk(tc))}, s{A}
    s_and_b32 s{A}, s{A}, 15
    s_add_u32 s{CH}, s{CH}, s{A}
    s_lshl_b32 s{A}, s{sG}, 2
    s_lshr_b32 s{A}, {hex(pk(tg))}, s{A}
    s_and_b32 s{OFF}, s{A}, 15""")
    seqs=CFG['seqs']
    if seqs:
        n=len(seqs)
        p(f"""s_mul_i32 s{A}, s{CH}, {-(-2048//n)}
        s_lshr_b32 s{A}, s{A}, 11
        s_mul_i32 s{A}, s{A}, {n}
        s_sub_u32 s{CH}, s{CH}, s{A}""")
        for i,q in enumerate(seqs):
            assert sorted(q)==list("0123456789")
            if i: p(f"s_cmp_eq_u32 s{CH}, {i}\ns_cselect_b32 s{SEQ}, {hex(pk(q[:8]))}, s{SEQ}\ns_cselect_b32 s{SEQ+1}, {hex(pk(q[8:]))}, s{SEQ+1}")
            else: p(f"s_mov_b32 s{SEQ}, {hex(pk(q[:8]))}\ns_mov_b32 s{SEQ+1}, {hex(pk(q[8:]))}")
    else:
        p(f"""s_add_u32 s{CH}, s{CH}, s{OFF}
    s_mul_i32 s{A}, s{CH}, 205
    s_lshr_b32 s{A}, s{A}, 11
    s_mul_i32 s{A}, s{A}, 10
    s_sub_u32 s{CH}, s{CH}, s{A}""")
    p(f"""
    s_lshl_b32 s{A}, s{sRQ}, 2
    s_add_u32 s{A}, s{A}, s{sRB}
    s_lshl_b32 s{A}, s{A}, 2
    s_add_u32 s{A}, s{A}, s{HW}
    s_mul_i32 s{XO}, s{A}, {32*1280}
    s_mul_i32 s{WO_}, s{HW}, {16*3840}
    s_lshl_b32 s{LB}, s{HW}, 12""")
    def issue(c,fill=()):
        fill=list(fill)
        def fl(i):
            if fill and i in CFG['sfill']: p(fill.pop(0))
        slot=(c%4)*32768
        if seqs: p(f"""s_and_b32 s{CH}, s{SEQ}, 15
        s_lshr_b64 s[{SEQ}:{SEQ+1}], s[{SEQ}:{SEQ+1}], 4
        s_add_u32 s{CH}, s{CH}, s{OFF}
        s_sub_u32 s{A}, s{CH}, 10
        s_cselect_b32 s{CH}, s{CH}, s{A}""")
        p(f"""s_lshl_b32 s{A}, s{CH}, 7
        s_add_u32 s{A}, s{A}, s{XO}
        s_add_u32 m0, s{LB}, {slot}
        s_mul_i32 s{B}, s{CH}, {64*3840}""")
        for i in range(4): p(f"buffer_load_dwordx4 v{vX+i}, {S4(sX)}, s{A} offen offset:{i*1024} {CFG['xpol'] if c<CFG['xnt'] else ''} lds"); fl(i)
        p(f"""s_add_u32 m0, s{LB}, {slot+16384}
        s_add_u32 s{B}, s{B}, s{WO_}""")
        for i in range(4): p(f"buffer_load_dwordx4 v{vW+i}, {S4(sW)}, s{B} offen offset:{i*1024} {'nt' if c<CFG['wnt'] else CFG['wpol']} lds"); fl(4+i)
        if not seqs: p(f"""s_add_u32 s{CH}, s{CH}, 1
        s_cmp_eq_u32 s{CH}, 10
        s_cselect_b32 s{CH}, 0, s{CH}""")
        for x in fill: p(x)
    pre=CFG['pre']
    srd(((sX,2621440),(sW,2457600)))
    p("s_waitcnt lgkmcnt(0)")
    STAMP('i0')
    for c in range(1 if CFG['late1'] else pre):
        issue(c); STAMP('i%d'%(c+1))
        if c==0:
            prologue2()
            p(f"""v_cmp_lt_u32 vcc, 7, v0
            v_lshlrev_b32 v{vt}, 4, v0
            v_add_u32 v{vt}, {L_FLG}, v{vt}
            v_cndmask_b32 v{vt+2}, 0, -1, vcc
            v_cndmask_b32 v{vt+3}, 0, -1, vcc
            v_cndmask_b32 v{vt+4}, 0, -1, vcc
            v_cndmask_b32 v{vt+5}, 0, -1, vcc
            ds_write_b128 v{vt}, v[{vt+2}:{vt+5}]""")
            early()
    p("s_waitcnt lgkmcnt(0)")
    mktag()
    stats_setup()
    p(f"s_cmp_ge_u32 s{HW}, 2\ns_cbranch_scc1 L_helperB")
    def steps(hook):
        global OPS
        OPS=[c for c in range(pre) for _ in range(8)]
        issued=pre
        if CFG['late1']:
            STAMP('i1s')
            for c in range(1,pre): issue(c)
            STAMP('i1e')
        for c in range(7):
            sd=CFG['sdef']
            if c==0 and -1 in sd:
                p(f"s_waitcnt vmcnt({8*pre-4})")
                STAMP('x0')
                fill=stats(0)
                for k in range(4):
                    if sd[k]==-1: p(fill[k])
                if max(sd)==-1: stats_red()
            vmwait(c)
            p("s_barrier")
            STAMP('ld%d'%c)
            if c==0 and -1 not in sd: fill=stats(0)
            for _ in range(CFG['sched'][c]):
                assert issued<min(10,c+4); issue(issued); OPS+=[issued]*8; issued+=1
            if c==0: p("s_waitcnt lgkmcnt(0)")
            for k in range(4):
                if sd[k]==c: p(fill[k])
            if c==max(0,max(sd)):
                if max(sd)>=0: stats_red()
                stats_pub(); OPS.append('stw')
            if c==6: stats_get()
            hook(c)
        assert issued==10
    return steps
aS=44; dS=64; sacc=60; sone=43; sDBL=sDBG; sSTP=sDBG+1
def stats_setup():
    vt=10
    tc=[int(x) for x in CFG['rot'][1]]
    assert not CFG['seqs'] and sorted(tc+[(tc[7]+1)%10,(tc[7]+2)%10])==list(range(10))
    p(f"""s_lshl_b32 s{sT+16}, s{HW}, 12
    v_bfe_u32 v{vt}, v0, 1, 3
    v_lshrrev_b32 v{vt+1}, 5, v0
    v_lshlrev_b32 v{vt+1}, 2, v{vt+1}
    v_xor_b32 v{vt}, v{vt}, v{vt+1}
    v_lshlrev_b32 v{vt}, 4, v{vt}
    v_and_b32 v{vt+1}, 31, v0
    v_lshl_add_u32 v{vt}, v{vt+1}, 7, v{vt}
    v_add_u32 v{aS}, s{sT+16}, v{vt}
    v_mov_b32 v{sone}, 0x3f803f80
    s_lshl_b32 s{sSTP}, s{sG}, 2
    s_add_u32 s{sSTP}, s{sSTP}, s{sRB}
    s_lshl_b32 s{sSTP}, s{sSTP}, 14
    s_lshl_b32 s{sT+16}, s{HW}, 9
    s_add_u32 s{sSTP}, s{sSTP}, s{sT+16}
    s_add_u32 s{sSTP}, s{sSTP}, {STP}
    v_lshrrev_b32 v{vt}, 5, v0
    v_lshlrev_b32 v{vt}, 11, v{vt}
    v_lshl_add_u32 v{aS+4}, v{vt+1}, 4, v{vt}
    s_lshl_b32 s{sT+16}, s{sCT}, 11
    s_cmp_eq_u32 s{sCT}, 7
    s_cselect_b32 s{sT+16}, {STX-STP}, s{sT+16}
    v_lshl_add_u32 v{aS+5}, v{vt+1}, 4, s{sT+16}""")
    for i in range(1,4): p(f"v_xor_b32 v{aS+i}, {16*i}, v{aS}")
    for i in range(4): p(f"v_mov_b32 v{sacc+i}, 0")
    if CFG['smode'] in ('dotx','dotc'):
        for i in range(2*CFG['nacc']): p(f"v_mov_b32 v{102+i}, 0")
def stats(c):
    if 'nostats' in CFG['xp']: return []
    for i in range(4): p(f"ds_read_b128 {vr(dS+4*i,4)}, v{aS+i} offset:{c*32768}")
    L=[]
    for i in range(4):
        g=f"s_waitcnt lgkmcnt({3-i})"
        for j in range(4):
            r=dS+4*i+j
            u=80+2*(j&1)
            if CFG['smode']=='dotx':
                a=102+2*((4*i+j)%CFG['nacc']); g+=f"\nv_dot2_f32_bf16 v{a}, v{r}, v{sone}, v{a}\nv_dot2_f32_bf16 v{a+1}, v{r}, v{r}, v{a+1}"
            elif CFG['smode']=='dotc':
                a=102+2*((4*i+j)%CFG['nacc']); g+=f"\nv_dot2c_f32_bf16 v{a}, v{r}, v{sone}\nv_dot2c_f32_bf16 v{a+1}, v{r}, v{r}"
            elif CFG['smode']=='dot': g+=f"\nv_dot2_f32_bf16 v{sacc+(j&1)}, v{r}, v{sone}, v{sacc+(j&1)}\nv_dot2_f32_bf16 v{sacc+2+(j&1)}, v{r}, v{r}, v{sacc+2+(j&1)}"
            elif CFG['smode']=='valu': g+=f"\nv_lshlrev_b32 v{u}, 16, v{r}\nv_and_b32 v{u+1}, 0xffff0000, v{r}\nv_add_f32 v{sacc}, v{sacc}, v{u}\nv_fmac_f32 v{sacc+2}, v{u}, v{u}\nv_add_f32 v{sacc+1}, v{sacc+1}, v{u+1}\nv_fmac_f32 v{sacc+3}, v{u+1}, v{u+1}"
            elif CFG['smode']=='pk': g+=f"\nv_lshlrev_b32 v{u}, 16, v{r}\nv_and_b32 v{u+1}, 0xffff0000, v{r}\nv_pk_add_f32 v[{sacc}:{sacc+1}], v[{sacc}:{sacc+1}], v[{u}:{u+1}]\nv_pk_fma_f32 v[{sacc+2}:{sacc+3}], v[{u}:{u+1}], v[{u}:{u+1}], v[{sacc+2}:{sacc+3}]"
        L.append(g)
    return L
def stats_red():
    t=sacc
    p(f"""s_nop 1
    v_add_f32 v{t}, v{t}, v{t+1}
    v_add_f32 v{t+1}, v{t+2}, v{t+3}
    v_mov_b32 v{t+2}, s{sTAG}
    s_nop 0
    v_permlane32_swap_b32 v{t}, v{t+1}
    s_nop 0
    v_add_f32 v{t}, v{t}, v{t+1}
    v_mov_b32 v{t+1}, v{t}
    s_nop 1
    v_permlane32_swap_b32 v{t}, v{t+1}""")
def stats_pub():
    t=sacc
    p(f"""s_mov_b64 exec, s[{sLO}:{sLO+1}]
    buffer_store_dwordx4 {vr(t,4)}, v{aS+5}, {S4(sWS)}, s{sSTP} offen sc1
    s_mov_b64 exec, -1""")
def stats_ld():
    return "\n".join(f"s_add_u32 s{sSTP+1}, s{sSTP}, {4096*i}\nbuffer_load_dwordx4 {vr(dS+4*i,4)}, v{aS+4}, {S4(sWS)}, s{sSTP+1} offen sc1" for i in range(4))
def stats_get():
    p(stats_ld()); OPS.extend(['stp']*4)
def stats_fin(t,B):
    vmwait('stp')
    lp=p.lab("stl"); ok=p.lab("stok"); rt=p.lab("strt")
    p(f"""s_mov_b32 s{B}, {SPIN}
    {lp}:
    v_xor_b32 v{t}, v{dS+2}, v{dS+6}
    v_xor_b32 v{t+1}, v{dS+10}, v{dS+14}
    v_xor_b32 v{t+2}, s{sTAG}, v{dS+2}
    v_xor_b32 v{t+3}, s{sTAG}, v{dS+10}
    v_or3_b32 v{t}, v{t}, v{t+1}, v{t+2}
    v_or_b32 v{t}, v{t}, v{t+3}
    v_cmp_ne_u32 vcc, 0, v{t}
    v_add_f32 v{t+1}, v{dS}, v{dS+4}
    v_add_f32 v{t+2}, v{dS+1}, v{dS+5}
    s_cbranch_vccnz {rt}
    {ok}:""")
    n0=len(p.L)
    p(f"{rt}:"); spin(B,lp,ok,1); p(stats_ld()); p(f"s_waitcnt vmcnt(0)\ns_branch {lp}")
    COLD.append("\n".join(p.L[n0:])); del p.L[n0:]
    p(f"""v_add_f32 v{t+3}, v{dS+8}, v{dS+12}
    v_add_f32 v{t+4}, v{dS+9}, v{dS+13}
    v_add_f32 v{t+1}, v{t+1}, v{t+3}
    v_add_f32 v{t+2}, v{t+2}, v{t+4}
    s_nop 1
    v_permlane32_swap_b32 v{t+1}, v{t+2}
    s_nop 0
    v_add_f32 v{t+1}, v{t+1}, v{t+2}
    v_mul_f32 v{t+1}, {1/640!r}, v{t+1}
    v_mov_b32 v{t+2}, v{t+1}
    s_nop 1
    v_permlane32_swap_b32 v{t+1}, v{t+2}
    s_nop 0
    v_fma_f32 v{t+2}, -v{t+1}, v{t+1}, v{t+2}
    v_max_f32 v{t+2}, 0, v{t+2}""")
    bf16r(t+2,t+2)
    p(f"v_add_f32 v{t+2}, 0x3727c5ac, v{t+2}")
    bf16r(t+2,t+2)
    p(f"""v_sqrt_f32 v{t+2}, v{t+2}
    v_xor_b32 v{t+1}, 0x80000000, v{t+1}""")
    bf16r(t+2,t+2)
    p(f"""v_rcp_f32 v{t+5}, v{t+2}
    v_cvt_pk_bf16_f32 v{t+4}, v{t+1}, v{t+1}
    v_and_b32 v{t+3}, 31, v0
    s_lshl_b32 s{B}, s{HW}, 8
    s_add_u32 s{B}, s{B}, {L_SA}
    v_lshl_add_u32 v{t+1}, v{t+3}, 3, s{B}
    s_lshl_b32 s{B}, s{HW}, 7
    s_add_u32 s{B}, s{B}, {L_SR}
    v_lshl_add_u32 v{t+2}, v{t+3}, 2, s{B}
    ds_write_b64 v{t+1}, v[{t+4}:{t+5}]
    ds_write_b32 v{t+2}, v{t+5}""")
vPT=21; vDUM=39
HS=sT+12; HA=28
def early():
    A=sT+20; B=sT+21; vt=10
    wave_ids(HW,sT+16,sT+17,sT+18,sT+19)
    store_addr(sT+16,sT+18,sT+19,HS,HS+1,HS+2,HS+3,HA,A,B,t=vt)
    p(f"""s_add_u32 s{HS}, s{HS}, {KH-KB}
    s_add_u32 s{HS+1}, s{HS+1}, {KH-KB}
    s_sub_u32 s{A}, s{HS+3}, {FL}
    s_and_b32 s{B}, s{A}, 127
    s_sub_u32 s{A}, s{A}, s{B}
    s_lshl_b32 s{A}, s{A}, 3
    s_lshl_b32 s{B}, s{B}, 5
    s_add_u32 s{A}, s{A}, s{B}
    s_add_u32 s{HS+3}, s{A}, {FH}""")
    p(f"""s_lshl_b32 s{A}, s{sSLOT}, 2
    s_add_u32 s{A}, s{A}, s{HW}
    s_mul_i32 s{A}, s{A}, 60
    v_min_u32 v{vt}, 59, v0
    v_add_u32 v{vt}, s{A}, v{vt}
    v_mul_u32_u24 v{vt+1}, 6554, v{vt}
    v_lshrrev_b32 v{vt+1}, 20, v{vt+1}
    v_mul_u32_u24 v{vt+2}, 160, v{vt+1}
    v_sub_u32 v{vt}, v{vt}, v{vt+2}
    v_lshlrev_b32 v{vt}, 7, v{vt}
    v_cmp_gt_u32 vcc, 32, v{vt+1}
    v_and_b32 v{vt+2}, 1, v{vt+1}
    v_mul_u32_u24 v{vt+2}, 20480, v{vt+2}
    v_bfe_u32 v{vt+3}, v{vt+1}, 1, 3
    v_mul_u32_u24 v{vt+3}, 163840, v{vt+3}
    v_add_u32 v{vt+2}, v{vt+2}, v{vt+3}
    v_lshrrev_b32 v{vt+3}, 4, v{vt+1}
    v_mul_u32_u24 v{vt+3}, {KB}, v{vt+3}
    s_mul_i32 s{A}, s{sRQ}, 40960
    v_add3_u32 v{vt+2}, v{vt+2}, v{vt+3}, s{A}
    v_and_b32 v{vt+3}, 15, v{vt+1}
    v_mul_u32_u24 v{vt+3}, 81920, v{vt+3}
    s_mul_i32 s{A}, s{sRQ}, 20480
    s_add_u32 s{A}, s{A}, {VB}
    v_add_u32 v{vt+3}, s{A}, v{vt+3}
    v_cndmask_b32 v{vt+2}, v{vt+3}, v{vt+2}, vcc
    s_mul_i32 s{A}, s{sHH}, {8*163840}
    v_add3_u32 v{vPT}, v{vt}, v{vt+2}, s{A}
""")
    nsm=sum(CFG['npf']); per=(100-5*nsm)//2
    if per>0:
        p(f"""s_mul_i32 s{A}, s{sG}, 5
        s_lshr_b32 s{A}, s{A}, 1
        s_mul_i32 s{A}, s{A}, 5
        s_lshr_b32 s{B}, s{HW}, 1
        s_mul_i32 s{B}, s{B}, {per}
        s_add_u32 s{A}, s{A}, s{B}
        s_add_u32 s{A}, s{A}, {5*nsm}
        v_min_u32 v{vt}, {per-1}, v0
        v_add_u32 v{vt}, s{A}, v{vt}
        v_subrev_u32 v{vt+1}, 100, v{vt}
        v_min_u32 v{vt}, v{vt}, v{vt+1}
        s_lshl_b32 s{A}, s{sSLOT}, 1
        s_and_b32 s{B}, s{HW}, 1
        s_add_u32 s{A}, s{A}, s{B}
        s_mul_i32 s{A}, s{A}, 12800
        v_lshl_add_u32 v{vTW}, v{vt}, 7, s{A}""")
    ge=p.lab("mtge"); jn=p.lab("mtj")
    p(f"""s_cmp_ge_u32 s{HW}, 2
    s_cbranch_scc1 {ge}
    v_min_u32 v{vt}, 59, v0
    v_mul_u32_u24 v{vt+1}, 86, v{vt}
    v_lshrrev_b32 v{vt+1}, 8, v{vt+1}
    v_mul_u32_u24 v{vt+1}, {3072-384}, v{vt+1}
    v_lshl_add_u32 v{vt}, v{vt}, 7, v{vt+1}
    s_mul_i32 s{A}, s{sSLOT}, {20*3072}
    s_mul_i32 s{B}, s{sG}, 384
    s_branch {jn}
    {ge}:
    {jn}:
    s_add_u32 s{A}, s{A}, s{B}
    v_add_u32 v{vTM}, s{A}, v{vt}
    s_sub_u32 s{A}, s{sSLOT}, {0 if CFG['dw3'] else 17}
    s_lshl_b32 s{A}, s{A}, {1 if CFG['dw3'] else 2}
    s_add_u32 s{A}, s{A}, s{HW}
    s_mul_i32 s{A}, s{A}, {24 if CFG['dw3'] else 26}
    v_min_u32 v{vt}, {47 if CFG['dw3'] else 51}, v0
    v_lshrrev_b32 v{vt+1}, 1, v{vt}
    v_add_u32 v{vt+1}, s{A}, v{vt+1}
    v_min_u32 v{vt+1}, 1535, v{vt+1}
    v_mul_u32_u24 v{vt+1}, 1280, v{vt+1}
    v_and_b32 v{vt}, 1, v{vt}
    v_lshl_add_u32 v{vt}, v{vt}, 7, v{vt+1}
    s_mul_i32 s{B}, s{sG}, 160
    s_and_b32 s{B}, s{B}, -128
    v_add_u32 v{vTD}, s{B}, v{vt}""")
vTD=25
vTW=22; vTM=24
def touch(va,srd_,pair,pol=''):
    if pair:
        p(f"buffer_load_dword v{vDUM}, v{va}, {S4(srd_)}, 0 offen nt\nbuffer_load_dword v{vDUM}, v{va}, {S4(srd_)}, 0 offen offset:64")
        return 2
    p(f"buffer_load_dword v{vDUM}, v{va}, {S4(srd_)}, 0 offen {pol}")
    return 1
def wtouch(win,isB):
    n=0
    if CFG['wtw']==win and 100-5*sum(CFG['npf'])>0:
        n+=touch(vTW,sWO,CFG['wpair'])
    if CFG['mtw']==win:
        if not isB:
            u=p.lab("tu"); j=p.lab("tj")
            p(f"s_cmp_eq_u32 s{HW}, 0\ns_cbranch_scc0 {u}")
            touch(vTM,sWG,CFG['mpair'])
            p(f"s_branch {j}\n{u}:")
            n+=touch(vTM,sWU,CFG['mpair'])
            p(f"{j}:")
    return n
def qkv_touch():
    if CFG['pt']==99: return
    OPS.extend(['pt']*touch(vPT,sWS,CFG['qpair'],CFG['tpol']))
vH=16
OPS=[]
def vmwait(*tags):
    last=max(i for i,t in enumerate(OPS) if t in tags)
    n=len(OPS)-1-last; assert n<64
    p(f"s_waitcnt vmcnt({n})")
HW=sT
def spin(cnt,lp,ok,sleep=0):
    p(f"s_sub_u32 s{cnt}, s{cnt}, 1\ns_cbranch_scc1 {ok}")
    if sleep: p(f"s_sleep {sleep}")
def lds_wait(addr_v,tmp,cnt,cmp,val,sleep=1):
    lp=p.lab("lw"); ok=p.lab("lwok")
    p(f"""s_mov_b32 s{cnt}, {SPIN*4}
    {lp}:
    ds_read_b32 v{tmp}, v{addr_v}
    s_waitcnt lgkmcnt(0)
    v_cmp_{cmp}_u32 vcc, {val}, v{tmp}
    s_nop 0
    s_cbranch_vccz {ok}""")
    spin(cnt,lp,ok,sleep)
    p(f"s_branch {lp}\n{ok}:")
sHL,sHF,sHO,sPH,sHD,sT0=range(sT+1,sT+7)
def att_ids():
    p(f"""s_lshr_b32 s{sHL}, s{sSLOT}, 1
    s_and_b32 s{sHF}, s{sSLOT}, 1
    s_and_b32 s{sHO}, s{sHL}, 1
    s_lshr_b32 s{sPH}, s{sHL}, 1
    s_lshl_b32 s{sHD}, s{sHH}, 3
    s_add_u32 s{sPH}, s{sPH}, s{sHD}
    s_lshl_b32 s{sHD}, s{sHH}, 4
    s_add_u32 s{sHD}, s{sHD}, s{sHL}
    s_lshl_b32 s{sT0}, s{sRQ}, 1
    s_add_u32 s{sT0}, s{sT0}, s{sHF}
    s_lshl_b32 s{sT0}, s{sT0}, 3""")
def flag_addr(vd,vt,withq,A,B,C):
    p(f"""s_lshr_b32 s{A}, s{sHL}, 1
    s_mul_i32 s{A}, s{A}, 5
    s_lshl_b32 s{B}, s{sHO}, 1
    s_add_u32 s{A}, s{A}, s{B}
    s_add_u32 s{B}, s{A}, 2
    s_lshr_b32 s{A}, s{A}, 3
    s_lshr_b32 s{B}, s{B}, 3
    s_lshl_b32 s{B}, s{B}, 4
    s_or_b32 s{A}, s{A}, s{B}
    s_add_u32 s{B}, s{A}, 0x55
    s_lshl_b32 s{C}, s{B}, 8
    s_or_b32 s{A}, s{C}, s{A if withq else B}
    s_mul_i32 s{B}, s{sHL}, 20
    s_add_u32 s{C}, s{B}, 19
    s_lshr_b32 s{B}, s{B}, 6
    s_lshr_b32 s{C}, s{C}, 6
    s_lshl_b32 s{C}, s{C}, 4
    s_or_b32 s{B}, s{B}, s{C}
    s_add_u32 s{B}, s{B}, 0xaa
    s_lshl_b32 s{B}, s{B}, 16
    s_or_b32 s{A}, s{A}, s{B}
    v_and_b32 v{vt}, 60, v0
    v_min_u32 v{vt}, 20, v{vt}
    v_bfe_u32 v{vt}, s{A}, v{vt}, 4
    v_and_b32 v{vd}, 3, v0
    v_lshlrev_b32 v{vd}, 2, v{vd}
    v_lshl_add_u32 v{vd}, v{vt}, 7, v{vd}""")
def flag_poll(va,vt,soff,cnt,first=True,sleep=0):
    lp=p.lab("fp"); ok=p.lab("fpok");
    p(f"s_mov_b32 s{cnt}, {SPIN}")
    if not first:
        md=p.lab("fpm"); p(f"s_branch {md}")
    p(f"""{lp}:
    buffer_load_dword v{vt}, v{va}, {S4(sWS)}, s{soff} offen sc1""")
    if not first: p(f"{md}:")
    p(f"""s_waitcnt vmcnt(0)
    v_cmp_ne_u32 vcc, s{sTAG}, v{vt}
    s_nop 0
    s_cbranch_vccz {ok}""")
    spin(cnt,lp,ok,sleep)
    p(f"s_branch {lp}\n{ok}:")
def kv_dma(aLin,aTl,sK,sV,sL,A,B):
    p(f"""s_mul_i32 s{A}, s{sHO}, 1536
    s_add_u32 s{A}, s{A}, s{sK}
    s_mov_b32 m0, s{sL}
    s_add_u32 s{B}, s{A}, 1536
    buffer_load_dwordx4 v{aLin}, {S4(sWS)}, s{A} offen sc1 lds
    buffer_load_dwordx4 v{aLin}, {S4(sWS)}, s{B} offen offset:1024 sc1 lds
    s_sub_u32 s{A}, s{sK}, 2048
    s_sub_u32 s{B}, s{sV}, 3072
    buffer_load_dwordx4 v{aTl}, {S4(sWS)}, s{A} offen offset:2048 sc1 lds
    buffer_load_dwordx4 v{aLin}, {S4(sWS)}, s{B} offen offset:3072 sc1 lds
    s_add_u32 m0, s{sL}, 4096
    s_add_u32 s{B}, s{sV}, 1024
    buffer_load_dwordx4 v{aLin}, {S4(sWS)}, s{B} offen sc1 lds
    s_mov_b64 exec, s[{sLO}:{sLO+1}]
    buffer_load_dwordx4 v{aLin}, {S4(sWS)}, s{B} offen offset:1024 sc1 lds
    s_mov_b64 exec, -1""")
def kv_addr(aLin,aTl,t):
    p(f"""v_lshlrev_b32 v{aLin}, 4, v0
    v_lshrrev_b32 v{t}, 5, v0
    v_mul_u32_u24 v{t}, {2560-512}, v{t}
    v_add3_u32 v{aTl}, v{aLin}, v{t}, s{sK1024}""")
sK1024=sT+21

def halo_copy(aLin,vt,D,A,B,isB):
    sk=p.lab("nohalo"); s2_=p.lab("nohf")
    w2=CFG['wtw'][:2]=='w2' or CFG['mtw'][:2]=='w2'
    p(f"""v_mov_b32 v{vt+2}, {F_SCP}
    v_mov_b32 v{vt+3}, 1
    s_lshl_b32 s{B}, s{HW}, 2
    s_add_u32 s{B}, s{B}, {F_STG}
    v_mov_b32 v{vt}, s{B}
    s_cmp_eq_u32 s{HS+2}, 0
    s_cbranch_scc1 {sk}
    s_lshl_b32 s{A}, s{HW}, 13
    v_add_u32 v{vt+1}, s{A}, v{aLin}""")
    for xb in range(2):
        if CFG['hsplit'] or xb==0: lds_wait(vt,vt+5,B,'gt',(xb+1) if CFG['hsplit'] else 2,0)
        STAMP('hs%d'%xb)
        for i in range(4*xb,4*xb+4): p(f"ds_read_b128 {vr(D+4*i,4)}, v{vt+1} offset:{L_STG+i*1024}")
        for i in range(4*xb,4*xb+4):
            p(f"s_waitcnt lgkmcnt({4*xb+3-i})\nbuffer_store_dwordx4 {vr(D+4*i,4)}, v{HA+(i&3)}, {S4(sWS)}, s{HS+(i>>2)} offen sc1")
    n=wtouch('w2',isB)
    p(f"""s_mov_b64 exec, 1
    ds_add_u32 v{vt+2}, v{vt+3}
    v_mov_b32 v{vt}, 0
    v_mov_b32 v{vt+1}, s{sTAG}""")
    STAMP('hi')
    p(f"""s_waitcnt vmcnt({n})
    buffer_store_dword v{vt+1}, v{vt}, {S4(sWS)}, s{HS+3} offen sc1
    s_branch {s2_}
    {sk}:""")
    if w2:
        lds_wait(vt,vt+5,B,'gt',2,0)
        wtouch('w2',isB)
    p(f"""s_mov_b64 exec, 1
    ds_add_u32 v{vt+2}, v{vt+3}
    {s2_}:
    s_mov_b64 exec, -1""")
    STAMP('halo')
def helperA(steps):
    A=sT+7; B=sT+8; vt=10
    def hook(c):
        if c==CFG['pt']:
            qkv_touch(); OPS.extend(['pt']*wtouch('w1',0))
    steps(hook)
    for c in (7,8,9):
        vmwait(c); p("s_barrier"); STAMP('ld%d'%c)
        if c==9: STAMP('hb9')
        hook(c)
    stats_fin(vt,B)
    p("s_barrier\ns_waitcnt lgkmcnt(0)\ns_barrier")
    STAMP('hE1')
    att_ids()
    aLin=6; aTl=7; aF=8; D=40
    p(f"s_mov_b32 s{sK1024}, 1024")
    kv_addr(aLin,aTl,vt)
    flag_addr(aF,vt,0,A,B,sT+17)
    halo_copy(aLin,vt,D,A,B,0)
    p(f"v_mov_b32 v{vt}, {F_SCP}\nv_mov_b32 v{vt+1}, 1")
    if 'w2b' in (CFG['wtw'],CFG['mtw']):
        lds_wait(vt,vt+5,sT+17,'gt',4,1); wtouch('w2b',0)
    sF=sT+9; sK=sT+10; sV=sT+11; sL=sT+16; C=sT+17
    dn=p.lab("g2done")
    p(f"""s_cmp_eq_u32 s{sT0}, 0
    s_cbranch_scc1 {dn}
    v_and_b32 v{vt+2}, 127, v{aF}
    v_sub_u32 v{vt+3}, v{aF}, v{vt+2}
    v_lshlrev_b32 v{vt+3}, 3, v{vt+3}
    v_lshl_add_u32 v{vt+2}, v{vt+2}, 5, v{vt+3}
    s_cmp_eq_u32 s{sHF}, 0
    s_cselect_b64 vcc, -1, 0
    s_cselect_b32 s{A}, {FH-2*16384+512-FL}, 0
    s_cselect_b32 s{B}, {KH-KB}, 0
    s_cselect_b32 s{sF}, 14, 11
    v_cndmask_b32 v{aF}, v{aF}, v{vt+2}, vcc
    s_lshl_b32 s{sF}, s{sG}, s{sF}
    s_add_u32 s{sF}, s{sF}, s{A}
    s_add_u32 s{sF}, s{sF}, {FL}
    s_lshl_b32 s{A}, s{HW}, 2
    s_sub_u32 s{A}, s{sT0}, s{A}
    s_sub_u32 s{A}, s{A}, 2
    s_mul_i32 s{sK}, s{A}, 2560
    s_mul_i32 s{sV}, s{A}, 1280
    s_mul_i32 s{A}, s{sPH}, {64*2560}
    s_add_u32 s{sK}, s{sK}, s{A}
    s_add_u32 s{sK}, s{sK}, s{B}
    s_add_u32 s{sK}, s{sK}, {KB}
    s_mul_i32 s{A}, s{sHD}, 81920
    s_add_u32 s{sV}, s{sV}, s{A}
    s_add_u32 s{sV}, s{sV}, s{B}
    s_add_u32 s{sV}, s{sV}, {VB}
    s_mul_i32 s{sL}, s{HW}, {-2*5632}
    s_add_u32 s{sL}, s{sL}, {L_KV+3*5632}""")
    lds_wait(vt,vt+5,C,'gt',4,1)
    flag_poll(aF,vt+5,sF,C,sleep=1)
    STAMP('hf')
    kv_dma(aLin,aTl,sK,sV,sL,A,B)
    p(f"""s_sub_u32 s{sK}, s{sK}, 5120
    s_sub_u32 s{sV}, s{sV}, 2560
    s_sub_u32 s{sL}, s{sL}, 5632""")
    kv_dma(aLin,aTl,sK,sV,sL,A,B)
    p(f"""s_waitcnt vmcnt(0)
    {dn}:
    v_mov_b32 v{vt}, {F_G2}
    s_mov_b64 exec, 1
    ds_add_u32 v{vt}, v{vt+1}
    s_mov_b64 exec, -1""")
    STAMP('g2')
    if 'w3' in (CFG['wtw'],CFG['mtw']):
        p(f"v_mov_b32 v{vt}, {F_G1}")
        lds_wait(vt,vt+5,C,'gt',4,1)
        wtouch('w3',0)
        if CFG['dw3']: touch(vTD,sWD,CFG['mpair'])
        STAMP('mt')
        if CFG['prof'] and any('mt2' in x for x in CFG['st']): p("s_waitcnt vmcnt(0)"); STAMP('mt2')

def tr_addr(a0,t):
    tab=[[0,8],[4,12],[16,36],[20,28],[24,32]]
    pk=[sum((tab[u][rd]//4)<<(4*u) for u in range(5)) for rd in range(2)]
    A=sT+7; B=sT+8
    p(f"""s_mov_b32 s{A}, {pk[0]}
    s_mov_b32 s{B}, {pk[1]}
    v_bfe_u32 v{t}, v0, 2, 2
    v_mul_u32_u24 v{t}, 160, v{t}
    v_and_b32 v{t+1}, 3, v0
    v_mad_u32_u24 v{t}, v{t+1}, 40, v{t}
    v_lshrrev_b32 v{t+1}, 4, v0""")
    for s_ in range(5):
        p(f"""v_add_u32 v{t+2}, {4*s_}, v{t+1}
        v_mul_u32_u24 v{t+4}, 52, v{t+2}
        v_lshrrev_b32 v{t+4}, 8, v{t+4}
        v_mul_u32_u24 v{t+5}, 5, v{t+4}
        v_sub_u32 v{t+2}, v{t+2}, v{t+5}
        v_lshlrev_b32 v{t+2}, 2, v{t+2}
        v_mul_u32_u24 v{t+4}, 10, v{t+4}""")
        for rd in range(2):
            p(f"""v_bfe_u32 v{t+3}, s{(A,B)[rd]}, v{t+2}, 4
            v_add_u32 v{t+3}, v{t+3}, v{t+4}
            v_mul_u32_u24 v{t+3}, 640, v{t+3}
            v_add_u32 v{a0+2*s_+rd}, v{t+3}, v{t}""")
sBLK,sJ=sT+9,sT+10
def wo_ids():
    p(f"""s_lshr_b32 s{sBLK}, s{sSLOT}, 3
    s_lshl_b32 s{sJ}, s{sG}, 2
    s_add_u32 s{sBLK}, s{sBLK}, s{sJ}
    s_and_b32 s{sJ}, s{sSLOT}, 7""")
def clr_ids(A,B,C,D_):
    p(f"""s_lshr_b32 s{C}, s{sSLOT}, 3
    s_lshl_b32 s{B}, s{sG}, 2
    s_add_u32 s{C}, s{C}, s{B}
    s_lshl_b32 s{C}, s{C}, 3
    s_and_b32 s{B}, s{sSLOT}, 7
    s_add_u32 s{D_}, s{C}, s{B}
    s_lshr_b32 s{A}, s{D_}, 1
    s_mul_i32 s{A}, s{A}, 20480
    s_and_b32 s{B}, s{B}, 1
    s_mul_i32 s{B}, s{B}, 5120
    s_add_u32 s{A}, s{A}, s{B}
    s_add_u32 s{A}, s{A}, {OB}
    s_mul_i32 s{B}, s{sHH}, 10240
    s_add_u32 s{C}, s{A}, 10240
    s_add_u32 s{A}, s{A}, s{B}
    s_sub_u32 s{C}, s{C}, s{B}
    s_lshl_b32 s{D_}, s{D_}, 10
    s_add_u32 s{D_}, s{D_}, {PS}""")
def clears(part):
    A=sT+13; B=sT+14; C=sT+15; D_=sT+16; D=8; aL=7
    if part==0:
        clr_ids(A,B,C,D_)
        p(f"v_lshlrev_b32 v{aL}, 4, v0")
        for r in range(4): p(f"v_mov_b32 v{D+r}, -1")
        return
    st4=lambda so,off,sc: f"buffer_store_dwordx4 v[{D}:{D+3}], v{aL}, {S4(sWS)}, s{so} offen offset:{off} {sc}"
    w2=p.lab("clw2"); w3=p.lab("clw3"); dn=p.lab("cldn")
    p(f"""s_cmp_ge_u32 s{sWAVE}, 2
    s_cbranch_scc1 {w2}
    s_mul_i32 s{B}, s{sWAVE}, 2560
    s_add_u32 s{A}, s{A}, s{B}""")
    for o in (0,1024,1536): p(st4(A,o,""))
    p(f"""s_branch {dn}
    {w2}:
    s_cmp_eq_u32 s{sWAVE}, 3
    s_cbranch_scc1 {w3}
    s_mul_i32 s{C}, s2, 2560
    s_add_u32 s{C}, s{C}, {CAND}""")
    for o in (0,1024,1536): p(st4(C,o,"sc1"))
    p(f"""s_branch {dn}
    {w3}:
    s_cmp_ge_u32 s2, 24
    s_cbranch_scc1 {dn}
    s_lshl_b32 s{C}, s2, 10
    s_add_u32 s{C}, s{C}, {ACT}""")
    p(st4(C,0,"sc1"))
    p(f"{dn}:")
def code_pf():
    A=sT+18
    p(f"""s_getpc_b64 s[{A}:{A+1}]
    L_pc:
    s_sub_u32 s{A}, s{A}, L_pc-{NAME}_kernel
    s_subb_u32 s{A+1}, s{A+1}, 0
    s_lshl_b32 s{A+2}, s{sSLOT}, 2
    s_add_u32 s{A+2}, s{A+2}, s{sWAVE}
    s_mul_i32 s{A+2}, s{A+2}, 384
    s_min_u32 s{A+2}, s{A+2}, (L_exit-{NAME}_kernel-384)&0xffffff80""")
    for i in range(3): p(f"s_load_dwordx2 s[100:101], s[{A}:{A+1}], s{A+2} offset:{i*128+60}")
def wave_sum(x,t):
    dp="row_mask:0xf bank_mask:0xf"
    for c in ("quad_perm:[1,0,3,2]","quad_perm:[2,3,0,1]","row_half_mirror","row_mirror"):
        p(f"s_nop 1\nv_add_f32_dpp v{x}, v{x}, v{x} {c} {dp}")
    for sw in (16,32):
        p(f"""v_mov_b32 v{t}, v{x}
        s_nop 1
        v_permlane{sw}_swap_b32 v{x}, v{t}
        s_nop 0
        v_add_f32 v{x}, v{x}, v{t}""")
sPF=sT+16
def pf_group(n=5):
    for i in range(n): p(f"s_load_dwordx2 s[100:101], s[{sWO}:{sWO+1}], s{sPF} offset:{i*128+60}")
    p(f"""s_add_u32 s{sPF}, s{sPF}, {n*128}
    s_sub_u32 s{sPF+2}, s{sPF+2}, 1
    s_add_u32 s{sPF+3}, s{sPF+1}, 12800
    s_cmp_eq_u32 s{sPF}, s{sPF+3}
    s_cselect_b32 s{sPF}, s{sPF+1}, s{sPF}""")
def helperB(steps):
    A=sT+7; B=sT+8; vt=2; aD=140; aT=146; aLin=12; D=40; WRr=32
    sO=sT+1; sL=sT+2; sL0=sT+3; sL1=sT+4; C=sT+5
    p("L_helperB:")
    vM=23; x=10; a=sT+16
    clr_ids(a,a+1,a+2,a+3)
    p(f"""s_mul_i32 s{a+1}, s{HW}, 25
    s_sub_u32 s{a+1}, s{a+1}, 50
    v_min_u32 v{x}, 24, v0
    v_add_u32 v{x}, s{a+1}, v{x}
    v_min_u32 v{x}, 48, v{x}
    s_sub_u32 s{a+3}, s{a+3}, {40*128}
    s_and_b32 s{a+1}, s{sSLOT}, 15
    s_lshl_b32 s{a+2}, s{sG}, 4
    s_add_u32 s{a+1}, s{a+1}, s{a+2}
    s_lshl_b32 s{a+1}, s{a+1}, 7
    s_add_u32 s{a+1}, s{a+1}, {FL-48*128}
    v_mov_b32 v{x+1}, s{a}
    v_mov_b32 v{x+2}, s{a+3}
    v_cmp_le_u32 vcc, 40, v{x}
    v_mov_b32 v{x+3}, s{a+1}
    s_mul_i32 s{a+1}, s{sSLOT}, {200*128}
    v_cndmask_b32 v{x+1}, v{x+1}, v{x+2}, vcc
    v_cmp_le_u32 vcc, 48, v{x}
    s_mul_i32 s{a}, s{HW}, {100*128}
    s_add_u32 s{a+1}, s{a+1}, s{a}
    v_cndmask_b32 v{x+1}, v{x+1}, v{x+3}, vcc
    v_lshl_add_u32 v{vM}, v{x}, 7, v{x+1}
    s_sub_u32 s{sPF+1}, s{a+1}, {200*128}
    s_mul_i32 s{sPF}, s{sG}, 5
    s_lshr_b32 s{sPF}, s{sPF}, 1
    s_mul_i32 s{sPF}, s{sPF}, 640
    s_add_u32 s{sPF}, s{sPF}, s{sPF+1}
    s_mov_b32 s{sPF+2}, 20
    v_lshlrev_b32 v{vH+4}, 4, v0
    v_add_u32 v{vH+4}, {H1}, v{vH+4}
    v_mul_u32_u24 v{WRr+5}, 20, v0""")
    aB=130; sK=sT+11; sN=sT+16; sS=sT+17
    def wo_setup():
        va=96
        wo_ids()
        T=[[0,2],[1,3],[4,9],[5,7],[6,8]]
        NIB=[sum((10*((4*s5+g_)//5)+T[(4*s5+g_)%5][rd]-(8*s5+2*g_-2))<<(4*(4*rd+g_)) for rd in range(2) for g_ in range(4)) for s5 in range(5)]
        for i in range(5):
            p(f"""v_add_u32 v{va}, {64*i}, v0
            v_mul_u32_u24 v{va+1}, 6554, v{va}
            v_lshrrev_b32 v{va+1}, 16, v{va+1}
            v_mul_u32_u24 v{va+2}, 10, v{va+1}
            v_sub_u32 v{va}, v{va}, v{va+2}
            v_and_b32 v{aB+5+i}, 28, v{va+1}
            v_and_b32 v{va+2}, 3, v{va+1}
            v_mul_u32_u24 v{va+2}, 1280, v{va+2}
            v_lshl_add_u32 v{va}, v{va}, 4, v{va+2}
            v_bfe_u32 v{va+1}, v{va+1}, 2, 2
            v_mul_u32_u24 v{va+1}, 10240, v{va+1}
            v_add_u32 v{aB+i}, v{va}, v{va+1}""")
            if 0<i<4: p(f"v_subrev_u32 v{aB+i}, {i*1024}, v{aB+i}")
        p(f"""s_lshr_b32 s{A}, s{sSLOT}, 3
        s_mul_i32 s{A}, s{A}, 5
        s_lshr_b32 s{A}, s{A}, 1
        s_add_u32 s{A}, s{A}, s{HW}
        s_sub_u32 s{sK}, s{A}, 2
        v_mov_b32 v{va}, 5120""")
        def woaddr(n):
            p(f"""s_add_u32 s{A}, s{sK}, {2*n}
            s_sub_u32 s{B}, s{A}, 10
            s_cselect_b32 s{A}, s{A}, s{B}
            s_sub_u32 s{B}, s{A}, 5
            s_cselect_b32 s{B}, s{A}, s{B}
            s_mul_i32 s{sS}, s{A}, 40960
            s_sub_u32 s{sS}, s{sS}, 10240
            s_mov_b32 s{sN}, {hex(NIB[0])}""")
            for k in range(1,5): p(f"s_cmp_eq_u32 s{B}, {k}\ns_cselect_b32 s{sN}, {hex(NIB[k])}, s{sN}")
            for i in range(5):
                p(f"""v_bfe_u32 v{va+1}, s{sN}, v{aB+5+i}, 4
                v_mad_u32_u24 v{va+1}, v{va+1}, v{va}, v{aB+i}
                v_add_u32 v{aD+5*n+i}, s{sS}, v{va+1}""")
        for n in range(5): woaddr(n)
    if CFG['wose']==0: wo_setup()
    npf=CFG['npf']
    for _ in range(npf[0]): pf_group()
    def hook(c):
        if c==6:
            p(f"buffer_load_dwordx4 v[{vH}:{vH+3}], v{vH+4}, {S4(sWS)}, 0 offen sc1"); OPS.append('h1')
            p(f"buffer_load_dwordx4 {vr(WRr,4)}, v{WRr+5}, {S4(sWR)}, 0 offen\nbuffer_load_dword v{WRr+4}, v{WRr+5}, {S4(sWR)}, 0 offen offset:16"); OPS.extend(['wr','wr'])
        if c==CFG['pt']:
            qkv_touch()
            OPS.extend(['pt']*wtouch('w1',1))
        if c==CFG['pt2']: OPS.extend(['pt']*touch(vM,sWS,CFG['qpair2'],CFG['tpol']))
    steps(hook)
    vmwait(7); p("s_barrier"); STAMP('ld7'); hook(7)
    st=dict(n=0)
    def dma(cnt):
        for _ in range(min(cnt,50-st['n'])):
            n=st['n']; i=n%5; k=(n//5)%5
            if n==0 or n==25:
                p(f"""s_xor_b32 s{A}, s{sHH}, {n//25}
                s_mul_i32 s{sO}, s{A}, {320*1280}
                s_mul_i32 s{sL0}, s{A}, 51200
                s_add_u32 s{sL0}, s{sL0}, {L_WO}
                s_mul_i32 s{A}, s{sJ}, 160
                s_add_u32 s{sO}, s{sO}, s{A}""")
            if i==0: p(f"""s_add_u32 s{A}, s{sK}, {2*k}
                s_sub_u32 s{B}, s{A}, 10
                s_cselect_b32 s{A}, s{A}, s{B}
                s_mul_i32 s{sL}, s{A}, 5120
                s_add_u32 s{sL}, s{sL}, s{sL0}
                s_mov_b32 m0, s{sL}
                s_nop 0""")
            if i==4: p(f"s_add_u32 m0, s{sL}, 4096\ns_nop 0")
            p(f"buffer_load_dwordx4 v{aD+5*k+i}, {S4(sWO)}, s{sO} offen offset:{(i&3)*1024} {CFG['wopol']} lds")
            OPS.append('wo%d'%(n//25))
            st['n']+=1
    vmwait(8); p("s_barrier"); hook(8)
    p(f"v_lshlrev_b32 v{aLin}, 4, v0")
    vmwait(9); p("s_barrier"); hook(9)
    stats_fin(96,B)
    vmwait('h1')
    lp=p.lab("hello"); ok=p.lab("hello_ok"); ne=p.lab("noep")
    p(f"""s_mov_b32 s{A}, {SPIN}
    {lp}:
    v_xor_b32 v{vH}, s{sTAG}, v{vH}
    v_xor_b32 v{vH+1}, s{sTAG}, v{vH+1}
    v_xor_b32 v{vH+2}, s{sTAG}, v{vH+2}
    v_xor_b32 v{vH+3}, s{sTAG}, v{vH+3}
    v_or3_b32 v{vt}, v{vH}, v{vH+1}, v{vH+2}
    v_or_b32 v{vt}, v{vt}, v{vH+3}
    v_cmp_lt_u32 vcc, 15, v{vt}
    s_nop 0
    s_cbranch_vccz {ok}""")
    spin(A,lp,ok,4)
    p(f"""buffer_load_dwordx4 v[{vH}:{vH+3}], v{vH+4}, {S4(sWS)}, 0 offen sc1
    s_waitcnt vmcnt(0)
    s_branch {lp}
    {ok}:
    v_lshl_or_b32 v{vH}, v{vH+1}, 4, v{vH}
    v_lshl_or_b32 v{vH+2}, v{vH+3}, 4, v{vH+2}
    v_lshl_or_b32 v{vH}, v{vH+2}, 8, v{vH}
    v_and_b32 v{vt}, 1, v0
    v_readlane_b32 s{A}, v{vH}, 0
    v_readlane_b32 s{B}, v{vH}, 1
    v_cmp_eq_u32 vcc, 0, v{vt}
    v_mov_b32 v{vt+1}, s{A}
    v_mov_b32 v{vt+2}, s{B}
    v_cndmask_b32 v{vt+1}, v{vt+2}, v{vt+1}, vcc
    v_cmp_ne_u32 vcc, v{vt+1}, v{vH}
    v_mov_b32 v{vt}, {L_MODE}
    s_cmp_lg_u64 vcc, 0
    s_cselect_b32 s{sMODE}, 1, {CFG['force_slow']}
    v_mov_b32 v{vt+1}, s{sMODE}
    ds_write_b32 v{vt}, v{vt+1}
    s_barrier
    s_waitcnt lgkmcnt(0)
    s_barrier""")
    vmw=len(OPS)-1-max(i for i,t in enumerate(OPS) if t=='wr')
    STAMP('hE1')
    p(f"""v_mov_b32 v{vt}, 0x3f803f80
    v_mov_b32 v{vt+1}, 0
    s_waitcnt vmcnt({vmw})""")
    for k in range(5): p(f"v_dot2_f32_bf16 v{vt+1}, v{WRr+k}, v{vt}, v{vt+1}")
    p("s_nop 0")
    wave_sum(vt+1,vt+2)
    p(f"v_mov_b32 v{vt}, {L_SWS}\nds_write_b32 v{vt}, v{vt+1}")
    if CFG['wose']==1: wo_setup()
    halo_copy(aLin,vt,D,A,B,1)
    if CFG['wose']==2: wo_setup()
    p(f"""s_add_u32 s{A}, s2, s{HW}
    s_cmp_lg_u32 s{A}, 2
    s_cbranch_scc1 {ne}
    s_add_u32 s{A}, s{sEP}, 1
    v_mov_b32 v{vt}, {EPO}
    v_mov_b32 v{vt+1}, s{A}
    s_mov_b64 exec, 1
    buffer_store_dword v{vt+1}, v{vt}, {S4(sWS)}, 0 offen sc1
    s_mov_b64 exec, -1
    {ne}:
    v_mov_b32 v{vt}, {F_SCP}""")
    if 'w2b' in (CFG['wtw'],CFG['mtw']):
        lds_wait(vt,vt+1,A,'gt',4,1); wtouch('w2b',1)
    p(f"v_mov_b32 v{vt}, {F_G1}")
    lds_wait(vt,vt+1,A,'gt',4,1)
    wtouch('w3',1)
    STAMP('wo_s')
    del OPS[:]
    thr=CFG['wothr']; gs=CFG['wogs']; thr1=CFG['wothr1']
    def more(n,dyn=False):
        while n>0 and st['n']<50:
            k=min(gs,n)
            if dyn and thr1<thr and st['n']>=thr1:
                sk=p.lab("wog")
                p(f"""ds_read_b32 v{vt+1}, v{vt} offset:{F_G2-F_G1}
                s_waitcnt lgkmcnt(0)
                v_cmp_gt_u32 vcc, 2, v{vt+1}
                s_nop 0
                s_cbranch_vccz {sk}
                s_waitcnt vmcnt({max(0,thr1-k)})
                {sk}:""")
            if st['n']>=thr: p(f"s_waitcnt vmcnt({max(0,thr-k)})")
            dma(k); n-=k
    def sig(f):
        p(f"""v_mov_b32 v{vt+2}, {f}
        v_mov_b32 v{vt+3}, 1
        s_mov_b64 exec, 1
        ds_add_u32 v{vt+2}, v{vt+3}
        s_mov_b64 exec, -1""")
    more(25+min(thr,15),True)
    vmwait('wo0')
    sig(F_WOR)
    STAMP('wo_0')
    more(50)
    sig(F_WOD)
    STAMP('wo_1')
    p("s_waitcnt vmcnt(0)")
    sig(F_WO2)
    STAMP('wo')

ACC=64; CS=128; XF=132; WF=148; SEL=164; aX=168; aW=172; aST=174; aSG=178; vT=2
sWR_,sWC,sLC,sTY,sSO,sHALO,sFO,sSO2=range(sT,sT+8)
def gemm_setup():
    t=vT; A=sT+10; B=sT+11
    wave_ids(sWAVE,sWR_,sWC,sLC,sTY)
    p(f"""v_and_b32 v{t}, 31, v0
    s_lshl_b32 s{A}, s{sWR_}, 6
    v_add_u32 v{t+1}, s{A}, v{t}
    v_lshlrev_b32 v{t+1}, 7, v{t+1}
    v_lshrrev_b32 v{t+2}, 5, v0
    v_bfe_u32 v{t+3}, v0, 1, 3
    v_xor_b32 v{t+3}, v{t+3}, v{t+2}
    v_lshl_add_u32 v{aX}, v{t+3}, 4, v{t+1}""")
    for s in range(1,4): p(f"v_xor_b32 v{aX+s}, {32*s}, v{aX}")
    p(f"""v_bfe_u32 v{t+3}, v0, 2, 2
    v_lshl_add_u32 v{t+4}, v{t+2}, 3, v{t+3}
    v_lshlrev_b32 v{t+4}, 8, v{t+4}
    s_lshl_b32 s{A}, s{sWC}, 1
    s_or_b32 s{A}, s{A}, s{sWR_}
    v_xor_b32 v{t+3}, s{A}, v{t+3}
    v_lshl_add_u32 v{t+4}, v{t+3}, 6, v{t+4}
    v_bfe_u32 v{t+3}, v0, 4, 1
    v_lshl_add_u32 v{t+4}, v{t+3}, 5, v{t+4}
    v_and_b32 v{t+5}, 3, v0
    v_lshl_add_u32 v{t+4}, v{t+5}, 3, v{t+4}
    v_add_u32 v{aW}, 16384, v{t+4}
    v_xor_b32 v{aW+1}, 64, v{aW}
    v_bfe_u32 v{t+4}, v0, 2, 1
    v_cmp_eq_u32 vcc, v{t+3}, v{t+4}
    v_mov_b32 v{t+5}, 0x3f803f80
    s_nop 0
    v_cndmask_b32 v{SEL}, 0, v{t+5}, vcc
    v_cndmask_b32 v{SEL+1}, 0, v{t+5}, vcc
    v_cndmask_b32 v{SEL+2}, 0, v{t+5}, vcc
    v_cndmask_b32 v{SEL+3}, 0, v{t+5}, vcc""")
    for r in list(range(ACC,ACC+64))+list(range(CS,CS+4)): p(f"v_mov_b32 v{r}, 0")
    store_addr(sWR_,sLC,sTY,sSO,sSO2,sHALO,sFO,aST,sT+10,sT+11)
    p(f"""s_lshl_b32 s{A}, s{sWAVE}, 13
    v_lshl_add_u32 v{aSG}, v0, 4, s{A}
    s_lshl_b32 s{A}, s{sWAVE}, 2
    s_add_u32 s{A}, s{A}, {F_STG}
    v_mov_b32 v{aSG+1}, s{A}""")
def wave_ids(wave,wr,wc,lc,ty):
    p(f"""s_and_b32 s{wr}, s{wave}, 1
    s_lshr_b32 s{wc}, s{wave}, 1
    s_lshl_b32 s{lc}, s{sCT}, 1
    s_add_u32 s{lc}, s{lc}, s{wc}
    s_mul_i32 s{ty}, s{lc}, 52
    s_lshr_b32 s{ty}, s{ty}, 8""")
def store_addr(wr,lc,ty,so,so2,halo,fo,ast,A,B,t=2):
    p(f"""v_and_b32 v{t}, 31, v0
    v_lshrrev_b32 v{t+2}, 5, v0
    s_mul_i32 s{A}, s{ty}, 5
    s_sub_u32 s{A}, s{lc}, s{A}
    s_mul_i32 s{B}, s{sHH}, 5
    s_add_u32 s{A}, s{A}, s{B}
    s_lshl_b32 s{B}, s{sRQ}, 2
    s_add_u32 s{B}, s{B}, s{sRB}
    s_lshl_b32 s{B}, s{B}, 1
    s_add_u32 s{B}, s{B}, s{wr}
    s_lshl_b32 s{B}, s{B}, 1""")
    isv=p.lab("isv"); jn=p.lab("stj")
    p(f"""s_cmp_ge_u32 s{ty}, 2
    s_cbranch_scc1 {isv}
    s_mul_i32 s{so}, s{B}, 2560
    s_mul_i32 s{B}, s{ty}, {KB}
    s_add_u32 s{so}, s{so}, s{B}
    s_add_u32 s{so2}, s{so}, 2560
    s_lshl_b32 s{A}, s{A}, 3""")
    for cb in range(2):
        for ip in range(2):
            p(f"""s_xor_b32 s{B}, s{wr}, {cb}
            s_lshl_b32 s{B}, s{B}, 2
            s_add_u32 s{B}, s{B}, s{A}
            s_add_u32 s{B}, s{B}, {2*ip}
            v_add_u32 v{t+3}, s{B}, v{t+2}
            v_mul_u32_u24 v{t+4}, 205, v{t+3}
            v_lshrrev_b32 v{t+4}, 10, v{t+4}
            v_mul_u32_u24 v{t+5}, 5, v{t+4}
            v_sub_u32 v{t+5}, v{t+3}, v{t+5}
            v_mul_u32_u24 v{t+4}, {64*2560}, v{t+4}
            v_lshl_add_u32 v{t+4}, v{t+5}, 9, v{t+4}
            v_lshl_add_u32 v{ast+2*cb+ip}, v{t}, 4, v{t+4}""")
    p(f"""s_branch {jn}
    {isv}:
    s_mul_i32 s{so}, s{B}, 1280
    s_add_u32 s{so}, s{so}, {VB}
    s_add_u32 s{so2}, s{so}, 1280
    s_lshl_b32 s{A}, s{A}, 6""")
    for cb in range(2):
        p(f"""s_xor_b32 s{B}, s{wr}, {cb}
        s_lshl_b32 s{B}, s{B}, 5
        s_add_u32 s{B}, s{B}, s{A}
        v_add_u32 v{t+3}, s{B}, v{t}
        v_mul_u32_u24 v{t+4}, 3277, v{t+3}
        v_lshrrev_b32 v{t+4}, 16, v{t+4}
        v_mul_u32_u24 v{t+5}, 20, v{t+4}
        v_sub_u32 v{t+5}, v{t+3}, v{t+5}
        v_mul_u32_u24 v{t+4}, 81920, v{t+4}
        v_lshl_add_u32 v{t+4}, v{t+5}, 4, v{t+4}
        v_mul_u32_u24 v{t+5}, 320, v{t+2}
        v_add_u32 v{ast+2*cb}, v{t+4}, v{t+5}
        v_add_u32 v{ast+2*cb+1}, 640, v{ast+2*cb}""")
    p(f"""{jn}:
    s_sub_u32 s{A}, s{ty}, 1
    s_cmp_lt_u32 s{A}, 2
    s_cselect_b32 s{halo}, 1, 0
    s_cmp_ge_u32 s{sRB}, 2
    s_cselect_b32 s{halo}, s{halo}, 0
    s_cmp_lt_u32 s{sRQ}, 3
    s_cselect_b32 s{halo}, s{halo}, 0
    s_lshl_b32 s{fo}, s{sG}, 4
    s_add_u32 s{fo}, s{fo}, s{lc}
    s_lshl_b32 s{fo}, s{fo}, 5
    s_lshl_b32 s{A}, s{sRB}, 1
    s_add_u32 s{A}, s{A}, s{wr}
    s_add_u32 s{fo}, s{fo}, s{A}
    s_lshl_b32 s{fo}, s{fo}, 2
    s_add_u32 s{fo}, s{fo}, {FL}""")
def xf(buf,xb): return XF+8*buf+4*xb
def wf(buf,cb): return WF+8*buf+4*cb
def reads(kind,buf,par,s):
    L=[]
    for xb in range(2): L.append(f"ds_read_b128 {vr(xf(buf,xb),4)}, v{aX+s} offset:{par*32768+xb*4096}")
    if kind!='S':
        for cb in range(2):
            for rd in range(2): L.append(f"ds_read_b64_tr_b16 {vr(wf(buf,cb)+2*rd,2)}, v{aW+cb} offset:{par*32768+s*4096+rd*1024}")
        L=[L[2],L[3],L[0],L[1],L[4],L[5]]
    return L
def mfmas(kind,buf):
    L=[]
    if kind=='S':
        for xb in range(2):
            x=xf(buf,xb)
            L.append(f"v_mfma_f32_16x16x32_bf16 {vr(ACC+4*xb,4)}, {vr(SEL,4)}, {vr(x,4)}, {vr(ACC+4*xb,4)}")
            L.append(f"v_mfma_f32_4x4x4_16b_bf16 {vr(ACC+8+8*xb,4)}, {vr(x,2)}, {vr(x,2)}, {vr(ACC+8+8*xb,4)}")
            L.append(f"v_mfma_f32_4x4x4_16b_bf16 {vr(ACC+12+8*xb,4)}, {vr(x+2,2)}, {vr(x+2,2)}, {vr(ACC+12+8*xb,4)}")
        return L
    for cb in range(2):
        for xb in range(2):
            a=ACC+16*(2*xb+cb); X=vr(xf(buf,xb),4); W=vr(wf(buf,cb),4)
            L.append(f"v_mfma_f32_32x32x16_bf16 {vr(a,16)}, {W if kind=='T' else X}, {X if kind=='T' else W}, {vr(a,16)}")
    L.insert(2,f"v_mfma_f32_16x16x32_bf16 {vr(CS,4)}, {vr(SEL,4)}, {vr(wf(buf,0),4)}, {vr(CS,4)}")
    return L
def gemm_loop(kind):
    CNT=sT+10
    lp=p.lab("g"+kind)
    p("s_barrier")
    STAMP('b0')
    for r in reads(kind,0,0,0): p(r)
    if CFG['clr']==1: clears(1)
    hl=p.lab("hello"); hr=p.lab("hellor")
    if kind!='S':
        COLD.append(f"""{hl}:
        s_getreg_b32 s{CNT+1}, hwreg(HW_REG_XCC_ID, 0, 4)
        s_or_b32 s{CNT+1}, s{CNT+1}, s{sTAG}
        v_mov_b32 v{vT}, s{CNT+1}
        s_lshl_b32 s{CNT+1}, s2, 2
        s_add_u32 s{CNT+1}, s{CNT+1}, {H1}
        v_mov_b32 v{vT+1}, 0
        s_mov_b64 exec, 1
        buffer_store_dword v{vT}, v{vT+1}, {S4(sWS)}, s{CNT+1} offen sc1
        s_mov_b64 exec, -1
        s_branch {hr}""")
        p(f"s_lshl_b32 s{CNT+2}, s{sWAVE}, 3\ns_add_u32 s{CNT+2}, s{CNT+2}, {5-CFG['clr']}")
    p(f"s_mov_b32 s{CNT}, 5\n{lp}:")
    for k in range(1,5):
        if (CFG['cal'] and CFG['cal'][0]=='it%d'%(2*k)) or (CFG['prof'] and any('it%d'%(2*k) in n.split('|') for n in CFG['st'])):
            sk=p.lab("its"); p(f"s_cmp_lg_u32 s{CNT}, {5-k}\ns_cbranch_scc1 {sk}"); STAMP('it%d'%(2*k)); p(f"{sk}:")
    for par in range(2):
        for s in range(4):
            buf=s&1
            last=(s==3)
            M=mfmas(kind,buf)
            if CFG['nomfma']: M=M[:1]
            if last and par==1:
                pre=[f"v_xor_b32 v{aX+i}, 0x10000, v{aX+i}" for i in range(4)]+[f"v_xor_b32 v{aW+i}, 0x10000, v{aW+i}" for i in range(2)]
            else: pre=[]
            R=reads(kind,buf^1,(par^1) if last else par,(s+1)&3)
            p("s_waitcnt lgkmcnt(0)")
            if last:
                p(M.pop(0))
                for x in pre: p(x)
                if par==0:
                    w1=p.lab("cw"); w2=p.lab("cwr")
                    p(f"s_cmp_eq_u32 s{CNT}, {5-CFG['clr']}\ns_cbranch_scc1 {w1}\n{w2}:")
                    COLD.append(f"{w1}:\ns_waitcnt vmcnt(0)\ns_branch {w2}")
                p("s_barrier")
                if par==0 and kind!='S': p(f"s_cmp_eq_u32 s{CNT}, s{CNT+2}\ns_cbranch_scc1 {hl}\n{hr}:")
            k=0
            while M or R:
                if R: p(R.pop(0))
                if R: p(R.pop(0))
                if M: p(M.pop(0))
    p(f"""s_sub_u32 s{CNT}, s{CNT}, 1
    s_cmp_lg_u32 s{CNT}, 0
    s_cbranch_scc1 {lp}""")
    STAMP('gend')
def bf16r(dst,src):
    p(f"v_cvt_pk_bf16_f32 v{dst}, v{src}, v{src}\nv_and_b32 v{dst}, 0xffff0000, v{dst}")
def mode_read():
    p(f"""v_mov_b32 v{vT+8}, {L_MODE}
    ds_read_b32 v{vT+9}, v{vT+8}""")
def mode_get():
    p(f"v_readfirstlane_b32 s{sMODE}, v{vT+9}")
def dual(stores):
    sl=p.lab("slow"); jn=p.lab("jn")
    p(f"s_cmp_lg_u32 s{sMODE}, 0\ns_cbranch_scc1 {sl}")
    for s in stores: p(s)
    p(f"s_branch {jn}\n{sl}:")
    for s in stores: p(s+" sc1")
    p(f"{jn}:")
def idle_gemm():
    vt=10; aI=20; acc=28; one=32; D=64; A=sT+10
    p(f"""s_lshl_b32 s{A}, s{sWR_}, 13
    v_bfe_u32 v{vt}, v0, 1, 3
    v_lshlrev_b32 v{vt}, 4, v{vt}
    v_lshl_add_u32 v{vt}, v0, 7, v{vt}
    v_add_u32 v{aI}, s{A}, v{vt}
    v_mov_b32 v{one}, 0x3f803f80
    s_lshl_b32 s{A}, s{sG}, 2
    s_add_u32 s{A}, s{A}, s{sRB}
    s_lshl_b32 s{A}, s{A}, 14
    s_lshl_b32 s{A+1}, s{sWR_}, 10
    s_add_u32 s{A}, s{A}, s{A+1}
    s_add_u32 s{A}, s{A}, {STP+7*2048}
    v_lshlrev_b32 v{vt}, 4, v0""")
    for i in range(1,8): p(f"v_xor_b32 v{aI+i}, {16*i}, v{aI}")
    for i in range(4): p(f"v_mov_b32 v{acc+i}, 0")
    assert CFG['clr']==0
    for c in range(11):
        if c==1: p("s_waitcnt vmcnt(0)")
        p("s_barrier")
        if c<3:
            if c==2:
                for i in range(8): p(f"v_add_u32 v{aI+i}, 0x10000, v{aI+i}")
            for i in range(8): p(f"ds_read_b128 {vr(D+4*i,4)}, v{aI+i} offset:{(c&1)*32768}")
            for i in range(8):
                p(f"s_waitcnt lgkmcnt({7-i})")
                for j in range(4):
                    r=D+4*i+j
                    p(f"v_dot2_f32_bf16 v{acc+(j&1)}, v{r}, v{one}, v{acc+(j&1)}\nv_dot2_f32_bf16 v{acc+2+(j&1)}, v{r}, v{r}, v{acc+2+(j&1)}")
        if c==2: p(f"""s_nop 1
            v_add_f32 v{acc}, v{acc}, v{acc+1}
            v_add_f32 v{acc+1}, v{acc+2}, v{acc+3}
            v_mov_b32 v{acc+2}, s{sTAG}
            buffer_store_dwordx4 {vr(acc,4)}, v{vt}, {S4(sWS)}, s{A} offen sc1""")
    p("s_barrier")
    mode_read()
    p(f"v_mov_b32 v{vT}, 2\nds_write_b32 v{aSG+1}, v{vT}")
    p("s_waitcnt lgkmcnt(0)")
    mode_get()
def gemm_epi(kind):
    t=vT; A=sT+10
    AU=20
    WA=24
    XA=28
    RS=32
    p(f"""v_and_b32 v{t}, 31, v0
    s_lshl_b32 s{A}, s{sWC}, 1
    s_or_b32 s{A}, s{A}, s{sWR_}
    s_lshl_b32 s{A}, s{A}, 7
    s_add_u32 s{A}, s{A}, {L_CS}
    v_lshl_add_u32 v{t+1}, v{t}, 2, s{A}
    s_lshl_b32 s{A}, s{sWR_}, 9
    s_add_u32 s{A}, s{A}, {L_SA}
    v_lshl_add_u32 v{t+3}, v{t}, 3, s{A}
    ds_write_b32 v{t+1}, v{CS}
    v_xor_b32 v{t+2}, 128, v{t+1}
    v_mov_b32 v{WA+1}, 0
    v_mov_b32 v{WA+3}, 0
    v_mov_b32 v{XA+1}, 0
    v_mov_b32 v{XA+3}, 0""")
    if kind=='V':
        p(f"""v_lshrrev_b32 v{t+4}, 5, v0
        s_lshl_b32 s{A}, s{sWR_}, 8
        s_add_u32 s{A}, s{A}, {L_SR}
        v_lshl_add_u32 v{t+4}, v{t+4}, 4, s{A}""")
    p("s_waitcnt lgkmcnt(0)\ns_barrier")
    STAMP('E1',1)
    p(f"""ds_read_b32 v{CS+1}, v{t+2}
    ds_read_b64 v[{AU}:{AU+1}], v{t+3}
    ds_read_b64 v[{AU+2}:{AU+3}], v{t+3} offset:256""")
    mode_read()
    if kind=='V':
        for xb in range(2):
            for i in range(4): p(f"ds_read_b128 {vr(RS+16*xb+4*i,4)}, v{t+4} offset:{xb*128+i*32}")
    def split(cb):
        c=CS+cb
        p(f"""v_cndmask_b32 v{c}, 0, v{c}, s[{sLO}:{sLO+1}]
        v_cvt_pk_bf16_f32 v{t+5}, v{c}, v{c}
        v_and_b32 v{t+5}, 0xffff0000, v{t+5}
        v_sub_f32 v{t+6}, v{c}, v{t+5}
        v_cvt_pk_bf16_f32 v{WA+2*cb}, v{t+5}, v{t+6}""")
    split(0)
    p(f"s_waitcnt lgkmcnt({8 if kind=='V' else 0})")
    split(1)
    p(f"v_mov_b32 v{XA}, v{AU}\nv_mov_b32 v{XA+2}, v{AU+2}")
    mode_get()
    if kind=='T':
        p(f"""s_cmp_eq_u32 s{sTY}, 0
        s_cselect_b32 s{A}, {hex(f2u(20**-0.5*math.log2(math.e)))}, 1.0
        v_mul_f32 v{AU+1}, s{A}, v{AU+1}
        v_mul_f32 v{AU+3}, s{A}, v{AU+3}""")
    else: p("s_nop 0")
    for xb in range(2):
        for cb in range(2):
            a=ACC+16*(2*xb+cb); X=vr(XA+2*xb,2); W=vr(WA+2*cb,2)
            p(f"v_mfma_f32_32x32x8_bf16 {vr(a,16)}, {W if kind=='T' else X}, {X if kind=='T' else W}, {vr(a,16)}")
    p("s_waitcnt lgkmcnt(0)\ns_nop 7")
    allst=[]
    for xb in range(2):
        st=[]
        for cb in range(2):
            a=ACC+16*(2*xb+cb)
            for k in range(8):
                if kind=='T': p(f"v_pk_mul_f32 {vr(a+2*k,2)}, {vr(a+2*k,2)}, {vr(AU+2*xb,2)} op_sel:[0,1] op_sel_hi:[1,1]")
                else: p(f"v_pk_mul_f32 {vr(a+2*k,2)}, {vr(a+2*k,2)}, {vr(RS+16*xb+2*k,2)}")
            for k in range(8): p(f"v_cvt_pk_bf16_f32 v{a+k}, v{a+2*k}, v{a+2*k+1}")
            if kind=='T':
                p(f"""v_permlane32_swap_b32 v{a}, v{a+2}
                v_permlane32_swap_b32 v{a+1}, v{a+3}
                v_permlane32_swap_b32 v{a+4}, v{a+6}
                v_permlane32_swap_b32 v{a+5}, v{a+7}""")
            for h in range(2):
                st.append(f"buffer_store_dwordx4 {vr(a+4*h,4)}, v{aST+2*cb+h}, {S4(sWS)}, s{sSO2 if xb else sSO} offen")
                allst.append(a+4*h)
        dual(st)
        nh=p.lab("nohalo")
        p(f"s_cmp_eq_u32 s{sHALO}, 0\ns_cbranch_scc1 {nh}")
        for i in range(4*xb,4*xb+4): p(f"ds_write_b128 v{aSG}, {vr(allst[i],4)} offset:{L_STG+i*1024}")
        if xb==0: p(f"v_mov_b32 v{t}, {xb+1}\nds_write_b32 v{aSG+1}, v{t}\n{nh}:")
        else: p(f"{nh}:\nv_mov_b32 v{t}, {xb+1}\nds_write_b32 v{aSG+1}, v{t}")
    STAMP('st')
    p(f"""v_mov_b32 v{t}, 0
    v_mov_b32 v{t+1}, s{sTAG}
    s_waitcnt vmcnt(0)
    s_mov_b64 exec, 1""")
    dual([f"buffer_store_dword v{t+1}, v{t}, {S4(sWS)}, s{sFO} offen"])
    p(f"s_mov_b64 exec, -1")
    STAMP('fl')
import struct
def f2u(x): return struct.unpack("<I",struct.pack("<f",x))[0]

aLin,aTl,aKm,aKt,aV,aFl,aO=20,21,22,23,24,25,26
QM=[28,34]; QT=[32,38]; PP=40
KM=[48,62]; KT=[52,66]; VV=[[54,58],[68,72]]
SS=[80,96]; OO=[112,128]; CD=144; CF=160
sQ=[sT+9,sT+10]; sOm=[sT+11,sT+12]; sOt=[sT+13,sT+14]; sOSC=sT+15; sFB=sT+16
NINF="0xff800000"
def att_pro():
    t=vT; A=sT+7; B=sT+8; C=sT+17; sF=sT
    wo_pre1()
    att_ids()
    flag_addr(aFl,t,1,A,B,C)
    p(f"""s_lshl_b32 s{sF}, s{sG}, 11
    s_lshl_b32 s{A}, s{sHF}, 4
    s_add_u32 s{sF}, s{sF}, s{A}
    s_add_u32 s{sF}, s{sF}, {FL}
    buffer_load_dword v{t+10}, v{aFl}, {S4(sWS)}, s{sF} offen sc1
    s_mov_b32 s{sK1024}, 1024""")
    kv_addr(aLin,aTl,t)
    p(f"""v_add_u32 v{aKm}, {L_KV}, v{aLin}
    v_and_b32 v{t}, 31, v0
    v_lshrrev_b32 v{t+1}, 5, v0
    v_xor_b32 v{t+2}, s{sHO}, v{t+1}
    v_lshlrev_b32 v{t+2}, 3, v{t+2}
    v_lshl_add_u32 v{t+2}, v{t}, 4, v{t+2}
    v_add_u32 v{aKt}, {L_KV+2048}, v{t+2}
    v_mul_u32_u24 v{t+2}, 320, v{t+1}
    v_lshl_add_u32 v{t+2}, v{t}, 4, v{t+2}
    v_add_u32 v{aV}, {L_KV+3072}, v{t+2}
    v_lshlrev_b32 v{t+2}, 2, v{t+1}
    v_sub_u32 v{t+2}, v{t}, v{t+2}
    v_mov_b32 v{t+3}, {NINF}""")
    for i in range(16):
        m=C+1+2*(i%2)+((C+1)%2)
        ri=8*(i>>2)+(i&3)
        p(f"v_cmp_le_i32 s[{m}:{m+1}], {ri}, v{t+2}")
        if i>0:
            m2=C+1+2*((i-1)%2)+((C+1)%2)
            if i==1: p("s_nop 0")
            p(f"v_cndmask_b32 v{CD+i-1}, v{t+3}, 0, s[{m2}:{m2+1}]\nv_cndmask_b32 v{CF+i-1}, 0, v{t+3}, s[{m2}:{m2+1}]")
    p(f"""s_nop 0
    v_cndmask_b32 v{CD+15}, v{t+3}, 0, s[{m}:{m+1}]
    v_cndmask_b32 v{CF+15}, 0, v{t+3}, s[{m}:{m+1}]
    v_cmp_eq_u32 s[{m}:{m+1}], 20, v{t}
    v_cmp_eq_u32 vcc, 24, v{t}
    v_mov_b32 v{t+4}, 0x3f803f80
    s_or_b64 vcc, vcc, s[{m}:{m+1}]""")
    for b_ in range(2):
        for mm in range(2):
            for r in range(4): p(f"v_cndmask_b32 v{VV[b_][mm]+r}, 0, v{t+4}, vcc")
    for q in range(2): p(f"v_mov_b32 v{QT[q]}, 0\nv_mov_b32 v{QT[q]+1}, 0")
    p(f"""v_bfe_u32 v{t+2}, v0, 4, 1
    v_mul_u32_u24 v{t+2}, 20480, v{t+2}
    v_lshl_add_u32 v{t+2}, v{t+1}, 8, v{t+2}
    v_and_b32 v{t+3}, 15, v0
    v_lshl_add_u32 v{aO}, v{t+3}, 4, v{t+2}
    s_cmp_lg_u32 s{sHF}, s{sHH}
    s_cselect_b32 s{sOSC}, 1, s{sMODE}
    s_mov_b32 s{sFB}, 0
    s_lshl_b32 s{A}, s{sWAVE}, 1
    s_sub_u32 s{A}, 7, s{A}
    v_mul_u32_u24 v{t+2}, s{A}, v0
    s_add_u32 s{A}, s{sT0}, s{sWAVE}
    v_add_lshl_u32 v{aFO}, v{t+2}, s{A}, 12
    s_lshl_b32 s{A}, s{sHD}, 7
    s_add_u32 s{A}, s{A}, {FO}
    v_add_u32 v{aFO}, s{A}, v{aFO}
    s_mul_i32 s{C}, s{sMODE}, {OB2-OB}
    s_add_u32 s{C}, s{C}, {OB}""")
    for q in range(2):
        if q==0: p(f"s_add_u32 s{A}, s{sT0}, 7\ns_sub_u32 s{A}, s{A}, s{sWAVE}")
        else: p(f"s_add_u32 s{A}, s{sT0}, s{sWAVE}")
        p(f"""s_mul_i32 s{sQ[q]}, s{A}, 2560
        s_mul_i32 s{B}, s{sPH}, {64*2560}
        s_add_u32 s{sQ[q]}, s{sQ[q]}, s{B}
        s_mul_i32 s{A}, s{A}, 40960
        s_mul_i32 s{B}, s{sPH}, 1280
        s_add_u32 s{A}, s{A}, s{B}
        s_add_u32 s{A}, s{A}, s{C}
        s_mul_i32 s{B}, s{sHO}, 768
        s_add_u32 s{sOm[q]}, s{A}, s{B}
        s_lshl_b32 s{B}, s{sHO}, 3
        s_add_u32 s{sOt[q]}, s{A}, s{B}""")
    sK=C+1; sV=C+2; sL=C+3
    p(f"""s_lshl_b32 s{A}, s{sWAVE}, 1
    s_add_u32 s{A}, s{A}, s{sT0}
    s_mul_i32 s{sK}, s{A}, 2560
    s_mul_i32 s{sV}, s{A}, 1280
    s_mul_i32 s{A}, s{sPH}, {64*2560}
    s_add_u32 s{sK}, s{sK}, s{A}
    s_add_u32 s{sK}, s{sK}, {KB}
    s_mul_i32 s{A}, s{sHD}, 81920
    s_add_u32 s{sV}, s{sV}, s{A}
    s_add_u32 s{sV}, s{sV}, {VB}
    s_mul_i32 s{sL}, s{sWAVE}, 5632
    s_add_u32 s{sL}, s{sL}, {L_KV+4*5632}
    s_mul_i32 s{A}, s{sHO}, 1536
    v_add_u32 v{t+2}, s{A}, v{aLin}
    s_lshl_b32 s{A}, s{sHO}, 3
    v_add_u32 v{t+3}, s{A}, v{aLin}""")
    p("s_waitcnt vmcnt(1)")
    wo_pre2()
    flag_poll(aFl,t+10,sF,C,first=False)
    STAMP('fseen')
    kv_dma(aLin,aTl,sK,sV,sL,A,B)
    for q in range(2): p(f"buffer_load_dwordx4 {vr(QM[q],4)}, v{t+2}, {S4(sWS)}, s{sQ[q]} offen sc1")
    p(f"s_mov_b64 exec, s[{sLO}:{sLO+1}]")
    for q in range(2): p(f"buffer_load_dwordx2 {vr(QT[q],2)}, v{t+3}, {S4(sWS)}, s{sQ[q]} offen offset:1024 sc1")
    p(f"""s_mov_b64 exec, 1
    v_mov_b32 v{t}, {F_G1}
    v_mov_b32 v{t+1}, 1
    s_waitcnt vmcnt(4)
    ds_add_u32 v{t}, v{t+1}
    s_mov_b64 exec, -1
    v_mov_b32 v{aFl}, {F_G1}""")
    lds_wait(aFl,t+5,C,'gt',4,0)
    p(f"s_waitcnt vmcnt(0)")
    STAMP('kv')
    p(f"""s_cmp_eq_u32 s{sWAVE}, 1
    s_cbranch_scc1 L_av1
    s_cmp_eq_u32 s{sWAVE}, 2
    s_cbranch_scc1 L_av2
    s_cmp_eq_u32 s{sWAVE}, 3
    s_cbranch_scc1 L_av3""")
def kreads(n,b_):
    o=(n>>1)*5632
    return [f"ds_read_b128 {vr(KM[b_],4)}, v{aKm} offset:{o+(n&1)*1024}", f"ds_read_b64 {vr(KT[b_],2)}, v{aKt} offset:{o+(n&1)*512}"]
def vreads(n,b_):
    o=(n>>1)*5632+(n&1)*1280
    return [f"s_mov_b64 exec, s[{sLO+2}:{sLO+3}]", f"ds_read_b128 {vr(VV[b_][0],4)}, v{aV} offset:{o}", f"ds_read_b128 {vr(VV[b_][1],4)}, v{aV} offset:{o+640}", "s_mov_b64 exec, -1"]
def att_variant(w):
    U=[]
    for n in range(15-w,8+w,-1): U.append((0,n))
    for n in range(8+w,6-w,-1): U+= [(0,n),(1,n)]
    for n in range(6-w,w-1,-1): U.append((1,n))
    assert len(U)==18
    diag=[15-w,8+w]
    tiles=[]; tau=[]
    for q,n in U:
        if not tiles or tiles[-1]!=n: tiles.append(n)
        tau.append(len(tiles)-1)
    first=[tau.index(i) for i in range(len(tiles))]
    started=[0,0]
    def QK(u):
        q,n=U[u]; b_=tau[u]&1; S=vr(SS[u&1],16)
        c=vr(CD,16) if n==diag[q] else (vr(CF,16) if n==diag[q]-8 else "0")
        return [f"v_mfma_f32_32x32x16_bf16 {S}, {vr(KM[b_],4)}, {vr(QM[q],4)}, {c}", f"v_mfma_f32_32x32x8_bf16 {S}, {vr(KT[b_],2)}, {vr(QT[q],2)}, {S}"]
    def PV(u,m):
        q,n=U[u]; O=vr(OO[q],16)
        c=O if started[q] else "0"; started[q]=1
        return f"v_mfma_f32_32x32x16_bf16 {O}, {vr(VV[tau[u]&1][m],4)}, {vr(PP+4*m,4)}, {c}"
    p(f"L_av{w}:")
    for i,f in enumerate(first):
        if f<=1:
            for x in kreads(tiles[i],i&1): p(x)
    for x in vreads(tiles[0],0): p(x)
    p("s_waitcnt lgkmcnt(0)")
    for x in QK(0): p(x)
    p("s_nop 7\ns_nop 3")
    pend=False
    H=first[tiles.index(7)]
    for u in range(18):
        S=SS[u&1]
        e=lambda i: p(f"v_exp_f32 v{S+i}, v{S+i}")
        c=lambda k: p(f"v_cvt_pk_bf16_f32 v{PP+k}, v{S+2*k}, v{S+2*k+1}")
        kr=[x for i,f in enumerate(first) if f==u+2 for x in kreads(tiles[i],i&1)]
        vr_=[x for i,f in enumerate(first) if f==u+1 for x in vreads(tiles[i],i&1)]
        late=(u+2==H)
        STAMP('u%d'%u)
        e(0); e(1)
        if u>0: p(PV(u-1,1))
        e(2)
        if not late:
            for x in kr: p(x)
        if u+3==H: p(f"ds_read_b32 v{vT}, v{aFl} offset:{F_G2-F_G1}")
        e(3); c(0); c(1)
        if pend: p("s_waitcnt lgkmcnt(0)") if not (kr and not late) and u+3!=H else p(f"s_waitcnt lgkmcnt({(len(kr) if not late else 0)+(1 if u+3==H else 0)})")
        qk=QK(u+1) if u<17 else [None,None]
        if qk[0]: p(qk[0])
        e(4)
        if late:
            p(f"v_cmp_gt_u32 vcc, 2, v{vT}")
        e(5)
        if late:
            p(f"s_cbranch_vccnz L_g2w{w}\nL_g2r{w}:")
            for x in kr: p(x)
        for x in vr_: p(x)
        e(6); e(7); c(2); c(3)
        if qk[1]: p(qk[1])
        e(8); e(9); e(10); e(11)
        p(PV(u,0))
        c(4); c(5); e(12); e(13); e(14); e(15); c(6); c(7)
        pend=bool(kr or vr_ or u+3==H)
        if u==H-1:
            p(f"s_cmp_eq_u32 s{sT0}, 0\ns_cbranch_scc1 L_ex{w}")
            exq=PV(u,1)
    p("s_nop 1")
    p(PV(17,1))
    p("s_branch L_afin")
    p(f"L_g2w{w}:")
    p(f"v_mov_b32 v{vT+1}, {F_G2}")
    lds_wait(vT+1,vT,sT+17,'gt',2,1)
    p(f"s_branch L_g2r{w}\nL_ex{w}:\n{exq}\ns_branch L_afin")
def att_fin():
    t=vT; A=sT+7
    p("L_afin:")
    STAMP('aend')
    p(f"s_mov_b32 s{A}, {hex(f2u(2.0**-40))}\ns_mov_b32 s{A+1}, {hex(f2u(2.0**40)-f2u(2.0**-40))}")
    for q in range(2):
        O=OO[q]
        p(f"""v_cndmask_b32 v{t}, v{O+8}, v{O+12}, s[{sLO}:{sLO+1}]
        v_pk_add_f32 v[{t+2}:{t+3}], v[{O}:{O+1}], v[{O+2}:{O+3}]
        v_rcp_f32 v{t+1}, v{t}
        v_pk_add_f32 v[{t+4}:{t+5}], v[{O+4}:{O+5}], v[{O+6}:{O+7}]
        v_pk_add_f32 v[{t+6}:{t+7}], v[{O+8}:{O+9}], v[{O+10}:{O+11}]
        v_subrev_u32 v{t}, s{A}, v{t}
        v_pk_add_f32 v[{t+2}:{t+3}], v[{t+2}:{t+3}], v[{t+4}:{t+5}]
        v_cmp_lt_u32 s[{A+11}:{A+12}], s{A+1}, v{t}
        v_pk_add_f32 v[{t+2}:{t+3}], v[{t+2}:{t+3}], v[{t+6}:{t+7}]
        v_add_f32 v{t+2}, v{t+2}, v{t+3}""")
        p(f"v_cmp_class_f32 vcc, v{t+2}, v{aCLS}")
        for k in range(6): p(f"v_pk_mul_f32 {vr(O+2*k,2)}, {vr(O+2*k,2)}, {vr(t,2)} op_sel:[0,1] op_sel_hi:[1,1]")
        p(f"""s_or_b64 vcc, vcc, s[{A+11}:{A+12}]
        s_cbranch_scc1 L_afb{q}
        L_afr{q}:""")
        for k in range(6): p(f"v_cvt_pk_bf16_f32 v{O+k}, v{O+2*k}, v{O+2*k+1}")
        p(f"s_cmp_lg_u32 s{sOSC}, 0")
        st=[f"buffer_store_dwordx4 {vr(O,4)}, v{aO}, {S4(sWS)}, s{sOm[q]} offen", f"s_mov_b64 exec, s[{sLO}:{sLO+1}]",
            f"buffer_store_dwordx2 {vr(O+4,2)}, v{aO}, {S4(sWS)}, s{sOt[q]} offen offset:512", "s_mov_b64 exec, -1"]
        p(f"s_cbranch_scc1 L_osc{q}")
        for x in st: p(x)
        p(f"s_branch L_osr{q}\nL_osc{q}:")
        for x in st: p(x+(" sc1" if x.startswith("buffer") else ""))
        p(f"L_osr{q}:")
    p(f"""v_mov_b32 v{t}, {F_DONE}
    v_mov_b32 v{t+1}, 1
    s_mov_b64 exec, 1
    ds_add_u32 v{t}, v{t+1}
    s_mov_b64 exec, -1""")
    STAMP('ost')
aCLS=27; aFO=226; aFR=227
def att_cold():
    t=vT; A=sT+7; B=sT+8; N=sT+17; J=sT+18; CN=sT+19; PA=sT+20
    for q in range(2): p(f"L_afb{q}:\ns_cmp_lg_u32 s{sFB}, 0\ns_cbranch_scc1 L_afr{q}\ns_branch L_afb")
    p(f"L_afb:\ns_mov_b32 s{sFB}, 1\ns_waitcnt lgkmcnt(0)")
    S=SS[0]; MX=t+10; xa=t+11
    for q in range(2):
        lp=p.lab("fb"); nd=p.lab("fbnd"); nf=p.lab("fbnf"); p2=p.lab("fbp2"); nx=p.lab("fbnx"); ps=p.lab("fbps"); dn=p.lab("fbdn")
        for r in range(16): p(f"v_mov_b32 v{OO[q]+r}, 0")
        p(f"""v_mov_b32 v{MX}, {NINF}
        s_mov_b32 s{PA}, 0
        {ps}:""")
        if q==0: p(f"s_sub_u32 s{N}, 15, s{sWAVE}")
        else: p(f"s_add_u32 s{N}, 8, s{sWAVE}")
        p(f"""s_sub_u32 s{CN}, s{N}, 7
        s_cmp_eq_u32 s{sT0}, 0
        s_cselect_b32 s{CN}, s{CN}, 9
        s_mov_b32 s{J}, 0
        {lp}:
        s_lshr_b32 s{A}, s{N}, 1
        s_mul_i32 s{A}, s{A}, 5632
        s_and_b32 s{B}, s{N}, 1
        s_lshl_b32 s{sT+21}, s{B}, 10
        s_add_u32 s{sT+21}, s{sT+21}, s{A}
        v_add_u32 v{xa}, s{sT+21}, v{aKm}
        s_lshl_b32 s{sT+21}, s{B}, 9
        s_add_u32 s{sT+21}, s{sT+21}, s{A}
        v_add_u32 v{xa+1}, s{sT+21}, v{aKt}
        s_mul_i32 s{B}, s{B}, 1280
        s_add_u32 s{A}, s{A}, s{B}
        v_add_u32 v{xa+2}, s{A}, v{aV}
        ds_read_b128 {vr(KM[0],4)}, v{xa}
        ds_read_b64 {vr(KT[0],2)}, v{xa+1}
        s_mov_b64 exec, s[{sLO+2}:{sLO+3}]
        ds_read_b128 {vr(VV[0][0],4)}, v{xa+2}
        ds_read_b128 {vr(VV[0][1],4)}, v{xa+2} offset:640
        s_mov_b64 exec, -1
        s_waitcnt lgkmcnt(0)
        v_mfma_f32_32x32x16_bf16 {vr(S,16)}, {vr(KM[0],4)}, {vr(QM[q],4)}, 0
        v_mfma_f32_32x32x8_bf16 {vr(S,16)}, {vr(KT[0],2)}, {vr(QT[q],2)}, {vr(S,16)}
        v_mov_b32 v{xa}, {NINF}
        s_nop 11
        s_cmp_lg_u32 s{J}, 0
        s_cbranch_scc1 {nd}""")
        for r in range(16): p(f"v_cmp_eq_u32 vcc, 0, v{CD+r}\ns_nop 1\nv_cndmask_b32 v{S+r}, v{xa}, v{S+r}, vcc")
        p(f"{nd}:\ns_cmp_lg_u32 s{J}, 8\ns_cbranch_scc1 {nf}")
        for r in range(16): p(f"v_cmp_eq_u32 vcc, 0, v{CF+r}\ns_nop 1\nv_cndmask_b32 v{S+r}, v{xa}, v{S+r}, vcc")
        p(f"{nf}:\ns_cmp_lg_u32 s{PA}, 0\ns_cbranch_scc1 {p2}")
        for r in range(0,16,2): p(f"v_max3_f32 v{MX}, v{S+r}, v{S+r+1}, v{MX}")
        p(f"s_branch {nx}\n{p2}:")
        for r in range(16): p(f"v_sub_f32 v{S+r}, v{S+r}, v{MX}")
        for r in range(16): p(f"v_exp_f32 v{S+r}, v{S+r}")
        p("s_nop 0")
        for k in range(8): p(f"v_cvt_pk_bf16_f32 v{PP+k}, v{S+2*k}, v{S+2*k+1}")
        p("s_nop 1")
        for m in range(2): p(f"v_mfma_f32_32x32x16_bf16 {vr(OO[q],16)}, {vr(VV[0][m],4)}, {vr(PP+4*m,4)}, {vr(OO[q],16)}")
        p(f"""s_nop 11
        {nx}:
        s_sub_u32 s{N}, s{N}, 1
        s_add_u32 s{J}, s{J}, 1
        s_cmp_lt_u32 s{J}, s{CN}
        s_cbranch_scc1 {lp}
        s_cmp_lg_u32 s{PA}, 0
        s_cbranch_scc1 {dn}
        v_mov_b32 v{xa}, v{MX}
        s_mov_b32 s{PA}, 1
        s_nop 0
        v_permlane32_swap_b32 v{xa}, v{MX}
        s_nop 1
        v_max_f32 v{MX}, v{MX}, v{xa}
        s_branch {ps}
        {dn}:""")
    p("s_branch L_afin")

BF=28; AF=108; WACC=200; XR=176; WR_=186; aX2=196; aPS=197; aAL=198; aAR=199; SW=220; SELF=221; aPR=222; aKY=223; aCD=224
HP=40; HF_=50; LP=70; OP=80
sRT=sT+1; sOL=sT+2; sOR=sT+5; sXO=sT+11; sPSO=sT+12; sRETRY=sT+13; sPRB=sT+14; sFLO=sT+16; sFRE=sT+18
def acc_init():
    for k in range(10): p(f"v_lshlrev_b32 v{WACC+2*k}, 16, v{XR+k}\nv_and_b32 v{WACC+2*k+1}, 0xffff0000, v{XR+k}")
def wo_pre1():
    t=vT; A=sT+7; B=sT+8
    wo_ids()
    p(f"""v_and_b32 v{t}, 15, v0
    v_lshrrev_b32 v{t+1}, 4, v0
    v_mul_u32_u24 v{t+2}, 40, v{t+1}
    v_mov_b32 v{t+3}, 1280
    v_mad_u32_u24 v{aX2}, v{t}, v{t+3}, v{t+2}
    s_lshl_b32 s{A}, s{sBLK}, 2
    s_add_u32 s{A}, s{A}, s{sWAVE}
    s_mul_i32 s{A}, s{A}, 20480
    s_mul_i32 s{B}, s{sJ}, 160
    s_add_u32 s{A}, s{A}, s{B}
    buffer_load_dwordx4 {vr(XR,4)}, v{aX2}, {S4(sX)}, s{A} offen
    buffer_load_dwordx4 {vr(XR+4,4)}, v{aX2}, {S4(sX)}, s{A} offen offset:16
    buffer_load_dwordx2 {vr(XR+8,2)}, v{aX2}, {S4(sX)}, s{A} offen offset:32
    buffer_load_dwordx4 {vr(WR_,4)}, v{t+2}, {S4(sWR)}, s{B} offen
    buffer_load_dwordx4 {vr(WR_+4,4)}, v{t+2}, {S4(sWR)}, s{B} offen offset:16
    buffer_load_dwordx2 {vr(WR_+8,2)}, v{t+2}, {S4(sWR)}, s{B} offen offset:32
    v_lshlrev_b32 v{aPS}, 7, v{t}
    v_lshl_add_u32 v{aPS}, v{t+1}, 5, v{aPS}
    v_lshlrev_b32 v{aFR}, 7, v{t}
    v_mul_u32_u24 v{t+2}, 640, v{t+1}
    v_bfe_u32 v{t+3}, v0, 2, 2
    v_mul_u32_u24 v{t+3}, 160, v{t+3}
    v_and_b32 v{t+4}, 3, v0
    v_mul_u32_u24 v{t+4}, 40, v{t+4}
    v_add3_u32 v{t+2}, v{t+2}, v{t+3}, v{t+4}
    s_mul_i32 s{A}, s{sHH}, 51200
    s_add_u32 s{B}, s{A}, {L_WO}
    v_add_u32 v{aAL}, s{B}, v{t+2}
    s_sub_u32 s{B}, {L_WO+51200}, s{A}
    v_add_u32 v{aAR}, s{B}, v{t+2}
    v_and_b32 v{t+2}, 7, v0
    v_mul_u32_u24 v{t+2}, 1280, v{t+2}
    v_bfe_u32 v{t+3}, v0, 3, 1
    v_lshl_add_u32 v{aPR}, v{t+3}, 7, v{t+2}""")
def wo_pre2():
    acc_init()
def probe(soff,cnt,first=True):
    t=vT
    lp=p.lab("pb"); ok=p.lab("pbok"); md=p.lab("pbm")
    p(f"s_mov_b32 s{cnt}, {SPIN}")
    if not first: p(f"s_branch {md}")
    p(f"""{lp}:
    buffer_load_dwordx3 v[{t+4}:{t+6}], v{aPR}, {S4(sWS)}, s{soff} offen offset:512 sc1""")
    if not first: p(f"{md}:")
    p(f"""s_waitcnt vmcnt(0)
    v_max_u32 v{t+4}, v{t+4}, v{t+6}
    v_cmp_eq_u32 vcc, -1, v{t+4}
    s_nop 0
    s_cbranch_vccz {ok}""")
    spin(cnt,lp,ok)
    p(f"s_branch {lp}\n{ok}:")
def red3(a,b,c,d):
    p(f"""v_mov_b32 v{d}, v{c}
    s_nop 0
    v_permlane32_swap_b32 v{a}, v{b}
    v_permlane32_swap_b32 v{c}, v{d}
    s_nop 0
    v_add_f32 v{a}, v{a}, v{b}
    v_add_f32 v{c}, v{c}, v{d}
    s_nop 1
    v_permlane16_swap_b32 v{a}, v{c}
    s_nop 0
    v_add_f32 v{a}, v{a}, v{c}
    v_add_f32 v{c}, v{a}, 0
    s_nop 1
    v_permlane16_swap_b32 v{a}, v{c}
    s_nop 0
    v_mov_b32 v{b}, v{a}
    s_nop 1
    v_permlane32_swap_b32 v{a}, v{b}""")
def wo_main():
    t=vT; A=sT+7; B=sT+8; C=sT+17; MXS=t+8
    wo_ids()
    p(f"""s_lshl_b32 s{sRT}, s{sBLK}, 2
    s_add_u32 s{sRT}, s{sRT}, s{sWAVE}
    s_mul_i32 s{A}, s{sRT}, 20480
    s_mul_i32 s{B}, s{sJ}, 160
    s_add_u32 s{sXO}, s{A}, s{B}
    s_mul_i32 s{B}, s{sMODE}, {OB2-OB}
    s_add_u32 s{A}, s{A}, s{B}
    s_add_u32 s{A}, s{A}, {OB}
    s_mul_i32 s{B}, s{sHH}, 10240
    s_add_u32 s{sOL}, s{A}, s{B}
    s_add_u32 s{sOL+1}, s{sOL}, 4096
    s_add_u32 s{sOL+2}, s{sOL}, 8192
    s_add_u32 s{A}, s{A}, 10240
    s_sub_u32 s{sOR}, s{A}, s{B}
    s_lshl_b32 s{sPSO}, s{sRT}, 11
    s_add_u32 s{sPSO}, s{sPSO}, {PS}
    s_mov_b32 s{sRETRY}, {1<<16}
    s_add_u32 s{sOR+1}, s{sOR}, 4096
    s_add_u32 s{sPRB}, s{sOR}, 8192
    s_lshr_b32 s{A}, s{sRT}, 1
    s_lshl_b32 s{A}, s{A}, 12
    s_lshl_b32 s{B}, s{sHH}, 11
    s_add_u32 s{A}, s{A}, {FO}
    s_add_u32 s{sFLO}, s{A}, s{B}
    s_xor_b32 s{sFRE}, s{sFLO}, 2048
    v_mov_b32 v{t}, {F_WOR}
    v_mov_b32 v{t+1}, s{sTAG}
    s_cmp_eq_u32 s{sOSC}, 0
    s_cbranch_scc1 L_nofo
    s_mov_b64 exec, 3
    s_waitcnt vmcnt(0)
    buffer_store_dword v{t+1}, v{aFO}, {S4(sWS)}, 0 offen sc1
    s_mov_b64 exec, -1
    L_nofo:""")
    STAMP('fo')
    lds_wait(t,t+1,C,'gt',2,0)
    p(f"""ds_read_b32 v{SW}, v{t} offset:{L_SWS-F_WOR}
    L_wo:""")
    STAMP('wor')
    sROFF=[sOR,sOR+1,sPRB]
    LA=CFG['wla']; WE=CFG['wwe']
    LG=[]
    def af(m): return AF+4*(m%15)
    def aread(m):
        s_,t_=divmod(m,5)
        for rd in range(2):
            p(f"ds_read_b64_tr_b16 {vr(af(m)+2*rd,2)}, v{aAL if s_<10 else aAR} offset:{(s_%10)*5120+rd*2560+8*t_}"); LG.append(m)
    def lgw(m):
        k=[i for i,x in enumerate(LG) if x!='x' and x<=m]
        if not k: return None
        n=len(LG)-1-max(k); del LG[:max(k)+1]; return n
    def bload(s_):
        so=(sOL+(s_%10)//4) if s_<10 else sROFF[(s_%10)//4]
        return f"buffer_load_dwordx4 {vr(BF+4*s_,4)}, v{aLin}, {S4(sWS)}, s{so} offen offset:{(s_%10%4)*1024} sc1"
    for m in range(LA): aread(m)
    p(f"v_mov_b32 v{MXS}, 0\nv_mov_b32 v{t+7}, {F_WO2}")
    p(f"s_cmp_lg_u32 s{sMODE}, 0\ns_cbranch_scc1 L_plsl")
    probe(sOL,C)
    p("L_plr:")
    n0=len(p.L)
    p("L_plsl:"); flag_poll(aFR,t+4,sFLO,C); p("s_branch L_plr")
    COLD.append("\n".join(p.L[n0:])); del p.L[n0:]
    STAMP('pl')
    for s_ in range(10): p(bload(s_))
    p(f"buffer_load_dword v{t+4}, v{aFR}, {S4(sWS)}, s{sFRE} offen sc1")
    for m in range(100):
        s_,t_=divmod(m,5)
        if m==50:
            STAMP('loc')
            flag_poll(aFR,t+4,sFRE,C,first=False)
            STAMP('pr')
            for k in range(10,20): p(bload(k))
            if CFG['gstart']=='PR' or CFG['dstart']=='PR' or CFG['dgate']=='PR':
                p(f"""s_mov_b64 exec, 1
                v_mov_b32 v{t+4}, {F_PR}
                v_mov_b32 v{t+5}, 1
                ds_add_u32 v{t+4}, v{t+5}
                s_mov_b64 exec, -1"""); LG.append('x')
        w=[]
        if t_==0: w.append(f"vmcnt({(10-s_) if s_<10 else (19-s_)}")
        if m%WE==0:
            n=lgw(m+WE-1)
            if n is not None: w.append(f"lgkmcnt({n}")
        if w: p("s_waitcnt "+") ".join(w)+")")
        a_=vr(WACC+4*t_,4)
        p(f"v_mfma_f32_16x16x32_bf16 {a_}, {vr(af(m),4)}, {vr(BF+4*s_,4)}, {a_}")
        if m+LA==50-10: p(f"ds_read_b32 v{t+6}, v{t+7}"); LG.append('x')
        if m+LA==50:
            p(f"v_cmp_gt_u32 vcc, 2, v{t+6}\ns_nop 0\ns_cbranch_vccnz L_wo2w\nL_wo2r:")
            n0=len(p.L)
            p("L_wo2w:"); lds_wait(t+7,t+6,C,'gt',2,0); p("s_branch L_wo2r")
            COLD.append("\n".join(p.L[n0:])); del p.L[n0:]
        if m+LA<100: aread(m+LA)
        if t_==0 and s_<10: p(f"v_max3_u32 v{MXS}, v{BF+4*s_}, v{BF+4*s_+2}, v{MXS}")
    p(f"""v_cmp_eq_u32 vcc, -1, v{MXS}
    v_mov_b32 v{t}, 0x3f803f80
    v_mov_b32 v{t+2}, 0
    v_mov_b32 v{t+3}, 0
    v_mov_b32 v{t+4}, 0
    s_cbranch_vccnz L_woredo
    L_wook:""")
    STAMP('wend')
    COLD.append(f"L_woredo:\ns_sub_u32 s{sRETRY}, s{sRETRY}, 1\ns_cbranch_scc1 L_wook\ns_nop 7")
    q=P();
    COLD.append("\n".join(f"v_lshlrev_b32 v{WACC+2*k}, 16, v{XR+k}\nv_and_b32 v{WACC+2*k+1}, 0xffff0000, v{XR+k}" for k in range(10))+"\ns_branch L_wo")
    for k in range(10): p(f"v_cvt_pk_bf16_f32 v{HP+k}, v{WACC+2*k}, v{WACC+2*k+1}")
    for k in range(10):
        p(f"""v_dot2_f32_bf16 v{t+2}, v{HP+k}, v{t}, v{t+2}
        v_dot2_f32_bf16 v{t+4}, v{HP+k}, v{HP+k}, v{t+4}
        v_dot2_f32_bf16 v{t+3}, v{HP+k}, v{WR_+k}, v{t+3}""")
    p(f"""s_lshl_b32 s{A}, s{sJ}, 4
    s_add_u32 s{A}, s{A}, s{sPSO}""")
    red3(t+2,t+3,t+4,t+5)
    p(f"""v_mov_b32 v{t+5}, s{sTAG}
    s_mov_b64 exec, 0xffff
    s_cmp_lg_u32 s{sMODE}, 0
    s_cbranch_scc1 L_pssc
    buffer_store_dwordx4 {vr(t+2,4)}, v{aPS}, {S4(sWS)}, s{A} offen
    L_psr:
    s_mov_b64 exec, -1""")
    COLD.append(f"L_pssc:\nbuffer_store_dwordx4 {vr(t+2,4)}, v{aPS}, {S4(sWS)}, s{A} offen sc1\ns_branch L_psr")
    STAMP('ps')
    G=t+10
    lp=p.lab("ps"); ok=p.lab("psok"); md=p.lab("psm")
    ld=f"""buffer_load_dwordx4 {vr(G,4)}, v{aPS}, {S4(sWS)}, s{sPSO} offen sc1
    buffer_load_dwordx4 {vr(G+4,4)}, v{aPS}, {S4(sWS)}, s{sPSO} offen offset:16 sc1"""
    p(ld)
    for k in range(10): p(f"v_lshlrev_b32 v{HF_+2*k}, 16, v{HP+k}\nv_and_b32 v{HF_+2*k+1}, 0xffff0000, v{HP+k}")
    if CFG['dbg']:
        p(f"s_add_u32 s{A}, s{sXO}, {HB}")
        for o,n in ((0,4),(4,4),(8,2)): p(f"buffer_store_dwordx{n} {vr(HP+o,n)}, v{aX2}, {S4(sWS)}, s{A} offen offset:{4*o}")
    p(f"""s_lshl_b32 s{A}, s{sRT}, 4
    s_sub_u32 s{A}, 2047, s{A}
    v_and_b32 v{t}, 15, v0
    v_sub_u32 v{t+9}, s{A}, v{t}
    v_lshlrev_b32 v{t+9}, 3, v{t+9}
    s_lshl_b32 s{A}, s{sWAVE}, 6
    s_add_u32 s{A}, s{A}, {L_KEYS}
    v_lshl_add_u32 v{aKY}, v{t}, 2, s{A}
    v_and_b32 v{t}, 48, v0
    v_lshlrev_b32 v{t}, 2, v{t}
    v_add_u32 v{t+8}, {L_KEYS}, v{t}
    s_mov_b32 s{C}, {SPIN}
    s_branch {md}
    {lp}:
    {ld}
    {md}:
    s_waitcnt vmcnt(0)
    v_cmp_ne_u32 vcc, s{sTAG}, v{G+3}
    v_cmp_ne_u32 s[{sT+14}:{sT+15}], s{sTAG}, v{G+7}
    v_pk_add_f32 {vr(t+4,2)}, {vr(G,2)}, {vr(G+4,2)}
    v_add_f32 v{t+6}, v{G+2}, v{G+6}
    s_or_b64 vcc, vcc, s[{sT+14}:{sT+15}]
    s_cbranch_scc0 {ok}""")
    spin(C,lp,ok)
    p(f"""s_branch {lp}
    {ok}:""")
    STAMP('psr')
    if CFG['dgate']=='PS': p(f"""s_mov_b64 exec, 1
    v_mov_b32 v{G}, {F_PS}
    v_mov_b32 v{G+1}, 1
    ds_add_u32 v{G}, v{G+1}
    s_mov_b64 exec, -1""")
    M=t+4
    red3(M,M+1,M+2,M+3)
    p(f"""v_mul_f32 v{M}, {1/640!r}, v{M}
    v_mul_f32 v{M+2}, {1/640!r}, v{M+2}
    v_fma_f32 v{M+2}, -v{M}, v{M}, v{M+2}
    v_max_f32 v{M+2}, 0, v{M+2}""")
    bf16r(M+2,M+2)
    p(f"v_add_f32 v{M+2}, 0x3727c5ac, v{M+2}")
    bf16r(M+2,M+2)
    p(f"v_sqrt_f32 v{M+2}, v{M+2}")
    bf16r(M,M)
    bf16r(M+2,M+2)
    RS=t+2
    p(f"""v_rcp_f32 v{RS}, v{M+2}
    v_fma_f32 v{M+1}, -v{M}, v{SW}, v{M+1}
    v_mul_f32 v{M+1}, v{M+1}, v{RS}
    v_cvt_pk_bf16_f32 v{M+1}, v{M+1}, v{M+1}
    v_mul_f32 v{RS+1}, -v{M}, v{RS}
    v_ashrrev_i32 v{M+2}, 31, v{M+1}
    v_or_b32 v{M+2}, 0x80000000, v{M+2}
    v_xor_b32 v{M+1}, v{M+1}, v{M+2}
    v_and_b32 v{M+1}, 0xffff0000, v{M+1}
    v_or_b32 v{KEY}, v{M+1}, v{t+9}
    ds_write_b32 v{aKY}, v{KEY}""")
    for k in range(10): p(f"v_pk_fma_f32 {vr(WACC+2*k,2)}, {vr(HF_+2*k,2)}, {vr(RS,2)}, {vr(RS,2)} op_sel:[0,0,1] op_sel_hi:[1,0,1]")
    K16=AF
    lp=p.lab("ky"); ok=p.lab("kyok")
    p(f"s_mov_b32 s{C}, {SPIN*4}\n{lp}:")
    for i in range(4): p(f"ds_read_b128 {vr(K16+4*i,4)}, v{t+8} offset:{16*i}")
    p("s_waitcnt lgkmcnt(0)")
    p(f"v_max3_u32 v{t}, v{K16}, v{K16+1}, v{K16+2}")
    for i in range(3,15,2): p(f"v_max3_u32 v{t}, v{K16+i}, v{K16+i+1}, v{t}")
    p(f"""v_max_u32 v{t}, v{t}, v{K16+15}
    v_cmp_eq_u32 vcc, -1, v{t}
    v_mov_b32 v{t}, 0
    s_cbranch_vccz {ok}""")
    spin(C,lp,ok)
    p(f"s_branch {lp}\n{ok}:")
    STAMP('keys')
    m0_=sT+18
    for i in range(18):
        if i<16: p(f"v_cmp_gt_u32 s[{m0_+2*(i%2)}:{m0_+2*(i%2)+1}], v{K16+i}, v{KEY}") if False else None
    MK=[sT+14,sT+16,sT+18]
    for i in range(18):
        if i<16: m=MK[i%3]; p(f"v_cmp_gt_u32 s[{m}:{m+1}], v{K16+i}, v{KEY}")
        elif i==16: p("s_nop 0")
        if i>=2: m=MK[(i-2)%3]; p(f"v_addc_co_u32 v{t}, vcc, 0, v{t}, s[{m}:{m+1}]")
    p(f"""v_mov_b32 v{t+1}, v{t}
    v_cvt_pk_bf16_f32 v{LP}, v{WACC}, v{WACC+1}
    v_cvt_pk_bf16_f32 v{LP+1}, v{WACC+2}, v{WACC+3}
    v_permlane32_swap_b32 v{t}, v{t+1}
    v_cvt_pk_bf16_f32 v{LP+2}, v{WACC+4}, v{WACC+5}
    v_add_u32 v{t}, v{t}, v{t+1}
    v_mov_b32 v{t+1}, v{t}
    v_cvt_pk_bf16_f32 v{LP+3}, v{WACC+6}, v{WACC+7}
    v_cvt_pk_bf16_f32 v{LP+4}, v{WACC+8}, v{WACC+9}
    v_permlane16_swap_b32 v{t}, v{t+1}
    v_cvt_pk_bf16_f32 v{LP+5}, v{WACC+10}, v{WACC+11}
    v_add_u32 v{t}, v{t}, v{t+1}
    v_cmp_gt_u32 s[{sCAND}:{sCAND+1}], 8, v{t}
    v_or_b32 v{KEY}, v{KEY}, v{t}
    v_mov_b32 v{t+1}, {L_CA&~0xffff}
    v_lshl_add_u32 v{t+1}, v{t}, 3, v{t+1}
    v_mov_b32 v{KEY+1}, s{sTAG}
    s_cmp_lg_u32 s{sJ}, 0
    s_cbranch_scc1 L_noca
    s_and_b32 exec_lo, s{sCAND}, 0xffff
    s_mov_b32 exec_hi, 0
    ds_write_b64 v{t+1}, {vr(KEY,2)} offset:{L_CA&0xffff}
    s_mov_b64 exec, 0xff
    s_cmp_lg_u32 s{sWAVE}, 0
    s_cbranch_scc1 L_noca
    v_lshlrev_b32 v{t+2}, 3, v0
    v_add_u32 v{t+3}, {L_CA}, v{t+2}
    s_lshl_b32 s{A}, s{sBLK}, 7
    s_add_u32 s{A}, s{A}, {CA}
    s_mov_b32 s{C}, {SPIN*4}
    L_cal:
    ds_read_b64 v[{t+4}:{t+5}], v{t+3}
    s_waitcnt lgkmcnt(0)
    v_cmp_ne_u32 vcc, s{sTAG}, v{t+5}
    s_nop 0
    s_cbranch_vccz L_caok""")
    spin(C,"L_cal","L_caok")
    p(f"""s_branch L_cal
    L_caok:
    buffer_store_dwordx2 v[{t+4}:{t+5}], v{t+2}, {S4(sWS)}, s{A} offen sc1
    L_noca:
    s_mov_b64 exec, -1""")
    STAMP('ca')
    for k in range(6,10): p(f"v_cvt_pk_bf16_f32 v{LP+k}, v{WACC+2*k}, v{WACC+2*k+1}")
    p(f"""v_lshrrev_b32 v{t+1}, 4, v0
    v_mul_u32_u24 v{t+1}, 40, v{t+1}
    v_mul_u32_u24 v{t}, 2560, v{t}
    v_add_u32 v{aCD}, v{t}, v{t+1}
    s_mul_i32 s{A}, s{sBLK}, 20480
    s_mul_i32 s{B}, s{sJ}, 160
    s_add_u32 s{A}, s{A}, s{B}
    s_add_u32 s{A}, s{A}, {CAND}
    s_and_b64 exec, s[{sCAND}:{sCAND+1}], -1
    s_cbranch_scc0 L_nocd""")
    for base,off in ((LP,0),(HP,1280)):
        if 'nocand' in CFG['xp'] or ('noh' in CFG['xp'] and off): continue
        for o,n in ((0,4),(4,4),(8,2)): p(f"buffer_store_dwordx{n} {vr(base+o,n)}, v{aCD}, {S4(sWS)}, s{A} offen offset:{off+4*o} sc1")
    p("L_nocd:\ns_mov_b64 exec, -1")
    for k in range(10): p(f"v_pk_add_f32 {vr(WACC+2*k,2)}, {vr(WACC+2*k,2)}, {vr(HF_+2*k,2)}")
    for k in range(10): p(f"v_cvt_pk_bf16_f32 v{OP+k}, v{WACC+2*k}, v{WACC+2*k+1}")
    p(f"s_andn2_b64 exec, -1, s[{sCAND}:{sCAND+1}]\ns_cbranch_scc0 L_noo1")
    if 'noout' not in CFG['xp']: out_store()
    p("L_noo1:")
    if 1: p(f"""s_mov_b64 exec, 1
    v_mov_b32 v{t+4}, {F_O1}
    v_mov_b32 v{t+5}, 1
    ds_add_u32 v{t+4}, v{t+5}
    s_mov_b64 exec, -1""")
    else: p("s_mov_b64 exec, -1")
    STAMP('o1')
KEY=228; sCAND=sT+20
def out_store():
    for o,n in ((0,4),(4,4),(8,2)): p(f"buffer_store_dwordx{n} {vr(OP+o,n)}, v{aX2}, {S4(sOUT)}, s{sXO} offen offset:{4*o} {CFG['opol']}")

def moe_weights():
    A=sT+7; B=sT+8; vt=2; D=40; aW_=12
    gu=p.lab("mwgu"); wr=p.lab("mwwr"); en=p.lab("mwend")
    FA=dict(WOD=(F_WOD,2),PR=(F_PR,4),O1=(F_O1,4),DONE=(F_DONE,4),G2=(F_G2,2),PS=(F_PS,4),WO2=(F_WO2,2))
    def gate(k):
        p(f"v_mov_b32 v{vt+4}, {FA[k][0]}")
        lds_wait(vt+4,vt+5,sT+5,'gt',FA[k][1],2)
    pl_=p.lab("mwpl")
    p(f"""s_cmp_ge_u32 s{sSLOT}, 17
    s_cbranch_scc1 {pl_}
    v_bfe_u32 v{vt}, v0, 3, 2
    v_lshrrev_b32 v{vt+1}, 5, v0
    v_lshlrev_b32 v{vt}, 1, v{vt}
    v_add_lshl_u32 v{vt}, v{vt}, v{vt+1}, 2
    v_bfe_u32 v{vt+1}, v0, 1, 2
    v_add_u32 v{vt}, v{vt}, v{vt+1}
    v_and_b32 v{vt+1}, 1, v0
    v_lshlrev_b32 v{vt+1}, 4, v{vt+1}
    s_cmp_lt_u32 s{sSLOT}, 12
    s_cbranch_scc1 {gu}
    v_mul_u32_u24 v{vt}, 1280, v{vt}
    v_add_u32 v{aW_}, v{vt}, v{vt+1}
    s_mul_i32 s{A}, s{sG}, 5
    s_add_u32 s{A}, s{A}, s{sSLOT}
    s_sub_u32 s{A}, s{A}, 12
    s_lshl_b32 s{A}, s{A}, 5
    s_mul_i32 s{B}, s{HW}, {12*32*1280}
    s_add_u32 s{A}, s{A}, s{B}""")
    gate(CFG['dstart'])
    STAMP('mg')
    for s_ in range(12):
        if s_>=CFG['ddep']: p(f"s_waitcnt vmcnt({CFG['ddep']-1})")
        p(f"buffer_load_dwordx4 {vr(D+4*s_,4)}, v{aW_}, {S4(sWD)}, s{A} offen {CFG['mpol']}")
        if s_<11: p(f"s_add_u32 s{A}, s{A}, {32*1280}")
    p(f"""s_mul_i32 s{B}, s{HW}, 12288
    s_branch {wr}
    {pl_}:""")
    if CFG['dgate']!='no' and not CFG['dw3']:
        gate(CFG['dgate'])
        touch(vTD,sWD,CFG['mpair'])
        STAMP('mg')
        if CFG['prof']: p("s_waitcnt vmcnt(0)"); STAMP('mw')
    p(f"""s_branch {en}
    {gu}:
    v_mul_u32_u24 v{vt}, 3072, v{vt}
    v_add_u32 v{aW_}, v{vt}, v{vt+1}
    s_mul_i32 s{A}, s{sG}, 12
    s_add_u32 s{A}, s{A}, s{sSLOT}
    s_lshl_b32 s{A}, s{A}, 5
    s_mul_i32 s{B}, s{HW}, {5*32*3072}
    s_add_u32 s{A}, s{A}, s{B}""")
    gate(CFG['gstart'])
    STAMP('mg')
    for s_ in range(5):
        for m_ in range(2):
            if 2*s_+m_>=CFG['mdep']: p(f"s_waitcnt vmcnt({CFG['mdep']-1})")
            p(f"buffer_load_dwordx4 {vr(D+8*s_+4*m_,4)}, v{aW_}, {S4((sWG,sWU)[m_])}, s{A} offen {CFG['mpol']}")
        if s_<4: p(f"s_add_u32 s{A}, s{A}, {32*3072}")
    p(f"s_mul_i32 s{B}, s{HW}, 12288\n{wr}:\nv_lshl_add_u32 v{vt}, v0, 4, s{B}")
    gate('DONE')
    p("s_waitcnt vmcnt(0)")
    for s_ in range(12): p(f"ds_write_b128 v{vt}, {vr(D+4*s_,4)} offset:{L_MW+s_*1024}")
    p(f"""s_lshl_b32 s{A}, s{HW}, 2
    s_add_u32 s{A}, s{A}, {F_MW}
    v_mov_b32 v{vt}, s{A}
    ds_write_b32 v{vt}, v{vt}
    s_waitcnt lgkmcnt(0)""")
    STAMP('mw')
    p(f"{en}:")
def top8(R,K2,K1,y,tt):
    def clean(chs):
        seq=[]
        for (x,y_,t_) in chs:
            seq.append([f"v_max_u32_dpp v{y_}, v{x}, v{x} row_shl:4 row_mask:0xf bank_mask:0x5",
                        f"v_min_u32_dpp v{y_}, v{x}, v{x} row_shr:4 row_mask:0xf bank_mask:0xa",
                        None,
                        f"v_mov_b32_dpp v{t_}, v{y_} quad_perm:[2,3,0,1] row_mask:0xf bank_mask:0xf",
                        f"v_med3_u32 v{y_}, v{y_}, v{t_}, v{K2}",
                        None,
                        f"v_mov_b32_dpp v{t_}, v{y_} quad_perm:[1,0,3,2] row_mask:0xf bank_mask:0xf",
                        f"v_med3_u32 v{x}, v{y_}, v{t_}, v{K1}"])
        n=len(chs)
        p(f"s_nop {2-n}")
        for i in range(8):
            if seq[0][i] is None: p(f"s_nop {2-n}")
            else:
                for c in seq: p(c[i])
                if i==0 and n==1: p("s_nop 1")
                elif i==0: p("s_nop 0")
    dp="row_mask:0xf bank_mask:0xf"
    p(f"v_max_u32_dpp v{R}, v{R+2}, v{R} row_half_mirror {dp}\nv_max_u32_dpp v{R+4}, v{R+6}, v{R+4} row_half_mirror {dp}")
    clean([(R,y,tt),(R+4,y+1,tt+1)])
    p(f"s_nop 1\nv_max_u32_dpp v{R}, v{R+4}, v{R} row_half_mirror {dp}")
    clean([(R,y,tt)])
    p(f"s_nop 1\nv_max_u32_dpp v{R}, v{R}, v{R} row_mirror {dp}")
    clean([(R,y,tt)])
    for msk,sw in ((0xa,16),(0xc,32)):
        p(f"""s_nop 1
        v_mov_b32_dpp v{R}, v{R} row_half_mirror row_mask:{hex(msk)} bank_mask:0xf
        v_mov_b32 v{tt}, v{R}
        s_nop 1
        v_permlane{sw}_swap_b32 v{R}, v{tt}
        s_nop 0
        v_max_u32 v{R}, v{R}, v{tt}""")
        clean([(R,y,tt)])
def moe():
    t=vT; A=sT+7; B=sT+8; C=sT+17; sTHR=sT+14
    R=12; K2=20; K1=21; aC=22; AW=108
    BL=160
    p(f"""s_cmp_ge_u32 s{sSLOT}, 17
    s_cbranch_scc1 L_plain
    v_lshrrev_b32 v{t}, 3, v0
    v_and_b32 v{t+1}, 7, v0
    v_lshlrev_b32 v{t+1}, 3, v{t+1}
    v_lshl_add_u32 v{aC}, v{t}, 7, v{t+1}
    s_mov_b32 s{B}, {CA}""")
    ld="\n".join(f"buffer_load_dwordx2 {vr(R+2*i,2)}, v{aC}, {S4(sWS)}, s{B} offen offset:{i*1024} sc1" for i in range(4))
    aMF=4; aMW=5
    def getw():
        lds_wait(AW-aMF,t+10 if False else AW,C,'eq',0,0)
        STAMP('mwr')
        for s_ in range(12):
            for rd in range(2): p(f"ds_read_b64_tr_b16 {vr(AW+4*s_+2*rd,2)}, v{AW-aMW} offset:{L_MW+s_*1024+rd*512}")
    p(f"""s_cmp_lg_u32 s{sWAVE}, 0
    s_cbranch_scc1 L_nocal
    {ld}
    L_nocal:
    v_bfe_i32 v{K2}, v0, 1, 1
    v_bfe_i32 v{K1}, v0, 0, 1
    v_not_b32 v{K2}, v{K2}
    v_not_b32 v{K1}, v{K1}
    s_lshl_b32 s{A}, s{sWAVE}, 2
    s_add_u32 s{A}, s{A}, {F_MW}
    v_mov_b32 v{AW-aMF}, s{A}
    s_mul_i32 s{A}, s{sWAVE}, 12288
    v_lshl_add_u32 v{AW-aMW}, v0, 3, s{A}
    v_and_b32 v{t}, 7, v0
    v_lshlrev_b32 v{t}, 2, v{t}
    v_add_u32 v{AW-6}, {L_TOP}, v{t}
    s_cmp_ge_u32 s{sSLOT}, 12
    s_cbranch_scc1 L_now""")
    getw()
    lp=p.lab("ca"); ok=p.lab("caok"); md=p.lab("cam")
    p(f"""L_now:
    s_cmp_lg_u32 s{sWAVE}, 0
    s_cbranch_scc1 L_topw
    s_mov_b32 s{C}, {SPIN}
    s_branch {md}
    {lp}:
    {ld}
    {md}:
    s_waitcnt vmcnt(0)
    v_xor_b32 v{t}, v{R+1}, v{R+3}
    v_xor_b32 v{t+1}, v{R+5}, v{R+7}
    v_xor_b32 v{R+1}, s{sTAG}, v{R+1}
    v_xor_b32 v{R+5}, s{sTAG}, v{R+5}
    v_or3_b32 v{t}, v{t}, v{t+1}, v{R+1}
    v_or_b32 v{t}, v{t}, v{R+5}
    v_cmp_ne_u32 vcc, 0, v{t}
    s_nop 0
    s_cbranch_vccz {ok}""")
    spin(C,lp,ok,CFG['casl'])
    p(f"s_branch {lp}\n{ok}:")
    STAMP('car')
    top8(R,K2,K1,t,t+2)
    p(f"ds_write_b32 v{AW-6}, v{R}\ns_branch L_top\nL_topw:\ns_waitcnt vmcnt(0)")
    lds_wait(AW-6,R,C,'eq',-1,0)
    p("L_top:")
    STAMP('top')
    TOK=t+1; aR=t+2
    p(f"""v_bfe_u32 v{TOK}, v{R}, 3, 11
    v_sub_u32 v{TOK}, 2047, v{TOK}
    v_lshrrev_b32 v{t}, 6, v{TOK}
    v_and_b32 v{aR}, 7, v{R}
    v_lshl_add_u32 v{aR}, v{t}, 3, v{aR}
    v_mul_u32_u24 v{aR}, 2560, v{aR}
    v_lshrrev_b32 v{t}, 4, v0
    v_readlane_b32 s{sTHR}, v{R}, 7
    s_cmp_ge_u32 s{sSLOT}, 12
    s_cbranch_scc1 L_down""")
    def deferred(tag):
        p(f"""v_cmp_gt_u32 vcc, s{sTHR}, v{KEY}
        s_nop 0
        s_and_b64 exec, vcc, s[{sCAND}:{sCAND+1}]
        s_cbranch_scc0 L_nd{tag}""")
        out_store()
        p(f"L_nd{tag}:\ns_mov_b64 exec, -1")
    p(f"""v_lshl_add_u32 v{aR}, v{t}, 4, v{aR}
    s_mul_i32 s{A}, s{sWAVE}, 320
    s_add_u32 s{A}, s{A}, {CAND}""")
    ld="\n".join(f"buffer_load_dwordx4 {vr(BL+4*i,4)}, v{aR}, {S4(sWS)}, s{A} offen offset:{i*64} sc1" for i in range(5))
    lp=p.lab("gl"); ok=p.lab("glok"); md=p.lab("glm"); nt=p.lab("noth")
    p(ld)
    p(f"""s_or_b32 s{B}, s{sSLOT}, s{sWAVE}
    s_cbranch_scc1 {nt}
    v_mov_b32 v{t+4}, s{sTHR}
    v_mov_b32 v{t+5}, s{sTAG}
    s_lshl_b32 s{B}, s{sG}, 7
    s_add_u32 s{B}, s{B}, {TH}
    v_mov_b32 v{t+6}, 0
    s_mov_b64 exec, 1
    buffer_store_dwordx2 v[{t+4}:{t+5}], v{t+6}, {S4(sWS)}, s{B} offen sc1
    s_mov_b64 exec, -1
    {nt}:
    s_lshl_b32 s{B}, s{sWAVE}, 11
    s_add_u32 s{B}, s{B}, {L_RED}
    v_lshl_add_u32 v{t+3}, v0, 4, s{B}
    s_mov_b32 s{C}, {SPIN}
    s_branch {md}
    {lp}:
    {ld}
    {md}:
    s_waitcnt vmcnt(0) lgkmcnt(0)
    v_max3_u32 v{t+4}, v{BL}, v{BL+2}, v{BL+4}
    v_max3_u32 v{t+5}, v{BL+6}, v{BL+8}, v{BL+10}
    v_max3_u32 v{t+4}, v{BL+12}, v{BL+14}, v{t+4}
    v_max3_u32 v{t+5}, v{BL+16}, v{BL+18}, v{t+5}
    v_max_u32 v{t+4}, v{t+4}, v{t+5}
    v_cmp_eq_u32 vcc, -1, v{t+4}
    s_nop 0
    {'s_branch' if 'nocand' in CFG['xp'] else 's_cbranch_vccz'} {ok}""")
    spin(C,lp,ok)
    p(f"s_branch {lp}\n{ok}:")
    STAMP('lr')
    G=20; U=24; X=28
    for s_ in range(5):
        for m_,a_ in ((0,G),(1,U)):
            p(f"v_mfma_f32_16x16x32_bf16 {vr(a_,4)}, {vr(AW+8*s_+4*m_,4)}, {vr(BL+4*s_,4)}, {vr(a_,4) if s_ else 0}")
    w0=p.lab("guw0")
    p(f"""s_cmp_eq_u32 s{sWAVE}, 0
    s_cbranch_scc1 {w0}
    s_nop 5
    ds_write_b128 v{t+3}, {vr(G,4)}
    ds_write_b128 v{t+3}, {vr(U,4)} offset:1024
    s_waitcnt lgkmcnt(0)
    s_barrier""")
    deferred('g1')
    END()
    p(f"""{w0}:
    s_mul_i32 s{A}, s{sG}, 12
    s_add_u32 s{A}, s{A}, s{sSLOT}
    s_lshl_b32 s{A}, s{A}, 8
    s_add_u32 s{A}, s{A}, {ACT}
    v_and_b32 v{t+4}, 7, v0
    v_lshlrev_b32 v{t+4}, 4, v{t+4}
    v_lshrrev_b32 v{t+5}, 5, v0
    v_lshl_add_u32 v{t+4}, v{t+5}, 7, v{t+4}
    v_bfe_u32 v{t+5}, v0, 4, 1
    v_lshl_add_u32 v{t+4}, v{t+5}, 3, v{t+4}
    s_barrier""")
    for w_ in range(1,4):
        for m_ in range(2): p(f"ds_read_b128 {vr(X+8*(w_-1)+4*m_,4)}, v{t+3} offset:{w_*2048+m_*1024}")
    p(f"s_mov_b32 s{B}, {hex(f2u(-math.log2(math.e)))}")
    for w_ in range(3):
        p(f"s_waitcnt lgkmcnt({4-2*w_})")
        for k in range(4): p(f"v_pk_add_f32 {vr(G+2*k,2)}, {vr(G+2*k,2)}, {vr(X+8*w_+2*k,2)}")
    p(f"""v_cvt_pk_bf16_f32 v{X}, v{G}, v{G+1}
    v_cvt_pk_bf16_f32 v{X+1}, v{G+2}, v{G+3}
    v_cvt_pk_bf16_f32 v{X+2}, v{U}, v{U+1}
    v_cvt_pk_bf16_f32 v{X+3}, v{U+2}, v{U+3}""")
    for k in range(4): p(f"v_lshlrev_b32 v{G+2*k}, 16, v{X+k}\nv_and_b32 v{G+2*k+1}, 0xffff0000, v{X+k}")
    for k in range(4): p(f"v_mul_f32 v{X+k}, s{B}, v{G+k}")
    for k in range(4): p(f"v_exp_f32 v{X+k}, v{X+k}")
    for k in range(4): p(f"v_add_f32 v{X+k}, 1.0, v{X+k}")
    for k in range(4): p(f"v_rcp_f32 v{X+k}, v{X+k}")
    for k in range(4): p(f"v_mul_f32 v{G+k}, v{G+k}, v{X+k}")
    p(f"v_cvt_pk_bf16_f32 v{X}, v{G}, v{G+1}\nv_cvt_pk_bf16_f32 v{X+1}, v{G+2}, v{G+3}")
    for k in range(2): p(f"v_lshlrev_b32 v{G+2*k}, 16, v{X+k}\nv_and_b32 v{G+2*k+1}, 0xffff0000, v{X+k}")
    p(f"""v_pk_mul_f32 {vr(G,2)}, {vr(G,2)}, {vr(U,2)}
    v_pk_mul_f32 {vr(G+2,2)}, {vr(G+2,2)}, {vr(U+2,2)}
    v_cvt_pk_bf16_f32 v{X}, v{G}, v{G+1}
    v_cvt_pk_bf16_f32 v{X+1}, v{G+2}, v{G+3}
    s_mov_b32 exec_lo, 0x00ff00ff
    s_mov_b32 exec_hi, 0x00ff00ff
    buffer_store_dwordx2 {vr(X,2)}, v{t+4}, {S4(sWS)}, s{A} offen sc1
    s_mov_b64 exec, -1""")
    STAMP('act')
    deferred('g0')
    END()
    HL=20; Y=24; X=28; SG=t+8; aO2=t+9
    p(f"""L_down:
    v_lshl_add_u32 v{aR}, v{t}, 3, v{aR}
    v_mul_u32_u24 v{aO2}, 1280, v{TOK}
    v_lshl_add_u32 v{aO2}, v{t}, 3, v{aO2}
    v_and_b32 v{t+4}, 7, v0
    v_lshlrev_b32 v{t+4}, 4, v{t+4}
    v_lshl_add_u32 v{t+4}, v{t}, 7, v{t+4}
    s_mul_i32 s{sT+1}, s{sG}, 5
    s_add_u32 s{sT+1}, s{sT+1}, s{sSLOT}
    s_sub_u32 s{sT+1}, s{sT+1}, 12
    s_lshl_b32 s{sT+1}, s{sT+1}, 5
    s_add_u32 s{sT+2}, s{sT+1}, {CAND}
    s_mul_i32 s{A}, s{sWAVE}, 6144
    s_add_u32 s{A}, s{A}, {ACT}
    s_add_u32 s{B}, s{A}, 4096""")
    ldh=f"buffer_load_dwordx2 {vr(HL,2)}, v{aR}, {S4(sWS)}, s{sT+2} offen sc1\nbuffer_load_dwordx2 {vr(HL+2,2)}, v{aR}, {S4(sWS)}, s{sT+2} offen offset:1280 sc1"
    p(ldh)
    deferred('d')
    p(f"""v_ashrrev_i32 v{SG}, 31, v{R}
    v_not_b32 v{SG}, v{SG}
    v_or_b32 v{SG}, 0x80000000, v{SG}
    v_xor_b32 v{SG}, v{SG}, v{R}
    v_and_b32 v{SG}, 0xffff0000, v{SG}
    v_mul_f32 v{SG}, {hex(f2u(-math.log2(math.e)))}, v{SG}
    v_exp_f32 v{SG}, v{SG}
    s_lshl_b32 s{C}, s{sWAVE}, 10
    v_add_f32 v{SG}, 1.0, v{SG}
    v_rcp_f32 v{SG}, v{SG}
    s_add_u32 s{C}, s{C}, {L_RED}
    v_lshl_add_u32 v{t+3}, v0, 4, s{C}""")
    bf16r(SG,SG)
    lp=p.lab("hl"); ok=p.lab("hlok"); md=p.lab("hlm")
    p(f"""s_mov_b32 s{C}, {SPIN}
    s_branch {md}
    {lp}:
    {ldh}
    {md}:
    s_waitcnt vmcnt(0)
    v_max_u32 v{t+5}, v{HL}, v{HL+2}
    v_cmp_eq_u32 vcc, -1, v{t+5}
    s_nop 0
    {'s_branch' if CFG['xp'] else 's_cbranch_vccz'} {ok}""")
    spin(C,lp,ok)
    p(f"s_branch {lp}\n{ok}:")
    getw()
    ld="\n".join([f"buffer_load_dwordx4 {vr(BL+4*i,4)}, v{t+4}, {S4(sWS)}, s{A if i<8 else B} offen offset:{(i%8)*512} sc1" for i in range(12)])
    lp=p.lab("al"); ok=p.lab("alok")
    p(f"""s_mov_b32 s{C}, {SPIN}
    {lp}:
    {ld}
    s_waitcnt vmcnt(8)
    v_max3_u32 v{t+5}, v{BL}, v{BL+2}, v{BL+4}
    v_max3_u32 v{t+6}, v{BL+6}, v{BL+8}, v{BL+10}
    v_max3_u32 v{t+5}, v{BL+12}, v{BL+14}, v{t+5}""")
    for i in range(4,12):
        if i%4==0: p(f"s_waitcnt vmcnt({8-i})")
        p(f"v_max3_u32 v{t+5+(i&1)}, v{BL+4*i}, v{BL+4*i+2}, v{t+5+(i&1)}")
    p(f"""v_max_u32 v{t+5}, v{t+5}, v{t+6}
    v_cmp_eq_u32 vcc, -1, v{t+5}
    s_waitcnt lgkmcnt(0)
    s_cbranch_vccz {ok}""")
    spin(C,lp,ok,CFG['acsl'])
    p(f"s_branch {lp}\n{ok}:")
    STAMP('ar')
    for s_ in range(12): p(f"v_mfma_f32_16x16x32_bf16 {vr(Y,4)}, {vr(AW+4*s_,4)}, {vr(BL+4*s_,4)}, {vr(Y,4) if s_ else 0}")
    w0=p.lab("dnw0")
    p(f"""s_cmp_eq_u32 s{sWAVE}, 0
    s_cbranch_scc1 {w0}
    s_nop 5
    ds_write_b128 v{t+3}, {vr(Y,4)}
    s_waitcnt lgkmcnt(0)
    s_barrier""")
    END()
    p(f"""{w0}:
    v_lshlrev_b32 v{X+12}, 16, v{HL}
    v_and_b32 v{X+13}, 0xffff0000, v{HL}
    v_lshlrev_b32 v{X+14}, 16, v{HL+1}
    v_and_b32 v{X+15}, 0xffff0000, v{HL+1}
    v_lshlrev_b32 v{X+16}, 16, v{HL+2}
    v_and_b32 v{X+17}, 0xffff0000, v{HL+2}
    v_lshlrev_b32 v{X+18}, 16, v{HL+3}
    v_and_b32 v{X+19}, 0xffff0000, v{HL+3}
    s_barrier""")
    for w_ in range(1,4): p(f"ds_read_b128 {vr(X+4*(w_-1),4)}, v{t+3} offset:{w_*1024}")
    for w_ in range(3):
        p(f"s_waitcnt lgkmcnt({2-w_})")
        for k in range(2): p(f"v_pk_add_f32 {vr(Y+2*k,2)}, {vr(Y+2*k,2)}, {vr(X+4*w_+2*k,2)}")
    def rnd():
        p(f"v_cvt_pk_bf16_f32 v{X}, v{Y}, v{Y+1}\nv_cvt_pk_bf16_f32 v{X+1}, v{Y+2}, v{Y+3}")
    def unp():
        for k in range(2): p(f"v_lshlrev_b32 v{Y+2*k}, 16, v{X+k}\nv_and_b32 v{Y+2*k+1}, 0xffff0000, v{X+k}")
    rnd(); unp()
    for k in range(4): p(f"v_mul_f32 v{Y+k}, v{SG}, v{Y+k}")
    rnd(); unp()
    for k in range(2): p(f"v_pk_add_f32 {vr(Y+2*k,2)}, {vr(Y+2*k,2)}, {vr(X+12+2*k,2)}")
    rnd(); unp()
    for k in range(2): p(f"v_pk_add_f32 {vr(Y+2*k,2)}, {vr(Y+2*k,2)}, {vr(X+16+2*k,2)}")
    rnd()
    p(f"""s_mov_b32 exec_lo, 0x00ff00ff
    s_mov_b32 exec_hi, 0x00ff00ff
    buffer_store_dwordx2 {vr(X,2)}, v{aO2}, {S4(sOUT)}, s{sT+1} offen sc1""")
    STAMP('fin')
    END()
    lp=p.lab("th"); ok=p.lab("thok")
    p(f"""L_plain:
    s_lshl_b32 s{B}, s{sG}, 7
    s_add_u32 s{B}, s{B}, {TH}
    v_mov_b32 v{t}, 0
    s_mov_b32 s{C}, {SPIN}
    {lp}:
    s_sleep 16
    buffer_load_dwordx2 v[{t+2}:{t+3}], v{t}, {S4(sWS)}, s{B} offen sc1
    s_waitcnt vmcnt(0)
    v_cmp_ne_u32 vcc, s{sTAG}, v{t+3}
    s_nop 0
    s_cbranch_vccz {ok}""")
    spin(C,lp,ok)
    p(f"""s_branch {lp}
    {ok}:
    v_readfirstlane_b32 s{sTHR}, v{t+2}
    s_nop 1""")
    deferred('p')
    STAMP('fin')

def build():
    prologue()
    steps=loader()
    helperA(steps)
    p("s_branch L_mw")
    helperB(steps)
    p("L_mw:")
    moe_weights()
    END()
    p("L_comp:")
    if CFG['prio']: p(f"s_setprio {CFG['prio']}")
    p("s_waitcnt lgkmcnt(0)")
    STAMP('start')
    prologue2()
    if CFG['cpf']: code_pf()
    srd(((sX,2621440),))
    gemm_setup()
    clears(0)
    if CFG['clr']==0: clears(1)
    p("s_waitcnt lgkmcnt(0)")
    mktag()
    p(f"""    s_cmp_eq_u32 s{sLC}, 15
    s_cbranch_scc1 L_gS
    s_cmp_eq_u32 s{sTY}, 2
    s_cbranch_scc1 L_gV""")
    gemm_loop('T'); gemm_epi('T'); p("s_branch L_att")
    p("L_gS:"); idle_gemm(); p("s_branch L_att")
    p("L_gV:"); gemm_loop('V'); gemm_epi('V')
    p("L_att:")
    p(f"v_mov_b32 v{aCLS}, 0x207")
    att_pro()
    for w in range(4): att_variant(w)
    att_fin()
    wo_main()
    if CFG['stop']<=3:
        p(f"s_and_b64 exec, s[{sCAND}:{sCAND+1}], -1\ns_cbranch_scc0 L_noo2"); out_store(); p("L_noo2:")
    else: moe()
    END()
    att_cold()
    for c in COLD: p(c)
    p("L_exit:\ns_endpgm")
build()
errs=check(p.L)
hdr=f"""; generated by work/k/gen.py (own generator script)
; @launch grid=(256,1,1) block=(512,1,1) lds=163840
.amdgcn_target "amdgcn-amd-amdhsa--gfx950"
.text
.globl {NAME}_kernel
.p2align 8
.type {NAME}_kernel,@function
{NAME}_kernel:
"""
ftr=f""".section .rodata,"a"
.p2align 6
.amdhsa_kernel {NAME}_kernel
  .amdhsa_next_free_vgpr 256
  .amdhsa_next_free_sgpr 102
  .amdhsa_accum_offset 256
  .amdhsa_group_segment_fixed_size 0
  .amdhsa_kernarg_size 88
  .amdhsa_user_sgpr_count 2
  .amdhsa_user_sgpr_kernarg_segment_ptr 1
  .amdhsa_system_sgpr_workgroup_id_x 1
.end_amdhsa_kernel
"""
open(sys.argv[1],"w").write(hdr+p.text()+ftr)

import subprocess
r=subprocess.run(["clang","-x","assembler","-target","amdgcn-amd-amdhsa","-mcpu=gfx950",sys.argv[1],"-o",sys.argv[1]+".co"],capture_output=True,text=True)
if r.returncode: print(r.stderr[:3000]); sys.exit(1)
r=subprocess.run(["python3","cdna_unwritten_srd_check.py",sys.argv[1]+".co"],capture_output=True,text=True)
if r.returncode: print("SRDCHECK:",r.stdout[-3000:],r.stderr[-1000:])
r=subprocess.run("llvm-size -A "+sys.argv[1]+".co | grep text",shell=True,capture_output=True,text=True); print(r.stdout.strip())
if errs: sys.exit(1)
```

```python
import sys, math
from asmlib import *
NAME="sequential_preLN__sliding_block__moe_arch_mod__prompt"
CFG=dict(amp=None, wose=2, late1=1, sdef=(1,1,1,1), pt2=7, qpair2=0, nacc=8, sfirst=1, prio=0, smode='dot', sfill=(), acsl=0, casl=0, xp=(), dw3=0, wla=7, wwe=2, dgate='O1', dstart='O1', gstart='WOD', mdep=1, ddep=12, qpair=0, mpair=0, wpair=0, xnt=0, wnt=0, tpol2='', wtw='no', mtw='w3', wothr1=4, mb=(6,6), mg=('WOD','PR','PR','O1'), mpf=0, mgate='b3', hsplit=0, cpf=1, npf=(0,)*10, wogs=5, clr=0, wot=(), wtpol='', seqs=None, xpol='nt', wpol='', tpol='', wopol='', mpol='', cal=None, opol='', st=['start','b0|hb0','gend|hb9','E1|hE1','st|halo|clr','fl|g2|wo','fseen|h2','kv','aend','ost'], pt=7, wothr=16, wogate=1, h2sl=1, noh2=0, nowo=0, wos=(0,0,0), sched=(1,2,1,1,1,1,1,0,0,0), dbg=0, stop=99, prof=0, rot=('0358','36947580','05162738'), force_slow=0, noclr=0, pre=2, ldst=0, nomfma=0, nohello=0)
for a in sys.argv[2:]:
    k,v=a.split("="); CFG[k]=eval(v)
QB,KB,VB,KH,VH,OB=[i*0x280000 for i in range(6)]
CAND=0xF00000
PS=0xFA0000
CA=0xFE0000
ACT=0xFE1000
HB=0x1000000
PROF=0x1300000
H1=0x1280000; H2=0x1281000; EPO=0x1282000; TH=0x1283000
STP=0x1680000; STX=0x1780000
FO=0x1700000; OB2=0x1400000; FL=0x12A0000; FH=0x1740000
L_STG=0; L_KV=10240; L_WO=55296; L_MISC=157696; L_MW=0
L_CS=L_MISC
L_SA=L_MISC+512
L_SR=L_SA+1024
L_MODE=L_SR+512
L_FLG=L_MODE+64
F_G1,F_G2,F_H2,F_STG,F_SCP,F_DONE,F_WOR,F_MW=[L_FLG+4*i for i in (0,1,2,4,8,9,10,12)]
L_SWS=L_FLG+80; F_O1=L_FLG+44; F_WOD=L_FLG+64; F_PR=L_FLG+68; F_WO2=L_FLG+72; F_PS=L_FLG+76
L_KEYS=L_FLG+128
L_CA=L_KEYS+256; L_TOP=L_CA+64
L_RED=L_WO
sX,sW,sWO,sWG,sWU,sWD,sOUT,sWS,sDBG,sWR=[4+4*i for i in range(10)]
sWAVE,sG,sSLOT,sRQ,sHH,sRB,sCT,sMODE,sEP,sTAG=range(44,54)
sT=54
sLO=76
sPROF=80
p=P()
COLD=[]
CALI=lambda: 's_memtime' if CFG['cal'][1]>20000 else 's_memrealtime'
def STAMP(name,w=0):
    if CFG['amp']:
        a=CFG['amp']
        if name=='entry': p(f"s_memrealtime s[{sPROF+8}:{sPROF+9}]")
        for k in (0,1):
            if name==a[k]:
                p(f"{'s_memrealtime' if a[2]=='r' else 's_memtime'} s[{sPROF+2*k}:{sPROF+2*k+1}]")
                if w: p("s_waitcnt lgkmcnt(0)")
    if CFG['cal'] and name in CFG['cal'][0].split('|'):
        p(f"{CALI()} s[{sPROF}:{sPROF+1}]")
        if w: p("s_waitcnt lgkmcnt(0)")
    i=[k for k,n in enumerate(CFG['st']) if name in n.split('|')]
    if CFG['prof'] and i:
        i=i[0]
        p(f"{'s_memrealtime' if CFG['prof']==2 else 's_memtime'} s[{sPROF+2*i}:{sPROF+2*i+1}]")
        if w: p("s_waitcnt lgkmcnt(0)")
def PROFDUMP():
    if not CFG['prof']: return
    p("s_waitcnt vmcnt(0) lgkmcnt(0)")
    p("s_mov_b64 exec, -1")
    for i in range(10): p(f"v_mov_b32 v{2+i}, s{sPROF+2*i}")
    p(f"""s_lshl_b32 s{sT}, s2, 3
    s_add_u32 s{sT}, s{sT}, s{sWAVE}
    s_lshl_b32 s{sT}, s{sT}, 6
    s_add_u32 s{sT}, s{sT}, {PROF}
    v_mov_b32 v1, 0
    s_mov_b64 exec, 1
    buffer_store_dwordx4 v[2:5], v1, s[{sWS}:{sWS+3}], s{sT} offen
    buffer_store_dwordx4 v[6:9], v1, s[{sWS}:{sWS+3}], s{sT} offen offset:16
    buffer_store_dwordx2 v[10:11], v1, s[{sWS}:{sWS+3}], s{sT} offen offset:32""")
def END():
    PROFDUMP()
    if CFG['amp']:
        a=CFG['amp']
        lp=p.lab("amp"); ok=p.lab("ampok")
        p(f"""s_waitcnt vmcnt(0) lgkmcnt(0)
        s_cmp_eq_u32 s{sPROF+2}, 0
        s_cbranch_scc1 {ok}
        s_cmp_lg_u32 s{sWAVE}, {a[5] if len(a)>5 else 0}
        s_cbranch_scc1 {ok}""")
        if a[4]>=0: p(f"s_cmp_lg_u32 s2, {a[4]}\ns_cbranch_scc1 {ok}")
        p(f"""s_sub_u32 s{sPROF+6}, s{sPROF+2}, s{sPROF}
        s_mul_i32 s{sPROF+6}, s{sPROF+6}, {a[3]}
        s_lshr_b32 s{sPROF+6}, s{sPROF+6}, 4
        s_min_u32 s{sPROF+6}, s{sPROF+6}, 100000
        s_add_u32 s{sPROF+6}, s{sPROF+6}, 3000
        s_mov_b32 s{sPROF+4}, 100000
        {lp}:
        s_sleep 2
        s_memrealtime s[{sPROF+2}:{sPROF+3}]
        s_sub_u32 s{sPROF+4}, s{sPROF+4}, 1
        s_cbranch_scc1 {ok}
        s_waitcnt lgkmcnt(0)
        s_sub_u32 s{sPROF+2}, s{sPROF+2}, s{sPROF+8}
        s_cmp_lt_u32 s{sPROF+2}, s{sPROF+6}
        s_cbranch_scc1 {lp}
        {ok}:""")
    if CFG['cal']:
        lp=p.lab("cal"); ok=p.lab("calok")
        p(f"""s_waitcnt vmcnt(0) lgkmcnt(0)
        s_cmp_eq_u32 s{sPROF}, 0
        s_cbranch_scc1 {ok}
        s_cmp_ge_u32 s{sWAVE}, 4
        s_cbranch_scc1 {ok}
        s_mov_b32 s{sPROF+4}, 100000
        {lp}:
        s_sleep 2
        {CALI()} s[{sPROF+2}:{sPROF+3}]
        s_sub_u32 s{sPROF+4}, s{sPROF+4}, 1
        s_cbranch_scc1 {ok}
        s_waitcnt lgkmcnt(0)
        s_sub_u32 s{sPROF+2}, s{sPROF+2}, s{sPROF}
        s_cmp_lt_u32 s{sPROF+2}, {CFG['cal'][1]}
        s_cbranch_scc1 {lp}
        {ok}:""")
    p("s_endpgm")
S4=lambda r:f"s[{r}:{r+3}]"
SPIN=1<<18

def srd(lst):
    for r,n in lst: p(f"s_mov_b32 s{r+2}, {n}\ns_mov_b32 s{r+3}, 0x20000")
def prologue():
    STAMP('entry')
    p(f"""s_cmp_ge_u32 s2, 256
    s_cbranch_scc1 L_exit
    s_load_dwordx2 s[{sX}:{sX+1}], s[0:1], 0
    s_load_dwordx2 s[{sW}:{sW+1}], s[0:1], 8
    s_load_dwordx2 s[{sWS}:{sWS+1}], s[0:1], 80
    v_lshrrev_b32 v1, 6, v0
    v_and_b32 v0, 63, v0
    v_readfirstlane_b32 s{sWAVE}, v1
    s_and_b32 s{sG}, s2, 7
    s_lshr_b32 s{sSLOT}, s2, 3
    s_lshr_b32 s{sRQ}, s{sG}, 1
    s_and_b32 s{sHH}, s{sG}, 1
    s_and_b32 s{sRB}, s{sSLOT}, 3
    s_lshr_b32 s{sCT}, s{sSLOT}, 2""")
    if CFG['cal']: p(f"s_mov_b32 s{sPROF}, 0")
    if CFG['amp']: p(f"s_mov_b32 s{sPROF+2}, 0")
    if CFG['prof']:
        for i in range(1,10): p(f"s_mov_b32 s{sPROF+2*i}, 0")
    p(f"""s_cmp_lt_u32 s{sWAVE}, 4
    s_cbranch_scc1 L_comp""")
def prologue2():
    p(f"""s_mov_b32 s{sTAG}, {EPO}
    s_load_dword s{sEP}, s[{sWS}:{sWS+1}], s{sTAG}
    s_load_dwordx2 s[{sWO}:{sWO+1}], s[0:1], 16
    s_load_dwordx2 s[{sWR}:{sWR+1}], s[0:1], 32
    s_load_dwordx2 s[{sWG}:{sWG+1}], s[0:1], 40
    s_load_dwordx2 s[{sWU}:{sWU+1}], s[0:1], 48
    s_load_dwordx2 s[{sWD}:{sWD+1}], s[0:1], 56
    s_load_dwordx2 s[{sOUT}:{sOUT+1}], s[0:1], 64""")
    srd(((sWS,268435456),(sWO,819200),(sWR,1280),(sWG,1966080),(sWU,1966080),(sWD,1966080),(sOUT,2621440)))
    p(f"""s_mov_b32 s{sLO}, -1
    s_mov_b32 s{sLO+1}, 0
    s_mov_b32 s{sLO+2}, 0xfffff
    s_mov_b32 s{sLO+3}, 0xfffff""")
def mktag():
    p(f"""s_mul_i32 s{sTAG}, s{sEP}, 0x9e3779b1
    s_add_u32 s{sTAG}, s{sTAG}, 0x7f4a7c15
    s_and_b32 s{sTAG}, s{sTAG}, -16""")
def colbyte(dst, lc):
    t=sT+18
    p(f"""s_mul_i32 s{t}, s{lc}, 52
    s_lshr_b32 s{t}, s{t}, 8
    s_mul_i32 s{t+1}, s{t}, 5
    s_sub_u32 s{t+1}, s{lc}, s{t+1}
    s_mul_i32 s{t}, s{t}, 1280
    s_lshl_b32 s{t+1}, s{t+1}, 7
    s_mul_i32 s{dst}, s{sHH}, 640
    s_add_u32 s{dst}, s{dst}, s{t}
    s_add_u32 s{dst}, s{dst}, s{t+1}""")

def loader():
    CA_=sT+1; CB_=sT+2; CH=sT+3; XO=sT+4; WO_=sT+5; LB=sT+6; A=sT+7; B=sT+8; OFF=sT+9; SEQ=sT+10
    vX=2; vW=6; vt=10
    p(f"""s_sub_u32 s{HW}, s{sWAVE}, 4
    s_lshl_b32 s{A}, s{sCT}, 1
    s_add_u32 s{B}, s{A}, 1
    s_min_u32 s{B}, s{B}, 14""")
    colbyte(CA_,A); colbyte(CB_,B)
    p(f"""v_lshrrev_b32 v{vt}, 3, v0
    v_mul_u32_u24 v{vX}, 1280, v{vt}
    v_lshrrev_b32 v{vt+1}, 4, v0
    v_and_b32 v{vt+2}, 7, v0
    v_xor_b32 v{vt+2}, v{vt+2}, v{vt+1}
    v_lshl_add_u32 v{vX}, v{vt+2}, 4, v{vX}
    v_xor_b32 v{vX+1}, 64, v{vX}
    v_add_u32 v{vX+1}, {10240-1024}, v{vX+1}
    v_add_u32 v{vX+2}, {2*(10240-1024)}, v{vX}
    v_add_u32 v{vX+3}, {2*(10240-1024)}, v{vX+1}
    v_lshlrev_b32 v{vt+2}, 2, v{vt+1}
    v_and_b32 v{vt+3}, 15, v0
    v_xor_b32 v{vt+2}, v{vt+2}, v{vt+3}
    v_cmp_lt_u32 vcc, 7, v{vt+2}
    v_mov_b32 v{vt+3}, s{CA_}
    v_mov_b32 v{vt+4}, s{CB_}
    v_cndmask_b32 v{vt+3}, v{vt+3}, v{vt+4}, vcc
    v_and_b32 v{vt+2}, 7, v{vt+2}
    v_lshl_add_u32 v{vt+3}, v{vt+2}, 4, v{vt+3}
    v_mul_u32_u24 v{vW}, 3840, v{vt+1}
    v_add_u32 v{vW}, v{vW}, v{vt+3}""")
    for i in range(1,4): p(f"v_add_u32 v{vW+i}, {i*(4*3840-1024)}, v{vW}")
    ta,tc,tg=CFG['rot']
    pk=lambda t: sum(int(v)<<(4*i) for i,v in enumerate(t))
    p(f"""s_lshl_b32 s{A}, s{sRB}, 2
    s_lshr_b32 s{CH}, {pk(ta)}, s{A}
    s_and_b32 s{CH}, s{CH}, 15
    s_lshl_b32 s{A}, s{sCT}, 2
    s_lshr_b32 s{A}, {hex(pk(tc))}, s{A}
    s_and_b32 s{A}, s{A}, 15
    s_add_u32 s{CH}, s{CH}, s{A}
    s_lshl_b32 s{A}, s{sG}, 2
    s_lshr_b32 s{A}, {hex(pk(tg))}, s{A}
    s_and_b32 s{OFF}, s{A}, 15""")
    seqs=CFG['seqs']
    if seqs:
        n=len(seqs)
        p(f"""s_mul_i32 s{A}, s{CH}, {-(-2048//n)}
        s_lshr_b32 s{A}, s{A}, 11
        s_mul_i32 s{A}, s{A}, {n}
        s_sub_u32 s{CH}, s{CH}, s{A}""")
        for i,q in enumerate(seqs):
            assert sorted(q)==list("0123456789")
            if i: p(f"s_cmp_eq_u32 s{CH}, {i}\ns_cselect_b32 s{SEQ}, {hex(pk(q[:8]))}, s{SEQ}\ns_cselect_b32 s{SEQ+1}, {hex(pk(q[8:]))}, s{SEQ+1}")
            else: p(f"s_mov_b32 s{SEQ}, {hex(pk(q[:8]))}\ns_mov_b32 s{SEQ+1}, {hex(pk(q[8:]))}")
    else:
        p(f"""s_add_u32 s{CH}, s{CH}, s{OFF}
    s_mul_i32 s{A}, s{CH}, 205
    s_lshr_b32 s{A}, s{A}, 11
    s_mul_i32 s{A}, s{A}, 10
    s_sub_u32 s{CH}, s{CH}, s{A}""")
    p(f"""
    s_lshl_b32 s{A}, s{sRQ}, 2
    s_add_u32 s{A}, s{A}, s{sRB}
    s_lshl_b32 s{A}, s{A}, 2
    s_add_u32 s{A}, s{A}, s{HW}
    s_mul_i32 s{XO}, s{A}, {32*1280}
    s_mul_i32 s{WO_}, s{HW}, {16*3840}
    s_lshl_b32 s{LB}, s{HW}, 12""")
    def issue(c,fill=()):
        fill=list(fill)
        def fl(i):
            if fill and i in CFG['sfill']: p(fill.pop(0))
        slot=(c%4)*32768
        if seqs: p(f"""s_and_b32 s{CH}, s{SEQ}, 15
        s_lshr_b64 s[{SEQ}:{SEQ+1}], s[{SEQ}:{SEQ+1}], 4
        s_add_u32 s{CH}, s{CH}, s{OFF}
        s_sub_u32 s{A}, s{CH}, 10
        s_cselect_b32 s{CH}, s{CH}, s{A}""")
        p(f"""s_lshl_b32 s{A}, s{CH}, 7
        s_add_u32 s{A}, s{A}, s{XO}
        s_add_u32 m0, s{LB}, {slot}
        s_mul_i32 s{B}, s{CH}, {64*3840}""")
        for i in range(4): p(f"buffer_load_dwordx4 v{vX+i}, {S4(sX)}, s{A} offen offset:{i*1024} {CFG['xpol'] if c<CFG['xnt'] else ''} lds"); fl(i)
        p(f"""s_add_u32 m0, s{LB}, {slot+16384}
        s_add_u32 s{B}, s{B}, s{WO_}""")
        for i in range(4): p(f"buffer_load_dwordx4 v{vW+i}, {S4(sW)}, s{B} offen offset:{i*1024} {'nt' if c<CFG['wnt'] else CFG['wpol']} lds"); fl(4+i)
        if not seqs: p(f"""s_add_u32 s{CH}, s{CH}, 1
        s_cmp_eq_u32 s{CH}, 10
        s_cselect_b32 s{CH}, 0, s{CH}""")
        for x in fill: p(x)
    pre=CFG['pre']
    srd(((sX,2621440),(sW,2457600)))
    p("s_waitcnt lgkmcnt(0)")
    STAMP('i0')
    for c in range(1 if CFG['late1'] else pre):
        issue(c); STAMP('i%d'%(c+1))
        if c==0:
            prologue2()
            p(f"""v_cmp_lt_u32 vcc, 7, v0
            v_lshlrev_b32 v{vt}, 4, v0
            v_add_u32 v{vt}, {L_FLG}, v{vt}
            v_cndmask_b32 v{vt+2}, 0, -1, vcc
            v_cndmask_b32 v{vt+3}, 0, -1, vcc
            v_cndmask_b32 v{vt+4}, 0, -1, vcc
            v_cndmask_b32 v{vt+5}, 0, -1, vcc
            ds_write_b128 v{vt}, v[{vt+2}:{vt+5}]""")
            early()
    p("s_waitcnt lgkmcnt(0)")
    mktag()
    stats_setup()
    p(f"s_cmp_ge_u32 s{HW}, 2\ns_cbranch_scc1 L_helperB")
    def steps(hook):
        global OPS
        OPS=[c for c in range(pre) for _ in range(8)]
        issued=pre
        if CFG['late1']:
            STAMP('i1s')
            for c in range(1,pre): issue(c)
            STAMP('i1e')
        for c in range(7):
            sd=CFG['sdef']
            if c==0 and -1 in sd:
                p(f"s_waitcnt vmcnt({8*pre-4})")
                STAMP('x0')
                fill=stats(0)
                for k in range(4):
                    if sd[k]==-1: p(fill[k])
                if max(sd)==-1: stats_red()
            vmwait(c)
            p("s_barrier")
            STAMP('ld%d'%c)
            if c==0 and -1 not in sd: fill=stats(0)
            for _ in range(CFG['sched'][c]):
                assert issued<min(10,c+4); issue(issued); OPS+=[issued]*8; issued+=1
            if c==0: p("s_waitcnt lgkmcnt(0)")
            for k in range(4):
                if sd[k]==c: p(fill[k])
            if c==max(0,max(sd)):
                if max(sd)>=0: stats_red()
                stats_pub(); OPS.append('stw')
            if c==6: stats_get()
            hook(c)
        assert issued==10
    return steps
aS=44; dS=64; sacc=60; sone=43; sDBL=sDBG; sSTP=sDBG+1
def stats_setup():
    vt=10
    tc=[int(x) for x in CFG['rot'][1]]
    assert not CFG['seqs'] and sorted(tc+[(tc[7]+1)%10,(tc[7]+2)%10])==list(range(10))
    p(f"""s_lshl_b32 s{sT+16}, s{HW}, 12
    v_bfe_u32 v{vt}, v0, 1, 3
    v_lshrrev_b32 v{vt+1}, 5, v0
    v_lshlrev_b32 v{vt+1}, 2, v{vt+1}
    v_xor_b32 v{vt}, v{vt}, v{vt+1}
    v_lshlrev_b32 v{vt}, 4, v{vt}
    v_and_b32 v{vt+1}, 31, v0
    v_lshl_add_u32 v{vt}, v{vt+1}, 7, v{vt}
    v_add_u32 v{aS}, s{sT+16}, v{vt}
    v_mov_b32 v{sone}, 0x3f803f80
    s_lshl_b32 s{sSTP}, s{sG}, 2
    s_add_u32 s{sSTP}, s{sSTP}, s{sRB}
    s_lshl_b32 s{sSTP}, s{sSTP}, 14
    s_lshl_b32 s{sT+16}, s{HW}, 9
    s_add_u32 s{sSTP}, s{sSTP}, s{sT+16}
    s_add_u32 s{sSTP}, s{sSTP}, {STP}
    v_lshrrev_b32 v{vt}, 5, v0
    v_lshlrev_b32 v{vt}, 11, v{vt}
    v_lshl_add_u32 v{aS+4}, v{vt+1}, 4, v{vt}
    s_lshl_b32 s{sT+16}, s{sCT}, 11
    s_cmp_eq_u32 s{sCT}, 7
    s_cselect_b32 s{sT+16}, {STX-STP}, s{sT+16}
    v_lshl_add_u32 v{aS+5}, v{vt+1}, 4, s{sT+16}""")
    for i in range(1,4): p(f"v_xor_b32 v{aS+i}, {16*i}, v{aS}")
    for i in range(4): p(f"v_mov_b32 v{sacc+i}, 0")
    if CFG['smode'] in ('dotx','dotc'):
        for i in range(2*CFG['nacc']): p(f"v_mov_b32 v{102+i}, 0")
def stats(c):
    if 'nostats' in CFG['xp']: return []
    for i in range(4): p(f"ds_read_b128 {vr(dS+4*i,4)}, v{aS+i} offset:{c*32768}")
    L=[]
    for i in range(4):
        g=f"s_waitcnt lgkmcnt({3-i})"
        for j in range(4):
            r=dS+4*i+j
            u=80+2*(j&1)
            if CFG['smode']=='dotx':
                a=102+2*((4*i+j)%CFG['nacc']); g+=f"\nv_dot2_f32_bf16 v{a}, v{r}, v{sone}, v{a}\nv_dot2_f32_bf16 v{a+1}, v{r}, v{r}, v{a+1}"
            elif CFG['smode']=='dotc':
                a=102+2*((4*i+j)%CFG['nacc']); g+=f"\nv_dot2c_f32_bf16 v{a}, v{r}, v{sone}\nv_dot2c_f32_bf16 v{a+1}, v{r}, v{r}"
            elif CFG['smode']=='dot': g+=f"\nv_dot2_f32_bf16 v{sacc+(j&1)}, v{r}, v{sone}, v{sacc+(j&1)}\nv_dot2_f32_bf16 v{sacc+2+(j&1)}, v{r}, v{r}, v{sacc+2+(j&1)}"
            elif CFG['smode']=='valu': g+=f"\nv_lshlrev_b32 v{u}, 16, v{r}\nv_and_b32 v{u+1}, 0xffff0000, v{r}\nv_add_f32 v{sacc}, v{sacc}, v{u}\nv_fmac_f32 v{sacc+2}, v{u}, v{u}\nv_add_f32 v{sacc+1}, v{sacc+1}, v{u+1}\nv_fmac_f32 v{sacc+3}, v{u+1}, v{u+1}"
            elif CFG['smode']=='pk': g+=f"\nv_lshlrev_b32 v{u}, 16, v{r}\nv_and_b32 v{u+1}, 0xffff0000, v{r}\nv_pk_add_f32 v[{sacc}:{sacc+1}], v[{sacc}:{sacc+1}], v[{u}:{u+1}]\nv_pk_fma_f32 v[{sacc+2}:{sacc+3}], v[{u}:{u+1}], v[{u}:{u+1}], v[{sacc+2}:{sacc+3}]"
        L.append(g)
    return L
def stats_red():
    t=sacc
    p(f"""s_nop 1
    v_add_f32 v{t}, v{t}, v{t+1}
    v_add_f32 v{t+1}, v{t+2}, v{t+3}
    v_mov_b32 v{t+2}, s{sTAG}
    s_nop 0
    v_permlane32_swap_b32 v{t}, v{t+1}
    s_nop 0
    v_add_f32 v{t}, v{t}, v{t+1}
    v_mov_b32 v{t+1}, v{t}
    s_nop 1
    v_permlane32_swap_b32 v{t}, v{t+1}""")
def stats_pub():
    t=sacc
    p(f"""s_mov_b64 exec, s[{sLO}:{sLO+1}]
    buffer_store_dwordx4 {vr(t,4)}, v{aS+5}, {S4(sWS)}, s{sSTP} offen sc1
    s_mov_b64 exec, -1""")
def stats_ld():
    return "\n".join(f"s_add_u32 s{sSTP+1}, s{sSTP}, {4096*i}\nbuffer_load_dwordx4 {vr(dS+4*i,4)}, v{aS+4}, {S4(sWS)}, s{sSTP+1} offen sc1" for i in range(4))
def stats_get():
    p(stats_ld()); OPS.extend(['stp']*4)
def stats_fin(t,B):
    vmwait('stp')
    lp=p.lab("stl"); ok=p.lab("stok"); rt=p.lab("strt")
    p(f"""s_mov_b32 s{B}, {SPIN}
    {lp}:
    v_xor_b32 v{t}, v{dS+2}, v{dS+6}
    v_xor_b32 v{t+1}, v{dS+10}, v{dS+14}
    v_xor_b32 v{t+2}, s{sTAG}, v{dS+2}
    v_xor_b32 v{t+3}, s{sTAG}, v{dS+10}
    v_or3_b32 v{t}, v{t}, v{t+1}, v{t+2}
    v_or_b32 v{t}, v{t}, v{t+3}
    v_cmp_ne_u32 vcc, 0, v{t}
    v_add_f32 v{t+1}, v{dS}, v{dS+4}
    v_add_f32 v{t+2}, v{dS+1}, v{dS+5}
    s_cbranch_vccnz {rt}
    {ok}:""")
    n0=len(p.L)
    p(f"{rt}:"); spin(B,lp,ok,1); p(stats_ld()); p(f"s_waitcnt vmcnt(0)\ns_branch {lp}")
    COLD.append("\n".join(p.L[n0:])); del p.L[n0:]
    p(f"""v_add_f32 v{t+3}, v{dS+8}, v{dS+12}
    v_add_f32 v{t+4}, v{dS+9}, v{dS+13}
    v_add_f32 v{t+1}, v{t+1}, v{t+3}
    v_add_f32 v{t+2}, v{t+2}, v{t+4}
    s_nop 1
    v_permlane32_swap_b32 v{t+1}, v{t+2}
    s_nop 0
    v_add_f32 v{t+1}, v{t+1}, v{t+2}
    v_mul_f32 v{t+1}, {1/640!r}, v{t+1}
    v_mov_b32 v{t+2}, v{t+1}
    s_nop 1
    v_permlane32_swap_b32 v{t+1}, v{t+2}
    s_nop 0
    v_fma_f32 v{t+2}, -v{t+1}, v{t+1}, v{t+2}
    v_max_f32 v{t+2}, 0, v{t+2}""")
    bf16r(t+2,t+2)
    p(f"v_add_f32 v{t+2}, 0x3727c5ac, v{t+2}")
    bf16r(t+2,t+2)
    p(f"""v_sqrt_f32 v{t+2}, v{t+2}
    v_xor_b32 v{t+1}, 0x80000000, v{t+1}""")
    bf16r(t+2,t+2)
    p(f"""v_rcp_f32 v{t+5}, v{t+2}
    v_cvt_pk_bf16_f32 v{t+4}, v{t+1}, v{t+1}
    v_and_b32 v{t+3}, 31, v0
    s_lshl_b32 s{B}, s{HW}, 8
    s_add_u32 s{B}, s{B}, {L_SA}
    v_lshl_add_u32 v{t+1}, v{t+3}, 3, s{B}
    s_lshl_b32 s{B}, s{HW}, 7
    s_add_u32 s{B}, s{B}, {L_SR}
    v_lshl_add_u32 v{t+2}, v{t+3}, 2, s{B}
    ds_write_b64 v{t+1}, v[{t+4}:{t+5}]
    ds_write_b32 v{t+2}, v{t+5}""")
vPT=21; vDUM=39
HS=sT+12; HA=28
def early():
    A=sT+20; B=sT+21; vt=10
    wave_ids(HW,sT+16,sT+17,sT+18,sT+19)
    store_addr(sT+16,sT+18,sT+19,HS,HS+1,HS+2,HS+3,HA,A,B,t=vt)
    p(f"""s_add_u32 s{HS}, s{HS}, {KH-KB}
    s_add_u32 s{HS+1}, s{HS+1}, {KH-KB}
    s_sub_u32 s{A}, s{HS+3}, {FL}
    s_and_b32 s{B}, s{A}, 127
    s_sub_u32 s{A}, s{A}, s{B}
    s_lshl_b32 s{A}, s{A}, 3
    s_lshl_b32 s{B}, s{B}, 5
    s_add_u32 s{A}, s{A}, s{B}
    s_add_u32 s{HS+3}, s{A}, {FH}""")
    p(f"""s_lshl_b32 s{A}, s{sSLOT}, 2
    s_add_u32 s{A}, s{A}, s{HW}
    s_mul_i32 s{A}, s{A}, 60
    v_min_u32 v{vt}, 59, v0
    v_add_u32 v{vt}, s{A}, v{vt}
    v_mul_u32_u24 v{vt+1}, 6554, v{vt}
    v_lshrrev_b32 v{vt+1}, 20, v{vt+1}
    v_mul_u32_u24 v{vt+2}, 160, v{vt+1}
    v_sub_u32 v{vt}, v{vt}, v{vt+2}
    v_lshlrev_b32 v{vt}, 7, v{vt}
    v_cmp_gt_u32 vcc, 32, v{vt+1}
    v_and_b32 v{vt+2}, 1, v{vt+1}
    v_mul_u32_u24 v{vt+2}, 20480, v{vt+2}
    v_bfe_u32 v{vt+3}, v{vt+1}, 1, 3
    v_mul_u32_u24 v{vt+3}, 163840, v{vt+3}
    v_add_u32 v{vt+2}, v{vt+2}, v{vt+3}
    v_lshrrev_b32 v{vt+3}, 4, v{vt+1}
    v_mul_u32_u24 v{vt+3}, {KB}, v{vt+3}
    s_mul_i32 s{A}, s{sRQ}, 40960
    v_add3_u32 v{vt+2}, v{vt+2}, v{vt+3}, s{A}
    v_and_b32 v{vt+3}, 15, v{vt+1}
    v_mul_u32_u24 v{vt+3}, 81920, v{vt+3}
    s_mul_i32 s{A}, s{sRQ}, 20480
    s_add_u32 s{A}, s{A}, {VB}
    v_add_u32 v{vt+3}, s{A}, v{vt+3}
    v_cndmask_b32 v{vt+2}, v{vt+3}, v{vt+2}, vcc
    s_mul_i32 s{A}, s{sHH}, {8*163840}
    v_add3_u32 v{vPT}, v{vt}, v{vt+2}, s{A}
""")
    nsm=sum(CFG['npf']); per=(100-5*nsm)//2
    if per>0:
        p(f"""s_mul_i32 s{A}, s{sG}, 5
        s_lshr_b32 s{A}, s{A}, 1
        s_mul_i32 s{A}, s{A}, 5
        s_lshr_b32 s{B}, s{HW}, 1
        s_mul_i32 s{B}, s{B}, {per}
        s_add_u32 s{A}, s{A}, s{B}
        s_add_u32 s{A}, s{A}, {5*nsm}
        v_min_u32 v{vt}, {per-1}, v0
        v_add_u32 v{vt}, s{A}, v{vt}
        v_subrev_u32 v{vt+1}, 100, v{vt}
        v_min_u32 v{vt}, v{vt}, v{vt+1}
        s_lshl_b32 s{A}, s{sSLOT}, 1
        s_and_b32 s{B}, s{HW}, 1
        s_add_u32 s{A}, s{A}, s{B}
        s_mul_i32 s{A}, s{A}, 12800
        v_lshl_add_u32 v{vTW}, v{vt}, 7, s{A}""")
    ge=p.lab("mtge"); jn=p.lab("mtj")
    p(f"""s_cmp_ge_u32 s{HW}, 2
    s_cbranch_scc1 {ge}
    v_min_u32 v{vt}, 59, v0
    v_mul_u32_u24 v{vt+1}, 86, v{vt}
    v_lshrrev_b32 v{vt+1}, 8, v{vt+1}
    v_mul_u32_u24 v{vt+1}, {3072-384}, v{vt+1}
    v_lshl_add_u32 v{vt}, v{vt}, 7, v{vt+1}
    s_mul_i32 s{A}, s{sSLOT}, {20*3072}
    s_mul_i32 s{B}, s{sG}, 384
    s_branch {jn}
    {ge}:
    {jn}:
    s_add_u32 s{A}, s{A}, s{B}
    v_add_u32 v{vTM}, s{A}, v{vt}
    s_sub_u32 s{A}, s{sSLOT}, {0 if CFG['dw3'] else 17}
    s_lshl_b32 s{A}, s{A}, {1 if CFG['dw3'] else 2}
    s_add_u32 s{A}, s{A}, s{HW}
    s_mul_i32 s{A}, s{A}, {24 if CFG['dw3'] else 26}
    v_min_u32 v{vt}, {47 if CFG['dw3'] else 51}, v0
    v_lshrrev_b32 v{vt+1}, 1, v{vt}
    v_add_u32 v{vt+1}, s{A}, v{vt+1}
    v_min_u32 v{vt+1}, 1535, v{vt+1}
    v_mul_u32_u24 v{vt+1}, 1280, v{vt+1}
    v_and_b32 v{vt}, 1, v{vt}
    v_lshl_add_u32 v{vt}, v{vt}, 7, v{vt+1}
    s_mul_i32 s{B}, s{sG}, 160
    s_and_b32 s{B}, s{B}, -128
    v_add_u32 v{vTD}, s{B}, v{vt}""")
vTD=25
vTW=22; vTM=24
def touch(va,srd_,pair,pol=''):
    if pair:
        p(f"buffer_load_dword v{vDUM}, v{va}, {S4(srd_)}, 0 offen nt\nbuffer_load_dword v{vDUM}, v{va}, {S4(srd_)}, 0 offen offset:64")
        return 2
    p(f"buffer_load_dword v{vDUM}, v{va}, {S4(srd_)}, 0 offen {pol}")
    return 1
def wtouch(win,isB):
    n=0
    if CFG['wtw']==win and 100-5*sum(CFG['npf'])>0:
        n+=touch(vTW,sWO,CFG['wpair'])
    if CFG['mtw']==win:
        if not isB:
            u=p.lab("tu"); j=p.lab("tj")
            p(f"s_cmp_eq_u32 s{HW}, 0\ns_cbranch_scc0 {u}")
            touch(vTM,sWG,CFG['mpair'])
            p(f"s_branch {j}\n{u}:")
            n+=touch(vTM,sWU,CFG['mpair'])
            p(f"{j}:")
    return n
def qkv_touch():
    if CFG['pt']==99: return
    OPS.extend(['pt']*touch(vPT,sWS,CFG['qpair'],CFG['tpol']))
vH=16
OPS=[]
def vmwait(*tags):
    last=max(i for i,t in enumerate(OPS) if t in tags)
    n=len(OPS)-1-last; assert n<64
    p(f"s_waitcnt vmcnt({n})")
HW=sT
def spin(cnt,lp,ok,sleep=0):
    p(f"s_sub_u32 s{cnt}, s{cnt}, 1\ns_cbranch_scc1 {ok}")
    if sleep: p(f"s_sleep {sleep}")
def lds_wait(addr_v,tmp,cnt,cmp,val,sleep=1):
    lp=p.lab("lw"); ok=p.lab("lwok")
    p(f"""s_mov_b32 s{cnt}, {SPIN*4}
    {lp}:
    ds_read_b32 v{tmp}, v{addr_v}
    s_waitcnt lgkmcnt(0)
    v_cmp_{cmp}_u32 vcc, {val}, v{tmp}
    s_nop 0
    s_cbranch_vccz {ok}""")
    spin(cnt,lp,ok,sleep)
    p(f"s_branch {lp}\n{ok}:")
sHL,sHF,sHO,sPH,sHD,sT0=range(sT+1,sT+7)
def att_ids():
    p(f"""s_lshr_b32 s{sHL}, s{sSLOT}, 1
    s_and_b32 s{sHF}, s{sSLOT}, 1
    s_and_b32 s{sHO}, s{sHL}, 1
    s_lshr_b32 s{sPH}, s{sHL}, 1
    s_lshl_b32 s{sHD}, s{sHH}, 3
    s_add_u32 s{sPH}, s{sPH}, s{sHD}
    s_lshl_b32 s{sHD}, s{sHH}, 4
    s_add_u32 s{sHD}, s{sHD}, s{sHL}
    s_lshl_b32 s{sT0}, s{sRQ}, 1
    s_add_u32 s{sT0}, s{sT0}, s{sHF}
    s_lshl_b32 s{sT0}, s{sT0}, 3""")
def flag_addr(vd,vt,withq,A,B,C):
    p(f"""s_lshr_b32 s{A}, s{sHL}, 1
    s_mul_i32 s{A}, s{A}, 5
    s_lshl_b32 s{B}, s{sHO}, 1
    s_add_u32 s{A}, s{A}, s{B}
    s_add_u32 s{B}, s{A}, 2
    s_lshr_b32 s{A}, s{A}, 3
    s_lshr_b32 s{B}, s{B}, 3
    s_lshl_b32 s{B}, s{B}, 4
    s_or_b32 s{A}, s{A}, s{B}
    s_add_u32 s{B}, s{A}, 0x55
    s_lshl_b32 s{C}, s{B}, 8
    s_or_b32 s{A}, s{C}, s{A if withq else B}
    s_mul_i32 s{B}, s{sHL}, 20
    s_add_u32 s{C}, s{B}, 19
    s_lshr_b32 s{B}, s{B}, 6
    s_lshr_b32 s{C}, s{C}, 6
    s_lshl_b32 s{C}, s{C}, 4
    s_or_b32 s{B}, s{B}, s{C}
    s_add_u32 s{B}, s{B}, 0xaa
    s_lshl_b32 s{B}, s{B}, 16
    s_or_b32 s{A}, s{A}, s{B}
    v_and_b32 v{vt}, 60, v0
    v_min_u32 v{vt}, 20, v{vt}
    v_bfe_u32 v{vt}, s{A}, v{vt}, 4
    v_and_b32 v{vd}, 3, v0
    v_lshlrev_b32 v{vd}, 2, v{vd}
    v_lshl_add_u32 v{vd}, v{vt}, 7, v{vd}""")
def flag_poll(va,vt,soff,cnt,first=True,sleep=0):
    lp=p.lab("fp"); ok=p.lab("fpok");
    p(f"s_mov_b32 s{cnt}, {SPIN}")
    if not first:
        md=p.lab("fpm"); p(f"s_branch {md}")
    p(f"""{lp}:
    buffer_load_dword v{vt}, v{va}, {S4(sWS)}, s{soff} offen sc1""")
    if not first: p(f"{md}:")
    p(f"""s_waitcnt vmcnt(0)
    v_cmp_ne_u32 vcc, s{sTAG}, v{vt}
    s_nop 0
    s_cbranch_vccz {ok}""")
    spin(cnt,lp,ok,sleep)
    p(f"s_branch {lp}\n{ok}:")
def kv_dma(aLin,aTl,sK,sV,sL,A,B):
    p(f"""s_mul_i32 s{A}, s{sHO}, 1536
    s_add_u32 s{A}, s{A}, s{sK}
    s_mov_b32 m0, s{sL}
    s_add_u32 s{B}, s{A}, 1536
    buffer_load_dwordx4 v{aLin}, {S4(sWS)}, s{A} offen sc1 lds
    buffer_load_dwordx4 v{aLin}, {S4(sWS)}, s{B} offen offset:1024 sc1 lds
    s_sub_u32 s{A}, s{sK}, 2048
    s_sub_u32 s{B}, s{sV}, 3072
    buffer_load_dwordx4 v{aTl}, {S4(sWS)}, s{A} offen offset:2048 sc1 lds
    buffer_load_dwordx4 v{aLin}, {S4(sWS)}, s{B} offen offset:3072 sc1 lds
    s_add_u32 m0, s{sL}, 4096
    s_add_u32 s{B}, s{sV}, 1024
    buffer_load_dwordx4 v{aLin}, {S4(sWS)}, s{B} offen sc1 lds
    s_mov_b64 exec, s[{sLO}:{sLO+1}]
    buffer_load_dwordx4 v{aLin}, {S4(sWS)}, s{B} offen offset:1024 sc1 lds
    s_mov_b64 exec, -1""")
def kv_addr(aLin,aTl,t):
    p(f"""v_lshlrev_b32 v{aLin}, 4, v0
    v_lshrrev_b32 v{t}, 5, v0
    v_mul_u32_u24 v{t}, {2560-512}, v{t}
    v_add3_u32 v{aTl}, v{aLin}, v{t}, s{sK1024}""")
sK1024=sT+21

def halo_copy(aLin,vt,D,A,B,isB):
    sk=p.lab("nohalo"); s2_=p.lab("nohf")
    w2=CFG['wtw'][:2]=='w2' or CFG['mtw'][:2]=='w2'
    p(f"""v_mov_b32 v{vt+2}, {F_SCP}
    v_mov_b32 v{vt+3}, 1
    s_lshl_b32 s{B}, s{HW}, 2
    s_add_u32 s{B}, s{B}, {F_STG}
    v_mov_b32 v{vt}, s{B}
    s_cmp_eq_u32 s{HS+2}, 0
    s_cbranch_scc1 {sk}
    s_lshl_b32 s{A}, s{HW}, 13
    v_add_u32 v{vt+1}, s{A}, v{aLin}""")
    for xb in range(2):
        if CFG['hsplit'] or xb==0: lds_wait(vt,vt+5,B,'gt',(xb+1) if CFG['hsplit'] else 2,0)
        STAMP('hs%d'%xb)
        for i in range(4*xb,4*xb+4): p(f"ds_read_b128 {vr(D+4*i,4)}, v{vt+1} offset:{L_STG+i*1024}")
        for i in range(4*xb,4*xb+4):
            p(f"s_waitcnt lgkmcnt({4*xb+3-i})\nbuffer_store_dwordx4 {vr(D+4*i,4)}, v{HA+(i&3)}, {S4(sWS)}, s{HS+(i>>2)} offen sc1")
    n=wtouch('w2',isB)
    p(f"""s_mov_b64 exec, 1
    ds_add_u32 v{vt+2}, v{vt+3}
    v_mov_b32 v{vt}, 0
    v_mov_b32 v{vt+1}, s{sTAG}""")
    STAMP('hi')
    p(f"""s_waitcnt vmcnt({n})
    buffer_store_dword v{vt+1}, v{vt}, {S4(sWS)}, s{HS+3} offen sc1
    s_branch {s2_}
    {sk}:""")
    if w2:
        lds_wait(vt,vt+5,B,'gt',2,0)
        wtouch('w2',isB)
    p(f"""s_mov_b64 exec, 1
    ds_add_u32 v{vt+2}, v{vt+3}
    {s2_}:
    s_mov_b64 exec, -1""")
    STAMP('halo')
def helperA(steps):
    A=sT+7; B=sT+8; vt=10
    def hook(c):
        if c==CFG['pt']:
            qkv_touch(); OPS.extend(['pt']*wtouch('w1',0))
    steps(hook)
    for c in (7,8,9):
        vmwait(c); p("s_barrier"); STAMP('ld%d'%c)
        if c==9: STAMP('hb9')
        hook(c)
    stats_fin(vt,B)
    p("s_barrier\ns_waitcnt lgkmcnt(0)\ns_barrier")
    STAMP('hE1')
    att_ids()
    aLin=6; aTl=7; aF=8; D=40
    p(f"s_mov_b32 s{sK1024}, 1024")
    kv_addr(aLin,aTl,vt)
    flag_addr(aF,vt,0,A,B,sT+17)
    halo_copy(aLin,vt,D,A,B,0)
    p(f"v_mov_b32 v{vt}, {F_SCP}\nv_mov_b32 v{vt+1}, 1")
    if 'w2b' in (CFG['wtw'],CFG['mtw']):
        lds_wait(vt,vt+5,sT+17,'gt',4,1); wtouch('w2b',0)
    sF=sT+9; sK=sT+10; sV=sT+11; sL=sT+16; C=sT+17
    dn=p.lab("g2done")
    p(f"""s_cmp_eq_u32 s{sT0}, 0
    s_cbranch_scc1 {dn}
    v_and_b32 v{vt+2}, 127, v{aF}
    v_sub_u32 v{vt+3}, v{aF}, v{vt+2}
    v_lshlrev_b32 v{vt+3}, 3, v{vt+3}
    v_lshl_add_u32 v{vt+2}, v{vt+2}, 5, v{vt+3}
    s_cmp_eq_u32 s{sHF}, 0
    s_cselect_b64 vcc, -1, 0
    s_cselect_b32 s{A}, {FH-2*16384+512-FL}, 0
    s_cselect_b32 s{B}, {KH-KB}, 0
    s_cselect_b32 s{sF}, 14, 11
    v_cndmask_b32 v{aF}, v{aF}, v{vt+2}, vcc
    s_lshl_b32 s{sF}, s{sG}, s{sF}
    s_add_u32 s{sF}, s{sF}, s{A}
    s_add_u32 s{sF}, s{sF}, {FL}
    s_lshl_b32 s{A}, s{HW}, 2
    s_sub_u32 s{A}, s{sT0}, s{A}
    s_sub_u32 s{A}, s{A}, 2
    s_mul_i32 s{sK}, s{A}, 2560
    s_mul_i32 s{sV}, s{A}, 1280
    s_mul_i32 s{A}, s{sPH}, {64*2560}
    s_add_u32 s{sK}, s{sK}, s{A}
    s_add_u32 s{sK}, s{sK}, s{B}
    s_add_u32 s{sK}, s{sK}, {KB}
    s_mul_i32 s{A}, s{sHD}, 81920
    s_add_u32 s{sV}, s{sV}, s{A}
    s_add_u32 s{sV}, s{sV}, s{B}
    s_add_u32 s{sV}, s{sV}, {VB}
    s_mul_i32 s{sL}, s{HW}, {-2*5632}
    s_add_u32 s{sL}, s{sL}, {L_KV+3*5632}""")
    lds_wait(vt,vt+5,C,'gt',4,1)
    flag_poll(aF,vt+5,sF,C,sleep=1)
    STAMP('hf')
    kv_dma(aLin,aTl,sK,sV,sL,A,B)
    p(f"""s_sub_u32 s{sK}, s{sK}, 5120
    s_sub_u32 s{sV}, s{sV}, 2560
    s_sub_u32 s{sL}, s{sL}, 5632""")
    kv_dma(aLin,aTl,sK,sV,sL,A,B)
    p(f"""s_waitcnt vmcnt(0)
    {dn}:
    v_mov_b32 v{vt}, {F_G2}
    s_mov_b64 exec, 1
    ds_add_u32 v{vt}, v{vt+1}
    s_mov_b64 exec, -1""")
    STAMP('g2')
    if 'w3' in (CFG['wtw'],CFG['mtw']):
        p(f"v_mov_b32 v{vt}, {F_G1}")
        lds_wait(vt,vt+5,C,'gt',4,1)
        wtouch('w3',0)
        if CFG['dw3']: touch(vTD,sWD,CFG['mpair'])
        STAMP('mt')
        if CFG['prof'] and any('mt2' in x for x in CFG['st']): p("s_waitcnt vmcnt(0)"); STAMP('mt2')

def tr_addr(a0,t):
    tab=[[0,8],[4,12],[16,36],[20,28],[24,32]]
    pk=[sum((tab[u][rd]//4)<<(4*u) for u in range(5)) for rd in range(2)]
    A=sT+7; B=sT+8
    p(f"""s_mov_b32 s{A}, {pk[0]}
    s_mov_b32 s{B}, {pk[1]}
    v_bfe_u32 v{t}, v0, 2, 2
    v_mul_u32_u24 v{t}, 160, v{t}
    v_and_b32 v{t+1}, 3, v0
    v_mad_u32_u24 v{t}, v{t+1}, 40, v{t}
    v_lshrrev_b32 v{t+1}, 4, v0""")
    for s_ in range(5):
        p(f"""v_add_u32 v{t+2}, {4*s_}, v{t+1}
        v_mul_u32_u24 v{t+4}, 52, v{t+2}
        v_lshrrev_b32 v{t+4}, 8, v{t+4}
        v_mul_u32_u24 v{t+5}, 5, v{t+4}
        v_sub_u32 v{t+2}, v{t+2}, v{t+5}
        v_lshlrev_b32 v{t+2}, 2, v{t+2}
        v_mul_u32_u24 v{t+4}, 10, v{t+4}""")
        for rd in range(2):
            p(f"""v_bfe_u32 v{t+3}, s{(A,B)[rd]}, v{t+2}, 4
            v_add_u32 v{t+3}, v{t+3}, v{t+4}
            v_mul_u32_u24 v{t+3}, 640, v{t+3}
            v_add_u32 v{a0+2*s_+rd}, v{t+3}, v{t}""")
sBLK,sJ=sT+9,sT+10
def wo_ids():
    p(f"""s_lshr_b32 s{sBLK}, s{sSLOT}, 3
    s_lshl_b32 s{sJ}, s{sG}, 2
    s_add_u32 s{sBLK}, s{sBLK}, s{sJ}
    s_and_b32 s{sJ}, s{sSLOT}, 7""")
def clr_ids(A,B,C,D_):
    p(f"""s_lshr_b32 s{C}, s{sSLOT}, 3
    s_lshl_b32 s{B}, s{sG}, 2
    s_add_u32 s{C}, s{C}, s{B}
    s_lshl_b32 s{C}, s{C}, 3
    s_and_b32 s{B}, s{sSLOT}, 7
    s_add_u32 s{D_}, s{C}, s{B}
    s_lshr_b32 s{A}, s{D_}, 1
    s_mul_i32 s{A}, s{A}, 20480
    s_and_b32 s{B}, s{B}, 1
    s_mul_i32 s{B}, s{B}, 5120
    s_add_u32 s{A}, s{A}, s{B}
    s_add_u32 s{A}, s{A}, {OB}
    s_mul_i32 s{B}, s{sHH}, 10240
    s_add_u32 s{C}, s{A}, 10240
    s_add_u32 s{A}, s{A}, s{B}
    s_sub_u32 s{C}, s{C}, s{B}
    s_lshl_b32 s{D_}, s{D_}, 10
    s_add_u32 s{D_}, s{D_}, {PS}""")
def clears(part):
    A=sT+13; B=sT+14; C=sT+15; D_=sT+16; D=8; aL=7
    if part==0:
        clr_ids(A,B,C,D_)
        p(f"v_lshlrev_b32 v{aL}, 4, v0")
        for r in range(4): p(f"v_mov_b32 v{D+r}, -1")
        return
    st4=lambda so,off,sc: f"buffer_store_dwordx4 v[{D}:{D+3}], v{aL}, {S4(sWS)}, s{so} offen offset:{off} {sc}"
    w2=p.lab("clw2"); w3=p.lab("clw3"); dn=p.lab("cldn")
    p(f"""s_cmp_ge_u32 s{sWAVE}, 2
    s_cbranch_scc1 {w2}
    s_mul_i32 s{B}, s{sWAVE}, 2560
    s_add_u32 s{A}, s{A}, s{B}""")
    for o in (0,1024,1536): p(st4(A,o,""))
    p(f"""s_branch {dn}
    {w2}:
    s_cmp_eq_u32 s{sWAVE}, 3
    s_cbranch_scc1 {w3}
    s_mul_i32 s{C}, s2, 2560
    s_add_u32 s{C}, s{C}, {CAND}""")
    for o in (0,1024,1536): p(st4(C,o,"sc1"))
    p(f"""s_branch {dn}
    {w3}:
    s_cmp_ge_u32 s2, 24
    s_cbranch_scc1 {dn}
    s_lshl_b32 s{C}, s2, 10
    s_add_u32 s{C}, s{C}, {ACT}""")
    p(st4(C,0,"sc1"))
    p(f"{dn}:")
def code_pf():
    A=sT+18
    p(f"""s_getpc_b64 s[{A}:{A+1}]
    L_pc:
    s_sub_u32 s{A}, s{A}, L_pc-{NAME}_kernel
    s_subb_u32 s{A+1}, s{A+1}, 0
    s_lshl_b32 s{A+2}, s{sSLOT}, 2
    s_add_u32 s{A+2}, s{A+2}, s{sWAVE}
    s_mul_i32 s{A+2}, s{A+2}, 384
    s_min_u32 s{A+2}, s{A+2}, (L_exit-{NAME}_kernel-384)&0xffffff80""")
    for i in range(3): p(f"s_load_dwordx2 s[100:101], s[{A}:{A+1}], s{A+2} offset:{i*128+60}")
def wave_sum(x,t):
    dp="row_mask:0xf bank_mask:0xf"
    for c in ("quad_perm:[1,0,3,2]","quad_perm:[2,3,0,1]","row_half_mirror","row_mirror"):
        p(f"s_nop 1\nv_add_f32_dpp v{x}, v{x}, v{x} {c} {dp}")
    for sw in (16,32):
        p(f"""v_mov_b32 v{t}, v{x}
        s_nop 1
        v_permlane{sw}_swap_b32 v{x}, v{t}
        s_nop 0
        v_add_f32 v{x}, v{x}, v{t}""")
sPF=sT+16
def pf_group(n=5):
    for i in range(n): p(f"s_load_dwordx2 s[100:101], s[{sWO}:{sWO+1}], s{sPF} offset:{i*128+60}")
    p(f"""s_add_u32 s{sPF}, s{sPF}, {n*128}
    s_sub_u32 s{sPF+2}, s{sPF+2}, 1
    s_add_u32 s{sPF+3}, s{sPF+1}, 12800
    s_cmp_eq_u32 s{sPF}, s{sPF+3}
    s_cselect_b32 s{sPF}, s{sPF+1}, s{sPF}""")
def helperB(steps):
    A=sT+7; B=sT+8; vt=2; aD=140; aT=146; aLin=12; D=40; WRr=32
    sO=sT+1; sL=sT+2; sL0=sT+3; sL1=sT+4; C=sT+5
    p("L_helperB:")
    vM=23; x=10; a=sT+16
    clr_ids(a,a+1,a+2,a+3)
    p(f"""s_mul_i32 s{a+1}, s{HW}, 25
    s_sub_u32 s{a+1}, s{a+1}, 50
    v_min_u32 v{x}, 24, v0
    v_add_u32 v{x}, s{a+1}, v{x}
    v_min_u32 v{x}, 48, v{x}
    s_sub_u32 s{a+3}, s{a+3}, {40*128}
    s_and_b32 s{a+1}, s{sSLOT}, 15
    s_lshl_b32 s{a+2}, s{sG}, 4
    s_add_u32 s{a+1}, s{a+1}, s{a+2}
    s_lshl_b32 s{a+1}, s{a+1}, 7
    s_add_u32 s{a+1}, s{a+1}, {FL-48*128}
    v_mov_b32 v{x+1}, s{a}
    v_mov_b32 v{x+2}, s{a+3}
    v_cmp_le_u32 vcc, 40, v{x}
    v_mov_b32 v{x+3}, s{a+1}
    s_mul_i32 s{a+1}, s{sSLOT}, {200*128}
    v_cndmask_b32 v{x+1}, v{x+1}, v{x+2}, vcc
    v_cmp_le_u32 vcc, 48, v{x}
    s_mul_i32 s{a}, s{HW}, {100*128}
    s_add_u32 s{a+1}, s{a+1}, s{a}
    v_cndmask_b32 v{x+1}, v{x+1}, v{x+3}, vcc
    v_lshl_add_u32 v{vM}, v{x}, 7, v{x+1}
    s_sub_u32 s{sPF+1}, s{a+1}, {200*128}
    s_mul_i32 s{sPF}, s{sG}, 5
    s_lshr_b32 s{sPF}, s{sPF}, 1
    s_mul_i32 s{sPF}, s{sPF}, 640
    s_add_u32 s{sPF}, s{sPF}, s{sPF+1}
    s_mov_b32 s{sPF+2}, 20
    v_lshlrev_b32 v{vH+4}, 4, v0
    v_add_u32 v{vH+4}, {H1}, v{vH+4}
    v_mul_u32_u24 v{WRr+5}, 20, v0""")
    aB=130; sK=sT+11; sN=sT+16; sS=sT+17
    def wo_setup():
        va=96
        wo_ids()
        T=[[0,2],[1,3],[4,9],[5,7],[6,8]]
        NIB=[sum((10*((4*s5+g_)//5)+T[(4*s5+g_)%5][rd]-(8*s5+2*g_-2))<<(4*(4*rd+g_)) for rd in range(2) for g_ in range(4)) for s5 in range(5)]
        for i in range(5):
            p(f"""v_add_u32 v{va}, {64*i}, v0
            v_mul_u32_u24 v{va+1}, 6554, v{va}
            v_lshrrev_b32 v{va+1}, 16, v{va+1}
            v_mul_u32_u24 v{va+2}, 10, v{va+1}
            v_sub_u32 v{va}, v{va}, v{va+2}
            v_and_b32 v{aB+5+i}, 28, v{va+1}
            v_and_b32 v{va+2}, 3, v{va+1}
            v_mul_u32_u24 v{va+2}, 1280, v{va+2}
            v_lshl_add_u32 v{va}, v{va}, 4, v{va+2}
            v_bfe_u32 v{va+1}, v{va+1}, 2, 2
            v_mul_u32_u24 v{va+1}, 10240, v{va+1}
            v_add_u32 v{aB+i}, v{va}, v{va+1}""")
            if 0<i<4: p(f"v_subrev_u32 v{aB+i}, {i*1024}, v{aB+i}")
        p(f"""s_lshr_b32 s{A}, s{sSLOT}, 3
        s_mul_i32 s{A}, s{A}, 5
        s_lshr_b32 s{A}, s{A}, 1
        s_add_u32 s{A}, s{A}, s{HW}
        s_sub_u32 s{sK}, s{A}, 2
        v_mov_b32 v{va}, 5120""")
        def woaddr(n):
            p(f"""s_add_u32 s{A}, s{sK}, {2*n}
            s_sub_u32 s{B}, s{A}, 10
            s_cselect_b32 s{A}, s{A}, s{B}
            s_sub_u32 s{B}, s{A}, 5
            s_cselect_b32 s{B}, s{A}, s{B}
            s_mul_i32 s{sS}, s{A}, 40960
            s_sub_u32 s{sS}, s{sS}, 10240
            s_mov_b32 s{sN}, {hex(NIB[0])}""")
            for k in range(1,5): p(f"s_cmp_eq_u32 s{B}, {k}\ns_cselect_b32 s{sN}, {hex(NIB[k])}, s{sN}")
            for i in range(5):
                p(f"""v_bfe_u32 v{va+1}, s{sN}, v{aB+5+i}, 4
                v_mad_u32_u24 v{va+1}, v{va+1}, v{va}, v{aB+i}
                v_add_u32 v{aD+5*n+i}, s{sS}, v{va+1}""")
        for n in range(5): woaddr(n)
    if CFG['wose']==0: wo_setup()
    npf=CFG['npf']
    for _ in range(npf[0]): pf_group()
    def hook(c):
        if c==6:
            p(f"buffer_load_dwordx4 v[{vH}:{vH+3}], v{vH+4}, {S4(sWS)}, 0 offen sc1"); OPS.append('h1')
            p(f"buffer_load_dwordx4 {vr(WRr,4)}, v{WRr+5}, {S4(sWR)}, 0 offen\nbuffer_load_dword v{WRr+4}, v{WRr+5}, {S4(sWR)}, 0 offen offset:16"); OPS.extend(['wr','wr'])
        if c==CFG['pt']:
            qkv_touch()
            OPS.extend(['pt']*wtouch('w1',1))
        if c==CFG['pt2']: OPS.extend(['pt']*touch(vM,sWS,CFG['qpair2'],CFG['tpol']))
    steps(hook)
    vmwait(7); p("s_barrier"); STAMP('ld7'); hook(7)
    st=dict(n=0)
    def dma(cnt):
        for _ in range(min(cnt,50-st['n'])):
            n=st['n']; i=n%5; k=(n//5)%5
            if n==0 or n==25:
                p(f"""s_xor_b32 s{A}, s{sHH}, {n//25}
                s_mul_i32 s{sO}, s{A}, {320*1280}
                s_mul_i32 s{sL0}, s{A}, 51200
                s_add_u32 s{sL0}, s{sL0}, {L_WO}
                s_mul_i32 s{A}, s{sJ}, 160
                s_add_u32 s{sO}, s{sO}, s{A}""")
            if i==0: p(f"""s_add_u32 s{A}, s{sK}, {2*k}
                s_sub_u32 s{B}, s{A}, 10
                s_cselect_b32 s{A}, s{A}, s{B}
                s_mul_i32 s{sL}, s{A}, 5120
                s_add_u32 s{sL}, s{sL}, s{sL0}
                s_mov_b32 m0, s{sL}
                s_nop 0""")
            if i==4: p(f"s_add_u32 m0, s{sL}, 4096\ns_nop 0")
            p(f"buffer_load_dwordx4 v{aD+5*k+i}, {S4(sWO)}, s{sO} offen offset:{(i&3)*1024} {CFG['wopol']} lds")
            OPS.append('wo%d'%(n//25))
            st['n']+=1
    vmwait(8); p("s_barrier"); hook(8)
    p(f"v_lshlrev_b32 v{aLin}, 4, v0")
    vmwait(9); p("s_barrier"); hook(9)
    stats_fin(96,B)
    vmwait('h1')
    lp=p.lab("hello"); ok=p.lab("hello_ok"); ne=p.lab("noep")
    p(f"""s_mov_b32 s{A}, {SPIN}
    {lp}:
    v_xor_b32 v{vH}, s{sTAG}, v{vH}
    v_xor_b32 v{vH+1}, s{sTAG}, v{vH+1}
    v_xor_b32 v{vH+2}, s{sTAG}, v{vH+2}
    v_xor_b32 v{vH+3}, s{sTAG}, v{vH+3}
    v_or3_b32 v{vt}, v{vH}, v{vH+1}, v{vH+2}
    v_or_b32 v{vt}, v{vt}, v{vH+3}
    v_cmp_lt_u32 vcc, 15, v{vt}
    s_nop 0
    s_cbranch_vccz {ok}""")
    spin(A,lp,ok,4)
    p(f"""buffer_load_dwordx4 v[{vH}:{vH+3}], v{vH+4}, {S4(sWS)}, 0 offen sc1
    s_waitcnt vmcnt(0)
    s_branch {lp}
    {ok}:
    v_lshl_or_b32 v{vH}, v{vH+1}, 4, v{vH}
    v_lshl_or_b32 v{vH+2}, v{vH+3}, 4, v{vH+2}
    v_lshl_or_b32 v{vH}, v{vH+2}, 8, v{vH}
    v_and_b32 v{vt}, 1, v0
    v_readlane_b32 s{A}, v{vH}, 0
    v_readlane_b32 s{B}, v{vH}, 1
    v_cmp_eq_u32 vcc, 0, v{vt}
    v_mov_b32 v{vt+1}, s{A}
    v_mov_b32 v{vt+2}, s{B}
    v_cndmask_b32 v{vt+1}, v{vt+2}, v{vt+1}, vcc
    v_cmp_ne_u32 vcc, v{vt+1}, v{vH}
    v_mov_b32 v{vt}, {L_MODE}
    s_cmp_lg_u64 vcc, 0
    s_cselect_b32 s{sMODE}, 1, {CFG['force_slow']}
    v_mov_b32 v{vt+1}, s{sMODE}
    ds_write_b32 v{vt}, v{vt+1}
    s_barrier
    s_waitcnt lgkmcnt(0)
    s_barrier""")
    vmw=len(OPS)-1-max(i for i,t in enumerate(OPS) if t=='wr')
    STAMP('hE1')
    p(f"""v_mov_b32 v{vt}, 0x3f803f80
    v_mov_b32 v{vt+1}, 0
    s_waitcnt vmcnt({vmw})""")
    for k in range(5): p(f"v_dot2_f32_bf16 v{vt+1}, v{WRr+k}, v{vt}, v{vt+1}")
    p("s_nop 0")
    wave_sum(vt+1,vt+2)
    p(f"v_mov_b32 v{vt}, {L_SWS}\nds_write_b32 v{vt}, v{vt+1}")
    if CFG['wose']==1: wo_setup()
    halo_copy(aLin,vt,D,A,B,1)
    if CFG['wose']==2: wo_setup()
    p(f"""s_add_u32 s{A}, s2, s{HW}
    s_cmp_lg_u32 s{A}, 2
    s_cbranch_scc1 {ne}
    s_add_u32 s{A}, s{sEP}, 1
    v_mov_b32 v{vt}, {EPO}
    v_mov_b32 v{vt+1}, s{A}
    s_mov_b64 exec, 1
    buffer_store_dword v{vt+1}, v{vt}, {S4(sWS)}, 0 offen sc1
    s_mov_b64 exec, -1
    {ne}:
    v_mov_b32 v{vt}, {F_SCP}""")
    if 'w2b' in (CFG['wtw'],CFG['mtw']):
        lds_wait(vt,vt+1,A,'gt',4,1); wtouch('w2b',1)
    p(f"v_mov_b32 v{vt}, {F_G1}")
    lds_wait(vt,vt+1,A,'gt',4,1)
    wtouch('w3',1)
    STAMP('wo_s')
    del OPS[:]
    thr=CFG['wothr']; gs=CFG['wogs']; thr1=CFG['wothr1']
    def more(n,dyn=False):
        while n>0 and st['n']<50:
            k=min(gs,n)
            if dyn and thr1<thr and st['n']>=thr1:
                sk=p.lab("wog")
                p(f"""ds_read_b32 v{vt+1}, v{vt} offset:{F_G2-F_G1}
                s_waitcnt lgkmcnt(0)
                v_cmp_gt_u32 vcc, 2, v{vt+1}
                s_nop 0
                s_cbranch_vccz {sk}
                s_waitcnt vmcnt({max(0,thr1-k)})
                {sk}:""")
            if st['n']>=thr: p(f"s_waitcnt vmcnt({max(0,thr-k)})")
            dma(k); n-=k
    def sig(f):
        p(f"""v_mov_b32 v{vt+2}, {f}
        v_mov_b32 v{vt+3}, 1
        s_mov_b64 exec, 1
        ds_add_u32 v{vt+2}, v{vt+3}
        s_mov_b64 exec, -1""")
    more(25+min(thr,15),True)
    vmwait('wo0')
    sig(F_WOR)
    STAMP('wo_0')
    more(50)
    sig(F_WOD)
    STAMP('wo_1')
    p("s_waitcnt vmcnt(0)")
    sig(F_WO2)
    STAMP('wo')

ACC=64; CS=128; XF=132; WF=148; SEL=164; aX=168; aW=172; aST=174; aSG=178; vT=2
sWR_,sWC,sLC,sTY,sSO,sHALO,sFO,sSO2=range(sT,sT+8)
def gemm_setup():
    t=vT; A=sT+10; B=sT+11
    wave_ids(sWAVE,sWR_,sWC,sLC,sTY)
    p(f"""v_and_b32 v{t}, 31, v0
    s_lshl_b32 s{A}, s{sWR_}, 6
    v_add_u32 v{t+1}, s{A}, v{t}
    v_lshlrev_b32 v{t+1}, 7, v{t+1}
    v_lshrrev_b32 v{t+2}, 5, v0
    v_bfe_u32 v{t+3}, v0, 1, 3
    v_xor_b32 v{t+3}, v{t+3}, v{t+2}
    v_lshl_add_u32 v{aX}, v{t+3}, 4, v{t+1}""")
    for s in range(1,4): p(f"v_xor_b32 v{aX+s}, {32*s}, v{aX}")
    p(f"""v_bfe_u32 v{t+3}, v0, 2, 2
    v_lshl_add_u32 v{t+4}, v{t+2}, 3, v{t+3}
    v_lshlrev_b32 v{t+4}, 8, v{t+4}
    s_lshl_b32 s{A}, s{sWC}, 1
    s_or_b32 s{A}, s{A}, s{sWR_}
    v_xor_b32 v{t+3}, s{A}, v{t+3}
    v_lshl_add_u32 v{t+4}, v{t+3}, 6, v{t+4}
    v_bfe_u32 v{t+3}, v0, 4, 1
    v_lshl_add_u32 v{t+4}, v{t+3}, 5, v{t+4}
    v_and_b32 v{t+5}, 3, v0
    v_lshl_add_u32 v{t+4}, v{t+5}, 3, v{t+4}
    v_add_u32 v{aW}, 16384, v{t+4}
    v_xor_b32 v{aW+1}, 64, v{aW}
    v_bfe_u32 v{t+4}, v0, 2, 1
    v_cmp_eq_u32 vcc, v{t+3}, v{t+4}
    v_mov_b32 v{t+5}, 0x3f803f80
    s_nop 0
    v_cndmask_b32 v{SEL}, 0, v{t+5}, vcc
    v_cndmask_b32 v{SEL+1}, 0, v{t+5}, vcc
    v_cndmask_b32 v{SEL+2}, 0, v{t+5}, vcc
    v_cndmask_b32 v{SEL+3}, 0, v{t+5}, vcc""")
    for r in list(range(ACC,ACC+64))+list(range(CS,CS+4)): p(f"v_mov_b32 v{r}, 0")
    store_addr(sWR_,sLC,sTY,sSO,sSO2,sHALO,sFO,aST,sT+10,sT+11)
    p(f"""s_lshl_b32 s{A}, s{sWAVE}, 13
    v_lshl_add_u32 v{aSG}, v0, 4, s{A}
    s_lshl_b32 s{A}, s{sWAVE}, 2
    s_add_u32 s{A}, s{A}, {F_STG}
    v_mov_b32 v{aSG+1}, s{A}""")
def wave_ids(wave,wr,wc,lc,ty):
    p(f"""s_and_b32 s{wr}, s{wave}, 1
    s_lshr_b32 s{wc}, s{wave}, 1
    s_lshl_b32 s{lc}, s{sCT}, 1
    s_add_u32 s{lc}, s{lc}, s{wc}
    s_mul_i32 s{ty}, s{lc}, 52
    s_lshr_b32 s{ty}, s{ty}, 8""")
def store_addr(wr,lc,ty,so,so2,halo,fo,ast,A,B,t=2):
    p(f"""v_and_b32 v{t}, 31, v0
    v_lshrrev_b32 v{t+2}, 5, v0
    s_mul_i32 s{A}, s{ty}, 5
    s_sub_u32 s{A}, s{lc}, s{A}
    s_mul_i32 s{B}, s{sHH}, 5
    s_add_u32 s{A}, s{A}, s{B}
    s_lshl_b32 s{B}, s{sRQ}, 2
    s_add_u32 s{B}, s{B}, s{sRB}
    s_lshl_b32 s{B}, s{B}, 1
    s_add_u32 s{B}, s{B}, s{wr}
    s_lshl_b32 s{B}, s{B}, 1""")
    isv=p.lab("isv"); jn=p.lab("stj")
    p(f"""s_cmp_ge_u32 s{ty}, 2
    s_cbranch_scc1 {isv}
    s_mul_i32 s{so}, s{B}, 2560
    s_mul_i32 s{B}, s{ty}, {KB}
    s_add_u32 s{so}, s{so}, s{B}
    s_add_u32 s{so2}, s{so}, 2560
    s_lshl_b32 s{A}, s{A}, 3""")
    for cb in range(2):
        for ip in range(2):
            p(f"""s_xor_b32 s{B}, s{wr}, {cb}
            s_lshl_b32 s{B}, s{B}, 2
            s_add_u32 s{B}, s{B}, s{A}
            s_add_u32 s{B}, s{B}, {2*ip}
            v_add_u32 v{t+3}, s{B}, v{t+2}
            v_mul_u32_u24 v{t+4}, 205, v{t+3}
            v_lshrrev_b32 v{t+4}, 10, v{t+4}
            v_mul_u32_u24 v{t+5}, 5, v{t+4}
            v_sub_u32 v{t+5}, v{t+3}, v{t+5}
            v_mul_u32_u24 v{t+4}, {64*2560}, v{t+4}
            v_lshl_add_u32 v{t+4}, v{t+5}, 9, v{t+4}
            v_lshl_add_u32 v{ast+2*cb+ip}, v{t}, 4, v{t+4}""")
    p(f"""s_branch {jn}
    {isv}:
    s_mul_i32 s{so}, s{B}, 1280
    s_add_u32 s{so}, s{so}, {VB}
    s_add_u32 s{so2}, s{so}, 1280
    s_lshl_b32 s{A}, s{A}, 6""")
    for cb in range(2):
        p(f"""s_xor_b32 s{B}, s{wr}, {cb}
        s_lshl_b32 s{B}, s{B}, 5
        s_add_u32 s{B}, s{B}, s{A}
        v_add_u32 v{t+3}, s{B}, v{t}
        v_mul_u32_u24 v{t+4}, 3277, v{t+3}
        v_lshrrev_b32 v{t+4}, 16, v{t+4}
        v_mul_u32_u24 v{t+5}, 20, v{t+4}
        v_sub_u32 v{t+5}, v{t+3}, v{t+5}
        v_mul_u32_u24 v{t+4}, 81920, v{t+4}
        v_lshl_add_u32 v{t+4}, v{t+5}, 4, v{t+4}
        v_mul_u32_u24 v{t+5}, 320, v{t+2}
        v_add_u32 v{ast+2*cb}, v{t+4}, v{t+5}
        v_add_u32 v{ast+2*cb+1}, 640, v{ast+2*cb}""")
    p(f"""{jn}:
    s_sub_u32 s{A}, s{ty}, 1
    s_cmp_lt_u32 s{A}, 2
    s_cselect_b32 s{halo}, 1, 0
    s_cmp_ge_u32 s{sRB}, 2
    s_cselect_b32 s{halo}, s{halo}, 0
    s_cmp_lt_u32 s{sRQ}, 3
    s_cselect_b32 s{halo}, s{halo}, 0
    s_lshl_b32 s{fo}, s{sG}, 4
    s_add_u32 s{fo}, s{fo}, s{lc}
    s_lshl_b32 s{fo}, s{fo}, 5
    s_lshl_b32 s{A}, s{sRB}, 1
    s_add_u32 s{A}, s{A}, s{wr}
    s_add_u32 s{fo}, s{fo}, s{A}
    s_lshl_b32 s{fo}, s{fo}, 2
    s_add_u32 s{fo}, s{fo}, {FL}""")
def xf(buf,xb): return XF+8*buf+4*xb
def wf(buf,cb): return WF+8*buf+4*cb
def reads(kind,buf,par,s):
    L=[]
    for xb in range(2): L.append(f"ds_read_b128 {vr(xf(buf,xb),4)}, v{aX+s} offset:{par*32768+xb*4096}")
    if kind!='S':
        for cb in range(2):
            for rd in range(2): L.append(f"ds_read_b64_tr_b16 {vr(wf(buf,cb)+2*rd,2)}, v{aW+cb} offset:{par*32768+s*4096+rd*1024}")
        L=[L[2],L[3],L[0],L[1],L[4],L[5]]
    return L
def mfmas(kind,buf):
    L=[]
    if kind=='S':
        for xb in range(2):
            x=xf(buf,xb)
            L.append(f"v_mfma_f32_16x16x32_bf16 {vr(ACC+4*xb,4)}, {vr(SEL,4)}, {vr(x,4)}, {vr(ACC+4*xb,4)}")
            L.append(f"v_mfma_f32_4x4x4_16b_bf16 {vr(ACC+8+8*xb,4)}, {vr(x,2)}, {vr(x,2)}, {vr(ACC+8+8*xb,4)}")
            L.append(f"v_mfma_f32_4x4x4_16b_bf16 {vr(ACC+12+8*xb,4)}, {vr(x+2,2)}, {vr(x+2,2)}, {vr(ACC+12+8*xb,4)}")
        return L
    for cb in range(2):
        for xb in range(2):
            a=ACC+16*(2*xb+cb); X=vr(xf(buf,xb),4); W=vr(wf(buf,cb),4)
            L.append(f"v_mfma_f32_32x32x16_bf16 {vr(a,16)}, {W if kind=='T' else X}, {X if kind=='T' else W}, {vr(a,16)}")
    L.insert(2,f"v_mfma_f32_16x16x32_bf16 {vr(CS,4)}, {vr(SEL,4)}, {vr(wf(buf,0),4)}, {vr(CS,4)}")
    return L
def gemm_loop(kind):
    CNT=sT+10
    lp=p.lab("g"+kind)
    p("s_barrier")
    STAMP('b0')
    for r in reads(kind,0,0,0): p(r)
    if CFG['clr']==1: clears(1)
    hl=p.lab("hello"); hr=p.lab("hellor")
    if kind!='S':
        COLD.append(f"""{hl}:
        s_getreg_b32 s{CNT+1}, hwreg(HW_REG_XCC_ID, 0, 4)
        s_or_b32 s{CNT+1}, s{CNT+1}, s{sTAG}
        v_mov_b32 v{vT}, s{CNT+1}
        s_lshl_b32 s{CNT+1}, s2, 2
        s_add_u32 s{CNT+1}, s{CNT+1}, {H1}
        v_mov_b32 v{vT+1}, 0
        s_mov_b64 exec, 1
        buffer_store_dword v{vT}, v{vT+1}, {S4(sWS)}, s{CNT+1} offen sc1
        s_mov_b64 exec, -1
        s_branch {hr}""")
        p(f"s_lshl_b32 s{CNT+2}, s{sWAVE}, 3\ns_add_u32 s{CNT+2}, s{CNT+2}, {5-CFG['clr']}")
    p(f"s_mov_b32 s{CNT}, 5\n{lp}:")
    for k in range(1,5):
        if (CFG['cal'] and CFG['cal'][0]=='it%d'%(2*k)) or (CFG['amp'] and 'it%d'%(2*k) in CFG['amp'][:2]) or (CFG['prof'] and any('it%d'%(2*k) in n.split('|') for n in CFG['st'])):
            sk=p.lab("its"); p(f"s_cmp_lg_u32 s{CNT}, {5-k}\ns_cbranch_scc1 {sk}"); STAMP('it%d'%(2*k)); p(f"{sk}:")
    for par in range(2):
        for s in range(4):
            buf=s&1
            last=(s==3)
            M=mfmas(kind,buf)
            if CFG['nomfma']: M=M[:1]
            if last and par==1:
                pre=[f"v_xor_b32 v{aX+i}, 0x10000, v{aX+i}" for i in range(4)]+[f"v_xor_b32 v{aW+i}, 0x10000, v{aW+i}" for i in range(2)]
            else: pre=[]
            R=reads(kind,buf^1,(par^1) if last else par,(s+1)&3)
            p("s_waitcnt lgkmcnt(0)")
            if last:
                p(M.pop(0))
                for x in pre: p(x)
                if par==0:
                    w1=p.lab("cw"); w2=p.lab("cwr")
                    p(f"s_cmp_eq_u32 s{CNT}, {5-CFG['clr']}\ns_cbranch_scc1 {w1}\n{w2}:")
                    COLD.append(f"{w1}:\ns_waitcnt vmcnt(0)\ns_branch {w2}")
                p("s_barrier")
                if par==0 and kind!='S': p(f"s_cmp_eq_u32 s{CNT}, s{CNT+2}\ns_cbranch_scc1 {hl}\n{hr}:")
            k=0
            while M or R:
                if R: p(R.pop(0))
                if R: p(R.pop(0))
                if M: p(M.pop(0))
    p(f"""s_sub_u32 s{CNT}, s{CNT}, 1
    s_cmp_lg_u32 s{CNT}, 0
    s_cbranch_scc1 {lp}""")
    STAMP('gend')
def bf16r(dst,src):
    p(f"v_cvt_pk_bf16_f32 v{dst}, v{src}, v{src}\nv_and_b32 v{dst}, 0xffff0000, v{dst}")
def mode_read():
    p(f"""v_mov_b32 v{vT+8}, {L_MODE}
    ds_read_b32 v{vT+9}, v{vT+8}""")
def mode_get():
    p(f"v_readfirstlane_b32 s{sMODE}, v{vT+9}")
def dual(stores):
    sl=p.lab("slow"); jn=p.lab("jn")
    p(f"s_cmp_lg_u32 s{sMODE}, 0\ns_cbranch_scc1 {sl}")
    for s in stores: p(s)
    p(f"s_branch {jn}\n{sl}:")
    for s in stores: p(s+" sc1")
    p(f"{jn}:")
def idle_gemm():
    vt=10; aI=20; acc=28; one=32; D=64; A=sT+10
    p(f"""s_lshl_b32 s{A}, s{sWR_}, 13
    v_bfe_u32 v{vt}, v0, 1, 3
    v_lshlrev_b32 v{vt}, 4, v{vt}
    v_lshl_add_u32 v{vt}, v0, 7, v{vt}
    v_add_u32 v{aI}, s{A}, v{vt}
    v_mov_b32 v{one}, 0x3f803f80
    s_lshl_b32 s{A}, s{sG}, 2
    s_add_u32 s{A}, s{A}, s{sRB}
    s_lshl_b32 s{A}, s{A}, 14
    s_lshl_b32 s{A+1}, s{sWR_}, 10
    s_add_u32 s{A}, s{A}, s{A+1}
    s_add_u32 s{A}, s{A}, {STP+7*2048}
    v_lshlrev_b32 v{vt}, 4, v0""")
    for i in range(1,8): p(f"v_xor_b32 v{aI+i}, {16*i}, v{aI}")
    for i in range(4): p(f"v_mov_b32 v{acc+i}, 0")
    assert CFG['clr']==0
    for c in range(11):
        if c==1: p("s_waitcnt vmcnt(0)")
        p("s_barrier")
        if c<3:
            if c==2:
                for i in range(8): p(f"v_add_u32 v{aI+i}, 0x10000, v{aI+i}")
            for i in range(8): p(f"ds_read_b128 {vr(D+4*i,4)}, v{aI+i} offset:{(c&1)*32768}")
            for i in range(8):
                p(f"s_waitcnt lgkmcnt({7-i})")
                for j in range(4):
                    r=D+4*i+j
                    p(f"v_dot2_f32_bf16 v{acc+(j&1)}, v{r}, v{one}, v{acc+(j&1)}\nv_dot2_f32_bf16 v{acc+2+(j&1)}, v{r}, v{r}, v{acc+2+(j&1)}")
        if c==2: p(f"""s_nop 1
            v_add_f32 v{acc}, v{acc}, v{acc+1}
            v_add_f32 v{acc+1}, v{acc+2}, v{acc+3}
            v_mov_b32 v{acc+2}, s{sTAG}
            buffer_store_dwordx4 {vr(acc,4)}, v{vt}, {S4(sWS)}, s{A} offen sc1""")
    p("s_barrier")
    mode_read()
    p(f"v_mov_b32 v{vT}, 2\nds_write_b32 v{aSG+1}, v{vT}")
    p("s_waitcnt lgkmcnt(0)")
    mode_get()
def gemm_epi(kind):
    t=vT; A=sT+10
    AU=20
    WA=24
    XA=28
    RS=32
    p(f"""v_and_b32 v{t}, 31, v0
    s_lshl_b32 s{A}, s{sWC}, 1
    s_or_b32 s{A}, s{A}, s{sWR_}
    s_lshl_b32 s{A}, s{A}, 7
    s_add_u32 s{A}, s{A}, {L_CS}
    v_lshl_add_u32 v{t+1}, v{t}, 2, s{A}
    s_lshl_b32 s{A}, s{sWR_}, 9
    s_add_u32 s{A}, s{A}, {L_SA}
    v_lshl_add_u32 v{t+3}, v{t}, 3, s{A}
    ds_write_b32 v{t+1}, v{CS}
    v_xor_b32 v{t+2}, 128, v{t+1}
    v_mov_b32 v{WA+1}, 0
    v_mov_b32 v{WA+3}, 0
    v_mov_b32 v{XA+1}, 0
    v_mov_b32 v{XA+3}, 0""")
    if kind=='V':
        p(f"""v_lshrrev_b32 v{t+4}, 5, v0
        s_lshl_b32 s{A}, s{sWR_}, 8
        s_add_u32 s{A}, s{A}, {L_SR}
        v_lshl_add_u32 v{t+4}, v{t+4}, 4, s{A}""")
    p("s_waitcnt lgkmcnt(0)\ns_barrier")
    STAMP('E1',1)
    p(f"""ds_read_b32 v{CS+1}, v{t+2}
    ds_read_b64 v[{AU}:{AU+1}], v{t+3}
    ds_read_b64 v[{AU+2}:{AU+3}], v{t+3} offset:256""")
    mode_read()
    if kind=='V':
        for xb in range(2):
            for i in range(4): p(f"ds_read_b128 {vr(RS+16*xb+4*i,4)}, v{t+4} offset:{xb*128+i*32}")
    def split(cb):
        c=CS+cb
        p(f"""v_cndmask_b32 v{c}, 0, v{c}, s[{sLO}:{sLO+1}]
        v_cvt_pk_bf16_f32 v{t+5}, v{c}, v{c}
        v_and_b32 v{t+5}, 0xffff0000, v{t+5}
        v_sub_f32 v{t+6}, v{c}, v{t+5}
        v_cvt_pk_bf16_f32 v{WA+2*cb}, v{t+5}, v{t+6}""")
    split(0)
    p(f"s_waitcnt lgkmcnt({8 if kind=='V' else 0})")
    split(1)
    p(f"v_mov_b32 v{XA}, v{AU}\nv_mov_b32 v{XA+2}, v{AU+2}")
    mode_get()
    if kind=='T':
        p(f"""s_cmp_eq_u32 s{sTY}, 0
        s_cselect_b32 s{A}, {hex(f2u(20**-0.5*math.log2(math.e)))}, 1.0
        v_mul_f32 v{AU+1}, s{A}, v{AU+1}
        v_mul_f32 v{AU+3}, s{A}, v{AU+3}""")
    else: p("s_nop 0")
    for xb in range(2):
        for cb in range(2):
            a=ACC+16*(2*xb+cb); X=vr(XA+2*xb,2); W=vr(WA+2*cb,2)
            p(f"v_mfma_f32_32x32x8_bf16 {vr(a,16)}, {W if kind=='T' else X}, {X if kind=='T' else W}, {vr(a,16)}")
    p("s_waitcnt lgkmcnt(0)\ns_nop 7")
    allst=[]
    for xb in range(2):
        st=[]
        for cb in range(2):
            a=ACC+16*(2*xb+cb)
            for k in range(8):
                if kind=='T': p(f"v_pk_mul_f32 {vr(a+2*k,2)}, {vr(a+2*k,2)}, {vr(AU+2*xb,2)} op_sel:[0,1] op_sel_hi:[1,1]")
                else: p(f"v_pk_mul_f32 {vr(a+2*k,2)}, {vr(a+2*k,2)}, {vr(RS+16*xb+2*k,2)}")
            for k in range(8): p(f"v_cvt_pk_bf16_f32 v{a+k}, v{a+2*k}, v{a+2*k+1}")
            if kind=='T':
                p(f"""v_permlane32_swap_b32 v{a}, v{a+2}
                v_permlane32_swap_b32 v{a+1}, v{a+3}
                v_permlane32_swap_b32 v{a+4}, v{a+6}
                v_permlane32_swap_b32 v{a+5}, v{a+7}""")
            for h in range(2):
                st.append(f"buffer_store_dwordx4 {vr(a+4*h,4)}, v{aST+2*cb+h}, {S4(sWS)}, s{sSO2 if xb else sSO} offen")
                allst.append(a+4*h)
        dual(st)
        nh=p.lab("nohalo")
        p(f"s_cmp_eq_u32 s{sHALO}, 0\ns_cbranch_scc1 {nh}")
        for i in range(4*xb,4*xb+4): p(f"ds_write_b128 v{aSG}, {vr(allst[i],4)} offset:{L_STG+i*1024}")
        if xb==0: p(f"v_mov_b32 v{t}, {xb+1}\nds_write_b32 v{aSG+1}, v{t}\n{nh}:")
        else: p(f"{nh}:\nv_mov_b32 v{t}, {xb+1}\nds_write_b32 v{aSG+1}, v{t}")
    STAMP('st')
    p(f"""v_mov_b32 v{t}, 0
    v_mov_b32 v{t+1}, s{sTAG}
    s_waitcnt vmcnt(0)
    s_mov_b64 exec, 1""")
    dual([f"buffer_store_dword v{t+1}, v{t}, {S4(sWS)}, s{sFO} offen"])
    p(f"s_mov_b64 exec, -1")
    STAMP('fl')
import struct
def f2u(x): return struct.unpack("<I",struct.pack("<f",x))[0]

aLin,aTl,aKm,aKt,aV,aFl,aO=20,21,22,23,24,25,26
QM=[28,34]; QT=[32,38]; PP=40
KM=[48,62]; KT=[52,66]; VV=[[54,58],[68,72]]
SS=[80,96]; OO=[112,128]; CD=144; CF=160
sQ=[sT+9,sT+10]; sOm=[sT+11,sT+12]; sOt=[sT+13,sT+14]; sOSC=sT+15; sFB=sT+16
NINF="0xff800000"
def att_pro():
    t=vT; A=sT+7; B=sT+8; C=sT+17; sF=sT
    wo_pre1()
    att_ids()
    flag_addr(aFl,t,1,A,B,C)
    p(f"""s_lshl_b32 s{sF}, s{sG}, 11
    s_lshl_b32 s{A}, s{sHF}, 4
    s_add_u32 s{sF}, s{sF}, s{A}
    s_add_u32 s{sF}, s{sF}, {FL}
    buffer_load_dword v{t+10}, v{aFl}, {S4(sWS)}, s{sF} offen sc1
    s_mov_b32 s{sK1024}, 1024""")
    kv_addr(aLin,aTl,t)
    p(f"""v_add_u32 v{aKm}, {L_KV}, v{aLin}
    v_and_b32 v{t}, 31, v0
    v_lshrrev_b32 v{t+1}, 5, v0
    v_xor_b32 v{t+2}, s{sHO}, v{t+1}
    v_lshlrev_b32 v{t+2}, 3, v{t+2}
    v_lshl_add_u32 v{t+2}, v{t}, 4, v{t+2}
    v_add_u32 v{aKt}, {L_KV+2048}, v{t+2}
    v_mul_u32_u24 v{t+2}, 320, v{t+1}
    v_lshl_add_u32 v{t+2}, v{t}, 4, v{t+2}
    v_add_u32 v{aV}, {L_KV+3072}, v{t+2}
    v_lshlrev_b32 v{t+2}, 2, v{t+1}
    v_sub_u32 v{t+2}, v{t}, v{t+2}
    v_mov_b32 v{t+3}, {NINF}""")
    for i in range(16):
        m=C+1+2*(i%2)+((C+1)%2)
        ri=8*(i>>2)+(i&3)
        p(f"v_cmp_le_i32 s[{m}:{m+1}], {ri}, v{t+2}")
        if i>0:
            m2=C+1+2*((i-1)%2)+((C+1)%2)
            if i==1: p("s_nop 0")
            p(f"v_cndmask_b32 v{CD+i-1}, v{t+3}, 0, s[{m2}:{m2+1}]\nv_cndmask_b32 v{CF+i-1}, 0, v{t+3}, s[{m2}:{m2+1}]")
    p(f"""s_nop 0
    v_cndmask_b32 v{CD+15}, v{t+3}, 0, s[{m}:{m+1}]
    v_cndmask_b32 v{CF+15}, 0, v{t+3}, s[{m}:{m+1}]
    v_cmp_eq_u32 s[{m}:{m+1}], 20, v{t}
    v_cmp_eq_u32 vcc, 24, v{t}
    v_mov_b32 v{t+4}, 0x3f803f80
    s_or_b64 vcc, vcc, s[{m}:{m+1}]""")
    for b_ in range(2):
        for mm in range(2):
            for r in range(4): p(f"v_cndmask_b32 v{VV[b_][mm]+r}, 0, v{t+4}, vcc")
    for q in range(2): p(f"v_mov_b32 v{QT[q]}, 0\nv_mov_b32 v{QT[q]+1}, 0")
    p(f"""v_bfe_u32 v{t+2}, v0, 4, 1
    v_mul_u32_u24 v{t+2}, 20480, v{t+2}
    v_lshl_add_u32 v{t+2}, v{t+1}, 8, v{t+2}
    v_and_b32 v{t+3}, 15, v0
    v_lshl_add_u32 v{aO}, v{t+3}, 4, v{t+2}
    s_cmp_lg_u32 s{sHF}, s{sHH}
    s_cselect_b32 s{sOSC}, 1, s{sMODE}
    s_mov_b32 s{sFB}, 0
    s_lshl_b32 s{A}, s{sWAVE}, 1
    s_sub_u32 s{A}, 7, s{A}
    v_mul_u32_u24 v{t+2}, s{A}, v0
    s_add_u32 s{A}, s{sT0}, s{sWAVE}
    v_add_lshl_u32 v{aFO}, v{t+2}, s{A}, 12
    s_lshl_b32 s{A}, s{sHD}, 7
    s_add_u32 s{A}, s{A}, {FO}
    v_add_u32 v{aFO}, s{A}, v{aFO}
    s_mul_i32 s{C}, s{sMODE}, {OB2-OB}
    s_add_u32 s{C}, s{C}, {OB}""")
    for q in range(2):
        if q==0: p(f"s_add_u32 s{A}, s{sT0}, 7\ns_sub_u32 s{A}, s{A}, s{sWAVE}")
        else: p(f"s_add_u32 s{A}, s{sT0}, s{sWAVE}")
        p(f"""s_mul_i32 s{sQ[q]}, s{A}, 2560
        s_mul_i32 s{B}, s{sPH}, {64*2560}
        s_add_u32 s{sQ[q]}, s{sQ[q]}, s{B}
        s_mul_i32 s{A}, s{A}, 40960
        s_mul_i32 s{B}, s{sPH}, 1280
        s_add_u32 s{A}, s{A}, s{B}
        s_add_u32 s{A}, s{A}, s{C}
        s_mul_i32 s{B}, s{sHO}, 768
        s_add_u32 s{sOm[q]}, s{A}, s{B}
        s_lshl_b32 s{B}, s{sHO}, 3
        s_add_u32 s{sOt[q]}, s{A}, s{B}""")
    sK=C+1; sV=C+2; sL=C+3
    p(f"""s_lshl_b32 s{A}, s{sWAVE}, 1
    s_add_u32 s{A}, s{A}, s{sT0}
    s_mul_i32 s{sK}, s{A}, 2560
    s_mul_i32 s{sV}, s{A}, 1280
    s_mul_i32 s{A}, s{sPH}, {64*2560}
    s_add_u32 s{sK}, s{sK}, s{A}
    s_add_u32 s{sK}, s{sK}, {KB}
    s_mul_i32 s{A}, s{sHD}, 81920
    s_add_u32 s{sV}, s{sV}, s{A}
    s_add_u32 s{sV}, s{sV}, {VB}
    s_mul_i32 s{sL}, s{sWAVE}, 5632
    s_add_u32 s{sL}, s{sL}, {L_KV+4*5632}
    s_mul_i32 s{A}, s{sHO}, 1536
    v_add_u32 v{t+2}, s{A}, v{aLin}
    s_lshl_b32 s{A}, s{sHO}, 3
    v_add_u32 v{t+3}, s{A}, v{aLin}""")
    p("s_waitcnt vmcnt(1)")
    wo_pre2()
    flag_poll(aFl,t+10,sF,C,first=False)
    STAMP('fseen')
    kv_dma(aLin,aTl,sK,sV,sL,A,B)
    for q in range(2): p(f"buffer_load_dwordx4 {vr(QM[q],4)}, v{t+2}, {S4(sWS)}, s{sQ[q]} offen sc1")
    p(f"s_mov_b64 exec, s[{sLO}:{sLO+1}]")
    for q in range(2): p(f"buffer_load_dwordx2 {vr(QT[q],2)}, v{t+3}, {S4(sWS)}, s{sQ[q]} offen offset:1024 sc1")
    p(f"""s_mov_b64 exec, 1
    v_mov_b32 v{t}, {F_G1}
    v_mov_b32 v{t+1}, 1
    s_waitcnt vmcnt(4)
    ds_add_u32 v{t}, v{t+1}
    s_mov_b64 exec, -1
    v_mov_b32 v{aFl}, {F_G1}""")
    lds_wait(aFl,t+5,C,'gt',4,0)
    p(f"s_waitcnt vmcnt(0)")
    STAMP('kv')
    p(f"""s_cmp_eq_u32 s{sWAVE}, 1
    s_cbranch_scc1 L_av1
    s_cmp_eq_u32 s{sWAVE}, 2
    s_cbranch_scc1 L_av2
    s_cmp_eq_u32 s{sWAVE}, 3
    s_cbranch_scc1 L_av3""")
def kreads(n,b_):
    o=(n>>1)*5632
    return [f"ds_read_b128 {vr(KM[b_],4)}, v{aKm} offset:{o+(n&1)*1024}", f"ds_read_b64 {vr(KT[b_],2)}, v{aKt} offset:{o+(n&1)*512}"]
def vreads(n,b_):
    o=(n>>1)*5632+(n&1)*1280
    return [f"s_mov_b64 exec, s[{sLO+2}:{sLO+3}]", f"ds_read_b128 {vr(VV[b_][0],4)}, v{aV} offset:{o}", f"ds_read_b128 {vr(VV[b_][1],4)}, v{aV} offset:{o+640}", "s_mov_b64 exec, -1"]
def att_variant(w):
    U=[]
    for n in range(15-w,8+w,-1): U.append((0,n))
    for n in range(8+w,6-w,-1): U+= [(0,n),(1,n)]
    for n in range(6-w,w-1,-1): U.append((1,n))
    assert len(U)==18
    diag=[15-w,8+w]
    tiles=[]; tau=[]
    for q,n in U:
        if not tiles or tiles[-1]!=n: tiles.append(n)
        tau.append(len(tiles)-1)
    first=[tau.index(i) for i in range(len(tiles))]
    started=[0,0]
    def QK(u):
        q,n=U[u]; b_=tau[u]&1; S=vr(SS[u&1],16)
        c=vr(CD,16) if n==diag[q] else (vr(CF,16) if n==diag[q]-8 else "0")
        return [f"v_mfma_f32_32x32x16_bf16 {S}, {vr(KM[b_],4)}, {vr(QM[q],4)}, {c}", f"v_mfma_f32_32x32x8_bf16 {S}, {vr(KT[b_],2)}, {vr(QT[q],2)}, {S}"]
    def PV(u,m):
        q,n=U[u]; O=vr(OO[q],16)
        c=O if started[q] else "0"; started[q]=1
        return f"v_mfma_f32_32x32x16_bf16 {O}, {vr(VV[tau[u]&1][m],4)}, {vr(PP+4*m,4)}, {c}"
    p(f"L_av{w}:")
    for i,f in enumerate(first):
        if f<=1:
            for x in kreads(tiles[i],i&1): p(x)
    for x in vreads(tiles[0],0): p(x)
    p("s_waitcnt lgkmcnt(0)")
    for x in QK(0): p(x)
    p("s_nop 7\ns_nop 3")
    pend=False
    H=first[tiles.index(7)]
    for u in range(18):
        S=SS[u&1]
        e=lambda i: p(f"v_exp_f32 v{S+i}, v{S+i}")
        c=lambda k: p(f"v_cvt_pk_bf16_f32 v{PP+k}, v{S+2*k}, v{S+2*k+1}")
        kr=[x for i,f in enumerate(first) if f==u+2 for x in kreads(tiles[i],i&1)]
        vr_=[x for i,f in enumerate(first) if f==u+1 for x in vreads(tiles[i],i&1)]
        late=(u+2==H)
        STAMP('u%d'%u)
        e(0); e(1)
        if u>0: p(PV(u-1,1))
        e(2)
        if not late:
            for x in kr: p(x)
        if u+3==H: p(f"ds_read_b32 v{vT}, v{aFl} offset:{F_G2-F_G1}")
        e(3); c(0); c(1)
        if pend: p("s_waitcnt lgkmcnt(0)") if not (kr and not late) and u+3!=H else p(f"s_waitcnt lgkmcnt({(len(kr) if not late else 0)+(1 if u+3==H else 0)})")
        qk=QK(u+1) if u<17 else [None,None]
        if qk[0]: p(qk[0])
        e(4)
        if late:
            p(f"v_cmp_gt_u32 vcc, 2, v{vT}")
        e(5)
        if late:
            p(f"s_cbranch_vccnz L_g2w{w}\nL_g2r{w}:")
            for x in kr: p(x)
        for x in vr_: p(x)
        e(6); e(7); c(2); c(3)
        if qk[1]: p(qk[1])
        e(8); e(9); e(10); e(11)
        p(PV(u,0))
        c(4); c(5); e(12); e(13); e(14); e(15); c(6); c(7)
        pend=bool(kr or vr_ or u+3==H)
        if u==H-1:
            p(f"s_cmp_eq_u32 s{sT0}, 0\ns_cbranch_scc1 L_ex{w}")
            exq=PV(u,1)
    p("s_nop 1")
    p(PV(17,1))
    p("s_branch L_afin")
    p(f"L_g2w{w}:")
    p(f"v_mov_b32 v{vT+1}, {F_G2}")
    lds_wait(vT+1,vT,sT+17,'gt',2,1)
    p(f"s_branch L_g2r{w}\nL_ex{w}:\n{exq}\ns_branch L_afin")
def att_fin():
    t=vT; A=sT+7
    p("L_afin:")
    STAMP('aend')
    p(f"s_mov_b32 s{A}, {hex(f2u(2.0**-40))}\ns_mov_b32 s{A+1}, {hex(f2u(2.0**40)-f2u(2.0**-40))}")
    for q in range(2):
        O=OO[q]
        p(f"""v_cndmask_b32 v{t}, v{O+8}, v{O+12}, s[{sLO}:{sLO+1}]
        v_pk_add_f32 v[{t+2}:{t+3}], v[{O}:{O+1}], v[{O+2}:{O+3}]
        v_rcp_f32 v{t+1}, v{t}
        v_pk_add_f32 v[{t+4}:{t+5}], v[{O+4}:{O+5}], v[{O+6}:{O+7}]
        v_pk_add_f32 v[{t+6}:{t+7}], v[{O+8}:{O+9}], v[{O+10}:{O+11}]
        v_subrev_u32 v{t}, s{A}, v{t}
        v_pk_add_f32 v[{t+2}:{t+3}], v[{t+2}:{t+3}], v[{t+4}:{t+5}]
        v_cmp_lt_u32 s[{A+11}:{A+12}], s{A+1}, v{t}
        v_pk_add_f32 v[{t+2}:{t+3}], v[{t+2}:{t+3}], v[{t+6}:{t+7}]
        v_add_f32 v{t+2}, v{t+2}, v{t+3}""")
        p(f"v_cmp_class_f32 vcc, v{t+2}, v{aCLS}")
        for k in range(6): p(f"v_pk_mul_f32 {vr(O+2*k,2)}, {vr(O+2*k,2)}, {vr(t,2)} op_sel:[0,1] op_sel_hi:[1,1]")
        p(f"""s_or_b64 vcc, vcc, s[{A+11}:{A+12}]
        s_cbranch_scc1 L_afb{q}
        L_afr{q}:""")
        for k in range(6): p(f"v_cvt_pk_bf16_f32 v{O+k}, v{O+2*k}, v{O+2*k+1}")
        p(f"s_cmp_lg_u32 s{sOSC}, 0")
        st=[f"buffer_store_dwordx4 {vr(O,4)}, v{aO}, {S4(sWS)}, s{sOm[q]} offen", f"s_mov_b64 exec, s[{sLO}:{sLO+1}]",
            f"buffer_store_dwordx2 {vr(O+4,2)}, v{aO}, {S4(sWS)}, s{sOt[q]} offen offset:512", "s_mov_b64 exec, -1"]
        p(f"s_cbranch_scc1 L_osc{q}")
        for x in st: p(x)
        p(f"s_branch L_osr{q}\nL_osc{q}:")
        for x in st: p(x+(" sc1" if x.startswith("buffer") else ""))
        p(f"L_osr{q}:")
    p(f"""v_mov_b32 v{t}, {F_DONE}
    v_mov_b32 v{t+1}, 1
    s_mov_b64 exec, 1
    ds_add_u32 v{t}, v{t+1}
    s_mov_b64 exec, -1""")
    STAMP('ost')
aCLS=27; aFO=226; aFR=227
def att_cold():
    t=vT; A=sT+7; B=sT+8; N=sT+17; J=sT+18; CN=sT+19; PA=sT+20
    for q in range(2): p(f"L_afb{q}:\ns_cmp_lg_u32 s{sFB}, 0\ns_cbranch_scc1 L_afr{q}\ns_branch L_afb")
    p(f"L_afb:\ns_mov_b32 s{sFB}, 1\ns_waitcnt lgkmcnt(0)")
    S=SS[0]; MX=t+10; xa=t+11
    for q in range(2):
        lp=p.lab("fb"); nd=p.lab("fbnd"); nf=p.lab("fbnf"); p2=p.lab("fbp2"); nx=p.lab("fbnx"); ps=p.lab("fbps"); dn=p.lab("fbdn")
        for r in range(16): p(f"v_mov_b32 v{OO[q]+r}, 0")
        p(f"""v_mov_b32 v{MX}, {NINF}
        s_mov_b32 s{PA}, 0
        {ps}:""")
        if q==0: p(f"s_sub_u32 s{N}, 15, s{sWAVE}")
        else: p(f"s_add_u32 s{N}, 8, s{sWAVE}")
        p(f"""s_sub_u32 s{CN}, s{N}, 7
        s_cmp_eq_u32 s{sT0}, 0
        s_cselect_b32 s{CN}, s{CN}, 9
        s_mov_b32 s{J}, 0
        {lp}:
        s_lshr_b32 s{A}, s{N}, 1
        s_mul_i32 s{A}, s{A}, 5632
        s_and_b32 s{B}, s{N}, 1
        s_lshl_b32 s{sT+21}, s{B}, 10
        s_add_u32 s{sT+21}, s{sT+21}, s{A}
        v_add_u32 v{xa}, s{sT+21}, v{aKm}
        s_lshl_b32 s{sT+21}, s{B}, 9
        s_add_u32 s{sT+21}, s{sT+21}, s{A}
        v_add_u32 v{xa+1}, s{sT+21}, v{aKt}
        s_mul_i32 s{B}, s{B}, 1280
        s_add_u32 s{A}, s{A}, s{B}
        v_add_u32 v{xa+2}, s{A}, v{aV}
        ds_read_b128 {vr(KM[0],4)}, v{xa}
        ds_read_b64 {vr(KT[0],2)}, v{xa+1}
        s_mov_b64 exec, s[{sLO+2}:{sLO+3}]
        ds_read_b128 {vr(VV[0][0],4)}, v{xa+2}
        ds_read_b128 {vr(VV[0][1],4)}, v{xa+2} offset:640
        s_mov_b64 exec, -1
        s_waitcnt lgkmcnt(0)
        v_mfma_f32_32x32x16_bf16 {vr(S,16)}, {vr(KM[0],4)}, {vr(QM[q],4)}, 0
        v_mfma_f32_32x32x8_bf16 {vr(S,16)}, {vr(KT[0],2)}, {vr(QT[q],2)}, {vr(S,16)}
        v_mov_b32 v{xa}, {NINF}
        s_nop 11
        s_cmp_lg_u32 s{J}, 0
        s_cbranch_scc1 {nd}""")
        for r in range(16): p(f"v_cmp_eq_u32 vcc, 0, v{CD+r}\ns_nop 1\nv_cndmask_b32 v{S+r}, v{xa}, v{S+r}, vcc")
        p(f"{nd}:\ns_cmp_lg_u32 s{J}, 8\ns_cbranch_scc1 {nf}")
        for r in range(16): p(f"v_cmp_eq_u32 vcc, 0, v{CF+r}\ns_nop 1\nv_cndmask_b32 v{S+r}, v{xa}, v{S+r}, vcc")
        p(f"{nf}:\ns_cmp_lg_u32 s{PA}, 0\ns_cbranch_scc1 {p2}")
        for r in range(0,16,2): p(f"v_max3_f32 v{MX}, v{S+r}, v{S+r+1}, v{MX}")
        p(f"s_branch {nx}\n{p2}:")
        for r in range(16): p(f"v_sub_f32 v{S+r}, v{S+r}, v{MX}")
        for r in range(16): p(f"v_exp_f32 v{S+r}, v{S+r}")
        p("s_nop 0")
        for k in range(8): p(f"v_cvt_pk_bf16_f32 v{PP+k}, v{S+2*k}, v{S+2*k+1}")
        p("s_nop 1")
        for m in range(2): p(f"v_mfma_f32_32x32x16_bf16 {vr(OO[q],16)}, {vr(VV[0][m],4)}, {vr(PP+4*m,4)}, {vr(OO[q],16)}")
        p(f"""s_nop 11
        {nx}:
        s_sub_u32 s{N}, s{N}, 1
        s_add_u32 s{J}, s{J}, 1
        s_cmp_lt_u32 s{J}, s{CN}
        s_cbranch_scc1 {lp}
        s_cmp_lg_u32 s{PA}, 0
        s_cbranch_scc1 {dn}
        v_mov_b32 v{xa}, v{MX}
        s_mov_b32 s{PA}, 1
        s_nop 0
        v_permlane32_swap_b32 v{xa}, v{MX}
        s_nop 1
        v_max_f32 v{MX}, v{MX}, v{xa}
        s_branch {ps}
        {dn}:""")
    p("s_branch L_afin")

BF=28; AF=108; WACC=200; XR=176; WR_=186; aX2=196; aPS=197; aAL=198; aAR=199; SW=220; SELF=221; aPR=222; aKY=223; aCD=224
HP=40; HF_=50; LP=70; OP=80
sRT=sT+1; sOL=sT+2; sOR=sT+5; sXO=sT+11; sPSO=sT+12; sRETRY=sT+13; sPRB=sT+14; sFLO=sT+16; sFRE=sT+18
def acc_init():
    for k in range(10): p(f"v_lshlrev_b32 v{WACC+2*k}, 16, v{XR+k}\nv_and_b32 v{WACC+2*k+1}, 0xffff0000, v{XR+k}")
def wo_pre1():
    t=vT; A=sT+7; B=sT+8
    wo_ids()
    p(f"""v_and_b32 v{t}, 15, v0
    v_lshrrev_b32 v{t+1}, 4, v0
    v_mul_u32_u24 v{t+2}, 40, v{t+1}
    v_mov_b32 v{t+3}, 1280
    v_mad_u32_u24 v{aX2}, v{t}, v{t+3}, v{t+2}
    s_lshl_b32 s{A}, s{sBLK}, 2
    s_add_u32 s{A}, s{A}, s{sWAVE}
    s_mul_i32 s{A}, s{A}, 20480
    s_mul_i32 s{B}, s{sJ}, 160
    s_add_u32 s{A}, s{A}, s{B}
    buffer_load_dwordx4 {vr(XR,4)}, v{aX2}, {S4(sX)}, s{A} offen
    buffer_load_dwordx4 {vr(XR+4,4)}, v{aX2}, {S4(sX)}, s{A} offen offset:16
    buffer_load_dwordx2 {vr(XR+8,2)}, v{aX2}, {S4(sX)}, s{A} offen offset:32
    buffer_load_dwordx4 {vr(WR_,4)}, v{t+2}, {S4(sWR)}, s{B} offen
    buffer_load_dwordx4 {vr(WR_+4,4)}, v{t+2}, {S4(sWR)}, s{B} offen offset:16
    buffer_load_dwordx2 {vr(WR_+8,2)}, v{t+2}, {S4(sWR)}, s{B} offen offset:32
    v_lshlrev_b32 v{aPS}, 7, v{t}
    v_lshl_add_u32 v{aPS}, v{t+1}, 5, v{aPS}
    v_lshlrev_b32 v{aFR}, 7, v{t}
    v_mul_u32_u24 v{t+2}, 640, v{t+1}
    v_bfe_u32 v{t+3}, v0, 2, 2
    v_mul_u32_u24 v{t+3}, 160, v{t+3}
    v_and_b32 v{t+4}, 3, v0
    v_mul_u32_u24 v{t+4}, 40, v{t+4}
    v_add3_u32 v{t+2}, v{t+2}, v{t+3}, v{t+4}
    s_mul_i32 s{A}, s{sHH}, 51200
    s_add_u32 s{B}, s{A}, {L_WO}
    v_add_u32 v{aAL}, s{B}, v{t+2}
    s_sub_u32 s{B}, {L_WO+51200}, s{A}
    v_add_u32 v{aAR}, s{B}, v{t+2}
    v_and_b32 v{t+2}, 7, v0
    v_mul_u32_u24 v{t+2}, 1280, v{t+2}
    v_bfe_u32 v{t+3}, v0, 3, 1
    v_lshl_add_u32 v{aPR}, v{t+3}, 7, v{t+2}""")
def wo_pre2():
    acc_init()
def probe(soff,cnt,first=True):
    t=vT
    lp=p.lab("pb"); ok=p.lab("pbok"); md=p.lab("pbm")
    p(f"s_mov_b32 s{cnt}, {SPIN}")
    if not first: p(f"s_branch {md}")
    p(f"""{lp}:
    buffer_load_dwordx3 v[{t+4}:{t+6}], v{aPR}, {S4(sWS)}, s{soff} offen offset:512 sc1""")
    if not first: p(f"{md}:")
    p(f"""s_waitcnt vmcnt(0)
    v_max_u32 v{t+4}, v{t+4}, v{t+6}
    v_cmp_eq_u32 vcc, -1, v{t+4}
    s_nop 0
    s_cbranch_vccz {ok}""")
    spin(cnt,lp,ok)
    p(f"s_branch {lp}\n{ok}:")
def red3(a,b,c,d):
    p(f"""v_mov_b32 v{d}, v{c}
    s_nop 0
    v_permlane32_swap_b32 v{a}, v{b}
    v_permlane32_swap_b32 v{c}, v{d}
    s_nop 0
    v_add_f32 v{a}, v{a}, v{b}
    v_add_f32 v{c}, v{c}, v{d}
    s_nop 1
    v_permlane16_swap_b32 v{a}, v{c}
    s_nop 0
    v_add_f32 v{a}, v{a}, v{c}
    v_add_f32 v{c}, v{a}, 0
    s_nop 1
    v_permlane16_swap_b32 v{a}, v{c}
    s_nop 0
    v_mov_b32 v{b}, v{a}
    s_nop 1
    v_permlane32_swap_b32 v{a}, v{b}""")
def wo_main():
    t=vT; A=sT+7; B=sT+8; C=sT+17; MXS=t+8
    wo_ids()
    p(f"""s_lshl_b32 s{sRT}, s{sBLK}, 2
    s_add_u32 s{sRT}, s{sRT}, s{sWAVE}
    s_mul_i32 s{A}, s{sRT}, 20480
    s_mul_i32 s{B}, s{sJ}, 160
    s_add_u32 s{sXO}, s{A}, s{B}
    s_mul_i32 s{B}, s{sMODE}, {OB2-OB}
    s_add_u32 s{A}, s{A}, s{B}
    s_add_u32 s{A}, s{A}, {OB}
    s_mul_i32 s{B}, s{sHH}, 10240
    s_add_u32 s{sOL}, s{A}, s{B}
    s_add_u32 s{sOL+1}, s{sOL}, 4096
    s_add_u32 s{sOL+2}, s{sOL}, 8192
    s_add_u32 s{A}, s{A}, 10240
    s_sub_u32 s{sOR}, s{A}, s{B}
    s_lshl_b32 s{sPSO}, s{sRT}, 11
    s_add_u32 s{sPSO}, s{sPSO}, {PS}
    s_mov_b32 s{sRETRY}, {1<<16}
    s_add_u32 s{sOR+1}, s{sOR}, 4096
    s_add_u32 s{sPRB}, s{sOR}, 8192
    s_lshr_b32 s{A}, s{sRT}, 1
    s_lshl_b32 s{A}, s{A}, 12
    s_lshl_b32 s{B}, s{sHH}, 11
    s_add_u32 s{A}, s{A}, {FO}
    s_add_u32 s{sFLO}, s{A}, s{B}
    s_xor_b32 s{sFRE}, s{sFLO}, 2048
    v_mov_b32 v{t}, {F_WOR}
    v_mov_b32 v{t+1}, s{sTAG}
    s_cmp_eq_u32 s{sOSC}, 0
    s_cbranch_scc1 L_nofo
    s_mov_b64 exec, 3
    s_waitcnt vmcnt(0)
    buffer_store_dword v{t+1}, v{aFO}, {S4(sWS)}, 0 offen sc1
    s_mov_b64 exec, -1
    L_nofo:""")
    STAMP('fo')
    lds_wait(t,t+1,C,'gt',2,0)
    p(f"""ds_read_b32 v{SW}, v{t} offset:{L_SWS-F_WOR}
    L_wo:""")
    STAMP('wor')
    sROFF=[sOR,sOR+1,sPRB]
    LA=CFG['wla']; WE=CFG['wwe']
    LG=[]
    def af(m): return AF+4*(m%15)
    def aread(m):
        s_,t_=divmod(m,5)
        for rd in range(2):
            p(f"ds_read_b64_tr_b16 {vr(af(m)+2*rd,2)}, v{aAL if s_<10 else aAR} offset:{(s_%10)*5120+rd*2560+8*t_}"); LG.append(m)
    def lgw(m):
        k=[i for i,x in enumerate(LG) if x!='x' and x<=m]
        if not k: return None
        n=len(LG)-1-max(k); del LG[:max(k)+1]; return n
    def bload(s_):
        so=(sOL+(s_%10)//4) if s_<10 else sROFF[(s_%10)//4]
        return f"buffer_load_dwordx4 {vr(BF+4*s_,4)}, v{aLin}, {S4(sWS)}, s{so} offen offset:{(s_%10%4)*1024} sc1"
    for m in range(LA): aread(m)
    p(f"v_mov_b32 v{MXS}, 0\nv_mov_b32 v{t+7}, {F_WO2}")
    p(f"s_cmp_lg_u32 s{sMODE}, 0\ns_cbranch_scc1 L_plsl")
    probe(sOL,C)
    p("L_plr:")
    n0=len(p.L)
    p("L_plsl:"); flag_poll(aFR,t+4,sFLO,C); p("s_branch L_plr")
    COLD.append("\n".join(p.L[n0:])); del p.L[n0:]
    STAMP('pl')
    for s_ in range(10): p(bload(s_))
    p(f"buffer_load_dword v{t+4}, v{aFR}, {S4(sWS)}, s{sFRE} offen sc1")
    for m in range(100):
        s_,t_=divmod(m,5)
        if m==50:
            STAMP('loc')
            flag_poll(aFR,t+4,sFRE,C,first=False)
            STAMP('pr')
            for k in range(10,20): p(bload(k))
            if CFG['gstart']=='PR' or CFG['dstart']=='PR' or CFG['dgate']=='PR':
                p(f"""s_mov_b64 exec, 1
                v_mov_b32 v{t+4}, {F_PR}
                v_mov_b32 v{t+5}, 1
                ds_add_u32 v{t+4}, v{t+5}
                s_mov_b64 exec, -1"""); LG.append('x')
        w=[]
        if t_==0: w.append(f"vmcnt({(10-s_) if s_<10 else (19-s_)}")
        if m%WE==0:
            n=lgw(m+WE-1)
            if n is not None: w.append(f"lgkmcnt({n}")
        if w: p("s_waitcnt "+") ".join(w)+")")
        a_=vr(WACC+4*t_,4)
        p(f"v_mfma_f32_16x16x32_bf16 {a_}, {vr(af(m),4)}, {vr(BF+4*s_,4)}, {a_}")
        if m+LA==50-10: p(f"ds_read_b32 v{t+6}, v{t+7}"); LG.append('x')
        if m+LA==50:
            p(f"v_cmp_gt_u32 vcc, 2, v{t+6}\ns_nop 0\ns_cbranch_vccnz L_wo2w\nL_wo2r:")
            n0=len(p.L)
            p("L_wo2w:"); lds_wait(t+7,t+6,C,'gt',2,0); p("s_branch L_wo2r")
            COLD.append("\n".join(p.L[n0:])); del p.L[n0:]
        if m+LA<100: aread(m+LA)
        if t_==0 and s_<10: p(f"v_max3_u32 v{MXS}, v{BF+4*s_}, v{BF+4*s_+2}, v{MXS}")
    p(f"""v_cmp_eq_u32 vcc, -1, v{MXS}
    v_mov_b32 v{t}, 0x3f803f80
    v_mov_b32 v{t+2}, 0
    v_mov_b32 v{t+3}, 0
    v_mov_b32 v{t+4}, 0
    s_cbranch_vccnz L_woredo
    L_wook:""")
    STAMP('wend')
    COLD.append(f"L_woredo:\ns_sub_u32 s{sRETRY}, s{sRETRY}, 1\ns_cbranch_scc1 L_wook\ns_nop 7")
    q=P();
    COLD.append("\n".join(f"v_lshlrev_b32 v{WACC+2*k}, 16, v{XR+k}\nv_and_b32 v{WACC+2*k+1}, 0xffff0000, v{XR+k}" for k in range(10))+"\ns_branch L_wo")
    for k in range(10): p(f"v_cvt_pk_bf16_f32 v{HP+k}, v{WACC+2*k}, v{WACC+2*k+1}")
    for k in range(10):
        p(f"""v_dot2_f32_bf16 v{t+2}, v{HP+k}, v{t}, v{t+2}
        v_dot2_f32_bf16 v{t+4}, v{HP+k}, v{HP+k}, v{t+4}
        v_dot2_f32_bf16 v{t+3}, v{HP+k}, v{WR_+k}, v{t+3}""")
    p(f"""s_lshl_b32 s{A}, s{sJ}, 4
    s_add_u32 s{A}, s{A}, s{sPSO}""")
    red3(t+2,t+3,t+4,t+5)
    p(f"""v_mov_b32 v{t+5}, s{sTAG}
    s_mov_b64 exec, 0xffff
    s_cmp_lg_u32 s{sMODE}, 0
    s_cbranch_scc1 L_pssc
    buffer_store_dwordx4 {vr(t+2,4)}, v{aPS}, {S4(sWS)}, s{A} offen
    L_psr:
    s_mov_b64 exec, -1""")
    COLD.append(f"L_pssc:\nbuffer_store_dwordx4 {vr(t+2,4)}, v{aPS}, {S4(sWS)}, s{A} offen sc1\ns_branch L_psr")
    STAMP('ps')
    G=t+10
    lp=p.lab("ps"); ok=p.lab("psok"); md=p.lab("psm")
    ld=f"""buffer_load_dwordx4 {vr(G,4)}, v{aPS}, {S4(sWS)}, s{sPSO} offen sc1
    buffer_load_dwordx4 {vr(G+4,4)}, v{aPS}, {S4(sWS)}, s{sPSO} offen offset:16 sc1"""
    p(ld)
    for k in range(10): p(f"v_lshlrev_b32 v{HF_+2*k}, 16, v{HP+k}\nv_and_b32 v{HF_+2*k+1}, 0xffff0000, v{HP+k}")
    if CFG['dbg']:
        p(f"s_add_u32 s{A}, s{sXO}, {HB}")
        for o,n in ((0,4),(4,4),(8,2)): p(f"buffer_store_dwordx{n} {vr(HP+o,n)}, v{aX2}, {S4(sWS)}, s{A} offen offset:{4*o}")
    p(f"""s_lshl_b32 s{A}, s{sRT}, 4
    s_sub_u32 s{A}, 2047, s{A}
    v_and_b32 v{t}, 15, v0
    v_sub_u32 v{t+9}, s{A}, v{t}
    v_lshlrev_b32 v{t+9}, 3, v{t+9}
    s_lshl_b32 s{A}, s{sWAVE}, 6
    s_add_u32 s{A}, s{A}, {L_KEYS}
    v_lshl_add_u32 v{aKY}, v{t}, 2, s{A}
    v_and_b32 v{t}, 48, v0
    v_lshlrev_b32 v{t}, 2, v{t}
    v_add_u32 v{t+8}, {L_KEYS}, v{t}
    s_mov_b32 s{C}, {SPIN}
    s_branch {md}
    {lp}:
    {ld}
    {md}:
    s_waitcnt vmcnt(0)
    v_cmp_ne_u32 vcc, s{sTAG}, v{G+3}
    v_cmp_ne_u32 s[{sT+14}:{sT+15}], s{sTAG}, v{G+7}
    v_pk_add_f32 {vr(t+4,2)}, {vr(G,2)}, {vr(G+4,2)}
    v_add_f32 v{t+6}, v{G+2}, v{G+6}
    s_or_b64 vcc, vcc, s[{sT+14}:{sT+15}]
    s_cbranch_scc0 {ok}""")
    spin(C,lp,ok)
    p(f"""s_branch {lp}
    {ok}:""")
    STAMP('psr')
    if CFG['dgate']=='PS': p(f"""s_mov_b64 exec, 1
    v_mov_b32 v{G}, {F_PS}
    v_mov_b32 v{G+1}, 1
    ds_add_u32 v{G}, v{G+1}
    s_mov_b64 exec, -1""")
    M=t+4
    red3(M,M+1,M+2,M+3)
    p(f"""v_mul_f32 v{M}, {1/640!r}, v{M}
    v_mul_f32 v{M+2}, {1/640!r}, v{M+2}
    v_fma_f32 v{M+2}, -v{M}, v{M}, v{M+2}
    v_max_f32 v{M+2}, 0, v{M+2}""")
    bf16r(M+2,M+2)
    p(f"v_add_f32 v{M+2}, 0x3727c5ac, v{M+2}")
    bf16r(M+2,M+2)
    p(f"v_sqrt_f32 v{M+2}, v{M+2}")
    bf16r(M,M)
    bf16r(M+2,M+2)
    RS=t+2
    p(f"""v_rcp_f32 v{RS}, v{M+2}
    v_fma_f32 v{M+1}, -v{M}, v{SW}, v{M+1}
    v_mul_f32 v{M+1}, v{M+1}, v{RS}
    v_cvt_pk_bf16_f32 v{M+1}, v{M+1}, v{M+1}
    v_mul_f32 v{RS+1}, -v{M}, v{RS}
    v_ashrrev_i32 v{M+2}, 31, v{M+1}
    v_or_b32 v{M+2}, 0x80000000, v{M+2}
    v_xor_b32 v{M+1}, v{M+1}, v{M+2}
    v_and_b32 v{M+1}, 0xffff0000, v{M+1}
    v_or_b32 v{KEY}, v{M+1}, v{t+9}
    ds_write_b32 v{aKY}, v{KEY}""")
    for k in range(10): p(f"v_pk_fma_f32 {vr(WACC+2*k,2)}, {vr(HF_+2*k,2)}, {vr(RS,2)}, {vr(RS,2)} op_sel:[0,0,1] op_sel_hi:[1,0,1]")
    K16=AF
    lp=p.lab("ky"); ok=p.lab("kyok")
    p(f"s_mov_b32 s{C}, {SPIN*4}\n{lp}:")
    for i in range(4): p(f"ds_read_b128 {vr(K16+4*i,4)}, v{t+8} offset:{16*i}")
    p("s_waitcnt lgkmcnt(0)")
    p(f"v_max3_u32 v{t}, v{K16}, v{K16+1}, v{K16+2}")
    for i in range(3,15,2): p(f"v_max3_u32 v{t}, v{K16+i}, v{K16+i+1}, v{t}")
    p(f"""v_max_u32 v{t}, v{t}, v{K16+15}
    v_cmp_eq_u32 vcc, -1, v{t}
    v_mov_b32 v{t}, 0
    s_cbranch_vccz {ok}""")
    spin(C,lp,ok)
    p(f"s_branch {lp}\n{ok}:")
    STAMP('keys')
    m0_=sT+18
    for i in range(18):
        if i<16: p(f"v_cmp_gt_u32 s[{m0_+2*(i%2)}:{m0_+2*(i%2)+1}], v{K16+i}, v{KEY}") if False else None
    MK=[sT+14,sT+16,sT+18]
    for i in range(18):
        if i<16: m=MK[i%3]; p(f"v_cmp_gt_u32 s[{m}:{m+1}], v{K16+i}, v{KEY}")
        elif i==16: p("s_nop 0")
        if i>=2: m=MK[(i-2)%3]; p(f"v_addc_co_u32 v{t}, vcc, 0, v{t}, s[{m}:{m+1}]")
    p(f"""v_mov_b32 v{t+1}, v{t}
    v_cvt_pk_bf16_f32 v{LP}, v{WACC}, v{WACC+1}
    v_cvt_pk_bf16_f32 v{LP+1}, v{WACC+2}, v{WACC+3}
    v_permlane32_swap_b32 v{t}, v{t+1}
    v_cvt_pk_bf16_f32 v{LP+2}, v{WACC+4}, v{WACC+5}
    v_add_u32 v{t}, v{t}, v{t+1}
    v_mov_b32 v{t+1}, v{t}
    v_cvt_pk_bf16_f32 v{LP+3}, v{WACC+6}, v{WACC+7}
    v_cvt_pk_bf16_f32 v{LP+4}, v{WACC+8}, v{WACC+9}
    v_permlane16_swap_b32 v{t}, v{t+1}
    v_cvt_pk_bf16_f32 v{LP+5}, v{WACC+10}, v{WACC+11}
    v_add_u32 v{t}, v{t}, v{t+1}
    v_cmp_gt_u32 s[{sCAND}:{sCAND+1}], 8, v{t}
    v_or_b32 v{KEY}, v{KEY}, v{t}
    v_mov_b32 v{t+1}, {L_CA&~0xffff}
    v_lshl_add_u32 v{t+1}, v{t}, 3, v{t+1}
    v_mov_b32 v{KEY+1}, s{sTAG}
    s_cmp_lg_u32 s{sJ}, 0
    s_cbranch_scc1 L_noca
    s_and_b32 exec_lo, s{sCAND}, 0xffff
    s_mov_b32 exec_hi, 0
    ds_write_b64 v{t+1}, {vr(KEY,2)} offset:{L_CA&0xffff}
    s_mov_b64 exec, 0xff
    s_cmp_lg_u32 s{sWAVE}, 0
    s_cbranch_scc1 L_noca
    v_lshlrev_b32 v{t+2}, 3, v0
    v_add_u32 v{t+3}, {L_CA}, v{t+2}
    s_lshl_b32 s{A}, s{sBLK}, 7
    s_add_u32 s{A}, s{A}, {CA}
    s_mov_b32 s{C}, {SPIN*4}
    L_cal:
    ds_read_b64 v[{t+4}:{t+5}], v{t+3}
    s_waitcnt lgkmcnt(0)
    v_cmp_ne_u32 vcc, s{sTAG}, v{t+5}
    s_nop 0
    s_cbranch_vccz L_caok""")
    spin(C,"L_cal","L_caok")
    p(f"""s_branch L_cal
    L_caok:
    buffer_store_dwordx2 v[{t+4}:{t+5}], v{t+2}, {S4(sWS)}, s{A} offen sc1
    L_noca:
    s_mov_b64 exec, -1""")
    STAMP('ca')
    for k in range(6,10): p(f"v_cvt_pk_bf16_f32 v{LP+k}, v{WACC+2*k}, v{WACC+2*k+1}")
    p(f"""v_lshrrev_b32 v{t+1}, 4, v0
    v_mul_u32_u24 v{t+1}, 40, v{t+1}
    v_mul_u32_u24 v{t}, 2560, v{t}
    v_add_u32 v{aCD}, v{t}, v{t+1}
    s_mul_i32 s{A}, s{sBLK}, 20480
    s_mul_i32 s{B}, s{sJ}, 160
    s_add_u32 s{A}, s{A}, s{B}
    s_add_u32 s{A}, s{A}, {CAND}
    s_and_b64 exec, s[{sCAND}:{sCAND+1}], -1
    s_cbranch_scc0 L_nocd""")
    for base,off in ((LP,0),(HP,1280)):
        if 'nocand' in CFG['xp'] or ('noh' in CFG['xp'] and off): continue
        for o,n in ((0,4),(4,4),(8,2)): p(f"buffer_store_dwordx{n} {vr(base+o,n)}, v{aCD}, {S4(sWS)}, s{A} offen offset:{off+4*o} sc1")
    p("L_nocd:\ns_mov_b64 exec, -1")
    for k in range(10): p(f"v_pk_add_f32 {vr(WACC+2*k,2)}, {vr(WACC+2*k,2)}, {vr(HF_+2*k,2)}")
    for k in range(10): p(f"v_cvt_pk_bf16_f32 v{OP+k}, v{WACC+2*k}, v{WACC+2*k+1}")
    p(f"s_andn2_b64 exec, -1, s[{sCAND}:{sCAND+1}]\ns_cbranch_scc0 L_noo1")
    if 'noout' not in CFG['xp']: out_store()
    p("L_noo1:")
    if 1: p(f"""s_mov_b64 exec, 1
    v_mov_b32 v{t+4}, {F_O1}
    v_mov_b32 v{t+5}, 1
    ds_add_u32 v{t+4}, v{t+5}
    s_mov_b64 exec, -1""")
    else: p("s_mov_b64 exec, -1")
    STAMP('o1')
KEY=228; sCAND=sT+20
def out_store():
    for o,n in ((0,4),(4,4),(8,2)): p(f"buffer_store_dwordx{n} {vr(OP+o,n)}, v{aX2}, {S4(sOUT)}, s{sXO} offen offset:{4*o} {CFG['opol']}")

def moe_weights():
    A=sT+7; B=sT+8; vt=2; D=40; aW_=12
    gu=p.lab("mwgu"); wr=p.lab("mwwr"); en=p.lab("mwend")
    FA=dict(WOD=(F_WOD,2),PR=(F_PR,4),O1=(F_O1,4),DONE=(F_DONE,4),G2=(F_G2,2),PS=(F_PS,4),WO2=(F_WO2,2))
    def gate(k):
        p(f"v_mov_b32 v{vt+4}, {FA[k][0]}")
        lds_wait(vt+4,vt+5,sT+5,'gt',FA[k][1],2)
    pl_=p.lab("mwpl")
    p(f"""s_cmp_ge_u32 s{sSLOT}, 17
    s_cbranch_scc1 {pl_}
    v_bfe_u32 v{vt}, v0, 3, 2
    v_lshrrev_b32 v{vt+1}, 5, v0
    v_lshlrev_b32 v{vt}, 1, v{vt}
    v_add_lshl_u32 v{vt}, v{vt}, v{vt+1}, 2
    v_bfe_u32 v{vt+1}, v0, 1, 2
    v_add_u32 v{vt}, v{vt}, v{vt+1}
    v_and_b32 v{vt+1}, 1, v0
    v_lshlrev_b32 v{vt+1}, 4, v{vt+1}
    s_cmp_lt_u32 s{sSLOT}, 12
    s_cbranch_scc1 {gu}
    v_mul_u32_u24 v{vt}, 1280, v{vt}
    v_add_u32 v{aW_}, v{vt}, v{vt+1}
    s_mul_i32 s{A}, s{sG}, 5
    s_add_u32 s{A}, s{A}, s{sSLOT}
    s_sub_u32 s{A}, s{A}, 12
    s_lshl_b32 s{A}, s{A}, 5
    s_mul_i32 s{B}, s{HW}, {12*32*1280}
    s_add_u32 s{A}, s{A}, s{B}""")
    gate(CFG['dstart'])
    STAMP('mg')
    for s_ in range(12):
        if s_>=CFG['ddep']: p(f"s_waitcnt vmcnt({CFG['ddep']-1})")
        p(f"buffer_load_dwordx4 {vr(D+4*s_,4)}, v{aW_}, {S4(sWD)}, s{A} offen {CFG['mpol']}")
        if s_<11: p(f"s_add_u32 s{A}, s{A}, {32*1280}")
    p(f"""s_mul_i32 s{B}, s{HW}, 12288
    s_branch {wr}
    {pl_}:""")
    if CFG['dgate']!='no' and not CFG['dw3']:
        gate(CFG['dgate'])
        touch(vTD,sWD,CFG['mpair'])
        STAMP('mg')
        if CFG['prof']: p("s_waitcnt vmcnt(0)"); STAMP('mw')
    p(f"""s_branch {en}
    {gu}:
    v_mul_u32_u24 v{vt}, 3072, v{vt}
    v_add_u32 v{aW_}, v{vt}, v{vt+1}
    s_mul_i32 s{A}, s{sG}, 12
    s_add_u32 s{A}, s{A}, s{sSLOT}
    s_lshl_b32 s{A}, s{A}, 5
    s_mul_i32 s{B}, s{HW}, {5*32*3072}
    s_add_u32 s{A}, s{A}, s{B}""")
    gate(CFG['gstart'])
    STAMP('mg')
    for s_ in range(5):
        for m_ in range(2):
            if 2*s_+m_>=CFG['mdep']: p(f"s_waitcnt vmcnt({CFG['mdep']-1})")
            p(f"buffer_load_dwordx4 {vr(D+8*s_+4*m_,4)}, v{aW_}, {S4((sWG,sWU)[m_])}, s{A} offen {CFG['mpol']}")
        if s_<4: p(f"s_add_u32 s{A}, s{A}, {32*3072}")
    p(f"s_mul_i32 s{B}, s{HW}, 12288\n{wr}:\nv_lshl_add_u32 v{vt}, v0, 4, s{B}")
    gate('DONE')
    p("s_waitcnt vmcnt(0)")
    for s_ in range(12): p(f"ds_write_b128 v{vt}, {vr(D+4*s_,4)} offset:{L_MW+s_*1024}")
    p(f"""s_lshl_b32 s{A}, s{HW}, 2
    s_add_u32 s{A}, s{A}, {F_MW}
    v_mov_b32 v{vt}, s{A}
    ds_write_b32 v{vt}, v{vt}
    s_waitcnt lgkmcnt(0)""")
    STAMP('mw')
    p(f"{en}:")
def top8(R,K2,K1,y,tt):
    def clean(chs):
        seq=[]
        for (x,y_,t_) in chs:
            seq.append([f"v_max_u32_dpp v{y_}, v{x}, v{x} row_shl:4 row_mask:0xf bank_mask:0x5",
                        f"v_min_u32_dpp v{y_}, v{x}, v{x} row_shr:4 row_mask:0xf bank_mask:0xa",
                        None,
                        f"v_mov_b32_dpp v{t_}, v{y_} quad_perm:[2,3,0,1] row_mask:0xf bank_mask:0xf",
                        f"v_med3_u32 v{y_}, v{y_}, v{t_}, v{K2}",
                        None,
                        f"v_mov_b32_dpp v{t_}, v{y_} quad_perm:[1,0,3,2] row_mask:0xf bank_mask:0xf",
                        f"v_med3_u32 v{x}, v{y_}, v{t_}, v{K1}"])
        n=len(chs)
        p(f"s_nop {2-n}")
        for i in range(8):
            if seq[0][i] is None: p(f"s_nop {2-n}")
            else:
                for c in seq: p(c[i])
                if i==0 and n==1: p("s_nop 1")
                elif i==0: p("s_nop 0")
    dp="row_mask:0xf bank_mask:0xf"
    p(f"v_max_u32_dpp v{R}, v{R+2}, v{R} row_half_mirror {dp}\nv_max_u32_dpp v{R+4}, v{R+6}, v{R+4} row_half_mirror {dp}")
    clean([(R,y,tt),(R+4,y+1,tt+1)])
    p(f"s_nop 1\nv_max_u32_dpp v{R}, v{R+4}, v{R} row_half_mirror {dp}")
    clean([(R,y,tt)])
    p(f"s_nop 1\nv_max_u32_dpp v{R}, v{R}, v{R} row_mirror {dp}")
    clean([(R,y,tt)])
    for msk,sw in ((0xa,16),(0xc,32)):
        p(f"""s_nop 1
        v_mov_b32_dpp v{R}, v{R} row_half_mirror row_mask:{hex(msk)} bank_mask:0xf
        v_mov_b32 v{tt}, v{R}
        s_nop 1
        v_permlane{sw}_swap_b32 v{R}, v{tt}
        s_nop 0
        v_max_u32 v{R}, v{R}, v{tt}""")
        clean([(R,y,tt)])
def moe():
    t=vT; A=sT+7; B=sT+8; C=sT+17; sTHR=sT+14
    R=12; K2=20; K1=21; aC=22; AW=108
    BL=160
    p(f"""s_cmp_ge_u32 s{sSLOT}, 17
    s_cbranch_scc1 L_plain
    v_lshrrev_b32 v{t}, 3, v0
    v_and_b32 v{t+1}, 7, v0
    v_lshlrev_b32 v{t+1}, 3, v{t+1}
    v_lshl_add_u32 v{aC}, v{t}, 7, v{t+1}
    s_mov_b32 s{B}, {CA}""")
    ld="\n".join(f"buffer_load_dwordx2 {vr(R+2*i,2)}, v{aC}, {S4(sWS)}, s{B} offen offset:{i*1024} sc1" for i in range(4))
    aMF=4; aMW=5
    def getw():
        lds_wait(AW-aMF,t+10 if False else AW,C,'eq',0,0)
        STAMP('mwr')
        for s_ in range(12):
            for rd in range(2): p(f"ds_read_b64_tr_b16 {vr(AW+4*s_+2*rd,2)}, v{AW-aMW} offset:{L_MW+s_*1024+rd*512}")
    p(f"""s_cmp_lg_u32 s{sWAVE}, 0
    s_cbranch_scc1 L_nocal
    {ld}
    L_nocal:
    v_bfe_i32 v{K2}, v0, 1, 1
    v_bfe_i32 v{K1}, v0, 0, 1
    v_not_b32 v{K2}, v{K2}
    v_not_b32 v{K1}, v{K1}
    s_lshl_b32 s{A}, s{sWAVE}, 2
    s_add_u32 s{A}, s{A}, {F_MW}
    v_mov_b32 v{AW-aMF}, s{A}
    s_mul_i32 s{A}, s{sWAVE}, 12288
    v_lshl_add_u32 v{AW-aMW}, v0, 3, s{A}
    v_and_b32 v{t}, 7, v0
    v_lshlrev_b32 v{t}, 2, v{t}
    v_add_u32 v{AW-6}, {L_TOP}, v{t}
    s_cmp_ge_u32 s{sSLOT}, 12
    s_cbranch_scc1 L_now""")
    getw()
    lp=p.lab("ca"); ok=p.lab("caok"); md=p.lab("cam")
    p(f"""L_now:
    s_cmp_lg_u32 s{sWAVE}, 0
    s_cbranch_scc1 L_topw
    s_mov_b32 s{C}, {SPIN}
    s_branch {md}
    {lp}:
    {ld}
    {md}:
    s_waitcnt vmcnt(0)
    v_xor_b32 v{t}, v{R+1}, v{R+3}
    v_xor_b32 v{t+1}, v{R+5}, v{R+7}
    v_xor_b32 v{R+1}, s{sTAG}, v{R+1}
    v_xor_b32 v{R+5}, s{sTAG}, v{R+5}
    v_or3_b32 v{t}, v{t}, v{t+1}, v{R+1}
    v_or_b32 v{t}, v{t}, v{R+5}
    v_cmp_ne_u32 vcc, 0, v{t}
    s_nop 0
    s_cbranch_vccz {ok}""")
    spin(C,lp,ok,CFG['casl'])
    p(f"s_branch {lp}\n{ok}:")
    STAMP('car')
    top8(R,K2,K1,t,t+2)
    p(f"ds_write_b32 v{AW-6}, v{R}\ns_branch L_top\nL_topw:\ns_waitcnt vmcnt(0)")
    lds_wait(AW-6,R,C,'eq',-1,0)
    p("L_top:")
    STAMP('top')
    TOK=t+1; aR=t+2
    p(f"""v_bfe_u32 v{TOK}, v{R}, 3, 11
    v_sub_u32 v{TOK}, 2047, v{TOK}
    v_lshrrev_b32 v{t}, 6, v{TOK}
    v_and_b32 v{aR}, 7, v{R}
    v_lshl_add_u32 v{aR}, v{t}, 3, v{aR}
    v_mul_u32_u24 v{aR}, 2560, v{aR}
    v_lshrrev_b32 v{t}, 4, v0
    v_readlane_b32 s{sTHR}, v{R}, 7
    s_cmp_ge_u32 s{sSLOT}, 12
    s_cbranch_scc1 L_down""")
    def deferred(tag):
        p(f"""v_cmp_gt_u32 vcc, s{sTHR}, v{KEY}
        s_nop 0
        s_and_b64 exec, vcc, s[{sCAND}:{sCAND+1}]
        s_cbranch_scc0 L_nd{tag}""")
        out_store()
        p(f"L_nd{tag}:\ns_mov_b64 exec, -1")
    p(f"""v_lshl_add_u32 v{aR}, v{t}, 4, v{aR}
    s_mul_i32 s{A}, s{sWAVE}, 320
    s_add_u32 s{A}, s{A}, {CAND}""")
    ld="\n".join(f"buffer_load_dwordx4 {vr(BL+4*i,4)}, v{aR}, {S4(sWS)}, s{A} offen offset:{i*64} sc1" for i in range(5))
    lp=p.lab("gl"); ok=p.lab("glok"); md=p.lab("glm"); nt=p.lab("noth")
    p(ld)
    p(f"""s_or_b32 s{B}, s{sSLOT}, s{sWAVE}
    s_cbranch_scc1 {nt}
    v_mov_b32 v{t+4}, s{sTHR}
    v_mov_b32 v{t+5}, s{sTAG}
    s_lshl_b32 s{B}, s{sG}, 7
    s_add_u32 s{B}, s{B}, {TH}
    v_mov_b32 v{t+6}, 0
    s_mov_b64 exec, 1
    buffer_store_dwordx2 v[{t+4}:{t+5}], v{t+6}, {S4(sWS)}, s{B} offen sc1
    s_mov_b64 exec, -1
    {nt}:
    s_lshl_b32 s{B}, s{sWAVE}, 11
    s_add_u32 s{B}, s{B}, {L_RED}
    v_lshl_add_u32 v{t+3}, v0, 4, s{B}
    s_mov_b32 s{C}, {SPIN}
    s_branch {md}
    {lp}:
    {ld}
    {md}:
    s_waitcnt vmcnt(0) lgkmcnt(0)
    v_max3_u32 v{t+4}, v{BL}, v{BL+2}, v{BL+4}
    v_max3_u32 v{t+5}, v{BL+6}, v{BL+8}, v{BL+10}
    v_max3_u32 v{t+4}, v{BL+12}, v{BL+14}, v{t+4}
    v_max3_u32 v{t+5}, v{BL+16}, v{BL+18}, v{t+5}
    v_max_u32 v{t+4}, v{t+4}, v{t+5}
    v_cmp_eq_u32 vcc, -1, v{t+4}
    s_nop 0
    {'s_branch' if 'nocand' in CFG['xp'] else 's_cbranch_vccz'} {ok}""")
    spin(C,lp,ok)
    p(f"s_branch {lp}\n{ok}:")
    STAMP('lr')
    G=20; U=24; X=28
    for s_ in range(5):
        for m_,a_ in ((0,G),(1,U)):
            p(f"v_mfma_f32_16x16x32_bf16 {vr(a_,4)}, {vr(AW+8*s_+4*m_,4)}, {vr(BL+4*s_,4)}, {vr(a_,4) if s_ else 0}")
    w0=p.lab("guw0")
    p(f"""s_cmp_eq_u32 s{sWAVE}, 0
    s_cbranch_scc1 {w0}
    s_nop 5
    ds_write_b128 v{t+3}, {vr(G,4)}
    ds_write_b128 v{t+3}, {vr(U,4)} offset:1024
    s_waitcnt lgkmcnt(0)
    s_barrier""")
    deferred('g1')
    END()
    p(f"""{w0}:
    s_mul_i32 s{A}, s{sG}, 12
    s_add_u32 s{A}, s{A}, s{sSLOT}
    s_lshl_b32 s{A}, s{A}, 8
    s_add_u32 s{A}, s{A}, {ACT}
    v_and_b32 v{t+4}, 7, v0
    v_lshlrev_b32 v{t+4}, 4, v{t+4}
    v_lshrrev_b32 v{t+5}, 5, v0
    v_lshl_add_u32 v{t+4}, v{t+5}, 7, v{t+4}
    v_bfe_u32 v{t+5}, v0, 4, 1
    v_lshl_add_u32 v{t+4}, v{t+5}, 3, v{t+4}
    s_barrier""")
    for w_ in range(1,4):
        for m_ in range(2): p(f"ds_read_b128 {vr(X+8*(w_-1)+4*m_,4)}, v{t+3} offset:{w_*2048+m_*1024}")
    p(f"s_mov_b32 s{B}, {hex(f2u(-math.log2(math.e)))}")
    for w_ in range(3):
        p(f"s_waitcnt lgkmcnt({4-2*w_})")
        for k in range(4): p(f"v_pk_add_f32 {vr(G+2*k,2)}, {vr(G+2*k,2)}, {vr(X+8*w_+2*k,2)}")
    p(f"""v_cvt_pk_bf16_f32 v{X}, v{G}, v{G+1}
    v_cvt_pk_bf16_f32 v{X+1}, v{G+2}, v{G+3}
    v_cvt_pk_bf16_f32 v{X+2}, v{U}, v{U+1}
    v_cvt_pk_bf16_f32 v{X+3}, v{U+2}, v{U+3}""")
    for k in range(4): p(f"v_lshlrev_b32 v{G+2*k}, 16, v{X+k}\nv_and_b32 v{G+2*k+1}, 0xffff0000, v{X+k}")
    for k in range(4): p(f"v_mul_f32 v{X+k}, s{B}, v{G+k}")
    for k in range(4): p(f"v_exp_f32 v{X+k}, v{X+k}")
    for k in range(4): p(f"v_add_f32 v{X+k}, 1.0, v{X+k}")
    for k in range(4): p(f"v_rcp_f32 v{X+k}, v{X+k}")
    for k in range(4): p(f"v_mul_f32 v{G+k}, v{G+k}, v{X+k}")
    p(f"v_cvt_pk_bf16_f32 v{X}, v{G}, v{G+1}\nv_cvt_pk_bf16_f32 v{X+1}, v{G+2}, v{G+3}")
    for k in range(2): p(f"v_lshlrev_b32 v{G+2*k}, 16, v{X+k}\nv_and_b32 v{G+2*k+1}, 0xffff0000, v{X+k}")
    p(f"""v_pk_mul_f32 {vr(G,2)}, {vr(G,2)}, {vr(U,2)}
    v_pk_mul_f32 {vr(G+2,2)}, {vr(G+2,2)}, {vr(U+2,2)}
    v_cvt_pk_bf16_f32 v{X}, v{G}, v{G+1}
    v_cvt_pk_bf16_f32 v{X+1}, v{G+2}, v{G+3}
    s_mov_b32 exec_lo, 0x00ff00ff
    s_mov_b32 exec_hi, 0x00ff00ff
    buffer_store_dwordx2 {vr(X,2)}, v{t+4}, {S4(sWS)}, s{A} offen sc1
    s_mov_b64 exec, -1""")
    STAMP('act')
    deferred('g0')
    END()
    HL=20; Y=24; X=28; SG=t+8; aO2=t+9
    p(f"""L_down:
    v_lshl_add_u32 v{aR}, v{t}, 3, v{aR}
    v_mul_u32_u24 v{aO2}, 1280, v{TOK}
    v_lshl_add_u32 v{aO2}, v{t}, 3, v{aO2}
    v_and_b32 v{t+4}, 7, v0
    v_lshlrev_b32 v{t+4}, 4, v{t+4}
    v_lshl_add_u32 v{t+4}, v{t}, 7, v{t+4}
    s_mul_i32 s{sT+1}, s{sG}, 5
    s_add_u32 s{sT+1}, s{sT+1}, s{sSLOT}
    s_sub_u32 s{sT+1}, s{sT+1}, 12
    s_lshl_b32 s{sT+1}, s{sT+1}, 5
    s_add_u32 s{sT+2}, s{sT+1}, {CAND}
    s_mul_i32 s{A}, s{sWAVE}, 6144
    s_add_u32 s{A}, s{A}, {ACT}
    s_add_u32 s{B}, s{A}, 4096""")
    ldh=f"buffer_load_dwordx2 {vr(HL,2)}, v{aR}, {S4(sWS)}, s{sT+2} offen sc1\nbuffer_load_dwordx2 {vr(HL+2,2)}, v{aR}, {S4(sWS)}, s{sT+2} offen offset:1280 sc1"
    p(ldh)
    deferred('d')
    p(f"""v_ashrrev_i32 v{SG}, 31, v{R}
    v_not_b32 v{SG}, v{SG}
    v_or_b32 v{SG}, 0x80000000, v{SG}
    v_xor_b32 v{SG}, v{SG}, v{R}
    v_and_b32 v{SG}, 0xffff0000, v{SG}
    v_mul_f32 v{SG}, {hex(f2u(-math.log2(math.e)))}, v{SG}
    v_exp_f32 v{SG}, v{SG}
    s_lshl_b32 s{C}, s{sWAVE}, 10
    v_add_f32 v{SG}, 1.0, v{SG}
    v_rcp_f32 v{SG}, v{SG}
    s_add_u32 s{C}, s{C}, {L_RED}
    v_lshl_add_u32 v{t+3}, v0, 4, s{C}""")
    bf16r(SG,SG)
    lp=p.lab("hl"); ok=p.lab("hlok"); md=p.lab("hlm")
    p(f"""s_mov_b32 s{C}, {SPIN}
    s_branch {md}
    {lp}:
    {ldh}
    {md}:
    s_waitcnt vmcnt(0)
    v_max_u32 v{t+5}, v{HL}, v{HL+2}
    v_cmp_eq_u32 vcc, -1, v{t+5}
    s_nop 0
    {'s_branch' if CFG['xp'] else 's_cbranch_vccz'} {ok}""")
    spin(C,lp,ok)
    p(f"s_branch {lp}\n{ok}:")
    getw()
    ld="\n".join([f"buffer_load_dwordx4 {vr(BL+4*i,4)}, v{t+4}, {S4(sWS)}, s{A if i<8 else B} offen offset:{(i%8)*512} sc1" for i in range(12)])
    lp=p.lab("al"); ok=p.lab("alok")
    p(f"""s_mov_b32 s{C}, {SPIN}
    {lp}:
    {ld}
    s_waitcnt vmcnt(8)
    v_max3_u32 v{t+5}, v{BL}, v{BL+2}, v{BL+4}
    v_max3_u32 v{t+6}, v{BL+6}, v{BL+8}, v{BL+10}
    v_max3_u32 v{t+5}, v{BL+12}, v{BL+14}, v{t+5}""")
    for i in range(4,12):
        if i%4==0: p(f"s_waitcnt vmcnt({8-i})")
        p(f"v_max3_u32 v{t+5+(i&1)}, v{BL+4*i}, v{BL+4*i+2}, v{t+5+(i&1)}")
    p(f"""v_max_u32 v{t+5}, v{t+5}, v{t+6}
    v_cmp_eq_u32 vcc, -1, v{t+5}
    s_waitcnt lgkmcnt(0)
    s_cbranch_vccz {ok}""")
    spin(C,lp,ok,CFG['acsl'])
    p(f"s_branch {lp}\n{ok}:")
    STAMP('ar')
    for s_ in range(12): p(f"v_mfma_f32_16x16x32_bf16 {vr(Y,4)}, {vr(AW+4*s_,4)}, {vr(BL+4*s_,4)}, {vr(Y,4) if s_ else 0}")
    w0=p.lab("dnw0")
    p(f"""s_cmp_eq_u32 s{sWAVE}, 0
    s_cbranch_scc1 {w0}
    s_nop 5
    ds_write_b128 v{t+3}, {vr(Y,4)}
    s_waitcnt lgkmcnt(0)
    s_barrier""")
    END()
    p(f"""{w0}:
    v_lshlrev_b32 v{X+12}, 16, v{HL}
    v_and_b32 v{X+13}, 0xffff0000, v{HL}
    v_lshlrev_b32 v{X+14}, 16, v{HL+1}
    v_and_b32 v{X+15}, 0xffff0000, v{HL+1}
    v_lshlrev_b32 v{X+16}, 16, v{HL+2}
    v_and_b32 v{X+17}, 0xffff0000, v{HL+2}
    v_lshlrev_b32 v{X+18}, 16, v{HL+3}
    v_and_b32 v{X+19}, 0xffff0000, v{HL+3}
    s_barrier""")
    for w_ in range(1,4): p(f"ds_read_b128 {vr(X+4*(w_-1),4)}, v{t+3} offset:{w_*1024}")
    for w_ in range(3):
        p(f"s_waitcnt lgkmcnt({2-w_})")
        for k in range(2): p(f"v_pk_add_f32 {vr(Y+2*k,2)}, {vr(Y+2*k,2)}, {vr(X+4*w_+2*k,2)}")
    def rnd():
        p(f"v_cvt_pk_bf16_f32 v{X}, v{Y}, v{Y+1}\nv_cvt_pk_bf16_f32 v{X+1}, v{Y+2}, v{Y+3}")
    def unp():
        for k in range(2): p(f"v_lshlrev_b32 v{Y+2*k}, 16, v{X+k}\nv_and_b32 v{Y+2*k+1}, 0xffff0000, v{X+k}")
    rnd(); unp()
    for k in range(4): p(f"v_mul_f32 v{Y+k}, v{SG}, v{Y+k}")
    rnd(); unp()
    for k in range(2): p(f"v_pk_add_f32 {vr(Y+2*k,2)}, {vr(Y+2*k,2)}, {vr(X+12+2*k,2)}")
    rnd(); unp()
    for k in range(2): p(f"v_pk_add_f32 {vr(Y+2*k,2)}, {vr(Y+2*k,2)}, {vr(X+16+2*k,2)}")
    rnd()
    p(f"""s_mov_b32 exec_lo, 0x00ff00ff
    s_mov_b32 exec_hi, 0x00ff00ff
    buffer_store_dwordx2 {vr(X,2)}, v{aO2}, {S4(sOUT)}, s{sT+1} offen sc1""")
    STAMP('fin')
    END()
    lp=p.lab("th"); ok=p.lab("thok")
    p(f"""L_plain:
    s_lshl_b32 s{B}, s{sG}, 7
    s_add_u32 s{B}, s{B}, {TH}
    v_mov_b32 v{t}, 0
    s_mov_b32 s{C}, {SPIN}
    {lp}:
    s_sleep 16
    buffer_load_dwordx2 v[{t+2}:{t+3}], v{t}, {S4(sWS)}, s{B} offen sc1
    s_waitcnt vmcnt(0)
    v_cmp_ne_u32 vcc, s{sTAG}, v{t+3}
    s_nop 0
    s_cbranch_vccz {ok}""")
    spin(C,lp,ok)
    p(f"""s_branch {lp}
    {ok}:
    v_readfirstlane_b32 s{sTHR}, v{t+2}
    s_nop 1""")
    deferred('p')
    STAMP('fin')

def build():
    prologue()
    steps=loader()
    helperA(steps)
    p("s_branch L_mw")
    helperB(steps)
    p("L_mw:")
    moe_weights()
    END()
    p("L_comp:")
    if CFG['prio']: p(f"s_setprio {CFG['prio']}")
    p("s_waitcnt lgkmcnt(0)")
    STAMP('start')
    prologue2()
    if CFG['cpf']: code_pf()
    srd(((sX,2621440),))
    gemm_setup()
    clears(0)
    if CFG['clr']==0: clears(1)
    p("s_waitcnt lgkmcnt(0)")
    mktag()
    p(f"""    s_cmp_eq_u32 s{sLC}, 15
    s_cbranch_scc1 L_gS
    s_cmp_eq_u32 s{sTY}, 2
    s_cbranch_scc1 L_gV""")
    gemm_loop('T'); gemm_epi('T'); p("s_branch L_att")
    p("L_gS:"); idle_gemm(); p("s_branch L_att")
    p("L_gV:"); gemm_loop('V'); gemm_epi('V')
    p("L_att:")
    p(f"v_mov_b32 v{aCLS}, 0x207")
    att_pro()
    for w in range(4): att_variant(w)
    att_fin()
    wo_main()
    if CFG['stop']<=3:
        p(f"s_and_b64 exec, s[{sCAND}:{sCAND+1}], -1\ns_cbranch_scc0 L_noo2"); out_store(); p("L_noo2:")
    else: moe()
    END()
    att_cold()
    for c in COLD: p(c)
    p("L_exit:\ns_endpgm")
build()
errs=check(p.L)
hdr=f"""; generated by work/k/gen.py (own generator script)
; @launch grid=(256,1,1) block=(512,1,1) lds=163840
.amdgcn_target "amdgcn-amd-amdhsa--gfx950"
.text
.globl {NAME}_kernel
.p2align 8
.type {NAME}_kernel,@function
{NAME}_kernel:
"""
ftr=f""".section .rodata,"a"
.p2align 6
.amdhsa_kernel {NAME}_kernel
  .amdhsa_next_free_vgpr 256
  .amdhsa_next_free_sgpr 102
  .amdhsa_accum_offset 256
  .amdhsa_group_segment_fixed_size 0
  .amdhsa_kernarg_size 88
  .amdhsa_user_sgpr_count 2
  .amdhsa_user_sgpr_kernarg_segment_ptr 1
  .amdhsa_system_sgpr_workgroup_id_x 1
.end_amdhsa_kernel
"""
open(sys.argv[1],"w").write(hdr+p.text()+ftr)

import subprocess
r=subprocess.run(["clang","-x","assembler","-target","amdgcn-amd-amdhsa","-mcpu=gfx950",sys.argv[1],"-o",sys.argv[1]+".co"],capture_output=True,text=True)
if r.returncode: print(r.stderr[:3000]); sys.exit(1)
r=subprocess.run(["python3","cdna_unwritten_srd_check.py",sys.argv[1]+".co"],capture_output=True,text=True)
if r.returncode: print("SRDCHECK:",r.stdout[-3000:],r.stderr[-1000:])
r=subprocess.run("llvm-size -A "+sys.argv[1]+".co | grep text",shell=True,capture_output=True,text=True); print(r.stdout.strip())
if errs: sys.exit(1)
```

```python
import sys, math
from asmlib import *
NAME="sequential_preLN__sliding_block__moe_arch_mod__prompt"
CFG=dict(ht=0, hpoll=0, hsl=1, wog2=0, hearly=1, stg=6, stb=0, ord='xw,xw,xw,xw,xw,xw,xw,xw,xw,xw', amp=None, wose=2, late1=1, sdef=(1,1,1,1), pt2=8, qpair2=0, nacc=8, sfirst=1, prio=0, smode='dot', sfill=(), acsl=0, casl=0, xp=(), dw3=0, wla=7, wwe=2, dgate='O1', dstart='O1', gstart='WOD', mdep=1, ddep=12, qpair=0, mpair=0, wpair=0, xnt=0, wnt=0, tpol2='', wtw='no', mtw='w3', wothr1=4, mb=(6,6), mg=('WOD','PR','PR','O1'), mpf=0, mgate='b3', hsplit=0, cpf=1, npf=(0,)*10, wogs=5, clr=0, wot=(), wtpol='', seqs=None, xpol='nt', wpol='', tpol='', wopol='', mpol='', cal=None, opol='', st=['start','b0|hb0','gend|hb9','E1|hE1','st|halo|clr','fl|g2|wo','fseen|h2','kv','aend','ost'], pt=8, wothr=16, wogate=1, h2sl=1, noh2=0, nowo=0, wos=(0,0,0), sched=(1,2,1,1,1,1,1,0,0,0), dbg=0, stop=99, prof=0, rot=('0055','36947580','05162738'), force_slow=0, noclr=0, pre=2, ldst=0, nomfma=0, nohello=0)
for a in sys.argv[2:]:
    k,v=a.split("="); CFG[k]=eval(v)
QB,KB,VB,KH,VH,OB=[i*0x280000 for i in range(6)]
CAND=0xF00000
PS=0xFA0000
CA=0xFE0000
ACT=0xFE1000
HB=0x1000000
PROF=0x1300000
H1=0x1280000; H2=0x1281000; EPO=0x1282000; TH=0x1283000
STP=0x1680000; STX=0x1780000
FO=0x1700000; OB2=0x1400000; FL=0x12A0000; FH=0x1740000
L_STG=0; L_KV=10240; L_WO=55296; L_MISC=157696; L_MW=0
L_CS=L_MISC
L_SA=L_MISC+512
L_SR=L_SA+1024
L_MODE=L_SR+512
L_FLG=L_MODE+64
F_G1,F_G2,F_H2,F_STG,F_SCP,F_DONE,F_WOR,F_MW=[L_FLG+4*i for i in (0,1,2,4,8,9,10,12)]
L_SWS=L_FLG+80; F_O1=L_FLG+44; F_WOD=L_FLG+64; F_PR=L_FLG+68; F_WO2=L_FLG+72; F_PS=L_FLG+76
L_KEYS=L_FLG+128
L_CA=L_KEYS+256; L_TOP=L_CA+64
L_RED=L_WO
sX,sW,sWO,sWG,sWU,sWD,sOUT,sWS,sDBG,sWR=[4+4*i for i in range(10)]
sWAVE,sG,sSLOT,sRQ,sHH,sRB,sCT,sMODE,sEP,sTAG=range(44,54)
sT=54
sLO=76
sPROF=80
p=P()
COLD=[]
CALI=lambda: 's_memtime' if CFG['cal'][1]>20000 else 's_memrealtime'
def STAMP(name,w=0):
    if CFG['amp']:
        a=CFG['amp']
        if name=='entry': p(f"s_memrealtime s[{sPROF+8}:{sPROF+9}]")
        for k in (0,1):
            if name==a[k]:
                p(f"{'s_memrealtime' if a[2]=='r' else 's_memtime'} s[{sPROF+2*k}:{sPROF+2*k+1}]")
                if w: p("s_waitcnt lgkmcnt(0)")
    if CFG['cal'] and name in CFG['cal'][0].split('|'):
        p(f"{CALI()} s[{sPROF}:{sPROF+1}]")
        if w: p("s_waitcnt lgkmcnt(0)")
    i=[k for k,n in enumerate(CFG['st']) if name in n.split('|')]
    if CFG['prof'] and i:
        i=i[0]
        p(f"{'s_memrealtime' if CFG['prof']==2 else 's_memtime'} s[{sPROF+2*i}:{sPROF+2*i+1}]")
        if w: p("s_waitcnt lgkmcnt(0)")
def PROFDUMP():
    if not CFG['prof']: return
    p("s_waitcnt vmcnt(0) lgkmcnt(0)")
    p("s_mov_b64 exec, -1")
    for i in range(10): p(f"v_mov_b32 v{2+i}, s{sPROF+2*i}")
    p(f"""s_lshl_b32 s{sT}, s2, 3
    s_add_u32 s{sT}, s{sT}, s{sWAVE}
    s_lshl_b32 s{sT}, s{sT}, 6
    s_add_u32 s{sT}, s{sT}, {PROF}
    v_mov_b32 v1, 0
    s_mov_b64 exec, 1
    buffer_store_dwordx4 v[2:5], v1, s[{sWS}:{sWS+3}], s{sT} offen
    buffer_store_dwordx4 v[6:9], v1, s[{sWS}:{sWS+3}], s{sT} offen offset:16
    buffer_store_dwordx2 v[10:11], v1, s[{sWS}:{sWS+3}], s{sT} offen offset:32""")
def END():
    PROFDUMP()
    if CFG['amp']:
        a=CFG['amp']
        lp=p.lab("amp"); ok=p.lab("ampok")
        p(f"""s_waitcnt vmcnt(0) lgkmcnt(0)
        s_cmp_eq_u32 s{sPROF+2}, 0
        s_cbranch_scc1 {ok}
        s_cmp_lg_u32 s{sWAVE}, {a[5] if len(a)>5 else 0}
        s_cbranch_scc1 {ok}""")
        if a[4]>=0: p(f"s_cmp_lg_u32 s2, {a[4]}\ns_cbranch_scc1 {ok}")
        p(f"""s_sub_u32 s{sPROF+6}, s{sPROF+2}, s{sPROF}
        s_mul_i32 s{sPROF+6}, s{sPROF+6}, {a[3]}
        s_lshr_b32 s{sPROF+6}, s{sPROF+6}, 4
        s_min_u32 s{sPROF+6}, s{sPROF+6}, 100000
        s_add_u32 s{sPROF+6}, s{sPROF+6}, 3000
        s_mov_b32 s{sPROF+4}, 100000
        {lp}:
        s_sleep 2
        s_memrealtime s[{sPROF+2}:{sPROF+3}]
        s_sub_u32 s{sPROF+4}, s{sPROF+4}, 1
        s_cbranch_scc1 {ok}
        s_waitcnt lgkmcnt(0)
        s_sub_u32 s{sPROF+2}, s{sPROF+2}, s{sPROF+8}
        s_cmp_lt_u32 s{sPROF+2}, s{sPROF+6}
        s_cbranch_scc1 {lp}
        {ok}:""")
    if CFG['cal']:
        lp=p.lab("cal"); ok=p.lab("calok")
        p(f"""s_waitcnt vmcnt(0) lgkmcnt(0)
        s_cmp_eq_u32 s{sPROF}, 0
        s_cbranch_scc1 {ok}
        s_cmp_ge_u32 s{sWAVE}, 4
        s_cbranch_scc1 {ok}
        s_mov_b32 s{sPROF+4}, 100000
        {lp}:
        s_sleep 2
        {CALI()} s[{sPROF+2}:{sPROF+3}]
        s_sub_u32 s{sPROF+4}, s{sPROF+4}, 1
        s_cbranch_scc1 {ok}
        s_waitcnt lgkmcnt(0)
        s_sub_u32 s{sPROF+2}, s{sPROF+2}, s{sPROF}
        s_cmp_lt_u32 s{sPROF+2}, {CFG['cal'][1]}
        s_cbranch_scc1 {lp}
        {ok}:""")
    p("s_endpgm")
S4=lambda r:f"s[{r}:{r+3}]"
SPIN=1<<18

def srd(lst):
    for r,n in lst: p(f"s_mov_b32 s{r+2}, {n}\ns_mov_b32 s{r+3}, 0x20000")
def prologue():
    STAMP('entry')
    p(f"""s_cmp_ge_u32 s2, 256
    s_cbranch_scc1 L_exit
    s_load_dwordx2 s[{sX}:{sX+1}], s[0:1], 0
    s_load_dwordx2 s[{sW}:{sW+1}], s[0:1], 8
    s_load_dwordx2 s[{sWS}:{sWS+1}], s[0:1], 80
    v_lshrrev_b32 v1, 6, v0
    v_and_b32 v0, 63, v0
    v_readfirstlane_b32 s{sWAVE}, v1
    s_and_b32 s{sG}, s2, 7
    s_lshr_b32 s{sSLOT}, s2, 3
    s_lshr_b32 s{sRQ}, s{sG}, 1
    s_and_b32 s{sHH}, s{sG}, 1
    s_and_b32 s{sRB}, s{sSLOT}, 3
    s_lshr_b32 s{sCT}, s{sSLOT}, 2""")
    if CFG['cal']: p(f"s_mov_b32 s{sPROF}, 0")
    if CFG['amp']: p(f"s_mov_b32 s{sPROF+2}, 0")
    if CFG['prof']:
        for i in range(1,10): p(f"s_mov_b32 s{sPROF+2*i}, 0")
    p(f"""s_cmp_lt_u32 s{sWAVE}, 4
    s_cbranch_scc1 L_comp""")
def prologue2(comp=0):
    if comp:
        p(f"""s_mov_b32 s{sTAG}, {EPO}
        s_load_dword s{sEP}, s[{sWS}:{sWS+1}], s{sTAG}
        s_load_dwordx2 s[{sWR}:{sWR+1}], s[0:1], 32
        s_load_dwordx2 s[{sOUT}:{sOUT+1}], s[0:1], 64""")
        srd(((sWS,268435456),(sWR,1280),(sOUT,2621440)))
        p(f"""s_mov_b32 s{sLO}, -1
        s_mov_b32 s{sLO+1}, 0
        s_mov_b32 s{sLO+2}, 0xfffff
        s_mov_b32 s{sLO+3}, 0xfffff""")
        return
    p(f"""s_mov_b32 s{sTAG}, {EPO}
    s_load_dword s{sEP}, s[{sWS}:{sWS+1}], s{sTAG}
    s_load_dwordx2 s[{sWO}:{sWO+1}], s[0:1], 16
    s_load_dwordx2 s[{sWR}:{sWR+1}], s[0:1], 32
    s_load_dwordx2 s[{sWG}:{sWG+1}], s[0:1], 40
    s_load_dwordx2 s[{sWU}:{sWU+1}], s[0:1], 48
    s_load_dwordx2 s[{sWD}:{sWD+1}], s[0:1], 56
    s_load_dwordx2 s[{sOUT}:{sOUT+1}], s[0:1], 64""")
    srd(((sWS,268435456),(sWO,819200),(sWR,1280),(sWG,1966080),(sWU,1966080),(sWD,1966080),(sOUT,2621440)))
    p(f"""s_mov_b32 s{sLO}, -1
    s_mov_b32 s{sLO+1}, 0
    s_mov_b32 s{sLO+2}, 0xfffff
    s_mov_b32 s{sLO+3}, 0xfffff""")
def mktag():
    p(f"""s_mul_i32 s{sTAG}, s{sEP}, 0x9e3779b1
    s_add_u32 s{sTAG}, s{sTAG}, 0x7f4a7c15
    s_and_b32 s{sTAG}, s{sTAG}, -16""")
def colbyte(dst, lc):
    t=sT+18
    p(f"""s_mul_i32 s{t}, s{lc}, 52
    s_lshr_b32 s{t}, s{t}, 8
    s_mul_i32 s{t+1}, s{t}, 5
    s_sub_u32 s{t+1}, s{lc}, s{t+1}
    s_mul_i32 s{t}, s{t}, 1280
    s_lshl_b32 s{t+1}, s{t+1}, 7
    s_mul_i32 s{dst}, s{sHH}, 640
    s_add_u32 s{dst}, s{dst}, s{t}
    s_add_u32 s{dst}, s{dst}, s{t+1}""")

def loader():
    CA_=sT+1; CB_=sT+2; CH=sT+3; XO=sT+4; WO_=sT+5; LB=sT+6; A=sT+7; B=sT+8; OFF=sT+9; SEQ=sT+10
    vX=2; vW=6; vt=10
    p(f"""s_sub_u32 s{HW}, s{sWAVE}, 4
    s_lshl_b32 s{A}, s{sCT}, 1
    s_add_u32 s{B}, s{A}, 1
    s_min_u32 s{B}, s{B}, 14""")
    colbyte(CA_,A); colbyte(CB_,B)
    p(f"""v_lshrrev_b32 v{vt}, 3, v0
    v_mul_u32_u24 v{vX}, 1280, v{vt}
    v_lshrrev_b32 v{vt+1}, 4, v0
    v_and_b32 v{vt+2}, 7, v0
    v_xor_b32 v{vt+2}, v{vt+2}, v{vt+1}
    v_lshl_add_u32 v{vX}, v{vt+2}, 4, v{vX}
    v_xor_b32 v{vX+1}, 64, v{vX}
    v_add_u32 v{vX+1}, {10240-1024}, v{vX+1}
    v_add_u32 v{vX+2}, {2*(10240-1024)}, v{vX}
    v_add_u32 v{vX+3}, {2*(10240-1024)}, v{vX+1}
    v_lshlrev_b32 v{vt+2}, 2, v{vt+1}
    v_and_b32 v{vt+3}, 15, v0
    v_xor_b32 v{vt+2}, v{vt+2}, v{vt+3}
    v_cmp_lt_u32 vcc, 7, v{vt+2}
    v_mov_b32 v{vt+3}, s{CA_}
    v_mov_b32 v{vt+4}, s{CB_}
    v_cndmask_b32 v{vt+3}, v{vt+3}, v{vt+4}, vcc
    v_and_b32 v{vt+2}, 7, v{vt+2}
    v_lshl_add_u32 v{vt+3}, v{vt+2}, 4, v{vt+3}
    v_mul_u32_u24 v{vW}, 3840, v{vt+1}
    v_add_u32 v{vW}, v{vW}, v{vt+3}""")
    for i in range(1,4): p(f"v_add_u32 v{vW+i}, {i*(4*3840-1024)}, v{vW}")
    ta,tc,tg=CFG['rot']
    pk=lambda t: sum(int(v)<<(4*i) for i,v in enumerate(t))
    p(f"""s_lshl_b32 s{A}, s{sRB}, 2
    s_lshr_b32 s{CH}, {pk(ta)}, s{A}
    s_and_b32 s{CH}, s{CH}, 15
    s_lshl_b32 s{A}, s{sCT}, 2
    s_lshr_b32 s{A}, {hex(pk(tc))}, s{A}
    s_and_b32 s{A}, s{A}, 15
    s_add_u32 s{CH}, s{CH}, s{A}
    s_lshl_b32 s{A}, s{sG}, 2
    s_lshr_b32 s{A}, {hex(pk(tg))}, s{A}
    s_and_b32 s{OFF}, s{A}, 15""")
    seqs=CFG['seqs']
    if seqs:
        n=len(seqs)
        p(f"""s_mul_i32 s{A}, s{CH}, {-(-2048//n)}
        s_lshr_b32 s{A}, s{A}, 11
        s_mul_i32 s{A}, s{A}, {n}
        s_sub_u32 s{CH}, s{CH}, s{A}""")
        for i,q in enumerate(seqs):
            assert sorted(q)==list("0123456789")
            if i: p(f"s_cmp_eq_u32 s{CH}, {i}\ns_cselect_b32 s{SEQ}, {hex(pk(q[:8]))}, s{SEQ}\ns_cselect_b32 s{SEQ+1}, {hex(pk(q[8:]))}, s{SEQ+1}")
            else: p(f"s_mov_b32 s{SEQ}, {hex(pk(q[:8]))}\ns_mov_b32 s{SEQ+1}, {hex(pk(q[8:]))}")
    else:
        p(f"""s_add_u32 s{CH}, s{CH}, s{OFF}
    s_mul_i32 s{A}, s{CH}, 205
    s_lshr_b32 s{A}, s{A}, 11
    s_mul_i32 s{A}, s{A}, 10
    s_sub_u32 s{CH}, s{CH}, s{A}""")
    p(f"""
    s_lshl_b32 s{A}, s{sRQ}, 2
    s_add_u32 s{A}, s{A}, s{sRB}
    s_lshl_b32 s{A}, s{A}, 2
    s_add_u32 s{A}, s{A}, s{HW}
    s_mul_i32 s{XO}, s{A}, {32*1280}
    s_mul_i32 s{WO_}, s{HW}, {16*3840}
    s_lshl_b32 s{LB}, s{HW}, 12""")
    CHW=SEQ
    p(f"s_mov_b32 s{CHW}, s{CH}")
    nx=dict(x=0,w=0)
    def issue(order,lim):
        global OPS
        for k in order:
            c=nx[k]; nx[k]+=1; assert c<=min(9,lim)
            slot=(c%4)*32768; ch=CH if k=='x' else CHW
            if k=='x': p(f"""s_lshl_b32 s{A}, s{ch}, 7
                s_add_u32 m0, s{LB}, {slot}
                s_add_u32 s{A}, s{A}, s{XO}""")
            else: p(f"""s_mul_i32 s{A}, s{ch}, {64*3840}
                s_add_u32 m0, s{LB}, {slot+16384}
                s_add_u32 s{A}, s{A}, s{WO_}""")
            for i in range(4):
                if k=='x': p(f"buffer_load_dwordx4 v{vX+i}, {S4(sX)}, s{A} offen offset:{i*1024} {CFG['xpol'] if c<CFG['xnt'] else ''} lds")
                else: p(f"buffer_load_dwordx4 v{vW+i}, {S4(sW)}, s{A} offen offset:{i*1024} {'nt' if c<CFG['wnt'] else CFG['wpol']} lds")
            p(f"""s_add_u32 s{ch}, s{ch}, 1
            s_cmp_eq_u32 s{ch}, 10
            s_cselect_b32 s{ch}, 0, s{ch}""")
            OPS+=[c]*4
    ORD=CFG['ord'].split(',')
    srd(((sX,2621440),(sW,2457600)))
    p("s_waitcnt lgkmcnt(0)")
    STAMP('i0')
    for c in range(1):
        issue(ORD[0],3); STAMP('i%d'%(c+1))
        if c==0:
            prologue2()
            p(f"""v_cmp_lt_u32 vcc, 7, v0
            v_lshlrev_b32 v{vt}, 4, v0
            v_add_u32 v{vt}, {L_FLG}, v{vt}
            v_cndmask_b32 v{vt+2}, 0, -1, vcc
            v_cndmask_b32 v{vt+3}, 0, -1, vcc
            v_cndmask_b32 v{vt+4}, 0, -1, vcc
            v_cndmask_b32 v{vt+5}, 0, -1, vcc
            ds_write_b128 v{vt}, v[{vt+2}:{vt+5}]""")
            early()
    p("s_waitcnt lgkmcnt(0)")
    mktag()
    stats_setup()
    p(f"s_cmp_ge_u32 s{HW}, 2\ns_cbranch_scc1 L_helperB")
    nx0=dict(nx); ops0=list(OPS)
    def steps(hook):
        global OPS
        nx.update(nx0); OPS=list(ops0)
        STAMP('i1s')
        issue(ORD[1],3)
        STAMP('i1e')
        for c in range(8):
            sd=CFG['sdef']
            if c==0 and -1 in sd:
                assert ORD[0][0]=='x'; p(f"s_waitcnt vmcnt({len(OPS)-4})")
                STAMP('x0')
                fill=stats(0)
                for k in range(4):
                    if sd[k]==-1: p(fill[k])
                if max(sd)==-1: stats_red()
            vmwait(c)
            p("s_barrier")
            STAMP('ld%d'%c)
            if c==0 and -1 not in sd: fill=stats(0)
            if c==CFG['stg'] and CFG['stb']: stats_get(); hook(100)
            issue(ORD[2+c],c+3)
            if c==0: p("s_waitcnt lgkmcnt(0)")
            for k in range(4):
                if sd[k]==c: p(fill[k])
            if c==max(0,max(sd)):
                if max(sd)>=0: stats_red()
                stats_pub(); OPS.append('stw')
            if c==CFG['stg'] and not CFG['stb']: stats_get(); hook(100)
            hook(c)
        assert nx==dict(x=10,w=10)
    return steps
aS=44; dS=64; sacc=60; sone=43; sDBL=sDBG; sSTP=sDBG+1
def stats_setup():
    vt=10
    tc=[int(x) for x in CFG['rot'][1]]
    assert not CFG['seqs'] and sorted(tc+[(tc[7]+1)%10,(tc[7]+2)%10])==list(range(10))
    p(f"""s_lshl_b32 s{sT+16}, s{HW}, 12
    v_bfe_u32 v{vt}, v0, 1, 3
    v_lshrrev_b32 v{vt+1}, 5, v0
    v_lshlrev_b32 v{vt+1}, 2, v{vt+1}
    v_xor_b32 v{vt}, v{vt}, v{vt+1}
    v_lshlrev_b32 v{vt}, 4, v{vt}
    v_and_b32 v{vt+1}, 31, v0
    v_lshl_add_u32 v{vt}, v{vt+1}, 7, v{vt}
    v_add_u32 v{aS}, s{sT+16}, v{vt}
    v_mov_b32 v{sone}, 0x3f803f80
    s_lshl_b32 s{sSTP}, s{sG}, 2
    s_add_u32 s{sSTP}, s{sSTP}, s{sRB}
    s_lshl_b32 s{sSTP}, s{sSTP}, 14
    s_lshl_b32 s{sT+16}, s{HW}, 9
    s_add_u32 s{sSTP}, s{sSTP}, s{sT+16}
    s_add_u32 s{sSTP}, s{sSTP}, {STP}
    v_lshrrev_b32 v{vt}, 5, v0
    v_lshlrev_b32 v{vt}, 11, v{vt}
    v_lshl_add_u32 v{aS+4}, v{vt+1}, 4, v{vt}
    s_lshl_b32 s{sT+16}, s{sCT}, 11
    s_cmp_eq_u32 s{sCT}, 7
    s_cselect_b32 s{sT+16}, {STX-STP}, s{sT+16}
    v_lshl_add_u32 v{aS+5}, v{vt+1}, 4, s{sT+16}""")
    for i in range(1,4): p(f"v_xor_b32 v{aS+i}, {16*i}, v{aS}")
    for i in range(4): p(f"v_mov_b32 v{sacc+i}, 0")
    if CFG['smode'] in ('dotx','dotc'):
        for i in range(2*CFG['nacc']): p(f"v_mov_b32 v{102+i}, 0")
def stats(c):
    if 'nostats' in CFG['xp']: return ['s_nop 0']*4
    for i in range(4): p(f"ds_read_b128 {vr(dS+4*i,4)}, v{aS+i} offset:{c*32768}")
    L=[]
    for i in range(4):
        g=f"s_waitcnt lgkmcnt({3-i})"
        for j in range(4):
            r=dS+4*i+j
            u=80+2*(j&1)
            if CFG['smode']=='dotx':
                a=102+2*((4*i+j)%CFG['nacc']); g+=f"\nv_dot2_f32_bf16 v{a}, v{r}, v{sone}, v{a}\nv_dot2_f32_bf16 v{a+1}, v{r}, v{r}, v{a+1}"
            elif CFG['smode']=='dotc':
                a=102+2*((4*i+j)%CFG['nacc']); g+=f"\nv_dot2c_f32_bf16 v{a}, v{r}, v{sone}\nv_dot2c_f32_bf16 v{a+1}, v{r}, v{r}"
            elif CFG['smode']=='dot': g+=f"\nv_dot2_f32_bf16 v{sacc+(j&1)}, v{r}, v{sone}, v{sacc+(j&1)}\nv_dot2_f32_bf16 v{sacc+2+(j&1)}, v{r}, v{r}, v{sacc+2+(j&1)}"
            elif CFG['smode']=='valu': g+=f"\nv_lshlrev_b32 v{u}, 16, v{r}\nv_and_b32 v{u+1}, 0xffff0000, v{r}\nv_add_f32 v{sacc}, v{sacc}, v{u}\nv_fmac_f32 v{sacc+2}, v{u}, v{u}\nv_add_f32 v{sacc+1}, v{sacc+1}, v{u+1}\nv_fmac_f32 v{sacc+3}, v{u+1}, v{u+1}"
            elif CFG['smode']=='pk': g+=f"\nv_lshlrev_b32 v{u}, 16, v{r}\nv_and_b32 v{u+1}, 0xffff0000, v{r}\nv_pk_add_f32 v[{sacc}:{sacc+1}], v[{sacc}:{sacc+1}], v[{u}:{u+1}]\nv_pk_fma_f32 v[{sacc+2}:{sacc+3}], v[{u}:{u+1}], v[{u}:{u+1}], v[{sacc+2}:{sacc+3}]"
        L.append(g)
    return L
def stats_red():
    t=sacc
    p(f"""s_nop 1
    v_add_f32 v{t}, v{t}, v{t+1}
    v_add_f32 v{t+1}, v{t+2}, v{t+3}
    v_mov_b32 v{t+2}, s{sTAG}
    s_nop 0
    v_permlane32_swap_b32 v{t}, v{t+1}
    s_nop 0
    v_add_f32 v{t}, v{t}, v{t+1}
    v_mov_b32 v{t+1}, v{t}
    s_nop 1
    v_permlane32_swap_b32 v{t}, v{t+1}""")
def stats_pub():
    t=sacc
    p(f"""s_mov_b64 exec, s[{sLO}:{sLO+1}]
    buffer_store_dwordx4 {vr(t,4)}, v{aS+5}, {S4(sWS)}, s{sSTP} offen sc1
    s_mov_b64 exec, -1""")
def stats_ld():
    return "\n".join(f"s_add_u32 s{sSTP+1}, s{sSTP}, {4096*i}\nbuffer_load_dwordx4 {vr(dS+4*i,4)}, v{aS+4}, {S4(sWS)}, s{sSTP+1} offen sc1" for i in range(4))
def stats_get():
    p(stats_ld()); OPS.extend(['stp']*4)
def stats_fin(t,B):
    vmwait('stp')
    lp=p.lab("stl"); ok=p.lab("stok"); rt=p.lab("strt")
    p(f"""s_mov_b32 s{B}, {SPIN}
    {lp}:
    v_xor_b32 v{t}, v{dS+2}, v{dS+6}
    v_xor_b32 v{t+1}, v{dS+10}, v{dS+14}
    v_xor_b32 v{t+2}, s{sTAG}, v{dS+2}
    v_xor_b32 v{t+3}, s{sTAG}, v{dS+10}
    v_or3_b32 v{t}, v{t}, v{t+1}, v{t+2}
    v_or_b32 v{t}, v{t}, v{t+3}
    v_cmp_ne_u32 vcc, 0, v{t}
    v_add_f32 v{t+1}, v{dS}, v{dS+4}
    v_add_f32 v{t+2}, v{dS+1}, v{dS+5}
    s_cbranch_vccnz {rt}
    {ok}:""")
    n0=len(p.L)
    p(f"{rt}:"); spin(B,lp,ok,1); p(stats_ld()); p(f"s_waitcnt vmcnt(0)\ns_branch {lp}")
    COLD.append("\n".join(p.L[n0:])); del p.L[n0:]
    p(f"""v_add_f32 v{t+3}, v{dS+8}, v{dS+12}
    v_add_f32 v{t+4}, v{dS+9}, v{dS+13}
    v_add_f32 v{t+1}, v{t+1}, v{t+3}
    v_add_f32 v{t+2}, v{t+2}, v{t+4}
    s_nop 1
    v_permlane32_swap_b32 v{t+1}, v{t+2}
    s_nop 0
    v_add_f32 v{t+1}, v{t+1}, v{t+2}
    v_mul_f32 v{t+1}, {1/640!r}, v{t+1}
    v_mov_b32 v{t+2}, v{t+1}
    s_nop 1
    v_permlane32_swap_b32 v{t+1}, v{t+2}
    s_nop 0
    v_fma_f32 v{t+2}, -v{t+1}, v{t+1}, v{t+2}
    v_max_f32 v{t+2}, 0, v{t+2}""")
    bf16r(t+2,t+2)
    p(f"v_add_f32 v{t+2}, 0x3727c5ac, v{t+2}")
    bf16r(t+2,t+2)
    p(f"""v_sqrt_f32 v{t+2}, v{t+2}
    v_xor_b32 v{t+1}, 0x80000000, v{t+1}""")
    bf16r(t+2,t+2)
    p(f"""v_rcp_f32 v{t+5}, v{t+2}
    v_cvt_pk_bf16_f32 v{t+4}, v{t+1}, v{t+1}
    v_and_b32 v{t+3}, 31, v0
    s_lshl_b32 s{B}, s{HW}, 8
    s_add_u32 s{B}, s{B}, {L_SA}
    v_lshl_add_u32 v{t+1}, v{t+3}, 3, s{B}
    s_lshl_b32 s{B}, s{HW}, 7
    s_add_u32 s{B}, s{B}, {L_SR}
    v_lshl_add_u32 v{t+2}, v{t+3}, 2, s{B}
    ds_write_b64 v{t+1}, v[{t+4}:{t+5}]
    ds_write_b32 v{t+2}, v{t+5}""")
vPT=21; vDUM=39
HS=sT+12; HA=28
def early():
    A=sT+20; B=sT+21; vt=10
    p(f"""s_lshl_b32 s{A}, s{sSLOT}, 2
    s_add_u32 s{A}, s{A}, s{HW}
    s_mul_i32 s{A}, s{A}, 60
    v_min_u32 v{vt}, 59, v0
    v_add_u32 v{vt}, s{A}, v{vt}
    v_mul_u32_u24 v{vt+1}, 6554, v{vt}
    v_lshrrev_b32 v{vt+1}, 20, v{vt+1}
    v_mul_u32_u24 v{vt+2}, 160, v{vt+1}
    v_sub_u32 v{vt}, v{vt}, v{vt+2}
    v_lshlrev_b32 v{vt}, 7, v{vt}
    v_cmp_gt_u32 vcc, 32, v{vt+1}
    v_and_b32 v{vt+2}, 1, v{vt+1}
    v_mul_u32_u24 v{vt+2}, 20480, v{vt+2}
    v_bfe_u32 v{vt+3}, v{vt+1}, 1, 3
    v_mul_u32_u24 v{vt+3}, 163840, v{vt+3}
    v_add_u32 v{vt+2}, v{vt+2}, v{vt+3}
    v_lshrrev_b32 v{vt+3}, 4, v{vt+1}
    v_mul_u32_u24 v{vt+3}, {KB}, v{vt+3}
    s_mul_i32 s{A}, s{sRQ}, 40960
    v_add3_u32 v{vt+2}, v{vt+2}, v{vt+3}, s{A}
    v_and_b32 v{vt+3}, 15, v{vt+1}
    v_mul_u32_u24 v{vt+3}, 81920, v{vt+3}
    s_mul_i32 s{A}, s{sRQ}, 20480
    s_add_u32 s{A}, s{A}, {VB}
    v_add_u32 v{vt+3}, s{A}, v{vt+3}
    v_cndmask_b32 v{vt+2}, v{vt+3}, v{vt+2}, vcc
    s_mul_i32 s{A}, s{sHH}, {8*163840}
    v_add3_u32 v{vPT}, v{vt}, v{vt+2}, s{A}
""")
    p(f"""s_lshl_b32 s{A}, s{sSLOT}, 2
    s_add_u32 s{A}, s{A}, s{HW}
    s_mul_i32 s{B}, s{A}, 20
    v_min_u32 v{vt}, 19, v0
    v_add_u32 v{vt}, s{B}, v{vt}
    v_mul_u32_u24 v{vt+1}, 13108, v{vt}
    v_lshrrev_b32 v{vt+1}, 20, v{vt+1}
    v_mul_u32_u24 v{vt+2}, 80, v{vt+1}
    v_sub_u32 v{vt}, v{vt}, v{vt+2}
    v_lshlrev_b32 v{vt}, 7, v{vt}
    v_cmp_gt_u32 vcc, 16, v{vt+1}
    v_and_b32 v{vt+2}, 1, v{vt+1}
    v_mul_u32_u24 v{vt+2}, 10240, v{vt+2}
    v_lshrrev_b32 v{vt+3}, 1, v{vt+1}
    v_mul_u32_u24 v{vt+3}, 163840, v{vt+3}
    s_mul_i32 s{B}, s{sRQ}, 40960
    s_add_u32 s{B}, s{B}, {KH+20480}
    v_add3_u32 v{vt+2}, v{vt+2}, v{vt+3}, s{B}
    v_and_b32 v{vt+3}, 15, v{vt+1}
    v_mul_u32_u24 v{vt+3}, 81920, v{vt+3}
    s_mul_i32 s{B}, s{sRQ}, 20480
    s_add_u32 s{B}, s{B}, {VH+10240}
    v_add_u32 v{vt+3}, s{B}, v{vt+3}
    v_cndmask_b32 v{vt+2}, v{vt+3}, v{vt+2}, vcc
    s_mul_i32 s{B}, s{sHH}, {8*163840}
    v_add3_u32 v{vHT}, v{vt}, v{vt+2}, s{B}
    s_lshl_b32 s{B}, s{sG}, 7
    s_add_u32 s{A}, s{A}, s{B}
    s_lshl_b32 s{A}, s{A}, 7
    s_add_u32 s{A}, s{A}, {FH}
    v_mov_b32 v{vt}, s{A}
    v_cmp_lt_u32 vcc, 19, v0
    s_nop 1
    v_cndmask_b32 v{vHT}, v{vHT}, v{vt}, vcc""")
    nsm=sum(CFG['npf']); per=(100-5*nsm)//2
    if per>0:
        p(f"""s_mul_i32 s{A}, s{sG}, 5
        s_lshr_b32 s{A}, s{A}, 1
        s_mul_i32 s{A}, s{A}, 5
        s_lshr_b32 s{B}, s{HW}, 1
        s_mul_i32 s{B}, s{B}, {per}
        s_add_u32 s{A}, s{A}, s{B}
        s_add_u32 s{A}, s{A}, {5*nsm}
        v_min_u32 v{vt}, {per-1}, v0
        v_add_u32 v{vt}, s{A}, v{vt}
        v_subrev_u32 v{vt+1}, 100, v{vt}
        v_min_u32 v{vt}, v{vt}, v{vt+1}
        s_lshl_b32 s{A}, s{sSLOT}, 1
        s_and_b32 s{B}, s{HW}, 1
        s_add_u32 s{A}, s{A}, s{B}
        s_mul_i32 s{A}, s{A}, 12800
        v_lshl_add_u32 v{vTW}, v{vt}, 7, s{A}""")
    ge=p.lab("mtge"); jn=p.lab("mtj")
    p(f"""s_cmp_ge_u32 s{HW}, 2
    s_cbranch_scc1 {ge}
    v_min_u32 v{vt}, 59, v0
    v_mul_u32_u24 v{vt+1}, 86, v{vt}
    v_lshrrev_b32 v{vt+1}, 8, v{vt+1}
    v_mul_u32_u24 v{vt+1}, {3072-384}, v{vt+1}
    v_lshl_add_u32 v{vt}, v{vt}, 7, v{vt+1}
    s_mul_i32 s{A}, s{sSLOT}, {20*3072}
    s_mul_i32 s{B}, s{sG}, 384
    s_branch {jn}
    {ge}:
    {jn}:
    s_add_u32 s{A}, s{A}, s{B}
    v_add_u32 v{vTM}, s{A}, v{vt}
    s_sub_u32 s{A}, s{sSLOT}, {0 if CFG['dw3'] else 17}
    s_lshl_b32 s{A}, s{A}, {1 if CFG['dw3'] else 2}
    s_add_u32 s{A}, s{A}, s{HW}
    s_mul_i32 s{A}, s{A}, {24 if CFG['dw3'] else 26}
    v_min_u32 v{vt}, {47 if CFG['dw3'] else 51}, v0
    v_lshrrev_b32 v{vt+1}, 1, v{vt}
    v_add_u32 v{vt+1}, s{A}, v{vt+1}
    v_min_u32 v{vt+1}, 1535, v{vt+1}
    v_mul_u32_u24 v{vt+1}, 1280, v{vt+1}
    v_and_b32 v{vt}, 1, v{vt}
    v_lshl_add_u32 v{vt}, v{vt}, 7, v{vt+1}
    s_mul_i32 s{B}, s{sG}, 160
    s_and_b32 s{B}, s{B}, -128
    v_add_u32 v{vTD}, s{B}, v{vt}""")
vTD=25; vHT=26
vTW=22; vTM=24
def touch(va,srd_,pair,pol=''):
    if pair:
        p(f"buffer_load_dword v{vDUM}, v{va}, {S4(srd_)}, 0 offen nt\nbuffer_load_dword v{vDUM}, v{va}, {S4(srd_)}, 0 offen offset:64")
        return 2
    p(f"buffer_load_dword v{vDUM}, v{va}, {S4(srd_)}, 0 offen {pol}")
    return 1
def wtouch(win,isB):
    n=0
    if CFG['wtw']==win and 100-5*sum(CFG['npf'])>0:
        n+=touch(vTW,sWO,CFG['wpair'])
    if CFG['mtw']==win:
        if not isB:
            u=p.lab("tu"); j=p.lab("tj")
            p(f"s_cmp_eq_u32 s{HW}, 0\ns_cbranch_scc0 {u}")
            touch(vTM,sWG,CFG['mpair'])
            p(f"s_branch {j}\n{u}:")
            n+=touch(vTM,sWU,CFG['mpair'])
            p(f"{j}:")
    return n
def qkv_touch():
    if CFG['pt']==99: return
    if CFG['ht']==1: OPS.extend(['pt']*touch(vHT,sWS,0,''))
    OPS.extend(['pt']*touch(vPT,sWS,CFG['qpair'],CFG['tpol']))
    if CFG['ht']==2: OPS.extend(['pt']*touch(vHT,sWS,0,''))
vH=16
OPS=[]
def vmwait(*tags):
    last=max(i for i,t in enumerate(OPS) if t in tags)
    n=len(OPS)-1-last; assert n<64
    p(f"s_waitcnt vmcnt({n})")
HW=sT
def spin(cnt,lp,ok,sleep=0):
    p(f"s_sub_u32 s{cnt}, s{cnt}, 1\ns_cbranch_scc1 {ok}")
    if sleep: p(f"s_sleep {sleep}")
def lds_wait(addr_v,tmp,cnt,cmp,val,sleep=1):
    lp=p.lab("lw"); ok=p.lab("lwok")
    p(f"""s_mov_b32 s{cnt}, {SPIN*4}
    {lp}:
    ds_read_b32 v{tmp}, v{addr_v}
    s_waitcnt lgkmcnt(0)
    v_cmp_{cmp}_u32 vcc, {val}, v{tmp}
    s_nop 0
    s_cbranch_vccz {ok}""")
    spin(cnt,lp,ok,sleep)
    p(f"s_branch {lp}\n{ok}:")
sHL,sHF,sHO,sPH,sHD,sT0=range(sT+1,sT+7)
def att_ids():
    p(f"""s_lshr_b32 s{sHL}, s{sSLOT}, 1
    s_and_b32 s{sHF}, s{sSLOT}, 1
    s_and_b32 s{sHO}, s{sHL}, 1
    s_lshr_b32 s{sPH}, s{sHL}, 1
    s_lshl_b32 s{sHD}, s{sHH}, 3
    s_add_u32 s{sPH}, s{sPH}, s{sHD}
    s_lshl_b32 s{sHD}, s{sHH}, 4
    s_add_u32 s{sHD}, s{sHD}, s{sHL}
    s_lshl_b32 s{sT0}, s{sRQ}, 1
    s_add_u32 s{sT0}, s{sT0}, s{sHF}
    s_lshl_b32 s{sT0}, s{sT0}, 3""")
def flag_addr(vd,vt,withq,A,B,C):
    p(f"""s_lshr_b32 s{A}, s{sHL}, 1
    s_mul_i32 s{A}, s{A}, 5
    s_lshl_b32 s{B}, s{sHO}, 1
    s_add_u32 s{A}, s{A}, s{B}
    s_add_u32 s{B}, s{A}, 2
    s_lshr_b32 s{A}, s{A}, 3
    s_lshr_b32 s{B}, s{B}, 3
    s_lshl_b32 s{B}, s{B}, 4
    s_or_b32 s{A}, s{A}, s{B}
    s_add_u32 s{B}, s{A}, 0x55
    s_lshl_b32 s{C}, s{B}, 8
    s_or_b32 s{A}, s{C}, s{A if withq else B}
    s_mul_i32 s{B}, s{sHL}, 20
    s_add_u32 s{C}, s{B}, 19
    s_lshr_b32 s{B}, s{B}, 6
    s_lshr_b32 s{C}, s{C}, 6
    s_lshl_b32 s{C}, s{C}, 4
    s_or_b32 s{B}, s{B}, s{C}
    s_add_u32 s{B}, s{B}, 0xaa
    s_lshl_b32 s{B}, s{B}, 16
    s_or_b32 s{A}, s{A}, s{B}
    v_and_b32 v{vt}, 60, v0
    v_min_u32 v{vt}, 20, v{vt}
    v_bfe_u32 v{vt}, s{A}, v{vt}, 4
    v_and_b32 v{vd}, 3, v0
    v_lshlrev_b32 v{vd}, 2, v{vd}
    v_lshl_add_u32 v{vd}, v{vt}, 7, v{vd}""")
def flag_poll(va,vt,soff,cnt,first=True,sleep=0):
    lp=p.lab("fp"); ok=p.lab("fpok");
    p(f"s_mov_b32 s{cnt}, {SPIN}")
    if not first:
        md=p.lab("fpm"); p(f"s_branch {md}")
    p(f"""{lp}:
    buffer_load_dword v{vt}, v{va}, {S4(sWS)}, s{soff} offen sc1""")
    if not first: p(f"{md}:")
    p(f"""s_waitcnt vmcnt(0)
    v_cmp_ne_u32 vcc, s{sTAG}, v{vt}
    s_nop 0
    s_cbranch_vccz {ok}""")
    spin(cnt,lp,ok,sleep)
    p(f"s_branch {lp}\n{ok}:")
def flag_poll2(va,vt,soff,cnt,n=2,gap=0):
    lp=p.lab("fq"); ok=p.lab("fqok")
    ld=lambda i: f"buffer_load_dword v{vt+i}, v{va}, {S4(sWS)}, s{soff} offen sc1"
    p(f"s_mov_b32 s{cnt}, {SPIN}")
    for i in range(n-1):
        p(ld(i))
        if gap: p(f"s_sleep {gap}")
    p(f"{lp}:")
    for i in range(n):
        p(f"""{ld((i+n-1)%n)}
        s_waitcnt vmcnt({n-1})
        v_cmp_ne_u32 vcc, s{sTAG}, v{vt+i}
        s_nop 0
        s_cbranch_vccz {ok}""")
    spin(cnt,lp,ok)
    p(f"s_branch {lp}\n{ok}:")
def kv_dma(aLin,aTl,sK,sV,sL,A,B,sHO=sHO):
    p(f"""s_mul_i32 s{A}, s{sHO}, 1536
    s_add_u32 s{A}, s{A}, s{sK}
    s_mov_b32 m0, s{sL}
    s_add_u32 s{B}, s{A}, 1536
    buffer_load_dwordx4 v{aLin}, {S4(sWS)}, s{A} offen sc1 lds
    buffer_load_dwordx4 v{aLin}, {S4(sWS)}, s{B} offen offset:1024 sc1 lds
    s_sub_u32 s{A}, s{sK}, 2048
    s_sub_u32 s{B}, s{sV}, 3072
    buffer_load_dwordx4 v{aTl}, {S4(sWS)}, s{A} offen offset:2048 sc1 lds
    buffer_load_dwordx4 v{aLin}, {S4(sWS)}, s{B} offen offset:3072 sc1 lds
    s_add_u32 m0, s{sL}, 4096
    s_add_u32 s{B}, s{sV}, 1024
    buffer_load_dwordx4 v{aLin}, {S4(sWS)}, s{B} offen sc1 lds
    s_mov_b64 exec, s[{sLO}:{sLO+1}]
    buffer_load_dwordx4 v{aLin}, {S4(sWS)}, s{B} offen offset:1024 sc1 lds
    s_mov_b64 exec, -1""")
def kv_addr(aLin,aTl,t):
    p(f"""v_lshlrev_b32 v{aLin}, 4, v0
    v_lshrrev_b32 v{t}, 5, v0
    v_mul_u32_u24 v{t}, {2560-512}, v{t}
    v_add3_u32 v{aTl}, v{aLin}, v{t}, s{sK1024}""")
sK1024=sT+21

def halo_flag(vt,A,B,C):
    sk=p.lab("nohalo")
    p(f"""s_lshl_b32 s{A}, s{sCT}, 1
    s_add_u32 s{A}, s{A}, s{HW}
    s_sub_u32 s{A}, s{A}, 2
    s_sub_u32 s{B}, s{A}, 5
    s_cmp_lt_u32 s{B}, 10
    s_cselect_b32 s{B}, s{sRB}, 0
    s_cmp_lt_u32 s{sRQ}, 3
    s_cselect_b32 s{B}, s{B}, 0
    s_cmp_lt_u32 s{B}, 2
    s_cbranch_scc1 {sk}
    s_lshl_b32 s{C}, s{sG}, 4
    s_add_u32 s{A}, s{A}, s{C}
    s_lshl_b32 s{A}, s{A}, 2
    s_add_u32 s{A}, s{A}, s{B}
    s_lshl_b32 s{A}, s{A}, 8
    s_add_u32 s{A}, s{A}, {FH}
    s_lshl_b32 s{B}, s{HW}, 2
    s_add_u32 s{B}, s{B}, {F_STG-8}
    v_mov_b32 v{vt}, s{B}
    v_lshlrev_b32 v{vt+2}, 7, v0
    v_mov_b32 v{vt+3}, s{sTAG}""")
    lds_wait(vt,vt+1,C,'gt',2,0)
    p(f"""s_mov_b64 exec, 3
    buffer_store_dword v{vt+3}, v{vt+2}, {S4(sWS)}, s{A} offen sc1
    s_mov_b64 exec, -1""")
    STAMP('halo')
    p(f"{sk}:")
def helperA(steps):
    A=sT+7; B=sT+8; vt=10
    def hook(c):
        if c==CFG['pt']:
            qkv_touch(); OPS.extend(['pt']*wtouch('w1',0))
    steps(hook)
    for c in (8,9):
        vmwait(c); p("s_barrier"); STAMP('ld%d'%c)
        if c==9: STAMP('hb9')
        hook(c)
    stats_fin(vt,B)
    p("s_barrier\ns_waitcnt lgkmcnt(0)\ns_barrier")
    STAMP('hE1')
    att_ids()
    aLin=6; aTl=7; aF=8; D=40
    p(f"s_mov_b32 s{sK1024}, 1024")
    kv_addr(aLin,aTl,vt)
    flag_addr(aF,vt,0,A,B,sT+17)
    p(f"v_mov_b32 v{vt+1}, 1")
    sF=sT+9; sK=sT+10; sV=sT+11; sL=sT+16; C=sT+17
    dn=p.lab("g2done")
    p(f"""s_cmp_eq_u32 s{sT0}, 0
    s_cbranch_scc1 {dn}
    v_and_b32 v{vt+2}, 127, v{aF}
    v_sub_u32 v{vt+3}, v{aF}, v{vt+2}
    v_lshlrev_b32 v{vt+3}, 3, v{vt+3}
    v_lshl_add_u32 v{vt+2}, v{vt+2}, 5, v{vt+3}
    s_cmp_eq_u32 s{sHF}, 0
    s_cselect_b64 vcc, -1, 0
    s_cselect_b32 s{A}, {FH-2*16384+512-FL}, 0
    s_cselect_b32 s{B}, {KH-KB}, 0
    s_cselect_b32 s{sF}, 14, 11
    v_cndmask_b32 v{aF}, v{aF}, v{vt+2}, vcc
    s_lshl_b32 s{sF}, s{sG}, s{sF}
    s_add_u32 s{sF}, s{sF}, s{A}
    s_add_u32 s{sF}, s{sF}, {FL}
    s_lshl_b32 s{A}, s{HW}, 2
    s_sub_u32 s{A}, s{sT0}, s{A}
    s_sub_u32 s{A}, s{A}, 2
    s_mul_i32 s{sK}, s{A}, 2560
    s_mul_i32 s{sV}, s{A}, 1280
    s_mul_i32 s{A}, s{sPH}, {64*2560}
    s_add_u32 s{sK}, s{sK}, s{A}
    s_add_u32 s{sK}, s{sK}, s{B}
    s_add_u32 s{sK}, s{sK}, {KB}
    s_mul_i32 s{A}, s{sHD}, 81920
    s_add_u32 s{sV}, s{sV}, s{A}
    s_add_u32 s{sV}, s{sV}, s{B}
    s_add_u32 s{sV}, s{sV}, {VB}
    s_mul_i32 s{sL}, s{HW}, {-2*5632}
    s_add_u32 s{sL}, s{sL}, {L_KV+3*5632}""")
    if CFG['hpoll']: flag_poll2(aF,vt+5,sF,C,CFG['hpoll'],CFG['hsl'])
    else: flag_poll(aF,vt+5,sF,C,sleep=CFG['hsl'])
    STAMP('hf')
    kv_dma(aLin,aTl,sK,sV,sL,A,B)
    p(f"""s_sub_u32 s{sK}, s{sK}, 5120
    s_sub_u32 s{sV}, s{sV}, 2560
    s_sub_u32 s{sL}, s{sL}, 5632""")
    kv_dma(aLin,aTl,sK,sV,sL,A,B)
    p(f"""s_waitcnt vmcnt(0)
    {dn}:
    v_mov_b32 v{vt}, {F_G2}
    s_mov_b64 exec, 1
    ds_add_u32 v{vt}, v{vt+1}
    s_mov_b64 exec, -1""")
    STAMP('g2')
    if 'w3' in (CFG['wtw'],CFG['mtw']):
        p(f"v_mov_b32 v{vt}, {F_G1}")
        lds_wait(vt,vt+5,C,'gt',4,1)
        wtouch('w3',0)
        if CFG['dw3']: touch(vTD,sWD,CFG['mpair'])
        STAMP('mt')
        if CFG['prof'] and any('mt2' in x for x in CFG['st']): p("s_waitcnt vmcnt(0)"); STAMP('mt2')

def tr_addr(a0,t):
    tab=[[0,8],[4,12],[16,36],[20,28],[24,32]]
    pk=[sum((tab[u][rd]//4)<<(4*u) for u in range(5)) for rd in range(2)]
    A=sT+7; B=sT+8
    p(f"""s_mov_b32 s{A}, {pk[0]}
    s_mov_b32 s{B}, {pk[1]}
    v_bfe_u32 v{t}, v0, 2, 2
    v_mul_u32_u24 v{t}, 160, v{t}
    v_and_b32 v{t+1}, 3, v0
    v_mad_u32_u24 v{t}, v{t+1}, 40, v{t}
    v_lshrrev_b32 v{t+1}, 4, v0""")
    for s_ in range(5):
        p(f"""v_add_u32 v{t+2}, {4*s_}, v{t+1}
        v_mul_u32_u24 v{t+4}, 52, v{t+2}
        v_lshrrev_b32 v{t+4}, 8, v{t+4}
        v_mul_u32_u24 v{t+5}, 5, v{t+4}
        v_sub_u32 v{t+2}, v{t+2}, v{t+5}
        v_lshlrev_b32 v{t+2}, 2, v{t+2}
        v_mul_u32_u24 v{t+4}, 10, v{t+4}""")
        for rd in range(2):
            p(f"""v_bfe_u32 v{t+3}, s{(A,B)[rd]}, v{t+2}, 4
            v_add_u32 v{t+3}, v{t+3}, v{t+4}
            v_mul_u32_u24 v{t+3}, 640, v{t+3}
            v_add_u32 v{a0+2*s_+rd}, v{t+3}, v{t}""")
sBLK,sJ=sT+9,sT+10
def wo_ids():
    p(f"""s_lshr_b32 s{sBLK}, s{sSLOT}, 3
    s_lshl_b32 s{sJ}, s{sG}, 2
    s_add_u32 s{sBLK}, s{sBLK}, s{sJ}
    s_and_b32 s{sJ}, s{sSLOT}, 7""")
def clr_ids(A,B,C,D_):
    p(f"""s_lshr_b32 s{C}, s{sSLOT}, 3
    s_lshl_b32 s{B}, s{sG}, 2
    s_add_u32 s{C}, s{C}, s{B}
    s_lshl_b32 s{C}, s{C}, 3
    s_and_b32 s{B}, s{sSLOT}, 7
    s_add_u32 s{D_}, s{C}, s{B}
    s_lshr_b32 s{A}, s{D_}, 1
    s_mul_i32 s{A}, s{A}, 20480
    s_and_b32 s{B}, s{B}, 1
    s_mul_i32 s{B}, s{B}, 5120
    s_add_u32 s{A}, s{A}, s{B}
    s_add_u32 s{A}, s{A}, {OB}
    s_mul_i32 s{B}, s{sHH}, 10240
    s_add_u32 s{C}, s{A}, 10240
    s_add_u32 s{A}, s{A}, s{B}
    s_sub_u32 s{C}, s{C}, s{B}
    s_lshl_b32 s{D_}, s{D_}, 10
    s_add_u32 s{D_}, s{D_}, {PS}""")
def clears(part):
    A=sT+13; B=sT+14; C=sT+15; D_=sT+16; D=8; aL=7
    if part==0:
        clr_ids(A,B,C,D_)
        p(f"v_lshlrev_b32 v{aL}, 4, v0")
        for r in range(4): p(f"v_mov_b32 v{D+r}, -1")
        return
    st4=lambda so,off,sc: f"buffer_store_dwordx4 v[{D}:{D+3}], v{aL}, {S4(sWS)}, s{so} offen offset:{off} {sc}"
    w2=p.lab("clw2"); w3=p.lab("clw3"); dn=p.lab("cldn")
    p(f"""s_cmp_ge_u32 s{sWAVE}, 2
    s_cbranch_scc1 {w2}
    s_mul_i32 s{B}, s{sWAVE}, 2560
    s_add_u32 s{A}, s{A}, s{B}""")
    for o in (0,1024,1536): p(st4(A,o,""))
    p(f"""s_branch {dn}
    {w2}:
    s_cmp_eq_u32 s{sWAVE}, 3
    s_cbranch_scc1 {w3}
    s_mul_i32 s{C}, s2, 2560
    s_add_u32 s{C}, s{C}, {CAND}""")
    for o in (0,1024,1536): p(st4(C,o,"sc1"))
    p(f"""s_branch {dn}
    {w3}:
    s_cmp_ge_u32 s2, 24
    s_cbranch_scc1 {dn}
    s_lshl_b32 s{C}, s2, 10
    s_add_u32 s{C}, s{C}, {ACT}""")
    p(st4(C,0,"sc1"))
    p(f"{dn}:")
def code_pf():
    A=sT+18
    p(f"""s_getpc_b64 s[{A}:{A+1}]
    L_pc:
    s_sub_u32 s{A}, s{A}, L_pc-{NAME}_kernel
    s_subb_u32 s{A+1}, s{A+1}, 0
    s_lshl_b32 s{A+2}, s{sSLOT}, 2
    s_add_u32 s{A+2}, s{A+2}, s{sWAVE}
    s_mul_i32 s{A+2}, s{A+2}, 384
    s_min_u32 s{A+2}, s{A+2}, (L_exit-{NAME}_kernel-384)&0xffffff80""")
    for i in range(3): p(f"s_load_dwordx2 s[100:101], s[{A}:{A+1}], s{A+2} offset:{i*128+60}")
def wave_sum(x,t):
    dp="row_mask:0xf bank_mask:0xf"
    for c in ("quad_perm:[1,0,3,2]","quad_perm:[2,3,0,1]","row_half_mirror","row_mirror"):
        p(f"s_nop 1\nv_add_f32_dpp v{x}, v{x}, v{x} {c} {dp}")
    for sw in (16,32):
        p(f"""v_mov_b32 v{t}, v{x}
        s_nop 1
        v_permlane{sw}_swap_b32 v{x}, v{t}
        s_nop 0
        v_add_f32 v{x}, v{x}, v{t}""")
sPF=sT+16
def pf_group(n=5):
    for i in range(n): p(f"s_load_dwordx2 s[100:101], s[{sWO}:{sWO+1}], s{sPF} offset:{i*128+60}")
    p(f"""s_add_u32 s{sPF}, s{sPF}, {n*128}
    s_sub_u32 s{sPF+2}, s{sPF+2}, 1
    s_add_u32 s{sPF+3}, s{sPF+1}, 12800
    s_cmp_eq_u32 s{sPF}, s{sPF+3}
    s_cselect_b32 s{sPF}, s{sPF+1}, s{sPF}""")
def helperB(steps):
    A=sT+7; B=sT+8; vt=2; aD=140; aT=146; aLin=12; D=40; WRr=32
    sO=sT+1; sL=sT+2; sL0=sT+3; sL1=sT+4; C=sT+5
    p("L_helperB:")
    vM=23; x=10; a=sT+16
    clr_ids(a,a+1,a+2,a+3)
    p(f"""s_mul_i32 s{a+1}, s{HW}, 25
    s_sub_u32 s{a+1}, s{a+1}, 50
    v_min_u32 v{x}, 24, v0
    v_add_u32 v{x}, s{a+1}, v{x}
    v_min_u32 v{x}, 48, v{x}
    s_sub_u32 s{a+3}, s{a+3}, {40*128}
    s_and_b32 s{a+1}, s{sSLOT}, 15
    s_lshl_b32 s{a+2}, s{sG}, 4
    s_add_u32 s{a+1}, s{a+1}, s{a+2}
    s_lshl_b32 s{a+1}, s{a+1}, 7
    s_add_u32 s{a+1}, s{a+1}, {FL-48*128}
    v_mov_b32 v{x+1}, s{a}
    v_mov_b32 v{x+2}, s{a+3}
    v_cmp_le_u32 vcc, 40, v{x}
    v_mov_b32 v{x+3}, s{a+1}
    s_mul_i32 s{a+1}, s{sSLOT}, {200*128}
    v_cndmask_b32 v{x+1}, v{x+1}, v{x+2}, vcc
    v_cmp_le_u32 vcc, 48, v{x}
    s_mul_i32 s{a}, s{HW}, {100*128}
    s_add_u32 s{a+1}, s{a+1}, s{a}
    v_cndmask_b32 v{x+1}, v{x+1}, v{x+3}, vcc
    v_lshl_add_u32 v{vM}, v{x}, 7, v{x+1}
    s_sub_u32 s{sPF+1}, s{a+1}, {200*128}
    s_mul_i32 s{sPF}, s{sG}, 5
    s_lshr_b32 s{sPF}, s{sPF}, 1
    s_mul_i32 s{sPF}, s{sPF}, 640
    s_add_u32 s{sPF}, s{sPF}, s{sPF+1}
    s_mov_b32 s{sPF+2}, 20
    v_lshlrev_b32 v{vH+4}, 4, v0
    v_add_u32 v{vH+4}, {H1}, v{vH+4}
    v_mul_u32_u24 v{WRr+5}, 20, v0""")
    aB=130; sK=sT+11; sN=sT+16; sS=sT+17
    def wo_setup():
        va=96
        wo_ids()
        T=[[0,2],[1,3],[4,9],[5,7],[6,8]]
        NIB=[sum((10*((4*s5+g_)//5)+T[(4*s5+g_)%5][rd]-(8*s5+2*g_-2))<<(4*(4*rd+g_)) for rd in range(2) for g_ in range(4)) for s5 in range(5)]
        for i in range(5):
            p(f"""v_add_u32 v{va}, {64*i}, v0
            v_mul_u32_u24 v{va+1}, 6554, v{va}
            v_lshrrev_b32 v{va+1}, 16, v{va+1}
            v_mul_u32_u24 v{va+2}, 10, v{va+1}
            v_sub_u32 v{va}, v{va}, v{va+2}
            v_and_b32 v{aB+5+i}, 28, v{va+1}
            v_and_b32 v{va+2}, 3, v{va+1}
            v_mul_u32_u24 v{va+2}, 1280, v{va+2}
            v_lshl_add_u32 v{va}, v{va}, 4, v{va+2}
            v_bfe_u32 v{va+1}, v{va+1}, 2, 2
            v_mul_u32_u24 v{va+1}, 10240, v{va+1}
            v_add_u32 v{aB+i}, v{va}, v{va+1}""")
            if 0<i<4: p(f"v_subrev_u32 v{aB+i}, {i*1024}, v{aB+i}")
        p(f"""s_lshr_b32 s{A}, s{sSLOT}, 3
        s_mul_i32 s{A}, s{A}, 5
        s_lshr_b32 s{A}, s{A}, 1
        s_add_u32 s{A}, s{A}, s{HW}
        s_sub_u32 s{sK}, s{A}, 2
        v_mov_b32 v{va}, 5120""")
        def woaddr(n):
            p(f"""s_add_u32 s{A}, s{sK}, {2*n}
            s_sub_u32 s{B}, s{A}, 10
            s_cselect_b32 s{A}, s{A}, s{B}
            s_sub_u32 s{B}, s{A}, 5
            s_cselect_b32 s{B}, s{A}, s{B}
            s_mul_i32 s{sS}, s{A}, 40960
            s_sub_u32 s{sS}, s{sS}, 10240
            s_mov_b32 s{sN}, {hex(NIB[0])}""")
            for k in range(1,5): p(f"s_cmp_eq_u32 s{B}, {k}\ns_cselect_b32 s{sN}, {hex(NIB[k])}, s{sN}")
            for i in range(5):
                p(f"""v_bfe_u32 v{va+1}, s{sN}, v{aB+5+i}, 4
                v_mad_u32_u24 v{va+1}, v{va+1}, v{va}, v{aB+i}
                v_add_u32 v{aD+5*n+i}, s{sS}, v{va+1}""")
        for n in range(5): woaddr(n)
    if CFG['wose']==0: wo_setup()
    npf=CFG['npf']
    for _ in range(npf[0]): pf_group()
    def hook(c):
        if c==100:
            p(f"buffer_load_dwordx4 v[{vH}:{vH+3}], v{vH+4}, {S4(sWS)}, 0 offen sc1"); OPS.append('h1')
            p(f"buffer_load_dwordx4 {vr(WRr,4)}, v{WRr+5}, {S4(sWR)}, 0 offen\nbuffer_load_dword v{WRr+4}, v{WRr+5}, {S4(sWR)}, 0 offen offset:16"); OPS.extend(['wr','wr'])
        if c==CFG['pt']:
            qkv_touch()
            OPS.extend(['pt']*wtouch('w1',1))
        if c==CFG['pt2']: OPS.extend(['pt']*touch(vM,sWS,CFG['qpair2'],CFG['tpol']))
    steps(hook)
    st=dict(n=0)
    def dma(cnt):
        for _ in range(min(cnt,50-st['n'])):
            n=st['n']; i=n%5; k=(n//5)%5
            if n==0 or n==25:
                p(f"""s_xor_b32 s{A}, s{sHH}, {n//25}
                s_mul_i32 s{sO}, s{A}, {320*1280}
                s_mul_i32 s{sL0}, s{A}, 51200
                s_add_u32 s{sL0}, s{sL0}, {L_WO}
                s_mul_i32 s{A}, s{sJ}, 160
                s_add_u32 s{sO}, s{sO}, s{A}""")
            if i==0: p(f"""s_add_u32 s{A}, s{sK}, {2*k}
                s_sub_u32 s{B}, s{A}, 10
                s_cselect_b32 s{A}, s{A}, s{B}
                s_mul_i32 s{sL}, s{A}, 5120
                s_add_u32 s{sL}, s{sL}, s{sL0}
                s_mov_b32 m0, s{sL}
                s_nop 0""")
            if i==4: p(f"s_add_u32 m0, s{sL}, 4096\ns_nop 0")
            p(f"buffer_load_dwordx4 v{aD+5*k+i}, {S4(sWO)}, s{sO} offen offset:{(i&3)*1024} {CFG['wopol']} lds")
            OPS.append('wo%d'%(n//25))
            st['n']+=1
    vmwait(8); p("s_barrier"); hook(8)
    p(f"v_lshlrev_b32 v{aLin}, 4, v0")
    vmwait(9); p("s_barrier"); hook(9)
    stats_fin(96,B)
    vmwait('h1')
    lp=p.lab("hello"); ok=p.lab("hello_ok"); ne=p.lab("noep")
    p(f"""s_mov_b32 s{A}, {SPIN}
    {lp}:
    v_xor_b32 v{vH}, s{sTAG}, v{vH}
    v_xor_b32 v{vH+1}, s{sTAG}, v{vH+1}
    v_xor_b32 v{vH+2}, s{sTAG}, v{vH+2}
    v_xor_b32 v{vH+3}, s{sTAG}, v{vH+3}
    v_or3_b32 v{vt}, v{vH}, v{vH+1}, v{vH+2}
    v_or_b32 v{vt}, v{vt}, v{vH+3}
    v_cmp_lt_u32 vcc, 15, v{vt}
    s_nop 0
    s_cbranch_vccz {ok}""")
    spin(A,lp,ok,4)
    p(f"""buffer_load_dwordx4 v[{vH}:{vH+3}], v{vH+4}, {S4(sWS)}, 0 offen sc1
    s_waitcnt vmcnt(0)
    s_branch {lp}
    {ok}:
    v_lshl_or_b32 v{vH}, v{vH+1}, 4, v{vH}
    v_lshl_or_b32 v{vH+2}, v{vH+3}, 4, v{vH+2}
    v_lshl_or_b32 v{vH}, v{vH+2}, 8, v{vH}
    v_and_b32 v{vt}, 1, v0
    v_readlane_b32 s{A}, v{vH}, 0
    v_readlane_b32 s{B}, v{vH}, 1
    v_cmp_eq_u32 vcc, 0, v{vt}
    v_mov_b32 v{vt+1}, s{A}
    v_mov_b32 v{vt+2}, s{B}
    v_cndmask_b32 v{vt+1}, v{vt+2}, v{vt+1}, vcc
    v_cmp_ne_u32 vcc, v{vt+1}, v{vH}
    v_mov_b32 v{vt}, {L_MODE}
    s_cmp_lg_u64 vcc, 0
    s_cselect_b32 s{sMODE}, 1, {CFG['force_slow']}
    v_mov_b32 v{vt+1}, s{sMODE}
    ds_write_b32 v{vt}, v{vt+1}
    s_barrier
    s_waitcnt lgkmcnt(0)
    s_barrier""")
    vmw=len(OPS)-1-max(i for i,t in enumerate(OPS) if t=='wr')
    STAMP('hE1')
    p(f"""v_mov_b32 v{vt}, 0x3f803f80
    v_mov_b32 v{vt+1}, 0
    s_waitcnt vmcnt({vmw})""")
    for k in range(5): p(f"v_dot2_f32_bf16 v{vt+1}, v{WRr+k}, v{vt}, v{vt+1}")
    p("s_nop 0")
    wave_sum(vt+1,vt+2)
    p(f"v_mov_b32 v{vt}, {L_SWS}\nds_write_b32 v{vt}, v{vt+1}")
    if CFG['wose']==1: wo_setup()
    halo_flag(vt,A,B,C)
    if CFG['wose']==2: wo_setup()
    p(f"""s_add_u32 s{A}, s2, s{HW}
    s_cmp_lg_u32 s{A}, 2
    s_cbranch_scc1 {ne}
    s_add_u32 s{A}, s{sEP}, 1
    v_mov_b32 v{vt}, {EPO}
    v_mov_b32 v{vt+1}, s{A}
    s_mov_b64 exec, 1
    buffer_store_dword v{vt+1}, v{vt}, {S4(sWS)}, 0 offen sc1
    s_mov_b64 exec, -1
    {ne}:""")
    p(f"v_mov_b32 v{vt}, {F_G1}")
    lds_wait(vt,vt+1,A,'gt',4,1)
    wtouch('w3',1)
    if CFG['wog2']:
        p(f"v_mov_b32 v{vt+2}, {F_G2}")
        lds_wait(vt+2,vt+1,A,'gt',2,1)
    STAMP('wo_s')
    del OPS[:]
    thr=CFG['wothr']; gs=CFG['wogs']; thr1=CFG['wothr1']
    def more(n,dyn=False):
        while n>0 and st['n']<50:
            k=min(gs,n)
            if dyn and thr1<thr and st['n']>=thr1:
                sk=p.lab("wog")
                p(f"""ds_read_b32 v{vt+1}, v{vt} offset:{F_G2-F_G1}
                s_waitcnt lgkmcnt(0)
                v_cmp_gt_u32 vcc, 2, v{vt+1}
                s_nop 0
                s_cbranch_vccz {sk}
                s_waitcnt vmcnt({max(0,thr1-k)})
                {sk}:""")
            if st['n']>=thr: p(f"s_waitcnt vmcnt({max(0,thr-k)})")
            dma(k); n-=k
    def sig(f):
        p(f"""v_mov_b32 v{vt+2}, {f}
        v_mov_b32 v{vt+3}, 1
        s_mov_b64 exec, 1
        ds_add_u32 v{vt+2}, v{vt+3}
        s_mov_b64 exec, -1""")
    more(25+min(thr,15),True)
    vmwait('wo0')
    sig(F_WOR)
    STAMP('wo_0')
    more(50)
    sig(F_WOD)
    STAMP('wo_1')
    p("s_waitcnt vmcnt(0)")
    sig(F_WO2)
    STAMP('wo')

ACC=64; CS=128; XF=132; WF=148; SEL=164; aX=168; aW=172; aST=174; aSG=178; vT=2
sWR_,sWC,sLC,sTY,sSO,sHALO,sFO,sSO2=range(sT,sT+8)
def gemm_setup():
    t=vT; A=sT+10; B=sT+11
    wave_ids(sWAVE,sWR_,sWC,sLC,sTY)
    p(f"""v_and_b32 v{t}, 31, v0
    s_lshl_b32 s{A}, s{sWR_}, 6
    v_add_u32 v{t+1}, s{A}, v{t}
    v_lshlrev_b32 v{t+1}, 7, v{t+1}
    v_lshrrev_b32 v{t+2}, 5, v0
    v_bfe_u32 v{t+3}, v0, 1, 3
    v_xor_b32 v{t+3}, v{t+3}, v{t+2}
    v_lshl_add_u32 v{aX}, v{t+3}, 4, v{t+1}""")
    for s in range(1,4): p(f"v_xor_b32 v{aX+s}, {32*s}, v{aX}")
    p(f"""v_bfe_u32 v{t+3}, v0, 2, 2
    v_lshl_add_u32 v{t+4}, v{t+2}, 3, v{t+3}
    v_lshlrev_b32 v{t+4}, 8, v{t+4}
    s_lshl_b32 s{A}, s{sWC}, 1
    s_or_b32 s{A}, s{A}, s{sWR_}
    v_xor_b32 v{t+3}, s{A}, v{t+3}
    v_lshl_add_u32 v{t+4}, v{t+3}, 6, v{t+4}
    v_bfe_u32 v{t+3}, v0, 4, 1
    v_lshl_add_u32 v{t+4}, v{t+3}, 5, v{t+4}
    v_and_b32 v{t+5}, 3, v0
    v_lshl_add_u32 v{t+4}, v{t+5}, 3, v{t+4}
    v_add_u32 v{aW}, 16384, v{t+4}
    v_xor_b32 v{aW+1}, 64, v{aW}
    v_bfe_u32 v{t+4}, v0, 2, 1
    v_cmp_eq_u32 vcc, v{t+3}, v{t+4}
    v_mov_b32 v{t+5}, 0x3f803f80
    s_nop 0
    v_cndmask_b32 v{SEL}, 0, v{t+5}, vcc
    v_cndmask_b32 v{SEL+1}, 0, v{t+5}, vcc
    v_cndmask_b32 v{SEL+2}, 0, v{t+5}, vcc
    v_cndmask_b32 v{SEL+3}, 0, v{t+5}, vcc""")
    for r in list(range(ACC,ACC+64))+list(range(CS,CS+4)): p(f"v_mov_b32 v{r}, 0")
    store_addr(sWR_,sLC,sTY,sSO,sSO2,sHALO,sFO,aST,sT+10,sT+11)
    p(f"s_mov_b32 s{sHAL2}, s{sHALO}")
sHAL2=sDBG
def wave_ids(wave,wr,wc,lc,ty):
    p(f"""s_and_b32 s{wr}, s{wave}, 1
    s_lshr_b32 s{wc}, s{wave}, 1
    s_lshl_b32 s{lc}, s{sCT}, 1
    s_add_u32 s{lc}, s{lc}, s{wc}
    s_mul_i32 s{ty}, s{lc}, 52
    s_lshr_b32 s{ty}, s{ty}, 8""")
def store_addr(wr,lc,ty,so,so2,halo,fo,ast,A,B,t=2):
    p(f"""v_and_b32 v{t}, 31, v0
    v_lshrrev_b32 v{t+2}, 5, v0
    s_mul_i32 s{A}, s{ty}, 5
    s_sub_u32 s{A}, s{lc}, s{A}
    s_mul_i32 s{B}, s{sHH}, 5
    s_add_u32 s{A}, s{A}, s{B}
    s_lshl_b32 s{B}, s{sRQ}, 2
    s_add_u32 s{B}, s{B}, s{sRB}
    s_lshl_b32 s{B}, s{B}, 1
    s_add_u32 s{B}, s{B}, s{wr}
    s_lshl_b32 s{B}, s{B}, 1""")
    isv=p.lab("isv"); jn=p.lab("stj")
    p(f"""s_cmp_ge_u32 s{ty}, 2
    s_cbranch_scc1 {isv}
    s_mul_i32 s{so}, s{B}, 2560
    s_mul_i32 s{B}, s{ty}, {KB}
    s_add_u32 s{so}, s{so}, s{B}
    s_add_u32 s{so2}, s{so}, 2560
    s_lshl_b32 s{A}, s{A}, 3""")
    for cb in range(2):
        for ip in range(2):
            p(f"""s_xor_b32 s{B}, s{wr}, {cb}
            s_lshl_b32 s{B}, s{B}, 2
            s_add_u32 s{B}, s{B}, s{A}
            s_add_u32 s{B}, s{B}, {2*ip}
            v_add_u32 v{t+3}, s{B}, v{t+2}
            v_mul_u32_u24 v{t+4}, 205, v{t+3}
            v_lshrrev_b32 v{t+4}, 10, v{t+4}
            v_mul_u32_u24 v{t+5}, 5, v{t+4}
            v_sub_u32 v{t+5}, v{t+3}, v{t+5}
            v_mul_u32_u24 v{t+4}, {64*2560}, v{t+4}
            v_lshl_add_u32 v{t+4}, v{t+5}, 9, v{t+4}
            v_lshl_add_u32 v{ast+2*cb+ip}, v{t}, 4, v{t+4}""")
    p(f"""s_branch {jn}
    {isv}:
    s_mul_i32 s{so}, s{B}, 1280
    s_add_u32 s{so}, s{so}, {VB}
    s_add_u32 s{so2}, s{so}, 1280
    s_lshl_b32 s{A}, s{A}, 6""")
    for cb in range(2):
        p(f"""s_xor_b32 s{B}, s{wr}, {cb}
        s_lshl_b32 s{B}, s{B}, 5
        s_add_u32 s{B}, s{B}, s{A}
        v_add_u32 v{t+3}, s{B}, v{t}
        v_mul_u32_u24 v{t+4}, 3277, v{t+3}
        v_lshrrev_b32 v{t+4}, 16, v{t+4}
        v_mul_u32_u24 v{t+5}, 20, v{t+4}
        v_sub_u32 v{t+5}, v{t+3}, v{t+5}
        v_mul_u32_u24 v{t+4}, 81920, v{t+4}
        v_lshl_add_u32 v{t+4}, v{t+5}, 4, v{t+4}
        v_mul_u32_u24 v{t+5}, 320, v{t+2}
        v_add_u32 v{ast+2*cb}, v{t+4}, v{t+5}
        v_add_u32 v{ast+2*cb+1}, 640, v{ast+2*cb}""")
    p(f"""{jn}:
    s_sub_u32 s{A}, s{ty}, 1
    s_cmp_lt_u32 s{A}, 2
    s_cselect_b32 s{halo}, 1, 0
    s_cmp_ge_u32 s{sRB}, 2
    s_cselect_b32 s{halo}, s{halo}, 0
    s_cmp_lt_u32 s{sRQ}, 3
    s_cselect_b32 s{halo}, s{halo}, 0
    s_lshl_b32 s{fo}, s{sG}, 4
    s_add_u32 s{fo}, s{fo}, s{lc}
    s_lshl_b32 s{fo}, s{fo}, 5
    s_lshl_b32 s{A}, s{sRB}, 1
    s_add_u32 s{A}, s{A}, s{wr}
    s_add_u32 s{fo}, s{fo}, s{A}
    s_lshl_b32 s{fo}, s{fo}, 2
    s_add_u32 s{fo}, s{fo}, {FL}""")
def xf(buf,xb): return XF+8*buf+4*xb
def wf(buf,cb): return WF+8*buf+4*cb
def reads(kind,buf,par,s):
    L=[]
    for xb in range(2): L.append(f"ds_read_b128 {vr(xf(buf,xb),4)}, v{aX+s} offset:{par*32768+xb*4096}")
    if kind!='S':
        for cb in range(2):
            for rd in range(2): L.append(f"ds_read_b64_tr_b16 {vr(wf(buf,cb)+2*rd,2)}, v{aW+cb} offset:{par*32768+s*4096+rd*1024}")
        L=[L[2],L[3],L[0],L[1],L[4],L[5]]
    return L
def mfmas(kind,buf):
    L=[]
    if kind=='S':
        for xb in range(2):
            x=xf(buf,xb)
            L.append(f"v_mfma_f32_16x16x32_bf16 {vr(ACC+4*xb,4)}, {vr(SEL,4)}, {vr(x,4)}, {vr(ACC+4*xb,4)}")
            L.append(f"v_mfma_f32_4x4x4_16b_bf16 {vr(ACC+8+8*xb,4)}, {vr(x,2)}, {vr(x,2)}, {vr(ACC+8+8*xb,4)}")
            L.append(f"v_mfma_f32_4x4x4_16b_bf16 {vr(ACC+12+8*xb,4)}, {vr(x+2,2)}, {vr(x+2,2)}, {vr(ACC+12+8*xb,4)}")
        return L
    for cb in range(2):
        for xb in range(2):
            a=ACC+16*(2*xb+cb); X=vr(xf(buf,xb),4); W=vr(wf(buf,cb),4)
            L.append(f"v_mfma_f32_32x32x16_bf16 {vr(a,16)}, {W if kind=='T' else X}, {X if kind=='T' else W}, {vr(a,16)}")
    L.insert(2,f"v_mfma_f32_16x16x32_bf16 {vr(CS,4)}, {vr(SEL,4)}, {vr(wf(buf,0),4)}, {vr(CS,4)}")
    return L
def gemm_loop(kind):
    CNT=sT+10
    lp=p.lab("g"+kind)
    STAMP('rdy')
    p("s_barrier")
    STAMP('b0')
    for r in reads(kind,0,0,0): p(r)
    if CFG['clr']==1: clears(1)
    hl=p.lab("hello"); hr=p.lab("hellor")
    if kind!='S':
        COLD.append(f"""{hl}:
        s_getreg_b32 s{CNT+1}, hwreg(HW_REG_XCC_ID, 0, 4)
        s_or_b32 s{CNT+1}, s{CNT+1}, s{sTAG}
        v_mov_b32 v{vT}, s{CNT+1}
        s_lshl_b32 s{CNT+1}, s2, 2
        s_add_u32 s{CNT+1}, s{CNT+1}, {H1}
        v_mov_b32 v{vT+1}, 0
        s_mov_b64 exec, 1
        buffer_store_dword v{vT}, v{vT+1}, {S4(sWS)}, s{CNT+1} offen sc1
        s_mov_b64 exec, -1
        s_branch {hr}""")
        p(f"s_lshl_b32 s{CNT+2}, s{sWAVE}, 3\ns_add_u32 s{CNT+2}, s{CNT+2}, {5-CFG['clr']}")
    p(f"s_mov_b32 s{CNT}, 5\n{lp}:")
    for k in range(1,5):
        if (CFG['cal'] and CFG['cal'][0]=='it%d'%(2*k)) or (CFG['amp'] and 'it%d'%(2*k) in CFG['amp'][:2]) or (CFG['prof'] and any('it%d'%(2*k) in n.split('|') for n in CFG['st'])):
            sk=p.lab("its"); p(f"s_cmp_lg_u32 s{CNT}, {5-k}\ns_cbranch_scc1 {sk}"); STAMP('it%d'%(2*k)); p(f"{sk}:")
    for par in range(2):
        for s in range(4):
            buf=s&1
            last=(s==3)
            M=mfmas(kind,buf)
            if CFG['nomfma']: M=M[:1]
            if last and par==1:
                pre=[f"v_xor_b32 v{aX+i}, 0x10000, v{aX+i}" for i in range(4)]+[f"v_xor_b32 v{aW+i}, 0x10000, v{aW+i}" for i in range(2)]
            else: pre=[]
            R=reads(kind,buf^1,(par^1) if last else par,(s+1)&3)
            p("s_waitcnt lgkmcnt(0)")
            if last:
                p(M.pop(0))
                for x in pre: p(x)
                if par==0:
                    w1=p.lab("cw"); w2=p.lab("cwr")
                    p(f"s_cmp_eq_u32 s{CNT}, {5-CFG['clr']}\ns_cbranch_scc1 {w1}\n{w2}:")
                    COLD.append(f"{w1}:\ns_waitcnt vmcnt(0)\ns_branch {w2}")
                p("s_barrier")
                if par==0 and kind!='S': p(f"s_cmp_eq_u32 s{CNT}, s{CNT+2}\ns_cbranch_scc1 {hl}\n{hr}:")
            k=0
            while M or R:
                if R: p(R.pop(0))
                if R: p(R.pop(0))
                if M: p(M.pop(0))
    p(f"""s_sub_u32 s{CNT}, s{CNT}, 1
    s_cmp_lg_u32 s{CNT}, 0
    s_cbranch_scc1 {lp}""")
    STAMP('gend')
def bf16r(dst,src):
    p(f"v_cvt_pk_bf16_f32 v{dst}, v{src}, v{src}\nv_and_b32 v{dst}, 0xffff0000, v{dst}")
def mode_read():
    p(f"""v_mov_b32 v{vT+8}, {L_MODE}
    ds_read_b32 v{vT+9}, v{vT+8}""")
def mode_get():
    p(f"v_readfirstlane_b32 s{sMODE}, v{vT+9}")
def dual(stores):
    sl=p.lab("slow"); jn=p.lab("jn")
    p(f"s_cmp_lg_u32 s{sMODE}, 0\ns_cbranch_scc1 {sl}")
    for s in stores: p(s)
    p(f"s_branch {jn}\n{sl}:")
    for s in stores: p(s+" sc1")
    p(f"{jn}:")
def idle_gemm():
    vt=10; aI=20; acc=28; one=32; D=64; A=sT+10
    p(f"""s_lshl_b32 s{A}, s{sWR_}, 13
    v_bfe_u32 v{vt}, v0, 1, 3
    v_lshlrev_b32 v{vt}, 4, v{vt}
    v_lshl_add_u32 v{vt}, v0, 7, v{vt}
    v_add_u32 v{aI}, s{A}, v{vt}
    v_mov_b32 v{one}, 0x3f803f80
    s_lshl_b32 s{A}, s{sG}, 2
    s_add_u32 s{A}, s{A}, s{sRB}
    s_lshl_b32 s{A}, s{A}, 14
    s_lshl_b32 s{A+1}, s{sWR_}, 10
    s_add_u32 s{A}, s{A}, s{A+1}
    s_add_u32 s{A}, s{A}, {STP+7*2048}
    v_lshlrev_b32 v{vt}, 4, v0""")
    for i in range(1,8): p(f"v_xor_b32 v{aI+i}, {16*i}, v{aI}")
    for i in range(4): p(f"v_mov_b32 v{acc+i}, 0")
    assert CFG['clr']==0
    for c in range(11):
        if c==1: p("s_waitcnt vmcnt(0)")
        p("s_barrier")
        if c<3:
            if c==2:
                for i in range(8): p(f"v_add_u32 v{aI+i}, 0x10000, v{aI+i}")
            for i in range(8): p(f"ds_read_b128 {vr(D+4*i,4)}, v{aI+i} offset:{(c&1)*32768}")
            for i in range(8):
                p(f"s_waitcnt lgkmcnt({7-i})")
                for j in range(4):
                    r=D+4*i+j
                    p(f"v_dot2_f32_bf16 v{acc+(j&1)}, v{r}, v{one}, v{acc+(j&1)}\nv_dot2_f32_bf16 v{acc+2+(j&1)}, v{r}, v{r}, v{acc+2+(j&1)}")
        if c==2: p(f"""s_nop 1
            v_add_f32 v{acc}, v{acc}, v{acc+1}
            v_add_f32 v{acc+1}, v{acc+2}, v{acc+3}
            v_mov_b32 v{acc+2}, s{sTAG}
            buffer_store_dwordx4 {vr(acc,4)}, v{vt}, {S4(sWS)}, s{A} offen sc1""")
    p("s_barrier")
    mode_read()
    p("s_waitcnt lgkmcnt(0)")
    mode_get()
def gemm_epi(kind):
    t=vT; A=sT+10
    AU=20
    WA=24
    XA=28
    RS=32
    p(f"""v_and_b32 v{t}, 31, v0
    s_lshl_b32 s{A}, s{sWC}, 1
    s_or_b32 s{A}, s{A}, s{sWR_}
    s_lshl_b32 s{A}, s{A}, 7
    s_add_u32 s{A}, s{A}, {L_CS}
    v_lshl_add_u32 v{t+1}, v{t}, 2, s{A}
    s_lshl_b32 s{A}, s{sWR_}, 9
    s_add_u32 s{A}, s{A}, {L_SA}
    v_lshl_add_u32 v{t+3}, v{t}, 3, s{A}
    ds_write_b32 v{t+1}, v{CS}
    v_xor_b32 v{t+2}, 128, v{t+1}
    v_mov_b32 v{WA+1}, 0
    v_mov_b32 v{WA+3}, 0
    v_mov_b32 v{XA+1}, 0
    v_mov_b32 v{XA+3}, 0""")
    if kind=='V':
        p(f"""v_lshrrev_b32 v{t+4}, 5, v0
        s_lshl_b32 s{A}, s{sWR_}, 8
        s_add_u32 s{A}, s{A}, {L_SR}
        v_lshl_add_u32 v{t+4}, v{t+4}, 4, s{A}""")
    p("s_waitcnt lgkmcnt(0)\ns_barrier")
    STAMP('E1',1)
    p(f"""ds_read_b32 v{CS+1}, v{t+2}
    ds_read_b64 v[{AU}:{AU+1}], v{t+3}
    ds_read_b64 v[{AU+2}:{AU+3}], v{t+3} offset:256""")
    mode_read()
    if kind=='V':
        for xb in range(2):
            for i in range(4): p(f"ds_read_b128 {vr(RS+16*xb+4*i,4)}, v{t+4} offset:{xb*128+i*32}")
    def split(cb):
        c=CS+cb
        p(f"""v_cndmask_b32 v{c}, 0, v{c}, s[{sLO}:{sLO+1}]
        v_cvt_pk_bf16_f32 v{t+5}, v{c}, v{c}
        v_and_b32 v{t+5}, 0xffff0000, v{t+5}
        v_sub_f32 v{t+6}, v{c}, v{t+5}
        v_cvt_pk_bf16_f32 v{WA+2*cb}, v{t+5}, v{t+6}""")
    split(0)
    p(f"s_waitcnt lgkmcnt({8 if kind=='V' else 0})")
    split(1)
    p(f"v_mov_b32 v{XA}, v{AU}\nv_mov_b32 v{XA+2}, v{AU+2}")
    mode_get()
    if kind=='T':
        p(f"""s_cmp_eq_u32 s{sTY}, 0
        s_cselect_b32 s{A}, {hex(f2u(20**-0.5*math.log2(math.e)))}, 1.0
        v_mul_f32 v{AU+1}, s{A}, v{AU+1}
        v_mul_f32 v{AU+3}, s{A}, v{AU+3}""")
    else: p("s_nop 0")
    for xb in range(2):
        for cb in range(2):
            a=ACC+16*(2*xb+cb); X=vr(XA+2*xb,2); W=vr(WA+2*cb,2)
            p(f"v_mfma_f32_32x32x8_bf16 {vr(a,16)}, {W if kind=='T' else X}, {X if kind=='T' else W}, {vr(a,16)}")
    p("s_waitcnt lgkmcnt(0)\ns_nop 7")
    allst=[]
    for xb in range(2):
        st=[]
        for cb in range(2):
            a=ACC+16*(2*xb+cb)
            for k in range(8):
                if kind=='T': p(f"v_pk_mul_f32 {vr(a+2*k,2)}, {vr(a+2*k,2)}, {vr(AU+2*xb,2)} op_sel:[0,1] op_sel_hi:[1,1]")
                else: p(f"v_pk_mul_f32 {vr(a+2*k,2)}, {vr(a+2*k,2)}, {vr(RS+16*xb+2*k,2)}")
            for k in range(8): p(f"v_cvt_pk_bf16_f32 v{a+k}, v{a+2*k}, v{a+2*k+1}")
            if kind=='T':
                p(f"""v_permlane32_swap_b32 v{a}, v{a+2}
                v_permlane32_swap_b32 v{a+1}, v{a+3}
                v_permlane32_swap_b32 v{a+4}, v{a+6}
                v_permlane32_swap_b32 v{a+5}, v{a+7}""")
            for h in range(2):
                st.append(f"buffer_store_dwordx4 {vr(a+4*h,4)}, v{aST+2*cb+h}, {S4(sWS)}, s{sSO2 if xb else sSO} offen")
                allst.append(a+4*h)
        dual(st)
    STAMP('st')
    nh=p.lab("nohalo"); jh=p.lab("jhalo")
    hst=[f"buffer_store_dwordx4 {vr(allst[i],4)}, v{aST+(i&3)}, {S4(sWS)}, s{A+(i>>2)} offen sc1" for i in range(8)]
    p(f"""v_mov_b32 v{t}, 0
    v_mov_b32 v{t+1}, s{sTAG}
    s_add_u32 s{A}, s{sSO}, {KH-KB}
    s_add_u32 s{A+1}, s{sSO2}, {KH-KB}""")
    if CFG['hearly']:
        p(f"s_cmp_eq_u32 s{sHALO}, 0\ns_cbranch_scc1 {nh}")
        for x in hst: p(x)
        p(f"s_waitcnt vmcnt(8)\ns_branch {jh}\n{nh}:\ns_waitcnt vmcnt(0)\n{jh}:")
    else: p("s_waitcnt vmcnt(0)")
    p("s_mov_b64 exec, 1")
    dual([f"buffer_store_dword v{t+1}, v{t}, {S4(sWS)}, s{sFO} offen"])
    p(f"s_mov_b64 exec, -1")
    if not CFG['hearly']:
        p(f"s_cmp_eq_u32 s{sHALO}, 0\ns_cbranch_scc1 {nh}")
        for x in hst: p(x)
        p(f"{nh}:")
    STAMP('fl')
import struct
def f2u(x): return struct.unpack("<I",struct.pack("<f",x))[0]

aLin,aTl,aKm,aKt,aV,aFl,aO,aQ0,aQ1=246,247,248,249,250,251,252,253,254
QM=[28,34]; QT=[32,38]; PP=40
KM=[48,62]; KT=[52,66]; VV=[[54,58],[68,72]]
SS=[80,96]; OO=[112,128]; CD=200; CF=230
cVM=8; sQ=[10,11]; sOm=[12,13]; sOt=[14,15]; cXO,cJ,cF,cK,cV,cL,cHO,cT0,cHX=range(16,25); sOSC=sT+15; sFB=sT+16; aWR=225
NINF="0xff800000"
def att_setup():
    t=vT; A=sT+7; B=sT+8; C=sT+17; sF=cF
    wo_pre1()
    att_ids()
    flag_addr(aFl,t,1,A,B,C)
    p(f"""s_lshl_b32 s{sF}, s{sG}, 11
    s_lshl_b32 s{A}, s{sHF}, 4
    s_add_u32 s{sF}, s{sF}, s{A}
    s_add_u32 s{sF}, s{sF}, {FL}
    v_mov_b32 v{aCLS}, 0x207
    s_mov_b32 s{sK1024}, 1024""")
    kv_addr(aLin,aTl,t)
    p(f"""v_add_u32 v{aKm}, {L_KV}, v{aLin}
    v_and_b32 v{t}, 31, v0
    v_lshrrev_b32 v{t+1}, 5, v0
    v_xor_b32 v{t+2}, s{sHO}, v{t+1}
    v_lshlrev_b32 v{t+2}, 3, v{t+2}
    v_lshl_add_u32 v{t+2}, v{t}, 4, v{t+2}
    v_add_u32 v{aKt}, {L_KV+2048}, v{t+2}
    v_mul_u32_u24 v{t+2}, 320, v{t+1}
    v_lshl_add_u32 v{t+2}, v{t}, 4, v{t+2}
    v_add_u32 v{aV}, {L_KV+3072}, v{t+2}
    v_lshlrev_b32 v{t+2}, 2, v{t+1}
    v_sub_u32 v{t+2}, v{t}, v{t+2}
    v_mov_b32 v{t+3}, {NINF}""")
    for i in range(16):
        m=C+1+2*(i%2)+((C+1)%2)
        ri=8*(i>>2)+(i&3)
        p(f"v_cmp_le_i32 s[{m}:{m+1}], {ri}, v{t+2}")
        if i>0:
            m2=C+1+2*((i-1)%2)+((C+1)%2)
            if i==1: p("s_nop 0")
            p(f"v_cndmask_b32 v{CD+i-1}, v{t+3}, 0, s[{m2}:{m2+1}]\nv_cndmask_b32 v{CF+i-1}, 0, v{t+3}, s[{m2}:{m2+1}]")
    p(f"""s_nop 0
    v_cndmask_b32 v{CD+15}, v{t+3}, 0, s[{m}:{m+1}]
    v_cndmask_b32 v{CF+15}, 0, v{t+3}, s[{m}:{m+1}]
    v_cmp_eq_u32 s[{m}:{m+1}], 20, v{t}
    v_cmp_eq_u32 vcc, 24, v{t}
    s_mov_b32 s{cHO}, s{sHO}
    s_or_b64 s[{cVM}:{cVM+1}], vcc, s[{m}:{m+1}]""")
    p(f"""v_bfe_u32 v{t+2}, v0, 4, 1
    v_mul_u32_u24 v{t+2}, 20480, v{t+2}
    v_lshl_add_u32 v{t+2}, v{t+1}, 8, v{t+2}
    v_and_b32 v{t+3}, 15, v0
    v_lshl_add_u32 v{aO}, v{t+3}, 4, v{t+2}
    s_xor_b32 s{cHX}, s{sHF}, s{sHH}
    s_mov_b32 s{cT0}, s{sT0}
    s_lshl_b32 s{A}, s{sWAVE}, 1
    s_sub_u32 s{A}, 7, s{A}
    v_mul_u32_u24 v{t+2}, s{A}, v0
    s_add_u32 s{A}, s{sT0}, s{sWAVE}
    v_add_lshl_u32 v{aFO}, v{t+2}, s{A}, 12
    s_lshl_b32 s{A}, s{sHD}, 7
    s_add_u32 s{A}, s{A}, {FO}
    v_add_u32 v{aFO}, s{A}, v{aFO}""")
    for q in range(2):
        if q==0: p(f"s_add_u32 s{A}, s{sT0}, 7\ns_sub_u32 s{A}, s{A}, s{sWAVE}")
        else: p(f"s_add_u32 s{A}, s{sT0}, s{sWAVE}")
        p(f"""s_mul_i32 s{sQ[q]}, s{A}, 2560
        s_mul_i32 s{B}, s{sPH}, {64*2560}
        s_add_u32 s{sQ[q]}, s{sQ[q]}, s{B}
        s_mul_i32 s{A}, s{A}, 40960
        s_mul_i32 s{B}, s{sPH}, 1280
        s_add_u32 s{A}, s{A}, s{B}
        s_add_u32 s{A}, s{A}, {OB}
        s_mul_i32 s{B}, s{sHO}, 768
        s_add_u32 s{sOm[q]}, s{A}, s{B}
        s_lshl_b32 s{B}, s{sHO}, 3
        s_add_u32 s{sOt[q]}, s{A}, s{B}""")
    sK=cK; sV=cV; sL=cL
    p(f"""s_lshl_b32 s{A}, s{sWAVE}, 1
    s_add_u32 s{A}, s{A}, s{sT0}
    s_mul_i32 s{sK}, s{A}, 2560
    s_mul_i32 s{sV}, s{A}, 1280
    s_mul_i32 s{A}, s{sPH}, {64*2560}
    s_add_u32 s{sK}, s{sK}, s{A}
    s_add_u32 s{sK}, s{sK}, {KB}
    s_mul_i32 s{A}, s{sHD}, 81920
    s_add_u32 s{sV}, s{sV}, s{A}
    s_add_u32 s{sV}, s{sV}, {VB}
    s_mul_i32 s{sL}, s{sWAVE}, 5632
    s_add_u32 s{sL}, s{sL}, {L_KV+4*5632}
    s_mul_i32 s{A}, s{sHO}, 1536
    v_add_u32 v{aQ0}, s{A}, v{aLin}
    s_lshl_b32 s{A}, s{sHO}, 3
    v_add_u32 v{aQ1}, s{A}, v{aLin}""")
def att_go():
    t=vT; A=sT+7; B=sT+8; C=sT+17
    nh=p.lab("nohs"); lp=p.lab("fp"); ok=p.lab("fpok"); md=p.lab("fpm")
    ld=f"buffer_load_dword v{t+10}, v{aFl}, {S4(sWS)}, s{cF} offen sc1"
    p(f"""{ld}
    v_mov_b32 v{t+4}, 0x3f803f80
    s_or_b32 s{sOSC}, s{cHX}, s{sMODE}
    s_mov_b32 s{sFB}, 0
    s_mul_i32 s{A}, s{sMODE}, {OB2-OB}
    v_add_u32 v{aO}, s{A}, v{aO}""")
    for b_ in range(2):
        for mm in range(2):
            for r in range(4): p(f"v_cndmask_b32 v{VV[b_][mm]+r}, 0, v{t+4}, s[{cVM}:{cVM+1}]")
    for q in range(2): p(f"v_mov_b32 v{QT[q]}, 0\nv_mov_b32 v{QT[q]+1}, 0")
    p(f"""s_lshr_b32 s{A}, s{sWAVE}, 1
    s_lshl_b32 s{A}, s{A}, 2
    s_add_u32 s{A}, s{A}, {F_STG}
    v_mov_b32 v{t+4}, s{A}
    v_mov_b32 v{t+5}, 1
    s_mov_b32 s{C}, {SPIN}
    s_cmp_eq_u32 s{sHAL2}, 0
    s_waitcnt vmcnt(0)
    s_cbranch_scc1 {nh}
    s_mov_b64 exec, 1
    ds_add_u32 v{t+4}, v{t+5}
    s_mov_b64 exec, -1
    {nh}:""")
    STAMP('hack')
    p(f"""s_branch {md}
    {lp}:
    {ld}
    s_waitcnt vmcnt(0)
    {md}:
    v_cmp_ne_u32 vcc, s{sTAG}, v{t+10}
    s_nop 0
    s_cbranch_vccz {ok}""")
    spin(C,lp,ok)
    p(f"s_branch {lp}\n{ok}:")
    STAMP('fseen')
    kv_dma(aLin,aTl,cK,cV,cL,A,B,cHO)
    for q in range(2): p(f"buffer_load_dwordx4 {vr(QM[q],4)}, v{aQ0}, {S4(sWS)}, s{sQ[q]} offen sc1")
    p(f"s_mov_b64 exec, s[{sLO}:{sLO+1}]")
    for q in range(2): p(f"buffer_load_dwordx2 {vr(QT[q],2)}, v{aQ1}, {S4(sWS)}, s{sQ[q]} offen offset:1024 sc1")
    p(f"""s_mov_b64 exec, 1
    v_mov_b32 v{t}, {F_G1}
    v_mov_b32 v{t+1}, 1
    s_waitcnt vmcnt(4)
    ds_add_u32 v{t}, v{t+1}
    s_mov_b64 exec, -1
    v_mov_b32 v{aFl}, {F_G1}""")
    for o,n in ((0,4),(4,4),(8,2)): p(f"buffer_load_dwordx{n} {vr(XR+o,n)}, v{aX2}, {S4(sX)}, s{cXO} offen offset:{4*o}")
    for o,n in ((0,4),(4,4),(8,2)): p(f"buffer_load_dwordx{n} {vr(WR_+o,n)}, v{aWR}, {S4(sWR)}, s{cJ} offen offset:{4*o}")
    lds_wait(aFl,t+5,C,'gt',4,0)
    p(f"s_waitcnt vmcnt(6)")
    STAMP('kv')
    p(f"""s_cmp_eq_u32 s{sWAVE}, 1
    s_cbranch_scc1 L_av1
    s_cmp_eq_u32 s{sWAVE}, 2
    s_cbranch_scc1 L_av2
    s_cmp_eq_u32 s{sWAVE}, 3
    s_cbranch_scc1 L_av3""")
def kreads(n,b_):
    o=(n>>1)*5632
    return [f"ds_read_b128 {vr(KM[b_],4)}, v{aKm} offset:{o+(n&1)*1024}", f"ds_read_b64 {vr(KT[b_],2)}, v{aKt} offset:{o+(n&1)*512}"]
def vreads(n,b_):
    o=(n>>1)*5632+(n&1)*1280
    return [f"s_mov_b64 exec, s[{sLO+2}:{sLO+3}]", f"ds_read_b128 {vr(VV[b_][0],4)}, v{aV} offset:{o}", f"ds_read_b128 {vr(VV[b_][1],4)}, v{aV} offset:{o+640}", "s_mov_b64 exec, -1"]
def att_variant(w):
    U=[]
    for n in range(15-w,8+w,-1): U.append((0,n))
    for n in range(8+w,6-w,-1): U+= [(0,n),(1,n)]
    for n in range(6-w,w-1,-1): U.append((1,n))
    assert len(U)==18
    diag=[15-w,8+w]
    tiles=[]; tau=[]
    for q,n in U:
        if not tiles or tiles[-1]!=n: tiles.append(n)
        tau.append(len(tiles)-1)
    first=[tau.index(i) for i in range(len(tiles))]
    started=[0,0]
    def QK(u):
        q,n=U[u]; b_=tau[u]&1; S=vr(SS[u&1],16)
        c=vr(CD,16) if n==diag[q] else (vr(CF,16) if n==diag[q]-8 else "0")
        return [f"v_mfma_f32_32x32x16_bf16 {S}, {vr(KM[b_],4)}, {vr(QM[q],4)}, {c}", f"v_mfma_f32_32x32x8_bf16 {S}, {vr(KT[b_],2)}, {vr(QT[q],2)}, {S}"]
    def PV(u,m):
        q,n=U[u]; O=vr(OO[q],16)
        c=O if started[q] else "0"; started[q]=1
        return f"v_mfma_f32_32x32x16_bf16 {O}, {vr(VV[tau[u]&1][m],4)}, {vr(PP+4*m,4)}, {c}"
    p(f"L_av{w}:")
    for i,f in enumerate(first):
        if f<=1:
            for x in kreads(tiles[i],i&1): p(x)
    for x in vreads(tiles[0],0): p(x)
    p("s_waitcnt lgkmcnt(0)")
    for x in QK(0): p(x)
    p("s_nop 7\ns_nop 3")
    pend=False
    H=first[tiles.index(7)]
    for u in range(18):
        S=SS[u&1]
        e=lambda i: p(f"v_exp_f32 v{S+i}, v{S+i}")
        c=lambda k: p(f"v_cvt_pk_bf16_f32 v{PP+k}, v{S+2*k}, v{S+2*k+1}")
        kr=[x for i,f in enumerate(first) if f==u+2 for x in kreads(tiles[i],i&1)]
        vr_=[x for i,f in enumerate(first) if f==u+1 for x in vreads(tiles[i],i&1)]
        late=(u+2==H)
        STAMP('u%d'%u)
        e(0); e(1)
        if u>0: p(PV(u-1,1))
        e(2)
        if not late:
            for x in kr: p(x)
        if u+3==H: p(f"ds_read_b32 v{vT}, v{aFl} offset:{F_G2-F_G1}")
        e(3); c(0); c(1)
        if pend: p("s_waitcnt lgkmcnt(0)") if not (kr and not late) and u+3!=H else p(f"s_waitcnt lgkmcnt({(len(kr) if not late else 0)+(1 if u+3==H else 0)})")
        qk=QK(u+1) if u<17 else [None,None]
        if qk[0]: p(qk[0])
        e(4)
        if late:
            p(f"v_cmp_gt_u32 vcc, 2, v{vT}")
        e(5)
        if late:
            p(f"s_cbranch_vccnz L_g2w{w}\nL_g2r{w}:")
            for x in kr: p(x)
        for x in vr_: p(x)
        e(6); e(7); c(2); c(3)
        if qk[1]: p(qk[1])
        e(8); e(9); e(10); e(11)
        p(PV(u,0))
        c(4); c(5); e(12); e(13); e(14); e(15); c(6); c(7)
        pend=bool(kr or vr_ or u+3==H)
        if u==H-1:
            p(f"s_cmp_eq_u32 s{cT0}, 0\ns_cbranch_scc1 L_ex{w}")
            exq=PV(u,1)
    p("s_nop 1")
    p(PV(17,1))
    p("s_branch L_afin")
    p(f"L_g2w{w}:")
    p(f"v_mov_b32 v{vT+1}, {F_G2}")
    lds_wait(vT+1,vT,sT+17,'gt',2,1)
    p(f"s_branch L_g2r{w}\nL_ex{w}:\n{exq}\ns_branch L_afin")
def att_fin():
    t=vT; A=sT+7
    p("L_afin:")
    STAMP('aend')
    p(f"s_mov_b32 s{A}, {hex(f2u(2.0**-40))}\ns_mov_b32 s{A+1}, {hex(f2u(2.0**40)-f2u(2.0**-40))}")
    for q in range(2):
        O=OO[q]
        p(f"""v_cndmask_b32 v{t}, v{O+8}, v{O+12}, s[{sLO}:{sLO+1}]
        v_pk_add_f32 v[{t+2}:{t+3}], v[{O}:{O+1}], v[{O+2}:{O+3}]
        v_rcp_f32 v{t+1}, v{t}
        v_pk_add_f32 v[{t+4}:{t+5}], v[{O+4}:{O+5}], v[{O+6}:{O+7}]
        v_pk_add_f32 v[{t+6}:{t+7}], v[{O+8}:{O+9}], v[{O+10}:{O+11}]
        v_subrev_u32 v{t}, s{A}, v{t}
        v_pk_add_f32 v[{t+2}:{t+3}], v[{t+2}:{t+3}], v[{t+4}:{t+5}]
        v_cmp_lt_u32 s[{A+11}:{A+12}], s{A+1}, v{t}
        v_pk_add_f32 v[{t+2}:{t+3}], v[{t+2}:{t+3}], v[{t+6}:{t+7}]
        v_add_f32 v{t+2}, v{t+2}, v{t+3}""")
        p(f"v_cmp_class_f32 vcc, v{t+2}, v{aCLS}")
        for k in range(6): p(f"v_pk_mul_f32 {vr(O+2*k,2)}, {vr(O+2*k,2)}, {vr(t,2)} op_sel:[0,1] op_sel_hi:[1,1]")
        p(f"""s_or_b64 vcc, vcc, s[{A+11}:{A+12}]
        s_cbranch_scc1 L_afb{q}
        L_afr{q}:""")
        for k in range(6): p(f"v_cvt_pk_bf16_f32 v{O+k}, v{O+2*k}, v{O+2*k+1}")
        p(f"s_cmp_lg_u32 s{sOSC}, 0")
        st=[f"buffer_store_dwordx4 {vr(O,4)}, v{aO}, {S4(sWS)}, s{sOm[q]} offen", f"s_mov_b64 exec, s[{sLO}:{sLO+1}]",
            f"buffer_store_dwordx2 {vr(O+4,2)}, v{aO}, {S4(sWS)}, s{sOt[q]} offen offset:512", "s_mov_b64 exec, -1"]
        p(f"s_cbranch_scc1 L_osc{q}")
        for x in st: p(x)
        p(f"s_branch L_osr{q}\nL_osc{q}:")
        for x in st: p(x+(" sc1" if x.startswith("buffer") else ""))
        p(f"L_osr{q}:")
    p(f"""v_mov_b32 v{t}, {F_DONE}
    v_mov_b32 v{t+1}, 1
    s_mov_b64 exec, 1
    ds_add_u32 v{t}, v{t+1}
    s_mov_b64 exec, -1""")
    STAMP('ost')
aCLS=255; aFO=226; aFR=227
def att_cold():
    t=vT; A=sT+7; B=sT+8; N=sT+17; J=sT+18; CN=sT+19; PA=sT+20
    for q in range(2): p(f"L_afb{q}:\ns_cmp_lg_u32 s{sFB}, 0\ns_cbranch_scc1 L_afr{q}\ns_branch L_afb")
    p(f"L_afb:\ns_mov_b32 s{sFB}, 1\ns_waitcnt lgkmcnt(0)")
    S=SS[0]; MX=t+10; xa=t+11
    for q in range(2):
        lp=p.lab("fb"); nd=p.lab("fbnd"); nf=p.lab("fbnf"); p2=p.lab("fbp2"); nx=p.lab("fbnx"); ps=p.lab("fbps"); dn=p.lab("fbdn")
        for r in range(16): p(f"v_mov_b32 v{OO[q]+r}, 0")
        p(f"""v_mov_b32 v{MX}, {NINF}
        s_mov_b32 s{PA}, 0
        {ps}:""")
        if q==0: p(f"s_sub_u32 s{N}, 15, s{sWAVE}")
        else: p(f"s_add_u32 s{N}, 8, s{sWAVE}")
        p(f"""s_sub_u32 s{CN}, s{N}, 7
        s_cmp_eq_u32 s{cT0}, 0
        s_cselect_b32 s{CN}, s{CN}, 9
        s_mov_b32 s{J}, 0
        {lp}:
        s_lshr_b32 s{A}, s{N}, 1
        s_mul_i32 s{A}, s{A}, 5632
        s_and_b32 s{B}, s{N}, 1
        s_lshl_b32 s{sT+21}, s{B}, 10
        s_add_u32 s{sT+21}, s{sT+21}, s{A}
        v_add_u32 v{xa}, s{sT+21}, v{aKm}
        s_lshl_b32 s{sT+21}, s{B}, 9
        s_add_u32 s{sT+21}, s{sT+21}, s{A}
        v_add_u32 v{xa+1}, s{sT+21}, v{aKt}
        s_mul_i32 s{B}, s{B}, 1280
        s_add_u32 s{A}, s{A}, s{B}
        v_add_u32 v{xa+2}, s{A}, v{aV}
        ds_read_b128 {vr(KM[0],4)}, v{xa}
        ds_read_b64 {vr(KT[0],2)}, v{xa+1}
        s_mov_b64 exec, s[{sLO+2}:{sLO+3}]
        ds_read_b128 {vr(VV[0][0],4)}, v{xa+2}
        ds_read_b128 {vr(VV[0][1],4)}, v{xa+2} offset:640
        s_mov_b64 exec, -1
        s_waitcnt lgkmcnt(0)
        v_mfma_f32_32x32x16_bf16 {vr(S,16)}, {vr(KM[0],4)}, {vr(QM[q],4)}, 0
        v_mfma_f32_32x32x8_bf16 {vr(S,16)}, {vr(KT[0],2)}, {vr(QT[q],2)}, {vr(S,16)}
        v_mov_b32 v{xa}, {NINF}
        s_nop 11
        s_cmp_lg_u32 s{J}, 0
        s_cbranch_scc1 {nd}""")
        for r in range(16): p(f"v_cmp_eq_u32 vcc, 0, v{CD+r}\ns_nop 1\nv_cndmask_b32 v{S+r}, v{xa}, v{S+r}, vcc")
        p(f"{nd}:\ns_cmp_lg_u32 s{J}, 8\ns_cbranch_scc1 {nf}")
        for r in range(16): p(f"v_cmp_eq_u32 vcc, 0, v{CF+r}\ns_nop 1\nv_cndmask_b32 v{S+r}, v{xa}, v{S+r}, vcc")
        p(f"{nf}:\ns_cmp_lg_u32 s{PA}, 0\ns_cbranch_scc1 {p2}")
        for r in range(0,16,2): p(f"v_max3_f32 v{MX}, v{S+r}, v{S+r+1}, v{MX}")
        p(f"s_branch {nx}\n{p2}:")
        for r in range(16): p(f"v_sub_f32 v{S+r}, v{S+r}, v{MX}")
        for r in range(16): p(f"v_exp_f32 v{S+r}, v{S+r}")
        p("s_nop 0")
        for k in range(8): p(f"v_cvt_pk_bf16_f32 v{PP+k}, v{S+2*k}, v{S+2*k+1}")
        p("s_nop 1")
        for m in range(2): p(f"v_mfma_f32_32x32x16_bf16 {vr(OO[q],16)}, {vr(VV[0][m],4)}, {vr(PP+4*m,4)}, {vr(OO[q],16)}")
        p(f"""s_nop 11
        {nx}:
        s_sub_u32 s{N}, s{N}, 1
        s_add_u32 s{J}, s{J}, 1
        s_cmp_lt_u32 s{J}, s{CN}
        s_cbranch_scc1 {lp}
        s_cmp_lg_u32 s{PA}, 0
        s_cbranch_scc1 {dn}
        v_mov_b32 v{xa}, v{MX}
        s_mov_b32 s{PA}, 1
        s_nop 0
        v_permlane32_swap_b32 v{xa}, v{MX}
        s_nop 1
        v_max_f32 v{MX}, v{MX}, v{xa}
        s_branch {ps}
        {dn}:""")
    p("s_branch L_afin")

BF=28; AF=108; WACC=200; XR=176; WR_=186; aX2=196; aPS=197; aAL=198; aAR=199; SW=220; SELF=221; aPR=222; aKY=223; aCD=224
HP=40; HF_=50; LP=70; OP=80
sRT=sT+1; sOL=sT+2; sOR=sT+5; sXO=cXO; sPSO=sT+12; sRETRY=sT+13; sPRB=sT+14; sFLO=sT+16; sFRE=sT+18
def acc_init():
    for k in range(10): p(f"v_lshlrev_b32 v{WACC+2*k}, 16, v{XR+k}\nv_and_b32 v{WACC+2*k+1}, 0xffff0000, v{XR+k}")
def wo_pre1():
    t=vT; A=sT+7; B=sT+8
    wo_ids()
    p(f"""v_and_b32 v{t}, 15, v0
    v_lshrrev_b32 v{t+1}, 4, v0
    v_mul_u32_u24 v{aWR}, 40, v{t+1}
    v_mov_b32 v{t+3}, 1280
    v_mad_u32_u24 v{aX2}, v{t}, v{t+3}, v{aWR}
    s_lshl_b32 s{A}, s{sBLK}, 2
    s_add_u32 s{A}, s{A}, s{sWAVE}
    s_mul_i32 s{A}, s{A}, 20480
    s_mul_i32 s{cJ}, s{sJ}, 160
    s_add_u32 s{cXO}, s{A}, s{cJ}
    v_lshlrev_b32 v{aPS}, 7, v{t}
    v_lshl_add_u32 v{aPS}, v{t+1}, 5, v{aPS}
    v_lshlrev_b32 v{aFR}, 7, v{t}
    v_mul_u32_u24 v{t+2}, 640, v{t+1}
    v_bfe_u32 v{t+3}, v0, 2, 2
    v_mul_u32_u24 v{t+3}, 160, v{t+3}
    v_and_b32 v{t+4}, 3, v0
    v_mul_u32_u24 v{t+4}, 40, v{t+4}
    v_add3_u32 v{t+2}, v{t+2}, v{t+3}, v{t+4}
    s_mul_i32 s{A}, s{sHH}, 51200
    s_add_u32 s{B}, s{A}, {L_WO}
    v_add_u32 v{aAL}, s{B}, v{t+2}
    s_sub_u32 s{B}, {L_WO+51200}, s{A}
    v_add_u32 v{aAR}, s{B}, v{t+2}
    v_and_b32 v{t+2}, 7, v0
    v_mul_u32_u24 v{t+2}, 1280, v{t+2}
    v_bfe_u32 v{t+3}, v0, 3, 1
    v_lshl_add_u32 v{aPR}, v{t+3}, 7, v{t+2}""")
def wo_pre2():
    acc_init()
def probe(soff,cnt,first=True):
    t=vT
    lp=p.lab("pb"); ok=p.lab("pbok"); md=p.lab("pbm")
    p(f"s_mov_b32 s{cnt}, {SPIN}")
    if not first: p(f"s_branch {md}")
    p(f"""{lp}:
    buffer_load_dwordx3 v[{t+4}:{t+6}], v{aPR}, {S4(sWS)}, s{soff} offen offset:512 sc1""")
    if not first: p(f"{md}:")
    p(f"""s_waitcnt vmcnt(0)
    v_max_u32 v{t+4}, v{t+4}, v{t+6}
    v_cmp_eq_u32 vcc, -1, v{t+4}
    s_nop 0
    s_cbranch_vccz {ok}""")
    spin(cnt,lp,ok)
    p(f"s_branch {lp}\n{ok}:")
def red3(a,b,c,d):
    p(f"""v_mov_b32 v{d}, v{c}
    s_nop 0
    v_permlane32_swap_b32 v{a}, v{b}
    v_permlane32_swap_b32 v{c}, v{d}
    s_nop 0
    v_add_f32 v{a}, v{a}, v{b}
    v_add_f32 v{c}, v{c}, v{d}
    s_nop 1
    v_permlane16_swap_b32 v{a}, v{c}
    s_nop 0
    v_add_f32 v{a}, v{a}, v{c}
    v_add_f32 v{c}, v{a}, 0
    s_nop 1
    v_permlane16_swap_b32 v{a}, v{c}
    s_nop 0
    v_mov_b32 v{b}, v{a}
    s_nop 1
    v_permlane32_swap_b32 v{a}, v{b}""")
def wo_main():
    t=vT; A=sT+7; B=sT+8; C=sT+17; MXS=t+8
    wo_ids()
    p(f"""s_lshl_b32 s{sRT}, s{sBLK}, 2
    s_add_u32 s{sRT}, s{sRT}, s{sWAVE}
    s_mul_i32 s{A}, s{sRT}, 20480
    s_mul_i32 s{B}, s{sMODE}, {OB2-OB}
    s_add_u32 s{A}, s{A}, s{B}
    s_add_u32 s{A}, s{A}, {OB}
    s_mul_i32 s{B}, s{sHH}, 10240
    s_add_u32 s{sOL}, s{A}, s{B}
    s_add_u32 s{sOL+1}, s{sOL}, 4096
    s_add_u32 s{sOL+2}, s{sOL}, 8192
    s_add_u32 s{A}, s{A}, 10240
    s_sub_u32 s{sOR}, s{A}, s{B}
    s_lshl_b32 s{sPSO}, s{sRT}, 11
    s_add_u32 s{sPSO}, s{sPSO}, {PS}
    s_mov_b32 s{sRETRY}, {1<<16}
    s_add_u32 s{sOR+1}, s{sOR}, 4096
    s_add_u32 s{sPRB}, s{sOR}, 8192
    s_lshr_b32 s{A}, s{sRT}, 1
    s_lshl_b32 s{A}, s{A}, 12
    s_lshl_b32 s{B}, s{sHH}, 11
    s_add_u32 s{A}, s{A}, {FO}
    s_add_u32 s{sFLO}, s{A}, s{B}
    s_xor_b32 s{sFRE}, s{sFLO}, 2048
    s_waitcnt vmcnt(4)""")
    acc_init()
    p(f"""v_mov_b32 v{t}, {F_WOR}
    v_mov_b32 v{t+1}, s{sTAG}
    s_cmp_eq_u32 s{sOSC}, 0
    s_cbranch_scc1 L_nofo
    s_mov_b64 exec, 3
    s_waitcnt vmcnt(0)
    buffer_store_dword v{t+1}, v{aFO}, {S4(sWS)}, 0 offen sc1
    s_mov_b64 exec, -1
    L_nofo:""")
    STAMP('fo')
    lds_wait(t,t+1,C,'gt',2,0)
    p(f"""ds_read_b32 v{SW}, v{t} offset:{L_SWS-F_WOR}
    L_wo:""")
    STAMP('wor')
    sROFF=[sOR,sOR+1,sPRB]
    LA=CFG['wla']; WE=CFG['wwe']
    LG=[]
    def af(m): return AF+4*(m%15)
    def aread(m):
        s_,t_=divmod(m,5)
        for rd in range(2):
            p(f"ds_read_b64_tr_b16 {vr(af(m)+2*rd,2)}, v{aAL if s_<10 else aAR} offset:{(s_%10)*5120+rd*2560+8*t_}"); LG.append(m)
    def lgw(m):
        k=[i for i,x in enumerate(LG) if x!='x' and x<=m]
        if not k: return None
        n=len(LG)-1-max(k); del LG[:max(k)+1]; return n
    def bload(s_):
        so=(sOL+(s_%10)//4) if s_<10 else sROFF[(s_%10)//4]
        return f"buffer_load_dwordx4 {vr(BF+4*s_,4)}, v{aLin}, {S4(sWS)}, s{so} offen offset:{(s_%10%4)*1024} sc1"
    for m in range(LA): aread(m)
    p(f"v_mov_b32 v{MXS}, 0\nv_mov_b32 v{t+7}, {F_WO2}")
    p(f"s_cmp_lg_u32 s{sMODE}, 0\ns_cbranch_scc1 L_plsl")
    probe(sOL,C)
    p("L_plr:")
    n0=len(p.L)
    p("L_plsl:"); flag_poll(aFR,t+4,sFLO,C); p("s_branch L_plr")
    COLD.append("\n".join(p.L[n0:])); del p.L[n0:]
    STAMP('pl')
    for s_ in range(10): p(bload(s_))
    p(f"buffer_load_dword v{t+4}, v{aFR}, {S4(sWS)}, s{sFRE} offen sc1")
    for m in range(100):
        s_,t_=divmod(m,5)
        if m==50:
            STAMP('loc')
            flag_poll(aFR,t+4,sFRE,C,first=False)
            STAMP('pr')
            for k in range(10,20): p(bload(k))
            if CFG['gstart']=='PR' or CFG['dstart']=='PR' or CFG['dgate']=='PR':
                p(f"""s_mov_b64 exec, 1
                v_mov_b32 v{t+4}, {F_PR}
                v_mov_b32 v{t+5}, 1
                ds_add_u32 v{t+4}, v{t+5}
                s_mov_b64 exec, -1"""); LG.append('x')
        w=[]
        if t_==0: w.append(f"vmcnt({(10-s_) if s_<10 else (19-s_)}")
        if m%WE==0:
            n=lgw(m+WE-1)
            if n is not None: w.append(f"lgkmcnt({n}")
        if w: p("s_waitcnt "+") ".join(w)+")")
        a_=vr(WACC+4*t_,4)
        p(f"v_mfma_f32_16x16x32_bf16 {a_}, {vr(af(m),4)}, {vr(BF+4*s_,4)}, {a_}")
        if m+LA==50-10: p(f"ds_read_b32 v{t+6}, v{t+7}"); LG.append('x')
        if m+LA==50:
            p(f"v_cmp_gt_u32 vcc, 2, v{t+6}\ns_nop 0\ns_cbranch_vccnz L_wo2w\nL_wo2r:")
            n0=len(p.L)
            p("L_wo2w:"); lds_wait(t+7,t+6,C,'gt',2,0); p("s_branch L_wo2r")
            COLD.append("\n".join(p.L[n0:])); del p.L[n0:]
        if m+LA<100: aread(m+LA)
        if t_==0 and s_<10: p(f"v_max3_u32 v{MXS}, v{BF+4*s_}, v{BF+4*s_+2}, v{MXS}")
    p(f"""v_cmp_eq_u32 vcc, -1, v{MXS}
    v_mov_b32 v{t}, 0x3f803f80
    v_mov_b32 v{t+2}, 0
    v_mov_b32 v{t+3}, 0
    v_mov_b32 v{t+4}, 0
    s_cbranch_vccnz L_woredo
    L_wook:""")
    STAMP('wend')
    COLD.append(f"L_woredo:\ns_sub_u32 s{sRETRY}, s{sRETRY}, 1\ns_cbranch_scc1 L_wook\ns_nop 7")
    q=P();
    COLD.append("\n".join(f"v_lshlrev_b32 v{WACC+2*k}, 16, v{XR+k}\nv_and_b32 v{WACC+2*k+1}, 0xffff0000, v{XR+k}" for k in range(10))+"\ns_branch L_wo")
    for k in range(10): p(f"v_cvt_pk_bf16_f32 v{HP+k}, v{WACC+2*k}, v{WACC+2*k+1}")
    for k in range(10):
        p(f"""v_dot2_f32_bf16 v{t+2}, v{HP+k}, v{t}, v{t+2}
        v_dot2_f32_bf16 v{t+4}, v{HP+k}, v{HP+k}, v{t+4}
        v_dot2_f32_bf16 v{t+3}, v{HP+k}, v{WR_+k}, v{t+3}""")
    p(f"""s_lshl_b32 s{A}, s{sJ}, 4
    s_add_u32 s{A}, s{A}, s{sPSO}""")
    red3(t+2,t+3,t+4,t+5)
    p(f"""v_mov_b32 v{t+5}, s{sTAG}
    s_mov_b64 exec, 0xffff
    s_cmp_lg_u32 s{sMODE}, 0
    s_cbranch_scc1 L_pssc
    buffer_store_dwordx4 {vr(t+2,4)}, v{aPS}, {S4(sWS)}, s{A} offen
    L_psr:
    s_mov_b64 exec, -1""")
    COLD.append(f"L_pssc:\nbuffer_store_dwordx4 {vr(t+2,4)}, v{aPS}, {S4(sWS)}, s{A} offen sc1\ns_branch L_psr")
    STAMP('ps')
    G=t+10
    lp=p.lab("ps"); ok=p.lab("psok"); md=p.lab("psm")
    ld=f"""buffer_load_dwordx4 {vr(G,4)}, v{aPS}, {S4(sWS)}, s{sPSO} offen sc1
    buffer_load_dwordx4 {vr(G+4,4)}, v{aPS}, {S4(sWS)}, s{sPSO} offen offset:16 sc1"""
    p(ld)
    for k in range(10): p(f"v_lshlrev_b32 v{HF_+2*k}, 16, v{HP+k}\nv_and_b32 v{HF_+2*k+1}, 0xffff0000, v{HP+k}")
    if CFG['dbg']:
        p(f"s_add_u32 s{A}, s{sXO}, {HB}")
        for o,n in ((0,4),(4,4),(8,2)): p(f"buffer_store_dwordx{n} {vr(HP+o,n)}, v{aX2}, {S4(sWS)}, s{A} offen offset:{4*o}")
    p(f"""s_lshl_b32 s{A}, s{sRT}, 4
    s_sub_u32 s{A}, 2047, s{A}
    v_and_b32 v{t}, 15, v0
    v_sub_u32 v{t+9}, s{A}, v{t}
    v_lshlrev_b32 v{t+9}, 3, v{t+9}
    s_lshl_b32 s{A}, s{sWAVE}, 6
    s_add_u32 s{A}, s{A}, {L_KEYS}
    v_lshl_add_u32 v{aKY}, v{t}, 2, s{A}
    v_and_b32 v{t}, 48, v0
    v_lshlrev_b32 v{t}, 2, v{t}
    v_add_u32 v{t+8}, {L_KEYS}, v{t}
    s_mov_b32 s{C}, {SPIN}
    s_branch {md}
    {lp}:
    {ld}
    {md}:
    s_waitcnt vmcnt(0)
    v_cmp_ne_u32 vcc, s{sTAG}, v{G+3}
    v_cmp_ne_u32 s[{sT+14}:{sT+15}], s{sTAG}, v{G+7}
    v_pk_add_f32 {vr(t+4,2)}, {vr(G,2)}, {vr(G+4,2)}
    v_add_f32 v{t+6}, v{G+2}, v{G+6}
    s_or_b64 vcc, vcc, s[{sT+14}:{sT+15}]
    s_cbranch_scc0 {ok}""")
    spin(C,lp,ok)
    p(f"""s_branch {lp}
    {ok}:""")
    STAMP('psr')
    if CFG['dgate']=='PS': p(f"""s_mov_b64 exec, 1
    v_mov_b32 v{G}, {F_PS}
    v_mov_b32 v{G+1}, 1
    ds_add_u32 v{G}, v{G+1}
    s_mov_b64 exec, -1""")
    M=t+4
    red3(M,M+1,M+2,M+3)
    p(f"""v_mul_f32 v{M}, {1/640!r}, v{M}
    v_mul_f32 v{M+2}, {1/640!r}, v{M+2}
    v_fma_f32 v{M+2}, -v{M}, v{M}, v{M+2}
    v_max_f32 v{M+2}, 0, v{M+2}""")
    bf16r(M+2,M+2)
    p(f"v_add_f32 v{M+2}, 0x3727c5ac, v{M+2}")
    bf16r(M+2,M+2)
    p(f"v_sqrt_f32 v{M+2}, v{M+2}")
    bf16r(M,M)
    bf16r(M+2,M+2)
    RS=t+2
    p(f"""v_rcp_f32 v{RS}, v{M+2}
    v_fma_f32 v{M+1}, -v{M}, v{SW}, v{M+1}
    v_mul_f32 v{M+1}, v{M+1}, v{RS}
    v_cvt_pk_bf16_f32 v{M+1}, v{M+1}, v{M+1}
    v_mul_f32 v{RS+1}, -v{M}, v{RS}
    v_ashrrev_i32 v{M+2}, 31, v{M+1}
    v_or_b32 v{M+2}, 0x80000000, v{M+2}
    v_xor_b32 v{M+1}, v{M+1}, v{M+2}
    v_and_b32 v{M+1}, 0xffff0000, v{M+1}
    v_or_b32 v{KEY}, v{M+1}, v{t+9}
    ds_write_b32 v{aKY}, v{KEY}""")
    for k in range(10): p(f"v_pk_fma_f32 {vr(WACC+2*k,2)}, {vr(HF_+2*k,2)}, {vr(RS,2)}, {vr(RS,2)} op_sel:[0,0,1] op_sel_hi:[1,0,1]")
    K16=AF
    lp=p.lab("ky"); ok=p.lab("kyok")
    p(f"s_mov_b32 s{C}, {SPIN*4}\n{lp}:")
    for i in range(4): p(f"ds_read_b128 {vr(K16+4*i,4)}, v{t+8} offset:{16*i}")
    p("s_waitcnt lgkmcnt(0)")
    p(f"v_max3_u32 v{t}, v{K16}, v{K16+1}, v{K16+2}")
    for i in range(3,15,2): p(f"v_max3_u32 v{t}, v{K16+i}, v{K16+i+1}, v{t}")
    p(f"""v_max_u32 v{t}, v{t}, v{K16+15}
    v_cmp_eq_u32 vcc, -1, v{t}
    v_mov_b32 v{t}, 0
    s_cbranch_vccz {ok}""")
    spin(C,lp,ok)
    p(f"s_branch {lp}\n{ok}:")
    STAMP('keys')
    m0_=sT+18
    for i in range(18):
        if i<16: p(f"v_cmp_gt_u32 s[{m0_+2*(i%2)}:{m0_+2*(i%2)+1}], v{K16+i}, v{KEY}") if False else None
    MK=[sT+14,sT+16,sT+18]
    for i in range(18):
        if i<16: m=MK[i%3]; p(f"v_cmp_gt_u32 s[{m}:{m+1}], v{K16+i}, v{KEY}")
        elif i==16: p("s_nop 0")
        if i>=2: m=MK[(i-2)%3]; p(f"v_addc_co_u32 v{t}, vcc, 0, v{t}, s[{m}:{m+1}]")
    p(f"""v_mov_b32 v{t+1}, v{t}
    v_cvt_pk_bf16_f32 v{LP}, v{WACC}, v{WACC+1}
    v_cvt_pk_bf16_f32 v{LP+1}, v{WACC+2}, v{WACC+3}
    v_permlane32_swap_b32 v{t}, v{t+1}
    v_cvt_pk_bf16_f32 v{LP+2}, v{WACC+4}, v{WACC+5}
    v_add_u32 v{t}, v{t}, v{t+1}
    v_mov_b32 v{t+1}, v{t}
    v_cvt_pk_bf16_f32 v{LP+3}, v{WACC+6}, v{WACC+7}
    v_cvt_pk_bf16_f32 v{LP+4}, v{WACC+8}, v{WACC+9}
    v_permlane16_swap_b32 v{t}, v{t+1}
    v_cvt_pk_bf16_f32 v{LP+5}, v{WACC+10}, v{WACC+11}
    v_add_u32 v{t}, v{t}, v{t+1}
    v_cmp_gt_u32 s[{sCAND}:{sCAND+1}], 8, v{t}
    v_or_b32 v{KEY}, v{KEY}, v{t}
    v_mov_b32 v{t+1}, {L_CA&~0xffff}
    v_lshl_add_u32 v{t+1}, v{t}, 3, v{t+1}
    v_mov_b32 v{KEY+1}, s{sTAG}
    s_cmp_lg_u32 s{sJ}, 0
    s_cbranch_scc1 L_noca
    s_and_b32 exec_lo, s{sCAND}, 0xffff
    s_mov_b32 exec_hi, 0
    ds_write_b64 v{t+1}, {vr(KEY,2)} offset:{L_CA&0xffff}
    s_mov_b64 exec, 0xff
    s_cmp_lg_u32 s{sWAVE}, 0
    s_cbranch_scc1 L_noca
    v_lshlrev_b32 v{t+2}, 3, v0
    v_add_u32 v{t+3}, {L_CA}, v{t+2}
    s_lshl_b32 s{A}, s{sBLK}, 7
    s_add_u32 s{A}, s{A}, {CA}
    s_mov_b32 s{C}, {SPIN*4}
    L_cal:
    ds_read_b64 v[{t+4}:{t+5}], v{t+3}
    s_waitcnt lgkmcnt(0)
    v_cmp_ne_u32 vcc, s{sTAG}, v{t+5}
    s_nop 0
    s_cbranch_vccz L_caok""")
    spin(C,"L_cal","L_caok")
    p(f"""s_branch L_cal
    L_caok:
    buffer_store_dwordx2 v[{t+4}:{t+5}], v{t+2}, {S4(sWS)}, s{A} offen sc1
    L_noca:
    s_mov_b64 exec, -1""")
    STAMP('ca')
    for k in range(6,10): p(f"v_cvt_pk_bf16_f32 v{LP+k}, v{WACC+2*k}, v{WACC+2*k+1}")
    p(f"""v_lshrrev_b32 v{t+1}, 4, v0
    v_mul_u32_u24 v{t+1}, 40, v{t+1}
    v_mul_u32_u24 v{t}, 2560, v{t}
    v_add_u32 v{aCD}, v{t}, v{t+1}
    s_mul_i32 s{A}, s{sBLK}, 20480
    s_mul_i32 s{B}, s{sJ}, 160
    s_add_u32 s{A}, s{A}, s{B}
    s_add_u32 s{A}, s{A}, {CAND}
    s_and_b64 exec, s[{sCAND}:{sCAND+1}], -1
    s_cbranch_scc0 L_nocd""")
    for base,off in ((LP,0),(HP,1280)):
        if 'nocand' in CFG['xp'] or ('noh' in CFG['xp'] and off): continue
        for o,n in ((0,4),(4,4),(8,2)): p(f"buffer_store_dwordx{n} {vr(base+o,n)}, v{aCD}, {S4(sWS)}, s{A} offen offset:{off+4*o} sc1")
    p("L_nocd:\ns_mov_b64 exec, -1")
    for k in range(10): p(f"v_pk_add_f32 {vr(WACC+2*k,2)}, {vr(WACC+2*k,2)}, {vr(HF_+2*k,2)}")
    for k in range(10): p(f"v_cvt_pk_bf16_f32 v{OP+k}, v{WACC+2*k}, v{WACC+2*k+1}")
    p(f"s_andn2_b64 exec, -1, s[{sCAND}:{sCAND+1}]\ns_cbranch_scc0 L_noo1")
    if 'noout' not in CFG['xp']: out_store()
    p("L_noo1:")
    if 1: p(f"""s_mov_b64 exec, 1
    v_mov_b32 v{t+4}, {F_O1}
    v_mov_b32 v{t+5}, 1
    ds_add_u32 v{t+4}, v{t+5}
    s_mov_b64 exec, -1""")
    else: p("s_mov_b64 exec, -1")
    STAMP('o1')
KEY=228; sCAND=sT+20
def out_store():
    for o,n in ((0,4),(4,4),(8,2)): p(f"buffer_store_dwordx{n} {vr(OP+o,n)}, v{aX2}, {S4(sOUT)}, s{sXO} offen offset:{4*o} {CFG['opol']}")

def moe_weights():
    A=sT+7; B=sT+8; vt=2; D=40; aW_=12
    gu=p.lab("mwgu"); wr=p.lab("mwwr"); en=p.lab("mwend")
    FA=dict(WOD=(F_WOD,2),PR=(F_PR,4),O1=(F_O1,4),DONE=(F_DONE,4),G2=(F_G2,2),PS=(F_PS,4),WO2=(F_WO2,2))
    def gate(k):
        p(f"v_mov_b32 v{vt+4}, {FA[k][0]}")
        lds_wait(vt+4,vt+5,sT+5,'gt',FA[k][1],2)
    pl_=p.lab("mwpl")
    p(f"""s_cmp_ge_u32 s{sSLOT}, 17
    s_cbranch_scc1 {pl_}
    v_bfe_u32 v{vt}, v0, 3, 2
    v_lshrrev_b32 v{vt+1}, 5, v0
    v_lshlrev_b32 v{vt}, 1, v{vt}
    v_add_lshl_u32 v{vt}, v{vt}, v{vt+1}, 2
    v_bfe_u32 v{vt+1}, v0, 1, 2
    v_add_u32 v{vt}, v{vt}, v{vt+1}
    v_and_b32 v{vt+1}, 1, v0
    v_lshlrev_b32 v{vt+1}, 4, v{vt+1}
    s_cmp_lt_u32 s{sSLOT}, 12
    s_cbranch_scc1 {gu}
    v_mul_u32_u24 v{vt}, 1280, v{vt}
    v_add_u32 v{aW_}, v{vt}, v{vt+1}
    s_mul_i32 s{A}, s{sG}, 5
    s_add_u32 s{A}, s{A}, s{sSLOT}
    s_sub_u32 s{A}, s{A}, 12
    s_lshl_b32 s{A}, s{A}, 5
    s_mul_i32 s{B}, s{HW}, {12*32*1280}
    s_add_u32 s{A}, s{A}, s{B}""")
    gate(CFG['dstart'])
    STAMP('mg')
    for s_ in range(12):
        if s_>=CFG['ddep']: p(f"s_waitcnt vmcnt({CFG['ddep']-1})")
        p(f"buffer_load_dwordx4 {vr(D+4*s_,4)}, v{aW_}, {S4(sWD)}, s{A} offen {CFG['mpol']}")
        if s_<11: p(f"s_add_u32 s{A}, s{A}, {32*1280}")
    p(f"""s_mul_i32 s{B}, s{HW}, 12288
    s_branch {wr}
    {pl_}:""")
    if CFG['dgate']!='no' and not CFG['dw3']:
        gate(CFG['dgate'])
        touch(vTD,sWD,CFG['mpair'])
        STAMP('mg')
        if CFG['prof']: p("s_waitcnt vmcnt(0)"); STAMP('mw')
    p(f"""s_branch {en}
    {gu}:
    v_mul_u32_u24 v{vt}, 3072, v{vt}
    v_add_u32 v{aW_}, v{vt}, v{vt+1}
    s_mul_i32 s{A}, s{sG}, 12
    s_add_u32 s{A}, s{A}, s{sSLOT}
    s_lshl_b32 s{A}, s{A}, 5
    s_mul_i32 s{B}, s{HW}, {5*32*3072}
    s_add_u32 s{A}, s{A}, s{B}""")
    gate(CFG['gstart'])
    STAMP('mg')
    for s_ in range(5):
        for m_ in range(2):
            if 2*s_+m_>=CFG['mdep']: p(f"s_waitcnt vmcnt({CFG['mdep']-1})")
            p(f"buffer_load_dwordx4 {vr(D+8*s_+4*m_,4)}, v{aW_}, {S4((sWG,sWU)[m_])}, s{A} offen {CFG['mpol']}")
        if s_<4: p(f"s_add_u32 s{A}, s{A}, {32*3072}")
    p(f"s_mul_i32 s{B}, s{HW}, 12288\n{wr}:\nv_lshl_add_u32 v{vt}, v0, 4, s{B}")
    gate('DONE')
    p("s_waitcnt vmcnt(0)")
    for s_ in range(12): p(f"ds_write_b128 v{vt}, {vr(D+4*s_,4)} offset:{L_MW+s_*1024}")
    p(f"""s_lshl_b32 s{A}, s{HW}, 2
    s_add_u32 s{A}, s{A}, {F_MW}
    v_mov_b32 v{vt}, s{A}
    ds_write_b32 v{vt}, v{vt}
    s_waitcnt lgkmcnt(0)""")
    STAMP('mw')
    p(f"{en}:")
def top8(R,K2,K1,y,tt):
    def clean(chs):
        seq=[]
        for (x,y_,t_) in chs:
            seq.append([f"v_max_u32_dpp v{y_}, v{x}, v{x} row_shl:4 row_mask:0xf bank_mask:0x5",
                        f"v_min_u32_dpp v{y_}, v{x}, v{x} row_shr:4 row_mask:0xf bank_mask:0xa",
                        None,
                        f"v_mov_b32_dpp v{t_}, v{y_} quad_perm:[2,3,0,1] row_mask:0xf bank_mask:0xf",
                        f"v_med3_u32 v{y_}, v{y_}, v{t_}, v{K2}",
                        None,
                        f"v_mov_b32_dpp v{t_}, v{y_} quad_perm:[1,0,3,2] row_mask:0xf bank_mask:0xf",
                        f"v_med3_u32 v{x}, v{y_}, v{t_}, v{K1}"])
        n=len(chs)
        p(f"s_nop {2-n}")
        for i in range(8):
            if seq[0][i] is None: p(f"s_nop {2-n}")
            else:
                for c in seq: p(c[i])
                if i==0 and n==1: p("s_nop 1")
                elif i==0: p("s_nop 0")
    dp="row_mask:0xf bank_mask:0xf"
    p(f"v_max_u32_dpp v{R}, v{R+2}, v{R} row_half_mirror {dp}\nv_max_u32_dpp v{R+4}, v{R+6}, v{R+4} row_half_mirror {dp}")
    clean([(R,y,tt),(R+4,y+1,tt+1)])
    p(f"s_nop 1\nv_max_u32_dpp v{R}, v{R+4}, v{R} row_half_mirror {dp}")
    clean([(R,y,tt)])
    p(f"s_nop 1\nv_max_u32_dpp v{R}, v{R}, v{R} row_mirror {dp}")
    clean([(R,y,tt)])
    for msk,sw in ((0xa,16),(0xc,32)):
        p(f"""s_nop 1
        v_mov_b32_dpp v{R}, v{R} row_half_mirror row_mask:{hex(msk)} bank_mask:0xf
        v_mov_b32 v{tt}, v{R}
        s_nop 1
        v_permlane{sw}_swap_b32 v{R}, v{tt}
        s_nop 0
        v_max_u32 v{R}, v{R}, v{tt}""")
        clean([(R,y,tt)])
def moe():
    t=vT; A=sT+7; B=sT+8; C=sT+17; sTHR=sT+14
    R=12; K2=20; K1=21; aC=22; AW=108
    BL=160
    p(f"""s_cmp_ge_u32 s{sSLOT}, 17
    s_cbranch_scc1 L_plain
    v_lshrrev_b32 v{t}, 3, v0
    v_and_b32 v{t+1}, 7, v0
    v_lshlrev_b32 v{t+1}, 3, v{t+1}
    v_lshl_add_u32 v{aC}, v{t}, 7, v{t+1}
    s_mov_b32 s{B}, {CA}""")
    ld="\n".join(f"buffer_load_dwordx2 {vr(R+2*i,2)}, v{aC}, {S4(sWS)}, s{B} offen offset:{i*1024} sc1" for i in range(4))
    aMF=4; aMW=5
    def getw():
        lds_wait(AW-aMF,t+10 if False else AW,C,'eq',0,0)
        STAMP('mwr')
        for s_ in range(12):
            for rd in range(2): p(f"ds_read_b64_tr_b16 {vr(AW+4*s_+2*rd,2)}, v{AW-aMW} offset:{L_MW+s_*1024+rd*512}")
    p(f"""s_cmp_lg_u32 s{sWAVE}, 0
    s_cbranch_scc1 L_nocal
    {ld}
    L_nocal:
    v_bfe_i32 v{K2}, v0, 1, 1
    v_bfe_i32 v{K1}, v0, 0, 1
    v_not_b32 v{K2}, v{K2}
    v_not_b32 v{K1}, v{K1}
    s_lshl_b32 s{A}, s{sWAVE}, 2
    s_add_u32 s{A}, s{A}, {F_MW}
    v_mov_b32 v{AW-aMF}, s{A}
    s_mul_i32 s{A}, s{sWAVE}, 12288
    v_lshl_add_u32 v{AW-aMW}, v0, 3, s{A}
    v_and_b32 v{t}, 7, v0
    v_lshlrev_b32 v{t}, 2, v{t}
    v_add_u32 v{AW-6}, {L_TOP}, v{t}
    s_cmp_ge_u32 s{sSLOT}, 12
    s_cbranch_scc1 L_now""")
    getw()
    lp=p.lab("ca"); ok=p.lab("caok"); md=p.lab("cam")
    p(f"""L_now:
    s_cmp_lg_u32 s{sWAVE}, 0
    s_cbranch_scc1 L_topw
    s_mov_b32 s{C}, {SPIN}
    s_branch {md}
    {lp}:
    {ld}
    {md}:
    s_waitcnt vmcnt(0)
    v_xor_b32 v{t}, v{R+1}, v{R+3}
    v_xor_b32 v{t+1}, v{R+5}, v{R+7}
    v_xor_b32 v{R+1}, s{sTAG}, v{R+1}
    v_xor_b32 v{R+5}, s{sTAG}, v{R+5}
    v_or3_b32 v{t}, v{t}, v{t+1}, v{R+1}
    v_or_b32 v{t}, v{t}, v{R+5}
    v_cmp_ne_u32 vcc, 0, v{t}
    s_nop 0
    s_cbranch_vccz {ok}""")
    spin(C,lp,ok,CFG['casl'])
    p(f"s_branch {lp}\n{ok}:")
    STAMP('car')
    top8(R,K2,K1,t,t+2)
    p(f"ds_write_b32 v{AW-6}, v{R}\ns_branch L_top\nL_topw:\ns_waitcnt vmcnt(0)")
    lds_wait(AW-6,R,C,'eq',-1,0)
    p("L_top:")
    STAMP('top')
    TOK=t+1; aR=t+2
    p(f"""v_bfe_u32 v{TOK}, v{R}, 3, 11
    v_sub_u32 v{TOK}, 2047, v{TOK}
    v_lshrrev_b32 v{t}, 6, v{TOK}
    v_and_b32 v{aR}, 7, v{R}
    v_lshl_add_u32 v{aR}, v{t}, 3, v{aR}
    v_mul_u32_u24 v{aR}, 2560, v{aR}
    v_lshrrev_b32 v{t}, 4, v0
    v_readlane_b32 s{sTHR}, v{R}, 7
    s_cmp_ge_u32 s{sSLOT}, 12
    s_cbranch_scc1 L_down""")
    def deferred(tag):
        p(f"""v_cmp_gt_u32 vcc, s{sTHR}, v{KEY}
        s_nop 0
        s_and_b64 exec, vcc, s[{sCAND}:{sCAND+1}]
        s_cbranch_scc0 L_nd{tag}""")
        out_store()
        p(f"L_nd{tag}:\ns_mov_b64 exec, -1")
    p(f"""v_lshl_add_u32 v{aR}, v{t}, 4, v{aR}
    s_mul_i32 s{A}, s{sWAVE}, 320
    s_add_u32 s{A}, s{A}, {CAND}""")
    ld="\n".join(f"buffer_load_dwordx4 {vr(BL+4*i,4)}, v{aR}, {S4(sWS)}, s{A} offen offset:{i*64} sc1" for i in range(5))
    lp=p.lab("gl"); ok=p.lab("glok"); md=p.lab("glm"); nt=p.lab("noth")
    p(ld)
    p(f"""s_or_b32 s{B}, s{sSLOT}, s{sWAVE}
    s_cbranch_scc1 {nt}
    v_mov_b32 v{t+4}, s{sTHR}
    v_mov_b32 v{t+5}, s{sTAG}
    s_lshl_b32 s{B}, s{sG}, 7
    s_add_u32 s{B}, s{B}, {TH}
    v_mov_b32 v{t+6}, 0
    s_mov_b64 exec, 1
    buffer_store_dwordx2 v[{t+4}:{t+5}], v{t+6}, {S4(sWS)}, s{B} offen sc1
    s_mov_b64 exec, -1
    {nt}:
    s_lshl_b32 s{B}, s{sWAVE}, 11
    s_add_u32 s{B}, s{B}, {L_RED}
    v_lshl_add_u32 v{t+3}, v0, 4, s{B}
    s_mov_b32 s{C}, {SPIN}
    s_branch {md}
    {lp}:
    {ld}
    {md}:
    s_waitcnt vmcnt(0) lgkmcnt(0)
    v_max3_u32 v{t+4}, v{BL}, v{BL+2}, v{BL+4}
    v_max3_u32 v{t+5}, v{BL+6}, v{BL+8}, v{BL+10}
    v_max3_u32 v{t+4}, v{BL+12}, v{BL+14}, v{t+4}
    v_max3_u32 v{t+5}, v{BL+16}, v{BL+18}, v{t+5}
    v_max_u32 v{t+4}, v{t+4}, v{t+5}
    v_cmp_eq_u32 vcc, -1, v{t+4}
    s_nop 0
    {'s_branch' if 'nocand' in CFG['xp'] else 's_cbranch_vccz'} {ok}""")
    spin(C,lp,ok)
    p(f"s_branch {lp}\n{ok}:")
    STAMP('lr')
    G=20; U=24; X=28
    for s_ in range(5):
        for m_,a_ in ((0,G),(1,U)):
            p(f"v_mfma_f32_16x16x32_bf16 {vr(a_,4)}, {vr(AW+8*s_+4*m_,4)}, {vr(BL+4*s_,4)}, {vr(a_,4) if s_ else 0}")
    w0=p.lab("guw0")
    p(f"""s_cmp_eq_u32 s{sWAVE}, 0
    s_cbranch_scc1 {w0}
    s_nop 5
    ds_write_b128 v{t+3}, {vr(G,4)}
    ds_write_b128 v{t+3}, {vr(U,4)} offset:1024
    s_waitcnt lgkmcnt(0)
    s_barrier""")
    deferred('g1')
    END()
    p(f"""{w0}:
    s_mul_i32 s{A}, s{sG}, 12
    s_add_u32 s{A}, s{A}, s{sSLOT}
    s_lshl_b32 s{A}, s{A}, 8
    s_add_u32 s{A}, s{A}, {ACT}
    v_and_b32 v{t+4}, 7, v0
    v_lshlrev_b32 v{t+4}, 4, v{t+4}
    v_lshrrev_b32 v{t+5}, 5, v0
    v_lshl_add_u32 v{t+4}, v{t+5}, 7, v{t+4}
    v_bfe_u32 v{t+5}, v0, 4, 1
    v_lshl_add_u32 v{t+4}, v{t+5}, 3, v{t+4}
    s_barrier""")
    for w_ in range(1,4):
        for m_ in range(2): p(f"ds_read_b128 {vr(X+8*(w_-1)+4*m_,4)}, v{t+3} offset:{w_*2048+m_*1024}")
    p(f"s_mov_b32 s{B}, {hex(f2u(-math.log2(math.e)))}")
    for w_ in range(3):
        p(f"s_waitcnt lgkmcnt({4-2*w_})")
        for k in range(4): p(f"v_pk_add_f32 {vr(G+2*k,2)}, {vr(G+2*k,2)}, {vr(X+8*w_+2*k,2)}")
    p(f"""v_cvt_pk_bf16_f32 v{X}, v{G}, v{G+1}
    v_cvt_pk_bf16_f32 v{X+1}, v{G+2}, v{G+3}
    v_cvt_pk_bf16_f32 v{X+2}, v{U}, v{U+1}
    v_cvt_pk_bf16_f32 v{X+3}, v{U+2}, v{U+3}""")
    for k in range(4): p(f"v_lshlrev_b32 v{G+2*k}, 16, v{X+k}\nv_and_b32 v{G+2*k+1}, 0xffff0000, v{X+k}")
    for k in range(4): p(f"v_mul_f32 v{X+k}, s{B}, v{G+k}")
    for k in range(4): p(f"v_exp_f32 v{X+k}, v{X+k}")
    for k in range(4): p(f"v_add_f32 v{X+k}, 1.0, v{X+k}")
    for k in range(4): p(f"v_rcp_f32 v{X+k}, v{X+k}")
    for k in range(4): p(f"v_mul_f32 v{G+k}, v{G+k}, v{X+k}")
    p(f"v_cvt_pk_bf16_f32 v{X}, v{G}, v{G+1}\nv_cvt_pk_bf16_f32 v{X+1}, v{G+2}, v{G+3}")
    for k in range(2): p(f"v_lshlrev_b32 v{G+2*k}, 16, v{X+k}\nv_and_b32 v{G+2*k+1}, 0xffff0000, v{X+k}")
    p(f"""v_pk_mul_f32 {vr(G,2)}, {vr(G,2)}, {vr(U,2)}
    v_pk_mul_f32 {vr(G+2,2)}, {vr(G+2,2)}, {vr(U+2,2)}
    v_cvt_pk_bf16_f32 v{X}, v{G}, v{G+1}
    v_cvt_pk_bf16_f32 v{X+1}, v{G+2}, v{G+3}
    s_mov_b32 exec_lo, 0x00ff00ff
    s_mov_b32 exec_hi, 0x00ff00ff
    buffer_store_dwordx2 {vr(X,2)}, v{t+4}, {S4(sWS)}, s{A} offen sc1
    s_mov_b64 exec, -1""")
    STAMP('act')
    deferred('g0')
    END()
    HL=20; Y=24; X=28; SG=t+8; aO2=t+9
    p(f"""L_down:
    v_lshl_add_u32 v{aR}, v{t}, 3, v{aR}
    v_mul_u32_u24 v{aO2}, 1280, v{TOK}
    v_lshl_add_u32 v{aO2}, v{t}, 3, v{aO2}
    v_and_b32 v{t+4}, 7, v0
    v_lshlrev_b32 v{t+4}, 4, v{t+4}
    v_lshl_add_u32 v{t+4}, v{t}, 7, v{t+4}
    s_mul_i32 s{sT+1}, s{sG}, 5
    s_add_u32 s{sT+1}, s{sT+1}, s{sSLOT}
    s_sub_u32 s{sT+1}, s{sT+1}, 12
    s_lshl_b32 s{sT+1}, s{sT+1}, 5
    s_add_u32 s{sT+2}, s{sT+1}, {CAND}
    s_mul_i32 s{A}, s{sWAVE}, 6144
    s_add_u32 s{A}, s{A}, {ACT}
    s_add_u32 s{B}, s{A}, 4096""")
    ldh=f"buffer_load_dwordx2 {vr(HL,2)}, v{aR}, {S4(sWS)}, s{sT+2} offen sc1\nbuffer_load_dwordx2 {vr(HL+2,2)}, v{aR}, {S4(sWS)}, s{sT+2} offen offset:1280 sc1"
    p(ldh)
    deferred('d')
    p(f"""v_ashrrev_i32 v{SG}, 31, v{R}
    v_not_b32 v{SG}, v{SG}
    v_or_b32 v{SG}, 0x80000000, v{SG}
    v_xor_b32 v{SG}, v{SG}, v{R}
    v_and_b32 v{SG}, 0xffff0000, v{SG}
    v_mul_f32 v{SG}, {hex(f2u(-math.log2(math.e)))}, v{SG}
    v_exp_f32 v{SG}, v{SG}
    s_lshl_b32 s{C}, s{sWAVE}, 10
    v_add_f32 v{SG}, 1.0, v{SG}
    v_rcp_f32 v{SG}, v{SG}
    s_add_u32 s{C}, s{C}, {L_RED}
    v_lshl_add_u32 v{t+3}, v0, 4, s{C}""")
    bf16r(SG,SG)
    lp=p.lab("hl"); ok=p.lab("hlok"); md=p.lab("hlm")
    p(f"""s_mov_b32 s{C}, {SPIN}
    s_branch {md}
    {lp}:
    {ldh}
    {md}:
    s_waitcnt vmcnt(0)
    v_max_u32 v{t+5}, v{HL}, v{HL+2}
    v_cmp_eq_u32 vcc, -1, v{t+5}
    s_nop 0
    {'s_branch' if CFG['xp'] else 's_cbranch_vccz'} {ok}""")
    spin(C,lp,ok)
    p(f"s_branch {lp}\n{ok}:")
    getw()
    ld="\n".join([f"buffer_load_dwordx4 {vr(BL+4*i,4)}, v{t+4}, {S4(sWS)}, s{A if i<8 else B} offen offset:{(i%8)*512} sc1" for i in range(12)])
    lp=p.lab("al"); ok=p.lab("alok")
    p(f"""s_mov_b32 s{C}, {SPIN}
    {lp}:
    {ld}
    s_waitcnt vmcnt(8)
    v_max3_u32 v{t+5}, v{BL}, v{BL+2}, v{BL+4}
    v_max3_u32 v{t+6}, v{BL+6}, v{BL+8}, v{BL+10}
    v_max3_u32 v{t+5}, v{BL+12}, v{BL+14}, v{t+5}""")
    for i in range(4,12):
        if i%4==0: p(f"s_waitcnt vmcnt({8-i})")
        p(f"v_max3_u32 v{t+5+(i&1)}, v{BL+4*i}, v{BL+4*i+2}, v{t+5+(i&1)}")
    p(f"""v_max_u32 v{t+5}, v{t+5}, v{t+6}
    v_cmp_eq_u32 vcc, -1, v{t+5}
    s_waitcnt lgkmcnt(0)
    s_cbranch_vccz {ok}""")
    spin(C,lp,ok,CFG['acsl'])
    p(f"s_branch {lp}\n{ok}:")
    STAMP('ar')
    for s_ in range(12): p(f"v_mfma_f32_16x16x32_bf16 {vr(Y,4)}, {vr(AW+4*s_,4)}, {vr(BL+4*s_,4)}, {vr(Y,4) if s_ else 0}")
    w0=p.lab("dnw0")
    p(f"""s_cmp_eq_u32 s{sWAVE}, 0
    s_cbranch_scc1 {w0}
    s_nop 5
    ds_write_b128 v{t+3}, {vr(Y,4)}
    s_waitcnt lgkmcnt(0)
    s_barrier""")
    END()
    p(f"""{w0}:
    v_lshlrev_b32 v{X+12}, 16, v{HL}
    v_and_b32 v{X+13}, 0xffff0000, v{HL}
    v_lshlrev_b32 v{X+14}, 16, v{HL+1}
    v_and_b32 v{X+15}, 0xffff0000, v{HL+1}
    v_lshlrev_b32 v{X+16}, 16, v{HL+2}
    v_and_b32 v{X+17}, 0xffff0000, v{HL+2}
    v_lshlrev_b32 v{X+18}, 16, v{HL+3}
    v_and_b32 v{X+19}, 0xffff0000, v{HL+3}
    s_barrier""")
    for w_ in range(1,4): p(f"ds_read_b128 {vr(X+4*(w_-1),4)}, v{t+3} offset:{w_*1024}")
    for w_ in range(3):
        p(f"s_waitcnt lgkmcnt({2-w_})")
        for k in range(2): p(f"v_pk_add_f32 {vr(Y+2*k,2)}, {vr(Y+2*k,2)}, {vr(X+4*w_+2*k,2)}")
    def rnd():
        p(f"v_cvt_pk_bf16_f32 v{X}, v{Y}, v{Y+1}\nv_cvt_pk_bf16_f32 v{X+1}, v{Y+2}, v{Y+3}")
    def unp():
        for k in range(2): p(f"v_lshlrev_b32 v{Y+2*k}, 16, v{X+k}\nv_and_b32 v{Y+2*k+1}, 0xffff0000, v{X+k}")
    rnd(); unp()
    for k in range(4): p(f"v_mul_f32 v{Y+k}, v{SG}, v{Y+k}")
    rnd(); unp()
    for k in range(2): p(f"v_pk_add_f32 {vr(Y+2*k,2)}, {vr(Y+2*k,2)}, {vr(X+12+2*k,2)}")
    rnd(); unp()
    for k in range(2): p(f"v_pk_add_f32 {vr(Y+2*k,2)}, {vr(Y+2*k,2)}, {vr(X+16+2*k,2)}")
    rnd()
    p(f"""s_mov_b32 exec_lo, 0x00ff00ff
    s_mov_b32 exec_hi, 0x00ff00ff
    buffer_store_dwordx2 {vr(X,2)}, v{aO2}, {S4(sOUT)}, s{sT+1} offen sc1""")
    STAMP('fin')
    END()
    lp=p.lab("th"); ok=p.lab("thok")
    p(f"""L_plain:
    s_lshl_b32 s{B}, s{sG}, 7
    s_add_u32 s{B}, s{B}, {TH}
    v_mov_b32 v{t}, 0
    s_mov_b32 s{C}, {SPIN}
    {lp}:
    s_sleep 16
    buffer_load_dwordx2 v[{t+2}:{t+3}], v{t}, {S4(sWS)}, s{B} offen sc1
    s_waitcnt vmcnt(0)
    v_cmp_ne_u32 vcc, s{sTAG}, v{t+3}
    s_nop 0
    s_cbranch_vccz {ok}""")
    spin(C,lp,ok)
    p(f"""s_branch {lp}
    {ok}:
    v_readfirstlane_b32 s{sTHR}, v{t+2}
    s_nop 1""")
    deferred('p')
    STAMP('fin')

def build():
    prologue()
    steps=loader()
    helperA(steps)
    p("s_branch L_mw")
    helperB(steps)
    p("L_mw:")
    moe_weights()
    END()
    p("L_comp:")
    if CFG['prio']: p(f"s_setprio {CFG['prio']}")
    p("s_waitcnt lgkmcnt(0)")
    STAMP('start')
    prologue2(1)
    if CFG['cpf']: code_pf()
    srd(((sX,2621440),))
    clears(0)
    if CFG['clr']==0: clears(1)
    att_setup()
    gemm_setup()
    p("s_waitcnt lgkmcnt(0)")
    mktag()
    p(f"""    s_cmp_eq_u32 s{sLC}, 15
    s_cbranch_scc1 L_gS
    s_cmp_eq_u32 s{sTY}, 2
    s_cbranch_scc1 L_gV""")
    gemm_loop('T'); gemm_epi('T'); p("s_branch L_att")
    p("L_gS:"); idle_gemm(); p("s_branch L_att")
    p("L_gV:"); gemm_loop('V'); gemm_epi('V')
    p("L_att:")
    att_go()
    for w in range(4): att_variant(w)
    att_fin()
    wo_main()
    if CFG['stop']<=3:
        p(f"s_and_b64 exec, s[{sCAND}:{sCAND+1}], -1\ns_cbranch_scc0 L_noo2"); out_store(); p("L_noo2:")
    else: moe()
    END()
    att_cold()
    for c in COLD: p(c)
    p("L_exit:\ns_endpgm")
build()
errs=check(p.L)
hdr=f"""; generated by work/k/gen.py (own generator script)
; @launch grid=(256,1,1) block=(512,1,1) lds=163840
.amdgcn_target "amdgcn-amd-amdhsa--gfx950"
.text
.globl {NAME}_kernel
.p2align 8
.type {NAME}_kernel,@function
{NAME}_kernel:
"""
ftr=f""".section .rodata,"a"
.p2align 6
.amdhsa_kernel {NAME}_kernel
  .amdhsa_next_free_vgpr 256
  .amdhsa_next_free_sgpr 102
  .amdhsa_accum_offset 256
  .amdhsa_group_segment_fixed_size 0
  .amdhsa_kernarg_size 88
  .amdhsa_user_sgpr_count 2
  .amdhsa_user_sgpr_kernarg_segment_ptr 1
  .amdhsa_system_sgpr_workgroup_id_x 1
.end_amdhsa_kernel
"""
open(sys.argv[1],"w").write(hdr+p.text()+ftr)

import subprocess
r=subprocess.run(["clang","-x","assembler","-target","amdgcn-amd-amdhsa","-mcpu=gfx950",sys.argv[1],"-o",sys.argv[1]+".co"],capture_output=True,text=True)
if r.returncode: print(r.stderr[:3000]); sys.exit(1)
r=subprocess.run(["python3","cdna_unwritten_srd_check.py",sys.argv[1]+".co"],capture_output=True,text=True)
if r.returncode: print("SRDCHECK:",r.stdout[-3000:],r.stderr[-1000:])
r=subprocess.run("llvm-size -A "+sys.argv[1]+".co | grep text",shell=True,capture_output=True,text=True); print(r.stdout.strip())
if errs: sys.exit(1)
```

```python
import sys, math
from asmlib import *
NAME="sequential_preLN__sliding_block__moe_arch_mod__prompt"
CFG=dict(wb=(), wbs=31, ht=0, hpoll=0, hsl=1, wog2=0, hearly=1, stg=6, stb=0, ord='xw,xw,xw,xw,xw,xw,xw,xw,xw,xw', amp=None, wose=2, late1=1, sdef=(1,1,1,1), pt2=8, qpair2=0, nacc=8, sfirst=1, prio=0, smode='dot', sfill=(), acsl=0, casl=0, xp=(), dw3=0, wla=7, wwe=2, dgate='O1', dstart='O1', gstart='WOD', mdep=1, ddep=12, qpair=0, mpair=0, wpair=0, xnt=0, wnt=0, tpol2='', wtw='no', mtw='w3', wothr1=4, mb=(6,6), mg=('WOD','PR','PR','O1'), mpf=0, mgate='b3', hsplit=0, cpf=1, npf=(0,)*10, wogs=5, clr=0, wot=(), wtpol='', seqs=None, xpol='nt', wpol='', tpol='', wopol='', mpol='', cal=None, opol='', st=['start','b0|hb0','gend|hb9','E1|hE1','st|halo|clr','fl|g2|wo','fseen|h2','kv','aend','ost'], pt=8, wothr=16, wogate=1, h2sl=1, noh2=0, nowo=0, wos=(0,0,0), sched=(1,2,1,1,1,1,1,0,0,0), dbg=0, stop=99, prof=0, rot=('0055','36947580','05162738'), force_slow=0, noclr=0, pre=2, ldst=0, nomfma=0, nohello=0)
for a in sys.argv[2:]:
    k,v=a.split("="); CFG[k]=eval(v)
QB,KB,VB,KH,VH,OB=[i*0x280000 for i in range(6)]
CAND=0xF00000
PS=0xFA0000
CA=0xFE0000
ACT=0xFE1000
HB=0x1000000
PROF=0x1300000
H1=0x1280000; H2=0x1281000; EPO=0x1282000; TH=0x1283000
STP=0x1680000; STX=0x1780000
FO=0x1700000; OB2=0x1400000; FL=0x12A0000; FH=0x1740000
L_STG=0; L_KV=10240; L_WO=55296; L_MISC=157696; L_MW=0
L_CS=L_MISC
L_SA=L_MISC+512
L_SR=L_SA+1024
L_MODE=L_SR+512
L_FLG=L_MODE+64
F_G1,F_G2,F_H2,F_STG,F_SCP,F_DONE,F_WOR,F_MW=[L_FLG+4*i for i in (0,1,2,4,8,9,10,12)]
L_SWS=L_FLG+80; F_O1=L_FLG+44; F_WOD=L_FLG+64; F_PR=L_FLG+68; F_WO2=L_FLG+72; F_PS=L_FLG+76
L_KEYS=L_FLG+128
L_CA=L_KEYS+256; L_TOP=L_CA+64
L_RED=L_WO
sX,sW,sWO,sWG,sWU,sWD,sOUT,sWS,sDBG,sWR=[4+4*i for i in range(10)]
sWAVE,sG,sSLOT,sRQ,sHH,sRB,sCT,sMODE,sEP,sTAG=range(44,54)
sT=54
sLO=76
sPROF=80
p=P()
COLD=[]
CALI=lambda: 's_memtime' if CFG['cal'][1]>20000 else 's_memrealtime'
def STAMP(name,w=0):
    if CFG['amp']:
        a=CFG['amp']
        if name=='entry': p(f"s_memrealtime s[{sPROF+8}:{sPROF+9}]")
        for k in (0,1):
            if name==a[k]:
                p(f"{'s_memrealtime' if a[2]=='r' else 's_memtime'} s[{sPROF+2*k}:{sPROF+2*k+1}]")
                if w: p("s_waitcnt lgkmcnt(0)")
    if CFG['cal'] and name in CFG['cal'][0].split('|'):
        p(f"{CALI()} s[{sPROF}:{sPROF+1}]")
        if w: p("s_waitcnt lgkmcnt(0)")
    i=[k for k,n in enumerate(CFG['st']) if name in n.split('|')]
    if CFG['prof'] and i:
        i=i[0]
        p(f"{'s_memrealtime' if CFG['prof']==2 else 's_memtime'} s[{sPROF+2*i}:{sPROF+2*i+1}]")
        if w: p("s_waitcnt lgkmcnt(0)")
def PROFDUMP():
    if not CFG['prof']: return
    p("s_waitcnt vmcnt(0) lgkmcnt(0)")
    p("s_mov_b64 exec, -1")
    for i in range(10): p(f"v_mov_b32 v{2+i}, s{sPROF+2*i}")
    p(f"""s_lshl_b32 s{sT}, s2, 3
    s_add_u32 s{sT}, s{sT}, s{sWAVE}
    s_lshl_b32 s{sT}, s{sT}, 6
    s_add_u32 s{sT}, s{sT}, {PROF}
    v_mov_b32 v1, 0
    s_mov_b64 exec, 1
    buffer_store_dwordx4 v[2:5], v1, s[{sWS}:{sWS+3}], s{sT} offen
    buffer_store_dwordx4 v[6:9], v1, s[{sWS}:{sWS+3}], s{sT} offen offset:16
    buffer_store_dwordx2 v[10:11], v1, s[{sWS}:{sWS+3}], s{sT} offen offset:32""")
def END():
    PROFDUMP()
    if CFG['amp']:
        a=CFG['amp']
        lp=p.lab("amp"); ok=p.lab("ampok")
        p(f"""s_waitcnt vmcnt(0) lgkmcnt(0)
        s_cmp_eq_u32 s{sPROF+2}, 0
        s_cbranch_scc1 {ok}
        s_cmp_lg_u32 s{sWAVE}, {a[5] if len(a)>5 else 0}
        s_cbranch_scc1 {ok}""")
        if a[4]>=0: p(f"s_cmp_lg_u32 s2, {a[4]}\ns_cbranch_scc1 {ok}")
        p(f"""s_sub_u32 s{sPROF+6}, s{sPROF+2}, s{sPROF}
        s_mul_i32 s{sPROF+6}, s{sPROF+6}, {a[3]}
        s_lshr_b32 s{sPROF+6}, s{sPROF+6}, 4
        s_min_u32 s{sPROF+6}, s{sPROF+6}, 100000
        s_add_u32 s{sPROF+6}, s{sPROF+6}, 3000
        s_mov_b32 s{sPROF+4}, 100000
        {lp}:
        s_sleep 2
        s_memrealtime s[{sPROF+2}:{sPROF+3}]
        s_sub_u32 s{sPROF+4}, s{sPROF+4}, 1
        s_cbranch_scc1 {ok}
        s_waitcnt lgkmcnt(0)
        s_sub_u32 s{sPROF+2}, s{sPROF+2}, s{sPROF+8}
        s_cmp_lt_u32 s{sPROF+2}, s{sPROF+6}
        s_cbranch_scc1 {lp}
        {ok}:""")
    if CFG['cal']:
        lp=p.lab("cal"); ok=p.lab("calok")
        p(f"""s_waitcnt vmcnt(0) lgkmcnt(0)
        s_cmp_eq_u32 s{sPROF}, 0
        s_cbranch_scc1 {ok}
        s_cmp_ge_u32 s{sWAVE}, 4
        s_cbranch_scc1 {ok}
        s_mov_b32 s{sPROF+4}, 100000
        {lp}:
        s_sleep 2
        {CALI()} s[{sPROF+2}:{sPROF+3}]
        s_sub_u32 s{sPROF+4}, s{sPROF+4}, 1
        s_cbranch_scc1 {ok}
        s_waitcnt lgkmcnt(0)
        s_sub_u32 s{sPROF+2}, s{sPROF+2}, s{sPROF}
        s_cmp_lt_u32 s{sPROF+2}, {CFG['cal'][1]}
        s_cbranch_scc1 {lp}
        {ok}:""")
    p("s_endpgm")
S4=lambda r:f"s[{r}:{r+3}]"
SPIN=1<<18

def srd(lst):
    for r,n in lst: p(f"s_mov_b32 s{r+2}, {n}\ns_mov_b32 s{r+3}, 0x20000")
def prologue():
    STAMP('entry')
    p(f"""s_cmp_ge_u32 s2, 256
    s_cbranch_scc1 L_exit
    s_load_dwordx2 s[{sX}:{sX+1}], s[0:1], 0
    s_load_dwordx2 s[{sW}:{sW+1}], s[0:1], 8
    s_load_dwordx2 s[{sWS}:{sWS+1}], s[0:1], 80
    v_lshrrev_b32 v1, 6, v0
    v_and_b32 v0, 63, v0
    v_readfirstlane_b32 s{sWAVE}, v1
    s_and_b32 s{sG}, s2, 7
    s_lshr_b32 s{sSLOT}, s2, 3
    s_lshr_b32 s{sRQ}, s{sG}, 1
    s_and_b32 s{sHH}, s{sG}, 1
    s_and_b32 s{sRB}, s{sSLOT}, 3
    s_lshr_b32 s{sCT}, s{sSLOT}, 2""")
    if CFG['cal']: p(f"s_mov_b32 s{sPROF}, 0")
    if CFG['amp']: p(f"s_mov_b32 s{sPROF+2}, 0")
    if CFG['prof']:
        for i in range(1,10): p(f"s_mov_b32 s{sPROF+2*i}, 0")
    p(f"""s_cmp_lt_u32 s{sWAVE}, 4
    s_cbranch_scc1 L_comp""")
def prologue2(comp=0):
    if comp:
        p(f"""s_mov_b32 s{sTAG}, {EPO}
        s_load_dword s{sEP}, s[{sWS}:{sWS+1}], s{sTAG}
        s_load_dwordx2 s[{sWR}:{sWR+1}], s[0:1], 32
        s_load_dwordx2 s[{sOUT}:{sOUT+1}], s[0:1], 64""")
        srd(((sWS,268435456),(sWR,1280),(sOUT,2621440)))
        p(f"""s_mov_b32 s{sLO}, -1
        s_mov_b32 s{sLO+1}, 0
        s_mov_b32 s{sLO+2}, 0xfffff
        s_mov_b32 s{sLO+3}, 0xfffff""")
        return
    p(f"""s_mov_b32 s{sTAG}, {EPO}
    s_load_dword s{sEP}, s[{sWS}:{sWS+1}], s{sTAG}
    s_load_dwordx2 s[{sWO}:{sWO+1}], s[0:1], 16
    s_load_dwordx2 s[{sWR}:{sWR+1}], s[0:1], 32
    s_load_dwordx2 s[{sWG}:{sWG+1}], s[0:1], 40
    s_load_dwordx2 s[{sWU}:{sWU+1}], s[0:1], 48
    s_load_dwordx2 s[{sWD}:{sWD+1}], s[0:1], 56
    s_load_dwordx2 s[{sOUT}:{sOUT+1}], s[0:1], 64""")
    srd(((sWS,268435456),(sWO,819200),(sWR,1280),(sWG,1966080),(sWU,1966080),(sWD,1966080),(sOUT,2621440)))
    p(f"""s_mov_b32 s{sLO}, -1
    s_mov_b32 s{sLO+1}, 0
    s_mov_b32 s{sLO+2}, 0xfffff
    s_mov_b32 s{sLO+3}, 0xfffff""")
def mktag():
    p(f"""s_mul_i32 s{sTAG}, s{sEP}, 0x9e3779b1
    s_add_u32 s{sTAG}, s{sTAG}, 0x7f4a7c15
    s_and_b32 s{sTAG}, s{sTAG}, -16""")
def colbyte(dst, lc):
    t=sT+18
    p(f"""s_mul_i32 s{t}, s{lc}, 52
    s_lshr_b32 s{t}, s{t}, 8
    s_mul_i32 s{t+1}, s{t}, 5
    s_sub_u32 s{t+1}, s{lc}, s{t+1}
    s_mul_i32 s{t}, s{t}, 1280
    s_lshl_b32 s{t+1}, s{t+1}, 7
    s_mul_i32 s{dst}, s{sHH}, 640
    s_add_u32 s{dst}, s{dst}, s{t}
    s_add_u32 s{dst}, s{dst}, s{t+1}""")

def loader():
    CA_=sT+1; CB_=sT+2; CH=sT+3; XO=sT+4; WO_=sT+5; LB=sT+6; A=sT+7; B=sT+8; OFF=sT+9; SEQ=sT+10
    vX=2; vW=6; vt=10
    p(f"""s_sub_u32 s{HW}, s{sWAVE}, 4
    s_lshl_b32 s{A}, s{sCT}, 1
    s_add_u32 s{B}, s{A}, 1
    s_min_u32 s{B}, s{B}, 14""")
    colbyte(CA_,A); colbyte(CB_,B)
    p(f"""v_lshrrev_b32 v{vt}, 3, v0
    v_mul_u32_u24 v{vX}, 1280, v{vt}
    v_lshrrev_b32 v{vt+1}, 4, v0
    v_and_b32 v{vt+2}, 7, v0
    v_xor_b32 v{vt+2}, v{vt+2}, v{vt+1}
    v_lshl_add_u32 v{vX}, v{vt+2}, 4, v{vX}
    v_xor_b32 v{vX+1}, 64, v{vX}
    v_add_u32 v{vX+1}, {10240-1024}, v{vX+1}
    v_add_u32 v{vX+2}, {2*(10240-1024)}, v{vX}
    v_add_u32 v{vX+3}, {2*(10240-1024)}, v{vX+1}
    v_lshlrev_b32 v{vt+2}, 2, v{vt+1}
    v_and_b32 v{vt+3}, 15, v0
    v_xor_b32 v{vt+2}, v{vt+2}, v{vt+3}
    v_cmp_lt_u32 vcc, 7, v{vt+2}
    v_mov_b32 v{vt+3}, s{CA_}
    v_mov_b32 v{vt+4}, s{CB_}
    v_cndmask_b32 v{vt+3}, v{vt+3}, v{vt+4}, vcc
    v_and_b32 v{vt+2}, 7, v{vt+2}
    v_lshl_add_u32 v{vt+3}, v{vt+2}, 4, v{vt+3}
    v_mul_u32_u24 v{vW}, 3840, v{vt+1}
    v_add_u32 v{vW}, v{vW}, v{vt+3}""")
    for i in range(1,4): p(f"v_add_u32 v{vW+i}, {i*(4*3840-1024)}, v{vW}")
    ta,tc,tg=CFG['rot']
    pk=lambda t: sum(int(v)<<(4*i) for i,v in enumerate(t))
    p(f"""s_lshl_b32 s{A}, s{sRB}, 2
    s_lshr_b32 s{CH}, {pk(ta)}, s{A}
    s_and_b32 s{CH}, s{CH}, 15
    s_lshl_b32 s{A}, s{sCT}, 2
    s_lshr_b32 s{A}, {hex(pk(tc))}, s{A}
    s_and_b32 s{A}, s{A}, 15
    s_add_u32 s{CH}, s{CH}, s{A}
    s_lshl_b32 s{A}, s{sG}, 2
    s_lshr_b32 s{A}, {hex(pk(tg))}, s{A}
    s_and_b32 s{OFF}, s{A}, 15""")
    seqs=CFG['seqs']
    if seqs:
        n=len(seqs)
        p(f"""s_mul_i32 s{A}, s{CH}, {-(-2048//n)}
        s_lshr_b32 s{A}, s{A}, 11
        s_mul_i32 s{A}, s{A}, {n}
        s_sub_u32 s{CH}, s{CH}, s{A}""")
        for i,q in enumerate(seqs):
            assert sorted(q)==list("0123456789")
            if i: p(f"s_cmp_eq_u32 s{CH}, {i}\ns_cselect_b32 s{SEQ}, {hex(pk(q[:8]))}, s{SEQ}\ns_cselect_b32 s{SEQ+1}, {hex(pk(q[8:]))}, s{SEQ+1}")
            else: p(f"s_mov_b32 s{SEQ}, {hex(pk(q[:8]))}\ns_mov_b32 s{SEQ+1}, {hex(pk(q[8:]))}")
    else:
        p(f"""s_add_u32 s{CH}, s{CH}, s{OFF}
    s_mul_i32 s{A}, s{CH}, 205
    s_lshr_b32 s{A}, s{A}, 11
    s_mul_i32 s{A}, s{A}, 10
    s_sub_u32 s{CH}, s{CH}, s{A}""")
    p(f"""
    s_lshl_b32 s{A}, s{sRQ}, 2
    s_add_u32 s{A}, s{A}, s{sRB}
    s_lshl_b32 s{A}, s{A}, 2
    s_add_u32 s{A}, s{A}, s{HW}
    s_mul_i32 s{XO}, s{A}, {32*1280}
    s_mul_i32 s{WO_}, s{HW}, {16*3840}
    s_lshl_b32 s{LB}, s{HW}, 12""")
    CHW=SEQ
    p(f"s_mov_b32 s{CHW}, s{CH}")
    nx=dict(x=0,w=0)
    def issue(order,lim):
        global OPS
        for k in order:
            c=nx[k]; nx[k]+=1; assert c<=min(9,lim)
            slot=(c%4)*32768; ch=CH if k=='x' else CHW
            if k=='x': p(f"""s_lshl_b32 s{A}, s{ch}, 7
                s_add_u32 m0, s{LB}, {slot}
                s_add_u32 s{A}, s{A}, s{XO}""")
            else: p(f"""s_mul_i32 s{A}, s{ch}, {64*3840}
                s_add_u32 m0, s{LB}, {slot+16384}
                s_add_u32 s{A}, s{A}, s{WO_}""")
            for i in range(4):
                if k=='x': p(f"buffer_load_dwordx4 v{vX+i}, {S4(sX)}, s{A} offen offset:{i*1024} {CFG['xpol'] if c<CFG['xnt'] else ''} lds")
                else: p(f"buffer_load_dwordx4 v{vW+i}, {S4(sW)}, s{A} offen offset:{i*1024} {'nt' if c<CFG['wnt'] else CFG['wpol']} lds")
            p(f"""s_add_u32 s{ch}, s{ch}, 1
            s_cmp_eq_u32 s{ch}, 10
            s_cselect_b32 s{ch}, 0, s{ch}""")
            OPS+=[c]*4
    ORD=CFG['ord'].split(',')
    srd(((sX,2621440),(sW,2457600)))
    p("s_waitcnt lgkmcnt(0)")
    STAMP('i0')
    for c in range(1):
        issue(ORD[0],3); STAMP('i%d'%(c+1))
        if c==0:
            prologue2()
            p(f"""v_cmp_lt_u32 vcc, 7, v0
            v_lshlrev_b32 v{vt}, 4, v0
            v_add_u32 v{vt}, {L_FLG}, v{vt}
            v_cndmask_b32 v{vt+2}, 0, -1, vcc
            v_cndmask_b32 v{vt+3}, 0, -1, vcc
            v_cndmask_b32 v{vt+4}, 0, -1, vcc
            v_cndmask_b32 v{vt+5}, 0, -1, vcc
            ds_write_b128 v{vt}, v[{vt+2}:{vt+5}]""")
            early()
    p("s_waitcnt lgkmcnt(0)")
    mktag()
    stats_setup()
    p(f"s_cmp_ge_u32 s{HW}, 2\ns_cbranch_scc1 L_helperB")
    nx0=dict(nx); ops0=list(OPS)
    def steps(hook):
        global OPS
        nx.update(nx0); OPS=list(ops0)
        STAMP('i1s')
        issue(ORD[1],3)
        STAMP('i1e')
        for c in range(8):
            sd=CFG['sdef']
            if c==0 and -1 in sd:
                assert ORD[0][0]=='x'; p(f"s_waitcnt vmcnt({len(OPS)-4})")
                STAMP('x0')
                fill=stats(0)
                for k in range(4):
                    if sd[k]==-1: p(fill[k])
                if max(sd)==-1: stats_red()
            vmwait(c)
            p("s_barrier")
            STAMP('ld%d'%c)
            if c==0 and -1 not in sd: fill=stats(0)
            if c==CFG['stg'] and CFG['stb']: stats_get(); hook(100)
            issue(ORD[2+c],c+3)
            if c==0: p("s_waitcnt lgkmcnt(0)")
            for k in range(4):
                if sd[k]==c: p(fill[k])
            if c==max(0,max(sd)):
                if max(sd)>=0: stats_red()
                stats_pub(); OPS.append('stw')
            if c==CFG['stg'] and not CFG['stb']: stats_get(); hook(100)
            hook(c)
        assert nx==dict(x=10,w=10)
    return steps
aS=44; dS=64; sacc=60; sone=43; sDBL=sDBG; sSTP=sDBG+1
def stats_setup():
    vt=10
    tc=[int(x) for x in CFG['rot'][1]]
    assert not CFG['seqs'] and sorted(tc+[(tc[7]+1)%10,(tc[7]+2)%10])==list(range(10))
    p(f"""s_lshl_b32 s{sT+16}, s{HW}, 12
    v_bfe_u32 v{vt}, v0, 1, 3
    v_lshrrev_b32 v{vt+1}, 5, v0
    v_lshlrev_b32 v{vt+1}, 2, v{vt+1}
    v_xor_b32 v{vt}, v{vt}, v{vt+1}
    v_lshlrev_b32 v{vt}, 4, v{vt}
    v_and_b32 v{vt+1}, 31, v0
    v_lshl_add_u32 v{vt}, v{vt+1}, 7, v{vt}
    v_add_u32 v{aS}, s{sT+16}, v{vt}
    v_mov_b32 v{sone}, 0x3f803f80
    s_lshl_b32 s{sSTP}, s{sG}, 2
    s_add_u32 s{sSTP}, s{sSTP}, s{sRB}
    s_lshl_b32 s{sSTP}, s{sSTP}, 14
    s_lshl_b32 s{sT+16}, s{HW}, 9
    s_add_u32 s{sSTP}, s{sSTP}, s{sT+16}
    s_add_u32 s{sSTP}, s{sSTP}, {STP}
    v_lshrrev_b32 v{vt}, 5, v0
    v_lshlrev_b32 v{vt}, 11, v{vt}
    v_lshl_add_u32 v{aS+4}, v{vt+1}, 4, v{vt}
    s_lshl_b32 s{sT+16}, s{sCT}, 11
    s_cmp_eq_u32 s{sCT}, 7
    s_cselect_b32 s{sT+16}, {STX-STP}, s{sT+16}
    v_lshl_add_u32 v{aS+5}, v{vt+1}, 4, s{sT+16}""")
    for i in range(1,4): p(f"v_xor_b32 v{aS+i}, {16*i}, v{aS}")
    for i in range(4): p(f"v_mov_b32 v{sacc+i}, 0")
    if CFG['smode'] in ('dotx','dotc'):
        for i in range(2*CFG['nacc']): p(f"v_mov_b32 v{102+i}, 0")
def stats(c):
    if 'nostats' in CFG['xp']: return ['s_nop 0']*4
    for i in range(4): p(f"ds_read_b128 {vr(dS+4*i,4)}, v{aS+i} offset:{c*32768}")
    L=[]
    for i in range(4):
        g=f"s_waitcnt lgkmcnt({3-i})"
        for j in range(4):
            r=dS+4*i+j
            u=80+2*(j&1)
            if CFG['smode']=='dotx':
                a=102+2*((4*i+j)%CFG['nacc']); g+=f"\nv_dot2_f32_bf16 v{a}, v{r}, v{sone}, v{a}\nv_dot2_f32_bf16 v{a+1}, v{r}, v{r}, v{a+1}"
            elif CFG['smode']=='dotc':
                a=102+2*((4*i+j)%CFG['nacc']); g+=f"\nv_dot2c_f32_bf16 v{a}, v{r}, v{sone}\nv_dot2c_f32_bf16 v{a+1}, v{r}, v{r}"
            elif CFG['smode']=='dot': g+=f"\nv_dot2_f32_bf16 v{sacc+(j&1)}, v{r}, v{sone}, v{sacc+(j&1)}\nv_dot2_f32_bf16 v{sacc+2+(j&1)}, v{r}, v{r}, v{sacc+2+(j&1)}"
            elif CFG['smode']=='valu': g+=f"\nv_lshlrev_b32 v{u}, 16, v{r}\nv_and_b32 v{u+1}, 0xffff0000, v{r}\nv_add_f32 v{sacc}, v{sacc}, v{u}\nv_fmac_f32 v{sacc+2}, v{u}, v{u}\nv_add_f32 v{sacc+1}, v{sacc+1}, v{u+1}\nv_fmac_f32 v{sacc+3}, v{u+1}, v{u+1}"
            elif CFG['smode']=='pk': g+=f"\nv_lshlrev_b32 v{u}, 16, v{r}\nv_and_b32 v{u+1}, 0xffff0000, v{r}\nv_pk_add_f32 v[{sacc}:{sacc+1}], v[{sacc}:{sacc+1}], v[{u}:{u+1}]\nv_pk_fma_f32 v[{sacc+2}:{sacc+3}], v[{u}:{u+1}], v[{u}:{u+1}], v[{sacc+2}:{sacc+3}]"
        L.append(g)
    return L
def stats_red():
    t=sacc
    p(f"""s_nop 1
    v_add_f32 v{t}, v{t}, v{t+1}
    v_add_f32 v{t+1}, v{t+2}, v{t+3}
    v_mov_b32 v{t+2}, s{sTAG}
    s_nop 0
    v_permlane32_swap_b32 v{t}, v{t+1}
    s_nop 0
    v_add_f32 v{t}, v{t}, v{t+1}
    v_mov_b32 v{t+1}, v{t}
    s_nop 1
    v_permlane32_swap_b32 v{t}, v{t+1}""")
def stats_pub():
    t=sacc
    p(f"""s_mov_b64 exec, s[{sLO}:{sLO+1}]
    buffer_store_dwordx4 {vr(t,4)}, v{aS+5}, {S4(sWS)}, s{sSTP} offen sc1
    s_mov_b64 exec, -1""")
def stats_ld():
    return "\n".join(f"s_add_u32 s{sSTP+1}, s{sSTP}, {4096*i}\nbuffer_load_dwordx4 {vr(dS+4*i,4)}, v{aS+4}, {S4(sWS)}, s{sSTP+1} offen sc1" for i in range(4))
def stats_get():
    p(stats_ld()); OPS.extend(['stp']*4)
def stats_fin(t,B):
    vmwait('stp')
    lp=p.lab("stl"); ok=p.lab("stok"); rt=p.lab("strt")
    p(f"""s_mov_b32 s{B}, {SPIN}
    {lp}:
    v_xor_b32 v{t}, v{dS+2}, v{dS+6}
    v_xor_b32 v{t+1}, v{dS+10}, v{dS+14}
    v_xor_b32 v{t+2}, s{sTAG}, v{dS+2}
    v_xor_b32 v{t+3}, s{sTAG}, v{dS+10}
    v_or3_b32 v{t}, v{t}, v{t+1}, v{t+2}
    v_or_b32 v{t}, v{t}, v{t+3}
    v_cmp_ne_u32 vcc, 0, v{t}
    v_add_f32 v{t+1}, v{dS}, v{dS+4}
    v_add_f32 v{t+2}, v{dS+1}, v{dS+5}
    s_cbranch_vccnz {rt}
    {ok}:""")
    n0=len(p.L)
    p(f"{rt}:"); spin(B,lp,ok,1); p(stats_ld()); p(f"s_waitcnt vmcnt(0)\ns_branch {lp}")
    COLD.append("\n".join(p.L[n0:])); del p.L[n0:]
    p(f"""v_add_f32 v{t+3}, v{dS+8}, v{dS+12}
    v_add_f32 v{t+4}, v{dS+9}, v{dS+13}
    v_add_f32 v{t+1}, v{t+1}, v{t+3}
    v_add_f32 v{t+2}, v{t+2}, v{t+4}
    s_nop 1
    v_permlane32_swap_b32 v{t+1}, v{t+2}
    s_nop 0
    v_add_f32 v{t+1}, v{t+1}, v{t+2}
    v_mul_f32 v{t+1}, {1/640!r}, v{t+1}
    v_mov_b32 v{t+2}, v{t+1}
    s_nop 1
    v_permlane32_swap_b32 v{t+1}, v{t+2}
    s_nop 0
    v_fma_f32 v{t+2}, -v{t+1}, v{t+1}, v{t+2}
    v_max_f32 v{t+2}, 0, v{t+2}""")
    bf16r(t+2,t+2)
    p(f"v_add_f32 v{t+2}, 0x3727c5ac, v{t+2}")
    bf16r(t+2,t+2)
    p(f"""v_sqrt_f32 v{t+2}, v{t+2}
    v_xor_b32 v{t+1}, 0x80000000, v{t+1}""")
    bf16r(t+2,t+2)
    p(f"""v_rcp_f32 v{t+5}, v{t+2}
    v_cvt_pk_bf16_f32 v{t+4}, v{t+1}, v{t+1}
    v_and_b32 v{t+3}, 31, v0
    s_lshl_b32 s{B}, s{HW}, 8
    s_add_u32 s{B}, s{B}, {L_SA}
    v_lshl_add_u32 v{t+1}, v{t+3}, 3, s{B}
    s_lshl_b32 s{B}, s{HW}, 7
    s_add_u32 s{B}, s{B}, {L_SR}
    v_lshl_add_u32 v{t+2}, v{t+3}, 2, s{B}
    ds_write_b64 v{t+1}, v[{t+4}:{t+5}]
    ds_write_b32 v{t+2}, v{t+5}""")
vPT=21; vDUM=39
HS=sT+12; HA=28
def early():
    A=sT+20; B=sT+21; vt=10
    p(f"""s_lshl_b32 s{A}, s{sSLOT}, 2
    s_add_u32 s{A}, s{A}, s{HW}
    s_mul_i32 s{A}, s{A}, 60
    v_min_u32 v{vt}, 59, v0
    v_add_u32 v{vt}, s{A}, v{vt}
    v_mul_u32_u24 v{vt+1}, 6554, v{vt}
    v_lshrrev_b32 v{vt+1}, 20, v{vt+1}
    v_mul_u32_u24 v{vt+2}, 160, v{vt+1}
    v_sub_u32 v{vt}, v{vt}, v{vt+2}
    v_lshlrev_b32 v{vt}, 7, v{vt}
    v_cmp_gt_u32 vcc, 32, v{vt+1}
    v_and_b32 v{vt+2}, 1, v{vt+1}
    v_mul_u32_u24 v{vt+2}, 20480, v{vt+2}
    v_bfe_u32 v{vt+3}, v{vt+1}, 1, 3
    v_mul_u32_u24 v{vt+3}, 163840, v{vt+3}
    v_add_u32 v{vt+2}, v{vt+2}, v{vt+3}
    v_lshrrev_b32 v{vt+3}, 4, v{vt+1}
    v_mul_u32_u24 v{vt+3}, {KB}, v{vt+3}
    s_mul_i32 s{A}, s{sRQ}, 40960
    v_add3_u32 v{vt+2}, v{vt+2}, v{vt+3}, s{A}
    v_and_b32 v{vt+3}, 15, v{vt+1}
    v_mul_u32_u24 v{vt+3}, 81920, v{vt+3}
    s_mul_i32 s{A}, s{sRQ}, 20480
    s_add_u32 s{A}, s{A}, {VB}
    v_add_u32 v{vt+3}, s{A}, v{vt+3}
    v_cndmask_b32 v{vt+2}, v{vt+3}, v{vt+2}, vcc
    s_mul_i32 s{A}, s{sHH}, {8*163840}
    v_add3_u32 v{vPT}, v{vt}, v{vt+2}, s{A}
""")
    p(f"""s_lshl_b32 s{A}, s{sSLOT}, 2
    s_add_u32 s{A}, s{A}, s{HW}
    s_mul_i32 s{B}, s{A}, 20
    v_min_u32 v{vt}, 19, v0
    v_add_u32 v{vt}, s{B}, v{vt}
    v_mul_u32_u24 v{vt+1}, 13108, v{vt}
    v_lshrrev_b32 v{vt+1}, 20, v{vt+1}
    v_mul_u32_u24 v{vt+2}, 80, v{vt+1}
    v_sub_u32 v{vt}, v{vt}, v{vt+2}
    v_lshlrev_b32 v{vt}, 7, v{vt}
    v_cmp_gt_u32 vcc, 16, v{vt+1}
    v_and_b32 v{vt+2}, 1, v{vt+1}
    v_mul_u32_u24 v{vt+2}, 10240, v{vt+2}
    v_lshrrev_b32 v{vt+3}, 1, v{vt+1}
    v_mul_u32_u24 v{vt+3}, 163840, v{vt+3}
    s_mul_i32 s{B}, s{sRQ}, 40960
    s_add_u32 s{B}, s{B}, {KH+20480}
    v_add3_u32 v{vt+2}, v{vt+2}, v{vt+3}, s{B}
    v_and_b32 v{vt+3}, 15, v{vt+1}
    v_mul_u32_u24 v{vt+3}, 81920, v{vt+3}
    s_mul_i32 s{B}, s{sRQ}, 20480
    s_add_u32 s{B}, s{B}, {VH+10240}
    v_add_u32 v{vt+3}, s{B}, v{vt+3}
    v_cndmask_b32 v{vt+2}, v{vt+3}, v{vt+2}, vcc
    s_mul_i32 s{B}, s{sHH}, {8*163840}
    v_add3_u32 v{vHT}, v{vt}, v{vt+2}, s{B}
    s_lshl_b32 s{B}, s{sG}, 7
    s_add_u32 s{A}, s{A}, s{B}
    s_lshl_b32 s{A}, s{A}, 7
    s_add_u32 s{A}, s{A}, {FH}
    v_mov_b32 v{vt}, s{A}
    v_cmp_lt_u32 vcc, 19, v0
    s_nop 1
    v_cndmask_b32 v{vHT}, v{vHT}, v{vt}, vcc""")
    nsm=sum(CFG['npf']); per=(100-5*nsm)//2
    if per>0:
        p(f"""s_mul_i32 s{A}, s{sG}, 5
        s_lshr_b32 s{A}, s{A}, 1
        s_mul_i32 s{A}, s{A}, 5
        s_lshr_b32 s{B}, s{HW}, 1
        s_mul_i32 s{B}, s{B}, {per}
        s_add_u32 s{A}, s{A}, s{B}
        s_add_u32 s{A}, s{A}, {5*nsm}
        v_min_u32 v{vt}, {per-1}, v0
        v_add_u32 v{vt}, s{A}, v{vt}
        v_subrev_u32 v{vt+1}, 100, v{vt}
        v_min_u32 v{vt}, v{vt}, v{vt+1}
        s_lshl_b32 s{A}, s{sSLOT}, 1
        s_and_b32 s{B}, s{HW}, 1
        s_add_u32 s{A}, s{A}, s{B}
        s_mul_i32 s{A}, s{A}, 12800
        v_lshl_add_u32 v{vTW}, v{vt}, 7, s{A}""")
    ge=p.lab("mtge"); jn=p.lab("mtj")
    p(f"""s_cmp_ge_u32 s{HW}, 2
    s_cbranch_scc1 {ge}
    v_min_u32 v{vt}, 59, v0
    v_mul_u32_u24 v{vt+1}, 86, v{vt}
    v_lshrrev_b32 v{vt+1}, 8, v{vt+1}
    v_mul_u32_u24 v{vt+1}, {3072-384}, v{vt+1}
    v_lshl_add_u32 v{vt}, v{vt}, 7, v{vt+1}
    s_mul_i32 s{A}, s{sSLOT}, {20*3072}
    s_mul_i32 s{B}, s{sG}, 384
    s_branch {jn}
    {ge}:
    {jn}:
    s_add_u32 s{A}, s{A}, s{B}
    v_add_u32 v{vTM}, s{A}, v{vt}
    s_sub_u32 s{A}, s{sSLOT}, {0 if CFG['dw3'] else 17}
    s_lshl_b32 s{A}, s{A}, {1 if CFG['dw3'] else 2}
    s_add_u32 s{A}, s{A}, s{HW}
    s_mul_i32 s{A}, s{A}, {24 if CFG['dw3'] else 26}
    v_min_u32 v{vt}, {47 if CFG['dw3'] else 51}, v0
    v_lshrrev_b32 v{vt+1}, 1, v{vt}
    v_add_u32 v{vt+1}, s{A}, v{vt+1}
    v_min_u32 v{vt+1}, 1535, v{vt+1}
    v_mul_u32_u24 v{vt+1}, 1280, v{vt+1}
    v_and_b32 v{vt}, 1, v{vt}
    v_lshl_add_u32 v{vt}, v{vt}, 7, v{vt+1}
    s_mul_i32 s{B}, s{sG}, 160
    s_and_b32 s{B}, s{B}, -128
    v_add_u32 v{vTD}, s{B}, v{vt}""")
vTD=25; vHT=26
vTW=22; vTM=24
def touch(va,srd_,pair,pol=''):
    if pair:
        p(f"buffer_load_dword v{vDUM}, v{va}, {S4(srd_)}, 0 offen nt\nbuffer_load_dword v{vDUM}, v{va}, {S4(srd_)}, 0 offen offset:64")
        return 2
    p(f"buffer_load_dword v{vDUM}, v{va}, {S4(srd_)}, 0 offen {pol}")
    return 1
def wtouch(win,isB):
    n=0
    if CFG['wtw']==win and 100-5*sum(CFG['npf'])>0:
        n+=touch(vTW,sWO,CFG['wpair'])
    if CFG['mtw']==win:
        if not isB:
            u=p.lab("tu"); j=p.lab("tj")
            p(f"s_cmp_eq_u32 s{HW}, 0\ns_cbranch_scc0 {u}")
            touch(vTM,sWG,CFG['mpair'])
            p(f"s_branch {j}\n{u}:")
            n+=touch(vTM,sWU,CFG['mpair'])
            p(f"{j}:")
    return n
def qkv_touch():
    if CFG['pt']==99: return
    if CFG['ht']==1: OPS.extend(['pt']*touch(vHT,sWS,0,''))
    OPS.extend(['pt']*touch(vPT,sWS,CFG['qpair'],CFG['tpol']))
    if CFG['ht']==2: OPS.extend(['pt']*touch(vHT,sWS,0,''))
vH=16
OPS=[]
def vmwait(*tags):
    last=max(i for i,t in enumerate(OPS) if t in tags)
    n=len(OPS)-1-last; assert n<64
    p(f"s_waitcnt vmcnt({n})")
HW=sT
def spin(cnt,lp,ok,sleep=0):
    p(f"s_sub_u32 s{cnt}, s{cnt}, 1\ns_cbranch_scc1 {ok}")
    if sleep: p(f"s_sleep {sleep}")
def lds_wait(addr_v,tmp,cnt,cmp,val,sleep=1):
    lp=p.lab("lw"); ok=p.lab("lwok")
    p(f"""s_mov_b32 s{cnt}, {SPIN*4}
    {lp}:
    ds_read_b32 v{tmp}, v{addr_v}
    s_waitcnt lgkmcnt(0)
    v_cmp_{cmp}_u32 vcc, {val}, v{tmp}
    s_nop 0
    s_cbranch_vccz {ok}""")
    spin(cnt,lp,ok,sleep)
    p(f"s_branch {lp}\n{ok}:")
sHL,sHF,sHO,sPH,sHD,sT0=range(sT+1,sT+7)
def att_ids():
    p(f"""s_lshr_b32 s{sHL}, s{sSLOT}, 1
    s_and_b32 s{sHF}, s{sSLOT}, 1
    s_and_b32 s{sHO}, s{sHL}, 1
    s_lshr_b32 s{sPH}, s{sHL}, 1
    s_lshl_b32 s{sHD}, s{sHH}, 3
    s_add_u32 s{sPH}, s{sPH}, s{sHD}
    s_lshl_b32 s{sHD}, s{sHH}, 4
    s_add_u32 s{sHD}, s{sHD}, s{sHL}
    s_lshl_b32 s{sT0}, s{sRQ}, 1
    s_add_u32 s{sT0}, s{sT0}, s{sHF}
    s_lshl_b32 s{sT0}, s{sT0}, 3""")
def flag_addr(vd,vt,withq,A,B,C):
    p(f"""s_lshr_b32 s{A}, s{sHL}, 1
    s_mul_i32 s{A}, s{A}, 5
    s_lshl_b32 s{B}, s{sHO}, 1
    s_add_u32 s{A}, s{A}, s{B}
    s_add_u32 s{B}, s{A}, 2
    s_lshr_b32 s{A}, s{A}, 3
    s_lshr_b32 s{B}, s{B}, 3
    s_lshl_b32 s{B}, s{B}, 4
    s_or_b32 s{A}, s{A}, s{B}
    s_add_u32 s{B}, s{A}, 0x55
    s_lshl_b32 s{C}, s{B}, 8
    s_or_b32 s{A}, s{C}, s{A if withq else B}
    s_mul_i32 s{B}, s{sHL}, 20
    s_add_u32 s{C}, s{B}, 19
    s_lshr_b32 s{B}, s{B}, 6
    s_lshr_b32 s{C}, s{C}, 6
    s_lshl_b32 s{C}, s{C}, 4
    s_or_b32 s{B}, s{B}, s{C}
    s_add_u32 s{B}, s{B}, 0xaa
    s_lshl_b32 s{B}, s{B}, 16
    s_or_b32 s{A}, s{A}, s{B}
    v_and_b32 v{vt}, 60, v0
    v_min_u32 v{vt}, 20, v{vt}
    v_bfe_u32 v{vt}, s{A}, v{vt}, 4
    v_and_b32 v{vd}, 3, v0
    v_lshlrev_b32 v{vd}, 2, v{vd}
    v_lshl_add_u32 v{vd}, v{vt}, 7, v{vd}""")
def flag_poll(va,vt,soff,cnt,first=True,sleep=0):
    lp=p.lab("fp"); ok=p.lab("fpok");
    p(f"s_mov_b32 s{cnt}, {SPIN}")
    if not first:
        md=p.lab("fpm"); p(f"s_branch {md}")
    p(f"""{lp}:
    buffer_load_dword v{vt}, v{va}, {S4(sWS)}, s{soff} offen sc1""")
    if not first: p(f"{md}:")
    p(f"""s_waitcnt vmcnt(0)
    v_cmp_ne_u32 vcc, s{sTAG}, v{vt}
    s_nop 0
    s_cbranch_vccz {ok}""")
    spin(cnt,lp,ok,sleep)
    p(f"s_branch {lp}\n{ok}:")
def flag_poll2(va,vt,soff,cnt,n=2,gap=0):
    lp=p.lab("fq"); ok=p.lab("fqok")
    ld=lambda i: f"buffer_load_dword v{vt+i}, v{va}, {S4(sWS)}, s{soff} offen sc1"
    p(f"s_mov_b32 s{cnt}, {SPIN}")
    for i in range(n-1):
        p(ld(i))
        if gap: p(f"s_sleep {gap}")
    p(f"{lp}:")
    for i in range(n):
        p(f"""{ld((i+n-1)%n)}
        s_waitcnt vmcnt({n-1})
        v_cmp_ne_u32 vcc, s{sTAG}, v{vt+i}
        s_nop 0
        s_cbranch_vccz {ok}""")
    spin(cnt,lp,ok)
    p(f"s_branch {lp}\n{ok}:")
def kv_dma(aLin,aTl,sK,sV,sL,A,B,sHO=sHO):
    p(f"""s_mul_i32 s{A}, s{sHO}, 1536
    s_add_u32 s{A}, s{A}, s{sK}
    s_mov_b32 m0, s{sL}
    s_add_u32 s{B}, s{A}, 1536
    buffer_load_dwordx4 v{aLin}, {S4(sWS)}, s{A} offen sc1 lds
    buffer_load_dwordx4 v{aLin}, {S4(sWS)}, s{B} offen offset:1024 sc1 lds
    s_sub_u32 s{A}, s{sK}, 2048
    s_sub_u32 s{B}, s{sV}, 3072
    buffer_load_dwordx4 v{aTl}, {S4(sWS)}, s{A} offen offset:2048 sc1 lds
    buffer_load_dwordx4 v{aLin}, {S4(sWS)}, s{B} offen offset:3072 sc1 lds
    s_add_u32 m0, s{sL}, 4096
    s_add_u32 s{B}, s{sV}, 1024
    buffer_load_dwordx4 v{aLin}, {S4(sWS)}, s{B} offen sc1 lds
    s_mov_b64 exec, s[{sLO}:{sLO+1}]
    buffer_load_dwordx4 v{aLin}, {S4(sWS)}, s{B} offen offset:1024 sc1 lds
    s_mov_b64 exec, -1""")
def kv_addr(aLin,aTl,t):
    p(f"""v_lshlrev_b32 v{aLin}, 4, v0
    v_lshrrev_b32 v{t}, 5, v0
    v_mul_u32_u24 v{t}, {2560-512}, v{t}
    v_add3_u32 v{aTl}, v{aLin}, v{t}, s{sK1024}""")
sK1024=sT+21

def halo_flag(vt,A,B,C):
    sk=p.lab("nohalo")
    p(f"""s_lshl_b32 s{A}, s{sCT}, 1
    s_add_u32 s{A}, s{A}, s{HW}
    s_sub_u32 s{A}, s{A}, 2
    s_sub_u32 s{B}, s{A}, 5
    s_cmp_lt_u32 s{B}, 10
    s_cselect_b32 s{B}, s{sRB}, 0
    s_cmp_lt_u32 s{sRQ}, 3
    s_cselect_b32 s{B}, s{B}, 0
    s_cmp_lt_u32 s{B}, 2
    s_cbranch_scc1 {sk}
    s_lshl_b32 s{C}, s{sG}, 4
    s_add_u32 s{A}, s{A}, s{C}
    s_lshl_b32 s{A}, s{A}, 2
    s_add_u32 s{A}, s{A}, s{B}
    s_lshl_b32 s{A}, s{A}, 8
    s_add_u32 s{A}, s{A}, {FH}
    s_lshl_b32 s{B}, s{HW}, 2
    s_add_u32 s{B}, s{B}, {F_STG-8}
    v_mov_b32 v{vt}, s{B}
    v_lshlrev_b32 v{vt+2}, 7, v0
    v_mov_b32 v{vt+3}, s{sTAG}""")
    lds_wait(vt,vt+1,C,'gt',2,0)
    p(f"""s_mov_b64 exec, 3
    buffer_store_dword v{vt+3}, v{vt+2}, {S4(sWS)}, s{A} offen sc1
    s_mov_b64 exec, -1""")
    STAMP('halo')
    p(f"{sk}:")
def helperA(steps):
    A=sT+7; B=sT+8; vt=10
    def hook(c):
        if c==CFG['pt']:
            qkv_touch(); OPS.extend(['pt']*wtouch('w1',0))
    steps(hook)
    for c in (8,9):
        vmwait(c); p("s_barrier"); STAMP('ld%d'%c)
        if c==9: STAMP('hb9')
        hook(c)
    stats_fin(vt,B)
    p("s_barrier\ns_waitcnt lgkmcnt(0)\ns_barrier")
    STAMP('hE1')
    att_ids()
    aLin=6; aTl=7; aF=8; D=40
    p(f"s_mov_b32 s{sK1024}, 1024")
    kv_addr(aLin,aTl,vt)
    flag_addr(aF,vt,0,A,B,sT+17)
    p(f"v_mov_b32 v{vt+1}, 1")
    sF=sT+9; sK=sT+10; sV=sT+11; sL=sT+16; C=sT+17
    dn=p.lab("g2done")
    p(f"""s_cmp_eq_u32 s{sT0}, 0
    s_cbranch_scc1 {dn}
    v_and_b32 v{vt+2}, 127, v{aF}
    v_sub_u32 v{vt+3}, v{aF}, v{vt+2}
    v_lshlrev_b32 v{vt+3}, 3, v{vt+3}
    v_lshl_add_u32 v{vt+2}, v{vt+2}, 5, v{vt+3}
    s_cmp_eq_u32 s{sHF}, 0
    s_cselect_b64 vcc, -1, 0
    s_cselect_b32 s{A}, {FH-2*16384+512-FL}, 0
    s_cselect_b32 s{B}, {KH-KB}, 0
    s_cselect_b32 s{sF}, 14, 11
    v_cndmask_b32 v{aF}, v{aF}, v{vt+2}, vcc
    s_lshl_b32 s{sF}, s{sG}, s{sF}
    s_add_u32 s{sF}, s{sF}, s{A}
    s_add_u32 s{sF}, s{sF}, {FL}
    s_lshl_b32 s{A}, s{HW}, 2
    s_sub_u32 s{A}, s{sT0}, s{A}
    s_sub_u32 s{A}, s{A}, 2
    s_mul_i32 s{sK}, s{A}, 2560
    s_mul_i32 s{sV}, s{A}, 1280
    s_mul_i32 s{A}, s{sPH}, {64*2560}
    s_add_u32 s{sK}, s{sK}, s{A}
    s_add_u32 s{sK}, s{sK}, s{B}
    s_add_u32 s{sK}, s{sK}, {KB}
    s_mul_i32 s{A}, s{sHD}, 81920
    s_add_u32 s{sV}, s{sV}, s{A}
    s_add_u32 s{sV}, s{sV}, s{B}
    s_add_u32 s{sV}, s{sV}, {VB}
    s_mul_i32 s{sL}, s{HW}, {-2*5632}
    s_add_u32 s{sL}, s{sL}, {L_KV+3*5632}""")
    if CFG['hpoll']: flag_poll2(aF,vt+5,sF,C,CFG['hpoll'],CFG['hsl'])
    else: flag_poll(aF,vt+5,sF,C,sleep=CFG['hsl'])
    STAMP('hf')
    kv_dma(aLin,aTl,sK,sV,sL,A,B)
    p(f"""s_sub_u32 s{sK}, s{sK}, 5120
    s_sub_u32 s{sV}, s{sV}, 2560
    s_sub_u32 s{sL}, s{sL}, 5632""")
    kv_dma(aLin,aTl,sK,sV,sL,A,B)
    p(f"""s_waitcnt vmcnt(0)
    {dn}:
    v_mov_b32 v{vt}, {F_G2}
    s_mov_b64 exec, 1
    ds_add_u32 v{vt}, v{vt+1}
    s_mov_b64 exec, -1""")
    STAMP('g2')
    if 'w3' in (CFG['wtw'],CFG['mtw']):
        p(f"v_mov_b32 v{vt}, {F_G1}")
        lds_wait(vt,vt+5,C,'gt',4,1)
        wtouch('w3',0)
        if CFG['dw3']: touch(vTD,sWD,CFG['mpair'])
        STAMP('mt')
        if CFG['prof'] and any('mt2' in x for x in CFG['st']): p("s_waitcnt vmcnt(0)"); STAMP('mt2')

def tr_addr(a0,t):
    tab=[[0,8],[4,12],[16,36],[20,28],[24,32]]
    pk=[sum((tab[u][rd]//4)<<(4*u) for u in range(5)) for rd in range(2)]
    A=sT+7; B=sT+8
    p(f"""s_mov_b32 s{A}, {pk[0]}
    s_mov_b32 s{B}, {pk[1]}
    v_bfe_u32 v{t}, v0, 2, 2
    v_mul_u32_u24 v{t}, 160, v{t}
    v_and_b32 v{t+1}, 3, v0
    v_mad_u32_u24 v{t}, v{t+1}, 40, v{t}
    v_lshrrev_b32 v{t+1}, 4, v0""")
    for s_ in range(5):
        p(f"""v_add_u32 v{t+2}, {4*s_}, v{t+1}
        v_mul_u32_u24 v{t+4}, 52, v{t+2}
        v_lshrrev_b32 v{t+4}, 8, v{t+4}
        v_mul_u32_u24 v{t+5}, 5, v{t+4}
        v_sub_u32 v{t+2}, v{t+2}, v{t+5}
        v_lshlrev_b32 v{t+2}, 2, v{t+2}
        v_mul_u32_u24 v{t+4}, 10, v{t+4}""")
        for rd in range(2):
            p(f"""v_bfe_u32 v{t+3}, s{(A,B)[rd]}, v{t+2}, 4
            v_add_u32 v{t+3}, v{t+3}, v{t+4}
            v_mul_u32_u24 v{t+3}, 640, v{t+3}
            v_add_u32 v{a0+2*s_+rd}, v{t+3}, v{t}""")
sBLK,sJ=sT+9,sT+10
def wo_ids():
    p(f"""s_lshr_b32 s{sBLK}, s{sSLOT}, 3
    s_lshl_b32 s{sJ}, s{sG}, 2
    s_add_u32 s{sBLK}, s{sBLK}, s{sJ}
    s_and_b32 s{sJ}, s{sSLOT}, 7""")
def clr_ids(A,B,C,D_):
    p(f"""s_lshr_b32 s{C}, s{sSLOT}, 3
    s_lshl_b32 s{B}, s{sG}, 2
    s_add_u32 s{C}, s{C}, s{B}
    s_lshl_b32 s{C}, s{C}, 3
    s_and_b32 s{B}, s{sSLOT}, 7
    s_add_u32 s{D_}, s{C}, s{B}
    s_lshr_b32 s{A}, s{D_}, 1
    s_mul_i32 s{A}, s{A}, 20480
    s_and_b32 s{B}, s{B}, 1
    s_mul_i32 s{B}, s{B}, 5120
    s_add_u32 s{A}, s{A}, s{B}
    s_add_u32 s{A}, s{A}, {OB}
    s_mul_i32 s{B}, s{sHH}, 10240
    s_add_u32 s{C}, s{A}, 10240
    s_add_u32 s{A}, s{A}, s{B}
    s_sub_u32 s{C}, s{C}, s{B}
    s_lshl_b32 s{D_}, s{D_}, 10
    s_add_u32 s{D_}, s{D_}, {PS}""")
def clears(part):
    A=sT+13; B=sT+14; C=sT+15; D_=sT+16; D=8; aL=7
    if part==0:
        clr_ids(A,B,C,D_)
        p(f"v_lshlrev_b32 v{aL}, 4, v0")
        for r in range(4): p(f"v_mov_b32 v{D+r}, -1")
        return
    st4=lambda so,off,sc: f"buffer_store_dwordx4 v[{D}:{D+3}], v{aL}, {S4(sWS)}, s{so} offen offset:{off} {sc}"
    w2=p.lab("clw2"); w3=p.lab("clw3"); dn=p.lab("cldn")
    p(f"""s_cmp_ge_u32 s{sWAVE}, 2
    s_cbranch_scc1 {w2}
    s_mul_i32 s{B}, s{sWAVE}, 2560
    s_add_u32 s{A}, s{A}, s{B}""")
    for o in (0,1024,1536): p(st4(A,o,""))
    p(f"""s_branch {dn}
    {w2}:
    s_cmp_eq_u32 s{sWAVE}, 3
    s_cbranch_scc1 {w3}
    s_mul_i32 s{C}, s2, 2560
    s_add_u32 s{C}, s{C}, {CAND}""")
    for o in (0,1024,1536): p(st4(C,o,"sc1"))
    p(f"""s_branch {dn}
    {w3}:
    s_cmp_ge_u32 s2, 24
    s_cbranch_scc1 {dn}
    s_lshl_b32 s{C}, s2, 10
    s_add_u32 s{C}, s{C}, {ACT}""")
    p(st4(C,0,"sc1"))
    p(f"{dn}:")
def code_pf():
    A=sT+18
    p(f"""s_getpc_b64 s[{A}:{A+1}]
    L_pc:
    s_sub_u32 s{A}, s{A}, L_pc-{NAME}_kernel
    s_subb_u32 s{A+1}, s{A+1}, 0
    s_lshl_b32 s{A+2}, s{sSLOT}, 2
    s_add_u32 s{A+2}, s{A+2}, s{sWAVE}
    s_mul_i32 s{A+2}, s{A+2}, 384
    s_min_u32 s{A+2}, s{A+2}, (L_exit-{NAME}_kernel-384)&0xffffff80""")
    for i in range(3): p(f"s_load_dwordx2 s[100:101], s[{A}:{A+1}], s{A+2} offset:{i*128+60}")
def wave_sum(x,t):
    dp="row_mask:0xf bank_mask:0xf"
    for c in ("quad_perm:[1,0,3,2]","quad_perm:[2,3,0,1]","row_half_mirror","row_mirror"):
        p(f"s_nop 1\nv_add_f32_dpp v{x}, v{x}, v{x} {c} {dp}")
    for sw in (16,32):
        p(f"""v_mov_b32 v{t}, v{x}
        s_nop 1
        v_permlane{sw}_swap_b32 v{x}, v{t}
        s_nop 0
        v_add_f32 v{x}, v{x}, v{t}""")
sPF=sT+16
def pf_group(n=5):
    for i in range(n): p(f"s_load_dwordx2 s[100:101], s[{sWO}:{sWO+1}], s{sPF} offset:{i*128+60}")
    p(f"""s_add_u32 s{sPF}, s{sPF}, {n*128}
    s_sub_u32 s{sPF+2}, s{sPF+2}, 1
    s_add_u32 s{sPF+3}, s{sPF+1}, 12800
    s_cmp_eq_u32 s{sPF}, s{sPF+3}
    s_cselect_b32 s{sPF}, s{sPF+1}, s{sPF}""")
def helperB(steps):
    A=sT+7; B=sT+8; vt=2; aD=140; aT=146; aLin=12; D=40; WRr=32
    sO=sT+1; sL=sT+2; sL0=sT+3; sL1=sT+4; C=sT+5
    p("L_helperB:")
    vM=23; x=10; a=sT+16
    clr_ids(a,a+1,a+2,a+3)
    p(f"""s_mul_i32 s{a+1}, s{HW}, 25
    s_sub_u32 s{a+1}, s{a+1}, 50
    v_min_u32 v{x}, 24, v0
    v_add_u32 v{x}, s{a+1}, v{x}
    v_min_u32 v{x}, 48, v{x}
    s_sub_u32 s{a+3}, s{a+3}, {40*128}
    s_and_b32 s{a+1}, s{sSLOT}, 15
    s_lshl_b32 s{a+2}, s{sG}, 4
    s_add_u32 s{a+1}, s{a+1}, s{a+2}
    s_lshl_b32 s{a+1}, s{a+1}, 7
    s_add_u32 s{a+1}, s{a+1}, {FL-48*128}
    v_mov_b32 v{x+1}, s{a}
    v_mov_b32 v{x+2}, s{a+3}
    v_cmp_le_u32 vcc, 40, v{x}
    v_mov_b32 v{x+3}, s{a+1}
    s_mul_i32 s{a+1}, s{sSLOT}, {200*128}
    v_cndmask_b32 v{x+1}, v{x+1}, v{x+2}, vcc
    v_cmp_le_u32 vcc, 48, v{x}
    s_mul_i32 s{a}, s{HW}, {100*128}
    s_add_u32 s{a+1}, s{a+1}, s{a}
    v_cndmask_b32 v{x+1}, v{x+1}, v{x+3}, vcc
    v_lshl_add_u32 v{vM}, v{x}, 7, v{x+1}
    s_sub_u32 s{sPF+1}, s{a+1}, {200*128}
    s_mul_i32 s{sPF}, s{sG}, 5
    s_lshr_b32 s{sPF}, s{sPF}, 1
    s_mul_i32 s{sPF}, s{sPF}, 640
    s_add_u32 s{sPF}, s{sPF}, s{sPF+1}
    s_mov_b32 s{sPF+2}, 20
    v_lshlrev_b32 v{vH+4}, 4, v0
    v_add_u32 v{vH+4}, {H1}, v{vH+4}
    v_mul_u32_u24 v{WRr+5}, 20, v0""")
    aB=130; sK=sT+11; sN=sT+16; sS=sT+17
    def wo_setup():
        va=96
        wo_ids()
        T=[[0,2],[1,3],[4,9],[5,7],[6,8]]
        NIB=[sum((10*((4*s5+g_)//5)+T[(4*s5+g_)%5][rd]-(8*s5+2*g_-2))<<(4*(4*rd+g_)) for rd in range(2) for g_ in range(4)) for s5 in range(5)]
        for i in range(5):
            p(f"""v_add_u32 v{va}, {64*i}, v0
            v_mul_u32_u24 v{va+1}, 6554, v{va}
            v_lshrrev_b32 v{va+1}, 16, v{va+1}
            v_mul_u32_u24 v{va+2}, 10, v{va+1}
            v_sub_u32 v{va}, v{va}, v{va+2}
            v_and_b32 v{aB+5+i}, 28, v{va+1}
            v_and_b32 v{va+2}, 3, v{va+1}
            v_mul_u32_u24 v{va+2}, 1280, v{va+2}
            v_lshl_add_u32 v{va}, v{va}, 4, v{va+2}
            v_bfe_u32 v{va+1}, v{va+1}, 2, 2
            v_mul_u32_u24 v{va+1}, 10240, v{va+1}
            v_add_u32 v{aB+i}, v{va}, v{va+1}""")
            if 0<i<4: p(f"v_subrev_u32 v{aB+i}, {i*1024}, v{aB+i}")
        p(f"""s_lshr_b32 s{A}, s{sSLOT}, 3
        s_mul_i32 s{A}, s{A}, 5
        s_lshr_b32 s{A}, s{A}, 1
        s_add_u32 s{A}, s{A}, s{HW}
        s_sub_u32 s{sK}, s{A}, 2
        v_mov_b32 v{va}, 5120""")
        def woaddr(n):
            p(f"""s_add_u32 s{A}, s{sK}, {2*n}
            s_sub_u32 s{B}, s{A}, 10
            s_cselect_b32 s{A}, s{A}, s{B}
            s_sub_u32 s{B}, s{A}, 5
            s_cselect_b32 s{B}, s{A}, s{B}
            s_mul_i32 s{sS}, s{A}, 40960
            s_sub_u32 s{sS}, s{sS}, 10240
            s_mov_b32 s{sN}, {hex(NIB[0])}""")
            for k in range(1,5): p(f"s_cmp_eq_u32 s{B}, {k}\ns_cselect_b32 s{sN}, {hex(NIB[k])}, s{sN}")
            for i in range(5):
                p(f"""v_bfe_u32 v{va+1}, s{sN}, v{aB+5+i}, 4
                v_mad_u32_u24 v{va+1}, v{va+1}, v{va}, v{aB+i}
                v_add_u32 v{aD+5*n+i}, s{sS}, v{va+1}""")
        for n in range(5): woaddr(n)
    if CFG['wose']==0: wo_setup()
    npf=CFG['npf']
    for _ in range(npf[0]): pf_group()
    def hook(c):
        if c==100:
            p(f"buffer_load_dwordx4 v[{vH}:{vH+3}], v{vH+4}, {S4(sWS)}, 0 offen sc1"); OPS.append('h1')
            p(f"buffer_load_dwordx4 {vr(WRr,4)}, v{WRr+5}, {S4(sWR)}, 0 offen\nbuffer_load_dword v{WRr+4}, v{WRr+5}, {S4(sWR)}, 0 offen offset:16"); OPS.extend(['wr','wr'])
        if c==CFG['pt']:
            qkv_touch()
            OPS.extend(['pt']*wtouch('w1',1))
        if c==CFG['pt2']: OPS.extend(['pt']*touch(vM,sWS,CFG['qpair2'],CFG['tpol']))
    steps(hook)
    st=dict(n=0)
    def dma(cnt):
        for _ in range(min(cnt,50-st['n'])):
            n=st['n']; i=n%5; k=(n//5)%5
            if n==0 or n==25:
                p(f"""s_xor_b32 s{A}, s{sHH}, {n//25}
                s_mul_i32 s{sO}, s{A}, {320*1280}
                s_mul_i32 s{sL0}, s{A}, 51200
                s_add_u32 s{sL0}, s{sL0}, {L_WO}
                s_mul_i32 s{A}, s{sJ}, 160
                s_add_u32 s{sO}, s{sO}, s{A}""")
            if i==0: p(f"""s_add_u32 s{A}, s{sK}, {2*k}
                s_sub_u32 s{B}, s{A}, 10
                s_cselect_b32 s{A}, s{A}, s{B}
                s_mul_i32 s{sL}, s{A}, 5120
                s_add_u32 s{sL}, s{sL}, s{sL0}
                s_mov_b32 m0, s{sL}
                s_nop 0""")
            if i==4: p(f"s_add_u32 m0, s{sL}, 4096\ns_nop 0")
            p(f"buffer_load_dwordx4 v{aD+5*k+i}, {S4(sWO)}, s{sO} offen offset:{(i&3)*1024} {CFG['wopol']} lds")
            OPS.append('wo%d'%(n//25))
            st['n']+=1
    vmwait(8); p("s_barrier"); hook(8)
    p(f"v_lshlrev_b32 v{aLin}, 4, v0")
    vmwait(9); p("s_barrier"); hook(9)
    stats_fin(96,B)
    vmwait('h1')
    lp=p.lab("hello"); ok=p.lab("hello_ok"); ne=p.lab("noep")
    p(f"""s_mov_b32 s{A}, {SPIN}
    {lp}:
    v_xor_b32 v{vH}, s{sTAG}, v{vH}
    v_xor_b32 v{vH+1}, s{sTAG}, v{vH+1}
    v_xor_b32 v{vH+2}, s{sTAG}, v{vH+2}
    v_xor_b32 v{vH+3}, s{sTAG}, v{vH+3}
    v_or3_b32 v{vt}, v{vH}, v{vH+1}, v{vH+2}
    v_or_b32 v{vt}, v{vt}, v{vH+3}
    v_cmp_lt_u32 vcc, 15, v{vt}
    s_nop 0
    s_cbranch_vccz {ok}""")
    spin(A,lp,ok,4)
    p(f"""buffer_load_dwordx4 v[{vH}:{vH+3}], v{vH+4}, {S4(sWS)}, 0 offen sc1
    s_waitcnt vmcnt(0)
    s_branch {lp}
    {ok}:
    v_lshl_or_b32 v{vH}, v{vH+1}, 4, v{vH}
    v_lshl_or_b32 v{vH+2}, v{vH+3}, 4, v{vH+2}
    v_lshl_or_b32 v{vH}, v{vH+2}, 8, v{vH}
    v_and_b32 v{vt}, 1, v0
    v_readlane_b32 s{A}, v{vH}, 0
    v_readlane_b32 s{B}, v{vH}, 1
    v_cmp_eq_u32 vcc, 0, v{vt}
    v_mov_b32 v{vt+1}, s{A}
    v_mov_b32 v{vt+2}, s{B}
    v_cndmask_b32 v{vt+1}, v{vt+2}, v{vt+1}, vcc
    v_cmp_ne_u32 vcc, v{vt+1}, v{vH}
    v_mov_b32 v{vt}, {L_MODE}
    s_cmp_lg_u64 vcc, 0
    s_cselect_b32 s{sMODE}, 1, {CFG['force_slow']}
    v_mov_b32 v{vt+1}, s{sMODE}
    ds_write_b32 v{vt}, v{vt+1}
    s_barrier
    s_waitcnt lgkmcnt(0)
    s_barrier""")
    vmw=len(OPS)-1-max(i for i,t in enumerate(OPS) if t=='wr')
    STAMP('hE1')
    p(f"""v_mov_b32 v{vt}, 0x3f803f80
    v_mov_b32 v{vt+1}, 0
    s_waitcnt vmcnt({vmw})""")
    for k in range(5): p(f"v_dot2_f32_bf16 v{vt+1}, v{WRr+k}, v{vt}, v{vt+1}")
    p("s_nop 0")
    wave_sum(vt+1,vt+2)
    p(f"v_mov_b32 v{vt}, {L_SWS}\nds_write_b32 v{vt}, v{vt+1}")
    if CFG['wose']==1: wo_setup()
    halo_flag(vt,A,B,C)
    if CFG['wose']==2: wo_setup()
    p(f"""s_add_u32 s{A}, s2, s{HW}
    s_cmp_lg_u32 s{A}, 2
    s_cbranch_scc1 {ne}
    s_add_u32 s{A}, s{sEP}, 1
    v_mov_b32 v{vt}, {EPO}
    v_mov_b32 v{vt+1}, s{A}
    s_mov_b64 exec, 1
    buffer_store_dword v{vt+1}, v{vt}, {S4(sWS)}, 0 offen sc1
    s_mov_b64 exec, -1
    {ne}:""")
    p(f"v_mov_b32 v{vt}, {F_G1}")
    lds_wait(vt,vt+1,A,'gt',4,1)
    wtouch('w3',1)
    if CFG['wog2']:
        p(f"v_mov_b32 v{vt+2}, {F_G2}")
        lds_wait(vt+2,vt+1,A,'gt',2,1)
    STAMP('wo_s')
    del OPS[:]
    thr=CFG['wothr']; gs=CFG['wogs']; thr1=CFG['wothr1']
    def more(n,dyn=False):
        while n>0 and st['n']<50:
            k=min(gs,n)
            if dyn and thr1<thr and st['n']>=thr1:
                sk=p.lab("wog")
                p(f"""ds_read_b32 v{vt+1}, v{vt} offset:{F_G2-F_G1}
                s_waitcnt lgkmcnt(0)
                v_cmp_gt_u32 vcc, 2, v{vt+1}
                s_nop 0
                s_cbranch_vccz {sk}
                s_waitcnt vmcnt({max(0,thr1-k)})
                {sk}:""")
            if st['n']>=thr: p(f"s_waitcnt vmcnt({max(0,thr-k)})")
            dma(k); n-=k
    def sig(f):
        p(f"""v_mov_b32 v{vt+2}, {f}
        v_mov_b32 v{vt+3}, 1
        s_mov_b64 exec, 1
        ds_add_u32 v{vt+2}, v{vt+3}
        s_mov_b64 exec, -1""")
    more(25+min(thr,15),True)
    vmwait('wo0')
    sig(F_WOR)
    STAMP('wo_0')
    more(50)
    sig(F_WOD)
    STAMP('wo_1')
    p("s_waitcnt vmcnt(0)")
    sig(F_WO2)
    STAMP('wo')

ACC=64; CS=128; XF=132; WF=148; SEL=164; aX=168; aW=172; aST=174; aSG=178; vT=2
sWR_,sWC,sLC,sTY,sSO,sHALO,sFO,sSO2=range(sT,sT+8)
def gemm_setup():
    t=vT; A=sT+10; B=sT+11
    wave_ids(sWAVE,sWR_,sWC,sLC,sTY)
    p(f"""v_and_b32 v{t}, 31, v0
    s_lshl_b32 s{A}, s{sWR_}, 6
    v_add_u32 v{t+1}, s{A}, v{t}
    v_lshlrev_b32 v{t+1}, 7, v{t+1}
    v_lshrrev_b32 v{t+2}, 5, v0
    v_bfe_u32 v{t+3}, v0, 1, 3
    v_xor_b32 v{t+3}, v{t+3}, v{t+2}
    v_lshl_add_u32 v{aX}, v{t+3}, 4, v{t+1}""")
    for s in range(1,4): p(f"v_xor_b32 v{aX+s}, {32*s}, v{aX}")
    p(f"""v_bfe_u32 v{t+3}, v0, 2, 2
    v_lshl_add_u32 v{t+4}, v{t+2}, 3, v{t+3}
    v_lshlrev_b32 v{t+4}, 8, v{t+4}
    s_lshl_b32 s{A}, s{sWC}, 1
    s_or_b32 s{A}, s{A}, s{sWR_}
    v_xor_b32 v{t+3}, s{A}, v{t+3}
    v_lshl_add_u32 v{t+4}, v{t+3}, 6, v{t+4}
    v_bfe_u32 v{t+3}, v0, 4, 1
    v_lshl_add_u32 v{t+4}, v{t+3}, 5, v{t+4}
    v_and_b32 v{t+5}, 3, v0
    v_lshl_add_u32 v{t+4}, v{t+5}, 3, v{t+4}
    v_add_u32 v{aW}, 16384, v{t+4}
    v_xor_b32 v{aW+1}, 64, v{aW}
    v_bfe_u32 v{t+4}, v0, 2, 1
    v_cmp_eq_u32 vcc, v{t+3}, v{t+4}
    v_mov_b32 v{t+5}, 0x3f803f80
    s_nop 0
    v_cndmask_b32 v{SEL}, 0, v{t+5}, vcc
    v_cndmask_b32 v{SEL+1}, 0, v{t+5}, vcc
    v_cndmask_b32 v{SEL+2}, 0, v{t+5}, vcc
    v_cndmask_b32 v{SEL+3}, 0, v{t+5}, vcc""")
    for r in list(range(ACC,ACC+64))+list(range(CS,CS+4)): p(f"v_mov_b32 v{r}, 0")
    store_addr(sWR_,sLC,sTY,sSO,sSO2,sHALO,sFO,aST,sT+10,sT+11)
    p(f"s_mov_b32 s{sHAL2}, s{sHALO}")
sHAL2=sDBG
def wave_ids(wave,wr,wc,lc,ty):
    p(f"""s_and_b32 s{wr}, s{wave}, 1
    s_lshr_b32 s{wc}, s{wave}, 1
    s_lshl_b32 s{lc}, s{sCT}, 1
    s_add_u32 s{lc}, s{lc}, s{wc}
    s_mul_i32 s{ty}, s{lc}, 52
    s_lshr_b32 s{ty}, s{ty}, 8""")
def store_addr(wr,lc,ty,so,so2,halo,fo,ast,A,B,t=2):
    p(f"""v_and_b32 v{t}, 31, v0
    v_lshrrev_b32 v{t+2}, 5, v0
    s_mul_i32 s{A}, s{ty}, 5
    s_sub_u32 s{A}, s{lc}, s{A}
    s_mul_i32 s{B}, s{sHH}, 5
    s_add_u32 s{A}, s{A}, s{B}
    s_lshl_b32 s{B}, s{sRQ}, 2
    s_add_u32 s{B}, s{B}, s{sRB}
    s_lshl_b32 s{B}, s{B}, 1
    s_add_u32 s{B}, s{B}, s{wr}
    s_lshl_b32 s{B}, s{B}, 1""")
    isv=p.lab("isv"); jn=p.lab("stj")
    p(f"""s_cmp_ge_u32 s{ty}, 2
    s_cbranch_scc1 {isv}
    s_mul_i32 s{so}, s{B}, 2560
    s_mul_i32 s{B}, s{ty}, {KB}
    s_add_u32 s{so}, s{so}, s{B}
    s_add_u32 s{so2}, s{so}, 2560
    s_lshl_b32 s{A}, s{A}, 3""")
    for cb in range(2):
        for ip in range(2):
            p(f"""s_xor_b32 s{B}, s{wr}, {cb}
            s_lshl_b32 s{B}, s{B}, 2
            s_add_u32 s{B}, s{B}, s{A}
            s_add_u32 s{B}, s{B}, {2*ip}
            v_add_u32 v{t+3}, s{B}, v{t+2}
            v_mul_u32_u24 v{t+4}, 205, v{t+3}
            v_lshrrev_b32 v{t+4}, 10, v{t+4}
            v_mul_u32_u24 v{t+5}, 5, v{t+4}
            v_sub_u32 v{t+5}, v{t+3}, v{t+5}
            v_mul_u32_u24 v{t+4}, {64*2560}, v{t+4}
            v_lshl_add_u32 v{t+4}, v{t+5}, 9, v{t+4}
            v_lshl_add_u32 v{ast+2*cb+ip}, v{t}, 4, v{t+4}""")
    p(f"""s_branch {jn}
    {isv}:
    s_mul_i32 s{so}, s{B}, 1280
    s_add_u32 s{so}, s{so}, {VB}
    s_add_u32 s{so2}, s{so}, 1280
    s_lshl_b32 s{A}, s{A}, 6""")
    for cb in range(2):
        p(f"""s_xor_b32 s{B}, s{wr}, {cb}
        s_lshl_b32 s{B}, s{B}, 5
        s_add_u32 s{B}, s{B}, s{A}
        v_add_u32 v{t+3}, s{B}, v{t}
        v_mul_u32_u24 v{t+4}, 3277, v{t+3}
        v_lshrrev_b32 v{t+4}, 16, v{t+4}
        v_mul_u32_u24 v{t+5}, 20, v{t+4}
        v_sub_u32 v{t+5}, v{t+3}, v{t+5}
        v_mul_u32_u24 v{t+4}, 81920, v{t+4}
        v_lshl_add_u32 v{t+4}, v{t+5}, 4, v{t+4}
        v_mul_u32_u24 v{t+5}, 320, v{t+2}
        v_add_u32 v{ast+2*cb}, v{t+4}, v{t+5}
        v_add_u32 v{ast+2*cb+1}, 640, v{ast+2*cb}""")
    p(f"""{jn}:
    s_sub_u32 s{A}, s{ty}, 1
    s_cmp_lt_u32 s{A}, 2
    s_cselect_b32 s{halo}, 1, 0
    s_cmp_ge_u32 s{sRB}, 2
    s_cselect_b32 s{halo}, s{halo}, 0
    s_cmp_lt_u32 s{sRQ}, 3
    s_cselect_b32 s{halo}, s{halo}, 0
    s_lshl_b32 s{fo}, s{sG}, 4
    s_add_u32 s{fo}, s{fo}, s{lc}
    s_lshl_b32 s{fo}, s{fo}, 5
    s_lshl_b32 s{A}, s{sRB}, 1
    s_add_u32 s{A}, s{A}, s{wr}
    s_add_u32 s{fo}, s{fo}, s{A}
    s_lshl_b32 s{fo}, s{fo}, 2
    s_add_u32 s{fo}, s{fo}, {FL}""")
def xf(buf,xb): return XF+8*buf+4*xb
def wf(buf,cb): return WF+8*buf+4*cb
def reads(kind,buf,par,s):
    L=[]
    for xb in range(2): L.append(f"ds_read_b128 {vr(xf(buf,xb),4)}, v{aX+s} offset:{par*32768+xb*4096}")
    if kind!='S':
        for cb in range(2):
            for rd in range(2): L.append(f"ds_read_b64_tr_b16 {vr(wf(buf,cb)+2*rd,2)}, v{aW+cb} offset:{par*32768+s*4096+rd*1024}")
        L=[L[2],L[3],L[0],L[1],L[4],L[5]]
    return L
def mfmas(kind,buf):
    L=[]
    if kind=='S':
        for xb in range(2):
            x=xf(buf,xb)
            L.append(f"v_mfma_f32_16x16x32_bf16 {vr(ACC+4*xb,4)}, {vr(SEL,4)}, {vr(x,4)}, {vr(ACC+4*xb,4)}")
            L.append(f"v_mfma_f32_4x4x4_16b_bf16 {vr(ACC+8+8*xb,4)}, {vr(x,2)}, {vr(x,2)}, {vr(ACC+8+8*xb,4)}")
            L.append(f"v_mfma_f32_4x4x4_16b_bf16 {vr(ACC+12+8*xb,4)}, {vr(x+2,2)}, {vr(x+2,2)}, {vr(ACC+12+8*xb,4)}")
        return L
    for cb in range(2):
        for xb in range(2):
            a=ACC+16*(2*xb+cb); X=vr(xf(buf,xb),4); W=vr(wf(buf,cb),4)
            L.append(f"v_mfma_f32_32x32x16_bf16 {vr(a,16)}, {W if kind=='T' else X}, {X if kind=='T' else W}, {vr(a,16)}")
    L.insert(2,f"v_mfma_f32_16x16x32_bf16 {vr(CS,4)}, {vr(SEL,4)}, {vr(wf(buf,0),4)}, {vr(CS,4)}")
    return L
def gemm_loop(kind):
    CNT=sT+10
    lp=p.lab("g"+kind)
    STAMP('rdy')
    p("s_barrier")
    STAMP('b0')
    for r in reads(kind,0,0,0): p(r)
    if CFG['clr']==1: clears(1)
    hl=p.lab("hello"); hr=p.lab("hellor")
    if kind!='S':
        COLD.append(f"""{hl}:
        s_getreg_b32 s{CNT+1}, hwreg(HW_REG_XCC_ID, 0, 4)
        s_or_b32 s{CNT+1}, s{CNT+1}, s{sTAG}
        v_mov_b32 v{vT}, s{CNT+1}
        s_lshl_b32 s{CNT+1}, s2, 2
        s_add_u32 s{CNT+1}, s{CNT+1}, {H1}
        v_mov_b32 v{vT+1}, 0
        s_mov_b64 exec, 1
        buffer_store_dword v{vT}, v{vT+1}, {S4(sWS)}, s{CNT+1} offen sc1
        s_mov_b64 exec, -1
        s_branch {hr}""")
        p(f"s_lshl_b32 s{CNT+2}, s{sWAVE}, 3\ns_add_u32 s{CNT+2}, s{CNT+2}, {5-CFG['clr']}")
    p(f"s_mov_b32 s{CNT}, 5\n{lp}:")
    for k in range(1,5):
        if (CFG['cal'] and CFG['cal'][0]=='it%d'%(2*k)) or (CFG['amp'] and 'it%d'%(2*k) in CFG['amp'][:2]) or (CFG['prof'] and any('it%d'%(2*k) in n.split('|') for n in CFG['st'])):
            sk=p.lab("its"); p(f"s_cmp_lg_u32 s{CNT}, {5-k}\ns_cbranch_scc1 {sk}"); STAMP('it%d'%(2*k)); p(f"{sk}:")
    for par in range(2):
        for s in range(4):
            buf=s&1
            last=(s==3)
            M=mfmas(kind,buf)
            if CFG['nomfma']: M=M[:1]
            if last and par==1:
                pre=[f"v_xor_b32 v{aX+i}, 0x10000, v{aX+i}" for i in range(4)]+[f"v_xor_b32 v{aW+i}, 0x10000, v{aW+i}" for i in range(2)]
            else: pre=[]
            R=reads(kind,buf^1,(par^1) if last else par,(s+1)&3)
            p("s_waitcnt lgkmcnt(0)")
            if last:
                p(M.pop(0))
                for x in pre: p(x)
                if par==0:
                    w1=p.lab("cw"); w2=p.lab("cwr")
                    p(f"s_cmp_eq_u32 s{CNT}, {5-CFG['clr']}\ns_cbranch_scc1 {w1}\n{w2}:")
                    COLD.append(f"{w1}:\ns_waitcnt vmcnt(0)\ns_branch {w2}")
                p("s_barrier")
                if par==0 and kind!='S': p(f"s_cmp_eq_u32 s{CNT}, s{CNT+2}\ns_cbranch_scc1 {hl}\n{hr}:")
            k=0
            while M or R:
                if R: p(R.pop(0))
                if R: p(R.pop(0))
                if M: p(M.pop(0))
    p(f"""s_sub_u32 s{CNT}, s{CNT}, 1
    s_cmp_lg_u32 s{CNT}, 0
    s_cbranch_scc1 {lp}""")
    STAMP('gend')
def bf16r(dst,src):
    p(f"v_cvt_pk_bf16_f32 v{dst}, v{src}, v{src}\nv_and_b32 v{dst}, 0xffff0000, v{dst}")
def mode_read():
    p(f"""v_mov_b32 v{vT+8}, {L_MODE}
    ds_read_b32 v{vT+9}, v{vT+8}""")
def mode_get():
    p(f"v_readfirstlane_b32 s{sMODE}, v{vT+9}")
def dual(stores):
    sl=p.lab("slow"); jn=p.lab("jn")
    p(f"s_cmp_lg_u32 s{sMODE}, 0\ns_cbranch_scc1 {sl}")
    for s in stores: p(s)
    p(f"s_branch {jn}\n{sl}:")
    for s in stores: p(s+" sc1")
    p(f"{jn}:")
def idle_gemm():
    vt=10; aI=20; acc=28; one=32; D=64; A=sT+10
    p(f"""s_lshl_b32 s{A}, s{sWR_}, 13
    v_bfe_u32 v{vt}, v0, 1, 3
    v_lshlrev_b32 v{vt}, 4, v{vt}
    v_lshl_add_u32 v{vt}, v0, 7, v{vt}
    v_add_u32 v{aI}, s{A}, v{vt}
    v_mov_b32 v{one}, 0x3f803f80
    s_lshl_b32 s{A}, s{sG}, 2
    s_add_u32 s{A}, s{A}, s{sRB}
    s_lshl_b32 s{A}, s{A}, 14
    s_lshl_b32 s{A+1}, s{sWR_}, 10
    s_add_u32 s{A}, s{A}, s{A+1}
    s_add_u32 s{A}, s{A}, {STP+7*2048}
    v_lshlrev_b32 v{vt}, 4, v0""")
    for i in range(1,8): p(f"v_xor_b32 v{aI+i}, {16*i}, v{aI}")
    for i in range(4): p(f"v_mov_b32 v{acc+i}, 0")
    assert CFG['clr']==0
    for c in range(11):
        if c==1: p("s_waitcnt vmcnt(0)")
        p("s_barrier")
        if c<3:
            if c==2:
                for i in range(8): p(f"v_add_u32 v{aI+i}, 0x10000, v{aI+i}")
            for i in range(8): p(f"ds_read_b128 {vr(D+4*i,4)}, v{aI+i} offset:{(c&1)*32768}")
            for i in range(8):
                p(f"s_waitcnt lgkmcnt({7-i})")
                for j in range(4):
                    r=D+4*i+j
                    p(f"v_dot2_f32_bf16 v{acc+(j&1)}, v{r}, v{one}, v{acc+(j&1)}\nv_dot2_f32_bf16 v{acc+2+(j&1)}, v{r}, v{r}, v{acc+2+(j&1)}")
        if c==2: p(f"""s_nop 1
            v_add_f32 v{acc}, v{acc}, v{acc+1}
            v_add_f32 v{acc+1}, v{acc+2}, v{acc+3}
            v_mov_b32 v{acc+2}, s{sTAG}
            buffer_store_dwordx4 {vr(acc,4)}, v{vt}, {S4(sWS)}, s{A} offen sc1""")
    p("s_barrier")
    mode_read()
    p("s_waitcnt lgkmcnt(0)")
    mode_get()
def gemm_epi(kind):
    t=vT; A=sT+10
    AU=20
    WA=24
    XA=28
    RS=32
    p(f"""v_and_b32 v{t}, 31, v0
    s_lshl_b32 s{A}, s{sWC}, 1
    s_or_b32 s{A}, s{A}, s{sWR_}
    s_lshl_b32 s{A}, s{A}, 7
    s_add_u32 s{A}, s{A}, {L_CS}
    v_lshl_add_u32 v{t+1}, v{t}, 2, s{A}
    s_lshl_b32 s{A}, s{sWR_}, 9
    s_add_u32 s{A}, s{A}, {L_SA}
    v_lshl_add_u32 v{t+3}, v{t}, 3, s{A}
    ds_write_b32 v{t+1}, v{CS}
    v_xor_b32 v{t+2}, 128, v{t+1}
    v_mov_b32 v{WA+1}, 0
    v_mov_b32 v{WA+3}, 0
    v_mov_b32 v{XA+1}, 0
    v_mov_b32 v{XA+3}, 0""")
    if kind=='V':
        p(f"""v_lshrrev_b32 v{t+4}, 5, v0
        s_lshl_b32 s{A}, s{sWR_}, 8
        s_add_u32 s{A}, s{A}, {L_SR}
        v_lshl_add_u32 v{t+4}, v{t+4}, 4, s{A}""")
    p("s_waitcnt lgkmcnt(0)\ns_barrier")
    STAMP('E1',1)
    p(f"""ds_read_b32 v{CS+1}, v{t+2}
    ds_read_b64 v[{AU}:{AU+1}], v{t+3}
    ds_read_b64 v[{AU+2}:{AU+3}], v{t+3} offset:256""")
    mode_read()
    if kind=='V':
        for xb in range(2):
            for i in range(4): p(f"ds_read_b128 {vr(RS+16*xb+4*i,4)}, v{t+4} offset:{xb*128+i*32}")
    def split(cb):
        c=CS+cb
        p(f"""v_cndmask_b32 v{c}, 0, v{c}, s[{sLO}:{sLO+1}]
        v_cvt_pk_bf16_f32 v{t+5}, v{c}, v{c}
        v_and_b32 v{t+5}, 0xffff0000, v{t+5}
        v_sub_f32 v{t+6}, v{c}, v{t+5}
        v_cvt_pk_bf16_f32 v{WA+2*cb}, v{t+5}, v{t+6}""")
    split(0)
    p(f"s_waitcnt lgkmcnt({8 if kind=='V' else 0})")
    split(1)
    p(f"v_mov_b32 v{XA}, v{AU}\nv_mov_b32 v{XA+2}, v{AU+2}")
    mode_get()
    if kind=='T':
        p(f"""s_cmp_eq_u32 s{sTY}, 0
        s_cselect_b32 s{A}, {hex(f2u(20**-0.5*math.log2(math.e)))}, 1.0
        v_mul_f32 v{AU+1}, s{A}, v{AU+1}
        v_mul_f32 v{AU+3}, s{A}, v{AU+3}""")
    else: p("s_nop 0")
    for xb in range(2):
        for cb in range(2):
            a=ACC+16*(2*xb+cb); X=vr(XA+2*xb,2); W=vr(WA+2*cb,2)
            p(f"v_mfma_f32_32x32x8_bf16 {vr(a,16)}, {W if kind=='T' else X}, {X if kind=='T' else W}, {vr(a,16)}")
    p("s_waitcnt lgkmcnt(0)\ns_nop 7")
    allst=[]
    for xb in range(2):
        st=[]
        for cb in range(2):
            a=ACC+16*(2*xb+cb)
            for k in range(8):
                if kind=='T': p(f"v_pk_mul_f32 {vr(a+2*k,2)}, {vr(a+2*k,2)}, {vr(AU+2*xb,2)} op_sel:[0,1] op_sel_hi:[1,1]")
                else: p(f"v_pk_mul_f32 {vr(a+2*k,2)}, {vr(a+2*k,2)}, {vr(RS+16*xb+2*k,2)}")
            for k in range(8): p(f"v_cvt_pk_bf16_f32 v{a+k}, v{a+2*k}, v{a+2*k+1}")
            if kind=='T':
                p(f"""v_permlane32_swap_b32 v{a}, v{a+2}
                v_permlane32_swap_b32 v{a+1}, v{a+3}
                v_permlane32_swap_b32 v{a+4}, v{a+6}
                v_permlane32_swap_b32 v{a+5}, v{a+7}""")
            for h in range(2):
                st.append(f"buffer_store_dwordx4 {vr(a+4*h,4)}, v{aST+2*cb+h}, {S4(sWS)}, s{sSO2 if xb else sSO} offen")
                allst.append(a+4*h)
        dual(st)
    STAMP('st')
    nh=p.lab("nohalo"); jh=p.lab("jhalo")
    hst=[f"buffer_store_dwordx4 {vr(allst[i],4)}, v{aST+(i&3)}, {S4(sWS)}, s{A+(i>>2)} offen sc1" for i in range(8)]
    p(f"""v_mov_b32 v{t}, 0
    v_mov_b32 v{t+1}, s{sTAG}
    s_add_u32 s{A}, s{sSO}, {KH-KB}
    s_add_u32 s{A+1}, s{sSO2}, {KH-KB}""")
    if CFG['hearly']:
        p(f"s_cmp_eq_u32 s{sHALO}, 0\ns_cbranch_scc1 {nh}")
        for x in hst: p(x)
        p(f"s_waitcnt vmcnt(8)\ns_branch {jh}\n{nh}:\ns_waitcnt vmcnt(0)\n{jh}:")
    else: p("s_waitcnt vmcnt(0)")
    p("s_mov_b64 exec, 1")
    dual([f"buffer_store_dword v{t+1}, v{t}, {S4(sWS)}, s{sFO} offen"])
    p(f"s_mov_b64 exec, -1")
    if not CFG['hearly']:
        p(f"s_cmp_eq_u32 s{sHALO}, 0\ns_cbranch_scc1 {nh}")
        for x in hst: p(x)
        p(f"{nh}:")
    STAMP('fl')
import struct
def f2u(x): return struct.unpack("<I",struct.pack("<f",x))[0]

aLin,aTl,aKm,aKt,aV,aFl,aO,aQ0,aQ1=246,247,248,249,250,251,252,253,254
QM=[28,34]; QT=[32,38]; PP=40
KM=[48,62]; KT=[52,66]; VV=[[54,58],[68,72]]
SS=[80,96]; OO=[112,128]; CD=200; CF=230
cVM=8; sQ=[10,11]; sOm=[12,13]; sOt=[14,15]; cXO,cJ,cF,cK,cV,cL,cHO,cT0,cHX=range(16,25); sOSC=sT+15; sFB=sT+16; aWR=225
NINF="0xff800000"
def att_setup():
    t=vT; A=sT+7; B=sT+8; C=sT+17; sF=cF
    wo_pre1()
    att_ids()
    flag_addr(aFl,t,1,A,B,C)
    p(f"""s_lshl_b32 s{sF}, s{sG}, 11
    s_lshl_b32 s{A}, s{sHF}, 4
    s_add_u32 s{sF}, s{sF}, s{A}
    s_add_u32 s{sF}, s{sF}, {FL}
    v_mov_b32 v{aCLS}, 0x207
    s_mov_b32 s{sK1024}, 1024""")
    kv_addr(aLin,aTl,t)
    p(f"""v_add_u32 v{aKm}, {L_KV}, v{aLin}
    v_and_b32 v{t}, 31, v0
    v_lshrrev_b32 v{t+1}, 5, v0
    v_xor_b32 v{t+2}, s{sHO}, v{t+1}
    v_lshlrev_b32 v{t+2}, 3, v{t+2}
    v_lshl_add_u32 v{t+2}, v{t}, 4, v{t+2}
    v_add_u32 v{aKt}, {L_KV+2048}, v{t+2}
    v_mul_u32_u24 v{t+2}, 320, v{t+1}
    v_lshl_add_u32 v{t+2}, v{t}, 4, v{t+2}
    v_add_u32 v{aV}, {L_KV+3072}, v{t+2}
    v_lshlrev_b32 v{t+2}, 2, v{t+1}
    v_sub_u32 v{t+2}, v{t}, v{t+2}
    v_mov_b32 v{t+3}, {NINF}""")
    for i in range(16):
        m=C+1+2*(i%2)+((C+1)%2)
        ri=8*(i>>2)+(i&3)
        p(f"v_cmp_le_i32 s[{m}:{m+1}], {ri}, v{t+2}")
        if i>0:
            m2=C+1+2*((i-1)%2)+((C+1)%2)
            if i==1: p("s_nop 0")
            p(f"v_cndmask_b32 v{CD+i-1}, v{t+3}, 0, s[{m2}:{m2+1}]\nv_cndmask_b32 v{CF+i-1}, 0, v{t+3}, s[{m2}:{m2+1}]")
    p(f"""s_nop 0
    v_cndmask_b32 v{CD+15}, v{t+3}, 0, s[{m}:{m+1}]
    v_cndmask_b32 v{CF+15}, 0, v{t+3}, s[{m}:{m+1}]
    v_cmp_eq_u32 s[{m}:{m+1}], 20, v{t}
    v_cmp_eq_u32 vcc, 24, v{t}
    s_mov_b32 s{cHO}, s{sHO}
    s_or_b64 s[{cVM}:{cVM+1}], vcc, s[{m}:{m+1}]""")
    p(f"""v_bfe_u32 v{t+2}, v0, 4, 1
    v_mul_u32_u24 v{t+2}, 20480, v{t+2}
    v_lshl_add_u32 v{t+2}, v{t+1}, 8, v{t+2}
    v_and_b32 v{t+3}, 15, v0
    v_lshl_add_u32 v{aO}, v{t+3}, 4, v{t+2}
    s_xor_b32 s{cHX}, s{sHF}, s{sHH}
    s_mov_b32 s{cT0}, s{sT0}
    s_lshl_b32 s{A}, s{sWAVE}, 1
    s_sub_u32 s{A}, 7, s{A}
    v_mul_u32_u24 v{t+2}, s{A}, v0
    s_add_u32 s{A}, s{sT0}, s{sWAVE}
    v_add_lshl_u32 v{aFO}, v{t+2}, s{A}, 12
    s_lshl_b32 s{A}, s{sHD}, 7
    s_add_u32 s{A}, s{A}, {FO}
    v_add_u32 v{aFO}, s{A}, v{aFO}""")
    for q in range(2):
        if q==0: p(f"s_add_u32 s{A}, s{sT0}, 7\ns_sub_u32 s{A}, s{A}, s{sWAVE}")
        else: p(f"s_add_u32 s{A}, s{sT0}, s{sWAVE}")
        p(f"""s_mul_i32 s{sQ[q]}, s{A}, 2560
        s_mul_i32 s{B}, s{sPH}, {64*2560}
        s_add_u32 s{sQ[q]}, s{sQ[q]}, s{B}
        s_mul_i32 s{A}, s{A}, 40960
        s_mul_i32 s{B}, s{sPH}, 1280
        s_add_u32 s{A}, s{A}, s{B}
        s_add_u32 s{A}, s{A}, {OB}
        s_mul_i32 s{B}, s{sHO}, 768
        s_add_u32 s{sOm[q]}, s{A}, s{B}
        s_lshl_b32 s{B}, s{sHO}, 3
        s_add_u32 s{sOt[q]}, s{A}, s{B}""")
    sK=cK; sV=cV; sL=cL
    p(f"""s_lshl_b32 s{A}, s{sWAVE}, 1
    s_add_u32 s{A}, s{A}, s{sT0}
    s_mul_i32 s{sK}, s{A}, 2560
    s_mul_i32 s{sV}, s{A}, 1280
    s_mul_i32 s{A}, s{sPH}, {64*2560}
    s_add_u32 s{sK}, s{sK}, s{A}
    s_add_u32 s{sK}, s{sK}, {KB}
    s_mul_i32 s{A}, s{sHD}, 81920
    s_add_u32 s{sV}, s{sV}, s{A}
    s_add_u32 s{sV}, s{sV}, {VB}
    s_mul_i32 s{sL}, s{sWAVE}, 5632
    s_add_u32 s{sL}, s{sL}, {L_KV+4*5632}
    s_mul_i32 s{A}, s{sHO}, 1536
    v_add_u32 v{aQ0}, s{A}, v{aLin}
    s_lshl_b32 s{A}, s{sHO}, 3
    v_add_u32 v{aQ1}, s{A}, v{aLin}""")
def att_go():
    t=vT; A=sT+7; B=sT+8; C=sT+17
    nh=p.lab("nohs"); lp=p.lab("fp"); ok=p.lab("fpok"); md=p.lab("fpm")
    ld=f"buffer_load_dword v{t+10}, v{aFl}, {S4(sWS)}, s{cF} offen sc1"
    p(f"""{ld}
    v_mov_b32 v{t+4}, 0x3f803f80
    s_or_b32 s{sOSC}, s{cHX}, s{sMODE}
    s_mov_b32 s{sFB}, 0
    s_mul_i32 s{A}, s{sMODE}, {OB2-OB}
    v_add_u32 v{aO}, s{A}, v{aO}""")
    for b_ in range(2):
        for mm in range(2):
            for r in range(4): p(f"v_cndmask_b32 v{VV[b_][mm]+r}, 0, v{t+4}, s[{cVM}:{cVM+1}]")
    for q in range(2): p(f"v_mov_b32 v{QT[q]}, 0\nv_mov_b32 v{QT[q]+1}, 0")
    p(f"""s_lshr_b32 s{A}, s{sWAVE}, 1
    s_lshl_b32 s{A}, s{A}, 2
    s_add_u32 s{A}, s{A}, {F_STG}
    v_mov_b32 v{t+4}, s{A}
    v_mov_b32 v{t+5}, 1
    s_mov_b32 s{C}, {SPIN}
    s_cmp_eq_u32 s{sHAL2}, 0
    s_waitcnt vmcnt(0)
    s_cbranch_scc1 {nh}
    s_mov_b64 exec, 1
    ds_add_u32 v{t+4}, v{t+5}
    s_mov_b64 exec, -1
    {nh}:""")
    STAMP('hack')
    p(f"""s_branch {md}
    {lp}:
    {ld}
    s_waitcnt vmcnt(0)
    {md}:
    v_cmp_ne_u32 vcc, s{sTAG}, v{t+10}
    s_nop 0
    s_cbranch_vccz {ok}""")
    spin(C,lp,ok)
    p(f"s_branch {lp}\n{ok}:")
    STAMP('fseen')
    kv_dma(aLin,aTl,cK,cV,cL,A,B,cHO)
    for q in range(2): p(f"buffer_load_dwordx4 {vr(QM[q],4)}, v{aQ0}, {S4(sWS)}, s{sQ[q]} offen sc1")
    p(f"s_mov_b64 exec, s[{sLO}:{sLO+1}]")
    for q in range(2): p(f"buffer_load_dwordx2 {vr(QT[q],2)}, v{aQ1}, {S4(sWS)}, s{sQ[q]} offen offset:1024 sc1")
    p(f"""s_mov_b64 exec, 1
    v_mov_b32 v{t}, {F_G1}
    v_mov_b32 v{t+1}, 1
    s_waitcnt vmcnt(4)
    ds_add_u32 v{t}, v{t+1}
    s_mov_b64 exec, -1
    v_mov_b32 v{aFl}, {F_G1}""")
    for o,n in ((0,4),(4,4),(8,2)): p(f"buffer_load_dwordx{n} {vr(XR+o,n)}, v{aX2}, {S4(sX)}, s{cXO} offen offset:{4*o}")
    for o,n in ((0,4),(4,4),(8,2)): p(f"buffer_load_dwordx{n} {vr(WR_+o,n)}, v{aWR}, {S4(sWR)}, s{cJ} offen offset:{4*o}")
    lds_wait(aFl,t+5,C,'gt',4,0)
    p(f"s_waitcnt vmcnt(6)")
    STAMP('kv')
    p(f"""s_cmp_eq_u32 s{sWAVE}, 1
    s_cbranch_scc1 L_av1
    s_cmp_eq_u32 s{sWAVE}, 2
    s_cbranch_scc1 L_av2
    s_cmp_eq_u32 s{sWAVE}, 3
    s_cbranch_scc1 L_av3""")
def kreads(n,b_):
    o=(n>>1)*5632
    return [f"ds_read_b128 {vr(KM[b_],4)}, v{aKm} offset:{o+(n&1)*1024}", f"ds_read_b64 {vr(KT[b_],2)}, v{aKt} offset:{o+(n&1)*512}"]
def vreads(n,b_):
    o=(n>>1)*5632+(n&1)*1280
    return [f"s_mov_b64 exec, s[{sLO+2}:{sLO+3}]", f"ds_read_b128 {vr(VV[b_][0],4)}, v{aV} offset:{o}", f"ds_read_b128 {vr(VV[b_][1],4)}, v{aV} offset:{o+640}", "s_mov_b64 exec, -1"]
def att_variant(w):
    U=[]
    for n in range(15-w,8+w,-1): U.append((0,n))
    for n in range(8+w,6-w,-1): U+= [(0,n),(1,n)]
    for n in range(6-w,w-1,-1): U.append((1,n))
    assert len(U)==18
    diag=[15-w,8+w]
    tiles=[]; tau=[]
    for q,n in U:
        if not tiles or tiles[-1]!=n: tiles.append(n)
        tau.append(len(tiles)-1)
    first=[tau.index(i) for i in range(len(tiles))]
    started=[0,0]
    def QK(u):
        q,n=U[u]; b_=tau[u]&1; S=vr(SS[u&1],16)
        c=vr(CD,16) if n==diag[q] else (vr(CF,16) if n==diag[q]-8 else "0")
        return [f"v_mfma_f32_32x32x16_bf16 {S}, {vr(KM[b_],4)}, {vr(QM[q],4)}, {c}", f"v_mfma_f32_32x32x8_bf16 {S}, {vr(KT[b_],2)}, {vr(QT[q],2)}, {S}"]
    def PV(u,m):
        q,n=U[u]; O=vr(OO[q],16)
        c=O if started[q] else "0"; started[q]=1
        return f"v_mfma_f32_32x32x16_bf16 {O}, {vr(VV[tau[u]&1][m],4)}, {vr(PP+4*m,4)}, {c}"
    p(f"L_av{w}:")
    for i,f in enumerate(first):
        if f<=1:
            for x in kreads(tiles[i],i&1): p(x)
    for x in vreads(tiles[0],0): p(x)
    p("s_waitcnt lgkmcnt(0)")
    for x in QK(0): p(x)
    p("s_nop 7\ns_nop 3")
    pend=False
    H=first[tiles.index(7)]
    for u in range(18):
        S=SS[u&1]
        e=lambda i: p(f"v_exp_f32 v{S+i}, v{S+i}")
        c=lambda k: p(f"v_cvt_pk_bf16_f32 v{PP+k}, v{S+2*k}, v{S+2*k+1}")
        kr=[x for i,f in enumerate(first) if f==u+2 for x in kreads(tiles[i],i&1)]
        vr_=[x for i,f in enumerate(first) if f==u+1 for x in vreads(tiles[i],i&1)]
        late=(u+2==H)
        STAMP('u%d'%u)
        e(0); e(1)
        if u>0: p(PV(u-1,1))
        e(2)
        if not late:
            for x in kr: p(x)
        if u+3==H: p(f"ds_read_b32 v{vT}, v{aFl} offset:{F_G2-F_G1}")
        e(3); c(0); c(1)
        if pend: p("s_waitcnt lgkmcnt(0)") if not (kr and not late) and u+3!=H else p(f"s_waitcnt lgkmcnt({(len(kr) if not late else 0)+(1 if u+3==H else 0)})")
        qk=QK(u+1) if u<17 else [None,None]
        if qk[0]: p(qk[0])
        e(4)
        if late:
            p(f"v_cmp_gt_u32 vcc, 2, v{vT}")
        e(5)
        if late:
            p(f"s_cbranch_vccnz L_g2w{w}\nL_g2r{w}:")
            for x in kr: p(x)
        for x in vr_: p(x)
        e(6); e(7); c(2); c(3)
        if qk[1]: p(qk[1])
        e(8); e(9); e(10); e(11)
        p(PV(u,0))
        c(4); c(5); e(12); e(13); e(14); e(15); c(6); c(7)
        pend=bool(kr or vr_ or u+3==H)
        if u==H-1:
            p(f"s_cmp_eq_u32 s{cT0}, 0\ns_cbranch_scc1 L_ex{w}")
            exq=PV(u,1)
    p("s_nop 1")
    p(PV(17,1))
    p("s_branch L_afin")
    p(f"L_g2w{w}:")
    p(f"v_mov_b32 v{vT+1}, {F_G2}")
    lds_wait(vT+1,vT,sT+17,'gt',2,1)
    p(f"s_branch L_g2r{w}\nL_ex{w}:\n{exq}\ns_branch L_afin")
def att_fin():
    t=vT; A=sT+7
    p("L_afin:")
    STAMP('aend')
    p(f"s_mov_b32 s{A}, {hex(f2u(2.0**-40))}\ns_mov_b32 s{A+1}, {hex(f2u(2.0**40)-f2u(2.0**-40))}")
    for q in range(2):
        O=OO[q]
        p(f"""v_cndmask_b32 v{t}, v{O+8}, v{O+12}, s[{sLO}:{sLO+1}]
        v_pk_add_f32 v[{t+2}:{t+3}], v[{O}:{O+1}], v[{O+2}:{O+3}]
        v_rcp_f32 v{t+1}, v{t}
        v_pk_add_f32 v[{t+4}:{t+5}], v[{O+4}:{O+5}], v[{O+6}:{O+7}]
        v_pk_add_f32 v[{t+6}:{t+7}], v[{O+8}:{O+9}], v[{O+10}:{O+11}]
        v_subrev_u32 v{t}, s{A}, v{t}
        v_pk_add_f32 v[{t+2}:{t+3}], v[{t+2}:{t+3}], v[{t+4}:{t+5}]
        v_cmp_lt_u32 s[{A+11}:{A+12}], s{A+1}, v{t}
        v_pk_add_f32 v[{t+2}:{t+3}], v[{t+2}:{t+3}], v[{t+6}:{t+7}]
        v_add_f32 v{t+2}, v{t+2}, v{t+3}""")
        p(f"v_cmp_class_f32 vcc, v{t+2}, v{aCLS}")
        for k in range(6): p(f"v_pk_mul_f32 {vr(O+2*k,2)}, {vr(O+2*k,2)}, {vr(t,2)} op_sel:[0,1] op_sel_hi:[1,1]")
        p(f"""s_or_b64 vcc, vcc, s[{A+11}:{A+12}]
        s_cbranch_scc1 L_afb{q}
        L_afr{q}:""")
        for k in range(6): p(f"v_cvt_pk_bf16_f32 v{O+k}, v{O+2*k}, v{O+2*k+1}")
        p(f"s_cmp_lg_u32 s{sOSC}, 0")
        st=[f"buffer_store_dwordx4 {vr(O,4)}, v{aO}, {S4(sWS)}, s{sOm[q]} offen", f"s_mov_b64 exec, s[{sLO}:{sLO+1}]",
            f"buffer_store_dwordx2 {vr(O+4,2)}, v{aO}, {S4(sWS)}, s{sOt[q]} offen offset:512", "s_mov_b64 exec, -1"]
        p(f"s_cbranch_scc1 L_osc{q}")
        for x in st: p(x)
        p(f"s_branch L_osr{q}\nL_osc{q}:")
        for x in st: p(x+(" sc1" if x.startswith("buffer") else ""))
        p(f"L_osr{q}:")
    p(f"""v_mov_b32 v{t}, {F_DONE}
    v_mov_b32 v{t+1}, 1
    s_mov_b64 exec, 1
    ds_add_u32 v{t}, v{t+1}
    s_mov_b64 exec, -1""")
    STAMP('ost')
aCLS=255; aFO=226; aFR=227
def att_cold():
    t=vT; A=sT+7; B=sT+8; N=sT+17; J=sT+18; CN=sT+19; PA=sT+20
    for q in range(2): p(f"L_afb{q}:\ns_cmp_lg_u32 s{sFB}, 0\ns_cbranch_scc1 L_afr{q}\ns_branch L_afb")
    p(f"L_afb:\ns_mov_b32 s{sFB}, 1\ns_waitcnt lgkmcnt(0)")
    S=SS[0]; MX=t+10; xa=t+11
    for q in range(2):
        lp=p.lab("fb"); nd=p.lab("fbnd"); nf=p.lab("fbnf"); p2=p.lab("fbp2"); nx=p.lab("fbnx"); ps=p.lab("fbps"); dn=p.lab("fbdn")
        for r in range(16): p(f"v_mov_b32 v{OO[q]+r}, 0")
        p(f"""v_mov_b32 v{MX}, {NINF}
        s_mov_b32 s{PA}, 0
        {ps}:""")
        if q==0: p(f"s_sub_u32 s{N}, 15, s{sWAVE}")
        else: p(f"s_add_u32 s{N}, 8, s{sWAVE}")
        p(f"""s_sub_u32 s{CN}, s{N}, 7
        s_cmp_eq_u32 s{cT0}, 0
        s_cselect_b32 s{CN}, s{CN}, 9
        s_mov_b32 s{J}, 0
        {lp}:
        s_lshr_b32 s{A}, s{N}, 1
        s_mul_i32 s{A}, s{A}, 5632
        s_and_b32 s{B}, s{N}, 1
        s_lshl_b32 s{sT+21}, s{B}, 10
        s_add_u32 s{sT+21}, s{sT+21}, s{A}
        v_add_u32 v{xa}, s{sT+21}, v{aKm}
        s_lshl_b32 s{sT+21}, s{B}, 9
        s_add_u32 s{sT+21}, s{sT+21}, s{A}
        v_add_u32 v{xa+1}, s{sT+21}, v{aKt}
        s_mul_i32 s{B}, s{B}, 1280
        s_add_u32 s{A}, s{A}, s{B}
        v_add_u32 v{xa+2}, s{A}, v{aV}
        ds_read_b128 {vr(KM[0],4)}, v{xa}
        ds_read_b64 {vr(KT[0],2)}, v{xa+1}
        s_mov_b64 exec, s[{sLO+2}:{sLO+3}]
        ds_read_b128 {vr(VV[0][0],4)}, v{xa+2}
        ds_read_b128 {vr(VV[0][1],4)}, v{xa+2} offset:640
        s_mov_b64 exec, -1
        s_waitcnt lgkmcnt(0)
        v_mfma_f32_32x32x16_bf16 {vr(S,16)}, {vr(KM[0],4)}, {vr(QM[q],4)}, 0
        v_mfma_f32_32x32x8_bf16 {vr(S,16)}, {vr(KT[0],2)}, {vr(QT[q],2)}, {vr(S,16)}
        v_mov_b32 v{xa}, {NINF}
        s_nop 11
        s_cmp_lg_u32 s{J}, 0
        s_cbranch_scc1 {nd}""")
        for r in range(16): p(f"v_cmp_eq_u32 vcc, 0, v{CD+r}\ns_nop 1\nv_cndmask_b32 v{S+r}, v{xa}, v{S+r}, vcc")
        p(f"{nd}:\ns_cmp_lg_u32 s{J}, 8\ns_cbranch_scc1 {nf}")
        for r in range(16): p(f"v_cmp_eq_u32 vcc, 0, v{CF+r}\ns_nop 1\nv_cndmask_b32 v{S+r}, v{xa}, v{S+r}, vcc")
        p(f"{nf}:\ns_cmp_lg_u32 s{PA}, 0\ns_cbranch_scc1 {p2}")
        for r in range(0,16,2): p(f"v_max3_f32 v{MX}, v{S+r}, v{S+r+1}, v{MX}")
        p(f"s_branch {nx}\n{p2}:")
        for r in range(16): p(f"v_sub_f32 v{S+r}, v{S+r}, v{MX}")
        for r in range(16): p(f"v_exp_f32 v{S+r}, v{S+r}")
        p("s_nop 0")
        for k in range(8): p(f"v_cvt_pk_bf16_f32 v{PP+k}, v{S+2*k}, v{S+2*k+1}")
        p("s_nop 1")
        for m in range(2): p(f"v_mfma_f32_32x32x16_bf16 {vr(OO[q],16)}, {vr(VV[0][m],4)}, {vr(PP+4*m,4)}, {vr(OO[q],16)}")
        p(f"""s_nop 11
        {nx}:
        s_sub_u32 s{N}, s{N}, 1
        s_add_u32 s{J}, s{J}, 1
        s_cmp_lt_u32 s{J}, s{CN}
        s_cbranch_scc1 {lp}
        s_cmp_lg_u32 s{PA}, 0
        s_cbranch_scc1 {dn}
        v_mov_b32 v{xa}, v{MX}
        s_mov_b32 s{PA}, 1
        s_nop 0
        v_permlane32_swap_b32 v{xa}, v{MX}
        s_nop 1
        v_max_f32 v{MX}, v{MX}, v{xa}
        s_branch {ps}
        {dn}:""")
    p("s_branch L_afin")

BF=28; AF=108; WACC=200; XR=176; WR_=186; aX2=196; aPS=197; aAL=198; aAR=199; SW=220; SELF=221; aPR=222; aKY=223; aCD=224
HP=40; HF_=50; LP=70; OP=80
sRT=sT+1; sOL=sT+2; sOR=sT+5; sXO=cXO; sPSO=sT+12; sRETRY=sT+13; sPRB=sT+14; sFLO=sT+16; sFRE=sT+18
def acc_init():
    for k in range(10): p(f"v_lshlrev_b32 v{WACC+2*k}, 16, v{XR+k}\nv_and_b32 v{WACC+2*k+1}, 0xffff0000, v{XR+k}")
def wo_pre1():
    t=vT; A=sT+7; B=sT+8
    wo_ids()
    p(f"""v_and_b32 v{t}, 15, v0
    v_lshrrev_b32 v{t+1}, 4, v0
    v_mul_u32_u24 v{aWR}, 40, v{t+1}
    v_mov_b32 v{t+3}, 1280
    v_mad_u32_u24 v{aX2}, v{t}, v{t+3}, v{aWR}
    s_lshl_b32 s{A}, s{sBLK}, 2
    s_add_u32 s{A}, s{A}, s{sWAVE}
    s_mul_i32 s{A}, s{A}, 20480
    s_mul_i32 s{cJ}, s{sJ}, 160
    s_add_u32 s{cXO}, s{A}, s{cJ}
    v_lshlrev_b32 v{aPS}, 7, v{t}
    v_lshl_add_u32 v{aPS}, v{t+1}, 5, v{aPS}
    v_lshlrev_b32 v{aFR}, 7, v{t}
    v_mul_u32_u24 v{t+2}, 640, v{t+1}
    v_bfe_u32 v{t+3}, v0, 2, 2
    v_mul_u32_u24 v{t+3}, 160, v{t+3}
    v_and_b32 v{t+4}, 3, v0
    v_mul_u32_u24 v{t+4}, 40, v{t+4}
    v_add3_u32 v{t+2}, v{t+2}, v{t+3}, v{t+4}
    s_mul_i32 s{A}, s{sHH}, 51200
    s_add_u32 s{B}, s{A}, {L_WO}
    v_add_u32 v{aAL}, s{B}, v{t+2}
    s_sub_u32 s{B}, {L_WO+51200}, s{A}
    v_add_u32 v{aAR}, s{B}, v{t+2}
    v_and_b32 v{t+2}, 7, v0
    v_mul_u32_u24 v{t+2}, 1280, v{t+2}
    v_bfe_u32 v{t+3}, v0, 3, 1
    v_lshl_add_u32 v{aPR}, v{t+3}, 7, v{t+2}""")
def wo_pre2():
    acc_init()
def probe(soff,cnt,first=True):
    t=vT
    lp=p.lab("pb"); ok=p.lab("pbok"); md=p.lab("pbm")
    p(f"s_mov_b32 s{cnt}, {SPIN}")
    if not first: p(f"s_branch {md}")
    p(f"""{lp}:
    buffer_load_dwordx3 v[{t+4}:{t+6}], v{aPR}, {S4(sWS)}, s{soff} offen offset:512 sc1""")
    if not first: p(f"{md}:")
    p(f"""s_waitcnt vmcnt(0)
    v_max_u32 v{t+4}, v{t+4}, v{t+6}
    v_cmp_eq_u32 vcc, -1, v{t+4}
    s_nop 0
    s_cbranch_vccz {ok}""")
    spin(cnt,lp,ok)
    p(f"s_branch {lp}\n{ok}:")
def red3(a,b,c,d):
    p(f"""v_mov_b32 v{d}, v{c}
    s_nop 0
    v_permlane32_swap_b32 v{a}, v{b}
    v_permlane32_swap_b32 v{c}, v{d}
    s_nop 0
    v_add_f32 v{a}, v{a}, v{b}
    v_add_f32 v{c}, v{c}, v{d}
    s_nop 1
    v_permlane16_swap_b32 v{a}, v{c}
    s_nop 0
    v_add_f32 v{a}, v{a}, v{c}
    v_add_f32 v{c}, v{a}, 0
    s_nop 1
    v_permlane16_swap_b32 v{a}, v{c}
    s_nop 0
    v_mov_b32 v{b}, v{a}
    s_nop 1
    v_permlane32_swap_b32 v{a}, v{b}""")
def wo_main():
    t=vT; A=sT+7; B=sT+8; C=sT+17; MXS=t+8
    wo_ids()
    p(f"""s_lshl_b32 s{sRT}, s{sBLK}, 2
    s_add_u32 s{sRT}, s{sRT}, s{sWAVE}
    s_mul_i32 s{A}, s{sRT}, 20480
    s_mul_i32 s{B}, s{sMODE}, {OB2-OB}
    s_add_u32 s{A}, s{A}, s{B}
    s_add_u32 s{A}, s{A}, {OB}
    s_mul_i32 s{B}, s{sHH}, 10240
    s_add_u32 s{sOL}, s{A}, s{B}
    s_add_u32 s{sOL+1}, s{sOL}, 4096
    s_add_u32 s{sOL+2}, s{sOL}, 8192
    s_add_u32 s{A}, s{A}, 10240
    s_sub_u32 s{sOR}, s{A}, s{B}
    s_lshl_b32 s{sPSO}, s{sRT}, 11
    s_add_u32 s{sPSO}, s{sPSO}, {PS}
    s_mov_b32 s{sRETRY}, {1<<16}
    s_add_u32 s{sOR+1}, s{sOR}, 4096
    s_add_u32 s{sPRB}, s{sOR}, 8192
    s_lshr_b32 s{A}, s{sRT}, 1
    s_lshl_b32 s{A}, s{A}, 12
    s_lshl_b32 s{B}, s{sHH}, 11
    s_add_u32 s{A}, s{A}, {FO}
    s_add_u32 s{sFLO}, s{A}, s{B}
    s_xor_b32 s{sFRE}, s{sFLO}, 2048
    s_waitcnt vmcnt(4)""")
    acc_init()
    p(f"""v_mov_b32 v{t}, {F_WOR}
    v_mov_b32 v{t+1}, s{sTAG}
    s_cmp_eq_u32 s{sOSC}, 0
    s_cbranch_scc1 L_nofo
    s_mov_b64 exec, 3
    s_waitcnt vmcnt(0)
    buffer_store_dword v{t+1}, v{aFO}, {S4(sWS)}, 0 offen sc1
    s_mov_b64 exec, -1
    L_nofo:""")
    STAMP('fo')
    lds_wait(t,t+1,C,'gt',2,0)
    p(f"""ds_read_b32 v{SW}, v{t} offset:{L_SWS-F_WOR}
    L_wo:""")
    STAMP('wor')
    sROFF=[sOR,sOR+1,sPRB]
    LA=CFG['wla']; WE=CFG['wwe']
    LG=[]
    def af(m): return AF+4*(m%15)
    def aread(m):
        s_,t_=divmod(m,5)
        for rd in range(2):
            p(f"ds_read_b64_tr_b16 {vr(af(m)+2*rd,2)}, v{aAL if s_<10 else aAR} offset:{(s_%10)*5120+rd*2560+8*t_}"); LG.append(m)
    def lgw(m):
        k=[i for i,x in enumerate(LG) if x!='x' and x<=m]
        if not k: return None
        n=len(LG)-1-max(k); del LG[:max(k)+1]; return n
    def bload(s_):
        so=(sOL+(s_%10)//4) if s_<10 else sROFF[(s_%10)//4]
        return f"buffer_load_dwordx4 {vr(BF+4*s_,4)}, v{aLin}, {S4(sWS)}, s{so} offen offset:{(s_%10%4)*1024} sc1"
    for m in range(LA): aread(m)
    p(f"v_mov_b32 v{MXS}, 0\nv_mov_b32 v{t+7}, {F_WO2}")
    p(f"s_cmp_lg_u32 s{sMODE}, 0\ns_cbranch_scc1 L_plsl")
    probe(sOL,C)
    p("L_plr:")
    n0=len(p.L)
    p("L_plsl:"); flag_poll(aFR,t+4,sFLO,C); p("s_branch L_plr")
    COLD.append("\n".join(p.L[n0:])); del p.L[n0:]
    STAMP('pl')
    for s_ in range(10): p(bload(s_))
    p(f"buffer_load_dword v{t+4}, v{aFR}, {S4(sWS)}, s{sFRE} offen sc1")
    for m in range(100):
        s_,t_=divmod(m,5)
        if m==50:
            STAMP('loc')
            flag_poll(aFR,t+4,sFRE,C,first=False)
            STAMP('pr')
            for k in range(10,20): p(bload(k))
            if CFG['gstart']=='PR' or CFG['dstart']=='PR' or CFG['dgate']=='PR':
                p(f"""s_mov_b64 exec, 1
                v_mov_b32 v{t+4}, {F_PR}
                v_mov_b32 v{t+5}, 1
                ds_add_u32 v{t+4}, v{t+5}
                s_mov_b64 exec, -1"""); LG.append('x')
        w=[]
        if t_==0: w.append(f"vmcnt({(10-s_) if s_<10 else (19-s_)}")
        if m%WE==0:
            n=lgw(m+WE-1)
            if n is not None: w.append(f"lgkmcnt({n}")
        if w: p("s_waitcnt "+") ".join(w)+")")
        a_=vr(WACC+4*t_,4)
        p(f"v_mfma_f32_16x16x32_bf16 {a_}, {vr(af(m),4)}, {vr(BF+4*s_,4)}, {a_}")
        if m+LA==50-10: p(f"ds_read_b32 v{t+6}, v{t+7}"); LG.append('x')
        if m+LA==50:
            p(f"v_cmp_gt_u32 vcc, 2, v{t+6}\ns_nop 0\ns_cbranch_vccnz L_wo2w\nL_wo2r:")
            n0=len(p.L)
            p("L_wo2w:"); lds_wait(t+7,t+6,C,'gt',2,0); p("s_branch L_wo2r")
            COLD.append("\n".join(p.L[n0:])); del p.L[n0:]
        if m+LA<100: aread(m+LA)
        if t_==0 and s_<10: p(f"v_max3_u32 v{MXS}, v{BF+4*s_}, v{BF+4*s_+2}, v{MXS}")
    p(f"""v_cmp_eq_u32 vcc, -1, v{MXS}
    v_mov_b32 v{t}, 0x3f803f80
    v_mov_b32 v{t+2}, 0
    v_mov_b32 v{t+3}, 0
    v_mov_b32 v{t+4}, 0
    s_cbranch_vccnz L_woredo
    L_wook:""")
    STAMP('wend')
    COLD.append(f"L_woredo:\ns_sub_u32 s{sRETRY}, s{sRETRY}, 1\ns_cbranch_scc1 L_wook\ns_nop 7")
    q=P();
    COLD.append("\n".join(f"v_lshlrev_b32 v{WACC+2*k}, 16, v{XR+k}\nv_and_b32 v{WACC+2*k+1}, 0xffff0000, v{XR+k}" for k in range(10))+"\ns_branch L_wo")
    for k in range(10): p(f"v_cvt_pk_bf16_f32 v{HP+k}, v{WACC+2*k}, v{WACC+2*k+1}")
    for k in range(10):
        p(f"""v_dot2_f32_bf16 v{t+2}, v{HP+k}, v{t}, v{t+2}
        v_dot2_f32_bf16 v{t+4}, v{HP+k}, v{HP+k}, v{t+4}
        v_dot2_f32_bf16 v{t+3}, v{HP+k}, v{WR_+k}, v{t+3}""")
    p(f"""s_lshl_b32 s{A}, s{sJ}, 4
    s_add_u32 s{A}, s{A}, s{sPSO}""")
    red3(t+2,t+3,t+4,t+5)
    p(f"""v_mov_b32 v{t+5}, s{sTAG}
    s_mov_b64 exec, 0xffff
    s_cmp_lg_u32 s{sMODE}, 0
    s_cbranch_scc1 L_pssc
    buffer_store_dwordx4 {vr(t+2,4)}, v{aPS}, {S4(sWS)}, s{A} offen
    L_psr:
    s_mov_b64 exec, -1""")
    COLD.append(f"L_pssc:\nbuffer_store_dwordx4 {vr(t+2,4)}, v{aPS}, {S4(sWS)}, s{A} offen sc1\ns_branch L_psr")
    STAMP('ps')
    G=t+10
    lp=p.lab("ps"); ok=p.lab("psok"); md=p.lab("psm")
    ld=f"""buffer_load_dwordx4 {vr(G,4)}, v{aPS}, {S4(sWS)}, s{sPSO} offen sc1
    buffer_load_dwordx4 {vr(G+4,4)}, v{aPS}, {S4(sWS)}, s{sPSO} offen offset:16 sc1"""
    p(ld)
    for k in range(10): p(f"v_lshlrev_b32 v{HF_+2*k}, 16, v{HP+k}\nv_and_b32 v{HF_+2*k+1}, 0xffff0000, v{HP+k}")
    if CFG['dbg']:
        p(f"s_add_u32 s{A}, s{sXO}, {HB}")
        for o,n in ((0,4),(4,4),(8,2)): p(f"buffer_store_dwordx{n} {vr(HP+o,n)}, v{aX2}, {S4(sWS)}, s{A} offen offset:{4*o}")
    p(f"""s_lshl_b32 s{A}, s{sRT}, 4
    s_sub_u32 s{A}, 2047, s{A}
    v_and_b32 v{t}, 15, v0
    v_sub_u32 v{t+9}, s{A}, v{t}
    v_lshlrev_b32 v{t+9}, 3, v{t+9}
    s_lshl_b32 s{A}, s{sWAVE}, 6
    s_add_u32 s{A}, s{A}, {L_KEYS}
    v_lshl_add_u32 v{aKY}, v{t}, 2, s{A}
    v_and_b32 v{t}, 48, v0
    v_lshlrev_b32 v{t}, 2, v{t}
    v_add_u32 v{t+8}, {L_KEYS}, v{t}
    s_mov_b32 s{C}, {SPIN}
    s_branch {md}
    {lp}:
    {ld}
    {md}:
    s_waitcnt vmcnt(0)
    v_cmp_ne_u32 vcc, s{sTAG}, v{G+3}
    v_cmp_ne_u32 s[{sT+14}:{sT+15}], s{sTAG}, v{G+7}
    v_pk_add_f32 {vr(t+4,2)}, {vr(G,2)}, {vr(G+4,2)}
    v_add_f32 v{t+6}, v{G+2}, v{G+6}
    s_or_b64 vcc, vcc, s[{sT+14}:{sT+15}]
    s_cbranch_scc0 {ok}""")
    spin(C,lp,ok)
    p(f"""s_branch {lp}
    {ok}:""")
    STAMP('psr')
    if CFG['dgate']=='PS': p(f"""s_mov_b64 exec, 1
    v_mov_b32 v{G}, {F_PS}
    v_mov_b32 v{G+1}, 1
    ds_add_u32 v{G}, v{G+1}
    s_mov_b64 exec, -1""")
    M=t+4
    red3(M,M+1,M+2,M+3)
    p(f"""v_mul_f32 v{M}, {1/640!r}, v{M}
    v_mul_f32 v{M+2}, {1/640!r}, v{M+2}
    v_fma_f32 v{M+2}, -v{M}, v{M}, v{M+2}
    v_max_f32 v{M+2}, 0, v{M+2}""")
    bf16r(M+2,M+2)
    p(f"v_add_f32 v{M+2}, 0x3727c5ac, v{M+2}")
    bf16r(M+2,M+2)
    p(f"v_sqrt_f32 v{M+2}, v{M+2}")
    bf16r(M,M)
    bf16r(M+2,M+2)
    RS=t+2
    p(f"""v_rcp_f32 v{RS}, v{M+2}
    v_fma_f32 v{M+1}, -v{M}, v{SW}, v{M+1}
    v_mul_f32 v{M+1}, v{M+1}, v{RS}
    v_cvt_pk_bf16_f32 v{M+1}, v{M+1}, v{M+1}
    v_mul_f32 v{RS+1}, -v{M}, v{RS}
    v_ashrrev_i32 v{M+2}, 31, v{M+1}
    v_or_b32 v{M+2}, 0x80000000, v{M+2}
    v_xor_b32 v{M+1}, v{M+1}, v{M+2}
    v_and_b32 v{M+1}, 0xffff0000, v{M+1}
    v_or_b32 v{KEY}, v{M+1}, v{t+9}
    ds_write_b32 v{aKY}, v{KEY}""")
    for k in range(10): p(f"v_pk_fma_f32 {vr(WACC+2*k,2)}, {vr(HF_+2*k,2)}, {vr(RS,2)}, {vr(RS,2)} op_sel:[0,0,1] op_sel_hi:[1,0,1]")
    K16=AF
    lp=p.lab("ky"); ok=p.lab("kyok")
    p(f"s_mov_b32 s{C}, {SPIN*4}\n{lp}:")
    for i in range(4): p(f"ds_read_b128 {vr(K16+4*i,4)}, v{t+8} offset:{16*i}")
    p("s_waitcnt lgkmcnt(0)")
    p(f"v_max3_u32 v{t}, v{K16}, v{K16+1}, v{K16+2}")
    for i in range(3,15,2): p(f"v_max3_u32 v{t}, v{K16+i}, v{K16+i+1}, v{t}")
    p(f"""v_max_u32 v{t}, v{t}, v{K16+15}
    v_cmp_eq_u32 vcc, -1, v{t}
    v_mov_b32 v{t}, 0
    s_cbranch_vccz {ok}""")
    spin(C,lp,ok)
    p(f"s_branch {lp}\n{ok}:")
    STAMP('keys')
    m0_=sT+18
    for i in range(18):
        if i<16: p(f"v_cmp_gt_u32 s[{m0_+2*(i%2)}:{m0_+2*(i%2)+1}], v{K16+i}, v{KEY}") if False else None
    MK=[sT+14,sT+16,sT+18]
    for i in range(18):
        if i<16: m=MK[i%3]; p(f"v_cmp_gt_u32 s[{m}:{m+1}], v{K16+i}, v{KEY}")
        elif i==16: p("s_nop 0")
        if i>=2: m=MK[(i-2)%3]; p(f"v_addc_co_u32 v{t}, vcc, 0, v{t}, s[{m}:{m+1}]")
    p(f"""v_mov_b32 v{t+1}, v{t}
    v_cvt_pk_bf16_f32 v{LP}, v{WACC}, v{WACC+1}
    v_cvt_pk_bf16_f32 v{LP+1}, v{WACC+2}, v{WACC+3}
    v_permlane32_swap_b32 v{t}, v{t+1}
    v_cvt_pk_bf16_f32 v{LP+2}, v{WACC+4}, v{WACC+5}
    v_add_u32 v{t}, v{t}, v{t+1}
    v_mov_b32 v{t+1}, v{t}
    v_cvt_pk_bf16_f32 v{LP+3}, v{WACC+6}, v{WACC+7}
    v_cvt_pk_bf16_f32 v{LP+4}, v{WACC+8}, v{WACC+9}
    v_permlane16_swap_b32 v{t}, v{t+1}
    v_cvt_pk_bf16_f32 v{LP+5}, v{WACC+10}, v{WACC+11}
    v_add_u32 v{t}, v{t}, v{t+1}
    v_cmp_gt_u32 s[{sCAND}:{sCAND+1}], 8, v{t}
    v_or_b32 v{KEY}, v{KEY}, v{t}
    v_mov_b32 v{t+1}, {L_CA&~0xffff}
    v_lshl_add_u32 v{t+1}, v{t}, 3, v{t+1}
    v_mov_b32 v{KEY+1}, s{sTAG}
    s_cmp_lg_u32 s{sJ}, 0
    s_cbranch_scc1 L_noca
    s_and_b32 exec_lo, s{sCAND}, 0xffff
    s_mov_b32 exec_hi, 0
    ds_write_b64 v{t+1}, {vr(KEY,2)} offset:{L_CA&0xffff}
    s_mov_b64 exec, 0xff
    s_cmp_lg_u32 s{sWAVE}, 0
    s_cbranch_scc1 L_noca
    v_lshlrev_b32 v{t+2}, 3, v0
    v_add_u32 v{t+3}, {L_CA}, v{t+2}
    s_lshl_b32 s{A}, s{sBLK}, 7
    s_add_u32 s{A}, s{A}, {CA}
    s_mov_b32 s{C}, {SPIN*4}
    L_cal:
    ds_read_b64 v[{t+4}:{t+5}], v{t+3}
    s_waitcnt lgkmcnt(0)
    v_cmp_ne_u32 vcc, s{sTAG}, v{t+5}
    s_nop 0
    s_cbranch_vccz L_caok""")
    spin(C,"L_cal","L_caok")
    p(f"""s_branch L_cal
    L_caok:
    buffer_store_dwordx2 v[{t+4}:{t+5}], v{t+2}, {S4(sWS)}, s{A} offen sc1
    L_noca:
    s_mov_b64 exec, -1""")
    STAMP('ca')
    for k in range(6,10): p(f"v_cvt_pk_bf16_f32 v{LP+k}, v{WACC+2*k}, v{WACC+2*k+1}")
    p(f"""v_lshrrev_b32 v{t+1}, 4, v0
    v_mul_u32_u24 v{t+1}, 40, v{t+1}
    v_mul_u32_u24 v{t}, 2560, v{t}
    v_add_u32 v{aCD}, v{t}, v{t+1}
    s_mul_i32 s{A}, s{sBLK}, 20480
    s_mul_i32 s{B}, s{sJ}, 160
    s_add_u32 s{A}, s{A}, s{B}
    s_add_u32 s{A}, s{A}, {CAND}
    s_and_b64 exec, s[{sCAND}:{sCAND+1}], -1
    s_cbranch_scc0 L_nocd""")
    for base,off in ((LP,0),(HP,1280)):
        if 'nocand' in CFG['xp'] or ('noh' in CFG['xp'] and off): continue
        for o,n in ((0,4),(4,4),(8,2)): p(f"buffer_store_dwordx{n} {vr(base+o,n)}, v{aCD}, {S4(sWS)}, s{A} offen offset:{off+4*o} sc1")
    p("L_nocd:\ns_mov_b64 exec, -1")
    for k in range(10): p(f"v_pk_add_f32 {vr(WACC+2*k,2)}, {vr(WACC+2*k,2)}, {vr(HF_+2*k,2)}")
    for k in range(10): p(f"v_cvt_pk_bf16_f32 v{OP+k}, v{WACC+2*k}, v{WACC+2*k+1}")
    p(f"s_andn2_b64 exec, -1, s[{sCAND}:{sCAND+1}]\ns_cbranch_scc0 L_noo1")
    if 'noout' not in CFG['xp']: out_store()
    p("L_noo1:")
    if 1: p(f"""s_mov_b64 exec, 1
    v_mov_b32 v{t+4}, {F_O1}
    v_mov_b32 v{t+5}, 1
    ds_add_u32 v{t+4}, v{t+5}
    s_mov_b64 exec, -1""")
    else: p("s_mov_b64 exec, -1")
    STAMP('o1')
KEY=228; sCAND=sT+20
def out_store():
    for o,n in ((0,4),(4,4),(8,2)): p(f"buffer_store_dwordx{n} {vr(OP+o,n)}, v{aX2}, {S4(sOUT)}, s{sXO} offen offset:{4*o} {CFG['opol']}")

def moe_weights():
    A=sT+7; B=sT+8; vt=2; D=40; aW_=12
    gu=p.lab("mwgu"); wr=p.lab("mwwr"); en=p.lab("mwend")
    FA=dict(WOD=(F_WOD,2),PR=(F_PR,4),O1=(F_O1,4),DONE=(F_DONE,4),G2=(F_G2,2),PS=(F_PS,4),WO2=(F_WO2,2))
    def gate(k):
        p(f"v_mov_b32 v{vt+4}, {FA[k][0]}")
        lds_wait(vt+4,vt+5,sT+5,'gt',FA[k][1],2)
    pl_=p.lab("mwpl")
    p(f"""s_cmp_ge_u32 s{sSLOT}, 17
    s_cbranch_scc1 {pl_}
    v_bfe_u32 v{vt}, v0, 3, 2
    v_lshrrev_b32 v{vt+1}, 5, v0
    v_lshlrev_b32 v{vt}, 1, v{vt}
    v_add_lshl_u32 v{vt}, v{vt}, v{vt+1}, 2
    v_bfe_u32 v{vt+1}, v0, 1, 2
    v_add_u32 v{vt}, v{vt}, v{vt+1}
    v_and_b32 v{vt+1}, 1, v0
    v_lshlrev_b32 v{vt+1}, 4, v{vt+1}
    s_cmp_lt_u32 s{sSLOT}, 12
    s_cbranch_scc1 {gu}
    v_mul_u32_u24 v{vt}, 1280, v{vt}
    v_add_u32 v{aW_}, v{vt}, v{vt+1}
    s_mul_i32 s{A}, s{sG}, 5
    s_add_u32 s{A}, s{A}, s{sSLOT}
    s_sub_u32 s{A}, s{A}, 12
    s_lshl_b32 s{A}, s{A}, 5
    s_mul_i32 s{B}, s{HW}, {12*32*1280}
    s_add_u32 s{A}, s{A}, s{B}""")
    gate(CFG['dstart'])
    STAMP('mg')
    for s_ in range(12):
        if s_>=CFG['ddep']: p(f"s_waitcnt vmcnt({CFG['ddep']-1})")
        p(f"buffer_load_dwordx4 {vr(D+4*s_,4)}, v{aW_}, {S4(sWD)}, s{A} offen {CFG['mpol']}")
        if s_<11: p(f"s_add_u32 s{A}, s{A}, {32*1280}")
    p(f"""s_mul_i32 s{B}, s{HW}, 12288
    s_branch {wr}
    {pl_}:""")
    for g_,h_ in CFG['wb']:
        sk=p.lab("nowb")
        p(f"s_lshl_b32 s{A}, s{sSLOT}, 2\ns_add_u32 s{A}, s{A}, s{HW}\ns_cmp_lg_u32 s{A}, {4*CFG['wbs']+h_}\ns_cbranch_scc1 {sk}")
        if g_!='no': gate(g_)
        p(f"buffer_wbl2 sc1\ns_waitcnt vmcnt(0)\n{sk}:")
    if CFG['dgate']!='no' and not CFG['dw3']:
        gate(CFG['dgate'])
        touch(vTD,sWD,CFG['mpair'])
        STAMP('mg')
        if CFG['prof']: p("s_waitcnt vmcnt(0)"); STAMP('mw')
    p(f"""s_branch {en}
    {gu}:
    v_mul_u32_u24 v{vt}, 3072, v{vt}
    v_add_u32 v{aW_}, v{vt}, v{vt+1}
    s_mul_i32 s{A}, s{sG}, 12
    s_add_u32 s{A}, s{A}, s{sSLOT}
    s_lshl_b32 s{A}, s{A}, 5
    s_mul_i32 s{B}, s{HW}, {5*32*3072}
    s_add_u32 s{A}, s{A}, s{B}""")
    gate(CFG['gstart'])
    STAMP('mg')
    for s_ in range(5):
        for m_ in range(2):
            if 2*s_+m_>=CFG['mdep']: p(f"s_waitcnt vmcnt({CFG['mdep']-1})")
            p(f"buffer_load_dwordx4 {vr(D+8*s_+4*m_,4)}, v{aW_}, {S4((sWG,sWU)[m_])}, s{A} offen {CFG['mpol']}")
        if s_<4: p(f"s_add_u32 s{A}, s{A}, {32*3072}")
    p(f"s_mul_i32 s{B}, s{HW}, 12288\n{wr}:\nv_lshl_add_u32 v{vt}, v0, 4, s{B}")
    gate('DONE')
    p("s_waitcnt vmcnt(0)")
    for s_ in range(12): p(f"ds_write_b128 v{vt}, {vr(D+4*s_,4)} offset:{L_MW+s_*1024}")
    p(f"""s_lshl_b32 s{A}, s{HW}, 2
    s_add_u32 s{A}, s{A}, {F_MW}
    v_mov_b32 v{vt}, s{A}
    ds_write_b32 v{vt}, v{vt}
    s_waitcnt lgkmcnt(0)""")
    STAMP('mw')
    p(f"{en}:")
def top8(R,K2,K1,y,tt):
    def clean(chs):
        seq=[]
        for (x,y_,t_) in chs:
            seq.append([f"v_max_u32_dpp v{y_}, v{x}, v{x} row_shl:4 row_mask:0xf bank_mask:0x5",
                        f"v_min_u32_dpp v{y_}, v{x}, v{x} row_shr:4 row_mask:0xf bank_mask:0xa",
                        None,
                        f"v_mov_b32_dpp v{t_}, v{y_} quad_perm:[2,3,0,1] row_mask:0xf bank_mask:0xf",
                        f"v_med3_u32 v{y_}, v{y_}, v{t_}, v{K2}",
                        None,
                        f"v_mov_b32_dpp v{t_}, v{y_} quad_perm:[1,0,3,2] row_mask:0xf bank_mask:0xf",
                        f"v_med3_u32 v{x}, v{y_}, v{t_}, v{K1}"])
        n=len(chs)
        p(f"s_nop {2-n}")
        for i in range(8):
            if seq[0][i] is None: p(f"s_nop {2-n}")
            else:
                for c in seq: p(c[i])
                if i==0 and n==1: p("s_nop 1")
                elif i==0: p("s_nop 0")
    dp="row_mask:0xf bank_mask:0xf"
    p(f"v_max_u32_dpp v{R}, v{R+2}, v{R} row_half_mirror {dp}\nv_max_u32_dpp v{R+4}, v{R+6}, v{R+4} row_half_mirror {dp}")
    clean([(R,y,tt),(R+4,y+1,tt+1)])
    p(f"s_nop 1\nv_max_u32_dpp v{R}, v{R+4}, v{R} row_half_mirror {dp}")
    clean([(R,y,tt)])
    p(f"s_nop 1\nv_max_u32_dpp v{R}, v{R}, v{R} row_mirror {dp}")
    clean([(R,y,tt)])
    for msk,sw in ((0xa,16),(0xc,32)):
        p(f"""s_nop 1
        v_mov_b32_dpp v{R}, v{R} row_half_mirror row_mask:{hex(msk)} bank_mask:0xf
        v_mov_b32 v{tt}, v{R}
        s_nop 1
        v_permlane{sw}_swap_b32 v{R}, v{tt}
        s_nop 0
        v_max_u32 v{R}, v{R}, v{tt}""")
        clean([(R,y,tt)])
def moe():
    t=vT; A=sT+7; B=sT+8; C=sT+17; sTHR=sT+14
    R=12; K2=20; K1=21; aC=22; AW=108
    BL=160
    p(f"""s_cmp_ge_u32 s{sSLOT}, 17
    s_cbranch_scc1 L_plain
    v_lshrrev_b32 v{t}, 3, v0
    v_and_b32 v{t+1}, 7, v0
    v_lshlrev_b32 v{t+1}, 3, v{t+1}
    v_lshl_add_u32 v{aC}, v{t}, 7, v{t+1}
    s_mov_b32 s{B}, {CA}""")
    ld="\n".join(f"buffer_load_dwordx2 {vr(R+2*i,2)}, v{aC}, {S4(sWS)}, s{B} offen offset:{i*1024} sc1" for i in range(4))
    aMF=4; aMW=5
    def getw():
        lds_wait(AW-aMF,t+10 if False else AW,C,'eq',0,0)
        STAMP('mwr')
        for s_ in range(12):
            for rd in range(2): p(f"ds_read_b64_tr_b16 {vr(AW+4*s_+2*rd,2)}, v{AW-aMW} offset:{L_MW+s_*1024+rd*512}")
    p(f"""s_cmp_lg_u32 s{sWAVE}, 0
    s_cbranch_scc1 L_nocal
    {ld}
    L_nocal:
    v_bfe_i32 v{K2}, v0, 1, 1
    v_bfe_i32 v{K1}, v0, 0, 1
    v_not_b32 v{K2}, v{K2}
    v_not_b32 v{K1}, v{K1}
    s_lshl_b32 s{A}, s{sWAVE}, 2
    s_add_u32 s{A}, s{A}, {F_MW}
    v_mov_b32 v{AW-aMF}, s{A}
    s_mul_i32 s{A}, s{sWAVE}, 12288
    v_lshl_add_u32 v{AW-aMW}, v0, 3, s{A}
    v_and_b32 v{t}, 7, v0
    v_lshlrev_b32 v{t}, 2, v{t}
    v_add_u32 v{AW-6}, {L_TOP}, v{t}
    s_cmp_ge_u32 s{sSLOT}, 12
    s_cbranch_scc1 L_now""")
    getw()
    lp=p.lab("ca"); ok=p.lab("caok"); md=p.lab("cam")
    p(f"""L_now:
    s_cmp_lg_u32 s{sWAVE}, 0
    s_cbranch_scc1 L_topw
    s_mov_b32 s{C}, {SPIN}
    s_branch {md}
    {lp}:
    {ld}
    {md}:
    s_waitcnt vmcnt(0)
    v_xor_b32 v{t}, v{R+1}, v{R+3}
    v_xor_b32 v{t+1}, v{R+5}, v{R+7}
    v_xor_b32 v{R+1}, s{sTAG}, v{R+1}
    v_xor_b32 v{R+5}, s{sTAG}, v{R+5}
    v_or3_b32 v{t}, v{t}, v{t+1}, v{R+1}
    v_or_b32 v{t}, v{t}, v{R+5}
    v_cmp_ne_u32 vcc, 0, v{t}
    s_nop 0
    s_cbranch_vccz {ok}""")
    spin(C,lp,ok,CFG['casl'])
    p(f"s_branch {lp}\n{ok}:")
    STAMP('car')
    top8(R,K2,K1,t,t+2)
    p(f"ds_write_b32 v{AW-6}, v{R}\ns_branch L_top\nL_topw:\ns_waitcnt vmcnt(0)")
    lds_wait(AW-6,R,C,'eq',-1,0)
    p("L_top:")
    STAMP('top')
    TOK=t+1; aR=t+2
    p(f"""v_bfe_u32 v{TOK}, v{R}, 3, 11
    v_sub_u32 v{TOK}, 2047, v{TOK}
    v_lshrrev_b32 v{t}, 6, v{TOK}
    v_and_b32 v{aR}, 7, v{R}
    v_lshl_add_u32 v{aR}, v{t}, 3, v{aR}
    v_mul_u32_u24 v{aR}, 2560, v{aR}
    v_lshrrev_b32 v{t}, 4, v0
    v_readlane_b32 s{sTHR}, v{R}, 7
    s_cmp_ge_u32 s{sSLOT}, 12
    s_cbranch_scc1 L_down""")
    def deferred(tag):
        p(f"""v_cmp_gt_u32 vcc, s{sTHR}, v{KEY}
        s_nop 0
        s_and_b64 exec, vcc, s[{sCAND}:{sCAND+1}]
        s_cbranch_scc0 L_nd{tag}""")
        out_store()
        p(f"L_nd{tag}:\ns_mov_b64 exec, -1")
    p(f"""v_lshl_add_u32 v{aR}, v{t}, 4, v{aR}
    s_mul_i32 s{A}, s{sWAVE}, 320
    s_add_u32 s{A}, s{A}, {CAND}""")
    ld="\n".join(f"buffer_load_dwordx4 {vr(BL+4*i,4)}, v{aR}, {S4(sWS)}, s{A} offen offset:{i*64} sc1" for i in range(5))
    lp=p.lab("gl"); ok=p.lab("glok"); md=p.lab("glm"); nt=p.lab("noth")
    p(ld)
    p(f"""s_or_b32 s{B}, s{sSLOT}, s{sWAVE}
    s_cbranch_scc1 {nt}
    v_mov_b32 v{t+4}, s{sTHR}
    v_mov_b32 v{t+5}, s{sTAG}
    s_lshl_b32 s{B}, s{sG}, 7
    s_add_u32 s{B}, s{B}, {TH}
    v_mov_b32 v{t+6}, 0
    s_mov_b64 exec, 1
    buffer_store_dwordx2 v[{t+4}:{t+5}], v{t+6}, {S4(sWS)}, s{B} offen sc1
    s_mov_b64 exec, -1
    {nt}:
    s_lshl_b32 s{B}, s{sWAVE}, 11
    s_add_u32 s{B}, s{B}, {L_RED}
    v_lshl_add_u32 v{t+3}, v0, 4, s{B}
    s_mov_b32 s{C}, {SPIN}
    s_branch {md}
    {lp}:
    {ld}
    {md}:
    s_waitcnt vmcnt(0) lgkmcnt(0)
    v_max3_u32 v{t+4}, v{BL}, v{BL+2}, v{BL+4}
    v_max3_u32 v{t+5}, v{BL+6}, v{BL+8}, v{BL+10}
    v_max3_u32 v{t+4}, v{BL+12}, v{BL+14}, v{t+4}
    v_max3_u32 v{t+5}, v{BL+16}, v{BL+18}, v{t+5}
    v_max_u32 v{t+4}, v{t+4}, v{t+5}
    v_cmp_eq_u32 vcc, -1, v{t+4}
    s_nop 0
    {'s_branch' if 'nocand' in CFG['xp'] else 's_cbranch_vccz'} {ok}""")
    spin(C,lp,ok)
    p(f"s_branch {lp}\n{ok}:")
    STAMP('lr')
    G=20; U=24; X=28
    for s_ in range(5):
        for m_,a_ in ((0,G),(1,U)):
            p(f"v_mfma_f32_16x16x32_bf16 {vr(a_,4)}, {vr(AW+8*s_+4*m_,4)}, {vr(BL+4*s_,4)}, {vr(a_,4) if s_ else 0}")
    w0=p.lab("guw0")
    p(f"""s_cmp_eq_u32 s{sWAVE}, 0
    s_cbranch_scc1 {w0}
    s_nop 5
    ds_write_b128 v{t+3}, {vr(G,4)}
    ds_write_b128 v{t+3}, {vr(U,4)} offset:1024
    s_waitcnt lgkmcnt(0)
    s_barrier""")
    deferred('g1')
    END()
    p(f"""{w0}:
    s_mul_i32 s{A}, s{sG}, 12
    s_add_u32 s{A}, s{A}, s{sSLOT}
    s_lshl_b32 s{A}, s{A}, 8
    s_add_u32 s{A}, s{A}, {ACT}
    v_and_b32 v{t+4}, 7, v0
    v_lshlrev_b32 v{t+4}, 4, v{t+4}
    v_lshrrev_b32 v{t+5}, 5, v0
    v_lshl_add_u32 v{t+4}, v{t+5}, 7, v{t+4}
    v_bfe_u32 v{t+5}, v0, 4, 1
    v_lshl_add_u32 v{t+4}, v{t+5}, 3, v{t+4}
    s_barrier""")
    for w_ in range(1,4):
        for m_ in range(2): p(f"ds_read_b128 {vr(X+8*(w_-1)+4*m_,4)}, v{t+3} offset:{w_*2048+m_*1024}")
    p(f"s_mov_b32 s{B}, {hex(f2u(-math.log2(math.e)))}")
    for w_ in range(3):
        p(f"s_waitcnt lgkmcnt({4-2*w_})")
        for k in range(4): p(f"v_pk_add_f32 {vr(G+2*k,2)}, {vr(G+2*k,2)}, {vr(X+8*w_+2*k,2)}")
    p(f"""v_cvt_pk_bf16_f32 v{X}, v{G}, v{G+1}
    v_cvt_pk_bf16_f32 v{X+1}, v{G+2}, v{G+3}
    v_cvt_pk_bf16_f32 v{X+2}, v{U}, v{U+1}
    v_cvt_pk_bf16_f32 v{X+3}, v{U+2}, v{U+3}""")
    for k in range(4): p(f"v_lshlrev_b32 v{G+2*k}, 16, v{X+k}\nv_and_b32 v{G+2*k+1}, 0xffff0000, v{X+k}")
    for k in range(4): p(f"v_mul_f32 v{X+k}, s{B}, v{G+k}")
    for k in range(4): p(f"v_exp_f32 v{X+k}, v{X+k}")
    for k in range(4): p(f"v_add_f32 v{X+k}, 1.0, v{X+k}")
    for k in range(4): p(f"v_rcp_f32 v{X+k}, v{X+k}")
    for k in range(4): p(f"v_mul_f32 v{G+k}, v{G+k}, v{X+k}")
    p(f"v_cvt_pk_bf16_f32 v{X}, v{G}, v{G+1}\nv_cvt_pk_bf16_f32 v{X+1}, v{G+2}, v{G+3}")
    for k in range(2): p(f"v_lshlrev_b32 v{G+2*k}, 16, v{X+k}\nv_and_b32 v{G+2*k+1}, 0xffff0000, v{X+k}")
    p(f"""v_pk_mul_f32 {vr(G,2)}, {vr(G,2)}, {vr(U,2)}
    v_pk_mul_f32 {vr(G+2,2)}, {vr(G+2,2)}, {vr(U+2,2)}
    v_cvt_pk_bf16_f32 v{X}, v{G}, v{G+1}
    v_cvt_pk_bf16_f32 v{X+1}, v{G+2}, v{G+3}
    s_mov_b32 exec_lo, 0x00ff00ff
    s_mov_b32 exec_hi, 0x00ff00ff
    buffer_store_dwordx2 {vr(X,2)}, v{t+4}, {S4(sWS)}, s{A} offen sc1
    s_mov_b64 exec, -1""")
    STAMP('act')
    deferred('g0')
    END()
    HL=20; Y=24; X=28; SG=t+8; aO2=t+9
    p(f"""L_down:
    v_lshl_add_u32 v{aR}, v{t}, 3, v{aR}
    v_mul_u32_u24 v{aO2}, 1280, v{TOK}
    v_lshl_add_u32 v{aO2}, v{t}, 3, v{aO2}
    v_and_b32 v{t+4}, 7, v0
    v_lshlrev_b32 v{t+4}, 4, v{t+4}
    v_lshl_add_u32 v{t+4}, v{t}, 7, v{t+4}
    s_mul_i32 s{sT+1}, s{sG}, 5
    s_add_u32 s{sT+1}, s{sT+1}, s{sSLOT}
    s_sub_u32 s{sT+1}, s{sT+1}, 12
    s_lshl_b32 s{sT+1}, s{sT+1}, 5
    s_add_u32 s{sT+2}, s{sT+1}, {CAND}
    s_mul_i32 s{A}, s{sWAVE}, 6144
    s_add_u32 s{A}, s{A}, {ACT}
    s_add_u32 s{B}, s{A}, 4096""")
    ldh=f"buffer_load_dwordx2 {vr(HL,2)}, v{aR}, {S4(sWS)}, s{sT+2} offen sc1\nbuffer_load_dwordx2 {vr(HL+2,2)}, v{aR}, {S4(sWS)}, s{sT+2} offen offset:1280 sc1"
    p(ldh)
    deferred('d')
    p(f"""v_ashrrev_i32 v{SG}, 31, v{R}
    v_not_b32 v{SG}, v{SG}
    v_or_b32 v{SG}, 0x80000000, v{SG}
    v_xor_b32 v{SG}, v{SG}, v{R}
    v_and_b32 v{SG}, 0xffff0000, v{SG}
    v_mul_f32 v{SG}, {hex(f2u(-math.log2(math.e)))}, v{SG}
    v_exp_f32 v{SG}, v{SG}
    s_lshl_b32 s{C}, s{sWAVE}, 10
    v_add_f32 v{SG}, 1.0, v{SG}
    v_rcp_f32 v{SG}, v{SG}
    s_add_u32 s{C}, s{C}, {L_RED}
    v_lshl_add_u32 v{t+3}, v0, 4, s{C}""")
    bf16r(SG,SG)
    lp=p.lab("hl"); ok=p.lab("hlok"); md=p.lab("hlm")
    p(f"""s_mov_b32 s{C}, {SPIN}
    s_branch {md}
    {lp}:
    {ldh}
    {md}:
    s_waitcnt vmcnt(0)
    v_max_u32 v{t+5}, v{HL}, v{HL+2}
    v_cmp_eq_u32 vcc, -1, v{t+5}
    s_nop 0
    {'s_branch' if CFG['xp'] else 's_cbranch_vccz'} {ok}""")
    spin(C,lp,ok)
    p(f"s_branch {lp}\n{ok}:")
    getw()
    ld="\n".join([f"buffer_load_dwordx4 {vr(BL+4*i,4)}, v{t+4}, {S4(sWS)}, s{A if i<8 else B} offen offset:{(i%8)*512} sc1" for i in range(12)])
    lp=p.lab("al"); ok=p.lab("alok")
    p(f"""s_mov_b32 s{C}, {SPIN}
    {lp}:
    {ld}
    s_waitcnt vmcnt(8)
    v_max3_u32 v{t+5}, v{BL}, v{BL+2}, v{BL+4}
    v_max3_u32 v{t+6}, v{BL+6}, v{BL+8}, v{BL+10}
    v_max3_u32 v{t+5}, v{BL+12}, v{BL+14}, v{t+5}""")
    for i in range(4,12):
        if i%4==0: p(f"s_waitcnt vmcnt({8-i})")
        p(f"v_max3_u32 v{t+5+(i&1)}, v{BL+4*i}, v{BL+4*i+2}, v{t+5+(i&1)}")
    p(f"""v_max_u32 v{t+5}, v{t+5}, v{t+6}
    v_cmp_eq_u32 vcc, -1, v{t+5}
    s_waitcnt lgkmcnt(0)
    s_cbranch_vccz {ok}""")
    spin(C,lp,ok,CFG['acsl'])
    p(f"s_branch {lp}\n{ok}:")
    STAMP('ar')
    for s_ in range(12): p(f"v_mfma_f32_16x16x32_bf16 {vr(Y,4)}, {vr(AW+4*s_,4)}, {vr(BL+4*s_,4)}, {vr(Y,4) if s_ else 0}")
    w0=p.lab("dnw0")
    p(f"""s_cmp_eq_u32 s{sWAVE}, 0
    s_cbranch_scc1 {w0}
    s_nop 5
    ds_write_b128 v{t+3}, {vr(Y,4)}
    s_waitcnt lgkmcnt(0)
    s_barrier""")
    END()
    p(f"""{w0}:
    v_lshlrev_b32 v{X+12}, 16, v{HL}
    v_and_b32 v{X+13}, 0xffff0000, v{HL}
    v_lshlrev_b32 v{X+14}, 16, v{HL+1}
    v_and_b32 v{X+15}, 0xffff0000, v{HL+1}
    v_lshlrev_b32 v{X+16}, 16, v{HL+2}
    v_and_b32 v{X+17}, 0xffff0000, v{HL+2}
    v_lshlrev_b32 v{X+18}, 16, v{HL+3}
    v_and_b32 v{X+19}, 0xffff0000, v{HL+3}
    s_barrier""")
    for w_ in range(1,4): p(f"ds_read_b128 {vr(X+4*(w_-1),4)}, v{t+3} offset:{w_*1024}")
    for w_ in range(3):
        p(f"s_waitcnt lgkmcnt({2-w_})")
        for k in range(2): p(f"v_pk_add_f32 {vr(Y+2*k,2)}, {vr(Y+2*k,2)}, {vr(X+4*w_+2*k,2)}")
    def rnd():
        p(f"v_cvt_pk_bf16_f32 v{X}, v{Y}, v{Y+1}\nv_cvt_pk_bf16_f32 v{X+1}, v{Y+2}, v{Y+3}")
    def unp():
        for k in range(2): p(f"v_lshlrev_b32 v{Y+2*k}, 16, v{X+k}\nv_and_b32 v{Y+2*k+1}, 0xffff0000, v{X+k}")
    rnd(); unp()
    for k in range(4): p(f"v_mul_f32 v{Y+k}, v{SG}, v{Y+k}")
    rnd(); unp()
    for k in range(2): p(f"v_pk_add_f32 {vr(Y+2*k,2)}, {vr(Y+2*k,2)}, {vr(X+12+2*k,2)}")
    rnd(); unp()
    for k in range(2): p(f"v_pk_add_f32 {vr(Y+2*k,2)}, {vr(Y+2*k,2)}, {vr(X+16+2*k,2)}")
    rnd()
    p(f"""s_mov_b32 exec_lo, 0x00ff00ff
    s_mov_b32 exec_hi, 0x00ff00ff
    buffer_store_dwordx2 {vr(X,2)}, v{aO2}, {S4(sOUT)}, s{sT+1} offen sc1""")
    STAMP('fin')
    END()
    lp=p.lab("th"); ok=p.lab("thok")
    p(f"""L_plain:
    s_lshl_b32 s{B}, s{sG}, 7
    s_add_u32 s{B}, s{B}, {TH}
    v_mov_b32 v{t}, 0
    s_mov_b32 s{C}, {SPIN}
    {lp}:
    s_sleep 16
    buffer_load_dwordx2 v[{t+2}:{t+3}], v{t}, {S4(sWS)}, s{B} offen sc1
    s_waitcnt vmcnt(0)
    v_cmp_ne_u32 vcc, s{sTAG}, v{t+3}
    s_nop 0
    s_cbranch_vccz {ok}""")
    spin(C,lp,ok)
    p(f"""s_branch {lp}
    {ok}:
    v_readfirstlane_b32 s{sTHR}, v{t+2}
    s_nop 1""")
    deferred('p')
    STAMP('fin')

def build():
    prologue()
    steps=loader()
    helperA(steps)
    p("s_branch L_mw")
    helperB(steps)
    p("L_mw:")
    moe_weights()
    END()
    p("L_comp:")
    if CFG['prio']: p(f"s_setprio {CFG['prio']}")
    p("s_waitcnt lgkmcnt(0)")
    STAMP('start')
    prologue2(1)
    if CFG['cpf']: code_pf()
    srd(((sX,2621440),))
    clears(0)
    if CFG['clr']==0: clears(1)
    att_setup()
    gemm_setup()
    p("s_waitcnt lgkmcnt(0)")
    mktag()
    p(f"""    s_cmp_eq_u32 s{sLC}, 15
    s_cbranch_scc1 L_gS
    s_cmp_eq_u32 s{sTY}, 2
    s_cbranch_scc1 L_gV""")
    gemm_loop('T'); gemm_epi('T'); p("s_branch L_att")
    p("L_gS:"); idle_gemm(); p("s_branch L_att")
    p("L_gV:"); gemm_loop('V'); gemm_epi('V')
    p("L_att:")
    att_go()
    for w in range(4): att_variant(w)
    att_fin()
    wo_main()
    if CFG['stop']<=3:
        p(f"s_and_b64 exec, s[{sCAND}:{sCAND+1}], -1\ns_cbranch_scc0 L_noo2"); out_store(); p("L_noo2:")
    else: moe()
    END()
    att_cold()
    for c in COLD: p(c)
    p("L_exit:\ns_endpgm")
build()
errs=check(p.L)
hdr=f"""; generated by work/k/gen.py (own generator script)
; @launch grid=(256,1,1) block=(512,1,1) lds=163840
.amdgcn_target "amdgcn-amd-amdhsa--gfx950"
.text
.globl {NAME}_kernel
.p2align 8
.type {NAME}_kernel,@function
{NAME}_kernel:
"""
ftr=f""".section .rodata,"a"
.p2align 6
.amdhsa_kernel {NAME}_kernel
  .amdhsa_next_free_vgpr 256
  .amdhsa_next_free_sgpr 102
  .amdhsa_accum_offset 256
  .amdhsa_group_segment_fixed_size 0
  .amdhsa_kernarg_size 88
  .amdhsa_user_sgpr_count 2
  .amdhsa_user_sgpr_kernarg_segment_ptr 1
  .amdhsa_system_sgpr_workgroup_id_x 1
.end_amdhsa_kernel
"""
open(sys.argv[1],"w").write(hdr+p.text()+ftr)

import subprocess
r=subprocess.run(["clang","-x","assembler","-target","amdgcn-amd-amdhsa","-mcpu=gfx950",sys.argv[1],"-o",sys.argv[1]+".co"],capture_output=True,text=True)
if r.returncode: print(r.stderr[:3000]); sys.exit(1)
r=subprocess.run(["python3","cdna_unwritten_srd_check.py",sys.argv[1]+".co"],capture_output=True,text=True)
if r.returncode: print("SRDCHECK:",r.stdout[-3000:],r.stderr[-1000:])
r=subprocess.run("llvm-size -A "+sys.argv[1]+".co | grep text",shell=True,capture_output=True,text=True); print(r.stdout.strip())
if errs: sys.exit(1)
```

```python
import sys, math
from asmlib import *
NAME="sequential_preLN__sliding_block__moe_arch_mod__prompt"
CFG=dict(hclr=0, cst=(3,3), hsent=0, hkv=0, hgate='G1', hrs=0, osent=1, ogr=(2,3,5,2,3,5), opoll='half', osl=(0,0), oini=10, orem=25, clate=2, oprb=1, odn=0, hstep=6, qpol='', apol='', cpol='', wb=(), wbs=31, ht=0, hpoll=0, hsl=1, wog2=0, hearly=1, stg=6, stb=0, ord='xw,xw,xw,xw,xw,xw,xw,xw,xw,xw', amp=None, wose=2, late1=1, sdef=(1,1,1,1), pt2=8, qpair2=0, nacc=8, sfirst=1, prio=0, smode='dot', sfill=(), acsl=0, casl=0, xp=(), dw3=0, wla=7, wwe=2, dgate='O1', dstart='O1', gstart='WOD', mdep=1, ddep=12, qpair=0, mpair=0, wpair=0, xnt=0, wnt=0, tpol2='', wtw='no', mtw='w3', wothr1=4, mb=(6,6), mg=('WOD','PR','PR','O1'), mpf=0, mgate='b3', hsplit=0, cpf=1, npf=(0,)*10, wogs=5, clr=0, wot=(), wtpol='', seqs=None, xpol='nt', wpol='', tpol='', wopol='', mpol='', cal=None, opol='', st=['start','b0|hb0','gend|hb9','E1|hE1','st|halo|clr','fl|g2|wo','fseen|h2','kv','aend','ost'], pt=8, wothr=16, wogate=1, h2sl=1, noh2=0, nowo=0, wos=(0,0,0), sched=(1,2,1,1,1,1,1,0,0,0), dbg=0, stop=99, prof=0, rot=('0055','36947580','05162738'), force_slow=0, noclr=0, pre=2, ldst=0, nomfma=0, nohello=0)
for a in sys.argv[2:]:
    k,v=a.split("="); CFG[k]=eval(v)
QB,KB,VB,KH,VH,OB=[i*0x280000 for i in range(6)]
CAND=0xF00000
PS=0xFA0000
CA=0xFE0000
ACT=0xFE1000
HB=0x1000000
PROF=0x1300000
H1=0x1280000; H2=0x1281000; EPO=0x1282000; TH=0x1283000
STP=0x1680000; STX=0x1780000
FO=0x1700000; OB2=0x1400000; FL=0x12A0000; FH=0x1740000
L_STG=0; L_KV=10240; L_WO=55296; L_MISC=157696; L_MW=0
L_CS=L_MISC
L_SA=L_MISC+512
L_SR=L_SA+1024
L_MODE=L_SR+512
L_FLG=L_MODE+64
F_G1,F_G2,F_H2,F_STG,F_SCP,F_DONE,F_WOR,F_MW=[L_FLG+4*i for i in (0,1,2,4,8,9,10,12)]
L_SWS=L_FLG+80; F_O1=L_FLG+44; F_WOD=L_FLG+64; F_PR=L_FLG+68; F_WO2=L_FLG+72; F_PS=L_FLG+76; F_FS=L_FLG+84
L_KEYS=L_FLG+128
L_CA=L_KEYS+256; L_TOP=L_CA+64
L_RED=L_WO
sX,sW,sWO,sWG,sWU,sWD,sOUT,sWS,sDBG,sWR=[4+4*i for i in range(10)]
sWAVE,sG,sSLOT,sRQ,sHH,sRB,sCT,sMODE,sEP,sTAG=range(44,54)
sT=54
sLO=76
sPROF=80
p=P()
COLD=[]
CALI=lambda: 's_memtime' if CFG['cal'][1]>20000 else 's_memrealtime'
def STAMP(name,w=0):
    if CFG['amp']:
        a=CFG['amp']
        if name=='entry': p(f"s_memrealtime s[{sPROF+8}:{sPROF+9}]")
        for k in (0,1):
            if name==a[k]:
                p(f"{'s_memrealtime' if a[2]=='r' else 's_memtime'} s[{sPROF+2*k}:{sPROF+2*k+1}]")
                if w: p("s_waitcnt lgkmcnt(0)")
    if CFG['cal'] and name in CFG['cal'][0].split('|'):
        p(f"{CALI()} s[{sPROF}:{sPROF+1}]")
        if w: p("s_waitcnt lgkmcnt(0)")
    i=[k for k,n in enumerate(CFG['st']) if name in n.split('|')]
    if CFG['prof'] and i:
        i=i[0]
        p(f"{'s_memrealtime' if CFG['prof']==2 else 's_memtime'} s[{sPROF+2*i}:{sPROF+2*i+1}]")
        if w: p("s_waitcnt lgkmcnt(0)")
def PROFDUMP():
    if not CFG['prof']: return
    p("s_waitcnt vmcnt(0) lgkmcnt(0)")
    p("s_mov_b64 exec, -1")
    for i in range(10): p(f"v_mov_b32 v{2+i}, s{sPROF+2*i}")
    p(f"""s_lshl_b32 s{sT}, s2, 3
    s_add_u32 s{sT}, s{sT}, s{sWAVE}
    s_lshl_b32 s{sT}, s{sT}, 6
    s_add_u32 s{sT}, s{sT}, {PROF}
    v_mov_b32 v1, 0
    s_mov_b64 exec, 1
    buffer_store_dwordx4 v[2:5], v1, s[{sWS}:{sWS+3}], s{sT} offen
    buffer_store_dwordx4 v[6:9], v1, s[{sWS}:{sWS+3}], s{sT} offen offset:16
    buffer_store_dwordx2 v[10:11], v1, s[{sWS}:{sWS+3}], s{sT} offen offset:32""")
def END():
    PROFDUMP()
    if CFG['amp']:
        a=CFG['amp']
        lp=p.lab("amp"); ok=p.lab("ampok")
        p(f"""s_waitcnt vmcnt(0) lgkmcnt(0)
        s_cmp_eq_u32 s{sPROF+2}, 0
        s_cbranch_scc1 {ok}
        s_cmp_lg_u32 s{sWAVE}, {a[5] if len(a)>5 else 0}
        s_cbranch_scc1 {ok}""")
        if a[4]>=0: p(f"s_cmp_lg_u32 s2, {a[4]}\ns_cbranch_scc1 {ok}")
        p(f"""s_sub_u32 s{sPROF+6}, s{sPROF+2}, s{sPROF}
        s_mul_i32 s{sPROF+6}, s{sPROF+6}, {a[3]}
        s_lshr_b32 s{sPROF+6}, s{sPROF+6}, 4
        s_min_u32 s{sPROF+6}, s{sPROF+6}, 100000
        s_add_u32 s{sPROF+6}, s{sPROF+6}, 3000
        s_mov_b32 s{sPROF+4}, 100000
        {lp}:
        s_sleep 2
        s_memrealtime s[{sPROF+2}:{sPROF+3}]
        s_sub_u32 s{sPROF+4}, s{sPROF+4}, 1
        s_cbranch_scc1 {ok}
        s_waitcnt lgkmcnt(0)
        s_sub_u32 s{sPROF+2}, s{sPROF+2}, s{sPROF+8}
        s_cmp_lt_u32 s{sPROF+2}, s{sPROF+6}
        s_cbranch_scc1 {lp}
        {ok}:""")
    if CFG['cal']:
        lp=p.lab("cal"); ok=p.lab("calok")
        p(f"""s_waitcnt vmcnt(0) lgkmcnt(0)
        s_cmp_eq_u32 s{sPROF}, 0
        s_cbranch_scc1 {ok}
        s_cmp_ge_u32 s{sWAVE}, 4
        s_cbranch_scc1 {ok}
        s_mov_b32 s{sPROF+4}, 100000
        {lp}:
        s_sleep 2
        {CALI()} s[{sPROF+2}:{sPROF+3}]
        s_sub_u32 s{sPROF+4}, s{sPROF+4}, 1
        s_cbranch_scc1 {ok}
        s_waitcnt lgkmcnt(0)
        s_sub_u32 s{sPROF+2}, s{sPROF+2}, s{sPROF}
        s_cmp_lt_u32 s{sPROF+2}, {CFG['cal'][1]}
        s_cbranch_scc1 {lp}
        {ok}:""")
    p("s_endpgm")
S4=lambda r:f"s[{r}:{r+3}]"
SPIN=1<<18

def srd(lst):
    for r,n in lst: p(f"s_mov_b32 s{r+2}, {n}\ns_mov_b32 s{r+3}, 0x20000")
def prologue():
    STAMP('entry')
    p(f"""s_cmp_ge_u32 s2, 256
    s_cbranch_scc1 L_exit
    s_load_dwordx2 s[{sX}:{sX+1}], s[0:1], 0
    s_load_dwordx2 s[{sW}:{sW+1}], s[0:1], 8
    s_load_dwordx2 s[{sWS}:{sWS+1}], s[0:1], 80
    v_lshrrev_b32 v1, 6, v0
    v_and_b32 v0, 63, v0
    v_readfirstlane_b32 s{sWAVE}, v1
    s_and_b32 s{sG}, s2, 7
    s_lshr_b32 s{sSLOT}, s2, 3
    s_lshr_b32 s{sRQ}, s{sG}, 1
    s_and_b32 s{sHH}, s{sG}, 1
    s_and_b32 s{sRB}, s{sSLOT}, 3
    s_lshr_b32 s{sCT}, s{sSLOT}, 2""")
    if CFG['cal']: p(f"s_mov_b32 s{sPROF}, 0")
    if CFG['amp']: p(f"s_mov_b32 s{sPROF+2}, 0")
    if CFG['prof']:
        for i in range(1,10): p(f"s_mov_b32 s{sPROF+2*i}, 0")
    p(f"""s_cmp_lt_u32 s{sWAVE}, 4
    s_cbranch_scc1 L_comp""")
def prologue2(comp=0):
    if comp:
        p(f"""s_mov_b32 s{sTAG}, {EPO}
        s_load_dword s{sEP}, s[{sWS}:{sWS+1}], s{sTAG}
        s_load_dwordx2 s[{sWR}:{sWR+1}], s[0:1], 32
        s_load_dwordx2 s[{sOUT}:{sOUT+1}], s[0:1], 64""")
        srd(((sWS,268435456),(sWR,1280),(sOUT,2621440)))
        p(f"""s_mov_b32 s{sLO}, -1
        s_mov_b32 s{sLO+1}, 0
        s_mov_b32 s{sLO+2}, 0xfffff
        s_mov_b32 s{sLO+3}, 0xfffff""")
        return
    p(f"""s_mov_b32 s{sTAG}, {EPO}
    s_load_dword s{sEP}, s[{sWS}:{sWS+1}], s{sTAG}
    s_load_dwordx2 s[{sWO}:{sWO+1}], s[0:1], 16
    s_load_dwordx2 s[{sWR}:{sWR+1}], s[0:1], 32
    s_load_dwordx2 s[{sWG}:{sWG+1}], s[0:1], 40
    s_load_dwordx2 s[{sWU}:{sWU+1}], s[0:1], 48
    s_load_dwordx2 s[{sWD}:{sWD+1}], s[0:1], 56
    s_load_dwordx2 s[{sOUT}:{sOUT+1}], s[0:1], 64""")
    srd(((sWS,268435456),(sWO,819200),(sWR,1280),(sWG,1966080),(sWU,1966080),(sWD,1966080),(sOUT,2621440)))
    p(f"""s_mov_b32 s{sLO}, -1
    s_mov_b32 s{sLO+1}, 0
    s_mov_b32 s{sLO+2}, 0xfffff
    s_mov_b32 s{sLO+3}, 0xfffff""")
def mktag():
    p(f"""s_mul_i32 s{sTAG}, s{sEP}, 0x9e3779b1
    s_add_u32 s{sTAG}, s{sTAG}, 0x7f4a7c15
    s_and_b32 s{sTAG}, s{sTAG}, -16""")
def colbyte(dst, lc):
    t=sT+18
    p(f"""s_mul_i32 s{t}, s{lc}, 52
    s_lshr_b32 s{t}, s{t}, 8
    s_mul_i32 s{t+1}, s{t}, 5
    s_sub_u32 s{t+1}, s{lc}, s{t+1}
    s_mul_i32 s{t}, s{t}, 1280
    s_lshl_b32 s{t+1}, s{t+1}, 7
    s_mul_i32 s{dst}, s{sHH}, 640
    s_add_u32 s{dst}, s{dst}, s{t}
    s_add_u32 s{dst}, s{dst}, s{t+1}""")

def loader():
    CA_=sT+1; CB_=sT+2; CH=sT+3; XO=sT+4; WO_=sT+5; LB=sT+6; A=sT+7; B=sT+8; OFF=sT+9; SEQ=sT+10
    vX=2; vW=6; vt=10
    p(f"""s_sub_u32 s{HW}, s{sWAVE}, 4
    s_lshl_b32 s{A}, s{sCT}, 1
    s_add_u32 s{B}, s{A}, 1
    s_min_u32 s{B}, s{B}, 14""")
    colbyte(CA_,A); colbyte(CB_,B)
    p(f"""v_lshrrev_b32 v{vt}, 3, v0
    v_mul_u32_u24 v{vX}, 1280, v{vt}
    v_lshrrev_b32 v{vt+1}, 4, v0
    v_and_b32 v{vt+2}, 7, v0
    v_xor_b32 v{vt+2}, v{vt+2}, v{vt+1}
    v_lshl_add_u32 v{vX}, v{vt+2}, 4, v{vX}
    v_xor_b32 v{vX+1}, 64, v{vX}
    v_add_u32 v{vX+1}, {10240-1024}, v{vX+1}
    v_add_u32 v{vX+2}, {2*(10240-1024)}, v{vX}
    v_add_u32 v{vX+3}, {2*(10240-1024)}, v{vX+1}
    v_lshlrev_b32 v{vt+2}, 2, v{vt+1}
    v_and_b32 v{vt+3}, 15, v0
    v_xor_b32 v{vt+2}, v{vt+2}, v{vt+3}
    v_cmp_lt_u32 vcc, 7, v{vt+2}
    v_mov_b32 v{vt+3}, s{CA_}
    v_mov_b32 v{vt+4}, s{CB_}
    v_cndmask_b32 v{vt+3}, v{vt+3}, v{vt+4}, vcc
    v_and_b32 v{vt+2}, 7, v{vt+2}
    v_lshl_add_u32 v{vt+3}, v{vt+2}, 4, v{vt+3}
    v_mul_u32_u24 v{vW}, 3840, v{vt+1}
    v_add_u32 v{vW}, v{vW}, v{vt+3}""")
    for i in range(1,4): p(f"v_add_u32 v{vW+i}, {i*(4*3840-1024)}, v{vW}")
    ta,tc,tg=CFG['rot']
    pk=lambda t: sum(int(v)<<(4*i) for i,v in enumerate(t))
    p(f"""s_lshl_b32 s{A}, s{sRB}, 2
    s_lshr_b32 s{CH}, {pk(ta)}, s{A}
    s_and_b32 s{CH}, s{CH}, 15
    s_lshl_b32 s{A}, s{sCT}, 2
    s_lshr_b32 s{A}, {hex(pk(tc))}, s{A}
    s_and_b32 s{A}, s{A}, 15
    s_add_u32 s{CH}, s{CH}, s{A}
    s_lshl_b32 s{A}, s{sG}, 2
    s_lshr_b32 s{A}, {hex(pk(tg))}, s{A}
    s_and_b32 s{OFF}, s{A}, 15""")
    seqs=CFG['seqs']
    if seqs:
        n=len(seqs)
        p(f"""s_mul_i32 s{A}, s{CH}, {-(-2048//n)}
        s_lshr_b32 s{A}, s{A}, 11
        s_mul_i32 s{A}, s{A}, {n}
        s_sub_u32 s{CH}, s{CH}, s{A}""")
        for i,q in enumerate(seqs):
            assert sorted(q)==list("0123456789")
            if i: p(f"s_cmp_eq_u32 s{CH}, {i}\ns_cselect_b32 s{SEQ}, {hex(pk(q[:8]))}, s{SEQ}\ns_cselect_b32 s{SEQ+1}, {hex(pk(q[8:]))}, s{SEQ+1}")
            else: p(f"s_mov_b32 s{SEQ}, {hex(pk(q[:8]))}\ns_mov_b32 s{SEQ+1}, {hex(pk(q[8:]))}")
    else:
        p(f"""s_add_u32 s{CH}, s{CH}, s{OFF}
    s_mul_i32 s{A}, s{CH}, 205
    s_lshr_b32 s{A}, s{A}, 11
    s_mul_i32 s{A}, s{A}, 10
    s_sub_u32 s{CH}, s{CH}, s{A}""")
    p(f"""
    s_lshl_b32 s{A}, s{sRQ}, 2
    s_add_u32 s{A}, s{A}, s{sRB}
    s_lshl_b32 s{A}, s{A}, 2
    s_add_u32 s{A}, s{A}, s{HW}
    s_mul_i32 s{XO}, s{A}, {32*1280}
    s_mul_i32 s{WO_}, s{HW}, {16*3840}
    s_lshl_b32 s{LB}, s{HW}, 12""")
    CHW=SEQ
    p(f"s_mov_b32 s{CHW}, s{CH}")
    nx=dict(x=0,w=0)
    def issue(order,lim):
        global OPS
        for k in order:
            c=nx[k]; nx[k]+=1; assert c<=min(9,lim)
            slot=(c%4)*32768; ch=CH if k=='x' else CHW
            if k=='x': p(f"""s_lshl_b32 s{A}, s{ch}, 7
                s_add_u32 m0, s{LB}, {slot}
                s_add_u32 s{A}, s{A}, s{XO}""")
            else: p(f"""s_mul_i32 s{A}, s{ch}, {64*3840}
                s_add_u32 m0, s{LB}, {slot+16384}
                s_add_u32 s{A}, s{A}, s{WO_}""")
            for i in range(4):
                if k=='x': p(f"buffer_load_dwordx4 v{vX+i}, {S4(sX)}, s{A} offen offset:{i*1024} {CFG['xpol'] if c<CFG['xnt'] else ''} lds")
                else: p(f"buffer_load_dwordx4 v{vW+i}, {S4(sW)}, s{A} offen offset:{i*1024} {'nt' if c<CFG['wnt'] else CFG['wpol']} lds")
            p(f"""s_add_u32 s{ch}, s{ch}, 1
            s_cmp_eq_u32 s{ch}, 10
            s_cselect_b32 s{ch}, 0, s{ch}""")
            OPS+=[c]*4
    ORD=CFG['ord'].split(',')
    srd(((sX,2621440),(sW,2457600)))
    p("s_waitcnt lgkmcnt(0)")
    STAMP('i0')
    for c in range(1):
        issue(ORD[0],3); STAMP('i%d'%(c+1))
        if c==0:
            prologue2()
            p(f"""v_cmp_lt_u32 vcc, 7, v0
            v_lshlrev_b32 v{vt}, 4, v0
            v_add_u32 v{vt}, {L_FLG}, v{vt}
            v_cndmask_b32 v{vt+2}, 0, -1, vcc
            v_cndmask_b32 v{vt+3}, 0, -1, vcc
            v_cndmask_b32 v{vt+4}, 0, -1, vcc
            v_cndmask_b32 v{vt+5}, 0, -1, vcc
            ds_write_b128 v{vt}, v[{vt+2}:{vt+5}]""")
            early()
    p("s_waitcnt lgkmcnt(0)")
    mktag()
    stats_setup()
    p(f"s_cmp_ge_u32 s{HW}, 2\ns_cbranch_scc1 L_helperB")
    nx0=dict(nx); ops0=list(OPS)
    def steps(hook,isB):
        global OPS
        nx.update(nx0); OPS=list(ops0)
        STAMP('i1s')
        issue(ORD[1],3)
        STAMP('i1e')
        if CFG['hclr']: hclear_setup(isB)
        for c in range(8):
            sd=CFG['sdef']
            if c==0 and -1 in sd:
                assert ORD[0][0]=='x'; p(f"s_waitcnt vmcnt({len(OPS)-4})")
                STAMP('x0')
                fill=stats(0)
                for k in range(4):
                    if sd[k]==-1: p(fill[k])
                if max(sd)==-1: stats_red()
            vmwait(c)
            p("s_barrier")
            STAMP('ld%d'%c)
            if c==0 and -1 not in sd: fill=stats(0)
            if c==CFG['stg'] and CFG['stb']: stats_get(); hook(100)
            if CFG['hclr']: hclear(c,isB)
            issue(ORD[2+c],c+3)
            if c==0: p("s_waitcnt lgkmcnt(0)")
            for k in range(4):
                if sd[k]==c: p(fill[k])
            if c==max(0,max(sd)):
                if max(sd)>=0: stats_red()
                stats_pub(); OPS.append('stw')
            if c==CFG['stg'] and not CFG['stb']: stats_get(); hook(100)
            hook(c)
        assert nx==dict(x=10,w=10)
    return steps
aS=44; dS=64; sacc=60; sone=43; sDBL=sDBG; sSTP=sDBG+1
def stats_setup():
    vt=10
    tc=[int(x) for x in CFG['rot'][1]]
    assert not CFG['seqs'] and sorted(tc+[(tc[7]+1)%10,(tc[7]+2)%10])==list(range(10))
    p(f"""s_lshl_b32 s{sT+16}, s{HW}, 12
    v_bfe_u32 v{vt}, v0, 1, 3
    v_lshrrev_b32 v{vt+1}, 5, v0
    v_lshlrev_b32 v{vt+1}, 2, v{vt+1}
    v_xor_b32 v{vt}, v{vt}, v{vt+1}
    v_lshlrev_b32 v{vt}, 4, v{vt}
    v_and_b32 v{vt+1}, 31, v0
    v_lshl_add_u32 v{vt}, v{vt+1}, 7, v{vt}
    v_add_u32 v{aS}, s{sT+16}, v{vt}
    v_mov_b32 v{sone}, 0x3f803f80
    s_lshl_b32 s{sSTP}, s{sG}, 2
    s_add_u32 s{sSTP}, s{sSTP}, s{sRB}
    s_lshl_b32 s{sSTP}, s{sSTP}, 14
    s_lshl_b32 s{sT+16}, s{HW}, 9
    s_add_u32 s{sSTP}, s{sSTP}, s{sT+16}
    s_add_u32 s{sSTP}, s{sSTP}, {STP}
    v_lshrrev_b32 v{vt}, 5, v0
    v_lshlrev_b32 v{vt}, 11, v{vt}
    v_lshl_add_u32 v{aS+4}, v{vt+1}, 4, v{vt}
    s_lshl_b32 s{sT+16}, s{sCT}, 11
    s_cmp_eq_u32 s{sCT}, 7
    s_cselect_b32 s{sT+16}, {STX-STP}, s{sT+16}
    v_lshl_add_u32 v{aS+5}, v{vt+1}, 4, s{sT+16}""")
    for i in range(1,4): p(f"v_xor_b32 v{aS+i}, {16*i}, v{aS}")
    for i in range(4): p(f"v_mov_b32 v{sacc+i}, 0")
    if CFG['smode'] in ('dotx','dotc'):
        for i in range(2*CFG['nacc']): p(f"v_mov_b32 v{102+i}, 0")
def stats(c):
    if 'nostats' in CFG['xp']: return ['s_nop 0']*4
    for i in range(4): p(f"ds_read_b128 {vr(dS+4*i,4)}, v{aS+i} offset:{c*32768}")
    L=[]
    for i in range(4):
        g=f"s_waitcnt lgkmcnt({3-i})"
        for j in range(4):
            r=dS+4*i+j
            u=80+2*(j&1)
            if CFG['smode']=='dotx':
                a=102+2*((4*i+j)%CFG['nacc']); g+=f"\nv_dot2_f32_bf16 v{a}, v{r}, v{sone}, v{a}\nv_dot2_f32_bf16 v{a+1}, v{r}, v{r}, v{a+1}"
            elif CFG['smode']=='dotc':
                a=102+2*((4*i+j)%CFG['nacc']); g+=f"\nv_dot2c_f32_bf16 v{a}, v{r}, v{sone}\nv_dot2c_f32_bf16 v{a+1}, v{r}, v{r}"
            elif CFG['smode']=='dot': g+=f"\nv_dot2_f32_bf16 v{sacc+(j&1)}, v{r}, v{sone}, v{sacc+(j&1)}\nv_dot2_f32_bf16 v{sacc+2+(j&1)}, v{r}, v{r}, v{sacc+2+(j&1)}"
            elif CFG['smode']=='valu': g+=f"\nv_lshlrev_b32 v{u}, 16, v{r}\nv_and_b32 v{u+1}, 0xffff0000, v{r}\nv_add_f32 v{sacc}, v{sacc}, v{u}\nv_fmac_f32 v{sacc+2}, v{u}, v{u}\nv_add_f32 v{sacc+1}, v{sacc+1}, v{u+1}\nv_fmac_f32 v{sacc+3}, v{u+1}, v{u+1}"
            elif CFG['smode']=='pk': g+=f"\nv_lshlrev_b32 v{u}, 16, v{r}\nv_and_b32 v{u+1}, 0xffff0000, v{r}\nv_pk_add_f32 v[{sacc}:{sacc+1}], v[{sacc}:{sacc+1}], v[{u}:{u+1}]\nv_pk_fma_f32 v[{sacc+2}:{sacc+3}], v[{u}:{u+1}], v[{u}:{u+1}], v[{sacc+2}:{sacc+3}]"
        L.append(g)
    return L
def stats_red():
    t=sacc
    p(f"""s_nop 1
    v_add_f32 v{t}, v{t}, v{t+1}
    v_add_f32 v{t+1}, v{t+2}, v{t+3}
    v_mov_b32 v{t+2}, s{sTAG}
    s_nop 0
    v_permlane32_swap_b32 v{t}, v{t+1}
    s_nop 0
    v_add_f32 v{t}, v{t}, v{t+1}
    v_mov_b32 v{t+1}, v{t}
    s_nop 1
    v_permlane32_swap_b32 v{t}, v{t+1}""")
def stats_pub():
    t=sacc
    p(f"""s_mov_b64 exec, s[{sLO}:{sLO+1}]
    buffer_store_dwordx4 {vr(t,4)}, v{aS+5}, {S4(sWS)}, s{sSTP} offen sc1
    s_mov_b64 exec, -1""")
def stats_ld():
    return "\n".join(f"s_add_u32 s{sSTP+1}, s{sSTP}, {4096*i}\nbuffer_load_dwordx4 {vr(dS+4*i,4)}, v{aS+4}, {S4(sWS)}, s{sSTP+1} offen sc1" for i in range(4))
def stats_get():
    p(stats_ld()); OPS.extend(['stp']*4)
def stats_fin(t,B):
    vmwait('stp')
    lp=p.lab("stl"); ok=p.lab("stok"); rt=p.lab("strt")
    p(f"""s_mov_b32 s{B}, {SPIN}
    {lp}:
    v_xor_b32 v{t}, v{dS+2}, v{dS+6}
    v_xor_b32 v{t+1}, v{dS+10}, v{dS+14}
    v_xor_b32 v{t+2}, s{sTAG}, v{dS+2}
    v_xor_b32 v{t+3}, s{sTAG}, v{dS+10}
    v_or3_b32 v{t}, v{t}, v{t+1}, v{t+2}
    v_or_b32 v{t}, v{t}, v{t+3}
    v_cmp_ne_u32 vcc, 0, v{t}
    v_add_f32 v{t+1}, v{dS}, v{dS+4}
    v_add_f32 v{t+2}, v{dS+1}, v{dS+5}
    s_cbranch_vccnz {rt}
    {ok}:""")
    n0=len(p.L)
    p(f"{rt}:"); spin(B,lp,ok,1); p(stats_ld()); p(f"s_waitcnt vmcnt(0)\ns_branch {lp}")
    COLD.append("\n".join(p.L[n0:])); del p.L[n0:]
    p(f"""v_add_f32 v{t+3}, v{dS+8}, v{dS+12}
    v_add_f32 v{t+4}, v{dS+9}, v{dS+13}
    v_add_f32 v{t+1}, v{t+1}, v{t+3}
    v_add_f32 v{t+2}, v{t+2}, v{t+4}
    s_nop 1
    v_permlane32_swap_b32 v{t+1}, v{t+2}
    s_nop 0
    v_add_f32 v{t+1}, v{t+1}, v{t+2}
    v_mul_f32 v{t+1}, {1/640!r}, v{t+1}
    v_mov_b32 v{t+2}, v{t+1}
    s_nop 1
    v_permlane32_swap_b32 v{t+1}, v{t+2}
    s_nop 0
    v_fma_f32 v{t+2}, -v{t+1}, v{t+1}, v{t+2}
    v_max_f32 v{t+2}, 0, v{t+2}""")
    bf16r(t+2,t+2)
    p(f"v_add_f32 v{t+2}, 0x3727c5ac, v{t+2}")
    bf16r(t+2,t+2)
    p(f"""v_sqrt_f32 v{t+2}, v{t+2}
    v_xor_b32 v{t+1}, 0x80000000, v{t+1}""")
    bf16r(t+2,t+2)
    p(f"""v_rcp_f32 v{t+5}, v{t+2}
    v_cvt_pk_bf16_f32 v{t+4}, v{t+1}, v{t+1}
    v_and_b32 v{t+3}, 31, v0
    s_lshl_b32 s{B}, s{HW}, 8
    s_add_u32 s{B}, s{B}, {L_SA}
    v_lshl_add_u32 v{t+1}, v{t+3}, 3, s{B}
    s_lshl_b32 s{B}, s{HW}, 7
    s_add_u32 s{B}, s{B}, {L_SR}
    v_lshl_add_u32 v{t+2}, v{t+3}, 2, s{B}
    ds_write_b64 v{t+1}, v[{t+4}:{t+5}]
    ds_write_b32 v{t+2}, v{t+5}""")
vPT=21; vDUM=39
HS=sT+12; HA=28
def early():
    A=sT+20; B=sT+21; vt=10
    p(f"""s_lshl_b32 s{A}, s{sSLOT}, 2
    s_add_u32 s{A}, s{A}, s{HW}
    s_mul_i32 s{A}, s{A}, 60
    v_min_u32 v{vt}, 59, v0
    v_add_u32 v{vt}, s{A}, v{vt}
    v_mul_u32_u24 v{vt+1}, 6554, v{vt}
    v_lshrrev_b32 v{vt+1}, 20, v{vt+1}
    v_mul_u32_u24 v{vt+2}, 160, v{vt+1}
    v_sub_u32 v{vt}, v{vt}, v{vt+2}
    v_lshlrev_b32 v{vt}, 7, v{vt}
    v_cmp_gt_u32 vcc, 32, v{vt+1}
    v_and_b32 v{vt+2}, 1, v{vt+1}
    v_mul_u32_u24 v{vt+2}, 20480, v{vt+2}
    v_bfe_u32 v{vt+3}, v{vt+1}, 1, 3
    v_mul_u32_u24 v{vt+3}, 163840, v{vt+3}
    v_add_u32 v{vt+2}, v{vt+2}, v{vt+3}
    v_lshrrev_b32 v{vt+3}, 4, v{vt+1}
    v_mul_u32_u24 v{vt+3}, {KB}, v{vt+3}
    s_mul_i32 s{A}, s{sRQ}, 40960
    v_add3_u32 v{vt+2}, v{vt+2}, v{vt+3}, s{A}
    v_and_b32 v{vt+3}, 15, v{vt+1}
    v_mul_u32_u24 v{vt+3}, 81920, v{vt+3}
    s_mul_i32 s{A}, s{sRQ}, 20480
    s_add_u32 s{A}, s{A}, {VB}
    v_add_u32 v{vt+3}, s{A}, v{vt+3}
    v_cndmask_b32 v{vt+2}, v{vt+3}, v{vt+2}, vcc
    s_mul_i32 s{A}, s{sHH}, {8*163840}
    v_add3_u32 v{vPT}, v{vt}, v{vt+2}, s{A}
""")
    p(f"""s_lshl_b32 s{A}, s{sSLOT}, 2
    s_add_u32 s{A}, s{A}, s{HW}
    s_mul_i32 s{B}, s{A}, 20
    v_min_u32 v{vt}, 19, v0
    v_add_u32 v{vt}, s{B}, v{vt}
    v_mul_u32_u24 v{vt+1}, 13108, v{vt}
    v_lshrrev_b32 v{vt+1}, 20, v{vt+1}
    v_mul_u32_u24 v{vt+2}, 80, v{vt+1}
    v_sub_u32 v{vt}, v{vt}, v{vt+2}
    v_lshlrev_b32 v{vt}, 7, v{vt}
    v_cmp_gt_u32 vcc, 16, v{vt+1}
    v_and_b32 v{vt+2}, 1, v{vt+1}
    v_mul_u32_u24 v{vt+2}, 10240, v{vt+2}
    v_lshrrev_b32 v{vt+3}, 1, v{vt+1}
    v_mul_u32_u24 v{vt+3}, 163840, v{vt+3}
    s_mul_i32 s{B}, s{sRQ}, 40960
    s_add_u32 s{B}, s{B}, {KH+20480}
    v_add3_u32 v{vt+2}, v{vt+2}, v{vt+3}, s{B}
    v_and_b32 v{vt+3}, 15, v{vt+1}
    v_mul_u32_u24 v{vt+3}, 81920, v{vt+3}
    s_mul_i32 s{B}, s{sRQ}, 20480
    s_add_u32 s{B}, s{B}, {VH+10240}
    v_add_u32 v{vt+3}, s{B}, v{vt+3}
    v_cndmask_b32 v{vt+2}, v{vt+3}, v{vt+2}, vcc
    s_mul_i32 s{B}, s{sHH}, {8*163840}
    v_add3_u32 v{vHT}, v{vt}, v{vt+2}, s{B}
    s_lshl_b32 s{B}, s{sG}, 7
    s_add_u32 s{A}, s{A}, s{B}
    s_lshl_b32 s{A}, s{A}, 7
    s_add_u32 s{A}, s{A}, {FH}
    v_mov_b32 v{vt}, s{A}
    v_cmp_lt_u32 vcc, 19, v0
    s_nop 1
    v_cndmask_b32 v{vHT}, v{vHT}, v{vt}, vcc""")
    nsm=sum(CFG['npf']); per=(100-5*nsm)//2
    if per>0:
        p(f"""s_mul_i32 s{A}, s{sG}, 5
        s_lshr_b32 s{A}, s{A}, 1
        s_mul_i32 s{A}, s{A}, 5
        s_lshr_b32 s{B}, s{HW}, 1
        s_mul_i32 s{B}, s{B}, {per}
        s_add_u32 s{A}, s{A}, s{B}
        s_add_u32 s{A}, s{A}, {5*nsm}
        v_min_u32 v{vt}, {per-1}, v0
        v_add_u32 v{vt}, s{A}, v{vt}
        v_subrev_u32 v{vt+1}, 100, v{vt}
        v_min_u32 v{vt}, v{vt}, v{vt+1}
        s_lshl_b32 s{A}, s{sSLOT}, 1
        s_and_b32 s{B}, s{HW}, 1
        s_add_u32 s{A}, s{A}, s{B}
        s_mul_i32 s{A}, s{A}, 12800
        v_lshl_add_u32 v{vTW}, v{vt}, 7, s{A}""")
    ge=p.lab("mtge"); jn=p.lab("mtj")
    p(f"""s_cmp_ge_u32 s{HW}, 2
    s_cbranch_scc1 {ge}
    v_min_u32 v{vt}, 59, v0
    v_mul_u32_u24 v{vt+1}, 86, v{vt}
    v_lshrrev_b32 v{vt+1}, 8, v{vt+1}
    v_mul_u32_u24 v{vt+1}, {3072-384}, v{vt+1}
    v_lshl_add_u32 v{vt}, v{vt}, 7, v{vt+1}
    s_mul_i32 s{A}, s{sSLOT}, {20*3072}
    s_mul_i32 s{B}, s{sG}, 384
    s_branch {jn}
    {ge}:
    {jn}:
    s_add_u32 s{A}, s{A}, s{B}
    v_add_u32 v{vTM}, s{A}, v{vt}
    s_sub_u32 s{A}, s{sSLOT}, {0 if CFG['dw3'] else 17}
    s_lshl_b32 s{A}, s{A}, {1 if CFG['dw3'] else 2}
    s_add_u32 s{A}, s{A}, s{HW}
    s_mul_i32 s{A}, s{A}, {24 if CFG['dw3'] else 26}
    v_min_u32 v{vt}, {47 if CFG['dw3'] else 51}, v0
    v_lshrrev_b32 v{vt+1}, 1, v{vt}
    v_add_u32 v{vt+1}, s{A}, v{vt+1}
    v_min_u32 v{vt+1}, 1535, v{vt+1}
    v_mul_u32_u24 v{vt+1}, 1280, v{vt+1}
    v_and_b32 v{vt}, 1, v{vt}
    v_lshl_add_u32 v{vt}, v{vt}, 7, v{vt+1}
    s_mul_i32 s{B}, s{sG}, 160
    s_and_b32 s{B}, s{B}, -128
    v_add_u32 v{vTD}, s{B}, v{vt}""")
vTD=25; vHT=26
vTW=22; vTM=24
def touch(va,srd_,pair,pol=''):
    if pair:
        p(f"buffer_load_dword v{vDUM}, v{va}, {S4(srd_)}, 0 offen nt\nbuffer_load_dword v{vDUM}, v{va}, {S4(srd_)}, 0 offen offset:64")
        return 2
    p(f"buffer_load_dword v{vDUM}, v{va}, {S4(srd_)}, 0 offen {pol}")
    return 1
def wtouch(win,isB):
    n=0
    if CFG['wtw']==win and 100-5*sum(CFG['npf'])>0:
        n+=touch(vTW,sWO,CFG['wpair'])
    if CFG['mtw']==win:
        if not isB:
            u=p.lab("tu"); j=p.lab("tj")
            p(f"s_cmp_eq_u32 s{HW}, 0\ns_cbranch_scc0 {u}")
            touch(vTM,sWG,CFG['mpair'])
            p(f"s_branch {j}\n{u}:")
            n+=touch(vTM,sWU,CFG['mpair'])
            p(f"{j}:")
    return n
def qkv_touch():
    if CFG['pt']==99: return
    if CFG['ht']==1: OPS.extend(['pt']*touch(vHT,sWS,0,''))
    OPS.extend(['pt']*touch(vPT,sWS,CFG['qpair'],CFG['tpol']))
    if CFG['ht']==2: OPS.extend(['pt']*touch(vHT,sWS,0,''))
vH=16
OPS=[]
def vmwait(*tags):
    last=max(i for i,t in enumerate(OPS) if t in tags)
    n=len(OPS)-1-last; assert n<64
    p(f"s_waitcnt vmcnt({n})")
HW=sT
def spin(cnt,lp,ok,sleep=0):
    p(f"s_sub_u32 s{cnt}, s{cnt}, 1\ns_cbranch_scc1 {ok}")
    if sleep: p(f"s_sleep {sleep}")
def lds_wait(addr_v,tmp,cnt,cmp,val,sleep=1):
    lp=p.lab("lw"); ok=p.lab("lwok")
    p(f"""s_mov_b32 s{cnt}, {SPIN*4}
    {lp}:
    ds_read_b32 v{tmp}, v{addr_v}
    s_waitcnt lgkmcnt(0)
    v_cmp_{cmp}_u32 vcc, {val}, v{tmp}
    s_nop 0
    s_cbranch_vccz {ok}""")
    spin(cnt,lp,ok,sleep)
    p(f"s_branch {lp}\n{ok}:")
sHL,sHF,sHO,sPH,sHD,sT0=range(sT+1,sT+7)
def att_ids():
    p(f"""s_lshr_b32 s{sHL}, s{sSLOT}, 1
    s_and_b32 s{sHF}, s{sSLOT}, 1
    s_and_b32 s{sHO}, s{sHL}, 1
    s_lshr_b32 s{sPH}, s{sHL}, 1
    s_lshl_b32 s{sHD}, s{sHH}, 3
    s_add_u32 s{sPH}, s{sPH}, s{sHD}
    s_lshl_b32 s{sHD}, s{sHH}, 4
    s_add_u32 s{sHD}, s{sHD}, s{sHL}
    s_lshl_b32 s{sT0}, s{sRQ}, 1
    s_add_u32 s{sT0}, s{sT0}, s{sHF}
    s_lshl_b32 s{sT0}, s{sT0}, 3""")
def flag_addr(vd,vt,withq,A,B,C):
    p(f"""s_lshr_b32 s{A}, s{sHL}, 1
    s_mul_i32 s{A}, s{A}, 5
    s_lshl_b32 s{B}, s{sHO}, 1
    s_add_u32 s{A}, s{A}, s{B}
    s_add_u32 s{B}, s{A}, 2
    s_lshr_b32 s{A}, s{A}, 3
    s_lshr_b32 s{B}, s{B}, 3
    s_lshl_b32 s{B}, s{B}, 4
    s_or_b32 s{A}, s{A}, s{B}
    s_add_u32 s{B}, s{A}, 0x55
    s_lshl_b32 s{C}, s{B}, 8
    s_or_b32 s{A}, s{C}, s{A if withq else B}
    s_mul_i32 s{B}, s{sHL}, 20
    s_add_u32 s{C}, s{B}, 19
    s_lshr_b32 s{B}, s{B}, 6
    s_lshr_b32 s{C}, s{C}, 6
    s_lshl_b32 s{C}, s{C}, 4
    s_or_b32 s{B}, s{B}, s{C}
    s_add_u32 s{B}, s{B}, 0xaa
    s_lshl_b32 s{B}, s{B}, 16
    s_or_b32 s{A}, s{A}, s{B}
    v_and_b32 v{vt}, 60, v0
    v_min_u32 v{vt}, 20, v{vt}
    v_bfe_u32 v{vt}, s{A}, v{vt}, 4
    v_and_b32 v{vd}, 3, v0
    v_lshlrev_b32 v{vd}, 2, v{vd}
    v_lshl_add_u32 v{vd}, v{vt}, 7, v{vd}""")
def flag_poll(va,vt,soff,cnt,first=True,sleep=0):
    lp=p.lab("fp"); ok=p.lab("fpok");
    p(f"s_mov_b32 s{cnt}, {SPIN}")
    if not first:
        md=p.lab("fpm"); p(f"s_branch {md}")
    p(f"""{lp}:
    buffer_load_dword v{vt}, v{va}, {S4(sWS)}, s{soff} offen sc1""")
    if not first: p(f"{md}:")
    p(f"""s_waitcnt vmcnt(0)
    v_cmp_ne_u32 vcc, s{sTAG}, v{vt}
    s_nop 0
    s_cbranch_vccz {ok}""")
    spin(cnt,lp,ok,sleep)
    p(f"s_branch {lp}\n{ok}:")
def flag_poll2(va,vt,soff,cnt,n=2,gap=0):
    lp=p.lab("fq"); ok=p.lab("fqok")
    ld=lambda i: f"buffer_load_dword v{vt+i}, v{va}, {S4(sWS)}, s{soff} offen sc1"
    p(f"s_mov_b32 s{cnt}, {SPIN}")
    for i in range(n-1):
        p(ld(i))
        if gap: p(f"s_sleep {gap}")
    p(f"{lp}:")
    for i in range(n):
        p(f"""{ld((i+n-1)%n)}
        s_waitcnt vmcnt({n-1})
        v_cmp_ne_u32 vcc, s{sTAG}, v{vt+i}
        s_nop 0
        s_cbranch_vccz {ok}""")
    spin(cnt,lp,ok)
    p(f"s_branch {lp}\n{ok}:")
def kv_dma(aLin,aTl,sK,sV,sL,A,B,sHO=sHO):
    p(f"""s_mul_i32 s{A}, s{sHO}, 1536
    s_add_u32 s{A}, s{A}, s{sK}
    s_mov_b32 m0, s{sL}
    s_add_u32 s{B}, s{A}, 1536
    buffer_load_dwordx4 v{aLin}, {S4(sWS)}, s{A} offen sc1 lds
    buffer_load_dwordx4 v{aLin}, {S4(sWS)}, s{B} offen offset:1024 sc1 lds
    s_sub_u32 s{A}, s{sK}, 2048
    s_sub_u32 s{B}, s{sV}, 3072
    buffer_load_dwordx4 v{aTl}, {S4(sWS)}, s{A} offen offset:2048 sc1 lds
    buffer_load_dwordx4 v{aLin}, {S4(sWS)}, s{B} offen offset:3072 sc1 lds
    s_add_u32 m0, s{sL}, 4096
    s_add_u32 s{B}, s{sV}, 1024
    buffer_load_dwordx4 v{aLin}, {S4(sWS)}, s{B} offen sc1 lds
    s_mov_b64 exec, s[{sLO}:{sLO+1}]
    buffer_load_dwordx4 v{aLin}, {S4(sWS)}, s{B} offen offset:1024 sc1 lds
    s_mov_b64 exec, -1""")
def kv_addr(aLin,aTl,t):
    p(f"""v_lshlrev_b32 v{aLin}, 4, v0
    v_lshrrev_b32 v{t}, 5, v0
    v_mul_u32_u24 v{t}, {2560-512}, v{t}
    v_add3_u32 v{aTl}, v{aLin}, v{t}, s{sK1024}""")
sK1024=sT+21

def halo_flag(vt,A,B,C):
    sk=p.lab("nohalo")
    p(f"""s_lshl_b32 s{A}, s{sCT}, 1
    s_add_u32 s{A}, s{A}, s{HW}
    s_sub_u32 s{A}, s{A}, 2
    s_sub_u32 s{B}, s{A}, 5
    s_cmp_lt_u32 s{B}, 10
    s_cselect_b32 s{B}, s{sRB}, 0
    s_cmp_lt_u32 s{sRQ}, 3
    s_cselect_b32 s{B}, s{B}, 0
    s_cmp_lt_u32 s{B}, 2
    s_cbranch_scc1 {sk}
    s_lshl_b32 s{C}, s{sG}, 4
    s_add_u32 s{A}, s{A}, s{C}
    s_lshl_b32 s{A}, s{A}, 2
    s_add_u32 s{A}, s{A}, s{B}
    s_lshl_b32 s{A}, s{A}, 8
    s_add_u32 s{A}, s{A}, {FH}
    s_lshl_b32 s{B}, s{HW}, 2
    s_add_u32 s{B}, s{B}, {F_STG-8}
    v_mov_b32 v{vt}, s{B}
    v_lshlrev_b32 v{vt+2}, 7, v0
    v_mov_b32 v{vt+3}, s{sTAG}""")
    lds_wait(vt,vt+1,C,'gt',2,0)
    p(f"""s_mov_b64 exec, 3
    buffer_store_dword v{vt+3}, v{vt+2}, {S4(sWS)}, s{A} offen sc1
    s_mov_b64 exec, -1""")
    STAMP('halo')
    p(f"{sk}:")
def own_setup(aF2,vt):
    A=sT+7; B=sT+8; sF,sK,sV,sL=range(sT+12,sT+16)
    flag_addr(aF2,vt,1,A,B,sT+18)
    p(f"""s_lshl_b32 s{sF}, s{sG}, 11
    s_lshl_b32 s{A}, s{sHF}, 4
    s_add_u32 s{sF}, s{sF}, s{A}
    s_add_u32 s{sF}, s{sF}, {FL}
    s_lshl_b32 s{A}, s{HW}, 1
    s_add_u32 s{A}, s{A}, s{sT0}
    s_mul_i32 s{sK}, s{A}, 2560
    s_mul_i32 s{sV}, s{A}, 1280
    s_mul_i32 s{A}, s{sPH}, {64*2560}
    s_add_u32 s{sK}, s{sK}, s{A}
    s_add_u32 s{sK}, s{sK}, {KB}
    s_mul_i32 s{A}, s{sHD}, 81920
    s_add_u32 s{sV}, s{sV}, s{A}
    s_add_u32 s{sV}, s{sV}, {VB}
    s_mul_i32 s{sL}, s{HW}, 5632
    s_add_u32 s{sL}, s{sL}, {L_KV+4*5632}""")
def own_kv(aLin,aTl,aF2,vt,sHO_):
    A=sT+7; B=sT+8; sF,sK,sV,sL=range(sT+12,sT+16); C=sT+18
    p(f"v_mov_b32 v{vt}, {F_FS}\nv_mov_b32 v{vt+1}, 1")
    flag_poll(aF2,vt+2,sF,C)
    p(f"ds_write_b32 v{vt}, v{vt+1}")
    STAMP('hfs')
    kv_dma(aLin,aTl,sK,sV,sL,A,B,sHO_)
    p(f"""s_mov_b64 exec, 1
    v_mov_b32 v{vt}, {F_G1}
    s_waitcnt vmcnt(0)
    ds_add_u32 v{vt}, v{vt+1}
    s_mov_b64 exec, -1""")
    STAMP('hg1')
def helperA(steps):
    A=sT+7; B=sT+8; vt=10
    def hook(c):
        if c==CFG['pt']:
            qkv_touch(); OPS.extend(['pt']*wtouch('w1',0))
    steps(hook,0)
    for c in (8,9):
        vmwait(c); p("s_barrier"); STAMP('ld%d'%c)
        if c==9: STAMP('hb9')
        hook(c)
    stats_fin(vt,B)
    p("s_barrier\ns_waitcnt lgkmcnt(0)\ns_barrier")
    STAMP('hE1')
    att_ids()
    aLin=6; aTl=7; aF=8; D=40
    p(f"s_mov_b32 s{sK1024}, 1024")
    kv_addr(aLin,aTl,vt)
    flag_addr(aF,vt,0,A,B,sT+17)
    if CFG['hkv']: own_setup(9,vt)
    p(f"v_mov_b32 v{vt+1}, 1")
    sF=sT+9; sK=sT+10; sV=sT+11; sL=sT+16; C=sT+17
    dn=p.lab("g2done")
    p(f"""v_and_b32 v{vt+2}, 127, v{aF}
    v_sub_u32 v{vt+3}, v{aF}, v{vt+2}
    v_lshlrev_b32 v{vt+3}, 3, v{vt+3}
    v_lshl_add_u32 v{vt+2}, v{vt+2}, 5, v{vt+3}
    s_cmp_eq_u32 s{sHF}, 0
    s_cselect_b64 vcc, -1, 0
    s_cselect_b32 s{A}, {FH-2*16384+512-FL}, 0
    s_cselect_b32 s{B}, {KH-KB}, 0
    s_cselect_b32 s{sF}, 14, 11
    v_cndmask_b32 v{aF}, v{aF}, v{vt+2}, vcc
    s_lshl_b32 s{sF}, s{sG}, s{sF}
    s_add_u32 s{sF}, s{sF}, s{A}
    s_add_u32 s{sF}, s{sF}, {FL}
    s_lshl_b32 s{A}, s{HW}, 2
    s_sub_u32 s{A}, s{sT0}, s{A}
    s_sub_u32 s{A}, s{A}, 2
    s_mul_i32 s{sK}, s{A}, 2560
    s_mul_i32 s{sV}, s{A}, 1280
    s_mul_i32 s{A}, s{sPH}, {64*2560}
    s_add_u32 s{sK}, s{sK}, s{A}
    s_add_u32 s{sK}, s{sK}, s{B}
    s_add_u32 s{sK}, s{sK}, {KB}
    s_mul_i32 s{A}, s{sHD}, 81920
    s_add_u32 s{sV}, s{sV}, s{A}
    s_add_u32 s{sV}, s{sV}, s{B}
    s_add_u32 s{sV}, s{sV}, {VB}
    s_mul_i32 s{sL}, s{HW}, {-2*5632}
    s_add_u32 s{sL}, s{sL}, {L_KV+3*5632}""")
    if CFG['hkv']: own_kv(aLin,aTl,9,vt,sHO)
    p(f"s_cmp_eq_u32 s{sT0}, 0\ns_cbranch_scc1 {dn}")
    def both():
        kv_dma(aLin,aTl,sK,sV,sL,A,B)
        p(f"""s_sub_u32 s{sK}, s{sK}, 5120
        s_sub_u32 s{sV}, s{sV}, 2560
        s_sub_u32 s{sL}, s{sL}, 5632""")
        kv_dma(aLin,aTl,sK,sV,sL,A,B)
    if CFG['hsent']:
        fl=p.lab("prevfl"); lp=p.lab("hs")
        p(f"s_cmp_lg_u32 s{sHF}, 0\ns_cbranch_scc1 {fl}")
        if CFG['hgate']=='G1':
            p(f"v_mov_b32 v{vt}, {F_G1}"); lds_wait(vt,vt+5,C,'gt',4,0)
        p(f"""s_sub_u32 s{A}, s{sL}, 5632
        v_add_u32 v{vt+2}, s{A}, v{aLin}
        s_mov_b32 s{C}, {SPIN}""")
        STAMP('hf')
        p(f"{lp}:")
        both()
        p("s_waitcnt vmcnt(0)")
        for i in range(11): p(f"ds_read_b128 {vr(D+4*i,4)}, v{vt+2} offset:{i*1024}")
        p(f"""s_add_u32 s{sK}, s{sK}, 5120
        s_add_u32 s{sV}, s{sV}, 2560
        s_add_u32 s{sL}, s{sL}, 5632
        s_waitcnt lgkmcnt(8)
        v_max3_u32 v{vt+3}, v{D}, v{D+4}, v{D+8}""")
        for i in range(3,11,2): p(f"s_waitcnt lgkmcnt({9-i})\nv_max3_u32 v{vt+3}, v{D+4*i}, v{D+4*i+4}, v{vt+3}")
        p(f"""v_cmp_eq_u32 vcc, -1, v{vt+3}
        s_nop 0
        s_cbranch_vccz {dn}""")
        spin(C,lp,dn,CFG['hrs'])
        p(f"s_branch {lp}\n{fl}:")
    if CFG['hpoll']: flag_poll2(aF,vt+5,sF,C,CFG['hpoll'],CFG['hsl'])
    else: flag_poll(aF,vt+5,sF,C,sleep=CFG['hsl'])
    STAMP('hf')
    both()
    p(f"""s_waitcnt vmcnt(0)
    {dn}:
    v_mov_b32 v{vt}, {F_G2}
    s_mov_b64 exec, 1
    ds_add_u32 v{vt}, v{vt+1}
    s_mov_b64 exec, -1""")
    STAMP('g2')
    if 'w3' in (CFG['wtw'],CFG['mtw']):
        p(f"v_mov_b32 v{vt}, {F_G1}")
        lds_wait(vt,vt+5,C,'gt',4,1)
        wtouch('w3',0)
        if CFG['dw3']: touch(vTD,sWD,CFG['mpair'])
        STAMP('mt')
        if CFG['prof'] and any('mt2' in x for x in CFG['st']): p("s_waitcnt vmcnt(0)"); STAMP('mt2')

def tr_addr(a0,t):
    tab=[[0,8],[4,12],[16,36],[20,28],[24,32]]
    pk=[sum((tab[u][rd]//4)<<(4*u) for u in range(5)) for rd in range(2)]
    A=sT+7; B=sT+8
    p(f"""s_mov_b32 s{A}, {pk[0]}
    s_mov_b32 s{B}, {pk[1]}
    v_bfe_u32 v{t}, v0, 2, 2
    v_mul_u32_u24 v{t}, 160, v{t}
    v_and_b32 v{t+1}, 3, v0
    v_mad_u32_u24 v{t}, v{t+1}, 40, v{t}
    v_lshrrev_b32 v{t+1}, 4, v0""")
    for s_ in range(5):
        p(f"""v_add_u32 v{t+2}, {4*s_}, v{t+1}
        v_mul_u32_u24 v{t+4}, 52, v{t+2}
        v_lshrrev_b32 v{t+4}, 8, v{t+4}
        v_mul_u32_u24 v{t+5}, 5, v{t+4}
        v_sub_u32 v{t+2}, v{t+2}, v{t+5}
        v_lshlrev_b32 v{t+2}, 2, v{t+2}
        v_mul_u32_u24 v{t+4}, 10, v{t+4}""")
        for rd in range(2):
            p(f"""v_bfe_u32 v{t+3}, s{(A,B)[rd]}, v{t+2}, 4
            v_add_u32 v{t+3}, v{t+3}, v{t+4}
            v_mul_u32_u24 v{t+3}, 640, v{t+3}
            v_add_u32 v{a0+2*s_+rd}, v{t+3}, v{t}""")
sBLK,sJ=sT+9,sT+10
def wo_ids():
    p(f"""s_lshr_b32 s{sBLK}, s{sSLOT}, 3
    s_lshl_b32 s{sJ}, s{sG}, 2
    s_add_u32 s{sBLK}, s{sBLK}, s{sJ}
    s_and_b32 s{sJ}, s{sSLOT}, 7""")
def clr_ids(A,B,C,D_):
    p(f"""s_lshr_b32 s{C}, s{sSLOT}, 3
    s_lshl_b32 s{B}, s{sG}, 2
    s_add_u32 s{C}, s{C}, s{B}
    s_lshl_b32 s{C}, s{C}, 3
    s_and_b32 s{B}, s{sSLOT}, 7
    s_add_u32 s{D_}, s{C}, s{B}
    s_lshr_b32 s{A}, s{D_}, 1
    s_mul_i32 s{A}, s{A}, 20480
    s_and_b32 s{B}, s{B}, 1
    s_mul_i32 s{B}, s{B}, 5120
    s_add_u32 s{A}, s{A}, s{B}
    s_add_u32 s{A}, s{A}, {OB}
    s_mul_i32 s{B}, s{sHH}, 10240
    s_add_u32 s{C}, s{A}, 10240
    s_add_u32 s{A}, s{A}, s{B}
    s_sub_u32 s{C}, s{C}, s{B}
    s_lshl_b32 s{D_}, s{D_}, 10
    s_add_u32 s{D_}, s{D_}, {PS}""")
def clears(part):
    A=sT+13; B=sT+14; C=sT+15; D_=sT+16; D=12; aL=16
    if part==0:
        clr_ids(A,B,C,D_)
        p(f"v_lshlrev_b32 v{aL}, 4, v0")
        for r in range(4): p(f"v_mov_b32 v{D+r}, -1")
        return
    st4=lambda so,off,sc: f"buffer_store_dwordx4 v[{D}:{D+3}], v{aL}, {S4(sWS)}, s{so} offen offset:{off} {sc}"
    w2=p.lab("clw2"); w3=p.lab("clw3"); dn=p.lab("cldn")
    if CFG['hsent']:
        H_=sT+17; nh=p.lab("clnh")
        p(f"""s_cmp_eq_u32 s{sWAVE}, 3
        s_cbranch_scc1 {nh}
        s_lshl_b32 s{B}, s{sWAVE}, 8
        s_add_u32 s{B}, s{B}, s2
        s_sub_u32 s{H_}, s{B}, 384
        s_cselect_b32 s{H_}, s{B}, s{H_}
        s_cselect_b32 s{H_+1}, 3, 2
        s_cselect_b32 s{H_+2}, 0, {VH+10240-KH-20480}
        s_cselect_b32 s{H_+3}, 1, 0
        s_lshr_b32 s{B}, s{H_}, s{H_+1}
        s_lshl_b32 s{H_+1}, s{B}, s{H_+1}
        s_sub_u32 s{H_}, s{H_}, s{H_+1}
        s_mul_i32 s{H_}, s{H_}, 2560
        s_add_u32 s{H_}, s{H_}, s{H_+2}
        s_mul_i32 s{H_+1}, s{B}, 171
        s_lshr_b32 s{H_+1}, s{H_+1}, 9
        s_add_u32 s{B}, s{B}, s{H_+1}
        s_mul_i32 s{B}, s{B}, 20480
        s_lshl_b32 s{B}, s{B}, s{H_+3}
        s_add_u32 s{H_}, s{H_}, s{B}
        s_add_u32 s{H_}, s{H_}, {KH+20480}""")
        for o in (0,1024,1536): p(st4(H_,o,"sc1"))
        p(f"{nh}:")
    p(f"""s_cmp_ge_u32 s{sWAVE}, 2
    s_cbranch_scc1 {w2}
    s_mul_i32 s{B}, s{sWAVE}, 2560
    s_add_u32 s{A}, s{A}, s{B}""")
    for o in (0,1024,1536): p(st4(A,o,CFG['cpol']))
    p(f"""s_branch {dn}
    {w2}:
    s_cmp_eq_u32 s{sWAVE}, 3
    s_cbranch_scc1 {w3}
    s_mul_i32 s{C}, s2, 2560
    s_add_u32 s{C}, s{C}, {CAND}""")
    for o in (0,1024,1536): p(st4(C,o,"sc1"))
    p(f"""s_branch {dn}
    {w3}:""")
    if CFG['osent']:
        for o in range(4): p(st4(C,o*1024,"sc1"))
        p(f"s_add_u32 s{C}, s{C}, 4096"); p(st4(C,0,"sc1"))
    p(f"""s_cmp_ge_u32 s2, 24
    s_cbranch_scc1 {dn}
    s_lshl_b32 s{C}, s2, 10
    s_add_u32 s{C}, s{C}, {ACT}""")
    p(st4(C,0,"sc1"))
    p(f"{dn}:")
cU=sT+13; vC=84
def hclear_setup(isB):
    A=sT+15; B=sT+16; C=sT+17; D_=sT+18; H_=sT+17
    clr_ids(A,B,C,D_)
    if isB: p(f"""s_mul_i32 s{B}, s2, 2560
        s_add_u32 s{B}, s{B}, {CAND}
        s_add_u32 s{A}, s{C}, 2560
        s_cmp_eq_u32 s{HW}, 2
        s_cselect_b32 s{cU+1}, s{B}, s{A}
        s_mov_b32 s{cU}, s{C}""")
    else: p(f"""s_mul_i32 s{B}, s{HW}, 2560
        s_add_u32 s{cU+1}, s{A}, s{B}""")
    p(f"""s_lshl_b32 s{B}, s{HW}, 8
    s_add_u32 s{B}, s{B}, s2
    s_sub_u32 s{H_}, s{B}, 384
    s_cselect_b32 s{H_}, s{B}, s{H_}
    s_cselect_b32 s{H_+1}, 3, 2
    s_cselect_b32 s{H_+2}, 0, {VH+10240-KH-20480}
    s_cselect_b32 s{H_+3}, 1, 0
    s_lshr_b32 s{B}, s{H_}, s{H_+1}
    s_lshl_b32 s{H_+1}, s{B}, s{H_+1}
    s_sub_u32 s{H_}, s{H_}, s{H_+1}
    s_mul_i32 s{H_}, s{H_}, 2560
    s_add_u32 s{H_}, s{H_}, s{H_+2}
    s_mul_i32 s{H_+1}, s{B}, 171
    s_lshr_b32 s{H_+1}, s{H_+1}, 9
    s_add_u32 s{B}, s{B}, s{H_+1}
    s_mul_i32 s{B}, s{B}, 20480
    s_lshl_b32 s{B}, s{B}, s{H_+3}
    s_add_u32 s{H_}, s{H_}, s{B}
    s_add_u32 s{H_}, s{H_}, {KH+20480}""")
    if isB: p(f"""s_cmp_eq_u32 s{HW}, 2
        s_cselect_b32 s{cU}, s{H_}, s{cU}
        s_cselect_b32 s{cU+3}, 256, s2
        s_lshl_b32 s{cU+2}, s2, 10
        s_cmp_lt_u32 s{cU+3}, 24
        s_cselect_b32 s{H_}, 0, {STX+0x20000-ACT}
        s_add_u32 s{cU+2}, s{cU+2}, s{H_}
        s_add_u32 s{cU+2}, s{cU+2}, {ACT}""")
    else: p(f"""s_mov_b32 s{cU}, s{H_}
        s_getreg_b32 s{A}, hwreg(HW_REG_XCC_ID, 0, 4)
        s_or_b32 s{A}, s{A}, s{sTAG}
        v_mov_b32 v{vC+5}, s{A}
        s_lshl_b32 s{cU+2}, s2, 2
        s_add_u32 s{cU+2}, s{cU+2}, {H1}""")
    p(f"v_lshlrev_b32 v{vC+4}, 4, v0")
    for r in range(4): p(f"v_mov_b32 v{vC+r}, -1")
def hclear(c,isB):
    st=lambda so,off,sc: (p(f"buffer_store_dwordx4 v[{vC}:{vC+3}], v{vC+4}, {S4(sWS)}, s{so} offen offset:{off} {sc}"),OPS.append('clr'))
    ks=[k for k in range(2) if CFG['cst'][k]==c and (CFG['hsent'] or k or isB)]
    pol=lambda k: "sc1" if isB or k==0 else CFG['cpol']
    for k in ks: st(cU+k,0,pol(k)); st(cU+k,1024,pol(k))
    if ks: p(f"s_mov_b64 exec, s[{sLO}:{sLO+1}]")
    for k in ks: st(cU+k,2048,pol(k))
    if ks: p("s_mov_b64 exec, -1")
    if isB and c==CFG['cst'][1]:
        sk=p.lab("noact")
        p(f"s_cmp_lt_u32 s{cU+3}, 24\ns_cselect_b64 exec, -1, 1"); st(cU+2,0,"sc1"); p("s_mov_b64 exec, -1")
    if not isB and c==max(CFG['cst'])+2:
        p(f"s_mov_b64 exec, 1\nbuffer_store_dword v{vC+5}, v{vC+4}, {S4(sWS)}, s{cU+2} offen sc1\ns_mov_b64 exec, -1"); OPS.append('clr')
def code_pf():
    A=sT+18
    p(f"""s_getpc_b64 s[{A}:{A+1}]
    L_pc:
    s_sub_u32 s{A}, s{A}, L_pc-{NAME}_kernel
    s_subb_u32 s{A+1}, s{A+1}, 0
    s_lshl_b32 s{A+2}, s{sSLOT}, 2
    s_add_u32 s{A+2}, s{A+2}, s{sWAVE}
    s_mul_i32 s{A+2}, s{A+2}, 384
    s_min_u32 s{A+2}, s{A+2}, (L_exit-{NAME}_kernel-384)&0xffffff80""")
    for i in range(3): p(f"s_load_dwordx2 s[100:101], s[{A}:{A+1}], s{A+2} offset:{i*128+60}")
def wave_sum(x,t):
    dp="row_mask:0xf bank_mask:0xf"
    for c in ("quad_perm:[1,0,3,2]","quad_perm:[2,3,0,1]","row_half_mirror","row_mirror"):
        p(f"s_nop 1\nv_add_f32_dpp v{x}, v{x}, v{x} {c} {dp}")
    for sw in (16,32):
        p(f"""v_mov_b32 v{t}, v{x}
        s_nop 1
        v_permlane{sw}_swap_b32 v{x}, v{t}
        s_nop 0
        v_add_f32 v{x}, v{x}, v{t}""")
sPF=sT+16
def pf_group(n=5):
    for i in range(n): p(f"s_load_dwordx2 s[100:101], s[{sWO}:{sWO+1}], s{sPF} offset:{i*128+60}")
    p(f"""s_add_u32 s{sPF}, s{sPF}, {n*128}
    s_sub_u32 s{sPF+2}, s{sPF+2}, 1
    s_add_u32 s{sPF+3}, s{sPF+1}, 12800
    s_cmp_eq_u32 s{sPF}, s{sPF+3}
    s_cselect_b32 s{sPF}, s{sPF+1}, s{sPF}""")
def helperB(steps):
    A=sT+7; B=sT+8; vt=2; aD=140; aT=146; aLin=12; D=40; WRr=32
    sO=sT+1; sL=sT+2; sL0=sT+3; sL1=sT+4; C=sT+5
    p("L_helperB:")
    vM=23; x=10; a=sT+16
    clr_ids(a,a+1,a+2,a+3)
    p(f"""s_mul_i32 s{a+1}, s{HW}, 25
    s_sub_u32 s{a+1}, s{a+1}, 50
    v_min_u32 v{x}, 24, v0
    v_add_u32 v{x}, s{a+1}, v{x}
    v_min_u32 v{x}, 48, v{x}
    s_sub_u32 s{a+3}, s{a+3}, {40*128}
    s_and_b32 s{a+1}, s{sSLOT}, 15
    s_lshl_b32 s{a+2}, s{sG}, 4
    s_add_u32 s{a+1}, s{a+1}, s{a+2}
    s_lshl_b32 s{a+1}, s{a+1}, 7
    s_add_u32 s{a+1}, s{a+1}, {FL-48*128}
    v_mov_b32 v{x+1}, s{a}
    v_mov_b32 v{x+2}, s{a+3}
    v_cmp_le_u32 vcc, 40, v{x}
    v_mov_b32 v{x+3}, s{a+1}
    s_mul_i32 s{a+1}, s{sSLOT}, {200*128}
    v_cndmask_b32 v{x+1}, v{x+1}, v{x+2}, vcc
    v_cmp_le_u32 vcc, 48, v{x}
    s_mul_i32 s{a}, s{HW}, {100*128}
    s_add_u32 s{a+1}, s{a+1}, s{a}
    v_cndmask_b32 v{x+1}, v{x+1}, v{x+3}, vcc
    v_lshl_add_u32 v{vM}, v{x}, 7, v{x+1}
    s_sub_u32 s{sPF+1}, s{a+1}, {200*128}
    s_mul_i32 s{sPF}, s{sG}, 5
    s_lshr_b32 s{sPF}, s{sPF}, 1
    s_mul_i32 s{sPF}, s{sPF}, 640
    s_add_u32 s{sPF}, s{sPF}, s{sPF+1}
    s_mov_b32 s{sPF+2}, 20
    v_lshlrev_b32 v{vH+4}, 4, v0
    v_add_u32 v{vH+4}, {H1}, v{vH+4}
    v_mul_u32_u24 v{WRr+5}, 20, v0""")
    aB=130; sK=sT+11; sN=sT+16; sS=sT+17
    def wo_setup():
        va=96
        wo_ids()
        T=[[0,2],[1,3],[4,9],[5,7],[6,8]]
        NIB=[sum((10*((4*s5+g_)//5)+T[(4*s5+g_)%5][rd]-(8*s5+2*g_-2))<<(4*(4*rd+g_)) for rd in range(2) for g_ in range(4)) for s5 in range(5)]
        for i in range(5):
            p(f"""v_add_u32 v{va}, {64*i}, v0
            v_mul_u32_u24 v{va+1}, 6554, v{va}
            v_lshrrev_b32 v{va+1}, 16, v{va+1}
            v_mul_u32_u24 v{va+2}, 10, v{va+1}
            v_sub_u32 v{va}, v{va}, v{va+2}
            v_and_b32 v{aB+5+i}, 28, v{va+1}
            v_and_b32 v{va+2}, 3, v{va+1}
            v_mul_u32_u24 v{va+2}, 1280, v{va+2}
            v_lshl_add_u32 v{va}, v{va}, 4, v{va+2}
            v_bfe_u32 v{va+1}, v{va+1}, 2, 2
            v_mul_u32_u24 v{va+1}, 10240, v{va+1}
            v_add_u32 v{aB+i}, v{va}, v{va+1}""")
            if 0<i<4: p(f"v_subrev_u32 v{aB+i}, {i*1024}, v{aB+i}")
        p(f"""s_lshr_b32 s{A}, s{sSLOT}, 3
        s_mul_i32 s{A}, s{A}, 5
        s_lshr_b32 s{A}, s{A}, 1
        s_add_u32 s{A}, s{A}, s{HW}
        s_sub_u32 s{sK}, s{A}, 2
        v_mov_b32 v{va}, 5120""")
        def woaddr(n):
            p(f"""s_add_u32 s{A}, s{sK}, {2*n}
            s_sub_u32 s{B}, s{A}, 10
            s_cselect_b32 s{A}, s{A}, s{B}
            s_sub_u32 s{B}, s{A}, 5
            s_cselect_b32 s{B}, s{A}, s{B}
            s_mul_i32 s{sS}, s{A}, 40960
            s_sub_u32 s{sS}, s{sS}, 10240
            s_mov_b32 s{sN}, {hex(NIB[0])}""")
            for k in range(1,5): p(f"s_cmp_eq_u32 s{B}, {k}\ns_cselect_b32 s{sN}, {hex(NIB[k])}, s{sN}")
            for i in range(5):
                p(f"""v_bfe_u32 v{va+1}, s{sN}, v{aB+5+i}, 4
                v_mad_u32_u24 v{va+1}, v{va+1}, v{va}, v{aB+i}
                v_add_u32 v{aD+5*n+i}, s{sS}, v{va+1}""")
        for n in range(5): woaddr(n)
    if CFG['wose']==0: wo_setup()
    npf=CFG['npf']
    for _ in range(npf[0]): pf_group()
    def hook(c):
        if c==(100 if CFG['hstep']==CFG['stg'] else CFG['hstep']):
            p(f"buffer_load_dwordx4 v[{vH}:{vH+3}], v{vH+4}, {S4(sWS)}, 0 offen sc1"); OPS.append('h1')
        if c==100:
            p(f"buffer_load_dwordx4 {vr(WRr,4)}, v{WRr+5}, {S4(sWR)}, 0 offen\nbuffer_load_dword v{WRr+4}, v{WRr+5}, {S4(sWR)}, 0 offen offset:16"); OPS.extend(['wr','wr'])
        if c==CFG['pt']:
            qkv_touch()
            OPS.extend(['pt']*wtouch('w1',1))
        if c==CFG['pt2']: OPS.extend(['pt']*touch(vM,sWS,CFG['qpair2'],CFG['tpol']))
    steps(hook,1)
    st=dict(n=0)
    def dma(cnt):
        for _ in range(min(cnt,50-st['n'])):
            n=st['n']; i=n%5; k=(n//5)%5
            if n==0 or n==25:
                p(f"""s_xor_b32 s{A}, s{sHH}, {n//25}
                s_mul_i32 s{sO}, s{A}, {320*1280}
                s_mul_i32 s{sL0}, s{A}, 51200
                s_add_u32 s{sL0}, s{sL0}, {L_WO}
                s_mul_i32 s{A}, s{sJ}, 160
                s_add_u32 s{sO}, s{sO}, s{A}""")
            if i==0: p(f"""s_add_u32 s{A}, s{sK}, {2*k}
                s_sub_u32 s{B}, s{A}, 10
                s_cselect_b32 s{A}, s{A}, s{B}
                s_mul_i32 s{sL}, s{A}, 5120
                s_add_u32 s{sL}, s{sL}, s{sL0}
                s_mov_b32 m0, s{sL}
                s_nop 0""")
            if i==4: p(f"s_add_u32 m0, s{sL}, 4096\ns_nop 0")
            p(f"buffer_load_dwordx4 v{aD+5*k+i}, {S4(sWO)}, s{sO} offen offset:{(i&3)*1024} {CFG['wopol']} lds")
            OPS.append('wo%d'%(n//25))
            st['n']+=1
    vmwait(8); p("s_barrier"); hook(8)
    p(f"v_lshlrev_b32 v{aLin}, 4, v0")
    vmwait(9); p("s_barrier"); hook(9)
    stats_fin(96,B)
    vmwait('h1')
    lp=p.lab("hello"); ok=p.lab("hello_ok"); ne=p.lab("noep")
    p(f"""s_mov_b32 s{A}, {SPIN}
    {lp}:
    v_xor_b32 v{vH}, s{sTAG}, v{vH}
    v_xor_b32 v{vH+1}, s{sTAG}, v{vH+1}
    v_xor_b32 v{vH+2}, s{sTAG}, v{vH+2}
    v_xor_b32 v{vH+3}, s{sTAG}, v{vH+3}
    v_or3_b32 v{vt}, v{vH}, v{vH+1}, v{vH+2}
    v_or_b32 v{vt}, v{vt}, v{vH+3}
    v_cmp_lt_u32 vcc, 15, v{vt}
    s_nop 0
    s_cbranch_vccz {ok}""")
    spin(A,lp,ok,4)
    p(f"""buffer_load_dwordx4 v[{vH}:{vH+3}], v{vH+4}, {S4(sWS)}, 0 offen sc1
    s_waitcnt vmcnt(0)
    s_branch {lp}
    {ok}:
    v_lshl_or_b32 v{vH}, v{vH+1}, 4, v{vH}
    v_lshl_or_b32 v{vH+2}, v{vH+3}, 4, v{vH+2}
    v_lshl_or_b32 v{vH}, v{vH+2}, 8, v{vH}
    v_and_b32 v{vt}, 1, v0
    v_readlane_b32 s{A}, v{vH}, 0
    v_readlane_b32 s{B}, v{vH}, 1
    v_cmp_eq_u32 vcc, 0, v{vt}
    v_mov_b32 v{vt+1}, s{A}
    v_mov_b32 v{vt+2}, s{B}
    v_cndmask_b32 v{vt+1}, v{vt+2}, v{vt+1}, vcc
    v_cmp_ne_u32 vcc, v{vt+1}, v{vH}
    v_mov_b32 v{vt}, {L_MODE}
    s_cmp_lg_u64 vcc, 0
    s_cselect_b32 s{sMODE}, 1, {CFG['force_slow']}
    v_mov_b32 v{vt+1}, s{sMODE}
    ds_write_b32 v{vt}, v{vt+1}
    s_barrier
    s_waitcnt lgkmcnt(0)
    s_barrier""")
    vmw=len(OPS)-1-max(i for i,t in enumerate(OPS) if t=='wr')
    STAMP('hE1')
    p(f"""v_mov_b32 v{vt}, 0x3f803f80
    v_mov_b32 v{vt+1}, 0
    s_waitcnt vmcnt({vmw})""")
    for k in range(5): p(f"v_dot2_f32_bf16 v{vt+1}, v{WRr+k}, v{vt}, v{vt+1}")
    p("s_nop 0")
    wave_sum(vt+1,vt+2)
    p(f"v_mov_b32 v{vt}, {L_SWS}\nds_write_b32 v{vt}, v{vt+1}")
    if CFG['wose']==1: wo_setup()
    if not CFG['hsent']: halo_flag(vt,A,B,C)
    if CFG['wose']==2: wo_setup()
    p(f"""s_add_u32 s{A}, s2, s{HW}
    s_cmp_lg_u32 s{A}, 2
    s_cbranch_scc1 {ne}
    s_add_u32 s{A}, s{sEP}, 1
    v_mov_b32 v{vt}, {EPO}
    v_mov_b32 v{vt+1}, s{A}
    s_mov_b64 exec, 1
    buffer_store_dword v{vt+1}, v{vt}, {S4(sWS)}, 0 offen sc1
    s_mov_b64 exec, -1
    {ne}:""")
    if CFG['hkv']:
        att_ids()
        p(f"s_mov_b32 s{sK1024}, 1024")
        kv_addr(aLin,13,vt)
        own_setup(14,vt)
        own_kv(aLin,13,14,vt,sHO)
    p(f"v_mov_b32 v{vt}, {F_G1}")
    lds_wait(vt,vt+1,A,'gt',4,1)
    wtouch('w3',1)
    if CFG['wog2']:
        p(f"v_mov_b32 v{vt+2}, {F_G2}")
        lds_wait(vt+2,vt+1,A,'gt',2,1)
    STAMP('wo_s')
    del OPS[:]
    thr=CFG['wothr']; gs=CFG['wogs']; thr1=CFG['wothr1']
    def more(n,dyn=False):
        while n>0 and st['n']<50:
            k=min(gs,n)
            if dyn and thr1<thr and st['n']>=thr1:
                sk=p.lab("wog")
                p(f"""ds_read_b32 v{vt+1}, v{vt} offset:{F_G2-F_G1}
                s_waitcnt lgkmcnt(0)
                v_cmp_gt_u32 vcc, 2, v{vt+1}
                s_nop 0
                s_cbranch_vccz {sk}
                s_waitcnt vmcnt({max(0,thr1-k)})
                {sk}:""")
            if st['n']>=thr: p(f"s_waitcnt vmcnt({max(0,thr-k)})")
            dma(k); n-=k
    def sig(f):
        p(f"""v_mov_b32 v{vt+2}, {f}
        v_mov_b32 v{vt+3}, 1
        s_mov_b64 exec, 1
        ds_add_u32 v{vt+2}, v{vt+3}
        s_mov_b64 exec, -1""")
    more(25+min(thr,15),True)
    vmwait('wo0')
    sig(F_WOR)
    STAMP('wo_0')
    more(50)
    sig(F_WOD)
    STAMP('wo_1')
    p("s_waitcnt vmcnt(0)")
    sig(F_WO2)
    STAMP('wo')

ACC=64; CS=128; XF=132; WF=148; SEL=164; aX=168; aW=172; aST=174; aSG=178; vT=2
sWR_,sWC,sLC,sTY,sSO,sHALO,sFO,sSO2=range(sT,sT+8)
def gemm_setup():
    t=vT; A=sT+10; B=sT+11
    wave_ids(sWAVE,sWR_,sWC,sLC,sTY)
    p(f"""v_and_b32 v{t}, 31, v0
    s_lshl_b32 s{A}, s{sWR_}, 6
    v_add_u32 v{t+1}, s{A}, v{t}
    v_lshlrev_b32 v{t+1}, 7, v{t+1}
    v_lshrrev_b32 v{t+2}, 5, v0
    v_bfe_u32 v{t+3}, v0, 1, 3
    v_xor_b32 v{t+3}, v{t+3}, v{t+2}
    v_lshl_add_u32 v{aX}, v{t+3}, 4, v{t+1}""")
    for s in range(1,4): p(f"v_xor_b32 v{aX+s}, {32*s}, v{aX}")
    p(f"""v_bfe_u32 v{t+3}, v0, 2, 2
    v_lshl_add_u32 v{t+4}, v{t+2}, 3, v{t+3}
    v_lshlrev_b32 v{t+4}, 8, v{t+4}
    s_lshl_b32 s{A}, s{sWC}, 1
    s_or_b32 s{A}, s{A}, s{sWR_}
    v_xor_b32 v{t+3}, s{A}, v{t+3}
    v_lshl_add_u32 v{t+4}, v{t+3}, 6, v{t+4}
    v_bfe_u32 v{t+3}, v0, 4, 1
    v_lshl_add_u32 v{t+4}, v{t+3}, 5, v{t+4}
    v_and_b32 v{t+5}, 3, v0
    v_lshl_add_u32 v{t+4}, v{t+5}, 3, v{t+4}
    v_add_u32 v{aW}, 16384, v{t+4}
    v_xor_b32 v{aW+1}, 64, v{aW}
    v_bfe_u32 v{t+4}, v0, 2, 1
    v_cmp_eq_u32 vcc, v{t+3}, v{t+4}
    v_mov_b32 v{t+5}, 0x3f803f80
    s_nop 0
    v_cndmask_b32 v{SEL}, 0, v{t+5}, vcc
    v_cndmask_b32 v{SEL+1}, 0, v{t+5}, vcc
    v_cndmask_b32 v{SEL+2}, 0, v{t+5}, vcc
    v_cndmask_b32 v{SEL+3}, 0, v{t+5}, vcc""")
    for r in list(range(ACC,ACC+64))+list(range(CS,CS+4)): p(f"v_mov_b32 v{r}, 0")
    store_addr(sWR_,sLC,sTY,sSO,sSO2,sHALO,sFO,aST,sT+10,sT+11)
    p(f"s_mov_b32 s{sHAL2}, s{sHALO}")
sHAL2=sDBG
def wave_ids(wave,wr,wc,lc,ty):
    p(f"""s_and_b32 s{wr}, s{wave}, 1
    s_lshr_b32 s{wc}, s{wave}, 1
    s_lshl_b32 s{lc}, s{sCT}, 1
    s_add_u32 s{lc}, s{lc}, s{wc}
    s_mul_i32 s{ty}, s{lc}, 52
    s_lshr_b32 s{ty}, s{ty}, 8""")
def store_addr(wr,lc,ty,so,so2,halo,fo,ast,A,B,t=2):
    p(f"""v_and_b32 v{t}, 31, v0
    v_lshrrev_b32 v{t+2}, 5, v0
    s_mul_i32 s{A}, s{ty}, 5
    s_sub_u32 s{A}, s{lc}, s{A}
    s_mul_i32 s{B}, s{sHH}, 5
    s_add_u32 s{A}, s{A}, s{B}
    s_lshl_b32 s{B}, s{sRQ}, 2
    s_add_u32 s{B}, s{B}, s{sRB}
    s_lshl_b32 s{B}, s{B}, 1
    s_add_u32 s{B}, s{B}, s{wr}
    s_lshl_b32 s{B}, s{B}, 1""")
    isv=p.lab("isv"); jn=p.lab("stj")
    p(f"""s_cmp_ge_u32 s{ty}, 2
    s_cbranch_scc1 {isv}
    s_mul_i32 s{so}, s{B}, 2560
    s_mul_i32 s{B}, s{ty}, {KB}
    s_add_u32 s{so}, s{so}, s{B}
    s_add_u32 s{so2}, s{so}, 2560
    s_lshl_b32 s{A}, s{A}, 3""")
    for cb in range(2):
        for ip in range(2):
            p(f"""s_xor_b32 s{B}, s{wr}, {cb}
            s_lshl_b32 s{B}, s{B}, 2
            s_add_u32 s{B}, s{B}, s{A}
            s_add_u32 s{B}, s{B}, {2*ip}
            v_add_u32 v{t+3}, s{B}, v{t+2}
            v_mul_u32_u24 v{t+4}, 205, v{t+3}
            v_lshrrev_b32 v{t+4}, 10, v{t+4}
            v_mul_u32_u24 v{t+5}, 5, v{t+4}
            v_sub_u32 v{t+5}, v{t+3}, v{t+5}
            v_mul_u32_u24 v{t+4}, {64*2560}, v{t+4}
            v_lshl_add_u32 v{t+4}, v{t+5}, 9, v{t+4}
            v_lshl_add_u32 v{ast+2*cb+ip}, v{t}, 4, v{t+4}""")
    p(f"""s_branch {jn}
    {isv}:
    s_mul_i32 s{so}, s{B}, 1280
    s_add_u32 s{so}, s{so}, {VB}
    s_add_u32 s{so2}, s{so}, 1280
    s_lshl_b32 s{A}, s{A}, 6""")
    for cb in range(2):
        p(f"""s_xor_b32 s{B}, s{wr}, {cb}
        s_lshl_b32 s{B}, s{B}, 5
        s_add_u32 s{B}, s{B}, s{A}
        v_add_u32 v{t+3}, s{B}, v{t}
        v_mul_u32_u24 v{t+4}, 3277, v{t+3}
        v_lshrrev_b32 v{t+4}, 16, v{t+4}
        v_mul_u32_u24 v{t+5}, 20, v{t+4}
        v_sub_u32 v{t+5}, v{t+3}, v{t+5}
        v_mul_u32_u24 v{t+4}, 81920, v{t+4}
        v_lshl_add_u32 v{t+4}, v{t+5}, 4, v{t+4}
        v_mul_u32_u24 v{t+5}, 320, v{t+2}
        v_add_u32 v{ast+2*cb}, v{t+4}, v{t+5}
        v_add_u32 v{ast+2*cb+1}, 640, v{ast+2*cb}""")
    p(f"""{jn}:
    s_sub_u32 s{A}, s{ty}, 1
    s_cmp_lt_u32 s{A}, 2
    s_cselect_b32 s{halo}, 1, 0
    s_cmp_ge_u32 s{sRB}, 2
    s_cselect_b32 s{halo}, s{halo}, 0
    s_cmp_lt_u32 s{sRQ}, 3
    s_cselect_b32 s{halo}, s{halo}, 0
    s_lshl_b32 s{fo}, s{sG}, 4
    s_add_u32 s{fo}, s{fo}, s{lc}
    s_lshl_b32 s{fo}, s{fo}, 5
    s_lshl_b32 s{A}, s{sRB}, 1
    s_add_u32 s{A}, s{A}, s{wr}
    s_add_u32 s{fo}, s{fo}, s{A}
    s_lshl_b32 s{fo}, s{fo}, 2
    s_add_u32 s{fo}, s{fo}, {FL}""")
def xf(buf,xb): return XF+8*buf+4*xb
def wf(buf,cb): return WF+8*buf+4*cb
def reads(kind,buf,par,s):
    L=[]
    for xb in range(2): L.append(f"ds_read_b128 {vr(xf(buf,xb),4)}, v{aX+s} offset:{par*32768+xb*4096}")
    if kind!='S':
        for cb in range(2):
            for rd in range(2): L.append(f"ds_read_b64_tr_b16 {vr(wf(buf,cb)+2*rd,2)}, v{aW+cb} offset:{par*32768+s*4096+rd*1024}")
        L=[L[2],L[3],L[0],L[1],L[4],L[5]]
    return L
def mfmas(kind,buf):
    L=[]
    if kind=='S':
        for xb in range(2):
            x=xf(buf,xb)
            L.append(f"v_mfma_f32_16x16x32_bf16 {vr(ACC+4*xb,4)}, {vr(SEL,4)}, {vr(x,4)}, {vr(ACC+4*xb,4)}")
            L.append(f"v_mfma_f32_4x4x4_16b_bf16 {vr(ACC+8+8*xb,4)}, {vr(x,2)}, {vr(x,2)}, {vr(ACC+8+8*xb,4)}")
            L.append(f"v_mfma_f32_4x4x4_16b_bf16 {vr(ACC+12+8*xb,4)}, {vr(x+2,2)}, {vr(x+2,2)}, {vr(ACC+12+8*xb,4)}")
        return L
    for cb in range(2):
        for xb in range(2):
            a=ACC+16*(2*xb+cb); X=vr(xf(buf,xb),4); W=vr(wf(buf,cb),4)
            L.append(f"v_mfma_f32_32x32x16_bf16 {vr(a,16)}, {W if kind=='T' else X}, {X if kind=='T' else W}, {vr(a,16)}")
    L.insert(2,f"v_mfma_f32_16x16x32_bf16 {vr(CS,4)}, {vr(SEL,4)}, {vr(wf(buf,0),4)}, {vr(CS,4)}")
    return L
def gemm_loop(kind):
    CNT=sT+10
    lp=p.lab("g"+kind)
    STAMP('rdy')
    p("s_barrier")
    STAMP('b0')
    for r in reads(kind,0,0,0): p(r)
    if CFG['clr']==1 and not CFG['hclr']: clears(1)
    cl_=p.lab("clr"); cr_=p.lab("clrr")
    if CFG['clr']>1:
        n0=len(p.L); p(f"{cl_}:"); clears(1); p(f"s_branch {cr_}")
        COLD.append("\n".join(p.L[n0:])); del p.L[n0:]
    hl=p.lab("hello"); hr=p.lab("hellor")
    if not CFG['hclr']:
        COLD.append(f"""{hl}:
        s_getreg_b32 s{CNT+1}, hwreg(HW_REG_XCC_ID, 0, 4)
        s_or_b32 s{CNT+1}, s{CNT+1}, s{sTAG}
        v_mov_b32 v{vT}, s{CNT+1}
        s_lshl_b32 s{CNT+1}, s2, 2
        s_add_u32 s{CNT+1}, s{CNT+1}, {H1}
        v_mov_b32 v{vT+1}, 0
        s_mov_b64 exec, 1
        buffer_store_dword v{vT}, v{vT+1}, {S4(sWS)}, s{CNT+1} offen sc1
        s_mov_b64 exec, -1
        s_branch {hr}""")
        p(f"s_lshl_b32 s{CNT+2}, s{sWAVE}, 3\ns_add_u32 s{CNT+2}, s{CNT+2}, {5-CFG['clr']}")
    p(f"s_mov_b32 s{CNT}, 5\n{lp}:")
    if CFG['clr']>1: p(f"s_cmp_eq_u32 s{CNT}, {6-CFG['clr']}\ns_cbranch_scc1 {cl_}\n{cr_}:")
    for k in range(1,5):
        if (CFG['cal'] and CFG['cal'][0]=='it%d'%(2*k)) or (CFG['amp'] and 'it%d'%(2*k) in CFG['amp'][:2]) or (CFG['prof'] and any('it%d'%(2*k) in n.split('|') for n in CFG['st'])):
            sk=p.lab("its"); p(f"s_cmp_lg_u32 s{CNT}, {5-k}\ns_cbranch_scc1 {sk}"); STAMP('it%d'%(2*k)); p(f"{sk}:")
    for par in range(2):
        for s in range(4):
            buf=s&1
            last=(s==3)
            M=mfmas(kind,buf)
            if CFG['nomfma']: M=M[:1]
            if last and par==1:
                pre=[f"v_xor_b32 v{aX+i}, 0x10000, v{aX+i}" for i in range(4)]+[f"v_xor_b32 v{aW+i}, 0x10000, v{aW+i}" for i in range(2)]
            else: pre=[]
            R=reads(kind,buf^1,(par^1) if last else par,(s+1)&3)
            p("s_waitcnt lgkmcnt(0)")
            if last:
                p(M.pop(0))
                for x in pre: p(x)
                if par==0 and not CFG['hclr']:
                    w1=p.lab("cw"); w2=p.lab("cwr")
                    p(f"s_cmp_eq_u32 s{CNT}, {5-CFG['clr']}\ns_cbranch_scc1 {w1}\n{w2}:")
                    COLD.append(f"{w1}:\ns_waitcnt vmcnt(0)\ns_branch {w2}")
                p("s_barrier")
                if par==0 and not CFG['hclr']: p(f"s_cmp_eq_u32 s{CNT}, s{CNT+2}\ns_cbranch_scc1 {hl}\n{hr}:")
            k=0
            while M or R:
                if R: p(R.pop(0))
                if R: p(R.pop(0))
                if M: p(M.pop(0))
    p(f"""s_sub_u32 s{CNT}, s{CNT}, 1
    s_cmp_lg_u32 s{CNT}, 0
    s_cbranch_scc1 {lp}""")
    STAMP('gend')
def bf16r(dst,src):
    p(f"v_cvt_pk_bf16_f32 v{dst}, v{src}, v{src}\nv_and_b32 v{dst}, 0xffff0000, v{dst}")
def mode_read():
    p(f"""v_mov_b32 v{vT+8}, {L_MODE}
    ds_read_b32 v{vT+9}, v{vT+8}""")
def mode_get():
    p(f"v_readfirstlane_b32 s{sMODE}, v{vT+9}")
def dual(stores,pol=''):
    sl=p.lab("slow"); jn=p.lab("jn")
    p(f"s_cmp_lg_u32 s{sMODE}, 0\ns_cbranch_scc1 {sl}")
    for s in stores: p(s+" "+pol)
    p(f"s_branch {jn}\n{sl}:")
    for s in stores: p(s+" sc1")
    p(f"{jn}:")
def idle_gemm():
    vt=10; aI=20; acc=28; one=32; D=64; A=sT+10
    p(f"""s_lshl_b32 s{A}, s{sWR_}, 13
    v_bfe_u32 v{vt}, v0, 1, 3
    v_lshlrev_b32 v{vt}, 4, v{vt}
    v_lshl_add_u32 v{vt}, v0, 7, v{vt}
    v_add_u32 v{aI}, s{A}, v{vt}
    v_mov_b32 v{one}, 0x3f803f80
    s_lshl_b32 s{A}, s{sG}, 2
    s_add_u32 s{A}, s{A}, s{sRB}
    s_lshl_b32 s{A}, s{A}, 14
    s_lshl_b32 s{A+1}, s{sWR_}, 10
    s_add_u32 s{A}, s{A}, s{A+1}
    s_add_u32 s{A}, s{A}, {STP+7*2048}
    v_lshlrev_b32 v{vt}, 4, v0""")
    for i in range(1,8): p(f"v_xor_b32 v{aI+i}, {16*i}, v{aI}")
    for i in range(4): p(f"v_mov_b32 v{acc+i}, 0")
    k=CFG['clr']
    for c in range(11):
        if c==1+2*k and not CFG['hclr']: p(f"s_waitcnt vmcnt({1 if k==1 else 0})")
        p("s_barrier")
        if k and c==2*k-2 and c!=2: clears(1)
        if c<3:
            if c==2:
                for i in range(8): p(f"v_add_u32 v{aI+i}, 0x10000, v{aI+i}")
            for i in range(8): p(f"ds_read_b128 {vr(D+4*i,4)}, v{aI+i} offset:{(c&1)*32768}")
            for i in range(8):
                p(f"s_waitcnt lgkmcnt({7-i})")
                for j in range(4):
                    r=D+4*i+j
                    p(f"v_dot2_f32_bf16 v{acc+(j&1)}, v{r}, v{one}, v{acc+(j&1)}\nv_dot2_f32_bf16 v{acc+2+(j&1)}, v{r}, v{r}, v{acc+2+(j&1)}")
        if c==2: p(f"""s_nop 1
            v_add_f32 v{acc}, v{acc}, v{acc+1}
            v_add_f32 v{acc+1}, v{acc+2}, v{acc+3}
            v_mov_b32 v{acc+2}, s{sTAG}
            buffer_store_dwordx4 {vr(acc,4)}, v{vt}, {S4(sWS)}, s{A} offen sc1""")
        if k==2 and c==2: clears(1)
    p("s_barrier")
    mode_read()
    p("s_waitcnt lgkmcnt(0)")
    mode_get()
def gemm_epi(kind):
    t=vT; A=sT+10
    AU=20
    WA=24
    XA=28
    RS=32
    p(f"""v_and_b32 v{t}, 31, v0
    s_lshl_b32 s{A}, s{sWC}, 1
    s_or_b32 s{A}, s{A}, s{sWR_}
    s_lshl_b32 s{A}, s{A}, 7
    s_add_u32 s{A}, s{A}, {L_CS}
    v_lshl_add_u32 v{t+1}, v{t}, 2, s{A}
    s_lshl_b32 s{A}, s{sWR_}, 9
    s_add_u32 s{A}, s{A}, {L_SA}
    v_lshl_add_u32 v{t+3}, v{t}, 3, s{A}
    ds_write_b32 v{t+1}, v{CS}
    v_xor_b32 v{t+2}, 128, v{t+1}
    v_mov_b32 v{WA+1}, 0
    v_mov_b32 v{WA+3}, 0
    v_mov_b32 v{XA+1}, 0
    v_mov_b32 v{XA+3}, 0""")
    if kind=='V':
        p(f"""v_lshrrev_b32 v{t+4}, 5, v0
        s_lshl_b32 s{A}, s{sWR_}, 8
        s_add_u32 s{A}, s{A}, {L_SR}
        v_lshl_add_u32 v{t+4}, v{t+4}, 4, s{A}""")
    p("s_waitcnt lgkmcnt(0)\ns_barrier")
    STAMP('E1',1)
    p(f"""ds_read_b32 v{CS+1}, v{t+2}
    ds_read_b64 v[{AU}:{AU+1}], v{t+3}
    ds_read_b64 v[{AU+2}:{AU+3}], v{t+3} offset:256""")
    mode_read()
    if kind=='V':
        for xb in range(2):
            for i in range(4): p(f"ds_read_b128 {vr(RS+16*xb+4*i,4)}, v{t+4} offset:{xb*128+i*32}")
    def split(cb):
        c=CS+cb
        p(f"""v_cndmask_b32 v{c}, 0, v{c}, s[{sLO}:{sLO+1}]
        v_cvt_pk_bf16_f32 v{t+5}, v{c}, v{c}
        v_and_b32 v{t+5}, 0xffff0000, v{t+5}
        v_sub_f32 v{t+6}, v{c}, v{t+5}
        v_cvt_pk_bf16_f32 v{WA+2*cb}, v{t+5}, v{t+6}""")
    split(0)
    p(f"s_waitcnt lgkmcnt({8 if kind=='V' else 0})")
    split(1)
    p(f"v_mov_b32 v{XA}, v{AU}\nv_mov_b32 v{XA+2}, v{AU+2}")
    mode_get()
    if kind=='T':
        p(f"""s_cmp_eq_u32 s{sTY}, 0
        s_cselect_b32 s{A}, {hex(f2u(20**-0.5*math.log2(math.e)))}, 1.0
        v_mul_f32 v{AU+1}, s{A}, v{AU+1}
        v_mul_f32 v{AU+3}, s{A}, v{AU+3}""")
    else: p("s_nop 0")
    for xb in range(2):
        for cb in range(2):
            a=ACC+16*(2*xb+cb); X=vr(XA+2*xb,2); W=vr(WA+2*cb,2)
            p(f"v_mfma_f32_32x32x8_bf16 {vr(a,16)}, {W if kind=='T' else X}, {X if kind=='T' else W}, {vr(a,16)}")
    p("s_waitcnt lgkmcnt(0)\ns_nop 7")
    allst=[]
    for xb in range(2):
        st=[]
        for cb in range(2):
            a=ACC+16*(2*xb+cb)
            for k in range(8):
                if kind=='T': p(f"v_pk_mul_f32 {vr(a+2*k,2)}, {vr(a+2*k,2)}, {vr(AU+2*xb,2)} op_sel:[0,1] op_sel_hi:[1,1]")
                else: p(f"v_pk_mul_f32 {vr(a+2*k,2)}, {vr(a+2*k,2)}, {vr(RS+16*xb+2*k,2)}")
            for k in range(8): p(f"v_cvt_pk_bf16_f32 v{a+k}, v{a+2*k}, v{a+2*k+1}")
            if kind=='T':
                p(f"""v_permlane32_swap_b32 v{a}, v{a+2}
                v_permlane32_swap_b32 v{a+1}, v{a+3}
                v_permlane32_swap_b32 v{a+4}, v{a+6}
                v_permlane32_swap_b32 v{a+5}, v{a+7}""")
            for h in range(2):
                st.append(f"buffer_store_dwordx4 {vr(a+4*h,4)}, v{aST+2*cb+h}, {S4(sWS)}, s{sSO2 if xb else sSO} offen")
                allst.append(a+4*h)
        dual(st,CFG['qpol'])
    STAMP('st')
    nh=p.lab("nohalo"); jh=p.lab("jhalo")
    hst=[f"buffer_store_dwordx4 {vr(allst[i],4)}, v{aST+(i&3)}, {S4(sWS)}, s{A+(i>>2)} offen sc1" for i in range(8)]
    p(f"""v_mov_b32 v{t}, 0
    v_mov_b32 v{t+1}, s{sTAG}
    s_add_u32 s{A}, s{sSO}, {KH-KB}
    s_add_u32 s{A+1}, s{sSO2}, {KH-KB}""")
    if CFG['hearly']:
        p(f"s_cmp_eq_u32 s{sHALO}, 0\ns_cbranch_scc1 {nh}")
        for x in hst: p(x)
        p(f"s_waitcnt vmcnt(8)\ns_branch {jh}\n{nh}:\ns_waitcnt vmcnt(0)\n{jh}:")
    else: p("s_waitcnt vmcnt(0)")
    p("s_mov_b64 exec, 1")
    dual([f"buffer_store_dword v{t+1}, v{t}, {S4(sWS)}, s{sFO} offen"])
    p(f"s_mov_b64 exec, -1")
    if not CFG['hearly']:
        p(f"s_cmp_eq_u32 s{sHALO}, 0\ns_cbranch_scc1 {nh}")
        for x in hst: p(x)
        p(f"{nh}:")
    STAMP('fl')
import struct
def f2u(x): return struct.unpack("<I",struct.pack("<f",x))[0]

aLin,aTl,aKm,aKt,aV,aFl,aO,aQ0,aQ1=246,247,248,249,250,251,252,253,254
QM=[28,34]; QT=[32,38]; PP=40
KM=[48,62]; KT=[52,66]; VV=[[54,58],[68,72]]
SS=[80,96]; OO=[112,128]; CD=200; CF=230
cVM=8; sQ=[10,11]; sOm=[12,13]; sOt=[14,15]; cXO,cJ,cF,cK,cV,cL,cHO,cT0,cHX=range(16,25); sOSC=sT+15; sFB=sT+16; aWR=225
NINF="0xff800000"
def att_setup():
    t=vT; A=sT+7; B=sT+8; C=sT+17; sF=cF
    wo_pre1()
    att_ids()
    p(f"v_mov_b32 v{aCLS}, 0x207")
    if CFG['hkv']: p(f"v_lshlrev_b32 v{aLin}, 4, v0\nv_mov_b32 v{aFl}, {F_G1}")
    else:
        flag_addr(aFl,t,1,A,B,C)
        p(f"""s_lshl_b32 s{sF}, s{sG}, 11
        s_lshl_b32 s{A}, s{sHF}, 4
        s_add_u32 s{sF}, s{sF}, s{A}
        s_add_u32 s{sF}, s{sF}, {FL}
        s_mov_b32 s{sK1024}, 1024""")
        kv_addr(aLin,aTl,t)
    p(f"""v_add_u32 v{aKm}, {L_KV}, v{aLin}
    v_and_b32 v{t}, 31, v0
    v_lshrrev_b32 v{t+1}, 5, v0
    v_xor_b32 v{t+2}, s{sHO}, v{t+1}
    v_lshlrev_b32 v{t+2}, 3, v{t+2}
    v_lshl_add_u32 v{t+2}, v{t}, 4, v{t+2}
    v_add_u32 v{aKt}, {L_KV+2048}, v{t+2}
    v_mul_u32_u24 v{t+2}, 320, v{t+1}
    v_lshl_add_u32 v{t+2}, v{t}, 4, v{t+2}
    v_add_u32 v{aV}, {L_KV+3072}, v{t+2}
    v_lshlrev_b32 v{t+2}, 2, v{t+1}
    v_sub_u32 v{t+2}, v{t}, v{t+2}
    v_mov_b32 v{t+3}, {NINF}""")
    for i in range(16):
        m=C+1+2*(i%2)+((C+1)%2)
        ri=8*(i>>2)+(i&3)
        p(f"v_cmp_le_i32 s[{m}:{m+1}], {ri}, v{t+2}")
        if i>0:
            m2=C+1+2*((i-1)%2)+((C+1)%2)
            if i==1: p("s_nop 0")
            p(f"v_cndmask_b32 v{CD+i-1}, v{t+3}, 0, s[{m2}:{m2+1}]\nv_cndmask_b32 v{CF+i-1}, 0, v{t+3}, s[{m2}:{m2+1}]")
    p(f"""s_nop 0
    v_cndmask_b32 v{CD+15}, v{t+3}, 0, s[{m}:{m+1}]
    v_cndmask_b32 v{CF+15}, 0, v{t+3}, s[{m}:{m+1}]
    v_cmp_eq_u32 s[{m}:{m+1}], 20, v{t}
    v_cmp_eq_u32 vcc, 24, v{t}
    s_mov_b32 s{cHO}, s{sHO}
    s_or_b64 s[{cVM}:{cVM+1}], vcc, s[{m}:{m+1}]""")
    p(f"""v_bfe_u32 v{t+2}, v0, 4, 1
    v_mul_u32_u24 v{t+2}, 20480, v{t+2}
    v_lshl_add_u32 v{t+2}, v{t+1}, 8, v{t+2}
    v_and_b32 v{t+3}, 15, v0
    v_lshl_add_u32 v{aO}, v{t+3}, 4, v{t+2}
    s_xor_b32 s{cHX}, s{sHF}, s{sHH}
    s_mov_b32 s{cT0}, s{sT0}
    s_lshl_b32 s{A}, s{sWAVE}, 1
    s_sub_u32 s{A}, 7, s{A}
    v_mul_u32_u24 v{t+2}, s{A}, v0
    s_add_u32 s{A}, s{sT0}, s{sWAVE}
    v_add_lshl_u32 v{aFO}, v{t+2}, s{A}, 12
    s_lshl_b32 s{A}, s{sHD}, 7
    s_add_u32 s{A}, s{A}, {FO}
    v_add_u32 v{aFO}, s{A}, v{aFO}""")
    for q in range(2):
        if q==0: p(f"s_add_u32 s{A}, s{sT0}, 7\ns_sub_u32 s{A}, s{A}, s{sWAVE}")
        else: p(f"s_add_u32 s{A}, s{sT0}, s{sWAVE}")
        p(f"""s_mul_i32 s{sQ[q]}, s{A}, 2560
        s_mul_i32 s{B}, s{sPH}, {64*2560}
        s_add_u32 s{sQ[q]}, s{sQ[q]}, s{B}
        s_mul_i32 s{A}, s{A}, 40960
        s_mul_i32 s{B}, s{sPH}, 1280
        s_add_u32 s{A}, s{A}, s{B}
        s_add_u32 s{A}, s{A}, {OB}
        s_mul_i32 s{B}, s{sHO}, 768
        s_add_u32 s{sOm[q]}, s{A}, s{B}
        s_lshl_b32 s{B}, s{sHO}, 3
        s_add_u32 s{sOt[q]}, s{A}, s{B}""")
    sK=cK; sV=cV; sL=cL
    if not CFG['hkv']: p(f"""s_lshl_b32 s{A}, s{sWAVE}, 1
    s_add_u32 s{A}, s{A}, s{sT0}
    s_mul_i32 s{sK}, s{A}, 2560
    s_mul_i32 s{sV}, s{A}, 1280
    s_mul_i32 s{A}, s{sPH}, {64*2560}
    s_add_u32 s{sK}, s{sK}, s{A}
    s_add_u32 s{sK}, s{sK}, {KB}
    s_mul_i32 s{A}, s{sHD}, 81920
    s_add_u32 s{sV}, s{sV}, s{A}
    s_add_u32 s{sV}, s{sV}, {VB}
    s_mul_i32 s{sL}, s{sWAVE}, 5632
    s_add_u32 s{sL}, s{sL}, {L_KV+4*5632}""")
    p(f"""s_mul_i32 s{A}, s{sHO}, 1536
    v_add_u32 v{aQ0}, s{A}, v{aLin}
    s_lshl_b32 s{A}, s{sHO}, 3
    v_add_u32 v{aQ1}, s{A}, v{aLin}""")
def att_go():
    t=vT; A=sT+7; B=sT+8; C=sT+17
    nh=p.lab("nohs"); lp=p.lab("fp"); ok=p.lab("fpok"); md=p.lab("fpm")
    ld=f"buffer_load_dword v{t+10}, v{aFl}, {S4(sWS)}, s{cF} offen sc1"
    if not CFG['hkv']: p(ld)
    p(f"""v_mov_b32 v{t+4}, 0x3f803f80
    s_or_b32 s{sOSC}, s{cHX}, s{sMODE}
    s_mov_b32 s{sFB}, 0
    s_mul_i32 s{A}, s{sMODE}, {OB2-OB}
    v_add_u32 v{aO}, s{A}, v{aO}""")
    for b_ in range(2):
        for mm in range(2):
            for r in range(4): p(f"v_cndmask_b32 v{VV[b_][mm]+r}, 0, v{t+4}, s[{cVM}:{cVM+1}]")
    for q in range(2): p(f"v_mov_b32 v{QT[q]}, 0\nv_mov_b32 v{QT[q]+1}, 0")
    if CFG['osent']: wo_scal()
    assert CFG['hsent'] or not CFG['hkv']
    if CFG['hkv']:
        p(f"v_mov_b32 v{t+4}, {F_FS}"); lds_wait(t+4,t+5,C,'gt',1,0)
    else:
        p(f"""s_lshr_b32 s{A}, s{sWAVE}, 1
        s_lshl_b32 s{A}, s{A}, 2
        s_add_u32 s{A}, s{A}, {F_STG}
        v_mov_b32 v{t+4}, s{A}
        v_mov_b32 v{t+5}, 1
        s_mov_b32 s{C}, {SPIN}
        s_cmp_eq_u32 s{sHAL2}, 0
        s_waitcnt vmcnt(0)
        s_cbranch_scc1 {nh}
        s_mov_b64 exec, 1
        ds_add_u32 v{t+4}, v{t+5}
        s_mov_b64 exec, -1
        {nh}:""")
        STAMP('hack')
        p(f"""s_branch {md}
        {lp}:
        {ld}
        s_waitcnt vmcnt(0)
        {md}:
        v_cmp_ne_u32 vcc, s{sTAG}, v{t+10}
        s_nop 0
        s_cbranch_vccz {ok}""")
        spin(C,lp,ok)
        p(f"s_branch {lp}\n{ok}:")
    STAMP('fseen')
    if not CFG['hkv']: kv_dma(aLin,aTl,cK,cV,cL,A,B,cHO)
    for q in range(2): p(f"buffer_load_dwordx4 {vr(QM[q],4)}, v{aQ0}, {S4(sWS)}, s{sQ[q]} offen sc1")
    p(f"s_mov_b64 exec, s[{sLO}:{sLO+1}]")
    for q in range(2): p(f"buffer_load_dwordx2 {vr(QT[q],2)}, v{aQ1}, {S4(sWS)}, s{sQ[q]} offen offset:1024 sc1")
    if CFG['hkv']: p("s_mov_b64 exec, -1")
    else: p(f"""s_mov_b64 exec, 1
    v_mov_b32 v{t}, {F_G1}
    v_mov_b32 v{t+1}, 1
    s_waitcnt vmcnt(4)
    ds_add_u32 v{t}, v{t+1}
    s_mov_b64 exec, -1
    v_mov_b32 v{aFl}, {F_G1}""")
    if CFG['hkv']: lds_wait(aFl,t+5,C,'gt',4,0)
    for o,n in ((0,4),(4,4),(8,2)): p(f"buffer_load_dwordx{n} {vr(XR+o,n)}, v{aX2}, {S4(sX)}, s{cXO} offen offset:{4*o}")
    for o,n in ((0,4),(4,4),(8,2)): p(f"buffer_load_dwordx{n} {vr(WR_+o,n)}, v{aWR}, {S4(sWR)}, s{cJ} offen offset:{4*o}")
    if not CFG['hkv']: lds_wait(aFl,t+5,C,'gt',4,0)
    p(f"s_waitcnt vmcnt(6)")
    STAMP('kv')
    p(f"""s_cmp_eq_u32 s{sWAVE}, 1
    s_cbranch_scc1 L_av1
    s_cmp_eq_u32 s{sWAVE}, 2
    s_cbranch_scc1 L_av2
    s_cmp_eq_u32 s{sWAVE}, 3
    s_cbranch_scc1 L_av3""")
def kreads(n,b_):
    o=(n>>1)*5632
    return [f"ds_read_b128 {vr(KM[b_],4)}, v{aKm} offset:{o+(n&1)*1024}", f"ds_read_b64 {vr(KT[b_],2)}, v{aKt} offset:{o+(n&1)*512}"]
def vreads(n,b_):
    o=(n>>1)*5632+(n&1)*1280
    return [f"s_mov_b64 exec, s[{sLO+2}:{sLO+3}]", f"ds_read_b128 {vr(VV[b_][0],4)}, v{aV} offset:{o}", f"ds_read_b128 {vr(VV[b_][1],4)}, v{aV} offset:{o+640}", "s_mov_b64 exec, -1"]
def att_variant(w):
    U=[]
    for n in range(15-w,8+w,-1): U.append((0,n))
    for n in range(8+w,6-w,-1): U+= [(0,n),(1,n)]
    for n in range(6-w,w-1,-1): U.append((1,n))
    assert len(U)==18
    diag=[15-w,8+w]
    tiles=[]; tau=[]
    for q,n in U:
        if not tiles or tiles[-1]!=n: tiles.append(n)
        tau.append(len(tiles)-1)
    first=[tau.index(i) for i in range(len(tiles))]
    started=[0,0]
    def QK(u):
        q,n=U[u]; b_=tau[u]&1; S=vr(SS[u&1],16)
        c=vr(CD,16) if n==diag[q] else (vr(CF,16) if n==diag[q]-8 else "0")
        return [f"v_mfma_f32_32x32x16_bf16 {S}, {vr(KM[b_],4)}, {vr(QM[q],4)}, {c}", f"v_mfma_f32_32x32x8_bf16 {S}, {vr(KT[b_],2)}, {vr(QT[q],2)}, {S}"]
    def PV(u,m):
        q,n=U[u]; O=vr(OO[q],16)
        c=O if started[q] else "0"; started[q]=1
        return f"v_mfma_f32_32x32x16_bf16 {O}, {vr(VV[tau[u]&1][m],4)}, {vr(PP+4*m,4)}, {c}"
    p(f"L_av{w}:")
    for i,f in enumerate(first):
        if f<=1:
            for x in kreads(tiles[i],i&1): p(x)
    for x in vreads(tiles[0],0): p(x)
    p("s_waitcnt lgkmcnt(0)")
    for x in QK(0): p(x)
    p("s_nop 7\ns_nop 3")
    pend=False
    H=first[tiles.index(7)]
    for u in range(18):
        S=SS[u&1]
        e=lambda i: p(f"v_exp_f32 v{S+i}, v{S+i}")
        c=lambda k: p(f"v_cvt_pk_bf16_f32 v{PP+k}, v{S+2*k}, v{S+2*k+1}")
        kr=[x for i,f in enumerate(first) if f==u+2 for x in kreads(tiles[i],i&1)]
        vr_=[x for i,f in enumerate(first) if f==u+1 for x in vreads(tiles[i],i&1)]
        late=(u+2==H)
        STAMP('u%d'%u)
        e(0); e(1)
        if u>0: p(PV(u-1,1))
        e(2)
        if not late:
            for x in kr: p(x)
        if u+3==H: p(f"ds_read_b32 v{vT}, v{aFl} offset:{F_G2-F_G1}")
        e(3); c(0); c(1)
        if pend: p("s_waitcnt lgkmcnt(0)") if not (kr and not late) and u+3!=H else p(f"s_waitcnt lgkmcnt({(len(kr) if not late else 0)+(1 if u+3==H else 0)})")
        qk=QK(u+1) if u<17 else [None,None]
        if qk[0]: p(qk[0])
        e(4)
        if late:
            p(f"v_cmp_gt_u32 vcc, 2, v{vT}")
        e(5)
        if late:
            p(f"s_cbranch_vccnz L_g2w{w}\nL_g2r{w}:")
            for x in kr: p(x)
        for x in vr_: p(x)
        e(6); e(7); c(2); c(3)
        if qk[1]: p(qk[1])
        e(8); e(9); e(10); e(11)
        p(PV(u,0))
        c(4); c(5); e(12); e(13); e(14); e(15); c(6); c(7)
        pend=bool(kr or vr_ or u+3==H)
        if u==H-1:
            p(f"s_cmp_eq_u32 s{cT0}, 0\ns_cbranch_scc1 L_ex{w}")
            exq=PV(u,1)
    p("s_nop 1")
    p(PV(17,1))
    p("s_branch L_afin")
    p(f"L_g2w{w}:")
    p(f"v_mov_b32 v{vT+1}, {F_G2}")
    lds_wait(vT+1,vT,sT+17,'gt',2,1)
    p(f"s_branch L_g2r{w}\nL_ex{w}:\n{exq}\ns_waitcnt lgkmcnt(0)\ns_branch L_afin")
def att_fin():
    t=vT; A=sT+7
    p("L_afin:")
    STAMP('aend')
    p(f"s_mov_b32 s{A}, {hex(f2u(2.0**-40))}\ns_mov_b32 s{A+1}, {hex(f2u(2.0**40)-f2u(2.0**-40))}")
    for q in range(2):
        O=OO[q]
        p(f"""v_cndmask_b32 v{t}, v{O+8}, v{O+12}, s[{sLO}:{sLO+1}]
        v_pk_add_f32 v[{t+2}:{t+3}], v[{O}:{O+1}], v[{O+2}:{O+3}]
        v_rcp_f32 v{t+1}, v{t}
        v_pk_add_f32 v[{t+4}:{t+5}], v[{O+4}:{O+5}], v[{O+6}:{O+7}]
        v_pk_add_f32 v[{t+6}:{t+7}], v[{O+8}:{O+9}], v[{O+10}:{O+11}]
        v_subrev_u32 v{t}, s{A}, v{t}
        v_pk_add_f32 v[{t+2}:{t+3}], v[{t+2}:{t+3}], v[{t+4}:{t+5}]
        v_cmp_lt_u32 s[{A+11}:{A+12}], s{A+1}, v{t}
        v_pk_add_f32 v[{t+2}:{t+3}], v[{t+2}:{t+3}], v[{t+6}:{t+7}]
        v_add_f32 v{t+2}, v{t+2}, v{t+3}""")
        p(f"v_cmp_class_f32 vcc, v{t+2}, v{aCLS}")
        for k in range(6): p(f"v_pk_mul_f32 {vr(O+2*k,2)}, {vr(O+2*k,2)}, {vr(t,2)} op_sel:[0,1] op_sel_hi:[1,1]")
        p(f"""s_or_b64 vcc, vcc, s[{A+11}:{A+12}]
        s_cbranch_scc1 L_afb{q}
        L_afr{q}:""")
        for k in range(6): p(f"v_cvt_pk_bf16_f32 v{O+k}, v{O+2*k}, v{O+2*k+1}")
        p(f"s_cmp_lg_u32 s{sOSC}, 0")
        st=[f"buffer_store_dwordx4 {vr(O,4)}, v{aO}, {S4(sWS)}, s{sOm[q]} offen", f"s_mov_b64 exec, s[{sLO}:{sLO+1}]",
            f"buffer_store_dwordx2 {vr(O+4,2)}, v{aO}, {S4(sWS)}, s{sOt[q]} offen offset:512", "s_mov_b64 exec, -1"]
        p(f"s_cbranch_scc1 L_osc{q}")
        for x in st: p(x+(" "+CFG['apol'] if x.startswith("buffer") else ""))
        p(f"s_branch L_osr{q}\nL_osc{q}:")
        for x in st: p(x+(" sc1" if x.startswith("buffer") else ""))
        p(f"L_osr{q}:")
    p(f"""v_mov_b32 v{t}, {F_DONE}
    v_mov_b32 v{t+1}, 1
    s_mov_b64 exec, 1
    ds_add_u32 v{t}, v{t+1}
    s_mov_b64 exec, -1""")
    STAMP('ost')
aCLS=255; aFO=226; aFR=227
def att_cold():
    t=vT; A=sT+7; B=sT+8; N=sT+17; J=sT+18; CN=sT+19; PA=sT+20
    for q in range(2): p(f"L_afb{q}:\ns_cmp_lg_u32 s{sFB}, 0\ns_cbranch_scc1 L_afr{q}\ns_branch L_afb")
    p(f"L_afb:\ns_mov_b32 s{sFB}, 1\ns_waitcnt lgkmcnt(0)")
    S=SS[0]; MX=t+10; xa=t+11
    for q in range(2):
        lp=p.lab("fb"); nd=p.lab("fbnd"); nf=p.lab("fbnf"); p2=p.lab("fbp2"); nx=p.lab("fbnx"); ps=p.lab("fbps"); dn=p.lab("fbdn")
        for r in range(16): p(f"v_mov_b32 v{OO[q]+r}, 0")
        p(f"""v_mov_b32 v{MX}, {NINF}
        s_mov_b32 s{PA}, 0
        {ps}:""")
        if q==0: p(f"s_sub_u32 s{N}, 15, s{sWAVE}")
        else: p(f"s_add_u32 s{N}, 8, s{sWAVE}")
        p(f"""s_sub_u32 s{CN}, s{N}, 7
        s_cmp_eq_u32 s{cT0}, 0
        s_cselect_b32 s{CN}, s{CN}, 9
        s_mov_b32 s{J}, 0
        {lp}:
        s_lshr_b32 s{A}, s{N}, 1
        s_mul_i32 s{A}, s{A}, 5632
        s_and_b32 s{B}, s{N}, 1
        s_lshl_b32 s{sT+21}, s{B}, 10
        s_add_u32 s{sT+21}, s{sT+21}, s{A}
        v_add_u32 v{xa}, s{sT+21}, v{aKm}
        s_lshl_b32 s{sT+21}, s{B}, 9
        s_add_u32 s{sT+21}, s{sT+21}, s{A}
        v_add_u32 v{xa+1}, s{sT+21}, v{aKt}
        s_mul_i32 s{B}, s{B}, 1280
        s_add_u32 s{A}, s{A}, s{B}
        v_add_u32 v{xa+2}, s{A}, v{aV}
        ds_read_b128 {vr(KM[0],4)}, v{xa}
        ds_read_b64 {vr(KT[0],2)}, v{xa+1}
        s_mov_b64 exec, s[{sLO+2}:{sLO+3}]
        ds_read_b128 {vr(VV[0][0],4)}, v{xa+2}
        ds_read_b128 {vr(VV[0][1],4)}, v{xa+2} offset:640
        s_mov_b64 exec, -1
        s_waitcnt lgkmcnt(0)
        v_mfma_f32_32x32x16_bf16 {vr(S,16)}, {vr(KM[0],4)}, {vr(QM[q],4)}, 0
        v_mfma_f32_32x32x8_bf16 {vr(S,16)}, {vr(KT[0],2)}, {vr(QT[q],2)}, {vr(S,16)}
        v_mov_b32 v{xa}, {NINF}
        s_nop 11
        s_cmp_lg_u32 s{J}, 0
        s_cbranch_scc1 {nd}""")
        for r in range(16): p(f"v_cmp_eq_u32 vcc, 0, v{CD+r}\ns_nop 1\nv_cndmask_b32 v{S+r}, v{xa}, v{S+r}, vcc")
        p(f"{nd}:\ns_cmp_lg_u32 s{J}, 8\ns_cbranch_scc1 {nf}")
        for r in range(16): p(f"v_cmp_eq_u32 vcc, 0, v{CF+r}\ns_nop 1\nv_cndmask_b32 v{S+r}, v{xa}, v{S+r}, vcc")
        p(f"{nf}:\ns_cmp_lg_u32 s{PA}, 0\ns_cbranch_scc1 {p2}")
        for r in range(0,16,2): p(f"v_max3_f32 v{MX}, v{S+r}, v{S+r+1}, v{MX}")
        p(f"s_branch {nx}\n{p2}:")
        for r in range(16): p(f"v_sub_f32 v{S+r}, v{S+r}, v{MX}")
        for r in range(16): p(f"v_exp_f32 v{S+r}, v{S+r}")
        p("s_nop 0")
        for k in range(8): p(f"v_cvt_pk_bf16_f32 v{PP+k}, v{S+2*k}, v{S+2*k+1}")
        p("s_nop 1")
        for m in range(2): p(f"v_mfma_f32_32x32x16_bf16 {vr(OO[q],16)}, {vr(VV[0][m],4)}, {vr(PP+4*m,4)}, {vr(OO[q],16)}")
        p(f"""s_nop 11
        {nx}:
        s_sub_u32 s{N}, s{N}, 1
        s_add_u32 s{J}, s{J}, 1
        s_cmp_lt_u32 s{J}, s{CN}
        s_cbranch_scc1 {lp}
        s_cmp_lg_u32 s{PA}, 0
        s_cbranch_scc1 {dn}
        v_mov_b32 v{xa}, v{MX}
        s_mov_b32 s{PA}, 1
        s_nop 0
        v_permlane32_swap_b32 v{xa}, v{MX}
        s_nop 1
        v_max_f32 v{MX}, v{MX}, v{xa}
        s_branch {ps}
        {dn}:""")
    p("s_branch L_afin")

BF=28; AF=108; WACC=200; XR=176; WR_=186; aX2=196; aPS=197; aAL=198; aAR=199; SW=220; SELF=221; aPR=222; aKY=223; aCD=224
HP=40; HF_=50; LP=70; OP=80
sRT=sT+1; sOL=sT+2; sOR=sT+5; sXO=cXO; sPSO=sT+12; sRETRY=sT+13; sPRB=sT+14; sFLO=sT+16; sFRE=sT+18
def acc_init():
    for k in range(10): p(f"v_lshlrev_b32 v{WACC+2*k}, 16, v{XR+k}\nv_and_b32 v{WACC+2*k+1}, 0xffff0000, v{XR+k}")
def wo_pre1():
    t=vT; A=sT+7; B=sT+8
    wo_ids()
    p(f"""v_and_b32 v{t}, 15, v0
    v_lshrrev_b32 v{t+1}, 4, v0
    v_mul_u32_u24 v{aWR}, 40, v{t+1}
    v_mov_b32 v{t+3}, 1280
    v_mad_u32_u24 v{aX2}, v{t}, v{t+3}, v{aWR}
    s_lshl_b32 s{A}, s{sBLK}, 2
    s_add_u32 s{A}, s{A}, s{sWAVE}
    s_mul_i32 s{A}, s{A}, 20480
    s_mul_i32 s{cJ}, s{sJ}, 160
    s_add_u32 s{cXO}, s{A}, s{cJ}
    v_lshlrev_b32 v{aPS}, 7, v{t}
    v_lshl_add_u32 v{aPS}, v{t+1}, 5, v{aPS}
    v_lshlrev_b32 v{aFR}, 7, v{t}
    v_mul_u32_u24 v{t+2}, 640, v{t+1}
    v_bfe_u32 v{t+3}, v0, 2, 2
    v_mul_u32_u24 v{t+3}, 160, v{t+3}
    v_and_b32 v{t+4}, 3, v0
    v_mul_u32_u24 v{t+4}, 40, v{t+4}
    v_add3_u32 v{t+2}, v{t+2}, v{t+3}, v{t+4}
    s_mul_i32 s{A}, s{sHH}, 51200
    s_add_u32 s{B}, s{A}, {L_WO}
    v_add_u32 v{aAL}, s{B}, v{t+2}
    s_sub_u32 s{B}, {L_WO+51200}, s{A}
    v_add_u32 v{aAR}, s{B}, v{t+2}
    v_and_b32 v{t+2}, 7, v0
    v_mul_u32_u24 v{t+2}, 1280, v{t+2}
    v_bfe_u32 v{t+3}, v0, 3, 1
    v_lshl_add_u32 v{aPR}, v{t+3}, 7, v{t+2}""")
def wo_pre2():
    acc_init()
def probe(soff,cnt,first=True):
    t=vT
    lp=p.lab("pb"); ok=p.lab("pbok"); md=p.lab("pbm")
    p(f"s_mov_b32 s{cnt}, {SPIN}")
    if not first: p(f"s_branch {md}")
    p(f"""{lp}:
    buffer_load_dwordx3 v[{t+4}:{t+6}], v{aPR}, {S4(sWS)}, s{soff} offen offset:512 sc1""")
    if not first: p(f"{md}:")
    p(f"""s_waitcnt vmcnt(0)
    v_max_u32 v{t+4}, v{t+4}, v{t+6}
    v_cmp_eq_u32 vcc, -1, v{t+4}
    s_nop 0
    s_cbranch_vccz {ok}""")
    spin(cnt,lp,ok)
    p(f"s_branch {lp}\n{ok}:")
def red3(a,b,c,d):
    p(f"""v_mov_b32 v{d}, v{c}
    s_nop 0
    v_permlane32_swap_b32 v{a}, v{b}
    v_permlane32_swap_b32 v{c}, v{d}
    s_nop 0
    v_add_f32 v{a}, v{a}, v{b}
    v_add_f32 v{c}, v{c}, v{d}
    s_nop 1
    v_permlane16_swap_b32 v{a}, v{c}
    s_nop 0
    v_add_f32 v{a}, v{a}, v{c}
    v_add_f32 v{c}, v{a}, 0
    s_nop 1
    v_permlane16_swap_b32 v{a}, v{c}
    s_nop 0
    v_mov_b32 v{b}, v{a}
    s_nop 1
    v_permlane32_swap_b32 v{a}, v{b}""")
def wo_scal():
    A=sT+7; B=sT+8
    wo_ids()
    p(f"""s_lshl_b32 s{sRT}, s{sBLK}, 2
    s_add_u32 s{sRT}, s{sRT}, s{sWAVE}
    s_mul_i32 s{A}, s{sRT}, 20480
    s_mul_i32 s{B}, s{sMODE}, {OB2-OB}
    s_add_u32 s{A}, s{A}, s{B}
    s_add_u32 s{A}, s{A}, {OB}
    s_mul_i32 s{B}, s{sHH}, 10240
    s_add_u32 s{sOL}, s{A}, s{B}
    s_add_u32 s{sOL+1}, s{sOL}, 4096
    s_add_u32 s{sOL+2}, s{sOL}, 8192
    s_add_u32 s{A}, s{A}, 10240
    s_sub_u32 s{sOR}, s{A}, s{B}
    s_lshl_b32 s{sPSO}, s{sRT}, 11
    s_add_u32 s{sPSO}, s{sPSO}, {PS}
    s_mov_b32 s{sRETRY}, {1<<16}
    s_add_u32 s{sOR+1}, s{sOR}, 4096
    s_add_u32 s{sPRB}, s{sOR}, 8192""")
def wo_flags():
    A=sT+7; B=sT+8
    p(f"""s_lshr_b32 s{A}, s{sRT}, 1
    s_lshl_b32 s{A}, s{A}, 12
    s_lshl_b32 s{B}, s{sHH}, 11
    s_add_u32 s{A}, s{A}, {FO}
    s_add_u32 s{sFLO}, s{A}, s{B}
    s_xor_b32 s{sFRE}, s{sFLO}, 2048""")
def wo_gemm():
    t=vT; A=sT+7; B=sT+8; C=sT+17; MXS=t+8
    sROFF=[sOR,sOR+1,sPRB]
    LA=CFG['wla']; WE=CFG['wwe']
    LG=[]
    def af(m): return AF+4*(m%15)
    def aread(m):
        s_,t_=divmod(m,5)
        for rd in range(2):
            p(f"ds_read_b64_tr_b16 {vr(af(m)+2*rd,2)}, v{aAL if s_<10 else aAR} offset:{(s_%10)*5120+rd*2560+8*t_}"); LG.append(m)
    def lgw(m):
        k=[i for i,x in enumerate(LG) if x!='x' and x<=m]
        if not k: return None
        n=len(LG)-1-max(k); del LG[:max(k)+1]; return n
    def bload(s_):
        so=(sOL+(s_%10)//4) if s_<10 else sROFF[(s_%10)//4]
        return f"buffer_load_dwordx4 {vr(BF+4*s_,4)}, v{aLin}, {S4(sWS)}, s{so} offen offset:{(s_%10%4)*1024} sc1"
    def cold(f):
        n0=len(p.L); f(); COLD.append("\n".join(p.L[n0:])); del p.L[n0:]
    p(f"s_cmp_lg_u32 s{sMODE}, 0\ns_cbranch_scc1 L_plsl\nL_plr:")
    def slow():
        p("L_plsl:"); wo_flags()
        p(f"""v_mov_b32 v{t+1}, s{sTAG}
        s_mov_b64 exec, 3
        s_waitcnt vmcnt(0)
        buffer_store_dword v{t+1}, v{aFO}, {S4(sWS)}, 0 offen sc1
        s_mov_b64 exec, -1""")
        flag_poll(aFR,t+4,sFLO,C); flag_poll(aFR,t+4,sFRE,C); p("s_branch L_plr")
    cold(slow)
    NI=CFG['oini']
    def dn():
        if CFG['odn']:
            p(f"v_mov_b32 v{t}, {F_DONE}"); lds_wait(t,t+1,C,'gt',4,0)
    if CFG['oprb']:
        p(f"buffer_load_dwordx3 v[{t+4}:{t+6}], v{aPR}, {S4(sWS)}, s{sOL} offen offset:512 sc1\ns_waitcnt vmcnt(5)")
    else:
        dn()
        for s_ in range(NI): p(bload(s_))
        p(f"s_waitcnt vmcnt({NI+4})")
    acc_init()
    p(f"v_mov_b32 v{t}, {F_WOR}")
    STAMP('fo')
    lds_wait(t,t+1,C,'gt',2,0)
    p(f"ds_read_b32 v{SW}, v{t} offset:{L_SWS-F_WOR}"); LG.append('x')
    STAMP('wor')
    if CFG['oprb']: dn()
    for m in range(LA): aread(m)
    p(f"v_mov_b32 v{t+7}, {F_WO2}\ns_mov_b32 s{sRETRY}, {SPIN}")
    if CFG['oprb']:
        probe(sOL,C,first=False)
        STAMP('prb')
        for s_ in range(NI): p(bload(s_))
    G={}; a=0
    for n in CFG['ogr']: G[a]=a+n; a+=n
    assert a==20 and 10 in G
    def chain(a,b):
        return [f"v_max_u32 v{MXS}, v{BF+4*a}, v{BF+4*a+2}"]+[f"v_max3_u32 v{MXS}, v{BF+4*k}, v{BF+4*k+2}, v{MXS}" for k in range(a+1,b)]
    cmp_=f"v_cmp_eq_u32 vcc, -1, v{MXS}"
    def retry(a,b):
        e=20 if (CFG['opoll']=='all' or a>=10) else 10
        def f():
            p(f"L_og{a}:\ns_sub_u32 s{sRETRY}, s{sRETRY}, 1\ns_cbranch_scc1 L_ogr{a}")
            sl=CFG['osl'][a//10]
            if sl: p(f"s_sleep {sl}")
            if CFG['opoll']=='probe' and a==0: probe(sOL,C)
            for k in range(a,e): p(bload(k))
            p(f"s_waitcnt vmcnt({20-b if e==20 else 0})")
            for x in chain(a,b): p(x)
            p(f"{cmp_}\ns_nop 0\ns_cbranch_vccnz L_og{a}\ns_branch L_ogr{a}")
        cold(f)
    last=lambda s_: (NI if s_<NI else 20)-1
    p(f"s_waitcnt vmcnt({last(0)+1-G[0]})")
    for x in chain(0,G[0]): p(x)
    p(f"{cmp_}\ns_nop 0\ns_cbranch_vccnz L_og0\nL_ogr0:"); retry(0,G[0])
    STAMP('pl')
    for m in range(100):
        s_,t_=divmod(m,5)
        nx=s_+1 if s_+1 in G else None
        if m==50:
            STAMP('pr')
            if CFG['gstart']=='PR' or CFG['dstart']=='PR' or CFG['dgate']=='PR':
                p(f"""s_mov_b64 exec, 1
                v_mov_b32 v{t+4}, {F_PR}
                v_mov_b32 v{t+5}, 1
                ds_add_u32 v{t+4}, v{t+5}
                s_mov_b64 exec, -1"""); LG.append('x')
        w=[]
        if nx is not None and t_==1: w.append(f"vmcnt({(20 if m>CFG['orem'] else NI)-G[nx]}"); assert G[nx]<=NI or m>CFG['orem']
        if m%WE==0:
            n=lgw(m+WE-1)
            if n is not None: w.append(f"lgkmcnt({n}")
        if w: p("s_waitcnt "+") ".join(w)+")")
        a_=vr(WACC+4*t_,4)
        p(f"v_mfma_f32_16x16x32_bf16 {a_}, {vr(af(m),4)}, {vr(BF+4*s_,4)}, {a_}")
        if NI<20 and m==CFG['orem']:
            for k in range(NI,20): p(bload(k))
        if m+LA==50-10: p(f"ds_read_b32 v{t+6}, v{t+7}"); LG.append('x')
        if m+LA==50:
            assert nx is None or t_<3
            p(f"v_cmp_gt_u32 vcc, 2, v{t+6}\ns_nop 0\ns_cbranch_vccnz L_wo2w\nL_wo2r:")
            def f():
                p("L_wo2w:"); lds_wait(t+7,t+6,C,'gt',2,0); p("s_branch L_wo2r")
            cold(f)
        if m+LA<100: aread(m+LA)
        if nx is not None:
            ch=chain(nx,G[nx]); k=-(-len(ch)//2)
            if t_==1:
                for x in ch[:k]: p(x)
            if t_==2:
                for x in ch[k:]: p(x)
            if t_==3: p(cmp_)
            if t_==4:
                if nx==10: STAMP('loc')
                p(f"s_cbranch_vccnz L_og{nx}\nL_ogr{nx}:"); retry(nx,G[nx])
    p(f"""v_mov_b32 v{t}, 0x3f803f80
    v_mov_b32 v{t+2}, 0
    v_mov_b32 v{t+3}, 0
    v_mov_b32 v{t+4}, 0
    s_nop 3""")
def wo_gemm_old():
    t=vT; A=sT+7; B=sT+8; C=sT+17; MXS=t+8
    wo_scal(); wo_flags()
    p("s_waitcnt vmcnt(4)")
    acc_init()
    p(f"""v_mov_b32 v{t}, {F_WOR}
    v_mov_b32 v{t+1}, s{sTAG}
    s_cmp_eq_u32 s{sOSC}, 0
    s_cbranch_scc1 L_nofo
    s_mov_b64 exec, 3
    s_waitcnt vmcnt(0)
    buffer_store_dword v{t+1}, v{aFO}, {S4(sWS)}, 0 offen sc1
    s_mov_b64 exec, -1
    L_nofo:""")
    STAMP('fo')
    lds_wait(t,t+1,C,'gt',2,0)
    p(f"""ds_read_b32 v{SW}, v{t} offset:{L_SWS-F_WOR}
    L_wo:""")
    STAMP('wor')
    sROFF=[sOR,sOR+1,sPRB]
    LA=CFG['wla']; WE=CFG['wwe']
    LG=[]
    def af(m): return AF+4*(m%15)
    def aread(m):
        s_,t_=divmod(m,5)
        for rd in range(2):
            p(f"ds_read_b64_tr_b16 {vr(af(m)+2*rd,2)}, v{aAL if s_<10 else aAR} offset:{(s_%10)*5120+rd*2560+8*t_}"); LG.append(m)
    def lgw(m):
        k=[i for i,x in enumerate(LG) if x!='x' and x<=m]
        if not k: return None
        n=len(LG)-1-max(k); del LG[:max(k)+1]; return n
    def bload(s_):
        so=(sOL+(s_%10)//4) if s_<10 else sROFF[(s_%10)//4]
        return f"buffer_load_dwordx4 {vr(BF+4*s_,4)}, v{aLin}, {S4(sWS)}, s{so} offen offset:{(s_%10%4)*1024} sc1"
    for m in range(LA): aread(m)
    p(f"v_mov_b32 v{MXS}, 0\nv_mov_b32 v{t+7}, {F_WO2}")
    p(f"s_cmp_lg_u32 s{sMODE}, 0\ns_cbranch_scc1 L_plsl")
    probe(sOL,C)
    p("L_plr:")
    n0=len(p.L)
    p("L_plsl:"); flag_poll(aFR,t+4,sFLO,C); p("s_branch L_plr")
    COLD.append("\n".join(p.L[n0:])); del p.L[n0:]
    STAMP('pl')
    for s_ in range(10): p(bload(s_))
    p(f"buffer_load_dword v{t+4}, v{aFR}, {S4(sWS)}, s{sFRE} offen sc1")
    for m in range(100):
        s_,t_=divmod(m,5)
        if m==50:
            STAMP('loc')
            flag_poll(aFR,t+4,sFRE,C,first=False)
            STAMP('pr')
            for k in range(10,20): p(bload(k))
            if CFG['gstart']=='PR' or CFG['dstart']=='PR' or CFG['dgate']=='PR':
                p(f"""s_mov_b64 exec, 1
                v_mov_b32 v{t+4}, {F_PR}
                v_mov_b32 v{t+5}, 1
                ds_add_u32 v{t+4}, v{t+5}
                s_mov_b64 exec, -1"""); LG.append('x')
        w=[]
        if t_==0: w.append(f"vmcnt({(10-s_) if s_<10 else (19-s_)}")
        if m%WE==0:
            n=lgw(m+WE-1)
            if n is not None: w.append(f"lgkmcnt({n}")
        if w: p("s_waitcnt "+") ".join(w)+")")
        a_=vr(WACC+4*t_,4)
        p(f"v_mfma_f32_16x16x32_bf16 {a_}, {vr(af(m),4)}, {vr(BF+4*s_,4)}, {a_}")
        if m+LA==50-10: p(f"ds_read_b32 v{t+6}, v{t+7}"); LG.append('x')
        if m+LA==50:
            p(f"v_cmp_gt_u32 vcc, 2, v{t+6}\ns_nop 0\ns_cbranch_vccnz L_wo2w\nL_wo2r:")
            n0=len(p.L)
            p("L_wo2w:"); lds_wait(t+7,t+6,C,'gt',2,0); p("s_branch L_wo2r")
            COLD.append("\n".join(p.L[n0:])); del p.L[n0:]
        if m+LA<100: aread(m+LA)
        if t_==0 and s_<10: p(f"v_max3_u32 v{MXS}, v{BF+4*s_}, v{BF+4*s_+2}, v{MXS}")
    p(f"""v_cmp_eq_u32 vcc, -1, v{MXS}
    v_mov_b32 v{t}, 0x3f803f80
    v_mov_b32 v{t+2}, 0
    v_mov_b32 v{t+3}, 0
    v_mov_b32 v{t+4}, 0
    s_cbranch_vccnz L_woredo
    L_wook:""")
    COLD.append(f"L_woredo:\ns_sub_u32 s{sRETRY}, s{sRETRY}, 1\ns_cbranch_scc1 L_wook\ns_nop 7")
    q=P();
    COLD.append("\n".join(f"v_lshlrev_b32 v{WACC+2*k}, 16, v{XR+k}\nv_and_b32 v{WACC+2*k+1}, 0xffff0000, v{XR+k}" for k in range(10))+"\ns_branch L_wo")
def wo_main():
    t=vT; A=sT+7; B=sT+8; C=sT+17
    (wo_gemm if CFG['osent'] else wo_gemm_old)()
    STAMP('wend')
    for k in range(10): p(f"v_cvt_pk_bf16_f32 v{HP+k}, v{WACC+2*k}, v{WACC+2*k+1}")
    for k in range(10):
        p(f"""v_dot2_f32_bf16 v{t+2}, v{HP+k}, v{t}, v{t+2}
        v_dot2_f32_bf16 v{t+4}, v{HP+k}, v{HP+k}, v{t+4}
        v_dot2_f32_bf16 v{t+3}, v{HP+k}, v{WR_+k}, v{t+3}""")
    p(f"""s_lshl_b32 s{A}, s{sJ}, 4
    s_add_u32 s{A}, s{A}, s{sPSO}""")
    red3(t+2,t+3,t+4,t+5)
    p(f"""v_mov_b32 v{t+5}, s{sTAG}
    s_mov_b64 exec, 0xffff
    s_cmp_lg_u32 s{sMODE}, 0
    s_cbranch_scc1 L_pssc
    buffer_store_dwordx4 {vr(t+2,4)}, v{aPS}, {S4(sWS)}, s{A} offen
    L_psr:
    s_mov_b64 exec, -1""")
    COLD.append(f"L_pssc:\nbuffer_store_dwordx4 {vr(t+2,4)}, v{aPS}, {S4(sWS)}, s{A} offen sc1\ns_branch L_psr")
    STAMP('ps')
    G=t+10
    lp=p.lab("ps"); ok=p.lab("psok"); md=p.lab("psm")
    ld=f"""buffer_load_dwordx4 {vr(G,4)}, v{aPS}, {S4(sWS)}, s{sPSO} offen sc1
    buffer_load_dwordx4 {vr(G+4,4)}, v{aPS}, {S4(sWS)}, s{sPSO} offen offset:16 sc1"""
    p(ld)
    for k in range(10): p(f"v_lshlrev_b32 v{HF_+2*k}, 16, v{HP+k}\nv_and_b32 v{HF_+2*k+1}, 0xffff0000, v{HP+k}")
    if CFG['dbg']:
        p(f"s_add_u32 s{A}, s{sXO}, {HB}")
        for o,n in ((0,4),(4,4),(8,2)): p(f"buffer_store_dwordx{n} {vr(HP+o,n)}, v{aX2}, {S4(sWS)}, s{A} offen offset:{4*o}")
    p(f"""s_lshl_b32 s{A}, s{sRT}, 4
    s_sub_u32 s{A}, 2047, s{A}
    v_and_b32 v{t}, 15, v0
    v_sub_u32 v{t+9}, s{A}, v{t}
    v_lshlrev_b32 v{t+9}, 3, v{t+9}
    s_lshl_b32 s{A}, s{sWAVE}, 6
    s_add_u32 s{A}, s{A}, {L_KEYS}
    v_lshl_add_u32 v{aKY}, v{t}, 2, s{A}
    v_and_b32 v{t}, 48, v0
    v_lshlrev_b32 v{t}, 2, v{t}
    v_add_u32 v{t+8}, {L_KEYS}, v{t}
    s_mov_b32 s{C}, {SPIN}
    s_branch {md}
    {lp}:
    {ld}
    {md}:
    s_waitcnt vmcnt(0)
    v_cmp_ne_u32 vcc, s{sTAG}, v{G+3}
    v_cmp_ne_u32 s[{sT+14}:{sT+15}], s{sTAG}, v{G+7}
    v_pk_add_f32 {vr(t+4,2)}, {vr(G,2)}, {vr(G+4,2)}
    v_add_f32 v{t+6}, v{G+2}, v{G+6}
    s_or_b64 vcc, vcc, s[{sT+14}:{sT+15}]
    s_cbranch_scc0 {ok}""")
    spin(C,lp,ok)
    p(f"""s_branch {lp}
    {ok}:""")
    STAMP('psr')
    if CFG['dgate']=='PS': p(f"""s_mov_b64 exec, 1
    v_mov_b32 v{G}, {F_PS}
    v_mov_b32 v{G+1}, 1
    ds_add_u32 v{G}, v{G+1}
    s_mov_b64 exec, -1""")
    M=t+4
    red3(M,M+1,M+2,M+3)
    p(f"""v_mul_f32 v{M}, {1/640!r}, v{M}
    v_mul_f32 v{M+2}, {1/640!r}, v{M+2}
    v_fma_f32 v{M+2}, -v{M}, v{M}, v{M+2}
    v_max_f32 v{M+2}, 0, v{M+2}""")
    bf16r(M+2,M+2)
    p(f"v_add_f32 v{M+2}, 0x3727c5ac, v{M+2}")
    bf16r(M+2,M+2)
    p(f"v_sqrt_f32 v{M+2}, v{M+2}")
    bf16r(M,M)
    bf16r(M+2,M+2)
    RS=t+2
    p(f"""v_rcp_f32 v{RS}, v{M+2}
    v_fma_f32 v{M+1}, -v{M}, v{SW}, v{M+1}
    v_mul_f32 v{M+1}, v{M+1}, v{RS}
    v_cvt_pk_bf16_f32 v{M+1}, v{M+1}, v{M+1}
    v_mul_f32 v{RS+1}, -v{M}, v{RS}
    v_ashrrev_i32 v{M+2}, 31, v{M+1}
    v_or_b32 v{M+2}, 0x80000000, v{M+2}
    v_xor_b32 v{M+1}, v{M+1}, v{M+2}
    v_and_b32 v{M+1}, 0xffff0000, v{M+1}
    v_or_b32 v{KEY}, v{M+1}, v{t+9}
    ds_write_b32 v{aKY}, v{KEY}""")
    for k in range(10): p(f"v_pk_fma_f32 {vr(WACC+2*k,2)}, {vr(HF_+2*k,2)}, {vr(RS,2)}, {vr(RS,2)} op_sel:[0,0,1] op_sel_hi:[1,0,1]")
    K16=AF
    lp=p.lab("ky"); ok=p.lab("kyok")
    p(f"s_mov_b32 s{C}, {SPIN*4}\n{lp}:")
    for i in range(4): p(f"ds_read_b128 {vr(K16+4*i,4)}, v{t+8} offset:{16*i}")
    p("s_waitcnt lgkmcnt(0)")
    p(f"v_max3_u32 v{t}, v{K16}, v{K16+1}, v{K16+2}")
    for i in range(3,15,2): p(f"v_max3_u32 v{t}, v{K16+i}, v{K16+i+1}, v{t}")
    p(f"""v_max_u32 v{t}, v{t}, v{K16+15}
    v_cmp_eq_u32 vcc, -1, v{t}
    v_mov_b32 v{t}, 0
    s_cbranch_vccz {ok}""")
    spin(C,lp,ok)
    p(f"s_branch {lp}\n{ok}:")
    STAMP('keys')
    m0_=sT+18
    for i in range(18):
        if i<16: p(f"v_cmp_gt_u32 s[{m0_+2*(i%2)}:{m0_+2*(i%2)+1}], v{K16+i}, v{KEY}") if False else None
    MK=[sT+14,sT+16,sT+18]
    for i in range(18):
        if i<16: m=MK[i%3]; p(f"v_cmp_gt_u32 s[{m}:{m+1}], v{K16+i}, v{KEY}")
        elif i==16: p("s_nop 0")
        if i>=2: m=MK[(i-2)%3]; p(f"v_addc_co_u32 v{t}, vcc, 0, v{t}, s[{m}:{m+1}]")
    p(f"""v_mov_b32 v{t+1}, v{t}
    v_cvt_pk_bf16_f32 v{LP}, v{WACC}, v{WACC+1}
    v_cvt_pk_bf16_f32 v{LP+1}, v{WACC+2}, v{WACC+3}
    v_permlane32_swap_b32 v{t}, v{t+1}
    v_cvt_pk_bf16_f32 v{LP+2}, v{WACC+4}, v{WACC+5}
    v_add_u32 v{t}, v{t}, v{t+1}
    v_mov_b32 v{t+1}, v{t}
    v_cvt_pk_bf16_f32 v{LP+3}, v{WACC+6}, v{WACC+7}
    v_cvt_pk_bf16_f32 v{LP+4}, v{WACC+8}, v{WACC+9}
    v_permlane16_swap_b32 v{t}, v{t+1}
    v_cvt_pk_bf16_f32 v{LP+5}, v{WACC+10}, v{WACC+11}
    v_add_u32 v{t}, v{t}, v{t+1}
    v_cmp_gt_u32 s[{sCAND}:{sCAND+1}], 8, v{t}
    v_or_b32 v{KEY}, v{KEY}, v{t}
    v_mov_b32 v{t+1}, {L_CA&~0xffff}
    v_lshl_add_u32 v{t+1}, v{t}, 3, v{t+1}
    v_mov_b32 v{KEY+1}, s{sTAG}
    s_cmp_lg_u32 s{sJ}, 0
    s_cbranch_scc1 L_noca
    s_and_b32 exec_lo, s{sCAND}, 0xffff
    s_mov_b32 exec_hi, 0
    ds_write_b64 v{t+1}, {vr(KEY,2)} offset:{L_CA&0xffff}
    s_mov_b64 exec, 0xff
    s_cmp_lg_u32 s{sWAVE}, 0
    s_cbranch_scc1 L_noca
    v_lshlrev_b32 v{t+2}, 3, v0
    v_add_u32 v{t+3}, {L_CA}, v{t+2}
    s_lshl_b32 s{A}, s{sBLK}, 7
    s_add_u32 s{A}, s{A}, {CA}
    s_mov_b32 s{C}, {SPIN*4}
    L_cal:
    ds_read_b64 v[{t+4}:{t+5}], v{t+3}
    s_waitcnt lgkmcnt(0)
    v_cmp_ne_u32 vcc, s{sTAG}, v{t+5}
    s_nop 0
    s_cbranch_vccz L_caok""")
    spin(C,"L_cal","L_caok")
    p(f"""s_branch L_cal
    L_caok:
    buffer_store_dwordx2 v[{t+4}:{t+5}], v{t+2}, {S4(sWS)}, s{A} offen sc1
    L_noca:
    s_mov_b64 exec, -1""")
    STAMP('ca')
    for k in range(6,10): p(f"v_cvt_pk_bf16_f32 v{LP+k}, v{WACC+2*k}, v{WACC+2*k+1}")
    p(f"""v_lshrrev_b32 v{t+1}, 4, v0
    v_mul_u32_u24 v{t+1}, 40, v{t+1}
    v_mul_u32_u24 v{t}, 2560, v{t}
    v_add_u32 v{aCD}, v{t}, v{t+1}
    s_mul_i32 s{A}, s{sBLK}, 20480
    s_mul_i32 s{B}, s{sJ}, 160
    s_add_u32 s{A}, s{A}, s{B}
    s_add_u32 s{A}, s{A}, {CAND}
    s_and_b64 exec, s[{sCAND}:{sCAND+1}], -1
    s_cbranch_scc0 L_nocd""")
    for base,off in ((LP,0),(HP,1280)):
        if 'nocand' in CFG['xp'] or ('noh' in CFG['xp'] and off): continue
        for o,n in ((0,4),(4,4),(8,2)): p(f"buffer_store_dwordx{n} {vr(base+o,n)}, v{aCD}, {S4(sWS)}, s{A} offen offset:{off+4*o} sc1")
    p("L_nocd:\ns_mov_b64 exec, -1")
    for k in range(10): p(f"v_pk_add_f32 {vr(WACC+2*k,2)}, {vr(WACC+2*k,2)}, {vr(HF_+2*k,2)}")
    for k in range(10): p(f"v_cvt_pk_bf16_f32 v{OP+k}, v{WACC+2*k}, v{WACC+2*k+1}")
    p(f"s_andn2_b64 exec, -1, s[{sCAND}:{sCAND+1}]\ns_cbranch_scc0 L_noo1")
    if 'noout' not in CFG['xp']: out_store()
    p("L_noo1:")
    if 1: p(f"""s_mov_b64 exec, 1
    v_mov_b32 v{t+4}, {F_O1}
    v_mov_b32 v{t+5}, 1
    ds_add_u32 v{t+4}, v{t+5}
    s_mov_b64 exec, -1""")
    else: p("s_mov_b64 exec, -1")
    STAMP('o1')
KEY=228; sCAND=sT+20
def out_store():
    for o,n in ((0,4),(4,4),(8,2)): p(f"buffer_store_dwordx{n} {vr(OP+o,n)}, v{aX2}, {S4(sOUT)}, s{sXO} offen offset:{4*o} {CFG['opol']}")

def moe_weights():
    A=sT+7; B=sT+8; vt=2; D=40; aW_=12
    gu=p.lab("mwgu"); wr=p.lab("mwwr"); en=p.lab("mwend")
    FA=dict(WOD=(F_WOD,2),PR=(F_PR,4),O1=(F_O1,4),DONE=(F_DONE,4),G2=(F_G2,2),PS=(F_PS,4),WO2=(F_WO2,2))
    def gate(k):
        p(f"v_mov_b32 v{vt+4}, {FA[k][0]}")
        lds_wait(vt+4,vt+5,sT+5,'gt',FA[k][1],2)
    pl_=p.lab("mwpl")
    p(f"""s_cmp_ge_u32 s{sSLOT}, 17
    s_cbranch_scc1 {pl_}
    v_bfe_u32 v{vt}, v0, 3, 2
    v_lshrrev_b32 v{vt+1}, 5, v0
    v_lshlrev_b32 v{vt}, 1, v{vt}
    v_add_lshl_u32 v{vt}, v{vt}, v{vt+1}, 2
    v_bfe_u32 v{vt+1}, v0, 1, 2
    v_add_u32 v{vt}, v{vt}, v{vt+1}
    v_and_b32 v{vt+1}, 1, v0
    v_lshlrev_b32 v{vt+1}, 4, v{vt+1}
    s_cmp_lt_u32 s{sSLOT}, 12
    s_cbranch_scc1 {gu}
    v_mul_u32_u24 v{vt}, 1280, v{vt}
    v_add_u32 v{aW_}, v{vt}, v{vt+1}
    s_mul_i32 s{A}, s{sG}, 5
    s_add_u32 s{A}, s{A}, s{sSLOT}
    s_sub_u32 s{A}, s{A}, 12
    s_lshl_b32 s{A}, s{A}, 5
    s_mul_i32 s{B}, s{HW}, {12*32*1280}
    s_add_u32 s{A}, s{A}, s{B}""")
    gate(CFG['dstart'])
    STAMP('mg')
    for s_ in range(12):
        if s_>=CFG['ddep']: p(f"s_waitcnt vmcnt({CFG['ddep']-1})")
        p(f"buffer_load_dwordx4 {vr(D+4*s_,4)}, v{aW_}, {S4(sWD)}, s{A} offen {CFG['mpol']}")
        if s_<11: p(f"s_add_u32 s{A}, s{A}, {32*1280}")
    p(f"""s_mul_i32 s{B}, s{HW}, 12288
    s_branch {wr}
    {pl_}:""")
    for g_,h_ in CFG['wb']:
        sk=p.lab("nowb")
        p(f"s_lshl_b32 s{A}, s{sSLOT}, 2\ns_add_u32 s{A}, s{A}, s{HW}\ns_cmp_lg_u32 s{A}, {4*CFG['wbs']+h_}\ns_cbranch_scc1 {sk}")
        if g_!='no': gate(g_)
        p(f"buffer_wbl2 sc1\ns_waitcnt vmcnt(0)\n{sk}:")
    if CFG['dgate']!='no' and not CFG['dw3']:
        gate(CFG['dgate'])
        touch(vTD,sWD,CFG['mpair'])
        STAMP('mg')
        if CFG['prof']: p("s_waitcnt vmcnt(0)"); STAMP('mw')
    p(f"""s_branch {en}
    {gu}:
    v_mul_u32_u24 v{vt}, 3072, v{vt}
    v_add_u32 v{aW_}, v{vt}, v{vt+1}
    s_mul_i32 s{A}, s{sG}, 12
    s_add_u32 s{A}, s{A}, s{sSLOT}
    s_lshl_b32 s{A}, s{A}, 5
    s_mul_i32 s{B}, s{HW}, {5*32*3072}
    s_add_u32 s{A}, s{A}, s{B}""")
    gate(CFG['gstart'])
    STAMP('mg')
    for s_ in range(5):
        for m_ in range(2):
            if 2*s_+m_>=CFG['mdep']: p(f"s_waitcnt vmcnt({CFG['mdep']-1})")
            p(f"buffer_load_dwordx4 {vr(D+8*s_+4*m_,4)}, v{aW_}, {S4((sWG,sWU)[m_])}, s{A} offen {CFG['mpol']}")
        if s_<4: p(f"s_add_u32 s{A}, s{A}, {32*3072}")
    p(f"s_mul_i32 s{B}, s{HW}, 12288\n{wr}:\nv_lshl_add_u32 v{vt}, v0, 4, s{B}")
    gate('DONE')
    p("s_waitcnt vmcnt(0)")
    for s_ in range(12): p(f"ds_write_b128 v{vt}, {vr(D+4*s_,4)} offset:{L_MW+s_*1024}")
    p(f"""s_lshl_b32 s{A}, s{HW}, 2
    s_add_u32 s{A}, s{A}, {F_MW}
    v_mov_b32 v{vt}, s{A}
    ds_write_b32 v{vt}, v{vt}
    s_waitcnt lgkmcnt(0)""")
    STAMP('mw')
    p(f"{en}:")
def top8(R,K2,K1,y,tt):
    def clean(chs):
        seq=[]
        for (x,y_,t_) in chs:
            seq.append([f"v_max_u32_dpp v{y_}, v{x}, v{x} row_shl:4 row_mask:0xf bank_mask:0x5",
                        f"v_min_u32_dpp v{y_}, v{x}, v{x} row_shr:4 row_mask:0xf bank_mask:0xa",
                        None,
                        f"v_mov_b32_dpp v{t_}, v{y_} quad_perm:[2,3,0,1] row_mask:0xf bank_mask:0xf",
                        f"v_med3_u32 v{y_}, v{y_}, v{t_}, v{K2}",
                        None,
                        f"v_mov_b32_dpp v{t_}, v{y_} quad_perm:[1,0,3,2] row_mask:0xf bank_mask:0xf",
                        f"v_med3_u32 v{x}, v{y_}, v{t_}, v{K1}"])
        n=len(chs)
        p(f"s_nop {2-n}")
        for i in range(8):
            if seq[0][i] is None: p(f"s_nop {2-n}")
            else:
                for c in seq: p(c[i])
                if i==0 and n==1: p("s_nop 1")
                elif i==0: p("s_nop 0")
    dp="row_mask:0xf bank_mask:0xf"
    p(f"v_max_u32_dpp v{R}, v{R+2}, v{R} row_half_mirror {dp}\nv_max_u32_dpp v{R+4}, v{R+6}, v{R+4} row_half_mirror {dp}")
    clean([(R,y,tt),(R+4,y+1,tt+1)])
    p(f"s_nop 1\nv_max_u32_dpp v{R}, v{R+4}, v{R} row_half_mirror {dp}")
    clean([(R,y,tt)])
    p(f"s_nop 1\nv_max_u32_dpp v{R}, v{R}, v{R} row_mirror {dp}")
    clean([(R,y,tt)])
    for msk,sw in ((0xa,16),(0xc,32)):
        p(f"""s_nop 1
        v_mov_b32_dpp v{R}, v{R} row_half_mirror row_mask:{hex(msk)} bank_mask:0xf
        v_mov_b32 v{tt}, v{R}
        s_nop 1
        v_permlane{sw}_swap_b32 v{R}, v{tt}
        s_nop 0
        v_max_u32 v{R}, v{R}, v{tt}""")
        clean([(R,y,tt)])
def moe():
    t=vT; A=sT+7; B=sT+8; C=sT+17; sTHR=sT+14
    R=12; K2=20; K1=21; aC=22; AW=108
    BL=160
    p(f"""s_cmp_ge_u32 s{sSLOT}, 17
    s_cbranch_scc1 L_plain
    v_lshrrev_b32 v{t}, 3, v0
    v_and_b32 v{t+1}, 7, v0
    v_lshlrev_b32 v{t+1}, 3, v{t+1}
    v_lshl_add_u32 v{aC}, v{t}, 7, v{t+1}
    s_mov_b32 s{B}, {CA}""")
    ld="\n".join(f"buffer_load_dwordx2 {vr(R+2*i,2)}, v{aC}, {S4(sWS)}, s{B} offen offset:{i*1024} sc1" for i in range(4))
    aMF=4; aMW=5
    def getw():
        lds_wait(AW-aMF,t+10 if False else AW,C,'eq',0,0)
        STAMP('mwr')
        for s_ in range(12):
            for rd in range(2): p(f"ds_read_b64_tr_b16 {vr(AW+4*s_+2*rd,2)}, v{AW-aMW} offset:{L_MW+s_*1024+rd*512}")
    p(f"""s_cmp_lg_u32 s{sWAVE}, 0
    s_cbranch_scc1 L_nocal
    {ld}
    L_nocal:
    v_bfe_i32 v{K2}, v0, 1, 1
    v_bfe_i32 v{K1}, v0, 0, 1
    v_not_b32 v{K2}, v{K2}
    v_not_b32 v{K1}, v{K1}
    s_lshl_b32 s{A}, s{sWAVE}, 2
    s_add_u32 s{A}, s{A}, {F_MW}
    v_mov_b32 v{AW-aMF}, s{A}
    s_mul_i32 s{A}, s{sWAVE}, 12288
    v_lshl_add_u32 v{AW-aMW}, v0, 3, s{A}
    v_and_b32 v{t}, 7, v0
    v_lshlrev_b32 v{t}, 2, v{t}
    v_add_u32 v{AW-6}, {L_TOP}, v{t}
    s_cmp_ge_u32 s{sSLOT}, 12
    s_cbranch_scc1 L_now""")
    getw()
    lp=p.lab("ca"); ok=p.lab("caok"); md=p.lab("cam")
    p(f"""L_now:
    s_cmp_lg_u32 s{sWAVE}, 0
    s_cbranch_scc1 L_topw
    s_mov_b32 s{C}, {SPIN}
    s_branch {md}
    {lp}:
    {ld}
    {md}:
    s_waitcnt vmcnt(0)
    v_xor_b32 v{t}, v{R+1}, v{R+3}
    v_xor_b32 v{t+1}, v{R+5}, v{R+7}
    v_xor_b32 v{R+1}, s{sTAG}, v{R+1}
    v_xor_b32 v{R+5}, s{sTAG}, v{R+5}
    v_or3_b32 v{t}, v{t}, v{t+1}, v{R+1}
    v_or_b32 v{t}, v{t}, v{R+5}
    v_cmp_ne_u32 vcc, 0, v{t}
    s_nop 0
    s_cbranch_vccz {ok}""")
    spin(C,lp,ok,CFG['casl'])
    p(f"s_branch {lp}\n{ok}:")
    STAMP('car')
    top8(R,K2,K1,t,t+2)
    p(f"ds_write_b32 v{AW-6}, v{R}\ns_branch L_top\nL_topw:\ns_waitcnt vmcnt(0)")
    lds_wait(AW-6,R,C,'eq',-1,0)
    p("L_top:")
    STAMP('top')
    TOK=t+1; aR=t+2
    p(f"""v_bfe_u32 v{TOK}, v{R}, 3, 11
    v_sub_u32 v{TOK}, 2047, v{TOK}
    v_lshrrev_b32 v{t}, 6, v{TOK}
    v_and_b32 v{aR}, 7, v{R}
    v_lshl_add_u32 v{aR}, v{t}, 3, v{aR}
    v_mul_u32_u24 v{aR}, 2560, v{aR}
    v_lshrrev_b32 v{t}, 4, v0
    v_readlane_b32 s{sTHR}, v{R}, 7
    s_cmp_ge_u32 s{sSLOT}, 12
    s_cbranch_scc1 L_down""")
    def deferred(tag):
        p(f"""v_cmp_gt_u32 vcc, s{sTHR}, v{KEY}
        s_nop 0
        s_and_b64 exec, vcc, s[{sCAND}:{sCAND+1}]
        s_cbranch_scc0 L_nd{tag}""")
        out_store()
        p(f"L_nd{tag}:\ns_mov_b64 exec, -1")
    p(f"""v_lshl_add_u32 v{aR}, v{t}, 4, v{aR}
    s_mul_i32 s{A}, s{sWAVE}, 320
    s_add_u32 s{A}, s{A}, {CAND}""")
    ld="\n".join(f"buffer_load_dwordx4 {vr(BL+4*i,4)}, v{aR}, {S4(sWS)}, s{A} offen offset:{i*64} sc1" for i in range(5))
    lp=p.lab("gl"); ok=p.lab("glok"); md=p.lab("glm"); nt=p.lab("noth")
    p(ld)
    p(f"""s_or_b32 s{B}, s{sSLOT}, s{sWAVE}
    s_cbranch_scc1 {nt}
    v_mov_b32 v{t+4}, s{sTHR}
    v_mov_b32 v{t+5}, s{sTAG}
    s_lshl_b32 s{B}, s{sG}, 7
    s_add_u32 s{B}, s{B}, {TH}
    v_mov_b32 v{t+6}, 0
    s_mov_b64 exec, 1
    buffer_store_dwordx2 v[{t+4}:{t+5}], v{t+6}, {S4(sWS)}, s{B} offen sc1
    s_mov_b64 exec, -1
    {nt}:
    s_lshl_b32 s{B}, s{sWAVE}, 11
    s_add_u32 s{B}, s{B}, {L_RED}
    v_lshl_add_u32 v{t+3}, v0, 4, s{B}
    s_mov_b32 s{C}, {SPIN}
    s_branch {md}
    {lp}:
    {ld}
    {md}:
    s_waitcnt vmcnt(0) lgkmcnt(0)
    v_max3_u32 v{t+4}, v{BL}, v{BL+2}, v{BL+4}
    v_max3_u32 v{t+5}, v{BL+6}, v{BL+8}, v{BL+10}
    v_max3_u32 v{t+4}, v{BL+12}, v{BL+14}, v{t+4}
    v_max3_u32 v{t+5}, v{BL+16}, v{BL+18}, v{t+5}
    v_max_u32 v{t+4}, v{t+4}, v{t+5}
    v_cmp_eq_u32 vcc, -1, v{t+4}
    s_nop 0
    {'s_branch' if 'nocand' in CFG['xp'] else 's_cbranch_vccz'} {ok}""")
    spin(C,lp,ok)
    p(f"s_branch {lp}\n{ok}:")
    STAMP('lr')
    G=20; U=24; X=28
    for s_ in range(5):
        for m_,a_ in ((0,G),(1,U)):
            p(f"v_mfma_f32_16x16x32_bf16 {vr(a_,4)}, {vr(AW+8*s_+4*m_,4)}, {vr(BL+4*s_,4)}, {vr(a_,4) if s_ else 0}")
    w0=p.lab("guw0")
    p(f"""s_cmp_eq_u32 s{sWAVE}, 0
    s_cbranch_scc1 {w0}
    s_nop 5
    ds_write_b128 v{t+3}, {vr(G,4)}
    ds_write_b128 v{t+3}, {vr(U,4)} offset:1024
    s_waitcnt lgkmcnt(0)
    s_barrier""")
    deferred('g1')
    END()
    p(f"""{w0}:
    s_mul_i32 s{A}, s{sG}, 12
    s_add_u32 s{A}, s{A}, s{sSLOT}
    s_lshl_b32 s{A}, s{A}, 8
    s_add_u32 s{A}, s{A}, {ACT}
    v_and_b32 v{t+4}, 7, v0
    v_lshlrev_b32 v{t+4}, 4, v{t+4}
    v_lshrrev_b32 v{t+5}, 5, v0
    v_lshl_add_u32 v{t+4}, v{t+5}, 7, v{t+4}
    v_bfe_u32 v{t+5}, v0, 4, 1
    v_lshl_add_u32 v{t+4}, v{t+5}, 3, v{t+4}
    s_barrier""")
    for w_ in range(1,4):
        for m_ in range(2): p(f"ds_read_b128 {vr(X+8*(w_-1)+4*m_,4)}, v{t+3} offset:{w_*2048+m_*1024}")
    p(f"s_mov_b32 s{B}, {hex(f2u(-math.log2(math.e)))}")
    for w_ in range(3):
        p(f"s_waitcnt lgkmcnt({4-2*w_})")
        for k in range(4): p(f"v_pk_add_f32 {vr(G+2*k,2)}, {vr(G+2*k,2)}, {vr(X+8*w_+2*k,2)}")
    p(f"""v_cvt_pk_bf16_f32 v{X}, v{G}, v{G+1}
    v_cvt_pk_bf16_f32 v{X+1}, v{G+2}, v{G+3}
    v_cvt_pk_bf16_f32 v{X+2}, v{U}, v{U+1}
    v_cvt_pk_bf16_f32 v{X+3}, v{U+2}, v{U+3}""")
    for k in range(4): p(f"v_lshlrev_b32 v{G+2*k}, 16, v{X+k}\nv_and_b32 v{G+2*k+1}, 0xffff0000, v{X+k}")
    for k in range(4): p(f"v_mul_f32 v{X+k}, s{B}, v{G+k}")
    for k in range(4): p(f"v_exp_f32 v{X+k}, v{X+k}")
    for k in range(4): p(f"v_add_f32 v{X+k}, 1.0, v{X+k}")
    for k in range(4): p(f"v_rcp_f32 v{X+k}, v{X+k}")
    for k in range(4): p(f"v_mul_f32 v{G+k}, v{G+k}, v{X+k}")
    p(f"v_cvt_pk_bf16_f32 v{X}, v{G}, v{G+1}\nv_cvt_pk_bf16_f32 v{X+1}, v{G+2}, v{G+3}")
    for k in range(2): p(f"v_lshlrev_b32 v{G+2*k}, 16, v{X+k}\nv_and_b32 v{G+2*k+1}, 0xffff0000, v{X+k}")
    p(f"""v_pk_mul_f32 {vr(G,2)}, {vr(G,2)}, {vr(U,2)}
    v_pk_mul_f32 {vr(G+2,2)}, {vr(G+2,2)}, {vr(U+2,2)}
    v_cvt_pk_bf16_f32 v{X}, v{G}, v{G+1}
    v_cvt_pk_bf16_f32 v{X+1}, v{G+2}, v{G+3}
    s_mov_b32 exec_lo, 0x00ff00ff
    s_mov_b32 exec_hi, 0x00ff00ff
    buffer_store_dwordx2 {vr(X,2)}, v{t+4}, {S4(sWS)}, s{A} offen sc1
    s_mov_b64 exec, -1""")
    STAMP('act')
    deferred('g0')
    END()
    HL=20; Y=24; X=28; SG=t+8; aO2=t+9
    p(f"""L_down:
    v_lshl_add_u32 v{aR}, v{t}, 3, v{aR}
    v_mul_u32_u24 v{aO2}, 1280, v{TOK}
    v_lshl_add_u32 v{aO2}, v{t}, 3, v{aO2}
    v_and_b32 v{t+4}, 7, v0
    v_lshlrev_b32 v{t+4}, 4, v{t+4}
    v_lshl_add_u32 v{t+4}, v{t}, 7, v{t+4}
    s_mul_i32 s{sT+1}, s{sG}, 5
    s_add_u32 s{sT+1}, s{sT+1}, s{sSLOT}
    s_sub_u32 s{sT+1}, s{sT+1}, 12
    s_lshl_b32 s{sT+1}, s{sT+1}, 5
    s_add_u32 s{sT+2}, s{sT+1}, {CAND}
    s_mul_i32 s{A}, s{sWAVE}, 6144
    s_add_u32 s{A}, s{A}, {ACT}
    s_add_u32 s{B}, s{A}, 4096""")
    ldh=f"buffer_load_dwordx2 {vr(HL,2)}, v{aR}, {S4(sWS)}, s{sT+2} offen sc1\nbuffer_load_dwordx2 {vr(HL+2,2)}, v{aR}, {S4(sWS)}, s{sT+2} offen offset:1280 sc1"
    p(ldh)
    deferred('d')
    p(f"""v_ashrrev_i32 v{SG}, 31, v{R}
    v_not_b32 v{SG}, v{SG}
    v_or_b32 v{SG}, 0x80000000, v{SG}
    v_xor_b32 v{SG}, v{SG}, v{R}
    v_and_b32 v{SG}, 0xffff0000, v{SG}
    v_mul_f32 v{SG}, {hex(f2u(-math.log2(math.e)))}, v{SG}
    v_exp_f32 v{SG}, v{SG}
    s_lshl_b32 s{C}, s{sWAVE}, 10
    v_add_f32 v{SG}, 1.0, v{SG}
    v_rcp_f32 v{SG}, v{SG}
    s_add_u32 s{C}, s{C}, {L_RED}
    v_lshl_add_u32 v{t+3}, v0, 4, s{C}""")
    bf16r(SG,SG)
    lp=p.lab("hl"); ok=p.lab("hlok"); md=p.lab("hlm")
    p(f"""s_mov_b32 s{C}, {SPIN}
    s_branch {md}
    {lp}:
    {ldh}
    {md}:
    s_waitcnt vmcnt(0)
    v_max_u32 v{t+5}, v{HL}, v{HL+2}
    v_cmp_eq_u32 vcc, -1, v{t+5}
    s_nop 0
    {'s_branch' if CFG['xp'] else 's_cbranch_vccz'} {ok}""")
    spin(C,lp,ok)
    p(f"s_branch {lp}\n{ok}:")
    getw()
    ld="\n".join([f"buffer_load_dwordx4 {vr(BL+4*i,4)}, v{t+4}, {S4(sWS)}, s{A if i<8 else B} offen offset:{(i%8)*512} sc1" for i in range(12)])
    lp=p.lab("al"); ok=p.lab("alok")
    p(f"""s_mov_b32 s{C}, {SPIN}
    {lp}:
    {ld}
    s_waitcnt vmcnt(8)
    v_max3_u32 v{t+5}, v{BL}, v{BL+2}, v{BL+4}
    v_max3_u32 v{t+6}, v{BL+6}, v{BL+8}, v{BL+10}
    v_max3_u32 v{t+5}, v{BL+12}, v{BL+14}, v{t+5}""")
    for i in range(4,12):
        if i%4==0: p(f"s_waitcnt vmcnt({8-i})")
        p(f"v_max3_u32 v{t+5+(i&1)}, v{BL+4*i}, v{BL+4*i+2}, v{t+5+(i&1)}")
    p(f"""v_max_u32 v{t+5}, v{t+5}, v{t+6}
    v_cmp_eq_u32 vcc, -1, v{t+5}
    s_waitcnt lgkmcnt(0)
    s_cbranch_vccz {ok}""")
    spin(C,lp,ok,CFG['acsl'])
    p(f"s_branch {lp}\n{ok}:")
    STAMP('ar')
    for s_ in range(12): p(f"v_mfma_f32_16x16x32_bf16 {vr(Y,4)}, {vr(AW+4*s_,4)}, {vr(BL+4*s_,4)}, {vr(Y,4) if s_ else 0}")
    w0=p.lab("dnw0")
    p(f"""s_cmp_eq_u32 s{sWAVE}, 0
    s_cbranch_scc1 {w0}
    s_nop 5
    ds_write_b128 v{t+3}, {vr(Y,4)}
    s_waitcnt lgkmcnt(0)
    s_barrier""")
    END()
    p(f"""{w0}:
    v_lshlrev_b32 v{X+12}, 16, v{HL}
    v_and_b32 v{X+13}, 0xffff0000, v{HL}
    v_lshlrev_b32 v{X+14}, 16, v{HL+1}
    v_and_b32 v{X+15}, 0xffff0000, v{HL+1}
    v_lshlrev_b32 v{X+16}, 16, v{HL+2}
    v_and_b32 v{X+17}, 0xffff0000, v{HL+2}
    v_lshlrev_b32 v{X+18}, 16, v{HL+3}
    v_and_b32 v{X+19}, 0xffff0000, v{HL+3}
    s_barrier""")
    for w_ in range(1,4): p(f"ds_read_b128 {vr(X+4*(w_-1),4)}, v{t+3} offset:{w_*1024}")
    for w_ in range(3):
        p(f"s_waitcnt lgkmcnt({2-w_})")
        for k in range(2): p(f"v_pk_add_f32 {vr(Y+2*k,2)}, {vr(Y+2*k,2)}, {vr(X+4*w_+2*k,2)}")
    def rnd():
        p(f"v_cvt_pk_bf16_f32 v{X}, v{Y}, v{Y+1}\nv_cvt_pk_bf16_f32 v{X+1}, v{Y+2}, v{Y+3}")
    def unp():
        for k in range(2): p(f"v_lshlrev_b32 v{Y+2*k}, 16, v{X+k}\nv_and_b32 v{Y+2*k+1}, 0xffff0000, v{X+k}")
    rnd(); unp()
    for k in range(4): p(f"v_mul_f32 v{Y+k}, v{SG}, v{Y+k}")
    rnd(); unp()
    for k in range(2): p(f"v_pk_add_f32 {vr(Y+2*k,2)}, {vr(Y+2*k,2)}, {vr(X+12+2*k,2)}")
    rnd(); unp()
    for k in range(2): p(f"v_pk_add_f32 {vr(Y+2*k,2)}, {vr(Y+2*k,2)}, {vr(X+16+2*k,2)}")
    rnd()
    p(f"""s_mov_b32 exec_lo, 0x00ff00ff
    s_mov_b32 exec_hi, 0x00ff00ff
    buffer_store_dwordx2 {vr(X,2)}, v{aO2}, {S4(sOUT)}, s{sT+1} offen sc1""")
    STAMP('fin')
    END()
    lp=p.lab("th"); ok=p.lab("thok")
    p(f"""L_plain:
    s_lshl_b32 s{B}, s{sG}, 7
    s_add_u32 s{B}, s{B}, {TH}
    v_mov_b32 v{t}, 0
    s_mov_b32 s{C}, {SPIN}
    {lp}:
    s_sleep 16
    buffer_load_dwordx2 v[{t+2}:{t+3}], v{t}, {S4(sWS)}, s{B} offen sc1
    s_waitcnt vmcnt(0)
    v_cmp_ne_u32 vcc, s{sTAG}, v{t+3}
    s_nop 0
    s_cbranch_vccz {ok}""")
    spin(C,lp,ok)
    p(f"""s_branch {lp}
    {ok}:
    v_readfirstlane_b32 s{sTHR}, v{t+2}
    s_nop 1""")
    deferred('p')
    STAMP('fin')

def build():
    prologue()
    steps=loader()
    helperA(steps)
    p("s_branch L_mw")
    helperB(steps)
    p("L_mw:")
    moe_weights()
    END()
    p("L_comp:")
    if CFG['prio']: p(f"s_setprio {CFG['prio']}")
    p("s_waitcnt lgkmcnt(0)")
    STAMP('start')
    prologue2(1)
    if CFG['cpf']: code_pf()
    srd(((sX,2621440),))
    if CFG['hclr']: assert CFG['clr']==0; CFG['clate']=9
    if CFG['clr']==0 and CFG['clate']==0: clears(0); clears(1)
    att_setup()
    if CFG['clr']==0 and CFG['clate']==1: clears(0); clears(1)
    gemm_setup()
    if CFG['clr']: clears(0)
    if CFG['clr']==0 and CFG['clate']==2: clears(0); clears(1)
    p("s_waitcnt lgkmcnt(0)")
    mktag()
    p(f"""    s_cmp_eq_u32 s{sLC}, 15
    s_cbranch_scc1 L_gS
    s_cmp_eq_u32 s{sTY}, 2
    s_cbranch_scc1 L_gV""")
    gemm_loop('T'); gemm_epi('T'); p("s_branch L_att")
    p("L_gS:"); idle_gemm(); p("s_branch L_att")
    p("L_gV:"); gemm_loop('V'); gemm_epi('V')
    p("L_att:")
    att_go()
    for w in range(4): att_variant(w)
    att_fin()
    wo_main()
    if CFG['stop']<=3:
        p(f"s_and_b64 exec, s[{sCAND}:{sCAND+1}], -1\ns_cbranch_scc0 L_noo2"); out_store(); p("L_noo2:")
    else: moe()
    END()
    att_cold()
    for c in COLD: p(c)
    p("L_exit:\ns_endpgm")
build()
errs=check(p.L)
hdr=f"""; generated by work/k/gen.py (own generator script)
; @launch grid=(256,1,1) block=(512,1,1) lds=163840
.amdgcn_target "amdgcn-amd-amdhsa--gfx950"
.text
.globl {NAME}_kernel
.p2align 8
.type {NAME}_kernel,@function
{NAME}_kernel:
"""
ftr=f""".section .rodata,"a"
.p2align 6
.amdhsa_kernel {NAME}_kernel
  .amdhsa_next_free_vgpr 256
  .amdhsa_next_free_sgpr 102
  .amdhsa_accum_offset 256
  .amdhsa_group_segment_fixed_size 0
  .amdhsa_kernarg_size 88
  .amdhsa_user_sgpr_count 2
  .amdhsa_user_sgpr_kernarg_segment_ptr 1
  .amdhsa_system_sgpr_workgroup_id_x 1
.end_amdhsa_kernel
"""
open(sys.argv[1],"w").write(hdr+p.text()+ftr)

import subprocess
r=subprocess.run(["clang","-x","assembler","-target","amdgcn-amd-amdhsa","-mcpu=gfx950",sys.argv[1],"-o",sys.argv[1]+".co"],capture_output=True,text=True)
if r.returncode: print(r.stderr[:3000]); sys.exit(1)
r=subprocess.run(["python3","cdna_unwritten_srd_check.py",sys.argv[1]+".co"],capture_output=True,text=True)
if r.returncode: print("SRDCHECK:",r.stdout[-3000:],r.stderr[-1000:])
r=subprocess.run("llvm-size -A "+sys.argv[1]+".co | grep text",shell=True,capture_output=True,text=True); print(r.stdout.strip())
if errs: sys.exit(1)
```

```python
import sys, math
from asmlib import *
NAME="sequential_preLN__sliding_block__moe_arch_mod__prompt"
CFG=dict(wsp=1, wla2=7, ogr2=(1,2,2,2,3), orem2=(0,1), wwe2=2, smw=(), smo=(3,6), mtr=(0,10), mth=0, wburst=0, mtg='WOD', wts=99, wsplit=1, wnoa=0, hclr=0, cst=(3,3), hsent=0, hkv=0, hgate='G1', hrs=0, osent=1, ogr=(2,3,5,2,3,5), opoll='half', osl=(0,0), oini=10, orem=25, clate=2, oprb=0, odn=1, hstep=6, qpol='', apol='', cpol='', wb=(), wbs=31, ht=0, hpoll=0, hsl=1, wog2=0, hearly=1, stg=6, stb=0, ord='xw,xw,xw,xw,xw,xw,xw,xw,xw,xw', amp=None, wose=2, late1=1, sdef=(1,1,1,1), pt2=8, qpair2=0, nacc=8, sfirst=1, prio=0, smode='dot', sfill=(), acsl=0, casl=0, xp=(), dw3=0, wla=7, wwe=2, dgate='O1', dstart='O1', gstart='WOD', mdep=1, ddep=12, qpair=0, mpair=0, wpair=0, xnt=0, wnt=0, tpol2='', wtw='no', mtw='w3', wothr1=4, mb=(6,6), mg=('WOD','PR','PR','O1'), mpf=0, mgate='b3', hsplit=0, cpf=1, npf=(0,)*10, wogs=5, clr=0, wot=(), wtpol='', seqs=None, xpol='nt', wpol='', tpol='', wopol='', mpol='', cal=None, opol='', st=['start','b0|hb0','gend|hb9','E1|hE1','st|halo|clr','fl|g2|wo','fseen|h2','kv','aend','ost'], pt=8, wothr=16, wogate=1, h2sl=1, noh2=0, nowo=0, wos=(0,0,0), sched=(1,2,1,1,1,1,1,0,0,0), dbg=0, stop=99, prof=0, rot=('0055','36947580','05162738'), force_slow=0, noclr=0, pre=2, ldst=0, nomfma=0, nohello=0)
for a in sys.argv[2:]:
    k,v=a.split("="); CFG[k]=eval(v)
QB,KB,VB,KH,VH,OB=[i*0x280000 for i in range(6)]
CAND=0xF00000
PS=0xFA0000
CA=0xFE0000
ACT=0xFE1000
HB=0x1000000
PROF=0x1300000
H1=0x1280000; H2=0x1281000; EPO=0x1282000; TH=0x1283000
STP=0x1680000; STX=0x1780000
FO=0x1700000; OB2=0x1400000; FL=0x12A0000; FH=0x1740000
L_STG=0; L_KV=10240; L_WO=55296; L_MISC=157696; L_MW=0
L_CS=L_MISC
L_SA=L_MISC+512
L_SR=L_SA+1024
L_MODE=L_SR+512
L_FLG=L_MODE+64
F_G1,F_G2,F_H2,F_STG,F_SCP,F_DONE,F_WOR,F_MW=[L_FLG+4*i for i in (0,1,2,4,8,9,10,12)]
L_SWS=L_FLG+80; F_O1=L_FLG+44; F_WOD=L_FLG+64; F_PR=L_FLG+68; F_WO2=L_FLG+72; F_PS=L_FLG+76; F_FS=L_FLG+84; F_LD=L_FLG+88; F_X=L_FLG+96
L_KEYS=L_FLG+128
L_CA=L_KEYS+256; L_TOP=L_CA+64
L_RED=L_WO
sX,sW,sWO,sWG,sWU,sWD,sOUT,sWS,sDBG,sWR=[4+4*i for i in range(10)]
sWAVE,sG,sSLOT,sRQ,sHH,sRB,sCT,sMODE,sEP,sTAG=range(44,54)
sT=54
sLO=76
sPROF=80
p=P()
COLD=[]
CALI=lambda: 's_memtime' if CFG['cal'][1]>20000 else 's_memrealtime'
def STAMP(name,w=0):
    if CFG['amp']:
        a=CFG['amp']
        if name=='entry': p(f"s_memrealtime s[{sPROF+8}:{sPROF+9}]")
        for k in (0,1):
            if name==a[k]:
                p(f"{'s_memrealtime' if a[2]=='r' else 's_memtime'} s[{sPROF+2*k}:{sPROF+2*k+1}]")
                if w: p("s_waitcnt lgkmcnt(0)")
    if CFG['cal'] and name in CFG['cal'][0].split('|'):
        p(f"{CALI()} s[{sPROF}:{sPROF+1}]")
        if w: p("s_waitcnt lgkmcnt(0)")
    i=[k for k,n in enumerate(CFG['st']) if name in n.split('|')]
    if CFG['prof'] and i:
        i=i[0]
        p(f"{'s_memrealtime' if CFG['prof']==2 else 's_memtime'} s[{sPROF+2*i}:{sPROF+2*i+1}]")
        if w: p("s_waitcnt lgkmcnt(0)")
def PROFDUMP():
    if not CFG['prof']: return
    p("s_waitcnt vmcnt(0) lgkmcnt(0)")
    p("s_mov_b64 exec, -1")
    for i in range(10): p(f"v_mov_b32 v{2+i}, s{sPROF+2*i}")
    p(f"""s_lshl_b32 s{sT}, s2, 3
    s_add_u32 s{sT}, s{sT}, s{sWAVE}
    s_lshl_b32 s{sT}, s{sT}, 6
    s_add_u32 s{sT}, s{sT}, {PROF}
    v_mov_b32 v1, 0
    s_mov_b64 exec, 1
    buffer_store_dwordx4 v[2:5], v1, s[{sWS}:{sWS+3}], s{sT} offen
    buffer_store_dwordx4 v[6:9], v1, s[{sWS}:{sWS+3}], s{sT} offen offset:16
    buffer_store_dwordx2 v[10:11], v1, s[{sWS}:{sWS+3}], s{sT} offen offset:32""")
def END():
    PROFDUMP()
    if CFG['amp']:
        a=CFG['amp']
        lp=p.lab("amp"); ok=p.lab("ampok")
        p(f"""s_waitcnt vmcnt(0) lgkmcnt(0)
        s_cmp_eq_u32 s{sPROF+2}, 0
        s_cbranch_scc1 {ok}
        s_cmp_lg_u32 s{sWAVE}, {a[5] if len(a)>5 else 0}
        s_cbranch_scc1 {ok}""")
        if a[4]>=0: p(f"s_cmp_lg_u32 s2, {a[4]}\ns_cbranch_scc1 {ok}")
        p(f"""s_sub_u32 s{sPROF+6}, s{sPROF+2}, s{sPROF}
        s_mul_i32 s{sPROF+6}, s{sPROF+6}, {a[3]}
        s_lshr_b32 s{sPROF+6}, s{sPROF+6}, 4
        s_min_u32 s{sPROF+6}, s{sPROF+6}, 100000
        s_add_u32 s{sPROF+6}, s{sPROF+6}, 3000
        s_mov_b32 s{sPROF+4}, 100000
        {lp}:
        s_sleep 2
        s_memrealtime s[{sPROF+2}:{sPROF+3}]
        s_sub_u32 s{sPROF+4}, s{sPROF+4}, 1
        s_cbranch_scc1 {ok}
        s_waitcnt lgkmcnt(0)
        s_sub_u32 s{sPROF+2}, s{sPROF+2}, s{sPROF+8}
        s_cmp_lt_u32 s{sPROF+2}, s{sPROF+6}
        s_cbranch_scc1 {lp}
        {ok}:""")
    if CFG['cal']:
        lp=p.lab("cal"); ok=p.lab("calok")
        p(f"""s_waitcnt vmcnt(0) lgkmcnt(0)
        s_cmp_eq_u32 s{sPROF}, 0
        s_cbranch_scc1 {ok}
        s_cmp_ge_u32 s{sWAVE}, 4
        s_cbranch_scc1 {ok}
        s_mov_b32 s{sPROF+4}, 100000
        {lp}:
        s_sleep 2
        {CALI()} s[{sPROF+2}:{sPROF+3}]
        s_sub_u32 s{sPROF+4}, s{sPROF+4}, 1
        s_cbranch_scc1 {ok}
        s_waitcnt lgkmcnt(0)
        s_sub_u32 s{sPROF+2}, s{sPROF+2}, s{sPROF}
        s_cmp_lt_u32 s{sPROF+2}, {CFG['cal'][1]}
        s_cbranch_scc1 {lp}
        {ok}:""")
    p("s_endpgm")
S4=lambda r:f"s[{r}:{r+3}]"
SPIN=1<<18

def srd(lst):
    for r,n in lst: p(f"s_mov_b32 s{r+2}, {n}\ns_mov_b32 s{r+3}, 0x20000")
def prologue():
    STAMP('entry')
    p(f"""s_cmp_ge_u32 s2, 256
    s_cbranch_scc1 L_exit
    s_load_dwordx2 s[{sX}:{sX+1}], s[0:1], 0
    s_load_dwordx2 s[{sW}:{sW+1}], s[0:1], 8
    s_load_dwordx2 s[{sWS}:{sWS+1}], s[0:1], 80
    v_lshrrev_b32 v1, 6, v0
    v_and_b32 v0, 63, v0
    v_readfirstlane_b32 s{sWAVE}, v1
    s_and_b32 s{sG}, s2, 7
    s_lshr_b32 s{sSLOT}, s2, 3
    s_lshr_b32 s{sRQ}, s{sG}, 1
    s_and_b32 s{sHH}, s{sG}, 1
    s_and_b32 s{sRB}, s{sSLOT}, 3
    s_lshr_b32 s{sCT}, s{sSLOT}, 2""")
    if CFG['cal']: p(f"s_mov_b32 s{sPROF}, 0")
    if CFG['amp']: p(f"s_mov_b32 s{sPROF+2}, 0")
    if CFG['prof']:
        for i in range(1,10): p(f"s_mov_b32 s{sPROF+2*i}, 0")
    p(f"""s_cmp_lt_u32 s{sWAVE}, 4
    s_cbranch_scc1 L_comp""")
def prologue2(comp=0):
    if comp:
        p(f"""s_mov_b32 s{sTAG}, {EPO}
        s_load_dword s{sEP}, s[{sWS}:{sWS+1}], s{sTAG}
        s_load_dwordx2 s[{sWR}:{sWR+1}], s[0:1], 32
        s_load_dwordx2 s[{sOUT}:{sOUT+1}], s[0:1], 64""")
        srd(((sWS,268435456),(sWR,1280),(sOUT,2621440)))
        p(f"""s_mov_b32 s{sLO}, -1
        s_mov_b32 s{sLO+1}, 0
        s_mov_b32 s{sLO+2}, 0xfffff
        s_mov_b32 s{sLO+3}, 0xfffff""")
        return
    p(f"""s_mov_b32 s{sTAG}, {EPO}
    s_load_dword s{sEP}, s[{sWS}:{sWS+1}], s{sTAG}
    s_load_dwordx2 s[{sWO}:{sWO+1}], s[0:1], 16
    s_load_dwordx2 s[{sWR}:{sWR+1}], s[0:1], 32
    s_load_dwordx2 s[{sWG}:{sWG+1}], s[0:1], 40
    s_load_dwordx2 s[{sWU}:{sWU+1}], s[0:1], 48
    s_load_dwordx2 s[{sWD}:{sWD+1}], s[0:1], 56
    s_load_dwordx2 s[{sOUT}:{sOUT+1}], s[0:1], 64""")
    srd(((sWS,268435456),(sWO,819200),(sWR,1280),(sWG,1966080),(sWU,1966080),(sWD,1966080),(sOUT,2621440)))
    p(f"""s_mov_b32 s{sLO}, -1
    s_mov_b32 s{sLO+1}, 0
    s_mov_b32 s{sLO+2}, 0xfffff
    s_mov_b32 s{sLO+3}, 0xfffff""")
def mktag():
    p(f"""s_mul_i32 s{sTAG}, s{sEP}, 0x9e3779b1
    s_add_u32 s{sTAG}, s{sTAG}, 0x7f4a7c15
    s_and_b32 s{sTAG}, s{sTAG}, -16""")
def colbyte(dst, lc):
    t=sT+18
    p(f"""s_mul_i32 s{t}, s{lc}, 52
    s_lshr_b32 s{t}, s{t}, 8
    s_mul_i32 s{t+1}, s{t}, 5
    s_sub_u32 s{t+1}, s{lc}, s{t+1}
    s_mul_i32 s{t}, s{t}, 1280
    s_lshl_b32 s{t+1}, s{t+1}, 7
    s_mul_i32 s{dst}, s{sHH}, 640
    s_add_u32 s{dst}, s{dst}, s{t}
    s_add_u32 s{dst}, s{dst}, s{t+1}""")

def loader():
    CA_=sT+1; CB_=sT+2; CH=sT+3; XO=sT+4; WO_=sT+5; LB=sT+6; A=sT+7; B=sT+8; OFF=sT+9; SEQ=sT+10
    vX=2; vW=6; vt=10
    p(f"""s_sub_u32 s{HW}, s{sWAVE}, 4
    s_lshl_b32 s{A}, s{sCT}, 1
    s_add_u32 s{B}, s{A}, 1
    s_min_u32 s{B}, s{B}, 14""")
    colbyte(CA_,A); colbyte(CB_,B)
    p(f"""v_lshrrev_b32 v{vt}, 3, v0
    v_mul_u32_u24 v{vX}, 1280, v{vt}
    v_lshrrev_b32 v{vt+1}, 4, v0
    v_and_b32 v{vt+2}, 7, v0
    v_xor_b32 v{vt+2}, v{vt+2}, v{vt+1}
    v_lshl_add_u32 v{vX}, v{vt+2}, 4, v{vX}
    v_xor_b32 v{vX+1}, 64, v{vX}
    v_add_u32 v{vX+1}, {10240-1024}, v{vX+1}
    v_add_u32 v{vX+2}, {2*(10240-1024)}, v{vX}
    v_add_u32 v{vX+3}, {2*(10240-1024)}, v{vX+1}
    v_lshlrev_b32 v{vt+2}, 2, v{vt+1}
    v_and_b32 v{vt+3}, 15, v0
    v_xor_b32 v{vt+2}, v{vt+2}, v{vt+3}
    v_cmp_lt_u32 vcc, 7, v{vt+2}
    v_mov_b32 v{vt+3}, s{CA_}
    v_mov_b32 v{vt+4}, s{CB_}
    v_cndmask_b32 v{vt+3}, v{vt+3}, v{vt+4}, vcc
    v_and_b32 v{vt+2}, 7, v{vt+2}
    v_lshl_add_u32 v{vt+3}, v{vt+2}, 4, v{vt+3}
    v_mul_u32_u24 v{vW}, 3840, v{vt+1}
    v_add_u32 v{vW}, v{vW}, v{vt+3}""")
    for i in range(1,4): p(f"v_add_u32 v{vW+i}, {i*(4*3840-1024)}, v{vW}")
    ta,tc,tg=CFG['rot']
    pk=lambda t: sum(int(v)<<(4*i) for i,v in enumerate(t))
    p(f"""s_lshl_b32 s{A}, s{sRB}, 2
    s_lshr_b32 s{CH}, {pk(ta)}, s{A}
    s_and_b32 s{CH}, s{CH}, 15
    s_lshl_b32 s{A}, s{sCT}, 2
    s_lshr_b32 s{A}, {hex(pk(tc))}, s{A}
    s_and_b32 s{A}, s{A}, 15
    s_add_u32 s{CH}, s{CH}, s{A}
    s_lshl_b32 s{A}, s{sG}, 2
    s_lshr_b32 s{A}, {hex(pk(tg))}, s{A}
    s_and_b32 s{OFF}, s{A}, 15""")
    seqs=CFG['seqs']
    if seqs:
        n=len(seqs)
        p(f"""s_mul_i32 s{A}, s{CH}, {-(-2048//n)}
        s_lshr_b32 s{A}, s{A}, 11
        s_mul_i32 s{A}, s{A}, {n}
        s_sub_u32 s{CH}, s{CH}, s{A}""")
        for i,q in enumerate(seqs):
            assert sorted(q)==list("0123456789")
            if i: p(f"s_cmp_eq_u32 s{CH}, {i}\ns_cselect_b32 s{SEQ}, {hex(pk(q[:8]))}, s{SEQ}\ns_cselect_b32 s{SEQ+1}, {hex(pk(q[8:]))}, s{SEQ+1}")
            else: p(f"s_mov_b32 s{SEQ}, {hex(pk(q[:8]))}\ns_mov_b32 s{SEQ+1}, {hex(pk(q[8:]))}")
    else:
        p(f"""s_add_u32 s{CH}, s{CH}, s{OFF}
    s_mul_i32 s{A}, s{CH}, 205
    s_lshr_b32 s{A}, s{A}, 11
    s_mul_i32 s{A}, s{A}, 10
    s_sub_u32 s{CH}, s{CH}, s{A}""")
    p(f"""
    s_lshl_b32 s{A}, s{sRQ}, 2
    s_add_u32 s{A}, s{A}, s{sRB}
    s_lshl_b32 s{A}, s{A}, 2
    s_add_u32 s{A}, s{A}, s{HW}
    s_mul_i32 s{XO}, s{A}, {32*1280}
    s_mul_i32 s{WO_}, s{HW}, {16*3840}
    s_lshl_b32 s{LB}, s{HW}, 12""")
    CHW=SEQ
    p(f"s_mov_b32 s{CHW}, s{CH}")
    nx=dict(x=0,w=0)
    def issue(order,lim):
        global OPS
        for k in order:
            c=nx[k]; nx[k]+=1; assert c<=min(9,lim)
            slot=(c%4)*32768; ch=CH if k=='x' else CHW
            if k=='x': p(f"""s_lshl_b32 s{A}, s{ch}, 7
                s_add_u32 m0, s{LB}, {slot}
                s_add_u32 s{A}, s{A}, s{XO}""")
            else: p(f"""s_mul_i32 s{A}, s{ch}, {64*3840}
                s_add_u32 m0, s{LB}, {slot+16384}
                s_add_u32 s{A}, s{A}, s{WO_}""")
            for i in range(4):
                if k=='x': p(f"buffer_load_dwordx4 v{vX+i}, {S4(sX)}, s{A} offen offset:{i*1024} {CFG['xpol'] if c<CFG['xnt'] else ''} lds")
                else: p(f"buffer_load_dwordx4 v{vW+i}, {S4(sW)}, s{A} offen offset:{i*1024} {'nt' if c<CFG['wnt'] else CFG['wpol']} lds")
            p(f"""s_add_u32 s{ch}, s{ch}, 1
            s_cmp_eq_u32 s{ch}, 10
            s_cselect_b32 s{ch}, 0, s{ch}""")
            OPS+=[c]*4
    ORD=CFG['ord'].split(',')
    srd(((sX,2621440),(sW,2457600)))
    p("s_waitcnt lgkmcnt(0)")
    STAMP('i0')
    for c in range(1):
        issue(ORD[0],3); STAMP('i%d'%(c+1))
        if c==0:
            prologue2()
            p(f"""v_cmp_lt_u32 vcc, 7, v0
            v_lshlrev_b32 v{vt}, 4, v0
            v_add_u32 v{vt}, {L_FLG}, v{vt}
            v_cndmask_b32 v{vt+2}, 0, -1, vcc
            v_cndmask_b32 v{vt+3}, 0, -1, vcc
            v_cndmask_b32 v{vt+4}, 0, -1, vcc
            v_cndmask_b32 v{vt+5}, 0, -1, vcc
            ds_write_b128 v{vt}, v[{vt+2}:{vt+5}]""")
            early()
    p("s_waitcnt lgkmcnt(0)")
    mktag()
    stats_setup()
    p(f"s_cmp_ge_u32 s{HW}, 2\ns_cbranch_scc1 L_helperB")
    nx0=dict(nx); ops0=list(OPS)
    def steps(hook,isB):
        global OPS
        nx.update(nx0); OPS=list(ops0)
        STAMP('i1s')
        issue(ORD[1],3)
        STAMP('i1e')
        if CFG['hclr']: hclear_setup(isB)
        if CFG['smw'] or CFG['smo']: sm_setup()
        for c in range(8):
            sd=CFG['sdef']
            if c==0 and -1 in sd:
                assert ORD[0][0]=='x'; p(f"s_waitcnt vmcnt({len(OPS)-4})")
                STAMP('x0')
                fill=stats(0)
                for k in range(4):
                    if sd[k]==-1: p(fill[k])
                if max(sd)==-1: stats_red()
            vmwait(c)
            p("s_barrier")
            STAMP('ld%d'%c)
            if c==0 and -1 not in sd: fill=stats(0)
            if c==CFG['stg'] and CFG['stb']: stats_get(); hook(100)
            if CFG['hclr']: hclear(c,isB)
            issue(ORD[2+c],c+3)
            if c==0: p("s_waitcnt lgkmcnt(0)")
            for k in range(4):
                if sd[k]==c: p(fill[k])
            if c==max(0,max(sd)):
                if max(sd)>=0: stats_red()
                stats_pub(); OPS.append('stw')
            if c==CFG['stg'] and not CFG['stb']: stats_get(); hook(100)
            hook(c)
            sm_touch(c,isB)
        assert nx==dict(x=10,w=10)
    return steps
aS=44; dS=64; sacc=60; sone=43; sDBL=sDBG; sSTP=sDBG+1
def stats_setup():
    vt=10
    tc=[int(x) for x in CFG['rot'][1]]
    assert not CFG['seqs'] and sorted(tc+[(tc[7]+1)%10,(tc[7]+2)%10])==list(range(10))
    p(f"""s_lshl_b32 s{sT+16}, s{HW}, 12
    v_bfe_u32 v{vt}, v0, 1, 3
    v_lshrrev_b32 v{vt+1}, 5, v0
    v_lshlrev_b32 v{vt+1}, 2, v{vt+1}
    v_xor_b32 v{vt}, v{vt}, v{vt+1}
    v_lshlrev_b32 v{vt}, 4, v{vt}
    v_and_b32 v{vt+1}, 31, v0
    v_lshl_add_u32 v{vt}, v{vt+1}, 7, v{vt}
    v_add_u32 v{aS}, s{sT+16}, v{vt}
    v_mov_b32 v{sone}, 0x3f803f80
    s_lshl_b32 s{sSTP}, s{sG}, 2
    s_add_u32 s{sSTP}, s{sSTP}, s{sRB}
    s_lshl_b32 s{sSTP}, s{sSTP}, 14
    s_lshl_b32 s{sT+16}, s{HW}, 9
    s_add_u32 s{sSTP}, s{sSTP}, s{sT+16}
    s_add_u32 s{sSTP}, s{sSTP}, {STP}
    v_lshrrev_b32 v{vt}, 5, v0
    v_lshlrev_b32 v{vt}, 11, v{vt}
    v_lshl_add_u32 v{aS+4}, v{vt+1}, 4, v{vt}
    s_lshl_b32 s{sT+16}, s{sCT}, 11
    s_cmp_eq_u32 s{sCT}, 7
    s_cselect_b32 s{sT+16}, {STX-STP}, s{sT+16}
    v_lshl_add_u32 v{aS+5}, v{vt+1}, 4, s{sT+16}""")
    for i in range(1,4): p(f"v_xor_b32 v{aS+i}, {16*i}, v{aS}")
    for i in range(4): p(f"v_mov_b32 v{sacc+i}, 0")
    if CFG['smode'] in ('dotx','dotc'):
        for i in range(2*CFG['nacc']): p(f"v_mov_b32 v{102+i}, 0")
def stats(c):
    if 'nostats' in CFG['xp']: return ['s_nop 0']*4
    for i in range(4): p(f"ds_read_b128 {vr(dS+4*i,4)}, v{aS+i} offset:{c*32768}")
    L=[]
    for i in range(4):
        g=f"s_waitcnt lgkmcnt({3-i})"
        for j in range(4):
            r=dS+4*i+j
            u=80+2*(j&1)
            if CFG['smode']=='dotx':
                a=102+2*((4*i+j)%CFG['nacc']); g+=f"\nv_dot2_f32_bf16 v{a}, v{r}, v{sone}, v{a}\nv_dot2_f32_bf16 v{a+1}, v{r}, v{r}, v{a+1}"
            elif CFG['smode']=='dotc':
                a=102+2*((4*i+j)%CFG['nacc']); g+=f"\nv_dot2c_f32_bf16 v{a}, v{r}, v{sone}\nv_dot2c_f32_bf16 v{a+1}, v{r}, v{r}"
            elif CFG['smode']=='dot': g+=f"\nv_dot2_f32_bf16 v{sacc+(j&1)}, v{r}, v{sone}, v{sacc+(j&1)}\nv_dot2_f32_bf16 v{sacc+2+(j&1)}, v{r}, v{r}, v{sacc+2+(j&1)}"
            elif CFG['smode']=='valu': g+=f"\nv_lshlrev_b32 v{u}, 16, v{r}\nv_and_b32 v{u+1}, 0xffff0000, v{r}\nv_add_f32 v{sacc}, v{sacc}, v{u}\nv_fmac_f32 v{sacc+2}, v{u}, v{u}\nv_add_f32 v{sacc+1}, v{sacc+1}, v{u+1}\nv_fmac_f32 v{sacc+3}, v{u+1}, v{u+1}"
            elif CFG['smode']=='pk': g+=f"\nv_lshlrev_b32 v{u}, 16, v{r}\nv_and_b32 v{u+1}, 0xffff0000, v{r}\nv_pk_add_f32 v[{sacc}:{sacc+1}], v[{sacc}:{sacc+1}], v[{u}:{u+1}]\nv_pk_fma_f32 v[{sacc+2}:{sacc+3}], v[{u}:{u+1}], v[{u}:{u+1}], v[{sacc+2}:{sacc+3}]"
        L.append(g)
    return L
def stats_red():
    t=sacc
    p(f"""s_nop 1
    v_add_f32 v{t}, v{t}, v{t+1}
    v_add_f32 v{t+1}, v{t+2}, v{t+3}
    v_mov_b32 v{t+2}, s{sTAG}
    s_nop 0
    v_permlane32_swap_b32 v{t}, v{t+1}
    s_nop 0
    v_add_f32 v{t}, v{t}, v{t+1}
    v_mov_b32 v{t+1}, v{t}
    s_nop 1
    v_permlane32_swap_b32 v{t}, v{t+1}""")
def stats_pub():
    t=sacc
    p(f"""s_mov_b64 exec, s[{sLO}:{sLO+1}]
    buffer_store_dwordx4 {vr(t,4)}, v{aS+5}, {S4(sWS)}, s{sSTP} offen sc1
    s_mov_b64 exec, -1""")
def stats_ld():
    return "\n".join(f"s_add_u32 s{sSTP+1}, s{sSTP}, {4096*i}\nbuffer_load_dwordx4 {vr(dS+4*i,4)}, v{aS+4}, {S4(sWS)}, s{sSTP+1} offen sc1" for i in range(4))
def stats_get():
    p(stats_ld()); OPS.extend(['stp']*4)
def stats_fin(t,B):
    vmwait('stp')
    lp=p.lab("stl"); ok=p.lab("stok"); rt=p.lab("strt")
    p(f"""s_mov_b32 s{B}, {SPIN}
    {lp}:
    v_xor_b32 v{t}, v{dS+2}, v{dS+6}
    v_xor_b32 v{t+1}, v{dS+10}, v{dS+14}
    v_xor_b32 v{t+2}, s{sTAG}, v{dS+2}
    v_xor_b32 v{t+3}, s{sTAG}, v{dS+10}
    v_or3_b32 v{t}, v{t}, v{t+1}, v{t+2}
    v_or_b32 v{t}, v{t}, v{t+3}
    v_cmp_ne_u32 vcc, 0, v{t}
    v_add_f32 v{t+1}, v{dS}, v{dS+4}
    v_add_f32 v{t+2}, v{dS+1}, v{dS+5}
    s_cbranch_vccnz {rt}
    {ok}:""")
    n0=len(p.L)
    p(f"{rt}:"); spin(B,lp,ok,1); p(stats_ld()); p(f"s_waitcnt vmcnt(0)\ns_branch {lp}")
    COLD.append("\n".join(p.L[n0:])); del p.L[n0:]
    p(f"""v_add_f32 v{t+3}, v{dS+8}, v{dS+12}
    v_add_f32 v{t+4}, v{dS+9}, v{dS+13}
    v_add_f32 v{t+1}, v{t+1}, v{t+3}
    v_add_f32 v{t+2}, v{t+2}, v{t+4}
    s_nop 1
    v_permlane32_swap_b32 v{t+1}, v{t+2}
    s_nop 0
    v_add_f32 v{t+1}, v{t+1}, v{t+2}
    v_mul_f32 v{t+1}, {1/640!r}, v{t+1}
    v_mov_b32 v{t+2}, v{t+1}
    s_nop 1
    v_permlane32_swap_b32 v{t+1}, v{t+2}
    s_nop 0
    v_fma_f32 v{t+2}, -v{t+1}, v{t+1}, v{t+2}
    v_max_f32 v{t+2}, 0, v{t+2}""")
    bf16r(t+2,t+2)
    p(f"v_add_f32 v{t+2}, 0x3727c5ac, v{t+2}")
    bf16r(t+2,t+2)
    p(f"""v_sqrt_f32 v{t+2}, v{t+2}
    v_xor_b32 v{t+1}, 0x80000000, v{t+1}""")
    bf16r(t+2,t+2)
    p(f"""v_rcp_f32 v{t+5}, v{t+2}
    v_cvt_pk_bf16_f32 v{t+4}, v{t+1}, v{t+1}
    v_and_b32 v{t+3}, 31, v0
    s_lshl_b32 s{B}, s{HW}, 8
    s_add_u32 s{B}, s{B}, {L_SA}
    v_lshl_add_u32 v{t+1}, v{t+3}, 3, s{B}
    s_lshl_b32 s{B}, s{HW}, 7
    s_add_u32 s{B}, s{B}, {L_SR}
    v_lshl_add_u32 v{t+2}, v{t+3}, 2, s{B}
    ds_write_b64 v{t+1}, v[{t+4}:{t+5}]
    ds_write_b32 v{t+2}, v{t+5}""")
vPT=21; vDUM=39
HS=sT+12; HA=28
def early():
    A=sT+20; B=sT+21; vt=10
    p(f"""s_lshl_b32 s{A}, s{sSLOT}, 2
    s_add_u32 s{A}, s{A}, s{HW}
    s_mul_i32 s{A}, s{A}, 60
    v_min_u32 v{vt}, 59, v0
    v_add_u32 v{vt}, s{A}, v{vt}
    v_mul_u32_u24 v{vt+1}, 6554, v{vt}
    v_lshrrev_b32 v{vt+1}, 20, v{vt+1}
    v_mul_u32_u24 v{vt+2}, 160, v{vt+1}
    v_sub_u32 v{vt}, v{vt}, v{vt+2}
    v_lshlrev_b32 v{vt}, 7, v{vt}
    v_cmp_gt_u32 vcc, 32, v{vt+1}
    v_and_b32 v{vt+2}, 1, v{vt+1}
    v_mul_u32_u24 v{vt+2}, 20480, v{vt+2}
    v_bfe_u32 v{vt+3}, v{vt+1}, 1, 3
    v_mul_u32_u24 v{vt+3}, 163840, v{vt+3}
    v_add_u32 v{vt+2}, v{vt+2}, v{vt+3}
    v_lshrrev_b32 v{vt+3}, 4, v{vt+1}
    v_mul_u32_u24 v{vt+3}, {KB}, v{vt+3}
    s_mul_i32 s{A}, s{sRQ}, 40960
    v_add3_u32 v{vt+2}, v{vt+2}, v{vt+3}, s{A}
    v_and_b32 v{vt+3}, 15, v{vt+1}
    v_mul_u32_u24 v{vt+3}, 81920, v{vt+3}
    s_mul_i32 s{A}, s{sRQ}, 20480
    s_add_u32 s{A}, s{A}, {VB}
    v_add_u32 v{vt+3}, s{A}, v{vt+3}
    v_cndmask_b32 v{vt+2}, v{vt+3}, v{vt+2}, vcc
    s_mul_i32 s{A}, s{sHH}, {8*163840}
    v_add3_u32 v{vPT}, v{vt}, v{vt+2}, s{A}
""")
    p(f"""s_lshl_b32 s{A}, s{sSLOT}, 2
    s_add_u32 s{A}, s{A}, s{HW}
    s_mul_i32 s{B}, s{A}, 20
    v_min_u32 v{vt}, 19, v0
    v_add_u32 v{vt}, s{B}, v{vt}
    v_mul_u32_u24 v{vt+1}, 13108, v{vt}
    v_lshrrev_b32 v{vt+1}, 20, v{vt+1}
    v_mul_u32_u24 v{vt+2}, 80, v{vt+1}
    v_sub_u32 v{vt}, v{vt}, v{vt+2}
    v_lshlrev_b32 v{vt}, 7, v{vt}
    v_cmp_gt_u32 vcc, 16, v{vt+1}
    v_and_b32 v{vt+2}, 1, v{vt+1}
    v_mul_u32_u24 v{vt+2}, 10240, v{vt+2}
    v_lshrrev_b32 v{vt+3}, 1, v{vt+1}
    v_mul_u32_u24 v{vt+3}, 163840, v{vt+3}
    s_mul_i32 s{B}, s{sRQ}, 40960
    s_add_u32 s{B}, s{B}, {KH+20480}
    v_add3_u32 v{vt+2}, v{vt+2}, v{vt+3}, s{B}
    v_and_b32 v{vt+3}, 15, v{vt+1}
    v_mul_u32_u24 v{vt+3}, 81920, v{vt+3}
    s_mul_i32 s{B}, s{sRQ}, 20480
    s_add_u32 s{B}, s{B}, {VH+10240}
    v_add_u32 v{vt+3}, s{B}, v{vt+3}
    v_cndmask_b32 v{vt+2}, v{vt+3}, v{vt+2}, vcc
    s_mul_i32 s{B}, s{sHH}, {8*163840}
    v_add3_u32 v{vHT}, v{vt}, v{vt+2}, s{B}
    s_lshl_b32 s{B}, s{sG}, 7
    s_add_u32 s{A}, s{A}, s{B}
    s_lshl_b32 s{A}, s{A}, 7
    s_add_u32 s{A}, s{A}, {FH}
    v_mov_b32 v{vt}, s{A}
    v_cmp_lt_u32 vcc, 19, v0
    s_nop 1
    v_cndmask_b32 v{vHT}, v{vHT}, v{vt}, vcc""")
    nsm=sum(CFG['npf']); per=(100-5*nsm)//2
    if per>0:
        p(f"""s_mul_i32 s{A}, s{sG}, 5
        s_lshr_b32 s{A}, s{A}, 1
        s_mul_i32 s{A}, s{A}, 5
        s_lshr_b32 s{B}, s{HW}, 1
        s_mul_i32 s{B}, s{B}, {per}
        s_add_u32 s{A}, s{A}, s{B}
        s_add_u32 s{A}, s{A}, {5*nsm}
        v_min_u32 v{vt}, {per-1}, v0
        v_add_u32 v{vt}, s{A}, v{vt}
        v_subrev_u32 v{vt+1}, 100, v{vt}
        v_min_u32 v{vt}, v{vt}, v{vt+1}
        s_lshl_b32 s{A}, s{sSLOT}, 1
        s_and_b32 s{B}, s{HW}, 1
        s_add_u32 s{A}, s{A}, s{B}
        s_mul_i32 s{A}, s{A}, 12800
        v_lshl_add_u32 v{vTW}, v{vt}, 7, s{A}""")
    ge=p.lab("mtge"); jn=p.lab("mtj")
    p(f"""v_min_u32 v{vt}, 59, v0
    v_mul_u32_u24 v{vt+1}, 86, v{vt}
    v_lshrrev_b32 v{vt+1}, 8, v{vt+1}
    v_mul_u32_u24 v{vt+1}, {3072-384}, v{vt+1}
    v_lshl_add_u32 v{vt}, v{vt}, 7, v{vt+1}
    s_mul_i32 s{A}, s{sSLOT}, {20*3072}
    s_mul_i32 s{B}, s{sG}, 384
    s_add_u32 s{A}, s{A}, s{B}
    v_add_u32 v{vTM}, s{A}, v{vt}
    s_sub_u32 s{A}, s{sSLOT}, {0 if CFG['dw3'] else 17}
    s_lshl_b32 s{A}, s{A}, {1 if CFG['dw3'] else 2}
    s_add_u32 s{A}, s{A}, s{HW}
    s_mul_i32 s{A}, s{A}, {24 if CFG['dw3'] else 26}
    v_min_u32 v{vt}, {47 if CFG['dw3'] else 51}, v0
    v_lshrrev_b32 v{vt+1}, 1, v{vt}
    v_add_u32 v{vt+1}, s{A}, v{vt+1}
    v_min_u32 v{vt+1}, 1535, v{vt+1}
    v_mul_u32_u24 v{vt+1}, 1280, v{vt+1}
    v_and_b32 v{vt}, 1, v{vt}
    v_lshl_add_u32 v{vt}, v{vt}, 7, v{vt+1}
    s_mul_i32 s{B}, s{sG}, 160
    s_and_b32 s{B}, s{B}, -128
    v_add_u32 v{vTD}, s{B}, v{vt}""")
vTD=25; vHT=26
vTW=22; vTM=24
def touch(va,srd_,pair,pol=''):
    if pair:
        p(f"buffer_load_dword v{vDUM}, v{va}, {S4(srd_)}, 0 offen nt\nbuffer_load_dword v{vDUM}, v{va}, {S4(srd_)}, 0 offen offset:64")
        return 2
    p(f"buffer_load_dword v{vDUM}, v{va}, {S4(srd_)}, 0 offen {pol}")
    return 1
def wtouch(win,isB):
    n=0
    if CFG['wtw']==win and 100-5*sum(CFG['npf'])>0:
        n+=touch(vTW,sWO,CFG['wpair'])
    if CFG['mtw']==win:
        if not isB:
            u=p.lab("tu"); j=p.lab("tj")
            p(f"s_cmp_eq_u32 s{HW}, 0\ns_cbranch_scc0 {u}")
            touch(vTM,sWG,CFG['mpair'])
            p(f"s_branch {j}\n{u}:")
            n+=touch(vTM,sWU,CFG['mpair'])
            p(f"{j}:")
    return n
def qkv_touch():
    if CFG['pt']==99: return
    if CFG['ht']==1: OPS.extend(['pt']*touch(vHT,sWS,0,''))
    OPS.extend(['pt']*touch(vPT,sWS,CFG['qpair'],CFG['tpol']))
    if CFG['ht']==2: OPS.extend(['pt']*touch(vHT,sWS,0,''))
vH=16
OPS=[]
def vmwait(*tags):
    last=max(i for i,t in enumerate(OPS) if t in tags)
    n=len(OPS)-1-last; assert n<64
    p(f"s_waitcnt vmcnt({n})")
HW=sT
def spin(cnt,lp,ok,sleep=0):
    p(f"s_sub_u32 s{cnt}, s{cnt}, 1\ns_cbranch_scc1 {ok}")
    if sleep: p(f"s_sleep {sleep}")
def lds_wait(addr_v,tmp,cnt,cmp,val,sleep=1):
    lp=p.lab("lw"); ok=p.lab("lwok")
    p(f"""s_mov_b32 s{cnt}, {SPIN*4}
    {lp}:
    ds_read_b32 v{tmp}, v{addr_v}
    s_waitcnt lgkmcnt(0)
    v_cmp_{cmp}_u32 vcc, {val}, v{tmp}
    s_nop 0
    s_cbranch_vccz {ok}""")
    spin(cnt,lp,ok,sleep)
    p(f"s_branch {lp}\n{ok}:")
sHL,sHF,sHO,sPH,sHD,sT0=range(sT+1,sT+7)
def att_ids():
    p(f"""s_lshr_b32 s{sHL}, s{sSLOT}, 1
    s_and_b32 s{sHF}, s{sSLOT}, 1
    s_and_b32 s{sHO}, s{sHL}, 1
    s_lshr_b32 s{sPH}, s{sHL}, 1
    s_lshl_b32 s{sHD}, s{sHH}, 3
    s_add_u32 s{sPH}, s{sPH}, s{sHD}
    s_lshl_b32 s{sHD}, s{sHH}, 4
    s_add_u32 s{sHD}, s{sHD}, s{sHL}
    s_lshl_b32 s{sT0}, s{sRQ}, 1
    s_add_u32 s{sT0}, s{sT0}, s{sHF}
    s_lshl_b32 s{sT0}, s{sT0}, 3""")
def flag_addr(vd,vt,withq,A,B,C):
    p(f"""s_lshr_b32 s{A}, s{sHL}, 1
    s_mul_i32 s{A}, s{A}, 5
    s_lshl_b32 s{B}, s{sHO}, 1
    s_add_u32 s{A}, s{A}, s{B}
    s_add_u32 s{B}, s{A}, 2
    s_lshr_b32 s{A}, s{A}, 3
    s_lshr_b32 s{B}, s{B}, 3
    s_lshl_b32 s{B}, s{B}, 4
    s_or_b32 s{A}, s{A}, s{B}
    s_add_u32 s{B}, s{A}, 0x55
    s_lshl_b32 s{C}, s{B}, 8
    s_or_b32 s{A}, s{C}, s{A if withq else B}
    s_mul_i32 s{B}, s{sHL}, 20
    s_add_u32 s{C}, s{B}, 19
    s_lshr_b32 s{B}, s{B}, 6
    s_lshr_b32 s{C}, s{C}, 6
    s_lshl_b32 s{C}, s{C}, 4
    s_or_b32 s{B}, s{B}, s{C}
    s_add_u32 s{B}, s{B}, 0xaa
    s_lshl_b32 s{B}, s{B}, 16
    s_or_b32 s{A}, s{A}, s{B}
    v_and_b32 v{vt}, 60, v0
    v_min_u32 v{vt}, 20, v{vt}
    v_bfe_u32 v{vt}, s{A}, v{vt}, 4
    v_and_b32 v{vd}, 3, v0
    v_lshlrev_b32 v{vd}, 2, v{vd}
    v_lshl_add_u32 v{vd}, v{vt}, 7, v{vd}""")
def flag_poll(va,vt,soff,cnt,first=True,sleep=0):
    lp=p.lab("fp"); ok=p.lab("fpok");
    p(f"s_mov_b32 s{cnt}, {SPIN}")
    if not first:
        md=p.lab("fpm"); p(f"s_branch {md}")
    p(f"""{lp}:
    buffer_load_dword v{vt}, v{va}, {S4(sWS)}, s{soff} offen sc1""")
    if not first: p(f"{md}:")
    p(f"""s_waitcnt vmcnt(0)
    v_cmp_ne_u32 vcc, s{sTAG}, v{vt}
    s_nop 0
    s_cbranch_vccz {ok}""")
    spin(cnt,lp,ok,sleep)
    p(f"s_branch {lp}\n{ok}:")
def flag_poll2(va,vt,soff,cnt,n=2,gap=0):
    lp=p.lab("fq"); ok=p.lab("fqok")
    ld=lambda i: f"buffer_load_dword v{vt+i}, v{va}, {S4(sWS)}, s{soff} offen sc1"
    p(f"s_mov_b32 s{cnt}, {SPIN}")
    for i in range(n-1):
        p(ld(i))
        if gap: p(f"s_sleep {gap}")
    p(f"{lp}:")
    for i in range(n):
        p(f"""{ld((i+n-1)%n)}
        s_waitcnt vmcnt({n-1})
        v_cmp_ne_u32 vcc, s{sTAG}, v{vt+i}
        s_nop 0
        s_cbranch_vccz {ok}""")
    spin(cnt,lp,ok)
    p(f"s_branch {lp}\n{ok}:")
def kv_dma(aLin,aTl,sK,sV,sL,A,B,sHO=sHO):
    p(f"""s_mul_i32 s{A}, s{sHO}, 1536
    s_add_u32 s{A}, s{A}, s{sK}
    s_mov_b32 m0, s{sL}
    s_add_u32 s{B}, s{A}, 1536
    buffer_load_dwordx4 v{aLin}, {S4(sWS)}, s{A} offen sc1 lds
    buffer_load_dwordx4 v{aLin}, {S4(sWS)}, s{B} offen offset:1024 sc1 lds
    s_sub_u32 s{A}, s{sK}, 2048
    s_sub_u32 s{B}, s{sV}, 3072
    buffer_load_dwordx4 v{aTl}, {S4(sWS)}, s{A} offen offset:2048 sc1 lds
    buffer_load_dwordx4 v{aLin}, {S4(sWS)}, s{B} offen offset:3072 sc1 lds
    s_add_u32 m0, s{sL}, 4096
    s_add_u32 s{B}, s{sV}, 1024
    buffer_load_dwordx4 v{aLin}, {S4(sWS)}, s{B} offen sc1 lds
    s_mov_b64 exec, s[{sLO}:{sLO+1}]
    buffer_load_dwordx4 v{aLin}, {S4(sWS)}, s{B} offen offset:1024 sc1 lds
    s_mov_b64 exec, -1""")
def kv_addr(aLin,aTl,t):
    p(f"""v_lshlrev_b32 v{aLin}, 4, v0
    v_lshrrev_b32 v{t}, 5, v0
    v_mul_u32_u24 v{t}, {2560-512}, v{t}
    v_add3_u32 v{aTl}, v{aLin}, v{t}, s{sK1024}""")
sK1024=sT+21

def halo_flag(vt,A,B,C):
    sk=p.lab("nohalo")
    p(f"""s_lshl_b32 s{A}, s{sCT}, 1
    s_add_u32 s{A}, s{A}, s{HW}
    s_sub_u32 s{A}, s{A}, 2
    s_sub_u32 s{B}, s{A}, 5
    s_cmp_lt_u32 s{B}, 10
    s_cselect_b32 s{B}, s{sRB}, 0
    s_cmp_lt_u32 s{sRQ}, 3
    s_cselect_b32 s{B}, s{B}, 0
    s_cmp_lt_u32 s{B}, 2
    s_cbranch_scc1 {sk}
    s_lshl_b32 s{C}, s{sG}, 4
    s_add_u32 s{A}, s{A}, s{C}
    s_lshl_b32 s{A}, s{A}, 2
    s_add_u32 s{A}, s{A}, s{B}
    s_lshl_b32 s{A}, s{A}, 8
    s_add_u32 s{A}, s{A}, {FH}
    s_lshl_b32 s{B}, s{HW}, 2
    s_add_u32 s{B}, s{B}, {F_STG-8}
    v_mov_b32 v{vt}, s{B}
    v_lshlrev_b32 v{vt+2}, 7, v0
    v_mov_b32 v{vt+3}, s{sTAG}""")
    lds_wait(vt,vt+1,C,'gt',2,0)
    p(f"""s_mov_b64 exec, 3
    buffer_store_dword v{vt+3}, v{vt+2}, {S4(sWS)}, s{A} offen sc1
    s_mov_b64 exec, -1""")
    STAMP('halo')
    p(f"{sk}:")
def own_setup(aF2,vt):
    A=sT+7; B=sT+8; sF,sK,sV,sL=range(sT+12,sT+16)
    flag_addr(aF2,vt,1,A,B,sT+18)
    p(f"""s_lshl_b32 s{sF}, s{sG}, 11
    s_lshl_b32 s{A}, s{sHF}, 4
    s_add_u32 s{sF}, s{sF}, s{A}
    s_add_u32 s{sF}, s{sF}, {FL}
    s_lshl_b32 s{A}, s{HW}, 1
    s_add_u32 s{A}, s{A}, s{sT0}
    s_mul_i32 s{sK}, s{A}, 2560
    s_mul_i32 s{sV}, s{A}, 1280
    s_mul_i32 s{A}, s{sPH}, {64*2560}
    s_add_u32 s{sK}, s{sK}, s{A}
    s_add_u32 s{sK}, s{sK}, {KB}
    s_mul_i32 s{A}, s{sHD}, 81920
    s_add_u32 s{sV}, s{sV}, s{A}
    s_add_u32 s{sV}, s{sV}, {VB}
    s_mul_i32 s{sL}, s{HW}, 5632
    s_add_u32 s{sL}, s{sL}, {L_KV+4*5632}""")
def own_kv(aLin,aTl,aF2,vt,sHO_):
    A=sT+7; B=sT+8; sF,sK,sV,sL=range(sT+12,sT+16); C=sT+18
    p(f"v_mov_b32 v{vt}, {F_FS}\nv_mov_b32 v{vt+1}, 1")
    flag_poll(aF2,vt+2,sF,C)
    p(f"ds_write_b32 v{vt}, v{vt+1}")
    STAMP('hfs')
    kv_dma(aLin,aTl,sK,sV,sL,A,B,sHO_)
    p(f"""s_mov_b64 exec, 1
    v_mov_b32 v{vt}, {F_G1}
    s_waitcnt vmcnt(0)
    ds_add_u32 v{vt}, v{vt+1}
    s_mov_b64 exec, -1""")
    STAMP('hg1')
def helperA(steps):
    A=sT+7; B=sT+8; vt=10
    def hook(c):
        if c==CFG['pt']:
            qkv_touch(); OPS.extend(['pt']*wtouch('w1',0))
        if c==CFG['wts']: OPS.extend(['pt']*touch(vTW,sWO,0))
    steps(hook,0)
    for c in (8,9):
        vmwait(c); p("s_barrier"); STAMP('ld%d'%c)
        if c==9: STAMP('hb9')
        hook(c)
    stats_fin(vt,B)
    p("s_barrier\ns_waitcnt lgkmcnt(0)\ns_barrier")
    STAMP('hE1')
    att_ids()
    aLin=6; aTl=7; aF=8; D=40
    p(f"s_mov_b32 s{sK1024}, 1024")
    kv_addr(aLin,aTl,vt)
    flag_addr(aF,vt,0,A,B,sT+17)
    if CFG['hkv']: own_setup(9,vt)
    p(f"v_mov_b32 v{vt+1}, 1")
    sF=sT+9; sK=sT+10; sV=sT+11; sL=sT+16; C=sT+17
    dn=p.lab("g2done")
    p(f"""v_and_b32 v{vt+2}, 127, v{aF}
    v_sub_u32 v{vt+3}, v{aF}, v{vt+2}
    v_lshlrev_b32 v{vt+3}, 3, v{vt+3}
    v_lshl_add_u32 v{vt+2}, v{vt+2}, 5, v{vt+3}
    s_cmp_eq_u32 s{sHF}, 0
    s_cselect_b64 vcc, -1, 0
    s_cselect_b32 s{A}, {FH-2*16384+512-FL}, 0
    s_cselect_b32 s{B}, {KH-KB}, 0
    s_cselect_b32 s{sF}, 14, 11
    v_cndmask_b32 v{aF}, v{aF}, v{vt+2}, vcc
    s_lshl_b32 s{sF}, s{sG}, s{sF}
    s_add_u32 s{sF}, s{sF}, s{A}
    s_add_u32 s{sF}, s{sF}, {FL}
    s_lshl_b32 s{A}, s{HW}, 2
    s_sub_u32 s{A}, s{sT0}, s{A}
    s_sub_u32 s{A}, s{A}, 2
    s_mul_i32 s{sK}, s{A}, 2560
    s_mul_i32 s{sV}, s{A}, 1280
    s_mul_i32 s{A}, s{sPH}, {64*2560}
    s_add_u32 s{sK}, s{sK}, s{A}
    s_add_u32 s{sK}, s{sK}, s{B}
    s_add_u32 s{sK}, s{sK}, {KB}
    s_mul_i32 s{A}, s{sHD}, 81920
    s_add_u32 s{sV}, s{sV}, s{A}
    s_add_u32 s{sV}, s{sV}, s{B}
    s_add_u32 s{sV}, s{sV}, {VB}
    s_mul_i32 s{sL}, s{HW}, {-2*5632}
    s_add_u32 s{sL}, s{sL}, {L_KV+3*5632}""")
    if CFG['hkv']: own_kv(aLin,aTl,9,vt,sHO)
    p(f"s_cmp_eq_u32 s{sT0}, 0\ns_cbranch_scc1 {dn}")
    def both():
        kv_dma(aLin,aTl,sK,sV,sL,A,B)
        p(f"""s_sub_u32 s{sK}, s{sK}, 5120
        s_sub_u32 s{sV}, s{sV}, 2560
        s_sub_u32 s{sL}, s{sL}, 5632""")
        kv_dma(aLin,aTl,sK,sV,sL,A,B)
    if CFG['hsent']:
        fl=p.lab("prevfl"); lp=p.lab("hs")
        p(f"s_cmp_lg_u32 s{sHF}, 0\ns_cbranch_scc1 {fl}")
        if CFG['hgate']=='G1':
            p(f"v_mov_b32 v{vt}, {F_G1}"); lds_wait(vt,vt+5,C,'gt',4,0)
        p(f"""s_sub_u32 s{A}, s{sL}, 5632
        v_add_u32 v{vt+2}, s{A}, v{aLin}
        s_mov_b32 s{C}, {SPIN}""")
        STAMP('hf')
        p(f"{lp}:")
        both()
        p("s_waitcnt vmcnt(0)")
        for i in range(11): p(f"ds_read_b128 {vr(D+4*i,4)}, v{vt+2} offset:{i*1024}")
        p(f"""s_add_u32 s{sK}, s{sK}, 5120
        s_add_u32 s{sV}, s{sV}, 2560
        s_add_u32 s{sL}, s{sL}, 5632
        s_waitcnt lgkmcnt(8)
        v_max3_u32 v{vt+3}, v{D}, v{D+4}, v{D+8}""")
        for i in range(3,11,2): p(f"s_waitcnt lgkmcnt({9-i})\nv_max3_u32 v{vt+3}, v{D+4*i}, v{D+4*i+4}, v{vt+3}")
        p(f"""v_cmp_eq_u32 vcc, -1, v{vt+3}
        s_nop 0
        s_cbranch_vccz {dn}""")
        spin(C,lp,dn,CFG['hrs'])
        p(f"s_branch {lp}\n{fl}:")
    if CFG['hpoll']: flag_poll2(aF,vt+5,sF,C,CFG['hpoll'],CFG['hsl'])
    else: flag_poll(aF,vt+5,sF,C,sleep=CFG['hsl'])
    STAMP('hf')
    both()
    p(f"""s_waitcnt vmcnt(0)
    {dn}:
    v_mov_b32 v{vt}, {F_G2}
    s_mov_b64 exec, 1
    ds_add_u32 v{vt}, v{vt+1}
    s_mov_b64 exec, -1""")
    STAMP('g2')
    if 'w3' in (CFG['wtw'],CFG['mtw']):
        fa=dict(G1=(F_G1,4),WOR=(F_WOR,2),WOD=(F_WOD,2),WO2=(F_WO2,2),DONE=(F_DONE,4))[CFG['mtg']]
        p(f"v_mov_b32 v{vt}, {fa[0]}")
        if CFG['mth']:
            nt_=p.lab("nomt")
            p(f"s_cmp_eq_u32 s{sHF}, 0\ns_cbranch_scc1 {nt_}")
        lds_wait(vt,vt+5,C,'gt',fa[1],1)
        wtouch('w3',0)
        if CFG['mth']:
            p(f"v_subrev_u32 v{vTM}, {20*3072}, v{vTM}")
            if CFG['mth']==2: p("s_waitcnt vmcnt(0)")
            wtouch('w3',0)
            p(f"{nt_}:")
        if CFG['dw3']: touch(vTD,sWD,CFG['mpair'])
        STAMP('mt')
        if CFG['prof'] and any('mt2' in x for x in CFG['st']): p("s_waitcnt vmcnt(0)"); STAMP('mt2')

def tr_addr(a0,t):
    tab=[[0,8],[4,12],[16,36],[20,28],[24,32]]
    pk=[sum((tab[u][rd]//4)<<(4*u) for u in range(5)) for rd in range(2)]
    A=sT+7; B=sT+8
    p(f"""s_mov_b32 s{A}, {pk[0]}
    s_mov_b32 s{B}, {pk[1]}
    v_bfe_u32 v{t}, v0, 2, 2
    v_mul_u32_u24 v{t}, 160, v{t}
    v_and_b32 v{t+1}, 3, v0
    v_mad_u32_u24 v{t}, v{t+1}, 40, v{t}
    v_lshrrev_b32 v{t+1}, 4, v0""")
    for s_ in range(5):
        p(f"""v_add_u32 v{t+2}, {4*s_}, v{t+1}
        v_mul_u32_u24 v{t+4}, 52, v{t+2}
        v_lshrrev_b32 v{t+4}, 8, v{t+4}
        v_mul_u32_u24 v{t+5}, 5, v{t+4}
        v_sub_u32 v{t+2}, v{t+2}, v{t+5}
        v_lshlrev_b32 v{t+2}, 2, v{t+2}
        v_mul_u32_u24 v{t+4}, 10, v{t+4}""")
        for rd in range(2):
            p(f"""v_bfe_u32 v{t+3}, s{(A,B)[rd]}, v{t+2}, 4
            v_add_u32 v{t+3}, v{t+3}, v{t+4}
            v_mul_u32_u24 v{t+3}, 640, v{t+3}
            v_add_u32 v{a0+2*s_+rd}, v{t+3}, v{t}""")
sBLK,sJ=sT+9,sT+10
def wo_ids():
    p(f"""s_lshr_b32 s{sBLK}, s{sSLOT}, 3
    s_lshl_b32 s{sJ}, s{sG}, 2
    s_add_u32 s{sBLK}, s{sBLK}, s{sJ}
    s_and_b32 s{sJ}, s{sSLOT}, 7""")
def clr_ids(A,B,C,D_):
    p(f"""s_lshr_b32 s{C}, s{sSLOT}, 3
    s_lshl_b32 s{B}, s{sG}, 2
    s_add_u32 s{C}, s{C}, s{B}
    s_lshl_b32 s{C}, s{C}, 3
    s_and_b32 s{B}, s{sSLOT}, 7
    s_add_u32 s{D_}, s{C}, s{B}
    s_lshr_b32 s{A}, s{D_}, 1
    s_mul_i32 s{A}, s{A}, 20480
    s_and_b32 s{B}, s{B}, 1
    s_mul_i32 s{B}, s{B}, 5120
    s_add_u32 s{A}, s{A}, s{B}
    s_add_u32 s{A}, s{A}, {OB}
    s_mul_i32 s{B}, s{sHH}, 10240
    s_add_u32 s{C}, s{A}, 10240
    s_add_u32 s{A}, s{A}, s{B}
    s_sub_u32 s{C}, s{C}, s{B}
    s_lshl_b32 s{D_}, s{D_}, 10
    s_add_u32 s{D_}, s{D_}, {PS}""")
def clears(part):
    A=sT+13; B=sT+14; C=sT+15; D_=sT+16; D=12; aL=16
    if part==0:
        clr_ids(A,B,C,D_)
        p(f"v_lshlrev_b32 v{aL}, 4, v0")
        for r in range(4): p(f"v_mov_b32 v{D+r}, -1")
        return
    st4=lambda so,off,sc: f"buffer_store_dwordx4 v[{D}:{D+3}], v{aL}, {S4(sWS)}, s{so} offen offset:{off} {sc}"
    w2=p.lab("clw2"); w3=p.lab("clw3"); dn=p.lab("cldn")
    if CFG['hsent']:
        H_=sT+17; nh=p.lab("clnh")
        p(f"""s_cmp_eq_u32 s{sWAVE}, 3
        s_cbranch_scc1 {nh}
        s_lshl_b32 s{B}, s{sWAVE}, 8
        s_add_u32 s{B}, s{B}, s2
        s_sub_u32 s{H_}, s{B}, 384
        s_cselect_b32 s{H_}, s{B}, s{H_}
        s_cselect_b32 s{H_+1}, 3, 2
        s_cselect_b32 s{H_+2}, 0, {VH+10240-KH-20480}
        s_cselect_b32 s{H_+3}, 1, 0
        s_lshr_b32 s{B}, s{H_}, s{H_+1}
        s_lshl_b32 s{H_+1}, s{B}, s{H_+1}
        s_sub_u32 s{H_}, s{H_}, s{H_+1}
        s_mul_i32 s{H_}, s{H_}, 2560
        s_add_u32 s{H_}, s{H_}, s{H_+2}
        s_mul_i32 s{H_+1}, s{B}, 171
        s_lshr_b32 s{H_+1}, s{H_+1}, 9
        s_add_u32 s{B}, s{B}, s{H_+1}
        s_mul_i32 s{B}, s{B}, 20480
        s_lshl_b32 s{B}, s{B}, s{H_+3}
        s_add_u32 s{H_}, s{H_}, s{B}
        s_add_u32 s{H_}, s{H_}, {KH+20480}""")
        for o in (0,1024,1536): p(st4(H_,o,"sc1"))
        p(f"{nh}:")
    p(f"""s_cmp_ge_u32 s{sWAVE}, 2
    s_cbranch_scc1 {w2}
    s_mul_i32 s{B}, s{sWAVE}, 2560
    s_add_u32 s{A}, s{A}, s{B}""")
    for o in (0,1024,1536): p(st4(A,o,CFG['cpol']))
    p(f"""s_branch {dn}
    {w2}:
    s_cmp_eq_u32 s{sWAVE}, 3
    s_cbranch_scc1 {w3}
    s_mul_i32 s{C}, s2, 2560
    s_add_u32 s{C}, s{C}, {CAND}""")
    for o in (0,1024,1536): p(st4(C,o,"sc1"))
    p(f"""s_branch {dn}
    {w3}:""")
    if CFG['osent']:
        for o in range(4): p(st4(C,o*1024,"sc1"))
        p(f"s_add_u32 s{C}, s{C}, 4096"); p(st4(C,0,"sc1"))
    p(f"""s_cmp_ge_u32 s2, 24
    s_cbranch_scc1 {dn}
    s_lshl_b32 s{C}, s2, 10
    s_add_u32 s{C}, s{C}, {ACT}""")
    p(st4(C,0,"sc1"))
    p(f"{dn}:")
cU=sT+13; vC=84
def hclear_setup(isB):
    A=sT+15; B=sT+16; C=sT+17; D_=sT+18; H_=sT+17
    clr_ids(A,B,C,D_)
    if isB: p(f"""s_mul_i32 s{B}, s2, 2560
        s_add_u32 s{B}, s{B}, {CAND}
        s_add_u32 s{A}, s{C}, 2560
        s_cmp_eq_u32 s{HW}, 2
        s_cselect_b32 s{cU+1}, s{B}, s{A}
        s_mov_b32 s{cU}, s{C}""")
    else: p(f"""s_mul_i32 s{B}, s{HW}, 2560
        s_add_u32 s{cU+1}, s{A}, s{B}""")
    p(f"""s_lshl_b32 s{B}, s{HW}, 8
    s_add_u32 s{B}, s{B}, s2
    s_sub_u32 s{H_}, s{B}, 384
    s_cselect_b32 s{H_}, s{B}, s{H_}
    s_cselect_b32 s{H_+1}, 3, 2
    s_cselect_b32 s{H_+2}, 0, {VH+10240-KH-20480}
    s_cselect_b32 s{H_+3}, 1, 0
    s_lshr_b32 s{B}, s{H_}, s{H_+1}
    s_lshl_b32 s{H_+1}, s{B}, s{H_+1}
    s_sub_u32 s{H_}, s{H_}, s{H_+1}
    s_mul_i32 s{H_}, s{H_}, 2560
    s_add_u32 s{H_}, s{H_}, s{H_+2}
    s_mul_i32 s{H_+1}, s{B}, 171
    s_lshr_b32 s{H_+1}, s{H_+1}, 9
    s_add_u32 s{B}, s{B}, s{H_+1}
    s_mul_i32 s{B}, s{B}, 20480
    s_lshl_b32 s{B}, s{B}, s{H_+3}
    s_add_u32 s{H_}, s{H_}, s{B}
    s_add_u32 s{H_}, s{H_}, {KH+20480}""")
    if isB: p(f"""s_cmp_eq_u32 s{HW}, 2
        s_cselect_b32 s{cU}, s{H_}, s{cU}
        s_cselect_b32 s{cU+3}, 256, s2
        s_lshl_b32 s{cU+2}, s2, 10
        s_cmp_lt_u32 s{cU+3}, 24
        s_cselect_b32 s{H_}, 0, {STX+0x20000-ACT}
        s_add_u32 s{cU+2}, s{cU+2}, s{H_}
        s_add_u32 s{cU+2}, s{cU+2}, {ACT}""")
    else: p(f"""s_mov_b32 s{cU}, s{H_}
        s_getreg_b32 s{A}, hwreg(HW_REG_XCC_ID, 0, 4)
        s_or_b32 s{A}, s{A}, s{sTAG}
        v_mov_b32 v{vC+5}, s{A}
        s_lshl_b32 s{cU+2}, s2, 2
        s_add_u32 s{cU+2}, s{cU+2}, {H1}""")
    p(f"v_lshlrev_b32 v{vC+4}, 4, v0")
    for r in range(4): p(f"v_mov_b32 v{vC+r}, -1")
def hclear(c,isB):
    st=lambda so,off,sc: (p(f"buffer_store_dwordx4 v[{vC}:{vC+3}], v{vC+4}, {S4(sWS)}, s{so} offen offset:{off} {sc}"),OPS.append('clr'))
    ks=[k for k in range(2) if CFG['cst'][k]==c and (CFG['hsent'] or k or isB)]
    pol=lambda k: "sc1" if isB or k==0 else CFG['cpol']
    for k in ks: st(cU+k,0,pol(k)); st(cU+k,1024,pol(k))
    if ks: p(f"s_mov_b64 exec, s[{sLO}:{sLO+1}]")
    for k in ks: st(cU+k,2048,pol(k))
    if ks: p("s_mov_b64 exec, -1")
    if isB and c==CFG['cst'][1]:
        sk=p.lab("noact")
        p(f"s_cmp_lt_u32 s{cU+3}, 24\ns_cselect_b64 exec, -1, 1"); st(cU+2,0,"sc1"); p("s_mov_b64 exec, -1")
    if not isB and c==max(CFG['cst'])+2:
        p(f"s_mov_b64 exec, 1\nbuffer_store_dword v{vC+5}, v{vC+4}, {S4(sWS)}, s{cU+2} offen sc1\ns_mov_b64 exec, -1"); OPS.append('clr')
sSM=sT+11
def sm_setup():
    A=sT+20
    p(f"""s_and_b32 s{A}, s{HW}, 1
    s_lshl_b32 s{sSM}, s{sSLOT}, 1
    s_add_u32 s{A}, s{A}, s{sSM}
    s_mul_i32 s{sSM}, s{A}, {10*3072}
    s_mul_i32 s{A}, s{sG}, 384
    s_add_u32 s{sSM}, s{sSM}, s{A}
    s_lshl_b32 s{A}, s2, 2
    s_add_u32 s{A}, s{A}, s{HW}
    s_mul_i32 s{sSM+1}, s{A}, 800
    s_and_b32 s{sSM+1}, s{sSM+1}, -128""")
def sm_touch(c,isB):
    for opt,n,f in ((CFG['smw'],30,lambda i: f"s_load_dword s100, s[{(sWG,sWU)[isB]}:{(sWG,sWU)[isB]+1}], s{sSM} offset:{(i//3)*3072+(i%3)*128}"),
                    (CFG['smo'],7,lambda i: f"s_load_dword s100, s[{sWO}:{sWO+1}], s{sSM+1} offset:{i*128}")):
        if opt and opt[0]<=c<opt[1]:
            k=opt[1]-opt[0]
            for i in range(n*(c-opt[0])//k,n*(c+1-opt[0])//k): p(f(i))
def code_pf():
    A=sT+18
    p(f"""s_getpc_b64 s[{A}:{A+1}]
    L_pc:
    s_sub_u32 s{A}, s{A}, L_pc-{NAME}_kernel
    s_subb_u32 s{A+1}, s{A+1}, 0
    s_lshl_b32 s{A+2}, s{sSLOT}, 2
    s_add_u32 s{A+2}, s{A+2}, s{sWAVE}
    s_mul_i32 s{A+2}, s{A+2}, 384
    s_min_u32 s{A+2}, s{A+2}, (L_exit-{NAME}_kernel-384)&0xffffff80""")
    for i in range(3): p(f"s_load_dwordx2 s[100:101], s[{A}:{A+1}], s{A+2} offset:{i*128+60}")
def wave_sum(x,t):
    dp="row_mask:0xf bank_mask:0xf"
    for c in ("quad_perm:[1,0,3,2]","quad_perm:[2,3,0,1]","row_half_mirror","row_mirror"):
        p(f"s_nop 1\nv_add_f32_dpp v{x}, v{x}, v{x} {c} {dp}")
    for sw in (16,32):
        p(f"""v_mov_b32 v{t}, v{x}
        s_nop 1
        v_permlane{sw}_swap_b32 v{x}, v{t}
        s_nop 0
        v_add_f32 v{x}, v{x}, v{t}""")
sPF=sT+16
def pf_group(n=5):
    for i in range(n): p(f"s_load_dwordx2 s[100:101], s[{sWO}:{sWO+1}], s{sPF} offset:{i*128+60}")
    p(f"""s_add_u32 s{sPF}, s{sPF}, {n*128}
    s_sub_u32 s{sPF+2}, s{sPF+2}, 1
    s_add_u32 s{sPF+3}, s{sPF+1}, 12800
    s_cmp_eq_u32 s{sPF}, s{sPF+3}
    s_cselect_b32 s{sPF}, s{sPF+1}, s{sPF}""")
def helperB(steps):
    A=sT+7; B=sT+8; vt=2; aD=140; aT=146; aLin=12; D=40; WRr=32
    sO=sT+1; sL=sT+2; sL0=sT+3; sL1=sT+4; C=sT+5
    p("L_helperB:")
    vM=23; x=10; a=sT+16
    clr_ids(a,a+1,a+2,a+3)
    p(f"""s_mul_i32 s{a+1}, s{HW}, 25
    s_sub_u32 s{a+1}, s{a+1}, 50
    v_min_u32 v{x}, 24, v0
    v_add_u32 v{x}, s{a+1}, v{x}
    v_min_u32 v{x}, 48, v{x}
    s_sub_u32 s{a+3}, s{a+3}, {40*128}
    s_and_b32 s{a+1}, s{sSLOT}, 15
    s_lshl_b32 s{a+2}, s{sG}, 4
    s_add_u32 s{a+1}, s{a+1}, s{a+2}
    s_lshl_b32 s{a+1}, s{a+1}, 7
    s_add_u32 s{a+1}, s{a+1}, {FL-48*128}
    v_mov_b32 v{x+1}, s{a}
    v_mov_b32 v{x+2}, s{a+3}
    v_cmp_le_u32 vcc, 40, v{x}
    v_mov_b32 v{x+3}, s{a+1}
    s_mul_i32 s{a+1}, s{sSLOT}, {200*128}
    v_cndmask_b32 v{x+1}, v{x+1}, v{x+2}, vcc
    v_cmp_le_u32 vcc, 48, v{x}
    s_mul_i32 s{a}, s{HW}, {100*128}
    s_add_u32 s{a+1}, s{a+1}, s{a}
    v_cndmask_b32 v{x+1}, v{x+1}, v{x+3}, vcc
    v_lshl_add_u32 v{vM}, v{x}, 7, v{x+1}
    s_sub_u32 s{sPF+1}, s{a+1}, {200*128}
    s_mul_i32 s{sPF}, s{sG}, 5
    s_lshr_b32 s{sPF}, s{sPF}, 1
    s_mul_i32 s{sPF}, s{sPF}, 640
    s_add_u32 s{sPF}, s{sPF}, s{sPF+1}
    s_mov_b32 s{sPF+2}, 20
    v_lshlrev_b32 v{vH+4}, 4, v0
    v_add_u32 v{vH+4}, {H1}, v{vH+4}
    v_mul_u32_u24 v{WRr+5}, 20, v0""")
    aB=130; sK=sT+11; sN=sT+16; sS=sT+17
    def wo_setup():
        va=96
        wo_ids()
        T=[[0,2],[1,3],[4,9],[5,7],[6,8]]
        NIB=[sum((10*((4*s5+g_)//5)+T[(4*s5+g_)%5][rd]-(8*s5+2*g_-2))<<(4*(4*rd+g_)) for rd in range(2) for g_ in range(4)) for s5 in range(5)]
        for i in range(5):
            p(f"""v_add_u32 v{va}, {64*i}, v0
            v_mul_u32_u24 v{va+1}, 6554, v{va}
            v_lshrrev_b32 v{va+1}, 16, v{va+1}
            v_mul_u32_u24 v{va+2}, 10, v{va+1}
            v_sub_u32 v{va}, v{va}, v{va+2}
            v_and_b32 v{aB+5+i}, 28, v{va+1}
            v_and_b32 v{va+2}, 3, v{va+1}
            v_mul_u32_u24 v{va+2}, 1280, v{va+2}
            v_lshl_add_u32 v{va}, v{va}, 4, v{va+2}
            v_bfe_u32 v{va+1}, v{va+1}, 2, 2
            v_mul_u32_u24 v{va+1}, 10240, v{va+1}
            v_add_u32 v{aB+i}, v{va}, v{va+1}""")
            if 0<i<4: p(f"v_subrev_u32 v{aB+i}, {i*1024}, v{aB+i}")
        p(f"""s_lshr_b32 s{A}, s{sSLOT}, 3
        s_mul_i32 s{A}, s{A}, 5
        s_lshr_b32 s{A}, s{A}, 1
        s_add_u32 s{A}, s{A}, s{HW}
        s_sub_u32 s{sK}, s{A}, 2
        v_mov_b32 v{va}, 5120""")
        def woaddr(n):
            p(f"""s_add_u32 s{A}, s{sK}, {2*n}
            s_sub_u32 s{B}, s{A}, 10
            s_cselect_b32 s{A}, s{A}, s{B}
            s_sub_u32 s{B}, s{A}, 5
            s_cselect_b32 s{B}, s{A}, s{B}
            s_mul_i32 s{sS}, s{A}, 40960
            s_sub_u32 s{sS}, s{sS}, 10240
            s_mov_b32 s{sN}, {hex(NIB[0])}""")
            for k in range(1,5): p(f"s_cmp_eq_u32 s{B}, {k}\ns_cselect_b32 s{sN}, {hex(NIB[k])}, s{sN}")
            for i in range(5):
                p(f"""v_bfe_u32 v{va+1}, s{sN}, v{aB+5+i}, 4
                v_mad_u32_u24 v{va+1}, v{va+1}, v{va}, v{aB+i}
                v_add_u32 v{aD+5*n+i}, s{sS}, v{va+1}""")
        for n in range(5): woaddr(n)
    if CFG['wose']==0: wo_setup()
    npf=CFG['npf']
    for _ in range(npf[0]): pf_group()
    def hook(c):
        if c==(100 if CFG['hstep']==CFG['stg'] else CFG['hstep']):
            p(f"buffer_load_dwordx4 v[{vH}:{vH+3}], v{vH+4}, {S4(sWS)}, 0 offen sc1"); OPS.append('h1')
        if c==100:
            p(f"buffer_load_dwordx4 {vr(WRr,4)}, v{WRr+5}, {S4(sWR)}, 0 offen\nbuffer_load_dword v{WRr+4}, v{WRr+5}, {S4(sWR)}, 0 offen offset:16"); OPS.extend(['wr','wr'])
        if c==CFG['pt']:
            qkv_touch()
            OPS.extend(['pt']*wtouch('w1',1))
        if c==CFG['wts']: OPS.extend(['pt']*touch(vTW,sWO,0))
        if c==CFG['pt2']: OPS.extend(['pt']*touch(vM,sWS,CFG['qpair2'],CFG['tpol']))
    steps(hook,1)
    st=dict(n=0)
    def dma(cnt):
        for _ in range(min(cnt,50-st['n'])):
            n=st['n']; i=n%5; k=(n//5)%5
            if n==0 or n==25:
                p(f"""s_xor_b32 s{A}, s{sHH}, {n//25}
                s_mul_i32 s{sO}, s{A}, {320*1280}
                s_mul_i32 s{sL0}, s{A}, 51200
                s_add_u32 s{sL0}, s{sL0}, {L_WO}
                s_mul_i32 s{A}, s{sJ}, 160
                s_add_u32 s{sO}, s{sO}, s{A}""")
            if i==0: p(f"""s_add_u32 s{A}, s{sK}, {2*k}
                s_sub_u32 s{B}, s{A}, 10
                s_cselect_b32 s{A}, s{A}, s{B}
                s_mul_i32 s{sL}, s{A}, 5120
                s_add_u32 s{sL}, s{sL}, s{sL0}
                s_mov_b32 m0, s{sL}
                s_nop 0""")
            if i==4: p(f"s_add_u32 m0, s{sL}, 4096\ns_nop 0")
            p(f"buffer_load_dwordx4 v{aD+5*k+i}, {S4(sWO)}, s{sO} offen offset:{(i&3)*1024} {CFG['wopol']} lds")
            OPS.append('wo%d'%(n//25))
            st['n']+=1
    vmwait(8); p("s_barrier"); hook(8)
    p(f"v_lshlrev_b32 v{aLin}, 4, v0")
    vmwait(9); p("s_barrier"); hook(9)
    stats_fin(96,B)
    vmwait('h1')
    lp=p.lab("hello"); ok=p.lab("hello_ok"); ne=p.lab("noep")
    p(f"""s_mov_b32 s{A}, {SPIN}
    {lp}:
    v_xor_b32 v{vH}, s{sTAG}, v{vH}
    v_xor_b32 v{vH+1}, s{sTAG}, v{vH+1}
    v_xor_b32 v{vH+2}, s{sTAG}, v{vH+2}
    v_xor_b32 v{vH+3}, s{sTAG}, v{vH+3}
    v_or3_b32 v{vt}, v{vH}, v{vH+1}, v{vH+2}
    v_or_b32 v{vt}, v{vt}, v{vH+3}
    v_cmp_lt_u32 vcc, 15, v{vt}
    s_nop 0
    s_cbranch_vccz {ok}""")
    spin(A,lp,ok,4)
    p(f"""buffer_load_dwordx4 v[{vH}:{vH+3}], v{vH+4}, {S4(sWS)}, 0 offen sc1
    s_waitcnt vmcnt(0)
    s_branch {lp}
    {ok}:
    v_lshl_or_b32 v{vH}, v{vH+1}, 4, v{vH}
    v_lshl_or_b32 v{vH+2}, v{vH+3}, 4, v{vH+2}
    v_lshl_or_b32 v{vH}, v{vH+2}, 8, v{vH}
    v_and_b32 v{vt}, 1, v0
    v_readlane_b32 s{A}, v{vH}, 0
    v_readlane_b32 s{B}, v{vH}, 1
    v_cmp_eq_u32 vcc, 0, v{vt}
    v_mov_b32 v{vt+1}, s{A}
    v_mov_b32 v{vt+2}, s{B}
    v_cndmask_b32 v{vt+1}, v{vt+2}, v{vt+1}, vcc
    v_cmp_ne_u32 vcc, v{vt+1}, v{vH}
    v_mov_b32 v{vt}, {L_MODE}
    s_cmp_lg_u64 vcc, 0
    s_cselect_b32 s{sMODE}, 1, {CFG['force_slow']}
    v_mov_b32 v{vt+1}, s{sMODE}
    ds_write_b32 v{vt}, v{vt+1}
    s_barrier
    s_waitcnt lgkmcnt(0)
    s_barrier""")
    vmw=len(OPS)-1-max(i for i,t in enumerate(OPS) if t=='wr')
    STAMP('hE1')
    p(f"""v_mov_b32 v{vt}, 0x3f803f80
    v_mov_b32 v{vt+1}, 0
    s_waitcnt vmcnt({vmw})""")
    for k in range(5): p(f"v_dot2_f32_bf16 v{vt+1}, v{WRr+k}, v{vt}, v{vt+1}")
    p("s_nop 0")
    wave_sum(vt+1,vt+2)
    p(f"v_mov_b32 v{vt}, {L_SWS}\nds_write_b32 v{vt}, v{vt+1}")
    if CFG['wose']==1: wo_setup()
    if not CFG['hsent']: halo_flag(vt,A,B,C)
    if CFG['wose']==2: wo_setup()
    p(f"""s_add_u32 s{A}, s2, s{HW}
    s_cmp_lg_u32 s{A}, 2
    s_cbranch_scc1 {ne}
    s_add_u32 s{A}, s{sEP}, 1
    v_mov_b32 v{vt}, {EPO}
    v_mov_b32 v{vt+1}, s{A}
    s_mov_b64 exec, 1
    buffer_store_dword v{vt+1}, v{vt}, {S4(sWS)}, 0 offen sc1
    s_mov_b64 exec, -1
    {ne}:""")
    if CFG['hkv']:
        att_ids()
        p(f"s_mov_b32 s{sK1024}, 1024")
        kv_addr(aLin,13,vt)
        own_setup(14,vt)
        own_kv(aLin,13,14,vt,sHO)
    p(f"v_mov_b32 v{vt}, {F_G1}")
    if CFG['wburst']:
        p(f"""s_lshl_b32 s{B}, s{sSLOT}, 1
        s_add_u32 s{B}, s{B}, s{HW}
        s_sub_u32 s{B}, s{B}, 2
        s_mul_i32 s{B}, s{B}, 12800
        v_lshl_add_u32 v{vTW}, v0, 7, s{B}
        v_min_u32 v{vTW+1}, 35, v0
        v_lshl_add_u32 v{vTW+1}, v{vTW+1}, 7, s{B}
        v_add_u32 v{vTW+1}, 8192, v{vTW+1}""")
        if CFG['wburst']==2: touch(vTW,sWO,0); touch(vTW+1,sWO,0)
    lds_wait(vt,vt+1,A,'gt',4,1)
    if CFG['wburst']==1: touch(vTW,sWO,0); touch(vTW+1,sWO,0)
    wtouch('w3',1)
    if CFG['wog2']:
        p(f"v_mov_b32 v{vt+2}, {F_G2}")
        lds_wait(vt+2,vt+1,A,'gt',2,1)
    STAMP('wo_s')
    del OPS[:]
    thr=CFG['wothr']; gs=CFG['wogs']; thr1=CFG['wothr1']
    def more(n,dyn=False):
        while n>0 and st['n']<50:
            k=min(gs,n)
            if dyn and thr1<thr and st['n']>=thr1:
                sk=p.lab("wog")
                p(f"""ds_read_b32 v{vt+1}, v{vt} offset:{F_G2-F_G1}
                s_waitcnt lgkmcnt(0)
                v_cmp_gt_u32 vcc, 2, v{vt+1}
                s_nop 0
                s_cbranch_vccz {sk}
                s_waitcnt vmcnt({max(0,thr1-k)})
                {sk}:""")
            if st['n']>=thr: p(f"s_waitcnt vmcnt({max(0,thr-k)})")
            gi=st['n']//gs; a_,b_=CFG['mtr']
            dma(k); n-=k
            if CFG['mtw']=='wo' and a_<=gi<b_:
                l0=60*(gi-a_)//(b_-a_); l1=60*(gi+1-a_)//(b_-a_); msk=((1<<l1)-1)^((1<<l0)-1)
                u=p.lab("tu"); j=p.lab("tj")
                p(f"s_mov_b32 exec_lo, {hex(msk&0xffffffff)}\ns_mov_b32 exec_hi, {hex(msk>>32)}\ns_cmp_eq_u32 s{HW}, 2\ns_cbranch_scc0 {u}")
                touch(vTM,sWG,0); p(f"s_branch {j}\n{u}:"); touch(vTM,sWU,0); p(f"{j}:\ns_mov_b64 exec, -1")
                OPS.append('mt')
    def sig(f):
        p(f"""v_mov_b32 v{vt+2}, {f}
        v_mov_b32 v{vt+3}, 1
        s_mov_b64 exec, 1
        ds_add_u32 v{vt+2}, v{vt+3}
        s_mov_b64 exec, -1""")
    more(25+min(thr,15),True)
    vmwait('wo0')
    sig(F_WOR)
    STAMP('wo_0')
    more(50)
    sig(F_WOD)
    STAMP('wo_1')
    p("s_waitcnt vmcnt(0)")
    sig(F_WO2)
    STAMP('wo')

ACC=64; CS=128; XF=132; WF=148; SEL=164; aX=168; aW=172; aST=174; aSG=178; vT=2
sWR_,sWC,sLC,sTY,sSO,sHALO,sFO,sSO2=range(sT,sT+8)
def gemm_setup():
    t=vT; A=sT+10; B=sT+11
    wave_ids(sWAVE,sWR_,sWC,sLC,sTY)
    p(f"""v_and_b32 v{t}, 31, v0
    s_lshl_b32 s{A}, s{sWR_}, 6
    v_add_u32 v{t+1}, s{A}, v{t}
    v_lshlrev_b32 v{t+1}, 7, v{t+1}
    v_lshrrev_b32 v{t+2}, 5, v0
    v_bfe_u32 v{t+3}, v0, 1, 3
    v_xor_b32 v{t+3}, v{t+3}, v{t+2}
    v_lshl_add_u32 v{aX}, v{t+3}, 4, v{t+1}""")
    for s in range(1,4): p(f"v_xor_b32 v{aX+s}, {32*s}, v{aX}")
    p(f"""v_bfe_u32 v{t+3}, v0, 2, 2
    v_lshl_add_u32 v{t+4}, v{t+2}, 3, v{t+3}
    v_lshlrev_b32 v{t+4}, 8, v{t+4}
    s_lshl_b32 s{A}, s{sWC}, 1
    s_or_b32 s{A}, s{A}, s{sWR_}
    v_xor_b32 v{t+3}, s{A}, v{t+3}
    v_lshl_add_u32 v{t+4}, v{t+3}, 6, v{t+4}
    v_bfe_u32 v{t+3}, v0, 4, 1
    v_lshl_add_u32 v{t+4}, v{t+3}, 5, v{t+4}
    v_and_b32 v{t+5}, 3, v0
    v_lshl_add_u32 v{t+4}, v{t+5}, 3, v{t+4}
    v_add_u32 v{aW}, 16384, v{t+4}
    v_xor_b32 v{aW+1}, 64, v{aW}
    v_bfe_u32 v{t+4}, v0, 2, 1
    v_cmp_eq_u32 vcc, v{t+3}, v{t+4}
    v_mov_b32 v{t+5}, 0x3f803f80
    s_nop 0
    v_cndmask_b32 v{SEL}, 0, v{t+5}, vcc
    v_cndmask_b32 v{SEL+1}, 0, v{t+5}, vcc
    v_cndmask_b32 v{SEL+2}, 0, v{t+5}, vcc
    v_cndmask_b32 v{SEL+3}, 0, v{t+5}, vcc""")
    for r in list(range(ACC,ACC+64))+list(range(CS,CS+4)): p(f"v_mov_b32 v{r}, 0")
    store_addr(sWR_,sLC,sTY,sSO,sSO2,sHALO,sFO,aST,sT+10,sT+11)
    p(f"s_mov_b32 s{sHAL2}, s{sHALO}")
sHAL2=sDBG
def wave_ids(wave,wr,wc,lc,ty):
    p(f"""s_and_b32 s{wr}, s{wave}, 1
    s_lshr_b32 s{wc}, s{wave}, 1
    s_lshl_b32 s{lc}, s{sCT}, 1
    s_add_u32 s{lc}, s{lc}, s{wc}
    s_mul_i32 s{ty}, s{lc}, 52
    s_lshr_b32 s{ty}, s{ty}, 8""")
def store_addr(wr,lc,ty,so,so2,halo,fo,ast,A,B,t=2):
    p(f"""v_and_b32 v{t}, 31, v0
    v_lshrrev_b32 v{t+2}, 5, v0
    s_mul_i32 s{A}, s{ty}, 5
    s_sub_u32 s{A}, s{lc}, s{A}
    s_mul_i32 s{B}, s{sHH}, 5
    s_add_u32 s{A}, s{A}, s{B}
    s_lshl_b32 s{B}, s{sRQ}, 2
    s_add_u32 s{B}, s{B}, s{sRB}
    s_lshl_b32 s{B}, s{B}, 1
    s_add_u32 s{B}, s{B}, s{wr}
    s_lshl_b32 s{B}, s{B}, 1""")
    isv=p.lab("isv"); jn=p.lab("stj")
    p(f"""s_cmp_ge_u32 s{ty}, 2
    s_cbranch_scc1 {isv}
    s_mul_i32 s{so}, s{B}, 2560
    s_mul_i32 s{B}, s{ty}, {KB}
    s_add_u32 s{so}, s{so}, s{B}
    s_add_u32 s{so2}, s{so}, 2560
    s_lshl_b32 s{A}, s{A}, 3""")
    for cb in range(2):
        for ip in range(2):
            p(f"""s_xor_b32 s{B}, s{wr}, {cb}
            s_lshl_b32 s{B}, s{B}, 2
            s_add_u32 s{B}, s{B}, s{A}
            s_add_u32 s{B}, s{B}, {2*ip}
            v_add_u32 v{t+3}, s{B}, v{t+2}
            v_mul_u32_u24 v{t+4}, 205, v{t+3}
            v_lshrrev_b32 v{t+4}, 10, v{t+4}
            v_mul_u32_u24 v{t+5}, 5, v{t+4}
            v_sub_u32 v{t+5}, v{t+3}, v{t+5}
            v_mul_u32_u24 v{t+4}, {64*2560}, v{t+4}
            v_lshl_add_u32 v{t+4}, v{t+5}, 9, v{t+4}
            v_lshl_add_u32 v{ast+2*cb+ip}, v{t}, 4, v{t+4}""")
    p(f"""s_branch {jn}
    {isv}:
    s_mul_i32 s{so}, s{B}, 1280
    s_add_u32 s{so}, s{so}, {VB}
    s_add_u32 s{so2}, s{so}, 1280
    s_lshl_b32 s{A}, s{A}, 6""")
    for cb in range(2):
        p(f"""s_xor_b32 s{B}, s{wr}, {cb}
        s_lshl_b32 s{B}, s{B}, 5
        s_add_u32 s{B}, s{B}, s{A}
        v_add_u32 v{t+3}, s{B}, v{t}
        v_mul_u32_u24 v{t+4}, 3277, v{t+3}
        v_lshrrev_b32 v{t+4}, 16, v{t+4}
        v_mul_u32_u24 v{t+5}, 20, v{t+4}
        v_sub_u32 v{t+5}, v{t+3}, v{t+5}
        v_mul_u32_u24 v{t+4}, 81920, v{t+4}
        v_lshl_add_u32 v{t+4}, v{t+5}, 4, v{t+4}
        v_mul_u32_u24 v{t+5}, 320, v{t+2}
        v_add_u32 v{ast+2*cb}, v{t+4}, v{t+5}
        v_add_u32 v{ast+2*cb+1}, 640, v{ast+2*cb}""")
    p(f"""{jn}:
    s_sub_u32 s{A}, s{ty}, 1
    s_cmp_lt_u32 s{A}, 2
    s_cselect_b32 s{halo}, 1, 0
    s_cmp_ge_u32 s{sRB}, 2
    s_cselect_b32 s{halo}, s{halo}, 0
    s_cmp_lt_u32 s{sRQ}, 3
    s_cselect_b32 s{halo}, s{halo}, 0
    s_lshl_b32 s{fo}, s{sG}, 4
    s_add_u32 s{fo}, s{fo}, s{lc}
    s_lshl_b32 s{fo}, s{fo}, 5
    s_lshl_b32 s{A}, s{sRB}, 1
    s_add_u32 s{A}, s{A}, s{wr}
    s_add_u32 s{fo}, s{fo}, s{A}
    s_lshl_b32 s{fo}, s{fo}, 2
    s_add_u32 s{fo}, s{fo}, {FL}""")
def xf(buf,xb): return XF+8*buf+4*xb
def wf(buf,cb): return WF+8*buf+4*cb
def reads(kind,buf,par,s):
    L=[]
    for xb in range(2): L.append(f"ds_read_b128 {vr(xf(buf,xb),4)}, v{aX+s} offset:{par*32768+xb*4096}")
    if kind!='S':
        for cb in range(2):
            for rd in range(2): L.append(f"ds_read_b64_tr_b16 {vr(wf(buf,cb)+2*rd,2)}, v{aW+cb} offset:{par*32768+s*4096+rd*1024}")
        L=[L[2],L[3],L[0],L[1],L[4],L[5]]
    return L
def mfmas(kind,buf):
    L=[]
    if kind=='S':
        for xb in range(2):
            x=xf(buf,xb)
            L.append(f"v_mfma_f32_16x16x32_bf16 {vr(ACC+4*xb,4)}, {vr(SEL,4)}, {vr(x,4)}, {vr(ACC+4*xb,4)}")
            L.append(f"v_mfma_f32_4x4x4_16b_bf16 {vr(ACC+8+8*xb,4)}, {vr(x,2)}, {vr(x,2)}, {vr(ACC+8+8*xb,4)}")
            L.append(f"v_mfma_f32_4x4x4_16b_bf16 {vr(ACC+12+8*xb,4)}, {vr(x+2,2)}, {vr(x+2,2)}, {vr(ACC+12+8*xb,4)}")
        return L
    for cb in range(2):
        for xb in range(2):
            a=ACC+16*(2*xb+cb); X=vr(xf(buf,xb),4); W=vr(wf(buf,cb),4)
            L.append(f"v_mfma_f32_32x32x16_bf16 {vr(a,16)}, {W if kind=='T' else X}, {X if kind=='T' else W}, {vr(a,16)}")
    L.insert(2,f"v_mfma_f32_16x16x32_bf16 {vr(CS,4)}, {vr(SEL,4)}, {vr(wf(buf,0),4)}, {vr(CS,4)}")
    return L
def gemm_loop(kind):
    CNT=sT+10
    lp=p.lab("g"+kind)
    STAMP('rdy')
    p("s_barrier")
    STAMP('b0')
    for r in reads(kind,0,0,0): p(r)
    if CFG['clr']==1 and not CFG['hclr']: clears(1)
    cl_=p.lab("clr"); cr_=p.lab("clrr")
    if CFG['clr']>1:
        n0=len(p.L); p(f"{cl_}:"); clears(1); p(f"s_branch {cr_}")
        COLD.append("\n".join(p.L[n0:])); del p.L[n0:]
    hl=p.lab("hello"); hr=p.lab("hellor")
    if not CFG['hclr']:
        COLD.append(f"""{hl}:
        s_getreg_b32 s{CNT+1}, hwreg(HW_REG_XCC_ID, 0, 4)
        s_or_b32 s{CNT+1}, s{CNT+1}, s{sTAG}
        v_mov_b32 v{vT}, s{CNT+1}
        s_lshl_b32 s{CNT+1}, s2, 2
        s_add_u32 s{CNT+1}, s{CNT+1}, {H1}
        v_mov_b32 v{vT+1}, 0
        s_mov_b64 exec, 1
        buffer_store_dword v{vT}, v{vT+1}, {S4(sWS)}, s{CNT+1} offen sc1
        s_mov_b64 exec, -1
        s_branch {hr}""")
        p(f"s_lshl_b32 s{CNT+2}, s{sWAVE}, 3\ns_add_u32 s{CNT+2}, s{CNT+2}, {5-CFG['clr']}")
    p(f"s_mov_b32 s{CNT}, 5\n{lp}:")
    if CFG['clr']>1: p(f"s_cmp_eq_u32 s{CNT}, {6-CFG['clr']}\ns_cbranch_scc1 {cl_}\n{cr_}:")
    for k in range(1,5):
        if (CFG['cal'] and CFG['cal'][0]=='it%d'%(2*k)) or (CFG['amp'] and 'it%d'%(2*k) in CFG['amp'][:2]) or (CFG['prof'] and any('it%d'%(2*k) in n.split('|') for n in CFG['st'])):
            sk=p.lab("its"); p(f"s_cmp_lg_u32 s{CNT}, {5-k}\ns_cbranch_scc1 {sk}"); STAMP('it%d'%(2*k)); p(f"{sk}:")
    for par in range(2):
        for s in range(4):
            buf=s&1
            last=(s==3)
            M=mfmas(kind,buf)
            if CFG['nomfma']: M=M[:1]
            if last and par==1:
                pre=[f"v_xor_b32 v{aX+i}, 0x10000, v{aX+i}" for i in range(4)]+[f"v_xor_b32 v{aW+i}, 0x10000, v{aW+i}" for i in range(2)]
            else: pre=[]
            R=reads(kind,buf^1,(par^1) if last else par,(s+1)&3)
            p("s_waitcnt lgkmcnt(0)")
            if last:
                p(M.pop(0))
                for x in pre: p(x)
                if par==0 and not CFG['hclr']:
                    w1=p.lab("cw"); w2=p.lab("cwr")
                    p(f"s_cmp_eq_u32 s{CNT}, {5-CFG['clr']}\ns_cbranch_scc1 {w1}\n{w2}:")
                    COLD.append(f"{w1}:\ns_waitcnt vmcnt(0)\ns_branch {w2}")
                p("s_barrier")
                if par==0 and not CFG['hclr']: p(f"s_cmp_eq_u32 s{CNT}, s{CNT+2}\ns_cbranch_scc1 {hl}\n{hr}:")
            k=0
            while M or R:
                if R: p(R.pop(0))
                if R: p(R.pop(0))
                if M: p(M.pop(0))
    p(f"""s_sub_u32 s{CNT}, s{CNT}, 1
    s_cmp_lg_u32 s{CNT}, 0
    s_cbranch_scc1 {lp}""")
    STAMP('gend')
def bf16r(dst,src):
    p(f"v_cvt_pk_bf16_f32 v{dst}, v{src}, v{src}\nv_and_b32 v{dst}, 0xffff0000, v{dst}")
def mode_read():
    p(f"""v_mov_b32 v{vT+8}, {L_MODE}
    ds_read_b32 v{vT+9}, v{vT+8}""")
def mode_get():
    p(f"v_readfirstlane_b32 s{sMODE}, v{vT+9}")
def dual(stores,pol=''):
    sl=p.lab("slow"); jn=p.lab("jn")
    p(f"s_cmp_lg_u32 s{sMODE}, 0\ns_cbranch_scc1 {sl}")
    for s in stores: p(s+" "+pol)
    p(f"s_branch {jn}\n{sl}:")
    for s in stores: p(s+" sc1")
    p(f"{jn}:")
def idle_gemm():
    vt=10; aI=20; acc=28; one=32; D=64; A=sT+10
    p(f"""s_lshl_b32 s{A}, s{sWR_}, 13
    v_bfe_u32 v{vt}, v0, 1, 3
    v_lshlrev_b32 v{vt}, 4, v{vt}
    v_lshl_add_u32 v{vt}, v0, 7, v{vt}
    v_add_u32 v{aI}, s{A}, v{vt}
    v_mov_b32 v{one}, 0x3f803f80
    s_lshl_b32 s{A}, s{sG}, 2
    s_add_u32 s{A}, s{A}, s{sRB}
    s_lshl_b32 s{A}, s{A}, 14
    s_lshl_b32 s{A+1}, s{sWR_}, 10
    s_add_u32 s{A}, s{A}, s{A+1}
    s_add_u32 s{A}, s{A}, {STP+7*2048}
    v_lshlrev_b32 v{vt}, 4, v0""")
    for i in range(1,8): p(f"v_xor_b32 v{aI+i}, {16*i}, v{aI}")
    for i in range(4): p(f"v_mov_b32 v{acc+i}, 0")
    k=CFG['clr']
    for c in range(11):
        if c==1+2*k and not CFG['hclr']: p(f"s_waitcnt vmcnt({1 if k==1 else 0})")
        p("s_barrier")
        if k and c==2*k-2 and c!=2: clears(1)
        if c<3:
            if c==2:
                for i in range(8): p(f"v_add_u32 v{aI+i}, 0x10000, v{aI+i}")
            for i in range(8): p(f"ds_read_b128 {vr(D+4*i,4)}, v{aI+i} offset:{(c&1)*32768}")
            for i in range(8):
                p(f"s_waitcnt lgkmcnt({7-i})")
                for j in range(4):
                    r=D+4*i+j
                    p(f"v_dot2_f32_bf16 v{acc+(j&1)}, v{r}, v{one}, v{acc+(j&1)}\nv_dot2_f32_bf16 v{acc+2+(j&1)}, v{r}, v{r}, v{acc+2+(j&1)}")
        if c==2: p(f"""s_nop 1
            v_add_f32 v{acc}, v{acc}, v{acc+1}
            v_add_f32 v{acc+1}, v{acc+2}, v{acc+3}
            v_mov_b32 v{acc+2}, s{sTAG}
            buffer_store_dwordx4 {vr(acc,4)}, v{vt}, {S4(sWS)}, s{A} offen sc1""")
        if k==2 and c==2: clears(1)
    p("s_barrier")
    mode_read()
    p("s_waitcnt lgkmcnt(0)")
    mode_get()
def gemm_epi(kind):
    t=vT; A=sT+10
    AU=20
    WA=24
    XA=28
    RS=32
    p(f"""v_and_b32 v{t}, 31, v0
    s_lshl_b32 s{A}, s{sWC}, 1
    s_or_b32 s{A}, s{A}, s{sWR_}
    s_lshl_b32 s{A}, s{A}, 7
    s_add_u32 s{A}, s{A}, {L_CS}
    v_lshl_add_u32 v{t+1}, v{t}, 2, s{A}
    s_lshl_b32 s{A}, s{sWR_}, 9
    s_add_u32 s{A}, s{A}, {L_SA}
    v_lshl_add_u32 v{t+3}, v{t}, 3, s{A}
    ds_write_b32 v{t+1}, v{CS}
    v_xor_b32 v{t+2}, 128, v{t+1}
    v_mov_b32 v{WA+1}, 0
    v_mov_b32 v{WA+3}, 0
    v_mov_b32 v{XA+1}, 0
    v_mov_b32 v{XA+3}, 0""")
    if kind=='V':
        p(f"""v_lshrrev_b32 v{t+4}, 5, v0
        s_lshl_b32 s{A}, s{sWR_}, 8
        s_add_u32 s{A}, s{A}, {L_SR}
        v_lshl_add_u32 v{t+4}, v{t+4}, 4, s{A}""")
    p("s_waitcnt lgkmcnt(0)\ns_barrier")
    STAMP('E1',1)
    p(f"""ds_read_b32 v{CS+1}, v{t+2}
    ds_read_b64 v[{AU}:{AU+1}], v{t+3}
    ds_read_b64 v[{AU+2}:{AU+3}], v{t+3} offset:256""")
    mode_read()
    if kind=='V':
        for xb in range(2):
            for i in range(4): p(f"ds_read_b128 {vr(RS+16*xb+4*i,4)}, v{t+4} offset:{xb*128+i*32}")
    def split(cb):
        c=CS+cb
        p(f"""v_cndmask_b32 v{c}, 0, v{c}, s[{sLO}:{sLO+1}]
        v_cvt_pk_bf16_f32 v{t+5}, v{c}, v{c}
        v_and_b32 v{t+5}, 0xffff0000, v{t+5}
        v_sub_f32 v{t+6}, v{c}, v{t+5}
        v_cvt_pk_bf16_f32 v{WA+2*cb}, v{t+5}, v{t+6}""")
    split(0)
    p(f"s_waitcnt lgkmcnt({8 if kind=='V' else 0})")
    split(1)
    p(f"v_mov_b32 v{XA}, v{AU}\nv_mov_b32 v{XA+2}, v{AU+2}")
    mode_get()
    if kind=='T':
        p(f"""s_cmp_eq_u32 s{sTY}, 0
        s_cselect_b32 s{A}, {hex(f2u(20**-0.5*math.log2(math.e)))}, 1.0
        v_mul_f32 v{AU+1}, s{A}, v{AU+1}
        v_mul_f32 v{AU+3}, s{A}, v{AU+3}""")
    else: p("s_nop 0")
    for xb in range(2):
        for cb in range(2):
            a=ACC+16*(2*xb+cb); X=vr(XA+2*xb,2); W=vr(WA+2*cb,2)
            p(f"v_mfma_f32_32x32x8_bf16 {vr(a,16)}, {W if kind=='T' else X}, {X if kind=='T' else W}, {vr(a,16)}")
    p("s_waitcnt lgkmcnt(0)\ns_nop 7")
    allst=[]
    for xb in range(2):
        st=[]
        for cb in range(2):
            a=ACC+16*(2*xb+cb)
            for k in range(8):
                if kind=='T': p(f"v_pk_mul_f32 {vr(a+2*k,2)}, {vr(a+2*k,2)}, {vr(AU+2*xb,2)} op_sel:[0,1] op_sel_hi:[1,1]")
                else: p(f"v_pk_mul_f32 {vr(a+2*k,2)}, {vr(a+2*k,2)}, {vr(RS+16*xb+2*k,2)}")
            for k in range(8): p(f"v_cvt_pk_bf16_f32 v{a+k}, v{a+2*k}, v{a+2*k+1}")
            if kind=='T':
                p(f"""v_permlane32_swap_b32 v{a}, v{a+2}
                v_permlane32_swap_b32 v{a+1}, v{a+3}
                v_permlane32_swap_b32 v{a+4}, v{a+6}
                v_permlane32_swap_b32 v{a+5}, v{a+7}""")
            for h in range(2):
                st.append(f"buffer_store_dwordx4 {vr(a+4*h,4)}, v{aST+2*cb+h}, {S4(sWS)}, s{sSO2 if xb else sSO} offen")
                allst.append(a+4*h)
        dual(st,CFG['qpol'])
    STAMP('st')
    nh=p.lab("nohalo"); jh=p.lab("jhalo")
    hst=[f"buffer_store_dwordx4 {vr(allst[i],4)}, v{aST+(i&3)}, {S4(sWS)}, s{A+(i>>2)} offen sc1" for i in range(8)]
    p(f"""v_mov_b32 v{t}, 0
    v_mov_b32 v{t+1}, s{sTAG}
    s_add_u32 s{A}, s{sSO}, {KH-KB}
    s_add_u32 s{A+1}, s{sSO2}, {KH-KB}""")
    if CFG['hearly']:
        p(f"s_cmp_eq_u32 s{sHALO}, 0\ns_cbranch_scc1 {nh}")
        for x in hst: p(x)
        p(f"s_waitcnt vmcnt(8)\ns_branch {jh}\n{nh}:\ns_waitcnt vmcnt(0)\n{jh}:")
    else: p("s_waitcnt vmcnt(0)")
    p("s_mov_b64 exec, 1")
    dual([f"buffer_store_dword v{t+1}, v{t}, {S4(sWS)}, s{sFO} offen"])
    p(f"s_mov_b64 exec, -1")
    if not CFG['hearly']:
        p(f"s_cmp_eq_u32 s{sHALO}, 0\ns_cbranch_scc1 {nh}")
        for x in hst: p(x)
        p(f"{nh}:")
    STAMP('fl')
import struct
def f2u(x): return struct.unpack("<I",struct.pack("<f",x))[0]

aLin,aTl,aKm,aKt,aV,aFl,aO,aQ0,aQ1=246,247,248,249,250,251,252,253,254
QM=[28,34]; QT=[32,38]; PP=40
KM=[48,62]; KT=[52,66]; VV=[[54,58],[68,72]]
SS=[80,96]; OO=[112,128]; CD=200; CF=230
cVM=8; sQ=[10,11]; sOm=[12,13]; sOt=[14,15]; cXO,cJ,cF,cK,cV,cL,cHO,cT0,cHX=range(16,25); sOSC=sT+15; sFB=sT+16; aWR=225
NINF="0xff800000"
def att_setup():
    t=vT; A=sT+7; B=sT+8; C=sT+17; sF=cF
    wo_pre1()
    att_ids()
    p(f"v_mov_b32 v{aCLS}, 0x207")
    if CFG['hkv']: p(f"v_lshlrev_b32 v{aLin}, 4, v0\nv_mov_b32 v{aFl}, {F_G1}")
    else:
        flag_addr(aFl,t,1,A,B,C)
        p(f"""s_lshl_b32 s{sF}, s{sG}, 11
        s_lshl_b32 s{A}, s{sHF}, 4
        s_add_u32 s{sF}, s{sF}, s{A}
        s_add_u32 s{sF}, s{sF}, {FL}
        s_mov_b32 s{sK1024}, 1024""")
        kv_addr(aLin,aTl,t)
    p(f"""v_add_u32 v{aKm}, {L_KV}, v{aLin}
    v_and_b32 v{t}, 31, v0
    v_lshrrev_b32 v{t+1}, 5, v0
    v_xor_b32 v{t+2}, s{sHO}, v{t+1}
    v_lshlrev_b32 v{t+2}, 3, v{t+2}
    v_lshl_add_u32 v{t+2}, v{t}, 4, v{t+2}
    v_add_u32 v{aKt}, {L_KV+2048}, v{t+2}
    v_mul_u32_u24 v{t+2}, 320, v{t+1}
    v_lshl_add_u32 v{t+2}, v{t}, 4, v{t+2}
    v_add_u32 v{aV}, {L_KV+3072}, v{t+2}
    v_lshlrev_b32 v{t+2}, 2, v{t+1}
    v_sub_u32 v{t+2}, v{t}, v{t+2}
    v_mov_b32 v{t+3}, {NINF}""")
    for i in range(16):
        m=C+1+2*(i%2)+((C+1)%2)
        ri=8*(i>>2)+(i&3)
        p(f"v_cmp_le_i32 s[{m}:{m+1}], {ri}, v{t+2}")
        if i>0:
            m2=C+1+2*((i-1)%2)+((C+1)%2)
            if i==1: p("s_nop 0")
            p(f"v_cndmask_b32 v{CD+i-1}, v{t+3}, 0, s[{m2}:{m2+1}]\nv_cndmask_b32 v{CF+i-1}, 0, v{t+3}, s[{m2}:{m2+1}]")
    p(f"""s_nop 0
    v_cndmask_b32 v{CD+15}, v{t+3}, 0, s[{m}:{m+1}]
    v_cndmask_b32 v{CF+15}, 0, v{t+3}, s[{m}:{m+1}]
    v_cmp_eq_u32 s[{m}:{m+1}], 20, v{t}
    v_cmp_eq_u32 vcc, 24, v{t}
    s_mov_b32 s{cHO}, s{sHO}
    s_or_b64 s[{cVM}:{cVM+1}], vcc, s[{m}:{m+1}]""")
    p(f"""v_bfe_u32 v{t+2}, v0, 4, 1
    v_mul_u32_u24 v{t+2}, 20480, v{t+2}
    v_lshl_add_u32 v{t+2}, v{t+1}, 8, v{t+2}
    v_and_b32 v{t+3}, 15, v0
    v_lshl_add_u32 v{aO}, v{t+3}, 4, v{t+2}
    s_xor_b32 s{cHX}, s{sHF}, s{sHH}
    s_mov_b32 s{cT0}, s{sT0}
    s_lshl_b32 s{A}, s{sWAVE}, 1
    s_sub_u32 s{A}, 7, s{A}
    v_mul_u32_u24 v{t+2}, s{A}, v0
    s_add_u32 s{A}, s{sT0}, s{sWAVE}
    v_add_lshl_u32 v{aFO}, v{t+2}, s{A}, 12
    s_lshl_b32 s{A}, s{sHD}, 7
    s_add_u32 s{A}, s{A}, {FO}
    v_add_u32 v{aFO}, s{A}, v{aFO}""")
    for q in range(2):
        if q==0: p(f"s_add_u32 s{A}, s{sT0}, 7\ns_sub_u32 s{A}, s{A}, s{sWAVE}")
        else: p(f"s_add_u32 s{A}, s{sT0}, s{sWAVE}")
        p(f"""s_mul_i32 s{sQ[q]}, s{A}, 2560
        s_mul_i32 s{B}, s{sPH}, {64*2560}
        s_add_u32 s{sQ[q]}, s{sQ[q]}, s{B}
        s_mul_i32 s{A}, s{A}, 40960
        s_mul_i32 s{B}, s{sPH}, 1280
        s_add_u32 s{A}, s{A}, s{B}
        s_add_u32 s{A}, s{A}, {OB}
        s_mul_i32 s{B}, s{sHO}, 768
        s_add_u32 s{sOm[q]}, s{A}, s{B}
        s_lshl_b32 s{B}, s{sHO}, 3
        s_add_u32 s{sOt[q]}, s{A}, s{B}""")
    sK=cK; sV=cV; sL=cL
    if not CFG['hkv']: p(f"""s_lshl_b32 s{A}, s{sWAVE}, 1
    s_add_u32 s{A}, s{A}, s{sT0}
    s_mul_i32 s{sK}, s{A}, 2560
    s_mul_i32 s{sV}, s{A}, 1280
    s_mul_i32 s{A}, s{sPH}, {64*2560}
    s_add_u32 s{sK}, s{sK}, s{A}
    s_add_u32 s{sK}, s{sK}, {KB}
    s_mul_i32 s{A}, s{sHD}, 81920
    s_add_u32 s{sV}, s{sV}, s{A}
    s_add_u32 s{sV}, s{sV}, {VB}
    s_mul_i32 s{sL}, s{sWAVE}, 5632
    s_add_u32 s{sL}, s{sL}, {L_KV+4*5632}""")
    p(f"""s_mul_i32 s{A}, s{sHO}, 1536
    v_add_u32 v{aQ0}, s{A}, v{aLin}
    s_lshl_b32 s{A}, s{sHO}, 3
    v_add_u32 v{aQ1}, s{A}, v{aLin}""")
def att_go():
    t=vT; A=sT+7; B=sT+8; C=sT+17
    nh=p.lab("nohs"); lp=p.lab("fp"); ok=p.lab("fpok"); md=p.lab("fpm")
    ld=f"buffer_load_dword v{t+10}, v{aFl}, {S4(sWS)}, s{cF} offen sc1"
    if not CFG['hkv']: p(ld)
    p(f"""v_mov_b32 v{t+4}, 0x3f803f80
    s_or_b32 s{sOSC}, s{cHX}, s{sMODE}
    s_mov_b32 s{sFB}, 0
    s_mul_i32 s{A}, s{sMODE}, {OB2-OB}
    v_add_u32 v{aO}, s{A}, v{aO}""")
    for b_ in range(2):
        for mm in range(2):
            for r in range(4): p(f"v_cndmask_b32 v{VV[b_][mm]+r}, 0, v{t+4}, s[{cVM}:{cVM+1}]")
    for q in range(2): p(f"v_mov_b32 v{QT[q]}, 0\nv_mov_b32 v{QT[q]+1}, 0")
    if CFG['osent']: wo_scal()
    assert CFG['hsent'] or not CFG['hkv']
    if CFG['hkv']:
        p(f"v_mov_b32 v{t+4}, {F_FS}"); lds_wait(t+4,t+5,C,'gt',1,0)
    else:
        p(f"""s_lshr_b32 s{A}, s{sWAVE}, 1
        s_lshl_b32 s{A}, s{A}, 2
        s_add_u32 s{A}, s{A}, {F_STG}
        v_mov_b32 v{t+4}, s{A}
        v_mov_b32 v{t+5}, 1
        s_mov_b32 s{C}, {SPIN}
        s_cmp_eq_u32 s{sHAL2}, 0
        s_waitcnt vmcnt(0)
        s_cbranch_scc1 {nh}
        s_mov_b64 exec, 1
        ds_add_u32 v{t+4}, v{t+5}
        s_mov_b64 exec, -1
        {nh}:""")
        STAMP('hack')
        p(f"""s_branch {md}
        {lp}:
        {ld}
        s_waitcnt vmcnt(0)
        {md}:
        v_cmp_ne_u32 vcc, s{sTAG}, v{t+10}
        s_nop 0
        s_cbranch_vccz {ok}""")
        spin(C,lp,ok)
        p(f"s_branch {lp}\n{ok}:")
    STAMP('fseen')
    if not CFG['hkv']: kv_dma(aLin,aTl,cK,cV,cL,A,B,cHO)
    for q in range(2): p(f"buffer_load_dwordx4 {vr(QM[q],4)}, v{aQ0}, {S4(sWS)}, s{sQ[q]} offen sc1")
    p(f"s_mov_b64 exec, s[{sLO}:{sLO+1}]")
    for q in range(2): p(f"buffer_load_dwordx2 {vr(QT[q],2)}, v{aQ1}, {S4(sWS)}, s{sQ[q]} offen offset:1024 sc1")
    if CFG['hkv']: p("s_mov_b64 exec, -1")
    else: p(f"""s_mov_b64 exec, 1
    v_mov_b32 v{t}, {F_G1}
    v_mov_b32 v{t+1}, 1
    s_waitcnt vmcnt(4)
    ds_add_u32 v{t}, v{t+1}
    s_mov_b64 exec, -1
    v_mov_b32 v{aFl}, {F_G1}""")
    if CFG['hkv']: lds_wait(aFl,t+5,C,'gt',4,0)
    for o,n in ((0,4),(4,4),(8,2)): p(f"buffer_load_dwordx{n} {vr(XR+o,n)}, v{aX2}, {S4(sX)}, s{cXO} offen offset:{4*o}")
    for o,n in ((0,4),(4,4),(8,2)): p(f"buffer_load_dwordx{n} {vr(WR_+o,n)}, v{aWR}, {S4(sWR)}, s{cJ} offen offset:{4*o}")
    if not CFG['hkv']: lds_wait(aFl,t+5,C,'gt',4,0)
    p(f"s_waitcnt vmcnt(6)")
    STAMP('kv')
    p(f"""s_cmp_eq_u32 s{sWAVE}, 1
    s_cbranch_scc1 L_av1
    s_cmp_eq_u32 s{sWAVE}, 2
    s_cbranch_scc1 L_av2
    s_cmp_eq_u32 s{sWAVE}, 3
    s_cbranch_scc1 L_av3""")
def kreads(n,b_):
    o=(n>>1)*5632
    return [f"ds_read_b128 {vr(KM[b_],4)}, v{aKm} offset:{o+(n&1)*1024}", f"ds_read_b64 {vr(KT[b_],2)}, v{aKt} offset:{o+(n&1)*512}"]
def vreads(n,b_):
    o=(n>>1)*5632+(n&1)*1280
    return [f"s_mov_b64 exec, s[{sLO+2}:{sLO+3}]", f"ds_read_b128 {vr(VV[b_][0],4)}, v{aV} offset:{o}", f"ds_read_b128 {vr(VV[b_][1],4)}, v{aV} offset:{o+640}", "s_mov_b64 exec, -1"]
def att_variant(w):
    U=[]
    for n in range(15-w,8+w,-1): U.append((0,n))
    for n in range(8+w,6-w,-1): U+= [(0,n),(1,n)]
    for n in range(6-w,w-1,-1): U.append((1,n))
    assert len(U)==18
    diag=[15-w,8+w]
    tiles=[]; tau=[]
    for q,n in U:
        if not tiles or tiles[-1]!=n: tiles.append(n)
        tau.append(len(tiles)-1)
    first=[tau.index(i) for i in range(len(tiles))]
    started=[0,0]
    def QK(u):
        q,n=U[u]; b_=tau[u]&1; S=vr(SS[u&1],16)
        c=vr(CD,16) if n==diag[q] else (vr(CF,16) if n==diag[q]-8 else "0")
        return [f"v_mfma_f32_32x32x16_bf16 {S}, {vr(KM[b_],4)}, {vr(QM[q],4)}, {c}", f"v_mfma_f32_32x32x8_bf16 {S}, {vr(KT[b_],2)}, {vr(QT[q],2)}, {S}"]
    def PV(u,m):
        q,n=U[u]; O=vr(OO[q],16)
        c=O if started[q] else "0"; started[q]=1
        return f"v_mfma_f32_32x32x16_bf16 {O}, {vr(VV[tau[u]&1][m],4)}, {vr(PP+4*m,4)}, {c}"
    p(f"L_av{w}:")
    for i,f in enumerate(first):
        if f<=1:
            for x in kreads(tiles[i],i&1): p(x)
    for x in vreads(tiles[0],0): p(x)
    p("s_waitcnt lgkmcnt(0)")
    for x in QK(0): p(x)
    p("s_nop 7\ns_nop 3")
    pend=False
    H=first[tiles.index(7)]
    for u in range(18):
        S=SS[u&1]
        e=lambda i: p(f"v_exp_f32 v{S+i}, v{S+i}")
        c=lambda k: p(f"v_cvt_pk_bf16_f32 v{PP+k}, v{S+2*k}, v{S+2*k+1}")
        kr=[x for i,f in enumerate(first) if f==u+2 for x in kreads(tiles[i],i&1)]
        vr_=[x for i,f in enumerate(first) if f==u+1 for x in vreads(tiles[i],i&1)]
        late=(u+2==H)
        STAMP('u%d'%u)
        e(0); e(1)
        if u>0: p(PV(u-1,1))
        e(2)
        if not late:
            for x in kr: p(x)
        if u+3==H: p(f"ds_read_b32 v{vT}, v{aFl} offset:{F_G2-F_G1}")
        e(3); c(0); c(1)
        if pend: p("s_waitcnt lgkmcnt(0)") if not (kr and not late) and u+3!=H else p(f"s_waitcnt lgkmcnt({(len(kr) if not late else 0)+(1 if u+3==H else 0)})")
        qk=QK(u+1) if u<17 else [None,None]
        if qk[0]: p(qk[0])
        e(4)
        if late:
            p(f"v_cmp_gt_u32 vcc, 2, v{vT}")
        e(5)
        if late:
            p(f"s_cbranch_vccnz L_g2w{w}\nL_g2r{w}:")
            for x in kr: p(x)
        for x in vr_: p(x)
        e(6); e(7); c(2); c(3)
        if qk[1]: p(qk[1])
        e(8); e(9); e(10); e(11)
        p(PV(u,0))
        c(4); c(5); e(12); e(13); e(14); e(15); c(6); c(7)
        pend=bool(kr or vr_ or u+3==H)
        if u==H-1:
            p(f"s_cmp_eq_u32 s{cT0}, 0\ns_cbranch_scc1 L_ex{w}")
            exq=PV(u,1)
    p("s_nop 1")
    p(PV(17,1))
    p("s_branch L_afin")
    p(f"L_g2w{w}:")
    p(f"v_mov_b32 v{vT+1}, {F_G2}")
    lds_wait(vT+1,vT,sT+17,'gt',2,1)
    p(f"s_branch L_g2r{w}\nL_ex{w}:\n{exq}\ns_waitcnt lgkmcnt(0)\ns_branch L_afin")
def att_fin():
    t=vT; A=sT+7
    p("L_afin:")
    STAMP('aend')
    p(f"s_mov_b32 s{A}, {hex(f2u(2.0**-40))}\ns_mov_b32 s{A+1}, {hex(f2u(2.0**40)-f2u(2.0**-40))}")
    for q in range(2):
        O=OO[q]
        p(f"""v_cndmask_b32 v{t}, v{O+8}, v{O+12}, s[{sLO}:{sLO+1}]
        v_pk_add_f32 v[{t+2}:{t+3}], v[{O}:{O+1}], v[{O+2}:{O+3}]
        v_rcp_f32 v{t+1}, v{t}
        v_pk_add_f32 v[{t+4}:{t+5}], v[{O+4}:{O+5}], v[{O+6}:{O+7}]
        v_pk_add_f32 v[{t+6}:{t+7}], v[{O+8}:{O+9}], v[{O+10}:{O+11}]
        v_subrev_u32 v{t}, s{A}, v{t}
        v_pk_add_f32 v[{t+2}:{t+3}], v[{t+2}:{t+3}], v[{t+4}:{t+5}]
        v_cmp_lt_u32 s[{A+11}:{A+12}], s{A+1}, v{t}
        v_pk_add_f32 v[{t+2}:{t+3}], v[{t+2}:{t+3}], v[{t+6}:{t+7}]
        v_add_f32 v{t+2}, v{t+2}, v{t+3}""")
        p(f"v_cmp_class_f32 vcc, v{t+2}, v{aCLS}")
        for k in range(6): p(f"v_pk_mul_f32 {vr(O+2*k,2)}, {vr(O+2*k,2)}, {vr(t,2)} op_sel:[0,1] op_sel_hi:[1,1]")
        p(f"""s_or_b64 vcc, vcc, s[{A+11}:{A+12}]
        s_cbranch_scc1 L_afb{q}
        L_afr{q}:""")
        for k in range(6): p(f"v_cvt_pk_bf16_f32 v{O+k}, v{O+2*k}, v{O+2*k+1}")
        p(f"s_cmp_lg_u32 s{sOSC}, 0")
        st=[f"buffer_store_dwordx4 {vr(O,4)}, v{aO}, {S4(sWS)}, s{sOm[q]} offen", f"s_mov_b64 exec, s[{sLO}:{sLO+1}]",
            f"buffer_store_dwordx2 {vr(O+4,2)}, v{aO}, {S4(sWS)}, s{sOt[q]} offen offset:512", "s_mov_b64 exec, -1"]
        p(f"s_cbranch_scc1 L_osc{q}")
        for x in st: p(x+(" "+CFG['apol'] if x.startswith("buffer") else ""))
        p(f"s_branch L_osr{q}\nL_osc{q}:")
        for x in st: p(x+(" sc1" if x.startswith("buffer") else ""))
        p(f"L_osr{q}:")
    p(f"""v_mov_b32 v{t}, {F_DONE}
    v_mov_b32 v{t+1}, 1
    s_mov_b64 exec, 1
    ds_add_u32 v{t}, v{t+1}
    s_mov_b64 exec, -1""")
    STAMP('ost')
aCLS=255; aFO=226; aFR=227
def att_cold():
    t=vT; A=sT+7; B=sT+8; N=sT+17; J=sT+18; CN=sT+19; PA=sT+20
    for q in range(2): p(f"L_afb{q}:\ns_cmp_lg_u32 s{sFB}, 0\ns_cbranch_scc1 L_afr{q}\ns_branch L_afb")
    p(f"L_afb:\ns_mov_b32 s{sFB}, 1\ns_waitcnt lgkmcnt(0)")
    S=SS[0]; MX=t+10; xa=t+11
    for q in range(2):
        lp=p.lab("fb"); nd=p.lab("fbnd"); nf=p.lab("fbnf"); p2=p.lab("fbp2"); nx=p.lab("fbnx"); ps=p.lab("fbps"); dn=p.lab("fbdn")
        for r in range(16): p(f"v_mov_b32 v{OO[q]+r}, 0")
        p(f"""v_mov_b32 v{MX}, {NINF}
        s_mov_b32 s{PA}, 0
        {ps}:""")
        if q==0: p(f"s_sub_u32 s{N}, 15, s{sWAVE}")
        else: p(f"s_add_u32 s{N}, 8, s{sWAVE}")
        p(f"""s_sub_u32 s{CN}, s{N}, 7
        s_cmp_eq_u32 s{cT0}, 0
        s_cselect_b32 s{CN}, s{CN}, 9
        s_mov_b32 s{J}, 0
        {lp}:
        s_lshr_b32 s{A}, s{N}, 1
        s_mul_i32 s{A}, s{A}, 5632
        s_and_b32 s{B}, s{N}, 1
        s_lshl_b32 s{sT+21}, s{B}, 10
        s_add_u32 s{sT+21}, s{sT+21}, s{A}
        v_add_u32 v{xa}, s{sT+21}, v{aKm}
        s_lshl_b32 s{sT+21}, s{B}, 9
        s_add_u32 s{sT+21}, s{sT+21}, s{A}
        v_add_u32 v{xa+1}, s{sT+21}, v{aKt}
        s_mul_i32 s{B}, s{B}, 1280
        s_add_u32 s{A}, s{A}, s{B}
        v_add_u32 v{xa+2}, s{A}, v{aV}
        ds_read_b128 {vr(KM[0],4)}, v{xa}
        ds_read_b64 {vr(KT[0],2)}, v{xa+1}
        s_mov_b64 exec, s[{sLO+2}:{sLO+3}]
        ds_read_b128 {vr(VV[0][0],4)}, v{xa+2}
        ds_read_b128 {vr(VV[0][1],4)}, v{xa+2} offset:640
        s_mov_b64 exec, -1
        s_waitcnt lgkmcnt(0)
        v_mfma_f32_32x32x16_bf16 {vr(S,16)}, {vr(KM[0],4)}, {vr(QM[q],4)}, 0
        v_mfma_f32_32x32x8_bf16 {vr(S,16)}, {vr(KT[0],2)}, {vr(QT[q],2)}, {vr(S,16)}
        v_mov_b32 v{xa}, {NINF}
        s_nop 11
        s_cmp_lg_u32 s{J}, 0
        s_cbranch_scc1 {nd}""")
        for r in range(16): p(f"v_cmp_eq_u32 vcc, 0, v{CD+r}\ns_nop 1\nv_cndmask_b32 v{S+r}, v{xa}, v{S+r}, vcc")
        p(f"{nd}:\ns_cmp_lg_u32 s{J}, 8\ns_cbranch_scc1 {nf}")
        for r in range(16): p(f"v_cmp_eq_u32 vcc, 0, v{CF+r}\ns_nop 1\nv_cndmask_b32 v{S+r}, v{xa}, v{S+r}, vcc")
        p(f"{nf}:\ns_cmp_lg_u32 s{PA}, 0\ns_cbranch_scc1 {p2}")
        for r in range(0,16,2): p(f"v_max3_f32 v{MX}, v{S+r}, v{S+r+1}, v{MX}")
        p(f"s_branch {nx}\n{p2}:")
        for r in range(16): p(f"v_sub_f32 v{S+r}, v{S+r}, v{MX}")
        for r in range(16): p(f"v_exp_f32 v{S+r}, v{S+r}")
        p("s_nop 0")
        for k in range(8): p(f"v_cvt_pk_bf16_f32 v{PP+k}, v{S+2*k}, v{S+2*k+1}")
        p("s_nop 1")
        for m in range(2): p(f"v_mfma_f32_32x32x16_bf16 {vr(OO[q],16)}, {vr(VV[0][m],4)}, {vr(PP+4*m,4)}, {vr(OO[q],16)}")
        p(f"""s_nop 11
        {nx}:
        s_sub_u32 s{N}, s{N}, 1
        s_add_u32 s{J}, s{J}, 1
        s_cmp_lt_u32 s{J}, s{CN}
        s_cbranch_scc1 {lp}
        s_cmp_lg_u32 s{PA}, 0
        s_cbranch_scc1 {dn}
        v_mov_b32 v{xa}, v{MX}
        s_mov_b32 s{PA}, 1
        s_nop 0
        v_permlane32_swap_b32 v{xa}, v{MX}
        s_nop 1
        v_max_f32 v{MX}, v{MX}, v{xa}
        s_branch {ps}
        {dn}:""")
    p("s_branch L_afin")

BF=28; AF=108; WACC=200; XR=176; WR_=186; aX2=196; aPS=197; aAL=198; aAR=199; SW=220; aL4=221; aPR=222; aKY=223; aCD=224
HP=40; HF_=50; LP=70; OP=80
sRT=sT+1; sOL=sT+2; sOR=sT+5; sXO=cXO; sPSO=sT+12; sRETRY=sT+13; sPRB=sT+14; sFLO=sT+16; sFRE=sT+18
def acc_init():
    for k in range(10): p(f"v_lshlrev_b32 v{WACC+2*k}, 16, v{XR+k}\nv_and_b32 v{WACC+2*k+1}, 0xffff0000, v{XR+k}")
def wo_pre1():
    t=vT; A=sT+7; B=sT+8
    wo_ids()
    p(f"""v_and_b32 v{t}, 15, v0
    v_lshrrev_b32 v{t+1}, 4, v0
    v_mul_u32_u24 v{aWR}, 40, v{t+1}
    v_mov_b32 v{t+3}, 1280
    v_mad_u32_u24 v{aX2}, v{t}, v{t+3}, v{aWR}
    s_lshl_b32 s{A}, s{sBLK}, 2
    s_add_u32 s{A}, s{A}, s{sWAVE}
    s_mul_i32 s{A}, s{A}, 20480
    s_mul_i32 s{cJ}, s{sJ}, 160
    s_add_u32 s{cXO}, s{A}, s{cJ}
    v_lshlrev_b32 v{aPS}, 7, v{t}
    v_lshl_add_u32 v{aPS}, v{t+1}, 5, v{aPS}
    v_lshlrev_b32 v{aFR}, 7, v{t}
    v_mul_u32_u24 v{t+2}, 640, v{t+1}
    v_bfe_u32 v{t+3}, v0, 2, 2
    v_mul_u32_u24 v{t+3}, 160, v{t+3}
    v_and_b32 v{t+4}, 3, v0
    v_mul_u32_u24 v{t+4}, 40, v{t+4}
    v_add3_u32 v{t+2}, v{t+2}, v{t+3}, v{t+4}
    s_mul_i32 s{A}, s{sHH}, 51200
    s_add_u32 s{B}, s{A}, {L_WO}
    v_add_u32 v{aAL}, s{B}, v{t+2}
    s_sub_u32 s{B}, {L_WO+51200}, s{A}
    v_add_u32 v{aAR}, s{B}, v{t+2}
    v_and_b32 v{t+2}, 7, v0
    v_mul_u32_u24 v{t+2}, 1280, v{t+2}
    v_bfe_u32 v{t+3}, v0, 3, 1
    v_lshl_add_u32 v{aPR}, v{t+3}, 7, v{t+2}""")
    if CFG['wsp']:
        p(f"""s_and_b32 s{B}, s{sWAVE}, 1
        s_mul_i32 s{B}, s{B}, 25600
        v_add_u32 v{aAL}, s{B}, v{aAL}
        v_add_u32 v{aAR}, s{B}, v{aAR}
        s_lshr_b32 s{B}, s{sWAVE}, 1
        s_mul_i32 s{B}, s{B}, 10240
        s_add_u32 s{A}, s{A}, s{B}
        s_and_b32 s{B}, s{sWAVE}, 1
        s_lshl_b32 s{B}, s{B}, 10
        s_add_u32 s{A}, s{A}, s{B}
        s_add_u32 s{A}, s{A}, {L_WO}
        v_lshlrev_b32 v{aL4}, 4, v0
        v_add_u32 v{aPR}, s{A}, v{aL4}
        v_add_u32 v{aL4}, 4096, v{aL4}""")
def wo_pre2():
    acc_init()
def probe(soff,cnt,first=True):
    t=vT
    lp=p.lab("pb"); ok=p.lab("pbok"); md=p.lab("pbm")
    p(f"s_mov_b32 s{cnt}, {SPIN}")
    if not first: p(f"s_branch {md}")
    p(f"""{lp}:
    buffer_load_dwordx3 v[{t+4}:{t+6}], v{aPR}, {S4(sWS)}, s{soff} offen offset:512 sc1""")
    if not first: p(f"{md}:")
    p(f"""s_waitcnt vmcnt(0)
    v_max_u32 v{t+4}, v{t+4}, v{t+6}
    v_cmp_eq_u32 vcc, -1, v{t+4}
    s_nop 0
    s_cbranch_vccz {ok}""")
    spin(cnt,lp,ok)
    p(f"s_branch {lp}\n{ok}:")
def red3(a,b,c,d):
    p(f"""v_mov_b32 v{d}, v{c}
    s_nop 0
    v_permlane32_swap_b32 v{a}, v{b}
    v_permlane32_swap_b32 v{c}, v{d}
    s_nop 0
    v_add_f32 v{a}, v{a}, v{b}
    v_add_f32 v{c}, v{c}, v{d}
    s_nop 1
    v_permlane16_swap_b32 v{a}, v{c}
    s_nop 0
    v_add_f32 v{a}, v{a}, v{c}
    v_add_f32 v{c}, v{a}, 0
    s_nop 1
    v_permlane16_swap_b32 v{a}, v{c}
    s_nop 0
    v_mov_b32 v{b}, v{a}
    s_nop 1
    v_permlane32_swap_b32 v{a}, v{b}""")
def wo_scal():
    A=sT+7; B=sT+8
    wo_ids()
    p(f"""s_lshl_b32 s{sRT}, s{sBLK}, 2
    s_add_u32 s{sRT}, s{sRT}, s{sWAVE}
    s_mul_i32 s{A}, s{sRT}, 20480
    s_mul_i32 s{B}, s{sMODE}, {OB2-OB}
    s_add_u32 s{A}, s{A}, s{B}
    s_add_u32 s{A}, s{A}, {OB}
    s_mul_i32 s{B}, s{sHH}, 10240
    s_add_u32 s{sOL}, s{A}, s{B}
    s_add_u32 s{sOL+1}, s{sOL}, 4096
    s_add_u32 s{sOL+2}, s{sOL}, 8192
    s_add_u32 s{A}, s{A}, 10240
    s_sub_u32 s{sOR}, s{A}, s{B}
    s_lshl_b32 s{sPSO}, s{sRT}, 11
    s_add_u32 s{sPSO}, s{sPSO}, {PS}
    s_mov_b32 s{sRETRY}, {1<<16}
    s_add_u32 s{sOR+1}, s{sOR}, 4096
    s_add_u32 s{sPRB}, s{sOR}, 8192""")
    if CFG['wsp']:
        p(f"""s_and_b32 s{A}, s{sWAVE}, 1
        s_mul_i32 s{B}, s{A}, 5120
        s_add_u32 s{sOL}, s{sOL}, s{B}
        s_add_u32 s{sOR}, s{sOR}, s{B}
        s_mul_i32 s{B}, s{A}, -40960
        s_add_u32 s{B}, s{B}, 20480
        s_add_u32 s{sOL+1}, s{sOL}, s{B}
        s_add_u32 s{sOR+1}, s{sOR}, s{B}""")
def wo_flags():
    A=sT+7; B=sT+8
    p(f"""s_lshr_b32 s{A}, s{sRT}, 1
    s_lshl_b32 s{A}, s{A}, 12
    s_lshl_b32 s{B}, s{sHH}, 11
    s_add_u32 s{A}, s{A}, {FO}
    s_add_u32 s{sFLO}, s{A}, s{B}
    s_xor_b32 s{sFRE}, s{sFLO}, 2048""")
def wo_gemm():
    t=vT; A=sT+7; B=sT+8; C=sT+17; MXS=t+8
    sROFF=[sOR,sOR+1,sPRB]
    LA=CFG['wla']; WE=CFG['wwe']
    LG=[]
    def af(m): return AF+4*(m%15)
    def aread(m):
        s_,t_=divmod(m,5)
        for rd in range(2):
            p(f"ds_read_b64_tr_b16 {vr(af(m)+2*rd,2)}, v{aAL if s_<10 else aAR} offset:{(s_%10)*5120+rd*2560+8*t_}"); LG.append(m)
    def lgw(m):
        k=[i for i,x in enumerate(LG) if x!='x' and x<=m]
        if not k: return None
        n=len(LG)-1-max(k); del LG[:max(k)+1]; return n
    def bload(s_):
        so=(sOL+(s_%10)//4) if s_<10 else sROFF[(s_%10)//4]
        return f"buffer_load_dwordx4 {vr(BF+4*s_,4)}, v{aLin}, {S4(sWS)}, s{so} offen offset:{(s_%10%4)*1024} sc1"
    def cold(f):
        n0=len(p.L); f(); COLD.append("\n".join(p.L[n0:])); del p.L[n0:]
    p(f"s_cmp_lg_u32 s{sMODE}, 0\ns_cbranch_scc1 L_plsl\nL_plr:")
    def slow():
        p("L_plsl:"); wo_flags()
        p(f"""v_mov_b32 v{t+1}, s{sTAG}
        s_mov_b64 exec, 3
        s_waitcnt vmcnt(0)
        buffer_store_dword v{t+1}, v{aFO}, {S4(sWS)}, 0 offen sc1
        s_mov_b64 exec, -1""")
        flag_poll(aFR,t+4,sFLO,C); flag_poll(aFR,t+4,sFRE,C); p("s_branch L_plr")
    cold(slow)
    NI=CFG['oini']
    def dn():
        if CFG['odn']:
            p(f"v_mov_b32 v{t}, {F_DONE}"); lds_wait(t,t+1,C,'gt',4,0)
    if CFG['oprb']:
        p(f"buffer_load_dwordx3 v[{t+4}:{t+6}], v{aPR}, {S4(sWS)}, s{sOL} offen offset:512 sc1\ns_waitcnt vmcnt(5)")
    else:
        dn()
        for s_ in range(NI): p(bload(s_))
        p(f"s_waitcnt vmcnt({NI+4})")
    acc_init()
    p(f"v_mov_b32 v{t}, {F_WOR}")
    STAMP('fo')
    lds_wait(t,t+1,C,'gt',2,0)
    p(f"ds_read_b32 v{SW}, v{t} offset:{L_SWS-F_WOR}"); LG.append('x')
    STAMP('wor')
    if CFG['oprb']: dn()
    for m in range(LA): aread(m)
    p(f"v_mov_b32 v{t+7}, {F_WO2}\ns_mov_b32 s{sRETRY}, {SPIN}")
    if CFG['oprb']:
        probe(sOL,C,first=False)
        STAMP('prb')
        for s_ in range(NI): p(bload(s_))
    G={}; a=0
    for n in CFG['ogr']: G[a]=a+n; a+=n
    assert a==20 and 10 in G
    def chain(a,b):
        return [f"v_max_u32 v{MXS}, v{BF+4*a}, v{BF+4*a+2}"]+[f"v_max3_u32 v{MXS}, v{BF+4*k}, v{BF+4*k+2}, v{MXS}" for k in range(a+1,b)]
    cmp_=f"v_cmp_eq_u32 vcc, -1, v{MXS}"
    def retry(a,b):
        e=20 if (CFG['opoll']=='all' or a>=10) else 10
        def f():
            p(f"L_og{a}:\ns_sub_u32 s{sRETRY}, s{sRETRY}, 1\ns_cbranch_scc1 L_ogr{a}")
            sl=CFG['osl'][a//10]
            if sl: p(f"s_sleep {sl}")
            if CFG['opoll']=='probe' and a==0: probe(sOL,C)
            for k in range(a,e): p(bload(k))
            p(f"s_waitcnt vmcnt({20-b if e==20 else 0})")
            for x in chain(a,b): p(x)
            p(f"{cmp_}\ns_nop 0\ns_cbranch_vccnz L_og{a}\ns_branch L_ogr{a}")
        cold(f)
    last=lambda s_: (NI if s_<NI else 20)-1
    p(f"s_waitcnt vmcnt({last(0)+1-G[0]})")
    for x in chain(0,G[0]): p(x)
    p(f"{cmp_}\ns_nop 0\ns_cbranch_vccnz L_og0\nL_ogr0:"); retry(0,G[0])
    STAMP('pl')
    for m in range(100):
        s_,t_=divmod(m,5)
        nx=s_+1 if s_+1 in G else None
        if m==50:
            STAMP('pr')
            if CFG['gstart']=='PR' or CFG['dstart']=='PR' or CFG['dgate']=='PR':
                p(f"""s_mov_b64 exec, 1
                v_mov_b32 v{t+4}, {F_PR}
                v_mov_b32 v{t+5}, 1
                ds_add_u32 v{t+4}, v{t+5}
                s_mov_b64 exec, -1"""); LG.append('x')
        w=[]
        if nx is not None and t_==1: w.append(f"vmcnt({(20 if m>CFG['orem'] else NI)-G[nx]}"); assert G[nx]<=NI or m>CFG['orem']
        if m%WE==0:
            n=lgw(m+WE-1)
            if n is not None: w.append(f"lgkmcnt({n}")
        if w: p("s_waitcnt "+") ".join(w)+")")
        a_=vr(WACC+4*t_,4)
        p(f"v_mfma_f32_16x16x32_bf16 {a_}, {vr(af(m),4)}, {vr(BF+4*s_,4)}, {a_}")
        if NI<20 and m==CFG['orem']:
            for k in range(NI,20): p(bload(k))
        if m+LA==50-10: p(f"ds_read_b32 v{t+6}, v{t+7}"); LG.append('x')
        if m+LA==50:
            assert nx is None or t_<3
            p(f"v_cmp_gt_u32 vcc, 2, v{t+6}\ns_nop 0\ns_cbranch_vccnz L_wo2w\nL_wo2r:")
            def f():
                p("L_wo2w:"); lds_wait(t+7,t+6,C,'gt',2,0); p("s_branch L_wo2r")
            cold(f)
        if m+LA<100: aread(m+LA)
        if nx is not None:
            ch=chain(nx,G[nx]); k=-(-len(ch)//2)
            if t_==1:
                for x in ch[:k]: p(x)
            if t_==2:
                for x in ch[k:]: p(x)
            if t_==3: p(cmp_)
            if t_==4:
                if nx==10: STAMP('loc')
                p(f"s_cbranch_vccnz L_og{nx}\nL_ogr{nx}:"); retry(nx,G[nx])
    p(f"""v_mov_b32 v{t}, 0x3f803f80
    v_mov_b32 v{t+2}, 0
    v_mov_b32 v{t+3}, 0
    v_mov_b32 v{t+4}, 0
    s_nop 3""")
ACC2=148; aXW=222
def wo_gemm2():
    t=vT; A=sT+7; B=sT+8; C=sT+17; MXS=t+8
    LA=CFG['wla2']
    LG=[]
    def af(m): return AF+4*(m%10)
    def aread(m,rds=(0,1)):
        s_,t_=divmod(m,5)
        for rd in rds:
            if CFG['wnoa'] and m>=LA and rd<CFG['wnoa']: continue
            p(f"ds_read_b64_tr_b16 {vr(af(m)+2*rd,2)}, v{aAL if s_<5 else aAR} offset:{(s_%5)*5120+rd*2560+8*t_}"); LG.append(m)
    def lgw(m):
        k=[i for i,x in enumerate(LG) if x!='x' and x<=m]
        if not k: return None
        n=len(LG)-1-max(k); del LG[:max(k)+1]; return n
    def bload(s_,us=(0,1)):
        for u in us:
            so=(sOL if s_<5 else sOR)+u
            p(f"buffer_load_dwordx4 {vr(BF+8*s_+4*u,4)}, v{aLin if s_%5<4 else aL4}, {S4(sWS)}, s{so} offen offset:{(s_%5%4)*1024} sc1")
    def cold(f):
        n0=len(p.L); f(); COLD.append("\n".join(p.L[n0:])); del p.L[n0:]
    p(f"s_cmp_lg_u32 s{sMODE}, 0\ns_cbranch_scc1 L_plsl\nL_plr:")
    def slow():
        p("L_plsl:"); wo_flags()
        p(f"""v_mov_b32 v{t+1}, s{sTAG}
        s_mov_b64 exec, 3
        s_waitcnt vmcnt(0)
        buffer_store_dword v{t+1}, v{aFO}, {S4(sWS)}, 0 offen sc1
        s_mov_b64 exec, -1""")
        flag_poll(aFR,t+4,sFLO,C); flag_poll(aFR,t+4,sFRE,C); p("s_branch L_plr")
    cold(slow)
    p(f"v_mov_b32 v{t}, {F_DONE}\ns_waitcnt vmcnt(4)")
    if CFG['odn']==2: acc_init()
    if CFG['odn']: lds_wait(t,t+1,C,'gt',4,0)
    for s_ in range(5): bload(s_)
    if CFG['odn']!=2: acc_init()
    p(f"v_mov_b32 v{t}, {F_WOR}")
    STAMP('fo')
    lds_wait(t,t+1,C,'gt',2,0)
    p(f"ds_read_b32 v{SW}, v{t} offset:{L_SWS-F_WOR}"); LG.append('x')
    STAMP('wor')
    for m in range(LA): aread(m)
    p(f"""v_mov_b32 v{t+7}, {F_WO2}
    s_mov_b32 s{sRETRY}, {SPIN}
    s_lshl_b32 s{A}, s{sWAVE}, 2
    s_add_u32 s{A}, s{A}, {F_X}
    v_mov_b32 v{t+10}, s{A}
    v_xor_b32 v{t+11}, 4, v{t+10}
    v_mov_b32 v{t+12}, 1""")
    G={}; a=0
    for n in CFG['ogr2']: G[a]=a+n; a+=n
    assert a==10 and 5 in G
    def chain(a,b):
        return [f"v_max_u32 v{MXS}, v{BF+8*a}, v{BF+8*a+2}"]+[f"v_max3_u32 v{MXS}, v{BF+4*k}, v{BF+4*k+2}, v{MXS}" for k in range(2*a+1,2*b)]
    cmp_=f"v_cmp_eq_u32 vcc, -1, v{MXS}"
    def retry(a,b):
        e=10 if a>=5 else 5
        def f():
            p(f"L_og{a}:\ns_sub_u32 s{sRETRY}, s{sRETRY}, 1\ns_cbranch_scc1 L_ogr{a}")
            sl=CFG['osl'][a//5]
            if sl: p(f"s_sleep {sl}")
            for k in range(a,e): bload(k)
            p(f"s_waitcnt vmcnt({20-2*b if e==10 else 0})")
            for x in chain(a,b): p(x)
            p(f"{cmp_}\ns_nop 0\ns_cbranch_vccnz L_og{a}\ns_branch L_ogr{a}")
        cold(f)
    RM={}
    for j in range(10): RM.setdefault(max(-1,int(CFG['orem2'][0]+j*CFG['orem2'][1])),[]).append(j)
    assert max(RM)<=24
    nis=10
    for j in RM.get(-1,()): bload(5+j//2,(j&1,)); nis+=1
    p(f"s_waitcnt vmcnt({nis-2*G[0]})")
    for x in chain(0,G[0]): p(x)
    p(f"{cmp_}\ns_nop 0\ns_cbranch_vccnz L_og0\nL_ogr0:"); retry(0,G[0])
    STAMP('pl')
    def mf(m,u):
        s_,t_=divmod(m,5)
        a_=vr((WACC,ACC2)[u]+4*t_,4)
        p(f"v_mfma_f32_16x16x32_bf16 {a_}, {vr(af(m),4)}, {vr(BF+8*s_+4*u,4)}, {0 if u and s_==0 else a_}")
    WE=CFG['wwe2']
    for m in range(45):
        s_,t_=divmod(m,5)
        nx=s_+1 if s_+1 in G else None
        if m==25:
            STAMP('pr')
            p(f"""s_mov_b64 exec, 1
            ds_add_u32 v{t+7}, v{t+12} offset:{F_LD-F_WO2}"""); LG.append('x')
            if CFG['gstart']=='PR' or CFG['dstart']=='PR' or CFG['dgate']=='PR':
                p(f"v_mov_b32 v{t+4}, {F_PR}\nds_add_u32 v{t+4}, v{t+12}"); LG.append('x')
            p("s_mov_b64 exec, -1")
        w=[]
        if nx is not None and t_==1: w.append(f"vmcnt({nis-2*G[nx]}"); assert nis>=2*G[nx]
        n=lgw(m+WE-1) if m%WE==0 else None
        if n is not None: w.append(f"lgkmcnt({n}")
        if w: p("s_waitcnt "+") ".join(w)+")")
        mf(m,1)
        if m==25-2*LA-1: p(f"ds_read_b32 v{t+6}, v{t+7}"); LG.append('x')
        if m+LA==25:
            assert nx is None or t_<3
            p(f"v_cmp_gt_u32 vcc, 2, v{t+6}\ns_nop 0\ns_cbranch_vccnz L_wo2w\nL_wo2r:")
            def f():
                p("L_wo2w:"); lds_wait(t+7,t+6,C,'gt',2,0); p("s_branch L_wo2r")
            cold(f)
        if m==44-LA: p(f"ds_read_b32 v{t+6}, v{t+7} offset:{F_LD-F_WO2}"); LG.append('x')
        if m+LA<50: aread(m+LA,(0,) if CFG['wsplit'] else (0,1))
        mf(m,0)
        if m+LA<50 and CFG['wsplit']: aread(m+LA,(1,))
        for j in RM.get(m,()): bload(5+j//2,(j&1,)); nis+=1
        if nx is not None:
            ch=chain(nx,G[nx]); k=-(-len(ch)//2)
            if t_==1:
                for x in ch[:k]: p(x)
            if t_==2:
                for x in ch[k:]: p(x)
            if t_==3: p(cmp_)
            if t_==4:
                if nx==5: STAMP('loc')
                p(f"s_cbranch_vccnz L_og{nx}\nL_ogr{nx}:"); retry(nx,G[nx])
                STAMP('og%d'%nx)
    assert LA>=5 and 9 not in G
    for m in range(45,50):
        n=lgw(m)
        if n is not None: p(f"s_waitcnt lgkmcnt({n})")
        mf(m,1)
        if m==45:
            p(f"v_cmp_gt_u32 vcc, 4, v{t+6}\nv_mov_b32 v{t}, 0x3f803f80\ns_cbranch_vccnz L_ldw\nL_ldr:")
            def f():
                p(f"L_ldw:\nv_add_u32 v{t+7}, {F_LD-F_WO2}, v{t+7}"); lds_wait(t+7,t+6,C,'gt',4,0); p("s_branch L_ldr")
            cold(f)
    p(f"""v_mov_b32 v{t+2}, 0
    v_mov_b32 v{t+3}, 0
    v_mov_b32 v{t+4}, 0
    v_xor_b32 v{t+5}, 1024, v{aXW}""")
    for k in range(5):
        p(f"ds_write_b128 v{aXW}, {vr(ACC2+4*k,4)} offset:{2048*k}")
        mf(45+k,0)
    lp=p.lab("xw"); ok=p.lab("xok")
    STAMP('xw')
    p(f"""ds_write_b32 v{t+10}, v{t+12}
    s_mov_b32 s{C}, {SPIN*4}
    {lp}:
    ds_read_b32 v{t+6}, v{t+11}""")
    for k in range(5): p(f"ds_read_b128 {vr(BF+4*k,4)}, v{t+5} offset:{2048*k}")
    p(f"""s_waitcnt lgkmcnt(5)
    v_cmp_eq_u32 vcc, 0, v{t+6}
    s_nop 0
    s_cbranch_vccz {ok}""")
    spin(C,lp,ok)
    p(f"s_waitcnt lgkmcnt(0)\ns_branch {lp}\n{ok}:")
    for k in range(5):
        p(f"s_waitcnt lgkmcnt({4-k})")
        for j in range(2): p(f"v_pk_add_f32 {vr(WACC+4*k+2*j,2)}, {vr(WACC+4*k+2*j,2)}, {vr(BF+4*k+2*j,2)}")
def wo_gemm_old():
    t=vT; A=sT+7; B=sT+8; C=sT+17; MXS=t+8
    wo_scal(); wo_flags()
    p("s_waitcnt vmcnt(4)")
    acc_init()
    p(f"""v_mov_b32 v{t}, {F_WOR}
    v_mov_b32 v{t+1}, s{sTAG}
    s_cmp_eq_u32 s{sOSC}, 0
    s_cbranch_scc1 L_nofo
    s_mov_b64 exec, 3
    s_waitcnt vmcnt(0)
    buffer_store_dword v{t+1}, v{aFO}, {S4(sWS)}, 0 offen sc1
    s_mov_b64 exec, -1
    L_nofo:""")
    STAMP('fo')
    lds_wait(t,t+1,C,'gt',2,0)
    p(f"""ds_read_b32 v{SW}, v{t} offset:{L_SWS-F_WOR}
    L_wo:""")
    STAMP('wor')
    sROFF=[sOR,sOR+1,sPRB]
    LA=CFG['wla']; WE=CFG['wwe']
    LG=[]
    def af(m): return AF+4*(m%15)
    def aread(m):
        s_,t_=divmod(m,5)
        for rd in range(2):
            p(f"ds_read_b64_tr_b16 {vr(af(m)+2*rd,2)}, v{aAL if s_<10 else aAR} offset:{(s_%10)*5120+rd*2560+8*t_}"); LG.append(m)
    def lgw(m):
        k=[i for i,x in enumerate(LG) if x!='x' and x<=m]
        if not k: return None
        n=len(LG)-1-max(k); del LG[:max(k)+1]; return n
    def bload(s_):
        so=(sOL+(s_%10)//4) if s_<10 else sROFF[(s_%10)//4]
        return f"buffer_load_dwordx4 {vr(BF+4*s_,4)}, v{aLin}, {S4(sWS)}, s{so} offen offset:{(s_%10%4)*1024} sc1"
    for m in range(LA): aread(m)
    p(f"v_mov_b32 v{MXS}, 0\nv_mov_b32 v{t+7}, {F_WO2}")
    p(f"s_cmp_lg_u32 s{sMODE}, 0\ns_cbranch_scc1 L_plsl")
    probe(sOL,C)
    p("L_plr:")
    n0=len(p.L)
    p("L_plsl:"); flag_poll(aFR,t+4,sFLO,C); p("s_branch L_plr")
    COLD.append("\n".join(p.L[n0:])); del p.L[n0:]
    STAMP('pl')
    for s_ in range(10): p(bload(s_))
    p(f"buffer_load_dword v{t+4}, v{aFR}, {S4(sWS)}, s{sFRE} offen sc1")
    for m in range(100):
        s_,t_=divmod(m,5)
        if m==50:
            STAMP('loc')
            flag_poll(aFR,t+4,sFRE,C,first=False)
            STAMP('pr')
            for k in range(10,20): p(bload(k))
            if CFG['gstart']=='PR' or CFG['dstart']=='PR' or CFG['dgate']=='PR':
                p(f"""s_mov_b64 exec, 1
                v_mov_b32 v{t+4}, {F_PR}
                v_mov_b32 v{t+5}, 1
                ds_add_u32 v{t+4}, v{t+5}
                s_mov_b64 exec, -1"""); LG.append('x')
        w=[]
        if t_==0: w.append(f"vmcnt({(10-s_) if s_<10 else (19-s_)}")
        if m%WE==0:
            n=lgw(m+WE-1)
            if n is not None: w.append(f"lgkmcnt({n}")
        if w: p("s_waitcnt "+") ".join(w)+")")
        a_=vr(WACC+4*t_,4)
        p(f"v_mfma_f32_16x16x32_bf16 {a_}, {vr(af(m),4)}, {vr(BF+4*s_,4)}, {a_}")
        if m+LA==50-10: p(f"ds_read_b32 v{t+6}, v{t+7}"); LG.append('x')
        if m+LA==50:
            p(f"v_cmp_gt_u32 vcc, 2, v{t+6}\ns_nop 0\ns_cbranch_vccnz L_wo2w\nL_wo2r:")
            n0=len(p.L)
            p("L_wo2w:"); lds_wait(t+7,t+6,C,'gt',2,0); p("s_branch L_wo2r")
            COLD.append("\n".join(p.L[n0:])); del p.L[n0:]
        if m+LA<100: aread(m+LA)
        if t_==0 and s_<10: p(f"v_max3_u32 v{MXS}, v{BF+4*s_}, v{BF+4*s_+2}, v{MXS}")
    p(f"""v_cmp_eq_u32 vcc, -1, v{MXS}
    v_mov_b32 v{t}, 0x3f803f80
    v_mov_b32 v{t+2}, 0
    v_mov_b32 v{t+3}, 0
    v_mov_b32 v{t+4}, 0
    s_cbranch_vccnz L_woredo
    L_wook:""")
    COLD.append(f"L_woredo:\ns_sub_u32 s{sRETRY}, s{sRETRY}, 1\ns_cbranch_scc1 L_wook\ns_nop 7")
    q=P();
    COLD.append("\n".join(f"v_lshlrev_b32 v{WACC+2*k}, 16, v{XR+k}\nv_and_b32 v{WACC+2*k+1}, 0xffff0000, v{XR+k}" for k in range(10))+"\ns_branch L_wo")
def wo_main():
    t=vT; A=sT+7; B=sT+8; C=sT+17
    (wo_gemm2 if CFG['wsp'] else wo_gemm if CFG['osent'] else wo_gemm_old)()
    STAMP('wend')
    for k in range(10): p(f"v_cvt_pk_bf16_f32 v{HP+k}, v{WACC+2*k}, v{WACC+2*k+1}")
    for k in range(10):
        p(f"""v_dot2_f32_bf16 v{t+2}, v{HP+k}, v{t}, v{t+2}
        v_dot2_f32_bf16 v{t+4}, v{HP+k}, v{HP+k}, v{t+4}
        v_dot2_f32_bf16 v{t+3}, v{HP+k}, v{WR_+k}, v{t+3}""")
    p(f"""s_lshl_b32 s{A}, s{sJ}, 4
    s_add_u32 s{A}, s{A}, s{sPSO}""")
    red3(t+2,t+3,t+4,t+5)
    p(f"""v_mov_b32 v{t+5}, s{sTAG}
    s_mov_b64 exec, 0xffff
    s_cmp_lg_u32 s{sMODE}, 0
    s_cbranch_scc1 L_pssc
    buffer_store_dwordx4 {vr(t+2,4)}, v{aPS}, {S4(sWS)}, s{A} offen
    L_psr:
    s_mov_b64 exec, -1""")
    COLD.append(f"L_pssc:\nbuffer_store_dwordx4 {vr(t+2,4)}, v{aPS}, {S4(sWS)}, s{A} offen sc1\ns_branch L_psr")
    STAMP('ps')
    G=t+10
    lp=p.lab("ps"); ok=p.lab("psok"); md=p.lab("psm")
    ld=f"""buffer_load_dwordx4 {vr(G,4)}, v{aPS}, {S4(sWS)}, s{sPSO} offen sc1
    buffer_load_dwordx4 {vr(G+4,4)}, v{aPS}, {S4(sWS)}, s{sPSO} offen offset:16 sc1"""
    p(ld)
    for k in range(10): p(f"v_lshlrev_b32 v{HF_+2*k}, 16, v{HP+k}\nv_and_b32 v{HF_+2*k+1}, 0xffff0000, v{HP+k}")
    if CFG['dbg']:
        p(f"s_add_u32 s{A}, s{sXO}, {HB}")
        for o,n in ((0,4),(4,4),(8,2)): p(f"buffer_store_dwordx{n} {vr(HP+o,n)}, v{aX2}, {S4(sWS)}, s{A} offen offset:{4*o}")
    p(f"""s_lshl_b32 s{A}, s{sRT}, 4
    s_sub_u32 s{A}, 2047, s{A}
    v_and_b32 v{t}, 15, v0
    v_sub_u32 v{t+9}, s{A}, v{t}
    v_lshlrev_b32 v{t+9}, 3, v{t+9}
    s_lshl_b32 s{A}, s{sWAVE}, 6
    s_add_u32 s{A}, s{A}, {L_KEYS}
    v_lshl_add_u32 v{aKY}, v{t}, 2, s{A}
    v_and_b32 v{t}, 48, v0
    v_lshlrev_b32 v{t}, 2, v{t}
    v_add_u32 v{t+8}, {L_KEYS}, v{t}
    s_mov_b32 s{C}, {SPIN}
    s_branch {md}
    {lp}:
    {ld}
    {md}:
    s_waitcnt vmcnt(0)
    v_cmp_ne_u32 vcc, s{sTAG}, v{G+3}
    v_cmp_ne_u32 s[{sT+14}:{sT+15}], s{sTAG}, v{G+7}
    v_pk_add_f32 {vr(t+4,2)}, {vr(G,2)}, {vr(G+4,2)}
    v_add_f32 v{t+6}, v{G+2}, v{G+6}
    s_or_b64 vcc, vcc, s[{sT+14}:{sT+15}]
    s_cbranch_scc0 {ok}""")
    spin(C,lp,ok)
    p(f"""s_branch {lp}
    {ok}:""")
    STAMP('psr')
    if CFG['dgate']=='PS': p(f"""s_mov_b64 exec, 1
    v_mov_b32 v{G}, {F_PS}
    v_mov_b32 v{G+1}, 1
    ds_add_u32 v{G}, v{G+1}
    s_mov_b64 exec, -1""")
    M=t+4
    red3(M,M+1,M+2,M+3)
    p(f"""v_mul_f32 v{M}, {1/640!r}, v{M}
    v_mul_f32 v{M+2}, {1/640!r}, v{M+2}
    v_fma_f32 v{M+2}, -v{M}, v{M}, v{M+2}
    v_max_f32 v{M+2}, 0, v{M+2}""")
    bf16r(M+2,M+2)
    p(f"v_add_f32 v{M+2}, 0x3727c5ac, v{M+2}")
    bf16r(M+2,M+2)
    p(f"v_sqrt_f32 v{M+2}, v{M+2}")
    bf16r(M,M)
    bf16r(M+2,M+2)
    RS=t+2
    p(f"""v_rcp_f32 v{RS}, v{M+2}
    v_fma_f32 v{M+1}, -v{M}, v{SW}, v{M+1}
    v_mul_f32 v{M+1}, v{M+1}, v{RS}
    v_cvt_pk_bf16_f32 v{M+1}, v{M+1}, v{M+1}
    v_mul_f32 v{RS+1}, -v{M}, v{RS}
    v_ashrrev_i32 v{M+2}, 31, v{M+1}
    v_or_b32 v{M+2}, 0x80000000, v{M+2}
    v_xor_b32 v{M+1}, v{M+1}, v{M+2}
    v_and_b32 v{M+1}, 0xffff0000, v{M+1}
    v_or_b32 v{KEY}, v{M+1}, v{t+9}
    ds_write_b32 v{aKY}, v{KEY}""")
    for k in range(10): p(f"v_pk_fma_f32 {vr(WACC+2*k,2)}, {vr(HF_+2*k,2)}, {vr(RS,2)}, {vr(RS,2)} op_sel:[0,0,1] op_sel_hi:[1,0,1]")
    K16=AF
    lp=p.lab("ky"); ok=p.lab("kyok")
    p(f"s_mov_b32 s{C}, {SPIN*4}\n{lp}:")
    for i in range(4): p(f"ds_read_b128 {vr(K16+4*i,4)}, v{t+8} offset:{16*i}")
    p("s_waitcnt lgkmcnt(0)")
    p(f"v_max3_u32 v{t}, v{K16}, v{K16+1}, v{K16+2}")
    for i in range(3,15,2): p(f"v_max3_u32 v{t}, v{K16+i}, v{K16+i+1}, v{t}")
    p(f"""v_max_u32 v{t}, v{t}, v{K16+15}
    v_cmp_eq_u32 vcc, -1, v{t}
    v_mov_b32 v{t}, 0
    s_cbranch_vccz {ok}""")
    spin(C,lp,ok)
    p(f"s_branch {lp}\n{ok}:")
    STAMP('keys')
    m0_=sT+18
    for i in range(18):
        if i<16: p(f"v_cmp_gt_u32 s[{m0_+2*(i%2)}:{m0_+2*(i%2)+1}], v{K16+i}, v{KEY}") if False else None
    MK=[sT+14,sT+16,sT+18]
    for i in range(18):
        if i<16: m=MK[i%3]; p(f"v_cmp_gt_u32 s[{m}:{m+1}], v{K16+i}, v{KEY}")
        elif i==16: p("s_nop 0")
        if i>=2: m=MK[(i-2)%3]; p(f"v_addc_co_u32 v{t}, vcc, 0, v{t}, s[{m}:{m+1}]")
    p(f"""v_mov_b32 v{t+1}, v{t}
    v_cvt_pk_bf16_f32 v{LP}, v{WACC}, v{WACC+1}
    v_cvt_pk_bf16_f32 v{LP+1}, v{WACC+2}, v{WACC+3}
    v_permlane32_swap_b32 v{t}, v{t+1}
    v_cvt_pk_bf16_f32 v{LP+2}, v{WACC+4}, v{WACC+5}
    v_add_u32 v{t}, v{t}, v{t+1}
    v_mov_b32 v{t+1}, v{t}
    v_cvt_pk_bf16_f32 v{LP+3}, v{WACC+6}, v{WACC+7}
    v_cvt_pk_bf16_f32 v{LP+4}, v{WACC+8}, v{WACC+9}
    v_permlane16_swap_b32 v{t}, v{t+1}
    v_cvt_pk_bf16_f32 v{LP+5}, v{WACC+10}, v{WACC+11}
    v_add_u32 v{t}, v{t}, v{t+1}
    v_cmp_gt_u32 s[{sCAND}:{sCAND+1}], 8, v{t}
    v_or_b32 v{KEY}, v{KEY}, v{t}
    v_mov_b32 v{t+1}, {L_CA&~0xffff}
    v_lshl_add_u32 v{t+1}, v{t}, 3, v{t+1}
    v_mov_b32 v{KEY+1}, s{sTAG}
    s_cmp_lg_u32 s{sJ}, 0
    s_cbranch_scc1 L_noca
    s_and_b32 exec_lo, s{sCAND}, 0xffff
    s_mov_b32 exec_hi, 0
    ds_write_b64 v{t+1}, {vr(KEY,2)} offset:{L_CA&0xffff}
    s_mov_b64 exec, 0xff
    s_cmp_lg_u32 s{sWAVE}, 0
    s_cbranch_scc1 L_noca
    v_lshlrev_b32 v{t+2}, 3, v0
    v_add_u32 v{t+3}, {L_CA}, v{t+2}
    s_lshl_b32 s{A}, s{sBLK}, 7
    s_add_u32 s{A}, s{A}, {CA}
    s_mov_b32 s{C}, {SPIN*4}
    L_cal:
    ds_read_b64 v[{t+4}:{t+5}], v{t+3}
    s_waitcnt lgkmcnt(0)
    v_cmp_ne_u32 vcc, s{sTAG}, v{t+5}
    s_nop 0
    s_cbranch_vccz L_caok""")
    spin(C,"L_cal","L_caok")
    p(f"""s_branch L_cal
    L_caok:
    buffer_store_dwordx2 v[{t+4}:{t+5}], v{t+2}, {S4(sWS)}, s{A} offen sc1
    L_noca:
    s_mov_b64 exec, -1""")
    STAMP('ca')
    for k in range(6,10): p(f"v_cvt_pk_bf16_f32 v{LP+k}, v{WACC+2*k}, v{WACC+2*k+1}")
    p(f"""v_lshrrev_b32 v{t+1}, 4, v0
    v_mul_u32_u24 v{t+1}, 40, v{t+1}
    v_mul_u32_u24 v{t}, 2560, v{t}
    v_add_u32 v{aCD}, v{t}, v{t+1}
    s_mul_i32 s{A}, s{sBLK}, 20480
    s_mul_i32 s{B}, s{sJ}, 160
    s_add_u32 s{A}, s{A}, s{B}
    s_add_u32 s{A}, s{A}, {CAND}
    s_and_b64 exec, s[{sCAND}:{sCAND+1}], -1
    s_cbranch_scc0 L_nocd""")
    for base,off in ((LP,0),(HP,1280)):
        if 'nocand' in CFG['xp'] or ('noh' in CFG['xp'] and off): continue
        for o,n in ((0,4),(4,4),(8,2)): p(f"buffer_store_dwordx{n} {vr(base+o,n)}, v{aCD}, {S4(sWS)}, s{A} offen offset:{off+4*o} sc1")
    p("L_nocd:\ns_mov_b64 exec, -1")
    for k in range(10): p(f"v_pk_add_f32 {vr(WACC+2*k,2)}, {vr(WACC+2*k,2)}, {vr(HF_+2*k,2)}")
    for k in range(10): p(f"v_cvt_pk_bf16_f32 v{OP+k}, v{WACC+2*k}, v{WACC+2*k+1}")
    p(f"s_andn2_b64 exec, -1, s[{sCAND}:{sCAND+1}]\ns_cbranch_scc0 L_noo1")
    if 'noout' not in CFG['xp']: out_store()
    p("L_noo1:")
    if 1: p(f"""s_mov_b64 exec, 1
    v_mov_b32 v{t+4}, {F_O1}
    v_mov_b32 v{t+5}, 1
    ds_add_u32 v{t+4}, v{t+5}
    s_mov_b64 exec, -1""")
    else: p("s_mov_b64 exec, -1")
    STAMP('o1')
KEY=228; sCAND=sT+20
def out_store():
    for o,n in ((0,4),(4,4),(8,2)): p(f"buffer_store_dwordx{n} {vr(OP+o,n)}, v{aX2}, {S4(sOUT)}, s{sXO} offen offset:{4*o} {CFG['opol']}")

def moe_weights():
    A=sT+7; B=sT+8; vt=2; D=40; aW_=12
    gu=p.lab("mwgu"); wr=p.lab("mwwr"); en=p.lab("mwend")
    FA=dict(WOD=(F_WOD,2),PR=(F_PR,4),O1=(F_O1,4),DONE=(F_DONE,4),G2=(F_G2,2),PS=(F_PS,4),WO2=(F_WO2,2))
    def gate(k):
        p(f"v_mov_b32 v{vt+4}, {FA[k][0]}")
        lds_wait(vt+4,vt+5,sT+5,'gt',FA[k][1],2)
    pl_=p.lab("mwpl")
    p(f"""s_cmp_ge_u32 s{sSLOT}, 17
    s_cbranch_scc1 {pl_}
    v_bfe_u32 v{vt}, v0, 3, 2
    v_lshrrev_b32 v{vt+1}, 5, v0
    v_lshlrev_b32 v{vt}, 1, v{vt}
    v_add_lshl_u32 v{vt}, v{vt}, v{vt+1}, 2
    v_bfe_u32 v{vt+1}, v0, 1, 2
    v_add_u32 v{vt}, v{vt}, v{vt+1}
    v_and_b32 v{vt+1}, 1, v0
    v_lshlrev_b32 v{vt+1}, 4, v{vt+1}
    s_cmp_lt_u32 s{sSLOT}, 12
    s_cbranch_scc1 {gu}
    v_mul_u32_u24 v{vt}, 1280, v{vt}
    v_add_u32 v{aW_}, v{vt}, v{vt+1}
    s_mul_i32 s{A}, s{sG}, 5
    s_add_u32 s{A}, s{A}, s{sSLOT}
    s_sub_u32 s{A}, s{A}, 12
    s_lshl_b32 s{A}, s{A}, 5
    s_mul_i32 s{B}, s{HW}, {12*32*1280}
    s_add_u32 s{A}, s{A}, s{B}""")
    gate(CFG['dstart'])
    STAMP('mg')
    for s_ in range(12):
        if s_>=CFG['ddep']: p(f"s_waitcnt vmcnt({CFG['ddep']-1})")
        p(f"buffer_load_dwordx4 {vr(D+4*s_,4)}, v{aW_}, {S4(sWD)}, s{A} offen {CFG['mpol']}")
        if s_<11: p(f"s_add_u32 s{A}, s{A}, {32*1280}")
    p(f"""s_mul_i32 s{B}, s{HW}, 12288
    s_branch {wr}
    {pl_}:""")
    for g_,h_ in CFG['wb']:
        sk=p.lab("nowb")
        p(f"s_lshl_b32 s{A}, s{sSLOT}, 2\ns_add_u32 s{A}, s{A}, s{HW}\ns_cmp_lg_u32 s{A}, {4*CFG['wbs']+h_}\ns_cbranch_scc1 {sk}")
        if g_!='no': gate(g_)
        p(f"buffer_wbl2 sc1\ns_waitcnt vmcnt(0)\n{sk}:")
    if CFG['dgate']!='no' and not CFG['dw3']:
        gate(CFG['dgate'])
        touch(vTD,sWD,CFG['mpair'])
        STAMP('mg')
        if CFG['prof']: p("s_waitcnt vmcnt(0)"); STAMP('mw')
    p(f"""s_branch {en}
    {gu}:
    v_mul_u32_u24 v{vt}, 3072, v{vt}
    v_add_u32 v{aW_}, v{vt}, v{vt+1}
    s_mul_i32 s{A}, s{sG}, 12
    s_add_u32 s{A}, s{A}, s{sSLOT}
    s_lshl_b32 s{A}, s{A}, 5
    s_mul_i32 s{B}, s{HW}, {5*32*3072}
    s_add_u32 s{A}, s{A}, s{B}""")
    gate(CFG['gstart'])
    STAMP('mg')
    for s_ in range(5):
        for m_ in range(2):
            if 2*s_+m_>=CFG['mdep']: p(f"s_waitcnt vmcnt({CFG['mdep']-1})")
            p(f"buffer_load_dwordx4 {vr(D+8*s_+4*m_,4)}, v{aW_}, {S4((sWG,sWU)[m_])}, s{A} offen {CFG['mpol']}")
        if s_<4: p(f"s_add_u32 s{A}, s{A}, {32*3072}")
    p(f"s_mul_i32 s{B}, s{HW}, 12288\n{wr}:\nv_lshl_add_u32 v{vt}, v0, 4, s{B}")
    gate('DONE')
    p("s_waitcnt vmcnt(0)")
    for s_ in range(12): p(f"ds_write_b128 v{vt}, {vr(D+4*s_,4)} offset:{L_MW+s_*1024}")
    p(f"""s_lshl_b32 s{A}, s{HW}, 2
    s_add_u32 s{A}, s{A}, {F_MW}
    v_mov_b32 v{vt}, s{A}
    ds_write_b32 v{vt}, v{vt}
    s_waitcnt lgkmcnt(0)""")
    STAMP('mw')
    p(f"{en}:")
def top8(R,K2,K1,y,tt):
    def clean(chs):
        seq=[]
        for (x,y_,t_) in chs:
            seq.append([f"v_max_u32_dpp v{y_}, v{x}, v{x} row_shl:4 row_mask:0xf bank_mask:0x5",
                        f"v_min_u32_dpp v{y_}, v{x}, v{x} row_shr:4 row_mask:0xf bank_mask:0xa",
                        None,
                        f"v_mov_b32_dpp v{t_}, v{y_} quad_perm:[2,3,0,1] row_mask:0xf bank_mask:0xf",
                        f"v_med3_u32 v{y_}, v{y_}, v{t_}, v{K2}",
                        None,
                        f"v_mov_b32_dpp v{t_}, v{y_} quad_perm:[1,0,3,2] row_mask:0xf bank_mask:0xf",
                        f"v_med3_u32 v{x}, v{y_}, v{t_}, v{K1}"])
        n=len(chs)
        p(f"s_nop {2-n}")
        for i in range(8):
            if seq[0][i] is None: p(f"s_nop {2-n}")
            else:
                for c in seq: p(c[i])
                if i==0 and n==1: p("s_nop 1")
                elif i==0: p("s_nop 0")
    dp="row_mask:0xf bank_mask:0xf"
    p(f"v_max_u32_dpp v{R}, v{R+2}, v{R} row_half_mirror {dp}\nv_max_u32_dpp v{R+4}, v{R+6}, v{R+4} row_half_mirror {dp}")
    clean([(R,y,tt),(R+4,y+1,tt+1)])
    p(f"s_nop 1\nv_max_u32_dpp v{R}, v{R+4}, v{R} row_half_mirror {dp}")
    clean([(R,y,tt)])
    p(f"s_nop 1\nv_max_u32_dpp v{R}, v{R}, v{R} row_mirror {dp}")
    clean([(R,y,tt)])
    for msk,sw in ((0xa,16),(0xc,32)):
        p(f"""s_nop 1
        v_mov_b32_dpp v{R}, v{R} row_half_mirror row_mask:{hex(msk)} bank_mask:0xf
        v_mov_b32 v{tt}, v{R}
        s_nop 1
        v_permlane{sw}_swap_b32 v{R}, v{tt}
        s_nop 0
        v_max_u32 v{R}, v{R}, v{tt}""")
        clean([(R,y,tt)])
def moe():
    t=vT; A=sT+7; B=sT+8; C=sT+17; sTHR=sT+14
    R=12; K2=20; K1=21; aC=22; AW=108
    BL=160
    p(f"""s_cmp_ge_u32 s{sSLOT}, 17
    s_cbranch_scc1 L_plain
    v_lshrrev_b32 v{t}, 3, v0
    v_and_b32 v{t+1}, 7, v0
    v_lshlrev_b32 v{t+1}, 3, v{t+1}
    v_lshl_add_u32 v{aC}, v{t}, 7, v{t+1}
    s_mov_b32 s{B}, {CA}""")
    ld="\n".join(f"buffer_load_dwordx2 {vr(R+2*i,2)}, v{aC}, {S4(sWS)}, s{B} offen offset:{i*1024} sc1" for i in range(4))
    aMF=4; aMW=5
    def getw():
        lds_wait(AW-aMF,t+10 if False else AW,C,'eq',0,0)
        STAMP('mwr')
        for s_ in range(12):
            for rd in range(2): p(f"ds_read_b64_tr_b16 {vr(AW+4*s_+2*rd,2)}, v{AW-aMW} offset:{L_MW+s_*1024+rd*512}")
    p(f"""s_cmp_lg_u32 s{sWAVE}, 0
    s_cbranch_scc1 L_nocal
    {ld}
    L_nocal:
    v_bfe_i32 v{K2}, v0, 1, 1
    v_bfe_i32 v{K1}, v0, 0, 1
    v_not_b32 v{K2}, v{K2}
    v_not_b32 v{K1}, v{K1}
    s_lshl_b32 s{A}, s{sWAVE}, 2
    s_add_u32 s{A}, s{A}, {F_MW}
    v_mov_b32 v{AW-aMF}, s{A}
    s_mul_i32 s{A}, s{sWAVE}, 12288
    v_lshl_add_u32 v{AW-aMW}, v0, 3, s{A}
    v_and_b32 v{t}, 7, v0
    v_lshlrev_b32 v{t}, 2, v{t}
    v_add_u32 v{AW-6}, {L_TOP}, v{t}
    s_cmp_ge_u32 s{sSLOT}, 12
    s_cbranch_scc1 L_now""")
    getw()
    lp=p.lab("ca"); ok=p.lab("caok"); md=p.lab("cam")
    p(f"""L_now:
    s_cmp_lg_u32 s{sWAVE}, 0
    s_cbranch_scc1 L_topw
    s_mov_b32 s{C}, {SPIN}
    s_branch {md}
    {lp}:
    {ld}
    {md}:
    s_waitcnt vmcnt(0)
    v_xor_b32 v{t}, v{R+1}, v{R+3}
    v_xor_b32 v{t+1}, v{R+5}, v{R+7}
    v_xor_b32 v{R+1}, s{sTAG}, v{R+1}
    v_xor_b32 v{R+5}, s{sTAG}, v{R+5}
    v_or3_b32 v{t}, v{t}, v{t+1}, v{R+1}
    v_or_b32 v{t}, v{t}, v{R+5}
    v_cmp_ne_u32 vcc, 0, v{t}
    s_nop 0
    s_cbranch_vccz {ok}""")
    spin(C,lp,ok,CFG['casl'])
    p(f"s_branch {lp}\n{ok}:")
    STAMP('car')
    top8(R,K2,K1,t,t+2)
    p(f"ds_write_b32 v{AW-6}, v{R}\ns_branch L_top\nL_topw:\ns_waitcnt vmcnt(0)")
    lds_wait(AW-6,R,C,'eq',-1,0)
    p("L_top:")
    STAMP('top')
    TOK=t+1; aR=t+2
    p(f"""v_bfe_u32 v{TOK}, v{R}, 3, 11
    v_sub_u32 v{TOK}, 2047, v{TOK}
    v_lshrrev_b32 v{t}, 6, v{TOK}
    v_and_b32 v{aR}, 7, v{R}
    v_lshl_add_u32 v{aR}, v{t}, 3, v{aR}
    v_mul_u32_u24 v{aR}, 2560, v{aR}
    v_lshrrev_b32 v{t}, 4, v0
    v_readlane_b32 s{sTHR}, v{R}, 7
    s_cmp_ge_u32 s{sSLOT}, 12
    s_cbranch_scc1 L_down""")
    def deferred(tag):
        p(f"""v_cmp_gt_u32 vcc, s{sTHR}, v{KEY}
        s_nop 0
        s_and_b64 exec, vcc, s[{sCAND}:{sCAND+1}]
        s_cbranch_scc0 L_nd{tag}""")
        out_store()
        p(f"L_nd{tag}:\ns_mov_b64 exec, -1")
    p(f"""v_lshl_add_u32 v{aR}, v{t}, 4, v{aR}
    s_mul_i32 s{A}, s{sWAVE}, 320
    s_add_u32 s{A}, s{A}, {CAND}""")
    ld="\n".join(f"buffer_load_dwordx4 {vr(BL+4*i,4)}, v{aR}, {S4(sWS)}, s{A} offen offset:{i*64} sc1" for i in range(5))
    lp=p.lab("gl"); ok=p.lab("glok"); md=p.lab("glm"); nt=p.lab("noth")
    p(ld)
    p(f"""s_or_b32 s{B}, s{sSLOT}, s{sWAVE}
    s_cbranch_scc1 {nt}
    v_mov_b32 v{t+4}, s{sTHR}
    v_mov_b32 v{t+5}, s{sTAG}
    s_lshl_b32 s{B}, s{sG}, 7
    s_add_u32 s{B}, s{B}, {TH}
    v_mov_b32 v{t+6}, 0
    s_mov_b64 exec, 1
    buffer_store_dwordx2 v[{t+4}:{t+5}], v{t+6}, {S4(sWS)}, s{B} offen sc1
    s_mov_b64 exec, -1
    {nt}:
    s_lshl_b32 s{B}, s{sWAVE}, 11
    s_add_u32 s{B}, s{B}, {L_RED}
    v_lshl_add_u32 v{t+3}, v0, 4, s{B}
    s_mov_b32 s{C}, {SPIN}
    s_branch {md}
    {lp}:
    {ld}
    {md}:
    s_waitcnt vmcnt(0) lgkmcnt(0)
    v_max3_u32 v{t+4}, v{BL}, v{BL+2}, v{BL+4}
    v_max3_u32 v{t+5}, v{BL+6}, v{BL+8}, v{BL+10}
    v_max3_u32 v{t+4}, v{BL+12}, v{BL+14}, v{t+4}
    v_max3_u32 v{t+5}, v{BL+16}, v{BL+18}, v{t+5}
    v_max_u32 v{t+4}, v{t+4}, v{t+5}
    v_cmp_eq_u32 vcc, -1, v{t+4}
    s_nop 0
    {'s_branch' if 'nocand' in CFG['xp'] else 's_cbranch_vccz'} {ok}""")
    spin(C,lp,ok)
    p(f"s_branch {lp}\n{ok}:")
    STAMP('lr')
    G=20; U=24; X=28
    for s_ in range(5):
        for m_,a_ in ((0,G),(1,U)):
            p(f"v_mfma_f32_16x16x32_bf16 {vr(a_,4)}, {vr(AW+8*s_+4*m_,4)}, {vr(BL+4*s_,4)}, {vr(a_,4) if s_ else 0}")
    w0=p.lab("guw0")
    p(f"""s_cmp_eq_u32 s{sWAVE}, 0
    s_cbranch_scc1 {w0}
    s_nop 5
    ds_write_b128 v{t+3}, {vr(G,4)}
    ds_write_b128 v{t+3}, {vr(U,4)} offset:1024
    s_waitcnt lgkmcnt(0)
    s_barrier""")
    deferred('g1')
    END()
    p(f"""{w0}:
    s_mul_i32 s{A}, s{sG}, 12
    s_add_u32 s{A}, s{A}, s{sSLOT}
    s_lshl_b32 s{A}, s{A}, 8
    s_add_u32 s{A}, s{A}, {ACT}
    v_and_b32 v{t+4}, 7, v0
    v_lshlrev_b32 v{t+4}, 4, v{t+4}
    v_lshrrev_b32 v{t+5}, 5, v0
    v_lshl_add_u32 v{t+4}, v{t+5}, 7, v{t+4}
    v_bfe_u32 v{t+5}, v0, 4, 1
    v_lshl_add_u32 v{t+4}, v{t+5}, 3, v{t+4}
    s_barrier""")
    for w_ in range(1,4):
        for m_ in range(2): p(f"ds_read_b128 {vr(X+8*(w_-1)+4*m_,4)}, v{t+3} offset:{w_*2048+m_*1024}")
    p(f"s_mov_b32 s{B}, {hex(f2u(-math.log2(math.e)))}")
    for w_ in range(3):
        p(f"s_waitcnt lgkmcnt({4-2*w_})")
        for k in range(4): p(f"v_pk_add_f32 {vr(G+2*k,2)}, {vr(G+2*k,2)}, {vr(X+8*w_+2*k,2)}")
    p(f"""v_cvt_pk_bf16_f32 v{X}, v{G}, v{G+1}
    v_cvt_pk_bf16_f32 v{X+1}, v{G+2}, v{G+3}
    v_cvt_pk_bf16_f32 v{X+2}, v{U}, v{U+1}
    v_cvt_pk_bf16_f32 v{X+3}, v{U+2}, v{U+3}""")
    for k in range(4): p(f"v_lshlrev_b32 v{G+2*k}, 16, v{X+k}\nv_and_b32 v{G+2*k+1}, 0xffff0000, v{X+k}")
    for k in range(4): p(f"v_mul_f32 v{X+k}, s{B}, v{G+k}")
    for k in range(4): p(f"v_exp_f32 v{X+k}, v{X+k}")
    for k in range(4): p(f"v_add_f32 v{X+k}, 1.0, v{X+k}")
    for k in range(4): p(f"v_rcp_f32 v{X+k}, v{X+k}")
    for k in range(4): p(f"v_mul_f32 v{G+k}, v{G+k}, v{X+k}")
    p(f"v_cvt_pk_bf16_f32 v{X}, v{G}, v{G+1}\nv_cvt_pk_bf16_f32 v{X+1}, v{G+2}, v{G+3}")
    for k in range(2): p(f"v_lshlrev_b32 v{G+2*k}, 16, v{X+k}\nv_and_b32 v{G+2*k+1}, 0xffff0000, v{X+k}")
    p(f"""v_pk_mul_f32 {vr(G,2)}, {vr(G,2)}, {vr(U,2)}
    v_pk_mul_f32 {vr(G+2,2)}, {vr(G+2,2)}, {vr(U+2,2)}
    v_cvt_pk_bf16_f32 v{X}, v{G}, v{G+1}
    v_cvt_pk_bf16_f32 v{X+1}, v{G+2}, v{G+3}
    s_mov_b32 exec_lo, 0x00ff00ff
    s_mov_b32 exec_hi, 0x00ff00ff
    buffer_store_dwordx2 {vr(X,2)}, v{t+4}, {S4(sWS)}, s{A} offen sc1
    s_mov_b64 exec, -1""")
    STAMP('act')
    deferred('g0')
    END()
    HL=20; Y=24; X=28; SG=t+8; aO2=t+9
    p(f"""L_down:
    v_lshl_add_u32 v{aR}, v{t}, 3, v{aR}
    v_mul_u32_u24 v{aO2}, 1280, v{TOK}
    v_lshl_add_u32 v{aO2}, v{t}, 3, v{aO2}
    v_and_b32 v{t+4}, 7, v0
    v_lshlrev_b32 v{t+4}, 4, v{t+4}
    v_lshl_add_u32 v{t+4}, v{t}, 7, v{t+4}
    s_mul_i32 s{sT+1}, s{sG}, 5
    s_add_u32 s{sT+1}, s{sT+1}, s{sSLOT}
    s_sub_u32 s{sT+1}, s{sT+1}, 12
    s_lshl_b32 s{sT+1}, s{sT+1}, 5
    s_add_u32 s{sT+2}, s{sT+1}, {CAND}
    s_mul_i32 s{A}, s{sWAVE}, 6144
    s_add_u32 s{A}, s{A}, {ACT}
    s_add_u32 s{B}, s{A}, 4096""")
    ldh=f"buffer_load_dwordx2 {vr(HL,2)}, v{aR}, {S4(sWS)}, s{sT+2} offen sc1\nbuffer_load_dwordx2 {vr(HL+2,2)}, v{aR}, {S4(sWS)}, s{sT+2} offen offset:1280 sc1"
    p(ldh)
    deferred('d')
    p(f"""v_ashrrev_i32 v{SG}, 31, v{R}
    v_not_b32 v{SG}, v{SG}
    v_or_b32 v{SG}, 0x80000000, v{SG}
    v_xor_b32 v{SG}, v{SG}, v{R}
    v_and_b32 v{SG}, 0xffff0000, v{SG}
    v_mul_f32 v{SG}, {hex(f2u(-math.log2(math.e)))}, v{SG}
    v_exp_f32 v{SG}, v{SG}
    s_lshl_b32 s{C}, s{sWAVE}, 10
    v_add_f32 v{SG}, 1.0, v{SG}
    v_rcp_f32 v{SG}, v{SG}
    s_add_u32 s{C}, s{C}, {L_RED}
    v_lshl_add_u32 v{t+3}, v0, 4, s{C}""")
    bf16r(SG,SG)
    lp=p.lab("hl"); ok=p.lab("hlok"); md=p.lab("hlm")
    p(f"""s_mov_b32 s{C}, {SPIN}
    s_branch {md}
    {lp}:
    {ldh}
    {md}:
    s_waitcnt vmcnt(0)
    v_max_u32 v{t+5}, v{HL}, v{HL+2}
    v_cmp_eq_u32 vcc, -1, v{t+5}
    s_nop 0
    {'s_branch' if CFG['xp'] else 's_cbranch_vccz'} {ok}""")
    spin(C,lp,ok)
    p(f"s_branch {lp}\n{ok}:")
    getw()
    ld="\n".join([f"buffer_load_dwordx4 {vr(BL+4*i,4)}, v{t+4}, {S4(sWS)}, s{A if i<8 else B} offen offset:{(i%8)*512} sc1" for i in range(12)])
    lp=p.lab("al"); ok=p.lab("alok")
    p(f"""s_mov_b32 s{C}, {SPIN}
    {lp}:
    {ld}
    s_waitcnt vmcnt(8)
    v_max3_u32 v{t+5}, v{BL}, v{BL+2}, v{BL+4}
    v_max3_u32 v{t+6}, v{BL+6}, v{BL+8}, v{BL+10}
    v_max3_u32 v{t+5}, v{BL+12}, v{BL+14}, v{t+5}""")
    for i in range(4,12):
        if i%4==0: p(f"s_waitcnt vmcnt({8-i})")
        p(f"v_max3_u32 v{t+5+(i&1)}, v{BL+4*i}, v{BL+4*i+2}, v{t+5+(i&1)}")
    p(f"""v_max_u32 v{t+5}, v{t+5}, v{t+6}
    v_cmp_eq_u32 vcc, -1, v{t+5}
    s_waitcnt lgkmcnt(0)
    s_cbranch_vccz {ok}""")
    spin(C,lp,ok,CFG['acsl'])
    p(f"s_branch {lp}\n{ok}:")
    STAMP('ar')
    for s_ in range(12): p(f"v_mfma_f32_16x16x32_bf16 {vr(Y,4)}, {vr(AW+4*s_,4)}, {vr(BL+4*s_,4)}, {vr(Y,4) if s_ else 0}")
    w0=p.lab("dnw0")
    p(f"""s_cmp_eq_u32 s{sWAVE}, 0
    s_cbranch_scc1 {w0}
    s_nop 5
    ds_write_b128 v{t+3}, {vr(Y,4)}
    s_waitcnt lgkmcnt(0)
    s_barrier""")
    END()
    p(f"""{w0}:
    v_lshlrev_b32 v{X+12}, 16, v{HL}
    v_and_b32 v{X+13}, 0xffff0000, v{HL}
    v_lshlrev_b32 v{X+14}, 16, v{HL+1}
    v_and_b32 v{X+15}, 0xffff0000, v{HL+1}
    v_lshlrev_b32 v{X+16}, 16, v{HL+2}
    v_and_b32 v{X+17}, 0xffff0000, v{HL+2}
    v_lshlrev_b32 v{X+18}, 16, v{HL+3}
    v_and_b32 v{X+19}, 0xffff0000, v{HL+3}
    s_barrier""")
    for w_ in range(1,4): p(f"ds_read_b128 {vr(X+4*(w_-1),4)}, v{t+3} offset:{w_*1024}")
    for w_ in range(3):
        p(f"s_waitcnt lgkmcnt({2-w_})")
        for k in range(2): p(f"v_pk_add_f32 {vr(Y+2*k,2)}, {vr(Y+2*k,2)}, {vr(X+4*w_+2*k,2)}")
    def rnd():
        p(f"v_cvt_pk_bf16_f32 v{X}, v{Y}, v{Y+1}\nv_cvt_pk_bf16_f32 v{X+1}, v{Y+2}, v{Y+3}")
    def unp():
        for k in range(2): p(f"v_lshlrev_b32 v{Y+2*k}, 16, v{X+k}\nv_and_b32 v{Y+2*k+1}, 0xffff0000, v{X+k}")
    rnd(); unp()
    for k in range(4): p(f"v_mul_f32 v{Y+k}, v{SG}, v{Y+k}")
    rnd(); unp()
    for k in range(2): p(f"v_pk_add_f32 {vr(Y+2*k,2)}, {vr(Y+2*k,2)}, {vr(X+12+2*k,2)}")
    rnd(); unp()
    for k in range(2): p(f"v_pk_add_f32 {vr(Y+2*k,2)}, {vr(Y+2*k,2)}, {vr(X+16+2*k,2)}")
    rnd()
    p(f"""s_mov_b32 exec_lo, 0x00ff00ff
    s_mov_b32 exec_hi, 0x00ff00ff
    buffer_store_dwordx2 {vr(X,2)}, v{aO2}, {S4(sOUT)}, s{sT+1} offen sc1""")
    STAMP('fin')
    END()
    lp=p.lab("th"); ok=p.lab("thok")
    p(f"""L_plain:
    s_lshl_b32 s{B}, s{sG}, 7
    s_add_u32 s{B}, s{B}, {TH}
    v_mov_b32 v{t}, 0
    s_mov_b32 s{C}, {SPIN}
    {lp}:
    s_sleep 16
    buffer_load_dwordx2 v[{t+2}:{t+3}], v{t}, {S4(sWS)}, s{B} offen sc1
    s_waitcnt vmcnt(0)
    v_cmp_ne_u32 vcc, s{sTAG}, v{t+3}
    s_nop 0
    s_cbranch_vccz {ok}""")
    spin(C,lp,ok)
    p(f"""s_branch {lp}
    {ok}:
    v_readfirstlane_b32 s{sTHR}, v{t+2}
    s_nop 1""")
    deferred('p')
    STAMP('fin')

def build():
    prologue()
    steps=loader()
    helperA(steps)
    p("s_branch L_mw")
    helperB(steps)
    p("L_mw:")
    moe_weights()
    END()
    p("L_comp:")
    if CFG['prio']: p(f"s_setprio {CFG['prio']}")
    p("s_waitcnt lgkmcnt(0)")
    STAMP('start')
    prologue2(1)
    if CFG['cpf']: code_pf()
    srd(((sX,2621440),))
    if CFG['hclr']: assert CFG['clr']==0; CFG['clate']=9
    if CFG['clr']==0 and CFG['clate']==0: clears(0); clears(1)
    att_setup()
    if CFG['clr']==0 and CFG['clate']==1: clears(0); clears(1)
    gemm_setup()
    if CFG['clr']: clears(0)
    if CFG['clr']==0 and CFG['clate']==2: clears(0); clears(1)
    p("s_waitcnt lgkmcnt(0)")
    mktag()
    p(f"""    s_cmp_eq_u32 s{sLC}, 15
    s_cbranch_scc1 L_gS
    s_cmp_eq_u32 s{sTY}, 2
    s_cbranch_scc1 L_gV""")
    gemm_loop('T'); gemm_epi('T'); p("s_branch L_att")
    p("L_gS:"); idle_gemm(); p("s_branch L_att")
    p("L_gV:"); gemm_loop('V'); gemm_epi('V')
    p("L_att:")
    att_go()
    for w in range(4): att_variant(w)
    att_fin()
    wo_main()
    if CFG['stop']<=3:
        p(f"s_and_b64 exec, s[{sCAND}:{sCAND+1}], -1\ns_cbranch_scc0 L_noo2"); out_store(); p("L_noo2:")
    else: moe()
    END()
    att_cold()
    for c in COLD: p(c)
    p("L_exit:\ns_endpgm")
build()
errs=check(p.L)
hdr=f"""; generated by work/k/gen.py (own generator script)
; @launch grid=(256,1,1) block=(512,1,1) lds=163840
.amdgcn_target "amdgcn-amd-amdhsa--gfx950"
.text
.globl {NAME}_kernel
.p2align 8
.type {NAME}_kernel,@function
{NAME}_kernel:
"""
ftr=f""".section .rodata,"a"
.p2align 6
.amdhsa_kernel {NAME}_kernel
  .amdhsa_next_free_vgpr 256
  .amdhsa_next_free_sgpr 102
  .amdhsa_accum_offset 256
  .amdhsa_group_segment_fixed_size 0
  .amdhsa_kernarg_size 88
  .amdhsa_user_sgpr_count 2
  .amdhsa_user_sgpr_kernarg_segment_ptr 1
  .amdhsa_system_sgpr_workgroup_id_x 1
.end_amdhsa_kernel
"""
open(sys.argv[1],"w").write(hdr+p.text()+ftr)

import subprocess
r=subprocess.run(["clang","-x","assembler","-target","amdgcn-amd-amdhsa","-mcpu=gfx950",sys.argv[1],"-o",sys.argv[1]+".co"],capture_output=True,text=True)
if r.returncode: print(r.stderr[:3000]); sys.exit(1)
r=subprocess.run(["python3","cdna_unwritten_srd_check.py",sys.argv[1]+".co"],capture_output=True,text=True)
if r.returncode: print("SRDCHECK:",r.stdout[-3000:],r.stderr[-1000:])
r=subprocess.run("llvm-size -A "+sys.argv[1]+".co | grep text",shell=True,capture_output=True,text=True); print(r.stdout.strip())
if errs: sys.exit(1)
```

```python
import sys, math
from asmlib import *
NAME="sequential_preLN__sliding_block__moe_arch_mod__prompt"
CFG=dict(ahint=0, ptc='', chint=0, dtn=1, hll=1, xm=1, kqr=0, dasl=0, dth=0, odf=0, mrm=1, g2nd=('O1',10), smx=2, smd=0, hst=0, wgf='M', shf=1, gm='no', gr='G1', tlb=0, rld=0, al8=0, ldp='sc1', ldo='sc1', wsp=1, wla2=7, ogr2=(1,2,2,2,3), orem2=(0,1), wwe2=2, smw=(), smo=(3,6), mtr=(0,10), mth=0, wburst=0, mtg='RL', wts=99, wsplit=1, wnoa=0, hclr=0, cst=(3,3), hsent=0, hkv=0, hgate='G1', hrs=0, osent=1, ogr=(2,3,5,2,3,5), opoll='half', osl=(0,0), oini=10, orem=25, clate=2, oprb=0, odn=1, hstep=6, qpol='', apol='', cpol='', wb=(), wbs=31, ht=0, hpoll=0, hsl=1, wog2=0, hearly=1, stg=6, stb=0, ord='xw,xw,xw,xw,xw,xw,xw,xw,xw,xw', amp=None, wose=2, late1=1, sdef=(1,1,1,1), pt2=8, qpair2=0, nacc=8, sfirst=1, prio=0, smode='dot', sfill=(), acsl=0, casl=0, xp=(), dw3=0, wla=7, wwe=2, dgate='PS', dstart='O1', gstart='WE', mdep=4, ddep=12, qpair=0, mpair=0, wpair=0, xnt=0, wnt=0, tpol2='', wtw='no', mtw='w3', wothr1=4, mb=(6,6), mg=('WOD','PR','PR','O1'), mpf=0, mgate='b3', hsplit=0, cpf=1, npf=(0,)*10, wogs=5, clr=0, wot=(), wtpol='', seqs=None, xpol='nt', wpol='', tpol='', wopol='', mpol='', cal=None, opol='', st=['start','b0|hb0','gend|hb9','E1|hE1','st|halo|clr','fl|g2|wo','fseen|h2','kv','aend','ost'], pt=8, wothr=16, wogate=1, h2sl=1, noh2=0, nowo=0, wos=(0,0,0), sched=(1,2,1,1,1,1,1,0,0,0), dbg=0, stop=99, prof=0, rot=('0055','36094758','05162738'), force_slow=0, noclr=0, pre=2, ldst=0, nomfma=0, nohello=0)
for a in sys.argv[2:]:
    k,v=a.split("="); CFG[k]=eval(v)
QB,KB,VB,KH,VH,OB=[i*0x280000 for i in range(6)]
CAND=0xF00000
PS=0xFA0000
CA=0xFE0000
ACT=0xFE1000
HB=0x1000000
PROF=0x1300000
H1=0x1280000; H2=0x1281000; EPO=0x1282000; TH=0x1283000; AH=0x1284000; CH_=0x1285000
STP=0x1680000; STX=0x1780000
FO=0x1700000; OB2=0x1400000; FL=0x12A0000; FH=0x1740000
L_STG=0; L_KV=10240; L_WO=55296; L_MISC=157696; L_MW=0
L_CS=L_MISC
L_SA=L_MISC+512
L_SR=L_SA+1024
L_MODE=L_SR+512
L_FLG=L_MODE+64
F_G1,F_G2,F_H2,F_STG,F_SCP,F_DONE,F_WOR,F_MW=[L_FLG+4*i for i in (0,1,2,4,8,9,10,12)]
L_SWS=L_FLG+80; F_O1=L_FLG+44; F_WOD=L_FLG+64; F_PR=L_FLG+68; F_WO2=L_FLG+72; F_PS=L_FLG+76; F_FS=L_FLG+84; F_LD=L_FLG+88; F_X=L_FLG+96; F_M=L_FLG+112; F_HR=L_FLG+120
L_KEYS=L_FLG+128
L_CA=L_KEYS+256; L_TOP=L_CA+64
L_RED=L_WO
sX,sW,sWO,sWG,sWU,sWD,sOUT,sWS,sDBG,sWR=[4+4*i for i in range(10)]
sWAVE,sG,sSLOT,sRQ,sHH,sRB,sCT,sMODE,sEP,sTAG=range(44,54)
sT=54
sMI=39
sBK=3
sLO=76
sPROF=80
p=P()
COLD=[]
CALI=lambda: 's_memtime' if CFG['cal'][1]>20000 else 's_memrealtime'
def STAMP(name,w=0):
    if CFG['amp']:
        a=CFG['amp']
        if name=='entry': p(f"s_memrealtime s[{sPROF+8}:{sPROF+9}]")
        for k in (0,1):
            if name==a[k]:
                p(f"{'s_memrealtime' if a[2]=='r' else 's_memtime'} s[{sPROF+2*k}:{sPROF+2*k+1}]")
                if w: p("s_waitcnt lgkmcnt(0)")
    if CFG['cal'] and name in CFG['cal'][0].split('|'):
        p(f"{CALI()} s[{sPROF}:{sPROF+1}]")
        if w: p("s_waitcnt lgkmcnt(0)")
    i=[k for k,n in enumerate(CFG['st']) if name in n.split('|')]
    if CFG['prof'] and i:
        i=i[0]
        p(f"{'s_memrealtime' if CFG['prof']==2 else 's_memtime'} s[{sPROF+2*i}:{sPROF+2*i+1}]")
        if w: p("s_waitcnt lgkmcnt(0)")
def COUNT(name,cnt,full):
    i=[k for k,n in enumerate(CFG['st']) if name in n.split('|')]
    if CFG['prof'] and i:
        r=sPROF+2*i[0]
        p(f"s_waitcnt lgkmcnt(0)\ns_sub_u32 s{r}, {full}, s{cnt}\ns_mul_i32 s{r}, s{r}, 100\ns_add_u32 s{r}, s{r}, s{sPROF}")
def PROFDUMP():
    if not CFG['prof']: return
    p("s_waitcnt vmcnt(0) lgkmcnt(0)")
    p("s_mov_b64 exec, -1")
    for i in range(10): p(f"v_mov_b32 v{2+i}, s{sPROF+2*i}")
    p(f"""s_lshl_b32 s{sT}, s2, 3
    s_add_u32 s{sT}, s{sT}, s{sWAVE}
    s_lshl_b32 s{sT}, s{sT}, 6
    s_add_u32 s{sT}, s{sT}, {PROF}
    v_mov_b32 v1, 0
    s_mov_b64 exec, 1
    buffer_store_dwordx4 v[2:5], v1, s[{sWS}:{sWS+3}], s{sT} offen
    buffer_store_dwordx4 v[6:9], v1, s[{sWS}:{sWS+3}], s{sT} offen offset:16
    s_getpc_b64 s[{sT+2}:{sT+3}]
    v_mov_b32 v12, s{sT+2}
    v_mov_b32 v13, s{sT+3}
    buffer_store_dwordx4 v[10:13], v1, s[{sWS}:{sWS+3}], s{sT} offen offset:32""")
def END():
    PROFDUMP()
    if CFG['amp']:
        a=CFG['amp']
        lp=p.lab("amp"); ok=p.lab("ampok")
        p(f"""s_waitcnt vmcnt(0) lgkmcnt(0)
        s_cmp_eq_u32 s{sPROF+2}, 0
        s_cbranch_scc1 {ok}
        s_cmp_lg_u32 s{sWAVE}, {a[5] if len(a)>5 else 0}
        s_cbranch_scc1 {ok}""")
        if a[4]>=0: p(f"s_cmp_lg_u32 s2, {a[4]}\ns_cbranch_scc1 {ok}")
        p(f"""s_sub_u32 s{sPROF+6}, s{sPROF+2}, s{sPROF}
        s_mul_i32 s{sPROF+6}, s{sPROF+6}, {a[3]}
        s_lshr_b32 s{sPROF+6}, s{sPROF+6}, 4
        s_min_u32 s{sPROF+6}, s{sPROF+6}, 100000
        s_add_u32 s{sPROF+6}, s{sPROF+6}, 3000
        s_mov_b32 s{sPROF+4}, 100000
        {lp}:
        s_sleep 2
        s_memrealtime s[{sPROF+2}:{sPROF+3}]
        s_sub_u32 s{sPROF+4}, s{sPROF+4}, 1
        s_cbranch_scc1 {ok}
        s_waitcnt lgkmcnt(0)
        s_sub_u32 s{sPROF+2}, s{sPROF+2}, s{sPROF+8}
        s_cmp_lt_u32 s{sPROF+2}, s{sPROF+6}
        s_cbranch_scc1 {lp}
        {ok}:""")
    if CFG['cal']:
        lp=p.lab("cal"); ok=p.lab("calok")
        p(f"""s_waitcnt vmcnt(0) lgkmcnt(0)
        s_cmp_eq_u32 s{sPROF}, 0
        s_cbranch_scc1 {ok}
        s_cmp_ge_u32 s{sWAVE}, 4
        s_cbranch_scc1 {ok}
        s_mov_b32 s{sPROF+4}, 100000
        {lp}:
        s_sleep 2
        {CALI()} s[{sPROF+2}:{sPROF+3}]
        s_sub_u32 s{sPROF+4}, s{sPROF+4}, 1
        s_cbranch_scc1 {ok}
        s_waitcnt lgkmcnt(0)
        s_sub_u32 s{sPROF+2}, s{sPROF+2}, s{sPROF}
        s_cmp_lt_u32 s{sPROF+2}, {CFG['cal'][1]}
        s_cbranch_scc1 {lp}
        {ok}:""")
    p("s_endpgm")
S4=lambda r:f"s[{r}:{r+3}]"
SPIN=1<<18

def srd(lst):
    for r,n in lst: p(f"s_mov_b32 s{r+2}, {n}\ns_mov_b32 s{r+3}, 0x20000")
def prologue():
    STAMP('entry')
    p(f"""s_cmp_ge_u32 s2, 256
    s_cbranch_scc1 L_exit
    s_load_dwordx2 s[{sX}:{sX+1}], s[0:1], 0
    s_load_dwordx2 s[{sW}:{sW+1}], s[0:1], 8
    s_load_dwordx2 s[{sWS}:{sWS+1}], s[0:1], 80
    v_lshrrev_b32 v1, 6, v0
    v_and_b32 v0, 63, v0
    v_readfirstlane_b32 s{sWAVE}, v1
    s_and_b32 s{sG}, s2, 7
    s_lshr_b32 s{sSLOT}, s2, 3
    s_lshr_b32 s{sRQ}, s{sG}, 1
    s_and_b32 s{sHH}, s{sG}, 1
    s_and_b32 s{sRB}, s{sSLOT}, 3
    s_lshr_b32 s{sCT}, s{sSLOT}, 2
    s_lshl_b32 s{sBK}, s{sRQ}, 2
    s_add_u32 s{sBK}, s{sBK}, s{sRB}
    s_cmp_gt_u32 s{sCT}, 2
    s_subb_u32 s{sBK}, s{sBK}, 0
    s_and_b32 s{sBK}, s{sBK}, 15""")
    if CFG['cal']: p(f"s_mov_b32 s{sPROF}, 0")
    if CFG['amp']: p(f"s_mov_b32 s{sPROF+2}, 0")
    if CFG['prof']:
        for i in range(1,10): p(f"s_mov_b32 s{sPROF+2*i}, 0")
    p(f"""s_cmp_lt_u32 s{sWAVE}, 4
    s_cbranch_scc1 L_comp""")
def prologue2(comp=0):
    if comp:
        p(f"""s_mov_b32 s{sTAG}, {EPO}
        s_load_dword s{sEP}, s[{sWS}:{sWS+1}], s{sTAG}
        s_load_dwordx2 s[{sWR}:{sWR+1}], s[0:1], 32
        s_load_dwordx2 s[{sOUT}:{sOUT+1}], s[0:1], 64""")
        srd(((sWS,268435456),(sWR,1280),(sOUT,2621440)))
        p(f"""s_mov_b32 s{sLO}, -1
        s_mov_b32 s{sLO+1}, 0
        s_mov_b32 s{sLO+2}, 0xfffff
        s_mov_b32 s{sLO+3}, 0xfffff""")
        return
    p(f"""s_mov_b32 s{sTAG}, {EPO}
    s_load_dword s{sEP}, s[{sWS}:{sWS+1}], s{sTAG}
    s_load_dwordx2 s[{sWO}:{sWO+1}], s[0:1], 16
    s_load_dwordx2 s[{sWR}:{sWR+1}], s[0:1], 32
    s_load_dwordx2 s[{sWG}:{sWG+1}], s[0:1], 40
    s_load_dwordx2 s[{sWU}:{sWU+1}], s[0:1], 48
    s_load_dwordx2 s[{sWD}:{sWD+1}], s[0:1], 56
    s_load_dwordx2 s[{sOUT}:{sOUT+1}], s[0:1], 64""")
    srd(((sWS,268435456),(sWO,819200),(sWR,1280),(sWG,1966080),(sWU,1966080),(sWD,1966080),(sOUT,2621440)))
    p(f"""s_mov_b32 s{sLO}, -1
    s_mov_b32 s{sLO+1}, 0
    s_mov_b32 s{sLO+2}, 0xfffff
    s_mov_b32 s{sLO+3}, 0xfffff""")
def moe_role():
    A=sT+20
    if not CFG['mrm']: p(f"s_mov_b32 s{sMI}, s{sSLOT}"); return
    p(f"""s_lshr_b32 s{A}, s{sSLOT}, 3
    s_sub_u32 s{sMI}, s{sSLOT}, s{A}
    s_sub_u32 s{sMI}, s{sMI}, 1
    s_add_u32 s{A}, s{A}, 28
    s_and_b32 s{A+1}, s{sSLOT}, 7
    s_cselect_b32 s{sMI}, s{sMI}, s{A}""")
def mktag():
    p(f"""s_mul_i32 s{sTAG}, s{sEP}, 0x9e3779b1
    s_add_u32 s{sTAG}, s{sTAG}, 0x7f4a7c15
    s_and_b32 s{sTAG}, s{sTAG}, -16""")
def colbyte(dst, lc):
    t=sT+18
    p(f"""s_mul_i32 s{t}, s{lc}, 52
    s_lshr_b32 s{t}, s{t}, 8
    s_add_u32 s{t}, s{t}, s{sHH}
    s_mul_i32 s{t}, s{t}, 640
    s_lshl_b32 s{dst}, s{lc}, 7
    s_add_u32 s{dst}, s{dst}, s{t}""")

def loader():
    CA_=sT+1; CB_=sT+2; CH=sT+3; XO=sT+4; WO_=sT+5; LB=sT+6; A=sT+7; B=sT+8; OFF=sT+9; SEQ=sT+10
    vX=2; vW=6; vt=10
    p(f"""s_sub_u32 s{HW}, s{sWAVE}, 4
    s_lshl_b32 s{A}, s{sCT}, 1
    s_cmp_gt_u32 s{sCT}, 2
    s_subb_u32 s{A}, s{A}, 0
    s_cmp_lg_u32 s{sCT}, 2
    s_addc_u32 s{B}, s{A}, 0""")
    colbyte(CA_,A); colbyte(CB_,B)
    p(f"""v_lshrrev_b32 v{vt}, 3, v0
    v_mul_u32_u24 v{vX}, 1280, v{vt}
    v_lshrrev_b32 v{vt+1}, 4, v0
    v_and_b32 v{vt+2}, 7, v0
    v_xor_b32 v{vt+2}, v{vt+2}, v{vt+1}
    v_lshl_add_u32 v{vX}, v{vt+2}, 4, v{vX}
    v_xor_b32 v{vX+1}, 64, v{vX}
    v_add_u32 v{vX+1}, {10240-1024}, v{vX+1}
    v_add_u32 v{vX+2}, {2*(10240-1024)}, v{vX}
    v_add_u32 v{vX+3}, {2*(10240-1024)}, v{vX+1}
    v_lshlrev_b32 v{vt+2}, 2, v{vt+1}
    v_and_b32 v{vt+3}, 15, v0
    v_xor_b32 v{vt+2}, v{vt+2}, v{vt+3}
    v_cmp_lt_u32 vcc, 7, v{vt+2}
    v_mov_b32 v{vt+3}, s{CA_}
    v_mov_b32 v{vt+4}, s{CB_}
    v_cndmask_b32 v{vt+3}, v{vt+3}, v{vt+4}, vcc
    v_and_b32 v{vt+2}, 7, v{vt+2}
    v_lshl_add_u32 v{vt+3}, v{vt+2}, 4, v{vt+3}
    v_mul_u32_u24 v{vW}, 3840, v{vt+1}
    v_add_u32 v{vW}, v{vW}, v{vt+3}""")
    for i in range(1,4): p(f"v_add_u32 v{vW+i}, {i*(4*3840-1024)}, v{vW}")
    ta,tc,tg=CFG['rot']
    pk=lambda t: sum(int(v)<<(4*i) for i,v in enumerate(t))
    p(f"""s_and_b32 s{A}, s{sBK}, 3
    s_lshl_b32 s{A}, s{A}, 2
    s_lshr_b32 s{CH}, {pk(ta)}, s{A}
    s_and_b32 s{CH}, s{CH}, 15
    s_lshl_b32 s{A}, s{sCT}, 2
    s_lshr_b32 s{A}, {hex(pk(tc))}, s{A}
    s_and_b32 s{A}, s{A}, 15
    s_add_u32 s{CH}, s{CH}, s{A}
    s_lshr_b32 s{A}, s{sBK}, 2
    s_lshl_b32 s{A}, s{A}, 1
    s_add_u32 s{A}, s{A}, s{sHH}
    s_lshl_b32 s{A}, s{A}, 2
    s_lshr_b32 s{A}, {hex(pk(tg))}, s{A}
    s_and_b32 s{OFF}, s{A}, 15""")
    seqs=CFG['seqs']
    if seqs:
        n=len(seqs)
        p(f"""s_mul_i32 s{A}, s{CH}, {-(-2048//n)}
        s_lshr_b32 s{A}, s{A}, 11
        s_mul_i32 s{A}, s{A}, {n}
        s_sub_u32 s{CH}, s{CH}, s{A}""")
        for i,q in enumerate(seqs):
            assert sorted(q)==list("0123456789")
            if i: p(f"s_cmp_eq_u32 s{CH}, {i}\ns_cselect_b32 s{SEQ}, {hex(pk(q[:8]))}, s{SEQ}\ns_cselect_b32 s{SEQ+1}, {hex(pk(q[8:]))}, s{SEQ+1}")
            else: p(f"s_mov_b32 s{SEQ}, {hex(pk(q[:8]))}\ns_mov_b32 s{SEQ+1}, {hex(pk(q[8:]))}")
    else:
        p(f"""s_add_u32 s{CH}, s{CH}, s{OFF}
    s_mul_i32 s{A}, s{CH}, 205
    s_lshr_b32 s{A}, s{A}, 11
    s_mul_i32 s{A}, s{A}, 10
    s_sub_u32 s{CH}, s{CH}, s{A}""")
    p(f"""
    s_lshl_b32 s{A}, s{sBK}, 2
    s_add_u32 s{A}, s{A}, s{HW}
    s_mul_i32 s{XO}, s{A}, {32*1280}
    s_mul_i32 s{WO_}, s{HW}, {16*3840}
    s_lshl_b32 s{LB}, s{HW}, 12""")
    CHW=SEQ
    p(f"s_mov_b32 s{CHW}, s{CH}")
    nx=dict(x=0,w=0)
    def issue(order,lim):
        global OPS
        for k in order:
            c=nx[k]; nx[k]+=1; assert c<=min(9,lim)
            slot=(c%4)*32768; ch=CH if k=='x' else CHW
            if k=='x': p(f"""s_lshl_b32 s{A}, s{ch}, 7
                s_add_u32 m0, s{LB}, {slot}
                s_add_u32 s{A}, s{A}, s{XO}""")
            else: p(f"""s_mul_i32 s{A}, s{ch}, {64*3840}
                s_add_u32 m0, s{LB}, {slot+16384}
                s_add_u32 s{A}, s{A}, s{WO_}""")
            for i in range(4):
                if k=='x': p(f"buffer_load_dwordx4 v{vX+i}, {S4(sX)}, s{A} offen offset:{i*1024} {CFG['xpol'] if c<CFG['xnt'] else ''} lds")
                else: p(f"buffer_load_dwordx4 v{vW+i}, {S4(sW)}, s{A} offen offset:{i*1024} {'nt' if c<CFG['wnt'] else CFG['wpol']} lds")
            p(f"""s_add_u32 s{ch}, s{ch}, 1
            s_cmp_eq_u32 s{ch}, 10
            s_cselect_b32 s{ch}, 0, s{ch}""")
            OPS+=[c]*4
    ORD=CFG['ord'].split(',')
    srd(((sX,2621440),(sW,2457600)))
    p("s_waitcnt lgkmcnt(0)")
    STAMP('i0')
    for c in range(1):
        issue(ORD[0],3); STAMP('i%d'%(c+1))
        if c==0:
            prologue2()
            p(f"""v_cmp_lt_u32 vcc, 7, v0
            v_lshlrev_b32 v{vt}, 4, v0
            v_add_u32 v{vt}, {L_FLG}, v{vt}
            v_cndmask_b32 v{vt+2}, 0, -1, vcc
            v_cndmask_b32 v{vt+3}, 0, -1, vcc
            v_cndmask_b32 v{vt+4}, 0, -1, vcc
            v_cndmask_b32 v{vt+5}, 0, -1, vcc
            ds_write_b128 v{vt}, v[{vt+2}:{vt+5}]""")
            early()
    p("s_waitcnt lgkmcnt(0)")
    mktag()
    stats_setup()
    p(f"s_cmp_ge_u32 s{HW}, 2\ns_cbranch_scc1 L_helperB")
    nx0=dict(nx); ops0=list(OPS)
    def steps(hook,isB):
        global OPS
        nx.update(nx0); OPS=list(ops0)
        STAMP('i1s')
        issue(ORD[1],3)
        STAMP('i1e')
        if CFG['hclr']: hclear_setup(isB)
        if CFG['smw'] or CFG['smo']: sm_setup()
        for c in range(8):
            sd=CFG['sdef']
            if c==0 and -1 in sd:
                assert ORD[0][0]=='x'; p(f"s_waitcnt vmcnt({len(OPS)-4})")
                STAMP('x0')
                fill=stats(0)
                for k in range(4):
                    if sd[k]==-1: p(fill[k])
                if max(sd)==-1: stats_red()
            vmwait(c)
            p("s_barrier")
            STAMP('ld%d'%c)
            if c==0 and -1 not in sd: fill=stats(0)
            if c==CFG['stg'] and CFG['stb']: stats_get(); hook(100)
            if CFG['hclr']: hclear(c,isB)
            issue(ORD[2+c],c+3)
            if c==0: p("s_waitcnt lgkmcnt(0)")
            for k in range(4):
                if sd[k]==c: p(fill[k])
            if c==max(0,max(sd)):
                if max(sd)>=0: stats_red()
                stats_pub(); OPS.append('stw')
            if c==CFG['stg'] and not CFG['stb']: stats_get(); hook(100)
            hook(c)
            sm_touch(c,isB)
        assert nx==dict(x=10,w=10)
    return steps
aS=44; dS=64; sacc=60; sone=43; sDBL=sDBG; sSTP=sDBG+1
def stats_setup():
    vt=10
    tc=[int(x) for x in CFG['rot'][1]]
    assert not CFG['seqs'] and sorted(tc+[(tc[2]+1)%10,(tc[2]+2)%10])==list(range(10))
    p(f"""s_lshl_b32 s{sT+16}, s{HW}, 12
    v_bfe_u32 v{vt}, v0, 1, 3
    v_lshrrev_b32 v{vt+1}, 5, v0
    v_lshlrev_b32 v{vt+1}, 2, v{vt+1}
    v_xor_b32 v{vt}, v{vt}, v{vt+1}
    v_lshlrev_b32 v{vt}, 4, v{vt}
    v_and_b32 v{vt+1}, 31, v0
    v_lshl_add_u32 v{vt}, v{vt+1}, 7, v{vt}
    v_add_u32 v{aS}, s{sT+16}, v{vt}
    v_mov_b32 v{sone}, 0x3f803f80
    s_and_b32 s{sSTP}, s{sBK}, 12
    s_add_u32 s{sSTP}, s{sSTP}, s{sBK}
    s_lshl_b32 s{sT+16}, s{sHH}, 2
    s_add_u32 s{sSTP}, s{sSTP}, s{sT+16}
    s_lshl_b32 s{sSTP}, s{sSTP}, 14
    s_lshl_b32 s{sT+16}, s{HW}, 9
    s_add_u32 s{sSTP}, s{sSTP}, s{sT+16}
    s_add_u32 s{sSTP}, s{sSTP}, {STP}
    v_lshrrev_b32 v{vt}, 5, v0
    v_lshlrev_b32 v{vt}, 11, v{vt}
    v_lshl_add_u32 v{aS+4}, v{vt+1}, 4, v{vt}
    s_lshl_b32 s{sT+16}, s{sCT}, 11
    s_cmp_eq_u32 s{sCT}, 2
    s_cselect_b32 s{sT+16}, {STX-STP}, s{sT+16}
    v_lshl_add_u32 v{aS+5}, v{vt+1}, 4, s{sT+16}""")
    for i in range(1,4): p(f"v_xor_b32 v{aS+i}, {16*i}, v{aS}")
    for i in range(4): p(f"v_mov_b32 v{sacc+i}, 0")
    if CFG['smode'] in ('dotx','dotc'):
        for i in range(2*CFG['nacc']): p(f"v_mov_b32 v{102+i}, 0")
def stats(c):
    if 'nostats' in CFG['xp']: return ['s_nop 0']*4
    for i in range(4): p(f"ds_read_b128 {vr(dS+4*i,4)}, v{aS+i} offset:{c*32768}")
    L=[]
    for i in range(4):
        g=f"s_waitcnt lgkmcnt({3-i})"
        for j in range(4):
            r=dS+4*i+j
            u=80+2*(j&1)
            if CFG['smode']=='dotx':
                a=102+2*((4*i+j)%CFG['nacc']); g+=f"\nv_dot2_f32_bf16 v{a}, v{r}, v{sone}, v{a}\nv_dot2_f32_bf16 v{a+1}, v{r}, v{r}, v{a+1}"
            elif CFG['smode']=='dotc':
                a=102+2*((4*i+j)%CFG['nacc']); g+=f"\nv_dot2c_f32_bf16 v{a}, v{r}, v{sone}\nv_dot2c_f32_bf16 v{a+1}, v{r}, v{r}"
            elif CFG['smode']=='dot': g+=f"\nv_dot2_f32_bf16 v{sacc+(j&1)}, v{r}, v{sone}, v{sacc+(j&1)}\nv_dot2_f32_bf16 v{sacc+2+(j&1)}, v{r}, v{r}, v{sacc+2+(j&1)}"
            elif CFG['smode']=='valu': g+=f"\nv_lshlrev_b32 v{u}, 16, v{r}\nv_and_b32 v{u+1}, 0xffff0000, v{r}\nv_add_f32 v{sacc}, v{sacc}, v{u}\nv_fmac_f32 v{sacc+2}, v{u}, v{u}\nv_add_f32 v{sacc+1}, v{sacc+1}, v{u+1}\nv_fmac_f32 v{sacc+3}, v{u+1}, v{u+1}"
            elif CFG['smode']=='pk': g+=f"\nv_lshlrev_b32 v{u}, 16, v{r}\nv_and_b32 v{u+1}, 0xffff0000, v{r}\nv_pk_add_f32 v[{sacc}:{sacc+1}], v[{sacc}:{sacc+1}], v[{u}:{u+1}]\nv_pk_fma_f32 v[{sacc+2}:{sacc+3}], v[{u}:{u+1}], v[{u}:{u+1}], v[{sacc+2}:{sacc+3}]"
        L.append(g)
    return L
def stats_red():
    t=sacc
    p(f"""s_nop 1
    v_add_f32 v{t}, v{t}, v{t+1}
    v_add_f32 v{t+1}, v{t+2}, v{t+3}
    v_mov_b32 v{t+2}, s{sTAG}
    s_nop 0
    v_permlane32_swap_b32 v{t}, v{t+1}
    s_nop 0
    v_add_f32 v{t}, v{t}, v{t+1}
    v_mov_b32 v{t+1}, v{t}
    s_nop 1
    v_permlane32_swap_b32 v{t}, v{t+1}""")
def stats_pub():
    t=sacc
    p(f"""s_mov_b64 exec, s[{sLO}:{sLO+1}]
    buffer_store_dwordx4 {vr(t,4)}, v{aS+5}, {S4(sWS)}, s{sSTP} offen sc1
    s_mov_b64 exec, -1""")
def stats_ld():
    return "\n".join(f"s_add_u32 s{sSTP+1}, s{sSTP}, {4096*i}\nbuffer_load_dwordx4 {vr(dS+4*i,4)}, v{aS+4}, {S4(sWS)}, s{sSTP+1} offen sc1" for i in range(4))
def stats_get():
    p(stats_ld()); OPS.extend(['stp']*4)
def stats_fin(t,B):
    vmwait('stp')
    lp=p.lab("stl"); ok=p.lab("stok"); rt=p.lab("strt")
    p(f"""s_mov_b32 s{B}, {SPIN}
    {lp}:
    v_xor_b32 v{t}, v{dS+2}, v{dS+6}
    v_xor_b32 v{t+1}, v{dS+10}, v{dS+14}
    v_xor_b32 v{t+2}, s{sTAG}, v{dS+2}
    v_xor_b32 v{t+3}, s{sTAG}, v{dS+10}
    v_or3_b32 v{t}, v{t}, v{t+1}, v{t+2}
    v_or_b32 v{t}, v{t}, v{t+3}
    v_cmp_ne_u32 vcc, 0, v{t}
    v_add_f32 v{t+1}, v{dS}, v{dS+4}
    v_add_f32 v{t+2}, v{dS+1}, v{dS+5}
    s_cbranch_vccnz {rt}
    {ok}:""")
    n0=len(p.L)
    p(f"{rt}:"); spin(B,lp,ok,1); p(stats_ld()); p(f"s_waitcnt vmcnt(0)\ns_branch {lp}")
    COLD.append("\n".join(p.L[n0:])); del p.L[n0:]
    p(f"""v_add_f32 v{t+3}, v{dS+8}, v{dS+12}
    v_add_f32 v{t+4}, v{dS+9}, v{dS+13}
    v_add_f32 v{t+1}, v{t+1}, v{t+3}
    v_add_f32 v{t+2}, v{t+2}, v{t+4}
    s_nop 1
    v_permlane32_swap_b32 v{t+1}, v{t+2}
    s_nop 0
    v_add_f32 v{t+1}, v{t+1}, v{t+2}
    v_mul_f32 v{t+1}, {1/640!r}, v{t+1}
    v_mov_b32 v{t+2}, v{t+1}
    s_nop 1
    v_permlane32_swap_b32 v{t+1}, v{t+2}
    s_nop 0
    v_fma_f32 v{t+2}, -v{t+1}, v{t+1}, v{t+2}
    v_max_f32 v{t+2}, 0, v{t+2}""")
    bf16r(t+2,t+2)
    p(f"v_add_f32 v{t+2}, 0x3727c5ac, v{t+2}")
    bf16r(t+2,t+2)
    p(f"""v_sqrt_f32 v{t+2}, v{t+2}
    v_xor_b32 v{t+1}, 0x80000000, v{t+1}""")
    bf16r(t+2,t+2)
    p(f"""v_rcp_f32 v{t+5}, v{t+2}
    v_cvt_pk_bf16_f32 v{t+4}, v{t+1}, v{t+1}
    v_and_b32 v{t+3}, 31, v0
    s_lshl_b32 s{B}, s{HW}, 8
    s_add_u32 s{B}, s{B}, {L_SA}
    v_lshl_add_u32 v{t+1}, v{t+3}, 3, s{B}
    s_lshl_b32 s{B}, s{HW}, 7
    s_add_u32 s{B}, s{B}, {L_SR}
    v_lshl_add_u32 v{t+2}, v{t+3}, 2, s{B}
    ds_write_b64 v{t+1}, v[{t+4}:{t+5}]
    ds_write_b32 v{t+2}, v{t+5}""")
vPT=21; vDUM=39
HS=sT+12; HA=28
def early():
    A=sT+20; B=sT+21; vt=10
    moe_role()
    p(f"""s_lshl_b32 s{A}, s{sSLOT}, 2
    s_add_u32 s{A}, s{A}, s{HW}
    s_mul_i32 s{A}, s{A}, 60
    v_min_u32 v{vt}, 59, v0
    v_add_u32 v{vt}, s{A}, v{vt}
    v_mul_u32_u24 v{vt+1}, 6554, v{vt}
    v_lshrrev_b32 v{vt+1}, 20, v{vt+1}
    v_mul_u32_u24 v{vt+2}, 160, v{vt+1}
    v_sub_u32 v{vt}, v{vt}, v{vt+2}
    v_lshlrev_b32 v{vt}, 7, v{vt}
    v_cmp_gt_u32 vcc, 32, v{vt+1}
    v_and_b32 v{vt+2}, 1, v{vt+1}
    v_mul_u32_u24 v{vt+2}, 20480, v{vt+2}
    v_lshrrev_b32 v{vt+3}, 4, v{vt+1}
    v_mul_u32_u24 v{vt+4}, 10240, v{vt+3}
    s_mul_i32 s{A}, s{sRQ}, 40960
    v_add3_u32 v{vt+2}, v{vt+2}, v{vt}, s{A}
    v_sub_u32 v{vt+2}, v{vt+2}, v{vt+4}
    v_add_u32 v{vt+4}, 163840, v{vt+2}
    v_min_u32 v{vt+2}, v{vt+2}, v{vt+4}
    v_mul_u32_u24 v{vt+3}, {KB}, v{vt+3}
    v_bfe_u32 v{vt+4}, v{vt+1}, 1, 3
    v_mul_u32_u24 v{vt+4}, 163840, v{vt+4}
    v_add3_u32 v{vt+2}, v{vt+2}, v{vt+3}, v{vt+4}
    s_mul_i32 s{A}, s{sRQ}, 20480
    s_sub_u32 s{A}, s{A}, 5120
    v_add_u32 v{vt}, s{A}, v{vt}
    v_add_u32 v{vt+4}, 81920, v{vt}
    v_min_u32 v{vt}, v{vt}, v{vt+4}
    v_and_b32 v{vt+3}, 15, v{vt+1}
    v_mul_u32_u24 v{vt+3}, 81920, v{vt+3}
    s_mov_b32 s{A}, {VB}
    v_add3_u32 v{vt+3}, v{vt+3}, v{vt}, s{A}
    v_cndmask_b32 v{vt+2}, v{vt+3}, v{vt+2}, vcc
    s_mul_i32 s{A}, s{sHH}, {8*163840}
    v_add_u32 v{vPT}, s{A}, v{vt+2}
""")
    if CFG['ht']: p(f"""s_lshl_b32 s{A}, s{sSLOT}, 2
    s_add_u32 s{A}, s{A}, s{HW}
    s_mul_i32 s{B}, s{A}, 20
    v_min_u32 v{vt}, 19, v0
    v_add_u32 v{vt}, s{B}, v{vt}
    v_mul_u32_u24 v{vt+1}, 13108, v{vt}
    v_lshrrev_b32 v{vt+1}, 20, v{vt+1}
    v_mul_u32_u24 v{vt+2}, 80, v{vt+1}
    v_sub_u32 v{vt}, v{vt}, v{vt+2}
    v_lshlrev_b32 v{vt}, 7, v{vt}
    v_cmp_gt_u32 vcc, 16, v{vt+1}
    v_and_b32 v{vt+2}, 1, v{vt+1}
    v_mul_u32_u24 v{vt+2}, 10240, v{vt+2}
    v_lshrrev_b32 v{vt+3}, 1, v{vt+1}
    v_mul_u32_u24 v{vt+3}, 163840, v{vt+3}
    s_mul_i32 s{B}, s{sRQ}, 40960
    s_add_u32 s{B}, s{B}, {KH+20480}
    v_add3_u32 v{vt+2}, v{vt+2}, v{vt+3}, s{B}
    v_and_b32 v{vt+3}, 15, v{vt+1}
    v_mul_u32_u24 v{vt+3}, 81920, v{vt+3}
    s_mul_i32 s{B}, s{sRQ}, 20480
    s_add_u32 s{B}, s{B}, {VH+10240}
    v_add_u32 v{vt+3}, s{B}, v{vt+3}
    v_cndmask_b32 v{vt+2}, v{vt+3}, v{vt+2}, vcc
    s_mul_i32 s{B}, s{sHH}, {8*163840}
    v_add3_u32 v{vHT}, v{vt}, v{vt+2}, s{B}
    s_lshl_b32 s{B}, s{sG}, 7
    s_add_u32 s{A}, s{A}, s{B}
    s_lshl_b32 s{A}, s{A}, 7
    s_add_u32 s{A}, s{A}, {FH}
    v_mov_b32 v{vt}, s{A}
    v_cmp_lt_u32 vcc, 19, v0
    s_nop 1
    v_cndmask_b32 v{vHT}, v{vHT}, v{vt}, vcc""")
    nsm=sum(CFG['npf']); per=(100-5*nsm)//2
    if per>0:
        p(f"""s_mul_i32 s{A}, s{sG}, 5
        s_lshr_b32 s{A}, s{A}, 1
        s_mul_i32 s{A}, s{A}, 5
        s_lshr_b32 s{B}, s{HW}, 1
        s_mul_i32 s{B}, s{B}, {per}
        s_add_u32 s{A}, s{A}, s{B}
        s_add_u32 s{A}, s{A}, {5*nsm}
        v_min_u32 v{vt}, {per-1}, v0
        v_add_u32 v{vt}, s{A}, v{vt}
        v_subrev_u32 v{vt+1}, 100, v{vt}
        v_min_u32 v{vt}, v{vt}, v{vt+1}
        s_lshl_b32 s{A}, s{sSLOT}, 1
        s_and_b32 s{B}, s{HW}, 1
        s_add_u32 s{A}, s{A}, s{B}
        s_mul_i32 s{A}, s{A}, 12800
        v_lshl_add_u32 v{vTW}, v{vt}, 7, s{A}""")
    ge=p.lab("mtge"); jn=p.lab("mtj")
    p(f"""v_min_u32 v{vt}, 59, v0
    v_mul_u32_u24 v{vt+1}, 86, v{vt}
    v_lshrrev_b32 v{vt+1}, 8, v{vt+1}
    v_mul_u32_u24 v{vt+1}, {3072-384}, v{vt+1}
    v_lshl_add_u32 v{vt}, v{vt}, 7, v{vt+1}
    s_mul_i32 s{A}, s{sSLOT}, {20*3072}
    s_mul_i32 s{B}, s{sG}, 384
    s_add_u32 s{A}, s{A}, s{B}
    v_add_u32 v{vTM}, s{A}, v{vt}
    s_sub_u32 s{A}, s{sMI}, {0 if CFG['dw3'] else 17}
    s_lshl_b32 s{A}, s{A}, {1 if CFG['dw3'] else 2}
    s_add_u32 s{A}, s{A}, s{HW}
    s_mul_i32 s{A}, s{A}, {24 if CFG['dw3'] else 35 if CFG['dtn'] else 26}
    v_min_u32 v{vt}, {47 if CFG['dw3'] else 63 if CFG['dtn'] else 51}, v0
    v_lshrrev_b32 v{vt+1}, 1, v{vt}
    v_add_u32 v{vt+1}, s{A}, v{vt+1}
    v_min_u32 v{vt+1}, 1535, v{vt+1}
    v_mul_u32_u24 v{vt+1}, 1280, v{vt+1}
    v_and_b32 v{vt}, 1, v{vt}
    v_lshl_add_u32 v{vt}, v{vt}, 7, v{vt+1}
    s_mul_i32 s{B}, s{sG}, 160
    s_and_b32 s{B}, s{B}, -128
    v_add_u32 v{vTD}, s{B}, v{vt}""")
    if CFG['dtn']: p(f"""s_add_u32 s{A}, s{A}, 32
    v_min_u32 v{vt}, 5, v0
    v_lshrrev_b32 v{vt+1}, 1, v{vt}
    v_add_u32 v{vt+1}, s{A}, v{vt+1}
    v_min_u32 v{vt+1}, 1535, v{vt+1}
    v_mul_u32_u24 v{vt+1}, 1280, v{vt+1}
    v_and_b32 v{vt}, 1, v{vt}
    v_lshl_add_u32 v{vt}, v{vt}, 7, v{vt+1}
    v_add_u32 v{vTD2}, s{B}, v{vt}""")
vTD=25; vHT=26; vTD2=27
vTW=22; vTM=24
def touch(va,srd_,pair,pol=''):
    if pair:
        p(f"buffer_load_dword v{vDUM}, v{va}, {S4(srd_)}, 0 offen nt\nbuffer_load_dword v{vDUM}, v{va}, {S4(srd_)}, 0 offen offset:64")
        return 2
    p(f"buffer_load_dword v{vDUM}, v{va}, {S4(srd_)}, 0 offen {pol}")
    return 1
def wtouch(win,isB):
    n=0
    if CFG['wtw']==win and 100-5*sum(CFG['npf'])>0:
        n+=touch(vTW,sWO,CFG['wpair'])
    if CFG['mtw']==win:
        if not isB:
            u=p.lab("tu"); j=p.lab("tj")
            p(f"s_cmp_eq_u32 s{HW}, 0\ns_cbranch_scc0 {u}")
            touch(vTM,sWG,CFG['mpair'])
            p(f"s_branch {j}\n{u}:")
            n+=touch(vTM,sWU,CFG['mpair'])
            p(f"{j}:")
    return n
def qkv_touch():
    if CFG['pt']==99: return
    if CFG['ht']==1: OPS.extend(['pt']*touch(vHT,sWS,0,''))
    OPS.extend(['pt']*touch(vPT,sWS,CFG['qpair'],CFG['tpol']))
    if CFG['ht']==2: OPS.extend(['pt']*touch(vHT,sWS,0,''))
vH=16
OPS=[]
def vmwait(*tags):
    last=max(i for i,t in enumerate(OPS) if t in tags)
    n=len(OPS)-1-last; assert n<64
    p(f"s_waitcnt vmcnt({n})")
HW=sT
def spin(cnt,lp,ok,sleep=0):
    p(f"s_sub_u32 s{cnt}, s{cnt}, 1\ns_cbranch_scc1 {ok}")
    if sleep: p(f"s_sleep {sleep}")
def lds_wait(addr_v,tmp,cnt,cmp,val,sleep=1):
    lp=p.lab("lw"); ok=p.lab("lwok")
    p(f"""s_mov_b32 s{cnt}, {SPIN*4}
    {lp}:
    ds_read_b32 v{tmp}, v{addr_v}
    s_waitcnt lgkmcnt(0)
    v_cmp_{cmp}_u32 vcc, {val}, v{tmp}
    s_nop 0
    s_cbranch_vccz {ok}""")
    spin(cnt,lp,ok,sleep)
    p(f"s_branch {lp}\n{ok}:")
sHL,sHF,sHO,sPH,sHD,sT0=range(sT+1,sT+7)
def att_ids():
    p(f"""s_lshr_b32 s{sHL}, s{sSLOT}, 1
    s_and_b32 s{sHF}, s{sSLOT}, 1
    s_and_b32 s{sHO}, s{sHL}, 1
    s_lshr_b32 s{sPH}, s{sHL}, 1
    s_lshl_b32 s{sHD}, s{sHH}, 3
    s_add_u32 s{sPH}, s{sPH}, s{sHD}
    s_lshl_b32 s{sHD}, s{sHH}, 4
    s_add_u32 s{sHD}, s{sHD}, s{sHL}
    s_lshl_b32 s{sT0}, s{sRQ}, 1
    s_add_u32 s{sT0}, s{sT0}, s{sHF}
    s_lshl_b32 s{sT0}, s{sT0}, 3""")
def flag_addr(vd,vt,withq,A,B,C):
    p(f"""s_lshr_b32 s{A}, s{sHL}, 1
    s_mul_i32 s{A}, s{A}, 5
    s_lshl_b32 s{B}, s{sHO}, 1
    s_add_u32 s{A}, s{A}, s{B}
    s_add_u32 s{B}, s{A}, 2
    s_lshr_b32 s{A}, s{A}, 3
    s_lshr_b32 s{B}, s{B}, 3
    s_lshl_b32 s{B}, s{B}, 4
    s_or_b32 s{A}, s{A}, s{B}
    s_add_u32 s{B}, s{A}, 0x55
    s_lshl_b32 s{C}, s{B}, 8
    s_or_b32 s{A}, s{C}, s{A if withq else B}
    s_mul_i32 s{B}, s{sHL}, 20
    s_add_u32 s{C}, s{B}, 19
    s_lshr_b32 s{B}, s{B}, 6
    s_lshr_b32 s{C}, s{C}, 6
    s_lshl_b32 s{C}, s{C}, 4
    s_or_b32 s{B}, s{B}, s{C}
    s_add_u32 s{B}, s{B}, 0xaa
    s_lshl_b32 s{B}, s{B}, 16
    s_or_b32 s{A}, s{A}, s{B}
    v_and_b32 v{vt}, 60, v0
    v_min_u32 v{vt}, 20, v{vt}
    v_bfe_u32 v{vt}, s{A}, v{vt}, 4
    v_and_b32 v{vd}, 3, v0
    v_lshlrev_b32 v{vd}, 2, v{vd}
    v_lshl_add_u32 v{vd}, v{vt}, 7, v{vd}""")
def flag_poll(va,vt,soff,cnt,first=True,sleep=0):
    lp=p.lab("fp"); ok=p.lab("fpok");
    p(f"s_mov_b32 s{cnt}, {SPIN}")
    if not first:
        md=p.lab("fpm"); p(f"s_branch {md}")
    p(f"""{lp}:
    buffer_load_dword v{vt}, v{va}, {S4(sWS)}, s{soff} offen sc1""")
    if not first: p(f"{md}:")
    p(f"""s_waitcnt vmcnt(0)
    v_cmp_ne_u32 vcc, s{sTAG}, v{vt}
    s_nop 0
    s_cbranch_vccz {ok}""")
    spin(cnt,lp,ok,sleep)
    p(f"s_branch {lp}\n{ok}:")
def flag_poll2(va,vt,soff,cnt,n=2,gap=0):
    lp=p.lab("fq"); ok=p.lab("fqok")
    ld=lambda i: f"buffer_load_dword v{vt+i}, v{va}, {S4(sWS)}, s{soff} offen sc1"
    p(f"s_mov_b32 s{cnt}, {SPIN}")
    for i in range(n-1):
        p(ld(i))
        if gap: p(f"s_sleep {gap}")
    p(f"{lp}:")
    for i in range(n):
        p(f"""{ld((i+n-1)%n)}
        s_waitcnt vmcnt({n-1})
        v_cmp_ne_u32 vcc, s{sTAG}, v{vt+i}
        s_nop 0
        s_cbranch_vccz {ok}""")
    spin(cnt,lp,ok)
    p(f"s_branch {lp}\n{ok}:")
def kv_dma(aLin,aTl,sK,sV,sL,A,B,sHO=sHO):
    p(f"""s_mul_i32 s{A}, s{sHO}, 1536
    s_add_u32 s{A}, s{A}, s{sK}
    s_mov_b32 m0, s{sL}
    s_add_u32 s{B}, s{A}, 1536
    buffer_load_dwordx4 v{aLin}, {S4(sWS)}, s{A} offen {CFG['ldp']} lds
    buffer_load_dwordx4 v{aLin}, {S4(sWS)}, s{B} offen offset:1024 {CFG['ldp']} lds
    s_sub_u32 s{A}, s{sK}, 2048
    s_sub_u32 s{B}, s{sV}, 3072
    buffer_load_dwordx4 v{aTl}, {S4(sWS)}, s{A} offen offset:2048 {CFG['ldp']} lds
    buffer_load_dwordx4 v{aLin}, {S4(sWS)}, s{B} offen offset:3072 {CFG['ldp']} lds
    s_add_u32 m0, s{sL}, 4096
    s_add_u32 s{B}, s{sV}, 1024
    buffer_load_dwordx4 v{aLin}, {S4(sWS)}, s{B} offen {CFG['ldp']} lds
    s_mov_b64 exec, s[{sLO}:{sLO+1}]
    buffer_load_dwordx4 v{aLin}, {S4(sWS)}, s{B} offen offset:1024 {CFG['ldp']} lds
    s_mov_b64 exec, -1""")
def kv_addr(aLin,aTl,t):
    p(f"""v_lshlrev_b32 v{aLin}, 4, v0
    v_lshrrev_b32 v{t}, 5, v0
    v_mul_u32_u24 v{t}, {2560-512}, v{t}
    v_add3_u32 v{aTl}, v{aLin}, v{t}, s{sK1024}""")
sK1024=sT+21

def halo_cond(A,B):
    p(f"""s_lshr_b32 s{A}, 0x8ccc, s{sBK}
    s_cmp_gt_u32 s{sCT}, 2
    s_cselect_b32 s{A}, s{A}, 0
    s_and_b32 s{A}, s{A}, 1""")
def halo_flag(vt,A,B,C):
    sk=p.lab("nohalo")
    halo_cond(A,B)
    p(f"""s_cbranch_scc0 {sk}
    s_lshl_b32 s{A}, s{sCT}, 1
    s_add_u32 s{A}, s{A}, s{HW}
    s_sub_u32 s{A}, s{A}, 3
    s_lshl_b32 s{C}, s{sG}, 4
    s_add_u32 s{A}, s{A}, s{C}
    s_lshl_b32 s{A}, s{A}, 2
    s_add_u32 s{A}, s{A}, s{sRB}
    s_lshl_b32 s{A}, s{A}, 8
    s_add_u32 s{A}, s{A}, {FH}
    s_lshl_b32 s{B}, s{HW}, 2
    s_add_u32 s{B}, s{B}, {F_STG-8}
    v_mov_b32 v{vt}, s{B}
    v_lshlrev_b32 v{vt+2}, 7, v0
    v_mov_b32 v{vt+3}, s{sTAG}""")
    lds_wait(vt,vt+1,C,'gt',2,0)
    p(f"""s_mov_b64 exec, 3
    buffer_store_dword v{vt+3}, v{vt+2}, {S4(sWS)}, s{A} offen sc1
    s_mov_b64 exec, -1""")
    STAMP('halo')
    p(f"{sk}:")
def halo_copy(vt,A,B,C,mid):
    sk=p.lab("nohalo"); jn=p.lab("halo_j"); D=168; sD=sT+12; sFH=sT+13
    p(f"s_mov_b32 s{sFH}, 0")
    halo_cond(A,B)
    p(f"""s_cbranch_scc0 {sk}
    s_lshl_b32 s{A}, s{sCT}, 1
    s_add_u32 s{A}, s{A}, s{HW}
    s_sub_u32 s{A}, s{A}, 3
    s_cmp_lt_u32 s{A}, 10
    s_cselect_b32 s{sD}, 1, 0
    s_lshl_b32 s{sD}, 1280, s{sD}
    s_lshl_b32 s{C}, s{sG}, 4
    s_add_u32 s{A}, s{A}, s{C}
    s_lshl_b32 s{A}, s{A}, 2
    s_add_u32 s{A}, s{A}, s{sRB}
    s_lshl_b32 s{A}, s{A}, 8
    s_add_u32 s{sFH}, s{A}, {FH}
    s_lshl_b32 s{B}, s{HW}, 2
    s_add_u32 s{B}, s{B}, {F_STG-8}
    v_mov_b32 v{vt}, s{B}
    s_mul_i32 s{B}, s{HW}, {2*9216}
    s_add_u32 s{B}, s{B}, {L_WO-4*9216}
    v_lshl_add_u32 v{vt+2}, v0, 4, s{B}
    v_mov_b32 v{vt+3}, {F_HR}
    v_mov_b32 v{vt+4}, 1""")
    lds_wait(vt,vt+1,C,'gt',2,0)
    STAMP('hs1')
    for wr in range(2):
        for i in range(9): p(f"ds_read_b128 {vr(D+36*wr+4*i,4)}, v{vt+2} offset:{wr*9216+i*1024}")
        if wr==0: p("s_waitcnt lgkmcnt(6)")
    p(f"v_add_u32 v{vt}, 8, v{vt}")
    lds_wait(vt,vt+1,C,'gt',2,0)
    STAMP('hs2')
    for wr in range(2):
        for i in range(8): p(f"buffer_store_dwordx4 {vr(D+36*wr+4*i,4)}, v{D+36*wr+32+(i&3)}, {S4(sWS)}, {'s%d'%sD if i>>2 else 0} offen sc1")
    p(f"""s_mov_b64 exec, 1
    ds_add_u32 v{vt+3}, v{vt+4}
    s_mov_b64 exec, -1""")
    p(f"{sk}:")
    mid()
    p(f"""s_cmp_eq_u32 s{sFH}, 0
    s_cbranch_scc1 {jn}
    v_mov_b32 v{vt+2}, 0
    v_mov_b32 v{vt+4}, s{sTAG}
    s_waitcnt vmcnt(0)
    s_mov_b64 exec, 1
    buffer_store_dword v{vt+4}, v{vt+2}, {S4(sWS)}, s{sFH} offen sc1
    s_mov_b64 exec, -1""")
    STAMP('halo')
    lds_wait(vt+3,vt+1,C,'gt',2,0)
    p(f"{jn}:")
def own_setup(aF2,vt):
    A=sT+7; B=sT+8; sF,sK,sV,sL=range(sT+12,sT+16)
    flag_addr(aF2,vt,1,A,B,sT+18)
    p(f"""s_lshl_b32 s{sF}, s{sG}, 11
    s_lshl_b32 s{A}, s{sHF}, 4
    s_add_u32 s{sF}, s{sF}, s{A}
    s_add_u32 s{sF}, s{sF}, {FL}
    s_lshl_b32 s{A}, s{HW}, 1
    s_add_u32 s{A}, s{A}, s{sT0}
    s_mul_i32 s{sK}, s{A}, 2560
    s_mul_i32 s{sV}, s{A}, 1280
    s_mul_i32 s{A}, s{sPH}, {64*2560}
    s_add_u32 s{sK}, s{sK}, s{A}
    s_add_u32 s{sK}, s{sK}, {KB}
    s_mul_i32 s{A}, s{sHD}, 81920
    s_add_u32 s{sV}, s{sV}, s{A}
    s_add_u32 s{sV}, s{sV}, {VB}
    s_mul_i32 s{sL}, s{HW}, 5632
    s_add_u32 s{sL}, s{sL}, {L_KV+4*5632}""")
def own_kv(aLin,aTl,aF2,vt,sHO_):
    A=sT+7; B=sT+8; sF,sK,sV,sL=range(sT+12,sT+16); C=sT+18
    p(f"v_mov_b32 v{vt}, {F_FS}\nv_mov_b32 v{vt+1}, 1")
    flag_poll(aF2,vt+2,sF,C)
    p(f"ds_write_b32 v{vt}, v{vt+1}")
    STAMP('hfs')
    kv_dma(aLin,aTl,sK,sV,sL,A,B,sHO_)
    p(f"""s_mov_b64 exec, 1
    v_mov_b32 v{vt}, {F_G1}
    s_waitcnt vmcnt(0)
    ds_add_u32 v{vt}, v{vt+1}
    s_mov_b64 exec, -1""")
    STAMP('hg1')
def helperA(steps):
    A=sT+7; B=sT+8; vt=10
    def hook(c):
        if c==CFG['pt']:
            qkv_touch(); OPS.extend(['pt']*wtouch('w1',0))
        if c==CFG['wts']: OPS.extend(['pt']*touch(vTW,sWO,0))
    steps(hook,0)
    for c in (8,9):
        vmwait(c); p("s_barrier"); STAMP('ld%d'%c)
        if c==9: STAMP('hb9')
        hook(c)
    stats_fin(vt,B)
    p("s_barrier\ns_waitcnt lgkmcnt(0)\ns_barrier")
    STAMP('hE1')
    att_ids()
    aLin=6; aTl=7; aF=8; D=40
    p(f"s_mov_b32 s{sK1024}, 1024")
    kv_addr(aLin,aTl,vt)
    flag_addr(aF,vt,0,A,B,sT+17)
    if CFG['hkv']: own_setup(9,vt)
    p(f"v_mov_b32 v{vt+1}, 1")
    sF=sT+9; sK=sT+10; sV=sT+11; sL=sT+16; C=sT+17; sD=sT+12
    dn=p.lab("g2done"); h1=p.lab("rem"); jn=p.lab("remj")
    assert not (CFG['hsent'] or CFG['hkv'])
    p(f"""v_and_b32 v{vt+2}, 4, v{aF}
    v_and_b32 v{aF}, -128, v{aF}
    s_cmp_lg_u32 s{HW}, 0
    s_cbranch_scc1 {h1}
    v_add_u32 v{aF}, v{aF}, v{vt+2}
    s_mul_i32 s{A}, s{sHF}, 24
    s_lshl_b32 s{sF}, s{sG}, 11
    s_add_u32 s{sF}, s{sF}, s{A}
    s_add_u32 s{sF}, s{sF}, {FL}
    s_mov_b32 s{B}, 0
    s_branch {jn}
    {h1}:
    v_lshlrev_b32 v{aF}, 3, v{aF}
    s_lshl_b32 s{A}, s{sHF}, 2
    s_add_u32 s{A}, s{A}, s{sG}
    s_sub_u32 s{A}, s{A}, 2
    s_and_b32 s{A}, s{A}, 7
    s_lshl_b32 s{sF}, s{A}, 14
    s_mul_i32 s{A}, s{sHF}, -768
    s_add_u32 s{sF}, s{sF}, s{A}
    s_add_u32 s{sF}, s{sF}, {FH+768}
    s_mov_b32 s{B}, {KH-KB}
    {jn}:
    s_lshl_b32 s{A}, s{HW}, 2
    s_sub_u32 s{sK}, -2, s{A}
    s_cmp_eq_u32 s{sHF}, 0
    s_cselect_b32 s{A}, s{sK}, s{A}
    s_mul_i32 s{sD}, s{sHF}, 5120
    s_sub_u32 s{sD}, s{sD}, 2560
    s_add_u32 s{A}, s{A}, s{sT0}
    s_mul_i32 s{sK}, s{A}, 2560
    s_mul_i32 s{sV}, s{A}, 1280
    s_mul_i32 s{A}, s{sPH}, {64*2560}
    s_add_u32 s{sK}, s{sK}, s{A}
    s_add_u32 s{sK}, s{sK}, s{B}
    s_add_u32 s{sK}, s{sK}, {KB}
    s_mul_i32 s{A}, s{sHD}, 81920
    s_add_u32 s{sV}, s{sV}, s{A}
    s_add_u32 s{sV}, s{sV}, s{B}
    s_add_u32 s{sV}, s{sV}, {VB}
    s_mul_i32 s{sL}, s{HW}, {-2*5632}
    s_add_u32 s{sL}, s{sL}, {L_KV+3*5632}""")
    p(f"s_cmp_eq_u32 s{sT0}, 0\ns_cbranch_scc1 {dn}")
    def both():
        kv_dma(aLin,aTl,sK,sV,sL,A,B)
        p(f"""s_add_u32 s{sK}, s{sK}, s{sD}
        s_add_u32 s{sK}, s{sK}, s{sD}
        s_add_u32 s{sV}, s{sV}, s{sD}
        s_sub_u32 s{sL}, s{sL}, 5632""")
        kv_dma(aLin,aTl,sK,sV,sL,A,B)
    GT=dict(G1=(F_G1,4),FS=(F_FS,1),FS4=(F_FS,4),M=(F_M,1))
    if CFG['gm']!='no' or CFG['gr']!='no':
        g0=p.lab("gate0"); g1=p.lab("gate1")
        p(f"s_cmp_lg_u32 s{HW}, 0\ns_cbranch_scc1 {g0}")
        if CFG['gm']!='no': p(f"v_mov_b32 v{vt}, {GT[CFG['gm']][0]}"); lds_wait(vt,vt+5,C,'gt',GT[CFG['gm']][1],0)
        p(f"s_branch {g1}\n{g0}:")
        if CFG['gr']!='no': p(f"v_mov_b32 v{vt}, {GT[CFG['gr']][0]}"); lds_wait(vt,vt+5,C,'gt',GT[CFG['gr']][1],0)
        p(f"{g1}:")
    if CFG['hpoll']: flag_poll2(aF,vt+5,sF,C,CFG['hpoll'],CFG['hsl'])
    else: flag_poll(aF,vt+5,sF,C,sleep=CFG['hsl'])
    STAMP('hf')
    both()
    if CFG['mtw'] in ('RI','MI'):
        nt_=p.lab("nori"); d2=p.lab("g2d")
        p(f"s_cmp_eq_u32 s{HW}, {int(CFG['mtw']=='RI')}\ns_cbranch_scc0 {nt_}")
        touch(vTM,sWG,0); touch(vTM,sWU,0)
        p(f"s_waitcnt vmcnt(2)\ns_branch {d2}\n{dn}:\ns_cmp_eq_u32 s{HW}, {int(CFG['mtw']=='RI')}\ns_cbranch_scc0 {d2}")
        touch(vTM,sWG,0); touch(vTM,sWU,0)
        p(f"s_branch {d2}\n{nt_}:"); dn=d2
    p(f"""s_waitcnt vmcnt(0)
    {dn}:
    s_lshl_b32 s{A}, s{HW}, 2
    s_add_u32 s{A}, s{A}, {F_M}
    v_mov_b32 v{vt}, {F_G2}
    v_mov_b32 v{vt+2}, s{A}
    s_mov_b64 exec, 1
    ds_write_b32 v{vt+2}, v{vt+1}
    ds_add_u32 v{vt}, v{vt+1}
    s_mov_b64 exec, -1""")
    STAMP('g2')
    if CFG['mtw']=='sm':
        u=p.lab("smu"); j=p.lab("smj")
        def run(r,n,f):
            for i in range(n):
                if CFG['smx']==2: p(f"s_load_dwordx2 s[100:101], s[{r}:{r+1}], s{A} offset:{f(i)+60}")
                else: p(f"s_load_dword s100, s[{r}:{r+1}], s{A} offset:{f(i)}")
        p(f"""s_mul_i32 s{A}, s{sSLOT}, {20*3072}
        s_mul_i32 s{B}, s{sG}, 384
        s_add_u32 s{A}, s{A}, s{B}
        s_cmp_eq_u32 s{HW}, 0
        s_cbranch_scc0 {u}""")
        run(sWG,60,lambda i:(i//3)*3072+(i%3)*128)
        p(f"s_branch {j}\n{u}:")
        run(sWU,60,lambda i:(i//3)*3072+(i%3)*128)
        p(f"{j}:")
        if CFG['smd']:
            p(f"""s_lshl_b32 s{A}, s{sSLOT}, 1
            s_add_u32 s{A}, s{A}, s{HW}
            s_mul_i32 s{A}, s{A}, {24*1280}
            s_mul_i32 s{B}, s{sG}, 160
            s_and_b32 s{B}, s{B}, -128
            s_add_u32 s{A}, s{A}, s{B}""")
            run(sWD,48,lambda i:(i//2)*1280+(i%2)*128)
        STAMP('mt')
        if CFG['prof'] and any('mt2' in x for x in CFG['st']): p("s_waitcnt lgkmcnt(0)"); STAMP('mt2')
    if 'w3' in (CFG['wtw'],CFG['mtw']):
        fa=dict(G1=(F_G1,4),WOR=(F_WOR,2),WOD=(F_WOD,2),WO2=(F_WO2,2),DONE=(F_DONE,4),PR=(F_PR,4),LD=(F_LD,1),RL=(F_H2,4))[CFG['mtg']]
        p(f"v_mov_b32 v{vt}, {fa[0]}")
        if CFG['mth']:
            nt_=p.lab("nomt")
            p(f"s_cmp_eq_u32 s{sHF}, 0\ns_cbranch_scc1 {nt_}")
        lds_wait(vt,vt+5,C,'gt',fa[1],1)
        wtouch('w3',0)
        if CFG['mth']:
            p(f"v_subrev_u32 v{vTM}, {20*3072}, v{vTM}")
            if CFG['mth']==2: p("s_waitcnt vmcnt(0)")
            wtouch('w3',0)
            p(f"{nt_}:")
        if CFG['dw3']: touch(vTD,sWD,CFG['mpair'])
        STAMP('mt')
        if CFG['prof'] and any('mt2' in x for x in CFG['st']): p("s_waitcnt vmcnt(0)"); STAMP('mt2')

def tr_addr(a0,t):
    tab=[[0,8],[4,12],[16,36],[20,28],[24,32]]
    pk=[sum((tab[u][rd]//4)<<(4*u) for u in range(5)) for rd in range(2)]
    A=sT+7; B=sT+8
    p(f"""s_mov_b32 s{A}, {pk[0]}
    s_mov_b32 s{B}, {pk[1]}
    v_bfe_u32 v{t}, v0, 2, 2
    v_mul_u32_u24 v{t}, 160, v{t}
    v_and_b32 v{t+1}, 3, v0
    v_mad_u32_u24 v{t}, v{t+1}, 40, v{t}
    v_lshrrev_b32 v{t+1}, 4, v0""")
    for s_ in range(5):
        p(f"""v_add_u32 v{t+2}, {4*s_}, v{t+1}
        v_mul_u32_u24 v{t+4}, 52, v{t+2}
        v_lshrrev_b32 v{t+4}, 8, v{t+4}
        v_mul_u32_u24 v{t+5}, 5, v{t+4}
        v_sub_u32 v{t+2}, v{t+2}, v{t+5}
        v_lshlrev_b32 v{t+2}, 2, v{t+2}
        v_mul_u32_u24 v{t+4}, 10, v{t+4}""")
        for rd in range(2):
            p(f"""v_bfe_u32 v{t+3}, s{(A,B)[rd]}, v{t+2}, 4
            v_add_u32 v{t+3}, v{t+3}, v{t+4}
            v_mul_u32_u24 v{t+3}, 640, v{t+3}
            v_add_u32 v{a0+2*s_+rd}, v{t+3}, v{t}""")
sBLK,sJ=sT+9,sT+10
def wo_ids():
    p(f"""s_lshr_b32 s{sBLK}, s{sSLOT}, 3
    s_lshl_b32 s{sJ}, s{sG}, 2
    s_add_u32 s{sBLK}, s{sBLK}, s{sJ}
    s_and_b32 s{sJ}, s{sSLOT}, 7""")
def clr_ids(A,B,C,D_):
    p(f"""s_lshr_b32 s{C}, s{sSLOT}, 3
    s_lshl_b32 s{B}, s{sG}, 2
    s_add_u32 s{C}, s{C}, s{B}
    s_lshl_b32 s{C}, s{C}, 3
    s_and_b32 s{B}, s{sSLOT}, 7
    s_add_u32 s{D_}, s{C}, s{B}
    s_lshr_b32 s{A}, s{D_}, 1
    s_mul_i32 s{A}, s{A}, 20480
    s_and_b32 s{B}, s{B}, 1
    s_mul_i32 s{B}, s{B}, 5120
    s_add_u32 s{A}, s{A}, s{B}
    s_add_u32 s{A}, s{A}, {OB}
    s_mul_i32 s{B}, s{sHH}, 10240
    s_add_u32 s{C}, s{A}, 10240
    s_add_u32 s{A}, s{A}, s{B}
    s_sub_u32 s{C}, s{C}, s{B}
    s_lshl_b32 s{D_}, s{D_}, 10
    s_add_u32 s{D_}, s{D_}, {PS}""")
def clears(part):
    A=sT+13; B=sT+14; C=sT+15; D_=sT+16; D=12; aL=16
    if part==0:
        clr_ids(A,B,C,D_)
        p(f"v_lshlrev_b32 v{aL}, 4, v0")
        for r in range(4): p(f"v_mov_b32 v{D+r}, -1")
        return
    st4=lambda so,off,sc: f"buffer_store_dwordx4 v[{D}:{D+3}], v{aL}, {S4(sWS)}, s{so} offen offset:{off} {sc}"
    w2=p.lab("clw2"); w3=p.lab("clw3"); dn=p.lab("cldn")
    if CFG['hsent']:
        H_=sT+17; nh=p.lab("clnh")
        p(f"""s_cmp_eq_u32 s{sWAVE}, 3
        s_cbranch_scc1 {nh}
        s_lshl_b32 s{B}, s{sWAVE}, 8
        s_add_u32 s{B}, s{B}, s2
        s_sub_u32 s{H_}, s{B}, 384
        s_cselect_b32 s{H_}, s{B}, s{H_}
        s_cselect_b32 s{H_+1}, 3, 2
        s_cselect_b32 s{H_+2}, 0, {VH+10240-KH-20480}
        s_cselect_b32 s{H_+3}, 1, 0
        s_lshr_b32 s{B}, s{H_}, s{H_+1}
        s_lshl_b32 s{H_+1}, s{B}, s{H_+1}
        s_sub_u32 s{H_}, s{H_}, s{H_+1}
        s_mul_i32 s{H_}, s{H_}, 2560
        s_add_u32 s{H_}, s{H_}, s{H_+2}
        s_mul_i32 s{H_+1}, s{B}, 171
        s_lshr_b32 s{H_+1}, s{H_+1}, 9
        s_add_u32 s{B}, s{B}, s{H_+1}
        s_mul_i32 s{B}, s{B}, 20480
        s_lshl_b32 s{B}, s{B}, s{H_+3}
        s_add_u32 s{H_}, s{H_}, s{B}
        s_add_u32 s{H_}, s{H_}, {KH+20480}""")
        for o in (0,1024,1536): p(st4(H_,o,"sc1"))
        p(f"{nh}:")
    p(f"""s_cmp_ge_u32 s{sWAVE}, 2
    s_cbranch_scc1 {w2}
    s_mul_i32 s{B}, s{sWAVE}, 2560
    s_add_u32 s{A}, s{A}, s{B}""")
    for o in (0,1024,1536): p(st4(A,o,CFG['cpol']))
    p(f"""s_branch {dn}
    {w2}:
    s_cmp_eq_u32 s{sWAVE}, 3
    s_cbranch_scc1 {w3}
    s_mul_i32 s{C}, s2, 2560
    s_add_u32 s{C}, s{C}, {CAND}""")
    if 'c' in CFG['ptc']: p(f"v_lshlrev_b32 v228, 7, v0\ns_mov_b64 exec, {0x3ff if 'l' in CFG['ptc'] else 0xfffff}\nbuffer_load_dword v229, v228, {S4(sWS)}, s{C} offen\ns_mov_b64 exec, -1")
    for o in (0,1024,1536): p(st4(C,o,"sc1"))
    p(f"""s_branch {dn}
    {w3}:""")
    if CFG['osent']:
        if 'o' in CFG['ptc']: p(f"v_lshlrev_b32 v228, 7, v0\ns_mov_b32 exec_hi, 0xff\nbuffer_load_dword v229, v228, {S4(sWS)}, s{C} offen\ns_mov_b64 exec, -1")
        for o in range(4): p(st4(C,o*1024,"sc1"))
        p(f"s_add_u32 s{C}, s{C}, 4096"); p(st4(C,0,"sc1"))
    p(f"""s_cmp_ge_u32 s2, 24
    s_cbranch_scc1 {dn}
    s_lshl_b32 s{C}, s2, 10
    s_add_u32 s{C}, s{C}, {ACT}""")
    if 'a' in CFG['ptc']: p(f"v_lshlrev_b32 v228, 7, v0\ns_mov_b64 exec, 0xff\nbuffer_load_dword v229, v228, {S4(sWS)}, s{C} offen\ns_mov_b64 exec, -1")
    p(st4(C,0,"sc1"))
    p(f"{dn}:")
cU=sT+13; vC=84
def hclear_setup(isB):
    A=sT+15; B=sT+16; C=sT+17; D_=sT+18; H_=sT+17
    clr_ids(A,B,C,D_)
    if isB: p(f"""s_mul_i32 s{B}, s2, 2560
        s_add_u32 s{B}, s{B}, {CAND}
        s_add_u32 s{A}, s{C}, 2560
        s_cmp_eq_u32 s{HW}, 2
        s_cselect_b32 s{cU+1}, s{B}, s{A}
        s_mov_b32 s{cU}, s{C}""")
    else: p(f"""s_mul_i32 s{B}, s{HW}, 2560
        s_add_u32 s{cU+1}, s{A}, s{B}""")
    p(f"""s_lshl_b32 s{B}, s{HW}, 8
    s_add_u32 s{B}, s{B}, s2
    s_sub_u32 s{H_}, s{B}, 384
    s_cselect_b32 s{H_}, s{B}, s{H_}
    s_cselect_b32 s{H_+1}, 3, 2
    s_cselect_b32 s{H_+2}, 0, {VH+10240-KH-20480}
    s_cselect_b32 s{H_+3}, 1, 0
    s_lshr_b32 s{B}, s{H_}, s{H_+1}
    s_lshl_b32 s{H_+1}, s{B}, s{H_+1}
    s_sub_u32 s{H_}, s{H_}, s{H_+1}
    s_mul_i32 s{H_}, s{H_}, 2560
    s_add_u32 s{H_}, s{H_}, s{H_+2}
    s_mul_i32 s{H_+1}, s{B}, 171
    s_lshr_b32 s{H_+1}, s{H_+1}, 9
    s_add_u32 s{B}, s{B}, s{H_+1}
    s_mul_i32 s{B}, s{B}, 20480
    s_lshl_b32 s{B}, s{B}, s{H_+3}
    s_add_u32 s{H_}, s{H_}, s{B}
    s_add_u32 s{H_}, s{H_}, {KH+20480}""")
    if isB: p(f"""s_cmp_eq_u32 s{HW}, 2
        s_cselect_b32 s{cU}, s{H_}, s{cU}
        s_cselect_b32 s{cU+3}, 256, s2
        s_lshl_b32 s{cU+2}, s2, 10
        s_cmp_lt_u32 s{cU+3}, 24
        s_cselect_b32 s{H_}, 0, {STX+0x20000-ACT}
        s_add_u32 s{cU+2}, s{cU+2}, s{H_}
        s_add_u32 s{cU+2}, s{cU+2}, {ACT}""")
    else: p(f"""s_mov_b32 s{cU}, s{H_}
        s_getreg_b32 s{A}, hwreg(HW_REG_XCC_ID, 0, 4)
        s_or_b32 s{A}, s{A}, s{sTAG}
        v_mov_b32 v{vC+5}, s{A}
        s_lshl_b32 s{cU+2}, s2, 2
        s_add_u32 s{cU+2}, s{cU+2}, {H1}""")
    p(f"v_lshlrev_b32 v{vC+4}, 4, v0")
    for r in range(4): p(f"v_mov_b32 v{vC+r}, -1")
def hclear(c,isB):
    st=lambda so,off,sc: (p(f"buffer_store_dwordx4 v[{vC}:{vC+3}], v{vC+4}, {S4(sWS)}, s{so} offen offset:{off} {sc}"),OPS.append('clr'))
    ks=[k for k in range(2) if CFG['cst'][k]==c and (CFG['hsent'] or k or isB)]
    pol=lambda k: "sc1" if isB or k==0 else CFG['cpol']
    for k in ks: st(cU+k,0,pol(k)); st(cU+k,1024,pol(k))
    if ks: p(f"s_mov_b64 exec, s[{sLO}:{sLO+1}]")
    for k in ks: st(cU+k,2048,pol(k))
    if ks: p("s_mov_b64 exec, -1")
    if isB and c==CFG['cst'][1]:
        sk=p.lab("noact")
        p(f"s_cmp_lt_u32 s{cU+3}, 24\ns_cselect_b64 exec, -1, 1"); st(cU+2,0,"sc1"); p("s_mov_b64 exec, -1")
    if not isB and c==max(CFG['cst'])+2:
        p(f"s_mov_b64 exec, 1\nbuffer_store_dword v{vC+5}, v{vC+4}, {S4(sWS)}, s{cU+2} offen sc1\ns_mov_b64 exec, -1"); OPS.append('clr')
sSM=sT+11
def sm_setup():
    A=sT+20
    p(f"""s_and_b32 s{A}, s{HW}, 1
    s_lshl_b32 s{sSM}, s{sSLOT}, 1
    s_add_u32 s{A}, s{A}, s{sSM}
    s_mul_i32 s{sSM}, s{A}, {10*3072}
    s_mul_i32 s{A}, s{sG}, 384
    s_add_u32 s{sSM}, s{sSM}, s{A}
    s_lshl_b32 s{A}, s2, 2
    s_add_u32 s{A}, s{A}, s{HW}
    s_mul_i32 s{sSM+1}, s{A}, 800
    s_and_b32 s{sSM+1}, s{sSM+1}, -128""")
def sm_touch(c,isB):
    for opt,n,f in ((CFG['smw'],30,lambda i: f"s_load_dword s100, s[{(sWG,sWU)[isB]}:{(sWG,sWU)[isB]+1}], s{sSM} offset:{(i//3)*3072+(i%3)*128}"),
                    (CFG['smo'],7,lambda i: f"s_load_dword s100, s[{sWO}:{sWO+1}], s{sSM+1} offset:{i*128}")):
        if opt and opt[0]<=c<opt[1]:
            k=opt[1]-opt[0]
            for i in range(n*(c-opt[0])//k,n*(c+1-opt[0])//k): p(f(i))
def code_pf():
    A=sT+18
    p(f"""s_getpc_b64 s[{A}:{A+1}]
    L_pc:
    s_sub_u32 s{A}, s{A}, L_pc-{NAME}_kernel
    s_subb_u32 s{A+1}, s{A+1}, 0
    s_lshl_b32 s{A+2}, s{sSLOT}, 2
    s_add_u32 s{A+2}, s{A+2}, s{sWAVE}
    s_mul_i32 s{A+2}, s{A+2}, 384
    s_min_u32 s{A+2}, s{A+2}, (L_exit-{NAME}_kernel-384)&0xffffff80""")
    for i in range(3): p(f"s_load_dwordx2 s[100:101], s[{A}:{A+1}], s{A+2} offset:{i*128+60}")
def wave_sum(x,t):
    dp="row_mask:0xf bank_mask:0xf"
    for c in ("quad_perm:[1,0,3,2]","quad_perm:[2,3,0,1]","row_half_mirror","row_mirror"):
        p(f"s_nop 1\nv_add_f32_dpp v{x}, v{x}, v{x} {c} {dp}")
    for sw in (16,32):
        p(f"""v_mov_b32 v{t}, v{x}
        s_nop 1
        v_permlane{sw}_swap_b32 v{x}, v{t}
        s_nop 0
        v_add_f32 v{x}, v{x}, v{t}""")
sPF=sT+16
def pf_group(n=5):
    for i in range(n): p(f"s_load_dwordx2 s[100:101], s[{sWO}:{sWO+1}], s{sPF} offset:{i*128+60}")
    p(f"""s_add_u32 s{sPF}, s{sPF}, {n*128}
    s_sub_u32 s{sPF+2}, s{sPF+2}, 1
    s_add_u32 s{sPF+3}, s{sPF+1}, 12800
    s_cmp_eq_u32 s{sPF}, s{sPF+3}
    s_cselect_b32 s{sPF}, s{sPF+1}, s{sPF}""")
def helperB(steps):
    A=sT+7; B=sT+8; vt=2; aD=140; aT=146; aLin=12; D=40; WRr=32
    sO=sT+1; sL=sT+2; sL0=sT+3; sL1=sT+4; C=sT+5
    p("L_helperB:")
    vM=23; x=10; a=sT+16
    clr_ids(a,a+1,a+2,a+3)
    p(f"""s_mul_i32 s{a+1}, s{HW}, 25
    s_sub_u32 s{a+1}, s{a+1}, 50
    v_min_u32 v{x}, 24, v0
    v_add_u32 v{x}, s{a+1}, v{x}
    v_min_u32 v{x}, 48, v{x}
    s_sub_u32 s{a+3}, s{a+3}, {40*128}
    s_and_b32 s{a+1}, s{sSLOT}, 15
    s_lshl_b32 s{a+2}, s{sG}, 4
    s_add_u32 s{a+1}, s{a+1}, s{a+2}
    s_lshl_b32 s{a+1}, s{a+1}, 7
    s_add_u32 s{a+1}, s{a+1}, {FL-48*128}
    v_mov_b32 v{x+1}, s{a}
    v_mov_b32 v{x+2}, s{a+3}
    v_cmp_le_u32 vcc, 40, v{x}
    v_mov_b32 v{x+3}, s{a+1}
    s_mul_i32 s{a+1}, s{sSLOT}, {200*128}
    v_cndmask_b32 v{x+1}, v{x+1}, v{x+2}, vcc
    v_cmp_le_u32 vcc, 48, v{x}
    s_mul_i32 s{a}, s{HW}, {100*128}
    s_add_u32 s{a+1}, s{a+1}, s{a}
    v_cndmask_b32 v{x+1}, v{x+1}, v{x+3}, vcc
    v_lshl_add_u32 v{vM}, v{x}, 7, v{x+1}
    s_sub_u32 s{sPF+1}, s{a+1}, {200*128}
    s_mul_i32 s{sPF}, s{sG}, 5
    s_lshr_b32 s{sPF}, s{sPF}, 1
    s_mul_i32 s{sPF}, s{sPF}, 640
    s_add_u32 s{sPF}, s{sPF}, s{sPF+1}
    s_mov_b32 s{sPF+2}, 20
    v_lshlrev_b32 v{vH+4}, 4, v0
    v_add_u32 v{vH+4}, {H1}, v{vH+4}
    v_mul_u32_u24 v{WRr+5}, 20, v0""")
    aB=130; sK=sT+11; sN=sT+16; sS=sT+17
    def wo_setup():
        va=96
        wo_ids()
        T=[[0,2],[1,3],[4,9],[5,7],[6,8]]
        NIB=[sum((10*((4*s5+g_)//5)+T[(4*s5+g_)%5][rd]-(8*s5+2*g_-2))<<(4*(4*rd+g_)) for rd in range(2) for g_ in range(4)) for s5 in range(5)]
        for i in range(5):
            p(f"""v_add_u32 v{va}, {64*i}, v0
            v_mul_u32_u24 v{va+1}, 6554, v{va}
            v_lshrrev_b32 v{va+1}, 16, v{va+1}
            v_mul_u32_u24 v{va+2}, 10, v{va+1}
            v_sub_u32 v{va}, v{va}, v{va+2}
            v_and_b32 v{aB+5+i}, 28, v{va+1}
            v_and_b32 v{va+2}, 3, v{va+1}
            v_mul_u32_u24 v{va+2}, 1280, v{va+2}
            v_lshl_add_u32 v{va}, v{va}, 4, v{va+2}
            v_bfe_u32 v{va+1}, v{va+1}, 2, 2
            v_mul_u32_u24 v{va+1}, 10240, v{va+1}
            v_add_u32 v{aB+i}, v{va}, v{va+1}""")
            if 0<i<4: p(f"v_subrev_u32 v{aB+i}, {i*1024}, v{aB+i}")
        p(f"""s_lshr_b32 s{A}, s{sSLOT}, 3
        s_mul_i32 s{A}, s{A}, 5
        s_lshr_b32 s{A}, s{A}, 1
        s_add_u32 s{A}, s{A}, s{HW}
        s_sub_u32 s{sK}, s{A}, 2
        v_mov_b32 v{va}, 5120""")
        def woaddr(n):
            p(f"""s_add_u32 s{A}, s{sK}, {2*n}
            s_sub_u32 s{B}, s{A}, 10
            s_cselect_b32 s{A}, s{A}, s{B}
            s_sub_u32 s{B}, s{A}, 5
            s_cselect_b32 s{B}, s{A}, s{B}
            s_mul_i32 s{sS}, s{A}, 40960
            s_sub_u32 s{sS}, s{sS}, 10240
            s_mov_b32 s{sN}, {hex(NIB[0])}""")
            for k in range(1,5): p(f"s_cmp_eq_u32 s{B}, {k}\ns_cselect_b32 s{sN}, {hex(NIB[k])}, s{sN}")
            for i in range(5):
                p(f"""v_bfe_u32 v{va+1}, s{sN}, v{aB+5+i}, 4
                v_mad_u32_u24 v{va+1}, v{va+1}, v{va}, v{aB+i}
                v_add_u32 v{aD+5*n+i}, s{sS}, v{va+1}""")
        for n in range(5): woaddr(n)
    if CFG['wose']==0: wo_setup()
    npf=CFG['npf']
    for _ in range(npf[0]): pf_group()
    def hook(c):
        if c==(100 if CFG['hstep']==CFG['stg'] else CFG['hstep']):
            p(f"buffer_load_dwordx4 v[{vH}:{vH+3}], v{vH+4}, {S4(sWS)}, 0 offen sc1"); OPS.append('h1')
        if c==100:
            p(f"buffer_load_dwordx4 {vr(WRr,4)}, v{WRr+5}, {S4(sWR)}, 0 offen\nbuffer_load_dword v{WRr+4}, v{WRr+5}, {S4(sWR)}, 0 offen offset:16"); OPS.extend(['wr','wr'])
        if c==CFG['pt']:
            qkv_touch()
            OPS.extend(['pt']*wtouch('w1',1))
        if c==CFG['wts']: OPS.extend(['pt']*touch(vTW,sWO,0))
        if c==CFG['pt2']: OPS.extend(['pt']*touch(vM,sWS,CFG['qpair2'],CFG['tpol']))
    steps(hook,1)
    st=dict(n=0)
    def dma(cnt):
        for _ in range(min(cnt,50-st['n'])):
            n=st['n']; i=n%5; k=(n//5)%5
            if n==0 or n==25:
                p(f"""s_xor_b32 s{A}, s{sHH}, {n//25}
                s_mul_i32 s{sO}, s{A}, {320*1280}
                s_mul_i32 s{sL0}, s{A}, 51200
                s_add_u32 s{sL0}, s{sL0}, {L_WO}
                s_mul_i32 s{A}, s{sJ}, 160
                s_add_u32 s{sO}, s{sO}, s{A}""")
            if i==0: p(f"""s_add_u32 s{A}, s{sK}, {2*k}
                s_sub_u32 s{B}, s{A}, 10
                s_cselect_b32 s{A}, s{A}, s{B}
                s_mul_i32 s{sL}, s{A}, 5120
                s_add_u32 s{sL}, s{sL}, s{sL0}
                s_mov_b32 m0, s{sL}
                s_nop 0""")
            if i==4: p(f"s_add_u32 m0, s{sL}, 4096\ns_nop 0")
            p(f"buffer_load_dwordx4 v{aD+5*k+i}, {S4(sWO)}, s{sO} offen offset:{(i&3)*1024} {CFG['wopol']} lds")
            OPS.append('wo%d'%(n//25))
            st['n']+=1
    vmwait(8); p("s_barrier"); hook(8)
    p(f"v_lshlrev_b32 v{aLin}, 4, v0")
    vmwait(9); p("s_barrier"); hook(9)
    stats_fin(96,B)
    vmwait('h1')
    lp=p.lab("hello"); ok=p.lab("hello_ok"); ne=p.lab("noep")
    p(f"""s_mov_b32 s{A}, {SPIN}
    {lp}:
    v_xor_b32 v{vH}, s{sTAG}, v{vH}
    v_xor_b32 v{vH+1}, s{sTAG}, v{vH+1}
    v_xor_b32 v{vH+2}, s{sTAG}, v{vH+2}
    v_xor_b32 v{vH+3}, s{sTAG}, v{vH+3}
    v_or3_b32 v{vt}, v{vH}, v{vH+1}, v{vH+2}
    v_or_b32 v{vt}, v{vt}, v{vH+3}
    v_cmp_lt_u32 vcc, 15, v{vt}
    s_nop 0
    s_cbranch_vccz {ok}""")
    spin(A,lp,ok,4)
    p(f"""buffer_load_dwordx4 v[{vH}:{vH+3}], v{vH+4}, {S4(sWS)}, 0 offen sc1
    s_waitcnt vmcnt(0)
    s_branch {lp}
    {ok}:
    v_lshl_or_b32 v{vH}, v{vH+1}, 4, v{vH}
    v_lshl_or_b32 v{vH+2}, v{vH+3}, 4, v{vH+2}
    v_lshl_or_b32 v{vH}, v{vH+2}, 8, v{vH}
    v_and_b32 v{vt}, 1, v0
    v_readlane_b32 s{A}, v{vH}, 0
    v_readlane_b32 s{B}, v{vH}, 1
    v_cmp_eq_u32 vcc, 0, v{vt}
    v_mov_b32 v{vt+1}, s{A}
    v_mov_b32 v{vt+2}, s{B}
    v_cndmask_b32 v{vt+1}, v{vt+2}, v{vt+1}, vcc
    v_cmp_ne_u32 vcc, v{vt+1}, v{vH}
    v_mov_b32 v{vt}, {L_MODE}
    s_cmp_lg_u64 vcc, 0
    s_cselect_b32 s{sMODE}, 1, {CFG['force_slow']}
    v_mov_b32 v{vt+1}, s{sMODE}
    ds_write_b32 v{vt}, v{vt+1}
    s_barrier
    s_waitcnt lgkmcnt(0)
    s_barrier""")
    vmw=len(OPS)-1-max(i for i,t in enumerate(OPS) if t=='wr')
    STAMP('hE1')
    p(f"""v_mov_b32 v{vt}, 0x3f803f80
    v_mov_b32 v{vt+1}, 0
    s_waitcnt vmcnt({vmw})""")
    for k in range(5): p(f"v_dot2_f32_bf16 v{vt+1}, v{WRr+k}, v{vt}, v{vt+1}")
    p("s_nop 0")
    wave_sum(vt+1,vt+2)
    p(f"v_mov_b32 v{vt}, {L_SWS}\nds_write_b32 v{vt}, v{vt+1}")
    if CFG['wose']==1: wo_setup()
    if CFG['hst']: halo_copy(vt,A,B,C,wo_setup if CFG['wose']==2 else (lambda:None))
    else:
        halo_flag(vt,A,B,C)
        if CFG['wose']==2: wo_setup()
    p(f"""s_add_u32 s{A}, s2, s{HW}
    s_cmp_lg_u32 s{A}, 2
    s_cbranch_scc1 {ne}
    s_add_u32 s{A}, s{sEP}, 1
    v_mov_b32 v{vt}, {EPO}
    v_mov_b32 v{vt+1}, s{A}
    s_mov_b64 exec, 1
    buffer_store_dword v{vt+1}, v{vt}, {S4(sWS)}, 0 offen sc1
    s_mov_b64 exec, -1
    {ne}:""")
    if CFG['hkv']:
        att_ids()
        p(f"s_mov_b32 s{sK1024}, 1024")
        kv_addr(aLin,13,vt)
        own_setup(14,vt)
        own_kv(aLin,13,14,vt,sHO)
    p(f"v_mov_b32 v{vt}, {F_G1}")
    if CFG['wburst']:
        p(f"""s_lshl_b32 s{B}, s{sSLOT}, 1
        s_add_u32 s{B}, s{B}, s{HW}
        s_sub_u32 s{B}, s{B}, 2
        s_mul_i32 s{B}, s{B}, 12800
        v_lshl_add_u32 v{vTW}, v0, 7, s{B}
        v_min_u32 v{vTW+1}, 35, v0
        v_lshl_add_u32 v{vTW+1}, v{vTW+1}, 7, s{B}
        v_add_u32 v{vTW+1}, 8192, v{vTW+1}""")
        if CFG['wburst']==2: touch(vTW,sWO,0); touch(vTW+1,sWO,0)
    lds_wait(vt,vt+1,A,'gt',4,1)
    if CFG['wburst']==1: touch(vTW,sWO,0); touch(vTW+1,sWO,0)
    wtouch('w3',1)
    if CFG['wog2']:
        p(f"v_mov_b32 v{vt+2}, {F_G2}")
        lds_wait(vt+2,vt+1,A,'gt',2,1)
    STAMP('wo_s')
    del OPS[:]
    thr=CFG['wothr']; gs=CFG['wogs']; thr1=CFG['wothr1']
    def more(n,dyn=False):
        while n>0 and st['n']<50:
            k=min(gs,n)
            if dyn and thr1<thr and st['n']>=thr1:
                sk=p.lab("wog")
                p(f"""ds_read_b32 v{vt+1}, v{vt} offset:{(F_G2 if CFG['wgf']=='G2' else F_M)-F_G1}
                s_waitcnt lgkmcnt(0)
                v_cmp_gt_u32 vcc, {2 if CFG['wgf']=='G2' else 1}, v{vt+1}
                s_nop 0
                s_cbranch_vccz {sk}
                s_waitcnt vmcnt({max(0,thr1-k)})
                {sk}:""")
            if st['n']>=thr: p(f"s_waitcnt vmcnt({max(0,thr-k)})")
            gi=st['n']//gs; a_,b_=CFG['mtr']
            dma(k); n-=k
            if CFG['mtw']=='wo' and a_<=gi<b_:
                l0=60*(gi-a_)//(b_-a_); l1=60*(gi+1-a_)//(b_-a_); msk=((1<<l1)-1)^((1<<l0)-1)
                u=p.lab("tu"); j=p.lab("tj")
                p(f"s_mov_b32 exec_lo, {hex(msk&0xffffffff)}\ns_mov_b32 exec_hi, {hex(msk>>32)}\ns_cmp_eq_u32 s{HW}, 2\ns_cbranch_scc0 {u}")
                touch(vTM,sWG,0); p(f"s_branch {j}\n{u}:"); touch(vTM,sWU,0); p(f"{j}:\ns_mov_b64 exec, -1")
                OPS.append('mt')
    def sig(f):
        p(f"""v_mov_b32 v{vt+2}, {f}
        v_mov_b32 v{vt+3}, 1
        s_mov_b64 exec, 1
        ds_add_u32 v{vt+2}, v{vt+3}
        s_mov_b64 exec, -1""")
    more(25+min(thr,15),True)
    vmwait('wo0')
    sig(F_WOR)
    STAMP('wo_0')
    more(50)
    sig(F_WOD)
    STAMP('wo_1')
    p("s_waitcnt vmcnt(0)")
    sig(F_WO2)
    STAMP('wo')

ACC=64; CS=128; XF=132; WF=148; SEL=164; aX=168; aW=172; aST=174; aSG=178; vT=2
sWR_,sWC,sLC,sTY,sSO,sHALO,sFO,sSO2=range(sT,sT+8)
def gemm_setup():
    t=vT; A=sT+10; B=sT+11
    wave_ids(sWAVE,sWR_,sWC,sLC,sTY)
    p(f"""v_and_b32 v{t}, 31, v0
    s_lshl_b32 s{A}, s{sWR_}, 6
    v_add_u32 v{t+1}, s{A}, v{t}
    v_lshlrev_b32 v{t+1}, 7, v{t+1}
    v_lshrrev_b32 v{t+2}, 5, v0
    v_bfe_u32 v{t+3}, v0, 1, 3
    v_xor_b32 v{t+3}, v{t+3}, v{t+2}
    v_lshl_add_u32 v{aX}, v{t+3}, 4, v{t+1}""")
    for s in range(1,4): p(f"v_xor_b32 v{aX+s}, {32*s}, v{aX}")
    p(f"""v_bfe_u32 v{t+3}, v0, 2, 2
    v_lshl_add_u32 v{t+4}, v{t+2}, 3, v{t+3}
    v_lshlrev_b32 v{t+4}, 8, v{t+4}
    s_lshl_b32 s{A}, s{sWC}, 1
    s_or_b32 s{A}, s{A}, s{sWR_}
    v_xor_b32 v{t+3}, s{A}, v{t+3}
    v_lshl_add_u32 v{t+4}, v{t+3}, 6, v{t+4}
    v_bfe_u32 v{t+3}, v0, 4, 1
    v_lshl_add_u32 v{t+4}, v{t+3}, 5, v{t+4}
    v_and_b32 v{t+5}, 3, v0
    v_lshl_add_u32 v{t+4}, v{t+5}, 3, v{t+4}
    v_add_u32 v{aW}, 16384, v{t+4}
    v_xor_b32 v{aW+1}, 64, v{aW}
    v_bfe_u32 v{t+4}, v0, 2, 1
    v_cmp_eq_u32 vcc, v{t+3}, v{t+4}
    v_mov_b32 v{t+5}, 0x3f803f80
    s_nop 0
    v_cndmask_b32 v{SEL}, 0, v{t+5}, vcc
    v_cndmask_b32 v{SEL+1}, 0, v{t+5}, vcc
    v_cndmask_b32 v{SEL+2}, 0, v{t+5}, vcc
    v_cndmask_b32 v{SEL+3}, 0, v{t+5}, vcc""")
    for r in list(range(ACC,ACC+64))+list(range(CS,CS+4)): p(f"v_mov_b32 v{r}, 0")
    store_addr(sWR_,sLC,sTY,sSO,sSO2,sHALO,sFO,aST,sT+10,sT+11)
    p(f"s_mov_b32 s{sHAL2}, s{sHALO}")
    if CFG['hst']: p(f"""s_mul_i32 s{A}, s{sWAVE}, 9216
        s_add_u32 s{A}, s{A}, {L_WO}
        v_lshl_add_u32 v{aSG}, v0, 4, s{A}""")
sHAL2=sDBG
def wave_ids(wave,wr,wc,lc,ty):
    p(f"""s_and_b32 s{wr}, s{wave}, 1
    s_lshr_b32 s{wc}, s{wave}, 1
    s_lshl_b32 s{lc}, s{sCT}, 1
    s_add_u32 s{lc}, s{lc}, s{wc}
    s_cmp_eq_u32 s{lc}, 5
    s_cselect_b32 s{lc}, 15, s{lc}
    s_cmp_gt_u32 s{sCT}, 2
    s_subb_u32 s{lc}, s{lc}, 0
    s_mul_i32 s{ty}, s{lc}, 52
    s_lshr_b32 s{ty}, s{ty}, 8""")
def store_addr(wr,lc,ty,so,so2,halo,fo,ast,A,B,t=2):
    p(f"""v_and_b32 v{t}, 31, v0
    v_lshrrev_b32 v{t+2}, 5, v0
    s_mul_i32 s{A}, s{ty}, 5
    s_sub_u32 s{A}, s{lc}, s{A}
    s_mul_i32 s{B}, s{sHH}, 5
    s_add_u32 s{A}, s{A}, s{B}
    s_lshl_b32 s{B}, s{sBK}, 1
    s_add_u32 s{B}, s{B}, s{wr}
    s_lshl_b32 s{B}, s{B}, 1""")
    isv=p.lab("isv"); jn=p.lab("stj")
    p(f"""s_cmp_ge_u32 s{ty}, 2
    s_cbranch_scc1 {isv}
    s_mul_i32 s{so}, s{B}, 2560
    s_mul_i32 s{B}, s{ty}, {KB}
    s_add_u32 s{so}, s{so}, s{B}
    s_add_u32 s{so2}, s{so}, 2560
    s_lshl_b32 s{A}, s{A}, 3""")
    for cb in range(2):
        for ip in range(2):
            p(f"""s_xor_b32 s{B}, s{wr}, {cb}
            s_lshl_b32 s{B}, s{B}, 2
            s_add_u32 s{B}, s{B}, s{A}
            s_add_u32 s{B}, s{B}, {2*ip}
            v_add_u32 v{t+3}, s{B}, v{t+2}
            v_mul_u32_u24 v{t+4}, 205, v{t+3}
            v_lshrrev_b32 v{t+4}, 10, v{t+4}
            v_mul_u32_u24 v{t+5}, 5, v{t+4}
            v_sub_u32 v{t+5}, v{t+3}, v{t+5}
            v_mul_u32_u24 v{t+4}, {64*2560}, v{t+4}
            v_lshl_add_u32 v{t+4}, v{t+5}, 9, v{t+4}
            v_lshl_add_u32 v{ast+2*cb+ip}, v{t}, 4, v{t+4}""")
    p(f"""s_branch {jn}
    {isv}:
    s_mul_i32 s{so}, s{B}, 1280
    s_add_u32 s{so}, s{so}, {VB}
    s_add_u32 s{so2}, s{so}, 1280
    s_lshl_b32 s{A}, s{A}, 6""")
    for cb in range(2):
        p(f"""s_xor_b32 s{B}, s{wr}, {cb}
        s_lshl_b32 s{B}, s{B}, 5
        s_add_u32 s{B}, s{B}, s{A}
        v_add_u32 v{t+3}, s{B}, v{t}
        v_mul_u32_u24 v{t+4}, 3277, v{t+3}
        v_lshrrev_b32 v{t+4}, 16, v{t+4}
        v_mul_u32_u24 v{t+5}, 20, v{t+4}
        v_sub_u32 v{t+5}, v{t+3}, v{t+5}
        v_mul_u32_u24 v{t+4}, 81920, v{t+4}
        v_lshl_add_u32 v{t+4}, v{t+5}, 4, v{t+4}
        v_mul_u32_u24 v{t+5}, 320, v{t+2}
        v_add_u32 v{ast+2*cb}, v{t+4}, v{t+5}
        v_add_u32 v{ast+2*cb+1}, 640, v{ast+2*cb}""")
    p(f"{jn}:")
    halo_cond(halo,A)
    p(f"""s_lshl_b32 s{fo}, s{sG}, 4
    s_add_u32 s{fo}, s{fo}, s{lc}
    s_lshl_b32 s{fo}, s{fo}, 5
    s_lshl_b32 s{A}, s{sRB}, 1
    s_add_u32 s{A}, s{A}, s{wr}
    s_add_u32 s{fo}, s{fo}, s{A}
    s_lshl_b32 s{fo}, s{fo}, 2
    s_add_u32 s{fo}, s{fo}, {FL}""")
def xf(buf,xb): return XF+8*buf+4*xb
def wf(buf,cb): return WF+8*buf+4*cb
def reads(kind,buf,par,s):
    L=[]
    for xb in range(2): L.append(f"ds_read_b128 {vr(xf(buf,xb),4)}, v{aX+s} offset:{par*32768+xb*4096}")
    if kind!='S':
        for cb in range(2):
            for rd in range(2): L.append(f"ds_read_b64_tr_b16 {vr(wf(buf,cb)+2*rd,2)}, v{aW+cb} offset:{par*32768+s*4096+rd*1024}")
        L=[L[2],L[3],L[0],L[1],L[4],L[5]]
    return L
def mfmas(kind,buf):
    L=[]
    if kind=='S':
        for xb in range(2):
            x=xf(buf,xb)
            L.append(f"v_mfma_f32_16x16x32_bf16 {vr(ACC+4*xb,4)}, {vr(SEL,4)}, {vr(x,4)}, {vr(ACC+4*xb,4)}")
            L.append(f"v_mfma_f32_4x4x4_16b_bf16 {vr(ACC+8+8*xb,4)}, {vr(x,2)}, {vr(x,2)}, {vr(ACC+8+8*xb,4)}")
            L.append(f"v_mfma_f32_4x4x4_16b_bf16 {vr(ACC+12+8*xb,4)}, {vr(x+2,2)}, {vr(x+2,2)}, {vr(ACC+12+8*xb,4)}")
        return L
    for cb in range(2):
        for xb in range(2):
            a=ACC+16*(2*xb+cb); X=vr(xf(buf,xb),4); W=vr(wf(buf,cb),4)
            L.append(f"v_mfma_f32_32x32x16_bf16 {vr(a,16)}, {W if kind=='T' else X}, {X if kind=='T' else W}, {vr(a,16)}")
    L.insert(2,f"v_mfma_f32_16x16x32_bf16 {vr(CS,4)}, {vr(SEL,4)}, {vr(wf(buf,0),4)}, {vr(CS,4)}")
    return L
def gemm_loop(kind):
    CNT=sT+10
    lp=p.lab("g"+kind)
    STAMP('rdy')
    p("s_barrier")
    STAMP('b0')
    for r in reads(kind,0,0,0): p(r)
    if CFG['clr']==1 and not CFG['hclr']: clears(1)
    cl_=p.lab("clr"); cr_=p.lab("clrr")
    if CFG['clr']>1:
        n0=len(p.L); p(f"{cl_}:"); clears(1); p(f"s_branch {cr_}")
        COLD.append("\n".join(p.L[n0:])); del p.L[n0:]
    hl=p.lab("hello"); hr=p.lab("hellor")
    if not CFG['hclr']:
        COLD.append(f"""{hl}:
        s_getreg_b32 s{CNT+1}, hwreg(HW_REG_XCC_ID, 0, 4)
        s_or_b32 s{CNT+1}, s{CNT+1}, s{sTAG}
        v_mov_b32 v{vT}, s{CNT+1}
        s_lshl_b32 s{CNT+1}, s2, 2
        s_add_u32 s{CNT+1}, s{CNT+1}, {H1}
        v_mov_b32 v{vT+1}, 0
        s_mov_b64 exec, 1
        buffer_store_dword v{vT}, v{vT+1}, {S4(sWS)}, s{CNT+1} offen sc1
        s_mov_b64 exec, -1
        s_branch {hr}""")
        p(f"s_lshl_b32 s{CNT+2}, s{sWAVE}, 3\ns_add_u32 s{CNT+2}, s{CNT+2}, {5-CFG['clr']}")
    p(f"s_mov_b32 s{CNT}, 5\n{lp}:")
    if CFG['clr']>1: p(f"s_cmp_eq_u32 s{CNT}, {6-CFG['clr']}\ns_cbranch_scc1 {cl_}\n{cr_}:")
    for k in range(1,5):
        if (CFG['cal'] and CFG['cal'][0]=='it%d'%(2*k)) or (CFG['amp'] and 'it%d'%(2*k) in CFG['amp'][:2]) or (CFG['prof'] and any('it%d'%(2*k) in n.split('|') for n in CFG['st'])):
            sk=p.lab("its"); p(f"s_cmp_lg_u32 s{CNT}, {5-k}\ns_cbranch_scc1 {sk}"); STAMP('it%d'%(2*k)); p(f"{sk}:")
    for par in range(2):
        for s in range(4):
            buf=s&1
            last=(s==3)
            M=mfmas(kind,buf)
            if CFG['nomfma']: M=M[:1]
            if last and par==1:
                pre=[f"v_xor_b32 v{aX+i}, 0x10000, v{aX+i}" for i in range(4)]+[f"v_xor_b32 v{aW+i}, 0x10000, v{aW+i}" for i in range(2)]
            else: pre=[]
            R=reads(kind,buf^1,(par^1) if last else par,(s+1)&3)
            p("s_waitcnt lgkmcnt(0)")
            if last:
                p(M.pop(0))
                for x in pre: p(x)
                if par==0 and not CFG['hclr']:
                    w1=p.lab("cw"); w2=p.lab("cwr")
                    p(f"s_cmp_eq_u32 s{CNT}, {5-CFG['clr']}\ns_cbranch_scc1 {w1}\n{w2}:")
                    COLD.append(f"{w1}:\ns_waitcnt vmcnt(0)\ns_branch {w2}")
                p("s_barrier")
                if par==0 and not CFG['hclr']: p(f"s_cmp_eq_u32 s{CNT}, s{CNT+2}\ns_cbranch_scc1 {hl}\n{hr}:")
            k=0
            while M or R:
                if R: p(R.pop(0))
                if R: p(R.pop(0))
                if M: p(M.pop(0))
    p(f"""s_sub_u32 s{CNT}, s{CNT}, 1
    s_cmp_lg_u32 s{CNT}, 0
    s_cbranch_scc1 {lp}""")
    STAMP('gend')
def bf16r(dst,src):
    p(f"v_cvt_pk_bf16_f32 v{dst}, v{src}, v{src}\nv_and_b32 v{dst}, 0xffff0000, v{dst}")
def mode_read():
    p(f"""v_mov_b32 v{vT+8}, {L_MODE}
    ds_read_b32 v{vT+9}, v{vT+8}""")
def mode_get():
    p(f"v_readfirstlane_b32 s{sMODE}, v{vT+9}")
def dual(stores,pol=''):
    sl=p.lab("slow"); jn=p.lab("jn")
    p(f"s_cmp_lg_u32 s{sMODE}, 0\ns_cbranch_scc1 {sl}")
    for s in stores: p(s+" "+pol)
    p(f"s_branch {jn}\n{sl}:")
    for s in stores: p(s+" sc1")
    p(f"{jn}:")
def idle_gemm():
    vt=10; aI=20; acc=28; one=32; D=64; A=sT+10
    p(f"""s_lshl_b32 s{A}, s{sWR_}, 13
    v_bfe_u32 v{vt}, v0, 1, 3
    v_lshlrev_b32 v{vt}, 4, v{vt}
    v_lshl_add_u32 v{vt}, v0, 7, v{vt}
    v_add_u32 v{aI}, s{A}, v{vt}
    v_mov_b32 v{one}, 0x3f803f80
    s_lshl_b32 s{A}, s{sG}, 2
    s_add_u32 s{A}, s{A}, s{sRB}
    s_lshl_b32 s{A}, s{A}, 14
    s_lshl_b32 s{A+1}, s{sWR_}, 10
    s_add_u32 s{A}, s{A}, s{A+1}
    s_add_u32 s{A}, s{A}, {STP+2*2048}
    v_lshlrev_b32 v{vt}, 4, v0""")
    for i in range(1,8): p(f"v_xor_b32 v{aI+i}, {16*i}, v{aI}")
    for i in range(4): p(f"v_mov_b32 v{acc+i}, 0")
    k=CFG['clr']
    for c in range(11):
        if c==1+2*k and not CFG['hclr']: p(f"s_waitcnt vmcnt({1 if k==1 else 0})")
        p("s_barrier")
        if k and c==2*k-2 and c!=2: clears(1)
        if c<3:
            if c==2:
                for i in range(8): p(f"v_add_u32 v{aI+i}, 0x10000, v{aI+i}")
            for i in range(8): p(f"ds_read_b128 {vr(D+4*i,4)}, v{aI+i} offset:{(c&1)*32768}")
            for i in range(8):
                p(f"s_waitcnt lgkmcnt({7-i})")
                for j in range(4):
                    r=D+4*i+j
                    p(f"v_dot2_f32_bf16 v{acc+(j&1)}, v{r}, v{one}, v{acc+(j&1)}\nv_dot2_f32_bf16 v{acc+2+(j&1)}, v{r}, v{r}, v{acc+2+(j&1)}")
        if c==2: p(f"""s_nop 1
            v_add_f32 v{acc}, v{acc}, v{acc+1}
            v_add_f32 v{acc+1}, v{acc+2}, v{acc+3}
            v_mov_b32 v{acc+2}, s{sTAG}
            buffer_store_dwordx4 {vr(acc,4)}, v{vt}, {S4(sWS)}, s{A} offen sc1""")
        if k==2 and c==2: clears(1)
    p("s_barrier")
    mode_read()
    p("s_waitcnt lgkmcnt(0)")
    mode_get()
def gemm_epi(kind):
    t=vT; A=sT+10
    AU=20
    WA=24
    XA=28
    RS=32
    p(f"""v_and_b32 v{t}, 31, v0
    s_lshl_b32 s{A}, s{sWC}, 1
    s_or_b32 s{A}, s{A}, s{sWR_}
    s_lshl_b32 s{A}, s{A}, 7
    s_add_u32 s{A}, s{A}, {L_CS}
    v_lshl_add_u32 v{t+1}, v{t}, 2, s{A}
    s_lshl_b32 s{A}, s{sWR_}, 9
    s_add_u32 s{A}, s{A}, {L_SA}
    v_lshl_add_u32 v{t+3}, v{t}, 3, s{A}
    ds_write_b32 v{t+1}, v{CS}
    v_xor_b32 v{t+2}, 128, v{t+1}
    v_mov_b32 v{WA+1}, 0
    v_mov_b32 v{WA+3}, 0
    v_mov_b32 v{XA+1}, 0
    v_mov_b32 v{XA+3}, 0""")
    if kind=='V':
        p(f"""v_lshrrev_b32 v{t+4}, 5, v0
        s_lshl_b32 s{A}, s{sWR_}, 8
        s_add_u32 s{A}, s{A}, {L_SR}
        v_lshl_add_u32 v{t+4}, v{t+4}, 4, s{A}""")
    p("s_waitcnt lgkmcnt(0)\ns_barrier")
    STAMP('E1',1)
    p(f"""ds_read_b32 v{CS+1}, v{t+2}
    ds_read_b64 v[{AU}:{AU+1}], v{t+3}
    ds_read_b64 v[{AU+2}:{AU+3}], v{t+3} offset:256""")
    mode_read()
    if kind=='V':
        for xb in range(2):
            for i in range(4): p(f"ds_read_b128 {vr(RS+16*xb+4*i,4)}, v{t+4} offset:{xb*128+i*32}")
    def split(cb):
        c=CS+cb
        p(f"""v_cndmask_b32 v{c}, 0, v{c}, s[{sLO}:{sLO+1}]
        v_cvt_pk_bf16_f32 v{t+5}, v{c}, v{c}
        v_and_b32 v{t+5}, 0xffff0000, v{t+5}
        v_sub_f32 v{t+6}, v{c}, v{t+5}
        v_cvt_pk_bf16_f32 v{WA+2*cb}, v{t+5}, v{t+6}""")
    split(0)
    p(f"s_waitcnt lgkmcnt({8 if kind=='V' else 0})")
    split(1)
    p(f"v_mov_b32 v{XA}, v{AU}\nv_mov_b32 v{XA+2}, v{AU+2}")
    mode_get()
    if kind=='T':
        p(f"""s_cmp_eq_u32 s{sTY}, 0
        s_cselect_b32 s{A}, {hex(f2u(20**-0.5*math.log2(math.e)))}, 1.0
        v_mul_f32 v{AU+1}, s{A}, v{AU+1}
        v_mul_f32 v{AU+3}, s{A}, v{AU+3}""")
    else: p("s_nop 0")
    for xb in range(2):
        for cb in range(2):
            a=ACC+16*(2*xb+cb); X=vr(XA+2*xb,2); W=vr(WA+2*cb,2)
            p(f"v_mfma_f32_32x32x8_bf16 {vr(a,16)}, {W if kind=='T' else X}, {X if kind=='T' else W}, {vr(a,16)}")
    p("s_waitcnt lgkmcnt(0)\ns_nop 7")
    allst=[]
    for xb in range(2):
        st=[]
        for cb in range(2):
            a=ACC+16*(2*xb+cb)
            for k in range(8):
                if kind=='T': p(f"v_pk_mul_f32 {vr(a+2*k,2)}, {vr(a+2*k,2)}, {vr(AU+2*xb,2)} op_sel:[0,1] op_sel_hi:[1,1]")
                else: p(f"v_pk_mul_f32 {vr(a+2*k,2)}, {vr(a+2*k,2)}, {vr(RS+16*xb+2*k,2)}")
            for k in range(8): p(f"v_cvt_pk_bf16_f32 v{a+k}, v{a+2*k}, v{a+2*k+1}")
            if kind=='T':
                p(f"""v_permlane32_swap_b32 v{a}, v{a+2}
                v_permlane32_swap_b32 v{a+1}, v{a+3}
                v_permlane32_swap_b32 v{a+4}, v{a+6}
                v_permlane32_swap_b32 v{a+5}, v{a+7}""")
            for h in range(2):
                st.append(f"buffer_store_dwordx4 {vr(a+4*h,4)}, v{aST+2*cb+h}, {S4(sWS)}, s{sSO2 if xb else sSO} offen")
                allst.append(a+4*h)
        dual(st,CFG['qpol'])
    STAMP('st')
    nh=p.lab("nohalo"); jh=p.lab("jhalo")
    hst=[f"buffer_store_dwordx4 {vr(allst[i],4)}, v{aST+(i&3)}, {S4(sWS)}, s{A+(i>>2)} offen sc1" for i in range(8)]
    p(f"""v_mov_b32 v{t}, 0
    v_mov_b32 v{t+1}, s{sTAG}
    s_add_u32 s{A}, s{sSO}, {KH-KB}
    s_add_u32 s{A+1}, s{sSO2}, {KH-KB}""")
    if CFG['hst']:
        p(f"s_cmp_eq_u32 s{sHALO}, 0\ns_cbranch_scc1 {nh}")
        for i in range(8): p(f"ds_write_b128 v{aSG}, {vr(allst[i],4)} offset:{i*1024}")
        for k in range(4): p(f"v_add_u32 v{t+4+k}, s{A}, v{aST+k}")
        p(f"""s_lshl_b32 s{A}, s{sWC}, 2
        s_add_u32 s{A}, s{A}, {F_STG}
        ds_write_b128 v{aSG}, {vr(t+4,4)} offset:8192
        v_mov_b32 v{t+2}, s{A}
        v_mov_b32 v{t+3}, 1
        s_mov_b64 exec, 1
        ds_add_u32 v{t+2}, v{t+3}
        s_waitcnt vmcnt(0)""")
        dual([f"buffer_store_dword v{t+1}, v{t}, {S4(sWS)}, s{sFO} offen"])
        p(f"""ds_add_u32 v{t+2}, v{t+3} offset:8
        s_branch {jh}
        {nh}:
        s_waitcnt vmcnt(0)
        s_mov_b64 exec, 1""")
        dual([f"buffer_store_dword v{t+1}, v{t}, {S4(sWS)}, s{sFO} offen"])
        p(f"{jh}:\ns_mov_b64 exec, -1")
        STAMP('fl')
        return
    if CFG['hearly']:
        p(f"s_cmp_eq_u32 s{sHALO}, 0\ns_cbranch_scc1 {nh}")
        for x in hst: p(x)
        p(f"s_waitcnt vmcnt(8)\ns_branch {jh}\n{nh}:\ns_waitcnt vmcnt(0)\n{jh}:")
    else: p("s_waitcnt vmcnt(0)")
    p("s_mov_b64 exec, 1")
    dual([f"buffer_store_dword v{t+1}, v{t}, {S4(sWS)}, s{sFO} offen"])
    p(f"s_mov_b64 exec, -1")
    if not CFG['hearly']:
        p(f"s_cmp_eq_u32 s{sHALO}, 0\ns_cbranch_scc1 {nh}")
        for x in hst: p(x)
        p(f"{nh}:")
    STAMP('fl')
import struct
def f2u(x): return struct.unpack("<I",struct.pack("<f",x))[0]

aLin,aTl,aKm,aKt,aV,aFl,aO,aQ0,aQ1=246,247,248,249,250,251,252,253,254
aKm1,aKt1,aV1=216,217,218
QM=[28,34]; QT=[32,38]; PP=40
KM=[48,62]; KT=[52,66]; VV=[[54,58],[68,72]]
SS=[80,96]; OO=[112,128]; CD=200; CF=230
cVM=8; sQ=[10,11]; sOm=[12,13]; sOt=[14,15]; cXO,cJ,cF,cK,cV,cL,cHO,cT0,cHX=range(16,25); sOSC=sT+15; sFB=sT+16; aWR=225
NINF="0xff800000"
def att_setup():
    t=vT; A=sT+7; B=sT+8; C=sT+17; sF=cF
    wo_pre1()
    att_ids()
    moe_role()
    p(f"v_mov_b32 v{aCLS}, 0x207")
    if CFG['hkv']: p(f"v_lshlrev_b32 v{aLin}, 4, v0\nv_mov_b32 v{aFl}, {F_G1}")
    else:
        flag_addr(aFl,t,1,A,B,C)
        p(f"""s_lshl_b32 s{sF}, s{sG}, 11
        s_lshl_b32 s{A}, s{sHF}, 4
        v_mov_b32 v{t}, s{A}
        v_cmp_gt_u32 vcc, 8, v0
        s_add_u32 s{sF}, s{sF}, {FL}
        s_mov_b32 s{sK1024}, 1024
        v_cndmask_b32 v{t}, 8, v{t}, vcc
        v_add_u32 v{aFl}, v{aFl}, v{t}""")
        kv_addr(aLin,aTl,t)
    p(f"""s_lshl_b32 s{A}, s{sHF}, 10
    s_add_u32 s{B}, s{A}, {L_KV}
    v_add_u32 v{aKm}, s{B}, v{aLin}
    s_sub_u32 s{B}, {L_KV+1024}, s{A}
    v_add_u32 v{aKm1}, s{B}, v{aLin}
    v_and_b32 v{t}, 31, v0
    v_lshrrev_b32 v{t+1}, 5, v0
    v_xor_b32 v{t+2}, s{sHO}, v{t+1}
    v_lshlrev_b32 v{t+2}, 3, v{t+2}
    v_lshl_add_u32 v{t+2}, v{t}, 4, v{t+2}
    s_lshl_b32 s{A}, s{sHF}, 9
    s_add_u32 s{B}, s{A}, {L_KV+2048}
    v_add_u32 v{aKt}, s{B}, v{t+2}
    s_sub_u32 s{B}, {L_KV+2048+512}, s{A}
    v_add_u32 v{aKt1}, s{B}, v{t+2}
    v_mul_u32_u24 v{t+2}, 320, v{t+1}
    v_lshl_add_u32 v{t+2}, v{t}, 4, v{t+2}
    s_mul_i32 s{A}, s{sHF}, 1280
    s_add_u32 s{B}, s{A}, {L_KV+3072}
    v_add_u32 v{aV}, s{B}, v{t+2}
    s_sub_u32 s{B}, {L_KV+3072+1280}, s{A}
    v_add_u32 v{aV1}, s{B}, v{t+2}
    v_lshlrev_b32 v{t+2}, 2, v{t+1}
    v_sub_u32 v{t+2}, v{t}, v{t+2}
    s_cmp_eq_u32 s{sHF}, 0
    s_cselect_b32 s{A}, {NINF}, 0
    s_cselect_b32 s{B}, 0, {NINF}
    v_mov_b32 v{t+3}, s{A}
    v_mov_b32 v{t+4}, s{B}""")
    for i in range(16):
        m=C+1+2*(i%2)+((C+1)%2)
        ri=8*(i>>2)+(i&3)
        p(f"v_cmp_le_i32 s[{m}:{m+1}], {ri}, v{t+2}")
        if i>0:
            m2=C+1+2*((i-1)%2)+((C+1)%2)
            if i==1: p("s_nop 0")
            p(f"v_cndmask_b32 v{CD+i-1}, v{t+3}, v{t+4}, s[{m2}:{m2+1}]\nv_cndmask_b32 v{CF+i-1}, v{t+4}, v{t+3}, s[{m2}:{m2+1}]")
    p(f"""s_nop 0
    v_cndmask_b32 v{CD+15}, v{t+3}, v{t+4}, s[{m}:{m+1}]
    v_cndmask_b32 v{CF+15}, v{t+4}, v{t+3}, s[{m}:{m+1}]
    v_cmp_eq_u32 s[{m}:{m+1}], 20, v{t}
    v_cmp_eq_u32 vcc, 24, v{t}
    s_mov_b32 s{cHO}, s{sHO}
    s_or_b64 s[{cVM}:{cVM+1}], vcc, s[{m}:{m+1}]""")
    p(f"""v_bfe_u32 v{t+2}, v0, 4, 1
    v_mul_u32_u24 v{t+2}, 20480, v{t+2}
    v_lshl_add_u32 v{t+2}, v{t+1}, 8, v{t+2}
    v_and_b32 v{t+3}, 15, v0
    v_lshl_add_u32 v{aO}, v{t+3}, 4, v{t+2}
    s_xor_b32 s{cHX}, s{sHF}, s{sHH}
    s_mov_b32 s{cT0}, s{sT0}
    s_lshl_b32 s{A}, s{sWAVE}, 1
    s_sub_u32 s{A}, 7, s{A}
    v_mul_u32_u24 v{t+2}, s{A}, v0
    s_add_u32 s{A}, s{sT0}, s{sWAVE}
    v_add_lshl_u32 v{aFO}, v{t+2}, s{A}, 12
    s_lshl_b32 s{A}, s{sHD}, 7
    s_add_u32 s{A}, s{A}, {FO}
    v_add_u32 v{aFO}, s{A}, v{aFO}""")
    for q in range(2):
        p(f"""s_sub_u32 s{A}, 7, s{sWAVE}
        s_cmp_eq_u32 s{sHF}, {q}
        s_cselect_b32 s{A}, s{A}, s{sWAVE}
        s_add_u32 s{A}, s{A}, s{sT0}""")
        p(f"""s_mul_i32 s{sQ[q]}, s{A}, 2560
        s_mul_i32 s{B}, s{sPH}, {64*2560}
        s_add_u32 s{sQ[q]}, s{sQ[q]}, s{B}
        s_mul_i32 s{A}, s{A}, 40960
        s_mul_i32 s{B}, s{sPH}, 1280
        s_add_u32 s{A}, s{A}, s{B}
        s_add_u32 s{A}, s{A}, {OB}
        s_mul_i32 s{B}, s{sHO}, 768
        s_add_u32 s{sOm[q]}, s{A}, s{B}
        s_lshl_b32 s{B}, s{sHO}, 3
        s_add_u32 s{sOt[q]}, s{A}, s{B}""")
    sK=cK; sV=cV; sL=cL
    if not CFG['hkv']: p(f"""s_lshl_b32 s{A}, s{sWAVE}, 1
    s_sub_u32 s{B}, -2, s{A}
    s_cmp_eq_u32 s{sHF}, 0
    s_cselect_b32 s{A}, s{A}, s{B}
    s_add_u32 s{A}, s{A}, s{sT0}
    s_mul_i32 s{sK}, s{A}, 2560
    s_mul_i32 s{sV}, s{A}, 1280
    s_mul_i32 s{A}, s{sPH}, {64*2560}
    s_add_u32 s{sK}, s{sK}, s{A}
    s_add_u32 s{sK}, s{sK}, {KB}
    s_mul_i32 s{A}, s{sHD}, 81920
    s_add_u32 s{sV}, s{sV}, s{A}
    s_add_u32 s{sV}, s{sV}, {VB}
    s_mul_i32 s{sL}, s{sWAVE}, 5632
    s_add_u32 s{sL}, s{sL}, {L_KV+4*5632}""")
    p(f"""s_mul_i32 s{A}, s{sHO}, 1536
    v_add_u32 v{aQ0}, s{A}, v{aLin}
    s_lshl_b32 s{A}, s{sHO}, 3
    v_add_u32 v{aQ1}, s{A}, v{aLin}""")
def att_go():
    t=vT; A=sT+7; B=sT+8; C=sT+17
    nh=p.lab("nohs"); lp=p.lab("fp"); ok=p.lab("fpok"); md=p.lab("fpm")
    ld=f"buffer_load_dword v{t+10}, v{aFl}, {S4(sWS)}, s{cF} offen sc1"
    if not CFG['hkv']: p(ld)
    p(f"""v_mov_b32 v{t+4}, 0x3f803f80
    s_or_b32 s{sOSC}, s{cHX}, s{sMODE}
    s_mov_b32 s{sFB}, 0
    s_mul_i32 s{A}, s{sMODE}, {OB2-OB}
    v_add_u32 v{aO}, s{A}, v{aO}""")
    for b_ in range(2):
        for mm in range(2):
            for r in range(4): p(f"v_cndmask_b32 v{VV[b_][mm]+r}, 0, v{t+4}, s[{cVM}:{cVM+1}]")
    for q in range(2): p(f"v_mov_b32 v{QT[q]}, 0\nv_mov_b32 v{QT[q]+1}, 0")
    if CFG['osent']: wo_scal()
    assert CFG['hsent'] or not CFG['hkv']
    if CFG['hkv']:
        p(f"v_mov_b32 v{t+4}, {F_FS}"); lds_wait(t+4,t+5,C,'gt',1,0)
    else:
        if CFG['hst']: p(f"s_mov_b32 s{C}, {SPIN}\ns_waitcnt vmcnt(0)")
        else: p(f"""s_lshr_b32 s{A}, s{sWAVE}, 1
        s_lshl_b32 s{A}, s{A}, 2
        s_add_u32 s{A}, s{A}, {F_STG}
        v_mov_b32 v{t+4}, s{A}
        v_mov_b32 v{t+5}, 1
        s_mov_b32 s{C}, {SPIN}
        s_cmp_eq_u32 s{sHAL2}, 0
        s_waitcnt vmcnt(0)
        s_cbranch_scc1 {nh}
        s_mov_b64 exec, 1
        ds_add_u32 v{t+4}, v{t+5}
        s_mov_b64 exec, -1
        {nh}:""")
        STAMP('hack')
        p(f"""s_branch {md}
        {lp}:
        {ld}
        s_waitcnt vmcnt(0)
        {md}:
        v_cmp_ne_u32 vcc, s{sTAG}, v{t+10}
        s_nop 0
        s_cbranch_vccz {ok}""")
        spin(C,lp,ok)
        p(f"s_branch {lp}\n{ok}:")
    STAMP('fseen')
    if not CFG['hkv']: kv_dma(aLin,aTl,cK,cV,cL,A,B,cHO)
    for q in range(2): p(f"buffer_load_dwordx4 {vr(QM[q],4)}, v{aQ0}, {S4(sWS)}, s{sQ[q]} offen {CFG['ldp']}")
    p(f"s_mov_b64 exec, s[{sLO}:{sLO+1}]")
    for q in range(2): p(f"buffer_load_dwordx2 {vr(QT[q],2)}, v{aQ1}, {S4(sWS)}, s{sQ[q]} offen offset:1024 {CFG['ldp']}")
    if CFG['hkv']: p("s_mov_b64 exec, -1")
    else: p(f"""s_mov_b64 exec, 1
    v_mov_b32 v{t}, {F_G1}
    v_mov_b32 v{t+1}, 1
    {f"ds_add_u32 v{t}, v{t+1} offset:{F_FS-F_G1}" if 'FS' in CFG['gm']+CFG['gr'] else ""}
    s_waitcnt vmcnt(4)
    ds_add_u32 v{t}, v{t+1}
    s_mov_b64 exec, -1
    v_mov_b32 v{aFl}, {F_G1}""")
    if CFG['hkv']: lds_wait(aFl,t+5,C,'gt',4,0)
    for o,n in ((0,4),(4,4),(8,2)): p(f"buffer_load_dwordx{n} {vr(XR+o,n)}, v{aX2}, {S4(sX)}, s{cXO} offen offset:{4*o}")
    for o,n in ((0,4),(4,4),(8,2)): p(f"buffer_load_dwordx{n} {vr(WR_+o,n)}, v{aWR}, {S4(sWR)}, s{cJ} offen offset:{4*o}")
    if not CFG['hkv']: lds_wait(aFl,t+5,C,'gt',4,0)
    p(f"s_waitcnt vmcnt(6)")
    STAMP('kv')
    p(f"""s_cmp_eq_u32 s{sWAVE}, 1
    s_cbranch_scc1 L_av1
    s_cmp_eq_u32 s{sWAVE}, 2
    s_cbranch_scc1 L_av2
    s_cmp_eq_u32 s{sWAVE}, 3
    s_cbranch_scc1 L_av3""")
def kreads(n,b_):
    o=(n>>1)*5632
    return [f"ds_read_b128 {vr(KM[b_],4)}, v{(aKm,aKm1)[n&1]} offset:{o}", f"ds_read_b64 {vr(KT[b_],2)}, v{(aKt,aKt1)[n&1]} offset:{o}"]
def vreads(n,b_):
    o=(n>>1)*5632; a=(aV,aV1)[n&1]
    return [f"s_mov_b64 exec, s[{sLO+2}:{sLO+3}]", f"ds_read_b128 {vr(VV[b_][0],4)}, v{a} offset:{o}", f"ds_read_b128 {vr(VV[b_][1],4)}, v{a} offset:{o+640}", "s_mov_b64 exec, -1"]
def att_variant(w):
    U=[]
    for n in range(15-w,8+w,-1): U.append((0,n))
    for n in range(8+w,6-w,-1): U+= [(0,n),(1,n)]
    for n in range(6-w,w-1,-1): U.append((1,n))
    assert len(U)==18
    diag=[15-w,8+w]
    tiles=[]; tau=[]
    for q,n in U:
        if not tiles or tiles[-1]!=n: tiles.append(n)
        tau.append(len(tiles)-1)
    first=[tau.index(i) for i in range(len(tiles))]
    started=[0,0]
    def QK(u):
        q,n=U[u]; b_=tau[u]&1; S=vr(SS[u&1],16)
        c=vr(CD,16) if n==diag[q] else (vr(CF,16) if n==diag[q]-8 else "0")
        return [f"v_mfma_f32_32x32x16_bf16 {S}, {vr(KM[b_],4)}, {vr(QM[q],4)}, {c}", f"v_mfma_f32_32x32x8_bf16 {S}, {vr(KT[b_],2)}, {vr(QT[q],2)}, {S}"]
    def PV(u,m):
        q,n=U[u]; O=vr(OO[q],16)
        c=O if started[q] else "0"; started[q]=1
        return f"v_mfma_f32_32x32x16_bf16 {O}, {vr(VV[tau[u]&1][m],4)}, {vr(PP+4*m,4)}, {c}"
    p(f"L_av{w}:")
    for i,f in enumerate(first):
        if f<=1:
            for x in kreads(tiles[i],i&1): p(x)
    for x in vreads(tiles[0],0): p(x)
    p("s_waitcnt lgkmcnt(0)")
    for x in QK(0): p(x)
    p("s_nop 7\ns_nop 3")
    pend=False
    H=first[tiles.index(7)]
    H2=first[tiles.index(3)]
    for u in range(18):
        S=SS[u&1]
        e=lambda i: p(f"v_exp_f32 v{S+i}, v{S+i}")
        c=lambda k: p(f"v_cvt_pk_bf16_f32 v{PP+k}, v{S+2*k}, v{S+2*k+1}")
        kr=[x for i,f in enumerate(first) if f==u+2 for x in kreads(tiles[i],i&1)]
        vr_=[x for i,f in enumerate(first) if f==u+1 for x in vreads(tiles[i],i&1)]
        late=(u+2 in (H,H2)); pre=(u+3 in (H,H2)); hk=int(u+3>=H2)
        STAMP('u%d'%u)
        e(0); e(1)
        if u>0: p(PV(u-1,1))
        e(2)
        if not late:
            for x in kr: p(x)
        if pre: p(f"ds_read_b32 v{vT}, v{aFl} offset:{F_M+4*hk-F_G1}")
        e(3); c(0); c(1)
        if pend: p(f"s_waitcnt lgkmcnt({(len(kr) if not late else 0)+(1 if pre else 0)})")
        qk=QK(u+1) if u<17 else [None,None]
        if qk[0]: p(qk[0])
        e(4)
        if late:
            p(f"v_cmp_gt_u32 vcc, 1, v{vT}")
        e(5)
        if late:
            p(f"s_cbranch_vccnz L_g2w{w}{hk}\nL_g2r{w}{hk}:")
            for x in kr: p(x)
        for x in vr_: p(x)
        e(6); e(7); c(2); c(3)
        if qk[1]: p(qk[1])
        e(8); e(9); e(10); e(11)
        p(PV(u,0))
        c(4); c(5); e(12); e(13); e(14); e(15); c(6); c(7)
        pend=bool(kr or vr_ or pre)
        if u==H-1:
            p(f"s_cmp_eq_u32 s{cT0}, 0\ns_cbranch_scc1 L_ex{w}")
            exq=PV(u,1)
    p("s_nop 1")
    p(PV(17,1))
    p("s_branch L_afin")
    for hk in range(2):
        p(f"L_g2w{w}{hk}:")
        p(f"v_mov_b32 v{vT+1}, {F_M+4*hk}")
        lds_wait(vT+1,vT,sT+17,'gt',1,0)
        p(f"s_branch L_g2r{w}{hk}")
    p(f"L_ex{w}:\n{exq}\ns_waitcnt lgkmcnt(0)\ns_branch L_afin")
def att_fin():
    t=vT; A=sT+7
    p("L_afin:")
    STAMP('aend')
    p(f"s_mov_b32 s{A}, {hex(f2u(2.0**-40))}\ns_mov_b32 s{A+1}, {hex(f2u(2.0**40)-f2u(2.0**-40))}")
    for q in range(2):
        O=OO[q]
        p(f"""v_cndmask_b32 v{t}, v{O+8}, v{O+12}, s[{sLO}:{sLO+1}]
        v_pk_add_f32 v[{t+2}:{t+3}], v[{O}:{O+1}], v[{O+2}:{O+3}]
        v_rcp_f32 v{t+1}, v{t}
        v_pk_add_f32 v[{t+4}:{t+5}], v[{O+4}:{O+5}], v[{O+6}:{O+7}]
        v_pk_add_f32 v[{t+6}:{t+7}], v[{O+8}:{O+9}], v[{O+10}:{O+11}]
        v_subrev_u32 v{t}, s{A}, v{t}
        v_pk_add_f32 v[{t+2}:{t+3}], v[{t+2}:{t+3}], v[{t+4}:{t+5}]
        v_cmp_lt_u32 s[{A+11}:{A+12}], s{A+1}, v{t}
        v_pk_add_f32 v[{t+2}:{t+3}], v[{t+2}:{t+3}], v[{t+6}:{t+7}]
        v_add_f32 v{t+2}, v{t+2}, v{t+3}""")
        p(f"v_cmp_class_f32 vcc, v{t+2}, v{aCLS}")
        for k in range(6): p(f"v_pk_mul_f32 {vr(O+2*k,2)}, {vr(O+2*k,2)}, {vr(t,2)} op_sel:[0,1] op_sel_hi:[1,1]")
        p(f"""s_or_b64 vcc, vcc, s[{A+11}:{A+12}]
        s_cbranch_scc1 L_afb{q}
        L_afr{q}:""")
        for k in range(6): p(f"v_cvt_pk_bf16_f32 v{O+k}, v{O+2*k}, v{O+2*k+1}")
        p(f"s_cmp_lg_u32 s{sOSC}, 0")
        st=[f"buffer_store_dwordx4 {vr(O,4)}, v{aO}, {S4(sWS)}, s{sOm[q]} offen", f"s_mov_b64 exec, s[{sLO}:{sLO+1}]",
            f"buffer_store_dwordx2 {vr(O+4,2)}, v{aO}, {S4(sWS)}, s{sOt[q]} offen offset:512", "s_mov_b64 exec, -1"]
        p(f"s_cbranch_scc1 L_osc{q}")
        for x in st: p(x+(" "+CFG['apol'] if x.startswith("buffer") else ""))
        p(f"s_branch L_osr{q}\nL_osc{q}:")
        for x in st: p(x+(" sc1" if x.startswith("buffer") else ""))
        p(f"L_osr{q}:")
    p(f"""v_mov_b32 v{t}, {F_DONE}
    v_mov_b32 v{t+1}, 1
    s_mov_b64 exec, 1
    ds_add_u32 v{t}, v{t+1}
    s_mov_b64 exec, -1""")
    STAMP('ost')
aCLS=255; aFO=226; aFR=227
def att_cold():
    t=vT; A=sT+7; B=sT+8; N=sT+17; J=sT+18; CN=sT+19; PA=sT+20
    for q in range(2): p(f"L_afb{q}:\ns_cmp_lg_u32 s{sFB}, 0\ns_cbranch_scc1 L_afr{q}\ns_branch L_afb")
    p(f"L_afb:\ns_mov_b32 s{sFB}, 1\ns_waitcnt lgkmcnt(0)")
    S=SS[0]; MX=t+10; xa=t+11
    for q in range(2):
        lp=p.lab("fb"); nd=p.lab("fbnd"); nf=p.lab("fbnf"); p2=p.lab("fbp2"); nx=p.lab("fbnx"); ps=p.lab("fbps"); dn=p.lab("fbdn")
        for r in range(16): p(f"v_mov_b32 v{OO[q]+r}, 0")
        p(f"""v_mov_b32 v{MX}, {NINF}
        s_mov_b32 s{PA}, 0
        {ps}:""")
        if q==0: p(f"s_sub_u32 s{N}, 15, s{sWAVE}")
        else: p(f"s_add_u32 s{N}, 8, s{sWAVE}")
        p(f"""s_sub_u32 s{CN}, s{N}, 7
        s_cmp_eq_u32 s{cT0}, 0
        s_cselect_b32 s{CN}, s{CN}, 9
        s_mov_b32 s{J}, 0
        {lp}:
        s_lshr_b32 s{A}, s{N}, 1
        s_mul_i32 s{A}, s{A}, 5632
        s_bitcmp1_b32 s{N}, 0
        s_cselect_b64 vcc, -1, 0
        s_nop 0
        v_cndmask_b32 v{xa}, v{aKm}, v{aKm1}, vcc
        v_cndmask_b32 v{xa+1}, v{aKt}, v{aKt1}, vcc
        v_cndmask_b32 v{xa+2}, v{aV}, v{aV1}, vcc
        v_add_u32 v{xa}, s{A}, v{xa}
        v_add_u32 v{xa+1}, s{A}, v{xa+1}
        v_add_u32 v{xa+2}, s{A}, v{xa+2}
        ds_read_b128 {vr(KM[0],4)}, v{xa}
        ds_read_b64 {vr(KT[0],2)}, v{xa+1}
        s_mov_b64 exec, s[{sLO+2}:{sLO+3}]
        ds_read_b128 {vr(VV[0][0],4)}, v{xa+2}
        ds_read_b128 {vr(VV[0][1],4)}, v{xa+2} offset:640
        s_mov_b64 exec, -1
        s_waitcnt lgkmcnt(0)
        v_mfma_f32_32x32x16_bf16 {vr(S,16)}, {vr(KM[0],4)}, {vr(QM[q],4)}, 0
        v_mfma_f32_32x32x8_bf16 {vr(S,16)}, {vr(KT[0],2)}, {vr(QT[q],2)}, {vr(S,16)}
        v_mov_b32 v{xa}, {NINF}
        s_nop 11
        s_cmp_lg_u32 s{J}, 0
        s_cbranch_scc1 {nd}""")
        for r in range(16): p(f"v_cmp_eq_u32 vcc, 0, v{CD+r}\ns_nop 1\nv_cndmask_b32 v{S+r}, v{xa}, v{S+r}, vcc")
        p(f"{nd}:\ns_cmp_lg_u32 s{J}, 8\ns_cbranch_scc1 {nf}")
        for r in range(16): p(f"v_cmp_eq_u32 vcc, 0, v{CF+r}\ns_nop 1\nv_cndmask_b32 v{S+r}, v{xa}, v{S+r}, vcc")
        p(f"{nf}:\ns_cmp_lg_u32 s{PA}, 0\ns_cbranch_scc1 {p2}")
        for r in range(0,16,2): p(f"v_max3_f32 v{MX}, v{S+r}, v{S+r+1}, v{MX}")
        p(f"s_branch {nx}\n{p2}:")
        for r in range(16): p(f"v_sub_f32 v{S+r}, v{S+r}, v{MX}")
        for r in range(16): p(f"v_exp_f32 v{S+r}, v{S+r}")
        p("s_nop 0")
        for k in range(8): p(f"v_cvt_pk_bf16_f32 v{PP+k}, v{S+2*k}, v{S+2*k+1}")
        p("s_nop 1")
        for m in range(2): p(f"v_mfma_f32_32x32x16_bf16 {vr(OO[q],16)}, {vr(VV[0][m],4)}, {vr(PP+4*m,4)}, {vr(OO[q],16)}")
        p(f"""s_nop 11
        {nx}:
        s_sub_u32 s{N}, s{N}, 1
        s_add_u32 s{J}, s{J}, 1
        s_cmp_lt_u32 s{J}, s{CN}
        s_cbranch_scc1 {lp}
        s_cmp_lg_u32 s{PA}, 0
        s_cbranch_scc1 {dn}
        v_mov_b32 v{xa}, v{MX}
        s_mov_b32 s{PA}, 1
        s_nop 0
        v_permlane32_swap_b32 v{xa}, v{MX}
        s_nop 1
        v_max_f32 v{MX}, v{MX}, v{xa}
        s_branch {ps}
        {dn}:""")
    p("s_branch L_afin")

BF=28; AF=108; WACC=200; XR=176; WR_=186; aX2=196; aPS=197; aAL=198; aAR=199; SW=220; aL4=221; aPR=222; aKY=223; aCD=224
HP=40; HF_=50; LP=70; OP=80
sRT=sT+1; sOL=sT+2; sOR=sT+5; sXO=cXO; sPSO=sT+12; sRETRY=sT+13; sPRB=sT+14; sFLO=sT+16; sFRE=sT+18
def acc_init():
    for k in range(10): p(f"v_lshlrev_b32 v{WACC+2*k}, 16, v{XR+k}\nv_and_b32 v{WACC+2*k+1}, 0xffff0000, v{XR+k}")
def wo_pre1():
    t=vT; A=sT+7; B=sT+8
    wo_ids()
    p(f"""v_and_b32 v{t}, 15, v0
    v_lshrrev_b32 v{t+1}, 4, v0
    v_mul_u32_u24 v{aWR}, 40, v{t+1}
    v_mov_b32 v{t+3}, 1280
    v_mad_u32_u24 v{aX2}, v{t}, v{t+3}, v{aWR}
    s_lshl_b32 s{A}, s{sBLK}, 2
    s_add_u32 s{A}, s{A}, s{sWAVE}
    s_mul_i32 s{A}, s{A}, 20480
    s_mul_i32 s{cJ}, s{sJ}, 160
    s_add_u32 s{cXO}, s{A}, s{cJ}
    v_lshlrev_b32 v{aPS}, 7, v{t}
    v_lshl_add_u32 v{aPS}, v{t+1}, 5, v{aPS}
    v_lshlrev_b32 v{aFR}, 7, v{t}
    v_mul_u32_u24 v{t+2}, 640, v{t+1}
    v_bfe_u32 v{t+3}, v0, 2, 2
    v_mul_u32_u24 v{t+3}, 160, v{t+3}
    v_and_b32 v{t+4}, 3, v0
    v_mul_u32_u24 v{t+4}, 40, v{t+4}
    v_add3_u32 v{t+2}, v{t+2}, v{t+3}, v{t+4}
    s_mul_i32 s{A}, s{sHH}, 51200
    s_add_u32 s{B}, s{A}, {L_WO}
    v_add_u32 v{aAL}, s{B}, v{t+2}
    s_sub_u32 s{B}, {L_WO+51200}, s{A}
    v_add_u32 v{aAR}, s{B}, v{t+2}
    v_and_b32 v{t+2}, 7, v0
    v_mul_u32_u24 v{t+2}, 1280, v{t+2}
    v_bfe_u32 v{t+3}, v0, 3, 1
    v_lshl_add_u32 v{aPR}, v{t+3}, 7, v{t+2}""")
    if CFG['wsp']:
        p(f"""s_and_b32 s{B}, s{sWAVE}, 1
        s_mul_i32 s{B}, s{B}, 25600
        v_add_u32 v{aAL}, s{B}, v{aAL}
        v_add_u32 v{aAR}, s{B}, v{aAR}
        s_lshr_b32 s{B}, s{sWAVE}, 1
        s_mul_i32 s{B}, s{B}, 10240
        s_add_u32 s{A}, s{A}, s{B}
        s_and_b32 s{B}, s{sWAVE}, 1
        s_lshl_b32 s{B}, s{B}, 10
        s_add_u32 s{A}, s{A}, s{B}
        s_add_u32 s{A}, s{A}, {L_WO}
        v_lshlrev_b32 v{aL4}, 4, v0
        v_add_u32 v{aPR}, s{A}, v{aL4}
        v_add_u32 v{aL4}, 4096, v{aL4}""")
def wo_pre2():
    acc_init()
def probe(soff,cnt,first=True):
    t=vT
    lp=p.lab("pb"); ok=p.lab("pbok"); md=p.lab("pbm")
    p(f"s_mov_b32 s{cnt}, {SPIN}")
    if not first: p(f"s_branch {md}")
    p(f"""{lp}:
    buffer_load_dwordx3 v[{t+4}:{t+6}], v{aPR}, {S4(sWS)}, s{soff} offen offset:512 sc1""")
    if not first: p(f"{md}:")
    p(f"""s_waitcnt vmcnt(0)
    v_max_u32 v{t+4}, v{t+4}, v{t+6}
    v_cmp_eq_u32 vcc, -1, v{t+4}
    s_nop 0
    s_cbranch_vccz {ok}""")
    spin(cnt,lp,ok)
    p(f"s_branch {lp}\n{ok}:")
def red3(a,b,c,d):
    p(f"""v_mov_b32 v{d}, v{c}
    s_nop 0
    v_permlane32_swap_b32 v{a}, v{b}
    v_permlane32_swap_b32 v{c}, v{d}
    s_nop 0
    v_add_f32 v{a}, v{a}, v{b}
    v_add_f32 v{c}, v{c}, v{d}
    s_nop 1
    v_permlane16_swap_b32 v{a}, v{c}
    s_nop 0
    v_add_f32 v{a}, v{a}, v{c}
    v_add_f32 v{c}, v{a}, 0
    s_nop 1
    v_permlane16_swap_b32 v{a}, v{c}
    s_nop 0
    v_mov_b32 v{b}, v{a}
    s_nop 1
    v_permlane32_swap_b32 v{a}, v{b}""")
def wo_scal():
    A=sT+7; B=sT+8
    wo_ids()
    p(f"""s_lshl_b32 s{sRT}, s{sBLK}, 2
    s_add_u32 s{sRT}, s{sRT}, s{sWAVE}
    s_mul_i32 s{A}, s{sRT}, 20480
    s_mul_i32 s{B}, s{sMODE}, {OB2-OB}
    s_add_u32 s{A}, s{A}, s{B}
    s_add_u32 s{A}, s{A}, {OB}
    s_mul_i32 s{B}, s{sHH}, 10240
    s_add_u32 s{sOL}, s{A}, s{B}
    s_add_u32 s{sOL+1}, s{sOL}, 4096
    s_add_u32 s{sOL+2}, s{sOL}, 8192
    s_add_u32 s{A}, s{A}, 10240
    s_sub_u32 s{sOR}, s{A}, s{B}
    s_lshl_b32 s{sPSO}, s{sRT}, 11
    s_add_u32 s{sPSO}, s{sPSO}, {PS}
    s_mov_b32 s{sRETRY}, {1<<16}
    s_add_u32 s{sOR+1}, s{sOR}, 4096
    s_add_u32 s{sPRB}, s{sOR}, 8192""")
    if CFG['wsp']:
        p(f"""s_and_b32 s{A}, s{sWAVE}, 1
        s_mul_i32 s{B}, s{A}, 5120
        s_add_u32 s{sOL}, s{sOL}, s{B}
        s_add_u32 s{sOR}, s{sOR}, s{B}
        s_mul_i32 s{B}, s{A}, -40960
        s_add_u32 s{B}, s{B}, 20480
        s_add_u32 s{sOL+1}, s{sOL}, s{B}
        s_add_u32 s{sOR+1}, s{sOR}, s{B}""")
def wo_flags():
    A=sT+7; B=sT+8
    p(f"""s_lshr_b32 s{A}, s{sRT}, 1
    s_lshl_b32 s{A}, s{A}, 12
    s_lshl_b32 s{B}, s{sHH}, 11
    s_add_u32 s{A}, s{A}, {FO}
    s_add_u32 s{sFLO}, s{A}, s{B}
    s_xor_b32 s{sFRE}, s{sFLO}, 2048""")
def wo_gemm():
    t=vT; A=sT+7; B=sT+8; C=sT+17; MXS=t+8
    sROFF=[sOR,sOR+1,sPRB]
    LA=CFG['wla']; WE=CFG['wwe']
    LG=[]
    def af(m): return AF+4*(m%15)
    def aread(m):
        s_,t_=divmod(m,5)
        for rd in range(2):
            p(f"ds_read_b64_tr_b16 {vr(af(m)+2*rd,2)}, v{aAL if s_<10 else aAR} offset:{(s_%10)*5120+rd*2560+8*t_}"); LG.append(m)
    def lgw(m):
        k=[i for i,x in enumerate(LG) if x!='x' and x<=m]
        if not k: return None
        n=len(LG)-1-max(k); del LG[:max(k)+1]; return n
    def bload(s_):
        so=(sOL+(s_%10)//4) if s_<10 else sROFF[(s_%10)//4]
        return f"buffer_load_dwordx4 {vr(BF+4*s_,4)}, v{aLin}, {S4(sWS)}, s{so} offen offset:{(s_%10%4)*1024} sc1"
    def cold(f):
        n0=len(p.L); f(); COLD.append("\n".join(p.L[n0:])); del p.L[n0:]
    p(f"s_cmp_lg_u32 s{sMODE}, 0\ns_cbranch_scc1 L_plsl\nL_plr:")
    def slow():
        p("L_plsl:"); wo_flags()
        p(f"""v_mov_b32 v{t+1}, s{sTAG}
        s_mov_b64 exec, 3
        s_waitcnt vmcnt(0)
        buffer_store_dword v{t+1}, v{aFO}, {S4(sWS)}, 0 offen sc1
        s_mov_b64 exec, -1""")
        flag_poll(aFR,t+4,sFLO,C); flag_poll(aFR,t+4,sFRE,C); p("s_branch L_plr")
    cold(slow)
    NI=CFG['oini']
    def dn():
        if CFG['odn']:
            p(f"v_mov_b32 v{t}, {F_DONE}"); lds_wait(t,t+1,C,'gt',4,0)
    if CFG['oprb']:
        p(f"buffer_load_dwordx3 v[{t+4}:{t+6}], v{aPR}, {S4(sWS)}, s{sOL} offen offset:512 sc1\ns_waitcnt vmcnt(5)")
    else:
        dn()
        for s_ in range(NI): p(bload(s_))
        p(f"s_waitcnt vmcnt({NI+4})")
    acc_init()
    p(f"v_mov_b32 v{t}, {F_WOR}")
    STAMP('fo')
    lds_wait(t,t+1,C,'gt',2,0)
    p(f"ds_read_b32 v{SW}, v{t} offset:{L_SWS-F_WOR}"); LG.append('x')
    STAMP('wor')
    if CFG['oprb']: dn()
    for m in range(LA): aread(m)
    p(f"v_mov_b32 v{t+7}, {F_WO2}\ns_mov_b32 s{sRETRY}, {SPIN}")
    if CFG['oprb']:
        probe(sOL,C,first=False)
        STAMP('prb')
        for s_ in range(NI): p(bload(s_))
    G={}; a=0
    for n in CFG['ogr']: G[a]=a+n; a+=n
    assert a==20 and 10 in G
    def chain(a,b):
        return [f"v_max_u32 v{MXS}, v{BF+4*a}, v{BF+4*a+2}"]+[f"v_max3_u32 v{MXS}, v{BF+4*k}, v{BF+4*k+2}, v{MXS}" for k in range(a+1,b)]
    cmp_=f"v_cmp_eq_u32 vcc, -1, v{MXS}"
    def retry(a,b):
        e=20 if (CFG['opoll']=='all' or a>=10) else 10
        def f():
            p(f"L_og{a}:\ns_sub_u32 s{sRETRY}, s{sRETRY}, 1\ns_cbranch_scc1 L_ogr{a}")
            sl=CFG['osl'][a//10]
            if sl: p(f"s_sleep {sl}")
            if CFG['opoll']=='probe' and a==0: probe(sOL,C)
            for k in range(a,e): p(bload(k))
            p(f"s_waitcnt vmcnt({20-b if e==20 else 0})")
            for x in chain(a,b): p(x)
            p(f"{cmp_}\ns_nop 0\ns_cbranch_vccnz L_og{a}\ns_branch L_ogr{a}")
        cold(f)
    last=lambda s_: (NI if s_<NI else 20)-1
    p(f"s_waitcnt vmcnt({last(0)+1-G[0]})")
    for x in chain(0,G[0]): p(x)
    p(f"{cmp_}\ns_nop 0\ns_cbranch_vccnz L_og0\nL_ogr0:"); retry(0,G[0])
    STAMP('pl')
    for m in range(100):
        s_,t_=divmod(m,5)
        nx=s_+1 if s_+1 in G else None
        if m==50:
            STAMP('pr')
            if 'PR' in (CFG['gstart'],CFG['dstart'],CFG['dgate'],CFG['mtg']):
                p(f"""s_mov_b64 exec, 1
                v_mov_b32 v{t+4}, {F_PR}
                v_mov_b32 v{t+5}, 1
                ds_add_u32 v{t+4}, v{t+5}
                s_mov_b64 exec, -1"""); LG.append('x')
        w=[]
        if nx is not None and t_==1: w.append(f"vmcnt({(20 if m>CFG['orem'] else NI)-G[nx]}"); assert G[nx]<=NI or m>CFG['orem']
        if m%WE==0:
            n=lgw(m+WE-1)
            if n is not None: w.append(f"lgkmcnt({n}")
        if w: p("s_waitcnt "+") ".join(w)+")")
        a_=vr(WACC+4*t_,4)
        p(f"v_mfma_f32_16x16x32_bf16 {a_}, {vr(af(m),4)}, {vr(BF+4*s_,4)}, {a_}")
        if NI<20 and m==CFG['orem']:
            for k in range(NI,20): p(bload(k))
        if m+LA==50-10: p(f"ds_read_b32 v{t+6}, v{t+7}"); LG.append('x')
        if m+LA==50:
            assert nx is None or t_<3
            p(f"v_cmp_gt_u32 vcc, 2, v{t+6}\ns_nop 0\ns_cbranch_vccnz L_wo2w\nL_wo2r:")
            def f():
                p("L_wo2w:"); lds_wait(t+7,t+6,C,'gt',2,0); p("s_branch L_wo2r")
            cold(f)
        if m+LA<100: aread(m+LA)
        if nx is not None:
            ch=chain(nx,G[nx]); k=-(-len(ch)//2)
            if t_==1:
                for x in ch[:k]: p(x)
            if t_==2:
                for x in ch[k:]: p(x)
            if t_==3: p(cmp_)
            if t_==4:
                if nx==10: STAMP('loc')
                p(f"s_cbranch_vccnz L_og{nx}\nL_ogr{nx}:"); retry(nx,G[nx])
    p(f"""v_mov_b32 v{t}, 0x3f803f80
    v_mov_b32 v{t+2}, 0
    v_mov_b32 v{t+3}, 0
    v_mov_b32 v{t+4}, 0
    s_nop 3""")
ACC2=148; aXW=222
def wo_gemm2():
    t=vT; A=sT+7; B=sT+8; C=sT+17; MXS=t+8
    LA=CFG['wla2']
    LG=[]
    def af(m): return AF+4*(m%10)
    def aread(m,rds=(0,1)):
        s_,t_=divmod(m,5)
        for rd in rds:
            if CFG['wnoa'] and m>=LA and rd<CFG['wnoa']: continue
            p(f"ds_read_b64_tr_b16 {vr(af(m)+2*rd,2)}, v{aAL if s_<5 else aAR} offset:{(s_%5)*5120+rd*2560+8*t_}"); LG.append(m)
    def lgw(m):
        k=[i for i,x in enumerate(LG) if x!='x' and x<=m]
        if not k: return None
        n=len(LG)-1-max(k); del LG[:max(k)+1]; return n
    def bload(s_,us=(0,1)):
        for u in us:
            so=(sOL if s_<5 else sOR)+u
            p(f"buffer_load_dwordx4 {vr(BF+8*s_+4*u,4)}, v{aLin if s_%5<4 else aL4}, {S4(sWS)}, s{so} offen offset:{(s_%5%4)*1024} {CFG['ldo'] if s_<5 else 'sc1'}")
    def cold(f):
        n0=len(p.L); f(); COLD.append("\n".join(p.L[n0:])); del p.L[n0:]
    p(f"s_cmp_lg_u32 s{sMODE}, 0\ns_cbranch_scc1 L_plsl\nL_plr:")
    def slow():
        p("L_plsl:"); wo_flags()
        p(f"""v_mov_b32 v{t+1}, s{sTAG}
        s_mov_b64 exec, 3
        s_waitcnt vmcnt(0)
        buffer_store_dword v{t+1}, v{aFO}, {S4(sWS)}, 0 offen sc1
        s_mov_b64 exec, -1""")
        flag_poll(aFR,t+4,sFLO,C); flag_poll(aFR,t+4,sFRE,C); p("s_branch L_plr")
    cold(slow)
    p(f"v_mov_b32 v{t}, {F_DONE}\ns_waitcnt vmcnt(4)")
    if CFG['odn']==2: acc_init()
    if CFG['odn']: lds_wait(t,t+1,C,'gt',4,0)
    for s_ in range(5): bload(s_)
    if CFG['odn']!=2: acc_init()
    p(f"v_mov_b32 v{t}, {F_WOR}")
    STAMP('fo')
    lds_wait(t,t+1,C,'gt',2,0)
    p(f"ds_read_b32 v{SW}, v{t} offset:{L_SWS-F_WOR}"); LG.append('x')
    STAMP('wor')
    for m in range(LA): aread(m)
    p(f"""v_mov_b32 v{t+7}, {F_WO2}
    s_mov_b32 s{sRETRY}, {SPIN}
    s_lshl_b32 s{A}, s{sWAVE}, 2
    s_add_u32 s{A}, s{A}, {F_X}
    v_mov_b32 v{t+10}, s{A}
    v_xor_b32 v{t+11}, 4, v{t+10}
    v_mov_b32 v{t+12}, 1""")
    G={}; a=0
    for n in CFG['ogr2']: G[a]=a+n; a+=n
    assert a==10 and 5 in G
    def chain(a,b):
        return [f"v_max_u32 v{MXS}, v{BF+8*a}, v{BF+8*a+2}"]+[f"v_max3_u32 v{MXS}, v{BF+4*k}, v{BF+4*k+2}, v{MXS}" for k in range(2*a+1,2*b)]
    cmp_=f"v_cmp_eq_u32 vcc, -1, v{MXS}"
    def retry(a,b):
        e=10 if a>=5 else 5
        def f():
            p(f"L_og{a}:\ns_sub_u32 s{sRETRY}, s{sRETRY}, 1\ns_cbranch_scc1 L_ogr{a}")
            sl=CFG['osl'][a//5]
            if sl: p(f"s_sleep {sl}")
            for k in range(a,e): bload(k)
            p(f"s_waitcnt vmcnt({20-2*b if e==10 else 0})")
            for x in chain(a,b): p(x)
            p(f"{cmp_}\ns_nop 0\ns_cbranch_vccnz L_og{a}\ns_branch L_ogr{a}")
        cold(f)
    RM={}
    for j in range(10): RM.setdefault(max(-1,int(CFG['orem2'][0]+j*CFG['orem2'][1])),[]).append(j)
    assert max(RM)<=24
    nis=10
    for j in RM.get(-1,()): bload(5+j//2,(j&1,)); nis+=1
    p(f"s_waitcnt vmcnt({nis-2*G[0]})")
    for x in chain(0,G[0]): p(x)
    p(f"{cmp_}\ns_nop 0\ns_cbranch_vccnz L_og0\nL_ogr0:"); retry(0,G[0])
    STAMP('pl')
    def mf(m,u):
        s_,t_=divmod(m,5)
        a_=vr((WACC,ACC2)[u]+4*t_,4)
        p(f"v_mfma_f32_16x16x32_bf16 {a_}, {vr(af(m),4)}, {vr(BF+8*s_+4*u,4)}, {0 if u and s_==0 else a_}")
    WE=CFG['wwe2']
    for m in range(45):
        s_,t_=divmod(m,5)
        nx=s_+1 if s_+1 in G else None
        if m==25:
            STAMP('pr')
            p(f"""s_mov_b64 exec, 1
            ds_add_u32 v{t+7}, v{t+12} offset:{F_LD-F_WO2}"""); LG.append('x')
            if 'PR' in (CFG['gstart'],CFG['dstart'],CFG['dgate'],CFG['mtg']):
                p(f"v_mov_b32 v{t+4}, {F_PR}\nds_add_u32 v{t+4}, v{t+12}"); LG.append('x')
            p("s_mov_b64 exec, -1")
        w=[]
        if nx is not None and t_==1: w.append(f"vmcnt({nis-2*G[nx]}"); assert nis>=2*G[nx]
        n=lgw(m+WE-1) if m%WE==0 else None
        if n is not None: w.append(f"lgkmcnt({n}")
        if w: p("s_waitcnt "+") ".join(w)+")")
        mf(m,1)
        if m==25-2*LA-1: p(f"ds_read_b32 v{t+6}, v{t+7}"); LG.append('x')
        if m+LA==25:
            assert nx is None or t_<3
            p(f"v_cmp_gt_u32 vcc, 2, v{t+6}\ns_nop 0\ns_cbranch_vccnz L_wo2w\nL_wo2r:")
            def f():
                p("L_wo2w:"); lds_wait(t+7,t+6,C,'gt',2,0); p("s_branch L_wo2r")
            cold(f)
        if m==44-LA: p(f"ds_read_b32 v{t+6}, v{t+7} offset:{F_LD-F_WO2}"); LG.append('x')
        if m+LA<50: aread(m+LA,(0,) if CFG['wsplit'] else (0,1))
        mf(m,0)
        if m+LA<50 and CFG['wsplit']: aread(m+LA,(1,))
        for j in RM.get(m,()): bload(5+j//2,(j&1,)); nis+=1
        if CFG['mtg']=='RL' and m==max(RM)+CFG['rld']:
            p(f"s_mov_b64 exec, 1\nv_mov_b32 v{t+4}, {F_H2}\nds_add_u32 v{t+4}, v{t+12}\ns_mov_b64 exec, -1"); LG.append('x')
        if nx is not None:
            ch=chain(nx,G[nx]); k=-(-len(ch)//2)
            if t_==1:
                for x in ch[:k]: p(x)
            if t_==2:
                for x in ch[k:]: p(x)
            if t_==3: p(cmp_)
            if t_==4:
                if nx==5: STAMP('loc')
                p(f"s_cbranch_vccnz L_og{nx}\nL_ogr{nx}:"); retry(nx,G[nx])
                STAMP('og%d'%nx)
    assert LA>=5 and 9 not in G
    for m in range(45,50):
        n=lgw(m)
        if n is not None: p(f"s_waitcnt lgkmcnt({n})")
        mf(m,1)
        if m==45:
            p(f"v_cmp_gt_u32 vcc, 4, v{t+6}\nv_mov_b32 v{t}, 0x3f803f80\ns_cbranch_vccnz L_ldw\nL_ldr:")
            def f():
                p(f"L_ldw:\nv_add_u32 v{t+7}, {F_LD-F_WO2}, v{t+7}"); lds_wait(t+7,t+6,C,'gt',4,0); p("s_branch L_ldr")
            cold(f)
    p(f"""v_mov_b32 v{t+2}, 0
    v_mov_b32 v{t+3}, 0
    v_mov_b32 v{t+4}, 0
    v_xor_b32 v{t+5}, 1024, v{aXW}""")
    for k in range(5):
        p(f"ds_write_b128 v{aXW}, {vr(ACC2+4*k,4)} offset:{2048*k}")
        mf(45+k,0)
    lp=p.lab("xw"); ok=p.lab("xok")
    STAMP('xw')
    p(f"""ds_write_b32 v{t+10}, v{t+12}
    s_mov_b32 s{C}, {SPIN*4}
    {lp}:
    ds_read_b32 v{t+6}, v{t+11}""")
    for k in range(5): p(f"ds_read_b128 {vr(BF+4*k,4)}, v{t+5} offset:{2048*k}")
    p(f"""s_waitcnt lgkmcnt(5)
    v_cmp_eq_u32 vcc, 0, v{t+6}
    s_nop 0
    s_cbranch_vccz {ok}""")
    spin(C,lp,ok)
    p(f"s_waitcnt lgkmcnt(0)\ns_branch {lp}\n{ok}:")
    for k in range(5):
        p(f"s_waitcnt lgkmcnt({4-k})")
        for j in range(2): p(f"v_pk_add_f32 {vr(WACC+4*k+2*j,2)}, {vr(WACC+4*k+2*j,2)}, {vr(BF+4*k+2*j,2)}")
def wo_gemm_old():
    t=vT; A=sT+7; B=sT+8; C=sT+17; MXS=t+8
    wo_scal(); wo_flags()
    p("s_waitcnt vmcnt(4)")
    acc_init()
    p(f"""v_mov_b32 v{t}, {F_WOR}
    v_mov_b32 v{t+1}, s{sTAG}
    s_cmp_eq_u32 s{sOSC}, 0
    s_cbranch_scc1 L_nofo
    s_mov_b64 exec, 3
    s_waitcnt vmcnt(0)
    buffer_store_dword v{t+1}, v{aFO}, {S4(sWS)}, 0 offen sc1
    s_mov_b64 exec, -1
    L_nofo:""")
    STAMP('fo')
    lds_wait(t,t+1,C,'gt',2,0)
    p(f"""ds_read_b32 v{SW}, v{t} offset:{L_SWS-F_WOR}
    L_wo:""")
    STAMP('wor')
    sROFF=[sOR,sOR+1,sPRB]
    LA=CFG['wla']; WE=CFG['wwe']
    LG=[]
    def af(m): return AF+4*(m%15)
    def aread(m):
        s_,t_=divmod(m,5)
        for rd in range(2):
            p(f"ds_read_b64_tr_b16 {vr(af(m)+2*rd,2)}, v{aAL if s_<10 else aAR} offset:{(s_%10)*5120+rd*2560+8*t_}"); LG.append(m)
    def lgw(m):
        k=[i for i,x in enumerate(LG) if x!='x' and x<=m]
        if not k: return None
        n=len(LG)-1-max(k); del LG[:max(k)+1]; return n
    def bload(s_):
        so=(sOL+(s_%10)//4) if s_<10 else sROFF[(s_%10)//4]
        return f"buffer_load_dwordx4 {vr(BF+4*s_,4)}, v{aLin}, {S4(sWS)}, s{so} offen offset:{(s_%10%4)*1024} sc1"
    for m in range(LA): aread(m)
    p(f"v_mov_b32 v{MXS}, 0\nv_mov_b32 v{t+7}, {F_WO2}")
    p(f"s_cmp_lg_u32 s{sMODE}, 0\ns_cbranch_scc1 L_plsl")
    probe(sOL,C)
    p("L_plr:")
    n0=len(p.L)
    p("L_plsl:"); flag_poll(aFR,t+4,sFLO,C); p("s_branch L_plr")
    COLD.append("\n".join(p.L[n0:])); del p.L[n0:]
    STAMP('pl')
    for s_ in range(10): p(bload(s_))
    p(f"buffer_load_dword v{t+4}, v{aFR}, {S4(sWS)}, s{sFRE} offen sc1")
    for m in range(100):
        s_,t_=divmod(m,5)
        if m==50:
            STAMP('loc')
            flag_poll(aFR,t+4,sFRE,C,first=False)
            STAMP('pr')
            for k in range(10,20): p(bload(k))
            if 'PR' in (CFG['gstart'],CFG['dstart'],CFG['dgate'],CFG['mtg']):
                p(f"""s_mov_b64 exec, 1
                v_mov_b32 v{t+4}, {F_PR}
                v_mov_b32 v{t+5}, 1
                ds_add_u32 v{t+4}, v{t+5}
                s_mov_b64 exec, -1"""); LG.append('x')
        w=[]
        if t_==0: w.append(f"vmcnt({(10-s_) if s_<10 else (19-s_)}")
        if m%WE==0:
            n=lgw(m+WE-1)
            if n is not None: w.append(f"lgkmcnt({n}")
        if w: p("s_waitcnt "+") ".join(w)+")")
        a_=vr(WACC+4*t_,4)
        p(f"v_mfma_f32_16x16x32_bf16 {a_}, {vr(af(m),4)}, {vr(BF+4*s_,4)}, {a_}")
        if m+LA==50-10: p(f"ds_read_b32 v{t+6}, v{t+7}"); LG.append('x')
        if m+LA==50:
            p(f"v_cmp_gt_u32 vcc, 2, v{t+6}\ns_nop 0\ns_cbranch_vccnz L_wo2w\nL_wo2r:")
            n0=len(p.L)
            p("L_wo2w:"); lds_wait(t+7,t+6,C,'gt',2,0); p("s_branch L_wo2r")
            COLD.append("\n".join(p.L[n0:])); del p.L[n0:]
        if m+LA<100: aread(m+LA)
        if t_==0 and s_<10: p(f"v_max3_u32 v{MXS}, v{BF+4*s_}, v{BF+4*s_+2}, v{MXS}")
    p(f"""v_cmp_eq_u32 vcc, -1, v{MXS}
    v_mov_b32 v{t}, 0x3f803f80
    v_mov_b32 v{t+2}, 0
    v_mov_b32 v{t+3}, 0
    v_mov_b32 v{t+4}, 0
    s_cbranch_vccnz L_woredo
    L_wook:""")
    COLD.append(f"L_woredo:\ns_sub_u32 s{sRETRY}, s{sRETRY}, 1\ns_cbranch_scc1 L_wook\ns_nop 7")
    q=P();
    COLD.append("\n".join(f"v_lshlrev_b32 v{WACC+2*k}, 16, v{XR+k}\nv_and_b32 v{WACC+2*k+1}, 0xffff0000, v{XR+k}" for k in range(10))+"\ns_branch L_wo")
def wo_main():
    t=vT; A=sT+7; B=sT+8; C=sT+17
    (wo_gemm2 if CFG['wsp'] else wo_gemm if CFG['osent'] else wo_gemm_old)()
    STAMP('wend')
    for k in range(10): p(f"v_cvt_pk_bf16_f32 v{HP+k}, v{WACC+2*k}, v{WACC+2*k+1}")
    for k in range(10):
        p(f"""v_dot2_f32_bf16 v{t+2}, v{HP+k}, v{t}, v{t+2}
        v_dot2_f32_bf16 v{t+4}, v{HP+k}, v{HP+k}, v{t+4}
        v_dot2_f32_bf16 v{t+3}, v{HP+k}, v{WR_+k}, v{t+3}""")
    p(f"""s_lshl_b32 s{A}, s{sJ}, 4
    s_add_u32 s{A}, s{A}, s{sPSO}""")
    red3(t+2,t+3,t+4,t+5)
    p(f"""v_mov_b32 v{t+5}, s{sTAG}
    s_mov_b64 exec, 0xffff
    s_cmp_lg_u32 s{sMODE}, 0
    s_cbranch_scc1 L_pssc
    buffer_store_dwordx4 {vr(t+2,4)}, v{aPS}, {S4(sWS)}, s{A} offen
    L_psr:""")
    if 'WE' in (CFG['gstart'],CFG['g2nd'][0],CFG['mtg']): p(f"s_mov_b64 exec, 1\nv_mov_b32 v{t+10}, {F_SCP}\nv_mov_b32 v{t+11}, 1\nds_add_u32 v{t+10}, v{t+11}")
    p("s_mov_b64 exec, -1")
    COLD.append(f"L_pssc:\nbuffer_store_dwordx4 {vr(t+2,4)}, v{aPS}, {S4(sWS)}, s{A} offen sc1\ns_branch L_psr")
    STAMP('ps')
    G=t+10
    lp=p.lab("ps"); ok=p.lab("psok"); md=p.lab("psm")
    ld=f"""buffer_load_dwordx4 {vr(G,4)}, v{aPS}, {S4(sWS)}, s{sPSO} offen sc1
    buffer_load_dwordx4 {vr(G+4,4)}, v{aPS}, {S4(sWS)}, s{sPSO} offen offset:16 sc1"""
    p(ld)
    for k in range(10): p(f"v_lshlrev_b32 v{HF_+2*k}, 16, v{HP+k}\nv_and_b32 v{HF_+2*k+1}, 0xffff0000, v{HP+k}")
    if CFG['dbg']:
        p(f"s_add_u32 s{A}, s{sXO}, {HB}")
        for o,n in ((0,4),(4,4),(8,2)): p(f"buffer_store_dwordx{n} {vr(HP+o,n)}, v{aX2}, {S4(sWS)}, s{A} offen offset:{4*o}")
    p(f"""s_lshl_b32 s{A}, s{sRT}, 4
    s_sub_u32 s{A}, 2047, s{A}
    v_and_b32 v{t}, 15, v0
    v_sub_u32 v{t+9}, s{A}, v{t}
    v_lshlrev_b32 v{t+9}, 3, v{t+9}
    s_lshl_b32 s{A}, s{sWAVE}, 6
    s_add_u32 s{A}, s{A}, {L_KEYS}
    v_lshl_add_u32 v{aKY}, v{t}, 2, s{A}
    v_and_b32 v{t}, 48, v0
    v_lshlrev_b32 v{t}, 2, v{t}
    v_add_u32 v{t+8}, {L_KEYS}, v{t}
    s_mov_b32 s{C}, {SPIN}
    s_branch {md}
    {lp}:
    {ld}
    {md}:
    s_waitcnt vmcnt(0)
    v_cmp_ne_u32 vcc, s{sTAG}, v{G+3}
    v_cmp_ne_u32 s[{sT+14}:{sT+15}], s{sTAG}, v{G+7}
    v_pk_add_f32 {vr(t+4,2)}, {vr(G,2)}, {vr(G+4,2)}
    v_add_f32 v{t+6}, v{G+2}, v{G+6}
    s_or_b64 vcc, vcc, s[{sT+14}:{sT+15}]
    s_cbranch_scc0 {ok}""")
    spin(C,lp,ok)
    p(f"""s_branch {lp}
    {ok}:""")
    STAMP('psr'); COUNT('npsr',C,SPIN)
    if 'PS' in (CFG['g2nd'][0],CFG['gstart'],CFG['dstart'],CFG['dgate'],CFG['mtg']): p(f"""s_mov_b64 exec, 1
    v_mov_b32 v{G}, {F_PS}
    v_mov_b32 v{G+1}, 1
    ds_add_u32 v{G}, v{G+1}
    s_mov_b64 exec, -1""")
    M=t+4
    red3(M,M+1,M+2,M+3)
    p(f"""v_mul_f32 v{M}, {1/640!r}, v{M}
    v_mul_f32 v{M+2}, {1/640!r}, v{M+2}
    v_fma_f32 v{M+2}, -v{M}, v{M}, v{M+2}
    v_max_f32 v{M+2}, 0, v{M+2}""")
    bf16r(M+2,M+2)
    p(f"v_add_f32 v{M+2}, 0x3727c5ac, v{M+2}")
    bf16r(M+2,M+2)
    p(f"v_sqrt_f32 v{M+2}, v{M+2}")
    bf16r(M,M)
    bf16r(M+2,M+2)
    RS=t+2
    p(f"""v_rcp_f32 v{RS}, v{M+2}
    v_fma_f32 v{M+1}, -v{M}, v{SW}, v{M+1}
    v_mul_f32 v{M+1}, v{M+1}, v{RS}
    v_cvt_pk_bf16_f32 v{M+1}, v{M+1}, v{M+1}
    v_mul_f32 v{RS+1}, -v{M}, v{RS}
    v_ashrrev_i32 v{M+2}, 31, v{M+1}
    v_or_b32 v{M+2}, 0x80000000, v{M+2}
    v_xor_b32 v{M+1}, v{M+1}, v{M+2}
    v_and_b32 v{M+1}, 0xffff0000, v{M+1}
    v_or_b32 v{KEY}, v{M+1}, v{t+9}
    ds_write_b32 v{aKY}, v{KEY}""")
    for k in range(10): p(f"v_pk_fma_f32 {vr(WACC+2*k,2)}, {vr(HF_+2*k,2)}, {vr(RS,2)}, {vr(RS,2)} op_sel:[0,0,1] op_sel_hi:[1,0,1]")
    K16=AF
    lp=p.lab("ky"); ok=p.lab("kyok")
    p(f"s_mov_b32 s{C}, {SPIN*4}\n{lp}:")
    for i in range(4): p(f"ds_read_b128 {vr(K16+4*i,4)}, v{t+8} offset:{16*i}")
    p("s_waitcnt lgkmcnt(0)")
    p(f"v_max3_u32 v{t}, v{K16}, v{K16+1}, v{K16+2}")
    for i in range(3,15,2): p(f"v_max3_u32 v{t}, v{K16+i}, v{K16+i+1}, v{t}")
    p(f"""v_max_u32 v{t}, v{t}, v{K16+15}
    v_cmp_eq_u32 vcc, -1, v{t}
    v_mov_b32 v{t}, 0
    s_cbranch_vccz {ok}""")
    spin(C,lp,ok)
    p(f"s_branch {lp}\n{ok}:")
    STAMP('keys')
    m0_=sT+18
    for i in range(18):
        if i<16: p(f"v_cmp_gt_u32 s[{m0_+2*(i%2)}:{m0_+2*(i%2)+1}], v{K16+i}, v{KEY}") if False else None
    MK=[sT+14,sT+16,sT+18]
    for i in range(18):
        if i<16: m=MK[i%3]; p(f"v_cmp_gt_u32 s[{m}:{m+1}], v{K16+i}, v{KEY}")
        elif i==16: p("s_nop 0")
        if i>=2: m=MK[(i-2)%3]; p(f"v_addc_co_u32 v{t}, vcc, 0, v{t}, s[{m}:{m+1}]")
    p(f"""v_mov_b32 v{t+1}, v{t}
    v_cvt_pk_bf16_f32 v{LP}, v{WACC}, v{WACC+1}
    v_cvt_pk_bf16_f32 v{LP+1}, v{WACC+2}, v{WACC+3}
    v_permlane32_swap_b32 v{t}, v{t+1}
    v_cvt_pk_bf16_f32 v{LP+2}, v{WACC+4}, v{WACC+5}
    v_add_u32 v{t}, v{t}, v{t+1}
    v_mov_b32 v{t+1}, v{t}
    v_cvt_pk_bf16_f32 v{LP+3}, v{WACC+6}, v{WACC+7}
    v_cvt_pk_bf16_f32 v{LP+4}, v{WACC+8}, v{WACC+9}
    v_permlane16_swap_b32 v{t}, v{t+1}
    v_cvt_pk_bf16_f32 v{LP+5}, v{WACC+10}, v{WACC+11}
    v_add_u32 v{t}, v{t}, v{t+1}
    v_cmp_gt_u32 s[{sCAND}:{sCAND+1}], 8, v{t}
    v_or_b32 v{KEY}, v{KEY}, v{t}
    v_mov_b32 v{t+1}, {L_CA&~0xffff}
    v_lshl_add_u32 v{t+1}, v{t}, 3, v{t+1}
    v_mov_b32 v{KEY+1}, s{sTAG}
    s_cmp_lg_u32 s{sJ}, 0
    s_cbranch_scc1 L_noca
    s_and_b32 exec_lo, s{sCAND}, 0xffff
    s_mov_b32 exec_hi, 0
    ds_write_b64 v{t+1}, {vr(KEY,2)} offset:{L_CA&0xffff}
    s_mov_b64 exec, 0xff
    s_cmp_lg_u32 s{sWAVE}, 0
    s_cbranch_scc1 L_noca
    v_lshlrev_b32 v{t+2}, 3, v0
    v_add_u32 v{t+3}, {L_CA}, v{t+2}
    s_lshl_b32 s{A}, s{sBLK}, 7
    s_add_u32 s{A}, s{A}, {CA}
    s_mov_b32 s{C}, {SPIN*4}
    L_cal:
    ds_read_b64 v[{t+4}:{t+5}], v{t+3}
    s_waitcnt lgkmcnt(0)
    v_cmp_ne_u32 vcc, s{sTAG}, v{t+5}
    s_nop 0
    s_cbranch_vccz L_caok""")
    spin(C,"L_cal","L_caok")
    p(f"""s_branch L_cal
    L_caok:
    buffer_store_dwordx2 v[{t+4}:{t+5}], v{t+2}, {S4(sWS)}, s{A} offen sc1
    L_noca:
    s_mov_b64 exec, -1""")
    STAMP('ca')
    for k in range(6,10): p(f"v_cvt_pk_bf16_f32 v{LP+k}, v{WACC+2*k}, v{WACC+2*k+1}")
    p(f"""v_lshrrev_b32 v{t+1}, 4, v0
    v_mul_u32_u24 v{t+1}, 40, v{t+1}
    v_mul_u32_u24 v{t}, 2560, v{t}
    v_add_u32 v{aCD}, v{t}, v{t+1}
    s_mul_i32 s{A}, s{sBLK}, 20480
    s_mul_i32 s{B}, s{sJ}, 160
    s_add_u32 s{A}, s{A}, s{B}
    s_add_u32 s{A}, s{A}, {CAND}
    s_and_b64 exec, s[{sCAND}:{sCAND+1}], -1
    s_cbranch_scc0 L_nocd""")
    for base,off in ((LP,0),(HP,1280)):
        if 'nocand' in CFG['xp'] or ('noh' in CFG['xp'] and off): continue
        for o,n in ((0,4),(4,4),(8,2)): p(f"buffer_store_dwordx{n} {vr(base+o,n)}, v{aCD}, {S4(sWS)}, s{A} offen offset:{off+4*o} sc1")
    p("L_nocd:\ns_mov_b64 exec, -1")
    for k in range(10): p(f"v_pk_add_f32 {vr(WACC+2*k,2)}, {vr(WACC+2*k,2)}, {vr(HF_+2*k,2)}")
    for k in range(10): p(f"v_cvt_pk_bf16_f32 v{OP+k}, v{WACC+2*k}, v{WACC+2*k+1}")
    if CFG['odf']: p(f"s_cmp_lt_u32 s{sMI}, {CFG['odf']}\ns_cbranch_scc1 L_noo1")
    p(f"s_andn2_b64 exec, -1, s[{sCAND}:{sCAND+1}]\ns_cbranch_scc0 L_noo1")
    if 'noout' not in CFG['xp']: out_store()
    p("L_noo1:")
    if 1: p(f"""s_mov_b64 exec, 1
    v_mov_b32 v{t+4}, {F_O1}
    v_mov_b32 v{t+5}, 1
    ds_add_u32 v{t+4}, v{t+5}
    s_mov_b64 exec, -1""")
    else: p("s_mov_b64 exec, -1")
    STAMP('o1')
KEY=228; sCAND=sT+20
def out_store():
    for o,n in ((0,4),(4,4),(8,2)): p(f"buffer_store_dwordx{n} {vr(OP+o,n)}, v{aX2}, {S4(sOUT)}, s{sXO} offen offset:{4*o} {CFG['opol']}")

def moe_weights():
    A=sT+7; B=sT+8; vt=2; D=40; aW_=12
    gu=p.lab("mwgu"); wr=p.lab("mwwr"); en=p.lab("mwend")
    FA=dict(WOD=(F_WOD,2),PR=(F_PR,4),O1=(F_O1,4),DONE=(F_DONE,4),G2=(F_G2,2),PS=(F_PS,4),WO2=(F_WO2,2),WE=(F_SCP,4),TOP=(L_TOP,0))
    def gate(k):
        p(f"v_mov_b32 v{vt+4}, {FA[k][0]}")
        if k=='TOP': lds_wait(vt+4,vt+5,sT+5,'eq',-1,2)
        else: lds_wait(vt+4,vt+5,sT+5,'gt',FA[k][1],2)
    pl_=p.lab("mwpl")
    p(f"""s_cmp_ge_u32 s{sMI}, 17
    s_cbranch_scc1 {pl_}
    v_bfe_u32 v{vt}, v0, 3, 2
    v_lshrrev_b32 v{vt+1}, 5, v0
    v_lshlrev_b32 v{vt}, 1, v{vt}
    v_add_lshl_u32 v{vt}, v{vt}, v{vt+1}, 2
    v_bfe_u32 v{vt+1}, v0, 1, 2
    v_add_u32 v{vt}, v{vt}, v{vt+1}
    v_and_b32 v{vt+1}, 1, v0
    v_lshlrev_b32 v{vt+1}, 4, v{vt+1}
    s_cmp_lt_u32 s{sMI}, 12
    s_cbranch_scc1 {gu}
    v_mul_u32_u24 v{vt}, 1280, v{vt}
    v_add_u32 v{aW_}, v{vt}, v{vt+1}
    s_mul_i32 s{A}, s{sG}, 5
    s_add_u32 s{A}, s{A}, s{sMI}
    s_sub_u32 s{A}, s{A}, 12
    s_lshl_b32 s{A}, s{A}, 5
    s_mul_i32 s{B}, s{HW}, {12*32*1280}
    s_add_u32 s{A}, s{A}, s{B}""")
    gate(CFG['dstart'])
    STAMP('mg')
    for s_ in range(12):
        if s_>=CFG['ddep']: p(f"s_waitcnt vmcnt({CFG['ddep']-1})")
        p(f"buffer_load_dwordx4 {vr(D+4*s_,4)}, v{aW_}, {S4(sWD)}, s{A} offen {CFG['mpol']}")
        if s_<11: p(f"s_add_u32 s{A}, s{A}, {32*1280}")
    p(f"""s_mul_i32 s{B}, s{HW}, 12288
    s_branch {wr}
    {pl_}:""")
    for g_,h_ in CFG['wb']:
        sk=p.lab("nowb")
        p(f"s_lshl_b32 s{A}, s{sSLOT}, 2\ns_add_u32 s{A}, s{A}, s{HW}\ns_cmp_lg_u32 s{A}, {4*CFG['wbs']+h_}\ns_cbranch_scc1 {sk}")
        if g_!='no': gate(g_)
        p(f"buffer_wbl2 sc1\ns_waitcnt vmcnt(0)\n{sk}:")
    if CFG['dgate']!='no' and not CFG['dw3']:
        if CFG['dtn']: p(f"s_cmp_ge_u32 s{sMI}, 28\ns_cbranch_scc1 {en}")
        gate(CFG['dgate'])
        touch(vTD,sWD,CFG['mpair'])
        if CFG['dtn']: p("s_mov_b64 exec, 63"); touch(vTD2,sWD,0); p("s_mov_b64 exec, -1")
        STAMP('mg')
        if CFG['prof']: p("s_waitcnt vmcnt(0)"); STAMP('mw')
    p(f"""s_branch {en}
    {gu}:
    v_mul_u32_u24 v{vt}, 3072, v{vt}
    v_add_u32 v{aW_}, v{vt}, v{vt+1}
    s_mul_i32 s{A}, s{sG}, 12
    s_add_u32 s{A}, s{A}, s{sMI}
    s_lshl_b32 s{A}, s{A}, 5
    s_mul_i32 s{B}, s{HW}, {5*32*3072}
    s_add_u32 s{A}, s{A}, s{B}""")
    gate(CFG['gstart'])
    STAMP('mg')
    for s_ in range(5):
        for m_ in range(2):
            if 2*s_+m_==CFG['g2nd'][1]: gate(CFG['g2nd'][0]); STAMP('mg2')
            if 2*s_+m_>=CFG['mdep']: p(f"s_waitcnt vmcnt({CFG['mdep']-1})")
            p(f"buffer_load_dwordx4 {vr(D+8*s_+4*m_,4)}, v{aW_}, {S4((sWG,sWU)[m_])}, s{A} offen {CFG['mpol']}")
        if s_<4: p(f"s_add_u32 s{A}, s{A}, {32*3072}")
    p(f"s_mul_i32 s{B}, s{HW}, 12288\n{wr}:\nv_lshl_add_u32 v{vt}, v0, 4, s{B}")
    gate('DONE')
    p("s_waitcnt vmcnt(0)")
    for s_ in range(12): p(f"ds_write_b128 v{vt}, {vr(D+4*s_,4)} offset:{L_MW+s_*1024}")
    p(f"""s_lshl_b32 s{A}, s{HW}, 2
    s_add_u32 s{A}, s{A}, {F_MW}
    v_mov_b32 v{vt}, s{A}
    ds_write_b32 v{vt}, v{vt}
    s_waitcnt lgkmcnt(0)""")
    STAMP('mw')
    p(f"{en}:")
def top8(R,K2,K1,y,tt):
    def clean(chs):
        seq=[]
        for (x,y_,t_) in chs:
            seq.append([f"v_max_u32_dpp v{y_}, v{x}, v{x} row_shl:4 row_mask:0xf bank_mask:0x5",
                        f"v_min_u32_dpp v{y_}, v{x}, v{x} row_shr:4 row_mask:0xf bank_mask:0xa",
                        None,
                        f"v_mov_b32_dpp v{t_}, v{y_} quad_perm:[2,3,0,1] row_mask:0xf bank_mask:0xf",
                        f"v_med3_u32 v{y_}, v{y_}, v{t_}, v{K2}",
                        None,
                        f"v_mov_b32_dpp v{t_}, v{y_} quad_perm:[1,0,3,2] row_mask:0xf bank_mask:0xf",
                        f"v_med3_u32 v{x}, v{y_}, v{t_}, v{K1}"])
        n=len(chs)
        p(f"s_nop {2-n}")
        for i in range(8):
            if seq[0][i] is None: p(f"s_nop {2-n}")
            else:
                for c in seq: p(c[i])
                if i==0 and n==1: p("s_nop 1")
                elif i==0: p("s_nop 0")
    dp="row_mask:0xf bank_mask:0xf"
    p(f"v_max_u32_dpp v{R}, v{R+2}, v{R} row_half_mirror {dp}\nv_max_u32_dpp v{R+4}, v{R+6}, v{R+4} row_half_mirror {dp}")
    clean([(R,y,tt),(R+4,y+1,tt+1)])
    p(f"s_nop 1\nv_max_u32_dpp v{R}, v{R+4}, v{R} row_half_mirror {dp}")
    clean([(R,y,tt)])
    p(f"s_nop 1\nv_max_u32_dpp v{R}, v{R}, v{R} row_mirror {dp}")
    clean([(R,y,tt)])
    for msk,sw in ((0xa,16),(0xc,32)):
        p(f"""s_nop 1
        v_mov_b32_dpp v{R}, v{R} row_half_mirror row_mask:{hex(msk)} bank_mask:0xf
        v_mov_b32 v{tt}, v{R}
        s_nop 1
        v_permlane{sw}_swap_b32 v{R}, v{tt}
        s_nop 0
        v_max_u32 v{R}, v{R}, v{tt}""")
        clean([(R,y,tt)])
def moe():
    t=vT; A=sT+7; B=sT+8; C=sT+17; sTHR=sT+14; sKQ=sT+3
    R=12; K2=20; K1=21; aC=22; AW=108
    BL=160
    p(f"""s_cmp_ge_u32 s{sMI}, 17
    s_cbranch_scc1 L_plain
    v_lshrrev_b32 v{t}, 3, v0
    v_and_b32 v{t+1}, 7, v0
    v_lshlrev_b32 v{t+1}, 3, v{t+1}
    v_lshl_add_u32 v{aC}, v{t}, 7, v{t+1}
    s_mov_b32 s{B}, {CA}""")
    ld="\n".join(f"buffer_load_dwordx2 {vr(R+2*i,2)}, v{aC}, {S4(sWS)}, s{B} offen offset:{i*1024} sc1" for i in range(4))
    aMF=4; aMW=5
    def getw():
        lds_wait(AW-aMF,t+10 if False else AW,C,'eq',0,0)
        STAMP('mwr')
        for s_ in range(12):
            for rd in range(2): p(f"ds_read_b64_tr_b16 {vr(AW+4*s_+2*rd,2)}, v{AW-aMW} offset:{L_MW+s_*1024+rd*512}")
    p(f"""s_cmp_lg_u32 s{sWAVE}, 0
    s_cbranch_scc1 L_nocal
    {ld}
    L_nocal:
    v_bfe_i32 v{K2}, v0, 1, 1
    v_bfe_i32 v{K1}, v0, 0, 1
    v_not_b32 v{K2}, v{K2}
    v_not_b32 v{K1}, v{K1}
    s_add_u32 s{sKQ}, s{sWAVE}, {CFG['kqr']}
    s_and_b32 s{sKQ}, s{sKQ}, 3
    s_lshl_b32 s{A}, s{sKQ}, 2
    s_add_u32 s{A}, s{A}, {F_MW}
    v_mov_b32 v{AW-aMF}, s{A}
    s_mul_i32 s{A}, s{sKQ}, 12288
    v_lshl_add_u32 v{AW-aMW}, v0, 3, s{A}
    v_and_b32 v{t}, 7, v0
    v_lshlrev_b32 v{t}, 2, v{t}
    v_add_u32 v{AW-6}, {L_TOP}, v{t}
    s_cmp_ge_u32 s{sMI}, 12
    s_cbranch_scc1 L_now""")
    getw()
    lp=p.lab("ca"); ok=p.lab("caok"); md=p.lab("cam")
    p(f"""L_now:
    s_cmp_lg_u32 s{sWAVE}, 0
    s_cbranch_scc1 L_topw
    s_mov_b32 s{C}, {SPIN}
    s_branch {md}
    {lp}:
    {ld}
    {md}:
    s_waitcnt vmcnt(0)
    v_xor_b32 v{t}, v{R+1}, v{R+3}
    v_xor_b32 v{t+1}, v{R+5}, v{R+7}
    v_xor_b32 v{R+1}, s{sTAG}, v{R+1}
    v_xor_b32 v{R+5}, s{sTAG}, v{R+5}
    v_or3_b32 v{t}, v{t}, v{t+1}, v{R+1}
    v_or_b32 v{t}, v{t}, v{R+5}
    v_cmp_ne_u32 vcc, 0, v{t}
    s_nop 0
    s_cbranch_vccz {ok}""")
    spin(C,lp,ok,CFG['casl'])
    if CFG['dasl']: p(f"s_cmp_lt_u32 s{sMI}, 12\ns_cbranch_scc1 {lp}\ns_sleep {CFG['dasl']}")
    p(f"s_branch {lp}\n{ok}:")
    STAMP('car'); COUNT('ncar',C,SPIN)
    top8(R,K2,K1,t,t+2)
    p(f"ds_write_b32 v{AW-6}, v{R}\ns_branch L_top\nL_topw:\ns_waitcnt vmcnt(0)")
    lds_wait(AW-6,R,C,'eq',-1,0)
    p("L_top:")
    STAMP('top')
    TOK=t+1; aR=t+2
    p(f"""v_bfe_u32 v{TOK}, v{R}, 3, 11
    v_sub_u32 v{TOK}, 2047, v{TOK}
    v_lshrrev_b32 v{t}, 6, v{TOK}
    v_and_b32 v{aR}, 7, v{R}
    v_lshl_add_u32 v{aR}, v{t}, 3, v{aR}
    v_mul_u32_u24 v{aR}, 2560, v{aR}
    v_lshrrev_b32 v{t}, 4, v0
    v_readlane_b32 s{sTHR}, v{R}, 7
    s_cmp_ge_u32 s{sMI}, 12
    s_cbranch_scc1 L_down""")
    def deferred(tag):
        allrows=CFG['odf']>=(12 if tag[0]=='g' else 17 if tag=='d' else 99)
        p(f"""v_cmp_gt_u32 vcc, s{sTHR}, v{KEY}
        s_nop 0
        {'s_orn2_b64' if allrows else 's_and_b64'} exec, vcc, s[{sCAND}:{sCAND+1}]
        s_cbranch_scc0 L_nd{tag}""")
        out_store()
        p(f"L_nd{tag}:\ns_mov_b64 exec, -1")
    p(f"""v_lshl_add_u32 v{aR}, v{t}, 4, v{aR}
    s_mul_i32 s{A}, s{sKQ}, 320
    s_add_u32 s{A}, s{A}, {CAND}""")
    ld="\n".join(f"buffer_load_dwordx4 {vr(BL+4*i,4)}, v{aR}, {S4(sWS)}, s{A} offen offset:{i*64} sc1" for i in range(5))
    lp=p.lab("gl"); ok=p.lab("glok"); md=p.lab("glm"); nt=p.lab("noth")
    XM="s_mov_b32 exec_lo, 0x00ff00ff\ns_mov_b32 exec_hi, 0x00ff00ff" if CFG['xm'] else "s_mov_b64 exec, -1"
    if CFG['xm']: p(XM)
    p(ld)
    p(f"""s_or_b32 s{B}, s{sMI}, s{sWAVE}
    s_cbranch_scc1 {nt}
    v_mov_b32 v{t+4}, s{sTHR}
    v_mov_b32 v{t+5}, s{sTAG}
    s_lshl_b32 s{B}, s{sG}, 7
    s_add_u32 s{B}, s{B}, {TH}
    v_mov_b32 v{t+6}, 0
    s_mov_b64 exec, 1
    buffer_store_dwordx2 v[{t+4}:{t+5}], v{t+6}, {S4(sWS)}, s{B} offen sc1
    {nt}:
    s_mov_b64 exec, -1
    s_lshl_b32 s{B}, s{sWAVE}, 11
    s_add_u32 s{B}, s{B}, {L_RED}
    v_lshl_add_u32 v{t+3}, v0, 4, s{B}
    {XM}
    s_mov_b32 s{C}, {SPIN}
    s_branch {md}
    {lp}:
    {ld}
    {md}:
    s_waitcnt vmcnt(0) lgkmcnt(0)
    v_max3_u32 v{t+4}, v{BL}, v{BL+2}, v{BL+4}
    v_max3_u32 v{t+5}, v{BL+6}, v{BL+8}, v{BL+10}
    v_max3_u32 v{t+4}, v{BL+12}, v{BL+14}, v{t+4}
    v_max3_u32 v{t+5}, v{BL+16}, v{BL+18}, v{t+5}
    v_max_u32 v{t+4}, v{t+4}, v{t+5}
    v_cmp_eq_u32 vcc, -1, v{t+4}
    s_nop 0
    {'s_branch' if 'nocand' in CFG['xp'] else 's_cbranch_vccz'} {ok}""")
    spin(C,lp,ok)
    p(f"s_branch {lp}\n{ok}:")
    STAMP('lr'); COUNT('nlr',C,SPIN)
    if CFG['xm']: p("s_mov_b64 exec, -1")
    G=20; U=24; X=28
    for s_ in range(5):
        for m_,a_ in ((0,G),(1,U)):
            p(f"v_mfma_f32_16x16x32_bf16 {vr(a_,4)}, {vr(AW+8*s_+4*m_,4)}, {vr(BL+4*s_,4)}, {vr(a_,4) if s_ else 0}")
    w0=p.lab("guw0")
    p(f"""s_cmp_eq_u32 s{sWAVE}, 0
    s_cbranch_scc1 {w0}
    s_nop 5
    ds_write_b128 v{t+3}, {vr(G,4)}
    ds_write_b128 v{t+3}, {vr(U,4)} offset:1024
    s_waitcnt lgkmcnt(0)
    s_barrier""")
    deferred('g1')
    END()
    p(f"""{w0}:
    s_mul_i32 s{A}, s{sG}, 12
    s_add_u32 s{A}, s{A}, s{sMI}
    s_lshl_b32 s{A}, s{A}, 8
    s_add_u32 s{A}, s{A}, {ACT}
    v_and_b32 v{t+4}, 7, v0
    v_lshlrev_b32 v{t+4}, 4, v{t+4}
    v_lshrrev_b32 v{t+5}, 5, v0
    v_lshl_add_u32 v{t+4}, v{t+5}, 7, v{t+4}
    v_bfe_u32 v{t+5}, v0, 4, 1
    v_lshl_add_u32 v{t+4}, v{t+5}, 3, v{t+4}
    s_barrier""")
    STAMP('gb')
    for w_ in range(1,4):
        for m_ in range(2): p(f"ds_read_b128 {vr(X+8*(w_-1)+4*m_,4)}, v{t+3} offset:{w_*2048+m_*1024}")
    p(f"s_mov_b32 s{B}, {hex(f2u(-math.log2(math.e)))}")
    for w_ in range(3):
        p(f"s_waitcnt lgkmcnt({4-2*w_})")
        for k in range(4): p(f"v_pk_add_f32 {vr(G+2*k,2)}, {vr(G+2*k,2)}, {vr(X+8*w_+2*k,2)}")
    p(f"""v_cvt_pk_bf16_f32 v{X}, v{G}, v{G+1}
    v_cvt_pk_bf16_f32 v{X+1}, v{G+2}, v{G+3}
    v_cvt_pk_bf16_f32 v{X+2}, v{U}, v{U+1}
    v_cvt_pk_bf16_f32 v{X+3}, v{U+2}, v{U+3}""")
    for k in range(4): p(f"v_lshlrev_b32 v{G+2*k}, 16, v{X+k}\nv_and_b32 v{G+2*k+1}, 0xffff0000, v{X+k}")
    for k in range(4): p(f"v_mul_f32 v{X+k}, s{B}, v{G+k}")
    for k in range(4): p(f"v_exp_f32 v{X+k}, v{X+k}")
    for k in range(4): p(f"v_add_f32 v{X+k}, 1.0, v{X+k}")
    for k in range(4): p(f"v_rcp_f32 v{X+k}, v{X+k}")
    for k in range(4): p(f"v_mul_f32 v{G+k}, v{G+k}, v{X+k}")
    p(f"v_cvt_pk_bf16_f32 v{X}, v{G}, v{G+1}\nv_cvt_pk_bf16_f32 v{X+1}, v{G+2}, v{G+3}")
    for k in range(2): p(f"v_lshlrev_b32 v{G+2*k}, 16, v{X+k}\nv_and_b32 v{G+2*k+1}, 0xffff0000, v{X+k}")
    p(f"""v_pk_mul_f32 {vr(G,2)}, {vr(G,2)}, {vr(U,2)}
    v_pk_mul_f32 {vr(G+2,2)}, {vr(G+2,2)}, {vr(U+2,2)}
    v_cvt_pk_bf16_f32 v{X}, v{G}, v{G+1}
    v_cvt_pk_bf16_f32 v{X+1}, v{G+2}, v{G+3}
    s_mov_b32 exec_lo, 0x00ff00ff
    s_mov_b32 exec_hi, 0x00ff00ff
    buffer_store_dwordx2 {vr(X,2)}, v{t+4}, {S4(sWS)}, s{A} offen sc1""")
    if CFG['ahint']:
        p(f"""s_lshl_b32 s{A}, s{sG}, 5
        s_add_u32 s{A}, s{A}, s{sMI}
        s_lshl_b32 s{A}, s{A}, 2
        s_add_u32 s{A}, s{A}, {AH}
        v_mov_b32 v{t+4}, 0
        v_mov_b32 v{t+5}, s{sTAG}
        s_mov_b64 exec, 1""")
        dual([f"buffer_store_dword v{t+5}, v{t+4}, {S4(sWS)}, s{A} offen"])
    p("s_mov_b64 exec, -1")
    STAMP('act')
    deferred('g0')
    END()
    HL=20; Y=24; X=28; SG=t+8; aO2=t+9
    p(f"""L_down:
    v_lshl_add_u32 v{aR}, v{t}, 3, v{aR}
    v_mul_u32_u24 v{aO2}, 1280, v{TOK}
    v_lshl_add_u32 v{aO2}, v{t}, 3, v{aO2}
    v_and_b32 v{t+4}, 7, v0
    v_lshlrev_b32 v{t+4}, 4, v{t+4}
    v_lshl_add_u32 v{t+4}, v{t}, 7, v{t+4}
    s_mul_i32 s{sT+1}, s{sG}, 5
    s_add_u32 s{sT+1}, s{sT+1}, s{sMI}
    s_sub_u32 s{sT+1}, s{sT+1}, 12
    s_lshl_b32 s{sT+1}, s{sT+1}, 5
    s_add_u32 s{sT+2}, s{sT+1}, {CAND}
    s_mul_i32 s{A}, s{sKQ}, 6144
    s_add_u32 s{A}, s{A}, {ACT}
    s_add_u32 s{B}, s{A}, 4096""")
    ldh=f"buffer_load_dwordx2 {vr(HL,2)}, v{aR}, {S4(sWS)}, s{sT+2} offen sc1\nbuffer_load_dwordx2 {vr(HL+2,2)}, v{aR}, {S4(sWS)}, s{sT+2} offen offset:1280 sc1"
    if CFG['hll']: p(f"s_cmp_lg_u32 s{sWAVE}, 0\ns_cbranch_scc1 L_nohl\n{XM}\n{ldh}\ns_mov_b64 exec, -1\nL_nohl:")
    else: p(ldh)
    deferred('d')
    p(f"""v_ashrrev_i32 v{SG}, 31, v{R}
    v_not_b32 v{SG}, v{SG}
    v_or_b32 v{SG}, 0x80000000, v{SG}
    v_xor_b32 v{SG}, v{SG}, v{R}
    v_and_b32 v{SG}, 0xffff0000, v{SG}
    v_mul_f32 v{SG}, {hex(f2u(-math.log2(math.e)))}, v{SG}
    v_exp_f32 v{SG}, v{SG}
    s_lshl_b32 s{C}, s{sWAVE}, 10
    v_add_f32 v{SG}, 1.0, v{SG}
    v_rcp_f32 v{SG}, v{SG}
    s_add_u32 s{C}, s{C}, {L_RED}
    v_lshl_add_u32 v{t+3}, v0, 4, s{C}""")
    bf16r(SG,SG)
    lp=p.lab("hl"); ok=p.lab("hlok"); md=p.lab("hlm")
    if not CFG['hll']: p(f"""s_mov_b32 s{C}, {SPIN}
    s_branch {md}
    {lp}:
    {ldh}
    {md}:
    s_waitcnt vmcnt(0)
    v_max_u32 v{t+5}, v{HL}, v{HL+2}
    v_cmp_eq_u32 vcc, -1, v{t+5}
    s_nop 0
    {'s_branch' if CFG['xp'] else 's_cbranch_vccz'} {ok}""")
    if not CFG['hll']:
        spin(C,lp,ok)
        p(f"s_branch {lp}\n{ok}:")
    getw()
    ld="\n".join([f"buffer_load_dwordx4 {vr(BL+4*i,4)}, v{t+4}, {S4(sWS)}, s{A if i<8 else B} offen offset:{(i%8)*512} sc1" for i in range(12)])
    if CFG['ahint']:
        p(f"""v_min_u32 v{t+6}, {CFG['ahint']-1}, v0
        v_lshlrev_b32 v{t+6}, 2, v{t+6}
        s_lshl_b32 s{sT+4}, s{sG}, 7
        s_add_u32 s{sT+4}, s{sT+4}, {AH}""")
        flag_poll(t+6,t+5,sT+4,C)
        STAMP('ah')
    lp=p.lab("al"); ok=p.lab("alok")
    p(f"""{XM}
    s_mov_b32 s{C}, {SPIN}
    {lp}:
    {ld}
    s_waitcnt vmcnt(8)
    v_max3_u32 v{t+5}, v{BL}, v{BL+2}, v{BL+4}
    v_max3_u32 v{t+6}, v{BL+6}, v{BL+8}, v{BL+10}
    v_max3_u32 v{t+5}, v{BL+12}, v{BL+14}, v{t+5}""")
    for i in range(4,12):
        if i%4==0: p(f"s_waitcnt vmcnt({8-i})")
        p(f"v_max3_u32 v{t+5+(i&1)}, v{BL+4*i}, v{BL+4*i+2}, v{t+5+(i&1)}")
    p(f"""v_max_u32 v{t+5}, v{t+5}, v{t+6}
    v_cmp_eq_u32 vcc, -1, v{t+5}
    s_waitcnt lgkmcnt(0)
    s_cbranch_vccz {ok}""")
    spin(C,lp,ok,CFG['acsl'])
    p(f"s_branch {lp}\n{ok}:")
    STAMP('ar'); COUNT('nar',C,SPIN)
    if CFG['xm']: p("s_mov_b64 exec, -1")
    for s_ in range(12): p(f"v_mfma_f32_16x16x32_bf16 {vr(Y,4)}, {vr(AW+4*s_,4)}, {vr(BL+4*s_,4)}, {vr(Y,4) if s_ else 0}")
    w0=p.lab("dnw0")
    p(f"""s_cmp_eq_u32 s{sWAVE}, 0
    s_cbranch_scc1 {w0}
    s_nop 5
    ds_write_b128 v{t+3}, {vr(Y,4)}
    s_waitcnt lgkmcnt(0)
    s_barrier""")
    END()
    p(f"{w0}:")
    if CFG['hll']:
        p(f"""{XM}
        v_max_u32 v{t+5}, v{HL}, v{HL+2}
        v_cmp_eq_u32 vcc, -1, v{t+5}
        s_mov_b32 s{C}, {SPIN}
        s_cbranch_vccnz L_hlw
        L_hlr:
        s_mov_b64 exec, -1""")
        COLD.append(f"""L_hlw:
        s_sub_u32 s{C}, s{C}, 1
        s_cbranch_scc1 L_hlr
        {ldh}
        s_waitcnt vmcnt(0)
        v_max_u32 v{t+5}, v{HL}, v{HL+2}
        v_cmp_eq_u32 vcc, -1, v{t+5}
        s_nop 0
        s_cbranch_vccnz L_hlw
        s_branch L_hlr""")
    p(f"""v_lshlrev_b32 v{X+12}, 16, v{HL}
    v_and_b32 v{X+13}, 0xffff0000, v{HL}
    v_lshlrev_b32 v{X+14}, 16, v{HL+1}
    v_and_b32 v{X+15}, 0xffff0000, v{HL+1}
    v_lshlrev_b32 v{X+16}, 16, v{HL+2}
    v_and_b32 v{X+17}, 0xffff0000, v{HL+2}
    v_lshlrev_b32 v{X+18}, 16, v{HL+3}
    v_and_b32 v{X+19}, 0xffff0000, v{HL+3}
    s_barrier""")
    STAMP('db')
    for w_ in range(1,4): p(f"ds_read_b128 {vr(X+4*(w_-1),4)}, v{t+3} offset:{w_*1024}")
    for w_ in range(3):
        p(f"s_waitcnt lgkmcnt({2-w_})")
        for k in range(2): p(f"v_pk_add_f32 {vr(Y+2*k,2)}, {vr(Y+2*k,2)}, {vr(X+4*w_+2*k,2)}")
    def rnd():
        p(f"v_cvt_pk_bf16_f32 v{X}, v{Y}, v{Y+1}\nv_cvt_pk_bf16_f32 v{X+1}, v{Y+2}, v{Y+3}")
    def unp():
        for k in range(2): p(f"v_lshlrev_b32 v{Y+2*k}, 16, v{X+k}\nv_and_b32 v{Y+2*k+1}, 0xffff0000, v{X+k}")
    rnd(); unp()
    for k in range(4): p(f"v_mul_f32 v{Y+k}, v{SG}, v{Y+k}")
    rnd(); unp()
    for k in range(2): p(f"v_pk_add_f32 {vr(Y+2*k,2)}, {vr(Y+2*k,2)}, {vr(X+12+2*k,2)}")
    rnd(); unp()
    for k in range(2): p(f"v_pk_add_f32 {vr(Y+2*k,2)}, {vr(Y+2*k,2)}, {vr(X+16+2*k,2)}")
    rnd()
    p(f"""s_mov_b32 exec_lo, 0x00ff00ff
    s_mov_b32 exec_hi, 0x00ff00ff
    buffer_store_dwordx2 {vr(X,2)}, v{aO2}, {S4(sOUT)}, s{sT+1} offen sc1""")
    STAMP('fin')
    END()
    lp=p.lab("th"); ok=p.lab("thok")
    p(f"""L_plain:
    s_lshl_b32 s{B}, s{sG}, 7
    s_add_u32 s{B}, s{B}, {TH}
    v_mov_b32 v{t}, 0
    s_mov_b32 s{C}, {SPIN}
    {lp}:
    s_sleep 16
    buffer_load_dwordx2 v[{t+2}:{t+3}], v{t}, {S4(sWS)}, s{B} offen sc1
    s_waitcnt vmcnt(0)
    v_cmp_ne_u32 vcc, s{sTAG}, v{t+3}
    s_nop 0
    s_cbranch_vccz {ok}""")
    spin(C,lp,ok)
    p(f"""s_branch {lp}
    {ok}:
    v_readfirstlane_b32 s{sTHR}, v{t+2}
    s_nop 1""")
    deferred('p')
    STAMP('fin')

def build():
    prologue()
    steps=loader()
    helperA(steps)
    p("s_branch L_mw")
    helperB(steps)
    p("L_mw:")
    moe_weights()
    END()
    p("L_comp:")
    if CFG['prio']: p(f"s_setprio {CFG['prio']}")
    p("s_waitcnt lgkmcnt(0)")
    STAMP('start')
    prologue2(1)
    if CFG['cpf']: code_pf()
    if CFG['tlb']==1:
        for k in range(12):
            p(f"s_mov_b32 s{sT+18}, {k*0x200000+0x1000}\ns_load_dword s100, s[{sWS}:{sWS+1}], s{sT+18}")
    if CFG['tlb']==2:
        p(f"v_lshlrev_b32 v228, 19, v0\nv_min_u32 v228, 0x1780000, v228\nbuffer_load_dword v229, v228, {S4(sWS)}, 0 offen")
    srd(((sX,2621440),))
    if CFG['hclr']: assert CFG['clr']==0; CFG['clate']=9
    if CFG['clr']==0 and CFG['clate']==0: clears(0); clears(1)
    att_setup()
    if CFG['clr']==0 and CFG['clate']==1: clears(0); clears(1)
    gemm_setup()
    if CFG['clr']: clears(0)
    if CFG['clr']==0 and CFG['clate']==2: clears(0); clears(1)
    p("s_waitcnt lgkmcnt(0)")
    mktag()
    p(f"""    s_cmp_eq_u32 s{sLC}, 15
    s_cbranch_scc1 L_gS
    s_cmp_eq_u32 s{sTY}, 2
    s_cbranch_scc1 L_gV""")
    gemm_loop('T'); gemm_epi('T'); p("s_branch L_att")
    p("L_gS:"); idle_gemm(); p("s_branch L_att")
    p("L_gV:"); gemm_loop('V'); gemm_epi('V')
    p("L_att:")
    att_go()
    for w in range(4): att_variant(w)
    att_fin()
    wo_main()
    if CFG['stop']<=3:
        p(f"s_and_b64 exec, s[{sCAND}:{sCAND+1}], -1\ns_cbranch_scc0 L_noo2"); out_store(); p("L_noo2:")
    else: moe()
    END()
    att_cold()
    for c in COLD: p(c)
    p("L_exit:\ns_endpgm")
build()
errs=check(p.L)
hdr=f"""; generated by work/k/gen.py (own generator script)
; @launch grid=(256,1,1) block=(512,1,1) lds=163840
.amdgcn_target "amdgcn-amd-amdhsa--gfx950"
.text
.globl {NAME}_kernel
.p2align 8
.type {NAME}_kernel,@function
{NAME}_kernel:
"""
ftr=f""".section .rodata,"a"
.p2align 6
.amdhsa_kernel {NAME}_kernel
  .amdhsa_next_free_vgpr 256
  .amdhsa_next_free_sgpr 102
  .amdhsa_accum_offset 256
  .amdhsa_group_segment_fixed_size 0
  .amdhsa_kernarg_size 88
  .amdhsa_user_sgpr_count 2
  .amdhsa_user_sgpr_kernarg_segment_ptr 1
  .amdhsa_system_sgpr_workgroup_id_x 1
.end_amdhsa_kernel
"""
import align8
def fmt(L):
    q=P(); q.L=L; return q.text()
if CFG['al8']: print("align8",align8.align(p.L,hdr,ftr,fmt,sys.argv[1]+".tmp.s",CFG['al8']))
if CFG.get('alst'): print(align8.stat(p.L,hdr,ftr,fmt,sys.argv[1]+".tmp.s"))
open(sys.argv[1],"w").write(hdr+p.text()+ftr)

import subprocess
r=subprocess.run(["clang","-x","assembler","-target","amdgcn-amd-amdhsa","-mcpu=gfx950",sys.argv[1],"-o",sys.argv[1]+".co"],capture_output=True,text=True)
if r.returncode: print(r.stderr[:3000]); sys.exit(1)
r=subprocess.run(["python3","cdna_unwritten_srd_check.py",sys.argv[1]+".co"],capture_output=True,text=True)
if r.returncode: print("SRDCHECK:",r.stdout[-3000:],r.stderr[-1000:])
r=subprocess.run("llvm-size -A "+sys.argv[1]+".co | grep text",shell=True,capture_output=True,text=True); print(r.stdout.strip())
if errs:
    import os; os.remove(sys.argv[1]); sys.exit(1)
```

```python
import sys, math
from asmlib import *
NAME="sequential_preLN__sliding_block__moe_arch_mod__prompt"
CFG=dict(hsl2=2, ogate=4, honly=0, hsp=0, wpause=0, hdef=-1, hdg='FS', xru=17, xrd=0, ahint=12, ptc='', chint=0, dtn=1, hll=1, xm=1, kqr=0, dasl=0, dth=0, odf=0, mrm=1, g2nd=('O1',10), smx=2, smd=0, hst=0, wgf='M', shf=1, gm='no', gr='G1', tlb=0, rld=0, al8=0, ldp='sc1', ldo='sc1', wsp=1, wla2=7, ogr2=(1,2,2,2,3), orem2=(0,1), wwe2=2, smw=(), smo=(3,6), mtr=(0,10), mth=0, wburst=0, mtg='RL', wts=99, wsplit=1, wnoa=0, hclr=0, cst=(3,3), hsent=0, hkv=0, hgate='G1', hrs=0, osent=1, ogr=(2,3,5,2,3,5), opoll='half', osl=(0,0), oini=10, orem=25, clate=2, oprb=0, odn=1, hstep=6, qpol='', apol='', cpol='', wb=(), wbs=31, ht=0, hpoll=0, hsl=1, wog2=0, hearly=0, stg=6, stb=0, ord='xw,xw,xw,xw,xw,xw,xw,xw,xw,xw', amp=None, wose=2, late1=1, sdef=(1,1,1,1), pt2=8, qpair2=0, nacc=8, sfirst=1, prio=0, smode='dot', sfill=(), acsl=0, casl=0, xp=(), dw3=0, wla=7, wwe=2, dgate='PS', dstart='O1', gstart='WE', mdep=4, ddep=12, qpair=0, mpair=0, wpair=0, xnt=0, wnt=0, tpol2='', wtw='no', mtw='w3', wothr1=4, mb=(6,6), mg=('WOD','PR','PR','O1'), mpf=0, mgate='b3', hsplit=0, cpf=1, npf=(0,)*10, wogs=5, clr=0, wot=(), wtpol='', seqs=None, xpol='nt', wpol='', tpol='', wopol='', mpol='', cal=None, opol='', st=['start','b0|hb0','gend|hb9','E1|hE1','st|halo|clr','fl|g2|wo','fseen|h2','kv','aend','ost'], pt=8, wothr=16, wogate=1, h2sl=1, noh2=0, nowo=0, wos=(0,0,0), sched=(1,2,1,1,1,1,1,0,0,0), dbg=0, stop=99, prof=0, rot=('0055','36094758','05162738'), force_slow=0, noclr=0, pre=2, ldst=0, nomfma=0, nohello=0)
for a in sys.argv[2:]:
    k,v=a.split("="); CFG[k]=eval(v)
QB,KB,VB,KH,VH,OB=[i*0x280000 for i in range(6)]
CAND=0xF00000
PS=0xFA0000
CA=0xFE0000
ACT=0xFE1000
HB=0x1000000
PROF=0x1300000
H1=0x1280000; H2=0x1281000; EPO=0x1282000; TH=0x1283000; AH=0x1284000; CH_=0x1285000
STP=0x1680000; STX=0x1780000
FO=0x1700000; OB2=0x1400000; FL=0x12A0000; FH=0x1740000
L_STG=0; L_KV=10240; L_WO=55296; L_MISC=157696; L_MW=0
L_CS=L_MISC
L_SA=L_MISC+512
L_SR=L_SA+1024
L_MODE=L_SR+512
L_FLG=L_MODE+64
F_G1,F_G2,F_H2,F_STG,F_SCP,F_DONE,F_WOR,F_MW=[L_FLG+4*i for i in (0,1,2,4,8,9,10,12)]
L_SWS=L_FLG+80; F_O1=L_FLG+44; F_WOD=L_FLG+64; F_PR=L_FLG+68; F_WO2=L_FLG+72; F_PS=L_FLG+76; F_FS=L_FLG+84; F_LD=L_FLG+88; F_X=L_FLG+96; F_M=L_FLG+112; F_HR=L_FLG+120; F_RI=L_FLG+124; F_OWN=L_FLG+92
L_KEYS=L_FLG+128
L_CA=L_KEYS+256; L_TOP=L_CA+64
L_RED=L_WO
sX,sW,sWO,sWG,sWU,sWD,sOUT,sWS,sDBG,sWR=[4+4*i for i in range(10)]
sWAVE,sG,sSLOT,sRQ,sHH,sRB,sCT,sMODE,sEP,sTAG=range(44,54)
sT=54
sMI=39
sBK=3
sLO=76
sPROF=80
p=P()
COLD=[]
CALI=lambda: 's_memtime' if CFG['cal'][1]>20000 else 's_memrealtime'
def STAMP(name,w=0):
    if CFG['amp']:
        a=CFG['amp']
        if name=='entry': p(f"s_memrealtime s[{sPROF+8}:{sPROF+9}]")
        for k in (0,1):
            if name==a[k]:
                p(f"{'s_memrealtime' if a[2]=='r' else 's_memtime'} s[{sPROF+2*k}:{sPROF+2*k+1}]")
                if w: p("s_waitcnt lgkmcnt(0)")
    if CFG['cal'] and name in CFG['cal'][0].split('|'):
        p(f"{CALI()} s[{sPROF}:{sPROF+1}]")
        if w: p("s_waitcnt lgkmcnt(0)")
    i=[k for k,n in enumerate(CFG['st']) if name in n.split('|')]
    if CFG['prof'] and i:
        i=i[0]
        p(f"{'s_memrealtime' if CFG['prof']==2 else 's_memtime'} s[{sPROF+2*i}:{sPROF+2*i+1}]")
        if w: p("s_waitcnt lgkmcnt(0)")
def COUNT(name,cnt,full):
    i=[k for k,n in enumerate(CFG['st']) if name in n.split('|')]
    if CFG['prof'] and i:
        r=sPROF+2*i[0]
        p(f"s_waitcnt lgkmcnt(0)\ns_sub_u32 s{r}, {full}, s{cnt}\ns_mul_i32 s{r}, s{r}, 100\ns_add_u32 s{r}, s{r}, s{sPROF}")
def PROFDUMP():
    if not CFG['prof']: return
    p("s_waitcnt vmcnt(0) lgkmcnt(0)")
    p("s_mov_b64 exec, -1")
    for i in range(10): p(f"v_mov_b32 v{2+i}, s{sPROF+2*i}")
    p(f"""s_lshl_b32 s{sT}, s2, 3
    s_add_u32 s{sT}, s{sT}, s{sWAVE}
    s_lshl_b32 s{sT}, s{sT}, 6
    s_add_u32 s{sT}, s{sT}, {PROF}
    v_mov_b32 v1, 0
    s_mov_b64 exec, 1
    buffer_store_dwordx4 v[2:5], v1, s[{sWS}:{sWS+3}], s{sT} offen
    buffer_store_dwordx4 v[6:9], v1, s[{sWS}:{sWS+3}], s{sT} offen offset:16
    s_getpc_b64 s[{sT+2}:{sT+3}]
    v_mov_b32 v12, s{sT+2}
    v_mov_b32 v13, s{sT+3}
    buffer_store_dwordx4 v[10:13], v1, s[{sWS}:{sWS+3}], s{sT} offen offset:32""")
def END():
    PROFDUMP()
    if CFG['amp']:
        a=CFG['amp']
        lp=p.lab("amp"); ok=p.lab("ampok")
        p(f"""s_waitcnt vmcnt(0) lgkmcnt(0)
        s_cmp_eq_u32 s{sPROF+2}, 0
        s_cbranch_scc1 {ok}
        s_cmp_lg_u32 s{sWAVE}, {a[5] if len(a)>5 else 0}
        s_cbranch_scc1 {ok}""")
        if a[4]>=0: p(f"s_cmp_lg_u32 s2, {a[4]}\ns_cbranch_scc1 {ok}")
        p(f"""s_sub_u32 s{sPROF+6}, s{sPROF+2}, s{sPROF}
        s_mul_i32 s{sPROF+6}, s{sPROF+6}, {a[3]}
        s_lshr_b32 s{sPROF+6}, s{sPROF+6}, 4
        s_min_u32 s{sPROF+6}, s{sPROF+6}, 100000
        s_add_u32 s{sPROF+6}, s{sPROF+6}, 3000
        s_mov_b32 s{sPROF+4}, 100000
        {lp}:
        s_sleep 2
        s_memrealtime s[{sPROF+2}:{sPROF+3}]
        s_sub_u32 s{sPROF+4}, s{sPROF+4}, 1
        s_cbranch_scc1 {ok}
        s_waitcnt lgkmcnt(0)
        s_sub_u32 s{sPROF+2}, s{sPROF+2}, s{sPROF+8}
        s_cmp_lt_u32 s{sPROF+2}, s{sPROF+6}
        s_cbranch_scc1 {lp}
        {ok}:""")
    if CFG['cal']:
        lp=p.lab("cal"); ok=p.lab("calok")
        p(f"""s_waitcnt vmcnt(0) lgkmcnt(0)
        s_cmp_eq_u32 s{sPROF}, 0
        s_cbranch_scc1 {ok}
        s_cmp_ge_u32 s{sWAVE}, 4
        s_cbranch_scc1 {ok}
        s_mov_b32 s{sPROF+4}, 100000
        {lp}:
        s_sleep 2
        {CALI()} s[{sPROF+2}:{sPROF+3}]
        s_sub_u32 s{sPROF+4}, s{sPROF+4}, 1
        s_cbranch_scc1 {ok}
        s_waitcnt lgkmcnt(0)
        s_sub_u32 s{sPROF+2}, s{sPROF+2}, s{sPROF}
        s_cmp_lt_u32 s{sPROF+2}, {CFG['cal'][1]}
        s_cbranch_scc1 {lp}
        {ok}:""")
    p("s_endpgm")
S4=lambda r:f"s[{r}:{r+3}]"
SPIN=1<<18

def srd(lst):
    for r,n in lst: p(f"s_mov_b32 s{r+2}, {n}\ns_mov_b32 s{r+3}, 0x20000")
def prologue():
    STAMP('entry')
    p(f"""s_cmp_ge_u32 s2, 256
    s_cbranch_scc1 L_exit
    s_load_dwordx2 s[{sX}:{sX+1}], s[0:1], 0
    s_load_dwordx2 s[{sW}:{sW+1}], s[0:1], 8
    s_load_dwordx2 s[{sWS}:{sWS+1}], s[0:1], 80
    v_lshrrev_b32 v1, 6, v0
    v_and_b32 v0, 63, v0
    v_readfirstlane_b32 s{sWAVE}, v1
    s_and_b32 s{sG}, s2, 7
    s_lshr_b32 s{sSLOT}, s2, 3
    s_lshr_b32 s{sRQ}, s{sG}, 1
    s_and_b32 s{sHH}, s{sG}, 1
    s_and_b32 s{sRB}, s{sSLOT}, 3
    s_lshr_b32 s{sCT}, s{sSLOT}, 2
    s_lshl_b32 s{sBK}, s{sRQ}, 2
    s_add_u32 s{sBK}, s{sBK}, s{sRB}
    s_cmp_gt_u32 s{sCT}, 2
    s_subb_u32 s{sBK}, s{sBK}, 0
    s_and_b32 s{sBK}, s{sBK}, 15""")
    if CFG['cal']: p(f"s_mov_b32 s{sPROF}, 0")
    if CFG['amp']: p(f"s_mov_b32 s{sPROF+2}, 0")
    if CFG['prof']:
        for i in range(1,10): p(f"s_mov_b32 s{sPROF+2*i}, 0")
    p(f"""s_cmp_lt_u32 s{sWAVE}, 4
    s_cbranch_scc1 L_comp""")
def prologue2(comp=0):
    if comp:
        p(f"""s_mov_b32 s{sTAG}, {EPO}
        s_load_dword s{sEP}, s[{sWS}:{sWS+1}], s{sTAG}
        s_load_dwordx2 s[{sWR}:{sWR+1}], s[0:1], 32
        s_load_dwordx2 s[{sOUT}:{sOUT+1}], s[0:1], 64""")
        srd(((sWS,268435456),(sWR,1280),(sOUT,2621440)))
        p(f"""s_mov_b32 s{sLO}, -1
        s_mov_b32 s{sLO+1}, 0
        s_mov_b32 s{sLO+2}, 0xfffff
        s_mov_b32 s{sLO+3}, 0xfffff""")
        return
    p(f"""s_mov_b32 s{sTAG}, {EPO}
    s_load_dword s{sEP}, s[{sWS}:{sWS+1}], s{sTAG}
    s_load_dwordx2 s[{sWO}:{sWO+1}], s[0:1], 16
    s_load_dwordx2 s[{sWR}:{sWR+1}], s[0:1], 32
    s_load_dwordx2 s[{sWG}:{sWG+1}], s[0:1], 40
    s_load_dwordx2 s[{sWU}:{sWU+1}], s[0:1], 48
    s_load_dwordx2 s[{sWD}:{sWD+1}], s[0:1], 56
    s_load_dwordx2 s[{sOUT}:{sOUT+1}], s[0:1], 64""")
    srd(((sWS,268435456),(sWO,819200),(sWR,1280),(sWG,1966080),(sWU,1966080),(sWD,1966080),(sOUT,2621440)))
    p(f"""s_mov_b32 s{sLO}, -1
    s_mov_b32 s{sLO+1}, 0
    s_mov_b32 s{sLO+2}, 0xfffff
    s_mov_b32 s{sLO+3}, 0xfffff""")
def moe_role():
    A=sT+20
    if not CFG['mrm']: p(f"s_mov_b32 s{sMI}, s{sSLOT}"); return
    p(f"""s_lshr_b32 s{A}, s{sSLOT}, 3
    s_sub_u32 s{sMI}, s{sSLOT}, s{A}
    s_sub_u32 s{sMI}, s{sMI}, 1
    s_add_u32 s{A}, s{A}, 28
    s_and_b32 s{A+1}, s{sSLOT}, 7
    s_cselect_b32 s{sMI}, s{sMI}, s{A}""")
def mktag():
    p(f"""s_mul_i32 s{sTAG}, s{sEP}, 0x9e3779b1
    s_add_u32 s{sTAG}, s{sTAG}, 0x7f4a7c15
    s_and_b32 s{sTAG}, s{sTAG}, -16""")
def colbyte(dst, lc):
    t=sT+18
    p(f"""s_mul_i32 s{t}, s{lc}, 52
    s_lshr_b32 s{t}, s{t}, 8
    s_add_u32 s{t}, s{t}, s{sHH}
    s_mul_i32 s{t}, s{t}, 640
    s_lshl_b32 s{dst}, s{lc}, 7
    s_add_u32 s{dst}, s{dst}, s{t}""")

def loader():
    CA_=sT+1; CB_=sT+2; CH=sT+3; XO=sT+4; WO_=sT+5; LB=sT+6; A=sT+7; B=sT+8; OFF=sT+9; SEQ=sT+10
    vX=2; vW=6; vt=10
    p(f"""s_sub_u32 s{HW}, s{sWAVE}, 4
    s_lshl_b32 s{A}, s{sCT}, 1
    s_cmp_gt_u32 s{sCT}, 2
    s_subb_u32 s{A}, s{A}, 0
    s_cmp_lg_u32 s{sCT}, 2
    s_addc_u32 s{B}, s{A}, 0""")
    colbyte(CA_,A); colbyte(CB_,B)
    p(f"""v_lshrrev_b32 v{vt}, 3, v0
    v_mul_u32_u24 v{vX}, 1280, v{vt}
    v_lshrrev_b32 v{vt+1}, 4, v0
    v_and_b32 v{vt+2}, 7, v0
    v_xor_b32 v{vt+2}, v{vt+2}, v{vt+1}
    v_lshl_add_u32 v{vX}, v{vt+2}, 4, v{vX}
    v_xor_b32 v{vX+1}, 64, v{vX}
    v_add_u32 v{vX+1}, {10240-1024}, v{vX+1}
    v_add_u32 v{vX+2}, {2*(10240-1024)}, v{vX}
    v_add_u32 v{vX+3}, {2*(10240-1024)}, v{vX+1}
    v_lshlrev_b32 v{vt+2}, 2, v{vt+1}
    v_and_b32 v{vt+3}, 15, v0
    v_xor_b32 v{vt+2}, v{vt+2}, v{vt+3}
    v_cmp_lt_u32 vcc, 7, v{vt+2}
    v_mov_b32 v{vt+3}, s{CA_}
    v_mov_b32 v{vt+4}, s{CB_}
    v_cndmask_b32 v{vt+3}, v{vt+3}, v{vt+4}, vcc
    v_and_b32 v{vt+2}, 7, v{vt+2}
    v_lshl_add_u32 v{vt+3}, v{vt+2}, 4, v{vt+3}
    v_mul_u32_u24 v{vW}, 3840, v{vt+1}
    v_add_u32 v{vW}, v{vW}, v{vt+3}""")
    for i in range(1,4): p(f"v_add_u32 v{vW+i}, {i*(4*3840-1024)}, v{vW}")
    ta,tc,tg=CFG['rot']
    pk=lambda t: sum(int(v)<<(4*i) for i,v in enumerate(t))
    p(f"""s_and_b32 s{A}, s{sBK}, 3
    s_lshl_b32 s{A}, s{A}, 2
    s_lshr_b32 s{CH}, {pk(ta)}, s{A}
    s_and_b32 s{CH}, s{CH}, 15
    s_lshl_b32 s{A}, s{sCT}, 2
    s_lshr_b32 s{A}, {hex(pk(tc))}, s{A}
    s_and_b32 s{A}, s{A}, 15
    s_add_u32 s{CH}, s{CH}, s{A}
    s_lshr_b32 s{A}, s{sBK}, 2
    s_lshl_b32 s{A}, s{A}, 1
    s_add_u32 s{A}, s{A}, s{sHH}
    s_lshl_b32 s{A}, s{A}, 2
    s_lshr_b32 s{A}, {hex(pk(tg))}, s{A}
    s_and_b32 s{OFF}, s{A}, 15""")
    seqs=CFG['seqs']
    if seqs:
        n=len(seqs)
        p(f"""s_mul_i32 s{A}, s{CH}, {-(-2048//n)}
        s_lshr_b32 s{A}, s{A}, 11
        s_mul_i32 s{A}, s{A}, {n}
        s_sub_u32 s{CH}, s{CH}, s{A}""")
        for i,q in enumerate(seqs):
            assert sorted(q)==list("0123456789")
            if i: p(f"s_cmp_eq_u32 s{CH}, {i}\ns_cselect_b32 s{SEQ}, {hex(pk(q[:8]))}, s{SEQ}\ns_cselect_b32 s{SEQ+1}, {hex(pk(q[8:]))}, s{SEQ+1}")
            else: p(f"s_mov_b32 s{SEQ}, {hex(pk(q[:8]))}\ns_mov_b32 s{SEQ+1}, {hex(pk(q[8:]))}")
    else:
        p(f"""s_add_u32 s{CH}, s{CH}, s{OFF}
    s_mul_i32 s{A}, s{CH}, 205
    s_lshr_b32 s{A}, s{A}, 11
    s_mul_i32 s{A}, s{A}, 10
    s_sub_u32 s{CH}, s{CH}, s{A}""")
    p(f"""
    s_lshl_b32 s{A}, s{sBK}, 2
    s_add_u32 s{A}, s{A}, s{HW}
    s_mul_i32 s{XO}, s{A}, {32*1280}
    s_mul_i32 s{WO_}, s{HW}, {16*3840}
    s_lshl_b32 s{LB}, s{HW}, 12""")
    CHW=SEQ
    p(f"s_mov_b32 s{CHW}, s{CH}")
    nx=dict(x=0,w=0)
    def issue(order,lim):
        global OPS
        for k in order:
            c=nx[k]; nx[k]+=1; assert c<=min(9,lim)
            slot=(c%4)*32768; ch=CH if k=='x' else CHW
            if k=='x': p(f"""s_lshl_b32 s{A}, s{ch}, 7
                s_add_u32 m0, s{LB}, {slot}
                s_add_u32 s{A}, s{A}, s{XO}""")
            else: p(f"""s_mul_i32 s{A}, s{ch}, {64*3840}
                s_add_u32 m0, s{LB}, {slot+16384}
                s_add_u32 s{A}, s{A}, s{WO_}""")
            for i in range(4):
                if k=='x': p(f"buffer_load_dwordx4 v{vX+i}, {S4(sX)}, s{A} offen offset:{i*1024} {CFG['xpol'] if c<CFG['xnt'] else ''} lds")
                else: p(f"buffer_load_dwordx4 v{vW+i}, {S4(sW)}, s{A} offen offset:{i*1024} {'nt' if c<CFG['wnt'] else CFG['wpol']} lds")
            p(f"""s_add_u32 s{ch}, s{ch}, 1
            s_cmp_eq_u32 s{ch}, 10
            s_cselect_b32 s{ch}, 0, s{ch}""")
            OPS+=[c]*4
    ORD=CFG['ord'].split(',')
    srd(((sX,2621440),(sW,2457600)))
    p("s_waitcnt lgkmcnt(0)")
    STAMP('i0')
    for c in range(1):
        issue(ORD[0],3); STAMP('i%d'%(c+1))
        if c==0:
            prologue2()
            p(f"""v_cmp_lt_u32 vcc, 7, v0
            v_lshlrev_b32 v{vt}, 4, v0
            v_add_u32 v{vt}, {L_FLG}, v{vt}
            v_cndmask_b32 v{vt+2}, 0, -1, vcc
            v_cndmask_b32 v{vt+3}, 0, -1, vcc
            v_cndmask_b32 v{vt+4}, 0, -1, vcc
            v_cndmask_b32 v{vt+5}, 0, -1, vcc
            ds_write_b128 v{vt}, v[{vt+2}:{vt+5}]""")
            early()
    p("s_waitcnt lgkmcnt(0)")
    mktag()
    stats_setup()
    p(f"s_cmp_ge_u32 s{HW}, 2\ns_cbranch_scc1 L_helperB")
    nx0=dict(nx); ops0=list(OPS)
    def steps(hook,isB):
        global OPS
        nx.update(nx0); OPS=list(ops0)
        STAMP('i1s')
        issue(ORD[1],3)
        STAMP('i1e')
        if CFG['hclr']: hclear_setup(isB)
        if CFG['smw'] or CFG['smo']: sm_setup()
        for c in range(8):
            sd=CFG['sdef']
            if c==0 and -1 in sd:
                assert ORD[0][0]=='x'; p(f"s_waitcnt vmcnt({len(OPS)-4})")
                STAMP('x0')
                fill=stats(0)
                for k in range(4):
                    if sd[k]==-1: p(fill[k])
                if max(sd)==-1: stats_red()
            vmwait(c)
            p("s_barrier")
            STAMP('ld%d'%c)
            if c==0 and -1 not in sd: fill=stats(0)
            if c==CFG['stg'] and CFG['stb']: stats_get(); hook(100)
            if CFG['hclr']: hclear(c,isB)
            issue(ORD[2+c],c+3)
            if c==0: p("s_waitcnt lgkmcnt(0)")
            for k in range(4):
                if sd[k]==c: p(fill[k])
            if c==max(0,max(sd)):
                if max(sd)>=0: stats_red()
                stats_pub(); OPS.append('stw')
            if c==CFG['stg'] and not CFG['stb']: stats_get(); hook(100)
            hook(c)
            sm_touch(c,isB)
        assert nx==dict(x=10,w=10)
    return steps
aS=44; dS=64; sacc=60; sone=43; sDBL=sDBG; sSTP=sDBG+1
def stats_setup():
    vt=10
    tc=[int(x) for x in CFG['rot'][1]]
    assert not CFG['seqs'] and sorted(tc+[(tc[2]+1)%10,(tc[2]+2)%10])==list(range(10))
    p(f"""s_lshl_b32 s{sT+16}, s{HW}, 12
    v_bfe_u32 v{vt}, v0, 1, 3
    v_lshrrev_b32 v{vt+1}, 5, v0
    v_lshlrev_b32 v{vt+1}, 2, v{vt+1}
    v_xor_b32 v{vt}, v{vt}, v{vt+1}
    v_lshlrev_b32 v{vt}, 4, v{vt}
    v_and_b32 v{vt+1}, 31, v0
    v_lshl_add_u32 v{vt}, v{vt+1}, 7, v{vt}
    v_add_u32 v{aS}, s{sT+16}, v{vt}
    v_mov_b32 v{sone}, 0x3f803f80
    s_and_b32 s{sSTP}, s{sBK}, 12
    s_add_u32 s{sSTP}, s{sSTP}, s{sBK}
    s_lshl_b32 s{sT+16}, s{sHH}, 2
    s_add_u32 s{sSTP}, s{sSTP}, s{sT+16}
    s_lshl_b32 s{sSTP}, s{sSTP}, 14
    s_lshl_b32 s{sT+16}, s{HW}, 9
    s_add_u32 s{sSTP}, s{sSTP}, s{sT+16}
    s_add_u32 s{sSTP}, s{sSTP}, {STP}
    v_lshrrev_b32 v{vt}, 5, v0
    v_lshlrev_b32 v{vt}, 11, v{vt}
    v_lshl_add_u32 v{aS+4}, v{vt+1}, 4, v{vt}
    s_lshl_b32 s{sT+16}, s{sCT}, 11
    s_cmp_eq_u32 s{sCT}, 2
    s_cselect_b32 s{sT+16}, {STX-STP}, s{sT+16}
    v_lshl_add_u32 v{aS+5}, v{vt+1}, 4, s{sT+16}""")
    for i in range(1,4): p(f"v_xor_b32 v{aS+i}, {16*i}, v{aS}")
    for i in range(4): p(f"v_mov_b32 v{sacc+i}, 0")
    if CFG['smode'] in ('dotx','dotc'):
        for i in range(2*CFG['nacc']): p(f"v_mov_b32 v{102+i}, 0")
def stats(c):
    if 'nostats' in CFG['xp']: return ['s_nop 0']*4
    for i in range(4): p(f"ds_read_b128 {vr(dS+4*i,4)}, v{aS+i} offset:{c*32768}")
    L=[]
    for i in range(4):
        g=f"s_waitcnt lgkmcnt({3-i})"
        for j in range(4):
            r=dS+4*i+j
            u=80+2*(j&1)
            if CFG['smode']=='dotx':
                a=102+2*((4*i+j)%CFG['nacc']); g+=f"\nv_dot2_f32_bf16 v{a}, v{r}, v{sone}, v{a}\nv_dot2_f32_bf16 v{a+1}, v{r}, v{r}, v{a+1}"
            elif CFG['smode']=='dotc':
                a=102+2*((4*i+j)%CFG['nacc']); g+=f"\nv_dot2c_f32_bf16 v{a}, v{r}, v{sone}\nv_dot2c_f32_bf16 v{a+1}, v{r}, v{r}"
            elif CFG['smode']=='dot': g+=f"\nv_dot2_f32_bf16 v{sacc+(j&1)}, v{r}, v{sone}, v{sacc+(j&1)}\nv_dot2_f32_bf16 v{sacc+2+(j&1)}, v{r}, v{r}, v{sacc+2+(j&1)}"
            elif CFG['smode']=='valu': g+=f"\nv_lshlrev_b32 v{u}, 16, v{r}\nv_and_b32 v{u+1}, 0xffff0000, v{r}\nv_add_f32 v{sacc}, v{sacc}, v{u}\nv_fmac_f32 v{sacc+2}, v{u}, v{u}\nv_add_f32 v{sacc+1}, v{sacc+1}, v{u+1}\nv_fmac_f32 v{sacc+3}, v{u+1}, v{u+1}"
            elif CFG['smode']=='pk': g+=f"\nv_lshlrev_b32 v{u}, 16, v{r}\nv_and_b32 v{u+1}, 0xffff0000, v{r}\nv_pk_add_f32 v[{sacc}:{sacc+1}], v[{sacc}:{sacc+1}], v[{u}:{u+1}]\nv_pk_fma_f32 v[{sacc+2}:{sacc+3}], v[{u}:{u+1}], v[{u}:{u+1}], v[{sacc+2}:{sacc+3}]"
        L.append(g)
    return L
def stats_red():
    t=sacc
    p(f"""s_nop 1
    v_add_f32 v{t}, v{t}, v{t+1}
    v_add_f32 v{t+1}, v{t+2}, v{t+3}
    v_mov_b32 v{t+2}, s{sTAG}
    s_nop 0
    v_permlane32_swap_b32 v{t}, v{t+1}
    s_nop 0
    v_add_f32 v{t}, v{t}, v{t+1}
    v_mov_b32 v{t+1}, v{t}
    s_nop 1
    v_permlane32_swap_b32 v{t}, v{t+1}""")
def stats_pub():
    t=sacc
    p(f"""s_mov_b64 exec, s[{sLO}:{sLO+1}]
    buffer_store_dwordx4 {vr(t,4)}, v{aS+5}, {S4(sWS)}, s{sSTP} offen sc1
    s_mov_b64 exec, -1""")
def stats_ld():
    return "\n".join(f"s_add_u32 s{sSTP+1}, s{sSTP}, {4096*i}\nbuffer_load_dwordx4 {vr(dS+4*i,4)}, v{aS+4}, {S4(sWS)}, s{sSTP+1} offen sc1" for i in range(4))
def stats_get():
    p(stats_ld()); OPS.extend(['stp']*4)
def stats_fin(t,B):
    vmwait('stp')
    lp=p.lab("stl"); ok=p.lab("stok"); rt=p.lab("strt")
    p(f"""s_mov_b32 s{B}, {SPIN}
    {lp}:
    v_xor_b32 v{t}, v{dS+2}, v{dS+6}
    v_xor_b32 v{t+1}, v{dS+10}, v{dS+14}
    v_xor_b32 v{t+2}, s{sTAG}, v{dS+2}
    v_xor_b32 v{t+3}, s{sTAG}, v{dS+10}
    v_or3_b32 v{t}, v{t}, v{t+1}, v{t+2}
    v_or_b32 v{t}, v{t}, v{t+3}
    v_cmp_ne_u32 vcc, 0, v{t}
    v_add_f32 v{t+1}, v{dS}, v{dS+4}
    v_add_f32 v{t+2}, v{dS+1}, v{dS+5}
    s_cbranch_vccnz {rt}
    {ok}:""")
    n0=len(p.L)
    p(f"{rt}:"); spin(B,lp,ok,1); p(stats_ld()); p(f"s_waitcnt vmcnt(0)\ns_branch {lp}")
    COLD.append("\n".join(p.L[n0:])); del p.L[n0:]
    p(f"""v_add_f32 v{t+3}, v{dS+8}, v{dS+12}
    v_add_f32 v{t+4}, v{dS+9}, v{dS+13}
    v_add_f32 v{t+1}, v{t+1}, v{t+3}
    v_add_f32 v{t+2}, v{t+2}, v{t+4}
    s_nop 1
    v_permlane32_swap_b32 v{t+1}, v{t+2}
    s_nop 0
    v_add_f32 v{t+1}, v{t+1}, v{t+2}
    v_mul_f32 v{t+1}, {1/640!r}, v{t+1}
    v_mov_b32 v{t+2}, v{t+1}
    s_nop 1
    v_permlane32_swap_b32 v{t+1}, v{t+2}
    s_nop 0
    v_fma_f32 v{t+2}, -v{t+1}, v{t+1}, v{t+2}
    v_max_f32 v{t+2}, 0, v{t+2}""")
    bf16r(t+2,t+2)
    p(f"v_add_f32 v{t+2}, 0x3727c5ac, v{t+2}")
    bf16r(t+2,t+2)
    p(f"""v_sqrt_f32 v{t+2}, v{t+2}
    v_xor_b32 v{t+1}, 0x80000000, v{t+1}""")
    bf16r(t+2,t+2)
    p(f"""v_rcp_f32 v{t+5}, v{t+2}
    v_cvt_pk_bf16_f32 v{t+4}, v{t+1}, v{t+1}
    v_and_b32 v{t+3}, 31, v0
    s_lshl_b32 s{B}, s{HW}, 8
    s_add_u32 s{B}, s{B}, {L_SA}
    v_lshl_add_u32 v{t+1}, v{t+3}, 3, s{B}
    s_lshl_b32 s{B}, s{HW}, 7
    s_add_u32 s{B}, s{B}, {L_SR}
    v_lshl_add_u32 v{t+2}, v{t+3}, 2, s{B}
    ds_write_b64 v{t+1}, v[{t+4}:{t+5}]
    ds_write_b32 v{t+2}, v{t+5}""")
vPT=21; vDUM=39
HS=sT+12; HA=28
def early():
    A=sT+20; B=sT+21; vt=10
    moe_role()
    p(f"""s_lshl_b32 s{A}, s{sSLOT}, 2
    s_add_u32 s{A}, s{A}, s{HW}
    s_mul_i32 s{A}, s{A}, 60
    v_min_u32 v{vt}, 59, v0
    v_add_u32 v{vt}, s{A}, v{vt}
    v_mul_u32_u24 v{vt+1}, 6554, v{vt}
    v_lshrrev_b32 v{vt+1}, 20, v{vt+1}
    v_mul_u32_u24 v{vt+2}, 160, v{vt+1}
    v_sub_u32 v{vt}, v{vt}, v{vt+2}
    v_lshlrev_b32 v{vt}, 7, v{vt}
    v_cmp_gt_u32 vcc, 32, v{vt+1}
    v_and_b32 v{vt+2}, 1, v{vt+1}
    v_mul_u32_u24 v{vt+2}, 20480, v{vt+2}
    v_lshrrev_b32 v{vt+3}, 4, v{vt+1}
    v_mul_u32_u24 v{vt+4}, 10240, v{vt+3}
    s_mul_i32 s{A}, s{sRQ}, 40960
    v_add3_u32 v{vt+2}, v{vt+2}, v{vt}, s{A}
    v_sub_u32 v{vt+2}, v{vt+2}, v{vt+4}
    v_add_u32 v{vt+4}, 163840, v{vt+2}
    v_min_u32 v{vt+2}, v{vt+2}, v{vt+4}
    v_mul_u32_u24 v{vt+3}, {KB}, v{vt+3}
    v_bfe_u32 v{vt+4}, v{vt+1}, 1, 3
    v_mul_u32_u24 v{vt+4}, 163840, v{vt+4}
    v_add3_u32 v{vt+2}, v{vt+2}, v{vt+3}, v{vt+4}
    s_mul_i32 s{A}, s{sRQ}, 20480
    s_sub_u32 s{A}, s{A}, 5120
    v_add_u32 v{vt}, s{A}, v{vt}
    v_add_u32 v{vt+4}, 81920, v{vt}
    v_min_u32 v{vt}, v{vt}, v{vt+4}
    v_and_b32 v{vt+3}, 15, v{vt+1}
    v_mul_u32_u24 v{vt+3}, 81920, v{vt+3}
    s_mov_b32 s{A}, {VB}
    v_add3_u32 v{vt+3}, v{vt+3}, v{vt}, s{A}
    v_cndmask_b32 v{vt+2}, v{vt+3}, v{vt+2}, vcc
    s_mul_i32 s{A}, s{sHH}, {8*163840}
    v_add_u32 v{vPT}, s{A}, v{vt+2}
""")
    if CFG['honly']:
        p(f"""s_lshl_b32 s{A}, s{sSLOT}, 2
        s_add_u32 s{A}, s{A}, s{HW}
        s_mul_i32 s{A}, s{A}, 60
        v_min_u32 v{vt}, 59, v0
        v_add_u32 v{vt}, s{A}, v{vt}
        v_mul_u32_u24 v{vt+2}, 160, v{vt+1}
        v_sub_u32 v{vt}, v{vt}, v{vt+2}
        v_and_b32 v{vt+2}, 1, v{vt+1}
        v_mul_u32_u24 v{vt+2}, 160, v{vt+2}
        v_add_u32 v{vt+2}, v{vt+2}, v{vt}
        v_lshlrev_b32 v{vt}, 1, v{vt}
        v_cndmask_b32 v{vt}, v{vt}, v{vt+2}, vcc
        s_cmp_lt_u32 s{sRQ}, 3
        s_cselect_b32 s{A}, 0, 80
        s_add_u32 s{A}, s{A}, 160
        v_subrev_u32 v{vt}, 80, v{vt}
        v_cmp_le_u32 vcc, s{A}, v{vt}
        v_cmp_lt_u32 s[{A}:{A+1}], 15, v{vt+1}
        v_mov_b32 v{vt+2}, {KH-KB}
        s_and_b64 vcc, vcc, s[{A}:{A+1}]
        s_nop 0
        v_cndmask_b32 v{vt+2}, 0, v{vt+2}, vcc
        v_add_u32 v{vPT}, v{vPT}, v{vt+2}""")
    if CFG['ht']: p(f"""s_lshl_b32 s{A}, s{sSLOT}, 2
    s_add_u32 s{A}, s{A}, s{HW}
    s_mul_i32 s{B}, s{A}, 20
    v_min_u32 v{vt}, 19, v0
    v_add_u32 v{vt}, s{B}, v{vt}
    v_mul_u32_u24 v{vt+1}, 13108, v{vt}
    v_lshrrev_b32 v{vt+1}, 20, v{vt+1}
    v_mul_u32_u24 v{vt+2}, 80, v{vt+1}
    v_sub_u32 v{vt}, v{vt}, v{vt+2}
    v_lshlrev_b32 v{vt}, 7, v{vt}
    v_cmp_gt_u32 vcc, 16, v{vt+1}
    v_and_b32 v{vt+2}, 1, v{vt+1}
    v_mul_u32_u24 v{vt+2}, 10240, v{vt+2}
    v_lshrrev_b32 v{vt+3}, 1, v{vt+1}
    v_mul_u32_u24 v{vt+3}, 163840, v{vt+3}
    s_mul_i32 s{B}, s{sRQ}, 40960
    s_add_u32 s{B}, s{B}, {KH+20480}
    v_add3_u32 v{vt+2}, v{vt+2}, v{vt+3}, s{B}
    v_and_b32 v{vt+3}, 15, v{vt+1}
    v_mul_u32_u24 v{vt+3}, 81920, v{vt+3}
    s_mul_i32 s{B}, s{sRQ}, 20480
    s_add_u32 s{B}, s{B}, {VH+10240}
    v_add_u32 v{vt+3}, s{B}, v{vt+3}
    v_cndmask_b32 v{vt+2}, v{vt+3}, v{vt+2}, vcc
    s_mul_i32 s{B}, s{sHH}, {8*163840}
    v_add3_u32 v{vHT}, v{vt}, v{vt+2}, s{B}
    s_lshl_b32 s{B}, s{sG}, 7
    s_add_u32 s{A}, s{A}, s{B}
    s_lshl_b32 s{A}, s{A}, 7
    s_add_u32 s{A}, s{A}, {FH}
    v_mov_b32 v{vt}, s{A}
    v_cmp_lt_u32 vcc, 19, v0
    s_nop 1
    v_cndmask_b32 v{vHT}, v{vHT}, v{vt}, vcc""")
    nsm=sum(CFG['npf']); per=(100-5*nsm)//2
    if per>0:
        p(f"""s_mul_i32 s{A}, s{sG}, 5
        s_lshr_b32 s{A}, s{A}, 1
        s_mul_i32 s{A}, s{A}, 5
        s_lshr_b32 s{B}, s{HW}, 1
        s_mul_i32 s{B}, s{B}, {per}
        s_add_u32 s{A}, s{A}, s{B}
        s_add_u32 s{A}, s{A}, {5*nsm}
        v_min_u32 v{vt}, {per-1}, v0
        v_add_u32 v{vt}, s{A}, v{vt}
        v_subrev_u32 v{vt+1}, 100, v{vt}
        v_min_u32 v{vt}, v{vt}, v{vt+1}
        s_lshl_b32 s{A}, s{sSLOT}, 1
        s_and_b32 s{B}, s{HW}, 1
        s_add_u32 s{A}, s{A}, s{B}
        s_mul_i32 s{A}, s{A}, 12800
        v_lshl_add_u32 v{vTW}, v{vt}, 7, s{A}""")
    ge=p.lab("mtge"); jn=p.lab("mtj")
    p(f"""v_min_u32 v{vt}, 59, v0
    v_mul_u32_u24 v{vt+1}, 86, v{vt}
    v_lshrrev_b32 v{vt+1}, 8, v{vt+1}
    v_mul_u32_u24 v{vt+1}, {3072-384}, v{vt+1}
    v_lshl_add_u32 v{vt}, v{vt}, 7, v{vt+1}
    s_mul_i32 s{A}, s{sSLOT}, {20*3072}
    s_mul_i32 s{B}, s{sG}, 384
    s_add_u32 s{A}, s{A}, s{B}
    v_add_u32 v{vTM}, s{A}, v{vt}
    s_sub_u32 s{A}, s{sMI}, {0 if CFG['dw3'] else 17}
    s_lshl_b32 s{A}, s{A}, {1 if CFG['dw3'] else 2}
    s_add_u32 s{A}, s{A}, s{HW}
    s_mul_i32 s{A}, s{A}, {24 if CFG['dw3'] else 35 if CFG['dtn'] else 26}
    v_min_u32 v{vt}, {47 if CFG['dw3'] else 63 if CFG['dtn'] else 51}, v0
    v_lshrrev_b32 v{vt+1}, 1, v{vt}
    v_add_u32 v{vt+1}, s{A}, v{vt+1}
    v_min_u32 v{vt+1}, 1535, v{vt+1}
    v_mul_u32_u24 v{vt+1}, 1280, v{vt+1}
    v_and_b32 v{vt}, 1, v{vt}
    v_lshl_add_u32 v{vt}, v{vt}, 7, v{vt+1}
    s_mul_i32 s{B}, s{sG}, 160
    s_and_b32 s{B}, s{B}, -128
    v_add_u32 v{vTD}, s{B}, v{vt}""")
    if CFG['dtn']: p(f"""s_add_u32 s{A}, s{A}, 32
    v_min_u32 v{vt}, 5, v0
    v_lshrrev_b32 v{vt+1}, 1, v{vt}
    v_add_u32 v{vt+1}, s{A}, v{vt+1}
    v_min_u32 v{vt+1}, 1535, v{vt+1}
    v_mul_u32_u24 v{vt+1}, 1280, v{vt+1}
    v_and_b32 v{vt}, 1, v{vt}
    v_lshl_add_u32 v{vt}, v{vt}, 7, v{vt+1}
    v_add_u32 v{vTD2}, s{B}, v{vt}""")
vTD=25; vHT=26; vTD2=27
vTW=22; vTM=24
def touch(va,srd_,pair,pol=''):
    if pair:
        p(f"buffer_load_dword v{vDUM}, v{va}, {S4(srd_)}, 0 offen nt\nbuffer_load_dword v{vDUM}, v{va}, {S4(srd_)}, 0 offen offset:64")
        return 2
    p(f"buffer_load_dword v{vDUM}, v{va}, {S4(srd_)}, 0 offen {pol}")
    return 1
def wtouch(win,isB):
    n=0
    if CFG['wtw']==win and 100-5*sum(CFG['npf'])>0:
        n+=touch(vTW,sWO,CFG['wpair'])
    if CFG['mtw']==win:
        if not isB:
            u=p.lab("tu"); j=p.lab("tj")
            p(f"s_cmp_eq_u32 s{HW}, 0\ns_cbranch_scc0 {u}")
            touch(vTM,sWG,CFG['mpair'])
            p(f"s_branch {j}\n{u}:")
            n+=touch(vTM,sWU,CFG['mpair'])
            p(f"{j}:")
    return n
def qkv_touch():
    if CFG['pt']==99: return
    if CFG['ht']==1: OPS.extend(['pt']*touch(vHT,sWS,0,''))
    OPS.extend(['pt']*touch(vPT,sWS,CFG['qpair'],CFG['tpol']))
    if CFG['ht']==2: OPS.extend(['pt']*touch(vHT,sWS,0,''))
vH=16
OPS=[]
def vmwait(*tags):
    last=max(i for i,t in enumerate(OPS) if t in tags)
    n=len(OPS)-1-last; assert n<64
    p(f"s_waitcnt vmcnt({n})")
HW=sT
def spin(cnt,lp,ok,sleep=0):
    p(f"s_sub_u32 s{cnt}, s{cnt}, 1\ns_cbranch_scc1 {ok}")
    if sleep: p(f"s_sleep {sleep}")
def lds_wait(addr_v,tmp,cnt,cmp,val,sleep=1):
    lp=p.lab("lw"); ok=p.lab("lwok")
    p(f"""s_mov_b32 s{cnt}, {SPIN*4}
    {lp}:
    ds_read_b32 v{tmp}, v{addr_v}
    s_waitcnt lgkmcnt(0)
    v_cmp_{cmp}_u32 vcc, {val}, v{tmp}
    s_nop 0
    s_cbranch_vccz {ok}""")
    spin(cnt,lp,ok,sleep)
    p(f"s_branch {lp}\n{ok}:")
sHL,sHF,sHO,sPH,sHD,sT0=range(sT+1,sT+7)
def att_ids():
    p(f"""s_lshr_b32 s{sHL}, s{sSLOT}, 1
    s_and_b32 s{sHF}, s{sSLOT}, 1
    s_and_b32 s{sHO}, s{sHL}, 1
    s_lshr_b32 s{sPH}, s{sHL}, 1
    s_lshl_b32 s{sHD}, s{sHH}, 3
    s_add_u32 s{sPH}, s{sPH}, s{sHD}
    s_lshl_b32 s{sHD}, s{sHH}, 4
    s_add_u32 s{sHD}, s{sHD}, s{sHL}
    s_lshl_b32 s{sT0}, s{sRQ}, 1
    s_add_u32 s{sT0}, s{sT0}, s{sHF}
    s_lshl_b32 s{sT0}, s{sT0}, 3""")
def flag_addr(vd,vt,withq,A,B,C):
    flag_nib(withq,A,B,C)
    p(f"""v_and_b32 v{vt}, 60, v0
    v_min_u32 v{vt}, 20, v{vt}
    v_bfe_u32 v{vt}, s{A}, v{vt}, 4
    v_and_b32 v{vd}, 3, v0
    v_lshlrev_b32 v{vd}, 2, v{vd}
    v_lshl_add_u32 v{vd}, v{vt}, 7, v{vd}""")
def flag_nib(withq,A,B,C):
    p(f"""s_lshr_b32 s{A}, s{sHL}, 1
    s_mul_i32 s{A}, s{A}, 5
    s_lshl_b32 s{B}, s{sHO}, 1
    s_add_u32 s{A}, s{A}, s{B}
    s_add_u32 s{B}, s{A}, 2
    s_lshr_b32 s{A}, s{A}, 3
    s_lshr_b32 s{B}, s{B}, 3
    s_lshl_b32 s{B}, s{B}, 4
    s_or_b32 s{A}, s{A}, s{B}
    s_add_u32 s{B}, s{A}, 0x55
    s_lshl_b32 s{C}, s{B}, 8
    s_or_b32 s{A}, s{C}, s{A if withq else B}
    s_mul_i32 s{B}, s{sHL}, 20
    s_add_u32 s{C}, s{B}, 19
    s_lshr_b32 s{B}, s{B}, 6
    s_lshr_b32 s{C}, s{C}, 6
    s_lshl_b32 s{C}, s{C}, 4
    s_or_b32 s{B}, s{B}, s{C}
    s_add_u32 s{B}, s{B}, 0xaa
    s_lshl_b32 s{B}, s{B}, 16
    s_or_b32 s{A}, s{A}, s{B}""")
def flag_poll(va,vt,soff,cnt,first=True,sleep=0):
    lp=p.lab("fp"); ok=p.lab("fpok");
    p(f"s_mov_b32 s{cnt}, {SPIN}")
    if not first:
        md=p.lab("fpm"); p(f"s_branch {md}")
    p(f"""{lp}:
    buffer_load_dword v{vt}, v{va}, {S4(sWS)}, s{soff} offen sc1""")
    if not first: p(f"{md}:")
    p(f"""s_waitcnt vmcnt(0)
    v_cmp_ne_u32 vcc, s{sTAG}, v{vt}
    s_nop 0
    s_cbranch_vccz {ok}""")
    spin(cnt,lp,ok,sleep)
    p(f"s_branch {lp}\n{ok}:")
def flag_poll2(va,vt,soff,cnt,n=2,gap=0):
    lp=p.lab("fq"); ok=p.lab("fqok")
    ld=lambda i: f"buffer_load_dword v{vt+i}, v{va}, {S4(sWS)}, s{soff} offen sc1"
    p(f"s_mov_b32 s{cnt}, {SPIN}")
    for i in range(n-1):
        p(ld(i))
        if gap: p(f"s_sleep {gap}")
    p(f"{lp}:")
    for i in range(n):
        p(f"""{ld((i+n-1)%n)}
        s_waitcnt vmcnt({n-1})
        v_cmp_ne_u32 vcc, s{sTAG}, v{vt+i}
        s_nop 0
        s_cbranch_vccz {ok}""")
    spin(cnt,lp,ok)
    p(f"s_branch {lp}\n{ok}:")
def kv_dma(aLin,aTl,sK,sV,sL,A,B,sHO=sHO):
    p(f"""s_mul_i32 s{A}, s{sHO}, 1536
    s_add_u32 s{A}, s{A}, s{sK}
    s_mov_b32 m0, s{sL}
    s_add_u32 s{B}, s{A}, 1536
    buffer_load_dwordx4 v{aLin}, {S4(sWS)}, s{A} offen {CFG['ldp']} lds
    buffer_load_dwordx4 v{aLin}, {S4(sWS)}, s{B} offen offset:1024 {CFG['ldp']} lds
    s_sub_u32 s{A}, s{sK}, 2048
    s_sub_u32 s{B}, s{sV}, 3072
    buffer_load_dwordx4 v{aTl}, {S4(sWS)}, s{A} offen offset:2048 {CFG['ldp']} lds
    buffer_load_dwordx4 v{aLin}, {S4(sWS)}, s{B} offen offset:3072 {CFG['ldp']} lds
    s_add_u32 m0, s{sL}, 4096
    s_add_u32 s{B}, s{sV}, 1024
    buffer_load_dwordx4 v{aLin}, {S4(sWS)}, s{B} offen {CFG['ldp']} lds
    s_mov_b64 exec, s[{sLO}:{sLO+1}]
    buffer_load_dwordx4 v{aLin}, {S4(sWS)}, s{B} offen offset:1024 {CFG['ldp']} lds
    s_mov_b64 exec, -1""")
def kv_addr(aLin,aTl,t):
    p(f"""v_lshlrev_b32 v{aLin}, 4, v0
    v_lshrrev_b32 v{t}, 5, v0
    v_mul_u32_u24 v{t}, {2560-512}, v{t}
    v_add3_u32 v{aTl}, v{aLin}, v{t}, s{sK1024}""")
sK1024=sT+21

def halo_cond(A,B):
    p(f"""s_lshr_b32 s{A}, 0x8ccc, s{sBK}
    s_cmp_gt_u32 s{sCT}, 2
    s_cselect_b32 s{A}, s{A}, 0
    s_and_b32 s{A}, s{A}, 1""")
def halo_flag(vt,A,B,C):
    sk=p.lab("nohalo")
    halo_cond(A,B)
    p(f"""s_cbranch_scc0 {sk}
    s_lshl_b32 s{A}, s{sCT}, 1
    s_add_u32 s{A}, s{A}, s{HW}
    s_sub_u32 s{A}, s{A}, 3
    s_lshl_b32 s{C}, s{sG}, 4
    s_add_u32 s{A}, s{A}, s{C}
    s_lshl_b32 s{A}, s{A}, 2
    s_add_u32 s{A}, s{A}, s{sRB}
    s_lshl_b32 s{A}, s{A}, 8
    s_add_u32 s{A}, s{A}, {FH}
    s_lshl_b32 s{B}, s{HW}, 2
    s_add_u32 s{B}, s{B}, {F_STG-8}
    v_mov_b32 v{vt}, s{B}
    v_lshlrev_b32 v{vt+2}, 7, v0
    v_mov_b32 v{vt+3}, s{sTAG}""")
    lds_wait(vt,vt+1,C,'gt',2,0)
    p(f"""s_mov_b64 exec, 3
    buffer_store_dword v{vt+3}, v{vt+2}, {S4(sWS)}, s{A} offen sc1
    s_mov_b64 exec, -1""")
    STAMP('halo')
    p(f"{sk}:")
def halo_copy(vt,A,B,C,mid):
    sk=p.lab("nohalo"); jn=p.lab("halo_j"); D=168; sD=sT+12; sFH=sT+13
    p(f"s_mov_b32 s{sFH}, 0")
    halo_cond(A,B)
    p(f"""s_cbranch_scc0 {sk}
    s_lshl_b32 s{A}, s{sCT}, 1
    s_add_u32 s{A}, s{A}, s{HW}
    s_sub_u32 s{A}, s{A}, 3
    s_cmp_lt_u32 s{A}, 10
    s_cselect_b32 s{sD}, 1, 0
    s_lshl_b32 s{sD}, 1280, s{sD}
    s_lshl_b32 s{C}, s{sG}, 4
    s_add_u32 s{A}, s{A}, s{C}
    s_lshl_b32 s{A}, s{A}, 2
    s_add_u32 s{A}, s{A}, s{sRB}
    s_lshl_b32 s{A}, s{A}, 8
    s_add_u32 s{sFH}, s{A}, {FH}
    s_lshl_b32 s{B}, s{HW}, 2
    s_add_u32 s{B}, s{B}, {F_STG-8}
    v_mov_b32 v{vt}, s{B}
    s_mul_i32 s{B}, s{HW}, {2*9216}
    s_add_u32 s{B}, s{B}, {L_WO-4*9216}
    v_lshl_add_u32 v{vt+2}, v0, 4, s{B}
    v_mov_b32 v{vt+3}, {F_HR}
    v_mov_b32 v{vt+4}, 1""")
    lds_wait(vt,vt+1,C,'gt',2,0)
    STAMP('hs1')
    for wr in range(2):
        for i in range(9): p(f"ds_read_b128 {vr(D+36*wr+4*i,4)}, v{vt+2} offset:{wr*9216+i*1024}")
        if wr==0: p("s_waitcnt lgkmcnt(6)")
    p(f"v_add_u32 v{vt}, 8, v{vt}")
    lds_wait(vt,vt+1,C,'gt',2,0)
    STAMP('hs2')
    for wr in range(2):
        for i in range(8): p(f"buffer_store_dwordx4 {vr(D+36*wr+4*i,4)}, v{D+36*wr+32+(i&3)}, {S4(sWS)}, {'s%d'%sD if i>>2 else 0} offen sc1")
    p(f"""s_mov_b64 exec, 1
    ds_add_u32 v{vt+3}, v{vt+4}
    s_mov_b64 exec, -1""")
    p(f"{sk}:")
    mid()
    p(f"""s_cmp_eq_u32 s{sFH}, 0
    s_cbranch_scc1 {jn}
    v_mov_b32 v{vt+2}, 0
    v_mov_b32 v{vt+4}, s{sTAG}
    s_waitcnt vmcnt(0)
    s_mov_b64 exec, 1
    buffer_store_dword v{vt+4}, v{vt+2}, {S4(sWS)}, s{sFH} offen sc1
    s_mov_b64 exec, -1""")
    STAMP('halo')
    lds_wait(vt+3,vt+1,C,'gt',2,0)
    p(f"{jn}:")
def own_setup(aF2,vt):
    A=sT+7; B=sT+8; sF,sK,sV,sL=range(sT+12,sT+16)
    flag_addr(aF2,vt,1,A,B,sT+18)
    p(f"""s_lshl_b32 s{sF}, s{sG}, 11
    s_lshl_b32 s{A}, s{sHF}, 4
    s_add_u32 s{sF}, s{sF}, s{A}
    s_add_u32 s{sF}, s{sF}, {FL}
    s_lshl_b32 s{A}, s{HW}, 1
    s_add_u32 s{A}, s{A}, s{sT0}
    s_mul_i32 s{sK}, s{A}, 2560
    s_mul_i32 s{sV}, s{A}, 1280
    s_mul_i32 s{A}, s{sPH}, {64*2560}
    s_add_u32 s{sK}, s{sK}, s{A}
    s_add_u32 s{sK}, s{sK}, {KB}
    s_mul_i32 s{A}, s{sHD}, 81920
    s_add_u32 s{sV}, s{sV}, s{A}
    s_add_u32 s{sV}, s{sV}, {VB}
    s_mul_i32 s{sL}, s{HW}, 5632
    s_add_u32 s{sL}, s{sL}, {L_KV+4*5632}""")
def own_kv(aLin,aTl,aF2,vt,sHO_):
    A=sT+7; B=sT+8; sF,sK,sV,sL=range(sT+12,sT+16); C=sT+18
    p(f"v_mov_b32 v{vt}, {F_FS}\nv_mov_b32 v{vt+1}, 1")
    flag_poll(aF2,vt+2,sF,C)
    p(f"ds_write_b32 v{vt}, v{vt+1}")
    STAMP('hfs')
    kv_dma(aLin,aTl,sK,sV,sL,A,B,sHO_)
    p(f"""s_mov_b64 exec, 1
    v_mov_b32 v{vt}, {F_G1}
    s_waitcnt vmcnt(0)
    ds_add_u32 v{vt}, v{vt+1}
    s_mov_b64 exec, -1""")
    STAMP('hg1')
def helperA(steps):
    A=sT+7; B=sT+8; vt=10
    def hook(c):
        if c==CFG['pt']:
            qkv_touch(); OPS.extend(['pt']*wtouch('w1',0))
        if c==CFG['wts']: OPS.extend(['pt']*touch(vTW,sWO,0))
    steps(hook,0)
    for c in (8,9):
        vmwait(c); p("s_barrier"); STAMP('ld%d'%c)
        if c==9: STAMP('hb9')
        hook(c)
    stats_fin(vt,B)
    p("s_barrier\ns_waitcnt lgkmcnt(0)\ns_barrier")
    STAMP('hE1')
    if CFG['hsp']&2: p(f"v_mov_b32 v{vt}, {L_MODE}\nds_read_b32 v{vt+1}, v{vt}")
    att_ids()
    if CFG['hsp']&2: p(f"s_waitcnt lgkmcnt(0)\nv_readfirstlane_b32 s{sMODE}, v{vt+1}")
    aLin=6; aTl=7; aF=8; D=40
    p(f"s_mov_b32 s{sK1024}, 1024")
    kv_addr(aLin,aTl,vt)
    flag_addr(aF,vt,0,A,B,sT+17)
    if CFG['hsp']: flag_nib(1,A,B,sT+17); p(f"s_mov_b32 s{sT+21}, s{A}")
    if CFG['hkv']: own_setup(9,vt)
    p(f"v_mov_b32 v{vt+1}, 1")
    sF=sT+9; sK=sT+10; sV=sT+11; sL=sT+16; C=sT+17; sD=sT+12
    dn=p.lab("g2done"); h1=p.lab("rem"); jn=p.lab("remj")
    assert not (CFG['hsent'] or CFG['hkv'])
    p(f"""v_and_b32 v{vt+2}, 4, v{aF}
    v_and_b32 v{aF}, -128, v{aF}
    s_cmp_lg_u32 s{HW}, 0
    s_cbranch_scc1 {h1}
    v_add_u32 v{aF}, v{aF}, v{vt+2}
    s_mul_i32 s{A}, s{sHF}, 24
    s_lshl_b32 s{sF}, s{sG}, 11
    s_add_u32 s{sF}, s{sF}, s{A}
    s_add_u32 s{sF}, s{sF}, {FL}
    {f"s_cmp_eq_u32 s{sT0}, 56" if CFG['honly'] else ""}
    {f"s_cselect_b32 s{B}, 0, {KH-KB}" if CFG['honly'] else f"s_mov_b32 s{B}, 0"}
    s_branch {jn}
    {h1}:
    v_lshlrev_b32 v{aF}, 3, v{aF}
    s_lshl_b32 s{A}, s{sHF}, 2
    s_add_u32 s{A}, s{A}, s{sG}
    s_sub_u32 s{A}, s{A}, 2
    s_and_b32 s{A}, s{A}, 7
    s_lshl_b32 s{sF}, s{A}, 14
    s_mul_i32 s{A}, s{sHF}, -768
    s_add_u32 s{sF}, s{sF}, s{A}
    s_add_u32 s{sF}, s{sF}, {FH+768}
    s_mov_b32 s{B}, {KH-KB}
    {jn}:
    s_lshl_b32 s{A}, s{HW}, 2
    s_sub_u32 s{sK}, -2, s{A}
    s_cmp_eq_u32 s{sHF}, 0
    s_cselect_b32 s{A}, s{sK}, s{A}
    s_mul_i32 s{sD}, s{sHF}, 5120
    s_sub_u32 s{sD}, s{sD}, 2560
    s_add_u32 s{A}, s{A}, s{sT0}
    s_mul_i32 s{sK}, s{A}, 2560
    s_mul_i32 s{sV}, s{A}, 1280
    s_mul_i32 s{A}, s{sPH}, {64*2560}
    s_add_u32 s{sK}, s{sK}, s{A}
    s_add_u32 s{sK}, s{sK}, s{B}
    s_add_u32 s{sK}, s{sK}, {KB}
    s_mul_i32 s{A}, s{sHD}, 81920
    s_add_u32 s{sV}, s{sV}, s{A}
    s_add_u32 s{sV}, s{sV}, s{B}
    s_add_u32 s{sV}, s{sV}, {VB}
    s_mul_i32 s{sL}, s{HW}, {-2*5632}
    s_add_u32 s{sL}, s{sL}, {L_KV+3*5632}""")
    if CFG['hsp']&2:
        sk=p.lab("noown"); sp=p.lab("ownp"); so=p.lab("ownok"); O=[sT+13,sT+14,sT+15,sT+18,sT+19,sT+20]; Rq=[4,8,12,28,40,96]
        halo_cond(A,B)
        p(f"""s_and_b32 s{A}, s{A}, s{HW}
        s_andn2_b32 s{A}, s{A}, s{sMODE}
        s_cbranch_scc0 {sk}
        s_lshl_b32 s{A}, s{sG}, 11
        s_add_u32 s{A}, s{A}, {FL}
        s_lshl_b32 s{B}, s{sHF}, 4
        s_add_u32 s{B}, s{B}, s{A}
        s_add_u32 s{A}, s{A}, 8""")
        for i in range(6): p(f"s_bfe_u32 s{O[i]}, s{sT+21}, {hex((4*i)|(4<<16))}\ns_lshl_b32 s{O[i]}, s{O[i]}, 7\ns_add_u32 s{O[i]}, s{O[i]}, s{B if i<2 else A}")
        assert 'FS' not in CFG['gm']+CFG['gr']
        if CFG['ogate']: p(f"v_mov_b32 v{vt}, {F_FS}"); lds_wait(vt,vt+5,C,'gt',CFG['ogate'],1)
        p(f"v_mov_b32 v{vt}, {F_OWN}\ns_mov_b32 s{C}, {SPIN}\n{sp}:")
        for i in range(6): p(f"s_load_dwordx4 s[{Rq[i]}:{Rq[i]+3}], s[{sWS}:{sWS+1}], s{O[i]} glc")
        p("s_waitcnt lgkmcnt(0)")
        for i in range(6):
            r=Rq[i]
            p(f"s_and_b64 s[{A+1}:{A+2}], s[{r}:{r+1}], s[{r+2}:{r+3}]" if 0 else "")
            p(f"s_xor_b64 s[{r}:{r+1}], s[{r}:{r+1}], s[{r+2}:{r+3}]\ns_xor_b32 s{r+2}, s{r+2}, s{sTAG}\ns_xor_b32 s{r+3}, s{r+3}, s{sTAG}\ns_or_b64 s[{r}:{r+1}], s[{r}:{r+1}], s[{r+2}:{r+3}]")
            if i: p(f"s_or_b64 s[4:5], s[4:5], s[{r}:{r+1}]")
        p(f"""s_cbranch_scc0 {so}
        s_sub_u32 s{C}, s{C}, 1
        {f"s_sleep {CFG['hsl2']}" if CFG['hsl2'] else ""}
        s_cbranch_scc0 {sp}
        {so}:
        ds_write_b32 v{vt}, v{vt+1}""")
        if CFG['prof']: p("s_mov_b64 s[96:97], 0\ns_mov_b64 s[98:99], 0")
        STAMP('own')
        p(f"{sk}:")
    p(f"s_cmp_eq_u32 s{sT0}, 0\ns_cbranch_scc1 {dn}")
    def both():
        kv_dma(aLin,aTl,sK,sV,sL,A,B)
        p(f"""s_add_u32 s{sK}, s{sK}, s{sD}
        s_add_u32 s{sK}, s{sK}, s{sD}
        s_add_u32 s{sV}, s{sV}, s{sD}
        s_sub_u32 s{sL}, s{sL}, 5632""")
        kv_dma(aLin,aTl,sK,sV,sL,A,B)
    GT=dict(G1=(F_G1,4),FS=(F_FS,1),FS4=(F_FS,4),M=(F_M,1))
    if CFG['gm']!='no' or CFG['gr']!='no':
        g0=p.lab("gate0"); g1=p.lab("gate1")
        p(f"s_cmp_lg_u32 s{HW}, 0\ns_cbranch_scc1 {g0}")
        if CFG['gm']!='no': p(f"v_mov_b32 v{vt}, {GT[CFG['gm']][0]}"); lds_wait(vt,vt+5,C,'gt',GT[CFG['gm']][1],0)
        p(f"s_branch {g1}\n{g0}:")
        if CFG['gr']!='no': p(f"v_mov_b32 v{vt}, {GT[CFG['gr']][0]}"); lds_wait(vt,vt+5,C,'gt',GT[CFG['gr']][1],0)
        p(f"{g1}:")
    if CFG['hsp']&1:
        vp=p.lab("vecp"); sp=p.lab("scp"); so=p.lab("scok")
        p(f"s_cmp_eq_u32 s{HW}, 0\ns_cbranch_scc1 {vp}")
        for i in range(4): p(f"s_bfe_u32 s{8+i}, s{sT+21}, {hex((8+4*i)|(4<<16))}\ns_lshl_b32 s{8+i}, s{8+i}, 10\ns_add_u32 s{8+i}, s{8+i}, s{sF}")
        p(f"s_mov_b32 s{C}, 256\n{sp}:")
        for i in range(4): p(f"s_load_dword s{4+i}, s[{sWS}:{sWS+1}], s{8+i} glc")
        p("s_waitcnt lgkmcnt(0)")
        for i in range(4): p(f"s_xor_b32 s{4+i}, s{4+i}, s{sTAG}")
        p(f"""s_or_b32 s4, s4, s5
        s_or_b32 s6, s6, s7
        s_or_b32 s4, s4, s6
        s_cbranch_scc0 {so}
        s_sub_u32 s{C}, s{C}, 1
        {f"s_sleep {CFG['hsl']}" if CFG['hsl'] else ""}
        s_cbranch_scc0 {sp}
        {vp}:""")
        flag_poll(aF,vt+5,sF,C,sleep=CFG['hsl'])
        p(f"{so}:")
    elif CFG['hpoll']: flag_poll2(aF,vt+5,sF,C,CFG['hpoll'],CFG['hsl'])
    else: flag_poll(aF,vt+5,sF,C,sleep=CFG['hsl'])
    STAMP('hf')
    both()
    if CFG['wpause']: p(f"s_lshl_b32 s{A}, s{HW}, 2\ns_add_u32 s{A}, s{A}, {F_RI-4}\nv_mov_b32 v{vt+2}, s{A}\nds_write_b32 v{vt+2}, v{vt+1}")
    if CFG['mtw'] in ('RI','MI'):
        nt_=p.lab("nori"); d2=p.lab("g2d")
        p(f"s_cmp_eq_u32 s{HW}, {int(CFG['mtw']=='RI')}\ns_cbranch_scc0 {nt_}")
        touch(vTM,sWG,0); touch(vTM,sWU,0)
        p(f"s_waitcnt vmcnt(2)\ns_branch {d2}\n{dn}:\ns_cmp_eq_u32 s{HW}, {int(CFG['mtw']=='RI')}\ns_cbranch_scc0 {d2}")
        touch(vTM,sWG,0); touch(vTM,sWU,0)
        p(f"s_branch {d2}\n{nt_}:"); dn=d2
    p(f"""s_waitcnt vmcnt(0)
    {dn}:
    s_lshl_b32 s{A}, s{HW}, 2
    s_add_u32 s{A}, s{A}, {F_M}
    v_mov_b32 v{vt}, {F_G2}
    v_mov_b32 v{vt+2}, s{A}
    s_mov_b64 exec, 1
    ds_write_b32 v{vt+2}, v{vt+1}
    {f"ds_write_b32 v{vt+2}, v{vt+1} offset:{F_RI-4-F_M}" if CFG['wpause'] else ""}
    ds_add_u32 v{vt}, v{vt+1}
    s_mov_b64 exec, -1""")
    STAMP('g2')
    if CFG['mtw']=='sm':
        u=p.lab("smu"); j=p.lab("smj")
        def run(r,n,f):
            for i in range(n):
                if CFG['smx']==2: p(f"s_load_dwordx2 s[100:101], s[{r}:{r+1}], s{A} offset:{f(i)+60}")
                else: p(f"s_load_dword s100, s[{r}:{r+1}], s{A} offset:{f(i)}")
        p(f"""s_mul_i32 s{A}, s{sSLOT}, {20*3072}
        s_mul_i32 s{B}, s{sG}, 384
        s_add_u32 s{A}, s{A}, s{B}
        s_cmp_eq_u32 s{HW}, 0
        s_cbranch_scc0 {u}""")
        run(sWG,60,lambda i:(i//3)*3072+(i%3)*128)
        p(f"s_branch {j}\n{u}:")
        run(sWU,60,lambda i:(i//3)*3072+(i%3)*128)
        p(f"{j}:")
        if CFG['smd']:
            p(f"""s_lshl_b32 s{A}, s{sSLOT}, 1
            s_add_u32 s{A}, s{A}, s{HW}
            s_mul_i32 s{A}, s{A}, {24*1280}
            s_mul_i32 s{B}, s{sG}, 160
            s_and_b32 s{B}, s{B}, -128
            s_add_u32 s{A}, s{A}, s{B}""")
            run(sWD,48,lambda i:(i//2)*1280+(i%2)*128)
        STAMP('mt')
        if CFG['prof'] and any('mt2' in x for x in CFG['st']): p("s_waitcnt lgkmcnt(0)"); STAMP('mt2')
    if 'w3' in (CFG['wtw'],CFG['mtw']):
        fa=dict(G1=(F_G1,4),WOR=(F_WOR,2),WOD=(F_WOD,2),WO2=(F_WO2,2),DONE=(F_DONE,4),PR=(F_PR,4),LD=(F_LD,1),RL=(F_H2,4))[CFG['mtg']]
        p(f"v_mov_b32 v{vt}, {fa[0]}")
        if CFG['mth']:
            nt_=p.lab("nomt")
            p(f"s_cmp_eq_u32 s{sHF}, 0\ns_cbranch_scc1 {nt_}")
        lds_wait(vt,vt+5,C,'gt',fa[1],1)
        wtouch('w3',0)
        if CFG['mth']:
            p(f"v_subrev_u32 v{vTM}, {20*3072}, v{vTM}")
            if CFG['mth']==2: p("s_waitcnt vmcnt(0)")
            wtouch('w3',0)
            p(f"{nt_}:")
        if CFG['dw3']: touch(vTD,sWD,CFG['mpair'])
        STAMP('mt')
        if CFG['prof'] and any('mt2' in x for x in CFG['st']): p("s_waitcnt vmcnt(0)"); STAMP('mt2')

def tr_addr(a0,t):
    tab=[[0,8],[4,12],[16,36],[20,28],[24,32]]
    pk=[sum((tab[u][rd]//4)<<(4*u) for u in range(5)) for rd in range(2)]
    A=sT+7; B=sT+8
    p(f"""s_mov_b32 s{A}, {pk[0]}
    s_mov_b32 s{B}, {pk[1]}
    v_bfe_u32 v{t}, v0, 2, 2
    v_mul_u32_u24 v{t}, 160, v{t}
    v_and_b32 v{t+1}, 3, v0
    v_mad_u32_u24 v{t}, v{t+1}, 40, v{t}
    v_lshrrev_b32 v{t+1}, 4, v0""")
    for s_ in range(5):
        p(f"""v_add_u32 v{t+2}, {4*s_}, v{t+1}
        v_mul_u32_u24 v{t+4}, 52, v{t+2}
        v_lshrrev_b32 v{t+4}, 8, v{t+4}
        v_mul_u32_u24 v{t+5}, 5, v{t+4}
        v_sub_u32 v{t+2}, v{t+2}, v{t+5}
        v_lshlrev_b32 v{t+2}, 2, v{t+2}
        v_mul_u32_u24 v{t+4}, 10, v{t+4}""")
        for rd in range(2):
            p(f"""v_bfe_u32 v{t+3}, s{(A,B)[rd]}, v{t+2}, 4
            v_add_u32 v{t+3}, v{t+3}, v{t+4}
            v_mul_u32_u24 v{t+3}, 640, v{t+3}
            v_add_u32 v{a0+2*s_+rd}, v{t+3}, v{t}""")
sBLK,sJ=sT+9,sT+10
def wo_ids():
    p(f"""s_lshr_b32 s{sBLK}, s{sSLOT}, 3
    s_lshl_b32 s{sJ}, s{sG}, 2
    s_add_u32 s{sBLK}, s{sBLK}, s{sJ}
    s_and_b32 s{sJ}, s{sSLOT}, 7""")
def clr_ids(A,B,C,D_):
    p(f"""s_lshr_b32 s{C}, s{sSLOT}, 3
    s_lshl_b32 s{B}, s{sG}, 2
    s_add_u32 s{C}, s{C}, s{B}
    s_lshl_b32 s{C}, s{C}, 3
    s_and_b32 s{B}, s{sSLOT}, 7
    s_add_u32 s{D_}, s{C}, s{B}
    s_lshr_b32 s{A}, s{D_}, 1
    s_mul_i32 s{A}, s{A}, 20480
    s_and_b32 s{B}, s{B}, 1
    s_mul_i32 s{B}, s{B}, 5120
    s_add_u32 s{A}, s{A}, s{B}
    s_add_u32 s{A}, s{A}, {OB}
    s_mul_i32 s{B}, s{sHH}, 10240
    s_add_u32 s{C}, s{A}, 10240
    s_add_u32 s{A}, s{A}, s{B}
    s_sub_u32 s{C}, s{C}, s{B}
    s_lshl_b32 s{D_}, s{D_}, 10
    s_add_u32 s{D_}, s{D_}, {PS}""")
def clears(part):
    A=sT+13; B=sT+14; C=sT+15; D_=sT+16; D=12; aL=16
    if part==0:
        clr_ids(A,B,C,D_)
        p(f"v_lshlrev_b32 v{aL}, 4, v0")
        for r in range(4): p(f"v_mov_b32 v{D+r}, -1")
        return
    st4=lambda so,off,sc: f"buffer_store_dwordx4 v[{D}:{D+3}], v{aL}, {S4(sWS)}, s{so} offen offset:{off} {sc}"
    w2=p.lab("clw2"); w3=p.lab("clw3"); dn=p.lab("cldn")
    if CFG['hsent']:
        H_=sT+17; nh=p.lab("clnh")
        p(f"""s_cmp_eq_u32 s{sWAVE}, 3
        s_cbranch_scc1 {nh}
        s_lshl_b32 s{B}, s{sWAVE}, 8
        s_add_u32 s{B}, s{B}, s2
        s_sub_u32 s{H_}, s{B}, 384
        s_cselect_b32 s{H_}, s{B}, s{H_}
        s_cselect_b32 s{H_+1}, 3, 2
        s_cselect_b32 s{H_+2}, 0, {VH+10240-KH-20480}
        s_cselect_b32 s{H_+3}, 1, 0
        s_lshr_b32 s{B}, s{H_}, s{H_+1}
        s_lshl_b32 s{H_+1}, s{B}, s{H_+1}
        s_sub_u32 s{H_}, s{H_}, s{H_+1}
        s_mul_i32 s{H_}, s{H_}, 2560
        s_add_u32 s{H_}, s{H_}, s{H_+2}
        s_mul_i32 s{H_+1}, s{B}, 171
        s_lshr_b32 s{H_+1}, s{H_+1}, 9
        s_add_u32 s{B}, s{B}, s{H_+1}
        s_mul_i32 s{B}, s{B}, 20480
        s_lshl_b32 s{B}, s{B}, s{H_+3}
        s_add_u32 s{H_}, s{H_}, s{B}
        s_add_u32 s{H_}, s{H_}, {KH+20480}""")
        for o in (0,1024,1536): p(st4(H_,o,"sc1"))
        p(f"{nh}:")
    p(f"""s_cmp_ge_u32 s{sWAVE}, 2
    s_cbranch_scc1 {w2}
    s_mul_i32 s{B}, s{sWAVE}, 2560
    s_add_u32 s{A}, s{A}, s{B}""")
    for o in (0,1024,1536): p(st4(A,o,CFG['cpol']))
    p(f"""s_branch {dn}
    {w2}:
    s_cmp_eq_u32 s{sWAVE}, 3
    s_cbranch_scc1 {w3}
    s_mul_i32 s{C}, s2, 2560
    s_add_u32 s{C}, s{C}, {CAND}""")
    if 'c' in CFG['ptc']: p(f"v_lshlrev_b32 v228, 7, v0\ns_mov_b64 exec, {0x3ff if 'l' in CFG['ptc'] else 0xfffff}\nbuffer_load_dword v229, v228, {S4(sWS)}, s{C} offen\ns_mov_b64 exec, -1")
    for o in (0,1024,1536): p(st4(C,o,"sc1"))
    p(f"""s_branch {dn}
    {w3}:""")
    if CFG['osent']:
        if 'o' in CFG['ptc']: p(f"v_lshlrev_b32 v228, 7, v0\ns_mov_b32 exec_hi, 0xff\nbuffer_load_dword v229, v228, {S4(sWS)}, s{C} offen\ns_mov_b64 exec, -1")
        for o in range(4): p(st4(C,o*1024,"sc1"))
        p(f"s_add_u32 s{C}, s{C}, 4096"); p(st4(C,0,"sc1"))
    p(f"""s_cmp_ge_u32 s2, 24
    s_cbranch_scc1 {dn}
    s_lshl_b32 s{C}, s2, 10
    s_add_u32 s{C}, s{C}, {ACT}""")
    if 'a' in CFG['ptc']: p(f"v_lshlrev_b32 v228, 7, v0\ns_mov_b64 exec, 0xff\nbuffer_load_dword v229, v228, {S4(sWS)}, s{C} offen\ns_mov_b64 exec, -1")
    p(st4(C,0,"sc1"))
    p(f"{dn}:")
cU=sT+13; vC=84
def hclear_setup(isB):
    A=sT+15; B=sT+16; C=sT+17; D_=sT+18; H_=sT+17
    clr_ids(A,B,C,D_)
    if isB: p(f"""s_mul_i32 s{B}, s2, 2560
        s_add_u32 s{B}, s{B}, {CAND}
        s_add_u32 s{A}, s{C}, 2560
        s_cmp_eq_u32 s{HW}, 2
        s_cselect_b32 s{cU+1}, s{B}, s{A}
        s_mov_b32 s{cU}, s{C}""")
    else: p(f"""s_mul_i32 s{B}, s{HW}, 2560
        s_add_u32 s{cU+1}, s{A}, s{B}""")
    p(f"""s_lshl_b32 s{B}, s{HW}, 8
    s_add_u32 s{B}, s{B}, s2
    s_sub_u32 s{H_}, s{B}, 384
    s_cselect_b32 s{H_}, s{B}, s{H_}
    s_cselect_b32 s{H_+1}, 3, 2
    s_cselect_b32 s{H_+2}, 0, {VH+10240-KH-20480}
    s_cselect_b32 s{H_+3}, 1, 0
    s_lshr_b32 s{B}, s{H_}, s{H_+1}
    s_lshl_b32 s{H_+1}, s{B}, s{H_+1}
    s_sub_u32 s{H_}, s{H_}, s{H_+1}
    s_mul_i32 s{H_}, s{H_}, 2560
    s_add_u32 s{H_}, s{H_}, s{H_+2}
    s_mul_i32 s{H_+1}, s{B}, 171
    s_lshr_b32 s{H_+1}, s{H_+1}, 9
    s_add_u32 s{B}, s{B}, s{H_+1}
    s_mul_i32 s{B}, s{B}, 20480
    s_lshl_b32 s{B}, s{B}, s{H_+3}
    s_add_u32 s{H_}, s{H_}, s{B}
    s_add_u32 s{H_}, s{H_}, {KH+20480}""")
    if isB: p(f"""s_cmp_eq_u32 s{HW}, 2
        s_cselect_b32 s{cU}, s{H_}, s{cU}
        s_cselect_b32 s{cU+3}, 256, s2
        s_lshl_b32 s{cU+2}, s2, 10
        s_cmp_lt_u32 s{cU+3}, 24
        s_cselect_b32 s{H_}, 0, {STX+0x20000-ACT}
        s_add_u32 s{cU+2}, s{cU+2}, s{H_}
        s_add_u32 s{cU+2}, s{cU+2}, {ACT}""")
    else: p(f"""s_mov_b32 s{cU}, s{H_}
        s_getreg_b32 s{A}, hwreg(HW_REG_XCC_ID, 0, 4)
        s_or_b32 s{A}, s{A}, s{sTAG}
        v_mov_b32 v{vC+5}, s{A}
        s_lshl_b32 s{cU+2}, s2, 2
        s_add_u32 s{cU+2}, s{cU+2}, {H1}""")
    p(f"v_lshlrev_b32 v{vC+4}, 4, v0")
    for r in range(4): p(f"v_mov_b32 v{vC+r}, -1")
def hclear(c,isB):
    st=lambda so,off,sc: (p(f"buffer_store_dwordx4 v[{vC}:{vC+3}], v{vC+4}, {S4(sWS)}, s{so} offen offset:{off} {sc}"),OPS.append('clr'))
    ks=[k for k in range(2) if CFG['cst'][k]==c and (CFG['hsent'] or k or isB)]
    pol=lambda k: "sc1" if isB or k==0 else CFG['cpol']
    for k in ks: st(cU+k,0,pol(k)); st(cU+k,1024,pol(k))
    if ks: p(f"s_mov_b64 exec, s[{sLO}:{sLO+1}]")
    for k in ks: st(cU+k,2048,pol(k))
    if ks: p("s_mov_b64 exec, -1")
    if isB and c==CFG['cst'][1]:
        sk=p.lab("noact")
        p(f"s_cmp_lt_u32 s{cU+3}, 24\ns_cselect_b64 exec, -1, 1"); st(cU+2,0,"sc1"); p("s_mov_b64 exec, -1")
    if not isB and c==max(CFG['cst'])+2:
        p(f"s_mov_b64 exec, 1\nbuffer_store_dword v{vC+5}, v{vC+4}, {S4(sWS)}, s{cU+2} offen sc1\ns_mov_b64 exec, -1"); OPS.append('clr')
sSM=sT+11
def sm_setup():
    A=sT+20
    p(f"""s_and_b32 s{A}, s{HW}, 1
    s_lshl_b32 s{sSM}, s{sSLOT}, 1
    s_add_u32 s{A}, s{A}, s{sSM}
    s_mul_i32 s{sSM}, s{A}, {10*3072}
    s_mul_i32 s{A}, s{sG}, 384
    s_add_u32 s{sSM}, s{sSM}, s{A}
    s_lshl_b32 s{A}, s2, 2
    s_add_u32 s{A}, s{A}, s{HW}
    s_mul_i32 s{sSM+1}, s{A}, 800
    s_and_b32 s{sSM+1}, s{sSM+1}, -128""")
def sm_touch(c,isB):
    for opt,n,f in ((CFG['smw'],30,lambda i: f"s_load_dword s100, s[{(sWG,sWU)[isB]}:{(sWG,sWU)[isB]+1}], s{sSM} offset:{(i//3)*3072+(i%3)*128}"),
                    (CFG['smo'],7,lambda i: f"s_load_dword s100, s[{sWO}:{sWO+1}], s{sSM+1} offset:{i*128}")):
        if opt and opt[0]<=c<opt[1]:
            k=opt[1]-opt[0]
            for i in range(n*(c-opt[0])//k,n*(c+1-opt[0])//k): p(f(i))
def code_pf():
    A=sT+18
    p(f"""s_getpc_b64 s[{A}:{A+1}]
    L_pc:
    s_sub_u32 s{A}, s{A}, L_pc-{NAME}_kernel
    s_subb_u32 s{A+1}, s{A+1}, 0
    s_lshl_b32 s{A+2}, s{sSLOT}, 2
    s_add_u32 s{A+2}, s{A+2}, s{sWAVE}
    s_mul_i32 s{A+2}, s{A+2}, 384
    s_min_u32 s{A+2}, s{A+2}, (L_exit-{NAME}_kernel-384)&0xffffff80""")
    for i in range(3): p(f"s_load_dwordx2 s[100:101], s[{A}:{A+1}], s{A+2} offset:{i*128+60}")
def wave_sum(x,t):
    dp="row_mask:0xf bank_mask:0xf"
    for c in ("quad_perm:[1,0,3,2]","quad_perm:[2,3,0,1]","row_half_mirror","row_mirror"):
        p(f"s_nop 1\nv_add_f32_dpp v{x}, v{x}, v{x} {c} {dp}")
    for sw in (16,32):
        p(f"""v_mov_b32 v{t}, v{x}
        s_nop 1
        v_permlane{sw}_swap_b32 v{x}, v{t}
        s_nop 0
        v_add_f32 v{x}, v{x}, v{t}""")
sPF=sT+16
def pf_group(n=5):
    for i in range(n): p(f"s_load_dwordx2 s[100:101], s[{sWO}:{sWO+1}], s{sPF} offset:{i*128+60}")
    p(f"""s_add_u32 s{sPF}, s{sPF}, {n*128}
    s_sub_u32 s{sPF+2}, s{sPF+2}, 1
    s_add_u32 s{sPF+3}, s{sPF+1}, 12800
    s_cmp_eq_u32 s{sPF}, s{sPF+3}
    s_cselect_b32 s{sPF}, s{sPF+1}, s{sPF}""")
def helperB(steps):
    A=sT+7; B=sT+8; vt=2; aD=140; aT=146; aLin=12; D=40; WRr=32
    sO=sT+1; sL=sT+2; sL0=sT+3; sL1=sT+4; C=sT+5
    p("L_helperB:")
    vM=23; x=10; a=sT+16
    clr_ids(a,a+1,a+2,a+3)
    p(f"""s_mul_i32 s{a+1}, s{HW}, 25
    s_sub_u32 s{a+1}, s{a+1}, 50
    v_min_u32 v{x}, 24, v0
    v_add_u32 v{x}, s{a+1}, v{x}
    v_min_u32 v{x}, 48, v{x}
    s_sub_u32 s{a+3}, s{a+3}, {40*128}
    s_and_b32 s{a+1}, s{sSLOT}, 15
    s_lshl_b32 s{a+2}, s{sG}, 4
    s_add_u32 s{a+1}, s{a+1}, s{a+2}
    s_lshl_b32 s{a+1}, s{a+1}, 7
    s_add_u32 s{a+1}, s{a+1}, {FL-48*128}
    v_mov_b32 v{x+1}, s{a}
    v_mov_b32 v{x+2}, s{a+3}
    v_cmp_le_u32 vcc, 40, v{x}
    v_mov_b32 v{x+3}, s{a+1}
    s_mul_i32 s{a+1}, s{sSLOT}, {200*128}
    v_cndmask_b32 v{x+1}, v{x+1}, v{x+2}, vcc
    v_cmp_le_u32 vcc, 48, v{x}
    s_mul_i32 s{a}, s{HW}, {100*128}
    s_add_u32 s{a+1}, s{a+1}, s{a}
    v_cndmask_b32 v{x+1}, v{x+1}, v{x+3}, vcc
    v_lshl_add_u32 v{vM}, v{x}, 7, v{x+1}
    s_sub_u32 s{sPF+1}, s{a+1}, {200*128}
    s_mul_i32 s{sPF}, s{sG}, 5
    s_lshr_b32 s{sPF}, s{sPF}, 1
    s_mul_i32 s{sPF}, s{sPF}, 640
    s_add_u32 s{sPF}, s{sPF}, s{sPF+1}
    s_mov_b32 s{sPF+2}, 20
    v_lshlrev_b32 v{vH+4}, 4, v0
    v_add_u32 v{vH+4}, {H1}, v{vH+4}
    v_mul_u32_u24 v{WRr+5}, 20, v0""")
    aB=130; sK=sT+11; sN=sT+16; sS=sT+17
    def wo_setup():
        va=96
        wo_ids()
        T=[[0,2],[1,3],[4,9],[5,7],[6,8]]
        NIB=[sum((10*((4*s5+g_)//5)+T[(4*s5+g_)%5][rd]-(8*s5+2*g_-2))<<(4*(4*rd+g_)) for rd in range(2) for g_ in range(4)) for s5 in range(5)]
        for i in range(5):
            p(f"""v_add_u32 v{va}, {64*i}, v0
            v_mul_u32_u24 v{va+1}, 6554, v{va}
            v_lshrrev_b32 v{va+1}, 16, v{va+1}
            v_mul_u32_u24 v{va+2}, 10, v{va+1}
            v_sub_u32 v{va}, v{va}, v{va+2}
            v_and_b32 v{aB+5+i}, 28, v{va+1}
            v_and_b32 v{va+2}, 3, v{va+1}
            v_mul_u32_u24 v{va+2}, 1280, v{va+2}
            v_lshl_add_u32 v{va}, v{va}, 4, v{va+2}
            v_bfe_u32 v{va+1}, v{va+1}, 2, 2
            v_mul_u32_u24 v{va+1}, 10240, v{va+1}
            v_add_u32 v{aB+i}, v{va}, v{va+1}""")
            if 0<i<4: p(f"v_subrev_u32 v{aB+i}, {i*1024}, v{aB+i}")
        p(f"""s_lshr_b32 s{A}, s{sSLOT}, 3
        s_mul_i32 s{A}, s{A}, 5
        s_lshr_b32 s{A}, s{A}, 1
        s_add_u32 s{A}, s{A}, s{HW}
        s_sub_u32 s{sK}, s{A}, 2
        v_mov_b32 v{va}, 5120""")
        def woaddr(n):
            p(f"""s_add_u32 s{A}, s{sK}, {2*n}
            s_sub_u32 s{B}, s{A}, 10
            s_cselect_b32 s{A}, s{A}, s{B}
            s_sub_u32 s{B}, s{A}, 5
            s_cselect_b32 s{B}, s{A}, s{B}
            s_mul_i32 s{sS}, s{A}, 40960
            s_sub_u32 s{sS}, s{sS}, 10240
            s_mov_b32 s{sN}, {hex(NIB[0])}""")
            for k in range(1,5): p(f"s_cmp_eq_u32 s{B}, {k}\ns_cselect_b32 s{sN}, {hex(NIB[k])}, s{sN}")
            for i in range(5):
                p(f"""v_bfe_u32 v{va+1}, s{sN}, v{aB+5+i}, 4
                v_mad_u32_u24 v{va+1}, v{va+1}, v{va}, v{aB+i}
                v_add_u32 v{aD+5*n+i}, s{sS}, v{va+1}""")
        for n in range(5): woaddr(n)
    if CFG['wose']==0: wo_setup()
    npf=CFG['npf']
    for _ in range(npf[0]): pf_group()
    def hook(c):
        if c==(100 if CFG['hstep']==CFG['stg'] else CFG['hstep']):
            p(f"buffer_load_dwordx4 v[{vH}:{vH+3}], v{vH+4}, {S4(sWS)}, 0 offen sc1"); OPS.append('h1')
        if c==100:
            p(f"buffer_load_dwordx4 {vr(WRr,4)}, v{WRr+5}, {S4(sWR)}, 0 offen\nbuffer_load_dword v{WRr+4}, v{WRr+5}, {S4(sWR)}, 0 offen offset:16"); OPS.extend(['wr','wr'])
        if c==CFG['pt']:
            qkv_touch()
            OPS.extend(['pt']*wtouch('w1',1))
        if c==CFG['wts']: OPS.extend(['pt']*touch(vTW,sWO,0))
        if c==CFG['pt2']: OPS.extend(['pt']*touch(vM,sWS,CFG['qpair2'],CFG['tpol']))
    steps(hook,1)
    st=dict(n=0)
    def dma(cnt):
        for _ in range(min(cnt,50-st['n'])):
            n=st['n']; i=n%5; k=(n//5)%5
            if n==0 or n==25:
                p(f"""s_xor_b32 s{A}, s{sHH}, {n//25}
                s_mul_i32 s{sO}, s{A}, {320*1280}
                s_mul_i32 s{sL0}, s{A}, 51200
                s_add_u32 s{sL0}, s{sL0}, {L_WO}
                s_mul_i32 s{A}, s{sJ}, 160
                s_add_u32 s{sO}, s{sO}, s{A}""")
            if i==0: p(f"""s_add_u32 s{A}, s{sK}, {2*k}
                s_sub_u32 s{B}, s{A}, 10
                s_cselect_b32 s{A}, s{A}, s{B}
                s_mul_i32 s{sL}, s{A}, 5120
                s_add_u32 s{sL}, s{sL}, s{sL0}
                s_mov_b32 m0, s{sL}
                s_nop 0""")
            if i==4: p(f"s_add_u32 m0, s{sL}, 4096\ns_nop 0")
            p(f"buffer_load_dwordx4 v{aD+5*k+i}, {S4(sWO)}, s{sO} offen offset:{(i&3)*1024} {CFG['wopol']} lds")
            OPS.append('wo%d'%(n//25))
            st['n']+=1
    vmwait(8); p("s_barrier"); hook(8)
    p(f"v_lshlrev_b32 v{aLin}, 4, v0")
    vmwait(9); p("s_barrier"); hook(9)
    stats_fin(96,B)
    vmwait('h1')
    lp=p.lab("hello"); ok=p.lab("hello_ok"); ne=p.lab("noep")
    p(f"""s_mov_b32 s{A}, {SPIN}
    {lp}:
    v_xor_b32 v{vH}, s{sTAG}, v{vH}
    v_xor_b32 v{vH+1}, s{sTAG}, v{vH+1}
    v_xor_b32 v{vH+2}, s{sTAG}, v{vH+2}
    v_xor_b32 v{vH+3}, s{sTAG}, v{vH+3}
    v_or3_b32 v{vt}, v{vH}, v{vH+1}, v{vH+2}
    v_or_b32 v{vt}, v{vt}, v{vH+3}
    v_cmp_lt_u32 vcc, 15, v{vt}
    s_nop 0
    s_cbranch_vccz {ok}""")
    spin(A,lp,ok,4)
    p(f"""buffer_load_dwordx4 v[{vH}:{vH+3}], v{vH+4}, {S4(sWS)}, 0 offen sc1
    s_waitcnt vmcnt(0)
    s_branch {lp}
    {ok}:
    v_lshl_or_b32 v{vH}, v{vH+1}, 4, v{vH}
    v_lshl_or_b32 v{vH+2}, v{vH+3}, 4, v{vH+2}
    v_lshl_or_b32 v{vH}, v{vH+2}, 8, v{vH}
    v_and_b32 v{vt}, 1, v0
    v_readlane_b32 s{A}, v{vH}, 0
    v_readlane_b32 s{B}, v{vH}, 1
    v_cmp_eq_u32 vcc, 0, v{vt}
    v_mov_b32 v{vt+1}, s{A}
    v_mov_b32 v{vt+2}, s{B}
    v_cndmask_b32 v{vt+1}, v{vt+2}, v{vt+1}, vcc
    v_cmp_ne_u32 vcc, v{vt+1}, v{vH}
    v_mov_b32 v{vt}, {L_MODE}
    s_cmp_lg_u64 vcc, 0
    s_cselect_b32 s{sMODE}, 1, {CFG['force_slow']}
    v_mov_b32 v{vt+1}, s{sMODE}
    ds_write_b32 v{vt}, v{vt+1}
    s_barrier
    s_waitcnt lgkmcnt(0)
    s_barrier""")
    vmw=len(OPS)-1-max(i for i,t in enumerate(OPS) if t=='wr')
    STAMP('hE1')
    p(f"""v_mov_b32 v{vt}, 0x3f803f80
    v_mov_b32 v{vt+1}, 0
    s_waitcnt vmcnt({vmw})""")
    for k in range(5): p(f"v_dot2_f32_bf16 v{vt+1}, v{WRr+k}, v{vt}, v{vt+1}")
    p("s_nop 0")
    wave_sum(vt+1,vt+2)
    p(f"v_mov_b32 v{vt}, {L_SWS}\nds_write_b32 v{vt}, v{vt+1}")
    if CFG['wose']==1: wo_setup()
    if CFG['hst']: halo_copy(vt,A,B,C,wo_setup if CFG['wose']==2 else (lambda:None))
    else:
        halo_flag(vt,A,B,C)
        if CFG['wose']==2: wo_setup()
    p(f"""s_add_u32 s{A}, s2, s{HW}
    s_cmp_lg_u32 s{A}, 2
    s_cbranch_scc1 {ne}
    s_add_u32 s{A}, s{sEP}, 1
    v_mov_b32 v{vt}, {EPO}
    v_mov_b32 v{vt+1}, s{A}
    s_mov_b64 exec, 1
    buffer_store_dword v{vt+1}, v{vt}, {S4(sWS)}, 0 offen sc1
    s_mov_b64 exec, -1
    {ne}:""")
    if CFG['hkv']:
        att_ids()
        p(f"s_mov_b32 s{sK1024}, 1024")
        kv_addr(aLin,13,vt)
        own_setup(14,vt)
        own_kv(aLin,13,14,vt,sHO)
    p(f"v_mov_b32 v{vt}, {F_G1}")
    if CFG['wburst']:
        p(f"""s_lshl_b32 s{B}, s{sSLOT}, 1
        s_add_u32 s{B}, s{B}, s{HW}
        s_sub_u32 s{B}, s{B}, 2
        s_mul_i32 s{B}, s{B}, 12800
        v_lshl_add_u32 v{vTW}, v0, 7, s{B}
        v_min_u32 v{vTW+1}, 35, v0
        v_lshl_add_u32 v{vTW+1}, v{vTW+1}, 7, s{B}
        v_add_u32 v{vTW+1}, 8192, v{vTW+1}""")
        if CFG['wburst']==2: touch(vTW,sWO,0); touch(vTW+1,sWO,0)
    lds_wait(vt,vt+1,A,'gt',4,1)
    if CFG['wburst']==1: touch(vTW,sWO,0); touch(vTW+1,sWO,0)
    wtouch('w3',1)
    if CFG['wog2']:
        p(f"v_mov_b32 v{vt+2}, {F_G2}")
        lds_wait(vt+2,vt+1,A,'gt',2,1)
    STAMP('wo_s')
    del OPS[:]
    thr=CFG['wothr']; gs=CFG['wogs']; thr1=CFG['wothr1']
    def more(n,dyn=False):
        while n>0 and st['n']<50:
            k=min(gs,n)
            if dyn and thr1<thr and st['n']>=thr1:
                sk=p.lab("wog")
                p(f"""ds_read_b32 v{vt+1}, v{vt} offset:{(F_G2 if CFG['wgf']=='G2' else F_M)-F_G1}
                s_waitcnt lgkmcnt(0)
                v_cmp_gt_u32 vcc, {2 if CFG['wgf']=='G2' else 1}, v{vt+1}
                s_nop 0
                s_cbranch_vccz {sk}
                s_waitcnt vmcnt({max(0,thr1-k)})
                {sk}:""")
            if CFG['wpause'] and st['n']==CFG['wpause']:
                p(f"v_mov_b32 v{vt+2}, {F_RI}"); lds_wait(vt+2,vt+1,A,'gt',1,1); STAMP('wo_p')
            if st['n']>=thr: p(f"s_waitcnt vmcnt({max(0,thr-k)})")
            gi=st['n']//gs; a_,b_=CFG['mtr']
            dma(k); n-=k
            if CFG['mtw']=='wo' and a_<=gi<b_:
                l0=60*(gi-a_)//(b_-a_); l1=60*(gi+1-a_)//(b_-a_); msk=((1<<l1)-1)^((1<<l0)-1)
                u=p.lab("tu"); j=p.lab("tj")
                p(f"s_mov_b32 exec_lo, {hex(msk&0xffffffff)}\ns_mov_b32 exec_hi, {hex(msk>>32)}\ns_cmp_eq_u32 s{HW}, 2\ns_cbranch_scc0 {u}")
                touch(vTM,sWG,0); p(f"s_branch {j}\n{u}:"); touch(vTM,sWU,0); p(f"{j}:\ns_mov_b64 exec, -1")
                OPS.append('mt')
    def sig(f):
        p(f"""v_mov_b32 v{vt+2}, {f}
        v_mov_b32 v{vt+3}, 1
        s_mov_b64 exec, 1
        ds_add_u32 v{vt+2}, v{vt+3}
        s_mov_b64 exec, -1""")
    more(25+min(thr,15),True)
    vmwait('wo0')
    sig(F_WOR)
    STAMP('wo_0')
    more(50)
    sig(F_WOD)
    STAMP('wo_1')
    p("s_waitcnt vmcnt(0)")
    sig(F_WO2)
    STAMP('wo')

ACC=64; CS=128; XF=132; WF=148; SEL=164; aX=168; aW=172; aST=174; aSG=178; vT=2
sWR_,sWC,sLC,sTY,sSO,sHALO,sFO,sSO2=range(sT,sT+8)
def gemm_setup():
    t=vT; A=sT+10; B=sT+11
    wave_ids(sWAVE,sWR_,sWC,sLC,sTY)
    p(f"""v_and_b32 v{t}, 31, v0
    s_lshl_b32 s{A}, s{sWR_}, 6
    v_add_u32 v{t+1}, s{A}, v{t}
    v_lshlrev_b32 v{t+1}, 7, v{t+1}
    v_lshrrev_b32 v{t+2}, 5, v0
    v_bfe_u32 v{t+3}, v0, 1, 3
    v_xor_b32 v{t+3}, v{t+3}, v{t+2}
    v_lshl_add_u32 v{aX}, v{t+3}, 4, v{t+1}""")
    for s in range(1,4): p(f"v_xor_b32 v{aX+s}, {32*s}, v{aX}")
    p(f"""v_bfe_u32 v{t+3}, v0, 2, 2
    v_lshl_add_u32 v{t+4}, v{t+2}, 3, v{t+3}
    v_lshlrev_b32 v{t+4}, 8, v{t+4}
    s_lshl_b32 s{A}, s{sWC}, 1
    s_or_b32 s{A}, s{A}, s{sWR_}
    v_xor_b32 v{t+3}, s{A}, v{t+3}
    v_lshl_add_u32 v{t+4}, v{t+3}, 6, v{t+4}
    v_bfe_u32 v{t+3}, v0, 4, 1
    v_lshl_add_u32 v{t+4}, v{t+3}, 5, v{t+4}
    v_and_b32 v{t+5}, 3, v0
    v_lshl_add_u32 v{t+4}, v{t+5}, 3, v{t+4}
    v_add_u32 v{aW}, 16384, v{t+4}
    v_xor_b32 v{aW+1}, 64, v{aW}
    v_bfe_u32 v{t+4}, v0, 2, 1
    v_cmp_eq_u32 vcc, v{t+3}, v{t+4}
    v_mov_b32 v{t+5}, 0x3f803f80
    s_nop 0
    v_cndmask_b32 v{SEL}, 0, v{t+5}, vcc
    v_cndmask_b32 v{SEL+1}, 0, v{t+5}, vcc
    v_cndmask_b32 v{SEL+2}, 0, v{t+5}, vcc
    v_cndmask_b32 v{SEL+3}, 0, v{t+5}, vcc""")
    for r in list(range(ACC,ACC+64))+list(range(CS,CS+4)): p(f"v_mov_b32 v{r}, 0")
    store_addr(sWR_,sLC,sTY,sSO,sSO2,sHALO,sFO,aST,sT+10,sT+11)
    p(f"s_mov_b32 s{sHAL2}, s{sHALO}")
    if CFG['hst']: p(f"""s_mul_i32 s{A}, s{sWAVE}, 9216
        s_add_u32 s{A}, s{A}, {L_WO}
        v_lshl_add_u32 v{aSG}, v0, 4, s{A}""")
sHAL2=sDBG
def wave_ids(wave,wr,wc,lc,ty):
    p(f"""s_and_b32 s{wr}, s{wave}, 1
    s_lshr_b32 s{wc}, s{wave}, 1
    s_lshl_b32 s{lc}, s{sCT}, 1
    s_add_u32 s{lc}, s{lc}, s{wc}
    s_cmp_eq_u32 s{lc}, 5
    s_cselect_b32 s{lc}, 15, s{lc}
    s_cmp_gt_u32 s{sCT}, 2
    s_subb_u32 s{lc}, s{lc}, 0
    s_mul_i32 s{ty}, s{lc}, 52
    s_lshr_b32 s{ty}, s{ty}, 8""")
def store_addr(wr,lc,ty,so,so2,halo,fo,ast,A,B,t=2):
    p(f"""v_and_b32 v{t}, 31, v0
    v_lshrrev_b32 v{t+2}, 5, v0
    s_mul_i32 s{A}, s{ty}, 5
    s_sub_u32 s{A}, s{lc}, s{A}
    s_mul_i32 s{B}, s{sHH}, 5
    s_add_u32 s{A}, s{A}, s{B}
    s_lshl_b32 s{B}, s{sBK}, 1
    s_add_u32 s{B}, s{B}, s{wr}
    s_lshl_b32 s{B}, s{B}, 1""")
    isv=p.lab("isv"); jn=p.lab("stj")
    p(f"""s_cmp_ge_u32 s{ty}, 2
    s_cbranch_scc1 {isv}
    s_mul_i32 s{so}, s{B}, 2560
    s_mul_i32 s{B}, s{ty}, {KB}
    s_add_u32 s{so}, s{so}, s{B}
    s_add_u32 s{so2}, s{so}, 2560
    s_lshl_b32 s{A}, s{A}, 3""")
    for cb in range(2):
        for ip in range(2):
            p(f"""s_xor_b32 s{B}, s{wr}, {cb}
            s_lshl_b32 s{B}, s{B}, 2
            s_add_u32 s{B}, s{B}, s{A}
            s_add_u32 s{B}, s{B}, {2*ip}
            v_add_u32 v{t+3}, s{B}, v{t+2}
            v_mul_u32_u24 v{t+4}, 205, v{t+3}
            v_lshrrev_b32 v{t+4}, 10, v{t+4}
            v_mul_u32_u24 v{t+5}, 5, v{t+4}
            v_sub_u32 v{t+5}, v{t+3}, v{t+5}
            v_mul_u32_u24 v{t+4}, {64*2560}, v{t+4}
            v_lshl_add_u32 v{t+4}, v{t+5}, 9, v{t+4}
            v_lshl_add_u32 v{ast+2*cb+ip}, v{t}, 4, v{t+4}""")
    p(f"""s_branch {jn}
    {isv}:
    s_mul_i32 s{so}, s{B}, 1280
    s_add_u32 s{so}, s{so}, {VB}
    s_add_u32 s{so2}, s{so}, 1280
    s_lshl_b32 s{A}, s{A}, 6""")
    for cb in range(2):
        p(f"""s_xor_b32 s{B}, s{wr}, {cb}
        s_lshl_b32 s{B}, s{B}, 5
        s_add_u32 s{B}, s{B}, s{A}
        v_add_u32 v{t+3}, s{B}, v{t}
        v_mul_u32_u24 v{t+4}, 3277, v{t+3}
        v_lshrrev_b32 v{t+4}, 16, v{t+4}
        v_mul_u32_u24 v{t+5}, 20, v{t+4}
        v_sub_u32 v{t+5}, v{t+3}, v{t+5}
        v_mul_u32_u24 v{t+4}, 81920, v{t+4}
        v_lshl_add_u32 v{t+4}, v{t+5}, 4, v{t+4}
        v_mul_u32_u24 v{t+5}, 320, v{t+2}
        v_add_u32 v{ast+2*cb}, v{t+4}, v{t+5}
        v_add_u32 v{ast+2*cb+1}, 640, v{ast+2*cb}""")
    p(f"{jn}:")
    halo_cond(halo,A)
    if CFG['honly']: p(f"s_mul_i32 s{A}, s{halo}, {KH-KB}\ns_add_u32 s{so}, s{so}, s{A}\ns_add_u32 s{so2}, s{so2}, s{A}")
    p(f"""s_lshl_b32 s{fo}, s{sG}, 4
    s_add_u32 s{fo}, s{fo}, s{lc}
    s_lshl_b32 s{fo}, s{fo}, 5
    s_lshl_b32 s{A}, s{sRB}, 1
    s_add_u32 s{A}, s{A}, s{wr}
    s_add_u32 s{fo}, s{fo}, s{A}
    s_lshl_b32 s{fo}, s{fo}, 2
    s_add_u32 s{fo}, s{fo}, {FL}""")
def xf(buf,xb): return XF+8*buf+4*xb
def wf(buf,cb): return WF+8*buf+4*cb
def reads(kind,buf,par,s):
    L=[]
    for xb in range(2): L.append(f"ds_read_b128 {vr(xf(buf,xb),4)}, v{aX+s} offset:{par*32768+xb*4096}")
    if kind!='S':
        for cb in range(2):
            for rd in range(2): L.append(f"ds_read_b64_tr_b16 {vr(wf(buf,cb)+2*rd,2)}, v{aW+cb} offset:{par*32768+s*4096+rd*1024}")
        L=[L[2],L[3],L[0],L[1],L[4],L[5]]
    return L
def mfmas(kind,buf):
    L=[]
    if kind=='S':
        for xb in range(2):
            x=xf(buf,xb)
            L.append(f"v_mfma_f32_16x16x32_bf16 {vr(ACC+4*xb,4)}, {vr(SEL,4)}, {vr(x,4)}, {vr(ACC+4*xb,4)}")
            L.append(f"v_mfma_f32_4x4x4_16b_bf16 {vr(ACC+8+8*xb,4)}, {vr(x,2)}, {vr(x,2)}, {vr(ACC+8+8*xb,4)}")
            L.append(f"v_mfma_f32_4x4x4_16b_bf16 {vr(ACC+12+8*xb,4)}, {vr(x+2,2)}, {vr(x+2,2)}, {vr(ACC+12+8*xb,4)}")
        return L
    for cb in range(2):
        for xb in range(2):
            a=ACC+16*(2*xb+cb); X=vr(xf(buf,xb),4); W=vr(wf(buf,cb),4)
            L.append(f"v_mfma_f32_32x32x16_bf16 {vr(a,16)}, {W if kind=='T' else X}, {X if kind=='T' else W}, {vr(a,16)}")
    L.insert(2,f"v_mfma_f32_16x16x32_bf16 {vr(CS,4)}, {vr(SEL,4)}, {vr(wf(buf,0),4)}, {vr(CS,4)}")
    return L
def gemm_loop(kind):
    CNT=sT+10
    lp=p.lab("g"+kind)
    STAMP('rdy')
    p("s_barrier")
    STAMP('b0')
    for r in reads(kind,0,0,0): p(r)
    if CFG['clr']==1 and not CFG['hclr']: clears(1)
    cl_=p.lab("clr"); cr_=p.lab("clrr")
    if CFG['clr']>1:
        n0=len(p.L); p(f"{cl_}:"); clears(1); p(f"s_branch {cr_}")
        COLD.append("\n".join(p.L[n0:])); del p.L[n0:]
    hl=p.lab("hello"); hr=p.lab("hellor")
    if not CFG['hclr']:
        COLD.append(f"""{hl}:
        s_getreg_b32 s{CNT+1}, hwreg(HW_REG_XCC_ID, 0, 4)
        s_or_b32 s{CNT+1}, s{CNT+1}, s{sTAG}
        v_mov_b32 v{vT}, s{CNT+1}
        s_lshl_b32 s{CNT+1}, s2, 2
        s_add_u32 s{CNT+1}, s{CNT+1}, {H1}
        v_mov_b32 v{vT+1}, 0
        s_mov_b64 exec, 1
        buffer_store_dword v{vT}, v{vT+1}, {S4(sWS)}, s{CNT+1} offen sc1
        s_mov_b64 exec, -1
        s_branch {hr}""")
        p(f"s_lshl_b32 s{CNT+2}, s{sWAVE}, 3\ns_add_u32 s{CNT+2}, s{CNT+2}, {5-CFG['clr']}")
    p(f"s_mov_b32 s{CNT}, 5\n{lp}:")
    if CFG['clr']>1: p(f"s_cmp_eq_u32 s{CNT}, {6-CFG['clr']}\ns_cbranch_scc1 {cl_}\n{cr_}:")
    for k in range(1,5):
        if (CFG['cal'] and CFG['cal'][0]=='it%d'%(2*k)) or (CFG['amp'] and 'it%d'%(2*k) in CFG['amp'][:2]) or (CFG['prof'] and any('it%d'%(2*k) in n.split('|') for n in CFG['st'])):
            sk=p.lab("its"); p(f"s_cmp_lg_u32 s{CNT}, {5-k}\ns_cbranch_scc1 {sk}"); STAMP('it%d'%(2*k)); p(f"{sk}:")
    for par in range(2):
        for s in range(4):
            buf=s&1
            last=(s==3)
            M=mfmas(kind,buf)
            if CFG['nomfma']: M=M[:1]
            if last and par==1:
                pre=[f"v_xor_b32 v{aX+i}, 0x10000, v{aX+i}" for i in range(4)]+[f"v_xor_b32 v{aW+i}, 0x10000, v{aW+i}" for i in range(2)]
            else: pre=[]
            R=reads(kind,buf^1,(par^1) if last else par,(s+1)&3)
            p("s_waitcnt lgkmcnt(0)")
            if last:
                p(M.pop(0))
                for x in pre: p(x)
                if par==0 and not CFG['hclr']:
                    w1=p.lab("cw"); w2=p.lab("cwr")
                    p(f"s_cmp_eq_u32 s{CNT}, {5-CFG['clr']}\ns_cbranch_scc1 {w1}\n{w2}:")
                    COLD.append(f"{w1}:\ns_waitcnt vmcnt(0)\ns_branch {w2}")
                p("s_barrier")
                if par==0 and not CFG['hclr']: p(f"s_cmp_eq_u32 s{CNT}, s{CNT+2}\ns_cbranch_scc1 {hl}\n{hr}:")
            k=0
            while M or R:
                if R: p(R.pop(0))
                if R: p(R.pop(0))
                if M: p(M.pop(0))
    p(f"""s_sub_u32 s{CNT}, s{CNT}, 1
    s_cmp_lg_u32 s{CNT}, 0
    s_cbranch_scc1 {lp}""")
    STAMP('gend')
def bf16r(dst,src):
    p(f"v_cvt_pk_bf16_f32 v{dst}, v{src}, v{src}\nv_and_b32 v{dst}, 0xffff0000, v{dst}")
def mode_read():
    p(f"""v_mov_b32 v{vT+8}, {L_MODE}
    ds_read_b32 v{vT+9}, v{vT+8}""")
def mode_get():
    p(f"v_readfirstlane_b32 s{sMODE}, v{vT+9}")
def dual(stores,pol='',sMODE=sMODE):
    sl=p.lab("slow"); jn=p.lab("jn")
    p(f"s_cmp_lg_u32 s{sMODE}, 0\ns_cbranch_scc1 {sl}")
    for s in stores: p(s+" "+pol)
    p(f"s_branch {jn}\n{sl}:")
    for s in stores: p(s+" sc1")
    p(f"{jn}:")
def idle_gemm():
    vt=10; aI=20; acc=28; one=32; D=64; A=sT+10
    p(f"""s_lshl_b32 s{A}, s{sWR_}, 13
    v_bfe_u32 v{vt}, v0, 1, 3
    v_lshlrev_b32 v{vt}, 4, v{vt}
    v_lshl_add_u32 v{vt}, v0, 7, v{vt}
    v_add_u32 v{aI}, s{A}, v{vt}
    v_mov_b32 v{one}, 0x3f803f80
    s_lshl_b32 s{A}, s{sG}, 2
    s_add_u32 s{A}, s{A}, s{sRB}
    s_lshl_b32 s{A}, s{A}, 14
    s_lshl_b32 s{A+1}, s{sWR_}, 10
    s_add_u32 s{A}, s{A}, s{A+1}
    s_add_u32 s{A}, s{A}, {STP+2*2048}
    v_lshlrev_b32 v{vt}, 4, v0""")
    for i in range(1,8): p(f"v_xor_b32 v{aI+i}, {16*i}, v{aI}")
    for i in range(4): p(f"v_mov_b32 v{acc+i}, 0")
    k=CFG['clr']
    for c in range(11):
        if c==1+2*k and not CFG['hclr']: p(f"s_waitcnt vmcnt({1 if k==1 else 0})")
        p("s_barrier")
        if k and c==2*k-2 and c!=2: clears(1)
        if c<3:
            if c==2:
                for i in range(8): p(f"v_add_u32 v{aI+i}, 0x10000, v{aI+i}")
            for i in range(8): p(f"ds_read_b128 {vr(D+4*i,4)}, v{aI+i} offset:{(c&1)*32768}")
            for i in range(8):
                p(f"s_waitcnt lgkmcnt({7-i})")
                for j in range(4):
                    r=D+4*i+j
                    p(f"v_dot2_f32_bf16 v{acc+(j&1)}, v{r}, v{one}, v{acc+(j&1)}\nv_dot2_f32_bf16 v{acc+2+(j&1)}, v{r}, v{r}, v{acc+2+(j&1)}")
        if c==2: p(f"""s_nop 1
            v_add_f32 v{acc}, v{acc}, v{acc+1}
            v_add_f32 v{acc+1}, v{acc+2}, v{acc+3}
            v_mov_b32 v{acc+2}, s{sTAG}
            buffer_store_dwordx4 {vr(acc,4)}, v{vt}, {S4(sWS)}, s{A} offen sc1""")
        if k==2 and c==2: clears(1)
    p("s_barrier")
    mode_read()
    p("s_waitcnt lgkmcnt(0)")
    mode_get()
HST=[]
def gemm_epi(kind):
    t=vT; A=sT+10
    AU=20
    WA=24
    XA=28
    RS=32
    p(f"""v_and_b32 v{t}, 31, v0
    s_lshl_b32 s{A}, s{sWC}, 1
    s_or_b32 s{A}, s{A}, s{sWR_}
    s_lshl_b32 s{A}, s{A}, 7
    s_add_u32 s{A}, s{A}, {L_CS}
    v_lshl_add_u32 v{t+1}, v{t}, 2, s{A}
    s_lshl_b32 s{A}, s{sWR_}, 9
    s_add_u32 s{A}, s{A}, {L_SA}
    v_lshl_add_u32 v{t+3}, v{t}, 3, s{A}
    ds_write_b32 v{t+1}, v{CS}
    v_xor_b32 v{t+2}, 128, v{t+1}
    v_mov_b32 v{WA+1}, 0
    v_mov_b32 v{WA+3}, 0
    v_mov_b32 v{XA+1}, 0
    v_mov_b32 v{XA+3}, 0""")
    if kind=='V':
        p(f"""v_lshrrev_b32 v{t+4}, 5, v0
        s_lshl_b32 s{A}, s{sWR_}, 8
        s_add_u32 s{A}, s{A}, {L_SR}
        v_lshl_add_u32 v{t+4}, v{t+4}, 4, s{A}""")
    p("s_waitcnt lgkmcnt(0)\ns_barrier")
    STAMP('E1',1)
    p(f"""ds_read_b32 v{CS+1}, v{t+2}
    ds_read_b64 v[{AU}:{AU+1}], v{t+3}
    ds_read_b64 v[{AU+2}:{AU+3}], v{t+3} offset:256""")
    mode_read()
    if kind=='V':
        for xb in range(2):
            for i in range(4): p(f"ds_read_b128 {vr(RS+16*xb+4*i,4)}, v{t+4} offset:{xb*128+i*32}")
    def split(cb):
        c=CS+cb
        p(f"""v_cndmask_b32 v{c}, 0, v{c}, s[{sLO}:{sLO+1}]
        v_cvt_pk_bf16_f32 v{t+5}, v{c}, v{c}
        v_and_b32 v{t+5}, 0xffff0000, v{t+5}
        v_sub_f32 v{t+6}, v{c}, v{t+5}
        v_cvt_pk_bf16_f32 v{WA+2*cb}, v{t+5}, v{t+6}""")
    split(0)
    p(f"s_waitcnt lgkmcnt({8 if kind=='V' else 0})")
    split(1)
    p(f"v_mov_b32 v{XA}, v{AU}\nv_mov_b32 v{XA+2}, v{AU+2}")
    mode_get()
    if kind=='T':
        p(f"""s_cmp_eq_u32 s{sTY}, 0
        s_cselect_b32 s{A}, {hex(f2u(20**-0.5*math.log2(math.e)))}, 1.0
        v_mul_f32 v{AU+1}, s{A}, v{AU+1}
        v_mul_f32 v{AU+3}, s{A}, v{AU+3}""")
    else: p("s_nop 0")
    for xb in range(2):
        for cb in range(2):
            a=ACC+16*(2*xb+cb); X=vr(XA+2*xb,2); W=vr(WA+2*cb,2)
            p(f"v_mfma_f32_32x32x8_bf16 {vr(a,16)}, {W if kind=='T' else X}, {X if kind=='T' else W}, {vr(a,16)}")
    p("s_waitcnt lgkmcnt(0)\ns_nop 7")
    if CFG['honly']: p(f"s_or_b32 s{sHALO}, s{sHALO}, s{sMODE}")
    allst=[]
    for xb in range(2):
        st=[]
        for cb in range(2):
            a=ACC+16*(2*xb+cb)
            for k in range(8):
                if kind=='T': p(f"v_pk_mul_f32 {vr(a+2*k,2)}, {vr(a+2*k,2)}, {vr(AU+2*xb,2)} op_sel:[0,1] op_sel_hi:[1,1]")
                else: p(f"v_pk_mul_f32 {vr(a+2*k,2)}, {vr(a+2*k,2)}, {vr(RS+16*xb+2*k,2)}")
            for k in range(8): p(f"v_cvt_pk_bf16_f32 v{a+k}, v{a+2*k}, v{a+2*k+1}")
            if kind=='T':
                p(f"""v_permlane32_swap_b32 v{a}, v{a+2}
                v_permlane32_swap_b32 v{a+1}, v{a+3}
                v_permlane32_swap_b32 v{a+4}, v{a+6}
                v_permlane32_swap_b32 v{a+5}, v{a+7}""")
            for h in range(2):
                st.append(f"buffer_store_dwordx4 {vr(a+4*h,4)}, v{aST+2*cb+h}, {S4(sWS)}, s{sSO2 if xb else sSO} offen")
                allst.append(a+4*h)
        dual(st,CFG['qpol'],sHALO if CFG['honly'] else sMODE)
    STAMP('st')
    if CFG['honly']:
        p(f"""v_mov_b32 v{t}, 0
        v_mov_b32 v{t+1}, s{sTAG}
        s_lshl_b32 s{A}, s{sWC}, 2
        s_add_u32 s{A}, s{A}, {F_STG}
        v_mov_b32 v{t+2}, s{A}
        v_mov_b32 v{t+3}, 1
        s_mov_b64 exec, 1
        s_waitcnt vmcnt(0)
        ds_add_u32 v{t+2}, v{t+3}""")
        dual([f"buffer_store_dword v{t+1}, v{t}, {S4(sWS)}, s{sFO} offen"])
        p("s_mov_b64 exec, -1")
        STAMP('fl')
        return
    nh=p.lab("nohalo"); jh=p.lab("jhalo")
    if CFG['hdef']>=0: A=sT+18
    hst=[f"buffer_store_dwordx4 {vr(allst[i],4)}, v{aST+(i&3)}, {S4(sWS)}, s{A+(i>>2)} offen sc1" for i in range(8)]
    p(f"""v_mov_b32 v{t}, 0
    v_mov_b32 v{t+1}, s{sTAG}
    s_add_u32 s{A}, s{sSO}, {KH-KB}
    s_add_u32 s{A+1}, s{sSO2}, {KH-KB}""")
    if CFG['hst']:
        p(f"s_cmp_eq_u32 s{sHALO}, 0\ns_cbranch_scc1 {nh}")
        for i in range(8): p(f"ds_write_b128 v{aSG}, {vr(allst[i],4)} offset:{i*1024}")
        for k in range(4): p(f"v_add_u32 v{t+4+k}, s{A}, v{aST+k}")
        p(f"""s_lshl_b32 s{A}, s{sWC}, 2
        s_add_u32 s{A}, s{A}, {F_STG}
        ds_write_b128 v{aSG}, {vr(t+4,4)} offset:8192
        v_mov_b32 v{t+2}, s{A}
        v_mov_b32 v{t+3}, 1
        s_mov_b64 exec, 1
        ds_add_u32 v{t+2}, v{t+3}
        s_waitcnt vmcnt(0)""")
        dual([f"buffer_store_dword v{t+1}, v{t}, {S4(sWS)}, s{sFO} offen"])
        p(f"""ds_add_u32 v{t+2}, v{t+3} offset:8
        s_branch {jh}
        {nh}:
        s_waitcnt vmcnt(0)
        s_mov_b64 exec, 1""")
        dual([f"buffer_store_dword v{t+1}, v{t}, {S4(sWS)}, s{sFO} offen"])
        p(f"{jh}:\ns_mov_b64 exec, -1")
        STAMP('fl')
        return
    if CFG['hdef']>=0:
        HST[:]=hst
        p("s_waitcnt vmcnt(0)")
    elif CFG['hearly']:
        p(f"s_cmp_eq_u32 s{sHALO}, 0\ns_cbranch_scc1 {nh}")
        for x in hst: p(x)
        p(f"s_waitcnt vmcnt(8)\ns_branch {jh}\n{nh}:\ns_waitcnt vmcnt(0)\n{jh}:")
    else: p("s_waitcnt vmcnt(0)")
    p("s_mov_b64 exec, 1")
    dual([f"buffer_store_dword v{t+1}, v{t}, {S4(sWS)}, s{sFO} offen"])
    p(f"s_mov_b64 exec, -1")
    if not CFG['hearly'] and CFG['hdef']<0:
        p(f"s_cmp_eq_u32 s{sHALO}, 0\ns_cbranch_scc1 {nh}")
        for x in hst: p(x)
        p(f"{nh}:")
    STAMP('fl')
import struct
def f2u(x): return struct.unpack("<I",struct.pack("<f",x))[0]

aLin,aTl,aKm,aKt,aV,aFl,aO,aQ0,aQ1=246,247,248,249,250,251,252,253,254
aKm1,aKt1,aV1=216,217,218
QM=[28,34]; QT=[32,38]; PP=40
KM=[48,62]; KT=[52,66]; VV=[[54,58],[68,72]]
SS=[80,96]; OO=[112,128]; CD=200; CF=230
cVM=8; sQ=[10,11]; sOm=[12,13]; sOt=[14,15]; cXO,cJ,cF,cK,cV,cL,cHO,cT0,cHX=range(16,25); sOSC=sT+15; sFB=sT+16; aWR=225
NINF="0xff800000"
def att_setup():
    t=vT; A=sT+7; B=sT+8; C=sT+17; sF=cF
    wo_pre1()
    att_ids()
    moe_role()
    p(f"v_mov_b32 v{aCLS}, 0x207")
    if CFG['hkv']: p(f"v_lshlrev_b32 v{aLin}, 4, v0\nv_mov_b32 v{aFl}, {F_G1}")
    else:
        flag_addr(aFl,t,1,A,B,C)
        p(f"""s_lshl_b32 s{sF}, s{sG}, 11
        s_lshl_b32 s{A}, s{sHF}, 4
        v_mov_b32 v{t}, s{A}
        v_cmp_gt_u32 vcc, 8, v0
        s_add_u32 s{sF}, s{sF}, {FL}
        s_mov_b32 s{sK1024}, 1024
        v_cndmask_b32 v{t}, 8, v{t}, vcc
        v_add_u32 v{aFl}, v{aFl}, v{t}""")
        kv_addr(aLin,aTl,t)
    p(f"""s_lshl_b32 s{A}, s{sHF}, 10
    s_add_u32 s{B}, s{A}, {L_KV}
    v_add_u32 v{aKm}, s{B}, v{aLin}
    s_sub_u32 s{B}, {L_KV+1024}, s{A}
    v_add_u32 v{aKm1}, s{B}, v{aLin}
    v_and_b32 v{t}, 31, v0
    v_lshrrev_b32 v{t+1}, 5, v0
    v_xor_b32 v{t+2}, s{sHO}, v{t+1}
    v_lshlrev_b32 v{t+2}, 3, v{t+2}
    v_lshl_add_u32 v{t+2}, v{t}, 4, v{t+2}
    s_lshl_b32 s{A}, s{sHF}, 9
    s_add_u32 s{B}, s{A}, {L_KV+2048}
    v_add_u32 v{aKt}, s{B}, v{t+2}
    s_sub_u32 s{B}, {L_KV+2048+512}, s{A}
    v_add_u32 v{aKt1}, s{B}, v{t+2}
    v_mul_u32_u24 v{t+2}, 320, v{t+1}
    v_lshl_add_u32 v{t+2}, v{t}, 4, v{t+2}
    s_mul_i32 s{A}, s{sHF}, 1280
    s_add_u32 s{B}, s{A}, {L_KV+3072}
    v_add_u32 v{aV}, s{B}, v{t+2}
    s_sub_u32 s{B}, {L_KV+3072+1280}, s{A}
    v_add_u32 v{aV1}, s{B}, v{t+2}
    v_lshlrev_b32 v{t+2}, 2, v{t+1}
    v_sub_u32 v{t+2}, v{t}, v{t+2}
    s_cmp_eq_u32 s{sHF}, 0
    s_cselect_b32 s{A}, {NINF}, 0
    s_cselect_b32 s{B}, 0, {NINF}
    v_mov_b32 v{t+3}, s{A}
    v_mov_b32 v{t+4}, s{B}""")
    for i in range(16):
        m=C+1+2*(i%2)+((C+1)%2)
        ri=8*(i>>2)+(i&3)
        p(f"v_cmp_le_i32 s[{m}:{m+1}], {ri}, v{t+2}")
        if i>0:
            m2=C+1+2*((i-1)%2)+((C+1)%2)
            if i==1: p("s_nop 0")
            p(f"v_cndmask_b32 v{CD+i-1}, v{t+3}, v{t+4}, s[{m2}:{m2+1}]\nv_cndmask_b32 v{CF+i-1}, v{t+4}, v{t+3}, s[{m2}:{m2+1}]")
    p(f"""s_nop 0
    v_cndmask_b32 v{CD+15}, v{t+3}, v{t+4}, s[{m}:{m+1}]
    v_cndmask_b32 v{CF+15}, v{t+4}, v{t+3}, s[{m}:{m+1}]
    v_cmp_eq_u32 s[{m}:{m+1}], 20, v{t}
    v_cmp_eq_u32 vcc, 24, v{t}
    s_mov_b32 s{cHO}, s{sHO}
    s_or_b64 s[{cVM}:{cVM+1}], vcc, s[{m}:{m+1}]""")
    p(f"""v_bfe_u32 v{t+2}, v0, 4, 1
    v_mul_u32_u24 v{t+2}, 20480, v{t+2}
    v_lshl_add_u32 v{t+2}, v{t+1}, 8, v{t+2}
    v_and_b32 v{t+3}, 15, v0
    v_lshl_add_u32 v{aO}, v{t+3}, 4, v{t+2}
    s_xor_b32 s{cHX}, s{sHF}, s{sHH}
    s_mov_b32 s{cT0}, s{sT0}
    s_lshl_b32 s{A}, s{sWAVE}, 1
    s_sub_u32 s{A}, 7, s{A}
    v_mul_u32_u24 v{t+2}, s{A}, v0
    s_add_u32 s{A}, s{sT0}, s{sWAVE}
    v_add_lshl_u32 v{aFO}, v{t+2}, s{A}, 12
    s_lshl_b32 s{A}, s{sHD}, 7
    s_add_u32 s{A}, s{A}, {FO}
    v_add_u32 v{aFO}, s{A}, v{aFO}""")
    for q in range(2):
        p(f"""s_sub_u32 s{A}, 7, s{sWAVE}
        s_cmp_eq_u32 s{sHF}, {q}
        s_cselect_b32 s{A}, s{A}, s{sWAVE}
        s_add_u32 s{A}, s{A}, s{sT0}""")
        p(f"""s_mul_i32 s{sQ[q]}, s{A}, 2560
        s_mul_i32 s{B}, s{sPH}, {64*2560}
        s_add_u32 s{sQ[q]}, s{sQ[q]}, s{B}
        s_mul_i32 s{A}, s{A}, 40960
        s_mul_i32 s{B}, s{sPH}, 1280
        s_add_u32 s{A}, s{A}, s{B}
        s_add_u32 s{A}, s{A}, {OB}
        s_mul_i32 s{B}, s{sHO}, 768
        s_add_u32 s{sOm[q]}, s{A}, s{B}
        s_lshl_b32 s{B}, s{sHO}, 3
        s_add_u32 s{sOt[q]}, s{A}, s{B}""")
    sK=cK; sV=cV; sL=cL
    if not CFG['hkv']: p(f"""s_lshl_b32 s{A}, s{sWAVE}, 1
    s_sub_u32 s{B}, -2, s{A}
    s_cmp_eq_u32 s{sHF}, 0
    s_cselect_b32 s{A}, s{A}, s{B}
    s_add_u32 s{A}, s{A}, s{sT0}
    s_mul_i32 s{sK}, s{A}, 2560
    s_mul_i32 s{sV}, s{A}, 1280
    s_mul_i32 s{A}, s{sPH}, {64*2560}
    s_add_u32 s{sK}, s{sK}, s{A}
    s_add_u32 s{sK}, s{sK}, {KB}
    s_mul_i32 s{A}, s{sHD}, 81920
    s_add_u32 s{sV}, s{sV}, s{A}
    s_add_u32 s{sV}, s{sV}, {VB}
    s_mul_i32 s{sL}, s{sWAVE}, 5632
    s_add_u32 s{sL}, s{sL}, {L_KV+4*5632}""")
    p(f"""s_mul_i32 s{A}, s{sHO}, 1536
    v_add_u32 v{aQ0}, s{A}, v{aLin}
    s_lshl_b32 s{A}, s{sHO}, 3
    v_add_u32 v{aQ1}, s{A}, v{aLin}""")
def xr_loads():
    for o,n in ((0,4),(4,4),(8,2)): p(f"buffer_load_dwordx{n} {vr(XR+o,n)}, v{aX2}, {S4(sX)}, s{cXO} offen offset:{4*o}")
    for o,n in ((0,4),(4,4),(8,2)): p(f"buffer_load_dwordx{n} {vr(WR_+o,n)}, v{aWR}, {S4(sWR)}, s{cJ} offen offset:{4*o}")
def att_go():
    t=vT; A=sT+7; B=sT+8; C=sT+17
    nh=p.lab("nohs"); lp=p.lab("fp"); ok=p.lab("fpok"); md=p.lab("fpm")
    ld=f"buffer_load_dword v{t+10}, v{aFl}, {S4(sWS)}, s{cF} offen sc1"
    OWN=CFG['hsp']&2; sOWN=sT+19
    if OWN:
        assert not (CFG['hkv'] or CFG['hst'] or CFG['honly'] or CFG['hdef']>=0) and CFG['xru']>=0
        p(f"s_andn2_b32 s{sOWN}, s{sHAL2}, s{sMODE}\ns_cbranch_scc1 L_nold\n{ld}\nL_nold:")
    elif not CFG['hkv']: p(ld)
    p(f"""v_mov_b32 v{t+4}, 0x3f803f80
    s_or_b32 s{sOSC}, s{cHX}, s{sMODE}
    s_mov_b32 s{sFB}, 0
    s_mul_i32 s{A}, s{sMODE}, {OB2-OB}
    v_add_u32 v{aO}, s{A}, v{aO}""")
    HD=CFG['hdef']>=0
    def vvi(b_):
        for mm in range(2):
            for r in range(4): p(f"v_cndmask_b32 v{VV[b_][mm]+r}, 0, v{t+4}, s[{cVM}:{cVM+1}]")
    vvi(0)
    if not HD: vvi(1)
    for q in range(2): p(f"v_mov_b32 v{QT[q]}, 0\nv_mov_b32 v{QT[q]+1}, 0")
    if CFG['osent']: wo_scal()
    assert CFG['hsent'] or not CFG['hkv']
    if CFG['hkv']:
        p(f"v_mov_b32 v{t+4}, {F_FS}"); lds_wait(t+4,t+5,C,'gt',1,0)
    else:
        if CFG['hst'] or HD or CFG['honly']: p(f"s_mov_b32 s{C}, {SPIN}\ns_waitcnt vmcnt(0)")
        else: p(f"""s_lshr_b32 s{A}, s{sWAVE}, 1
        s_lshl_b32 s{A}, s{A}, 2
        s_add_u32 s{A}, s{A}, {F_STG}
        v_mov_b32 v{t+4}, s{A}
        v_mov_b32 v{t+5}, 1
        {f"s_cmp_lg_u32 s{sOWN}, 0" if OWN else ""}
        {f"s_cbranch_scc1 L_own" if OWN else ""}
        s_mov_b32 s{C}, {SPIN}
        s_cmp_eq_u32 s{sHAL2}, 0
        s_waitcnt vmcnt(0)
        s_cbranch_scc1 {nh}
        s_mov_b64 exec, 1
        ds_add_u32 v{t+4}, v{t+5}
        s_mov_b64 exec, -1
        {nh}:""")
        STAMP('hack')
        p(f"""s_branch {md}
        {lp}:
        {ld}
        s_waitcnt vmcnt(0)
        {md}:
        v_cmp_ne_u32 vcc, s{sTAG}, v{t+10}
        s_nop 0
        s_cbranch_vccz {ok}""")
        spin(C,lp,ok)
        p(f"s_branch {lp}")
        if OWN:
            p(f"L_own:\nv_mov_b32 v{t+6}, {F_OWN}\ns_mov_b64 exec, 1\nds_add_u32 v{t+6}, v{t+5} offset:{F_FS-F_OWN+65536}\ns_mov_b64 exec, -1".replace(f"offset:{F_FS-F_OWN+65536}","") if 0 else f"L_own:\nv_mov_b32 v{t+6}, {F_FS}\ns_mov_b64 exec, 1\nds_add_u32 v{t+6}, v{t+5}\ns_mov_b64 exec, -1\nv_mov_b32 v{t+6}, {F_OWN}"); lds_wait(t+6,t+7,C,'gt',1,0)
        p(f"{ok}:")
    STAMP('fseen')
    if not CFG['hkv']: kv_dma(aLin,aTl,cK,cV,cL,A,B,cHO)
    for q in range(2): p(f"buffer_load_dwordx4 {vr(QM[q],4)}, v{aQ0}, {S4(sWS)}, s{sQ[q]} offen {CFG['ldp']}")
    p(f"s_mov_b64 exec, s[{sLO}:{sLO+1}]")
    for q in range(2): p(f"buffer_load_dwordx2 {vr(QT[q],2)}, v{aQ1}, {S4(sWS)}, s{sQ[q]} offen offset:1024 {CFG['ldp']}")
    if HD:
        assert CFG['xru']>CFG['hdef']
        n2=p.lab("nohd"); j2=p.lab("jhd")
        p(f"""s_mov_b64 exec, 1
        v_mov_b32 v{t}, {F_G1}
        v_mov_b32 v{t+1}, 1
        ds_add_u32 v{t}, v{t+1} offset:{F_FS-F_G1}
        s_mov_b64 exec, -1
        v_mov_b32 v{aFl}, {F_G1}
        s_cmp_eq_u32 s{sHAL2}, 0
        s_cbranch_scc1 {n2}""")
        g1=lambda n: p(f"s_mov_b64 exec, 1\ns_waitcnt vmcnt({n})\nds_add_u32 v{t}, v{t+1}\ns_mov_b64 exec, -1")
        if CFG['hdg']=='G1':
            g1(4); lds_wait(aFl,t+5,C,'gt',4,0)
            for x in HST: p(x)
            p("s_nop 1"); vvi(1)
        else:
            if CFG['hdg']=='FS': p(f"v_mov_b32 v{t+6}, {F_FS}"); lds_wait(t+6,t+5,C,'gt',4,0)
            for x in HST: p(x)
            p("s_nop 1"); vvi(1)
            g1(12); lds_wait(aFl,t+5,C,'gt',4,0)
        p(f"s_waitcnt vmcnt(8)\ns_branch {j2}\n{n2}:")
        vvi(1); g1(4); lds_wait(aFl,t+5,C,'gt',4,0)
        p(f"""s_waitcnt vmcnt(0)
        {j2}:
        s_lshr_b32 s{A}, s{sWAVE}, 1
        s_lshl_b32 s{A}, s{A}, 2
        s_add_u32 s{A}, s{A}, {F_STG}
        v_mov_b32 v{t+4}, s{A}""")
    elif CFG['hkv']: p("s_mov_b64 exec, -1")
    else: p(f"""s_mov_b64 exec, 1
    v_mov_b32 v{t}, {F_G1}
    v_mov_b32 v{t+1}, 1
    {f"ds_add_u32 v{t}, v{t+1} offset:{F_FS-F_G1}" if 'FS' in CFG['gm']+CFG['gr'] else ""}
    {f"s_cmp_eq_u32 s{sOWN}, 0" if OWN else ""}
    {f"s_cbranch_scc1 L_nohk" if OWN else ""}
    {f"s_waitcnt vmcnt(10)" if OWN else ""}
    {f"ds_add_u32 v{t+4}, v{t+1}" if OWN else ""}
    {f"L_nohk:" if OWN else ""}
    s_waitcnt vmcnt(4)
    ds_add_u32 v{t}, v{t+1}
    s_mov_b64 exec, -1
    v_mov_b32 v{aFl}, {F_G1}""")
    if CFG['hkv']: lds_wait(aFl,t+5,C,'gt',4,0)
    if CFG['xru']<0: xr_loads()
    if not HD:
        if not CFG['hkv']: lds_wait(aFl,t+5,C,'gt',4,0)
        p(f"s_waitcnt vmcnt({6 if CFG['xru']<0 else 0})")
    STAMP('kv')
    p(f"""s_cmp_eq_u32 s{sWAVE}, 1
    s_cbranch_scc1 L_av1
    s_cmp_eq_u32 s{sWAVE}, 2
    s_cbranch_scc1 L_av2
    s_cmp_eq_u32 s{sWAVE}, 3
    s_cbranch_scc1 L_av3""")
def kreads(n,b_):
    o=(n>>1)*5632
    return [f"ds_read_b128 {vr(KM[b_],4)}, v{(aKm,aKm1)[n&1]} offset:{o}", f"ds_read_b64 {vr(KT[b_],2)}, v{(aKt,aKt1)[n&1]} offset:{o}"]
def vreads(n,b_):
    o=(n>>1)*5632; a=(aV,aV1)[n&1]
    return [f"s_mov_b64 exec, s[{sLO+2}:{sLO+3}]", f"ds_read_b128 {vr(VV[b_][0],4)}, v{a} offset:{o}", f"ds_read_b128 {vr(VV[b_][1],4)}, v{a} offset:{o+640}", "s_mov_b64 exec, -1"]
def att_variant(w):
    U=[]
    for n in range(15-w,8+w,-1): U.append((0,n))
    for n in range(8+w,6-w,-1): U+= [(0,n),(1,n)]
    for n in range(6-w,w-1,-1): U.append((1,n))
    assert len(U)==18
    diag=[15-w,8+w]
    tiles=[]; tau=[]
    for q,n in U:
        if not tiles or tiles[-1]!=n: tiles.append(n)
        tau.append(len(tiles)-1)
    first=[tau.index(i) for i in range(len(tiles))]
    started=[0,0]
    def QK(u):
        q,n=U[u]; b_=tau[u]&1; S=vr(SS[u&1],16)
        c=vr(CD,16) if n==diag[q] else (vr(CF,16) if n==diag[q]-8 else "0")
        return [f"v_mfma_f32_32x32x16_bf16 {S}, {vr(KM[b_],4)}, {vr(QM[q],4)}, {c}", f"v_mfma_f32_32x32x8_bf16 {S}, {vr(KT[b_],2)}, {vr(QT[q],2)}, {S}"]
    def PV(u,m):
        q,n=U[u]; O=vr(OO[q],16)
        c=O if started[q] else "0"; started[q]=1
        return f"v_mfma_f32_32x32x16_bf16 {O}, {vr(VV[tau[u]&1][m],4)}, {vr(PP+4*m,4)}, {c}"
    p(f"L_av{w}:")
    for i,f in enumerate(first):
        if f<=1:
            for x in kreads(tiles[i],i&1): p(x)
    for x in vreads(tiles[0],0): p(x)
    p("s_waitcnt lgkmcnt(0)")
    for x in QK(0): p(x)
    p("s_nop 7\ns_nop 3")
    pend=False
    H=first[tiles.index(7)]
    H2=first[tiles.index(3)]
    for u in range(18):
        S=SS[u&1]
        e=lambda i: p(f"v_exp_f32 v{S+i}, v{S+i}")
        c=lambda k: p(f"v_cvt_pk_bf16_f32 v{PP+k}, v{S+2*k}, v{S+2*k+1}")
        kr=[x for i,f in enumerate(first) if f==u+2 for x in kreads(tiles[i],i&1)]
        vr_=[x for i,f in enumerate(first) if f==u+1 for x in vreads(tiles[i],i&1)]
        late=(u+2 in (H,H2)); pre=(u+3 in (H,H2)); hk=int(u+3>=H2)
        STAMP('u%d'%u)
        e(0); e(1)
        if u>0: p(PV(u-1,1))
        if u==CFG['xru']: xr_loads()
        if u==CFG['hdef']:
            p(f"v_mov_b32 v{vT+5}, 1\ns_waitcnt vmcnt(0)\ns_mov_b64 exec, 1\nds_add_u32 v{vT+4}, v{vT+5}\ns_mov_b64 exec, -1")
            STAMP('hack')
        e(2)
        if not late:
            for x in kr: p(x)
        if pre: p(f"ds_read_b32 v{vT}, v{aFl} offset:{F_M+4*hk-F_G1}")
        e(3); c(0); c(1)
        if pend: p(f"s_waitcnt lgkmcnt({(len(kr) if not late else 0)+(1 if pre else 0)})")
        qk=QK(u+1) if u<17 else [None,None]
        if qk[0]: p(qk[0])
        e(4)
        if late:
            p(f"v_cmp_gt_u32 vcc, 1, v{vT}")
        e(5)
        if late:
            p(f"s_cbranch_vccnz L_g2w{w}{hk}\nL_g2r{w}{hk}:")
            for x in kr: p(x)
        for x in vr_: p(x)
        e(6); e(7); c(2); c(3)
        if qk[1]: p(qk[1])
        e(8); e(9); e(10); e(11)
        p(PV(u,0))
        c(4); c(5); e(12); e(13); e(14); e(15); c(6); c(7)
        pend=bool(kr or vr_ or pre)
        if u==H-1:
            p(f"s_cmp_eq_u32 s{cT0}, 0\ns_cbranch_scc1 L_ex{w}")
            exq=PV(u,1)
    p("s_nop 1")
    p(PV(17,1))
    p("s_branch L_afin")
    for hk in range(2):
        p(f"L_g2w{w}{hk}:")
        p(f"v_mov_b32 v{vT+1}, {F_M+4*hk}")
        lds_wait(vT+1,vT,sT+17,'gt',1,0)
        p(f"s_branch L_g2r{w}{hk}")
    p(f"L_ex{w}:\n{exq}")
    if 99>CFG['xru']>=H: xr_loads()
    p("s_waitcnt lgkmcnt(0)\ns_branch L_afin")
def att_fin():
    t=vT; A=sT+7
    p("L_afin:")
    STAMP('aend')
    p(f"s_mov_b32 s{A}, {hex(f2u(2.0**-40))}\ns_mov_b32 s{A+1}, {hex(f2u(2.0**40)-f2u(2.0**-40))}")
    for q in range(2):
        O=OO[q]
        p(f"""v_cndmask_b32 v{t}, v{O+8}, v{O+12}, s[{sLO}:{sLO+1}]
        v_pk_add_f32 v[{t+2}:{t+3}], v[{O}:{O+1}], v[{O+2}:{O+3}]
        v_rcp_f32 v{t+1}, v{t}
        v_pk_add_f32 v[{t+4}:{t+5}], v[{O+4}:{O+5}], v[{O+6}:{O+7}]
        v_pk_add_f32 v[{t+6}:{t+7}], v[{O+8}:{O+9}], v[{O+10}:{O+11}]
        v_subrev_u32 v{t}, s{A}, v{t}
        v_pk_add_f32 v[{t+2}:{t+3}], v[{t+2}:{t+3}], v[{t+4}:{t+5}]
        v_cmp_lt_u32 s[{A+11}:{A+12}], s{A+1}, v{t}
        v_pk_add_f32 v[{t+2}:{t+3}], v[{t+2}:{t+3}], v[{t+6}:{t+7}]
        v_add_f32 v{t+2}, v{t+2}, v{t+3}""")
        p(f"v_cmp_class_f32 vcc, v{t+2}, v{aCLS}")
        for k in range(6): p(f"v_pk_mul_f32 {vr(O+2*k,2)}, {vr(O+2*k,2)}, {vr(t,2)} op_sel:[0,1] op_sel_hi:[1,1]")
        p(f"""s_or_b64 vcc, vcc, s[{A+11}:{A+12}]
        s_cbranch_scc1 L_afb{q}
        L_afr{q}:""")
        for k in range(6): p(f"v_cvt_pk_bf16_f32 v{O+k}, v{O+2*k}, v{O+2*k+1}")
        p(f"s_cmp_lg_u32 s{sOSC}, 0")
        st=[f"buffer_store_dwordx4 {vr(O,4)}, v{aO}, {S4(sWS)}, s{sOm[q]} offen", f"s_mov_b64 exec, s[{sLO}:{sLO+1}]",
            f"buffer_store_dwordx2 {vr(O+4,2)}, v{aO}, {S4(sWS)}, s{sOt[q]} offen offset:512", "s_mov_b64 exec, -1"]
        p(f"s_cbranch_scc1 L_osc{q}")
        for x in st: p(x+(" "+CFG['apol'] if x.startswith("buffer") else ""))
        p(f"s_branch L_osr{q}\nL_osc{q}:")
        for x in st: p(x+(" sc1" if x.startswith("buffer") else ""))
        p(f"L_osr{q}:")
    p(f"""v_mov_b32 v{t}, {F_DONE}
    v_mov_b32 v{t+1}, 1
    s_mov_b64 exec, 1
    ds_add_u32 v{t}, v{t+1}
    s_mov_b64 exec, -1""")
    STAMP('ost')
aCLS=255; aFO=226; aFR=227
def att_cold():
    t=vT; A=sT+7; B=sT+8; N=sT+17; J=sT+18; CN=sT+19; PA=sT+20
    for q in range(2): p(f"L_afb{q}:\ns_cmp_lg_u32 s{sFB}, 0\ns_cbranch_scc1 L_afr{q}\ns_branch L_afb")
    p(f"L_afb:\ns_mov_b32 s{sFB}, 1\ns_waitcnt lgkmcnt(0)")
    S=SS[0]; MX=t+10; xa=t+11
    for q in range(2):
        lp=p.lab("fb"); nd=p.lab("fbnd"); nf=p.lab("fbnf"); p2=p.lab("fbp2"); nx=p.lab("fbnx"); ps=p.lab("fbps"); dn=p.lab("fbdn")
        for r in range(16): p(f"v_mov_b32 v{OO[q]+r}, 0")
        p(f"""v_mov_b32 v{MX}, {NINF}
        s_mov_b32 s{PA}, 0
        {ps}:""")
        if q==0: p(f"s_sub_u32 s{N}, 15, s{sWAVE}")
        else: p(f"s_add_u32 s{N}, 8, s{sWAVE}")
        p(f"""s_sub_u32 s{CN}, s{N}, 7
        s_cmp_eq_u32 s{cT0}, 0
        s_cselect_b32 s{CN}, s{CN}, 9
        s_mov_b32 s{J}, 0
        {lp}:
        s_lshr_b32 s{A}, s{N}, 1
        s_mul_i32 s{A}, s{A}, 5632
        s_bitcmp1_b32 s{N}, 0
        s_cselect_b64 vcc, -1, 0
        s_nop 0
        v_cndmask_b32 v{xa}, v{aKm}, v{aKm1}, vcc
        v_cndmask_b32 v{xa+1}, v{aKt}, v{aKt1}, vcc
        v_cndmask_b32 v{xa+2}, v{aV}, v{aV1}, vcc
        v_add_u32 v{xa}, s{A}, v{xa}
        v_add_u32 v{xa+1}, s{A}, v{xa+1}
        v_add_u32 v{xa+2}, s{A}, v{xa+2}
        ds_read_b128 {vr(KM[0],4)}, v{xa}
        ds_read_b64 {vr(KT[0],2)}, v{xa+1}
        s_mov_b64 exec, s[{sLO+2}:{sLO+3}]
        ds_read_b128 {vr(VV[0][0],4)}, v{xa+2}
        ds_read_b128 {vr(VV[0][1],4)}, v{xa+2} offset:640
        s_mov_b64 exec, -1
        s_waitcnt lgkmcnt(0)
        v_mfma_f32_32x32x16_bf16 {vr(S,16)}, {vr(KM[0],4)}, {vr(QM[q],4)}, 0
        v_mfma_f32_32x32x8_bf16 {vr(S,16)}, {vr(KT[0],2)}, {vr(QT[q],2)}, {vr(S,16)}
        v_mov_b32 v{xa}, {NINF}
        s_nop 11
        s_cmp_lg_u32 s{J}, 0
        s_cbranch_scc1 {nd}""")
        for r in range(16): p(f"v_cmp_eq_u32 vcc, 0, v{CD+r}\ns_nop 1\nv_cndmask_b32 v{S+r}, v{xa}, v{S+r}, vcc")
        p(f"{nd}:\ns_cmp_lg_u32 s{J}, 8\ns_cbranch_scc1 {nf}")
        for r in range(16): p(f"v_cmp_eq_u32 vcc, 0, v{CF+r}\ns_nop 1\nv_cndmask_b32 v{S+r}, v{xa}, v{S+r}, vcc")
        p(f"{nf}:\ns_cmp_lg_u32 s{PA}, 0\ns_cbranch_scc1 {p2}")
        for r in range(0,16,2): p(f"v_max3_f32 v{MX}, v{S+r}, v{S+r+1}, v{MX}")
        p(f"s_branch {nx}\n{p2}:")
        for r in range(16): p(f"v_sub_f32 v{S+r}, v{S+r}, v{MX}")
        for r in range(16): p(f"v_exp_f32 v{S+r}, v{S+r}")
        p("s_nop 0")
        for k in range(8): p(f"v_cvt_pk_bf16_f32 v{PP+k}, v{S+2*k}, v{S+2*k+1}")
        p("s_nop 1")
        for m in range(2): p(f"v_mfma_f32_32x32x16_bf16 {vr(OO[q],16)}, {vr(VV[0][m],4)}, {vr(PP+4*m,4)}, {vr(OO[q],16)}")
        p(f"""s_nop 11
        {nx}:
        s_sub_u32 s{N}, s{N}, 1
        s_add_u32 s{J}, s{J}, 1
        s_cmp_lt_u32 s{J}, s{CN}
        s_cbranch_scc1 {lp}
        s_cmp_lg_u32 s{PA}, 0
        s_cbranch_scc1 {dn}
        v_mov_b32 v{xa}, v{MX}
        s_mov_b32 s{PA}, 1
        s_nop 0
        v_permlane32_swap_b32 v{xa}, v{MX}
        s_nop 1
        v_max_f32 v{MX}, v{MX}, v{xa}
        s_branch {ps}
        {dn}:""")
    p("s_branch L_afin")

BF=28; AF=108; WACC=200; XR=176; WR_=186; aX2=196; aPS=197; aAL=198; aAR=199; SW=220; aL4=221; aPR=222; aKY=223; aCD=224
HP=40; HF_=50; LP=70; OP=80
sRT=sT+1; sOL=sT+2; sOR=sT+5; sXO=cXO; sPSO=sT+12; sRETRY=sT+13; sPRB=sT+14; sFLO=sT+16; sFRE=sT+18
def acc_init():
    for k in range(10): p(f"v_lshlrev_b32 v{WACC+2*k}, 16, v{XR+k}\nv_and_b32 v{WACC+2*k+1}, 0xffff0000, v{XR+k}")
def wo_pre1():
    t=vT; A=sT+7; B=sT+8
    wo_ids()
    p(f"""v_and_b32 v{t}, 15, v0
    v_lshrrev_b32 v{t+1}, 4, v0
    v_mul_u32_u24 v{aWR}, 40, v{t+1}
    v_mov_b32 v{t+3}, 1280
    v_mad_u32_u24 v{aX2}, v{t}, v{t+3}, v{aWR}
    s_lshl_b32 s{A}, s{sBLK}, 2
    s_add_u32 s{A}, s{A}, s{sWAVE}
    s_mul_i32 s{A}, s{A}, 20480
    s_mul_i32 s{cJ}, s{sJ}, 160
    s_add_u32 s{cXO}, s{A}, s{cJ}
    v_lshlrev_b32 v{aPS}, 7, v{t}
    v_lshl_add_u32 v{aPS}, v{t+1}, 5, v{aPS}
    v_lshlrev_b32 v{aFR}, 7, v{t}
    v_mul_u32_u24 v{t+2}, 640, v{t+1}
    v_bfe_u32 v{t+3}, v0, 2, 2
    v_mul_u32_u24 v{t+3}, 160, v{t+3}
    v_and_b32 v{t+4}, 3, v0
    v_mul_u32_u24 v{t+4}, 40, v{t+4}
    v_add3_u32 v{t+2}, v{t+2}, v{t+3}, v{t+4}
    s_mul_i32 s{A}, s{sHH}, 51200
    s_add_u32 s{B}, s{A}, {L_WO}
    v_add_u32 v{aAL}, s{B}, v{t+2}
    s_sub_u32 s{B}, {L_WO+51200}, s{A}
    v_add_u32 v{aAR}, s{B}, v{t+2}
    v_and_b32 v{t+2}, 7, v0
    v_mul_u32_u24 v{t+2}, 1280, v{t+2}
    v_bfe_u32 v{t+3}, v0, 3, 1
    v_lshl_add_u32 v{aPR}, v{t+3}, 7, v{t+2}""")
    if CFG['wsp']:
        p(f"""s_and_b32 s{B}, s{sWAVE}, 1
        s_mul_i32 s{B}, s{B}, 25600
        v_add_u32 v{aAL}, s{B}, v{aAL}
        v_add_u32 v{aAR}, s{B}, v{aAR}
        s_lshr_b32 s{B}, s{sWAVE}, 1
        s_mul_i32 s{B}, s{B}, 10240
        s_add_u32 s{A}, s{A}, s{B}
        s_and_b32 s{B}, s{sWAVE}, 1
        s_lshl_b32 s{B}, s{B}, 10
        s_add_u32 s{A}, s{A}, s{B}
        s_add_u32 s{A}, s{A}, {L_WO}
        v_lshlrev_b32 v{aL4}, 4, v0
        v_add_u32 v{aPR}, s{A}, v{aL4}
        v_add_u32 v{aL4}, 4096, v{aL4}""")
def wo_pre2():
    acc_init()
def probe(soff,cnt,first=True):
    t=vT
    lp=p.lab("pb"); ok=p.lab("pbok"); md=p.lab("pbm")
    p(f"s_mov_b32 s{cnt}, {SPIN}")
    if not first: p(f"s_branch {md}")
    p(f"""{lp}:
    buffer_load_dwordx3 v[{t+4}:{t+6}], v{aPR}, {S4(sWS)}, s{soff} offen offset:512 sc1""")
    if not first: p(f"{md}:")
    p(f"""s_waitcnt vmcnt(0)
    v_max_u32 v{t+4}, v{t+4}, v{t+6}
    v_cmp_eq_u32 vcc, -1, v{t+4}
    s_nop 0
    s_cbranch_vccz {ok}""")
    spin(cnt,lp,ok)
    p(f"s_branch {lp}\n{ok}:")
def red3(a,b,c,d):
    p(f"""v_mov_b32 v{d}, v{c}
    s_nop 0
    v_permlane32_swap_b32 v{a}, v{b}
    v_permlane32_swap_b32 v{c}, v{d}
    s_nop 0
    v_add_f32 v{a}, v{a}, v{b}
    v_add_f32 v{c}, v{c}, v{d}
    s_nop 1
    v_permlane16_swap_b32 v{a}, v{c}
    s_nop 0
    v_add_f32 v{a}, v{a}, v{c}
    v_add_f32 v{c}, v{a}, 0
    s_nop 1
    v_permlane16_swap_b32 v{a}, v{c}
    s_nop 0
    v_mov_b32 v{b}, v{a}
    s_nop 1
    v_permlane32_swap_b32 v{a}, v{b}""")
def wo_scal():
    A=sT+7; B=sT+8
    wo_ids()
    p(f"""s_lshl_b32 s{sRT}, s{sBLK}, 2
    s_add_u32 s{sRT}, s{sRT}, s{sWAVE}
    s_mul_i32 s{A}, s{sRT}, 20480
    s_mul_i32 s{B}, s{sMODE}, {OB2-OB}
    s_add_u32 s{A}, s{A}, s{B}
    s_add_u32 s{A}, s{A}, {OB}
    s_mul_i32 s{B}, s{sHH}, 10240
    s_add_u32 s{sOL}, s{A}, s{B}
    s_add_u32 s{sOL+1}, s{sOL}, 4096
    s_add_u32 s{sOL+2}, s{sOL}, 8192
    s_add_u32 s{A}, s{A}, 10240
    s_sub_u32 s{sOR}, s{A}, s{B}
    s_lshl_b32 s{sPSO}, s{sRT}, 11
    s_add_u32 s{sPSO}, s{sPSO}, {PS}
    s_mov_b32 s{sRETRY}, {1<<16}
    s_add_u32 s{sOR+1}, s{sOR}, 4096
    s_add_u32 s{sPRB}, s{sOR}, 8192""")
    if CFG['wsp']:
        p(f"""s_and_b32 s{A}, s{sWAVE}, 1
        s_mul_i32 s{B}, s{A}, 5120
        s_add_u32 s{sOL}, s{sOL}, s{B}
        s_add_u32 s{sOR}, s{sOR}, s{B}
        s_mul_i32 s{B}, s{A}, -40960
        s_add_u32 s{B}, s{B}, 20480
        s_add_u32 s{sOL+1}, s{sOL}, s{B}
        s_add_u32 s{sOR+1}, s{sOR}, s{B}""")
def wo_flags():
    A=sT+7; B=sT+8
    p(f"""s_lshr_b32 s{A}, s{sRT}, 1
    s_lshl_b32 s{A}, s{A}, 12
    s_lshl_b32 s{B}, s{sHH}, 11
    s_add_u32 s{A}, s{A}, {FO}
    s_add_u32 s{sFLO}, s{A}, s{B}
    s_xor_b32 s{sFRE}, s{sFLO}, 2048""")
def wo_gemm():
    t=vT; A=sT+7; B=sT+8; C=sT+17; MXS=t+8
    sROFF=[sOR,sOR+1,sPRB]
    LA=CFG['wla']; WE=CFG['wwe']
    LG=[]
    def af(m): return AF+4*(m%15)
    def aread(m):
        s_,t_=divmod(m,5)
        for rd in range(2):
            p(f"ds_read_b64_tr_b16 {vr(af(m)+2*rd,2)}, v{aAL if s_<10 else aAR} offset:{(s_%10)*5120+rd*2560+8*t_}"); LG.append(m)
    def lgw(m):
        k=[i for i,x in enumerate(LG) if x!='x' and x<=m]
        if not k: return None
        n=len(LG)-1-max(k); del LG[:max(k)+1]; return n
    def bload(s_):
        so=(sOL+(s_%10)//4) if s_<10 else sROFF[(s_%10)//4]
        return f"buffer_load_dwordx4 {vr(BF+4*s_,4)}, v{aLin}, {S4(sWS)}, s{so} offen offset:{(s_%10%4)*1024} sc1"
    def cold(f):
        n0=len(p.L); f(); COLD.append("\n".join(p.L[n0:])); del p.L[n0:]
    p(f"s_cmp_lg_u32 s{sMODE}, 0\ns_cbranch_scc1 L_plsl\nL_plr:")
    def slow():
        p("L_plsl:"); wo_flags()
        p(f"""v_mov_b32 v{t+1}, s{sTAG}
        s_mov_b64 exec, 3
        s_waitcnt vmcnt(0)
        buffer_store_dword v{t+1}, v{aFO}, {S4(sWS)}, 0 offen sc1
        s_mov_b64 exec, -1""")
        flag_poll(aFR,t+4,sFLO,C); flag_poll(aFR,t+4,sFRE,C); p("s_branch L_plr")
    cold(slow)
    NI=CFG['oini']
    def dn():
        if CFG['odn']:
            p(f"v_mov_b32 v{t}, {F_DONE}"); lds_wait(t,t+1,C,'gt',4,0)
    if CFG['oprb']:
        p(f"buffer_load_dwordx3 v[{t+4}:{t+6}], v{aPR}, {S4(sWS)}, s{sOL} offen offset:512 sc1\ns_waitcnt vmcnt(5)")
    else:
        dn()
        for s_ in range(NI): p(bload(s_))
        p(f"s_waitcnt vmcnt({NI+4})")
    acc_init()
    p(f"v_mov_b32 v{t}, {F_WOR}")
    STAMP('fo')
    lds_wait(t,t+1,C,'gt',2,0)
    p(f"ds_read_b32 v{SW}, v{t} offset:{L_SWS-F_WOR}"); LG.append('x')
    STAMP('wor')
    if CFG['oprb']: dn()
    for m in range(LA): aread(m)
    p(f"v_mov_b32 v{t+7}, {F_WO2}\ns_mov_b32 s{sRETRY}, {SPIN}")
    if CFG['oprb']:
        probe(sOL,C,first=False)
        STAMP('prb')
        for s_ in range(NI): p(bload(s_))
    G={}; a=0
    for n in CFG['ogr']: G[a]=a+n; a+=n
    assert a==20 and 10 in G
    def chain(a,b):
        return [f"v_max_u32 v{MXS}, v{BF+4*a}, v{BF+4*a+2}"]+[f"v_max3_u32 v{MXS}, v{BF+4*k}, v{BF+4*k+2}, v{MXS}" for k in range(a+1,b)]
    cmp_=f"v_cmp_eq_u32 vcc, -1, v{MXS}"
    def retry(a,b):
        e=20 if (CFG['opoll']=='all' or a>=10) else 10
        def f():
            p(f"L_og{a}:\ns_sub_u32 s{sRETRY}, s{sRETRY}, 1\ns_cbranch_scc1 L_ogr{a}")
            sl=CFG['osl'][a//10]
            if sl: p(f"s_sleep {sl}")
            if CFG['opoll']=='probe' and a==0: probe(sOL,C)
            for k in range(a,e): p(bload(k))
            p(f"s_waitcnt vmcnt({20-b if e==20 else 0})")
            for x in chain(a,b): p(x)
            p(f"{cmp_}\ns_nop 0\ns_cbranch_vccnz L_og{a}\ns_branch L_ogr{a}")
        cold(f)
    last=lambda s_: (NI if s_<NI else 20)-1
    p(f"s_waitcnt vmcnt({last(0)+1-G[0]})")
    for x in chain(0,G[0]): p(x)
    p(f"{cmp_}\ns_nop 0\ns_cbranch_vccnz L_og0\nL_ogr0:"); retry(0,G[0])
    STAMP('pl')
    for m in range(100):
        s_,t_=divmod(m,5)
        nx=s_+1 if s_+1 in G else None
        if m==50:
            STAMP('pr')
            if 'PR' in (CFG['gstart'],CFG['dstart'],CFG['dgate'],CFG['mtg']):
                p(f"""s_mov_b64 exec, 1
                v_mov_b32 v{t+4}, {F_PR}
                v_mov_b32 v{t+5}, 1
                ds_add_u32 v{t+4}, v{t+5}
                s_mov_b64 exec, -1"""); LG.append('x')
        w=[]
        if nx is not None and t_==1: w.append(f"vmcnt({(20 if m>CFG['orem'] else NI)-G[nx]}"); assert G[nx]<=NI or m>CFG['orem']
        if m%WE==0:
            n=lgw(m+WE-1)
            if n is not None: w.append(f"lgkmcnt({n}")
        if w: p("s_waitcnt "+") ".join(w)+")")
        a_=vr(WACC+4*t_,4)
        p(f"v_mfma_f32_16x16x32_bf16 {a_}, {vr(af(m),4)}, {vr(BF+4*s_,4)}, {a_}")
        if NI<20 and m==CFG['orem']:
            for k in range(NI,20): p(bload(k))
        if m+LA==50-10: p(f"ds_read_b32 v{t+6}, v{t+7}"); LG.append('x')
        if m+LA==50:
            assert nx is None or t_<3
            p(f"v_cmp_gt_u32 vcc, 2, v{t+6}\ns_nop 0\ns_cbranch_vccnz L_wo2w\nL_wo2r:")
            def f():
                p("L_wo2w:"); lds_wait(t+7,t+6,C,'gt',2,0); p("s_branch L_wo2r")
            cold(f)
        if m+LA<100: aread(m+LA)
        if nx is not None:
            ch=chain(nx,G[nx]); k=-(-len(ch)//2)
            if t_==1:
                for x in ch[:k]: p(x)
            if t_==2:
                for x in ch[k:]: p(x)
            if t_==3: p(cmp_)
            if t_==4:
                if nx==10: STAMP('loc')
                p(f"s_cbranch_vccnz L_og{nx}\nL_ogr{nx}:"); retry(nx,G[nx])
    p(f"""v_mov_b32 v{t}, 0x3f803f80
    v_mov_b32 v{t+2}, 0
    v_mov_b32 v{t+3}, 0
    v_mov_b32 v{t+4}, 0
    s_nop 3""")
ACC2=148; aXW=222
def wo_gemm2():
    t=vT; A=sT+7; B=sT+8; C=sT+17; MXS=t+8
    LA=CFG['wla2']
    LG=[]
    def af(m): return AF+4*(m%10)
    def aread(m,rds=(0,1)):
        s_,t_=divmod(m,5)
        for rd in rds:
            if CFG['wnoa'] and m>=LA and rd<CFG['wnoa']: continue
            p(f"ds_read_b64_tr_b16 {vr(af(m)+2*rd,2)}, v{aAL if s_<5 else aAR} offset:{(s_%5)*5120+rd*2560+8*t_}"); LG.append(m)
    def lgw(m):
        k=[i for i,x in enumerate(LG) if x!='x' and x<=m]
        if not k: return None
        n=len(LG)-1-max(k); del LG[:max(k)+1]; return n
    def bload(s_,us=(0,1)):
        for u in us:
            so=(sOL if s_<5 else sOR)+u
            p(f"buffer_load_dwordx4 {vr(BF+8*s_+4*u,4)}, v{aLin if s_%5<4 else aL4}, {S4(sWS)}, s{so} offen offset:{(s_%5%4)*1024} {CFG['ldo'] if s_<5 else 'sc1'}")
    def cold(f):
        n0=len(p.L); f(); COLD.append("\n".join(p.L[n0:])); del p.L[n0:]
    p(f"s_cmp_lg_u32 s{sMODE}, 0\ns_cbranch_scc1 L_plsl\nL_plr:")
    def slow():
        p("L_plsl:"); wo_flags()
        p(f"""v_mov_b32 v{t+1}, s{sTAG}
        s_mov_b64 exec, 3
        s_waitcnt vmcnt(0)
        buffer_store_dword v{t+1}, v{aFO}, {S4(sWS)}, 0 offen sc1
        s_mov_b64 exec, -1""")
        flag_poll(aFR,t+4,sFLO,C); flag_poll(aFR,t+4,sFRE,C); p("s_branch L_plr")
    cold(slow)
    XL=CFG['xru']==99
    XF_=lambda k: (230+2*k if k<8 else 168+2*(k-8))
    p(f"v_mov_b32 v{t}, {F_DONE}")
    if not XL: p("s_waitcnt vmcnt(4)")
    if CFG['odn']==2 and not XL: acc_init()
    if CFG['odn']: lds_wait(t,t+1,C,'gt',4,0)
    for s_ in range(5): bload(s_)
    if CFG['odn']!=2 and not XL: acc_init()
    p(f"v_mov_b32 v{t}, {F_WOR}")
    STAMP('fo')
    lds_wait(t,t+1,C,'gt',2,0)
    p(f"ds_read_b32 v{SW}, v{t} offset:{L_SWS-F_WOR}"); LG.append('x')
    STAMP('wor')
    for m in range(LA): aread(m)
    p(f"""v_mov_b32 v{t+7}, {F_WO2}
    s_mov_b32 s{sRETRY}, {SPIN}
    s_lshl_b32 s{A}, s{sWAVE}, 2
    s_add_u32 s{A}, s{A}, {F_X}
    v_mov_b32 v{t+10}, s{A}
    v_xor_b32 v{t+11}, 4, v{t+10}
    v_mov_b32 v{t+12}, 1""")
    G={}; a=0
    for n in CFG['ogr2']: G[a]=a+n; a+=n
    assert a==10 and 5 in G
    def chain(a,b):
        return [f"v_max_u32 v{MXS}, v{BF+8*a}, v{BF+8*a+2}"]+[f"v_max3_u32 v{MXS}, v{BF+4*k}, v{BF+4*k+2}, v{MXS}" for k in range(2*a+1,2*b)]
    cmp_=f"v_cmp_eq_u32 vcc, -1, v{MXS}"
    def retry(a,b):
        e=10 if a>=5 else 5
        def f():
            p(f"L_og{a}:\ns_sub_u32 s{sRETRY}, s{sRETRY}, 1\ns_cbranch_scc1 L_ogr{a}")
            sl=CFG['osl'][a//5]
            if sl: p(f"s_sleep {sl}")
            for k in range(a,e): bload(k)
            p(f"s_waitcnt vmcnt({20-2*b if e==10 and not (XL and CFG['xrd']>=0) else 0})")
            for x in chain(a,b): p(x)
            p(f"{cmp_}\ns_nop 0\ns_cbranch_vccnz L_og{a}\ns_branch L_ogr{a}")
        cold(f)
    RM={}
    for j in range(10): RM.setdefault(max(-1,int(CFG['orem2'][0]+j*CFG['orem2'][1])),[]).append(j)
    assert max(RM)<=24
    nis=10
    for j in RM.get(-1,()): bload(5+j//2,(j&1,)); nis+=1
    p(f"s_waitcnt vmcnt({nis-2*G[0]})")
    for x in chain(0,G[0]): p(x)
    p(f"{cmp_}\ns_nop 0\ns_cbranch_vccnz L_og0\nL_ogr0:"); retry(0,G[0])
    STAMP('pl')
    def mf(m,u):
        s_,t_=divmod(m,5)
        a_=vr((WACC,ACC2)[u]+4*t_,4)
        p(f"v_mfma_f32_16x16x32_bf16 {a_}, {vr(af(m),4)}, {vr(BF+8*s_+4*u,4)}, {0 if (u or XL) and s_==0 else a_}")
    WE=CFG['wwe2']
    mX=max(RM)+CFG['xrd']; nx_=0; nxat=0
    if XL and mX<0: xr_loads(); nx_=6; nxat=nis
    for m in range(45):
        s_,t_=divmod(m,5)
        nx=s_+1 if s_+1 in G else None
        if m==25:
            STAMP('pr')
            p(f"""s_mov_b64 exec, 1
            ds_add_u32 v{t+7}, v{t+12} offset:{F_LD-F_WO2}"""); LG.append('x')
            if 'PR' in (CFG['gstart'],CFG['dstart'],CFG['dgate'],CFG['mtg']):
                p(f"v_mov_b32 v{t+4}, {F_PR}\nds_add_u32 v{t+4}, v{t+12}"); LG.append('x')
            p("s_mov_b64 exec, -1")
        w=[]
        if nx is not None and t_==1: w.append(f"vmcnt({nis+(nx_ if 2*G[nx]<=nxat else 0)-2*G[nx]}"); assert nis>=2*G[nx]
        n=lgw(m+WE-1) if m%WE==0 else None
        if n is not None: w.append(f"lgkmcnt({n}")
        if w: p("s_waitcnt "+") ".join(w)+")")
        mf(m,1)
        if m==25-2*LA-1: p(f"ds_read_b32 v{t+6}, v{t+7}"); LG.append('x')
        if m+LA==25:
            assert nx is None or t_<3
            p(f"v_cmp_gt_u32 vcc, 2, v{t+6}\ns_nop 0\ns_cbranch_vccnz L_wo2w\nL_wo2r:")
            def f():
                p("L_wo2w:"); lds_wait(t+7,t+6,C,'gt',2,0); p("s_branch L_wo2r")
            cold(f)
        if m==44-LA: p(f"ds_read_b32 v{t+6}, v{t+7} offset:{F_LD-F_WO2}"); LG.append('x')
        if m+LA<50: aread(m+LA,(0,) if CFG['wsplit'] else (0,1))
        mf(m,0)
        if m+LA<50 and CFG['wsplit']: aread(m+LA,(1,))
        for j in RM.get(m,()): bload(5+j//2,(j&1,)); nis+=1
        if XL and m==mX: xr_loads(); nx_=6; nxat=nis
        if XL and m==40: p("s_waitcnt vmcnt(0)")
        if XL and 40<=m<45:
            for k in (2*(m-40),2*(m-40)+1): p(f"v_lshlrev_b32 v{XF_(k)}, 16, v{XR+k}\nv_and_b32 v{XF_(k)+1}, 0xffff0000, v{XR+k}")
        if CFG['mtg']=='RL' and m==max(RM)+CFG['rld']:
            p(f"s_mov_b64 exec, 1\nv_mov_b32 v{t+4}, {F_H2}\nds_add_u32 v{t+4}, v{t+12}\ns_mov_b64 exec, -1"); LG.append('x')
        if nx is not None:
            ch=chain(nx,G[nx]); k=-(-len(ch)//2)
            if t_==1:
                for x in ch[:k]: p(x)
            if t_==2:
                for x in ch[k:]: p(x)
            if t_==3: p(cmp_)
            if t_==4:
                if nx==5: STAMP('loc')
                p(f"s_cbranch_vccnz L_og{nx}\nL_ogr{nx}:"); retry(nx,G[nx])
                STAMP('og%d'%nx)
    assert LA>=5 and 9 not in G
    for m in range(45,50):
        n=lgw(m)
        if n is not None: p(f"s_waitcnt lgkmcnt({n})")
        mf(m,1)
        if m==45:
            p(f"v_cmp_gt_u32 vcc, 4, v{t+6}\nv_mov_b32 v{t}, 0x3f803f80\ns_cbranch_vccnz L_ldw\nL_ldr:")
            def f():
                p(f"L_ldw:\nv_add_u32 v{t+7}, {F_LD-F_WO2}, v{t+7}"); lds_wait(t+7,t+6,C,'gt',4,0); p("s_branch L_ldr")
            cold(f)
    p(f"""v_mov_b32 v{t+2}, 0
    v_mov_b32 v{t+3}, 0
    v_mov_b32 v{t+4}, 0
    v_xor_b32 v{t+5}, 1024, v{aXW}""")
    for k in range(5):
        p(f"ds_write_b128 v{aXW}, {vr(ACC2+4*k,4)} offset:{2048*k}")
        mf(45+k,0)
    lp=p.lab("xw"); ok=p.lab("xok")
    STAMP('xw')
    p(f"""ds_write_b32 v{t+10}, v{t+12}
    s_mov_b32 s{C}, {SPIN*4}""")
    if XL:
        md=p.lab("xwm")
        p(f"ds_read_b32 v{t+6}, v{t+11}")
        for k in range(5): p(f"ds_read_b128 {vr(BF+4*k,4)}, v{t+5} offset:{2048*k}")
        for k in range(10): p(f"v_pk_add_f32 {vr(WACC+2*k,2)}, {vr(WACC+2*k,2)}, {vr(XF_(k),2)}")
        p(f"s_branch {md}")
    p(f"""{lp}:
    ds_read_b32 v{t+6}, v{t+11}""")
    for k in range(5): p(f"ds_read_b128 {vr(BF+4*k,4)}, v{t+5} offset:{2048*k}")
    if XL: p(f"{md}:")
    p(f"""s_waitcnt lgkmcnt(5)
    v_cmp_eq_u32 vcc, 0, v{t+6}
    s_nop 0
    s_cbranch_vccz {ok}""")
    spin(C,lp,ok)
    p(f"s_waitcnt lgkmcnt(0)\ns_branch {lp}\n{ok}:")
    for k in range(5):
        p(f"s_waitcnt lgkmcnt({4-k})")
        for j in range(2): p(f"v_pk_add_f32 {vr(WACC+4*k+2*j,2)}, {vr(WACC+4*k+2*j,2)}, {vr(BF+4*k+2*j,2)}")
def wo_gemm_old():
    t=vT; A=sT+7; B=sT+8; C=sT+17; MXS=t+8
    wo_scal(); wo_flags()
    p("s_waitcnt vmcnt(4)")
    acc_init()
    p(f"""v_mov_b32 v{t}, {F_WOR}
    v_mov_b32 v{t+1}, s{sTAG}
    s_cmp_eq_u32 s{sOSC}, 0
    s_cbranch_scc1 L_nofo
    s_mov_b64 exec, 3
    s_waitcnt vmcnt(0)
    buffer_store_dword v{t+1}, v{aFO}, {S4(sWS)}, 0 offen sc1
    s_mov_b64 exec, -1
    L_nofo:""")
    STAMP('fo')
    lds_wait(t,t+1,C,'gt',2,0)
    p(f"""ds_read_b32 v{SW}, v{t} offset:{L_SWS-F_WOR}
    L_wo:""")
    STAMP('wor')
    sROFF=[sOR,sOR+1,sPRB]
    LA=CFG['wla']; WE=CFG['wwe']
    LG=[]
    def af(m): return AF+4*(m%15)
    def aread(m):
        s_,t_=divmod(m,5)
        for rd in range(2):
            p(f"ds_read_b64_tr_b16 {vr(af(m)+2*rd,2)}, v{aAL if s_<10 else aAR} offset:{(s_%10)*5120+rd*2560+8*t_}"); LG.append(m)
    def lgw(m):
        k=[i for i,x in enumerate(LG) if x!='x' and x<=m]
        if not k: return None
        n=len(LG)-1-max(k); del LG[:max(k)+1]; return n
    def bload(s_):
        so=(sOL+(s_%10)//4) if s_<10 else sROFF[(s_%10)//4]
        return f"buffer_load_dwordx4 {vr(BF+4*s_,4)}, v{aLin}, {S4(sWS)}, s{so} offen offset:{(s_%10%4)*1024} sc1"
    for m in range(LA): aread(m)
    p(f"v_mov_b32 v{MXS}, 0\nv_mov_b32 v{t+7}, {F_WO2}")
    p(f"s_cmp_lg_u32 s{sMODE}, 0\ns_cbranch_scc1 L_plsl")
    probe(sOL,C)
    p("L_plr:")
    n0=len(p.L)
    p("L_plsl:"); flag_poll(aFR,t+4,sFLO,C); p("s_branch L_plr")
    COLD.append("\n".join(p.L[n0:])); del p.L[n0:]
    STAMP('pl')
    for s_ in range(10): p(bload(s_))
    p(f"buffer_load_dword v{t+4}, v{aFR}, {S4(sWS)}, s{sFRE} offen sc1")
    for m in range(100):
        s_,t_=divmod(m,5)
        if m==50:
            STAMP('loc')
            flag_poll(aFR,t+4,sFRE,C,first=False)
            STAMP('pr')
            for k in range(10,20): p(bload(k))
            if 'PR' in (CFG['gstart'],CFG['dstart'],CFG['dgate'],CFG['mtg']):
                p(f"""s_mov_b64 exec, 1
                v_mov_b32 v{t+4}, {F_PR}
                v_mov_b32 v{t+5}, 1
                ds_add_u32 v{t+4}, v{t+5}
                s_mov_b64 exec, -1"""); LG.append('x')
        w=[]
        if t_==0: w.append(f"vmcnt({(10-s_) if s_<10 else (19-s_)}")
        if m%WE==0:
            n=lgw(m+WE-1)
            if n is not None: w.append(f"lgkmcnt({n}")
        if w: p("s_waitcnt "+") ".join(w)+")")
        a_=vr(WACC+4*t_,4)
        p(f"v_mfma_f32_16x16x32_bf16 {a_}, {vr(af(m),4)}, {vr(BF+4*s_,4)}, {a_}")
        if m+LA==50-10: p(f"ds_read_b32 v{t+6}, v{t+7}"); LG.append('x')
        if m+LA==50:
            p(f"v_cmp_gt_u32 vcc, 2, v{t+6}\ns_nop 0\ns_cbranch_vccnz L_wo2w\nL_wo2r:")
            n0=len(p.L)
            p("L_wo2w:"); lds_wait(t+7,t+6,C,'gt',2,0); p("s_branch L_wo2r")
            COLD.append("\n".join(p.L[n0:])); del p.L[n0:]
        if m+LA<100: aread(m+LA)
        if t_==0 and s_<10: p(f"v_max3_u32 v{MXS}, v{BF+4*s_}, v{BF+4*s_+2}, v{MXS}")
    p(f"""v_cmp_eq_u32 vcc, -1, v{MXS}
    v_mov_b32 v{t}, 0x3f803f80
    v_mov_b32 v{t+2}, 0
    v_mov_b32 v{t+3}, 0
    v_mov_b32 v{t+4}, 0
    s_cbranch_vccnz L_woredo
    L_wook:""")
    COLD.append(f"L_woredo:\ns_sub_u32 s{sRETRY}, s{sRETRY}, 1\ns_cbranch_scc1 L_wook\ns_nop 7")
    q=P();
    COLD.append("\n".join(f"v_lshlrev_b32 v{WACC+2*k}, 16, v{XR+k}\nv_and_b32 v{WACC+2*k+1}, 0xffff0000, v{XR+k}" for k in range(10))+"\ns_branch L_wo")
def wo_main():
    t=vT; A=sT+7; B=sT+8; C=sT+17
    (wo_gemm2 if CFG['wsp'] else wo_gemm if CFG['osent'] else wo_gemm_old)()
    STAMP('wend')
    for k in range(10): p(f"v_cvt_pk_bf16_f32 v{HP+k}, v{WACC+2*k}, v{WACC+2*k+1}")
    for k in range(10):
        p(f"""v_dot2_f32_bf16 v{t+2}, v{HP+k}, v{t}, v{t+2}
        v_dot2_f32_bf16 v{t+4}, v{HP+k}, v{HP+k}, v{t+4}
        v_dot2_f32_bf16 v{t+3}, v{HP+k}, v{WR_+k}, v{t+3}""")
    p(f"""s_lshl_b32 s{A}, s{sJ}, 4
    s_add_u32 s{A}, s{A}, s{sPSO}""")
    red3(t+2,t+3,t+4,t+5)
    p(f"""v_mov_b32 v{t+5}, s{sTAG}
    s_mov_b64 exec, 0xffff
    s_cmp_lg_u32 s{sMODE}, 0
    s_cbranch_scc1 L_pssc
    buffer_store_dwordx4 {vr(t+2,4)}, v{aPS}, {S4(sWS)}, s{A} offen
    L_psr:""")
    if 'WE' in (CFG['gstart'],CFG['g2nd'][0],CFG['mtg']): p(f"s_mov_b64 exec, 1\nv_mov_b32 v{t+10}, {F_SCP}\nv_mov_b32 v{t+11}, 1\nds_add_u32 v{t+10}, v{t+11}")
    p("s_mov_b64 exec, -1")
    COLD.append(f"L_pssc:\nbuffer_store_dwordx4 {vr(t+2,4)}, v{aPS}, {S4(sWS)}, s{A} offen sc1\ns_branch L_psr")
    STAMP('ps')
    G=t+10
    lp=p.lab("ps"); ok=p.lab("psok"); md=p.lab("psm")
    ld=f"""buffer_load_dwordx4 {vr(G,4)}, v{aPS}, {S4(sWS)}, s{sPSO} offen sc1
    buffer_load_dwordx4 {vr(G+4,4)}, v{aPS}, {S4(sWS)}, s{sPSO} offen offset:16 sc1"""
    p(ld)
    for k in range(10): p(f"v_lshlrev_b32 v{HF_+2*k}, 16, v{HP+k}\nv_and_b32 v{HF_+2*k+1}, 0xffff0000, v{HP+k}")
    if CFG['dbg']:
        p(f"s_add_u32 s{A}, s{sXO}, {HB}")
        for o,n in ((0,4),(4,4),(8,2)): p(f"buffer_store_dwordx{n} {vr(HP+o,n)}, v{aX2}, {S4(sWS)}, s{A} offen offset:{4*o}")
    p(f"""s_lshl_b32 s{A}, s{sRT}, 4
    s_sub_u32 s{A}, 2047, s{A}
    v_and_b32 v{t}, 15, v0
    v_sub_u32 v{t+9}, s{A}, v{t}
    v_lshlrev_b32 v{t+9}, 3, v{t+9}
    s_lshl_b32 s{A}, s{sWAVE}, 6
    s_add_u32 s{A}, s{A}, {L_KEYS}
    v_lshl_add_u32 v{aKY}, v{t}, 2, s{A}
    v_and_b32 v{t}, 48, v0
    v_lshlrev_b32 v{t}, 2, v{t}
    v_add_u32 v{t+8}, {L_KEYS}, v{t}
    s_mov_b32 s{C}, {SPIN}
    s_branch {md}
    {lp}:
    {ld}
    {md}:
    s_waitcnt vmcnt(0)
    v_cmp_ne_u32 vcc, s{sTAG}, v{G+3}
    v_cmp_ne_u32 s[{sT+14}:{sT+15}], s{sTAG}, v{G+7}
    v_pk_add_f32 {vr(t+4,2)}, {vr(G,2)}, {vr(G+4,2)}
    v_add_f32 v{t+6}, v{G+2}, v{G+6}
    s_or_b64 vcc, vcc, s[{sT+14}:{sT+15}]
    s_cbranch_scc0 {ok}""")
    spin(C,lp,ok)
    p(f"""s_branch {lp}
    {ok}:""")
    STAMP('psr'); COUNT('npsr',C,SPIN)
    if 'PS' in (CFG['g2nd'][0],CFG['gstart'],CFG['dstart'],CFG['dgate'],CFG['mtg']): p(f"""s_mov_b64 exec, 1
    v_mov_b32 v{G}, {F_PS}
    v_mov_b32 v{G+1}, 1
    ds_add_u32 v{G}, v{G+1}
    s_mov_b64 exec, -1""")
    M=t+4
    red3(M,M+1,M+2,M+3)
    p(f"""v_mul_f32 v{M}, {1/640!r}, v{M}
    v_mul_f32 v{M+2}, {1/640!r}, v{M+2}
    v_fma_f32 v{M+2}, -v{M}, v{M}, v{M+2}
    v_max_f32 v{M+2}, 0, v{M+2}""")
    bf16r(M+2,M+2)
    p(f"v_add_f32 v{M+2}, 0x3727c5ac, v{M+2}")
    bf16r(M+2,M+2)
    p(f"v_sqrt_f32 v{M+2}, v{M+2}")
    bf16r(M,M)
    bf16r(M+2,M+2)
    RS=t+2
    p(f"""v_rcp_f32 v{RS}, v{M+2}
    v_fma_f32 v{M+1}, -v{M}, v{SW}, v{M+1}
    v_mul_f32 v{M+1}, v{M+1}, v{RS}
    v_cvt_pk_bf16_f32 v{M+1}, v{M+1}, v{M+1}
    v_mul_f32 v{RS+1}, -v{M}, v{RS}
    v_ashrrev_i32 v{M+2}, 31, v{M+1}
    v_or_b32 v{M+2}, 0x80000000, v{M+2}
    v_xor_b32 v{M+1}, v{M+1}, v{M+2}
    v_and_b32 v{M+1}, 0xffff0000, v{M+1}
    v_or_b32 v{KEY}, v{M+1}, v{t+9}
    ds_write_b32 v{aKY}, v{KEY}""")
    for k in range(10): p(f"v_pk_fma_f32 {vr(WACC+2*k,2)}, {vr(HF_+2*k,2)}, {vr(RS,2)}, {vr(RS,2)} op_sel:[0,0,1] op_sel_hi:[1,0,1]")
    K16=AF
    lp=p.lab("ky"); ok=p.lab("kyok")
    p(f"s_mov_b32 s{C}, {SPIN*4}\n{lp}:")
    for i in range(4): p(f"ds_read_b128 {vr(K16+4*i,4)}, v{t+8} offset:{16*i}")
    p("s_waitcnt lgkmcnt(0)")
    p(f"v_max3_u32 v{t}, v{K16}, v{K16+1}, v{K16+2}")
    for i in range(3,15,2): p(f"v_max3_u32 v{t}, v{K16+i}, v{K16+i+1}, v{t}")
    p(f"""v_max_u32 v{t}, v{t}, v{K16+15}
    v_cmp_eq_u32 vcc, -1, v{t}
    v_mov_b32 v{t}, 0
    s_cbranch_vccz {ok}""")
    spin(C,lp,ok)
    p(f"s_branch {lp}\n{ok}:")
    STAMP('keys')
    m0_=sT+18
    for i in range(18):
        if i<16: p(f"v_cmp_gt_u32 s[{m0_+2*(i%2)}:{m0_+2*(i%2)+1}], v{K16+i}, v{KEY}") if False else None
    MK=[sT+14,sT+16,sT+18]
    for i in range(18):
        if i<16: m=MK[i%3]; p(f"v_cmp_gt_u32 s[{m}:{m+1}], v{K16+i}, v{KEY}")
        elif i==16: p("s_nop 0")
        if i>=2: m=MK[(i-2)%3]; p(f"v_addc_co_u32 v{t}, vcc, 0, v{t}, s[{m}:{m+1}]")
    p(f"""v_mov_b32 v{t+1}, v{t}
    v_cvt_pk_bf16_f32 v{LP}, v{WACC}, v{WACC+1}
    v_cvt_pk_bf16_f32 v{LP+1}, v{WACC+2}, v{WACC+3}
    v_permlane32_swap_b32 v{t}, v{t+1}
    v_cvt_pk_bf16_f32 v{LP+2}, v{WACC+4}, v{WACC+5}
    v_add_u32 v{t}, v{t}, v{t+1}
    v_mov_b32 v{t+1}, v{t}
    v_cvt_pk_bf16_f32 v{LP+3}, v{WACC+6}, v{WACC+7}
    v_cvt_pk_bf16_f32 v{LP+4}, v{WACC+8}, v{WACC+9}
    v_permlane16_swap_b32 v{t}, v{t+1}
    v_cvt_pk_bf16_f32 v{LP+5}, v{WACC+10}, v{WACC+11}
    v_add_u32 v{t}, v{t}, v{t+1}
    v_cmp_gt_u32 s[{sCAND}:{sCAND+1}], 8, v{t}
    v_or_b32 v{KEY}, v{KEY}, v{t}
    v_mov_b32 v{t+1}, {L_CA&~0xffff}
    v_lshl_add_u32 v{t+1}, v{t}, 3, v{t+1}
    v_mov_b32 v{KEY+1}, s{sTAG}
    s_cmp_lg_u32 s{sJ}, 0
    s_cbranch_scc1 L_noca
    s_and_b32 exec_lo, s{sCAND}, 0xffff
    s_mov_b32 exec_hi, 0
    ds_write_b64 v{t+1}, {vr(KEY,2)} offset:{L_CA&0xffff}
    s_mov_b64 exec, 0xff
    s_cmp_lg_u32 s{sWAVE}, 0
    s_cbranch_scc1 L_noca
    v_lshlrev_b32 v{t+2}, 3, v0
    v_add_u32 v{t+3}, {L_CA}, v{t+2}
    s_lshl_b32 s{A}, s{sBLK}, 7
    s_add_u32 s{A}, s{A}, {CA}
    s_mov_b32 s{C}, {SPIN*4}
    L_cal:
    ds_read_b64 v[{t+4}:{t+5}], v{t+3}
    s_waitcnt lgkmcnt(0)
    v_cmp_ne_u32 vcc, s{sTAG}, v{t+5}
    s_nop 0
    s_cbranch_vccz L_caok""")
    spin(C,"L_cal","L_caok")
    p(f"""s_branch L_cal
    L_caok:
    buffer_store_dwordx2 v[{t+4}:{t+5}], v{t+2}, {S4(sWS)}, s{A} offen sc1
    L_noca:
    s_mov_b64 exec, -1""")
    STAMP('ca')
    for k in range(6,10): p(f"v_cvt_pk_bf16_f32 v{LP+k}, v{WACC+2*k}, v{WACC+2*k+1}")
    p(f"""v_lshrrev_b32 v{t+1}, 4, v0
    v_mul_u32_u24 v{t+1}, 40, v{t+1}
    v_mul_u32_u24 v{t}, 2560, v{t}
    v_add_u32 v{aCD}, v{t}, v{t+1}
    s_mul_i32 s{A}, s{sBLK}, 20480
    s_mul_i32 s{B}, s{sJ}, 160
    s_add_u32 s{A}, s{A}, s{B}
    s_add_u32 s{A}, s{A}, {CAND}
    s_and_b64 exec, s[{sCAND}:{sCAND+1}], -1
    s_cbranch_scc0 L_nocd""")
    for base,off in ((LP,0),(HP,1280)):
        if 'nocand' in CFG['xp'] or ('noh' in CFG['xp'] and off): continue
        for o,n in ((0,4),(4,4),(8,2)): p(f"buffer_store_dwordx{n} {vr(base+o,n)}, v{aCD}, {S4(sWS)}, s{A} offen offset:{off+4*o} sc1")
    p("L_nocd:\ns_mov_b64 exec, -1")
    for k in range(10): p(f"v_pk_add_f32 {vr(WACC+2*k,2)}, {vr(WACC+2*k,2)}, {vr(HF_+2*k,2)}")
    for k in range(10): p(f"v_cvt_pk_bf16_f32 v{OP+k}, v{WACC+2*k}, v{WACC+2*k+1}")
    if CFG['odf']: p(f"s_cmp_lt_u32 s{sMI}, {CFG['odf']}\ns_cbranch_scc1 L_noo1")
    p(f"s_andn2_b64 exec, -1, s[{sCAND}:{sCAND+1}]\ns_cbranch_scc0 L_noo1")
    if 'noout' not in CFG['xp']: out_store()
    p("L_noo1:")
    if 1: p(f"""s_mov_b64 exec, 1
    v_mov_b32 v{t+4}, {F_O1}
    v_mov_b32 v{t+5}, 1
    ds_add_u32 v{t+4}, v{t+5}
    s_mov_b64 exec, -1""")
    else: p("s_mov_b64 exec, -1")
    STAMP('o1')
KEY=228; sCAND=sT+20
def out_store():
    for o,n in ((0,4),(4,4),(8,2)): p(f"buffer_store_dwordx{n} {vr(OP+o,n)}, v{aX2}, {S4(sOUT)}, s{sXO} offen offset:{4*o} {CFG['opol']}")

def moe_weights():
    A=sT+7; B=sT+8; vt=2; D=40; aW_=12
    gu=p.lab("mwgu"); wr=p.lab("mwwr"); en=p.lab("mwend")
    FA=dict(WOD=(F_WOD,2),PR=(F_PR,4),O1=(F_O1,4),DONE=(F_DONE,4),G2=(F_G2,2),PS=(F_PS,4),WO2=(F_WO2,2),WE=(F_SCP,4),TOP=(L_TOP,0))
    def gate(k):
        p(f"v_mov_b32 v{vt+4}, {FA[k][0]}")
        if k=='TOP': lds_wait(vt+4,vt+5,sT+5,'eq',-1,2)
        else: lds_wait(vt+4,vt+5,sT+5,'gt',FA[k][1],2)
    pl_=p.lab("mwpl")
    p(f"""s_cmp_ge_u32 s{sMI}, 17
    s_cbranch_scc1 {pl_}
    v_bfe_u32 v{vt}, v0, 3, 2
    v_lshrrev_b32 v{vt+1}, 5, v0
    v_lshlrev_b32 v{vt}, 1, v{vt}
    v_add_lshl_u32 v{vt}, v{vt}, v{vt+1}, 2
    v_bfe_u32 v{vt+1}, v0, 1, 2
    v_add_u32 v{vt}, v{vt}, v{vt+1}
    v_and_b32 v{vt+1}, 1, v0
    v_lshlrev_b32 v{vt+1}, 4, v{vt+1}
    s_cmp_lt_u32 s{sMI}, 12
    s_cbranch_scc1 {gu}
    v_mul_u32_u24 v{vt}, 1280, v{vt}
    v_add_u32 v{aW_}, v{vt}, v{vt+1}
    s_mul_i32 s{A}, s{sG}, 5
    s_add_u32 s{A}, s{A}, s{sMI}
    s_sub_u32 s{A}, s{A}, 12
    s_lshl_b32 s{A}, s{A}, 5
    s_mul_i32 s{B}, s{HW}, {12*32*1280}
    s_add_u32 s{A}, s{A}, s{B}""")
    gate(CFG['dstart'])
    STAMP('mg')
    for s_ in range(12):
        if s_>=CFG['ddep']: p(f"s_waitcnt vmcnt({CFG['ddep']-1})")
        p(f"buffer_load_dwordx4 {vr(D+4*s_,4)}, v{aW_}, {S4(sWD)}, s{A} offen {CFG['mpol']}")
        if s_<11: p(f"s_add_u32 s{A}, s{A}, {32*1280}")
    p(f"""s_mul_i32 s{B}, s{HW}, 12288
    s_branch {wr}
    {pl_}:""")
    for g_,h_ in CFG['wb']:
        sk=p.lab("nowb")
        p(f"s_lshl_b32 s{A}, s{sSLOT}, 2\ns_add_u32 s{A}, s{A}, s{HW}\ns_cmp_lg_u32 s{A}, {4*CFG['wbs']+h_}\ns_cbranch_scc1 {sk}")
        if g_!='no': gate(g_)
        p(f"buffer_wbl2 sc1\ns_waitcnt vmcnt(0)\n{sk}:")
    if CFG['dgate']!='no' and not CFG['dw3']:
        if CFG['dtn']: p(f"s_cmp_ge_u32 s{sMI}, 28\ns_cbranch_scc1 {en}")
        gate(CFG['dgate'])
        touch(vTD,sWD,CFG['mpair'])
        if CFG['dtn']: p("s_mov_b64 exec, 63"); touch(vTD2,sWD,0); p("s_mov_b64 exec, -1")
        STAMP('mg')
        if CFG['prof']: p("s_waitcnt vmcnt(0)"); STAMP('mw')
    p(f"""s_branch {en}
    {gu}:
    v_mul_u32_u24 v{vt}, 3072, v{vt}
    v_add_u32 v{aW_}, v{vt}, v{vt+1}
    s_mul_i32 s{A}, s{sG}, 12
    s_add_u32 s{A}, s{A}, s{sMI}
    s_lshl_b32 s{A}, s{A}, 5
    s_mul_i32 s{B}, s{HW}, {5*32*3072}
    s_add_u32 s{A}, s{A}, s{B}""")
    gate(CFG['gstart'])
    STAMP('mg')
    for s_ in range(5):
        for m_ in range(2):
            if 2*s_+m_==CFG['g2nd'][1]: gate(CFG['g2nd'][0]); STAMP('mg2')
            if 2*s_+m_>=CFG['mdep']: p(f"s_waitcnt vmcnt({CFG['mdep']-1})")
            p(f"buffer_load_dwordx4 {vr(D+8*s_+4*m_,4)}, v{aW_}, {S4((sWG,sWU)[m_])}, s{A} offen {CFG['mpol']}")
        if s_<4: p(f"s_add_u32 s{A}, s{A}, {32*3072}")
    p(f"s_mul_i32 s{B}, s{HW}, 12288\n{wr}:\nv_lshl_add_u32 v{vt}, v0, 4, s{B}")
    gate('DONE')
    p("s_waitcnt vmcnt(0)")
    for s_ in range(12): p(f"ds_write_b128 v{vt}, {vr(D+4*s_,4)} offset:{L_MW+s_*1024}")
    p(f"""s_lshl_b32 s{A}, s{HW}, 2
    s_add_u32 s{A}, s{A}, {F_MW}
    v_mov_b32 v{vt}, s{A}
    ds_write_b32 v{vt}, v{vt}
    s_waitcnt lgkmcnt(0)""")
    STAMP('mw')
    p(f"{en}:")
def top8(R,K2,K1,y,tt):
    def clean(chs):
        seq=[]
        for (x,y_,t_) in chs:
            seq.append([f"v_max_u32_dpp v{y_}, v{x}, v{x} row_shl:4 row_mask:0xf bank_mask:0x5",
                        f"v_min_u32_dpp v{y_}, v{x}, v{x} row_shr:4 row_mask:0xf bank_mask:0xa",
                        None,
                        f"v_mov_b32_dpp v{t_}, v{y_} quad_perm:[2,3,0,1] row_mask:0xf bank_mask:0xf",
                        f"v_med3_u32 v{y_}, v{y_}, v{t_}, v{K2}",
                        None,
                        f"v_mov_b32_dpp v{t_}, v{y_} quad_perm:[1,0,3,2] row_mask:0xf bank_mask:0xf",
                        f"v_med3_u32 v{x}, v{y_}, v{t_}, v{K1}"])
        n=len(chs)
        p(f"s_nop {2-n}")
        for i in range(8):
            if seq[0][i] is None: p(f"s_nop {2-n}")
            else:
                for c in seq: p(c[i])
                if i==0 and n==1: p("s_nop 1")
                elif i==0: p("s_nop 0")
    dp="row_mask:0xf bank_mask:0xf"
    p(f"v_max_u32_dpp v{R}, v{R+2}, v{R} row_half_mirror {dp}\nv_max_u32_dpp v{R+4}, v{R+6}, v{R+4} row_half_mirror {dp}")
    clean([(R,y,tt),(R+4,y+1,tt+1)])
    p(f"s_nop 1\nv_max_u32_dpp v{R}, v{R+4}, v{R} row_half_mirror {dp}")
    clean([(R,y,tt)])
    p(f"s_nop 1\nv_max_u32_dpp v{R}, v{R}, v{R} row_mirror {dp}")
    clean([(R,y,tt)])
    for msk,sw in ((0xa,16),(0xc,32)):
        p(f"""s_nop 1
        v_mov_b32_dpp v{R}, v{R} row_half_mirror row_mask:{hex(msk)} bank_mask:0xf
        v_mov_b32 v{tt}, v{R}
        s_nop 1
        v_permlane{sw}_swap_b32 v{R}, v{tt}
        s_nop 0
        v_max_u32 v{R}, v{R}, v{tt}""")
        clean([(R,y,tt)])
def moe():
    t=vT; A=sT+7; B=sT+8; C=sT+17; sTHR=sT+14; sKQ=sT+3
    R=12; K2=20; K1=21; aC=22; AW=108
    BL=160
    p(f"""s_cmp_ge_u32 s{sMI}, 17
    s_cbranch_scc1 L_plain
    v_lshrrev_b32 v{t}, 3, v0
    v_and_b32 v{t+1}, 7, v0
    v_lshlrev_b32 v{t+1}, 3, v{t+1}
    v_lshl_add_u32 v{aC}, v{t}, 7, v{t+1}
    s_mov_b32 s{B}, {CA}""")
    ld="\n".join(f"buffer_load_dwordx2 {vr(R+2*i,2)}, v{aC}, {S4(sWS)}, s{B} offen offset:{i*1024} sc1" for i in range(4))
    aMF=4; aMW=5
    def getw():
        lds_wait(AW-aMF,t+10 if False else AW,C,'eq',0,0)
        STAMP('mwr')
        for s_ in range(12):
            for rd in range(2): p(f"ds_read_b64_tr_b16 {vr(AW+4*s_+2*rd,2)}, v{AW-aMW} offset:{L_MW+s_*1024+rd*512}")
    p(f"""s_cmp_lg_u32 s{sWAVE}, 0
    s_cbranch_scc1 L_nocal
    {ld}
    L_nocal:
    v_bfe_i32 v{K2}, v0, 1, 1
    v_bfe_i32 v{K1}, v0, 0, 1
    v_not_b32 v{K2}, v{K2}
    v_not_b32 v{K1}, v{K1}
    s_add_u32 s{sKQ}, s{sWAVE}, {CFG['kqr']}
    s_and_b32 s{sKQ}, s{sKQ}, 3
    s_lshl_b32 s{A}, s{sKQ}, 2
    s_add_u32 s{A}, s{A}, {F_MW}
    v_mov_b32 v{AW-aMF}, s{A}
    s_mul_i32 s{A}, s{sKQ}, 12288
    v_lshl_add_u32 v{AW-aMW}, v0, 3, s{A}
    v_and_b32 v{t}, 7, v0
    v_lshlrev_b32 v{t}, 2, v{t}
    v_add_u32 v{AW-6}, {L_TOP}, v{t}
    s_cmp_ge_u32 s{sMI}, 12
    s_cbranch_scc1 L_now""")
    getw()
    lp=p.lab("ca"); ok=p.lab("caok"); md=p.lab("cam")
    p(f"""L_now:
    s_cmp_lg_u32 s{sWAVE}, 0
    s_cbranch_scc1 L_topw
    s_mov_b32 s{C}, {SPIN}
    s_branch {md}
    {lp}:
    {ld}
    {md}:
    s_waitcnt vmcnt(0)
    v_xor_b32 v{t}, v{R+1}, v{R+3}
    v_xor_b32 v{t+1}, v{R+5}, v{R+7}
    v_xor_b32 v{R+1}, s{sTAG}, v{R+1}
    v_xor_b32 v{R+5}, s{sTAG}, v{R+5}
    v_or3_b32 v{t}, v{t}, v{t+1}, v{R+1}
    v_or_b32 v{t}, v{t}, v{R+5}
    v_cmp_ne_u32 vcc, 0, v{t}
    s_nop 0
    s_cbranch_vccz {ok}""")
    spin(C,lp,ok,CFG['casl'])
    if CFG['dasl']: p(f"s_cmp_lt_u32 s{sMI}, 12\ns_cbranch_scc1 {lp}\ns_sleep {CFG['dasl']}")
    p(f"s_branch {lp}\n{ok}:")
    STAMP('car'); COUNT('ncar',C,SPIN)
    top8(R,K2,K1,t,t+2)
    p(f"ds_write_b32 v{AW-6}, v{R}\ns_branch L_top\nL_topw:\ns_waitcnt vmcnt(0)")
    lds_wait(AW-6,R,C,'eq',-1,0)
    p("L_top:")
    STAMP('top')
    TOK=t+1; aR=t+2
    p(f"""v_bfe_u32 v{TOK}, v{R}, 3, 11
    v_sub_u32 v{TOK}, 2047, v{TOK}
    v_lshrrev_b32 v{t}, 6, v{TOK}
    v_and_b32 v{aR}, 7, v{R}
    v_lshl_add_u32 v{aR}, v{t}, 3, v{aR}
    v_mul_u32_u24 v{aR}, 2560, v{aR}
    v_lshrrev_b32 v{t}, 4, v0
    v_readlane_b32 s{sTHR}, v{R}, 7
    s_cmp_ge_u32 s{sMI}, 12
    s_cbranch_scc1 L_down""")
    def deferred(tag):
        allrows=CFG['odf']>=(12 if tag[0]=='g' else 17 if tag=='d' else 99)
        p(f"""v_cmp_gt_u32 vcc, s{sTHR}, v{KEY}
        s_nop 0
        {'s_orn2_b64' if allrows else 's_and_b64'} exec, vcc, s[{sCAND}:{sCAND+1}]
        s_cbranch_scc0 L_nd{tag}""")
        out_store()
        p(f"L_nd{tag}:\ns_mov_b64 exec, -1")
    p(f"""v_lshl_add_u32 v{aR}, v{t}, 4, v{aR}
    s_mul_i32 s{A}, s{sKQ}, 320
    s_add_u32 s{A}, s{A}, {CAND}""")
    ld="\n".join(f"buffer_load_dwordx4 {vr(BL+4*i,4)}, v{aR}, {S4(sWS)}, s{A} offen offset:{i*64} sc1" for i in range(5))
    lp=p.lab("gl"); ok=p.lab("glok"); md=p.lab("glm"); nt=p.lab("noth")
    XM="s_mov_b32 exec_lo, 0x00ff00ff\ns_mov_b32 exec_hi, 0x00ff00ff" if CFG['xm'] else "s_mov_b64 exec, -1"
    if CFG['xm']: p(XM)
    p(ld)
    p(f"""s_or_b32 s{B}, s{sMI}, s{sWAVE}
    s_cbranch_scc1 {nt}
    v_mov_b32 v{t+4}, s{sTHR}
    v_mov_b32 v{t+5}, s{sTAG}
    s_lshl_b32 s{B}, s{sG}, 7
    s_add_u32 s{B}, s{B}, {TH}
    v_mov_b32 v{t+6}, 0
    s_mov_b64 exec, 1
    buffer_store_dwordx2 v[{t+4}:{t+5}], v{t+6}, {S4(sWS)}, s{B} offen sc1
    {nt}:
    s_mov_b64 exec, -1
    s_lshl_b32 s{B}, s{sWAVE}, 11
    s_add_u32 s{B}, s{B}, {L_RED}
    v_lshl_add_u32 v{t+3}, v0, 4, s{B}
    {XM}
    s_mov_b32 s{C}, {SPIN}
    s_branch {md}
    {lp}:
    {ld}
    {md}:
    s_waitcnt vmcnt(0) lgkmcnt(0)
    v_max3_u32 v{t+4}, v{BL}, v{BL+2}, v{BL+4}
    v_max3_u32 v{t+5}, v{BL+6}, v{BL+8}, v{BL+10}
    v_max3_u32 v{t+4}, v{BL+12}, v{BL+14}, v{t+4}
    v_max3_u32 v{t+5}, v{BL+16}, v{BL+18}, v{t+5}
    v_max_u32 v{t+4}, v{t+4}, v{t+5}
    v_cmp_eq_u32 vcc, -1, v{t+4}
    s_nop 0
    {'s_branch' if 'nocand' in CFG['xp'] else 's_cbranch_vccz'} {ok}""")
    spin(C,lp,ok)
    p(f"s_branch {lp}\n{ok}:")
    STAMP('lr'); COUNT('nlr',C,SPIN)
    if CFG['xm']: p("s_mov_b64 exec, -1")
    G=20; U=24; X=28
    for s_ in range(5):
        for m_,a_ in ((0,G),(1,U)):
            p(f"v_mfma_f32_16x16x32_bf16 {vr(a_,4)}, {vr(AW+8*s_+4*m_,4)}, {vr(BL+4*s_,4)}, {vr(a_,4) if s_ else 0}")
    w0=p.lab("guw0")
    p(f"""s_cmp_eq_u32 s{sWAVE}, 0
    s_cbranch_scc1 {w0}
    s_nop 5
    ds_write_b128 v{t+3}, {vr(G,4)}
    ds_write_b128 v{t+3}, {vr(U,4)} offset:1024
    s_waitcnt lgkmcnt(0)
    s_barrier""")
    deferred('g1')
    END()
    p(f"""{w0}:
    s_mul_i32 s{A}, s{sG}, 12
    s_add_u32 s{A}, s{A}, s{sMI}
    s_lshl_b32 s{A}, s{A}, 8
    s_add_u32 s{A}, s{A}, {ACT}
    v_and_b32 v{t+4}, 7, v0
    v_lshlrev_b32 v{t+4}, 4, v{t+4}
    v_lshrrev_b32 v{t+5}, 5, v0
    v_lshl_add_u32 v{t+4}, v{t+5}, 7, v{t+4}
    v_bfe_u32 v{t+5}, v0, 4, 1
    v_lshl_add_u32 v{t+4}, v{t+5}, 3, v{t+4}
    s_barrier""")
    STAMP('gb')
    for w_ in range(1,4):
        for m_ in range(2): p(f"ds_read_b128 {vr(X+8*(w_-1)+4*m_,4)}, v{t+3} offset:{w_*2048+m_*1024}")
    p(f"s_mov_b32 s{B}, {hex(f2u(-math.log2(math.e)))}")
    for w_ in range(3):
        p(f"s_waitcnt lgkmcnt({4-2*w_})")
        for k in range(4): p(f"v_pk_add_f32 {vr(G+2*k,2)}, {vr(G+2*k,2)}, {vr(X+8*w_+2*k,2)}")
    p(f"""v_cvt_pk_bf16_f32 v{X}, v{G}, v{G+1}
    v_cvt_pk_bf16_f32 v{X+1}, v{G+2}, v{G+3}
    v_cvt_pk_bf16_f32 v{X+2}, v{U}, v{U+1}
    v_cvt_pk_bf16_f32 v{X+3}, v{U+2}, v{U+3}""")
    for k in range(4): p(f"v_lshlrev_b32 v{G+2*k}, 16, v{X+k}\nv_and_b32 v{G+2*k+1}, 0xffff0000, v{X+k}")
    for k in range(4): p(f"v_mul_f32 v{X+k}, s{B}, v{G+k}")
    for k in range(4): p(f"v_exp_f32 v{X+k}, v{X+k}")
    for k in range(4): p(f"v_add_f32 v{X+k}, 1.0, v{X+k}")
    for k in range(4): p(f"v_rcp_f32 v{X+k}, v{X+k}")
    for k in range(4): p(f"v_mul_f32 v{G+k}, v{G+k}, v{X+k}")
    p(f"v_cvt_pk_bf16_f32 v{X}, v{G}, v{G+1}\nv_cvt_pk_bf16_f32 v{X+1}, v{G+2}, v{G+3}")
    for k in range(2): p(f"v_lshlrev_b32 v{G+2*k}, 16, v{X+k}\nv_and_b32 v{G+2*k+1}, 0xffff0000, v{X+k}")
    p(f"""v_pk_mul_f32 {vr(G,2)}, {vr(G,2)}, {vr(U,2)}
    v_pk_mul_f32 {vr(G+2,2)}, {vr(G+2,2)}, {vr(U+2,2)}
    v_cvt_pk_bf16_f32 v{X}, v{G}, v{G+1}
    v_cvt_pk_bf16_f32 v{X+1}, v{G+2}, v{G+3}
    s_mov_b32 exec_lo, 0x00ff00ff
    s_mov_b32 exec_hi, 0x00ff00ff
    buffer_store_dwordx2 {vr(X,2)}, v{t+4}, {S4(sWS)}, s{A} offen sc1""")
    if CFG['ahint']:
        p(f"""s_lshl_b32 s{A}, s{sG}, 5
        s_add_u32 s{A}, s{A}, s{sMI}
        s_lshl_b32 s{A}, s{A}, 2
        s_add_u32 s{A}, s{A}, {AH}
        v_mov_b32 v{t+4}, 0
        v_mov_b32 v{t+5}, s{sTAG}
        s_mov_b64 exec, 1""")
        dual([f"buffer_store_dword v{t+5}, v{t+4}, {S4(sWS)}, s{A} offen"])
    p("s_mov_b64 exec, -1")
    STAMP('act')
    deferred('g0')
    END()
    HL=20; Y=24; X=28; SG=t+8; aO2=t+9
    p(f"""L_down:
    v_lshl_add_u32 v{aR}, v{t}, 3, v{aR}
    v_mul_u32_u24 v{aO2}, 1280, v{TOK}
    v_lshl_add_u32 v{aO2}, v{t}, 3, v{aO2}
    v_and_b32 v{t+4}, 7, v0
    v_lshlrev_b32 v{t+4}, 4, v{t+4}
    v_lshl_add_u32 v{t+4}, v{t}, 7, v{t+4}
    s_mul_i32 s{sT+1}, s{sG}, 5
    s_add_u32 s{sT+1}, s{sT+1}, s{sMI}
    s_sub_u32 s{sT+1}, s{sT+1}, 12
    s_lshl_b32 s{sT+1}, s{sT+1}, 5
    s_add_u32 s{sT+2}, s{sT+1}, {CAND}
    s_mul_i32 s{A}, s{sKQ}, 6144
    s_add_u32 s{A}, s{A}, {ACT}
    s_add_u32 s{B}, s{A}, 4096""")
    ldh=f"buffer_load_dwordx2 {vr(HL,2)}, v{aR}, {S4(sWS)}, s{sT+2} offen sc1\nbuffer_load_dwordx2 {vr(HL+2,2)}, v{aR}, {S4(sWS)}, s{sT+2} offen offset:1280 sc1"
    if CFG['hll']: p(f"s_cmp_lg_u32 s{sWAVE}, 0\ns_cbranch_scc1 L_nohl\n{XM}\n{ldh}\ns_mov_b64 exec, -1\nL_nohl:")
    else: p(ldh)
    deferred('d')
    p(f"""v_ashrrev_i32 v{SG}, 31, v{R}
    v_not_b32 v{SG}, v{SG}
    v_or_b32 v{SG}, 0x80000000, v{SG}
    v_xor_b32 v{SG}, v{SG}, v{R}
    v_and_b32 v{SG}, 0xffff0000, v{SG}
    v_mul_f32 v{SG}, {hex(f2u(-math.log2(math.e)))}, v{SG}
    v_exp_f32 v{SG}, v{SG}
    s_lshl_b32 s{C}, s{sWAVE}, 10
    v_add_f32 v{SG}, 1.0, v{SG}
    v_rcp_f32 v{SG}, v{SG}
    s_add_u32 s{C}, s{C}, {L_RED}
    v_lshl_add_u32 v{t+3}, v0, 4, s{C}""")
    bf16r(SG,SG)
    lp=p.lab("hl"); ok=p.lab("hlok"); md=p.lab("hlm")
    if not CFG['hll']: p(f"""s_mov_b32 s{C}, {SPIN}
    s_branch {md}
    {lp}:
    {ldh}
    {md}:
    s_waitcnt vmcnt(0)
    v_max_u32 v{t+5}, v{HL}, v{HL+2}
    v_cmp_eq_u32 vcc, -1, v{t+5}
    s_nop 0
    {'s_branch' if CFG['xp'] else 's_cbranch_vccz'} {ok}""")
    if not CFG['hll']:
        spin(C,lp,ok)
        p(f"s_branch {lp}\n{ok}:")
    getw()
    ld="\n".join([f"buffer_load_dwordx4 {vr(BL+4*i,4)}, v{t+4}, {S4(sWS)}, s{A if i<8 else B} offen offset:{(i%8)*512} sc1" for i in range(12)])
    if CFG['ahint']:
        p(f"""v_min_u32 v{t+6}, {CFG['ahint']-1}, v0
        v_lshlrev_b32 v{t+6}, 2, v{t+6}
        s_lshl_b32 s{sT+4}, s{sG}, 7
        s_add_u32 s{sT+4}, s{sT+4}, {AH}""")
        flag_poll(t+6,t+5,sT+4,C)
        STAMP('ah')
    lp=p.lab("al"); ok=p.lab("alok")
    p(f"""{XM}
    s_mov_b32 s{C}, {SPIN}
    {lp}:
    {ld}
    s_waitcnt vmcnt(8)
    v_max3_u32 v{t+5}, v{BL}, v{BL+2}, v{BL+4}
    v_max3_u32 v{t+6}, v{BL+6}, v{BL+8}, v{BL+10}
    v_max3_u32 v{t+5}, v{BL+12}, v{BL+14}, v{t+5}""")
    for i in range(4,12):
        if i%4==0: p(f"s_waitcnt vmcnt({8-i})")
        p(f"v_max3_u32 v{t+5+(i&1)}, v{BL+4*i}, v{BL+4*i+2}, v{t+5+(i&1)}")
    p(f"""v_max_u32 v{t+5}, v{t+5}, v{t+6}
    v_cmp_eq_u32 vcc, -1, v{t+5}
    s_waitcnt lgkmcnt(0)
    s_cbranch_vccz {ok}""")
    spin(C,lp,ok,CFG['acsl'])
    p(f"s_branch {lp}\n{ok}:")
    STAMP('ar'); COUNT('nar',C,SPIN)
    if CFG['xm']: p("s_mov_b64 exec, -1")
    for s_ in range(12): p(f"v_mfma_f32_16x16x32_bf16 {vr(Y,4)}, {vr(AW+4*s_,4)}, {vr(BL+4*s_,4)}, {vr(Y,4) if s_ else 0}")
    w0=p.lab("dnw0")
    p(f"""s_cmp_eq_u32 s{sWAVE}, 0
    s_cbranch_scc1 {w0}
    s_nop 5
    ds_write_b128 v{t+3}, {vr(Y,4)}
    s_waitcnt lgkmcnt(0)
    s_barrier""")
    END()
    p(f"{w0}:")
    if CFG['hll']:
        p(f"""{XM}
        v_max_u32 v{t+5}, v{HL}, v{HL+2}
        v_cmp_eq_u32 vcc, -1, v{t+5}
        s_mov_b32 s{C}, {SPIN}
        s_cbranch_vccnz L_hlw
        L_hlr:
        s_mov_b64 exec, -1""")
        COLD.append(f"""L_hlw:
        s_sub_u32 s{C}, s{C}, 1
        s_cbranch_scc1 L_hlr
        {ldh}
        s_waitcnt vmcnt(0)
        v_max_u32 v{t+5}, v{HL}, v{HL+2}
        v_cmp_eq_u32 vcc, -1, v{t+5}
        s_nop 0
        s_cbranch_vccnz L_hlw
        s_branch L_hlr""")
    p(f"""v_lshlrev_b32 v{X+12}, 16, v{HL}
    v_and_b32 v{X+13}, 0xffff0000, v{HL}
    v_lshlrev_b32 v{X+14}, 16, v{HL+1}
    v_and_b32 v{X+15}, 0xffff0000, v{HL+1}
    v_lshlrev_b32 v{X+16}, 16, v{HL+2}
    v_and_b32 v{X+17}, 0xffff0000, v{HL+2}
    v_lshlrev_b32 v{X+18}, 16, v{HL+3}
    v_and_b32 v{X+19}, 0xffff0000, v{HL+3}
    s_barrier""")
    STAMP('db')
    for w_ in range(1,4): p(f"ds_read_b128 {vr(X+4*(w_-1),4)}, v{t+3} offset:{w_*1024}")
    for w_ in range(3):
        p(f"s_waitcnt lgkmcnt({2-w_})")
        for k in range(2): p(f"v_pk_add_f32 {vr(Y+2*k,2)}, {vr(Y+2*k,2)}, {vr(X+4*w_+2*k,2)}")
    def rnd():
        p(f"v_cvt_pk_bf16_f32 v{X}, v{Y}, v{Y+1}\nv_cvt_pk_bf16_f32 v{X+1}, v{Y+2}, v{Y+3}")
    def unp():
        for k in range(2): p(f"v_lshlrev_b32 v{Y+2*k}, 16, v{X+k}\nv_and_b32 v{Y+2*k+1}, 0xffff0000, v{X+k}")
    rnd(); unp()
    for k in range(4): p(f"v_mul_f32 v{Y+k}, v{SG}, v{Y+k}")
    rnd(); unp()
    for k in range(2): p(f"v_pk_add_f32 {vr(Y+2*k,2)}, {vr(Y+2*k,2)}, {vr(X+12+2*k,2)}")
    rnd(); unp()
    for k in range(2): p(f"v_pk_add_f32 {vr(Y+2*k,2)}, {vr(Y+2*k,2)}, {vr(X+16+2*k,2)}")
    rnd()
    p(f"""s_mov_b32 exec_lo, 0x00ff00ff
    s_mov_b32 exec_hi, 0x00ff00ff
    buffer_store_dwordx2 {vr(X,2)}, v{aO2}, {S4(sOUT)}, s{sT+1} offen sc1""")
    STAMP('fin')
    END()
    lp=p.lab("th"); ok=p.lab("thok")
    p(f"""L_plain:
    s_lshl_b32 s{B}, s{sG}, 7
    s_add_u32 s{B}, s{B}, {TH}
    v_mov_b32 v{t}, 0
    s_mov_b32 s{C}, {SPIN}
    {lp}:
    s_sleep 16
    buffer_load_dwordx2 v[{t+2}:{t+3}], v{t}, {S4(sWS)}, s{B} offen sc1
    s_waitcnt vmcnt(0)
    v_cmp_ne_u32 vcc, s{sTAG}, v{t+3}
    s_nop 0
    s_cbranch_vccz {ok}""")
    spin(C,lp,ok)
    p(f"""s_branch {lp}
    {ok}:
    v_readfirstlane_b32 s{sTHR}, v{t+2}
    s_nop 1""")
    deferred('p')
    STAMP('fin')

def build():
    prologue()
    steps=loader()
    helperA(steps)
    p("s_branch L_mw")
    helperB(steps)
    p("L_mw:")
    moe_weights()
    END()
    p("L_comp:")
    if CFG['prio']: p(f"s_setprio {CFG['prio']}")
    p("s_waitcnt lgkmcnt(0)")
    STAMP('start')
    prologue2(1)
    if CFG['cpf']: code_pf()
    if CFG['tlb']==1:
        for k in range(12):
            p(f"s_mov_b32 s{sT+18}, {k*0x200000+0x1000}\ns_load_dword s100, s[{sWS}:{sWS+1}], s{sT+18}")
    if CFG['tlb']==2:
        p(f"v_lshlrev_b32 v228, 19, v0\nv_min_u32 v228, 0x1780000, v228\nbuffer_load_dword v229, v228, {S4(sWS)}, 0 offen")
    srd(((sX,2621440),))
    if CFG['hclr']: assert CFG['clr']==0; CFG['clate']=9
    if CFG['clr']==0 and CFG['clate']==0: clears(0); clears(1)
    att_setup()
    if CFG['clr']==0 and CFG['clate']==1: clears(0); clears(1)
    gemm_setup()
    if CFG['clr']: clears(0)
    if CFG['clr']==0 and CFG['clate']==2: clears(0); clears(1)
    p("s_waitcnt lgkmcnt(0)")
    mktag()
    p(f"""    s_cmp_eq_u32 s{sLC}, 15
    s_cbranch_scc1 L_gS
    s_cmp_eq_u32 s{sTY}, 2
    s_cbranch_scc1 L_gV""")
    gemm_loop('T'); gemm_epi('T'); p("s_branch L_att")
    p("L_gS:"); idle_gemm(); p("s_branch L_att")
    p("L_gV:"); gemm_loop('V'); gemm_epi('V')
    p("L_att:")
    att_go()
    for w in range(4): att_variant(w)
    att_fin()
    wo_main()
    if CFG['stop']<=3:
        p(f"s_and_b64 exec, s[{sCAND}:{sCAND+1}], -1\ns_cbranch_scc0 L_noo2"); out_store(); p("L_noo2:")
    else: moe()
    END()
    att_cold()
    for c in COLD: p(c)
    p("L_exit:\ns_endpgm")
build()
errs=check(p.L)
hdr=f"""; generated by work/k/gen.py (own generator script)
; @launch grid=(256,1,1) block=(512,1,1) lds=163840
.amdgcn_target "amdgcn-amd-amdhsa--gfx950"
.text
.globl {NAME}_kernel
.p2align 8
.type {NAME}_kernel,@function
{NAME}_kernel:
"""
ftr=f""".section .rodata,"a"
.p2align 6
.amdhsa_kernel {NAME}_kernel
  .amdhsa_next_free_vgpr 256
  .amdhsa_next_free_sgpr 102
  .amdhsa_accum_offset 256
  .amdhsa_group_segment_fixed_size 0
  .amdhsa_kernarg_size 88
  .amdhsa_user_sgpr_count 2
  .amdhsa_user_sgpr_kernarg_segment_ptr 1
  .amdhsa_system_sgpr_workgroup_id_x 1
.end_amdhsa_kernel
"""
import align8
def fmt(L):
    q=P(); q.L=L; return q.text()
if CFG['al8']: print("align8",align8.align(p.L,hdr,ftr,fmt,sys.argv[1]+".tmp.s",CFG['al8']))
if CFG.get('alst'): print(align8.stat(p.L,hdr,ftr,fmt,sys.argv[1]+".tmp.s"))
open(sys.argv[1],"w").write(hdr+p.text()+ftr)

import subprocess
r=subprocess.run(["clang","-x","assembler","-target","amdgcn-amd-amdhsa","-mcpu=gfx950",sys.argv[1],"-o",sys.argv[1]+".co"],capture_output=True,text=True)
if r.returncode: print(r.stderr[:3000]); sys.exit(1)
r=subprocess.run(["python3","cdna_unwritten_srd_check.py",sys.argv[1]+".co"],capture_output=True,text=True)
if r.returncode: print("SRDCHECK:",r.stdout[-3000:],r.stderr[-1000:])
r=subprocess.run("llvm-size -A "+sys.argv[1]+".co | grep text",shell=True,capture_output=True,text=True); print(r.stdout.strip())
if errs:
    import os; os.remove(sys.argv[1]); sys.exit(1)
```

```python
import sys, math
from asmlib import *
NAME="sequential_preLN__sliding_block__moe_arch_mod__prompt"
CFG=dict(xdma=1, prm=25, ob2=0, psq=1, ldma=1, asp=1, a2=1, cpre=0, cpsl=2, cpb=17, hsl2=2, ogate=4, honly=0, hsp=0, wpause=0, hdef=-1, hdg='FS', xru=17, xrd=0, ahint=12, ptc='', chint=0, dtn=1, hll=1, xm=1, kqr=0, dasl=0, dth=0, odf=0, mrm=1, g2nd=('O1',10), smx=2, smd=0, hst=0, wgf='M', shf=1, gm='no', gr='G1', tlb=0, rld=0, al8=0, ldp='sc1', ldo='sc1', wsp=1, wla2=7, ogr2=(1,2,2,2,3), orem2=(6,1), wwe2=2, smw=(), smo=(3,6), mtr=(0,10), mth=0, wburst=0, mtg='RL', wts=99, wsplit=1, wnoa=0, hclr=0, cst=(3,3), hsent=0, hkv=0, hgate='G1', hrs=0, osent=1, ogr=(2,3,5,2,3,5), opoll='half', osl=(0,0), oini=10, orem=25, clate=2, oprb=0, odn=1, hstep=6, qpol='', apol='', cpol='', wb=(), wbs=31, ht=0, hpoll=0, hsl=1, wog2=0, hearly=0, stg=6, stb=0, ord='xw,xw,xw,xw,xw,xw,xw,xw,xw,xw', amp=None, wose=2, late1=1, sdef=(1,1,1,1), pt2=8, qpair2=0, nacc=8, sfirst=1, prio=0, smode='dot', sfill=(), acsl=0, casl=0, xp=(), dw3=0, wla=7, wwe=2, dgate='PS', dstart='O1', gstart='WE', mdep=10, ddep=12, qpair=0, mpair=0, wpair=0, xnt=0, wnt=0, tpol2='', wtw='no', mtw='w3', wothr1=4, mb=(6,6), mg=('WOD','PR','PR','O1'), mpf=0, mgate='b3', hsplit=0, cpf=1, npf=(0,)*10, wogs=5, clr=0, wot=(), wtpol='', seqs=None, xpol='nt', wpol='', tpol='', wopol='', mpol='', cal=None, opol='', st=['start','b0|hb0','gend|hb9','E1|hE1','st|halo|clr','fl|g2|wo','fseen|h2','kv','aend','ost'], pt=8, wothr=16, wogate=1, h2sl=1, noh2=0, nowo=0, wos=(0,0,0), sched=(1,2,1,1,1,1,1,0,0,0), dbg=0, stop=99, prof=0, rot=('0055','36094758','05162738'), force_slow=0, noclr=0, pre=2, ldst=0, nomfma=0, nohello=0)
for a in sys.argv[2:]:
    k,v=a.split("="); CFG[k]=eval(v)
QB,KB,VB,KH,VH,OB=[i*0x280000 for i in range(6)]
CAND=0xF00000
PS=0xFA0000
CA=0xFE0000
ACT=0xFE1000
HB=0x1000000
PROF=0x1300000
H1=0x1280000; H2=0x1281000; EPO=0x1282000; TH=0x1283000; AH=0x1284000; CH_=0x1285000
STP=0x1680000; STX=0x1780000
FO=0x1700000; OB2=0x1400000; FL=0x12A0000; FH=0x1740000
L_STG=0; L_KV=10240; L_WO=55296; L_MISC=157696; L_MW=0
L_CS=L_MISC
L_SA=L_MISC+512
L_SR=L_SA+1024
L_MODE=L_SR+512
L_FLG=L_MODE+64
F_G1,F_G2,F_H2,F_STG,F_SCP,F_DONE,F_WOR,F_MW=[L_FLG+4*i for i in (0,1,2,4,8,9,10,12)]
L_SWS=L_FLG+80; F_O1=L_FLG+44; F_WOD=L_FLG+64; F_PR=L_FLG+68; F_WO2=L_FLG+72; F_PS=L_FLG+76; F_FS=L_FLG+84; F_LD=L_FLG+88; F_X=L_FLG+96; F_M=L_FLG+112; F_HR=L_FLG+120; F_RI=L_FLG+124; F_OWN=L_FLG+92
L_KEYS=L_FLG+128
L_CA=L_KEYS+256; L_TOP=L_CA+64
L_RED=L_WO
sX,sW,sWO,sWG,sWU,sWD,sOUT,sWS,sDBG,sWR=[4+4*i for i in range(10)]
sWAVE,sG,sSLOT,sRQ,sHH,sRB,sCT,sMODE,sEP,sTAG=range(44,54)
sT=54
sMI=39
sBK=3
sLO=76
sPROF=80
p=P()
COLD=[]
CALI=lambda: 's_memtime' if CFG['cal'][1]>20000 else 's_memrealtime'
def STAMP(name,w=0):
    if CFG['amp']:
        a=CFG['amp']
        if name=='entry': p(f"s_memrealtime s[{sPROF+8}:{sPROF+9}]")
        for k in (0,1):
            if name==a[k]:
                p(f"{'s_memrealtime' if a[2]=='r' else 's_memtime'} s[{sPROF+2*k}:{sPROF+2*k+1}]")
                if w: p("s_waitcnt lgkmcnt(0)")
    if CFG['cal'] and name in CFG['cal'][0].split('|'):
        p(f"{CALI()} s[{sPROF}:{sPROF+1}]")
        if w: p("s_waitcnt lgkmcnt(0)")
    i=[k for k,n in enumerate(CFG['st']) if name in n.split('|')]
    if CFG['prof'] and i:
        i=i[0]
        p(f"{'s_memrealtime' if CFG['prof']==2 else 's_memtime'} s[{sPROF+2*i}:{sPROF+2*i+1}]")
        if w: p("s_waitcnt lgkmcnt(0)")
def COUNT(name,cnt,full):
    i=[k for k,n in enumerate(CFG['st']) if name in n.split('|')]
    if CFG['prof'] and i:
        r=sPROF+2*i[0]
        p(f"s_waitcnt lgkmcnt(0)\ns_sub_u32 s{r}, {full}, s{cnt}\ns_mul_i32 s{r}, s{r}, 100\ns_add_u32 s{r}, s{r}, s{sPROF}")
def PROFDUMP():
    if not CFG['prof']: return
    p("s_waitcnt vmcnt(0) lgkmcnt(0)")
    p("s_mov_b64 exec, -1")
    for i in range(10): p(f"v_mov_b32 v{2+i}, s{sPROF+2*i}")
    p(f"""s_lshl_b32 s{sT}, s2, 3
    s_add_u32 s{sT}, s{sT}, s{sWAVE}
    s_lshl_b32 s{sT}, s{sT}, 6
    s_add_u32 s{sT}, s{sT}, {PROF}
    v_mov_b32 v1, 0
    s_mov_b64 exec, 1
    buffer_store_dwordx4 v[2:5], v1, s[{sWS}:{sWS+3}], s{sT} offen
    buffer_store_dwordx4 v[6:9], v1, s[{sWS}:{sWS+3}], s{sT} offen offset:16
    s_getpc_b64 s[{sT+2}:{sT+3}]
    v_mov_b32 v12, s{sT+2}
    v_mov_b32 v13, s{sT+3}
    buffer_store_dwordx4 v[10:13], v1, s[{sWS}:{sWS+3}], s{sT} offen offset:32""")
def END():
    PROFDUMP()
    if CFG['amp']:
        a=CFG['amp']
        lp=p.lab("amp"); ok=p.lab("ampok")
        p(f"""s_waitcnt vmcnt(0) lgkmcnt(0)
        s_cmp_eq_u32 s{sPROF+2}, 0
        s_cbranch_scc1 {ok}
        s_cmp_lg_u32 s{sWAVE}, {a[5] if len(a)>5 else 0}
        s_cbranch_scc1 {ok}""")
        if a[4]>=0: p(f"s_cmp_lg_u32 s2, {a[4]}\ns_cbranch_scc1 {ok}")
        p(f"""s_sub_u32 s{sPROF+6}, s{sPROF+2}, s{sPROF}
        s_mul_i32 s{sPROF+6}, s{sPROF+6}, {a[3]}
        s_lshr_b32 s{sPROF+6}, s{sPROF+6}, 4
        s_min_u32 s{sPROF+6}, s{sPROF+6}, 100000
        s_add_u32 s{sPROF+6}, s{sPROF+6}, 3000
        s_mov_b32 s{sPROF+4}, 100000
        {lp}:
        s_sleep 2
        s_memrealtime s[{sPROF+2}:{sPROF+3}]
        s_sub_u32 s{sPROF+4}, s{sPROF+4}, 1
        s_cbranch_scc1 {ok}
        s_waitcnt lgkmcnt(0)
        s_sub_u32 s{sPROF+2}, s{sPROF+2}, s{sPROF+8}
        s_cmp_lt_u32 s{sPROF+2}, s{sPROF+6}
        s_cbranch_scc1 {lp}
        {ok}:""")
    if CFG['cal']:
        lp=p.lab("cal"); ok=p.lab("calok")
        p(f"""s_waitcnt vmcnt(0) lgkmcnt(0)
        s_cmp_eq_u32 s{sPROF}, 0
        s_cbranch_scc1 {ok}
        s_cmp_ge_u32 s{sWAVE}, 4
        s_cbranch_scc1 {ok}
        s_mov_b32 s{sPROF+4}, 100000
        {lp}:
        s_sleep 2
        {CALI()} s[{sPROF+2}:{sPROF+3}]
        s_sub_u32 s{sPROF+4}, s{sPROF+4}, 1
        s_cbranch_scc1 {ok}
        s_waitcnt lgkmcnt(0)
        s_sub_u32 s{sPROF+2}, s{sPROF+2}, s{sPROF}
        s_cmp_lt_u32 s{sPROF+2}, {CFG['cal'][1]}
        s_cbranch_scc1 {lp}
        {ok}:""")
    p("s_endpgm")
S4=lambda r:f"s[{r}:{r+3}]"
SPIN=1<<18

def srd(lst):
    for r,n in lst: p(f"s_mov_b32 s{r+2}, {n}\ns_mov_b32 s{r+3}, 0x20000")
def prologue():
    STAMP('entry')
    p(f"""s_cmp_ge_u32 s2, 256
    s_cbranch_scc1 L_exit
    s_load_dwordx2 s[{sX}:{sX+1}], s[0:1], 0
    s_load_dwordx2 s[{sW}:{sW+1}], s[0:1], 8
    s_load_dwordx2 s[{sWS}:{sWS+1}], s[0:1], 80
    v_lshrrev_b32 v1, 6, v0
    v_and_b32 v0, 63, v0
    v_readfirstlane_b32 s{sWAVE}, v1
    s_and_b32 s{sG}, s2, 7
    s_lshr_b32 s{sSLOT}, s2, 3
    s_lshr_b32 s{sRQ}, s{sG}, 1
    s_and_b32 s{sHH}, s{sG}, 1
    s_and_b32 s{sRB}, s{sSLOT}, 3
    s_lshr_b32 s{sCT}, s{sSLOT}, 2
    s_lshl_b32 s{sBK}, s{sRQ}, 2
    s_add_u32 s{sBK}, s{sBK}, s{sRB}
    s_cmp_gt_u32 s{sCT}, 2
    s_subb_u32 s{sBK}, s{sBK}, 0
    s_and_b32 s{sBK}, s{sBK}, 15""")
    if CFG['cal']: p(f"s_mov_b32 s{sPROF}, 0")
    if CFG['amp']: p(f"s_mov_b32 s{sPROF+2}, 0")
    if CFG['prof']:
        for i in range(1,10): p(f"s_mov_b32 s{sPROF+2*i}, 0")
    p(f"""s_cmp_lt_u32 s{sWAVE}, 4
    s_cbranch_scc1 L_comp""")
def prologue2(comp=0):
    if comp:
        p(f"""s_mov_b32 s{sTAG}, {EPO}
        s_load_dword s{sEP}, s[{sWS}:{sWS+1}], s{sTAG}
        s_load_dwordx2 s[{sWR}:{sWR+1}], s[0:1], 32
        s_load_dwordx2 s[{sOUT}:{sOUT+1}], s[0:1], 64""")
        srd(((sWS,268435456),(sWR,1280),(sOUT,2621440)))
        p(f"""s_mov_b32 s{sLO}, -1
        s_mov_b32 s{sLO+1}, 0
        s_mov_b32 s{sLO+2}, 0xfffff
        s_mov_b32 s{sLO+3}, 0xfffff""")
        return
    p(f"""s_mov_b32 s{sTAG}, {EPO}
    s_load_dword s{sEP}, s[{sWS}:{sWS+1}], s{sTAG}
    s_load_dwordx2 s[{sWO}:{sWO+1}], s[0:1], 16
    s_load_dwordx2 s[{sWR}:{sWR+1}], s[0:1], 32
    s_load_dwordx2 s[{sWG}:{sWG+1}], s[0:1], 40
    s_load_dwordx2 s[{sWU}:{sWU+1}], s[0:1], 48
    s_load_dwordx2 s[{sWD}:{sWD+1}], s[0:1], 56
    s_load_dwordx2 s[{sOUT}:{sOUT+1}], s[0:1], 64""")
    srd(((sWS,268435456),(sWO,819200),(sWR,1280),(sWG,1966080),(sWU,1966080),(sWD,1966080),(sOUT,2621440)))
    p(f"""s_mov_b32 s{sLO}, -1
    s_mov_b32 s{sLO+1}, 0
    s_mov_b32 s{sLO+2}, 0xfffff
    s_mov_b32 s{sLO+3}, 0xfffff""")
def moe_role():
    A=sT+20
    if not CFG['mrm']: p(f"s_mov_b32 s{sMI}, s{sSLOT}"); return
    p(f"""s_lshr_b32 s{A}, s{sSLOT}, 3
    s_sub_u32 s{sMI}, s{sSLOT}, s{A}
    s_sub_u32 s{sMI}, s{sMI}, 1
    s_add_u32 s{A}, s{A}, 28
    s_and_b32 s{A+1}, s{sSLOT}, 7
    s_cselect_b32 s{sMI}, s{sMI}, s{A}""")
def mktag():
    p(f"""s_mul_i32 s{sTAG}, s{sEP}, 0x9e3779b1
    s_add_u32 s{sTAG}, s{sTAG}, 0x7f4a7c15
    s_and_b32 s{sTAG}, s{sTAG}, -16""")
def colbyte(dst, lc):
    t=sT+18
    p(f"""s_mul_i32 s{t}, s{lc}, 52
    s_lshr_b32 s{t}, s{t}, 8
    s_add_u32 s{t}, s{t}, s{sHH}
    s_mul_i32 s{t}, s{t}, 640
    s_lshl_b32 s{dst}, s{lc}, 7
    s_add_u32 s{dst}, s{dst}, s{t}""")

def loader():
    CA_=sT+1; CB_=sT+2; CH=sT+3; XO=sT+4; WO_=sT+5; LB=sT+6; A=sT+7; B=sT+8; OFF=sT+9; SEQ=sT+10
    vX=2; vW=6; vt=10
    p(f"""s_sub_u32 s{HW}, s{sWAVE}, 4
    s_lshl_b32 s{A}, s{sCT}, 1
    s_cmp_gt_u32 s{sCT}, 2
    s_subb_u32 s{A}, s{A}, 0
    s_cmp_lg_u32 s{sCT}, 2
    s_addc_u32 s{B}, s{A}, 0""")
    colbyte(CA_,A); colbyte(CB_,B)
    p(f"""v_lshrrev_b32 v{vt}, 3, v0
    v_mul_u32_u24 v{vX}, 1280, v{vt}
    v_lshrrev_b32 v{vt+1}, 4, v0
    v_and_b32 v{vt+2}, 7, v0
    v_xor_b32 v{vt+2}, v{vt+2}, v{vt+1}
    v_lshl_add_u32 v{vX}, v{vt+2}, 4, v{vX}
    v_xor_b32 v{vX+1}, 64, v{vX}
    v_add_u32 v{vX+1}, {10240-1024}, v{vX+1}
    v_add_u32 v{vX+2}, {2*(10240-1024)}, v{vX}
    v_add_u32 v{vX+3}, {2*(10240-1024)}, v{vX+1}
    v_lshlrev_b32 v{vt+2}, 2, v{vt+1}
    v_and_b32 v{vt+3}, 15, v0
    v_xor_b32 v{vt+2}, v{vt+2}, v{vt+3}
    v_cmp_lt_u32 vcc, 7, v{vt+2}
    v_mov_b32 v{vt+3}, s{CA_}
    v_mov_b32 v{vt+4}, s{CB_}
    v_cndmask_b32 v{vt+3}, v{vt+3}, v{vt+4}, vcc
    v_and_b32 v{vt+2}, 7, v{vt+2}
    v_lshl_add_u32 v{vt+3}, v{vt+2}, 4, v{vt+3}
    v_mul_u32_u24 v{vW}, 3840, v{vt+1}
    v_add_u32 v{vW}, v{vW}, v{vt+3}""")
    for i in range(1,4): p(f"v_add_u32 v{vW+i}, {i*(4*3840-1024)}, v{vW}")
    ta,tc,tg=CFG['rot']
    pk=lambda t: sum(int(v)<<(4*i) for i,v in enumerate(t))
    p(f"""s_and_b32 s{A}, s{sBK}, 3
    s_lshl_b32 s{A}, s{A}, 2
    s_lshr_b32 s{CH}, {pk(ta)}, s{A}
    s_and_b32 s{CH}, s{CH}, 15
    s_lshl_b32 s{A}, s{sCT}, 2
    s_lshr_b32 s{A}, {hex(pk(tc))}, s{A}
    s_and_b32 s{A}, s{A}, 15
    s_add_u32 s{CH}, s{CH}, s{A}
    s_lshr_b32 s{A}, s{sBK}, 2
    s_lshl_b32 s{A}, s{A}, 1
    s_add_u32 s{A}, s{A}, s{sHH}
    s_lshl_b32 s{A}, s{A}, 2
    s_lshr_b32 s{A}, {hex(pk(tg))}, s{A}
    s_and_b32 s{OFF}, s{A}, 15""")
    seqs=CFG['seqs']
    if seqs:
        n=len(seqs)
        p(f"""s_mul_i32 s{A}, s{CH}, {-(-2048//n)}
        s_lshr_b32 s{A}, s{A}, 11
        s_mul_i32 s{A}, s{A}, {n}
        s_sub_u32 s{CH}, s{CH}, s{A}""")
        for i,q in enumerate(seqs):
            assert sorted(q)==list("0123456789")
            if i: p(f"s_cmp_eq_u32 s{CH}, {i}\ns_cselect_b32 s{SEQ}, {hex(pk(q[:8]))}, s{SEQ}\ns_cselect_b32 s{SEQ+1}, {hex(pk(q[8:]))}, s{SEQ+1}")
            else: p(f"s_mov_b32 s{SEQ}, {hex(pk(q[:8]))}\ns_mov_b32 s{SEQ+1}, {hex(pk(q[8:]))}")
    else:
        p(f"""s_add_u32 s{CH}, s{CH}, s{OFF}
    s_mul_i32 s{A}, s{CH}, 205
    s_lshr_b32 s{A}, s{A}, 11
    s_mul_i32 s{A}, s{A}, 10
    s_sub_u32 s{CH}, s{CH}, s{A}""")
    p(f"""
    s_lshl_b32 s{A}, s{sBK}, 2
    s_add_u32 s{A}, s{A}, s{HW}
    s_mul_i32 s{XO}, s{A}, {32*1280}
    s_mul_i32 s{WO_}, s{HW}, {16*3840}
    s_lshl_b32 s{LB}, s{HW}, 12""")
    CHW=SEQ
    p(f"s_mov_b32 s{CHW}, s{CH}")
    nx=dict(x=0,w=0)
    def issue(order,lim):
        global OPS
        for k in order:
            c=nx[k]; nx[k]+=1; assert c<=min(9,lim)
            slot=(c%4)*32768; ch=CH if k=='x' else CHW
            if k=='x': p(f"""s_lshl_b32 s{A}, s{ch}, 7
                s_add_u32 m0, s{LB}, {slot}
                s_add_u32 s{A}, s{A}, s{XO}""")
            else: p(f"""s_mul_i32 s{A}, s{ch}, {64*3840}
                s_add_u32 m0, s{LB}, {slot+16384}
                s_add_u32 s{A}, s{A}, s{WO_}""")
            for i in range(4):
                if k=='x': p(f"buffer_load_dwordx4 v{vX+i}, {S4(sX)}, s{A} offen offset:{i*1024} {CFG['xpol'] if c<CFG['xnt'] else ''} lds")
                else: p(f"buffer_load_dwordx4 v{vW+i}, {S4(sW)}, s{A} offen offset:{i*1024} {'nt' if c<CFG['wnt'] else CFG['wpol']} lds")
            p(f"""s_add_u32 s{ch}, s{ch}, 1
            s_cmp_eq_u32 s{ch}, 10
            s_cselect_b32 s{ch}, 0, s{ch}""")
            OPS+=[c]*4
    ORD=CFG['ord'].split(',')
    srd(((sX,2621440),(sW,2457600)))
    p("s_waitcnt lgkmcnt(0)")
    STAMP('i0')
    for c in range(1):
        issue(ORD[0],3); STAMP('i%d'%(c+1))
        if c==0:
            prologue2()
            p(f"""v_cmp_lt_u32 vcc, 7, v0
            v_lshlrev_b32 v{vt}, 4, v0
            v_add_u32 v{vt}, {L_FLG}, v{vt}
            v_cndmask_b32 v{vt+2}, 0, -1, vcc
            v_cndmask_b32 v{vt+3}, 0, -1, vcc
            v_cndmask_b32 v{vt+4}, 0, -1, vcc
            v_cndmask_b32 v{vt+5}, 0, -1, vcc
            ds_write_b128 v{vt}, v[{vt+2}:{vt+5}]""")
            early()
    p("s_waitcnt lgkmcnt(0)")
    mktag()
    stats_setup()
    p(f"s_cmp_ge_u32 s{HW}, 2\ns_cbranch_scc1 L_helperB")
    nx0=dict(nx); ops0=list(OPS)
    def steps(hook,isB):
        global OPS
        nx.update(nx0); OPS=list(ops0)
        STAMP('i1s')
        issue(ORD[1],3)
        STAMP('i1e')
        if CFG['hclr']: hclear_setup(isB)
        if CFG['smw'] or CFG['smo']: sm_setup()
        for c in range(8):
            sd=CFG['sdef']
            if c==0 and -1 in sd:
                assert ORD[0][0]=='x'; p(f"s_waitcnt vmcnt({len(OPS)-4})")
                STAMP('x0')
                fill=stats(0)
                for k in range(4):
                    if sd[k]==-1: p(fill[k])
                if max(sd)==-1: stats_red()
            vmwait(c)
            p("s_barrier")
            STAMP('ld%d'%c)
            if c==0 and -1 not in sd: fill=stats(0)
            if c==CFG['stg'] and CFG['stb']: stats_get(); hook(100)
            if CFG['hclr']: hclear(c,isB)
            issue(ORD[2+c],c+3)
            if c==0: p("s_waitcnt lgkmcnt(0)")
            for k in range(4):
                if sd[k]==c: p(fill[k])
            if c==max(0,max(sd)):
                if max(sd)>=0: stats_red()
                stats_pub(); OPS.append('stw')
            if c==CFG['stg'] and not CFG['stb']: stats_get(); hook(100)
            hook(c)
            sm_touch(c,isB)
        assert nx==dict(x=10,w=10)
    return steps
aS=44; dS=64; sacc=60; sone=43; sDBL=sDBG; sSTP=sDBG+1
def stats_setup():
    vt=10
    tc=[int(x) for x in CFG['rot'][1]]
    assert not CFG['seqs'] and sorted(tc+[(tc[2]+1)%10,(tc[2]+2)%10])==list(range(10))
    p(f"""s_lshl_b32 s{sT+16}, s{HW}, 12
    v_bfe_u32 v{vt}, v0, 1, 3
    v_lshrrev_b32 v{vt+1}, 5, v0
    v_lshlrev_b32 v{vt+1}, 2, v{vt+1}
    v_xor_b32 v{vt}, v{vt}, v{vt+1}
    v_lshlrev_b32 v{vt}, 4, v{vt}
    v_and_b32 v{vt+1}, 31, v0
    v_lshl_add_u32 v{vt}, v{vt+1}, 7, v{vt}
    v_add_u32 v{aS}, s{sT+16}, v{vt}
    v_mov_b32 v{sone}, 0x3f803f80
    s_and_b32 s{sSTP}, s{sBK}, 12
    s_add_u32 s{sSTP}, s{sSTP}, s{sBK}
    s_lshl_b32 s{sT+16}, s{sHH}, 2
    s_add_u32 s{sSTP}, s{sSTP}, s{sT+16}
    s_lshl_b32 s{sSTP}, s{sSTP}, 14
    s_lshl_b32 s{sT+16}, s{HW}, 9
    s_add_u32 s{sSTP}, s{sSTP}, s{sT+16}
    s_add_u32 s{sSTP}, s{sSTP}, {STP}
    v_lshrrev_b32 v{vt}, 5, v0
    v_lshlrev_b32 v{vt}, 11, v{vt}
    v_lshl_add_u32 v{aS+4}, v{vt+1}, 4, v{vt}
    s_lshl_b32 s{sT+16}, s{sCT}, 11
    s_cmp_eq_u32 s{sCT}, 2
    s_cselect_b32 s{sT+16}, {STX-STP}, s{sT+16}
    v_lshl_add_u32 v{aS+5}, v{vt+1}, 4, s{sT+16}""")
    for i in range(1,4): p(f"v_xor_b32 v{aS+i}, {16*i}, v{aS}")
    for i in range(4): p(f"v_mov_b32 v{sacc+i}, 0")
    if CFG['smode'] in ('dotx','dotc'):
        for i in range(2*CFG['nacc']): p(f"v_mov_b32 v{102+i}, 0")
def stats(c):
    if 'nostats' in CFG['xp']: return ['s_nop 0']*4
    for i in range(4): p(f"ds_read_b128 {vr(dS+4*i,4)}, v{aS+i} offset:{c*32768}")
    L=[]
    for i in range(4):
        g=f"s_waitcnt lgkmcnt({3-i})"
        for j in range(4):
            r=dS+4*i+j
            u=80+2*(j&1)
            if CFG['smode']=='dotx':
                a=102+2*((4*i+j)%CFG['nacc']); g+=f"\nv_dot2_f32_bf16 v{a}, v{r}, v{sone}, v{a}\nv_dot2_f32_bf16 v{a+1}, v{r}, v{r}, v{a+1}"
            elif CFG['smode']=='dotc':
                a=102+2*((4*i+j)%CFG['nacc']); g+=f"\nv_dot2c_f32_bf16 v{a}, v{r}, v{sone}\nv_dot2c_f32_bf16 v{a+1}, v{r}, v{r}"
            elif CFG['smode']=='dot': g+=f"\nv_dot2_f32_bf16 v{sacc+(j&1)}, v{r}, v{sone}, v{sacc+(j&1)}\nv_dot2_f32_bf16 v{sacc+2+(j&1)}, v{r}, v{r}, v{sacc+2+(j&1)}"
            elif CFG['smode']=='valu': g+=f"\nv_lshlrev_b32 v{u}, 16, v{r}\nv_and_b32 v{u+1}, 0xffff0000, v{r}\nv_add_f32 v{sacc}, v{sacc}, v{u}\nv_fmac_f32 v{sacc+2}, v{u}, v{u}\nv_add_f32 v{sacc+1}, v{sacc+1}, v{u+1}\nv_fmac_f32 v{sacc+3}, v{u+1}, v{u+1}"
            elif CFG['smode']=='pk': g+=f"\nv_lshlrev_b32 v{u}, 16, v{r}\nv_and_b32 v{u+1}, 0xffff0000, v{r}\nv_pk_add_f32 v[{sacc}:{sacc+1}], v[{sacc}:{sacc+1}], v[{u}:{u+1}]\nv_pk_fma_f32 v[{sacc+2}:{sacc+3}], v[{u}:{u+1}], v[{u}:{u+1}], v[{sacc+2}:{sacc+3}]"
        L.append(g)
    return L
def stats_red():
    t=sacc
    p(f"""s_nop 1
    v_add_f32 v{t}, v{t}, v{t+1}
    v_add_f32 v{t+1}, v{t+2}, v{t+3}
    v_mov_b32 v{t+2}, s{sTAG}
    s_nop 0
    v_permlane32_swap_b32 v{t}, v{t+1}
    s_nop 0
    v_add_f32 v{t}, v{t}, v{t+1}
    v_mov_b32 v{t+1}, v{t}
    s_nop 1
    v_permlane32_swap_b32 v{t}, v{t+1}""")
def stats_pub():
    t=sacc
    p(f"""s_mov_b64 exec, s[{sLO}:{sLO+1}]
    buffer_store_dwordx4 {vr(t,4)}, v{aS+5}, {S4(sWS)}, s{sSTP} offen sc1
    s_mov_b64 exec, -1""")
def stats_ld():
    return "\n".join(f"s_add_u32 s{sSTP+1}, s{sSTP}, {4096*i}\nbuffer_load_dwordx4 {vr(dS+4*i,4)}, v{aS+4}, {S4(sWS)}, s{sSTP+1} offen sc1" for i in range(4))
def stats_get():
    p(stats_ld()); OPS.extend(['stp']*4)
def stats_fin(t,B):
    vmwait('stp')
    lp=p.lab("stl"); ok=p.lab("stok"); rt=p.lab("strt")
    p(f"""s_mov_b32 s{B}, {SPIN}
    {lp}:
    v_xor_b32 v{t}, v{dS+2}, v{dS+6}
    v_xor_b32 v{t+1}, v{dS+10}, v{dS+14}
    v_xor_b32 v{t+2}, s{sTAG}, v{dS+2}
    v_xor_b32 v{t+3}, s{sTAG}, v{dS+10}
    v_or3_b32 v{t}, v{t}, v{t+1}, v{t+2}
    v_or_b32 v{t}, v{t}, v{t+3}
    v_cmp_ne_u32 vcc, 0, v{t}
    v_add_f32 v{t+1}, v{dS}, v{dS+4}
    v_add_f32 v{t+2}, v{dS+1}, v{dS+5}
    s_cbranch_vccnz {rt}
    {ok}:""")
    n0=len(p.L)
    p(f"{rt}:"); spin(B,lp,ok,1); p(stats_ld()); p(f"s_waitcnt vmcnt(0)\ns_branch {lp}")
    COLD.append("\n".join(p.L[n0:])); del p.L[n0:]
    p(f"""v_add_f32 v{t+3}, v{dS+8}, v{dS+12}
    v_add_f32 v{t+4}, v{dS+9}, v{dS+13}
    v_add_f32 v{t+1}, v{t+1}, v{t+3}
    v_add_f32 v{t+2}, v{t+2}, v{t+4}
    s_nop 1
    v_permlane32_swap_b32 v{t+1}, v{t+2}
    s_nop 0
    v_add_f32 v{t+1}, v{t+1}, v{t+2}
    v_mul_f32 v{t+1}, {1/640!r}, v{t+1}
    v_mov_b32 v{t+2}, v{t+1}
    s_nop 1
    v_permlane32_swap_b32 v{t+1}, v{t+2}
    s_nop 0
    v_fma_f32 v{t+2}, -v{t+1}, v{t+1}, v{t+2}
    v_max_f32 v{t+2}, 0, v{t+2}""")
    bf16r(t+2,t+2)
    p(f"v_add_f32 v{t+2}, 0x3727c5ac, v{t+2}")
    bf16r(t+2,t+2)
    p(f"""v_sqrt_f32 v{t+2}, v{t+2}
    v_xor_b32 v{t+1}, 0x80000000, v{t+1}""")
    bf16r(t+2,t+2)
    p(f"""v_rcp_f32 v{t+5}, v{t+2}
    v_cvt_pk_bf16_f32 v{t+4}, v{t+1}, v{t+1}
    v_and_b32 v{t+3}, 31, v0
    s_lshl_b32 s{B}, s{HW}, 8
    s_add_u32 s{B}, s{B}, {L_SA}
    v_lshl_add_u32 v{t+1}, v{t+3}, 3, s{B}
    s_lshl_b32 s{B}, s{HW}, 7
    s_add_u32 s{B}, s{B}, {L_SR}
    v_lshl_add_u32 v{t+2}, v{t+3}, 2, s{B}
    ds_write_b64 v{t+1}, v[{t+4}:{t+5}]
    ds_write_b32 v{t+2}, v{t+5}""")
vPT=21; vDUM=39
HS=sT+12; HA=28
def early():
    A=sT+20; B=sT+21; vt=10
    moe_role()
    p(f"""s_lshl_b32 s{A}, s{sSLOT}, 2
    s_add_u32 s{A}, s{A}, s{HW}
    s_mul_i32 s{A}, s{A}, 60
    v_min_u32 v{vt}, 59, v0
    v_add_u32 v{vt}, s{A}, v{vt}
    v_mul_u32_u24 v{vt+1}, 6554, v{vt}
    v_lshrrev_b32 v{vt+1}, 20, v{vt+1}
    v_mul_u32_u24 v{vt+2}, 160, v{vt+1}
    v_sub_u32 v{vt}, v{vt}, v{vt+2}
    v_lshlrev_b32 v{vt}, 7, v{vt}
    v_cmp_gt_u32 vcc, 32, v{vt+1}
    v_and_b32 v{vt+2}, 1, v{vt+1}
    v_mul_u32_u24 v{vt+2}, 20480, v{vt+2}
    v_lshrrev_b32 v{vt+3}, 4, v{vt+1}
    v_mul_u32_u24 v{vt+4}, 10240, v{vt+3}
    s_mul_i32 s{A}, s{sRQ}, 40960
    v_add3_u32 v{vt+2}, v{vt+2}, v{vt}, s{A}
    v_sub_u32 v{vt+2}, v{vt+2}, v{vt+4}
    v_add_u32 v{vt+4}, 163840, v{vt+2}
    v_min_u32 v{vt+2}, v{vt+2}, v{vt+4}
    v_mul_u32_u24 v{vt+3}, {KB}, v{vt+3}
    v_bfe_u32 v{vt+4}, v{vt+1}, 1, 3
    v_mul_u32_u24 v{vt+4}, 163840, v{vt+4}
    v_add3_u32 v{vt+2}, v{vt+2}, v{vt+3}, v{vt+4}
    s_mul_i32 s{A}, s{sRQ}, 20480
    s_sub_u32 s{A}, s{A}, 5120
    v_add_u32 v{vt}, s{A}, v{vt}
    v_add_u32 v{vt+4}, 81920, v{vt}
    v_min_u32 v{vt}, v{vt}, v{vt+4}
    v_and_b32 v{vt+3}, 15, v{vt+1}
    v_mul_u32_u24 v{vt+3}, 81920, v{vt+3}
    s_mov_b32 s{A}, {VB}
    v_add3_u32 v{vt+3}, v{vt+3}, v{vt}, s{A}
    v_cndmask_b32 v{vt+2}, v{vt+3}, v{vt+2}, vcc
    s_mul_i32 s{A}, s{sHH}, {8*163840}
    v_add_u32 v{vPT}, s{A}, v{vt+2}
""")
    if CFG['honly']:
        p(f"""s_lshl_b32 s{A}, s{sSLOT}, 2
        s_add_u32 s{A}, s{A}, s{HW}
        s_mul_i32 s{A}, s{A}, 60
        v_min_u32 v{vt}, 59, v0
        v_add_u32 v{vt}, s{A}, v{vt}
        v_mul_u32_u24 v{vt+2}, 160, v{vt+1}
        v_sub_u32 v{vt}, v{vt}, v{vt+2}
        v_and_b32 v{vt+2}, 1, v{vt+1}
        v_mul_u32_u24 v{vt+2}, 160, v{vt+2}
        v_add_u32 v{vt+2}, v{vt+2}, v{vt}
        v_lshlrev_b32 v{vt}, 1, v{vt}
        v_cndmask_b32 v{vt}, v{vt}, v{vt+2}, vcc
        s_cmp_lt_u32 s{sRQ}, 3
        s_cselect_b32 s{A}, 0, 80
        s_add_u32 s{A}, s{A}, 160
        v_subrev_u32 v{vt}, 80, v{vt}
        v_cmp_le_u32 vcc, s{A}, v{vt}
        v_cmp_lt_u32 s[{A}:{A+1}], 15, v{vt+1}
        v_mov_b32 v{vt+2}, {KH-KB}
        s_and_b64 vcc, vcc, s[{A}:{A+1}]
        s_nop 0
        v_cndmask_b32 v{vt+2}, 0, v{vt+2}, vcc
        v_add_u32 v{vPT}, v{vPT}, v{vt+2}""")
    if CFG['ht']: p(f"""s_lshl_b32 s{A}, s{sSLOT}, 2
    s_add_u32 s{A}, s{A}, s{HW}
    s_mul_i32 s{B}, s{A}, 20
    v_min_u32 v{vt}, 19, v0
    v_add_u32 v{vt}, s{B}, v{vt}
    v_mul_u32_u24 v{vt+1}, 13108, v{vt}
    v_lshrrev_b32 v{vt+1}, 20, v{vt+1}
    v_mul_u32_u24 v{vt+2}, 80, v{vt+1}
    v_sub_u32 v{vt}, v{vt}, v{vt+2}
    v_lshlrev_b32 v{vt}, 7, v{vt}
    v_cmp_gt_u32 vcc, 16, v{vt+1}
    v_and_b32 v{vt+2}, 1, v{vt+1}
    v_mul_u32_u24 v{vt+2}, 10240, v{vt+2}
    v_lshrrev_b32 v{vt+3}, 1, v{vt+1}
    v_mul_u32_u24 v{vt+3}, 163840, v{vt+3}
    s_mul_i32 s{B}, s{sRQ}, 40960
    s_add_u32 s{B}, s{B}, {KH+20480}
    v_add3_u32 v{vt+2}, v{vt+2}, v{vt+3}, s{B}
    v_and_b32 v{vt+3}, 15, v{vt+1}
    v_mul_u32_u24 v{vt+3}, 81920, v{vt+3}
    s_mul_i32 s{B}, s{sRQ}, 20480
    s_add_u32 s{B}, s{B}, {VH+10240}
    v_add_u32 v{vt+3}, s{B}, v{vt+3}
    v_cndmask_b32 v{vt+2}, v{vt+3}, v{vt+2}, vcc
    s_mul_i32 s{B}, s{sHH}, {8*163840}
    v_add3_u32 v{vHT}, v{vt}, v{vt+2}, s{B}
    s_lshl_b32 s{B}, s{sG}, 7
    s_add_u32 s{A}, s{A}, s{B}
    s_lshl_b32 s{A}, s{A}, 7
    s_add_u32 s{A}, s{A}, {FH}
    v_mov_b32 v{vt}, s{A}
    v_cmp_lt_u32 vcc, 19, v0
    s_nop 1
    v_cndmask_b32 v{vHT}, v{vHT}, v{vt}, vcc""")
    nsm=sum(CFG['npf']); per=(100-5*nsm)//2
    if per>0:
        p(f"""s_mul_i32 s{A}, s{sG}, 5
        s_lshr_b32 s{A}, s{A}, 1
        s_mul_i32 s{A}, s{A}, 5
        s_lshr_b32 s{B}, s{HW}, 1
        s_mul_i32 s{B}, s{B}, {per}
        s_add_u32 s{A}, s{A}, s{B}
        s_add_u32 s{A}, s{A}, {5*nsm}
        v_min_u32 v{vt}, {per-1}, v0
        v_add_u32 v{vt}, s{A}, v{vt}
        v_subrev_u32 v{vt+1}, 100, v{vt}
        v_min_u32 v{vt}, v{vt}, v{vt+1}
        s_lshl_b32 s{A}, s{sSLOT}, 1
        s_and_b32 s{B}, s{HW}, 1
        s_add_u32 s{A}, s{A}, s{B}
        s_mul_i32 s{A}, s{A}, 12800
        v_lshl_add_u32 v{vTW}, v{vt}, 7, s{A}""")
    ge=p.lab("mtge"); jn=p.lab("mtj")
    p(f"""v_min_u32 v{vt}, 59, v0
    v_mul_u32_u24 v{vt+1}, 86, v{vt}
    v_lshrrev_b32 v{vt+1}, 8, v{vt+1}
    v_mul_u32_u24 v{vt+1}, {3072-384}, v{vt+1}
    v_lshl_add_u32 v{vt}, v{vt}, 7, v{vt+1}
    s_mul_i32 s{A}, s{sSLOT}, {20*3072}
    s_mul_i32 s{B}, s{sG}, 384
    s_add_u32 s{A}, s{A}, s{B}
    v_add_u32 v{vTM}, s{A}, v{vt}
    s_sub_u32 s{A}, s{sMI}, {0 if CFG['dw3'] else 17}
    s_lshl_b32 s{A}, s{A}, {1 if CFG['dw3'] else 2}
    s_add_u32 s{A}, s{A}, s{HW}
    s_mul_i32 s{A}, s{A}, {24 if CFG['dw3'] else 35 if CFG['dtn'] else 26}
    v_min_u32 v{vt}, {47 if CFG['dw3'] else 63 if CFG['dtn'] else 51}, v0
    v_lshrrev_b32 v{vt+1}, 1, v{vt}
    v_add_u32 v{vt+1}, s{A}, v{vt+1}
    v_min_u32 v{vt+1}, 1535, v{vt+1}
    v_mul_u32_u24 v{vt+1}, 1280, v{vt+1}
    v_and_b32 v{vt}, 1, v{vt}
    v_lshl_add_u32 v{vt}, v{vt}, 7, v{vt+1}
    s_mul_i32 s{B}, s{sG}, 160
    s_and_b32 s{B}, s{B}, -128
    v_add_u32 v{vTD}, s{B}, v{vt}""")
    if CFG['dtn']: p(f"""s_add_u32 s{A}, s{A}, 32
    v_min_u32 v{vt}, 5, v0
    v_lshrrev_b32 v{vt+1}, 1, v{vt}
    v_add_u32 v{vt+1}, s{A}, v{vt+1}
    v_min_u32 v{vt+1}, 1535, v{vt+1}
    v_mul_u32_u24 v{vt+1}, 1280, v{vt+1}
    v_and_b32 v{vt}, 1, v{vt}
    v_lshl_add_u32 v{vt}, v{vt}, 7, v{vt+1}
    v_add_u32 v{vTD2}, s{B}, v{vt}""")
vTD=25; vHT=26; vTD2=27
vTW=22; vTM=24
def touch(va,srd_,pair,pol=''):
    if pair:
        p(f"buffer_load_dword v{vDUM}, v{va}, {S4(srd_)}, 0 offen nt\nbuffer_load_dword v{vDUM}, v{va}, {S4(srd_)}, 0 offen offset:64")
        return 2
    p(f"buffer_load_dword v{vDUM}, v{va}, {S4(srd_)}, 0 offen {pol}")
    return 1
def wtouch(win,isB):
    n=0
    if CFG['wtw']==win and 100-5*sum(CFG['npf'])>0:
        n+=touch(vTW,sWO,CFG['wpair'])
    if CFG['mtw']==win:
        if not isB:
            u=p.lab("tu"); j=p.lab("tj")
            p(f"s_cmp_eq_u32 s{HW}, 0\ns_cbranch_scc0 {u}")
            touch(vTM,sWG,CFG['mpair'])
            p(f"s_branch {j}\n{u}:")
            n+=touch(vTM,sWU,CFG['mpair'])
            p(f"{j}:")
    return n
def qkv_touch():
    if CFG['pt']==99: return
    if CFG['ht']==1: OPS.extend(['pt']*touch(vHT,sWS,0,''))
    OPS.extend(['pt']*touch(vPT,sWS,CFG['qpair'],CFG['tpol']))
    if CFG['ht']==2: OPS.extend(['pt']*touch(vHT,sWS,0,''))
vH=16
OPS=[]
def vmwait(*tags):
    last=max(i for i,t in enumerate(OPS) if t in tags)
    n=len(OPS)-1-last; assert n<64
    p(f"s_waitcnt vmcnt({n})")
HW=sT
def spin(cnt,lp,ok,sleep=0):
    p(f"s_sub_u32 s{cnt}, s{cnt}, 1\ns_cbranch_scc1 {ok}")
    if sleep: p(f"s_sleep {sleep}")
def lds_wait(addr_v,tmp,cnt,cmp,val,sleep=1):
    lp=p.lab("lw"); ok=p.lab("lwok")
    p(f"""s_mov_b32 s{cnt}, {SPIN*4}
    {lp}:
    ds_read_b32 v{tmp}, v{addr_v}
    s_waitcnt lgkmcnt(0)
    v_cmp_{cmp}_u32 vcc, {val}, v{tmp}
    s_nop 0
    s_cbranch_vccz {ok}""")
    spin(cnt,lp,ok,sleep)
    p(f"s_branch {lp}\n{ok}:")
sHL,sHF,sHO,sPH,sHD,sT0=range(sT+1,sT+7)
def att_ids():
    p(f"""s_lshr_b32 s{sHL}, s{sSLOT}, 1
    s_and_b32 s{sHF}, s{sSLOT}, 1
    s_and_b32 s{sHO}, s{sHL}, 1
    s_lshr_b32 s{sPH}, s{sHL}, 1
    s_lshl_b32 s{sHD}, s{sHH}, 3
    s_add_u32 s{sPH}, s{sPH}, s{sHD}
    s_lshl_b32 s{sHD}, s{sHH}, 4
    s_add_u32 s{sHD}, s{sHD}, s{sHL}
    s_lshl_b32 s{sT0}, s{sRQ}, 1
    s_add_u32 s{sT0}, s{sT0}, s{sHF}
    s_lshl_b32 s{sT0}, s{sT0}, 3""")
def flag_addr(vd,vt,withq,A,B,C):
    flag_nib(withq,A,B,C)
    p(f"""v_and_b32 v{vt}, 60, v0
    v_min_u32 v{vt}, 20, v{vt}
    v_bfe_u32 v{vt}, s{A}, v{vt}, 4
    v_and_b32 v{vd}, 3, v0
    v_lshlrev_b32 v{vd}, 2, v{vd}
    v_lshl_add_u32 v{vd}, v{vt}, 7, v{vd}""")
def flag_nib(withq,A,B,C):
    p(f"""s_lshr_b32 s{A}, s{sHL}, 1
    s_mul_i32 s{A}, s{A}, 5
    s_lshl_b32 s{B}, s{sHO}, 1
    s_add_u32 s{A}, s{A}, s{B}
    s_add_u32 s{B}, s{A}, 2
    s_lshr_b32 s{A}, s{A}, 3
    s_lshr_b32 s{B}, s{B}, 3
    s_lshl_b32 s{B}, s{B}, 4
    s_or_b32 s{A}, s{A}, s{B}
    s_add_u32 s{B}, s{A}, 0x55
    s_lshl_b32 s{C}, s{B}, 8
    s_or_b32 s{A}, s{C}, s{A if withq else B}
    s_mul_i32 s{B}, s{sHL}, 20
    s_add_u32 s{C}, s{B}, 19
    s_lshr_b32 s{B}, s{B}, 6
    s_lshr_b32 s{C}, s{C}, 6
    s_lshl_b32 s{C}, s{C}, 4
    s_or_b32 s{B}, s{B}, s{C}
    s_add_u32 s{B}, s{B}, 0xaa
    s_lshl_b32 s{B}, s{B}, 16
    s_or_b32 s{A}, s{A}, s{B}""")
def flag_poll(va,vt,soff,cnt,first=True,sleep=0):
    lp=p.lab("fp"); ok=p.lab("fpok");
    p(f"s_mov_b32 s{cnt}, {SPIN}")
    if not first:
        md=p.lab("fpm"); p(f"s_branch {md}")
    p(f"""{lp}:
    buffer_load_dword v{vt}, v{va}, {S4(sWS)}, s{soff} offen sc1""")
    if not first: p(f"{md}:")
    p(f"""s_waitcnt vmcnt(0)
    v_cmp_ne_u32 vcc, s{sTAG}, v{vt}
    s_nop 0
    s_cbranch_vccz {ok}""")
    spin(cnt,lp,ok,sleep)
    p(f"s_branch {lp}\n{ok}:")
def flag_poll2(va,vt,soff,cnt,n=2,gap=0):
    lp=p.lab("fq"); ok=p.lab("fqok")
    ld=lambda i: f"buffer_load_dword v{vt+i}, v{va}, {S4(sWS)}, s{soff} offen sc1"
    p(f"s_mov_b32 s{cnt}, {SPIN}")
    for i in range(n-1):
        p(ld(i))
        if gap: p(f"s_sleep {gap}")
    p(f"{lp}:")
    for i in range(n):
        p(f"""{ld((i+n-1)%n)}
        s_waitcnt vmcnt({n-1})
        v_cmp_ne_u32 vcc, s{sTAG}, v{vt+i}
        s_nop 0
        s_cbranch_vccz {ok}""")
    spin(cnt,lp,ok)
    p(f"s_branch {lp}\n{ok}:")
def kv_dma(aLin,aTl,sK,sV,sL,A,B,sHO=sHO):
    p(f"""s_mul_i32 s{A}, s{sHO}, 1536
    s_add_u32 s{A}, s{A}, s{sK}
    s_mov_b32 m0, s{sL}
    s_add_u32 s{B}, s{A}, 1536
    buffer_load_dwordx4 v{aLin}, {S4(sWS)}, s{A} offen {CFG['ldp']} lds
    buffer_load_dwordx4 v{aLin}, {S4(sWS)}, s{B} offen offset:1024 {CFG['ldp']} lds
    s_sub_u32 s{A}, s{sK}, 2048
    s_sub_u32 s{B}, s{sV}, 3072
    buffer_load_dwordx4 v{aTl}, {S4(sWS)}, s{A} offen offset:2048 {CFG['ldp']} lds
    buffer_load_dwordx4 v{aLin}, {S4(sWS)}, s{B} offen offset:3072 {CFG['ldp']} lds
    s_add_u32 m0, s{sL}, 4096
    s_add_u32 s{B}, s{sV}, 1024
    buffer_load_dwordx4 v{aLin}, {S4(sWS)}, s{B} offen {CFG['ldp']} lds
    s_mov_b64 exec, s[{sLO}:{sLO+1}]
    buffer_load_dwordx4 v{aLin}, {S4(sWS)}, s{B} offen offset:1024 {CFG['ldp']} lds
    s_mov_b64 exec, -1""")
def kv_addr(aLin,aTl,t):
    p(f"""v_lshlrev_b32 v{aLin}, 4, v0
    v_lshrrev_b32 v{t}, 5, v0
    v_mul_u32_u24 v{t}, {2560-512}, v{t}
    v_add3_u32 v{aTl}, v{aLin}, v{t}, s{sK1024}""")
sK1024=sT+21

def halo_cond(A,B):
    p(f"""s_lshr_b32 s{A}, 0x8ccc, s{sBK}
    s_cmp_gt_u32 s{sCT}, 2
    s_cselect_b32 s{A}, s{A}, 0
    s_and_b32 s{A}, s{A}, 1""")
def halo_flag(vt,A,B,C):
    sk=p.lab("nohalo")
    halo_cond(A,B)
    p(f"""s_cbranch_scc0 {sk}
    s_lshl_b32 s{A}, s{sCT}, 1
    s_add_u32 s{A}, s{A}, s{HW}
    s_sub_u32 s{A}, s{A}, 3
    s_lshl_b32 s{C}, s{sG}, 4
    s_add_u32 s{A}, s{A}, s{C}
    s_lshl_b32 s{A}, s{A}, 2
    s_add_u32 s{A}, s{A}, s{sRB}
    s_lshl_b32 s{A}, s{A}, 8
    s_add_u32 s{A}, s{A}, {FH}
    s_lshl_b32 s{B}, s{HW}, 2
    s_add_u32 s{B}, s{B}, {F_STG-8}
    v_mov_b32 v{vt}, s{B}
    v_lshlrev_b32 v{vt+2}, 7, v0
    v_mov_b32 v{vt+3}, s{sTAG}""")
    lds_wait(vt,vt+1,C,'gt',2,0)
    p(f"""s_mov_b64 exec, 3
    buffer_store_dword v{vt+3}, v{vt+2}, {S4(sWS)}, s{A} offen sc1
    s_mov_b64 exec, -1""")
    STAMP('halo')
    p(f"{sk}:")
def halo_copy(vt,A,B,C,mid):
    sk=p.lab("nohalo"); jn=p.lab("halo_j"); D=168; sD=sT+12; sFH=sT+13
    p(f"s_mov_b32 s{sFH}, 0")
    halo_cond(A,B)
    p(f"""s_cbranch_scc0 {sk}
    s_lshl_b32 s{A}, s{sCT}, 1
    s_add_u32 s{A}, s{A}, s{HW}
    s_sub_u32 s{A}, s{A}, 3
    s_cmp_lt_u32 s{A}, 10
    s_cselect_b32 s{sD}, 1, 0
    s_lshl_b32 s{sD}, 1280, s{sD}
    s_lshl_b32 s{C}, s{sG}, 4
    s_add_u32 s{A}, s{A}, s{C}
    s_lshl_b32 s{A}, s{A}, 2
    s_add_u32 s{A}, s{A}, s{sRB}
    s_lshl_b32 s{A}, s{A}, 8
    s_add_u32 s{sFH}, s{A}, {FH}
    s_lshl_b32 s{B}, s{HW}, 2
    s_add_u32 s{B}, s{B}, {F_STG-8}
    v_mov_b32 v{vt}, s{B}
    s_mul_i32 s{B}, s{HW}, {2*9216}
    s_add_u32 s{B}, s{B}, {L_WO-4*9216}
    v_lshl_add_u32 v{vt+2}, v0, 4, s{B}
    v_mov_b32 v{vt+3}, {F_HR}
    v_mov_b32 v{vt+4}, 1""")
    lds_wait(vt,vt+1,C,'gt',2,0)
    STAMP('hs1')
    for wr in range(2):
        for i in range(9): p(f"ds_read_b128 {vr(D+36*wr+4*i,4)}, v{vt+2} offset:{wr*9216+i*1024}")
        if wr==0: p("s_waitcnt lgkmcnt(6)")
    p(f"v_add_u32 v{vt}, 8, v{vt}")
    lds_wait(vt,vt+1,C,'gt',2,0)
    STAMP('hs2')
    for wr in range(2):
        for i in range(8): p(f"buffer_store_dwordx4 {vr(D+36*wr+4*i,4)}, v{D+36*wr+32+(i&3)}, {S4(sWS)}, {'s%d'%sD if i>>2 else 0} offen sc1")
    p(f"""s_mov_b64 exec, 1
    ds_add_u32 v{vt+3}, v{vt+4}
    s_mov_b64 exec, -1""")
    p(f"{sk}:")
    mid()
    p(f"""s_cmp_eq_u32 s{sFH}, 0
    s_cbranch_scc1 {jn}
    v_mov_b32 v{vt+2}, 0
    v_mov_b32 v{vt+4}, s{sTAG}
    s_waitcnt vmcnt(0)
    s_mov_b64 exec, 1
    buffer_store_dword v{vt+4}, v{vt+2}, {S4(sWS)}, s{sFH} offen sc1
    s_mov_b64 exec, -1""")
    STAMP('halo')
    lds_wait(vt+3,vt+1,C,'gt',2,0)
    p(f"{jn}:")
def own_setup(aF2,vt):
    A=sT+7; B=sT+8; sF,sK,sV,sL=range(sT+12,sT+16)
    flag_addr(aF2,vt,1,A,B,sT+18)
    p(f"""s_lshl_b32 s{sF}, s{sG}, 11
    s_lshl_b32 s{A}, s{sHF}, 4
    s_add_u32 s{sF}, s{sF}, s{A}
    s_add_u32 s{sF}, s{sF}, {FL}
    s_lshl_b32 s{A}, s{HW}, 1
    s_add_u32 s{A}, s{A}, s{sT0}
    s_mul_i32 s{sK}, s{A}, 2560
    s_mul_i32 s{sV}, s{A}, 1280
    s_mul_i32 s{A}, s{sPH}, {64*2560}
    s_add_u32 s{sK}, s{sK}, s{A}
    s_add_u32 s{sK}, s{sK}, {KB}
    s_mul_i32 s{A}, s{sHD}, 81920
    s_add_u32 s{sV}, s{sV}, s{A}
    s_add_u32 s{sV}, s{sV}, {VB}
    s_mul_i32 s{sL}, s{HW}, 5632
    s_add_u32 s{sL}, s{sL}, {L_KV+4*5632}""")
def own_kv(aLin,aTl,aF2,vt,sHO_):
    A=sT+7; B=sT+8; sF,sK,sV,sL=range(sT+12,sT+16); C=sT+18
    p(f"v_mov_b32 v{vt}, {F_FS}\nv_mov_b32 v{vt+1}, 1")
    flag_poll(aF2,vt+2,sF,C)
    p(f"ds_write_b32 v{vt}, v{vt+1}")
    STAMP('hfs')
    kv_dma(aLin,aTl,sK,sV,sL,A,B,sHO_)
    p(f"""s_mov_b64 exec, 1
    v_mov_b32 v{vt}, {F_G1}
    s_waitcnt vmcnt(0)
    ds_add_u32 v{vt}, v{vt+1}
    s_mov_b64 exec, -1""")
    STAMP('hg1')
def helperA(steps):
    A=sT+7; B=sT+8; vt=10
    def hook(c):
        if c==CFG['pt']:
            qkv_touch(); OPS.extend(['pt']*wtouch('w1',0))
        if c==CFG['wts']: OPS.extend(['pt']*touch(vTW,sWO,0))
    steps(hook,0)
    for c in (8,9):
        vmwait(c); p("s_barrier"); STAMP('ld%d'%c)
        if c==9: STAMP('hb9')
        hook(c)
    stats_fin(vt,B)
    p("s_barrier\ns_waitcnt lgkmcnt(0)\ns_barrier")
    STAMP('hE1')
    if CFG['hsp']&2: p(f"v_mov_b32 v{vt}, {L_MODE}\nds_read_b32 v{vt+1}, v{vt}")
    att_ids()
    if CFG['hsp']&2: p(f"s_waitcnt lgkmcnt(0)\nv_readfirstlane_b32 s{sMODE}, v{vt+1}")
    aLin=6; aTl=7; aF=8; D=40
    p(f"s_mov_b32 s{sK1024}, 1024")
    kv_addr(aLin,aTl,vt)
    flag_addr(aF,vt,0,A,B,sT+17)
    if CFG['hsp']: flag_nib(1,A,B,sT+17); p(f"s_mov_b32 s{sT+21}, s{A}")
    if CFG['hkv']: own_setup(9,vt)
    p(f"v_mov_b32 v{vt+1}, 1")
    sF=sT+9; sK=sT+10; sV=sT+11; sL=sT+16; C=sT+17; sD=sT+12
    dn=p.lab("g2done"); h1=p.lab("rem"); jn=p.lab("remj")
    assert not (CFG['hsent'] or CFG['hkv'])
    p(f"""v_and_b32 v{vt+2}, 4, v{aF}
    v_and_b32 v{aF}, -128, v{aF}
    s_cmp_lg_u32 s{HW}, 0
    s_cbranch_scc1 {h1}
    v_add_u32 v{aF}, v{aF}, v{vt+2}
    s_mul_i32 s{A}, s{sHF}, 24
    s_lshl_b32 s{sF}, s{sG}, 11
    s_add_u32 s{sF}, s{sF}, s{A}
    s_add_u32 s{sF}, s{sF}, {FL}
    {f"s_cmp_eq_u32 s{sT0}, 56" if CFG['honly'] else ""}
    {f"s_cselect_b32 s{B}, 0, {KH-KB}" if CFG['honly'] else f"s_mov_b32 s{B}, 0"}
    s_branch {jn}
    {h1}:
    v_lshlrev_b32 v{aF}, 3, v{aF}
    s_lshl_b32 s{A}, s{sHF}, 2
    s_add_u32 s{A}, s{A}, s{sG}
    s_sub_u32 s{A}, s{A}, 2
    s_and_b32 s{A}, s{A}, 7
    s_lshl_b32 s{sF}, s{A}, 14
    s_mul_i32 s{A}, s{sHF}, -768
    s_add_u32 s{sF}, s{sF}, s{A}
    s_add_u32 s{sF}, s{sF}, {FH+768}
    s_mov_b32 s{B}, {KH-KB}
    {jn}:
    s_lshl_b32 s{A}, s{HW}, 2
    s_sub_u32 s{sK}, -2, s{A}
    s_cmp_eq_u32 s{sHF}, 0
    s_cselect_b32 s{A}, s{sK}, s{A}
    s_mul_i32 s{sD}, s{sHF}, 5120
    s_sub_u32 s{sD}, s{sD}, 2560
    s_add_u32 s{A}, s{A}, s{sT0}
    s_mul_i32 s{sK}, s{A}, 2560
    s_mul_i32 s{sV}, s{A}, 1280
    s_mul_i32 s{A}, s{sPH}, {64*2560}
    s_add_u32 s{sK}, s{sK}, s{A}
    s_add_u32 s{sK}, s{sK}, s{B}
    s_add_u32 s{sK}, s{sK}, {KB}
    s_mul_i32 s{A}, s{sHD}, 81920
    s_add_u32 s{sV}, s{sV}, s{A}
    s_add_u32 s{sV}, s{sV}, s{B}
    s_add_u32 s{sV}, s{sV}, {VB}
    s_mul_i32 s{sL}, s{HW}, {-2*5632}
    s_add_u32 s{sL}, s{sL}, {L_KV+3*5632}""")
    if CFG['hsp']&2:
        sk=p.lab("noown"); sp=p.lab("ownp"); so=p.lab("ownok"); O=[sT+13,sT+14,sT+15,sT+18,sT+19,sT+20]; Rq=[4,8,12,28,40,96]
        halo_cond(A,B)
        p(f"""s_and_b32 s{A}, s{A}, s{HW}
        s_andn2_b32 s{A}, s{A}, s{sMODE}
        s_cbranch_scc0 {sk}
        s_lshl_b32 s{A}, s{sG}, 11
        s_add_u32 s{A}, s{A}, {FL}
        s_lshl_b32 s{B}, s{sHF}, 4
        s_add_u32 s{B}, s{B}, s{A}
        s_add_u32 s{A}, s{A}, 8""")
        for i in range(6): p(f"s_bfe_u32 s{O[i]}, s{sT+21}, {hex((4*i)|(4<<16))}\ns_lshl_b32 s{O[i]}, s{O[i]}, 7\ns_add_u32 s{O[i]}, s{O[i]}, s{B if i<2 else A}")
        assert 'FS' not in CFG['gm']+CFG['gr']
        if CFG['ogate']: p(f"v_mov_b32 v{vt}, {F_FS}"); lds_wait(vt,vt+5,C,'gt',CFG['ogate'],1)
        p(f"v_mov_b32 v{vt}, {F_OWN}\ns_mov_b32 s{C}, {SPIN}\n{sp}:")
        for i in range(6): p(f"s_load_dwordx4 s[{Rq[i]}:{Rq[i]+3}], s[{sWS}:{sWS+1}], s{O[i]} glc")
        p("s_waitcnt lgkmcnt(0)")
        for i in range(6):
            r=Rq[i]
            p(f"s_and_b64 s[{A+1}:{A+2}], s[{r}:{r+1}], s[{r+2}:{r+3}]" if 0 else "")
            p(f"s_xor_b64 s[{r}:{r+1}], s[{r}:{r+1}], s[{r+2}:{r+3}]\ns_xor_b32 s{r+2}, s{r+2}, s{sTAG}\ns_xor_b32 s{r+3}, s{r+3}, s{sTAG}\ns_or_b64 s[{r}:{r+1}], s[{r}:{r+1}], s[{r+2}:{r+3}]")
            if i: p(f"s_or_b64 s[4:5], s[4:5], s[{r}:{r+1}]")
        p(f"""s_cbranch_scc0 {so}
        s_sub_u32 s{C}, s{C}, 1
        {f"s_sleep {CFG['hsl2']}" if CFG['hsl2'] else ""}
        s_cbranch_scc0 {sp}
        {so}:
        ds_write_b32 v{vt}, v{vt+1}""")
        if CFG['prof']: p("s_mov_b64 s[96:97], 0\ns_mov_b64 s[98:99], 0")
        STAMP('own')
        p(f"{sk}:")
    p(f"s_cmp_eq_u32 s{sT0}, 0\ns_cbranch_scc1 {dn}")
    def both():
        kv_dma(aLin,aTl,sK,sV,sL,A,B)
        p(f"""s_add_u32 s{sK}, s{sK}, s{sD}
        s_add_u32 s{sK}, s{sK}, s{sD}
        s_add_u32 s{sV}, s{sV}, s{sD}
        s_sub_u32 s{sL}, s{sL}, 5632""")
        kv_dma(aLin,aTl,sK,sV,sL,A,B)
    GT=dict(G1=(F_G1,4),FS=(F_FS,1),FS4=(F_FS,4),M=(F_M,1))
    if CFG['gm']!='no' or CFG['gr']!='no':
        g0=p.lab("gate0"); g1=p.lab("gate1")
        p(f"s_cmp_lg_u32 s{HW}, 0\ns_cbranch_scc1 {g0}")
        if CFG['gm']!='no': p(f"v_mov_b32 v{vt}, {GT[CFG['gm']][0]}"); lds_wait(vt,vt+5,C,'gt',GT[CFG['gm']][1],0)
        p(f"s_branch {g1}\n{g0}:")
        if CFG['gr']!='no': p(f"v_mov_b32 v{vt}, {GT[CFG['gr']][0]}"); lds_wait(vt,vt+5,C,'gt',GT[CFG['gr']][1],0)
        p(f"{g1}:")
    if CFG['hsp']&1:
        vp=p.lab("vecp"); sp=p.lab("scp"); so=p.lab("scok")
        p(f"s_cmp_eq_u32 s{HW}, 0\ns_cbranch_scc1 {vp}")
        for i in range(4): p(f"s_bfe_u32 s{8+i}, s{sT+21}, {hex((8+4*i)|(4<<16))}\ns_lshl_b32 s{8+i}, s{8+i}, 10\ns_add_u32 s{8+i}, s{8+i}, s{sF}")
        p(f"s_mov_b32 s{C}, 256\n{sp}:")
        for i in range(4): p(f"s_load_dword s{4+i}, s[{sWS}:{sWS+1}], s{8+i} glc")
        p("s_waitcnt lgkmcnt(0)")
        for i in range(4): p(f"s_xor_b32 s{4+i}, s{4+i}, s{sTAG}")
        p(f"""s_or_b32 s4, s4, s5
        s_or_b32 s6, s6, s7
        s_or_b32 s4, s4, s6
        s_cbranch_scc0 {so}
        s_sub_u32 s{C}, s{C}, 1
        {f"s_sleep {CFG['hsl']}" if CFG['hsl'] else ""}
        s_cbranch_scc0 {sp}
        {vp}:""")
        flag_poll(aF,vt+5,sF,C,sleep=CFG['hsl'])
        p(f"{so}:")
    elif CFG['hpoll']: flag_poll2(aF,vt+5,sF,C,CFG['hpoll'],CFG['hsl'])
    else: flag_poll(aF,vt+5,sF,C,sleep=CFG['hsl'])
    STAMP('hf')
    both()
    if CFG['wpause']: p(f"s_lshl_b32 s{A}, s{HW}, 2\ns_add_u32 s{A}, s{A}, {F_RI-4}\nv_mov_b32 v{vt+2}, s{A}\nds_write_b32 v{vt+2}, v{vt+1}")
    if CFG['mtw'] in ('RI','MI'):
        nt_=p.lab("nori"); d2=p.lab("g2d")
        p(f"s_cmp_eq_u32 s{HW}, {int(CFG['mtw']=='RI')}\ns_cbranch_scc0 {nt_}")
        touch(vTM,sWG,0); touch(vTM,sWU,0)
        p(f"s_waitcnt vmcnt(2)\ns_branch {d2}\n{dn}:\ns_cmp_eq_u32 s{HW}, {int(CFG['mtw']=='RI')}\ns_cbranch_scc0 {d2}")
        touch(vTM,sWG,0); touch(vTM,sWU,0)
        p(f"s_branch {d2}\n{nt_}:"); dn=d2
    p(f"""s_waitcnt vmcnt(0)
    {dn}:
    s_lshl_b32 s{A}, s{HW}, 2
    s_add_u32 s{A}, s{A}, {F_M}
    v_mov_b32 v{vt}, {F_G2}
    v_mov_b32 v{vt+2}, s{A}
    s_mov_b64 exec, 1
    ds_write_b32 v{vt+2}, v{vt+1}
    {f"ds_write_b32 v{vt+2}, v{vt+1} offset:{F_RI-4-F_M}" if CFG['wpause'] else ""}
    ds_add_u32 v{vt}, v{vt+1}
    s_mov_b64 exec, -1""")
    STAMP('g2')
    if CFG['mtw']=='sm':
        u=p.lab("smu"); j=p.lab("smj")
        def run(r,n,f):
            for i in range(n):
                if CFG['smx']==2: p(f"s_load_dwordx2 s[100:101], s[{r}:{r+1}], s{A} offset:{f(i)+60}")
                else: p(f"s_load_dword s100, s[{r}:{r+1}], s{A} offset:{f(i)}")
        p(f"""s_mul_i32 s{A}, s{sSLOT}, {20*3072}
        s_mul_i32 s{B}, s{sG}, 384
        s_add_u32 s{A}, s{A}, s{B}
        s_cmp_eq_u32 s{HW}, 0
        s_cbranch_scc0 {u}""")
        run(sWG,60,lambda i:(i//3)*3072+(i%3)*128)
        p(f"s_branch {j}\n{u}:")
        run(sWU,60,lambda i:(i//3)*3072+(i%3)*128)
        p(f"{j}:")
        if CFG['smd']:
            p(f"""s_lshl_b32 s{A}, s{sSLOT}, 1
            s_add_u32 s{A}, s{A}, s{HW}
            s_mul_i32 s{A}, s{A}, {24*1280}
            s_mul_i32 s{B}, s{sG}, 160
            s_and_b32 s{B}, s{B}, -128
            s_add_u32 s{A}, s{A}, s{B}""")
            run(sWD,48,lambda i:(i//2)*1280+(i%2)*128)
        STAMP('mt')
        if CFG['prof'] and any('mt2' in x for x in CFG['st']): p("s_waitcnt lgkmcnt(0)"); STAMP('mt2')
    if 'w3' in (CFG['wtw'],CFG['mtw']):
        fa=dict(G1=(F_G1,4),WOR=(F_WOR,2),WOD=(F_WOD,2),WO2=(F_WO2,2),DONE=(F_DONE,4),PR=(F_PR,4),LD=(F_LD,1),RL=(F_H2,4))[CFG['mtg']]
        p(f"v_mov_b32 v{vt}, {fa[0]}")
        if CFG['mth']:
            nt_=p.lab("nomt")
            p(f"s_cmp_eq_u32 s{sHF}, 0\ns_cbranch_scc1 {nt_}")
        lds_wait(vt,vt+5,C,'gt',fa[1],1)
        wtouch('w3',0)
        if CFG['mth']:
            p(f"v_subrev_u32 v{vTM}, {20*3072}, v{vTM}")
            if CFG['mth']==2: p("s_waitcnt vmcnt(0)")
            wtouch('w3',0)
            p(f"{nt_}:")
        if CFG['dw3']: touch(vTD,sWD,CFG['mpair'])
        STAMP('mt')
        if CFG['prof'] and any('mt2' in x for x in CFG['st']): p("s_waitcnt vmcnt(0)"); STAMP('mt2')

def tr_addr(a0,t):
    tab=[[0,8],[4,12],[16,36],[20,28],[24,32]]
    pk=[sum((tab[u][rd]//4)<<(4*u) for u in range(5)) for rd in range(2)]
    A=sT+7; B=sT+8
    p(f"""s_mov_b32 s{A}, {pk[0]}
    s_mov_b32 s{B}, {pk[1]}
    v_bfe_u32 v{t}, v0, 2, 2
    v_mul_u32_u24 v{t}, 160, v{t}
    v_and_b32 v{t+1}, 3, v0
    v_mad_u32_u24 v{t}, v{t+1}, 40, v{t}
    v_lshrrev_b32 v{t+1}, 4, v0""")
    for s_ in range(5):
        p(f"""v_add_u32 v{t+2}, {4*s_}, v{t+1}
        v_mul_u32_u24 v{t+4}, 52, v{t+2}
        v_lshrrev_b32 v{t+4}, 8, v{t+4}
        v_mul_u32_u24 v{t+5}, 5, v{t+4}
        v_sub_u32 v{t+2}, v{t+2}, v{t+5}
        v_lshlrev_b32 v{t+2}, 2, v{t+2}
        v_mul_u32_u24 v{t+4}, 10, v{t+4}""")
        for rd in range(2):
            p(f"""v_bfe_u32 v{t+3}, s{(A,B)[rd]}, v{t+2}, 4
            v_add_u32 v{t+3}, v{t+3}, v{t+4}
            v_mul_u32_u24 v{t+3}, 640, v{t+3}
            v_add_u32 v{a0+2*s_+rd}, v{t+3}, v{t}""")
sBLK,sJ=sT+9,sT+10
def wo_ids():
    p(f"""s_lshr_b32 s{sBLK}, s{sSLOT}, 3
    s_lshl_b32 s{sJ}, s{sG}, 2
    s_add_u32 s{sBLK}, s{sBLK}, s{sJ}
    s_and_b32 s{sJ}, s{sSLOT}, 7""")
def clr_ids(A,B,C,D_):
    p(f"""s_lshr_b32 s{C}, s{sSLOT}, 3
    s_lshl_b32 s{B}, s{sG}, 2
    s_add_u32 s{C}, s{C}, s{B}
    s_lshl_b32 s{C}, s{C}, 3
    s_and_b32 s{B}, s{sSLOT}, 7
    s_add_u32 s{D_}, s{C}, s{B}
    s_lshr_b32 s{A}, s{D_}, 1
    s_mul_i32 s{A}, s{A}, 20480
    s_and_b32 s{B}, s{B}, 1
    s_mul_i32 s{B}, s{B}, 5120
    s_add_u32 s{A}, s{A}, s{B}
    s_add_u32 s{A}, s{A}, {OB}
    s_mul_i32 s{B}, s{sHH}, 10240
    s_add_u32 s{C}, s{A}, 10240
    s_add_u32 s{A}, s{A}, s{B}
    s_sub_u32 s{C}, s{C}, s{B}
    s_lshl_b32 s{D_}, s{D_}, 10
    s_add_u32 s{D_}, s{D_}, {PS}""")
def clears(part):
    A=sT+13; B=sT+14; C=sT+15; D_=sT+16; D=12; aL=16
    if part==0:
        clr_ids(A,B,C,D_)
        p(f"v_lshlrev_b32 v{aL}, 4, v0")
        for r in range(4): p(f"v_mov_b32 v{D+r}, -1")
        return
    st4=lambda so,off,sc: f"buffer_store_dwordx4 v[{D}:{D+3}], v{aL}, {S4(sWS)}, s{so} offen offset:{off} {sc}"
    w2=p.lab("clw2"); w3=p.lab("clw3"); dn=p.lab("cldn")
    if CFG['hsent']:
        H_=sT+17; nh=p.lab("clnh")
        p(f"""s_cmp_eq_u32 s{sWAVE}, 3
        s_cbranch_scc1 {nh}
        s_lshl_b32 s{B}, s{sWAVE}, 8
        s_add_u32 s{B}, s{B}, s2
        s_sub_u32 s{H_}, s{B}, 384
        s_cselect_b32 s{H_}, s{B}, s{H_}
        s_cselect_b32 s{H_+1}, 3, 2
        s_cselect_b32 s{H_+2}, 0, {VH+10240-KH-20480}
        s_cselect_b32 s{H_+3}, 1, 0
        s_lshr_b32 s{B}, s{H_}, s{H_+1}
        s_lshl_b32 s{H_+1}, s{B}, s{H_+1}
        s_sub_u32 s{H_}, s{H_}, s{H_+1}
        s_mul_i32 s{H_}, s{H_}, 2560
        s_add_u32 s{H_}, s{H_}, s{H_+2}
        s_mul_i32 s{H_+1}, s{B}, 171
        s_lshr_b32 s{H_+1}, s{H_+1}, 9
        s_add_u32 s{B}, s{B}, s{H_+1}
        s_mul_i32 s{B}, s{B}, 20480
        s_lshl_b32 s{B}, s{B}, s{H_+3}
        s_add_u32 s{H_}, s{H_}, s{B}
        s_add_u32 s{H_}, s{H_}, {KH+20480}""")
        for o in (0,1024,1536): p(st4(H_,o,"sc1"))
        p(f"{nh}:")
    p(f"""s_cmp_ge_u32 s{sWAVE}, 2
    s_cbranch_scc1 {w2}
    s_mul_i32 s{B}, s{sWAVE}, 2560
    s_add_u32 s{A}, s{A}, s{B}""")
    for o in (0,1024,1536): p(st4(A,o,CFG['cpol']))
    p(f"""s_branch {dn}
    {w2}:
    s_cmp_eq_u32 s{sWAVE}, 3
    s_cbranch_scc1 {w3}
    s_mul_i32 s{C}, s2, 2560
    s_add_u32 s{C}, s{C}, {CAND}""")
    if 'c' in CFG['ptc']: p(f"v_lshlrev_b32 v228, 7, v0\ns_mov_b64 exec, {0x3ff if 'l' in CFG['ptc'] else 0xfffff}\nbuffer_load_dword v229, v228, {S4(sWS)}, s{C} offen\ns_mov_b64 exec, -1")
    for o in (0,1024,1536): p(st4(C,o,"sc1"))
    p(f"""s_branch {dn}
    {w3}:""")
    if CFG['osent']:
        if 'o' in CFG['ptc']: p(f"v_lshlrev_b32 v228, 7, v0\ns_mov_b32 exec_hi, 0xff\nbuffer_load_dword v229, v228, {S4(sWS)}, s{C} offen\ns_mov_b64 exec, -1")
        for o in range(4): p(st4(C,o*1024,"sc1"))
        p(f"s_add_u32 s{C}, s{C}, 4096"); p(st4(C,0,"sc1"))
    p(f"""s_cmp_ge_u32 s2, 24
    s_cbranch_scc1 {dn}
    s_lshl_b32 s{C}, s2, 10
    s_add_u32 s{C}, s{C}, {ACT}""")
    if 'a' in CFG['ptc']: p(f"v_lshlrev_b32 v228, 7, v0\ns_mov_b64 exec, 0xff\nbuffer_load_dword v229, v228, {S4(sWS)}, s{C} offen\ns_mov_b64 exec, -1")
    p(st4(C,0,"sc1"))
    p(f"{dn}:")
cU=sT+13; vC=84
def hclear_setup(isB):
    A=sT+15; B=sT+16; C=sT+17; D_=sT+18; H_=sT+17
    clr_ids(A,B,C,D_)
    if isB: p(f"""s_mul_i32 s{B}, s2, 2560
        s_add_u32 s{B}, s{B}, {CAND}
        s_add_u32 s{A}, s{C}, 2560
        s_cmp_eq_u32 s{HW}, 2
        s_cselect_b32 s{cU+1}, s{B}, s{A}
        s_mov_b32 s{cU}, s{C}""")
    else: p(f"""s_mul_i32 s{B}, s{HW}, 2560
        s_add_u32 s{cU+1}, s{A}, s{B}""")
    p(f"""s_lshl_b32 s{B}, s{HW}, 8
    s_add_u32 s{B}, s{B}, s2
    s_sub_u32 s{H_}, s{B}, 384
    s_cselect_b32 s{H_}, s{B}, s{H_}
    s_cselect_b32 s{H_+1}, 3, 2
    s_cselect_b32 s{H_+2}, 0, {VH+10240-KH-20480}
    s_cselect_b32 s{H_+3}, 1, 0
    s_lshr_b32 s{B}, s{H_}, s{H_+1}
    s_lshl_b32 s{H_+1}, s{B}, s{H_+1}
    s_sub_u32 s{H_}, s{H_}, s{H_+1}
    s_mul_i32 s{H_}, s{H_}, 2560
    s_add_u32 s{H_}, s{H_}, s{H_+2}
    s_mul_i32 s{H_+1}, s{B}, 171
    s_lshr_b32 s{H_+1}, s{H_+1}, 9
    s_add_u32 s{B}, s{B}, s{H_+1}
    s_mul_i32 s{B}, s{B}, 20480
    s_lshl_b32 s{B}, s{B}, s{H_+3}
    s_add_u32 s{H_}, s{H_}, s{B}
    s_add_u32 s{H_}, s{H_}, {KH+20480}""")
    if isB: p(f"""s_cmp_eq_u32 s{HW}, 2
        s_cselect_b32 s{cU}, s{H_}, s{cU}
        s_cselect_b32 s{cU+3}, 256, s2
        s_lshl_b32 s{cU+2}, s2, 10
        s_cmp_lt_u32 s{cU+3}, 24
        s_cselect_b32 s{H_}, 0, {STX+0x20000-ACT}
        s_add_u32 s{cU+2}, s{cU+2}, s{H_}
        s_add_u32 s{cU+2}, s{cU+2}, {ACT}""")
    else: p(f"""s_mov_b32 s{cU}, s{H_}
        s_getreg_b32 s{A}, hwreg(HW_REG_XCC_ID, 0, 4)
        s_or_b32 s{A}, s{A}, s{sTAG}
        v_mov_b32 v{vC+5}, s{A}
        s_lshl_b32 s{cU+2}, s2, 2
        s_add_u32 s{cU+2}, s{cU+2}, {H1}""")
    p(f"v_lshlrev_b32 v{vC+4}, 4, v0")
    for r in range(4): p(f"v_mov_b32 v{vC+r}, -1")
def hclear(c,isB):
    st=lambda so,off,sc: (p(f"buffer_store_dwordx4 v[{vC}:{vC+3}], v{vC+4}, {S4(sWS)}, s{so} offen offset:{off} {sc}"),OPS.append('clr'))
    ks=[k for k in range(2) if CFG['cst'][k]==c and (CFG['hsent'] or k or isB)]
    pol=lambda k: "sc1" if isB or k==0 else CFG['cpol']
    for k in ks: st(cU+k,0,pol(k)); st(cU+k,1024,pol(k))
    if ks: p(f"s_mov_b64 exec, s[{sLO}:{sLO+1}]")
    for k in ks: st(cU+k,2048,pol(k))
    if ks: p("s_mov_b64 exec, -1")
    if isB and c==CFG['cst'][1]:
        sk=p.lab("noact")
        p(f"s_cmp_lt_u32 s{cU+3}, 24\ns_cselect_b64 exec, -1, 1"); st(cU+2,0,"sc1"); p("s_mov_b64 exec, -1")
    if not isB and c==max(CFG['cst'])+2:
        p(f"s_mov_b64 exec, 1\nbuffer_store_dword v{vC+5}, v{vC+4}, {S4(sWS)}, s{cU+2} offen sc1\ns_mov_b64 exec, -1"); OPS.append('clr')
sSM=sT+11
def sm_setup():
    A=sT+20
    p(f"""s_and_b32 s{A}, s{HW}, 1
    s_lshl_b32 s{sSM}, s{sSLOT}, 1
    s_add_u32 s{A}, s{A}, s{sSM}
    s_mul_i32 s{sSM}, s{A}, {10*3072}
    s_mul_i32 s{A}, s{sG}, 384
    s_add_u32 s{sSM}, s{sSM}, s{A}
    s_lshl_b32 s{A}, s2, 2
    s_add_u32 s{A}, s{A}, s{HW}
    s_mul_i32 s{sSM+1}, s{A}, 800
    s_and_b32 s{sSM+1}, s{sSM+1}, -128""")
def sm_touch(c,isB):
    for opt,n,f in ((CFG['smw'],30,lambda i: f"s_load_dword s100, s[{(sWG,sWU)[isB]}:{(sWG,sWU)[isB]+1}], s{sSM} offset:{(i//3)*3072+(i%3)*128}"),
                    (CFG['smo'],7,lambda i: f"s_load_dword s100, s[{sWO}:{sWO+1}], s{sSM+1} offset:{i*128}")):
        if opt and opt[0]<=c<opt[1]:
            k=opt[1]-opt[0]
            for i in range(n*(c-opt[0])//k,n*(c+1-opt[0])//k): p(f(i))
def code_pf():
    A=sT+18
    p(f"""s_getpc_b64 s[{A}:{A+1}]
    L_pc:
    s_sub_u32 s{A}, s{A}, L_pc-{NAME}_kernel
    s_subb_u32 s{A+1}, s{A+1}, 0
    s_lshl_b32 s{A+2}, s{sSLOT}, 2
    s_add_u32 s{A+2}, s{A+2}, s{sWAVE}
    s_mul_i32 s{A+2}, s{A+2}, 384
    s_min_u32 s{A+2}, s{A+2}, (L_exit-{NAME}_kernel-384)&0xffffff80""")
    for i in range(3): p(f"s_load_dwordx2 s[100:101], s[{A}:{A+1}], s{A+2} offset:{i*128+60}")
def wave_sum(x,t):
    dp="row_mask:0xf bank_mask:0xf"
    for c in ("quad_perm:[1,0,3,2]","quad_perm:[2,3,0,1]","row_half_mirror","row_mirror"):
        p(f"s_nop 1\nv_add_f32_dpp v{x}, v{x}, v{x} {c} {dp}")
    for sw in (16,32):
        p(f"""v_mov_b32 v{t}, v{x}
        s_nop 1
        v_permlane{sw}_swap_b32 v{x}, v{t}
        s_nop 0
        v_add_f32 v{x}, v{x}, v{t}""")
sPF=sT+16
def pf_group(n=5):
    for i in range(n): p(f"s_load_dwordx2 s[100:101], s[{sWO}:{sWO+1}], s{sPF} offset:{i*128+60}")
    p(f"""s_add_u32 s{sPF}, s{sPF}, {n*128}
    s_sub_u32 s{sPF+2}, s{sPF+2}, 1
    s_add_u32 s{sPF+3}, s{sPF+1}, 12800
    s_cmp_eq_u32 s{sPF}, s{sPF+3}
    s_cselect_b32 s{sPF}, s{sPF+1}, s{sPF}""")
def helperB(steps):
    A=sT+7; B=sT+8; vt=2; aD=140; aT=146; aLin=12; D=40; WRr=32
    sO=sT+1; sL=sT+2; sL0=sT+3; sL1=sT+4; C=sT+5
    p("L_helperB:")
    vM=23; x=10; a=sT+16
    clr_ids(a,a+1,a+2,a+3)
    p(f"""s_mul_i32 s{a+1}, s{HW}, 25
    s_sub_u32 s{a+1}, s{a+1}, 50
    v_min_u32 v{x}, 24, v0
    v_add_u32 v{x}, s{a+1}, v{x}
    v_min_u32 v{x}, 48, v{x}
    s_sub_u32 s{a+3}, s{a+3}, {40*128}
    s_and_b32 s{a+1}, s{sSLOT}, 15
    s_lshl_b32 s{a+2}, s{sG}, 4
    s_add_u32 s{a+1}, s{a+1}, s{a+2}
    s_lshl_b32 s{a+1}, s{a+1}, 7
    s_add_u32 s{a+1}, s{a+1}, {FL-48*128}
    v_mov_b32 v{x+1}, s{a}
    v_mov_b32 v{x+2}, s{a+3}
    v_cmp_le_u32 vcc, 40, v{x}
    v_mov_b32 v{x+3}, s{a+1}
    s_mul_i32 s{a+1}, s{sSLOT}, {200*128}
    v_cndmask_b32 v{x+1}, v{x+1}, v{x+2}, vcc
    v_cmp_le_u32 vcc, 48, v{x}
    s_mul_i32 s{a}, s{HW}, {100*128}
    s_add_u32 s{a+1}, s{a+1}, s{a}
    v_cndmask_b32 v{x+1}, v{x+1}, v{x+3}, vcc
    v_lshl_add_u32 v{vM}, v{x}, 7, v{x+1}
    s_sub_u32 s{sPF+1}, s{a+1}, {200*128}
    s_mul_i32 s{sPF}, s{sG}, 5
    s_lshr_b32 s{sPF}, s{sPF}, 1
    s_mul_i32 s{sPF}, s{sPF}, 640
    s_add_u32 s{sPF}, s{sPF}, s{sPF+1}
    s_mov_b32 s{sPF+2}, 20
    v_lshlrev_b32 v{vH+4}, 4, v0
    v_add_u32 v{vH+4}, {H1}, v{vH+4}
    v_mul_u32_u24 v{WRr+5}, 20, v0""")
    aB=130; sK=sT+11; sN=sT+16; sS=sT+17
    def wo_setup():
        va=96
        wo_ids()
        T=[[0,2],[1,3],[4,9],[5,7],[6,8]]
        NIB=[sum((10*((4*s5+g_)//5)+T[(4*s5+g_)%5][rd]-(8*s5+2*g_-2))<<(4*(4*rd+g_)) for rd in range(2) for g_ in range(4)) for s5 in range(5)]
        for i in range(5):
            p(f"""v_add_u32 v{va}, {64*i}, v0
            v_mul_u32_u24 v{va+1}, 6554, v{va}
            v_lshrrev_b32 v{va+1}, 16, v{va+1}
            v_mul_u32_u24 v{va+2}, 10, v{va+1}
            v_sub_u32 v{va}, v{va}, v{va+2}
            v_and_b32 v{aB+5+i}, 28, v{va+1}
            v_and_b32 v{va+2}, 3, v{va+1}
            v_mul_u32_u24 v{va+2}, 1280, v{va+2}
            v_lshl_add_u32 v{va}, v{va}, 4, v{va+2}
            v_bfe_u32 v{va+1}, v{va+1}, 2, 2
            v_mul_u32_u24 v{va+1}, 10240, v{va+1}
            v_add_u32 v{aB+i}, v{va}, v{va+1}""")
            if 0<i<4: p(f"v_subrev_u32 v{aB+i}, {i*1024}, v{aB+i}")
        p(f"""s_lshr_b32 s{A}, s{sSLOT}, 3
        s_mul_i32 s{A}, s{A}, 5
        s_lshr_b32 s{A}, s{A}, 1
        s_add_u32 s{A}, s{A}, s{HW}
        s_sub_u32 s{sK}, s{A}, 2
        v_mov_b32 v{va}, 5120""")
        def woaddr(n):
            p(f"""s_add_u32 s{A}, s{sK}, {2*n}
            s_sub_u32 s{B}, s{A}, 10
            s_cselect_b32 s{A}, s{A}, s{B}
            s_sub_u32 s{B}, s{A}, 5
            s_cselect_b32 s{B}, s{A}, s{B}
            s_mul_i32 s{sS}, s{A}, 40960
            s_sub_u32 s{sS}, s{sS}, 10240
            s_mov_b32 s{sN}, {hex(NIB[0])}""")
            for k in range(1,5): p(f"s_cmp_eq_u32 s{B}, {k}\ns_cselect_b32 s{sN}, {hex(NIB[k])}, s{sN}")
            for i in range(5):
                p(f"""v_bfe_u32 v{va+1}, s{sN}, v{aB+5+i}, 4
                v_mad_u32_u24 v{va+1}, v{va+1}, v{va}, v{aB+i}
                v_add_u32 v{aD+5*n+i}, s{sS}, v{va+1}""")
        for n in range(5): woaddr(n)
    if CFG['wose']==0: wo_setup()
    npf=CFG['npf']
    for _ in range(npf[0]): pf_group()
    def hook(c):
        if c==(100 if CFG['hstep']==CFG['stg'] else CFG['hstep']):
            p(f"buffer_load_dwordx4 v[{vH}:{vH+3}], v{vH+4}, {S4(sWS)}, 0 offen sc1"); OPS.append('h1')
        if c==100:
            p(f"buffer_load_dwordx4 {vr(WRr,4)}, v{WRr+5}, {S4(sWR)}, 0 offen\nbuffer_load_dword v{WRr+4}, v{WRr+5}, {S4(sWR)}, 0 offen offset:16"); OPS.extend(['wr','wr'])
        if c==CFG['pt']:
            qkv_touch()
            OPS.extend(['pt']*wtouch('w1',1))
        if c==CFG['wts']: OPS.extend(['pt']*touch(vTW,sWO,0))
        if c==CFG['pt2']: OPS.extend(['pt']*touch(vM,sWS,CFG['qpair2'],CFG['tpol']))
    steps(hook,1)
    st=dict(n=0)
    def dma(cnt):
        for _ in range(min(cnt,50-st['n'])):
            n=st['n']; i=n%5; k=(n//5)%5
            if n==0 or n==25:
                p(f"""s_xor_b32 s{A}, s{sHH}, {n//25}
                s_mul_i32 s{sO}, s{A}, {320*1280}
                s_mul_i32 s{sL0}, s{A}, 51200
                s_add_u32 s{sL0}, s{sL0}, {L_WO}
                s_mul_i32 s{A}, s{sJ}, 160
                s_add_u32 s{sO}, s{sO}, s{A}""")
            if i==0: p(f"""s_add_u32 s{A}, s{sK}, {2*k}
                s_sub_u32 s{B}, s{A}, 10
                s_cselect_b32 s{A}, s{A}, s{B}
                s_mul_i32 s{sL}, s{A}, 5120
                s_add_u32 s{sL}, s{sL}, s{sL0}
                s_mov_b32 m0, s{sL}
                s_nop 0""")
            if i==4: p(f"s_add_u32 m0, s{sL}, 4096\ns_nop 0")
            p(f"buffer_load_dwordx4 v{aD+5*k+i}, {S4(sWO)}, s{sO} offen offset:{(i&3)*1024} {CFG['wopol']} lds")
            OPS.append('wo%d'%(n//25))
            st['n']+=1
    vmwait(8); p("s_barrier"); hook(8)
    p(f"v_lshlrev_b32 v{aLin}, 4, v0")
    vmwait(9); p("s_barrier"); hook(9)
    stats_fin(96,B)
    vmwait('h1')
    lp=p.lab("hello"); ok=p.lab("hello_ok"); ne=p.lab("noep")
    p(f"""s_mov_b32 s{A}, {SPIN}
    {lp}:
    v_xor_b32 v{vH}, s{sTAG}, v{vH}
    v_xor_b32 v{vH+1}, s{sTAG}, v{vH+1}
    v_xor_b32 v{vH+2}, s{sTAG}, v{vH+2}
    v_xor_b32 v{vH+3}, s{sTAG}, v{vH+3}
    v_or3_b32 v{vt}, v{vH}, v{vH+1}, v{vH+2}
    v_or_b32 v{vt}, v{vt}, v{vH+3}
    v_cmp_lt_u32 vcc, 15, v{vt}
    s_nop 0
    s_cbranch_vccz {ok}""")
    spin(A,lp,ok,4)
    p(f"""buffer_load_dwordx4 v[{vH}:{vH+3}], v{vH+4}, {S4(sWS)}, 0 offen sc1
    s_waitcnt vmcnt(0)
    s_branch {lp}
    {ok}:
    v_lshl_or_b32 v{vH}, v{vH+1}, 4, v{vH}
    v_lshl_or_b32 v{vH+2}, v{vH+3}, 4, v{vH+2}
    v_lshl_or_b32 v{vH}, v{vH+2}, 8, v{vH}
    v_and_b32 v{vt}, 1, v0
    v_readlane_b32 s{A}, v{vH}, 0
    v_readlane_b32 s{B}, v{vH}, 1
    v_cmp_eq_u32 vcc, 0, v{vt}
    v_mov_b32 v{vt+1}, s{A}
    v_mov_b32 v{vt+2}, s{B}
    v_cndmask_b32 v{vt+1}, v{vt+2}, v{vt+1}, vcc
    v_cmp_ne_u32 vcc, v{vt+1}, v{vH}
    v_mov_b32 v{vt}, {L_MODE}
    s_cmp_lg_u64 vcc, 0
    s_cselect_b32 s{sMODE}, 1, {CFG['force_slow']}
    v_mov_b32 v{vt+1}, s{sMODE}
    ds_write_b32 v{vt}, v{vt+1}
    s_barrier
    s_waitcnt lgkmcnt(0)
    s_barrier""")
    vmw=len(OPS)-1-max(i for i,t in enumerate(OPS) if t=='wr')
    STAMP('hE1')
    p(f"""v_mov_b32 v{vt}, 0x3f803f80
    v_mov_b32 v{vt+1}, 0
    s_waitcnt vmcnt({vmw})""")
    for k in range(5): p(f"v_dot2_f32_bf16 v{vt+1}, v{WRr+k}, v{vt}, v{vt+1}")
    p("s_nop 0")
    wave_sum(vt+1,vt+2)
    p(f"v_mov_b32 v{vt}, {L_SWS}\nds_write_b32 v{vt}, v{vt+1}")
    if CFG['wose']==1: wo_setup()
    if CFG['hst']: halo_copy(vt,A,B,C,wo_setup if CFG['wose']==2 else (lambda:None))
    else:
        halo_flag(vt,A,B,C)
        if CFG['wose']==2: wo_setup()
    p(f"""s_add_u32 s{A}, s2, s{HW}
    s_cmp_lg_u32 s{A}, 2
    s_cbranch_scc1 {ne}
    s_add_u32 s{A}, s{sEP}, 1
    v_mov_b32 v{vt}, {EPO}
    v_mov_b32 v{vt+1}, s{A}
    s_mov_b64 exec, 1
    buffer_store_dword v{vt+1}, v{vt}, {S4(sWS)}, 0 offen sc1
    s_mov_b64 exec, -1
    {ne}:""")
    if CFG['hkv']:
        att_ids()
        p(f"s_mov_b32 s{sK1024}, 1024")
        kv_addr(aLin,13,vt)
        own_setup(14,vt)
        own_kv(aLin,13,14,vt,sHO)
    p(f"v_mov_b32 v{vt}, {F_G1}")
    if CFG['wburst']:
        p(f"""s_lshl_b32 s{B}, s{sSLOT}, 1
        s_add_u32 s{B}, s{B}, s{HW}
        s_sub_u32 s{B}, s{B}, 2
        s_mul_i32 s{B}, s{B}, 12800
        v_lshl_add_u32 v{vTW}, v0, 7, s{B}
        v_min_u32 v{vTW+1}, 35, v0
        v_lshl_add_u32 v{vTW+1}, v{vTW+1}, 7, s{B}
        v_add_u32 v{vTW+1}, 8192, v{vTW+1}""")
        if CFG['wburst']==2: touch(vTW,sWO,0); touch(vTW+1,sWO,0)
    lds_wait(vt,vt+1,A,'gt',4,1)
    if CFG['wburst']==1: touch(vTW,sWO,0); touch(vTW+1,sWO,0)
    wtouch('w3',1)
    if CFG['wog2']:
        p(f"v_mov_b32 v{vt+2}, {F_G2}")
        lds_wait(vt+2,vt+1,A,'gt',2,1)
    STAMP('wo_s')
    del OPS[:]
    thr=CFG['wothr']; gs=CFG['wogs']; thr1=CFG['wothr1']
    def more(n,dyn=False):
        while n>0 and st['n']<50:
            k=min(gs,n)
            if dyn and thr1<thr and st['n']>=thr1:
                sk=p.lab("wog")
                p(f"""ds_read_b32 v{vt+1}, v{vt} offset:{(F_G2 if CFG['wgf']=='G2' else F_M)-F_G1}
                s_waitcnt lgkmcnt(0)
                v_cmp_gt_u32 vcc, {2 if CFG['wgf']=='G2' else 1}, v{vt+1}
                s_nop 0
                s_cbranch_vccz {sk}
                s_waitcnt vmcnt({max(0,thr1-k)})
                {sk}:""")
            if CFG['wpause'] and st['n']==CFG['wpause']:
                p(f"v_mov_b32 v{vt+2}, {F_RI}"); lds_wait(vt+2,vt+1,A,'gt',1,1); STAMP('wo_p')
            if st['n']>=thr: p(f"s_waitcnt vmcnt({max(0,thr-k)})")
            gi=st['n']//gs; a_,b_=CFG['mtr']
            dma(k); n-=k
            if CFG['mtw']=='wo' and a_<=gi<b_:
                l0=60*(gi-a_)//(b_-a_); l1=60*(gi+1-a_)//(b_-a_); msk=((1<<l1)-1)^((1<<l0)-1)
                u=p.lab("tu"); j=p.lab("tj")
                p(f"s_mov_b32 exec_lo, {hex(msk&0xffffffff)}\ns_mov_b32 exec_hi, {hex(msk>>32)}\ns_cmp_eq_u32 s{HW}, 2\ns_cbranch_scc0 {u}")
                touch(vTM,sWG,0); p(f"s_branch {j}\n{u}:"); touch(vTM,sWU,0); p(f"{j}:\ns_mov_b64 exec, -1")
                OPS.append('mt')
    def sig(f):
        p(f"""v_mov_b32 v{vt+2}, {f}
        v_mov_b32 v{vt+3}, 1
        s_mov_b64 exec, 1
        ds_add_u32 v{vt+2}, v{vt+3}
        s_mov_b64 exec, -1""")
    more(25+min(thr,15),True)
    vmwait('wo0')
    sig(F_WOR)
    STAMP('wo_0')
    more(50)
    sig(F_WOD)
    STAMP('wo_1')
    p("s_waitcnt vmcnt(0)")
    sig(F_WO2)
    STAMP('wo')

ACC=64; CS=128; XF=132; WF=148; SEL=164; aX=168; aW=172; aST=174; aSG=178; vT=2
sWR_,sWC,sLC,sTY,sSO,sHALO,sFO,sSO2=range(sT,sT+8)
def gemm_setup():
    t=vT; A=sT+10; B=sT+11
    wave_ids(sWAVE,sWR_,sWC,sLC,sTY)
    p(f"""v_and_b32 v{t}, 31, v0
    s_lshl_b32 s{A}, s{sWR_}, 6
    v_add_u32 v{t+1}, s{A}, v{t}
    v_lshlrev_b32 v{t+1}, 7, v{t+1}
    v_lshrrev_b32 v{t+2}, 5, v0
    v_bfe_u32 v{t+3}, v0, 1, 3
    v_xor_b32 v{t+3}, v{t+3}, v{t+2}
    v_lshl_add_u32 v{aX}, v{t+3}, 4, v{t+1}""")
    for s in range(1,4): p(f"v_xor_b32 v{aX+s}, {32*s}, v{aX}")
    p(f"""v_bfe_u32 v{t+3}, v0, 2, 2
    v_lshl_add_u32 v{t+4}, v{t+2}, 3, v{t+3}
    v_lshlrev_b32 v{t+4}, 8, v{t+4}
    s_lshl_b32 s{A}, s{sWC}, 1
    s_or_b32 s{A}, s{A}, s{sWR_}
    v_xor_b32 v{t+3}, s{A}, v{t+3}
    v_lshl_add_u32 v{t+4}, v{t+3}, 6, v{t+4}
    v_bfe_u32 v{t+3}, v0, 4, 1
    v_lshl_add_u32 v{t+4}, v{t+3}, 5, v{t+4}
    v_and_b32 v{t+5}, 3, v0
    v_lshl_add_u32 v{t+4}, v{t+5}, 3, v{t+4}
    v_add_u32 v{aW}, 16384, v{t+4}
    v_xor_b32 v{aW+1}, 64, v{aW}
    v_bfe_u32 v{t+4}, v0, 2, 1
    v_cmp_eq_u32 vcc, v{t+3}, v{t+4}
    v_mov_b32 v{t+5}, 0x3f803f80
    s_nop 0
    v_cndmask_b32 v{SEL}, 0, v{t+5}, vcc
    v_cndmask_b32 v{SEL+1}, 0, v{t+5}, vcc
    v_cndmask_b32 v{SEL+2}, 0, v{t+5}, vcc
    v_cndmask_b32 v{SEL+3}, 0, v{t+5}, vcc""")
    for r in list(range(ACC,ACC+64))+list(range(CS,CS+4)): p(f"v_mov_b32 v{r}, 0")
    store_addr(sWR_,sLC,sTY,sSO,sSO2,sHALO,sFO,aST,sT+10,sT+11)
    p(f"s_mov_b32 s{sHAL2}, s{sHALO}")
    if CFG['hst']: p(f"""s_mul_i32 s{A}, s{sWAVE}, 9216
        s_add_u32 s{A}, s{A}, {L_WO}
        v_lshl_add_u32 v{aSG}, v0, 4, s{A}""")
sHAL2=sDBG
def wave_ids(wave,wr,wc,lc,ty):
    p(f"""s_and_b32 s{wr}, s{wave}, 1
    s_lshr_b32 s{wc}, s{wave}, 1
    s_lshl_b32 s{lc}, s{sCT}, 1
    s_add_u32 s{lc}, s{lc}, s{wc}
    s_cmp_eq_u32 s{lc}, 5
    s_cselect_b32 s{lc}, 15, s{lc}
    s_cmp_gt_u32 s{sCT}, 2
    s_subb_u32 s{lc}, s{lc}, 0
    s_mul_i32 s{ty}, s{lc}, 52
    s_lshr_b32 s{ty}, s{ty}, 8""")
def store_addr(wr,lc,ty,so,so2,halo,fo,ast,A,B,t=2):
    p(f"""v_and_b32 v{t}, 31, v0
    v_lshrrev_b32 v{t+2}, 5, v0
    s_mul_i32 s{A}, s{ty}, 5
    s_sub_u32 s{A}, s{lc}, s{A}
    s_mul_i32 s{B}, s{sHH}, 5
    s_add_u32 s{A}, s{A}, s{B}
    s_lshl_b32 s{B}, s{sBK}, 1
    s_add_u32 s{B}, s{B}, s{wr}
    s_lshl_b32 s{B}, s{B}, 1""")
    isv=p.lab("isv"); jn=p.lab("stj")
    p(f"""s_cmp_ge_u32 s{ty}, 2
    s_cbranch_scc1 {isv}
    s_mul_i32 s{so}, s{B}, 2560
    s_mul_i32 s{B}, s{ty}, {KB}
    s_add_u32 s{so}, s{so}, s{B}
    s_add_u32 s{so2}, s{so}, 2560
    s_lshl_b32 s{A}, s{A}, 3""")
    for cb in range(2):
        for ip in range(2):
            p(f"""s_xor_b32 s{B}, s{wr}, {cb}
            s_lshl_b32 s{B}, s{B}, 2
            s_add_u32 s{B}, s{B}, s{A}
            s_add_u32 s{B}, s{B}, {2*ip}
            v_add_u32 v{t+3}, s{B}, v{t+2}
            v_mul_u32_u24 v{t+4}, 205, v{t+3}
            v_lshrrev_b32 v{t+4}, 10, v{t+4}
            v_mul_u32_u24 v{t+5}, 5, v{t+4}
            v_sub_u32 v{t+5}, v{t+3}, v{t+5}
            v_mul_u32_u24 v{t+4}, {64*2560}, v{t+4}
            v_lshl_add_u32 v{t+4}, v{t+5}, 9, v{t+4}
            v_lshl_add_u32 v{ast+2*cb+ip}, v{t}, 4, v{t+4}""")
    p(f"""s_branch {jn}
    {isv}:
    s_mul_i32 s{so}, s{B}, 1280
    s_add_u32 s{so}, s{so}, {VB}
    s_add_u32 s{so2}, s{so}, 1280
    s_lshl_b32 s{A}, s{A}, 6""")
    for cb in range(2):
        p(f"""s_xor_b32 s{B}, s{wr}, {cb}
        s_lshl_b32 s{B}, s{B}, 5
        s_add_u32 s{B}, s{B}, s{A}
        v_add_u32 v{t+3}, s{B}, v{t}
        v_mul_u32_u24 v{t+4}, 3277, v{t+3}
        v_lshrrev_b32 v{t+4}, 16, v{t+4}
        v_mul_u32_u24 v{t+5}, 20, v{t+4}
        v_sub_u32 v{t+5}, v{t+3}, v{t+5}
        v_mul_u32_u24 v{t+4}, 81920, v{t+4}
        v_lshl_add_u32 v{t+4}, v{t+5}, 4, v{t+4}
        v_mul_u32_u24 v{t+5}, 320, v{t+2}
        v_add_u32 v{ast+2*cb}, v{t+4}, v{t+5}
        v_add_u32 v{ast+2*cb+1}, 640, v{ast+2*cb}""")
    p(f"{jn}:")
    halo_cond(halo,A)
    if CFG['honly']: p(f"s_mul_i32 s{A}, s{halo}, {KH-KB}\ns_add_u32 s{so}, s{so}, s{A}\ns_add_u32 s{so2}, s{so2}, s{A}")
    p(f"""s_lshl_b32 s{fo}, s{sG}, 4
    s_add_u32 s{fo}, s{fo}, s{lc}
    s_lshl_b32 s{fo}, s{fo}, 5
    s_lshl_b32 s{A}, s{sRB}, 1
    s_add_u32 s{A}, s{A}, s{wr}
    s_add_u32 s{fo}, s{fo}, s{A}
    s_lshl_b32 s{fo}, s{fo}, 2
    s_add_u32 s{fo}, s{fo}, {FL}""")
def xf(buf,xb): return XF+8*buf+4*xb
def wf(buf,cb): return WF+8*buf+4*cb
def reads(kind,buf,par,s):
    L=[]
    for xb in range(2): L.append(f"ds_read_b128 {vr(xf(buf,xb),4)}, v{aX+s} offset:{par*32768+xb*4096}")
    if kind!='S':
        for cb in range(2):
            for rd in range(2): L.append(f"ds_read_b64_tr_b16 {vr(wf(buf,cb)+2*rd,2)}, v{aW+cb} offset:{par*32768+s*4096+rd*1024}")
        L=[L[2],L[3],L[0],L[1],L[4],L[5]]
    return L
def mfmas(kind,buf):
    L=[]
    if kind=='S':
        for xb in range(2):
            x=xf(buf,xb)
            L.append(f"v_mfma_f32_16x16x32_bf16 {vr(ACC+4*xb,4)}, {vr(SEL,4)}, {vr(x,4)}, {vr(ACC+4*xb,4)}")
            L.append(f"v_mfma_f32_4x4x4_16b_bf16 {vr(ACC+8+8*xb,4)}, {vr(x,2)}, {vr(x,2)}, {vr(ACC+8+8*xb,4)}")
            L.append(f"v_mfma_f32_4x4x4_16b_bf16 {vr(ACC+12+8*xb,4)}, {vr(x+2,2)}, {vr(x+2,2)}, {vr(ACC+12+8*xb,4)}")
        return L
    for cb in range(2):
        for xb in range(2):
            a=ACC+16*(2*xb+cb); X=vr(xf(buf,xb),4); W=vr(wf(buf,cb),4)
            L.append(f"v_mfma_f32_32x32x16_bf16 {vr(a,16)}, {W if kind=='T' else X}, {X if kind=='T' else W}, {vr(a,16)}")
    L.insert(2,f"v_mfma_f32_16x16x32_bf16 {vr(CS,4)}, {vr(SEL,4)}, {vr(wf(buf,0),4)}, {vr(CS,4)}")
    return L
def gemm_loop(kind):
    CNT=sT+10
    lp=p.lab("g"+kind)
    STAMP('rdy')
    p("s_barrier")
    STAMP('b0')
    for r in reads(kind,0,0,0): p(r)
    if CFG['clr']==1 and not CFG['hclr']: clears(1)
    cl_=p.lab("clr"); cr_=p.lab("clrr")
    if CFG['clr']>1:
        n0=len(p.L); p(f"{cl_}:"); clears(1); p(f"s_branch {cr_}")
        COLD.append("\n".join(p.L[n0:])); del p.L[n0:]
    hl=p.lab("hello"); hr=p.lab("hellor")
    if not CFG['hclr']:
        COLD.append(f"""{hl}:
        s_getreg_b32 s{CNT+1}, hwreg(HW_REG_XCC_ID, 0, 4)
        s_or_b32 s{CNT+1}, s{CNT+1}, s{sTAG}
        v_mov_b32 v{vT}, s{CNT+1}
        s_lshl_b32 s{CNT+1}, s2, 2
        s_add_u32 s{CNT+1}, s{CNT+1}, {H1}
        v_mov_b32 v{vT+1}, 0
        s_mov_b64 exec, 1
        buffer_store_dword v{vT}, v{vT+1}, {S4(sWS)}, s{CNT+1} offen sc1
        s_mov_b64 exec, -1
        s_branch {hr}""")
        p(f"s_lshl_b32 s{CNT+2}, s{sWAVE}, 3\ns_add_u32 s{CNT+2}, s{CNT+2}, {5-CFG['clr']}")
    p(f"s_mov_b32 s{CNT}, 5\n{lp}:")
    if CFG['clr']>1: p(f"s_cmp_eq_u32 s{CNT}, {6-CFG['clr']}\ns_cbranch_scc1 {cl_}\n{cr_}:")
    for k in range(1,5):
        if (CFG['cal'] and CFG['cal'][0]=='it%d'%(2*k)) or (CFG['amp'] and 'it%d'%(2*k) in CFG['amp'][:2]) or (CFG['prof'] and any('it%d'%(2*k) in n.split('|') for n in CFG['st'])):
            sk=p.lab("its"); p(f"s_cmp_lg_u32 s{CNT}, {5-k}\ns_cbranch_scc1 {sk}"); STAMP('it%d'%(2*k)); p(f"{sk}:")
    for par in range(2):
        for s in range(4):
            buf=s&1
            last=(s==3)
            M=mfmas(kind,buf)
            if CFG['nomfma']: M=M[:1]
            if last and par==1:
                pre=[f"v_xor_b32 v{aX+i}, 0x10000, v{aX+i}" for i in range(4)]+[f"v_xor_b32 v{aW+i}, 0x10000, v{aW+i}" for i in range(2)]
            else: pre=[]
            R=reads(kind,buf^1,(par^1) if last else par,(s+1)&3)
            p("s_waitcnt lgkmcnt(0)")
            if last:
                p(M.pop(0))
                for x in pre: p(x)
                if par==0 and not CFG['hclr']:
                    w1=p.lab("cw"); w2=p.lab("cwr")
                    p(f"s_cmp_eq_u32 s{CNT}, {5-CFG['clr']}\ns_cbranch_scc1 {w1}\n{w2}:")
                    COLD.append(f"{w1}:\ns_waitcnt vmcnt(0)\ns_branch {w2}")
                p("s_barrier")
                if par==0 and not CFG['hclr']: p(f"s_cmp_eq_u32 s{CNT}, s{CNT+2}\ns_cbranch_scc1 {hl}\n{hr}:")
            k=0
            while M or R:
                if R: p(R.pop(0))
                if R: p(R.pop(0))
                if M: p(M.pop(0))
    p(f"""s_sub_u32 s{CNT}, s{CNT}, 1
    s_cmp_lg_u32 s{CNT}, 0
    s_cbranch_scc1 {lp}""")
    STAMP('gend')
def bf16r(dst,src):
    p(f"v_cvt_pk_bf16_f32 v{dst}, v{src}, v{src}\nv_and_b32 v{dst}, 0xffff0000, v{dst}")
def mode_read():
    p(f"""v_mov_b32 v{vT+8}, {L_MODE}
    ds_read_b32 v{vT+9}, v{vT+8}""")
def mode_get():
    p(f"v_readfirstlane_b32 s{sMODE}, v{vT+9}")
def dual(stores,pol='',sMODE=sMODE):
    sl=p.lab("slow"); jn=p.lab("jn")
    p(f"s_cmp_lg_u32 s{sMODE}, 0\ns_cbranch_scc1 {sl}")
    for s in stores: p(s+" "+pol)
    p(f"s_branch {jn}\n{sl}:")
    for s in stores: p(s+" sc1")
    p(f"{jn}:")
def idle_gemm():
    vt=10; aI=20; acc=28; one=32; D=64; A=sT+10
    p(f"""s_lshl_b32 s{A}, s{sWR_}, 13
    v_bfe_u32 v{vt}, v0, 1, 3
    v_lshlrev_b32 v{vt}, 4, v{vt}
    v_lshl_add_u32 v{vt}, v0, 7, v{vt}
    v_add_u32 v{aI}, s{A}, v{vt}
    v_mov_b32 v{one}, 0x3f803f80
    s_lshl_b32 s{A}, s{sG}, 2
    s_add_u32 s{A}, s{A}, s{sRB}
    s_lshl_b32 s{A}, s{A}, 14
    s_lshl_b32 s{A+1}, s{sWR_}, 10
    s_add_u32 s{A}, s{A}, s{A+1}
    s_add_u32 s{A}, s{A}, {STP+2*2048}
    v_lshlrev_b32 v{vt}, 4, v0""")
    for i in range(1,8): p(f"v_xor_b32 v{aI+i}, {16*i}, v{aI}")
    for i in range(4): p(f"v_mov_b32 v{acc+i}, 0")
    k=CFG['clr']
    for c in range(11):
        if c==1+2*k and not CFG['hclr']: p(f"s_waitcnt vmcnt({1 if k==1 else 0})")
        p("s_barrier")
        if k and c==2*k-2 and c!=2: clears(1)
        if c<3:
            if c==2:
                for i in range(8): p(f"v_add_u32 v{aI+i}, 0x10000, v{aI+i}")
            for i in range(8): p(f"ds_read_b128 {vr(D+4*i,4)}, v{aI+i} offset:{(c&1)*32768}")
            for i in range(8):
                p(f"s_waitcnt lgkmcnt({7-i})")
                for j in range(4):
                    r=D+4*i+j
                    p(f"v_dot2_f32_bf16 v{acc+(j&1)}, v{r}, v{one}, v{acc+(j&1)}\nv_dot2_f32_bf16 v{acc+2+(j&1)}, v{r}, v{r}, v{acc+2+(j&1)}")
        if c==2: p(f"""s_nop 1
            v_add_f32 v{acc}, v{acc}, v{acc+1}
            v_add_f32 v{acc+1}, v{acc+2}, v{acc+3}
            v_mov_b32 v{acc+2}, s{sTAG}
            buffer_store_dwordx4 {vr(acc,4)}, v{vt}, {S4(sWS)}, s{A} offen sc1""")
        if k==2 and c==2: clears(1)
    p("s_barrier")
    mode_read()
    p("s_waitcnt lgkmcnt(0)")
    mode_get()
HST=[]
def gemm_epi(kind):
    t=vT; A=sT+10
    AU=20
    WA=24
    XA=28
    RS=32
    p(f"""v_and_b32 v{t}, 31, v0
    s_lshl_b32 s{A}, s{sWC}, 1
    s_or_b32 s{A}, s{A}, s{sWR_}
    s_lshl_b32 s{A}, s{A}, 7
    s_add_u32 s{A}, s{A}, {L_CS}
    v_lshl_add_u32 v{t+1}, v{t}, 2, s{A}
    s_lshl_b32 s{A}, s{sWR_}, 9
    s_add_u32 s{A}, s{A}, {L_SA}
    v_lshl_add_u32 v{t+3}, v{t}, 3, s{A}
    ds_write_b32 v{t+1}, v{CS}
    v_xor_b32 v{t+2}, 128, v{t+1}
    v_mov_b32 v{WA+1}, 0
    v_mov_b32 v{WA+3}, 0
    v_mov_b32 v{XA+1}, 0
    v_mov_b32 v{XA+3}, 0""")
    if kind=='V':
        p(f"""v_lshrrev_b32 v{t+4}, 5, v0
        s_lshl_b32 s{A}, s{sWR_}, 8
        s_add_u32 s{A}, s{A}, {L_SR}
        v_lshl_add_u32 v{t+4}, v{t+4}, 4, s{A}""")
    p("s_waitcnt lgkmcnt(0)\ns_barrier")
    STAMP('E1',1)
    p(f"""ds_read_b32 v{CS+1}, v{t+2}
    ds_read_b64 v[{AU}:{AU+1}], v{t+3}
    ds_read_b64 v[{AU+2}:{AU+3}], v{t+3} offset:256""")
    mode_read()
    if kind=='V':
        for xb in range(2):
            for i in range(4): p(f"ds_read_b128 {vr(RS+16*xb+4*i,4)}, v{t+4} offset:{xb*128+i*32}")
    def split(cb):
        c=CS+cb
        p(f"""v_cndmask_b32 v{c}, 0, v{c}, s[{sLO}:{sLO+1}]
        v_cvt_pk_bf16_f32 v{t+5}, v{c}, v{c}
        v_and_b32 v{t+5}, 0xffff0000, v{t+5}
        v_sub_f32 v{t+6}, v{c}, v{t+5}
        v_cvt_pk_bf16_f32 v{WA+2*cb}, v{t+5}, v{t+6}""")
    split(0)
    p(f"s_waitcnt lgkmcnt({8 if kind=='V' else 0})")
    split(1)
    p(f"v_mov_b32 v{XA}, v{AU}\nv_mov_b32 v{XA+2}, v{AU+2}")
    mode_get()
    if kind=='T':
        p(f"""s_cmp_eq_u32 s{sTY}, 0
        s_cselect_b32 s{A}, {hex(f2u(20**-0.5*math.log2(math.e)))}, 1.0
        v_mul_f32 v{AU+1}, s{A}, v{AU+1}
        v_mul_f32 v{AU+3}, s{A}, v{AU+3}""")
    else: p("s_nop 0")
    for xb in range(2):
        for cb in range(2):
            a=ACC+16*(2*xb+cb); X=vr(XA+2*xb,2); W=vr(WA+2*cb,2)
            p(f"v_mfma_f32_32x32x8_bf16 {vr(a,16)}, {W if kind=='T' else X}, {X if kind=='T' else W}, {vr(a,16)}")
    p("s_waitcnt lgkmcnt(0)\ns_nop 7")
    if CFG['honly']: p(f"s_or_b32 s{sHALO}, s{sHALO}, s{sMODE}")
    allst=[]
    for xb in range(2):
        st=[]
        for cb in range(2):
            a=ACC+16*(2*xb+cb)
            for k in range(8):
                if kind=='T': p(f"v_pk_mul_f32 {vr(a+2*k,2)}, {vr(a+2*k,2)}, {vr(AU+2*xb,2)} op_sel:[0,1] op_sel_hi:[1,1]")
                else: p(f"v_pk_mul_f32 {vr(a+2*k,2)}, {vr(a+2*k,2)}, {vr(RS+16*xb+2*k,2)}")
            for k in range(8): p(f"v_cvt_pk_bf16_f32 v{a+k}, v{a+2*k}, v{a+2*k+1}")
            if kind=='T':
                p(f"""v_permlane32_swap_b32 v{a}, v{a+2}
                v_permlane32_swap_b32 v{a+1}, v{a+3}
                v_permlane32_swap_b32 v{a+4}, v{a+6}
                v_permlane32_swap_b32 v{a+5}, v{a+7}""")
            for h in range(2):
                st.append(f"buffer_store_dwordx4 {vr(a+4*h,4)}, v{aST+2*cb+h}, {S4(sWS)}, s{sSO2 if xb else sSO} offen")
                allst.append(a+4*h)
        dual(st,CFG['qpol'],sHALO if CFG['honly'] else sMODE)
    STAMP('st')
    if CFG['honly']:
        p(f"""v_mov_b32 v{t}, 0
        v_mov_b32 v{t+1}, s{sTAG}
        s_lshl_b32 s{A}, s{sWC}, 2
        s_add_u32 s{A}, s{A}, {F_STG}
        v_mov_b32 v{t+2}, s{A}
        v_mov_b32 v{t+3}, 1
        s_mov_b64 exec, 1
        s_waitcnt vmcnt(0)
        ds_add_u32 v{t+2}, v{t+3}""")
        dual([f"buffer_store_dword v{t+1}, v{t}, {S4(sWS)}, s{sFO} offen"])
        p("s_mov_b64 exec, -1")
        STAMP('fl')
        return
    nh=p.lab("nohalo"); jh=p.lab("jhalo")
    if CFG['hdef']>=0: A=sT+18
    hst=[f"buffer_store_dwordx4 {vr(allst[i],4)}, v{aST+(i&3)}, {S4(sWS)}, s{A+(i>>2)} offen sc1" for i in range(8)]
    p(f"""v_mov_b32 v{t}, 0
    v_mov_b32 v{t+1}, s{sTAG}
    s_add_u32 s{A}, s{sSO}, {KH-KB}
    s_add_u32 s{A+1}, s{sSO2}, {KH-KB}""")
    if CFG['hst']:
        p(f"s_cmp_eq_u32 s{sHALO}, 0\ns_cbranch_scc1 {nh}")
        for i in range(8): p(f"ds_write_b128 v{aSG}, {vr(allst[i],4)} offset:{i*1024}")
        for k in range(4): p(f"v_add_u32 v{t+4+k}, s{A}, v{aST+k}")
        p(f"""s_lshl_b32 s{A}, s{sWC}, 2
        s_add_u32 s{A}, s{A}, {F_STG}
        ds_write_b128 v{aSG}, {vr(t+4,4)} offset:8192
        v_mov_b32 v{t+2}, s{A}
        v_mov_b32 v{t+3}, 1
        s_mov_b64 exec, 1
        ds_add_u32 v{t+2}, v{t+3}
        s_waitcnt vmcnt(0)""")
        dual([f"buffer_store_dword v{t+1}, v{t}, {S4(sWS)}, s{sFO} offen"])
        p(f"""ds_add_u32 v{t+2}, v{t+3} offset:8
        s_branch {jh}
        {nh}:
        s_waitcnt vmcnt(0)
        s_mov_b64 exec, 1""")
        dual([f"buffer_store_dword v{t+1}, v{t}, {S4(sWS)}, s{sFO} offen"])
        p(f"{jh}:\ns_mov_b64 exec, -1")
        STAMP('fl')
        return
    if CFG['hdef']>=0:
        HST[:]=hst
        p("s_waitcnt vmcnt(0)")
    elif CFG['hearly']:
        p(f"s_cmp_eq_u32 s{sHALO}, 0\ns_cbranch_scc1 {nh}")
        for x in hst: p(x)
        p(f"s_waitcnt vmcnt(8)\ns_branch {jh}\n{nh}:\ns_waitcnt vmcnt(0)\n{jh}:")
    else: p("s_waitcnt vmcnt(0)")
    p("s_mov_b64 exec, 1")
    dual([f"buffer_store_dword v{t+1}, v{t}, {S4(sWS)}, s{sFO} offen"])
    p(f"s_mov_b64 exec, -1")
    if not CFG['hearly'] and CFG['hdef']<0:
        p(f"s_cmp_eq_u32 s{sHALO}, 0\ns_cbranch_scc1 {nh}")
        for x in hst: p(x)
        p(f"{nh}:")
    STAMP('fl')
import struct
def f2u(x): return struct.unpack("<I",struct.pack("<f",x))[0]

aLin,aTl,aKm,aKt,aV,aFl,aO,aQ0,aQ1=246,247,248,249,250,251,252,253,254
aKm1,aKt1,aV1=216,217,218
QM=[28,34]; QT=[32,38]; PP=40
KM=[48,62]; KT=[52,66]; VV=[[54,58],[68,72]]
SS=[80,96]; OO=[112,128]; CD=200; CF=230
cVM=8; sQ=[10,11]; sOm=[12,13]; sOt=[14,15]; cXO,cJ,cF,cK,cV,cL,cHO,cT0,cHX=range(16,25); sOSC=sT+15; sFB=sT+16; aWR=225
NINF="0xff800000"
def att_setup():
    t=vT; A=sT+7; B=sT+8; C=sT+17; sF=cF
    wo_pre1()
    att_ids()
    moe_role()
    p(f"v_mov_b32 v{aCLS}, 0x207")
    if CFG['hkv']: p(f"v_lshlrev_b32 v{aLin}, 4, v0\nv_mov_b32 v{aFl}, {F_G1}")
    else:
        flag_addr(aFl,t,1,A,B,C)
        p(f"""s_lshl_b32 s{sF}, s{sG}, 11
        s_lshl_b32 s{A}, s{sHF}, 4
        v_mov_b32 v{t}, s{A}
        v_cmp_gt_u32 vcc, 8, v0
        s_add_u32 s{sF}, s{sF}, {FL}
        s_mov_b32 s{sK1024}, 1024
        v_cndmask_b32 v{t}, 8, v{t}, vcc
        v_add_u32 v{aFl}, v{aFl}, v{t}""")
        kv_addr(aLin,aTl,t)
    p(f"""s_lshl_b32 s{A}, s{sHF}, 10
    s_add_u32 s{B}, s{A}, {L_KV}
    v_add_u32 v{aKm}, s{B}, v{aLin}
    s_sub_u32 s{B}, {L_KV+1024}, s{A}
    v_add_u32 v{aKm1}, s{B}, v{aLin}
    v_and_b32 v{t}, 31, v0
    v_lshrrev_b32 v{t+1}, 5, v0
    v_xor_b32 v{t+2}, s{sHO}, v{t+1}
    v_lshlrev_b32 v{t+2}, 3, v{t+2}
    v_lshl_add_u32 v{t+2}, v{t}, 4, v{t+2}
    s_lshl_b32 s{A}, s{sHF}, 9
    s_add_u32 s{B}, s{A}, {L_KV+2048}
    v_add_u32 v{aKt}, s{B}, v{t+2}
    s_sub_u32 s{B}, {L_KV+2048+512}, s{A}
    v_add_u32 v{aKt1}, s{B}, v{t+2}
    v_mul_u32_u24 v{t+2}, 320, v{t+1}
    v_lshl_add_u32 v{t+2}, v{t}, 4, v{t+2}
    s_mul_i32 s{A}, s{sHF}, 1280
    s_add_u32 s{B}, s{A}, {L_KV+3072}
    v_add_u32 v{aV}, s{B}, v{t+2}
    s_sub_u32 s{B}, {L_KV+3072+1280}, s{A}
    v_add_u32 v{aV1}, s{B}, v{t+2}
    v_lshlrev_b32 v{t+2}, 2, v{t+1}
    v_sub_u32 v{t+2}, v{t}, v{t+2}
    s_cmp_eq_u32 s{sHF}, 0
    s_cselect_b32 s{A}, {NINF}, 0
    s_cselect_b32 s{B}, 0, {NINF}
    v_mov_b32 v{t+3}, s{A}
    v_mov_b32 v{t+4}, s{B}""")
    for i in range(16):
        m=C+1+2*(i%2)+((C+1)%2)
        ri=8*(i>>2)+(i&3)
        p(f"v_cmp_le_i32 s[{m}:{m+1}], {ri}, v{t+2}")
        if i>0:
            m2=C+1+2*((i-1)%2)+((C+1)%2)
            if i==1: p("s_nop 0")
            p(f"v_cndmask_b32 v{CD+i-1}, v{t+3}, v{t+4}, s[{m2}:{m2+1}]\nv_cndmask_b32 v{CF+i-1}, v{t+4}, v{t+3}, s[{m2}:{m2+1}]")
    p(f"""s_nop 0
    v_cndmask_b32 v{CD+15}, v{t+3}, v{t+4}, s[{m}:{m+1}]
    v_cndmask_b32 v{CF+15}, v{t+4}, v{t+3}, s[{m}:{m+1}]
    v_cmp_eq_u32 s[{m}:{m+1}], 20, v{t}
    v_cmp_eq_u32 vcc, 24, v{t}
    s_mov_b32 s{cHO}, s{sHO}
    s_or_b64 s[{cVM}:{cVM+1}], vcc, s[{m}:{m+1}]""")
    p(f"""v_bfe_u32 v{t+2}, v0, 4, 1
    v_mul_u32_u24 v{t+2}, 20480, v{t+2}
    v_lshl_add_u32 v{t+2}, v{t+1}, 8, v{t+2}
    v_and_b32 v{t+3}, 15, v0
    v_lshl_add_u32 v{aO}, v{t+3}, 4, v{t+2}
    s_xor_b32 s{cHX}, s{sHF}, s{sHH}
    s_mov_b32 s{cT0}, s{sT0}
    s_lshl_b32 s{A}, s{sWAVE}, 1
    s_sub_u32 s{A}, 7, s{A}
    v_mul_u32_u24 v{t+2}, s{A}, v0
    s_add_u32 s{A}, s{sT0}, s{sWAVE}
    v_add_lshl_u32 v{aFO}, v{t+2}, s{A}, 12
    s_lshl_b32 s{A}, s{sHD}, 7
    s_add_u32 s{A}, s{A}, {FO}
    v_add_u32 v{aFO}, s{A}, v{aFO}""")
    for q in range(2):
        p(f"""s_sub_u32 s{A}, 7, s{sWAVE}
        s_cmp_eq_u32 s{sHF}, {q}
        s_cselect_b32 s{A}, s{A}, s{sWAVE}
        s_add_u32 s{A}, s{A}, s{sT0}""")
        p(f"""s_mul_i32 s{sQ[q]}, s{A}, 2560
        s_mul_i32 s{B}, s{sPH}, {64*2560}
        s_add_u32 s{sQ[q]}, s{sQ[q]}, s{B}
        s_mul_i32 s{A}, s{A}, 40960
        s_mul_i32 s{B}, s{sPH}, 1280
        s_add_u32 s{A}, s{A}, s{B}
        s_add_u32 s{A}, s{A}, {OB}
        s_mul_i32 s{B}, s{sHO}, 768
        s_add_u32 s{sOm[q]}, s{A}, s{B}
        s_lshl_b32 s{B}, s{sHO}, 3
        s_add_u32 s{sOt[q]}, s{A}, s{B}""")
    sK=cK; sV=cV; sL=cL
    if not CFG['hkv']: p(f"""s_lshl_b32 s{A}, s{sWAVE}, 1
    s_sub_u32 s{B}, -2, s{A}
    s_cmp_eq_u32 s{sHF}, 0
    s_cselect_b32 s{A}, s{A}, s{B}
    s_add_u32 s{A}, s{A}, s{sT0}
    s_mul_i32 s{sK}, s{A}, 2560
    s_mul_i32 s{sV}, s{A}, 1280
    s_mul_i32 s{A}, s{sPH}, {64*2560}
    s_add_u32 s{sK}, s{sK}, s{A}
    s_add_u32 s{sK}, s{sK}, {KB}
    s_mul_i32 s{A}, s{sHD}, 81920
    s_add_u32 s{sV}, s{sV}, s{A}
    s_add_u32 s{sV}, s{sV}, {VB}
    s_mul_i32 s{sL}, s{sWAVE}, 5632
    s_add_u32 s{sL}, s{sL}, {L_KV+4*5632}""")
    p(f"""s_mul_i32 s{A}, s{sHO}, 1536
    v_add_u32 v{aQ0}, s{A}, v{aLin}
    s_lshl_b32 s{A}, s{sHO}, 3
    v_add_u32 v{aQ1}, s{A}, v{aLin}""")
aXD=219; aXL=223
def xr_loads():
    if CFG['xdma']:
        A=sT+7; B=sT+8
        p(f"""s_mul_i32 s{A}, s{sWAVE}, 2560
        s_add_u32 m0, s{A}, {L_STG}
        s_add_u32 s{A}, s{cXO}, 6720
        s_add_u32 s{B}, s{cXO}, 13440
        s_mov_b32 exec_hi, 0x0fffffff
        buffer_load_dwordx4 v{aXD}, {S4(sX)}, s{cXO} offen lds
        buffer_load_dwordx4 v{aXD}, {S4(sX)}, s{A} offen offset:960 lds
        s_mov_b32 exec_hi, 0xff
        buffer_load_dwordx4 v{aXD}, {S4(sX)}, s{B} offen offset:1920 lds
        s_mov_b32 m0, {L_SA}
        s_mov_b64 exec, 0x3ff
        buffer_load_dwordx4 v{aLin}, {S4(sWR)}, s{cJ} offen lds
        s_mov_b64 exec, -1""")
        return
    for o,n in ((0,4),(4,4),(8,2)): p(f"buffer_load_dwordx{n} {vr(XR+o,n)}, v{aX2}, {S4(sX)}, s{cXO} offen offset:{4*o}")
    for o,n in ((0,4),(4,4),(8,2)): p(f"buffer_load_dwordx{n} {vr(WR_+o,n)}, v{aWR}, {S4(sWR)}, s{cJ} offen offset:{4*o}")
def att_go():
    t=vT; A=sT+7; B=sT+8; C=sT+17
    nh=p.lab("nohs"); lp=p.lab("fp"); ok=p.lab("fpok"); md=p.lab("fpm")
    ld=f"buffer_load_dword v{t+10}, v{aFl}, {S4(sWS)}, s{cF} offen sc1"
    OWN=CFG['hsp']&2; sOWN=sT+19
    if OWN:
        assert not (CFG['hkv'] or CFG['hst'] or CFG['honly'] or CFG['hdef']>=0) and CFG['xru']>=0
        p(f"s_andn2_b32 s{sOWN}, s{sHAL2}, s{sMODE}\ns_cbranch_scc1 L_nold\n{ld}\nL_nold:")
    elif not CFG['hkv']: p(ld)
    p(f"""v_mov_b32 v{t+4}, 0x3f803f80
    s_or_b32 s{sOSC}, s{cHX}, s{sMODE}
    s_mov_b32 s{sFB}, 0
    s_mul_i32 s{A}, s{sMODE}, {OB2-OB}
    v_add_u32 v{aO}, s{A}, v{aO}""")
    HD=CFG['hdef']>=0
    def vvi(b_):
        for mm in range(2):
            for r in range(4): p(f"v_cndmask_b32 v{VV[b_][mm]+r}, 0, v{t+4}, s[{cVM}:{cVM+1}]")
    vvi(0)
    if not HD: vvi(1)
    for q in range(2): p(f"v_mov_b32 v{QT[q]}, 0\nv_mov_b32 v{QT[q]+1}, 0")
    if CFG['osent']: wo_scal()
    assert CFG['hsent'] or not CFG['hkv']
    if CFG['hkv']:
        p(f"v_mov_b32 v{t+4}, {F_FS}"); lds_wait(t+4,t+5,C,'gt',1,0)
    else:
        if CFG['hst'] or HD or CFG['honly']: p(f"s_mov_b32 s{C}, {SPIN}\ns_waitcnt vmcnt(0)")
        else: p(f"""s_lshr_b32 s{A}, s{sWAVE}, 1
        s_lshl_b32 s{A}, s{A}, 2
        s_add_u32 s{A}, s{A}, {F_STG}
        v_mov_b32 v{t+4}, s{A}
        v_mov_b32 v{t+5}, 1
        {f"s_cmp_lg_u32 s{sOWN}, 0" if OWN else ""}
        {f"s_cbranch_scc1 L_own" if OWN else ""}
        s_mov_b32 s{C}, {SPIN}
        s_cmp_eq_u32 s{sHAL2}, 0
        s_waitcnt vmcnt(0)
        s_cbranch_scc1 {nh}
        s_mov_b64 exec, 1
        ds_add_u32 v{t+4}, v{t+5}
        s_mov_b64 exec, -1
        {nh}:""")
        STAMP('hack')
        p(f"""s_branch {md}
        {lp}:
        {ld}
        s_waitcnt vmcnt(0)
        {md}:
        v_cmp_ne_u32 vcc, s{sTAG}, v{t+10}
        s_nop 0
        s_cbranch_vccz {ok}""")
        spin(C,lp,ok)
        p(f"s_branch {lp}")
        if OWN:
            p(f"L_own:\nv_mov_b32 v{t+6}, {F_OWN}\ns_mov_b64 exec, 1\nds_add_u32 v{t+6}, v{t+5} offset:{F_FS-F_OWN+65536}\ns_mov_b64 exec, -1".replace(f"offset:{F_FS-F_OWN+65536}","") if 0 else f"L_own:\nv_mov_b32 v{t+6}, {F_FS}\ns_mov_b64 exec, 1\nds_add_u32 v{t+6}, v{t+5}\ns_mov_b64 exec, -1\nv_mov_b32 v{t+6}, {F_OWN}"); lds_wait(t+6,t+7,C,'gt',1,0)
        p(f"{ok}:")
    STAMP('fseen')
    if not CFG['hkv']: kv_dma(aLin,aTl,cK,cV,cL,A,B,cHO)
    for q in range(2): p(f"buffer_load_dwordx4 {vr(QM[q],4)}, v{aQ0}, {S4(sWS)}, s{sQ[q]} offen {CFG['ldp']}")
    p(f"s_mov_b64 exec, s[{sLO}:{sLO+1}]")
    for q in range(2): p(f"buffer_load_dwordx2 {vr(QT[q],2)}, v{aQ1}, {S4(sWS)}, s{sQ[q]} offen offset:1024 {CFG['ldp']}")
    if HD:
        assert CFG['xru']>CFG['hdef']
        n2=p.lab("nohd"); j2=p.lab("jhd")
        p(f"""s_mov_b64 exec, 1
        v_mov_b32 v{t}, {F_G1}
        v_mov_b32 v{t+1}, 1
        ds_add_u32 v{t}, v{t+1} offset:{F_FS-F_G1}
        s_mov_b64 exec, -1
        v_mov_b32 v{aFl}, {F_G1}
        s_cmp_eq_u32 s{sHAL2}, 0
        s_cbranch_scc1 {n2}""")
        g1=lambda n: p(f"s_mov_b64 exec, 1\ns_waitcnt vmcnt({n})\nds_add_u32 v{t}, v{t+1}\ns_mov_b64 exec, -1")
        if CFG['hdg']=='G1':
            g1(4); lds_wait(aFl,t+5,C,'gt',4,0)
            for x in HST: p(x)
            p("s_nop 1"); vvi(1)
        else:
            if CFG['hdg']=='FS': p(f"v_mov_b32 v{t+6}, {F_FS}"); lds_wait(t+6,t+5,C,'gt',4,0)
            for x in HST: p(x)
            p("s_nop 1"); vvi(1)
            g1(12); lds_wait(aFl,t+5,C,'gt',4,0)
        p(f"s_waitcnt vmcnt(8)\ns_branch {j2}\n{n2}:")
        vvi(1); g1(4); lds_wait(aFl,t+5,C,'gt',4,0)
        p(f"""s_waitcnt vmcnt(0)
        {j2}:
        s_lshr_b32 s{A}, s{sWAVE}, 1
        s_lshl_b32 s{A}, s{A}, 2
        s_add_u32 s{A}, s{A}, {F_STG}
        v_mov_b32 v{t+4}, s{A}""")
    elif CFG['hkv']: p("s_mov_b64 exec, -1")
    else: p(f"""s_mov_b64 exec, 1
    v_mov_b32 v{t}, {F_G1}
    v_mov_b32 v{t+1}, 1
    {f"ds_add_u32 v{t}, v{t+1} offset:{F_FS-F_G1}" if 'FS' in CFG['gm']+CFG['gr'] else ""}
    {f"s_cmp_eq_u32 s{sOWN}, 0" if OWN else ""}
    {f"s_cbranch_scc1 L_nohk" if OWN else ""}
    {f"s_waitcnt vmcnt(10)" if OWN else ""}
    {f"ds_add_u32 v{t+4}, v{t+1}" if OWN else ""}
    {f"L_nohk:" if OWN else ""}
    s_waitcnt vmcnt(4)
    ds_add_u32 v{t}, v{t+1}
    s_mov_b64 exec, -1
    v_mov_b32 v{aFl}, {F_G1}""")
    if CFG['hkv']: lds_wait(aFl,t+5,C,'gt',4,0)
    if CFG['xru']<0: xr_loads()
    if not HD:
        if not CFG['hkv']: lds_wait(aFl,t+5,C,'gt',4,0)
        p(f"s_waitcnt vmcnt({6 if CFG['xru']<0 else 0})")
    STAMP('kv')
    p(f"""s_cmp_eq_u32 s{sWAVE}, 1
    s_cbranch_scc1 L_av1
    s_cmp_eq_u32 s{sWAVE}, 2
    s_cbranch_scc1 L_av2
    s_cmp_eq_u32 s{sWAVE}, 3
    s_cbranch_scc1 L_av3""")
def kreads(n,b_):
    o=(n>>1)*5632
    return [f"ds_read_b128 {vr(KM[b_],4)}, v{(aKm,aKm1)[n&1]} offset:{o}", f"ds_read_b64 {vr(KT[b_],2)}, v{(aKt,aKt1)[n&1]} offset:{o}"]
def vreads(n,b_):
    o=(n>>1)*5632; a=(aV,aV1)[n&1]
    return [f"s_mov_b64 exec, s[{sLO+2}:{sLO+3}]", f"ds_read_b128 {vr(VV[b_][0],4)}, v{a} offset:{o}", f"ds_read_b128 {vr(VV[b_][1],4)}, v{a} offset:{o+640}", "s_mov_b64 exec, -1"]
def att_variant(w):
    U=[]
    for n in range(15-w,8+w,-1): U.append((0,n))
    for n in range(8+w,6-w,-1): U+= [(0,n),(1,n)]
    for n in range(6-w,w-1,-1): U.append((1,n))
    assert len(U)==18
    diag=[15-w,8+w]
    tiles=[]; tau=[]
    for q,n in U:
        if not tiles or tiles[-1]!=n: tiles.append(n)
        tau.append(len(tiles)-1)
    first=[tau.index(i) for i in range(len(tiles))]
    started=[0,0]
    def QK(u):
        q,n=U[u]; b_=tau[u]&1; S=vr(SS[u&1],16)
        c=vr(CD,16) if n==diag[q] else (vr(CF,16) if n==diag[q]-8 else "0")
        return [f"v_mfma_f32_32x32x16_bf16 {S}, {vr(KM[b_],4)}, {vr(QM[q],4)}, {c}", f"v_mfma_f32_32x32x8_bf16 {S}, {vr(KT[b_],2)}, {vr(QT[q],2)}, {S}"]
    def PV(u,m):
        q,n=U[u]; O=vr(OO[q],16)
        c=O if started[q] else "0"; started[q]=1
        return f"v_mfma_f32_32x32x16_bf16 {O}, {vr(VV[tau[u]&1][m],4)}, {vr(PP+4*m,4)}, {c}"
    p(f"L_av{w}:")
    for i,f in enumerate(first):
        if f<=1:
            for x in kreads(tiles[i],i&1): p(x)
    for x in vreads(tiles[0],0): p(x)
    p("s_waitcnt lgkmcnt(0)")
    for x in QK(0): p(x)
    p("s_nop 7\ns_nop 3")
    pend=False
    H=first[tiles.index(7)]
    H2=first[tiles.index(3)]
    for u in range(18):
        S=SS[u&1]
        e=lambda i: p(f"v_exp_f32 v{S+i}, v{S+i}")
        c=lambda k: p(f"v_cvt_pk_bf16_f32 v{PP+k}, v{S+2*k}, v{S+2*k+1}")
        kr=[x for i,f in enumerate(first) if f==u+2 for x in kreads(tiles[i],i&1)]
        vr_=[x for i,f in enumerate(first) if f==u+1 for x in vreads(tiles[i],i&1)]
        late=(u+2 in (H,H2)); pre=(u+3 in (H,H2)); hk=int(u+3>=H2)
        STAMP('u%d'%u)
        e(0); e(1)
        if u>0: p(PV(u-1,1))
        if u==CFG['xru']: xr_loads()
        if u==CFG['hdef']:
            p(f"v_mov_b32 v{vT+5}, 1\ns_waitcnt vmcnt(0)\ns_mov_b64 exec, 1\nds_add_u32 v{vT+4}, v{vT+5}\ns_mov_b64 exec, -1")
            STAMP('hack')
        e(2)
        if not late:
            for x in kr: p(x)
        if pre: p(f"ds_read_b32 v{vT}, v{aFl} offset:{F_M+4*hk-F_G1}")
        e(3); c(0); c(1)
        if pend: p(f"s_waitcnt lgkmcnt({(len(kr) if not late else 0)+(1 if pre else 0)})")
        qk=QK(u+1) if u<17 else [None,None]
        if qk[0]: p(qk[0])
        e(4)
        if late:
            p(f"v_cmp_gt_u32 vcc, 1, v{vT}")
        e(5)
        if late:
            p(f"s_cbranch_vccnz L_g2w{w}{hk}\nL_g2r{w}{hk}:")
            for x in kr: p(x)
        for x in vr_: p(x)
        e(6); e(7); c(2); c(3)
        if qk[1]: p(qk[1])
        e(8); e(9); e(10); e(11)
        p(PV(u,0))
        c(4); c(5); e(12); e(13); e(14); e(15); c(6); c(7)
        pend=bool(kr or vr_ or pre)
        if u==H-1:
            p(f"s_cmp_eq_u32 s{cT0}, 0\ns_cbranch_scc1 L_ex{w}")
            exq=PV(u,1)
    p("s_nop 1")
    p(PV(17,1))
    p("s_branch L_afin")
    for hk in range(2):
        p(f"L_g2w{w}{hk}:")
        p(f"v_mov_b32 v{vT+1}, {F_M+4*hk}")
        lds_wait(vT+1,vT,sT+17,'gt',1,0)
        p(f"s_branch L_g2r{w}{hk}")
    p(f"L_ex{w}:\n{exq}")
    if 99>CFG['xru']>=H: xr_loads()
    p("s_waitcnt lgkmcnt(0)\ns_branch L_afin")
def att_fin():
    t=vT; A=sT+7
    p("L_afin:")
    STAMP('aend')
    p(f"s_mov_b32 s{A}, {hex(f2u(2.0**-40))}\ns_mov_b32 s{A+1}, {hex(f2u(2.0**40)-f2u(2.0**-40))}")
    for q in range(2):
        O=OO[q]
        p(f"""v_cndmask_b32 v{t}, v{O+8}, v{O+12}, s[{sLO}:{sLO+1}]
        v_pk_add_f32 v[{t+2}:{t+3}], v[{O}:{O+1}], v[{O+2}:{O+3}]
        v_rcp_f32 v{t+1}, v{t}
        v_pk_add_f32 v[{t+4}:{t+5}], v[{O+4}:{O+5}], v[{O+6}:{O+7}]
        v_pk_add_f32 v[{t+6}:{t+7}], v[{O+8}:{O+9}], v[{O+10}:{O+11}]
        v_subrev_u32 v{t}, s{A}, v{t}
        v_pk_add_f32 v[{t+2}:{t+3}], v[{t+2}:{t+3}], v[{t+4}:{t+5}]
        v_cmp_lt_u32 s[{A+11}:{A+12}], s{A+1}, v{t}
        v_pk_add_f32 v[{t+2}:{t+3}], v[{t+2}:{t+3}], v[{t+6}:{t+7}]
        v_add_f32 v{t+2}, v{t+2}, v{t+3}""")
        p(f"v_cmp_class_f32 vcc, v{t+2}, v{aCLS}")
        for k in range(6): p(f"v_pk_mul_f32 {vr(O+2*k,2)}, {vr(O+2*k,2)}, {vr(t,2)} op_sel:[0,1] op_sel_hi:[1,1]")
        p(f"""s_or_b64 vcc, vcc, s[{A+11}:{A+12}]
        s_cbranch_scc1 L_afb{q}
        L_afr{q}:""")
        for k in range(6): p(f"v_cvt_pk_bf16_f32 v{O+k}, v{O+2*k}, v{O+2*k+1}")
        p(f"s_cmp_lg_u32 s{sOSC}, 0")
        st=[f"buffer_store_dwordx4 {vr(O,4)}, v{aO}, {S4(sWS)}, s{sOm[q]} offen", f"s_mov_b64 exec, s[{sLO}:{sLO+1}]",
            f"buffer_store_dwordx2 {vr(O+4,2)}, v{aO}, {S4(sWS)}, s{sOt[q]} offen offset:512", "s_mov_b64 exec, -1"]
        p(f"s_cbranch_scc1 L_osc{q}")
        for x in st: p(x+(" "+CFG['apol'] if x.startswith("buffer") else ""))
        p(f"s_branch L_osr{q}\nL_osc{q}:")
        for x in st: p(x+(" sc1" if x.startswith("buffer") else ""))
        p(f"L_osr{q}:")
    p(f"""v_mov_b32 v{t}, {F_DONE}
    v_mov_b32 v{t+1}, 1
    s_mov_b64 exec, 1
    ds_add_u32 v{t}, v{t+1}
    s_mov_b64 exec, -1""")
    STAMP('ost')
aCLS=255; aFO=226; aFR=227
def att_cold():
    t=vT; A=sT+7; B=sT+8; N=sT+17; J=sT+18; CN=sT+19; PA=sT+20
    for q in range(2): p(f"L_afb{q}:\ns_cmp_lg_u32 s{sFB}, 0\ns_cbranch_scc1 L_afr{q}\ns_branch L_afb")
    p(f"L_afb:\ns_mov_b32 s{sFB}, 1\ns_waitcnt lgkmcnt(0)")
    S=SS[0]; MX=t+10; xa=t+11
    for q in range(2):
        lp=p.lab("fb"); nd=p.lab("fbnd"); nf=p.lab("fbnf"); p2=p.lab("fbp2"); nx=p.lab("fbnx"); ps=p.lab("fbps"); dn=p.lab("fbdn")
        for r in range(16): p(f"v_mov_b32 v{OO[q]+r}, 0")
        p(f"""v_mov_b32 v{MX}, {NINF}
        s_mov_b32 s{PA}, 0
        {ps}:""")
        if q==0: p(f"s_sub_u32 s{N}, 15, s{sWAVE}")
        else: p(f"s_add_u32 s{N}, 8, s{sWAVE}")
        p(f"""s_sub_u32 s{CN}, s{N}, 7
        s_cmp_eq_u32 s{cT0}, 0
        s_cselect_b32 s{CN}, s{CN}, 9
        s_mov_b32 s{J}, 0
        {lp}:
        s_lshr_b32 s{A}, s{N}, 1
        s_mul_i32 s{A}, s{A}, 5632
        s_bitcmp1_b32 s{N}, 0
        s_cselect_b64 vcc, -1, 0
        s_nop 0
        v_cndmask_b32 v{xa}, v{aKm}, v{aKm1}, vcc
        v_cndmask_b32 v{xa+1}, v{aKt}, v{aKt1}, vcc
        v_cndmask_b32 v{xa+2}, v{aV}, v{aV1}, vcc
        v_add_u32 v{xa}, s{A}, v{xa}
        v_add_u32 v{xa+1}, s{A}, v{xa+1}
        v_add_u32 v{xa+2}, s{A}, v{xa+2}
        ds_read_b128 {vr(KM[0],4)}, v{xa}
        ds_read_b64 {vr(KT[0],2)}, v{xa+1}
        s_mov_b64 exec, s[{sLO+2}:{sLO+3}]
        ds_read_b128 {vr(VV[0][0],4)}, v{xa+2}
        ds_read_b128 {vr(VV[0][1],4)}, v{xa+2} offset:640
        s_mov_b64 exec, -1
        s_waitcnt lgkmcnt(0)
        v_mfma_f32_32x32x16_bf16 {vr(S,16)}, {vr(KM[0],4)}, {vr(QM[q],4)}, 0
        v_mfma_f32_32x32x8_bf16 {vr(S,16)}, {vr(KT[0],2)}, {vr(QT[q],2)}, {vr(S,16)}
        v_mov_b32 v{xa}, {NINF}
        s_nop 11
        s_cmp_lg_u32 s{J}, 0
        s_cbranch_scc1 {nd}""")
        for r in range(16): p(f"v_cmp_eq_u32 vcc, 0, v{CD+r}\ns_nop 1\nv_cndmask_b32 v{S+r}, v{xa}, v{S+r}, vcc")
        p(f"{nd}:\ns_cmp_lg_u32 s{J}, 8\ns_cbranch_scc1 {nf}")
        for r in range(16): p(f"v_cmp_eq_u32 vcc, 0, v{CF+r}\ns_nop 1\nv_cndmask_b32 v{S+r}, v{xa}, v{S+r}, vcc")
        p(f"{nf}:\ns_cmp_lg_u32 s{PA}, 0\ns_cbranch_scc1 {p2}")
        for r in range(0,16,2): p(f"v_max3_f32 v{MX}, v{S+r}, v{S+r+1}, v{MX}")
        p(f"s_branch {nx}\n{p2}:")
        for r in range(16): p(f"v_sub_f32 v{S+r}, v{S+r}, v{MX}")
        for r in range(16): p(f"v_exp_f32 v{S+r}, v{S+r}")
        p("s_nop 0")
        for k in range(8): p(f"v_cvt_pk_bf16_f32 v{PP+k}, v{S+2*k}, v{S+2*k+1}")
        p("s_nop 1")
        for m in range(2): p(f"v_mfma_f32_32x32x16_bf16 {vr(OO[q],16)}, {vr(VV[0][m],4)}, {vr(PP+4*m,4)}, {vr(OO[q],16)}")
        p(f"""s_nop 11
        {nx}:
        s_sub_u32 s{N}, s{N}, 1
        s_add_u32 s{J}, s{J}, 1
        s_cmp_lt_u32 s{J}, s{CN}
        s_cbranch_scc1 {lp}
        s_cmp_lg_u32 s{PA}, 0
        s_cbranch_scc1 {dn}
        v_mov_b32 v{xa}, v{MX}
        s_mov_b32 s{PA}, 1
        s_nop 0
        v_permlane32_swap_b32 v{xa}, v{MX}
        s_nop 1
        v_max_f32 v{MX}, v{MX}, v{xa}
        s_branch {ps}
        {dn}:""")
    p("s_branch L_afin")

BF=28; AF=108; WACC=200; XR=176; WR_=186; aX2=196; aPS=197; aAL=198; aAR=199; SW=220; aL4=221; aPR=222; aKY=223; aCD=224
HP=40; HF_=50; LP=70; OP=80
sRT=sT+1; sOL=sT+2; sOR=sT+5; sXO=cXO; sPSO=sT+12; sRETRY=sT+13; sPRB=sT+14; sFLO=sT+16; sFRE=sT+18
def acc_init():
    for k in range(10): p(f"v_lshlrev_b32 v{WACC+2*k}, 16, v{XR+k}\nv_and_b32 v{WACC+2*k+1}, 0xffff0000, v{XR+k}")
def wo_pre1():
    t=vT; A=sT+7; B=sT+8
    wo_ids()
    p(f"""v_and_b32 v{t}, 15, v0
    v_lshrrev_b32 v{t+1}, 4, v0
    v_mul_u32_u24 v{aWR}, 40, v{t+1}
    v_mov_b32 v{t+3}, 1280
    v_mad_u32_u24 v{aX2}, v{t}, v{t+3}, v{aWR}
    s_lshl_b32 s{A}, s{sBLK}, 2
    s_add_u32 s{A}, s{A}, s{sWAVE}
    s_mul_i32 s{A}, s{A}, 20480
    s_mul_i32 s{cJ}, s{sJ}, 160
    s_add_u32 s{cXO}, s{A}, s{cJ}
    v_lshlrev_b32 v{aPS}, 7, v{t}
    v_lshl_add_u32 v{aPS}, v{t+1}, 5, v{aPS}
    v_lshlrev_b32 v{aFR}, 7, v{t}
    v_mul_u32_u24 v{t+2}, 640, v{t+1}
    v_bfe_u32 v{t+3}, v0, 2, 2
    v_mul_u32_u24 v{t+3}, 160, v{t+3}
    v_and_b32 v{t+4}, 3, v0
    v_mul_u32_u24 v{t+4}, 40, v{t+4}
    v_add3_u32 v{t+2}, v{t+2}, v{t+3}, v{t+4}
    s_mul_i32 s{A}, s{sHH}, 51200
    s_add_u32 s{B}, s{A}, {L_WO}
    v_add_u32 v{aAL}, s{B}, v{t+2}
    s_sub_u32 s{B}, {L_WO+51200}, s{A}
    v_add_u32 v{aAR}, s{B}, v{t+2}
    v_and_b32 v{t+2}, 7, v0
    v_mul_u32_u24 v{t+2}, 1280, v{t+2}
    v_bfe_u32 v{t+3}, v0, 3, 1
    v_lshl_add_u32 v{aPR}, v{t+3}, 7, v{t+2}""")
    if CFG['xdma']:
        assert 0<=CFG['xru']<99 and CFG['odn']==1
        p(f"""v_mul_u32_u24 v{t+2}, 6554, v0
        v_lshrrev_b32 v{t+2}, 16, v{t+2}
        v_mul_u32_u24 v{t+2}, 1120, v{t+2}
        v_lshl_add_u32 v{aXD}, v0, 4, v{t+2}
        s_mul_i32 s{B}, s{sWAVE}, 2560
        s_add_u32 s{B}, s{B}, {L_STG}
        v_mul_u32_u24 v{t+2}, 160, v{t}
        v_add3_u32 v{aXL}, v{t+2}, v{aWR}, s{B}
        v_add_u32 v{aWR}, {L_SA}, v{aWR}""")
    if CFG['wsp']:
        p(f"""s_and_b32 s{B}, s{sWAVE}, 1
        s_mul_i32 s{B}, s{B}, 25600
        v_add_u32 v{aAL}, s{B}, v{aAL}
        v_add_u32 v{aAR}, s{B}, v{aAR}
        s_lshr_b32 s{B}, s{sWAVE}, 1
        s_mul_i32 s{B}, s{B}, 10240
        s_add_u32 s{A}, s{A}, s{B}
        s_and_b32 s{B}, s{sWAVE}, 1
        s_lshl_b32 s{B}, s{B}, 10
        s_add_u32 s{A}, s{A}, s{B}
        s_add_u32 s{A}, s{A}, {L_WO}
        v_lshlrev_b32 v{aL4}, 4, v0
        v_add_u32 v{aPR}, s{A}, v{aL4}
        v_add_u32 v{aL4}, 4096, v{aL4}""")
def wo_pre2():
    acc_init()
def probe(soff,cnt,first=True):
    t=vT
    lp=p.lab("pb"); ok=p.lab("pbok"); md=p.lab("pbm")
    p(f"s_mov_b32 s{cnt}, {SPIN}")
    if not first: p(f"s_branch {md}")
    p(f"""{lp}:
    buffer_load_dwordx3 v[{t+4}:{t+6}], v{aPR}, {S4(sWS)}, s{soff} offen offset:512 sc1""")
    if not first: p(f"{md}:")
    p(f"""s_waitcnt vmcnt(0)
    v_max_u32 v{t+4}, v{t+4}, v{t+6}
    v_cmp_eq_u32 vcc, -1, v{t+4}
    s_nop 0
    s_cbranch_vccz {ok}""")
    spin(cnt,lp,ok)
    p(f"s_branch {lp}\n{ok}:")
def red3(a,b,c,d):
    p(f"""v_mov_b32 v{d}, v{c}
    s_nop 0
    v_permlane32_swap_b32 v{a}, v{b}
    v_permlane32_swap_b32 v{c}, v{d}
    s_nop 0
    v_add_f32 v{a}, v{a}, v{b}
    v_add_f32 v{c}, v{c}, v{d}
    s_nop 1
    v_permlane16_swap_b32 v{a}, v{c}
    s_nop 0
    v_add_f32 v{a}, v{a}, v{c}
    v_add_f32 v{c}, v{a}, 0
    s_nop 1
    v_permlane16_swap_b32 v{a}, v{c}
    s_nop 0
    v_mov_b32 v{b}, v{a}
    s_nop 1
    v_permlane32_swap_b32 v{a}, v{b}""")
def wo_scal():
    A=sT+7; B=sT+8
    wo_ids()
    p(f"""s_lshl_b32 s{sRT}, s{sBLK}, 2
    s_add_u32 s{sRT}, s{sRT}, s{sWAVE}
    s_mul_i32 s{A}, s{sRT}, 20480
    s_mul_i32 s{B}, s{sMODE}, {OB2-OB}
    s_add_u32 s{A}, s{A}, s{B}
    s_add_u32 s{A}, s{A}, {OB}
    s_mul_i32 s{B}, s{sHH}, 10240
    s_add_u32 s{sOL}, s{A}, s{B}
    s_add_u32 s{sOL+1}, s{sOL}, 4096
    s_add_u32 s{sOL+2}, s{sOL}, 8192
    s_add_u32 s{A}, s{A}, 10240
    s_sub_u32 s{sOR}, s{A}, s{B}
    s_lshl_b32 s{sPSO}, s{sRT}, 11
    s_add_u32 s{sPSO}, s{sPSO}, {PS}
    s_mov_b32 s{sRETRY}, {1<<16}
    s_add_u32 s{sOR+1}, s{sOR}, 4096
    s_add_u32 s{sPRB}, s{sOR}, 8192""")
    if CFG['wsp']:
        p(f"""s_and_b32 s{A}, s{sWAVE}, 1
        s_mul_i32 s{B}, s{A}, 5120
        s_add_u32 s{sOL}, s{sOL}, s{B}
        s_add_u32 s{sOR}, s{sOR}, s{B}
        s_mul_i32 s{B}, s{A}, -40960
        s_add_u32 s{B}, s{B}, 20480
        s_add_u32 s{sOL+1}, s{sOL}, s{B}
        s_add_u32 s{sOR+1}, s{sOR}, s{B}""")
def wo_flags():
    A=sT+7; B=sT+8
    p(f"""s_lshr_b32 s{A}, s{sRT}, 1
    s_lshl_b32 s{A}, s{A}, 12
    s_lshl_b32 s{B}, s{sHH}, 11
    s_add_u32 s{A}, s{A}, {FO}
    s_add_u32 s{sFLO}, s{A}, s{B}
    s_xor_b32 s{sFRE}, s{sFLO}, 2048""")
def wo_gemm():
    t=vT; A=sT+7; B=sT+8; C=sT+17; MXS=t+8
    sROFF=[sOR,sOR+1,sPRB]
    LA=CFG['wla']; WE=CFG['wwe']
    LG=[]
    def af(m): return AF+4*(m%15)
    def aread(m):
        s_,t_=divmod(m,5)
        for rd in range(2):
            p(f"ds_read_b64_tr_b16 {vr(af(m)+2*rd,2)}, v{aAL if s_<10 else aAR} offset:{(s_%10)*5120+rd*2560+8*t_}"); LG.append(m)
    def lgw(m):
        k=[i for i,x in enumerate(LG) if x!='x' and x<=m]
        if not k: return None
        n=len(LG)-1-max(k); del LG[:max(k)+1]; return n
    def bload(s_):
        so=(sOL+(s_%10)//4) if s_<10 else sROFF[(s_%10)//4]
        return f"buffer_load_dwordx4 {vr(BF+4*s_,4)}, v{aLin}, {S4(sWS)}, s{so} offen offset:{(s_%10%4)*1024} sc1"
    def cold(f):
        n0=len(p.L); f(); COLD.append("\n".join(p.L[n0:])); del p.L[n0:]
    p(f"s_cmp_lg_u32 s{sMODE}, 0\ns_cbranch_scc1 L_plsl\nL_plr:")
    def slow():
        p("L_plsl:"); wo_flags()
        p(f"""v_mov_b32 v{t+1}, s{sTAG}
        s_mov_b64 exec, 3
        s_waitcnt vmcnt(0)
        buffer_store_dword v{t+1}, v{aFO}, {S4(sWS)}, 0 offen sc1
        s_mov_b64 exec, -1""")
        flag_poll(aFR,t+4,sFLO,C); flag_poll(aFR,t+4,sFRE,C); p("s_branch L_plr")
    cold(slow)
    NI=CFG['oini']
    def dn():
        if CFG['odn']:
            p(f"v_mov_b32 v{t}, {F_DONE}"); lds_wait(t,t+1,C,'gt',4,0)
    if CFG['oprb']:
        p(f"buffer_load_dwordx3 v[{t+4}:{t+6}], v{aPR}, {S4(sWS)}, s{sOL} offen offset:512 sc1\ns_waitcnt vmcnt(5)")
    else:
        dn()
        for s_ in range(NI): p(bload(s_))
        p(f"s_waitcnt vmcnt({NI+4})")
    acc_init()
    p(f"v_mov_b32 v{t}, {F_WOR}")
    STAMP('fo')
    lds_wait(t,t+1,C,'gt',2,0)
    p(f"ds_read_b32 v{SW}, v{t} offset:{L_SWS-F_WOR}"); LG.append('x')
    STAMP('wor')
    if CFG['oprb']: dn()
    for m in range(LA): aread(m)
    p(f"v_mov_b32 v{t+7}, {F_WO2}\ns_mov_b32 s{sRETRY}, {SPIN}")
    if CFG['oprb']:
        probe(sOL,C,first=False)
        STAMP('prb')
        for s_ in range(NI): p(bload(s_))
    G={}; a=0
    for n in CFG['ogr']: G[a]=a+n; a+=n
    assert a==20 and 10 in G
    def chain(a,b):
        return [f"v_max_u32 v{MXS}, v{BF+4*a}, v{BF+4*a+2}"]+[f"v_max3_u32 v{MXS}, v{BF+4*k}, v{BF+4*k+2}, v{MXS}" for k in range(a+1,b)]
    cmp_=f"v_cmp_eq_u32 vcc, -1, v{MXS}"
    def retry(a,b):
        e=20 if (CFG['opoll']=='all' or a>=10) else 10
        def f():
            p(f"L_og{a}:\ns_sub_u32 s{sRETRY}, s{sRETRY}, 1\ns_cbranch_scc1 L_ogr{a}")
            sl=CFG['osl'][a//10]
            if sl: p(f"s_sleep {sl}")
            if CFG['opoll']=='probe' and a==0: probe(sOL,C)
            for k in range(a,e): p(bload(k))
            p(f"s_waitcnt vmcnt({20-b if e==20 else 0})")
            for x in chain(a,b): p(x)
            p(f"{cmp_}\ns_nop 0\ns_cbranch_vccnz L_og{a}\ns_branch L_ogr{a}")
        cold(f)
    last=lambda s_: (NI if s_<NI else 20)-1
    p(f"s_waitcnt vmcnt({last(0)+1-G[0]})")
    for x in chain(0,G[0]): p(x)
    p(f"{cmp_}\ns_nop 0\ns_cbranch_vccnz L_og0\nL_ogr0:"); retry(0,G[0])
    STAMP('pl')
    for m in range(100):
        s_,t_=divmod(m,5)
        nx=s_+1 if s_+1 in G else None
        if m==50:
            STAMP('pr')
            if 'PR' in (CFG['gstart'],CFG['dstart'],CFG['dgate'],CFG['mtg']):
                p(f"""s_mov_b64 exec, 1
                v_mov_b32 v{t+4}, {F_PR}
                v_mov_b32 v{t+5}, 1
                ds_add_u32 v{t+4}, v{t+5}
                s_mov_b64 exec, -1"""); LG.append('x')
        w=[]
        if nx is not None and t_==1: w.append(f"vmcnt({(20 if m>CFG['orem'] else NI)-G[nx]}"); assert G[nx]<=NI or m>CFG['orem']
        if m%WE==0:
            n=lgw(m+WE-1)
            if n is not None: w.append(f"lgkmcnt({n}")
        if w: p("s_waitcnt "+") ".join(w)+")")
        a_=vr(WACC+4*t_,4)
        p(f"v_mfma_f32_16x16x32_bf16 {a_}, {vr(af(m),4)}, {vr(BF+4*s_,4)}, {a_}")
        if NI<20 and m==CFG['orem']:
            for k in range(NI,20): p(bload(k))
        if m+LA==50-10: p(f"ds_read_b32 v{t+6}, v{t+7}"); LG.append('x')
        if m+LA==50:
            assert nx is None or t_<3
            p(f"v_cmp_gt_u32 vcc, 2, v{t+6}\ns_nop 0\ns_cbranch_vccnz L_wo2w\nL_wo2r:")
            def f():
                p("L_wo2w:"); lds_wait(t+7,t+6,C,'gt',2,0); p("s_branch L_wo2r")
            cold(f)
        if m+LA<100: aread(m+LA)
        if nx is not None:
            ch=chain(nx,G[nx]); k=-(-len(ch)//2)
            if t_==1:
                for x in ch[:k]: p(x)
            if t_==2:
                for x in ch[k:]: p(x)
            if t_==3: p(cmp_)
            if t_==4:
                if nx==10: STAMP('loc')
                p(f"s_cbranch_vccnz L_og{nx}\nL_ogr{nx}:"); retry(nx,G[nx])
    p(f"""v_mov_b32 v{t}, 0x3f803f80
    v_mov_b32 v{t+2}, 0
    v_mov_b32 v{t+3}, 0
    v_mov_b32 v{t+4}, 0
    s_nop 3""")
ACC2=148; aXW=222; aPQ=172; aBP=173
def wo_gemm2():
    t=vT; A=sT+7; B=sT+8; C=sT+17; MXS=t+8
    LA=CFG['wla2']
    LG=[]
    def af(m): return AF+4*(m%10)
    def aread(m,rds=(0,1)):
        s_,t_=divmod(m,5)
        for rd in rds:
            if CFG['wnoa'] and m>=LA and rd<CFG['wnoa']: continue
            p(f"ds_read_b64_tr_b16 {vr(af(m)+2*rd,2)}, v{aAL if s_<5 else aAR} offset:{(s_%5)*5120+rd*2560+8*t_}"); LG.append(m)
    def lgw(m):
        k=[i for i,x in enumerate(LG) if x!='x' and x<=m]
        if not k: return None
        n=len(LG)-1-max(k); del LG[:max(k)+1]; return n
    def bload(s_,us=(0,1)):
        for u in us:
            so=(sOL if s_<5 else sOR)+u
            p(f"buffer_load_dwordx4 {vr(BF+8*s_+4*u,4)}, v{aLin if s_%5<4 else aL4}, {S4(sWS)}, s{so} offen offset:{(s_%5%4)*1024} {CFG['ldo'] if s_<5 else 'sc1'}")
    def cold(f):
        n0=len(p.L); f(); COLD.append("\n".join(p.L[n0:])); del p.L[n0:]
    p(f"s_cmp_lg_u32 s{sMODE}, 0\ns_cbranch_scc1 L_plsl\nL_plr:")
    def slow():
        p("L_plsl:"); wo_flags()
        p(f"""v_mov_b32 v{t+1}, s{sTAG}
        s_mov_b64 exec, 3
        s_waitcnt vmcnt(0)
        buffer_store_dword v{t+1}, v{aFO}, {S4(sWS)}, 0 offen sc1
        s_mov_b64 exec, -1""")
        flag_poll(aFR,t+4,sFLO,C); flag_poll(aFR,t+4,sFRE,C); p("s_branch L_plr")
    cold(slow)
    XL=CFG['xru']==99
    XF_=lambda k: (230+2*k if k<8 else 168+2*(k-8))
    p(f"v_mov_b32 v{t}, {F_DONE}")
    if not XL: p("s_waitcnt vmcnt(4)")
    if CFG['xdma']:
        for k in range(5): p(f"ds_read_b64 {vr(XR+2*k,2)}, v{aXL} offset:{8*k}")
        for k in range(5): p(f"ds_read_b64 {vr(WR_+2*k,2)}, v{aWR} offset:{8*k}")
    if CFG['odn']==2 and not XL: acc_init()
    if CFG['odn']: lds_wait(t,t+1,C,'gt',4,0)
    for s_ in range(5): bload(s_)
    if CFG['odn']!=2 and not XL: acc_init()
    p(f"v_mov_b32 v{t}, {F_WOR}")
    STAMP('fo')
    lds_wait(t,t+1,C,'gt',2,0)
    p(f"ds_read_b32 v{SW}, v{t} offset:{L_SWS-F_WOR}"); LG.append('x')
    STAMP('wor')
    for m in range(LA): aread(m)
    if CFG['psq']: p(f"v_lshrrev_b32 v{t+7}, 2, v0\nv_and_b32 v{aPQ}, 3, v0\nv_lshlrev_b32 v{aPQ}, 4, v{aPQ}\nv_lshl_add_u32 v{aPQ}, v{t+7}, 7, v{aPQ}")
    p(f"""v_mov_b32 v{t+7}, {F_WO2}
    s_mov_b32 s{sRETRY}, {SPIN}
    s_lshl_b32 s{A}, s{sWAVE}, 2
    s_add_u32 s{A}, s{A}, {F_X}
    v_mov_b32 v{t+10}, s{A}
    v_xor_b32 v{t+11}, 4, v{t+10}
    v_mov_b32 v{t+12}, 1""")
    G={}; a=0
    for n in CFG['ogr2']: G[a]=a+n; a+=n
    assert a==10 and 5 in G
    def chain(a,b):
        return [f"v_max_u32 v{MXS}, v{BF+8*a}, v{BF+8*a+2}"]+[f"v_max3_u32 v{MXS}, v{BF+4*k}, v{BF+4*k+2}, v{MXS}" for k in range(2*a+1,2*b)]
    cmp_=f"v_cmp_eq_u32 vcc, -1, v{MXS}"
    def retry(a,b):
        e=10 if a>=5 else 5
        def f():
            p(f"L_og{a}:\ns_sub_u32 s{sRETRY}, s{sRETRY}, 1\ns_cbranch_scc1 L_ogr{a}")
            sl=CFG['osl'][a//5]
            if sl: p(f"s_sleep {sl}")
            for k in range(a,e): bload(k)
            p(f"s_waitcnt vmcnt({20-2*b if e==10 and not (XL and CFG['xrd']>=0) else 0})")
            for x in chain(a,b): p(x)
            p(f"{cmp_}\ns_nop 0\ns_cbranch_vccnz L_og{a}\ns_branch L_ogr{a}")
        cold(f)
    RM={}
    for j in range(10): RM.setdefault(max(-1,int(CFG['orem2'][0]+j*CFG['orem2'][1])),[]).append(j)
    assert max(RM)<=24
    nis=10
    for j in RM.get(-1,()): bload(5+j//2,(j&1,)); nis+=1
    p(f"s_waitcnt vmcnt({nis-2*G[0]})")
    for x in chain(0,G[0]): p(x)
    p(f"{cmp_}\ns_nop 0\ns_cbranch_vccnz L_og0\nL_ogr0:"); retry(0,G[0])
    STAMP('pl')
    def mf(m,u):
        s_,t_=divmod(m,5)
        a_=vr((WACC,ACC2)[u]+4*t_,4)
        p(f"v_mfma_f32_16x16x32_bf16 {a_}, {vr(af(m),4)}, {vr(BF+8*s_+4*u,4)}, {0 if (u or XL) and s_==0 else a_}")
    WE=CFG['wwe2']
    mX=max(RM)+CFG['xrd']; nx_=0; nxat=0
    if XL and mX<0: xr_loads(); nx_=6; nxat=nis
    for m in range(45):
        s_,t_=divmod(m,5)
        nx=s_+1 if s_+1 in G else None
        if m==25:
            STAMP('pr')
            p(f"""s_mov_b64 exec, 1
            ds_add_u32 v{t+7}, v{t+12} offset:{F_LD-F_WO2}"""); LG.append('x')
            if CFG['prm']==25 and 'PR' in (CFG['gstart'],CFG['dstart'],CFG['dgate'],CFG['mtg']):
                p(f"v_mov_b32 v{t+4}, {F_PR}\nds_add_u32 v{t+4}, v{t+12}"); LG.append('x')
            p("s_mov_b64 exec, -1")
        if m==CFG['prm']!=25 and 'PR' in (CFG['gstart'],CFG['dstart'],CFG['dgate'],CFG['mtg']):
            p(f"s_mov_b64 exec, 1\nds_add_u32 v{t+7}, v{t+12} offset:{F_PR-F_WO2+65536 if F_PR<F_WO2 else F_PR-F_WO2}\ns_mov_b64 exec, -1" if 0 else f"s_mov_b64 exec, 1\nv_mov_b32 v{t+4}, {F_PR}\nds_add_u32 v{t+4}, v{t+12}\ns_mov_b64 exec, -1"); LG.append('x')
        w=[]
        if nx is not None and t_==1: w.append(f"vmcnt({nis+(nx_ if 2*G[nx]<=nxat else 0)-2*G[nx]}"); assert nis>=2*G[nx]
        n=lgw(m+WE-1) if m%WE==0 else None
        if n is not None: w.append(f"lgkmcnt({n}")
        if w: p("s_waitcnt "+") ".join(w)+")")
        mf(m,1)
        if m==25-2*LA-1: p(f"ds_read_b32 v{t+6}, v{t+7}"); LG.append('x')
        if m+LA==25:
            assert nx is None or t_<3
            p(f"v_cmp_gt_u32 vcc, 2, v{t+6}\ns_nop 0\ns_cbranch_vccnz L_wo2w\nL_wo2r:")
            def f():
                p("L_wo2w:"); lds_wait(t+7,t+6,C,'gt',2,0); p("s_branch L_wo2r")
            cold(f)
        if m==44-LA: p(f"ds_read_b32 v{t+6}, v{t+7} offset:{F_LD-F_WO2}"); LG.append('x')
        if m+LA<50: aread(m+LA,(0,) if CFG['wsplit'] else (0,1))
        mf(m,0)
        if m+LA<50 and CFG['wsplit']: aread(m+LA,(1,))
        for j in RM.get(m,()): bload(5+j//2,(j&1,)); nis+=1
        if XL and m==mX: xr_loads(); nx_=6; nxat=nis
        if XL and m==40: p("s_waitcnt vmcnt(0)")
        if XL and 40<=m<45:
            for k in (2*(m-40),2*(m-40)+1): p(f"v_lshlrev_b32 v{XF_(k)}, 16, v{XR+k}\nv_and_b32 v{XF_(k)+1}, 0xffff0000, v{XR+k}")
        if CFG['mtg']=='RL' and m==max(RM)+CFG['rld']:
            p(f"s_mov_b64 exec, 1\nv_mov_b32 v{t+4}, {F_H2}\nds_add_u32 v{t+4}, v{t+12}\ns_mov_b64 exec, -1"); LG.append('x')
        if nx is not None:
            ch=chain(nx,G[nx]); k=-(-len(ch)//2)
            if t_==1:
                for x in ch[:k]: p(x)
            if t_==2:
                for x in ch[k:]: p(x)
            if t_==3: p(cmp_)
            if t_==4:
                if nx==5: STAMP('loc')
                p(f"s_cbranch_vccnz L_og{nx}\nL_ogr{nx}:"); retry(nx,G[nx])
                STAMP('og%d'%nx)
    assert LA>=5 and 9 not in G
    for m in range(45,50):
        n=lgw(m)
        if n is not None: p(f"s_waitcnt lgkmcnt({n})")
        mf(m,1)
        if m==45:
            p(f"v_cmp_gt_u32 vcc, 4, v{t+6}\nv_mov_b32 v{t}, 0x3f803f80\ns_cbranch_vccnz L_ldw\nL_ldr:")
            def f():
                p(f"L_ldw:\nv_add_u32 v{t+7}, {F_LD-F_WO2}, v{t+7}"); lds_wait(t+7,t+6,C,'gt',4,0); p("s_branch L_ldr")
            cold(f)
    p(f"""v_mov_b32 v{t+2}, 0
    v_mov_b32 v{t+3}, 0
    v_mov_b32 v{t+4}, 0
    v_xor_b32 v{t+5}, 1024, v{aXW}""")
    for k in range(5):
        p(f"ds_write_b128 v{aXW}, {vr(ACC2+4*k,4)} offset:{2048*k}")
        mf(45+k,0)
    lp=p.lab("xw"); ok=p.lab("xok")
    STAMP('xw')
    p(f"""ds_write_b32 v{t+10}, v{t+12}
    s_mov_b32 s{C}, {SPIN*4}""")
    if XL:
        md=p.lab("xwm")
        p(f"ds_read_b32 v{t+6}, v{t+11}")
        for k in range(5): p(f"ds_read_b128 {vr(BF+4*k,4)}, v{t+5} offset:{2048*k}")
        for k in range(10): p(f"v_pk_add_f32 {vr(WACC+2*k,2)}, {vr(WACC+2*k,2)}, {vr(XF_(k),2)}")
        p(f"s_branch {md}")
    p(f"""{lp}:
    ds_read_b32 v{t+6}, v{t+11}""")
    for k in range(5): p(f"ds_read_b128 {vr(BF+4*k,4)}, v{t+5} offset:{2048*k}")
    if XL: p(f"{md}:")
    p(f"""s_waitcnt lgkmcnt(5)
    v_cmp_eq_u32 vcc, 0, v{t+6}
    s_nop 0
    s_cbranch_vccz {ok}""")
    spin(C,lp,ok)
    p(f"s_waitcnt lgkmcnt(0)\ns_branch {lp}\n{ok}:")
    for k in range(5):
        p(f"s_waitcnt lgkmcnt({4-k})")
        for j in range(2): p(f"v_pk_add_f32 {vr(WACC+4*k+2*j,2)}, {vr(WACC+4*k+2*j,2)}, {vr(BF+4*k+2*j,2)}")
def wo_gemm_old():
    t=vT; A=sT+7; B=sT+8; C=sT+17; MXS=t+8
    wo_scal(); wo_flags()
    p("s_waitcnt vmcnt(4)")
    acc_init()
    p(f"""v_mov_b32 v{t}, {F_WOR}
    v_mov_b32 v{t+1}, s{sTAG}
    s_cmp_eq_u32 s{sOSC}, 0
    s_cbranch_scc1 L_nofo
    s_mov_b64 exec, 3
    s_waitcnt vmcnt(0)
    buffer_store_dword v{t+1}, v{aFO}, {S4(sWS)}, 0 offen sc1
    s_mov_b64 exec, -1
    L_nofo:""")
    STAMP('fo')
    lds_wait(t,t+1,C,'gt',2,0)
    p(f"""ds_read_b32 v{SW}, v{t} offset:{L_SWS-F_WOR}
    L_wo:""")
    STAMP('wor')
    sROFF=[sOR,sOR+1,sPRB]
    LA=CFG['wla']; WE=CFG['wwe']
    LG=[]
    def af(m): return AF+4*(m%15)
    def aread(m):
        s_,t_=divmod(m,5)
        for rd in range(2):
            p(f"ds_read_b64_tr_b16 {vr(af(m)+2*rd,2)}, v{aAL if s_<10 else aAR} offset:{(s_%10)*5120+rd*2560+8*t_}"); LG.append(m)
    def lgw(m):
        k=[i for i,x in enumerate(LG) if x!='x' and x<=m]
        if not k: return None
        n=len(LG)-1-max(k); del LG[:max(k)+1]; return n
    def bload(s_):
        so=(sOL+(s_%10)//4) if s_<10 else sROFF[(s_%10)//4]
        return f"buffer_load_dwordx4 {vr(BF+4*s_,4)}, v{aLin}, {S4(sWS)}, s{so} offen offset:{(s_%10%4)*1024} sc1"
    for m in range(LA): aread(m)
    p(f"v_mov_b32 v{MXS}, 0\nv_mov_b32 v{t+7}, {F_WO2}")
    p(f"s_cmp_lg_u32 s{sMODE}, 0\ns_cbranch_scc1 L_plsl")
    probe(sOL,C)
    p("L_plr:")
    n0=len(p.L)
    p("L_plsl:"); flag_poll(aFR,t+4,sFLO,C); p("s_branch L_plr")
    COLD.append("\n".join(p.L[n0:])); del p.L[n0:]
    STAMP('pl')
    for s_ in range(10): p(bload(s_))
    p(f"buffer_load_dword v{t+4}, v{aFR}, {S4(sWS)}, s{sFRE} offen sc1")
    for m in range(100):
        s_,t_=divmod(m,5)
        if m==50:
            STAMP('loc')
            flag_poll(aFR,t+4,sFRE,C,first=False)
            STAMP('pr')
            for k in range(10,20): p(bload(k))
            if 'PR' in (CFG['gstart'],CFG['dstart'],CFG['dgate'],CFG['mtg']):
                p(f"""s_mov_b64 exec, 1
                v_mov_b32 v{t+4}, {F_PR}
                v_mov_b32 v{t+5}, 1
                ds_add_u32 v{t+4}, v{t+5}
                s_mov_b64 exec, -1"""); LG.append('x')
        w=[]
        if t_==0: w.append(f"vmcnt({(10-s_) if s_<10 else (19-s_)}")
        if m%WE==0:
            n=lgw(m+WE-1)
            if n is not None: w.append(f"lgkmcnt({n}")
        if w: p("s_waitcnt "+") ".join(w)+")")
        a_=vr(WACC+4*t_,4)
        p(f"v_mfma_f32_16x16x32_bf16 {a_}, {vr(af(m),4)}, {vr(BF+4*s_,4)}, {a_}")
        if m+LA==50-10: p(f"ds_read_b32 v{t+6}, v{t+7}"); LG.append('x')
        if m+LA==50:
            p(f"v_cmp_gt_u32 vcc, 2, v{t+6}\ns_nop 0\ns_cbranch_vccnz L_wo2w\nL_wo2r:")
            n0=len(p.L)
            p("L_wo2w:"); lds_wait(t+7,t+6,C,'gt',2,0); p("s_branch L_wo2r")
            COLD.append("\n".join(p.L[n0:])); del p.L[n0:]
        if m+LA<100: aread(m+LA)
        if t_==0 and s_<10: p(f"v_max3_u32 v{MXS}, v{BF+4*s_}, v{BF+4*s_+2}, v{MXS}")
    p(f"""v_cmp_eq_u32 vcc, -1, v{MXS}
    v_mov_b32 v{t}, 0x3f803f80
    v_mov_b32 v{t+2}, 0
    v_mov_b32 v{t+3}, 0
    v_mov_b32 v{t+4}, 0
    s_cbranch_vccnz L_woredo
    L_wook:""")
    COLD.append(f"L_woredo:\ns_sub_u32 s{sRETRY}, s{sRETRY}, 1\ns_cbranch_scc1 L_wook\ns_nop 7")
    q=P();
    COLD.append("\n".join(f"v_lshlrev_b32 v{WACC+2*k}, 16, v{XR+k}\nv_and_b32 v{WACC+2*k+1}, 0xffff0000, v{XR+k}" for k in range(10))+"\ns_branch L_wo")
def wo_main():
    t=vT; A=sT+7; B=sT+8; C=sT+17
    (wo_gemm2 if CFG['wsp'] else wo_gemm if CFG['osent'] else wo_gemm_old)()
    STAMP('wend')
    for k in range(10): p(f"v_cvt_pk_bf16_f32 v{HP+k}, v{WACC+2*k}, v{WACC+2*k+1}")
    for k in range(10):
        p(f"""v_dot2_f32_bf16 v{t+2}, v{HP+k}, v{t}, v{t+2}
        v_dot2_f32_bf16 v{t+4}, v{HP+k}, v{HP+k}, v{t+4}
        v_dot2_f32_bf16 v{t+3}, v{HP+k}, v{WR_+k}, v{t+3}""")
    p(f"""s_lshl_b32 s{A}, s{sJ}, 4
    s_add_u32 s{A}, s{A}, s{sPSO}""")
    red3(t+2,t+3,t+4,t+5)
    p(f"""v_mov_b32 v{t+5}, s{sTAG}
    s_mov_b64 exec, 0xffff
    s_cmp_lg_u32 s{sMODE}, 0
    s_cbranch_scc1 L_pssc
    buffer_store_dwordx4 {vr(t+2,4)}, v{aPS}, {S4(sWS)}, s{A} offen
    L_psr:""")
    if 'WE' in (CFG['gstart'],CFG['g2nd'][0],CFG['mtg']): p(f"s_mov_b64 exec, 1\nv_mov_b32 v{t+10}, {F_SCP}\nv_mov_b32 v{t+11}, 1\nds_add_u32 v{t+10}, v{t+11}")
    p("s_mov_b64 exec, -1")
    COLD.append(f"L_pssc:\nbuffer_store_dwordx4 {vr(t+2,4)}, v{aPS}, {S4(sWS)}, s{A} offen sc1\ns_branch L_psr")
    STAMP('ps')
    G=t+10
    lp=p.lab("ps"); ok=p.lab("psok"); md=p.lab("psm")
    Q=CFG['psq']
    ld=f"""buffer_load_dwordx4 {vr(G,4)}, v{aPQ if Q else aPS}, {S4(sWS)}, s{sPSO} offen sc1
    buffer_load_dwordx4 {vr(G+4,4)}, v{aPQ if Q else aPS}, {S4(sWS)}, s{sPSO} offen offset:{64 if Q else 16} sc1"""
    p(ld)
    for k in range(10): p(f"v_lshlrev_b32 v{HF_+2*k}, 16, v{HP+k}\nv_and_b32 v{HF_+2*k+1}, 0xffff0000, v{HP+k}")
    if CFG['dbg']:
        p(f"s_add_u32 s{A}, s{sXO}, {HB}")
        for o,n in ((0,4),(4,4),(8,2)): p(f"buffer_store_dwordx{n} {vr(HP+o,n)}, v{aX2}, {S4(sWS)}, s{A} offen offset:{4*o}")
    p(f"""s_lshl_b32 s{A}, s{sRT}, 4
    s_sub_u32 s{A}, 2047, s{A}
    {f"v_lshrrev_b32 v{t}, 2, v0" if Q else f"v_and_b32 v{t}, 15, v0"}
    v_sub_u32 v{t+9}, s{A}, v{t}
    v_lshlrev_b32 v{t+9}, 3, v{t+9}
    s_lshl_b32 s{A}, s{sWAVE}, 6
    s_add_u32 s{A}, s{A}, {L_KEYS}
    v_lshl_add_u32 v{aKY}, v{t}, 2, s{A}
    v_and_b32 v{t}, {3 if Q else 48}, v0
    v_lshlrev_b32 v{t}, {6 if Q else 2}, v{t}
    v_add_u32 v{t+8}, {L_KEYS}, v{t}
    {f"v_and_b32 v{t}, 15, v0" if Q else ""}
    {f"v_lshlrev_b32 v{aBP}, 4, v{t}" if Q else ""}
    s_mov_b32 s{C}, {SPIN}
    s_branch {md}
    {lp}:
    {ld}
    {md}:
    s_waitcnt vmcnt(0)
    v_cmp_ne_u32 vcc, s{sTAG}, v{G+3}
    v_cmp_ne_u32 s[{sT+14}:{sT+15}], s{sTAG}, v{G+7}
    v_pk_add_f32 {vr(t+4,2)}, {vr(G,2)}, {vr(G+4,2)}
    v_add_f32 v{t+6}, v{G+2}, v{G+6}
    s_or_b64 vcc, vcc, s[{sT+14}:{sT+15}]
    s_cbranch_scc0 {ok}""")
    spin(C,lp,ok)
    p(f"""s_branch {lp}
    {ok}:""")
    STAMP('psr'); COUNT('npsr',C,SPIN)
    if 'PS' in (CFG['g2nd'][0],CFG['gstart'],CFG['dstart'],CFG['dgate'],CFG['mtg']): p(f"""s_mov_b64 exec, 1
    v_mov_b32 v{G}, {F_PS}
    v_mov_b32 v{G+1}, 1
    ds_add_u32 v{G}, v{G+1}
    s_mov_b64 exec, -1""")
    M=t+4
    if Q:
        for qp in ("[1,0,3,2]","[2,3,0,1]"):
            for k in range(3): p(f"v_add_f32_dpp v{M+k}, v{M+k}, v{M+k} quad_perm:{qp} row_mask:0xf bank_mask:0xf")
    else: red3(M,M+1,M+2,M+3)
    p(f"""v_mul_f32 v{M}, {1/640!r}, v{M}
    v_mul_f32 v{M+2}, {1/640!r}, v{M+2}
    v_fma_f32 v{M+2}, -v{M}, v{M}, v{M+2}
    v_max_f32 v{M+2}, 0, v{M+2}""")
    bf16r(M+2,M+2)
    p(f"v_add_f32 v{M+2}, 0x3727c5ac, v{M+2}")
    bf16r(M+2,M+2)
    p(f"v_sqrt_f32 v{M+2}, v{M+2}")
    bf16r(M,M)
    bf16r(M+2,M+2)
    RS=t+2
    p(f"""v_rcp_f32 v{RS}, v{M+2}
    v_fma_f32 v{M+1}, -v{M}, v{SW}, v{M+1}
    v_mul_f32 v{M+1}, v{M+1}, v{RS}
    v_cvt_pk_bf16_f32 v{M+1}, v{M+1}, v{M+1}
    v_mul_f32 v{RS+1}, -v{M}, v{RS}
    v_ashrrev_i32 v{M+2}, 31, v{M+1}
    v_or_b32 v{M+2}, 0x80000000, v{M+2}
    v_xor_b32 v{M+1}, v{M+1}, v{M+2}
    v_and_b32 v{M+1}, 0xffff0000, v{M+1}
    v_or_b32 v{KEY}, v{M+1}, v{t+9}
    ds_write_b32 v{aKY}, v{KEY}""")
    K16=AF
    lp=p.lab("ky"); ok=p.lab("kyok"); md=p.lab("kym")
    def lfma():
        for k in range(10): p(f"v_pk_fma_f32 {vr(WACC+2*k,2)}, {vr(HF_+2*k,2)}, {vr(RS,2)}, {vr(RS,2)} op_sel:[0,0,1] op_sel_hi:[1,0,1]")
    def kread():
        for i in range(4): p(f"ds_read_b128 {vr(K16+4*i,4)}, v{t+8} offset:{16*i}")
    if Q:
        p(f"ds_bpermute_b32 v{RS}, v{aBP}, v{RS}\nds_bpermute_b32 v{RS+1}, v{aBP}, v{RS+1}")
        kread()
        p(f"s_mov_b32 s{C}, {SPIN*4}\ns_waitcnt lgkmcnt(4)")
        lfma()
        p(f"s_branch {md}\n{lp}:")
        kread()
        p(f"{md}:")
    else:
        lfma()
        p(f"s_mov_b32 s{C}, {SPIN*4}\n{lp}:")
        kread()
    p("s_waitcnt lgkmcnt(0)")
    p(f"v_max3_u32 v{t}, v{K16}, v{K16+1}, v{K16+2}")
    for i in range(3,15,2): p(f"v_max3_u32 v{t}, v{K16+i}, v{K16+i+1}, v{t}")
    p(f"""v_max_u32 v{t}, v{t}, v{K16+15}
    v_cmp_eq_u32 vcc, -1, v{t}
    v_mov_b32 v{t}, 0
    s_cbranch_vccz {ok}""")
    spin(C,lp,ok)
    p(f"s_branch {lp}\n{ok}:")
    STAMP('keys')
    m0_=sT+18
    for i in range(18):
        if i<16: p(f"v_cmp_gt_u32 s[{m0_+2*(i%2)}:{m0_+2*(i%2)+1}], v{K16+i}, v{KEY}") if False else None
    MK=[sT+14,sT+16,sT+18]
    for i in range(18):
        if i<16: m=MK[i%3]; p(f"v_cmp_gt_u32 s[{m}:{m+1}], v{K16+i}, v{KEY}")
        elif i==16: p("s_nop 0")
        if i>=2: m=MK[(i-2)%3]; p(f"v_addc_co_u32 v{t}, vcc, 0, v{t}, s[{m}:{m+1}]")
    if Q: p(f"""v_cvt_pk_bf16_f32 v{LP}, v{WACC}, v{WACC+1}
    v_cvt_pk_bf16_f32 v{LP+1}, v{WACC+2}, v{WACC+3}
    v_add_u32_dpp v{t}, v{t}, v{t} quad_perm:[1,0,3,2] row_mask:0xf bank_mask:0xf
    v_cvt_pk_bf16_f32 v{LP+2}, v{WACC+4}, v{WACC+5}
    v_cvt_pk_bf16_f32 v{LP+3}, v{WACC+6}, v{WACC+7}
    v_add_u32_dpp v{t}, v{t}, v{t} quad_perm:[2,3,0,1] row_mask:0xf bank_mask:0xf""")
    else: p(f"""v_mov_b32 v{t+1}, v{t}
    v_cvt_pk_bf16_f32 v{LP}, v{WACC}, v{WACC+1}
    v_cvt_pk_bf16_f32 v{LP+1}, v{WACC+2}, v{WACC+3}
    v_permlane32_swap_b32 v{t}, v{t+1}
    v_cvt_pk_bf16_f32 v{LP+2}, v{WACC+4}, v{WACC+5}
    v_add_u32 v{t}, v{t}, v{t+1}
    v_mov_b32 v{t+1}, v{t}
    v_cvt_pk_bf16_f32 v{LP+3}, v{WACC+6}, v{WACC+7}
    v_cvt_pk_bf16_f32 v{LP+4}, v{WACC+8}, v{WACC+9}
    v_permlane16_swap_b32 v{t}, v{t+1}
    v_cvt_pk_bf16_f32 v{LP+5}, v{WACC+10}, v{WACC+11}
    v_add_u32 v{t}, v{t}, v{t+1}""")
    p(f"""v_cmp_gt_u32 s[{sCAND}:{sCAND+1}], 8, v{t}
    v_or_b32 v{KEY}, v{KEY}, v{t}
    v_mov_b32 v{t+1}, {L_CA&~0xffff}
    v_lshl_add_u32 v{t+1}, v{t}, 3, v{t+1}
    v_mov_b32 v{KEY+1}, s{sTAG}
    s_cmp_lg_u32 s{sJ}, 0
    s_cbranch_scc1 L_noca
    {f"s_and_b32 exec_lo, s{sCAND}, 0x11111111" if Q else f"s_and_b32 exec_lo, s{sCAND}, 0xffff"}
    {f"s_and_b32 exec_hi, s{sCAND+1}, 0x11111111" if Q else "s_mov_b32 exec_hi, 0"}
    ds_write_b64 v{t+1}, {vr(KEY,2)} offset:{L_CA&0xffff}
    s_mov_b64 exec, 0xff
    s_cmp_lg_u32 s{sWAVE}, 0
    s_cbranch_scc1 L_noca
    v_lshlrev_b32 v{t+2}, 3, v0
    v_add_u32 v{t+3}, {L_CA}, v{t+2}
    s_lshl_b32 s{A}, s{sBLK}, 7
    s_add_u32 s{A}, s{A}, {CA}
    s_mov_b32 s{C}, {SPIN*4}
    L_cal:
    ds_read_b64 v[{t+4}:{t+5}], v{t+3}
    s_waitcnt lgkmcnt(0)
    v_cmp_ne_u32 vcc, s{sTAG}, v{t+5}
    s_nop 0
    s_cbranch_vccz L_caok""")
    spin(C,"L_cal","L_caok")
    p(f"""s_branch L_cal
    L_caok:
    buffer_store_dwordx2 v[{t+4}:{t+5}], v{t+2}, {S4(sWS)}, s{A} offen sc1
    L_noca:
    s_mov_b64 exec, -1""")
    STAMP('ca')
    if Q: p(f"ds_bpermute_b32 v{t}, v{aBP}, v{t}\nds_bpermute_b32 v{KEY}, v{aBP}, v{KEY}")
    for k in range(4 if Q else 6,10): p(f"v_cvt_pk_bf16_f32 v{LP+k}, v{WACC+2*k}, v{WACC+2*k+1}")
    p(f"""v_lshrrev_b32 v{t+1}, 4, v0
    v_mul_u32_u24 v{t+1}, 40, v{t+1}
    {"s_waitcnt lgkmcnt(0)" if Q else ""}
    {f"v_cmp_gt_u32 s[{sCAND}:{sCAND+1}], 8, v{t}" if Q else ""}
    v_mul_u32_u24 v{t}, 2560, v{t}
    v_add_u32 v{aCD}, v{t}, v{t+1}
    s_mul_i32 s{A}, s{sBLK}, 20480
    s_mul_i32 s{B}, s{sJ}, 160
    s_add_u32 s{A}, s{A}, s{B}
    s_add_u32 s{A}, s{A}, {CAND}
    s_and_b64 exec, s[{sCAND}:{sCAND+1}], -1
    s_cbranch_scc0 L_nocd""")
    for base,off in ((LP,0),(HP,1280)):
        if 'nocand' in CFG['xp'] or ('noh' in CFG['xp'] and off): continue
        for o,n in ((0,4),(4,4),(8,2)): p(f"buffer_store_dwordx{n} {vr(base+o,n)}, v{aCD}, {S4(sWS)}, s{A} offen offset:{off+4*o} sc1")
    p("L_nocd:\ns_mov_b64 exec, -1")
    for k in range(10): p(f"v_pk_add_f32 {vr(WACC+2*k,2)}, {vr(WACC+2*k,2)}, {vr(HF_+2*k,2)}")
    for k in range(10): p(f"v_cvt_pk_bf16_f32 v{OP+k}, v{WACC+2*k}, v{WACC+2*k+1}")
    if CFG['odf']: p(f"s_cmp_lt_u32 s{sMI}, {CFG['odf']}\ns_cbranch_scc1 L_noo1")
    p(f"s_andn2_b64 exec, -1, s[{sCAND}:{sCAND+1}]\ns_cbranch_scc0 L_noo1")
    if 'noout' not in CFG['xp']: out_store()
    p("L_noo1:")
    if 1: p(f"""s_mov_b64 exec, 1
    v_mov_b32 v{t+4}, {F_O1}
    v_mov_b32 v{t+5}, 1
    ds_add_u32 v{t+4}, v{t+5}
    s_mov_b64 exec, -1""")
    else: p("s_mov_b64 exec, -1")
    STAMP('o1')
KEY=228; sCAND=sT+20
def out_store():
    for o,n in ((0,4),(4,4),(8,2)): p(f"buffer_store_dwordx{n} {vr(OP+o,n)}, v{aX2}, {S4(sOUT)}, s{sXO} offen offset:{4*o} {CFG['opol']}")

def moe_weights():
    A=sT+7; B=sT+8; vt=2; D=40; aW_=12
    gu=p.lab("mwgu"); wr=p.lab("mwwr"); en=p.lab("mwend")
    FA=dict(WOD=(F_WOD,2),PR=(F_PR,4),O1=(F_O1,4),DONE=(F_DONE,4),G2=(F_G2,2),PS=(F_PS,4),WO2=(F_WO2,2),WE=(F_SCP,4),TOP=(L_TOP,0))
    def gate(k):
        p(f"v_mov_b32 v{vt+4}, {FA[k][0]}")
        if k=='TOP': lds_wait(vt+4,vt+5,sT+5,'eq',-1,2)
        else: lds_wait(vt+4,vt+5,sT+5,'gt',FA[k][1],2)
    pl_=p.lab("mwpl")
    p(f"""s_cmp_ge_u32 s{sMI}, 17
    s_cbranch_scc1 {pl_}
    v_bfe_u32 v{vt}, v0, 3, 2
    v_lshrrev_b32 v{vt+1}, 5, v0
    v_lshlrev_b32 v{vt}, 1, v{vt}
    v_add_lshl_u32 v{vt}, v{vt}, v{vt+1}, 2
    v_bfe_u32 v{vt+1}, v0, 1, 2
    v_add_u32 v{vt}, v{vt}, v{vt+1}
    v_and_b32 v{vt+1}, 1, v0
    v_lshlrev_b32 v{vt+1}, 4, v{vt+1}
    s_cmp_lt_u32 s{sMI}, 12
    s_cbranch_scc1 {gu}
    v_mul_u32_u24 v{vt}, 1280, v{vt}
    v_add_u32 v{aW_}, v{vt}, v{vt+1}
    s_mul_i32 s{A}, s{sG}, 5
    s_add_u32 s{A}, s{A}, s{sMI}
    s_sub_u32 s{A}, s{A}, 12
    s_lshl_b32 s{A}, s{A}, 5
    s_mul_i32 s{B}, s{HW}, {12*32*1280}
    s_add_u32 s{A}, s{A}, s{B}""")
    gate(CFG['dstart'])
    STAMP('mg')
    for s_ in range(12):
        if s_>=CFG['ddep']: p(f"s_waitcnt vmcnt({CFG['ddep']-1})")
        p(f"buffer_load_dwordx4 {vr(D+4*s_,4)}, v{aW_}, {S4(sWD)}, s{A} offen {CFG['mpol']}")
        if s_<11: p(f"s_add_u32 s{A}, s{A}, {32*1280}")
    p(f"""s_mul_i32 s{B}, s{HW}, 12288
    s_branch {wr}
    {pl_}:""")
    for g_,h_ in CFG['wb']:
        sk=p.lab("nowb")
        p(f"s_lshl_b32 s{A}, s{sSLOT}, 2\ns_add_u32 s{A}, s{A}, s{HW}\ns_cmp_lg_u32 s{A}, {4*CFG['wbs']+h_}\ns_cbranch_scc1 {sk}")
        if g_!='no': gate(g_)
        p(f"buffer_wbl2 sc1\ns_waitcnt vmcnt(0)\n{sk}:")
    if CFG['dgate']!='no' and not CFG['dw3']:
        if CFG['dtn']: p(f"s_cmp_ge_u32 s{sMI}, 28\ns_cbranch_scc1 {en}")
        gate(CFG['dgate'])
        touch(vTD,sWD,CFG['mpair'])
        if CFG['dtn']: p("s_mov_b64 exec, 63"); touch(vTD2,sWD,0); p("s_mov_b64 exec, -1")
        STAMP('mg')
        if CFG['prof']: p("s_waitcnt vmcnt(0)"); STAMP('mw')
    p(f"""s_branch {en}
    {gu}:
    v_mul_u32_u24 v{vt}, 3072, v{vt}
    v_add_u32 v{aW_}, v{vt}, v{vt+1}
    s_mul_i32 s{A}, s{sG}, 12
    s_add_u32 s{A}, s{A}, s{sMI}
    s_lshl_b32 s{A}, s{A}, 5
    s_mul_i32 s{B}, s{HW}, {5*32*3072}
    s_add_u32 s{A}, s{A}, s{B}""")
    gate(CFG['gstart'])
    STAMP('mg')
    for s_ in range(5):
        for m_ in range(2):
            if 2*s_+m_==CFG['g2nd'][1]: gate(CFG['g2nd'][0]); STAMP('mg2')
            if 2*s_+m_>=CFG['mdep']: p(f"s_waitcnt vmcnt({CFG['mdep']-1})")
            p(f"buffer_load_dwordx4 {vr(D+8*s_+4*m_,4)}, v{aW_}, {S4((sWG,sWU)[m_])}, s{A} offen {CFG['mpol']}")
        if s_<4: p(f"s_add_u32 s{A}, s{A}, {32*3072}")
    p(f"s_mul_i32 s{B}, s{HW}, 12288\n{wr}:\nv_lshl_add_u32 v{vt}, v0, 4, s{B}")
    gate('DONE')
    p("s_waitcnt vmcnt(0)")
    for s_ in range(12): p(f"ds_write_b128 v{vt}, {vr(D+4*s_,4)} offset:{L_MW+s_*1024}")
    p(f"""s_lshl_b32 s{A}, s{HW}, 2
    s_add_u32 s{A}, s{A}, {F_MW}
    v_mov_b32 v{vt}, s{A}
    ds_write_b32 v{vt}, v{vt}
    s_waitcnt lgkmcnt(0)""")
    STAMP('mw')
    p(f"{en}:")
def top8(R,K2,K1,y,tt):
    def clean(chs):
        seq=[]
        for (x,y_,t_) in chs:
            seq.append([f"v_max_u32_dpp v{y_}, v{x}, v{x} row_shl:4 row_mask:0xf bank_mask:0x5",
                        f"v_min_u32_dpp v{y_}, v{x}, v{x} row_shr:4 row_mask:0xf bank_mask:0xa",
                        None,
                        f"v_mov_b32_dpp v{t_}, v{y_} quad_perm:[2,3,0,1] row_mask:0xf bank_mask:0xf",
                        f"v_med3_u32 v{y_}, v{y_}, v{t_}, v{K2}",
                        None,
                        f"v_mov_b32_dpp v{t_}, v{y_} quad_perm:[1,0,3,2] row_mask:0xf bank_mask:0xf",
                        f"v_med3_u32 v{x}, v{y_}, v{t_}, v{K1}"])
        n=len(chs)
        p(f"s_nop {2-n}")
        for i in range(8):
            if seq[0][i] is None: p(f"s_nop {2-n}")
            else:
                for c in seq: p(c[i])
                if i==0 and n==1: p("s_nop 1")
                elif i==0: p("s_nop 0")
    dp="row_mask:0xf bank_mask:0xf"
    p(f"v_max_u32_dpp v{R}, v{R+2}, v{R} row_half_mirror {dp}\nv_max_u32_dpp v{R+4}, v{R+6}, v{R+4} row_half_mirror {dp}")
    clean([(R,y,tt),(R+4,y+1,tt+1)])
    p(f"s_nop 1\nv_max_u32_dpp v{R}, v{R+4}, v{R} row_half_mirror {dp}")
    clean([(R,y,tt)])
    p(f"s_nop 1\nv_max_u32_dpp v{R}, v{R}, v{R} row_mirror {dp}")
    clean([(R,y,tt)])
    for msk,sw in ((0xa,16),(0xc,32)):
        p(f"""s_nop 1
        v_mov_b32_dpp v{R}, v{R} row_half_mirror row_mask:{hex(msk)} bank_mask:0xf
        v_mov_b32 v{tt}, v{R}
        s_nop 1
        v_permlane{sw}_swap_b32 v{R}, v{tt}
        s_nop 0
        v_max_u32 v{R}, v{R}, v{tt}""")
        clean([(R,y,tt)])
def moe():
    t=vT; A=sT+7; B=sT+8; C=sT+17; sTHR=sT+14; sKQ=sT+3
    R=12; K2=20; K1=21; aC=22; AW=108
    BL=160
    p(f"""s_cmp_ge_u32 s{sMI}, 17
    s_cbranch_scc1 L_plain
    v_lshrrev_b32 v{t}, 3, v0
    v_and_b32 v{t+1}, 7, v0
    v_lshlrev_b32 v{t+1}, 3, v{t+1}
    v_lshl_add_u32 v{aC}, v{t}, 7, v{t+1}
    s_mov_b32 s{B}, {CA}""")
    ld="\n".join(f"buffer_load_dwordx2 {vr(R+2*i,2)}, v{aC}, {S4(sWS)}, s{B} offen offset:{i*1024} sc1" for i in range(4))
    aMF=4; aMW=5
    def getw():
        lds_wait(AW-aMF,t+10 if False else AW,C,'eq',0,0)
        STAMP('mwr')
        for s_ in range(12):
            for rd in range(2): p(f"ds_read_b64_tr_b16 {vr(AW+4*s_+2*rd,2)}, v{AW-aMW} offset:{L_MW+s_*1024+rd*512}")
    p(f"""s_cmp_lg_u32 s{sWAVE}, 0
    s_cbranch_scc1 L_nocal
    {ld}
    L_nocal:
    v_bfe_i32 v{K2}, v0, 1, 1
    v_bfe_i32 v{K1}, v0, 0, 1
    v_not_b32 v{K2}, v{K2}
    v_not_b32 v{K1}, v{K1}
    s_add_u32 s{sKQ}, s{sWAVE}, {CFG['kqr']}
    s_and_b32 s{sKQ}, s{sKQ}, 3
    s_lshl_b32 s{A}, s{sKQ}, 2
    s_add_u32 s{A}, s{A}, {F_MW}
    v_mov_b32 v{AW-aMF}, s{A}
    s_mul_i32 s{A}, s{sKQ}, 12288
    v_lshl_add_u32 v{AW-aMW}, v0, 3, s{A}
    v_and_b32 v{t}, 7, v0
    v_lshlrev_b32 v{t}, 2, v{t}
    v_add_u32 v{AW-6}, {L_TOP}, v{t}
    {f"v_add_u32 v{AW-9}, {L_TOP}, v{t}" if CFG['ldma'] else ""}
    s_cmp_ge_u32 s{sMI}, 12
    s_cbranch_scc1 L_now""")
    if CFG['ldma']:
        p(f"""v_lshrrev_b32 v{t}, 3, v0
        v_lshlrev_b32 v{t}, 2, v{t}
        v_add_u32 v{AW-9}, {L_TOP}, v{t}
        v_and_b32 v{AW-7}, 7, v0
        v_lshrrev_b32 v{t}, 4, v0
        v_lshlrev_b32 v{t}, 4, v{t}
        v_lshl_add_u32 v{t}, v{AW-7}, 7, v{t}
        s_mul_i32 s{A}, s{sWAVE}, 3072
        s_add_u32 s{A}, s{A}, {L_RED+8192}
        v_add_u32 v{AW-8}, s{A}, v{t}
        v_lshlrev_b32 v{AW-7}, 4, v{AW-7}
        s_mov_b32 m0, s{A}""")
    getw()
    lp=p.lab("ca"); ok=p.lab("caok"); md=p.lab("cam")
    p(f"""L_now:
    s_cmp_lg_u32 s{sWAVE}, 0
    s_cbranch_scc1 L_topw
    s_mov_b32 s{C}, {SPIN}
    s_branch {md}
    {lp}:
    {ld}
    {md}:
    s_waitcnt vmcnt(0)
    v_xor_b32 v{t}, v{R+1}, v{R+3}
    v_xor_b32 v{t+1}, v{R+5}, v{R+7}
    v_xor_b32 v{R+1}, s{sTAG}, v{R+1}
    v_xor_b32 v{R+5}, s{sTAG}, v{R+5}
    v_or3_b32 v{t}, v{t}, v{t+1}, v{R+1}
    v_or_b32 v{t}, v{t}, v{R+5}
    v_cmp_ne_u32 vcc, 0, v{t}
    s_nop 0
    s_cbranch_vccz {ok}""")
    spin(C,lp,ok,CFG['casl'])
    if CFG['dasl']: p(f"s_cmp_lt_u32 s{sMI}, 12\ns_cbranch_scc1 {lp}\ns_sleep {CFG['dasl']}")
    p(f"s_branch {lp}\n{ok}:")
    STAMP('car'); COUNT('ncar',C,SPIN)
    top8(R,K2,K1,t,t+2)
    p(f"ds_write_b32 v{AW-6}, v{R}")
    if CFG['ldma']: p(f"s_cmp_ge_u32 s{sMI}, 12\ns_cbranch_scc1 L_top\nL_topw:\ns_waitcnt vmcnt(0)")
    else: p(f"s_branch L_top\nL_topw:\ns_waitcnt vmcnt(0)")
    lds_wait(AW-9 if CFG['ldma'] else AW-6,R,C,'eq',-1,0)
    TOK=t+1; aR=t+2
    def deferred(tag):
        allrows=CFG['odf']>=(12 if tag[0]=='g' else 17 if tag=='d' else 99)
        p(f"""v_cmp_gt_u32 vcc, s{sTHR}, v{KEY}
        s_nop 0
        {'s_orn2_b64' if allrows else 's_and_b64'} exec, vcc, s[{sCAND}:{sCAND+1}]
        s_cbranch_scc0 L_nd{tag}""")
        out_store()
        p(f"L_nd{tag}:\ns_mov_b64 exec, -1")
    XM="s_mov_b32 exec_lo, 0x00ff00ff\ns_mov_b32 exec_hi, 0x00ff00ff" if CFG['xm'] else "s_mov_b64 exec, -1"
    if CFG['ldma']:
        lp=p.lab("gl"); ok=p.lab("glok")
        p(f"""s_cmp_ge_u32 s{sMI}, 12
        s_cbranch_scc1 L_top""")
        STAMP('top')
        p(f"""v_bfe_u32 v{TOK}, v{R}, 9, 5
        v_and_b32 v{aR}, 7, v{R}
        v_xor_b32 v{TOK}, 31, v{TOK}
        s_mul_i32 s{A}, s{sKQ}, 320
        v_lshl_add_u32 v{aR}, v{TOK}, 3, v{aR}
        s_add_u32 s{A}, s{A}, {CAND}
        v_mov_b32 v{t}, 2560
        s_sub_u32 s{B}, s{A}, 896
        v_mad_u32_u24 v{aR}, v{aR}, v{t}, v{AW-7}
        s_sub_u32 s{sT+4}, s{A}, 1792
        s_mov_b32 s{C}, {SPIN}
        {lp}:
        s_mov_b64 exec, -1
        buffer_load_dwordx4 v{aR}, {S4(sWS)}, s{A} offen sc1 lds
        buffer_load_dwordx4 v{aR}, {S4(sWS)}, s{B} offen offset:1024 sc1 lds
        s_mov_b32 exec_lo, 0x0f0f0f0f
        s_mov_b32 exec_hi, 0x0f0f0f0f
        buffer_load_dwordx4 v{aR}, {S4(sWS)}, s{sT+4} offen offset:2048 sc1 lds
        s_mov_b64 exec, -1
        v_readlane_b32 s{sTHR}, v{R}, 56
        s_lshl_b32 s{sT+5}, s{sWAVE}, 11
        s_add_u32 s{sT+5}, s{sT+5}, {L_RED}
        v_lshl_add_u32 v{t+3}, v0, 4, s{sT+5}
        s_mov_b32 exec_lo, 0x00ff00ff
        s_mov_b32 exec_hi, 0x00ff00ff""")
        for i in range(5):
            if i%2==0: p(f"s_waitcnt vmcnt({2-i//2})")
            p(f"ds_read_b128 {vr(BL+4*i,4)}, v{AW-8} offset:{(i>>1)*1024+(i&1)*64}")
        if CFG['asp']:
            G=20; U=24
            p("s_mov_b64 exec, -1")
            for s_ in range(5):
                p(f"s_waitcnt lgkmcnt({4-s_})")
                for m_,a_ in ((0,G),(1,U)):
                    p(f"v_mfma_f32_16x16x32_bf16 {vr(a_,4)}, {vr(AW+8*s_+4*m_,4)}, {vr(BL+4*s_,4)}, {vr(a_,4) if s_ else 0}")
                    if m_==0: p(f"v_max3_u32 v{t+4}, v{BL+4*s_}, v{BL+4*s_+2}, {'v%d'%(t+4) if s_ else 0}")
            p(f"""v_cmp_eq_u32 vcc, -1, v{t+4}
            s_nop 0
            s_and_b32 vcc_lo, vcc_lo, 0x00ff00ff
            s_and_b32 vcc_hi, vcc_hi, 0x00ff00ff
            s_or_b32 s{sT+5}, vcc_lo, vcc_hi
            s_cbranch_scc0 L_glok""")
        else: p(f"""s_waitcnt lgkmcnt(2)
        v_max3_u32 v{t+4}, v{BL}, v{BL+2}, v{BL+4}
        v_max3_u32 v{t+5}, v{BL+6}, v{BL+8}, v{BL+10}
        s_waitcnt lgkmcnt(0)
        v_max3_u32 v{t+4}, v{BL+12}, v{BL+14}, v{t+4}
        v_max3_u32 v{t+5}, v{BL+16}, v{BL+18}, v{t+5}
        v_max_u32 v{t+4}, v{t+4}, v{t+5}
        v_cmp_eq_u32 vcc, -1, v{t+4}
        s_nop 0
        s_cbranch_vccz L_glok""")
        spin(C,lp,"L_glok")
        p(f"s_branch {lp}")
    p("L_top:")
    STAMP('top')
    p(f"""v_bfe_u32 v{TOK}, v{R}, 3, 11
    v_sub_u32 v{TOK}, 2047, v{TOK}
    v_lshrrev_b32 v{t}, 6, v{TOK}
    v_and_b32 v{aR}, 7, v{R}
    v_lshl_add_u32 v{aR}, v{t}, 3, v{aR}
    v_mul_u32_u24 v{aR}, 2560, v{aR}
    v_lshrrev_b32 v{t}, 4, v0
    v_readlane_b32 s{sTHR}, v{R}, 7
    {"" if CFG['ldma'] else f"s_cmp_ge_u32 s{sMI}, 12"}
    {"s_branch" if CFG['ldma'] else "s_cbranch_scc1"} L_down""")
    if not CFG['ldma']: l_old(t,A,B,C,BL,aR,sKQ,sTHR,XM)
    else: p("L_glok:")
    STAMP('lr'); COUNT('nlr',C,SPIN)
    SP=CFG['asp'] and CFG['ldma']
    if CFG['xm'] and not SP: p("s_mov_b64 exec, -1")
    G=20; U=24; X=28
    for s_ in range(0 if SP else 5):
        for m_,a_ in ((0,G),(1,U)):
            p(f"v_mfma_f32_16x16x32_bf16 {vr(a_,4)}, {vr(AW+8*s_+4*m_,4)}, {vr(BL+4*s_,4)}, {vr(a_,4) if s_ else 0}")
    w0=p.lab("guw0")
    p(f"""s_cmp_eq_u32 s{sWAVE}, 0
    s_cbranch_scc1 {w0}
    {"" if SP else "s_nop 5"}
    ds_write_b128 v{t+3}, {vr(G,4)}
    ds_write_b128 v{t+3}, {vr(U,4)} offset:1024
    s_waitcnt lgkmcnt(0)
    s_barrier""")
    if CFG['ldma']:
        nt=p.lab("noth")
        p(f"""s_xor_b32 s{B}, s{sWAVE}, 1
        s_or_b32 s{B}, s{sMI}, s{B}
        s_cbranch_scc1 {nt}
        v_mov_b32 v{t+4}, s{sTHR}
        v_mov_b32 v{t+5}, s{sTAG}
        s_lshl_b32 s{B}, s{sG}, 7
        s_add_u32 s{B}, s{B}, {TH}
        v_mov_b32 v{t+6}, 0
        s_mov_b64 exec, 1
        buffer_store_dwordx2 v[{t+4}:{t+5}], v{t+6}, {S4(sWS)}, s{B} offen sc1
        s_mov_b64 exec, -1
        {nt}:""")
    if CFG['ob2']: p("s_barrier")
    deferred('g1')
    END()
    p(f"""{w0}:
    s_mul_i32 s{A}, s{sG}, 12
    s_add_u32 s{A}, s{A}, s{sMI}
    s_lshl_b32 s{A}, s{A}, 8
    s_add_u32 s{A}, s{A}, {ACT}
    v_and_b32 v{t+4}, 7, v0
    v_lshlrev_b32 v{t+4}, 4, v{t+4}
    v_lshrrev_b32 v{t+5}, 5, v0
    v_lshl_add_u32 v{t+4}, v{t+5}, 7, v{t+4}
    v_bfe_u32 v{t+5}, v0, 4, 1
    v_lshl_add_u32 v{t+4}, v{t+5}, 3, v{t+4}
    s_barrier""")
    STAMP('gb')
    for w_ in range(1,4):
        for m_ in range(2): p(f"ds_read_b128 {vr(X+8*(w_-1)+4*m_,4)}, v{t+3} offset:{w_*2048+m_*1024}")
    p(f"s_mov_b32 s{B}, {hex(f2u(-math.log2(math.e)))}")
    for w_ in range(3):
        p(f"s_waitcnt lgkmcnt({4-2*w_})")
        for k in range(4): p(f"v_pk_add_f32 {vr(G+2*k,2)}, {vr(G+2*k,2)}, {vr(X+8*w_+2*k,2)}")
    p(f"""v_cvt_pk_bf16_f32 v{X}, v{G}, v{G+1}
    v_cvt_pk_bf16_f32 v{X+1}, v{G+2}, v{G+3}
    v_cvt_pk_bf16_f32 v{X+2}, v{U}, v{U+1}
    v_cvt_pk_bf16_f32 v{X+3}, v{U+2}, v{U+3}""")
    for k in range(4): p(f"v_lshlrev_b32 v{G+2*k}, 16, v{X+k}\nv_and_b32 v{G+2*k+1}, 0xffff0000, v{X+k}")
    for k in range(4): p(f"v_mul_f32 v{X+k}, s{B}, v{G+k}")
    for k in range(4): p(f"v_exp_f32 v{X+k}, v{X+k}")
    for k in range(4): p(f"v_add_f32 v{X+k}, 1.0, v{X+k}")
    for k in range(4): p(f"v_rcp_f32 v{X+k}, v{X+k}")
    for k in range(4): p(f"v_mul_f32 v{G+k}, v{G+k}, v{X+k}")
    p(f"v_cvt_pk_bf16_f32 v{X}, v{G}, v{G+1}\nv_cvt_pk_bf16_f32 v{X+1}, v{G+2}, v{G+3}")
    for k in range(2): p(f"v_lshlrev_b32 v{G+2*k}, 16, v{X+k}\nv_and_b32 v{G+2*k+1}, 0xffff0000, v{X+k}")
    p(f"""v_pk_mul_f32 {vr(G,2)}, {vr(G,2)}, {vr(U,2)}
    v_pk_mul_f32 {vr(G+2,2)}, {vr(G+2,2)}, {vr(U+2,2)}
    v_cvt_pk_bf16_f32 v{X}, v{G}, v{G+1}
    v_cvt_pk_bf16_f32 v{X+1}, v{G+2}, v{G+3}
    s_mov_b32 exec_lo, 0x00ff00ff
    s_mov_b32 exec_hi, 0x00ff00ff
    buffer_store_dwordx2 {vr(X,2)}, v{t+4}, {S4(sWS)}, s{A} offen sc1""")
    if CFG['ahint']:
        p(f"""s_lshl_b32 s{A}, s{sG}, 5
        s_add_u32 s{A}, s{A}, s{sMI}
        s_lshl_b32 s{A}, s{A}, 2
        s_add_u32 s{A}, s{A}, {AH}
        v_mov_b32 v{t+4}, 0
        v_mov_b32 v{t+5}, s{sTAG}
        s_mov_b64 exec, 1""")
        dual([f"buffer_store_dword v{t+5}, v{t+4}, {S4(sWS)}, s{A} offen"])
    p("s_mov_b64 exec, -1")
    STAMP('act')
    if CFG['ob2']: p("s_barrier")
    deferred('g0')
    END()
    HL=20; Y=24; X=28; SG=t+8; aO2=t+9
    p(f"""L_down:
    v_lshl_add_u32 v{aR}, v{t}, 3, v{aR}
    v_mul_u32_u24 v{aO2}, 1280, v{TOK}
    v_lshl_add_u32 v{aO2}, v{t}, 3, v{aO2}
    v_and_b32 v{t+4}, 7, v0
    v_lshlrev_b32 v{t+4}, 4, v{t+4}
    v_lshl_add_u32 v{t+4}, v{t}, 7, v{t+4}
    {f"v_bfe_u32 v{t+5}, v0, 3, 1" if CFG['a2'] else ""}
    {f"v_lshl_add_u32 v{t+4}, v{t+5}, 9, v{t+4}" if CFG['a2'] else ""}
    s_mul_i32 s{sT+1}, s{sG}, 5
    s_add_u32 s{sT+1}, s{sT+1}, s{sMI}
    s_sub_u32 s{sT+1}, s{sT+1}, 12
    s_lshl_b32 s{sT+1}, s{sT+1}, 5
    s_add_u32 s{sT+2}, s{sT+1}, {CAND}
    s_mul_i32 s{A}, s{sKQ}, 6144
    s_add_u32 s{A}, s{A}, {ACT}
    s_add_u32 s{B}, s{A}, 4096""")
    ldh=f"buffer_load_dwordx2 {vr(HL,2)}, v{aR}, {S4(sWS)}, s{sT+2} offen sc1\nbuffer_load_dwordx2 {vr(HL+2,2)}, v{aR}, {S4(sWS)}, s{sT+2} offen offset:1280 sc1"
    if CFG['hll']: p(f"s_cmp_lg_u32 s{sWAVE}, 0\ns_cbranch_scc1 L_nohl\n{XM}\n{ldh}\ns_mov_b64 exec, -1\nL_nohl:")
    else: p(ldh)
    deferred('d')
    p(f"""v_ashrrev_i32 v{SG}, 31, v{R}
    v_not_b32 v{SG}, v{SG}
    v_or_b32 v{SG}, 0x80000000, v{SG}
    v_xor_b32 v{SG}, v{SG}, v{R}
    v_and_b32 v{SG}, 0xffff0000, v{SG}
    v_mul_f32 v{SG}, {hex(f2u(-math.log2(math.e)))}, v{SG}
    v_exp_f32 v{SG}, v{SG}
    s_lshl_b32 s{C}, s{sWAVE}, 10
    v_add_f32 v{SG}, 1.0, v{SG}
    v_rcp_f32 v{SG}, v{SG}
    s_add_u32 s{C}, s{C}, {L_RED}
    v_lshl_add_u32 v{t+3}, v0, 4, s{C}""")
    bf16r(SG,SG)
    lp=p.lab("hl"); ok=p.lab("hlok"); md=p.lab("hlm")
    if not CFG['hll']: p(f"""s_mov_b32 s{C}, {SPIN}
    s_branch {md}
    {lp}:
    {ldh}
    {md}:
    s_waitcnt vmcnt(0)
    v_max_u32 v{t+5}, v{HL}, v{HL+2}
    v_cmp_eq_u32 vcc, -1, v{t+5}
    s_nop 0
    {'s_branch' if CFG['xp'] else 's_cbranch_vccz'} {ok}""")
    if not CFG['hll']:
        spin(C,lp,ok)
        p(f"s_branch {lp}\n{ok}:")
    getw()
    ld="\n".join([f"buffer_load_dwordx4 {vr(BL+4*i,4)}, v{t+4}, {S4(sWS)}, s{A if i<8 else B} offen offset:{(i%8)*512} sc1" for i in range(12)])
    if CFG['ahint']:
        p(f"""v_min_u32 v{t+6}, {CFG['ahint']-1}, v0
        v_lshlrev_b32 v{t+6}, 2, v{t+6}
        s_lshl_b32 s{sT+4}, s{sG}, 7
        s_add_u32 s{sT+4}, s{sT+4}, {AH}""")
        flag_poll(t+6,t+5,sT+4,C)
        STAMP('ah')
    lp=p.lab("al"); ok=p.lab("alok")
    if CFG['a2']:
        Y2=BL+24
        ld="\n".join([f"buffer_load_dwordx4 {vr(BL+4*i,4)}, v{t+4}, {S4(sWS)}, s{A if i<4 else B} offen offset:{(i%4)*1024} sc1" for i in range(6)])
        if CFG['asp']:
            p(f"s_mov_b32 s{C}, {SPIN}\n{lp}:\n{ld}\ns_waitcnt lgkmcnt(0)")
            for i in range(6):
                p(f"s_waitcnt vmcnt({5-i})")
                for s_ in (2*i,2*i+1):
                    y=(Y,Y2)[s_&1]
                    p(f"v_mfma_f32_16x16x32_bf16 {vr(y,4)}, {vr(AW+4*s_,4)}, {vr(BL+4*(s_>>1),4)}, {vr(y,4) if s_>1 else 0}")
                    if s_&1==0: p(f"v_max3_u32 v{t+5}, v{BL+4*i}, v{BL+4*i+2}, {'v%d'%(t+5) if i else 0}")
            p(f"""v_cmp_eq_u32 vcc, -1, v{t+5}
            s_nop 0
            s_cbranch_vccz {ok}""")
            spin(C,lp,ok,CFG['acsl'])
            p(f"s_branch {lp}\n{ok}:")
            STAMP('ar'); COUNT('nar',C,SPIN)
            p("s_nop 4")
        else: p(f"""s_mov_b32 s{C}, {SPIN}
        {lp}:
        {ld}
        s_waitcnt vmcnt(3)
        v_max3_u32 v{t+5}, v{BL}, v{BL+2}, v{BL+4}
        v_max3_u32 v{t+6}, v{BL+6}, v{BL+8}, v{BL+10}
        s_waitcnt vmcnt(0)
        v_max3_u32 v{t+5}, v{BL+12}, v{BL+14}, v{t+5}
        v_max3_u32 v{t+6}, v{BL+16}, v{BL+18}, v{t+6}
        v_max3_u32 v{t+5}, v{BL+20}, v{BL+22}, v{t+5}
        v_max_u32 v{t+5}, v{t+5}, v{t+6}
        v_cmp_eq_u32 vcc, -1, v{t+5}
        s_waitcnt lgkmcnt(0)
        s_cbranch_vccz {ok}""")
        if not CFG['asp']:
            spin(C,lp,ok,CFG['acsl'])
            p(f"s_branch {lp}\n{ok}:")
            STAMP('ar'); COUNT('nar',C,SPIN)
            for s_ in range(12):
                y=(Y,Y2)[s_&1]
                p(f"v_mfma_f32_16x16x32_bf16 {vr(y,4)}, {vr(AW+4*s_,4)}, {vr(BL+4*(s_>>1),4)}, {vr(y,4) if s_>1 else 0}")
            p("s_nop 7")
        for k in range(4): p(f"v_add_f32_dpp v{Y+k}, v{Y2+k}, v{Y+k} row_ror:8 row_mask:0xf bank_mask:0xf")
    else: act_old(t,A,B,C,BL,AW,Y,XM,ld,lp,ok)
    w0=p.lab("dnw0")
    p(f"""s_cmp_eq_u32 s{sWAVE}, 0
    s_cbranch_scc1 {w0}
    {"" if CFG['a2'] else "s_nop 5"}
    ds_write_b128 v{t+3}, {vr(Y,4)}
    s_waitcnt lgkmcnt(0)
    s_barrier""")
    END()
    p(f"{w0}:")
    if CFG['hll']:
        p(f"""{XM}
        v_max_u32 v{t+5}, v{HL}, v{HL+2}
        v_cmp_eq_u32 vcc, -1, v{t+5}
        s_mov_b32 s{C}, {SPIN}
        s_cbranch_vccnz L_hlw
        L_hlr:
        s_mov_b64 exec, -1""")
        COLD.append(f"""L_hlw:
        s_sub_u32 s{C}, s{C}, 1
        s_cbranch_scc1 L_hlr
        {ldh}
        s_waitcnt vmcnt(0)
        v_max_u32 v{t+5}, v{HL}, v{HL+2}
        v_cmp_eq_u32 vcc, -1, v{t+5}
        s_nop 0
        s_cbranch_vccnz L_hlw
        s_branch L_hlr""")
    p(f"""v_lshlrev_b32 v{X+12}, 16, v{HL}
    v_and_b32 v{X+13}, 0xffff0000, v{HL}
    v_lshlrev_b32 v{X+14}, 16, v{HL+1}
    v_and_b32 v{X+15}, 0xffff0000, v{HL+1}
    v_lshlrev_b32 v{X+16}, 16, v{HL+2}
    v_and_b32 v{X+17}, 0xffff0000, v{HL+2}
    v_lshlrev_b32 v{X+18}, 16, v{HL+3}
    v_and_b32 v{X+19}, 0xffff0000, v{HL+3}
    s_barrier""")
    STAMP('db')
    for w_ in range(1,4): p(f"ds_read_b128 {vr(X+4*(w_-1),4)}, v{t+3} offset:{w_*1024}")
    for w_ in range(3):
        p(f"s_waitcnt lgkmcnt({2-w_})")
        for k in range(2): p(f"v_pk_add_f32 {vr(Y+2*k,2)}, {vr(Y+2*k,2)}, {vr(X+4*w_+2*k,2)}")
    def rnd():
        p(f"v_cvt_pk_bf16_f32 v{X}, v{Y}, v{Y+1}\nv_cvt_pk_bf16_f32 v{X+1}, v{Y+2}, v{Y+3}")
    def unp():
        for k in range(2): p(f"v_lshlrev_b32 v{Y+2*k}, 16, v{X+k}\nv_and_b32 v{Y+2*k+1}, 0xffff0000, v{X+k}")
    rnd(); unp()
    for k in range(4): p(f"v_mul_f32 v{Y+k}, v{SG}, v{Y+k}")
    rnd(); unp()
    for k in range(2): p(f"v_pk_add_f32 {vr(Y+2*k,2)}, {vr(Y+2*k,2)}, {vr(X+12+2*k,2)}")
    rnd(); unp()
    for k in range(2): p(f"v_pk_add_f32 {vr(Y+2*k,2)}, {vr(Y+2*k,2)}, {vr(X+16+2*k,2)}")
    rnd()
    p(f"""s_mov_b32 exec_lo, 0x00ff00ff
    s_mov_b32 exec_hi, 0x00ff00ff
    buffer_store_dwordx2 {vr(X,2)}, v{aO2}, {S4(sOUT)}, s{sT+1} offen sc1""")
    STAMP('fin')
    END()
    lp=p.lab("th"); ok=p.lab("thok")
    p("L_plain:")
    if CFG['cpre']:
        sk=p.lab("nocp")
        p(f"""s_sub_u32 s{A}, s{sMI}, {CFG['cpb']}
        s_lshl_b32 s{A}, s{A}, 2
        s_add_u32 s{A}, s{A}, s{sWAVE}
        s_cmp_ge_u32 s{A}, 32
        s_cbranch_scc1 {sk}""")
        if CFG['cpre']==1:
            p(f"s_lshl_b32 s{B}, s{A}, 7\ns_add_u32 s{B}, s{B}, {CA+4}\nv_mov_b32 v{t}, 0")
            flag_poll(t,t+1,B,C,sleep=CFG['cpsl'])
        l2=p.lab("cp"); o2=p.lab("cpok")
        p(f"""s_mul_i32 s{B}, s{A}, 20480
        s_add_u32 s{B}, s{B}, {CAND+36}
        v_lshrrev_b32 v{t}, 5, v0
        v_mul_u32_u24 v{t}, 1280, v{t}
        v_mad_u32_u24 v{t}, v0, 40, v{t}
        s_mov_b32 s{C}, 64
        {l2}:
        buffer_load_dword v{t+1}, v{t}, {S4(sWS)}, s{B} offen sc1
        s_waitcnt vmcnt(0)
        v_cmp_eq_u32 vcc, -1, v{t+1}
        s_nop 0
        s_cbranch_vccz {o2}""")
        spin(C,l2,o2,CFG['cpsl'])
        p(f"s_branch {l2}\n{o2}:")
        STAMP('cp')
        p(f"{sk}:")
    p(f"""s_lshl_b32 s{B}, s{sG}, 7
    s_add_u32 s{B}, s{B}, {TH}
    v_mov_b32 v{t}, 0
    s_mov_b32 s{C}, {SPIN}
    {lp}:
    s_sleep 16
    buffer_load_dwordx2 v[{t+2}:{t+3}], v{t}, {S4(sWS)}, s{B} offen sc1
    s_waitcnt vmcnt(0)
    v_cmp_ne_u32 vcc, s{sTAG}, v{t+3}
    s_nop 0
    s_cbranch_vccz {ok}""")
    spin(C,lp,ok)
    p(f"""s_branch {lp}
    {ok}:
    v_readfirstlane_b32 s{sTHR}, v{t+2}
    s_nop 1""")
    deferred('p')
    STAMP('fin')

def l_old(t,A,B,C,BL,aR,sKQ,sTHR,XM):
    p(f"""v_lshl_add_u32 v{aR}, v{t}, 4, v{aR}
    s_mul_i32 s{A}, s{sKQ}, 320
    s_add_u32 s{A}, s{A}, {CAND}""")
    ld="\n".join(f"buffer_load_dwordx4 {vr(BL+4*i,4)}, v{aR}, {S4(sWS)}, s{A} offen offset:{i*64} sc1" for i in range(5))
    lp=p.lab("gl"); ok=p.lab("glok"); md=p.lab("glm"); nt=p.lab("noth")
    if CFG['xm']: p(XM)
    p(ld)
    p(f"""s_or_b32 s{B}, s{sMI}, s{sWAVE}
    s_cbranch_scc1 {nt}
    v_mov_b32 v{t+4}, s{sTHR}
    v_mov_b32 v{t+5}, s{sTAG}
    s_lshl_b32 s{B}, s{sG}, 7
    s_add_u32 s{B}, s{B}, {TH}
    v_mov_b32 v{t+6}, 0
    s_mov_b64 exec, 1
    buffer_store_dwordx2 v[{t+4}:{t+5}], v{t+6}, {S4(sWS)}, s{B} offen sc1
    {nt}:
    s_mov_b64 exec, -1
    s_lshl_b32 s{B}, s{sWAVE}, 11
    s_add_u32 s{B}, s{B}, {L_RED}
    v_lshl_add_u32 v{t+3}, v0, 4, s{B}
    {XM}
    s_mov_b32 s{C}, {SPIN}
    s_branch {md}
    {lp}:
    {ld}
    {md}:
    s_waitcnt vmcnt(0) lgkmcnt(0)
    v_max3_u32 v{t+4}, v{BL}, v{BL+2}, v{BL+4}
    v_max3_u32 v{t+5}, v{BL+6}, v{BL+8}, v{BL+10}
    v_max3_u32 v{t+4}, v{BL+12}, v{BL+14}, v{t+4}
    v_max3_u32 v{t+5}, v{BL+16}, v{BL+18}, v{t+5}
    v_max_u32 v{t+4}, v{t+4}, v{t+5}
    v_cmp_eq_u32 vcc, -1, v{t+4}
    s_nop 0
    {'s_branch' if 'nocand' in CFG['xp'] else 's_cbranch_vccz'} {ok}""")
    spin(C,lp,ok)
    p(f"s_branch {lp}\n{ok}:")
def act_old(t,A,B,C,BL,AW,Y,XM,ld,lp,ok):
    p(f"""{XM}
    s_mov_b32 s{C}, {SPIN}
    {lp}:
    {ld}
    s_waitcnt vmcnt(8)
    v_max3_u32 v{t+5}, v{BL}, v{BL+2}, v{BL+4}
    v_max3_u32 v{t+6}, v{BL+6}, v{BL+8}, v{BL+10}
    v_max3_u32 v{t+5}, v{BL+12}, v{BL+14}, v{t+5}""")
    for i in range(4,12):
        if i%4==0: p(f"s_waitcnt vmcnt({8-i})")
        p(f"v_max3_u32 v{t+5+(i&1)}, v{BL+4*i}, v{BL+4*i+2}, v{t+5+(i&1)}")
    p(f"""v_max_u32 v{t+5}, v{t+5}, v{t+6}
    v_cmp_eq_u32 vcc, -1, v{t+5}
    s_waitcnt lgkmcnt(0)
    s_cbranch_vccz {ok}""")
    spin(C,lp,ok,CFG['acsl'])
    p(f"s_branch {lp}\n{ok}:")
    STAMP('ar'); COUNT('nar',C,SPIN)
    if CFG['xm']: p("s_mov_b64 exec, -1")
    for s_ in range(12): p(f"v_mfma_f32_16x16x32_bf16 {vr(Y,4)}, {vr(AW+4*s_,4)}, {vr(BL+4*s_,4)}, {vr(Y,4) if s_ else 0}")

def build():
    prologue()
    steps=loader()
    helperA(steps)
    p("s_branch L_mw")
    helperB(steps)
    p("L_mw:")
    moe_weights()
    END()
    p("L_comp:")
    if CFG['prio']: p(f"s_setprio {CFG['prio']}")
    p("s_waitcnt lgkmcnt(0)")
    STAMP('start')
    prologue2(1)
    if CFG['cpf']: code_pf()
    if CFG['tlb']==1:
        for k in range(12):
            p(f"s_mov_b32 s{sT+18}, {k*0x200000+0x1000}\ns_load_dword s100, s[{sWS}:{sWS+1}], s{sT+18}")
    if CFG['tlb']==2:
        p(f"v_lshlrev_b32 v228, 19, v0\nv_min_u32 v228, 0x1780000, v228\nbuffer_load_dword v229, v228, {S4(sWS)}, 0 offen")
    srd(((sX,2621440),))
    if CFG['hclr']: assert CFG['clr']==0; CFG['clate']=9
    if CFG['clr']==0 and CFG['clate']==0: clears(0); clears(1)
    att_setup()
    if CFG['clr']==0 and CFG['clate']==1: clears(0); clears(1)
    gemm_setup()
    if CFG['clr']: clears(0)
    if CFG['clr']==0 and CFG['clate']==2: clears(0); clears(1)
    p("s_waitcnt lgkmcnt(0)")
    mktag()
    p(f"""    s_cmp_eq_u32 s{sLC}, 15
    s_cbranch_scc1 L_gS
    s_cmp_eq_u32 s{sTY}, 2
    s_cbranch_scc1 L_gV""")
    gemm_loop('T'); gemm_epi('T'); p("s_branch L_att")
    p("L_gS:"); idle_gemm(); p("s_branch L_att")
    p("L_gV:"); gemm_loop('V'); gemm_epi('V')
    p("L_att:")
    att_go()
    for w in range(4): att_variant(w)
    att_fin()
    wo_main()
    if CFG['stop']<=3:
        p(f"s_and_b64 exec, s[{sCAND}:{sCAND+1}], -1\ns_cbranch_scc0 L_noo2"); out_store(); p("L_noo2:")
    else: moe()
    END()
    att_cold()
    for c in COLD: p(c)
    p("L_exit:\ns_endpgm")
build()
errs=check(p.L)
hdr=f"""; generated by work/k/gen.py (own generator script)
; @launch grid=(256,1,1) block=(512,1,1) lds=163840
.amdgcn_target "amdgcn-amd-amdhsa--gfx950"
.text
.globl {NAME}_kernel
.p2align 8
.type {NAME}_kernel,@function
{NAME}_kernel:
"""
ftr=f""".section .rodata,"a"
.p2align 6
.amdhsa_kernel {NAME}_kernel
  .amdhsa_next_free_vgpr 256
  .amdhsa_next_free_sgpr 102
  .amdhsa_accum_offset 256
  .amdhsa_group_segment_fixed_size 0
  .amdhsa_kernarg_size 88
  .amdhsa_user_sgpr_count 2
  .amdhsa_user_sgpr_kernarg_segment_ptr 1
  .amdhsa_system_sgpr_workgroup_id_x 1
.end_amdhsa_kernel
"""
import align8
def fmt(L):
    q=P(); q.L=L; return q.text()
if CFG['al8']: print("align8",align8.align(p.L,hdr,ftr,fmt,sys.argv[1]+".tmp.s",CFG['al8']))
if CFG.get('alst'): print(align8.stat(p.L,hdr,ftr,fmt,sys.argv[1]+".tmp.s"))
open(sys.argv[1],"w").write(hdr+p.text()+ftr)

import subprocess
r=subprocess.run(["clang","-x","assembler","-target","amdgcn-amd-amdhsa","-mcpu=gfx950",sys.argv[1],"-o",sys.argv[1]+".co"],capture_output=True,text=True)
if r.returncode: print(r.stderr[:3000]); sys.exit(1)
r=subprocess.run(["python3","cdna_unwritten_srd_check.py",sys.argv[1]+".co"],capture_output=True,text=True)
if r.returncode: print("SRDCHECK:",r.stdout[-3000:],r.stderr[-1000:])
r=subprocess.run("llvm-size -A "+sys.argv[1]+".co | grep text",shell=True,capture_output=True,text=True); print(r.stdout.strip())
if errs:
    import os; os.remove(sys.argv[1]); sys.exit(1)
```

```python
import sys, math
from asmlib import *
NAME="sequential_preLN__sliding_block__moe_arch_mod__prompt"
CFG=dict(pks=4, lay=0, padk=1, pade=1, cpa=0, cpe=0, epf=0, b1p=0, pal=0, ahp=0, fpol='sc1', xdma=1, prm=25, ob2=0, psq=1, ldma=1, asp=1, a2=1, cpre=0, cpsl=2, cpb=17, hsl2=2, ogate=4, honly=0, hsp=0, wpause=0, hdef=-1, hdg='FS', xru=17, xrd=0, ahint=12, ptc='', chint=0, dtn=1, hll=1, xm=1, kqr=0, dasl=0, dth=0, odf=0, mrm=1, g2nd=('O1',10), smx=2, smd=0, hst=0, wgf='M', shf=1, gm='no', gr='G1', tlb=0, rld=0, al8=0, ldp='sc1', ldo='sc1', wsp=1, wla2=7, ogr2=(1,2,2,2,3), orem2=(6,1), wwe2=2, smw=(), smo=(3,6), mtr=(0,10), mth=0, wburst=0, mtg='RL', wts=99, wsplit=1, wnoa=0, hclr=0, cst=(3,3), hsent=0, hkv=0, hgate='G1', hrs=0, osent=1, ogr=(2,3,5,2,3,5), opoll='half', osl=(0,0), oini=10, orem=25, clate=2, oprb=0, odn=1, hstep=6, qpol='', apol='', cpol='', wb=(), wbs=31, ht=0, hpoll=0, hsl=1, wog2=0, hearly=0, stg=6, stb=0, ord='xw,xw,xw,xw,xw,xw,xw,xw,xw,xw', amp=None, wose=2, late1=1, sdef=(1,1,1,1), pt2=8, qpair2=0, nacc=8, sfirst=1, prio=0, smode='dot', sfill=(), acsl=0, casl=0, xp=(), dw3=0, wla=7, wwe=2, dgate='PS', dstart='O1', gstart='WE', mdep=10, ddep=12, qpair=0, mpair=0, wpair=0, xnt=0, wnt=0, tpol2='', wtw='no', mtw='w3', wothr1=4, mb=(6,6), mg=('WOD','PR','PR','O1'), mpf=0, mgate='b3', hsplit=0, cpf=1, npf=(0,)*10, wogs=5, clr=0, wot=(), wtpol='', seqs=None, xpol='nt', wpol='', tpol='', wopol='', mpol='', cal=None, opol='', st=['start','b0|hb0','gend|hb9','E1|hE1','st|halo|clr','fl|g2|wo','fseen|h2','kv','aend','ost'], pt=8, wothr=16, wogate=1, h2sl=1, noh2=0, nowo=0, wos=(0,0,0), sched=(1,2,1,1,1,1,1,0,0,0), dbg=0, stop=99, prof=0, rot=('0055','36094758','05162738'), force_slow=0, noclr=0, pre=2, ldst=0, nomfma=0, nohello=0)
for a in sys.argv[2:]:
    k,v=a.split("="); CFG[k]=eval(v)
QB,KB,VB,KH,VH,OB=[i*0x280000 for i in range(6)]
CAND=0xF00000
PS=0xFA0000
CA=0xFE0000
ACT=0xFE1000
HB=0x1000000
PROF=0x1300000
H1=0x1280000; H2=0x1281000; EPO=0x1282000; TH=0x1283000; AH=0x1284000; CH_=0x1285000
STP=0x1680000; STX=0x1780000
FO=0x1700000; OB2=0x1400000; FL=0x12A0000; FH=0x1740000
L_STG=0; L_KV=10240; L_WO=55296; L_MISC=157696; L_MW=0
L_CS=L_MISC
L_SA=L_MISC+512
L_SR=L_SA+1024
L_MODE=L_SR+512
L_FLG=L_MODE+64
F_G1,F_G2,F_H2,F_STG,F_SCP,F_DONE,F_WOR,F_MW=[L_FLG+4*i for i in (0,1,2,4,8,9,10,12)]
L_SWS=L_FLG+80; F_O1=L_FLG+44; F_WOD=L_FLG+64; F_PR=L_FLG+68; F_WO2=L_FLG+72; F_PS=L_FLG+76; F_FS=L_FLG+84; F_LD=L_FLG+88; F_X=L_FLG+96; F_M=L_FLG+112; F_HR=L_FLG+120; F_RI=L_FLG+124; F_OWN=L_FLG+92
L_KEYS=L_FLG+128
L_CA=L_KEYS+256; L_TOP=L_CA+64
L_RED=L_WO
sX,sW,sWO,sWG,sWU,sWD,sOUT,sWS,sDBG,sWR=[4+4*i for i in range(10)]
sWAVE,sG,sSLOT,sRQ,sHH,sRB,sCT,sMODE,sEP,sTAG=range(44,54)
sT=54
sMI=39
sBK=3
sLO=76
sPROF=80
p=P()
COLD=[]
CALI=lambda: 's_memtime' if CFG['cal'][1]>20000 else 's_memrealtime'
def STAMP(name,w=0):
    if CFG['amp']:
        a=CFG['amp']
        if name=='entry': p(f"s_memrealtime s[{sPROF+8}:{sPROF+9}]")
        for k in (0,1):
            if name==a[k]:
                p(f"{'s_memrealtime' if a[2]=='r' else 's_memtime'} s[{sPROF+2*k}:{sPROF+2*k+1}]")
                if w: p("s_waitcnt lgkmcnt(0)")
    if CFG['cal'] and name in CFG['cal'][0].split('|'):
        p(f"{CALI()} s[{sPROF}:{sPROF+1}]")
        if w: p("s_waitcnt lgkmcnt(0)")
    i=[k for k,n in enumerate(CFG['st']) if name in n.split('|')]
    if CFG['prof'] and i:
        i=i[0]
        p(f"{'s_memrealtime' if CFG['prof']==2 else 's_memtime'} s[{sPROF+2*i}:{sPROF+2*i+1}]")
        if w: p("s_waitcnt lgkmcnt(0)")
def COUNT(name,cnt,full):
    i=[k for k,n in enumerate(CFG['st']) if name in n.split('|')]
    if CFG['prof'] and i:
        r=sPROF+2*i[0]
        p(f"s_waitcnt lgkmcnt(0)\ns_sub_u32 s{r}, {full}, s{cnt}\ns_mul_i32 s{r}, s{r}, 100\ns_add_u32 s{r}, s{r}, s{sPROF}")
def PROFDUMP():
    if not CFG['prof']: return
    p("s_waitcnt vmcnt(0) lgkmcnt(0)")
    p("s_mov_b64 exec, -1")
    for i in range(10): p(f"v_mov_b32 v{2+i}, s{sPROF+2*i}")
    p(f"""s_lshl_b32 s{sT}, s2, 3
    s_add_u32 s{sT}, s{sT}, s{sWAVE}
    s_lshl_b32 s{sT}, s{sT}, 6
    s_add_u32 s{sT}, s{sT}, {PROF}
    v_mov_b32 v1, 0
    s_mov_b64 exec, 1
    buffer_store_dwordx4 v[2:5], v1, s[{sWS}:{sWS+3}], s{sT} offen
    buffer_store_dwordx4 v[6:9], v1, s[{sWS}:{sWS+3}], s{sT} offen offset:16
    s_getpc_b64 s[{sT+2}:{sT+3}]
    v_mov_b32 v12, s{sT+2}
    v_mov_b32 v13, s{sT+3}
    buffer_store_dwordx4 v[10:13], v1, s[{sWS}:{sWS+3}], s{sT} offen offset:32""")
def END():
    PROFDUMP()
    if CFG['amp']:
        a=CFG['amp']
        lp=p.lab("amp"); ok=p.lab("ampok")
        p(f"""s_waitcnt vmcnt(0) lgkmcnt(0)
        s_cmp_eq_u32 s{sPROF+2}, 0
        s_cbranch_scc1 {ok}
        s_cmp_lg_u32 s{sWAVE}, {a[5] if len(a)>5 else 0}
        s_cbranch_scc1 {ok}""")
        if a[4]>=0: p(f"s_cmp_lg_u32 s2, {a[4]}\ns_cbranch_scc1 {ok}")
        p(f"""s_sub_u32 s{sPROF+6}, s{sPROF+2}, s{sPROF}
        s_mul_i32 s{sPROF+6}, s{sPROF+6}, {a[3]}
        s_lshr_b32 s{sPROF+6}, s{sPROF+6}, 4
        s_min_u32 s{sPROF+6}, s{sPROF+6}, 100000
        s_add_u32 s{sPROF+6}, s{sPROF+6}, 3000
        s_mov_b32 s{sPROF+4}, 100000
        {lp}:
        s_sleep 2
        s_memrealtime s[{sPROF+2}:{sPROF+3}]
        s_sub_u32 s{sPROF+4}, s{sPROF+4}, 1
        s_cbranch_scc1 {ok}
        s_waitcnt lgkmcnt(0)
        s_sub_u32 s{sPROF+2}, s{sPROF+2}, s{sPROF+8}
        s_cmp_lt_u32 s{sPROF+2}, s{sPROF+6}
        s_cbranch_scc1 {lp}
        {ok}:""")
    if CFG['cal']:
        lp=p.lab("cal"); ok=p.lab("calok")
        p(f"""s_waitcnt vmcnt(0) lgkmcnt(0)
        s_cmp_eq_u32 s{sPROF}, 0
        s_cbranch_scc1 {ok}
        s_cmp_ge_u32 s{sWAVE}, 4
        s_cbranch_scc1 {ok}
        s_mov_b32 s{sPROF+4}, 100000
        {lp}:
        s_sleep 2
        {CALI()} s[{sPROF+2}:{sPROF+3}]
        s_sub_u32 s{sPROF+4}, s{sPROF+4}, 1
        s_cbranch_scc1 {ok}
        s_waitcnt lgkmcnt(0)
        s_sub_u32 s{sPROF+2}, s{sPROF+2}, s{sPROF}
        s_cmp_lt_u32 s{sPROF+2}, {CFG['cal'][1]}
        s_cbranch_scc1 {lp}
        {ok}:""")
    p("s_endpgm")
S4=lambda r:f"s[{r}:{r+3}]"
SPIN=1<<18

def srd(lst):
    for r,n in lst: p(f"s_mov_b32 s{r+2}, {n}\ns_mov_b32 s{r+3}, 0x20000")
def prologue():
    STAMP('entry')
    p(f"""s_cmp_ge_u32 s2, 256
    s_cbranch_scc1 L_exit
    s_load_dwordx2 s[{sX}:{sX+1}], s[0:1], 0
    s_load_dwordx2 s[{sW}:{sW+1}], s[0:1], 8
    s_load_dwordx2 s[{sWS}:{sWS+1}], s[0:1], 80
    v_lshrrev_b32 v1, 6, v0
    v_and_b32 v0, 63, v0
    v_readfirstlane_b32 s{sWAVE}, v1
    s_and_b32 s{sG}, s2, 7
    s_lshr_b32 s{sSLOT}, s2, 3
    s_lshr_b32 s{sRQ}, s{sG}, 1
    s_and_b32 s{sHH}, s{sG}, 1
    s_and_b32 s{sRB}, s{sSLOT}, 3
    s_lshr_b32 s{sCT}, s{sSLOT}, 2
    s_lshl_b32 s{sBK}, s{sRQ}, 2
    s_add_u32 s{sBK}, s{sBK}, s{sRB}
    s_cmp_gt_u32 s{sCT}, 2
    s_subb_u32 s{sBK}, s{sBK}, 0
    s_and_b32 s{sBK}, s{sBK}, 15""")
    if CFG['cal']: p(f"s_mov_b32 s{sPROF}, 0")
    if CFG['amp']: p(f"s_mov_b32 s{sPROF+2}, 0")
    if CFG['prof']:
        for i in range(1,10): p(f"s_mov_b32 s{sPROF+2*i}, 0")
    if not CFG['cpe']:
        p(f"""s_cmp_lt_u32 s{sWAVE}, 4
        s_cbranch_scc1 L_comp""")
        return
    A=sT+18; K=NAME+"_kernel"
    n=CFG['cpe']
    reg=[f"({K}+0x400-L_pc0)",f"(L_comp-L_pc0)",f"(L_comp+0x1000-L_pc0)",f"({K}+0x1400-L_pc0)"]
    lit="|".join(f"((({r}>>8)&0xff)<<{8*i})" for i,r in enumerate(reg))
    p(f"""s_cmp_lt_u32 s{sWAVE}, 4
    s_cbranch_scc0 L_help
    s_getpc_b64 s[{A}:{A+1}]
    L_pc0:
    s_lshl_b32 s{A+2}, s{sWAVE}, 3
    s_lshr_b32 s{A+2}, {lit}, s{A+2}
    s_and_b32 s{A+2}, s{A+2}, 0xff
    s_and_b32 s{A+3}, s{sSLOT}, {32//n-1}
    s_lshl_b32 s{A+2}, s{A+2}, 8
    s_mul_i32 s{A+3}, s{A+3}, {n*128}
    s_and_b32 s{A}, s{A}, 0xffffff80
    s_add_u32 s{A+2}, s{A+2}, s{A+3}
    v_lshl_add_u32 v1, v0, 7, s{A+2}
    s_mov_b64 exec, {hex((1<<n)-1)}
    global_load_dwordx2 v[228:229], v1, s[{A}:{A+1}] offset:60""")
    if CFG['cpa']==1: cp_rest(A)
    p("s_mov_b64 exec, -1")
    if CFG['lay'] and CFG['pade']: p(f"""s_cmp_eq_u32 s{sWAVE}, 3
    s_cbranch_scc1 L_padT
    s_cmp_eq_u32 s{sWAVE}, 2
    s_cbranch_scc1 L_padV""")
    p(f"""s_branch L_comp
    L_help:""")
def cp_rest(A):
    p(f"""s_lshl_b32 s{A+2}, s{sSLOT}, 2
    s_add_u32 s{A+2}, s{A+2}, s{sWAVE}
    s_mul_i32 s{A+2}, s{A+2}, 384
    s_add_u32 s{A+2}, s{A+2}, ({NAME}_kernel+0x2400-L_pc0)&0xffffff00
    s_min_u32 s{A+2}, s{A+2}, (L_exit-L_pc0-384)&0xffffff80
    s_mov_b64 exec, 7
    v_lshl_add_u32 v1, v0, 7, s{A+2}
    global_load_dwordx2 v[194:195], v1, s[{A}:{A+1}] offset:60""")
def prologue2(comp=0):
    if comp:
        p(f"""s_mov_b32 s{sTAG}, {EPO}
        s_load_dword s{sEP}, s[{sWS}:{sWS+1}], s{sTAG}
        s_load_dwordx2 s[{sWR}:{sWR+1}], s[0:1], 32
        s_load_dwordx2 s[{sOUT}:{sOUT+1}], s[0:1], 64""")
        srd(((sWS,268435456),(sWR,1280),(sOUT,2621440)))
        p(f"""s_mov_b32 s{sLO}, -1
        s_mov_b32 s{sLO+1}, 0
        s_mov_b32 s{sLO+2}, 0xfffff
        s_mov_b32 s{sLO+3}, 0xfffff""")
        return
    if not CFG['epf']: p(f"""s_mov_b32 s{sTAG}, {EPO}
    s_load_dword s{sEP}, s[{sWS}:{sWS+1}], s{sTAG}""")
    p(f"""s_load_dwordx2 s[{sWO}:{sWO+1}], s[0:1], 16
    s_load_dwordx2 s[{sWR}:{sWR+1}], s[0:1], 32
    s_load_dwordx2 s[{sWG}:{sWG+1}], s[0:1], 40
    s_load_dwordx2 s[{sWU}:{sWU+1}], s[0:1], 48
    s_load_dwordx2 s[{sWD}:{sWD+1}], s[0:1], 56
    s_load_dwordx2 s[{sOUT}:{sOUT+1}], s[0:1], 64""")
    srd(((sWS,268435456),(sWO,819200),(sWR,1280),(sWG,1966080),(sWU,1966080),(sWD,1966080),(sOUT,2621440)))
    p(f"""s_mov_b32 s{sLO}, -1
    s_mov_b32 s{sLO+1}, 0
    s_mov_b32 s{sLO+2}, 0xfffff
    s_mov_b32 s{sLO+3}, 0xfffff""")
def moe_role():
    A=sT+20
    if not CFG['mrm']: p(f"s_mov_b32 s{sMI}, s{sSLOT}"); return
    p(f"""s_lshr_b32 s{A}, s{sSLOT}, 3
    s_sub_u32 s{sMI}, s{sSLOT}, s{A}
    s_sub_u32 s{sMI}, s{sMI}, 1
    s_add_u32 s{A}, s{A}, 28
    s_and_b32 s{A+1}, s{sSLOT}, 7
    s_cselect_b32 s{sMI}, s{sMI}, s{A}""")
def mktag():
    p(f"""s_mul_i32 s{sTAG}, s{sEP}, 0x9e3779b1
    s_add_u32 s{sTAG}, s{sTAG}, 0x7f4a7c15
    s_and_b32 s{sTAG}, s{sTAG}, -16""")
def colbyte(dst, lc):
    t=sT+18
    p(f"""s_mul_i32 s{t}, s{lc}, 52
    s_lshr_b32 s{t}, s{t}, 8
    s_add_u32 s{t}, s{t}, s{sHH}
    s_mul_i32 s{t}, s{t}, 640
    s_lshl_b32 s{dst}, s{lc}, 7
    s_add_u32 s{dst}, s{dst}, s{t}""")

def loader():
    CA_=sT+1; CB_=sT+2; CH=sT+3; XO=sT+4; WO_=sT+5; LB=sT+6; A=sT+7; B=sT+8; OFF=sT+9; SEQ=sT+10
    vX=2; vW=6; vt=10
    p(f"""s_sub_u32 s{HW}, s{sWAVE}, 4
    s_lshl_b32 s{A}, s{sCT}, 1
    s_cmp_gt_u32 s{sCT}, 2
    s_subb_u32 s{A}, s{A}, 0
    s_cmp_lg_u32 s{sCT}, 2
    s_addc_u32 s{B}, s{A}, 0""")
    colbyte(CA_,A); colbyte(CB_,B)
    p(f"""v_lshrrev_b32 v{vt}, 3, v0
    v_mul_u32_u24 v{vX}, 1280, v{vt}
    v_lshrrev_b32 v{vt+1}, 4, v0
    v_and_b32 v{vt+2}, 7, v0
    v_xor_b32 v{vt+2}, v{vt+2}, v{vt+1}
    v_lshl_add_u32 v{vX}, v{vt+2}, 4, v{vX}
    v_xor_b32 v{vX+1}, 64, v{vX}
    v_add_u32 v{vX+1}, {10240-1024}, v{vX+1}
    v_add_u32 v{vX+2}, {2*(10240-1024)}, v{vX}
    v_add_u32 v{vX+3}, {2*(10240-1024)}, v{vX+1}
    v_lshlrev_b32 v{vt+2}, 2, v{vt+1}
    v_and_b32 v{vt+3}, 15, v0
    v_xor_b32 v{vt+2}, v{vt+2}, v{vt+3}
    v_cmp_lt_u32 vcc, 7, v{vt+2}
    v_mov_b32 v{vt+3}, s{CA_}
    v_mov_b32 v{vt+4}, s{CB_}
    v_cndmask_b32 v{vt+3}, v{vt+3}, v{vt+4}, vcc
    v_and_b32 v{vt+2}, 7, v{vt+2}
    v_lshl_add_u32 v{vt+3}, v{vt+2}, 4, v{vt+3}
    v_mul_u32_u24 v{vW}, 3840, v{vt+1}
    v_add_u32 v{vW}, v{vW}, v{vt+3}""")
    for i in range(1,4): p(f"v_add_u32 v{vW+i}, {i*(4*3840-1024)}, v{vW}")
    ta,tc,tg=CFG['rot']
    pk=lambda t: sum(int(v)<<(4*i) for i,v in enumerate(t))
    p(f"""s_and_b32 s{A}, s{sBK}, 3
    s_lshl_b32 s{A}, s{A}, 2
    s_lshr_b32 s{CH}, {pk(ta)}, s{A}
    s_and_b32 s{CH}, s{CH}, 15
    s_lshl_b32 s{A}, s{sCT}, 2
    s_lshr_b32 s{A}, {hex(pk(tc))}, s{A}
    s_and_b32 s{A}, s{A}, 15
    s_add_u32 s{CH}, s{CH}, s{A}
    s_lshr_b32 s{A}, s{sBK}, 2
    s_lshl_b32 s{A}, s{A}, 1
    s_add_u32 s{A}, s{A}, s{sHH}
    s_lshl_b32 s{A}, s{A}, 2
    s_lshr_b32 s{A}, {hex(pk(tg))}, s{A}
    s_and_b32 s{OFF}, s{A}, 15""")
    seqs=CFG['seqs']
    if seqs:
        n=len(seqs)
        p(f"""s_mul_i32 s{A}, s{CH}, {-(-2048//n)}
        s_lshr_b32 s{A}, s{A}, 11
        s_mul_i32 s{A}, s{A}, {n}
        s_sub_u32 s{CH}, s{CH}, s{A}""")
        for i,q in enumerate(seqs):
            assert sorted(q)==list("0123456789")
            if i: p(f"s_cmp_eq_u32 s{CH}, {i}\ns_cselect_b32 s{SEQ}, {hex(pk(q[:8]))}, s{SEQ}\ns_cselect_b32 s{SEQ+1}, {hex(pk(q[8:]))}, s{SEQ+1}")
            else: p(f"s_mov_b32 s{SEQ}, {hex(pk(q[:8]))}\ns_mov_b32 s{SEQ+1}, {hex(pk(q[8:]))}")
    else:
        p(f"""s_add_u32 s{CH}, s{CH}, s{OFF}
    s_mul_i32 s{A}, s{CH}, 205
    s_lshr_b32 s{A}, s{A}, 11
    s_mul_i32 s{A}, s{A}, 10
    s_sub_u32 s{CH}, s{CH}, s{A}""")
    p(f"""
    s_lshl_b32 s{A}, s{sBK}, 2
    s_add_u32 s{A}, s{A}, s{HW}
    s_mul_i32 s{XO}, s{A}, {32*1280}
    s_mul_i32 s{WO_}, s{HW}, {16*3840}
    s_lshl_b32 s{LB}, s{HW}, 12""")
    CHW=SEQ
    p(f"s_mov_b32 s{CHW}, s{CH}")
    nx=dict(x=0,w=0)
    def issue(order,lim):
        global OPS
        for k in order:
            c=nx[k]; nx[k]+=1; assert c<=min(9,lim)
            slot=(c%4)*32768; ch=CH if k=='x' else CHW
            if k=='x': p(f"""s_lshl_b32 s{A}, s{ch}, 7
                s_add_u32 m0, s{LB}, {slot}
                s_add_u32 s{A}, s{A}, s{XO}""")
            else: p(f"""s_mul_i32 s{A}, s{ch}, {64*3840}
                s_add_u32 m0, s{LB}, {slot+16384}
                s_add_u32 s{A}, s{A}, s{WO_}""")
            for i in range(4):
                if k=='x': p(f"buffer_load_dwordx4 v{vX+i}, {S4(sX)}, s{A} offen offset:{i*1024} {CFG['xpol'] if c<CFG['xnt'] else ''} lds")
                else: p(f"buffer_load_dwordx4 v{vW+i}, {S4(sW)}, s{A} offen offset:{i*1024} {'nt' if c<CFG['wnt'] else CFG['wpol']} lds")
            p(f"""s_add_u32 s{ch}, s{ch}, 1
            s_cmp_eq_u32 s{ch}, 10
            s_cselect_b32 s{ch}, 0, s{ch}""")
            OPS+=[c]*4
    ORD=CFG['ord'].split(',')
    srd(((sX,2621440),(sW,2457600)))
    if CFG['epf']: p(f"s_mov_b32 s{sTAG}, {EPO}")
    p("s_waitcnt lgkmcnt(0)")
    if CFG['epf']: p(f"s_load_dword s{sEP}, s[{sWS}:{sWS+1}], s{sTAG}")
    STAMP('i0')
    def b1():
        STAMP('i1s')
        issue(ORD[1],3)
        STAMP('i1e')
    for c in range(1):
        issue(ORD[0],3); STAMP('i%d'%(c+1))
        if CFG['b1p']==2: b1()
        if c==0:
            prologue2()
            p(f"""v_cmp_lt_u32 vcc, 7, v0
            v_lshlrev_b32 v{vt}, 4, v0
            v_add_u32 v{vt}, {L_FLG}, v{vt}
            v_cndmask_b32 v{vt+2}, 0, -1, vcc
            v_cndmask_b32 v{vt+3}, 0, -1, vcc
            v_cndmask_b32 v{vt+4}, 0, -1, vcc
            v_cndmask_b32 v{vt+5}, 0, -1, vcc
            ds_write_b128 v{vt}, v[{vt+2}:{vt+5}]""")
            early()
    if CFG['b1p']==1: b1()
    p("s_waitcnt lgkmcnt(0)")
    STAMP('epo')
    mktag()
    stats_setup()
    p(f"s_cmp_ge_u32 s{HW}, 2\ns_cbranch_scc1 L_helperB")
    nx0=dict(nx); ops0=list(OPS)
    def steps(hook,isB):
        global OPS
        nx.update(nx0); OPS=list(ops0)
        if CFG['b1p']==0: b1()
        if CFG['hclr']: hclear_setup(isB)
        if CFG['smw'] or CFG['smo']: sm_setup()
        for c in range(8):
            sd=CFG['sdef']
            if c==0 and -1 in sd:
                assert ORD[0][0]=='x'; p(f"s_waitcnt vmcnt({len(OPS)-4})")
                STAMP('x0')
                fill=stats(0)
                for k in range(4):
                    if sd[k]==-1: p(fill[k])
                if max(sd)==-1: stats_red()
            vmwait(c)
            STAMP('d%d'%c)
            p("s_barrier")
            STAMP('ld%d'%c)
            if c==0 and -1 not in sd: fill=stats(0)
            if c==CFG['stg'] and CFG['stb']: stats_get(); hook(100)
            if CFG['hclr']: hclear(c,isB)
            issue(ORD[2+c],c+3)
            if c==0: p("s_waitcnt lgkmcnt(0)")
            for k in range(4):
                if sd[k]==c: p(fill[k])
            if c==max(0,max(sd)):
                if max(sd)>=0: stats_red()
                stats_pub(); OPS.append('stw')
            if c==CFG['stg'] and not CFG['stb']: stats_get(); hook(100)
            hook(c)
            sm_touch(c,isB)
            if CFG['lay'] and CFG['padk']==2 and c==CFG['pks']:
                p(f"s_cmp_eq_u32 s{HW}, {2*isB}\ns_cbranch_scc1 L_pv{2*isB}\ns_branch L_pv{2*isB+1}\nL_pkb{isB}:")
        assert nx==dict(x=10,w=10)
    return steps
aS=44; dS=64; sacc=60; sone=43; sDBL=sDBG; sSTP=sDBG+1
def stats_setup():
    vt=10
    tc=[int(x) for x in CFG['rot'][1]]
    assert not CFG['seqs'] and sorted(tc+[(tc[2]+1)%10,(tc[2]+2)%10])==list(range(10))
    p(f"""s_lshl_b32 s{sT+16}, s{HW}, 12
    v_bfe_u32 v{vt}, v0, 1, 3
    v_lshrrev_b32 v{vt+1}, 5, v0
    v_lshlrev_b32 v{vt+1}, 2, v{vt+1}
    v_xor_b32 v{vt}, v{vt}, v{vt+1}
    v_lshlrev_b32 v{vt}, 4, v{vt}
    v_and_b32 v{vt+1}, 31, v0
    v_lshl_add_u32 v{vt}, v{vt+1}, 7, v{vt}
    v_add_u32 v{aS}, s{sT+16}, v{vt}
    v_mov_b32 v{sone}, 0x3f803f80
    s_and_b32 s{sSTP}, s{sBK}, 12
    s_add_u32 s{sSTP}, s{sSTP}, s{sBK}
    s_lshl_b32 s{sT+16}, s{sHH}, 2
    s_add_u32 s{sSTP}, s{sSTP}, s{sT+16}
    s_lshl_b32 s{sSTP}, s{sSTP}, 14
    s_lshl_b32 s{sT+16}, s{HW}, 9
    s_add_u32 s{sSTP}, s{sSTP}, s{sT+16}
    s_add_u32 s{sSTP}, s{sSTP}, {STP}
    v_lshrrev_b32 v{vt}, 5, v0
    v_lshlrev_b32 v{vt}, 11, v{vt}
    v_lshl_add_u32 v{aS+4}, v{vt+1}, 4, v{vt}
    s_lshl_b32 s{sT+16}, s{sCT}, 11
    s_cmp_eq_u32 s{sCT}, 2
    s_cselect_b32 s{sT+16}, {STX-STP}, s{sT+16}
    v_lshl_add_u32 v{aS+5}, v{vt+1}, 4, s{sT+16}""")
    for i in range(1,4): p(f"v_xor_b32 v{aS+i}, {16*i}, v{aS}")
    for i in range(4): p(f"v_mov_b32 v{sacc+i}, 0")
    if CFG['smode'] in ('dotx','dotc'):
        for i in range(2*CFG['nacc']): p(f"v_mov_b32 v{102+i}, 0")
def stats(c):
    if 'nostats' in CFG['xp']: return ['s_nop 0']*4
    for i in range(4): p(f"ds_read_b128 {vr(dS+4*i,4)}, v{aS+i} offset:{c*32768}")
    L=[]
    for i in range(4):
        g=f"s_waitcnt lgkmcnt({3-i})"
        for j in range(4):
            r=dS+4*i+j
            u=80+2*(j&1)
            if CFG['smode']=='dotx':
                a=102+2*((4*i+j)%CFG['nacc']); g+=f"\nv_dot2_f32_bf16 v{a}, v{r}, v{sone}, v{a}\nv_dot2_f32_bf16 v{a+1}, v{r}, v{r}, v{a+1}"
            elif CFG['smode']=='dotc':
                a=102+2*((4*i+j)%CFG['nacc']); g+=f"\nv_dot2c_f32_bf16 v{a}, v{r}, v{sone}\nv_dot2c_f32_bf16 v{a+1}, v{r}, v{r}"
            elif CFG['smode']=='dot': g+=f"\nv_dot2_f32_bf16 v{sacc+(j&1)}, v{r}, v{sone}, v{sacc+(j&1)}\nv_dot2_f32_bf16 v{sacc+2+(j&1)}, v{r}, v{r}, v{sacc+2+(j&1)}"
            elif CFG['smode']=='valu': g+=f"\nv_lshlrev_b32 v{u}, 16, v{r}\nv_and_b32 v{u+1}, 0xffff0000, v{r}\nv_add_f32 v{sacc}, v{sacc}, v{u}\nv_fmac_f32 v{sacc+2}, v{u}, v{u}\nv_add_f32 v{sacc+1}, v{sacc+1}, v{u+1}\nv_fmac_f32 v{sacc+3}, v{u+1}, v{u+1}"
            elif CFG['smode']=='pk': g+=f"\nv_lshlrev_b32 v{u}, 16, v{r}\nv_and_b32 v{u+1}, 0xffff0000, v{r}\nv_pk_add_f32 v[{sacc}:{sacc+1}], v[{sacc}:{sacc+1}], v[{u}:{u+1}]\nv_pk_fma_f32 v[{sacc+2}:{sacc+3}], v[{u}:{u+1}], v[{u}:{u+1}], v[{sacc+2}:{sacc+3}]"
        L.append(g)
    return L
def stats_red():
    t=sacc
    p(f"""s_nop 1
    v_add_f32 v{t}, v{t}, v{t+1}
    v_add_f32 v{t+1}, v{t+2}, v{t+3}
    v_mov_b32 v{t+2}, s{sTAG}
    s_nop 0
    v_permlane32_swap_b32 v{t}, v{t+1}
    s_nop 0
    v_add_f32 v{t}, v{t}, v{t+1}
    v_mov_b32 v{t+1}, v{t}
    s_nop 1
    v_permlane32_swap_b32 v{t}, v{t+1}""")
def stats_pub():
    t=sacc
    p(f"""s_mov_b64 exec, s[{sLO}:{sLO+1}]
    buffer_store_dwordx4 {vr(t,4)}, v{aS+5}, {S4(sWS)}, s{sSTP} offen sc1
    s_mov_b64 exec, -1""")
def stats_ld():
    return "\n".join(f"s_add_u32 s{sSTP+1}, s{sSTP}, {4096*i}\nbuffer_load_dwordx4 {vr(dS+4*i,4)}, v{aS+4}, {S4(sWS)}, s{sSTP+1} offen sc1" for i in range(4))
def stats_get():
    p(stats_ld()); OPS.extend(['stp']*4)
def stats_fin(t,B):
    vmwait('stp')
    lp=p.lab("stl"); ok=p.lab("stok"); rt=p.lab("strt")
    p(f"""s_mov_b32 s{B}, {SPIN}
    {lp}:
    v_xor_b32 v{t}, v{dS+2}, v{dS+6}
    v_xor_b32 v{t+1}, v{dS+10}, v{dS+14}
    v_xor_b32 v{t+2}, s{sTAG}, v{dS+2}
    v_xor_b32 v{t+3}, s{sTAG}, v{dS+10}
    v_or3_b32 v{t}, v{t}, v{t+1}, v{t+2}
    v_or_b32 v{t}, v{t}, v{t+3}
    v_cmp_ne_u32 vcc, 0, v{t}
    v_add_f32 v{t+1}, v{dS}, v{dS+4}
    v_add_f32 v{t+2}, v{dS+1}, v{dS+5}
    s_cbranch_vccnz {rt}
    {ok}:""")
    n0=len(p.L)
    p(f"{rt}:"); spin(B,lp,ok,1); p(stats_ld()); p(f"s_waitcnt vmcnt(0)\ns_branch {lp}")
    COLD.append("\n".join(p.L[n0:])); del p.L[n0:]
    p(f"""v_add_f32 v{t+3}, v{dS+8}, v{dS+12}
    v_add_f32 v{t+4}, v{dS+9}, v{dS+13}
    v_add_f32 v{t+1}, v{t+1}, v{t+3}
    v_add_f32 v{t+2}, v{t+2}, v{t+4}
    s_nop 1
    v_permlane32_swap_b32 v{t+1}, v{t+2}
    s_nop 0
    v_add_f32 v{t+1}, v{t+1}, v{t+2}
    v_mul_f32 v{t+1}, {1/640!r}, v{t+1}
    v_mov_b32 v{t+2}, v{t+1}
    s_nop 1
    v_permlane32_swap_b32 v{t+1}, v{t+2}
    s_nop 0
    v_fma_f32 v{t+2}, -v{t+1}, v{t+1}, v{t+2}
    v_max_f32 v{t+2}, 0, v{t+2}""")
    bf16r(t+2,t+2)
    p(f"v_add_f32 v{t+2}, 0x3727c5ac, v{t+2}")
    bf16r(t+2,t+2)
    p(f"""v_sqrt_f32 v{t+2}, v{t+2}
    v_xor_b32 v{t+1}, 0x80000000, v{t+1}""")
    bf16r(t+2,t+2)
    p(f"""v_rcp_f32 v{t+5}, v{t+2}
    v_cvt_pk_bf16_f32 v{t+4}, v{t+1}, v{t+1}
    v_and_b32 v{t+3}, 31, v0
    s_lshl_b32 s{B}, s{HW}, 8
    s_add_u32 s{B}, s{B}, {L_SA}
    v_lshl_add_u32 v{t+1}, v{t+3}, 3, s{B}
    s_lshl_b32 s{B}, s{HW}, 7
    s_add_u32 s{B}, s{B}, {L_SR}
    v_lshl_add_u32 v{t+2}, v{t+3}, 2, s{B}
    ds_write_b64 v{t+1}, v[{t+4}:{t+5}]
    ds_write_b32 v{t+2}, v{t+5}""")
vPT=21; vDUM=39
HS=sT+12; HA=28
def early():
    A=sT+20; B=sT+21; vt=10
    moe_role()
    p(f"""s_lshl_b32 s{A}, s{sSLOT}, 2
    s_add_u32 s{A}, s{A}, s{HW}
    s_mul_i32 s{A}, s{A}, 60
    v_min_u32 v{vt}, 59, v0
    v_add_u32 v{vt}, s{A}, v{vt}
    v_mul_u32_u24 v{vt+1}, 6554, v{vt}
    v_lshrrev_b32 v{vt+1}, 20, v{vt+1}
    v_mul_u32_u24 v{vt+2}, 160, v{vt+1}
    v_sub_u32 v{vt}, v{vt}, v{vt+2}
    v_lshlrev_b32 v{vt}, 7, v{vt}
    v_cmp_gt_u32 vcc, 32, v{vt+1}
    v_and_b32 v{vt+2}, 1, v{vt+1}
    v_mul_u32_u24 v{vt+2}, 20480, v{vt+2}
    v_lshrrev_b32 v{vt+3}, 4, v{vt+1}
    v_mul_u32_u24 v{vt+4}, 10240, v{vt+3}
    s_mul_i32 s{A}, s{sRQ}, 40960
    v_add3_u32 v{vt+2}, v{vt+2}, v{vt}, s{A}
    v_sub_u32 v{vt+2}, v{vt+2}, v{vt+4}
    v_add_u32 v{vt+4}, 163840, v{vt+2}
    v_min_u32 v{vt+2}, v{vt+2}, v{vt+4}
    v_mul_u32_u24 v{vt+3}, {KB}, v{vt+3}
    v_bfe_u32 v{vt+4}, v{vt+1}, 1, 3
    v_mul_u32_u24 v{vt+4}, 163840, v{vt+4}
    v_add3_u32 v{vt+2}, v{vt+2}, v{vt+3}, v{vt+4}
    s_mul_i32 s{A}, s{sRQ}, 20480
    s_sub_u32 s{A}, s{A}, 5120
    v_add_u32 v{vt}, s{A}, v{vt}
    v_add_u32 v{vt+4}, 81920, v{vt}
    v_min_u32 v{vt}, v{vt}, v{vt+4}
    v_and_b32 v{vt+3}, 15, v{vt+1}
    v_mul_u32_u24 v{vt+3}, 81920, v{vt+3}
    s_mov_b32 s{A}, {VB}
    v_add3_u32 v{vt+3}, v{vt+3}, v{vt}, s{A}
    v_cndmask_b32 v{vt+2}, v{vt+3}, v{vt+2}, vcc
    s_mul_i32 s{A}, s{sHH}, {8*163840}
    v_add_u32 v{vPT}, s{A}, v{vt+2}
""")
    if CFG['honly']:
        p(f"""s_lshl_b32 s{A}, s{sSLOT}, 2
        s_add_u32 s{A}, s{A}, s{HW}
        s_mul_i32 s{A}, s{A}, 60
        v_min_u32 v{vt}, 59, v0
        v_add_u32 v{vt}, s{A}, v{vt}
        v_mul_u32_u24 v{vt+2}, 160, v{vt+1}
        v_sub_u32 v{vt}, v{vt}, v{vt+2}
        v_and_b32 v{vt+2}, 1, v{vt+1}
        v_mul_u32_u24 v{vt+2}, 160, v{vt+2}
        v_add_u32 v{vt+2}, v{vt+2}, v{vt}
        v_lshlrev_b32 v{vt}, 1, v{vt}
        v_cndmask_b32 v{vt}, v{vt}, v{vt+2}, vcc
        s_cmp_lt_u32 s{sRQ}, 3
        s_cselect_b32 s{A}, 0, 80
        s_add_u32 s{A}, s{A}, 160
        v_subrev_u32 v{vt}, 80, v{vt}
        v_cmp_le_u32 vcc, s{A}, v{vt}
        v_cmp_lt_u32 s[{A}:{A+1}], 15, v{vt+1}
        v_mov_b32 v{vt+2}, {KH-KB}
        s_and_b64 vcc, vcc, s[{A}:{A+1}]
        s_nop 0
        v_cndmask_b32 v{vt+2}, 0, v{vt+2}, vcc
        v_add_u32 v{vPT}, v{vPT}, v{vt+2}""")
    if CFG['ht']: p(f"""s_lshl_b32 s{A}, s{sSLOT}, 2
    s_add_u32 s{A}, s{A}, s{HW}
    s_mul_i32 s{B}, s{A}, 20
    v_min_u32 v{vt}, 19, v0
    v_add_u32 v{vt}, s{B}, v{vt}
    v_mul_u32_u24 v{vt+1}, 13108, v{vt}
    v_lshrrev_b32 v{vt+1}, 20, v{vt+1}
    v_mul_u32_u24 v{vt+2}, 80, v{vt+1}
    v_sub_u32 v{vt}, v{vt}, v{vt+2}
    v_lshlrev_b32 v{vt}, 7, v{vt}
    v_cmp_gt_u32 vcc, 16, v{vt+1}
    v_and_b32 v{vt+2}, 1, v{vt+1}
    v_mul_u32_u24 v{vt+2}, 10240, v{vt+2}
    v_lshrrev_b32 v{vt+3}, 1, v{vt+1}
    v_mul_u32_u24 v{vt+3}, 163840, v{vt+3}
    s_mul_i32 s{B}, s{sRQ}, 40960
    s_add_u32 s{B}, s{B}, {KH+20480}
    v_add3_u32 v{vt+2}, v{vt+2}, v{vt+3}, s{B}
    v_and_b32 v{vt+3}, 15, v{vt+1}
    v_mul_u32_u24 v{vt+3}, 81920, v{vt+3}
    s_mul_i32 s{B}, s{sRQ}, 20480
    s_add_u32 s{B}, s{B}, {VH+10240}
    v_add_u32 v{vt+3}, s{B}, v{vt+3}
    v_cndmask_b32 v{vt+2}, v{vt+3}, v{vt+2}, vcc
    s_mul_i32 s{B}, s{sHH}, {8*163840}
    v_add3_u32 v{vHT}, v{vt}, v{vt+2}, s{B}
    s_lshl_b32 s{B}, s{sG}, 7
    s_add_u32 s{A}, s{A}, s{B}
    s_lshl_b32 s{A}, s{A}, 7
    s_add_u32 s{A}, s{A}, {FH}
    v_mov_b32 v{vt}, s{A}
    v_cmp_lt_u32 vcc, 19, v0
    s_nop 1
    v_cndmask_b32 v{vHT}, v{vHT}, v{vt}, vcc""")
    nsm=sum(CFG['npf']); per=(100-5*nsm)//2
    if per>0:
        p(f"""s_mul_i32 s{A}, s{sG}, 5
        s_lshr_b32 s{A}, s{A}, 1
        s_mul_i32 s{A}, s{A}, 5
        s_lshr_b32 s{B}, s{HW}, 1
        s_mul_i32 s{B}, s{B}, {per}
        s_add_u32 s{A}, s{A}, s{B}
        s_add_u32 s{A}, s{A}, {5*nsm}
        v_min_u32 v{vt}, {per-1}, v0
        v_add_u32 v{vt}, s{A}, v{vt}
        v_subrev_u32 v{vt+1}, 100, v{vt}
        v_min_u32 v{vt}, v{vt}, v{vt+1}
        s_lshl_b32 s{A}, s{sSLOT}, 1
        s_and_b32 s{B}, s{HW}, 1
        s_add_u32 s{A}, s{A}, s{B}
        s_mul_i32 s{A}, s{A}, 12800
        v_lshl_add_u32 v{vTW}, v{vt}, 7, s{A}""")
    ge=p.lab("mtge"); jn=p.lab("mtj")
    p(f"""v_min_u32 v{vt}, 59, v0
    v_mul_u32_u24 v{vt+1}, 86, v{vt}
    v_lshrrev_b32 v{vt+1}, 8, v{vt+1}
    v_mul_u32_u24 v{vt+1}, {3072-384}, v{vt+1}
    v_lshl_add_u32 v{vt}, v{vt}, 7, v{vt+1}
    s_mul_i32 s{A}, s{sSLOT}, {20*3072}
    s_mul_i32 s{B}, s{sG}, 384
    s_add_u32 s{A}, s{A}, s{B}
    v_add_u32 v{vTM}, s{A}, v{vt}
    s_sub_u32 s{A}, s{sMI}, {0 if CFG['dw3'] else 17}
    s_lshl_b32 s{A}, s{A}, {1 if CFG['dw3'] else 2}
    s_add_u32 s{A}, s{A}, s{HW}
    s_mul_i32 s{A}, s{A}, {24 if CFG['dw3'] else 35 if CFG['dtn'] else 26}
    v_min_u32 v{vt}, {47 if CFG['dw3'] else 63 if CFG['dtn'] else 51}, v0
    v_lshrrev_b32 v{vt+1}, 1, v{vt}
    v_add_u32 v{vt+1}, s{A}, v{vt+1}
    v_min_u32 v{vt+1}, 1535, v{vt+1}
    v_mul_u32_u24 v{vt+1}, 1280, v{vt+1}
    v_and_b32 v{vt}, 1, v{vt}
    v_lshl_add_u32 v{vt}, v{vt}, 7, v{vt+1}
    s_mul_i32 s{B}, s{sG}, 160
    s_and_b32 s{B}, s{B}, -128
    v_add_u32 v{vTD}, s{B}, v{vt}""")
    if CFG['dtn']: p(f"""s_add_u32 s{A}, s{A}, 32
    v_min_u32 v{vt}, 5, v0
    v_lshrrev_b32 v{vt+1}, 1, v{vt}
    v_add_u32 v{vt+1}, s{A}, v{vt+1}
    v_min_u32 v{vt+1}, 1535, v{vt+1}
    v_mul_u32_u24 v{vt+1}, 1280, v{vt+1}
    v_and_b32 v{vt}, 1, v{vt}
    v_lshl_add_u32 v{vt}, v{vt}, 7, v{vt+1}
    v_add_u32 v{vTD2}, s{B}, v{vt}""")
vTD=25; vHT=26; vTD2=27
vTW=22; vTM=24
def touch(va,srd_,pair,pol=''):
    if pair:
        p(f"buffer_load_dword v{vDUM}, v{va}, {S4(srd_)}, 0 offen nt\nbuffer_load_dword v{vDUM}, v{va}, {S4(srd_)}, 0 offen offset:64")
        return 2
    p(f"buffer_load_dword v{vDUM}, v{va}, {S4(srd_)}, 0 offen {pol}")
    return 1
def wtouch(win,isB):
    n=0
    if CFG['wtw']==win and 100-5*sum(CFG['npf'])>0:
        n+=touch(vTW,sWO,CFG['wpair'])
    if CFG['mtw']==win:
        if not isB:
            u=p.lab("tu"); j=p.lab("tj")
            p(f"s_cmp_eq_u32 s{HW}, 0\ns_cbranch_scc0 {u}")
            touch(vTM,sWG,CFG['mpair'])
            p(f"s_branch {j}\n{u}:")
            n+=touch(vTM,sWU,CFG['mpair'])
            p(f"{j}:")
    return n
def qkv_touch():
    if CFG['pt']==99: return
    if CFG['ht']==1: OPS.extend(['pt']*touch(vHT,sWS,0,''))
    OPS.extend(['pt']*touch(vPT,sWS,CFG['qpair'],CFG['tpol']))
    if CFG['ht']==2: OPS.extend(['pt']*touch(vHT,sWS,0,''))
vH=16
OPS=[]
def vmwait(*tags):
    last=max(i for i,t in enumerate(OPS) if t in tags)
    n=len(OPS)-1-last; assert n<64
    p(f"s_waitcnt vmcnt({n})")
HW=sT
def spin(cnt,lp,ok,sleep=0):
    p(f"s_sub_u32 s{cnt}, s{cnt}, 1\ns_cbranch_scc1 {ok}")
    if sleep: p(f"s_sleep {sleep}")
def lds_wait(addr_v,tmp,cnt,cmp,val,sleep=1):
    lp=p.lab("lw"); ok=p.lab("lwok")
    p(f"""s_mov_b32 s{cnt}, {SPIN*4}
    {lp}:
    ds_read_b32 v{tmp}, v{addr_v}
    s_waitcnt lgkmcnt(0)
    v_cmp_{cmp}_u32 vcc, {val}, v{tmp}
    s_nop 0
    s_cbranch_vccz {ok}""")
    spin(cnt,lp,ok,sleep)
    p(f"s_branch {lp}\n{ok}:")
sHL,sHF,sHO,sPH,sHD,sT0=range(sT+1,sT+7)
def att_ids():
    p(f"""s_lshr_b32 s{sHL}, s{sSLOT}, 1
    s_and_b32 s{sHF}, s{sSLOT}, 1
    s_and_b32 s{sHO}, s{sHL}, 1
    s_lshr_b32 s{sPH}, s{sHL}, 1
    s_lshl_b32 s{sHD}, s{sHH}, 3
    s_add_u32 s{sPH}, s{sPH}, s{sHD}
    s_lshl_b32 s{sHD}, s{sHH}, 4
    s_add_u32 s{sHD}, s{sHD}, s{sHL}
    s_lshl_b32 s{sT0}, s{sRQ}, 1
    s_add_u32 s{sT0}, s{sT0}, s{sHF}
    s_lshl_b32 s{sT0}, s{sT0}, 3""")
def flag_addr(vd,vt,withq,A,B,C):
    flag_nib(withq,A,B,C)
    p(f"""v_and_b32 v{vt}, 60, v0
    v_min_u32 v{vt}, 20, v{vt}
    v_bfe_u32 v{vt}, s{A}, v{vt}, 4
    v_and_b32 v{vd}, 3, v0
    v_lshlrev_b32 v{vd}, 2, v{vd}
    v_lshl_add_u32 v{vd}, v{vt}, 7, v{vd}""")
def flag_nib(withq,A,B,C):
    p(f"""s_lshr_b32 s{A}, s{sHL}, 1
    s_mul_i32 s{A}, s{A}, 5
    s_lshl_b32 s{B}, s{sHO}, 1
    s_add_u32 s{A}, s{A}, s{B}
    s_add_u32 s{B}, s{A}, 2
    s_lshr_b32 s{A}, s{A}, 3
    s_lshr_b32 s{B}, s{B}, 3
    s_lshl_b32 s{B}, s{B}, 4
    s_or_b32 s{A}, s{A}, s{B}
    s_add_u32 s{B}, s{A}, 0x55
    s_lshl_b32 s{C}, s{B}, 8
    s_or_b32 s{A}, s{C}, s{A if withq else B}
    s_mul_i32 s{B}, s{sHL}, 20
    s_add_u32 s{C}, s{B}, 19
    s_lshr_b32 s{B}, s{B}, 6
    s_lshr_b32 s{C}, s{C}, 6
    s_lshl_b32 s{C}, s{C}, 4
    s_or_b32 s{B}, s{B}, s{C}
    s_add_u32 s{B}, s{B}, 0xaa
    s_lshl_b32 s{B}, s{B}, 16
    s_or_b32 s{A}, s{A}, s{B}""")
def flag_poll(va,vt,soff,cnt,first=True,sleep=0):
    lp=p.lab("fp"); ok=p.lab("fpok");
    p(f"s_mov_b32 s{cnt}, {SPIN}")
    if not first:
        md=p.lab("fpm"); p(f"s_branch {md}")
    p(f"""{lp}:
    buffer_load_dword v{vt}, v{va}, {S4(sWS)}, s{soff} offen sc1""")
    if not first: p(f"{md}:")
    p(f"""s_waitcnt vmcnt(0)
    v_cmp_ne_u32 vcc, s{sTAG}, v{vt}
    s_nop 0
    s_cbranch_vccz {ok}""")
    spin(cnt,lp,ok,sleep)
    p(f"s_branch {lp}\n{ok}:")
def flag_poll2(va,vt,soff,cnt,n=2,gap=0):
    lp=p.lab("fq"); ok=p.lab("fqok")
    ld=lambda i: f"buffer_load_dword v{vt+i}, v{va}, {S4(sWS)}, s{soff} offen sc1"
    p(f"s_mov_b32 s{cnt}, {SPIN}")
    for i in range(n-1):
        p(ld(i))
        if gap: p(f"s_sleep {gap}")
    p(f"{lp}:")
    for i in range(n):
        p(f"""{ld((i+n-1)%n)}
        s_waitcnt vmcnt({n-1})
        v_cmp_ne_u32 vcc, s{sTAG}, v{vt+i}
        s_nop 0
        s_cbranch_vccz {ok}""")
    spin(cnt,lp,ok)
    p(f"s_branch {lp}\n{ok}:")
def kv_dma(aLin,aTl,sK,sV,sL,A,B,sHO=sHO):
    p(f"""s_mul_i32 s{A}, s{sHO}, 1536
    s_add_u32 s{A}, s{A}, s{sK}
    s_mov_b32 m0, s{sL}
    s_add_u32 s{B}, s{A}, 1536
    buffer_load_dwordx4 v{aLin}, {S4(sWS)}, s{A} offen {CFG['ldp']} lds
    buffer_load_dwordx4 v{aLin}, {S4(sWS)}, s{B} offen offset:1024 {CFG['ldp']} lds
    s_sub_u32 s{A}, s{sK}, 2048
    s_sub_u32 s{B}, s{sV}, 3072
    buffer_load_dwordx4 v{aTl}, {S4(sWS)}, s{A} offen offset:2048 {CFG['ldp']} lds
    buffer_load_dwordx4 v{aLin}, {S4(sWS)}, s{B} offen offset:3072 {CFG['ldp']} lds
    s_add_u32 m0, s{sL}, 4096
    s_add_u32 s{B}, s{sV}, 1024
    buffer_load_dwordx4 v{aLin}, {S4(sWS)}, s{B} offen {CFG['ldp']} lds
    s_mov_b64 exec, s[{sLO}:{sLO+1}]
    buffer_load_dwordx4 v{aLin}, {S4(sWS)}, s{B} offen offset:1024 {CFG['ldp']} lds
    s_mov_b64 exec, -1""")
def kv_addr(aLin,aTl,t):
    p(f"""v_lshlrev_b32 v{aLin}, 4, v0
    v_lshrrev_b32 v{t}, 5, v0
    v_mul_u32_u24 v{t}, {2560-512}, v{t}
    v_add3_u32 v{aTl}, v{aLin}, v{t}, s{sK1024}""")
sK1024=sT+21

def halo_cond(A,B):
    p(f"""s_lshr_b32 s{A}, 0x8ccc, s{sBK}
    s_cmp_gt_u32 s{sCT}, 2
    s_cselect_b32 s{A}, s{A}, 0
    s_and_b32 s{A}, s{A}, 1""")
def halo_flag(vt,A,B,C):
    sk=p.lab("nohalo")
    halo_cond(A,B)
    p(f"""s_cbranch_scc0 {sk}
    s_lshl_b32 s{A}, s{sCT}, 1
    s_add_u32 s{A}, s{A}, s{HW}
    s_sub_u32 s{A}, s{A}, 3
    s_lshl_b32 s{C}, s{sG}, 4
    s_add_u32 s{A}, s{A}, s{C}
    s_lshl_b32 s{A}, s{A}, 2
    s_add_u32 s{A}, s{A}, s{sRB}
    s_lshl_b32 s{A}, s{A}, 8
    s_add_u32 s{A}, s{A}, {FH}
    s_lshl_b32 s{B}, s{HW}, 2
    s_add_u32 s{B}, s{B}, {F_STG-8}
    v_mov_b32 v{vt}, s{B}
    v_lshlrev_b32 v{vt+2}, 7, v0
    v_mov_b32 v{vt+3}, s{sTAG}""")
    lds_wait(vt,vt+1,C,'gt',2,0)
    p(f"""s_mov_b64 exec, 3
    buffer_store_dword v{vt+3}, v{vt+2}, {S4(sWS)}, s{A} offen sc1
    s_mov_b64 exec, -1""")
    STAMP('halo')
    p(f"{sk}:")
def halo_copy(vt,A,B,C,mid):
    sk=p.lab("nohalo"); jn=p.lab("halo_j"); D=168; sD=sT+12; sFH=sT+13
    p(f"s_mov_b32 s{sFH}, 0")
    halo_cond(A,B)
    p(f"""s_cbranch_scc0 {sk}
    s_lshl_b32 s{A}, s{sCT}, 1
    s_add_u32 s{A}, s{A}, s{HW}
    s_sub_u32 s{A}, s{A}, 3
    s_cmp_lt_u32 s{A}, 10
    s_cselect_b32 s{sD}, 1, 0
    s_lshl_b32 s{sD}, 1280, s{sD}
    s_lshl_b32 s{C}, s{sG}, 4
    s_add_u32 s{A}, s{A}, s{C}
    s_lshl_b32 s{A}, s{A}, 2
    s_add_u32 s{A}, s{A}, s{sRB}
    s_lshl_b32 s{A}, s{A}, 8
    s_add_u32 s{sFH}, s{A}, {FH}
    s_lshl_b32 s{B}, s{HW}, 2
    s_add_u32 s{B}, s{B}, {F_STG-8}
    v_mov_b32 v{vt}, s{B}
    s_mul_i32 s{B}, s{HW}, {2*9216}
    s_add_u32 s{B}, s{B}, {L_WO-4*9216}
    v_lshl_add_u32 v{vt+2}, v0, 4, s{B}
    v_mov_b32 v{vt+3}, {F_HR}
    v_mov_b32 v{vt+4}, 1""")
    lds_wait(vt,vt+1,C,'gt',2,0)
    STAMP('hs1')
    for wr in range(2):
        for i in range(9): p(f"ds_read_b128 {vr(D+36*wr+4*i,4)}, v{vt+2} offset:{wr*9216+i*1024}")
        if wr==0: p("s_waitcnt lgkmcnt(6)")
    p(f"v_add_u32 v{vt}, 8, v{vt}")
    lds_wait(vt,vt+1,C,'gt',2,0)
    STAMP('hs2')
    for wr in range(2):
        for i in range(8): p(f"buffer_store_dwordx4 {vr(D+36*wr+4*i,4)}, v{D+36*wr+32+(i&3)}, {S4(sWS)}, {'s%d'%sD if i>>2 else 0} offen sc1")
    p(f"""s_mov_b64 exec, 1
    ds_add_u32 v{vt+3}, v{vt+4}
    s_mov_b64 exec, -1""")
    p(f"{sk}:")
    mid()
    p(f"""s_cmp_eq_u32 s{sFH}, 0
    s_cbranch_scc1 {jn}
    v_mov_b32 v{vt+2}, 0
    v_mov_b32 v{vt+4}, s{sTAG}
    s_waitcnt vmcnt(0)
    s_mov_b64 exec, 1
    buffer_store_dword v{vt+4}, v{vt+2}, {S4(sWS)}, s{sFH} offen sc1
    s_mov_b64 exec, -1""")
    STAMP('halo')
    lds_wait(vt+3,vt+1,C,'gt',2,0)
    p(f"{jn}:")
def own_setup(aF2,vt):
    A=sT+7; B=sT+8; sF,sK,sV,sL=range(sT+12,sT+16)
    flag_addr(aF2,vt,1,A,B,sT+18)
    p(f"""s_lshl_b32 s{sF}, s{sG}, 11
    s_lshl_b32 s{A}, s{sHF}, 4
    s_add_u32 s{sF}, s{sF}, s{A}
    s_add_u32 s{sF}, s{sF}, {FL}
    s_lshl_b32 s{A}, s{HW}, 1
    s_add_u32 s{A}, s{A}, s{sT0}
    s_mul_i32 s{sK}, s{A}, 2560
    s_mul_i32 s{sV}, s{A}, 1280
    s_mul_i32 s{A}, s{sPH}, {64*2560}
    s_add_u32 s{sK}, s{sK}, s{A}
    s_add_u32 s{sK}, s{sK}, {KB}
    s_mul_i32 s{A}, s{sHD}, 81920
    s_add_u32 s{sV}, s{sV}, s{A}
    s_add_u32 s{sV}, s{sV}, {VB}
    s_mul_i32 s{sL}, s{HW}, 5632
    s_add_u32 s{sL}, s{sL}, {L_KV+4*5632}""")
def own_kv(aLin,aTl,aF2,vt,sHO_):
    A=sT+7; B=sT+8; sF,sK,sV,sL=range(sT+12,sT+16); C=sT+18
    p(f"v_mov_b32 v{vt}, {F_FS}\nv_mov_b32 v{vt+1}, 1")
    flag_poll(aF2,vt+2,sF,C)
    p(f"ds_write_b32 v{vt}, v{vt+1}")
    STAMP('hfs')
    kv_dma(aLin,aTl,sK,sV,sL,A,B,sHO_)
    p(f"""s_mov_b64 exec, 1
    v_mov_b32 v{vt}, {F_G1}
    s_waitcnt vmcnt(0)
    ds_add_u32 v{vt}, v{vt+1}
    s_mov_b64 exec, -1""")
    STAMP('hg1')
def helperA(steps):
    A=sT+7; B=sT+8; vt=10
    def hook(c):
        if c==CFG['pt']:
            qkv_touch(); OPS.extend(['pt']*wtouch('w1',0))
        if c==CFG['wts']: OPS.extend(['pt']*touch(vTW,sWO,0))
    steps(hook,0)
    for c in (8,9):
        vmwait(c); p("s_barrier"); STAMP('ld%d'%c)
        if c==9: STAMP('hb9')
        hook(c)
    stats_fin(vt,B)
    p("s_barrier\ns_waitcnt lgkmcnt(0)\ns_barrier")
    STAMP('hE1')
    if CFG['hsp']&2: p(f"v_mov_b32 v{vt}, {L_MODE}\nds_read_b32 v{vt+1}, v{vt}")
    att_ids()
    if CFG['hsp']&2: p(f"s_waitcnt lgkmcnt(0)\nv_readfirstlane_b32 s{sMODE}, v{vt+1}")
    aLin=6; aTl=7; aF=8; D=40
    p(f"s_mov_b32 s{sK1024}, 1024")
    kv_addr(aLin,aTl,vt)
    flag_addr(aF,vt,0,A,B,sT+17)
    if CFG['hsp']: flag_nib(1,A,B,sT+17); p(f"s_mov_b32 s{sT+21}, s{A}")
    if CFG['hkv']: own_setup(9,vt)
    p(f"v_mov_b32 v{vt+1}, 1")
    sF=sT+9; sK=sT+10; sV=sT+11; sL=sT+16; C=sT+17; sD=sT+12
    dn=p.lab("g2done"); h1=p.lab("rem"); jn=p.lab("remj")
    assert not (CFG['hsent'] or CFG['hkv'])
    p(f"""v_and_b32 v{vt+2}, 4, v{aF}
    v_and_b32 v{aF}, -128, v{aF}
    s_cmp_lg_u32 s{HW}, 0
    s_cbranch_scc1 {h1}
    v_add_u32 v{aF}, v{aF}, v{vt+2}
    s_mul_i32 s{A}, s{sHF}, 24
    s_lshl_b32 s{sF}, s{sG}, 11
    s_add_u32 s{sF}, s{sF}, s{A}
    s_add_u32 s{sF}, s{sF}, {FL}
    {f"s_cmp_eq_u32 s{sT0}, 56" if CFG['honly'] else ""}
    {f"s_cselect_b32 s{B}, 0, {KH-KB}" if CFG['honly'] else f"s_mov_b32 s{B}, 0"}
    s_branch {jn}
    {h1}:
    v_lshlrev_b32 v{aF}, 3, v{aF}
    s_lshl_b32 s{A}, s{sHF}, 2
    s_add_u32 s{A}, s{A}, s{sG}
    s_sub_u32 s{A}, s{A}, 2
    s_and_b32 s{A}, s{A}, 7
    s_lshl_b32 s{sF}, s{A}, 14
    s_mul_i32 s{A}, s{sHF}, -768
    s_add_u32 s{sF}, s{sF}, s{A}
    s_add_u32 s{sF}, s{sF}, {FH+768}
    s_mov_b32 s{B}, {KH-KB}
    {jn}:
    s_lshl_b32 s{A}, s{HW}, 2
    s_sub_u32 s{sK}, -2, s{A}
    s_cmp_eq_u32 s{sHF}, 0
    s_cselect_b32 s{A}, s{sK}, s{A}
    s_mul_i32 s{sD}, s{sHF}, 5120
    s_sub_u32 s{sD}, s{sD}, 2560
    s_add_u32 s{A}, s{A}, s{sT0}
    s_mul_i32 s{sK}, s{A}, 2560
    s_mul_i32 s{sV}, s{A}, 1280
    s_mul_i32 s{A}, s{sPH}, {64*2560}
    s_add_u32 s{sK}, s{sK}, s{A}
    s_add_u32 s{sK}, s{sK}, s{B}
    s_add_u32 s{sK}, s{sK}, {KB}
    s_mul_i32 s{A}, s{sHD}, 81920
    s_add_u32 s{sV}, s{sV}, s{A}
    s_add_u32 s{sV}, s{sV}, s{B}
    s_add_u32 s{sV}, s{sV}, {VB}
    s_mul_i32 s{sL}, s{HW}, {-2*5632}
    s_add_u32 s{sL}, s{sL}, {L_KV+3*5632}""")
    if CFG['hsp']&2:
        sk=p.lab("noown"); sp=p.lab("ownp"); so=p.lab("ownok"); O=[sT+13,sT+14,sT+15,sT+18,sT+19,sT+20]; Rq=[4,8,12,28,40,96]
        halo_cond(A,B)
        p(f"""s_and_b32 s{A}, s{A}, s{HW}
        s_andn2_b32 s{A}, s{A}, s{sMODE}
        s_cbranch_scc0 {sk}
        s_lshl_b32 s{A}, s{sG}, 11
        s_add_u32 s{A}, s{A}, {FL}
        s_lshl_b32 s{B}, s{sHF}, 4
        s_add_u32 s{B}, s{B}, s{A}
        s_add_u32 s{A}, s{A}, 8""")
        for i in range(6): p(f"s_bfe_u32 s{O[i]}, s{sT+21}, {hex((4*i)|(4<<16))}\ns_lshl_b32 s{O[i]}, s{O[i]}, 7\ns_add_u32 s{O[i]}, s{O[i]}, s{B if i<2 else A}")
        assert 'FS' not in CFG['gm']+CFG['gr']
        if CFG['ogate']: p(f"v_mov_b32 v{vt}, {F_FS}"); lds_wait(vt,vt+5,C,'gt',CFG['ogate'],1)
        p(f"v_mov_b32 v{vt}, {F_OWN}\ns_mov_b32 s{C}, {SPIN}\n{sp}:")
        for i in range(6): p(f"s_load_dwordx4 s[{Rq[i]}:{Rq[i]+3}], s[{sWS}:{sWS+1}], s{O[i]} glc")
        p("s_waitcnt lgkmcnt(0)")
        for i in range(6):
            r=Rq[i]
            p(f"s_and_b64 s[{A+1}:{A+2}], s[{r}:{r+1}], s[{r+2}:{r+3}]" if 0 else "")
            p(f"s_xor_b64 s[{r}:{r+1}], s[{r}:{r+1}], s[{r+2}:{r+3}]\ns_xor_b32 s{r+2}, s{r+2}, s{sTAG}\ns_xor_b32 s{r+3}, s{r+3}, s{sTAG}\ns_or_b64 s[{r}:{r+1}], s[{r}:{r+1}], s[{r+2}:{r+3}]")
            if i: p(f"s_or_b64 s[4:5], s[4:5], s[{r}:{r+1}]")
        p(f"""s_cbranch_scc0 {so}
        s_sub_u32 s{C}, s{C}, 1
        {f"s_sleep {CFG['hsl2']}" if CFG['hsl2'] else ""}
        s_cbranch_scc0 {sp}
        {so}:
        ds_write_b32 v{vt}, v{vt+1}""")
        if CFG['prof']: p("s_mov_b64 s[96:97], 0\ns_mov_b64 s[98:99], 0")
        STAMP('own')
        p(f"{sk}:")
    if CFG['lay'] and CFG['padk']==3:
        p(f"s_cmp_eq_u32 s{HW}, 1\ns_cbranch_scc1 L_pv0\nL_pkb0:")
        STAMP('pk')
    p(f"s_cmp_eq_u32 s{sT0}, 0\ns_cbranch_scc1 {dn}")
    def both():
        kv_dma(aLin,aTl,sK,sV,sL,A,B)
        p(f"""s_add_u32 s{sK}, s{sK}, s{sD}
        s_add_u32 s{sK}, s{sK}, s{sD}
        s_add_u32 s{sV}, s{sV}, s{sD}
        s_sub_u32 s{sL}, s{sL}, 5632""")
        kv_dma(aLin,aTl,sK,sV,sL,A,B)
    GT=dict(G1=(F_G1,4),FS=(F_FS,1),FS4=(F_FS,4),M=(F_M,1))
    if CFG['gm']!='no' or CFG['gr']!='no':
        g0=p.lab("gate0"); g1=p.lab("gate1")
        p(f"s_cmp_lg_u32 s{HW}, 0\ns_cbranch_scc1 {g0}")
        if CFG['gm']!='no': p(f"v_mov_b32 v{vt}, {GT[CFG['gm']][0]}"); lds_wait(vt,vt+5,C,'gt',GT[CFG['gm']][1],0)
        p(f"s_branch {g1}\n{g0}:")
        if CFG['gr']!='no': p(f"v_mov_b32 v{vt}, {GT[CFG['gr']][0]}"); lds_wait(vt,vt+5,C,'gt',GT[CFG['gr']][1],0)
        p(f"{g1}:")
    if CFG['hsp']&1:
        vp=p.lab("vecp"); sp=p.lab("scp"); so=p.lab("scok")
        p(f"s_cmp_eq_u32 s{HW}, 0\ns_cbranch_scc1 {vp}")
        for i in range(4): p(f"s_bfe_u32 s{8+i}, s{sT+21}, {hex((8+4*i)|(4<<16))}\ns_lshl_b32 s{8+i}, s{8+i}, 10\ns_add_u32 s{8+i}, s{8+i}, s{sF}")
        p(f"s_mov_b32 s{C}, 256\n{sp}:")
        for i in range(4): p(f"s_load_dword s{4+i}, s[{sWS}:{sWS+1}], s{8+i} glc")
        p("s_waitcnt lgkmcnt(0)")
        for i in range(4): p(f"s_xor_b32 s{4+i}, s{4+i}, s{sTAG}")
        p(f"""s_or_b32 s4, s4, s5
        s_or_b32 s6, s6, s7
        s_or_b32 s4, s4, s6
        s_cbranch_scc0 {so}
        s_sub_u32 s{C}, s{C}, 1
        {f"s_sleep {CFG['hsl']}" if CFG['hsl'] else ""}
        s_cbranch_scc0 {sp}
        {vp}:""")
        flag_poll(aF,vt+5,sF,C,sleep=CFG['hsl'])
        p(f"{so}:")
    elif CFG['hpoll']: flag_poll2(aF,vt+5,sF,C,CFG['hpoll'],CFG['hsl'])
    else: flag_poll(aF,vt+5,sF,C,sleep=CFG['hsl'])
    STAMP('hf')
    both()
    if CFG['wpause']: p(f"s_lshl_b32 s{A}, s{HW}, 2\ns_add_u32 s{A}, s{A}, {F_RI-4}\nv_mov_b32 v{vt+2}, s{A}\nds_write_b32 v{vt+2}, v{vt+1}")
    if CFG['mtw'] in ('RI','MI'):
        nt_=p.lab("nori"); d2=p.lab("g2d")
        p(f"s_cmp_eq_u32 s{HW}, {int(CFG['mtw']=='RI')}\ns_cbranch_scc0 {nt_}")
        touch(vTM,sWG,0); touch(vTM,sWU,0)
        p(f"s_waitcnt vmcnt(2)\ns_branch {d2}\n{dn}:\ns_cmp_eq_u32 s{HW}, {int(CFG['mtw']=='RI')}\ns_cbranch_scc0 {d2}")
        touch(vTM,sWG,0); touch(vTM,sWU,0)
        p(f"s_branch {d2}\n{nt_}:"); dn=d2
    p(f"""s_waitcnt vmcnt(0)
    {dn}:
    s_lshl_b32 s{A}, s{HW}, 2
    s_add_u32 s{A}, s{A}, {F_M}
    v_mov_b32 v{vt}, {F_G2}
    v_mov_b32 v{vt+2}, s{A}
    s_mov_b64 exec, 1
    ds_write_b32 v{vt+2}, v{vt+1}
    {f"ds_write_b32 v{vt+2}, v{vt+1} offset:{F_RI-4-F_M}" if CFG['wpause'] else ""}
    ds_add_u32 v{vt}, v{vt+1}
    s_mov_b64 exec, -1""")
    STAMP('g2')
    if CFG['mtw']=='sm':
        u=p.lab("smu"); j=p.lab("smj")
        def run(r,n,f):
            for i in range(n):
                if CFG['smx']==2: p(f"s_load_dwordx2 s[100:101], s[{r}:{r+1}], s{A} offset:{f(i)+60}")
                else: p(f"s_load_dword s100, s[{r}:{r+1}], s{A} offset:{f(i)}")
        p(f"""s_mul_i32 s{A}, s{sSLOT}, {20*3072}
        s_mul_i32 s{B}, s{sG}, 384
        s_add_u32 s{A}, s{A}, s{B}
        s_cmp_eq_u32 s{HW}, 0
        s_cbranch_scc0 {u}""")
        run(sWG,60,lambda i:(i//3)*3072+(i%3)*128)
        p(f"s_branch {j}\n{u}:")
        run(sWU,60,lambda i:(i//3)*3072+(i%3)*128)
        p(f"{j}:")
        if CFG['smd']:
            p(f"""s_lshl_b32 s{A}, s{sSLOT}, 1
            s_add_u32 s{A}, s{A}, s{HW}
            s_mul_i32 s{A}, s{A}, {24*1280}
            s_mul_i32 s{B}, s{sG}, 160
            s_and_b32 s{B}, s{B}, -128
            s_add_u32 s{A}, s{A}, s{B}""")
            run(sWD,48,lambda i:(i//2)*1280+(i%2)*128)
        STAMP('mt')
        if CFG['prof'] and any('mt2' in x for x in CFG['st']): p("s_waitcnt lgkmcnt(0)"); STAMP('mt2')
    if 'w3' in (CFG['wtw'],CFG['mtw']):
        fa=dict(G1=(F_G1,4),WOR=(F_WOR,2),WOD=(F_WOD,2),WO2=(F_WO2,2),DONE=(F_DONE,4),PR=(F_PR,4),LD=(F_LD,1),RL=(F_H2,4))[CFG['mtg']]
        p(f"v_mov_b32 v{vt}, {fa[0]}")
        if CFG['mth']:
            nt_=p.lab("nomt")
            p(f"s_cmp_eq_u32 s{sHF}, 0\ns_cbranch_scc1 {nt_}")
        lds_wait(vt,vt+5,C,'gt',fa[1],1)
        wtouch('w3',0)
        if CFG['mth']:
            p(f"v_subrev_u32 v{vTM}, {20*3072}, v{vTM}")
            if CFG['mth']==2: p("s_waitcnt vmcnt(0)")
            wtouch('w3',0)
            p(f"{nt_}:")
        if CFG['dw3']: touch(vTD,sWD,CFG['mpair'])
        STAMP('mt')
        if CFG['prof'] and any('mt2' in x for x in CFG['st']): p("s_waitcnt vmcnt(0)"); STAMP('mt2')

def tr_addr(a0,t):
    tab=[[0,8],[4,12],[16,36],[20,28],[24,32]]
    pk=[sum((tab[u][rd]//4)<<(4*u) for u in range(5)) for rd in range(2)]
    A=sT+7; B=sT+8
    p(f"""s_mov_b32 s{A}, {pk[0]}
    s_mov_b32 s{B}, {pk[1]}
    v_bfe_u32 v{t}, v0, 2, 2
    v_mul_u32_u24 v{t}, 160, v{t}
    v_and_b32 v{t+1}, 3, v0
    v_mad_u32_u24 v{t}, v{t+1}, 40, v{t}
    v_lshrrev_b32 v{t+1}, 4, v0""")
    for s_ in range(5):
        p(f"""v_add_u32 v{t+2}, {4*s_}, v{t+1}
        v_mul_u32_u24 v{t+4}, 52, v{t+2}
        v_lshrrev_b32 v{t+4}, 8, v{t+4}
        v_mul_u32_u24 v{t+5}, 5, v{t+4}
        v_sub_u32 v{t+2}, v{t+2}, v{t+5}
        v_lshlrev_b32 v{t+2}, 2, v{t+2}
        v_mul_u32_u24 v{t+4}, 10, v{t+4}""")
        for rd in range(2):
            p(f"""v_bfe_u32 v{t+3}, s{(A,B)[rd]}, v{t+2}, 4
            v_add_u32 v{t+3}, v{t+3}, v{t+4}
            v_mul_u32_u24 v{t+3}, 640, v{t+3}
            v_add_u32 v{a0+2*s_+rd}, v{t+3}, v{t}""")
sBLK,sJ=sT+9,sT+10
def wo_ids():
    p(f"""s_lshr_b32 s{sBLK}, s{sSLOT}, 3
    s_lshl_b32 s{sJ}, s{sG}, 2
    s_add_u32 s{sBLK}, s{sBLK}, s{sJ}
    s_and_b32 s{sJ}, s{sSLOT}, 7""")
def clr_ids(A,B,C,D_):
    p(f"""s_lshr_b32 s{C}, s{sSLOT}, 3
    s_lshl_b32 s{B}, s{sG}, 2
    s_add_u32 s{C}, s{C}, s{B}
    s_lshl_b32 s{C}, s{C}, 3
    s_and_b32 s{B}, s{sSLOT}, 7
    s_add_u32 s{D_}, s{C}, s{B}
    s_lshr_b32 s{A}, s{D_}, 1
    s_mul_i32 s{A}, s{A}, 20480
    s_and_b32 s{B}, s{B}, 1
    s_mul_i32 s{B}, s{B}, 5120
    s_add_u32 s{A}, s{A}, s{B}
    s_add_u32 s{A}, s{A}, {OB}
    s_mul_i32 s{B}, s{sHH}, 10240
    s_add_u32 s{C}, s{A}, 10240
    s_add_u32 s{A}, s{A}, s{B}
    s_sub_u32 s{C}, s{C}, s{B}
    s_lshl_b32 s{D_}, s{D_}, 10
    s_add_u32 s{D_}, s{D_}, {PS}""")
def clears(part):
    A=sT+13; B=sT+14; C=sT+15; D_=sT+16; D=12; aL=16
    if part==0:
        clr_ids(A,B,C,D_)
        p(f"v_lshlrev_b32 v{aL}, 4, v0")
        for r in range(4): p(f"v_mov_b32 v{D+r}, -1")
        return
    st4=lambda so,off,sc: f"buffer_store_dwordx4 v[{D}:{D+3}], v{aL}, {S4(sWS)}, s{so} offen offset:{off} {sc}" if not (CFG['noclr']>>(0 if sc!='sc1' else 1))&1 else "s_nop 0"
    w2=p.lab("clw2"); w3=p.lab("clw3"); dn=p.lab("cldn")
    if CFG['hsent']:
        H_=sT+17; nh=p.lab("clnh")
        p(f"""s_cmp_eq_u32 s{sWAVE}, 3
        s_cbranch_scc1 {nh}
        s_lshl_b32 s{B}, s{sWAVE}, 8
        s_add_u32 s{B}, s{B}, s2
        s_sub_u32 s{H_}, s{B}, 384
        s_cselect_b32 s{H_}, s{B}, s{H_}
        s_cselect_b32 s{H_+1}, 3, 2
        s_cselect_b32 s{H_+2}, 0, {VH+10240-KH-20480}
        s_cselect_b32 s{H_+3}, 1, 0
        s_lshr_b32 s{B}, s{H_}, s{H_+1}
        s_lshl_b32 s{H_+1}, s{B}, s{H_+1}
        s_sub_u32 s{H_}, s{H_}, s{H_+1}
        s_mul_i32 s{H_}, s{H_}, 2560
        s_add_u32 s{H_}, s{H_}, s{H_+2}
        s_mul_i32 s{H_+1}, s{B}, 171
        s_lshr_b32 s{H_+1}, s{H_+1}, 9
        s_add_u32 s{B}, s{B}, s{H_+1}
        s_mul_i32 s{B}, s{B}, 20480
        s_lshl_b32 s{B}, s{B}, s{H_+3}
        s_add_u32 s{H_}, s{H_}, s{B}
        s_add_u32 s{H_}, s{H_}, {KH+20480}""")
        for o in (0,1024,1536): p(st4(H_,o,"sc1"))
        p(f"{nh}:")
    p(f"""s_cmp_ge_u32 s{sWAVE}, 2
    s_cbranch_scc1 {w2}
    s_mul_i32 s{B}, s{sWAVE}, 2560
    s_add_u32 s{A}, s{A}, s{B}""")
    for o in (0,1024,1536): p(st4(A,o,CFG['cpol']))
    p(f"""s_branch {dn}
    {w2}:
    s_cmp_eq_u32 s{sWAVE}, 3
    s_cbranch_scc1 {w3}
    s_mul_i32 s{C}, s2, 2560
    s_add_u32 s{C}, s{C}, {CAND}""")
    if 'c' in CFG['ptc']: p(f"v_lshlrev_b32 v228, 7, v0\ns_mov_b64 exec, {0x3ff if 'l' in CFG['ptc'] else 0xfffff}\nbuffer_load_dword v229, v228, {S4(sWS)}, s{C} offen\ns_mov_b64 exec, -1")
    for o in (0,1024,1536): p(st4(C,o,"sc1"))
    p(f"""s_branch {dn}
    {w3}:""")
    if CFG['osent']:
        if 'o' in CFG['ptc']: p(f"v_lshlrev_b32 v228, 7, v0\ns_mov_b32 exec_hi, 0xff\nbuffer_load_dword v229, v228, {S4(sWS)}, s{C} offen\ns_mov_b64 exec, -1")
        for o in range(4): p(st4(C,o*1024,"sc1"))
        p(f"s_add_u32 s{C}, s{C}, 4096"); p(st4(C,0,"sc1"))
    p(f"""s_cmp_ge_u32 s2, 24
    s_cbranch_scc1 {dn}
    s_lshl_b32 s{C}, s2, 10
    s_add_u32 s{C}, s{C}, {ACT}""")
    if 'a' in CFG['ptc']: p(f"v_lshlrev_b32 v228, 7, v0\ns_mov_b64 exec, 0xff\nbuffer_load_dword v229, v228, {S4(sWS)}, s{C} offen\ns_mov_b64 exec, -1")
    p(st4(C,0,"sc1"))
    p(f"{dn}:")
cU=sT+13; vC=84
def hclear_setup(isB):
    A=sT+15; B=sT+16; C=sT+17; D_=sT+18; H_=sT+17
    clr_ids(A,B,C,D_)
    if isB: p(f"""s_mul_i32 s{B}, s2, 2560
        s_add_u32 s{B}, s{B}, {CAND}
        s_add_u32 s{A}, s{C}, 2560
        s_cmp_eq_u32 s{HW}, 2
        s_cselect_b32 s{cU+1}, s{B}, s{A}
        s_mov_b32 s{cU}, s{C}""")
    else: p(f"""s_mul_i32 s{B}, s{HW}, 2560
        s_add_u32 s{cU+1}, s{A}, s{B}""")
    p(f"""s_lshl_b32 s{B}, s{HW}, 8
    s_add_u32 s{B}, s{B}, s2
    s_sub_u32 s{H_}, s{B}, 384
    s_cselect_b32 s{H_}, s{B}, s{H_}
    s_cselect_b32 s{H_+1}, 3, 2
    s_cselect_b32 s{H_+2}, 0, {VH+10240-KH-20480}
    s_cselect_b32 s{H_+3}, 1, 0
    s_lshr_b32 s{B}, s{H_}, s{H_+1}
    s_lshl_b32 s{H_+1}, s{B}, s{H_+1}
    s_sub_u32 s{H_}, s{H_}, s{H_+1}
    s_mul_i32 s{H_}, s{H_}, 2560
    s_add_u32 s{H_}, s{H_}, s{H_+2}
    s_mul_i32 s{H_+1}, s{B}, 171
    s_lshr_b32 s{H_+1}, s{H_+1}, 9
    s_add_u32 s{B}, s{B}, s{H_+1}
    s_mul_i32 s{B}, s{B}, 20480
    s_lshl_b32 s{B}, s{B}, s{H_+3}
    s_add_u32 s{H_}, s{H_}, s{B}
    s_add_u32 s{H_}, s{H_}, {KH+20480}""")
    if isB: p(f"""s_cmp_eq_u32 s{HW}, 2
        s_cselect_b32 s{cU}, s{H_}, s{cU}
        s_cselect_b32 s{cU+3}, 256, s2
        s_lshl_b32 s{cU+2}, s2, 10
        s_cmp_lt_u32 s{cU+3}, 24
        s_cselect_b32 s{H_}, 0, {STX+0x20000-ACT}
        s_add_u32 s{cU+2}, s{cU+2}, s{H_}
        s_add_u32 s{cU+2}, s{cU+2}, {ACT}""")
    else: p(f"""s_mov_b32 s{cU}, s{H_}
        s_getreg_b32 s{A}, hwreg(HW_REG_XCC_ID, 0, 4)
        s_or_b32 s{A}, s{A}, s{sTAG}
        v_mov_b32 v{vC+5}, s{A}
        s_lshl_b32 s{cU+2}, s2, 2
        s_add_u32 s{cU+2}, s{cU+2}, {H1}""")
    p(f"v_lshlrev_b32 v{vC+4}, 4, v0")
    for r in range(4): p(f"v_mov_b32 v{vC+r}, -1")
def hclear(c,isB):
    st=lambda so,off,sc: (p(f"buffer_store_dwordx4 v[{vC}:{vC+3}], v{vC+4}, {S4(sWS)}, s{so} offen offset:{off} {sc}"),OPS.append('clr'))
    ks=[k for k in range(2) if CFG['cst'][k]==c and (CFG['hsent'] or k or isB)]
    pol=lambda k: "sc1" if isB or k==0 else CFG['cpol']
    for k in ks: st(cU+k,0,pol(k)); st(cU+k,1024,pol(k))
    if ks: p(f"s_mov_b64 exec, s[{sLO}:{sLO+1}]")
    for k in ks: st(cU+k,2048,pol(k))
    if ks: p("s_mov_b64 exec, -1")
    if isB and c==CFG['cst'][1]:
        sk=p.lab("noact")
        p(f"s_cmp_lt_u32 s{cU+3}, 24\ns_cselect_b64 exec, -1, 1"); st(cU+2,0,"sc1"); p("s_mov_b64 exec, -1")
    if not isB and c==max(CFG['cst'])+2:
        p(f"s_mov_b64 exec, 1\nbuffer_store_dword v{vC+5}, v{vC+4}, {S4(sWS)}, s{cU+2} offen sc1\ns_mov_b64 exec, -1"); OPS.append('clr')
sSM=sT+11
def sm_setup():
    A=sT+20
    p(f"""s_and_b32 s{A}, s{HW}, 1
    s_lshl_b32 s{sSM}, s{sSLOT}, 1
    s_add_u32 s{A}, s{A}, s{sSM}
    s_mul_i32 s{sSM}, s{A}, {10*3072}
    s_mul_i32 s{A}, s{sG}, 384
    s_add_u32 s{sSM}, s{sSM}, s{A}
    s_lshl_b32 s{A}, s2, 2
    s_add_u32 s{A}, s{A}, s{HW}
    s_mul_i32 s{sSM+1}, s{A}, 800
    s_and_b32 s{sSM+1}, s{sSM+1}, -128""")
def sm_touch(c,isB):
    for opt,n,f in ((CFG['smw'],30,lambda i: f"s_load_dword s100, s[{(sWG,sWU)[isB]}:{(sWG,sWU)[isB]+1}], s{sSM} offset:{(i//3)*3072+(i%3)*128}"),
                    (CFG['smo'],7,lambda i: f"s_load_dword s100, s[{sWO}:{sWO+1}], s{sSM+1} offset:{i*128}")):
        if opt and opt[0]<=c<opt[1]:
            k=opt[1]-opt[0]
            for i in range(n*(c-opt[0])//k,n*(c+1-opt[0])//k): p(f(i))
def code_pf():
    A=sT+18
    p(f"""s_getpc_b64 s[{A}:{A+1}]
    L_pc:
    s_sub_u32 s{A}, s{A}, L_pc-{NAME}_kernel
    s_subb_u32 s{A+1}, s{A+1}, 0
    s_lshl_b32 s{A+2}, s{sSLOT}, 2
    s_add_u32 s{A+2}, s{A+2}, s{sWAVE}
    s_mul_i32 s{A+2}, s{A+2}, 384
    s_min_u32 s{A+2}, s{A+2}, (L_exit-{NAME}_kernel-384)&0xffffff80""")
    for i in range(3): p(f"s_load_dwordx2 s[100:101], s[{A}:{A+1}], s{A+2} offset:{i*128+60}")
def wave_sum(x,t):
    dp="row_mask:0xf bank_mask:0xf"
    for c in ("quad_perm:[1,0,3,2]","quad_perm:[2,3,0,1]","row_half_mirror","row_mirror"):
        p(f"s_nop 1\nv_add_f32_dpp v{x}, v{x}, v{x} {c} {dp}")
    for sw in (16,32):
        p(f"""v_mov_b32 v{t}, v{x}
        s_nop 1
        v_permlane{sw}_swap_b32 v{x}, v{t}
        s_nop 0
        v_add_f32 v{x}, v{x}, v{t}""")
sPF=sT+16
def pf_group(n=5):
    for i in range(n): p(f"s_load_dwordx2 s[100:101], s[{sWO}:{sWO+1}], s{sPF} offset:{i*128+60}")
    p(f"""s_add_u32 s{sPF}, s{sPF}, {n*128}
    s_sub_u32 s{sPF+2}, s{sPF+2}, 1
    s_add_u32 s{sPF+3}, s{sPF+1}, 12800
    s_cmp_eq_u32 s{sPF}, s{sPF+3}
    s_cselect_b32 s{sPF}, s{sPF+1}, s{sPF}""")
def helperB(steps):
    A=sT+7; B=sT+8; vt=2; aD=140; aT=146; aLin=12; D=40; WRr=32
    sO=sT+1; sL=sT+2; sL0=sT+3; sL1=sT+4; C=sT+5
    p("L_helperB:")
    vM=23; x=10; a=sT+16
    clr_ids(a,a+1,a+2,a+3)
    p(f"""s_mul_i32 s{a+1}, s{HW}, 25
    s_sub_u32 s{a+1}, s{a+1}, 50
    v_min_u32 v{x}, 24, v0
    v_add_u32 v{x}, s{a+1}, v{x}
    v_min_u32 v{x}, 48, v{x}
    s_sub_u32 s{a+3}, s{a+3}, {40*128}
    s_and_b32 s{a+1}, s{sSLOT}, 15
    s_lshl_b32 s{a+2}, s{sG}, 4
    s_add_u32 s{a+1}, s{a+1}, s{a+2}
    s_lshl_b32 s{a+1}, s{a+1}, 7
    s_add_u32 s{a+1}, s{a+1}, {FL-48*128}
    v_mov_b32 v{x+1}, s{a}
    v_mov_b32 v{x+2}, s{a+3}
    v_cmp_le_u32 vcc, 40, v{x}
    v_mov_b32 v{x+3}, s{a+1}
    s_mul_i32 s{a+1}, s{sSLOT}, {200*128}
    v_cndmask_b32 v{x+1}, v{x+1}, v{x+2}, vcc
    v_cmp_le_u32 vcc, 48, v{x}
    s_mul_i32 s{a}, s{HW}, {100*128}
    s_add_u32 s{a+1}, s{a+1}, s{a}
    v_cndmask_b32 v{x+1}, v{x+1}, v{x+3}, vcc
    v_lshl_add_u32 v{vM}, v{x}, 7, v{x+1}
    s_sub_u32 s{sPF+1}, s{a+1}, {200*128}
    s_mul_i32 s{sPF}, s{sG}, 5
    s_lshr_b32 s{sPF}, s{sPF}, 1
    s_mul_i32 s{sPF}, s{sPF}, 640
    s_add_u32 s{sPF}, s{sPF}, s{sPF+1}
    s_mov_b32 s{sPF+2}, 20
    v_lshlrev_b32 v{vH+4}, 4, v0
    v_add_u32 v{vH+4}, {H1}, v{vH+4}
    v_mul_u32_u24 v{WRr+5}, 20, v0""")
    aB=130; sK=sT+11; sN=sT+16; sS=sT+17
    def wo_setup():
        va=96
        wo_ids()
        T=[[0,2],[1,3],[4,9],[5,7],[6,8]]
        NIB=[sum((10*((4*s5+g_)//5)+T[(4*s5+g_)%5][rd]-(8*s5+2*g_-2))<<(4*(4*rd+g_)) for rd in range(2) for g_ in range(4)) for s5 in range(5)]
        for i in range(5):
            p(f"""v_add_u32 v{va}, {64*i}, v0
            v_mul_u32_u24 v{va+1}, 6554, v{va}
            v_lshrrev_b32 v{va+1}, 16, v{va+1}
            v_mul_u32_u24 v{va+2}, 10, v{va+1}
            v_sub_u32 v{va}, v{va}, v{va+2}
            v_and_b32 v{aB+5+i}, 28, v{va+1}
            v_and_b32 v{va+2}, 3, v{va+1}
            v_mul_u32_u24 v{va+2}, 1280, v{va+2}
            v_lshl_add_u32 v{va}, v{va}, 4, v{va+2}
            v_bfe_u32 v{va+1}, v{va+1}, 2, 2
            v_mul_u32_u24 v{va+1}, 10240, v{va+1}
            v_add_u32 v{aB+i}, v{va}, v{va+1}""")
            if 0<i<4: p(f"v_subrev_u32 v{aB+i}, {i*1024}, v{aB+i}")
        p(f"""s_lshr_b32 s{A}, s{sSLOT}, 3
        s_mul_i32 s{A}, s{A}, 5
        s_lshr_b32 s{A}, s{A}, 1
        s_add_u32 s{A}, s{A}, s{HW}
        s_sub_u32 s{sK}, s{A}, 2
        v_mov_b32 v{va}, 5120""")
        def woaddr(n):
            p(f"""s_add_u32 s{A}, s{sK}, {2*n}
            s_sub_u32 s{B}, s{A}, 10
            s_cselect_b32 s{A}, s{A}, s{B}
            s_sub_u32 s{B}, s{A}, 5
            s_cselect_b32 s{B}, s{A}, s{B}
            s_mul_i32 s{sS}, s{A}, 40960
            s_sub_u32 s{sS}, s{sS}, 10240
            s_mov_b32 s{sN}, {hex(NIB[0])}""")
            for k in range(1,5): p(f"s_cmp_eq_u32 s{B}, {k}\ns_cselect_b32 s{sN}, {hex(NIB[k])}, s{sN}")
            for i in range(5):
                p(f"""v_bfe_u32 v{va+1}, s{sN}, v{aB+5+i}, 4
                v_mad_u32_u24 v{va+1}, v{va+1}, v{va}, v{aB+i}
                v_add_u32 v{aD+5*n+i}, s{sS}, v{va+1}""")
        for n in range(5): woaddr(n)
    if CFG['wose']==0: wo_setup()
    npf=CFG['npf']
    for _ in range(npf[0]): pf_group()
    def hook(c):
        if c==(100 if CFG['hstep']==CFG['stg'] else CFG['hstep']):
            p(f"buffer_load_dwordx4 v[{vH}:{vH+3}], v{vH+4}, {S4(sWS)}, 0 offen sc1"); OPS.append('h1')
        if c==100:
            p(f"buffer_load_dwordx4 {vr(WRr,4)}, v{WRr+5}, {S4(sWR)}, 0 offen\nbuffer_load_dword v{WRr+4}, v{WRr+5}, {S4(sWR)}, 0 offen offset:16"); OPS.extend(['wr','wr'])
        if c==CFG['pt']:
            qkv_touch()
            OPS.extend(['pt']*wtouch('w1',1))
        if c==CFG['wts']: OPS.extend(['pt']*touch(vTW,sWO,0))
        if c==CFG['pt2']: OPS.extend(['pt']*touch(vM,sWS,CFG['qpair2'],CFG['tpol']))
    steps(hook,1)
    st=dict(n=0)
    def dma(cnt):
        for _ in range(min(cnt,50-st['n'])):
            n=st['n']; i=n%5; k=(n//5)%5
            if n==0 or n==25:
                p(f"""s_xor_b32 s{A}, s{sHH}, {n//25}
                s_mul_i32 s{sO}, s{A}, {320*1280}
                s_mul_i32 s{sL0}, s{A}, 51200
                s_add_u32 s{sL0}, s{sL0}, {L_WO}
                s_mul_i32 s{A}, s{sJ}, 160
                s_add_u32 s{sO}, s{sO}, s{A}""")
            if i==0: p(f"""s_add_u32 s{A}, s{sK}, {2*k}
                s_sub_u32 s{B}, s{A}, 10
                s_cselect_b32 s{A}, s{A}, s{B}
                s_mul_i32 s{sL}, s{A}, 5120
                s_add_u32 s{sL}, s{sL}, s{sL0}
                s_mov_b32 m0, s{sL}
                s_nop 0""")
            if i==4: p(f"s_add_u32 m0, s{sL}, 4096\ns_nop 0")
            p(f"buffer_load_dwordx4 v{aD+5*k+i}, {S4(sWO)}, s{sO} offen offset:{(i&3)*1024} {CFG['wopol']} lds")
            OPS.append('wo%d'%(n//25))
            st['n']+=1
    vmwait(8); p("s_barrier"); hook(8)
    p(f"v_lshlrev_b32 v{aLin}, 4, v0")
    vmwait(9); p("s_barrier"); hook(9)
    stats_fin(96,B)
    vmwait('h1')
    lp=p.lab("hello"); ok=p.lab("hello_ok"); ne=p.lab("noep")
    p(f"""s_mov_b32 s{A}, {SPIN}
    {lp}:
    v_xor_b32 v{vH}, s{sTAG}, v{vH}
    v_xor_b32 v{vH+1}, s{sTAG}, v{vH+1}
    v_xor_b32 v{vH+2}, s{sTAG}, v{vH+2}
    v_xor_b32 v{vH+3}, s{sTAG}, v{vH+3}
    v_or3_b32 v{vt}, v{vH}, v{vH+1}, v{vH+2}
    v_or_b32 v{vt}, v{vt}, v{vH+3}
    v_cmp_lt_u32 vcc, 15, v{vt}
    s_nop 0
    s_cbranch_vccz {ok}""")
    spin(A,lp,ok,4)
    p(f"""buffer_load_dwordx4 v[{vH}:{vH+3}], v{vH+4}, {S4(sWS)}, 0 offen sc1
    s_waitcnt vmcnt(0)
    s_branch {lp}
    {ok}:
    v_lshl_or_b32 v{vH}, v{vH+1}, 4, v{vH}
    v_lshl_or_b32 v{vH+2}, v{vH+3}, 4, v{vH+2}
    v_lshl_or_b32 v{vH}, v{vH+2}, 8, v{vH}
    v_and_b32 v{vt}, 1, v0
    v_readlane_b32 s{A}, v{vH}, 0
    v_readlane_b32 s{B}, v{vH}, 1
    v_cmp_eq_u32 vcc, 0, v{vt}
    v_mov_b32 v{vt+1}, s{A}
    v_mov_b32 v{vt+2}, s{B}
    v_cndmask_b32 v{vt+1}, v{vt+2}, v{vt+1}, vcc
    v_cmp_ne_u32 vcc, v{vt+1}, v{vH}
    v_mov_b32 v{vt}, {L_MODE}
    s_cmp_lg_u64 vcc, 0
    s_cselect_b32 s{sMODE}, 1, {CFG['force_slow']}
    v_mov_b32 v{vt+1}, s{sMODE}
    ds_write_b32 v{vt}, v{vt+1}
    s_barrier
    s_waitcnt lgkmcnt(0)
    s_barrier""")
    vmw=len(OPS)-1-max(i for i,t in enumerate(OPS) if t=='wr')
    STAMP('hE1')
    p(f"""v_mov_b32 v{vt}, 0x3f803f80
    v_mov_b32 v{vt+1}, 0
    s_waitcnt vmcnt({vmw})""")
    for k in range(5): p(f"v_dot2_f32_bf16 v{vt+1}, v{WRr+k}, v{vt}, v{vt+1}")
    p("s_nop 0")
    wave_sum(vt+1,vt+2)
    p(f"v_mov_b32 v{vt}, {L_SWS}\nds_write_b32 v{vt}, v{vt+1}")
    if CFG['wose']==1: wo_setup()
    if CFG['hst']: halo_copy(vt,A,B,C,wo_setup if CFG['wose']==2 else (lambda:None))
    else:
        halo_flag(vt,A,B,C)
        if CFG['wose']==2: wo_setup()
    p(f"""s_add_u32 s{A}, s2, s{HW}
    s_cmp_lg_u32 s{A}, 2
    s_cbranch_scc1 {ne}
    s_add_u32 s{A}, s{sEP}, 1
    v_mov_b32 v{vt}, {EPO}
    v_mov_b32 v{vt+1}, s{A}
    s_mov_b64 exec, 1
    buffer_store_dword v{vt+1}, v{vt}, {S4(sWS)}, 0 offen sc1
    s_mov_b64 exec, -1
    {ne}:""")
    if CFG['hkv']:
        att_ids()
        p(f"s_mov_b32 s{sK1024}, 1024")
        kv_addr(aLin,13,vt)
        own_setup(14,vt)
        own_kv(aLin,13,14,vt,sHO)
    p(f"v_mov_b32 v{vt}, {F_G1}")
    if CFG['wburst']:
        p(f"""s_lshl_b32 s{B}, s{sSLOT}, 1
        s_add_u32 s{B}, s{B}, s{HW}
        s_sub_u32 s{B}, s{B}, 2
        s_mul_i32 s{B}, s{B}, 12800
        v_lshl_add_u32 v{vTW}, v0, 7, s{B}
        v_min_u32 v{vTW+1}, 35, v0
        v_lshl_add_u32 v{vTW+1}, v{vTW+1}, 7, s{B}
        v_add_u32 v{vTW+1}, 8192, v{vTW+1}""")
        if CFG['wburst']==2: touch(vTW,sWO,0); touch(vTW+1,sWO,0)
    lds_wait(vt,vt+1,A,'gt',4,1)
    if CFG['wburst']==1: touch(vTW,sWO,0); touch(vTW+1,sWO,0)
    wtouch('w3',1)
    if CFG['wog2']:
        p(f"v_mov_b32 v{vt+2}, {F_G2}")
        lds_wait(vt+2,vt+1,A,'gt',2,1)
    STAMP('wo_s')
    del OPS[:]
    thr=CFG['wothr']; gs=CFG['wogs']; thr1=CFG['wothr1']
    def more(n,dyn=False):
        while n>0 and st['n']<50:
            k=min(gs,n)
            if dyn and thr1<thr and st['n']>=thr1:
                sk=p.lab("wog")
                p(f"""ds_read_b32 v{vt+1}, v{vt} offset:{(F_G2 if CFG['wgf']=='G2' else F_M)-F_G1}
                s_waitcnt lgkmcnt(0)
                v_cmp_gt_u32 vcc, {2 if CFG['wgf']=='G2' else 1}, v{vt+1}
                s_nop 0
                s_cbranch_vccz {sk}
                s_waitcnt vmcnt({max(0,thr1-k)})
                {sk}:""")
            if CFG['wpause'] and st['n']==CFG['wpause']:
                p(f"v_mov_b32 v{vt+2}, {F_RI}"); lds_wait(vt+2,vt+1,A,'gt',1,1); STAMP('wo_p')
            if st['n']>=thr: p(f"s_waitcnt vmcnt({max(0,thr-k)})")
            gi=st['n']//gs; a_,b_=CFG['mtr']
            dma(k); n-=k
            if CFG['mtw']=='wo' and a_<=gi<b_:
                l0=60*(gi-a_)//(b_-a_); l1=60*(gi+1-a_)//(b_-a_); msk=((1<<l1)-1)^((1<<l0)-1)
                u=p.lab("tu"); j=p.lab("tj")
                p(f"s_mov_b32 exec_lo, {hex(msk&0xffffffff)}\ns_mov_b32 exec_hi, {hex(msk>>32)}\ns_cmp_eq_u32 s{HW}, 2\ns_cbranch_scc0 {u}")
                touch(vTM,sWG,0); p(f"s_branch {j}\n{u}:"); touch(vTM,sWU,0); p(f"{j}:\ns_mov_b64 exec, -1")
                OPS.append('mt')
    def sig(f):
        p(f"""v_mov_b32 v{vt+2}, {f}
        v_mov_b32 v{vt+3}, 1
        s_mov_b64 exec, 1
        ds_add_u32 v{vt+2}, v{vt+3}
        s_mov_b64 exec, -1""")
    more(25+min(thr,15),True)
    vmwait('wo0')
    sig(F_WOR)
    STAMP('wo_0')
    more(50)
    sig(F_WOD)
    STAMP('wo_1')
    p("s_waitcnt vmcnt(0)")
    sig(F_WO2)
    STAMP('wo')

ACC=64; CS=128; XF=132; WF=148; SEL=164; aX=168; aW=172; aST=174; aSG=178; vT=2
sWR_,sWC,sLC,sTY,sSO,sHALO,sFO,sSO2=range(sT,sT+8)
def gemm_setup():
    t=vT; A=sT+10; B=sT+11
    wave_ids(sWAVE,sWR_,sWC,sLC,sTY)
    p(f"""v_and_b32 v{t}, 31, v0
    s_lshl_b32 s{A}, s{sWR_}, 6
    v_add_u32 v{t+1}, s{A}, v{t}
    v_lshlrev_b32 v{t+1}, 7, v{t+1}
    v_lshrrev_b32 v{t+2}, 5, v0
    v_bfe_u32 v{t+3}, v0, 1, 3
    v_xor_b32 v{t+3}, v{t+3}, v{t+2}
    v_lshl_add_u32 v{aX}, v{t+3}, 4, v{t+1}""")
    for s in range(1,4): p(f"v_xor_b32 v{aX+s}, {32*s}, v{aX}")
    p(f"""v_bfe_u32 v{t+3}, v0, 2, 2
    v_lshl_add_u32 v{t+4}, v{t+2}, 3, v{t+3}
    v_lshlrev_b32 v{t+4}, 8, v{t+4}
    s_lshl_b32 s{A}, s{sWC}, 1
    s_or_b32 s{A}, s{A}, s{sWR_}
    v_xor_b32 v{t+3}, s{A}, v{t+3}
    v_lshl_add_u32 v{t+4}, v{t+3}, 6, v{t+4}
    v_bfe_u32 v{t+3}, v0, 4, 1
    v_lshl_add_u32 v{t+4}, v{t+3}, 5, v{t+4}
    v_and_b32 v{t+5}, 3, v0
    v_lshl_add_u32 v{t+4}, v{t+5}, 3, v{t+4}
    v_add_u32 v{aW}, 16384, v{t+4}
    v_xor_b32 v{aW+1}, 64, v{aW}
    v_bfe_u32 v{t+4}, v0, 2, 1
    v_cmp_eq_u32 vcc, v{t+3}, v{t+4}
    v_mov_b32 v{t+5}, 0x3f803f80
    s_nop 0
    v_cndmask_b32 v{SEL}, 0, v{t+5}, vcc
    v_cndmask_b32 v{SEL+1}, 0, v{t+5}, vcc
    v_cndmask_b32 v{SEL+2}, 0, v{t+5}, vcc
    v_cndmask_b32 v{SEL+3}, 0, v{t+5}, vcc""")
    for r in list(range(ACC,ACC+64))+list(range(CS,CS+4)): p(f"v_mov_b32 v{r}, 0")
    store_addr(sWR_,sLC,sTY,sSO,sSO2,sHALO,sFO,aST,sT+10,sT+11)
    p(f"s_mov_b32 s{sHAL2}, s{sHALO}")
    if CFG['hst']: p(f"""s_mul_i32 s{A}, s{sWAVE}, 9216
        s_add_u32 s{A}, s{A}, {L_WO}
        v_lshl_add_u32 v{aSG}, v0, 4, s{A}""")
sHAL2=sDBG
def wave_ids(wave,wr,wc,lc,ty):
    p(f"""s_and_b32 s{wr}, s{wave}, 1
    s_lshr_b32 s{wc}, s{wave}, 1
    s_lshl_b32 s{lc}, s{sCT}, 1
    s_add_u32 s{lc}, s{lc}, s{wc}
    s_cmp_eq_u32 s{lc}, 5
    s_cselect_b32 s{lc}, 15, s{lc}
    s_cmp_gt_u32 s{sCT}, 2
    s_subb_u32 s{lc}, s{lc}, 0
    s_mul_i32 s{ty}, s{lc}, 52
    s_lshr_b32 s{ty}, s{ty}, 8""")
def store_addr(wr,lc,ty,so,so2,halo,fo,ast,A,B,t=2):
    p(f"""v_and_b32 v{t}, 31, v0
    v_lshrrev_b32 v{t+2}, 5, v0
    s_mul_i32 s{A}, s{ty}, 5
    s_sub_u32 s{A}, s{lc}, s{A}
    s_mul_i32 s{B}, s{sHH}, 5
    s_add_u32 s{A}, s{A}, s{B}
    s_lshl_b32 s{B}, s{sBK}, 1
    s_add_u32 s{B}, s{B}, s{wr}
    s_lshl_b32 s{B}, s{B}, 1""")
    isv=p.lab("isv"); jn=p.lab("stj")
    p(f"""s_cmp_ge_u32 s{ty}, 2
    s_cbranch_scc1 {isv}
    s_mul_i32 s{so}, s{B}, 2560
    s_mul_i32 s{B}, s{ty}, {KB}
    s_add_u32 s{so}, s{so}, s{B}
    s_add_u32 s{so2}, s{so}, 2560
    s_lshl_b32 s{A}, s{A}, 3""")
    for cb in range(2):
        for ip in range(2):
            p(f"""s_xor_b32 s{B}, s{wr}, {cb}
            s_lshl_b32 s{B}, s{B}, 2
            s_add_u32 s{B}, s{B}, s{A}
            s_add_u32 s{B}, s{B}, {2*ip}
            v_add_u32 v{t+3}, s{B}, v{t+2}
            v_mul_u32_u24 v{t+4}, 205, v{t+3}
            v_lshrrev_b32 v{t+4}, 10, v{t+4}
            v_mul_u32_u24 v{t+5}, 5, v{t+4}
            v_sub_u32 v{t+5}, v{t+3}, v{t+5}
            v_mul_u32_u24 v{t+4}, {64*2560}, v{t+4}
            v_lshl_add_u32 v{t+4}, v{t+5}, 9, v{t+4}
            v_lshl_add_u32 v{ast+2*cb+ip}, v{t}, 4, v{t+4}""")
    p(f"""s_branch {jn}
    {isv}:
    s_mul_i32 s{so}, s{B}, 1280
    s_add_u32 s{so}, s{so}, {VB}
    s_add_u32 s{so2}, s{so}, 1280
    s_lshl_b32 s{A}, s{A}, 6""")
    for cb in range(2):
        p(f"""s_xor_b32 s{B}, s{wr}, {cb}
        s_lshl_b32 s{B}, s{B}, 5
        s_add_u32 s{B}, s{B}, s{A}
        v_add_u32 v{t+3}, s{B}, v{t}
        v_mul_u32_u24 v{t+4}, 3277, v{t+3}
        v_lshrrev_b32 v{t+4}, 16, v{t+4}
        v_mul_u32_u24 v{t+5}, 20, v{t+4}
        v_sub_u32 v{t+5}, v{t+3}, v{t+5}
        v_mul_u32_u24 v{t+4}, 81920, v{t+4}
        v_lshl_add_u32 v{t+4}, v{t+5}, 4, v{t+4}
        v_mul_u32_u24 v{t+5}, 320, v{t+2}
        v_add_u32 v{ast+2*cb}, v{t+4}, v{t+5}
        v_add_u32 v{ast+2*cb+1}, 640, v{ast+2*cb}""")
    p(f"{jn}:")
    halo_cond(halo,A)
    if CFG['honly']: p(f"s_mul_i32 s{A}, s{halo}, {KH-KB}\ns_add_u32 s{so}, s{so}, s{A}\ns_add_u32 s{so2}, s{so2}, s{A}")
    p(f"""s_lshl_b32 s{fo}, s{sG}, 4
    s_add_u32 s{fo}, s{fo}, s{lc}
    s_lshl_b32 s{fo}, s{fo}, 5
    s_lshl_b32 s{A}, s{sRB}, 1
    s_add_u32 s{A}, s{A}, s{wr}
    s_add_u32 s{fo}, s{fo}, s{A}
    s_lshl_b32 s{fo}, s{fo}, 2
    s_add_u32 s{fo}, s{fo}, {FL}""")
def xf(buf,xb): return XF+8*buf+4*xb
def wf(buf,cb): return WF+8*buf+4*cb
def reads(kind,buf,par,s):
    L=[]
    for xb in range(2): L.append(f"ds_read_b128 {vr(xf(buf,xb),4)}, v{aX+s} offset:{par*32768+xb*4096}")
    if kind!='S':
        for cb in range(2):
            for rd in range(2): L.append(f"ds_read_b64_tr_b16 {vr(wf(buf,cb)+2*rd,2)}, v{aW+cb} offset:{par*32768+s*4096+rd*1024}")
        L=[L[2],L[3],L[0],L[1],L[4],L[5]]
    return L
def mfmas(kind,buf):
    L=[]
    if kind=='S':
        for xb in range(2):
            x=xf(buf,xb)
            L.append(f"v_mfma_f32_16x16x32_bf16 {vr(ACC+4*xb,4)}, {vr(SEL,4)}, {vr(x,4)}, {vr(ACC+4*xb,4)}")
            L.append(f"v_mfma_f32_4x4x4_16b_bf16 {vr(ACC+8+8*xb,4)}, {vr(x,2)}, {vr(x,2)}, {vr(ACC+8+8*xb,4)}")
            L.append(f"v_mfma_f32_4x4x4_16b_bf16 {vr(ACC+12+8*xb,4)}, {vr(x+2,2)}, {vr(x+2,2)}, {vr(ACC+12+8*xb,4)}")
        return L
    for cb in range(2):
        for xb in range(2):
            a=ACC+16*(2*xb+cb); X=vr(xf(buf,xb),4); W=vr(wf(buf,cb),4)
            L.append(f"v_mfma_f32_32x32x16_bf16 {vr(a,16)}, {W if kind=='T' else X}, {X if kind=='T' else W}, {vr(a,16)}")
    L.insert(2,f"v_mfma_f32_16x16x32_bf16 {vr(CS,4)}, {vr(SEL,4)}, {vr(wf(buf,0),4)}, {vr(CS,4)}")
    return L
def gemm_loop(kind):
    CNT=sT+10
    lp=p.lab("g"+kind)
    STAMP('rdy')
    p("s_barrier")
    STAMP('b0')
    for r in reads(kind,0,0,0): p(r)
    if CFG['clr']==1 and not CFG['hclr']: clears(1)
    cl_=p.lab("clr"); cr_=p.lab("clrr")
    if CFG['clr']>1:
        n0=len(p.L); p(f"{cl_}:"); clears(1); p(f"s_branch {cr_}")
        COLD.append("\n".join(p.L[n0:])); del p.L[n0:]
    hl=p.lab("hello"); hr=p.lab("hellor")
    if not CFG['hclr']:
        COLD.append(f"""{hl}:
        s_getreg_b32 s{CNT+1}, hwreg(HW_REG_XCC_ID, 0, 4)
        s_or_b32 s{CNT+1}, s{CNT+1}, s{sTAG}
        v_mov_b32 v{vT}, s{CNT+1}
        s_lshl_b32 s{CNT+1}, s2, 2
        s_add_u32 s{CNT+1}, s{CNT+1}, {H1}
        v_mov_b32 v{vT+1}, 0
        s_mov_b64 exec, 1
        buffer_store_dword v{vT}, v{vT+1}, {S4(sWS)}, s{CNT+1} offen sc1
        s_mov_b64 exec, -1
        s_branch {hr}""")
        p(f"s_lshl_b32 s{CNT+2}, s{sWAVE}, 3\ns_add_u32 s{CNT+2}, s{CNT+2}, {5-CFG['clr']}")
    p(f"s_mov_b32 s{CNT}, 5\n{lp}:")
    if CFG['clr']>1: p(f"s_cmp_eq_u32 s{CNT}, {6-CFG['clr']}\ns_cbranch_scc1 {cl_}\n{cr_}:")
    for k in range(1,5):
        if (CFG['cal'] and CFG['cal'][0]=='it%d'%(2*k)) or (CFG['amp'] and 'it%d'%(2*k) in CFG['amp'][:2]) or (CFG['prof'] and any('it%d'%(2*k) in n.split('|') for n in CFG['st'])):
            sk=p.lab("its"); p(f"s_cmp_lg_u32 s{CNT}, {5-k}\ns_cbranch_scc1 {sk}"); STAMP('it%d'%(2*k)); p(f"{sk}:")
    for par in range(2):
        for s in range(4):
            buf=s&1
            last=(s==3)
            M=mfmas(kind,buf)
            if CFG['nomfma']: M=M[:1]
            if last and par==1:
                pre=[f"v_xor_b32 v{aX+i}, 0x10000, v{aX+i}" for i in range(4)]+[f"v_xor_b32 v{aW+i}, 0x10000, v{aW+i}" for i in range(2)]
            else: pre=[]
            R=reads(kind,buf^1,(par^1) if last else par,(s+1)&3)
            p("s_waitcnt lgkmcnt(0)")
            if last:
                p(M.pop(0))
                for x in pre: p(x)
                if par==0 and not CFG['hclr']:
                    w1=p.lab("cw"); w2=p.lab("cwr")
                    p(f"s_cmp_eq_u32 s{CNT}, {5-CFG['clr']}\ns_cbranch_scc1 {w1}\n{w2}:")
                    COLD.append(f"{w1}:\ns_waitcnt vmcnt(0)\ns_branch {w2}")
                p("s_barrier")
                if par==0 and not CFG['hclr']: p(f"s_cmp_eq_u32 s{CNT}, s{CNT+2}\ns_cbranch_scc1 {hl}\n{hr}:")
            k=0
            while M or R:
                if R: p(R.pop(0))
                if R: p(R.pop(0))
                if M: p(M.pop(0))
    p(f"""s_sub_u32 s{CNT}, s{CNT}, 1
    s_cmp_lg_u32 s{CNT}, 0
    s_cbranch_scc1 {lp}""")
    STAMP('gend')
def bf16r(dst,src):
    p(f"v_cvt_pk_bf16_f32 v{dst}, v{src}, v{src}\nv_and_b32 v{dst}, 0xffff0000, v{dst}")
def mode_read():
    p(f"""v_mov_b32 v{vT+8}, {L_MODE}
    ds_read_b32 v{vT+9}, v{vT+8}""")
def mode_get():
    p(f"v_readfirstlane_b32 s{sMODE}, v{vT+9}")
def dual(stores,pol='',sMODE=sMODE):
    sl=p.lab("slow"); jn=p.lab("jn")
    p(f"s_cmp_lg_u32 s{sMODE}, 0\ns_cbranch_scc1 {sl}")
    for s in stores: p(s+" "+pol)
    p(f"s_branch {jn}\n{sl}:")
    for s in stores: p(s+" sc1")
    p(f"{jn}:")
def idle_gemm():
    vt=10; aI=20; acc=28; one=32; D=64; A=sT+10
    p(f"""s_lshl_b32 s{A}, s{sWR_}, 13
    v_bfe_u32 v{vt}, v0, 1, 3
    v_lshlrev_b32 v{vt}, 4, v{vt}
    v_lshl_add_u32 v{vt}, v0, 7, v{vt}
    v_add_u32 v{aI}, s{A}, v{vt}
    v_mov_b32 v{one}, 0x3f803f80
    s_lshl_b32 s{A}, s{sG}, 2
    s_add_u32 s{A}, s{A}, s{sRB}
    s_lshl_b32 s{A}, s{A}, 14
    s_lshl_b32 s{A+1}, s{sWR_}, 10
    s_add_u32 s{A}, s{A}, s{A+1}
    s_add_u32 s{A}, s{A}, {STP+2*2048}
    v_lshlrev_b32 v{vt}, 4, v0""")
    for i in range(1,8): p(f"v_xor_b32 v{aI+i}, {16*i}, v{aI}")
    for i in range(4): p(f"v_mov_b32 v{acc+i}, 0")
    k=CFG['clr']
    for c in range(11):
        if c==1+2*k and not CFG['hclr']: p(f"s_waitcnt vmcnt({1 if k==1 else 0})")
        p("s_barrier")
        if k and c==2*k-2 and c!=2: clears(1)
        if c<3:
            if c==2:
                for i in range(8): p(f"v_add_u32 v{aI+i}, 0x10000, v{aI+i}")
            for i in range(8): p(f"ds_read_b128 {vr(D+4*i,4)}, v{aI+i} offset:{(c&1)*32768}")
            for i in range(8):
                p(f"s_waitcnt lgkmcnt({7-i})")
                for j in range(4):
                    r=D+4*i+j
                    p(f"v_dot2_f32_bf16 v{acc+(j&1)}, v{r}, v{one}, v{acc+(j&1)}\nv_dot2_f32_bf16 v{acc+2+(j&1)}, v{r}, v{r}, v{acc+2+(j&1)}")
        if c==2: p(f"""s_nop 1
            v_add_f32 v{acc}, v{acc}, v{acc+1}
            v_add_f32 v{acc+1}, v{acc+2}, v{acc+3}
            v_mov_b32 v{acc+2}, s{sTAG}
            buffer_store_dwordx4 {vr(acc,4)}, v{vt}, {S4(sWS)}, s{A} offen sc1""")
        if k==2 and c==2: clears(1)
    p("s_barrier")
    mode_read()
    p("s_waitcnt lgkmcnt(0)")
    mode_get()
HST=[]
def gemm_epi(kind):
    t=vT; A=sT+10
    AU=20
    WA=24
    XA=28
    RS=32
    p(f"""v_and_b32 v{t}, 31, v0
    s_lshl_b32 s{A}, s{sWC}, 1
    s_or_b32 s{A}, s{A}, s{sWR_}
    s_lshl_b32 s{A}, s{A}, 7
    s_add_u32 s{A}, s{A}, {L_CS}
    v_lshl_add_u32 v{t+1}, v{t}, 2, s{A}
    s_lshl_b32 s{A}, s{sWR_}, 9
    s_add_u32 s{A}, s{A}, {L_SA}
    v_lshl_add_u32 v{t+3}, v{t}, 3, s{A}
    ds_write_b32 v{t+1}, v{CS}
    v_xor_b32 v{t+2}, 128, v{t+1}
    v_mov_b32 v{WA+1}, 0
    v_mov_b32 v{WA+3}, 0
    v_mov_b32 v{XA+1}, 0
    v_mov_b32 v{XA+3}, 0""")
    if kind=='V':
        p(f"""v_lshrrev_b32 v{t+4}, 5, v0
        s_lshl_b32 s{A}, s{sWR_}, 8
        s_add_u32 s{A}, s{A}, {L_SR}
        v_lshl_add_u32 v{t+4}, v{t+4}, 4, s{A}""")
    p("s_waitcnt lgkmcnt(0)\ns_barrier")
    STAMP('E1',1)
    p(f"""ds_read_b32 v{CS+1}, v{t+2}
    ds_read_b64 v[{AU}:{AU+1}], v{t+3}
    ds_read_b64 v[{AU+2}:{AU+3}], v{t+3} offset:256""")
    mode_read()
    if kind=='V':
        for xb in range(2):
            for i in range(4): p(f"ds_read_b128 {vr(RS+16*xb+4*i,4)}, v{t+4} offset:{xb*128+i*32}")
    def split(cb):
        c=CS+cb
        p(f"""v_cndmask_b32 v{c}, 0, v{c}, s[{sLO}:{sLO+1}]
        v_cvt_pk_bf16_f32 v{t+5}, v{c}, v{c}
        v_and_b32 v{t+5}, 0xffff0000, v{t+5}
        v_sub_f32 v{t+6}, v{c}, v{t+5}
        v_cvt_pk_bf16_f32 v{WA+2*cb}, v{t+5}, v{t+6}""")
    split(0)
    p(f"s_waitcnt lgkmcnt({8 if kind=='V' else 0})")
    split(1)
    p(f"v_mov_b32 v{XA}, v{AU}\nv_mov_b32 v{XA+2}, v{AU+2}")
    mode_get()
    if kind=='T':
        p(f"""s_cmp_eq_u32 s{sTY}, 0
        s_cselect_b32 s{A}, {hex(f2u(20**-0.5*math.log2(math.e)))}, 1.0
        v_mul_f32 v{AU+1}, s{A}, v{AU+1}
        v_mul_f32 v{AU+3}, s{A}, v{AU+3}""")
    else: p("s_nop 0")
    for xb in range(2):
        for cb in range(2):
            a=ACC+16*(2*xb+cb); X=vr(XA+2*xb,2); W=vr(WA+2*cb,2)
            p(f"v_mfma_f32_32x32x8_bf16 {vr(a,16)}, {W if kind=='T' else X}, {X if kind=='T' else W}, {vr(a,16)}")
    p("s_waitcnt lgkmcnt(0)\ns_nop 7")
    if CFG['honly']: p(f"s_or_b32 s{sHALO}, s{sHALO}, s{sMODE}")
    allst=[]
    for xb in range(2):
        st=[]
        for cb in range(2):
            a=ACC+16*(2*xb+cb)
            for k in range(8):
                if kind=='T': p(f"v_pk_mul_f32 {vr(a+2*k,2)}, {vr(a+2*k,2)}, {vr(AU+2*xb,2)} op_sel:[0,1] op_sel_hi:[1,1]")
                else: p(f"v_pk_mul_f32 {vr(a+2*k,2)}, {vr(a+2*k,2)}, {vr(RS+16*xb+2*k,2)}")
            for k in range(8): p(f"v_cvt_pk_bf16_f32 v{a+k}, v{a+2*k}, v{a+2*k+1}")
            if kind=='T':
                p(f"""v_permlane32_swap_b32 v{a}, v{a+2}
                v_permlane32_swap_b32 v{a+1}, v{a+3}
                v_permlane32_swap_b32 v{a+4}, v{a+6}
                v_permlane32_swap_b32 v{a+5}, v{a+7}""")
            for h in range(2):
                st.append(f"buffer_store_dwordx4 {vr(a+4*h,4)}, v{aST+2*cb+h}, {S4(sWS)}, s{sSO2 if xb else sSO} offen")
                allst.append(a+4*h)
        dual(st,CFG['qpol'],sHALO if CFG['honly'] else sMODE)
    STAMP('st')
    if CFG['honly']:
        p(f"""v_mov_b32 v{t}, 0
        v_mov_b32 v{t+1}, s{sTAG}
        s_lshl_b32 s{A}, s{sWC}, 2
        s_add_u32 s{A}, s{A}, {F_STG}
        v_mov_b32 v{t+2}, s{A}
        v_mov_b32 v{t+3}, 1
        s_mov_b64 exec, 1
        s_waitcnt vmcnt(0)
        ds_add_u32 v{t+2}, v{t+3}""")
        dual([f"buffer_store_dword v{t+1}, v{t}, {S4(sWS)}, s{sFO} offen"])
        p("s_mov_b64 exec, -1")
        STAMP('fl')
        return
    nh=p.lab("nohalo"); jh=p.lab("jhalo")
    if CFG['hdef']>=0: A=sT+18
    hst=[f"buffer_store_dwordx4 {vr(allst[i],4)}, v{aST+(i&3)}, {S4(sWS)}, s{A+(i>>2)} offen sc1" for i in range(8)]
    p(f"""v_mov_b32 v{t}, 0
    v_mov_b32 v{t+1}, s{sTAG}
    s_add_u32 s{A}, s{sSO}, {KH-KB}
    s_add_u32 s{A+1}, s{sSO2}, {KH-KB}""")
    if CFG['hst']:
        p(f"s_cmp_eq_u32 s{sHALO}, 0\ns_cbranch_scc1 {nh}")
        for i in range(8): p(f"ds_write_b128 v{aSG}, {vr(allst[i],4)} offset:{i*1024}")
        for k in range(4): p(f"v_add_u32 v{t+4+k}, s{A}, v{aST+k}")
        p(f"""s_lshl_b32 s{A}, s{sWC}, 2
        s_add_u32 s{A}, s{A}, {F_STG}
        ds_write_b128 v{aSG}, {vr(t+4,4)} offset:8192
        v_mov_b32 v{t+2}, s{A}
        v_mov_b32 v{t+3}, 1
        s_mov_b64 exec, 1
        ds_add_u32 v{t+2}, v{t+3}
        s_waitcnt vmcnt(0)""")
        dual([f"buffer_store_dword v{t+1}, v{t}, {S4(sWS)}, s{sFO} offen"])
        p(f"""ds_add_u32 v{t+2}, v{t+3} offset:8
        s_branch {jh}
        {nh}:
        s_waitcnt vmcnt(0)
        s_mov_b64 exec, 1""")
        dual([f"buffer_store_dword v{t+1}, v{t}, {S4(sWS)}, s{sFO} offen"])
        p(f"{jh}:\ns_mov_b64 exec, -1")
        STAMP('fl')
        return
    if CFG['hdef']>=0:
        HST[:]=hst
        p("s_waitcnt vmcnt(0)")
    elif CFG['hearly']:
        p(f"s_cmp_eq_u32 s{sHALO}, 0\ns_cbranch_scc1 {nh}")
        for x in hst: p(x)
        p(f"s_waitcnt vmcnt(8)\ns_branch {jh}\n{nh}:\ns_waitcnt vmcnt(0)\n{jh}:")
    else: p("s_waitcnt vmcnt(0)")
    p("s_mov_b64 exec, 1")
    dual([f"buffer_store_dword v{t+1}, v{t}, {S4(sWS)}, s{sFO} offen"])
    p(f"s_mov_b64 exec, -1")
    if not CFG['hearly'] and CFG['hdef']<0:
        p(f"s_cmp_eq_u32 s{sHALO}, 0\ns_cbranch_scc1 {nh}")
        for x in hst: p(x)
        p(f"{nh}:")
    STAMP('fl')
import struct
def f2u(x): return struct.unpack("<I",struct.pack("<f",x))[0]

aLin,aTl,aKm,aKt,aV,aFl,aO,aQ0,aQ1=246,247,248,249,250,251,252,253,254
aKm1,aKt1,aV1=216,217,218
QM=[28,34]; QT=[32,38]; PP=40
KM=[48,62]; KT=[52,66]; VV=[[54,58],[68,72]]
SS=[80,96]; OO=[112,128]; CD=200; CF=230
cVM=8; sQ=[10,11]; sOm=[12,13]; sOt=[14,15]; cXO,cJ,cF,cK,cV,cL,cHO,cT0,cHX=range(16,25); sOSC=sT+15; sFB=sT+16; aWR=225
NINF="0xff800000"
def att_setup():
    t=vT; A=sT+7; B=sT+8; C=sT+17; sF=cF
    wo_pre1()
    att_ids()
    moe_role()
    p(f"v_mov_b32 v{aCLS}, 0x207")
    if CFG['hkv']: p(f"v_lshlrev_b32 v{aLin}, 4, v0\nv_mov_b32 v{aFl}, {F_G1}")
    else:
        flag_addr(aFl,t,1,A,B,C)
        p(f"""s_lshl_b32 s{sF}, s{sG}, 11
        s_lshl_b32 s{A}, s{sHF}, 4
        v_mov_b32 v{t}, s{A}
        v_cmp_gt_u32 vcc, 8, v0
        s_add_u32 s{sF}, s{sF}, {FL}
        s_mov_b32 s{sK1024}, 1024
        v_cndmask_b32 v{t}, 8, v{t}, vcc
        v_add_u32 v{aFl}, v{aFl}, v{t}""")
        kv_addr(aLin,aTl,t)
    p(f"""s_lshl_b32 s{A}, s{sHF}, 10
    s_add_u32 s{B}, s{A}, {L_KV}
    v_add_u32 v{aKm}, s{B}, v{aLin}
    s_sub_u32 s{B}, {L_KV+1024}, s{A}
    v_add_u32 v{aKm1}, s{B}, v{aLin}
    v_and_b32 v{t}, 31, v0
    v_lshrrev_b32 v{t+1}, 5, v0
    v_xor_b32 v{t+2}, s{sHO}, v{t+1}
    v_lshlrev_b32 v{t+2}, 3, v{t+2}
    v_lshl_add_u32 v{t+2}, v{t}, 4, v{t+2}
    s_lshl_b32 s{A}, s{sHF}, 9
    s_add_u32 s{B}, s{A}, {L_KV+2048}
    v_add_u32 v{aKt}, s{B}, v{t+2}
    s_sub_u32 s{B}, {L_KV+2048+512}, s{A}
    v_add_u32 v{aKt1}, s{B}, v{t+2}
    v_mul_u32_u24 v{t+2}, 320, v{t+1}
    v_lshl_add_u32 v{t+2}, v{t}, 4, v{t+2}
    s_mul_i32 s{A}, s{sHF}, 1280
    s_add_u32 s{B}, s{A}, {L_KV+3072}
    v_add_u32 v{aV}, s{B}, v{t+2}
    s_sub_u32 s{B}, {L_KV+3072+1280}, s{A}
    v_add_u32 v{aV1}, s{B}, v{t+2}
    v_lshlrev_b32 v{t+2}, 2, v{t+1}
    v_sub_u32 v{t+2}, v{t}, v{t+2}
    s_cmp_eq_u32 s{sHF}, 0
    s_cselect_b32 s{A}, {NINF}, 0
    s_cselect_b32 s{B}, 0, {NINF}
    v_mov_b32 v{t+3}, s{A}
    v_mov_b32 v{t+4}, s{B}""")
    for i in range(16):
        m=C+1+2*(i%2)+((C+1)%2)
        ri=8*(i>>2)+(i&3)
        p(f"v_cmp_le_i32 s[{m}:{m+1}], {ri}, v{t+2}")
        if i>0:
            m2=C+1+2*((i-1)%2)+((C+1)%2)
            if i==1: p("s_nop 0")
            p(f"v_cndmask_b32 v{CD+i-1}, v{t+3}, v{t+4}, s[{m2}:{m2+1}]\nv_cndmask_b32 v{CF+i-1}, v{t+4}, v{t+3}, s[{m2}:{m2+1}]")
    p(f"""s_nop 0
    v_cndmask_b32 v{CD+15}, v{t+3}, v{t+4}, s[{m}:{m+1}]
    v_cndmask_b32 v{CF+15}, v{t+4}, v{t+3}, s[{m}:{m+1}]
    v_cmp_eq_u32 s[{m}:{m+1}], 20, v{t}
    v_cmp_eq_u32 vcc, 24, v{t}
    s_mov_b32 s{cHO}, s{sHO}
    s_or_b64 s[{cVM}:{cVM+1}], vcc, s[{m}:{m+1}]""")
    p(f"""v_bfe_u32 v{t+2}, v0, 4, 1
    v_mul_u32_u24 v{t+2}, 20480, v{t+2}
    v_lshl_add_u32 v{t+2}, v{t+1}, 8, v{t+2}
    v_and_b32 v{t+3}, 15, v0
    v_lshl_add_u32 v{aO}, v{t+3}, 4, v{t+2}
    s_xor_b32 s{cHX}, s{sHF}, s{sHH}
    s_mov_b32 s{cT0}, s{sT0}
    s_lshl_b32 s{A}, s{sWAVE}, 1
    s_sub_u32 s{A}, 7, s{A}
    v_mul_u32_u24 v{t+2}, s{A}, v0
    s_add_u32 s{A}, s{sT0}, s{sWAVE}
    v_add_lshl_u32 v{aFO}, v{t+2}, s{A}, 12
    s_lshl_b32 s{A}, s{sHD}, 7
    s_add_u32 s{A}, s{A}, {FO}
    v_add_u32 v{aFO}, s{A}, v{aFO}""")
    for q in range(2):
        p(f"""s_sub_u32 s{A}, 7, s{sWAVE}
        s_cmp_eq_u32 s{sHF}, {q}
        s_cselect_b32 s{A}, s{A}, s{sWAVE}
        s_add_u32 s{A}, s{A}, s{sT0}""")
        p(f"""s_mul_i32 s{sQ[q]}, s{A}, 2560
        s_mul_i32 s{B}, s{sPH}, {64*2560}
        s_add_u32 s{sQ[q]}, s{sQ[q]}, s{B}
        s_mul_i32 s{A}, s{A}, 40960
        s_mul_i32 s{B}, s{sPH}, 1280
        s_add_u32 s{A}, s{A}, s{B}
        s_add_u32 s{A}, s{A}, {OB}
        s_mul_i32 s{B}, s{sHO}, 768
        s_add_u32 s{sOm[q]}, s{A}, s{B}
        s_lshl_b32 s{B}, s{sHO}, 3
        s_add_u32 s{sOt[q]}, s{A}, s{B}""")
    sK=cK; sV=cV; sL=cL
    if not CFG['hkv']: p(f"""s_lshl_b32 s{A}, s{sWAVE}, 1
    s_sub_u32 s{B}, -2, s{A}
    s_cmp_eq_u32 s{sHF}, 0
    s_cselect_b32 s{A}, s{A}, s{B}
    s_add_u32 s{A}, s{A}, s{sT0}
    s_mul_i32 s{sK}, s{A}, 2560
    s_mul_i32 s{sV}, s{A}, 1280
    s_mul_i32 s{A}, s{sPH}, {64*2560}
    s_add_u32 s{sK}, s{sK}, s{A}
    s_add_u32 s{sK}, s{sK}, {KB}
    s_mul_i32 s{A}, s{sHD}, 81920
    s_add_u32 s{sV}, s{sV}, s{A}
    s_add_u32 s{sV}, s{sV}, {VB}
    s_mul_i32 s{sL}, s{sWAVE}, 5632
    s_add_u32 s{sL}, s{sL}, {L_KV+4*5632}""")
    p(f"""s_mul_i32 s{A}, s{sHO}, 1536
    v_add_u32 v{aQ0}, s{A}, v{aLin}
    s_lshl_b32 s{A}, s{sHO}, 3
    v_add_u32 v{aQ1}, s{A}, v{aLin}""")
aXD=219; aXL=223
def xr_loads():
    if CFG['xdma']:
        A=sT+7; B=sT+8
        p(f"""s_mul_i32 s{A}, s{sWAVE}, 2560
        s_add_u32 m0, s{A}, {L_STG}
        s_add_u32 s{A}, s{cXO}, 6720
        s_add_u32 s{B}, s{cXO}, 13440
        s_mov_b32 exec_hi, 0x0fffffff
        buffer_load_dwordx4 v{aXD}, {S4(sX)}, s{cXO} offen lds
        buffer_load_dwordx4 v{aXD}, {S4(sX)}, s{A} offen offset:960 lds
        s_mov_b32 exec_hi, 0xff
        buffer_load_dwordx4 v{aXD}, {S4(sX)}, s{B} offen offset:1920 lds
        s_mov_b32 m0, {L_SA}
        s_mov_b64 exec, 0x3ff
        buffer_load_dwordx4 v{aLin}, {S4(sWR)}, s{cJ} offen lds
        s_mov_b64 exec, -1""")
        return
    for o,n in ((0,4),(4,4),(8,2)): p(f"buffer_load_dwordx{n} {vr(XR+o,n)}, v{aX2}, {S4(sX)}, s{cXO} offen offset:{4*o}")
    for o,n in ((0,4),(4,4),(8,2)): p(f"buffer_load_dwordx{n} {vr(WR_+o,n)}, v{aWR}, {S4(sWR)}, s{cJ} offen offset:{4*o}")
def att_go():
    t=vT; A=sT+7; B=sT+8; C=sT+17
    nh=p.lab("nohs"); lp=p.lab("fp"); ok=p.lab("fpok"); md=p.lab("fpm")
    ld=f"buffer_load_dword v{t+10}, v{aFl}, {S4(sWS)}, s{cF} offen sc1"
    OWN=CFG['hsp']&2; sOWN=sT+19
    if OWN:
        assert not (CFG['hkv'] or CFG['hst'] or CFG['honly'] or CFG['hdef']>=0) and CFG['xru']>=0
        p(f"s_andn2_b32 s{sOWN}, s{sHAL2}, s{sMODE}\ns_cbranch_scc1 L_nold\n{ld}\nL_nold:")
    elif not CFG['hkv']: p(ld)
    p(f"""v_mov_b32 v{t+4}, 0x3f803f80
    s_or_b32 s{sOSC}, s{cHX}, s{sMODE}
    s_mov_b32 s{sFB}, 0
    s_mul_i32 s{A}, s{sMODE}, {OB2-OB}
    v_add_u32 v{aO}, s{A}, v{aO}""")
    HD=CFG['hdef']>=0
    def vvi(b_):
        for mm in range(2):
            for r in range(4): p(f"v_cndmask_b32 v{VV[b_][mm]+r}, 0, v{t+4}, s[{cVM}:{cVM+1}]")
    vvi(0)
    if not HD: vvi(1)
    for q in range(2): p(f"v_mov_b32 v{QT[q]}, 0\nv_mov_b32 v{QT[q]+1}, 0")
    if CFG['osent']: wo_scal()
    assert CFG['hsent'] or not CFG['hkv']
    if CFG['hkv']:
        p(f"v_mov_b32 v{t+4}, {F_FS}"); lds_wait(t+4,t+5,C,'gt',1,0)
    else:
        if CFG['hst'] or HD or CFG['honly']: p(f"s_mov_b32 s{C}, {SPIN}\ns_waitcnt vmcnt(0)")
        else: p(f"""s_lshr_b32 s{A}, s{sWAVE}, 1
        s_lshl_b32 s{A}, s{A}, 2
        s_add_u32 s{A}, s{A}, {F_STG}
        v_mov_b32 v{t+4}, s{A}
        v_mov_b32 v{t+5}, 1
        {f"s_cmp_lg_u32 s{sOWN}, 0" if OWN else ""}
        {f"s_cbranch_scc1 L_own" if OWN else ""}
        s_mov_b32 s{C}, {SPIN}
        s_cmp_eq_u32 s{sHAL2}, 0
        s_waitcnt vmcnt(0)
        s_cbranch_scc1 {nh}
        s_mov_b64 exec, 1
        ds_add_u32 v{t+4}, v{t+5}
        s_mov_b64 exec, -1
        {nh}:""")
        STAMP('hack')
        p(f"""s_branch {md}
        {lp}:
        {ld}
        s_waitcnt vmcnt(0)
        {md}:
        v_cmp_ne_u32 vcc, s{sTAG}, v{t+10}
        s_nop 0
        s_cbranch_vccz {ok}""")
        spin(C,lp,ok)
        p(f"s_branch {lp}")
        if OWN:
            p(f"L_own:\nv_mov_b32 v{t+6}, {F_OWN}\ns_mov_b64 exec, 1\nds_add_u32 v{t+6}, v{t+5} offset:{F_FS-F_OWN+65536}\ns_mov_b64 exec, -1".replace(f"offset:{F_FS-F_OWN+65536}","") if 0 else f"L_own:\nv_mov_b32 v{t+6}, {F_FS}\ns_mov_b64 exec, 1\nds_add_u32 v{t+6}, v{t+5}\ns_mov_b64 exec, -1\nv_mov_b32 v{t+6}, {F_OWN}"); lds_wait(t+6,t+7,C,'gt',1,0)
        p(f"{ok}:")
    STAMP('fseen')
    if not CFG['hkv']: kv_dma(aLin,aTl,cK,cV,cL,A,B,cHO)
    for q in range(2): p(f"buffer_load_dwordx4 {vr(QM[q],4)}, v{aQ0}, {S4(sWS)}, s{sQ[q]} offen {CFG['ldp']}")
    p(f"s_mov_b64 exec, s[{sLO}:{sLO+1}]")
    for q in range(2): p(f"buffer_load_dwordx2 {vr(QT[q],2)}, v{aQ1}, {S4(sWS)}, s{sQ[q]} offen offset:1024 {CFG['ldp']}")
    if HD:
        assert CFG['xru']>CFG['hdef']
        n2=p.lab("nohd"); j2=p.lab("jhd")
        p(f"""s_mov_b64 exec, 1
        v_mov_b32 v{t}, {F_G1}
        v_mov_b32 v{t+1}, 1
        ds_add_u32 v{t}, v{t+1} offset:{F_FS-F_G1}
        s_mov_b64 exec, -1
        v_mov_b32 v{aFl}, {F_G1}
        s_cmp_eq_u32 s{sHAL2}, 0
        s_cbranch_scc1 {n2}""")
        g1=lambda n: p(f"s_mov_b64 exec, 1\ns_waitcnt vmcnt({n})\nds_add_u32 v{t}, v{t+1}\ns_mov_b64 exec, -1")
        if CFG['hdg']=='G1':
            g1(4); lds_wait(aFl,t+5,C,'gt',4,0)
            for x in HST: p(x)
            p("s_nop 1"); vvi(1)
        else:
            if CFG['hdg']=='FS': p(f"v_mov_b32 v{t+6}, {F_FS}"); lds_wait(t+6,t+5,C,'gt',4,0)
            for x in HST: p(x)
            p("s_nop 1"); vvi(1)
            g1(12); lds_wait(aFl,t+5,C,'gt',4,0)
        p(f"s_waitcnt vmcnt(8)\ns_branch {j2}\n{n2}:")
        vvi(1); g1(4); lds_wait(aFl,t+5,C,'gt',4,0)
        p(f"""s_waitcnt vmcnt(0)
        {j2}:
        s_lshr_b32 s{A}, s{sWAVE}, 1
        s_lshl_b32 s{A}, s{A}, 2
        s_add_u32 s{A}, s{A}, {F_STG}
        v_mov_b32 v{t+4}, s{A}""")
    elif CFG['hkv']: p("s_mov_b64 exec, -1")
    if CFG['lay'] and CFG['padk']==1:
        for w in range(3): p(f"s_cmp_eq_u32 s{sWAVE}, {w}\ns_cbranch_scc1 L_pv{w}")
        p("s_branch L_pv3\nL_kvb:")
    if not HD and not CFG['hkv']: p(f"""s_mov_b64 exec, 1
    v_mov_b32 v{t}, {F_G1}
    v_mov_b32 v{t+1}, 1
    {f"ds_add_u32 v{t}, v{t+1} offset:{F_FS-F_G1}" if 'FS' in CFG['gm']+CFG['gr'] else ""}
    {f"s_cmp_eq_u32 s{sOWN}, 0" if OWN else ""}
    {f"s_cbranch_scc1 L_nohk" if OWN else ""}
    {f"s_waitcnt vmcnt(10)" if OWN else ""}
    {f"ds_add_u32 v{t+4}, v{t+1}" if OWN else ""}
    {f"L_nohk:" if OWN else ""}
    s_waitcnt vmcnt(4)
    ds_add_u32 v{t}, v{t+1}
    s_mov_b64 exec, -1
    v_mov_b32 v{aFl}, {F_G1}""")
    if CFG['hkv']: lds_wait(aFl,t+5,C,'gt',4,0)
    if CFG['xru']<0: xr_loads()
    if not HD:
        if not CFG['hkv']: lds_wait(aFl,t+5,C,'gt',4,0)
        p(f"s_waitcnt vmcnt({6 if CFG['xru']<0 else 0})")
    STAMP('kv')
    p(f"""s_cmp_eq_u32 s{sWAVE}, 1
    s_cbranch_scc1 L_av1
    s_cmp_eq_u32 s{sWAVE}, 2
    s_cbranch_scc1 L_av2
    s_cmp_eq_u32 s{sWAVE}, 3
    s_cbranch_scc1 L_av3""")
    if CFG['lay']: p("s_branch L_av0")
PG=".p2alignl 12, 0xbf810000"
KVB=lambda b: 'L_kvb' if CFG['padk']==1 else f'L_pkb{b}'
def kreads(n,b_):
    o=(n>>1)*5632
    return [f"ds_read_b128 {vr(KM[b_],4)}, v{(aKm,aKm1)[n&1]} offset:{o}", f"ds_read_b64 {vr(KT[b_],2)}, v{(aKt,aKt1)[n&1]} offset:{o}"]
def vreads(n,b_):
    o=(n>>1)*5632; a=(aV,aV1)[n&1]
    return [f"s_mov_b64 exec, s[{sLO+2}:{sLO+3}]", f"ds_read_b128 {vr(VV[b_][0],4)}, v{a} offset:{o}", f"ds_read_b128 {vr(VV[b_][1],4)}, v{a} offset:{o+640}", "s_mov_b64 exec, -1"]
def att_variant(w):
    U=[]
    for n in range(15-w,8+w,-1): U.append((0,n))
    for n in range(8+w,6-w,-1): U+= [(0,n),(1,n)]
    for n in range(6-w,w-1,-1): U.append((1,n))
    assert len(U)==18
    diag=[15-w,8+w]
    tiles=[]; tau=[]
    for q,n in U:
        if not tiles or tiles[-1]!=n: tiles.append(n)
        tau.append(len(tiles)-1)
    first=[tau.index(i) for i in range(len(tiles))]
    started=[0,0]
    def QK(u):
        q,n=U[u]; b_=tau[u]&1; S=vr(SS[u&1],16)
        c=vr(CD,16) if n==diag[q] else (vr(CF,16) if n==diag[q]-8 else "0")
        return [f"v_mfma_f32_32x32x16_bf16 {S}, {vr(KM[b_],4)}, {vr(QM[q],4)}, {c}", f"v_mfma_f32_32x32x8_bf16 {S}, {vr(KT[b_],2)}, {vr(QT[q],2)}, {S}"]
    def PV(u,m):
        q,n=U[u]; O=vr(OO[q],16)
        c=O if started[q] else "0"; started[q]=1
        return f"v_mfma_f32_32x32x16_bf16 {O}, {vr(VV[tau[u]&1][m],4)}, {vr(PP+4*m,4)}, {c}"
    if CFG['lay']:
        p(PG)
        if CFG['padk']: p(f"L_pv{w}:\ns_branch {(('L_padW','L_padM',KVB(1),KVB(1)) if CFG['padk']<3 else ('L_pv1','L_pv2','L_pv3','L_padW'))[w]}")
    p(f"L_av{w}:")
    for i,f in enumerate(first):
        if f<=1:
            for x in kreads(tiles[i],i&1): p(x)
    for x in vreads(tiles[0],0): p(x)
    p("s_waitcnt lgkmcnt(0)")
    for x in QK(0): p(x)
    p("s_nop 7\ns_nop 3")
    pend=False
    H=first[tiles.index(7)]
    H2=first[tiles.index(3)]
    for u in range(18):
        S=SS[u&1]
        e=lambda i: p(f"v_exp_f32 v{S+i}, v{S+i}")
        c=lambda k: p(f"v_cvt_pk_bf16_f32 v{PP+k}, v{S+2*k}, v{S+2*k+1}")
        kr=[x for i,f in enumerate(first) if f==u+2 for x in kreads(tiles[i],i&1)]
        vr_=[x for i,f in enumerate(first) if f==u+1 for x in vreads(tiles[i],i&1)]
        late=(u+2 in (H,H2)); pre=(u+3 in (H,H2)); hk=int(u+3>=H2)
        STAMP('u%d'%u)
        e(0); e(1)
        if u>0: p(PV(u-1,1))
        if u==CFG['xru']: xr_loads()
        if u==CFG['hdef']:
            p(f"v_mov_b32 v{vT+5}, 1\ns_waitcnt vmcnt(0)\ns_mov_b64 exec, 1\nds_add_u32 v{vT+4}, v{vT+5}\ns_mov_b64 exec, -1")
            STAMP('hack')
        e(2)
        if not late:
            for x in kr: p(x)
        if pre: p(f"ds_read_b32 v{vT}, v{aFl} offset:{F_M+4*hk-F_G1}")
        e(3); c(0); c(1)
        if pend: p(f"s_waitcnt lgkmcnt({(len(kr) if not late else 0)+(1 if pre else 0)})")
        qk=QK(u+1) if u<17 else [None,None]
        if qk[0]: p(qk[0])
        e(4)
        if late:
            p(f"v_cmp_gt_u32 vcc, 1, v{vT}")
        e(5)
        if late:
            p(f"s_cbranch_vccnz L_g2w{w}{hk}\nL_g2r{w}{hk}:")
            for x in kr: p(x)
        for x in vr_: p(x)
        e(6); e(7); c(2); c(3)
        if qk[1]: p(qk[1])
        e(8); e(9); e(10); e(11)
        p(PV(u,0))
        c(4); c(5); e(12); e(13); e(14); e(15); c(6); c(7)
        pend=bool(kr or vr_ or pre)
        if u==H-1:
            p(f"s_cmp_eq_u32 s{cT0}, 0\ns_cbranch_scc1 L_ex{w}")
            exq=PV(u,1)
    p("s_nop 1")
    p(PV(17,1))
    p("s_branch L_afin")
    for hk in range(2):
        p(f"L_g2w{w}{hk}:")
        p(f"v_mov_b32 v{vT+1}, {F_M+4*hk}")
        lds_wait(vT+1,vT,sT+17,'gt',1,0)
        p(f"s_branch L_g2r{w}{hk}")
    p(f"L_ex{w}:\n{exq}")
    if 99>CFG['xru']>=H: xr_loads()
    p("s_waitcnt lgkmcnt(0)\ns_branch L_afin")
def att_fin():
    t=vT; A=sT+7
    if CFG['lay']:
        p(PG)
        if CFG['padk']: p("L_padW:\ns_branch "+(KVB(0) if CFG['padk']<3 else 'L_padM'))
    p("L_afin:")
    STAMP('aend')
    p(f"s_mov_b32 s{A}, {hex(f2u(2.0**-40))}\ns_mov_b32 s{A+1}, {hex(f2u(2.0**40)-f2u(2.0**-40))}")
    for q in range(2):
        O=OO[q]
        p(f"""v_cndmask_b32 v{t}, v{O+8}, v{O+12}, s[{sLO}:{sLO+1}]
        v_pk_add_f32 v[{t+2}:{t+3}], v[{O}:{O+1}], v[{O+2}:{O+3}]
        v_rcp_f32 v{t+1}, v{t}
        v_pk_add_f32 v[{t+4}:{t+5}], v[{O+4}:{O+5}], v[{O+6}:{O+7}]
        v_pk_add_f32 v[{t+6}:{t+7}], v[{O+8}:{O+9}], v[{O+10}:{O+11}]
        v_subrev_u32 v{t}, s{A}, v{t}
        v_pk_add_f32 v[{t+2}:{t+3}], v[{t+2}:{t+3}], v[{t+4}:{t+5}]
        v_cmp_lt_u32 s[{A+11}:{A+12}], s{A+1}, v{t}
        v_pk_add_f32 v[{t+2}:{t+3}], v[{t+2}:{t+3}], v[{t+6}:{t+7}]
        v_add_f32 v{t+2}, v{t+2}, v{t+3}""")
        p(f"v_cmp_class_f32 vcc, v{t+2}, v{aCLS}")
        for k in range(6): p(f"v_pk_mul_f32 {vr(O+2*k,2)}, {vr(O+2*k,2)}, {vr(t,2)} op_sel:[0,1] op_sel_hi:[1,1]")
        p(f"""s_or_b64 vcc, vcc, s[{A+11}:{A+12}]
        s_cbranch_scc1 L_afb{q}
        L_afr{q}:""")
        for k in range(6): p(f"v_cvt_pk_bf16_f32 v{O+k}, v{O+2*k}, v{O+2*k+1}")
        p(f"s_cmp_lg_u32 s{sOSC}, 0")
        st=[f"buffer_store_dwordx4 {vr(O,4)}, v{aO}, {S4(sWS)}, s{sOm[q]} offen", f"s_mov_b64 exec, s[{sLO}:{sLO+1}]",
            f"buffer_store_dwordx2 {vr(O+4,2)}, v{aO}, {S4(sWS)}, s{sOt[q]} offen offset:512", "s_mov_b64 exec, -1"]
        p(f"s_cbranch_scc1 L_osc{q}")
        for x in st: p(x+(" "+CFG['apol'] if x.startswith("buffer") else ""))
        p(f"s_branch L_osr{q}\nL_osc{q}:")
        for x in st: p(x+(" sc1" if x.startswith("buffer") else ""))
        p(f"L_osr{q}:")
    p(f"""v_mov_b32 v{t}, {F_DONE}
    v_mov_b32 v{t+1}, 1
    s_mov_b64 exec, 1
    ds_add_u32 v{t}, v{t+1}
    s_mov_b64 exec, -1""")
    STAMP('ost')
aCLS=255; aFO=226; aFR=227
def att_cold():
    t=vT; A=sT+7; B=sT+8; N=sT+17; J=sT+18; CN=sT+19; PA=sT+20
    for q in range(2): p(f"L_afb{q}:\ns_cmp_lg_u32 s{sFB}, 0\ns_cbranch_scc1 L_afr{q}\ns_branch L_afb")
    p(f"L_afb:\ns_mov_b32 s{sFB}, 1\ns_waitcnt lgkmcnt(0)")
    S=SS[0]; MX=t+10; xa=t+11
    for q in range(2):
        lp=p.lab("fb"); nd=p.lab("fbnd"); nf=p.lab("fbnf"); p2=p.lab("fbp2"); nx=p.lab("fbnx"); ps=p.lab("fbps"); dn=p.lab("fbdn")
        for r in range(16): p(f"v_mov_b32 v{OO[q]+r}, 0")
        p(f"""v_mov_b32 v{MX}, {NINF}
        s_mov_b32 s{PA}, 0
        {ps}:""")
        if q==0: p(f"s_sub_u32 s{N}, 15, s{sWAVE}")
        else: p(f"s_add_u32 s{N}, 8, s{sWAVE}")
        p(f"""s_sub_u32 s{CN}, s{N}, 7
        s_cmp_eq_u32 s{cT0}, 0
        s_cselect_b32 s{CN}, s{CN}, 9
        s_mov_b32 s{J}, 0
        {lp}:
        s_lshr_b32 s{A}, s{N}, 1
        s_mul_i32 s{A}, s{A}, 5632
        s_bitcmp1_b32 s{N}, 0
        s_cselect_b64 vcc, -1, 0
        s_nop 0
        v_cndmask_b32 v{xa}, v{aKm}, v{aKm1}, vcc
        v_cndmask_b32 v{xa+1}, v{aKt}, v{aKt1}, vcc
        v_cndmask_b32 v{xa+2}, v{aV}, v{aV1}, vcc
        v_add_u32 v{xa}, s{A}, v{xa}
        v_add_u32 v{xa+1}, s{A}, v{xa+1}
        v_add_u32 v{xa+2}, s{A}, v{xa+2}
        ds_read_b128 {vr(KM[0],4)}, v{xa}
        ds_read_b64 {vr(KT[0],2)}, v{xa+1}
        s_mov_b64 exec, s[{sLO+2}:{sLO+3}]
        ds_read_b128 {vr(VV[0][0],4)}, v{xa+2}
        ds_read_b128 {vr(VV[0][1],4)}, v{xa+2} offset:640
        s_mov_b64 exec, -1
        s_waitcnt lgkmcnt(0)
        v_mfma_f32_32x32x16_bf16 {vr(S,16)}, {vr(KM[0],4)}, {vr(QM[q],4)}, 0
        v_mfma_f32_32x32x8_bf16 {vr(S,16)}, {vr(KT[0],2)}, {vr(QT[q],2)}, {vr(S,16)}
        v_mov_b32 v{xa}, {NINF}
        s_nop 11
        s_cmp_lg_u32 s{J}, 0
        s_cbranch_scc1 {nd}""")
        for r in range(16): p(f"v_cmp_eq_u32 vcc, 0, v{CD+r}\ns_nop 1\nv_cndmask_b32 v{S+r}, v{xa}, v{S+r}, vcc")
        p(f"{nd}:\ns_cmp_lg_u32 s{J}, 8\ns_cbranch_scc1 {nf}")
        for r in range(16): p(f"v_cmp_eq_u32 vcc, 0, v{CF+r}\ns_nop 1\nv_cndmask_b32 v{S+r}, v{xa}, v{S+r}, vcc")
        p(f"{nf}:\ns_cmp_lg_u32 s{PA}, 0\ns_cbranch_scc1 {p2}")
        for r in range(0,16,2): p(f"v_max3_f32 v{MX}, v{S+r}, v{S+r+1}, v{MX}")
        p(f"s_branch {nx}\n{p2}:")
        for r in range(16): p(f"v_sub_f32 v{S+r}, v{S+r}, v{MX}")
        for r in range(16): p(f"v_exp_f32 v{S+r}, v{S+r}")
        p("s_nop 0")
        for k in range(8): p(f"v_cvt_pk_bf16_f32 v{PP+k}, v{S+2*k}, v{S+2*k+1}")
        p("s_nop 1")
        for m in range(2): p(f"v_mfma_f32_32x32x16_bf16 {vr(OO[q],16)}, {vr(VV[0][m],4)}, {vr(PP+4*m,4)}, {vr(OO[q],16)}")
        p(f"""s_nop 11
        {nx}:
        s_sub_u32 s{N}, s{N}, 1
        s_add_u32 s{J}, s{J}, 1
        s_cmp_lt_u32 s{J}, s{CN}
        s_cbranch_scc1 {lp}
        s_cmp_lg_u32 s{PA}, 0
        s_cbranch_scc1 {dn}
        v_mov_b32 v{xa}, v{MX}
        s_mov_b32 s{PA}, 1
        s_nop 0
        v_permlane32_swap_b32 v{xa}, v{MX}
        s_nop 1
        v_max_f32 v{MX}, v{MX}, v{xa}
        s_branch {ps}
        {dn}:""")
    p("s_branch L_afin")

BF=28; AF=108; WACC=200; XR=176; WR_=186; aX2=196; aPS=197; aAL=198; aAR=199; SW=220; aL4=221; aPR=222; aKY=223; aCD=224
HP=40; HF_=50; LP=70; OP=80
sRT=sT+1; sOL=sT+2; sOR=sT+5; sXO=cXO; sPSO=sT+12; sRETRY=sT+13; sPRB=sT+14; sFLO=sT+16; sFRE=sT+18
def acc_init():
    for k in range(10): p(f"v_lshlrev_b32 v{WACC+2*k}, 16, v{XR+k}\nv_and_b32 v{WACC+2*k+1}, 0xffff0000, v{XR+k}")
def wo_pre1():
    t=vT; A=sT+7; B=sT+8
    wo_ids()
    p(f"""v_and_b32 v{t}, 15, v0
    v_lshrrev_b32 v{t+1}, 4, v0
    v_mul_u32_u24 v{aWR}, 40, v{t+1}
    v_mov_b32 v{t+3}, 1280
    v_mad_u32_u24 v{aX2}, v{t}, v{t+3}, v{aWR}
    s_lshl_b32 s{A}, s{sBLK}, 2
    s_add_u32 s{A}, s{A}, s{sWAVE}
    s_mul_i32 s{A}, s{A}, 20480
    s_mul_i32 s{cJ}, s{sJ}, 160
    s_add_u32 s{cXO}, s{A}, s{cJ}
    v_lshlrev_b32 v{aPS}, 7, v{t}
    v_lshl_add_u32 v{aPS}, v{t+1}, 5, v{aPS}
    v_lshlrev_b32 v{aFR}, 7, v{t}
    v_mul_u32_u24 v{t+2}, 640, v{t+1}
    v_bfe_u32 v{t+3}, v0, 2, 2
    v_mul_u32_u24 v{t+3}, 160, v{t+3}
    v_and_b32 v{t+4}, 3, v0
    v_mul_u32_u24 v{t+4}, 40, v{t+4}
    v_add3_u32 v{t+2}, v{t+2}, v{t+3}, v{t+4}
    s_mul_i32 s{A}, s{sHH}, 51200
    s_add_u32 s{B}, s{A}, {L_WO}
    v_add_u32 v{aAL}, s{B}, v{t+2}
    s_sub_u32 s{B}, {L_WO+51200}, s{A}
    v_add_u32 v{aAR}, s{B}, v{t+2}
    v_and_b32 v{t+2}, 7, v0
    v_mul_u32_u24 v{t+2}, 1280, v{t+2}
    v_bfe_u32 v{t+3}, v0, 3, 1
    v_lshl_add_u32 v{aPR}, v{t+3}, 7, v{t+2}""")
    if CFG['xdma']:
        assert 0<=CFG['xru']<99 and CFG['odn']==1
        p(f"""v_mul_u32_u24 v{t+2}, 6554, v0
        v_lshrrev_b32 v{t+2}, 16, v{t+2}
        v_mul_u32_u24 v{t+2}, 1120, v{t+2}
        v_lshl_add_u32 v{aXD}, v0, 4, v{t+2}
        s_mul_i32 s{B}, s{sWAVE}, 2560
        s_add_u32 s{B}, s{B}, {L_STG}
        v_mul_u32_u24 v{t+2}, 160, v{t}
        v_add3_u32 v{aXL}, v{t+2}, v{aWR}, s{B}
        v_add_u32 v{aWR}, {L_SA}, v{aWR}""")
    if CFG['wsp']:
        p(f"""s_and_b32 s{B}, s{sWAVE}, 1
        s_mul_i32 s{B}, s{B}, 25600
        v_add_u32 v{aAL}, s{B}, v{aAL}
        v_add_u32 v{aAR}, s{B}, v{aAR}
        s_lshr_b32 s{B}, s{sWAVE}, 1
        s_mul_i32 s{B}, s{B}, 10240
        s_add_u32 s{A}, s{A}, s{B}
        s_and_b32 s{B}, s{sWAVE}, 1
        s_lshl_b32 s{B}, s{B}, 10
        s_add_u32 s{A}, s{A}, s{B}
        s_add_u32 s{A}, s{A}, {L_WO}
        v_lshlrev_b32 v{aL4}, 4, v0
        v_add_u32 v{aPR}, s{A}, v{aL4}
        v_add_u32 v{aL4}, 4096, v{aL4}""")
def wo_pre2():
    acc_init()
def probe(soff,cnt,first=True):
    t=vT
    lp=p.lab("pb"); ok=p.lab("pbok"); md=p.lab("pbm")
    p(f"s_mov_b32 s{cnt}, {SPIN}")
    if not first: p(f"s_branch {md}")
    p(f"""{lp}:
    buffer_load_dwordx3 v[{t+4}:{t+6}], v{aPR}, {S4(sWS)}, s{soff} offen offset:512 sc1""")
    if not first: p(f"{md}:")
    p(f"""s_waitcnt vmcnt(0)
    v_max_u32 v{t+4}, v{t+4}, v{t+6}
    v_cmp_eq_u32 vcc, -1, v{t+4}
    s_nop 0
    s_cbranch_vccz {ok}""")
    spin(cnt,lp,ok)
    p(f"s_branch {lp}\n{ok}:")
def red3(a,b,c,d):
    p(f"""v_mov_b32 v{d}, v{c}
    s_nop 0
    v_permlane32_swap_b32 v{a}, v{b}
    v_permlane32_swap_b32 v{c}, v{d}
    s_nop 0
    v_add_f32 v{a}, v{a}, v{b}
    v_add_f32 v{c}, v{c}, v{d}
    s_nop 1
    v_permlane16_swap_b32 v{a}, v{c}
    s_nop 0
    v_add_f32 v{a}, v{a}, v{c}
    v_add_f32 v{c}, v{a}, 0
    s_nop 1
    v_permlane16_swap_b32 v{a}, v{c}
    s_nop 0
    v_mov_b32 v{b}, v{a}
    s_nop 1
    v_permlane32_swap_b32 v{a}, v{b}""")
def wo_scal():
    A=sT+7; B=sT+8
    wo_ids()
    p(f"""s_lshl_b32 s{sRT}, s{sBLK}, 2
    s_add_u32 s{sRT}, s{sRT}, s{sWAVE}
    s_mul_i32 s{A}, s{sRT}, 20480
    s_mul_i32 s{B}, s{sMODE}, {OB2-OB}
    s_add_u32 s{A}, s{A}, s{B}
    s_add_u32 s{A}, s{A}, {OB}
    s_mul_i32 s{B}, s{sHH}, 10240
    s_add_u32 s{sOL}, s{A}, s{B}
    s_add_u32 s{sOL+1}, s{sOL}, 4096
    s_add_u32 s{sOL+2}, s{sOL}, 8192
    s_add_u32 s{A}, s{A}, 10240
    s_sub_u32 s{sOR}, s{A}, s{B}
    s_lshl_b32 s{sPSO}, s{sRT}, 11
    s_add_u32 s{sPSO}, s{sPSO}, {PS}
    s_mov_b32 s{sRETRY}, {1<<16}
    s_add_u32 s{sOR+1}, s{sOR}, 4096
    s_add_u32 s{sPRB}, s{sOR}, 8192""")
    if CFG['wsp']:
        p(f"""s_and_b32 s{A}, s{sWAVE}, 1
        s_mul_i32 s{B}, s{A}, 5120
        s_add_u32 s{sOL}, s{sOL}, s{B}
        s_add_u32 s{sOR}, s{sOR}, s{B}
        s_mul_i32 s{B}, s{A}, -40960
        s_add_u32 s{B}, s{B}, 20480
        s_add_u32 s{sOL+1}, s{sOL}, s{B}
        s_add_u32 s{sOR+1}, s{sOR}, s{B}""")
def wo_flags():
    A=sT+7; B=sT+8
    p(f"""s_lshr_b32 s{A}, s{sRT}, 1
    s_lshl_b32 s{A}, s{A}, 12
    s_lshl_b32 s{B}, s{sHH}, 11
    s_add_u32 s{A}, s{A}, {FO}
    s_add_u32 s{sFLO}, s{A}, s{B}
    s_xor_b32 s{sFRE}, s{sFLO}, 2048""")
def wo_gemm():
    t=vT; A=sT+7; B=sT+8; C=sT+17; MXS=t+8
    sROFF=[sOR,sOR+1,sPRB]
    LA=CFG['wla']; WE=CFG['wwe']
    LG=[]
    def af(m): return AF+4*(m%15)
    def aread(m):
        s_,t_=divmod(m,5)
        for rd in range(2):
            p(f"ds_read_b64_tr_b16 {vr(af(m)+2*rd,2)}, v{aAL if s_<10 else aAR} offset:{(s_%10)*5120+rd*2560+8*t_}"); LG.append(m)
    def lgw(m):
        k=[i for i,x in enumerate(LG) if x!='x' and x<=m]
        if not k: return None
        n=len(LG)-1-max(k); del LG[:max(k)+1]; return n
    def bload(s_):
        so=(sOL+(s_%10)//4) if s_<10 else sROFF[(s_%10)//4]
        return f"buffer_load_dwordx4 {vr(BF+4*s_,4)}, v{aLin}, {S4(sWS)}, s{so} offen offset:{(s_%10%4)*1024} sc1"
    def cold(f):
        n0=len(p.L); f(); COLD.append("\n".join(p.L[n0:])); del p.L[n0:]
    p(f"s_cmp_lg_u32 s{sMODE}, 0\ns_cbranch_scc1 L_plsl\nL_plr:")
    def slow():
        p("L_plsl:"); wo_flags()
        p(f"""v_mov_b32 v{t+1}, s{sTAG}
        s_mov_b64 exec, 3
        s_waitcnt vmcnt(0)
        buffer_store_dword v{t+1}, v{aFO}, {S4(sWS)}, 0 offen sc1
        s_mov_b64 exec, -1""")
        flag_poll(aFR,t+4,sFLO,C); flag_poll(aFR,t+4,sFRE,C); p("s_branch L_plr")
    cold(slow)
    NI=CFG['oini']
    def dn():
        if CFG['odn']:
            p(f"v_mov_b32 v{t}, {F_DONE}"); lds_wait(t,t+1,C,'gt',4,0)
    if CFG['oprb']:
        p(f"buffer_load_dwordx3 v[{t+4}:{t+6}], v{aPR}, {S4(sWS)}, s{sOL} offen offset:512 sc1\ns_waitcnt vmcnt(5)")
    else:
        dn()
        for s_ in range(NI): p(bload(s_))
        p(f"s_waitcnt vmcnt({NI+4})")
    acc_init()
    p(f"v_mov_b32 v{t}, {F_WOR}")
    STAMP('fo')
    lds_wait(t,t+1,C,'gt',2,0)
    p(f"ds_read_b32 v{SW}, v{t} offset:{L_SWS-F_WOR}"); LG.append('x')
    STAMP('wor')
    if CFG['oprb']: dn()
    for m in range(LA): aread(m)
    p(f"v_mov_b32 v{t+7}, {F_WO2}\ns_mov_b32 s{sRETRY}, {SPIN}")
    if CFG['oprb']:
        probe(sOL,C,first=False)
        STAMP('prb')
        for s_ in range(NI): p(bload(s_))
    G={}; a=0
    for n in CFG['ogr']: G[a]=a+n; a+=n
    assert a==20 and 10 in G
    def chain(a,b):
        return [f"v_max_u32 v{MXS}, v{BF+4*a}, v{BF+4*a+2}"]+[f"v_max3_u32 v{MXS}, v{BF+4*k}, v{BF+4*k+2}, v{MXS}" for k in range(a+1,b)]
    cmp_=f"v_cmp_eq_u32 vcc, -1, v{MXS}"
    def retry(a,b):
        e=20 if (CFG['opoll']=='all' or a>=10) else 10
        def f():
            p(f"L_og{a}:\ns_sub_u32 s{sRETRY}, s{sRETRY}, 1\ns_cbranch_scc1 L_ogr{a}")
            sl=CFG['osl'][a//10]
            if sl: p(f"s_sleep {sl}")
            if CFG['opoll']=='probe' and a==0: probe(sOL,C)
            for k in range(a,e): p(bload(k))
            p(f"s_waitcnt vmcnt({20-b if e==20 else 0})")
            for x in chain(a,b): p(x)
            p(f"{cmp_}\ns_nop 0\ns_cbranch_vccnz L_og{a}\ns_branch L_ogr{a}")
        cold(f)
    last=lambda s_: (NI if s_<NI else 20)-1
    p(f"s_waitcnt vmcnt({last(0)+1-G[0]})")
    for x in chain(0,G[0]): p(x)
    p(f"{cmp_}\ns_nop 0\ns_cbranch_vccnz L_og0\nL_ogr0:"); retry(0,G[0])
    STAMP('pl')
    for m in range(100):
        s_,t_=divmod(m,5)
        nx=s_+1 if s_+1 in G else None
        if m==50:
            STAMP('pr')
            if 'PR' in (CFG['gstart'],CFG['dstart'],CFG['dgate'],CFG['mtg']):
                p(f"""s_mov_b64 exec, 1
                v_mov_b32 v{t+4}, {F_PR}
                v_mov_b32 v{t+5}, 1
                ds_add_u32 v{t+4}, v{t+5}
                s_mov_b64 exec, -1"""); LG.append('x')
        w=[]
        if nx is not None and t_==1: w.append(f"vmcnt({(20 if m>CFG['orem'] else NI)-G[nx]}"); assert G[nx]<=NI or m>CFG['orem']
        if m%WE==0:
            n=lgw(m+WE-1)
            if n is not None: w.append(f"lgkmcnt({n}")
        if w: p("s_waitcnt "+") ".join(w)+")")
        a_=vr(WACC+4*t_,4)
        p(f"v_mfma_f32_16x16x32_bf16 {a_}, {vr(af(m),4)}, {vr(BF+4*s_,4)}, {a_}")
        if NI<20 and m==CFG['orem']:
            for k in range(NI,20): p(bload(k))
        if m+LA==50-10: p(f"ds_read_b32 v{t+6}, v{t+7}"); LG.append('x')
        if m+LA==50:
            assert nx is None or t_<3
            p(f"v_cmp_gt_u32 vcc, 2, v{t+6}\ns_nop 0\ns_cbranch_vccnz L_wo2w\nL_wo2r:")
            def f():
                p("L_wo2w:"); lds_wait(t+7,t+6,C,'gt',2,0); p("s_branch L_wo2r")
            cold(f)
        if m+LA<100: aread(m+LA)
        if nx is not None:
            ch=chain(nx,G[nx]); k=-(-len(ch)//2)
            if t_==1:
                for x in ch[:k]: p(x)
            if t_==2:
                for x in ch[k:]: p(x)
            if t_==3: p(cmp_)
            if t_==4:
                if nx==10: STAMP('loc')
                p(f"s_cbranch_vccnz L_og{nx}\nL_ogr{nx}:"); retry(nx,G[nx])
    p(f"""v_mov_b32 v{t}, 0x3f803f80
    v_mov_b32 v{t+2}, 0
    v_mov_b32 v{t+3}, 0
    v_mov_b32 v{t+4}, 0
    s_nop 3""")
ACC2=148; aXW=222; aPQ=172; aBP=173
def wo_gemm2():
    t=vT; A=sT+7; B=sT+8; C=sT+17; MXS=t+8
    LA=CFG['wla2']
    LG=[]
    def af(m): return AF+4*(m%10)
    def aread(m,rds=(0,1)):
        s_,t_=divmod(m,5)
        for rd in rds:
            if CFG['wnoa'] and m>=LA and rd<CFG['wnoa']: continue
            p(f"ds_read_b64_tr_b16 {vr(af(m)+2*rd,2)}, v{aAL if s_<5 else aAR} offset:{(s_%5)*5120+rd*2560+8*t_}"); LG.append(m)
    def lgw(m):
        k=[i for i,x in enumerate(LG) if x!='x' and x<=m]
        if not k: return None
        n=len(LG)-1-max(k); del LG[:max(k)+1]; return n
    def bload(s_,us=(0,1)):
        for u in us:
            so=(sOL if s_<5 else sOR)+u
            p(f"buffer_load_dwordx4 {vr(BF+8*s_+4*u,4)}, v{aLin if s_%5<4 else aL4}, {S4(sWS)}, s{so} offen offset:{(s_%5%4)*1024} {CFG['ldo'] if s_<5 else 'sc1'}")
    def cold(f):
        n0=len(p.L); f(); COLD.append("\n".join(p.L[n0:])); del p.L[n0:]
    p(f"s_cmp_lg_u32 s{sMODE}, 0\ns_cbranch_scc1 L_plsl\nL_plr:")
    def slow():
        p("L_plsl:"); wo_flags()
        p(f"""v_mov_b32 v{t+1}, s{sTAG}
        s_mov_b64 exec, 3
        s_waitcnt vmcnt(0)
        buffer_store_dword v{t+1}, v{aFO}, {S4(sWS)}, 0 offen sc1
        s_mov_b64 exec, -1""")
        flag_poll(aFR,t+4,sFLO,C); flag_poll(aFR,t+4,sFRE,C); p("s_branch L_plr")
    cold(slow)
    XL=CFG['xru']==99
    XF_=lambda k: (230+2*k if k<8 else 168+2*(k-8))
    p(f"v_mov_b32 v{t}, {F_DONE}")
    if not XL: p("s_waitcnt vmcnt(4)")
    if CFG['xdma']:
        for k in range(5): p(f"ds_read_b64 {vr(XR+2*k,2)}, v{aXL} offset:{8*k}")
        for k in range(5): p(f"ds_read_b64 {vr(WR_+2*k,2)}, v{aWR} offset:{8*k}")
    if CFG['odn']==2 and not XL: acc_init()
    if CFG['odn']: lds_wait(t,t+1,C,'gt',4,0)
    for s_ in range(5): bload(s_)
    if CFG['odn']!=2 and not XL: acc_init()
    p(f"v_mov_b32 v{t}, {F_WOR}")
    STAMP('fo')
    lds_wait(t,t+1,C,'gt',2,0)
    p(f"ds_read_b32 v{SW}, v{t} offset:{L_SWS-F_WOR}"); LG.append('x')
    STAMP('wor')
    for m in range(LA): aread(m)
    if CFG['psq']: p(f"v_lshrrev_b32 v{t+7}, 2, v0\nv_and_b32 v{aPQ}, 3, v0\nv_lshlrev_b32 v{aPQ}, 4, v{aPQ}\nv_lshl_add_u32 v{aPQ}, v{t+7}, 7, v{aPQ}")
    p(f"""v_mov_b32 v{t+7}, {F_WO2}
    s_mov_b32 s{sRETRY}, {SPIN}
    s_lshl_b32 s{A}, s{sWAVE}, 2
    s_add_u32 s{A}, s{A}, {F_X}
    v_mov_b32 v{t+10}, s{A}
    v_xor_b32 v{t+11}, 4, v{t+10}
    v_mov_b32 v{t+12}, 1""")
    G={}; a=0
    for n in CFG['ogr2']: G[a]=a+n; a+=n
    assert a==10 and 5 in G
    def chain(a,b):
        return [f"v_max_u32 v{MXS}, v{BF+8*a}, v{BF+8*a+2}"]+[f"v_max3_u32 v{MXS}, v{BF+4*k}, v{BF+4*k+2}, v{MXS}" for k in range(2*a+1,2*b)]
    cmp_=f"v_cmp_eq_u32 vcc, -1, v{MXS}"
    def retry(a,b):
        e=10 if a>=5 else 5
        def f():
            p(f"L_og{a}:\ns_sub_u32 s{sRETRY}, s{sRETRY}, 1\ns_cbranch_scc1 L_ogr{a}")
            sl=CFG['osl'][a//5]
            if sl: p(f"s_sleep {sl}")
            for k in range(a,e): bload(k)
            p(f"s_waitcnt vmcnt({20-2*b if e==10 and not (XL and CFG['xrd']>=0) else 0})")
            for x in chain(a,b): p(x)
            p(f"{cmp_}\ns_nop 0\ns_cbranch_vccnz L_og{a}\ns_branch L_ogr{a}")
        cold(f)
    RM={}
    for j in range(10): RM.setdefault(max(-1,int(CFG['orem2'][0]+j*CFG['orem2'][1])),[]).append(j)
    assert max(RM)<=24
    nis=10
    for j in RM.get(-1,()): bload(5+j//2,(j&1,)); nis+=1
    p(f"s_waitcnt vmcnt({nis-2*G[0]})")
    for x in chain(0,G[0]): p(x)
    p(f"{cmp_}\ns_nop 0\ns_cbranch_vccnz L_og0\nL_ogr0:"); retry(0,G[0])
    STAMP('pl')
    def mf(m,u):
        s_,t_=divmod(m,5)
        a_=vr((WACC,ACC2)[u]+4*t_,4)
        p(f"v_mfma_f32_16x16x32_bf16 {a_}, {vr(af(m),4)}, {vr(BF+8*s_+4*u,4)}, {0 if (u or XL) and s_==0 else a_}")
    WE=CFG['wwe2']
    mX=max(RM)+CFG['xrd']; nx_=0; nxat=0
    if XL and mX<0: xr_loads(); nx_=6; nxat=nis
    for m in range(45):
        s_,t_=divmod(m,5)
        nx=s_+1 if s_+1 in G else None
        if m==25:
            STAMP('pr')
            p(f"""s_mov_b64 exec, 1
            ds_add_u32 v{t+7}, v{t+12} offset:{F_LD-F_WO2}"""); LG.append('x')
            if CFG['prm']==25 and 'PR' in (CFG['gstart'],CFG['dstart'],CFG['dgate'],CFG['mtg']):
                p(f"v_mov_b32 v{t+4}, {F_PR}\nds_add_u32 v{t+4}, v{t+12}"); LG.append('x')
            p("s_mov_b64 exec, -1")
        if m==CFG['prm']!=25 and 'PR' in (CFG['gstart'],CFG['dstart'],CFG['dgate'],CFG['mtg']):
            p(f"s_mov_b64 exec, 1\nds_add_u32 v{t+7}, v{t+12} offset:{F_PR-F_WO2+65536 if F_PR<F_WO2 else F_PR-F_WO2}\ns_mov_b64 exec, -1" if 0 else f"s_mov_b64 exec, 1\nv_mov_b32 v{t+4}, {F_PR}\nds_add_u32 v{t+4}, v{t+12}\ns_mov_b64 exec, -1"); LG.append('x')
        w=[]
        if nx is not None and t_==1: w.append(f"vmcnt({nis+(nx_ if 2*G[nx]<=nxat else 0)-2*G[nx]}"); assert nis>=2*G[nx]
        n=lgw(m+WE-1) if m%WE==0 else None
        if n is not None: w.append(f"lgkmcnt({n}")
        if w: p("s_waitcnt "+") ".join(w)+")")
        mf(m,1)
        if m==25-2*LA-1: p(f"ds_read_b32 v{t+6}, v{t+7}"); LG.append('x')
        if m+LA==25:
            assert nx is None or t_<3
            p(f"v_cmp_gt_u32 vcc, 2, v{t+6}\ns_nop 0\ns_cbranch_vccnz L_wo2w\nL_wo2r:")
            def f():
                p("L_wo2w:"); lds_wait(t+7,t+6,C,'gt',2,0); p("s_branch L_wo2r")
            cold(f)
        if m==44-LA: p(f"ds_read_b32 v{t+6}, v{t+7} offset:{F_LD-F_WO2}"); LG.append('x')
        if m+LA<50: aread(m+LA,(0,) if CFG['wsplit'] else (0,1))
        mf(m,0)
        if m+LA<50 and CFG['wsplit']: aread(m+LA,(1,))
        for j in RM.get(m,()): bload(5+j//2,(j&1,)); nis+=1
        if XL and m==mX: xr_loads(); nx_=6; nxat=nis
        if XL and m==40: p("s_waitcnt vmcnt(0)")
        if XL and 40<=m<45:
            for k in (2*(m-40),2*(m-40)+1): p(f"v_lshlrev_b32 v{XF_(k)}, 16, v{XR+k}\nv_and_b32 v{XF_(k)+1}, 0xffff0000, v{XR+k}")
        if CFG['mtg']=='RL' and m==max(RM)+CFG['rld']:
            p(f"s_mov_b64 exec, 1\nv_mov_b32 v{t+4}, {F_H2}\nds_add_u32 v{t+4}, v{t+12}\ns_mov_b64 exec, -1"); LG.append('x')
        if nx is not None:
            ch=chain(nx,G[nx]); k=-(-len(ch)//2)
            if t_==1:
                for x in ch[:k]: p(x)
            if t_==2:
                for x in ch[k:]: p(x)
            if t_==3: p(cmp_)
            if t_==4:
                if nx==5: STAMP('loc')
                p(f"s_cbranch_vccnz L_og{nx}\nL_ogr{nx}:"); retry(nx,G[nx])
                STAMP('og%d'%nx)
    assert LA>=5 and 9 not in G
    for m in range(45,50):
        n=lgw(m)
        if n is not None: p(f"s_waitcnt lgkmcnt({n})")
        mf(m,1)
        if m==45:
            p(f"v_cmp_gt_u32 vcc, 4, v{t+6}\nv_mov_b32 v{t}, 0x3f803f80\ns_cbranch_vccnz L_ldw\nL_ldr:")
            def f():
                p(f"L_ldw:\nv_add_u32 v{t+7}, {F_LD-F_WO2}, v{t+7}"); lds_wait(t+7,t+6,C,'gt',4,0); p("s_branch L_ldr")
            cold(f)
    p(f"""v_mov_b32 v{t+2}, 0
    v_mov_b32 v{t+3}, 0
    v_mov_b32 v{t+4}, 0
    v_xor_b32 v{t+5}, 1024, v{aXW}""")
    for k in range(5):
        p(f"ds_write_b128 v{aXW}, {vr(ACC2+4*k,4)} offset:{2048*k}")
        mf(45+k,0)
    lp=p.lab("xw"); ok=p.lab("xok")
    STAMP('xw')
    p(f"""ds_write_b32 v{t+10}, v{t+12}
    s_mov_b32 s{C}, {SPIN*4}""")
    if XL:
        md=p.lab("xwm")
        p(f"ds_read_b32 v{t+6}, v{t+11}")
        for k in range(5): p(f"ds_read_b128 {vr(BF+4*k,4)}, v{t+5} offset:{2048*k}")
        for k in range(10): p(f"v_pk_add_f32 {vr(WACC+2*k,2)}, {vr(WACC+2*k,2)}, {vr(XF_(k),2)}")
        p(f"s_branch {md}")
    p(f"""{lp}:
    ds_read_b32 v{t+6}, v{t+11}""")
    for k in range(5): p(f"ds_read_b128 {vr(BF+4*k,4)}, v{t+5} offset:{2048*k}")
    if XL: p(f"{md}:")
    p(f"""s_waitcnt lgkmcnt(5)
    v_cmp_eq_u32 vcc, 0, v{t+6}
    s_nop 0
    s_cbranch_vccz {ok}""")
    spin(C,lp,ok)
    p(f"s_waitcnt lgkmcnt(0)\ns_branch {lp}\n{ok}:")
    for k in range(5):
        p(f"s_waitcnt lgkmcnt({4-k})")
        for j in range(2): p(f"v_pk_add_f32 {vr(WACC+4*k+2*j,2)}, {vr(WACC+4*k+2*j,2)}, {vr(BF+4*k+2*j,2)}")
def wo_gemm_old():
    t=vT; A=sT+7; B=sT+8; C=sT+17; MXS=t+8
    wo_scal(); wo_flags()
    p("s_waitcnt vmcnt(4)")
    acc_init()
    p(f"""v_mov_b32 v{t}, {F_WOR}
    v_mov_b32 v{t+1}, s{sTAG}
    s_cmp_eq_u32 s{sOSC}, 0
    s_cbranch_scc1 L_nofo
    s_mov_b64 exec, 3
    s_waitcnt vmcnt(0)
    buffer_store_dword v{t+1}, v{aFO}, {S4(sWS)}, 0 offen sc1
    s_mov_b64 exec, -1
    L_nofo:""")
    STAMP('fo')
    lds_wait(t,t+1,C,'gt',2,0)
    p(f"""ds_read_b32 v{SW}, v{t} offset:{L_SWS-F_WOR}
    L_wo:""")
    STAMP('wor')
    sROFF=[sOR,sOR+1,sPRB]
    LA=CFG['wla']; WE=CFG['wwe']
    LG=[]
    def af(m): return AF+4*(m%15)
    def aread(m):
        s_,t_=divmod(m,5)
        for rd in range(2):
            p(f"ds_read_b64_tr_b16 {vr(af(m)+2*rd,2)}, v{aAL if s_<10 else aAR} offset:{(s_%10)*5120+rd*2560+8*t_}"); LG.append(m)
    def lgw(m):
        k=[i for i,x in enumerate(LG) if x!='x' and x<=m]
        if not k: return None
        n=len(LG)-1-max(k); del LG[:max(k)+1]; return n
    def bload(s_):
        so=(sOL+(s_%10)//4) if s_<10 else sROFF[(s_%10)//4]
        return f"buffer_load_dwordx4 {vr(BF+4*s_,4)}, v{aLin}, {S4(sWS)}, s{so} offen offset:{(s_%10%4)*1024} sc1"
    for m in range(LA): aread(m)
    p(f"v_mov_b32 v{MXS}, 0\nv_mov_b32 v{t+7}, {F_WO2}")
    p(f"s_cmp_lg_u32 s{sMODE}, 0\ns_cbranch_scc1 L_plsl")
    probe(sOL,C)
    p("L_plr:")
    n0=len(p.L)
    p("L_plsl:"); flag_poll(aFR,t+4,sFLO,C); p("s_branch L_plr")
    COLD.append("\n".join(p.L[n0:])); del p.L[n0:]
    STAMP('pl')
    for s_ in range(10): p(bload(s_))
    p(f"buffer_load_dword v{t+4}, v{aFR}, {S4(sWS)}, s{sFRE} offen sc1")
    for m in range(100):
        s_,t_=divmod(m,5)
        if m==50:
            STAMP('loc')
            flag_poll(aFR,t+4,sFRE,C,first=False)
            STAMP('pr')
            for k in range(10,20): p(bload(k))
            if 'PR' in (CFG['gstart'],CFG['dstart'],CFG['dgate'],CFG['mtg']):
                p(f"""s_mov_b64 exec, 1
                v_mov_b32 v{t+4}, {F_PR}
                v_mov_b32 v{t+5}, 1
                ds_add_u32 v{t+4}, v{t+5}
                s_mov_b64 exec, -1"""); LG.append('x')
        w=[]
        if t_==0: w.append(f"vmcnt({(10-s_) if s_<10 else (19-s_)}")
        if m%WE==0:
            n=lgw(m+WE-1)
            if n is not None: w.append(f"lgkmcnt({n}")
        if w: p("s_waitcnt "+") ".join(w)+")")
        a_=vr(WACC+4*t_,4)
        p(f"v_mfma_f32_16x16x32_bf16 {a_}, {vr(af(m),4)}, {vr(BF+4*s_,4)}, {a_}")
        if m+LA==50-10: p(f"ds_read_b32 v{t+6}, v{t+7}"); LG.append('x')
        if m+LA==50:
            p(f"v_cmp_gt_u32 vcc, 2, v{t+6}\ns_nop 0\ns_cbranch_vccnz L_wo2w\nL_wo2r:")
            n0=len(p.L)
            p("L_wo2w:"); lds_wait(t+7,t+6,C,'gt',2,0); p("s_branch L_wo2r")
            COLD.append("\n".join(p.L[n0:])); del p.L[n0:]
        if m+LA<100: aread(m+LA)
        if t_==0 and s_<10: p(f"v_max3_u32 v{MXS}, v{BF+4*s_}, v{BF+4*s_+2}, v{MXS}")
    p(f"""v_cmp_eq_u32 vcc, -1, v{MXS}
    v_mov_b32 v{t}, 0x3f803f80
    v_mov_b32 v{t+2}, 0
    v_mov_b32 v{t+3}, 0
    v_mov_b32 v{t+4}, 0
    s_cbranch_vccnz L_woredo
    L_wook:""")
    COLD.append(f"L_woredo:\ns_sub_u32 s{sRETRY}, s{sRETRY}, 1\ns_cbranch_scc1 L_wook\ns_nop 7")
    q=P();
    COLD.append("\n".join(f"v_lshlrev_b32 v{WACC+2*k}, 16, v{XR+k}\nv_and_b32 v{WACC+2*k+1}, 0xffff0000, v{XR+k}" for k in range(10))+"\ns_branch L_wo")
def wo_main():
    t=vT; A=sT+7; B=sT+8; C=sT+17
    (wo_gemm2 if CFG['wsp'] else wo_gemm if CFG['osent'] else wo_gemm_old)()
    STAMP('wend')
    for k in range(10): p(f"v_cvt_pk_bf16_f32 v{HP+k}, v{WACC+2*k}, v{WACC+2*k+1}")
    for k in range(10):
        p(f"""v_dot2_f32_bf16 v{t+2}, v{HP+k}, v{t}, v{t+2}
        v_dot2_f32_bf16 v{t+4}, v{HP+k}, v{HP+k}, v{t+4}
        v_dot2_f32_bf16 v{t+3}, v{HP+k}, v{WR_+k}, v{t+3}""")
    p(f"""s_lshl_b32 s{A}, s{sJ}, 4
    s_add_u32 s{A}, s{A}, s{sPSO}""")
    red3(t+2,t+3,t+4,t+5)
    p(f"""v_mov_b32 v{t+5}, s{sTAG}
    s_mov_b64 exec, 0xffff
    s_cmp_lg_u32 s{sMODE}, 0
    s_cbranch_scc1 L_pssc
    buffer_store_dwordx4 {vr(t+2,4)}, v{aPS}, {S4(sWS)}, s{A} offen
    L_psr:""")
    if 'WE' in (CFG['gstart'],CFG['g2nd'][0],CFG['mtg']): p(f"s_mov_b64 exec, 1\nv_mov_b32 v{t+10}, {F_SCP}\nv_mov_b32 v{t+11}, 1\nds_add_u32 v{t+10}, v{t+11}")
    p("s_mov_b64 exec, -1")
    COLD.append(f"L_pssc:\nbuffer_store_dwordx4 {vr(t+2,4)}, v{aPS}, {S4(sWS)}, s{A} offen sc1\ns_branch L_psr")
    STAMP('ps')
    G=t+10
    lp=p.lab("ps"); ok=p.lab("psok"); md=p.lab("psm")
    Q=CFG['psq']
    ld=f"""buffer_load_dwordx4 {vr(G,4)}, v{aPQ if Q else aPS}, {S4(sWS)}, s{sPSO} offen sc1
    buffer_load_dwordx4 {vr(G+4,4)}, v{aPQ if Q else aPS}, {S4(sWS)}, s{sPSO} offen offset:{64 if Q else 16} sc1"""
    p(ld)
    for k in range(10): p(f"v_lshlrev_b32 v{HF_+2*k}, 16, v{HP+k}\nv_and_b32 v{HF_+2*k+1}, 0xffff0000, v{HP+k}")
    if CFG['dbg']:
        p(f"s_add_u32 s{A}, s{sXO}, {HB}")
        for o,n in ((0,4),(4,4),(8,2)): p(f"buffer_store_dwordx{n} {vr(HP+o,n)}, v{aX2}, {S4(sWS)}, s{A} offen offset:{4*o}")
    p(f"""s_lshl_b32 s{A}, s{sRT}, 4
    s_sub_u32 s{A}, 2047, s{A}
    {f"v_lshrrev_b32 v{t}, 2, v0" if Q else f"v_and_b32 v{t}, 15, v0"}
    v_sub_u32 v{t+9}, s{A}, v{t}
    v_lshlrev_b32 v{t+9}, 3, v{t+9}
    s_lshl_b32 s{A}, s{sWAVE}, 6
    s_add_u32 s{A}, s{A}, {L_KEYS}
    v_lshl_add_u32 v{aKY}, v{t}, 2, s{A}
    v_and_b32 v{t}, {3 if Q else 48}, v0
    v_lshlrev_b32 v{t}, {6 if Q else 2}, v{t}
    v_add_u32 v{t+8}, {L_KEYS}, v{t}
    {f"v_and_b32 v{t}, 15, v0" if Q else ""}
    {f"v_lshlrev_b32 v{aBP}, 4, v{t}" if Q else ""}
    s_mov_b32 s{C}, {SPIN}
    s_branch {md}
    {PG if CFG['lay'] else ""}
    {"L_padM:" if CFG['lay'] and CFG['padk'] else ""}
    {"s_branch "+KVB(0) if CFG['lay'] and CFG['padk'] else ""}
    {lp}:
    {ld}
    {md}:
    s_waitcnt vmcnt(0)
    v_cmp_ne_u32 vcc, s{sTAG}, v{G+3}
    v_cmp_ne_u32 s[{sT+14}:{sT+15}], s{sTAG}, v{G+7}
    v_pk_add_f32 {vr(t+4,2)}, {vr(G,2)}, {vr(G+4,2)}
    v_add_f32 v{t+6}, v{G+2}, v{G+6}
    s_or_b64 vcc, vcc, s[{sT+14}:{sT+15}]
    s_cbranch_scc0 {ok}""")
    spin(C,lp,ok)
    p(f"""s_branch {lp}
    {ok}:""")
    STAMP('psr'); COUNT('npsr',C,SPIN)
    if 'PS' in (CFG['g2nd'][0],CFG['gstart'],CFG['dstart'],CFG['dgate'],CFG['mtg']): p(f"""s_mov_b64 exec, 1
    v_mov_b32 v{G}, {F_PS}
    v_mov_b32 v{G+1}, 1
    ds_add_u32 v{G}, v{G+1}
    s_mov_b64 exec, -1""")
    M=t+4
    if Q:
        for qp in ("[1,0,3,2]","[2,3,0,1]"):
            for k in range(3): p(f"v_add_f32_dpp v{M+k}, v{M+k}, v{M+k} quad_perm:{qp} row_mask:0xf bank_mask:0xf")
    else: red3(M,M+1,M+2,M+3)
    p(f"""v_mul_f32 v{M}, {1/640!r}, v{M}
    v_mul_f32 v{M+2}, {1/640!r}, v{M+2}
    v_fma_f32 v{M+2}, -v{M}, v{M}, v{M+2}
    v_max_f32 v{M+2}, 0, v{M+2}""")
    bf16r(M+2,M+2)
    p(f"v_add_f32 v{M+2}, 0x3727c5ac, v{M+2}")
    bf16r(M+2,M+2)
    p(f"v_sqrt_f32 v{M+2}, v{M+2}")
    bf16r(M,M)
    bf16r(M+2,M+2)
    RS=t+2
    p(f"""v_rcp_f32 v{RS}, v{M+2}
    v_fma_f32 v{M+1}, -v{M}, v{SW}, v{M+1}
    v_mul_f32 v{M+1}, v{M+1}, v{RS}
    v_cvt_pk_bf16_f32 v{M+1}, v{M+1}, v{M+1}
    v_mul_f32 v{RS+1}, -v{M}, v{RS}
    v_ashrrev_i32 v{M+2}, 31, v{M+1}
    v_or_b32 v{M+2}, 0x80000000, v{M+2}
    v_xor_b32 v{M+1}, v{M+1}, v{M+2}
    v_and_b32 v{M+1}, 0xffff0000, v{M+1}
    v_or_b32 v{KEY}, v{M+1}, v{t+9}
    ds_write_b32 v{aKY}, v{KEY}""")
    K16=AF
    lp=p.lab("ky"); ok=p.lab("kyok"); md=p.lab("kym")
    def lfma():
        for k in range(10): p(f"v_pk_fma_f32 {vr(WACC+2*k,2)}, {vr(HF_+2*k,2)}, {vr(RS,2)}, {vr(RS,2)} op_sel:[0,0,1] op_sel_hi:[1,0,1]")
    def kread():
        for i in range(4): p(f"ds_read_b128 {vr(K16+4*i,4)}, v{t+8} offset:{16*i}")
    if Q:
        p(f"ds_bpermute_b32 v{RS}, v{aBP}, v{RS}\nds_bpermute_b32 v{RS+1}, v{aBP}, v{RS+1}")
        kread()
        p(f"s_mov_b32 s{C}, {SPIN*4}\ns_waitcnt lgkmcnt(4)")
        lfma()
        p(f"s_branch {md}\n{lp}:")
        kread()
        p(f"{md}:")
    else:
        lfma()
        p(f"s_mov_b32 s{C}, {SPIN*4}\n{lp}:")
        kread()
    p("s_waitcnt lgkmcnt(0)")
    p(f"v_max3_u32 v{t}, v{K16}, v{K16+1}, v{K16+2}")
    for i in range(3,15,2): p(f"v_max3_u32 v{t}, v{K16+i}, v{K16+i+1}, v{t}")
    p(f"""v_max_u32 v{t}, v{t}, v{K16+15}
    v_cmp_eq_u32 vcc, -1, v{t}
    v_mov_b32 v{t}, 0
    s_cbranch_vccz {ok}""")
    spin(C,lp,ok)
    p(f"s_branch {lp}\n{ok}:")
    STAMP('keys')
    m0_=sT+18
    for i in range(18):
        if i<16: p(f"v_cmp_gt_u32 s[{m0_+2*(i%2)}:{m0_+2*(i%2)+1}], v{K16+i}, v{KEY}") if False else None
    MK=[sT+14,sT+16,sT+18]
    for i in range(18):
        if i<16: m=MK[i%3]; p(f"v_cmp_gt_u32 s[{m}:{m+1}], v{K16+i}, v{KEY}")
        elif i==16: p("s_nop 0")
        if i>=2: m=MK[(i-2)%3]; p(f"v_addc_co_u32 v{t}, vcc, 0, v{t}, s[{m}:{m+1}]")
    if Q: p(f"""v_cvt_pk_bf16_f32 v{LP}, v{WACC}, v{WACC+1}
    v_cvt_pk_bf16_f32 v{LP+1}, v{WACC+2}, v{WACC+3}
    v_add_u32_dpp v{t}, v{t}, v{t} quad_perm:[1,0,3,2] row_mask:0xf bank_mask:0xf
    v_cvt_pk_bf16_f32 v{LP+2}, v{WACC+4}, v{WACC+5}
    v_cvt_pk_bf16_f32 v{LP+3}, v{WACC+6}, v{WACC+7}
    v_add_u32_dpp v{t}, v{t}, v{t} quad_perm:[2,3,0,1] row_mask:0xf bank_mask:0xf""")
    else: p(f"""v_mov_b32 v{t+1}, v{t}
    v_cvt_pk_bf16_f32 v{LP}, v{WACC}, v{WACC+1}
    v_cvt_pk_bf16_f32 v{LP+1}, v{WACC+2}, v{WACC+3}
    v_permlane32_swap_b32 v{t}, v{t+1}
    v_cvt_pk_bf16_f32 v{LP+2}, v{WACC+4}, v{WACC+5}
    v_add_u32 v{t}, v{t}, v{t+1}
    v_mov_b32 v{t+1}, v{t}
    v_cvt_pk_bf16_f32 v{LP+3}, v{WACC+6}, v{WACC+7}
    v_cvt_pk_bf16_f32 v{LP+4}, v{WACC+8}, v{WACC+9}
    v_permlane16_swap_b32 v{t}, v{t+1}
    v_cvt_pk_bf16_f32 v{LP+5}, v{WACC+10}, v{WACC+11}
    v_add_u32 v{t}, v{t}, v{t+1}""")
    p(f"""v_cmp_gt_u32 s[{sCAND}:{sCAND+1}], 8, v{t}
    v_or_b32 v{KEY}, v{KEY}, v{t}
    v_mov_b32 v{t+1}, {L_CA&~0xffff}
    v_lshl_add_u32 v{t+1}, v{t}, 3, v{t+1}
    v_mov_b32 v{KEY+1}, s{sTAG}
    s_cmp_lg_u32 s{sJ}, 0
    s_cbranch_scc1 L_noca
    {f"s_and_b32 exec_lo, s{sCAND}, 0x11111111" if Q else f"s_and_b32 exec_lo, s{sCAND}, 0xffff"}
    {f"s_and_b32 exec_hi, s{sCAND+1}, 0x11111111" if Q else "s_mov_b32 exec_hi, 0"}
    ds_write_b64 v{t+1}, {vr(KEY,2)} offset:{L_CA&0xffff}
    s_mov_b64 exec, 0xff
    s_cmp_lg_u32 s{sWAVE}, 0
    s_cbranch_scc1 L_noca
    v_lshlrev_b32 v{t+2}, 3, v0
    v_add_u32 v{t+3}, {L_CA}, v{t+2}
    s_lshl_b32 s{A}, s{sBLK}, 7
    s_add_u32 s{A}, s{A}, {CA}
    s_mov_b32 s{C}, {SPIN*4}
    L_cal:
    ds_read_b64 v[{t+4}:{t+5}], v{t+3}
    s_waitcnt lgkmcnt(0)
    v_cmp_ne_u32 vcc, s{sTAG}, v{t+5}
    s_nop 0
    s_cbranch_vccz L_caok""")
    spin(C,"L_cal","L_caok")
    p(f"""s_branch L_cal
    L_caok:
    buffer_store_dwordx2 v[{t+4}:{t+5}], v{t+2}, {S4(sWS)}, s{A} offen sc1
    L_noca:
    s_mov_b64 exec, -1""")
    STAMP('ca')
    if Q: p(f"ds_bpermute_b32 v{t}, v{aBP}, v{t}\nds_bpermute_b32 v{KEY}, v{aBP}, v{KEY}")
    for k in range(4 if Q else 6,10): p(f"v_cvt_pk_bf16_f32 v{LP+k}, v{WACC+2*k}, v{WACC+2*k+1}")
    p(f"""v_lshrrev_b32 v{t+1}, 4, v0
    v_mul_u32_u24 v{t+1}, 40, v{t+1}
    {"s_waitcnt lgkmcnt(0)" if Q else ""}
    {f"v_cmp_gt_u32 s[{sCAND}:{sCAND+1}], 8, v{t}" if Q else ""}
    v_mul_u32_u24 v{t}, 2560, v{t}
    v_add_u32 v{aCD}, v{t}, v{t+1}
    s_mul_i32 s{A}, s{sBLK}, 20480
    s_mul_i32 s{B}, s{sJ}, 160
    s_add_u32 s{A}, s{A}, s{B}
    s_add_u32 s{A}, s{A}, {CAND}
    s_and_b64 exec, s[{sCAND}:{sCAND+1}], -1
    s_cbranch_scc0 L_nocd""")
    for base,off in ((LP,0),(HP,1280)):
        if 'nocand' in CFG['xp'] or ('noh' in CFG['xp'] and off): continue
        for o,n in ((0,4),(4,4),(8,2)): p(f"buffer_store_dwordx{n} {vr(base+o,n)}, v{aCD}, {S4(sWS)}, s{A} offen offset:{off+4*o} sc1")
    p("L_nocd:\ns_mov_b64 exec, -1")
    for k in range(10): p(f"v_pk_add_f32 {vr(WACC+2*k,2)}, {vr(WACC+2*k,2)}, {vr(HF_+2*k,2)}")
    for k in range(10): p(f"v_cvt_pk_bf16_f32 v{OP+k}, v{WACC+2*k}, v{WACC+2*k+1}")
    if CFG['odf']: p(f"s_cmp_lt_u32 s{sMI}, {CFG['odf']}\ns_cbranch_scc1 L_noo1")
    p(f"s_andn2_b64 exec, -1, s[{sCAND}:{sCAND+1}]\ns_cbranch_scc0 L_noo1")
    if 'noout' not in CFG['xp']: out_store()
    p("L_noo1:")
    if 1: p(f"""s_mov_b64 exec, 1
    v_mov_b32 v{t+4}, {F_O1}
    v_mov_b32 v{t+5}, 1
    ds_add_u32 v{t+4}, v{t+5}
    s_mov_b64 exec, -1""")
    else: p("s_mov_b64 exec, -1")
    STAMP('o1')
KEY=228; sCAND=sT+20
def out_store():
    for o,n in ((0,4),(4,4),(8,2)): p(f"buffer_store_dwordx{n} {vr(OP+o,n)}, v{aX2}, {S4(sOUT)}, s{sXO} offen offset:{4*o} {CFG['opol']}")

def moe_weights():
    A=sT+7; B=sT+8; vt=2; D=40; aW_=12
    gu=p.lab("mwgu"); wr=p.lab("mwwr"); en=p.lab("mwend")
    FA=dict(WOD=(F_WOD,2),PR=(F_PR,4),O1=(F_O1,4),DONE=(F_DONE,4),G2=(F_G2,2),PS=(F_PS,4),WO2=(F_WO2,2),WE=(F_SCP,4),TOP=(L_TOP,0))
    def gate(k):
        p(f"v_mov_b32 v{vt+4}, {FA[k][0]}")
        if k=='TOP': lds_wait(vt+4,vt+5,sT+5,'eq',-1,2)
        else: lds_wait(vt+4,vt+5,sT+5,'gt',FA[k][1],2)
    pl_=p.lab("mwpl")
    p(f"""s_cmp_ge_u32 s{sMI}, 17
    s_cbranch_scc1 {pl_}
    v_bfe_u32 v{vt}, v0, 3, 2
    v_lshrrev_b32 v{vt+1}, 5, v0
    v_lshlrev_b32 v{vt}, 1, v{vt}
    v_add_lshl_u32 v{vt}, v{vt}, v{vt+1}, 2
    v_bfe_u32 v{vt+1}, v0, 1, 2
    v_add_u32 v{vt}, v{vt}, v{vt+1}
    v_and_b32 v{vt+1}, 1, v0
    v_lshlrev_b32 v{vt+1}, 4, v{vt+1}
    s_cmp_lt_u32 s{sMI}, 12
    s_cbranch_scc1 {gu}
    v_mul_u32_u24 v{vt}, 1280, v{vt}
    v_add_u32 v{aW_}, v{vt}, v{vt+1}
    s_mul_i32 s{A}, s{sG}, 5
    s_add_u32 s{A}, s{A}, s{sMI}
    s_sub_u32 s{A}, s{A}, 12
    s_lshl_b32 s{A}, s{A}, 5
    s_mul_i32 s{B}, s{HW}, {12*32*1280}
    s_add_u32 s{A}, s{A}, s{B}""")
    gate(CFG['dstart'])
    STAMP('mg')
    for s_ in range(12):
        if s_>=CFG['ddep']: p(f"s_waitcnt vmcnt({CFG['ddep']-1})")
        p(f"buffer_load_dwordx4 {vr(D+4*s_,4)}, v{aW_}, {S4(sWD)}, s{A} offen {CFG['mpol']}")
        if s_<11: p(f"s_add_u32 s{A}, s{A}, {32*1280}")
    p(f"""s_mul_i32 s{B}, s{HW}, 12288
    s_branch {wr}
    {pl_}:""")
    for g_,h_ in CFG['wb']:
        sk=p.lab("nowb")
        p(f"s_lshl_b32 s{A}, s{sSLOT}, 2\ns_add_u32 s{A}, s{A}, s{HW}\ns_cmp_lg_u32 s{A}, {4*CFG['wbs']+h_}\ns_cbranch_scc1 {sk}")
        if g_!='no': gate(g_)
        p(f"buffer_wbl2 sc1\ns_waitcnt vmcnt(0)\n{sk}:")
    if CFG['dgate']!='no' and not CFG['dw3']:
        if CFG['dtn']: p(f"s_cmp_ge_u32 s{sMI}, 28\ns_cbranch_scc1 {en}")
        gate(CFG['dgate'])
        touch(vTD,sWD,CFG['mpair'])
        if CFG['dtn']: p("s_mov_b64 exec, 63"); touch(vTD2,sWD,0); p("s_mov_b64 exec, -1")
        STAMP('mg')
        if CFG['prof']: p("s_waitcnt vmcnt(0)"); STAMP('mw')
    p(f"""s_branch {en}
    {gu}:
    v_mul_u32_u24 v{vt}, 3072, v{vt}
    v_add_u32 v{aW_}, v{vt}, v{vt+1}
    s_mul_i32 s{A}, s{sG}, 12
    s_add_u32 s{A}, s{A}, s{sMI}
    s_lshl_b32 s{A}, s{A}, 5
    s_mul_i32 s{B}, s{HW}, {5*32*3072}
    s_add_u32 s{A}, s{A}, s{B}""")
    gate(CFG['gstart'])
    STAMP('mg')
    for s_ in range(5):
        for m_ in range(2):
            if 2*s_+m_==CFG['g2nd'][1]: gate(CFG['g2nd'][0]); STAMP('mg2')
            if 2*s_+m_>=CFG['mdep']: p(f"s_waitcnt vmcnt({CFG['mdep']-1})")
            p(f"buffer_load_dwordx4 {vr(D+8*s_+4*m_,4)}, v{aW_}, {S4((sWG,sWU)[m_])}, s{A} offen {CFG['mpol']}")
        if s_<4: p(f"s_add_u32 s{A}, s{A}, {32*3072}")
    p(f"s_mul_i32 s{B}, s{HW}, 12288\n{wr}:\nv_lshl_add_u32 v{vt}, v0, 4, s{B}")
    gate('DONE')
    p("s_waitcnt vmcnt(0)")
    for s_ in range(12): p(f"ds_write_b128 v{vt}, {vr(D+4*s_,4)} offset:{L_MW+s_*1024}")
    p(f"""s_lshl_b32 s{A}, s{HW}, 2
    s_add_u32 s{A}, s{A}, {F_MW}
    v_mov_b32 v{vt}, s{A}
    ds_write_b32 v{vt}, v{vt}
    s_waitcnt lgkmcnt(0)""")
    STAMP('mw')
    p(f"{en}:")
def top8(R,K2,K1,y,tt):
    def clean(chs):
        seq=[]
        for (x,y_,t_) in chs:
            seq.append([f"v_max_u32_dpp v{y_}, v{x}, v{x} row_shl:4 row_mask:0xf bank_mask:0x5",
                        f"v_min_u32_dpp v{y_}, v{x}, v{x} row_shr:4 row_mask:0xf bank_mask:0xa",
                        None,
                        f"v_mov_b32_dpp v{t_}, v{y_} quad_perm:[2,3,0,1] row_mask:0xf bank_mask:0xf",
                        f"v_med3_u32 v{y_}, v{y_}, v{t_}, v{K2}",
                        None,
                        f"v_mov_b32_dpp v{t_}, v{y_} quad_perm:[1,0,3,2] row_mask:0xf bank_mask:0xf",
                        f"v_med3_u32 v{x}, v{y_}, v{t_}, v{K1}"])
        n=len(chs)
        p(f"s_nop {2-n}")
        for i in range(8):
            if seq[0][i] is None: p(f"s_nop {2-n}")
            else:
                for c in seq: p(c[i])
                if i==0 and n==1: p("s_nop 1")
                elif i==0: p("s_nop 0")
    dp="row_mask:0xf bank_mask:0xf"
    p(f"v_max_u32_dpp v{R}, v{R+2}, v{R} row_half_mirror {dp}\nv_max_u32_dpp v{R+4}, v{R+6}, v{R+4} row_half_mirror {dp}")
    clean([(R,y,tt),(R+4,y+1,tt+1)])
    p(f"s_nop 1\nv_max_u32_dpp v{R}, v{R+4}, v{R} row_half_mirror {dp}")
    clean([(R,y,tt)])
    p(f"s_nop 1\nv_max_u32_dpp v{R}, v{R}, v{R} row_mirror {dp}")
    clean([(R,y,tt)])
    for msk,sw in ((0xa,16),(0xc,32)):
        p(f"""s_nop 1
        v_mov_b32_dpp v{R}, v{R} row_half_mirror row_mask:{hex(msk)} bank_mask:0xf
        v_mov_b32 v{tt}, v{R}
        s_nop 1
        v_permlane{sw}_swap_b32 v{R}, v{tt}
        s_nop 0
        v_max_u32 v{R}, v{R}, v{tt}""")
        clean([(R,y,tt)])
def moe():
    t=vT; A=sT+7; B=sT+8; C=sT+17; sTHR=sT+14; sKQ=sT+3
    R=12; K2=20; K1=21; aC=22; AW=108
    BL=160
    p(f"""s_cmp_ge_u32 s{sMI}, 17
    s_cbranch_scc1 L_plain
    v_lshrrev_b32 v{t}, 3, v0
    v_and_b32 v{t+1}, 7, v0
    v_lshlrev_b32 v{t+1}, 3, v{t+1}
    v_lshl_add_u32 v{aC}, v{t}, 7, v{t+1}
    s_mov_b32 s{B}, {CA}""")
    ld="\n".join(f"buffer_load_dwordx2 {vr(R+2*i,2)}, v{aC}, {S4(sWS)}, s{B} offen offset:{i*1024} sc1" for i in range(4))
    aMF=4; aMW=5
    def getw():
        lds_wait(AW-aMF,t+10 if False else AW,C,'eq',0,0)
        STAMP('mwr')
        for s_ in range(12):
            for rd in range(2): p(f"ds_read_b64_tr_b16 {vr(AW+4*s_+2*rd,2)}, v{AW-aMW} offset:{L_MW+s_*1024+rd*512}")
    p(f"""s_cmp_lg_u32 s{sWAVE}, 0
    s_cbranch_scc1 L_nocal
    {ld}
    L_nocal:
    v_bfe_i32 v{K2}, v0, 1, 1
    v_bfe_i32 v{K1}, v0, 0, 1
    v_not_b32 v{K2}, v{K2}
    v_not_b32 v{K1}, v{K1}
    s_add_u32 s{sKQ}, s{sWAVE}, {CFG['kqr']}
    s_and_b32 s{sKQ}, s{sKQ}, 3
    s_lshl_b32 s{A}, s{sKQ}, 2
    s_add_u32 s{A}, s{A}, {F_MW}
    v_mov_b32 v{AW-aMF}, s{A}
    s_mul_i32 s{A}, s{sKQ}, 12288
    v_lshl_add_u32 v{AW-aMW}, v0, 3, s{A}
    v_and_b32 v{t}, 7, v0
    v_lshlrev_b32 v{t}, 2, v{t}
    v_add_u32 v{AW-6}, {L_TOP}, v{t}
    {f"v_add_u32 v{AW-9}, {L_TOP}, v{t}" if CFG['ldma'] else ""}
    s_cmp_ge_u32 s{sMI}, 12
    s_cbranch_scc1 L_now""")
    if CFG['ldma']:
        p(f"""v_lshrrev_b32 v{t}, 3, v0
        v_lshlrev_b32 v{t}, 2, v{t}
        v_add_u32 v{AW-9}, {L_TOP}, v{t}
        v_and_b32 v{AW-7}, 7, v0
        v_lshrrev_b32 v{t}, 4, v0
        v_lshlrev_b32 v{t}, 4, v{t}
        v_lshl_add_u32 v{t}, v{AW-7}, 7, v{t}
        s_mul_i32 s{A}, s{sWAVE}, 3072
        s_add_u32 s{A}, s{A}, {L_RED+8192}
        v_add_u32 v{AW-8}, s{A}, v{t}
        v_lshlrev_b32 v{AW-7}, 4, v{AW-7}
        s_mov_b32 m0, s{A}""")
    getw()
    lp=p.lab("ca"); ok=p.lab("caok"); md=p.lab("cam")
    p(f"""L_now:
    s_cmp_lg_u32 s{sWAVE}, 0
    s_cbranch_scc1 L_topw
    s_mov_b32 s{C}, {SPIN}
    s_branch {md}
    {lp}:
    {ld}
    {md}:
    s_waitcnt vmcnt(0)
    v_xor_b32 v{t}, v{R+1}, v{R+3}
    v_xor_b32 v{t+1}, v{R+5}, v{R+7}
    v_xor_b32 v{R+1}, s{sTAG}, v{R+1}
    v_xor_b32 v{R+5}, s{sTAG}, v{R+5}
    v_or3_b32 v{t}, v{t}, v{t+1}, v{R+1}
    v_or_b32 v{t}, v{t}, v{R+5}
    v_cmp_ne_u32 vcc, 0, v{t}
    s_nop 0
    s_cbranch_vccz {ok}""")
    spin(C,lp,ok,CFG['casl'])
    if CFG['dasl']: p(f"s_cmp_lt_u32 s{sMI}, 12\ns_cbranch_scc1 {lp}\ns_sleep {CFG['dasl']}")
    p(f"s_branch {lp}\n{ok}:")
    STAMP('car'); COUNT('ncar',C,SPIN)
    top8(R,K2,K1,t,t+2)
    p(f"ds_write_b32 v{AW-6}, v{R}")
    if CFG['ldma']: p(f"s_cmp_ge_u32 s{sMI}, 12\ns_cbranch_scc1 L_top\nL_topw:\ns_waitcnt vmcnt(0)")
    else: p(f"s_branch L_top\nL_topw:\ns_waitcnt vmcnt(0)")
    lds_wait(AW-9 if CFG['ldma'] else AW-6,R,C,'eq',-1,0)
    TOK=t+1; aR=t+2
    def deferred(tag):
        allrows=CFG['odf']>=(12 if tag[0]=='g' else 17 if tag=='d' else 99)
        p(f"""v_cmp_gt_u32 vcc, s{sTHR}, v{KEY}
        s_nop 0
        {'s_orn2_b64' if allrows else 's_and_b64'} exec, vcc, s[{sCAND}:{sCAND+1}]
        s_cbranch_scc0 L_nd{tag}""")
        out_store()
        p(f"L_nd{tag}:\ns_mov_b64 exec, -1")
    XM="s_mov_b32 exec_lo, 0x00ff00ff\ns_mov_b32 exec_hi, 0x00ff00ff" if CFG['xm'] else "s_mov_b64 exec, -1"
    if CFG['ldma']:
        lp=p.lab("gl"); ok=p.lab("glok")
        p(f"""s_cmp_ge_u32 s{sMI}, 12
        s_cbranch_scc1 L_top""")
        STAMP('top')
        p(f"""v_bfe_u32 v{TOK}, v{R}, 9, 5
        v_and_b32 v{aR}, 7, v{R}
        v_xor_b32 v{TOK}, 31, v{TOK}
        s_mul_i32 s{A}, s{sKQ}, 320
        v_lshl_add_u32 v{aR}, v{TOK}, 3, v{aR}
        s_add_u32 s{A}, s{A}, {CAND}
        v_mov_b32 v{t}, 2560
        s_sub_u32 s{B}, s{A}, 896
        v_mad_u32_u24 v{aR}, v{aR}, v{t}, v{AW-7}
        s_sub_u32 s{sT+4}, s{A}, 1792
        s_mov_b32 s{C}, {SPIN}
        {lp}:
        s_mov_b64 exec, -1
        buffer_load_dwordx4 v{aR}, {S4(sWS)}, s{A} offen sc1 lds
        buffer_load_dwordx4 v{aR}, {S4(sWS)}, s{B} offen offset:1024 sc1 lds
        s_mov_b32 exec_lo, 0x0f0f0f0f
        s_mov_b32 exec_hi, 0x0f0f0f0f
        buffer_load_dwordx4 v{aR}, {S4(sWS)}, s{sT+4} offen offset:2048 sc1 lds
        s_mov_b64 exec, -1
        v_readlane_b32 s{sTHR}, v{R}, 56
        s_lshl_b32 s{sT+5}, s{sWAVE}, 11
        s_add_u32 s{sT+5}, s{sT+5}, {L_RED}
        v_lshl_add_u32 v{t+3}, v0, 4, s{sT+5}
        s_mov_b32 exec_lo, 0x00ff00ff
        s_mov_b32 exec_hi, 0x00ff00ff""")
        for i in range(5):
            if i%2==0: p(f"s_waitcnt vmcnt({2-i//2})")
            p(f"ds_read_b128 {vr(BL+4*i,4)}, v{AW-8} offset:{(i>>1)*1024+(i&1)*64}")
        if CFG['asp']:
            G=20; U=24
            p("s_mov_b64 exec, -1")
            for s_ in range(5):
                p(f"s_waitcnt lgkmcnt({4-s_})")
                for m_,a_ in ((0,G),(1,U)):
                    p(f"v_mfma_f32_16x16x32_bf16 {vr(a_,4)}, {vr(AW+8*s_+4*m_,4)}, {vr(BL+4*s_,4)}, {vr(a_,4) if s_ else 0}")
                    if m_==0: p(f"v_max3_u32 v{t+4}, v{BL+4*s_}, v{BL+4*s_+2}, {'v%d'%(t+4) if s_ else 0}")
            p(f"""v_cmp_eq_u32 vcc, -1, v{t+4}
            s_nop 0
            s_and_b32 vcc_lo, vcc_lo, 0x00ff00ff
            s_and_b32 vcc_hi, vcc_hi, 0x00ff00ff
            s_or_b32 s{sT+5}, vcc_lo, vcc_hi
            s_cbranch_scc0 L_glok""")
        else: p(f"""s_waitcnt lgkmcnt(2)
        v_max3_u32 v{t+4}, v{BL}, v{BL+2}, v{BL+4}
        v_max3_u32 v{t+5}, v{BL+6}, v{BL+8}, v{BL+10}
        s_waitcnt lgkmcnt(0)
        v_max3_u32 v{t+4}, v{BL+12}, v{BL+14}, v{t+4}
        v_max3_u32 v{t+5}, v{BL+16}, v{BL+18}, v{t+5}
        v_max_u32 v{t+4}, v{t+4}, v{t+5}
        v_cmp_eq_u32 vcc, -1, v{t+4}
        s_nop 0
        s_cbranch_vccz L_glok""")
        spin(C,lp,"L_glok")
        p(f"s_branch {lp}")
    p("L_top:")
    STAMP('top')
    p(f"""v_bfe_u32 v{TOK}, v{R}, 3, 11
    v_sub_u32 v{TOK}, 2047, v{TOK}
    v_lshrrev_b32 v{t}, 6, v{TOK}
    v_and_b32 v{aR}, 7, v{R}
    v_lshl_add_u32 v{aR}, v{t}, 3, v{aR}
    v_mul_u32_u24 v{aR}, 2560, v{aR}
    v_lshrrev_b32 v{t}, 4, v0
    v_readlane_b32 s{sTHR}, v{R}, 7
    {"" if CFG['ldma'] else f"s_cmp_ge_u32 s{sMI}, 12"}
    {"s_branch" if CFG['ldma'] else "s_cbranch_scc1"} L_down""")
    if not CFG['ldma']: l_old(t,A,B,C,BL,aR,sKQ,sTHR,XM)
    else: p("L_glok:")
    STAMP('lr'); COUNT('nlr',C,SPIN)
    SP=CFG['asp'] and CFG['ldma']
    if CFG['xm'] and not SP: p("s_mov_b64 exec, -1")
    G=20; U=24; X=28
    for s_ in range(0 if SP else 5):
        for m_,a_ in ((0,G),(1,U)):
            p(f"v_mfma_f32_16x16x32_bf16 {vr(a_,4)}, {vr(AW+8*s_+4*m_,4)}, {vr(BL+4*s_,4)}, {vr(a_,4) if s_ else 0}")
    w0=p.lab("guw0")
    def hint(sa,va,wv=None):
        sk=p.lab("nohint")
        if wv is not None: p(f"s_cmp_lg_u32 s{sWAVE}, {wv}\ns_cbranch_scc1 {sk}")
        p(f"""s_lshl_b32 s{sa}, s{sG}, 5
        s_add_u32 s{sa}, s{sa}, s{sMI}
        s_lshl_b32 s{sa}, s{sa}, 2
        s_add_u32 s{sa}, s{sa}, {AH}
        v_mov_b32 v{va}, 0
        v_mov_b32 v{va+1}, s{sTAG}
        s_mov_b64 exec, 1""")
        dual([f"buffer_store_dword v{va+1}, v{va}, {S4(sWS)}, s{sa} offen"])
        p(f"s_mov_b64 exec, -1\n{sk}:")
    p(f"""s_cmp_eq_u32 s{sWAVE}, 0
    s_cbranch_scc1 {w0}
    {"" if SP else "s_nop 5"}
    ds_write_b128 v{t+3}, {vr(G,4)}
    ds_write_b128 v{t+3}, {vr(U,4)} offset:1024""")
    if CFG['ahp']==4: hint(B,60,2)
    p("s_waitcnt lgkmcnt(0)\ns_barrier")
    if CFG['ahp']==3: hint(B,60,2)
    if CFG['ldma']:
        nt=p.lab("noth")
        p(f"""s_xor_b32 s{B}, s{sWAVE}, 1
        s_or_b32 s{B}, s{sMI}, s{B}
        s_cbranch_scc1 {nt}
        v_mov_b32 v{t+4}, s{sTHR}
        v_mov_b32 v{t+5}, s{sTAG}
        s_lshl_b32 s{B}, s{sG}, 7
        s_add_u32 s{B}, s{B}, {TH}
        v_mov_b32 v{t+6}, 0
        s_mov_b64 exec, 1
        buffer_store_dwordx2 v[{t+4}:{t+5}], v{t+6}, {S4(sWS)}, s{B} offen sc1
        s_mov_b64 exec, -1
        {nt}:""")
    if CFG['ob2']: p("s_barrier")
    deferred('g1')
    END()
    p(f"""{w0}:
    s_mul_i32 s{A}, s{sG}, 12
    s_add_u32 s{A}, s{A}, s{sMI}
    s_lshl_b32 s{A}, s{A}, 8
    s_add_u32 s{A}, s{A}, {ACT}
    v_and_b32 v{t+4}, 7, v0
    v_lshlrev_b32 v{t+4}, 4, v{t+4}
    v_lshrrev_b32 v{t+5}, 5, v0
    v_lshl_add_u32 v{t+4}, v{t+5}, 7, v{t+4}
    v_bfe_u32 v{t+5}, v0, 4, 1
    v_lshl_add_u32 v{t+4}, v{t+5}, 3, v{t+4}
    s_barrier""")
    STAMP('gb')
    for w_ in range(1,4):
        for m_ in range(2): p(f"ds_read_b128 {vr(X+8*(w_-1)+4*m_,4)}, v{t+3} offset:{w_*2048+m_*1024}")
    p(f"s_mov_b32 s{B}, {hex(f2u(-math.log2(math.e)))}")
    for w_ in range(3):
        p(f"s_waitcnt lgkmcnt({4-2*w_})")
        for k in range(4): p(f"v_pk_add_f32 {vr(G+2*k,2)}, {vr(G+2*k,2)}, {vr(X+8*w_+2*k,2)}")
    p(f"""v_cvt_pk_bf16_f32 v{X}, v{G}, v{G+1}
    v_cvt_pk_bf16_f32 v{X+1}, v{G+2}, v{G+3}
    v_cvt_pk_bf16_f32 v{X+2}, v{U}, v{U+1}
    v_cvt_pk_bf16_f32 v{X+3}, v{U+2}, v{U+3}""")
    for k in range(4): p(f"v_lshlrev_b32 v{G+2*k}, 16, v{X+k}\nv_and_b32 v{G+2*k+1}, 0xffff0000, v{X+k}")
    for k in range(4): p(f"v_mul_f32 v{X+k}, s{B}, v{G+k}")
    for k in range(4): p(f"v_exp_f32 v{X+k}, v{X+k}")
    if CFG['ahp']==2: hint(B,60)
    for k in range(4): p(f"v_add_f32 v{X+k}, 1.0, v{X+k}")
    for k in range(4): p(f"v_rcp_f32 v{X+k}, v{X+k}")
    for k in range(4): p(f"v_mul_f32 v{G+k}, v{G+k}, v{X+k}")
    if CFG['ahp']==1: hint(B,60)
    p(f"v_cvt_pk_bf16_f32 v{X}, v{G}, v{G+1}\nv_cvt_pk_bf16_f32 v{X+1}, v{G+2}, v{G+3}")
    for k in range(2): p(f"v_lshlrev_b32 v{G+2*k}, 16, v{X+k}\nv_and_b32 v{G+2*k+1}, 0xffff0000, v{X+k}")
    p(f"""v_pk_mul_f32 {vr(G,2)}, {vr(G,2)}, {vr(U,2)}
    v_pk_mul_f32 {vr(G+2,2)}, {vr(G+2,2)}, {vr(U+2,2)}
    v_cvt_pk_bf16_f32 v{X}, v{G}, v{G+1}
    v_cvt_pk_bf16_f32 v{X+1}, v{G+2}, v{G+3}
    s_mov_b32 exec_lo, 0x00ff00ff
    s_mov_b32 exec_hi, 0x00ff00ff
    buffer_store_dwordx2 {vr(X,2)}, v{t+4}, {S4(sWS)}, s{A} offen sc1""")
    if CFG['ahint'] and CFG['ahp']==0:
        p(f"""s_lshl_b32 s{A}, s{sG}, 5
        s_add_u32 s{A}, s{A}, s{sMI}
        s_lshl_b32 s{A}, s{A}, 2
        s_add_u32 s{A}, s{A}, {AH}
        v_mov_b32 v{t+4}, 0
        v_mov_b32 v{t+5}, s{sTAG}
        s_mov_b64 exec, 1""")
        dual([f"buffer_store_dword v{t+5}, v{t+4}, {S4(sWS)}, s{A} offen"])
    p("s_mov_b64 exec, -1")
    STAMP('act')
    if CFG['ob2']: p("s_barrier")
    deferred('g0')
    END()
    HL=20; Y=24; X=28; SG=t+8; aO2=t+9
    p(f"""L_down:
    v_lshl_add_u32 v{aR}, v{t}, 3, v{aR}
    v_mul_u32_u24 v{aO2}, 1280, v{TOK}
    v_lshl_add_u32 v{aO2}, v{t}, 3, v{aO2}
    v_and_b32 v{t+4}, 7, v0
    v_lshlrev_b32 v{t+4}, 4, v{t+4}
    v_lshl_add_u32 v{t+4}, v{t}, 7, v{t+4}
    {f"v_bfe_u32 v{t+5}, v0, 3, 1" if CFG['a2'] else ""}
    {f"v_lshl_add_u32 v{t+4}, v{t+5}, 9, v{t+4}" if CFG['a2'] else ""}
    s_mul_i32 s{sT+1}, s{sG}, 5
    s_add_u32 s{sT+1}, s{sT+1}, s{sMI}
    s_sub_u32 s{sT+1}, s{sT+1}, 12
    s_lshl_b32 s{sT+1}, s{sT+1}, 5
    s_add_u32 s{sT+2}, s{sT+1}, {CAND}
    s_mul_i32 s{A}, s{sKQ}, 6144
    s_add_u32 s{A}, s{A}, {ACT}
    s_add_u32 s{B}, s{A}, 4096""")
    ldh=f"buffer_load_dwordx2 {vr(HL,2)}, v{aR}, {S4(sWS)}, s{sT+2} offen sc1\nbuffer_load_dwordx2 {vr(HL+2,2)}, v{aR}, {S4(sWS)}, s{sT+2} offen offset:1280 sc1"
    if CFG['hll']: p(f"s_cmp_lg_u32 s{sWAVE}, 0\ns_cbranch_scc1 L_nohl\n{XM}\n{ldh}\ns_mov_b64 exec, -1\nL_nohl:")
    else: p(ldh)
    deferred('d')
    p(f"""v_ashrrev_i32 v{SG}, 31, v{R}
    v_not_b32 v{SG}, v{SG}
    v_or_b32 v{SG}, 0x80000000, v{SG}
    v_xor_b32 v{SG}, v{SG}, v{R}
    v_and_b32 v{SG}, 0xffff0000, v{SG}
    v_mul_f32 v{SG}, {hex(f2u(-math.log2(math.e)))}, v{SG}
    v_exp_f32 v{SG}, v{SG}
    s_lshl_b32 s{C}, s{sWAVE}, 10
    v_add_f32 v{SG}, 1.0, v{SG}
    v_rcp_f32 v{SG}, v{SG}
    s_add_u32 s{C}, s{C}, {L_RED}
    v_lshl_add_u32 v{t+3}, v0, 4, s{C}""")
    bf16r(SG,SG)
    lp=p.lab("hl"); ok=p.lab("hlok"); md=p.lab("hlm")
    if not CFG['hll']: p(f"""s_mov_b32 s{C}, {SPIN}
    s_branch {md}
    {lp}:
    {ldh}
    {md}:
    s_waitcnt vmcnt(0)
    v_max_u32 v{t+5}, v{HL}, v{HL+2}
    v_cmp_eq_u32 vcc, -1, v{t+5}
    s_nop 0
    {'s_branch' if CFG['xp'] else 's_cbranch_vccz'} {ok}""")
    if not CFG['hll']:
        spin(C,lp,ok)
        p(f"s_branch {lp}\n{ok}:")
    getw()
    ld="\n".join([f"buffer_load_dwordx4 {vr(BL+4*i,4)}, v{t+4}, {S4(sWS)}, s{A if i<8 else B} offen offset:{(i%8)*512} sc1" for i in range(12)])
    if CFG['ahint']:
        p(f"""v_min_u32 v{t+6}, {CFG['ahint']-1}, v0
        v_lshlrev_b32 v{t+6}, 2, v{t+6}
        s_lshl_b32 s{sT+4}, s{sG}, 7
        s_add_u32 s{sT+4}, s{sT+4}, {AH}""")
        flag_poll(t+6,t+5,sT+4,C)
        STAMP('ah')
    lp=p.lab("al"); ok=p.lab("alok")
    if CFG['a2']:
        Y2=BL+24
        ld="\n".join([f"buffer_load_dwordx4 {vr(BL+4*i,4)}, v{t+4}, {S4(sWS)}, s{A if i<4 else B} offen offset:{(i%4)*1024} sc1" for i in range(6)])
        if CFG['asp']:
            p(f"s_mov_b32 s{C}, {SPIN}\n{lp}:\n{ld}\ns_waitcnt lgkmcnt(0)")
            for i in range(6):
                p(f"s_waitcnt vmcnt({5-i})")
                for s_ in (2*i,2*i+1):
                    y=(Y,Y2)[s_&1]
                    p(f"v_mfma_f32_16x16x32_bf16 {vr(y,4)}, {vr(AW+4*s_,4)}, {vr(BL+4*(s_>>1),4)}, {vr(y,4) if s_>1 else 0}")
                    if s_&1==0: p(f"v_max3_u32 v{t+5}, v{BL+4*i}, v{BL+4*i+2}, {'v%d'%(t+5) if i else 0}")
            p(f"""v_cmp_eq_u32 vcc, -1, v{t+5}
            s_nop 0
            s_cbranch_vccz {ok}""")
            spin(C,lp,ok,CFG['acsl'])
            p(f"s_branch {lp}\n{ok}:")
            STAMP('ar'); COUNT('nar',C,SPIN)
            p("s_nop 4")
        else: p(f"""s_mov_b32 s{C}, {SPIN}
        {lp}:
        {ld}
        s_waitcnt vmcnt(3)
        v_max3_u32 v{t+5}, v{BL}, v{BL+2}, v{BL+4}
        v_max3_u32 v{t+6}, v{BL+6}, v{BL+8}, v{BL+10}
        s_waitcnt vmcnt(0)
        v_max3_u32 v{t+5}, v{BL+12}, v{BL+14}, v{t+5}
        v_max3_u32 v{t+6}, v{BL+16}, v{BL+18}, v{t+6}
        v_max3_u32 v{t+5}, v{BL+20}, v{BL+22}, v{t+5}
        v_max_u32 v{t+5}, v{t+5}, v{t+6}
        v_cmp_eq_u32 vcc, -1, v{t+5}
        s_waitcnt lgkmcnt(0)
        s_cbranch_vccz {ok}""")
        if not CFG['asp']:
            spin(C,lp,ok,CFG['acsl'])
            p(f"s_branch {lp}\n{ok}:")
            STAMP('ar'); COUNT('nar',C,SPIN)
            for s_ in range(12):
                y=(Y,Y2)[s_&1]
                p(f"v_mfma_f32_16x16x32_bf16 {vr(y,4)}, {vr(AW+4*s_,4)}, {vr(BL+4*(s_>>1),4)}, {vr(y,4) if s_>1 else 0}")
            p("s_nop 7")
        for k in range(4): p(f"v_add_f32_dpp v{Y+k}, v{Y2+k}, v{Y+k} row_ror:8 row_mask:0xf bank_mask:0xf")
    else: act_old(t,A,B,C,BL,AW,Y,XM,ld,lp,ok)
    w0=p.lab("dnw0")
    p(f"""s_cmp_eq_u32 s{sWAVE}, 0
    s_cbranch_scc1 {w0}
    {"" if CFG['a2'] else "s_nop 5"}
    ds_write_b128 v{t+3}, {vr(Y,4)}
    s_waitcnt lgkmcnt(0)
    s_barrier""")
    END()
    p(f"{w0}:")
    if CFG['hll']:
        p(f"""{XM}
        v_max_u32 v{t+5}, v{HL}, v{HL+2}
        v_cmp_eq_u32 vcc, -1, v{t+5}
        s_mov_b32 s{C}, {SPIN}
        s_cbranch_vccnz L_hlw
        L_hlr:
        s_mov_b64 exec, -1""")
        COLD.append(f"""L_hlw:
        s_sub_u32 s{C}, s{C}, 1
        s_cbranch_scc1 L_hlr
        {ldh}
        s_waitcnt vmcnt(0)
        v_max_u32 v{t+5}, v{HL}, v{HL+2}
        v_cmp_eq_u32 vcc, -1, v{t+5}
        s_nop 0
        s_cbranch_vccnz L_hlw
        s_branch L_hlr""")
    p(f"""v_lshlrev_b32 v{X+12}, 16, v{HL}
    v_and_b32 v{X+13}, 0xffff0000, v{HL}
    v_lshlrev_b32 v{X+14}, 16, v{HL+1}
    v_and_b32 v{X+15}, 0xffff0000, v{HL+1}
    v_lshlrev_b32 v{X+16}, 16, v{HL+2}
    v_and_b32 v{X+17}, 0xffff0000, v{HL+2}
    v_lshlrev_b32 v{X+18}, 16, v{HL+3}
    v_and_b32 v{X+19}, 0xffff0000, v{HL+3}
    s_barrier""")
    STAMP('db')
    for w_ in range(1,4): p(f"ds_read_b128 {vr(X+4*(w_-1),4)}, v{t+3} offset:{w_*1024}")
    for w_ in range(3):
        p(f"s_waitcnt lgkmcnt({2-w_})")
        for k in range(2): p(f"v_pk_add_f32 {vr(Y+2*k,2)}, {vr(Y+2*k,2)}, {vr(X+4*w_+2*k,2)}")
    def rnd():
        p(f"v_cvt_pk_bf16_f32 v{X}, v{Y}, v{Y+1}\nv_cvt_pk_bf16_f32 v{X+1}, v{Y+2}, v{Y+3}")
    def unp():
        for k in range(2): p(f"v_lshlrev_b32 v{Y+2*k}, 16, v{X+k}\nv_and_b32 v{Y+2*k+1}, 0xffff0000, v{X+k}")
    rnd(); unp()
    for k in range(4): p(f"v_mul_f32 v{Y+k}, v{SG}, v{Y+k}")
    rnd(); unp()
    for k in range(2): p(f"v_pk_add_f32 {vr(Y+2*k,2)}, {vr(Y+2*k,2)}, {vr(X+12+2*k,2)}")
    rnd(); unp()
    for k in range(2): p(f"v_pk_add_f32 {vr(Y+2*k,2)}, {vr(Y+2*k,2)}, {vr(X+16+2*k,2)}")
    rnd()
    p(f"""s_mov_b32 exec_lo, 0x00ff00ff
    s_mov_b32 exec_hi, 0x00ff00ff
    buffer_store_dwordx2 {vr(X,2)}, v{aO2}, {S4(sOUT)}, s{sT+1} offen {CFG['fpol']}""")
    STAMP('fin')
    END()
    lp=p.lab("th"); ok=p.lab("thok")
    p("L_plain:")
    if CFG['cpre']:
        sk=p.lab("nocp")
        p(f"""s_sub_u32 s{A}, s{sMI}, {CFG['cpb']}
        s_lshl_b32 s{A}, s{A}, 2
        s_add_u32 s{A}, s{A}, s{sWAVE}
        s_cmp_ge_u32 s{A}, 32
        s_cbranch_scc1 {sk}""")
        if CFG['cpre']==1:
            p(f"s_lshl_b32 s{B}, s{A}, 7\ns_add_u32 s{B}, s{B}, {CA+4}\nv_mov_b32 v{t}, 0")
            flag_poll(t,t+1,B,C,sleep=CFG['cpsl'])
        l2=p.lab("cp"); o2=p.lab("cpok")
        p(f"""s_mul_i32 s{B}, s{A}, 20480
        s_add_u32 s{B}, s{B}, {CAND+36}
        v_lshrrev_b32 v{t}, 5, v0
        v_mul_u32_u24 v{t}, 1280, v{t}
        v_mad_u32_u24 v{t}, v0, 40, v{t}
        s_mov_b32 s{C}, 64
        {l2}:
        buffer_load_dword v{t+1}, v{t}, {S4(sWS)}, s{B} offen sc1
        s_waitcnt vmcnt(0)
        v_cmp_eq_u32 vcc, -1, v{t+1}
        s_nop 0
        s_cbranch_vccz {o2}""")
        spin(C,l2,o2,CFG['cpsl'])
        p(f"s_branch {l2}\n{o2}:")
        STAMP('cp')
        p(f"{sk}:")
    p(f"""s_lshl_b32 s{B}, s{sG}, 7
    s_add_u32 s{B}, s{B}, {TH}
    v_mov_b32 v{t}, 0
    s_mov_b32 s{C}, {SPIN}
    {lp}:
    s_sleep 16
    buffer_load_dwordx2 v[{t+2}:{t+3}], v{t}, {S4(sWS)}, s{B} offen sc1
    s_waitcnt vmcnt(0)
    v_cmp_ne_u32 vcc, s{sTAG}, v{t+3}
    s_nop 0
    s_cbranch_vccz {ok}""")
    spin(C,lp,ok)
    p(f"""s_branch {lp}
    {ok}:
    v_readfirstlane_b32 s{sTHR}, v{t+2}
    s_nop 1""")
    deferred('p')
    STAMP('fin')

def l_old(t,A,B,C,BL,aR,sKQ,sTHR,XM):
    p(f"""v_lshl_add_u32 v{aR}, v{t}, 4, v{aR}
    s_mul_i32 s{A}, s{sKQ}, 320
    s_add_u32 s{A}, s{A}, {CAND}""")
    ld="\n".join(f"buffer_load_dwordx4 {vr(BL+4*i,4)}, v{aR}, {S4(sWS)}, s{A} offen offset:{i*64} sc1" for i in range(5))
    lp=p.lab("gl"); ok=p.lab("glok"); md=p.lab("glm"); nt=p.lab("noth")
    if CFG['xm']: p(XM)
    p(ld)
    p(f"""s_or_b32 s{B}, s{sMI}, s{sWAVE}
    s_cbranch_scc1 {nt}
    v_mov_b32 v{t+4}, s{sTHR}
    v_mov_b32 v{t+5}, s{sTAG}
    s_lshl_b32 s{B}, s{sG}, 7
    s_add_u32 s{B}, s{B}, {TH}
    v_mov_b32 v{t+6}, 0
    s_mov_b64 exec, 1
    buffer_store_dwordx2 v[{t+4}:{t+5}], v{t+6}, {S4(sWS)}, s{B} offen sc1
    {nt}:
    s_mov_b64 exec, -1
    s_lshl_b32 s{B}, s{sWAVE}, 11
    s_add_u32 s{B}, s{B}, {L_RED}
    v_lshl_add_u32 v{t+3}, v0, 4, s{B}
    {XM}
    s_mov_b32 s{C}, {SPIN}
    s_branch {md}
    {lp}:
    {ld}
    {md}:
    s_waitcnt vmcnt(0) lgkmcnt(0)
    v_max3_u32 v{t+4}, v{BL}, v{BL+2}, v{BL+4}
    v_max3_u32 v{t+5}, v{BL+6}, v{BL+8}, v{BL+10}
    v_max3_u32 v{t+4}, v{BL+12}, v{BL+14}, v{t+4}
    v_max3_u32 v{t+5}, v{BL+16}, v{BL+18}, v{t+5}
    v_max_u32 v{t+4}, v{t+4}, v{t+5}
    v_cmp_eq_u32 vcc, -1, v{t+4}
    s_nop 0
    {'s_branch' if 'nocand' in CFG['xp'] else 's_cbranch_vccz'} {ok}""")
    spin(C,lp,ok)
    p(f"s_branch {lp}\n{ok}:")
def act_old(t,A,B,C,BL,AW,Y,XM,ld,lp,ok):
    p(f"""{XM}
    s_mov_b32 s{C}, {SPIN}
    {lp}:
    {ld}
    s_waitcnt vmcnt(8)
    v_max3_u32 v{t+5}, v{BL}, v{BL+2}, v{BL+4}
    v_max3_u32 v{t+6}, v{BL+6}, v{BL+8}, v{BL+10}
    v_max3_u32 v{t+5}, v{BL+12}, v{BL+14}, v{t+5}""")
    for i in range(4,12):
        if i%4==0: p(f"s_waitcnt vmcnt({8-i})")
        p(f"v_max3_u32 v{t+5+(i&1)}, v{BL+4*i}, v{BL+4*i+2}, v{t+5+(i&1)}")
    p(f"""v_max_u32 v{t+5}, v{t+5}, v{t+6}
    v_cmp_eq_u32 vcc, -1, v{t+5}
    s_waitcnt lgkmcnt(0)
    s_cbranch_vccz {ok}""")
    spin(C,lp,ok,CFG['acsl'])
    p(f"s_branch {lp}\n{ok}:")
    STAMP('ar'); COUNT('nar',C,SPIN)
    if CFG['xm']: p("s_mov_b64 exec, -1")
    for s_ in range(12): p(f"v_mfma_f32_16x16x32_bf16 {vr(Y,4)}, {vr(AW+4*s_,4)}, {vr(BL+4*s_,4)}, {vr(Y,4) if s_ else 0}")

def build():
    prologue()
    steps=loader()
    helperA(steps)
    p("s_branch L_mw")
    helperB(steps)
    p("L_mw:")
    moe_weights()
    END()
    if CFG['lay']: p(PG)
    p("L_comp:")
    if CFG['prio']: p(f"s_setprio {CFG['prio']}")
    p("s_waitcnt lgkmcnt(0)")
    STAMP('start')
    prologue2(1)
    if CFG['cpf']: code_pf()
    if CFG['cpa']==2: cp_rest(sT+18); p("s_mov_b64 exec, -1")
    if CFG['tlb']==1:
        for k in range(12):
            p(f"s_mov_b32 s{sT+18}, {k*0x200000+0x1000}\ns_load_dword s100, s[{sWS}:{sWS+1}], s{sT+18}")
    if CFG['tlb']==2:
        p(f"v_lshlrev_b32 v228, 19, v0\nv_min_u32 v228, 0x1780000, v228\nbuffer_load_dword v229, v228, {S4(sWS)}, 0 offen")
    srd(((sX,2621440),))
    if CFG['hclr']: assert CFG['clr']==0; CFG['clate']=9
    if CFG['clr']==0 and CFG['clate']==0: clears(0); clears(1)
    STAMP('c1')
    att_setup()
    STAMP('c2')
    if CFG['clr']==0 and CFG['clate']==1: clears(0); clears(1)
    gemm_setup()
    STAMP('c3')
    if CFG['clr']: clears(0)
    if CFG['clr']==0 and CFG['clate']==2: clears(0); clears(1)
    STAMP('c4')
    p("s_waitcnt lgkmcnt(0)")
    STAMP('c5')
    mktag()
    p(f"""    s_cmp_eq_u32 s{sLC}, 15
    s_cbranch_scc1 L_gS
    s_cmp_eq_u32 s{sTY}, 2
    s_cbranch_scc1 L_gV""")
    if CFG['lay']:
        p("s_branch L_gT")
        n0=len(p.L)
        p(PG)
        if CFG['pade']: p("L_padT:\ns_branch L_comp")
        p("L_gT:"); gemm_loop('T'); gemm_epi('T'); p("s_branch L_att")
        n1=len(p.L)
        p("L_gS:"); idle_gemm(); p("s_branch L_att")
        COLD.insert(0,"\n".join(p.L[n1:])); del p.L[n1:]
        if CFG['pade']: p("L_padV:\ns_branch L_comp")
        p("L_gV:"); gemm_loop('V'); gemm_epi('V'); p("s_branch L_att")
        G_=p.L[n0:]; del p.L[n0:]
        p("L_att:")
        att_go()
        p.L+=G_
    else:
        gemm_loop('T'); gemm_epi('T'); p("s_branch L_att")
        p("L_gS:"); idle_gemm(); p("s_branch L_att")
        p("L_gV:"); gemm_loop('V'); gemm_epi('V')
        p("L_att:")
        att_go()
    for w in range(4): att_variant(w)
    att_fin()
    wo_main()
    if CFG['stop']<=3:
        p(f"s_and_b64 exec, s[{sCAND}:{sCAND+1}], -1\ns_cbranch_scc0 L_noo2"); out_store(); p("L_noo2:")
    else: moe()
    END()
    att_cold()
    for c in COLD: p(c)
    p("L_exit:\ns_endpgm")
build()
errs=check(p.L)
hdr=f"""; generated by work/k/gen.py (own generator script)
; @launch grid=(256,1,1) block=(512,1,1) lds=163840
.amdgcn_target "amdgcn-amd-amdhsa--gfx950"
.text
.globl {NAME}_kernel
{".p2align 12" if CFG['pal'] else ""}
{f".fill {(CFG['pal']-1)*64}, 4, 0xbf810000" if CFG['pal']>1 else ""}
.p2align 8
.type {NAME}_kernel,@function
{NAME}_kernel:
"""
ftr=f""".section .rodata,"a"
.p2align 6
.amdhsa_kernel {NAME}_kernel
  .amdhsa_next_free_vgpr 256
  .amdhsa_next_free_sgpr 102
  .amdhsa_accum_offset 256
  .amdhsa_group_segment_fixed_size 0
  .amdhsa_kernarg_size 88
  .amdhsa_user_sgpr_count 2
  .amdhsa_user_sgpr_kernarg_segment_ptr 1
  .amdhsa_system_sgpr_workgroup_id_x 1
.end_amdhsa_kernel
"""
import align8
def fmt(L):
    q=P(); q.L=L; return q.text()
if CFG['al8']: print("align8",align8.align(p.L,hdr,ftr,fmt,sys.argv[1]+".tmp.s",CFG['al8']))
if CFG.get('alst'): print(align8.stat(p.L,hdr,ftr,fmt,sys.argv[1]+".tmp.s"))
open(sys.argv[1],"w").write(hdr+p.text()+ftr)

import subprocess
r=subprocess.run(["clang","-x","assembler","-target","amdgcn-amd-amdhsa","-mcpu=gfx950",sys.argv[1],"-o",sys.argv[1]+".co"],capture_output=True,text=True)
if r.returncode: print(r.stderr[:3000]); sys.exit(1)
r=subprocess.run(["python3","cdna_unwritten_srd_check.py",sys.argv[1]+".co"],capture_output=True,text=True)
if r.returncode: print("SRDCHECK:",r.stdout[-3000:],r.stderr[-1000:])
r=subprocess.run("llvm-size -A "+sys.argv[1]+".co | grep text",shell=True,capture_output=True,text=True); print(r.stdout.strip())
if errs:
    import os; os.remove(sys.argv[1]); sys.exit(1)
```

```python
import sys, math
from asmlib import *
NAME="sequential_preLN__sliding_block__moe_arch_mod__prompt"
CFG=dict(cslot=1, pks=4, lay=1, padk=0, pade=0, cpa=1, cpe=8, epf=1, b1p=0, pal=1, ahp=0, fpol='sc1', xdma=1, prm=25, ob2=0, psq=1, ldma=1, asp=1, a2=1, cpre=0, cpsl=2, cpb=17, hsl2=2, ogate=4, honly=0, hsp=0, wpause=0, hdef=-1, hdg='FS', xru=17, xrd=0, ahint=12, ptc='', chint=0, dtn=1, hll=1, xm=1, kqr=0, dasl=0, dth=0, odf=0, mrm=1, g2nd=('O1',10), smx=2, smd=0, hst=0, wgf='M', shf=1, gm='no', gr='G1', tlb=0, rld=0, al8=0, ldp='sc1', ldo='sc1', wsp=1, wla2=7, ogr2=(1,2,2,2,3), orem2=(6,1), wwe2=2, smw=(), smo=(3,6), mtr=(0,10), mth=0, wburst=0, mtg='RL', wts=99, wsplit=1, wnoa=0, hclr=0, cst=(3,3), hsent=0, hkv=0, hgate='G1', hrs=0, osent=1, ogr=(2,3,5,2,3,5), opoll='half', osl=(0,0), oini=10, orem=25, clate=1, oprb=0, odn=1, hstep=6, qpol='', apol='', cpol='', wb=(), wbs=31, ht=0, hpoll=0, hsl=1, wog2=0, hearly=0, stg=6, stb=0, ord='xw,xw,xw,xw,xw,xw,xw,xw,xw,xw', amp=None, wose=2, late1=1, sdef=(1,1,1,1), pt2=8, qpair2=0, nacc=8, sfirst=1, prio=0, smode='dot', sfill=(), acsl=0, casl=0, xp=(), dw3=0, wla=7, wwe=2, dgate='PS', dstart='O1', gstart='WE', mdep=10, ddep=12, qpair=0, mpair=0, wpair=0, xnt=0, wnt=0, tpol2='', wtw='no', mtw='w3', wothr1=4, mb=(6,6), mg=('WOD','PR','PR','O1'), mpf=0, mgate='b3', hsplit=0, cpf=0, npf=(0,)*10, wogs=5, clr=0, wot=(), wtpol='', seqs=None, xpol='nt', wpol='', tpol='', wopol='', mpol='', cal=None, opol='', st=['start','b0|hb0','gend|hb9','E1|hE1','st|halo|clr','fl|g2|wo','fseen|h2','kv','aend','ost'], pt=8, wothr=16, wogate=1, h2sl=1, noh2=0, nowo=0, wos=(0,0,0), sched=(1,2,1,1,1,1,1,0,0,0), dbg=0, stop=99, prof=0, rot=('0055','36094758','05162738'), force_slow=0, noclr=0, pre=2, ldst=0, nomfma=0, nohello=0)
for a in sys.argv[2:]:
    k,v=a.split("="); CFG[k]=eval(v)
QB,KB,VB,KH,VH,OB=[i*0x280000 for i in range(6)]
CAND=0xF00000
PS=0xFA0000
CA=0xFE0000
ACT=0xFE1000
HB=0x1000000
PROF=0x1300000
H1=0x1280000; H2=0x1281000; EPO=0x1282000; TH=0x1283000; AH=0x1284000; CH_=0x1285000
STP=0x1680000; STX=0x1780000
FO=0x1700000; OB2=0x1400000; FL=0x12A0000; FH=0x1740000
L_STG=0; L_KV=10240; L_WO=55296; L_MISC=157696; L_MW=0
L_CS=L_MISC
L_SA=L_MISC+512
L_SR=L_SA+1024
L_MODE=L_SR+512
L_FLG=L_MODE+64
F_G1,F_G2,F_H2,F_STG,F_SCP,F_DONE,F_WOR,F_MW=[L_FLG+4*i for i in (0,1,2,4,8,9,10,12)]
L_SWS=L_FLG+80; F_O1=L_FLG+44; F_WOD=L_FLG+64; F_PR=L_FLG+68; F_WO2=L_FLG+72; F_PS=L_FLG+76; F_FS=L_FLG+84; F_LD=L_FLG+88; F_X=L_FLG+96; F_M=L_FLG+112; F_HR=L_FLG+120; F_RI=L_FLG+124; F_OWN=L_FLG+92
L_KEYS=L_FLG+128
L_CA=L_KEYS+256; L_TOP=L_CA+64
L_RED=L_WO
sX,sW,sWO,sWG,sWU,sWD,sOUT,sWS,sDBG,sWR=[4+4*i for i in range(10)]
sWAVE,sG,sSLOT,sRQ,sHH,sRB,sCT,sMODE,sEP,sTAG=range(44,54)
sT=54
sMI=39
sBK=3
sLO=76
sPROF=80
p=P()
COLD=[]
CALI=lambda: 's_memtime' if CFG['cal'][1]>20000 else 's_memrealtime'
def STAMP(name,w=0):
    if CFG['amp']:
        a=CFG['amp']
        if name=='entry': p(f"s_memrealtime s[{sPROF+8}:{sPROF+9}]")
        for k in (0,1):
            if name==a[k]:
                p(f"{'s_memrealtime' if a[2]=='r' else 's_memtime'} s[{sPROF+2*k}:{sPROF+2*k+1}]")
                if w: p("s_waitcnt lgkmcnt(0)")
    if CFG['cal'] and name in CFG['cal'][0].split('|'):
        p(f"{CALI()} s[{sPROF}:{sPROF+1}]")
        if w: p("s_waitcnt lgkmcnt(0)")
    i=[k for k,n in enumerate(CFG['st']) if name in n.split('|')]
    if CFG['prof'] and i:
        i=i[0]
        p(f"{'s_memrealtime' if CFG['prof']==2 else 's_memtime'} s[{sPROF+2*i}:{sPROF+2*i+1}]")
        if w: p("s_waitcnt lgkmcnt(0)")
def COUNT(name,cnt,full):
    i=[k for k,n in enumerate(CFG['st']) if name in n.split('|')]
    if CFG['prof'] and i:
        r=sPROF+2*i[0]
        p(f"s_waitcnt lgkmcnt(0)\ns_sub_u32 s{r}, {full}, s{cnt}\ns_mul_i32 s{r}, s{r}, 100\ns_add_u32 s{r}, s{r}, s{sPROF}")
def PROFDUMP():
    if not CFG['prof']: return
    p("s_waitcnt vmcnt(0) lgkmcnt(0)")
    p("s_mov_b64 exec, -1")
    for i in range(10): p(f"v_mov_b32 v{2+i}, s{sPROF+2*i}")
    p(f"""s_lshl_b32 s{sT}, s2, 3
    s_add_u32 s{sT}, s{sT}, s{sWAVE}
    s_lshl_b32 s{sT}, s{sT}, 6
    s_add_u32 s{sT}, s{sT}, {PROF}
    v_mov_b32 v1, 0
    s_mov_b64 exec, 1
    buffer_store_dwordx4 v[2:5], v1, s[{sWS}:{sWS+3}], s{sT} offen
    buffer_store_dwordx4 v[6:9], v1, s[{sWS}:{sWS+3}], s{sT} offen offset:16
    s_getpc_b64 s[{sT+2}:{sT+3}]
    v_mov_b32 v12, s{sT+2}
    v_mov_b32 v13, s{sT+3}
    buffer_store_dwordx4 v[10:13], v1, s[{sWS}:{sWS+3}], s{sT} offen offset:32""")
def END():
    PROFDUMP()
    if CFG['amp']:
        a=CFG['amp']
        lp=p.lab("amp"); ok=p.lab("ampok")
        p(f"""s_waitcnt vmcnt(0) lgkmcnt(0)
        s_cmp_eq_u32 s{sPROF+2}, 0
        s_cbranch_scc1 {ok}
        s_cmp_lg_u32 s{sWAVE}, {a[5] if len(a)>5 else 0}
        s_cbranch_scc1 {ok}""")
        if a[4]>=0: p(f"s_cmp_lg_u32 s2, {a[4]}\ns_cbranch_scc1 {ok}")
        p(f"""s_sub_u32 s{sPROF+6}, s{sPROF+2}, s{sPROF}
        s_mul_i32 s{sPROF+6}, s{sPROF+6}, {a[3]}
        s_lshr_b32 s{sPROF+6}, s{sPROF+6}, 4
        s_min_u32 s{sPROF+6}, s{sPROF+6}, 100000
        s_add_u32 s{sPROF+6}, s{sPROF+6}, 3000
        s_mov_b32 s{sPROF+4}, 100000
        {lp}:
        s_sleep 2
        s_memrealtime s[{sPROF+2}:{sPROF+3}]
        s_sub_u32 s{sPROF+4}, s{sPROF+4}, 1
        s_cbranch_scc1 {ok}
        s_waitcnt lgkmcnt(0)
        s_sub_u32 s{sPROF+2}, s{sPROF+2}, s{sPROF+8}
        s_cmp_lt_u32 s{sPROF+2}, s{sPROF+6}
        s_cbranch_scc1 {lp}
        {ok}:""")
    if CFG['cal']:
        lp=p.lab("cal"); ok=p.lab("calok")
        p(f"""s_waitcnt vmcnt(0) lgkmcnt(0)
        s_cmp_eq_u32 s{sPROF}, 0
        s_cbranch_scc1 {ok}
        s_cmp_ge_u32 s{sWAVE}, 4
        s_cbranch_scc1 {ok}
        s_mov_b32 s{sPROF+4}, 100000
        {lp}:
        s_sleep 2
        {CALI()} s[{sPROF+2}:{sPROF+3}]
        s_sub_u32 s{sPROF+4}, s{sPROF+4}, 1
        s_cbranch_scc1 {ok}
        s_waitcnt lgkmcnt(0)
        s_sub_u32 s{sPROF+2}, s{sPROF+2}, s{sPROF}
        s_cmp_lt_u32 s{sPROF+2}, {CFG['cal'][1]}
        s_cbranch_scc1 {lp}
        {ok}:""")
    p("s_endpgm")
S4=lambda r:f"s[{r}:{r+3}]"
SPIN=1<<18

def srd(lst):
    for r,n in lst: p(f"s_mov_b32 s{r+2}, {n}\ns_mov_b32 s{r+3}, 0x20000")
def prologue():
    STAMP('entry')
    p(f"""s_cmp_ge_u32 s2, 256
    s_cbranch_scc1 L_exit
    s_load_dwordx2 s[{sX}:{sX+1}], s[0:1], 0
    s_load_dwordx2 s[{sW}:{sW+1}], s[0:1], 8
    s_load_dwordx2 s[{sWS}:{sWS+1}], s[0:1], 80
    v_lshrrev_b32 v1, 6, v0
    v_and_b32 v0, 63, v0
    v_readfirstlane_b32 s{sWAVE}, v1
    s_and_b32 s{sG}, s2, 7
    s_lshr_b32 s{sSLOT}, s2, 3
    s_lshr_b32 s{sRQ}, s{sG}, 1
    s_and_b32 s{sHH}, s{sG}, 1
    s_and_b32 s{sRB}, s{sSLOT}, 3
    s_lshr_b32 s{sCT}, s{sSLOT}, 2
    s_lshl_b32 s{sBK}, s{sRQ}, 2
    s_add_u32 s{sBK}, s{sBK}, s{sRB}
    s_cmp_gt_u32 s{sCT}, 2
    s_subb_u32 s{sBK}, s{sBK}, 0
    s_and_b32 s{sBK}, s{sBK}, 15""")
    if CFG['cal']: p(f"s_mov_b32 s{sPROF}, 0")
    if CFG['amp']: p(f"s_mov_b32 s{sPROF+2}, 0")
    if CFG['prof']:
        for i in range(1,10): p(f"s_mov_b32 s{sPROF+2*i}, 0")
    if not CFG['cpe']:
        p(f"""s_cmp_lt_u32 s{sWAVE}, 4
        s_cbranch_scc1 L_comp""")
        return
    A=sT+18; K=NAME+"_kernel"
    n=CFG['cpe']
    reg=[f"({K}+0x400-L_pc0)",f"(L_comp-L_pc0)",f"(L_comp+0x1000-L_pc0)",f"({K}+0x1400-L_pc0)"]
    lit="|".join(f"((({r}>>8)&0xff)<<{8*i})" for i,r in enumerate(reg))
    p(f"""s_cmp_lt_u32 s{sWAVE}, 4
    s_cbranch_scc0 L_help
    s_getpc_b64 s[{A}:{A+1}]
    L_pc0:
    s_lshl_b32 s{A+2}, s{sWAVE}, 3
    s_lshr_b32 s{A+2}, {lit}, s{A+2}
    s_and_b32 s{A+2}, s{A+2}, 0xff
    s_and_b32 s{A+3}, s{sSLOT}, {32//n-1}
    s_lshl_b32 s{A+2}, s{A+2}, 8
    s_mul_i32 s{A+3}, s{A+3}, {n*128}
    s_and_b32 s{A}, s{A}, 0xffffff80
    s_add_u32 s{A+2}, s{A+2}, s{A+3}
    v_lshl_add_u32 v1, v0, 7, s{A+2}
    s_mov_b64 exec, {hex((1<<n)-1)}
    global_load_dwordx2 v[228:229], v1, s[{A}:{A+1}] offset:60""")
    if CFG['cpa']==1: cp_rest(A)
    p("s_mov_b64 exec, -1")
    if CFG['lay'] and CFG['pade']: p(f"""s_cmp_eq_u32 s{sWAVE}, 3
    s_cbranch_scc1 L_padT
    s_cmp_eq_u32 s{sWAVE}, 2
    s_cbranch_scc1 L_padV""")
    p(f"""s_branch L_comp
    L_help:""")
def cp_rest(A):
    p(f"""s_lshl_b32 s{A+2}, s{sSLOT}, 2
    s_add_u32 s{A+2}, s{A+2}, s{sWAVE}
    s_mul_i32 s{A+2}, s{A+2}, 384
    s_add_u32 s{A+2}, s{A+2}, ({NAME}_kernel+0x2400-L_pc0)&0xffffff00
    s_min_u32 s{A+2}, s{A+2}, (L_exit-L_pc0-384)&0xffffff80
    s_mov_b64 exec, 7
    v_lshl_add_u32 v1, v0, 7, s{A+2}
    global_load_dwordx2 v[194:195], v1, s[{A}:{A+1}] offset:60""")
def prologue2(comp=0):
    if comp:
        p(f"""s_mov_b32 s{sTAG}, {EPO}
        s_load_dword s{sEP}, s[{sWS}:{sWS+1}], s{sTAG}
        s_load_dwordx2 s[{sWR}:{sWR+1}], s[0:1], 32
        s_load_dwordx2 s[{sOUT}:{sOUT+1}], s[0:1], 64""")
        srd(((sWS,268435456),(sWR,1280),(sOUT,2621440)))
        p(f"""s_mov_b32 s{sLO}, -1
        s_mov_b32 s{sLO+1}, 0
        s_mov_b32 s{sLO+2}, 0xfffff
        s_mov_b32 s{sLO+3}, 0xfffff""")
        return
    if not CFG['epf']: p(f"""s_mov_b32 s{sTAG}, {EPO}
    s_load_dword s{sEP}, s[{sWS}:{sWS+1}], s{sTAG}""")
    p(f"""s_load_dwordx2 s[{sWO}:{sWO+1}], s[0:1], 16
    s_load_dwordx2 s[{sWR}:{sWR+1}], s[0:1], 32
    s_load_dwordx2 s[{sWG}:{sWG+1}], s[0:1], 40
    s_load_dwordx2 s[{sWU}:{sWU+1}], s[0:1], 48
    s_load_dwordx2 s[{sWD}:{sWD+1}], s[0:1], 56
    s_load_dwordx2 s[{sOUT}:{sOUT+1}], s[0:1], 64""")
    srd(((sWS,268435456),(sWO,819200),(sWR,1280),(sWG,1966080),(sWU,1966080),(sWD,1966080),(sOUT,2621440)))
    p(f"""s_mov_b32 s{sLO}, -1
    s_mov_b32 s{sLO+1}, 0
    s_mov_b32 s{sLO+2}, 0xfffff
    s_mov_b32 s{sLO+3}, 0xfffff""")
def moe_role():
    A=sT+20
    if not CFG['mrm']: p(f"s_mov_b32 s{sMI}, s{sSLOT}"); return
    p(f"""s_lshr_b32 s{A}, s{sSLOT}, 3
    s_sub_u32 s{sMI}, s{sSLOT}, s{A}
    s_sub_u32 s{sMI}, s{sMI}, 1
    s_add_u32 s{A}, s{A}, 28
    s_and_b32 s{A+1}, s{sSLOT}, 7
    s_cselect_b32 s{sMI}, s{sMI}, s{A}""")
def mktag():
    p(f"""s_mul_i32 s{sTAG}, s{sEP}, 0x9e3779b1
    s_add_u32 s{sTAG}, s{sTAG}, 0x7f4a7c15
    s_and_b32 s{sTAG}, s{sTAG}, -16""")
def colbyte(dst, lc):
    t=sT+18
    p(f"""s_mul_i32 s{t}, s{lc}, 52
    s_lshr_b32 s{t}, s{t}, 8
    s_add_u32 s{t}, s{t}, s{sHH}
    s_mul_i32 s{t}, s{t}, 640
    s_lshl_b32 s{dst}, s{lc}, 7
    s_add_u32 s{dst}, s{dst}, s{t}""")

def loader():
    CA_=sT+1; CB_=sT+2; CH=sT+3; XO=sT+4; WO_=sT+5; LB=sT+6; A=sT+7; B=sT+8; OFF=sT+9; SEQ=sT+10
    vX=2; vW=6; vt=10
    p(f"""s_sub_u32 s{HW}, s{sWAVE}, 4
    s_lshl_b32 s{A}, s{sCT}, 1
    s_cmp_gt_u32 s{sCT}, 2
    s_subb_u32 s{A}, s{A}, 0
    s_cmp_lg_u32 s{sCT}, 2
    s_addc_u32 s{B}, s{A}, 0""")
    colbyte(CA_,A); colbyte(CB_,B)
    p(f"""v_lshrrev_b32 v{vt}, 3, v0
    v_mul_u32_u24 v{vX}, 1280, v{vt}
    v_lshrrev_b32 v{vt+1}, 4, v0
    v_and_b32 v{vt+2}, 7, v0
    v_xor_b32 v{vt+2}, v{vt+2}, v{vt+1}
    v_lshl_add_u32 v{vX}, v{vt+2}, 4, v{vX}
    v_xor_b32 v{vX+1}, 64, v{vX}
    v_add_u32 v{vX+1}, {10240-1024}, v{vX+1}
    v_add_u32 v{vX+2}, {2*(10240-1024)}, v{vX}
    v_add_u32 v{vX+3}, {2*(10240-1024)}, v{vX+1}
    v_lshlrev_b32 v{vt+2}, 2, v{vt+1}
    v_and_b32 v{vt+3}, 15, v0
    v_xor_b32 v{vt+2}, v{vt+2}, v{vt+3}
    v_cmp_lt_u32 vcc, 7, v{vt+2}
    v_mov_b32 v{vt+3}, s{CA_}
    v_mov_b32 v{vt+4}, s{CB_}
    v_cndmask_b32 v{vt+3}, v{vt+3}, v{vt+4}, vcc
    v_and_b32 v{vt+2}, 7, v{vt+2}
    v_lshl_add_u32 v{vt+3}, v{vt+2}, 4, v{vt+3}
    v_mul_u32_u24 v{vW}, 3840, v{vt+1}
    v_add_u32 v{vW}, v{vW}, v{vt+3}""")
    for i in range(1,4): p(f"v_add_u32 v{vW+i}, {i*(4*3840-1024)}, v{vW}")
    ta,tc,tg=CFG['rot']
    pk=lambda t: sum(int(v)<<(4*i) for i,v in enumerate(t))
    p(f"""s_and_b32 s{A}, s{sBK}, 3
    s_lshl_b32 s{A}, s{A}, 2
    s_lshr_b32 s{CH}, {pk(ta)}, s{A}
    s_and_b32 s{CH}, s{CH}, 15
    s_lshl_b32 s{A}, s{sCT}, 2
    s_lshr_b32 s{A}, {hex(pk(tc))}, s{A}
    s_and_b32 s{A}, s{A}, 15
    s_add_u32 s{CH}, s{CH}, s{A}
    s_lshr_b32 s{A}, s{sBK}, 2
    s_lshl_b32 s{A}, s{A}, 1
    s_add_u32 s{A}, s{A}, s{sHH}
    s_lshl_b32 s{A}, s{A}, 2
    s_lshr_b32 s{A}, {hex(pk(tg))}, s{A}
    s_and_b32 s{OFF}, s{A}, 15""")
    seqs=CFG['seqs']
    if seqs:
        n=len(seqs)
        p(f"""s_mul_i32 s{A}, s{CH}, {-(-2048//n)}
        s_lshr_b32 s{A}, s{A}, 11
        s_mul_i32 s{A}, s{A}, {n}
        s_sub_u32 s{CH}, s{CH}, s{A}""")
        for i,q in enumerate(seqs):
            assert sorted(q)==list("0123456789")
            if i: p(f"s_cmp_eq_u32 s{CH}, {i}\ns_cselect_b32 s{SEQ}, {hex(pk(q[:8]))}, s{SEQ}\ns_cselect_b32 s{SEQ+1}, {hex(pk(q[8:]))}, s{SEQ+1}")
            else: p(f"s_mov_b32 s{SEQ}, {hex(pk(q[:8]))}\ns_mov_b32 s{SEQ+1}, {hex(pk(q[8:]))}")
    else:
        p(f"""s_add_u32 s{CH}, s{CH}, s{OFF}
    s_mul_i32 s{A}, s{CH}, 205
    s_lshr_b32 s{A}, s{A}, 11
    s_mul_i32 s{A}, s{A}, 10
    s_sub_u32 s{CH}, s{CH}, s{A}""")
    p(f"""
    s_lshl_b32 s{A}, s{sBK}, 2
    s_add_u32 s{A}, s{A}, s{HW}
    s_mul_i32 s{XO}, s{A}, {32*1280}
    s_mul_i32 s{WO_}, s{HW}, {16*3840}
    s_lshl_b32 s{LB}, s{HW}, 12""")
    CHW=SEQ
    p(f"s_mov_b32 s{CHW}, s{CH}")
    nx=dict(x=0,w=0)
    def issue(order,lim):
        global OPS
        for k in order:
            c=nx[k]; nx[k]+=1; assert c<=min(9,lim)
            slot=(c%4)*32768; ch=CH if k=='x' else CHW
            if k=='x': p(f"""s_lshl_b32 s{A}, s{ch}, 7
                s_add_u32 m0, s{LB}, {slot}
                s_add_u32 s{A}, s{A}, s{XO}""")
            else: p(f"""s_mul_i32 s{A}, s{ch}, {64*3840}
                s_add_u32 m0, s{LB}, {slot+16384}
                s_add_u32 s{A}, s{A}, s{WO_}""")
            for i in range(4):
                if k=='x': p(f"buffer_load_dwordx4 v{vX+i}, {S4(sX)}, s{A} offen offset:{i*1024} {CFG['xpol'] if c<CFG['xnt'] else ''} lds")
                else: p(f"buffer_load_dwordx4 v{vW+i}, {S4(sW)}, s{A} offen offset:{i*1024} {'nt' if c<CFG['wnt'] else CFG['wpol']} lds")
            p(f"""s_add_u32 s{ch}, s{ch}, 1
            s_cmp_eq_u32 s{ch}, 10
            s_cselect_b32 s{ch}, 0, s{ch}""")
            OPS+=[c]*4
    ORD=CFG['ord'].split(',')
    srd(((sX,2621440),(sW,2457600)))
    if CFG['epf']: p(f"s_mov_b32 s{sTAG}, {EPO}")
    p("s_waitcnt lgkmcnt(0)")
    if CFG['epf']: p(f"s_load_dword s{sEP}, s[{sWS}:{sWS+1}], s{sTAG}")
    STAMP('i0')
    def b1():
        STAMP('i1s')
        issue(ORD[1],3)
        STAMP('i1e')
    for c in range(1):
        issue(ORD[0],3); STAMP('i%d'%(c+1))
        if CFG['b1p']==2: b1()
        if c==0:
            prologue2()
            p(f"""v_cmp_lt_u32 vcc, 7, v0
            v_lshlrev_b32 v{vt}, 4, v0
            v_add_u32 v{vt}, {L_FLG}, v{vt}
            v_cndmask_b32 v{vt+2}, 0, -1, vcc
            v_cndmask_b32 v{vt+3}, 0, -1, vcc
            v_cndmask_b32 v{vt+4}, 0, -1, vcc
            v_cndmask_b32 v{vt+5}, 0, -1, vcc
            ds_write_b128 v{vt}, v[{vt+2}:{vt+5}]""")
            early()
    if CFG['b1p']==1: b1()
    p("s_waitcnt lgkmcnt(0)")
    STAMP('epo')
    mktag()
    stats_setup()
    p(f"s_cmp_ge_u32 s{HW}, 2\ns_cbranch_scc1 L_helperB")
    nx0=dict(nx); ops0=list(OPS)
    def steps(hook,isB):
        global OPS
        nx.update(nx0); OPS=list(ops0)
        if CFG['b1p']==0: b1()
        if CFG['hclr']: hclear_setup(isB)
        if CFG['smw'] or CFG['smo']: sm_setup()
        for c in range(8):
            sd=CFG['sdef']
            if c==0 and -1 in sd:
                assert ORD[0][0]=='x'; p(f"s_waitcnt vmcnt({len(OPS)-4})")
                STAMP('x0')
                fill=stats(0)
                for k in range(4):
                    if sd[k]==-1: p(fill[k])
                if max(sd)==-1: stats_red()
            vmwait(c)
            STAMP('d%d'%c)
            p("s_barrier")
            STAMP('ld%d'%c)
            if c==0 and -1 not in sd: fill=stats(0)
            if c==CFG['stg'] and CFG['stb']: stats_get(); hook(100)
            if CFG['hclr']: hclear(c,isB)
            issue(ORD[2+c],c+3)
            if c==0: p("s_waitcnt lgkmcnt(0)")
            for k in range(4):
                if sd[k]==c: p(fill[k])
            if c==max(0,max(sd)):
                if max(sd)>=0: stats_red()
                stats_pub(); OPS.append('stw')
            if c==CFG['stg'] and not CFG['stb']: stats_get(); hook(100)
            hook(c)
            sm_touch(c,isB)
            if CFG['lay'] and CFG['padk']==2 and c==CFG['pks']:
                p(f"s_cmp_eq_u32 s{HW}, {2*isB}\ns_cbranch_scc1 L_pv{2*isB}\ns_branch L_pv{2*isB+1}\nL_pkb{isB}:")
        assert nx==dict(x=10,w=10)
    return steps
aS=44; dS=64; sacc=60; sone=43; sDBL=sDBG; sSTP=sDBG+1
def stats_setup():
    vt=10
    tc=[int(x) for x in CFG['rot'][1]]
    assert not CFG['seqs'] and sorted(tc+[(tc[2]+1)%10,(tc[2]+2)%10])==list(range(10))
    p(f"""s_lshl_b32 s{sT+16}, s{HW}, 12
    v_bfe_u32 v{vt}, v0, 1, 3
    v_lshrrev_b32 v{vt+1}, 5, v0
    v_lshlrev_b32 v{vt+1}, 2, v{vt+1}
    v_xor_b32 v{vt}, v{vt}, v{vt+1}
    v_lshlrev_b32 v{vt}, 4, v{vt}
    v_and_b32 v{vt+1}, 31, v0
    v_lshl_add_u32 v{vt}, v{vt+1}, 7, v{vt}
    v_add_u32 v{aS}, s{sT+16}, v{vt}
    v_mov_b32 v{sone}, 0x3f803f80
    s_and_b32 s{sSTP}, s{sBK}, 12
    s_add_u32 s{sSTP}, s{sSTP}, s{sBK}
    s_lshl_b32 s{sT+16}, s{sHH}, 2
    s_add_u32 s{sSTP}, s{sSTP}, s{sT+16}
    s_lshl_b32 s{sSTP}, s{sSTP}, 14
    s_lshl_b32 s{sT+16}, s{HW}, 9
    s_add_u32 s{sSTP}, s{sSTP}, s{sT+16}
    s_add_u32 s{sSTP}, s{sSTP}, {STP}
    v_lshrrev_b32 v{vt}, 5, v0
    v_lshlrev_b32 v{vt}, 11, v{vt}
    v_lshl_add_u32 v{aS+4}, v{vt+1}, 4, v{vt}
    s_lshl_b32 s{sT+16}, s{sCT}, 11
    s_cmp_eq_u32 s{sCT}, 2
    s_cselect_b32 s{sT+16}, {STX-STP}, s{sT+16}
    v_lshl_add_u32 v{aS+5}, v{vt+1}, 4, s{sT+16}""")
    for i in range(1,4): p(f"v_xor_b32 v{aS+i}, {16*i}, v{aS}")
    for i in range(4): p(f"v_mov_b32 v{sacc+i}, 0")
    if CFG['smode'] in ('dotx','dotc'):
        for i in range(2*CFG['nacc']): p(f"v_mov_b32 v{102+i}, 0")
def stats(c):
    if 'nostats' in CFG['xp']: return ['s_nop 0']*4
    for i in range(4): p(f"ds_read_b128 {vr(dS+4*i,4)}, v{aS+i} offset:{c*32768}")
    L=[]
    for i in range(4):
        g=f"s_waitcnt lgkmcnt({3-i})"
        for j in range(4):
            r=dS+4*i+j
            u=80+2*(j&1)
            if CFG['smode']=='dotx':
                a=102+2*((4*i+j)%CFG['nacc']); g+=f"\nv_dot2_f32_bf16 v{a}, v{r}, v{sone}, v{a}\nv_dot2_f32_bf16 v{a+1}, v{r}, v{r}, v{a+1}"
            elif CFG['smode']=='dotc':
                a=102+2*((4*i+j)%CFG['nacc']); g+=f"\nv_dot2c_f32_bf16 v{a}, v{r}, v{sone}\nv_dot2c_f32_bf16 v{a+1}, v{r}, v{r}"
            elif CFG['smode']=='dot': g+=f"\nv_dot2_f32_bf16 v{sacc+(j&1)}, v{r}, v{sone}, v{sacc+(j&1)}\nv_dot2_f32_bf16 v{sacc+2+(j&1)}, v{r}, v{r}, v{sacc+2+(j&1)}"
            elif CFG['smode']=='valu': g+=f"\nv_lshlrev_b32 v{u}, 16, v{r}\nv_and_b32 v{u+1}, 0xffff0000, v{r}\nv_add_f32 v{sacc}, v{sacc}, v{u}\nv_fmac_f32 v{sacc+2}, v{u}, v{u}\nv_add_f32 v{sacc+1}, v{sacc+1}, v{u+1}\nv_fmac_f32 v{sacc+3}, v{u+1}, v{u+1}"
            elif CFG['smode']=='pk': g+=f"\nv_lshlrev_b32 v{u}, 16, v{r}\nv_and_b32 v{u+1}, 0xffff0000, v{r}\nv_pk_add_f32 v[{sacc}:{sacc+1}], v[{sacc}:{sacc+1}], v[{u}:{u+1}]\nv_pk_fma_f32 v[{sacc+2}:{sacc+3}], v[{u}:{u+1}], v[{u}:{u+1}], v[{sacc+2}:{sacc+3}]"
        L.append(g)
    return L
def stats_red():
    t=sacc
    p(f"""s_nop 1
    v_add_f32 v{t}, v{t}, v{t+1}
    v_add_f32 v{t+1}, v{t+2}, v{t+3}
    v_mov_b32 v{t+2}, s{sTAG}
    s_nop 0
    v_permlane32_swap_b32 v{t}, v{t+1}
    s_nop 0
    v_add_f32 v{t}, v{t}, v{t+1}
    v_mov_b32 v{t+1}, v{t}
    s_nop 1
    v_permlane32_swap_b32 v{t}, v{t+1}""")
def stats_pub():
    t=sacc
    p(f"""s_mov_b64 exec, s[{sLO}:{sLO+1}]
    buffer_store_dwordx4 {vr(t,4)}, v{aS+5}, {S4(sWS)}, s{sSTP} offen sc1
    s_mov_b64 exec, -1""")
def stats_ld():
    return "\n".join(f"s_add_u32 s{sSTP+1}, s{sSTP}, {4096*i}\nbuffer_load_dwordx4 {vr(dS+4*i,4)}, v{aS+4}, {S4(sWS)}, s{sSTP+1} offen sc1" for i in range(4))
def stats_get():
    p(stats_ld()); OPS.extend(['stp']*4)
def stats_fin(t,B):
    vmwait('stp')
    lp=p.lab("stl"); ok=p.lab("stok"); rt=p.lab("strt")
    p(f"""s_mov_b32 s{B}, {SPIN}
    {lp}:
    v_xor_b32 v{t}, v{dS+2}, v{dS+6}
    v_xor_b32 v{t+1}, v{dS+10}, v{dS+14}
    v_xor_b32 v{t+2}, s{sTAG}, v{dS+2}
    v_xor_b32 v{t+3}, s{sTAG}, v{dS+10}
    v_or3_b32 v{t}, v{t}, v{t+1}, v{t+2}
    v_or_b32 v{t}, v{t}, v{t+3}
    v_cmp_ne_u32 vcc, 0, v{t}
    v_add_f32 v{t+1}, v{dS}, v{dS+4}
    v_add_f32 v{t+2}, v{dS+1}, v{dS+5}
    s_cbranch_vccnz {rt}
    {ok}:""")
    n0=len(p.L)
    p(f"{rt}:"); spin(B,lp,ok,1); p(stats_ld()); p(f"s_waitcnt vmcnt(0)\ns_branch {lp}")
    COLD.append("\n".join(p.L[n0:])); del p.L[n0:]
    p(f"""v_add_f32 v{t+3}, v{dS+8}, v{dS+12}
    v_add_f32 v{t+4}, v{dS+9}, v{dS+13}
    v_add_f32 v{t+1}, v{t+1}, v{t+3}
    v_add_f32 v{t+2}, v{t+2}, v{t+4}
    s_nop 1
    v_permlane32_swap_b32 v{t+1}, v{t+2}
    s_nop 0
    v_add_f32 v{t+1}, v{t+1}, v{t+2}
    v_mul_f32 v{t+1}, {1/640!r}, v{t+1}
    v_mov_b32 v{t+2}, v{t+1}
    s_nop 1
    v_permlane32_swap_b32 v{t+1}, v{t+2}
    s_nop 0
    v_fma_f32 v{t+2}, -v{t+1}, v{t+1}, v{t+2}
    v_max_f32 v{t+2}, 0, v{t+2}""")
    bf16r(t+2,t+2)
    p(f"v_add_f32 v{t+2}, 0x3727c5ac, v{t+2}")
    bf16r(t+2,t+2)
    p(f"""v_sqrt_f32 v{t+2}, v{t+2}
    v_xor_b32 v{t+1}, 0x80000000, v{t+1}""")
    bf16r(t+2,t+2)
    p(f"""v_rcp_f32 v{t+5}, v{t+2}
    v_cvt_pk_bf16_f32 v{t+4}, v{t+1}, v{t+1}
    v_and_b32 v{t+3}, 31, v0
    s_lshl_b32 s{B}, s{HW}, 8
    s_add_u32 s{B}, s{B}, {L_SA}
    v_lshl_add_u32 v{t+1}, v{t+3}, 3, s{B}
    s_lshl_b32 s{B}, s{HW}, 7
    s_add_u32 s{B}, s{B}, {L_SR}
    v_lshl_add_u32 v{t+2}, v{t+3}, 2, s{B}
    ds_write_b64 v{t+1}, v[{t+4}:{t+5}]
    ds_write_b32 v{t+2}, v{t+5}""")
vPT=21; vDUM=39
HS=sT+12; HA=28
def early():
    A=sT+20; B=sT+21; vt=10
    moe_role()
    p(f"""s_lshl_b32 s{A}, s{sSLOT}, 2
    s_add_u32 s{A}, s{A}, s{HW}
    s_mul_i32 s{A}, s{A}, 60
    v_min_u32 v{vt}, 59, v0
    v_add_u32 v{vt}, s{A}, v{vt}
    v_mul_u32_u24 v{vt+1}, 6554, v{vt}
    v_lshrrev_b32 v{vt+1}, 20, v{vt+1}
    v_mul_u32_u24 v{vt+2}, 160, v{vt+1}
    v_sub_u32 v{vt}, v{vt}, v{vt+2}
    v_lshlrev_b32 v{vt}, 7, v{vt}
    v_cmp_gt_u32 vcc, 32, v{vt+1}
    v_and_b32 v{vt+2}, 1, v{vt+1}
    v_mul_u32_u24 v{vt+2}, 20480, v{vt+2}
    v_lshrrev_b32 v{vt+3}, 4, v{vt+1}
    v_mul_u32_u24 v{vt+4}, 10240, v{vt+3}
    s_mul_i32 s{A}, s{sRQ}, 40960
    v_add3_u32 v{vt+2}, v{vt+2}, v{vt}, s{A}
    v_sub_u32 v{vt+2}, v{vt+2}, v{vt+4}
    v_add_u32 v{vt+4}, 163840, v{vt+2}
    v_min_u32 v{vt+2}, v{vt+2}, v{vt+4}
    v_mul_u32_u24 v{vt+3}, {KB}, v{vt+3}
    v_bfe_u32 v{vt+4}, v{vt+1}, 1, 3
    v_mul_u32_u24 v{vt+4}, 163840, v{vt+4}
    v_add3_u32 v{vt+2}, v{vt+2}, v{vt+3}, v{vt+4}
    s_mul_i32 s{A}, s{sRQ}, 20480
    s_sub_u32 s{A}, s{A}, 5120
    v_add_u32 v{vt}, s{A}, v{vt}
    v_add_u32 v{vt+4}, 81920, v{vt}
    v_min_u32 v{vt}, v{vt}, v{vt+4}
    v_and_b32 v{vt+3}, 15, v{vt+1}
    v_mul_u32_u24 v{vt+3}, 81920, v{vt+3}
    s_mov_b32 s{A}, {VB}
    v_add3_u32 v{vt+3}, v{vt+3}, v{vt}, s{A}
    v_cndmask_b32 v{vt+2}, v{vt+3}, v{vt+2}, vcc
    s_mul_i32 s{A}, s{sHH}, {8*163840}
    v_add_u32 v{vPT}, s{A}, v{vt+2}
""")
    if CFG['honly']:
        p(f"""s_lshl_b32 s{A}, s{sSLOT}, 2
        s_add_u32 s{A}, s{A}, s{HW}
        s_mul_i32 s{A}, s{A}, 60
        v_min_u32 v{vt}, 59, v0
        v_add_u32 v{vt}, s{A}, v{vt}
        v_mul_u32_u24 v{vt+2}, 160, v{vt+1}
        v_sub_u32 v{vt}, v{vt}, v{vt+2}
        v_and_b32 v{vt+2}, 1, v{vt+1}
        v_mul_u32_u24 v{vt+2}, 160, v{vt+2}
        v_add_u32 v{vt+2}, v{vt+2}, v{vt}
        v_lshlrev_b32 v{vt}, 1, v{vt}
        v_cndmask_b32 v{vt}, v{vt}, v{vt+2}, vcc
        s_cmp_lt_u32 s{sRQ}, 3
        s_cselect_b32 s{A}, 0, 80
        s_add_u32 s{A}, s{A}, 160
        v_subrev_u32 v{vt}, 80, v{vt}
        v_cmp_le_u32 vcc, s{A}, v{vt}
        v_cmp_lt_u32 s[{A}:{A+1}], 15, v{vt+1}
        v_mov_b32 v{vt+2}, {KH-KB}
        s_and_b64 vcc, vcc, s[{A}:{A+1}]
        s_nop 0
        v_cndmask_b32 v{vt+2}, 0, v{vt+2}, vcc
        v_add_u32 v{vPT}, v{vPT}, v{vt+2}""")
    if CFG['ht']: p(f"""s_lshl_b32 s{A}, s{sSLOT}, 2
    s_add_u32 s{A}, s{A}, s{HW}
    s_mul_i32 s{B}, s{A}, 20
    v_min_u32 v{vt}, 19, v0
    v_add_u32 v{vt}, s{B}, v{vt}
    v_mul_u32_u24 v{vt+1}, 13108, v{vt}
    v_lshrrev_b32 v{vt+1}, 20, v{vt+1}
    v_mul_u32_u24 v{vt+2}, 80, v{vt+1}
    v_sub_u32 v{vt}, v{vt}, v{vt+2}
    v_lshlrev_b32 v{vt}, 7, v{vt}
    v_cmp_gt_u32 vcc, 16, v{vt+1}
    v_and_b32 v{vt+2}, 1, v{vt+1}
    v_mul_u32_u24 v{vt+2}, 10240, v{vt+2}
    v_lshrrev_b32 v{vt+3}, 1, v{vt+1}
    v_mul_u32_u24 v{vt+3}, 163840, v{vt+3}
    s_mul_i32 s{B}, s{sRQ}, 40960
    s_add_u32 s{B}, s{B}, {KH+20480}
    v_add3_u32 v{vt+2}, v{vt+2}, v{vt+3}, s{B}
    v_and_b32 v{vt+3}, 15, v{vt+1}
    v_mul_u32_u24 v{vt+3}, 81920, v{vt+3}
    s_mul_i32 s{B}, s{sRQ}, 20480
    s_add_u32 s{B}, s{B}, {VH+10240}
    v_add_u32 v{vt+3}, s{B}, v{vt+3}
    v_cndmask_b32 v{vt+2}, v{vt+3}, v{vt+2}, vcc
    s_mul_i32 s{B}, s{sHH}, {8*163840}
    v_add3_u32 v{vHT}, v{vt}, v{vt+2}, s{B}
    s_lshl_b32 s{B}, s{sG}, 7
    s_add_u32 s{A}, s{A}, s{B}
    s_lshl_b32 s{A}, s{A}, 7
    s_add_u32 s{A}, s{A}, {FH}
    v_mov_b32 v{vt}, s{A}
    v_cmp_lt_u32 vcc, 19, v0
    s_nop 1
    v_cndmask_b32 v{vHT}, v{vHT}, v{vt}, vcc""")
    nsm=sum(CFG['npf']); per=(100-5*nsm)//2
    if per>0:
        p(f"""s_mul_i32 s{A}, s{sG}, 5
        s_lshr_b32 s{A}, s{A}, 1
        s_mul_i32 s{A}, s{A}, 5
        s_lshr_b32 s{B}, s{HW}, 1
        s_mul_i32 s{B}, s{B}, {per}
        s_add_u32 s{A}, s{A}, s{B}
        s_add_u32 s{A}, s{A}, {5*nsm}
        v_min_u32 v{vt}, {per-1}, v0
        v_add_u32 v{vt}, s{A}, v{vt}
        v_subrev_u32 v{vt+1}, 100, v{vt}
        v_min_u32 v{vt}, v{vt}, v{vt+1}
        s_lshl_b32 s{A}, s{sSLOT}, 1
        s_and_b32 s{B}, s{HW}, 1
        s_add_u32 s{A}, s{A}, s{B}
        s_mul_i32 s{A}, s{A}, 12800
        v_lshl_add_u32 v{vTW}, v{vt}, 7, s{A}""")
    ge=p.lab("mtge"); jn=p.lab("mtj")
    p(f"""v_min_u32 v{vt}, 59, v0
    v_mul_u32_u24 v{vt+1}, 86, v{vt}
    v_lshrrev_b32 v{vt+1}, 8, v{vt+1}
    v_mul_u32_u24 v{vt+1}, {3072-384}, v{vt+1}
    v_lshl_add_u32 v{vt}, v{vt}, 7, v{vt+1}
    s_mul_i32 s{A}, s{sSLOT}, {20*3072}
    s_mul_i32 s{B}, s{sG}, 384
    s_add_u32 s{A}, s{A}, s{B}
    v_add_u32 v{vTM}, s{A}, v{vt}
    s_sub_u32 s{A}, s{sMI}, {0 if CFG['dw3'] else 17}
    s_lshl_b32 s{A}, s{A}, {1 if CFG['dw3'] else 2}
    s_add_u32 s{A}, s{A}, s{HW}
    s_mul_i32 s{A}, s{A}, {24 if CFG['dw3'] else 35 if CFG['dtn'] else 26}
    v_min_u32 v{vt}, {47 if CFG['dw3'] else 63 if CFG['dtn'] else 51}, v0
    v_lshrrev_b32 v{vt+1}, 1, v{vt}
    v_add_u32 v{vt+1}, s{A}, v{vt+1}
    v_min_u32 v{vt+1}, 1535, v{vt+1}
    v_mul_u32_u24 v{vt+1}, 1280, v{vt+1}
    v_and_b32 v{vt}, 1, v{vt}
    v_lshl_add_u32 v{vt}, v{vt}, 7, v{vt+1}
    s_mul_i32 s{B}, s{sG}, 160
    s_and_b32 s{B}, s{B}, -128
    v_add_u32 v{vTD}, s{B}, v{vt}""")
    if CFG['dtn']: p(f"""s_add_u32 s{A}, s{A}, 32
    v_min_u32 v{vt}, 5, v0
    v_lshrrev_b32 v{vt+1}, 1, v{vt}
    v_add_u32 v{vt+1}, s{A}, v{vt+1}
    v_min_u32 v{vt+1}, 1535, v{vt+1}
    v_mul_u32_u24 v{vt+1}, 1280, v{vt+1}
    v_and_b32 v{vt}, 1, v{vt}
    v_lshl_add_u32 v{vt}, v{vt}, 7, v{vt+1}
    v_add_u32 v{vTD2}, s{B}, v{vt}""")
vTD=25; vHT=26; vTD2=27
vTW=22; vTM=24
def touch(va,srd_,pair,pol=''):
    if pair:
        p(f"buffer_load_dword v{vDUM}, v{va}, {S4(srd_)}, 0 offen nt\nbuffer_load_dword v{vDUM}, v{va}, {S4(srd_)}, 0 offen offset:64")
        return 2
    p(f"buffer_load_dword v{vDUM}, v{va}, {S4(srd_)}, 0 offen {pol}")
    return 1
def wtouch(win,isB):
    n=0
    if CFG['wtw']==win and 100-5*sum(CFG['npf'])>0:
        n+=touch(vTW,sWO,CFG['wpair'])
    if CFG['mtw']==win:
        if not isB:
            u=p.lab("tu"); j=p.lab("tj")
            p(f"s_cmp_eq_u32 s{HW}, 0\ns_cbranch_scc0 {u}")
            touch(vTM,sWG,CFG['mpair'])
            p(f"s_branch {j}\n{u}:")
            n+=touch(vTM,sWU,CFG['mpair'])
            p(f"{j}:")
    return n
def qkv_touch():
    if CFG['pt']==99: return
    if CFG['ht']==1: OPS.extend(['pt']*touch(vHT,sWS,0,''))
    OPS.extend(['pt']*touch(vPT,sWS,CFG['qpair'],CFG['tpol']))
    if CFG['ht']==2: OPS.extend(['pt']*touch(vHT,sWS,0,''))
vH=16
OPS=[]
def vmwait(*tags):
    last=max(i for i,t in enumerate(OPS) if t in tags)
    n=len(OPS)-1-last; assert n<64
    p(f"s_waitcnt vmcnt({n})")
HW=sT
def spin(cnt,lp,ok,sleep=0):
    p(f"s_sub_u32 s{cnt}, s{cnt}, 1\ns_cbranch_scc1 {ok}")
    if sleep: p(f"s_sleep {sleep}")
def lds_wait(addr_v,tmp,cnt,cmp,val,sleep=1):
    lp=p.lab("lw"); ok=p.lab("lwok")
    p(f"""s_mov_b32 s{cnt}, {SPIN*4}
    {lp}:
    ds_read_b32 v{tmp}, v{addr_v}
    s_waitcnt lgkmcnt(0)
    v_cmp_{cmp}_u32 vcc, {val}, v{tmp}
    s_nop 0
    s_cbranch_vccz {ok}""")
    spin(cnt,lp,ok,sleep)
    p(f"s_branch {lp}\n{ok}:")
sHL,sHF,sHO,sPH,sHD,sT0=range(sT+1,sT+7)
def att_ids():
    p(f"""s_lshr_b32 s{sHL}, s{sSLOT}, 1
    s_and_b32 s{sHF}, s{sSLOT}, 1
    s_and_b32 s{sHO}, s{sHL}, 1
    s_lshr_b32 s{sPH}, s{sHL}, 1
    s_lshl_b32 s{sHD}, s{sHH}, 3
    s_add_u32 s{sPH}, s{sPH}, s{sHD}
    s_lshl_b32 s{sHD}, s{sHH}, 4
    s_add_u32 s{sHD}, s{sHD}, s{sHL}
    s_lshl_b32 s{sT0}, s{sRQ}, 1
    s_add_u32 s{sT0}, s{sT0}, s{sHF}
    s_lshl_b32 s{sT0}, s{sT0}, 3""")
def flag_addr(vd,vt,withq,A,B,C):
    flag_nib(withq,A,B,C)
    p(f"""v_and_b32 v{vt}, 60, v0
    v_min_u32 v{vt}, 20, v{vt}
    v_bfe_u32 v{vt}, s{A}, v{vt}, 4
    v_and_b32 v{vd}, 3, v0
    v_lshlrev_b32 v{vd}, 2, v{vd}
    v_lshl_add_u32 v{vd}, v{vt}, 7, v{vd}""")
def flag_nib(withq,A,B,C):
    p(f"""s_lshr_b32 s{A}, s{sHL}, 1
    s_mul_i32 s{A}, s{A}, 5
    s_lshl_b32 s{B}, s{sHO}, 1
    s_add_u32 s{A}, s{A}, s{B}
    s_add_u32 s{B}, s{A}, 2
    s_lshr_b32 s{A}, s{A}, 3
    s_lshr_b32 s{B}, s{B}, 3
    s_lshl_b32 s{B}, s{B}, 4
    s_or_b32 s{A}, s{A}, s{B}
    s_add_u32 s{B}, s{A}, 0x55
    s_lshl_b32 s{C}, s{B}, 8
    s_or_b32 s{A}, s{C}, s{A if withq else B}
    s_mul_i32 s{B}, s{sHL}, 20
    s_add_u32 s{C}, s{B}, 19
    s_lshr_b32 s{B}, s{B}, 6
    s_lshr_b32 s{C}, s{C}, 6
    s_lshl_b32 s{C}, s{C}, 4
    s_or_b32 s{B}, s{B}, s{C}
    s_add_u32 s{B}, s{B}, 0xaa
    s_lshl_b32 s{B}, s{B}, 16
    s_or_b32 s{A}, s{A}, s{B}""")
def flag_poll(va,vt,soff,cnt,first=True,sleep=0):
    lp=p.lab("fp"); ok=p.lab("fpok");
    p(f"s_mov_b32 s{cnt}, {SPIN}")
    if not first:
        md=p.lab("fpm"); p(f"s_branch {md}")
    p(f"""{lp}:
    buffer_load_dword v{vt}, v{va}, {S4(sWS)}, s{soff} offen sc1""")
    if not first: p(f"{md}:")
    p(f"""s_waitcnt vmcnt(0)
    v_cmp_ne_u32 vcc, s{sTAG}, v{vt}
    s_nop 0
    s_cbranch_vccz {ok}""")
    spin(cnt,lp,ok,sleep)
    p(f"s_branch {lp}\n{ok}:")
def flag_poll2(va,vt,soff,cnt,n=2,gap=0):
    lp=p.lab("fq"); ok=p.lab("fqok")
    ld=lambda i: f"buffer_load_dword v{vt+i}, v{va}, {S4(sWS)}, s{soff} offen sc1"
    p(f"s_mov_b32 s{cnt}, {SPIN}")
    for i in range(n-1):
        p(ld(i))
        if gap: p(f"s_sleep {gap}")
    p(f"{lp}:")
    for i in range(n):
        p(f"""{ld((i+n-1)%n)}
        s_waitcnt vmcnt({n-1})
        v_cmp_ne_u32 vcc, s{sTAG}, v{vt+i}
        s_nop 0
        s_cbranch_vccz {ok}""")
    spin(cnt,lp,ok)
    p(f"s_branch {lp}\n{ok}:")
def kv_dma(aLin,aTl,sK,sV,sL,A,B,sHO=sHO):
    p(f"""s_mul_i32 s{A}, s{sHO}, 1536
    s_add_u32 s{A}, s{A}, s{sK}
    s_mov_b32 m0, s{sL}
    s_add_u32 s{B}, s{A}, 1536
    buffer_load_dwordx4 v{aLin}, {S4(sWS)}, s{A} offen {CFG['ldp']} lds
    buffer_load_dwordx4 v{aLin}, {S4(sWS)}, s{B} offen offset:1024 {CFG['ldp']} lds
    s_sub_u32 s{A}, s{sK}, 2048
    s_sub_u32 s{B}, s{sV}, 3072
    buffer_load_dwordx4 v{aTl}, {S4(sWS)}, s{A} offen offset:2048 {CFG['ldp']} lds
    buffer_load_dwordx4 v{aLin}, {S4(sWS)}, s{B} offen offset:3072 {CFG['ldp']} lds
    s_add_u32 m0, s{sL}, 4096
    s_add_u32 s{B}, s{sV}, 1024
    buffer_load_dwordx4 v{aLin}, {S4(sWS)}, s{B} offen {CFG['ldp']} lds
    s_mov_b64 exec, s[{sLO}:{sLO+1}]
    buffer_load_dwordx4 v{aLin}, {S4(sWS)}, s{B} offen offset:1024 {CFG['ldp']} lds
    s_mov_b64 exec, -1""")
def kv_addr(aLin,aTl,t):
    p(f"""v_lshlrev_b32 v{aLin}, 4, v0
    v_lshrrev_b32 v{t}, 5, v0
    v_mul_u32_u24 v{t}, {2560-512}, v{t}
    v_add3_u32 v{aTl}, v{aLin}, v{t}, s{sK1024}""")
sK1024=sT+21

def halo_cond(A,B):
    p(f"""s_lshr_b32 s{A}, 0x8ccc, s{sBK}
    s_cmp_gt_u32 s{sCT}, 2
    s_cselect_b32 s{A}, s{A}, 0
    s_and_b32 s{A}, s{A}, 1""")
def halo_flag(vt,A,B,C):
    sk=p.lab("nohalo")
    halo_cond(A,B)
    p(f"""s_cbranch_scc0 {sk}
    s_lshl_b32 s{A}, s{sCT}, 1
    s_add_u32 s{A}, s{A}, s{HW}
    s_sub_u32 s{A}, s{A}, 3
    s_lshl_b32 s{C}, s{sG}, 4
    s_add_u32 s{A}, s{A}, s{C}
    s_lshl_b32 s{A}, s{A}, 2
    s_add_u32 s{A}, s{A}, s{sRB}
    s_lshl_b32 s{A}, s{A}, 8
    s_add_u32 s{A}, s{A}, {FH}
    s_lshl_b32 s{B}, s{HW}, 2
    s_add_u32 s{B}, s{B}, {F_STG-8}
    v_mov_b32 v{vt}, s{B}
    v_lshlrev_b32 v{vt+2}, 7, v0
    v_mov_b32 v{vt+3}, s{sTAG}""")
    lds_wait(vt,vt+1,C,'gt',2,0)
    p(f"""s_mov_b64 exec, 3
    buffer_store_dword v{vt+3}, v{vt+2}, {S4(sWS)}, s{A} offen sc1
    s_mov_b64 exec, -1""")
    STAMP('halo')
    p(f"{sk}:")
def halo_copy(vt,A,B,C,mid):
    sk=p.lab("nohalo"); jn=p.lab("halo_j"); D=168; sD=sT+12; sFH=sT+13
    p(f"s_mov_b32 s{sFH}, 0")
    halo_cond(A,B)
    p(f"""s_cbranch_scc0 {sk}
    s_lshl_b32 s{A}, s{sCT}, 1
    s_add_u32 s{A}, s{A}, s{HW}
    s_sub_u32 s{A}, s{A}, 3
    s_cmp_lt_u32 s{A}, 10
    s_cselect_b32 s{sD}, 1, 0
    s_lshl_b32 s{sD}, 1280, s{sD}
    s_lshl_b32 s{C}, s{sG}, 4
    s_add_u32 s{A}, s{A}, s{C}
    s_lshl_b32 s{A}, s{A}, 2
    s_add_u32 s{A}, s{A}, s{sRB}
    s_lshl_b32 s{A}, s{A}, 8
    s_add_u32 s{sFH}, s{A}, {FH}
    s_lshl_b32 s{B}, s{HW}, 2
    s_add_u32 s{B}, s{B}, {F_STG-8}
    v_mov_b32 v{vt}, s{B}
    s_mul_i32 s{B}, s{HW}, {2*9216}
    s_add_u32 s{B}, s{B}, {L_WO-4*9216}
    v_lshl_add_u32 v{vt+2}, v0, 4, s{B}
    v_mov_b32 v{vt+3}, {F_HR}
    v_mov_b32 v{vt+4}, 1""")
    lds_wait(vt,vt+1,C,'gt',2,0)
    STAMP('hs1')
    for wr in range(2):
        for i in range(9): p(f"ds_read_b128 {vr(D+36*wr+4*i,4)}, v{vt+2} offset:{wr*9216+i*1024}")
        if wr==0: p("s_waitcnt lgkmcnt(6)")
    p(f"v_add_u32 v{vt}, 8, v{vt}")
    lds_wait(vt,vt+1,C,'gt',2,0)
    STAMP('hs2')
    for wr in range(2):
        for i in range(8): p(f"buffer_store_dwordx4 {vr(D+36*wr+4*i,4)}, v{D+36*wr+32+(i&3)}, {S4(sWS)}, {'s%d'%sD if i>>2 else 0} offen sc1")
    p(f"""s_mov_b64 exec, 1
    ds_add_u32 v{vt+3}, v{vt+4}
    s_mov_b64 exec, -1""")
    p(f"{sk}:")
    mid()
    p(f"""s_cmp_eq_u32 s{sFH}, 0
    s_cbranch_scc1 {jn}
    v_mov_b32 v{vt+2}, 0
    v_mov_b32 v{vt+4}, s{sTAG}
    s_waitcnt vmcnt(0)
    s_mov_b64 exec, 1
    buffer_store_dword v{vt+4}, v{vt+2}, {S4(sWS)}, s{sFH} offen sc1
    s_mov_b64 exec, -1""")
    STAMP('halo')
    lds_wait(vt+3,vt+1,C,'gt',2,0)
    p(f"{jn}:")
def own_setup(aF2,vt):
    A=sT+7; B=sT+8; sF,sK,sV,sL=range(sT+12,sT+16)
    flag_addr(aF2,vt,1,A,B,sT+18)
    p(f"""s_lshl_b32 s{sF}, s{sG}, 11
    s_lshl_b32 s{A}, s{sHF}, 4
    s_add_u32 s{sF}, s{sF}, s{A}
    s_add_u32 s{sF}, s{sF}, {FL}
    s_lshl_b32 s{A}, s{HW}, 1
    s_add_u32 s{A}, s{A}, s{sT0}
    s_mul_i32 s{sK}, s{A}, 2560
    s_mul_i32 s{sV}, s{A}, 1280
    s_mul_i32 s{A}, s{sPH}, {64*2560}
    s_add_u32 s{sK}, s{sK}, s{A}
    s_add_u32 s{sK}, s{sK}, {KB}
    s_mul_i32 s{A}, s{sHD}, 81920
    s_add_u32 s{sV}, s{sV}, s{A}
    s_add_u32 s{sV}, s{sV}, {VB}
    s_mul_i32 s{sL}, s{HW}, 5632
    s_add_u32 s{sL}, s{sL}, {L_KV+4*5632}""")
def own_kv(aLin,aTl,aF2,vt,sHO_):
    A=sT+7; B=sT+8; sF,sK,sV,sL=range(sT+12,sT+16); C=sT+18
    p(f"v_mov_b32 v{vt}, {F_FS}\nv_mov_b32 v{vt+1}, 1")
    flag_poll(aF2,vt+2,sF,C)
    p(f"ds_write_b32 v{vt}, v{vt+1}")
    STAMP('hfs')
    kv_dma(aLin,aTl,sK,sV,sL,A,B,sHO_)
    p(f"""s_mov_b64 exec, 1
    v_mov_b32 v{vt}, {F_G1}
    s_waitcnt vmcnt(0)
    ds_add_u32 v{vt}, v{vt+1}
    s_mov_b64 exec, -1""")
    STAMP('hg1')
def helperA(steps):
    A=sT+7; B=sT+8; vt=10
    def hook(c):
        if c==CFG['pt']:
            qkv_touch(); OPS.extend(['pt']*wtouch('w1',0))
        if c==CFG['wts']: OPS.extend(['pt']*touch(vTW,sWO,0))
    steps(hook,0)
    for c in (8,9):
        vmwait(c); p("s_barrier"); STAMP('ld%d'%c)
        if c==9: STAMP('hb9')
        hook(c)
    stats_fin(vt,B)
    p("s_barrier\ns_waitcnt lgkmcnt(0)\ns_barrier")
    STAMP('hE1')
    if CFG['hsp']&2: p(f"v_mov_b32 v{vt}, {L_MODE}\nds_read_b32 v{vt+1}, v{vt}")
    att_ids()
    if CFG['hsp']&2: p(f"s_waitcnt lgkmcnt(0)\nv_readfirstlane_b32 s{sMODE}, v{vt+1}")
    aLin=6; aTl=7; aF=8; D=40
    p(f"s_mov_b32 s{sK1024}, 1024")
    kv_addr(aLin,aTl,vt)
    flag_addr(aF,vt,0,A,B,sT+17)
    if CFG['hsp']: flag_nib(1,A,B,sT+17); p(f"s_mov_b32 s{sT+21}, s{A}")
    if CFG['hkv']: own_setup(9,vt)
    p(f"v_mov_b32 v{vt+1}, 1")
    sF=sT+9; sK=sT+10; sV=sT+11; sL=sT+16; C=sT+17; sD=sT+12
    dn=p.lab("g2done"); h1=p.lab("rem"); jn=p.lab("remj")
    assert not (CFG['hsent'] or CFG['hkv'])
    p(f"""v_and_b32 v{vt+2}, 4, v{aF}
    v_and_b32 v{aF}, -128, v{aF}
    s_cmp_lg_u32 s{HW}, 0
    s_cbranch_scc1 {h1}
    v_add_u32 v{aF}, v{aF}, v{vt+2}
    s_mul_i32 s{A}, s{sHF}, 24
    s_lshl_b32 s{sF}, s{sG}, 11
    s_add_u32 s{sF}, s{sF}, s{A}
    s_add_u32 s{sF}, s{sF}, {FL}
    {f"s_cmp_eq_u32 s{sT0}, 56" if CFG['honly'] else ""}
    {f"s_cselect_b32 s{B}, 0, {KH-KB}" if CFG['honly'] else f"s_mov_b32 s{B}, 0"}
    s_branch {jn}
    {h1}:
    v_lshlrev_b32 v{aF}, 3, v{aF}
    s_lshl_b32 s{A}, s{sHF}, 2
    s_add_u32 s{A}, s{A}, s{sG}
    s_sub_u32 s{A}, s{A}, 2
    s_and_b32 s{A}, s{A}, 7
    s_lshl_b32 s{sF}, s{A}, 14
    s_mul_i32 s{A}, s{sHF}, -768
    s_add_u32 s{sF}, s{sF}, s{A}
    s_add_u32 s{sF}, s{sF}, {FH+768}
    s_mov_b32 s{B}, {KH-KB}
    {jn}:
    s_lshl_b32 s{A}, s{HW}, 2
    s_sub_u32 s{sK}, -2, s{A}
    s_cmp_eq_u32 s{sHF}, 0
    s_cselect_b32 s{A}, s{sK}, s{A}
    s_mul_i32 s{sD}, s{sHF}, 5120
    s_sub_u32 s{sD}, s{sD}, 2560
    s_add_u32 s{A}, s{A}, s{sT0}
    s_mul_i32 s{sK}, s{A}, 2560
    s_mul_i32 s{sV}, s{A}, 1280
    s_mul_i32 s{A}, s{sPH}, {64*2560}
    s_add_u32 s{sK}, s{sK}, s{A}
    s_add_u32 s{sK}, s{sK}, s{B}
    s_add_u32 s{sK}, s{sK}, {KB}
    s_mul_i32 s{A}, s{sHD}, 81920
    s_add_u32 s{sV}, s{sV}, s{A}
    s_add_u32 s{sV}, s{sV}, s{B}
    s_add_u32 s{sV}, s{sV}, {VB}
    s_mul_i32 s{sL}, s{HW}, {-2*5632}
    s_add_u32 s{sL}, s{sL}, {L_KV+3*5632}""")
    if CFG['hsp']&2:
        sk=p.lab("noown"); sp=p.lab("ownp"); so=p.lab("ownok"); O=[sT+13,sT+14,sT+15,sT+18,sT+19,sT+20]; Rq=[4,8,12,28,40,96]
        halo_cond(A,B)
        p(f"""s_and_b32 s{A}, s{A}, s{HW}
        s_andn2_b32 s{A}, s{A}, s{sMODE}
        s_cbranch_scc0 {sk}
        s_lshl_b32 s{A}, s{sG}, 11
        s_add_u32 s{A}, s{A}, {FL}
        s_lshl_b32 s{B}, s{sHF}, 4
        s_add_u32 s{B}, s{B}, s{A}
        s_add_u32 s{A}, s{A}, 8""")
        for i in range(6): p(f"s_bfe_u32 s{O[i]}, s{sT+21}, {hex((4*i)|(4<<16))}\ns_lshl_b32 s{O[i]}, s{O[i]}, 7\ns_add_u32 s{O[i]}, s{O[i]}, s{B if i<2 else A}")
        assert 'FS' not in CFG['gm']+CFG['gr']
        if CFG['ogate']: p(f"v_mov_b32 v{vt}, {F_FS}"); lds_wait(vt,vt+5,C,'gt',CFG['ogate'],1)
        p(f"v_mov_b32 v{vt}, {F_OWN}\ns_mov_b32 s{C}, {SPIN}\n{sp}:")
        for i in range(6): p(f"s_load_dwordx4 s[{Rq[i]}:{Rq[i]+3}], s[{sWS}:{sWS+1}], s{O[i]} glc")
        p("s_waitcnt lgkmcnt(0)")
        for i in range(6):
            r=Rq[i]
            p(f"s_and_b64 s[{A+1}:{A+2}], s[{r}:{r+1}], s[{r+2}:{r+3}]" if 0 else "")
            p(f"s_xor_b64 s[{r}:{r+1}], s[{r}:{r+1}], s[{r+2}:{r+3}]\ns_xor_b32 s{r+2}, s{r+2}, s{sTAG}\ns_xor_b32 s{r+3}, s{r+3}, s{sTAG}\ns_or_b64 s[{r}:{r+1}], s[{r}:{r+1}], s[{r+2}:{r+3}]")
            if i: p(f"s_or_b64 s[4:5], s[4:5], s[{r}:{r+1}]")
        p(f"""s_cbranch_scc0 {so}
        s_sub_u32 s{C}, s{C}, 1
        {f"s_sleep {CFG['hsl2']}" if CFG['hsl2'] else ""}
        s_cbranch_scc0 {sp}
        {so}:
        ds_write_b32 v{vt}, v{vt+1}""")
        if CFG['prof']: p("s_mov_b64 s[96:97], 0\ns_mov_b64 s[98:99], 0")
        STAMP('own')
        p(f"{sk}:")
    if CFG['lay'] and CFG['padk']==3:
        p(f"s_cmp_eq_u32 s{HW}, 1\ns_cbranch_scc1 L_pv0\nL_pkb0:")
        STAMP('pk')
    p(f"s_cmp_eq_u32 s{sT0}, 0\ns_cbranch_scc1 {dn}")
    def both():
        kv_dma(aLin,aTl,sK,sV,sL,A,B)
        p(f"""s_add_u32 s{sK}, s{sK}, s{sD}
        s_add_u32 s{sK}, s{sK}, s{sD}
        s_add_u32 s{sV}, s{sV}, s{sD}
        s_sub_u32 s{sL}, s{sL}, 5632""")
        kv_dma(aLin,aTl,sK,sV,sL,A,B)
    GT=dict(G1=(F_G1,4),FS=(F_FS,1),FS4=(F_FS,4),M=(F_M,1))
    if CFG['gm']!='no' or CFG['gr']!='no':
        g0=p.lab("gate0"); g1=p.lab("gate1")
        p(f"s_cmp_lg_u32 s{HW}, 0\ns_cbranch_scc1 {g0}")
        if CFG['gm']!='no': p(f"v_mov_b32 v{vt}, {GT[CFG['gm']][0]}"); lds_wait(vt,vt+5,C,'gt',GT[CFG['gm']][1],0)
        p(f"s_branch {g1}\n{g0}:")
        if CFG['gr']!='no': p(f"v_mov_b32 v{vt}, {GT[CFG['gr']][0]}"); lds_wait(vt,vt+5,C,'gt',GT[CFG['gr']][1],0)
        p(f"{g1}:")
    if CFG['hsp']&1:
        vp=p.lab("vecp"); sp=p.lab("scp"); so=p.lab("scok")
        p(f"s_cmp_eq_u32 s{HW}, 0\ns_cbranch_scc1 {vp}")
        for i in range(4): p(f"s_bfe_u32 s{8+i}, s{sT+21}, {hex((8+4*i)|(4<<16))}\ns_lshl_b32 s{8+i}, s{8+i}, 10\ns_add_u32 s{8+i}, s{8+i}, s{sF}")
        p(f"s_mov_b32 s{C}, 256\n{sp}:")
        for i in range(4): p(f"s_load_dword s{4+i}, s[{sWS}:{sWS+1}], s{8+i} glc")
        p("s_waitcnt lgkmcnt(0)")
        for i in range(4): p(f"s_xor_b32 s{4+i}, s{4+i}, s{sTAG}")
        p(f"""s_or_b32 s4, s4, s5
        s_or_b32 s6, s6, s7
        s_or_b32 s4, s4, s6
        s_cbranch_scc0 {so}
        s_sub_u32 s{C}, s{C}, 1
        {f"s_sleep {CFG['hsl']}" if CFG['hsl'] else ""}
        s_cbranch_scc0 {sp}
        {vp}:""")
        flag_poll(aF,vt+5,sF,C,sleep=CFG['hsl'])
        p(f"{so}:")
    elif CFG['hpoll']: flag_poll2(aF,vt+5,sF,C,CFG['hpoll'],CFG['hsl'])
    else: flag_poll(aF,vt+5,sF,C,sleep=CFG['hsl'])
    STAMP('hf')
    both()
    if CFG['wpause']: p(f"s_lshl_b32 s{A}, s{HW}, 2\ns_add_u32 s{A}, s{A}, {F_RI-4}\nv_mov_b32 v{vt+2}, s{A}\nds_write_b32 v{vt+2}, v{vt+1}")
    if CFG['mtw'] in ('RI','MI'):
        nt_=p.lab("nori"); d2=p.lab("g2d")
        p(f"s_cmp_eq_u32 s{HW}, {int(CFG['mtw']=='RI')}\ns_cbranch_scc0 {nt_}")
        touch(vTM,sWG,0); touch(vTM,sWU,0)
        p(f"s_waitcnt vmcnt(2)\ns_branch {d2}\n{dn}:\ns_cmp_eq_u32 s{HW}, {int(CFG['mtw']=='RI')}\ns_cbranch_scc0 {d2}")
        touch(vTM,sWG,0); touch(vTM,sWU,0)
        p(f"s_branch {d2}\n{nt_}:"); dn=d2
    p(f"""s_waitcnt vmcnt(0)
    {dn}:
    s_lshl_b32 s{A}, s{HW}, 2
    s_add_u32 s{A}, s{A}, {F_M}
    v_mov_b32 v{vt}, {F_G2}
    v_mov_b32 v{vt+2}, s{A}
    s_mov_b64 exec, 1
    ds_write_b32 v{vt+2}, v{vt+1}
    {f"ds_write_b32 v{vt+2}, v{vt+1} offset:{F_RI-4-F_M}" if CFG['wpause'] else ""}
    ds_add_u32 v{vt}, v{vt+1}
    s_mov_b64 exec, -1""")
    STAMP('g2')
    if CFG['mtw']=='sm':
        u=p.lab("smu"); j=p.lab("smj")
        def run(r,n,f):
            for i in range(n):
                if CFG['smx']==2: p(f"s_load_dwordx2 s[100:101], s[{r}:{r+1}], s{A} offset:{f(i)+60}")
                else: p(f"s_load_dword s100, s[{r}:{r+1}], s{A} offset:{f(i)}")
        p(f"""s_mul_i32 s{A}, s{sSLOT}, {20*3072}
        s_mul_i32 s{B}, s{sG}, 384
        s_add_u32 s{A}, s{A}, s{B}
        s_cmp_eq_u32 s{HW}, 0
        s_cbranch_scc0 {u}""")
        run(sWG,60,lambda i:(i//3)*3072+(i%3)*128)
        p(f"s_branch {j}\n{u}:")
        run(sWU,60,lambda i:(i//3)*3072+(i%3)*128)
        p(f"{j}:")
        if CFG['smd']:
            p(f"""s_lshl_b32 s{A}, s{sSLOT}, 1
            s_add_u32 s{A}, s{A}, s{HW}
            s_mul_i32 s{A}, s{A}, {24*1280}
            s_mul_i32 s{B}, s{sG}, 160
            s_and_b32 s{B}, s{B}, -128
            s_add_u32 s{A}, s{A}, s{B}""")
            run(sWD,48,lambda i:(i//2)*1280+(i%2)*128)
        STAMP('mt')
        if CFG['prof'] and any('mt2' in x for x in CFG['st']): p("s_waitcnt lgkmcnt(0)"); STAMP('mt2')
    if 'w3' in (CFG['wtw'],CFG['mtw']):
        fa=dict(G1=(F_G1,4),WOR=(F_WOR,2),WOD=(F_WOD,2),WO2=(F_WO2,2),DONE=(F_DONE,4),PR=(F_PR,4),LD=(F_LD,1),RL=(F_H2,4))[CFG['mtg']]
        p(f"v_mov_b32 v{vt}, {fa[0]}")
        if CFG['mth']:
            nt_=p.lab("nomt")
            p(f"s_cmp_eq_u32 s{sHF}, 0\ns_cbranch_scc1 {nt_}")
        lds_wait(vt,vt+5,C,'gt',fa[1],1)
        wtouch('w3',0)
        if CFG['mth']:
            p(f"v_subrev_u32 v{vTM}, {20*3072}, v{vTM}")
            if CFG['mth']==2: p("s_waitcnt vmcnt(0)")
            wtouch('w3',0)
            p(f"{nt_}:")
        if CFG['dw3']: touch(vTD,sWD,CFG['mpair'])
        STAMP('mt')
        if CFG['prof'] and any('mt2' in x for x in CFG['st']): p("s_waitcnt vmcnt(0)"); STAMP('mt2')

def tr_addr(a0,t):
    tab=[[0,8],[4,12],[16,36],[20,28],[24,32]]
    pk=[sum((tab[u][rd]//4)<<(4*u) for u in range(5)) for rd in range(2)]
    A=sT+7; B=sT+8
    p(f"""s_mov_b32 s{A}, {pk[0]}
    s_mov_b32 s{B}, {pk[1]}
    v_bfe_u32 v{t}, v0, 2, 2
    v_mul_u32_u24 v{t}, 160, v{t}
    v_and_b32 v{t+1}, 3, v0
    v_mad_u32_u24 v{t}, v{t+1}, 40, v{t}
    v_lshrrev_b32 v{t+1}, 4, v0""")
    for s_ in range(5):
        p(f"""v_add_u32 v{t+2}, {4*s_}, v{t+1}
        v_mul_u32_u24 v{t+4}, 52, v{t+2}
        v_lshrrev_b32 v{t+4}, 8, v{t+4}
        v_mul_u32_u24 v{t+5}, 5, v{t+4}
        v_sub_u32 v{t+2}, v{t+2}, v{t+5}
        v_lshlrev_b32 v{t+2}, 2, v{t+2}
        v_mul_u32_u24 v{t+4}, 10, v{t+4}""")
        for rd in range(2):
            p(f"""v_bfe_u32 v{t+3}, s{(A,B)[rd]}, v{t+2}, 4
            v_add_u32 v{t+3}, v{t+3}, v{t+4}
            v_mul_u32_u24 v{t+3}, 640, v{t+3}
            v_add_u32 v{a0+2*s_+rd}, v{t+3}, v{t}""")
sBLK,sJ=sT+9,sT+10
def wo_ids():
    p(f"""s_lshr_b32 s{sBLK}, s{sSLOT}, 3
    s_lshl_b32 s{sJ}, s{sG}, 2
    s_add_u32 s{sBLK}, s{sBLK}, s{sJ}
    s_and_b32 s{sJ}, s{sSLOT}, 7""")
def clr_ids(A,B,C,D_):
    p(f"""s_lshr_b32 s{C}, s{sSLOT}, 3
    s_lshl_b32 s{B}, s{sG}, 2
    s_add_u32 s{C}, s{C}, s{B}
    s_lshl_b32 s{C}, s{C}, 3
    s_and_b32 s{B}, s{sSLOT}, 7
    s_add_u32 s{D_}, s{C}, s{B}
    s_lshr_b32 s{A}, s{D_}, 1
    s_mul_i32 s{A}, s{A}, 20480
    s_and_b32 s{B}, s{B}, 1
    s_mul_i32 s{B}, s{B}, 5120
    s_add_u32 s{A}, s{A}, s{B}
    s_add_u32 s{A}, s{A}, {OB}
    s_mul_i32 s{B}, s{sHH}, 10240
    s_add_u32 s{C}, s{A}, 10240
    s_add_u32 s{A}, s{A}, s{B}
    s_sub_u32 s{C}, s{C}, s{B}
    s_lshl_b32 s{D_}, s{D_}, 10
    s_add_u32 s{D_}, s{D_}, {PS}""")
def clears(part):
    A=sT+13; B=sT+14; C=sT+15; D_=sT+16; D=12; aL=16
    if part==0:
        clr_ids(A,B,C,D_)
        p(f"v_lshlrev_b32 v{aL}, 4, v0")
        for r in range(4): p(f"v_mov_b32 v{D+r}, -1")
        return
    st4=lambda so,off,sc: f"buffer_store_dwordx4 v[{D}:{D+3}], v{aL}, {S4(sWS)}, s{so} offen offset:{off} {sc}" if not (CFG['noclr']>>(0 if sc!='sc1' else 1))&1 else "s_nop 0"
    w2=p.lab("clw2"); w3=p.lab("clw3"); dn=p.lab("cldn")
    if CFG['hsent']:
        H_=sT+17; nh=p.lab("clnh")
        p(f"""s_cmp_eq_u32 s{sWAVE}, 3
        s_cbranch_scc1 {nh}
        s_lshl_b32 s{B}, s{sWAVE}, 8
        s_add_u32 s{B}, s{B}, s2
        s_sub_u32 s{H_}, s{B}, 384
        s_cselect_b32 s{H_}, s{B}, s{H_}
        s_cselect_b32 s{H_+1}, 3, 2
        s_cselect_b32 s{H_+2}, 0, {VH+10240-KH-20480}
        s_cselect_b32 s{H_+3}, 1, 0
        s_lshr_b32 s{B}, s{H_}, s{H_+1}
        s_lshl_b32 s{H_+1}, s{B}, s{H_+1}
        s_sub_u32 s{H_}, s{H_}, s{H_+1}
        s_mul_i32 s{H_}, s{H_}, 2560
        s_add_u32 s{H_}, s{H_}, s{H_+2}
        s_mul_i32 s{H_+1}, s{B}, 171
        s_lshr_b32 s{H_+1}, s{H_+1}, 9
        s_add_u32 s{B}, s{B}, s{H_+1}
        s_mul_i32 s{B}, s{B}, 20480
        s_lshl_b32 s{B}, s{B}, s{H_+3}
        s_add_u32 s{H_}, s{H_}, s{B}
        s_add_u32 s{H_}, s{H_}, {KH+20480}""")
        for o in (0,1024,1536): p(st4(H_,o,"sc1"))
        p(f"{nh}:")
    p(f"""s_cmp_ge_u32 s{sWAVE}, 2
    s_cbranch_scc1 {w2}
    s_mul_i32 s{B}, s{sWAVE}, 2560
    s_add_u32 s{A}, s{A}, s{B}""")
    for o in (0,1024,1536): p(st4(A,o,CFG['cpol']))
    p(f"""s_branch {dn}
    {w2}:
    s_cmp_eq_u32 s{sWAVE}, 3
    s_cbranch_scc1 {w3}
    s_mul_i32 s{C}, s2, 2560
    s_add_u32 s{C}, s{C}, {CAND}""")
    if 'c' in CFG['ptc']: p(f"v_lshlrev_b32 v228, 7, v0\ns_mov_b64 exec, {0x3ff if 'l' in CFG['ptc'] else 0xfffff}\nbuffer_load_dword v229, v228, {S4(sWS)}, s{C} offen\ns_mov_b64 exec, -1")
    for o in (0,1024,1536): p(st4(C,o,"sc1"))
    p(f"""s_branch {dn}
    {w3}:""")
    if CFG['osent']:
        if 'o' in CFG['ptc']: p(f"v_lshlrev_b32 v228, 7, v0\ns_mov_b32 exec_hi, 0xff\nbuffer_load_dword v229, v228, {S4(sWS)}, s{C} offen\ns_mov_b64 exec, -1")
        for o in range(4): p(st4(C,o*1024,"sc1"))
        p(f"s_add_u32 s{C}, s{C}, 4096"); p(st4(C,0,"sc1"))
    p(f"""s_cmp_ge_u32 s2, 24
    s_cbranch_scc1 {dn}
    s_lshl_b32 s{C}, s2, 10
    s_add_u32 s{C}, s{C}, {ACT}""")
    if 'a' in CFG['ptc']: p(f"v_lshlrev_b32 v228, 7, v0\ns_mov_b64 exec, 0xff\nbuffer_load_dword v229, v228, {S4(sWS)}, s{C} offen\ns_mov_b64 exec, -1")
    p(st4(C,0,"sc1"))
    p(f"{dn}:")
cU=sT+13; vC=84
def hclear_setup(isB):
    A=sT+15; B=sT+16; C=sT+17; D_=sT+18; H_=sT+17
    clr_ids(A,B,C,D_)
    if isB: p(f"""s_mul_i32 s{B}, s2, 2560
        s_add_u32 s{B}, s{B}, {CAND}
        s_add_u32 s{A}, s{C}, 2560
        s_cmp_eq_u32 s{HW}, 2
        s_cselect_b32 s{cU+1}, s{B}, s{A}
        s_mov_b32 s{cU}, s{C}""")
    else: p(f"""s_mul_i32 s{B}, s{HW}, 2560
        s_add_u32 s{cU+1}, s{A}, s{B}""")
    p(f"""s_lshl_b32 s{B}, s{HW}, 8
    s_add_u32 s{B}, s{B}, s2
    s_sub_u32 s{H_}, s{B}, 384
    s_cselect_b32 s{H_}, s{B}, s{H_}
    s_cselect_b32 s{H_+1}, 3, 2
    s_cselect_b32 s{H_+2}, 0, {VH+10240-KH-20480}
    s_cselect_b32 s{H_+3}, 1, 0
    s_lshr_b32 s{B}, s{H_}, s{H_+1}
    s_lshl_b32 s{H_+1}, s{B}, s{H_+1}
    s_sub_u32 s{H_}, s{H_}, s{H_+1}
    s_mul_i32 s{H_}, s{H_}, 2560
    s_add_u32 s{H_}, s{H_}, s{H_+2}
    s_mul_i32 s{H_+1}, s{B}, 171
    s_lshr_b32 s{H_+1}, s{H_+1}, 9
    s_add_u32 s{B}, s{B}, s{H_+1}
    s_mul_i32 s{B}, s{B}, 20480
    s_lshl_b32 s{B}, s{B}, s{H_+3}
    s_add_u32 s{H_}, s{H_}, s{B}
    s_add_u32 s{H_}, s{H_}, {KH+20480}""")
    if isB: p(f"""s_cmp_eq_u32 s{HW}, 2
        s_cselect_b32 s{cU}, s{H_}, s{cU}
        s_cselect_b32 s{cU+3}, 256, s2
        s_lshl_b32 s{cU+2}, s2, 10
        s_cmp_lt_u32 s{cU+3}, 24
        s_cselect_b32 s{H_}, 0, {STX+0x20000-ACT}
        s_add_u32 s{cU+2}, s{cU+2}, s{H_}
        s_add_u32 s{cU+2}, s{cU+2}, {ACT}""")
    else: p(f"""s_mov_b32 s{cU}, s{H_}
        s_getreg_b32 s{A}, hwreg(HW_REG_XCC_ID, 0, 4)
        s_or_b32 s{A}, s{A}, s{sTAG}
        v_mov_b32 v{vC+5}, s{A}
        s_lshl_b32 s{cU+2}, s2, 2
        s_add_u32 s{cU+2}, s{cU+2}, {H1}""")
    p(f"v_lshlrev_b32 v{vC+4}, 4, v0")
    for r in range(4): p(f"v_mov_b32 v{vC+r}, -1")
def hclear(c,isB):
    st=lambda so,off,sc: (p(f"buffer_store_dwordx4 v[{vC}:{vC+3}], v{vC+4}, {S4(sWS)}, s{so} offen offset:{off} {sc}"),OPS.append('clr'))
    ks=[k for k in range(2) if CFG['cst'][k]==c and (CFG['hsent'] or k or isB)]
    pol=lambda k: "sc1" if isB or k==0 else CFG['cpol']
    for k in ks: st(cU+k,0,pol(k)); st(cU+k,1024,pol(k))
    if ks: p(f"s_mov_b64 exec, s[{sLO}:{sLO+1}]")
    for k in ks: st(cU+k,2048,pol(k))
    if ks: p("s_mov_b64 exec, -1")
    if isB and c==CFG['cst'][1]:
        sk=p.lab("noact")
        p(f"s_cmp_lt_u32 s{cU+3}, 24\ns_cselect_b64 exec, -1, 1"); st(cU+2,0,"sc1"); p("s_mov_b64 exec, -1")
    if not isB and c==max(CFG['cst'])+2:
        p(f"s_mov_b64 exec, 1\nbuffer_store_dword v{vC+5}, v{vC+4}, {S4(sWS)}, s{cU+2} offen sc1\ns_mov_b64 exec, -1"); OPS.append('clr')
sSM=sT+11
def sm_setup():
    A=sT+20
    p(f"""s_and_b32 s{A}, s{HW}, 1
    s_lshl_b32 s{sSM}, s{sSLOT}, 1
    s_add_u32 s{A}, s{A}, s{sSM}
    s_mul_i32 s{sSM}, s{A}, {10*3072}
    s_mul_i32 s{A}, s{sG}, 384
    s_add_u32 s{sSM}, s{sSM}, s{A}
    s_lshl_b32 s{A}, s2, 2
    s_add_u32 s{A}, s{A}, s{HW}
    s_mul_i32 s{sSM+1}, s{A}, 800
    s_and_b32 s{sSM+1}, s{sSM+1}, -128""")
def sm_touch(c,isB):
    for opt,n,f in ((CFG['smw'],30,lambda i: f"s_load_dword s100, s[{(sWG,sWU)[isB]}:{(sWG,sWU)[isB]+1}], s{sSM} offset:{(i//3)*3072+(i%3)*128}"),
                    (CFG['smo'],7,lambda i: f"s_load_dword s100, s[{sWO}:{sWO+1}], s{sSM+1} offset:{i*128}")):
        if opt and opt[0]<=c<opt[1]:
            k=opt[1]-opt[0]
            for i in range(n*(c-opt[0])//k,n*(c+1-opt[0])//k): p(f(i))
def code_pf():
    A=sT+18
    p(f"""s_getpc_b64 s[{A}:{A+1}]
    L_pc:
    s_sub_u32 s{A}, s{A}, L_pc-{NAME}_kernel
    s_subb_u32 s{A+1}, s{A+1}, 0
    s_lshl_b32 s{A+2}, s{sSLOT}, 2
    s_add_u32 s{A+2}, s{A+2}, s{sWAVE}
    s_mul_i32 s{A+2}, s{A+2}, 384
    s_min_u32 s{A+2}, s{A+2}, (L_exit-{NAME}_kernel-384)&0xffffff80""")
    for i in range(3): p(f"s_load_dwordx2 s[100:101], s[{A}:{A+1}], s{A+2} offset:{i*128+60}")
def wave_sum(x,t):
    dp="row_mask:0xf bank_mask:0xf"
    for c in ("quad_perm:[1,0,3,2]","quad_perm:[2,3,0,1]","row_half_mirror","row_mirror"):
        p(f"s_nop 1\nv_add_f32_dpp v{x}, v{x}, v{x} {c} {dp}")
    for sw in (16,32):
        p(f"""v_mov_b32 v{t}, v{x}
        s_nop 1
        v_permlane{sw}_swap_b32 v{x}, v{t}
        s_nop 0
        v_add_f32 v{x}, v{x}, v{t}""")
sPF=sT+16
def pf_group(n=5):
    for i in range(n): p(f"s_load_dwordx2 s[100:101], s[{sWO}:{sWO+1}], s{sPF} offset:{i*128+60}")
    p(f"""s_add_u32 s{sPF}, s{sPF}, {n*128}
    s_sub_u32 s{sPF+2}, s{sPF+2}, 1
    s_add_u32 s{sPF+3}, s{sPF+1}, 12800
    s_cmp_eq_u32 s{sPF}, s{sPF+3}
    s_cselect_b32 s{sPF}, s{sPF+1}, s{sPF}""")
def helperB(steps):
    A=sT+7; B=sT+8; vt=2; aD=140; aT=146; aLin=12; D=40; WRr=32
    sO=sT+1; sL=sT+2; sL0=sT+3; sL1=sT+4; C=sT+5
    p("L_helperB:")
    vM=23; x=10; a=sT+16
    clr_ids(a,a+1,a+2,a+3)
    p(f"""s_mul_i32 s{a+1}, s{HW}, 25
    s_sub_u32 s{a+1}, s{a+1}, 50
    v_min_u32 v{x}, 24, v0
    v_add_u32 v{x}, s{a+1}, v{x}
    v_min_u32 v{x}, 48, v{x}
    s_sub_u32 s{a+3}, s{a+3}, {40*128}
    s_and_b32 s{a+1}, s{sSLOT}, 15
    s_lshl_b32 s{a+2}, s{sG}, 4
    s_add_u32 s{a+1}, s{a+1}, s{a+2}
    s_lshl_b32 s{a+1}, s{a+1}, 7
    s_add_u32 s{a+1}, s{a+1}, {FL-48*128}
    v_mov_b32 v{x+1}, s{a}
    v_mov_b32 v{x+2}, s{a+3}
    v_cmp_le_u32 vcc, 40, v{x}
    v_mov_b32 v{x+3}, s{a+1}
    s_mul_i32 s{a+1}, s{sSLOT}, {200*128}
    v_cndmask_b32 v{x+1}, v{x+1}, v{x+2}, vcc
    v_cmp_le_u32 vcc, 48, v{x}
    s_mul_i32 s{a}, s{HW}, {100*128}
    s_add_u32 s{a+1}, s{a+1}, s{a}
    v_cndmask_b32 v{x+1}, v{x+1}, v{x+3}, vcc
    v_lshl_add_u32 v{vM}, v{x}, 7, v{x+1}
    s_sub_u32 s{sPF+1}, s{a+1}, {200*128}
    s_mul_i32 s{sPF}, s{sG}, 5
    s_lshr_b32 s{sPF}, s{sPF}, 1
    s_mul_i32 s{sPF}, s{sPF}, 640
    s_add_u32 s{sPF}, s{sPF}, s{sPF+1}
    s_mov_b32 s{sPF+2}, 20
    v_lshlrev_b32 v{vH+4}, 4, v0
    v_add_u32 v{vH+4}, {H1}, v{vH+4}
    v_mul_u32_u24 v{WRr+5}, 20, v0""")
    aB=130; sK=sT+11; sN=sT+16; sS=sT+17
    def wo_setup():
        va=96
        wo_ids()
        T=[[0,2],[1,3],[4,9],[5,7],[6,8]]
        NIB=[sum((10*((4*s5+g_)//5)+T[(4*s5+g_)%5][rd]-(8*s5+2*g_-2))<<(4*(4*rd+g_)) for rd in range(2) for g_ in range(4)) for s5 in range(5)]
        for i in range(5):
            p(f"""v_add_u32 v{va}, {64*i}, v0
            v_mul_u32_u24 v{va+1}, 6554, v{va}
            v_lshrrev_b32 v{va+1}, 16, v{va+1}
            v_mul_u32_u24 v{va+2}, 10, v{va+1}
            v_sub_u32 v{va}, v{va}, v{va+2}
            v_and_b32 v{aB+5+i}, 28, v{va+1}
            v_and_b32 v{va+2}, 3, v{va+1}
            v_mul_u32_u24 v{va+2}, 1280, v{va+2}
            v_lshl_add_u32 v{va}, v{va}, 4, v{va+2}
            v_bfe_u32 v{va+1}, v{va+1}, 2, 2
            v_mul_u32_u24 v{va+1}, 10240, v{va+1}
            v_add_u32 v{aB+i}, v{va}, v{va+1}""")
            if 0<i<4: p(f"v_subrev_u32 v{aB+i}, {i*1024}, v{aB+i}")
        p(f"""s_lshr_b32 s{A}, s{sSLOT}, 3
        s_mul_i32 s{A}, s{A}, 5
        s_lshr_b32 s{A}, s{A}, 1
        s_add_u32 s{A}, s{A}, s{HW}
        s_sub_u32 s{sK}, s{A}, 2
        v_mov_b32 v{va}, 5120""")
        def woaddr(n):
            p(f"""s_add_u32 s{A}, s{sK}, {2*n}
            s_sub_u32 s{B}, s{A}, 10
            s_cselect_b32 s{A}, s{A}, s{B}
            s_sub_u32 s{B}, s{A}, 5
            s_cselect_b32 s{B}, s{A}, s{B}
            s_mul_i32 s{sS}, s{A}, 40960
            s_sub_u32 s{sS}, s{sS}, 10240
            s_mov_b32 s{sN}, {hex(NIB[0])}""")
            for k in range(1,5): p(f"s_cmp_eq_u32 s{B}, {k}\ns_cselect_b32 s{sN}, {hex(NIB[k])}, s{sN}")
            for i in range(5):
                p(f"""v_bfe_u32 v{va+1}, s{sN}, v{aB+5+i}, 4
                v_mad_u32_u24 v{va+1}, v{va+1}, v{va}, v{aB+i}
                v_add_u32 v{aD+5*n+i}, s{sS}, v{va+1}""")
        for n in range(5): woaddr(n)
    if CFG['wose']==0: wo_setup()
    npf=CFG['npf']
    for _ in range(npf[0]): pf_group()
    def hook(c):
        if c==(100 if CFG['hstep']==CFG['stg'] else CFG['hstep']):
            p(f"buffer_load_dwordx4 v[{vH}:{vH+3}], v{vH+4}, {S4(sWS)}, 0 offen sc1"); OPS.append('h1')
        if c==100:
            p(f"buffer_load_dwordx4 {vr(WRr,4)}, v{WRr+5}, {S4(sWR)}, 0 offen\nbuffer_load_dword v{WRr+4}, v{WRr+5}, {S4(sWR)}, 0 offen offset:16"); OPS.extend(['wr','wr'])
        if c==CFG['pt']:
            qkv_touch()
            OPS.extend(['pt']*wtouch('w1',1))
        if c==CFG['wts']: OPS.extend(['pt']*touch(vTW,sWO,0))
        if c==CFG['pt2']: OPS.extend(['pt']*touch(vM,sWS,CFG['qpair2'],CFG['tpol']))
    steps(hook,1)
    st=dict(n=0)
    def dma(cnt):
        for _ in range(min(cnt,50-st['n'])):
            n=st['n']; i=n%5; k=(n//5)%5
            if n==0 or n==25:
                p(f"""s_xor_b32 s{A}, s{sHH}, {n//25}
                s_mul_i32 s{sO}, s{A}, {320*1280}
                s_mul_i32 s{sL0}, s{A}, 51200
                s_add_u32 s{sL0}, s{sL0}, {L_WO}
                s_mul_i32 s{A}, s{sJ}, 160
                s_add_u32 s{sO}, s{sO}, s{A}""")
            if i==0: p(f"""s_add_u32 s{A}, s{sK}, {2*k}
                s_sub_u32 s{B}, s{A}, 10
                s_cselect_b32 s{A}, s{A}, s{B}
                s_mul_i32 s{sL}, s{A}, 5120
                s_add_u32 s{sL}, s{sL}, s{sL0}
                s_mov_b32 m0, s{sL}
                s_nop 0""")
            if i==4: p(f"s_add_u32 m0, s{sL}, 4096\ns_nop 0")
            p(f"buffer_load_dwordx4 v{aD+5*k+i}, {S4(sWO)}, s{sO} offen offset:{(i&3)*1024} {CFG['wopol']} lds")
            OPS.append('wo%d'%(n//25))
            st['n']+=1
    vmwait(8); p("s_barrier"); hook(8)
    p(f"v_lshlrev_b32 v{aLin}, 4, v0")
    vmwait(9); p("s_barrier"); hook(9)
    stats_fin(96,B)
    vmwait('h1')
    lp=p.lab("hello"); ok=p.lab("hello_ok"); ne=p.lab("noep")
    p(f"""s_mov_b32 s{A}, {SPIN}
    {lp}:
    v_xor_b32 v{vH}, s{sTAG}, v{vH}
    v_xor_b32 v{vH+1}, s{sTAG}, v{vH+1}
    v_xor_b32 v{vH+2}, s{sTAG}, v{vH+2}
    v_xor_b32 v{vH+3}, s{sTAG}, v{vH+3}
    v_or3_b32 v{vt}, v{vH}, v{vH+1}, v{vH+2}
    v_or_b32 v{vt}, v{vt}, v{vH+3}
    v_cmp_lt_u32 vcc, 15, v{vt}
    s_nop 0
    s_cbranch_vccz {ok}""")
    spin(A,lp,ok,4)
    p(f"""buffer_load_dwordx4 v[{vH}:{vH+3}], v{vH+4}, {S4(sWS)}, 0 offen sc1
    s_waitcnt vmcnt(0)
    s_branch {lp}
    {ok}:
    v_lshl_or_b32 v{vH}, v{vH+1}, 4, v{vH}
    v_lshl_or_b32 v{vH+2}, v{vH+3}, 4, v{vH+2}
    v_lshl_or_b32 v{vH}, v{vH+2}, 8, v{vH}
    v_and_b32 v{vt}, 1, v0
    v_readlane_b32 s{A}, v{vH}, 0
    v_readlane_b32 s{B}, v{vH}, 1
    v_cmp_eq_u32 vcc, 0, v{vt}
    v_mov_b32 v{vt+1}, s{A}
    v_mov_b32 v{vt+2}, s{B}
    v_cndmask_b32 v{vt+1}, v{vt+2}, v{vt+1}, vcc
    v_cmp_ne_u32 vcc, v{vt+1}, v{vH}
    v_mov_b32 v{vt}, {L_MODE}
    s_cmp_lg_u64 vcc, 0
    s_cselect_b32 s{sMODE}, 1, {CFG['force_slow']}
    v_mov_b32 v{vt+1}, s{sMODE}
    ds_write_b32 v{vt}, v{vt+1}
    s_barrier
    s_waitcnt lgkmcnt(0)
    s_barrier""")
    vmw=len(OPS)-1-max(i for i,t in enumerate(OPS) if t=='wr')
    STAMP('hE1')
    p(f"""v_mov_b32 v{vt}, 0x3f803f80
    v_mov_b32 v{vt+1}, 0
    s_waitcnt vmcnt({vmw})""")
    for k in range(5): p(f"v_dot2_f32_bf16 v{vt+1}, v{WRr+k}, v{vt}, v{vt+1}")
    p("s_nop 0")
    wave_sum(vt+1,vt+2)
    p(f"v_mov_b32 v{vt}, {L_SWS}\nds_write_b32 v{vt}, v{vt+1}")
    if CFG['wose']==1: wo_setup()
    if CFG['hst']: halo_copy(vt,A,B,C,wo_setup if CFG['wose']==2 else (lambda:None))
    else:
        halo_flag(vt,A,B,C)
        if CFG['wose']==2: wo_setup()
    p(f"""s_add_u32 s{A}, s2, s{HW}
    s_cmp_lg_u32 s{A}, 2
    s_cbranch_scc1 {ne}
    s_add_u32 s{A}, s{sEP}, 1
    v_mov_b32 v{vt}, {EPO}
    v_mov_b32 v{vt+1}, s{A}
    s_mov_b64 exec, 1
    buffer_store_dword v{vt+1}, v{vt}, {S4(sWS)}, 0 offen sc1
    s_mov_b64 exec, -1
    {ne}:""")
    if CFG['hkv']:
        att_ids()
        p(f"s_mov_b32 s{sK1024}, 1024")
        kv_addr(aLin,13,vt)
        own_setup(14,vt)
        own_kv(aLin,13,14,vt,sHO)
    p(f"v_mov_b32 v{vt}, {F_G1}")
    if CFG['wburst']:
        p(f"""s_lshl_b32 s{B}, s{sSLOT}, 1
        s_add_u32 s{B}, s{B}, s{HW}
        s_sub_u32 s{B}, s{B}, 2
        s_mul_i32 s{B}, s{B}, 12800
        v_lshl_add_u32 v{vTW}, v0, 7, s{B}
        v_min_u32 v{vTW+1}, 35, v0
        v_lshl_add_u32 v{vTW+1}, v{vTW+1}, 7, s{B}
        v_add_u32 v{vTW+1}, 8192, v{vTW+1}""")
        if CFG['wburst']==2: touch(vTW,sWO,0); touch(vTW+1,sWO,0)
    lds_wait(vt,vt+1,A,'gt',4,1)
    if CFG['wburst']==1: touch(vTW,sWO,0); touch(vTW+1,sWO,0)
    wtouch('w3',1)
    if CFG['wog2']:
        p(f"v_mov_b32 v{vt+2}, {F_G2}")
        lds_wait(vt+2,vt+1,A,'gt',2,1)
    STAMP('wo_s')
    del OPS[:]
    thr=CFG['wothr']; gs=CFG['wogs']; thr1=CFG['wothr1']
    def more(n,dyn=False):
        while n>0 and st['n']<50:
            k=min(gs,n)
            if dyn and thr1<thr and st['n']>=thr1:
                sk=p.lab("wog")
                p(f"""ds_read_b32 v{vt+1}, v{vt} offset:{(F_G2 if CFG['wgf']=='G2' else F_M)-F_G1}
                s_waitcnt lgkmcnt(0)
                v_cmp_gt_u32 vcc, {2 if CFG['wgf']=='G2' else 1}, v{vt+1}
                s_nop 0
                s_cbranch_vccz {sk}
                s_waitcnt vmcnt({max(0,thr1-k)})
                {sk}:""")
            if CFG['wpause'] and st['n']==CFG['wpause']:
                p(f"v_mov_b32 v{vt+2}, {F_RI}"); lds_wait(vt+2,vt+1,A,'gt',1,1); STAMP('wo_p')
            if st['n']>=thr: p(f"s_waitcnt vmcnt({max(0,thr-k)})")
            gi=st['n']//gs; a_,b_=CFG['mtr']
            dma(k); n-=k
            if CFG['mtw']=='wo' and a_<=gi<b_:
                l0=60*(gi-a_)//(b_-a_); l1=60*(gi+1-a_)//(b_-a_); msk=((1<<l1)-1)^((1<<l0)-1)
                u=p.lab("tu"); j=p.lab("tj")
                p(f"s_mov_b32 exec_lo, {hex(msk&0xffffffff)}\ns_mov_b32 exec_hi, {hex(msk>>32)}\ns_cmp_eq_u32 s{HW}, 2\ns_cbranch_scc0 {u}")
                touch(vTM,sWG,0); p(f"s_branch {j}\n{u}:"); touch(vTM,sWU,0); p(f"{j}:\ns_mov_b64 exec, -1")
                OPS.append('mt')
    def sig(f):
        p(f"""v_mov_b32 v{vt+2}, {f}
        v_mov_b32 v{vt+3}, 1
        s_mov_b64 exec, 1
        ds_add_u32 v{vt+2}, v{vt+3}
        s_mov_b64 exec, -1""")
    more(25+min(thr,15),True)
    vmwait('wo0')
    sig(F_WOR)
    STAMP('wo_0')
    more(50)
    sig(F_WOD)
    STAMP('wo_1')
    p("s_waitcnt vmcnt(0)")
    sig(F_WO2)
    STAMP('wo')

ACC=64; CS=128; XF=132; WF=148; SEL=164; aX=168; aW=172; aST=174; aSG=178; vT=2
sWR_,sWC,sLC,sTY,sSO,sHALO,sFO,sSO2=range(sT,sT+8)
def gemm_setup():
    t=vT; A=sT+10; B=sT+11
    wave_ids(sWAVE,sWR_,sWC,sLC,sTY)
    p(f"""v_and_b32 v{t}, 31, v0
    s_lshl_b32 s{A}, s{sWR_}, 6
    v_add_u32 v{t+1}, s{A}, v{t}
    v_lshlrev_b32 v{t+1}, 7, v{t+1}
    v_lshrrev_b32 v{t+2}, 5, v0
    v_bfe_u32 v{t+3}, v0, 1, 3
    v_xor_b32 v{t+3}, v{t+3}, v{t+2}
    v_lshl_add_u32 v{aX}, v{t+3}, 4, v{t+1}""")
    for s in range(1,4): p(f"v_xor_b32 v{aX+s}, {32*s}, v{aX}")
    p(f"""v_bfe_u32 v{t+3}, v0, 2, 2
    v_lshl_add_u32 v{t+4}, v{t+2}, 3, v{t+3}
    v_lshlrev_b32 v{t+4}, 8, v{t+4}
    s_lshl_b32 s{A}, s{sWC}, 1
    s_or_b32 s{A}, s{A}, s{sWR_}
    v_xor_b32 v{t+3}, s{A}, v{t+3}
    v_lshl_add_u32 v{t+4}, v{t+3}, 6, v{t+4}
    v_bfe_u32 v{t+3}, v0, 4, 1
    v_lshl_add_u32 v{t+4}, v{t+3}, 5, v{t+4}
    v_and_b32 v{t+5}, 3, v0
    v_lshl_add_u32 v{t+4}, v{t+5}, 3, v{t+4}
    v_add_u32 v{aW}, 16384, v{t+4}
    v_xor_b32 v{aW+1}, 64, v{aW}
    v_bfe_u32 v{t+4}, v0, 2, 1
    v_cmp_eq_u32 vcc, v{t+3}, v{t+4}
    v_mov_b32 v{t+5}, 0x3f803f80
    s_nop 0
    v_cndmask_b32 v{SEL}, 0, v{t+5}, vcc
    v_cndmask_b32 v{SEL+1}, 0, v{t+5}, vcc
    v_cndmask_b32 v{SEL+2}, 0, v{t+5}, vcc
    v_cndmask_b32 v{SEL+3}, 0, v{t+5}, vcc""")
    for r in list(range(ACC,ACC+64))+list(range(CS,CS+4)): p(f"v_mov_b32 v{r}, 0")
    store_addr(sWR_,sLC,sTY,sSO,sSO2,sHALO,sFO,aST,sT+10,sT+11)
    p(f"s_mov_b32 s{sHAL2}, s{sHALO}")
    if CFG['hst']: p(f"""s_mul_i32 s{A}, s{sWAVE}, 9216
        s_add_u32 s{A}, s{A}, {L_WO}
        v_lshl_add_u32 v{aSG}, v0, 4, s{A}""")
sHAL2=sDBG
def wave_ids(wave,wr,wc,lc,ty):
    p(f"""s_and_b32 s{wr}, s{wave}, 1
    s_lshr_b32 s{wc}, s{wave}, 1
    s_lshl_b32 s{lc}, s{sCT}, 1
    s_add_u32 s{lc}, s{lc}, s{wc}
    s_cmp_eq_u32 s{lc}, 5
    s_cselect_b32 s{lc}, 15, s{lc}
    s_cmp_gt_u32 s{sCT}, 2
    s_subb_u32 s{lc}, s{lc}, 0
    s_mul_i32 s{ty}, s{lc}, 52
    s_lshr_b32 s{ty}, s{ty}, 8""")
def store_addr(wr,lc,ty,so,so2,halo,fo,ast,A,B,t=2):
    p(f"""v_and_b32 v{t}, 31, v0
    v_lshrrev_b32 v{t+2}, 5, v0
    s_mul_i32 s{A}, s{ty}, 5
    s_sub_u32 s{A}, s{lc}, s{A}
    s_mul_i32 s{B}, s{sHH}, 5
    s_add_u32 s{A}, s{A}, s{B}
    s_lshl_b32 s{B}, s{sBK}, 1
    s_add_u32 s{B}, s{B}, s{wr}
    s_lshl_b32 s{B}, s{B}, 1""")
    isv=p.lab("isv"); jn=p.lab("stj")
    p(f"""s_cmp_ge_u32 s{ty}, 2
    s_cbranch_scc1 {isv}
    s_mul_i32 s{so}, s{B}, 2560
    s_mul_i32 s{B}, s{ty}, {KB}
    s_add_u32 s{so}, s{so}, s{B}
    s_add_u32 s{so2}, s{so}, 2560
    s_lshl_b32 s{A}, s{A}, 3""")
    for cb in range(2):
        for ip in range(2):
            p(f"""s_xor_b32 s{B}, s{wr}, {cb}
            s_lshl_b32 s{B}, s{B}, 2
            s_add_u32 s{B}, s{B}, s{A}
            s_add_u32 s{B}, s{B}, {2*ip}
            v_add_u32 v{t+3}, s{B}, v{t+2}
            v_mul_u32_u24 v{t+4}, 205, v{t+3}
            v_lshrrev_b32 v{t+4}, 10, v{t+4}
            v_mul_u32_u24 v{t+5}, 5, v{t+4}
            v_sub_u32 v{t+5}, v{t+3}, v{t+5}
            v_mul_u32_u24 v{t+4}, {64*2560}, v{t+4}
            v_lshl_add_u32 v{t+4}, v{t+5}, 9, v{t+4}
            v_lshl_add_u32 v{ast+2*cb+ip}, v{t}, 4, v{t+4}""")
    p(f"""s_branch {jn}
    {isv}:
    s_mul_i32 s{so}, s{B}, 1280
    s_add_u32 s{so}, s{so}, {VB}
    s_add_u32 s{so2}, s{so}, 1280
    s_lshl_b32 s{A}, s{A}, 6""")
    for cb in range(2):
        p(f"""s_xor_b32 s{B}, s{wr}, {cb}
        s_lshl_b32 s{B}, s{B}, 5
        s_add_u32 s{B}, s{B}, s{A}
        v_add_u32 v{t+3}, s{B}, v{t}
        v_mul_u32_u24 v{t+4}, 3277, v{t+3}
        v_lshrrev_b32 v{t+4}, 16, v{t+4}
        v_mul_u32_u24 v{t+5}, 20, v{t+4}
        v_sub_u32 v{t+5}, v{t+3}, v{t+5}
        v_mul_u32_u24 v{t+4}, 81920, v{t+4}
        v_lshl_add_u32 v{t+4}, v{t+5}, 4, v{t+4}
        v_mul_u32_u24 v{t+5}, 320, v{t+2}
        v_add_u32 v{ast+2*cb}, v{t+4}, v{t+5}
        v_add_u32 v{ast+2*cb+1}, 640, v{ast+2*cb}""")
    p(f"{jn}:")
    halo_cond(halo,A)
    if CFG['honly']: p(f"s_mul_i32 s{A}, s{halo}, {KH-KB}\ns_add_u32 s{so}, s{so}, s{A}\ns_add_u32 s{so2}, s{so2}, s{A}")
    p(f"""s_lshl_b32 s{fo}, s{sG}, 4
    s_add_u32 s{fo}, s{fo}, s{lc}
    s_lshl_b32 s{fo}, s{fo}, 5
    s_lshl_b32 s{A}, s{sRB}, 1
    s_add_u32 s{A}, s{A}, s{wr}
    s_add_u32 s{fo}, s{fo}, s{A}
    s_lshl_b32 s{fo}, s{fo}, 2
    s_add_u32 s{fo}, s{fo}, {FL}""")
def xf(buf,xb): return XF+8*buf+4*xb
def wf(buf,cb): return WF+8*buf+4*cb
def reads(kind,buf,par,s):
    L=[]
    for xb in range(2): L.append(f"ds_read_b128 {vr(xf(buf,xb),4)}, v{aX+s} offset:{par*32768+xb*4096}")
    if kind!='S':
        for cb in range(2):
            for rd in range(2): L.append(f"ds_read_b64_tr_b16 {vr(wf(buf,cb)+2*rd,2)}, v{aW+cb} offset:{par*32768+s*4096+rd*1024}")
        L=[L[2],L[3],L[0],L[1],L[4],L[5]]
    return L
def mfmas(kind,buf):
    L=[]
    if kind=='S':
        for xb in range(2):
            x=xf(buf,xb)
            L.append(f"v_mfma_f32_16x16x32_bf16 {vr(ACC+4*xb,4)}, {vr(SEL,4)}, {vr(x,4)}, {vr(ACC+4*xb,4)}")
            L.append(f"v_mfma_f32_4x4x4_16b_bf16 {vr(ACC+8+8*xb,4)}, {vr(x,2)}, {vr(x,2)}, {vr(ACC+8+8*xb,4)}")
            L.append(f"v_mfma_f32_4x4x4_16b_bf16 {vr(ACC+12+8*xb,4)}, {vr(x+2,2)}, {vr(x+2,2)}, {vr(ACC+12+8*xb,4)}")
        return L
    for cb in range(2):
        for xb in range(2):
            a=ACC+16*(2*xb+cb); X=vr(xf(buf,xb),4); W=vr(wf(buf,cb),4)
            L.append(f"v_mfma_f32_32x32x16_bf16 {vr(a,16)}, {W if kind=='T' else X}, {X if kind=='T' else W}, {vr(a,16)}")
    L.insert(2,f"v_mfma_f32_16x16x32_bf16 {vr(CS,4)}, {vr(SEL,4)}, {vr(wf(buf,0),4)}, {vr(CS,4)}")
    return L
def gemm_loop(kind):
    CNT=sT+10
    lp=p.lab("g"+kind)
    STAMP('rdy')
    p("s_barrier")
    STAMP('b0')
    for r in reads(kind,0,0,0): p(r)
    if CFG['clr']==1 and not CFG['hclr']: clears(1)
    cl_=p.lab("clr"); cr_=p.lab("clrr")
    if CFG['clr']>1:
        n0=len(p.L); p(f"{cl_}:"); clears(1); p(f"s_branch {cr_}")
        COLD.append("\n".join(p.L[n0:])); del p.L[n0:]
    hl=p.lab("hello"); hr=p.lab("hellor")
    if not CFG['hclr']:
        COLD.append(f"""{hl}:
        s_getreg_b32 s{CNT+1}, hwreg(HW_REG_XCC_ID, 0, 4)
        s_or_b32 s{CNT+1}, s{CNT+1}, s{sTAG}
        v_mov_b32 v{vT}, s{CNT+1}
        s_lshl_b32 s{CNT+1}, s2, 2
        s_add_u32 s{CNT+1}, s{CNT+1}, {H1}
        v_mov_b32 v{vT+1}, 0
        s_mov_b64 exec, 1
        buffer_store_dword v{vT}, v{vT+1}, {S4(sWS)}, s{CNT+1} offen sc1
        s_mov_b64 exec, -1
        s_branch {hr}""")
        p(f"s_lshl_b32 s{CNT+2}, s{sWAVE}, 3\ns_add_u32 s{CNT+2}, s{CNT+2}, {5-CFG['clr']}")
    p(f"s_mov_b32 s{CNT}, 5\n{lp}:")
    if CFG['clr']>1: p(f"s_cmp_eq_u32 s{CNT}, {6-CFG['clr']}\ns_cbranch_scc1 {cl_}\n{cr_}:")
    for k in range(1,5):
        if (CFG['cal'] and CFG['cal'][0]=='it%d'%(2*k)) or (CFG['amp'] and 'it%d'%(2*k) in CFG['amp'][:2]) or (CFG['prof'] and any('it%d'%(2*k) in n.split('|') for n in CFG['st'])):
            sk=p.lab("its"); p(f"s_cmp_lg_u32 s{CNT}, {5-k}\ns_cbranch_scc1 {sk}"); STAMP('it%d'%(2*k)); p(f"{sk}:")
    for par in range(2):
        for s in range(4):
            buf=s&1
            last=(s==3)
            M=mfmas(kind,buf)
            if CFG['nomfma']: M=M[:1]
            if last and par==1:
                pre=[f"v_xor_b32 v{aX+i}, 0x10000, v{aX+i}" for i in range(4)]+[f"v_xor_b32 v{aW+i}, 0x10000, v{aW+i}" for i in range(2)]
            else: pre=[]
            R=reads(kind,buf^1,(par^1) if last else par,(s+1)&3)
            p("s_waitcnt lgkmcnt(0)")
            if last:
                p(M.pop(0))
                for x in pre: p(x)
                if par==0 and not CFG['hclr']:
                    w1=p.lab("cw"); w2=p.lab("cwr")
                    p(f"s_cmp_eq_u32 s{CNT}, {5-CFG['clr']}\ns_cbranch_scc1 {w1}\n{w2}:")
                    COLD.append(f"{w1}:\ns_waitcnt vmcnt(0)\ns_branch {w2}")
                p("s_barrier")
                if par==0 and not CFG['hclr']: p(f"s_cmp_eq_u32 s{CNT}, s{CNT+2}\ns_cbranch_scc1 {hl}\n{hr}:")
            k=0
            while M or R:
                if R: p(R.pop(0))
                if R: p(R.pop(0))
                if M: p(M.pop(0))
    p(f"""s_sub_u32 s{CNT}, s{CNT}, 1
    s_cmp_lg_u32 s{CNT}, 0
    s_cbranch_scc1 {lp}""")
    STAMP('gend')
def bf16r(dst,src):
    p(f"v_cvt_pk_bf16_f32 v{dst}, v{src}, v{src}\nv_and_b32 v{dst}, 0xffff0000, v{dst}")
def mode_read():
    p(f"""v_mov_b32 v{vT+8}, {L_MODE}
    ds_read_b32 v{vT+9}, v{vT+8}""")
def mode_get():
    p(f"v_readfirstlane_b32 s{sMODE}, v{vT+9}")
def dual(stores,pol='',sMODE=sMODE):
    sl=p.lab("slow"); jn=p.lab("jn")
    p(f"s_cmp_lg_u32 s{sMODE}, 0\ns_cbranch_scc1 {sl}")
    for s in stores: p(s+" "+pol)
    p(f"s_branch {jn}\n{sl}:")
    for s in stores: p(s+" sc1")
    p(f"{jn}:")
def idle_gemm():
    vt=10; aI=20; acc=28; one=32; D=64; A=sT+10
    p(f"""s_lshl_b32 s{A}, s{sWR_}, 13
    v_bfe_u32 v{vt}, v0, 1, 3
    v_lshlrev_b32 v{vt}, 4, v{vt}
    v_lshl_add_u32 v{vt}, v0, 7, v{vt}
    v_add_u32 v{aI}, s{A}, v{vt}
    v_mov_b32 v{one}, 0x3f803f80
    s_lshl_b32 s{A}, s{sG}, 2
    s_add_u32 s{A}, s{A}, s{sRB}
    s_lshl_b32 s{A}, s{A}, 14
    s_lshl_b32 s{A+1}, s{sWR_}, 10
    s_add_u32 s{A}, s{A}, s{A+1}
    s_add_u32 s{A}, s{A}, {STP+2*2048}
    v_lshlrev_b32 v{vt}, 4, v0""")
    for i in range(1,8): p(f"v_xor_b32 v{aI+i}, {16*i}, v{aI}")
    for i in range(4): p(f"v_mov_b32 v{acc+i}, 0")
    k=CFG['clr']
    for c in range(11):
        if c==1+2*k and not CFG['hclr']: p(f"s_waitcnt vmcnt({1 if k==1 else 0})")
        p("s_barrier")
        if k and c==2*k-2 and c!=2: clears(1)
        if c<3:
            if c==2:
                for i in range(8): p(f"v_add_u32 v{aI+i}, 0x10000, v{aI+i}")
            for i in range(8): p(f"ds_read_b128 {vr(D+4*i,4)}, v{aI+i} offset:{(c&1)*32768}")
            for i in range(8):
                p(f"s_waitcnt lgkmcnt({7-i})")
                for j in range(4):
                    r=D+4*i+j
                    p(f"v_dot2_f32_bf16 v{acc+(j&1)}, v{r}, v{one}, v{acc+(j&1)}\nv_dot2_f32_bf16 v{acc+2+(j&1)}, v{r}, v{r}, v{acc+2+(j&1)}")
        if c==2: p(f"""s_nop 1
            v_add_f32 v{acc}, v{acc}, v{acc+1}
            v_add_f32 v{acc+1}, v{acc+2}, v{acc+3}
            v_mov_b32 v{acc+2}, s{sTAG}
            buffer_store_dwordx4 {vr(acc,4)}, v{vt}, {S4(sWS)}, s{A} offen sc1""")
        if k==2 and c==2: clears(1)
    p("s_barrier")
    mode_read()
    p("s_waitcnt lgkmcnt(0)")
    mode_get()
HST=[]
def gemm_epi(kind):
    t=vT; A=sT+10
    AU=20
    WA=24
    XA=28
    RS=32
    p(f"""v_and_b32 v{t}, 31, v0
    s_lshl_b32 s{A}, s{sWC}, 1
    s_or_b32 s{A}, s{A}, s{sWR_}
    s_lshl_b32 s{A}, s{A}, 7
    s_add_u32 s{A}, s{A}, {L_CS}
    v_lshl_add_u32 v{t+1}, v{t}, 2, s{A}
    s_lshl_b32 s{A}, s{sWR_}, 9
    s_add_u32 s{A}, s{A}, {L_SA}
    v_lshl_add_u32 v{t+3}, v{t}, 3, s{A}
    ds_write_b32 v{t+1}, v{CS}
    v_xor_b32 v{t+2}, 128, v{t+1}
    v_mov_b32 v{WA+1}, 0
    v_mov_b32 v{WA+3}, 0
    v_mov_b32 v{XA+1}, 0
    v_mov_b32 v{XA+3}, 0""")
    if kind=='V':
        p(f"""v_lshrrev_b32 v{t+4}, 5, v0
        s_lshl_b32 s{A}, s{sWR_}, 8
        s_add_u32 s{A}, s{A}, {L_SR}
        v_lshl_add_u32 v{t+4}, v{t+4}, 4, s{A}""")
    p("s_waitcnt lgkmcnt(0)\ns_barrier")
    STAMP('E1',1)
    p(f"""ds_read_b32 v{CS+1}, v{t+2}
    ds_read_b64 v[{AU}:{AU+1}], v{t+3}
    ds_read_b64 v[{AU+2}:{AU+3}], v{t+3} offset:256""")
    mode_read()
    if kind=='V':
        for xb in range(2):
            for i in range(4): p(f"ds_read_b128 {vr(RS+16*xb+4*i,4)}, v{t+4} offset:{xb*128+i*32}")
    def split(cb):
        c=CS+cb
        p(f"""v_cndmask_b32 v{c}, 0, v{c}, s[{sLO}:{sLO+1}]
        v_cvt_pk_bf16_f32 v{t+5}, v{c}, v{c}
        v_and_b32 v{t+5}, 0xffff0000, v{t+5}
        v_sub_f32 v{t+6}, v{c}, v{t+5}
        v_cvt_pk_bf16_f32 v{WA+2*cb}, v{t+5}, v{t+6}""")
    split(0)
    p(f"s_waitcnt lgkmcnt({8 if kind=='V' else 0})")
    split(1)
    p(f"v_mov_b32 v{XA}, v{AU}\nv_mov_b32 v{XA+2}, v{AU+2}")
    mode_get()
    if kind=='T':
        p(f"""s_cmp_eq_u32 s{sTY}, 0
        s_cselect_b32 s{A}, {hex(f2u(20**-0.5*math.log2(math.e)))}, 1.0
        v_mul_f32 v{AU+1}, s{A}, v{AU+1}
        v_mul_f32 v{AU+3}, s{A}, v{AU+3}""")
    else: p("s_nop 0")
    for xb in range(2):
        for cb in range(2):
            a=ACC+16*(2*xb+cb); X=vr(XA+2*xb,2); W=vr(WA+2*cb,2)
            p(f"v_mfma_f32_32x32x8_bf16 {vr(a,16)}, {W if kind=='T' else X}, {X if kind=='T' else W}, {vr(a,16)}")
    p("s_waitcnt lgkmcnt(0)\ns_nop 7")
    if CFG['honly']: p(f"s_or_b32 s{sHALO}, s{sHALO}, s{sMODE}")
    allst=[]
    for xb in range(2):
        st=[]
        for cb in range(2):
            a=ACC+16*(2*xb+cb)
            for k in range(8):
                if kind=='T': p(f"v_pk_mul_f32 {vr(a+2*k,2)}, {vr(a+2*k,2)}, {vr(AU+2*xb,2)} op_sel:[0,1] op_sel_hi:[1,1]")
                else: p(f"v_pk_mul_f32 {vr(a+2*k,2)}, {vr(a+2*k,2)}, {vr(RS+16*xb+2*k,2)}")
            for k in range(8): p(f"v_cvt_pk_bf16_f32 v{a+k}, v{a+2*k}, v{a+2*k+1}")
            if kind=='T':
                p(f"""v_permlane32_swap_b32 v{a}, v{a+2}
                v_permlane32_swap_b32 v{a+1}, v{a+3}
                v_permlane32_swap_b32 v{a+4}, v{a+6}
                v_permlane32_swap_b32 v{a+5}, v{a+7}""")
            for h in range(2):
                st.append(f"buffer_store_dwordx4 {vr(a+4*h,4)}, v{aST+2*cb+h}, {S4(sWS)}, s{sSO2 if xb else sSO} offen")
                allst.append(a+4*h)
        dual(st,CFG['qpol'],sHALO if CFG['honly'] else sMODE)
    STAMP('st')
    if CFG['honly']:
        p(f"""v_mov_b32 v{t}, 0
        v_mov_b32 v{t+1}, s{sTAG}
        s_lshl_b32 s{A}, s{sWC}, 2
        s_add_u32 s{A}, s{A}, {F_STG}
        v_mov_b32 v{t+2}, s{A}
        v_mov_b32 v{t+3}, 1
        s_mov_b64 exec, 1
        s_waitcnt vmcnt(0)
        ds_add_u32 v{t+2}, v{t+3}""")
        dual([f"buffer_store_dword v{t+1}, v{t}, {S4(sWS)}, s{sFO} offen"])
        p("s_mov_b64 exec, -1")
        STAMP('fl')
        return
    nh=p.lab("nohalo"); jh=p.lab("jhalo")
    if CFG['hdef']>=0: A=sT+18
    hst=[f"buffer_store_dwordx4 {vr(allst[i],4)}, v{aST+(i&3)}, {S4(sWS)}, s{A+(i>>2)} offen sc1" for i in range(8)]
    p(f"""v_mov_b32 v{t}, 0
    v_mov_b32 v{t+1}, s{sTAG}
    s_add_u32 s{A}, s{sSO}, {KH-KB}
    s_add_u32 s{A+1}, s{sSO2}, {KH-KB}""")
    if CFG['hst']:
        p(f"s_cmp_eq_u32 s{sHALO}, 0\ns_cbranch_scc1 {nh}")
        for i in range(8): p(f"ds_write_b128 v{aSG}, {vr(allst[i],4)} offset:{i*1024}")
        for k in range(4): p(f"v_add_u32 v{t+4+k}, s{A}, v{aST+k}")
        p(f"""s_lshl_b32 s{A}, s{sWC}, 2
        s_add_u32 s{A}, s{A}, {F_STG}
        ds_write_b128 v{aSG}, {vr(t+4,4)} offset:8192
        v_mov_b32 v{t+2}, s{A}
        v_mov_b32 v{t+3}, 1
        s_mov_b64 exec, 1
        ds_add_u32 v{t+2}, v{t+3}
        s_waitcnt vmcnt(0)""")
        dual([f"buffer_store_dword v{t+1}, v{t}, {S4(sWS)}, s{sFO} offen"])
        p(f"""ds_add_u32 v{t+2}, v{t+3} offset:8
        s_branch {jh}
        {nh}:
        s_waitcnt vmcnt(0)
        s_mov_b64 exec, 1""")
        dual([f"buffer_store_dword v{t+1}, v{t}, {S4(sWS)}, s{sFO} offen"])
        p(f"{jh}:\ns_mov_b64 exec, -1")
        STAMP('fl')
        return
    if CFG['hdef']>=0:
        HST[:]=hst
        p("s_waitcnt vmcnt(0)")
    elif CFG['hearly']:
        p(f"s_cmp_eq_u32 s{sHALO}, 0\ns_cbranch_scc1 {nh}")
        for x in hst: p(x)
        p(f"s_waitcnt vmcnt(8)\ns_branch {jh}\n{nh}:\ns_waitcnt vmcnt(0)\n{jh}:")
    else: p("s_waitcnt vmcnt(0)")
    p("s_mov_b64 exec, 1")
    dual([f"buffer_store_dword v{t+1}, v{t}, {S4(sWS)}, s{sFO} offen"])
    p(f"s_mov_b64 exec, -1")
    if not CFG['hearly'] and CFG['hdef']<0:
        p(f"s_cmp_eq_u32 s{sHALO}, 0\ns_cbranch_scc1 {nh}")
        for x in hst: p(x)
        p(f"{nh}:")
    STAMP('fl')
import struct
def f2u(x): return struct.unpack("<I",struct.pack("<f",x))[0]

aLin,aTl,aKm,aKt,aV,aFl,aO,aQ0,aQ1=246,247,248,249,250,251,252,253,254
aKm1,aKt1,aV1=216,217,218
QM=[28,34]; QT=[32,38]; PP=40
KM=[48,62]; KT=[52,66]; VV=[[54,58],[68,72]]
SS=[80,96]; OO=[112,128]; CD=200; CF=230
cVM=8; sQ=[10,11]; sOm=[12,13]; sOt=[14,15]; cXO,cJ,cF,cK,cV,cL,cHO,cT0,cHX=range(16,25); sOSC=sT+15; sFB=sT+16; aWR=225
NINF="0xff800000"
def att_setup():
    t=vT; A=sT+7; B=sT+8; C=sT+17; sF=cF
    wo_pre1()
    att_ids()
    moe_role()
    p(f"v_mov_b32 v{aCLS}, 0x207")
    if CFG['hkv']: p(f"v_lshlrev_b32 v{aLin}, 4, v0\nv_mov_b32 v{aFl}, {F_G1}")
    else:
        flag_addr(aFl,t,1,A,B,C)
        p(f"""s_lshl_b32 s{sF}, s{sG}, 11
        s_lshl_b32 s{A}, s{sHF}, 4
        v_mov_b32 v{t}, s{A}
        v_cmp_gt_u32 vcc, 8, v0
        s_add_u32 s{sF}, s{sF}, {FL}
        s_mov_b32 s{sK1024}, 1024
        v_cndmask_b32 v{t}, 8, v{t}, vcc
        v_add_u32 v{aFl}, v{aFl}, v{t}""")
        kv_addr(aLin,aTl,t)
    p(f"""s_lshl_b32 s{A}, s{sHF}, 10
    s_add_u32 s{B}, s{A}, {L_KV}
    v_add_u32 v{aKm}, s{B}, v{aLin}
    s_sub_u32 s{B}, {L_KV+1024}, s{A}
    v_add_u32 v{aKm1}, s{B}, v{aLin}
    v_and_b32 v{t}, 31, v0
    v_lshrrev_b32 v{t+1}, 5, v0
    v_xor_b32 v{t+2}, s{sHO}, v{t+1}
    v_lshlrev_b32 v{t+2}, 3, v{t+2}
    v_lshl_add_u32 v{t+2}, v{t}, 4, v{t+2}
    s_lshl_b32 s{A}, s{sHF}, 9
    s_add_u32 s{B}, s{A}, {L_KV+2048}
    v_add_u32 v{aKt}, s{B}, v{t+2}
    s_sub_u32 s{B}, {L_KV+2048+512}, s{A}
    v_add_u32 v{aKt1}, s{B}, v{t+2}
    v_mul_u32_u24 v{t+2}, 320, v{t+1}
    v_lshl_add_u32 v{t+2}, v{t}, 4, v{t+2}
    s_mul_i32 s{A}, s{sHF}, 1280
    s_add_u32 s{B}, s{A}, {L_KV+3072}
    v_add_u32 v{aV}, s{B}, v{t+2}
    s_sub_u32 s{B}, {L_KV+3072+1280}, s{A}
    v_add_u32 v{aV1}, s{B}, v{t+2}
    v_lshlrev_b32 v{t+2}, 2, v{t+1}
    v_sub_u32 v{t+2}, v{t}, v{t+2}
    s_cmp_eq_u32 s{sHF}, 0
    s_cselect_b32 s{A}, {NINF}, 0
    s_cselect_b32 s{B}, 0, {NINF}
    v_mov_b32 v{t+3}, s{A}
    v_mov_b32 v{t+4}, s{B}""")
    for i in range(16):
        m=C+1+2*(i%2)+((C+1)%2)
        ri=8*(i>>2)+(i&3)
        p(f"v_cmp_le_i32 s[{m}:{m+1}], {ri}, v{t+2}")
        if i>0:
            m2=C+1+2*((i-1)%2)+((C+1)%2)
            if i==1: p("s_nop 0")
            p(f"v_cndmask_b32 v{CD+i-1}, v{t+3}, v{t+4}, s[{m2}:{m2+1}]\nv_cndmask_b32 v{CF+i-1}, v{t+4}, v{t+3}, s[{m2}:{m2+1}]")
    p(f"""s_nop 0
    v_cndmask_b32 v{CD+15}, v{t+3}, v{t+4}, s[{m}:{m+1}]
    v_cndmask_b32 v{CF+15}, v{t+4}, v{t+3}, s[{m}:{m+1}]
    v_cmp_eq_u32 s[{m}:{m+1}], 20, v{t}
    v_cmp_eq_u32 vcc, 24, v{t}
    s_mov_b32 s{cHO}, s{sHO}
    s_or_b64 s[{cVM}:{cVM+1}], vcc, s[{m}:{m+1}]""")
    p(f"""v_bfe_u32 v{t+2}, v0, 4, 1
    v_mul_u32_u24 v{t+2}, 20480, v{t+2}
    v_lshl_add_u32 v{t+2}, v{t+1}, 8, v{t+2}
    v_and_b32 v{t+3}, 15, v0
    v_lshl_add_u32 v{aO}, v{t+3}, 4, v{t+2}
    s_xor_b32 s{cHX}, s{sHF}, s{sHH}
    s_mov_b32 s{cT0}, s{sT0}
    s_lshl_b32 s{A}, s{sWAVE}, 1
    s_sub_u32 s{A}, 7, s{A}
    v_mul_u32_u24 v{t+2}, s{A}, v0
    s_add_u32 s{A}, s{sT0}, s{sWAVE}
    v_add_lshl_u32 v{aFO}, v{t+2}, s{A}, 12
    s_lshl_b32 s{A}, s{sHD}, 7
    s_add_u32 s{A}, s{A}, {FO}
    v_add_u32 v{aFO}, s{A}, v{aFO}""")
    for q in range(2):
        p(f"""s_sub_u32 s{A}, 7, s{sWAVE}
        s_cmp_eq_u32 s{sHF}, {q}
        s_cselect_b32 s{A}, s{A}, s{sWAVE}
        s_add_u32 s{A}, s{A}, s{sT0}""")
        p(f"""s_mul_i32 s{sQ[q]}, s{A}, 2560
        s_mul_i32 s{B}, s{sPH}, {64*2560}
        s_add_u32 s{sQ[q]}, s{sQ[q]}, s{B}
        s_mul_i32 s{A}, s{A}, 40960
        s_mul_i32 s{B}, s{sPH}, 1280
        s_add_u32 s{A}, s{A}, s{B}
        s_add_u32 s{A}, s{A}, {OB}
        s_mul_i32 s{B}, s{sHO}, 768
        s_add_u32 s{sOm[q]}, s{A}, s{B}
        s_lshl_b32 s{B}, s{sHO}, 3
        s_add_u32 s{sOt[q]}, s{A}, s{B}""")
    sK=cK; sV=cV; sL=cL
    if not CFG['hkv']: p(f"""s_lshl_b32 s{A}, s{sWAVE}, 1
    s_sub_u32 s{B}, -2, s{A}
    s_cmp_eq_u32 s{sHF}, 0
    s_cselect_b32 s{A}, s{A}, s{B}
    s_add_u32 s{A}, s{A}, s{sT0}
    s_mul_i32 s{sK}, s{A}, 2560
    s_mul_i32 s{sV}, s{A}, 1280
    s_mul_i32 s{A}, s{sPH}, {64*2560}
    s_add_u32 s{sK}, s{sK}, s{A}
    s_add_u32 s{sK}, s{sK}, {KB}
    s_mul_i32 s{A}, s{sHD}, 81920
    s_add_u32 s{sV}, s{sV}, s{A}
    s_add_u32 s{sV}, s{sV}, {VB}
    s_mul_i32 s{sL}, s{sWAVE}, 5632
    s_add_u32 s{sL}, s{sL}, {L_KV+4*5632}""")
    p(f"""s_mul_i32 s{A}, s{sHO}, 1536
    v_add_u32 v{aQ0}, s{A}, v{aLin}
    s_lshl_b32 s{A}, s{sHO}, 3
    v_add_u32 v{aQ1}, s{A}, v{aLin}""")
aXD=219; aXL=223
def xr_loads():
    if CFG['xdma']:
        A=sT+7; B=sT+8
        p(f"""s_mul_i32 s{A}, s{sWAVE}, 2560
        s_add_u32 m0, s{A}, {L_STG}
        s_add_u32 s{A}, s{cXO}, 6720
        s_add_u32 s{B}, s{cXO}, 13440
        s_mov_b32 exec_hi, 0x0fffffff
        buffer_load_dwordx4 v{aXD}, {S4(sX)}, s{cXO} offen lds
        buffer_load_dwordx4 v{aXD}, {S4(sX)}, s{A} offen offset:960 lds
        s_mov_b32 exec_hi, 0xff
        buffer_load_dwordx4 v{aXD}, {S4(sX)}, s{B} offen offset:1920 lds
        s_mov_b32 m0, {L_SA}
        s_mov_b64 exec, 0x3ff
        buffer_load_dwordx4 v{aLin}, {S4(sWR)}, s{cJ} offen lds
        s_mov_b64 exec, -1""")
        return
    for o,n in ((0,4),(4,4),(8,2)): p(f"buffer_load_dwordx{n} {vr(XR+o,n)}, v{aX2}, {S4(sX)}, s{cXO} offen offset:{4*o}")
    for o,n in ((0,4),(4,4),(8,2)): p(f"buffer_load_dwordx{n} {vr(WR_+o,n)}, v{aWR}, {S4(sWR)}, s{cJ} offen offset:{4*o}")
def att_go():
    t=vT; A=sT+7; B=sT+8; C=sT+17
    nh=p.lab("nohs"); lp=p.lab("fp"); ok=p.lab("fpok"); md=p.lab("fpm")
    ld=f"buffer_load_dword v{t+10}, v{aFl}, {S4(sWS)}, s{cF} offen sc1"
    OWN=CFG['hsp']&2; sOWN=sT+19
    if OWN:
        assert not (CFG['hkv'] or CFG['hst'] or CFG['honly'] or CFG['hdef']>=0) and CFG['xru']>=0
        p(f"s_andn2_b32 s{sOWN}, s{sHAL2}, s{sMODE}\ns_cbranch_scc1 L_nold\n{ld}\nL_nold:")
    elif not CFG['hkv']: p(ld)
    p(f"""v_mov_b32 v{t+4}, 0x3f803f80
    s_or_b32 s{sOSC}, s{cHX}, s{sMODE}
    s_mov_b32 s{sFB}, 0
    s_mul_i32 s{A}, s{sMODE}, {OB2-OB}
    v_add_u32 v{aO}, s{A}, v{aO}""")
    HD=CFG['hdef']>=0
    def vvi(b_):
        for mm in range(2):
            for r in range(4): p(f"v_cndmask_b32 v{VV[b_][mm]+r}, 0, v{t+4}, s[{cVM}:{cVM+1}]")
    vvi(0)
    if not HD: vvi(1)
    for q in range(2): p(f"v_mov_b32 v{QT[q]}, 0\nv_mov_b32 v{QT[q]+1}, 0")
    if CFG['osent']: wo_scal()
    assert CFG['hsent'] or not CFG['hkv']
    if CFG['hkv']:
        p(f"v_mov_b32 v{t+4}, {F_FS}"); lds_wait(t+4,t+5,C,'gt',1,0)
    else:
        if CFG['hst'] or HD or CFG['honly']: p(f"s_mov_b32 s{C}, {SPIN}\ns_waitcnt vmcnt(0)")
        else: p(f"""s_lshr_b32 s{A}, s{sWAVE}, 1
        s_lshl_b32 s{A}, s{A}, 2
        s_add_u32 s{A}, s{A}, {F_STG}
        v_mov_b32 v{t+4}, s{A}
        v_mov_b32 v{t+5}, 1
        {f"s_cmp_lg_u32 s{sOWN}, 0" if OWN else ""}
        {f"s_cbranch_scc1 L_own" if OWN else ""}
        s_mov_b32 s{C}, {SPIN}
        s_cmp_eq_u32 s{sHAL2}, 0
        s_waitcnt vmcnt(0)
        s_cbranch_scc1 {nh}
        s_mov_b64 exec, 1
        ds_add_u32 v{t+4}, v{t+5}
        s_mov_b64 exec, -1
        {nh}:""")
        STAMP('hack')
        p(f"""s_branch {md}
        {lp}:
        {ld}
        s_waitcnt vmcnt(0)
        {md}:
        v_cmp_ne_u32 vcc, s{sTAG}, v{t+10}
        s_nop 0
        s_cbranch_vccz {ok}""")
        spin(C,lp,ok)
        p(f"s_branch {lp}")
        if OWN:
            p(f"L_own:\nv_mov_b32 v{t+6}, {F_OWN}\ns_mov_b64 exec, 1\nds_add_u32 v{t+6}, v{t+5} offset:{F_FS-F_OWN+65536}\ns_mov_b64 exec, -1".replace(f"offset:{F_FS-F_OWN+65536}","") if 0 else f"L_own:\nv_mov_b32 v{t+6}, {F_FS}\ns_mov_b64 exec, 1\nds_add_u32 v{t+6}, v{t+5}\ns_mov_b64 exec, -1\nv_mov_b32 v{t+6}, {F_OWN}"); lds_wait(t+6,t+7,C,'gt',1,0)
        p(f"{ok}:")
    STAMP('fseen')
    if not CFG['hkv']: kv_dma(aLin,aTl,cK,cV,cL,A,B,cHO)
    for q in range(2): p(f"buffer_load_dwordx4 {vr(QM[q],4)}, v{aQ0}, {S4(sWS)}, s{sQ[q]} offen {CFG['ldp']}")
    p(f"s_mov_b64 exec, s[{sLO}:{sLO+1}]")
    for q in range(2): p(f"buffer_load_dwordx2 {vr(QT[q],2)}, v{aQ1}, {S4(sWS)}, s{sQ[q]} offen offset:1024 {CFG['ldp']}")
    if HD:
        assert CFG['xru']>CFG['hdef']
        n2=p.lab("nohd"); j2=p.lab("jhd")
        p(f"""s_mov_b64 exec, 1
        v_mov_b32 v{t}, {F_G1}
        v_mov_b32 v{t+1}, 1
        ds_add_u32 v{t}, v{t+1} offset:{F_FS-F_G1}
        s_mov_b64 exec, -1
        v_mov_b32 v{aFl}, {F_G1}
        s_cmp_eq_u32 s{sHAL2}, 0
        s_cbranch_scc1 {n2}""")
        g1=lambda n: p(f"s_mov_b64 exec, 1\ns_waitcnt vmcnt({n})\nds_add_u32 v{t}, v{t+1}\ns_mov_b64 exec, -1")
        if CFG['hdg']=='G1':
            g1(4); lds_wait(aFl,t+5,C,'gt',4,0)
            for x in HST: p(x)
            p("s_nop 1"); vvi(1)
        else:
            if CFG['hdg']=='FS': p(f"v_mov_b32 v{t+6}, {F_FS}"); lds_wait(t+6,t+5,C,'gt',4,0)
            for x in HST: p(x)
            p("s_nop 1"); vvi(1)
            g1(12); lds_wait(aFl,t+5,C,'gt',4,0)
        p(f"s_waitcnt vmcnt(8)\ns_branch {j2}\n{n2}:")
        vvi(1); g1(4); lds_wait(aFl,t+5,C,'gt',4,0)
        p(f"""s_waitcnt vmcnt(0)
        {j2}:
        s_lshr_b32 s{A}, s{sWAVE}, 1
        s_lshl_b32 s{A}, s{A}, 2
        s_add_u32 s{A}, s{A}, {F_STG}
        v_mov_b32 v{t+4}, s{A}""")
    elif CFG['hkv']: p("s_mov_b64 exec, -1")
    if CFG['lay'] and CFG['padk']==1:
        for w in range(3): p(f"s_cmp_eq_u32 s{sWAVE}, {w}\ns_cbranch_scc1 L_pv{w}")
        p("s_branch L_pv3\nL_kvb:")
    if not HD and not CFG['hkv']: p(f"""s_mov_b64 exec, 1
    v_mov_b32 v{t}, {F_G1}
    v_mov_b32 v{t+1}, 1
    {f"ds_add_u32 v{t}, v{t+1} offset:{F_FS-F_G1}" if 'FS' in CFG['gm']+CFG['gr'] else ""}
    {f"s_cmp_eq_u32 s{sOWN}, 0" if OWN else ""}
    {f"s_cbranch_scc1 L_nohk" if OWN else ""}
    {f"s_waitcnt vmcnt(10)" if OWN else ""}
    {f"ds_add_u32 v{t+4}, v{t+1}" if OWN else ""}
    {f"L_nohk:" if OWN else ""}
    s_waitcnt vmcnt(4)
    ds_add_u32 v{t}, v{t+1}
    s_mov_b64 exec, -1
    v_mov_b32 v{aFl}, {F_G1}""")
    if CFG['hkv']: lds_wait(aFl,t+5,C,'gt',4,0)
    if CFG['xru']<0: xr_loads()
    if not HD:
        if not CFG['hkv']: lds_wait(aFl,t+5,C,'gt',4,0)
        p(f"s_waitcnt vmcnt({6 if CFG['xru']<0 else 0})")
    STAMP('kv')
    p(f"""s_cmp_eq_u32 s{sWAVE}, 1
    s_cbranch_scc1 L_av1
    s_cmp_eq_u32 s{sWAVE}, 2
    s_cbranch_scc1 L_av2
    s_cmp_eq_u32 s{sWAVE}, 3
    s_cbranch_scc1 L_av3""")
    if CFG['lay']: p("s_branch L_av0")
PG=".p2alignl 12, 0xbf810000"
KVB=lambda b: 'L_kvb' if CFG['padk']==1 else f'L_pkb{b}'
def kreads(n,b_):
    o=(n>>1)*5632
    return [f"ds_read_b128 {vr(KM[b_],4)}, v{(aKm,aKm1)[n&1]} offset:{o}", f"ds_read_b64 {vr(KT[b_],2)}, v{(aKt,aKt1)[n&1]} offset:{o}"]
def vreads(n,b_):
    o=(n>>1)*5632; a=(aV,aV1)[n&1]
    return [f"s_mov_b64 exec, s[{sLO+2}:{sLO+3}]", f"ds_read_b128 {vr(VV[b_][0],4)}, v{a} offset:{o}", f"ds_read_b128 {vr(VV[b_][1],4)}, v{a} offset:{o+640}", "s_mov_b64 exec, -1"]
def att_variant(w):
    U=[]
    for n in range(15-w,8+w,-1): U.append((0,n))
    for n in range(8+w,6-w,-1): U+= [(0,n),(1,n)]
    for n in range(6-w,w-1,-1): U.append((1,n))
    assert len(U)==18
    diag=[15-w,8+w]
    tiles=[]; tau=[]
    for q,n in U:
        if not tiles or tiles[-1]!=n: tiles.append(n)
        tau.append(len(tiles)-1)
    first=[tau.index(i) for i in range(len(tiles))]
    started=[0,0]
    def QK(u):
        q,n=U[u]; b_=tau[u]&1; S=vr(SS[u&1],16)
        c=vr(CD,16) if n==diag[q] else (vr(CF,16) if n==diag[q]-8 else "0")
        return [f"v_mfma_f32_32x32x16_bf16 {S}, {vr(KM[b_],4)}, {vr(QM[q],4)}, {c}", f"v_mfma_f32_32x32x8_bf16 {S}, {vr(KT[b_],2)}, {vr(QT[q],2)}, {S}"]
    def PV(u,m):
        q,n=U[u]; O=vr(OO[q],16)
        c=O if started[q] else "0"; started[q]=1
        return f"v_mfma_f32_32x32x16_bf16 {O}, {vr(VV[tau[u]&1][m],4)}, {vr(PP+4*m,4)}, {c}"
    if CFG['lay']:
        p(PG)
        if CFG['padk']: p(f"L_pv{w}:\ns_branch {(('L_padW','L_padM',KVB(1),KVB(1)) if CFG['padk']<3 else ('L_pv1','L_pv2','L_pv3','L_padW'))[w]}")
    p(f"L_av{w}:")
    for i,f in enumerate(first):
        if f<=1:
            for x in kreads(tiles[i],i&1): p(x)
    for x in vreads(tiles[0],0): p(x)
    p("s_waitcnt lgkmcnt(0)")
    for x in QK(0): p(x)
    p("s_nop 7\ns_nop 3")
    pend=False
    H=first[tiles.index(7)]
    H2=first[tiles.index(3)]
    for u in range(18):
        S=SS[u&1]
        e=lambda i: p(f"v_exp_f32 v{S+i}, v{S+i}")
        c=lambda k: p(f"v_cvt_pk_bf16_f32 v{PP+k}, v{S+2*k}, v{S+2*k+1}")
        kr=[x for i,f in enumerate(first) if f==u+2 for x in kreads(tiles[i],i&1)]
        vr_=[x for i,f in enumerate(first) if f==u+1 for x in vreads(tiles[i],i&1)]
        late=(u+2 in (H,H2)); pre=(u+3 in (H,H2)); hk=int(u+3>=H2)
        STAMP('u%d'%u)
        e(0); e(1)
        if u>0: p(PV(u-1,1))
        if u==CFG['xru']: xr_loads()
        if u==CFG['hdef']:
            p(f"v_mov_b32 v{vT+5}, 1\ns_waitcnt vmcnt(0)\ns_mov_b64 exec, 1\nds_add_u32 v{vT+4}, v{vT+5}\ns_mov_b64 exec, -1")
            STAMP('hack')
        e(2)
        if not late:
            for x in kr: p(x)
        if pre: p(f"ds_read_b32 v{vT}, v{aFl} offset:{F_M+4*hk-F_G1}")
        e(3); c(0); c(1)
        if pend: p(f"s_waitcnt lgkmcnt({(len(kr) if not late else 0)+(1 if pre else 0)})")
        qk=QK(u+1) if u<17 else [None,None]
        if qk[0]: p(qk[0])
        e(4)
        if late:
            p(f"v_cmp_gt_u32 vcc, 1, v{vT}")
        e(5)
        if late:
            p(f"s_cbranch_vccnz L_g2w{w}{hk}\nL_g2r{w}{hk}:")
            for x in kr: p(x)
        for x in vr_: p(x)
        e(6); e(7); c(2); c(3)
        if qk[1]: p(qk[1])
        e(8); e(9); e(10); e(11)
        p(PV(u,0))
        c(4); c(5); e(12); e(13); e(14); e(15); c(6); c(7)
        pend=bool(kr or vr_ or pre)
        if u==H-1:
            p(f"s_cmp_eq_u32 s{cT0}, 0\ns_cbranch_scc1 L_ex{w}")
            exq=PV(u,1)
    p("s_nop 1")
    p(PV(17,1))
    p("s_branch L_afin")
    for hk in range(2):
        p(f"L_g2w{w}{hk}:")
        p(f"v_mov_b32 v{vT+1}, {F_M+4*hk}")
        lds_wait(vT+1,vT,sT+17,'gt',1,0)
        p(f"s_branch L_g2r{w}{hk}")
    p(f"L_ex{w}:\n{exq}")
    if 99>CFG['xru']>=H: xr_loads()
    p("s_waitcnt lgkmcnt(0)\ns_branch L_afin")
    p(f";@slot{w}")
def att_fin():
    t=vT; A=sT+7
    if CFG['lay']:
        p(PG)
        if CFG['padk']: p("L_padW:\ns_branch "+(KVB(0) if CFG['padk']<3 else 'L_padM'))
    p("L_afin:")
    STAMP('aend')
    p(f"s_mov_b32 s{A}, {hex(f2u(2.0**-40))}\ns_mov_b32 s{A+1}, {hex(f2u(2.0**40)-f2u(2.0**-40))}")
    for q in range(2):
        O=OO[q]
        p(f"""v_cndmask_b32 v{t}, v{O+8}, v{O+12}, s[{sLO}:{sLO+1}]
        v_pk_add_f32 v[{t+2}:{t+3}], v[{O}:{O+1}], v[{O+2}:{O+3}]
        v_rcp_f32 v{t+1}, v{t}
        v_pk_add_f32 v[{t+4}:{t+5}], v[{O+4}:{O+5}], v[{O+6}:{O+7}]
        v_pk_add_f32 v[{t+6}:{t+7}], v[{O+8}:{O+9}], v[{O+10}:{O+11}]
        v_subrev_u32 v{t}, s{A}, v{t}
        v_pk_add_f32 v[{t+2}:{t+3}], v[{t+2}:{t+3}], v[{t+4}:{t+5}]
        v_cmp_lt_u32 s[{A+11}:{A+12}], s{A+1}, v{t}
        v_pk_add_f32 v[{t+2}:{t+3}], v[{t+2}:{t+3}], v[{t+6}:{t+7}]
        v_add_f32 v{t+2}, v{t+2}, v{t+3}""")
        p(f"v_cmp_class_f32 vcc, v{t+2}, v{aCLS}")
        for k in range(6): p(f"v_pk_mul_f32 {vr(O+2*k,2)}, {vr(O+2*k,2)}, {vr(t,2)} op_sel:[0,1] op_sel_hi:[1,1]")
        p(f"""s_or_b64 vcc, vcc, s[{A+11}:{A+12}]
        s_cbranch_scc1 L_afb{q}
        L_afr{q}:""")
        for k in range(6): p(f"v_cvt_pk_bf16_f32 v{O+k}, v{O+2*k}, v{O+2*k+1}")
        p(f"s_cmp_lg_u32 s{sOSC}, 0")
        st=[f"buffer_store_dwordx4 {vr(O,4)}, v{aO}, {S4(sWS)}, s{sOm[q]} offen", f"s_mov_b64 exec, s[{sLO}:{sLO+1}]",
            f"buffer_store_dwordx2 {vr(O+4,2)}, v{aO}, {S4(sWS)}, s{sOt[q]} offen offset:512", "s_mov_b64 exec, -1"]
        p(f"s_cbranch_scc1 L_osc{q}")
        for x in st: p(x+(" "+CFG['apol'] if x.startswith("buffer") else ""))
        p(f"s_branch L_osr{q}\nL_osc{q}:")
        for x in st: p(x+(" sc1" if x.startswith("buffer") else ""))
        p(f"L_osr{q}:")
    p(f"""v_mov_b32 v{t}, {F_DONE}
    v_mov_b32 v{t+1}, 1
    s_mov_b64 exec, 1
    ds_add_u32 v{t}, v{t+1}
    s_mov_b64 exec, -1""")
    STAMP('ost')
aCLS=255; aFO=226; aFR=227
def att_cold():
    t=vT; A=sT+7; B=sT+8; N=sT+17; J=sT+18; CN=sT+19; PA=sT+20
    for q in range(2): p(f"L_afb{q}:\ns_cmp_lg_u32 s{sFB}, 0\ns_cbranch_scc1 L_afr{q}\ns_branch L_afb")
    p(f"L_afb:\ns_mov_b32 s{sFB}, 1\ns_waitcnt lgkmcnt(0)")
    S=SS[0]; MX=t+10; xa=t+11
    for q in range(2):
        lp=p.lab("fb"); nd=p.lab("fbnd"); nf=p.lab("fbnf"); p2=p.lab("fbp2"); nx=p.lab("fbnx"); ps=p.lab("fbps"); dn=p.lab("fbdn")
        for r in range(16): p(f"v_mov_b32 v{OO[q]+r}, 0")
        p(f"""v_mov_b32 v{MX}, {NINF}
        s_mov_b32 s{PA}, 0
        {ps}:""")
        if q==0: p(f"s_sub_u32 s{N}, 15, s{sWAVE}")
        else: p(f"s_add_u32 s{N}, 8, s{sWAVE}")
        p(f"""s_sub_u32 s{CN}, s{N}, 7
        s_cmp_eq_u32 s{cT0}, 0
        s_cselect_b32 s{CN}, s{CN}, 9
        s_mov_b32 s{J}, 0
        {lp}:
        s_lshr_b32 s{A}, s{N}, 1
        s_mul_i32 s{A}, s{A}, 5632
        s_bitcmp1_b32 s{N}, 0
        s_cselect_b64 vcc, -1, 0
        s_nop 0
        v_cndmask_b32 v{xa}, v{aKm}, v{aKm1}, vcc
        v_cndmask_b32 v{xa+1}, v{aKt}, v{aKt1}, vcc
        v_cndmask_b32 v{xa+2}, v{aV}, v{aV1}, vcc
        v_add_u32 v{xa}, s{A}, v{xa}
        v_add_u32 v{xa+1}, s{A}, v{xa+1}
        v_add_u32 v{xa+2}, s{A}, v{xa+2}
        ds_read_b128 {vr(KM[0],4)}, v{xa}
        ds_read_b64 {vr(KT[0],2)}, v{xa+1}
        s_mov_b64 exec, s[{sLO+2}:{sLO+3}]
        ds_read_b128 {vr(VV[0][0],4)}, v{xa+2}
        ds_read_b128 {vr(VV[0][1],4)}, v{xa+2} offset:640
        s_mov_b64 exec, -1
        s_waitcnt lgkmcnt(0)
        v_mfma_f32_32x32x16_bf16 {vr(S,16)}, {vr(KM[0],4)}, {vr(QM[q],4)}, 0
        v_mfma_f32_32x32x8_bf16 {vr(S,16)}, {vr(KT[0],2)}, {vr(QT[q],2)}, {vr(S,16)}
        v_mov_b32 v{xa}, {NINF}
        s_nop 11
        s_cmp_lg_u32 s{J}, 0
        s_cbranch_scc1 {nd}""")
        for r in range(16): p(f"v_cmp_eq_u32 vcc, 0, v{CD+r}\ns_nop 1\nv_cndmask_b32 v{S+r}, v{xa}, v{S+r}, vcc")
        p(f"{nd}:\ns_cmp_lg_u32 s{J}, 8\ns_cbranch_scc1 {nf}")
        for r in range(16): p(f"v_cmp_eq_u32 vcc, 0, v{CF+r}\ns_nop 1\nv_cndmask_b32 v{S+r}, v{xa}, v{S+r}, vcc")
        p(f"{nf}:\ns_cmp_lg_u32 s{PA}, 0\ns_cbranch_scc1 {p2}")
        for r in range(0,16,2): p(f"v_max3_f32 v{MX}, v{S+r}, v{S+r+1}, v{MX}")
        p(f"s_branch {nx}\n{p2}:")
        for r in range(16): p(f"v_sub_f32 v{S+r}, v{S+r}, v{MX}")
        for r in range(16): p(f"v_exp_f32 v{S+r}, v{S+r}")
        p("s_nop 0")
        for k in range(8): p(f"v_cvt_pk_bf16_f32 v{PP+k}, v{S+2*k}, v{S+2*k+1}")
        p("s_nop 1")
        for m in range(2): p(f"v_mfma_f32_32x32x16_bf16 {vr(OO[q],16)}, {vr(VV[0][m],4)}, {vr(PP+4*m,4)}, {vr(OO[q],16)}")
        p(f"""s_nop 11
        {nx}:
        s_sub_u32 s{N}, s{N}, 1
        s_add_u32 s{J}, s{J}, 1
        s_cmp_lt_u32 s{J}, s{CN}
        s_cbranch_scc1 {lp}
        s_cmp_lg_u32 s{PA}, 0
        s_cbranch_scc1 {dn}
        v_mov_b32 v{xa}, v{MX}
        s_mov_b32 s{PA}, 1
        s_nop 0
        v_permlane32_swap_b32 v{xa}, v{MX}
        s_nop 1
        v_max_f32 v{MX}, v{MX}, v{xa}
        s_branch {ps}
        {dn}:""")
    p("s_branch L_afin")

BF=28; AF=108; WACC=200; XR=176; WR_=186; aX2=196; aPS=197; aAL=198; aAR=199; SW=220; aL4=221; aPR=222; aKY=223; aCD=224
HP=40; HF_=50; LP=70; OP=80
sRT=sT+1; sOL=sT+2; sOR=sT+5; sXO=cXO; sPSO=sT+12; sRETRY=sT+13; sPRB=sT+14; sFLO=sT+16; sFRE=sT+18
def acc_init():
    for k in range(10): p(f"v_lshlrev_b32 v{WACC+2*k}, 16, v{XR+k}\nv_and_b32 v{WACC+2*k+1}, 0xffff0000, v{XR+k}")
def wo_pre1():
    t=vT; A=sT+7; B=sT+8
    wo_ids()
    p(f"""v_and_b32 v{t}, 15, v0
    v_lshrrev_b32 v{t+1}, 4, v0
    v_mul_u32_u24 v{aWR}, 40, v{t+1}
    v_mov_b32 v{t+3}, 1280
    v_mad_u32_u24 v{aX2}, v{t}, v{t+3}, v{aWR}
    s_lshl_b32 s{A}, s{sBLK}, 2
    s_add_u32 s{A}, s{A}, s{sWAVE}
    s_mul_i32 s{A}, s{A}, 20480
    s_mul_i32 s{cJ}, s{sJ}, 160
    s_add_u32 s{cXO}, s{A}, s{cJ}
    v_lshlrev_b32 v{aPS}, 7, v{t}
    v_lshl_add_u32 v{aPS}, v{t+1}, 5, v{aPS}
    v_lshlrev_b32 v{aFR}, 7, v{t}
    v_mul_u32_u24 v{t+2}, 640, v{t+1}
    v_bfe_u32 v{t+3}, v0, 2, 2
    v_mul_u32_u24 v{t+3}, 160, v{t+3}
    v_and_b32 v{t+4}, 3, v0
    v_mul_u32_u24 v{t+4}, 40, v{t+4}
    v_add3_u32 v{t+2}, v{t+2}, v{t+3}, v{t+4}
    s_mul_i32 s{A}, s{sHH}, 51200
    s_add_u32 s{B}, s{A}, {L_WO}
    v_add_u32 v{aAL}, s{B}, v{t+2}
    s_sub_u32 s{B}, {L_WO+51200}, s{A}
    v_add_u32 v{aAR}, s{B}, v{t+2}
    v_and_b32 v{t+2}, 7, v0
    v_mul_u32_u24 v{t+2}, 1280, v{t+2}
    v_bfe_u32 v{t+3}, v0, 3, 1
    v_lshl_add_u32 v{aPR}, v{t+3}, 7, v{t+2}""")
    if CFG['xdma']:
        assert 0<=CFG['xru']<99 and CFG['odn']==1
        p(f"""v_mul_u32_u24 v{t+2}, 6554, v0
        v_lshrrev_b32 v{t+2}, 16, v{t+2}
        v_mul_u32_u24 v{t+2}, 1120, v{t+2}
        v_lshl_add_u32 v{aXD}, v0, 4, v{t+2}
        s_mul_i32 s{B}, s{sWAVE}, 2560
        s_add_u32 s{B}, s{B}, {L_STG}
        v_mul_u32_u24 v{t+2}, 160, v{t}
        v_add3_u32 v{aXL}, v{t+2}, v{aWR}, s{B}
        v_add_u32 v{aWR}, {L_SA}, v{aWR}""")
    if CFG['wsp']:
        p(f"""s_and_b32 s{B}, s{sWAVE}, 1
        s_mul_i32 s{B}, s{B}, 25600
        v_add_u32 v{aAL}, s{B}, v{aAL}
        v_add_u32 v{aAR}, s{B}, v{aAR}
        s_lshr_b32 s{B}, s{sWAVE}, 1
        s_mul_i32 s{B}, s{B}, 10240
        s_add_u32 s{A}, s{A}, s{B}
        s_and_b32 s{B}, s{sWAVE}, 1
        s_lshl_b32 s{B}, s{B}, 10
        s_add_u32 s{A}, s{A}, s{B}
        s_add_u32 s{A}, s{A}, {L_WO}
        v_lshlrev_b32 v{aL4}, 4, v0
        v_add_u32 v{aPR}, s{A}, v{aL4}
        v_add_u32 v{aL4}, 4096, v{aL4}""")
def wo_pre2():
    acc_init()
def probe(soff,cnt,first=True):
    t=vT
    lp=p.lab("pb"); ok=p.lab("pbok"); md=p.lab("pbm")
    p(f"s_mov_b32 s{cnt}, {SPIN}")
    if not first: p(f"s_branch {md}")
    p(f"""{lp}:
    buffer_load_dwordx3 v[{t+4}:{t+6}], v{aPR}, {S4(sWS)}, s{soff} offen offset:512 sc1""")
    if not first: p(f"{md}:")
    p(f"""s_waitcnt vmcnt(0)
    v_max_u32 v{t+4}, v{t+4}, v{t+6}
    v_cmp_eq_u32 vcc, -1, v{t+4}
    s_nop 0
    s_cbranch_vccz {ok}""")
    spin(cnt,lp,ok)
    p(f"s_branch {lp}\n{ok}:")
def red3(a,b,c,d):
    p(f"""v_mov_b32 v{d}, v{c}
    s_nop 0
    v_permlane32_swap_b32 v{a}, v{b}
    v_permlane32_swap_b32 v{c}, v{d}
    s_nop 0
    v_add_f32 v{a}, v{a}, v{b}
    v_add_f32 v{c}, v{c}, v{d}
    s_nop 1
    v_permlane16_swap_b32 v{a}, v{c}
    s_nop 0
    v_add_f32 v{a}, v{a}, v{c}
    v_add_f32 v{c}, v{a}, 0
    s_nop 1
    v_permlane16_swap_b32 v{a}, v{c}
    s_nop 0
    v_mov_b32 v{b}, v{a}
    s_nop 1
    v_permlane32_swap_b32 v{a}, v{b}""")
def wo_scal():
    A=sT+7; B=sT+8
    wo_ids()
    p(f"""s_lshl_b32 s{sRT}, s{sBLK}, 2
    s_add_u32 s{sRT}, s{sRT}, s{sWAVE}
    s_mul_i32 s{A}, s{sRT}, 20480
    s_mul_i32 s{B}, s{sMODE}, {OB2-OB}
    s_add_u32 s{A}, s{A}, s{B}
    s_add_u32 s{A}, s{A}, {OB}
    s_mul_i32 s{B}, s{sHH}, 10240
    s_add_u32 s{sOL}, s{A}, s{B}
    s_add_u32 s{sOL+1}, s{sOL}, 4096
    s_add_u32 s{sOL+2}, s{sOL}, 8192
    s_add_u32 s{A}, s{A}, 10240
    s_sub_u32 s{sOR}, s{A}, s{B}
    s_lshl_b32 s{sPSO}, s{sRT}, 11
    s_add_u32 s{sPSO}, s{sPSO}, {PS}
    s_mov_b32 s{sRETRY}, {1<<16}
    s_add_u32 s{sOR+1}, s{sOR}, 4096
    s_add_u32 s{sPRB}, s{sOR}, 8192""")
    if CFG['wsp']:
        p(f"""s_and_b32 s{A}, s{sWAVE}, 1
        s_mul_i32 s{B}, s{A}, 5120
        s_add_u32 s{sOL}, s{sOL}, s{B}
        s_add_u32 s{sOR}, s{sOR}, s{B}
        s_mul_i32 s{B}, s{A}, -40960
        s_add_u32 s{B}, s{B}, 20480
        s_add_u32 s{sOL+1}, s{sOL}, s{B}
        s_add_u32 s{sOR+1}, s{sOR}, s{B}""")
def wo_flags():
    A=sT+7; B=sT+8
    p(f"""s_lshr_b32 s{A}, s{sRT}, 1
    s_lshl_b32 s{A}, s{A}, 12
    s_lshl_b32 s{B}, s{sHH}, 11
    s_add_u32 s{A}, s{A}, {FO}
    s_add_u32 s{sFLO}, s{A}, s{B}
    s_xor_b32 s{sFRE}, s{sFLO}, 2048""")
def wo_gemm():
    t=vT; A=sT+7; B=sT+8; C=sT+17; MXS=t+8
    sROFF=[sOR,sOR+1,sPRB]
    LA=CFG['wla']; WE=CFG['wwe']
    LG=[]
    def af(m): return AF+4*(m%15)
    def aread(m):
        s_,t_=divmod(m,5)
        for rd in range(2):
            p(f"ds_read_b64_tr_b16 {vr(af(m)+2*rd,2)}, v{aAL if s_<10 else aAR} offset:{(s_%10)*5120+rd*2560+8*t_}"); LG.append(m)
    def lgw(m):
        k=[i for i,x in enumerate(LG) if x!='x' and x<=m]
        if not k: return None
        n=len(LG)-1-max(k); del LG[:max(k)+1]; return n
    def bload(s_):
        so=(sOL+(s_%10)//4) if s_<10 else sROFF[(s_%10)//4]
        return f"buffer_load_dwordx4 {vr(BF+4*s_,4)}, v{aLin}, {S4(sWS)}, s{so} offen offset:{(s_%10%4)*1024} sc1"
    def cold(f):
        n0=len(p.L); f(); COLD.append("\n".join(p.L[n0:])); del p.L[n0:]
    p(f"s_cmp_lg_u32 s{sMODE}, 0\ns_cbranch_scc1 L_plsl\nL_plr:")
    def slow():
        p("L_plsl:"); wo_flags()
        p(f"""v_mov_b32 v{t+1}, s{sTAG}
        s_mov_b64 exec, 3
        s_waitcnt vmcnt(0)
        buffer_store_dword v{t+1}, v{aFO}, {S4(sWS)}, 0 offen sc1
        s_mov_b64 exec, -1""")
        flag_poll(aFR,t+4,sFLO,C); flag_poll(aFR,t+4,sFRE,C); p("s_branch L_plr")
    cold(slow)
    NI=CFG['oini']
    def dn():
        if CFG['odn']:
            p(f"v_mov_b32 v{t}, {F_DONE}"); lds_wait(t,t+1,C,'gt',4,0)
    if CFG['oprb']:
        p(f"buffer_load_dwordx3 v[{t+4}:{t+6}], v{aPR}, {S4(sWS)}, s{sOL} offen offset:512 sc1\ns_waitcnt vmcnt(5)")
    else:
        dn()
        for s_ in range(NI): p(bload(s_))
        p(f"s_waitcnt vmcnt({NI+4})")
    acc_init()
    p(f"v_mov_b32 v{t}, {F_WOR}")
    STAMP('fo')
    lds_wait(t,t+1,C,'gt',2,0)
    p(f"ds_read_b32 v{SW}, v{t} offset:{L_SWS-F_WOR}"); LG.append('x')
    STAMP('wor')
    if CFG['oprb']: dn()
    for m in range(LA): aread(m)
    p(f"v_mov_b32 v{t+7}, {F_WO2}\ns_mov_b32 s{sRETRY}, {SPIN}")
    if CFG['oprb']:
        probe(sOL,C,first=False)
        STAMP('prb')
        for s_ in range(NI): p(bload(s_))
    G={}; a=0
    for n in CFG['ogr']: G[a]=a+n; a+=n
    assert a==20 and 10 in G
    def chain(a,b):
        return [f"v_max_u32 v{MXS}, v{BF+4*a}, v{BF+4*a+2}"]+[f"v_max3_u32 v{MXS}, v{BF+4*k}, v{BF+4*k+2}, v{MXS}" for k in range(a+1,b)]
    cmp_=f"v_cmp_eq_u32 vcc, -1, v{MXS}"
    def retry(a,b):
        e=20 if (CFG['opoll']=='all' or a>=10) else 10
        def f():
            p(f"L_og{a}:\ns_sub_u32 s{sRETRY}, s{sRETRY}, 1\ns_cbranch_scc1 L_ogr{a}")
            sl=CFG['osl'][a//10]
            if sl: p(f"s_sleep {sl}")
            if CFG['opoll']=='probe' and a==0: probe(sOL,C)
            for k in range(a,e): p(bload(k))
            p(f"s_waitcnt vmcnt({20-b if e==20 else 0})")
            for x in chain(a,b): p(x)
            p(f"{cmp_}\ns_nop 0\ns_cbranch_vccnz L_og{a}\ns_branch L_ogr{a}")
        cold(f)
    last=lambda s_: (NI if s_<NI else 20)-1
    p(f"s_waitcnt vmcnt({last(0)+1-G[0]})")
    for x in chain(0,G[0]): p(x)
    p(f"{cmp_}\ns_nop 0\ns_cbranch_vccnz L_og0\nL_ogr0:"); retry(0,G[0])
    STAMP('pl')
    for m in range(100):
        s_,t_=divmod(m,5)
        nx=s_+1 if s_+1 in G else None
        if m==50:
            STAMP('pr')
            if 'PR' in (CFG['gstart'],CFG['dstart'],CFG['dgate'],CFG['mtg']):
                p(f"""s_mov_b64 exec, 1
                v_mov_b32 v{t+4}, {F_PR}
                v_mov_b32 v{t+5}, 1
                ds_add_u32 v{t+4}, v{t+5}
                s_mov_b64 exec, -1"""); LG.append('x')
        w=[]
        if nx is not None and t_==1: w.append(f"vmcnt({(20 if m>CFG['orem'] else NI)-G[nx]}"); assert G[nx]<=NI or m>CFG['orem']
        if m%WE==0:
            n=lgw(m+WE-1)
            if n is not None: w.append(f"lgkmcnt({n}")
        if w: p("s_waitcnt "+") ".join(w)+")")
        a_=vr(WACC+4*t_,4)
        p(f"v_mfma_f32_16x16x32_bf16 {a_}, {vr(af(m),4)}, {vr(BF+4*s_,4)}, {a_}")
        if NI<20 and m==CFG['orem']:
            for k in range(NI,20): p(bload(k))
        if m+LA==50-10: p(f"ds_read_b32 v{t+6}, v{t+7}"); LG.append('x')
        if m+LA==50:
            assert nx is None or t_<3
            p(f"v_cmp_gt_u32 vcc, 2, v{t+6}\ns_nop 0\ns_cbranch_vccnz L_wo2w\nL_wo2r:")
            def f():
                p("L_wo2w:"); lds_wait(t+7,t+6,C,'gt',2,0); p("s_branch L_wo2r")
            cold(f)
        if m+LA<100: aread(m+LA)
        if nx is not None:
            ch=chain(nx,G[nx]); k=-(-len(ch)//2)
            if t_==1:
                for x in ch[:k]: p(x)
            if t_==2:
                for x in ch[k:]: p(x)
            if t_==3: p(cmp_)
            if t_==4:
                if nx==10: STAMP('loc')
                p(f"s_cbranch_vccnz L_og{nx}\nL_ogr{nx}:"); retry(nx,G[nx])
    p(f"""v_mov_b32 v{t}, 0x3f803f80
    v_mov_b32 v{t+2}, 0
    v_mov_b32 v{t+3}, 0
    v_mov_b32 v{t+4}, 0
    s_nop 3""")
ACC2=148; aXW=222; aPQ=172; aBP=173
def wo_gemm2():
    t=vT; A=sT+7; B=sT+8; C=sT+17; MXS=t+8
    LA=CFG['wla2']
    LG=[]
    def af(m): return AF+4*(m%10)
    def aread(m,rds=(0,1)):
        s_,t_=divmod(m,5)
        for rd in rds:
            if CFG['wnoa'] and m>=LA and rd<CFG['wnoa']: continue
            p(f"ds_read_b64_tr_b16 {vr(af(m)+2*rd,2)}, v{aAL if s_<5 else aAR} offset:{(s_%5)*5120+rd*2560+8*t_}"); LG.append(m)
    def lgw(m):
        k=[i for i,x in enumerate(LG) if x!='x' and x<=m]
        if not k: return None
        n=len(LG)-1-max(k); del LG[:max(k)+1]; return n
    def bload(s_,us=(0,1)):
        for u in us:
            so=(sOL if s_<5 else sOR)+u
            p(f"buffer_load_dwordx4 {vr(BF+8*s_+4*u,4)}, v{aLin if s_%5<4 else aL4}, {S4(sWS)}, s{so} offen offset:{(s_%5%4)*1024} {CFG['ldo'] if s_<5 else 'sc1'}")
    def cold(f):
        n0=len(p.L); f(); COLD.append("\n".join(p.L[n0:])); del p.L[n0:]
    p(f"s_cmp_lg_u32 s{sMODE}, 0\ns_cbranch_scc1 L_plsl\nL_plr:")
    def slow():
        p("L_plsl:"); wo_flags()
        p(f"""v_mov_b32 v{t+1}, s{sTAG}
        s_mov_b64 exec, 3
        s_waitcnt vmcnt(0)
        buffer_store_dword v{t+1}, v{aFO}, {S4(sWS)}, 0 offen sc1
        s_mov_b64 exec, -1""")
        flag_poll(aFR,t+4,sFLO,C); flag_poll(aFR,t+4,sFRE,C); p("s_branch L_plr")
    cold(slow)
    XL=CFG['xru']==99
    XF_=lambda k: (230+2*k if k<8 else 168+2*(k-8))
    p(f"v_mov_b32 v{t}, {F_DONE}")
    if not XL: p("s_waitcnt vmcnt(4)")
    if CFG['xdma']:
        for k in range(5): p(f"ds_read_b64 {vr(XR+2*k,2)}, v{aXL} offset:{8*k}")
        for k in range(5): p(f"ds_read_b64 {vr(WR_+2*k,2)}, v{aWR} offset:{8*k}")
    if CFG['odn']==2 and not XL: acc_init()
    if CFG['odn']: lds_wait(t,t+1,C,'gt',4,0)
    for s_ in range(5): bload(s_)
    if CFG['odn']!=2 and not XL: acc_init()
    p(f"v_mov_b32 v{t}, {F_WOR}")
    STAMP('fo')
    lds_wait(t,t+1,C,'gt',2,0)
    p(f"ds_read_b32 v{SW}, v{t} offset:{L_SWS-F_WOR}"); LG.append('x')
    STAMP('wor')
    for m in range(LA): aread(m)
    if CFG['psq']: p(f"v_lshrrev_b32 v{t+7}, 2, v0\nv_and_b32 v{aPQ}, 3, v0\nv_lshlrev_b32 v{aPQ}, 4, v{aPQ}\nv_lshl_add_u32 v{aPQ}, v{t+7}, 7, v{aPQ}")
    p(f"""v_mov_b32 v{t+7}, {F_WO2}
    s_mov_b32 s{sRETRY}, {SPIN}
    s_lshl_b32 s{A}, s{sWAVE}, 2
    s_add_u32 s{A}, s{A}, {F_X}
    v_mov_b32 v{t+10}, s{A}
    v_xor_b32 v{t+11}, 4, v{t+10}
    v_mov_b32 v{t+12}, 1""")
    G={}; a=0
    for n in CFG['ogr2']: G[a]=a+n; a+=n
    assert a==10 and 5 in G
    def chain(a,b):
        return [f"v_max_u32 v{MXS}, v{BF+8*a}, v{BF+8*a+2}"]+[f"v_max3_u32 v{MXS}, v{BF+4*k}, v{BF+4*k+2}, v{MXS}" for k in range(2*a+1,2*b)]
    cmp_=f"v_cmp_eq_u32 vcc, -1, v{MXS}"
    def retry(a,b):
        e=10 if a>=5 else 5
        def f():
            p(f"L_og{a}:\ns_sub_u32 s{sRETRY}, s{sRETRY}, 1\ns_cbranch_scc1 L_ogr{a}")
            sl=CFG['osl'][a//5]
            if sl: p(f"s_sleep {sl}")
            for k in range(a,e): bload(k)
            p(f"s_waitcnt vmcnt({20-2*b if e==10 and not (XL and CFG['xrd']>=0) else 0})")
            for x in chain(a,b): p(x)
            p(f"{cmp_}\ns_nop 0\ns_cbranch_vccnz L_og{a}\ns_branch L_ogr{a}")
        cold(f)
    RM={}
    for j in range(10): RM.setdefault(max(-1,int(CFG['orem2'][0]+j*CFG['orem2'][1])),[]).append(j)
    assert max(RM)<=24
    nis=10
    for j in RM.get(-1,()): bload(5+j//2,(j&1,)); nis+=1
    p(f"s_waitcnt vmcnt({nis-2*G[0]})")
    for x in chain(0,G[0]): p(x)
    p(f"{cmp_}\ns_nop 0\ns_cbranch_vccnz L_og0\nL_ogr0:"); retry(0,G[0])
    STAMP('pl')
    def mf(m,u):
        s_,t_=divmod(m,5)
        a_=vr((WACC,ACC2)[u]+4*t_,4)
        p(f"v_mfma_f32_16x16x32_bf16 {a_}, {vr(af(m),4)}, {vr(BF+8*s_+4*u,4)}, {0 if (u or XL) and s_==0 else a_}")
    WE=CFG['wwe2']
    mX=max(RM)+CFG['xrd']; nx_=0; nxat=0
    if XL and mX<0: xr_loads(); nx_=6; nxat=nis
    for m in range(45):
        s_,t_=divmod(m,5)
        nx=s_+1 if s_+1 in G else None
        if m==25:
            STAMP('pr')
            p(f"""s_mov_b64 exec, 1
            ds_add_u32 v{t+7}, v{t+12} offset:{F_LD-F_WO2}"""); LG.append('x')
            if CFG['prm']==25 and 'PR' in (CFG['gstart'],CFG['dstart'],CFG['dgate'],CFG['mtg']):
                p(f"v_mov_b32 v{t+4}, {F_PR}\nds_add_u32 v{t+4}, v{t+12}"); LG.append('x')
            p("s_mov_b64 exec, -1")
        if m==CFG['prm']!=25 and 'PR' in (CFG['gstart'],CFG['dstart'],CFG['dgate'],CFG['mtg']):
            p(f"s_mov_b64 exec, 1\nds_add_u32 v{t+7}, v{t+12} offset:{F_PR-F_WO2+65536 if F_PR<F_WO2 else F_PR-F_WO2}\ns_mov_b64 exec, -1" if 0 else f"s_mov_b64 exec, 1\nv_mov_b32 v{t+4}, {F_PR}\nds_add_u32 v{t+4}, v{t+12}\ns_mov_b64 exec, -1"); LG.append('x')
        w=[]
        if nx is not None and t_==1: w.append(f"vmcnt({nis+(nx_ if 2*G[nx]<=nxat else 0)-2*G[nx]}"); assert nis>=2*G[nx]
        n=lgw(m+WE-1) if m%WE==0 else None
        if n is not None: w.append(f"lgkmcnt({n}")
        if w: p("s_waitcnt "+") ".join(w)+")")
        mf(m,1)
        if m==25-2*LA-1: p(f"ds_read_b32 v{t+6}, v{t+7}"); LG.append('x')
        if m+LA==25:
            assert nx is None or t_<3
            p(f"v_cmp_gt_u32 vcc, 2, v{t+6}\ns_nop 0\ns_cbranch_vccnz L_wo2w\nL_wo2r:")
            def f():
                p("L_wo2w:"); lds_wait(t+7,t+6,C,'gt',2,0); p("s_branch L_wo2r")
            cold(f)
        if m==44-LA: p(f"ds_read_b32 v{t+6}, v{t+7} offset:{F_LD-F_WO2}"); LG.append('x')
        if m+LA<50: aread(m+LA,(0,) if CFG['wsplit'] else (0,1))
        mf(m,0)
        if m+LA<50 and CFG['wsplit']: aread(m+LA,(1,))
        for j in RM.get(m,()): bload(5+j//2,(j&1,)); nis+=1
        if XL and m==mX: xr_loads(); nx_=6; nxat=nis
        if XL and m==40: p("s_waitcnt vmcnt(0)")
        if XL and 40<=m<45:
            for k in (2*(m-40),2*(m-40)+1): p(f"v_lshlrev_b32 v{XF_(k)}, 16, v{XR+k}\nv_and_b32 v{XF_(k)+1}, 0xffff0000, v{XR+k}")
        if CFG['mtg']=='RL' and m==max(RM)+CFG['rld']:
            p(f"s_mov_b64 exec, 1\nv_mov_b32 v{t+4}, {F_H2}\nds_add_u32 v{t+4}, v{t+12}\ns_mov_b64 exec, -1"); LG.append('x')
        if nx is not None:
            ch=chain(nx,G[nx]); k=-(-len(ch)//2)
            if t_==1:
                for x in ch[:k]: p(x)
            if t_==2:
                for x in ch[k:]: p(x)
            if t_==3: p(cmp_)
            if t_==4:
                if nx==5: STAMP('loc')
                p(f"s_cbranch_vccnz L_og{nx}\nL_ogr{nx}:"); retry(nx,G[nx])
                STAMP('og%d'%nx)
    assert LA>=5 and 9 not in G
    for m in range(45,50):
        n=lgw(m)
        if n is not None: p(f"s_waitcnt lgkmcnt({n})")
        mf(m,1)
        if m==45:
            p(f"v_cmp_gt_u32 vcc, 4, v{t+6}\nv_mov_b32 v{t}, 0x3f803f80\ns_cbranch_vccnz L_ldw\nL_ldr:")
            def f():
                p(f"L_ldw:\nv_add_u32 v{t+7}, {F_LD-F_WO2}, v{t+7}"); lds_wait(t+7,t+6,C,'gt',4,0); p("s_branch L_ldr")
            cold(f)
    p(f"""v_mov_b32 v{t+2}, 0
    v_mov_b32 v{t+3}, 0
    v_mov_b32 v{t+4}, 0
    v_xor_b32 v{t+5}, 1024, v{aXW}""")
    for k in range(5):
        p(f"ds_write_b128 v{aXW}, {vr(ACC2+4*k,4)} offset:{2048*k}")
        mf(45+k,0)
    lp=p.lab("xw"); ok=p.lab("xok")
    STAMP('xw')
    p(f"""ds_write_b32 v{t+10}, v{t+12}
    s_mov_b32 s{C}, {SPIN*4}""")
    if XL:
        md=p.lab("xwm")
        p(f"ds_read_b32 v{t+6}, v{t+11}")
        for k in range(5): p(f"ds_read_b128 {vr(BF+4*k,4)}, v{t+5} offset:{2048*k}")
        for k in range(10): p(f"v_pk_add_f32 {vr(WACC+2*k,2)}, {vr(WACC+2*k,2)}, {vr(XF_(k),2)}")
        p(f"s_branch {md}")
    p(f"""{lp}:
    ds_read_b32 v{t+6}, v{t+11}""")
    for k in range(5): p(f"ds_read_b128 {vr(BF+4*k,4)}, v{t+5} offset:{2048*k}")
    if XL: p(f"{md}:")
    p(f"""s_waitcnt lgkmcnt(5)
    v_cmp_eq_u32 vcc, 0, v{t+6}
    s_nop 0
    s_cbranch_vccz {ok}""")
    spin(C,lp,ok)
    p(f"s_waitcnt lgkmcnt(0)\ns_branch {lp}\n{ok}:")
    for k in range(5):
        p(f"s_waitcnt lgkmcnt({4-k})")
        for j in range(2): p(f"v_pk_add_f32 {vr(WACC+4*k+2*j,2)}, {vr(WACC+4*k+2*j,2)}, {vr(BF+4*k+2*j,2)}")
def wo_gemm_old():
    t=vT; A=sT+7; B=sT+8; C=sT+17; MXS=t+8
    wo_scal(); wo_flags()
    p("s_waitcnt vmcnt(4)")
    acc_init()
    p(f"""v_mov_b32 v{t}, {F_WOR}
    v_mov_b32 v{t+1}, s{sTAG}
    s_cmp_eq_u32 s{sOSC}, 0
    s_cbranch_scc1 L_nofo
    s_mov_b64 exec, 3
    s_waitcnt vmcnt(0)
    buffer_store_dword v{t+1}, v{aFO}, {S4(sWS)}, 0 offen sc1
    s_mov_b64 exec, -1
    L_nofo:""")
    STAMP('fo')
    lds_wait(t,t+1,C,'gt',2,0)
    p(f"""ds_read_b32 v{SW}, v{t} offset:{L_SWS-F_WOR}
    L_wo:""")
    STAMP('wor')
    sROFF=[sOR,sOR+1,sPRB]
    LA=CFG['wla']; WE=CFG['wwe']
    LG=[]
    def af(m): return AF+4*(m%15)
    def aread(m):
        s_,t_=divmod(m,5)
        for rd in range(2):
            p(f"ds_read_b64_tr_b16 {vr(af(m)+2*rd,2)}, v{aAL if s_<10 else aAR} offset:{(s_%10)*5120+rd*2560+8*t_}"); LG.append(m)
    def lgw(m):
        k=[i for i,x in enumerate(LG) if x!='x' and x<=m]
        if not k: return None
        n=len(LG)-1-max(k); del LG[:max(k)+1]; return n
    def bload(s_):
        so=(sOL+(s_%10)//4) if s_<10 else sROFF[(s_%10)//4]
        return f"buffer_load_dwordx4 {vr(BF+4*s_,4)}, v{aLin}, {S4(sWS)}, s{so} offen offset:{(s_%10%4)*1024} sc1"
    for m in range(LA): aread(m)
    p(f"v_mov_b32 v{MXS}, 0\nv_mov_b32 v{t+7}, {F_WO2}")
    p(f"s_cmp_lg_u32 s{sMODE}, 0\ns_cbranch_scc1 L_plsl")
    probe(sOL,C)
    p("L_plr:")
    n0=len(p.L)
    p("L_plsl:"); flag_poll(aFR,t+4,sFLO,C); p("s_branch L_plr")
    COLD.append("\n".join(p.L[n0:])); del p.L[n0:]
    STAMP('pl')
    for s_ in range(10): p(bload(s_))
    p(f"buffer_load_dword v{t+4}, v{aFR}, {S4(sWS)}, s{sFRE} offen sc1")
    for m in range(100):
        s_,t_=divmod(m,5)
        if m==50:
            STAMP('loc')
            flag_poll(aFR,t+4,sFRE,C,first=False)
            STAMP('pr')
            for k in range(10,20): p(bload(k))
            if 'PR' in (CFG['gstart'],CFG['dstart'],CFG['dgate'],CFG['mtg']):
                p(f"""s_mov_b64 exec, 1
                v_mov_b32 v{t+4}, {F_PR}
                v_mov_b32 v{t+5}, 1
                ds_add_u32 v{t+4}, v{t+5}
                s_mov_b64 exec, -1"""); LG.append('x')
        w=[]
        if t_==0: w.append(f"vmcnt({(10-s_) if s_<10 else (19-s_)}")
        if m%WE==0:
            n=lgw(m+WE-1)
            if n is not None: w.append(f"lgkmcnt({n}")
        if w: p("s_waitcnt "+") ".join(w)+")")
        a_=vr(WACC+4*t_,4)
        p(f"v_mfma_f32_16x16x32_bf16 {a_}, {vr(af(m),4)}, {vr(BF+4*s_,4)}, {a_}")
        if m+LA==50-10: p(f"ds_read_b32 v{t+6}, v{t+7}"); LG.append('x')
        if m+LA==50:
            p(f"v_cmp_gt_u32 vcc, 2, v{t+6}\ns_nop 0\ns_cbranch_vccnz L_wo2w\nL_wo2r:")
            n0=len(p.L)
            p("L_wo2w:"); lds_wait(t+7,t+6,C,'gt',2,0); p("s_branch L_wo2r")
            COLD.append("\n".join(p.L[n0:])); del p.L[n0:]
        if m+LA<100: aread(m+LA)
        if t_==0 and s_<10: p(f"v_max3_u32 v{MXS}, v{BF+4*s_}, v{BF+4*s_+2}, v{MXS}")
    p(f"""v_cmp_eq_u32 vcc, -1, v{MXS}
    v_mov_b32 v{t}, 0x3f803f80
    v_mov_b32 v{t+2}, 0
    v_mov_b32 v{t+3}, 0
    v_mov_b32 v{t+4}, 0
    s_cbranch_vccnz L_woredo
    L_wook:""")
    COLD.append(f"L_woredo:\ns_sub_u32 s{sRETRY}, s{sRETRY}, 1\ns_cbranch_scc1 L_wook\ns_nop 7")
    q=P();
    COLD.append("\n".join(f"v_lshlrev_b32 v{WACC+2*k}, 16, v{XR+k}\nv_and_b32 v{WACC+2*k+1}, 0xffff0000, v{XR+k}" for k in range(10))+"\ns_branch L_wo")
def wo_main():
    t=vT; A=sT+7; B=sT+8; C=sT+17
    (wo_gemm2 if CFG['wsp'] else wo_gemm if CFG['osent'] else wo_gemm_old)()
    STAMP('wend')
    for k in range(10): p(f"v_cvt_pk_bf16_f32 v{HP+k}, v{WACC+2*k}, v{WACC+2*k+1}")
    for k in range(10):
        p(f"""v_dot2_f32_bf16 v{t+2}, v{HP+k}, v{t}, v{t+2}
        v_dot2_f32_bf16 v{t+4}, v{HP+k}, v{HP+k}, v{t+4}
        v_dot2_f32_bf16 v{t+3}, v{HP+k}, v{WR_+k}, v{t+3}""")
    p(f"""s_lshl_b32 s{A}, s{sJ}, 4
    s_add_u32 s{A}, s{A}, s{sPSO}""")
    red3(t+2,t+3,t+4,t+5)
    p(f"""v_mov_b32 v{t+5}, s{sTAG}
    s_mov_b64 exec, 0xffff
    s_cmp_lg_u32 s{sMODE}, 0
    s_cbranch_scc1 L_pssc
    buffer_store_dwordx4 {vr(t+2,4)}, v{aPS}, {S4(sWS)}, s{A} offen
    L_psr:""")
    if 'WE' in (CFG['gstart'],CFG['g2nd'][0],CFG['mtg']): p(f"s_mov_b64 exec, 1\nv_mov_b32 v{t+10}, {F_SCP}\nv_mov_b32 v{t+11}, 1\nds_add_u32 v{t+10}, v{t+11}")
    p("s_mov_b64 exec, -1")
    COLD.append(f"L_pssc:\nbuffer_store_dwordx4 {vr(t+2,4)}, v{aPS}, {S4(sWS)}, s{A} offen sc1\ns_branch L_psr")
    STAMP('ps')
    G=t+10
    lp=p.lab("ps"); ok=p.lab("psok"); md=p.lab("psm")
    Q=CFG['psq']
    ld=f"""buffer_load_dwordx4 {vr(G,4)}, v{aPQ if Q else aPS}, {S4(sWS)}, s{sPSO} offen sc1
    buffer_load_dwordx4 {vr(G+4,4)}, v{aPQ if Q else aPS}, {S4(sWS)}, s{sPSO} offen offset:{64 if Q else 16} sc1"""
    p(ld)
    for k in range(10): p(f"v_lshlrev_b32 v{HF_+2*k}, 16, v{HP+k}\nv_and_b32 v{HF_+2*k+1}, 0xffff0000, v{HP+k}")
    if CFG['dbg']:
        p(f"s_add_u32 s{A}, s{sXO}, {HB}")
        for o,n in ((0,4),(4,4),(8,2)): p(f"buffer_store_dwordx{n} {vr(HP+o,n)}, v{aX2}, {S4(sWS)}, s{A} offen offset:{4*o}")
    p(f"""s_lshl_b32 s{A}, s{sRT}, 4
    s_sub_u32 s{A}, 2047, s{A}
    {f"v_lshrrev_b32 v{t}, 2, v0" if Q else f"v_and_b32 v{t}, 15, v0"}
    v_sub_u32 v{t+9}, s{A}, v{t}
    v_lshlrev_b32 v{t+9}, 3, v{t+9}
    s_lshl_b32 s{A}, s{sWAVE}, 6
    s_add_u32 s{A}, s{A}, {L_KEYS}
    v_lshl_add_u32 v{aKY}, v{t}, 2, s{A}
    v_and_b32 v{t}, {3 if Q else 48}, v0
    v_lshlrev_b32 v{t}, {6 if Q else 2}, v{t}
    v_add_u32 v{t+8}, {L_KEYS}, v{t}
    {f"v_and_b32 v{t}, 15, v0" if Q else ""}
    {f"v_lshlrev_b32 v{aBP}, 4, v{t}" if Q else ""}
    s_mov_b32 s{C}, {SPIN}
    s_branch {md}
    {PG if CFG['lay'] else ""}
    {"L_padM:" if CFG['lay'] and CFG['padk'] else ""}
    {"s_branch "+KVB(0) if CFG['lay'] and CFG['padk'] else ""}
    {lp}:
    {ld}
    {md}:
    s_waitcnt vmcnt(0)
    v_cmp_ne_u32 vcc, s{sTAG}, v{G+3}
    v_cmp_ne_u32 s[{sT+14}:{sT+15}], s{sTAG}, v{G+7}
    v_pk_add_f32 {vr(t+4,2)}, {vr(G,2)}, {vr(G+4,2)}
    v_add_f32 v{t+6}, v{G+2}, v{G+6}
    s_or_b64 vcc, vcc, s[{sT+14}:{sT+15}]
    s_cbranch_scc0 {ok}""")
    spin(C,lp,ok)
    p(f"""s_branch {lp}
    {ok}:""")
    STAMP('psr'); COUNT('npsr',C,SPIN)
    if 'PS' in (CFG['g2nd'][0],CFG['gstart'],CFG['dstart'],CFG['dgate'],CFG['mtg']): p(f"""s_mov_b64 exec, 1
    v_mov_b32 v{G}, {F_PS}
    v_mov_b32 v{G+1}, 1
    ds_add_u32 v{G}, v{G+1}
    s_mov_b64 exec, -1""")
    M=t+4
    if Q:
        for qp in ("[1,0,3,2]","[2,3,0,1]"):
            for k in range(3): p(f"v_add_f32_dpp v{M+k}, v{M+k}, v{M+k} quad_perm:{qp} row_mask:0xf bank_mask:0xf")
    else: red3(M,M+1,M+2,M+3)
    p(f"""v_mul_f32 v{M}, {1/640!r}, v{M}
    v_mul_f32 v{M+2}, {1/640!r}, v{M+2}
    v_fma_f32 v{M+2}, -v{M}, v{M}, v{M+2}
    v_max_f32 v{M+2}, 0, v{M+2}""")
    bf16r(M+2,M+2)
    p(f"v_add_f32 v{M+2}, 0x3727c5ac, v{M+2}")
    bf16r(M+2,M+2)
    p(f"v_sqrt_f32 v{M+2}, v{M+2}")
    bf16r(M,M)
    bf16r(M+2,M+2)
    RS=t+2
    p(f"""v_rcp_f32 v{RS}, v{M+2}
    v_fma_f32 v{M+1}, -v{M}, v{SW}, v{M+1}
    v_mul_f32 v{M+1}, v{M+1}, v{RS}
    v_cvt_pk_bf16_f32 v{M+1}, v{M+1}, v{M+1}
    v_mul_f32 v{RS+1}, -v{M}, v{RS}
    v_ashrrev_i32 v{M+2}, 31, v{M+1}
    v_or_b32 v{M+2}, 0x80000000, v{M+2}
    v_xor_b32 v{M+1}, v{M+1}, v{M+2}
    v_and_b32 v{M+1}, 0xffff0000, v{M+1}
    v_or_b32 v{KEY}, v{M+1}, v{t+9}
    ds_write_b32 v{aKY}, v{KEY}""")
    K16=AF
    lp=p.lab("ky"); ok=p.lab("kyok"); md=p.lab("kym")
    def lfma():
        for k in range(10): p(f"v_pk_fma_f32 {vr(WACC+2*k,2)}, {vr(HF_+2*k,2)}, {vr(RS,2)}, {vr(RS,2)} op_sel:[0,0,1] op_sel_hi:[1,0,1]")
    def kread():
        for i in range(4): p(f"ds_read_b128 {vr(K16+4*i,4)}, v{t+8} offset:{16*i}")
    if Q:
        p(f"ds_bpermute_b32 v{RS}, v{aBP}, v{RS}\nds_bpermute_b32 v{RS+1}, v{aBP}, v{RS+1}")
        kread()
        p(f"s_mov_b32 s{C}, {SPIN*4}\ns_waitcnt lgkmcnt(4)")
        lfma()
        p(f"s_branch {md}\n{lp}:")
        kread()
        p(f"{md}:")
    else:
        lfma()
        p(f"s_mov_b32 s{C}, {SPIN*4}\n{lp}:")
        kread()
    p("s_waitcnt lgkmcnt(0)")
    p(f"v_max3_u32 v{t}, v{K16}, v{K16+1}, v{K16+2}")
    for i in range(3,15,2): p(f"v_max3_u32 v{t}, v{K16+i}, v{K16+i+1}, v{t}")
    p(f"""v_max_u32 v{t}, v{t}, v{K16+15}
    v_cmp_eq_u32 vcc, -1, v{t}
    v_mov_b32 v{t}, 0
    s_cbranch_vccz {ok}""")
    spin(C,lp,ok)
    p(f"s_branch {lp}\n{ok}:")
    STAMP('keys')
    m0_=sT+18
    for i in range(18):
        if i<16: p(f"v_cmp_gt_u32 s[{m0_+2*(i%2)}:{m0_+2*(i%2)+1}], v{K16+i}, v{KEY}") if False else None
    MK=[sT+14,sT+16,sT+18]
    for i in range(18):
        if i<16: m=MK[i%3]; p(f"v_cmp_gt_u32 s[{m}:{m+1}], v{K16+i}, v{KEY}")
        elif i==16: p("s_nop 0")
        if i>=2: m=MK[(i-2)%3]; p(f"v_addc_co_u32 v{t}, vcc, 0, v{t}, s[{m}:{m+1}]")
    if Q: p(f"""v_cvt_pk_bf16_f32 v{LP}, v{WACC}, v{WACC+1}
    v_cvt_pk_bf16_f32 v{LP+1}, v{WACC+2}, v{WACC+3}
    v_add_u32_dpp v{t}, v{t}, v{t} quad_perm:[1,0,3,2] row_mask:0xf bank_mask:0xf
    v_cvt_pk_bf16_f32 v{LP+2}, v{WACC+4}, v{WACC+5}
    v_cvt_pk_bf16_f32 v{LP+3}, v{WACC+6}, v{WACC+7}
    v_add_u32_dpp v{t}, v{t}, v{t} quad_perm:[2,3,0,1] row_mask:0xf bank_mask:0xf""")
    else: p(f"""v_mov_b32 v{t+1}, v{t}
    v_cvt_pk_bf16_f32 v{LP}, v{WACC}, v{WACC+1}
    v_cvt_pk_bf16_f32 v{LP+1}, v{WACC+2}, v{WACC+3}
    v_permlane32_swap_b32 v{t}, v{t+1}
    v_cvt_pk_bf16_f32 v{LP+2}, v{WACC+4}, v{WACC+5}
    v_add_u32 v{t}, v{t}, v{t+1}
    v_mov_b32 v{t+1}, v{t}
    v_cvt_pk_bf16_f32 v{LP+3}, v{WACC+6}, v{WACC+7}
    v_cvt_pk_bf16_f32 v{LP+4}, v{WACC+8}, v{WACC+9}
    v_permlane16_swap_b32 v{t}, v{t+1}
    v_cvt_pk_bf16_f32 v{LP+5}, v{WACC+10}, v{WACC+11}
    v_add_u32 v{t}, v{t}, v{t+1}""")
    p(f"""v_cmp_gt_u32 s[{sCAND}:{sCAND+1}], 8, v{t}
    v_or_b32 v{KEY}, v{KEY}, v{t}
    v_mov_b32 v{t+1}, {L_CA&~0xffff}
    v_lshl_add_u32 v{t+1}, v{t}, 3, v{t+1}
    v_mov_b32 v{KEY+1}, s{sTAG}
    s_cmp_lg_u32 s{sJ}, 0
    s_cbranch_scc1 L_noca
    {f"s_and_b32 exec_lo, s{sCAND}, 0x11111111" if Q else f"s_and_b32 exec_lo, s{sCAND}, 0xffff"}
    {f"s_and_b32 exec_hi, s{sCAND+1}, 0x11111111" if Q else "s_mov_b32 exec_hi, 0"}
    ds_write_b64 v{t+1}, {vr(KEY,2)} offset:{L_CA&0xffff}
    s_mov_b64 exec, 0xff
    s_cmp_lg_u32 s{sWAVE}, 0
    s_cbranch_scc1 L_noca
    v_lshlrev_b32 v{t+2}, 3, v0
    v_add_u32 v{t+3}, {L_CA}, v{t+2}
    s_lshl_b32 s{A}, s{sBLK}, 7
    s_add_u32 s{A}, s{A}, {CA}
    s_mov_b32 s{C}, {SPIN*4}
    L_cal:
    ds_read_b64 v[{t+4}:{t+5}], v{t+3}
    s_waitcnt lgkmcnt(0)
    v_cmp_ne_u32 vcc, s{sTAG}, v{t+5}
    s_nop 0
    s_cbranch_vccz L_caok""")
    spin(C,"L_cal","L_caok")
    p(f"""s_branch L_cal
    L_caok:
    buffer_store_dwordx2 v[{t+4}:{t+5}], v{t+2}, {S4(sWS)}, s{A} offen sc1
    L_noca:
    s_mov_b64 exec, -1""")
    STAMP('ca')
    if Q: p(f"ds_bpermute_b32 v{t}, v{aBP}, v{t}\nds_bpermute_b32 v{KEY}, v{aBP}, v{KEY}")
    for k in range(4 if Q else 6,10): p(f"v_cvt_pk_bf16_f32 v{LP+k}, v{WACC+2*k}, v{WACC+2*k+1}")
    p(f"""v_lshrrev_b32 v{t+1}, 4, v0
    v_mul_u32_u24 v{t+1}, 40, v{t+1}
    {"s_waitcnt lgkmcnt(0)" if Q else ""}
    {f"v_cmp_gt_u32 s[{sCAND}:{sCAND+1}], 8, v{t}" if Q else ""}
    v_mul_u32_u24 v{t}, 2560, v{t}
    v_add_u32 v{aCD}, v{t}, v{t+1}
    s_mul_i32 s{A}, s{sBLK}, 20480
    s_mul_i32 s{B}, s{sJ}, 160
    s_add_u32 s{A}, s{A}, s{B}
    s_add_u32 s{A}, s{A}, {CAND}
    s_and_b64 exec, s[{sCAND}:{sCAND+1}], -1
    s_cbranch_scc0 L_nocd""")
    for base,off in ((LP,0),(HP,1280)):
        if 'nocand' in CFG['xp'] or ('noh' in CFG['xp'] and off): continue
        for o,n in ((0,4),(4,4),(8,2)): p(f"buffer_store_dwordx{n} {vr(base+o,n)}, v{aCD}, {S4(sWS)}, s{A} offen offset:{off+4*o} sc1")
    p("L_nocd:\ns_mov_b64 exec, -1")
    for k in range(10): p(f"v_pk_add_f32 {vr(WACC+2*k,2)}, {vr(WACC+2*k,2)}, {vr(HF_+2*k,2)}")
    for k in range(10): p(f"v_cvt_pk_bf16_f32 v{OP+k}, v{WACC+2*k}, v{WACC+2*k+1}")
    if CFG['odf']: p(f"s_cmp_lt_u32 s{sMI}, {CFG['odf']}\ns_cbranch_scc1 L_noo1")
    p(f"s_andn2_b64 exec, -1, s[{sCAND}:{sCAND+1}]\ns_cbranch_scc0 L_noo1")
    if 'noout' not in CFG['xp']: out_store()
    p("L_noo1:")
    if 1: p(f"""s_mov_b64 exec, 1
    v_mov_b32 v{t+4}, {F_O1}
    v_mov_b32 v{t+5}, 1
    ds_add_u32 v{t+4}, v{t+5}
    s_mov_b64 exec, -1""")
    else: p("s_mov_b64 exec, -1")
    STAMP('o1')
KEY=228; sCAND=sT+20
def out_store():
    for o,n in ((0,4),(4,4),(8,2)): p(f"buffer_store_dwordx{n} {vr(OP+o,n)}, v{aX2}, {S4(sOUT)}, s{sXO} offen offset:{4*o} {CFG['opol']}")

def moe_weights():
    A=sT+7; B=sT+8; vt=2; D=40; aW_=12
    gu=p.lab("mwgu"); wr=p.lab("mwwr"); en=p.lab("mwend")
    FA=dict(WOD=(F_WOD,2),PR=(F_PR,4),O1=(F_O1,4),DONE=(F_DONE,4),G2=(F_G2,2),PS=(F_PS,4),WO2=(F_WO2,2),WE=(F_SCP,4),TOP=(L_TOP,0))
    def gate(k):
        p(f"v_mov_b32 v{vt+4}, {FA[k][0]}")
        if k=='TOP': lds_wait(vt+4,vt+5,sT+5,'eq',-1,2)
        else: lds_wait(vt+4,vt+5,sT+5,'gt',FA[k][1],2)
    pl_=p.lab("mwpl")
    p(f"""s_cmp_ge_u32 s{sMI}, 17
    s_cbranch_scc1 {pl_}
    v_bfe_u32 v{vt}, v0, 3, 2
    v_lshrrev_b32 v{vt+1}, 5, v0
    v_lshlrev_b32 v{vt}, 1, v{vt}
    v_add_lshl_u32 v{vt}, v{vt}, v{vt+1}, 2
    v_bfe_u32 v{vt+1}, v0, 1, 2
    v_add_u32 v{vt}, v{vt}, v{vt+1}
    v_and_b32 v{vt+1}, 1, v0
    v_lshlrev_b32 v{vt+1}, 4, v{vt+1}
    s_cmp_lt_u32 s{sMI}, 12
    s_cbranch_scc1 {gu}
    v_mul_u32_u24 v{vt}, 1280, v{vt}
    v_add_u32 v{aW_}, v{vt}, v{vt+1}
    s_mul_i32 s{A}, s{sG}, 5
    s_add_u32 s{A}, s{A}, s{sMI}
    s_sub_u32 s{A}, s{A}, 12
    s_lshl_b32 s{A}, s{A}, 5
    s_mul_i32 s{B}, s{HW}, {12*32*1280}
    s_add_u32 s{A}, s{A}, s{B}""")
    gate(CFG['dstart'])
    STAMP('mg')
    for s_ in range(12):
        if s_>=CFG['ddep']: p(f"s_waitcnt vmcnt({CFG['ddep']-1})")
        p(f"buffer_load_dwordx4 {vr(D+4*s_,4)}, v{aW_}, {S4(sWD)}, s{A} offen {CFG['mpol']}")
        if s_<11: p(f"s_add_u32 s{A}, s{A}, {32*1280}")
    p(f"""s_mul_i32 s{B}, s{HW}, 12288
    s_branch {wr}
    {pl_}:""")
    for g_,h_ in CFG['wb']:
        sk=p.lab("nowb")
        p(f"s_lshl_b32 s{A}, s{sSLOT}, 2\ns_add_u32 s{A}, s{A}, s{HW}\ns_cmp_lg_u32 s{A}, {4*CFG['wbs']+h_}\ns_cbranch_scc1 {sk}")
        if g_!='no': gate(g_)
        p(f"buffer_wbl2 sc1\ns_waitcnt vmcnt(0)\n{sk}:")
    if CFG['dgate']!='no' and not CFG['dw3']:
        if CFG['dtn']: p(f"s_cmp_ge_u32 s{sMI}, 28\ns_cbranch_scc1 {en}")
        gate(CFG['dgate'])
        touch(vTD,sWD,CFG['mpair'])
        if CFG['dtn']: p("s_mov_b64 exec, 63"); touch(vTD2,sWD,0); p("s_mov_b64 exec, -1")
        STAMP('mg')
        if CFG['prof']: p("s_waitcnt vmcnt(0)"); STAMP('mw')
    p(f"""s_branch {en}
    {gu}:
    v_mul_u32_u24 v{vt}, 3072, v{vt}
    v_add_u32 v{aW_}, v{vt}, v{vt+1}
    s_mul_i32 s{A}, s{sG}, 12
    s_add_u32 s{A}, s{A}, s{sMI}
    s_lshl_b32 s{A}, s{A}, 5
    s_mul_i32 s{B}, s{HW}, {5*32*3072}
    s_add_u32 s{A}, s{A}, s{B}""")
    gate(CFG['gstart'])
    STAMP('mg')
    for s_ in range(5):
        for m_ in range(2):
            if 2*s_+m_==CFG['g2nd'][1]: gate(CFG['g2nd'][0]); STAMP('mg2')
            if 2*s_+m_>=CFG['mdep']: p(f"s_waitcnt vmcnt({CFG['mdep']-1})")
            p(f"buffer_load_dwordx4 {vr(D+8*s_+4*m_,4)}, v{aW_}, {S4((sWG,sWU)[m_])}, s{A} offen {CFG['mpol']}")
        if s_<4: p(f"s_add_u32 s{A}, s{A}, {32*3072}")
    p(f"s_mul_i32 s{B}, s{HW}, 12288\n{wr}:\nv_lshl_add_u32 v{vt}, v0, 4, s{B}")
    gate('DONE')
    p("s_waitcnt vmcnt(0)")
    for s_ in range(12): p(f"ds_write_b128 v{vt}, {vr(D+4*s_,4)} offset:{L_MW+s_*1024}")
    p(f"""s_lshl_b32 s{A}, s{HW}, 2
    s_add_u32 s{A}, s{A}, {F_MW}
    v_mov_b32 v{vt}, s{A}
    ds_write_b32 v{vt}, v{vt}
    s_waitcnt lgkmcnt(0)""")
    STAMP('mw')
    p(f"{en}:")
def top8(R,K2,K1,y,tt):
    def clean(chs):
        seq=[]
        for (x,y_,t_) in chs:
            seq.append([f"v_max_u32_dpp v{y_}, v{x}, v{x} row_shl:4 row_mask:0xf bank_mask:0x5",
                        f"v_min_u32_dpp v{y_}, v{x}, v{x} row_shr:4 row_mask:0xf bank_mask:0xa",
                        None,
                        f"v_mov_b32_dpp v{t_}, v{y_} quad_perm:[2,3,0,1] row_mask:0xf bank_mask:0xf",
                        f"v_med3_u32 v{y_}, v{y_}, v{t_}, v{K2}",
                        None,
                        f"v_mov_b32_dpp v{t_}, v{y_} quad_perm:[1,0,3,2] row_mask:0xf bank_mask:0xf",
                        f"v_med3_u32 v{x}, v{y_}, v{t_}, v{K1}"])
        n=len(chs)
        p(f"s_nop {2-n}")
        for i in range(8):
            if seq[0][i] is None: p(f"s_nop {2-n}")
            else:
                for c in seq: p(c[i])
                if i==0 and n==1: p("s_nop 1")
                elif i==0: p("s_nop 0")
    dp="row_mask:0xf bank_mask:0xf"
    p(f"v_max_u32_dpp v{R}, v{R+2}, v{R} row_half_mirror {dp}\nv_max_u32_dpp v{R+4}, v{R+6}, v{R+4} row_half_mirror {dp}")
    clean([(R,y,tt),(R+4,y+1,tt+1)])
    p(f"s_nop 1\nv_max_u32_dpp v{R}, v{R+4}, v{R} row_half_mirror {dp}")
    clean([(R,y,tt)])
    p(f"s_nop 1\nv_max_u32_dpp v{R}, v{R}, v{R} row_mirror {dp}")
    clean([(R,y,tt)])
    for msk,sw in ((0xa,16),(0xc,32)):
        p(f"""s_nop 1
        v_mov_b32_dpp v{R}, v{R} row_half_mirror row_mask:{hex(msk)} bank_mask:0xf
        v_mov_b32 v{tt}, v{R}
        s_nop 1
        v_permlane{sw}_swap_b32 v{R}, v{tt}
        s_nop 0
        v_max_u32 v{R}, v{R}, v{tt}""")
        clean([(R,y,tt)])
def moe():
    t=vT; A=sT+7; B=sT+8; C=sT+17; sTHR=sT+14; sKQ=sT+3
    R=12; K2=20; K1=21; aC=22; AW=108
    BL=160
    p(f"""s_cmp_ge_u32 s{sMI}, 17
    s_cbranch_scc1 L_plain
    v_lshrrev_b32 v{t}, 3, v0
    v_and_b32 v{t+1}, 7, v0
    v_lshlrev_b32 v{t+1}, 3, v{t+1}
    v_lshl_add_u32 v{aC}, v{t}, 7, v{t+1}
    s_mov_b32 s{B}, {CA}""")
    ld="\n".join(f"buffer_load_dwordx2 {vr(R+2*i,2)}, v{aC}, {S4(sWS)}, s{B} offen offset:{i*1024} sc1" for i in range(4))
    aMF=4; aMW=5
    def getw():
        lds_wait(AW-aMF,t+10 if False else AW,C,'eq',0,0)
        STAMP('mwr')
        for s_ in range(12):
            for rd in range(2): p(f"ds_read_b64_tr_b16 {vr(AW+4*s_+2*rd,2)}, v{AW-aMW} offset:{L_MW+s_*1024+rd*512}")
    p(f"""s_cmp_lg_u32 s{sWAVE}, 0
    s_cbranch_scc1 L_nocal
    {ld}
    L_nocal:
    v_bfe_i32 v{K2}, v0, 1, 1
    v_bfe_i32 v{K1}, v0, 0, 1
    v_not_b32 v{K2}, v{K2}
    v_not_b32 v{K1}, v{K1}
    s_add_u32 s{sKQ}, s{sWAVE}, {CFG['kqr']}
    s_and_b32 s{sKQ}, s{sKQ}, 3
    s_lshl_b32 s{A}, s{sKQ}, 2
    s_add_u32 s{A}, s{A}, {F_MW}
    v_mov_b32 v{AW-aMF}, s{A}
    s_mul_i32 s{A}, s{sKQ}, 12288
    v_lshl_add_u32 v{AW-aMW}, v0, 3, s{A}
    v_and_b32 v{t}, 7, v0
    v_lshlrev_b32 v{t}, 2, v{t}
    v_add_u32 v{AW-6}, {L_TOP}, v{t}
    {f"v_add_u32 v{AW-9}, {L_TOP}, v{t}" if CFG['ldma'] else ""}
    s_cmp_ge_u32 s{sMI}, 12
    s_cbranch_scc1 L_now""")
    if CFG['ldma']:
        p(f"""v_lshrrev_b32 v{t}, 3, v0
        v_lshlrev_b32 v{t}, 2, v{t}
        v_add_u32 v{AW-9}, {L_TOP}, v{t}
        v_and_b32 v{AW-7}, 7, v0
        v_lshrrev_b32 v{t}, 4, v0
        v_lshlrev_b32 v{t}, 4, v{t}
        v_lshl_add_u32 v{t}, v{AW-7}, 7, v{t}
        s_mul_i32 s{A}, s{sWAVE}, 3072
        s_add_u32 s{A}, s{A}, {L_RED+8192}
        v_add_u32 v{AW-8}, s{A}, v{t}
        v_lshlrev_b32 v{AW-7}, 4, v{AW-7}
        s_mov_b32 m0, s{A}""")
    getw()
    lp=p.lab("ca"); ok=p.lab("caok"); md=p.lab("cam")
    p(f"""L_now:
    s_cmp_lg_u32 s{sWAVE}, 0
    s_cbranch_scc1 L_topw
    s_mov_b32 s{C}, {SPIN}
    s_branch {md}
    {lp}:
    {ld}
    {md}:
    s_waitcnt vmcnt(0)
    v_xor_b32 v{t}, v{R+1}, v{R+3}
    v_xor_b32 v{t+1}, v{R+5}, v{R+7}
    v_xor_b32 v{R+1}, s{sTAG}, v{R+1}
    v_xor_b32 v{R+5}, s{sTAG}, v{R+5}
    v_or3_b32 v{t}, v{t}, v{t+1}, v{R+1}
    v_or_b32 v{t}, v{t}, v{R+5}
    v_cmp_ne_u32 vcc, 0, v{t}
    s_nop 0
    s_cbranch_vccz {ok}""")
    spin(C,lp,ok,CFG['casl'])
    if CFG['dasl']: p(f"s_cmp_lt_u32 s{sMI}, 12\ns_cbranch_scc1 {lp}\ns_sleep {CFG['dasl']}")
    p(f"s_branch {lp}\n{ok}:")
    STAMP('car'); COUNT('ncar',C,SPIN)
    top8(R,K2,K1,t,t+2)
    p(f"ds_write_b32 v{AW-6}, v{R}")
    if CFG['ldma']: p(f"s_cmp_ge_u32 s{sMI}, 12\ns_cbranch_scc1 L_top\nL_topw:\ns_waitcnt vmcnt(0)")
    else: p(f"s_branch L_top\nL_topw:\ns_waitcnt vmcnt(0)")
    lds_wait(AW-9 if CFG['ldma'] else AW-6,R,C,'eq',-1,0)
    TOK=t+1; aR=t+2
    def deferred(tag):
        allrows=CFG['odf']>=(12 if tag[0]=='g' else 17 if tag=='d' else 99)
        p(f"""v_cmp_gt_u32 vcc, s{sTHR}, v{KEY}
        s_nop 0
        {'s_orn2_b64' if allrows else 's_and_b64'} exec, vcc, s[{sCAND}:{sCAND+1}]
        s_cbranch_scc0 L_nd{tag}""")
        out_store()
        p(f"L_nd{tag}:\ns_mov_b64 exec, -1")
    XM="s_mov_b32 exec_lo, 0x00ff00ff\ns_mov_b32 exec_hi, 0x00ff00ff" if CFG['xm'] else "s_mov_b64 exec, -1"
    if CFG['ldma']:
        lp=p.lab("gl"); ok=p.lab("glok")
        p(f"""s_cmp_ge_u32 s{sMI}, 12
        s_cbranch_scc1 L_top""")
        STAMP('top')
        p(f"""v_bfe_u32 v{TOK}, v{R}, 9, 5
        v_and_b32 v{aR}, 7, v{R}
        v_xor_b32 v{TOK}, 31, v{TOK}
        s_mul_i32 s{A}, s{sKQ}, 320
        v_lshl_add_u32 v{aR}, v{TOK}, 3, v{aR}
        s_add_u32 s{A}, s{A}, {CAND}
        v_mov_b32 v{t}, 2560
        s_sub_u32 s{B}, s{A}, 896
        v_mad_u32_u24 v{aR}, v{aR}, v{t}, v{AW-7}
        s_sub_u32 s{sT+4}, s{A}, 1792
        s_mov_b32 s{C}, {SPIN}
        {lp}:
        s_mov_b64 exec, -1
        buffer_load_dwordx4 v{aR}, {S4(sWS)}, s{A} offen sc1 lds
        buffer_load_dwordx4 v{aR}, {S4(sWS)}, s{B} offen offset:1024 sc1 lds
        s_mov_b32 exec_lo, 0x0f0f0f0f
        s_mov_b32 exec_hi, 0x0f0f0f0f
        buffer_load_dwordx4 v{aR}, {S4(sWS)}, s{sT+4} offen offset:2048 sc1 lds
        s_mov_b64 exec, -1
        v_readlane_b32 s{sTHR}, v{R}, 56
        s_lshl_b32 s{sT+5}, s{sWAVE}, 11
        s_add_u32 s{sT+5}, s{sT+5}, {L_RED}
        v_lshl_add_u32 v{t+3}, v0, 4, s{sT+5}
        s_mov_b32 exec_lo, 0x00ff00ff
        s_mov_b32 exec_hi, 0x00ff00ff""")
        for i in range(5):
            if i%2==0: p(f"s_waitcnt vmcnt({2-i//2})")
            p(f"ds_read_b128 {vr(BL+4*i,4)}, v{AW-8} offset:{(i>>1)*1024+(i&1)*64}")
        if CFG['asp']:
            G=20; U=24
            p("s_mov_b64 exec, -1")
            for s_ in range(5):
                p(f"s_waitcnt lgkmcnt({4-s_})")
                for m_,a_ in ((0,G),(1,U)):
                    p(f"v_mfma_f32_16x16x32_bf16 {vr(a_,4)}, {vr(AW+8*s_+4*m_,4)}, {vr(BL+4*s_,4)}, {vr(a_,4) if s_ else 0}")
                    if m_==0: p(f"v_max3_u32 v{t+4}, v{BL+4*s_}, v{BL+4*s_+2}, {'v%d'%(t+4) if s_ else 0}")
            p(f"""v_cmp_eq_u32 vcc, -1, v{t+4}
            s_nop 0
            s_and_b32 vcc_lo, vcc_lo, 0x00ff00ff
            s_and_b32 vcc_hi, vcc_hi, 0x00ff00ff
            s_or_b32 s{sT+5}, vcc_lo, vcc_hi
            s_cbranch_scc0 L_glok""")
        else: p(f"""s_waitcnt lgkmcnt(2)
        v_max3_u32 v{t+4}, v{BL}, v{BL+2}, v{BL+4}
        v_max3_u32 v{t+5}, v{BL+6}, v{BL+8}, v{BL+10}
        s_waitcnt lgkmcnt(0)
        v_max3_u32 v{t+4}, v{BL+12}, v{BL+14}, v{t+4}
        v_max3_u32 v{t+5}, v{BL+16}, v{BL+18}, v{t+5}
        v_max_u32 v{t+4}, v{t+4}, v{t+5}
        v_cmp_eq_u32 vcc, -1, v{t+4}
        s_nop 0
        s_cbranch_vccz L_glok""")
        spin(C,lp,"L_glok")
        p(f"s_branch {lp}")
    p("L_top:")
    STAMP('top')
    p(f"""v_bfe_u32 v{TOK}, v{R}, 3, 11
    v_sub_u32 v{TOK}, 2047, v{TOK}
    v_lshrrev_b32 v{t}, 6, v{TOK}
    v_and_b32 v{aR}, 7, v{R}
    v_lshl_add_u32 v{aR}, v{t}, 3, v{aR}
    v_mul_u32_u24 v{aR}, 2560, v{aR}
    v_lshrrev_b32 v{t}, 4, v0
    v_readlane_b32 s{sTHR}, v{R}, 7
    {"" if CFG['ldma'] else f"s_cmp_ge_u32 s{sMI}, 12"}
    {"s_branch" if CFG['ldma'] else "s_cbranch_scc1"} L_down""")
    if not CFG['ldma']: l_old(t,A,B,C,BL,aR,sKQ,sTHR,XM)
    else: p("L_glok:")
    STAMP('lr'); COUNT('nlr',C,SPIN)
    SP=CFG['asp'] and CFG['ldma']
    if CFG['xm'] and not SP: p("s_mov_b64 exec, -1")
    G=20; U=24; X=28
    for s_ in range(0 if SP else 5):
        for m_,a_ in ((0,G),(1,U)):
            p(f"v_mfma_f32_16x16x32_bf16 {vr(a_,4)}, {vr(AW+8*s_+4*m_,4)}, {vr(BL+4*s_,4)}, {vr(a_,4) if s_ else 0}")
    w0=p.lab("guw0")
    def hint(sa,va,wv=None):
        sk=p.lab("nohint")
        if wv is not None: p(f"s_cmp_lg_u32 s{sWAVE}, {wv}\ns_cbranch_scc1 {sk}")
        p(f"""s_lshl_b32 s{sa}, s{sG}, 5
        s_add_u32 s{sa}, s{sa}, s{sMI}
        s_lshl_b32 s{sa}, s{sa}, 2
        s_add_u32 s{sa}, s{sa}, {AH}
        v_mov_b32 v{va}, 0
        v_mov_b32 v{va+1}, s{sTAG}
        s_mov_b64 exec, 1""")
        dual([f"buffer_store_dword v{va+1}, v{va}, {S4(sWS)}, s{sa} offen"])
        p(f"s_mov_b64 exec, -1\n{sk}:")
    p(f"""s_cmp_eq_u32 s{sWAVE}, 0
    s_cbranch_scc1 {w0}
    {"" if SP else "s_nop 5"}
    ds_write_b128 v{t+3}, {vr(G,4)}
    ds_write_b128 v{t+3}, {vr(U,4)} offset:1024""")
    if CFG['ahp']==4: hint(B,60,2)
    p("s_waitcnt lgkmcnt(0)\ns_barrier")
    if CFG['ahp']==3: hint(B,60,2)
    if CFG['ldma']:
        nt=p.lab("noth")
        p(f"""s_xor_b32 s{B}, s{sWAVE}, 1
        s_or_b32 s{B}, s{sMI}, s{B}
        s_cbranch_scc1 {nt}
        v_mov_b32 v{t+4}, s{sTHR}
        v_mov_b32 v{t+5}, s{sTAG}
        s_lshl_b32 s{B}, s{sG}, 7
        s_add_u32 s{B}, s{B}, {TH}
        v_mov_b32 v{t+6}, 0
        s_mov_b64 exec, 1
        buffer_store_dwordx2 v[{t+4}:{t+5}], v{t+6}, {S4(sWS)}, s{B} offen sc1
        s_mov_b64 exec, -1
        {nt}:""")
    if CFG['ob2']: p("s_barrier")
    deferred('g1')
    END()
    p(f"""{w0}:
    s_mul_i32 s{A}, s{sG}, 12
    s_add_u32 s{A}, s{A}, s{sMI}
    s_lshl_b32 s{A}, s{A}, 8
    s_add_u32 s{A}, s{A}, {ACT}
    v_and_b32 v{t+4}, 7, v0
    v_lshlrev_b32 v{t+4}, 4, v{t+4}
    v_lshrrev_b32 v{t+5}, 5, v0
    v_lshl_add_u32 v{t+4}, v{t+5}, 7, v{t+4}
    v_bfe_u32 v{t+5}, v0, 4, 1
    v_lshl_add_u32 v{t+4}, v{t+5}, 3, v{t+4}
    s_barrier""")
    STAMP('gb')
    for w_ in range(1,4):
        for m_ in range(2): p(f"ds_read_b128 {vr(X+8*(w_-1)+4*m_,4)}, v{t+3} offset:{w_*2048+m_*1024}")
    p(f"s_mov_b32 s{B}, {hex(f2u(-math.log2(math.e)))}")
    for w_ in range(3):
        p(f"s_waitcnt lgkmcnt({4-2*w_})")
        for k in range(4): p(f"v_pk_add_f32 {vr(G+2*k,2)}, {vr(G+2*k,2)}, {vr(X+8*w_+2*k,2)}")
    p(f"""v_cvt_pk_bf16_f32 v{X}, v{G}, v{G+1}
    v_cvt_pk_bf16_f32 v{X+1}, v{G+2}, v{G+3}
    v_cvt_pk_bf16_f32 v{X+2}, v{U}, v{U+1}
    v_cvt_pk_bf16_f32 v{X+3}, v{U+2}, v{U+3}""")
    for k in range(4): p(f"v_lshlrev_b32 v{G+2*k}, 16, v{X+k}\nv_and_b32 v{G+2*k+1}, 0xffff0000, v{X+k}")
    for k in range(4): p(f"v_mul_f32 v{X+k}, s{B}, v{G+k}")
    for k in range(4): p(f"v_exp_f32 v{X+k}, v{X+k}")
    if CFG['ahp']==2: hint(B,60)
    for k in range(4): p(f"v_add_f32 v{X+k}, 1.0, v{X+k}")
    for k in range(4): p(f"v_rcp_f32 v{X+k}, v{X+k}")
    for k in range(4): p(f"v_mul_f32 v{G+k}, v{G+k}, v{X+k}")
    if CFG['ahp']==1: hint(B,60)
    p(f"v_cvt_pk_bf16_f32 v{X}, v{G}, v{G+1}\nv_cvt_pk_bf16_f32 v{X+1}, v{G+2}, v{G+3}")
    for k in range(2): p(f"v_lshlrev_b32 v{G+2*k}, 16, v{X+k}\nv_and_b32 v{G+2*k+1}, 0xffff0000, v{X+k}")
    p(f"""v_pk_mul_f32 {vr(G,2)}, {vr(G,2)}, {vr(U,2)}
    v_pk_mul_f32 {vr(G+2,2)}, {vr(G+2,2)}, {vr(U+2,2)}
    v_cvt_pk_bf16_f32 v{X}, v{G}, v{G+1}
    v_cvt_pk_bf16_f32 v{X+1}, v{G+2}, v{G+3}
    s_mov_b32 exec_lo, 0x00ff00ff
    s_mov_b32 exec_hi, 0x00ff00ff
    buffer_store_dwordx2 {vr(X,2)}, v{t+4}, {S4(sWS)}, s{A} offen sc1""")
    if CFG['ahint'] and CFG['ahp']==0:
        p(f"""s_lshl_b32 s{A}, s{sG}, 5
        s_add_u32 s{A}, s{A}, s{sMI}
        s_lshl_b32 s{A}, s{A}, 2
        s_add_u32 s{A}, s{A}, {AH}
        v_mov_b32 v{t+4}, 0
        v_mov_b32 v{t+5}, s{sTAG}
        s_mov_b64 exec, 1""")
        dual([f"buffer_store_dword v{t+5}, v{t+4}, {S4(sWS)}, s{A} offen"])
    p("s_mov_b64 exec, -1")
    STAMP('act')
    if CFG['ob2']: p("s_barrier")
    deferred('g0')
    END()
    HL=20; Y=24; X=28; SG=t+8; aO2=t+9
    p(f"""L_down:
    v_lshl_add_u32 v{aR}, v{t}, 3, v{aR}
    v_mul_u32_u24 v{aO2}, 1280, v{TOK}
    v_lshl_add_u32 v{aO2}, v{t}, 3, v{aO2}
    v_and_b32 v{t+4}, 7, v0
    v_lshlrev_b32 v{t+4}, 4, v{t+4}
    v_lshl_add_u32 v{t+4}, v{t}, 7, v{t+4}
    {f"v_bfe_u32 v{t+5}, v0, 3, 1" if CFG['a2'] else ""}
    {f"v_lshl_add_u32 v{t+4}, v{t+5}, 9, v{t+4}" if CFG['a2'] else ""}
    s_mul_i32 s{sT+1}, s{sG}, 5
    s_add_u32 s{sT+1}, s{sT+1}, s{sMI}
    s_sub_u32 s{sT+1}, s{sT+1}, 12
    s_lshl_b32 s{sT+1}, s{sT+1}, 5
    s_add_u32 s{sT+2}, s{sT+1}, {CAND}
    s_mul_i32 s{A}, s{sKQ}, 6144
    s_add_u32 s{A}, s{A}, {ACT}
    s_add_u32 s{B}, s{A}, 4096""")
    ldh=f"buffer_load_dwordx2 {vr(HL,2)}, v{aR}, {S4(sWS)}, s{sT+2} offen sc1\nbuffer_load_dwordx2 {vr(HL+2,2)}, v{aR}, {S4(sWS)}, s{sT+2} offen offset:1280 sc1"
    if CFG['hll']: p(f"s_cmp_lg_u32 s{sWAVE}, 0\ns_cbranch_scc1 L_nohl\n{XM}\n{ldh}\ns_mov_b64 exec, -1\nL_nohl:")
    else: p(ldh)
    deferred('d')
    p(f"""v_ashrrev_i32 v{SG}, 31, v{R}
    v_not_b32 v{SG}, v{SG}
    v_or_b32 v{SG}, 0x80000000, v{SG}
    v_xor_b32 v{SG}, v{SG}, v{R}
    v_and_b32 v{SG}, 0xffff0000, v{SG}
    v_mul_f32 v{SG}, {hex(f2u(-math.log2(math.e)))}, v{SG}
    v_exp_f32 v{SG}, v{SG}
    s_lshl_b32 s{C}, s{sWAVE}, 10
    v_add_f32 v{SG}, 1.0, v{SG}
    v_rcp_f32 v{SG}, v{SG}
    s_add_u32 s{C}, s{C}, {L_RED}
    v_lshl_add_u32 v{t+3}, v0, 4, s{C}""")
    bf16r(SG,SG)
    lp=p.lab("hl"); ok=p.lab("hlok"); md=p.lab("hlm")
    if not CFG['hll']: p(f"""s_mov_b32 s{C}, {SPIN}
    s_branch {md}
    {lp}:
    {ldh}
    {md}:
    s_waitcnt vmcnt(0)
    v_max_u32 v{t+5}, v{HL}, v{HL+2}
    v_cmp_eq_u32 vcc, -1, v{t+5}
    s_nop 0
    {'s_branch' if CFG['xp'] else 's_cbranch_vccz'} {ok}""")
    if not CFG['hll']:
        spin(C,lp,ok)
        p(f"s_branch {lp}\n{ok}:")
    getw()
    ld="\n".join([f"buffer_load_dwordx4 {vr(BL+4*i,4)}, v{t+4}, {S4(sWS)}, s{A if i<8 else B} offen offset:{(i%8)*512} sc1" for i in range(12)])
    if CFG['ahint']:
        p(f"""v_min_u32 v{t+6}, {CFG['ahint']-1}, v0
        v_lshlrev_b32 v{t+6}, 2, v{t+6}
        s_lshl_b32 s{sT+4}, s{sG}, 7
        s_add_u32 s{sT+4}, s{sT+4}, {AH}""")
        flag_poll(t+6,t+5,sT+4,C)
        STAMP('ah')
    lp=p.lab("al"); ok=p.lab("alok")
    if CFG['a2']:
        Y2=BL+24
        ld="\n".join([f"buffer_load_dwordx4 {vr(BL+4*i,4)}, v{t+4}, {S4(sWS)}, s{A if i<4 else B} offen offset:{(i%4)*1024} sc1" for i in range(6)])
        if CFG['asp']:
            p(f"s_mov_b32 s{C}, {SPIN}\n{lp}:\n{ld}\ns_waitcnt lgkmcnt(0)")
            for i in range(6):
                p(f"s_waitcnt vmcnt({5-i})")
                for s_ in (2*i,2*i+1):
                    y=(Y,Y2)[s_&1]
                    p(f"v_mfma_f32_16x16x32_bf16 {vr(y,4)}, {vr(AW+4*s_,4)}, {vr(BL+4*(s_>>1),4)}, {vr(y,4) if s_>1 else 0}")
                    if s_&1==0: p(f"v_max3_u32 v{t+5}, v{BL+4*i}, v{BL+4*i+2}, {'v%d'%(t+5) if i else 0}")
            p(f"""v_cmp_eq_u32 vcc, -1, v{t+5}
            s_nop 0
            s_cbranch_vccz {ok}""")
            spin(C,lp,ok,CFG['acsl'])
            p(f"s_branch {lp}\n{ok}:")
            STAMP('ar'); COUNT('nar',C,SPIN)
            p("s_nop 4")
        else: p(f"""s_mov_b32 s{C}, {SPIN}
        {lp}:
        {ld}
        s_waitcnt vmcnt(3)
        v_max3_u32 v{t+5}, v{BL}, v{BL+2}, v{BL+4}
        v_max3_u32 v{t+6}, v{BL+6}, v{BL+8}, v{BL+10}
        s_waitcnt vmcnt(0)
        v_max3_u32 v{t+5}, v{BL+12}, v{BL+14}, v{t+5}
        v_max3_u32 v{t+6}, v{BL+16}, v{BL+18}, v{t+6}
        v_max3_u32 v{t+5}, v{BL+20}, v{BL+22}, v{t+5}
        v_max_u32 v{t+5}, v{t+5}, v{t+6}
        v_cmp_eq_u32 vcc, -1, v{t+5}
        s_waitcnt lgkmcnt(0)
        s_cbranch_vccz {ok}""")
        if not CFG['asp']:
            spin(C,lp,ok,CFG['acsl'])
            p(f"s_branch {lp}\n{ok}:")
            STAMP('ar'); COUNT('nar',C,SPIN)
            for s_ in range(12):
                y=(Y,Y2)[s_&1]
                p(f"v_mfma_f32_16x16x32_bf16 {vr(y,4)}, {vr(AW+4*s_,4)}, {vr(BL+4*(s_>>1),4)}, {vr(y,4) if s_>1 else 0}")
            p("s_nop 7")
        for k in range(4): p(f"v_add_f32_dpp v{Y+k}, v{Y2+k}, v{Y+k} row_ror:8 row_mask:0xf bank_mask:0xf")
    else: act_old(t,A,B,C,BL,AW,Y,XM,ld,lp,ok)
    w0=p.lab("dnw0")
    p(f"""s_cmp_eq_u32 s{sWAVE}, 0
    s_cbranch_scc1 {w0}
    {"" if CFG['a2'] else "s_nop 5"}
    ds_write_b128 v{t+3}, {vr(Y,4)}
    s_waitcnt lgkmcnt(0)
    s_barrier""")
    END()
    p(f"{w0}:")
    if CFG['hll']:
        p(f"""{XM}
        v_max_u32 v{t+5}, v{HL}, v{HL+2}
        v_cmp_eq_u32 vcc, -1, v{t+5}
        s_mov_b32 s{C}, {SPIN}
        s_cbranch_vccnz L_hlw
        L_hlr:
        s_mov_b64 exec, -1""")
        COLD.append(f"""L_hlw:
        s_sub_u32 s{C}, s{C}, 1
        s_cbranch_scc1 L_hlr
        {ldh}
        s_waitcnt vmcnt(0)
        v_max_u32 v{t+5}, v{HL}, v{HL+2}
        v_cmp_eq_u32 vcc, -1, v{t+5}
        s_nop 0
        s_cbranch_vccnz L_hlw
        s_branch L_hlr""")
    p(f"""v_lshlrev_b32 v{X+12}, 16, v{HL}
    v_and_b32 v{X+13}, 0xffff0000, v{HL}
    v_lshlrev_b32 v{X+14}, 16, v{HL+1}
    v_and_b32 v{X+15}, 0xffff0000, v{HL+1}
    v_lshlrev_b32 v{X+16}, 16, v{HL+2}
    v_and_b32 v{X+17}, 0xffff0000, v{HL+2}
    v_lshlrev_b32 v{X+18}, 16, v{HL+3}
    v_and_b32 v{X+19}, 0xffff0000, v{HL+3}
    s_barrier""")
    STAMP('db')
    for w_ in range(1,4): p(f"ds_read_b128 {vr(X+4*(w_-1),4)}, v{t+3} offset:{w_*1024}")
    for w_ in range(3):
        p(f"s_waitcnt lgkmcnt({2-w_})")
        for k in range(2): p(f"v_pk_add_f32 {vr(Y+2*k,2)}, {vr(Y+2*k,2)}, {vr(X+4*w_+2*k,2)}")
    def rnd():
        p(f"v_cvt_pk_bf16_f32 v{X}, v{Y}, v{Y+1}\nv_cvt_pk_bf16_f32 v{X+1}, v{Y+2}, v{Y+3}")
    def unp():
        for k in range(2): p(f"v_lshlrev_b32 v{Y+2*k}, 16, v{X+k}\nv_and_b32 v{Y+2*k+1}, 0xffff0000, v{X+k}")
    rnd(); unp()
    for k in range(4): p(f"v_mul_f32 v{Y+k}, v{SG}, v{Y+k}")
    rnd(); unp()
    for k in range(2): p(f"v_pk_add_f32 {vr(Y+2*k,2)}, {vr(Y+2*k,2)}, {vr(X+12+2*k,2)}")
    rnd(); unp()
    for k in range(2): p(f"v_pk_add_f32 {vr(Y+2*k,2)}, {vr(Y+2*k,2)}, {vr(X+16+2*k,2)}")
    rnd()
    p(f"""s_mov_b32 exec_lo, 0x00ff00ff
    s_mov_b32 exec_hi, 0x00ff00ff
    buffer_store_dwordx2 {vr(X,2)}, v{aO2}, {S4(sOUT)}, s{sT+1} offen {CFG['fpol']}""")
    STAMP('fin')
    END()
    lp=p.lab("th"); ok=p.lab("thok")
    p("L_plain:")
    if CFG['cpre']:
        sk=p.lab("nocp")
        p(f"""s_sub_u32 s{A}, s{sMI}, {CFG['cpb']}
        s_lshl_b32 s{A}, s{A}, 2
        s_add_u32 s{A}, s{A}, s{sWAVE}
        s_cmp_ge_u32 s{A}, 32
        s_cbranch_scc1 {sk}""")
        if CFG['cpre']==1:
            p(f"s_lshl_b32 s{B}, s{A}, 7\ns_add_u32 s{B}, s{B}, {CA+4}\nv_mov_b32 v{t}, 0")
            flag_poll(t,t+1,B,C,sleep=CFG['cpsl'])
        l2=p.lab("cp"); o2=p.lab("cpok")
        p(f"""s_mul_i32 s{B}, s{A}, 20480
        s_add_u32 s{B}, s{B}, {CAND+36}
        v_lshrrev_b32 v{t}, 5, v0
        v_mul_u32_u24 v{t}, 1280, v{t}
        v_mad_u32_u24 v{t}, v0, 40, v{t}
        s_mov_b32 s{C}, 64
        {l2}:
        buffer_load_dword v{t+1}, v{t}, {S4(sWS)}, s{B} offen sc1
        s_waitcnt vmcnt(0)
        v_cmp_eq_u32 vcc, -1, v{t+1}
        s_nop 0
        s_cbranch_vccz {o2}""")
        spin(C,l2,o2,CFG['cpsl'])
        p(f"s_branch {l2}\n{o2}:")
        STAMP('cp')
        p(f"{sk}:")
    p(f"""s_lshl_b32 s{B}, s{sG}, 7
    s_add_u32 s{B}, s{B}, {TH}
    v_mov_b32 v{t}, 0
    s_mov_b32 s{C}, {SPIN}
    {lp}:
    s_sleep 16
    buffer_load_dwordx2 v[{t+2}:{t+3}], v{t}, {S4(sWS)}, s{B} offen sc1
    s_waitcnt vmcnt(0)
    v_cmp_ne_u32 vcc, s{sTAG}, v{t+3}
    s_nop 0
    s_cbranch_vccz {ok}""")
    spin(C,lp,ok)
    p(f"""s_branch {lp}
    {ok}:
    v_readfirstlane_b32 s{sTHR}, v{t+2}
    s_nop 1""")
    deferred('p')
    STAMP('fin')

def l_old(t,A,B,C,BL,aR,sKQ,sTHR,XM):
    p(f"""v_lshl_add_u32 v{aR}, v{t}, 4, v{aR}
    s_mul_i32 s{A}, s{sKQ}, 320
    s_add_u32 s{A}, s{A}, {CAND}""")
    ld="\n".join(f"buffer_load_dwordx4 {vr(BL+4*i,4)}, v{aR}, {S4(sWS)}, s{A} offen offset:{i*64} sc1" for i in range(5))
    lp=p.lab("gl"); ok=p.lab("glok"); md=p.lab("glm"); nt=p.lab("noth")
    if CFG['xm']: p(XM)
    p(ld)
    p(f"""s_or_b32 s{B}, s{sMI}, s{sWAVE}
    s_cbranch_scc1 {nt}
    v_mov_b32 v{t+4}, s{sTHR}
    v_mov_b32 v{t+5}, s{sTAG}
    s_lshl_b32 s{B}, s{sG}, 7
    s_add_u32 s{B}, s{B}, {TH}
    v_mov_b32 v{t+6}, 0
    s_mov_b64 exec, 1
    buffer_store_dwordx2 v[{t+4}:{t+5}], v{t+6}, {S4(sWS)}, s{B} offen sc1
    {nt}:
    s_mov_b64 exec, -1
    s_lshl_b32 s{B}, s{sWAVE}, 11
    s_add_u32 s{B}, s{B}, {L_RED}
    v_lshl_add_u32 v{t+3}, v0, 4, s{B}
    {XM}
    s_mov_b32 s{C}, {SPIN}
    s_branch {md}
    {lp}:
    {ld}
    {md}:
    s_waitcnt vmcnt(0) lgkmcnt(0)
    v_max3_u32 v{t+4}, v{BL}, v{BL+2}, v{BL+4}
    v_max3_u32 v{t+5}, v{BL+6}, v{BL+8}, v{BL+10}
    v_max3_u32 v{t+4}, v{BL+12}, v{BL+14}, v{t+4}
    v_max3_u32 v{t+5}, v{BL+16}, v{BL+18}, v{t+5}
    v_max_u32 v{t+4}, v{t+4}, v{t+5}
    v_cmp_eq_u32 vcc, -1, v{t+4}
    s_nop 0
    {'s_branch' if 'nocand' in CFG['xp'] else 's_cbranch_vccz'} {ok}""")
    spin(C,lp,ok)
    p(f"s_branch {lp}\n{ok}:")
def act_old(t,A,B,C,BL,AW,Y,XM,ld,lp,ok):
    p(f"""{XM}
    s_mov_b32 s{C}, {SPIN}
    {lp}:
    {ld}
    s_waitcnt vmcnt(8)
    v_max3_u32 v{t+5}, v{BL}, v{BL+2}, v{BL+4}
    v_max3_u32 v{t+6}, v{BL+6}, v{BL+8}, v{BL+10}
    v_max3_u32 v{t+5}, v{BL+12}, v{BL+14}, v{t+5}""")
    for i in range(4,12):
        if i%4==0: p(f"s_waitcnt vmcnt({8-i})")
        p(f"v_max3_u32 v{t+5+(i&1)}, v{BL+4*i}, v{BL+4*i+2}, v{t+5+(i&1)}")
    p(f"""v_max_u32 v{t+5}, v{t+5}, v{t+6}
    v_cmp_eq_u32 vcc, -1, v{t+5}
    s_waitcnt lgkmcnt(0)
    s_cbranch_vccz {ok}""")
    spin(C,lp,ok,CFG['acsl'])
    p(f"s_branch {lp}\n{ok}:")
    STAMP('ar'); COUNT('nar',C,SPIN)
    if CFG['xm']: p("s_mov_b64 exec, -1")
    for s_ in range(12): p(f"v_mfma_f32_16x16x32_bf16 {vr(Y,4)}, {vr(AW+4*s_,4)}, {vr(BL+4*s_,4)}, {vr(Y,4) if s_ else 0}")

def build():
    prologue()
    steps=loader()
    helperA(steps)
    p("s_branch L_mw")
    helperB(steps)
    p("L_mw:")
    moe_weights()
    END()
    if CFG['lay']: p(PG)
    p("L_comp:")
    if CFG['prio']: p(f"s_setprio {CFG['prio']}")
    p("s_waitcnt lgkmcnt(0)")
    STAMP('start')
    prologue2(1)
    if CFG['cpf']: code_pf()
    if CFG['cpa']==2: cp_rest(sT+18); p("s_mov_b64 exec, -1")
    if CFG['tlb']==1:
        for k in range(12):
            p(f"s_mov_b32 s{sT+18}, {k*0x200000+0x1000}\ns_load_dword s100, s[{sWS}:{sWS+1}], s{sT+18}")
    if CFG['tlb']==2:
        p(f"v_lshlrev_b32 v228, 19, v0\nv_min_u32 v228, 0x1780000, v228\nbuffer_load_dword v229, v228, {S4(sWS)}, 0 offen")
    srd(((sX,2621440),))
    if CFG['hclr']: assert CFG['clr']==0; CFG['clate']=9
    if CFG['clr']==0 and CFG['clate']==0: clears(0); clears(1)
    STAMP('c1')
    att_setup()
    STAMP('c2')
    if CFG['clr']==0 and CFG['clate']==1: clears(0); clears(1)
    gemm_setup()
    STAMP('c3')
    if CFG['clr']: clears(0)
    if CFG['clr']==0 and CFG['clate']==2: clears(0); clears(1)
    STAMP('c4')
    p("s_waitcnt lgkmcnt(0)")
    STAMP('c5')
    mktag()
    p(f"""    s_cmp_eq_u32 s{sLC}, 15
    s_cbranch_scc1 L_gS
    s_cmp_eq_u32 s{sTY}, 2
    s_cbranch_scc1 L_gV""")
    if CFG['lay']:
        p("s_branch L_gT")
        n0=len(p.L)
        p(PG)
        if CFG['pade']: p("L_padT:\ns_branch L_comp")
        p("L_gT:"); gemm_loop('T'); gemm_epi('T'); p("s_branch L_att")
        n1=len(p.L)
        p("L_gS:"); idle_gemm(); p("s_branch L_att")
        COLD.insert(0,"\n".join(p.L[n1:])); del p.L[n1:]
        if CFG['pade']: p("L_padV:\ns_branch L_comp")
        p("L_gV:"); gemm_loop('V'); gemm_epi('V'); p("s_branch L_att")
        G_=p.L[n0:]; del p.L[n0:]
        p("L_att:")
        att_go()
        p.L+=G_
    else:
        gemm_loop('T'); gemm_epi('T'); p("s_branch L_att")
        p("L_gS:"); idle_gemm(); p("s_branch L_att")
        p("L_gV:"); gemm_loop('V'); gemm_epi('V')
        p("L_att:")
        att_go()
    for w in range(4): att_variant(w)
    att_fin()
    wo_main()
    if CFG['stop']<=3:
        p(f"s_and_b64 exec, s[{sCAND}:{sCAND+1}], -1\ns_cbranch_scc0 L_noo2"); out_store(); p("L_noo2:")
    else: moe()
    END()
    att_cold()
    SL={3:('L_og0:','L_og1:','L_og3:'),2:('L_og5:','L_og7:'),1:('L_wo2w:','L_ldw:','L_hlw:')} if CFG['cslot'] and CFG['lay'] else {}
    for w in range(4):
        i=p.L.index(f";@slot{w}"); mv=[c for c in COLD if c.strip().startswith(SL.get(w,('-',)))]
        q=P()
        for c in mv: q(c); COLD.remove(c)
        p.L[i:i+1]=q.L
    for c in COLD: p(c)
    p("L_exit:\ns_endpgm")
build()
errs=check(p.L)
hdr=f"""; generated by work/k/gen.py (own generator script)
; @launch grid=(256,1,1) block=(512,1,1) lds=163840
.amdgcn_target "amdgcn-amd-amdhsa--gfx950"
.text
.globl {NAME}_kernel
{".p2align 12" if CFG['pal'] else ""}
{f".fill {(CFG['pal']-1)*64}, 4, 0xbf810000" if CFG['pal']>1 else ""}
.p2align 8
.type {NAME}_kernel,@function
{NAME}_kernel:
"""
ftr=f""".section .rodata,"a"
.p2align 6
.amdhsa_kernel {NAME}_kernel
  .amdhsa_next_free_vgpr 256
  .amdhsa_next_free_sgpr 102
  .amdhsa_accum_offset 256
  .amdhsa_group_segment_fixed_size 0
  .amdhsa_kernarg_size 88
  .amdhsa_user_sgpr_count 2
  .amdhsa_user_sgpr_kernarg_segment_ptr 1
  .amdhsa_system_sgpr_workgroup_id_x 1
.end_amdhsa_kernel
"""
import align8
def fmt(L):
    q=P(); q.L=L; return q.text()
if CFG['al8']: print("align8",align8.align(p.L,hdr,ftr,fmt,sys.argv[1]+".tmp.s",CFG['al8']))
if CFG.get('alst'): print(align8.stat(p.L,hdr,ftr,fmt,sys.argv[1]+".tmp.s"))
open(sys.argv[1],"w").write(hdr+p.text()+ftr)

import subprocess
r=subprocess.run(["clang","-x","assembler","-target","amdgcn-amd-amdhsa","-mcpu=gfx950",sys.argv[1],"-o",sys.argv[1]+".co"],capture_output=True,text=True)
if r.returncode: print(r.stderr[:3000]); sys.exit(1)
r=subprocess.run(["python3","cdna_unwritten_srd_check.py",sys.argv[1]+".co"],capture_output=True,text=True)
if r.returncode: print("SRDCHECK:",r.stdout[-3000:],r.stderr[-1000:])
r=subprocess.run("llvm-size -A "+sys.argv[1]+".co | grep text",shell=True,capture_output=True,text=True); print(r.stdout.strip())
if errs:
    import os; os.remove(sys.argv[1]); sys.exit(1)
```

```python
import sys, math
from asmlib import *
NAME="sequential_preLN__sliding_block__moe_arch_mod__prompt"
CFG=dict(lclr=0, lcu=3, lcs=8, lcg='G2', htop=0, cae=0, jb=1, cslot=1, pks=4, lay=1, padk=0, pade=0, cpa=1, cpe=8, epf=1, b1p=0, pal=1, ahp=0, fpol='sc1', xdma=1, prm=25, ob2=0, psq=1, ldma=1, asp=1, a2=1, cpre=0, cpsl=2, cpb=17, hsl2=2, ogate=4, honly=0, hsp=0, wpause=0, hdef=-1, hdg='FS', xru=17, xrd=0, ahint=12, ptc='', chint=0, dtn=1, hll=1, xm=1, kqr=0, dasl=0, dth=0, odf=0, mrm=1, g2nd=('O1',10), smx=2, smd=0, hst=0, wgf='M', shf=1, gm='no', gr='G1', tlb=0, rld=0, al8=0, ldp='sc1', ldo='sc1', wsp=1, wla2=7, ogr2=(1,2,2,2,3), orem2=(6,1), wwe2=2, smw=(), smo=(3,6), mtr=(0,10), mth=0, wburst=0, mtg='RL', wts=99, wsplit=1, wnoa=0, hclr=0, cst=(3,3), hsent=0, hkv=0, hgate='G1', hrs=0, osent=1, ogr=(2,3,5,2,3,5), opoll='half', osl=(0,0), oini=10, orem=25, clate=1, oprb=0, odn=1, hstep=6, qpol='', apol='', cpol='', wb=(), wbs=31, ht=0, hpoll=0, hsl=1, wog2=0, hearly=0, stg=6, stb=0, ord='xw,xw,xw,xw,xw,xw,xw,xw,xw,xw', amp=None, wose=2, late1=1, sdef=(1,1,1,1), pt2=8, qpair2=0, nacc=8, sfirst=1, prio=0, smode='dot', sfill=(), acsl=0, casl=0, xp=(), dw3=0, wla=7, wwe=2, dgate='PS', dstart='O1', gstart='WE', mdep=10, ddep=12, qpair=0, mpair=0, wpair=0, xnt=0, wnt=0, tpol2='', wtw='no', mtw='w3', wothr1=6, mb=(6,6), mg=('WOD','PR','PR','O1'), mpf=0, mgate='b3', hsplit=0, cpf=0, npf=(0,)*10, wogs=5, clr=0, wot=(), wtpol='', seqs=None, xpol='nt', wpol='', tpol='', wopol='', mpol='', cal=None, opol='', st=['start','b0|hb0','gend|hb9','E1|hE1','st|halo|clr','fl|g2|wo','fseen|h2','kv','aend','ost'], pt=8, wothr=12, wogate=1, h2sl=1, noh2=0, nowo=0, wos=(0,0,0), sched=(1,2,1,1,1,1,1,0,0,0), dbg=0, stop=99, prof=0, rot=('0055','36094758','05162738'), force_slow=0, noclr=0, pre=2, ldst=0, nomfma=0, nohello=0)
for a in sys.argv[2:]:
    k,v=a.split("="); CFG[k]=eval(v)
QB,KB,VB,KH,VH,OB=[i*0x280000 for i in range(6)]
CAND=0xF00000
PS=0xFA0000
CA=0xFE0000
ACT=0xFE1000
HB=0x1000000
PROF=0x1300000
H1=0x1280000; H2=0x1281000; EPO=0x1282000; TH=0x1283000; AH=0x1284000; CH_=0x1285000; H2B=0x1288000
STP=0x1680000; STX=0x1780000
FO=0x1700000; OB2=0x1400000; FL=0x12A0000; FH=0x1740000
L_STG=0; L_KV=10240; L_WO=55296; L_MISC=157696; L_MW=0
L_CS=L_MISC
L_SA=L_MISC+512
L_SR=L_SA+1024
L_MODE=L_SR+512
L_FLG=L_MODE+64
F_G1,F_G2,F_H2,F_STG,F_SCP,F_DONE,F_WOR,F_MW=[L_FLG+4*i for i in (0,1,2,4,8,9,10,12)]
L_SWS=L_FLG+80; F_O1=L_FLG+44; F_WOD=L_FLG+64; F_PR=L_FLG+68; F_WO2=L_FLG+72; F_PS=L_FLG+76; F_FS=L_FLG+84; F_LD=L_FLG+88; F_X=L_FLG+96; F_M=L_FLG+112; F_HR=L_FLG+120; F_RI=L_FLG+124; F_OWN=L_FLG+92
F_CC=L_FLG+12; ND=5 if CFG['lclr'] else 4
L_KEYS=L_FLG+128
L_CA=L_KEYS+256; L_TOP=L_CA+64
L_RED=L_WO
sX,sW,sWO,sWG,sWU,sWD,sOUT,sWS,sDBG,sWR=[4+4*i for i in range(10)]
sWAVE,sG,sSLOT,sRQ,sHH,sRB,sCT,sMODE,sEP,sTAG=range(44,54)
sT=54
sMI=39
sBK=3
sLO=76
sPROF=80
p=P()
COLD=[]
CALI=lambda: 's_memtime' if CFG['cal'][1]>20000 else 's_memrealtime'
def STAMP(name,w=0):
    if CFG['amp']:
        a=CFG['amp']
        if name=='entry': p(f"s_memrealtime s[{sPROF+8}:{sPROF+9}]")
        for k in (0,1):
            if name==a[k]:
                p(f"{'s_memrealtime' if a[2]=='r' else 's_memtime'} s[{sPROF+2*k}:{sPROF+2*k+1}]")
                if w: p("s_waitcnt lgkmcnt(0)")
    if CFG['cal'] and name in CFG['cal'][0].split('|'):
        p(f"{CALI()} s[{sPROF}:{sPROF+1}]")
        if w: p("s_waitcnt lgkmcnt(0)")
    i=[k for k,n in enumerate(CFG['st']) if name in n.split('|')]
    if CFG['prof'] and i:
        i=i[0]
        p(f"{'s_memrealtime' if CFG['prof']==2 else 's_memtime'} s[{sPROF+2*i}:{sPROF+2*i+1}]")
        if w: p("s_waitcnt lgkmcnt(0)")
def COUNT(name,cnt,full):
    i=[k for k,n in enumerate(CFG['st']) if name in n.split('|')]
    if CFG['prof'] and i:
        r=sPROF+2*i[0]
        p(f"s_waitcnt lgkmcnt(0)\ns_sub_u32 s{r}, {full}, s{cnt}\ns_mul_i32 s{r}, s{r}, 100\ns_add_u32 s{r}, s{r}, s{sPROF}")
def PROFDUMP():
    if not CFG['prof']: return
    p("s_waitcnt vmcnt(0) lgkmcnt(0)")
    p("s_mov_b64 exec, -1")
    for i in range(10): p(f"v_mov_b32 v{2+i}, s{sPROF+2*i}")
    p(f"""s_lshl_b32 s{sT}, s2, 3
    s_add_u32 s{sT}, s{sT}, s{sWAVE}
    s_lshl_b32 s{sT}, s{sT}, 6
    s_add_u32 s{sT}, s{sT}, {PROF}
    v_mov_b32 v1, 0
    s_mov_b64 exec, 1
    buffer_store_dwordx4 v[2:5], v1, s[{sWS}:{sWS+3}], s{sT} offen
    buffer_store_dwordx4 v[6:9], v1, s[{sWS}:{sWS+3}], s{sT} offen offset:16
    s_getpc_b64 s[{sT+2}:{sT+3}]
    v_mov_b32 v12, s{sT+2}
    v_mov_b32 v13, s{sT+3}
    buffer_store_dwordx4 v[10:13], v1, s[{sWS}:{sWS+3}], s{sT} offen offset:32""")
def END():
    PROFDUMP()
    if CFG['amp']:
        a=CFG['amp']
        lp=p.lab("amp"); ok=p.lab("ampok")
        p(f"""s_waitcnt vmcnt(0) lgkmcnt(0)
        s_cmp_eq_u32 s{sPROF+2}, 0
        s_cbranch_scc1 {ok}
        s_cmp_lg_u32 s{sWAVE}, {a[5] if len(a)>5 else 0}
        s_cbranch_scc1 {ok}""")
        if a[4]>=0: p(f"s_cmp_lg_u32 s2, {a[4]}\ns_cbranch_scc1 {ok}")
        p(f"""s_sub_u32 s{sPROF+6}, s{sPROF+2}, s{sPROF}
        s_mul_i32 s{sPROF+6}, s{sPROF+6}, {a[3]}
        s_lshr_b32 s{sPROF+6}, s{sPROF+6}, 4
        s_min_u32 s{sPROF+6}, s{sPROF+6}, 100000
        s_add_u32 s{sPROF+6}, s{sPROF+6}, 3000
        s_mov_b32 s{sPROF+4}, 100000
        {lp}:
        s_sleep 2
        s_memrealtime s[{sPROF+2}:{sPROF+3}]
        s_sub_u32 s{sPROF+4}, s{sPROF+4}, 1
        s_cbranch_scc1 {ok}
        s_waitcnt lgkmcnt(0)
        s_sub_u32 s{sPROF+2}, s{sPROF+2}, s{sPROF+8}
        s_cmp_lt_u32 s{sPROF+2}, s{sPROF+6}
        s_cbranch_scc1 {lp}
        {ok}:""")
    if CFG['cal']:
        lp=p.lab("cal"); ok=p.lab("calok")
        p(f"""s_waitcnt vmcnt(0) lgkmcnt(0)
        s_cmp_eq_u32 s{sPROF}, 0
        s_cbranch_scc1 {ok}
        s_cmp_ge_u32 s{sWAVE}, 4
        s_cbranch_scc1 {ok}
        s_mov_b32 s{sPROF+4}, 100000
        {lp}:
        s_sleep 2
        {CALI()} s[{sPROF+2}:{sPROF+3}]
        s_sub_u32 s{sPROF+4}, s{sPROF+4}, 1
        s_cbranch_scc1 {ok}
        s_waitcnt lgkmcnt(0)
        s_sub_u32 s{sPROF+2}, s{sPROF+2}, s{sPROF}
        s_cmp_lt_u32 s{sPROF+2}, {CFG['cal'][1]}
        s_cbranch_scc1 {lp}
        {ok}:""")
    p("s_endpgm")
S4=lambda r:f"s[{r}:{r+3}]"
SPIN=1<<18

def srd(lst):
    for r,n in lst: p(f"s_mov_b32 s{r+2}, {n}\ns_mov_b32 s{r+3}, 0x20000")
def prologue():
    STAMP('entry')
    p(f"""s_cmp_ge_u32 s2, 256
    s_cbranch_scc1 L_exit
    s_load_dwordx2 s[{sX}:{sX+1}], s[0:1], 0
    s_load_dwordx2 s[{sW}:{sW+1}], s[0:1], 8
    s_load_dwordx2 s[{sWS}:{sWS+1}], s[0:1], 80
    v_lshrrev_b32 v1, 6, v0
    v_and_b32 v0, 63, v0
    v_readfirstlane_b32 s{sWAVE}, v1
    s_and_b32 s{sG}, s2, 7
    s_lshr_b32 s{sSLOT}, s2, 3
    s_lshr_b32 s{sRQ}, s{sG}, 1
    s_and_b32 s{sHH}, s{sG}, 1
    s_and_b32 s{sRB}, s{sSLOT}, 3
    s_lshr_b32 s{sCT}, s{sSLOT}, 2
    s_lshl_b32 s{sBK}, s{sRQ}, 2
    s_add_u32 s{sBK}, s{sBK}, s{sRB}
    s_cmp_gt_u32 s{sCT}, 2
    s_subb_u32 s{sBK}, s{sBK}, 0
    s_and_b32 s{sBK}, s{sBK}, 15""")
    if CFG['cal']: p(f"s_mov_b32 s{sPROF}, 0")
    if CFG['amp']: p(f"s_mov_b32 s{sPROF+2}, 0")
    if CFG['prof']:
        for i in range(1,10): p(f"s_mov_b32 s{sPROF+2*i}, 0")
    if not CFG['cpe']:
        p(f"""s_cmp_lt_u32 s{sWAVE}, 4
        s_cbranch_scc1 L_comp""")
        return
    A=sT+18; K=NAME+"_kernel"
    n=CFG['cpe']
    reg=[f"({K}+0x400-L_pc0)",f"(L_comp-L_pc0)",f"(L_comp+0x1000-L_pc0)",f"({K}+0x1400-L_pc0)"]
    lit="|".join(f"((({r}>>8)&0xff)<<{8*i})" for i,r in enumerate(reg))
    p(f"""s_cmp_lt_u32 s{sWAVE}, 4
    s_cbranch_scc0 L_help
    s_getpc_b64 s[{A}:{A+1}]
    L_pc0:
    s_lshl_b32 s{A+2}, s{sWAVE}, 3
    s_lshr_b32 s{A+2}, {lit}, s{A+2}
    s_and_b32 s{A+2}, s{A+2}, 0xff
    s_and_b32 s{A+3}, s{sSLOT}, {32//n-1}
    s_lshl_b32 s{A+2}, s{A+2}, 8
    s_mul_i32 s{A+3}, s{A+3}, {n*128}
    s_and_b32 s{A}, s{A}, 0xffffff80
    s_add_u32 s{A+2}, s{A+2}, s{A+3}
    v_lshl_add_u32 v1, v0, 7, s{A+2}
    s_mov_b64 exec, {hex((1<<n)-1)}
    global_load_dwordx2 v[228:229], v1, s[{A}:{A+1}] offset:60""")
    if CFG['cpa']==1: cp_rest(A)
    p("s_mov_b64 exec, -1")
    if CFG['lay'] and CFG['pade']: p(f"""s_cmp_eq_u32 s{sWAVE}, 3
    s_cbranch_scc1 L_padT
    s_cmp_eq_u32 s{sWAVE}, 2
    s_cbranch_scc1 L_padV""")
    p(f"""s_branch L_comp
    L_help:""")
def cp_rest(A):
    p(f"""s_lshl_b32 s{A+2}, s{sSLOT}, 2
    s_add_u32 s{A+2}, s{A+2}, s{sWAVE}
    s_mul_i32 s{A+2}, s{A+2}, 384
    s_add_u32 s{A+2}, s{A+2}, ({NAME}_kernel+0x2400-L_pc0)&0xffffff00
    s_min_u32 s{A+2}, s{A+2}, (L_exit-L_pc0-384)&0xffffff80
    s_mov_b64 exec, 7
    v_lshl_add_u32 v1, v0, 7, s{A+2}
    global_load_dwordx2 v[194:195], v1, s[{A}:{A+1}] offset:60""")
def prologue2(comp=0):
    if comp:
        p(f"""s_mov_b32 s{sTAG}, {EPO}
        s_load_dword s{sEP}, s[{sWS}:{sWS+1}], s{sTAG}
        s_load_dwordx2 s[{sWR}:{sWR+1}], s[0:1], 32
        s_load_dwordx2 s[{sOUT}:{sOUT+1}], s[0:1], 64""")
        srd(((sWS,268435456),(sWR,1280),(sOUT,2621440)))
        p(f"""s_mov_b32 s{sLO}, -1
        s_mov_b32 s{sLO+1}, 0
        s_mov_b32 s{sLO+2}, 0xfffff
        s_mov_b32 s{sLO+3}, 0xfffff""")
        return
    if not CFG['epf']: p(f"""s_mov_b32 s{sTAG}, {EPO}
    s_load_dword s{sEP}, s[{sWS}:{sWS+1}], s{sTAG}""")
    p(f"""s_load_dwordx2 s[{sWO}:{sWO+1}], s[0:1], 16
    s_load_dwordx2 s[{sWR}:{sWR+1}], s[0:1], 32
    s_load_dwordx2 s[{sWG}:{sWG+1}], s[0:1], 40
    s_load_dwordx2 s[{sWU}:{sWU+1}], s[0:1], 48
    s_load_dwordx2 s[{sWD}:{sWD+1}], s[0:1], 56
    s_load_dwordx2 s[{sOUT}:{sOUT+1}], s[0:1], 64""")
    srd(((sWS,268435456),(sWO,819200),(sWR,1280),(sWG,1966080),(sWU,1966080),(sWD,1966080),(sOUT,2621440)))
    p(f"""s_mov_b32 s{sLO}, -1
    s_mov_b32 s{sLO+1}, 0
    s_mov_b32 s{sLO+2}, 0xfffff
    s_mov_b32 s{sLO+3}, 0xfffff""")
def moe_role():
    A=sT+20
    if not CFG['mrm']: p(f"s_mov_b32 s{sMI}, s{sSLOT}"); return
    p(f"""s_lshr_b32 s{A}, s{sSLOT}, 3
    s_sub_u32 s{sMI}, s{sSLOT}, s{A}
    s_sub_u32 s{sMI}, s{sMI}, 1
    s_add_u32 s{A}, s{A}, 28
    s_and_b32 s{A+1}, s{sSLOT}, 7
    s_cselect_b32 s{sMI}, s{sMI}, s{A}""")
def mktag():
    p(f"""s_mul_i32 s{sTAG}, s{sEP}, 0x9e3779b1
    s_add_u32 s{sTAG}, s{sTAG}, 0x7f4a7c15
    s_and_b32 s{sTAG}, s{sTAG}, -16""")
def colbyte(dst, lc):
    t=sT+18
    p(f"""s_mul_i32 s{t}, s{lc}, 52
    s_lshr_b32 s{t}, s{t}, 8
    s_add_u32 s{t}, s{t}, s{sHH}
    s_mul_i32 s{t}, s{t}, 640
    s_lshl_b32 s{dst}, s{lc}, 7
    s_add_u32 s{dst}, s{dst}, s{t}""")

def loader():
    CA_=sT+1; CB_=sT+2; CH=sT+3; XO=sT+4; WO_=sT+5; LB=sT+6; A=sT+7; B=sT+8; OFF=sT+9; SEQ=sT+10
    vX=2; vW=6; vt=10
    p(f"""s_sub_u32 s{HW}, s{sWAVE}, 4
    s_lshl_b32 s{A}, s{sCT}, 1
    s_cmp_gt_u32 s{sCT}, 2
    s_subb_u32 s{A}, s{A}, 0
    s_cmp_lg_u32 s{sCT}, 2
    s_addc_u32 s{B}, s{A}, 0""")
    colbyte(CA_,A); colbyte(CB_,B)
    p(f"""v_lshrrev_b32 v{vt}, 3, v0
    v_mul_u32_u24 v{vX}, 1280, v{vt}
    v_lshrrev_b32 v{vt+1}, 4, v0
    v_and_b32 v{vt+2}, 7, v0
    v_xor_b32 v{vt+2}, v{vt+2}, v{vt+1}
    v_lshl_add_u32 v{vX}, v{vt+2}, 4, v{vX}
    v_xor_b32 v{vX+1}, 64, v{vX}
    v_add_u32 v{vX+1}, {10240-1024}, v{vX+1}
    v_add_u32 v{vX+2}, {2*(10240-1024)}, v{vX}
    v_add_u32 v{vX+3}, {2*(10240-1024)}, v{vX+1}
    v_lshlrev_b32 v{vt+2}, 2, v{vt+1}
    v_and_b32 v{vt+3}, 15, v0
    v_xor_b32 v{vt+2}, v{vt+2}, v{vt+3}
    v_cmp_lt_u32 vcc, 7, v{vt+2}
    v_mov_b32 v{vt+3}, s{CA_}
    v_mov_b32 v{vt+4}, s{CB_}
    v_cndmask_b32 v{vt+3}, v{vt+3}, v{vt+4}, vcc
    v_and_b32 v{vt+2}, 7, v{vt+2}
    v_lshl_add_u32 v{vt+3}, v{vt+2}, 4, v{vt+3}
    v_mul_u32_u24 v{vW}, 3840, v{vt+1}
    v_add_u32 v{vW}, v{vW}, v{vt+3}""")
    for i in range(1,4): p(f"v_add_u32 v{vW+i}, {i*(4*3840-1024)}, v{vW}")
    ta,tc,tg=CFG['rot']
    pk=lambda t: sum(int(v)<<(4*i) for i,v in enumerate(t))
    p(f"""s_and_b32 s{A}, s{sBK}, 3
    s_lshl_b32 s{A}, s{A}, 2
    s_lshr_b32 s{CH}, {pk(ta)}, s{A}
    s_and_b32 s{CH}, s{CH}, 15
    s_lshl_b32 s{A}, s{sCT}, 2
    s_lshr_b32 s{A}, {hex(pk(tc))}, s{A}
    s_and_b32 s{A}, s{A}, 15
    s_add_u32 s{CH}, s{CH}, s{A}
    s_lshr_b32 s{A}, s{sBK}, 2
    s_lshl_b32 s{A}, s{A}, 1
    s_add_u32 s{A}, s{A}, s{sHH}
    s_lshl_b32 s{A}, s{A}, 2
    s_lshr_b32 s{A}, {hex(pk(tg))}, s{A}
    s_and_b32 s{OFF}, s{A}, 15""")
    seqs=CFG['seqs']
    if seqs:
        n=len(seqs)
        p(f"""s_mul_i32 s{A}, s{CH}, {-(-2048//n)}
        s_lshr_b32 s{A}, s{A}, 11
        s_mul_i32 s{A}, s{A}, {n}
        s_sub_u32 s{CH}, s{CH}, s{A}""")
        for i,q in enumerate(seqs):
            assert sorted(q)==list("0123456789")
            if i: p(f"s_cmp_eq_u32 s{CH}, {i}\ns_cselect_b32 s{SEQ}, {hex(pk(q[:8]))}, s{SEQ}\ns_cselect_b32 s{SEQ+1}, {hex(pk(q[8:]))}, s{SEQ+1}")
            else: p(f"s_mov_b32 s{SEQ}, {hex(pk(q[:8]))}\ns_mov_b32 s{SEQ+1}, {hex(pk(q[8:]))}")
    else:
        p(f"""s_add_u32 s{CH}, s{CH}, s{OFF}
    s_mul_i32 s{A}, s{CH}, 205
    s_lshr_b32 s{A}, s{A}, 11
    s_mul_i32 s{A}, s{A}, 10
    s_sub_u32 s{CH}, s{CH}, s{A}""")
    p(f"""
    s_lshl_b32 s{A}, s{sBK}, 2
    s_add_u32 s{A}, s{A}, s{HW}
    s_mul_i32 s{XO}, s{A}, {32*1280}
    s_mul_i32 s{WO_}, s{HW}, {16*3840}
    s_lshl_b32 s{LB}, s{HW}, 12""")
    CHW=SEQ
    p(f"s_mov_b32 s{CHW}, s{CH}")
    nx=dict(x=0,w=0)
    def issue(order,lim):
        global OPS
        for k in order:
            c=nx[k]; nx[k]+=1; assert c<=min(9,lim)
            slot=(c%4)*32768; ch=CH if k=='x' else CHW
            if k=='x': p(f"""s_lshl_b32 s{A}, s{ch}, 7
                s_add_u32 m0, s{LB}, {slot}
                s_add_u32 s{A}, s{A}, s{XO}""")
            else: p(f"""s_mul_i32 s{A}, s{ch}, {64*3840}
                s_add_u32 m0, s{LB}, {slot+16384}
                s_add_u32 s{A}, s{A}, s{WO_}""")
            for i in range(4):
                if k=='x': p(f"buffer_load_dwordx4 v{vX+i}, {S4(sX)}, s{A} offen offset:{i*1024} {CFG['xpol'] if c<CFG['xnt'] else ''} lds")
                else: p(f"buffer_load_dwordx4 v{vW+i}, {S4(sW)}, s{A} offen offset:{i*1024} {'nt' if c<CFG['wnt'] else CFG['wpol']} lds")
            p(f"""s_add_u32 s{ch}, s{ch}, 1
            s_cmp_eq_u32 s{ch}, 10
            s_cselect_b32 s{ch}, 0, s{ch}""")
            OPS+=[c]*4
    ORD=CFG['ord'].split(',')
    srd(((sX,2621440),(sW,2457600)))
    if CFG['epf']: p(f"s_mov_b32 s{sTAG}, {EPO}")
    p("s_waitcnt lgkmcnt(0)")
    if CFG['epf']: p(f"s_load_dword s{sEP}, s[{sWS}:{sWS+1}], s{sTAG}")
    STAMP('i0')
    def b1():
        STAMP('i1s')
        issue(ORD[1],3)
        STAMP('i1e')
    for c in range(1):
        issue(ORD[0],3); STAMP('i%d'%(c+1))
        if CFG['b1p']==2: b1()
        if c==0:
            prologue2()
            p(f"""v_cmp_lt_u32 vcc, 7, v0
            v_lshlrev_b32 v{vt}, 4, v0
            v_add_u32 v{vt}, {L_FLG}, v{vt}
            v_cndmask_b32 v{vt+2}, 0, -1, vcc
            v_cndmask_b32 v{vt+3}, 0, -1, vcc
            v_cndmask_b32 v{vt+4}, 0, -1, vcc
            v_cndmask_b32 v{vt+5}, 0, -1, vcc
            ds_write_b128 v{vt}, v[{vt+2}:{vt+5}]""")
            early()
    if CFG['b1p']==1: b1()
    p("s_waitcnt lgkmcnt(0)")
    STAMP('epo')
    mktag()
    stats_setup()
    p(f"s_cmp_ge_u32 s{HW}, 2\ns_cbranch_scc1 L_helperB")
    nx0=dict(nx); ops0=list(OPS)
    def steps(hook,isB):
        global OPS
        nx.update(nx0); OPS=list(ops0)
        if CFG['b1p']==0: b1()
        if CFG['hclr']: hclear_setup(isB)
        if CFG['smw'] or CFG['smo']: sm_setup()
        for c in range(8):
            sd=CFG['sdef']
            if c==0 and -1 in sd:
                assert ORD[0][0]=='x'; p(f"s_waitcnt vmcnt({len(OPS)-4})")
                STAMP('x0')
                fill=stats(0)
                for k in range(4):
                    if sd[k]==-1: p(fill[k])
                if max(sd)==-1: stats_red()
            vmwait(c)
            STAMP('d%d'%c)
            p("s_barrier")
            STAMP('ld%d'%c)
            if c==0 and -1 not in sd: fill=stats(0)
            if c==CFG['stg'] and CFG['stb']: stats_get(); hook(100)
            if CFG['hclr']: hclear(c,isB)
            issue(ORD[2+c],c+3)
            if c==0: p("s_waitcnt lgkmcnt(0)")
            for k in range(4):
                if sd[k]==c: p(fill[k])
            if c==max(0,max(sd)):
                if max(sd)>=0: stats_red()
                stats_pub(); OPS.append('stw')
            if c==CFG['stg'] and not CFG['stb']: stats_get(); hook(100)
            hook(c)
            sm_touch(c,isB)
            if CFG['lay'] and CFG['padk']==2 and c==CFG['pks']:
                p(f"s_cmp_eq_u32 s{HW}, {2*isB}\ns_cbranch_scc1 L_pv{2*isB}\ns_branch L_pv{2*isB+1}\nL_pkb{isB}:")
        assert nx==dict(x=10,w=10)
    return steps
aS=44; dS=64; sacc=60; sone=43; sDBL=sDBG; sSTP=sDBG+1
def stats_setup():
    vt=10
    tc=[int(x) for x in CFG['rot'][1]]
    assert not CFG['seqs'] and sorted(tc+[(tc[2]+1)%10,(tc[2]+2)%10])==list(range(10))
    p(f"""s_lshl_b32 s{sT+16}, s{HW}, 12
    v_bfe_u32 v{vt}, v0, 1, 3
    v_lshrrev_b32 v{vt+1}, 5, v0
    v_lshlrev_b32 v{vt+1}, 2, v{vt+1}
    v_xor_b32 v{vt}, v{vt}, v{vt+1}
    v_lshlrev_b32 v{vt}, 4, v{vt}
    v_and_b32 v{vt+1}, 31, v0
    v_lshl_add_u32 v{vt}, v{vt+1}, 7, v{vt}
    v_add_u32 v{aS}, s{sT+16}, v{vt}
    v_mov_b32 v{sone}, 0x3f803f80
    s_and_b32 s{sSTP}, s{sBK}, 12
    s_add_u32 s{sSTP}, s{sSTP}, s{sBK}
    s_lshl_b32 s{sT+16}, s{sHH}, 2
    s_add_u32 s{sSTP}, s{sSTP}, s{sT+16}
    s_lshl_b32 s{sSTP}, s{sSTP}, 14
    s_lshl_b32 s{sT+16}, s{HW}, 9
    s_add_u32 s{sSTP}, s{sSTP}, s{sT+16}
    s_add_u32 s{sSTP}, s{sSTP}, {STP}
    v_lshrrev_b32 v{vt}, 5, v0
    v_lshlrev_b32 v{vt}, 11, v{vt}
    v_lshl_add_u32 v{aS+4}, v{vt+1}, 4, v{vt}
    s_lshl_b32 s{sT+16}, s{sCT}, 11
    s_cmp_eq_u32 s{sCT}, 2
    s_cselect_b32 s{sT+16}, {STX-STP}, s{sT+16}
    v_lshl_add_u32 v{aS+5}, v{vt+1}, 4, s{sT+16}""")
    for i in range(1,4): p(f"v_xor_b32 v{aS+i}, {16*i}, v{aS}")
    for i in range(4): p(f"v_mov_b32 v{sacc+i}, 0")
    if CFG['smode'] in ('dotx','dotc'):
        for i in range(2*CFG['nacc']): p(f"v_mov_b32 v{102+i}, 0")
def stats(c):
    if 'nostats' in CFG['xp']: return ['s_nop 0']*4
    for i in range(4): p(f"ds_read_b128 {vr(dS+4*i,4)}, v{aS+i} offset:{c*32768}")
    L=[]
    for i in range(4):
        g=f"s_waitcnt lgkmcnt({3-i})"
        for j in range(4):
            r=dS+4*i+j
            u=80+2*(j&1)
            if CFG['smode']=='dotx':
                a=102+2*((4*i+j)%CFG['nacc']); g+=f"\nv_dot2_f32_bf16 v{a}, v{r}, v{sone}, v{a}\nv_dot2_f32_bf16 v{a+1}, v{r}, v{r}, v{a+1}"
            elif CFG['smode']=='dotc':
                a=102+2*((4*i+j)%CFG['nacc']); g+=f"\nv_dot2c_f32_bf16 v{a}, v{r}, v{sone}\nv_dot2c_f32_bf16 v{a+1}, v{r}, v{r}"
            elif CFG['smode']=='dot': g+=f"\nv_dot2_f32_bf16 v{sacc+(j&1)}, v{r}, v{sone}, v{sacc+(j&1)}\nv_dot2_f32_bf16 v{sacc+2+(j&1)}, v{r}, v{r}, v{sacc+2+(j&1)}"
            elif CFG['smode']=='valu': g+=f"\nv_lshlrev_b32 v{u}, 16, v{r}\nv_and_b32 v{u+1}, 0xffff0000, v{r}\nv_add_f32 v{sacc}, v{sacc}, v{u}\nv_fmac_f32 v{sacc+2}, v{u}, v{u}\nv_add_f32 v{sacc+1}, v{sacc+1}, v{u+1}\nv_fmac_f32 v{sacc+3}, v{u+1}, v{u+1}"
            elif CFG['smode']=='pk': g+=f"\nv_lshlrev_b32 v{u}, 16, v{r}\nv_and_b32 v{u+1}, 0xffff0000, v{r}\nv_pk_add_f32 v[{sacc}:{sacc+1}], v[{sacc}:{sacc+1}], v[{u}:{u+1}]\nv_pk_fma_f32 v[{sacc+2}:{sacc+3}], v[{u}:{u+1}], v[{u}:{u+1}], v[{sacc+2}:{sacc+3}]"
        L.append(g)
    return L
def stats_red():
    t=sacc
    p(f"""s_nop 1
    v_add_f32 v{t}, v{t}, v{t+1}
    v_add_f32 v{t+1}, v{t+2}, v{t+3}
    v_mov_b32 v{t+2}, s{sTAG}
    s_nop 0
    v_permlane32_swap_b32 v{t}, v{t+1}
    s_nop 0
    v_add_f32 v{t}, v{t}, v{t+1}
    v_mov_b32 v{t+1}, v{t}
    s_nop 1
    v_permlane32_swap_b32 v{t}, v{t+1}""")
def stats_pub():
    t=sacc
    p(f"""s_mov_b64 exec, s[{sLO}:{sLO+1}]
    buffer_store_dwordx4 {vr(t,4)}, v{aS+5}, {S4(sWS)}, s{sSTP} offen sc1
    s_mov_b64 exec, -1""")
def stats_ld():
    return "\n".join(f"s_add_u32 s{sSTP+1}, s{sSTP}, {4096*i}\nbuffer_load_dwordx4 {vr(dS+4*i,4)}, v{aS+4}, {S4(sWS)}, s{sSTP+1} offen sc1" for i in range(4))
def stats_get():
    p(stats_ld()); OPS.extend(['stp']*4)
def stats_fin(t,B):
    vmwait('stp')
    lp=p.lab("stl"); ok=p.lab("stok"); rt=p.lab("strt")
    p(f"""s_mov_b32 s{B}, {SPIN}
    {lp}:
    v_xor_b32 v{t}, v{dS+2}, v{dS+6}
    v_xor_b32 v{t+1}, v{dS+10}, v{dS+14}
    v_xor_b32 v{t+2}, s{sTAG}, v{dS+2}
    v_xor_b32 v{t+3}, s{sTAG}, v{dS+10}
    v_or3_b32 v{t}, v{t}, v{t+1}, v{t+2}
    v_or_b32 v{t}, v{t}, v{t+3}
    v_cmp_ne_u32 vcc, 0, v{t}
    v_add_f32 v{t+1}, v{dS}, v{dS+4}
    v_add_f32 v{t+2}, v{dS+1}, v{dS+5}
    s_cbranch_vccnz {rt}
    {ok}:""")
    n0=len(p.L)
    p(f"{rt}:"); spin(B,lp,ok,1); p(stats_ld()); p(f"s_waitcnt vmcnt(0)\ns_branch {lp}")
    COLD.append("\n".join(p.L[n0:])); del p.L[n0:]
    p(f"""v_add_f32 v{t+3}, v{dS+8}, v{dS+12}
    v_add_f32 v{t+4}, v{dS+9}, v{dS+13}
    v_add_f32 v{t+1}, v{t+1}, v{t+3}
    v_add_f32 v{t+2}, v{t+2}, v{t+4}
    s_nop 1
    v_permlane32_swap_b32 v{t+1}, v{t+2}
    s_nop 0
    v_add_f32 v{t+1}, v{t+1}, v{t+2}
    v_mul_f32 v{t+1}, {1/640!r}, v{t+1}
    v_mov_b32 v{t+2}, v{t+1}
    s_nop 1
    v_permlane32_swap_b32 v{t+1}, v{t+2}
    s_nop 0
    v_fma_f32 v{t+2}, -v{t+1}, v{t+1}, v{t+2}
    v_max_f32 v{t+2}, 0, v{t+2}""")
    bf16r(t+2,t+2)
    p(f"v_add_f32 v{t+2}, 0x3727c5ac, v{t+2}")
    bf16r(t+2,t+2)
    p(f"""v_sqrt_f32 v{t+2}, v{t+2}
    v_xor_b32 v{t+1}, 0x80000000, v{t+1}""")
    bf16r(t+2,t+2)
    p(f"""v_rcp_f32 v{t+5}, v{t+2}
    v_cvt_pk_bf16_f32 v{t+4}, v{t+1}, v{t+1}
    v_and_b32 v{t+3}, 31, v0
    s_lshl_b32 s{B}, s{HW}, 8
    s_add_u32 s{B}, s{B}, {L_SA}
    v_lshl_add_u32 v{t+1}, v{t+3}, 3, s{B}
    s_lshl_b32 s{B}, s{HW}, 7
    s_add_u32 s{B}, s{B}, {L_SR}
    v_lshl_add_u32 v{t+2}, v{t+3}, 2, s{B}
    ds_write_b64 v{t+1}, v[{t+4}:{t+5}]
    ds_write_b32 v{t+2}, v{t+5}""")
vPT=21; vDUM=39
HS=sT+12; HA=28
def early():
    A=sT+20; B=sT+21; vt=10
    moe_role()
    p(f"""s_lshl_b32 s{A}, s{sSLOT}, 2
    s_add_u32 s{A}, s{A}, s{HW}
    s_mul_i32 s{A}, s{A}, 60
    v_min_u32 v{vt}, 59, v0
    v_add_u32 v{vt}, s{A}, v{vt}
    v_mul_u32_u24 v{vt+1}, 6554, v{vt}
    v_lshrrev_b32 v{vt+1}, 20, v{vt+1}
    v_mul_u32_u24 v{vt+2}, 160, v{vt+1}
    v_sub_u32 v{vt}, v{vt}, v{vt+2}
    v_lshlrev_b32 v{vt}, 7, v{vt}
    v_cmp_gt_u32 vcc, 32, v{vt+1}
    v_and_b32 v{vt+2}, 1, v{vt+1}
    v_mul_u32_u24 v{vt+2}, 20480, v{vt+2}
    v_lshrrev_b32 v{vt+3}, 4, v{vt+1}
    v_mul_u32_u24 v{vt+4}, 10240, v{vt+3}
    s_mul_i32 s{A}, s{sRQ}, 40960
    v_add3_u32 v{vt+2}, v{vt+2}, v{vt}, s{A}
    v_sub_u32 v{vt+2}, v{vt+2}, v{vt+4}
    v_add_u32 v{vt+4}, 163840, v{vt+2}
    v_min_u32 v{vt+2}, v{vt+2}, v{vt+4}
    v_mul_u32_u24 v{vt+3}, {KB}, v{vt+3}
    v_bfe_u32 v{vt+4}, v{vt+1}, 1, 3
    v_mul_u32_u24 v{vt+4}, 163840, v{vt+4}
    v_add3_u32 v{vt+2}, v{vt+2}, v{vt+3}, v{vt+4}
    s_mul_i32 s{A}, s{sRQ}, 20480
    s_sub_u32 s{A}, s{A}, 5120
    v_add_u32 v{vt}, s{A}, v{vt}
    v_add_u32 v{vt+4}, 81920, v{vt}
    v_min_u32 v{vt}, v{vt}, v{vt+4}
    v_and_b32 v{vt+3}, 15, v{vt+1}
    v_mul_u32_u24 v{vt+3}, 81920, v{vt+3}
    s_mov_b32 s{A}, {VB}
    v_add3_u32 v{vt+3}, v{vt+3}, v{vt}, s{A}
    v_cndmask_b32 v{vt+2}, v{vt+3}, v{vt+2}, vcc
    s_mul_i32 s{A}, s{sHH}, {8*163840}
    v_add_u32 v{vPT}, s{A}, v{vt+2}
""")
    if CFG['honly']:
        p(f"""s_lshl_b32 s{A}, s{sSLOT}, 2
        s_add_u32 s{A}, s{A}, s{HW}
        s_mul_i32 s{A}, s{A}, 60
        v_min_u32 v{vt}, 59, v0
        v_add_u32 v{vt}, s{A}, v{vt}
        v_mul_u32_u24 v{vt+2}, 160, v{vt+1}
        v_sub_u32 v{vt}, v{vt}, v{vt+2}
        v_and_b32 v{vt+2}, 1, v{vt+1}
        v_mul_u32_u24 v{vt+2}, 160, v{vt+2}
        v_add_u32 v{vt+2}, v{vt+2}, v{vt}
        v_lshlrev_b32 v{vt}, 1, v{vt}
        v_cndmask_b32 v{vt}, v{vt}, v{vt+2}, vcc
        s_cmp_lt_u32 s{sRQ}, 3
        s_cselect_b32 s{A}, 0, 80
        s_add_u32 s{A}, s{A}, 160
        v_subrev_u32 v{vt}, 80, v{vt}
        v_cmp_le_u32 vcc, s{A}, v{vt}
        v_cmp_lt_u32 s[{A}:{A+1}], 15, v{vt+1}
        v_mov_b32 v{vt+2}, {KH-KB}
        s_and_b64 vcc, vcc, s[{A}:{A+1}]
        s_nop 0
        v_cndmask_b32 v{vt+2}, 0, v{vt+2}, vcc
        v_add_u32 v{vPT}, v{vPT}, v{vt+2}""")
    if CFG['ht']: p(f"""s_lshl_b32 s{A}, s{sSLOT}, 2
    s_add_u32 s{A}, s{A}, s{HW}
    s_mul_i32 s{B}, s{A}, 20
    v_min_u32 v{vt}, 19, v0
    v_add_u32 v{vt}, s{B}, v{vt}
    v_mul_u32_u24 v{vt+1}, 13108, v{vt}
    v_lshrrev_b32 v{vt+1}, 20, v{vt+1}
    v_mul_u32_u24 v{vt+2}, 80, v{vt+1}
    v_sub_u32 v{vt}, v{vt}, v{vt+2}
    v_lshlrev_b32 v{vt}, 7, v{vt}
    v_cmp_gt_u32 vcc, 16, v{vt+1}
    v_and_b32 v{vt+2}, 1, v{vt+1}
    v_mul_u32_u24 v{vt+2}, 10240, v{vt+2}
    v_lshrrev_b32 v{vt+3}, 1, v{vt+1}
    v_mul_u32_u24 v{vt+3}, 163840, v{vt+3}
    s_mul_i32 s{B}, s{sRQ}, 40960
    s_add_u32 s{B}, s{B}, {KH+20480}
    v_add3_u32 v{vt+2}, v{vt+2}, v{vt+3}, s{B}
    v_and_b32 v{vt+3}, 15, v{vt+1}
    v_mul_u32_u24 v{vt+3}, 81920, v{vt+3}
    s_mul_i32 s{B}, s{sRQ}, 20480
    s_add_u32 s{B}, s{B}, {VH+10240}
    v_add_u32 v{vt+3}, s{B}, v{vt+3}
    v_cndmask_b32 v{vt+2}, v{vt+3}, v{vt+2}, vcc
    s_mul_i32 s{B}, s{sHH}, {8*163840}
    v_add3_u32 v{vHT}, v{vt}, v{vt+2}, s{B}
    s_lshl_b32 s{B}, s{sG}, 7
    s_add_u32 s{A}, s{A}, s{B}
    s_lshl_b32 s{A}, s{A}, 7
    s_add_u32 s{A}, s{A}, {FH}
    v_mov_b32 v{vt}, s{A}
    v_cmp_lt_u32 vcc, 19, v0
    s_nop 1
    v_cndmask_b32 v{vHT}, v{vHT}, v{vt}, vcc""")
    nsm=sum(CFG['npf']); per=(100-5*nsm)//2
    if per>0:
        p(f"""s_mul_i32 s{A}, s{sG}, 5
        s_lshr_b32 s{A}, s{A}, 1
        s_mul_i32 s{A}, s{A}, 5
        s_lshr_b32 s{B}, s{HW}, 1
        s_mul_i32 s{B}, s{B}, {per}
        s_add_u32 s{A}, s{A}, s{B}
        s_add_u32 s{A}, s{A}, {5*nsm}
        v_min_u32 v{vt}, {per-1}, v0
        v_add_u32 v{vt}, s{A}, v{vt}
        v_subrev_u32 v{vt+1}, 100, v{vt}
        v_min_u32 v{vt}, v{vt}, v{vt+1}
        s_lshl_b32 s{A}, s{sSLOT}, 1
        s_and_b32 s{B}, s{HW}, 1
        s_add_u32 s{A}, s{A}, s{B}
        s_mul_i32 s{A}, s{A}, 12800
        v_lshl_add_u32 v{vTW}, v{vt}, 7, s{A}""")
    ge=p.lab("mtge"); jn=p.lab("mtj")
    p(f"""v_min_u32 v{vt}, 59, v0
    v_mul_u32_u24 v{vt+1}, 86, v{vt}
    v_lshrrev_b32 v{vt+1}, 8, v{vt+1}
    v_mul_u32_u24 v{vt+1}, {3072-384}, v{vt+1}
    v_lshl_add_u32 v{vt}, v{vt}, 7, v{vt+1}
    s_mul_i32 s{A}, s{sSLOT}, {20*3072}
    s_mul_i32 s{B}, s{sG}, 384
    s_add_u32 s{A}, s{A}, s{B}
    v_add_u32 v{vTM}, s{A}, v{vt}
    s_sub_u32 s{A}, s{sMI}, {0 if CFG['dw3'] else 17}
    s_lshl_b32 s{A}, s{A}, {1 if CFG['dw3'] else 2}
    s_add_u32 s{A}, s{A}, s{HW}
    s_mul_i32 s{A}, s{A}, {24 if CFG['dw3'] else 35 if CFG['dtn'] else 26}
    v_min_u32 v{vt}, {47 if CFG['dw3'] else 63 if CFG['dtn'] else 51}, v0
    v_lshrrev_b32 v{vt+1}, 1, v{vt}
    v_add_u32 v{vt+1}, s{A}, v{vt+1}
    v_min_u32 v{vt+1}, 1535, v{vt+1}
    v_mul_u32_u24 v{vt+1}, 1280, v{vt+1}
    v_and_b32 v{vt}, 1, v{vt}
    v_lshl_add_u32 v{vt}, v{vt}, 7, v{vt+1}
    s_mul_i32 s{B}, s{sG}, 160
    s_and_b32 s{B}, s{B}, -128
    v_add_u32 v{vTD}, s{B}, v{vt}""")
    if CFG['dtn']: p(f"""s_add_u32 s{A}, s{A}, 32
    v_min_u32 v{vt}, 5, v0
    v_lshrrev_b32 v{vt+1}, 1, v{vt}
    v_add_u32 v{vt+1}, s{A}, v{vt+1}
    v_min_u32 v{vt+1}, 1535, v{vt+1}
    v_mul_u32_u24 v{vt+1}, 1280, v{vt+1}
    v_and_b32 v{vt}, 1, v{vt}
    v_lshl_add_u32 v{vt}, v{vt}, 7, v{vt+1}
    v_add_u32 v{vTD2}, s{B}, v{vt}""")
vTD=25; vHT=26; vTD2=27
vTW=22; vTM=24
def touch(va,srd_,pair,pol=''):
    if pair:
        p(f"buffer_load_dword v{vDUM}, v{va}, {S4(srd_)}, 0 offen nt\nbuffer_load_dword v{vDUM}, v{va}, {S4(srd_)}, 0 offen offset:64")
        return 2
    p(f"buffer_load_dword v{vDUM}, v{va}, {S4(srd_)}, 0 offen {pol}")
    return 1
def wtouch(win,isB):
    n=0
    if CFG['wtw']==win and 100-5*sum(CFG['npf'])>0:
        n+=touch(vTW,sWO,CFG['wpair'])
    if CFG['mtw']==win:
        if not isB:
            u=p.lab("tu"); j=p.lab("tj")
            p(f"s_cmp_eq_u32 s{HW}, 0\ns_cbranch_scc0 {u}")
            touch(vTM,sWG,CFG['mpair'])
            p(f"s_branch {j}\n{u}:")
            n+=touch(vTM,sWU,CFG['mpair'])
            p(f"{j}:")
    return n
def qkv_touch():
    if CFG['pt']==99: return
    if CFG['ht']==1: OPS.extend(['pt']*touch(vHT,sWS,0,''))
    OPS.extend(['pt']*touch(vPT,sWS,CFG['qpair'],CFG['tpol']))
    if CFG['ht']==2: OPS.extend(['pt']*touch(vHT,sWS,0,''))
vH=16
OPS=[]
def vmwait(*tags):
    last=max(i for i,t in enumerate(OPS) if t in tags)
    n=len(OPS)-1-last; assert n<64
    p(f"s_waitcnt vmcnt({n})")
HW=sT
def spin(cnt,lp,ok,sleep=0):
    p(f"s_sub_u32 s{cnt}, s{cnt}, 1\ns_cbranch_scc1 {ok}")
    if sleep: p(f"s_sleep {sleep}")
def lds_wait(addr_v,tmp,cnt,cmp,val,sleep=1):
    lp=p.lab("lw"); ok=p.lab("lwok")
    p(f"""s_mov_b32 s{cnt}, {SPIN*4}
    {lp}:
    ds_read_b32 v{tmp}, v{addr_v}
    s_waitcnt lgkmcnt(0)
    v_cmp_{cmp}_u32 vcc, {val}, v{tmp}
    s_nop 0
    s_cbranch_vccz {ok}""")
    spin(cnt,lp,ok,sleep)
    p(f"s_branch {lp}\n{ok}:")
sHL,sHF,sHO,sPH,sHD,sT0=range(sT+1,sT+7)
def att_ids():
    p(f"""s_lshr_b32 s{sHL}, s{sSLOT}, 1
    s_and_b32 s{sHF}, s{sSLOT}, 1
    s_and_b32 s{sHO}, s{sHL}, 1
    s_lshr_b32 s{sPH}, s{sHL}, 1
    s_lshl_b32 s{sHD}, s{sHH}, 3
    s_add_u32 s{sPH}, s{sPH}, s{sHD}
    s_lshl_b32 s{sHD}, s{sHH}, 4
    s_add_u32 s{sHD}, s{sHD}, s{sHL}
    s_lshl_b32 s{sT0}, s{sRQ}, 1
    s_add_u32 s{sT0}, s{sT0}, s{sHF}
    s_lshl_b32 s{sT0}, s{sT0}, 3""")
def flag_addr(vd,vt,withq,A,B,C):
    flag_nib(withq,A,B,C)
    p(f"""v_and_b32 v{vt}, 60, v0
    v_min_u32 v{vt}, 20, v{vt}
    v_bfe_u32 v{vt}, s{A}, v{vt}, 4
    v_and_b32 v{vd}, 3, v0
    v_lshlrev_b32 v{vd}, 2, v{vd}
    v_lshl_add_u32 v{vd}, v{vt}, 7, v{vd}""")
def flag_nib(withq,A,B,C):
    p(f"""s_lshr_b32 s{A}, s{sHL}, 1
    s_mul_i32 s{A}, s{A}, 5
    s_lshl_b32 s{B}, s{sHO}, 1
    s_add_u32 s{A}, s{A}, s{B}
    s_add_u32 s{B}, s{A}, 2
    s_lshr_b32 s{A}, s{A}, 3
    s_lshr_b32 s{B}, s{B}, 3
    s_lshl_b32 s{B}, s{B}, 4
    s_or_b32 s{A}, s{A}, s{B}
    s_add_u32 s{B}, s{A}, 0x55
    s_lshl_b32 s{C}, s{B}, 8
    s_or_b32 s{A}, s{C}, s{A if withq else B}
    s_mul_i32 s{B}, s{sHL}, 20
    s_add_u32 s{C}, s{B}, 19
    s_lshr_b32 s{B}, s{B}, 6
    s_lshr_b32 s{C}, s{C}, 6
    s_lshl_b32 s{C}, s{C}, 4
    s_or_b32 s{B}, s{B}, s{C}
    s_add_u32 s{B}, s{B}, 0xaa
    s_lshl_b32 s{B}, s{B}, 16
    s_or_b32 s{A}, s{A}, s{B}""")
def flag_poll(va,vt,soff,cnt,first=True,sleep=0):
    lp=p.lab("fp"); ok=p.lab("fpok");
    p(f"s_mov_b32 s{cnt}, {SPIN}")
    if not first:
        md=p.lab("fpm"); p(f"s_branch {md}")
    p(f"""{lp}:
    buffer_load_dword v{vt}, v{va}, {S4(sWS)}, s{soff} offen sc1""")
    if not first: p(f"{md}:")
    p(f"""s_waitcnt vmcnt(0)
    v_cmp_ne_u32 vcc, s{sTAG}, v{vt}
    s_nop 0
    s_cbranch_vccz {ok}""")
    spin(cnt,lp,ok,sleep)
    p(f"s_branch {lp}\n{ok}:")
def flag_poll2(va,vt,soff,cnt,n=2,gap=0):
    lp=p.lab("fq"); ok=p.lab("fqok")
    ld=lambda i: f"buffer_load_dword v{vt+i}, v{va}, {S4(sWS)}, s{soff} offen sc1"
    p(f"s_mov_b32 s{cnt}, {SPIN}")
    for i in range(n-1):
        p(ld(i))
        if gap: p(f"s_sleep {gap}")
    p(f"{lp}:")
    for i in range(n):
        p(f"""{ld((i+n-1)%n)}
        s_waitcnt vmcnt({n-1})
        v_cmp_ne_u32 vcc, s{sTAG}, v{vt+i}
        s_nop 0
        s_cbranch_vccz {ok}""")
    spin(cnt,lp,ok)
    p(f"s_branch {lp}\n{ok}:")
def kv_dma(aLin,aTl,sK,sV,sL,A,B,sHO=sHO):
    p(f"""s_mul_i32 s{A}, s{sHO}, 1536
    s_add_u32 s{A}, s{A}, s{sK}
    s_mov_b32 m0, s{sL}
    s_add_u32 s{B}, s{A}, 1536
    buffer_load_dwordx4 v{aLin}, {S4(sWS)}, s{A} offen {CFG['ldp']} lds
    buffer_load_dwordx4 v{aLin}, {S4(sWS)}, s{B} offen offset:1024 {CFG['ldp']} lds
    s_sub_u32 s{A}, s{sK}, 2048
    s_sub_u32 s{B}, s{sV}, 3072
    buffer_load_dwordx4 v{aTl}, {S4(sWS)}, s{A} offen offset:2048 {CFG['ldp']} lds
    buffer_load_dwordx4 v{aLin}, {S4(sWS)}, s{B} offen offset:3072 {CFG['ldp']} lds
    s_add_u32 m0, s{sL}, 4096
    s_add_u32 s{B}, s{sV}, 1024
    buffer_load_dwordx4 v{aLin}, {S4(sWS)}, s{B} offen {CFG['ldp']} lds
    s_mov_b64 exec, s[{sLO}:{sLO+1}]
    buffer_load_dwordx4 v{aLin}, {S4(sWS)}, s{B} offen offset:1024 {CFG['ldp']} lds
    s_mov_b64 exec, -1""")
def kv_addr(aLin,aTl,t):
    p(f"""v_lshlrev_b32 v{aLin}, 4, v0
    v_lshrrev_b32 v{t}, 5, v0
    v_mul_u32_u24 v{t}, {2560-512}, v{t}
    v_add3_u32 v{aTl}, v{aLin}, v{t}, s{sK1024}""")
sK1024=sT+21

def halo_cond(A,B):
    p(f"""s_lshr_b32 s{A}, 0x8ccc, s{sBK}
    s_cmp_gt_u32 s{sCT}, 2
    s_cselect_b32 s{A}, s{A}, 0
    s_and_b32 s{A}, s{A}, 1""")
def halo_flag(vt,A,B,C):
    sk=p.lab("nohalo")
    halo_cond(A,B)
    p(f"""s_cbranch_scc0 {sk}
    s_lshl_b32 s{A}, s{sCT}, 1
    s_add_u32 s{A}, s{A}, s{HW}
    s_sub_u32 s{A}, s{A}, 3
    s_lshl_b32 s{C}, s{sG}, 4
    s_add_u32 s{A}, s{A}, s{C}
    s_lshl_b32 s{A}, s{A}, 2
    s_add_u32 s{A}, s{A}, s{sRB}
    s_lshl_b32 s{A}, s{A}, 8
    s_add_u32 s{A}, s{A}, {FH}
    s_lshl_b32 s{B}, s{HW}, 2
    s_add_u32 s{B}, s{B}, {F_STG-8}
    v_mov_b32 v{vt}, s{B}
    v_lshlrev_b32 v{vt+2}, 7, v0
    v_mov_b32 v{vt+3}, s{sTAG}""")
    lds_wait(vt,vt+1,C,'gt',2,0)
    p(f"""s_mov_b64 exec, 3
    buffer_store_dword v{vt+3}, v{vt+2}, {S4(sWS)}, s{A} offen sc1
    s_mov_b64 exec, -1""")
    STAMP('halo')
    p(f"{sk}:")
def halo_copy(vt,A,B,C,mid):
    sk=p.lab("nohalo"); jn=p.lab("halo_j"); D=168; sD=sT+12; sFH=sT+13
    p(f"s_mov_b32 s{sFH}, 0")
    halo_cond(A,B)
    p(f"""s_cbranch_scc0 {sk}
    s_lshl_b32 s{A}, s{sCT}, 1
    s_add_u32 s{A}, s{A}, s{HW}
    s_sub_u32 s{A}, s{A}, 3
    s_cmp_lt_u32 s{A}, 10
    s_cselect_b32 s{sD}, 1, 0
    s_lshl_b32 s{sD}, 1280, s{sD}
    s_lshl_b32 s{C}, s{sG}, 4
    s_add_u32 s{A}, s{A}, s{C}
    s_lshl_b32 s{A}, s{A}, 2
    s_add_u32 s{A}, s{A}, s{sRB}
    s_lshl_b32 s{A}, s{A}, 8
    s_add_u32 s{sFH}, s{A}, {FH}
    s_lshl_b32 s{B}, s{HW}, 2
    s_add_u32 s{B}, s{B}, {F_STG-8}
    v_mov_b32 v{vt}, s{B}
    s_mul_i32 s{B}, s{HW}, {2*9216}
    s_add_u32 s{B}, s{B}, {L_WO-4*9216}
    v_lshl_add_u32 v{vt+2}, v0, 4, s{B}
    v_mov_b32 v{vt+3}, {F_HR}
    v_mov_b32 v{vt+4}, 1""")
    lds_wait(vt,vt+1,C,'gt',2,0)
    STAMP('hs1')
    for wr in range(2):
        for i in range(9): p(f"ds_read_b128 {vr(D+36*wr+4*i,4)}, v{vt+2} offset:{wr*9216+i*1024}")
        if wr==0: p("s_waitcnt lgkmcnt(6)")
    p(f"v_add_u32 v{vt}, 8, v{vt}")
    lds_wait(vt,vt+1,C,'gt',2,0)
    STAMP('hs2')
    for wr in range(2):
        for i in range(8): p(f"buffer_store_dwordx4 {vr(D+36*wr+4*i,4)}, v{D+36*wr+32+(i&3)}, {S4(sWS)}, {'s%d'%sD if i>>2 else 0} offen sc1")
    p(f"""s_mov_b64 exec, 1
    ds_add_u32 v{vt+3}, v{vt+4}
    s_mov_b64 exec, -1""")
    p(f"{sk}:")
    mid()
    p(f"""s_cmp_eq_u32 s{sFH}, 0
    s_cbranch_scc1 {jn}
    v_mov_b32 v{vt+2}, 0
    v_mov_b32 v{vt+4}, s{sTAG}
    s_waitcnt vmcnt(0)
    s_mov_b64 exec, 1
    buffer_store_dword v{vt+4}, v{vt+2}, {S4(sWS)}, s{sFH} offen sc1
    s_mov_b64 exec, -1""")
    STAMP('halo')
    lds_wait(vt+3,vt+1,C,'gt',2,0)
    p(f"{jn}:")
def own_setup(aF2,vt):
    A=sT+7; B=sT+8; sF,sK,sV,sL=range(sT+12,sT+16)
    flag_addr(aF2,vt,1,A,B,sT+18)
    p(f"""s_lshl_b32 s{sF}, s{sG}, 11
    s_lshl_b32 s{A}, s{sHF}, 4
    s_add_u32 s{sF}, s{sF}, s{A}
    s_add_u32 s{sF}, s{sF}, {FL}
    s_lshl_b32 s{A}, s{HW}, 1
    s_add_u32 s{A}, s{A}, s{sT0}
    s_mul_i32 s{sK}, s{A}, 2560
    s_mul_i32 s{sV}, s{A}, 1280
    s_mul_i32 s{A}, s{sPH}, {64*2560}
    s_add_u32 s{sK}, s{sK}, s{A}
    s_add_u32 s{sK}, s{sK}, {KB}
    s_mul_i32 s{A}, s{sHD}, 81920
    s_add_u32 s{sV}, s{sV}, s{A}
    s_add_u32 s{sV}, s{sV}, {VB}
    s_mul_i32 s{sL}, s{HW}, 5632
    s_add_u32 s{sL}, s{sL}, {L_KV+4*5632}""")
def own_kv(aLin,aTl,aF2,vt,sHO_):
    A=sT+7; B=sT+8; sF,sK,sV,sL=range(sT+12,sT+16); C=sT+18
    p(f"v_mov_b32 v{vt}, {F_FS}\nv_mov_b32 v{vt+1}, 1")
    flag_poll(aF2,vt+2,sF,C)
    p(f"ds_write_b32 v{vt}, v{vt+1}")
    STAMP('hfs')
    kv_dma(aLin,aTl,sK,sV,sL,A,B,sHO_)
    p(f"""s_mov_b64 exec, 1
    v_mov_b32 v{vt}, {F_G1}
    s_waitcnt vmcnt(0)
    ds_add_u32 v{vt}, v{vt+1}
    s_mov_b64 exec, -1""")
    STAMP('hg1')
def helperA(steps):
    A=sT+7; B=sT+8; vt=10
    def hook(c):
        if c==CFG['pt']:
            qkv_touch(); OPS.extend(['pt']*wtouch('w1',0))
        if c==CFG['wts']: OPS.extend(['pt']*touch(vTW,sWO,0))
    steps(hook,0)
    for c in (8,9):
        vmwait(c); p("s_barrier"); STAMP('ld%d'%c)
        if c==9: STAMP('hb9')
        hook(c)
    stats_fin(vt,B)
    p("s_barrier\ns_waitcnt lgkmcnt(0)\ns_barrier")
    STAMP('hE1')
    if CFG['hsp']&2: p(f"v_mov_b32 v{vt}, {L_MODE}\nds_read_b32 v{vt+1}, v{vt}")
    att_ids()
    if CFG['hsp']&2: p(f"s_waitcnt lgkmcnt(0)\nv_readfirstlane_b32 s{sMODE}, v{vt+1}")
    aLin=6; aTl=7; aF=8; D=40
    p(f"s_mov_b32 s{sK1024}, 1024")
    kv_addr(aLin,aTl,vt)
    flag_addr(aF,vt,0,A,B,sT+17)
    if CFG['hsp']: flag_nib(1,A,B,sT+17); p(f"s_mov_b32 s{sT+21}, s{A}")
    if CFG['hkv']: own_setup(9,vt)
    p(f"v_mov_b32 v{vt+1}, 1")
    sF=sT+9; sK=sT+10; sV=sT+11; sL=sT+16; C=sT+17; sD=sT+12
    dn=p.lab("g2done"); h1=p.lab("rem"); jn=p.lab("remj")
    assert not (CFG['hsent'] or CFG['hkv'])
    p(f"""v_and_b32 v{vt+2}, 4, v{aF}
    v_and_b32 v{aF}, -128, v{aF}
    s_cmp_lg_u32 s{HW}, 0
    s_cbranch_scc1 {h1}
    v_add_u32 v{aF}, v{aF}, v{vt+2}
    s_mul_i32 s{A}, s{sHF}, 24
    s_lshl_b32 s{sF}, s{sG}, 11
    s_add_u32 s{sF}, s{sF}, s{A}
    s_add_u32 s{sF}, s{sF}, {FL}
    {f"s_cmp_eq_u32 s{sT0}, 56" if CFG['honly'] else ""}
    {f"s_cselect_b32 s{B}, 0, {KH-KB}" if CFG['honly'] else f"s_mov_b32 s{B}, 0"}
    s_branch {jn}
    {h1}:
    v_lshlrev_b32 v{aF}, 3, v{aF}
    s_lshl_b32 s{A}, s{sHF}, 2
    s_add_u32 s{A}, s{A}, s{sG}
    s_sub_u32 s{A}, s{A}, 2
    s_and_b32 s{A}, s{A}, 7
    s_lshl_b32 s{sF}, s{A}, 14
    s_mul_i32 s{A}, s{sHF}, -768
    s_add_u32 s{sF}, s{sF}, s{A}
    s_add_u32 s{sF}, s{sF}, {FH+768}
    s_mov_b32 s{B}, {KH-KB}
    {jn}:
    s_lshl_b32 s{A}, s{HW}, 2
    s_sub_u32 s{sK}, -2, s{A}
    s_cmp_eq_u32 s{sHF}, 0
    s_cselect_b32 s{A}, s{sK}, s{A}
    s_mul_i32 s{sD}, s{sHF}, 5120
    s_sub_u32 s{sD}, s{sD}, 2560
    s_add_u32 s{A}, s{A}, s{sT0}
    s_mul_i32 s{sK}, s{A}, 2560
    s_mul_i32 s{sV}, s{A}, 1280
    s_mul_i32 s{A}, s{sPH}, {64*2560}
    s_add_u32 s{sK}, s{sK}, s{A}
    s_add_u32 s{sK}, s{sK}, s{B}
    s_add_u32 s{sK}, s{sK}, {KB}
    s_mul_i32 s{A}, s{sHD}, 81920
    s_add_u32 s{sV}, s{sV}, s{A}
    s_add_u32 s{sV}, s{sV}, s{B}
    s_add_u32 s{sV}, s{sV}, {VB}
    s_mul_i32 s{sL}, s{HW}, {-2*5632}
    s_add_u32 s{sL}, s{sL}, {L_KV+3*5632}""")
    if CFG['hsp']&2:
        sk=p.lab("noown"); sp=p.lab("ownp"); so=p.lab("ownok"); O=[sT+13,sT+14,sT+15,sT+18,sT+19,sT+20]; Rq=[4,8,12,28,40,96]
        halo_cond(A,B)
        p(f"""s_and_b32 s{A}, s{A}, s{HW}
        s_andn2_b32 s{A}, s{A}, s{sMODE}
        s_cbranch_scc0 {sk}
        s_lshl_b32 s{A}, s{sG}, 11
        s_add_u32 s{A}, s{A}, {FL}
        s_lshl_b32 s{B}, s{sHF}, 4
        s_add_u32 s{B}, s{B}, s{A}
        s_add_u32 s{A}, s{A}, 8""")
        for i in range(6): p(f"s_bfe_u32 s{O[i]}, s{sT+21}, {hex((4*i)|(4<<16))}\ns_lshl_b32 s{O[i]}, s{O[i]}, 7\ns_add_u32 s{O[i]}, s{O[i]}, s{B if i<2 else A}")
        assert 'FS' not in CFG['gm']+CFG['gr']
        if CFG['ogate']: p(f"v_mov_b32 v{vt}, {F_FS}"); lds_wait(vt,vt+5,C,'gt',CFG['ogate'],1)
        p(f"v_mov_b32 v{vt}, {F_OWN}\ns_mov_b32 s{C}, {SPIN}\n{sp}:")
        for i in range(6): p(f"s_load_dwordx4 s[{Rq[i]}:{Rq[i]+3}], s[{sWS}:{sWS+1}], s{O[i]} glc")
        p("s_waitcnt lgkmcnt(0)")
        for i in range(6):
            r=Rq[i]
            p(f"s_and_b64 s[{A+1}:{A+2}], s[{r}:{r+1}], s[{r+2}:{r+3}]" if 0 else "")
            p(f"s_xor_b64 s[{r}:{r+1}], s[{r}:{r+1}], s[{r+2}:{r+3}]\ns_xor_b32 s{r+2}, s{r+2}, s{sTAG}\ns_xor_b32 s{r+3}, s{r+3}, s{sTAG}\ns_or_b64 s[{r}:{r+1}], s[{r}:{r+1}], s[{r+2}:{r+3}]")
            if i: p(f"s_or_b64 s[4:5], s[4:5], s[{r}:{r+1}]")
        p(f"""s_cbranch_scc0 {so}
        s_sub_u32 s{C}, s{C}, 1
        {f"s_sleep {CFG['hsl2']}" if CFG['hsl2'] else ""}
        s_cbranch_scc0 {sp}
        {so}:
        ds_write_b32 v{vt}, v{vt+1}""")
        if CFG['prof']: p("s_mov_b64 s[96:97], 0\ns_mov_b64 s[98:99], 0")
        STAMP('own')
        p(f"{sk}:")
    if CFG['lay'] and CFG['padk']==3:
        p(f"s_cmp_eq_u32 s{HW}, 1\ns_cbranch_scc1 L_pv0\nL_pkb0:")
        STAMP('pk')
    p(f"s_cmp_eq_u32 s{sT0}, 0\ns_cbranch_scc1 {dn}")
    def both():
        kv_dma(aLin,aTl,sK,sV,sL,A,B)
        p(f"""s_add_u32 s{sK}, s{sK}, s{sD}
        s_add_u32 s{sK}, s{sK}, s{sD}
        s_add_u32 s{sV}, s{sV}, s{sD}
        s_sub_u32 s{sL}, s{sL}, 5632""")
        kv_dma(aLin,aTl,sK,sV,sL,A,B)
    GT=dict(G1=(F_G1,4),FS=(F_FS,1),FS4=(F_FS,4),M=(F_M,1))
    if CFG['gm']!='no' or CFG['gr']!='no':
        g0=p.lab("gate0"); g1=p.lab("gate1")
        p(f"s_cmp_lg_u32 s{HW}, 0\ns_cbranch_scc1 {g0}")
        if CFG['gm']!='no': p(f"v_mov_b32 v{vt}, {GT[CFG['gm']][0]}"); lds_wait(vt,vt+5,C,'gt',GT[CFG['gm']][1],0)
        p(f"s_branch {g1}\n{g0}:")
        if CFG['gr']!='no': p(f"v_mov_b32 v{vt}, {GT[CFG['gr']][0]}"); lds_wait(vt,vt+5,C,'gt',GT[CFG['gr']][1],0)
        p(f"{g1}:")
    if CFG['hsp']&1:
        vp=p.lab("vecp"); sp=p.lab("scp"); so=p.lab("scok")
        p(f"s_cmp_eq_u32 s{HW}, 0\ns_cbranch_scc1 {vp}")
        for i in range(4): p(f"s_bfe_u32 s{8+i}, s{sT+21}, {hex((8+4*i)|(4<<16))}\ns_lshl_b32 s{8+i}, s{8+i}, 10\ns_add_u32 s{8+i}, s{8+i}, s{sF}")
        p(f"s_mov_b32 s{C}, 256\n{sp}:")
        for i in range(4): p(f"s_load_dword s{4+i}, s[{sWS}:{sWS+1}], s{8+i} glc")
        p("s_waitcnt lgkmcnt(0)")
        for i in range(4): p(f"s_xor_b32 s{4+i}, s{4+i}, s{sTAG}")
        p(f"""s_or_b32 s4, s4, s5
        s_or_b32 s6, s6, s7
        s_or_b32 s4, s4, s6
        s_cbranch_scc0 {so}
        s_sub_u32 s{C}, s{C}, 1
        {f"s_sleep {CFG['hsl']}" if CFG['hsl'] else ""}
        s_cbranch_scc0 {sp}
        {vp}:""")
        flag_poll(aF,vt+5,sF,C,sleep=CFG['hsl'])
        p(f"{so}:")
    elif CFG['hpoll']: flag_poll2(aF,vt+5,sF,C,CFG['hpoll'],CFG['hsl'])
    else: flag_poll(aF,vt+5,sF,C,sleep=CFG['hsl'])
    STAMP('hf')
    both()
    if CFG['wpause']: p(f"s_lshl_b32 s{A}, s{HW}, 2\ns_add_u32 s{A}, s{A}, {F_RI-4}\nv_mov_b32 v{vt+2}, s{A}\nds_write_b32 v{vt+2}, v{vt+1}")
    if CFG['mtw'] in ('RI','MI'):
        nt_=p.lab("nori"); d2=p.lab("g2d")
        p(f"s_cmp_eq_u32 s{HW}, {int(CFG['mtw']=='RI')}\ns_cbranch_scc0 {nt_}")
        touch(vTM,sWG,0); touch(vTM,sWU,0)
        p(f"s_waitcnt vmcnt(2)\ns_branch {d2}\n{dn}:\ns_cmp_eq_u32 s{HW}, {int(CFG['mtw']=='RI')}\ns_cbranch_scc0 {d2}")
        touch(vTM,sWG,0); touch(vTM,sWU,0)
        p(f"s_branch {d2}\n{nt_}:"); dn=d2
    p(f"""s_waitcnt vmcnt(0)
    {dn}:
    s_lshl_b32 s{A}, s{HW}, 2
    s_add_u32 s{A}, s{A}, {F_M}
    v_mov_b32 v{vt}, {F_G2}
    v_mov_b32 v{vt+2}, s{A}
    s_mov_b64 exec, 1
    ds_write_b32 v{vt+2}, v{vt+1}
    {f"ds_write_b32 v{vt+2}, v{vt+1} offset:{F_RI-4-F_M}" if CFG['wpause'] else ""}
    ds_add_u32 v{vt}, v{vt+1}
    s_mov_b64 exec, -1""")
    STAMP('g2')
    if CFG['lclr']:
        sk=p.lab("nolc"); na=p.lab("lcna"); lp=p.lab("lcp"); ok=p.lab("lcok"); D=40
        p(f"""s_cmp_lg_u32 s{HW}, 0
        s_cbranch_scc1 {sk}
        v_mov_b32 v{vt}, {F_CC}
        s_lshr_b32 s{A}, s2, 2
        s_lshl_b32 s{A}, s{A}, 5
        s_and_b32 s{B}, s2, 3
        s_add_u32 s{A}, s{A}, s{B}
        s_lshl_b32 s{A}, s{A}, 2
        s_add_u32 s{A}, s{A}, {H2B}
        s_mov_b32 s{B}, {H2B}
        v_mov_b32 v{D+4}, s{sTAG}
        v_mov_b32 v{D+5}, 0
        v_lshlrev_b32 v{D+6}, 7, v0""")
        lds_wait(vt,vt+5,C,'gt',4,1)
        p(f"""s_mov_b64 exec, 1
        buffer_store_dword v{D+4}, v{D+5}, {S4(sWS)}, s{A} offen sc1
        s_mov_b64 exec, -1""")
        STAMP('lc1')
        g=dict(G2=(F_G2,2),D1=(F_DONE,1),WOR=(F_WOR,2),WOD=(F_WOD,2))[CFG['lcg']]
        p(f"""s_cmp_eq_u32 s{sT0}, 0
        s_cselect_b32 s{A}, {F_DONE-L_FLG}, {g[0]-L_FLG}
        s_cselect_b32 s{sD}, 4, {g[1]}
        s_add_u32 s{A}, s{A}, {L_FLG}
        v_mov_b32 v{vt}, s{A}""")
        lds_wait(vt,vt+5,C,'gt',f"s{sD}",2)
        p(f"""s_mov_b32 s{C}, {SPIN}
        {lp}:
        buffer_load_dwordx4 {vr(D,4)}, v{D+6}, {S4(sWS)}, s{B} offen sc1
        s_waitcnt vmcnt(0)
        v_xor_b32 v{D}, v{D}, v{D+1}
        v_xor_b32 v{D+2}, v{D+2}, v{D+3}
        v_xor_b32 v{D+1}, s{sTAG}, v{D+1}
        v_xor_b32 v{D+3}, s{sTAG}, v{D+3}
        v_or3_b32 v{D}, v{D}, v{D+1}, v{D+2}
        v_or_b32 v{D}, v{D}, v{D+3}
        v_cmp_ne_u32 vcc, 0, v{D}
        s_nop 0
        s_cbranch_vccz {ok}""")
        spin(C,lp,ok,CFG['lcs'])
        p(f"""s_branch {lp}
        {ok}:
        v_mov_b32 v{vt}, {F_DONE}
        s_mov_b64 exec, 1
        ds_add_u32 v{vt}, v{vt+1}
        s_mov_b64 exec, -1""")
        STAMP('lc2'); COUNT('nlc',C,SPIN)
        p(f"{sk}:")
    if CFG['mtw']=='sm':
        u=p.lab("smu"); j=p.lab("smj")
        def run(r,n,f):
            for i in range(n):
                if CFG['smx']==2: p(f"s_load_dwordx2 s[100:101], s[{r}:{r+1}], s{A} offset:{f(i)+60}")
                else: p(f"s_load_dword s100, s[{r}:{r+1}], s{A} offset:{f(i)}")
        p(f"""s_mul_i32 s{A}, s{sSLOT}, {20*3072}
        s_mul_i32 s{B}, s{sG}, 384
        s_add_u32 s{A}, s{A}, s{B}
        s_cmp_eq_u32 s{HW}, 0
        s_cbranch_scc0 {u}""")
        run(sWG,60,lambda i:(i//3)*3072+(i%3)*128)
        p(f"s_branch {j}\n{u}:")
        run(sWU,60,lambda i:(i//3)*3072+(i%3)*128)
        p(f"{j}:")
        if CFG['smd']:
            p(f"""s_lshl_b32 s{A}, s{sSLOT}, 1
            s_add_u32 s{A}, s{A}, s{HW}
            s_mul_i32 s{A}, s{A}, {24*1280}
            s_mul_i32 s{B}, s{sG}, 160
            s_and_b32 s{B}, s{B}, -128
            s_add_u32 s{A}, s{A}, s{B}""")
            run(sWD,48,lambda i:(i//2)*1280+(i%2)*128)
        STAMP('mt')
        if CFG['prof'] and any('mt2' in x for x in CFG['st']): p("s_waitcnt lgkmcnt(0)"); STAMP('mt2')
    if 'w3' in (CFG['wtw'],CFG['mtw']):
        fa=dict(G1=(F_G1,4),WOR=(F_WOR,2),WOD=(F_WOD,2),WO2=(F_WO2,2),DONE=(F_DONE,ND),PR=(F_PR,4),LD=(F_LD,1),RL=(F_H2,4))[CFG['mtg']]
        p(f"v_mov_b32 v{vt}, {fa[0]}")
        if CFG['mth']:
            nt_=p.lab("nomt")
            p(f"s_cmp_eq_u32 s{sHF}, 0\ns_cbranch_scc1 {nt_}")
        lds_wait(vt,vt+5,C,'gt',fa[1],1)
        wtouch('w3',0)
        if CFG['mth']:
            p(f"v_subrev_u32 v{vTM}, {20*3072}, v{vTM}")
            if CFG['mth']==2: p("s_waitcnt vmcnt(0)")
            wtouch('w3',0)
            p(f"{nt_}:")
        if CFG['dw3']: touch(vTD,sWD,CFG['mpair'])
        STAMP('mt')
        if CFG['prof'] and any('mt2' in x for x in CFG['st']): p("s_waitcnt vmcnt(0)"); STAMP('mt2')

def tr_addr(a0,t):
    tab=[[0,8],[4,12],[16,36],[20,28],[24,32]]
    pk=[sum((tab[u][rd]//4)<<(4*u) for u in range(5)) for rd in range(2)]
    A=sT+7; B=sT+8
    p(f"""s_mov_b32 s{A}, {pk[0]}
    s_mov_b32 s{B}, {pk[1]}
    v_bfe_u32 v{t}, v0, 2, 2
    v_mul_u32_u24 v{t}, 160, v{t}
    v_and_b32 v{t+1}, 3, v0
    v_mad_u32_u24 v{t}, v{t+1}, 40, v{t}
    v_lshrrev_b32 v{t+1}, 4, v0""")
    for s_ in range(5):
        p(f"""v_add_u32 v{t+2}, {4*s_}, v{t+1}
        v_mul_u32_u24 v{t+4}, 52, v{t+2}
        v_lshrrev_b32 v{t+4}, 8, v{t+4}
        v_mul_u32_u24 v{t+5}, 5, v{t+4}
        v_sub_u32 v{t+2}, v{t+2}, v{t+5}
        v_lshlrev_b32 v{t+2}, 2, v{t+2}
        v_mul_u32_u24 v{t+4}, 10, v{t+4}""")
        for rd in range(2):
            p(f"""v_bfe_u32 v{t+3}, s{(A,B)[rd]}, v{t+2}, 4
            v_add_u32 v{t+3}, v{t+3}, v{t+4}
            v_mul_u32_u24 v{t+3}, 640, v{t+3}
            v_add_u32 v{a0+2*s_+rd}, v{t+3}, v{t}""")
sBLK,sJ=sT+9,sT+10
def wo_ids():
    p(f"""s_lshr_b32 s{sBLK}, s{sSLOT}, 3
    s_lshl_b32 s{sJ}, s{sG}, 2
    s_add_u32 s{sBLK}, s{sBLK}, s{sJ}
    s_and_b32 s{sJ}, s{sSLOT}, 7""")
def clr_ids(A,B,C,D_):
    p(f"""s_lshr_b32 s{C}, s{sSLOT}, 3
    s_lshl_b32 s{B}, s{sG}, 2
    s_add_u32 s{C}, s{C}, s{B}
    s_lshl_b32 s{C}, s{C}, 3
    s_and_b32 s{B}, s{sSLOT}, 7
    s_add_u32 s{D_}, s{C}, s{B}
    s_lshr_b32 s{A}, s{D_}, 1
    s_mul_i32 s{A}, s{A}, 20480
    s_and_b32 s{B}, s{B}, 1
    s_mul_i32 s{B}, s{B}, 5120
    s_add_u32 s{A}, s{A}, s{B}
    s_add_u32 s{A}, s{A}, {OB}
    s_mul_i32 s{B}, s{sHH}, 10240
    s_add_u32 s{C}, s{A}, 10240
    s_add_u32 s{A}, s{A}, s{B}
    s_sub_u32 s{C}, s{C}, s{B}
    s_lshl_b32 s{D_}, s{D_}, 10
    s_add_u32 s{D_}, s{D_}, {PS}""")
def clears(part):
    A=sT+13; B=sT+14; C=sT+15; D_=sT+16; D=12; aL=16
    if part==0:
        clr_ids(A,B,C,D_)
        p(f"v_lshlrev_b32 v{aL}, 4, v0")
        for r in range(4): p(f"v_mov_b32 v{D+r}, -1")
        return
    st4=lambda so,off,sc: f"buffer_store_dwordx4 v[{D}:{D+3}], v{aL}, {S4(sWS)}, s{so} offen offset:{off} {sc}" if not (CFG['noclr']>>(0 if sc!='sc1' else 1))&1 else "s_nop 0"
    w2=p.lab("clw2"); w3=p.lab("clw3"); dn=p.lab("cldn")
    if CFG['hsent']:
        H_=sT+17; nh=p.lab("clnh")
        p(f"""s_cmp_eq_u32 s{sWAVE}, 3
        s_cbranch_scc1 {nh}
        s_lshl_b32 s{B}, s{sWAVE}, 8
        s_add_u32 s{B}, s{B}, s2
        s_sub_u32 s{H_}, s{B}, 384
        s_cselect_b32 s{H_}, s{B}, s{H_}
        s_cselect_b32 s{H_+1}, 3, 2
        s_cselect_b32 s{H_+2}, 0, {VH+10240-KH-20480}
        s_cselect_b32 s{H_+3}, 1, 0
        s_lshr_b32 s{B}, s{H_}, s{H_+1}
        s_lshl_b32 s{H_+1}, s{B}, s{H_+1}
        s_sub_u32 s{H_}, s{H_}, s{H_+1}
        s_mul_i32 s{H_}, s{H_}, 2560
        s_add_u32 s{H_}, s{H_}, s{H_+2}
        s_mul_i32 s{H_+1}, s{B}, 171
        s_lshr_b32 s{H_+1}, s{H_+1}, 9
        s_add_u32 s{B}, s{B}, s{H_+1}
        s_mul_i32 s{B}, s{B}, 20480
        s_lshl_b32 s{B}, s{B}, s{H_+3}
        s_add_u32 s{H_}, s{H_}, s{B}
        s_add_u32 s{H_}, s{H_}, {KH+20480}""")
        for o in (0,1024,1536): p(st4(H_,o,"sc1"))
        p(f"{nh}:")
    p(f"""s_cmp_ge_u32 s{sWAVE}, 2
    s_cbranch_scc1 {w2}
    s_mul_i32 s{B}, s{sWAVE}, 2560
    s_add_u32 s{A}, s{A}, s{B}""")
    for o in (0,1024,1536): p(st4(A,o,CFG['cpol']))
    p(f"""s_branch {dn}
    {w2}:
    s_cmp_eq_u32 s{sWAVE}, 3
    s_cbranch_scc1 {w3}
    s_mul_i32 s{C}, s2, 2560
    s_add_u32 s{C}, s{C}, {CAND}""")
    if 'c' in CFG['ptc']: p(f"v_lshlrev_b32 v228, 7, v0\ns_mov_b64 exec, {0x3ff if 'l' in CFG['ptc'] else 0xfffff}\nbuffer_load_dword v229, v228, {S4(sWS)}, s{C} offen\ns_mov_b64 exec, -1")
    for o in (0,1024,1536): p(st4(C,o,"sc1"))
    p(f"""s_branch {dn}
    {w3}:""")
    if CFG['osent']:
        if 'o' in CFG['ptc']: p(f"v_lshlrev_b32 v228, 7, v0\ns_mov_b32 exec_hi, 0xff\nbuffer_load_dword v229, v228, {S4(sWS)}, s{C} offen\ns_mov_b64 exec, -1")
        for o in range(4): p(st4(C,o*1024,"sc1"))
        p(f"s_add_u32 s{C}, s{C}, 4096"); p(st4(C,0,"sc1"))
    p(f"""s_cmp_ge_u32 s2, 24
    s_cbranch_scc1 {dn}
    s_lshl_b32 s{C}, s2, 10
    s_add_u32 s{C}, s{C}, {ACT}""")
    if 'a' in CFG['ptc']: p(f"v_lshlrev_b32 v228, 7, v0\ns_mov_b64 exec, 0xff\nbuffer_load_dword v229, v228, {S4(sWS)}, s{C} offen\ns_mov_b64 exec, -1")
    p(st4(C,0,"sc1"))
    p(f"{dn}:")
cU=sT+13; vC=84
def hclear_setup(isB):
    A=sT+15; B=sT+16; C=sT+17; D_=sT+18; H_=sT+17
    clr_ids(A,B,C,D_)
    if isB: p(f"""s_mul_i32 s{B}, s2, 2560
        s_add_u32 s{B}, s{B}, {CAND}
        s_add_u32 s{A}, s{C}, 2560
        s_cmp_eq_u32 s{HW}, 2
        s_cselect_b32 s{cU+1}, s{B}, s{A}
        s_mov_b32 s{cU}, s{C}""")
    else: p(f"""s_mul_i32 s{B}, s{HW}, 2560
        s_add_u32 s{cU+1}, s{A}, s{B}""")
    p(f"""s_lshl_b32 s{B}, s{HW}, 8
    s_add_u32 s{B}, s{B}, s2
    s_sub_u32 s{H_}, s{B}, 384
    s_cselect_b32 s{H_}, s{B}, s{H_}
    s_cselect_b32 s{H_+1}, 3, 2
    s_cselect_b32 s{H_+2}, 0, {VH+10240-KH-20480}
    s_cselect_b32 s{H_+3}, 1, 0
    s_lshr_b32 s{B}, s{H_}, s{H_+1}
    s_lshl_b32 s{H_+1}, s{B}, s{H_+1}
    s_sub_u32 s{H_}, s{H_}, s{H_+1}
    s_mul_i32 s{H_}, s{H_}, 2560
    s_add_u32 s{H_}, s{H_}, s{H_+2}
    s_mul_i32 s{H_+1}, s{B}, 171
    s_lshr_b32 s{H_+1}, s{H_+1}, 9
    s_add_u32 s{B}, s{B}, s{H_+1}
    s_mul_i32 s{B}, s{B}, 20480
    s_lshl_b32 s{B}, s{B}, s{H_+3}
    s_add_u32 s{H_}, s{H_}, s{B}
    s_add_u32 s{H_}, s{H_}, {KH+20480}""")
    if isB: p(f"""s_cmp_eq_u32 s{HW}, 2
        s_cselect_b32 s{cU}, s{H_}, s{cU}
        s_cselect_b32 s{cU+3}, 256, s2
        s_lshl_b32 s{cU+2}, s2, 10
        s_cmp_lt_u32 s{cU+3}, 24
        s_cselect_b32 s{H_}, 0, {STX+0x20000-ACT}
        s_add_u32 s{cU+2}, s{cU+2}, s{H_}
        s_add_u32 s{cU+2}, s{cU+2}, {ACT}""")
    else: p(f"""s_mov_b32 s{cU}, s{H_}
        s_getreg_b32 s{A}, hwreg(HW_REG_XCC_ID, 0, 4)
        s_or_b32 s{A}, s{A}, s{sTAG}
        v_mov_b32 v{vC+5}, s{A}
        s_lshl_b32 s{cU+2}, s2, 2
        s_add_u32 s{cU+2}, s{cU+2}, {H1}""")
    p(f"v_lshlrev_b32 v{vC+4}, 4, v0")
    for r in range(4): p(f"v_mov_b32 v{vC+r}, -1")
def hclear(c,isB):
    st=lambda so,off,sc: (p(f"buffer_store_dwordx4 v[{vC}:{vC+3}], v{vC+4}, {S4(sWS)}, s{so} offen offset:{off} {sc}"),OPS.append('clr'))
    ks=[k for k in range(2) if CFG['cst'][k]==c and (CFG['hsent'] or k or isB)]
    pol=lambda k: "sc1" if isB or k==0 else CFG['cpol']
    for k in ks: st(cU+k,0,pol(k)); st(cU+k,1024,pol(k))
    if ks: p(f"s_mov_b64 exec, s[{sLO}:{sLO+1}]")
    for k in ks: st(cU+k,2048,pol(k))
    if ks: p("s_mov_b64 exec, -1")
    if isB and c==CFG['cst'][1]:
        sk=p.lab("noact")
        p(f"s_cmp_lt_u32 s{cU+3}, 24\ns_cselect_b64 exec, -1, 1"); st(cU+2,0,"sc1"); p("s_mov_b64 exec, -1")
    if not isB and c==max(CFG['cst'])+2:
        p(f"s_mov_b64 exec, 1\nbuffer_store_dword v{vC+5}, v{vC+4}, {S4(sWS)}, s{cU+2} offen sc1\ns_mov_b64 exec, -1"); OPS.append('clr')
sSM=sT+11
def sm_setup():
    A=sT+20
    p(f"""s_and_b32 s{A}, s{HW}, 1
    s_lshl_b32 s{sSM}, s{sSLOT}, 1
    s_add_u32 s{A}, s{A}, s{sSM}
    s_mul_i32 s{sSM}, s{A}, {10*3072}
    s_mul_i32 s{A}, s{sG}, 384
    s_add_u32 s{sSM}, s{sSM}, s{A}
    s_lshl_b32 s{A}, s2, 2
    s_add_u32 s{A}, s{A}, s{HW}
    s_mul_i32 s{sSM+1}, s{A}, 800
    s_and_b32 s{sSM+1}, s{sSM+1}, -128""")
def sm_touch(c,isB):
    for opt,n,f in ((CFG['smw'],30,lambda i: f"s_load_dword s100, s[{(sWG,sWU)[isB]}:{(sWG,sWU)[isB]+1}], s{sSM} offset:{(i//3)*3072+(i%3)*128}"),
                    (CFG['smo'],7,lambda i: f"s_load_dword s100, s[{sWO}:{sWO+1}], s{sSM+1} offset:{i*128}")):
        if opt and opt[0]<=c<opt[1]:
            k=opt[1]-opt[0]
            for i in range(n*(c-opt[0])//k,n*(c+1-opt[0])//k): p(f(i))
def code_pf():
    A=sT+18
    p(f"""s_getpc_b64 s[{A}:{A+1}]
    L_pc:
    s_sub_u32 s{A}, s{A}, L_pc-{NAME}_kernel
    s_subb_u32 s{A+1}, s{A+1}, 0
    s_lshl_b32 s{A+2}, s{sSLOT}, 2
    s_add_u32 s{A+2}, s{A+2}, s{sWAVE}
    s_mul_i32 s{A+2}, s{A+2}, 384
    s_min_u32 s{A+2}, s{A+2}, (L_exit-{NAME}_kernel-384)&0xffffff80""")
    for i in range(3): p(f"s_load_dwordx2 s[100:101], s[{A}:{A+1}], s{A+2} offset:{i*128+60}")
def wave_sum(x,t):
    dp="row_mask:0xf bank_mask:0xf"
    for c in ("quad_perm:[1,0,3,2]","quad_perm:[2,3,0,1]","row_half_mirror","row_mirror"):
        p(f"s_nop 1\nv_add_f32_dpp v{x}, v{x}, v{x} {c} {dp}")
    for sw in (16,32):
        p(f"""v_mov_b32 v{t}, v{x}
        s_nop 1
        v_permlane{sw}_swap_b32 v{x}, v{t}
        s_nop 0
        v_add_f32 v{x}, v{x}, v{t}""")
sPF=sT+16
def pf_group(n=5):
    for i in range(n): p(f"s_load_dwordx2 s[100:101], s[{sWO}:{sWO+1}], s{sPF} offset:{i*128+60}")
    p(f"""s_add_u32 s{sPF}, s{sPF}, {n*128}
    s_sub_u32 s{sPF+2}, s{sPF+2}, 1
    s_add_u32 s{sPF+3}, s{sPF+1}, 12800
    s_cmp_eq_u32 s{sPF}, s{sPF+3}
    s_cselect_b32 s{sPF}, s{sPF+1}, s{sPF}""")
def helperB(steps):
    A=sT+7; B=sT+8; vt=2; aD=140; aT=146; aLin=12; D=40; WRr=32
    sO=sT+1; sL=sT+2; sL0=sT+3; sL1=sT+4; C=sT+5
    p("L_helperB:")
    vM=23; x=10; a=sT+16
    clr_ids(a,a+1,a+2,a+3)
    p(f"""s_mul_i32 s{a+1}, s{HW}, 25
    s_sub_u32 s{a+1}, s{a+1}, 50
    v_min_u32 v{x}, 24, v0
    v_add_u32 v{x}, s{a+1}, v{x}
    v_min_u32 v{x}, 48, v{x}
    s_sub_u32 s{a+3}, s{a+3}, {40*128}
    s_and_b32 s{a+1}, s{sSLOT}, 15
    s_lshl_b32 s{a+2}, s{sG}, 4
    s_add_u32 s{a+1}, s{a+1}, s{a+2}
    s_lshl_b32 s{a+1}, s{a+1}, 7
    s_add_u32 s{a+1}, s{a+1}, {FL-48*128}
    v_mov_b32 v{x+1}, s{a}
    v_mov_b32 v{x+2}, s{a+3}
    v_cmp_le_u32 vcc, 40, v{x}
    v_mov_b32 v{x+3}, s{a+1}
    s_mul_i32 s{a+1}, s{sSLOT}, {200*128}
    v_cndmask_b32 v{x+1}, v{x+1}, v{x+2}, vcc
    v_cmp_le_u32 vcc, 48, v{x}
    s_mul_i32 s{a}, s{HW}, {100*128}
    s_add_u32 s{a+1}, s{a+1}, s{a}
    v_cndmask_b32 v{x+1}, v{x+1}, v{x+3}, vcc
    v_lshl_add_u32 v{vM}, v{x}, 7, v{x+1}
    s_sub_u32 s{sPF+1}, s{a+1}, {200*128}
    s_mul_i32 s{sPF}, s{sG}, 5
    s_lshr_b32 s{sPF}, s{sPF}, 1
    s_mul_i32 s{sPF}, s{sPF}, 640
    s_add_u32 s{sPF}, s{sPF}, s{sPF+1}
    s_mov_b32 s{sPF+2}, 20
    v_lshlrev_b32 v{vH+4}, 4, v0
    v_add_u32 v{vH+4}, {H1}, v{vH+4}
    v_mul_u32_u24 v{WRr+5}, 20, v0""")
    aB=130; sK=sT+11; sN=sT+16; sS=sT+17
    def wo_setup():
        va=96
        wo_ids()
        T=[[0,2],[1,3],[4,9],[5,7],[6,8]]
        NIB=[sum((10*((4*s5+g_)//5)+T[(4*s5+g_)%5][rd]-(8*s5+2*g_-2))<<(4*(4*rd+g_)) for rd in range(2) for g_ in range(4)) for s5 in range(5)]
        for i in range(5):
            p(f"""v_add_u32 v{va}, {64*i}, v0
            v_mul_u32_u24 v{va+1}, 6554, v{va}
            v_lshrrev_b32 v{va+1}, 16, v{va+1}
            v_mul_u32_u24 v{va+2}, 10, v{va+1}
            v_sub_u32 v{va}, v{va}, v{va+2}
            v_and_b32 v{aB+5+i}, 28, v{va+1}
            v_and_b32 v{va+2}, 3, v{va+1}
            v_mul_u32_u24 v{va+2}, 1280, v{va+2}
            v_lshl_add_u32 v{va}, v{va}, 4, v{va+2}
            v_bfe_u32 v{va+1}, v{va+1}, 2, 2
            v_mul_u32_u24 v{va+1}, 10240, v{va+1}
            v_add_u32 v{aB+i}, v{va}, v{va+1}""")
            if 0<i<4: p(f"v_subrev_u32 v{aB+i}, {i*1024}, v{aB+i}")
        p(f"""s_lshr_b32 s{A}, s{sSLOT}, 3
        s_mul_i32 s{A}, s{A}, 5
        s_lshr_b32 s{A}, s{A}, 1
        s_add_u32 s{A}, s{A}, s{HW}
        s_sub_u32 s{sK}, s{A}, 2
        v_mov_b32 v{va}, 5120""")
        def woaddr(n):
            p(f"""s_add_u32 s{A}, s{sK}, {2*n}
            s_sub_u32 s{B}, s{A}, 10
            s_cselect_b32 s{A}, s{A}, s{B}
            s_sub_u32 s{B}, s{A}, 5
            s_cselect_b32 s{B}, s{A}, s{B}
            s_mul_i32 s{sS}, s{A}, 40960
            s_sub_u32 s{sS}, s{sS}, 10240
            s_mov_b32 s{sN}, {hex(NIB[0])}""")
            for k in range(1,5): p(f"s_cmp_eq_u32 s{B}, {k}\ns_cselect_b32 s{sN}, {hex(NIB[k])}, s{sN}")
            for i in range(5):
                p(f"""v_bfe_u32 v{va+1}, s{sN}, v{aB+5+i}, 4
                v_mad_u32_u24 v{va+1}, v{va+1}, v{va}, v{aB+i}
                v_add_u32 v{aD+5*n+i}, s{sS}, v{va+1}""")
        for n in range(5): woaddr(n)
    if CFG['wose']==0: wo_setup()
    npf=CFG['npf']
    for _ in range(npf[0]): pf_group()
    def hook(c):
        if c==(100 if CFG['hstep']==CFG['stg'] else CFG['hstep']):
            p(f"buffer_load_dwordx4 v[{vH}:{vH+3}], v{vH+4}, {S4(sWS)}, 0 offen sc1"); OPS.append('h1')
        if c==100:
            p(f"buffer_load_dwordx4 {vr(WRr,4)}, v{WRr+5}, {S4(sWR)}, 0 offen\nbuffer_load_dword v{WRr+4}, v{WRr+5}, {S4(sWR)}, 0 offen offset:16"); OPS.extend(['wr','wr'])
        if c==CFG['pt']:
            qkv_touch()
            OPS.extend(['pt']*wtouch('w1',1))
        if c==CFG['wts']: OPS.extend(['pt']*touch(vTW,sWO,0))
        if c==CFG['pt2']: OPS.extend(['pt']*touch(vM,sWS,CFG['qpair2'],CFG['tpol']))
    steps(hook,1)
    st=dict(n=0)
    def dma(cnt):
        for _ in range(min(cnt,50-st['n'])):
            n=st['n']; i=n%5; k=(n//5)%5
            if n==0 or n==25:
                p(f"""s_xor_b32 s{A}, s{sHH}, {n//25}
                s_mul_i32 s{sO}, s{A}, {320*1280}
                s_mul_i32 s{sL0}, s{A}, 51200
                s_add_u32 s{sL0}, s{sL0}, {L_WO}
                s_mul_i32 s{A}, s{sJ}, 160
                s_add_u32 s{sO}, s{sO}, s{A}""")
            if i==0: p(f"""s_add_u32 s{A}, s{sK}, {2*k}
                s_sub_u32 s{B}, s{A}, 10
                s_cselect_b32 s{A}, s{A}, s{B}
                s_mul_i32 s{sL}, s{A}, 5120
                s_add_u32 s{sL}, s{sL}, s{sL0}
                s_mov_b32 m0, s{sL}
                s_nop 0""")
            if i==4: p(f"s_add_u32 m0, s{sL}, 4096\ns_nop 0")
            p(f"buffer_load_dwordx4 v{aD+5*k+i}, {S4(sWO)}, s{sO} offen offset:{(i&3)*1024} {CFG['wopol']} lds")
            OPS.append('wo%d'%(n//25))
            st['n']+=1
    vmwait(8); p("s_barrier"); hook(8)
    p(f"v_lshlrev_b32 v{aLin}, 4, v0")
    vmwait(9); p("s_barrier"); hook(9)
    stats_fin(96,B)
    vmwait('h1')
    lp=p.lab("hello"); ok=p.lab("hello_ok"); ne=p.lab("noep")
    p(f"""s_mov_b32 s{A}, {SPIN}
    {lp}:
    v_xor_b32 v{vH}, s{sTAG}, v{vH}
    v_xor_b32 v{vH+1}, s{sTAG}, v{vH+1}
    v_xor_b32 v{vH+2}, s{sTAG}, v{vH+2}
    v_xor_b32 v{vH+3}, s{sTAG}, v{vH+3}
    v_or3_b32 v{vt}, v{vH}, v{vH+1}, v{vH+2}
    v_or_b32 v{vt}, v{vt}, v{vH+3}
    v_cmp_lt_u32 vcc, 15, v{vt}
    s_nop 0
    s_cbranch_vccz {ok}""")
    spin(A,lp,ok,4)
    p(f"""buffer_load_dwordx4 v[{vH}:{vH+3}], v{vH+4}, {S4(sWS)}, 0 offen sc1
    s_waitcnt vmcnt(0)
    s_branch {lp}
    {ok}:
    v_lshl_or_b32 v{vH}, v{vH+1}, 4, v{vH}
    v_lshl_or_b32 v{vH+2}, v{vH+3}, 4, v{vH+2}
    v_lshl_or_b32 v{vH}, v{vH+2}, 8, v{vH}
    v_and_b32 v{vt}, 1, v0
    v_readlane_b32 s{A}, v{vH}, 0
    v_readlane_b32 s{B}, v{vH}, 1
    v_cmp_eq_u32 vcc, 0, v{vt}
    v_mov_b32 v{vt+1}, s{A}
    v_mov_b32 v{vt+2}, s{B}
    v_cndmask_b32 v{vt+1}, v{vt+2}, v{vt+1}, vcc
    v_cmp_ne_u32 vcc, v{vt+1}, v{vH}
    v_mov_b32 v{vt}, {L_MODE}
    s_cmp_lg_u64 vcc, 0
    s_cselect_b32 s{sMODE}, 1, {CFG['force_slow']}
    v_mov_b32 v{vt+1}, s{sMODE}
    ds_write_b32 v{vt}, v{vt+1}
    s_barrier
    s_waitcnt lgkmcnt(0)
    s_barrier""")
    vmw=len(OPS)-1-max(i for i,t in enumerate(OPS) if t=='wr')
    STAMP('hE1')
    p(f"""v_mov_b32 v{vt}, 0x3f803f80
    v_mov_b32 v{vt+1}, 0
    s_waitcnt vmcnt({vmw})""")
    for k in range(5): p(f"v_dot2_f32_bf16 v{vt+1}, v{WRr+k}, v{vt}, v{vt+1}")
    p("s_nop 0")
    wave_sum(vt+1,vt+2)
    p(f"v_mov_b32 v{vt}, {L_SWS}\nds_write_b32 v{vt}, v{vt+1}")
    if CFG['wose']==1: wo_setup()
    if CFG['hst']: halo_copy(vt,A,B,C,wo_setup if CFG['wose']==2 else (lambda:None))
    else:
        halo_flag(vt,A,B,C)
        if CFG['wose']==2: wo_setup()
    p(f"""s_add_u32 s{A}, s2, s{HW}
    s_cmp_lg_u32 s{A}, 2
    s_cbranch_scc1 {ne}
    s_add_u32 s{A}, s{sEP}, 1
    v_mov_b32 v{vt}, {EPO}
    v_mov_b32 v{vt+1}, s{A}
    s_mov_b64 exec, 1
    buffer_store_dword v{vt+1}, v{vt}, {S4(sWS)}, 0 offen sc1
    s_mov_b64 exec, -1
    {ne}:""")
    if CFG['hkv']:
        att_ids()
        p(f"s_mov_b32 s{sK1024}, 1024")
        kv_addr(aLin,13,vt)
        own_setup(14,vt)
        own_kv(aLin,13,14,vt,sHO)
    p(f"v_mov_b32 v{vt}, {F_G1}")
    if CFG['wburst']:
        p(f"""s_lshl_b32 s{B}, s{sSLOT}, 1
        s_add_u32 s{B}, s{B}, s{HW}
        s_sub_u32 s{B}, s{B}, 2
        s_mul_i32 s{B}, s{B}, 12800
        v_lshl_add_u32 v{vTW}, v0, 7, s{B}
        v_min_u32 v{vTW+1}, 35, v0
        v_lshl_add_u32 v{vTW+1}, v{vTW+1}, 7, s{B}
        v_add_u32 v{vTW+1}, 8192, v{vTW+1}""")
        if CFG['wburst']==2: touch(vTW,sWO,0); touch(vTW+1,sWO,0)
    lds_wait(vt,vt+1,A,'gt',4,1)
    if CFG['wburst']==1: touch(vTW,sWO,0); touch(vTW+1,sWO,0)
    wtouch('w3',1)
    if CFG['wog2']:
        p(f"v_mov_b32 v{vt+2}, {F_G2}")
        lds_wait(vt+2,vt+1,A,'gt',2,1)
    STAMP('wo_s')
    del OPS[:]
    thr=CFG['wothr']; gs=CFG['wogs']; thr1=CFG['wothr1']
    def more(n,dyn=False):
        while n>0 and st['n']<50:
            k=min(gs,n)
            if dyn and thr1<thr and st['n']>=thr1:
                sk=p.lab("wog")
                p(f"""ds_read_b32 v{vt+1}, v{vt} offset:{(F_G2 if CFG['wgf']=='G2' else F_M)-F_G1}
                s_waitcnt lgkmcnt(0)
                v_cmp_gt_u32 vcc, {2 if CFG['wgf']=='G2' else 1}, v{vt+1}
                s_nop 0
                s_cbranch_vccz {sk}
                s_waitcnt vmcnt({max(0,thr1-k)})
                {sk}:""")
            if CFG['wpause'] and st['n']==CFG['wpause']:
                p(f"v_mov_b32 v{vt+2}, {F_RI}"); lds_wait(vt+2,vt+1,A,'gt',1,1); STAMP('wo_p')
            if st['n']>=thr: p(f"s_waitcnt vmcnt({max(0,thr-k)})")
            gi=st['n']//gs; a_,b_=CFG['mtr']
            dma(k); n-=k
            if CFG['mtw']=='wo' and a_<=gi<b_:
                l0=60*(gi-a_)//(b_-a_); l1=60*(gi+1-a_)//(b_-a_); msk=((1<<l1)-1)^((1<<l0)-1)
                u=p.lab("tu"); j=p.lab("tj")
                p(f"s_mov_b32 exec_lo, {hex(msk&0xffffffff)}\ns_mov_b32 exec_hi, {hex(msk>>32)}\ns_cmp_eq_u32 s{HW}, 2\ns_cbranch_scc0 {u}")
                touch(vTM,sWG,0); p(f"s_branch {j}\n{u}:"); touch(vTM,sWU,0); p(f"{j}:\ns_mov_b64 exec, -1")
                OPS.append('mt')
    def sig(f):
        p(f"""v_mov_b32 v{vt+2}, {f}
        v_mov_b32 v{vt+3}, 1
        s_mov_b64 exec, 1
        ds_add_u32 v{vt+2}, v{vt+3}
        s_mov_b64 exec, -1""")
    more(25+min(thr,15),True)
    vmwait('wo0')
    sig(F_WOR)
    STAMP('wo_0')
    more(50)
    sig(F_WOD)
    STAMP('wo_1')
    p("s_waitcnt vmcnt(0)")
    sig(F_WO2)
    STAMP('wo')

ACC=64; CS=128; XF=132; WF=148; SEL=164; aX=168; aW=172; aST=174; aSG=178; vT=2
sWR_,sWC,sLC,sTY,sSO,sHALO,sFO,sSO2=range(sT,sT+8)
def gemm_setup():
    t=vT; A=sT+10; B=sT+11
    wave_ids(sWAVE,sWR_,sWC,sLC,sTY)
    p(f"""v_and_b32 v{t}, 31, v0
    s_lshl_b32 s{A}, s{sWR_}, 6
    v_add_u32 v{t+1}, s{A}, v{t}
    v_lshlrev_b32 v{t+1}, 7, v{t+1}
    v_lshrrev_b32 v{t+2}, 5, v0
    v_bfe_u32 v{t+3}, v0, 1, 3
    v_xor_b32 v{t+3}, v{t+3}, v{t+2}
    v_lshl_add_u32 v{aX}, v{t+3}, 4, v{t+1}""")
    for s in range(1,4): p(f"v_xor_b32 v{aX+s}, {32*s}, v{aX}")
    p(f"""v_bfe_u32 v{t+3}, v0, 2, 2
    v_lshl_add_u32 v{t+4}, v{t+2}, 3, v{t+3}
    v_lshlrev_b32 v{t+4}, 8, v{t+4}
    s_lshl_b32 s{A}, s{sWC}, 1
    s_or_b32 s{A}, s{A}, s{sWR_}
    v_xor_b32 v{t+3}, s{A}, v{t+3}
    v_lshl_add_u32 v{t+4}, v{t+3}, 6, v{t+4}
    v_bfe_u32 v{t+3}, v0, 4, 1
    v_lshl_add_u32 v{t+4}, v{t+3}, 5, v{t+4}
    v_and_b32 v{t+5}, 3, v0
    v_lshl_add_u32 v{t+4}, v{t+5}, 3, v{t+4}
    v_add_u32 v{aW}, 16384, v{t+4}
    v_xor_b32 v{aW+1}, 64, v{aW}
    v_bfe_u32 v{t+4}, v0, 2, 1
    v_cmp_eq_u32 vcc, v{t+3}, v{t+4}
    v_mov_b32 v{t+5}, 0x3f803f80
    s_nop 0
    v_cndmask_b32 v{SEL}, 0, v{t+5}, vcc
    v_cndmask_b32 v{SEL+1}, 0, v{t+5}, vcc
    v_cndmask_b32 v{SEL+2}, 0, v{t+5}, vcc
    v_cndmask_b32 v{SEL+3}, 0, v{t+5}, vcc""")
    for r in list(range(ACC,ACC+64))+list(range(CS,CS+4)): p(f"v_mov_b32 v{r}, 0")
    store_addr(sWR_,sLC,sTY,sSO,sSO2,sHALO,sFO,aST,sT+10,sT+11)
    p(f"s_mov_b32 s{sHAL2}, s{sHALO}")
    if CFG['hst']: p(f"""s_mul_i32 s{A}, s{sWAVE}, 9216
        s_add_u32 s{A}, s{A}, {L_WO}
        v_lshl_add_u32 v{aSG}, v0, 4, s{A}""")
sHAL2=sDBG
def wave_ids(wave,wr,wc,lc,ty):
    p(f"""s_and_b32 s{wr}, s{wave}, 1
    s_lshr_b32 s{wc}, s{wave}, 1
    s_lshl_b32 s{lc}, s{sCT}, 1
    s_add_u32 s{lc}, s{lc}, s{wc}
    s_cmp_eq_u32 s{lc}, 5
    s_cselect_b32 s{lc}, 15, s{lc}
    s_cmp_gt_u32 s{sCT}, 2
    s_subb_u32 s{lc}, s{lc}, 0
    s_mul_i32 s{ty}, s{lc}, 52
    s_lshr_b32 s{ty}, s{ty}, 8""")
def store_addr(wr,lc,ty,so,so2,halo,fo,ast,A,B,t=2):
    p(f"""v_and_b32 v{t}, 31, v0
    v_lshrrev_b32 v{t+2}, 5, v0
    s_mul_i32 s{A}, s{ty}, 5
    s_sub_u32 s{A}, s{lc}, s{A}
    s_mul_i32 s{B}, s{sHH}, 5
    s_add_u32 s{A}, s{A}, s{B}
    s_lshl_b32 s{B}, s{sBK}, 1
    s_add_u32 s{B}, s{B}, s{wr}
    s_lshl_b32 s{B}, s{B}, 1""")
    isv=p.lab("isv"); jn=p.lab("stj")
    p(f"""s_cmp_ge_u32 s{ty}, 2
    s_cbranch_scc1 {isv}
    s_mul_i32 s{so}, s{B}, 2560
    s_mul_i32 s{B}, s{ty}, {KB}
    s_add_u32 s{so}, s{so}, s{B}
    s_add_u32 s{so2}, s{so}, 2560
    s_lshl_b32 s{A}, s{A}, 3""")
    for cb in range(2):
        for ip in range(2):
            p(f"""s_xor_b32 s{B}, s{wr}, {cb}
            s_lshl_b32 s{B}, s{B}, 2
            s_add_u32 s{B}, s{B}, s{A}
            s_add_u32 s{B}, s{B}, {2*ip}
            v_add_u32 v{t+3}, s{B}, v{t+2}
            v_mul_u32_u24 v{t+4}, 205, v{t+3}
            v_lshrrev_b32 v{t+4}, 10, v{t+4}
            v_mul_u32_u24 v{t+5}, 5, v{t+4}
            v_sub_u32 v{t+5}, v{t+3}, v{t+5}
            v_mul_u32_u24 v{t+4}, {64*2560}, v{t+4}
            v_lshl_add_u32 v{t+4}, v{t+5}, 9, v{t+4}
            v_lshl_add_u32 v{ast+2*cb+ip}, v{t}, 4, v{t+4}""")
    p(f"""s_branch {jn}
    {isv}:
    s_mul_i32 s{so}, s{B}, 1280
    s_add_u32 s{so}, s{so}, {VB}
    s_add_u32 s{so2}, s{so}, 1280
    s_lshl_b32 s{A}, s{A}, 6""")
    for cb in range(2):
        p(f"""s_xor_b32 s{B}, s{wr}, {cb}
        s_lshl_b32 s{B}, s{B}, 5
        s_add_u32 s{B}, s{B}, s{A}
        v_add_u32 v{t+3}, s{B}, v{t}
        v_mul_u32_u24 v{t+4}, 3277, v{t+3}
        v_lshrrev_b32 v{t+4}, 16, v{t+4}
        v_mul_u32_u24 v{t+5}, 20, v{t+4}
        v_sub_u32 v{t+5}, v{t+3}, v{t+5}
        v_mul_u32_u24 v{t+4}, 81920, v{t+4}
        v_lshl_add_u32 v{t+4}, v{t+5}, 4, v{t+4}
        v_mul_u32_u24 v{t+5}, 320, v{t+2}
        v_add_u32 v{ast+2*cb}, v{t+4}, v{t+5}
        v_add_u32 v{ast+2*cb+1}, 640, v{ast+2*cb}""")
    p(f"{jn}:")
    halo_cond(halo,A)
    if CFG['honly']: p(f"s_mul_i32 s{A}, s{halo}, {KH-KB}\ns_add_u32 s{so}, s{so}, s{A}\ns_add_u32 s{so2}, s{so2}, s{A}")
    p(f"""s_lshl_b32 s{fo}, s{sG}, 4
    s_add_u32 s{fo}, s{fo}, s{lc}
    s_lshl_b32 s{fo}, s{fo}, 5
    s_lshl_b32 s{A}, s{sRB}, 1
    s_add_u32 s{A}, s{A}, s{wr}
    s_add_u32 s{fo}, s{fo}, s{A}
    s_lshl_b32 s{fo}, s{fo}, 2
    s_add_u32 s{fo}, s{fo}, {FL}""")
def xf(buf,xb): return XF+8*buf+4*xb
def wf(buf,cb): return WF+8*buf+4*cb
def reads(kind,buf,par,s):
    L=[]
    for xb in range(2): L.append(f"ds_read_b128 {vr(xf(buf,xb),4)}, v{aX+s} offset:{par*32768+xb*4096}")
    if kind!='S':
        for cb in range(2):
            for rd in range(2): L.append(f"ds_read_b64_tr_b16 {vr(wf(buf,cb)+2*rd,2)}, v{aW+cb} offset:{par*32768+s*4096+rd*1024}")
        L=[L[2],L[3],L[0],L[1],L[4],L[5]]
    return L
def mfmas(kind,buf):
    L=[]
    if kind=='S':
        for xb in range(2):
            x=xf(buf,xb)
            L.append(f"v_mfma_f32_16x16x32_bf16 {vr(ACC+4*xb,4)}, {vr(SEL,4)}, {vr(x,4)}, {vr(ACC+4*xb,4)}")
            L.append(f"v_mfma_f32_4x4x4_16b_bf16 {vr(ACC+8+8*xb,4)}, {vr(x,2)}, {vr(x,2)}, {vr(ACC+8+8*xb,4)}")
            L.append(f"v_mfma_f32_4x4x4_16b_bf16 {vr(ACC+12+8*xb,4)}, {vr(x+2,2)}, {vr(x+2,2)}, {vr(ACC+12+8*xb,4)}")
        return L
    for cb in range(2):
        for xb in range(2):
            a=ACC+16*(2*xb+cb); X=vr(xf(buf,xb),4); W=vr(wf(buf,cb),4)
            L.append(f"v_mfma_f32_32x32x16_bf16 {vr(a,16)}, {W if kind=='T' else X}, {X if kind=='T' else W}, {vr(a,16)}")
    L.insert(2,f"v_mfma_f32_16x16x32_bf16 {vr(CS,4)}, {vr(SEL,4)}, {vr(wf(buf,0),4)}, {vr(CS,4)}")
    return L
def gemm_loop(kind):
    CNT=sT+10
    lp=p.lab("g"+kind)
    STAMP('rdy')
    p("s_barrier")
    STAMP('b0')
    for r in reads(kind,0,0,0): p(r)
    if CFG['clr']==1 and not CFG['hclr']: clears(1)
    cl_=p.lab("clr"); cr_=p.lab("clrr")
    if CFG['clr']>1:
        n0=len(p.L); p(f"{cl_}:"); clears(1); p(f"s_branch {cr_}")
        COLD.append("\n".join(p.L[n0:])); del p.L[n0:]
    hl=p.lab("hello"); hr=p.lab("hellor")
    if not CFG['hclr']:
        COLD.append(f"""{hl}:
        s_getreg_b32 s{CNT+1}, hwreg(HW_REG_XCC_ID, 0, 4)
        s_or_b32 s{CNT+1}, s{CNT+1}, s{sTAG}
        v_mov_b32 v{vT}, s{CNT+1}
        s_lshl_b32 s{CNT+1}, s2, 2
        s_add_u32 s{CNT+1}, s{CNT+1}, {H1}
        v_mov_b32 v{vT+1}, 0
        s_mov_b64 exec, 1
        buffer_store_dword v{vT}, v{vT+1}, {S4(sWS)}, s{CNT+1} offen sc1
        s_mov_b64 exec, -1
        s_branch {hr}""")
        p(f"s_lshl_b32 s{CNT+2}, s{sWAVE}, 3\ns_add_u32 s{CNT+2}, s{CNT+2}, {5-CFG['clr']}")
    p(f"s_mov_b32 s{CNT}, 5\n{lp}:")
    if CFG['clr']>1: p(f"s_cmp_eq_u32 s{CNT}, {6-CFG['clr']}\ns_cbranch_scc1 {cl_}\n{cr_}:")
    for k in range(1,5):
        if (CFG['cal'] and CFG['cal'][0]=='it%d'%(2*k)) or (CFG['amp'] and 'it%d'%(2*k) in CFG['amp'][:2]) or (CFG['prof'] and any('it%d'%(2*k) in n.split('|') for n in CFG['st'])):
            sk=p.lab("its"); p(f"s_cmp_lg_u32 s{CNT}, {5-k}\ns_cbranch_scc1 {sk}"); STAMP('it%d'%(2*k)); p(f"{sk}:")
    for par in range(2):
        for s in range(4):
            buf=s&1
            last=(s==3)
            M=mfmas(kind,buf)
            if CFG['nomfma']: M=M[:1]
            if last and par==1:
                pre=[f"v_xor_b32 v{aX+i}, 0x10000, v{aX+i}" for i in range(4)]+[f"v_xor_b32 v{aW+i}, 0x10000, v{aW+i}" for i in range(2)]
            else: pre=[]
            R=reads(kind,buf^1,(par^1) if last else par,(s+1)&3)
            p("s_waitcnt lgkmcnt(0)")
            if last:
                p(M.pop(0))
                for x in pre: p(x)
                if par==0 and not CFG['hclr'] and not CFG['lclr']:
                    w1=p.lab("cw"); w2=p.lab("cwr")
                    p(f"s_cmp_eq_u32 s{CNT}, {5-CFG['clr']}\ns_cbranch_scc1 {w1}\n{w2}:")
                    COLD.append(f"{w1}:\ns_waitcnt vmcnt(0)\ns_branch {w2}")
                p("s_barrier")
                if par==0 and not CFG['hclr']: p(f"s_cmp_eq_u32 s{CNT}, s{CNT+2}\ns_cbranch_scc1 {hl}\n{hr}:")
            k=0
            while M or R:
                if R: p(R.pop(0))
                if R: p(R.pop(0))
                if M: p(M.pop(0))
    p(f"""s_sub_u32 s{CNT}, s{CNT}, 1
    s_cmp_lg_u32 s{CNT}, 0
    s_cbranch_scc1 {lp}""")
    STAMP('gend')
def bf16r(dst,src):
    p(f"v_cvt_pk_bf16_f32 v{dst}, v{src}, v{src}\nv_and_b32 v{dst}, 0xffff0000, v{dst}")
def mode_read():
    p(f"""v_mov_b32 v{vT+8}, {L_MODE}
    ds_read_b32 v{vT+9}, v{vT+8}""")
def mode_get():
    p(f"v_readfirstlane_b32 s{sMODE}, v{vT+9}")
def dual(stores,pol='',sMODE=sMODE):
    sl=p.lab("slow"); jn=p.lab("jn")
    p(f"s_cmp_lg_u32 s{sMODE}, 0\ns_cbranch_scc1 {sl}")
    for s in stores: p(s+" "+pol)
    p(f"s_branch {jn}\n{sl}:")
    for s in stores: p(s+" sc1")
    p(f"{jn}:")
def idle_gemm():
    vt=10; aI=20; acc=28; one=32; D=64; A=sT+10
    p(f"""s_lshl_b32 s{A}, s{sWR_}, 13
    v_bfe_u32 v{vt}, v0, 1, 3
    v_lshlrev_b32 v{vt}, 4, v{vt}
    v_lshl_add_u32 v{vt}, v0, 7, v{vt}
    v_add_u32 v{aI}, s{A}, v{vt}
    v_mov_b32 v{one}, 0x3f803f80
    s_lshl_b32 s{A}, s{sG}, 2
    s_add_u32 s{A}, s{A}, s{sRB}
    s_lshl_b32 s{A}, s{A}, 14
    s_lshl_b32 s{A+1}, s{sWR_}, 10
    s_add_u32 s{A}, s{A}, s{A+1}
    s_add_u32 s{A}, s{A}, {STP+2*2048}
    v_lshlrev_b32 v{vt}, 4, v0""")
    for i in range(1,8): p(f"v_xor_b32 v{aI+i}, {16*i}, v{aI}")
    for i in range(4): p(f"v_mov_b32 v{acc+i}, 0")
    k=CFG['clr']
    for c in range(11):
        if c==1+2*k and not CFG['hclr']: p(f"s_waitcnt vmcnt({1 if k==1 else 0})")
        p("s_barrier")
        if k and c==2*k-2 and c!=2: clears(1)
        if c<3:
            if c==2:
                for i in range(8): p(f"v_add_u32 v{aI+i}, 0x10000, v{aI+i}")
            for i in range(8): p(f"ds_read_b128 {vr(D+4*i,4)}, v{aI+i} offset:{(c&1)*32768}")
            for i in range(8):
                p(f"s_waitcnt lgkmcnt({7-i})")
                for j in range(4):
                    r=D+4*i+j
                    p(f"v_dot2_f32_bf16 v{acc+(j&1)}, v{r}, v{one}, v{acc+(j&1)}\nv_dot2_f32_bf16 v{acc+2+(j&1)}, v{r}, v{r}, v{acc+2+(j&1)}")
        if c==2: p(f"""s_nop 1
            v_add_f32 v{acc}, v{acc}, v{acc+1}
            v_add_f32 v{acc+1}, v{acc+2}, v{acc+3}
            v_mov_b32 v{acc+2}, s{sTAG}
            buffer_store_dwordx4 {vr(acc,4)}, v{vt}, {S4(sWS)}, s{A} offen sc1""")
        if k==2 and c==2: clears(1)
    p("s_barrier")
    mode_read()
    p("s_waitcnt lgkmcnt(0)")
    mode_get()
HST=[]
def gemm_epi(kind):
    t=vT; A=sT+10
    AU=20
    WA=24
    XA=28
    RS=32
    p(f"""v_and_b32 v{t}, 31, v0
    s_lshl_b32 s{A}, s{sWC}, 1
    s_or_b32 s{A}, s{A}, s{sWR_}
    s_lshl_b32 s{A}, s{A}, 7
    s_add_u32 s{A}, s{A}, {L_CS}
    v_lshl_add_u32 v{t+1}, v{t}, 2, s{A}
    s_lshl_b32 s{A}, s{sWR_}, 9
    s_add_u32 s{A}, s{A}, {L_SA}
    v_lshl_add_u32 v{t+3}, v{t}, 3, s{A}
    ds_write_b32 v{t+1}, v{CS}
    v_xor_b32 v{t+2}, 128, v{t+1}
    v_mov_b32 v{WA+1}, 0
    v_mov_b32 v{WA+3}, 0
    v_mov_b32 v{XA+1}, 0
    v_mov_b32 v{XA+3}, 0""")
    if kind=='V':
        p(f"""v_lshrrev_b32 v{t+4}, 5, v0
        s_lshl_b32 s{A}, s{sWR_}, 8
        s_add_u32 s{A}, s{A}, {L_SR}
        v_lshl_add_u32 v{t+4}, v{t+4}, 4, s{A}""")
    p("s_waitcnt lgkmcnt(0)\ns_barrier")
    STAMP('E1',1)
    p(f"""ds_read_b32 v{CS+1}, v{t+2}
    ds_read_b64 v[{AU}:{AU+1}], v{t+3}
    ds_read_b64 v[{AU+2}:{AU+3}], v{t+3} offset:256""")
    mode_read()
    if kind=='V':
        for xb in range(2):
            for i in range(4): p(f"ds_read_b128 {vr(RS+16*xb+4*i,4)}, v{t+4} offset:{xb*128+i*32}")
    def split(cb):
        c=CS+cb
        p(f"""v_cndmask_b32 v{c}, 0, v{c}, s[{sLO}:{sLO+1}]
        v_cvt_pk_bf16_f32 v{t+5}, v{c}, v{c}
        v_and_b32 v{t+5}, 0xffff0000, v{t+5}
        v_sub_f32 v{t+6}, v{c}, v{t+5}
        v_cvt_pk_bf16_f32 v{WA+2*cb}, v{t+5}, v{t+6}""")
    split(0)
    p(f"s_waitcnt lgkmcnt({8 if kind=='V' else 0})")
    split(1)
    p(f"v_mov_b32 v{XA}, v{AU}\nv_mov_b32 v{XA+2}, v{AU+2}")
    mode_get()
    if kind=='T':
        p(f"""s_cmp_eq_u32 s{sTY}, 0
        s_cselect_b32 s{A}, {hex(f2u(20**-0.5*math.log2(math.e)))}, 1.0
        v_mul_f32 v{AU+1}, s{A}, v{AU+1}
        v_mul_f32 v{AU+3}, s{A}, v{AU+3}""")
    else: p("s_nop 0")
    for xb in range(2):
        for cb in range(2):
            a=ACC+16*(2*xb+cb); X=vr(XA+2*xb,2); W=vr(WA+2*cb,2)
            p(f"v_mfma_f32_32x32x8_bf16 {vr(a,16)}, {W if kind=='T' else X}, {X if kind=='T' else W}, {vr(a,16)}")
    p("s_waitcnt lgkmcnt(0)\ns_nop 7")
    if CFG['honly']: p(f"s_or_b32 s{sHALO}, s{sHALO}, s{sMODE}")
    allst=[]
    for xb in range(2):
        st=[]
        for cb in range(2):
            a=ACC+16*(2*xb+cb)
            for k in range(8):
                if kind=='T': p(f"v_pk_mul_f32 {vr(a+2*k,2)}, {vr(a+2*k,2)}, {vr(AU+2*xb,2)} op_sel:[0,1] op_sel_hi:[1,1]")
                else: p(f"v_pk_mul_f32 {vr(a+2*k,2)}, {vr(a+2*k,2)}, {vr(RS+16*xb+2*k,2)}")
            for k in range(8): p(f"v_cvt_pk_bf16_f32 v{a+k}, v{a+2*k}, v{a+2*k+1}")
            if kind=='T':
                p(f"""v_permlane32_swap_b32 v{a}, v{a+2}
                v_permlane32_swap_b32 v{a+1}, v{a+3}
                v_permlane32_swap_b32 v{a+4}, v{a+6}
                v_permlane32_swap_b32 v{a+5}, v{a+7}""")
            for h in range(2):
                st.append(f"buffer_store_dwordx4 {vr(a+4*h,4)}, v{aST+2*cb+h}, {S4(sWS)}, s{sSO2 if xb else sSO} offen")
                allst.append(a+4*h)
        dual(st,CFG['qpol'],sHALO if CFG['honly'] else sMODE)
    STAMP('st')
    if CFG['honly']:
        p(f"""v_mov_b32 v{t}, 0
        v_mov_b32 v{t+1}, s{sTAG}
        s_lshl_b32 s{A}, s{sWC}, 2
        s_add_u32 s{A}, s{A}, {F_STG}
        v_mov_b32 v{t+2}, s{A}
        v_mov_b32 v{t+3}, 1
        s_mov_b64 exec, 1
        s_waitcnt vmcnt(0)
        ds_add_u32 v{t+2}, v{t+3}""")
        dual([f"buffer_store_dword v{t+1}, v{t}, {S4(sWS)}, s{sFO} offen"])
        p("s_mov_b64 exec, -1")
        STAMP('fl')
        return
    nh=p.lab("nohalo"); jh=p.lab("jhalo")
    if CFG['hdef']>=0: A=sT+18
    hst=[f"buffer_store_dwordx4 {vr(allst[i],4)}, v{aST+(i&3)}, {S4(sWS)}, s{A+(i>>2)} offen sc1" for i in range(8)]
    p(f"""v_mov_b32 v{t}, 0
    v_mov_b32 v{t+1}, s{sTAG}
    s_add_u32 s{A}, s{sSO}, {KH-KB}
    s_add_u32 s{A+1}, s{sSO2}, {KH-KB}""")
    if CFG['hst']:
        p(f"s_cmp_eq_u32 s{sHALO}, 0\ns_cbranch_scc1 {nh}")
        for i in range(8): p(f"ds_write_b128 v{aSG}, {vr(allst[i],4)} offset:{i*1024}")
        for k in range(4): p(f"v_add_u32 v{t+4+k}, s{A}, v{aST+k}")
        p(f"""s_lshl_b32 s{A}, s{sWC}, 2
        s_add_u32 s{A}, s{A}, {F_STG}
        ds_write_b128 v{aSG}, {vr(t+4,4)} offset:8192
        v_mov_b32 v{t+2}, s{A}
        v_mov_b32 v{t+3}, 1
        s_mov_b64 exec, 1
        ds_add_u32 v{t+2}, v{t+3}
        s_waitcnt vmcnt(0)""")
        dual([f"buffer_store_dword v{t+1}, v{t}, {S4(sWS)}, s{sFO} offen"])
        p(f"""ds_add_u32 v{t+2}, v{t+3} offset:8
        s_branch {jh}
        {nh}:
        s_waitcnt vmcnt(0)
        s_mov_b64 exec, 1""")
        dual([f"buffer_store_dword v{t+1}, v{t}, {S4(sWS)}, s{sFO} offen"])
        p(f"{jh}:\ns_mov_b64 exec, -1")
        STAMP('fl')
        return
    if CFG['hdef']>=0:
        HST[:]=hst
        p("s_waitcnt vmcnt(0)")
    elif CFG['hearly']:
        p(f"s_cmp_eq_u32 s{sHALO}, 0\ns_cbranch_scc1 {nh}")
        for x in hst: p(x)
        p(f"s_waitcnt vmcnt(8)\ns_branch {jh}\n{nh}:\ns_waitcnt vmcnt(0)\n{jh}:")
    else: p("s_waitcnt vmcnt(0)")
    p("s_mov_b64 exec, 1")
    dual([f"buffer_store_dword v{t+1}, v{t}, {S4(sWS)}, s{sFO} offen"])
    p(f"s_mov_b64 exec, -1")
    if not CFG['hearly'] and CFG['hdef']<0:
        p(f"s_cmp_eq_u32 s{sHALO}, 0\ns_cbranch_scc1 {nh}")
        for x in hst: p(x)
        p(f"{nh}:")
    STAMP('fl')
import struct
def f2u(x): return struct.unpack("<I",struct.pack("<f",x))[0]

aLin,aTl,aKm,aKt,aV,aFl,aO,aQ0,aQ1=246,247,248,249,250,251,252,253,254
aKm1,aKt1,aV1=216,217,218
QM=[28,34]; QT=[32,38]; PP=40
KM=[48,62]; KT=[52,66]; VV=[[54,58],[68,72]]
SS=[80,96]; OO=[112,128]; CD=200; CF=230
cVM=8; sQ=[10,11]; sOm=[12,13]; sOt=[14,15]; cXO,cJ,cF,cK,cV,cL,cHO,cT0,cHX=range(16,25); sOSC=sT+15; sFB=sT+16; aWR=225
NINF="0xff800000"
def att_setup():
    t=vT; A=sT+7; B=sT+8; C=sT+17; sF=cF
    wo_pre1()
    att_ids()
    moe_role()
    p(f"v_mov_b32 v{aCLS}, 0x207")
    if CFG['hkv']: p(f"v_lshlrev_b32 v{aLin}, 4, v0\nv_mov_b32 v{aFl}, {F_G1}")
    else:
        flag_addr(aFl,t,1,A,B,C)
        p(f"""s_lshl_b32 s{sF}, s{sG}, 11
        s_lshl_b32 s{A}, s{sHF}, 4
        v_mov_b32 v{t}, s{A}
        v_cmp_gt_u32 vcc, 8, v0
        s_add_u32 s{sF}, s{sF}, {FL}
        s_mov_b32 s{sK1024}, 1024
        v_cndmask_b32 v{t}, 8, v{t}, vcc
        v_add_u32 v{aFl}, v{aFl}, v{t}""")
        kv_addr(aLin,aTl,t)
    p(f"""s_lshl_b32 s{A}, s{sHF}, 10
    s_add_u32 s{B}, s{A}, {L_KV}
    v_add_u32 v{aKm}, s{B}, v{aLin}
    s_sub_u32 s{B}, {L_KV+1024}, s{A}
    v_add_u32 v{aKm1}, s{B}, v{aLin}
    v_and_b32 v{t}, 31, v0
    v_lshrrev_b32 v{t+1}, 5, v0
    v_xor_b32 v{t+2}, s{sHO}, v{t+1}
    v_lshlrev_b32 v{t+2}, 3, v{t+2}
    v_lshl_add_u32 v{t+2}, v{t}, 4, v{t+2}
    s_lshl_b32 s{A}, s{sHF}, 9
    s_add_u32 s{B}, s{A}, {L_KV+2048}
    v_add_u32 v{aKt}, s{B}, v{t+2}
    s_sub_u32 s{B}, {L_KV+2048+512}, s{A}
    v_add_u32 v{aKt1}, s{B}, v{t+2}
    v_mul_u32_u24 v{t+2}, 320, v{t+1}
    v_lshl_add_u32 v{t+2}, v{t}, 4, v{t+2}
    s_mul_i32 s{A}, s{sHF}, 1280
    s_add_u32 s{B}, s{A}, {L_KV+3072}
    v_add_u32 v{aV}, s{B}, v{t+2}
    s_sub_u32 s{B}, {L_KV+3072+1280}, s{A}
    v_add_u32 v{aV1}, s{B}, v{t+2}
    v_lshlrev_b32 v{t+2}, 2, v{t+1}
    v_sub_u32 v{t+2}, v{t}, v{t+2}
    s_cmp_eq_u32 s{sHF}, 0
    s_cselect_b32 s{A}, {NINF}, 0
    s_cselect_b32 s{B}, 0, {NINF}
    v_mov_b32 v{t+3}, s{A}
    v_mov_b32 v{t+4}, s{B}""")
    for i in range(16):
        m=C+1+2*(i%2)+((C+1)%2)
        ri=8*(i>>2)+(i&3)
        p(f"v_cmp_le_i32 s[{m}:{m+1}], {ri}, v{t+2}")
        if i>0:
            m2=C+1+2*((i-1)%2)+((C+1)%2)
            if i==1: p("s_nop 0")
            p(f"v_cndmask_b32 v{CD+i-1}, v{t+3}, v{t+4}, s[{m2}:{m2+1}]\nv_cndmask_b32 v{CF+i-1}, v{t+4}, v{t+3}, s[{m2}:{m2+1}]")
    p(f"""s_nop 0
    v_cndmask_b32 v{CD+15}, v{t+3}, v{t+4}, s[{m}:{m+1}]
    v_cndmask_b32 v{CF+15}, v{t+4}, v{t+3}, s[{m}:{m+1}]
    v_cmp_eq_u32 s[{m}:{m+1}], 20, v{t}
    v_cmp_eq_u32 vcc, 24, v{t}
    s_mov_b32 s{cHO}, s{sHO}
    s_or_b64 s[{cVM}:{cVM+1}], vcc, s[{m}:{m+1}]""")
    p(f"""v_bfe_u32 v{t+2}, v0, 4, 1
    v_mul_u32_u24 v{t+2}, 20480, v{t+2}
    v_lshl_add_u32 v{t+2}, v{t+1}, 8, v{t+2}
    v_and_b32 v{t+3}, 15, v0
    v_lshl_add_u32 v{aO}, v{t+3}, 4, v{t+2}
    s_xor_b32 s{cHX}, s{sHF}, s{sHH}
    s_mov_b32 s{cT0}, s{sT0}
    s_lshl_b32 s{A}, s{sWAVE}, 1
    s_sub_u32 s{A}, 7, s{A}
    v_mul_u32_u24 v{t+2}, s{A}, v0
    s_add_u32 s{A}, s{sT0}, s{sWAVE}
    v_add_lshl_u32 v{aFO}, v{t+2}, s{A}, 12
    s_lshl_b32 s{A}, s{sHD}, 7
    s_add_u32 s{A}, s{A}, {FO}
    v_add_u32 v{aFO}, s{A}, v{aFO}""")
    for q in range(2):
        p(f"""s_sub_u32 s{A}, 7, s{sWAVE}
        s_cmp_eq_u32 s{sHF}, {q}
        s_cselect_b32 s{A}, s{A}, s{sWAVE}
        s_add_u32 s{A}, s{A}, s{sT0}""")
        p(f"""s_mul_i32 s{sQ[q]}, s{A}, 2560
        s_mul_i32 s{B}, s{sPH}, {64*2560}
        s_add_u32 s{sQ[q]}, s{sQ[q]}, s{B}
        s_mul_i32 s{A}, s{A}, 40960
        s_mul_i32 s{B}, s{sPH}, 1280
        s_add_u32 s{A}, s{A}, s{B}
        s_add_u32 s{A}, s{A}, {OB}
        s_mul_i32 s{B}, s{sHO}, 768
        s_add_u32 s{sOm[q]}, s{A}, s{B}
        s_lshl_b32 s{B}, s{sHO}, 3
        s_add_u32 s{sOt[q]}, s{A}, s{B}""")
    sK=cK; sV=cV; sL=cL
    if not CFG['hkv']: p(f"""s_lshl_b32 s{A}, s{sWAVE}, 1
    s_sub_u32 s{B}, -2, s{A}
    s_cmp_eq_u32 s{sHF}, 0
    s_cselect_b32 s{A}, s{A}, s{B}
    s_add_u32 s{A}, s{A}, s{sT0}
    s_mul_i32 s{sK}, s{A}, 2560
    s_mul_i32 s{sV}, s{A}, 1280
    s_mul_i32 s{A}, s{sPH}, {64*2560}
    s_add_u32 s{sK}, s{sK}, s{A}
    s_add_u32 s{sK}, s{sK}, {KB}
    s_mul_i32 s{A}, s{sHD}, 81920
    s_add_u32 s{sV}, s{sV}, s{A}
    s_add_u32 s{sV}, s{sV}, {VB}
    s_mul_i32 s{sL}, s{sWAVE}, 5632
    s_add_u32 s{sL}, s{sL}, {L_KV+4*5632}""")
    p(f"""s_mul_i32 s{A}, s{sHO}, 1536
    v_add_u32 v{aQ0}, s{A}, v{aLin}
    s_lshl_b32 s{A}, s{sHO}, 3
    v_add_u32 v{aQ1}, s{A}, v{aLin}""")
aXD=219; aXL=223; sLCX=25
def xr_loads():
    if CFG['xdma']:
        A=sT+7; B=sT+8
        p(f"""s_mul_i32 s{A}, s{sWAVE}, 2560
        s_add_u32 m0, s{A}, {L_STG}
        s_add_u32 s{A}, s{cXO}, 6720
        s_add_u32 s{B}, s{cXO}, 13440
        s_mov_b32 exec_hi, 0x0fffffff
        buffer_load_dwordx4 v{aXD}, {S4(sX)}, s{cXO} offen lds
        buffer_load_dwordx4 v{aXD}, {S4(sX)}, s{A} offen offset:960 lds
        s_mov_b32 exec_hi, 0xff
        buffer_load_dwordx4 v{aXD}, {S4(sX)}, s{B} offen offset:1920 lds
        s_mov_b32 m0, {L_SA}
        s_mov_b64 exec, 0x3ff
        buffer_load_dwordx4 v{aLin}, {S4(sWR)}, s{cJ} offen lds
        s_mov_b64 exec, -1""")
        return
    for o,n in ((0,4),(4,4),(8,2)): p(f"buffer_load_dwordx{n} {vr(XR+o,n)}, v{aX2}, {S4(sX)}, s{cXO} offen offset:{4*o}")
    for o,n in ((0,4),(4,4),(8,2)): p(f"buffer_load_dwordx{n} {vr(WR_+o,n)}, v{aWR}, {S4(sWR)}, s{cJ} offen offset:{4*o}")
def att_go():
    t=vT; A=sT+7; B=sT+8; C=sT+17
    nh=p.lab("nohs"); lp=p.lab("fp"); ok=p.lab("fpok"); md=p.lab("fpm")
    ld=f"buffer_load_dword v{t+10}, v{aFl}, {S4(sWS)}, s{cF} offen sc1"
    OWN=CFG['hsp']&2; sOWN=sT+19
    if OWN:
        assert not (CFG['hkv'] or CFG['hst'] or CFG['honly'] or CFG['hdef']>=0) and CFG['xru']>=0
        p(f"s_andn2_b32 s{sOWN}, s{sHAL2}, s{sMODE}\ns_cbranch_scc1 L_nold\n{ld}\nL_nold:")
    elif not CFG['hkv']: p(ld)
    p(f"""v_mov_b32 v{t+4}, 0x3f803f80
    s_or_b32 s{sOSC}, s{cHX}, s{sMODE}
    s_mov_b32 s{sFB}, 0
    s_mul_i32 s{A}, s{sMODE}, {OB2-OB}
    v_add_u32 v{aO}, s{A}, v{aO}""")
    HD=CFG['hdef']>=0
    def vvi(b_):
        for mm in range(2):
            for r in range(4): p(f"v_cndmask_b32 v{VV[b_][mm]+r}, 0, v{t+4}, s[{cVM}:{cVM+1}]")
    vvi(0)
    if not HD: vvi(1)
    for q in range(2): p(f"v_mov_b32 v{QT[q]}, 0\nv_mov_b32 v{QT[q]+1}, 0")
    if CFG['lclr']:
        for r in range(4): p(f"v_mov_b32 v{PP+r}, -1")
        p(f"""s_lshl_b32 s{A}, s2, 2
        s_add_u32 s{A}, s{A}, s{sWAVE}
        s_mul_i32 s{B}, s{A}, 640
        s_add_u32 s{B}, s{B}, {CAND}
        v_mov_b32 v{PP+5}, s{B}
        s_min_u32 s{B}, s{A}, 191
        s_lshl_b32 s{B}, s{B}, 7
        s_add_u32 s{B}, s{B}, {ACT-640}
        v_mov_b32 v{PP+6}, s{B}
        v_cmp_gt_u32 vcc, 40, v0
        s_cmp_lt_u32 s{A}, 192
        s_cselect_b32 s{sLCX}, 0xff00, 0
        s_or_b32 s{sLCX}, s{sLCX}, 0xff
        v_cndmask_b32 v{PP+5}, v{PP+6}, v{PP+5}, vcc
        v_add_u32 v{PP+4}, v{PP+5}, v{aLin}""")
    if CFG['osent']: wo_scal()
    assert CFG['hsent'] or not CFG['hkv']
    if CFG['hkv']:
        p(f"v_mov_b32 v{t+4}, {F_FS}"); lds_wait(t+4,t+5,C,'gt',1,0)
    else:
        if CFG['hst'] or HD or CFG['honly']: p(f"s_mov_b32 s{C}, {SPIN}\ns_waitcnt vmcnt(0)")
        else: p(f"""s_lshr_b32 s{A}, s{sWAVE}, 1
        s_lshl_b32 s{A}, s{A}, 2
        s_add_u32 s{A}, s{A}, {F_STG}
        v_mov_b32 v{t+4}, s{A}
        v_mov_b32 v{t+5}, 1
        {f"s_cmp_lg_u32 s{sOWN}, 0" if OWN else ""}
        {f"s_cbranch_scc1 L_own" if OWN else ""}
        s_mov_b32 s{C}, {SPIN}
        s_cmp_eq_u32 s{sHAL2}, 0
        s_waitcnt vmcnt(0)
        s_cbranch_scc1 {nh}
        s_mov_b64 exec, 1
        ds_add_u32 v{t+4}, v{t+5}
        s_mov_b64 exec, -1
        {nh}:""")
        STAMP('hack')
        p(f"""s_branch {md}
        {lp}:
        {ld}
        s_waitcnt vmcnt(0)
        {md}:
        v_cmp_ne_u32 vcc, s{sTAG}, v{t+10}
        s_nop 0
        s_cbranch_vccz {ok}""")
        spin(C,lp,ok)
        p(f"s_branch {lp}")
        if OWN:
            p(f"L_own:\nv_mov_b32 v{t+6}, {F_OWN}\ns_mov_b64 exec, 1\nds_add_u32 v{t+6}, v{t+5} offset:{F_FS-F_OWN+65536}\ns_mov_b64 exec, -1".replace(f"offset:{F_FS-F_OWN+65536}","") if 0 else f"L_own:\nv_mov_b32 v{t+6}, {F_FS}\ns_mov_b64 exec, 1\nds_add_u32 v{t+6}, v{t+5}\ns_mov_b64 exec, -1\nv_mov_b32 v{t+6}, {F_OWN}"); lds_wait(t+6,t+7,C,'gt',1,0)
        p(f"{ok}:")
    STAMP('fseen')
    if not CFG['hkv']: kv_dma(aLin,aTl,cK,cV,cL,A,B,cHO)
    for q in range(2): p(f"buffer_load_dwordx4 {vr(QM[q],4)}, v{aQ0}, {S4(sWS)}, s{sQ[q]} offen {CFG['ldp']}")
    p(f"s_mov_b64 exec, s[{sLO}:{sLO+1}]")
    for q in range(2): p(f"buffer_load_dwordx2 {vr(QT[q],2)}, v{aQ1}, {S4(sWS)}, s{sQ[q]} offen offset:1024 {CFG['ldp']}")
    if CFG['lclr']:
        assert not (HD or CFG['hkv'] or OWN) and CFG['xru']>CFG['lcu']
        st=[f"buffer_store_dwordx2 {vr(PP,2)}, v{aO}, {S4(sWS)}, s{sOt[q]} offen offset:512" for q in range(2)]+["s_mov_b64 exec, -1"]+[f"buffer_store_dwordx4 {vr(PP,4)}, v{aO}, {S4(sWS)}, s{sOm[q]} offen" for q in range(2)]
        p(f"s_cmp_lg_u32 s{sOSC}, 0\ns_cbranch_scc1 L_lcs")
        for x in st: p(x)
        p("s_branch L_lcj\nL_lcs:")
        for x in st: p(x+(" sc1" if x.startswith("buffer") else ""))
        p(f"L_lcj:\ns_mov_b32 exec_hi, s{sLCX}\nbuffer_store_dwordx4 {vr(PP,4)}, v{PP+4}, {S4(sWS)}, 0 offen sc1")
    if HD:
        assert CFG['xru']>CFG['hdef']
        n2=p.lab("nohd"); j2=p.lab("jhd")
        p(f"""s_mov_b64 exec, 1
        v_mov_b32 v{t}, {F_G1}
        v_mov_b32 v{t+1}, 1
        ds_add_u32 v{t}, v{t+1} offset:{F_FS-F_G1}
        s_mov_b64 exec, -1
        v_mov_b32 v{aFl}, {F_G1}
        s_cmp_eq_u32 s{sHAL2}, 0
        s_cbranch_scc1 {n2}""")
        g1=lambda n: p(f"s_mov_b64 exec, 1\ns_waitcnt vmcnt({n})\nds_add_u32 v{t}, v{t+1}\ns_mov_b64 exec, -1")
        if CFG['hdg']=='G1':
            g1(4); lds_wait(aFl,t+5,C,'gt',4,0)
            for x in HST: p(x)
            p("s_nop 1"); vvi(1)
        else:
            if CFG['hdg']=='FS': p(f"v_mov_b32 v{t+6}, {F_FS}"); lds_wait(t+6,t+5,C,'gt',4,0)
            for x in HST: p(x)
            p("s_nop 1"); vvi(1)
            g1(12); lds_wait(aFl,t+5,C,'gt',4,0)
        p(f"s_waitcnt vmcnt(8)\ns_branch {j2}\n{n2}:")
        vvi(1); g1(4); lds_wait(aFl,t+5,C,'gt',4,0)
        p(f"""s_waitcnt vmcnt(0)
        {j2}:
        s_lshr_b32 s{A}, s{sWAVE}, 1
        s_lshl_b32 s{A}, s{A}, 2
        s_add_u32 s{A}, s{A}, {F_STG}
        v_mov_b32 v{t+4}, s{A}""")
    elif CFG['hkv']: p("s_mov_b64 exec, -1")
    if CFG['lay'] and CFG['padk']==1:
        for w in range(3): p(f"s_cmp_eq_u32 s{sWAVE}, {w}\ns_cbranch_scc1 L_pv{w}")
        p("s_branch L_pv3\nL_kvb:")
    if not HD and not CFG['hkv']: p(f"""s_mov_b64 exec, 1
    v_mov_b32 v{t}, {F_G1}
    v_mov_b32 v{t+1}, 1
    {f"ds_add_u32 v{t}, v{t+1} offset:{F_FS-F_G1}" if 'FS' in CFG['gm']+CFG['gr'] else ""}
    {f"s_cmp_eq_u32 s{sOWN}, 0" if OWN else ""}
    {f"s_cbranch_scc1 L_nohk" if OWN else ""}
    {f"s_waitcnt vmcnt(10)" if OWN else ""}
    {f"ds_add_u32 v{t+4}, v{t+1}" if OWN else ""}
    {f"L_nohk:" if OWN else ""}
    s_waitcnt vmcnt({9 if CFG['lclr'] else 4})
    ds_add_u32 v{t}, v{t+1}
    s_mov_b64 exec, -1
    v_mov_b32 v{aFl}, {F_G1}""")
    if CFG['hkv']: lds_wait(aFl,t+5,C,'gt',4,0)
    if CFG['xru']<0: xr_loads()
    if not HD:
        if not CFG['hkv']: lds_wait(aFl,t+5,C,'gt',4,0)
        p(f"s_waitcnt vmcnt({6 if CFG['xru']<0 else 5 if CFG['lclr'] else 0})")
    STAMP('kv')
    p(f"""s_cmp_eq_u32 s{sWAVE}, 1
    s_cbranch_scc1 L_av1
    s_cmp_eq_u32 s{sWAVE}, 2
    s_cbranch_scc1 L_av2
    s_cmp_eq_u32 s{sWAVE}, 3
    s_cbranch_scc1 L_av3""")
    if CFG['lay']: p("s_branch L_av0")
PG=".p2alignl 12, 0xbf810000"
KVB=lambda b: 'L_kvb' if CFG['padk']==1 else f'L_pkb{b}'
def kreads(n,b_):
    o=(n>>1)*5632
    return [f"ds_read_b128 {vr(KM[b_],4)}, v{(aKm,aKm1)[n&1]} offset:{o}", f"ds_read_b64 {vr(KT[b_],2)}, v{(aKt,aKt1)[n&1]} offset:{o}"]
def vreads(n,b_):
    o=(n>>1)*5632; a=(aV,aV1)[n&1]
    return [f"s_mov_b64 exec, s[{sLO+2}:{sLO+3}]", f"ds_read_b128 {vr(VV[b_][0],4)}, v{a} offset:{o}", f"ds_read_b128 {vr(VV[b_][1],4)}, v{a} offset:{o+640}", "s_mov_b64 exec, -1"]
def att_variant(w):
    U=[]
    for n in range(15-w,8+w,-1): U.append((0,n))
    for n in range(8+w,6-w,-1): U+= [(0,n),(1,n)]
    for n in range(6-w,w-1,-1): U.append((1,n))
    assert len(U)==18
    diag=[15-w,8+w]
    tiles=[]; tau=[]
    for q,n in U:
        if not tiles or tiles[-1]!=n: tiles.append(n)
        tau.append(len(tiles)-1)
    first=[tau.index(i) for i in range(len(tiles))]
    started=[0,0]
    def QK(u):
        q,n=U[u]; b_=tau[u]&1; S=vr(SS[u&1],16)
        c=vr(CD,16) if n==diag[q] else (vr(CF,16) if n==diag[q]-8 else "0")
        return [f"v_mfma_f32_32x32x16_bf16 {S}, {vr(KM[b_],4)}, {vr(QM[q],4)}, {c}", f"v_mfma_f32_32x32x8_bf16 {S}, {vr(KT[b_],2)}, {vr(QT[q],2)}, {S}"]
    def PV(u,m):
        q,n=U[u]; O=vr(OO[q],16)
        c=O if started[q] else "0"; started[q]=1
        return f"v_mfma_f32_32x32x16_bf16 {O}, {vr(VV[tau[u]&1][m],4)}, {vr(PP+4*m,4)}, {c}"
    if CFG['lay']:
        p(PG)
        if CFG['padk']: p(f"L_pv{w}:\ns_branch {(('L_padW','L_padM',KVB(1),KVB(1)) if CFG['padk']<3 else ('L_pv1','L_pv2','L_pv3','L_padW'))[w]}")
    p(f"L_av{w}:")
    for i,f in enumerate(first):
        if f<=1:
            for x in kreads(tiles[i],i&1): p(x)
    for x in vreads(tiles[0],0): p(x)
    p("s_waitcnt lgkmcnt(0)")
    for x in QK(0): p(x)
    p("s_nop 7\ns_nop 3")
    pend=False
    H=first[tiles.index(7)]
    H2=first[tiles.index(3)]
    for u in range(18):
        S=SS[u&1]
        e=lambda i: p(f"v_exp_f32 v{S+i}, v{S+i}")
        c=lambda k: p(f"v_cvt_pk_bf16_f32 v{PP+k}, v{S+2*k}, v{S+2*k+1}")
        kr=[x for i,f in enumerate(first) if f==u+2 for x in kreads(tiles[i],i&1)]
        vr_=[x for i,f in enumerate(first) if f==u+1 for x in vreads(tiles[i],i&1)]
        late=(u+2 in (H,H2)); pre=(u+3 in (H,H2)); hk=int(u+3>=H2)
        STAMP('u%d'%u)
        e(0); e(1)
        if u>0: p(PV(u-1,1))
        if u==CFG['xru']: xr_loads()
        if u==CFG['hdef']:
            p(f"v_mov_b32 v{vT+5}, 1\ns_waitcnt vmcnt(0)\ns_mov_b64 exec, 1\nds_add_u32 v{vT+4}, v{vT+5}\ns_mov_b64 exec, -1")
            STAMP('hack')
        if CFG['lclr'] and u==CFG['lcu']:
            assert u<7
            p(f"s_waitcnt vmcnt(0)\ns_mov_b64 exec, 1\nds_add_u32 v{aFl}, v{vT+1} offset:{F_CC-F_G1}\ns_mov_b64 exec, -1")
        e(2)
        if not late:
            for x in kr: p(x)
        if pre: p(f"ds_read_b32 v{vT}, v{aFl} offset:{F_M+4*hk-F_G1}")
        e(3); c(0); c(1)
        if pend: p(f"s_waitcnt lgkmcnt({(len(kr) if not late else 0)+(1 if pre else 0)})")
        qk=QK(u+1) if u<17 else [None,None]
        if qk[0]: p(qk[0])
        e(4)
        if late:
            p(f"v_cmp_gt_u32 vcc, 1, v{vT}")
        e(5)
        if late:
            p(f"s_cbranch_vccnz L_g2w{w}{hk}\nL_g2r{w}{hk}:")
            for x in kr: p(x)
        for x in vr_: p(x)
        e(6); e(7); c(2); c(3)
        if qk[1]: p(qk[1])
        e(8); e(9); e(10); e(11)
        p(PV(u,0))
        c(4); c(5); e(12); e(13); e(14); e(15); c(6); c(7)
        pend=bool(kr or vr_ or pre)
        if u==H-1:
            p(f"s_cmp_eq_u32 s{cT0}, 0\ns_cbranch_scc1 L_ex{w}")
            exq=PV(u,1)
    p("s_nop 1")
    p(PV(17,1))
    p("s_branch L_afin")
    for hk in range(2):
        p(f"L_g2w{w}{hk}:")
        p(f"v_mov_b32 v{vT+1}, {F_M+4*hk}")
        lds_wait(vT+1,vT,sT+17,'gt',1,0)
        p(f"s_branch L_g2r{w}{hk}")
    p(f"L_ex{w}:\n{exq}")
    if 99>CFG['xru']>=H: xr_loads()
    p("s_waitcnt lgkmcnt(0)\ns_branch L_afin")
    p(f";@slot{w}")
def att_fin():
    t=vT; A=sT+7
    if CFG['lay']:
        p(PG)
        if CFG['padk']: p("L_padW:\ns_branch "+(KVB(0) if CFG['padk']<3 else 'L_padM'))
    p("L_afin:")
    STAMP('aend')
    p(f"s_mov_b32 s{A}, {hex(f2u(2.0**-40))}\ns_mov_b32 s{A+1}, {hex(f2u(2.0**40)-f2u(2.0**-40))}")
    for q in range(2):
        O=OO[q]
        p(f"""v_cndmask_b32 v{t}, v{O+8}, v{O+12}, s[{sLO}:{sLO+1}]
        v_pk_add_f32 v[{t+2}:{t+3}], v[{O}:{O+1}], v[{O+2}:{O+3}]
        v_rcp_f32 v{t+1}, v{t}
        v_pk_add_f32 v[{t+4}:{t+5}], v[{O+4}:{O+5}], v[{O+6}:{O+7}]
        v_pk_add_f32 v[{t+6}:{t+7}], v[{O+8}:{O+9}], v[{O+10}:{O+11}]
        v_subrev_u32 v{t}, s{A}, v{t}
        v_pk_add_f32 v[{t+2}:{t+3}], v[{t+2}:{t+3}], v[{t+4}:{t+5}]
        v_cmp_lt_u32 s[{A+11}:{A+12}], s{A+1}, v{t}
        v_pk_add_f32 v[{t+2}:{t+3}], v[{t+2}:{t+3}], v[{t+6}:{t+7}]
        v_add_f32 v{t+2}, v{t+2}, v{t+3}""")
        p(f"v_cmp_class_f32 vcc, v{t+2}, v{aCLS}")
        for k in range(6): p(f"v_pk_mul_f32 {vr(O+2*k,2)}, {vr(O+2*k,2)}, {vr(t,2)} op_sel:[0,1] op_sel_hi:[1,1]")
        p(f"""s_or_b64 vcc, vcc, s[{A+11}:{A+12}]
        s_cbranch_scc1 L_afb{q}
        L_afr{q}:""")
        for k in range(6): p(f"v_cvt_pk_bf16_f32 v{O+k}, v{O+2*k}, v{O+2*k+1}")
        p(f"s_cmp_lg_u32 s{sOSC}, 0")
        st=[f"buffer_store_dwordx4 {vr(O,4)}, v{aO}, {S4(sWS)}, s{sOm[q]} offen", f"s_mov_b64 exec, s[{sLO}:{sLO+1}]",
            f"buffer_store_dwordx2 {vr(O+4,2)}, v{aO}, {S4(sWS)}, s{sOt[q]} offen offset:512", "s_mov_b64 exec, -1"]
        p(f"s_cbranch_scc1 L_osc{q}")
        for x in st: p(x+(" "+CFG['apol'] if x.startswith("buffer") else ""))
        p(f"s_branch L_osr{q}\nL_osc{q}:")
        for x in st: p(x+(" sc1" if x.startswith("buffer") else ""))
        p(f"L_osr{q}:")
    p(f"""v_mov_b32 v{t}, {F_DONE}
    v_mov_b32 v{t+1}, 1
    s_mov_b64 exec, 1
    ds_add_u32 v{t}, v{t+1}
    s_mov_b64 exec, -1""")
    STAMP('ost')
aCLS=255; aFO=226; aFR=227
def att_cold():
    t=vT; A=sT+7; B=sT+8; N=sT+17; J=sT+18; CN=sT+19; PA=sT+20
    for q in range(2): p(f"L_afb{q}:\ns_cmp_lg_u32 s{sFB}, 0\ns_cbranch_scc1 L_afr{q}\ns_branch L_afb")
    p(f"L_afb:\ns_mov_b32 s{sFB}, 1\ns_waitcnt lgkmcnt(0)")
    S=SS[0]; MX=t+10; xa=t+11
    for q in range(2):
        lp=p.lab("fb"); nd=p.lab("fbnd"); nf=p.lab("fbnf"); p2=p.lab("fbp2"); nx=p.lab("fbnx"); ps=p.lab("fbps"); dn=p.lab("fbdn")
        for r in range(16): p(f"v_mov_b32 v{OO[q]+r}, 0")
        p(f"""v_mov_b32 v{MX}, {NINF}
        s_mov_b32 s{PA}, 0
        {ps}:""")
        if q==0: p(f"s_sub_u32 s{N}, 15, s{sWAVE}")
        else: p(f"s_add_u32 s{N}, 8, s{sWAVE}")
        p(f"""s_sub_u32 s{CN}, s{N}, 7
        s_cmp_eq_u32 s{cT0}, 0
        s_cselect_b32 s{CN}, s{CN}, 9
        s_mov_b32 s{J}, 0
        {lp}:
        s_lshr_b32 s{A}, s{N}, 1
        s_mul_i32 s{A}, s{A}, 5632
        s_bitcmp1_b32 s{N}, 0
        s_cselect_b64 vcc, -1, 0
        s_nop 0
        v_cndmask_b32 v{xa}, v{aKm}, v{aKm1}, vcc
        v_cndmask_b32 v{xa+1}, v{aKt}, v{aKt1}, vcc
        v_cndmask_b32 v{xa+2}, v{aV}, v{aV1}, vcc
        v_add_u32 v{xa}, s{A}, v{xa}
        v_add_u32 v{xa+1}, s{A}, v{xa+1}
        v_add_u32 v{xa+2}, s{A}, v{xa+2}
        ds_read_b128 {vr(KM[0],4)}, v{xa}
        ds_read_b64 {vr(KT[0],2)}, v{xa+1}
        s_mov_b64 exec, s[{sLO+2}:{sLO+3}]
        ds_read_b128 {vr(VV[0][0],4)}, v{xa+2}
        ds_read_b128 {vr(VV[0][1],4)}, v{xa+2} offset:640
        s_mov_b64 exec, -1
        s_waitcnt lgkmcnt(0)
        v_mfma_f32_32x32x16_bf16 {vr(S,16)}, {vr(KM[0],4)}, {vr(QM[q],4)}, 0
        v_mfma_f32_32x32x8_bf16 {vr(S,16)}, {vr(KT[0],2)}, {vr(QT[q],2)}, {vr(S,16)}
        v_mov_b32 v{xa}, {NINF}
        s_nop 11
        s_cmp_lg_u32 s{J}, 0
        s_cbranch_scc1 {nd}""")
        for r in range(16): p(f"v_cmp_eq_u32 vcc, 0, v{CD+r}\ns_nop 1\nv_cndmask_b32 v{S+r}, v{xa}, v{S+r}, vcc")
        p(f"{nd}:\ns_cmp_lg_u32 s{J}, 8\ns_cbranch_scc1 {nf}")
        for r in range(16): p(f"v_cmp_eq_u32 vcc, 0, v{CF+r}\ns_nop 1\nv_cndmask_b32 v{S+r}, v{xa}, v{S+r}, vcc")
        p(f"{nf}:\ns_cmp_lg_u32 s{PA}, 0\ns_cbranch_scc1 {p2}")
        for r in range(0,16,2): p(f"v_max3_f32 v{MX}, v{S+r}, v{S+r+1}, v{MX}")
        p(f"s_branch {nx}\n{p2}:")
        for r in range(16): p(f"v_sub_f32 v{S+r}, v{S+r}, v{MX}")
        for r in range(16): p(f"v_exp_f32 v{S+r}, v{S+r}")
        p("s_nop 0")
        for k in range(8): p(f"v_cvt_pk_bf16_f32 v{PP+k}, v{S+2*k}, v{S+2*k+1}")
        p("s_nop 1")
        for m in range(2): p(f"v_mfma_f32_32x32x16_bf16 {vr(OO[q],16)}, {vr(VV[0][m],4)}, {vr(PP+4*m,4)}, {vr(OO[q],16)}")
        p(f"""s_nop 11
        {nx}:
        s_sub_u32 s{N}, s{N}, 1
        s_add_u32 s{J}, s{J}, 1
        s_cmp_lt_u32 s{J}, s{CN}
        s_cbranch_scc1 {lp}
        s_cmp_lg_u32 s{PA}, 0
        s_cbranch_scc1 {dn}
        v_mov_b32 v{xa}, v{MX}
        s_mov_b32 s{PA}, 1
        s_nop 0
        v_permlane32_swap_b32 v{xa}, v{MX}
        s_nop 1
        v_max_f32 v{MX}, v{MX}, v{xa}
        s_branch {ps}
        {dn}:""")
    p("s_branch L_afin")

BF=28; AF=108; WACC=200; XR=176; WR_=186; aX2=196; aPS=197; aAL=198; aAR=199; SW=220; aL4=221; aPR=222; aKY=223; aCD=224
HP=40; HF_=50; LP=70; OP=80
sRT=sT+1; sOL=sT+2; sOR=sT+5; sXO=cXO; sPSO=sT+12; sRETRY=sT+13; sPRB=sT+14; sFLO=sT+16; sFRE=sT+18
def acc_init():
    for k in range(10): p(f"v_lshlrev_b32 v{WACC+2*k}, 16, v{XR+k}\nv_and_b32 v{WACC+2*k+1}, 0xffff0000, v{XR+k}")
def wo_pre1():
    t=vT; A=sT+7; B=sT+8
    wo_ids()
    p(f"""v_and_b32 v{t}, 15, v0
    v_lshrrev_b32 v{t+1}, 4, v0
    v_mul_u32_u24 v{aWR}, 40, v{t+1}
    v_mov_b32 v{t+3}, 1280
    v_mad_u32_u24 v{aX2}, v{t}, v{t+3}, v{aWR}
    s_lshl_b32 s{A}, s{sBLK}, 2
    s_add_u32 s{A}, s{A}, s{sWAVE}
    s_mul_i32 s{A}, s{A}, 20480
    s_mul_i32 s{cJ}, s{sJ}, 160
    s_add_u32 s{cXO}, s{A}, s{cJ}
    v_lshlrev_b32 v{aPS}, 7, v{t}
    v_lshl_add_u32 v{aPS}, v{t+1}, 5, v{aPS}
    v_lshlrev_b32 v{aFR}, 7, v{t}
    v_mul_u32_u24 v{t+2}, 640, v{t+1}
    v_bfe_u32 v{t+3}, v0, 2, 2
    v_mul_u32_u24 v{t+3}, 160, v{t+3}
    v_and_b32 v{t+4}, 3, v0
    v_mul_u32_u24 v{t+4}, 40, v{t+4}
    v_add3_u32 v{t+2}, v{t+2}, v{t+3}, v{t+4}
    s_mul_i32 s{A}, s{sHH}, 51200
    s_add_u32 s{B}, s{A}, {L_WO}
    v_add_u32 v{aAL}, s{B}, v{t+2}
    s_sub_u32 s{B}, {L_WO+51200}, s{A}
    v_add_u32 v{aAR}, s{B}, v{t+2}
    v_and_b32 v{t+2}, 7, v0
    v_mul_u32_u24 v{t+2}, 1280, v{t+2}
    v_bfe_u32 v{t+3}, v0, 3, 1
    v_lshl_add_u32 v{aPR}, v{t+3}, 7, v{t+2}""")
    if CFG['xdma']:
        assert 0<=CFG['xru']<99 and CFG['odn']==1
        p(f"""v_mul_u32_u24 v{t+2}, 6554, v0
        v_lshrrev_b32 v{t+2}, 16, v{t+2}
        v_mul_u32_u24 v{t+2}, 1120, v{t+2}
        v_lshl_add_u32 v{aXD}, v0, 4, v{t+2}
        s_mul_i32 s{B}, s{sWAVE}, 2560
        s_add_u32 s{B}, s{B}, {L_STG}
        v_mul_u32_u24 v{t+2}, 160, v{t}
        v_add3_u32 v{aXL}, v{t+2}, v{aWR}, s{B}
        v_add_u32 v{aWR}, {L_SA}, v{aWR}""")
    if CFG['wsp']:
        p(f"""s_and_b32 s{B}, s{sWAVE}, 1
        s_mul_i32 s{B}, s{B}, 25600
        v_add_u32 v{aAL}, s{B}, v{aAL}
        v_add_u32 v{aAR}, s{B}, v{aAR}
        s_lshr_b32 s{B}, s{sWAVE}, 1
        s_mul_i32 s{B}, s{B}, 10240
        s_add_u32 s{A}, s{A}, s{B}
        s_and_b32 s{B}, s{sWAVE}, 1
        s_lshl_b32 s{B}, s{B}, 10
        s_add_u32 s{A}, s{A}, s{B}
        s_add_u32 s{A}, s{A}, {L_WO}
        v_lshlrev_b32 v{aL4}, 4, v0
        v_add_u32 v{aPR}, s{A}, v{aL4}
        v_add_u32 v{aL4}, 4096, v{aL4}""")
def wo_pre2():
    acc_init()
def probe(soff,cnt,first=True):
    t=vT
    lp=p.lab("pb"); ok=p.lab("pbok"); md=p.lab("pbm")
    p(f"s_mov_b32 s{cnt}, {SPIN}")
    if not first: p(f"s_branch {md}")
    p(f"""{lp}:
    buffer_load_dwordx3 v[{t+4}:{t+6}], v{aPR}, {S4(sWS)}, s{soff} offen offset:512 sc1""")
    if not first: p(f"{md}:")
    p(f"""s_waitcnt vmcnt(0)
    v_max_u32 v{t+4}, v{t+4}, v{t+6}
    v_cmp_eq_u32 vcc, -1, v{t+4}
    s_nop 0
    s_cbranch_vccz {ok}""")
    spin(cnt,lp,ok)
    p(f"s_branch {lp}\n{ok}:")
def red3(a,b,c,d):
    p(f"""v_mov_b32 v{d}, v{c}
    s_nop 0
    v_permlane32_swap_b32 v{a}, v{b}
    v_permlane32_swap_b32 v{c}, v{d}
    s_nop 0
    v_add_f32 v{a}, v{a}, v{b}
    v_add_f32 v{c}, v{c}, v{d}
    s_nop 1
    v_permlane16_swap_b32 v{a}, v{c}
    s_nop 0
    v_add_f32 v{a}, v{a}, v{c}
    v_add_f32 v{c}, v{a}, 0
    s_nop 1
    v_permlane16_swap_b32 v{a}, v{c}
    s_nop 0
    v_mov_b32 v{b}, v{a}
    s_nop 1
    v_permlane32_swap_b32 v{a}, v{b}""")
def wo_scal():
    A=sT+7; B=sT+8
    wo_ids()
    p(f"""s_lshl_b32 s{sRT}, s{sBLK}, 2
    s_add_u32 s{sRT}, s{sRT}, s{sWAVE}
    s_mul_i32 s{A}, s{sRT}, 20480
    s_mul_i32 s{B}, s{sMODE}, {OB2-OB}
    s_add_u32 s{A}, s{A}, s{B}
    s_add_u32 s{A}, s{A}, {OB}
    s_mul_i32 s{B}, s{sHH}, 10240
    s_add_u32 s{sOL}, s{A}, s{B}
    s_add_u32 s{sOL+1}, s{sOL}, 4096
    s_add_u32 s{sOL+2}, s{sOL}, 8192
    s_add_u32 s{A}, s{A}, 10240
    s_sub_u32 s{sOR}, s{A}, s{B}
    s_lshl_b32 s{sPSO}, s{sRT}, 11
    s_add_u32 s{sPSO}, s{sPSO}, {PS}
    s_mov_b32 s{sRETRY}, {1<<16}
    s_add_u32 s{sOR+1}, s{sOR}, 4096
    s_add_u32 s{sPRB}, s{sOR}, 8192""")
    if CFG['wsp']:
        p(f"""s_and_b32 s{A}, s{sWAVE}, 1
        s_mul_i32 s{B}, s{A}, 5120
        s_add_u32 s{sOL}, s{sOL}, s{B}
        s_add_u32 s{sOR}, s{sOR}, s{B}
        s_mul_i32 s{B}, s{A}, -40960
        s_add_u32 s{B}, s{B}, 20480
        s_add_u32 s{sOL+1}, s{sOL}, s{B}
        s_add_u32 s{sOR+1}, s{sOR}, s{B}""")
def wo_flags():
    A=sT+7; B=sT+8
    p(f"""s_lshr_b32 s{A}, s{sRT}, 1
    s_lshl_b32 s{A}, s{A}, 12
    s_lshl_b32 s{B}, s{sHH}, 11
    s_add_u32 s{A}, s{A}, {FO}
    s_add_u32 s{sFLO}, s{A}, s{B}
    s_xor_b32 s{sFRE}, s{sFLO}, 2048""")
def wo_gemm():
    t=vT; A=sT+7; B=sT+8; C=sT+17; MXS=t+8
    sROFF=[sOR,sOR+1,sPRB]
    LA=CFG['wla']; WE=CFG['wwe']
    LG=[]
    def af(m): return AF+4*(m%15)
    def aread(m):
        s_,t_=divmod(m,5)
        for rd in range(2):
            p(f"ds_read_b64_tr_b16 {vr(af(m)+2*rd,2)}, v{aAL if s_<10 else aAR} offset:{(s_%10)*5120+rd*2560+8*t_}"); LG.append(m)
    def lgw(m):
        k=[i for i,x in enumerate(LG) if x!='x' and x<=m]
        if not k: return None
        n=len(LG)-1-max(k); del LG[:max(k)+1]; return n
    def bload(s_):
        so=(sOL+(s_%10)//4) if s_<10 else sROFF[(s_%10)//4]
        return f"buffer_load_dwordx4 {vr(BF+4*s_,4)}, v{aLin}, {S4(sWS)}, s{so} offen offset:{(s_%10%4)*1024} sc1"
    def cold(f):
        n0=len(p.L); f(); COLD.append("\n".join(p.L[n0:])); del p.L[n0:]
    p(f"s_cmp_lg_u32 s{sMODE}, 0\ns_cbranch_scc1 L_plsl\nL_plr:")
    def slow():
        p("L_plsl:"); wo_flags()
        p(f"""v_mov_b32 v{t+1}, s{sTAG}
        s_mov_b64 exec, 3
        s_waitcnt vmcnt(0)
        buffer_store_dword v{t+1}, v{aFO}, {S4(sWS)}, 0 offen sc1
        s_mov_b64 exec, -1""")
        flag_poll(aFR,t+4,sFLO,C); flag_poll(aFR,t+4,sFRE,C); p("s_branch L_plr")
    cold(slow)
    NI=CFG['oini']
    def dn():
        if CFG['odn']:
            p(f"v_mov_b32 v{t}, {F_DONE}"); lds_wait(t,t+1,C,'gt',4,0)
    if CFG['oprb']:
        p(f"buffer_load_dwordx3 v[{t+4}:{t+6}], v{aPR}, {S4(sWS)}, s{sOL} offen offset:512 sc1\ns_waitcnt vmcnt(5)")
    else:
        dn()
        for s_ in range(NI): p(bload(s_))
        p(f"s_waitcnt vmcnt({NI+4})")
    acc_init()
    p(f"v_mov_b32 v{t}, {F_WOR}")
    STAMP('fo')
    lds_wait(t,t+1,C,'gt',2,0)
    p(f"ds_read_b32 v{SW}, v{t} offset:{L_SWS-F_WOR}"); LG.append('x')
    STAMP('wor')
    if CFG['oprb']: dn()
    for m in range(LA): aread(m)
    p(f"v_mov_b32 v{t+7}, {F_WO2}\ns_mov_b32 s{sRETRY}, {SPIN}")
    if CFG['oprb']:
        probe(sOL,C,first=False)
        STAMP('prb')
        for s_ in range(NI): p(bload(s_))
    G={}; a=0
    for n in CFG['ogr']: G[a]=a+n; a+=n
    assert a==20 and 10 in G
    def chain(a,b):
        return [f"v_max_u32 v{MXS}, v{BF+4*a}, v{BF+4*a+2}"]+[f"v_max3_u32 v{MXS}, v{BF+4*k}, v{BF+4*k+2}, v{MXS}" for k in range(a+1,b)]
    cmp_=f"v_cmp_eq_u32 vcc, -1, v{MXS}"
    def retry(a,b):
        e=20 if (CFG['opoll']=='all' or a>=10) else 10
        def f():
            p(f"L_og{a}:\ns_sub_u32 s{sRETRY}, s{sRETRY}, 1\ns_cbranch_scc1 L_ogr{a}")
            sl=CFG['osl'][a//10]
            if sl: p(f"s_sleep {sl}")
            if CFG['opoll']=='probe' and a==0: probe(sOL,C)
            for k in range(a,e): p(bload(k))
            p(f"s_waitcnt vmcnt({20-b if e==20 else 0})")
            for x in chain(a,b): p(x)
            p(f"{cmp_}\ns_nop 0\ns_cbranch_vccnz L_og{a}\ns_branch L_ogr{a}")
        cold(f)
    last=lambda s_: (NI if s_<NI else 20)-1
    p(f"s_waitcnt vmcnt({last(0)+1-G[0]})")
    for x in chain(0,G[0]): p(x)
    p(f"{cmp_}\ns_nop 0\ns_cbranch_vccnz L_og0\nL_ogr0:"); retry(0,G[0])
    STAMP('pl')
    for m in range(100):
        s_,t_=divmod(m,5)
        nx=s_+1 if s_+1 in G else None
        if m==50:
            STAMP('pr')
            if 'PR' in (CFG['gstart'],CFG['dstart'],CFG['dgate'],CFG['mtg']):
                p(f"""s_mov_b64 exec, 1
                v_mov_b32 v{t+4}, {F_PR}
                v_mov_b32 v{t+5}, 1
                ds_add_u32 v{t+4}, v{t+5}
                s_mov_b64 exec, -1"""); LG.append('x')
        w=[]
        if nx is not None and t_==1: w.append(f"vmcnt({(20 if m>CFG['orem'] else NI)-G[nx]}"); assert G[nx]<=NI or m>CFG['orem']
        if m%WE==0:
            n=lgw(m+WE-1)
            if n is not None: w.append(f"lgkmcnt({n}")
        if w: p("s_waitcnt "+") ".join(w)+")")
        a_=vr(WACC+4*t_,4)
        p(f"v_mfma_f32_16x16x32_bf16 {a_}, {vr(af(m),4)}, {vr(BF+4*s_,4)}, {a_}")
        if NI<20 and m==CFG['orem']:
            for k in range(NI,20): p(bload(k))
        if m+LA==50-10: p(f"ds_read_b32 v{t+6}, v{t+7}"); LG.append('x')
        if m+LA==50:
            assert nx is None or t_<3
            p(f"v_cmp_gt_u32 vcc, 2, v{t+6}\ns_nop 0\ns_cbranch_vccnz L_wo2w\nL_wo2r:")
            def f():
                p("L_wo2w:"); lds_wait(t+7,t+6,C,'gt',2,0); p("s_branch L_wo2r")
            cold(f)
        if m+LA<100: aread(m+LA)
        if nx is not None:
            ch=chain(nx,G[nx]); k=-(-len(ch)//2)
            if t_==1:
                for x in ch[:k]: p(x)
            if t_==2:
                for x in ch[k:]: p(x)
            if t_==3: p(cmp_)
            if t_==4:
                if nx==10: STAMP('loc')
                p(f"s_cbranch_vccnz L_og{nx}\nL_ogr{nx}:"); retry(nx,G[nx])
    p(f"""v_mov_b32 v{t}, 0x3f803f80
    v_mov_b32 v{t+2}, 0
    v_mov_b32 v{t+3}, 0
    v_mov_b32 v{t+4}, 0
    s_nop 3""")
ACC2=148; aXW=222; aPQ=172; aBP=173
def wo_gemm2():
    t=vT; A=sT+7; B=sT+8; C=sT+17; MXS=t+8
    LA=CFG['wla2']
    LG=[]
    def af(m): return AF+4*(m%10)
    def aread(m,rds=(0,1)):
        s_,t_=divmod(m,5)
        for rd in rds:
            if CFG['wnoa'] and m>=LA and rd<CFG['wnoa']: continue
            p(f"ds_read_b64_tr_b16 {vr(af(m)+2*rd,2)}, v{aAL if s_<5 else aAR} offset:{(s_%5)*5120+rd*2560+8*t_}"); LG.append(m)
    def lgw(m):
        k=[i for i,x in enumerate(LG) if x!='x' and x<=m]
        if not k: return None
        n=len(LG)-1-max(k); del LG[:max(k)+1]; return n
    def bload(s_,us=(0,1)):
        for u in us:
            so=(sOL if s_<5 else sOR)+u
            p(f"buffer_load_dwordx4 {vr(BF+8*s_+4*u,4)}, v{aLin if s_%5<4 else aL4}, {S4(sWS)}, s{so} offen offset:{(s_%5%4)*1024} {CFG['ldo'] if s_<5 else 'sc1'}")
    def cold(f):
        n0=len(p.L); f(); COLD.append("\n".join(p.L[n0:])); del p.L[n0:]
    p(f"s_cmp_lg_u32 s{sMODE}, 0\ns_cbranch_scc1 L_plsl\nL_plr:")
    def slow():
        p("L_plsl:"); wo_flags()
        p(f"""v_mov_b32 v{t+1}, s{sTAG}
        s_mov_b64 exec, 3
        s_waitcnt vmcnt(0)
        buffer_store_dword v{t+1}, v{aFO}, {S4(sWS)}, 0 offen sc1
        s_mov_b64 exec, -1""")
        flag_poll(aFR,t+4,sFLO,C); flag_poll(aFR,t+4,sFRE,C); p("s_branch L_plr")
    cold(slow)
    XL=CFG['xru']==99
    XF_=lambda k: (230+2*k if k<8 else 168+2*(k-8))
    p(f"v_mov_b32 v{t}, {F_DONE}")
    if not XL: p("s_waitcnt vmcnt(4)")
    if CFG['xdma']:
        for k in range(5): p(f"ds_read_b64 {vr(XR+2*k,2)}, v{aXL} offset:{8*k}")
        for k in range(5): p(f"ds_read_b64 {vr(WR_+2*k,2)}, v{aWR} offset:{8*k}")
    if CFG['odn']==2 and not XL: acc_init()
    if CFG['odn']: lds_wait(t,t+1,C,'gt',ND,0)
    for s_ in range(5): bload(s_)
    if CFG['odn']!=2 and not XL: acc_init()
    p(f"v_mov_b32 v{t}, {F_WOR}")
    STAMP('fo')
    lds_wait(t,t+1,C,'gt',2,0)
    p(f"ds_read_b32 v{SW}, v{t} offset:{L_SWS-F_WOR}"); LG.append('x')
    STAMP('wor')
    for m in range(LA): aread(m)
    if CFG['psq']: p(f"v_lshrrev_b32 v{t+7}, 2, v0\nv_and_b32 v{aPQ}, 3, v0\nv_lshlrev_b32 v{aPQ}, 4, v{aPQ}\nv_lshl_add_u32 v{aPQ}, v{t+7}, 7, v{aPQ}")
    p(f"""v_mov_b32 v{t+7}, {F_WO2}
    s_mov_b32 s{sRETRY}, {SPIN}
    s_lshl_b32 s{A}, s{sWAVE}, 2
    s_add_u32 s{A}, s{A}, {F_X}
    v_mov_b32 v{t+10}, s{A}
    v_xor_b32 v{t+11}, 4, v{t+10}
    v_mov_b32 v{t+12}, 1""")
    G={}; a=0
    for n in CFG['ogr2']: G[a]=a+n; a+=n
    assert a==10 and 5 in G
    def chain(a,b):
        return [f"v_max_u32 v{MXS}, v{BF+8*a}, v{BF+8*a+2}"]+[f"v_max3_u32 v{MXS}, v{BF+4*k}, v{BF+4*k+2}, v{MXS}" for k in range(2*a+1,2*b)]
    cmp_=f"v_cmp_eq_u32 vcc, -1, v{MXS}"
    def retry(a,b):
        e=10 if a>=5 else 5
        def f():
            p(f"L_og{a}:\ns_sub_u32 s{sRETRY}, s{sRETRY}, 1\ns_cbranch_scc1 L_ogr{a}")
            sl=CFG['osl'][a//5]
            if sl: p(f"s_sleep {sl}")
            for k in range(a,e): bload(k)
            p(f"s_waitcnt vmcnt({20-2*b if e==10 and not (XL and CFG['xrd']>=0) else 0})")
            for x in chain(a,b): p(x)
            p(f"{cmp_}\ns_nop 0\ns_cbranch_vccnz L_og{a}\ns_branch L_ogr{a}")
        cold(f)
    RM={}
    for j in range(10): RM.setdefault(max(-1,int(CFG['orem2'][0]+j*CFG['orem2'][1])),[]).append(j)
    assert max(RM)<=24
    nis=10
    for j in RM.get(-1,()): bload(5+j//2,(j&1,)); nis+=1
    p(f"s_waitcnt vmcnt({nis-2*G[0]})")
    for x in chain(0,G[0]): p(x)
    p(f"{cmp_}\ns_nop 0\ns_cbranch_vccnz L_og0\nL_ogr0:"); retry(0,G[0])
    STAMP('pl')
    def mf(m,u):
        s_,t_=divmod(m,5)
        a_=vr((WACC,ACC2)[u]+4*t_,4)
        p(f"v_mfma_f32_16x16x32_bf16 {a_}, {vr(af(m),4)}, {vr(BF+8*s_+4*u,4)}, {0 if (u or XL) and s_==0 else a_}")
    WE=CFG['wwe2']
    mX=max(RM)+CFG['xrd']; nx_=0; nxat=0
    if XL and mX<0: xr_loads(); nx_=6; nxat=nis
    for m in range(45):
        s_,t_=divmod(m,5)
        nx=s_+1 if s_+1 in G else None
        if m==25:
            STAMP('pr')
            p(f"""s_mov_b64 exec, 1
            ds_add_u32 v{t+7}, v{t+12} offset:{F_LD-F_WO2}"""); LG.append('x')
            if CFG['prm']==25 and 'PR' in (CFG['gstart'],CFG['dstart'],CFG['dgate'],CFG['mtg']):
                p(f"v_mov_b32 v{t+4}, {F_PR}\nds_add_u32 v{t+4}, v{t+12}"); LG.append('x')
            p("s_mov_b64 exec, -1")
        if m==CFG['prm']!=25 and 'PR' in (CFG['gstart'],CFG['dstart'],CFG['dgate'],CFG['mtg']):
            p(f"s_mov_b64 exec, 1\nds_add_u32 v{t+7}, v{t+12} offset:{F_PR-F_WO2+65536 if F_PR<F_WO2 else F_PR-F_WO2}\ns_mov_b64 exec, -1" if 0 else f"s_mov_b64 exec, 1\nv_mov_b32 v{t+4}, {F_PR}\nds_add_u32 v{t+4}, v{t+12}\ns_mov_b64 exec, -1"); LG.append('x')
        w=[]
        if nx is not None and t_==1: w.append(f"vmcnt({nis+(nx_ if 2*G[nx]<=nxat else 0)-2*G[nx]}"); assert nis>=2*G[nx]
        n=lgw(m+WE-1) if m%WE==0 else None
        if n is not None: w.append(f"lgkmcnt({n}")
        if w: p("s_waitcnt "+") ".join(w)+")")
        mf(m,1)
        if m==25-2*LA-1: p(f"ds_read_b32 v{t+6}, v{t+7}"); LG.append('x')
        if m+LA==25:
            assert nx is None or t_<3
            p(f"v_cmp_gt_u32 vcc, 2, v{t+6}\ns_nop 0\ns_cbranch_vccnz L_wo2w\nL_wo2r:")
            def f():
                p("L_wo2w:"); lds_wait(t+7,t+6,C,'gt',2,0); p("s_branch L_wo2r")
            cold(f)
        if m==44-LA: p(f"ds_read_b32 v{t+6}, v{t+7} offset:{F_LD-F_WO2}"); LG.append('x')
        if m+LA<50: aread(m+LA,(0,) if CFG['wsplit'] else (0,1))
        mf(m,0)
        if m+LA<50 and CFG['wsplit']: aread(m+LA,(1,))
        for j in RM.get(m,()): bload(5+j//2,(j&1,)); nis+=1
        if XL and m==mX: xr_loads(); nx_=6; nxat=nis
        if XL and m==40: p("s_waitcnt vmcnt(0)")
        if XL and 40<=m<45:
            for k in (2*(m-40),2*(m-40)+1): p(f"v_lshlrev_b32 v{XF_(k)}, 16, v{XR+k}\nv_and_b32 v{XF_(k)+1}, 0xffff0000, v{XR+k}")
        if CFG['mtg']=='RL' and m==max(RM)+CFG['rld']:
            p(f"s_mov_b64 exec, 1\nv_mov_b32 v{t+4}, {F_H2}\nds_add_u32 v{t+4}, v{t+12}\ns_mov_b64 exec, -1"); LG.append('x')
        if nx is not None:
            ch=chain(nx,G[nx]); k=-(-len(ch)//2)
            if t_==1:
                for x in ch[:k]: p(x)
            if t_==2:
                for x in ch[k:]: p(x)
            if t_==3: p(cmp_)
            if t_==4:
                if nx==5: STAMP('loc')
                p(f"s_cbranch_vccnz L_og{nx}\nL_ogr{nx}:"); retry(nx,G[nx])
                STAMP('og%d'%nx)
    assert LA>=5 and 9 not in G
    for m in range(45,50):
        n=lgw(m)
        if n is not None: p(f"s_waitcnt lgkmcnt({n})")
        mf(m,1)
        if m==45:
            p(f"v_cmp_gt_u32 vcc, 4, v{t+6}\nv_mov_b32 v{t}, 0x3f803f80\ns_cbranch_vccnz L_ldw\nL_ldr:")
            def f():
                p(f"L_ldw:\nv_add_u32 v{t+7}, {F_LD-F_WO2}, v{t+7}"); lds_wait(t+7,t+6,C,'gt',4,0); p("s_branch L_ldr")
            cold(f)
    p(f"""v_mov_b32 v{t+2}, 0
    v_mov_b32 v{t+3}, 0
    v_mov_b32 v{t+4}, 0
    v_xor_b32 v{t+5}, 1024, v{aXW}""")
    for k in range(5):
        p(f"ds_write_b128 v{aXW}, {vr(ACC2+4*k,4)} offset:{2048*k}")
        mf(45+k,0)
    lp=p.lab("xw"); ok=p.lab("xok")
    STAMP('xw')
    p(f"""ds_write_b32 v{t+10}, v{t+12}
    s_mov_b32 s{C}, {SPIN*4}""")
    if XL:
        md=p.lab("xwm")
        p(f"ds_read_b32 v{t+6}, v{t+11}")
        for k in range(5): p(f"ds_read_b128 {vr(BF+4*k,4)}, v{t+5} offset:{2048*k}")
        for k in range(10): p(f"v_pk_add_f32 {vr(WACC+2*k,2)}, {vr(WACC+2*k,2)}, {vr(XF_(k),2)}")
        p(f"s_branch {md}")
    p(f"""{lp}:
    ds_read_b32 v{t+6}, v{t+11}""")
    for k in range(5): p(f"ds_read_b128 {vr(BF+4*k,4)}, v{t+5} offset:{2048*k}")
    if XL: p(f"{md}:")
    p(f"""s_waitcnt lgkmcnt(5)
    v_cmp_eq_u32 vcc, 0, v{t+6}
    s_nop 0
    s_cbranch_vccz {ok}""")
    spin(C,lp,ok)
    p(f"s_waitcnt lgkmcnt(0)\ns_branch {lp}\n{ok}:")
    for k in range(5):
        p(f"s_waitcnt lgkmcnt({4-k})")
        for j in range(2): p(f"v_pk_add_f32 {vr(WACC+4*k+2*j,2)}, {vr(WACC+4*k+2*j,2)}, {vr(BF+4*k+2*j,2)}")
def wo_gemm_old():
    t=vT; A=sT+7; B=sT+8; C=sT+17; MXS=t+8
    wo_scal(); wo_flags()
    p("s_waitcnt vmcnt(4)")
    acc_init()
    p(f"""v_mov_b32 v{t}, {F_WOR}
    v_mov_b32 v{t+1}, s{sTAG}
    s_cmp_eq_u32 s{sOSC}, 0
    s_cbranch_scc1 L_nofo
    s_mov_b64 exec, 3
    s_waitcnt vmcnt(0)
    buffer_store_dword v{t+1}, v{aFO}, {S4(sWS)}, 0 offen sc1
    s_mov_b64 exec, -1
    L_nofo:""")
    STAMP('fo')
    lds_wait(t,t+1,C,'gt',2,0)
    p(f"""ds_read_b32 v{SW}, v{t} offset:{L_SWS-F_WOR}
    L_wo:""")
    STAMP('wor')
    sROFF=[sOR,sOR+1,sPRB]
    LA=CFG['wla']; WE=CFG['wwe']
    LG=[]
    def af(m): return AF+4*(m%15)
    def aread(m):
        s_,t_=divmod(m,5)
        for rd in range(2):
            p(f"ds_read_b64_tr_b16 {vr(af(m)+2*rd,2)}, v{aAL if s_<10 else aAR} offset:{(s_%10)*5120+rd*2560+8*t_}"); LG.append(m)
    def lgw(m):
        k=[i for i,x in enumerate(LG) if x!='x' and x<=m]
        if not k: return None
        n=len(LG)-1-max(k); del LG[:max(k)+1]; return n
    def bload(s_):
        so=(sOL+(s_%10)//4) if s_<10 else sROFF[(s_%10)//4]
        return f"buffer_load_dwordx4 {vr(BF+4*s_,4)}, v{aLin}, {S4(sWS)}, s{so} offen offset:{(s_%10%4)*1024} sc1"
    for m in range(LA): aread(m)
    p(f"v_mov_b32 v{MXS}, 0\nv_mov_b32 v{t+7}, {F_WO2}")
    p(f"s_cmp_lg_u32 s{sMODE}, 0\ns_cbranch_scc1 L_plsl")
    probe(sOL,C)
    p("L_plr:")
    n0=len(p.L)
    p("L_plsl:"); flag_poll(aFR,t+4,sFLO,C); p("s_branch L_plr")
    COLD.append("\n".join(p.L[n0:])); del p.L[n0:]
    STAMP('pl')
    for s_ in range(10): p(bload(s_))
    p(f"buffer_load_dword v{t+4}, v{aFR}, {S4(sWS)}, s{sFRE} offen sc1")
    for m in range(100):
        s_,t_=divmod(m,5)
        if m==50:
            STAMP('loc')
            flag_poll(aFR,t+4,sFRE,C,first=False)
            STAMP('pr')
            for k in range(10,20): p(bload(k))
            if 'PR' in (CFG['gstart'],CFG['dstart'],CFG['dgate'],CFG['mtg']):
                p(f"""s_mov_b64 exec, 1
                v_mov_b32 v{t+4}, {F_PR}
                v_mov_b32 v{t+5}, 1
                ds_add_u32 v{t+4}, v{t+5}
                s_mov_b64 exec, -1"""); LG.append('x')
        w=[]
        if t_==0: w.append(f"vmcnt({(10-s_) if s_<10 else (19-s_)}")
        if m%WE==0:
            n=lgw(m+WE-1)
            if n is not None: w.append(f"lgkmcnt({n}")
        if w: p("s_waitcnt "+") ".join(w)+")")
        a_=vr(WACC+4*t_,4)
        p(f"v_mfma_f32_16x16x32_bf16 {a_}, {vr(af(m),4)}, {vr(BF+4*s_,4)}, {a_}")
        if m+LA==50-10: p(f"ds_read_b32 v{t+6}, v{t+7}"); LG.append('x')
        if m+LA==50:
            p(f"v_cmp_gt_u32 vcc, 2, v{t+6}\ns_nop 0\ns_cbranch_vccnz L_wo2w\nL_wo2r:")
            n0=len(p.L)
            p("L_wo2w:"); lds_wait(t+7,t+6,C,'gt',2,0); p("s_branch L_wo2r")
            COLD.append("\n".join(p.L[n0:])); del p.L[n0:]
        if m+LA<100: aread(m+LA)
        if t_==0 and s_<10: p(f"v_max3_u32 v{MXS}, v{BF+4*s_}, v{BF+4*s_+2}, v{MXS}")
    p(f"""v_cmp_eq_u32 vcc, -1, v{MXS}
    v_mov_b32 v{t}, 0x3f803f80
    v_mov_b32 v{t+2}, 0
    v_mov_b32 v{t+3}, 0
    v_mov_b32 v{t+4}, 0
    s_cbranch_vccnz L_woredo
    L_wook:""")
    COLD.append(f"L_woredo:\ns_sub_u32 s{sRETRY}, s{sRETRY}, 1\ns_cbranch_scc1 L_wook\ns_nop 7")
    q=P();
    COLD.append("\n".join(f"v_lshlrev_b32 v{WACC+2*k}, 16, v{XR+k}\nv_and_b32 v{WACC+2*k+1}, 0xffff0000, v{XR+k}" for k in range(10))+"\ns_branch L_wo")
def wo_main():
    t=vT; A=sT+7; B=sT+8; C=sT+17
    (wo_gemm2 if CFG['wsp'] else wo_gemm if CFG['osent'] else wo_gemm_old)()
    STAMP('wend')
    for k in range(10): p(f"v_cvt_pk_bf16_f32 v{HP+k}, v{WACC+2*k}, v{WACC+2*k+1}")
    for k in range(10):
        p(f"""v_dot2_f32_bf16 v{t+2}, v{HP+k}, v{t}, v{t+2}
        v_dot2_f32_bf16 v{t+4}, v{HP+k}, v{HP+k}, v{t+4}
        v_dot2_f32_bf16 v{t+3}, v{HP+k}, v{WR_+k}, v{t+3}""")
    p(f"""s_lshl_b32 s{A}, s{sJ}, 4
    s_add_u32 s{A}, s{A}, s{sPSO}""")
    red3(t+2,t+3,t+4,t+5)
    p(f"""v_mov_b32 v{t+5}, s{sTAG}
    s_mov_b64 exec, 0xffff
    s_cmp_lg_u32 s{sMODE}, 0
    s_cbranch_scc1 L_pssc
    buffer_store_dwordx4 {vr(t+2,4)}, v{aPS}, {S4(sWS)}, s{A} offen
    L_psr:""")
    if 'WE' in (CFG['gstart'],CFG['g2nd'][0],CFG['mtg']): p(f"s_mov_b64 exec, 1\nv_mov_b32 v{t+10}, {F_SCP}\nv_mov_b32 v{t+11}, 1\nds_add_u32 v{t+10}, v{t+11}")
    p("s_mov_b64 exec, -1")
    COLD.append(f"L_pssc:\nbuffer_store_dwordx4 {vr(t+2,4)}, v{aPS}, {S4(sWS)}, s{A} offen sc1\ns_branch L_psr")
    STAMP('ps')
    G=t+10
    lp=p.lab("ps"); ok=p.lab("psok"); md=p.lab("psm")
    Q=CFG['psq']
    ld=f"""buffer_load_dwordx4 {vr(G,4)}, v{aPQ if Q else aPS}, {S4(sWS)}, s{sPSO} offen sc1
    buffer_load_dwordx4 {vr(G+4,4)}, v{aPQ if Q else aPS}, {S4(sWS)}, s{sPSO} offen offset:{64 if Q else 16} sc1"""
    p(ld)
    for k in range(10): p(f"v_lshlrev_b32 v{HF_+2*k}, 16, v{HP+k}\nv_and_b32 v{HF_+2*k+1}, 0xffff0000, v{HP+k}")
    if CFG['dbg']:
        p(f"s_add_u32 s{A}, s{sXO}, {HB}")
        for o,n in ((0,4),(4,4),(8,2)): p(f"buffer_store_dwordx{n} {vr(HP+o,n)}, v{aX2}, {S4(sWS)}, s{A} offen offset:{4*o}")
    p(f"""s_lshl_b32 s{A}, s{sRT}, 4
    s_sub_u32 s{A}, 2047, s{A}
    {f"v_lshrrev_b32 v{t}, 2, v0" if Q else f"v_and_b32 v{t}, 15, v0"}
    v_sub_u32 v{t+9}, s{A}, v{t}
    v_lshlrev_b32 v{t+9}, 3, v{t+9}
    s_lshl_b32 s{A}, s{sWAVE}, 6
    s_add_u32 s{A}, s{A}, {L_KEYS}
    v_lshl_add_u32 v{aKY}, v{t}, 2, s{A}
    v_and_b32 v{t}, {3 if Q else 48}, v0
    v_lshlrev_b32 v{t}, {6 if Q else 2}, v{t}
    v_add_u32 v{t+8}, {L_KEYS}, v{t}
    {f"v_and_b32 v{t}, 15, v0" if Q else ""}
    {f"v_lshlrev_b32 v{aBP}, 4, v{t}" if Q else ""}
    s_mov_b32 s{C}, {SPIN}
    s_branch {md}
    {PG if CFG['lay'] else ""}
    {"L_padM:" if CFG['lay'] and CFG['padk'] else ""}
    {"s_branch "+KVB(0) if CFG['lay'] and CFG['padk'] else ""}
    {lp}:
    {ld}
    {md}:
    s_waitcnt vmcnt(0)
    v_cmp_ne_u32 vcc, s{sTAG}, v{G+3}
    v_cmp_ne_u32 s[{sT+14}:{sT+15}], s{sTAG}, v{G+7}
    v_pk_add_f32 {vr(t+4,2)}, {vr(G,2)}, {vr(G+4,2)}
    v_add_f32 v{t+6}, v{G+2}, v{G+6}
    s_or_b64 vcc, vcc, s[{sT+14}:{sT+15}]
    s_cbranch_scc0 {ok}""")
    spin(C,lp,ok)
    p(f"""s_branch {lp}
    {ok}:""")
    STAMP('psr'); COUNT('npsr',C,SPIN)
    if 'PS' in (CFG['g2nd'][0],CFG['gstart'],CFG['dstart'],CFG['dgate'],CFG['mtg']): p(f"""s_mov_b64 exec, 1
    v_mov_b32 v{G}, {F_PS}
    v_mov_b32 v{G+1}, 1
    ds_add_u32 v{G}, v{G+1}
    s_mov_b64 exec, -1""")
    M=t+4
    if Q:
        for qp in ("[1,0,3,2]","[2,3,0,1]"):
            for k in range(3): p(f"v_add_f32_dpp v{M+k}, v{M+k}, v{M+k} quad_perm:{qp} row_mask:0xf bank_mask:0xf")
    else: red3(M,M+1,M+2,M+3)
    p(f"""v_mul_f32 v{M}, {1/640!r}, v{M}
    v_mul_f32 v{M+2}, {1/640!r}, v{M+2}
    v_fma_f32 v{M+2}, -v{M}, v{M}, v{M+2}
    v_max_f32 v{M+2}, 0, v{M+2}""")
    bf16r(M+2,M+2)
    p(f"v_add_f32 v{M+2}, 0x3727c5ac, v{M+2}")
    bf16r(M+2,M+2)
    p(f"v_sqrt_f32 v{M+2}, v{M+2}")
    bf16r(M,M)
    bf16r(M+2,M+2)
    RS=t+2
    p(f"""v_rcp_f32 v{RS}, v{M+2}
    v_fma_f32 v{M+1}, -v{M}, v{SW}, v{M+1}
    v_mul_f32 v{M+1}, v{M+1}, v{RS}
    v_cvt_pk_bf16_f32 v{M+1}, v{M+1}, v{M+1}
    v_mul_f32 v{RS+1}, -v{M}, v{RS}
    v_ashrrev_i32 v{M+2}, 31, v{M+1}
    v_or_b32 v{M+2}, 0x80000000, v{M+2}
    v_xor_b32 v{M+1}, v{M+1}, v{M+2}
    v_and_b32 v{M+1}, 0xffff0000, v{M+1}
    v_or_b32 v{KEY}, v{M+1}, v{t+9}
    ds_write_b32 v{aKY}, v{KEY}""")
    K16=AF
    lp=p.lab("ky"); ok=p.lab("kyok"); md=p.lab("kym")
    def lfma():
        for k in range(10): p(f"v_pk_fma_f32 {vr(WACC+2*k,2)}, {vr(HF_+2*k,2)}, {vr(RS,2)}, {vr(RS,2)} op_sel:[0,0,1] op_sel_hi:[1,0,1]")
    def kread():
        for i in range(4): p(f"ds_read_b128 {vr(K16+4*i,4)}, v{t+8} offset:{16*i}")
    if Q:
        p(f"ds_bpermute_b32 v{RS}, v{aBP}, v{RS}\nds_bpermute_b32 v{RS+1}, v{aBP}, v{RS+1}")
        kread()
        p(f"s_mov_b32 s{C}, {SPIN*4}\ns_waitcnt lgkmcnt(4)")
        lfma()
        p(f"s_branch {md}\n{lp}:")
        kread()
        p(f"{md}:")
    else:
        lfma()
        p(f"s_mov_b32 s{C}, {SPIN*4}\n{lp}:")
        kread()
    p("s_waitcnt lgkmcnt(0)")
    p(f"v_max3_u32 v{t}, v{K16}, v{K16+1}, v{K16+2}")
    for i in range(3,15,2): p(f"v_max3_u32 v{t}, v{K16+i}, v{K16+i+1}, v{t}")
    p(f"""v_max_u32 v{t}, v{t}, v{K16+15}
    v_cmp_eq_u32 vcc, -1, v{t}
    v_mov_b32 v{t}, 0
    s_cbranch_vccz {ok}""")
    spin(C,lp,ok)
    p(f"s_branch {lp}\n{ok}:")
    STAMP('keys')
    m0_=sT+18
    for i in range(18):
        if i<16: p(f"v_cmp_gt_u32 s[{m0_+2*(i%2)}:{m0_+2*(i%2)+1}], v{K16+i}, v{KEY}") if False else None
    MK=[sT+14,sT+16,sT+18]
    for i in range(18):
        if i<16: m=MK[i%3]; p(f"v_cmp_gt_u32 s[{m}:{m+1}], v{K16+i}, v{KEY}")
        elif i==16: p("s_nop 0")
        if i>=2: m=MK[(i-2)%3]; p(f"v_addc_co_u32 v{t}, vcc, 0, v{t}, s[{m}:{m+1}]")
    if Q: p(f"""v_cvt_pk_bf16_f32 v{LP}, v{WACC}, v{WACC+1}
    v_cvt_pk_bf16_f32 v{LP+1}, v{WACC+2}, v{WACC+3}
    v_add_u32_dpp v{t}, v{t}, v{t} quad_perm:[1,0,3,2] row_mask:0xf bank_mask:0xf
    v_cvt_pk_bf16_f32 v{LP+2}, v{WACC+4}, v{WACC+5}
    v_cvt_pk_bf16_f32 v{LP+3}, v{WACC+6}, v{WACC+7}
    v_add_u32_dpp v{t}, v{t}, v{t} quad_perm:[2,3,0,1] row_mask:0xf bank_mask:0xf""")
    else: p(f"""v_mov_b32 v{t+1}, v{t}
    v_cvt_pk_bf16_f32 v{LP}, v{WACC}, v{WACC+1}
    v_cvt_pk_bf16_f32 v{LP+1}, v{WACC+2}, v{WACC+3}
    v_permlane32_swap_b32 v{t}, v{t+1}
    v_cvt_pk_bf16_f32 v{LP+2}, v{WACC+4}, v{WACC+5}
    v_add_u32 v{t}, v{t}, v{t+1}
    v_mov_b32 v{t+1}, v{t}
    v_cvt_pk_bf16_f32 v{LP+3}, v{WACC+6}, v{WACC+7}
    v_cvt_pk_bf16_f32 v{LP+4}, v{WACC+8}, v{WACC+9}
    v_permlane16_swap_b32 v{t}, v{t+1}
    v_cvt_pk_bf16_f32 v{LP+5}, v{WACC+10}, v{WACC+11}
    v_add_u32 v{t}, v{t}, v{t+1}""")
    p(f"""v_cmp_gt_u32 s[{sCAND}:{sCAND+1}], 8, v{t}
    v_or_b32 v{KEY}, v{KEY}, v{t}
    v_mov_b32 v{t+1}, {L_CA&~0xffff}
    v_lshl_add_u32 v{t+1}, v{t}, 3, v{t+1}
    v_mov_b32 v{KEY+1}, s{sTAG}
    s_cmp_lg_u32 s{sJ}, 0
    s_cbranch_scc1 L_noca
    {f"s_and_b32 exec_lo, s{sCAND}, 0x11111111" if Q else f"s_and_b32 exec_lo, s{sCAND}, 0xffff"}
    {f"s_and_b32 exec_hi, s{sCAND+1}, 0x11111111" if Q else "s_mov_b32 exec_hi, 0"}
    ds_write_b64 v{t+1}, {vr(KEY,2)} offset:{L_CA&0xffff}
    s_mov_b64 exec, 0xff
    s_cmp_lg_u32 s{sWAVE}, 0
    s_cbranch_scc1 {"L_cab" if CFG['jb'] else "L_noca"}
    v_lshlrev_b32 v{t+2}, 3, v0
    v_add_u32 v{t+3}, {L_CA}, v{t+2}
    s_lshl_b32 s{A}, s{sBLK}, 7
    s_add_u32 s{A}, s{A}, {CA}
    s_mov_b32 s{C}, {SPIN*4}
    L_cal:
    ds_read_b64 v[{t+4}:{t+5}], v{t+3}
    s_waitcnt lgkmcnt(0)
    v_cmp_ne_u32 vcc, s{sTAG}, v{t+5}
    s_nop 0
    s_cbranch_vccz L_caok""")
    spin(C,"L_cal","L_caok")
    p(f"""s_branch L_cal
    L_caok:
    buffer_store_dwordx2 v[{t+4}:{t+5}], v{t+2}, {S4(sWS)}, s{A} offen sc1
    {"L_cab:" if CFG['jb'] else ""}
    {"s_barrier" if CFG['jb'] else ""}
    L_noca:
    s_mov_b64 exec, -1""")
    STAMP('ca')
    if Q: p(f"ds_bpermute_b32 v{t}, v{aBP}, v{t}\nds_bpermute_b32 v{KEY}, v{aBP}, v{KEY}")
    for k in range(4 if Q else 6,10): p(f"v_cvt_pk_bf16_f32 v{LP+k}, v{WACC+2*k}, v{WACC+2*k+1}")
    p(f"""v_lshrrev_b32 v{t+1}, 4, v0
    v_mul_u32_u24 v{t+1}, 40, v{t+1}
    {"s_waitcnt lgkmcnt(0)" if Q else ""}
    {f"v_cmp_gt_u32 s[{sCAND}:{sCAND+1}], 8, v{t}" if Q else ""}
    v_mul_u32_u24 v{t}, 2560, v{t}
    v_add_u32 v{aCD}, v{t}, v{t+1}
    s_mul_i32 s{A}, s{sBLK}, 20480
    s_mul_i32 s{B}, s{sJ}, 160
    s_add_u32 s{A}, s{A}, s{B}
    s_add_u32 s{A}, s{A}, {CAND}
    s_and_b64 exec, s[{sCAND}:{sCAND+1}], -1
    s_cbranch_scc0 L_nocd""")
    for base,off in ((LP,0),(HP,1280)):
        if 'nocand' in CFG['xp'] or ('noh' in CFG['xp'] and off): continue
        for o,n in ((0,4),(4,4),(8,2)): p(f"buffer_store_dwordx{n} {vr(base+o,n)}, v{aCD}, {S4(sWS)}, s{A} offen offset:{off+4*o} sc1")
    p("L_nocd:\ns_mov_b64 exec, -1")
    if CFG['cae']:
        assert not CFG['odf'] and not CFG['xp']
        p(f"""s_lshl_b32 s{A}, s{sWAVE}, 5
        s_add_u32 s{A}, s{A}, s{sMI}
        s_cmp_ge_u32 s{A}, 17
        s_cbranch_scc1 L_nocae
        v_lshrrev_b32 v{t}, 3, v0
        v_and_b32 v{t+1}, 7, v0
        v_lshlrev_b32 v{t+1}, 3, v{t+1}
        v_lshl_add_u32 v22, v{t}, 7, v{t+1}
        s_mov_b32 s{B}, {CA}""")
        for i in range(4): p(f"buffer_load_dwordx2 {vr(12+2*i,2)}, v22, {S4(sWS)}, s{B} offen offset:{i*1024} sc1")
        p("L_nocae:")
    for k in range(10): p(f"v_pk_add_f32 {vr(WACC+2*k,2)}, {vr(WACC+2*k,2)}, {vr(HF_+2*k,2)}")
    for k in range(10): p(f"v_cvt_pk_bf16_f32 v{OP+k}, v{WACC+2*k}, v{WACC+2*k+1}")
    if CFG['odf']: p(f"s_cmp_lt_u32 s{sMI}, {CFG['odf']}\ns_cbranch_scc1 L_noo1")
    p(f"s_andn2_b64 exec, -1, s[{sCAND}:{sCAND+1}]")
    if not CFG['cae']: p("s_cbranch_scc0 L_noo1")
    if 'noout' not in CFG['xp']: out_store()
    p("L_noo1:")
    if 1: p(f"""s_mov_b64 exec, 1
    v_mov_b32 v{t+4}, {F_O1}
    v_mov_b32 v{t+5}, 1
    ds_add_u32 v{t+4}, v{t+5}
    s_mov_b64 exec, -1""")
    else: p("s_mov_b64 exec, -1")
    STAMP('o1')
KEY=228; sCAND=sT+20
def out_store():
    for o,n in ((0,4),(4,4),(8,2)): p(f"buffer_store_dwordx{n} {vr(OP+o,n)}, v{aX2}, {S4(sOUT)}, s{sXO} offen offset:{4*o} {CFG['opol']}")

def moe_weights():
    A=sT+7; B=sT+8; vt=2; D=40; aW_=12
    gu=p.lab("mwgu"); wr=p.lab("mwwr"); en=p.lab("mwend")
    FA=dict(WOD=(F_WOD,2),PR=(F_PR,4),O1=(F_O1,4),DONE=(F_DONE,ND),G2=(F_G2,2),PS=(F_PS,4),WO2=(F_WO2,2),WE=(F_SCP,4),TOP=(L_TOP,0))
    def gate(k):
        p(f"v_mov_b32 v{vt+4}, {FA[k][0]}")
        if k=='TOP': lds_wait(vt+4,vt+5,sT+5,'eq',-1,2)
        else: lds_wait(vt+4,vt+5,sT+5,'gt',FA[k][1],2)
    pl_=p.lab("mwpl")
    p(f"""s_cmp_ge_u32 s{sMI}, 17
    s_cbranch_scc1 {pl_}
    v_bfe_u32 v{vt}, v0, 3, 2
    v_lshrrev_b32 v{vt+1}, 5, v0
    v_lshlrev_b32 v{vt}, 1, v{vt}
    v_add_lshl_u32 v{vt}, v{vt}, v{vt+1}, 2
    v_bfe_u32 v{vt+1}, v0, 1, 2
    v_add_u32 v{vt}, v{vt}, v{vt+1}
    v_and_b32 v{vt+1}, 1, v0
    v_lshlrev_b32 v{vt+1}, 4, v{vt+1}
    s_cmp_lt_u32 s{sMI}, 12
    s_cbranch_scc1 {gu}
    v_mul_u32_u24 v{vt}, 1280, v{vt}
    v_add_u32 v{aW_}, v{vt}, v{vt+1}
    s_mul_i32 s{A}, s{sG}, 5
    s_add_u32 s{A}, s{A}, s{sMI}
    s_sub_u32 s{A}, s{A}, 12
    s_lshl_b32 s{A}, s{A}, 5
    s_mul_i32 s{B}, s{HW}, {12*32*1280}
    s_add_u32 s{A}, s{A}, s{B}""")
    gate(CFG['dstart'])
    STAMP('mg')
    for s_ in range(12):
        if s_>=CFG['ddep']: p(f"s_waitcnt vmcnt({CFG['ddep']-1})")
        p(f"buffer_load_dwordx4 {vr(D+4*s_,4)}, v{aW_}, {S4(sWD)}, s{A} offen {CFG['mpol']}")
        if s_<11: p(f"s_add_u32 s{A}, s{A}, {32*1280}")
    p(f"""s_mul_i32 s{B}, s{HW}, 12288
    s_branch {wr}
    {pl_}:""")
    for g_,h_ in CFG['wb']:
        sk=p.lab("nowb")
        p(f"s_lshl_b32 s{A}, s{sSLOT}, 2\ns_add_u32 s{A}, s{A}, s{HW}\ns_cmp_lg_u32 s{A}, {4*CFG['wbs']+h_}\ns_cbranch_scc1 {sk}")
        if g_!='no': gate(g_)
        p(f"buffer_wbl2 sc1\ns_waitcnt vmcnt(0)\n{sk}:")
    if CFG['dgate']!='no' and not CFG['dw3']:
        if CFG['dtn']: p(f"s_cmp_ge_u32 s{sMI}, 28\ns_cbranch_scc1 {en}")
        gate(CFG['dgate'])
        touch(vTD,sWD,CFG['mpair'])
        if CFG['dtn']: p("s_mov_b64 exec, 63"); touch(vTD2,sWD,0); p("s_mov_b64 exec, -1")
        STAMP('mg')
        if CFG['prof']: p("s_waitcnt vmcnt(0)"); STAMP('mw')
    p(f"""s_branch {en}
    {gu}:
    v_mul_u32_u24 v{vt}, 3072, v{vt}
    v_add_u32 v{aW_}, v{vt}, v{vt+1}
    s_mul_i32 s{A}, s{sG}, 12
    s_add_u32 s{A}, s{A}, s{sMI}
    s_lshl_b32 s{A}, s{A}, 5
    s_mul_i32 s{B}, s{HW}, {5*32*3072}
    s_add_u32 s{A}, s{A}, s{B}""")
    gate(CFG['gstart'])
    STAMP('mg')
    for s_ in range(5):
        for m_ in range(2):
            if 2*s_+m_==CFG['g2nd'][1]: gate(CFG['g2nd'][0]); STAMP('mg2')
            if 2*s_+m_>=CFG['mdep']: p(f"s_waitcnt vmcnt({CFG['mdep']-1})")
            p(f"buffer_load_dwordx4 {vr(D+8*s_+4*m_,4)}, v{aW_}, {S4((sWG,sWU)[m_])}, s{A} offen {CFG['mpol']}")
        if s_<4: p(f"s_add_u32 s{A}, s{A}, {32*3072}")
    p(f"s_mul_i32 s{B}, s{HW}, 12288\n{wr}:\nv_lshl_add_u32 v{vt}, v0, 4, s{B}")
    gate('DONE')
    p("s_waitcnt vmcnt(0)")
    for s_ in range(12): p(f"ds_write_b128 v{vt}, {vr(D+4*s_,4)} offset:{L_MW+s_*1024}")
    p(f"""s_lshl_b32 s{A}, s{HW}, 2
    s_add_u32 s{A}, s{A}, {F_MW}
    v_mov_b32 v{vt}, s{A}
    ds_write_b32 v{vt}, v{vt}
    s_waitcnt lgkmcnt(0)""")
    STAMP('mw')
    if CFG['htop']:
        p(f"""s_lshl_b32 s{A}, s{HW}, 5
        s_add_u32 s{A}, s{A}, s{sMI}
        s_cmp_lt_u32 s{A}, 12
        s_cbranch_scc1 L_htop""")
        n0=len(p.L)
        t=2; R=12; K2=20; K1=21; aC=22; C=sT+5
        ld="\n".join(f"buffer_load_dwordx2 {vr(R+2*i,2)}, v{aC}, {S4(sWS)}, s{B} offen offset:{i*1024} sc1" for i in range(4))
        lp=p.lab("hca"); ok=p.lab("hcaok")
        p(f"""L_htop:
        v_lshrrev_b32 v{t}, 3, v0
        v_and_b32 v{t+1}, 7, v0
        v_lshlrev_b32 v{t+2}, 3, v{t+1}
        v_lshl_add_u32 v{aC}, v{t}, 7, v{t+2}
        s_mov_b32 s{B}, {CA}
        v_bfe_i32 v{K2}, v0, 1, 1
        v_bfe_i32 v{K1}, v0, 0, 1
        v_not_b32 v{K2}, v{K2}
        v_not_b32 v{K1}, v{K1}
        v_lshlrev_b32 v{t+1}, 2, v{t+1}
        v_add_u32 v{aC+1}, {L_TOP}, v{t+1}
        s_mov_b32 s{C}, {SPIN}
        {lp}:
        {ld}
        s_waitcnt vmcnt(0)
        v_xor_b32 v{t}, v{R+1}, v{R+3}
        v_xor_b32 v{t+1}, v{R+5}, v{R+7}
        v_xor_b32 v{R+1}, s{sTAG}, v{R+1}
        v_xor_b32 v{R+5}, s{sTAG}, v{R+5}
        v_or3_b32 v{t}, v{t}, v{t+1}, v{R+1}
        v_or_b32 v{t}, v{t}, v{R+5}
        v_cmp_ne_u32 vcc, 0, v{t}
        s_nop 0
        s_cbranch_vccz {ok}""")
        spin(C,lp,ok,CFG['casl'])
        p(f"s_branch {lp}\n{ok}:")
        STAMP('car'); COUNT('ncar',C,SPIN)
        top8(R,K2,K1,t,t+2)
        p(f"ds_write_b32 v{aC+1}, v{R}")
        STAMP('htp')
        END()
        COLD.append("\n".join(p.L[n0:])); del p.L[n0:]
    p(f"{en}:")
def top8(R,K2,K1,y,tt):
    def clean(chs):
        seq=[]
        for (x,y_,t_) in chs:
            seq.append([f"v_max_u32_dpp v{y_}, v{x}, v{x} row_shl:4 row_mask:0xf bank_mask:0x5",
                        f"v_min_u32_dpp v{y_}, v{x}, v{x} row_shr:4 row_mask:0xf bank_mask:0xa",
                        None,
                        f"v_mov_b32_dpp v{t_}, v{y_} quad_perm:[2,3,0,1] row_mask:0xf bank_mask:0xf",
                        f"v_med3_u32 v{y_}, v{y_}, v{t_}, v{K2}",
                        None,
                        f"v_mov_b32_dpp v{t_}, v{y_} quad_perm:[1,0,3,2] row_mask:0xf bank_mask:0xf",
                        f"v_med3_u32 v{x}, v{y_}, v{t_}, v{K1}"])
        n=len(chs)
        p(f"s_nop {2-n}")
        for i in range(8):
            if seq[0][i] is None: p(f"s_nop {2-n}")
            else:
                for c in seq: p(c[i])
                if i==0 and n==1: p("s_nop 1")
                elif i==0: p("s_nop 0")
    dp="row_mask:0xf bank_mask:0xf"
    p(f"v_max_u32_dpp v{R}, v{R+2}, v{R} row_half_mirror {dp}\nv_max_u32_dpp v{R+4}, v{R+6}, v{R+4} row_half_mirror {dp}")
    clean([(R,y,tt),(R+4,y+1,tt+1)])
    p(f"s_nop 1\nv_max_u32_dpp v{R}, v{R+4}, v{R} row_half_mirror {dp}")
    clean([(R,y,tt)])
    p(f"s_nop 1\nv_max_u32_dpp v{R}, v{R}, v{R} row_mirror {dp}")
    clean([(R,y,tt)])
    for msk,sw in ((0xa,16),(0xc,32)):
        p(f"""s_nop 1
        v_mov_b32_dpp v{R}, v{R} row_half_mirror row_mask:{hex(msk)} bank_mask:0xf
        v_mov_b32 v{tt}, v{R}
        s_nop 1
        v_permlane{sw}_swap_b32 v{R}, v{tt}
        s_nop 0
        v_max_u32 v{R}, v{R}, v{tt}""")
        clean([(R,y,tt)])
def moe():
    t=vT; A=sT+7; B=sT+8; C=sT+17; sTHR=sT+14; sKQ=sT+3
    R=12; K2=20; K1=21; aC=22; AW=108
    BL=160
    p(f"""s_cmp_ge_u32 s{sMI}, 17
    s_cbranch_scc1 L_plain""")
    if not CFG['cae']: p(f"""v_lshrrev_b32 v{t}, 3, v0
    v_and_b32 v{t+1}, 7, v0
    v_lshlrev_b32 v{t+1}, 3, v{t+1}
    v_lshl_add_u32 v{aC}, v{t}, 7, v{t+1}""")
    p(f"s_mov_b32 s{B}, {CA}")
    ld="\n".join(f"buffer_load_dwordx2 {vr(R+2*i,2)}, v{aC}, {S4(sWS)}, s{B} offen offset:{i*1024} sc1" for i in range(4))
    aMF=4; aMW=5
    def getw():
        lds_wait(AW-aMF,t+10 if False else AW,C,'eq',0,0)
        STAMP('mwr')
        for s_ in range(12):
            for rd in range(2): p(f"ds_read_b64_tr_b16 {vr(AW+4*s_+2*rd,2)}, v{AW-aMW} offset:{L_MW+s_*1024+rd*512}")
    if not CFG['cae'] and not CFG['htop']: p(f"""s_cmp_lg_u32 s{sWAVE}, 0
    s_cbranch_scc1 L_nocal
    {ld}""")
    p(f"""L_nocal:
    v_bfe_i32 v{K2}, v0, 1, 1
    v_bfe_i32 v{K1}, v0, 0, 1
    v_not_b32 v{K2}, v{K2}
    v_not_b32 v{K1}, v{K1}
    s_add_u32 s{sKQ}, s{sWAVE}, {CFG['kqr']}
    s_and_b32 s{sKQ}, s{sKQ}, 3
    s_lshl_b32 s{A}, s{sKQ}, 2
    s_add_u32 s{A}, s{A}, {F_MW}
    v_mov_b32 v{AW-aMF}, s{A}
    s_mul_i32 s{A}, s{sKQ}, 12288
    v_lshl_add_u32 v{AW-aMW}, v0, 3, s{A}
    v_and_b32 v{t}, 7, v0
    v_lshlrev_b32 v{t}, 2, v{t}
    v_add_u32 v{AW-6}, {L_TOP}, v{t}
    {f"v_add_u32 v{AW-9}, {L_TOP}, v{t}" if CFG['ldma'] else ""}
    s_cmp_ge_u32 s{sMI}, 12
    s_cbranch_scc1 L_now""")
    if CFG['ldma']:
        p(f"""v_lshrrev_b32 v{t}, 3, v0
        v_lshlrev_b32 v{t}, 2, v{t}
        v_add_u32 v{AW-9}, {L_TOP}, v{t}
        v_and_b32 v{AW-7}, 7, v0
        v_lshrrev_b32 v{t}, 4, v0
        v_lshlrev_b32 v{t}, 4, v{t}
        v_lshl_add_u32 v{t}, v{AW-7}, 7, v{t}
        s_mul_i32 s{A}, s{sWAVE}, 3072
        s_add_u32 s{A}, s{A}, {L_RED+8192}
        v_add_u32 v{AW-8}, s{A}, v{t}
        v_lshlrev_b32 v{AW-7}, 4, v{AW-7}
        s_mov_b32 m0, s{A}""")
    getw()
    if CFG['htop']: p("s_branch L_topw2")
    lp=p.lab("ca"); ok=p.lab("caok"); md=p.lab("cam")
    p(f"""L_now:
    s_cmp_lg_u32 s{sWAVE}, 0
    s_cbranch_scc1 L_topw
    s_mov_b32 s{C}, {SPIN}
    {"s_waitcnt vmcnt(3)" if CFG['cae'] else ""}
    {"" if CFG['htop'] else f"s_branch {md}"}
    {lp}:
    {ld}
    {"s_waitcnt vmcnt(0)" if CFG['cae'] else ""}
    {md}:
    {"" if CFG['cae'] else "s_waitcnt vmcnt(0)"}
    v_xor_b32 v{t}, v{R+1}, v{R+3}
    v_xor_b32 v{t+1}, v{R+5}, v{R+7}
    v_xor_b32 v{R+1}, s{sTAG}, v{R+1}
    v_xor_b32 v{R+5}, s{sTAG}, v{R+5}
    v_or3_b32 v{t}, v{t}, v{t+1}, v{R+1}
    v_or_b32 v{t}, v{t}, v{R+5}
    v_cmp_ne_u32 vcc, 0, v{t}
    s_nop 0
    s_cbranch_vccz {ok}""")
    spin(C,lp,ok,CFG['casl'])
    if CFG['dasl']: p(f"s_cmp_lt_u32 s{sMI}, 12\ns_cbranch_scc1 {lp}\ns_sleep {CFG['dasl']}")
    p(f"s_branch {lp}\n{ok}:")
    STAMP('car'); COUNT('ncar',C,SPIN)
    top8(R,K2,K1,t,t+2)
    p(f"ds_write_b32 v{AW-6}, v{R}")
    if CFG['htop']: assert CFG['ldma']; p(f"s_branch L_top\nL_topw:\ns_waitcnt vmcnt(0)\nL_topw2:")
    elif CFG['ldma']: p(f"s_cmp_ge_u32 s{sMI}, 12\ns_cbranch_scc1 L_top\nL_topw:\ns_waitcnt vmcnt(0)")
    else: p(f"s_branch L_top\nL_topw:\ns_waitcnt vmcnt(0)")
    lds_wait(AW-9 if CFG['ldma'] else AW-6,R,C,'eq',-1,0)
    TOK=t+1; aR=t+2
    def deferred(tag):
        allrows=CFG['odf']>=(12 if tag[0]=='g' else 17 if tag=='d' else 99)
        p(f"""v_cmp_gt_u32 vcc, s{sTHR}, v{KEY}
        s_nop 0
        {'s_orn2_b64' if allrows else 's_and_b64'} exec, vcc, s[{sCAND}:{sCAND+1}]
        s_cbranch_scc0 L_nd{tag}""")
        out_store()
        p(f"L_nd{tag}:\ns_mov_b64 exec, -1")
    XM="s_mov_b32 exec_lo, 0x00ff00ff\ns_mov_b32 exec_hi, 0x00ff00ff" if CFG['xm'] else "s_mov_b64 exec, -1"
    if CFG['ldma']:
        lp=p.lab("gl"); ok=p.lab("glok")
        p(f"""s_cmp_ge_u32 s{sMI}, 12
        s_cbranch_scc1 L_top""")
        STAMP('top')
        p(f"""v_bfe_u32 v{TOK}, v{R}, 9, 5
        v_and_b32 v{aR}, 7, v{R}
        v_xor_b32 v{TOK}, 31, v{TOK}
        s_mul_i32 s{A}, s{sKQ}, 320
        v_lshl_add_u32 v{aR}, v{TOK}, 3, v{aR}
        s_add_u32 s{A}, s{A}, {CAND}
        v_mov_b32 v{t}, 2560
        s_sub_u32 s{B}, s{A}, 896
        v_mad_u32_u24 v{aR}, v{aR}, v{t}, v{AW-7}
        s_sub_u32 s{sT+4}, s{A}, 1792
        s_mov_b32 s{C}, {SPIN}
        {lp}:
        s_mov_b64 exec, -1
        buffer_load_dwordx4 v{aR}, {S4(sWS)}, s{A} offen sc1 lds
        buffer_load_dwordx4 v{aR}, {S4(sWS)}, s{B} offen offset:1024 sc1 lds
        s_mov_b32 exec_lo, 0x0f0f0f0f
        s_mov_b32 exec_hi, 0x0f0f0f0f
        buffer_load_dwordx4 v{aR}, {S4(sWS)}, s{sT+4} offen offset:2048 sc1 lds
        s_mov_b64 exec, -1
        v_readlane_b32 s{sTHR}, v{R}, 56
        s_lshl_b32 s{sT+5}, s{sWAVE}, 11
        s_add_u32 s{sT+5}, s{sT+5}, {L_RED}
        v_lshl_add_u32 v{t+3}, v0, 4, s{sT+5}
        s_mov_b32 exec_lo, 0x00ff00ff
        s_mov_b32 exec_hi, 0x00ff00ff""")
        for i in range(5):
            if i%2==0: p(f"s_waitcnt vmcnt({2-i//2})")
            p(f"ds_read_b128 {vr(BL+4*i,4)}, v{AW-8} offset:{(i>>1)*1024+(i&1)*64}")
        if CFG['asp']:
            G=20; U=24
            p("s_mov_b64 exec, -1")
            for s_ in range(5):
                p(f"s_waitcnt lgkmcnt({4-s_})")
                for m_,a_ in ((0,G),(1,U)):
                    p(f"v_mfma_f32_16x16x32_bf16 {vr(a_,4)}, {vr(AW+8*s_+4*m_,4)}, {vr(BL+4*s_,4)}, {vr(a_,4) if s_ else 0}")
                    if m_==0: p(f"v_max3_u32 v{t+4}, v{BL+4*s_}, v{BL+4*s_+2}, {'v%d'%(t+4) if s_ else 0}")
            p(f"""v_cmp_eq_u32 vcc, -1, v{t+4}
            s_nop 0
            s_and_b32 vcc_lo, vcc_lo, 0x00ff00ff
            s_and_b32 vcc_hi, vcc_hi, 0x00ff00ff
            s_or_b32 s{sT+5}, vcc_lo, vcc_hi
            s_cbranch_scc0 L_glok""")
        else: p(f"""s_waitcnt lgkmcnt(2)
        v_max3_u32 v{t+4}, v{BL}, v{BL+2}, v{BL+4}
        v_max3_u32 v{t+5}, v{BL+6}, v{BL+8}, v{BL+10}
        s_waitcnt lgkmcnt(0)
        v_max3_u32 v{t+4}, v{BL+12}, v{BL+14}, v{t+4}
        v_max3_u32 v{t+5}, v{BL+16}, v{BL+18}, v{t+5}
        v_max_u32 v{t+4}, v{t+4}, v{t+5}
        v_cmp_eq_u32 vcc, -1, v{t+4}
        s_nop 0
        s_cbranch_vccz L_glok""")
        spin(C,lp,"L_glok")
        p(f"s_branch {lp}")
    p("L_top:")
    STAMP('top')
    p(f"""v_bfe_u32 v{TOK}, v{R}, 3, 11
    v_sub_u32 v{TOK}, 2047, v{TOK}
    v_lshrrev_b32 v{t}, 6, v{TOK}
    v_and_b32 v{aR}, 7, v{R}
    v_lshl_add_u32 v{aR}, v{t}, 3, v{aR}
    v_mul_u32_u24 v{aR}, 2560, v{aR}
    v_lshrrev_b32 v{t}, 4, v0
    v_readlane_b32 s{sTHR}, v{R}, 7
    {"" if CFG['ldma'] else f"s_cmp_ge_u32 s{sMI}, 12"}
    {"s_branch" if CFG['ldma'] else "s_cbranch_scc1"} L_down""")
    if not CFG['ldma']: l_old(t,A,B,C,BL,aR,sKQ,sTHR,XM)
    else: p("L_glok:")
    STAMP('lr'); COUNT('nlr',C,SPIN)
    SP=CFG['asp'] and CFG['ldma']
    if CFG['xm'] and not SP: p("s_mov_b64 exec, -1")
    G=20; U=24; X=28
    for s_ in range(0 if SP else 5):
        for m_,a_ in ((0,G),(1,U)):
            p(f"v_mfma_f32_16x16x32_bf16 {vr(a_,4)}, {vr(AW+8*s_+4*m_,4)}, {vr(BL+4*s_,4)}, {vr(a_,4) if s_ else 0}")
    w0=p.lab("guw0")
    def hint(sa,va,wv=None):
        sk=p.lab("nohint")
        if wv is not None: p(f"s_cmp_lg_u32 s{sWAVE}, {wv}\ns_cbranch_scc1 {sk}")
        p(f"""s_lshl_b32 s{sa}, s{sG}, 5
        s_add_u32 s{sa}, s{sa}, s{sMI}
        s_lshl_b32 s{sa}, s{sa}, 2
        s_add_u32 s{sa}, s{sa}, {AH}
        v_mov_b32 v{va}, 0
        v_mov_b32 v{va+1}, s{sTAG}
        s_mov_b64 exec, 1""")
        dual([f"buffer_store_dword v{va+1}, v{va}, {S4(sWS)}, s{sa} offen"])
        p(f"s_mov_b64 exec, -1\n{sk}:")
    p(f"""s_cmp_eq_u32 s{sWAVE}, 0
    s_cbranch_scc1 {w0}
    {"" if SP else "s_nop 5"}
    ds_write_b128 v{t+3}, {vr(G,4)}
    ds_write_b128 v{t+3}, {vr(U,4)} offset:1024""")
    if CFG['ahp']==4: hint(B,60,2)
    p("s_waitcnt lgkmcnt(0)\ns_barrier")
    if CFG['ahp']==3: hint(B,60,2)
    if CFG['ldma']:
        nt=p.lab("noth")
        p(f"""s_xor_b32 s{B}, s{sWAVE}, 1
        s_or_b32 s{B}, s{sMI}, s{B}
        s_cbranch_scc1 {nt}
        v_mov_b32 v{t+4}, s{sTHR}
        v_mov_b32 v{t+5}, s{sTAG}
        s_lshl_b32 s{B}, s{sG}, 7
        s_add_u32 s{B}, s{B}, {TH}
        v_mov_b32 v{t+6}, 0
        s_mov_b64 exec, 1
        buffer_store_dwordx2 v[{t+4}:{t+5}], v{t+6}, {S4(sWS)}, s{B} offen sc1
        s_mov_b64 exec, -1
        {nt}:""")
    if CFG['ob2']: p("s_barrier")
    deferred('g1')
    END()
    p(f"""{w0}:
    s_mul_i32 s{A}, s{sG}, 12
    s_add_u32 s{A}, s{A}, s{sMI}
    s_lshl_b32 s{A}, s{A}, 8
    s_add_u32 s{A}, s{A}, {ACT}
    v_and_b32 v{t+4}, 7, v0
    v_lshlrev_b32 v{t+4}, 4, v{t+4}
    v_lshrrev_b32 v{t+5}, 5, v0
    v_lshl_add_u32 v{t+4}, v{t+5}, 7, v{t+4}
    v_bfe_u32 v{t+5}, v0, 4, 1
    v_lshl_add_u32 v{t+4}, v{t+5}, 3, v{t+4}
    s_barrier""")
    STAMP('gb')
    for w_ in range(1,4):
        for m_ in range(2): p(f"ds_read_b128 {vr(X+8*(w_-1)+4*m_,4)}, v{t+3} offset:{w_*2048+m_*1024}")
    p(f"s_mov_b32 s{B}, {hex(f2u(-math.log2(math.e)))}")
    for w_ in range(3):
        p(f"s_waitcnt lgkmcnt({4-2*w_})")
        for k in range(4): p(f"v_pk_add_f32 {vr(G+2*k,2)}, {vr(G+2*k,2)}, {vr(X+8*w_+2*k,2)}")
    p(f"""v_cvt_pk_bf16_f32 v{X}, v{G}, v{G+1}
    v_cvt_pk_bf16_f32 v{X+1}, v{G+2}, v{G+3}
    v_cvt_pk_bf16_f32 v{X+2}, v{U}, v{U+1}
    v_cvt_pk_bf16_f32 v{X+3}, v{U+2}, v{U+3}""")
    for k in range(4): p(f"v_lshlrev_b32 v{G+2*k}, 16, v{X+k}\nv_and_b32 v{G+2*k+1}, 0xffff0000, v{X+k}")
    for k in range(4): p(f"v_mul_f32 v{X+k}, s{B}, v{G+k}")
    for k in range(4): p(f"v_exp_f32 v{X+k}, v{X+k}")
    if CFG['ahp']==2: hint(B,60)
    for k in range(4): p(f"v_add_f32 v{X+k}, 1.0, v{X+k}")
    for k in range(4): p(f"v_rcp_f32 v{X+k}, v{X+k}")
    for k in range(4): p(f"v_mul_f32 v{G+k}, v{G+k}, v{X+k}")
    if CFG['ahp']==1: hint(B,60)
    p(f"v_cvt_pk_bf16_f32 v{X}, v{G}, v{G+1}\nv_cvt_pk_bf16_f32 v{X+1}, v{G+2}, v{G+3}")
    for k in range(2): p(f"v_lshlrev_b32 v{G+2*k}, 16, v{X+k}\nv_and_b32 v{G+2*k+1}, 0xffff0000, v{X+k}")
    p(f"""v_pk_mul_f32 {vr(G,2)}, {vr(G,2)}, {vr(U,2)}
    v_pk_mul_f32 {vr(G+2,2)}, {vr(G+2,2)}, {vr(U+2,2)}
    v_cvt_pk_bf16_f32 v{X}, v{G}, v{G+1}
    v_cvt_pk_bf16_f32 v{X+1}, v{G+2}, v{G+3}
    s_mov_b32 exec_lo, 0x00ff00ff
    s_mov_b32 exec_hi, 0x00ff00ff
    buffer_store_dwordx2 {vr(X,2)}, v{t+4}, {S4(sWS)}, s{A} offen sc1""")
    if CFG['ahint'] and CFG['ahp']==0:
        p(f"""s_lshl_b32 s{A}, s{sG}, 5
        s_add_u32 s{A}, s{A}, s{sMI}
        s_lshl_b32 s{A}, s{A}, 2
        s_add_u32 s{A}, s{A}, {AH}
        v_mov_b32 v{t+4}, 0
        v_mov_b32 v{t+5}, s{sTAG}
        s_mov_b64 exec, 1""")
        dual([f"buffer_store_dword v{t+5}, v{t+4}, {S4(sWS)}, s{A} offen"])
    p("s_mov_b64 exec, -1")
    STAMP('act')
    if CFG['ob2']: p("s_barrier")
    deferred('g0')
    END()
    HL=20; Y=24; X=28; SG=t+8; aO2=t+9
    p(f"""L_down:
    v_lshl_add_u32 v{aR}, v{t}, 3, v{aR}
    v_mul_u32_u24 v{aO2}, 1280, v{TOK}
    v_lshl_add_u32 v{aO2}, v{t}, 3, v{aO2}
    v_and_b32 v{t+4}, 7, v0
    v_lshlrev_b32 v{t+4}, 4, v{t+4}
    v_lshl_add_u32 v{t+4}, v{t}, 7, v{t+4}
    {f"v_bfe_u32 v{t+5}, v0, 3, 1" if CFG['a2'] else ""}
    {f"v_lshl_add_u32 v{t+4}, v{t+5}, 9, v{t+4}" if CFG['a2'] else ""}
    s_mul_i32 s{sT+1}, s{sG}, 5
    s_add_u32 s{sT+1}, s{sT+1}, s{sMI}
    s_sub_u32 s{sT+1}, s{sT+1}, 12
    s_lshl_b32 s{sT+1}, s{sT+1}, 5
    s_add_u32 s{sT+2}, s{sT+1}, {CAND}
    s_mul_i32 s{A}, s{sKQ}, 6144
    s_add_u32 s{A}, s{A}, {ACT}
    s_add_u32 s{B}, s{A}, 4096""")
    ldh=f"buffer_load_dwordx2 {vr(HL,2)}, v{aR}, {S4(sWS)}, s{sT+2} offen sc1\nbuffer_load_dwordx2 {vr(HL+2,2)}, v{aR}, {S4(sWS)}, s{sT+2} offen offset:1280 sc1"
    if CFG['hll']: p(f"s_cmp_lg_u32 s{sWAVE}, 0\ns_cbranch_scc1 L_nohl\n{XM}\n{ldh}\ns_mov_b64 exec, -1\nL_nohl:")
    else: p(ldh)
    deferred('d')
    p(f"""v_ashrrev_i32 v{SG}, 31, v{R}
    v_not_b32 v{SG}, v{SG}
    v_or_b32 v{SG}, 0x80000000, v{SG}
    v_xor_b32 v{SG}, v{SG}, v{R}
    v_and_b32 v{SG}, 0xffff0000, v{SG}
    v_mul_f32 v{SG}, {hex(f2u(-math.log2(math.e)))}, v{SG}
    v_exp_f32 v{SG}, v{SG}
    s_lshl_b32 s{C}, s{sWAVE}, 10
    v_add_f32 v{SG}, 1.0, v{SG}
    v_rcp_f32 v{SG}, v{SG}
    s_add_u32 s{C}, s{C}, {L_RED}
    v_lshl_add_u32 v{t+3}, v0, 4, s{C}""")
    bf16r(SG,SG)
    lp=p.lab("hl"); ok=p.lab("hlok"); md=p.lab("hlm")
    if not CFG['hll']: p(f"""s_mov_b32 s{C}, {SPIN}
    s_branch {md}
    {lp}:
    {ldh}
    {md}:
    s_waitcnt vmcnt(0)
    v_max_u32 v{t+5}, v{HL}, v{HL+2}
    v_cmp_eq_u32 vcc, -1, v{t+5}
    s_nop 0
    {'s_branch' if CFG['xp'] else 's_cbranch_vccz'} {ok}""")
    if not CFG['hll']:
        spin(C,lp,ok)
        p(f"s_branch {lp}\n{ok}:")
    getw()
    ld="\n".join([f"buffer_load_dwordx4 {vr(BL+4*i,4)}, v{t+4}, {S4(sWS)}, s{A if i<8 else B} offen offset:{(i%8)*512} sc1" for i in range(12)])
    if CFG['ahint']:
        p(f"""v_min_u32 v{t+6}, {CFG['ahint']-1}, v0
        v_lshlrev_b32 v{t+6}, 2, v{t+6}
        s_lshl_b32 s{sT+4}, s{sG}, 7
        s_add_u32 s{sT+4}, s{sT+4}, {AH}""")
        flag_poll(t+6,t+5,sT+4,C)
        STAMP('ah')
    lp=p.lab("al"); ok=p.lab("alok")
    if CFG['a2']:
        Y2=BL+24
        ld="\n".join([f"buffer_load_dwordx4 {vr(BL+4*i,4)}, v{t+4}, {S4(sWS)}, s{A if i<4 else B} offen offset:{(i%4)*1024} sc1" for i in range(6)])
        if CFG['asp']:
            p(f"s_mov_b32 s{C}, {SPIN}\n{lp}:\n{ld}\ns_waitcnt lgkmcnt(0)")
            for i in range(6):
                p(f"s_waitcnt vmcnt({5-i})")
                for s_ in (2*i,2*i+1):
                    y=(Y,Y2)[s_&1]
                    p(f"v_mfma_f32_16x16x32_bf16 {vr(y,4)}, {vr(AW+4*s_,4)}, {vr(BL+4*(s_>>1),4)}, {vr(y,4) if s_>1 else 0}")
                    if s_&1==0: p(f"v_max3_u32 v{t+5}, v{BL+4*i}, v{BL+4*i+2}, {'v%d'%(t+5) if i else 0}")
            p(f"""v_cmp_eq_u32 vcc, -1, v{t+5}
            s_nop 0
            s_cbranch_vccz {ok}""")
            spin(C,lp,ok,CFG['acsl'])
            p(f"s_branch {lp}\n{ok}:")
            STAMP('ar'); COUNT('nar',C,SPIN)
            p("s_nop 4")
        else: p(f"""s_mov_b32 s{C}, {SPIN}
        {lp}:
        {ld}
        s_waitcnt vmcnt(3)
        v_max3_u32 v{t+5}, v{BL}, v{BL+2}, v{BL+4}
        v_max3_u32 v{t+6}, v{BL+6}, v{BL+8}, v{BL+10}
        s_waitcnt vmcnt(0)
        v_max3_u32 v{t+5}, v{BL+12}, v{BL+14}, v{t+5}
        v_max3_u32 v{t+6}, v{BL+16}, v{BL+18}, v{t+6}
        v_max3_u32 v{t+5}, v{BL+20}, v{BL+22}, v{t+5}
        v_max_u32 v{t+5}, v{t+5}, v{t+6}
        v_cmp_eq_u32 vcc, -1, v{t+5}
        s_waitcnt lgkmcnt(0)
        s_cbranch_vccz {ok}""")
        if not CFG['asp']:
            spin(C,lp,ok,CFG['acsl'])
            p(f"s_branch {lp}\n{ok}:")
            STAMP('ar'); COUNT('nar',C,SPIN)
            for s_ in range(12):
                y=(Y,Y2)[s_&1]
                p(f"v_mfma_f32_16x16x32_bf16 {vr(y,4)}, {vr(AW+4*s_,4)}, {vr(BL+4*(s_>>1),4)}, {vr(y,4) if s_>1 else 0}")
            p("s_nop 7")
        for k in range(4): p(f"v_add_f32_dpp v{Y+k}, v{Y2+k}, v{Y+k} row_ror:8 row_mask:0xf bank_mask:0xf")
    else: act_old(t,A,B,C,BL,AW,Y,XM,ld,lp,ok)
    w0=p.lab("dnw0")
    p(f"""s_cmp_eq_u32 s{sWAVE}, 0
    s_cbranch_scc1 {w0}
    {"" if CFG['a2'] else "s_nop 5"}
    ds_write_b128 v{t+3}, {vr(Y,4)}
    s_waitcnt lgkmcnt(0)
    s_barrier""")
    END()
    p(f"{w0}:")
    if CFG['hll']:
        p(f"""{XM}
        v_max_u32 v{t+5}, v{HL}, v{HL+2}
        v_cmp_eq_u32 vcc, -1, v{t+5}
        s_mov_b32 s{C}, {SPIN}
        s_cbranch_vccnz L_hlw
        L_hlr:
        s_mov_b64 exec, -1""")
        COLD.append(f"""L_hlw:
        s_sub_u32 s{C}, s{C}, 1
        s_cbranch_scc1 L_hlr
        {ldh}
        s_waitcnt vmcnt(0)
        v_max_u32 v{t+5}, v{HL}, v{HL+2}
        v_cmp_eq_u32 vcc, -1, v{t+5}
        s_nop 0
        s_cbranch_vccnz L_hlw
        s_branch L_hlr""")
    p(f"""v_lshlrev_b32 v{X+12}, 16, v{HL}
    v_and_b32 v{X+13}, 0xffff0000, v{HL}
    v_lshlrev_b32 v{X+14}, 16, v{HL+1}
    v_and_b32 v{X+15}, 0xffff0000, v{HL+1}
    v_lshlrev_b32 v{X+16}, 16, v{HL+2}
    v_and_b32 v{X+17}, 0xffff0000, v{HL+2}
    v_lshlrev_b32 v{X+18}, 16, v{HL+3}
    v_and_b32 v{X+19}, 0xffff0000, v{HL+3}
    s_barrier""")
    STAMP('db')
    for w_ in range(1,4): p(f"ds_read_b128 {vr(X+4*(w_-1),4)}, v{t+3} offset:{w_*1024}")
    for w_ in range(3):
        p(f"s_waitcnt lgkmcnt({2-w_})")
        for k in range(2): p(f"v_pk_add_f32 {vr(Y+2*k,2)}, {vr(Y+2*k,2)}, {vr(X+4*w_+2*k,2)}")
    def rnd():
        p(f"v_cvt_pk_bf16_f32 v{X}, v{Y}, v{Y+1}\nv_cvt_pk_bf16_f32 v{X+1}, v{Y+2}, v{Y+3}")
    def unp():
        for k in range(2): p(f"v_lshlrev_b32 v{Y+2*k}, 16, v{X+k}\nv_and_b32 v{Y+2*k+1}, 0xffff0000, v{X+k}")
    rnd(); unp()
    for k in range(4): p(f"v_mul_f32 v{Y+k}, v{SG}, v{Y+k}")
    rnd(); unp()
    for k in range(2): p(f"v_pk_add_f32 {vr(Y+2*k,2)}, {vr(Y+2*k,2)}, {vr(X+12+2*k,2)}")
    rnd(); unp()
    for k in range(2): p(f"v_pk_add_f32 {vr(Y+2*k,2)}, {vr(Y+2*k,2)}, {vr(X+16+2*k,2)}")
    rnd()
    p(f"""s_mov_b32 exec_lo, 0x00ff00ff
    s_mov_b32 exec_hi, 0x00ff00ff
    buffer_store_dwordx2 {vr(X,2)}, v{aO2}, {S4(sOUT)}, s{sT+1} offen {CFG['fpol']}""")
    STAMP('fin')
    END()
    lp=p.lab("th"); ok=p.lab("thok")
    p("L_plain:")
    if CFG['cpre']:
        sk=p.lab("nocp")
        p(f"""s_sub_u32 s{A}, s{sMI}, {CFG['cpb']}
        s_lshl_b32 s{A}, s{A}, 2
        s_add_u32 s{A}, s{A}, s{sWAVE}
        s_cmp_ge_u32 s{A}, 32
        s_cbranch_scc1 {sk}""")
        if CFG['cpre']==1:
            p(f"s_lshl_b32 s{B}, s{A}, 7\ns_add_u32 s{B}, s{B}, {CA+4}\nv_mov_b32 v{t}, 0")
            flag_poll(t,t+1,B,C,sleep=CFG['cpsl'])
        l2=p.lab("cp"); o2=p.lab("cpok")
        p(f"""s_mul_i32 s{B}, s{A}, 20480
        s_add_u32 s{B}, s{B}, {CAND+36}
        v_lshrrev_b32 v{t}, 5, v0
        v_mul_u32_u24 v{t}, 1280, v{t}
        v_mad_u32_u24 v{t}, v0, 40, v{t}
        s_mov_b32 s{C}, 64
        {l2}:
        buffer_load_dword v{t+1}, v{t}, {S4(sWS)}, s{B} offen sc1
        s_waitcnt vmcnt(0)
        v_cmp_eq_u32 vcc, -1, v{t+1}
        s_nop 0
        s_cbranch_vccz {o2}""")
        spin(C,l2,o2,CFG['cpsl'])
        p(f"s_branch {l2}\n{o2}:")
        STAMP('cp')
        p(f"{sk}:")
    p(f"""s_lshl_b32 s{B}, s{sG}, 7
    s_add_u32 s{B}, s{B}, {TH}
    v_mov_b32 v{t}, 0
    s_mov_b32 s{C}, {SPIN}
    {lp}:
    s_sleep 16
    buffer_load_dwordx2 v[{t+2}:{t+3}], v{t}, {S4(sWS)}, s{B} offen sc1
    s_waitcnt vmcnt(0)
    v_cmp_ne_u32 vcc, s{sTAG}, v{t+3}
    s_nop 0
    s_cbranch_vccz {ok}""")
    spin(C,lp,ok)
    p(f"""s_branch {lp}
    {ok}:
    v_readfirstlane_b32 s{sTHR}, v{t+2}
    s_nop 1""")
    deferred('p')
    STAMP('fin')

def l_old(t,A,B,C,BL,aR,sKQ,sTHR,XM):
    p(f"""v_lshl_add_u32 v{aR}, v{t}, 4, v{aR}
    s_mul_i32 s{A}, s{sKQ}, 320
    s_add_u32 s{A}, s{A}, {CAND}""")
    ld="\n".join(f"buffer_load_dwordx4 {vr(BL+4*i,4)}, v{aR}, {S4(sWS)}, s{A} offen offset:{i*64} sc1" for i in range(5))
    lp=p.lab("gl"); ok=p.lab("glok"); md=p.lab("glm"); nt=p.lab("noth")
    if CFG['xm']: p(XM)
    p(ld)
    p(f"""s_or_b32 s{B}, s{sMI}, s{sWAVE}
    s_cbranch_scc1 {nt}
    v_mov_b32 v{t+4}, s{sTHR}
    v_mov_b32 v{t+5}, s{sTAG}
    s_lshl_b32 s{B}, s{sG}, 7
    s_add_u32 s{B}, s{B}, {TH}
    v_mov_b32 v{t+6}, 0
    s_mov_b64 exec, 1
    buffer_store_dwordx2 v[{t+4}:{t+5}], v{t+6}, {S4(sWS)}, s{B} offen sc1
    {nt}:
    s_mov_b64 exec, -1
    s_lshl_b32 s{B}, s{sWAVE}, 11
    s_add_u32 s{B}, s{B}, {L_RED}
    v_lshl_add_u32 v{t+3}, v0, 4, s{B}
    {XM}
    s_mov_b32 s{C}, {SPIN}
    s_branch {md}
    {lp}:
    {ld}
    {md}:
    s_waitcnt vmcnt(0) lgkmcnt(0)
    v_max3_u32 v{t+4}, v{BL}, v{BL+2}, v{BL+4}
    v_max3_u32 v{t+5}, v{BL+6}, v{BL+8}, v{BL+10}
    v_max3_u32 v{t+4}, v{BL+12}, v{BL+14}, v{t+4}
    v_max3_u32 v{t+5}, v{BL+16}, v{BL+18}, v{t+5}
    v_max_u32 v{t+4}, v{t+4}, v{t+5}
    v_cmp_eq_u32 vcc, -1, v{t+4}
    s_nop 0
    {'s_branch' if 'nocand' in CFG['xp'] else 's_cbranch_vccz'} {ok}""")
    spin(C,lp,ok)
    p(f"s_branch {lp}\n{ok}:")
def act_old(t,A,B,C,BL,AW,Y,XM,ld,lp,ok):
    p(f"""{XM}
    s_mov_b32 s{C}, {SPIN}
    {lp}:
    {ld}
    s_waitcnt vmcnt(8)
    v_max3_u32 v{t+5}, v{BL}, v{BL+2}, v{BL+4}
    v_max3_u32 v{t+6}, v{BL+6}, v{BL+8}, v{BL+10}
    v_max3_u32 v{t+5}, v{BL+12}, v{BL+14}, v{t+5}""")
    for i in range(4,12):
        if i%4==0: p(f"s_waitcnt vmcnt({8-i})")
        p(f"v_max3_u32 v{t+5+(i&1)}, v{BL+4*i}, v{BL+4*i+2}, v{t+5+(i&1)}")
    p(f"""v_max_u32 v{t+5}, v{t+5}, v{t+6}
    v_cmp_eq_u32 vcc, -1, v{t+5}
    s_waitcnt lgkmcnt(0)
    s_cbranch_vccz {ok}""")
    spin(C,lp,ok,CFG['acsl'])
    p(f"s_branch {lp}\n{ok}:")
    STAMP('ar'); COUNT('nar',C,SPIN)
    if CFG['xm']: p("s_mov_b64 exec, -1")
    for s_ in range(12): p(f"v_mfma_f32_16x16x32_bf16 {vr(Y,4)}, {vr(AW+4*s_,4)}, {vr(BL+4*s_,4)}, {vr(Y,4) if s_ else 0}")

def build():
    prologue()
    steps=loader()
    helperA(steps)
    p("s_branch L_mw")
    helperB(steps)
    p("L_mw:")
    moe_weights()
    END()
    if CFG['lay']: p(PG)
    p("L_comp:")
    if CFG['prio']: p(f"s_setprio {CFG['prio']}")
    p("s_waitcnt lgkmcnt(0)")
    STAMP('start')
    prologue2(1)
    if CFG['cpf']: code_pf()
    if CFG['cpa']==2: cp_rest(sT+18); p("s_mov_b64 exec, -1")
    if CFG['tlb']==1:
        for k in range(12):
            p(f"s_mov_b32 s{sT+18}, {k*0x200000+0x1000}\ns_load_dword s100, s[{sWS}:{sWS+1}], s{sT+18}")
    if CFG['tlb']==2:
        p(f"v_lshlrev_b32 v228, 19, v0\nv_min_u32 v228, 0x1780000, v228\nbuffer_load_dword v229, v228, {S4(sWS)}, 0 offen")
    srd(((sX,2621440),))
    if CFG['hclr'] or CFG['lclr']: assert CFG['clr']==0 and CFG['odn'] and CFG['wsp']; CFG['clate']=9
    if CFG['clr']==0 and CFG['clate']==0: clears(0); clears(1)
    STAMP('c1')
    att_setup()
    STAMP('c2')
    if CFG['clr']==0 and CFG['clate']==1: clears(0); clears(1)
    gemm_setup()
    STAMP('c3')
    if CFG['clr']: clears(0)
    if CFG['clr']==0 and CFG['clate']==2: clears(0); clears(1)
    STAMP('c4')
    p("s_waitcnt lgkmcnt(0)")
    STAMP('c5')
    mktag()
    p(f"""    s_cmp_eq_u32 s{sLC}, 15
    s_cbranch_scc1 L_gS
    s_cmp_eq_u32 s{sTY}, 2
    s_cbranch_scc1 L_gV""")
    if CFG['lay']:
        p("s_branch L_gT")
        n0=len(p.L)
        p(PG)
        if CFG['pade']: p("L_padT:\ns_branch L_comp")
        p("L_gT:"); gemm_loop('T'); gemm_epi('T'); p("s_branch L_att")
        n1=len(p.L)
        p("L_gS:"); idle_gemm(); p("s_branch L_att")
        COLD.insert(0,"\n".join(p.L[n1:])); del p.L[n1:]
        if CFG['pade']: p("L_padV:\ns_branch L_comp")
        p("L_gV:"); gemm_loop('V'); gemm_epi('V'); p("s_branch L_att")
        G_=p.L[n0:]; del p.L[n0:]
        p("L_att:")
        att_go()
        p.L+=G_
    else:
        gemm_loop('T'); gemm_epi('T'); p("s_branch L_att")
        p("L_gS:"); idle_gemm(); p("s_branch L_att")
        p("L_gV:"); gemm_loop('V'); gemm_epi('V')
        p("L_att:")
        att_go()
    for w in range(4): att_variant(w)
    att_fin()
    wo_main()
    if CFG['stop']<=3:
        p(f"s_and_b64 exec, s[{sCAND}:{sCAND+1}], -1\ns_cbranch_scc0 L_noo2"); out_store(); p("L_noo2:")
    else: moe()
    END()
    att_cold()
    SL={3:('L_og0:','L_og1:','L_og3:'),2:('L_og5:','L_og7:'),1:('L_wo2w:','L_ldw:','L_hlw:')} if CFG['cslot'] and CFG['lay'] else {}
    for w in range(4):
        i=p.L.index(f";@slot{w}"); mv=[c for c in COLD if c.strip().startswith(SL.get(w,('-',)))]
        q=P()
        for c in mv: q(c); COLD.remove(c)
        p.L[i:i+1]=q.L
    for c in COLD: p(c)
    p("L_exit:\ns_endpgm")
build()
errs=check(p.L)
hdr=f"""; generated by work/k/gen.py (own generator script)
; @launch grid=(256,1,1) block=(512,1,1) lds=163840
.amdgcn_target "amdgcn-amd-amdhsa--gfx950"
.text
.globl {NAME}_kernel
{".p2align 12" if CFG['pal'] else ""}
{f".fill {(CFG['pal']-1)*64}, 4, 0xbf810000" if CFG['pal']>1 else ""}
.p2align 8
.type {NAME}_kernel,@function
{NAME}_kernel:
"""
ftr=f""".section .rodata,"a"
.p2align 6
.amdhsa_kernel {NAME}_kernel
  .amdhsa_next_free_vgpr 256
  .amdhsa_next_free_sgpr 102
  .amdhsa_accum_offset 256
  .amdhsa_group_segment_fixed_size 0
  .amdhsa_kernarg_size 88
  .amdhsa_user_sgpr_count 2
  .amdhsa_user_sgpr_kernarg_segment_ptr 1
  .amdhsa_system_sgpr_workgroup_id_x 1
.end_amdhsa_kernel
"""
import align8
def fmt(L):
    q=P(); q.L=L; return q.text()
if CFG['al8']: print("align8",align8.align(p.L,hdr,ftr,fmt,sys.argv[1]+".tmp.s",CFG['al8']))
if CFG.get('alst'): print(align8.stat(p.L,hdr,ftr,fmt,sys.argv[1]+".tmp.s"))
open(sys.argv[1],"w").write(hdr+p.text()+ftr)

import subprocess
r=subprocess.run(["clang","-x","assembler","-target","amdgcn-amd-amdhsa","-mcpu=gfx950",sys.argv[1],"-o",sys.argv[1]+".co"],capture_output=True,text=True)
if r.returncode: print(r.stderr[:3000]); sys.exit(1)
r=subprocess.run(["python3","cdna_unwritten_srd_check.py",sys.argv[1]+".co"],capture_output=True,text=True)
if r.returncode: print("SRDCHECK:",r.stdout[-3000:],r.stderr[-1000:])
r=subprocess.run("llvm-size -A "+sys.argv[1]+".co | grep text",shell=True,capture_output=True,text=True); print(r.stdout.strip())
if errs:
    import os; os.remove(sys.argv[1]); sys.exit(1)
```

```python
import sys, math
from asmlib import *
NAME="sequential_preLN__sliding_block__moe_arch_mod__prompt"
CFG=dict(gpg=1, g16r=(2,2,2,2,2,2), g16c=(7,13), g16b=1, dcs=0, dcg=7, g16=0, hpol='sc1', ospol='sc1', qth=(), qthn=0, qb1=0, epi2=0, epo='cb', hs2p=0, hs2=0, hs2u=2, hs2g='FS', hs2s=1, lclr=0, lcu=3, lcs=8, lcg='G2', htop=0, cae=0, jb=1, cslot=1, pks=4, lay=1, padk=0, pade=0, cpa=1, cpe=8, epf=1, b1p=0, pal=1, ahp=0, fpol='sc1', xdma=1, prm=25, ob2=0, psq=1, ldma=1, asp=1, a2=1, cpre=0, cpsl=2, cpb=17, hsl2=2, ogate=4, honly=0, hsp=0, wpause=0, hdef=-1, hdg='FS', xru=17, xrd=0, ahint=12, ptc='', chint=0, dtn=1, hll=1, xm=1, kqr=0, dasl=0, dth=0, odf=0, mrm=1, g2nd=('O1',10), smx=2, smd=0, hst=0, wgf='M', shf=1, gm='no', gr='G1', tlb=0, rld=0, al8=0, ldp='sc1', ldo='sc1', wsp=1, wla2=7, ogr2=(1,2,2,2,3), orem2=(6,1), wwe2=2, smw=(), smo=(3,6), mtr=(0,10), mth=0, wburst=0, mtg='RL', wts=99, wsplit=1, wnoa=0, hclr=0, cst=(3,3), hsent=0, hkv=0, hgate='G1', hrs=0, osent=1, ogr=(2,3,5,2,3,5), opoll='half', osl=(0,0), oini=10, orem=25, clate=1, oprb=0, odn=1, hstep=6, qpol='', apol='', cpol='', wb=(), wbs=31, ht=0, hpoll=0, hsl=1, wog2=0, hearly=0, stg=6, stb=0, ord='xw,xw,xw,xw,xw,xw,xw,xw,xw,xw', amp=None, wose=2, late1=1, sdef=(1,1,1,1), pt2=8, qpair2=0, nacc=8, sfirst=1, prio=0, smode='dot', sfill=(), acsl=0, casl=0, xp=(), dw3=0, wla=7, wwe=2, dgate='PS', dstart='O1', gstart='WE', mdep=10, ddep=12, qpair=0, mpair=0, wpair=0, xnt=0, wnt=0, tpol2='', wtw='no', mtw='w3', wothr1=6, mb=(6,6), mg=('WOD','PR','PR','O1'), mpf=0, mgate='b3', hsplit=0, cpf=0, npf=(0,)*10, wogs=5, clr=0, wot=(), wtpol='', seqs=None, xpol='nt', wpol='', tpol='', wopol='', mpol='', cal=None, opol='', st=['start','b0|hb0','gend|hb9','E1|hE1','st|halo|clr','fl|g2|wo','fseen|h2','kv','aend','ost'], pt=8, wothr=12, wogate=1, h2sl=1, noh2=0, nowo=0, wos=(0,0,0), sched=(1,2,1,1,1,1,1,0,0,0), dbg=0, stop=99, prof=0, rot=('0055','36094758','05162738'), force_slow=0, noclr=0, pre=2, ldst=0, nomfma=0, nohello=0)
for a in sys.argv[2:]:
    k,v=a.split("="); CFG[k]=eval(v)
QB,KB,VB,KH,VH,OB=[i*0x280000 for i in range(6)]
CAND=0xF00000
PS=0xFA0000
CA=0xFE0000
ACT=0xFE1000
HB=0x1000000
PROF=0x1300000
H1=0x1280000; H2=0x1281000; EPO=0x1282000; TH=0x1283000; AH=0x1284000; CH_=0x1285000; H2B=0x1288000
STP=0x1680000; STX=0x1780000
FO=0x1700000; OB2=0x1400000; FL=0x12A0000; FH=0x1740000
CSX=0x12C0000
L_STG=0; L_KV=10240; L_WO=55296; L_MISC=157696; L_MW=0
L_CS=L_MISC
L_SA=L_MISC+512
L_SR=L_SA+1024
L_MODE=L_SR+512
L_FLG=L_MODE+64
F_G1,F_G2,F_H2,F_STG,F_SCP,F_DONE,F_WOR,F_MW=[L_FLG+4*i for i in (0,1,2,4,8,9,10,12)]
L_SWS=L_FLG+80; F_O1=L_FLG+44; F_WOD=L_FLG+64; F_PR=L_FLG+68; F_WO2=L_FLG+72; F_PS=L_FLG+76; F_FS=L_FLG+84; F_LD=L_FLG+88; F_X=L_FLG+96; F_M=L_FLG+112; F_HR=L_FLG+120; F_RI=L_FLG+124; F_OWN=L_FLG+92
F_CC=L_FLG+12; ND=5 if CFG['lclr'] else 4
L_KEYS=L_FLG+128
L_CA=L_KEYS+256; L_TOP=L_CA+64
L_SM=131072
L_RED=L_WO
sX,sW,sWO,sWG,sWU,sWD,sOUT,sWS,sDBG,sWR=[4+4*i for i in range(10)]
sWAVE,sG,sSLOT,sRQ,sHH,sRB,sCT,sMODE,sEP,sTAG=range(44,54)
sT=54
sMI=39
sBK=3
sLO=76
sPROF=80
p=P()
COLD=[]
CALI=lambda: 's_memtime' if CFG['cal'][1]>20000 else 's_memrealtime'
def STAMP(name,w=0):
    if CFG['amp']:
        a=CFG['amp']
        if name=='entry': p(f"s_memrealtime s[{sPROF+8}:{sPROF+9}]")
        for k in (0,1):
            if name==a[k]:
                p(f"{'s_memrealtime' if a[2]=='r' else 's_memtime'} s[{sPROF+2*k}:{sPROF+2*k+1}]")
                if w: p("s_waitcnt lgkmcnt(0)")
    if CFG['cal'] and name in CFG['cal'][0].split('|'):
        p(f"{CALI()} s[{sPROF}:{sPROF+1}]")
        if w: p("s_waitcnt lgkmcnt(0)")
    i=[k for k,n in enumerate(CFG['st']) if name in n.split('|')]
    if CFG['prof'] and i:
        i=i[0]
        p(f"{'s_memrealtime' if CFG['prof']==2 else 's_memtime'} s[{sPROF+2*i}:{sPROF+2*i+1}]")
        if w: p("s_waitcnt lgkmcnt(0)")
def COUNT(name,cnt,full):
    i=[k for k,n in enumerate(CFG['st']) if name in n.split('|')]
    if CFG['prof'] and i:
        r=sPROF+2*i[0]
        p(f"s_waitcnt lgkmcnt(0)\ns_sub_u32 s{r}, {full}, s{cnt}\ns_mul_i32 s{r}, s{r}, 100\ns_add_u32 s{r}, s{r}, s{sPROF}")
def PROFDUMP():
    if not CFG['prof']: return
    p("s_waitcnt vmcnt(0) lgkmcnt(0)")
    p("s_mov_b64 exec, -1")
    for i in range(10): p(f"v_mov_b32 v{2+i}, s{sPROF+2*i}")
    p(f"""s_lshl_b32 s{sT}, s2, 3
    s_add_u32 s{sT}, s{sT}, s{sWAVE}
    s_lshl_b32 s{sT}, s{sT}, 6
    s_add_u32 s{sT}, s{sT}, {PROF}
    v_mov_b32 v1, 0
    s_mov_b64 exec, 1
    buffer_store_dwordx4 v[2:5], v1, s[{sWS}:{sWS+3}], s{sT} offen
    buffer_store_dwordx4 v[6:9], v1, s[{sWS}:{sWS+3}], s{sT} offen offset:16
    s_getpc_b64 s[{sT+2}:{sT+3}]
    v_mov_b32 v12, s{sT+2}
    v_mov_b32 v13, s{sT+3}
    buffer_store_dwordx4 v[10:13], v1, s[{sWS}:{sWS+3}], s{sT} offen offset:32""")
def END():
    PROFDUMP()
    if CFG['amp']:
        a=CFG['amp']
        lp=p.lab("amp"); ok=p.lab("ampok")
        p(f"""s_waitcnt vmcnt(0) lgkmcnt(0)
        s_cmp_eq_u32 s{sPROF+2}, 0
        s_cbranch_scc1 {ok}
        s_cmp_lg_u32 s{sWAVE}, {a[5] if len(a)>5 else 0}
        s_cbranch_scc1 {ok}""")
        if a[4]>=0: p(f"s_cmp_lg_u32 s2, {a[4]}\ns_cbranch_scc1 {ok}")
        p(f"""s_sub_u32 s{sPROF+6}, s{sPROF+2}, s{sPROF}
        s_mul_i32 s{sPROF+6}, s{sPROF+6}, {a[3]}
        s_lshr_b32 s{sPROF+6}, s{sPROF+6}, 4
        s_min_u32 s{sPROF+6}, s{sPROF+6}, 100000
        s_add_u32 s{sPROF+6}, s{sPROF+6}, 3000
        s_mov_b32 s{sPROF+4}, 100000
        {lp}:
        s_sleep 2
        s_memrealtime s[{sPROF+2}:{sPROF+3}]
        s_sub_u32 s{sPROF+4}, s{sPROF+4}, 1
        s_cbranch_scc1 {ok}
        s_waitcnt lgkmcnt(0)
        s_sub_u32 s{sPROF+2}, s{sPROF+2}, s{sPROF+8}
        s_cmp_lt_u32 s{sPROF+2}, s{sPROF+6}
        s_cbranch_scc1 {lp}
        {ok}:""")
    if CFG['cal']:
        lp=p.lab("cal"); ok=p.lab("calok")
        p(f"""s_waitcnt vmcnt(0) lgkmcnt(0)
        s_cmp_eq_u32 s{sPROF}, 0
        s_cbranch_scc1 {ok}
        s_cmp_ge_u32 s{sWAVE}, 4
        s_cbranch_scc1 {ok}
        s_mov_b32 s{sPROF+4}, 100000
        {lp}:
        s_sleep 2
        {CALI()} s[{sPROF+2}:{sPROF+3}]
        s_sub_u32 s{sPROF+4}, s{sPROF+4}, 1
        s_cbranch_scc1 {ok}
        s_waitcnt lgkmcnt(0)
        s_sub_u32 s{sPROF+2}, s{sPROF+2}, s{sPROF}
        s_cmp_lt_u32 s{sPROF+2}, {CFG['cal'][1]}
        s_cbranch_scc1 {lp}
        {ok}:""")
    p("s_endpgm")
S4=lambda r:f"s[{r}:{r+3}]"
SPIN=1<<18

def srd(lst):
    for r,n in lst: p(f"s_mov_b32 s{r+2}, {n}\ns_mov_b32 s{r+3}, 0x20000")
def prologue():
    STAMP('entry')
    p(f"""s_cmp_ge_u32 s2, 256
    s_cbranch_scc1 L_exit
    s_load_dwordx2 s[{sX}:{sX+1}], s[0:1], 0
    s_load_dwordx2 s[{sW}:{sW+1}], s[0:1], 8
    s_load_dwordx2 s[{sWS}:{sWS+1}], s[0:1], 80
    v_lshrrev_b32 v1, 6, v0
    v_and_b32 v0, 63, v0
    v_readfirstlane_b32 s{sWAVE}, v1
    s_and_b32 s{sG}, s2, 7
    s_lshr_b32 s{sSLOT}, s2, 3
    s_lshr_b32 s{sRQ}, s{sG}, 1
    s_and_b32 s{sHH}, s{sG}, 1
    s_and_b32 s{sRB}, s{sSLOT}, 3
    s_lshr_b32 s{sCT}, s{sSLOT}, 2
    s_lshl_b32 s{sBK}, s{sRQ}, 2
    s_add_u32 s{sBK}, s{sBK}, s{sRB}
    s_cmp_gt_u32 s{sCT}, 2
    s_subb_u32 s{sBK}, s{sBK}, 0
    s_and_b32 s{sBK}, s{sBK}, 15""")
    if CFG['cal']: p(f"s_mov_b32 s{sPROF}, 0")
    if CFG['amp']: p(f"s_mov_b32 s{sPROF+2}, 0")
    if CFG['prof']:
        for i in range(1,10): p(f"s_mov_b32 s{sPROF+2*i}, 0")
    if not CFG['cpe']:
        p(f"""s_cmp_lt_u32 s{sWAVE}, 4
        s_cbranch_scc1 L_comp""")
        return
    A=sT+18; K=NAME+"_kernel"
    n=CFG['cpe']
    reg=[f"({K}+0x400-L_pc0)",f"(L_comp-L_pc0)",f"(L_comp+0x1000-L_pc0)",f"({K}+0x1400-L_pc0)"]
    lit="|".join(f"((({r}>>8)&0xff)<<{8*i})" for i,r in enumerate(reg))
    p(f"""s_cmp_lt_u32 s{sWAVE}, 4
    s_cbranch_scc0 L_help
    s_getpc_b64 s[{A}:{A+1}]
    L_pc0:
    s_lshl_b32 s{A+2}, s{sWAVE}, 3
    s_lshr_b32 s{A+2}, {lit}, s{A+2}
    s_and_b32 s{A+2}, s{A+2}, 0xff
    s_and_b32 s{A+3}, s{sSLOT}, {32//n-1}
    s_lshl_b32 s{A+2}, s{A+2}, 8
    s_mul_i32 s{A+3}, s{A+3}, {n*128}
    s_and_b32 s{A}, s{A}, 0xffffff80
    s_add_u32 s{A+2}, s{A+2}, s{A+3}
    v_lshl_add_u32 v1, v0, 7, s{A+2}
    s_mov_b64 exec, {hex((1<<n)-1)}
    global_load_dwordx2 v[228:229], v1, s[{A}:{A+1}] offset:60""")
    if CFG['cpa']==1: cp_rest(A)
    p("s_mov_b64 exec, -1")
    if CFG['lay'] and CFG['pade']: p(f"""s_cmp_eq_u32 s{sWAVE}, 3
    s_cbranch_scc1 L_padT
    s_cmp_eq_u32 s{sWAVE}, 2
    s_cbranch_scc1 L_padV""")
    p(f"""s_branch L_comp
    L_help:""")
def cp_rest(A):
    p(f"""s_lshl_b32 s{A+2}, s{sSLOT}, 2
    s_add_u32 s{A+2}, s{A+2}, s{sWAVE}
    s_mul_i32 s{A+2}, s{A+2}, 384
    s_add_u32 s{A+2}, s{A+2}, ({NAME}_kernel+0x2400-L_pc0)&0xffffff00
    s_min_u32 s{A+2}, s{A+2}, (L_exit-L_pc0-384)&0xffffff80
    s_mov_b64 exec, 7
    v_lshl_add_u32 v1, v0, 7, s{A+2}
    global_load_dwordx2 v[194:195], v1, s[{A}:{A+1}] offset:60""")
def prologue2(comp=0):
    if comp:
        p(f"""s_mov_b32 s{sTAG}, {EPO}
        s_load_dword s{sEP}, s[{sWS}:{sWS+1}], s{sTAG}
        s_load_dwordx2 s[{sWR}:{sWR+1}], s[0:1], 32
        s_load_dwordx2 s[{sOUT}:{sOUT+1}], s[0:1], 64""")
        srd(((sWS,268435456),(sWR,1280),(sOUT,2621440)))
        p(f"""s_mov_b32 s{sLO}, -1
        s_mov_b32 s{sLO+1}, 0
        s_mov_b32 s{sLO+2}, 0xfffff
        s_mov_b32 s{sLO+3}, 0xfffff""")
        return
    if not CFG['epf']: p(f"""s_mov_b32 s{sTAG}, {EPO}
    s_load_dword s{sEP}, s[{sWS}:{sWS+1}], s{sTAG}""")
    p(f"""s_load_dwordx2 s[{sWO}:{sWO+1}], s[0:1], 16
    s_load_dwordx2 s[{sWR}:{sWR+1}], s[0:1], 32
    s_load_dwordx2 s[{sWG}:{sWG+1}], s[0:1], 40
    s_load_dwordx2 s[{sWU}:{sWU+1}], s[0:1], 48
    s_load_dwordx2 s[{sWD}:{sWD+1}], s[0:1], 56
    s_load_dwordx2 s[{sOUT}:{sOUT+1}], s[0:1], 64""")
    srd(((sWS,268435456),(sWO,819200),(sWR,1280),(sWG,1966080),(sWU,1966080),(sWD,1966080),(sOUT,2621440)))
    p(f"""s_mov_b32 s{sLO}, -1
    s_mov_b32 s{sLO+1}, 0
    s_mov_b32 s{sLO+2}, 0xfffff
    s_mov_b32 s{sLO+3}, 0xfffff""")
def moe_role():
    A=sT+20
    if not CFG['mrm']: p(f"s_mov_b32 s{sMI}, s{sSLOT}"); return
    p(f"""s_lshr_b32 s{A}, s{sSLOT}, 3
    s_sub_u32 s{sMI}, s{sSLOT}, s{A}
    s_sub_u32 s{sMI}, s{sMI}, 1
    s_add_u32 s{A}, s{A}, 28
    s_and_b32 s{A+1}, s{sSLOT}, 7
    s_cselect_b32 s{sMI}, s{sMI}, s{A}""")
def mktag():
    p(f"""s_mul_i32 s{sTAG}, s{sEP}, 0x9e3779b1
    s_add_u32 s{sTAG}, s{sTAG}, 0x7f4a7c15
    s_and_b32 s{sTAG}, s{sTAG}, -16""")
def colbyte(dst, lc):
    t=sT+18
    p(f"""s_mul_i32 s{t}, s{lc}, 52
    s_lshr_b32 s{t}, s{t}, 8
    s_add_u32 s{t}, s{t}, s{sHH}
    s_mul_i32 s{t}, s{t}, 640
    s_lshl_b32 s{dst}, s{lc}, 7
    s_add_u32 s{dst}, s{dst}, s{t}""")

def loader():
    CA_=sT+1; CB_=sT+2; CH=sT+3; XO=sT+4; WO_=sT+5; LB=sT+6; A=sT+7; B=sT+8; OFF=sT+9; SEQ=sT+10
    vX=2; vW=6; vt=10
    p(f"""s_sub_u32 s{HW}, s{sWAVE}, 4
    s_lshl_b32 s{A}, s{sCT}, 1
    s_cmp_gt_u32 s{sCT}, 2
    s_subb_u32 s{A}, s{A}, 0
    s_cmp_lg_u32 s{sCT}, 2
    s_addc_u32 s{B}, s{A}, 0""")
    colbyte(CA_,A); colbyte(CB_,B)
    p(f"""v_lshrrev_b32 v{vt}, 3, v0
    v_mul_u32_u24 v{vX}, 1280, v{vt}
    v_lshrrev_b32 v{vt+1}, 4, v0
    v_and_b32 v{vt+2}, 7, v0
    v_xor_b32 v{vt+2}, v{vt+2}, v{vt+1}
    v_lshl_add_u32 v{vX}, v{vt+2}, 4, v{vX}
    v_xor_b32 v{vX+1}, 64, v{vX}
    v_add_u32 v{vX+1}, {10240-1024}, v{vX+1}
    v_add_u32 v{vX+2}, {(1 if CFG['g16'] else 2)*(10240-1024)}, v{vX+CFG['g16']}
    v_add_u32 v{vX+3}, {(3 if CFG['g16'] else 2)*(10240-1024)}, v{vX+1-CFG['g16']}
    v_lshlrev_b32 v{vt+2}, 2, v{vt+1}
    v_and_b32 v{vt+3}, 15, v0
    v_xor_b32 v{vt+2}, v{vt+2}, v{vt+3}
    v_cmp_lt_u32 vcc, 7, v{vt+2}
    v_mov_b32 v{vt+3}, s{CA_}
    v_mov_b32 v{vt+4}, s{CB_}
    v_cndmask_b32 v{vt+3}, v{vt+3}, v{vt+4}, vcc
    v_and_b32 v{vt+2}, 7, v{vt+2}
    v_lshl_add_u32 v{vt+3}, v{vt+2}, 4, v{vt+3}
    v_mul_u32_u24 v{vW}, 3840, v{vt+1}
    v_add_u32 v{vW}, v{vW}, v{vt+3}""")
    for i in range(1,4): p(f"v_add_u32 v{vW+i}, {i*(4*3840-1024)}, v{vW}")
    if CFG['g16']: p(f"v_xor_b32 v{vW+2}, 32, v{vW+2}\nv_xor_b32 v{vW+3}, 32, v{vW+3}")
    ta,tc,tg=CFG['rot']
    pk=lambda t: sum(int(v)<<(4*i) for i,v in enumerate(t))
    p(f"""s_and_b32 s{A}, s{sBK}, 3
    s_lshl_b32 s{A}, s{A}, 2
    s_lshr_b32 s{CH}, {pk(ta)}, s{A}
    s_and_b32 s{CH}, s{CH}, 15
    s_lshl_b32 s{A}, s{sCT}, 2
    s_lshr_b32 s{A}, {hex(pk(tc))}, s{A}
    s_and_b32 s{A}, s{A}, 15
    s_add_u32 s{CH}, s{CH}, s{A}
    s_lshr_b32 s{A}, s{sBK}, 2
    s_lshl_b32 s{A}, s{A}, 1
    s_add_u32 s{A}, s{A}, s{sHH}
    s_lshl_b32 s{A}, s{A}, 2
    s_lshr_b32 s{A}, {hex(pk(tg))}, s{A}
    s_and_b32 s{OFF}, s{A}, 15""")
    seqs=CFG['seqs']
    if seqs:
        n=len(seqs)
        p(f"""s_mul_i32 s{A}, s{CH}, {-(-2048//n)}
        s_lshr_b32 s{A}, s{A}, 11
        s_mul_i32 s{A}, s{A}, {n}
        s_sub_u32 s{CH}, s{CH}, s{A}""")
        for i,q in enumerate(seqs):
            assert sorted(q)==list("0123456789")
            if i: p(f"s_cmp_eq_u32 s{CH}, {i}\ns_cselect_b32 s{SEQ}, {hex(pk(q[:8]))}, s{SEQ}\ns_cselect_b32 s{SEQ+1}, {hex(pk(q[8:]))}, s{SEQ+1}")
            else: p(f"s_mov_b32 s{SEQ}, {hex(pk(q[:8]))}\ns_mov_b32 s{SEQ+1}, {hex(pk(q[8:]))}")
    else:
        p(f"""s_add_u32 s{CH}, s{CH}, s{OFF}
    s_mul_i32 s{A}, s{CH}, 205
    s_lshr_b32 s{A}, s{A}, 11
    s_mul_i32 s{A}, s{A}, 10
    s_sub_u32 s{CH}, s{CH}, s{A}""")
    p(f"""
    s_lshl_b32 s{A}, s{sBK}, 2
    s_add_u32 s{A}, s{A}, s{HW}
    s_mul_i32 s{XO}, s{A}, {32*1280}
    s_mul_i32 s{WO_}, s{HW}, {16*3840}
    s_lshl_b32 s{LB}, s{HW}, 12""")
    CHW=SEQ
    p(f"s_mov_b32 s{CHW}, s{CH}")
    nx=dict(x=0,w=0)
    def issue(order,lim):
        global OPS
        for k in order:
            if k in 'qh':
                ql=p.lab("qth")
                if k=='q': p(f"s_cmp_gt_u32 s{sCT}, 2")
                else: halo_cond(A,B)
                p(f"s_cbranch_scc1 {ql}\ns_waitcnt vmcnt({CFG['qthn']})\n{ql}:")
                continue
            c=nx[k]; nx[k]+=1; assert c<=min(9,lim)
            slot=(c%4)*32768; ch=CH if k=='x' else CHW
            if k=='x': p(f"""s_lshl_b32 s{A}, s{ch}, 7
                s_add_u32 m0, s{LB}, {slot}
                s_add_u32 s{A}, s{A}, s{XO}""")
            else: p(f"""s_mul_i32 s{A}, s{ch}, {64*3840}
                s_add_u32 m0, s{LB}, {slot+16384}
                s_add_u32 s{A}, s{A}, s{WO_}""")
            for i in range(4):
                if c>=5 and ('nol'+k) in CFG['xp']: p(f"s_mov_b64 exec, 1\nbuffer_load_dwordx4 v{vX+i}, {S4(sX)}, s{XO} offen lds\ns_mov_b64 exec, -1"); continue
                if k=='x': p(f"buffer_load_dwordx4 v{vX+i}, {S4(sX)}, s{A} offen offset:{i*1024} {CFG['xpol'] if c<CFG['xnt'] else ''} lds")
                else: p(f"buffer_load_dwordx4 v{vW+i}, {S4(sW)}, s{A} offen offset:{i*1024} {'nt' if c<CFG['wnt'] else CFG['wpol']} lds")
            p(f"""s_add_u32 s{ch}, s{ch}, 1
            s_cmp_eq_u32 s{ch}, 10
            s_cselect_b32 s{ch}, 0, s{ch}""")
            OPS+=[c]*4
    ORD=CFG['ord'].split(',')
    srd(((sX,2621440),(sW,2457600)))
    if CFG['epf']: p(f"s_mov_b32 s{sTAG}, {EPO}")
    p("s_waitcnt lgkmcnt(0)")
    if CFG['epf']: p(f"s_load_dword s{sEP}, s[{sWS}:{sWS+1}], s{sTAG}")
    STAMP('i0')
    def b1():
        STAMP('i1s')
        if CFG['qb1']:
            ql=p.lab("qth"); p(f"s_cmp_gt_u32 s{sCT}, 2\ns_cbranch_scc1 {ql}\ns_waitcnt vmcnt({CFG['qb1']-1})\n{ql}:")
        issue(ORD[1],3)
        STAMP('i1e')
    for c in range(1):
        issue(ORD[0],3); STAMP('i%d'%(c+1))
        if CFG['b1p']==2: b1()
        if c==0:
            prologue2()
            p(f"""v_cmp_lt_u32 vcc, 7, v0
            v_lshlrev_b32 v{vt}, 4, v0
            v_add_u32 v{vt}, {L_FLG}, v{vt}
            v_cndmask_b32 v{vt+2}, 0, -1, vcc
            v_cndmask_b32 v{vt+3}, 0, -1, vcc
            v_cndmask_b32 v{vt+4}, 0, -1, vcc
            v_cndmask_b32 v{vt+5}, 0, -1, vcc
            ds_write_b128 v{vt}, v[{vt+2}:{vt+5}]""")
            early()
    if CFG['b1p']==1: b1()
    p("s_waitcnt lgkmcnt(0)")
    STAMP('epo')
    mktag()
    stats_setup()
    p(f"s_cmp_ge_u32 s{HW}, 2\ns_cbranch_scc1 L_helperB")
    nx0=dict(nx); ops0=list(OPS)
    def steps(hook,isB):
        global OPS
        nx.update(nx0); OPS=list(ops0)
        if CFG['b1p']==0: b1()
        if CFG['hclr']: hclear_setup(isB)
        if CFG['smw'] or CFG['smo']: sm_setup()
        for c in range(8):
            sd=CFG['sdef']
            if c==0 and -1 in sd:
                assert ORD[0][0]=='x'; p(f"s_waitcnt vmcnt({len(OPS)-4})")
                STAMP('x0')
                fill=stats(0)
                for k in range(4):
                    if sd[k]==-1: p(fill[k])
                if max(sd)==-1: stats_red()
            vmwait(c)
            STAMP('d%d'%c)
            p("s_barrier")
            STAMP('ld%d'%c)
            if c==0 and -1 not in sd: fill=stats(0)
            if c==CFG['stg'] and CFG['stb']: stats_get(); hook(100)
            if CFG['hclr']: hclear(c,isB)
            if not isB: hook(200+c)
            if c in CFG['qth']:
                ql=p.lab("qth"); p(f"s_cmp_gt_u32 s{sCT}, 2\ns_cbranch_scc1 {ql}\ns_waitcnt vmcnt({CFG['qthn']})\n{ql}:")
            issue(ORD[2+c],c+3)
            if c==0: p("s_waitcnt lgkmcnt(0)")
            for k in range(4):
                if sd[k]==c: p(fill[k])
            if c==max(0,max(sd)):
                if max(sd)>=0: stats_red()
                stats_pub(); OPS.append('stw')
            if c==CFG['stg'] and not CFG['stb']: stats_get(); hook(100)
            hook(c)
            sm_touch(c,isB)
            if CFG['lay'] and CFG['padk']==2 and c==CFG['pks']:
                p(f"s_cmp_eq_u32 s{HW}, {2*isB}\ns_cbranch_scc1 L_pv{2*isB}\ns_branch L_pv{2*isB+1}\nL_pkb{isB}:")
        assert nx==dict(x=10,w=10)
    return steps
aS=44; dS=64; sacc=60; sone=43; sDBL=sDBG; sSTP=sDBG+1
def stats_setup():
    vt=10
    tc=[int(x) for x in CFG['rot'][1]]
    assert not CFG['seqs'] and sorted(tc+[(tc[2]+1)%10,(tc[2]+2)%10])==list(range(10))
    p(f"""s_lshl_b32 s{sT+16}, s{HW}, 12
    v_bfe_u32 v{vt}, v0, 1, 3
    v_lshrrev_b32 v{vt+1}, 5, v0
    v_lshlrev_b32 v{vt+1}, 2, v{vt+1}
    v_xor_b32 v{vt}, v{vt}, v{vt+1}
    v_lshlrev_b32 v{vt}, 4, v{vt}
    v_and_b32 v{vt+1}, 31, v0
    v_lshl_add_u32 v{vt}, v{vt+1}, 7, v{vt}
    v_add_u32 v{aS}, s{sT+16}, v{vt}
    v_mov_b32 v{sone}, 0x3f803f80
    s_and_b32 s{sSTP}, s{sBK}, 12
    s_add_u32 s{sSTP}, s{sSTP}, s{sBK}
    s_lshl_b32 s{sT+16}, s{sHH}, 2
    s_add_u32 s{sSTP}, s{sSTP}, s{sT+16}
    s_lshl_b32 s{sSTP}, s{sSTP}, 14
    s_lshl_b32 s{sT+16}, s{HW}, 9
    s_add_u32 s{sSTP}, s{sSTP}, s{sT+16}
    s_add_u32 s{sSTP}, s{sSTP}, {STP}
    v_lshrrev_b32 v{vt}, 5, v0
    v_lshlrev_b32 v{vt}, 11, v{vt}
    v_lshl_add_u32 v{aS+4}, v{vt+1}, 4, v{vt}
    s_lshl_b32 s{sT+16}, s{sCT}, 11
    s_cmp_eq_u32 s{sCT}, 2
    s_cselect_b32 s{sT+16}, {STX-STP}, s{sT+16}
    v_lshl_add_u32 v{aS+5}, v{vt+1}, 4, s{sT+16}""")
    for i in range(1,4): p(f"v_xor_b32 v{aS+i}, {16*i}, v{aS}")
    for i in range(4): p(f"v_mov_b32 v{sacc+i}, 0")
    if CFG['smode'] in ('dotx','dotc'):
        for i in range(2*CFG['nacc']): p(f"v_mov_b32 v{102+i}, 0")
def stats(c):
    if 'nostats' in CFG['xp']: return ['s_nop 0']*4
    for i in range(4): p(f"ds_read_b128 {vr(dS+4*i,4)}, v{aS+i} offset:{c*32768}")
    L=[]
    for i in range(4):
        g=f"s_waitcnt lgkmcnt({3-i})"
        for j in range(4):
            r=dS+4*i+j
            u=80+2*(j&1)
            if CFG['smode']=='dotx':
                a=102+2*((4*i+j)%CFG['nacc']); g+=f"\nv_dot2_f32_bf16 v{a}, v{r}, v{sone}, v{a}\nv_dot2_f32_bf16 v{a+1}, v{r}, v{r}, v{a+1}"
            elif CFG['smode']=='dotc':
                a=102+2*((4*i+j)%CFG['nacc']); g+=f"\nv_dot2c_f32_bf16 v{a}, v{r}, v{sone}\nv_dot2c_f32_bf16 v{a+1}, v{r}, v{r}"
            elif CFG['smode']=='dot': g+=f"\nv_dot2_f32_bf16 v{sacc+(j&1)}, v{r}, v{sone}, v{sacc+(j&1)}\nv_dot2_f32_bf16 v{sacc+2+(j&1)}, v{r}, v{r}, v{sacc+2+(j&1)}"
            elif CFG['smode']=='valu': g+=f"\nv_lshlrev_b32 v{u}, 16, v{r}\nv_and_b32 v{u+1}, 0xffff0000, v{r}\nv_add_f32 v{sacc}, v{sacc}, v{u}\nv_fmac_f32 v{sacc+2}, v{u}, v{u}\nv_add_f32 v{sacc+1}, v{sacc+1}, v{u+1}\nv_fmac_f32 v{sacc+3}, v{u+1}, v{u+1}"
            elif CFG['smode']=='pk': g+=f"\nv_lshlrev_b32 v{u}, 16, v{r}\nv_and_b32 v{u+1}, 0xffff0000, v{r}\nv_pk_add_f32 v[{sacc}:{sacc+1}], v[{sacc}:{sacc+1}], v[{u}:{u+1}]\nv_pk_fma_f32 v[{sacc+2}:{sacc+3}], v[{u}:{u+1}], v[{u}:{u+1}], v[{sacc+2}:{sacc+3}]"
        L.append(g)
    return L
def stats_red():
    t=sacc
    p(f"""s_nop 1
    v_add_f32 v{t}, v{t}, v{t+1}
    v_add_f32 v{t+1}, v{t+2}, v{t+3}
    v_mov_b32 v{t+2}, s{sTAG}
    s_nop 0
    v_permlane32_swap_b32 v{t}, v{t+1}
    s_nop 0
    v_add_f32 v{t}, v{t}, v{t+1}
    v_mov_b32 v{t+1}, v{t}
    s_nop 1
    v_permlane32_swap_b32 v{t}, v{t+1}""")
def stats_pub():
    t=sacc
    p(f"""s_mov_b64 exec, s[{sLO}:{sLO+1}]
    buffer_store_dwordx4 {vr(t,4)}, v{aS+5}, {S4(sWS)}, s{sSTP} offen sc1
    s_mov_b64 exec, -1""")
def stats_ld():
    return "\n".join(f"s_add_u32 s{sSTP+1}, s{sSTP}, {4096*i}\nbuffer_load_dwordx4 {vr(dS+4*i,4)}, v{aS+4}, {S4(sWS)}, s{sSTP+1} offen sc1" for i in range(4))
def stats_get():
    p(stats_ld()); OPS.extend(['stp']*4)
def stats_fin(t,B):
    vmwait('stp')
    lp=p.lab("stl"); ok=p.lab("stok"); rt=p.lab("strt")
    p(f"""s_mov_b32 s{B}, {SPIN}
    {lp}:
    v_xor_b32 v{t}, v{dS+2}, v{dS+6}
    v_xor_b32 v{t+1}, v{dS+10}, v{dS+14}
    v_xor_b32 v{t+2}, s{sTAG}, v{dS+2}
    v_xor_b32 v{t+3}, s{sTAG}, v{dS+10}
    v_or3_b32 v{t}, v{t}, v{t+1}, v{t+2}
    v_or_b32 v{t}, v{t}, v{t+3}
    v_cmp_ne_u32 vcc, 0, v{t}
    v_add_f32 v{t+1}, v{dS}, v{dS+4}
    v_add_f32 v{t+2}, v{dS+1}, v{dS+5}
    s_cbranch_vccnz {rt}
    {ok}:""")
    n0=len(p.L)
    p(f"{rt}:"); spin(B,lp,ok,1); p(stats_ld()); p(f"s_waitcnt vmcnt(0)\ns_branch {lp}")
    COLD.append("\n".join(p.L[n0:])); del p.L[n0:]
    p(f"""v_add_f32 v{t+3}, v{dS+8}, v{dS+12}
    v_add_f32 v{t+4}, v{dS+9}, v{dS+13}
    v_add_f32 v{t+1}, v{t+1}, v{t+3}
    v_add_f32 v{t+2}, v{t+2}, v{t+4}
    s_nop 1
    v_permlane32_swap_b32 v{t+1}, v{t+2}
    s_nop 0
    v_add_f32 v{t+1}, v{t+1}, v{t+2}
    v_mul_f32 v{t+1}, {1/640!r}, v{t+1}
    v_mov_b32 v{t+2}, v{t+1}
    s_nop 1
    v_permlane32_swap_b32 v{t+1}, v{t+2}
    s_nop 0
    v_fma_f32 v{t+2}, -v{t+1}, v{t+1}, v{t+2}
    v_max_f32 v{t+2}, 0, v{t+2}""")
    bf16r(t+2,t+2)
    p(f"v_add_f32 v{t+2}, 0x3727c5ac, v{t+2}")
    bf16r(t+2,t+2)
    p(f"""v_sqrt_f32 v{t+2}, v{t+2}
    v_xor_b32 v{t+1}, 0x80000000, v{t+1}""")
    bf16r(t+2,t+2)
    p(f"""v_rcp_f32 v{t+5}, v{t+2}
    v_cvt_pk_bf16_f32 v{t+4}, v{t+1}, v{t+1}
    v_and_b32 v{t+3}, 31, v0
    s_lshl_b32 s{B}, s{HW}, 8
    s_add_u32 s{B}, s{B}, {L_SA}
    v_lshl_add_u32 v{t+1}, v{t+3}, 3, s{B}
    s_lshl_b32 s{B}, s{HW}, 7
    s_add_u32 s{B}, s{B}, {L_SM}
    v_lshl_add_u32 v{t+2}, v{t+3}, 2, s{B}
    {f"v_and_b32 v{t+4}, 0xffff0000, v{t+4}" if CFG['g16'] else ""}
    ds_write_b64 v{t+1}, v[{t+4}:{t+5}]
    ds_write_b32 v{t+2}, v{t+5} offset:{L_SR-L_SM}
    {f"ds_write_b32 v{t+2}, v{t+4}" if CFG['g16'] else ""}""" if CFG['g16'] else f"""v_rcp_f32 v{t+5}, v{t+2}
    v_cvt_pk_bf16_f32 v{t+4}, v{t+1}, v{t+1}
    v_and_b32 v{t+3}, 31, v0
    s_lshl_b32 s{B}, s{HW}, 8
    s_add_u32 s{B}, s{B}, {L_SA}
    v_lshl_add_u32 v{t+1}, v{t+3}, 3, s{B}
    s_lshl_b32 s{B}, s{HW}, 7
    s_add_u32 s{B}, s{B}, {L_SR}
    v_lshl_add_u32 v{t+2}, v{t+3}, 2, s{B}
    ds_write_b64 v{t+1}, v[{t+4}:{t+5}]
    ds_write_b32 v{t+2}, v{t+5}""")
vPT=21; vDUM=39
HS=sT+12; HA=28
def early():
    A=sT+20; B=sT+21; vt=10
    moe_role()
    p(f"""s_lshl_b32 s{A}, s{sSLOT}, 2
    s_add_u32 s{A}, s{A}, s{HW}
    s_mul_i32 s{A}, s{A}, 60
    v_min_u32 v{vt}, 59, v0
    v_add_u32 v{vt}, s{A}, v{vt}
    v_mul_u32_u24 v{vt+1}, 6554, v{vt}
    v_lshrrev_b32 v{vt+1}, 20, v{vt+1}
    v_mul_u32_u24 v{vt+2}, 160, v{vt+1}
    v_sub_u32 v{vt}, v{vt}, v{vt+2}
    v_lshlrev_b32 v{vt}, 7, v{vt}
    v_cmp_gt_u32 vcc, 32, v{vt+1}
    v_and_b32 v{vt+2}, 1, v{vt+1}
    v_mul_u32_u24 v{vt+2}, 20480, v{vt+2}
    v_lshrrev_b32 v{vt+3}, 4, v{vt+1}
    v_mul_u32_u24 v{vt+4}, 10240, v{vt+3}
    s_mul_i32 s{A}, s{sRQ}, 40960
    v_add3_u32 v{vt+2}, v{vt+2}, v{vt}, s{A}
    v_sub_u32 v{vt+2}, v{vt+2}, v{vt+4}
    v_add_u32 v{vt+4}, 163840, v{vt+2}
    v_min_u32 v{vt+2}, v{vt+2}, v{vt+4}
    v_mul_u32_u24 v{vt+3}, {KB}, v{vt+3}
    v_bfe_u32 v{vt+4}, v{vt+1}, 1, 3
    v_mul_u32_u24 v{vt+4}, 163840, v{vt+4}
    v_add3_u32 v{vt+2}, v{vt+2}, v{vt+3}, v{vt+4}
    s_mul_i32 s{A}, s{sRQ}, 20480
    s_sub_u32 s{A}, s{A}, 5120
    v_add_u32 v{vt}, s{A}, v{vt}
    v_add_u32 v{vt+4}, 81920, v{vt}
    v_min_u32 v{vt}, v{vt}, v{vt+4}
    v_and_b32 v{vt+3}, 15, v{vt+1}
    v_mul_u32_u24 v{vt+3}, 81920, v{vt+3}
    s_mov_b32 s{A}, {VB}
    v_add3_u32 v{vt+3}, v{vt+3}, v{vt}, s{A}
    v_cndmask_b32 v{vt+2}, v{vt+3}, v{vt+2}, vcc
    s_mul_i32 s{A}, s{sHH}, {8*163840}
    v_add_u32 v{vPT}, s{A}, v{vt+2}
""")
    if CFG['honly']:
        p(f"""s_lshl_b32 s{A}, s{sSLOT}, 2
        s_add_u32 s{A}, s{A}, s{HW}
        s_mul_i32 s{A}, s{A}, 60
        v_min_u32 v{vt}, 59, v0
        v_add_u32 v{vt}, s{A}, v{vt}
        v_mul_u32_u24 v{vt+2}, 160, v{vt+1}
        v_sub_u32 v{vt}, v{vt}, v{vt+2}
        v_and_b32 v{vt+2}, 1, v{vt+1}
        v_mul_u32_u24 v{vt+2}, 160, v{vt+2}
        v_add_u32 v{vt+2}, v{vt+2}, v{vt}
        v_lshlrev_b32 v{vt}, 1, v{vt}
        v_cndmask_b32 v{vt}, v{vt}, v{vt+2}, vcc
        s_cmp_lt_u32 s{sRQ}, 3
        s_cselect_b32 s{A}, 0, 80
        s_add_u32 s{A}, s{A}, 160
        v_subrev_u32 v{vt}, 80, v{vt}
        v_cmp_le_u32 vcc, s{A}, v{vt}
        v_cmp_lt_u32 s[{A}:{A+1}], 15, v{vt+1}
        v_mov_b32 v{vt+2}, {KH-KB}
        s_and_b64 vcc, vcc, s[{A}:{A+1}]
        s_nop 0
        v_cndmask_b32 v{vt+2}, 0, v{vt+2}, vcc
        v_add_u32 v{vPT}, v{vPT}, v{vt+2}""")
    if CFG['ht']: p(f"""s_lshl_b32 s{A}, s{sSLOT}, 2
    s_add_u32 s{A}, s{A}, s{HW}
    s_mul_i32 s{B}, s{A}, 20
    v_min_u32 v{vt}, 19, v0
    v_add_u32 v{vt}, s{B}, v{vt}
    v_mul_u32_u24 v{vt+1}, 13108, v{vt}
    v_lshrrev_b32 v{vt+1}, 20, v{vt+1}
    v_mul_u32_u24 v{vt+2}, 80, v{vt+1}
    v_sub_u32 v{vt}, v{vt}, v{vt+2}
    v_lshlrev_b32 v{vt}, 7, v{vt}
    v_cmp_gt_u32 vcc, 16, v{vt+1}
    v_and_b32 v{vt+2}, 1, v{vt+1}
    v_mul_u32_u24 v{vt+2}, 10240, v{vt+2}
    v_lshrrev_b32 v{vt+3}, 1, v{vt+1}
    v_mul_u32_u24 v{vt+3}, 163840, v{vt+3}
    s_mul_i32 s{B}, s{sRQ}, 40960
    s_add_u32 s{B}, s{B}, {KH+20480}
    v_add3_u32 v{vt+2}, v{vt+2}, v{vt+3}, s{B}
    v_and_b32 v{vt+3}, 15, v{vt+1}
    v_mul_u32_u24 v{vt+3}, 81920, v{vt+3}
    s_mul_i32 s{B}, s{sRQ}, 20480
    s_add_u32 s{B}, s{B}, {VH+10240}
    v_add_u32 v{vt+3}, s{B}, v{vt+3}
    v_cndmask_b32 v{vt+2}, v{vt+3}, v{vt+2}, vcc
    s_mul_i32 s{B}, s{sHH}, {8*163840}
    v_add3_u32 v{vHT}, v{vt}, v{vt+2}, s{B}
    s_lshl_b32 s{B}, s{sG}, 7
    s_add_u32 s{A}, s{A}, s{B}
    s_lshl_b32 s{A}, s{A}, 7
    s_add_u32 s{A}, s{A}, {FH}
    v_mov_b32 v{vt}, s{A}
    v_cmp_lt_u32 vcc, 19, v0
    s_nop 1
    v_cndmask_b32 v{vHT}, v{vHT}, v{vt}, vcc""")
    nsm=sum(CFG['npf']); per=(100-5*nsm)//2
    if per>0:
        p(f"""s_mul_i32 s{A}, s{sG}, 5
        s_lshr_b32 s{A}, s{A}, 1
        s_mul_i32 s{A}, s{A}, 5
        s_lshr_b32 s{B}, s{HW}, 1
        s_mul_i32 s{B}, s{B}, {per}
        s_add_u32 s{A}, s{A}, s{B}
        s_add_u32 s{A}, s{A}, {5*nsm}
        v_min_u32 v{vt}, {per-1}, v0
        v_add_u32 v{vt}, s{A}, v{vt}
        v_subrev_u32 v{vt+1}, 100, v{vt}
        v_min_u32 v{vt}, v{vt}, v{vt+1}
        s_lshl_b32 s{A}, s{sSLOT}, 1
        s_and_b32 s{B}, s{HW}, 1
        s_add_u32 s{A}, s{A}, s{B}
        s_mul_i32 s{A}, s{A}, 12800
        v_lshl_add_u32 v{vTW}, v{vt}, 7, s{A}""")
    ge=p.lab("mtge"); jn=p.lab("mtj")
    p(f"""v_min_u32 v{vt}, 59, v0
    v_mul_u32_u24 v{vt+1}, 86, v{vt}
    v_lshrrev_b32 v{vt+1}, 8, v{vt+1}
    v_mul_u32_u24 v{vt+1}, {3072-384}, v{vt+1}
    v_lshl_add_u32 v{vt}, v{vt}, 7, v{vt+1}
    s_mul_i32 s{A}, s{sSLOT}, {20*3072}
    s_mul_i32 s{B}, s{sG}, 384
    s_add_u32 s{A}, s{A}, s{B}
    v_add_u32 v{vTM}, s{A}, v{vt}
    s_sub_u32 s{A}, s{sMI}, {0 if CFG['dw3'] else 17}
    s_lshl_b32 s{A}, s{A}, {1 if CFG['dw3'] else 2}
    s_add_u32 s{A}, s{A}, s{HW}
    s_mul_i32 s{A}, s{A}, {24 if CFG['dw3'] else 35 if CFG['dtn'] else 26}
    v_min_u32 v{vt}, {47 if CFG['dw3'] else 63 if CFG['dtn'] else 51}, v0
    v_lshrrev_b32 v{vt+1}, 1, v{vt}
    v_add_u32 v{vt+1}, s{A}, v{vt+1}
    v_min_u32 v{vt+1}, 1535, v{vt+1}
    v_mul_u32_u24 v{vt+1}, 1280, v{vt+1}
    v_and_b32 v{vt}, 1, v{vt}
    v_lshl_add_u32 v{vt}, v{vt}, 7, v{vt+1}
    s_mul_i32 s{B}, s{sG}, 160
    s_and_b32 s{B}, s{B}, -128
    v_add_u32 v{vTD}, s{B}, v{vt}""")
    if CFG['dtn']: p(f"""s_add_u32 s{A}, s{A}, 32
    v_min_u32 v{vt}, 5, v0
    v_lshrrev_b32 v{vt+1}, 1, v{vt}
    v_add_u32 v{vt+1}, s{A}, v{vt+1}
    v_min_u32 v{vt+1}, 1535, v{vt+1}
    v_mul_u32_u24 v{vt+1}, 1280, v{vt+1}
    v_and_b32 v{vt}, 1, v{vt}
    v_lshl_add_u32 v{vt}, v{vt}, 7, v{vt+1}
    v_add_u32 v{vTD2}, s{B}, v{vt}""")
vTD=25; vHT=26; vTD2=27
vTW=22; vTM=24
def touch(va,srd_,pair,pol=''):
    if pair:
        p(f"buffer_load_dword v{vDUM}, v{va}, {S4(srd_)}, 0 offen nt\nbuffer_load_dword v{vDUM}, v{va}, {S4(srd_)}, 0 offen offset:64")
        return 2
    p(f"buffer_load_dword v{vDUM}, v{va}, {S4(srd_)}, 0 offen {pol}")
    return 1
def wtouch(win,isB):
    n=0
    if CFG['wtw']==win and 100-5*sum(CFG['npf'])>0:
        n+=touch(vTW,sWO,CFG['wpair'])
    if CFG['mtw']==win:
        if not isB:
            u=p.lab("tu"); j=p.lab("tj")
            p(f"s_cmp_eq_u32 s{HW}, 0\ns_cbranch_scc0 {u}")
            touch(vTM,sWG,CFG['mpair'])
            p(f"s_branch {j}\n{u}:")
            n+=touch(vTM,sWU,CFG['mpair'])
            p(f"{j}:")
    return n
def qkv_touch():
    if CFG['pt']==99: return
    if CFG['ht']==1: OPS.extend(['pt']*touch(vHT,sWS,0,''))
    OPS.extend(['pt']*touch(vPT,sWS,CFG['qpair'],CFG['tpol']))
    if CFG['ht']==2: OPS.extend(['pt']*touch(vHT,sWS,0,''))
vH=16
OPS=[]
def vmwait(*tags):
    last=max(i for i,t in enumerate(OPS) if t in tags)
    n=len(OPS)-1-last; assert n<64
    p(f"s_waitcnt vmcnt({n})")
HW=sT
def spin(cnt,lp,ok,sleep=0):
    p(f"s_sub_u32 s{cnt}, s{cnt}, 1\ns_cbranch_scc1 {ok}")
    if sleep: p(f"s_sleep {sleep}")
def lds_wait(addr_v,tmp,cnt,cmp,val,sleep=1):
    lp=p.lab("lw"); ok=p.lab("lwok")
    p(f"""s_mov_b32 s{cnt}, {SPIN*4}
    {lp}:
    ds_read_b32 v{tmp}, v{addr_v}
    s_waitcnt lgkmcnt(0)
    v_cmp_{cmp}_u32 vcc, {val}, v{tmp}
    s_nop 0
    s_cbranch_vccz {ok}""")
    spin(cnt,lp,ok,sleep)
    p(f"s_branch {lp}\n{ok}:")
sHL,sHF,sHO,sPH,sHD,sT0=range(sT+1,sT+7)
def att_ids():
    p(f"""s_lshr_b32 s{sHL}, s{sSLOT}, 1
    s_and_b32 s{sHF}, s{sSLOT}, 1
    s_and_b32 s{sHO}, s{sHL}, 1
    s_lshr_b32 s{sPH}, s{sHL}, 1
    s_lshl_b32 s{sHD}, s{sHH}, 3
    s_add_u32 s{sPH}, s{sPH}, s{sHD}
    s_lshl_b32 s{sHD}, s{sHH}, 4
    s_add_u32 s{sHD}, s{sHD}, s{sHL}
    s_lshl_b32 s{sT0}, s{sRQ}, 1
    s_add_u32 s{sT0}, s{sT0}, s{sHF}
    s_lshl_b32 s{sT0}, s{sT0}, 3""")
def flag_addr(vd,vt,withq,A,B,C):
    flag_nib(withq,A,B,C)
    p(f"""v_and_b32 v{vt}, 60, v0
    v_min_u32 v{vt}, 20, v{vt}
    v_bfe_u32 v{vt}, s{A}, v{vt}, 4
    v_and_b32 v{vd}, 3, v0
    v_lshlrev_b32 v{vd}, 2, v{vd}
    v_lshl_add_u32 v{vd}, v{vt}, 7, v{vd}""")
def flag_nib(withq,A,B,C):
    p(f"""s_lshr_b32 s{A}, s{sHL}, 1
    s_mul_i32 s{A}, s{A}, 5
    s_lshl_b32 s{B}, s{sHO}, 1
    s_add_u32 s{A}, s{A}, s{B}
    s_add_u32 s{B}, s{A}, 2
    s_lshr_b32 s{A}, s{A}, 3
    s_lshr_b32 s{B}, s{B}, 3
    s_lshl_b32 s{B}, s{B}, 4
    s_or_b32 s{A}, s{A}, s{B}
    s_add_u32 s{B}, s{A}, 0x55
    s_lshl_b32 s{C}, s{B}, 8
    s_or_b32 s{A}, s{C}, s{A if withq else B}
    s_mul_i32 s{B}, s{sHL}, 20
    s_add_u32 s{C}, s{B}, 19
    s_lshr_b32 s{B}, s{B}, 6
    s_lshr_b32 s{C}, s{C}, 6
    s_lshl_b32 s{C}, s{C}, 4
    s_or_b32 s{B}, s{B}, s{C}
    s_add_u32 s{B}, s{B}, 0xaa
    s_lshl_b32 s{B}, s{B}, 16
    s_or_b32 s{A}, s{A}, s{B}""")
def flag_poll(va,vt,soff,cnt,first=True,sleep=0):
    lp=p.lab("fp"); ok=p.lab("fpok");
    p(f"s_mov_b32 s{cnt}, {SPIN}")
    if not first:
        md=p.lab("fpm"); p(f"s_branch {md}")
    p(f"""{lp}:
    buffer_load_dword v{vt}, v{va}, {S4(sWS)}, s{soff} offen sc1""")
    if not first: p(f"{md}:")
    p(f"""s_waitcnt vmcnt(0)
    v_cmp_ne_u32 vcc, s{sTAG}, v{vt}
    s_nop 0
    s_cbranch_vccz {ok}""")
    spin(cnt,lp,ok,sleep)
    p(f"s_branch {lp}\n{ok}:")
def flag_poll2(va,vt,soff,cnt,n=2,gap=0):
    lp=p.lab("fq"); ok=p.lab("fqok")
    ld=lambda i: f"buffer_load_dword v{vt+i}, v{va}, {S4(sWS)}, s{soff} offen sc1"
    p(f"s_mov_b32 s{cnt}, {SPIN}")
    for i in range(n-1):
        p(ld(i))
        if gap: p(f"s_sleep {gap}")
    p(f"{lp}:")
    for i in range(n):
        p(f"""{ld((i+n-1)%n)}
        s_waitcnt vmcnt({n-1})
        v_cmp_ne_u32 vcc, s{sTAG}, v{vt+i}
        s_nop 0
        s_cbranch_vccz {ok}""")
    spin(cnt,lp,ok)
    p(f"s_branch {lp}\n{ok}:")
def kv_dma(aLin,aTl,sK,sV,sL,A,B,sHO=sHO):
    p(f"""s_mul_i32 s{A}, s{sHO}, 1536
    s_add_u32 s{A}, s{A}, s{sK}
    s_mov_b32 m0, s{sL}
    s_add_u32 s{B}, s{A}, 1536
    buffer_load_dwordx4 v{aLin}, {S4(sWS)}, s{A} offen {CFG['ldp']} lds
    buffer_load_dwordx4 v{aLin}, {S4(sWS)}, s{B} offen offset:1024 {CFG['ldp']} lds
    s_sub_u32 s{A}, s{sK}, 2048
    s_sub_u32 s{B}, s{sV}, 3072
    buffer_load_dwordx4 v{aTl}, {S4(sWS)}, s{A} offen offset:2048 {CFG['ldp']} lds
    buffer_load_dwordx4 v{aLin}, {S4(sWS)}, s{B} offen offset:3072 {CFG['ldp']} lds
    s_add_u32 m0, s{sL}, 4096
    s_add_u32 s{B}, s{sV}, 1024
    buffer_load_dwordx4 v{aLin}, {S4(sWS)}, s{B} offen {CFG['ldp']} lds
    s_mov_b64 exec, s[{sLO}:{sLO+1}]
    buffer_load_dwordx4 v{aLin}, {S4(sWS)}, s{B} offen offset:1024 {CFG['ldp']} lds
    s_mov_b64 exec, -1""")
def kv_addr(aLin,aTl,t):
    p(f"""v_lshlrev_b32 v{aLin}, 4, v0
    v_lshrrev_b32 v{t}, 5, v0
    v_mul_u32_u24 v{t}, {2560-512}, v{t}
    v_add3_u32 v{aTl}, v{aLin}, v{t}, s{sK1024}""")
sK1024=sT+21

def halo_cond(A,B):
    p(f"""s_lshr_b32 s{A}, 0x8ccc, s{sBK}
    s_cmp_gt_u32 s{sCT}, 2
    s_cselect_b32 s{A}, s{A}, 0
    s_and_b32 s{A}, s{A}, 1""")
def halo_flag(vt,A,B,C):
    sk=p.lab("nohalo")
    halo_cond(A,B)
    p(f"""s_cbranch_scc0 {sk}
    s_lshl_b32 s{A}, s{sCT}, 1
    s_add_u32 s{A}, s{A}, s{HW}
    s_sub_u32 s{A}, s{A}, 3
    s_lshl_b32 s{C}, s{sG}, 4
    s_add_u32 s{A}, s{A}, s{C}
    s_lshl_b32 s{A}, s{A}, 2
    s_add_u32 s{A}, s{A}, s{sRB}
    s_lshl_b32 s{A}, s{A}, 8
    s_add_u32 s{A}, s{A}, {FH}
    s_lshl_b32 s{B}, s{HW}, 2
    s_add_u32 s{B}, s{B}, {F_STG-8}
    v_mov_b32 v{vt}, s{B}
    v_lshlrev_b32 v{vt+2}, 7, v0
    v_mov_b32 v{vt+3}, s{sTAG}""")
    lds_wait(vt,vt+1,C,'gt',2,0)
    p(f"""s_mov_b64 exec, 3
    buffer_store_dword v{vt+3}, v{vt+2}, {S4(sWS)}, s{A} offen sc1
    s_mov_b64 exec, -1""")
    STAMP('halo')
    p(f"{sk}:")
def halo_copy(vt,A,B,C,mid):
    sk=p.lab("nohalo"); jn=p.lab("halo_j"); D=168; sD=sT+12; sFH=sT+13
    p(f"s_mov_b32 s{sFH}, 0")
    halo_cond(A,B)
    p(f"""s_cbranch_scc0 {sk}
    s_lshl_b32 s{A}, s{sCT}, 1
    s_add_u32 s{A}, s{A}, s{HW}
    s_sub_u32 s{A}, s{A}, 3
    s_cmp_lt_u32 s{A}, 10
    s_cselect_b32 s{sD}, 1, 0
    s_lshl_b32 s{sD}, 1280, s{sD}
    s_lshl_b32 s{C}, s{sG}, 4
    s_add_u32 s{A}, s{A}, s{C}
    s_lshl_b32 s{A}, s{A}, 2
    s_add_u32 s{A}, s{A}, s{sRB}
    s_lshl_b32 s{A}, s{A}, 8
    s_add_u32 s{sFH}, s{A}, {FH}
    s_lshl_b32 s{B}, s{HW}, 2
    s_add_u32 s{B}, s{B}, {F_STG-8}
    v_mov_b32 v{vt}, s{B}
    s_mul_i32 s{B}, s{HW}, {2*9216}
    s_add_u32 s{B}, s{B}, {L_WO-4*9216}
    v_lshl_add_u32 v{vt+2}, v0, 4, s{B}
    v_mov_b32 v{vt+3}, {F_HR}
    v_mov_b32 v{vt+4}, 1""")
    lds_wait(vt,vt+1,C,'gt',2,0)
    STAMP('hs1')
    for wr in range(2):
        for i in range(9): p(f"ds_read_b128 {vr(D+36*wr+4*i,4)}, v{vt+2} offset:{wr*9216+i*1024}")
        if wr==0: p("s_waitcnt lgkmcnt(6)")
    p(f"v_add_u32 v{vt}, 8, v{vt}")
    lds_wait(vt,vt+1,C,'gt',2,0)
    STAMP('hs2')
    for wr in range(2):
        for i in range(8): p(f"buffer_store_dwordx4 {vr(D+36*wr+4*i,4)}, v{D+36*wr+32+(i&3)}, {S4(sWS)}, {'s%d'%sD if i>>2 else 0} offen sc1")
    p(f"""s_mov_b64 exec, 1
    ds_add_u32 v{vt+3}, v{vt+4}
    s_mov_b64 exec, -1""")
    p(f"{sk}:")
    mid()
    p(f"""s_cmp_eq_u32 s{sFH}, 0
    s_cbranch_scc1 {jn}
    v_mov_b32 v{vt+2}, 0
    v_mov_b32 v{vt+4}, s{sTAG}
    s_waitcnt vmcnt(0)
    s_mov_b64 exec, 1
    buffer_store_dword v{vt+4}, v{vt+2}, {S4(sWS)}, s{sFH} offen sc1
    s_mov_b64 exec, -1""")
    STAMP('halo')
    lds_wait(vt+3,vt+1,C,'gt',2,0)
    p(f"{jn}:")
def own_setup(aF2,vt):
    A=sT+7; B=sT+8; sF,sK,sV,sL=range(sT+12,sT+16)
    flag_addr(aF2,vt,1,A,B,sT+18)
    p(f"""s_lshl_b32 s{sF}, s{sG}, 11
    s_lshl_b32 s{A}, s{sHF}, 4
    s_add_u32 s{sF}, s{sF}, s{A}
    s_add_u32 s{sF}, s{sF}, {FL}
    s_lshl_b32 s{A}, s{HW}, 1
    s_add_u32 s{A}, s{A}, s{sT0}
    s_mul_i32 s{sK}, s{A}, 2560
    s_mul_i32 s{sV}, s{A}, 1280
    s_mul_i32 s{A}, s{sPH}, {64*2560}
    s_add_u32 s{sK}, s{sK}, s{A}
    s_add_u32 s{sK}, s{sK}, {KB}
    s_mul_i32 s{A}, s{sHD}, 81920
    s_add_u32 s{sV}, s{sV}, s{A}
    s_add_u32 s{sV}, s{sV}, {VB}
    s_mul_i32 s{sL}, s{HW}, 5632
    s_add_u32 s{sL}, s{sL}, {L_KV+4*5632}""")
def own_kv(aLin,aTl,aF2,vt,sHO_):
    A=sT+7; B=sT+8; sF,sK,sV,sL=range(sT+12,sT+16); C=sT+18
    p(f"v_mov_b32 v{vt}, {F_FS}\nv_mov_b32 v{vt+1}, 1")
    flag_poll(aF2,vt+2,sF,C)
    p(f"ds_write_b32 v{vt}, v{vt+1}")
    STAMP('hfs')
    kv_dma(aLin,aTl,sK,sV,sL,A,B,sHO_)
    p(f"""s_mov_b64 exec, 1
    v_mov_b32 v{vt}, {F_G1}
    s_waitcnt vmcnt(0)
    ds_add_u32 v{vt}, v{vt+1}
    s_mov_b64 exec, -1""")
    STAMP('hg1')
def helperA(steps):
    A=sT+7; B=sT+8; vt=10
    def hook(c):
        if c==CFG['pt']:
            qkv_touch(); OPS.extend(['pt']*wtouch('w1',0))
        if c==CFG['wts']: OPS.extend(['pt']*touch(vTW,sWO,0))
        if CFG['dcs'] and c==200+CFG['dcg']:
            p(f"""s_lshl_b32 s{sG_}, s{sG}, 3
            s_add_u32 s{sG_}, s{sG_}, s{sCT}
            s_lshl_b32 s{sG_}, s{sG_}, 1
            s_cmp_lg_u32 s{sCT}, 2
            s_cselect_b32 s{A}, s{HW}, 0
            s_add_u32 s{sG_}, s{sG_}, s{A}
            s_lshl_b32 s{sG_}, s{sG_}, 11
            s_add_u32 s{sG_}, s{sG_}, {CSX}
            v_lshlrev_b32 v{vG+8}, 3, v0
            {csld}"""); OPS.extend(['cs']*4)
    vG=100; sG_=sT+13
    csld="\n".join(f"buffer_load_dwordx2 {vr(vG+2*i,2)}, v{vG+8}, {S4(sWS)}, s{sG_} offen offset:{512*i} sc1" for i in range(4))
    steps(hook,0)
    def cs_fin():
        vmwait('cs')
        lp=p.lab("csl"); ok=p.lab("csok"); rt=p.lab("csrt")
        p(f"""s_mov_b32 s{B}, {SPIN}
        s_lshl_b32 s{A}, s{HW}, 8
        s_add_u32 s{A}, s{A}, {L_CS}
        v_lshl_add_u32 v{vt+3}, v0, 2, s{A}
        {lp}:
        v_xor_b32 v{vt}, v{vG+1}, v{vG+3}
        v_xor_b32 v{vt+1}, v{vG+5}, v{vG+7}
        v_xor_b32 v{vG+1}, s{sTAG}, v{vG+1}
        v_xor_b32 v{vG+5}, s{sTAG}, v{vG+5}
        v_or3_b32 v{vt}, v{vt}, v{vt+1}, v{vG+1}
        v_or_b32 v{vt}, v{vt}, v{vG+5}
        v_cmp_ne_u32 vcc, 0, v{vt}
        v_add_f32 v{vt+1}, v{vG}, v{vG+2}
        v_add_f32 v{vt+2}, v{vG+4}, v{vG+6}
        s_cbranch_vccnz {rt}
        {ok}:
        v_add_f32 v{vt+1}, v{vt+1}, v{vt+2}
        ds_write_b32 v{vt+3}, v{vt+1}""")
        n0=len(p.L)
        p(f"{rt}:"); spin(B,lp,ok,1); p(csld); p(f"s_waitcnt vmcnt(0)\ns_branch {lp}")
        COLD.append("\n".join(p.L[n0:])); del p.L[n0:]
        STAMP('csf')
    for c in (8,9):
        vmwait(c); p("s_barrier"); STAMP('ld%d'%c)
        if c==9: STAMP('hb9')
        if c==8 and CFG['dcs']: cs_fin()
        hook(c)
    stats_fin(vt,B)
    p("s_waitcnt lgkmcnt(0)\ns_barrier\ns_barrier" if CFG['epi2']>1 else "s_barrier\ns_waitcnt lgkmcnt(0)\ns_barrier")
    STAMP('hE1')
    if CFG['hsp']&2: p(f"v_mov_b32 v{vt}, {L_MODE}\nds_read_b32 v{vt+1}, v{vt}")
    att_ids()
    if CFG['hsp']&2: p(f"s_waitcnt lgkmcnt(0)\nv_readfirstlane_b32 s{sMODE}, v{vt+1}")
    aLin=6; aTl=7; aF=8; D=40
    p(f"s_mov_b32 s{sK1024}, 1024")
    kv_addr(aLin,aTl,vt)
    flag_addr(aF,vt,0,A,B,sT+17)
    if CFG['hsp']: flag_nib(1,A,B,sT+17); p(f"s_mov_b32 s{sT+21}, s{A}")
    if CFG['hkv']: own_setup(9,vt)
    p(f"v_mov_b32 v{vt+1}, 1")
    sF=sT+9; sK=sT+10; sV=sT+11; sL=sT+16; C=sT+17; sD=sT+12
    dn=p.lab("g2done"); h1=p.lab("rem"); jn=p.lab("remj")
    assert not (CFG['hsent'] or CFG['hkv'])
    p(f"""v_and_b32 v{vt+2}, 4, v{aF}
    v_and_b32 v{aF}, -128, v{aF}
    s_cmp_lg_u32 s{HW}, 0
    s_cbranch_scc1 {h1}
    v_add_u32 v{aF}, v{aF}, v{vt+2}
    s_mul_i32 s{A}, s{sHF}, 24
    s_lshl_b32 s{sF}, s{sG}, 11
    s_add_u32 s{sF}, s{sF}, s{A}
    s_add_u32 s{sF}, s{sF}, {FL}
    {f"s_cmp_eq_u32 s{sT0}, 56" if CFG['honly'] else ""}
    {f"s_cselect_b32 s{B}, 0, {KH-KB}" if CFG['honly'] else f"s_mov_b32 s{B}, 0"}
    s_branch {jn}
    {h1}:
    v_lshlrev_b32 v{aF}, 3, v{aF}
    s_lshl_b32 s{A}, s{sHF}, 2
    s_add_u32 s{A}, s{A}, s{sG}
    s_sub_u32 s{A}, s{A}, 2
    s_and_b32 s{A}, s{A}, 7
    s_lshl_b32 s{sF}, s{A}, 14
    s_mul_i32 s{A}, s{sHF}, -768
    s_add_u32 s{sF}, s{sF}, s{A}
    s_add_u32 s{sF}, s{sF}, {FH+768}
    s_mov_b32 s{B}, {KH-KB}
    {jn}:
    s_lshl_b32 s{A}, s{HW}, 2
    s_sub_u32 s{sK}, -2, s{A}
    s_cmp_eq_u32 s{sHF}, 0
    s_cselect_b32 s{A}, s{sK}, s{A}
    s_mul_i32 s{sD}, s{sHF}, 5120
    s_sub_u32 s{sD}, s{sD}, 2560
    s_add_u32 s{A}, s{A}, s{sT0}
    s_mul_i32 s{sK}, s{A}, 2560
    s_mul_i32 s{sV}, s{A}, 1280
    s_mul_i32 s{A}, s{sPH}, {64*2560}
    s_add_u32 s{sK}, s{sK}, s{A}
    s_add_u32 s{sK}, s{sK}, s{B}
    s_add_u32 s{sK}, s{sK}, {KB}
    s_mul_i32 s{A}, s{sHD}, 81920
    s_add_u32 s{sV}, s{sV}, s{A}
    s_add_u32 s{sV}, s{sV}, s{B}
    s_add_u32 s{sV}, s{sV}, {VB}
    s_mul_i32 s{sL}, s{HW}, {-2*5632}
    s_add_u32 s{sL}, s{sL}, {L_KV+3*5632}""")
    if CFG['hsp']&2:
        sk=p.lab("noown"); sp=p.lab("ownp"); so=p.lab("ownok"); O=[sT+13,sT+14,sT+15,sT+18,sT+19,sT+20]; Rq=[4,8,12,28,40,96]
        halo_cond(A,B)
        p(f"""s_and_b32 s{A}, s{A}, s{HW}
        s_andn2_b32 s{A}, s{A}, s{sMODE}
        s_cbranch_scc0 {sk}
        s_lshl_b32 s{A}, s{sG}, 11
        s_add_u32 s{A}, s{A}, {FL}
        s_lshl_b32 s{B}, s{sHF}, 4
        s_add_u32 s{B}, s{B}, s{A}
        s_add_u32 s{A}, s{A}, 8""")
        for i in range(6): p(f"s_bfe_u32 s{O[i]}, s{sT+21}, {hex((4*i)|(4<<16))}\ns_lshl_b32 s{O[i]}, s{O[i]}, 7\ns_add_u32 s{O[i]}, s{O[i]}, s{B if i<2 else A}")
        assert 'FS' not in CFG['gm']+CFG['gr']
        if CFG['ogate']: p(f"v_mov_b32 v{vt}, {F_FS}"); lds_wait(vt,vt+5,C,'gt',CFG['ogate'],1)
        p(f"v_mov_b32 v{vt}, {F_OWN}\ns_mov_b32 s{C}, {SPIN}\n{sp}:")
        for i in range(6): p(f"s_load_dwordx4 s[{Rq[i]}:{Rq[i]+3}], s[{sWS}:{sWS+1}], s{O[i]} glc")
        p("s_waitcnt lgkmcnt(0)")
        for i in range(6):
            r=Rq[i]
            p(f"s_and_b64 s[{A+1}:{A+2}], s[{r}:{r+1}], s[{r+2}:{r+3}]" if 0 else "")
            p(f"s_xor_b64 s[{r}:{r+1}], s[{r}:{r+1}], s[{r+2}:{r+3}]\ns_xor_b32 s{r+2}, s{r+2}, s{sTAG}\ns_xor_b32 s{r+3}, s{r+3}, s{sTAG}\ns_or_b64 s[{r}:{r+1}], s[{r}:{r+1}], s[{r+2}:{r+3}]")
            if i: p(f"s_or_b64 s[4:5], s[4:5], s[{r}:{r+1}]")
        p(f"""s_cbranch_scc0 {so}
        s_sub_u32 s{C}, s{C}, 1
        {f"s_sleep {CFG['hsl2']}" if CFG['hsl2'] else ""}
        s_cbranch_scc0 {sp}
        {so}:
        ds_write_b32 v{vt}, v{vt+1}""")
        if CFG['prof']: p("s_mov_b64 s[96:97], 0\ns_mov_b64 s[98:99], 0")
        STAMP('own')
        p(f"{sk}:")
    if CFG['lay'] and CFG['padk']==3:
        p(f"s_cmp_eq_u32 s{HW}, 1\ns_cbranch_scc1 L_pv0\nL_pkb0:")
        STAMP('pk')
    p(f"s_cmp_eq_u32 s{sT0}, 0\ns_cbranch_scc1 {dn}")
    def both():
        kv_dma(aLin,aTl,sK,sV,sL,A,B)
        p(f"""s_add_u32 s{sK}, s{sK}, s{sD}
        s_add_u32 s{sK}, s{sK}, s{sD}
        s_add_u32 s{sV}, s{sV}, s{sD}
        s_sub_u32 s{sL}, s{sL}, 5632""")
        if CFG['hs2']:
            sk=p.lab("nob"); lp=p.lab("bp"); ok=p.lab("bpok")
            p(f"""s_cmp_eq_u32 s{HW}, 0
            s_cbranch_scc1 {sk}
            v_mov_b32 v{vt+2}, {F_M+4}""")
            if CFG['hs2p']:
                assert CFG['hsp']&1
                sp=p.lab("sbp")
                for i in range(4): p(f"s_add_u32 s{8+i}, s{8+i}, 128")
                if CFG['hs2p']==1: p(f"s_waitcnt vmcnt(0)\nds_write_b32 v{vt+2}, v{vt+1}")
                p(f"s_mov_b32 s{C}, 256\n{sp}:")
                for i in range(4): p(f"s_load_dword s{4+i}, s[{sWS}:{sWS+1}], s{8+i} glc")
                p("s_waitcnt lgkmcnt(0)")
                for i in range(4): p(f"s_xor_b32 s{4+i}, s{4+i}, s{sTAG}")
                p(f"""s_or_b32 s4, s4, s5
                s_or_b32 s6, s6, s7
                s_or_b32 s4, s4, s6
                s_cbranch_scc0 {ok}
                s_sub_u32 s{C}, s{C}, 1
                {f"s_sleep {CFG['hs2s']}" if CFG['hs2s'] else ""}
                s_cbranch_scc0 {sp}""")
            p(f"""s_mov_b32 s{C}, {SPIN}
            {lp}:
            buffer_load_dword v{vt+5}, v{aF}, {S4(sWS)}, s{sF} offen offset:128 sc1
            s_waitcnt vmcnt(0)
            ds_write_b32 v{vt+2}, v{vt+1}
            v_cmp_ne_u32 vcc, s{sTAG}, v{vt+5}
            s_nop 0
            s_cbranch_vccz {ok}""")
            spin(C,lp,ok,CFG['hs2s'])
            p(f"s_branch {lp}\n{ok}:")
            STAMP('hfb')
            if CFG['hs2p']==2:
                kv_dma(aLin,aTl,sK,sV,sL,A,B)
                p(f"s_waitcnt vmcnt(6)\nds_write_b32 v{vt+2}, v{vt+1}\ns_branch L_hs2j")
            p(f"{sk}:")
        kv_dma(aLin,aTl,sK,sV,sL,A,B)
        if CFG['hs2p']==2: p("L_hs2j:")
    GT=dict(G1=(F_G1,4),FS=(F_FS,1),FS4=(F_FS,4),M=(F_M,1))
    if CFG['gm']!='no' or CFG['gr']!='no':
        g0=p.lab("gate0"); g1=p.lab("gate1")
        p(f"s_cmp_lg_u32 s{HW}, 0\ns_cbranch_scc1 {g0}")
        if CFG['gm']!='no': p(f"v_mov_b32 v{vt}, {GT[CFG['gm']][0]}"); lds_wait(vt,vt+5,C,'gt',GT[CFG['gm']][1],0)
        p(f"s_branch {g1}\n{g0}:")
        if CFG['gr']!='no': p(f"v_mov_b32 v{vt}, {GT[CFG['gr']][0]}"); lds_wait(vt,vt+5,C,'gt',GT[CFG['gr']][1],0)
        p(f"{g1}:")
    if CFG['hsp']&1:
        vp=p.lab("vecp"); sp=p.lab("scp"); so=p.lab("scok")
        p(f"s_cmp_eq_u32 s{HW}, 0\ns_cbranch_scc1 {vp}")
        for i in range(4): p(f"s_bfe_u32 s{8+i}, s{sT+21}, {hex((8+4*i)|(4<<16))}\ns_lshl_b32 s{8+i}, s{8+i}, 10\ns_add_u32 s{8+i}, s{8+i}, s{sF}")
        p(f"s_mov_b32 s{C}, 256\n{sp}:")
        for i in range(4): p(f"s_load_dword s{4+i}, s[{sWS}:{sWS+1}], s{8+i} glc")
        p("s_waitcnt lgkmcnt(0)")
        for i in range(4): p(f"s_xor_b32 s{4+i}, s{4+i}, s{sTAG}")
        p(f"""s_or_b32 s4, s4, s5
        s_or_b32 s6, s6, s7
        s_or_b32 s4, s4, s6
        s_cbranch_scc0 {so}
        s_sub_u32 s{C}, s{C}, 1
        {f"s_sleep {CFG['hsl']}" if CFG['hsl'] else ""}
        s_cbranch_scc0 {sp}
        {vp}:""")
        flag_poll(aF,vt+5,sF,C,sleep=CFG['hsl'])
        p(f"{so}:")
    elif CFG['hpoll']: flag_poll2(aF,vt+5,sF,C,CFG['hpoll'],CFG['hsl'])
    else: flag_poll(aF,vt+5,sF,C,sleep=CFG['hsl'])
    STAMP('hf')
    both()
    if CFG['wpause']: p(f"s_lshl_b32 s{A}, s{HW}, 2\ns_add_u32 s{A}, s{A}, {F_RI-4}\nv_mov_b32 v{vt+2}, s{A}\nds_write_b32 v{vt+2}, v{vt+1}")
    if CFG['mtw'] in ('RI','MI'):
        nt_=p.lab("nori"); d2=p.lab("g2d")
        p(f"s_cmp_eq_u32 s{HW}, {int(CFG['mtw']=='RI')}\ns_cbranch_scc0 {nt_}")
        touch(vTM,sWG,0); touch(vTM,sWU,0)
        p(f"s_waitcnt vmcnt(2)\ns_branch {d2}\n{dn}:\ns_cmp_eq_u32 s{HW}, {int(CFG['mtw']=='RI')}\ns_cbranch_scc0 {d2}")
        touch(vTM,sWG,0); touch(vTM,sWU,0)
        p(f"s_branch {d2}\n{nt_}:"); dn=d2
    p(f"""s_waitcnt vmcnt(0)
    {dn}:
    s_lshl_b32 s{A}, s{HW}, {3 if CFG['hs2'] else 2}
    s_add_u32 s{A}, s{A}, {F_M}
    v_mov_b32 v{vt}, {F_G2}
    v_mov_b32 v{vt+2}, s{A}
    s_mov_b64 exec, 1
    ds_write_b32 v{vt+2}, v{vt+1}
    {f"ds_write_b32 v{vt+2}, v{vt+1} offset:{F_RI-4-F_M}" if CFG['wpause'] else ""}
    ds_add_u32 v{vt}, v{vt+1}
    s_mov_b64 exec, -1""")
    STAMP('g2')
    if CFG['lclr']:
        sk=p.lab("nolc"); na=p.lab("lcna"); lp=p.lab("lcp"); ok=p.lab("lcok"); D=40
        p(f"""s_cmp_lg_u32 s{HW}, 0
        s_cbranch_scc1 {sk}
        v_mov_b32 v{vt}, {F_CC}
        s_lshr_b32 s{A}, s2, 2
        s_lshl_b32 s{A}, s{A}, 5
        s_and_b32 s{B}, s2, 3
        s_add_u32 s{A}, s{A}, s{B}
        s_lshl_b32 s{A}, s{A}, 2
        s_add_u32 s{A}, s{A}, {H2B}
        s_mov_b32 s{B}, {H2B}
        v_mov_b32 v{D+4}, s{sTAG}
        v_mov_b32 v{D+5}, 0
        v_lshlrev_b32 v{D+6}, 7, v0""")
        lds_wait(vt,vt+5,C,'gt',4,1)
        p(f"""s_mov_b64 exec, 1
        buffer_store_dword v{D+4}, v{D+5}, {S4(sWS)}, s{A} offen sc1
        s_mov_b64 exec, -1""")
        STAMP('lc1')
        g=dict(G2=(F_G2,2),D1=(F_DONE,1),WOR=(F_WOR,2),WOD=(F_WOD,2))[CFG['lcg']]
        p(f"""s_cmp_eq_u32 s{sT0}, 0
        s_cselect_b32 s{A}, {F_DONE-L_FLG}, {g[0]-L_FLG}
        s_cselect_b32 s{sD}, 4, {g[1]}
        s_add_u32 s{A}, s{A}, {L_FLG}
        v_mov_b32 v{vt}, s{A}""")
        lds_wait(vt,vt+5,C,'gt',f"s{sD}",2)
        p(f"""s_mov_b32 s{C}, {SPIN}
        {lp}:
        buffer_load_dwordx4 {vr(D,4)}, v{D+6}, {S4(sWS)}, s{B} offen sc1
        s_waitcnt vmcnt(0)
        v_xor_b32 v{D}, v{D}, v{D+1}
        v_xor_b32 v{D+2}, v{D+2}, v{D+3}
        v_xor_b32 v{D+1}, s{sTAG}, v{D+1}
        v_xor_b32 v{D+3}, s{sTAG}, v{D+3}
        v_or3_b32 v{D}, v{D}, v{D+1}, v{D+2}
        v_or_b32 v{D}, v{D}, v{D+3}
        v_cmp_ne_u32 vcc, 0, v{D}
        s_nop 0
        s_cbranch_vccz {ok}""")
        spin(C,lp,ok,CFG['lcs'])
        p(f"""s_branch {lp}
        {ok}:
        v_mov_b32 v{vt}, {F_DONE}
        s_mov_b64 exec, 1
        ds_add_u32 v{vt}, v{vt+1}
        s_mov_b64 exec, -1""")
        STAMP('lc2'); COUNT('nlc',C,SPIN)
        p(f"{sk}:")
    if CFG['mtw']=='sm':
        u=p.lab("smu"); j=p.lab("smj")
        def run(r,n,f):
            for i in range(n):
                if CFG['smx']==2: p(f"s_load_dwordx2 s[100:101], s[{r}:{r+1}], s{A} offset:{f(i)+60}")
                else: p(f"s_load_dword s100, s[{r}:{r+1}], s{A} offset:{f(i)}")
        p(f"""s_mul_i32 s{A}, s{sSLOT}, {20*3072}
        s_mul_i32 s{B}, s{sG}, 384
        s_add_u32 s{A}, s{A}, s{B}
        s_cmp_eq_u32 s{HW}, 0
        s_cbranch_scc0 {u}""")
        run(sWG,60,lambda i:(i//3)*3072+(i%3)*128)
        p(f"s_branch {j}\n{u}:")
        run(sWU,60,lambda i:(i//3)*3072+(i%3)*128)
        p(f"{j}:")
        if CFG['smd']:
            p(f"""s_lshl_b32 s{A}, s{sSLOT}, 1
            s_add_u32 s{A}, s{A}, s{HW}
            s_mul_i32 s{A}, s{A}, {24*1280}
            s_mul_i32 s{B}, s{sG}, 160
            s_and_b32 s{B}, s{B}, -128
            s_add_u32 s{A}, s{A}, s{B}""")
            run(sWD,48,lambda i:(i//2)*1280+(i%2)*128)
        STAMP('mt')
        if CFG['prof'] and any('mt2' in x for x in CFG['st']): p("s_waitcnt lgkmcnt(0)"); STAMP('mt2')
    if 'w3' in (CFG['wtw'],CFG['mtw']):
        fa=dict(G1=(F_G1,4),WOR=(F_WOR,2),WOD=(F_WOD,2),WO2=(F_WO2,2),DONE=(F_DONE,ND),PR=(F_PR,4),LD=(F_LD,1),RL=(F_H2,4))[CFG['mtg']]
        p(f"v_mov_b32 v{vt}, {fa[0]}")
        if CFG['mth']:
            nt_=p.lab("nomt")
            p(f"s_cmp_eq_u32 s{sHF}, 0\ns_cbranch_scc1 {nt_}")
        lds_wait(vt,vt+5,C,'gt',fa[1],1)
        wtouch('w3',0)
        if CFG['mth']:
            p(f"v_subrev_u32 v{vTM}, {20*3072}, v{vTM}")
            if CFG['mth']==2: p("s_waitcnt vmcnt(0)")
            wtouch('w3',0)
            p(f"{nt_}:")
        if CFG['dw3']: touch(vTD,sWD,CFG['mpair'])
        STAMP('mt')
        if CFG['prof'] and any('mt2' in x for x in CFG['st']): p("s_waitcnt vmcnt(0)"); STAMP('mt2')

def tr_addr(a0,t):
    tab=[[0,8],[4,12],[16,36],[20,28],[24,32]]
    pk=[sum((tab[u][rd]//4)<<(4*u) for u in range(5)) for rd in range(2)]
    A=sT+7; B=sT+8
    p(f"""s_mov_b32 s{A}, {pk[0]}
    s_mov_b32 s{B}, {pk[1]}
    v_bfe_u32 v{t}, v0, 2, 2
    v_mul_u32_u24 v{t}, 160, v{t}
    v_and_b32 v{t+1}, 3, v0
    v_mad_u32_u24 v{t}, v{t+1}, 40, v{t}
    v_lshrrev_b32 v{t+1}, 4, v0""")
    for s_ in range(5):
        p(f"""v_add_u32 v{t+2}, {4*s_}, v{t+1}
        v_mul_u32_u24 v{t+4}, 52, v{t+2}
        v_lshrrev_b32 v{t+4}, 8, v{t+4}
        v_mul_u32_u24 v{t+5}, 5, v{t+4}
        v_sub_u32 v{t+2}, v{t+2}, v{t+5}
        v_lshlrev_b32 v{t+2}, 2, v{t+2}
        v_mul_u32_u24 v{t+4}, 10, v{t+4}""")
        for rd in range(2):
            p(f"""v_bfe_u32 v{t+3}, s{(A,B)[rd]}, v{t+2}, 4
            v_add_u32 v{t+3}, v{t+3}, v{t+4}
            v_mul_u32_u24 v{t+3}, 640, v{t+3}
            v_add_u32 v{a0+2*s_+rd}, v{t+3}, v{t}""")
sBLK,sJ=sT+9,sT+10
def wo_ids():
    p(f"""s_lshr_b32 s{sBLK}, s{sSLOT}, 3
    s_lshl_b32 s{sJ}, s{sG}, 2
    s_add_u32 s{sBLK}, s{sBLK}, s{sJ}
    s_and_b32 s{sJ}, s{sSLOT}, 7""")
def clr_ids(A,B,C,D_):
    p(f"""s_lshr_b32 s{C}, s{sSLOT}, 3
    s_lshl_b32 s{B}, s{sG}, 2
    s_add_u32 s{C}, s{C}, s{B}
    s_lshl_b32 s{C}, s{C}, 3
    s_and_b32 s{B}, s{sSLOT}, 7
    s_add_u32 s{D_}, s{C}, s{B}
    s_lshr_b32 s{A}, s{D_}, 1
    s_mul_i32 s{A}, s{A}, 20480
    s_and_b32 s{B}, s{B}, 1
    s_mul_i32 s{B}, s{B}, 5120
    s_add_u32 s{A}, s{A}, s{B}
    s_add_u32 s{A}, s{A}, {OB}
    s_mul_i32 s{B}, s{sHH}, 10240
    s_add_u32 s{C}, s{A}, 10240
    s_add_u32 s{A}, s{A}, s{B}
    s_sub_u32 s{C}, s{C}, s{B}
    s_lshl_b32 s{D_}, s{D_}, 10
    s_add_u32 s{D_}, s{D_}, {PS}""")
def clears(part):
    A=sT+13; B=sT+14; C=sT+15; D_=sT+16; D=12; aL=16
    if part==0:
        clr_ids(A,B,C,D_)
        p(f"v_lshlrev_b32 v{aL}, 4, v0")
        for r in range(4): p(f"v_mov_b32 v{D+r}, -1")
        return
    st4=lambda so,off,sc: f"buffer_store_dwordx4 v[{D}:{D+3}], v{aL}, {S4(sWS)}, s{so} offen offset:{off} {sc}" if not (CFG['noclr']>>(0 if sc!='sc1' else 1))&1 else "s_nop 0"
    w2=p.lab("clw2"); w3=p.lab("clw3"); dn=p.lab("cldn")
    if CFG['hsent']:
        H_=sT+17; nh=p.lab("clnh")
        p(f"""s_cmp_eq_u32 s{sWAVE}, 3
        s_cbranch_scc1 {nh}
        s_lshl_b32 s{B}, s{sWAVE}, 8
        s_add_u32 s{B}, s{B}, s2
        s_sub_u32 s{H_}, s{B}, 384
        s_cselect_b32 s{H_}, s{B}, s{H_}
        s_cselect_b32 s{H_+1}, 3, 2
        s_cselect_b32 s{H_+2}, 0, {VH+10240-KH-20480}
        s_cselect_b32 s{H_+3}, 1, 0
        s_lshr_b32 s{B}, s{H_}, s{H_+1}
        s_lshl_b32 s{H_+1}, s{B}, s{H_+1}
        s_sub_u32 s{H_}, s{H_}, s{H_+1}
        s_mul_i32 s{H_}, s{H_}, 2560
        s_add_u32 s{H_}, s{H_}, s{H_+2}
        s_mul_i32 s{H_+1}, s{B}, 171
        s_lshr_b32 s{H_+1}, s{H_+1}, 9
        s_add_u32 s{B}, s{B}, s{H_+1}
        s_mul_i32 s{B}, s{B}, 20480
        s_lshl_b32 s{B}, s{B}, s{H_+3}
        s_add_u32 s{H_}, s{H_}, s{B}
        s_add_u32 s{H_}, s{H_}, {KH+20480}""")
        for o in (0,1024,1536): p(st4(H_,o,"sc1"))
        p(f"{nh}:")
    p(f"""s_cmp_ge_u32 s{sWAVE}, 2
    s_cbranch_scc1 {w2}
    s_mul_i32 s{B}, s{sWAVE}, 2560
    s_add_u32 s{A}, s{A}, s{B}""")
    for o in (0,1024,1536): p(st4(A,o,CFG['cpol']))
    p(f"""s_branch {dn}
    {w2}:
    s_cmp_eq_u32 s{sWAVE}, 3
    s_cbranch_scc1 {w3}
    s_mul_i32 s{C}, s2, 2560
    s_add_u32 s{C}, s{C}, {CAND}""")
    if 'c' in CFG['ptc']: p(f"v_lshlrev_b32 v228, 7, v0\ns_mov_b64 exec, {0x3ff if 'l' in CFG['ptc'] else 0xfffff}\nbuffer_load_dword v229, v228, {S4(sWS)}, s{C} offen\ns_mov_b64 exec, -1")
    for o in (0,1024,1536): p(st4(C,o,"sc1"))
    p(f"""s_branch {dn}
    {w3}:""")
    if CFG['osent']:
        if 'o' in CFG['ptc']: p(f"v_lshlrev_b32 v228, 7, v0\ns_mov_b32 exec_hi, 0xff\nbuffer_load_dword v229, v228, {S4(sWS)}, s{C} offen\ns_mov_b64 exec, -1")
        for o in range(4): p(st4(C,o*1024,"sc1"))
        p(f"s_add_u32 s{C}, s{C}, 4096"); p(st4(C,0,"sc1"))
    p(f"""s_cmp_ge_u32 s2, 24
    s_cbranch_scc1 {dn}
    s_lshl_b32 s{C}, s2, 10
    s_add_u32 s{C}, s{C}, {ACT}""")
    if 'a' in CFG['ptc']: p(f"v_lshlrev_b32 v228, 7, v0\ns_mov_b64 exec, 0xff\nbuffer_load_dword v229, v228, {S4(sWS)}, s{C} offen\ns_mov_b64 exec, -1")
    p(st4(C,0,"sc1"))
    p(f"{dn}:")
cU=sT+13; vC=84
def hclear_setup(isB):
    A=sT+15; B=sT+16; C=sT+17; D_=sT+18; H_=sT+17
    clr_ids(A,B,C,D_)
    if isB: p(f"""s_mul_i32 s{B}, s2, 2560
        s_add_u32 s{B}, s{B}, {CAND}
        s_add_u32 s{A}, s{C}, 2560
        s_cmp_eq_u32 s{HW}, 2
        s_cselect_b32 s{cU+1}, s{B}, s{A}
        s_mov_b32 s{cU}, s{C}""")
    else: p(f"""s_mul_i32 s{B}, s{HW}, 2560
        s_add_u32 s{cU+1}, s{A}, s{B}""")
    p(f"""s_lshl_b32 s{B}, s{HW}, 8
    s_add_u32 s{B}, s{B}, s2
    s_sub_u32 s{H_}, s{B}, 384
    s_cselect_b32 s{H_}, s{B}, s{H_}
    s_cselect_b32 s{H_+1}, 3, 2
    s_cselect_b32 s{H_+2}, 0, {VH+10240-KH-20480}
    s_cselect_b32 s{H_+3}, 1, 0
    s_lshr_b32 s{B}, s{H_}, s{H_+1}
    s_lshl_b32 s{H_+1}, s{B}, s{H_+1}
    s_sub_u32 s{H_}, s{H_}, s{H_+1}
    s_mul_i32 s{H_}, s{H_}, 2560
    s_add_u32 s{H_}, s{H_}, s{H_+2}
    s_mul_i32 s{H_+1}, s{B}, 171
    s_lshr_b32 s{H_+1}, s{H_+1}, 9
    s_add_u32 s{B}, s{B}, s{H_+1}
    s_mul_i32 s{B}, s{B}, 20480
    s_lshl_b32 s{B}, s{B}, s{H_+3}
    s_add_u32 s{H_}, s{H_}, s{B}
    s_add_u32 s{H_}, s{H_}, {KH+20480}""")
    if isB: p(f"""s_cmp_eq_u32 s{HW}, 2
        s_cselect_b32 s{cU}, s{H_}, s{cU}
        s_cselect_b32 s{cU+3}, 256, s2
        s_lshl_b32 s{cU+2}, s2, 10
        s_cmp_lt_u32 s{cU+3}, 24
        s_cselect_b32 s{H_}, 0, {STX+0x20000-ACT}
        s_add_u32 s{cU+2}, s{cU+2}, s{H_}
        s_add_u32 s{cU+2}, s{cU+2}, {ACT}""")
    else: p(f"""s_mov_b32 s{cU}, s{H_}
        s_getreg_b32 s{A}, hwreg(HW_REG_XCC_ID, 0, 4)
        s_or_b32 s{A}, s{A}, s{sTAG}
        v_mov_b32 v{vC+5}, s{A}
        s_lshl_b32 s{cU+2}, s2, 2
        s_add_u32 s{cU+2}, s{cU+2}, {H1}""")
    p(f"v_lshlrev_b32 v{vC+4}, 4, v0")
    for r in range(4): p(f"v_mov_b32 v{vC+r}, -1")
def hclear(c,isB):
    st=lambda so,off,sc: (p(f"buffer_store_dwordx4 v[{vC}:{vC+3}], v{vC+4}, {S4(sWS)}, s{so} offen offset:{off} {sc}"),OPS.append('clr'))
    ks=[k for k in range(2) if CFG['cst'][k]==c and (CFG['hsent'] or k or isB)]
    pol=lambda k: "sc1" if isB or k==0 else CFG['cpol']
    for k in ks: st(cU+k,0,pol(k)); st(cU+k,1024,pol(k))
    if ks: p(f"s_mov_b64 exec, s[{sLO}:{sLO+1}]")
    for k in ks: st(cU+k,2048,pol(k))
    if ks: p("s_mov_b64 exec, -1")
    if isB and c==CFG['cst'][1]:
        sk=p.lab("noact")
        p(f"s_cmp_lt_u32 s{cU+3}, 24\ns_cselect_b64 exec, -1, 1"); st(cU+2,0,"sc1"); p("s_mov_b64 exec, -1")
    if not isB and c==max(CFG['cst'])+2:
        p(f"s_mov_b64 exec, 1\nbuffer_store_dword v{vC+5}, v{vC+4}, {S4(sWS)}, s{cU+2} offen sc1\ns_mov_b64 exec, -1"); OPS.append('clr')
sSM=sT+11
def sm_setup():
    A=sT+20
    p(f"""s_and_b32 s{A}, s{HW}, 1
    s_lshl_b32 s{sSM}, s{sSLOT}, 1
    s_add_u32 s{A}, s{A}, s{sSM}
    s_mul_i32 s{sSM}, s{A}, {10*3072}
    s_mul_i32 s{A}, s{sG}, 384
    s_add_u32 s{sSM}, s{sSM}, s{A}
    s_lshl_b32 s{A}, s2, 2
    s_add_u32 s{A}, s{A}, s{HW}
    s_mul_i32 s{sSM+1}, s{A}, 800
    s_and_b32 s{sSM+1}, s{sSM+1}, -128""")
def sm_touch(c,isB):
    for opt,n,f in ((CFG['smw'],30,lambda i: f"s_load_dword s100, s[{(sWG,sWU)[isB]}:{(sWG,sWU)[isB]+1}], s{sSM} offset:{(i//3)*3072+(i%3)*128}"),
                    (CFG['smo'],7,lambda i: f"s_load_dword s100, s[{sWO}:{sWO+1}], s{sSM+1} offset:{i*128}")):
        if opt and opt[0]<=c<opt[1]:
            k=opt[1]-opt[0]
            for i in range(n*(c-opt[0])//k,n*(c+1-opt[0])//k): p(f(i))
def code_pf():
    A=sT+18
    p(f"""s_getpc_b64 s[{A}:{A+1}]
    L_pc:
    s_sub_u32 s{A}, s{A}, L_pc-{NAME}_kernel
    s_subb_u32 s{A+1}, s{A+1}, 0
    s_lshl_b32 s{A+2}, s{sSLOT}, 2
    s_add_u32 s{A+2}, s{A+2}, s{sWAVE}
    s_mul_i32 s{A+2}, s{A+2}, 384
    s_min_u32 s{A+2}, s{A+2}, (L_exit-{NAME}_kernel-384)&0xffffff80""")
    for i in range(3): p(f"s_load_dwordx2 s[100:101], s[{A}:{A+1}], s{A+2} offset:{i*128+60}")
def wave_sum(x,t):
    dp="row_mask:0xf bank_mask:0xf"
    for c in ("quad_perm:[1,0,3,2]","quad_perm:[2,3,0,1]","row_half_mirror","row_mirror"):
        p(f"s_nop 1\nv_add_f32_dpp v{x}, v{x}, v{x} {c} {dp}")
    for sw in (16,32):
        p(f"""v_mov_b32 v{t}, v{x}
        s_nop 1
        v_permlane{sw}_swap_b32 v{x}, v{t}
        s_nop 0
        v_add_f32 v{x}, v{x}, v{t}""")
sPF=sT+16
def pf_group(n=5):
    for i in range(n): p(f"s_load_dwordx2 s[100:101], s[{sWO}:{sWO+1}], s{sPF} offset:{i*128+60}")
    p(f"""s_add_u32 s{sPF}, s{sPF}, {n*128}
    s_sub_u32 s{sPF+2}, s{sPF+2}, 1
    s_add_u32 s{sPF+3}, s{sPF+1}, 12800
    s_cmp_eq_u32 s{sPF}, s{sPF+3}
    s_cselect_b32 s{sPF}, s{sPF+1}, s{sPF}""")
def helperB(steps):
    A=sT+7; B=sT+8; vt=2; aD=140; aT=146; aLin=12; D=40; WRr=32
    sO=sT+1; sL=sT+2; sL0=sT+3; sL1=sT+4; C=sT+5
    p("L_helperB:")
    vM=23; x=10; a=sT+16
    clr_ids(a,a+1,a+2,a+3)
    p(f"""s_mul_i32 s{a+1}, s{HW}, 25
    s_sub_u32 s{a+1}, s{a+1}, 50
    v_min_u32 v{x}, 24, v0
    v_add_u32 v{x}, s{a+1}, v{x}
    v_min_u32 v{x}, 48, v{x}
    s_sub_u32 s{a+3}, s{a+3}, {40*128}
    s_and_b32 s{a+1}, s{sSLOT}, 15
    s_lshl_b32 s{a+2}, s{sG}, 4
    s_add_u32 s{a+1}, s{a+1}, s{a+2}
    s_lshl_b32 s{a+1}, s{a+1}, 7
    s_add_u32 s{a+1}, s{a+1}, {FL-48*128}
    v_mov_b32 v{x+1}, s{a}
    v_mov_b32 v{x+2}, s{a+3}
    v_cmp_le_u32 vcc, 40, v{x}
    v_mov_b32 v{x+3}, s{a+1}
    s_mul_i32 s{a+1}, s{sSLOT}, {200*128}
    v_cndmask_b32 v{x+1}, v{x+1}, v{x+2}, vcc
    v_cmp_le_u32 vcc, 48, v{x}
    s_mul_i32 s{a}, s{HW}, {100*128}
    s_add_u32 s{a+1}, s{a+1}, s{a}
    v_cndmask_b32 v{x+1}, v{x+1}, v{x+3}, vcc
    v_lshl_add_u32 v{vM}, v{x}, 7, v{x+1}
    s_sub_u32 s{sPF+1}, s{a+1}, {200*128}
    s_mul_i32 s{sPF}, s{sG}, 5
    s_lshr_b32 s{sPF}, s{sPF}, 1
    s_mul_i32 s{sPF}, s{sPF}, 640
    s_add_u32 s{sPF}, s{sPF}, s{sPF+1}
    s_mov_b32 s{sPF+2}, 20
    v_lshlrev_b32 v{vH+4}, 4, v0
    v_add_u32 v{vH+4}, {H1}, v{vH+4}
    v_mul_u32_u24 v{WRr+5}, 20, v0""")
    aB=130; sK=sT+11; sN=sT+16; sS=sT+17
    def wo_setup():
        va=96
        wo_ids()
        T=[[0,2],[1,3],[4,9],[5,7],[6,8]]
        NIB=[sum((10*((4*s5+g_)//5)+T[(4*s5+g_)%5][rd]-(8*s5+2*g_-2))<<(4*(4*rd+g_)) for rd in range(2) for g_ in range(4)) for s5 in range(5)]
        for i in range(5):
            p(f"""v_add_u32 v{va}, {64*i}, v0
            v_mul_u32_u24 v{va+1}, 6554, v{va}
            v_lshrrev_b32 v{va+1}, 16, v{va+1}
            v_mul_u32_u24 v{va+2}, 10, v{va+1}
            v_sub_u32 v{va}, v{va}, v{va+2}
            v_and_b32 v{aB+5+i}, 28, v{va+1}
            v_and_b32 v{va+2}, 3, v{va+1}
            v_mul_u32_u24 v{va+2}, 1280, v{va+2}
            v_lshl_add_u32 v{va}, v{va}, 4, v{va+2}
            v_bfe_u32 v{va+1}, v{va+1}, 2, 2
            v_mul_u32_u24 v{va+1}, 10240, v{va+1}
            v_add_u32 v{aB+i}, v{va}, v{va+1}""")
            if 0<i<4: p(f"v_subrev_u32 v{aB+i}, {i*1024}, v{aB+i}")
        p(f"""s_lshr_b32 s{A}, s{sSLOT}, 3
        s_mul_i32 s{A}, s{A}, 5
        s_lshr_b32 s{A}, s{A}, 1
        s_add_u32 s{A}, s{A}, s{HW}
        s_sub_u32 s{sK}, s{A}, 2
        v_mov_b32 v{va}, 5120""")
        def woaddr(n):
            p(f"""s_add_u32 s{A}, s{sK}, {2*n}
            s_sub_u32 s{B}, s{A}, 10
            s_cselect_b32 s{A}, s{A}, s{B}
            s_sub_u32 s{B}, s{A}, 5
            s_cselect_b32 s{B}, s{A}, s{B}
            s_mul_i32 s{sS}, s{A}, 40960
            s_sub_u32 s{sS}, s{sS}, 10240
            s_mov_b32 s{sN}, {hex(NIB[0])}""")
            for k in range(1,5): p(f"s_cmp_eq_u32 s{B}, {k}\ns_cselect_b32 s{sN}, {hex(NIB[k])}, s{sN}")
            for i in range(5):
                p(f"""v_bfe_u32 v{va+1}, s{sN}, v{aB+5+i}, 4
                v_mad_u32_u24 v{va+1}, v{va+1}, v{va}, v{aB+i}
                v_add_u32 v{aD+5*n+i}, s{sS}, v{va+1}""")
        for n in range(5): woaddr(n)
    if CFG['wose']==0: wo_setup()
    npf=CFG['npf']
    for _ in range(npf[0]): pf_group()
    def hook(c):
        if c==(100 if CFG['hstep']==CFG['stg'] else CFG['hstep']):
            p(f"buffer_load_dwordx4 v[{vH}:{vH+3}], v{vH+4}, {S4(sWS)}, 0 offen sc1"); OPS.append('h1')
        if c==100:
            p(f"buffer_load_dwordx4 {vr(WRr,4)}, v{WRr+5}, {S4(sWR)}, 0 offen\nbuffer_load_dword v{WRr+4}, v{WRr+5}, {S4(sWR)}, 0 offen offset:16"); OPS.extend(['wr','wr'])
        if c==CFG['pt']:
            qkv_touch()
            OPS.extend(['pt']*wtouch('w1',1))
        if c==CFG['wts']: OPS.extend(['pt']*touch(vTW,sWO,0))
        if c==CFG['pt2']: OPS.extend(['pt']*touch(vM,sWS,CFG['qpair2'],CFG['tpol']))
    steps(hook,1)
    st=dict(n=0)
    def dma(cnt):
        for _ in range(min(cnt,50-st['n'])):
            n=st['n']; i=n%5; k=(n//5)%5
            if n==0 or n==25:
                p(f"""s_xor_b32 s{A}, s{sHH}, {n//25}
                s_mul_i32 s{sO}, s{A}, {320*1280}
                s_mul_i32 s{sL0}, s{A}, 51200
                s_add_u32 s{sL0}, s{sL0}, {L_WO}
                s_mul_i32 s{A}, s{sJ}, 160
                s_add_u32 s{sO}, s{sO}, s{A}""")
            if i==0: p(f"""s_add_u32 s{A}, s{sK}, {2*k}
                s_sub_u32 s{B}, s{A}, 10
                s_cselect_b32 s{A}, s{A}, s{B}
                s_mul_i32 s{sL}, s{A}, 5120
                s_add_u32 s{sL}, s{sL}, s{sL0}
                s_mov_b32 m0, s{sL}
                s_nop 0""")
            if i==4: p(f"s_add_u32 m0, s{sL}, 4096\ns_nop 0")
            p(f"buffer_load_dwordx4 v{aD+5*k+i}, {S4(sWO)}, s{sO} offen offset:{(i&3)*1024} {CFG['wopol']} lds")
            OPS.append('wo%d'%(n//25))
            st['n']+=1
    vmwait(8); p("s_barrier"); hook(8)
    p(f"v_lshlrev_b32 v{aLin}, 4, v0")
    vmwait(9); p("s_barrier"); hook(9)
    stats_fin(96,B)
    vmwait('h1')
    lp=p.lab("hello"); ok=p.lab("hello_ok"); ne=p.lab("noep")
    p(f"""s_mov_b32 s{A}, {SPIN}
    {lp}:
    v_xor_b32 v{vH}, s{sTAG}, v{vH}
    v_xor_b32 v{vH+1}, s{sTAG}, v{vH+1}
    v_xor_b32 v{vH+2}, s{sTAG}, v{vH+2}
    v_xor_b32 v{vH+3}, s{sTAG}, v{vH+3}
    v_or3_b32 v{vt}, v{vH}, v{vH+1}, v{vH+2}
    v_or_b32 v{vt}, v{vt}, v{vH+3}
    v_cmp_lt_u32 vcc, 15, v{vt}
    s_nop 0
    s_cbranch_vccz {ok}""")
    spin(A,lp,ok,4)
    p(f"""buffer_load_dwordx4 v[{vH}:{vH+3}], v{vH+4}, {S4(sWS)}, 0 offen sc1
    s_waitcnt vmcnt(0)
    s_branch {lp}
    {ok}:
    v_lshl_or_b32 v{vH}, v{vH+1}, 4, v{vH}
    v_lshl_or_b32 v{vH+2}, v{vH+3}, 4, v{vH+2}
    v_lshl_or_b32 v{vH}, v{vH+2}, 8, v{vH}
    v_and_b32 v{vt}, 1, v0
    v_readlane_b32 s{A}, v{vH}, 0
    v_readlane_b32 s{B}, v{vH}, 1
    v_cmp_eq_u32 vcc, 0, v{vt}
    v_mov_b32 v{vt+1}, s{A}
    v_mov_b32 v{vt+2}, s{B}
    v_cndmask_b32 v{vt+1}, v{vt+2}, v{vt+1}, vcc
    v_cmp_ne_u32 vcc, v{vt+1}, v{vH}
    v_mov_b32 v{vt}, {L_MODE}
    s_cmp_lg_u64 vcc, 0
    s_cselect_b32 s{sMODE}, 1, {CFG['force_slow']}
    v_mov_b32 v{vt+1}, s{sMODE}
    ds_write_b32 v{vt}, v{vt+1}
    {"s_waitcnt lgkmcnt(0)" if CFG['epi2']>1 else ""}
    s_barrier
    s_waitcnt lgkmcnt(0)
    s_barrier""")
    vmw=len(OPS)-1-max(i for i,t in enumerate(OPS) if t=='wr')
    STAMP('hE1')
    p(f"""v_mov_b32 v{vt}, 0x3f803f80
    v_mov_b32 v{vt+1}, 0
    s_waitcnt vmcnt({vmw})""")
    for k in range(5): p(f"v_dot2_f32_bf16 v{vt+1}, v{WRr+k}, v{vt}, v{vt+1}")
    p("s_nop 0")
    wave_sum(vt+1,vt+2)
    p(f"v_mov_b32 v{vt}, {L_SWS}\nds_write_b32 v{vt}, v{vt+1}")
    if CFG['wose']==1: wo_setup()
    if CFG['hst']: halo_copy(vt,A,B,C,wo_setup if CFG['wose']==2 else (lambda:None))
    else:
        if not CFG['hs2']: halo_flag(vt,A,B,C)
        if CFG['wose']==2: wo_setup()
    p(f"""s_add_u32 s{A}, s2, s{HW}
    s_cmp_lg_u32 s{A}, 2
    s_cbranch_scc1 {ne}
    s_add_u32 s{A}, s{sEP}, 1
    v_mov_b32 v{vt}, {EPO}
    v_mov_b32 v{vt+1}, s{A}
    s_mov_b64 exec, 1
    buffer_store_dword v{vt+1}, v{vt}, {S4(sWS)}, 0 offen sc1
    s_mov_b64 exec, -1
    {ne}:""")
    if CFG['hkv']:
        att_ids()
        p(f"s_mov_b32 s{sK1024}, 1024")
        kv_addr(aLin,13,vt)
        own_setup(14,vt)
        own_kv(aLin,13,14,vt,sHO)
    p(f"v_mov_b32 v{vt}, {F_G1}")
    if CFG['wburst']:
        p(f"""s_lshl_b32 s{B}, s{sSLOT}, 1
        s_add_u32 s{B}, s{B}, s{HW}
        s_sub_u32 s{B}, s{B}, 2
        s_mul_i32 s{B}, s{B}, 12800
        v_lshl_add_u32 v{vTW}, v0, 7, s{B}
        v_min_u32 v{vTW+1}, 35, v0
        v_lshl_add_u32 v{vTW+1}, v{vTW+1}, 7, s{B}
        v_add_u32 v{vTW+1}, 8192, v{vTW+1}""")
        if CFG['wburst']==2: touch(vTW,sWO,0); touch(vTW+1,sWO,0)
    lds_wait(vt,vt+1,A,'gt',4,1)
    if CFG['wburst']==1: touch(vTW,sWO,0); touch(vTW+1,sWO,0)
    wtouch('w3',1)
    if CFG['wog2']:
        p(f"v_mov_b32 v{vt+2}, {F_G2}")
        lds_wait(vt+2,vt+1,A,'gt',2,1)
    STAMP('wo_s')
    del OPS[:]
    thr=CFG['wothr']; gs=CFG['wogs']; thr1=CFG['wothr1']
    def more(n,dyn=False):
        while n>0 and st['n']<50:
            k=min(gs,n)
            if dyn and thr1<thr and st['n']>=thr1:
                sk=p.lab("wog")
                p(f"""ds_read_b32 v{vt+1}, v{vt} offset:{(F_G2 if CFG['wgf']=='G2' else F_M)-F_G1}
                s_waitcnt lgkmcnt(0)
                v_cmp_gt_u32 vcc, {2 if CFG['wgf']=='G2' else 1}, v{vt+1}
                s_nop 0
                s_cbranch_vccz {sk}
                s_waitcnt vmcnt({max(0,thr1-k)})
                {sk}:""")
            if CFG['wpause'] and st['n']==CFG['wpause']:
                p(f"v_mov_b32 v{vt+2}, {F_RI}"); lds_wait(vt+2,vt+1,A,'gt',1,1); STAMP('wo_p')
            if st['n']>=thr: p(f"s_waitcnt vmcnt({max(0,thr-k)})")
            gi=st['n']//gs; a_,b_=CFG['mtr']
            dma(k); n-=k
            if CFG['mtw']=='wo' and a_<=gi<b_:
                l0=60*(gi-a_)//(b_-a_); l1=60*(gi+1-a_)//(b_-a_); msk=((1<<l1)-1)^((1<<l0)-1)
                u=p.lab("tu"); j=p.lab("tj")
                p(f"s_mov_b32 exec_lo, {hex(msk&0xffffffff)}\ns_mov_b32 exec_hi, {hex(msk>>32)}\ns_cmp_eq_u32 s{HW}, 2\ns_cbranch_scc0 {u}")
                touch(vTM,sWG,0); p(f"s_branch {j}\n{u}:"); touch(vTM,sWU,0); p(f"{j}:\ns_mov_b64 exec, -1")
                OPS.append('mt')
    def sig(f):
        p(f"""v_mov_b32 v{vt+2}, {f}
        v_mov_b32 v{vt+3}, 1
        s_mov_b64 exec, 1
        ds_add_u32 v{vt+2}, v{vt+3}
        s_mov_b64 exec, -1""")
    more(25+min(thr,15),True)
    vmwait('wo0')
    sig(F_WOR)
    STAMP('wo_0')
    more(50)
    sig(F_WOD)
    STAMP('wo_1')
    p("s_waitcnt vmcnt(0)")
    sig(F_WO2)
    STAMP('wo')

ACC=64; CS=128; XF=132; WF=148; SEL=164; aX=168; aW=172; aST=174; aSG=178; vT=2
sWR_,sWC,sLC,sTY,sSO,sHALO,sFO,sSO2=range(sT,sT+8)
def gemm_setup():
    t=vT; A=sT+10; B=sT+11
    wave_ids(sWAVE,sWR_,sWC,sLC,sTY)
    if CFG['g16']:
        p(f"""v_and_b32 v{t}, 15, v0
        v_and_b32 v{t+1}, 8, v0
        s_cmp_eq_u32 s{sTY}, 2
        s_cselect_b32 s{A}, 1, 0
        v_mul_u32_u24 v{t+1}, s{A}, v{t+1}
        s_lshl_b32 s{A}, s{sWR_}, 6
        v_add3_u32 v{t+1}, v{t+1}, v{t}, s{A}
        v_lshlrev_b32 v{t+1}, 7, v{t+1}
        v_lshrrev_b32 v{t+2}, 4, v0
        v_lshrrev_b32 v{t+3}, 1, v{t}
        v_xor_b32 v{t+3}, v{t+3}, v{t+2}
        v_lshl_add_u32 v{aX}, v{t+3}, 4, v{t+1}
        v_xor_b32 v{aX+1}, 64, v{aX}
        v_bfe_u32 v{t+3}, v0, 2, 2
        v_lshl_add_u32 v{t+4}, v{t+2}, 3, v{t+3}
        v_lshlrev_b32 v{t+4}, 8, v{t+4}
        v_xor_b32 v{t+3}, s{sWAVE}, v{t+3}
        v_lshl_add_u32 v{t+4}, v{t+3}, 6, v{t+4}
        v_bfe_u32 v{t+3}, v0, 4, 1
        v_lshl_add_u32 v{t+4}, v{t+3}, 5, v{t+4}
        v_and_b32 v{t+5}, 3, v0
        v_lshl_add_u32 v{t+4}, v{t+5}, 3, v{t+4}
        v_add_u32 v{aW6}, 16384, v{t+4}
        v_xor_b32 v{aW6+1}, 32, v{aW6}
        v_xor_b32 v{aW6+2}, 64, v{aW6}
        v_xor_b32 v{aW6+3}, 96, v{aW6}""")
        for r in range(4): p(f"v_mov_b32 v{SEL+r}, 0x3f803f80\nv_mov_b32 v{CS2+r}, 0")
    else:
        p(f"""v_and_b32 v{t}, 31, v0
        s_lshl_b32 s{A}, s{sWR_}, 6
        v_add_u32 v{t+1}, s{A}, v{t}
        v_lshlrev_b32 v{t+1}, 7, v{t+1}
        v_lshrrev_b32 v{t+2}, 5, v0
        v_bfe_u32 v{t+3}, v0, 1, 3
        v_xor_b32 v{t+3}, v{t+3}, v{t+2}
        v_lshl_add_u32 v{aX}, v{t+3}, 4, v{t+1}""")
        for s in range(1,4): p(f"v_xor_b32 v{aX+s}, {32*s}, v{aX}")
        p(f"""v_bfe_u32 v{t+3}, v0, 2, 2
        v_lshl_add_u32 v{t+4}, v{t+2}, 3, v{t+3}
        v_lshlrev_b32 v{t+4}, 8, v{t+4}
        s_lshl_b32 s{A}, s{sWC}, 1
        s_or_b32 s{A}, s{A}, s{sWR_}
        v_xor_b32 v{t+3}, s{A}, v{t+3}
        v_lshl_add_u32 v{t+4}, v{t+3}, 6, v{t+4}
        v_bfe_u32 v{t+3}, v0, 4, 1
        v_lshl_add_u32 v{t+4}, v{t+3}, 5, v{t+4}
        v_and_b32 v{t+5}, 3, v0
        v_lshl_add_u32 v{t+4}, v{t+5}, 3, v{t+4}
        v_add_u32 v{aW}, 16384, v{t+4}
        v_xor_b32 v{aW+1}, 64, v{aW}
        v_bfe_u32 v{t+4}, v0, 2, 1
        v_cmp_eq_u32 vcc, v{t+3}, v{t+4}
        v_mov_b32 v{t+5}, 0x3f803f80
        s_nop 0
        v_cndmask_b32 v{SEL}, 0, v{t+5}, vcc
        v_cndmask_b32 v{SEL+1}, 0, v{t+5}, vcc
        v_cndmask_b32 v{SEL+2}, 0, v{t+5}, vcc
        v_cndmask_b32 v{SEL+3}, 0, v{t+5}, vcc""")
    for r in list(range(ACC,ACC+64))+list(range(CS,CS+4)): p(f"v_mov_b32 v{r}, 0")
    store_addr(sWR_,sLC,sTY,sSO,sSO2,sHALO,sFO,aST,sT+10,sT+11)
    p(f"s_mov_b32 s{sHAL2}, s{sHALO}")
    if CFG['dcs']:
        ta,tc,tg=[[int(x) for x in r] for r in CFG['rot']]
        assert ta==[0,0,5,5] and all((tg[g-2]-tg[g])%10==(9 if g>=2 else 3) for g in range(8))
        tb={'q':((0,0,5,5),((0,3),(3,2),(0,3),(3,2))),'lo':((0,0,5,8),((0,3),(3,2),(0,3),(0,2))),'hi':((0,0,5,4),((0,2),(2,2),(2,3),(0,3)))}
        for st_,fn in tb.values(): assert sorted((st_[r]+fn[r][0]+k)%10 for r in range(4) for k in range(fn[r][1]))==list(range(10))
        nb=lambda k: sum((f|(n-2)<<3)<<(4*r) for r,(f,n) in enumerate(tb[k][1]))
        mk=lambda n: ((2<<n)-1)|((2<<n)-2)<<10|((1<<n)-1)<<20
        p(f"""s_cmp_lt_u32 s{sG}, 2
        s_movk_i32 s{A}, {nb('hi')}
        s_cselect_b32 s{A}, {nb('lo')}, s{A}
        s_cmp_gt_u32 s{sCT}, 2
        s_cselect_b32 s{A}, s{A}, {nb('q')}
        s_and_b32 s{B}, s{sBK}, 3
        s_lshl_b32 s{B}, s{B}, 2
        s_lshr_b32 s{A}, s{A}, s{B}
        s_bitcmp1_b32 s{A}, 3
        s_mov_b32 s{sCSM}, {mk(2)}
        s_cselect_b32 s{sCSM}, {mk(3)}, s{sCSM}
        s_and_b32 s{A}, s{A}, 7
        s_lshl_b32 s{sCSM}, s{sCSM}, s{A}
        s_lshl_b32 s{A}, s{sG}, 3
        s_add_u32 s{A}, s{A}, s{sCT}
        s_lshl_b32 s{A}, s{A}, 1
        s_add_u32 s{A}, s{A}, s{sWC}
        s_lshl_b32 s{A}, s{A}, 2
        s_add_u32 s{A}, s{A}, s{sRB}
        s_lshl_b32 s{A}, s{A}, 1
        s_add_u32 s{A}, s{A}, s{sWR_}
        s_lshl_b32 s{A}, s{A}, 8
        s_add_u32 s{sCSO}, s{A}, {CSX}
        v_lshlrev_b32 v{aCP}, 3, v0""")
    if CFG['hs2']:
        p(f"""s_xor_b32 s{A}, s{sWR_}, s{sRB}
        s_and_b32 s{A}, s{A}, 1
        s_lshl_b32 s{sHAL2}, s{sHALO}, s{A}
        s_lshl_b32 s{B}, s{sG}, 4
        s_add_u32 s{B}, s{B}, s{sLC}
        s_lshl_b32 s{B}, s{B}, 2
        s_add_u32 s{B}, s{B}, s{sRB}
        s_lshl_b32 s{B}, s{B}, 1
        s_add_u32 s{B}, s{B}, s{A}
        s_lshl_b32 s{B}, s{B}, 7
        s_add_u32 s{sHFA}, s{B}, {FH}""")
    if CFG['hst']: p(f"""s_mul_i32 s{A}, s{sWAVE}, 9216
        s_add_u32 s{A}, s{A}, {L_WO}
        v_lshl_add_u32 v{aSG}, v0, 4, s{A}""")
sHAL2=sDBG; sHFA=25; vHF=190; sCSM=26; sCSO=27; aCP=179; sCSI=37; sM16=4; aW6=170; CS2=44; XF6=(132,12); WF6=(148,28)
def wave_ids(wave,wr,wc,lc,ty):
    p(f"""s_and_b32 s{wr}, s{wave}, 1
    s_lshr_b32 s{wc}, s{wave}, 1
    s_lshl_b32 s{lc}, s{sCT}, 1
    s_add_u32 s{lc}, s{lc}, s{wc}
    s_cmp_eq_u32 s{lc}, 5
    s_cselect_b32 s{lc}, 15, s{lc}
    s_cmp_gt_u32 s{sCT}, 2
    s_subb_u32 s{lc}, s{lc}, 0
    s_mul_i32 s{ty}, s{lc}, 52
    s_lshr_b32 s{ty}, s{ty}, 8""")
def store_addr(wr,lc,ty,so,so2,halo,fo,ast,A,B,t=2):
    p(f"""v_and_b32 v{t}, 31, v0
    v_lshrrev_b32 v{t+2}, 5, v0
    s_mul_i32 s{A}, s{ty}, 5
    s_sub_u32 s{A}, s{lc}, s{A}
    s_mul_i32 s{B}, s{sHH}, 5
    s_add_u32 s{A}, s{A}, s{B}
    s_lshl_b32 s{B}, s{sBK}, 1
    s_add_u32 s{B}, s{B}, s{wr}
    s_lshl_b32 s{B}, s{B}, 1""")
    isv=p.lab("isv"); jn=p.lab("stj")
    p(f"""s_cmp_ge_u32 s{ty}, 2
    s_cbranch_scc1 {isv}
    s_mul_i32 s{so}, s{B}, 2560
    s_mul_i32 s{B}, s{ty}, {KB}
    s_add_u32 s{so}, s{so}, s{B}
    s_add_u32 s{so2}, s{so}, 2560
    s_lshl_b32 s{A}, s{A}, 3""")
    for cb in range(2):
        for ip in range(2):
            p(f"""s_xor_b32 s{B}, s{wr}, {cb}
            s_lshl_b32 s{B}, s{B}, 2
            s_add_u32 s{B}, s{B}, s{A}
            s_add_u32 s{B}, s{B}, {2*ip}
            v_add_u32 v{t+3}, s{B}, v{t+2}
            v_mul_u32_u24 v{t+4}, 205, v{t+3}
            v_lshrrev_b32 v{t+4}, 10, v{t+4}
            v_mul_u32_u24 v{t+5}, 5, v{t+4}
            v_sub_u32 v{t+5}, v{t+3}, v{t+5}
            v_mul_u32_u24 v{t+4}, {64*2560}, v{t+4}
            v_lshl_add_u32 v{t+4}, v{t+5}, 9, v{t+4}
            v_lshl_add_u32 v{ast+2*cb+ip}, v{t}, 4, v{t+4}""")
    p(f"""s_branch {jn}
    {isv}:
    s_mul_i32 s{so}, s{B}, 1280
    s_add_u32 s{so}, s{so}, {VB}
    s_add_u32 s{so2}, s{so}, 1280
    s_lshl_b32 s{A}, s{A}, 6""")
    if CFG['g16']:
        p(f"""v_and_b32 v{t}, 15, v0
        v_bfe_u32 v{t+1}, v0, 4, 1
        v_lshl_add_u32 v{t+2}, v{t+2}, 1, v{t+1}
        v_mul_u32_u24 v{t+2}, 320, v{t+2}""")
        for j in range(4):
            p(f"""s_xor_b32 s{B}, s{wr}, {j>>1}
            s_lshl_b32 s{B}, s{B}, 5
            s_add_u32 s{B}, s{B}, s{A}
            s_add_u32 s{B}, s{B}, {16*(j&1)}
            v_add_u32 v{t+3}, s{B}, v{t}
            v_mul_u32_u24 v{t+4}, 3277, v{t+3}
            v_lshrrev_b32 v{t+4}, 16, v{t+4}
            v_mul_u32_u24 v{t+5}, 20, v{t+4}
            v_sub_u32 v{t+5}, v{t+3}, v{t+5}
            v_mul_u32_u24 v{t+4}, 81920, v{t+4}
            v_lshl_add_u32 v{t+4}, v{t+5}, 4, v{t+4}
            v_add_u32 v{ast+j}, v{t+4}, v{t+2}""")
    for cb in range(0 if CFG['g16'] else 2):
        p(f"""s_xor_b32 s{B}, s{wr}, {cb}
        s_lshl_b32 s{B}, s{B}, 5
        s_add_u32 s{B}, s{B}, s{A}
        v_add_u32 v{t+3}, s{B}, v{t}
        v_mul_u32_u24 v{t+4}, 3277, v{t+3}
        v_lshrrev_b32 v{t+4}, 16, v{t+4}
        v_mul_u32_u24 v{t+5}, 20, v{t+4}
        v_sub_u32 v{t+5}, v{t+3}, v{t+5}
        v_mul_u32_u24 v{t+4}, 81920, v{t+4}
        v_lshl_add_u32 v{t+4}, v{t+5}, 4, v{t+4}
        v_mul_u32_u24 v{t+5}, 320, v{t+2}
        v_add_u32 v{ast+2*cb}, v{t+4}, v{t+5}
        v_add_u32 v{ast+2*cb+1}, 640, v{ast+2*cb}""")
    p(f"{jn}:")
    halo_cond(halo,A)
    if CFG['honly']: p(f"s_mul_i32 s{A}, s{halo}, {KH-KB}\ns_add_u32 s{so}, s{so}, s{A}\ns_add_u32 s{so2}, s{so2}, s{A}")
    p(f"""s_lshl_b32 s{fo}, s{sG}, 4
    s_add_u32 s{fo}, s{fo}, s{lc}
    s_lshl_b32 s{fo}, s{fo}, 5
    s_lshl_b32 s{A}, s{sRB}, 1
    s_add_u32 s{A}, s{A}, s{wr}
    s_add_u32 s{fo}, s{fo}, s{A}
    s_lshl_b32 s{fo}, s{fo}, 2
    s_add_u32 s{fo}, s{fo}, {FL}""")
def xf(buf,xb): return XF+8*buf+4*xb
def wf(buf,cb): return WF+8*buf+4*cb
def reads(kind,buf,par,s):
    L=[]
    for xb in range(2): L.append(f"ds_read_b128 {vr(xf(buf,xb),4)}, v{aX+s} offset:{par*32768+xb*4096}")
    if kind!='S':
        for cb in range(2):
            for rd in range(2): L.append(f"ds_read_b64_tr_b16 {vr(wf(buf,cb)+2*rd,2)}, v{aW+cb} offset:{par*32768+s*4096+rd*1024}")
        L=[L[2],L[3],L[0],L[1],L[4],L[5]]
    return L
def mfmas(kind,buf):
    L=[]
    if kind=='S':
        for xb in range(2):
            x=xf(buf,xb)
            L.append(f"v_mfma_f32_16x16x32_bf16 {vr(ACC+4*xb,4)}, {vr(SEL,4)}, {vr(x,4)}, {vr(ACC+4*xb,4)}")
            L.append(f"v_mfma_f32_4x4x4_16b_bf16 {vr(ACC+8+8*xb,4)}, {vr(x,2)}, {vr(x,2)}, {vr(ACC+8+8*xb,4)}")
            L.append(f"v_mfma_f32_4x4x4_16b_bf16 {vr(ACC+12+8*xb,4)}, {vr(x+2,2)}, {vr(x+2,2)}, {vr(ACC+12+8*xb,4)}")
        return L
    for cb in range(2):
        for xb in range(2):
            a=ACC+16*(2*xb+cb); X=vr(xf(buf,xb),4); W=vr(wf(buf,cb),4)
            if 'm16' in CFG['xp']:
                a+=8*buf
                L.append("\n".join(f"v_mfma_f32_16x16x32_bf16 {vr(a+4*i,4)}, {W if kind=='T' else X}, {vr(xf(buf,xb^i),4) if kind=='T' else vr(wf(buf,cb^i),4)}, {vr(a+4*i,4)}" for i in range(2)))
                continue
            L.append(f"v_mfma_f32_32x32x16_bf16 {vr(a,16)}, {W if kind=='T' else X}, {X if kind=='T' else W}, {vr(a,16)}")
    if 'nocs' in CFG['xp']: return L
    cs=f"v_mfma_f32_16x16x32_bf16 {vr(CS,4)}, {vr(SEL,4)}, {vr(wf(buf,0),4)}, {vr(CS,4)}"
    if not CFG['dcs']: L.insert(2,cs)
    return L
CSR=[]; CF_=36
def cs_gate(par):
    i=len(CSR); CSR.append(par)
    p(f"""s_bitcmp1_b32 s{sCSM}, 0
    s_movk_i32 s{sCSI}, {i}
    s_cbranch_scc1 L_csb
    L_csr{i}:
    s_lshr_b32 s{sCSM}, s{sCSM}, 1""")
def cs_block():
    assert CSR==[0,1,0,1]
    p(f"L_csb:\ns_bitcmp0_b32 s{sCSM}, 10\ns_cbranch_scc1 L_csrd\ns_waitcnt lgkmcnt(0)")
    for k in range(4):
        c=CS+4*(k&1) if CFG['g16'] else CS
        p(f"v_mfma_f32_16x16x32_bf16 {vr(c,4)}, {vr(SEL,4)}, {vr(CF_+4*k,4)}, {vr(c,4)}")
    p(f"""s_bitcmp1_b32 s{sCSM}, 20
    s_cbranch_scc1 L_csrd
    v_mov_b32 v{CF_+1}, s{sTAG}
    s_nop 7
    {f"v_cndmask_b32 v{CF_}, v{CS}, v{CS+4}, s[{sM16}:{sM16+1}]" if CFG['g16'] else f"v_mov_b32 v{CF_}, v{CS}"}
    s_mov_b64 exec, s[{sLO}:{sLO+1}]
    buffer_store_dwordx2 {vr(CF_,2)}, v{aCP}, {S4(sWS)}, s{sCSO} offen sc1
    s_mov_b64 exec, -1
    s_branch L_csx
    L_csrd:
    s_lshl_b32 s{sCSI+1}, s{sCSI}, 15
    s_and_b32 s{sCSI+1}, s{sCSI+1}, 32768
    v_add_u32 v{aCP-1}, s{sCSI+1}, v{aW}""")
    if CFG['g16']: p(f"v_add_u32 v{CF_+16}, s{sCSI+1}, v{aW+1}")
    for k in range(4):
        for rd in range(2):
            if CFG['g16']: p(f"ds_read_b64_tr_b16 {vr(CF_+4*k+2*rd,2)}, v{CF_+16 if k&1 else aCP-1} offset:{(k>>1)*8192+rd*1024}")
            else: p(f"ds_read_b64_tr_b16 {vr(CF_+4*k+2*rd,2)}, v{aCP-1} offset:{k*4096+rd*1024}")
    p(f"""L_csx:
    s_cmp_eq_u32 s{sCSI}, 0
    s_cbranch_scc1 L_csr0
    s_cmp_eq_u32 s{sCSI}, 1
    s_cbranch_scc1 L_csr1
    s_cmp_eq_u32 s{sCSI}, 2
    s_cbranch_scc1 L_csr2
    s_branch L_csr3""")
def reads6(kind,buf,par,s):
    X=[f"ds_read_b128 {vr(XF6[buf]+4*tt,4)}, v{aX+((tt&1)^s)} offset:{par*32768+(tt>>1)*4096+(tt&1)*(2048 if kind=='T' else 1024)}" for tt in range(4)]
    W=[[f"ds_read_b64_tr_b16 {vr(WF6[buf]+4*j+2*rd,2)}, v{aW6+j} offset:{par*32768+s*8192+rd*1024}" for rd in range(2)] for j in range(4)]
    return W[0]+X[:2]+W[1]+X[2:]+W[2]+W[3]
acc6=lambda tt,j: ACC+16*(2*(tt>>1)+(j>>1))+8*(j&1)+4*(tt&1)
def mfmas6(kind,buf):
    L=[]
    for j in range(4):
        for tt in range(4):
            a=vr(acc6(tt,j),4); X=vr(XF6[buf]+4*tt,4); W=vr(WF6[buf]+4*j,4)
            L.append(f"v_mfma_f32_16x16x32_bf16 {a}, {W if kind=='T' else X}, {X if kind=='T' else W}, {a}")
    if not CFG['dcs'] and 'nocs' not in CFG['xp']:
        for h,i in enumerate(CFG['g16c']): c=vr((CS,CS2)[h],4); L.insert(i,f"v_mfma_f32_16x16x32_bf16 {c}, {vr(SEL,4)}, {vr(WF6[buf]+4*h,4)}, {c}")
    return L
def gemm_loop(kind):
    CNT=sT+10
    lp=p.lab("g"+kind)
    STAMP('rdy')
    p("s_barrier")
    STAMP('b0')
    for r in (reads6 if CFG['g16'] else reads)(kind,0,0,0): p(r)
    if CFG['clr']==1 and not CFG['hclr']: clears(1)
    cl_=p.lab("clr"); cr_=p.lab("clrr")
    if CFG['clr']>1:
        n0=len(p.L); p(f"{cl_}:"); clears(1); p(f"s_branch {cr_}")
        COLD.append("\n".join(p.L[n0:])); del p.L[n0:]
    hl=p.lab("hello"); hr=p.lab("hellor")
    if not CFG['hclr']:
        COLD.append(f"""{hl}:
        s_getreg_b32 s{CNT+1}, hwreg(HW_REG_XCC_ID, 0, 4)
        s_or_b32 s{CNT+1}, s{CNT+1}, s{sTAG}
        v_mov_b32 v{vT}, s{CNT+1}
        s_lshl_b32 s{CNT+1}, s2, 2
        s_add_u32 s{CNT+1}, s{CNT+1}, {H1}
        v_mov_b32 v{vT+1}, 0
        s_mov_b64 exec, 1
        buffer_store_dword v{vT}, v{vT+1}, {S4(sWS)}, s{CNT+1} offen sc1
        s_mov_b64 exec, -1
        s_branch {hr}""")
        p(f"s_lshl_b32 s{CNT+2}, s{sWAVE}, 3\ns_add_u32 s{CNT+2}, s{CNT+2}, {5-CFG['clr']}")
    p(f"s_mov_b32 s{CNT}, 5\n{lp}:")
    if CFG['clr']>1: p(f"s_cmp_eq_u32 s{CNT}, {6-CFG['clr']}\ns_cbranch_scc1 {cl_}\n{cr_}:")
    for k in range(1,5):
        if (CFG['cal'] and CFG['cal'][0]=='it%d'%(2*k)) or (CFG['amp'] and 'it%d'%(2*k) in CFG['amp'][:2]) or (CFG['prof'] and any('it%d'%(2*k) in n.split('|') for n in CFG['st'])):
            sk=p.lab("its"); p(f"s_cmp_lg_u32 s{CNT}, {5-k}\ns_cbranch_scc1 {sk}"); STAMP('it%d'%(2*k)); p(f"{sk}:")
    for par in range(2):
        if CFG['dcs']: cs_gate(par)
        for s in range(2 if CFG['g16'] else 0):
            M=mfmas6(kind,s); R=reads6(kind,s^1,par^s,s^1)
            p("s_waitcnt lgkmcnt(0)")
            if s:
                for _ in range(CFG['g16b']): p(M.pop(0))
                if par:
                    for i in range(6):
                        p(f"v_xor_b32 v{aX+i}, 0x10000, v{aX+i}")
                        if i in (1,3): p(M.pop(0))
                if par==0:
                    w1=p.lab("cw"); w2=p.lab("cwr")
                    p(f"s_cmp_eq_u32 s{CNT}, {5-CFG['clr']}\ns_cbranch_scc1 {w1}\n{w2}:")
                    COLD.append(f"{w1}:\ns_waitcnt vmcnt(0)\ns_branch {w2}")
                p("s_barrier")
                if par==0: p(f"s_cmp_eq_u32 s{CNT}, s{CNT+2}\ns_cbranch_scc1 {hl}\n{hr}:")
            for n in CFG['g16r']:
                for _ in range(n): p(R.pop(0))
                p(M.pop(0))
            assert not R
            for m in M: p(m)
        for s in range(0 if CFG['g16'] else 4):
            buf=s&1
            last=(s==3)
            M=mfmas(kind,buf)
            if CFG['nomfma']: M=M[:1]
            if last and par==1:
                pre=[f"v_xor_b32 v{aX+i}, 0x10000, v{aX+i}" for i in range(4)]+[f"v_xor_b32 v{aW+i}, 0x10000, v{aW+i}" for i in range(2)]
            else: pre=[]
            R=reads(kind,buf^1,(par^1) if last else par,(s+1)&3)
            p("s_waitcnt lgkmcnt(0)")
            if last:
                p(M.pop(0))
                for x in pre: p(x)
                if par==0 and not CFG['hclr'] and not CFG['lclr']:
                    w1=p.lab("cw"); w2=p.lab("cwr")
                    p(f"s_cmp_eq_u32 s{CNT}, {5-CFG['clr']}\ns_cbranch_scc1 {w1}\n{w2}:")
                    COLD.append(f"{w1}:\ns_waitcnt vmcnt(0)\ns_branch {w2}")
                p("s_barrier")
                if par==0 and not CFG['hclr']: p(f"s_cmp_eq_u32 s{CNT}, s{CNT+2}\ns_cbranch_scc1 {hl}\n{hr}:")
            k=0
            while M or R:
                if R: p(R.pop(0))
                if R: p(R.pop(0))
                if M: p(M.pop(0))
    p(f"""s_sub_u32 s{CNT}, s{CNT}, 1
    s_cmp_lg_u32 s{CNT}, 0
    s_cbranch_scc1 {lp}""")
    STAMP('gend')
def bf16r(dst,src):
    p(f"v_cvt_pk_bf16_f32 v{dst}, v{src}, v{src}\nv_and_b32 v{dst}, 0xffff0000, v{dst}")
def mode_read():
    p(f"""v_mov_b32 v{vT+8}, {L_MODE}
    ds_read_b32 v{vT+9}, v{vT+8}""")
def mode_get():
    p(f"v_readfirstlane_b32 s{sMODE}, v{vT+9}")
def dual(stores,pol='',sMODE=sMODE):
    sl=p.lab("slow"); jn=p.lab("jn")
    p(f"s_cmp_lg_u32 s{sMODE}, 0\ns_cbranch_scc1 {sl}")
    for s in stores: p(s+" "+pol)
    p(f"s_branch {jn}\n{sl}:")
    for s in stores: p(s+" sc1")
    p(f"{jn}:")
def idle_gemm():
    vt=10; aI=20; acc=28; one=32; D=64; A=sT+10
    p(f"""s_lshl_b32 s{A}, s{sWR_}, 13
    v_bfe_u32 v{vt}, v0, 1, 3
    v_lshlrev_b32 v{vt}, 4, v{vt}
    v_lshl_add_u32 v{vt}, v0, 7, v{vt}
    v_add_u32 v{aI}, s{A}, v{vt}
    v_mov_b32 v{one}, 0x3f803f80
    s_lshl_b32 s{A}, s{sG}, 2
    s_add_u32 s{A}, s{A}, s{sRB}
    s_lshl_b32 s{A}, s{A}, 14
    s_lshl_b32 s{A+1}, s{sWR_}, 10
    s_add_u32 s{A}, s{A}, s{A+1}
    s_add_u32 s{A}, s{A}, {STP+2*2048}
    v_lshlrev_b32 v{vt}, 4, v0""")
    for i in range(1,8): p(f"v_xor_b32 v{aI+i}, {16*i}, v{aI}")
    for i in range(4): p(f"v_mov_b32 v{acc+i}, 0")
    k=CFG['clr']
    for c in range(11):
        if c==1+2*k and not CFG['hclr']: p(f"s_waitcnt vmcnt({1 if k==1 else 0})")
        p("s_barrier")
        if k and c==2*k-2 and c!=2: clears(1)
        if c<3:
            if c==2:
                for i in range(8): p(f"v_add_u32 v{aI+i}, 0x10000, v{aI+i}")
            for i in range(8): p(f"ds_read_b128 {vr(D+4*i,4)}, v{aI+i} offset:{(c&1)*32768}")
            for i in range(8):
                p(f"s_waitcnt lgkmcnt({7-i})")
                for j in range(4):
                    r=D+4*i+j
                    p(f"v_dot2_f32_bf16 v{acc+(j&1)}, v{r}, v{one}, v{acc+(j&1)}\nv_dot2_f32_bf16 v{acc+2+(j&1)}, v{r}, v{r}, v{acc+2+(j&1)}")
        if c==2: p(f"""s_nop 1
            v_add_f32 v{acc}, v{acc}, v{acc+1}
            v_add_f32 v{acc+1}, v{acc+2}, v{acc+3}
            v_mov_b32 v{acc+2}, s{sTAG}
            buffer_store_dwordx4 {vr(acc,4)}, v{vt}, {S4(sWS)}, s{A} offen sc1""")
        if k==2 and c==2: clears(1)
    p("s_barrier")
    mode_read()
    p("s_waitcnt lgkmcnt(0)")
    mode_get()
HST=[]
def gemm_epi(kind):
    t=vT; A=sT+10
    AU=20
    WA=24
    XA=28
    RS=32
    def split(cb):
        c=CS+cb
        p(f"""v_cndmask_b32 v{c}, 0, v{c}, s[{sLO}:{sLO+1}]
        v_cvt_pk_bf16_f32 v{t+5}, v{c}, v{c}
        v_and_b32 v{t+5}, 0xffff0000, v{t+5}
        v_sub_f32 v{t+6}, v{c}, v{t+5}
        v_cvt_pk_bf16_f32 v{WA+2*cb}, v{t+5}, v{t+6}""")
    if CFG['g16']:
        assert CFG['epi2']==2 and not CFG['honly']
        allst=[ACC+16*(2*xb+cb)+4*h for xb in range(2) for cb in range(2) for h in range(2)]
        sto=lambda xb,cb,h: f"buffer_store_dwordx4 {vr(ACC+16*(2*xb+cb)+4*h,4)}, v{aST+2*cb+h}, {S4(sWS)}, s{sSO2 if xb else sSO} offen"
        T=kind=='T'; CV=28 if T else 20; NM=48
        p(f"""v_and_b32 v{t}, 15, v0
        v_lshrrev_b32 v{t+4}, 4, v0
        s_lshl_b32 s{A}, s{sWAVE}, 7
        s_add_u32 s{A}, s{A}, {L_CS}""")
        if T: p(f"""s_lshl_b32 s{A+1}, s{sWR_}, 9
            s_add_u32 s{A+1}, s{A+1}, {L_SA}
            v_lshl_add_u32 v{t+3}, v{t}, 3, s{A+1}
            v_lshl_add_u32 v{t+1}, v{t+4}, 4, s{A}""")
        else: p(f"""v_lshrrev_b32 v{t+3}, 5, v0
            v_lshlrev_b32 v{t+3}, 6, v{t+3}
            v_and_b32 v{t+4}, 1, v{t+4}
            s_lshl_b32 s{A+1}, s{sWR_}, 8
            s_add_u32 s{A+1}, s{A+1}, {L_SM}
            v_lshl_add_u32 v{t+3}, v{t+4}, 4, v{t+3}
            v_add_u32 v{t+3}, s{A+1}, v{t+3}
            v_lshl_add_u32 v{t+1}, v{t}, 2, s{A}""")
        if not CFG['dcs']: p(f"""v_and_b32 v{t+5}, 31, v0
            v_lshl_add_u32 v{t+5}, v{t+5}, 2, s{A}
            s_mov_b32 vcc_lo, 0xffff0000
            s_mov_b32 vcc_hi, 0xffff0000
            v_cndmask_b32 v{CS}, v{CS}, v{CS2}, vcc
            ds_write_b32 v{t+5}, v{CS}""")
        p(f"v_xor_b32 v{t+2}, 128, v{t+1}")
        for tt in range(4):
            if T: p(f"ds_read_b64 {vr(AU+2*tt,2)}, v{t+3} offset:{128*tt}")
            else: p(f"ds_read_b128 {vr(NM+4*tt,4)}, v{t+3} offset:{128*(tt>>1)+32*(tt&1)}\nds_read_b128 {vr(RS+4*tt,4)}, v{t+3} offset:{128*(tt>>1)+32*(tt&1)+L_SR-L_SM}")
        mode_read()
        csr=lambda j: p(f"ds_read_{'b128' if T else 'b32'} {vr(CV+4*j,4) if T else 'v%d'%(CV+j)}, v{t+1+(j>>1)} offset:{64*(j&1)}")
        csr(0); csr(1)
        if CFG['dcs']: csr(2); csr(3)
        p("s_waitcnt lgkmcnt(0)\ns_barrier")
        STAMP('E1')
        if not CFG['dcs']: csr(2); csr(3)
        mode_get()
        if T:
            p(f"s_cmp_eq_u32 s{sTY}, 0\ns_cselect_b32 s{A}, {hex(f2u(20**-0.5*math.log2(math.e)))}, 1.0")
            for tt in range(4): p(f"v_mul_f32 v{AU+2*tt+1}, s{A}, v{AU+2*tt+1}")
        for cb in range(2):
            if cb: p("s_waitcnt lgkmcnt(0)")
            for xb in range(2):
                for h in range(2):
                    j=2*cb+h; a=ACC+16*(2*xb+cb)
                    for k in range(4):
                        tt=2*xb+(k>>1); r=vr(a+8*h+2*k,2)
                        if T: p(f"v_pk_fma_f32 {r}, {vr(CV+4*j+2*(k&1),2)}, {vr(AU+2*tt,2)}, {r} op_sel:[0,0,0] op_sel_hi:[1,0,1]")
                        else: p(f"v_pk_fma_f32 {r}, {vr(NM+4*tt+2*(k&1),2)}, {vr(CV+2*cb,2)}, {r} op_sel:[0,{h},0] op_sel_hi:[1,{h},1]")
                    for k in range(4):
                        tt=2*xb+(k>>1); r=vr(a+8*h+2*k,2)
                        if T: p(f"v_pk_mul_f32 {r}, {r}, {vr(AU+2*tt,2)} op_sel:[0,1] op_sel_hi:[1,1]")
                        else: p(f"v_pk_mul_f32 {r}, {r}, {vr(RS+4*tt+2*(k&1),2)}")
                    for k in range(4*h,4*h+4): p(f"v_cvt_pk_bf16_f32 v{a+k}, v{a+2*k}, v{a+2*k+1}")
                    if T: p(f"s_nop 0\nv_permlane16_swap_b32 v{a+4*h}, v{a+4*h+2}\nv_permlane16_swap_b32 v{a+4*h+1}, v{a+4*h+3}")
                    p(sto(xb,cb,h)+" "+CFG['qpol'])
        sl=p.lab("qslow"); jn=p.lab("qjn")
        p(f"s_cmp_lg_u32 s{sMODE}, 0\ns_cbranch_scc1 {sl}\n{jn}:")
        COLD.append(f"{sl}:\n"+"\n".join(sto(xb,cb,h)+" sc1" for xb in range(2) for cb in range(2) for h in range(2))+f"\ns_branch {jn}")
    elif CFG['epi2']:
        assert not CFG['honly']
        E2=CFG['epi2']>1
        allst=[ACC+16*(2*xb+cb)+4*h for xb in range(2) for cb in range(2) for h in range(2)]
        sto=lambda xb,cb,h: f"buffer_store_dwordx4 {vr(ACC+16*(2*xb+cb)+4*h,4)}, v{aST+2*cb+h}, {S4(sWS)}, s{sSO2 if xb else sSO} offen"
        def aug(xb,cb):
            a=ACC+16*(2*xb+cb); X=vr(XA+2*xb,2); W=vr(WA+2*cb,2)
            p(f"v_mfma_f32_32x32x8_bf16 {vr(a,16)}, {W if kind=='T' else X}, {X if kind=='T' else W}, {vr(a,16)}")
        def half(xb,cb,h,mid=None):
            a=ACC+16*(2*xb+cb)
            for k in range(4*h,4*h+4):
                if kind=='T': p(f"v_pk_mul_f32 {vr(a+2*k,2)}, {vr(a+2*k,2)}, {vr(AU+2*xb,2)} op_sel:[0,1] op_sel_hi:[1,1]")
                else: p(f"v_pk_mul_f32 {vr(a+2*k,2)}, {vr(a+2*k,2)}, {vr(RS+16*xb+2*k,2)}")
            for k in range(4*h,4*h+4): p(f"v_cvt_pk_bf16_f32 v{a+k}, v{a+2*k}, v{a+2*k+1}")
            if kind=='T': p(f"s_nop 0\nv_permlane32_swap_b32 v{a+4*h}, v{a+4*h+2}\nv_permlane32_swap_b32 v{a+4*h+1}, v{a+4*h+3}")
            p(sto(xb,cb,h)+" "+CFG['qpol'])
        def stat_rd():
            p(f"""ds_read_b64 v[{AU}:{AU+1}], v{t+3}
            ds_read_b64 v[{AU+2}:{AU+3}], v{t+3} offset:256""")
            if kind=='V':
                for xb in range(2):
                    for i in range(4): p(f"ds_read_b128 {vr(RS+16*xb+4*i,4)}, v{t+4} offset:{xb*128+i*32}")
            mode_read()
        def stat_use():
            p(f"v_mov_b32 v{XA}, v{AU}\nv_mov_b32 v{XA+2}, v{AU+2}")
            if kind=='T':
                p(f"""s_cmp_eq_u32 s{sTY}, 0
                s_cselect_b32 s{A}, {hex(f2u(20**-0.5*math.log2(math.e)))}, 1.0
                v_mul_f32 v{AU+1}, s{A}, v{AU+1}
                v_mul_f32 v{AU+3}, s{A}, v{AU+3}""")
            else: p("s_nop 0")
        p(f"""v_and_b32 v{t}, 31, v0
        s_lshl_b32 s{A}, s{sWR_}, 9
        s_add_u32 s{A}, s{A}, {L_SA}
        v_lshl_add_u32 v{t+3}, v{t}, 3, s{A}""")
        if kind=='V':
            p(f"""v_lshrrev_b32 v{t+4}, 5, v0
            s_lshl_b32 s{A}, s{sWR_}, 8
            s_add_u32 s{A}, s{A}, {L_SR}
            v_lshl_add_u32 v{t+4}, v{t+4}, 4, s{A}""")
        if E2: stat_rd()
        p(f"""s_lshl_b32 s{A}, s{sWAVE}, 7
        s_add_u32 s{A}, s{A}, {L_CS}
        v_lshl_add_u32 v{t+1}, v{t}, 2, s{A}
        v_mov_b32 v{WA+1}, 0
        v_mov_b32 v{WA+3}, 0
        v_mov_b32 v{XA+1}, 0
        v_mov_b32 v{XA+3}, 0
        {f"ds_read_b32 v{CS}, v{t+1}" if CFG['dcs'] else f"ds_write_b32 v{t+1}, v{CS}"}
        v_xor_b32 v{t+2}, 128, v{t+1}""")
        nv=8 if kind=='V' else 0
        if CFG['dcs']:
            assert E2
            p(f"ds_read_b32 v{CS+1}, v{t+2}\ns_waitcnt lgkmcnt(1)")
            stat_use()
            split(0)
            p("s_waitcnt lgkmcnt(0)")
            mode_get()
            aug(0,0)
            split(1)
            p("s_barrier")
            STAMP('E1')
            aug(1,0); aug(0,1); aug(1,1)
            p("s_nop 2")
            order=[(0,0,0),(0,0,1),(1,0,0),(1,0,1),(0,1,0),(0,1,1),(1,1,0),(1,1,1)]
        elif E2:
            split(0)
            p(f"s_waitcnt lgkmcnt({2+nv})")
            stat_use()
            aug(0,0); aug(1,0)
            p("s_waitcnt lgkmcnt(0)\ns_barrier")
            STAMP('E1')
            p(f"ds_read_b32 v{CS+1}, v{t+2}")
            mode_get()
            p("s_nop 7\ns_nop 1")
            half(0,0,0)
            p("s_waitcnt lgkmcnt(0)")
            split(1)
            p("s_nop 1")
            aug(0,1); aug(1,1)
            order=[(0,0,1),(1,0,0),(1,0,1),(0,1,0),(0,1,1),(1,1,0),(1,1,1)]
        else:
            p("s_waitcnt lgkmcnt(0)\ns_barrier")
            STAMP('E1')
            p(f"ds_read_b32 v{CS+1}, v{t+2}")
            stat_rd()
            split(0)
            p(f"s_waitcnt lgkmcnt({1+nv})")
            stat_use()
            aug(0,0)
            split(1)
            p("s_nop 1")
            aug(0,1); aug(1,0); aug(1,1)
            p("s_waitcnt lgkmcnt(0)")
            mode_get()
            p("s_nop 4")
            order=[(xb,cb,h) for xb in range(2) for cb in range(2) for h in range(2)]
        for o in order: half(*o)
        sl=p.lab("qslow"); jn=p.lab("qjn")
        p(f"s_cmp_lg_u32 s{sMODE}, 0\ns_cbranch_scc1 {sl}\n{jn}:")
        COLD.append(f"{sl}:\n"+"\n".join(sto(xb,cb,h)+" sc1" for xb in range(2) for cb in range(2) for h in range(2))+f"\ns_branch {jn}")
    else:
        p(f"""v_and_b32 v{t}, 31, v0
        s_lshl_b32 s{A}, s{sWC}, 1
        s_or_b32 s{A}, s{A}, s{sWR_}
        s_lshl_b32 s{A}, s{A}, 7
        s_add_u32 s{A}, s{A}, {L_CS}
        v_lshl_add_u32 v{t+1}, v{t}, 2, s{A}
        s_lshl_b32 s{A}, s{sWR_}, 9
        s_add_u32 s{A}, s{A}, {L_SA}
        v_lshl_add_u32 v{t+3}, v{t}, 3, s{A}
        ds_write_b32 v{t+1}, v{CS}
        v_xor_b32 v{t+2}, 128, v{t+1}
        v_mov_b32 v{WA+1}, 0
        v_mov_b32 v{WA+3}, 0
        v_mov_b32 v{XA+1}, 0
        v_mov_b32 v{XA+3}, 0""")
        if kind=='V':
            p(f"""v_lshrrev_b32 v{t+4}, 5, v0
            s_lshl_b32 s{A}, s{sWR_}, 8
            s_add_u32 s{A}, s{A}, {L_SR}
            v_lshl_add_u32 v{t+4}, v{t+4}, 4, s{A}""")
        p("s_waitcnt lgkmcnt(0)\ns_barrier")
        STAMP('E1',1)
        p(f"""ds_read_b32 v{CS+1}, v{t+2}
        ds_read_b64 v[{AU}:{AU+1}], v{t+3}
        ds_read_b64 v[{AU+2}:{AU+3}], v{t+3} offset:256""")
        mode_read()
        if kind=='V':
            for xb in range(2):
                for i in range(4): p(f"ds_read_b128 {vr(RS+16*xb+4*i,4)}, v{t+4} offset:{xb*128+i*32}")
        def split(cb):
            c=CS+cb
            p(f"""v_cndmask_b32 v{c}, 0, v{c}, s[{sLO}:{sLO+1}]
            v_cvt_pk_bf16_f32 v{t+5}, v{c}, v{c}
            v_and_b32 v{t+5}, 0xffff0000, v{t+5}
            v_sub_f32 v{t+6}, v{c}, v{t+5}
            v_cvt_pk_bf16_f32 v{WA+2*cb}, v{t+5}, v{t+6}""")
        split(0)
        p(f"s_waitcnt lgkmcnt({8 if kind=='V' else 0})")
        split(1)
        p(f"v_mov_b32 v{XA}, v{AU}\nv_mov_b32 v{XA+2}, v{AU+2}")
        mode_get()
        if kind=='T':
            p(f"""s_cmp_eq_u32 s{sTY}, 0
            s_cselect_b32 s{A}, {hex(f2u(20**-0.5*math.log2(math.e)))}, 1.0
            v_mul_f32 v{AU+1}, s{A}, v{AU+1}
            v_mul_f32 v{AU+3}, s{A}, v{AU+3}""")
        else: p("s_nop 0")
        for xb in range(2):
            for cb in range(2):
                a=ACC+16*(2*xb+cb); X=vr(XA+2*xb,2); W=vr(WA+2*cb,2)
                p(f"v_mfma_f32_32x32x8_bf16 {vr(a,16)}, {W if kind=='T' else X}, {X if kind=='T' else W}, {vr(a,16)}")
        p("s_waitcnt lgkmcnt(0)\ns_nop 7")
        if CFG['honly']: p(f"s_or_b32 s{sHALO}, s{sHALO}, s{sMODE}")
        allst=[]
        for xb in range(2):
            st=[]
            for cb in range(2):
                a=ACC+16*(2*xb+cb)
                for k in range(8):
                    if kind=='T': p(f"v_pk_mul_f32 {vr(a+2*k,2)}, {vr(a+2*k,2)}, {vr(AU+2*xb,2)} op_sel:[0,1] op_sel_hi:[1,1]")
                    else: p(f"v_pk_mul_f32 {vr(a+2*k,2)}, {vr(a+2*k,2)}, {vr(RS+16*xb+2*k,2)}")
                for k in range(8): p(f"v_cvt_pk_bf16_f32 v{a+k}, v{a+2*k}, v{a+2*k+1}")
                if kind=='T':
                    p(f"""v_permlane32_swap_b32 v{a}, v{a+2}
                    v_permlane32_swap_b32 v{a+1}, v{a+3}
                    v_permlane32_swap_b32 v{a+4}, v{a+6}
                    v_permlane32_swap_b32 v{a+5}, v{a+7}""")
                for h in range(2):
                    st.append(f"buffer_store_dwordx4 {vr(a+4*h,4)}, v{aST+2*cb+h}, {S4(sWS)}, s{sSO2 if xb else sSO} offen")
                    allst.append(a+4*h)
            dual(st,CFG['qpol'],sHALO if CFG['honly'] else sMODE)
    STAMP('st')
    if CFG['honly']:
        p(f"""v_mov_b32 v{t}, 0
        v_mov_b32 v{t+1}, s{sTAG}
        s_lshl_b32 s{A}, s{sWC}, 2
        s_add_u32 s{A}, s{A}, {F_STG}
        v_mov_b32 v{t+2}, s{A}
        v_mov_b32 v{t+3}, 1
        s_mov_b64 exec, 1
        s_waitcnt vmcnt(0)
        ds_add_u32 v{t+2}, v{t+3}""")
        dual([f"buffer_store_dword v{t+1}, v{t}, {S4(sWS)}, s{sFO} offen"])
        p("s_mov_b64 exec, -1")
        STAMP('fl')
        return
    nh=p.lab("nohalo"); jh=p.lab("jhalo")
    if CFG['hdef']>=0 or CFG['hs2']: A=sT+18
    hst=[f"buffer_store_dwordx4 {vr(allst[i],4)}, v{aST+(i&3)}, {S4(sWS)}, s{A+(i>>2)} offen {CFG['hpol']}" for i in range(8)]
    p(f"""v_mov_b32 v{t}, 0
    v_mov_b32 v{t+1}, s{sTAG}
    s_add_u32 s{A}, s{sSO}, {KH-KB}
    s_add_u32 s{A+1}, s{sSO2}, {KH-KB}""")
    if CFG['hst']:
        p(f"s_cmp_eq_u32 s{sHALO}, 0\ns_cbranch_scc1 {nh}")
        for i in range(8): p(f"ds_write_b128 v{aSG}, {vr(allst[i],4)} offset:{i*1024}")
        for k in range(4): p(f"v_add_u32 v{t+4+k}, s{A}, v{aST+k}")
        p(f"""s_lshl_b32 s{A}, s{sWC}, 2
        s_add_u32 s{A}, s{A}, {F_STG}
        ds_write_b128 v{aSG}, {vr(t+4,4)} offset:8192
        v_mov_b32 v{t+2}, s{A}
        v_mov_b32 v{t+3}, 1
        s_mov_b64 exec, 1
        ds_add_u32 v{t+2}, v{t+3}
        s_waitcnt vmcnt(0)""")
        dual([f"buffer_store_dword v{t+1}, v{t}, {S4(sWS)}, s{sFO} offen"])
        p(f"""ds_add_u32 v{t+2}, v{t+3} offset:8
        s_branch {jh}
        {nh}:
        s_waitcnt vmcnt(0)
        s_mov_b64 exec, 1""")
        dual([f"buffer_store_dword v{t+1}, v{t}, {S4(sWS)}, s{sFO} offen"])
        p(f"{jh}:\ns_mov_b64 exec, -1")
        STAMP('fl')
        return
    if CFG['hdef']>=0:
        HST[:]=hst
        p("s_waitcnt vmcnt(0)")
    elif CFG['hearly']:
        p(f"s_cmp_eq_u32 s{sHALO}, 0\ns_cbranch_scc1 {nh}")
        for x in hst: p(x)
        p(f"s_waitcnt vmcnt(8)\ns_branch {jh}\n{nh}:\ns_waitcnt vmcnt(0)\n{jh}:")
    else: p("s_waitcnt vmcnt(0)")
    p("s_mov_b64 exec, 1")
    dual([f"buffer_store_dword v{t+1}, v{t}, {S4(sWS)}, s{sFO} offen"])
    p(f"s_mov_b64 exec, -1")
    if not CFG['hearly'] and CFG['hdef']<0:
        HST[:]=hst
        p(f"s_cmp_lg_u32 s{sHAL2}, 1\ns_cbranch_scc1 {nh}" if CFG['hs2'] else f"s_cmp_eq_u32 s{sHALO}, 0\ns_cbranch_scc1 {nh}")
        for x in hst: p(x)
        p(f"{nh}:")
    STAMP('fl')
import struct
def f2u(x): return struct.unpack("<I",struct.pack("<f",x))[0]

aLin,aTl,aKm,aKt,aV,aFl,aO,aQ0,aQ1=246,247,248,249,250,251,252,253,254
aKm1,aKt1,aV1=216,217,218
QM=[28,34]; QT=[32,38]; PP=40
KM=[48,62]; KT=[52,66]; VV=[[54,58],[68,72]]
SS=[80,96]; OO=[112,128]; CD=200; CF=230
cVM=8; sQ=[10,11]; sOm=[12,13]; sOt=[14,15]; cXO,cJ,cF,cK,cV,cL,cHO,cT0,cHX=range(16,25); sOSC=sT+15; sFB=sT+16; aWR=225
NINF="0xff800000"
def att_setup():
    t=vT; A=sT+7; B=sT+8; C=sT+17; sF=cF
    wo_pre1()
    att_ids()
    moe_role()
    p(f"v_mov_b32 v{aCLS}, 0x207")
    if CFG['hkv']: p(f"v_lshlrev_b32 v{aLin}, 4, v0\nv_mov_b32 v{aFl}, {F_G1}")
    else:
        flag_addr(aFl,t,1,A,B,C)
        p(f"""s_lshl_b32 s{sF}, s{sG}, 11
        s_lshl_b32 s{A}, s{sHF}, 4
        v_mov_b32 v{t}, s{A}
        v_cmp_gt_u32 vcc, 8, v0
        s_add_u32 s{sF}, s{sF}, {FL}
        s_mov_b32 s{sK1024}, 1024
        v_cndmask_b32 v{t}, 8, v{t}, vcc
        v_add_u32 v{aFl}, v{aFl}, v{t}""")
        kv_addr(aLin,aTl,t)
    p(f"""s_lshl_b32 s{A}, s{sHF}, 10
    s_add_u32 s{B}, s{A}, {L_KV}
    v_add_u32 v{aKm}, s{B}, v{aLin}
    s_sub_u32 s{B}, {L_KV+1024}, s{A}
    v_add_u32 v{aKm1}, s{B}, v{aLin}
    v_and_b32 v{t}, 31, v0
    v_lshrrev_b32 v{t+1}, 5, v0
    v_xor_b32 v{t+2}, s{sHO}, v{t+1}
    v_lshlrev_b32 v{t+2}, 3, v{t+2}
    v_lshl_add_u32 v{t+2}, v{t}, 4, v{t+2}
    s_lshl_b32 s{A}, s{sHF}, 9
    s_add_u32 s{B}, s{A}, {L_KV+2048}
    v_add_u32 v{aKt}, s{B}, v{t+2}
    s_sub_u32 s{B}, {L_KV+2048+512}, s{A}
    v_add_u32 v{aKt1}, s{B}, v{t+2}
    v_mul_u32_u24 v{t+2}, 320, v{t+1}
    v_lshl_add_u32 v{t+2}, v{t}, 4, v{t+2}
    s_mul_i32 s{A}, s{sHF}, 1280
    s_add_u32 s{B}, s{A}, {L_KV+3072}
    v_add_u32 v{aV}, s{B}, v{t+2}
    s_sub_u32 s{B}, {L_KV+3072+1280}, s{A}
    v_add_u32 v{aV1}, s{B}, v{t+2}
    v_lshlrev_b32 v{t+2}, 2, v{t+1}
    v_sub_u32 v{t+2}, v{t}, v{t+2}
    s_cmp_eq_u32 s{sHF}, 0
    s_cselect_b32 s{A}, {NINF}, 0
    s_cselect_b32 s{B}, 0, {NINF}
    v_mov_b32 v{t+3}, s{A}
    v_mov_b32 v{t+4}, s{B}""")
    for i in range(16):
        m=C+1+2*(i%2)+((C+1)%2)
        ri=8*(i>>2)+(i&3)
        p(f"v_cmp_le_i32 s[{m}:{m+1}], {ri}, v{t+2}")
        if i>0:
            m2=C+1+2*((i-1)%2)+((C+1)%2)
            if i==1: p("s_nop 0")
            p(f"v_cndmask_b32 v{CD+i-1}, v{t+3}, v{t+4}, s[{m2}:{m2+1}]\nv_cndmask_b32 v{CF+i-1}, v{t+4}, v{t+3}, s[{m2}:{m2+1}]")
    p(f"""s_nop 0
    v_cndmask_b32 v{CD+15}, v{t+3}, v{t+4}, s[{m}:{m+1}]
    v_cndmask_b32 v{CF+15}, v{t+4}, v{t+3}, s[{m}:{m+1}]
    v_cmp_eq_u32 s[{m}:{m+1}], 20, v{t}
    v_cmp_eq_u32 vcc, 24, v{t}
    s_mov_b32 s{cHO}, s{sHO}
    s_or_b64 s[{cVM}:{cVM+1}], vcc, s[{m}:{m+1}]""")
    p(f"""v_bfe_u32 v{t+2}, v0, 4, 1
    v_mul_u32_u24 v{t+2}, 20480, v{t+2}
    v_lshl_add_u32 v{t+2}, v{t+1}, 8, v{t+2}
    v_and_b32 v{t+3}, 15, v0
    v_lshl_add_u32 v{aO}, v{t+3}, 4, v{t+2}
    s_xor_b32 s{cHX}, s{sHF}, s{sHH}
    s_mov_b32 s{cT0}, s{sT0}
    s_lshl_b32 s{A}, s{sWAVE}, 1
    s_sub_u32 s{A}, 7, s{A}
    v_mul_u32_u24 v{t+2}, s{A}, v0
    s_add_u32 s{A}, s{sT0}, s{sWAVE}
    v_add_lshl_u32 v{aFO}, v{t+2}, s{A}, 12
    s_lshl_b32 s{A}, s{sHD}, 7
    s_add_u32 s{A}, s{A}, {FO}
    v_add_u32 v{aFO}, s{A}, v{aFO}""")
    for q in range(2):
        p(f"""s_sub_u32 s{A}, 7, s{sWAVE}
        s_cmp_eq_u32 s{sHF}, {q}
        s_cselect_b32 s{A}, s{A}, s{sWAVE}
        s_add_u32 s{A}, s{A}, s{sT0}""")
        p(f"""s_mul_i32 s{sQ[q]}, s{A}, 2560
        s_mul_i32 s{B}, s{sPH}, {64*2560}
        s_add_u32 s{sQ[q]}, s{sQ[q]}, s{B}
        s_mul_i32 s{A}, s{A}, 40960
        s_mul_i32 s{B}, s{sPH}, 1280
        s_add_u32 s{A}, s{A}, s{B}
        s_add_u32 s{A}, s{A}, {OB}
        s_mul_i32 s{B}, s{sHO}, 768
        s_add_u32 s{sOm[q]}, s{A}, s{B}
        s_lshl_b32 s{B}, s{sHO}, 3
        s_add_u32 s{sOt[q]}, s{A}, s{B}""")
    sK=cK; sV=cV; sL=cL
    if not CFG['hkv']: p(f"""s_lshl_b32 s{A}, s{sWAVE}, 1
    s_sub_u32 s{B}, -2, s{A}
    s_cmp_eq_u32 s{sHF}, 0
    s_cselect_b32 s{A}, s{A}, s{B}
    s_add_u32 s{A}, s{A}, s{sT0}
    s_mul_i32 s{sK}, s{A}, 2560
    s_mul_i32 s{sV}, s{A}, 1280
    s_mul_i32 s{A}, s{sPH}, {64*2560}
    s_add_u32 s{sK}, s{sK}, s{A}
    s_add_u32 s{sK}, s{sK}, {KB}
    s_mul_i32 s{A}, s{sHD}, 81920
    s_add_u32 s{sV}, s{sV}, s{A}
    s_add_u32 s{sV}, s{sV}, {VB}
    s_mul_i32 s{sL}, s{sWAVE}, 5632
    s_add_u32 s{sL}, s{sL}, {L_KV+4*5632}""")
    p(f"""s_mul_i32 s{A}, s{sHO}, 1536
    v_add_u32 v{aQ0}, s{A}, v{aLin}
    s_lshl_b32 s{A}, s{sHO}, 3
    v_add_u32 v{aQ1}, s{A}, v{aLin}""")
aXD=219; aXL=223; sLCX=25
def xr_loads():
    if CFG['xdma']:
        A=sT+7; B=sT+8
        p(f"""s_mul_i32 s{A}, s{sWAVE}, 2560
        s_add_u32 m0, s{A}, {L_STG}
        s_add_u32 s{A}, s{cXO}, 6720
        s_add_u32 s{B}, s{cXO}, 13440
        s_mov_b32 exec_hi, 0x0fffffff
        buffer_load_dwordx4 v{aXD}, {S4(sX)}, s{cXO} offen lds
        buffer_load_dwordx4 v{aXD}, {S4(sX)}, s{A} offen offset:960 lds
        s_mov_b32 exec_hi, 0xff
        buffer_load_dwordx4 v{aXD}, {S4(sX)}, s{B} offen offset:1920 lds
        s_mov_b32 m0, {L_SA}
        s_mov_b64 exec, 0x3ff
        buffer_load_dwordx4 v{aLin}, {S4(sWR)}, s{cJ} offen lds
        s_mov_b64 exec, -1""")
        return
    for o,n in ((0,4),(4,4),(8,2)): p(f"buffer_load_dwordx{n} {vr(XR+o,n)}, v{aX2}, {S4(sX)}, s{cXO} offen offset:{4*o}")
    for o,n in ((0,4),(4,4),(8,2)): p(f"buffer_load_dwordx{n} {vr(WR_+o,n)}, v{aWR}, {S4(sWR)}, s{cJ} offen offset:{4*o}")
def att_go():
    t=vT; A=sT+7; B=sT+8; C=sT+17
    nh=p.lab("nohs"); lp=p.lab("fp"); ok=p.lab("fpok"); md=p.lab("fpm")
    ld=f"buffer_load_dword v{t+10}, v{aFl}, {S4(sWS)}, s{cF} offen sc1"
    OWN=CFG['hsp']&2; sOWN=sT+19
    if OWN:
        assert not (CFG['hkv'] or CFG['hst'] or CFG['honly'] or CFG['hdef']>=0) and CFG['xru']>=0
        p(f"s_andn2_b32 s{sOWN}, s{sHAL2}, s{sMODE}\ns_cbranch_scc1 L_nold\n{ld}\nL_nold:")
    elif not CFG['hkv']: p(ld)
    p(f"""v_mov_b32 v{t+4}, 0x3f803f80
    s_or_b32 s{sOSC}, s{cHX}, s{sMODE}
    s_mov_b32 s{sFB}, 0
    s_mul_i32 s{A}, s{sMODE}, {OB2-OB}
    v_add_u32 v{aO}, s{A}, v{aO}""")
    HD=CFG['hdef']>=0
    def vvi(b_):
        for mm in range(2):
            for r in range(4): p(f"v_cndmask_b32 v{VV[b_][mm]+r}, 0, v{t+4}, s[{cVM}:{cVM+1}]")
    vvi(0)
    HS=CFG['hs2']
    if not HD and not HS: vvi(1)
    for q in range(2): p(f"v_mov_b32 v{QT[q]}, 0\nv_mov_b32 v{QT[q]+1}, 0")
    if CFG['lclr']:
        for r in range(4): p(f"v_mov_b32 v{PP+r}, -1")
        p(f"""s_lshl_b32 s{A}, s2, 2
        s_add_u32 s{A}, s{A}, s{sWAVE}
        s_mul_i32 s{B}, s{A}, 640
        s_add_u32 s{B}, s{B}, {CAND}
        v_mov_b32 v{PP+5}, s{B}
        s_min_u32 s{B}, s{A}, 191
        s_lshl_b32 s{B}, s{B}, 7
        s_add_u32 s{B}, s{B}, {ACT-640}
        v_mov_b32 v{PP+6}, s{B}
        v_cmp_gt_u32 vcc, 40, v0
        s_cmp_lt_u32 s{A}, 192
        s_cselect_b32 s{sLCX}, 0xff00, 0
        s_or_b32 s{sLCX}, s{sLCX}, 0xff
        v_cndmask_b32 v{PP+5}, v{PP+6}, v{PP+5}, vcc
        v_add_u32 v{PP+4}, v{PP+5}, v{aLin}""")
    if CFG['osent']: wo_scal()
    assert CFG['hsent'] or not CFG['hkv']
    if CFG['hkv']:
        p(f"v_mov_b32 v{t+4}, {F_FS}"); lds_wait(t+4,t+5,C,'gt',1,0)
    else:
        if CFG['hst'] or HD or HS or CFG['honly']: p(f"s_mov_b32 s{C}, {SPIN}\ns_waitcnt vmcnt(0)")
        else: p(f"""s_lshr_b32 s{A}, s{sWAVE}, 1
        s_lshl_b32 s{A}, s{A}, 2
        s_add_u32 s{A}, s{A}, {F_STG}
        v_mov_b32 v{t+4}, s{A}
        v_mov_b32 v{t+5}, 1
        {f"s_cmp_lg_u32 s{sOWN}, 0" if OWN else ""}
        {f"s_cbranch_scc1 L_own" if OWN else ""}
        s_mov_b32 s{C}, {SPIN}
        s_cmp_eq_u32 s{sHAL2}, 0
        s_waitcnt vmcnt(0)
        s_cbranch_scc1 {nh}
        s_mov_b64 exec, 1
        ds_add_u32 v{t+4}, v{t+5}
        s_mov_b64 exec, -1
        {nh}:""")
        STAMP('hack')
        p(f"""s_branch {md}
        {lp}:
        {ld}
        s_waitcnt vmcnt(0)
        {md}:
        v_cmp_ne_u32 vcc, s{sTAG}, v{t+10}
        s_nop 0
        s_cbranch_vccz {ok}""")
        spin(C,lp,ok)
        p(f"s_branch {lp}")
        if OWN:
            p(f"L_own:\nv_mov_b32 v{t+6}, {F_OWN}\ns_mov_b64 exec, 1\nds_add_u32 v{t+6}, v{t+5} offset:{F_FS-F_OWN+65536}\ns_mov_b64 exec, -1".replace(f"offset:{F_FS-F_OWN+65536}","") if 0 else f"L_own:\nv_mov_b32 v{t+6}, {F_FS}\ns_mov_b64 exec, 1\nds_add_u32 v{t+6}, v{t+5}\ns_mov_b64 exec, -1\nv_mov_b32 v{t+6}, {F_OWN}"); lds_wait(t+6,t+7,C,'gt',1,0)
        p(f"{ok}:")
    STAMP('fseen')
    if not CFG['hkv'] and not HS: kv_dma(aLin,aTl,cK,cV,cL,A,B,cHO)
    for q in range(2): p(f"buffer_load_dwordx4 {vr(QM[q],4)}, v{aQ0}, {S4(sWS)}, s{sQ[q]} offen {CFG['ldp']}")
    p(f"s_mov_b64 exec, s[{sLO}:{sLO+1}]")
    for q in range(2): p(f"buffer_load_dwordx2 {vr(QT[q],2)}, v{aQ1}, {S4(sWS)}, s{sQ[q]} offen offset:1024 {CFG['ldp']}")
    if CFG['lclr']:
        assert not (HD or CFG['hkv'] or OWN) and CFG['xru']>CFG['lcu']
        st=[f"buffer_store_dwordx2 {vr(PP,2)}, v{aO}, {S4(sWS)}, s{sOt[q]} offen offset:512" for q in range(2)]+["s_mov_b64 exec, -1"]+[f"buffer_store_dwordx4 {vr(PP,4)}, v{aO}, {S4(sWS)}, s{sOm[q]} offen" for q in range(2)]
        p(f"s_cmp_lg_u32 s{sOSC}, 0\ns_cbranch_scc1 L_lcs")
        for x in st: p(x)
        p("s_branch L_lcj\nL_lcs:")
        for x in st: p(x+(" sc1" if x.startswith("buffer") else ""))
        p(f"L_lcj:\ns_mov_b32 exec_hi, s{sLCX}\nbuffer_store_dwordx4 {vr(PP,4)}, v{PP+4}, {S4(sWS)}, 0 offen sc1")
    if HD:
        assert CFG['xru']>CFG['hdef']
        n2=p.lab("nohd"); j2=p.lab("jhd")
        p(f"""s_mov_b64 exec, 1
        v_mov_b32 v{t}, {F_G1}
        v_mov_b32 v{t+1}, 1
        ds_add_u32 v{t}, v{t+1} offset:{F_FS-F_G1}
        s_mov_b64 exec, -1
        v_mov_b32 v{aFl}, {F_G1}
        s_cmp_eq_u32 s{sHAL2}, 0
        s_cbranch_scc1 {n2}""")
        g1=lambda n: p(f"s_mov_b64 exec, 1\ns_waitcnt vmcnt({n})\nds_add_u32 v{t}, v{t+1}\ns_mov_b64 exec, -1")
        if CFG['hdg']=='G1':
            g1(4); lds_wait(aFl,t+5,C,'gt',4,0)
            for x in HST: p(x)
            p("s_nop 1"); vvi(1)
        else:
            if CFG['hdg']=='FS': p(f"v_mov_b32 v{t+6}, {F_FS}"); lds_wait(t+6,t+5,C,'gt',4,0)
            for x in HST: p(x)
            p("s_nop 1"); vvi(1)
            g1(12); lds_wait(aFl,t+5,C,'gt',4,0)
        p(f"s_waitcnt vmcnt(8)\ns_branch {j2}\n{n2}:")
        vvi(1); g1(4); lds_wait(aFl,t+5,C,'gt',4,0)
        p(f"""s_waitcnt vmcnt(0)
        {j2}:
        s_lshr_b32 s{A}, s{sWAVE}, 1
        s_lshl_b32 s{A}, s{A}, 2
        s_add_u32 s{A}, s{A}, {F_STG}
        v_mov_b32 v{t+4}, s{A}""")
    elif HS:
        assert CFG['xru']>CFG['hs2u'] and not (CFG['lclr'] or OWN or CFG['hkv'] or CFG['hst'] or CFG['honly'] or CFG['hearly'] or CFG['padk']==1)
        n2=p.lab("hsu"); n3=p.lab("hsd"); j2=p.lab("jhs"); j3=p.lab("jhs"); j4=p.lab("jhs")
        fs=f"ds_add_u32 v{t}, v{t+1} offset:{F_FS-F_G1}"
        p("s_mov_b64 exec, -1")
        kv_dma(aLin,aTl,cK,cV,cL,A,B,cHO)
        p(f"""v_mov_b32 v{t}, {F_G1}
        v_mov_b32 v{t+1}, 1
        v_mov_b32 v{aFl}, {F_G1}
        v_mov_b32 v{vHF}, s{sTAG}
        v_mov_b32 v{vHF+1}, 0
        s_cmp_eq_u32 s{sHAL2}, 2
        s_cbranch_scc1 {n3}""")
        vvi(1)
        p(f"""s_mov_b64 exec, 1
        s_cmp_eq_u32 s{sHAL2}, 1
        s_cbranch_scc1 {n2}
        {fs if 'FS' in CFG['gm']+CFG['gr'] else ""}
        s_waitcnt vmcnt(0)
        s_branch {j2}
        {n2}:
        buffer_store_dword v{vHF}, v{vHF+1}, {S4(sWS)}, s{sHFA} offen sc1
        {fs}
        s_waitcnt vmcnt(1)
        s_branch {j2}
        {n3}:
        s_mov_b64 exec, 1
        {fs}
        s_mov_b64 exec, -1""")
        if CFG['hs2g']=='FS': p(f"v_mov_b32 v{t+6}, {F_FS}"); lds_wait(t+6,t+5,C,'gt',4,0)
        elif CFG['hs2g']=='KV': p("s_waitcnt vmcnt(0)")
        for x in HST: p(x)
        p("s_nop 1"); vvi(1)
        p(f"""s_mov_b64 exec, 1
        s_waitcnt vmcnt(8)
        {j2}:
        ds_add_u32 v{t}, v{t+1}
        s_mov_b64 exec, -1""")
        lds_wait(aFl,t+5,C,'gt',4,0)
    elif CFG['hkv']: p("s_mov_b64 exec, -1")
    if CFG['lay'] and CFG['padk']==1:
        for w in range(3): p(f"s_cmp_eq_u32 s{sWAVE}, {w}\ns_cbranch_scc1 L_pv{w}")
        p("s_branch L_pv3\nL_kvb:")
    if not HD and not HS and not CFG['hkv']: p(f"""s_mov_b64 exec, 1
    v_mov_b32 v{t}, {F_G1}
    v_mov_b32 v{t+1}, 1
    {f"ds_add_u32 v{t}, v{t+1} offset:{F_FS-F_G1}" if 'FS' in CFG['gm']+CFG['gr'] else ""}
    {f"s_cmp_eq_u32 s{sOWN}, 0" if OWN else ""}
    {f"s_cbranch_scc1 L_nohk" if OWN else ""}
    {f"s_waitcnt vmcnt(10)" if OWN else ""}
    {f"ds_add_u32 v{t+4}, v{t+1}" if OWN else ""}
    {f"L_nohk:" if OWN else ""}
    s_waitcnt vmcnt({9 if CFG['lclr'] else 4})
    ds_add_u32 v{t}, v{t+1}
    s_mov_b64 exec, -1
    v_mov_b32 v{aFl}, {F_G1}""")
    if CFG['hkv']: lds_wait(aFl,t+5,C,'gt',4,0)
    if CFG['xru']<0: xr_loads()
    if not HD and not HS:
        if not CFG['hkv']: lds_wait(aFl,t+5,C,'gt',4,0)
        p(f"s_waitcnt vmcnt({6 if CFG['xru']<0 else 5 if CFG['lclr'] else 0})")
    STAMP('kv')
    p(f"""s_cmp_eq_u32 s{sWAVE}, 1
    s_cbranch_scc1 L_av1
    s_cmp_eq_u32 s{sWAVE}, 2
    s_cbranch_scc1 L_av2
    s_cmp_eq_u32 s{sWAVE}, 3
    s_cbranch_scc1 L_av3""")
    if CFG['lay']: p("s_branch L_av0")
PG=".p2alignl 12, 0xbf810000"
KVB=lambda b: 'L_kvb' if CFG['padk']==1 else f'L_pkb{b}'
def kreads(n,b_):
    o=(n>>1)*5632
    return [f"ds_read_b128 {vr(KM[b_],4)}, v{(aKm,aKm1)[n&1]} offset:{o}", f"ds_read_b64 {vr(KT[b_],2)}, v{(aKt,aKt1)[n&1]} offset:{o}"]
def vreads(n,b_):
    o=(n>>1)*5632; a=(aV,aV1)[n&1]
    return [f"s_mov_b64 exec, s[{sLO+2}:{sLO+3}]", f"ds_read_b128 {vr(VV[b_][0],4)}, v{a} offset:{o}", f"ds_read_b128 {vr(VV[b_][1],4)}, v{a} offset:{o+640}", "s_mov_b64 exec, -1"]
def att_variant(w):
    U=[]
    for n in range(15-w,8+w,-1): U.append((0,n))
    for n in range(8+w,6-w,-1): U+= [(0,n),(1,n)]
    for n in range(6-w,w-1,-1): U.append((1,n))
    assert len(U)==18
    diag=[15-w,8+w]
    tiles=[]; tau=[]
    for q,n in U:
        if not tiles or tiles[-1]!=n: tiles.append(n)
        tau.append(len(tiles)-1)
    first=[tau.index(i) for i in range(len(tiles))]
    started=[0,0]
    def QK(u):
        q,n=U[u]; b_=tau[u]&1; S=vr(SS[u&1],16)
        c=vr(CD,16) if n==diag[q] else (vr(CF,16) if n==diag[q]-8 else "0")
        return [f"v_mfma_f32_32x32x16_bf16 {S}, {vr(KM[b_],4)}, {vr(QM[q],4)}, {c}", f"v_mfma_f32_32x32x8_bf16 {S}, {vr(KT[b_],2)}, {vr(QT[q],2)}, {S}"]
    def PV(u,m):
        q,n=U[u]; O=vr(OO[q],16)
        c=O if started[q] else "0"; started[q]=1
        return f"v_mfma_f32_32x32x16_bf16 {O}, {vr(VV[tau[u]&1][m],4)}, {vr(PP+4*m,4)}, {c}"
    if CFG['lay']:
        p(PG)
        if CFG['padk']: p(f"L_pv{w}:\ns_branch {(('L_padW','L_padM',KVB(1),KVB(1)) if CFG['padk']<3 else ('L_pv1','L_pv2','L_pv3','L_padW'))[w]}")
    p(f"L_av{w}:")
    for i,f in enumerate(first):
        if f<=1:
            for x in kreads(tiles[i],i&1): p(x)
    for x in vreads(tiles[0],0): p(x)
    p("s_waitcnt lgkmcnt(0)")
    for x in QK(0): p(x)
    p("s_nop 7\ns_nop 3")
    pend=False
    H=first[tiles.index(7)]
    H2=first[tiles.index(3)]
    Hs=[H,H2]+([first[tiles.index(1)]] if CFG['hs2'] and 1 in tiles else [])
    for u in range(18):
        S=SS[u&1]
        e=lambda i: p(f"v_exp_f32 v{S+i}, v{S+i}")
        c=lambda k: p(f"v_cvt_pk_bf16_f32 v{PP+k}, v{S+2*k}, v{S+2*k+1}")
        kr=[x for i,f in enumerate(first) if f==u+2 for x in kreads(tiles[i],i&1)]
        vr_=[x for i,f in enumerate(first) if f==u+1 for x in vreads(tiles[i],i&1)]
        late=(u+2 in Hs); pre=(u+3 in Hs); hk=Hs.index(u+2) if late else Hs.index(u+3) if pre else None
        assert not (late and pre)
        STAMP('u%d'%u)
        e(0); e(1)
        if u>0: p(PV(u-1,1))
        if u==CFG['xru']: xr_loads()
        if u==CFG['hdef']:
            p(f"v_mov_b32 v{vT+5}, 1\ns_waitcnt vmcnt(0)\ns_mov_b64 exec, 1\nds_add_u32 v{vT+4}, v{vT+5}\ns_mov_b64 exec, -1")
            STAMP('hack')
        if CFG['hs2'] and u==CFG['hs2u']:
            p(f"s_cmp_eq_u32 s{sHAL2}, 2\ns_cbranch_scc1 L_hb{w}\nL_hr{w}:")
        if CFG['lclr'] and u==CFG['lcu']:
            assert u<7
            p(f"s_waitcnt vmcnt(0)\ns_mov_b64 exec, 1\nds_add_u32 v{aFl}, v{vT+1} offset:{F_CC-F_G1}\ns_mov_b64 exec, -1")
        e(2)
        if not late:
            for x in kr: p(x)
        if pre: p(f"ds_read_b32 v{vT}, v{aFl} offset:{F_M+4*hk-F_G1}")
        e(3); c(0); c(1)
        if pend: p(f"s_waitcnt lgkmcnt({(len(kr) if not late else 0)+(1 if pre else 0)})")
        qk=QK(u+1) if u<17 else [None,None]
        if qk[0]: p(qk[0])
        e(4)
        if late:
            p(f"v_cmp_gt_u32 vcc, 1, v{vT}")
        e(5)
        if late:
            p(f"s_cbranch_vccnz L_g2w{w}{hk}\nL_g2r{w}{hk}:")
            for x in kr: p(x)
        for x in vr_: p(x)
        e(6); e(7); c(2); c(3)
        if qk[1]: p(qk[1])
        e(8); e(9); e(10); e(11)
        p(PV(u,0))
        c(4); c(5); e(12); e(13); e(14); e(15); c(6); c(7)
        pend=bool(kr or vr_ or pre)
        if u==H-1:
            p(f"s_cmp_eq_u32 s{cT0}, 0\ns_cbranch_scc1 L_ex{w}")
            exq=PV(u,1)
    p("s_nop 1")
    p(PV(17,1))
    p("s_branch L_afin")
    if CFG['hs2']:
        p(f"""L_hb{w}:
        s_waitcnt vmcnt(0)
        s_mov_b64 exec, 1
        buffer_store_dword v{vHF}, v{vHF+1}, {S4(sWS)}, s{sHFA} offen sc1
        s_mov_b64 exec, -1""")
        STAMP('hb')
        p(f"s_branch L_hr{w}")
    for hk in range(len(Hs)):
        p(f"L_g2w{w}{hk}:")
        p(f"v_mov_b32 v{vT+1}, {F_M+4*hk}")
        lds_wait(vT+1,vT,sT+17,'gt',1,0)
        p(f"s_branch L_g2r{w}{hk}")
    p(f"L_ex{w}:\n{exq}")
    if 99>CFG['xru']>=H: xr_loads()
    p("s_waitcnt lgkmcnt(0)\ns_branch L_afin")
    p(f";@slot{w}")
def att_fin():
    t=vT; A=sT+7
    if CFG['lay']:
        p(PG)
        if CFG['padk']: p("L_padW:\ns_branch "+(KVB(0) if CFG['padk']<3 else 'L_padM'))
    p("L_afin:")
    STAMP('aend')
    p(f"s_mov_b32 s{A}, {hex(f2u(2.0**-40))}\ns_mov_b32 s{A+1}, {hex(f2u(2.0**40)-f2u(2.0**-40))}")
    for q in range(2):
        O=OO[q]
        p(f"""v_cndmask_b32 v{t}, v{O+8}, v{O+12}, s[{sLO}:{sLO+1}]
        v_pk_add_f32 v[{t+2}:{t+3}], v[{O}:{O+1}], v[{O+2}:{O+3}]
        v_rcp_f32 v{t+1}, v{t}
        v_pk_add_f32 v[{t+4}:{t+5}], v[{O+4}:{O+5}], v[{O+6}:{O+7}]
        v_pk_add_f32 v[{t+6}:{t+7}], v[{O+8}:{O+9}], v[{O+10}:{O+11}]
        v_subrev_u32 v{t}, s{A}, v{t}
        v_pk_add_f32 v[{t+2}:{t+3}], v[{t+2}:{t+3}], v[{t+4}:{t+5}]
        v_cmp_lt_u32 s[{A+11}:{A+12}], s{A+1}, v{t}
        v_pk_add_f32 v[{t+2}:{t+3}], v[{t+2}:{t+3}], v[{t+6}:{t+7}]
        v_add_f32 v{t+2}, v{t+2}, v{t+3}""")
        p(f"v_cmp_class_f32 vcc, v{t+2}, v{aCLS}")
        for k in range(6): p(f"v_pk_mul_f32 {vr(O+2*k,2)}, {vr(O+2*k,2)}, {vr(t,2)} op_sel:[0,1] op_sel_hi:[1,1]")
        p(f"""s_or_b64 vcc, vcc, s[{A+11}:{A+12}]
        s_cbranch_scc1 L_afb{q}
        L_afr{q}:""")
        for k in range(6): p(f"v_cvt_pk_bf16_f32 v{O+k}, v{O+2*k}, v{O+2*k+1}")
        p(f"s_cmp_lg_u32 s{sOSC}, 0")
        st=[f"buffer_store_dwordx4 {vr(O,4)}, v{aO}, {S4(sWS)}, s{sOm[q]} offen", f"s_mov_b64 exec, s[{sLO}:{sLO+1}]",
            f"buffer_store_dwordx2 {vr(O+4,2)}, v{aO}, {S4(sWS)}, s{sOt[q]} offen offset:512", "s_mov_b64 exec, -1"]
        p(f"s_cbranch_scc1 L_osc{q}")
        for x in st: p(x+(" "+CFG['apol'] if x.startswith("buffer") else ""))
        p(f"s_branch L_osr{q}\nL_osc{q}:")
        for x in st: p(x+(" "+CFG['ospol'] if x.startswith("buffer") else ""))
        p(f"L_osr{q}:")
    p(f"""v_mov_b32 v{t}, {F_DONE}
    v_mov_b32 v{t+1}, 1
    s_mov_b64 exec, 1
    ds_add_u32 v{t}, v{t+1}
    s_mov_b64 exec, -1""")
    STAMP('ost')
aCLS=255; aFO=226; aFR=227
def att_cold():
    t=vT; A=sT+7; B=sT+8; N=sT+17; J=sT+18; CN=sT+19; PA=sT+20
    for q in range(2): p(f"L_afb{q}:\ns_cmp_lg_u32 s{sFB}, 0\ns_cbranch_scc1 L_afr{q}\ns_branch L_afb")
    p(f"L_afb:\ns_mov_b32 s{sFB}, 1\ns_waitcnt lgkmcnt(0)")
    S=SS[0]; MX=t+10; xa=t+11
    for q in range(2):
        lp=p.lab("fb"); nd=p.lab("fbnd"); nf=p.lab("fbnf"); p2=p.lab("fbp2"); nx=p.lab("fbnx"); ps=p.lab("fbps"); dn=p.lab("fbdn")
        for r in range(16): p(f"v_mov_b32 v{OO[q]+r}, 0")
        p(f"""v_mov_b32 v{MX}, {NINF}
        s_mov_b32 s{PA}, 0
        {ps}:""")
        if q==0: p(f"s_sub_u32 s{N}, 15, s{sWAVE}")
        else: p(f"s_add_u32 s{N}, 8, s{sWAVE}")
        p(f"""s_sub_u32 s{CN}, s{N}, 7
        s_cmp_eq_u32 s{cT0}, 0
        s_cselect_b32 s{CN}, s{CN}, 9
        s_mov_b32 s{J}, 0
        {lp}:
        s_lshr_b32 s{A}, s{N}, 1
        s_mul_i32 s{A}, s{A}, 5632
        s_bitcmp1_b32 s{N}, 0
        s_cselect_b64 vcc, -1, 0
        s_nop 0
        v_cndmask_b32 v{xa}, v{aKm}, v{aKm1}, vcc
        v_cndmask_b32 v{xa+1}, v{aKt}, v{aKt1}, vcc
        v_cndmask_b32 v{xa+2}, v{aV}, v{aV1}, vcc
        v_add_u32 v{xa}, s{A}, v{xa}
        v_add_u32 v{xa+1}, s{A}, v{xa+1}
        v_add_u32 v{xa+2}, s{A}, v{xa+2}
        ds_read_b128 {vr(KM[0],4)}, v{xa}
        ds_read_b64 {vr(KT[0],2)}, v{xa+1}
        s_mov_b64 exec, s[{sLO+2}:{sLO+3}]
        ds_read_b128 {vr(VV[0][0],4)}, v{xa+2}
        ds_read_b128 {vr(VV[0][1],4)}, v{xa+2} offset:640
        s_mov_b64 exec, -1
        s_waitcnt lgkmcnt(0)
        v_mfma_f32_32x32x16_bf16 {vr(S,16)}, {vr(KM[0],4)}, {vr(QM[q],4)}, 0
        v_mfma_f32_32x32x8_bf16 {vr(S,16)}, {vr(KT[0],2)}, {vr(QT[q],2)}, {vr(S,16)}
        v_mov_b32 v{xa}, {NINF}
        s_nop 11
        s_cmp_lg_u32 s{J}, 0
        s_cbranch_scc1 {nd}""")
        for r in range(16): p(f"v_cmp_eq_u32 vcc, 0, v{CD+r}\ns_nop 1\nv_cndmask_b32 v{S+r}, v{xa}, v{S+r}, vcc")
        p(f"{nd}:\ns_cmp_lg_u32 s{J}, 8\ns_cbranch_scc1 {nf}")
        for r in range(16): p(f"v_cmp_eq_u32 vcc, 0, v{CF+r}\ns_nop 1\nv_cndmask_b32 v{S+r}, v{xa}, v{S+r}, vcc")
        p(f"{nf}:\ns_cmp_lg_u32 s{PA}, 0\ns_cbranch_scc1 {p2}")
        for r in range(0,16,2): p(f"v_max3_f32 v{MX}, v{S+r}, v{S+r+1}, v{MX}")
        p(f"s_branch {nx}\n{p2}:")
        for r in range(16): p(f"v_sub_f32 v{S+r}, v{S+r}, v{MX}")
        for r in range(16): p(f"v_exp_f32 v{S+r}, v{S+r}")
        p("s_nop 0")
        for k in range(8): p(f"v_cvt_pk_bf16_f32 v{PP+k}, v{S+2*k}, v{S+2*k+1}")
        p("s_nop 1")
        for m in range(2): p(f"v_mfma_f32_32x32x16_bf16 {vr(OO[q],16)}, {vr(VV[0][m],4)}, {vr(PP+4*m,4)}, {vr(OO[q],16)}")
        p(f"""s_nop 11
        {nx}:
        s_sub_u32 s{N}, s{N}, 1
        s_add_u32 s{J}, s{J}, 1
        s_cmp_lt_u32 s{J}, s{CN}
        s_cbranch_scc1 {lp}
        s_cmp_lg_u32 s{PA}, 0
        s_cbranch_scc1 {dn}
        v_mov_b32 v{xa}, v{MX}
        s_mov_b32 s{PA}, 1
        s_nop 0
        v_permlane32_swap_b32 v{xa}, v{MX}
        s_nop 1
        v_max_f32 v{MX}, v{MX}, v{xa}
        s_branch {ps}
        {dn}:""")
    p("s_branch L_afin")

BF=28; AF=108; WACC=200; XR=176; WR_=186; aX2=196; aPS=197; aAL=198; aAR=199; SW=220; aL4=221; aPR=222; aKY=223; aCD=224
HP=40; HF_=50; LP=70; OP=80
sRT=sT+1; sOL=sT+2; sOR=sT+5; sXO=cXO; sPSO=sT+12; sRETRY=sT+13; sPRB=sT+14; sFLO=sT+16; sFRE=sT+18
def acc_init():
    for k in range(10): p(f"v_lshlrev_b32 v{WACC+2*k}, 16, v{XR+k}\nv_and_b32 v{WACC+2*k+1}, 0xffff0000, v{XR+k}")
def wo_pre1():
    t=vT; A=sT+7; B=sT+8
    wo_ids()
    p(f"""v_and_b32 v{t}, 15, v0
    v_lshrrev_b32 v{t+1}, 4, v0
    v_mul_u32_u24 v{aWR}, 40, v{t+1}
    v_mov_b32 v{t+3}, 1280
    v_mad_u32_u24 v{aX2}, v{t}, v{t+3}, v{aWR}
    s_lshl_b32 s{A}, s{sBLK}, 2
    s_add_u32 s{A}, s{A}, s{sWAVE}
    s_mul_i32 s{A}, s{A}, 20480
    s_mul_i32 s{cJ}, s{sJ}, 160
    s_add_u32 s{cXO}, s{A}, s{cJ}
    v_lshlrev_b32 v{aPS}, 7, v{t}
    v_lshl_add_u32 v{aPS}, v{t+1}, 5, v{aPS}
    v_lshlrev_b32 v{aFR}, 7, v{t}
    v_mul_u32_u24 v{t+2}, 640, v{t+1}
    v_bfe_u32 v{t+3}, v0, 2, 2
    v_mul_u32_u24 v{t+3}, 160, v{t+3}
    v_and_b32 v{t+4}, 3, v0
    v_mul_u32_u24 v{t+4}, 40, v{t+4}
    v_add3_u32 v{t+2}, v{t+2}, v{t+3}, v{t+4}
    s_mul_i32 s{A}, s{sHH}, 51200
    s_add_u32 s{B}, s{A}, {L_WO}
    v_add_u32 v{aAL}, s{B}, v{t+2}
    s_sub_u32 s{B}, {L_WO+51200}, s{A}
    v_add_u32 v{aAR}, s{B}, v{t+2}
    v_and_b32 v{t+2}, 7, v0
    v_mul_u32_u24 v{t+2}, 1280, v{t+2}
    v_bfe_u32 v{t+3}, v0, 3, 1
    v_lshl_add_u32 v{aPR}, v{t+3}, 7, v{t+2}""")
    if CFG['xdma']:
        assert 0<=CFG['xru']<99 and CFG['odn']==1
        p(f"""v_mul_u32_u24 v{t+2}, 6554, v0
        v_lshrrev_b32 v{t+2}, 16, v{t+2}
        v_mul_u32_u24 v{t+2}, 1120, v{t+2}
        v_lshl_add_u32 v{aXD}, v0, 4, v{t+2}
        s_mul_i32 s{B}, s{sWAVE}, 2560
        s_add_u32 s{B}, s{B}, {L_STG}
        v_mul_u32_u24 v{t+2}, 160, v{t}
        v_add3_u32 v{aXL}, v{t+2}, v{aWR}, s{B}
        v_add_u32 v{aWR}, {L_SA}, v{aWR}""")
    if CFG['wsp']:
        p(f"""s_and_b32 s{B}, s{sWAVE}, 1
        s_mul_i32 s{B}, s{B}, 25600
        v_add_u32 v{aAL}, s{B}, v{aAL}
        v_add_u32 v{aAR}, s{B}, v{aAR}
        s_lshr_b32 s{B}, s{sWAVE}, 1
        s_mul_i32 s{B}, s{B}, 10240
        s_add_u32 s{A}, s{A}, s{B}
        s_and_b32 s{B}, s{sWAVE}, 1
        s_lshl_b32 s{B}, s{B}, 10
        s_add_u32 s{A}, s{A}, s{B}
        s_add_u32 s{A}, s{A}, {L_WO}
        v_lshlrev_b32 v{aL4}, 4, v0
        v_add_u32 v{aPR}, s{A}, v{aL4}
        v_add_u32 v{aL4}, 4096, v{aL4}""")
def wo_pre2():
    acc_init()
def probe(soff,cnt,first=True):
    t=vT
    lp=p.lab("pb"); ok=p.lab("pbok"); md=p.lab("pbm")
    p(f"s_mov_b32 s{cnt}, {SPIN}")
    if not first: p(f"s_branch {md}")
    p(f"""{lp}:
    buffer_load_dwordx3 v[{t+4}:{t+6}], v{aPR}, {S4(sWS)}, s{soff} offen offset:512 sc1""")
    if not first: p(f"{md}:")
    p(f"""s_waitcnt vmcnt(0)
    v_max_u32 v{t+4}, v{t+4}, v{t+6}
    v_cmp_eq_u32 vcc, -1, v{t+4}
    s_nop 0
    s_cbranch_vccz {ok}""")
    spin(cnt,lp,ok)
    p(f"s_branch {lp}\n{ok}:")
def red3(a,b,c,d):
    p(f"""v_mov_b32 v{d}, v{c}
    s_nop 0
    v_permlane32_swap_b32 v{a}, v{b}
    v_permlane32_swap_b32 v{c}, v{d}
    s_nop 0
    v_add_f32 v{a}, v{a}, v{b}
    v_add_f32 v{c}, v{c}, v{d}
    s_nop 1
    v_permlane16_swap_b32 v{a}, v{c}
    s_nop 0
    v_add_f32 v{a}, v{a}, v{c}
    v_add_f32 v{c}, v{a}, 0
    s_nop 1
    v_permlane16_swap_b32 v{a}, v{c}
    s_nop 0
    v_mov_b32 v{b}, v{a}
    s_nop 1
    v_permlane32_swap_b32 v{a}, v{b}""")
def wo_scal():
    A=sT+7; B=sT+8
    wo_ids()
    p(f"""s_lshl_b32 s{sRT}, s{sBLK}, 2
    s_add_u32 s{sRT}, s{sRT}, s{sWAVE}
    s_mul_i32 s{A}, s{sRT}, 20480
    s_mul_i32 s{B}, s{sMODE}, {OB2-OB}
    s_add_u32 s{A}, s{A}, s{B}
    s_add_u32 s{A}, s{A}, {OB}
    s_mul_i32 s{B}, s{sHH}, 10240
    s_add_u32 s{sOL}, s{A}, s{B}
    s_add_u32 s{sOL+1}, s{sOL}, 4096
    s_add_u32 s{sOL+2}, s{sOL}, 8192
    s_add_u32 s{A}, s{A}, 10240
    s_sub_u32 s{sOR}, s{A}, s{B}
    s_lshl_b32 s{sPSO}, s{sRT}, 11
    s_add_u32 s{sPSO}, s{sPSO}, {PS}
    s_mov_b32 s{sRETRY}, {1<<16}
    s_add_u32 s{sOR+1}, s{sOR}, 4096
    s_add_u32 s{sPRB}, s{sOR}, 8192""")
    if CFG['wsp']:
        p(f"""s_and_b32 s{A}, s{sWAVE}, 1
        s_mul_i32 s{B}, s{A}, 5120
        s_add_u32 s{sOL}, s{sOL}, s{B}
        s_add_u32 s{sOR}, s{sOR}, s{B}
        s_mul_i32 s{B}, s{A}, -40960
        s_add_u32 s{B}, s{B}, 20480
        s_add_u32 s{sOL+1}, s{sOL}, s{B}
        s_add_u32 s{sOR+1}, s{sOR}, s{B}""")
def wo_flags():
    A=sT+7; B=sT+8
    p(f"""s_lshr_b32 s{A}, s{sRT}, 1
    s_lshl_b32 s{A}, s{A}, 12
    s_lshl_b32 s{B}, s{sHH}, 11
    s_add_u32 s{A}, s{A}, {FO}
    s_add_u32 s{sFLO}, s{A}, s{B}
    s_xor_b32 s{sFRE}, s{sFLO}, 2048""")
def wo_gemm():
    t=vT; A=sT+7; B=sT+8; C=sT+17; MXS=t+8
    sROFF=[sOR,sOR+1,sPRB]
    LA=CFG['wla']; WE=CFG['wwe']
    LG=[]
    def af(m): return AF+4*(m%15)
    def aread(m):
        s_,t_=divmod(m,5)
        for rd in range(2):
            p(f"ds_read_b64_tr_b16 {vr(af(m)+2*rd,2)}, v{aAL if s_<10 else aAR} offset:{(s_%10)*5120+rd*2560+8*t_}"); LG.append(m)
    def lgw(m):
        k=[i for i,x in enumerate(LG) if x!='x' and x<=m]
        if not k: return None
        n=len(LG)-1-max(k); del LG[:max(k)+1]; return n
    def bload(s_):
        so=(sOL+(s_%10)//4) if s_<10 else sROFF[(s_%10)//4]
        return f"buffer_load_dwordx4 {vr(BF+4*s_,4)}, v{aLin}, {S4(sWS)}, s{so} offen offset:{(s_%10%4)*1024} sc1"
    def cold(f):
        n0=len(p.L); f(); COLD.append("\n".join(p.L[n0:])); del p.L[n0:]
    p(f"s_cmp_lg_u32 s{sMODE}, 0\ns_cbranch_scc1 L_plsl\nL_plr:")
    def slow():
        p("L_plsl:"); wo_flags()
        p(f"""v_mov_b32 v{t+1}, s{sTAG}
        s_mov_b64 exec, 3
        s_waitcnt vmcnt(0)
        buffer_store_dword v{t+1}, v{aFO}, {S4(sWS)}, 0 offen sc1
        s_mov_b64 exec, -1""")
        flag_poll(aFR,t+4,sFLO,C); flag_poll(aFR,t+4,sFRE,C); p("s_branch L_plr")
    cold(slow)
    NI=CFG['oini']
    def dn():
        if CFG['odn']:
            p(f"v_mov_b32 v{t}, {F_DONE}"); lds_wait(t,t+1,C,'gt',4,0)
    if CFG['oprb']:
        p(f"buffer_load_dwordx3 v[{t+4}:{t+6}], v{aPR}, {S4(sWS)}, s{sOL} offen offset:512 sc1\ns_waitcnt vmcnt(5)")
    else:
        dn()
        for s_ in range(NI): p(bload(s_))
        p(f"s_waitcnt vmcnt({NI+4})")
    acc_init()
    p(f"v_mov_b32 v{t}, {F_WOR}")
    STAMP('fo')
    lds_wait(t,t+1,C,'gt',2,0)
    p(f"ds_read_b32 v{SW}, v{t} offset:{L_SWS-F_WOR}"); LG.append('x')
    STAMP('wor')
    if CFG['oprb']: dn()
    for m in range(LA): aread(m)
    p(f"v_mov_b32 v{t+7}, {F_WO2}\ns_mov_b32 s{sRETRY}, {SPIN}")
    if CFG['oprb']:
        probe(sOL,C,first=False)
        STAMP('prb')
        for s_ in range(NI): p(bload(s_))
    G={}; a=0
    for n in CFG['ogr']: G[a]=a+n; a+=n
    assert a==20 and 10 in G
    def chain(a,b):
        return [f"v_max_u32 v{MXS}, v{BF+4*a}, v{BF+4*a+2}"]+[f"v_max3_u32 v{MXS}, v{BF+4*k}, v{BF+4*k+2}, v{MXS}" for k in range(a+1,b)]
    cmp_=f"v_cmp_eq_u32 vcc, -1, v{MXS}"
    def retry(a,b):
        e=20 if (CFG['opoll']=='all' or a>=10) else 10
        def f():
            p(f"L_og{a}:\ns_sub_u32 s{sRETRY}, s{sRETRY}, 1\ns_cbranch_scc1 L_ogr{a}")
            sl=CFG['osl'][a//10]
            if sl: p(f"s_sleep {sl}")
            if CFG['opoll']=='probe' and a==0: probe(sOL,C)
            for k in range(a,e): p(bload(k))
            p(f"s_waitcnt vmcnt({20-b if e==20 else 0})")
            for x in chain(a,b): p(x)
            p(f"{cmp_}\ns_nop 0\ns_cbranch_vccnz L_og{a}\ns_branch L_ogr{a}")
        cold(f)
    last=lambda s_: (NI if s_<NI else 20)-1
    p(f"s_waitcnt vmcnt({last(0)+1-G[0]})")
    for x in chain(0,G[0]): p(x)
    p(f"{cmp_}\ns_nop 0\ns_cbranch_vccnz L_og0\nL_ogr0:"); retry(0,G[0])
    STAMP('pl')
    for m in range(100):
        s_,t_=divmod(m,5)
        nx=s_+1 if s_+1 in G else None
        if m==50:
            STAMP('pr')
            if 'PR' in (CFG['gstart'],CFG['dstart'],CFG['dgate'],CFG['mtg']):
                p(f"""s_mov_b64 exec, 1
                v_mov_b32 v{t+4}, {F_PR}
                v_mov_b32 v{t+5}, 1
                ds_add_u32 v{t+4}, v{t+5}
                s_mov_b64 exec, -1"""); LG.append('x')
        w=[]
        if nx is not None and t_==1: w.append(f"vmcnt({(20 if m>CFG['orem'] else NI)-G[nx]}"); assert G[nx]<=NI or m>CFG['orem']
        if m%WE==0:
            n=lgw(m+WE-1)
            if n is not None: w.append(f"lgkmcnt({n}")
        if w: p("s_waitcnt "+") ".join(w)+")")
        a_=vr(WACC+4*t_,4)
        p(f"v_mfma_f32_16x16x32_bf16 {a_}, {vr(af(m),4)}, {vr(BF+4*s_,4)}, {a_}")
        if NI<20 and m==CFG['orem']:
            for k in range(NI,20): p(bload(k))
        if m+LA==50-10: p(f"ds_read_b32 v{t+6}, v{t+7}"); LG.append('x')
        if m+LA==50:
            assert nx is None or t_<3
            p(f"v_cmp_gt_u32 vcc, 2, v{t+6}\ns_nop 0\ns_cbranch_vccnz L_wo2w\nL_wo2r:")
            def f():
                p("L_wo2w:"); lds_wait(t+7,t+6,C,'gt',2,0); p("s_branch L_wo2r")
            cold(f)
        if m+LA<100: aread(m+LA)
        if nx is not None:
            ch=chain(nx,G[nx]); k=-(-len(ch)//2)
            if t_==1:
                for x in ch[:k]: p(x)
            if t_==2:
                for x in ch[k:]: p(x)
            if t_==3: p(cmp_)
            if t_==4:
                if nx==10: STAMP('loc')
                p(f"s_cbranch_vccnz L_og{nx}\nL_ogr{nx}:"); retry(nx,G[nx])
    p(f"""v_mov_b32 v{t}, 0x3f803f80
    v_mov_b32 v{t+2}, 0
    v_mov_b32 v{t+3}, 0
    v_mov_b32 v{t+4}, 0
    s_nop 3""")
ACC2=148; aXW=222; aPQ=172; aBP=173
def wo_gemm2():
    t=vT; A=sT+7; B=sT+8; C=sT+17; MXS=t+8
    LA=CFG['wla2']
    LG=[]
    def af(m): return AF+4*(m%10)
    def aread(m,rds=(0,1)):
        s_,t_=divmod(m,5)
        for rd in rds:
            if CFG['wnoa'] and m>=LA and rd<CFG['wnoa']: continue
            p(f"ds_read_b64_tr_b16 {vr(af(m)+2*rd,2)}, v{aAL if s_<5 else aAR} offset:{(s_%5)*5120+rd*2560+8*t_}"); LG.append(m)
    def lgw(m):
        k=[i for i,x in enumerate(LG) if x!='x' and x<=m]
        if not k: return None
        n=len(LG)-1-max(k); del LG[:max(k)+1]; return n
    def bload(s_,us=(0,1)):
        for u in us:
            so=(sOL if s_<5 else sOR)+u
            p(f"buffer_load_dwordx4 {vr(BF+8*s_+4*u,4)}, v{aLin if s_%5<4 else aL4}, {S4(sWS)}, s{so} offen offset:{(s_%5%4)*1024} {CFG['ldo'] if s_<5 else 'sc1'}")
    def cold(f):
        n0=len(p.L); f(); COLD.append("\n".join(p.L[n0:])); del p.L[n0:]
    p(f"s_cmp_lg_u32 s{sMODE}, 0\ns_cbranch_scc1 L_plsl\nL_plr:")
    def slow():
        p("L_plsl:"); wo_flags()
        p(f"""v_mov_b32 v{t+1}, s{sTAG}
        s_mov_b64 exec, 3
        s_waitcnt vmcnt(0)
        buffer_store_dword v{t+1}, v{aFO}, {S4(sWS)}, 0 offen sc1
        s_mov_b64 exec, -1""")
        flag_poll(aFR,t+4,sFLO,C); flag_poll(aFR,t+4,sFRE,C); p("s_branch L_plr")
    cold(slow)
    XL=CFG['xru']==99
    XF_=lambda k: (230+2*k if k<8 else 168+2*(k-8))
    p(f"v_mov_b32 v{t}, {F_DONE}")
    if not XL: p("s_waitcnt vmcnt(4)")
    if CFG['xdma']:
        for k in range(5): p(f"ds_read_b64 {vr(XR+2*k,2)}, v{aXL} offset:{8*k}")
        for k in range(5): p(f"ds_read_b64 {vr(WR_+2*k,2)}, v{aWR} offset:{8*k}")
    if CFG['odn']==2 and not XL: acc_init()
    if CFG['odn']: lds_wait(t,t+1,C,'gt',ND,0)
    for s_ in range(5): bload(s_)
    if CFG['odn']!=2 and not XL: acc_init()
    p(f"v_mov_b32 v{t}, {F_WOR}")
    STAMP('fo')
    lds_wait(t,t+1,C,'gt',2,0)
    p(f"ds_read_b32 v{SW}, v{t} offset:{L_SWS-F_WOR}"); LG.append('x')
    STAMP('wor')
    for m in range(LA): aread(m)
    if CFG['psq']: p(f"v_lshrrev_b32 v{t+7}, 2, v0\nv_and_b32 v{aPQ}, 3, v0\nv_lshlrev_b32 v{aPQ}, 4, v{aPQ}\nv_lshl_add_u32 v{aPQ}, v{t+7}, 7, v{aPQ}")
    p(f"""v_mov_b32 v{t+7}, {F_WO2}
    s_mov_b32 s{sRETRY}, {SPIN}
    s_lshl_b32 s{A}, s{sWAVE}, 2
    s_add_u32 s{A}, s{A}, {F_X}
    v_mov_b32 v{t+10}, s{A}
    v_xor_b32 v{t+11}, 4, v{t+10}
    v_mov_b32 v{t+12}, 1""")
    G={}; a=0
    for n in CFG['ogr2']: G[a]=a+n; a+=n
    assert a==10 and 5 in G
    def chain(a,b):
        return [f"v_max_u32 v{MXS}, v{BF+8*a}, v{BF+8*a+2}"]+[f"v_max3_u32 v{MXS}, v{BF+4*k}, v{BF+4*k+2}, v{MXS}" for k in range(2*a+1,2*b)]
    cmp_=f"v_cmp_eq_u32 vcc, -1, v{MXS}"
    def retry(a,b):
        e=10 if a>=5 else 5
        def f():
            p(f"L_og{a}:\ns_sub_u32 s{sRETRY}, s{sRETRY}, 1\ns_cbranch_scc1 L_ogr{a}")
            sl=CFG['osl'][a//5]
            if sl: p(f"s_sleep {sl}")
            for k in range(a,e): bload(k)
            p(f"s_waitcnt vmcnt({20-2*b if e==10 and not (XL and CFG['xrd']>=0) else 0})")
            for x in chain(a,b): p(x)
            p(f"{cmp_}\ns_nop 0\ns_cbranch_vccnz L_og{a}\ns_branch L_ogr{a}")
        cold(f)
    RM={}
    for j in range(10): RM.setdefault(max(-1,int(CFG['orem2'][0]+j*CFG['orem2'][1])),[]).append(j)
    assert max(RM)<=24
    nis=10
    for j in RM.get(-1,()): bload(5+j//2,(j&1,)); nis+=1
    p(f"s_waitcnt vmcnt({nis-2*G[0]})")
    for x in chain(0,G[0]): p(x)
    p(f"{cmp_}\ns_nop 0\ns_cbranch_vccnz L_og0\nL_ogr0:"); retry(0,G[0])
    STAMP('pl')
    def mf(m,u):
        s_,t_=divmod(m,5)
        a_=vr((WACC,ACC2)[u]+4*t_,4)
        p(f"v_mfma_f32_16x16x32_bf16 {a_}, {vr(af(m),4)}, {vr(BF+8*s_+4*u,4)}, {0 if (u or XL) and s_==0 else a_}")
    WE=CFG['wwe2']
    mX=max(RM)+CFG['xrd']; nx_=0; nxat=0
    if XL and mX<0: xr_loads(); nx_=6; nxat=nis
    for m in range(45):
        s_,t_=divmod(m,5)
        nx=s_+1 if s_+1 in G else None
        if m==25:
            STAMP('pr')
            p(f"""s_mov_b64 exec, 1
            ds_add_u32 v{t+7}, v{t+12} offset:{F_LD-F_WO2}"""); LG.append('x')
            if CFG['prm']==25 and 'PR' in (CFG['gstart'],CFG['dstart'],CFG['dgate'],CFG['mtg']):
                p(f"v_mov_b32 v{t+4}, {F_PR}\nds_add_u32 v{t+4}, v{t+12}"); LG.append('x')
            p("s_mov_b64 exec, -1")
        if m==CFG['prm']!=25 and 'PR' in (CFG['gstart'],CFG['dstart'],CFG['dgate'],CFG['mtg']):
            p(f"s_mov_b64 exec, 1\nds_add_u32 v{t+7}, v{t+12} offset:{F_PR-F_WO2+65536 if F_PR<F_WO2 else F_PR-F_WO2}\ns_mov_b64 exec, -1" if 0 else f"s_mov_b64 exec, 1\nv_mov_b32 v{t+4}, {F_PR}\nds_add_u32 v{t+4}, v{t+12}\ns_mov_b64 exec, -1"); LG.append('x')
        w=[]
        if nx is not None and t_==1: w.append(f"vmcnt({nis+(nx_ if 2*G[nx]<=nxat else 0)-2*G[nx]}"); assert nis>=2*G[nx]
        n=lgw(m+WE-1) if m%WE==0 else None
        if n is not None: w.append(f"lgkmcnt({n}")
        if w: p("s_waitcnt "+") ".join(w)+")")
        mf(m,1)
        if m==25-2*LA-1: p(f"ds_read_b32 v{t+6}, v{t+7}"); LG.append('x')
        if m+LA==25:
            assert nx is None or t_<3
            p(f"v_cmp_gt_u32 vcc, 2, v{t+6}\ns_nop 0\ns_cbranch_vccnz L_wo2w\nL_wo2r:")
            def f():
                p("L_wo2w:"); lds_wait(t+7,t+6,C,'gt',2,0); p("s_branch L_wo2r")
            cold(f)
        if m==44-LA: p(f"ds_read_b32 v{t+6}, v{t+7} offset:{F_LD-F_WO2}"); LG.append('x')
        if m+LA<50: aread(m+LA,(0,) if CFG['wsplit'] else (0,1))
        mf(m,0)
        if m+LA<50 and CFG['wsplit']: aread(m+LA,(1,))
        for j in RM.get(m,()): bload(5+j//2,(j&1,)); nis+=1
        if XL and m==mX: xr_loads(); nx_=6; nxat=nis
        if XL and m==40: p("s_waitcnt vmcnt(0)")
        if XL and 40<=m<45:
            for k in (2*(m-40),2*(m-40)+1): p(f"v_lshlrev_b32 v{XF_(k)}, 16, v{XR+k}\nv_and_b32 v{XF_(k)+1}, 0xffff0000, v{XR+k}")
        if CFG['mtg']=='RL' and m==max(RM)+CFG['rld']:
            p(f"s_mov_b64 exec, 1\nv_mov_b32 v{t+4}, {F_H2}\nds_add_u32 v{t+4}, v{t+12}\ns_mov_b64 exec, -1"); LG.append('x')
        if nx is not None:
            ch=chain(nx,G[nx]); k=-(-len(ch)//2)
            if t_==1:
                for x in ch[:k]: p(x)
            if t_==2:
                for x in ch[k:]: p(x)
            if t_==3: p(cmp_)
            if t_==4:
                if nx==5: STAMP('loc')
                p(f"s_cbranch_vccnz L_og{nx}\nL_ogr{nx}:"); retry(nx,G[nx])
                STAMP('og%d'%nx)
    assert LA>=5 and 9 not in G
    for m in range(45,50):
        n=lgw(m)
        if n is not None: p(f"s_waitcnt lgkmcnt({n})")
        mf(m,1)
        if m==45:
            p(f"v_cmp_gt_u32 vcc, 4, v{t+6}\nv_mov_b32 v{t}, 0x3f803f80\ns_cbranch_vccnz L_ldw\nL_ldr:")
            def f():
                p(f"L_ldw:\nv_add_u32 v{t+7}, {F_LD-F_WO2}, v{t+7}"); lds_wait(t+7,t+6,C,'gt',4,0); p("s_branch L_ldr")
            cold(f)
    p(f"""v_mov_b32 v{t+2}, 0
    v_mov_b32 v{t+3}, 0
    v_mov_b32 v{t+4}, 0
    v_xor_b32 v{t+5}, 1024, v{aXW}""")
    for k in range(5):
        p(f"ds_write_b128 v{aXW}, {vr(ACC2+4*k,4)} offset:{2048*k}")
        mf(45+k,0)
    lp=p.lab("xw"); ok=p.lab("xok")
    STAMP('xw')
    p(f"""ds_write_b32 v{t+10}, v{t+12}
    s_mov_b32 s{C}, {SPIN*4}""")
    if XL:
        md=p.lab("xwm")
        p(f"ds_read_b32 v{t+6}, v{t+11}")
        for k in range(5): p(f"ds_read_b128 {vr(BF+4*k,4)}, v{t+5} offset:{2048*k}")
        for k in range(10): p(f"v_pk_add_f32 {vr(WACC+2*k,2)}, {vr(WACC+2*k,2)}, {vr(XF_(k),2)}")
        p(f"s_branch {md}")
    p(f"""{lp}:
    ds_read_b32 v{t+6}, v{t+11}""")
    for k in range(5): p(f"ds_read_b128 {vr(BF+4*k,4)}, v{t+5} offset:{2048*k}")
    if XL: p(f"{md}:")
    p(f"""s_waitcnt lgkmcnt(5)
    v_cmp_eq_u32 vcc, 0, v{t+6}
    s_nop 0
    s_cbranch_vccz {ok}""")
    spin(C,lp,ok)
    p(f"s_waitcnt lgkmcnt(0)\ns_branch {lp}\n{ok}:")
    for k in range(5):
        p(f"s_waitcnt lgkmcnt({4-k})")
        for j in range(2): p(f"v_pk_add_f32 {vr(WACC+4*k+2*j,2)}, {vr(WACC+4*k+2*j,2)}, {vr(BF+4*k+2*j,2)}")
def wo_gemm_old():
    t=vT; A=sT+7; B=sT+8; C=sT+17; MXS=t+8
    wo_scal(); wo_flags()
    p("s_waitcnt vmcnt(4)")
    acc_init()
    p(f"""v_mov_b32 v{t}, {F_WOR}
    v_mov_b32 v{t+1}, s{sTAG}
    s_cmp_eq_u32 s{sOSC}, 0
    s_cbranch_scc1 L_nofo
    s_mov_b64 exec, 3
    s_waitcnt vmcnt(0)
    buffer_store_dword v{t+1}, v{aFO}, {S4(sWS)}, 0 offen sc1
    s_mov_b64 exec, -1
    L_nofo:""")
    STAMP('fo')
    lds_wait(t,t+1,C,'gt',2,0)
    p(f"""ds_read_b32 v{SW}, v{t} offset:{L_SWS-F_WOR}
    L_wo:""")
    STAMP('wor')
    sROFF=[sOR,sOR+1,sPRB]
    LA=CFG['wla']; WE=CFG['wwe']
    LG=[]
    def af(m): return AF+4*(m%15)
    def aread(m):
        s_,t_=divmod(m,5)
        for rd in range(2):
            p(f"ds_read_b64_tr_b16 {vr(af(m)+2*rd,2)}, v{aAL if s_<10 else aAR} offset:{(s_%10)*5120+rd*2560+8*t_}"); LG.append(m)
    def lgw(m):
        k=[i for i,x in enumerate(LG) if x!='x' and x<=m]
        if not k: return None
        n=len(LG)-1-max(k); del LG[:max(k)+1]; return n
    def bload(s_):
        so=(sOL+(s_%10)//4) if s_<10 else sROFF[(s_%10)//4]
        return f"buffer_load_dwordx4 {vr(BF+4*s_,4)}, v{aLin}, {S4(sWS)}, s{so} offen offset:{(s_%10%4)*1024} sc1"
    for m in range(LA): aread(m)
    p(f"v_mov_b32 v{MXS}, 0\nv_mov_b32 v{t+7}, {F_WO2}")
    p(f"s_cmp_lg_u32 s{sMODE}, 0\ns_cbranch_scc1 L_plsl")
    probe(sOL,C)
    p("L_plr:")
    n0=len(p.L)
    p("L_plsl:"); flag_poll(aFR,t+4,sFLO,C); p("s_branch L_plr")
    COLD.append("\n".join(p.L[n0:])); del p.L[n0:]
    STAMP('pl')
    for s_ in range(10): p(bload(s_))
    p(f"buffer_load_dword v{t+4}, v{aFR}, {S4(sWS)}, s{sFRE} offen sc1")
    for m in range(100):
        s_,t_=divmod(m,5)
        if m==50:
            STAMP('loc')
            flag_poll(aFR,t+4,sFRE,C,first=False)
            STAMP('pr')
            for k in range(10,20): p(bload(k))
            if 'PR' in (CFG['gstart'],CFG['dstart'],CFG['dgate'],CFG['mtg']):
                p(f"""s_mov_b64 exec, 1
                v_mov_b32 v{t+4}, {F_PR}
                v_mov_b32 v{t+5}, 1
                ds_add_u32 v{t+4}, v{t+5}
                s_mov_b64 exec, -1"""); LG.append('x')
        w=[]
        if t_==0: w.append(f"vmcnt({(10-s_) if s_<10 else (19-s_)}")
        if m%WE==0:
            n=lgw(m+WE-1)
            if n is not None: w.append(f"lgkmcnt({n}")
        if w: p("s_waitcnt "+") ".join(w)+")")
        a_=vr(WACC+4*t_,4)
        p(f"v_mfma_f32_16x16x32_bf16 {a_}, {vr(af(m),4)}, {vr(BF+4*s_,4)}, {a_}")
        if m+LA==50-10: p(f"ds_read_b32 v{t+6}, v{t+7}"); LG.append('x')
        if m+LA==50:
            p(f"v_cmp_gt_u32 vcc, 2, v{t+6}\ns_nop 0\ns_cbranch_vccnz L_wo2w\nL_wo2r:")
            n0=len(p.L)
            p("L_wo2w:"); lds_wait(t+7,t+6,C,'gt',2,0); p("s_branch L_wo2r")
            COLD.append("\n".join(p.L[n0:])); del p.L[n0:]
        if m+LA<100: aread(m+LA)
        if t_==0 and s_<10: p(f"v_max3_u32 v{MXS}, v{BF+4*s_}, v{BF+4*s_+2}, v{MXS}")
    p(f"""v_cmp_eq_u32 vcc, -1, v{MXS}
    v_mov_b32 v{t}, 0x3f803f80
    v_mov_b32 v{t+2}, 0
    v_mov_b32 v{t+3}, 0
    v_mov_b32 v{t+4}, 0
    s_cbranch_vccnz L_woredo
    L_wook:""")
    COLD.append(f"L_woredo:\ns_sub_u32 s{sRETRY}, s{sRETRY}, 1\ns_cbranch_scc1 L_wook\ns_nop 7")
    q=P();
    COLD.append("\n".join(f"v_lshlrev_b32 v{WACC+2*k}, 16, v{XR+k}\nv_and_b32 v{WACC+2*k+1}, 0xffff0000, v{XR+k}" for k in range(10))+"\ns_branch L_wo")
def wo_main():
    t=vT; A=sT+7; B=sT+8; C=sT+17
    (wo_gemm2 if CFG['wsp'] else wo_gemm if CFG['osent'] else wo_gemm_old)()
    STAMP('wend')
    for k in range(10): p(f"v_cvt_pk_bf16_f32 v{HP+k}, v{WACC+2*k}, v{WACC+2*k+1}")
    for k in range(10):
        p(f"""v_dot2_f32_bf16 v{t+2}, v{HP+k}, v{t}, v{t+2}
        v_dot2_f32_bf16 v{t+4}, v{HP+k}, v{HP+k}, v{t+4}
        v_dot2_f32_bf16 v{t+3}, v{HP+k}, v{WR_+k}, v{t+3}""")
    p(f"""s_lshl_b32 s{A}, s{sJ}, 4
    s_add_u32 s{A}, s{A}, s{sPSO}""")
    red3(t+2,t+3,t+4,t+5)
    p(f"""v_mov_b32 v{t+5}, s{sTAG}
    s_mov_b64 exec, 0xffff
    s_cmp_lg_u32 s{sMODE}, 0
    s_cbranch_scc1 L_pssc
    buffer_store_dwordx4 {vr(t+2,4)}, v{aPS}, {S4(sWS)}, s{A} offen
    L_psr:""")
    if 'WE' in (CFG['gstart'],CFG['g2nd'][0],CFG['mtg']): p(f"s_mov_b64 exec, 1\nv_mov_b32 v{t+10}, {F_SCP}\nv_mov_b32 v{t+11}, 1\nds_add_u32 v{t+10}, v{t+11}")
    p("s_mov_b64 exec, -1")
    COLD.append(f"L_pssc:\nbuffer_store_dwordx4 {vr(t+2,4)}, v{aPS}, {S4(sWS)}, s{A} offen sc1\ns_branch L_psr")
    STAMP('ps')
    G=t+10
    lp=p.lab("ps"); ok=p.lab("psok"); md=p.lab("psm")
    Q=CFG['psq']
    ld=f"""buffer_load_dwordx4 {vr(G,4)}, v{aPQ if Q else aPS}, {S4(sWS)}, s{sPSO} offen sc1
    buffer_load_dwordx4 {vr(G+4,4)}, v{aPQ if Q else aPS}, {S4(sWS)}, s{sPSO} offen offset:{64 if Q else 16} sc1"""
    p(ld)
    for k in range(10): p(f"v_lshlrev_b32 v{HF_+2*k}, 16, v{HP+k}\nv_and_b32 v{HF_+2*k+1}, 0xffff0000, v{HP+k}")
    if CFG['dbg']:
        p(f"s_add_u32 s{A}, s{sXO}, {HB}")
        for o,n in ((0,4),(4,4),(8,2)): p(f"buffer_store_dwordx{n} {vr(HP+o,n)}, v{aX2}, {S4(sWS)}, s{A} offen offset:{4*o}")
    p(f"""s_lshl_b32 s{A}, s{sRT}, 4
    s_sub_u32 s{A}, 2047, s{A}
    {f"v_lshrrev_b32 v{t}, 2, v0" if Q else f"v_and_b32 v{t}, 15, v0"}
    v_sub_u32 v{t+9}, s{A}, v{t}
    v_lshlrev_b32 v{t+9}, 3, v{t+9}
    s_lshl_b32 s{A}, s{sWAVE}, 6
    s_add_u32 s{A}, s{A}, {L_KEYS}
    v_lshl_add_u32 v{aKY}, v{t}, 2, s{A}
    v_and_b32 v{t}, {3 if Q else 48}, v0
    v_lshlrev_b32 v{t}, {6 if Q else 2}, v{t}
    v_add_u32 v{t+8}, {L_KEYS}, v{t}
    {f"v_and_b32 v{t}, 15, v0" if Q else ""}
    {f"v_lshlrev_b32 v{aBP}, 4, v{t}" if Q else ""}
    s_mov_b32 s{C}, {SPIN}
    s_branch {md}
    {PG if CFG['lay'] else ""}
    {"L_padM:" if CFG['lay'] and CFG['padk'] else ""}
    {"s_branch "+KVB(0) if CFG['lay'] and CFG['padk'] else ""}
    {lp}:
    {ld}
    {md}:
    s_waitcnt vmcnt(0)
    v_cmp_ne_u32 vcc, s{sTAG}, v{G+3}
    v_cmp_ne_u32 s[{sT+14}:{sT+15}], s{sTAG}, v{G+7}
    v_pk_add_f32 {vr(t+4,2)}, {vr(G,2)}, {vr(G+4,2)}
    v_add_f32 v{t+6}, v{G+2}, v{G+6}
    s_or_b64 vcc, vcc, s[{sT+14}:{sT+15}]
    s_cbranch_scc0 {ok}""")
    spin(C,lp,ok)
    p(f"""s_branch {lp}
    {ok}:""")
    STAMP('psr'); COUNT('npsr',C,SPIN)
    if 'PS' in (CFG['g2nd'][0],CFG['gstart'],CFG['dstart'],CFG['dgate'],CFG['mtg']): p(f"""s_mov_b64 exec, 1
    v_mov_b32 v{G}, {F_PS}
    v_mov_b32 v{G+1}, 1
    ds_add_u32 v{G}, v{G+1}
    s_mov_b64 exec, -1""")
    M=t+4
    if Q:
        for qp in ("[1,0,3,2]","[2,3,0,1]"):
            for k in range(3): p(f"v_add_f32_dpp v{M+k}, v{M+k}, v{M+k} quad_perm:{qp} row_mask:0xf bank_mask:0xf")
    else: red3(M,M+1,M+2,M+3)
    p(f"""v_mul_f32 v{M}, {1/640!r}, v{M}
    v_mul_f32 v{M+2}, {1/640!r}, v{M+2}
    v_fma_f32 v{M+2}, -v{M}, v{M}, v{M+2}
    v_max_f32 v{M+2}, 0, v{M+2}""")
    bf16r(M+2,M+2)
    p(f"v_add_f32 v{M+2}, 0x3727c5ac, v{M+2}")
    bf16r(M+2,M+2)
    p(f"v_sqrt_f32 v{M+2}, v{M+2}")
    bf16r(M,M)
    bf16r(M+2,M+2)
    RS=t+2
    p(f"""v_rcp_f32 v{RS}, v{M+2}
    v_fma_f32 v{M+1}, -v{M}, v{SW}, v{M+1}
    v_mul_f32 v{M+1}, v{M+1}, v{RS}
    v_cvt_pk_bf16_f32 v{M+1}, v{M+1}, v{M+1}
    v_mul_f32 v{RS+1}, -v{M}, v{RS}
    v_ashrrev_i32 v{M+2}, 31, v{M+1}
    v_or_b32 v{M+2}, 0x80000000, v{M+2}
    v_xor_b32 v{M+1}, v{M+1}, v{M+2}
    v_and_b32 v{M+1}, 0xffff0000, v{M+1}
    v_or_b32 v{KEY}, v{M+1}, v{t+9}
    ds_write_b32 v{aKY}, v{KEY}""")
    K16=AF
    lp=p.lab("ky"); ok=p.lab("kyok"); md=p.lab("kym")
    def lfma():
        for k in range(10): p(f"v_pk_fma_f32 {vr(WACC+2*k,2)}, {vr(HF_+2*k,2)}, {vr(RS,2)}, {vr(RS,2)} op_sel:[0,0,1] op_sel_hi:[1,0,1]")
    def kread():
        for i in range(4): p(f"ds_read_b128 {vr(K16+4*i,4)}, v{t+8} offset:{16*i}")
    if Q:
        p(f"ds_bpermute_b32 v{RS}, v{aBP}, v{RS}\nds_bpermute_b32 v{RS+1}, v{aBP}, v{RS+1}")
        kread()
        p(f"s_mov_b32 s{C}, {SPIN*4}\ns_waitcnt lgkmcnt(4)")
        lfma()
        p(f"s_branch {md}\n{lp}:")
        kread()
        p(f"{md}:")
    else:
        lfma()
        p(f"s_mov_b32 s{C}, {SPIN*4}\n{lp}:")
        kread()
    p("s_waitcnt lgkmcnt(0)")
    p(f"v_max3_u32 v{t}, v{K16}, v{K16+1}, v{K16+2}")
    for i in range(3,15,2): p(f"v_max3_u32 v{t}, v{K16+i}, v{K16+i+1}, v{t}")
    p(f"""v_max_u32 v{t}, v{t}, v{K16+15}
    v_cmp_eq_u32 vcc, -1, v{t}
    v_mov_b32 v{t}, 0
    s_cbranch_vccz {ok}""")
    spin(C,lp,ok)
    p(f"s_branch {lp}\n{ok}:")
    STAMP('keys')
    m0_=sT+18
    for i in range(18):
        if i<16: p(f"v_cmp_gt_u32 s[{m0_+2*(i%2)}:{m0_+2*(i%2)+1}], v{K16+i}, v{KEY}") if False else None
    MK=[sT+14,sT+16,sT+18]
    for i in range(18):
        if i<16: m=MK[i%3]; p(f"v_cmp_gt_u32 s[{m}:{m+1}], v{K16+i}, v{KEY}")
        elif i==16: p("s_nop 0")
        if i>=2: m=MK[(i-2)%3]; p(f"v_addc_co_u32 v{t}, vcc, 0, v{t}, s[{m}:{m+1}]")
    if Q: p(f"""v_cvt_pk_bf16_f32 v{LP}, v{WACC}, v{WACC+1}
    v_cvt_pk_bf16_f32 v{LP+1}, v{WACC+2}, v{WACC+3}
    v_add_u32_dpp v{t}, v{t}, v{t} quad_perm:[1,0,3,2] row_mask:0xf bank_mask:0xf
    v_cvt_pk_bf16_f32 v{LP+2}, v{WACC+4}, v{WACC+5}
    v_cvt_pk_bf16_f32 v{LP+3}, v{WACC+6}, v{WACC+7}
    v_add_u32_dpp v{t}, v{t}, v{t} quad_perm:[2,3,0,1] row_mask:0xf bank_mask:0xf""")
    else: p(f"""v_mov_b32 v{t+1}, v{t}
    v_cvt_pk_bf16_f32 v{LP}, v{WACC}, v{WACC+1}
    v_cvt_pk_bf16_f32 v{LP+1}, v{WACC+2}, v{WACC+3}
    v_permlane32_swap_b32 v{t}, v{t+1}
    v_cvt_pk_bf16_f32 v{LP+2}, v{WACC+4}, v{WACC+5}
    v_add_u32 v{t}, v{t}, v{t+1}
    v_mov_b32 v{t+1}, v{t}
    v_cvt_pk_bf16_f32 v{LP+3}, v{WACC+6}, v{WACC+7}
    v_cvt_pk_bf16_f32 v{LP+4}, v{WACC+8}, v{WACC+9}
    v_permlane16_swap_b32 v{t}, v{t+1}
    v_cvt_pk_bf16_f32 v{LP+5}, v{WACC+10}, v{WACC+11}
    v_add_u32 v{t}, v{t}, v{t+1}""")
    p(f"""v_cmp_gt_u32 s[{sCAND}:{sCAND+1}], 8, v{t}
    v_or_b32 v{KEY}, v{KEY}, v{t}
    v_mov_b32 v{t+1}, {L_CA&~0xffff}
    v_lshl_add_u32 v{t+1}, v{t}, 3, v{t+1}
    v_mov_b32 v{KEY+1}, s{sTAG}
    s_cmp_lg_u32 s{sJ}, 0
    s_cbranch_scc1 L_noca
    {f"s_and_b32 exec_lo, s{sCAND}, 0x11111111" if Q else f"s_and_b32 exec_lo, s{sCAND}, 0xffff"}
    {f"s_and_b32 exec_hi, s{sCAND+1}, 0x11111111" if Q else "s_mov_b32 exec_hi, 0"}
    ds_write_b64 v{t+1}, {vr(KEY,2)} offset:{L_CA&0xffff}
    s_mov_b64 exec, 0xff
    s_cmp_lg_u32 s{sWAVE}, 0
    s_cbranch_scc1 {"L_cab" if CFG['jb'] else "L_noca"}
    v_lshlrev_b32 v{t+2}, 3, v0
    v_add_u32 v{t+3}, {L_CA}, v{t+2}
    s_lshl_b32 s{A}, s{sBLK}, 7
    s_add_u32 s{A}, s{A}, {CA}
    s_mov_b32 s{C}, {SPIN*4}
    L_cal:
    ds_read_b64 v[{t+4}:{t+5}], v{t+3}
    s_waitcnt lgkmcnt(0)
    v_cmp_ne_u32 vcc, s{sTAG}, v{t+5}
    s_nop 0
    s_cbranch_vccz L_caok""")
    spin(C,"L_cal","L_caok")
    p(f"""s_branch L_cal
    L_caok:
    buffer_store_dwordx2 v[{t+4}:{t+5}], v{t+2}, {S4(sWS)}, s{A} offen sc1
    {"L_cab:" if CFG['jb'] else ""}
    {"s_barrier" if CFG['jb'] else ""}
    L_noca:
    s_mov_b64 exec, -1""")
    STAMP('ca')
    if Q: p(f"ds_bpermute_b32 v{t}, v{aBP}, v{t}\nds_bpermute_b32 v{KEY}, v{aBP}, v{KEY}")
    for k in range(4 if Q else 6,10): p(f"v_cvt_pk_bf16_f32 v{LP+k}, v{WACC+2*k}, v{WACC+2*k+1}")
    p(f"""v_lshrrev_b32 v{t+1}, 4, v0
    v_mul_u32_u24 v{t+1}, 40, v{t+1}
    {"s_waitcnt lgkmcnt(0)" if Q else ""}
    {f"v_cmp_gt_u32 s[{sCAND}:{sCAND+1}], 8, v{t}" if Q else ""}
    v_mul_u32_u24 v{t}, 2560, v{t}
    v_add_u32 v{aCD}, v{t}, v{t+1}
    s_mul_i32 s{A}, s{sBLK}, 20480
    s_mul_i32 s{B}, s{sJ}, 160
    s_add_u32 s{A}, s{A}, s{B}
    s_add_u32 s{A}, s{A}, {CAND}
    s_and_b64 exec, s[{sCAND}:{sCAND+1}], -1
    s_cbranch_scc0 L_nocd""")
    for base,off in ((LP,0),(HP,1280)):
        if 'nocand' in CFG['xp'] or ('noh' in CFG['xp'] and off): continue
        for o,n in ((0,4),(4,4),(8,2)): p(f"buffer_store_dwordx{n} {vr(base+o,n)}, v{aCD}, {S4(sWS)}, s{A} offen offset:{off+4*o} sc1")
    p("L_nocd:\ns_mov_b64 exec, -1")
    if CFG['cae']:
        assert not CFG['odf'] and not CFG['xp']
        p(f"""s_lshl_b32 s{A}, s{sWAVE}, 5
        s_add_u32 s{A}, s{A}, s{sMI}
        s_cmp_ge_u32 s{A}, 17
        s_cbranch_scc1 L_nocae
        v_lshrrev_b32 v{t}, 3, v0
        v_and_b32 v{t+1}, 7, v0
        v_lshlrev_b32 v{t+1}, 3, v{t+1}
        v_lshl_add_u32 v22, v{t}, 7, v{t+1}
        s_mov_b32 s{B}, {CA}""")
        for i in range(4): p(f"buffer_load_dwordx2 {vr(12+2*i,2)}, v22, {S4(sWS)}, s{B} offen offset:{i*1024} sc1")
        p("L_nocae:")
    for k in range(10): p(f"v_pk_add_f32 {vr(WACC+2*k,2)}, {vr(WACC+2*k,2)}, {vr(HF_+2*k,2)}")
    for k in range(10): p(f"v_cvt_pk_bf16_f32 v{OP+k}, v{WACC+2*k}, v{WACC+2*k+1}")
    if CFG['odf']: p(f"s_cmp_lt_u32 s{sMI}, {CFG['odf']}\ns_cbranch_scc1 L_noo1")
    p(f"s_andn2_b64 exec, -1, s[{sCAND}:{sCAND+1}]")
    if not CFG['cae']: p("s_cbranch_scc0 L_noo1")
    if 'noout' not in CFG['xp']: out_store()
    p("L_noo1:")
    if 1: p(f"""s_mov_b64 exec, 1
    v_mov_b32 v{t+4}, {F_O1}
    v_mov_b32 v{t+5}, 1
    ds_add_u32 v{t+4}, v{t+5}
    s_mov_b64 exec, -1""")
    else: p("s_mov_b64 exec, -1")
    STAMP('o1')
KEY=228; sCAND=sT+20
def out_store():
    for o,n in ((0,4),(4,4),(8,2)): p(f"buffer_store_dwordx{n} {vr(OP+o,n)}, v{aX2}, {S4(sOUT)}, s{sXO} offen offset:{4*o} {CFG['opol']}")

def moe_weights():
    A=sT+7; B=sT+8; vt=2; D=40; aW_=12
    gu=p.lab("mwgu"); wr=p.lab("mwwr"); en=p.lab("mwend")
    FA=dict(WOD=(F_WOD,2),PR=(F_PR,4),O1=(F_O1,4),DONE=(F_DONE,ND),G2=(F_G2,2),PS=(F_PS,4),WO2=(F_WO2,2),WE=(F_SCP,4),TOP=(L_TOP,0))
    def gate(k):
        p(f"v_mov_b32 v{vt+4}, {FA[k][0]}")
        if k=='TOP': lds_wait(vt+4,vt+5,sT+5,'eq',-1,2)
        else: lds_wait(vt+4,vt+5,sT+5,'gt',FA[k][1],2)
    pl_=p.lab("mwpl")
    p(f"""s_cmp_ge_u32 s{sMI}, 17
    s_cbranch_scc1 {pl_}
    v_bfe_u32 v{vt}, v0, 3, 2
    v_lshrrev_b32 v{vt+1}, 5, v0
    v_lshlrev_b32 v{vt}, 1, v{vt}
    v_add_lshl_u32 v{vt}, v{vt}, v{vt+1}, 2
    v_bfe_u32 v{vt+1}, v0, 1, 2
    v_add_u32 v{vt}, v{vt}, v{vt+1}
    v_and_b32 v{vt+1}, 1, v0
    v_lshlrev_b32 v{vt+1}, 4, v{vt+1}
    s_cmp_lt_u32 s{sMI}, 12
    s_cbranch_scc1 {gu}
    v_mul_u32_u24 v{vt}, 1280, v{vt}
    v_add_u32 v{aW_}, v{vt}, v{vt+1}
    s_mul_i32 s{A}, s{sG}, 5
    s_add_u32 s{A}, s{A}, s{sMI}
    s_sub_u32 s{A}, s{A}, 12
    s_lshl_b32 s{A}, s{A}, 5
    s_mul_i32 s{B}, s{HW}, {12*32*1280}
    s_add_u32 s{A}, s{A}, s{B}""")
    gate(CFG['dstart'])
    STAMP('mg')
    for s_ in range(12):
        if s_>=CFG['ddep']: p(f"s_waitcnt vmcnt({CFG['ddep']-1})")
        p(f"buffer_load_dwordx4 {vr(D+4*s_,4)}, v{aW_}, {S4(sWD)}, s{A} offen {CFG['mpol']}")
        if s_<11: p(f"s_add_u32 s{A}, s{A}, {32*1280}")
    p(f"""s_mul_i32 s{B}, s{HW}, 12288
    s_branch {wr}
    {pl_}:""")
    for g_,h_ in CFG['wb']:
        sk=p.lab("nowb")
        p(f"s_lshl_b32 s{A}, s{sSLOT}, 2\ns_add_u32 s{A}, s{A}, s{HW}\ns_cmp_lg_u32 s{A}, {4*CFG['wbs']+h_}\ns_cbranch_scc1 {sk}")
        if g_!='no': gate(g_)
        p(f"buffer_wbl2 sc1\ns_waitcnt vmcnt(0)\n{sk}:")
    if CFG['dgate']!='no' and not CFG['dw3']:
        if CFG['dtn']: p(f"s_cmp_ge_u32 s{sMI}, 28\ns_cbranch_scc1 {en}")
        gate(CFG['dgate'])
        touch(vTD,sWD,CFG['mpair'])
        if CFG['dtn']: p("s_mov_b64 exec, 63"); touch(vTD2,sWD,0); p("s_mov_b64 exec, -1")
        STAMP('mg')
        if CFG['prof']: p("s_waitcnt vmcnt(0)"); STAMP('mw')
    p(f"""s_branch {en}
    {gu}:
    v_mul_u32_u24 v{vt}, 3072, v{vt}
    v_add_u32 v{aW_}, v{vt}, v{vt+1}
    s_mul_i32 s{A}, s{sG}, 12
    s_add_u32 s{A}, s{A}, s{sMI}
    s_lshl_b32 s{A}, s{A}, 5
    s_mul_i32 s{B}, s{HW}, {5*32*3072}
    s_add_u32 s{A}, s{A}, s{B}""")
    gate(CFG['gstart'])
    STAMP('mg')
    for s_ in range(5):
        for m_ in range(2):
            if 2*s_+m_==CFG['g2nd'][1]: gate(CFG['g2nd'][0]); STAMP('mg2')
            if 2*s_+m_>=CFG['mdep']: p(f"s_waitcnt vmcnt({CFG['mdep']-1})")
            p(f"buffer_load_dwordx4 {vr(D+8*s_+4*m_,4)}, v{aW_}, {S4((sWG,sWU)[m_])}, s{A} offen {CFG['mpol']}")
        if s_<4: p(f"s_add_u32 s{A}, s{A}, {32*3072}")
    p(f"s_mul_i32 s{B}, s{HW}, 12288\n{wr}:\nv_lshl_add_u32 v{vt}, v0, 4, s{B}")
    gate('DONE')
    p("s_waitcnt vmcnt(0)")
    for s_ in range(12): p(f"ds_write_b128 v{vt}, {vr(D+4*s_,4)} offset:{L_MW+s_*1024}")
    p(f"""s_lshl_b32 s{A}, s{HW}, 2
    s_add_u32 s{A}, s{A}, {F_MW}
    v_mov_b32 v{vt}, s{A}
    ds_write_b32 v{vt}, v{vt}
    s_waitcnt lgkmcnt(0)""")
    STAMP('mw')
    if CFG['htop']:
        p(f"""s_lshl_b32 s{A}, s{HW}, 5
        s_add_u32 s{A}, s{A}, s{sMI}
        s_cmp_lt_u32 s{A}, 12
        s_cbranch_scc1 L_htop""")
        n0=len(p.L)
        t=2; R=12; K2=20; K1=21; aC=22; C=sT+5
        ld="\n".join(f"buffer_load_dwordx2 {vr(R+2*i,2)}, v{aC}, {S4(sWS)}, s{B} offen offset:{i*1024} sc1" for i in range(4))
        lp=p.lab("hca"); ok=p.lab("hcaok")
        p(f"""L_htop:
        v_lshrrev_b32 v{t}, 3, v0
        v_and_b32 v{t+1}, 7, v0
        v_lshlrev_b32 v{t+2}, 3, v{t+1}
        v_lshl_add_u32 v{aC}, v{t}, 7, v{t+2}
        s_mov_b32 s{B}, {CA}
        v_bfe_i32 v{K2}, v0, 1, 1
        v_bfe_i32 v{K1}, v0, 0, 1
        v_not_b32 v{K2}, v{K2}
        v_not_b32 v{K1}, v{K1}
        v_lshlrev_b32 v{t+1}, 2, v{t+1}
        v_add_u32 v{aC+1}, {L_TOP}, v{t+1}
        s_mov_b32 s{C}, {SPIN}
        {lp}:
        {ld}
        s_waitcnt vmcnt(0)
        v_xor_b32 v{t}, v{R+1}, v{R+3}
        v_xor_b32 v{t+1}, v{R+5}, v{R+7}
        v_xor_b32 v{R+1}, s{sTAG}, v{R+1}
        v_xor_b32 v{R+5}, s{sTAG}, v{R+5}
        v_or3_b32 v{t}, v{t}, v{t+1}, v{R+1}
        v_or_b32 v{t}, v{t}, v{R+5}
        v_cmp_ne_u32 vcc, 0, v{t}
        s_nop 0
        s_cbranch_vccz {ok}""")
        spin(C,lp,ok,CFG['casl'])
        p(f"s_branch {lp}\n{ok}:")
        STAMP('car'); COUNT('ncar',C,SPIN)
        top8(R,K2,K1,t,t+2)
        p(f"ds_write_b32 v{aC+1}, v{R}")
        STAMP('htp')
        END()
        COLD.append("\n".join(p.L[n0:])); del p.L[n0:]
    p(f"{en}:")
def top8(R,K2,K1,y,tt):
    def clean(chs):
        seq=[]
        for (x,y_,t_) in chs:
            seq.append([f"v_max_u32_dpp v{y_}, v{x}, v{x} row_shl:4 row_mask:0xf bank_mask:0x5",
                        f"v_min_u32_dpp v{y_}, v{x}, v{x} row_shr:4 row_mask:0xf bank_mask:0xa",
                        None,
                        f"v_mov_b32_dpp v{t_}, v{y_} quad_perm:[2,3,0,1] row_mask:0xf bank_mask:0xf",
                        f"v_med3_u32 v{y_}, v{y_}, v{t_}, v{K2}",
                        None,
                        f"v_mov_b32_dpp v{t_}, v{y_} quad_perm:[1,0,3,2] row_mask:0xf bank_mask:0xf",
                        f"v_med3_u32 v{x}, v{y_}, v{t_}, v{K1}"])
        n=len(chs)
        p(f"s_nop {2-n}")
        for i in range(8):
            if seq[0][i] is None: p(f"s_nop {2-n}")
            else:
                for c in seq: p(c[i])
                if i==0 and n==1: p("s_nop 1")
                elif i==0: p("s_nop 0")
    dp="row_mask:0xf bank_mask:0xf"
    p(f"v_max_u32_dpp v{R}, v{R+2}, v{R} row_half_mirror {dp}\nv_max_u32_dpp v{R+4}, v{R+6}, v{R+4} row_half_mirror {dp}")
    clean([(R,y,tt),(R+4,y+1,tt+1)])
    p(f"s_nop 1\nv_max_u32_dpp v{R}, v{R+4}, v{R} row_half_mirror {dp}")
    clean([(R,y,tt)])
    p(f"s_nop 1\nv_max_u32_dpp v{R}, v{R}, v{R} row_mirror {dp}")
    clean([(R,y,tt)])
    for msk,sw in ((0xa,16),(0xc,32)):
        p(f"""s_nop 1
        v_mov_b32_dpp v{R}, v{R} row_half_mirror row_mask:{hex(msk)} bank_mask:0xf
        v_mov_b32 v{tt}, v{R}
        s_nop 1
        v_permlane{sw}_swap_b32 v{R}, v{tt}
        s_nop 0
        v_max_u32 v{R}, v{R}, v{tt}""")
        clean([(R,y,tt)])
def moe():
    t=vT; A=sT+7; B=sT+8; C=sT+17; sTHR=sT+14; sKQ=sT+3
    R=12; K2=20; K1=21; aC=22; AW=108
    BL=160
    p(f"""s_cmp_ge_u32 s{sMI}, 17
    s_cbranch_scc1 L_plain""")
    if not CFG['cae']: p(f"""v_lshrrev_b32 v{t}, 3, v0
    v_and_b32 v{t+1}, 7, v0
    v_lshlrev_b32 v{t+1}, 3, v{t+1}
    v_lshl_add_u32 v{aC}, v{t}, 7, v{t+1}""")
    p(f"s_mov_b32 s{B}, {CA}")
    ld="\n".join(f"buffer_load_dwordx2 {vr(R+2*i,2)}, v{aC}, {S4(sWS)}, s{B} offen offset:{i*1024} sc1" for i in range(4))
    aMF=4; aMW=5
    def getw():
        lds_wait(AW-aMF,t+10 if False else AW,C,'eq',0,0)
        STAMP('mwr')
        for s_ in range(12):
            for rd in range(2): p(f"ds_read_b64_tr_b16 {vr(AW+4*s_+2*rd,2)}, v{AW-aMW} offset:{L_MW+s_*1024+rd*512}")
    if not CFG['cae'] and not CFG['htop']: p(f"""s_cmp_lg_u32 s{sWAVE}, 0
    s_cbranch_scc1 L_nocal
    {ld}""")
    p(f"""L_nocal:
    v_bfe_i32 v{K2}, v0, 1, 1
    v_bfe_i32 v{K1}, v0, 0, 1
    v_not_b32 v{K2}, v{K2}
    v_not_b32 v{K1}, v{K1}
    s_add_u32 s{sKQ}, s{sWAVE}, {CFG['kqr']}
    s_and_b32 s{sKQ}, s{sKQ}, 3
    s_lshl_b32 s{A}, s{sKQ}, 2
    s_add_u32 s{A}, s{A}, {F_MW}
    v_mov_b32 v{AW-aMF}, s{A}
    s_mul_i32 s{A}, s{sKQ}, 12288
    v_lshl_add_u32 v{AW-aMW}, v0, 3, s{A}
    v_and_b32 v{t}, 7, v0
    v_lshlrev_b32 v{t}, 2, v{t}
    v_add_u32 v{AW-6}, {L_TOP}, v{t}
    {f"v_add_u32 v{AW-9}, {L_TOP}, v{t}" if CFG['ldma'] else ""}
    s_cmp_ge_u32 s{sMI}, 12
    s_cbranch_scc1 L_now""")
    if CFG['ldma']:
        p(f"""v_lshrrev_b32 v{t}, 3, v0
        v_lshlrev_b32 v{t}, 2, v{t}
        v_add_u32 v{AW-9}, {L_TOP}, v{t}
        v_and_b32 v{AW-7}, 7, v0
        v_lshrrev_b32 v{t}, 4, v0
        v_lshlrev_b32 v{t}, 4, v{t}
        v_lshl_add_u32 v{t}, v{AW-7}, 7, v{t}
        s_mul_i32 s{A}, s{sWAVE}, 3072
        s_add_u32 s{A}, s{A}, {L_RED+8192}
        v_add_u32 v{AW-8}, s{A}, v{t}
        v_lshlrev_b32 v{AW-7}, 4, v{AW-7}
        s_mov_b32 m0, s{A}""")
    getw()
    if CFG['htop']: p("s_branch L_topw2")
    lp=p.lab("ca"); ok=p.lab("caok"); md=p.lab("cam")
    p(f"""L_now:
    s_cmp_lg_u32 s{sWAVE}, 0
    s_cbranch_scc1 L_topw
    s_mov_b32 s{C}, {SPIN}
    {"s_waitcnt vmcnt(3)" if CFG['cae'] else ""}
    {"" if CFG['htop'] else f"s_branch {md}"}
    {lp}:
    {ld}
    {"s_waitcnt vmcnt(0)" if CFG['cae'] else ""}
    {md}:
    {"" if CFG['cae'] else "s_waitcnt vmcnt(0)"}
    v_xor_b32 v{t}, v{R+1}, v{R+3}
    v_xor_b32 v{t+1}, v{R+5}, v{R+7}
    v_xor_b32 v{R+1}, s{sTAG}, v{R+1}
    v_xor_b32 v{R+5}, s{sTAG}, v{R+5}
    v_or3_b32 v{t}, v{t}, v{t+1}, v{R+1}
    v_or_b32 v{t}, v{t}, v{R+5}
    v_cmp_ne_u32 vcc, 0, v{t}
    s_nop 0
    s_cbranch_vccz {ok}""")
    spin(C,lp,ok,CFG['casl'])
    if CFG['dasl']: p(f"s_cmp_lt_u32 s{sMI}, 12\ns_cbranch_scc1 {lp}\ns_sleep {CFG['dasl']}")
    p(f"s_branch {lp}\n{ok}:")
    STAMP('car'); COUNT('ncar',C,SPIN)
    top8(R,K2,K1,t,t+2)
    p(f"ds_write_b32 v{AW-6}, v{R}")
    if CFG['htop']: assert CFG['ldma']; p(f"s_branch L_top\nL_topw:\ns_waitcnt vmcnt(0)\nL_topw2:")
    elif CFG['ldma']: p(f"s_cmp_ge_u32 s{sMI}, 12\ns_cbranch_scc1 L_top\nL_topw:\ns_waitcnt vmcnt(0)")
    else: p(f"s_branch L_top\nL_topw:\ns_waitcnt vmcnt(0)")
    lds_wait(AW-9 if CFG['ldma'] else AW-6,R,C,'eq',-1,0)
    TOK=t+1; aR=t+2
    def deferred(tag):
        allrows=CFG['odf']>=(12 if tag[0]=='g' else 17 if tag=='d' else 99)
        p(f"""v_cmp_gt_u32 vcc, s{sTHR}, v{KEY}
        s_nop 0
        {'s_orn2_b64' if allrows else 's_and_b64'} exec, vcc, s[{sCAND}:{sCAND+1}]
        s_cbranch_scc0 L_nd{tag}""")
        out_store()
        p(f"L_nd{tag}:\ns_mov_b64 exec, -1")
    XM="s_mov_b32 exec_lo, 0x00ff00ff\ns_mov_b32 exec_hi, 0x00ff00ff" if CFG['xm'] else "s_mov_b64 exec, -1"
    if CFG['ldma']:
        lp=p.lab("gl"); ok=p.lab("glok")
        p(f"""s_cmp_ge_u32 s{sMI}, 12
        s_cbranch_scc1 L_top""")
        STAMP('top')
        p(f"""v_bfe_u32 v{TOK}, v{R}, 9, 5
        v_and_b32 v{aR}, 7, v{R}
        v_xor_b32 v{TOK}, 31, v{TOK}
        s_mul_i32 s{A}, s{sKQ}, 320
        v_lshl_add_u32 v{aR}, v{TOK}, 3, v{aR}
        s_add_u32 s{A}, s{A}, {CAND}
        v_mov_b32 v{t}, 2560
        s_sub_u32 s{B}, s{A}, 896
        v_mad_u32_u24 v{aR}, v{aR}, v{t}, v{AW-7}
        s_sub_u32 s{sT+4}, s{A}, 1792
        s_mov_b32 s{C}, {SPIN}
        {lp}:
        s_mov_b64 exec, -1
        buffer_load_dwordx4 v{aR}, {S4(sWS)}, s{A} offen sc1 lds
        buffer_load_dwordx4 v{aR}, {S4(sWS)}, s{B} offen offset:1024 sc1 lds
        s_mov_b32 exec_lo, 0x0f0f0f0f
        s_mov_b32 exec_hi, 0x0f0f0f0f
        buffer_load_dwordx4 v{aR}, {S4(sWS)}, s{sT+4} offen offset:2048 sc1 lds
        s_mov_b64 exec, -1
        v_readlane_b32 s{sTHR}, v{R}, 56
        s_lshl_b32 s{sT+5}, s{sWAVE}, 11
        s_add_u32 s{sT+5}, s{sT+5}, {L_RED}
        v_lshl_add_u32 v{t+3}, v0, 4, s{sT+5}
        s_mov_b32 exec_lo, 0x00ff00ff
        s_mov_b32 exec_hi, 0x00ff00ff""")
        for i in range(5):
            if i%2==0: p(f"s_waitcnt vmcnt({2-i//2})")
            p(f"ds_read_b128 {vr(BL+4*i,4)}, v{AW-8} offset:{(i>>1)*1024+(i&1)*64}")
        if CFG['asp']:
            G=20; U=24
            p("s_mov_b64 exec, -1")
            for s_ in range(5):
                p(f"s_waitcnt lgkmcnt({4-s_})")
                for m_,a_ in ((0,G),(1,U)):
                    p(f"v_mfma_f32_16x16x32_bf16 {vr(a_,4)}, {vr(AW+8*s_+4*m_,4)}, {vr(BL+4*s_,4)}, {vr(a_,4) if s_ else 0}")
                    if m_==0: p(f"v_max3_u32 v{t+4}, v{BL+4*s_}, v{BL+4*s_+2}, {'v%d'%(t+4) if s_ else 0}")
            p(f"""v_cmp_eq_u32 vcc, -1, v{t+4}
            s_nop 0
            s_and_b32 vcc_lo, vcc_lo, 0x00ff00ff
            s_and_b32 vcc_hi, vcc_hi, 0x00ff00ff
            s_or_b32 s{sT+5}, vcc_lo, vcc_hi
            s_cbranch_scc0 L_glok""")
        else: p(f"""s_waitcnt lgkmcnt(2)
        v_max3_u32 v{t+4}, v{BL}, v{BL+2}, v{BL+4}
        v_max3_u32 v{t+5}, v{BL+6}, v{BL+8}, v{BL+10}
        s_waitcnt lgkmcnt(0)
        v_max3_u32 v{t+4}, v{BL+12}, v{BL+14}, v{t+4}
        v_max3_u32 v{t+5}, v{BL+16}, v{BL+18}, v{t+5}
        v_max_u32 v{t+4}, v{t+4}, v{t+5}
        v_cmp_eq_u32 vcc, -1, v{t+4}
        s_nop 0
        s_cbranch_vccz L_glok""")
        spin(C,lp,"L_glok")
        p(f"s_branch {lp}")
    p("L_top:")
    STAMP('top')
    p(f"""v_bfe_u32 v{TOK}, v{R}, 3, 11
    v_sub_u32 v{TOK}, 2047, v{TOK}
    v_lshrrev_b32 v{t}, 6, v{TOK}
    v_and_b32 v{aR}, 7, v{R}
    v_lshl_add_u32 v{aR}, v{t}, 3, v{aR}
    v_mul_u32_u24 v{aR}, 2560, v{aR}
    v_lshrrev_b32 v{t}, 4, v0
    v_readlane_b32 s{sTHR}, v{R}, 7
    {"" if CFG['ldma'] else f"s_cmp_ge_u32 s{sMI}, 12"}
    {"s_branch" if CFG['ldma'] else "s_cbranch_scc1"} L_down""")
    if not CFG['ldma']: l_old(t,A,B,C,BL,aR,sKQ,sTHR,XM)
    else: p("L_glok:")
    STAMP('lr'); COUNT('nlr',C,SPIN)
    SP=CFG['asp'] and CFG['ldma']
    if CFG['xm'] and not SP: p("s_mov_b64 exec, -1")
    G=20; U=24; X=28
    for s_ in range(0 if SP else 5):
        for m_,a_ in ((0,G),(1,U)):
            p(f"v_mfma_f32_16x16x32_bf16 {vr(a_,4)}, {vr(AW+8*s_+4*m_,4)}, {vr(BL+4*s_,4)}, {vr(a_,4) if s_ else 0}")
    w0=p.lab("guw0")
    def hint(sa,va,wv=None):
        sk=p.lab("nohint")
        if wv is not None: p(f"s_cmp_lg_u32 s{sWAVE}, {wv}\ns_cbranch_scc1 {sk}")
        p(f"""s_lshl_b32 s{sa}, s{sG}, 5
        s_add_u32 s{sa}, s{sa}, s{sMI}
        s_lshl_b32 s{sa}, s{sa}, 2
        s_add_u32 s{sa}, s{sa}, {AH}
        v_mov_b32 v{va}, 0
        v_mov_b32 v{va+1}, s{sTAG}
        s_mov_b64 exec, 1""")
        dual([f"buffer_store_dword v{va+1}, v{va}, {S4(sWS)}, s{sa} offen"])
        p(f"s_mov_b64 exec, -1\n{sk}:")
    p(f"""s_cmp_eq_u32 s{sWAVE}, 0
    s_cbranch_scc1 {w0}
    {"" if SP else "s_nop 5"}
    ds_write_b128 v{t+3}, {vr(G,4)}
    ds_write_b128 v{t+3}, {vr(U,4)} offset:1024""")
    if CFG['ahp']==4: hint(B,60,2)
    p("s_waitcnt lgkmcnt(0)\ns_barrier")
    if CFG['ahp']==3: hint(B,60,2)
    if CFG['ldma']:
        nt=p.lab("noth")
        p(f"""s_xor_b32 s{B}, s{sWAVE}, 1
        s_or_b32 s{B}, s{sMI}, s{B}
        s_cbranch_scc1 {nt}
        v_mov_b32 v{t+4}, s{sTHR}
        v_mov_b32 v{t+5}, s{sTAG}
        s_lshl_b32 s{B}, s{sG}, 7
        s_add_u32 s{B}, s{B}, {TH}
        v_mov_b32 v{t+6}, 0
        s_mov_b64 exec, 1
        buffer_store_dwordx2 v[{t+4}:{t+5}], v{t+6}, {S4(sWS)}, s{B} offen sc1
        s_mov_b64 exec, -1
        {nt}:""")
    if CFG['ob2']: p("s_barrier")
    deferred('g1')
    END()
    p(f"""{w0}:
    s_mul_i32 s{A}, s{sG}, 12
    s_add_u32 s{A}, s{A}, s{sMI}
    s_lshl_b32 s{A}, s{A}, 8
    s_add_u32 s{A}, s{A}, {ACT}
    v_and_b32 v{t+4}, 7, v0
    v_lshlrev_b32 v{t+4}, 4, v{t+4}
    v_lshrrev_b32 v{t+5}, 5, v0
    v_lshl_add_u32 v{t+4}, v{t+5}, 7, v{t+4}
    v_bfe_u32 v{t+5}, v0, 4, 1
    v_lshl_add_u32 v{t+4}, v{t+5}, 3, v{t+4}
    s_barrier""")
    STAMP('gb')
    for w_ in range(1,4):
        for m_ in range(2): p(f"ds_read_b128 {vr(X+8*(w_-1)+4*m_,4)}, v{t+3} offset:{w_*2048+m_*1024}")
    p(f"s_mov_b32 s{B}, {hex(f2u(-math.log2(math.e)))}")
    for w_ in range(3):
        p(f"s_waitcnt lgkmcnt({4-2*w_})")
        for k in range(4): p(f"v_pk_add_f32 {vr(G+2*k,2)}, {vr(G+2*k,2)}, {vr(X+8*w_+2*k,2)}")
    p(f"""v_cvt_pk_bf16_f32 v{X}, v{G}, v{G+1}
    v_cvt_pk_bf16_f32 v{X+1}, v{G+2}, v{G+3}
    v_cvt_pk_bf16_f32 v{X+2}, v{U}, v{U+1}
    v_cvt_pk_bf16_f32 v{X+3}, v{U+2}, v{U+3}""")
    for k in range(4): p(f"v_lshlrev_b32 v{G+2*k}, 16, v{X+k}\nv_and_b32 v{G+2*k+1}, 0xffff0000, v{X+k}")
    for k in range(4): p(f"v_mul_f32 v{X+k}, s{B}, v{G+k}")
    for k in range(4): p(f"v_exp_f32 v{X+k}, v{X+k}")
    if CFG['ahp']==2: hint(B,60)
    for k in range(4): p(f"v_add_f32 v{X+k}, 1.0, v{X+k}")
    for k in range(4): p(f"v_rcp_f32 v{X+k}, v{X+k}")
    for k in range(4): p(f"v_mul_f32 v{G+k}, v{G+k}, v{X+k}")
    if CFG['ahp']==1: hint(B,60)
    p(f"v_cvt_pk_bf16_f32 v{X}, v{G}, v{G+1}\nv_cvt_pk_bf16_f32 v{X+1}, v{G+2}, v{G+3}")
    for k in range(2): p(f"v_lshlrev_b32 v{G+2*k}, 16, v{X+k}\nv_and_b32 v{G+2*k+1}, 0xffff0000, v{X+k}")
    p(f"""v_pk_mul_f32 {vr(G,2)}, {vr(G,2)}, {vr(U,2)}
    v_pk_mul_f32 {vr(G+2,2)}, {vr(G+2,2)}, {vr(U+2,2)}
    v_cvt_pk_bf16_f32 v{X}, v{G}, v{G+1}
    v_cvt_pk_bf16_f32 v{X+1}, v{G+2}, v{G+3}
    s_mov_b32 exec_lo, 0x00ff00ff
    s_mov_b32 exec_hi, 0x00ff00ff
    buffer_store_dwordx2 {vr(X,2)}, v{t+4}, {S4(sWS)}, s{A} offen sc1""")
    if CFG['ahint'] and CFG['ahp']==0:
        p(f"""s_lshl_b32 s{A}, s{sG}, 5
        s_add_u32 s{A}, s{A}, s{sMI}
        s_lshl_b32 s{A}, s{A}, 2
        s_add_u32 s{A}, s{A}, {AH}
        v_mov_b32 v{t+4}, 0
        v_mov_b32 v{t+5}, s{sTAG}
        s_mov_b64 exec, 1""")
        dual([f"buffer_store_dword v{t+5}, v{t+4}, {S4(sWS)}, s{A} offen"])
    p("s_mov_b64 exec, -1")
    STAMP('act')
    if CFG['ob2']: p("s_barrier")
    deferred('g0')
    END()
    HL=20; Y=24; X=28; SG=t+8; aO2=t+9
    p(f"""L_down:
    v_lshl_add_u32 v{aR}, v{t}, 3, v{aR}
    v_mul_u32_u24 v{aO2}, 1280, v{TOK}
    v_lshl_add_u32 v{aO2}, v{t}, 3, v{aO2}
    v_and_b32 v{t+4}, 7, v0
    v_lshlrev_b32 v{t+4}, 4, v{t+4}
    v_lshl_add_u32 v{t+4}, v{t}, 7, v{t+4}
    {f"v_bfe_u32 v{t+5}, v0, 3, 1" if CFG['a2'] else ""}
    {f"v_lshl_add_u32 v{t+4}, v{t+5}, 9, v{t+4}" if CFG['a2'] else ""}
    s_mul_i32 s{sT+1}, s{sG}, 5
    s_add_u32 s{sT+1}, s{sT+1}, s{sMI}
    s_sub_u32 s{sT+1}, s{sT+1}, 12
    s_lshl_b32 s{sT+1}, s{sT+1}, 5
    s_add_u32 s{sT+2}, s{sT+1}, {CAND}
    s_mul_i32 s{A}, s{sKQ}, 6144
    s_add_u32 s{A}, s{A}, {ACT}
    s_add_u32 s{B}, s{A}, 4096""")
    ldh=f"buffer_load_dwordx2 {vr(HL,2)}, v{aR}, {S4(sWS)}, s{sT+2} offen sc1\nbuffer_load_dwordx2 {vr(HL+2,2)}, v{aR}, {S4(sWS)}, s{sT+2} offen offset:1280 sc1"
    if CFG['hll']: p(f"s_cmp_lg_u32 s{sWAVE}, 0\ns_cbranch_scc1 L_nohl\n{XM}\n{ldh}\ns_mov_b64 exec, -1\nL_nohl:")
    else: p(ldh)
    deferred('d')
    p(f"""v_ashrrev_i32 v{SG}, 31, v{R}
    v_not_b32 v{SG}, v{SG}
    v_or_b32 v{SG}, 0x80000000, v{SG}
    v_xor_b32 v{SG}, v{SG}, v{R}
    v_and_b32 v{SG}, 0xffff0000, v{SG}
    v_mul_f32 v{SG}, {hex(f2u(-math.log2(math.e)))}, v{SG}
    v_exp_f32 v{SG}, v{SG}
    s_lshl_b32 s{C}, s{sWAVE}, 10
    v_add_f32 v{SG}, 1.0, v{SG}
    v_rcp_f32 v{SG}, v{SG}
    s_add_u32 s{C}, s{C}, {L_RED}
    v_lshl_add_u32 v{t+3}, v0, 4, s{C}""")
    bf16r(SG,SG)
    lp=p.lab("hl"); ok=p.lab("hlok"); md=p.lab("hlm")
    if not CFG['hll']: p(f"""s_mov_b32 s{C}, {SPIN}
    s_branch {md}
    {lp}:
    {ldh}
    {md}:
    s_waitcnt vmcnt(0)
    v_max_u32 v{t+5}, v{HL}, v{HL+2}
    v_cmp_eq_u32 vcc, -1, v{t+5}
    s_nop 0
    {'s_branch' if CFG['xp'] else 's_cbranch_vccz'} {ok}""")
    if not CFG['hll']:
        spin(C,lp,ok)
        p(f"s_branch {lp}\n{ok}:")
    getw()
    ld="\n".join([f"buffer_load_dwordx4 {vr(BL+4*i,4)}, v{t+4}, {S4(sWS)}, s{A if i<8 else B} offen offset:{(i%8)*512} sc1" for i in range(12)])
    if CFG['ahint']:
        p(f"""v_min_u32 v{t+6}, {CFG['ahint']-1}, v0
        v_lshlrev_b32 v{t+6}, 2, v{t+6}
        s_lshl_b32 s{sT+4}, s{sG}, 7
        s_add_u32 s{sT+4}, s{sT+4}, {AH}""")
        flag_poll(t+6,t+5,sT+4,C)
        STAMP('ah')
    lp=p.lab("al"); ok=p.lab("alok")
    if CFG['a2']:
        Y2=BL+24
        ld="\n".join([f"buffer_load_dwordx4 {vr(BL+4*i,4)}, v{t+4}, {S4(sWS)}, s{A if i<4 else B} offen offset:{(i%4)*1024} sc1" for i in range(6)])
        if CFG['asp']:
            p(f"s_mov_b32 s{C}, {SPIN}\n{lp}:\n{ld}\ns_waitcnt lgkmcnt(0)")
            for i in range(6):
                p(f"s_waitcnt vmcnt({5-i})")
                for s_ in (2*i,2*i+1):
                    y=(Y,Y2)[s_&1]
                    p(f"v_mfma_f32_16x16x32_bf16 {vr(y,4)}, {vr(AW+4*s_,4)}, {vr(BL+4*(s_>>1),4)}, {vr(y,4) if s_>1 else 0}")
                    if s_&1==0: p(f"v_max3_u32 v{t+5}, v{BL+4*i}, v{BL+4*i+2}, {'v%d'%(t+5) if i else 0}")
            p(f"""v_cmp_eq_u32 vcc, -1, v{t+5}
            s_nop 0
            s_cbranch_vccz {ok}""")
            spin(C,lp,ok,CFG['acsl'])
            p(f"s_branch {lp}\n{ok}:")
            STAMP('ar'); COUNT('nar',C,SPIN)
            p("s_nop 4")
        else: p(f"""s_mov_b32 s{C}, {SPIN}
        {lp}:
        {ld}
        s_waitcnt vmcnt(3)
        v_max3_u32 v{t+5}, v{BL}, v{BL+2}, v{BL+4}
        v_max3_u32 v{t+6}, v{BL+6}, v{BL+8}, v{BL+10}
        s_waitcnt vmcnt(0)
        v_max3_u32 v{t+5}, v{BL+12}, v{BL+14}, v{t+5}
        v_max3_u32 v{t+6}, v{BL+16}, v{BL+18}, v{t+6}
        v_max3_u32 v{t+5}, v{BL+20}, v{BL+22}, v{t+5}
        v_max_u32 v{t+5}, v{t+5}, v{t+6}
        v_cmp_eq_u32 vcc, -1, v{t+5}
        s_waitcnt lgkmcnt(0)
        s_cbranch_vccz {ok}""")
        if not CFG['asp']:
            spin(C,lp,ok,CFG['acsl'])
            p(f"s_branch {lp}\n{ok}:")
            STAMP('ar'); COUNT('nar',C,SPIN)
            for s_ in range(12):
                y=(Y,Y2)[s_&1]
                p(f"v_mfma_f32_16x16x32_bf16 {vr(y,4)}, {vr(AW+4*s_,4)}, {vr(BL+4*(s_>>1),4)}, {vr(y,4) if s_>1 else 0}")
            p("s_nop 7")
        for k in range(4): p(f"v_add_f32_dpp v{Y+k}, v{Y2+k}, v{Y+k} row_ror:8 row_mask:0xf bank_mask:0xf")
    else: act_old(t,A,B,C,BL,AW,Y,XM,ld,lp,ok)
    w0=p.lab("dnw0")
    p(f"""s_cmp_eq_u32 s{sWAVE}, 0
    s_cbranch_scc1 {w0}
    {"" if CFG['a2'] else "s_nop 5"}
    ds_write_b128 v{t+3}, {vr(Y,4)}
    s_waitcnt lgkmcnt(0)
    s_barrier""")
    END()
    p(f"{w0}:")
    if CFG['hll']:
        p(f"""{XM}
        v_max_u32 v{t+5}, v{HL}, v{HL+2}
        v_cmp_eq_u32 vcc, -1, v{t+5}
        s_mov_b32 s{C}, {SPIN}
        s_cbranch_vccnz L_hlw
        L_hlr:
        s_mov_b64 exec, -1""")
        COLD.append(f"""L_hlw:
        s_sub_u32 s{C}, s{C}, 1
        s_cbranch_scc1 L_hlr
        {ldh}
        s_waitcnt vmcnt(0)
        v_max_u32 v{t+5}, v{HL}, v{HL+2}
        v_cmp_eq_u32 vcc, -1, v{t+5}
        s_nop 0
        s_cbranch_vccnz L_hlw
        s_branch L_hlr""")
    p(f"""v_lshlrev_b32 v{X+12}, 16, v{HL}
    v_and_b32 v{X+13}, 0xffff0000, v{HL}
    v_lshlrev_b32 v{X+14}, 16, v{HL+1}
    v_and_b32 v{X+15}, 0xffff0000, v{HL+1}
    v_lshlrev_b32 v{X+16}, 16, v{HL+2}
    v_and_b32 v{X+17}, 0xffff0000, v{HL+2}
    v_lshlrev_b32 v{X+18}, 16, v{HL+3}
    v_and_b32 v{X+19}, 0xffff0000, v{HL+3}
    s_barrier""")
    STAMP('db')
    for w_ in range(1,4): p(f"ds_read_b128 {vr(X+4*(w_-1),4)}, v{t+3} offset:{w_*1024}")
    for w_ in range(3):
        p(f"s_waitcnt lgkmcnt({2-w_})")
        for k in range(2): p(f"v_pk_add_f32 {vr(Y+2*k,2)}, {vr(Y+2*k,2)}, {vr(X+4*w_+2*k,2)}")
    def rnd():
        p(f"v_cvt_pk_bf16_f32 v{X}, v{Y}, v{Y+1}\nv_cvt_pk_bf16_f32 v{X+1}, v{Y+2}, v{Y+3}")
    def unp():
        for k in range(2): p(f"v_lshlrev_b32 v{Y+2*k}, 16, v{X+k}\nv_and_b32 v{Y+2*k+1}, 0xffff0000, v{X+k}")
    rnd(); unp()
    for k in range(4): p(f"v_mul_f32 v{Y+k}, v{SG}, v{Y+k}")
    rnd(); unp()
    for k in range(2): p(f"v_pk_add_f32 {vr(Y+2*k,2)}, {vr(Y+2*k,2)}, {vr(X+12+2*k,2)}")
    rnd(); unp()
    for k in range(2): p(f"v_pk_add_f32 {vr(Y+2*k,2)}, {vr(Y+2*k,2)}, {vr(X+16+2*k,2)}")
    rnd()
    p(f"""s_mov_b32 exec_lo, 0x00ff00ff
    s_mov_b32 exec_hi, 0x00ff00ff
    buffer_store_dwordx2 {vr(X,2)}, v{aO2}, {S4(sOUT)}, s{sT+1} offen {CFG['fpol']}""")
    STAMP('fin')
    END()
    lp=p.lab("th"); ok=p.lab("thok")
    p("L_plain:")
    if CFG['cpre']:
        sk=p.lab("nocp")
        p(f"""s_sub_u32 s{A}, s{sMI}, {CFG['cpb']}
        s_lshl_b32 s{A}, s{A}, 2
        s_add_u32 s{A}, s{A}, s{sWAVE}
        s_cmp_ge_u32 s{A}, 32
        s_cbranch_scc1 {sk}""")
        if CFG['cpre']==1:
            p(f"s_lshl_b32 s{B}, s{A}, 7\ns_add_u32 s{B}, s{B}, {CA+4}\nv_mov_b32 v{t}, 0")
            flag_poll(t,t+1,B,C,sleep=CFG['cpsl'])
        l2=p.lab("cp"); o2=p.lab("cpok")
        p(f"""s_mul_i32 s{B}, s{A}, 20480
        s_add_u32 s{B}, s{B}, {CAND+36}
        v_lshrrev_b32 v{t}, 5, v0
        v_mul_u32_u24 v{t}, 1280, v{t}
        v_mad_u32_u24 v{t}, v0, 40, v{t}
        s_mov_b32 s{C}, 64
        {l2}:
        buffer_load_dword v{t+1}, v{t}, {S4(sWS)}, s{B} offen sc1
        s_waitcnt vmcnt(0)
        v_cmp_eq_u32 vcc, -1, v{t+1}
        s_nop 0
        s_cbranch_vccz {o2}""")
        spin(C,l2,o2,CFG['cpsl'])
        p(f"s_branch {l2}\n{o2}:")
        STAMP('cp')
        p(f"{sk}:")
    p(f"""s_lshl_b32 s{B}, s{sG}, 7
    s_add_u32 s{B}, s{B}, {TH}
    v_mov_b32 v{t}, 0
    s_mov_b32 s{C}, {SPIN}
    {lp}:
    s_sleep 16
    buffer_load_dwordx2 v[{t+2}:{t+3}], v{t}, {S4(sWS)}, s{B} offen sc1
    s_waitcnt vmcnt(0)
    v_cmp_ne_u32 vcc, s{sTAG}, v{t+3}
    s_nop 0
    s_cbranch_vccz {ok}""")
    spin(C,lp,ok)
    p(f"""s_branch {lp}
    {ok}:
    v_readfirstlane_b32 s{sTHR}, v{t+2}
    s_nop 1""")
    deferred('p')
    STAMP('fin')

def l_old(t,A,B,C,BL,aR,sKQ,sTHR,XM):
    p(f"""v_lshl_add_u32 v{aR}, v{t}, 4, v{aR}
    s_mul_i32 s{A}, s{sKQ}, 320
    s_add_u32 s{A}, s{A}, {CAND}""")
    ld="\n".join(f"buffer_load_dwordx4 {vr(BL+4*i,4)}, v{aR}, {S4(sWS)}, s{A} offen offset:{i*64} sc1" for i in range(5))
    lp=p.lab("gl"); ok=p.lab("glok"); md=p.lab("glm"); nt=p.lab("noth")
    if CFG['xm']: p(XM)
    p(ld)
    p(f"""s_or_b32 s{B}, s{sMI}, s{sWAVE}
    s_cbranch_scc1 {nt}
    v_mov_b32 v{t+4}, s{sTHR}
    v_mov_b32 v{t+5}, s{sTAG}
    s_lshl_b32 s{B}, s{sG}, 7
    s_add_u32 s{B}, s{B}, {TH}
    v_mov_b32 v{t+6}, 0
    s_mov_b64 exec, 1
    buffer_store_dwordx2 v[{t+4}:{t+5}], v{t+6}, {S4(sWS)}, s{B} offen sc1
    {nt}:
    s_mov_b64 exec, -1
    s_lshl_b32 s{B}, s{sWAVE}, 11
    s_add_u32 s{B}, s{B}, {L_RED}
    v_lshl_add_u32 v{t+3}, v0, 4, s{B}
    {XM}
    s_mov_b32 s{C}, {SPIN}
    s_branch {md}
    {lp}:
    {ld}
    {md}:
    s_waitcnt vmcnt(0) lgkmcnt(0)
    v_max3_u32 v{t+4}, v{BL}, v{BL+2}, v{BL+4}
    v_max3_u32 v{t+5}, v{BL+6}, v{BL+8}, v{BL+10}
    v_max3_u32 v{t+4}, v{BL+12}, v{BL+14}, v{t+4}
    v_max3_u32 v{t+5}, v{BL+16}, v{BL+18}, v{t+5}
    v_max_u32 v{t+4}, v{t+4}, v{t+5}
    v_cmp_eq_u32 vcc, -1, v{t+4}
    s_nop 0
    {'s_branch' if 'nocand' in CFG['xp'] else 's_cbranch_vccz'} {ok}""")
    spin(C,lp,ok)
    p(f"s_branch {lp}\n{ok}:")
def act_old(t,A,B,C,BL,AW,Y,XM,ld,lp,ok):
    p(f"""{XM}
    s_mov_b32 s{C}, {SPIN}
    {lp}:
    {ld}
    s_waitcnt vmcnt(8)
    v_max3_u32 v{t+5}, v{BL}, v{BL+2}, v{BL+4}
    v_max3_u32 v{t+6}, v{BL+6}, v{BL+8}, v{BL+10}
    v_max3_u32 v{t+5}, v{BL+12}, v{BL+14}, v{t+5}""")
    for i in range(4,12):
        if i%4==0: p(f"s_waitcnt vmcnt({8-i})")
        p(f"v_max3_u32 v{t+5+(i&1)}, v{BL+4*i}, v{BL+4*i+2}, v{t+5+(i&1)}")
    p(f"""v_max_u32 v{t+5}, v{t+5}, v{t+6}
    v_cmp_eq_u32 vcc, -1, v{t+5}
    s_waitcnt lgkmcnt(0)
    s_cbranch_vccz {ok}""")
    spin(C,lp,ok,CFG['acsl'])
    p(f"s_branch {lp}\n{ok}:")
    STAMP('ar'); COUNT('nar',C,SPIN)
    if CFG['xm']: p("s_mov_b64 exec, -1")
    for s_ in range(12): p(f"v_mfma_f32_16x16x32_bf16 {vr(Y,4)}, {vr(AW+4*s_,4)}, {vr(BL+4*s_,4)}, {vr(Y,4) if s_ else 0}")

def build():
    prologue()
    steps=loader()
    helperA(steps)
    p("s_branch L_mw")
    helperB(steps)
    p("L_mw:")
    moe_weights()
    END()
    if CFG['lay']: p(PG)
    p("L_comp:")
    if CFG['prio']: p(f"s_setprio {CFG['prio']}")
    p("s_waitcnt lgkmcnt(0)")
    STAMP('start')
    prologue2(1)
    if CFG['cpf']: code_pf()
    if CFG['cpa']==2: cp_rest(sT+18); p("s_mov_b64 exec, -1")
    if CFG['tlb']==1:
        for k in range(12):
            p(f"s_mov_b32 s{sT+18}, {k*0x200000+0x1000}\ns_load_dword s100, s[{sWS}:{sWS+1}], s{sT+18}")
    if CFG['tlb']==2:
        p(f"v_lshlrev_b32 v228, 19, v0\nv_min_u32 v228, 0x1780000, v228\nbuffer_load_dword v229, v228, {S4(sWS)}, 0 offen")
    srd(((sX,2621440),))
    if CFG['hclr'] or CFG['lclr']: assert CFG['clr']==0 and CFG['odn'] and CFG['wsp']; CFG['clate']=9
    if CFG['clr']==0 and CFG['clate']==0: clears(0); clears(1)
    STAMP('c1')
    att_setup()
    STAMP('c2')
    if CFG['clr']==0 and CFG['clate']==1: clears(0); clears(1)
    gemm_setup()
    STAMP('c3')
    if CFG['clr']: clears(0)
    if CFG['clr']==0 and CFG['clate']==2: clears(0); clears(1)
    STAMP('c4')
    p("s_waitcnt lgkmcnt(0)")
    STAMP('c5')
    mktag()
    p(f"""    s_cmp_eq_u32 s{sLC}, 15
    s_cbranch_scc1 L_gS
    s_cmp_eq_u32 s{sTY}, 2
    s_cbranch_scc1 L_gV""")
    if CFG['lay']:
        p("s_branch L_gT")
        n0=len(p.L)
        p(PG)
        if CFG['pade']: p("L_padT:\ns_branch L_comp")
        p("L_gT:"); gemm_loop('T'); gemm_epi('T'); p("s_branch L_att")
        n1=len(p.L)
        p("L_gS:"); idle_gemm(); p("s_branch L_att")
        COLD.insert(0,"\n".join(p.L[n1:])); del p.L[n1:]
        if CFG['pade']: p("L_padV:\ns_branch L_comp")
        if CFG['g16'] and CFG['gpg']: p(PG)
        p("L_gV:"); gemm_loop('V'); gemm_epi('V'); p("s_branch L_att")
        if CFG['dcs']: cs_block()
        G_=p.L[n0:]; del p.L[n0:]
        p("L_att:")
        att_go()
        p.L+=G_
    else:
        gemm_loop('T'); gemm_epi('T'); p("s_branch L_att")
        p("L_gS:"); idle_gemm(); p("s_branch L_att")
        p("L_gV:"); gemm_loop('V'); gemm_epi('V')
        p("L_att:")
        att_go()
    for w in range(4): att_variant(w)
    att_fin()
    wo_main()
    if CFG['stop']<=3:
        p(f"s_and_b64 exec, s[{sCAND}:{sCAND+1}], -1\ns_cbranch_scc0 L_noo2"); out_store(); p("L_noo2:")
    else: moe()
    END()
    att_cold()
    SL={3:('L_og0:','L_og1:','L_og3:'),2:('L_og5:','L_og7:'),1:('L_wo2w:','L_ldw:')+(() if CFG['hs2'] else ('L_hlw:',))} if CFG['cslot'] and CFG['lay'] else {}
    for w in range(4):
        i=p.L.index(f";@slot{w}"); mv=[c for c in COLD if c.strip().startswith(SL.get(w,('-',)))]
        q=P()
        for c in mv: q(c); COLD.remove(c)
        p.L[i:i+1]=q.L
    for c in COLD: p(c)
    p("L_exit:\ns_endpgm")
build()
errs=check(p.L)
hdr=f"""; generated by work/k/gen.py (own generator script)
; @launch grid=(256,1,1) block=(512,1,1) lds=163840
.amdgcn_target "amdgcn-amd-amdhsa--gfx950"
.text
.globl {NAME}_kernel
{".p2align 12" if CFG['pal'] else ""}
{f".fill {(CFG['pal']-1)*64}, 4, 0xbf810000" if CFG['pal']>1 else ""}
.p2align 8
.type {NAME}_kernel,@function
{NAME}_kernel:
"""
ftr=f""".section .rodata,"a"
.p2align 6
.amdhsa_kernel {NAME}_kernel
  .amdhsa_next_free_vgpr 256
  .amdhsa_next_free_sgpr 102
  .amdhsa_accum_offset 256
  .amdhsa_group_segment_fixed_size 0
  .amdhsa_kernarg_size 88
  .amdhsa_user_sgpr_count 2
  .amdhsa_user_sgpr_kernarg_segment_ptr 1
  .amdhsa_system_sgpr_workgroup_id_x 1
.end_amdhsa_kernel
"""
import align8
def fmt(L):
    q=P(); q.L=L; return q.text()
if CFG['al8']: print("align8",align8.align(p.L,hdr,ftr,fmt,sys.argv[1]+".tmp.s",CFG['al8']))
if CFG.get('alst'): print(align8.stat(p.L,hdr,ftr,fmt,sys.argv[1]+".tmp.s"))
open(sys.argv[1],"w").write(hdr+p.text()+ftr)

import subprocess
r=subprocess.run(["clang","-x","assembler","-target","amdgcn-amd-amdhsa","-mcpu=gfx950",sys.argv[1],"-o",sys.argv[1]+".co"],capture_output=True,text=True)
if r.returncode: print(r.stderr[:3000]); sys.exit(1)
r=subprocess.run(["python3","cdna_unwritten_srd_check.py",sys.argv[1]+".co"],capture_output=True,text=True)
if r.returncode: print("SRDCHECK:",r.stdout[-3000:],r.stderr[-1000:])
r=subprocess.run("llvm-size -A "+sys.argv[1]+".co | grep text",shell=True,capture_output=True,text=True); print(r.stdout.strip())
if errs:
    import os; os.remove(sys.argv[1]); sys.exit(1)
```

```python
import sys, math
from asmlib import *
NAME="sequential_preLN__sliding_block__moe_arch_mod__prompt"
CFG=dict(hpr=0, hme=2, sf2=4, cpn=4, cpv=0, sfe=0, gpg=1, g16r=(1,)*12, g16c=(13,15), g16b=3, dcs=0, dcg=7, g16=1, hpol='sc1', ospol='sc1', qth=(), qthn=0, qb1=0, epi2=2, epo='cb', hs2p=0, hs2=0, hs2u=2, hs2g='FS', hs2s=1, lclr=0, lcu=3, lcs=8, lcg='G2', htop=0, cae=0, jb=1, cslot=1, pks=4, lay=1, padk=0, pade=0, cpa=1, cpe=8, epf=1, b1p=0, pal=1, ahp=0, fpol='sc1', xdma=1, prm=25, ob2=0, psq=1, ldma=1, asp=1, a2=1, cpre=0, cpsl=2, cpb=17, hsl2=2, ogate=4, honly=0, hsp=0, wpause=0, hdef=-1, hdg='FS', xru=17, xrd=0, ahint=12, ptc='', chint=0, dtn=1, hll=1, xm=1, kqr=0, dasl=0, dth=0, odf=0, mrm=1, g2nd=('O1',10), smx=2, smd=0, hst=0, wgf='M', shf=1, gm='no', gr='G1', tlb=0, rld=0, al8=0, ldp='sc1', ldo='sc1', wsp=1, wla2=7, ogr2=(1,2,2,2,3), orem2=(6,1), wwe2=2, smw=(), smo=(3,6), mtr=(0,10), mth=0, wburst=0, mtg='RL', wts=99, wsplit=1, wnoa=0, hclr=0, cst=(3,3), hsent=0, hkv=0, hgate='G1', hrs=0, osent=1, ogr=(2,3,5,2,3,5), opoll='half', osl=(0,0), oini=10, orem=25, clate=1, oprb=0, odn=1, hstep=6, qpol='', apol='', cpol='', wb=(), wbs=31, ht=0, hpoll=0, hsl=1, wog2=0, hearly=0, stg=6, stb=0, ord='xw,xw,xw,xw,xw,xw,xw,xw,xw,xw', amp=None, wose=2, late1=1, sdef=(1,1,1,1), pt2=8, qpair2=0, nacc=8, sfirst=1, prio=0, smode='dot', sfill=(), acsl=0, casl=0, xp=(), dw3=0, wla=7, wwe=2, dgate='PS', dstart='O1', gstart='WE', mdep=10, ddep=12, qpair=0, mpair=0, wpair=0, xnt=0, wnt=0, tpol2='', wtw='no', mtw='w3', wothr1=6, mb=(6,6), mg=('WOD','PR','PR','O1'), mpf=0, mgate='b3', hsplit=0, cpf=0, npf=(0,)*10, wogs=5, clr=0, wot=(), wtpol='', seqs=None, xpol='nt', wpol='', tpol='', wopol='', mpol='', cal=None, opol='', st=['start','b0|hb0','gend|hb9','E1|hE1','st|halo|clr','fl|g2|wo','fseen|h2','kv','aend','ost'], pt=8, wothr=12, wogate=1, h2sl=1, noh2=0, nowo=0, wos=(0,0,0), sched=(1,2,1,1,1,1,1,0,0,0), dbg=0, stop=99, prof=0, rot=('0055','36094758','05162738'), force_slow=0, noclr=0, pre=2, ldst=0, nomfma=0, nohello=0)
for a in sys.argv[2:]:
    k,v=a.split("="); CFG[k]=eval(v)
QB,KB,VB,KH,VH,OB=[i*0x280000 for i in range(6)]
CAND=0xF00000
PS=0xFA0000
CA=0xFE0000
ACT=0xFE1000
HB=0x1000000
PROF=0x1300000
H1=0x1280000; H2=0x1281000; EPO=0x1282000; TH=0x1283000; AH=0x1284000; CH_=0x1285000; H2B=0x1288000
STP=0x1680000; STX=0x1780000
FO=0x1700000; OB2=0x1400000; FL=0x12A0000; FH=0x1740000
CSX=0x12C0000
L_STG=0; L_KV=10240; L_WO=55296; L_MISC=157696; L_MW=0
L_CS=L_MISC
L_SA=L_MISC+512
L_SR=L_SA+1024
L_MODE=L_SR+512
L_FLG=L_MODE+64
F_G1,F_G2,F_H2,F_STG,F_SCP,F_DONE,F_WOR,F_MW=[L_FLG+4*i for i in (0,1,2,4,8,9,10,12)]
L_SWS=L_FLG+80; F_O1=L_FLG+44; F_WOD=L_FLG+64; F_PR=L_FLG+68; F_WO2=L_FLG+72; F_PS=L_FLG+76; F_FS=L_FLG+84; F_LD=L_FLG+88; F_X=L_FLG+96; F_M=L_FLG+112; F_HR=L_FLG+120; F_RI=L_FLG+124; F_OWN=L_FLG+92
F_CC=L_FLG+12; ND=5 if CFG['lclr'] else 4
L_KEYS=L_FLG+128
L_CA=L_KEYS+256; L_TOP=L_CA+64
L_SM=131072
L_RED=L_WO
sX,sW,sWO,sWG,sWU,sWD,sOUT,sWS,sDBG,sWR=[4+4*i for i in range(10)]
sWAVE,sG,sSLOT,sRQ,sHH,sRB,sCT,sMODE,sEP,sTAG=range(44,54)
sT=54
sMI=39
sBK=3
sLO=76
sPROF=80
p=P()
COLD=[]
CALI=lambda: 's_memtime' if CFG['cal'][1]>20000 else 's_memrealtime'
def STAMP(name,w=0):
    if CFG['amp']:
        a=CFG['amp']
        if name=='entry': p(f"s_memrealtime s[{sPROF+8}:{sPROF+9}]")
        for k in (0,1):
            if name==a[k]:
                p(f"{'s_memrealtime' if a[2]=='r' else 's_memtime'} s[{sPROF+2*k}:{sPROF+2*k+1}]")
                if w: p("s_waitcnt lgkmcnt(0)")
    if CFG['cal'] and name in CFG['cal'][0].split('|'):
        p(f"{CALI()} s[{sPROF}:{sPROF+1}]")
        if w: p("s_waitcnt lgkmcnt(0)")
    i=[k for k,n in enumerate(CFG['st']) if name in n.split('|')]
    if CFG['prof'] and i:
        i=i[0]
        p(f"{'s_memrealtime' if CFG['prof']==2 else 's_memtime'} s[{sPROF+2*i}:{sPROF+2*i+1}]")
        if w: p("s_waitcnt lgkmcnt(0)")
def COUNT(name,cnt,full):
    i=[k for k,n in enumerate(CFG['st']) if name in n.split('|')]
    if CFG['prof'] and i:
        r=sPROF+2*i[0]
        p(f"s_waitcnt lgkmcnt(0)\ns_sub_u32 s{r}, {full}, s{cnt}\ns_mul_i32 s{r}, s{r}, 100\ns_add_u32 s{r}, s{r}, s{sPROF}")
def PROFDUMP():
    if not CFG['prof']: return
    p("s_waitcnt vmcnt(0) lgkmcnt(0)")
    p("s_mov_b64 exec, -1")
    for i in range(10): p(f"v_mov_b32 v{2+i}, s{sPROF+2*i}")
    p(f"""s_lshl_b32 s{sT}, s2, 3
    s_add_u32 s{sT}, s{sT}, s{sWAVE}
    s_lshl_b32 s{sT}, s{sT}, 6
    s_add_u32 s{sT}, s{sT}, {PROF}
    v_mov_b32 v1, 0
    s_mov_b64 exec, 1
    buffer_store_dwordx4 v[2:5], v1, s[{sWS}:{sWS+3}], s{sT} offen
    buffer_store_dwordx4 v[6:9], v1, s[{sWS}:{sWS+3}], s{sT} offen offset:16
    s_getpc_b64 s[{sT+2}:{sT+3}]
    v_mov_b32 v12, s{sT+2}
    v_mov_b32 v13, s{sT+3}
    buffer_store_dwordx4 v[10:13], v1, s[{sWS}:{sWS+3}], s{sT} offen offset:32""")
def END():
    PROFDUMP()
    if CFG['amp']:
        a=CFG['amp']
        lp=p.lab("amp"); ok=p.lab("ampok")
        p(f"""s_waitcnt vmcnt(0) lgkmcnt(0)
        s_cmp_eq_u32 s{sPROF+2}, 0
        s_cbranch_scc1 {ok}
        s_cmp_lg_u32 s{sWAVE}, {a[5] if len(a)>5 else 0}
        s_cbranch_scc1 {ok}""")
        if a[4]>=0: p(f"s_cmp_lg_u32 s2, {a[4]}\ns_cbranch_scc1 {ok}")
        p(f"""s_sub_u32 s{sPROF+6}, s{sPROF+2}, s{sPROF}
        s_mul_i32 s{sPROF+6}, s{sPROF+6}, {a[3]}
        s_lshr_b32 s{sPROF+6}, s{sPROF+6}, 4
        s_min_u32 s{sPROF+6}, s{sPROF+6}, 100000
        s_add_u32 s{sPROF+6}, s{sPROF+6}, 3000
        s_mov_b32 s{sPROF+4}, 100000
        {lp}:
        s_sleep 2
        s_memrealtime s[{sPROF+2}:{sPROF+3}]
        s_sub_u32 s{sPROF+4}, s{sPROF+4}, 1
        s_cbranch_scc1 {ok}
        s_waitcnt lgkmcnt(0)
        s_sub_u32 s{sPROF+2}, s{sPROF+2}, s{sPROF+8}
        s_cmp_lt_u32 s{sPROF+2}, s{sPROF+6}
        s_cbranch_scc1 {lp}
        {ok}:""")
    if CFG['cal']:
        lp=p.lab("cal"); ok=p.lab("calok")
        p(f"""s_waitcnt vmcnt(0) lgkmcnt(0)
        s_cmp_eq_u32 s{sPROF}, 0
        s_cbranch_scc1 {ok}
        s_cmp_ge_u32 s{sWAVE}, 4
        s_cbranch_scc1 {ok}
        s_mov_b32 s{sPROF+4}, 100000
        {lp}:
        s_sleep 2
        {CALI()} s[{sPROF+2}:{sPROF+3}]
        s_sub_u32 s{sPROF+4}, s{sPROF+4}, 1
        s_cbranch_scc1 {ok}
        s_waitcnt lgkmcnt(0)
        s_sub_u32 s{sPROF+2}, s{sPROF+2}, s{sPROF}
        s_cmp_lt_u32 s{sPROF+2}, {CFG['cal'][1]}
        s_cbranch_scc1 {lp}
        {ok}:""")
    p("s_endpgm")
S4=lambda r:f"s[{r}:{r+3}]"
SPIN=1<<18

def srd(lst):
    for r,n in lst: p(f"s_mov_b32 s{r+2}, {n}\ns_mov_b32 s{r+3}, 0x20000")
def prologue():
    STAMP('entry')
    p(f"""s_cmp_ge_u32 s2, 256
    s_cbranch_scc1 L_exit
    s_load_dwordx2 s[{sX}:{sX+1}], s[0:1], 0
    s_load_dwordx2 s[{sW}:{sW+1}], s[0:1], 8
    s_load_dwordx2 s[{sWS}:{sWS+1}], s[0:1], 80
    v_lshrrev_b32 v1, 6, v0
    v_and_b32 v0, 63, v0
    v_readfirstlane_b32 s{sWAVE}, v1
    s_and_b32 s{sG}, s2, 7
    s_lshr_b32 s{sSLOT}, s2, 3
    s_lshr_b32 s{sRQ}, s{sG}, 1
    s_and_b32 s{sHH}, s{sG}, 1
    s_and_b32 s{sRB}, s{sSLOT}, 3
    s_lshr_b32 s{sCT}, s{sSLOT}, 2
    s_lshl_b32 s{sBK}, s{sRQ}, 2
    s_add_u32 s{sBK}, s{sBK}, s{sRB}
    s_cmp_gt_u32 s{sCT}, 2
    s_subb_u32 s{sBK}, s{sBK}, 0
    s_and_b32 s{sBK}, s{sBK}, 15""")
    if CFG['cal']: p(f"s_mov_b32 s{sPROF}, 0")
    if CFG['amp']: p(f"s_mov_b32 s{sPROF+2}, 0")
    if CFG['prof']:
        for i in range(1,10): p(f"s_mov_b32 s{sPROF+2*i}, 0")
    if not CFG['cpe']:
        p(f"""s_cmp_lt_u32 s{sWAVE}, 4
        s_cbranch_scc1 L_comp""")
        return
    A=sT+18; K=NAME+"_kernel"
    n=CFG['cpe']
    reg=[f"({K}+0x400-L_pc0)",f"(L_comp-L_pc0)",f"(L_comp+0x1000-L_pc0)",f"({K}+0x1400-L_pc0)"]
    if CFG['cpv']: reg[CFG['cpv']-1]="(L_comp+0x2000-L_pc0)"
    lit="|".join(f"((({r}>>8)&0xff)<<{8*i})" for i,r in enumerate(reg))
    p(f"""s_cmp_lt_u32 s{sWAVE}, 4
    s_cbranch_scc0 L_help
    s_getpc_b64 s[{A}:{A+1}]
    L_pc0:
    s_lshl_b32 s{A+2}, s{sWAVE}, 3
    s_lshr_b32 s{A+2}, {lit}, s{A+2}
    s_and_b32 s{A+2}, s{A+2}, 0xff
    s_and_b32 s{A+3}, s{sSLOT}, {32//n-1}
    s_lshl_b32 s{A+2}, s{A+2}, 8
    s_mul_i32 s{A+3}, s{A+3}, {n*128}
    s_and_b32 s{A}, s{A}, 0xffffff80
    s_add_u32 s{A+2}, s{A+2}, s{A+3}
    v_lshl_add_u32 v1, v0, 7, s{A+2}
    s_mov_b64 exec, {hex((1<<n)-1)}
    global_load_dwordx2 v[228:229], v1, s[{A}:{A+1}] offset:60""")
    if CFG['cpa']==1: cp_rest(A)
    p("s_mov_b64 exec, -1")
    if CFG['lay'] and CFG['pade']: p(f"""s_cmp_eq_u32 s{sWAVE}, 3
    s_cbranch_scc1 L_padT
    s_cmp_eq_u32 s{sWAVE}, 2
    s_cbranch_scc1 L_padV""")
    p(f"""s_branch L_comp
    L_help:""")
def cp_rest(A):
    p(f"""s_lshl_b32 s{A+2}, s{sSLOT}, 2
    s_add_u32 s{A+2}, s{A+2}, s{sWAVE}
    s_mul_i32 s{A+2}, s{A+2}, {128*CFG['cpn']}
    s_add_u32 s{A+2}, s{A+2}, ({NAME}_kernel+0x2400-L_pc0)&0xffffff00
    s_min_u32 s{A+2}, s{A+2}, (L_exit-L_pc0-{128*CFG['cpn']})&0xffffff80
    s_mov_b64 exec, {(1<<CFG['cpn'])-1}
    v_lshl_add_u32 v1, v0, 7, s{A+2}
    global_load_dwordx2 v[194:195], v1, s[{A}:{A+1}] offset:60""")
def prologue2(comp=0):
    if comp:
        p(f"""s_mov_b32 s{sTAG}, {EPO}
        s_load_dword s{sEP}, s[{sWS}:{sWS+1}], s{sTAG}
        s_load_dwordx2 s[{sWR}:{sWR+1}], s[0:1], 32
        s_load_dwordx2 s[{sOUT}:{sOUT+1}], s[0:1], 64""")
        srd(((sWS,268435456),(sWR,1280),(sOUT,2621440)))
        p(f"""s_mov_b32 s{sLO}, -1
        s_mov_b32 s{sLO+1}, 0
        s_mov_b32 s{sLO+2}, 0xfffff
        s_mov_b32 s{sLO+3}, 0xfffff""")
        return
    if not CFG['epf']: p(f"""s_mov_b32 s{sTAG}, {EPO}
    s_load_dword s{sEP}, s[{sWS}:{sWS+1}], s{sTAG}""")
    p(f"""s_load_dwordx2 s[{sWO}:{sWO+1}], s[0:1], 16
    s_load_dwordx2 s[{sWR}:{sWR+1}], s[0:1], 32
    s_load_dwordx2 s[{sWG}:{sWG+1}], s[0:1], 40
    s_load_dwordx2 s[{sWU}:{sWU+1}], s[0:1], 48
    s_load_dwordx2 s[{sWD}:{sWD+1}], s[0:1], 56
    s_load_dwordx2 s[{sOUT}:{sOUT+1}], s[0:1], 64""")
    srd(((sWS,268435456),(sWO,819200),(sWR,1280),(sWG,1966080),(sWU,1966080),(sWD,1966080),(sOUT,2621440)))
    p(f"""s_mov_b32 s{sLO}, -1
    s_mov_b32 s{sLO+1}, 0
    s_mov_b32 s{sLO+2}, 0xfffff
    s_mov_b32 s{sLO+3}, 0xfffff""")
def moe_role():
    A=sT+20
    if not CFG['mrm']: p(f"s_mov_b32 s{sMI}, s{sSLOT}"); return
    p(f"""s_lshr_b32 s{A}, s{sSLOT}, 3
    s_sub_u32 s{sMI}, s{sSLOT}, s{A}
    s_sub_u32 s{sMI}, s{sMI}, 1
    s_add_u32 s{A}, s{A}, 28
    s_and_b32 s{A+1}, s{sSLOT}, 7
    s_cselect_b32 s{sMI}, s{sMI}, s{A}""")
def mktag():
    p(f"""s_mul_i32 s{sTAG}, s{sEP}, 0x9e3779b1
    s_add_u32 s{sTAG}, s{sTAG}, 0x7f4a7c15
    s_and_b32 s{sTAG}, s{sTAG}, -16""")
def colbyte(dst, lc):
    t=sT+18
    p(f"""s_mul_i32 s{t}, s{lc}, 52
    s_lshr_b32 s{t}, s{t}, 8
    s_add_u32 s{t}, s{t}, s{sHH}
    s_mul_i32 s{t}, s{t}, 640
    s_lshl_b32 s{dst}, s{lc}, 7
    s_add_u32 s{dst}, s{dst}, s{t}""")

def loader():
    CA_=sT+1; CB_=sT+2; CH=sT+3; XO=sT+4; WO_=sT+5; LB=sT+6; A=sT+7; B=sT+8; OFF=sT+9; SEQ=sT+10
    vX=2; vW=6; vt=10
    p(f"""s_sub_u32 s{HW}, s{sWAVE}, 4
    s_lshl_b32 s{A}, s{sCT}, 1
    s_cmp_gt_u32 s{sCT}, 2
    s_subb_u32 s{A}, s{A}, 0
    s_cmp_lg_u32 s{sCT}, 2
    s_addc_u32 s{B}, s{A}, 0""")
    colbyte(CA_,A); colbyte(CB_,B)
    p(f"""v_lshrrev_b32 v{vt}, 3, v0
    v_mul_u32_u24 v{vX}, 1280, v{vt}
    v_lshrrev_b32 v{vt+1}, 4, v0
    v_and_b32 v{vt+2}, 7, v0
    v_xor_b32 v{vt+2}, v{vt+2}, v{vt+1}
    v_lshl_add_u32 v{vX}, v{vt+2}, 4, v{vX}
    v_xor_b32 v{vX+1}, 64, v{vX}
    v_add_u32 v{vX+1}, {10240-1024}, v{vX+1}
    v_add_u32 v{vX+2}, {(1 if CFG['g16'] else 2)*(10240-1024)}, v{vX+CFG['g16']}
    v_add_u32 v{vX+3}, {(3 if CFG['g16'] else 2)*(10240-1024)}, v{vX+1-CFG['g16']}
    v_lshlrev_b32 v{vt+2}, 2, v{vt+1}
    v_and_b32 v{vt+3}, 15, v0
    v_xor_b32 v{vt+2}, v{vt+2}, v{vt+3}
    v_cmp_lt_u32 vcc, 7, v{vt+2}
    v_mov_b32 v{vt+3}, s{CA_}
    v_mov_b32 v{vt+4}, s{CB_}
    v_cndmask_b32 v{vt+3}, v{vt+3}, v{vt+4}, vcc
    v_and_b32 v{vt+2}, 7, v{vt+2}
    v_lshl_add_u32 v{vt+3}, v{vt+2}, 4, v{vt+3}
    v_mul_u32_u24 v{vW}, 3840, v{vt+1}
    v_add_u32 v{vW}, v{vW}, v{vt+3}""")
    for i in range(1,4): p(f"v_add_u32 v{vW+i}, {i*(4*3840-1024)}, v{vW}")
    if CFG['g16']: p(f"v_xor_b32 v{vW+2}, 32, v{vW+2}\nv_xor_b32 v{vW+3}, 32, v{vW+3}")
    ta,tc,tg=CFG['rot']
    pk=lambda t: sum(int(v)<<(4*i) for i,v in enumerate(t))
    p(f"""s_and_b32 s{A}, s{sBK}, 3
    s_lshl_b32 s{A}, s{A}, 2
    s_lshr_b32 s{CH}, {pk(ta)}, s{A}
    s_and_b32 s{CH}, s{CH}, 15
    s_lshl_b32 s{A}, s{sCT}, 2
    s_lshr_b32 s{A}, {hex(pk(tc))}, s{A}
    s_and_b32 s{A}, s{A}, 15
    s_add_u32 s{CH}, s{CH}, s{A}
    s_lshr_b32 s{A}, s{sBK}, 2
    s_lshl_b32 s{A}, s{A}, 1
    s_add_u32 s{A}, s{A}, s{sHH}
    s_lshl_b32 s{A}, s{A}, 2
    s_lshr_b32 s{A}, {hex(pk(tg))}, s{A}
    s_and_b32 s{OFF}, s{A}, 15""")
    seqs=CFG['seqs']
    if seqs:
        n=len(seqs)
        p(f"""s_mul_i32 s{A}, s{CH}, {-(-2048//n)}
        s_lshr_b32 s{A}, s{A}, 11
        s_mul_i32 s{A}, s{A}, {n}
        s_sub_u32 s{CH}, s{CH}, s{A}""")
        for i,q in enumerate(seqs):
            assert sorted(q)==list("0123456789")
            if i: p(f"s_cmp_eq_u32 s{CH}, {i}\ns_cselect_b32 s{SEQ}, {hex(pk(q[:8]))}, s{SEQ}\ns_cselect_b32 s{SEQ+1}, {hex(pk(q[8:]))}, s{SEQ+1}")
            else: p(f"s_mov_b32 s{SEQ}, {hex(pk(q[:8]))}\ns_mov_b32 s{SEQ+1}, {hex(pk(q[8:]))}")
    else:
        p(f"""s_add_u32 s{CH}, s{CH}, s{OFF}
    s_mul_i32 s{A}, s{CH}, 205
    s_lshr_b32 s{A}, s{A}, 11
    s_mul_i32 s{A}, s{A}, 10
    s_sub_u32 s{CH}, s{CH}, s{A}""")
    p(f"""
    s_lshl_b32 s{A}, s{sBK}, 2
    s_add_u32 s{A}, s{A}, s{HW}
    s_mul_i32 s{XO}, s{A}, {32*1280}
    s_mul_i32 s{WO_}, s{HW}, {16*3840}
    s_lshl_b32 s{LB}, s{HW}, 12""")
    CHW=SEQ
    p(f"s_mov_b32 s{CHW}, s{CH}")
    nx=dict(x=0,w=0)
    def issue(order,lim):
        global OPS
        for k in order:
            if k in 'qh':
                ql=p.lab("qth")
                if k=='q': p(f"s_cmp_gt_u32 s{sCT}, 2")
                else: halo_cond(A,B)
                p(f"s_cbranch_scc1 {ql}\ns_waitcnt vmcnt({CFG['qthn']})\n{ql}:")
                continue
            c=nx[k]; nx[k]+=1; assert c<=min(9,lim)
            slot=(c%4)*32768; ch=CH if k=='x' else CHW
            if k=='x': p(f"""s_lshl_b32 s{A}, s{ch}, 7
                s_add_u32 m0, s{LB}, {slot}
                s_add_u32 s{A}, s{A}, s{XO}""")
            else: p(f"""s_mul_i32 s{A}, s{ch}, {64*3840}
                s_add_u32 m0, s{LB}, {slot+16384}
                s_add_u32 s{A}, s{A}, s{WO_}""")
            for i in range(4):
                if c>=5 and ('nol'+k) in CFG['xp']: p(f"s_mov_b64 exec, 1\nbuffer_load_dwordx4 v{vX+i}, {S4(sX)}, s{XO} offen lds\ns_mov_b64 exec, -1"); continue
                if k=='x': p(f"buffer_load_dwordx4 v{vX+i}, {S4(sX)}, s{A} offen offset:{i*1024} {CFG['xpol'] if c<CFG['xnt'] else ''} lds")
                else: p(f"buffer_load_dwordx4 v{vW+i}, {S4(sW)}, s{A} offen offset:{i*1024} {'nt' if c<CFG['wnt'] else CFG['wpol']} lds")
            p(f"""s_add_u32 s{ch}, s{ch}, 1
            s_cmp_eq_u32 s{ch}, 10
            s_cselect_b32 s{ch}, 0, s{ch}""")
            OPS+=[c]*4
    ORD=CFG['ord'].split(',')
    srd(((sX,2621440),(sW,2457600)))
    if CFG['epf']: p(f"s_mov_b32 s{sTAG}, {EPO}")
    p("s_waitcnt lgkmcnt(0)")
    if CFG['epf']: p(f"s_load_dword s{sEP}, s[{sWS}:{sWS+1}], s{sTAG}")
    STAMP('i0')
    def b1():
        STAMP('i1s')
        if CFG['qb1']:
            ql=p.lab("qth"); p(f"s_cmp_gt_u32 s{sCT}, 2\ns_cbranch_scc1 {ql}\ns_waitcnt vmcnt({CFG['qb1']-1})\n{ql}:")
        issue(ORD[1],3)
        STAMP('i1e')
    for c in range(1):
        issue(ORD[0],3); STAMP('i%d'%(c+1))
        if CFG['b1p']==2: b1()
        if c==0:
            prologue2()
            p(f"""v_cmp_lt_u32 vcc, 7, v0
            v_lshlrev_b32 v{vt}, 4, v0
            v_add_u32 v{vt}, {L_FLG}, v{vt}
            v_cndmask_b32 v{vt+2}, 0, -1, vcc
            v_cndmask_b32 v{vt+3}, 0, -1, vcc
            v_cndmask_b32 v{vt+4}, 0, -1, vcc
            v_cndmask_b32 v{vt+5}, 0, -1, vcc
            ds_write_b128 v{vt}, v[{vt+2}:{vt+5}]""")
            early()
    if CFG['b1p']==1: b1()
    p("s_waitcnt lgkmcnt(0)")
    STAMP('epo')
    mktag()
    stats_setup()
    p(f"s_cmp_ge_u32 s{HW}, 2\ns_cbranch_scc1 L_helperB")
    nx0=dict(nx); ops0=list(OPS)
    def steps(hook,isB):
        global OPS
        nx.update(nx0); OPS=list(ops0)
        if CFG['b1p']==0: b1()
        if CFG['hclr']: hclear_setup(isB)
        if CFG['smw'] or CFG['smo']: sm_setup()
        for c in range(8):
            sd=CFG['sdef']
            if c==0 and -1 in sd:
                assert ORD[0][0]=='x'; p(f"s_waitcnt vmcnt({len(OPS)-4})")
                STAMP('x0')
                fill=stats(0)
                for k in range(4):
                    if sd[k]==-1: p(fill[k])
                if max(sd)==-1: stats_red()
            vmwait(c)
            STAMP('d%d'%c)
            p("s_barrier")
            STAMP('ld%d'%c)
            if c==0 and -1 not in sd: fill=stats(0)
            if c==CFG['stg'] and CFG['stb']: stats_get(); hook(100)
            if CFG['hclr']: hclear(c,isB)
            if not isB: hook(200+c)
            if c in CFG['qth']:
                ql=p.lab("qth"); p(f"s_cmp_gt_u32 s{sCT}, 2\ns_cbranch_scc1 {ql}\ns_waitcnt vmcnt({CFG['qthn']})\n{ql}:")
            issue(ORD[2+c],c+3)
            if c==0: p("s_waitcnt lgkmcnt(0)")
            for k in range(4):
                if sd[k]==c: p(fill[k])
            if c==max(0,max(sd)):
                if max(sd)>=0: stats_red()
                stats_pub(); OPS.append('stw')
            if c==CFG['stg'] and not CFG['stb']: stats_get(); hook(100)
            hook(c)
            sm_touch(c,isB)
            if CFG['lay'] and CFG['padk']==2 and c==CFG['pks']:
                p(f"s_cmp_eq_u32 s{HW}, {2*isB}\ns_cbranch_scc1 L_pv{2*isB}\ns_branch L_pv{2*isB+1}\nL_pkb{isB}:")
        assert nx==dict(x=10,w=10)
    return steps
aS=44; dS=64; sacc=60; sone=43; sDBL=sDBG; sSTP=sDBG+1
def stats_setup():
    vt=10
    tc=[int(x) for x in CFG['rot'][1]]
    assert not CFG['seqs'] and sorted(tc+[(tc[2]+1)%10,(tc[2]+2)%10])==list(range(10))
    p(f"""s_lshl_b32 s{sT+16}, s{HW}, 12
    v_bfe_u32 v{vt}, v0, 1, 3
    v_lshrrev_b32 v{vt+1}, 5, v0
    v_lshlrev_b32 v{vt+1}, 2, v{vt+1}
    v_xor_b32 v{vt}, v{vt}, v{vt+1}
    v_lshlrev_b32 v{vt}, 4, v{vt}
    v_and_b32 v{vt+1}, 31, v0
    v_lshl_add_u32 v{vt}, v{vt+1}, 7, v{vt}
    v_add_u32 v{aS}, s{sT+16}, v{vt}
    v_mov_b32 v{sone}, 0x3f803f80
    s_and_b32 s{sSTP}, s{sBK}, 12
    s_add_u32 s{sSTP}, s{sSTP}, s{sBK}
    s_lshl_b32 s{sT+16}, s{sHH}, 2
    s_add_u32 s{sSTP}, s{sSTP}, s{sT+16}
    s_lshl_b32 s{sSTP}, s{sSTP}, 14
    s_lshl_b32 s{sT+16}, s{HW}, 9
    s_add_u32 s{sSTP}, s{sSTP}, s{sT+16}
    s_add_u32 s{sSTP}, s{sSTP}, {STP}
    v_lshrrev_b32 v{vt}, 5, v0
    v_lshlrev_b32 v{vt}, 11, v{vt}
    v_lshl_add_u32 v{aS+4}, v{vt+1}, 4, v{vt}
    s_lshl_b32 s{sT+16}, s{sCT}, 11
    s_cmp_eq_u32 s{sCT}, 2
    s_cselect_b32 s{sT+16}, {STX-STP}, s{sT+16}
    v_lshl_add_u32 v{aS+5}, v{vt+1}, 4, s{sT+16}""")
    for i in range(1,4): p(f"v_xor_b32 v{aS+i}, {16*i}, v{aS}")
    for i in range(4): p(f"v_mov_b32 v{sacc+i}, 0")
    if CFG['smode'] in ('dotx','dotc'):
        for i in range(2*CFG['nacc']): p(f"v_mov_b32 v{102+i}, 0")
def stats(c):
    if 'nostats' in CFG['xp']: return ['s_nop 0']*4
    for i in range(4): p(f"ds_read_b128 {vr(dS+4*i,4)}, v{aS+i} offset:{c*32768}")
    L=[]
    for i in range(4):
        g=f"s_waitcnt lgkmcnt({3-i})"
        for j in range(4):
            r=dS+4*i+j
            u=80+2*(j&1)
            if CFG['smode']=='dotx':
                a=102+2*((4*i+j)%CFG['nacc']); g+=f"\nv_dot2_f32_bf16 v{a}, v{r}, v{sone}, v{a}\nv_dot2_f32_bf16 v{a+1}, v{r}, v{r}, v{a+1}"
            elif CFG['smode']=='dotc':
                a=102+2*((4*i+j)%CFG['nacc']); g+=f"\nv_dot2c_f32_bf16 v{a}, v{r}, v{sone}\nv_dot2c_f32_bf16 v{a+1}, v{r}, v{r}"
            elif CFG['smode']=='dot': g+=f"\nv_dot2_f32_bf16 v{sacc+(j&1)}, v{r}, v{sone}, v{sacc+(j&1)}\nv_dot2_f32_bf16 v{sacc+2+(j&1)}, v{r}, v{r}, v{sacc+2+(j&1)}"
            elif CFG['smode']=='valu': g+=f"\nv_lshlrev_b32 v{u}, 16, v{r}\nv_and_b32 v{u+1}, 0xffff0000, v{r}\nv_add_f32 v{sacc}, v{sacc}, v{u}\nv_fmac_f32 v{sacc+2}, v{u}, v{u}\nv_add_f32 v{sacc+1}, v{sacc+1}, v{u+1}\nv_fmac_f32 v{sacc+3}, v{u+1}, v{u+1}"
            elif CFG['smode']=='pk': g+=f"\nv_lshlrev_b32 v{u}, 16, v{r}\nv_and_b32 v{u+1}, 0xffff0000, v{r}\nv_pk_add_f32 v[{sacc}:{sacc+1}], v[{sacc}:{sacc+1}], v[{u}:{u+1}]\nv_pk_fma_f32 v[{sacc+2}:{sacc+3}], v[{u}:{u+1}], v[{u}:{u+1}], v[{sacc+2}:{sacc+3}]"
        L.append(g)
    return L
def stats_red():
    t=sacc
    p(f"""s_nop 1
    v_add_f32 v{t}, v{t}, v{t+1}
    v_add_f32 v{t+1}, v{t+2}, v{t+3}
    v_mov_b32 v{t+2}, s{sTAG}
    s_nop 0
    v_permlane32_swap_b32 v{t}, v{t+1}
    s_nop 0
    v_add_f32 v{t}, v{t}, v{t+1}
    v_mov_b32 v{t+1}, v{t}
    s_nop 1
    v_permlane32_swap_b32 v{t}, v{t+1}""")
def stats_pub():
    t=sacc
    p(f"""s_mov_b64 exec, s[{sLO}:{sLO+1}]
    buffer_store_dwordx4 {vr(t,4)}, v{aS+5}, {S4(sWS)}, s{sSTP} offen sc1
    s_mov_b64 exec, -1""")
def stats_ld():
    return "\n".join(f"s_add_u32 s{sSTP+1}, s{sSTP}, {4096*i}\nbuffer_load_dwordx4 {vr(dS+4*i,4)}, v{aS+4}, {S4(sWS)}, s{sSTP+1} offen sc1" for i in range(4))
def stats_get():
    p(stats_ld()); OPS.extend(['stp']*4)
def stats_fin(t,B):
    vmwait('stp')
    lp=p.lab("stl"); ok=p.lab("stok"); rt=p.lab("strt")
    p(f"""s_mov_b32 s{B}, {SPIN}
    {lp}:
    v_xor_b32 v{t}, v{dS+2}, v{dS+6}
    v_xor_b32 v{t+1}, v{dS+10}, v{dS+14}
    v_xor_b32 v{t+2}, s{sTAG}, v{dS+2}
    v_xor_b32 v{t+3}, s{sTAG}, v{dS+10}
    v_or3_b32 v{t}, v{t}, v{t+1}, v{t+2}
    v_or_b32 v{t}, v{t}, v{t+3}
    v_cmp_ne_u32 vcc, 0, v{t}
    v_add_f32 v{t+1}, v{dS}, v{dS+4}
    v_add_f32 v{t+2}, v{dS+1}, v{dS+5}
    s_cbranch_vccnz {rt}
    {ok}:""")
    n0=len(p.L)
    p(f"{rt}:"); spin(B,lp,ok,1); p(stats_ld()); p(f"s_waitcnt vmcnt(0)\ns_branch {lp}")
    COLD.append("\n".join(p.L[n0:])); del p.L[n0:]
    if CFG['sf2']==3 and not CFG['sfe']: p("s_barrier")
    p(f"""v_add_f32 v{t+3}, v{dS+8}, v{dS+12}
    v_add_f32 v{t+4}, v{dS+9}, v{dS+13}
    v_add_f32 v{t+1}, v{t+1}, v{t+3}
    v_add_f32 v{t+2}, v{t+2}, v{t+4}
    s_nop 1
    v_permlane32_swap_b32 v{t+1}, v{t+2}
    s_nop 0
    v_add_f32 v{t+1}, v{t+1}, v{t+2}
    v_mul_f32 v{t+1}, {1/640!r}, v{t+1}
    v_mov_b32 v{t+2}, v{t+1}
    s_nop 1
    v_permlane32_swap_b32 v{t+1}, v{t+2}
    s_nop 0
    v_fma_f32 v{t+2}, -v{t+1}, v{t+1}, v{t+2}
    v_max_f32 v{t+2}, 0, v{t+2}""")
    if CFG['sf2']==2 and not CFG['sfe']: p("s_barrier")
    bf16r(t+2,t+2)
    p(f"v_add_f32 v{t+2}, 0x3727c5ac, v{t+2}")
    bf16r(t+2,t+2)
    p(f"""v_sqrt_f32 v{t+2}, v{t+2}
    v_xor_b32 v{t+1}, 0x80000000, v{t+1}""")
    if CFG['sf2']==4 and not CFG['sfe']: p("s_barrier")
    bf16r(t+2,t+2)
    p(f"""v_rcp_f32 v{t+5}, v{t+2}
    v_cvt_pk_bf16_f32 v{t+4}, v{t+1}, v{t+1}
    v_and_b32 v{t+3}, 31, v0
    s_lshl_b32 s{B}, s{HW}, 8
    s_add_u32 s{B}, s{B}, {L_SA}
    v_lshl_add_u32 v{t+1}, v{t+3}, 3, s{B}
    s_lshl_b32 s{B}, s{HW}, 7
    s_add_u32 s{B}, s{B}, {L_SM}
    v_lshl_add_u32 v{t+2}, v{t+3}, 2, s{B}
    {f"v_and_b32 v{t+4}, 0xffff0000, v{t+4}" if CFG['g16'] else ""}
    ds_write_b64 v{t+1}, v[{t+4}:{t+5}]
    ds_write_b32 v{t+2}, v{t+5} offset:{L_SR-L_SM}
    {f"ds_write_b32 v{t+2}, v{t+4}" if CFG['g16'] else ""}""" if CFG['g16'] else f"""v_rcp_f32 v{t+5}, v{t+2}
    v_cvt_pk_bf16_f32 v{t+4}, v{t+1}, v{t+1}
    v_and_b32 v{t+3}, 31, v0
    s_lshl_b32 s{B}, s{HW}, 8
    s_add_u32 s{B}, s{B}, {L_SA}
    v_lshl_add_u32 v{t+1}, v{t+3}, 3, s{B}
    s_lshl_b32 s{B}, s{HW}, 7
    s_add_u32 s{B}, s{B}, {L_SR}
    v_lshl_add_u32 v{t+2}, v{t+3}, 2, s{B}
    ds_write_b64 v{t+1}, v[{t+4}:{t+5}]
    ds_write_b32 v{t+2}, v{t+5}""")
vPT=21; vDUM=39
HS=sT+12; HA=28
def early():
    A=sT+20; B=sT+21; vt=10
    moe_role()
    p(f"""s_lshl_b32 s{A}, s{sSLOT}, 2
    s_add_u32 s{A}, s{A}, s{HW}
    s_mul_i32 s{A}, s{A}, 60
    v_min_u32 v{vt}, 59, v0
    v_add_u32 v{vt}, s{A}, v{vt}
    v_mul_u32_u24 v{vt+1}, 6554, v{vt}
    v_lshrrev_b32 v{vt+1}, 20, v{vt+1}
    v_mul_u32_u24 v{vt+2}, 160, v{vt+1}
    v_sub_u32 v{vt}, v{vt}, v{vt+2}
    v_lshlrev_b32 v{vt}, 7, v{vt}
    v_cmp_gt_u32 vcc, 32, v{vt+1}
    v_and_b32 v{vt+2}, 1, v{vt+1}
    v_mul_u32_u24 v{vt+2}, 20480, v{vt+2}
    v_lshrrev_b32 v{vt+3}, 4, v{vt+1}
    v_mul_u32_u24 v{vt+4}, 10240, v{vt+3}
    s_mul_i32 s{A}, s{sRQ}, 40960
    v_add3_u32 v{vt+2}, v{vt+2}, v{vt}, s{A}
    v_sub_u32 v{vt+2}, v{vt+2}, v{vt+4}
    v_add_u32 v{vt+4}, 163840, v{vt+2}
    v_min_u32 v{vt+2}, v{vt+2}, v{vt+4}
    v_mul_u32_u24 v{vt+3}, {KB}, v{vt+3}
    v_bfe_u32 v{vt+4}, v{vt+1}, 1, 3
    v_mul_u32_u24 v{vt+4}, 163840, v{vt+4}
    v_add3_u32 v{vt+2}, v{vt+2}, v{vt+3}, v{vt+4}
    s_mul_i32 s{A}, s{sRQ}, 20480
    s_sub_u32 s{A}, s{A}, 5120
    v_add_u32 v{vt}, s{A}, v{vt}
    v_add_u32 v{vt+4}, 81920, v{vt}
    v_min_u32 v{vt}, v{vt}, v{vt+4}
    v_and_b32 v{vt+3}, 15, v{vt+1}
    v_mul_u32_u24 v{vt+3}, 81920, v{vt+3}
    s_mov_b32 s{A}, {VB}
    v_add3_u32 v{vt+3}, v{vt+3}, v{vt}, s{A}
    v_cndmask_b32 v{vt+2}, v{vt+3}, v{vt+2}, vcc
    s_mul_i32 s{A}, s{sHH}, {8*163840}
    v_add_u32 v{vPT}, s{A}, v{vt+2}
""")
    if CFG['honly']:
        p(f"""s_lshl_b32 s{A}, s{sSLOT}, 2
        s_add_u32 s{A}, s{A}, s{HW}
        s_mul_i32 s{A}, s{A}, 60
        v_min_u32 v{vt}, 59, v0
        v_add_u32 v{vt}, s{A}, v{vt}
        v_mul_u32_u24 v{vt+2}, 160, v{vt+1}
        v_sub_u32 v{vt}, v{vt}, v{vt+2}
        v_and_b32 v{vt+2}, 1, v{vt+1}
        v_mul_u32_u24 v{vt+2}, 160, v{vt+2}
        v_add_u32 v{vt+2}, v{vt+2}, v{vt}
        v_lshlrev_b32 v{vt}, 1, v{vt}
        v_cndmask_b32 v{vt}, v{vt}, v{vt+2}, vcc
        s_cmp_lt_u32 s{sRQ}, 3
        s_cselect_b32 s{A}, 0, 80
        s_add_u32 s{A}, s{A}, 160
        v_subrev_u32 v{vt}, 80, v{vt}
        v_cmp_le_u32 vcc, s{A}, v{vt}
        v_cmp_lt_u32 s[{A}:{A+1}], 15, v{vt+1}
        v_mov_b32 v{vt+2}, {KH-KB}
        s_and_b64 vcc, vcc, s[{A}:{A+1}]
        s_nop 0
        v_cndmask_b32 v{vt+2}, 0, v{vt+2}, vcc
        v_add_u32 v{vPT}, v{vPT}, v{vt+2}""")
    if CFG['ht']: p(f"""s_lshl_b32 s{A}, s{sSLOT}, 2
    s_add_u32 s{A}, s{A}, s{HW}
    s_mul_i32 s{B}, s{A}, 20
    v_min_u32 v{vt}, 19, v0
    v_add_u32 v{vt}, s{B}, v{vt}
    v_mul_u32_u24 v{vt+1}, 13108, v{vt}
    v_lshrrev_b32 v{vt+1}, 20, v{vt+1}
    v_mul_u32_u24 v{vt+2}, 80, v{vt+1}
    v_sub_u32 v{vt}, v{vt}, v{vt+2}
    v_lshlrev_b32 v{vt}, 7, v{vt}
    v_cmp_gt_u32 vcc, 16, v{vt+1}
    v_and_b32 v{vt+2}, 1, v{vt+1}
    v_mul_u32_u24 v{vt+2}, 10240, v{vt+2}
    v_lshrrev_b32 v{vt+3}, 1, v{vt+1}
    v_mul_u32_u24 v{vt+3}, 163840, v{vt+3}
    s_mul_i32 s{B}, s{sRQ}, 40960
    s_add_u32 s{B}, s{B}, {KH+20480}
    v_add3_u32 v{vt+2}, v{vt+2}, v{vt+3}, s{B}
    v_and_b32 v{vt+3}, 15, v{vt+1}
    v_mul_u32_u24 v{vt+3}, 81920, v{vt+3}
    s_mul_i32 s{B}, s{sRQ}, 20480
    s_add_u32 s{B}, s{B}, {VH+10240}
    v_add_u32 v{vt+3}, s{B}, v{vt+3}
    v_cndmask_b32 v{vt+2}, v{vt+3}, v{vt+2}, vcc
    s_mul_i32 s{B}, s{sHH}, {8*163840}
    v_add3_u32 v{vHT}, v{vt}, v{vt+2}, s{B}
    s_lshl_b32 s{B}, s{sG}, 7
    s_add_u32 s{A}, s{A}, s{B}
    s_lshl_b32 s{A}, s{A}, 7
    s_add_u32 s{A}, s{A}, {FH}
    v_mov_b32 v{vt}, s{A}
    v_cmp_lt_u32 vcc, 19, v0
    s_nop 1
    v_cndmask_b32 v{vHT}, v{vHT}, v{vt}, vcc""")
    nsm=sum(CFG['npf']); per=(100-5*nsm)//2
    if per>0:
        p(f"""s_mul_i32 s{A}, s{sG}, 5
        s_lshr_b32 s{A}, s{A}, 1
        s_mul_i32 s{A}, s{A}, 5
        s_lshr_b32 s{B}, s{HW}, 1
        s_mul_i32 s{B}, s{B}, {per}
        s_add_u32 s{A}, s{A}, s{B}
        s_add_u32 s{A}, s{A}, {5*nsm}
        v_min_u32 v{vt}, {per-1}, v0
        v_add_u32 v{vt}, s{A}, v{vt}
        v_subrev_u32 v{vt+1}, 100, v{vt}
        v_min_u32 v{vt}, v{vt}, v{vt+1}
        s_lshl_b32 s{A}, s{sSLOT}, 1
        s_and_b32 s{B}, s{HW}, 1
        s_add_u32 s{A}, s{A}, s{B}
        s_mul_i32 s{A}, s{A}, 12800
        v_lshl_add_u32 v{vTW}, v{vt}, 7, s{A}""")
    ge=p.lab("mtge"); jn=p.lab("mtj")
    p(f"""v_min_u32 v{vt}, 59, v0
    v_mul_u32_u24 v{vt+1}, 86, v{vt}
    v_lshrrev_b32 v{vt+1}, 8, v{vt+1}
    v_mul_u32_u24 v{vt+1}, {3072-384}, v{vt+1}
    v_lshl_add_u32 v{vt}, v{vt}, 7, v{vt+1}
    s_mul_i32 s{A}, s{sSLOT}, {20*3072}
    s_mul_i32 s{B}, s{sG}, 384
    s_add_u32 s{A}, s{A}, s{B}
    v_add_u32 v{vTM}, s{A}, v{vt}
    s_sub_u32 s{A}, s{sMI}, {0 if CFG['dw3'] else 17}
    s_lshl_b32 s{A}, s{A}, {1 if CFG['dw3'] else 2}
    s_add_u32 s{A}, s{A}, s{HW}
    s_mul_i32 s{A}, s{A}, {24 if CFG['dw3'] else 35 if CFG['dtn'] else 26}
    v_min_u32 v{vt}, {47 if CFG['dw3'] else 63 if CFG['dtn'] else 51}, v0
    v_lshrrev_b32 v{vt+1}, 1, v{vt}
    v_add_u32 v{vt+1}, s{A}, v{vt+1}
    v_min_u32 v{vt+1}, 1535, v{vt+1}
    v_mul_u32_u24 v{vt+1}, 1280, v{vt+1}
    v_and_b32 v{vt}, 1, v{vt}
    v_lshl_add_u32 v{vt}, v{vt}, 7, v{vt+1}
    s_mul_i32 s{B}, s{sG}, 160
    s_and_b32 s{B}, s{B}, -128
    v_add_u32 v{vTD}, s{B}, v{vt}""")
    if CFG['dtn']: p(f"""s_add_u32 s{A}, s{A}, 32
    v_min_u32 v{vt}, 5, v0
    v_lshrrev_b32 v{vt+1}, 1, v{vt}
    v_add_u32 v{vt+1}, s{A}, v{vt+1}
    v_min_u32 v{vt+1}, 1535, v{vt+1}
    v_mul_u32_u24 v{vt+1}, 1280, v{vt+1}
    v_and_b32 v{vt}, 1, v{vt}
    v_lshl_add_u32 v{vt}, v{vt}, 7, v{vt+1}
    v_add_u32 v{vTD2}, s{B}, v{vt}""")
vTD=25; vHT=26; vTD2=27
vTW=22; vTM=24
def touch(va,srd_,pair,pol=''):
    if pair:
        p(f"buffer_load_dword v{vDUM}, v{va}, {S4(srd_)}, 0 offen nt\nbuffer_load_dword v{vDUM}, v{va}, {S4(srd_)}, 0 offen offset:64")
        return 2
    p(f"buffer_load_dword v{vDUM}, v{va}, {S4(srd_)}, 0 offen {pol}")
    return 1
def wtouch(win,isB):
    n=0
    if CFG['wtw']==win and 100-5*sum(CFG['npf'])>0:
        n+=touch(vTW,sWO,CFG['wpair'])
    if CFG['mtw']==win:
        if not isB:
            u=p.lab("tu"); j=p.lab("tj")
            p(f"s_cmp_eq_u32 s{HW}, 0\ns_cbranch_scc0 {u}")
            touch(vTM,sWG,CFG['mpair'])
            p(f"s_branch {j}\n{u}:")
            n+=touch(vTM,sWU,CFG['mpair'])
            p(f"{j}:")
    return n
def qkv_touch():
    if CFG['pt']==99: return
    if CFG['ht']==1: OPS.extend(['pt']*touch(vHT,sWS,0,''))
    OPS.extend(['pt']*touch(vPT,sWS,CFG['qpair'],CFG['tpol']))
    if CFG['ht']==2: OPS.extend(['pt']*touch(vHT,sWS,0,''))
vH=16
OPS=[]
def vmwait(*tags):
    last=max(i for i,t in enumerate(OPS) if t in tags)
    n=len(OPS)-1-last; assert n<64
    p(f"s_waitcnt vmcnt({n})")
HW=sT
def spin(cnt,lp,ok,sleep=0):
    p(f"s_sub_u32 s{cnt}, s{cnt}, 1\ns_cbranch_scc1 {ok}")
    if sleep: p(f"s_sleep {sleep}")
def lds_wait(addr_v,tmp,cnt,cmp,val,sleep=1):
    lp=p.lab("lw"); ok=p.lab("lwok")
    p(f"""s_mov_b32 s{cnt}, {SPIN*4}
    {lp}:
    ds_read_b32 v{tmp}, v{addr_v}
    s_waitcnt lgkmcnt(0)
    v_cmp_{cmp}_u32 vcc, {val}, v{tmp}
    s_nop 0
    s_cbranch_vccz {ok}""")
    spin(cnt,lp,ok,sleep)
    p(f"s_branch {lp}\n{ok}:")
sHL,sHF,sHO,sPH,sHD,sT0=range(sT+1,sT+7)
def att_ids():
    p(f"""s_lshr_b32 s{sHL}, s{sSLOT}, 1
    s_and_b32 s{sHF}, s{sSLOT}, 1
    s_and_b32 s{sHO}, s{sHL}, 1
    s_lshr_b32 s{sPH}, s{sHL}, 1
    s_lshl_b32 s{sHD}, s{sHH}, 3
    s_add_u32 s{sPH}, s{sPH}, s{sHD}
    s_lshl_b32 s{sHD}, s{sHH}, 4
    s_add_u32 s{sHD}, s{sHD}, s{sHL}
    s_lshl_b32 s{sT0}, s{sRQ}, 1
    s_add_u32 s{sT0}, s{sT0}, s{sHF}
    s_lshl_b32 s{sT0}, s{sT0}, 3""")
def flag_addr(vd,vt,withq,A,B,C):
    flag_nib(withq,A,B,C)
    p(f"""v_and_b32 v{vt}, 60, v0
    v_min_u32 v{vt}, 20, v{vt}
    v_bfe_u32 v{vt}, s{A}, v{vt}, 4
    v_and_b32 v{vd}, 3, v0
    v_lshlrev_b32 v{vd}, 2, v{vd}
    v_lshl_add_u32 v{vd}, v{vt}, 7, v{vd}""")
def flag_nib(withq,A,B,C):
    p(f"""s_lshr_b32 s{A}, s{sHL}, 1
    s_mul_i32 s{A}, s{A}, 5
    s_lshl_b32 s{B}, s{sHO}, 1
    s_add_u32 s{A}, s{A}, s{B}
    s_add_u32 s{B}, s{A}, 2
    s_lshr_b32 s{A}, s{A}, 3
    s_lshr_b32 s{B}, s{B}, 3
    s_lshl_b32 s{B}, s{B}, 4
    s_or_b32 s{A}, s{A}, s{B}
    s_add_u32 s{B}, s{A}, 0x55
    s_lshl_b32 s{C}, s{B}, 8
    s_or_b32 s{A}, s{C}, s{A if withq else B}
    s_mul_i32 s{B}, s{sHL}, 20
    s_add_u32 s{C}, s{B}, 19
    s_lshr_b32 s{B}, s{B}, 6
    s_lshr_b32 s{C}, s{C}, 6
    s_lshl_b32 s{C}, s{C}, 4
    s_or_b32 s{B}, s{B}, s{C}
    s_add_u32 s{B}, s{B}, 0xaa
    s_lshl_b32 s{B}, s{B}, 16
    s_or_b32 s{A}, s{A}, s{B}""")
def flag_poll(va,vt,soff,cnt,first=True,sleep=0):
    lp=p.lab("fp"); ok=p.lab("fpok");
    p(f"s_mov_b32 s{cnt}, {SPIN}")
    if not first:
        md=p.lab("fpm"); p(f"s_branch {md}")
    p(f"""{lp}:
    buffer_load_dword v{vt}, v{va}, {S4(sWS)}, s{soff} offen sc1""")
    if not first: p(f"{md}:")
    p(f"""s_waitcnt vmcnt(0)
    v_cmp_ne_u32 vcc, s{sTAG}, v{vt}
    s_nop 0
    s_cbranch_vccz {ok}""")
    spin(cnt,lp,ok,sleep)
    p(f"s_branch {lp}\n{ok}:")
def flag_poll2(va,vt,soff,cnt,n=2,gap=0):
    lp=p.lab("fq"); ok=p.lab("fqok")
    ld=lambda i: f"buffer_load_dword v{vt+i}, v{va}, {S4(sWS)}, s{soff} offen sc1"
    p(f"s_mov_b32 s{cnt}, {SPIN}")
    for i in range(n-1):
        p(ld(i))
        if gap: p(f"s_sleep {gap}")
    p(f"{lp}:")
    for i in range(n):
        p(f"""{ld((i+n-1)%n)}
        s_waitcnt vmcnt({n-1})
        v_cmp_ne_u32 vcc, s{sTAG}, v{vt+i}
        s_nop 0
        s_cbranch_vccz {ok}""")
    spin(cnt,lp,ok)
    p(f"s_branch {lp}\n{ok}:")
def kv_dma(aLin,aTl,sK,sV,sL,A,B,sHO=sHO):
    p(f"""s_mul_i32 s{A}, s{sHO}, 1536
    s_add_u32 s{A}, s{A}, s{sK}
    s_mov_b32 m0, s{sL}
    s_add_u32 s{B}, s{A}, 1536
    buffer_load_dwordx4 v{aLin}, {S4(sWS)}, s{A} offen {CFG['ldp']} lds
    buffer_load_dwordx4 v{aLin}, {S4(sWS)}, s{B} offen offset:1024 {CFG['ldp']} lds
    s_sub_u32 s{A}, s{sK}, 2048
    s_sub_u32 s{B}, s{sV}, 3072
    buffer_load_dwordx4 v{aTl}, {S4(sWS)}, s{A} offen offset:2048 {CFG['ldp']} lds
    buffer_load_dwordx4 v{aLin}, {S4(sWS)}, s{B} offen offset:3072 {CFG['ldp']} lds
    s_add_u32 m0, s{sL}, 4096
    s_add_u32 s{B}, s{sV}, 1024
    buffer_load_dwordx4 v{aLin}, {S4(sWS)}, s{B} offen {CFG['ldp']} lds
    s_mov_b64 exec, s[{sLO}:{sLO+1}]
    buffer_load_dwordx4 v{aLin}, {S4(sWS)}, s{B} offen offset:1024 {CFG['ldp']} lds
    s_mov_b64 exec, -1""")
def kv_addr(aLin,aTl,t):
    p(f"""v_lshlrev_b32 v{aLin}, 4, v0
    v_lshrrev_b32 v{t}, 5, v0
    v_mul_u32_u24 v{t}, {2560-512}, v{t}
    v_add3_u32 v{aTl}, v{aLin}, v{t}, s{sK1024}""")
sK1024=sT+21

def halo_cond(A,B):
    p(f"""s_lshr_b32 s{A}, 0x8ccc, s{sBK}
    s_cmp_gt_u32 s{sCT}, 2
    s_cselect_b32 s{A}, s{A}, 0
    s_and_b32 s{A}, s{A}, 1""")
def halo_flag(vt,A,B,C):
    sk=p.lab("nohalo")
    halo_cond(A,B)
    p(f"""s_cbranch_scc0 {sk}
    s_lshl_b32 s{A}, s{sCT}, 1
    s_add_u32 s{A}, s{A}, s{HW}
    s_sub_u32 s{A}, s{A}, 3
    s_lshl_b32 s{C}, s{sG}, 4
    s_add_u32 s{A}, s{A}, s{C}
    s_lshl_b32 s{A}, s{A}, 2
    s_add_u32 s{A}, s{A}, s{sRB}
    s_lshl_b32 s{A}, s{A}, 8
    s_add_u32 s{A}, s{A}, {FH}
    s_lshl_b32 s{B}, s{HW}, 2
    s_add_u32 s{B}, s{B}, {F_STG-8}
    v_mov_b32 v{vt}, s{B}
    v_lshlrev_b32 v{vt+2}, 7, v0
    v_mov_b32 v{vt+3}, s{sTAG}""")
    lds_wait(vt,vt+1,C,'gt',2,0)
    p(f"""s_mov_b64 exec, 3
    buffer_store_dword v{vt+3}, v{vt+2}, {S4(sWS)}, s{A} offen sc1
    s_mov_b64 exec, -1""")
    STAMP('halo')
    p(f"{sk}:")
def halo_copy(vt,A,B,C,mid):
    sk=p.lab("nohalo"); jn=p.lab("halo_j"); D=168; sD=sT+12; sFH=sT+13
    p(f"s_mov_b32 s{sFH}, 0")
    halo_cond(A,B)
    p(f"""s_cbranch_scc0 {sk}
    s_lshl_b32 s{A}, s{sCT}, 1
    s_add_u32 s{A}, s{A}, s{HW}
    s_sub_u32 s{A}, s{A}, 3
    s_cmp_lt_u32 s{A}, 10
    s_cselect_b32 s{sD}, 1, 0
    s_lshl_b32 s{sD}, 1280, s{sD}
    s_lshl_b32 s{C}, s{sG}, 4
    s_add_u32 s{A}, s{A}, s{C}
    s_lshl_b32 s{A}, s{A}, 2
    s_add_u32 s{A}, s{A}, s{sRB}
    s_lshl_b32 s{A}, s{A}, 8
    s_add_u32 s{sFH}, s{A}, {FH}
    s_lshl_b32 s{B}, s{HW}, 2
    s_add_u32 s{B}, s{B}, {F_STG-8}
    v_mov_b32 v{vt}, s{B}
    s_mul_i32 s{B}, s{HW}, {2*9216}
    s_add_u32 s{B}, s{B}, {L_WO-4*9216}
    v_lshl_add_u32 v{vt+2}, v0, 4, s{B}
    v_mov_b32 v{vt+3}, {F_HR}
    v_mov_b32 v{vt+4}, 1""")
    lds_wait(vt,vt+1,C,'gt',2,0)
    STAMP('hs1')
    for wr in range(2):
        for i in range(9): p(f"ds_read_b128 {vr(D+36*wr+4*i,4)}, v{vt+2} offset:{wr*9216+i*1024}")
        if wr==0: p("s_waitcnt lgkmcnt(6)")
    p(f"v_add_u32 v{vt}, 8, v{vt}")
    lds_wait(vt,vt+1,C,'gt',2,0)
    STAMP('hs2')
    for wr in range(2):
        for i in range(8): p(f"buffer_store_dwordx4 {vr(D+36*wr+4*i,4)}, v{D+36*wr+32+(i&3)}, {S4(sWS)}, {'s%d'%sD if i>>2 else 0} offen sc1")
    p(f"""s_mov_b64 exec, 1
    ds_add_u32 v{vt+3}, v{vt+4}
    s_mov_b64 exec, -1""")
    p(f"{sk}:")
    mid()
    p(f"""s_cmp_eq_u32 s{sFH}, 0
    s_cbranch_scc1 {jn}
    v_mov_b32 v{vt+2}, 0
    v_mov_b32 v{vt+4}, s{sTAG}
    s_waitcnt vmcnt(0)
    s_mov_b64 exec, 1
    buffer_store_dword v{vt+4}, v{vt+2}, {S4(sWS)}, s{sFH} offen sc1
    s_mov_b64 exec, -1""")
    STAMP('halo')
    lds_wait(vt+3,vt+1,C,'gt',2,0)
    p(f"{jn}:")
def own_setup(aF2,vt):
    A=sT+7; B=sT+8; sF,sK,sV,sL=range(sT+12,sT+16)
    flag_addr(aF2,vt,1,A,B,sT+18)
    p(f"""s_lshl_b32 s{sF}, s{sG}, 11
    s_lshl_b32 s{A}, s{sHF}, 4
    s_add_u32 s{sF}, s{sF}, s{A}
    s_add_u32 s{sF}, s{sF}, {FL}
    s_lshl_b32 s{A}, s{HW}, 1
    s_add_u32 s{A}, s{A}, s{sT0}
    s_mul_i32 s{sK}, s{A}, 2560
    s_mul_i32 s{sV}, s{A}, 1280
    s_mul_i32 s{A}, s{sPH}, {64*2560}
    s_add_u32 s{sK}, s{sK}, s{A}
    s_add_u32 s{sK}, s{sK}, {KB}
    s_mul_i32 s{A}, s{sHD}, 81920
    s_add_u32 s{sV}, s{sV}, s{A}
    s_add_u32 s{sV}, s{sV}, {VB}
    s_mul_i32 s{sL}, s{HW}, 5632
    s_add_u32 s{sL}, s{sL}, {L_KV+4*5632}""")
def own_kv(aLin,aTl,aF2,vt,sHO_):
    A=sT+7; B=sT+8; sF,sK,sV,sL=range(sT+12,sT+16); C=sT+18
    p(f"v_mov_b32 v{vt}, {F_FS}\nv_mov_b32 v{vt+1}, 1")
    flag_poll(aF2,vt+2,sF,C)
    p(f"ds_write_b32 v{vt}, v{vt+1}")
    STAMP('hfs')
    kv_dma(aLin,aTl,sK,sV,sL,A,B,sHO_)
    p(f"""s_mov_b64 exec, 1
    v_mov_b32 v{vt}, {F_G1}
    s_waitcnt vmcnt(0)
    ds_add_u32 v{vt}, v{vt+1}
    s_mov_b64 exec, -1""")
    STAMP('hg1')
def helperA(steps):
    A=sT+7; B=sT+8; vt=10
    def hook(c):
        if c==CFG['pt']:
            qkv_touch(); OPS.extend(['pt']*wtouch('w1',0))
        if c==CFG['wts']: OPS.extend(['pt']*touch(vTW,sWO,0))
        if CFG['dcs'] and c==200+CFG['dcg']:
            p(f"""s_lshl_b32 s{sG_}, s{sG}, 3
            s_add_u32 s{sG_}, s{sG_}, s{sCT}
            s_lshl_b32 s{sG_}, s{sG_}, 1
            s_cmp_lg_u32 s{sCT}, 2
            s_cselect_b32 s{A}, s{HW}, 0
            s_add_u32 s{sG_}, s{sG_}, s{A}
            s_lshl_b32 s{sG_}, s{sG_}, 11
            s_add_u32 s{sG_}, s{sG_}, {CSX}
            v_lshlrev_b32 v{vG+8}, 3, v0
            {csld}"""); OPS.extend(['cs']*4)
    vG=100; sG_=sT+13
    csld="\n".join(f"buffer_load_dwordx2 {vr(vG+2*i,2)}, v{vG+8}, {S4(sWS)}, s{sG_} offen offset:{512*i} sc1" for i in range(4))
    steps(hook,0)
    def cs_fin():
        vmwait('cs')
        lp=p.lab("csl"); ok=p.lab("csok"); rt=p.lab("csrt")
        p(f"""s_mov_b32 s{B}, {SPIN}
        s_lshl_b32 s{A}, s{HW}, 8
        s_add_u32 s{A}, s{A}, {L_CS}
        v_lshl_add_u32 v{vt+3}, v0, 2, s{A}
        {lp}:
        v_xor_b32 v{vt}, v{vG+1}, v{vG+3}
        v_xor_b32 v{vt+1}, v{vG+5}, v{vG+7}
        v_xor_b32 v{vG+1}, s{sTAG}, v{vG+1}
        v_xor_b32 v{vG+5}, s{sTAG}, v{vG+5}
        v_or3_b32 v{vt}, v{vt}, v{vt+1}, v{vG+1}
        v_or_b32 v{vt}, v{vt}, v{vG+5}
        v_cmp_ne_u32 vcc, 0, v{vt}
        v_add_f32 v{vt+1}, v{vG}, v{vG+2}
        v_add_f32 v{vt+2}, v{vG+4}, v{vG+6}
        s_cbranch_vccnz {rt}
        {ok}:
        v_add_f32 v{vt+1}, v{vt+1}, v{vt+2}
        ds_write_b32 v{vt+3}, v{vt+1}""")
        n0=len(p.L)
        p(f"{rt}:"); spin(B,lp,ok,1); p(csld); p(f"s_waitcnt vmcnt(0)\ns_branch {lp}")
        COLD.append("\n".join(p.L[n0:])); del p.L[n0:]
        STAMP('csf')
    for c in (8,9):
        vmwait(c); p("s_barrier"); STAMP('ld%d'%c)
        if c==9: STAMP('hb9')
        if c==8 and CFG['hpr']: p(f"s_setprio {CFG['hpr']}")
        if c==8 and CFG['dcs']: cs_fin()
        if c==8 and CFG['sfe']==2: stats_fin(vt,B)
        hook(c)
        if c==8 and CFG['sfe']==1: stats_fin(vt,B)
    if CFG['sf2']==1 or (CFG['sf2'] and CFG['sfe']): p("s_barrier")
    if not CFG['sfe']: stats_fin(vt,B)
    STAMP('h10')
    p("s_waitcnt lgkmcnt(0)\ns_barrier" if CFG['sf2'] else "s_waitcnt lgkmcnt(0)\ns_barrier\ns_barrier" if CFG['epi2']>1 else "s_barrier\ns_waitcnt lgkmcnt(0)\ns_barrier")
    STAMP('hE1')
    if CFG['hpr']: p("s_setprio 0")
    if CFG['hsp']&2: p(f"v_mov_b32 v{vt}, {L_MODE}\nds_read_b32 v{vt+1}, v{vt}")
    att_ids()
    if CFG['hsp']&2: p(f"s_waitcnt lgkmcnt(0)\nv_readfirstlane_b32 s{sMODE}, v{vt+1}")
    aLin=6; aTl=7; aF=8; D=40
    p(f"s_mov_b32 s{sK1024}, 1024")
    kv_addr(aLin,aTl,vt)
    flag_addr(aF,vt,0,A,B,sT+17)
    if CFG['hsp']: flag_nib(1,A,B,sT+17); p(f"s_mov_b32 s{sT+21}, s{A}")
    if CFG['hkv']: own_setup(9,vt)
    p(f"v_mov_b32 v{vt+1}, 1")
    sF=sT+9; sK=sT+10; sV=sT+11; sL=sT+16; C=sT+17; sD=sT+12
    dn=p.lab("g2done"); h1=p.lab("rem"); jn=p.lab("remj")
    assert not (CFG['hsent'] or CFG['hkv'])
    p(f"""v_and_b32 v{vt+2}, 4, v{aF}
    v_and_b32 v{aF}, -128, v{aF}
    s_cmp_lg_u32 s{HW}, 0
    s_cbranch_scc1 {h1}
    v_add_u32 v{aF}, v{aF}, v{vt+2}
    s_mul_i32 s{A}, s{sHF}, 24
    s_lshl_b32 s{sF}, s{sG}, 11
    s_add_u32 s{sF}, s{sF}, s{A}
    s_add_u32 s{sF}, s{sF}, {FL}
    {f"s_cmp_eq_u32 s{sT0}, 56" if CFG['honly'] else ""}
    {f"s_cselect_b32 s{B}, 0, {KH-KB}" if CFG['honly'] else f"s_mov_b32 s{B}, 0"}
    s_branch {jn}
    {h1}:
    v_lshlrev_b32 v{aF}, 3, v{aF}
    s_lshl_b32 s{A}, s{sHF}, 2
    s_add_u32 s{A}, s{A}, s{sG}
    s_sub_u32 s{A}, s{A}, 2
    s_and_b32 s{A}, s{A}, 7
    s_lshl_b32 s{sF}, s{A}, 14
    s_mul_i32 s{A}, s{sHF}, -768
    s_add_u32 s{sF}, s{sF}, s{A}
    s_add_u32 s{sF}, s{sF}, {FH+768}
    s_mov_b32 s{B}, {KH-KB}
    {jn}:
    s_lshl_b32 s{A}, s{HW}, 2
    s_sub_u32 s{sK}, -2, s{A}
    s_cmp_eq_u32 s{sHF}, 0
    s_cselect_b32 s{A}, s{sK}, s{A}
    s_mul_i32 s{sD}, s{sHF}, 5120
    s_sub_u32 s{sD}, s{sD}, 2560
    s_add_u32 s{A}, s{A}, s{sT0}
    s_mul_i32 s{sK}, s{A}, 2560
    s_mul_i32 s{sV}, s{A}, 1280
    s_mul_i32 s{A}, s{sPH}, {64*2560}
    s_add_u32 s{sK}, s{sK}, s{A}
    s_add_u32 s{sK}, s{sK}, s{B}
    s_add_u32 s{sK}, s{sK}, {KB}
    s_mul_i32 s{A}, s{sHD}, 81920
    s_add_u32 s{sV}, s{sV}, s{A}
    s_add_u32 s{sV}, s{sV}, s{B}
    s_add_u32 s{sV}, s{sV}, {VB}
    s_mul_i32 s{sL}, s{HW}, {-2*5632}
    s_add_u32 s{sL}, s{sL}, {L_KV+3*5632}""")
    if CFG['hsp']&2:
        sk=p.lab("noown"); sp=p.lab("ownp"); so=p.lab("ownok"); O=[sT+13,sT+14,sT+15,sT+18,sT+19,sT+20]; Rq=[4,8,12,28,40,96]
        halo_cond(A,B)
        p(f"""s_and_b32 s{A}, s{A}, s{HW}
        s_andn2_b32 s{A}, s{A}, s{sMODE}
        s_cbranch_scc0 {sk}
        s_lshl_b32 s{A}, s{sG}, 11
        s_add_u32 s{A}, s{A}, {FL}
        s_lshl_b32 s{B}, s{sHF}, 4
        s_add_u32 s{B}, s{B}, s{A}
        s_add_u32 s{A}, s{A}, 8""")
        for i in range(6): p(f"s_bfe_u32 s{O[i]}, s{sT+21}, {hex((4*i)|(4<<16))}\ns_lshl_b32 s{O[i]}, s{O[i]}, 7\ns_add_u32 s{O[i]}, s{O[i]}, s{B if i<2 else A}")
        assert 'FS' not in CFG['gm']+CFG['gr']
        if CFG['ogate']: p(f"v_mov_b32 v{vt}, {F_FS}"); lds_wait(vt,vt+5,C,'gt',CFG['ogate'],1)
        p(f"v_mov_b32 v{vt}, {F_OWN}\ns_mov_b32 s{C}, {SPIN}\n{sp}:")
        for i in range(6): p(f"s_load_dwordx4 s[{Rq[i]}:{Rq[i]+3}], s[{sWS}:{sWS+1}], s{O[i]} glc")
        p("s_waitcnt lgkmcnt(0)")
        for i in range(6):
            r=Rq[i]
            p(f"s_and_b64 s[{A+1}:{A+2}], s[{r}:{r+1}], s[{r+2}:{r+3}]" if 0 else "")
            p(f"s_xor_b64 s[{r}:{r+1}], s[{r}:{r+1}], s[{r+2}:{r+3}]\ns_xor_b32 s{r+2}, s{r+2}, s{sTAG}\ns_xor_b32 s{r+3}, s{r+3}, s{sTAG}\ns_or_b64 s[{r}:{r+1}], s[{r}:{r+1}], s[{r+2}:{r+3}]")
            if i: p(f"s_or_b64 s[4:5], s[4:5], s[{r}:{r+1}]")
        p(f"""s_cbranch_scc0 {so}
        s_sub_u32 s{C}, s{C}, 1
        {f"s_sleep {CFG['hsl2']}" if CFG['hsl2'] else ""}
        s_cbranch_scc0 {sp}
        {so}:
        ds_write_b32 v{vt}, v{vt+1}""")
        if CFG['prof']: p("s_mov_b64 s[96:97], 0\ns_mov_b64 s[98:99], 0")
        STAMP('own')
        p(f"{sk}:")
    if CFG['lay'] and CFG['padk']==3:
        p(f"s_cmp_eq_u32 s{HW}, 1\ns_cbranch_scc1 L_pv0\nL_pkb0:")
        STAMP('pk')
    p(f"s_cmp_eq_u32 s{sT0}, 0\ns_cbranch_scc1 {dn}")
    def both():
        kv_dma(aLin,aTl,sK,sV,sL,A,B)
        p(f"""s_add_u32 s{sK}, s{sK}, s{sD}
        s_add_u32 s{sK}, s{sK}, s{sD}
        s_add_u32 s{sV}, s{sV}, s{sD}
        s_sub_u32 s{sL}, s{sL}, 5632""")
        if CFG['hs2']:
            sk=p.lab("nob"); lp=p.lab("bp"); ok=p.lab("bpok")
            p(f"""s_cmp_eq_u32 s{HW}, 0
            s_cbranch_scc1 {sk}
            v_mov_b32 v{vt+2}, {F_M+4}""")
            if CFG['hs2p']:
                assert CFG['hsp']&1
                sp=p.lab("sbp")
                for i in range(4): p(f"s_add_u32 s{8+i}, s{8+i}, 128")
                if CFG['hs2p']==1: p(f"s_waitcnt vmcnt(0)\nds_write_b32 v{vt+2}, v{vt+1}")
                p(f"s_mov_b32 s{C}, 256\n{sp}:")
                for i in range(4): p(f"s_load_dword s{4+i}, s[{sWS}:{sWS+1}], s{8+i} glc")
                p("s_waitcnt lgkmcnt(0)")
                for i in range(4): p(f"s_xor_b32 s{4+i}, s{4+i}, s{sTAG}")
                p(f"""s_or_b32 s4, s4, s5
                s_or_b32 s6, s6, s7
                s_or_b32 s4, s4, s6
                s_cbranch_scc0 {ok}
                s_sub_u32 s{C}, s{C}, 1
                {f"s_sleep {CFG['hs2s']}" if CFG['hs2s'] else ""}
                s_cbranch_scc0 {sp}""")
            p(f"""s_mov_b32 s{C}, {SPIN}
            {lp}:
            buffer_load_dword v{vt+5}, v{aF}, {S4(sWS)}, s{sF} offen offset:128 sc1
            s_waitcnt vmcnt(0)
            ds_write_b32 v{vt+2}, v{vt+1}
            v_cmp_ne_u32 vcc, s{sTAG}, v{vt+5}
            s_nop 0
            s_cbranch_vccz {ok}""")
            spin(C,lp,ok,CFG['hs2s'])
            p(f"s_branch {lp}\n{ok}:")
            STAMP('hfb')
            if CFG['hs2p']==2:
                kv_dma(aLin,aTl,sK,sV,sL,A,B)
                p(f"s_waitcnt vmcnt(6)\nds_write_b32 v{vt+2}, v{vt+1}\ns_branch L_hs2j")
            p(f"{sk}:")
        kv_dma(aLin,aTl,sK,sV,sL,A,B)
        if CFG['hs2p']==2: p("L_hs2j:")
    GT=dict(G1=(F_G1,4),FS=(F_FS,1),FS4=(F_FS,4),M=(F_M,1))
    if CFG['gm']!='no' or CFG['gr']!='no':
        g0=p.lab("gate0"); g1=p.lab("gate1")
        p(f"s_cmp_lg_u32 s{HW}, 0\ns_cbranch_scc1 {g0}")
        if CFG['gm']!='no': p(f"v_mov_b32 v{vt}, {GT[CFG['gm']][0]}"); lds_wait(vt,vt+5,C,'gt',GT[CFG['gm']][1],0)
        p(f"s_branch {g1}\n{g0}:")
        if CFG['gr']!='no': p(f"v_mov_b32 v{vt}, {GT[CFG['gr']][0]}"); lds_wait(vt,vt+5,C,'gt',GT[CFG['gr']][1],0)
        p(f"{g1}:")
    if CFG['hsp']&1:
        vp=p.lab("vecp"); sp=p.lab("scp"); so=p.lab("scok")
        p(f"s_cmp_eq_u32 s{HW}, 0\ns_cbranch_scc1 {vp}")
        for i in range(4): p(f"s_bfe_u32 s{8+i}, s{sT+21}, {hex((8+4*i)|(4<<16))}\ns_lshl_b32 s{8+i}, s{8+i}, 10\ns_add_u32 s{8+i}, s{8+i}, s{sF}")
        p(f"s_mov_b32 s{C}, 256\n{sp}:")
        for i in range(4): p(f"s_load_dword s{4+i}, s[{sWS}:{sWS+1}], s{8+i} glc")
        p("s_waitcnt lgkmcnt(0)")
        for i in range(4): p(f"s_xor_b32 s{4+i}, s{4+i}, s{sTAG}")
        p(f"""s_or_b32 s4, s4, s5
        s_or_b32 s6, s6, s7
        s_or_b32 s4, s4, s6
        s_cbranch_scc0 {so}
        s_sub_u32 s{C}, s{C}, 1
        {f"s_sleep {CFG['hsl']}" if CFG['hsl'] else ""}
        s_cbranch_scc0 {sp}
        {vp}:""")
        flag_poll(aF,vt+5,sF,C,sleep=CFG['hsl'])
        p(f"{so}:")
    elif CFG['hpoll']: flag_poll2(aF,vt+5,sF,C,CFG['hpoll'],CFG['hsl'])
    else: flag_poll(aF,vt+5,sF,C,sleep=CFG['hsl'])
    STAMP('hf')
    both()
    if CFG['wpause']: p(f"s_lshl_b32 s{A}, s{HW}, 2\ns_add_u32 s{A}, s{A}, {F_RI-4}\nv_mov_b32 v{vt+2}, s{A}\nds_write_b32 v{vt+2}, v{vt+1}")
    if CFG['mtw'] in ('RI','MI'):
        nt_=p.lab("nori"); d2=p.lab("g2d")
        p(f"s_cmp_eq_u32 s{HW}, {int(CFG['mtw']=='RI')}\ns_cbranch_scc0 {nt_}")
        touch(vTM,sWG,0); touch(vTM,sWU,0)
        p(f"s_waitcnt vmcnt(2)\ns_branch {d2}\n{dn}:\ns_cmp_eq_u32 s{HW}, {int(CFG['mtw']=='RI')}\ns_cbranch_scc0 {d2}")
        touch(vTM,sWG,0); touch(vTM,sWU,0)
        p(f"s_branch {d2}\n{nt_}:"); dn=d2
    p(f"""s_waitcnt vmcnt(0)
    {dn}:
    s_lshl_b32 s{A}, s{HW}, {3 if CFG['hs2'] else 2}
    s_add_u32 s{A}, s{A}, {F_M}
    v_mov_b32 v{vt}, {F_G2}
    v_mov_b32 v{vt+2}, s{A}
    s_mov_b64 exec, 1
    ds_write_b32 v{vt+2}, v{vt+1}
    {f"ds_write_b32 v{vt+2}, v{vt+1} offset:{F_RI-4-F_M}" if CFG['wpause'] else ""}
    ds_add_u32 v{vt}, v{vt+1}
    s_mov_b64 exec, -1""")
    STAMP('g2')
    if CFG['lclr']:
        sk=p.lab("nolc"); na=p.lab("lcna"); lp=p.lab("lcp"); ok=p.lab("lcok"); D=40
        p(f"""s_cmp_lg_u32 s{HW}, 0
        s_cbranch_scc1 {sk}
        v_mov_b32 v{vt}, {F_CC}
        s_lshr_b32 s{A}, s2, 2
        s_lshl_b32 s{A}, s{A}, 5
        s_and_b32 s{B}, s2, 3
        s_add_u32 s{A}, s{A}, s{B}
        s_lshl_b32 s{A}, s{A}, 2
        s_add_u32 s{A}, s{A}, {H2B}
        s_mov_b32 s{B}, {H2B}
        v_mov_b32 v{D+4}, s{sTAG}
        v_mov_b32 v{D+5}, 0
        v_lshlrev_b32 v{D+6}, 7, v0""")
        lds_wait(vt,vt+5,C,'gt',4,1)
        p(f"""s_mov_b64 exec, 1
        buffer_store_dword v{D+4}, v{D+5}, {S4(sWS)}, s{A} offen sc1
        s_mov_b64 exec, -1""")
        STAMP('lc1')
        g=dict(G2=(F_G2,2),D1=(F_DONE,1),WOR=(F_WOR,2),WOD=(F_WOD,2))[CFG['lcg']]
        p(f"""s_cmp_eq_u32 s{sT0}, 0
        s_cselect_b32 s{A}, {F_DONE-L_FLG}, {g[0]-L_FLG}
        s_cselect_b32 s{sD}, 4, {g[1]}
        s_add_u32 s{A}, s{A}, {L_FLG}
        v_mov_b32 v{vt}, s{A}""")
        lds_wait(vt,vt+5,C,'gt',f"s{sD}",2)
        p(f"""s_mov_b32 s{C}, {SPIN}
        {lp}:
        buffer_load_dwordx4 {vr(D,4)}, v{D+6}, {S4(sWS)}, s{B} offen sc1
        s_waitcnt vmcnt(0)
        v_xor_b32 v{D}, v{D}, v{D+1}
        v_xor_b32 v{D+2}, v{D+2}, v{D+3}
        v_xor_b32 v{D+1}, s{sTAG}, v{D+1}
        v_xor_b32 v{D+3}, s{sTAG}, v{D+3}
        v_or3_b32 v{D}, v{D}, v{D+1}, v{D+2}
        v_or_b32 v{D}, v{D}, v{D+3}
        v_cmp_ne_u32 vcc, 0, v{D}
        s_nop 0
        s_cbranch_vccz {ok}""")
        spin(C,lp,ok,CFG['lcs'])
        p(f"""s_branch {lp}
        {ok}:
        v_mov_b32 v{vt}, {F_DONE}
        s_mov_b64 exec, 1
        ds_add_u32 v{vt}, v{vt+1}
        s_mov_b64 exec, -1""")
        STAMP('lc2'); COUNT('nlc',C,SPIN)
        p(f"{sk}:")
    if CFG['mtw']=='sm':
        u=p.lab("smu"); j=p.lab("smj")
        def run(r,n,f):
            for i in range(n):
                if CFG['smx']==2: p(f"s_load_dwordx2 s[100:101], s[{r}:{r+1}], s{A} offset:{f(i)+60}")
                else: p(f"s_load_dword s100, s[{r}:{r+1}], s{A} offset:{f(i)}")
        p(f"""s_mul_i32 s{A}, s{sSLOT}, {20*3072}
        s_mul_i32 s{B}, s{sG}, 384
        s_add_u32 s{A}, s{A}, s{B}
        s_cmp_eq_u32 s{HW}, 0
        s_cbranch_scc0 {u}""")
        run(sWG,60,lambda i:(i//3)*3072+(i%3)*128)
        p(f"s_branch {j}\n{u}:")
        run(sWU,60,lambda i:(i//3)*3072+(i%3)*128)
        p(f"{j}:")
        if CFG['smd']:
            p(f"""s_lshl_b32 s{A}, s{sSLOT}, 1
            s_add_u32 s{A}, s{A}, s{HW}
            s_mul_i32 s{A}, s{A}, {24*1280}
            s_mul_i32 s{B}, s{sG}, 160
            s_and_b32 s{B}, s{B}, -128
            s_add_u32 s{A}, s{A}, s{B}""")
            run(sWD,48,lambda i:(i//2)*1280+(i%2)*128)
        STAMP('mt')
        if CFG['prof'] and any('mt2' in x for x in CFG['st']): p("s_waitcnt lgkmcnt(0)"); STAMP('mt2')
    if 'w3' in (CFG['wtw'],CFG['mtw']):
        fa=dict(G1=(F_G1,4),WOR=(F_WOR,2),WOD=(F_WOD,2),WO2=(F_WO2,2),DONE=(F_DONE,ND),PR=(F_PR,4),LD=(F_LD,1),RL=(F_H2,4))[CFG['mtg']]
        p(f"v_mov_b32 v{vt}, {fa[0]}")
        if CFG['mth']:
            nt_=p.lab("nomt")
            p(f"s_cmp_eq_u32 s{sHF}, 0\ns_cbranch_scc1 {nt_}")
        lds_wait(vt,vt+5,C,'gt',fa[1],1)
        wtouch('w3',0)
        if CFG['mth']:
            p(f"v_subrev_u32 v{vTM}, {20*3072}, v{vTM}")
            if CFG['mth']==2: p("s_waitcnt vmcnt(0)")
            wtouch('w3',0)
            p(f"{nt_}:")
        if CFG['dw3']: touch(vTD,sWD,CFG['mpair'])
        STAMP('mt')
        if CFG['prof'] and any('mt2' in x for x in CFG['st']): p("s_waitcnt vmcnt(0)"); STAMP('mt2')

def tr_addr(a0,t):
    tab=[[0,8],[4,12],[16,36],[20,28],[24,32]]
    pk=[sum((tab[u][rd]//4)<<(4*u) for u in range(5)) for rd in range(2)]
    A=sT+7; B=sT+8
    p(f"""s_mov_b32 s{A}, {pk[0]}
    s_mov_b32 s{B}, {pk[1]}
    v_bfe_u32 v{t}, v0, 2, 2
    v_mul_u32_u24 v{t}, 160, v{t}
    v_and_b32 v{t+1}, 3, v0
    v_mad_u32_u24 v{t}, v{t+1}, 40, v{t}
    v_lshrrev_b32 v{t+1}, 4, v0""")
    for s_ in range(5):
        p(f"""v_add_u32 v{t+2}, {4*s_}, v{t+1}
        v_mul_u32_u24 v{t+4}, 52, v{t+2}
        v_lshrrev_b32 v{t+4}, 8, v{t+4}
        v_mul_u32_u24 v{t+5}, 5, v{t+4}
        v_sub_u32 v{t+2}, v{t+2}, v{t+5}
        v_lshlrev_b32 v{t+2}, 2, v{t+2}
        v_mul_u32_u24 v{t+4}, 10, v{t+4}""")
        for rd in range(2):
            p(f"""v_bfe_u32 v{t+3}, s{(A,B)[rd]}, v{t+2}, 4
            v_add_u32 v{t+3}, v{t+3}, v{t+4}
            v_mul_u32_u24 v{t+3}, 640, v{t+3}
            v_add_u32 v{a0+2*s_+rd}, v{t+3}, v{t}""")
sBLK,sJ=sT+9,sT+10
def wo_ids():
    p(f"""s_lshr_b32 s{sBLK}, s{sSLOT}, 3
    s_lshl_b32 s{sJ}, s{sG}, 2
    s_add_u32 s{sBLK}, s{sBLK}, s{sJ}
    s_and_b32 s{sJ}, s{sSLOT}, 7""")
def clr_ids(A,B,C,D_):
    p(f"""s_lshr_b32 s{C}, s{sSLOT}, 3
    s_lshl_b32 s{B}, s{sG}, 2
    s_add_u32 s{C}, s{C}, s{B}
    s_lshl_b32 s{C}, s{C}, 3
    s_and_b32 s{B}, s{sSLOT}, 7
    s_add_u32 s{D_}, s{C}, s{B}
    s_lshr_b32 s{A}, s{D_}, 1
    s_mul_i32 s{A}, s{A}, 20480
    s_and_b32 s{B}, s{B}, 1
    s_mul_i32 s{B}, s{B}, 5120
    s_add_u32 s{A}, s{A}, s{B}
    s_add_u32 s{A}, s{A}, {OB}
    s_mul_i32 s{B}, s{sHH}, 10240
    s_add_u32 s{C}, s{A}, 10240
    s_add_u32 s{A}, s{A}, s{B}
    s_sub_u32 s{C}, s{C}, s{B}
    s_lshl_b32 s{D_}, s{D_}, 10
    s_add_u32 s{D_}, s{D_}, {PS}""")
def clears(part):
    A=sT+13; B=sT+14; C=sT+15; D_=sT+16; D=12; aL=16
    if part==0:
        clr_ids(A,B,C,D_)
        p(f"v_lshlrev_b32 v{aL}, 4, v0")
        for r in range(4): p(f"v_mov_b32 v{D+r}, -1")
        return
    st4=lambda so,off,sc: f"buffer_store_dwordx4 v[{D}:{D+3}], v{aL}, {S4(sWS)}, s{so} offen offset:{off} {sc}" if not (CFG['noclr']>>(0 if sc!='sc1' else 1))&1 else "s_nop 0"
    w2=p.lab("clw2"); w3=p.lab("clw3"); dn=p.lab("cldn")
    if CFG['hsent']:
        H_=sT+17; nh=p.lab("clnh")
        p(f"""s_cmp_eq_u32 s{sWAVE}, 3
        s_cbranch_scc1 {nh}
        s_lshl_b32 s{B}, s{sWAVE}, 8
        s_add_u32 s{B}, s{B}, s2
        s_sub_u32 s{H_}, s{B}, 384
        s_cselect_b32 s{H_}, s{B}, s{H_}
        s_cselect_b32 s{H_+1}, 3, 2
        s_cselect_b32 s{H_+2}, 0, {VH+10240-KH-20480}
        s_cselect_b32 s{H_+3}, 1, 0
        s_lshr_b32 s{B}, s{H_}, s{H_+1}
        s_lshl_b32 s{H_+1}, s{B}, s{H_+1}
        s_sub_u32 s{H_}, s{H_}, s{H_+1}
        s_mul_i32 s{H_}, s{H_}, 2560
        s_add_u32 s{H_}, s{H_}, s{H_+2}
        s_mul_i32 s{H_+1}, s{B}, 171
        s_lshr_b32 s{H_+1}, s{H_+1}, 9
        s_add_u32 s{B}, s{B}, s{H_+1}
        s_mul_i32 s{B}, s{B}, 20480
        s_lshl_b32 s{B}, s{B}, s{H_+3}
        s_add_u32 s{H_}, s{H_}, s{B}
        s_add_u32 s{H_}, s{H_}, {KH+20480}""")
        for o in (0,1024,1536): p(st4(H_,o,"sc1"))
        p(f"{nh}:")
    p(f"""s_cmp_ge_u32 s{sWAVE}, 2
    s_cbranch_scc1 {w2}
    s_mul_i32 s{B}, s{sWAVE}, 2560
    s_add_u32 s{A}, s{A}, s{B}""")
    for o in (0,1024,1536): p(st4(A,o,CFG['cpol']))
    p(f"""s_branch {dn}
    {w2}:
    s_cmp_eq_u32 s{sWAVE}, 3
    s_cbranch_scc1 {w3}
    s_mul_i32 s{C}, s2, 2560
    s_add_u32 s{C}, s{C}, {CAND}""")
    if 'c' in CFG['ptc']: p(f"v_lshlrev_b32 v228, 7, v0\ns_mov_b64 exec, {0x3ff if 'l' in CFG['ptc'] else 0xfffff}\nbuffer_load_dword v229, v228, {S4(sWS)}, s{C} offen\ns_mov_b64 exec, -1")
    for o in (0,1024,1536): p(st4(C,o,"sc1"))
    p(f"""s_branch {dn}
    {w3}:""")
    if CFG['osent']:
        if 'o' in CFG['ptc']: p(f"v_lshlrev_b32 v228, 7, v0\ns_mov_b32 exec_hi, 0xff\nbuffer_load_dword v229, v228, {S4(sWS)}, s{C} offen\ns_mov_b64 exec, -1")
        for o in range(4): p(st4(C,o*1024,"sc1"))
        p(f"s_add_u32 s{C}, s{C}, 4096"); p(st4(C,0,"sc1"))
    p(f"""s_cmp_ge_u32 s2, 24
    s_cbranch_scc1 {dn}
    s_lshl_b32 s{C}, s2, 10
    s_add_u32 s{C}, s{C}, {ACT}""")
    if 'a' in CFG['ptc']: p(f"v_lshlrev_b32 v228, 7, v0\ns_mov_b64 exec, 0xff\nbuffer_load_dword v229, v228, {S4(sWS)}, s{C} offen\ns_mov_b64 exec, -1")
    p(st4(C,0,"sc1"))
    p(f"{dn}:")
cU=sT+13; vC=84
def hclear_setup(isB):
    A=sT+15; B=sT+16; C=sT+17; D_=sT+18; H_=sT+17
    clr_ids(A,B,C,D_)
    if isB: p(f"""s_mul_i32 s{B}, s2, 2560
        s_add_u32 s{B}, s{B}, {CAND}
        s_add_u32 s{A}, s{C}, 2560
        s_cmp_eq_u32 s{HW}, 2
        s_cselect_b32 s{cU+1}, s{B}, s{A}
        s_mov_b32 s{cU}, s{C}""")
    else: p(f"""s_mul_i32 s{B}, s{HW}, 2560
        s_add_u32 s{cU+1}, s{A}, s{B}""")
    p(f"""s_lshl_b32 s{B}, s{HW}, 8
    s_add_u32 s{B}, s{B}, s2
    s_sub_u32 s{H_}, s{B}, 384
    s_cselect_b32 s{H_}, s{B}, s{H_}
    s_cselect_b32 s{H_+1}, 3, 2
    s_cselect_b32 s{H_+2}, 0, {VH+10240-KH-20480}
    s_cselect_b32 s{H_+3}, 1, 0
    s_lshr_b32 s{B}, s{H_}, s{H_+1}
    s_lshl_b32 s{H_+1}, s{B}, s{H_+1}
    s_sub_u32 s{H_}, s{H_}, s{H_+1}
    s_mul_i32 s{H_}, s{H_}, 2560
    s_add_u32 s{H_}, s{H_}, s{H_+2}
    s_mul_i32 s{H_+1}, s{B}, 171
    s_lshr_b32 s{H_+1}, s{H_+1}, 9
    s_add_u32 s{B}, s{B}, s{H_+1}
    s_mul_i32 s{B}, s{B}, 20480
    s_lshl_b32 s{B}, s{B}, s{H_+3}
    s_add_u32 s{H_}, s{H_}, s{B}
    s_add_u32 s{H_}, s{H_}, {KH+20480}""")
    if isB: p(f"""s_cmp_eq_u32 s{HW}, 2
        s_cselect_b32 s{cU}, s{H_}, s{cU}
        s_cselect_b32 s{cU+3}, 256, s2
        s_lshl_b32 s{cU+2}, s2, 10
        s_cmp_lt_u32 s{cU+3}, 24
        s_cselect_b32 s{H_}, 0, {STX+0x20000-ACT}
        s_add_u32 s{cU+2}, s{cU+2}, s{H_}
        s_add_u32 s{cU+2}, s{cU+2}, {ACT}""")
    else: p(f"""s_mov_b32 s{cU}, s{H_}
        s_getreg_b32 s{A}, hwreg(HW_REG_XCC_ID, 0, 4)
        s_or_b32 s{A}, s{A}, s{sTAG}
        v_mov_b32 v{vC+5}, s{A}
        s_lshl_b32 s{cU+2}, s2, 2
        s_add_u32 s{cU+2}, s{cU+2}, {H1}""")
    p(f"v_lshlrev_b32 v{vC+4}, 4, v0")
    for r in range(4): p(f"v_mov_b32 v{vC+r}, -1")
def hclear(c,isB):
    st=lambda so,off,sc: (p(f"buffer_store_dwordx4 v[{vC}:{vC+3}], v{vC+4}, {S4(sWS)}, s{so} offen offset:{off} {sc}"),OPS.append('clr'))
    ks=[k for k in range(2) if CFG['cst'][k]==c and (CFG['hsent'] or k or isB)]
    pol=lambda k: "sc1" if isB or k==0 else CFG['cpol']
    for k in ks: st(cU+k,0,pol(k)); st(cU+k,1024,pol(k))
    if ks: p(f"s_mov_b64 exec, s[{sLO}:{sLO+1}]")
    for k in ks: st(cU+k,2048,pol(k))
    if ks: p("s_mov_b64 exec, -1")
    if isB and c==CFG['cst'][1]:
        sk=p.lab("noact")
        p(f"s_cmp_lt_u32 s{cU+3}, 24\ns_cselect_b64 exec, -1, 1"); st(cU+2,0,"sc1"); p("s_mov_b64 exec, -1")
    if not isB and c==max(CFG['cst'])+2:
        p(f"s_mov_b64 exec, 1\nbuffer_store_dword v{vC+5}, v{vC+4}, {S4(sWS)}, s{cU+2} offen sc1\ns_mov_b64 exec, -1"); OPS.append('clr')
sSM=sT+11
def sm_setup():
    A=sT+20
    p(f"""s_and_b32 s{A}, s{HW}, 1
    s_lshl_b32 s{sSM}, s{sSLOT}, 1
    s_add_u32 s{A}, s{A}, s{sSM}
    s_mul_i32 s{sSM}, s{A}, {10*3072}
    s_mul_i32 s{A}, s{sG}, 384
    s_add_u32 s{sSM}, s{sSM}, s{A}
    s_lshl_b32 s{A}, s2, 2
    s_add_u32 s{A}, s{A}, s{HW}
    s_mul_i32 s{sSM+1}, s{A}, 800
    s_and_b32 s{sSM+1}, s{sSM+1}, -128""")
def sm_touch(c,isB):
    for opt,n,f in ((CFG['smw'],30,lambda i: f"s_load_dword s100, s[{(sWG,sWU)[isB]}:{(sWG,sWU)[isB]+1}], s{sSM} offset:{(i//3)*3072+(i%3)*128}"),
                    (CFG['smo'],7,lambda i: f"s_load_dword s100, s[{sWO}:{sWO+1}], s{sSM+1} offset:{i*128}")):
        if opt and opt[0]<=c<opt[1]:
            k=opt[1]-opt[0]
            for i in range(n*(c-opt[0])//k,n*(c+1-opt[0])//k): p(f(i))
def code_pf():
    A=sT+18
    p(f"""s_getpc_b64 s[{A}:{A+1}]
    L_pc:
    s_sub_u32 s{A}, s{A}, L_pc-{NAME}_kernel
    s_subb_u32 s{A+1}, s{A+1}, 0
    s_lshl_b32 s{A+2}, s{sSLOT}, 2
    s_add_u32 s{A+2}, s{A+2}, s{sWAVE}
    s_mul_i32 s{A+2}, s{A+2}, 384
    s_min_u32 s{A+2}, s{A+2}, (L_exit-{NAME}_kernel-384)&0xffffff80""")
    for i in range(3): p(f"s_load_dwordx2 s[100:101], s[{A}:{A+1}], s{A+2} offset:{i*128+60}")
def wave_sum(x,t):
    dp="row_mask:0xf bank_mask:0xf"
    for c in ("quad_perm:[1,0,3,2]","quad_perm:[2,3,0,1]","row_half_mirror","row_mirror"):
        p(f"s_nop 1\nv_add_f32_dpp v{x}, v{x}, v{x} {c} {dp}")
    for sw in (16,32):
        p(f"""v_mov_b32 v{t}, v{x}
        s_nop 1
        v_permlane{sw}_swap_b32 v{x}, v{t}
        s_nop 0
        v_add_f32 v{x}, v{x}, v{t}""")
sPF=sT+16
def pf_group(n=5):
    for i in range(n): p(f"s_load_dwordx2 s[100:101], s[{sWO}:{sWO+1}], s{sPF} offset:{i*128+60}")
    p(f"""s_add_u32 s{sPF}, s{sPF}, {n*128}
    s_sub_u32 s{sPF+2}, s{sPF+2}, 1
    s_add_u32 s{sPF+3}, s{sPF+1}, 12800
    s_cmp_eq_u32 s{sPF}, s{sPF+3}
    s_cselect_b32 s{sPF}, s{sPF+1}, s{sPF}""")
def helperB(steps):
    A=sT+7; B=sT+8; vt=2; aD=140; aT=146; aLin=12; D=40; WRr=32
    sO=sT+1; sL=sT+2; sL0=sT+3; sL1=sT+4; C=sT+5
    p("L_helperB:")
    vM=23; x=10; a=sT+16
    clr_ids(a,a+1,a+2,a+3)
    p(f"""s_mul_i32 s{a+1}, s{HW}, 25
    s_sub_u32 s{a+1}, s{a+1}, 50
    v_min_u32 v{x}, 24, v0
    v_add_u32 v{x}, s{a+1}, v{x}
    v_min_u32 v{x}, 48, v{x}
    s_sub_u32 s{a+3}, s{a+3}, {40*128}
    s_and_b32 s{a+1}, s{sSLOT}, 15
    s_lshl_b32 s{a+2}, s{sG}, 4
    s_add_u32 s{a+1}, s{a+1}, s{a+2}
    s_lshl_b32 s{a+1}, s{a+1}, 7
    s_add_u32 s{a+1}, s{a+1}, {FL-48*128}
    v_mov_b32 v{x+1}, s{a}
    v_mov_b32 v{x+2}, s{a+3}
    v_cmp_le_u32 vcc, 40, v{x}
    v_mov_b32 v{x+3}, s{a+1}
    s_mul_i32 s{a+1}, s{sSLOT}, {200*128}
    v_cndmask_b32 v{x+1}, v{x+1}, v{x+2}, vcc
    v_cmp_le_u32 vcc, 48, v{x}
    s_mul_i32 s{a}, s{HW}, {100*128}
    s_add_u32 s{a+1}, s{a+1}, s{a}
    v_cndmask_b32 v{x+1}, v{x+1}, v{x+3}, vcc
    v_lshl_add_u32 v{vM}, v{x}, 7, v{x+1}
    s_sub_u32 s{sPF+1}, s{a+1}, {200*128}
    s_mul_i32 s{sPF}, s{sG}, 5
    s_lshr_b32 s{sPF}, s{sPF}, 1
    s_mul_i32 s{sPF}, s{sPF}, 640
    s_add_u32 s{sPF}, s{sPF}, s{sPF+1}
    s_mov_b32 s{sPF+2}, 20
    v_lshlrev_b32 v{vH+4}, 4, v0
    v_add_u32 v{vH+4}, {H1}, v{vH+4}
    v_mul_u32_u24 v{WRr+5}, 20, v0""")
    aB=130; sK=sT+11; sN=sT+16; sS=sT+17
    def wo_setup():
        va=96
        wo_ids()
        T=[[0,2],[1,3],[4,9],[5,7],[6,8]]
        NIB=[sum((10*((4*s5+g_)//5)+T[(4*s5+g_)%5][rd]-(8*s5+2*g_-2))<<(4*(4*rd+g_)) for rd in range(2) for g_ in range(4)) for s5 in range(5)]
        for i in range(5):
            p(f"""v_add_u32 v{va}, {64*i}, v0
            v_mul_u32_u24 v{va+1}, 6554, v{va}
            v_lshrrev_b32 v{va+1}, 16, v{va+1}
            v_mul_u32_u24 v{va+2}, 10, v{va+1}
            v_sub_u32 v{va}, v{va}, v{va+2}
            v_and_b32 v{aB+5+i}, 28, v{va+1}
            v_and_b32 v{va+2}, 3, v{va+1}
            v_mul_u32_u24 v{va+2}, 1280, v{va+2}
            v_lshl_add_u32 v{va}, v{va}, 4, v{va+2}
            v_bfe_u32 v{va+1}, v{va+1}, 2, 2
            v_mul_u32_u24 v{va+1}, 10240, v{va+1}
            v_add_u32 v{aB+i}, v{va}, v{va+1}""")
            if 0<i<4: p(f"v_subrev_u32 v{aB+i}, {i*1024}, v{aB+i}")
        p(f"""s_lshr_b32 s{A}, s{sSLOT}, 3
        s_mul_i32 s{A}, s{A}, 5
        s_lshr_b32 s{A}, s{A}, 1
        s_add_u32 s{A}, s{A}, s{HW}
        s_sub_u32 s{sK}, s{A}, 2
        v_mov_b32 v{va}, 5120""")
        def woaddr(n):
            p(f"""s_add_u32 s{A}, s{sK}, {2*n}
            s_sub_u32 s{B}, s{A}, 10
            s_cselect_b32 s{A}, s{A}, s{B}
            s_sub_u32 s{B}, s{A}, 5
            s_cselect_b32 s{B}, s{A}, s{B}
            s_mul_i32 s{sS}, s{A}, 40960
            s_sub_u32 s{sS}, s{sS}, 10240
            s_mov_b32 s{sN}, {hex(NIB[0])}""")
            for k in range(1,5): p(f"s_cmp_eq_u32 s{B}, {k}\ns_cselect_b32 s{sN}, {hex(NIB[k])}, s{sN}")
            for i in range(5):
                p(f"""v_bfe_u32 v{va+1}, s{sN}, v{aB+5+i}, 4
                v_mad_u32_u24 v{va+1}, v{va+1}, v{va}, v{aB+i}
                v_add_u32 v{aD+5*n+i}, s{sS}, v{va+1}""")
        for n in range(5): woaddr(n)
    if CFG['wose']==0: wo_setup()
    npf=CFG['npf']
    for _ in range(npf[0]): pf_group()
    def hook(c):
        if c==(100 if CFG['hstep']==CFG['stg'] else CFG['hstep']):
            p(f"buffer_load_dwordx4 v[{vH}:{vH+3}], v{vH+4}, {S4(sWS)}, 0 offen sc1"); OPS.append('h1')
        if c==100:
            p(f"buffer_load_dwordx4 {vr(WRr,4)}, v{WRr+5}, {S4(sWR)}, 0 offen\nbuffer_load_dword v{WRr+4}, v{WRr+5}, {S4(sWR)}, 0 offen offset:16"); OPS.extend(['wr','wr'])
        if c==CFG['pt']:
            qkv_touch()
            OPS.extend(['pt']*wtouch('w1',1))
        if c==CFG['wts']: OPS.extend(['pt']*touch(vTW,sWO,0))
        if c==CFG['pt2']: OPS.extend(['pt']*touch(vM,sWS,CFG['qpair2'],CFG['tpol']))
    steps(hook,1)
    st=dict(n=0)
    def dma(cnt):
        for _ in range(min(cnt,50-st['n'])):
            n=st['n']; i=n%5; k=(n//5)%5
            if n==0 or n==25:
                p(f"""s_xor_b32 s{A}, s{sHH}, {n//25}
                s_mul_i32 s{sO}, s{A}, {320*1280}
                s_mul_i32 s{sL0}, s{A}, 51200
                s_add_u32 s{sL0}, s{sL0}, {L_WO}
                s_mul_i32 s{A}, s{sJ}, 160
                s_add_u32 s{sO}, s{sO}, s{A}""")
            if i==0: p(f"""s_add_u32 s{A}, s{sK}, {2*k}
                s_sub_u32 s{B}, s{A}, 10
                s_cselect_b32 s{A}, s{A}, s{B}
                s_mul_i32 s{sL}, s{A}, 5120
                s_add_u32 s{sL}, s{sL}, s{sL0}
                s_mov_b32 m0, s{sL}
                s_nop 0""")
            if i==4: p(f"s_add_u32 m0, s{sL}, 4096\ns_nop 0")
            p(f"buffer_load_dwordx4 v{aD+5*k+i}, {S4(sWO)}, s{sO} offen offset:{(i&3)*1024} {CFG['wopol']} lds")
            OPS.append('wo%d'%(n//25))
            st['n']+=1
    ne=None
    def hello():
        vmwait('h1')
        nonlocal ne; lp=p.lab("hello"); ok=p.lab("hello_ok"); ne=p.lab("noep")
        p(f"""s_mov_b32 s{A}, {SPIN}
        {lp}:
        v_xor_b32 v{vH}, s{sTAG}, v{vH}
        v_xor_b32 v{vH+1}, s{sTAG}, v{vH+1}
        v_xor_b32 v{vH+2}, s{sTAG}, v{vH+2}
        v_xor_b32 v{vH+3}, s{sTAG}, v{vH+3}
        v_or3_b32 v{vt}, v{vH}, v{vH+1}, v{vH+2}
        v_or_b32 v{vt}, v{vt}, v{vH+3}
        v_cmp_lt_u32 vcc, 15, v{vt}
        s_nop 0
        s_cbranch_vccz {ok}""")
        spin(A,lp,ok,4)
        p(f"""buffer_load_dwordx4 v[{vH}:{vH+3}], v{vH+4}, {S4(sWS)}, 0 offen sc1
        s_waitcnt vmcnt(0)
        s_branch {lp}
        {ok}:
        v_lshl_or_b32 v{vH}, v{vH+1}, 4, v{vH}
        v_lshl_or_b32 v{vH+2}, v{vH+3}, 4, v{vH+2}
        v_lshl_or_b32 v{vH}, v{vH+2}, 8, v{vH}
        v_and_b32 v{vt}, 1, v0
        v_readlane_b32 s{A}, v{vH}, 0
        v_readlane_b32 s{B}, v{vH}, 1
        v_cmp_eq_u32 vcc, 0, v{vt}
        v_mov_b32 v{vt+1}, s{A}
        v_mov_b32 v{vt+2}, s{B}
        v_cndmask_b32 v{vt+1}, v{vt+2}, v{vt+1}, vcc
        v_cmp_ne_u32 vcc, v{vt+1}, v{vH}
        v_mov_b32 v{vt}, {L_MODE}
        s_cmp_lg_u64 vcc, 0
        s_cselect_b32 s{sMODE}, 1, {CFG['force_slow']}
        v_mov_b32 v{vt+1}, s{sMODE}
        ds_write_b32 v{vt}, v{vt+1}""")
    vmwait(8); p("s_barrier")
    if CFG['hpr']: p(f"s_setprio {CFG['hpr']}")
    if CFG['hme']==2: hello()
    if CFG['sfe']==2: stats_fin(96,B)
    hook(8)
    p(f"v_lshlrev_b32 v{aLin}, 4, v0")
    if CFG['hme']==1: hello()
    if CFG['sfe']==1: stats_fin(96,B)
    vmwait(9); p("s_barrier"); STAMP('hb9'); hook(9)
    if CFG['sf2']==1 or (CFG['sf2'] and CFG['sfe']): p("s_barrier")
    if not CFG['sfe']: stats_fin(96,B)
    if not CFG['hme']: hello()
    STAMP('h10')
    p(f"""{"s_waitcnt lgkmcnt(0)" if CFG['epi2']>1 and not CFG['sf2'] else ""}
    {"" if CFG['sf2'] else "s_barrier"}
    s_waitcnt lgkmcnt(0)
    s_barrier""")
    vmw=len(OPS)-1-max(i for i,t in enumerate(OPS) if t=='wr')
    STAMP('hE1')
    if CFG['hpr']: p("s_setprio 0")
    p(f"""v_mov_b32 v{vt}, 0x3f803f80
    v_mov_b32 v{vt+1}, 0
    s_waitcnt vmcnt({vmw})""")
    for k in range(5): p(f"v_dot2_f32_bf16 v{vt+1}, v{WRr+k}, v{vt}, v{vt+1}")
    p("s_nop 0")
    wave_sum(vt+1,vt+2)
    p(f"v_mov_b32 v{vt}, {L_SWS}\nds_write_b32 v{vt}, v{vt+1}")
    if CFG['wose']==1: wo_setup()
    if CFG['hst']: halo_copy(vt,A,B,C,wo_setup if CFG['wose']==2 else (lambda:None))
    else:
        if not CFG['hs2']: halo_flag(vt,A,B,C)
        if CFG['wose']==2: wo_setup()
    p(f"""s_add_u32 s{A}, s2, s{HW}
    s_cmp_lg_u32 s{A}, 2
    s_cbranch_scc1 {ne}
    s_add_u32 s{A}, s{sEP}, 1
    v_mov_b32 v{vt}, {EPO}
    v_mov_b32 v{vt+1}, s{A}
    s_mov_b64 exec, 1
    buffer_store_dword v{vt+1}, v{vt}, {S4(sWS)}, 0 offen sc1
    s_mov_b64 exec, -1
    {ne}:""")
    if CFG['hkv']:
        att_ids()
        p(f"s_mov_b32 s{sK1024}, 1024")
        kv_addr(aLin,13,vt)
        own_setup(14,vt)
        own_kv(aLin,13,14,vt,sHO)
    p(f"v_mov_b32 v{vt}, {F_G1}")
    if CFG['wburst']:
        p(f"""s_lshl_b32 s{B}, s{sSLOT}, 1
        s_add_u32 s{B}, s{B}, s{HW}
        s_sub_u32 s{B}, s{B}, 2
        s_mul_i32 s{B}, s{B}, 12800
        v_lshl_add_u32 v{vTW}, v0, 7, s{B}
        v_min_u32 v{vTW+1}, 35, v0
        v_lshl_add_u32 v{vTW+1}, v{vTW+1}, 7, s{B}
        v_add_u32 v{vTW+1}, 8192, v{vTW+1}""")
        if CFG['wburst']==2: touch(vTW,sWO,0); touch(vTW+1,sWO,0)
    lds_wait(vt,vt+1,A,'gt',4,1)
    if CFG['wburst']==1: touch(vTW,sWO,0); touch(vTW+1,sWO,0)
    wtouch('w3',1)
    if CFG['wog2']:
        p(f"v_mov_b32 v{vt+2}, {F_G2}")
        lds_wait(vt+2,vt+1,A,'gt',2,1)
    STAMP('wo_s')
    del OPS[:]
    thr=CFG['wothr']; gs=CFG['wogs']; thr1=CFG['wothr1']
    def more(n,dyn=False):
        while n>0 and st['n']<50:
            k=min(gs,n)
            if dyn and thr1<thr and st['n']>=thr1:
                sk=p.lab("wog")
                p(f"""ds_read_b32 v{vt+1}, v{vt} offset:{(F_G2 if CFG['wgf']=='G2' else F_M)-F_G1}
                s_waitcnt lgkmcnt(0)
                v_cmp_gt_u32 vcc, {2 if CFG['wgf']=='G2' else 1}, v{vt+1}
                s_nop 0
                s_cbranch_vccz {sk}
                s_waitcnt vmcnt({max(0,thr1-k)})
                {sk}:""")
            if CFG['wpause'] and st['n']==CFG['wpause']:
                p(f"v_mov_b32 v{vt+2}, {F_RI}"); lds_wait(vt+2,vt+1,A,'gt',1,1); STAMP('wo_p')
            if st['n']>=thr: p(f"s_waitcnt vmcnt({max(0,thr-k)})")
            gi=st['n']//gs; a_,b_=CFG['mtr']
            dma(k); n-=k
            if CFG['mtw']=='wo' and a_<=gi<b_:
                l0=60*(gi-a_)//(b_-a_); l1=60*(gi+1-a_)//(b_-a_); msk=((1<<l1)-1)^((1<<l0)-1)
                u=p.lab("tu"); j=p.lab("tj")
                p(f"s_mov_b32 exec_lo, {hex(msk&0xffffffff)}\ns_mov_b32 exec_hi, {hex(msk>>32)}\ns_cmp_eq_u32 s{HW}, 2\ns_cbranch_scc0 {u}")
                touch(vTM,sWG,0); p(f"s_branch {j}\n{u}:"); touch(vTM,sWU,0); p(f"{j}:\ns_mov_b64 exec, -1")
                OPS.append('mt')
    def sig(f):
        p(f"""v_mov_b32 v{vt+2}, {f}
        v_mov_b32 v{vt+3}, 1
        s_mov_b64 exec, 1
        ds_add_u32 v{vt+2}, v{vt+3}
        s_mov_b64 exec, -1""")
    more(25+min(thr,15),True)
    vmwait('wo0')
    sig(F_WOR)
    STAMP('wo_0')
    more(50)
    sig(F_WOD)
    STAMP('wo_1')
    p("s_waitcnt vmcnt(0)")
    sig(F_WO2)
    STAMP('wo')

ACC=64; CS=128; XF=132; WF=148; SEL=164; aX=168; aW=172; aST=174; aSG=178; vT=2
sWR_,sWC,sLC,sTY,sSO,sHALO,sFO,sSO2=range(sT,sT+8)
def gemm_setup():
    t=vT; A=sT+10; B=sT+11
    wave_ids(sWAVE,sWR_,sWC,sLC,sTY)
    if CFG['g16']:
        p(f"""v_and_b32 v{t}, 15, v0
        v_and_b32 v{t+1}, 8, v0
        s_cmp_eq_u32 s{sTY}, 2
        s_cselect_b32 s{A}, 1, 0
        v_mul_u32_u24 v{t+1}, s{A}, v{t+1}
        s_lshl_b32 s{A}, s{sWR_}, 6
        v_add3_u32 v{t+1}, v{t+1}, v{t}, s{A}
        v_lshlrev_b32 v{t+1}, 7, v{t+1}
        v_lshrrev_b32 v{t+2}, 4, v0
        v_lshrrev_b32 v{t+3}, 1, v{t}
        v_xor_b32 v{t+3}, v{t+3}, v{t+2}
        v_lshl_add_u32 v{aX}, v{t+3}, 4, v{t+1}
        v_xor_b32 v{aX+1}, 64, v{aX}
        v_bfe_u32 v{t+3}, v0, 2, 2
        v_lshl_add_u32 v{t+4}, v{t+2}, 3, v{t+3}
        v_lshlrev_b32 v{t+4}, 8, v{t+4}
        v_xor_b32 v{t+3}, s{sWAVE}, v{t+3}
        v_lshl_add_u32 v{t+4}, v{t+3}, 6, v{t+4}
        v_bfe_u32 v{t+3}, v0, 4, 1
        v_lshl_add_u32 v{t+4}, v{t+3}, 5, v{t+4}
        v_and_b32 v{t+5}, 3, v0
        v_lshl_add_u32 v{t+4}, v{t+5}, 3, v{t+4}
        v_add_u32 v{aW6}, 16384, v{t+4}
        v_xor_b32 v{aW6+1}, 32, v{aW6}
        v_xor_b32 v{aW6+2}, 64, v{aW6}
        v_xor_b32 v{aW6+3}, 96, v{aW6}""")
        for r in range(4): p(f"v_mov_b32 v{SEL+r}, 0x3f803f80\nv_mov_b32 v{CS2+r}, 0")
    else:
        p(f"""v_and_b32 v{t}, 31, v0
        s_lshl_b32 s{A}, s{sWR_}, 6
        v_add_u32 v{t+1}, s{A}, v{t}
        v_lshlrev_b32 v{t+1}, 7, v{t+1}
        v_lshrrev_b32 v{t+2}, 5, v0
        v_bfe_u32 v{t+3}, v0, 1, 3
        v_xor_b32 v{t+3}, v{t+3}, v{t+2}
        v_lshl_add_u32 v{aX}, v{t+3}, 4, v{t+1}""")
        for s in range(1,4): p(f"v_xor_b32 v{aX+s}, {32*s}, v{aX}")
        p(f"""v_bfe_u32 v{t+3}, v0, 2, 2
        v_lshl_add_u32 v{t+4}, v{t+2}, 3, v{t+3}
        v_lshlrev_b32 v{t+4}, 8, v{t+4}
        s_lshl_b32 s{A}, s{sWC}, 1
        s_or_b32 s{A}, s{A}, s{sWR_}
        v_xor_b32 v{t+3}, s{A}, v{t+3}
        v_lshl_add_u32 v{t+4}, v{t+3}, 6, v{t+4}
        v_bfe_u32 v{t+3}, v0, 4, 1
        v_lshl_add_u32 v{t+4}, v{t+3}, 5, v{t+4}
        v_and_b32 v{t+5}, 3, v0
        v_lshl_add_u32 v{t+4}, v{t+5}, 3, v{t+4}
        v_add_u32 v{aW}, 16384, v{t+4}
        v_xor_b32 v{aW+1}, 64, v{aW}
        v_bfe_u32 v{t+4}, v0, 2, 1
        v_cmp_eq_u32 vcc, v{t+3}, v{t+4}
        v_mov_b32 v{t+5}, 0x3f803f80
        s_nop 0
        v_cndmask_b32 v{SEL}, 0, v{t+5}, vcc
        v_cndmask_b32 v{SEL+1}, 0, v{t+5}, vcc
        v_cndmask_b32 v{SEL+2}, 0, v{t+5}, vcc
        v_cndmask_b32 v{SEL+3}, 0, v{t+5}, vcc""")
    for r in list(range(ACC,ACC+64))+list(range(CS,CS+4)): p(f"v_mov_b32 v{r}, 0")
    store_addr(sWR_,sLC,sTY,sSO,sSO2,sHALO,sFO,aST,sT+10,sT+11)
    p(f"s_mov_b32 s{sHAL2}, s{sHALO}")
    if CFG['dcs']:
        ta,tc,tg=[[int(x) for x in r] for r in CFG['rot']]
        assert ta==[0,0,5,5] and all((tg[g-2]-tg[g])%10==(9 if g>=2 else 3) for g in range(8))
        tb={'q':((0,0,5,5),((0,3),(3,2),(0,3),(3,2))),'lo':((0,0,5,8),((0,3),(3,2),(0,3),(0,2))),'hi':((0,0,5,4),((0,2),(2,2),(2,3),(0,3)))}
        for st_,fn in tb.values(): assert sorted((st_[r]+fn[r][0]+k)%10 for r in range(4) for k in range(fn[r][1]))==list(range(10))
        nb=lambda k: sum((f|(n-2)<<3)<<(4*r) for r,(f,n) in enumerate(tb[k][1]))
        mk=lambda n: ((2<<n)-1)|((2<<n)-2)<<10|((1<<n)-1)<<20
        p(f"""s_cmp_lt_u32 s{sG}, 2
        s_movk_i32 s{A}, {nb('hi')}
        s_cselect_b32 s{A}, {nb('lo')}, s{A}
        s_cmp_gt_u32 s{sCT}, 2
        s_cselect_b32 s{A}, s{A}, {nb('q')}
        s_and_b32 s{B}, s{sBK}, 3
        s_lshl_b32 s{B}, s{B}, 2
        s_lshr_b32 s{A}, s{A}, s{B}
        s_bitcmp1_b32 s{A}, 3
        s_mov_b32 s{sCSM}, {mk(2)}
        s_cselect_b32 s{sCSM}, {mk(3)}, s{sCSM}
        s_and_b32 s{A}, s{A}, 7
        s_lshl_b32 s{sCSM}, s{sCSM}, s{A}
        s_lshl_b32 s{A}, s{sG}, 3
        s_add_u32 s{A}, s{A}, s{sCT}
        s_lshl_b32 s{A}, s{A}, 1
        s_add_u32 s{A}, s{A}, s{sWC}
        s_lshl_b32 s{A}, s{A}, 2
        s_add_u32 s{A}, s{A}, s{sRB}
        s_lshl_b32 s{A}, s{A}, 1
        s_add_u32 s{A}, s{A}, s{sWR_}
        s_lshl_b32 s{A}, s{A}, 8
        s_add_u32 s{sCSO}, s{A}, {CSX}
        v_lshlrev_b32 v{aCP}, 3, v0""")
    if CFG['hs2']:
        p(f"""s_xor_b32 s{A}, s{sWR_}, s{sRB}
        s_and_b32 s{A}, s{A}, 1
        s_lshl_b32 s{sHAL2}, s{sHALO}, s{A}
        s_lshl_b32 s{B}, s{sG}, 4
        s_add_u32 s{B}, s{B}, s{sLC}
        s_lshl_b32 s{B}, s{B}, 2
        s_add_u32 s{B}, s{B}, s{sRB}
        s_lshl_b32 s{B}, s{B}, 1
        s_add_u32 s{B}, s{B}, s{A}
        s_lshl_b32 s{B}, s{B}, 7
        s_add_u32 s{sHFA}, s{B}, {FH}""")
    if CFG['hst']: p(f"""s_mul_i32 s{A}, s{sWAVE}, 9216
        s_add_u32 s{A}, s{A}, {L_WO}
        v_lshl_add_u32 v{aSG}, v0, 4, s{A}""")
sHAL2=sDBG; sHFA=25; vHF=190; sCSM=26; sCSO=27; aCP=179; sCSI=37; sM16=4; aW6=170; CS2=44; XF6=(132,12); WF6=(148,28)
def wave_ids(wave,wr,wc,lc,ty):
    p(f"""s_and_b32 s{wr}, s{wave}, 1
    s_lshr_b32 s{wc}, s{wave}, 1
    s_lshl_b32 s{lc}, s{sCT}, 1
    s_add_u32 s{lc}, s{lc}, s{wc}
    s_cmp_eq_u32 s{lc}, 5
    s_cselect_b32 s{lc}, 15, s{lc}
    s_cmp_gt_u32 s{sCT}, 2
    s_subb_u32 s{lc}, s{lc}, 0
    s_mul_i32 s{ty}, s{lc}, 52
    s_lshr_b32 s{ty}, s{ty}, 8""")
def store_addr(wr,lc,ty,so,so2,halo,fo,ast,A,B,t=2):
    p(f"""v_and_b32 v{t}, 31, v0
    v_lshrrev_b32 v{t+2}, 5, v0
    s_mul_i32 s{A}, s{ty}, 5
    s_sub_u32 s{A}, s{lc}, s{A}
    s_mul_i32 s{B}, s{sHH}, 5
    s_add_u32 s{A}, s{A}, s{B}
    s_lshl_b32 s{B}, s{sBK}, 1
    s_add_u32 s{B}, s{B}, s{wr}
    s_lshl_b32 s{B}, s{B}, 1""")
    isv=p.lab("isv"); jn=p.lab("stj")
    p(f"""s_cmp_ge_u32 s{ty}, 2
    s_cbranch_scc1 {isv}
    s_mul_i32 s{so}, s{B}, 2560
    s_mul_i32 s{B}, s{ty}, {KB}
    s_add_u32 s{so}, s{so}, s{B}
    s_add_u32 s{so2}, s{so}, 2560
    s_lshl_b32 s{A}, s{A}, 3""")
    for cb in range(2):
        for ip in range(2):
            p(f"""s_xor_b32 s{B}, s{wr}, {cb}
            s_lshl_b32 s{B}, s{B}, 2
            s_add_u32 s{B}, s{B}, s{A}
            s_add_u32 s{B}, s{B}, {2*ip}
            v_add_u32 v{t+3}, s{B}, v{t+2}
            v_mul_u32_u24 v{t+4}, 205, v{t+3}
            v_lshrrev_b32 v{t+4}, 10, v{t+4}
            v_mul_u32_u24 v{t+5}, 5, v{t+4}
            v_sub_u32 v{t+5}, v{t+3}, v{t+5}
            v_mul_u32_u24 v{t+4}, {64*2560}, v{t+4}
            v_lshl_add_u32 v{t+4}, v{t+5}, 9, v{t+4}
            v_lshl_add_u32 v{ast+2*cb+ip}, v{t}, 4, v{t+4}""")
    p(f"""s_branch {jn}
    {isv}:
    s_mul_i32 s{so}, s{B}, 1280
    s_add_u32 s{so}, s{so}, {VB}
    s_add_u32 s{so2}, s{so}, 1280
    s_lshl_b32 s{A}, s{A}, 6""")
    if CFG['g16']:
        p(f"""v_and_b32 v{t}, 15, v0
        v_bfe_u32 v{t+1}, v0, 4, 1
        v_lshl_add_u32 v{t+2}, v{t+2}, 1, v{t+1}
        v_mul_u32_u24 v{t+2}, 320, v{t+2}""")
        for j in range(4):
            p(f"""s_xor_b32 s{B}, s{wr}, {j>>1}
            s_lshl_b32 s{B}, s{B}, 5
            s_add_u32 s{B}, s{B}, s{A}
            s_add_u32 s{B}, s{B}, {16*(j&1)}
            v_add_u32 v{t+3}, s{B}, v{t}
            v_mul_u32_u24 v{t+4}, 3277, v{t+3}
            v_lshrrev_b32 v{t+4}, 16, v{t+4}
            v_mul_u32_u24 v{t+5}, 20, v{t+4}
            v_sub_u32 v{t+5}, v{t+3}, v{t+5}
            v_mul_u32_u24 v{t+4}, 81920, v{t+4}
            v_lshl_add_u32 v{t+4}, v{t+5}, 4, v{t+4}
            v_add_u32 v{ast+j}, v{t+4}, v{t+2}""")
    for cb in range(0 if CFG['g16'] else 2):
        p(f"""s_xor_b32 s{B}, s{wr}, {cb}
        s_lshl_b32 s{B}, s{B}, 5
        s_add_u32 s{B}, s{B}, s{A}
        v_add_u32 v{t+3}, s{B}, v{t}
        v_mul_u32_u24 v{t+4}, 3277, v{t+3}
        v_lshrrev_b32 v{t+4}, 16, v{t+4}
        v_mul_u32_u24 v{t+5}, 20, v{t+4}
        v_sub_u32 v{t+5}, v{t+3}, v{t+5}
        v_mul_u32_u24 v{t+4}, 81920, v{t+4}
        v_lshl_add_u32 v{t+4}, v{t+5}, 4, v{t+4}
        v_mul_u32_u24 v{t+5}, 320, v{t+2}
        v_add_u32 v{ast+2*cb}, v{t+4}, v{t+5}
        v_add_u32 v{ast+2*cb+1}, 640, v{ast+2*cb}""")
    p(f"{jn}:")
    halo_cond(halo,A)
    if CFG['honly']: p(f"s_mul_i32 s{A}, s{halo}, {KH-KB}\ns_add_u32 s{so}, s{so}, s{A}\ns_add_u32 s{so2}, s{so2}, s{A}")
    p(f"""s_lshl_b32 s{fo}, s{sG}, 4
    s_add_u32 s{fo}, s{fo}, s{lc}
    s_lshl_b32 s{fo}, s{fo}, 5
    s_lshl_b32 s{A}, s{sRB}, 1
    s_add_u32 s{A}, s{A}, s{wr}
    s_add_u32 s{fo}, s{fo}, s{A}
    s_lshl_b32 s{fo}, s{fo}, 2
    s_add_u32 s{fo}, s{fo}, {FL}""")
def xf(buf,xb): return XF+8*buf+4*xb
def wf(buf,cb): return WF+8*buf+4*cb
def reads(kind,buf,par,s):
    L=[]
    for xb in range(2): L.append(f"ds_read_b128 {vr(xf(buf,xb),4)}, v{aX+s} offset:{par*32768+xb*4096}")
    if kind!='S':
        for cb in range(2):
            for rd in range(2): L.append(f"ds_read_b64_tr_b16 {vr(wf(buf,cb)+2*rd,2)}, v{aW+cb} offset:{par*32768+s*4096+rd*1024}")
        L=[L[2],L[3],L[0],L[1],L[4],L[5]]
    return L
def mfmas(kind,buf):
    L=[]
    if kind=='S':
        for xb in range(2):
            x=xf(buf,xb)
            L.append(f"v_mfma_f32_16x16x32_bf16 {vr(ACC+4*xb,4)}, {vr(SEL,4)}, {vr(x,4)}, {vr(ACC+4*xb,4)}")
            L.append(f"v_mfma_f32_4x4x4_16b_bf16 {vr(ACC+8+8*xb,4)}, {vr(x,2)}, {vr(x,2)}, {vr(ACC+8+8*xb,4)}")
            L.append(f"v_mfma_f32_4x4x4_16b_bf16 {vr(ACC+12+8*xb,4)}, {vr(x+2,2)}, {vr(x+2,2)}, {vr(ACC+12+8*xb,4)}")
        return L
    for cb in range(2):
        for xb in range(2):
            a=ACC+16*(2*xb+cb); X=vr(xf(buf,xb),4); W=vr(wf(buf,cb),4)
            if 'm16' in CFG['xp']:
                a+=8*buf
                L.append("\n".join(f"v_mfma_f32_16x16x32_bf16 {vr(a+4*i,4)}, {W if kind=='T' else X}, {vr(xf(buf,xb^i),4) if kind=='T' else vr(wf(buf,cb^i),4)}, {vr(a+4*i,4)}" for i in range(2)))
                continue
            L.append(f"v_mfma_f32_32x32x16_bf16 {vr(a,16)}, {W if kind=='T' else X}, {X if kind=='T' else W}, {vr(a,16)}")
    if 'nocs' in CFG['xp']: return L
    cs=f"v_mfma_f32_16x16x32_bf16 {vr(CS,4)}, {vr(SEL,4)}, {vr(wf(buf,0),4)}, {vr(CS,4)}"
    if not CFG['dcs']: L.insert(2,cs)
    return L
CSR=[]; CF_=36
def cs_gate(par):
    i=len(CSR); CSR.append(par)
    p(f"""s_bitcmp1_b32 s{sCSM}, 0
    s_movk_i32 s{sCSI}, {i}
    s_cbranch_scc1 L_csb
    L_csr{i}:
    s_lshr_b32 s{sCSM}, s{sCSM}, 1""")
def cs_block():
    assert CSR==[0,1,0,1]
    p(f"L_csb:\ns_bitcmp0_b32 s{sCSM}, 10\ns_cbranch_scc1 L_csrd\ns_waitcnt lgkmcnt(0)")
    for k in range(4):
        c=CS+4*(k&1) if CFG['g16'] else CS
        p(f"v_mfma_f32_16x16x32_bf16 {vr(c,4)}, {vr(SEL,4)}, {vr(CF_+4*k,4)}, {vr(c,4)}")
    p(f"""s_bitcmp1_b32 s{sCSM}, 20
    s_cbranch_scc1 L_csrd
    v_mov_b32 v{CF_+1}, s{sTAG}
    s_nop 7
    {f"v_cndmask_b32 v{CF_}, v{CS}, v{CS+4}, s[{sM16}:{sM16+1}]" if CFG['g16'] else f"v_mov_b32 v{CF_}, v{CS}"}
    s_mov_b64 exec, s[{sLO}:{sLO+1}]
    buffer_store_dwordx2 {vr(CF_,2)}, v{aCP}, {S4(sWS)}, s{sCSO} offen sc1
    s_mov_b64 exec, -1
    s_branch L_csx
    L_csrd:
    s_lshl_b32 s{sCSI+1}, s{sCSI}, 15
    s_and_b32 s{sCSI+1}, s{sCSI+1}, 32768
    v_add_u32 v{aCP-1}, s{sCSI+1}, v{aW}""")
    if CFG['g16']: p(f"v_add_u32 v{CF_+16}, s{sCSI+1}, v{aW+1}")
    for k in range(4):
        for rd in range(2):
            if CFG['g16']: p(f"ds_read_b64_tr_b16 {vr(CF_+4*k+2*rd,2)}, v{CF_+16 if k&1 else aCP-1} offset:{(k>>1)*8192+rd*1024}")
            else: p(f"ds_read_b64_tr_b16 {vr(CF_+4*k+2*rd,2)}, v{aCP-1} offset:{k*4096+rd*1024}")
    p(f"""L_csx:
    s_cmp_eq_u32 s{sCSI}, 0
    s_cbranch_scc1 L_csr0
    s_cmp_eq_u32 s{sCSI}, 1
    s_cbranch_scc1 L_csr1
    s_cmp_eq_u32 s{sCSI}, 2
    s_cbranch_scc1 L_csr2
    s_branch L_csr3""")
def reads6(kind,buf,par,s):
    X=[f"ds_read_b128 {vr(XF6[buf]+4*tt,4)}, v{aX+((tt&1)^s)} offset:{par*32768+(tt>>1)*4096+(tt&1)*(2048 if kind=='T' else 1024)}" for tt in range(4)]
    W=[[f"ds_read_b64_tr_b16 {vr(WF6[buf]+4*j+2*rd,2)}, v{aW6+j} offset:{par*32768+s*8192+rd*1024}" for rd in range(2)] for j in range(4)]
    return W[0]+X[:2]+W[1]+X[2:]+W[2]+W[3]
acc6=lambda tt,j: ACC+16*(2*(tt>>1)+(j>>1))+8*(j&1)+4*(tt&1)
def mfmas6(kind,buf):
    L=[]
    for j in range(4):
        for tt in range(4):
            a=vr(acc6(tt,j),4); X=vr(XF6[buf]+4*tt,4); W=vr(WF6[buf]+4*j,4)
            L.append(f"v_mfma_f32_16x16x32_bf16 {a}, {W if kind=='T' else X}, {X if kind=='T' else W}, {a}")
    if not CFG['dcs'] and 'nocs' not in CFG['xp']:
        for h,i in enumerate(CFG['g16c']): c=vr((CS,CS2)[h],4); L.insert(i,f"v_mfma_f32_16x16x32_bf16 {c}, {vr(SEL,4)}, {vr(WF6[buf]+4*h,4)}, {c}")
    return L
def gemm_loop(kind):
    CNT=sT+10
    lp=p.lab("g"+kind)
    STAMP('rdy')
    p("s_barrier")
    STAMP('b0')
    for r in (reads6 if CFG['g16'] else reads)(kind,0,0,0): p(r)
    if CFG['clr']==1 and not CFG['hclr']: clears(1)
    cl_=p.lab("clr"); cr_=p.lab("clrr")
    if CFG['clr']>1:
        n0=len(p.L); p(f"{cl_}:"); clears(1); p(f"s_branch {cr_}")
        COLD.append("\n".join(p.L[n0:])); del p.L[n0:]
    hl=p.lab("hello"); hr=p.lab("hellor")
    if not CFG['hclr']:
        COLD.append(f"""{hl}:
        s_getreg_b32 s{CNT+1}, hwreg(HW_REG_XCC_ID, 0, 4)
        s_or_b32 s{CNT+1}, s{CNT+1}, s{sTAG}
        v_mov_b32 v{vT}, s{CNT+1}
        s_lshl_b32 s{CNT+1}, s2, 2
        s_add_u32 s{CNT+1}, s{CNT+1}, {H1}
        v_mov_b32 v{vT+1}, 0
        s_mov_b64 exec, 1
        buffer_store_dword v{vT}, v{vT+1}, {S4(sWS)}, s{CNT+1} offen sc1
        s_mov_b64 exec, -1
        s_branch {hr}""")
        p(f"s_lshl_b32 s{CNT+2}, s{sWAVE}, 3\ns_add_u32 s{CNT+2}, s{CNT+2}, {5-CFG['clr']}")
    p(f"s_mov_b32 s{CNT}, 5\n{lp}:")
    if CFG['clr']>1: p(f"s_cmp_eq_u32 s{CNT}, {6-CFG['clr']}\ns_cbranch_scc1 {cl_}\n{cr_}:")
    for k in range(1,5):
        if (CFG['cal'] and CFG['cal'][0]=='it%d'%(2*k)) or (CFG['amp'] and 'it%d'%(2*k) in CFG['amp'][:2]) or (CFG['prof'] and any('it%d'%(2*k) in n.split('|') for n in CFG['st'])):
            sk=p.lab("its"); p(f"s_cmp_lg_u32 s{CNT}, {5-k}\ns_cbranch_scc1 {sk}"); STAMP('it%d'%(2*k)); p(f"{sk}:")
    for par in range(2):
        if CFG['dcs']: cs_gate(par)
        for s in range(2 if CFG['g16'] else 0):
            M=mfmas6(kind,s); R=reads6(kind,s^1,par^s,s^1)
            p("s_waitcnt lgkmcnt(0)")
            if s:
                for _ in range(CFG['g16b']): p(M.pop(0))
                if par:
                    for i in range(6):
                        p(f"v_xor_b32 v{aX+i}, 0x10000, v{aX+i}")
                        if i in (1,3): p(M.pop(0))
                if par==0:
                    w1=p.lab("cw"); w2=p.lab("cwr")
                    p(f"s_cmp_eq_u32 s{CNT}, {5-CFG['clr']}\ns_cbranch_scc1 {w1}\n{w2}:")
                    COLD.append(f"{w1}:\ns_waitcnt vmcnt(0)\ns_branch {w2}")
                p("s_barrier")
                if par==0: p(f"s_cmp_eq_u32 s{CNT}, s{CNT+2}\ns_cbranch_scc1 {hl}\n{hr}:")
            for n in CFG['g16r']:
                for _ in range(n): p(R.pop(0))
                p(M.pop(0))
            assert not R
            for m in M: p(m)
        for s in range(0 if CFG['g16'] else 4):
            buf=s&1
            last=(s==3)
            M=mfmas(kind,buf)
            if CFG['nomfma']: M=M[:1]
            if last and par==1:
                pre=[f"v_xor_b32 v{aX+i}, 0x10000, v{aX+i}" for i in range(4)]+[f"v_xor_b32 v{aW+i}, 0x10000, v{aW+i}" for i in range(2)]
            else: pre=[]
            R=reads(kind,buf^1,(par^1) if last else par,(s+1)&3)
            p("s_waitcnt lgkmcnt(0)")
            if last:
                p(M.pop(0))
                for x in pre: p(x)
                if par==0 and not CFG['hclr'] and not CFG['lclr']:
                    w1=p.lab("cw"); w2=p.lab("cwr")
                    p(f"s_cmp_eq_u32 s{CNT}, {5-CFG['clr']}\ns_cbranch_scc1 {w1}\n{w2}:")
                    COLD.append(f"{w1}:\ns_waitcnt vmcnt(0)\ns_branch {w2}")
                p("s_barrier")
                if par==0 and not CFG['hclr']: p(f"s_cmp_eq_u32 s{CNT}, s{CNT+2}\ns_cbranch_scc1 {hl}\n{hr}:")
            k=0
            while M or R:
                if R: p(R.pop(0))
                if R: p(R.pop(0))
                if M: p(M.pop(0))
    p(f"""s_sub_u32 s{CNT}, s{CNT}, 1
    s_cmp_lg_u32 s{CNT}, 0
    s_cbranch_scc1 {lp}""")
    STAMP('gend')
def bf16r(dst,src):
    p(f"v_cvt_pk_bf16_f32 v{dst}, v{src}, v{src}\nv_and_b32 v{dst}, 0xffff0000, v{dst}")
def mode_read():
    p(f"""v_mov_b32 v{vT+8}, {L_MODE}
    ds_read_b32 v{vT+9}, v{vT+8}""")
def mode_get():
    p(f"v_readfirstlane_b32 s{sMODE}, v{vT+9}")
def dual(stores,pol='',sMODE=sMODE):
    sl=p.lab("slow"); jn=p.lab("jn")
    p(f"s_cmp_lg_u32 s{sMODE}, 0\ns_cbranch_scc1 {sl}")
    for s in stores: p(s+" "+pol)
    p(f"s_branch {jn}\n{sl}:")
    for s in stores: p(s+" sc1")
    p(f"{jn}:")
def idle_gemm():
    vt=10; aI=20; acc=28; one=32; D=64; A=sT+10
    p(f"""s_lshl_b32 s{A}, s{sWR_}, 13
    v_bfe_u32 v{vt}, v0, 1, 3
    v_lshlrev_b32 v{vt}, 4, v{vt}
    v_lshl_add_u32 v{vt}, v0, 7, v{vt}
    v_add_u32 v{aI}, s{A}, v{vt}
    v_mov_b32 v{one}, 0x3f803f80
    s_lshl_b32 s{A}, s{sG}, 2
    s_add_u32 s{A}, s{A}, s{sRB}
    s_lshl_b32 s{A}, s{A}, 14
    s_lshl_b32 s{A+1}, s{sWR_}, 10
    s_add_u32 s{A}, s{A}, s{A+1}
    s_add_u32 s{A}, s{A}, {STP+2*2048}
    v_lshlrev_b32 v{vt}, 4, v0""")
    for i in range(1,8): p(f"v_xor_b32 v{aI+i}, {16*i}, v{aI}")
    for i in range(4): p(f"v_mov_b32 v{acc+i}, 0")
    k=CFG['clr']
    for c in range(11):
        if c==1+2*k and not CFG['hclr']: p(f"s_waitcnt vmcnt({1 if k==1 else 0})")
        p("s_barrier")
        if k and c==2*k-2 and c!=2: clears(1)
        if c<3:
            if c==2:
                for i in range(8): p(f"v_add_u32 v{aI+i}, 0x10000, v{aI+i}")
            for i in range(8): p(f"ds_read_b128 {vr(D+4*i,4)}, v{aI+i} offset:{(c&1)*32768}")
            for i in range(8):
                p(f"s_waitcnt lgkmcnt({7-i})")
                for j in range(4):
                    r=D+4*i+j
                    p(f"v_dot2_f32_bf16 v{acc+(j&1)}, v{r}, v{one}, v{acc+(j&1)}\nv_dot2_f32_bf16 v{acc+2+(j&1)}, v{r}, v{r}, v{acc+2+(j&1)}")
        if c==2: p(f"""s_nop 1
            v_add_f32 v{acc}, v{acc}, v{acc+1}
            v_add_f32 v{acc+1}, v{acc+2}, v{acc+3}
            v_mov_b32 v{acc+2}, s{sTAG}
            buffer_store_dwordx4 {vr(acc,4)}, v{vt}, {S4(sWS)}, s{A} offen sc1""")
        if k==2 and c==2: clears(1)
    p("s_barrier")
    mode_read()
    p("s_waitcnt lgkmcnt(0)")
    mode_get()
HST=[]
def gemm_epi(kind):
    t=vT; A=sT+10
    AU=20
    WA=24
    XA=28
    RS=32
    def split(cb):
        c=CS+cb
        p(f"""v_cndmask_b32 v{c}, 0, v{c}, s[{sLO}:{sLO+1}]
        v_cvt_pk_bf16_f32 v{t+5}, v{c}, v{c}
        v_and_b32 v{t+5}, 0xffff0000, v{t+5}
        v_sub_f32 v{t+6}, v{c}, v{t+5}
        v_cvt_pk_bf16_f32 v{WA+2*cb}, v{t+5}, v{t+6}""")
    if CFG['g16']:
        assert CFG['epi2']==2 and not CFG['honly']
        allst=[ACC+16*(2*xb+cb)+4*h for xb in range(2) for cb in range(2) for h in range(2)]
        sto=lambda xb,cb,h: f"buffer_store_dwordx4 {vr(ACC+16*(2*xb+cb)+4*h,4)}, v{aST+2*cb+h}, {S4(sWS)}, s{sSO2 if xb else sSO} offen"
        T=kind=='T'; CV=28 if T else 20; NM=48
        p(f"""v_and_b32 v{t}, 15, v0
        v_lshrrev_b32 v{t+4}, 4, v0
        s_lshl_b32 s{A}, s{sWAVE}, 7
        s_add_u32 s{A}, s{A}, {L_CS}""")
        if T: p(f"""s_lshl_b32 s{A+1}, s{sWR_}, 9
            s_add_u32 s{A+1}, s{A+1}, {L_SA}
            v_lshl_add_u32 v{t+3}, v{t}, 3, s{A+1}
            v_lshl_add_u32 v{t+1}, v{t+4}, 4, s{A}""")
        else: p(f"""v_lshrrev_b32 v{t+3}, 5, v0
            v_lshlrev_b32 v{t+3}, 6, v{t+3}
            v_and_b32 v{t+4}, 1, v{t+4}
            s_lshl_b32 s{A+1}, s{sWR_}, 8
            s_add_u32 s{A+1}, s{A+1}, {L_SM}
            v_lshl_add_u32 v{t+3}, v{t+4}, 4, v{t+3}
            v_add_u32 v{t+3}, s{A+1}, v{t+3}
            v_lshl_add_u32 v{t+1}, v{t}, 2, s{A}""")
        if not CFG['dcs']: p(f"""v_and_b32 v{t+5}, 31, v0
            v_lshl_add_u32 v{t+5}, v{t+5}, 2, s{A}
            s_mov_b32 vcc_lo, 0xffff0000
            s_mov_b32 vcc_hi, 0xffff0000
            v_cndmask_b32 v{CS}, v{CS}, v{CS2}, vcc
            ds_write_b32 v{t+5}, v{CS}""")
        p(f"v_xor_b32 v{t+2}, 128, v{t+1}")
        if CFG['sf2']: p("s_waitcnt lgkmcnt(0)\ns_barrier"); STAMP('E1')
        for tt in range(4):
            if T: p(f"ds_read_b64 {vr(AU+2*tt,2)}, v{t+3} offset:{128*tt}")
            else: p(f"ds_read_b128 {vr(NM+4*tt,4)}, v{t+3} offset:{128*(tt>>1)+32*(tt&1)}\nds_read_b128 {vr(RS+4*tt,4)}, v{t+3} offset:{128*(tt>>1)+32*(tt&1)+L_SR-L_SM}")
        mode_read()
        csr=lambda j: p(f"ds_read_{'b128' if T else 'b32'} {vr(CV+4*j,4) if T else 'v%d'%(CV+j)}, v{t+1+(j>>1)} offset:{64*(j&1)}")
        csr(0); csr(1)
        if CFG['dcs']: csr(2); csr(3)
        if CFG['sf2']:
            if not CFG['dcs']: csr(2); csr(3)
            p("s_waitcnt lgkmcnt(2)")
        else:
            p("s_waitcnt lgkmcnt(0)\ns_barrier")
            STAMP('E1')
            if not CFG['dcs']: csr(2); csr(3)
        mode_get()
        if T:
            p(f"s_cmp_eq_u32 s{sTY}, 0\ns_cselect_b32 s{A}, {hex(f2u(20**-0.5*math.log2(math.e)))}, 1.0")
            for tt in range(4): p(f"v_mul_f32 v{AU+2*tt+1}, s{A}, v{AU+2*tt+1}")
        for cb in range(2):
            if cb: p("s_waitcnt lgkmcnt(0)")
            for xb in range(2):
                for h in range(2):
                    j=2*cb+h; a=ACC+16*(2*xb+cb)
                    for k in range(4):
                        tt=2*xb+(k>>1); r=vr(a+8*h+2*k,2)
                        if T: p(f"v_pk_fma_f32 {r}, {vr(CV+4*j+2*(k&1),2)}, {vr(AU+2*tt,2)}, {r} op_sel:[0,0,0] op_sel_hi:[1,0,1]")
                        else: p(f"v_pk_fma_f32 {r}, {vr(NM+4*tt+2*(k&1),2)}, {vr(CV+2*cb,2)}, {r} op_sel:[0,{h},0] op_sel_hi:[1,{h},1]")
                    for k in range(4):
                        tt=2*xb+(k>>1); r=vr(a+8*h+2*k,2)
                        if T: p(f"v_pk_mul_f32 {r}, {r}, {vr(AU+2*tt,2)} op_sel:[0,1] op_sel_hi:[1,1]")
                        else: p(f"v_pk_mul_f32 {r}, {r}, {vr(RS+4*tt+2*(k&1),2)}")
                    for k in range(4*h,4*h+4): p(f"v_cvt_pk_bf16_f32 v{a+k}, v{a+2*k}, v{a+2*k+1}")
                    if T: p(f"s_nop 0\nv_permlane16_swap_b32 v{a+4*h}, v{a+4*h+2}\nv_permlane16_swap_b32 v{a+4*h+1}, v{a+4*h+3}")
                    p(sto(xb,cb,h)+" "+CFG['qpol'])
        sl=p.lab("qslow"); jn=p.lab("qjn")
        p(f"s_cmp_lg_u32 s{sMODE}, 0\ns_cbranch_scc1 {sl}\n{jn}:")
        COLD.append(f"{sl}:\n"+"\n".join(sto(xb,cb,h)+" sc1" for xb in range(2) for cb in range(2) for h in range(2))+f"\ns_branch {jn}")
    elif CFG['epi2']:
        assert not CFG['honly']
        E2=CFG['epi2']>1
        allst=[ACC+16*(2*xb+cb)+4*h for xb in range(2) for cb in range(2) for h in range(2)]
        sto=lambda xb,cb,h: f"buffer_store_dwordx4 {vr(ACC+16*(2*xb+cb)+4*h,4)}, v{aST+2*cb+h}, {S4(sWS)}, s{sSO2 if xb else sSO} offen"
        def aug(xb,cb):
            a=ACC+16*(2*xb+cb); X=vr(XA+2*xb,2); W=vr(WA+2*cb,2)
            p(f"v_mfma_f32_32x32x8_bf16 {vr(a,16)}, {W if kind=='T' else X}, {X if kind=='T' else W}, {vr(a,16)}")
        def half(xb,cb,h,mid=None):
            a=ACC+16*(2*xb+cb)
            for k in range(4*h,4*h+4):
                if kind=='T': p(f"v_pk_mul_f32 {vr(a+2*k,2)}, {vr(a+2*k,2)}, {vr(AU+2*xb,2)} op_sel:[0,1] op_sel_hi:[1,1]")
                else: p(f"v_pk_mul_f32 {vr(a+2*k,2)}, {vr(a+2*k,2)}, {vr(RS+16*xb+2*k,2)}")
            for k in range(4*h,4*h+4): p(f"v_cvt_pk_bf16_f32 v{a+k}, v{a+2*k}, v{a+2*k+1}")
            if kind=='T': p(f"s_nop 0\nv_permlane32_swap_b32 v{a+4*h}, v{a+4*h+2}\nv_permlane32_swap_b32 v{a+4*h+1}, v{a+4*h+3}")
            p(sto(xb,cb,h)+" "+CFG['qpol'])
        def stat_rd():
            p(f"""ds_read_b64 v[{AU}:{AU+1}], v{t+3}
            ds_read_b64 v[{AU+2}:{AU+3}], v{t+3} offset:256""")
            if kind=='V':
                for xb in range(2):
                    for i in range(4): p(f"ds_read_b128 {vr(RS+16*xb+4*i,4)}, v{t+4} offset:{xb*128+i*32}")
            mode_read()
        def stat_use():
            p(f"v_mov_b32 v{XA}, v{AU}\nv_mov_b32 v{XA+2}, v{AU+2}")
            if kind=='T':
                p(f"""s_cmp_eq_u32 s{sTY}, 0
                s_cselect_b32 s{A}, {hex(f2u(20**-0.5*math.log2(math.e)))}, 1.0
                v_mul_f32 v{AU+1}, s{A}, v{AU+1}
                v_mul_f32 v{AU+3}, s{A}, v{AU+3}""")
            else: p("s_nop 0")
        p(f"""v_and_b32 v{t}, 31, v0
        s_lshl_b32 s{A}, s{sWR_}, 9
        s_add_u32 s{A}, s{A}, {L_SA}
        v_lshl_add_u32 v{t+3}, v{t}, 3, s{A}""")
        if kind=='V':
            p(f"""v_lshrrev_b32 v{t+4}, 5, v0
            s_lshl_b32 s{A}, s{sWR_}, 8
            s_add_u32 s{A}, s{A}, {L_SR}
            v_lshl_add_u32 v{t+4}, v{t+4}, 4, s{A}""")
        if E2: stat_rd()
        p(f"""s_lshl_b32 s{A}, s{sWAVE}, 7
        s_add_u32 s{A}, s{A}, {L_CS}
        v_lshl_add_u32 v{t+1}, v{t}, 2, s{A}
        v_mov_b32 v{WA+1}, 0
        v_mov_b32 v{WA+3}, 0
        v_mov_b32 v{XA+1}, 0
        v_mov_b32 v{XA+3}, 0
        {f"ds_read_b32 v{CS}, v{t+1}" if CFG['dcs'] else f"ds_write_b32 v{t+1}, v{CS}"}
        v_xor_b32 v{t+2}, 128, v{t+1}""")
        nv=8 if kind=='V' else 0
        if CFG['dcs']:
            assert E2
            p(f"ds_read_b32 v{CS+1}, v{t+2}\ns_waitcnt lgkmcnt(1)")
            stat_use()
            split(0)
            p("s_waitcnt lgkmcnt(0)")
            mode_get()
            aug(0,0)
            split(1)
            p("s_barrier")
            STAMP('E1')
            aug(1,0); aug(0,1); aug(1,1)
            p("s_nop 2")
            order=[(0,0,0),(0,0,1),(1,0,0),(1,0,1),(0,1,0),(0,1,1),(1,1,0),(1,1,1)]
        elif E2:
            split(0)
            p(f"s_waitcnt lgkmcnt({2+nv})")
            stat_use()
            aug(0,0); aug(1,0)
            p("s_waitcnt lgkmcnt(0)\ns_barrier")
            STAMP('E1')
            p(f"ds_read_b32 v{CS+1}, v{t+2}")
            mode_get()
            p("s_nop 7\ns_nop 1")
            half(0,0,0)
            p("s_waitcnt lgkmcnt(0)")
            split(1)
            p("s_nop 1")
            aug(0,1); aug(1,1)
            order=[(0,0,1),(1,0,0),(1,0,1),(0,1,0),(0,1,1),(1,1,0),(1,1,1)]
        else:
            p("s_waitcnt lgkmcnt(0)\ns_barrier")
            STAMP('E1')
            p(f"ds_read_b32 v{CS+1}, v{t+2}")
            stat_rd()
            split(0)
            p(f"s_waitcnt lgkmcnt({1+nv})")
            stat_use()
            aug(0,0)
            split(1)
            p("s_nop 1")
            aug(0,1); aug(1,0); aug(1,1)
            p("s_waitcnt lgkmcnt(0)")
            mode_get()
            p("s_nop 4")
            order=[(xb,cb,h) for xb in range(2) for cb in range(2) for h in range(2)]
        for o in order: half(*o)
        sl=p.lab("qslow"); jn=p.lab("qjn")
        p(f"s_cmp_lg_u32 s{sMODE}, 0\ns_cbranch_scc1 {sl}\n{jn}:")
        COLD.append(f"{sl}:\n"+"\n".join(sto(xb,cb,h)+" sc1" for xb in range(2) for cb in range(2) for h in range(2))+f"\ns_branch {jn}")
    else:
        p(f"""v_and_b32 v{t}, 31, v0
        s_lshl_b32 s{A}, s{sWC}, 1
        s_or_b32 s{A}, s{A}, s{sWR_}
        s_lshl_b32 s{A}, s{A}, 7
        s_add_u32 s{A}, s{A}, {L_CS}
        v_lshl_add_u32 v{t+1}, v{t}, 2, s{A}
        s_lshl_b32 s{A}, s{sWR_}, 9
        s_add_u32 s{A}, s{A}, {L_SA}
        v_lshl_add_u32 v{t+3}, v{t}, 3, s{A}
        ds_write_b32 v{t+1}, v{CS}
        v_xor_b32 v{t+2}, 128, v{t+1}
        v_mov_b32 v{WA+1}, 0
        v_mov_b32 v{WA+3}, 0
        v_mov_b32 v{XA+1}, 0
        v_mov_b32 v{XA+3}, 0""")
        if kind=='V':
            p(f"""v_lshrrev_b32 v{t+4}, 5, v0
            s_lshl_b32 s{A}, s{sWR_}, 8
            s_add_u32 s{A}, s{A}, {L_SR}
            v_lshl_add_u32 v{t+4}, v{t+4}, 4, s{A}""")
        p("s_waitcnt lgkmcnt(0)\ns_barrier")
        STAMP('E1',1)
        p(f"""ds_read_b32 v{CS+1}, v{t+2}
        ds_read_b64 v[{AU}:{AU+1}], v{t+3}
        ds_read_b64 v[{AU+2}:{AU+3}], v{t+3} offset:256""")
        mode_read()
        if kind=='V':
            for xb in range(2):
                for i in range(4): p(f"ds_read_b128 {vr(RS+16*xb+4*i,4)}, v{t+4} offset:{xb*128+i*32}")
        def split(cb):
            c=CS+cb
            p(f"""v_cndmask_b32 v{c}, 0, v{c}, s[{sLO}:{sLO+1}]
            v_cvt_pk_bf16_f32 v{t+5}, v{c}, v{c}
            v_and_b32 v{t+5}, 0xffff0000, v{t+5}
            v_sub_f32 v{t+6}, v{c}, v{t+5}
            v_cvt_pk_bf16_f32 v{WA+2*cb}, v{t+5}, v{t+6}""")
        split(0)
        p(f"s_waitcnt lgkmcnt({8 if kind=='V' else 0})")
        split(1)
        p(f"v_mov_b32 v{XA}, v{AU}\nv_mov_b32 v{XA+2}, v{AU+2}")
        mode_get()
        if kind=='T':
            p(f"""s_cmp_eq_u32 s{sTY}, 0
            s_cselect_b32 s{A}, {hex(f2u(20**-0.5*math.log2(math.e)))}, 1.0
            v_mul_f32 v{AU+1}, s{A}, v{AU+1}
            v_mul_f32 v{AU+3}, s{A}, v{AU+3}""")
        else: p("s_nop 0")
        for xb in range(2):
            for cb in range(2):
                a=ACC+16*(2*xb+cb); X=vr(XA+2*xb,2); W=vr(WA+2*cb,2)
                p(f"v_mfma_f32_32x32x8_bf16 {vr(a,16)}, {W if kind=='T' else X}, {X if kind=='T' else W}, {vr(a,16)}")
        p("s_waitcnt lgkmcnt(0)\ns_nop 7")
        if CFG['honly']: p(f"s_or_b32 s{sHALO}, s{sHALO}, s{sMODE}")
        allst=[]
        for xb in range(2):
            st=[]
            for cb in range(2):
                a=ACC+16*(2*xb+cb)
                for k in range(8):
                    if kind=='T': p(f"v_pk_mul_f32 {vr(a+2*k,2)}, {vr(a+2*k,2)}, {vr(AU+2*xb,2)} op_sel:[0,1] op_sel_hi:[1,1]")
                    else: p(f"v_pk_mul_f32 {vr(a+2*k,2)}, {vr(a+2*k,2)}, {vr(RS+16*xb+2*k,2)}")
                for k in range(8): p(f"v_cvt_pk_bf16_f32 v{a+k}, v{a+2*k}, v{a+2*k+1}")
                if kind=='T':
                    p(f"""v_permlane32_swap_b32 v{a}, v{a+2}
                    v_permlane32_swap_b32 v{a+1}, v{a+3}
                    v_permlane32_swap_b32 v{a+4}, v{a+6}
                    v_permlane32_swap_b32 v{a+5}, v{a+7}""")
                for h in range(2):
                    st.append(f"buffer_store_dwordx4 {vr(a+4*h,4)}, v{aST+2*cb+h}, {S4(sWS)}, s{sSO2 if xb else sSO} offen")
                    allst.append(a+4*h)
            dual(st,CFG['qpol'],sHALO if CFG['honly'] else sMODE)
    STAMP('st')
    if CFG['honly']:
        p(f"""v_mov_b32 v{t}, 0
        v_mov_b32 v{t+1}, s{sTAG}
        s_lshl_b32 s{A}, s{sWC}, 2
        s_add_u32 s{A}, s{A}, {F_STG}
        v_mov_b32 v{t+2}, s{A}
        v_mov_b32 v{t+3}, 1
        s_mov_b64 exec, 1
        s_waitcnt vmcnt(0)
        ds_add_u32 v{t+2}, v{t+3}""")
        dual([f"buffer_store_dword v{t+1}, v{t}, {S4(sWS)}, s{sFO} offen"])
        p("s_mov_b64 exec, -1")
        STAMP('fl')
        return
    nh=p.lab("nohalo"); jh=p.lab("jhalo")
    if CFG['hdef']>=0 or CFG['hs2']: A=sT+18
    hst=[f"buffer_store_dwordx4 {vr(allst[i],4)}, v{aST+(i&3)}, {S4(sWS)}, s{A+(i>>2)} offen {CFG['hpol']}" for i in range(8)]
    p(f"""v_mov_b32 v{t}, 0
    v_mov_b32 v{t+1}, s{sTAG}
    s_add_u32 s{A}, s{sSO}, {KH-KB}
    s_add_u32 s{A+1}, s{sSO2}, {KH-KB}""")
    if CFG['hst']:
        p(f"s_cmp_eq_u32 s{sHALO}, 0\ns_cbranch_scc1 {nh}")
        for i in range(8): p(f"ds_write_b128 v{aSG}, {vr(allst[i],4)} offset:{i*1024}")
        for k in range(4): p(f"v_add_u32 v{t+4+k}, s{A}, v{aST+k}")
        p(f"""s_lshl_b32 s{A}, s{sWC}, 2
        s_add_u32 s{A}, s{A}, {F_STG}
        ds_write_b128 v{aSG}, {vr(t+4,4)} offset:8192
        v_mov_b32 v{t+2}, s{A}
        v_mov_b32 v{t+3}, 1
        s_mov_b64 exec, 1
        ds_add_u32 v{t+2}, v{t+3}
        s_waitcnt vmcnt(0)""")
        dual([f"buffer_store_dword v{t+1}, v{t}, {S4(sWS)}, s{sFO} offen"])
        p(f"""ds_add_u32 v{t+2}, v{t+3} offset:8
        s_branch {jh}
        {nh}:
        s_waitcnt vmcnt(0)
        s_mov_b64 exec, 1""")
        dual([f"buffer_store_dword v{t+1}, v{t}, {S4(sWS)}, s{sFO} offen"])
        p(f"{jh}:\ns_mov_b64 exec, -1")
        STAMP('fl')
        return
    if CFG['hdef']>=0:
        HST[:]=hst
        p("s_waitcnt vmcnt(0)")
    elif CFG['hearly']:
        p(f"s_cmp_eq_u32 s{sHALO}, 0\ns_cbranch_scc1 {nh}")
        for x in hst: p(x)
        p(f"s_waitcnt vmcnt(8)\ns_branch {jh}\n{nh}:\ns_waitcnt vmcnt(0)\n{jh}:")
    else: p("s_waitcnt vmcnt(0)")
    p("s_mov_b64 exec, 1")
    dual([f"buffer_store_dword v{t+1}, v{t}, {S4(sWS)}, s{sFO} offen"])
    p(f"s_mov_b64 exec, -1")
    if not CFG['hearly'] and CFG['hdef']<0:
        HST[:]=hst
        p(f"s_cmp_lg_u32 s{sHAL2}, 1\ns_cbranch_scc1 {nh}" if CFG['hs2'] else f"s_cmp_eq_u32 s{sHALO}, 0\ns_cbranch_scc1 {nh}")
        for x in hst: p(x)
        p(f"{nh}:")
    STAMP('fl')
import struct
def f2u(x): return struct.unpack("<I",struct.pack("<f",x))[0]

aLin,aTl,aKm,aKt,aV,aFl,aO,aQ0,aQ1=246,247,248,249,250,251,252,253,254
aKm1,aKt1,aV1=216,217,218
QM=[28,34]; QT=[32,38]; PP=40
KM=[48,62]; KT=[52,66]; VV=[[54,58],[68,72]]
SS=[80,96]; OO=[112,128]; CD=200; CF=230
cVM=8; sQ=[10,11]; sOm=[12,13]; sOt=[14,15]; cXO,cJ,cF,cK,cV,cL,cHO,cT0,cHX=range(16,25); sOSC=sT+15; sFB=sT+16; aWR=225
NINF="0xff800000"
def att_setup():
    t=vT; A=sT+7; B=sT+8; C=sT+17; sF=cF
    wo_pre1()
    att_ids()
    moe_role()
    p(f"v_mov_b32 v{aCLS}, 0x207")
    if CFG['hkv']: p(f"v_lshlrev_b32 v{aLin}, 4, v0\nv_mov_b32 v{aFl}, {F_G1}")
    else:
        flag_addr(aFl,t,1,A,B,C)
        p(f"""s_lshl_b32 s{sF}, s{sG}, 11
        s_lshl_b32 s{A}, s{sHF}, 4
        v_mov_b32 v{t}, s{A}
        v_cmp_gt_u32 vcc, 8, v0
        s_add_u32 s{sF}, s{sF}, {FL}
        s_mov_b32 s{sK1024}, 1024
        v_cndmask_b32 v{t}, 8, v{t}, vcc
        v_add_u32 v{aFl}, v{aFl}, v{t}""")
        kv_addr(aLin,aTl,t)
    p(f"""s_lshl_b32 s{A}, s{sHF}, 10
    s_add_u32 s{B}, s{A}, {L_KV}
    v_add_u32 v{aKm}, s{B}, v{aLin}
    s_sub_u32 s{B}, {L_KV+1024}, s{A}
    v_add_u32 v{aKm1}, s{B}, v{aLin}
    v_and_b32 v{t}, 31, v0
    v_lshrrev_b32 v{t+1}, 5, v0
    v_xor_b32 v{t+2}, s{sHO}, v{t+1}
    v_lshlrev_b32 v{t+2}, 3, v{t+2}
    v_lshl_add_u32 v{t+2}, v{t}, 4, v{t+2}
    s_lshl_b32 s{A}, s{sHF}, 9
    s_add_u32 s{B}, s{A}, {L_KV+2048}
    v_add_u32 v{aKt}, s{B}, v{t+2}
    s_sub_u32 s{B}, {L_KV+2048+512}, s{A}
    v_add_u32 v{aKt1}, s{B}, v{t+2}
    v_mul_u32_u24 v{t+2}, 320, v{t+1}
    v_lshl_add_u32 v{t+2}, v{t}, 4, v{t+2}
    s_mul_i32 s{A}, s{sHF}, 1280
    s_add_u32 s{B}, s{A}, {L_KV+3072}
    v_add_u32 v{aV}, s{B}, v{t+2}
    s_sub_u32 s{B}, {L_KV+3072+1280}, s{A}
    v_add_u32 v{aV1}, s{B}, v{t+2}
    v_lshlrev_b32 v{t+2}, 2, v{t+1}
    v_sub_u32 v{t+2}, v{t}, v{t+2}
    s_cmp_eq_u32 s{sHF}, 0
    s_cselect_b32 s{A}, {NINF}, 0
    s_cselect_b32 s{B}, 0, {NINF}
    v_mov_b32 v{t+3}, s{A}
    v_mov_b32 v{t+4}, s{B}""")
    for i in range(16):
        m=C+1+2*(i%2)+((C+1)%2)
        ri=8*(i>>2)+(i&3)
        p(f"v_cmp_le_i32 s[{m}:{m+1}], {ri}, v{t+2}")
        if i>0:
            m2=C+1+2*((i-1)%2)+((C+1)%2)
            if i==1: p("s_nop 0")
            p(f"v_cndmask_b32 v{CD+i-1}, v{t+3}, v{t+4}, s[{m2}:{m2+1}]\nv_cndmask_b32 v{CF+i-1}, v{t+4}, v{t+3}, s[{m2}:{m2+1}]")
    p(f"""s_nop 0
    v_cndmask_b32 v{CD+15}, v{t+3}, v{t+4}, s[{m}:{m+1}]
    v_cndmask_b32 v{CF+15}, v{t+4}, v{t+3}, s[{m}:{m+1}]
    v_cmp_eq_u32 s[{m}:{m+1}], 20, v{t}
    v_cmp_eq_u32 vcc, 24, v{t}
    s_mov_b32 s{cHO}, s{sHO}
    s_or_b64 s[{cVM}:{cVM+1}], vcc, s[{m}:{m+1}]""")
    p(f"""v_bfe_u32 v{t+2}, v0, 4, 1
    v_mul_u32_u24 v{t+2}, 20480, v{t+2}
    v_lshl_add_u32 v{t+2}, v{t+1}, 8, v{t+2}
    v_and_b32 v{t+3}, 15, v0
    v_lshl_add_u32 v{aO}, v{t+3}, 4, v{t+2}
    s_xor_b32 s{cHX}, s{sHF}, s{sHH}
    s_mov_b32 s{cT0}, s{sT0}
    s_lshl_b32 s{A}, s{sWAVE}, 1
    s_sub_u32 s{A}, 7, s{A}
    v_mul_u32_u24 v{t+2}, s{A}, v0
    s_add_u32 s{A}, s{sT0}, s{sWAVE}
    v_add_lshl_u32 v{aFO}, v{t+2}, s{A}, 12
    s_lshl_b32 s{A}, s{sHD}, 7
    s_add_u32 s{A}, s{A}, {FO}
    v_add_u32 v{aFO}, s{A}, v{aFO}""")
    for q in range(2):
        p(f"""s_sub_u32 s{A}, 7, s{sWAVE}
        s_cmp_eq_u32 s{sHF}, {q}
        s_cselect_b32 s{A}, s{A}, s{sWAVE}
        s_add_u32 s{A}, s{A}, s{sT0}""")
        p(f"""s_mul_i32 s{sQ[q]}, s{A}, 2560
        s_mul_i32 s{B}, s{sPH}, {64*2560}
        s_add_u32 s{sQ[q]}, s{sQ[q]}, s{B}
        s_mul_i32 s{A}, s{A}, 40960
        s_mul_i32 s{B}, s{sPH}, 1280
        s_add_u32 s{A}, s{A}, s{B}
        s_add_u32 s{A}, s{A}, {OB}
        s_mul_i32 s{B}, s{sHO}, 768
        s_add_u32 s{sOm[q]}, s{A}, s{B}
        s_lshl_b32 s{B}, s{sHO}, 3
        s_add_u32 s{sOt[q]}, s{A}, s{B}""")
    sK=cK; sV=cV; sL=cL
    if not CFG['hkv']: p(f"""s_lshl_b32 s{A}, s{sWAVE}, 1
    s_sub_u32 s{B}, -2, s{A}
    s_cmp_eq_u32 s{sHF}, 0
    s_cselect_b32 s{A}, s{A}, s{B}
    s_add_u32 s{A}, s{A}, s{sT0}
    s_mul_i32 s{sK}, s{A}, 2560
    s_mul_i32 s{sV}, s{A}, 1280
    s_mul_i32 s{A}, s{sPH}, {64*2560}
    s_add_u32 s{sK}, s{sK}, s{A}
    s_add_u32 s{sK}, s{sK}, {KB}
    s_mul_i32 s{A}, s{sHD}, 81920
    s_add_u32 s{sV}, s{sV}, s{A}
    s_add_u32 s{sV}, s{sV}, {VB}
    s_mul_i32 s{sL}, s{sWAVE}, 5632
    s_add_u32 s{sL}, s{sL}, {L_KV+4*5632}""")
    p(f"""s_mul_i32 s{A}, s{sHO}, 1536
    v_add_u32 v{aQ0}, s{A}, v{aLin}
    s_lshl_b32 s{A}, s{sHO}, 3
    v_add_u32 v{aQ1}, s{A}, v{aLin}""")
aXD=219; aXL=223; sLCX=25
def xr_loads():
    if CFG['xdma']:
        A=sT+7; B=sT+8
        p(f"""s_mul_i32 s{A}, s{sWAVE}, 2560
        s_add_u32 m0, s{A}, {L_STG}
        s_add_u32 s{A}, s{cXO}, 6720
        s_add_u32 s{B}, s{cXO}, 13440
        s_mov_b32 exec_hi, 0x0fffffff
        buffer_load_dwordx4 v{aXD}, {S4(sX)}, s{cXO} offen lds
        buffer_load_dwordx4 v{aXD}, {S4(sX)}, s{A} offen offset:960 lds
        s_mov_b32 exec_hi, 0xff
        buffer_load_dwordx4 v{aXD}, {S4(sX)}, s{B} offen offset:1920 lds
        s_mov_b32 m0, {L_SA}
        s_mov_b64 exec, 0x3ff
        buffer_load_dwordx4 v{aLin}, {S4(sWR)}, s{cJ} offen lds
        s_mov_b64 exec, -1""")
        return
    for o,n in ((0,4),(4,4),(8,2)): p(f"buffer_load_dwordx{n} {vr(XR+o,n)}, v{aX2}, {S4(sX)}, s{cXO} offen offset:{4*o}")
    for o,n in ((0,4),(4,4),(8,2)): p(f"buffer_load_dwordx{n} {vr(WR_+o,n)}, v{aWR}, {S4(sWR)}, s{cJ} offen offset:{4*o}")
def att_go():
    t=vT; A=sT+7; B=sT+8; C=sT+17
    nh=p.lab("nohs"); lp=p.lab("fp"); ok=p.lab("fpok"); md=p.lab("fpm")
    ld=f"buffer_load_dword v{t+10}, v{aFl}, {S4(sWS)}, s{cF} offen sc1"
    OWN=CFG['hsp']&2; sOWN=sT+19
    if OWN:
        assert not (CFG['hkv'] or CFG['hst'] or CFG['honly'] or CFG['hdef']>=0) and CFG['xru']>=0
        p(f"s_andn2_b32 s{sOWN}, s{sHAL2}, s{sMODE}\ns_cbranch_scc1 L_nold\n{ld}\nL_nold:")
    elif not CFG['hkv']: p(ld)
    p(f"""v_mov_b32 v{t+4}, 0x3f803f80
    s_or_b32 s{sOSC}, s{cHX}, s{sMODE}
    s_mov_b32 s{sFB}, 0
    s_mul_i32 s{A}, s{sMODE}, {OB2-OB}
    v_add_u32 v{aO}, s{A}, v{aO}""")
    HD=CFG['hdef']>=0
    def vvi(b_):
        for mm in range(2):
            for r in range(4): p(f"v_cndmask_b32 v{VV[b_][mm]+r}, 0, v{t+4}, s[{cVM}:{cVM+1}]")
    vvi(0)
    HS=CFG['hs2']
    if not HD and not HS: vvi(1)
    for q in range(2): p(f"v_mov_b32 v{QT[q]}, 0\nv_mov_b32 v{QT[q]+1}, 0")
    if CFG['lclr']:
        for r in range(4): p(f"v_mov_b32 v{PP+r}, -1")
        p(f"""s_lshl_b32 s{A}, s2, 2
        s_add_u32 s{A}, s{A}, s{sWAVE}
        s_mul_i32 s{B}, s{A}, 640
        s_add_u32 s{B}, s{B}, {CAND}
        v_mov_b32 v{PP+5}, s{B}
        s_min_u32 s{B}, s{A}, 191
        s_lshl_b32 s{B}, s{B}, 7
        s_add_u32 s{B}, s{B}, {ACT-640}
        v_mov_b32 v{PP+6}, s{B}
        v_cmp_gt_u32 vcc, 40, v0
        s_cmp_lt_u32 s{A}, 192
        s_cselect_b32 s{sLCX}, 0xff00, 0
        s_or_b32 s{sLCX}, s{sLCX}, 0xff
        v_cndmask_b32 v{PP+5}, v{PP+6}, v{PP+5}, vcc
        v_add_u32 v{PP+4}, v{PP+5}, v{aLin}""")
    if CFG['osent']: wo_scal()
    assert CFG['hsent'] or not CFG['hkv']
    if CFG['hkv']:
        p(f"v_mov_b32 v{t+4}, {F_FS}"); lds_wait(t+4,t+5,C,'gt',1,0)
    else:
        if CFG['hst'] or HD or HS or CFG['honly']: p(f"s_mov_b32 s{C}, {SPIN}\ns_waitcnt vmcnt(0)")
        else: p(f"""s_lshr_b32 s{A}, s{sWAVE}, 1
        s_lshl_b32 s{A}, s{A}, 2
        s_add_u32 s{A}, s{A}, {F_STG}
        v_mov_b32 v{t+4}, s{A}
        v_mov_b32 v{t+5}, 1
        {f"s_cmp_lg_u32 s{sOWN}, 0" if OWN else ""}
        {f"s_cbranch_scc1 L_own" if OWN else ""}
        s_mov_b32 s{C}, {SPIN}
        s_cmp_eq_u32 s{sHAL2}, 0
        s_waitcnt vmcnt(0)
        s_cbranch_scc1 {nh}
        s_mov_b64 exec, 1
        ds_add_u32 v{t+4}, v{t+5}
        s_mov_b64 exec, -1
        {nh}:""")
        STAMP('hack')
        p(f"""s_branch {md}
        {lp}:
        {ld}
        s_waitcnt vmcnt(0)
        {md}:
        v_cmp_ne_u32 vcc, s{sTAG}, v{t+10}
        s_nop 0
        s_cbranch_vccz {ok}""")
        spin(C,lp,ok)
        p(f"s_branch {lp}")
        if OWN:
            p(f"L_own:\nv_mov_b32 v{t+6}, {F_OWN}\ns_mov_b64 exec, 1\nds_add_u32 v{t+6}, v{t+5} offset:{F_FS-F_OWN+65536}\ns_mov_b64 exec, -1".replace(f"offset:{F_FS-F_OWN+65536}","") if 0 else f"L_own:\nv_mov_b32 v{t+6}, {F_FS}\ns_mov_b64 exec, 1\nds_add_u32 v{t+6}, v{t+5}\ns_mov_b64 exec, -1\nv_mov_b32 v{t+6}, {F_OWN}"); lds_wait(t+6,t+7,C,'gt',1,0)
        p(f"{ok}:")
    STAMP('fseen')
    if not CFG['hkv'] and not HS: kv_dma(aLin,aTl,cK,cV,cL,A,B,cHO)
    for q in range(2): p(f"buffer_load_dwordx4 {vr(QM[q],4)}, v{aQ0}, {S4(sWS)}, s{sQ[q]} offen {CFG['ldp']}")
    p(f"s_mov_b64 exec, s[{sLO}:{sLO+1}]")
    for q in range(2): p(f"buffer_load_dwordx2 {vr(QT[q],2)}, v{aQ1}, {S4(sWS)}, s{sQ[q]} offen offset:1024 {CFG['ldp']}")
    if CFG['lclr']:
        assert not (HD or CFG['hkv'] or OWN) and CFG['xru']>CFG['lcu']
        st=[f"buffer_store_dwordx2 {vr(PP,2)}, v{aO}, {S4(sWS)}, s{sOt[q]} offen offset:512" for q in range(2)]+["s_mov_b64 exec, -1"]+[f"buffer_store_dwordx4 {vr(PP,4)}, v{aO}, {S4(sWS)}, s{sOm[q]} offen" for q in range(2)]
        p(f"s_cmp_lg_u32 s{sOSC}, 0\ns_cbranch_scc1 L_lcs")
        for x in st: p(x)
        p("s_branch L_lcj\nL_lcs:")
        for x in st: p(x+(" sc1" if x.startswith("buffer") else ""))
        p(f"L_lcj:\ns_mov_b32 exec_hi, s{sLCX}\nbuffer_store_dwordx4 {vr(PP,4)}, v{PP+4}, {S4(sWS)}, 0 offen sc1")
    if HD:
        assert CFG['xru']>CFG['hdef']
        n2=p.lab("nohd"); j2=p.lab("jhd")
        p(f"""s_mov_b64 exec, 1
        v_mov_b32 v{t}, {F_G1}
        v_mov_b32 v{t+1}, 1
        ds_add_u32 v{t}, v{t+1} offset:{F_FS-F_G1}
        s_mov_b64 exec, -1
        v_mov_b32 v{aFl}, {F_G1}
        s_cmp_eq_u32 s{sHAL2}, 0
        s_cbranch_scc1 {n2}""")
        g1=lambda n: p(f"s_mov_b64 exec, 1\ns_waitcnt vmcnt({n})\nds_add_u32 v{t}, v{t+1}\ns_mov_b64 exec, -1")
        if CFG['hdg']=='G1':
            g1(4); lds_wait(aFl,t+5,C,'gt',4,0)
            for x in HST: p(x)
            p("s_nop 1"); vvi(1)
        else:
            if CFG['hdg']=='FS': p(f"v_mov_b32 v{t+6}, {F_FS}"); lds_wait(t+6,t+5,C,'gt',4,0)
            for x in HST: p(x)
            p("s_nop 1"); vvi(1)
            g1(12); lds_wait(aFl,t+5,C,'gt',4,0)
        p(f"s_waitcnt vmcnt(8)\ns_branch {j2}\n{n2}:")
        vvi(1); g1(4); lds_wait(aFl,t+5,C,'gt',4,0)
        p(f"""s_waitcnt vmcnt(0)
        {j2}:
        s_lshr_b32 s{A}, s{sWAVE}, 1
        s_lshl_b32 s{A}, s{A}, 2
        s_add_u32 s{A}, s{A}, {F_STG}
        v_mov_b32 v{t+4}, s{A}""")
    elif HS:
        assert CFG['xru']>CFG['hs2u'] and not (CFG['lclr'] or OWN or CFG['hkv'] or CFG['hst'] or CFG['honly'] or CFG['hearly'] or CFG['padk']==1)
        n2=p.lab("hsu"); n3=p.lab("hsd"); j2=p.lab("jhs"); j3=p.lab("jhs"); j4=p.lab("jhs")
        fs=f"ds_add_u32 v{t}, v{t+1} offset:{F_FS-F_G1}"
        p("s_mov_b64 exec, -1")
        kv_dma(aLin,aTl,cK,cV,cL,A,B,cHO)
        p(f"""v_mov_b32 v{t}, {F_G1}
        v_mov_b32 v{t+1}, 1
        v_mov_b32 v{aFl}, {F_G1}
        v_mov_b32 v{vHF}, s{sTAG}
        v_mov_b32 v{vHF+1}, 0
        s_cmp_eq_u32 s{sHAL2}, 2
        s_cbranch_scc1 {n3}""")
        vvi(1)
        p(f"""s_mov_b64 exec, 1
        s_cmp_eq_u32 s{sHAL2}, 1
        s_cbranch_scc1 {n2}
        {fs if 'FS' in CFG['gm']+CFG['gr'] else ""}
        s_waitcnt vmcnt(0)
        s_branch {j2}
        {n2}:
        buffer_store_dword v{vHF}, v{vHF+1}, {S4(sWS)}, s{sHFA} offen sc1
        {fs}
        s_waitcnt vmcnt(1)
        s_branch {j2}
        {n3}:
        s_mov_b64 exec, 1
        {fs}
        s_mov_b64 exec, -1""")
        if CFG['hs2g']=='FS': p(f"v_mov_b32 v{t+6}, {F_FS}"); lds_wait(t+6,t+5,C,'gt',4,0)
        elif CFG['hs2g']=='KV': p("s_waitcnt vmcnt(0)")
        for x in HST: p(x)
        p("s_nop 1"); vvi(1)
        p(f"""s_mov_b64 exec, 1
        s_waitcnt vmcnt(8)
        {j2}:
        ds_add_u32 v{t}, v{t+1}
        s_mov_b64 exec, -1""")
        lds_wait(aFl,t+5,C,'gt',4,0)
    elif CFG['hkv']: p("s_mov_b64 exec, -1")
    if CFG['lay'] and CFG['padk']==1:
        for w in range(3): p(f"s_cmp_eq_u32 s{sWAVE}, {w}\ns_cbranch_scc1 L_pv{w}")
        p("s_branch L_pv3\nL_kvb:")
    if not HD and not HS and not CFG['hkv']: p(f"""s_mov_b64 exec, 1
    v_mov_b32 v{t}, {F_G1}
    v_mov_b32 v{t+1}, 1
    {f"ds_add_u32 v{t}, v{t+1} offset:{F_FS-F_G1}" if 'FS' in CFG['gm']+CFG['gr'] else ""}
    {f"s_cmp_eq_u32 s{sOWN}, 0" if OWN else ""}
    {f"s_cbranch_scc1 L_nohk" if OWN else ""}
    {f"s_waitcnt vmcnt(10)" if OWN else ""}
    {f"ds_add_u32 v{t+4}, v{t+1}" if OWN else ""}
    {f"L_nohk:" if OWN else ""}
    s_waitcnt vmcnt({9 if CFG['lclr'] else 4})
    ds_add_u32 v{t}, v{t+1}
    s_mov_b64 exec, -1
    v_mov_b32 v{aFl}, {F_G1}""")
    if CFG['hkv']: lds_wait(aFl,t+5,C,'gt',4,0)
    if CFG['xru']<0: xr_loads()
    if not HD and not HS:
        if not CFG['hkv']: lds_wait(aFl,t+5,C,'gt',4,0)
        p(f"s_waitcnt vmcnt({6 if CFG['xru']<0 else 5 if CFG['lclr'] else 0})")
    STAMP('kv')
    p(f"""s_cmp_eq_u32 s{sWAVE}, 1
    s_cbranch_scc1 L_av1
    s_cmp_eq_u32 s{sWAVE}, 2
    s_cbranch_scc1 L_av2
    s_cmp_eq_u32 s{sWAVE}, 3
    s_cbranch_scc1 L_av3""")
    if CFG['lay']: p("s_branch L_av0")
PG=".p2alignl 12, 0xbf810000"
KVB=lambda b: 'L_kvb' if CFG['padk']==1 else f'L_pkb{b}'
def kreads(n,b_):
    o=(n>>1)*5632
    return [f"ds_read_b128 {vr(KM[b_],4)}, v{(aKm,aKm1)[n&1]} offset:{o}", f"ds_read_b64 {vr(KT[b_],2)}, v{(aKt,aKt1)[n&1]} offset:{o}"]
def vreads(n,b_):
    o=(n>>1)*5632; a=(aV,aV1)[n&1]
    return [f"s_mov_b64 exec, s[{sLO+2}:{sLO+3}]", f"ds_read_b128 {vr(VV[b_][0],4)}, v{a} offset:{o}", f"ds_read_b128 {vr(VV[b_][1],4)}, v{a} offset:{o+640}", "s_mov_b64 exec, -1"]
def att_variant(w):
    U=[]
    for n in range(15-w,8+w,-1): U.append((0,n))
    for n in range(8+w,6-w,-1): U+= [(0,n),(1,n)]
    for n in range(6-w,w-1,-1): U.append((1,n))
    assert len(U)==18
    diag=[15-w,8+w]
    tiles=[]; tau=[]
    for q,n in U:
        if not tiles or tiles[-1]!=n: tiles.append(n)
        tau.append(len(tiles)-1)
    first=[tau.index(i) for i in range(len(tiles))]
    started=[0,0]
    def QK(u):
        q,n=U[u]; b_=tau[u]&1; S=vr(SS[u&1],16)
        c=vr(CD,16) if n==diag[q] else (vr(CF,16) if n==diag[q]-8 else "0")
        return [f"v_mfma_f32_32x32x16_bf16 {S}, {vr(KM[b_],4)}, {vr(QM[q],4)}, {c}", f"v_mfma_f32_32x32x8_bf16 {S}, {vr(KT[b_],2)}, {vr(QT[q],2)}, {S}"]
    def PV(u,m):
        q,n=U[u]; O=vr(OO[q],16)
        c=O if started[q] else "0"; started[q]=1
        return f"v_mfma_f32_32x32x16_bf16 {O}, {vr(VV[tau[u]&1][m],4)}, {vr(PP+4*m,4)}, {c}"
    if CFG['lay']:
        p(PG)
        if CFG['padk']: p(f"L_pv{w}:\ns_branch {(('L_padW','L_padM',KVB(1),KVB(1)) if CFG['padk']<3 else ('L_pv1','L_pv2','L_pv3','L_padW'))[w]}")
    p(f"L_av{w}:")
    for i,f in enumerate(first):
        if f<=1:
            for x in kreads(tiles[i],i&1): p(x)
    for x in vreads(tiles[0],0): p(x)
    p("s_waitcnt lgkmcnt(0)")
    for x in QK(0): p(x)
    p("s_nop 7\ns_nop 3")
    pend=False
    H=first[tiles.index(7)]
    H2=first[tiles.index(3)]
    Hs=[H,H2]+([first[tiles.index(1)]] if CFG['hs2'] and 1 in tiles else [])
    for u in range(18):
        S=SS[u&1]
        e=lambda i: p(f"v_exp_f32 v{S+i}, v{S+i}")
        c=lambda k: p(f"v_cvt_pk_bf16_f32 v{PP+k}, v{S+2*k}, v{S+2*k+1}")
        kr=[x for i,f in enumerate(first) if f==u+2 for x in kreads(tiles[i],i&1)]
        vr_=[x for i,f in enumerate(first) if f==u+1 for x in vreads(tiles[i],i&1)]
        late=(u+2 in Hs); pre=(u+3 in Hs); hk=Hs.index(u+2) if late else Hs.index(u+3) if pre else None
        assert not (late and pre)
        STAMP('u%d'%u)
        e(0); e(1)
        if u>0: p(PV(u-1,1))
        if u==CFG['xru']: xr_loads()
        if u==CFG['hdef']:
            p(f"v_mov_b32 v{vT+5}, 1\ns_waitcnt vmcnt(0)\ns_mov_b64 exec, 1\nds_add_u32 v{vT+4}, v{vT+5}\ns_mov_b64 exec, -1")
            STAMP('hack')
        if CFG['hs2'] and u==CFG['hs2u']:
            p(f"s_cmp_eq_u32 s{sHAL2}, 2\ns_cbranch_scc1 L_hb{w}\nL_hr{w}:")
        if CFG['lclr'] and u==CFG['lcu']:
            assert u<7
            p(f"s_waitcnt vmcnt(0)\ns_mov_b64 exec, 1\nds_add_u32 v{aFl}, v{vT+1} offset:{F_CC-F_G1}\ns_mov_b64 exec, -1")
        e(2)
        if not late:
            for x in kr: p(x)
        if pre: p(f"ds_read_b32 v{vT}, v{aFl} offset:{F_M+4*hk-F_G1}")
        e(3); c(0); c(1)
        if pend: p(f"s_waitcnt lgkmcnt({(len(kr) if not late else 0)+(1 if pre else 0)})")
        qk=QK(u+1) if u<17 else [None,None]
        if qk[0]: p(qk[0])
        e(4)
        if late:
            p(f"v_cmp_gt_u32 vcc, 1, v{vT}")
        e(5)
        if late:
            p(f"s_cbranch_vccnz L_g2w{w}{hk}\nL_g2r{w}{hk}:")
            for x in kr: p(x)
        for x in vr_: p(x)
        e(6); e(7); c(2); c(3)
        if qk[1]: p(qk[1])
        e(8); e(9); e(10); e(11)
        p(PV(u,0))
        c(4); c(5); e(12); e(13); e(14); e(15); c(6); c(7)
        pend=bool(kr or vr_ or pre)
        if u==H-1:
            p(f"s_cmp_eq_u32 s{cT0}, 0\ns_cbranch_scc1 L_ex{w}")
            exq=PV(u,1)
    p("s_nop 1")
    p(PV(17,1))
    p("s_branch L_afin")
    if CFG['hs2']:
        p(f"""L_hb{w}:
        s_waitcnt vmcnt(0)
        s_mov_b64 exec, 1
        buffer_store_dword v{vHF}, v{vHF+1}, {S4(sWS)}, s{sHFA} offen sc1
        s_mov_b64 exec, -1""")
        STAMP('hb')
        p(f"s_branch L_hr{w}")
    for hk in range(len(Hs)):
        p(f"L_g2w{w}{hk}:")
        p(f"v_mov_b32 v{vT+1}, {F_M+4*hk}")
        lds_wait(vT+1,vT,sT+17,'gt',1,0)
        p(f"s_branch L_g2r{w}{hk}")
    p(f"L_ex{w}:\n{exq}")
    if 99>CFG['xru']>=H: xr_loads()
    p("s_waitcnt lgkmcnt(0)\ns_branch L_afin")
    p(f";@slot{w}")
def att_fin():
    t=vT; A=sT+7
    if CFG['lay']:
        p(PG)
        if CFG['padk']: p("L_padW:\ns_branch "+(KVB(0) if CFG['padk']<3 else 'L_padM'))
    p("L_afin:")
    STAMP('aend')
    p(f"s_mov_b32 s{A}, {hex(f2u(2.0**-40))}\ns_mov_b32 s{A+1}, {hex(f2u(2.0**40)-f2u(2.0**-40))}")
    for q in range(2):
        O=OO[q]
        p(f"""v_cndmask_b32 v{t}, v{O+8}, v{O+12}, s[{sLO}:{sLO+1}]
        v_pk_add_f32 v[{t+2}:{t+3}], v[{O}:{O+1}], v[{O+2}:{O+3}]
        v_rcp_f32 v{t+1}, v{t}
        v_pk_add_f32 v[{t+4}:{t+5}], v[{O+4}:{O+5}], v[{O+6}:{O+7}]
        v_pk_add_f32 v[{t+6}:{t+7}], v[{O+8}:{O+9}], v[{O+10}:{O+11}]
        v_subrev_u32 v{t}, s{A}, v{t}
        v_pk_add_f32 v[{t+2}:{t+3}], v[{t+2}:{t+3}], v[{t+4}:{t+5}]
        v_cmp_lt_u32 s[{A+11}:{A+12}], s{A+1}, v{t}
        v_pk_add_f32 v[{t+2}:{t+3}], v[{t+2}:{t+3}], v[{t+6}:{t+7}]
        v_add_f32 v{t+2}, v{t+2}, v{t+3}""")
        p(f"v_cmp_class_f32 vcc, v{t+2}, v{aCLS}")
        for k in range(6): p(f"v_pk_mul_f32 {vr(O+2*k,2)}, {vr(O+2*k,2)}, {vr(t,2)} op_sel:[0,1] op_sel_hi:[1,1]")
        p(f"""s_or_b64 vcc, vcc, s[{A+11}:{A+12}]
        s_cbranch_scc1 L_afb{q}
        L_afr{q}:""")
        for k in range(6): p(f"v_cvt_pk_bf16_f32 v{O+k}, v{O+2*k}, v{O+2*k+1}")
        p(f"s_cmp_lg_u32 s{sOSC}, 0")
        st=[f"buffer_store_dwordx4 {vr(O,4)}, v{aO}, {S4(sWS)}, s{sOm[q]} offen", f"s_mov_b64 exec, s[{sLO}:{sLO+1}]",
            f"buffer_store_dwordx2 {vr(O+4,2)}, v{aO}, {S4(sWS)}, s{sOt[q]} offen offset:512", "s_mov_b64 exec, -1"]
        p(f"s_cbranch_scc1 L_osc{q}")
        for x in st: p(x+(" "+CFG['apol'] if x.startswith("buffer") else ""))
        p(f"s_branch L_osr{q}\nL_osc{q}:")
        for x in st: p(x+(" "+CFG['ospol'] if x.startswith("buffer") else ""))
        p(f"L_osr{q}:")
    p(f"""v_mov_b32 v{t}, {F_DONE}
    v_mov_b32 v{t+1}, 1
    s_mov_b64 exec, 1
    ds_add_u32 v{t}, v{t+1}
    s_mov_b64 exec, -1""")
    STAMP('ost')
aCLS=255; aFO=226; aFR=227
def att_cold():
    t=vT; A=sT+7; B=sT+8; N=sT+17; J=sT+18; CN=sT+19; PA=sT+20
    for q in range(2): p(f"L_afb{q}:\ns_cmp_lg_u32 s{sFB}, 0\ns_cbranch_scc1 L_afr{q}\ns_branch L_afb")
    p(f"L_afb:\ns_mov_b32 s{sFB}, 1\ns_waitcnt lgkmcnt(0)")
    S=SS[0]; MX=t+10; xa=t+11
    for q in range(2):
        lp=p.lab("fb"); nd=p.lab("fbnd"); nf=p.lab("fbnf"); p2=p.lab("fbp2"); nx=p.lab("fbnx"); ps=p.lab("fbps"); dn=p.lab("fbdn")
        for r in range(16): p(f"v_mov_b32 v{OO[q]+r}, 0")
        p(f"""v_mov_b32 v{MX}, {NINF}
        s_mov_b32 s{PA}, 0
        {ps}:""")
        if q==0: p(f"s_sub_u32 s{N}, 15, s{sWAVE}")
        else: p(f"s_add_u32 s{N}, 8, s{sWAVE}")
        p(f"""s_sub_u32 s{CN}, s{N}, 7
        s_cmp_eq_u32 s{cT0}, 0
        s_cselect_b32 s{CN}, s{CN}, 9
        s_mov_b32 s{J}, 0
        {lp}:
        s_lshr_b32 s{A}, s{N}, 1
        s_mul_i32 s{A}, s{A}, 5632
        s_bitcmp1_b32 s{N}, 0
        s_cselect_b64 vcc, -1, 0
        s_nop 0
        v_cndmask_b32 v{xa}, v{aKm}, v{aKm1}, vcc
        v_cndmask_b32 v{xa+1}, v{aKt}, v{aKt1}, vcc
        v_cndmask_b32 v{xa+2}, v{aV}, v{aV1}, vcc
        v_add_u32 v{xa}, s{A}, v{xa}
        v_add_u32 v{xa+1}, s{A}, v{xa+1}
        v_add_u32 v{xa+2}, s{A}, v{xa+2}
        ds_read_b128 {vr(KM[0],4)}, v{xa}
        ds_read_b64 {vr(KT[0],2)}, v{xa+1}
        s_mov_b64 exec, s[{sLO+2}:{sLO+3}]
        ds_read_b128 {vr(VV[0][0],4)}, v{xa+2}
        ds_read_b128 {vr(VV[0][1],4)}, v{xa+2} offset:640
        s_mov_b64 exec, -1
        s_waitcnt lgkmcnt(0)
        v_mfma_f32_32x32x16_bf16 {vr(S,16)}, {vr(KM[0],4)}, {vr(QM[q],4)}, 0
        v_mfma_f32_32x32x8_bf16 {vr(S,16)}, {vr(KT[0],2)}, {vr(QT[q],2)}, {vr(S,16)}
        v_mov_b32 v{xa}, {NINF}
        s_nop 11
        s_cmp_lg_u32 s{J}, 0
        s_cbranch_scc1 {nd}""")
        for r in range(16): p(f"v_cmp_eq_u32 vcc, 0, v{CD+r}\ns_nop 1\nv_cndmask_b32 v{S+r}, v{xa}, v{S+r}, vcc")
        p(f"{nd}:\ns_cmp_lg_u32 s{J}, 8\ns_cbranch_scc1 {nf}")
        for r in range(16): p(f"v_cmp_eq_u32 vcc, 0, v{CF+r}\ns_nop 1\nv_cndmask_b32 v{S+r}, v{xa}, v{S+r}, vcc")
        p(f"{nf}:\ns_cmp_lg_u32 s{PA}, 0\ns_cbranch_scc1 {p2}")
        for r in range(0,16,2): p(f"v_max3_f32 v{MX}, v{S+r}, v{S+r+1}, v{MX}")
        p(f"s_branch {nx}\n{p2}:")
        for r in range(16): p(f"v_sub_f32 v{S+r}, v{S+r}, v{MX}")
        for r in range(16): p(f"v_exp_f32 v{S+r}, v{S+r}")
        p("s_nop 0")
        for k in range(8): p(f"v_cvt_pk_bf16_f32 v{PP+k}, v{S+2*k}, v{S+2*k+1}")
        p("s_nop 1")
        for m in range(2): p(f"v_mfma_f32_32x32x16_bf16 {vr(OO[q],16)}, {vr(VV[0][m],4)}, {vr(PP+4*m,4)}, {vr(OO[q],16)}")
        p(f"""s_nop 11
        {nx}:
        s_sub_u32 s{N}, s{N}, 1
        s_add_u32 s{J}, s{J}, 1
        s_cmp_lt_u32 s{J}, s{CN}
        s_cbranch_scc1 {lp}
        s_cmp_lg_u32 s{PA}, 0
        s_cbranch_scc1 {dn}
        v_mov_b32 v{xa}, v{MX}
        s_mov_b32 s{PA}, 1
        s_nop 0
        v_permlane32_swap_b32 v{xa}, v{MX}
        s_nop 1
        v_max_f32 v{MX}, v{MX}, v{xa}
        s_branch {ps}
        {dn}:""")
    p("s_branch L_afin")

BF=28; AF=108; WACC=200; XR=176; WR_=186; aX2=196; aPS=197; aAL=198; aAR=199; SW=220; aL4=221; aPR=222; aKY=223; aCD=224
HP=40; HF_=50; LP=70; OP=80
sRT=sT+1; sOL=sT+2; sOR=sT+5; sXO=cXO; sPSO=sT+12; sRETRY=sT+13; sPRB=sT+14; sFLO=sT+16; sFRE=sT+18
def acc_init():
    for k in range(10): p(f"v_lshlrev_b32 v{WACC+2*k}, 16, v{XR+k}\nv_and_b32 v{WACC+2*k+1}, 0xffff0000, v{XR+k}")
def wo_pre1():
    t=vT; A=sT+7; B=sT+8
    wo_ids()
    p(f"""v_and_b32 v{t}, 15, v0
    v_lshrrev_b32 v{t+1}, 4, v0
    v_mul_u32_u24 v{aWR}, 40, v{t+1}
    v_mov_b32 v{t+3}, 1280
    v_mad_u32_u24 v{aX2}, v{t}, v{t+3}, v{aWR}
    s_lshl_b32 s{A}, s{sBLK}, 2
    s_add_u32 s{A}, s{A}, s{sWAVE}
    s_mul_i32 s{A}, s{A}, 20480
    s_mul_i32 s{cJ}, s{sJ}, 160
    s_add_u32 s{cXO}, s{A}, s{cJ}
    v_lshlrev_b32 v{aPS}, 7, v{t}
    v_lshl_add_u32 v{aPS}, v{t+1}, 5, v{aPS}
    v_lshlrev_b32 v{aFR}, 7, v{t}
    v_mul_u32_u24 v{t+2}, 640, v{t+1}
    v_bfe_u32 v{t+3}, v0, 2, 2
    v_mul_u32_u24 v{t+3}, 160, v{t+3}
    v_and_b32 v{t+4}, 3, v0
    v_mul_u32_u24 v{t+4}, 40, v{t+4}
    v_add3_u32 v{t+2}, v{t+2}, v{t+3}, v{t+4}
    s_mul_i32 s{A}, s{sHH}, 51200
    s_add_u32 s{B}, s{A}, {L_WO}
    v_add_u32 v{aAL}, s{B}, v{t+2}
    s_sub_u32 s{B}, {L_WO+51200}, s{A}
    v_add_u32 v{aAR}, s{B}, v{t+2}
    v_and_b32 v{t+2}, 7, v0
    v_mul_u32_u24 v{t+2}, 1280, v{t+2}
    v_bfe_u32 v{t+3}, v0, 3, 1
    v_lshl_add_u32 v{aPR}, v{t+3}, 7, v{t+2}""")
    if CFG['xdma']:
        assert 0<=CFG['xru']<99 and CFG['odn']==1
        p(f"""v_mul_u32_u24 v{t+2}, 6554, v0
        v_lshrrev_b32 v{t+2}, 16, v{t+2}
        v_mul_u32_u24 v{t+2}, 1120, v{t+2}
        v_lshl_add_u32 v{aXD}, v0, 4, v{t+2}
        s_mul_i32 s{B}, s{sWAVE}, 2560
        s_add_u32 s{B}, s{B}, {L_STG}
        v_mul_u32_u24 v{t+2}, 160, v{t}
        v_add3_u32 v{aXL}, v{t+2}, v{aWR}, s{B}
        v_add_u32 v{aWR}, {L_SA}, v{aWR}""")
    if CFG['wsp']:
        p(f"""s_and_b32 s{B}, s{sWAVE}, 1
        s_mul_i32 s{B}, s{B}, 25600
        v_add_u32 v{aAL}, s{B}, v{aAL}
        v_add_u32 v{aAR}, s{B}, v{aAR}
        s_lshr_b32 s{B}, s{sWAVE}, 1
        s_mul_i32 s{B}, s{B}, 10240
        s_add_u32 s{A}, s{A}, s{B}
        s_and_b32 s{B}, s{sWAVE}, 1
        s_lshl_b32 s{B}, s{B}, 10
        s_add_u32 s{A}, s{A}, s{B}
        s_add_u32 s{A}, s{A}, {L_WO}
        v_lshlrev_b32 v{aL4}, 4, v0
        v_add_u32 v{aPR}, s{A}, v{aL4}
        v_add_u32 v{aL4}, 4096, v{aL4}""")
def wo_pre2():
    acc_init()
def probe(soff,cnt,first=True):
    t=vT
    lp=p.lab("pb"); ok=p.lab("pbok"); md=p.lab("pbm")
    p(f"s_mov_b32 s{cnt}, {SPIN}")
    if not first: p(f"s_branch {md}")
    p(f"""{lp}:
    buffer_load_dwordx3 v[{t+4}:{t+6}], v{aPR}, {S4(sWS)}, s{soff} offen offset:512 sc1""")
    if not first: p(f"{md}:")
    p(f"""s_waitcnt vmcnt(0)
    v_max_u32 v{t+4}, v{t+4}, v{t+6}
    v_cmp_eq_u32 vcc, -1, v{t+4}
    s_nop 0
    s_cbranch_vccz {ok}""")
    spin(cnt,lp,ok)
    p(f"s_branch {lp}\n{ok}:")
def red3(a,b,c,d):
    p(f"""v_mov_b32 v{d}, v{c}
    s_nop 0
    v_permlane32_swap_b32 v{a}, v{b}
    v_permlane32_swap_b32 v{c}, v{d}
    s_nop 0
    v_add_f32 v{a}, v{a}, v{b}
    v_add_f32 v{c}, v{c}, v{d}
    s_nop 1
    v_permlane16_swap_b32 v{a}, v{c}
    s_nop 0
    v_add_f32 v{a}, v{a}, v{c}
    v_add_f32 v{c}, v{a}, 0
    s_nop 1
    v_permlane16_swap_b32 v{a}, v{c}
    s_nop 0
    v_mov_b32 v{b}, v{a}
    s_nop 1
    v_permlane32_swap_b32 v{a}, v{b}""")
def wo_scal():
    A=sT+7; B=sT+8
    wo_ids()
    p(f"""s_lshl_b32 s{sRT}, s{sBLK}, 2
    s_add_u32 s{sRT}, s{sRT}, s{sWAVE}
    s_mul_i32 s{A}, s{sRT}, 20480
    s_mul_i32 s{B}, s{sMODE}, {OB2-OB}
    s_add_u32 s{A}, s{A}, s{B}
    s_add_u32 s{A}, s{A}, {OB}
    s_mul_i32 s{B}, s{sHH}, 10240
    s_add_u32 s{sOL}, s{A}, s{B}
    s_add_u32 s{sOL+1}, s{sOL}, 4096
    s_add_u32 s{sOL+2}, s{sOL}, 8192
    s_add_u32 s{A}, s{A}, 10240
    s_sub_u32 s{sOR}, s{A}, s{B}
    s_lshl_b32 s{sPSO}, s{sRT}, 11
    s_add_u32 s{sPSO}, s{sPSO}, {PS}
    s_mov_b32 s{sRETRY}, {1<<16}
    s_add_u32 s{sOR+1}, s{sOR}, 4096
    s_add_u32 s{sPRB}, s{sOR}, 8192""")
    if CFG['wsp']:
        p(f"""s_and_b32 s{A}, s{sWAVE}, 1
        s_mul_i32 s{B}, s{A}, 5120
        s_add_u32 s{sOL}, s{sOL}, s{B}
        s_add_u32 s{sOR}, s{sOR}, s{B}
        s_mul_i32 s{B}, s{A}, -40960
        s_add_u32 s{B}, s{B}, 20480
        s_add_u32 s{sOL+1}, s{sOL}, s{B}
        s_add_u32 s{sOR+1}, s{sOR}, s{B}""")
def wo_flags():
    A=sT+7; B=sT+8
    p(f"""s_lshr_b32 s{A}, s{sRT}, 1
    s_lshl_b32 s{A}, s{A}, 12
    s_lshl_b32 s{B}, s{sHH}, 11
    s_add_u32 s{A}, s{A}, {FO}
    s_add_u32 s{sFLO}, s{A}, s{B}
    s_xor_b32 s{sFRE}, s{sFLO}, 2048""")
def wo_gemm():
    t=vT; A=sT+7; B=sT+8; C=sT+17; MXS=t+8
    sROFF=[sOR,sOR+1,sPRB]
    LA=CFG['wla']; WE=CFG['wwe']
    LG=[]
    def af(m): return AF+4*(m%15)
    def aread(m):
        s_,t_=divmod(m,5)
        for rd in range(2):
            p(f"ds_read_b64_tr_b16 {vr(af(m)+2*rd,2)}, v{aAL if s_<10 else aAR} offset:{(s_%10)*5120+rd*2560+8*t_}"); LG.append(m)
    def lgw(m):
        k=[i for i,x in enumerate(LG) if x!='x' and x<=m]
        if not k: return None
        n=len(LG)-1-max(k); del LG[:max(k)+1]; return n
    def bload(s_):
        so=(sOL+(s_%10)//4) if s_<10 else sROFF[(s_%10)//4]
        return f"buffer_load_dwordx4 {vr(BF+4*s_,4)}, v{aLin}, {S4(sWS)}, s{so} offen offset:{(s_%10%4)*1024} sc1"
    def cold(f):
        n0=len(p.L); f(); COLD.append("\n".join(p.L[n0:])); del p.L[n0:]
    p(f"s_cmp_lg_u32 s{sMODE}, 0\ns_cbranch_scc1 L_plsl\nL_plr:")
    def slow():
        p("L_plsl:"); wo_flags()
        p(f"""v_mov_b32 v{t+1}, s{sTAG}
        s_mov_b64 exec, 3
        s_waitcnt vmcnt(0)
        buffer_store_dword v{t+1}, v{aFO}, {S4(sWS)}, 0 offen sc1
        s_mov_b64 exec, -1""")
        flag_poll(aFR,t+4,sFLO,C); flag_poll(aFR,t+4,sFRE,C); p("s_branch L_plr")
    cold(slow)
    NI=CFG['oini']
    def dn():
        if CFG['odn']:
            p(f"v_mov_b32 v{t}, {F_DONE}"); lds_wait(t,t+1,C,'gt',4,0)
    if CFG['oprb']:
        p(f"buffer_load_dwordx3 v[{t+4}:{t+6}], v{aPR}, {S4(sWS)}, s{sOL} offen offset:512 sc1\ns_waitcnt vmcnt(5)")
    else:
        dn()
        for s_ in range(NI): p(bload(s_))
        p(f"s_waitcnt vmcnt({NI+4})")
    acc_init()
    p(f"v_mov_b32 v{t}, {F_WOR}")
    STAMP('fo')
    lds_wait(t,t+1,C,'gt',2,0)
    p(f"ds_read_b32 v{SW}, v{t} offset:{L_SWS-F_WOR}"); LG.append('x')
    STAMP('wor')
    if CFG['oprb']: dn()
    for m in range(LA): aread(m)
    p(f"v_mov_b32 v{t+7}, {F_WO2}\ns_mov_b32 s{sRETRY}, {SPIN}")
    if CFG['oprb']:
        probe(sOL,C,first=False)
        STAMP('prb')
        for s_ in range(NI): p(bload(s_))
    G={}; a=0
    for n in CFG['ogr']: G[a]=a+n; a+=n
    assert a==20 and 10 in G
    def chain(a,b):
        return [f"v_max_u32 v{MXS}, v{BF+4*a}, v{BF+4*a+2}"]+[f"v_max3_u32 v{MXS}, v{BF+4*k}, v{BF+4*k+2}, v{MXS}" for k in range(a+1,b)]
    cmp_=f"v_cmp_eq_u32 vcc, -1, v{MXS}"
    def retry(a,b):
        e=20 if (CFG['opoll']=='all' or a>=10) else 10
        def f():
            p(f"L_og{a}:\ns_sub_u32 s{sRETRY}, s{sRETRY}, 1\ns_cbranch_scc1 L_ogr{a}")
            sl=CFG['osl'][a//10]
            if sl: p(f"s_sleep {sl}")
            if CFG['opoll']=='probe' and a==0: probe(sOL,C)
            for k in range(a,e): p(bload(k))
            p(f"s_waitcnt vmcnt({20-b if e==20 else 0})")
            for x in chain(a,b): p(x)
            p(f"{cmp_}\ns_nop 0\ns_cbranch_vccnz L_og{a}\ns_branch L_ogr{a}")
        cold(f)
    last=lambda s_: (NI if s_<NI else 20)-1
    p(f"s_waitcnt vmcnt({last(0)+1-G[0]})")
    for x in chain(0,G[0]): p(x)
    p(f"{cmp_}\ns_nop 0\ns_cbranch_vccnz L_og0\nL_ogr0:"); retry(0,G[0])
    STAMP('pl')
    for m in range(100):
        s_,t_=divmod(m,5)
        nx=s_+1 if s_+1 in G else None
        if m==50:
            STAMP('pr')
            if 'PR' in (CFG['gstart'],CFG['dstart'],CFG['dgate'],CFG['mtg']):
                p(f"""s_mov_b64 exec, 1
                v_mov_b32 v{t+4}, {F_PR}
                v_mov_b32 v{t+5}, 1
                ds_add_u32 v{t+4}, v{t+5}
                s_mov_b64 exec, -1"""); LG.append('x')
        w=[]
        if nx is not None and t_==1: w.append(f"vmcnt({(20 if m>CFG['orem'] else NI)-G[nx]}"); assert G[nx]<=NI or m>CFG['orem']
        if m%WE==0:
            n=lgw(m+WE-1)
            if n is not None: w.append(f"lgkmcnt({n}")
        if w: p("s_waitcnt "+") ".join(w)+")")
        a_=vr(WACC+4*t_,4)
        p(f"v_mfma_f32_16x16x32_bf16 {a_}, {vr(af(m),4)}, {vr(BF+4*s_,4)}, {a_}")
        if NI<20 and m==CFG['orem']:
            for k in range(NI,20): p(bload(k))
        if m+LA==50-10: p(f"ds_read_b32 v{t+6}, v{t+7}"); LG.append('x')
        if m+LA==50:
            assert nx is None or t_<3
            p(f"v_cmp_gt_u32 vcc, 2, v{t+6}\ns_nop 0\ns_cbranch_vccnz L_wo2w\nL_wo2r:")
            def f():
                p("L_wo2w:"); lds_wait(t+7,t+6,C,'gt',2,0); p("s_branch L_wo2r")
            cold(f)
        if m+LA<100: aread(m+LA)
        if nx is not None:
            ch=chain(nx,G[nx]); k=-(-len(ch)//2)
            if t_==1:
                for x in ch[:k]: p(x)
            if t_==2:
                for x in ch[k:]: p(x)
            if t_==3: p(cmp_)
            if t_==4:
                if nx==10: STAMP('loc')
                p(f"s_cbranch_vccnz L_og{nx}\nL_ogr{nx}:"); retry(nx,G[nx])
    p(f"""v_mov_b32 v{t}, 0x3f803f80
    v_mov_b32 v{t+2}, 0
    v_mov_b32 v{t+3}, 0
    v_mov_b32 v{t+4}, 0
    s_nop 3""")
ACC2=148; aXW=222; aPQ=172; aBP=173
def wo_gemm2():
    t=vT; A=sT+7; B=sT+8; C=sT+17; MXS=t+8
    LA=CFG['wla2']
    LG=[]
    def af(m): return AF+4*(m%10)
    def aread(m,rds=(0,1)):
        s_,t_=divmod(m,5)
        for rd in rds:
            if CFG['wnoa'] and m>=LA and rd<CFG['wnoa']: continue
            p(f"ds_read_b64_tr_b16 {vr(af(m)+2*rd,2)}, v{aAL if s_<5 else aAR} offset:{(s_%5)*5120+rd*2560+8*t_}"); LG.append(m)
    def lgw(m):
        k=[i for i,x in enumerate(LG) if x!='x' and x<=m]
        if not k: return None
        n=len(LG)-1-max(k); del LG[:max(k)+1]; return n
    def bload(s_,us=(0,1)):
        for u in us:
            so=(sOL if s_<5 else sOR)+u
            p(f"buffer_load_dwordx4 {vr(BF+8*s_+4*u,4)}, v{aLin if s_%5<4 else aL4}, {S4(sWS)}, s{so} offen offset:{(s_%5%4)*1024} {CFG['ldo'] if s_<5 else 'sc1'}")
    def cold(f):
        n0=len(p.L); f(); COLD.append("\n".join(p.L[n0:])); del p.L[n0:]
    p(f"s_cmp_lg_u32 s{sMODE}, 0\ns_cbranch_scc1 L_plsl\nL_plr:")
    def slow():
        p("L_plsl:"); wo_flags()
        p(f"""v_mov_b32 v{t+1}, s{sTAG}
        s_mov_b64 exec, 3
        s_waitcnt vmcnt(0)
        buffer_store_dword v{t+1}, v{aFO}, {S4(sWS)}, 0 offen sc1
        s_mov_b64 exec, -1""")
        flag_poll(aFR,t+4,sFLO,C); flag_poll(aFR,t+4,sFRE,C); p("s_branch L_plr")
    cold(slow)
    XL=CFG['xru']==99
    XF_=lambda k: (230+2*k if k<8 else 168+2*(k-8))
    p(f"v_mov_b32 v{t}, {F_DONE}")
    if not XL: p("s_waitcnt vmcnt(4)")
    if CFG['xdma']:
        for k in range(5): p(f"ds_read_b64 {vr(XR+2*k,2)}, v{aXL} offset:{8*k}")
        for k in range(5): p(f"ds_read_b64 {vr(WR_+2*k,2)}, v{aWR} offset:{8*k}")
    if CFG['odn']==2 and not XL: acc_init()
    if CFG['odn']: lds_wait(t,t+1,C,'gt',ND,0)
    for s_ in range(5): bload(s_)
    if CFG['odn']!=2 and not XL: acc_init()
    p(f"v_mov_b32 v{t}, {F_WOR}")
    STAMP('fo')
    lds_wait(t,t+1,C,'gt',2,0)
    p(f"ds_read_b32 v{SW}, v{t} offset:{L_SWS-F_WOR}"); LG.append('x')
    STAMP('wor')
    for m in range(LA): aread(m)
    if CFG['psq']: p(f"v_lshrrev_b32 v{t+7}, 2, v0\nv_and_b32 v{aPQ}, 3, v0\nv_lshlrev_b32 v{aPQ}, 4, v{aPQ}\nv_lshl_add_u32 v{aPQ}, v{t+7}, 7, v{aPQ}")
    p(f"""v_mov_b32 v{t+7}, {F_WO2}
    s_mov_b32 s{sRETRY}, {SPIN}
    s_lshl_b32 s{A}, s{sWAVE}, 2
    s_add_u32 s{A}, s{A}, {F_X}
    v_mov_b32 v{t+10}, s{A}
    v_xor_b32 v{t+11}, 4, v{t+10}
    v_mov_b32 v{t+12}, 1""")
    G={}; a=0
    for n in CFG['ogr2']: G[a]=a+n; a+=n
    assert a==10 and 5 in G
    def chain(a,b):
        return [f"v_max_u32 v{MXS}, v{BF+8*a}, v{BF+8*a+2}"]+[f"v_max3_u32 v{MXS}, v{BF+4*k}, v{BF+4*k+2}, v{MXS}" for k in range(2*a+1,2*b)]
    cmp_=f"v_cmp_eq_u32 vcc, -1, v{MXS}"
    def retry(a,b):
        e=10 if a>=5 else 5
        def f():
            p(f"L_og{a}:\ns_sub_u32 s{sRETRY}, s{sRETRY}, 1\ns_cbranch_scc1 L_ogr{a}")
            sl=CFG['osl'][a//5]
            if sl: p(f"s_sleep {sl}")
            for k in range(a,e): bload(k)
            p(f"s_waitcnt vmcnt({20-2*b if e==10 and not (XL and CFG['xrd']>=0) else 0})")
            for x in chain(a,b): p(x)
            p(f"{cmp_}\ns_nop 0\ns_cbranch_vccnz L_og{a}\ns_branch L_ogr{a}")
        cold(f)
    RM={}
    for j in range(10): RM.setdefault(max(-1,int(CFG['orem2'][0]+j*CFG['orem2'][1])),[]).append(j)
    assert max(RM)<=24
    nis=10
    for j in RM.get(-1,()): bload(5+j//2,(j&1,)); nis+=1
    p(f"s_waitcnt vmcnt({nis-2*G[0]})")
    for x in chain(0,G[0]): p(x)
    p(f"{cmp_}\ns_nop 0\ns_cbranch_vccnz L_og0\nL_ogr0:"); retry(0,G[0])
    STAMP('pl')
    def mf(m,u):
        s_,t_=divmod(m,5)
        a_=vr((WACC,ACC2)[u]+4*t_,4)
        p(f"v_mfma_f32_16x16x32_bf16 {a_}, {vr(af(m),4)}, {vr(BF+8*s_+4*u,4)}, {0 if (u or XL) and s_==0 else a_}")
    WE=CFG['wwe2']
    mX=max(RM)+CFG['xrd']; nx_=0; nxat=0
    if XL and mX<0: xr_loads(); nx_=6; nxat=nis
    for m in range(45):
        s_,t_=divmod(m,5)
        nx=s_+1 if s_+1 in G else None
        if m==25:
            STAMP('pr')
            p(f"""s_mov_b64 exec, 1
            ds_add_u32 v{t+7}, v{t+12} offset:{F_LD-F_WO2}"""); LG.append('x')
            if CFG['prm']==25 and 'PR' in (CFG['gstart'],CFG['dstart'],CFG['dgate'],CFG['mtg']):
                p(f"v_mov_b32 v{t+4}, {F_PR}\nds_add_u32 v{t+4}, v{t+12}"); LG.append('x')
            p("s_mov_b64 exec, -1")
        if m==CFG['prm']!=25 and 'PR' in (CFG['gstart'],CFG['dstart'],CFG['dgate'],CFG['mtg']):
            p(f"s_mov_b64 exec, 1\nds_add_u32 v{t+7}, v{t+12} offset:{F_PR-F_WO2+65536 if F_PR<F_WO2 else F_PR-F_WO2}\ns_mov_b64 exec, -1" if 0 else f"s_mov_b64 exec, 1\nv_mov_b32 v{t+4}, {F_PR}\nds_add_u32 v{t+4}, v{t+12}\ns_mov_b64 exec, -1"); LG.append('x')
        w=[]
        if nx is not None and t_==1: w.append(f"vmcnt({nis+(nx_ if 2*G[nx]<=nxat else 0)-2*G[nx]}"); assert nis>=2*G[nx]
        n=lgw(m+WE-1) if m%WE==0 else None
        if n is not None: w.append(f"lgkmcnt({n}")
        if w: p("s_waitcnt "+") ".join(w)+")")
        mf(m,1)
        if m==25-2*LA-1: p(f"ds_read_b32 v{t+6}, v{t+7}"); LG.append('x')
        if m+LA==25:
            assert nx is None or t_<3
            p(f"v_cmp_gt_u32 vcc, 2, v{t+6}\ns_nop 0\ns_cbranch_vccnz L_wo2w\nL_wo2r:")
            def f():
                p("L_wo2w:"); lds_wait(t+7,t+6,C,'gt',2,0); p("s_branch L_wo2r")
            cold(f)
        if m==44-LA: p(f"ds_read_b32 v{t+6}, v{t+7} offset:{F_LD-F_WO2}"); LG.append('x')
        if m+LA<50: aread(m+LA,(0,) if CFG['wsplit'] else (0,1))
        mf(m,0)
        if m+LA<50 and CFG['wsplit']: aread(m+LA,(1,))
        for j in RM.get(m,()): bload(5+j//2,(j&1,)); nis+=1
        if XL and m==mX: xr_loads(); nx_=6; nxat=nis
        if XL and m==40: p("s_waitcnt vmcnt(0)")
        if XL and 40<=m<45:
            for k in (2*(m-40),2*(m-40)+1): p(f"v_lshlrev_b32 v{XF_(k)}, 16, v{XR+k}\nv_and_b32 v{XF_(k)+1}, 0xffff0000, v{XR+k}")
        if CFG['mtg']=='RL' and m==max(RM)+CFG['rld']:
            p(f"s_mov_b64 exec, 1\nv_mov_b32 v{t+4}, {F_H2}\nds_add_u32 v{t+4}, v{t+12}\ns_mov_b64 exec, -1"); LG.append('x')
        if nx is not None:
            ch=chain(nx,G[nx]); k=-(-len(ch)//2)
            if t_==1:
                for x in ch[:k]: p(x)
            if t_==2:
                for x in ch[k:]: p(x)
            if t_==3: p(cmp_)
            if t_==4:
                if nx==5: STAMP('loc')
                p(f"s_cbranch_vccnz L_og{nx}\nL_ogr{nx}:"); retry(nx,G[nx])
                STAMP('og%d'%nx)
    assert LA>=5 and 9 not in G
    for m in range(45,50):
        n=lgw(m)
        if n is not None: p(f"s_waitcnt lgkmcnt({n})")
        mf(m,1)
        if m==45:
            p(f"v_cmp_gt_u32 vcc, 4, v{t+6}\nv_mov_b32 v{t}, 0x3f803f80\ns_cbranch_vccnz L_ldw\nL_ldr:")
            def f():
                p(f"L_ldw:\nv_add_u32 v{t+7}, {F_LD-F_WO2}, v{t+7}"); lds_wait(t+7,t+6,C,'gt',4,0); p("s_branch L_ldr")
            cold(f)
    p(f"""v_mov_b32 v{t+2}, 0
    v_mov_b32 v{t+3}, 0
    v_mov_b32 v{t+4}, 0
    v_xor_b32 v{t+5}, 1024, v{aXW}""")
    for k in range(5):
        p(f"ds_write_b128 v{aXW}, {vr(ACC2+4*k,4)} offset:{2048*k}")
        mf(45+k,0)
    lp=p.lab("xw"); ok=p.lab("xok")
    STAMP('xw')
    p(f"""ds_write_b32 v{t+10}, v{t+12}
    s_mov_b32 s{C}, {SPIN*4}""")
    if XL:
        md=p.lab("xwm")
        p(f"ds_read_b32 v{t+6}, v{t+11}")
        for k in range(5): p(f"ds_read_b128 {vr(BF+4*k,4)}, v{t+5} offset:{2048*k}")
        for k in range(10): p(f"v_pk_add_f32 {vr(WACC+2*k,2)}, {vr(WACC+2*k,2)}, {vr(XF_(k),2)}")
        p(f"s_branch {md}")
    p(f"""{lp}:
    ds_read_b32 v{t+6}, v{t+11}""")
    for k in range(5): p(f"ds_read_b128 {vr(BF+4*k,4)}, v{t+5} offset:{2048*k}")
    if XL: p(f"{md}:")
    p(f"""s_waitcnt lgkmcnt(5)
    v_cmp_eq_u32 vcc, 0, v{t+6}
    s_nop 0
    s_cbranch_vccz {ok}""")
    spin(C,lp,ok)
    p(f"s_waitcnt lgkmcnt(0)\ns_branch {lp}\n{ok}:")
    for k in range(5):
        p(f"s_waitcnt lgkmcnt({4-k})")
        for j in range(2): p(f"v_pk_add_f32 {vr(WACC+4*k+2*j,2)}, {vr(WACC+4*k+2*j,2)}, {vr(BF+4*k+2*j,2)}")
def wo_gemm_old():
    t=vT; A=sT+7; B=sT+8; C=sT+17; MXS=t+8
    wo_scal(); wo_flags()
    p("s_waitcnt vmcnt(4)")
    acc_init()
    p(f"""v_mov_b32 v{t}, {F_WOR}
    v_mov_b32 v{t+1}, s{sTAG}
    s_cmp_eq_u32 s{sOSC}, 0
    s_cbranch_scc1 L_nofo
    s_mov_b64 exec, 3
    s_waitcnt vmcnt(0)
    buffer_store_dword v{t+1}, v{aFO}, {S4(sWS)}, 0 offen sc1
    s_mov_b64 exec, -1
    L_nofo:""")
    STAMP('fo')
    lds_wait(t,t+1,C,'gt',2,0)
    p(f"""ds_read_b32 v{SW}, v{t} offset:{L_SWS-F_WOR}
    L_wo:""")
    STAMP('wor')
    sROFF=[sOR,sOR+1,sPRB]
    LA=CFG['wla']; WE=CFG['wwe']
    LG=[]
    def af(m): return AF+4*(m%15)
    def aread(m):
        s_,t_=divmod(m,5)
        for rd in range(2):
            p(f"ds_read_b64_tr_b16 {vr(af(m)+2*rd,2)}, v{aAL if s_<10 else aAR} offset:{(s_%10)*5120+rd*2560+8*t_}"); LG.append(m)
    def lgw(m):
        k=[i for i,x in enumerate(LG) if x!='x' and x<=m]
        if not k: return None
        n=len(LG)-1-max(k); del LG[:max(k)+1]; return n
    def bload(s_):
        so=(sOL+(s_%10)//4) if s_<10 else sROFF[(s_%10)//4]
        return f"buffer_load_dwordx4 {vr(BF+4*s_,4)}, v{aLin}, {S4(sWS)}, s{so} offen offset:{(s_%10%4)*1024} sc1"
    for m in range(LA): aread(m)
    p(f"v_mov_b32 v{MXS}, 0\nv_mov_b32 v{t+7}, {F_WO2}")
    p(f"s_cmp_lg_u32 s{sMODE}, 0\ns_cbranch_scc1 L_plsl")
    probe(sOL,C)
    p("L_plr:")
    n0=len(p.L)
    p("L_plsl:"); flag_poll(aFR,t+4,sFLO,C); p("s_branch L_plr")
    COLD.append("\n".join(p.L[n0:])); del p.L[n0:]
    STAMP('pl')
    for s_ in range(10): p(bload(s_))
    p(f"buffer_load_dword v{t+4}, v{aFR}, {S4(sWS)}, s{sFRE} offen sc1")
    for m in range(100):
        s_,t_=divmod(m,5)
        if m==50:
            STAMP('loc')
            flag_poll(aFR,t+4,sFRE,C,first=False)
            STAMP('pr')
            for k in range(10,20): p(bload(k))
            if 'PR' in (CFG['gstart'],CFG['dstart'],CFG['dgate'],CFG['mtg']):
                p(f"""s_mov_b64 exec, 1
                v_mov_b32 v{t+4}, {F_PR}
                v_mov_b32 v{t+5}, 1
                ds_add_u32 v{t+4}, v{t+5}
                s_mov_b64 exec, -1"""); LG.append('x')
        w=[]
        if t_==0: w.append(f"vmcnt({(10-s_) if s_<10 else (19-s_)}")
        if m%WE==0:
            n=lgw(m+WE-1)
            if n is not None: w.append(f"lgkmcnt({n}")
        if w: p("s_waitcnt "+") ".join(w)+")")
        a_=vr(WACC+4*t_,4)
        p(f"v_mfma_f32_16x16x32_bf16 {a_}, {vr(af(m),4)}, {vr(BF+4*s_,4)}, {a_}")
        if m+LA==50-10: p(f"ds_read_b32 v{t+6}, v{t+7}"); LG.append('x')
        if m+LA==50:
            p(f"v_cmp_gt_u32 vcc, 2, v{t+6}\ns_nop 0\ns_cbranch_vccnz L_wo2w\nL_wo2r:")
            n0=len(p.L)
            p("L_wo2w:"); lds_wait(t+7,t+6,C,'gt',2,0); p("s_branch L_wo2r")
            COLD.append("\n".join(p.L[n0:])); del p.L[n0:]
        if m+LA<100: aread(m+LA)
        if t_==0 and s_<10: p(f"v_max3_u32 v{MXS}, v{BF+4*s_}, v{BF+4*s_+2}, v{MXS}")
    p(f"""v_cmp_eq_u32 vcc, -1, v{MXS}
    v_mov_b32 v{t}, 0x3f803f80
    v_mov_b32 v{t+2}, 0
    v_mov_b32 v{t+3}, 0
    v_mov_b32 v{t+4}, 0
    s_cbranch_vccnz L_woredo
    L_wook:""")
    COLD.append(f"L_woredo:\ns_sub_u32 s{sRETRY}, s{sRETRY}, 1\ns_cbranch_scc1 L_wook\ns_nop 7")
    q=P();
    COLD.append("\n".join(f"v_lshlrev_b32 v{WACC+2*k}, 16, v{XR+k}\nv_and_b32 v{WACC+2*k+1}, 0xffff0000, v{XR+k}" for k in range(10))+"\ns_branch L_wo")
def wo_main():
    t=vT; A=sT+7; B=sT+8; C=sT+17
    (wo_gemm2 if CFG['wsp'] else wo_gemm if CFG['osent'] else wo_gemm_old)()
    STAMP('wend')
    for k in range(10): p(f"v_cvt_pk_bf16_f32 v{HP+k}, v{WACC+2*k}, v{WACC+2*k+1}")
    for k in range(10):
        p(f"""v_dot2_f32_bf16 v{t+2}, v{HP+k}, v{t}, v{t+2}
        v_dot2_f32_bf16 v{t+4}, v{HP+k}, v{HP+k}, v{t+4}
        v_dot2_f32_bf16 v{t+3}, v{HP+k}, v{WR_+k}, v{t+3}""")
    p(f"""s_lshl_b32 s{A}, s{sJ}, 4
    s_add_u32 s{A}, s{A}, s{sPSO}""")
    red3(t+2,t+3,t+4,t+5)
    p(f"""v_mov_b32 v{t+5}, s{sTAG}
    s_mov_b64 exec, 0xffff
    s_cmp_lg_u32 s{sMODE}, 0
    s_cbranch_scc1 L_pssc
    buffer_store_dwordx4 {vr(t+2,4)}, v{aPS}, {S4(sWS)}, s{A} offen
    L_psr:""")
    if 'WE' in (CFG['gstart'],CFG['g2nd'][0],CFG['mtg']): p(f"s_mov_b64 exec, 1\nv_mov_b32 v{t+10}, {F_SCP}\nv_mov_b32 v{t+11}, 1\nds_add_u32 v{t+10}, v{t+11}")
    p("s_mov_b64 exec, -1")
    COLD.append(f"L_pssc:\nbuffer_store_dwordx4 {vr(t+2,4)}, v{aPS}, {S4(sWS)}, s{A} offen sc1\ns_branch L_psr")
    STAMP('ps')
    G=t+10
    lp=p.lab("ps"); ok=p.lab("psok"); md=p.lab("psm")
    Q=CFG['psq']
    ld=f"""buffer_load_dwordx4 {vr(G,4)}, v{aPQ if Q else aPS}, {S4(sWS)}, s{sPSO} offen sc1
    buffer_load_dwordx4 {vr(G+4,4)}, v{aPQ if Q else aPS}, {S4(sWS)}, s{sPSO} offen offset:{64 if Q else 16} sc1"""
    p(ld)
    for k in range(10): p(f"v_lshlrev_b32 v{HF_+2*k}, 16, v{HP+k}\nv_and_b32 v{HF_+2*k+1}, 0xffff0000, v{HP+k}")
    if CFG['dbg']:
        p(f"s_add_u32 s{A}, s{sXO}, {HB}")
        for o,n in ((0,4),(4,4),(8,2)): p(f"buffer_store_dwordx{n} {vr(HP+o,n)}, v{aX2}, {S4(sWS)}, s{A} offen offset:{4*o}")
    p(f"""s_lshl_b32 s{A}, s{sRT}, 4
    s_sub_u32 s{A}, 2047, s{A}
    {f"v_lshrrev_b32 v{t}, 2, v0" if Q else f"v_and_b32 v{t}, 15, v0"}
    v_sub_u32 v{t+9}, s{A}, v{t}
    v_lshlrev_b32 v{t+9}, 3, v{t+9}
    s_lshl_b32 s{A}, s{sWAVE}, 6
    s_add_u32 s{A}, s{A}, {L_KEYS}
    v_lshl_add_u32 v{aKY}, v{t}, 2, s{A}
    v_and_b32 v{t}, {3 if Q else 48}, v0
    v_lshlrev_b32 v{t}, {6 if Q else 2}, v{t}
    v_add_u32 v{t+8}, {L_KEYS}, v{t}
    {f"v_and_b32 v{t}, 15, v0" if Q else ""}
    {f"v_lshlrev_b32 v{aBP}, 4, v{t}" if Q else ""}
    s_mov_b32 s{C}, {SPIN}
    s_branch {md}
    {PG if CFG['lay'] else ""}
    {"L_padM:" if CFG['lay'] and CFG['padk'] else ""}
    {"s_branch "+KVB(0) if CFG['lay'] and CFG['padk'] else ""}
    {lp}:
    {ld}
    {md}:
    s_waitcnt vmcnt(0)
    v_cmp_ne_u32 vcc, s{sTAG}, v{G+3}
    v_cmp_ne_u32 s[{sT+14}:{sT+15}], s{sTAG}, v{G+7}
    v_pk_add_f32 {vr(t+4,2)}, {vr(G,2)}, {vr(G+4,2)}
    v_add_f32 v{t+6}, v{G+2}, v{G+6}
    s_or_b64 vcc, vcc, s[{sT+14}:{sT+15}]
    s_cbranch_scc0 {ok}""")
    spin(C,lp,ok)
    p(f"""s_branch {lp}
    {ok}:""")
    STAMP('psr'); COUNT('npsr',C,SPIN)
    if 'PS' in (CFG['g2nd'][0],CFG['gstart'],CFG['dstart'],CFG['dgate'],CFG['mtg']): p(f"""s_mov_b64 exec, 1
    v_mov_b32 v{G}, {F_PS}
    v_mov_b32 v{G+1}, 1
    ds_add_u32 v{G}, v{G+1}
    s_mov_b64 exec, -1""")
    M=t+4
    if Q:
        for qp in ("[1,0,3,2]","[2,3,0,1]"):
            for k in range(3): p(f"v_add_f32_dpp v{M+k}, v{M+k}, v{M+k} quad_perm:{qp} row_mask:0xf bank_mask:0xf")
    else: red3(M,M+1,M+2,M+3)
    p(f"""v_mul_f32 v{M}, {1/640!r}, v{M}
    v_mul_f32 v{M+2}, {1/640!r}, v{M+2}
    v_fma_f32 v{M+2}, -v{M}, v{M}, v{M+2}
    v_max_f32 v{M+2}, 0, v{M+2}""")
    bf16r(M+2,M+2)
    p(f"v_add_f32 v{M+2}, 0x3727c5ac, v{M+2}")
    bf16r(M+2,M+2)
    p(f"v_sqrt_f32 v{M+2}, v{M+2}")
    bf16r(M,M)
    bf16r(M+2,M+2)
    RS=t+2
    p(f"""v_rcp_f32 v{RS}, v{M+2}
    v_fma_f32 v{M+1}, -v{M}, v{SW}, v{M+1}
    v_mul_f32 v{M+1}, v{M+1}, v{RS}
    v_cvt_pk_bf16_f32 v{M+1}, v{M+1}, v{M+1}
    v_mul_f32 v{RS+1}, -v{M}, v{RS}
    v_ashrrev_i32 v{M+2}, 31, v{M+1}
    v_or_b32 v{M+2}, 0x80000000, v{M+2}
    v_xor_b32 v{M+1}, v{M+1}, v{M+2}
    v_and_b32 v{M+1}, 0xffff0000, v{M+1}
    v_or_b32 v{KEY}, v{M+1}, v{t+9}
    ds_write_b32 v{aKY}, v{KEY}""")
    K16=AF
    lp=p.lab("ky"); ok=p.lab("kyok"); md=p.lab("kym")
    def lfma():
        for k in range(10): p(f"v_pk_fma_f32 {vr(WACC+2*k,2)}, {vr(HF_+2*k,2)}, {vr(RS,2)}, {vr(RS,2)} op_sel:[0,0,1] op_sel_hi:[1,0,1]")
    def kread():
        for i in range(4): p(f"ds_read_b128 {vr(K16+4*i,4)}, v{t+8} offset:{16*i}")
    if Q:
        p(f"ds_bpermute_b32 v{RS}, v{aBP}, v{RS}\nds_bpermute_b32 v{RS+1}, v{aBP}, v{RS+1}")
        kread()
        p(f"s_mov_b32 s{C}, {SPIN*4}\ns_waitcnt lgkmcnt(4)")
        lfma()
        p(f"s_branch {md}\n{lp}:")
        kread()
        p(f"{md}:")
    else:
        lfma()
        p(f"s_mov_b32 s{C}, {SPIN*4}\n{lp}:")
        kread()
    p("s_waitcnt lgkmcnt(0)")
    p(f"v_max3_u32 v{t}, v{K16}, v{K16+1}, v{K16+2}")
    for i in range(3,15,2): p(f"v_max3_u32 v{t}, v{K16+i}, v{K16+i+1}, v{t}")
    p(f"""v_max_u32 v{t}, v{t}, v{K16+15}
    v_cmp_eq_u32 vcc, -1, v{t}
    v_mov_b32 v{t}, 0
    s_cbranch_vccz {ok}""")
    spin(C,lp,ok)
    p(f"s_branch {lp}\n{ok}:")
    STAMP('keys')
    m0_=sT+18
    for i in range(18):
        if i<16: p(f"v_cmp_gt_u32 s[{m0_+2*(i%2)}:{m0_+2*(i%2)+1}], v{K16+i}, v{KEY}") if False else None
    MK=[sT+14,sT+16,sT+18]
    for i in range(18):
        if i<16: m=MK[i%3]; p(f"v_cmp_gt_u32 s[{m}:{m+1}], v{K16+i}, v{KEY}")
        elif i==16: p("s_nop 0")
        if i>=2: m=MK[(i-2)%3]; p(f"v_addc_co_u32 v{t}, vcc, 0, v{t}, s[{m}:{m+1}]")
    if Q: p(f"""v_cvt_pk_bf16_f32 v{LP}, v{WACC}, v{WACC+1}
    v_cvt_pk_bf16_f32 v{LP+1}, v{WACC+2}, v{WACC+3}
    v_add_u32_dpp v{t}, v{t}, v{t} quad_perm:[1,0,3,2] row_mask:0xf bank_mask:0xf
    v_cvt_pk_bf16_f32 v{LP+2}, v{WACC+4}, v{WACC+5}
    v_cvt_pk_bf16_f32 v{LP+3}, v{WACC+6}, v{WACC+7}
    v_add_u32_dpp v{t}, v{t}, v{t} quad_perm:[2,3,0,1] row_mask:0xf bank_mask:0xf""")
    else: p(f"""v_mov_b32 v{t+1}, v{t}
    v_cvt_pk_bf16_f32 v{LP}, v{WACC}, v{WACC+1}
    v_cvt_pk_bf16_f32 v{LP+1}, v{WACC+2}, v{WACC+3}
    v_permlane32_swap_b32 v{t}, v{t+1}
    v_cvt_pk_bf16_f32 v{LP+2}, v{WACC+4}, v{WACC+5}
    v_add_u32 v{t}, v{t}, v{t+1}
    v_mov_b32 v{t+1}, v{t}
    v_cvt_pk_bf16_f32 v{LP+3}, v{WACC+6}, v{WACC+7}
    v_cvt_pk_bf16_f32 v{LP+4}, v{WACC+8}, v{WACC+9}
    v_permlane16_swap_b32 v{t}, v{t+1}
    v_cvt_pk_bf16_f32 v{LP+5}, v{WACC+10}, v{WACC+11}
    v_add_u32 v{t}, v{t}, v{t+1}""")
    p(f"""v_cmp_gt_u32 s[{sCAND}:{sCAND+1}], 8, v{t}
    v_or_b32 v{KEY}, v{KEY}, v{t}
    v_mov_b32 v{t+1}, {L_CA&~0xffff}
    v_lshl_add_u32 v{t+1}, v{t}, 3, v{t+1}
    v_mov_b32 v{KEY+1}, s{sTAG}
    s_cmp_lg_u32 s{sJ}, 0
    s_cbranch_scc1 L_noca
    {f"s_and_b32 exec_lo, s{sCAND}, 0x11111111" if Q else f"s_and_b32 exec_lo, s{sCAND}, 0xffff"}
    {f"s_and_b32 exec_hi, s{sCAND+1}, 0x11111111" if Q else "s_mov_b32 exec_hi, 0"}
    ds_write_b64 v{t+1}, {vr(KEY,2)} offset:{L_CA&0xffff}
    s_mov_b64 exec, 0xff
    s_cmp_lg_u32 s{sWAVE}, 0
    s_cbranch_scc1 {"L_cab" if CFG['jb'] else "L_noca"}
    v_lshlrev_b32 v{t+2}, 3, v0
    v_add_u32 v{t+3}, {L_CA}, v{t+2}
    s_lshl_b32 s{A}, s{sBLK}, 7
    s_add_u32 s{A}, s{A}, {CA}
    s_mov_b32 s{C}, {SPIN*4}
    L_cal:
    ds_read_b64 v[{t+4}:{t+5}], v{t+3}
    s_waitcnt lgkmcnt(0)
    v_cmp_ne_u32 vcc, s{sTAG}, v{t+5}
    s_nop 0
    s_cbranch_vccz L_caok""")
    spin(C,"L_cal","L_caok")
    p(f"""s_branch L_cal
    L_caok:
    buffer_store_dwordx2 v[{t+4}:{t+5}], v{t+2}, {S4(sWS)}, s{A} offen sc1
    {"L_cab:" if CFG['jb'] else ""}
    {"s_barrier" if CFG['jb'] else ""}
    L_noca:
    s_mov_b64 exec, -1""")
    STAMP('ca')
    if Q: p(f"ds_bpermute_b32 v{t}, v{aBP}, v{t}\nds_bpermute_b32 v{KEY}, v{aBP}, v{KEY}")
    for k in range(4 if Q else 6,10): p(f"v_cvt_pk_bf16_f32 v{LP+k}, v{WACC+2*k}, v{WACC+2*k+1}")
    p(f"""v_lshrrev_b32 v{t+1}, 4, v0
    v_mul_u32_u24 v{t+1}, 40, v{t+1}
    {"s_waitcnt lgkmcnt(0)" if Q else ""}
    {f"v_cmp_gt_u32 s[{sCAND}:{sCAND+1}], 8, v{t}" if Q else ""}
    v_mul_u32_u24 v{t}, 2560, v{t}
    v_add_u32 v{aCD}, v{t}, v{t+1}
    s_mul_i32 s{A}, s{sBLK}, 20480
    s_mul_i32 s{B}, s{sJ}, 160
    s_add_u32 s{A}, s{A}, s{B}
    s_add_u32 s{A}, s{A}, {CAND}
    s_and_b64 exec, s[{sCAND}:{sCAND+1}], -1
    s_cbranch_scc0 L_nocd""")
    for base,off in ((LP,0),(HP,1280)):
        if 'nocand' in CFG['xp'] or ('noh' in CFG['xp'] and off): continue
        for o,n in ((0,4),(4,4),(8,2)): p(f"buffer_store_dwordx{n} {vr(base+o,n)}, v{aCD}, {S4(sWS)}, s{A} offen offset:{off+4*o} sc1")
    p("L_nocd:\ns_mov_b64 exec, -1")
    if CFG['cae']:
        assert not CFG['odf'] and not CFG['xp']
        p(f"""s_lshl_b32 s{A}, s{sWAVE}, 5
        s_add_u32 s{A}, s{A}, s{sMI}
        s_cmp_ge_u32 s{A}, 17
        s_cbranch_scc1 L_nocae
        v_lshrrev_b32 v{t}, 3, v0
        v_and_b32 v{t+1}, 7, v0
        v_lshlrev_b32 v{t+1}, 3, v{t+1}
        v_lshl_add_u32 v22, v{t}, 7, v{t+1}
        s_mov_b32 s{B}, {CA}""")
        for i in range(4): p(f"buffer_load_dwordx2 {vr(12+2*i,2)}, v22, {S4(sWS)}, s{B} offen offset:{i*1024} sc1")
        p("L_nocae:")
    for k in range(10): p(f"v_pk_add_f32 {vr(WACC+2*k,2)}, {vr(WACC+2*k,2)}, {vr(HF_+2*k,2)}")
    for k in range(10): p(f"v_cvt_pk_bf16_f32 v{OP+k}, v{WACC+2*k}, v{WACC+2*k+1}")
    if CFG['odf']: p(f"s_cmp_lt_u32 s{sMI}, {CFG['odf']}\ns_cbranch_scc1 L_noo1")
    p(f"s_andn2_b64 exec, -1, s[{sCAND}:{sCAND+1}]")
    if not CFG['cae']: p("s_cbranch_scc0 L_noo1")
    if 'noout' not in CFG['xp']: out_store()
    p("L_noo1:")
    if 1: p(f"""s_mov_b64 exec, 1
    v_mov_b32 v{t+4}, {F_O1}
    v_mov_b32 v{t+5}, 1
    ds_add_u32 v{t+4}, v{t+5}
    s_mov_b64 exec, -1""")
    else: p("s_mov_b64 exec, -1")
    STAMP('o1')
KEY=228; sCAND=sT+20
def out_store():
    for o,n in ((0,4),(4,4),(8,2)): p(f"buffer_store_dwordx{n} {vr(OP+o,n)}, v{aX2}, {S4(sOUT)}, s{sXO} offen offset:{4*o} {CFG['opol']}")

def moe_weights():
    A=sT+7; B=sT+8; vt=2; D=40; aW_=12
    gu=p.lab("mwgu"); wr=p.lab("mwwr"); en=p.lab("mwend")
    FA=dict(WOD=(F_WOD,2),PR=(F_PR,4),O1=(F_O1,4),DONE=(F_DONE,ND),G2=(F_G2,2),PS=(F_PS,4),WO2=(F_WO2,2),WE=(F_SCP,4),TOP=(L_TOP,0))
    def gate(k):
        p(f"v_mov_b32 v{vt+4}, {FA[k][0]}")
        if k=='TOP': lds_wait(vt+4,vt+5,sT+5,'eq',-1,2)
        else: lds_wait(vt+4,vt+5,sT+5,'gt',FA[k][1],2)
    pl_=p.lab("mwpl")
    p(f"""s_cmp_ge_u32 s{sMI}, 17
    s_cbranch_scc1 {pl_}
    v_bfe_u32 v{vt}, v0, 3, 2
    v_lshrrev_b32 v{vt+1}, 5, v0
    v_lshlrev_b32 v{vt}, 1, v{vt}
    v_add_lshl_u32 v{vt}, v{vt}, v{vt+1}, 2
    v_bfe_u32 v{vt+1}, v0, 1, 2
    v_add_u32 v{vt}, v{vt}, v{vt+1}
    v_and_b32 v{vt+1}, 1, v0
    v_lshlrev_b32 v{vt+1}, 4, v{vt+1}
    s_cmp_lt_u32 s{sMI}, 12
    s_cbranch_scc1 {gu}
    v_mul_u32_u24 v{vt}, 1280, v{vt}
    v_add_u32 v{aW_}, v{vt}, v{vt+1}
    s_mul_i32 s{A}, s{sG}, 5
    s_add_u32 s{A}, s{A}, s{sMI}
    s_sub_u32 s{A}, s{A}, 12
    s_lshl_b32 s{A}, s{A}, 5
    s_mul_i32 s{B}, s{HW}, {12*32*1280}
    s_add_u32 s{A}, s{A}, s{B}""")
    gate(CFG['dstart'])
    STAMP('mg')
    for s_ in range(12):
        if s_>=CFG['ddep']: p(f"s_waitcnt vmcnt({CFG['ddep']-1})")
        p(f"buffer_load_dwordx4 {vr(D+4*s_,4)}, v{aW_}, {S4(sWD)}, s{A} offen {CFG['mpol']}")
        if s_<11: p(f"s_add_u32 s{A}, s{A}, {32*1280}")
    p(f"""s_mul_i32 s{B}, s{HW}, 12288
    s_branch {wr}
    {pl_}:""")
    for g_,h_ in CFG['wb']:
        sk=p.lab("nowb")
        p(f"s_lshl_b32 s{A}, s{sSLOT}, 2\ns_add_u32 s{A}, s{A}, s{HW}\ns_cmp_lg_u32 s{A}, {4*CFG['wbs']+h_}\ns_cbranch_scc1 {sk}")
        if g_!='no': gate(g_)
        p(f"buffer_wbl2 sc1\ns_waitcnt vmcnt(0)\n{sk}:")
    if CFG['dgate']!='no' and not CFG['dw3']:
        if CFG['dtn']: p(f"s_cmp_ge_u32 s{sMI}, 28\ns_cbranch_scc1 {en}")
        gate(CFG['dgate'])
        touch(vTD,sWD,CFG['mpair'])
        if CFG['dtn']: p("s_mov_b64 exec, 63"); touch(vTD2,sWD,0); p("s_mov_b64 exec, -1")
        STAMP('mg')
        if CFG['prof']: p("s_waitcnt vmcnt(0)"); STAMP('mw')
    p(f"""s_branch {en}
    {gu}:
    v_mul_u32_u24 v{vt}, 3072, v{vt}
    v_add_u32 v{aW_}, v{vt}, v{vt+1}
    s_mul_i32 s{A}, s{sG}, 12
    s_add_u32 s{A}, s{A}, s{sMI}
    s_lshl_b32 s{A}, s{A}, 5
    s_mul_i32 s{B}, s{HW}, {5*32*3072}
    s_add_u32 s{A}, s{A}, s{B}""")
    gate(CFG['gstart'])
    STAMP('mg')
    for s_ in range(5):
        for m_ in range(2):
            if 2*s_+m_==CFG['g2nd'][1]: gate(CFG['g2nd'][0]); STAMP('mg2')
            if 2*s_+m_>=CFG['mdep']: p(f"s_waitcnt vmcnt({CFG['mdep']-1})")
            p(f"buffer_load_dwordx4 {vr(D+8*s_+4*m_,4)}, v{aW_}, {S4((sWG,sWU)[m_])}, s{A} offen {CFG['mpol']}")
        if s_<4: p(f"s_add_u32 s{A}, s{A}, {32*3072}")
    p(f"s_mul_i32 s{B}, s{HW}, 12288\n{wr}:\nv_lshl_add_u32 v{vt}, v0, 4, s{B}")
    gate('DONE')
    p("s_waitcnt vmcnt(0)")
    for s_ in range(12): p(f"ds_write_b128 v{vt}, {vr(D+4*s_,4)} offset:{L_MW+s_*1024}")
    p(f"""s_lshl_b32 s{A}, s{HW}, 2
    s_add_u32 s{A}, s{A}, {F_MW}
    v_mov_b32 v{vt}, s{A}
    ds_write_b32 v{vt}, v{vt}
    s_waitcnt lgkmcnt(0)""")
    STAMP('mw')
    if CFG['htop']:
        p(f"""s_lshl_b32 s{A}, s{HW}, 5
        s_add_u32 s{A}, s{A}, s{sMI}
        s_cmp_lt_u32 s{A}, 12
        s_cbranch_scc1 L_htop""")
        n0=len(p.L)
        t=2; R=12; K2=20; K1=21; aC=22; C=sT+5
        ld="\n".join(f"buffer_load_dwordx2 {vr(R+2*i,2)}, v{aC}, {S4(sWS)}, s{B} offen offset:{i*1024} sc1" for i in range(4))
        lp=p.lab("hca"); ok=p.lab("hcaok")
        p(f"""L_htop:
        v_lshrrev_b32 v{t}, 3, v0
        v_and_b32 v{t+1}, 7, v0
        v_lshlrev_b32 v{t+2}, 3, v{t+1}
        v_lshl_add_u32 v{aC}, v{t}, 7, v{t+2}
        s_mov_b32 s{B}, {CA}
        v_bfe_i32 v{K2}, v0, 1, 1
        v_bfe_i32 v{K1}, v0, 0, 1
        v_not_b32 v{K2}, v{K2}
        v_not_b32 v{K1}, v{K1}
        v_lshlrev_b32 v{t+1}, 2, v{t+1}
        v_add_u32 v{aC+1}, {L_TOP}, v{t+1}
        s_mov_b32 s{C}, {SPIN}
        {lp}:
        {ld}
        s_waitcnt vmcnt(0)
        v_xor_b32 v{t}, v{R+1}, v{R+3}
        v_xor_b32 v{t+1}, v{R+5}, v{R+7}
        v_xor_b32 v{R+1}, s{sTAG}, v{R+1}
        v_xor_b32 v{R+5}, s{sTAG}, v{R+5}
        v_or3_b32 v{t}, v{t}, v{t+1}, v{R+1}
        v_or_b32 v{t}, v{t}, v{R+5}
        v_cmp_ne_u32 vcc, 0, v{t}
        s_nop 0
        s_cbranch_vccz {ok}""")
        spin(C,lp,ok,CFG['casl'])
        p(f"s_branch {lp}\n{ok}:")
        STAMP('car'); COUNT('ncar',C,SPIN)
        top8(R,K2,K1,t,t+2)
        p(f"ds_write_b32 v{aC+1}, v{R}")
        STAMP('htp')
        END()
        COLD.append("\n".join(p.L[n0:])); del p.L[n0:]
    p(f"{en}:")
def top8(R,K2,K1,y,tt):
    def clean(chs):
        seq=[]
        for (x,y_,t_) in chs:
            seq.append([f"v_max_u32_dpp v{y_}, v{x}, v{x} row_shl:4 row_mask:0xf bank_mask:0x5",
                        f"v_min_u32_dpp v{y_}, v{x}, v{x} row_shr:4 row_mask:0xf bank_mask:0xa",
                        None,
                        f"v_mov_b32_dpp v{t_}, v{y_} quad_perm:[2,3,0,1] row_mask:0xf bank_mask:0xf",
                        f"v_med3_u32 v{y_}, v{y_}, v{t_}, v{K2}",
                        None,
                        f"v_mov_b32_dpp v{t_}, v{y_} quad_perm:[1,0,3,2] row_mask:0xf bank_mask:0xf",
                        f"v_med3_u32 v{x}, v{y_}, v{t_}, v{K1}"])
        n=len(chs)
        p(f"s_nop {2-n}")
        for i in range(8):
            if seq[0][i] is None: p(f"s_nop {2-n}")
            else:
                for c in seq: p(c[i])
                if i==0 and n==1: p("s_nop 1")
                elif i==0: p("s_nop 0")
    dp="row_mask:0xf bank_mask:0xf"
    p(f"v_max_u32_dpp v{R}, v{R+2}, v{R} row_half_mirror {dp}\nv_max_u32_dpp v{R+4}, v{R+6}, v{R+4} row_half_mirror {dp}")
    clean([(R,y,tt),(R+4,y+1,tt+1)])
    p(f"s_nop 1\nv_max_u32_dpp v{R}, v{R+4}, v{R} row_half_mirror {dp}")
    clean([(R,y,tt)])
    p(f"s_nop 1\nv_max_u32_dpp v{R}, v{R}, v{R} row_mirror {dp}")
    clean([(R,y,tt)])
    for msk,sw in ((0xa,16),(0xc,32)):
        p(f"""s_nop 1
        v_mov_b32_dpp v{R}, v{R} row_half_mirror row_mask:{hex(msk)} bank_mask:0xf
        v_mov_b32 v{tt}, v{R}
        s_nop 1
        v_permlane{sw}_swap_b32 v{R}, v{tt}
        s_nop 0
        v_max_u32 v{R}, v{R}, v{tt}""")
        clean([(R,y,tt)])
def moe():
    t=vT; A=sT+7; B=sT+8; C=sT+17; sTHR=sT+14; sKQ=sT+3
    R=12; K2=20; K1=21; aC=22; AW=108
    BL=160
    p(f"""s_cmp_ge_u32 s{sMI}, 17
    s_cbranch_scc1 L_plain""")
    if not CFG['cae']: p(f"""v_lshrrev_b32 v{t}, 3, v0
    v_and_b32 v{t+1}, 7, v0
    v_lshlrev_b32 v{t+1}, 3, v{t+1}
    v_lshl_add_u32 v{aC}, v{t}, 7, v{t+1}""")
    p(f"s_mov_b32 s{B}, {CA}")
    ld="\n".join(f"buffer_load_dwordx2 {vr(R+2*i,2)}, v{aC}, {S4(sWS)}, s{B} offen offset:{i*1024} sc1" for i in range(4))
    aMF=4; aMW=5
    def getw():
        lds_wait(AW-aMF,t+10 if False else AW,C,'eq',0,0)
        STAMP('mwr')
        for s_ in range(12):
            for rd in range(2): p(f"ds_read_b64_tr_b16 {vr(AW+4*s_+2*rd,2)}, v{AW-aMW} offset:{L_MW+s_*1024+rd*512}")
    if not CFG['cae'] and not CFG['htop']: p(f"""s_cmp_lg_u32 s{sWAVE}, 0
    s_cbranch_scc1 L_nocal
    {ld}""")
    p(f"""L_nocal:
    v_bfe_i32 v{K2}, v0, 1, 1
    v_bfe_i32 v{K1}, v0, 0, 1
    v_not_b32 v{K2}, v{K2}
    v_not_b32 v{K1}, v{K1}
    s_add_u32 s{sKQ}, s{sWAVE}, {CFG['kqr']}
    s_and_b32 s{sKQ}, s{sKQ}, 3
    s_lshl_b32 s{A}, s{sKQ}, 2
    s_add_u32 s{A}, s{A}, {F_MW}
    v_mov_b32 v{AW-aMF}, s{A}
    s_mul_i32 s{A}, s{sKQ}, 12288
    v_lshl_add_u32 v{AW-aMW}, v0, 3, s{A}
    v_and_b32 v{t}, 7, v0
    v_lshlrev_b32 v{t}, 2, v{t}
    v_add_u32 v{AW-6}, {L_TOP}, v{t}
    {f"v_add_u32 v{AW-9}, {L_TOP}, v{t}" if CFG['ldma'] else ""}
    s_cmp_ge_u32 s{sMI}, 12
    s_cbranch_scc1 L_now""")
    if CFG['ldma']:
        p(f"""v_lshrrev_b32 v{t}, 3, v0
        v_lshlrev_b32 v{t}, 2, v{t}
        v_add_u32 v{AW-9}, {L_TOP}, v{t}
        v_and_b32 v{AW-7}, 7, v0
        v_lshrrev_b32 v{t}, 4, v0
        v_lshlrev_b32 v{t}, 4, v{t}
        v_lshl_add_u32 v{t}, v{AW-7}, 7, v{t}
        s_mul_i32 s{A}, s{sWAVE}, 3072
        s_add_u32 s{A}, s{A}, {L_RED+8192}
        v_add_u32 v{AW-8}, s{A}, v{t}
        v_lshlrev_b32 v{AW-7}, 4, v{AW-7}
        s_mov_b32 m0, s{A}""")
    getw()
    if CFG['htop']: p("s_branch L_topw2")
    lp=p.lab("ca"); ok=p.lab("caok"); md=p.lab("cam")
    p(f"""L_now:
    s_cmp_lg_u32 s{sWAVE}, 0
    s_cbranch_scc1 L_topw
    s_mov_b32 s{C}, {SPIN}
    {"s_waitcnt vmcnt(3)" if CFG['cae'] else ""}
    {"" if CFG['htop'] else f"s_branch {md}"}
    {lp}:
    {ld}
    {"s_waitcnt vmcnt(0)" if CFG['cae'] else ""}
    {md}:
    {"" if CFG['cae'] else "s_waitcnt vmcnt(0)"}
    v_xor_b32 v{t}, v{R+1}, v{R+3}
    v_xor_b32 v{t+1}, v{R+5}, v{R+7}
    v_xor_b32 v{R+1}, s{sTAG}, v{R+1}
    v_xor_b32 v{R+5}, s{sTAG}, v{R+5}
    v_or3_b32 v{t}, v{t}, v{t+1}, v{R+1}
    v_or_b32 v{t}, v{t}, v{R+5}
    v_cmp_ne_u32 vcc, 0, v{t}
    s_nop 0
    s_cbranch_vccz {ok}""")
    spin(C,lp,ok,CFG['casl'])
    if CFG['dasl']: p(f"s_cmp_lt_u32 s{sMI}, 12\ns_cbranch_scc1 {lp}\ns_sleep {CFG['dasl']}")
    p(f"s_branch {lp}\n{ok}:")
    STAMP('car'); COUNT('ncar',C,SPIN)
    top8(R,K2,K1,t,t+2)
    p(f"ds_write_b32 v{AW-6}, v{R}")
    if CFG['htop']: assert CFG['ldma']; p(f"s_branch L_top\nL_topw:\ns_waitcnt vmcnt(0)\nL_topw2:")
    elif CFG['ldma']: p(f"s_cmp_ge_u32 s{sMI}, 12\ns_cbranch_scc1 L_top\nL_topw:\ns_waitcnt vmcnt(0)")
    else: p(f"s_branch L_top\nL_topw:\ns_waitcnt vmcnt(0)")
    lds_wait(AW-9 if CFG['ldma'] else AW-6,R,C,'eq',-1,0)
    TOK=t+1; aR=t+2
    def deferred(tag):
        allrows=CFG['odf']>=(12 if tag[0]=='g' else 17 if tag=='d' else 99)
        p(f"""v_cmp_gt_u32 vcc, s{sTHR}, v{KEY}
        s_nop 0
        {'s_orn2_b64' if allrows else 's_and_b64'} exec, vcc, s[{sCAND}:{sCAND+1}]
        s_cbranch_scc0 L_nd{tag}""")
        out_store()
        p(f"L_nd{tag}:\ns_mov_b64 exec, -1")
    XM="s_mov_b32 exec_lo, 0x00ff00ff\ns_mov_b32 exec_hi, 0x00ff00ff" if CFG['xm'] else "s_mov_b64 exec, -1"
    if CFG['ldma']:
        lp=p.lab("gl"); ok=p.lab("glok")
        p(f"""s_cmp_ge_u32 s{sMI}, 12
        s_cbranch_scc1 L_top""")
        STAMP('top')
        p(f"""v_bfe_u32 v{TOK}, v{R}, 9, 5
        v_and_b32 v{aR}, 7, v{R}
        v_xor_b32 v{TOK}, 31, v{TOK}
        s_mul_i32 s{A}, s{sKQ}, 320
        v_lshl_add_u32 v{aR}, v{TOK}, 3, v{aR}
        s_add_u32 s{A}, s{A}, {CAND}
        v_mov_b32 v{t}, 2560
        s_sub_u32 s{B}, s{A}, 896
        v_mad_u32_u24 v{aR}, v{aR}, v{t}, v{AW-7}
        s_sub_u32 s{sT+4}, s{A}, 1792
        s_mov_b32 s{C}, {SPIN}
        {lp}:
        s_mov_b64 exec, -1
        buffer_load_dwordx4 v{aR}, {S4(sWS)}, s{A} offen sc1 lds
        buffer_load_dwordx4 v{aR}, {S4(sWS)}, s{B} offen offset:1024 sc1 lds
        s_mov_b32 exec_lo, 0x0f0f0f0f
        s_mov_b32 exec_hi, 0x0f0f0f0f
        buffer_load_dwordx4 v{aR}, {S4(sWS)}, s{sT+4} offen offset:2048 sc1 lds
        s_mov_b64 exec, -1
        v_readlane_b32 s{sTHR}, v{R}, 56
        s_lshl_b32 s{sT+5}, s{sWAVE}, 11
        s_add_u32 s{sT+5}, s{sT+5}, {L_RED}
        v_lshl_add_u32 v{t+3}, v0, 4, s{sT+5}
        s_mov_b32 exec_lo, 0x00ff00ff
        s_mov_b32 exec_hi, 0x00ff00ff""")
        for i in range(5):
            if i%2==0: p(f"s_waitcnt vmcnt({2-i//2})")
            p(f"ds_read_b128 {vr(BL+4*i,4)}, v{AW-8} offset:{(i>>1)*1024+(i&1)*64}")
        if CFG['asp']:
            G=20; U=24
            p("s_mov_b64 exec, -1")
            for s_ in range(5):
                p(f"s_waitcnt lgkmcnt({4-s_})")
                for m_,a_ in ((0,G),(1,U)):
                    p(f"v_mfma_f32_16x16x32_bf16 {vr(a_,4)}, {vr(AW+8*s_+4*m_,4)}, {vr(BL+4*s_,4)}, {vr(a_,4) if s_ else 0}")
                    if m_==0: p(f"v_max3_u32 v{t+4}, v{BL+4*s_}, v{BL+4*s_+2}, {'v%d'%(t+4) if s_ else 0}")
            p(f"""v_cmp_eq_u32 vcc, -1, v{t+4}
            s_nop 0
            s_and_b32 vcc_lo, vcc_lo, 0x00ff00ff
            s_and_b32 vcc_hi, vcc_hi, 0x00ff00ff
            s_or_b32 s{sT+5}, vcc_lo, vcc_hi
            s_cbranch_scc0 L_glok""")
        else: p(f"""s_waitcnt lgkmcnt(2)
        v_max3_u32 v{t+4}, v{BL}, v{BL+2}, v{BL+4}
        v_max3_u32 v{t+5}, v{BL+6}, v{BL+8}, v{BL+10}
        s_waitcnt lgkmcnt(0)
        v_max3_u32 v{t+4}, v{BL+12}, v{BL+14}, v{t+4}
        v_max3_u32 v{t+5}, v{BL+16}, v{BL+18}, v{t+5}
        v_max_u32 v{t+4}, v{t+4}, v{t+5}
        v_cmp_eq_u32 vcc, -1, v{t+4}
        s_nop 0
        s_cbranch_vccz L_glok""")
        spin(C,lp,"L_glok")
        p(f"s_branch {lp}")
    p("L_top:")
    STAMP('top')
    p(f"""v_bfe_u32 v{TOK}, v{R}, 3, 11
    v_sub_u32 v{TOK}, 2047, v{TOK}
    v_lshrrev_b32 v{t}, 6, v{TOK}
    v_and_b32 v{aR}, 7, v{R}
    v_lshl_add_u32 v{aR}, v{t}, 3, v{aR}
    v_mul_u32_u24 v{aR}, 2560, v{aR}
    v_lshrrev_b32 v{t}, 4, v0
    v_readlane_b32 s{sTHR}, v{R}, 7
    {"" if CFG['ldma'] else f"s_cmp_ge_u32 s{sMI}, 12"}
    {"s_branch" if CFG['ldma'] else "s_cbranch_scc1"} L_down""")
    if not CFG['ldma']: l_old(t,A,B,C,BL,aR,sKQ,sTHR,XM)
    else: p("L_glok:")
    STAMP('lr'); COUNT('nlr',C,SPIN)
    SP=CFG['asp'] and CFG['ldma']
    if CFG['xm'] and not SP: p("s_mov_b64 exec, -1")
    G=20; U=24; X=28
    for s_ in range(0 if SP else 5):
        for m_,a_ in ((0,G),(1,U)):
            p(f"v_mfma_f32_16x16x32_bf16 {vr(a_,4)}, {vr(AW+8*s_+4*m_,4)}, {vr(BL+4*s_,4)}, {vr(a_,4) if s_ else 0}")
    w0=p.lab("guw0")
    def hint(sa,va,wv=None):
        sk=p.lab("nohint")
        if wv is not None: p(f"s_cmp_lg_u32 s{sWAVE}, {wv}\ns_cbranch_scc1 {sk}")
        p(f"""s_lshl_b32 s{sa}, s{sG}, 5
        s_add_u32 s{sa}, s{sa}, s{sMI}
        s_lshl_b32 s{sa}, s{sa}, 2
        s_add_u32 s{sa}, s{sa}, {AH}
        v_mov_b32 v{va}, 0
        v_mov_b32 v{va+1}, s{sTAG}
        s_mov_b64 exec, 1""")
        dual([f"buffer_store_dword v{va+1}, v{va}, {S4(sWS)}, s{sa} offen"])
        p(f"s_mov_b64 exec, -1\n{sk}:")
    p(f"""s_cmp_eq_u32 s{sWAVE}, 0
    s_cbranch_scc1 {w0}
    {"" if SP else "s_nop 5"}
    ds_write_b128 v{t+3}, {vr(G,4)}
    ds_write_b128 v{t+3}, {vr(U,4)} offset:1024""")
    if CFG['ahp']==4: hint(B,60,2)
    p("s_waitcnt lgkmcnt(0)\ns_barrier")
    if CFG['ahp']==3: hint(B,60,2)
    if CFG['ldma']:
        nt=p.lab("noth")
        p(f"""s_xor_b32 s{B}, s{sWAVE}, 1
        s_or_b32 s{B}, s{sMI}, s{B}
        s_cbranch_scc1 {nt}
        v_mov_b32 v{t+4}, s{sTHR}
        v_mov_b32 v{t+5}, s{sTAG}
        s_lshl_b32 s{B}, s{sG}, 7
        s_add_u32 s{B}, s{B}, {TH}
        v_mov_b32 v{t+6}, 0
        s_mov_b64 exec, 1
        buffer_store_dwordx2 v[{t+4}:{t+5}], v{t+6}, {S4(sWS)}, s{B} offen sc1
        s_mov_b64 exec, -1
        {nt}:""")
    if CFG['ob2']: p("s_barrier")
    deferred('g1')
    END()
    p(f"""{w0}:
    s_mul_i32 s{A}, s{sG}, 12
    s_add_u32 s{A}, s{A}, s{sMI}
    s_lshl_b32 s{A}, s{A}, 8
    s_add_u32 s{A}, s{A}, {ACT}
    v_and_b32 v{t+4}, 7, v0
    v_lshlrev_b32 v{t+4}, 4, v{t+4}
    v_lshrrev_b32 v{t+5}, 5, v0
    v_lshl_add_u32 v{t+4}, v{t+5}, 7, v{t+4}
    v_bfe_u32 v{t+5}, v0, 4, 1
    v_lshl_add_u32 v{t+4}, v{t+5}, 3, v{t+4}
    s_barrier""")
    STAMP('gb')
    for w_ in range(1,4):
        for m_ in range(2): p(f"ds_read_b128 {vr(X+8*(w_-1)+4*m_,4)}, v{t+3} offset:{w_*2048+m_*1024}")
    p(f"s_mov_b32 s{B}, {hex(f2u(-math.log2(math.e)))}")
    for w_ in range(3):
        p(f"s_waitcnt lgkmcnt({4-2*w_})")
        for k in range(4): p(f"v_pk_add_f32 {vr(G+2*k,2)}, {vr(G+2*k,2)}, {vr(X+8*w_+2*k,2)}")
    p(f"""v_cvt_pk_bf16_f32 v{X}, v{G}, v{G+1}
    v_cvt_pk_bf16_f32 v{X+1}, v{G+2}, v{G+3}
    v_cvt_pk_bf16_f32 v{X+2}, v{U}, v{U+1}
    v_cvt_pk_bf16_f32 v{X+3}, v{U+2}, v{U+3}""")
    for k in range(4): p(f"v_lshlrev_b32 v{G+2*k}, 16, v{X+k}\nv_and_b32 v{G+2*k+1}, 0xffff0000, v{X+k}")
    for k in range(4): p(f"v_mul_f32 v{X+k}, s{B}, v{G+k}")
    for k in range(4): p(f"v_exp_f32 v{X+k}, v{X+k}")
    if CFG['ahp']==2: hint(B,60)
    for k in range(4): p(f"v_add_f32 v{X+k}, 1.0, v{X+k}")
    for k in range(4): p(f"v_rcp_f32 v{X+k}, v{X+k}")
    for k in range(4): p(f"v_mul_f32 v{G+k}, v{G+k}, v{X+k}")
    if CFG['ahp']==1: hint(B,60)
    p(f"v_cvt_pk_bf16_f32 v{X}, v{G}, v{G+1}\nv_cvt_pk_bf16_f32 v{X+1}, v{G+2}, v{G+3}")
    for k in range(2): p(f"v_lshlrev_b32 v{G+2*k}, 16, v{X+k}\nv_and_b32 v{G+2*k+1}, 0xffff0000, v{X+k}")
    p(f"""v_pk_mul_f32 {vr(G,2)}, {vr(G,2)}, {vr(U,2)}
    v_pk_mul_f32 {vr(G+2,2)}, {vr(G+2,2)}, {vr(U+2,2)}
    v_cvt_pk_bf16_f32 v{X}, v{G}, v{G+1}
    v_cvt_pk_bf16_f32 v{X+1}, v{G+2}, v{G+3}
    s_mov_b32 exec_lo, 0x00ff00ff
    s_mov_b32 exec_hi, 0x00ff00ff
    buffer_store_dwordx2 {vr(X,2)}, v{t+4}, {S4(sWS)}, s{A} offen sc1""")
    if CFG['ahint'] and CFG['ahp']==0:
        p(f"""s_lshl_b32 s{A}, s{sG}, 5
        s_add_u32 s{A}, s{A}, s{sMI}
        s_lshl_b32 s{A}, s{A}, 2
        s_add_u32 s{A}, s{A}, {AH}
        v_mov_b32 v{t+4}, 0
        v_mov_b32 v{t+5}, s{sTAG}
        s_mov_b64 exec, 1""")
        dual([f"buffer_store_dword v{t+5}, v{t+4}, {S4(sWS)}, s{A} offen"])
    p("s_mov_b64 exec, -1")
    STAMP('act')
    if CFG['ob2']: p("s_barrier")
    deferred('g0')
    END()
    HL=20; Y=24; X=28; SG=t+8; aO2=t+9
    p(f"""L_down:
    v_lshl_add_u32 v{aR}, v{t}, 3, v{aR}
    v_mul_u32_u24 v{aO2}, 1280, v{TOK}
    v_lshl_add_u32 v{aO2}, v{t}, 3, v{aO2}
    v_and_b32 v{t+4}, 7, v0
    v_lshlrev_b32 v{t+4}, 4, v{t+4}
    v_lshl_add_u32 v{t+4}, v{t}, 7, v{t+4}
    {f"v_bfe_u32 v{t+5}, v0, 3, 1" if CFG['a2'] else ""}
    {f"v_lshl_add_u32 v{t+4}, v{t+5}, 9, v{t+4}" if CFG['a2'] else ""}
    s_mul_i32 s{sT+1}, s{sG}, 5
    s_add_u32 s{sT+1}, s{sT+1}, s{sMI}
    s_sub_u32 s{sT+1}, s{sT+1}, 12
    s_lshl_b32 s{sT+1}, s{sT+1}, 5
    s_add_u32 s{sT+2}, s{sT+1}, {CAND}
    s_mul_i32 s{A}, s{sKQ}, 6144
    s_add_u32 s{A}, s{A}, {ACT}
    s_add_u32 s{B}, s{A}, 4096""")
    ldh=f"buffer_load_dwordx2 {vr(HL,2)}, v{aR}, {S4(sWS)}, s{sT+2} offen sc1\nbuffer_load_dwordx2 {vr(HL+2,2)}, v{aR}, {S4(sWS)}, s{sT+2} offen offset:1280 sc1"
    if CFG['hll']: p(f"s_cmp_lg_u32 s{sWAVE}, 0\ns_cbranch_scc1 L_nohl\n{XM}\n{ldh}\ns_mov_b64 exec, -1\nL_nohl:")
    else: p(ldh)
    deferred('d')
    p(f"""v_ashrrev_i32 v{SG}, 31, v{R}
    v_not_b32 v{SG}, v{SG}
    v_or_b32 v{SG}, 0x80000000, v{SG}
    v_xor_b32 v{SG}, v{SG}, v{R}
    v_and_b32 v{SG}, 0xffff0000, v{SG}
    v_mul_f32 v{SG}, {hex(f2u(-math.log2(math.e)))}, v{SG}
    v_exp_f32 v{SG}, v{SG}
    s_lshl_b32 s{C}, s{sWAVE}, 10
    v_add_f32 v{SG}, 1.0, v{SG}
    v_rcp_f32 v{SG}, v{SG}
    s_add_u32 s{C}, s{C}, {L_RED}
    v_lshl_add_u32 v{t+3}, v0, 4, s{C}""")
    bf16r(SG,SG)
    lp=p.lab("hl"); ok=p.lab("hlok"); md=p.lab("hlm")
    if not CFG['hll']: p(f"""s_mov_b32 s{C}, {SPIN}
    s_branch {md}
    {lp}:
    {ldh}
    {md}:
    s_waitcnt vmcnt(0)
    v_max_u32 v{t+5}, v{HL}, v{HL+2}
    v_cmp_eq_u32 vcc, -1, v{t+5}
    s_nop 0
    {'s_branch' if CFG['xp'] else 's_cbranch_vccz'} {ok}""")
    if not CFG['hll']:
        spin(C,lp,ok)
        p(f"s_branch {lp}\n{ok}:")
    getw()
    ld="\n".join([f"buffer_load_dwordx4 {vr(BL+4*i,4)}, v{t+4}, {S4(sWS)}, s{A if i<8 else B} offen offset:{(i%8)*512} sc1" for i in range(12)])
    if CFG['ahint']:
        p(f"""v_min_u32 v{t+6}, {CFG['ahint']-1}, v0
        v_lshlrev_b32 v{t+6}, 2, v{t+6}
        s_lshl_b32 s{sT+4}, s{sG}, 7
        s_add_u32 s{sT+4}, s{sT+4}, {AH}""")
        flag_poll(t+6,t+5,sT+4,C)
        STAMP('ah')
    lp=p.lab("al"); ok=p.lab("alok")
    if CFG['a2']:
        Y2=BL+24
        ld="\n".join([f"buffer_load_dwordx4 {vr(BL+4*i,4)}, v{t+4}, {S4(sWS)}, s{A if i<4 else B} offen offset:{(i%4)*1024} sc1" for i in range(6)])
        if CFG['asp']:
            p(f"s_mov_b32 s{C}, {SPIN}\n{lp}:\n{ld}\ns_waitcnt lgkmcnt(0)")
            for i in range(6):
                p(f"s_waitcnt vmcnt({5-i})")
                for s_ in (2*i,2*i+1):
                    y=(Y,Y2)[s_&1]
                    p(f"v_mfma_f32_16x16x32_bf16 {vr(y,4)}, {vr(AW+4*s_,4)}, {vr(BL+4*(s_>>1),4)}, {vr(y,4) if s_>1 else 0}")
                    if s_&1==0: p(f"v_max3_u32 v{t+5}, v{BL+4*i}, v{BL+4*i+2}, {'v%d'%(t+5) if i else 0}")
            p(f"""v_cmp_eq_u32 vcc, -1, v{t+5}
            s_nop 0
            s_cbranch_vccz {ok}""")
            spin(C,lp,ok,CFG['acsl'])
            p(f"s_branch {lp}\n{ok}:")
            STAMP('ar'); COUNT('nar',C,SPIN)
            p("s_nop 4")
        else: p(f"""s_mov_b32 s{C}, {SPIN}
        {lp}:
        {ld}
        s_waitcnt vmcnt(3)
        v_max3_u32 v{t+5}, v{BL}, v{BL+2}, v{BL+4}
        v_max3_u32 v{t+6}, v{BL+6}, v{BL+8}, v{BL+10}
        s_waitcnt vmcnt(0)
        v_max3_u32 v{t+5}, v{BL+12}, v{BL+14}, v{t+5}
        v_max3_u32 v{t+6}, v{BL+16}, v{BL+18}, v{t+6}
        v_max3_u32 v{t+5}, v{BL+20}, v{BL+22}, v{t+5}
        v_max_u32 v{t+5}, v{t+5}, v{t+6}
        v_cmp_eq_u32 vcc, -1, v{t+5}
        s_waitcnt lgkmcnt(0)
        s_cbranch_vccz {ok}""")
        if not CFG['asp']:
            spin(C,lp,ok,CFG['acsl'])
            p(f"s_branch {lp}\n{ok}:")
            STAMP('ar'); COUNT('nar',C,SPIN)
            for s_ in range(12):
                y=(Y,Y2)[s_&1]
                p(f"v_mfma_f32_16x16x32_bf16 {vr(y,4)}, {vr(AW+4*s_,4)}, {vr(BL+4*(s_>>1),4)}, {vr(y,4) if s_>1 else 0}")
            p("s_nop 7")
        for k in range(4): p(f"v_add_f32_dpp v{Y+k}, v{Y2+k}, v{Y+k} row_ror:8 row_mask:0xf bank_mask:0xf")
    else: act_old(t,A,B,C,BL,AW,Y,XM,ld,lp,ok)
    w0=p.lab("dnw0")
    p(f"""s_cmp_eq_u32 s{sWAVE}, 0
    s_cbranch_scc1 {w0}
    {"" if CFG['a2'] else "s_nop 5"}
    ds_write_b128 v{t+3}, {vr(Y,4)}
    s_waitcnt lgkmcnt(0)
    s_barrier""")
    END()
    p(f"{w0}:")
    if CFG['hll']:
        p(f"""{XM}
        v_max_u32 v{t+5}, v{HL}, v{HL+2}
        v_cmp_eq_u32 vcc, -1, v{t+5}
        s_mov_b32 s{C}, {SPIN}
        s_cbranch_vccnz L_hlw
        L_hlr:
        s_mov_b64 exec, -1""")
        COLD.append(f"""L_hlw:
        s_sub_u32 s{C}, s{C}, 1
        s_cbranch_scc1 L_hlr
        {ldh}
        s_waitcnt vmcnt(0)
        v_max_u32 v{t+5}, v{HL}, v{HL+2}
        v_cmp_eq_u32 vcc, -1, v{t+5}
        s_nop 0
        s_cbranch_vccnz L_hlw
        s_branch L_hlr""")
    p(f"""v_lshlrev_b32 v{X+12}, 16, v{HL}
    v_and_b32 v{X+13}, 0xffff0000, v{HL}
    v_lshlrev_b32 v{X+14}, 16, v{HL+1}
    v_and_b32 v{X+15}, 0xffff0000, v{HL+1}
    v_lshlrev_b32 v{X+16}, 16, v{HL+2}
    v_and_b32 v{X+17}, 0xffff0000, v{HL+2}
    v_lshlrev_b32 v{X+18}, 16, v{HL+3}
    v_and_b32 v{X+19}, 0xffff0000, v{HL+3}
    s_barrier""")
    STAMP('db')
    for w_ in range(1,4): p(f"ds_read_b128 {vr(X+4*(w_-1),4)}, v{t+3} offset:{w_*1024}")
    for w_ in range(3):
        p(f"s_waitcnt lgkmcnt({2-w_})")
        for k in range(2): p(f"v_pk_add_f32 {vr(Y+2*k,2)}, {vr(Y+2*k,2)}, {vr(X+4*w_+2*k,2)}")
    def rnd():
        p(f"v_cvt_pk_bf16_f32 v{X}, v{Y}, v{Y+1}\nv_cvt_pk_bf16_f32 v{X+1}, v{Y+2}, v{Y+3}")
    def unp():
        for k in range(2): p(f"v_lshlrev_b32 v{Y+2*k}, 16, v{X+k}\nv_and_b32 v{Y+2*k+1}, 0xffff0000, v{X+k}")
    rnd(); unp()
    for k in range(4): p(f"v_mul_f32 v{Y+k}, v{SG}, v{Y+k}")
    rnd(); unp()
    for k in range(2): p(f"v_pk_add_f32 {vr(Y+2*k,2)}, {vr(Y+2*k,2)}, {vr(X+12+2*k,2)}")
    rnd(); unp()
    for k in range(2): p(f"v_pk_add_f32 {vr(Y+2*k,2)}, {vr(Y+2*k,2)}, {vr(X+16+2*k,2)}")
    rnd()
    p(f"""s_mov_b32 exec_lo, 0x00ff00ff
    s_mov_b32 exec_hi, 0x00ff00ff
    buffer_store_dwordx2 {vr(X,2)}, v{aO2}, {S4(sOUT)}, s{sT+1} offen {CFG['fpol']}""")
    STAMP('fin')
    END()
    lp=p.lab("th"); ok=p.lab("thok")
    p("L_plain:")
    if CFG['cpre']:
        sk=p.lab("nocp")
        p(f"""s_sub_u32 s{A}, s{sMI}, {CFG['cpb']}
        s_lshl_b32 s{A}, s{A}, 2
        s_add_u32 s{A}, s{A}, s{sWAVE}
        s_cmp_ge_u32 s{A}, 32
        s_cbranch_scc1 {sk}""")
        if CFG['cpre']==1:
            p(f"s_lshl_b32 s{B}, s{A}, 7\ns_add_u32 s{B}, s{B}, {CA+4}\nv_mov_b32 v{t}, 0")
            flag_poll(t,t+1,B,C,sleep=CFG['cpsl'])
        l2=p.lab("cp"); o2=p.lab("cpok")
        p(f"""s_mul_i32 s{B}, s{A}, 20480
        s_add_u32 s{B}, s{B}, {CAND+36}
        v_lshrrev_b32 v{t}, 5, v0
        v_mul_u32_u24 v{t}, 1280, v{t}
        v_mad_u32_u24 v{t}, v0, 40, v{t}
        s_mov_b32 s{C}, 64
        {l2}:
        buffer_load_dword v{t+1}, v{t}, {S4(sWS)}, s{B} offen sc1
        s_waitcnt vmcnt(0)
        v_cmp_eq_u32 vcc, -1, v{t+1}
        s_nop 0
        s_cbranch_vccz {o2}""")
        spin(C,l2,o2,CFG['cpsl'])
        p(f"s_branch {l2}\n{o2}:")
        STAMP('cp')
        p(f"{sk}:")
    p(f"""s_lshl_b32 s{B}, s{sG}, 7
    s_add_u32 s{B}, s{B}, {TH}
    v_mov_b32 v{t}, 0
    s_mov_b32 s{C}, {SPIN}
    {lp}:
    s_sleep 16
    buffer_load_dwordx2 v[{t+2}:{t+3}], v{t}, {S4(sWS)}, s{B} offen sc1
    s_waitcnt vmcnt(0)
    v_cmp_ne_u32 vcc, s{sTAG}, v{t+3}
    s_nop 0
    s_cbranch_vccz {ok}""")
    spin(C,lp,ok)
    p(f"""s_branch {lp}
    {ok}:
    v_readfirstlane_b32 s{sTHR}, v{t+2}
    s_nop 1""")
    deferred('p')
    STAMP('fin')

def l_old(t,A,B,C,BL,aR,sKQ,sTHR,XM):
    p(f"""v_lshl_add_u32 v{aR}, v{t}, 4, v{aR}
    s_mul_i32 s{A}, s{sKQ}, 320
    s_add_u32 s{A}, s{A}, {CAND}""")
    ld="\n".join(f"buffer_load_dwordx4 {vr(BL+4*i,4)}, v{aR}, {S4(sWS)}, s{A} offen offset:{i*64} sc1" for i in range(5))
    lp=p.lab("gl"); ok=p.lab("glok"); md=p.lab("glm"); nt=p.lab("noth")
    if CFG['xm']: p(XM)
    p(ld)
    p(f"""s_or_b32 s{B}, s{sMI}, s{sWAVE}
    s_cbranch_scc1 {nt}
    v_mov_b32 v{t+4}, s{sTHR}
    v_mov_b32 v{t+5}, s{sTAG}
    s_lshl_b32 s{B}, s{sG}, 7
    s_add_u32 s{B}, s{B}, {TH}
    v_mov_b32 v{t+6}, 0
    s_mov_b64 exec, 1
    buffer_store_dwordx2 v[{t+4}:{t+5}], v{t+6}, {S4(sWS)}, s{B} offen sc1
    {nt}:
    s_mov_b64 exec, -1
    s_lshl_b32 s{B}, s{sWAVE}, 11
    s_add_u32 s{B}, s{B}, {L_RED}
    v_lshl_add_u32 v{t+3}, v0, 4, s{B}
    {XM}
    s_mov_b32 s{C}, {SPIN}
    s_branch {md}
    {lp}:
    {ld}
    {md}:
    s_waitcnt vmcnt(0) lgkmcnt(0)
    v_max3_u32 v{t+4}, v{BL}, v{BL+2}, v{BL+4}
    v_max3_u32 v{t+5}, v{BL+6}, v{BL+8}, v{BL+10}
    v_max3_u32 v{t+4}, v{BL+12}, v{BL+14}, v{t+4}
    v_max3_u32 v{t+5}, v{BL+16}, v{BL+18}, v{t+5}
    v_max_u32 v{t+4}, v{t+4}, v{t+5}
    v_cmp_eq_u32 vcc, -1, v{t+4}
    s_nop 0
    {'s_branch' if 'nocand' in CFG['xp'] else 's_cbranch_vccz'} {ok}""")
    spin(C,lp,ok)
    p(f"s_branch {lp}\n{ok}:")
def act_old(t,A,B,C,BL,AW,Y,XM,ld,lp,ok):
    p(f"""{XM}
    s_mov_b32 s{C}, {SPIN}
    {lp}:
    {ld}
    s_waitcnt vmcnt(8)
    v_max3_u32 v{t+5}, v{BL}, v{BL+2}, v{BL+4}
    v_max3_u32 v{t+6}, v{BL+6}, v{BL+8}, v{BL+10}
    v_max3_u32 v{t+5}, v{BL+12}, v{BL+14}, v{t+5}""")
    for i in range(4,12):
        if i%4==0: p(f"s_waitcnt vmcnt({8-i})")
        p(f"v_max3_u32 v{t+5+(i&1)}, v{BL+4*i}, v{BL+4*i+2}, v{t+5+(i&1)}")
    p(f"""v_max_u32 v{t+5}, v{t+5}, v{t+6}
    v_cmp_eq_u32 vcc, -1, v{t+5}
    s_waitcnt lgkmcnt(0)
    s_cbranch_vccz {ok}""")
    spin(C,lp,ok,CFG['acsl'])
    p(f"s_branch {lp}\n{ok}:")
    STAMP('ar'); COUNT('nar',C,SPIN)
    if CFG['xm']: p("s_mov_b64 exec, -1")
    for s_ in range(12): p(f"v_mfma_f32_16x16x32_bf16 {vr(Y,4)}, {vr(AW+4*s_,4)}, {vr(BL+4*s_,4)}, {vr(Y,4) if s_ else 0}")

def build():
    prologue()
    steps=loader()
    helperA(steps)
    p("s_branch L_mw")
    helperB(steps)
    p("L_mw:")
    moe_weights()
    END()
    if CFG['lay']: p(PG)
    p("L_comp:")
    if CFG['prio']: p(f"s_setprio {CFG['prio']}")
    p("s_waitcnt lgkmcnt(0)")
    STAMP('start')
    prologue2(1)
    if CFG['cpf']: code_pf()
    if CFG['cpa']==2: cp_rest(sT+18); p("s_mov_b64 exec, -1")
    if CFG['tlb']==1:
        for k in range(12):
            p(f"s_mov_b32 s{sT+18}, {k*0x200000+0x1000}\ns_load_dword s100, s[{sWS}:{sWS+1}], s{sT+18}")
    if CFG['tlb']==2:
        p(f"v_lshlrev_b32 v228, 19, v0\nv_min_u32 v228, 0x1780000, v228\nbuffer_load_dword v229, v228, {S4(sWS)}, 0 offen")
    srd(((sX,2621440),))
    if CFG['hclr'] or CFG['lclr']: assert CFG['clr']==0 and CFG['odn'] and CFG['wsp']; CFG['clate']=9
    if CFG['clr']==0 and CFG['clate']==0: clears(0); clears(1)
    STAMP('c1')
    att_setup()
    STAMP('c2')
    if CFG['clr']==0 and CFG['clate']==1: clears(0); clears(1)
    gemm_setup()
    STAMP('c3')
    if CFG['clr']: clears(0)
    if CFG['clr']==0 and CFG['clate']==2: clears(0); clears(1)
    STAMP('c4')
    p("s_waitcnt lgkmcnt(0)")
    STAMP('c5')
    mktag()
    p(f"""    s_cmp_eq_u32 s{sLC}, 15
    s_cbranch_scc1 L_gS
    s_cmp_eq_u32 s{sTY}, 2
    s_cbranch_scc1 L_gV""")
    if CFG['lay']:
        p("s_branch L_gT")
        n0=len(p.L)
        p(PG)
        if CFG['pade']: p("L_padT:\ns_branch L_comp")
        p("L_gT:"); gemm_loop('T'); gemm_epi('T'); p("s_branch L_att")
        n1=len(p.L)
        p("L_gS:"); idle_gemm(); p("s_branch L_att")
        COLD.insert(0,"\n".join(p.L[n1:])); del p.L[n1:]
        if CFG['pade']: p("L_padV:\ns_branch L_comp")
        if CFG['g16'] and CFG['gpg']: p(PG)
        p("L_gV:"); gemm_loop('V'); gemm_epi('V'); p("s_branch L_att")
        if CFG['dcs']: cs_block()
        G_=p.L[n0:]; del p.L[n0:]
        p("L_att:")
        att_go()
        p.L+=G_
    else:
        gemm_loop('T'); gemm_epi('T'); p("s_branch L_att")
        p("L_gS:"); idle_gemm(); p("s_branch L_att")
        p("L_gV:"); gemm_loop('V'); gemm_epi('V')
        p("L_att:")
        att_go()
    for w in range(4): att_variant(w)
    att_fin()
    wo_main()
    if CFG['stop']<=3:
        p(f"s_and_b64 exec, s[{sCAND}:{sCAND+1}], -1\ns_cbranch_scc0 L_noo2"); out_store(); p("L_noo2:")
    else: moe()
    END()
    att_cold()
    SL={3:('L_og0:','L_og1:','L_og3:'),2:('L_og5:','L_og7:'),1:('L_wo2w:','L_ldw:')+(() if CFG['hs2'] else ('L_hlw:',))} if CFG['cslot'] and CFG['lay'] else {}
    for w in range(4):
        i=p.L.index(f";@slot{w}"); mv=[c for c in COLD if c.strip().startswith(SL.get(w,('-',)))]
        q=P()
        for c in mv: q(c); COLD.remove(c)
        p.L[i:i+1]=q.L
    for c in COLD: p(c)
    p("L_exit:\ns_endpgm")
build()
errs=check(p.L)
hdr=f"""; generated by work/k/gen.py (own generator script)
; @launch grid=(256,1,1) block=(512,1,1) lds=163840
.amdgcn_target "amdgcn-amd-amdhsa--gfx950"
.text
.globl {NAME}_kernel
{".p2align 12" if CFG['pal'] else ""}
{f".fill {(CFG['pal']-1)*64}, 4, 0xbf810000" if CFG['pal']>1 else ""}
.p2align 8
.type {NAME}_kernel,@function
{NAME}_kernel:
"""
ftr=f""".section .rodata,"a"
.p2align 6
.amdhsa_kernel {NAME}_kernel
  .amdhsa_next_free_vgpr 256
  .amdhsa_next_free_sgpr 102
  .amdhsa_accum_offset 256
  .amdhsa_group_segment_fixed_size 0
  .amdhsa_kernarg_size 88
  .amdhsa_user_sgpr_count 2
  .amdhsa_user_sgpr_kernarg_segment_ptr 1
  .amdhsa_system_sgpr_workgroup_id_x 1
.end_amdhsa_kernel
"""
import align8
def fmt(L):
    q=P(); q.L=L; return q.text()
if CFG['al8']: print("align8",align8.align(p.L,hdr,ftr,fmt,sys.argv[1]+".tmp.s",CFG['al8']))
if CFG.get('alst'): print(align8.stat(p.L,hdr,ftr,fmt,sys.argv[1]+".tmp.s"))
open(sys.argv[1],"w").write(hdr+p.text()+ftr)

import subprocess
r=subprocess.run(["clang","-x","assembler","-target","amdgcn-amd-amdhsa","-mcpu=gfx950",sys.argv[1],"-o",sys.argv[1]+".co"],capture_output=True,text=True)
if r.returncode: print(r.stderr[:3000]); sys.exit(1)
r=subprocess.run(["python3","cdna_unwritten_srd_check.py",sys.argv[1]+".co"],capture_output=True,text=True)
if r.returncode: print("SRDCHECK:",r.stdout[-3000:],r.stderr[-1000:])
r=subprocess.run("llvm-size -A "+sys.argv[1]+".co | grep text",shell=True,capture_output=True,text=True); print(r.stdout.strip())
if errs:
    import os; os.remove(sys.argv[1]); sys.exit(1)
```

```python
import sys, math
from asmlib import *
NAME="sequential_preLN__sliding_block__moe_arch_mod__prompt"
CFG=dict(g16x=1, hpr=0, hme=2, sf2=4, cpn=4, cpv=0, sfe=0, gpg=1, g16r=(1,)*12, g16c=(13,15), g16b=3, dcs=0, dcg=7, g16=1, hpol='sc1', ospol='sc1', qth=(), qthn=0, qb1=0, epi2=2, epo='cb', hs2p=0, hs2=0, hs2u=2, hs2g='FS', hs2s=1, lclr=0, lcu=3, lcs=8, lcg='G2', htop=0, cae=0, jb=1, cslot=1, pks=4, lay=1, padk=0, pade=0, cpa=1, cpe=8, epf=1, b1p=0, pal=1, ahp=0, fpol='sc1', xdma=1, prm=25, ob2=0, psq=1, ldma=1, asp=1, a2=1, cpre=0, cpsl=2, cpb=17, hsl2=2, ogate=4, honly=0, hsp=0, wpause=0, hdef=-1, hdg='FS', xru=17, xrd=0, ahint=12, ptc='', chint=0, dtn=1, hll=1, xm=1, kqr=0, dasl=0, dth=0, odf=0, mrm=1, g2nd=('O1',10), smx=2, smd=0, hst=0, wgf='M', shf=1, gm='no', gr='G1', tlb=0, rld=0, al8=0, ldp='sc1', ldo='sc1', wsp=1, wla2=7, ogr2=(1,2,2,2,3), orem2=(6,1), wwe2=2, smw=(), smo=(3,6), mtr=(0,10), mth=0, wburst=0, mtg='RL', wts=99, wsplit=1, wnoa=0, hclr=0, cst=(3,3), hsent=0, hkv=0, hgate='G1', hrs=0, osent=1, ogr=(2,3,5,2,3,5), opoll='half', osl=(0,0), oini=10, orem=25, clate=1, oprb=0, odn=1, hstep=6, qpol='', apol='', cpol='', wb=(), wbs=31, ht=0, hpoll=0, hsl=1, wog2=0, hearly=0, stg=6, stb=0, ord='xw,xw,xw,xw,xw,xw,xw,xw,xw,xw', amp=None, wose=2, late1=1, sdef=(1,1,1,1), pt2=8, qpair2=0, nacc=8, sfirst=1, prio=0, smode='dot', sfill=(), acsl=0, casl=0, xp=(), dw3=0, wla=7, wwe=2, dgate='PS', dstart='O1', gstart='WE', mdep=10, ddep=12, qpair=0, mpair=0, wpair=0, xnt=0, wnt=0, tpol2='', wtw='no', mtw='w3', wothr1=6, mb=(6,6), mg=('WOD','PR','PR','O1'), mpf=0, mgate='b3', hsplit=0, cpf=0, npf=(0,)*10, wogs=5, clr=0, wot=(), wtpol='', seqs=None, xpol='nt', wpol='', tpol='', wopol='', mpol='', cal=None, opol='', st=['start','b0|hb0','gend|hb9','E1|hE1','st|halo|clr','fl|g2|wo','fseen|h2','kv','aend','ost'], pt=8, wothr=12, wogate=1, h2sl=1, noh2=0, nowo=0, wos=(0,0,0), sched=(1,2,1,1,1,1,1,0,0,0), dbg=0, stop=99, prof=0, rot=('0055','36094758','05162738'), force_slow=0, noclr=0, pre=2, ldst=0, nomfma=0, nohello=0)
for a in sys.argv[2:]:
    k,v=a.split("="); CFG[k]=eval(v)
QB,KB,VB,KH,VH,OB=[i*0x280000 for i in range(6)]
CAND=0xF00000
PS=0xFA0000
CA=0xFE0000
ACT=0xFE1000
HB=0x1000000
PROF=0x1300000
H1=0x1280000; H2=0x1281000; EPO=0x1282000; TH=0x1283000; AH=0x1284000; CH_=0x1285000; H2B=0x1288000
STP=0x1680000; STX=0x1780000
FO=0x1700000; OB2=0x1400000; FL=0x12A0000; FH=0x1740000
CSX=0x12C0000
L_STG=0; L_KV=10240; L_WO=55296; L_MISC=157696; L_MW=0
L_CS=L_MISC
L_SA=L_MISC+512
L_SR=L_SA+1024
L_MODE=L_SR+512
L_FLG=L_MODE+64
F_G1,F_G2,F_H2,F_STG,F_SCP,F_DONE,F_WOR,F_MW=[L_FLG+4*i for i in (0,1,2,4,8,9,10,12)]
L_SWS=L_FLG+80; F_O1=L_FLG+44; F_WOD=L_FLG+64; F_PR=L_FLG+68; F_WO2=L_FLG+72; F_PS=L_FLG+76; F_FS=L_FLG+84; F_LD=L_FLG+88; F_X=L_FLG+96; F_M=L_FLG+112; F_HR=L_FLG+120; F_RI=L_FLG+124; F_OWN=L_FLG+92
F_CC=L_FLG+12; ND=5 if CFG['lclr'] else 4
L_KEYS=L_FLG+128
L_CA=L_KEYS+256; L_TOP=L_CA+64
L_SM=131072
L_RED=L_WO
sX,sW,sWO,sWG,sWU,sWD,sOUT,sWS,sDBG,sWR=[4+4*i for i in range(10)]
sWAVE,sG,sSLOT,sRQ,sHH,sRB,sCT,sMODE,sEP,sTAG=range(44,54)
sT=54
sMI=39
sBK=3
sLO=76
sPROF=80
p=P()
COLD=[]
CALI=lambda: 's_memtime' if CFG['cal'][1]>20000 else 's_memrealtime'
def STAMP(name,w=0):
    if CFG['amp']:
        a=CFG['amp']
        if name=='entry': p(f"s_memrealtime s[{sPROF+8}:{sPROF+9}]")
        for k in (0,1):
            if name==a[k]:
                p(f"{'s_memrealtime' if a[2]=='r' else 's_memtime'} s[{sPROF+2*k}:{sPROF+2*k+1}]")
                if w: p("s_waitcnt lgkmcnt(0)")
    if CFG['cal'] and name in CFG['cal'][0].split('|'):
        p(f"{CALI()} s[{sPROF}:{sPROF+1}]")
        if w: p("s_waitcnt lgkmcnt(0)")
    i=[k for k,n in enumerate(CFG['st']) if name in n.split('|')]
    if CFG['prof'] and i:
        i=i[0]
        p(f"{'s_memrealtime' if CFG['prof']==2 else 's_memtime'} s[{sPROF+2*i}:{sPROF+2*i+1}]")
        if w: p("s_waitcnt lgkmcnt(0)")
def COUNT(name,cnt,full):
    i=[k for k,n in enumerate(CFG['st']) if name in n.split('|')]
    if CFG['prof'] and i:
        r=sPROF+2*i[0]
        p(f"s_waitcnt lgkmcnt(0)\ns_sub_u32 s{r}, {full}, s{cnt}\ns_mul_i32 s{r}, s{r}, 100\ns_add_u32 s{r}, s{r}, s{sPROF}")
def PROFDUMP():
    if not CFG['prof']: return
    p("s_waitcnt vmcnt(0) lgkmcnt(0)")
    p("s_mov_b64 exec, -1")
    for i in range(10): p(f"v_mov_b32 v{2+i}, s{sPROF+2*i}")
    p(f"""s_lshl_b32 s{sT}, s2, 3
    s_add_u32 s{sT}, s{sT}, s{sWAVE}
    s_lshl_b32 s{sT}, s{sT}, 6
    s_add_u32 s{sT}, s{sT}, {PROF}
    v_mov_b32 v1, 0
    s_mov_b64 exec, 1
    buffer_store_dwordx4 v[2:5], v1, s[{sWS}:{sWS+3}], s{sT} offen
    buffer_store_dwordx4 v[6:9], v1, s[{sWS}:{sWS+3}], s{sT} offen offset:16
    s_getpc_b64 s[{sT+2}:{sT+3}]
    v_mov_b32 v12, s{sT+2}
    v_mov_b32 v13, s{sT+3}
    buffer_store_dwordx4 v[10:13], v1, s[{sWS}:{sWS+3}], s{sT} offen offset:32""")
def END():
    PROFDUMP()
    if CFG['amp']:
        a=CFG['amp']
        lp=p.lab("amp"); ok=p.lab("ampok")
        p(f"""s_waitcnt vmcnt(0) lgkmcnt(0)
        s_cmp_eq_u32 s{sPROF+2}, 0
        s_cbranch_scc1 {ok}
        s_cmp_lg_u32 s{sWAVE}, {a[5] if len(a)>5 else 0}
        s_cbranch_scc1 {ok}""")
        if a[4]>=0: p(f"s_cmp_lg_u32 s2, {a[4]}\ns_cbranch_scc1 {ok}")
        p(f"""s_sub_u32 s{sPROF+6}, s{sPROF+2}, s{sPROF}
        s_mul_i32 s{sPROF+6}, s{sPROF+6}, {a[3]}
        s_lshr_b32 s{sPROF+6}, s{sPROF+6}, 4
        s_min_u32 s{sPROF+6}, s{sPROF+6}, 100000
        s_add_u32 s{sPROF+6}, s{sPROF+6}, 3000
        s_mov_b32 s{sPROF+4}, 100000
        {lp}:
        s_sleep 2
        s_memrealtime s[{sPROF+2}:{sPROF+3}]
        s_sub_u32 s{sPROF+4}, s{sPROF+4}, 1
        s_cbranch_scc1 {ok}
        s_waitcnt lgkmcnt(0)
        s_sub_u32 s{sPROF+2}, s{sPROF+2}, s{sPROF+8}
        s_cmp_lt_u32 s{sPROF+2}, s{sPROF+6}
        s_cbranch_scc1 {lp}
        {ok}:""")
    if CFG['cal']:
        lp=p.lab("cal"); ok=p.lab("calok")
        p(f"""s_waitcnt vmcnt(0) lgkmcnt(0)
        s_cmp_eq_u32 s{sPROF}, 0
        s_cbranch_scc1 {ok}
        s_cmp_ge_u32 s{sWAVE}, 4
        s_cbranch_scc1 {ok}
        s_mov_b32 s{sPROF+4}, 100000
        {lp}:
        s_sleep 2
        {CALI()} s[{sPROF+2}:{sPROF+3}]
        s_sub_u32 s{sPROF+4}, s{sPROF+4}, 1
        s_cbranch_scc1 {ok}
        s_waitcnt lgkmcnt(0)
        s_sub_u32 s{sPROF+2}, s{sPROF+2}, s{sPROF}
        s_cmp_lt_u32 s{sPROF+2}, {CFG['cal'][1]}
        s_cbranch_scc1 {lp}
        {ok}:""")
    p("s_endpgm")
S4=lambda r:f"s[{r}:{r+3}]"
SPIN=1<<18

def srd(lst):
    for r,n in lst: p(f"s_mov_b32 s{r+2}, {n}\ns_mov_b32 s{r+3}, 0x20000")
def prologue():
    STAMP('entry')
    p(f"""s_cmp_ge_u32 s2, 256
    s_cbranch_scc1 L_exit
    s_load_dwordx2 s[{sX}:{sX+1}], s[0:1], 0
    s_load_dwordx2 s[{sW}:{sW+1}], s[0:1], 8
    s_load_dwordx2 s[{sWS}:{sWS+1}], s[0:1], 80
    v_lshrrev_b32 v1, 6, v0
    v_and_b32 v0, 63, v0
    v_readfirstlane_b32 s{sWAVE}, v1
    s_and_b32 s{sG}, s2, 7
    s_lshr_b32 s{sSLOT}, s2, 3
    s_lshr_b32 s{sRQ}, s{sG}, 1
    s_and_b32 s{sHH}, s{sG}, 1
    s_and_b32 s{sRB}, s{sSLOT}, 3
    s_lshr_b32 s{sCT}, s{sSLOT}, 2
    s_lshl_b32 s{sBK}, s{sRQ}, 2
    s_add_u32 s{sBK}, s{sBK}, s{sRB}
    s_cmp_gt_u32 s{sCT}, 2
    s_subb_u32 s{sBK}, s{sBK}, 0
    s_and_b32 s{sBK}, s{sBK}, 15""")
    if CFG['cal']: p(f"s_mov_b32 s{sPROF}, 0")
    if CFG['amp']: p(f"s_mov_b32 s{sPROF+2}, 0")
    if CFG['prof']:
        for i in range(1,10): p(f"s_mov_b32 s{sPROF+2*i}, 0")
    if not CFG['cpe']:
        p(f"""s_cmp_lt_u32 s{sWAVE}, 4
        s_cbranch_scc1 L_comp""")
        return
    A=sT+18; K=NAME+"_kernel"
    n=CFG['cpe']
    reg=[f"({K}+0x400-L_pc0)",f"(L_comp-L_pc0)",f"(L_comp+0x1000-L_pc0)",f"({K}+0x1400-L_pc0)"]
    if CFG['cpv']: reg[CFG['cpv']-1]="(L_comp+0x2000-L_pc0)"
    lit="|".join(f"((({r}>>8)&0xff)<<{8*i})" for i,r in enumerate(reg))
    p(f"""s_cmp_lt_u32 s{sWAVE}, 4
    s_cbranch_scc0 L_help
    s_getpc_b64 s[{A}:{A+1}]
    L_pc0:
    s_lshl_b32 s{A+2}, s{sWAVE}, 3
    s_lshr_b32 s{A+2}, {lit}, s{A+2}
    s_and_b32 s{A+2}, s{A+2}, 0xff
    s_and_b32 s{A+3}, s{sSLOT}, {32//n-1}
    s_lshl_b32 s{A+2}, s{A+2}, 8
    s_mul_i32 s{A+3}, s{A+3}, {n*128}
    s_and_b32 s{A}, s{A}, 0xffffff80
    s_add_u32 s{A+2}, s{A+2}, s{A+3}
    v_lshl_add_u32 v1, v0, 7, s{A+2}
    s_mov_b64 exec, {hex((1<<n)-1)}
    global_load_dwordx2 v[228:229], v1, s[{A}:{A+1}] offset:60""")
    if CFG['cpa']==1: cp_rest(A)
    p("s_mov_b64 exec, -1")
    if CFG['lay'] and CFG['pade']: p(f"""s_cmp_eq_u32 s{sWAVE}, 3
    s_cbranch_scc1 L_padT
    s_cmp_eq_u32 s{sWAVE}, 2
    s_cbranch_scc1 L_padV""")
    p(f"""s_branch L_comp
    L_help:""")
def cp_rest(A):
    p(f"""s_lshl_b32 s{A+2}, s{sSLOT}, 2
    s_add_u32 s{A+2}, s{A+2}, s{sWAVE}
    s_mul_i32 s{A+2}, s{A+2}, {128*CFG['cpn']}
    s_add_u32 s{A+2}, s{A+2}, ({NAME}_kernel+0x2400-L_pc0)&0xffffff00
    s_min_u32 s{A+2}, s{A+2}, (L_exit-L_pc0-{128*CFG['cpn']})&0xffffff80
    s_mov_b64 exec, {(1<<CFG['cpn'])-1}
    v_lshl_add_u32 v1, v0, 7, s{A+2}
    global_load_dwordx2 v[194:195], v1, s[{A}:{A+1}] offset:60""")
def prologue2(comp=0):
    if comp:
        p(f"""s_mov_b32 s{sTAG}, {EPO}
        s_load_dword s{sEP}, s[{sWS}:{sWS+1}], s{sTAG}
        s_load_dwordx2 s[{sWR}:{sWR+1}], s[0:1], 32
        s_load_dwordx2 s[{sOUT}:{sOUT+1}], s[0:1], 64""")
        srd(((sWS,268435456),(sWR,1280),(sOUT,2621440)))
        p(f"""s_mov_b32 s{sLO}, -1
        s_mov_b32 s{sLO+1}, 0
        s_mov_b32 s{sLO+2}, 0xfffff
        s_mov_b32 s{sLO+3}, 0xfffff""")
        return
    if not CFG['epf']: p(f"""s_mov_b32 s{sTAG}, {EPO}
    s_load_dword s{sEP}, s[{sWS}:{sWS+1}], s{sTAG}""")
    p(f"""s_load_dwordx2 s[{sWO}:{sWO+1}], s[0:1], 16
    s_load_dwordx2 s[{sWR}:{sWR+1}], s[0:1], 32
    s_load_dwordx2 s[{sWG}:{sWG+1}], s[0:1], 40
    s_load_dwordx2 s[{sWU}:{sWU+1}], s[0:1], 48
    s_load_dwordx2 s[{sWD}:{sWD+1}], s[0:1], 56
    s_load_dwordx2 s[{sOUT}:{sOUT+1}], s[0:1], 64""")
    srd(((sWS,268435456),(sWO,819200),(sWR,1280),(sWG,1966080),(sWU,1966080),(sWD,1966080),(sOUT,2621440)))
    p(f"""s_mov_b32 s{sLO}, -1
    s_mov_b32 s{sLO+1}, 0
    s_mov_b32 s{sLO+2}, 0xfffff
    s_mov_b32 s{sLO+3}, 0xfffff""")
def moe_role():
    A=sT+20
    if not CFG['mrm']: p(f"s_mov_b32 s{sMI}, s{sSLOT}"); return
    p(f"""s_lshr_b32 s{A}, s{sSLOT}, 3
    s_sub_u32 s{sMI}, s{sSLOT}, s{A}
    s_sub_u32 s{sMI}, s{sMI}, 1
    s_add_u32 s{A}, s{A}, 28
    s_and_b32 s{A+1}, s{sSLOT}, 7
    s_cselect_b32 s{sMI}, s{sMI}, s{A}""")
def mktag():
    p(f"""s_mul_i32 s{sTAG}, s{sEP}, 0x9e3779b1
    s_add_u32 s{sTAG}, s{sTAG}, 0x7f4a7c15
    s_and_b32 s{sTAG}, s{sTAG}, -16""")
def colbyte(dst, lc):
    t=sT+18
    p(f"""s_mul_i32 s{t}, s{lc}, 52
    s_lshr_b32 s{t}, s{t}, 8
    s_add_u32 s{t}, s{t}, s{sHH}
    s_mul_i32 s{t}, s{t}, 640
    s_lshl_b32 s{dst}, s{lc}, 7
    s_add_u32 s{dst}, s{dst}, s{t}""")

def loader():
    CA_=sT+1; CB_=sT+2; CH=sT+3; XO=sT+4; WO_=sT+5; LB=sT+6; A=sT+7; B=sT+8; OFF=sT+9; SEQ=sT+10
    vX=2; vW=6; vt=10
    p(f"""s_sub_u32 s{HW}, s{sWAVE}, 4
    s_lshl_b32 s{A}, s{sCT}, 1
    s_cmp_gt_u32 s{sCT}, 2
    s_subb_u32 s{A}, s{A}, 0
    s_cmp_lg_u32 s{sCT}, 2
    s_addc_u32 s{B}, s{A}, 0""")
    colbyte(CA_,A); colbyte(CB_,B)
    p(f"""v_lshrrev_b32 v{vt}, 3, v0
    v_mul_u32_u24 v{vX}, 1280, v{vt}
    v_lshrrev_b32 v{vt+1}, 4, v0
    v_and_b32 v{vt+2}, 7, v0
    v_xor_b32 v{vt+2}, v{vt+2}, v{vt+1}
    v_lshl_add_u32 v{vX}, v{vt+2}, 4, v{vX}
    v_xor_b32 v{vX+1}, 64, v{vX}
    v_add_u32 v{vX+1}, {10240-1024}, v{vX+1}
    v_add_u32 v{vX+2}, {(1 if CFG['g16'] else 2)*(10240-1024)}, v{vX+CFG['g16']}
    v_add_u32 v{vX+3}, {(3 if CFG['g16'] else 2)*(10240-1024)}, v{vX+1-CFG['g16']}
    v_lshlrev_b32 v{vt+2}, 2, v{vt+1}
    v_and_b32 v{vt+3}, 15, v0
    v_xor_b32 v{vt+2}, v{vt+2}, v{vt+3}
    v_cmp_lt_u32 vcc, 7, v{vt+2}
    v_mov_b32 v{vt+3}, s{CA_}
    v_mov_b32 v{vt+4}, s{CB_}
    v_cndmask_b32 v{vt+3}, v{vt+3}, v{vt+4}, vcc
    v_and_b32 v{vt+2}, 7, v{vt+2}
    v_lshl_add_u32 v{vt+3}, v{vt+2}, 4, v{vt+3}
    v_mul_u32_u24 v{vW}, 3840, v{vt+1}
    v_add_u32 v{vW}, v{vW}, v{vt+3}""")
    for i in range(1,4): p(f"v_add_u32 v{vW+i}, {i*(4*3840-1024)}, v{vW}")
    if CFG['g16']: p(f"v_xor_b32 v{vW+2}, 32, v{vW+2}\nv_xor_b32 v{vW+3}, 32, v{vW+3}")
    ta,tc,tg=CFG['rot']
    pk=lambda t: sum(int(v)<<(4*i) for i,v in enumerate(t))
    p(f"""s_and_b32 s{A}, s{sBK}, 3
    s_lshl_b32 s{A}, s{A}, 2
    s_lshr_b32 s{CH}, {pk(ta)}, s{A}
    s_and_b32 s{CH}, s{CH}, 15
    s_lshl_b32 s{A}, s{sCT}, 2
    s_lshr_b32 s{A}, {hex(pk(tc))}, s{A}
    s_and_b32 s{A}, s{A}, 15
    s_add_u32 s{CH}, s{CH}, s{A}
    s_lshr_b32 s{A}, s{sBK}, 2
    s_lshl_b32 s{A}, s{A}, 1
    s_add_u32 s{A}, s{A}, s{sHH}
    s_lshl_b32 s{A}, s{A}, 2
    s_lshr_b32 s{A}, {hex(pk(tg))}, s{A}
    s_and_b32 s{OFF}, s{A}, 15""")
    seqs=CFG['seqs']
    if seqs:
        n=len(seqs)
        p(f"""s_mul_i32 s{A}, s{CH}, {-(-2048//n)}
        s_lshr_b32 s{A}, s{A}, 11
        s_mul_i32 s{A}, s{A}, {n}
        s_sub_u32 s{CH}, s{CH}, s{A}""")
        for i,q in enumerate(seqs):
            assert sorted(q)==list("0123456789")
            if i: p(f"s_cmp_eq_u32 s{CH}, {i}\ns_cselect_b32 s{SEQ}, {hex(pk(q[:8]))}, s{SEQ}\ns_cselect_b32 s{SEQ+1}, {hex(pk(q[8:]))}, s{SEQ+1}")
            else: p(f"s_mov_b32 s{SEQ}, {hex(pk(q[:8]))}\ns_mov_b32 s{SEQ+1}, {hex(pk(q[8:]))}")
    else:
        p(f"""s_add_u32 s{CH}, s{CH}, s{OFF}
    s_mul_i32 s{A}, s{CH}, 205
    s_lshr_b32 s{A}, s{A}, 11
    s_mul_i32 s{A}, s{A}, 10
    s_sub_u32 s{CH}, s{CH}, s{A}""")
    p(f"""
    s_lshl_b32 s{A}, s{sBK}, 2
    s_add_u32 s{A}, s{A}, s{HW}
    s_mul_i32 s{XO}, s{A}, {32*1280}
    s_mul_i32 s{WO_}, s{HW}, {16*3840}
    s_lshl_b32 s{LB}, s{HW}, 12""")
    CHW=SEQ
    p(f"s_mov_b32 s{CHW}, s{CH}")
    nx=dict(x=0,w=0)
    def issue(order,lim):
        global OPS
        for k in order:
            if k in 'qh':
                ql=p.lab("qth")
                if k=='q': p(f"s_cmp_gt_u32 s{sCT}, 2")
                else: halo_cond(A,B)
                p(f"s_cbranch_scc1 {ql}\ns_waitcnt vmcnt({CFG['qthn']})\n{ql}:")
                continue
            c=nx[k]; nx[k]+=1; assert c<=min(9,lim)
            slot=(c%4)*32768; ch=CH if k=='x' else CHW
            if k=='x': p(f"""s_lshl_b32 s{A}, s{ch}, 7
                s_add_u32 m0, s{LB}, {slot}
                s_add_u32 s{A}, s{A}, s{XO}""")
            else: p(f"""s_mul_i32 s{A}, s{ch}, {64*3840}
                s_add_u32 m0, s{LB}, {slot+16384}
                s_add_u32 s{A}, s{A}, s{WO_}""")
            for i in range(4):
                if c>=5 and ('nol'+k) in CFG['xp']: p(f"s_mov_b64 exec, 1\nbuffer_load_dwordx4 v{vX+i}, {S4(sX)}, s{XO} offen lds\ns_mov_b64 exec, -1"); continue
                if k=='x': p(f"buffer_load_dwordx4 v{vX+i}, {S4(sX)}, s{A} offen offset:{i*1024} {CFG['xpol'] if c<CFG['xnt'] else ''} lds")
                else: p(f"buffer_load_dwordx4 v{vW+i}, {S4(sW)}, s{A} offen offset:{i*1024} {'nt' if c<CFG['wnt'] else CFG['wpol']} lds")
            p(f"""s_add_u32 s{ch}, s{ch}, 1
            s_cmp_eq_u32 s{ch}, 10
            s_cselect_b32 s{ch}, 0, s{ch}""")
            OPS+=[c]*4
    ORD=CFG['ord'].split(',')
    srd(((sX,2621440),(sW,2457600)))
    if CFG['epf']: p(f"s_mov_b32 s{sTAG}, {EPO}")
    p("s_waitcnt lgkmcnt(0)")
    if CFG['epf']: p(f"s_load_dword s{sEP}, s[{sWS}:{sWS+1}], s{sTAG}")
    STAMP('i0')
    def b1():
        STAMP('i1s')
        if CFG['qb1']:
            ql=p.lab("qth"); p(f"s_cmp_gt_u32 s{sCT}, 2\ns_cbranch_scc1 {ql}\ns_waitcnt vmcnt({CFG['qb1']-1})\n{ql}:")
        issue(ORD[1],3)
        STAMP('i1e')
    for c in range(1):
        issue(ORD[0],3); STAMP('i%d'%(c+1))
        if CFG['b1p']==2: b1()
        if c==0:
            prologue2()
            p(f"""v_cmp_lt_u32 vcc, 7, v0
            v_lshlrev_b32 v{vt}, 4, v0
            v_add_u32 v{vt}, {L_FLG}, v{vt}
            v_cndmask_b32 v{vt+2}, 0, -1, vcc
            v_cndmask_b32 v{vt+3}, 0, -1, vcc
            v_cndmask_b32 v{vt+4}, 0, -1, vcc
            v_cndmask_b32 v{vt+5}, 0, -1, vcc
            ds_write_b128 v{vt}, v[{vt+2}:{vt+5}]""")
            early()
    if CFG['b1p']==1: b1()
    p("s_waitcnt lgkmcnt(0)")
    STAMP('epo')
    mktag()
    stats_setup()
    p(f"s_cmp_ge_u32 s{HW}, 2\ns_cbranch_scc1 L_helperB")
    nx0=dict(nx); ops0=list(OPS)
    def steps(hook,isB):
        global OPS
        nx.update(nx0); OPS=list(ops0)
        if CFG['b1p']==0: b1()
        if CFG['hclr']: hclear_setup(isB)
        if CFG['smw'] or CFG['smo']: sm_setup()
        for c in range(8):
            sd=CFG['sdef']
            if c==0 and -1 in sd:
                assert ORD[0][0]=='x'; p(f"s_waitcnt vmcnt({len(OPS)-4})")
                STAMP('x0')
                fill=stats(0)
                for k in range(4):
                    if sd[k]==-1: p(fill[k])
                if max(sd)==-1: stats_red()
            vmwait(c)
            STAMP('d%d'%c)
            p("s_barrier")
            STAMP('ld%d'%c)
            if c==0 and -1 not in sd: fill=stats(0)
            if c==CFG['stg'] and CFG['stb']: stats_get(); hook(100)
            if CFG['hclr']: hclear(c,isB)
            if not isB: hook(200+c)
            if c in CFG['qth']:
                ql=p.lab("qth"); p(f"s_cmp_gt_u32 s{sCT}, 2\ns_cbranch_scc1 {ql}\ns_waitcnt vmcnt({CFG['qthn']})\n{ql}:")
            issue(ORD[2+c],c+3)
            if c==0: p("s_waitcnt lgkmcnt(0)")
            for k in range(4):
                if sd[k]==c: p(fill[k])
            if c==max(0,max(sd)):
                if max(sd)>=0: stats_red()
                stats_pub(); OPS.append('stw')
            if c==CFG['stg'] and not CFG['stb']: stats_get(); hook(100)
            hook(c)
            sm_touch(c,isB)
            if CFG['lay'] and CFG['padk']==2 and c==CFG['pks']:
                p(f"s_cmp_eq_u32 s{HW}, {2*isB}\ns_cbranch_scc1 L_pv{2*isB}\ns_branch L_pv{2*isB+1}\nL_pkb{isB}:")
        assert nx==dict(x=10,w=10)
    return steps
aS=44; dS=64; sacc=60; sone=43; sDBL=sDBG; sSTP=sDBG+1
def stats_setup():
    vt=10
    tc=[int(x) for x in CFG['rot'][1]]
    assert not CFG['seqs'] and sorted(tc+[(tc[2]+1)%10,(tc[2]+2)%10])==list(range(10))
    p(f"""s_lshl_b32 s{sT+16}, s{HW}, 12
    v_bfe_u32 v{vt}, v0, 1, 3
    v_lshrrev_b32 v{vt+1}, 5, v0
    v_lshlrev_b32 v{vt+1}, 2, v{vt+1}
    v_xor_b32 v{vt}, v{vt}, v{vt+1}
    v_lshlrev_b32 v{vt}, 4, v{vt}
    v_and_b32 v{vt+1}, 31, v0
    v_lshl_add_u32 v{vt}, v{vt+1}, 7, v{vt}
    v_add_u32 v{aS}, s{sT+16}, v{vt}
    v_mov_b32 v{sone}, 0x3f803f80
    s_and_b32 s{sSTP}, s{sBK}, 12
    s_add_u32 s{sSTP}, s{sSTP}, s{sBK}
    s_lshl_b32 s{sT+16}, s{sHH}, 2
    s_add_u32 s{sSTP}, s{sSTP}, s{sT+16}
    s_lshl_b32 s{sSTP}, s{sSTP}, 14
    s_lshl_b32 s{sT+16}, s{HW}, 9
    s_add_u32 s{sSTP}, s{sSTP}, s{sT+16}
    s_add_u32 s{sSTP}, s{sSTP}, {STP}
    v_lshrrev_b32 v{vt}, 5, v0
    v_lshlrev_b32 v{vt}, 11, v{vt}
    v_lshl_add_u32 v{aS+4}, v{vt+1}, 4, v{vt}
    s_lshl_b32 s{sT+16}, s{sCT}, 11
    s_cmp_eq_u32 s{sCT}, 2
    s_cselect_b32 s{sT+16}, {STX-STP}, s{sT+16}
    v_lshl_add_u32 v{aS+5}, v{vt+1}, 4, s{sT+16}""")
    for i in range(1,4): p(f"v_xor_b32 v{aS+i}, {16*i}, v{aS}")
    for i in range(4): p(f"v_mov_b32 v{sacc+i}, 0")
    if CFG['smode'] in ('dotx','dotc'):
        for i in range(2*CFG['nacc']): p(f"v_mov_b32 v{102+i}, 0")
def stats(c):
    if 'nostats' in CFG['xp']: return ['s_nop 0']*4
    for i in range(4): p(f"ds_read_b128 {vr(dS+4*i,4)}, v{aS+i} offset:{c*32768}")
    L=[]
    for i in range(4):
        g=f"s_waitcnt lgkmcnt({3-i})"
        for j in range(4):
            r=dS+4*i+j
            u=80+2*(j&1)
            if CFG['smode']=='dotx':
                a=102+2*((4*i+j)%CFG['nacc']); g+=f"\nv_dot2_f32_bf16 v{a}, v{r}, v{sone}, v{a}\nv_dot2_f32_bf16 v{a+1}, v{r}, v{r}, v{a+1}"
            elif CFG['smode']=='dotc':
                a=102+2*((4*i+j)%CFG['nacc']); g+=f"\nv_dot2c_f32_bf16 v{a}, v{r}, v{sone}\nv_dot2c_f32_bf16 v{a+1}, v{r}, v{r}"
            elif CFG['smode']=='dot': g+=f"\nv_dot2_f32_bf16 v{sacc+(j&1)}, v{r}, v{sone}, v{sacc+(j&1)}\nv_dot2_f32_bf16 v{sacc+2+(j&1)}, v{r}, v{r}, v{sacc+2+(j&1)}"
            elif CFG['smode']=='valu': g+=f"\nv_lshlrev_b32 v{u}, 16, v{r}\nv_and_b32 v{u+1}, 0xffff0000, v{r}\nv_add_f32 v{sacc}, v{sacc}, v{u}\nv_fmac_f32 v{sacc+2}, v{u}, v{u}\nv_add_f32 v{sacc+1}, v{sacc+1}, v{u+1}\nv_fmac_f32 v{sacc+3}, v{u+1}, v{u+1}"
            elif CFG['smode']=='pk': g+=f"\nv_lshlrev_b32 v{u}, 16, v{r}\nv_and_b32 v{u+1}, 0xffff0000, v{r}\nv_pk_add_f32 v[{sacc}:{sacc+1}], v[{sacc}:{sacc+1}], v[{u}:{u+1}]\nv_pk_fma_f32 v[{sacc+2}:{sacc+3}], v[{u}:{u+1}], v[{u}:{u+1}], v[{sacc+2}:{sacc+3}]"
        L.append(g)
    return L
def stats_red():
    t=sacc
    p(f"""s_nop 1
    v_add_f32 v{t}, v{t}, v{t+1}
    v_add_f32 v{t+1}, v{t+2}, v{t+3}
    v_mov_b32 v{t+2}, s{sTAG}
    s_nop 0
    v_permlane32_swap_b32 v{t}, v{t+1}
    s_nop 0
    v_add_f32 v{t}, v{t}, v{t+1}
    v_mov_b32 v{t+1}, v{t}
    s_nop 1
    v_permlane32_swap_b32 v{t}, v{t+1}""")
def stats_pub():
    t=sacc
    p(f"""s_mov_b64 exec, s[{sLO}:{sLO+1}]
    buffer_store_dwordx4 {vr(t,4)}, v{aS+5}, {S4(sWS)}, s{sSTP} offen sc1
    s_mov_b64 exec, -1""")
def stats_ld():
    return "\n".join(f"s_add_u32 s{sSTP+1}, s{sSTP}, {4096*i}\nbuffer_load_dwordx4 {vr(dS+4*i,4)}, v{aS+4}, {S4(sWS)}, s{sSTP+1} offen sc1" for i in range(4))
def stats_get():
    p(stats_ld()); OPS.extend(['stp']*4)
def stats_fin(t,B):
    vmwait('stp')
    lp=p.lab("stl"); ok=p.lab("stok"); rt=p.lab("strt")
    p(f"""s_mov_b32 s{B}, {SPIN}
    {lp}:
    v_xor_b32 v{t}, v{dS+2}, v{dS+6}
    v_xor_b32 v{t+1}, v{dS+10}, v{dS+14}
    v_xor_b32 v{t+2}, s{sTAG}, v{dS+2}
    v_xor_b32 v{t+3}, s{sTAG}, v{dS+10}
    v_or3_b32 v{t}, v{t}, v{t+1}, v{t+2}
    v_or_b32 v{t}, v{t}, v{t+3}
    v_cmp_ne_u32 vcc, 0, v{t}
    v_add_f32 v{t+1}, v{dS}, v{dS+4}
    v_add_f32 v{t+2}, v{dS+1}, v{dS+5}
    s_cbranch_vccnz {rt}
    {ok}:""")
    n0=len(p.L)
    p(f"{rt}:"); spin(B,lp,ok,1); p(stats_ld()); p(f"s_waitcnt vmcnt(0)\ns_branch {lp}")
    COLD.append("\n".join(p.L[n0:])); del p.L[n0:]
    if CFG['sf2']==3 and not CFG['sfe']: p("s_barrier")
    p(f"""v_add_f32 v{t+3}, v{dS+8}, v{dS+12}
    v_add_f32 v{t+4}, v{dS+9}, v{dS+13}
    v_add_f32 v{t+1}, v{t+1}, v{t+3}
    v_add_f32 v{t+2}, v{t+2}, v{t+4}
    s_nop 1
    v_permlane32_swap_b32 v{t+1}, v{t+2}
    s_nop 0
    v_add_f32 v{t+1}, v{t+1}, v{t+2}
    v_mul_f32 v{t+1}, {1/640!r}, v{t+1}
    v_mov_b32 v{t+2}, v{t+1}
    s_nop 1
    v_permlane32_swap_b32 v{t+1}, v{t+2}
    s_nop 0
    v_fma_f32 v{t+2}, -v{t+1}, v{t+1}, v{t+2}
    v_max_f32 v{t+2}, 0, v{t+2}""")
    if CFG['sf2']==2 and not CFG['sfe']: p("s_barrier")
    bf16r(t+2,t+2)
    p(f"v_add_f32 v{t+2}, 0x3727c5ac, v{t+2}")
    bf16r(t+2,t+2)
    p(f"""v_sqrt_f32 v{t+2}, v{t+2}
    v_xor_b32 v{t+1}, 0x80000000, v{t+1}""")
    if CFG['sf2']==4 and not CFG['sfe']: p("s_barrier")
    bf16r(t+2,t+2)
    p(f"""v_rcp_f32 v{t+5}, v{t+2}
    v_cvt_pk_bf16_f32 v{t+4}, v{t+1}, v{t+1}
    v_and_b32 v{t+3}, 31, v0
    s_lshl_b32 s{B}, s{HW}, 8
    s_add_u32 s{B}, s{B}, {L_SA}
    v_lshl_add_u32 v{t+1}, v{t+3}, 3, s{B}
    s_lshl_b32 s{B}, s{HW}, 7
    s_add_u32 s{B}, s{B}, {L_SM}
    v_lshl_add_u32 v{t+2}, v{t+3}, 2, s{B}
    {f"v_and_b32 v{t+4}, 0xffff0000, v{t+4}" if CFG['g16'] else ""}
    ds_write_b64 v{t+1}, v[{t+4}:{t+5}]
    ds_write_b32 v{t+2}, v{t+5} offset:{L_SR-L_SM}
    {f"ds_write_b32 v{t+2}, v{t+4}" if CFG['g16'] else ""}""" if CFG['g16'] else f"""v_rcp_f32 v{t+5}, v{t+2}
    v_cvt_pk_bf16_f32 v{t+4}, v{t+1}, v{t+1}
    v_and_b32 v{t+3}, 31, v0
    s_lshl_b32 s{B}, s{HW}, 8
    s_add_u32 s{B}, s{B}, {L_SA}
    v_lshl_add_u32 v{t+1}, v{t+3}, 3, s{B}
    s_lshl_b32 s{B}, s{HW}, 7
    s_add_u32 s{B}, s{B}, {L_SR}
    v_lshl_add_u32 v{t+2}, v{t+3}, 2, s{B}
    ds_write_b64 v{t+1}, v[{t+4}:{t+5}]
    ds_write_b32 v{t+2}, v{t+5}""")
vPT=21; vDUM=39
HS=sT+12; HA=28
def early():
    A=sT+20; B=sT+21; vt=10
    moe_role()
    p(f"""s_lshl_b32 s{A}, s{sSLOT}, 2
    s_add_u32 s{A}, s{A}, s{HW}
    s_mul_i32 s{A}, s{A}, 60
    v_min_u32 v{vt}, 59, v0
    v_add_u32 v{vt}, s{A}, v{vt}
    v_mul_u32_u24 v{vt+1}, 6554, v{vt}
    v_lshrrev_b32 v{vt+1}, 20, v{vt+1}
    v_mul_u32_u24 v{vt+2}, 160, v{vt+1}
    v_sub_u32 v{vt}, v{vt}, v{vt+2}
    v_lshlrev_b32 v{vt}, 7, v{vt}
    v_cmp_gt_u32 vcc, 32, v{vt+1}
    v_and_b32 v{vt+2}, 1, v{vt+1}
    v_mul_u32_u24 v{vt+2}, 20480, v{vt+2}
    v_lshrrev_b32 v{vt+3}, 4, v{vt+1}
    v_mul_u32_u24 v{vt+4}, 10240, v{vt+3}
    s_mul_i32 s{A}, s{sRQ}, 40960
    v_add3_u32 v{vt+2}, v{vt+2}, v{vt}, s{A}
    v_sub_u32 v{vt+2}, v{vt+2}, v{vt+4}
    v_add_u32 v{vt+4}, 163840, v{vt+2}
    v_min_u32 v{vt+2}, v{vt+2}, v{vt+4}
    v_mul_u32_u24 v{vt+3}, {KB}, v{vt+3}
    v_bfe_u32 v{vt+4}, v{vt+1}, 1, 3
    v_mul_u32_u24 v{vt+4}, 163840, v{vt+4}
    v_add3_u32 v{vt+2}, v{vt+2}, v{vt+3}, v{vt+4}
    s_mul_i32 s{A}, s{sRQ}, 20480
    s_sub_u32 s{A}, s{A}, 5120
    v_add_u32 v{vt}, s{A}, v{vt}
    v_add_u32 v{vt+4}, 81920, v{vt}
    v_min_u32 v{vt}, v{vt}, v{vt+4}
    v_and_b32 v{vt+3}, 15, v{vt+1}
    v_mul_u32_u24 v{vt+3}, 81920, v{vt+3}
    s_mov_b32 s{A}, {VB}
    v_add3_u32 v{vt+3}, v{vt+3}, v{vt}, s{A}
    v_cndmask_b32 v{vt+2}, v{vt+3}, v{vt+2}, vcc
    s_mul_i32 s{A}, s{sHH}, {8*163840}
    v_add_u32 v{vPT}, s{A}, v{vt+2}
""")
    if CFG['honly']:
        p(f"""s_lshl_b32 s{A}, s{sSLOT}, 2
        s_add_u32 s{A}, s{A}, s{HW}
        s_mul_i32 s{A}, s{A}, 60
        v_min_u32 v{vt}, 59, v0
        v_add_u32 v{vt}, s{A}, v{vt}
        v_mul_u32_u24 v{vt+2}, 160, v{vt+1}
        v_sub_u32 v{vt}, v{vt}, v{vt+2}
        v_and_b32 v{vt+2}, 1, v{vt+1}
        v_mul_u32_u24 v{vt+2}, 160, v{vt+2}
        v_add_u32 v{vt+2}, v{vt+2}, v{vt}
        v_lshlrev_b32 v{vt}, 1, v{vt}
        v_cndmask_b32 v{vt}, v{vt}, v{vt+2}, vcc
        s_cmp_lt_u32 s{sRQ}, 3
        s_cselect_b32 s{A}, 0, 80
        s_add_u32 s{A}, s{A}, 160
        v_subrev_u32 v{vt}, 80, v{vt}
        v_cmp_le_u32 vcc, s{A}, v{vt}
        v_cmp_lt_u32 s[{A}:{A+1}], 15, v{vt+1}
        v_mov_b32 v{vt+2}, {KH-KB}
        s_and_b64 vcc, vcc, s[{A}:{A+1}]
        s_nop 0
        v_cndmask_b32 v{vt+2}, 0, v{vt+2}, vcc
        v_add_u32 v{vPT}, v{vPT}, v{vt+2}""")
    if CFG['ht']: p(f"""s_lshl_b32 s{A}, s{sSLOT}, 2
    s_add_u32 s{A}, s{A}, s{HW}
    s_mul_i32 s{B}, s{A}, 20
    v_min_u32 v{vt}, 19, v0
    v_add_u32 v{vt}, s{B}, v{vt}
    v_mul_u32_u24 v{vt+1}, 13108, v{vt}
    v_lshrrev_b32 v{vt+1}, 20, v{vt+1}
    v_mul_u32_u24 v{vt+2}, 80, v{vt+1}
    v_sub_u32 v{vt}, v{vt}, v{vt+2}
    v_lshlrev_b32 v{vt}, 7, v{vt}
    v_cmp_gt_u32 vcc, 16, v{vt+1}
    v_and_b32 v{vt+2}, 1, v{vt+1}
    v_mul_u32_u24 v{vt+2}, 10240, v{vt+2}
    v_lshrrev_b32 v{vt+3}, 1, v{vt+1}
    v_mul_u32_u24 v{vt+3}, 163840, v{vt+3}
    s_mul_i32 s{B}, s{sRQ}, 40960
    s_add_u32 s{B}, s{B}, {KH+20480}
    v_add3_u32 v{vt+2}, v{vt+2}, v{vt+3}, s{B}
    v_and_b32 v{vt+3}, 15, v{vt+1}
    v_mul_u32_u24 v{vt+3}, 81920, v{vt+3}
    s_mul_i32 s{B}, s{sRQ}, 20480
    s_add_u32 s{B}, s{B}, {VH+10240}
    v_add_u32 v{vt+3}, s{B}, v{vt+3}
    v_cndmask_b32 v{vt+2}, v{vt+3}, v{vt+2}, vcc
    s_mul_i32 s{B}, s{sHH}, {8*163840}
    v_add3_u32 v{vHT}, v{vt}, v{vt+2}, s{B}
    s_lshl_b32 s{B}, s{sG}, 7
    s_add_u32 s{A}, s{A}, s{B}
    s_lshl_b32 s{A}, s{A}, 7
    s_add_u32 s{A}, s{A}, {FH}
    v_mov_b32 v{vt}, s{A}
    v_cmp_lt_u32 vcc, 19, v0
    s_nop 1
    v_cndmask_b32 v{vHT}, v{vHT}, v{vt}, vcc""")
    nsm=sum(CFG['npf']); per=(100-5*nsm)//2
    if per>0:
        p(f"""s_mul_i32 s{A}, s{sG}, 5
        s_lshr_b32 s{A}, s{A}, 1
        s_mul_i32 s{A}, s{A}, 5
        s_lshr_b32 s{B}, s{HW}, 1
        s_mul_i32 s{B}, s{B}, {per}
        s_add_u32 s{A}, s{A}, s{B}
        s_add_u32 s{A}, s{A}, {5*nsm}
        v_min_u32 v{vt}, {per-1}, v0
        v_add_u32 v{vt}, s{A}, v{vt}
        v_subrev_u32 v{vt+1}, 100, v{vt}
        v_min_u32 v{vt}, v{vt}, v{vt+1}
        s_lshl_b32 s{A}, s{sSLOT}, 1
        s_and_b32 s{B}, s{HW}, 1
        s_add_u32 s{A}, s{A}, s{B}
        s_mul_i32 s{A}, s{A}, 12800
        v_lshl_add_u32 v{vTW}, v{vt}, 7, s{A}""")
    ge=p.lab("mtge"); jn=p.lab("mtj")
    p(f"""v_min_u32 v{vt}, 59, v0
    v_mul_u32_u24 v{vt+1}, 86, v{vt}
    v_lshrrev_b32 v{vt+1}, 8, v{vt+1}
    v_mul_u32_u24 v{vt+1}, {3072-384}, v{vt+1}
    v_lshl_add_u32 v{vt}, v{vt}, 7, v{vt+1}
    s_mul_i32 s{A}, s{sSLOT}, {20*3072}
    s_mul_i32 s{B}, s{sG}, 384
    s_add_u32 s{A}, s{A}, s{B}
    v_add_u32 v{vTM}, s{A}, v{vt}
    s_sub_u32 s{A}, s{sMI}, {0 if CFG['dw3'] else 17}
    s_lshl_b32 s{A}, s{A}, {1 if CFG['dw3'] else 2}
    s_add_u32 s{A}, s{A}, s{HW}
    s_mul_i32 s{A}, s{A}, {24 if CFG['dw3'] else 35 if CFG['dtn'] else 26}
    v_min_u32 v{vt}, {47 if CFG['dw3'] else 63 if CFG['dtn'] else 51}, v0
    v_lshrrev_b32 v{vt+1}, 1, v{vt}
    v_add_u32 v{vt+1}, s{A}, v{vt+1}
    v_min_u32 v{vt+1}, 1535, v{vt+1}
    v_mul_u32_u24 v{vt+1}, 1280, v{vt+1}
    v_and_b32 v{vt}, 1, v{vt}
    v_lshl_add_u32 v{vt}, v{vt}, 7, v{vt+1}
    s_mul_i32 s{B}, s{sG}, 160
    s_and_b32 s{B}, s{B}, -128
    v_add_u32 v{vTD}, s{B}, v{vt}""")
    if CFG['dtn']: p(f"""s_add_u32 s{A}, s{A}, 32
    v_min_u32 v{vt}, 5, v0
    v_lshrrev_b32 v{vt+1}, 1, v{vt}
    v_add_u32 v{vt+1}, s{A}, v{vt+1}
    v_min_u32 v{vt+1}, 1535, v{vt+1}
    v_mul_u32_u24 v{vt+1}, 1280, v{vt+1}
    v_and_b32 v{vt}, 1, v{vt}
    v_lshl_add_u32 v{vt}, v{vt}, 7, v{vt+1}
    v_add_u32 v{vTD2}, s{B}, v{vt}""")
vTD=25; vHT=26; vTD2=27
vTW=22; vTM=24
def touch(va,srd_,pair,pol=''):
    if pair:
        p(f"buffer_load_dword v{vDUM}, v{va}, {S4(srd_)}, 0 offen nt\nbuffer_load_dword v{vDUM}, v{va}, {S4(srd_)}, 0 offen offset:64")
        return 2
    p(f"buffer_load_dword v{vDUM}, v{va}, {S4(srd_)}, 0 offen {pol}")
    return 1
def wtouch(win,isB):
    n=0
    if CFG['wtw']==win and 100-5*sum(CFG['npf'])>0:
        n+=touch(vTW,sWO,CFG['wpair'])
    if CFG['mtw']==win:
        if not isB:
            u=p.lab("tu"); j=p.lab("tj")
            p(f"s_cmp_eq_u32 s{HW}, 0\ns_cbranch_scc0 {u}")
            touch(vTM,sWG,CFG['mpair'])
            p(f"s_branch {j}\n{u}:")
            n+=touch(vTM,sWU,CFG['mpair'])
            p(f"{j}:")
    return n
def qkv_touch():
    if CFG['pt']==99: return
    if CFG['ht']==1: OPS.extend(['pt']*touch(vHT,sWS,0,''))
    OPS.extend(['pt']*touch(vPT,sWS,CFG['qpair'],CFG['tpol']))
    if CFG['ht']==2: OPS.extend(['pt']*touch(vHT,sWS,0,''))
vH=16
OPS=[]
def vmwait(*tags):
    last=max(i for i,t in enumerate(OPS) if t in tags)
    n=len(OPS)-1-last; assert n<64
    p(f"s_waitcnt vmcnt({n})")
HW=sT
def spin(cnt,lp,ok,sleep=0):
    p(f"s_sub_u32 s{cnt}, s{cnt}, 1\ns_cbranch_scc1 {ok}")
    if sleep: p(f"s_sleep {sleep}")
def lds_wait(addr_v,tmp,cnt,cmp,val,sleep=1):
    lp=p.lab("lw"); ok=p.lab("lwok")
    p(f"""s_mov_b32 s{cnt}, {SPIN*4}
    {lp}:
    ds_read_b32 v{tmp}, v{addr_v}
    s_waitcnt lgkmcnt(0)
    v_cmp_{cmp}_u32 vcc, {val}, v{tmp}
    s_nop 0
    s_cbranch_vccz {ok}""")
    spin(cnt,lp,ok,sleep)
    p(f"s_branch {lp}\n{ok}:")
sHL,sHF,sHO,sPH,sHD,sT0=range(sT+1,sT+7)
def att_ids():
    p(f"""s_lshr_b32 s{sHL}, s{sSLOT}, 1
    s_and_b32 s{sHF}, s{sSLOT}, 1
    s_and_b32 s{sHO}, s{sHL}, 1
    s_lshr_b32 s{sPH}, s{sHL}, 1
    s_lshl_b32 s{sHD}, s{sHH}, 3
    s_add_u32 s{sPH}, s{sPH}, s{sHD}
    s_lshl_b32 s{sHD}, s{sHH}, 4
    s_add_u32 s{sHD}, s{sHD}, s{sHL}
    s_lshl_b32 s{sT0}, s{sRQ}, 1
    s_add_u32 s{sT0}, s{sT0}, s{sHF}
    s_lshl_b32 s{sT0}, s{sT0}, 3""")
def flag_addr(vd,vt,withq,A,B,C):
    flag_nib(withq,A,B,C)
    p(f"""v_and_b32 v{vt}, 60, v0
    v_min_u32 v{vt}, 20, v{vt}
    v_bfe_u32 v{vt}, s{A}, v{vt}, 4
    v_and_b32 v{vd}, 3, v0
    v_lshlrev_b32 v{vd}, 2, v{vd}
    v_lshl_add_u32 v{vd}, v{vt}, 7, v{vd}""")
def flag_nib(withq,A,B,C):
    p(f"""s_lshr_b32 s{A}, s{sHL}, 1
    s_mul_i32 s{A}, s{A}, 5
    s_lshl_b32 s{B}, s{sHO}, 1
    s_add_u32 s{A}, s{A}, s{B}
    s_add_u32 s{B}, s{A}, 2
    s_lshr_b32 s{A}, s{A}, 3
    s_lshr_b32 s{B}, s{B}, 3
    s_lshl_b32 s{B}, s{B}, 4
    s_or_b32 s{A}, s{A}, s{B}
    s_add_u32 s{B}, s{A}, 0x55
    s_lshl_b32 s{C}, s{B}, 8
    s_or_b32 s{A}, s{C}, s{A if withq else B}
    s_mul_i32 s{B}, s{sHL}, 20
    s_add_u32 s{C}, s{B}, 19
    s_lshr_b32 s{B}, s{B}, 6
    s_lshr_b32 s{C}, s{C}, 6
    s_lshl_b32 s{C}, s{C}, 4
    s_or_b32 s{B}, s{B}, s{C}
    s_add_u32 s{B}, s{B}, 0xaa
    s_lshl_b32 s{B}, s{B}, 16
    s_or_b32 s{A}, s{A}, s{B}""")
def flag_poll(va,vt,soff,cnt,first=True,sleep=0):
    lp=p.lab("fp"); ok=p.lab("fpok");
    p(f"s_mov_b32 s{cnt}, {SPIN}")
    if not first:
        md=p.lab("fpm"); p(f"s_branch {md}")
    p(f"""{lp}:
    buffer_load_dword v{vt}, v{va}, {S4(sWS)}, s{soff} offen sc1""")
    if not first: p(f"{md}:")
    p(f"""s_waitcnt vmcnt(0)
    v_cmp_ne_u32 vcc, s{sTAG}, v{vt}
    s_nop 0
    s_cbranch_vccz {ok}""")
    spin(cnt,lp,ok,sleep)
    p(f"s_branch {lp}\n{ok}:")
def flag_poll2(va,vt,soff,cnt,n=2,gap=0):
    lp=p.lab("fq"); ok=p.lab("fqok")
    ld=lambda i: f"buffer_load_dword v{vt+i}, v{va}, {S4(sWS)}, s{soff} offen sc1"
    p(f"s_mov_b32 s{cnt}, {SPIN}")
    for i in range(n-1):
        p(ld(i))
        if gap: p(f"s_sleep {gap}")
    p(f"{lp}:")
    for i in range(n):
        p(f"""{ld((i+n-1)%n)}
        s_waitcnt vmcnt({n-1})
        v_cmp_ne_u32 vcc, s{sTAG}, v{vt+i}
        s_nop 0
        s_cbranch_vccz {ok}""")
    spin(cnt,lp,ok)
    p(f"s_branch {lp}\n{ok}:")
def kv_dma(aLin,aTl,sK,sV,sL,A,B,sHO=sHO):
    p(f"""s_mul_i32 s{A}, s{sHO}, 1536
    s_add_u32 s{A}, s{A}, s{sK}
    s_mov_b32 m0, s{sL}
    s_add_u32 s{B}, s{A}, 1536
    buffer_load_dwordx4 v{aLin}, {S4(sWS)}, s{A} offen {CFG['ldp']} lds
    buffer_load_dwordx4 v{aLin}, {S4(sWS)}, s{B} offen offset:1024 {CFG['ldp']} lds
    s_sub_u32 s{A}, s{sK}, 2048
    s_sub_u32 s{B}, s{sV}, 3072
    buffer_load_dwordx4 v{aTl}, {S4(sWS)}, s{A} offen offset:2048 {CFG['ldp']} lds
    buffer_load_dwordx4 v{aLin}, {S4(sWS)}, s{B} offen offset:3072 {CFG['ldp']} lds
    s_add_u32 m0, s{sL}, 4096
    s_add_u32 s{B}, s{sV}, 1024
    buffer_load_dwordx4 v{aLin}, {S4(sWS)}, s{B} offen {CFG['ldp']} lds
    s_mov_b64 exec, s[{sLO}:{sLO+1}]
    buffer_load_dwordx4 v{aLin}, {S4(sWS)}, s{B} offen offset:1024 {CFG['ldp']} lds
    s_mov_b64 exec, -1""")
def kv_addr(aLin,aTl,t):
    p(f"""v_lshlrev_b32 v{aLin}, 4, v0
    v_lshrrev_b32 v{t}, 5, v0
    v_mul_u32_u24 v{t}, {2560-512}, v{t}
    v_add3_u32 v{aTl}, v{aLin}, v{t}, s{sK1024}""")
sK1024=sT+21

def halo_cond(A,B):
    p(f"""s_lshr_b32 s{A}, 0x8ccc, s{sBK}
    s_cmp_gt_u32 s{sCT}, 2
    s_cselect_b32 s{A}, s{A}, 0
    s_and_b32 s{A}, s{A}, 1""")
def halo_flag(vt,A,B,C):
    sk=p.lab("nohalo")
    halo_cond(A,B)
    p(f"""s_cbranch_scc0 {sk}
    s_lshl_b32 s{A}, s{sCT}, 1
    s_add_u32 s{A}, s{A}, s{HW}
    s_sub_u32 s{A}, s{A}, 3
    s_lshl_b32 s{C}, s{sG}, 4
    s_add_u32 s{A}, s{A}, s{C}
    s_lshl_b32 s{A}, s{A}, 2
    s_add_u32 s{A}, s{A}, s{sRB}
    s_lshl_b32 s{A}, s{A}, 8
    s_add_u32 s{A}, s{A}, {FH}
    s_lshl_b32 s{B}, s{HW}, 2
    s_add_u32 s{B}, s{B}, {F_STG-8}
    v_mov_b32 v{vt}, s{B}
    v_lshlrev_b32 v{vt+2}, 7, v0
    v_mov_b32 v{vt+3}, s{sTAG}""")
    lds_wait(vt,vt+1,C,'gt',2,0)
    p(f"""s_mov_b64 exec, 3
    buffer_store_dword v{vt+3}, v{vt+2}, {S4(sWS)}, s{A} offen sc1
    s_mov_b64 exec, -1""")
    STAMP('halo')
    p(f"{sk}:")
def halo_copy(vt,A,B,C,mid):
    sk=p.lab("nohalo"); jn=p.lab("halo_j"); D=168; sD=sT+12; sFH=sT+13
    p(f"s_mov_b32 s{sFH}, 0")
    halo_cond(A,B)
    p(f"""s_cbranch_scc0 {sk}
    s_lshl_b32 s{A}, s{sCT}, 1
    s_add_u32 s{A}, s{A}, s{HW}
    s_sub_u32 s{A}, s{A}, 3
    s_cmp_lt_u32 s{A}, 10
    s_cselect_b32 s{sD}, 1, 0
    s_lshl_b32 s{sD}, 1280, s{sD}
    s_lshl_b32 s{C}, s{sG}, 4
    s_add_u32 s{A}, s{A}, s{C}
    s_lshl_b32 s{A}, s{A}, 2
    s_add_u32 s{A}, s{A}, s{sRB}
    s_lshl_b32 s{A}, s{A}, 8
    s_add_u32 s{sFH}, s{A}, {FH}
    s_lshl_b32 s{B}, s{HW}, 2
    s_add_u32 s{B}, s{B}, {F_STG-8}
    v_mov_b32 v{vt}, s{B}
    s_mul_i32 s{B}, s{HW}, {2*9216}
    s_add_u32 s{B}, s{B}, {L_WO-4*9216}
    v_lshl_add_u32 v{vt+2}, v0, 4, s{B}
    v_mov_b32 v{vt+3}, {F_HR}
    v_mov_b32 v{vt+4}, 1""")
    lds_wait(vt,vt+1,C,'gt',2,0)
    STAMP('hs1')
    for wr in range(2):
        for i in range(9): p(f"ds_read_b128 {vr(D+36*wr+4*i,4)}, v{vt+2} offset:{wr*9216+i*1024}")
        if wr==0: p("s_waitcnt lgkmcnt(6)")
    p(f"v_add_u32 v{vt}, 8, v{vt}")
    lds_wait(vt,vt+1,C,'gt',2,0)
    STAMP('hs2')
    for wr in range(2):
        for i in range(8): p(f"buffer_store_dwordx4 {vr(D+36*wr+4*i,4)}, v{D+36*wr+32+(i&3)}, {S4(sWS)}, {'s%d'%sD if i>>2 else 0} offen sc1")
    p(f"""s_mov_b64 exec, 1
    ds_add_u32 v{vt+3}, v{vt+4}
    s_mov_b64 exec, -1""")
    p(f"{sk}:")
    mid()
    p(f"""s_cmp_eq_u32 s{sFH}, 0
    s_cbranch_scc1 {jn}
    v_mov_b32 v{vt+2}, 0
    v_mov_b32 v{vt+4}, s{sTAG}
    s_waitcnt vmcnt(0)
    s_mov_b64 exec, 1
    buffer_store_dword v{vt+4}, v{vt+2}, {S4(sWS)}, s{sFH} offen sc1
    s_mov_b64 exec, -1""")
    STAMP('halo')
    lds_wait(vt+3,vt+1,C,'gt',2,0)
    p(f"{jn}:")
def own_setup(aF2,vt):
    A=sT+7; B=sT+8; sF,sK,sV,sL=range(sT+12,sT+16)
    flag_addr(aF2,vt,1,A,B,sT+18)
    p(f"""s_lshl_b32 s{sF}, s{sG}, 11
    s_lshl_b32 s{A}, s{sHF}, 4
    s_add_u32 s{sF}, s{sF}, s{A}
    s_add_u32 s{sF}, s{sF}, {FL}
    s_lshl_b32 s{A}, s{HW}, 1
    s_add_u32 s{A}, s{A}, s{sT0}
    s_mul_i32 s{sK}, s{A}, 2560
    s_mul_i32 s{sV}, s{A}, 1280
    s_mul_i32 s{A}, s{sPH}, {64*2560}
    s_add_u32 s{sK}, s{sK}, s{A}
    s_add_u32 s{sK}, s{sK}, {KB}
    s_mul_i32 s{A}, s{sHD}, 81920
    s_add_u32 s{sV}, s{sV}, s{A}
    s_add_u32 s{sV}, s{sV}, {VB}
    s_mul_i32 s{sL}, s{HW}, 5632
    s_add_u32 s{sL}, s{sL}, {L_KV+4*5632}""")
def own_kv(aLin,aTl,aF2,vt,sHO_):
    A=sT+7; B=sT+8; sF,sK,sV,sL=range(sT+12,sT+16); C=sT+18
    p(f"v_mov_b32 v{vt}, {F_FS}\nv_mov_b32 v{vt+1}, 1")
    flag_poll(aF2,vt+2,sF,C)
    p(f"ds_write_b32 v{vt}, v{vt+1}")
    STAMP('hfs')
    kv_dma(aLin,aTl,sK,sV,sL,A,B,sHO_)
    p(f"""s_mov_b64 exec, 1
    v_mov_b32 v{vt}, {F_G1}
    s_waitcnt vmcnt(0)
    ds_add_u32 v{vt}, v{vt+1}
    s_mov_b64 exec, -1""")
    STAMP('hg1')
def helperA(steps):
    A=sT+7; B=sT+8; vt=10
    def hook(c):
        if c==CFG['pt']:
            qkv_touch(); OPS.extend(['pt']*wtouch('w1',0))
        if c==CFG['wts']: OPS.extend(['pt']*touch(vTW,sWO,0))
        if CFG['dcs'] and c==CFG['dcg']:
            p(f"""s_lshl_b32 s{sG_}, s{sG}, 3
            s_add_u32 s{sG_}, s{sG_}, s{sCT}
            s_lshl_b32 s{sG_}, s{sG_}, 1
            s_cmp_lg_u32 s{sCT}, 2
            s_cselect_b32 s{A}, s{HW}, 0
            s_add_u32 s{sG_}, s{sG_}, s{A}
            s_lshl_b32 s{sG_}, s{sG_}, 11
            s_add_u32 s{sG_}, s{sG_}, {CSX}
            v_lshlrev_b32 v{vG+8}, 3, v0
            {csld}"""); OPS.extend(['cs']*4)
    vG=100; sG_=sT+13
    csld="\n".join(f"buffer_load_dwordx2 {vr(vG+2*i,2)}, v{vG+8}, {S4(sWS)}, s{sG_} offen offset:{512*i} sc1" for i in range(4))
    steps(hook,0)
    def cs_fin():
        vmwait('cs')
        lp=p.lab("csl"); ok=p.lab("csok"); rt=p.lab("csrt")
        p(f"""s_mov_b32 s{B}, {SPIN}
        s_lshl_b32 s{A}, s{HW}, 8
        s_add_u32 s{A}, s{A}, {L_CS}
        v_lshl_add_u32 v{vt+3}, v0, 2, s{A}
        {lp}:
        v_xor_b32 v{vt}, v{vG+1}, v{vG+3}
        v_xor_b32 v{vt+1}, v{vG+5}, v{vG+7}
        v_xor_b32 v{vG+1}, s{sTAG}, v{vG+1}
        v_xor_b32 v{vG+5}, s{sTAG}, v{vG+5}
        v_or3_b32 v{vt}, v{vt}, v{vt+1}, v{vG+1}
        v_or_b32 v{vt}, v{vt}, v{vG+5}
        v_cmp_ne_u32 vcc, 0, v{vt}
        v_add_f32 v{vt+1}, v{vG}, v{vG+2}
        v_add_f32 v{vt+2}, v{vG+4}, v{vG+6}
        s_cbranch_vccnz {rt}
        {ok}:
        v_add_f32 v{vt+1}, v{vt+1}, v{vt+2}
        ds_write_b32 v{vt+3}, v{vt+1}""")
        n0=len(p.L)
        p(f"{rt}:"); spin(B,lp,ok,1); p(csld); p(f"s_waitcnt vmcnt(0)\ns_branch {lp}")
        COLD.append("\n".join(p.L[n0:])); del p.L[n0:]
        STAMP('csf')
    for c in (8,9):
        vmwait(c); p("s_barrier"); STAMP('ld%d'%c)
        if c==9: STAMP('hb9')
        if c==8 and CFG['hpr']: p(f"s_setprio {CFG['hpr']}")
        if c==9 and CFG['dcs']==2: cs_fin()
        if c==8 and CFG['sfe']==2: stats_fin(vt,B)
        hook(c)
        if c==8 and CFG['sfe']==1: stats_fin(vt,B)
    if CFG['sf2']==1 or (CFG['sf2'] and CFG['sfe']): p("s_barrier")
    if not CFG['sfe']: stats_fin(vt,B)
    if CFG['dcs']==1: cs_fin()
    STAMP('h10')
    p("s_waitcnt lgkmcnt(0)\ns_barrier" if CFG['sf2'] else "s_waitcnt lgkmcnt(0)\ns_barrier\ns_barrier" if CFG['epi2']>1 else "s_barrier\ns_waitcnt lgkmcnt(0)\ns_barrier")
    STAMP('hE1')
    if CFG['hpr']: p("s_setprio 0")
    if CFG['hsp']&2: p(f"v_mov_b32 v{vt}, {L_MODE}\nds_read_b32 v{vt+1}, v{vt}")
    att_ids()
    if CFG['hsp']&2: p(f"s_waitcnt lgkmcnt(0)\nv_readfirstlane_b32 s{sMODE}, v{vt+1}")
    aLin=6; aTl=7; aF=8; D=40
    p(f"s_mov_b32 s{sK1024}, 1024")
    kv_addr(aLin,aTl,vt)
    flag_addr(aF,vt,0,A,B,sT+17)
    if CFG['hsp']: flag_nib(1,A,B,sT+17); p(f"s_mov_b32 s{sT+21}, s{A}")
    if CFG['hkv']: own_setup(9,vt)
    p(f"v_mov_b32 v{vt+1}, 1")
    sF=sT+9; sK=sT+10; sV=sT+11; sL=sT+16; C=sT+17; sD=sT+12
    dn=p.lab("g2done"); h1=p.lab("rem"); jn=p.lab("remj")
    assert not (CFG['hsent'] or CFG['hkv'])
    p(f"""v_and_b32 v{vt+2}, 4, v{aF}
    v_and_b32 v{aF}, -128, v{aF}
    s_cmp_lg_u32 s{HW}, 0
    s_cbranch_scc1 {h1}
    v_add_u32 v{aF}, v{aF}, v{vt+2}
    s_mul_i32 s{A}, s{sHF}, 24
    s_lshl_b32 s{sF}, s{sG}, 11
    s_add_u32 s{sF}, s{sF}, s{A}
    s_add_u32 s{sF}, s{sF}, {FL}
    {f"s_cmp_eq_u32 s{sT0}, 56" if CFG['honly'] else ""}
    {f"s_cselect_b32 s{B}, 0, {KH-KB}" if CFG['honly'] else f"s_mov_b32 s{B}, 0"}
    s_branch {jn}
    {h1}:
    v_lshlrev_b32 v{aF}, 3, v{aF}
    s_lshl_b32 s{A}, s{sHF}, 2
    s_add_u32 s{A}, s{A}, s{sG}
    s_sub_u32 s{A}, s{A}, 2
    s_and_b32 s{A}, s{A}, 7
    s_lshl_b32 s{sF}, s{A}, 14
    s_mul_i32 s{A}, s{sHF}, -768
    s_add_u32 s{sF}, s{sF}, s{A}
    s_add_u32 s{sF}, s{sF}, {FH+768}
    s_mov_b32 s{B}, {KH-KB}
    {jn}:
    s_lshl_b32 s{A}, s{HW}, 2
    s_sub_u32 s{sK}, -2, s{A}
    s_cmp_eq_u32 s{sHF}, 0
    s_cselect_b32 s{A}, s{sK}, s{A}
    s_mul_i32 s{sD}, s{sHF}, 5120
    s_sub_u32 s{sD}, s{sD}, 2560
    s_add_u32 s{A}, s{A}, s{sT0}
    s_mul_i32 s{sK}, s{A}, 2560
    s_mul_i32 s{sV}, s{A}, 1280
    s_mul_i32 s{A}, s{sPH}, {64*2560}
    s_add_u32 s{sK}, s{sK}, s{A}
    s_add_u32 s{sK}, s{sK}, s{B}
    s_add_u32 s{sK}, s{sK}, {KB}
    s_mul_i32 s{A}, s{sHD}, 81920
    s_add_u32 s{sV}, s{sV}, s{A}
    s_add_u32 s{sV}, s{sV}, s{B}
    s_add_u32 s{sV}, s{sV}, {VB}
    s_mul_i32 s{sL}, s{HW}, {-2*5632}
    s_add_u32 s{sL}, s{sL}, {L_KV+3*5632}""")
    if CFG['hsp']&2:
        sk=p.lab("noown"); sp=p.lab("ownp"); so=p.lab("ownok"); O=[sT+13,sT+14,sT+15,sT+18,sT+19,sT+20]; Rq=[4,8,12,28,40,96]
        halo_cond(A,B)
        p(f"""s_and_b32 s{A}, s{A}, s{HW}
        s_andn2_b32 s{A}, s{A}, s{sMODE}
        s_cbranch_scc0 {sk}
        s_lshl_b32 s{A}, s{sG}, 11
        s_add_u32 s{A}, s{A}, {FL}
        s_lshl_b32 s{B}, s{sHF}, 4
        s_add_u32 s{B}, s{B}, s{A}
        s_add_u32 s{A}, s{A}, 8""")
        for i in range(6): p(f"s_bfe_u32 s{O[i]}, s{sT+21}, {hex((4*i)|(4<<16))}\ns_lshl_b32 s{O[i]}, s{O[i]}, 7\ns_add_u32 s{O[i]}, s{O[i]}, s{B if i<2 else A}")
        assert 'FS' not in CFG['gm']+CFG['gr']
        if CFG['ogate']: p(f"v_mov_b32 v{vt}, {F_FS}"); lds_wait(vt,vt+5,C,'gt',CFG['ogate'],1)
        p(f"v_mov_b32 v{vt}, {F_OWN}\ns_mov_b32 s{C}, {SPIN}\n{sp}:")
        for i in range(6): p(f"s_load_dwordx4 s[{Rq[i]}:{Rq[i]+3}], s[{sWS}:{sWS+1}], s{O[i]} glc")
        p("s_waitcnt lgkmcnt(0)")
        for i in range(6):
            r=Rq[i]
            p(f"s_and_b64 s[{A+1}:{A+2}], s[{r}:{r+1}], s[{r+2}:{r+3}]" if 0 else "")
            p(f"s_xor_b64 s[{r}:{r+1}], s[{r}:{r+1}], s[{r+2}:{r+3}]\ns_xor_b32 s{r+2}, s{r+2}, s{sTAG}\ns_xor_b32 s{r+3}, s{r+3}, s{sTAG}\ns_or_b64 s[{r}:{r+1}], s[{r}:{r+1}], s[{r+2}:{r+3}]")
            if i: p(f"s_or_b64 s[4:5], s[4:5], s[{r}:{r+1}]")
        p(f"""s_cbranch_scc0 {so}
        s_sub_u32 s{C}, s{C}, 1
        {f"s_sleep {CFG['hsl2']}" if CFG['hsl2'] else ""}
        s_cbranch_scc0 {sp}
        {so}:
        ds_write_b32 v{vt}, v{vt+1}""")
        if CFG['prof']: p("s_mov_b64 s[96:97], 0\ns_mov_b64 s[98:99], 0")
        STAMP('own')
        p(f"{sk}:")
    if CFG['lay'] and CFG['padk']==3:
        p(f"s_cmp_eq_u32 s{HW}, 1\ns_cbranch_scc1 L_pv0\nL_pkb0:")
        STAMP('pk')
    p(f"s_cmp_eq_u32 s{sT0}, 0\ns_cbranch_scc1 {dn}")
    def both():
        kv_dma(aLin,aTl,sK,sV,sL,A,B)
        p(f"""s_add_u32 s{sK}, s{sK}, s{sD}
        s_add_u32 s{sK}, s{sK}, s{sD}
        s_add_u32 s{sV}, s{sV}, s{sD}
        s_sub_u32 s{sL}, s{sL}, 5632""")
        if CFG['hs2']:
            sk=p.lab("nob"); lp=p.lab("bp"); ok=p.lab("bpok")
            p(f"""s_cmp_eq_u32 s{HW}, 0
            s_cbranch_scc1 {sk}
            v_mov_b32 v{vt+2}, {F_M+4}""")
            if CFG['hs2p']:
                assert CFG['hsp']&1
                sp=p.lab("sbp")
                for i in range(4): p(f"s_add_u32 s{8+i}, s{8+i}, 128")
                if CFG['hs2p']==1: p(f"s_waitcnt vmcnt(0)\nds_write_b32 v{vt+2}, v{vt+1}")
                p(f"s_mov_b32 s{C}, 256\n{sp}:")
                for i in range(4): p(f"s_load_dword s{4+i}, s[{sWS}:{sWS+1}], s{8+i} glc")
                p("s_waitcnt lgkmcnt(0)")
                for i in range(4): p(f"s_xor_b32 s{4+i}, s{4+i}, s{sTAG}")
                p(f"""s_or_b32 s4, s4, s5
                s_or_b32 s6, s6, s7
                s_or_b32 s4, s4, s6
                s_cbranch_scc0 {ok}
                s_sub_u32 s{C}, s{C}, 1
                {f"s_sleep {CFG['hs2s']}" if CFG['hs2s'] else ""}
                s_cbranch_scc0 {sp}""")
            p(f"""s_mov_b32 s{C}, {SPIN}
            {lp}:
            buffer_load_dword v{vt+5}, v{aF}, {S4(sWS)}, s{sF} offen offset:128 sc1
            s_waitcnt vmcnt(0)
            ds_write_b32 v{vt+2}, v{vt+1}
            v_cmp_ne_u32 vcc, s{sTAG}, v{vt+5}
            s_nop 0
            s_cbranch_vccz {ok}""")
            spin(C,lp,ok,CFG['hs2s'])
            p(f"s_branch {lp}\n{ok}:")
            STAMP('hfb')
            if CFG['hs2p']==2:
                kv_dma(aLin,aTl,sK,sV,sL,A,B)
                p(f"s_waitcnt vmcnt(6)\nds_write_b32 v{vt+2}, v{vt+1}\ns_branch L_hs2j")
            p(f"{sk}:")
        kv_dma(aLin,aTl,sK,sV,sL,A,B)
        if CFG['hs2p']==2: p("L_hs2j:")
    GT=dict(G1=(F_G1,4),FS=(F_FS,1),FS4=(F_FS,4),M=(F_M,1))
    if CFG['gm']!='no' or CFG['gr']!='no':
        g0=p.lab("gate0"); g1=p.lab("gate1")
        p(f"s_cmp_lg_u32 s{HW}, 0\ns_cbranch_scc1 {g0}")
        if CFG['gm']!='no': p(f"v_mov_b32 v{vt}, {GT[CFG['gm']][0]}"); lds_wait(vt,vt+5,C,'gt',GT[CFG['gm']][1],0)
        p(f"s_branch {g1}\n{g0}:")
        if CFG['gr']!='no': p(f"v_mov_b32 v{vt}, {GT[CFG['gr']][0]}"); lds_wait(vt,vt+5,C,'gt',GT[CFG['gr']][1],0)
        p(f"{g1}:")
    if CFG['hsp']&1:
        vp=p.lab("vecp"); sp=p.lab("scp"); so=p.lab("scok")
        p(f"s_cmp_eq_u32 s{HW}, 0\ns_cbranch_scc1 {vp}")
        for i in range(4): p(f"s_bfe_u32 s{8+i}, s{sT+21}, {hex((8+4*i)|(4<<16))}\ns_lshl_b32 s{8+i}, s{8+i}, 10\ns_add_u32 s{8+i}, s{8+i}, s{sF}")
        p(f"s_mov_b32 s{C}, 256\n{sp}:")
        for i in range(4): p(f"s_load_dword s{4+i}, s[{sWS}:{sWS+1}], s{8+i} glc")
        p("s_waitcnt lgkmcnt(0)")
        for i in range(4): p(f"s_xor_b32 s{4+i}, s{4+i}, s{sTAG}")
        p(f"""s_or_b32 s4, s4, s5
        s_or_b32 s6, s6, s7
        s_or_b32 s4, s4, s6
        s_cbranch_scc0 {so}
        s_sub_u32 s{C}, s{C}, 1
        {f"s_sleep {CFG['hsl']}" if CFG['hsl'] else ""}
        s_cbranch_scc0 {sp}
        {vp}:""")
        flag_poll(aF,vt+5,sF,C,sleep=CFG['hsl'])
        p(f"{so}:")
    elif CFG['hpoll']: flag_poll2(aF,vt+5,sF,C,CFG['hpoll'],CFG['hsl'])
    else: flag_poll(aF,vt+5,sF,C,sleep=CFG['hsl'])
    STAMP('hf')
    both()
    if CFG['wpause']: p(f"s_lshl_b32 s{A}, s{HW}, 2\ns_add_u32 s{A}, s{A}, {F_RI-4}\nv_mov_b32 v{vt+2}, s{A}\nds_write_b32 v{vt+2}, v{vt+1}")
    if CFG['mtw'] in ('RI','MI'):
        nt_=p.lab("nori"); d2=p.lab("g2d")
        p(f"s_cmp_eq_u32 s{HW}, {int(CFG['mtw']=='RI')}\ns_cbranch_scc0 {nt_}")
        touch(vTM,sWG,0); touch(vTM,sWU,0)
        p(f"s_waitcnt vmcnt(2)\ns_branch {d2}\n{dn}:\ns_cmp_eq_u32 s{HW}, {int(CFG['mtw']=='RI')}\ns_cbranch_scc0 {d2}")
        touch(vTM,sWG,0); touch(vTM,sWU,0)
        p(f"s_branch {d2}\n{nt_}:"); dn=d2
    p(f"""s_waitcnt vmcnt(0)
    {dn}:
    s_lshl_b32 s{A}, s{HW}, {3 if CFG['hs2'] else 2}
    s_add_u32 s{A}, s{A}, {F_M}
    v_mov_b32 v{vt}, {F_G2}
    v_mov_b32 v{vt+2}, s{A}
    s_mov_b64 exec, 1
    ds_write_b32 v{vt+2}, v{vt+1}
    {f"ds_write_b32 v{vt+2}, v{vt+1} offset:{F_RI-4-F_M}" if CFG['wpause'] else ""}
    ds_add_u32 v{vt}, v{vt+1}
    s_mov_b64 exec, -1""")
    STAMP('g2')
    if CFG['lclr']:
        sk=p.lab("nolc"); na=p.lab("lcna"); lp=p.lab("lcp"); ok=p.lab("lcok"); D=40
        p(f"""s_cmp_lg_u32 s{HW}, 0
        s_cbranch_scc1 {sk}
        v_mov_b32 v{vt}, {F_CC}
        s_lshr_b32 s{A}, s2, 2
        s_lshl_b32 s{A}, s{A}, 5
        s_and_b32 s{B}, s2, 3
        s_add_u32 s{A}, s{A}, s{B}
        s_lshl_b32 s{A}, s{A}, 2
        s_add_u32 s{A}, s{A}, {H2B}
        s_mov_b32 s{B}, {H2B}
        v_mov_b32 v{D+4}, s{sTAG}
        v_mov_b32 v{D+5}, 0
        v_lshlrev_b32 v{D+6}, 7, v0""")
        lds_wait(vt,vt+5,C,'gt',4,1)
        p(f"""s_mov_b64 exec, 1
        buffer_store_dword v{D+4}, v{D+5}, {S4(sWS)}, s{A} offen sc1
        s_mov_b64 exec, -1""")
        STAMP('lc1')
        g=dict(G2=(F_G2,2),D1=(F_DONE,1),WOR=(F_WOR,2),WOD=(F_WOD,2))[CFG['lcg']]
        p(f"""s_cmp_eq_u32 s{sT0}, 0
        s_cselect_b32 s{A}, {F_DONE-L_FLG}, {g[0]-L_FLG}
        s_cselect_b32 s{sD}, 4, {g[1]}
        s_add_u32 s{A}, s{A}, {L_FLG}
        v_mov_b32 v{vt}, s{A}""")
        lds_wait(vt,vt+5,C,'gt',f"s{sD}",2)
        p(f"""s_mov_b32 s{C}, {SPIN}
        {lp}:
        buffer_load_dwordx4 {vr(D,4)}, v{D+6}, {S4(sWS)}, s{B} offen sc1
        s_waitcnt vmcnt(0)
        v_xor_b32 v{D}, v{D}, v{D+1}
        v_xor_b32 v{D+2}, v{D+2}, v{D+3}
        v_xor_b32 v{D+1}, s{sTAG}, v{D+1}
        v_xor_b32 v{D+3}, s{sTAG}, v{D+3}
        v_or3_b32 v{D}, v{D}, v{D+1}, v{D+2}
        v_or_b32 v{D}, v{D}, v{D+3}
        v_cmp_ne_u32 vcc, 0, v{D}
        s_nop 0
        s_cbranch_vccz {ok}""")
        spin(C,lp,ok,CFG['lcs'])
        p(f"""s_branch {lp}
        {ok}:
        v_mov_b32 v{vt}, {F_DONE}
        s_mov_b64 exec, 1
        ds_add_u32 v{vt}, v{vt+1}
        s_mov_b64 exec, -1""")
        STAMP('lc2'); COUNT('nlc',C,SPIN)
        p(f"{sk}:")
    if CFG['mtw']=='sm':
        u=p.lab("smu"); j=p.lab("smj")
        def run(r,n,f):
            for i in range(n):
                if CFG['smx']==2: p(f"s_load_dwordx2 s[100:101], s[{r}:{r+1}], s{A} offset:{f(i)+60}")
                else: p(f"s_load_dword s100, s[{r}:{r+1}], s{A} offset:{f(i)}")
        p(f"""s_mul_i32 s{A}, s{sSLOT}, {20*3072}
        s_mul_i32 s{B}, s{sG}, 384
        s_add_u32 s{A}, s{A}, s{B}
        s_cmp_eq_u32 s{HW}, 0
        s_cbranch_scc0 {u}""")
        run(sWG,60,lambda i:(i//3)*3072+(i%3)*128)
        p(f"s_branch {j}\n{u}:")
        run(sWU,60,lambda i:(i//3)*3072+(i%3)*128)
        p(f"{j}:")
        if CFG['smd']:
            p(f"""s_lshl_b32 s{A}, s{sSLOT}, 1
            s_add_u32 s{A}, s{A}, s{HW}
            s_mul_i32 s{A}, s{A}, {24*1280}
            s_mul_i32 s{B}, s{sG}, 160
            s_and_b32 s{B}, s{B}, -128
            s_add_u32 s{A}, s{A}, s{B}""")
            run(sWD,48,lambda i:(i//2)*1280+(i%2)*128)
        STAMP('mt')
        if CFG['prof'] and any('mt2' in x for x in CFG['st']): p("s_waitcnt lgkmcnt(0)"); STAMP('mt2')
    if 'w3' in (CFG['wtw'],CFG['mtw']):
        fa=dict(G1=(F_G1,4),WOR=(F_WOR,2),WOD=(F_WOD,2),WO2=(F_WO2,2),DONE=(F_DONE,ND),PR=(F_PR,4),LD=(F_LD,1),RL=(F_H2,4))[CFG['mtg']]
        p(f"v_mov_b32 v{vt}, {fa[0]}")
        if CFG['mth']:
            nt_=p.lab("nomt")
            p(f"s_cmp_eq_u32 s{sHF}, 0\ns_cbranch_scc1 {nt_}")
        lds_wait(vt,vt+5,C,'gt',fa[1],1)
        wtouch('w3',0)
        if CFG['mth']:
            p(f"v_subrev_u32 v{vTM}, {20*3072}, v{vTM}")
            if CFG['mth']==2: p("s_waitcnt vmcnt(0)")
            wtouch('w3',0)
            p(f"{nt_}:")
        if CFG['dw3']: touch(vTD,sWD,CFG['mpair'])
        STAMP('mt')
        if CFG['prof'] and any('mt2' in x for x in CFG['st']): p("s_waitcnt vmcnt(0)"); STAMP('mt2')

def tr_addr(a0,t):
    tab=[[0,8],[4,12],[16,36],[20,28],[24,32]]
    pk=[sum((tab[u][rd]//4)<<(4*u) for u in range(5)) for rd in range(2)]
    A=sT+7; B=sT+8
    p(f"""s_mov_b32 s{A}, {pk[0]}
    s_mov_b32 s{B}, {pk[1]}
    v_bfe_u32 v{t}, v0, 2, 2
    v_mul_u32_u24 v{t}, 160, v{t}
    v_and_b32 v{t+1}, 3, v0
    v_mad_u32_u24 v{t}, v{t+1}, 40, v{t}
    v_lshrrev_b32 v{t+1}, 4, v0""")
    for s_ in range(5):
        p(f"""v_add_u32 v{t+2}, {4*s_}, v{t+1}
        v_mul_u32_u24 v{t+4}, 52, v{t+2}
        v_lshrrev_b32 v{t+4}, 8, v{t+4}
        v_mul_u32_u24 v{t+5}, 5, v{t+4}
        v_sub_u32 v{t+2}, v{t+2}, v{t+5}
        v_lshlrev_b32 v{t+2}, 2, v{t+2}
        v_mul_u32_u24 v{t+4}, 10, v{t+4}""")
        for rd in range(2):
            p(f"""v_bfe_u32 v{t+3}, s{(A,B)[rd]}, v{t+2}, 4
            v_add_u32 v{t+3}, v{t+3}, v{t+4}
            v_mul_u32_u24 v{t+3}, 640, v{t+3}
            v_add_u32 v{a0+2*s_+rd}, v{t+3}, v{t}""")
sBLK,sJ=sT+9,sT+10
def wo_ids():
    p(f"""s_lshr_b32 s{sBLK}, s{sSLOT}, 3
    s_lshl_b32 s{sJ}, s{sG}, 2
    s_add_u32 s{sBLK}, s{sBLK}, s{sJ}
    s_and_b32 s{sJ}, s{sSLOT}, 7""")
def clr_ids(A,B,C,D_):
    p(f"""s_lshr_b32 s{C}, s{sSLOT}, 3
    s_lshl_b32 s{B}, s{sG}, 2
    s_add_u32 s{C}, s{C}, s{B}
    s_lshl_b32 s{C}, s{C}, 3
    s_and_b32 s{B}, s{sSLOT}, 7
    s_add_u32 s{D_}, s{C}, s{B}
    s_lshr_b32 s{A}, s{D_}, 1
    s_mul_i32 s{A}, s{A}, 20480
    s_and_b32 s{B}, s{B}, 1
    s_mul_i32 s{B}, s{B}, 5120
    s_add_u32 s{A}, s{A}, s{B}
    s_add_u32 s{A}, s{A}, {OB}
    s_mul_i32 s{B}, s{sHH}, 10240
    s_add_u32 s{C}, s{A}, 10240
    s_add_u32 s{A}, s{A}, s{B}
    s_sub_u32 s{C}, s{C}, s{B}
    s_lshl_b32 s{D_}, s{D_}, 10
    s_add_u32 s{D_}, s{D_}, {PS}""")
def clears(part):
    A=sT+13; B=sT+14; C=sT+15; D_=sT+16; D=12; aL=16
    if part==0:
        clr_ids(A,B,C,D_)
        p(f"v_lshlrev_b32 v{aL}, 4, v0")
        for r in range(4): p(f"v_mov_b32 v{D+r}, -1")
        return
    st4=lambda so,off,sc: f"buffer_store_dwordx4 v[{D}:{D+3}], v{aL}, {S4(sWS)}, s{so} offen offset:{off} {sc}" if not (CFG['noclr']>>(0 if sc!='sc1' else 1))&1 else "s_nop 0"
    w2=p.lab("clw2"); w3=p.lab("clw3"); dn=p.lab("cldn")
    if CFG['hsent']:
        H_=sT+17; nh=p.lab("clnh")
        p(f"""s_cmp_eq_u32 s{sWAVE}, 3
        s_cbranch_scc1 {nh}
        s_lshl_b32 s{B}, s{sWAVE}, 8
        s_add_u32 s{B}, s{B}, s2
        s_sub_u32 s{H_}, s{B}, 384
        s_cselect_b32 s{H_}, s{B}, s{H_}
        s_cselect_b32 s{H_+1}, 3, 2
        s_cselect_b32 s{H_+2}, 0, {VH+10240-KH-20480}
        s_cselect_b32 s{H_+3}, 1, 0
        s_lshr_b32 s{B}, s{H_}, s{H_+1}
        s_lshl_b32 s{H_+1}, s{B}, s{H_+1}
        s_sub_u32 s{H_}, s{H_}, s{H_+1}
        s_mul_i32 s{H_}, s{H_}, 2560
        s_add_u32 s{H_}, s{H_}, s{H_+2}
        s_mul_i32 s{H_+1}, s{B}, 171
        s_lshr_b32 s{H_+1}, s{H_+1}, 9
        s_add_u32 s{B}, s{B}, s{H_+1}
        s_mul_i32 s{B}, s{B}, 20480
        s_lshl_b32 s{B}, s{B}, s{H_+3}
        s_add_u32 s{H_}, s{H_}, s{B}
        s_add_u32 s{H_}, s{H_}, {KH+20480}""")
        for o in (0,1024,1536): p(st4(H_,o,"sc1"))
        p(f"{nh}:")
    p(f"""s_cmp_ge_u32 s{sWAVE}, 2
    s_cbranch_scc1 {w2}
    s_mul_i32 s{B}, s{sWAVE}, 2560
    s_add_u32 s{A}, s{A}, s{B}""")
    for o in (0,1024,1536): p(st4(A,o,CFG['cpol']))
    p(f"""s_branch {dn}
    {w2}:
    s_cmp_eq_u32 s{sWAVE}, 3
    s_cbranch_scc1 {w3}
    s_mul_i32 s{C}, s2, 2560
    s_add_u32 s{C}, s{C}, {CAND}""")
    if 'c' in CFG['ptc']: p(f"v_lshlrev_b32 v228, 7, v0\ns_mov_b64 exec, {0x3ff if 'l' in CFG['ptc'] else 0xfffff}\nbuffer_load_dword v229, v228, {S4(sWS)}, s{C} offen\ns_mov_b64 exec, -1")
    for o in (0,1024,1536): p(st4(C,o,"sc1"))
    p(f"""s_branch {dn}
    {w3}:""")
    if CFG['osent']:
        if 'o' in CFG['ptc']: p(f"v_lshlrev_b32 v228, 7, v0\ns_mov_b32 exec_hi, 0xff\nbuffer_load_dword v229, v228, {S4(sWS)}, s{C} offen\ns_mov_b64 exec, -1")
        for o in range(4): p(st4(C,o*1024,"sc1"))
        p(f"s_add_u32 s{C}, s{C}, 4096"); p(st4(C,0,"sc1"))
    p(f"""s_cmp_ge_u32 s2, 24
    s_cbranch_scc1 {dn}
    s_lshl_b32 s{C}, s2, 10
    s_add_u32 s{C}, s{C}, {ACT}""")
    if 'a' in CFG['ptc']: p(f"v_lshlrev_b32 v228, 7, v0\ns_mov_b64 exec, 0xff\nbuffer_load_dword v229, v228, {S4(sWS)}, s{C} offen\ns_mov_b64 exec, -1")
    p(st4(C,0,"sc1"))
    p(f"{dn}:")
cU=sT+13; vC=84
def hclear_setup(isB):
    A=sT+15; B=sT+16; C=sT+17; D_=sT+18; H_=sT+17
    clr_ids(A,B,C,D_)
    if isB: p(f"""s_mul_i32 s{B}, s2, 2560
        s_add_u32 s{B}, s{B}, {CAND}
        s_add_u32 s{A}, s{C}, 2560
        s_cmp_eq_u32 s{HW}, 2
        s_cselect_b32 s{cU+1}, s{B}, s{A}
        s_mov_b32 s{cU}, s{C}""")
    else: p(f"""s_mul_i32 s{B}, s{HW}, 2560
        s_add_u32 s{cU+1}, s{A}, s{B}""")
    p(f"""s_lshl_b32 s{B}, s{HW}, 8
    s_add_u32 s{B}, s{B}, s2
    s_sub_u32 s{H_}, s{B}, 384
    s_cselect_b32 s{H_}, s{B}, s{H_}
    s_cselect_b32 s{H_+1}, 3, 2
    s_cselect_b32 s{H_+2}, 0, {VH+10240-KH-20480}
    s_cselect_b32 s{H_+3}, 1, 0
    s_lshr_b32 s{B}, s{H_}, s{H_+1}
    s_lshl_b32 s{H_+1}, s{B}, s{H_+1}
    s_sub_u32 s{H_}, s{H_}, s{H_+1}
    s_mul_i32 s{H_}, s{H_}, 2560
    s_add_u32 s{H_}, s{H_}, s{H_+2}
    s_mul_i32 s{H_+1}, s{B}, 171
    s_lshr_b32 s{H_+1}, s{H_+1}, 9
    s_add_u32 s{B}, s{B}, s{H_+1}
    s_mul_i32 s{B}, s{B}, 20480
    s_lshl_b32 s{B}, s{B}, s{H_+3}
    s_add_u32 s{H_}, s{H_}, s{B}
    s_add_u32 s{H_}, s{H_}, {KH+20480}""")
    if isB: p(f"""s_cmp_eq_u32 s{HW}, 2
        s_cselect_b32 s{cU}, s{H_}, s{cU}
        s_cselect_b32 s{cU+3}, 256, s2
        s_lshl_b32 s{cU+2}, s2, 10
        s_cmp_lt_u32 s{cU+3}, 24
        s_cselect_b32 s{H_}, 0, {STX+0x20000-ACT}
        s_add_u32 s{cU+2}, s{cU+2}, s{H_}
        s_add_u32 s{cU+2}, s{cU+2}, {ACT}""")
    else: p(f"""s_mov_b32 s{cU}, s{H_}
        s_getreg_b32 s{A}, hwreg(HW_REG_XCC_ID, 0, 4)
        s_or_b32 s{A}, s{A}, s{sTAG}
        v_mov_b32 v{vC+5}, s{A}
        s_lshl_b32 s{cU+2}, s2, 2
        s_add_u32 s{cU+2}, s{cU+2}, {H1}""")
    p(f"v_lshlrev_b32 v{vC+4}, 4, v0")
    for r in range(4): p(f"v_mov_b32 v{vC+r}, -1")
def hclear(c,isB):
    st=lambda so,off,sc: (p(f"buffer_store_dwordx4 v[{vC}:{vC+3}], v{vC+4}, {S4(sWS)}, s{so} offen offset:{off} {sc}"),OPS.append('clr'))
    ks=[k for k in range(2) if CFG['cst'][k]==c and (CFG['hsent'] or k or isB)]
    pol=lambda k: "sc1" if isB or k==0 else CFG['cpol']
    for k in ks: st(cU+k,0,pol(k)); st(cU+k,1024,pol(k))
    if ks: p(f"s_mov_b64 exec, s[{sLO}:{sLO+1}]")
    for k in ks: st(cU+k,2048,pol(k))
    if ks: p("s_mov_b64 exec, -1")
    if isB and c==CFG['cst'][1]:
        sk=p.lab("noact")
        p(f"s_cmp_lt_u32 s{cU+3}, 24\ns_cselect_b64 exec, -1, 1"); st(cU+2,0,"sc1"); p("s_mov_b64 exec, -1")
    if not isB and c==max(CFG['cst'])+2:
        p(f"s_mov_b64 exec, 1\nbuffer_store_dword v{vC+5}, v{vC+4}, {S4(sWS)}, s{cU+2} offen sc1\ns_mov_b64 exec, -1"); OPS.append('clr')
sSM=sT+11
def sm_setup():
    A=sT+20
    p(f"""s_and_b32 s{A}, s{HW}, 1
    s_lshl_b32 s{sSM}, s{sSLOT}, 1
    s_add_u32 s{A}, s{A}, s{sSM}
    s_mul_i32 s{sSM}, s{A}, {10*3072}
    s_mul_i32 s{A}, s{sG}, 384
    s_add_u32 s{sSM}, s{sSM}, s{A}
    s_lshl_b32 s{A}, s2, 2
    s_add_u32 s{A}, s{A}, s{HW}
    s_mul_i32 s{sSM+1}, s{A}, 800
    s_and_b32 s{sSM+1}, s{sSM+1}, -128""")
def sm_touch(c,isB):
    for opt,n,f in ((CFG['smw'],30,lambda i: f"s_load_dword s100, s[{(sWG,sWU)[isB]}:{(sWG,sWU)[isB]+1}], s{sSM} offset:{(i//3)*3072+(i%3)*128}"),
                    (CFG['smo'],7,lambda i: f"s_load_dword s100, s[{sWO}:{sWO+1}], s{sSM+1} offset:{i*128}")):
        if opt and opt[0]<=c<opt[1]:
            k=opt[1]-opt[0]
            for i in range(n*(c-opt[0])//k,n*(c+1-opt[0])//k): p(f(i))
def code_pf():
    A=sT+18
    p(f"""s_getpc_b64 s[{A}:{A+1}]
    L_pc:
    s_sub_u32 s{A}, s{A}, L_pc-{NAME}_kernel
    s_subb_u32 s{A+1}, s{A+1}, 0
    s_lshl_b32 s{A+2}, s{sSLOT}, 2
    s_add_u32 s{A+2}, s{A+2}, s{sWAVE}
    s_mul_i32 s{A+2}, s{A+2}, 384
    s_min_u32 s{A+2}, s{A+2}, (L_exit-{NAME}_kernel-384)&0xffffff80""")
    for i in range(3): p(f"s_load_dwordx2 s[100:101], s[{A}:{A+1}], s{A+2} offset:{i*128+60}")
def wave_sum(x,t):
    dp="row_mask:0xf bank_mask:0xf"
    for c in ("quad_perm:[1,0,3,2]","quad_perm:[2,3,0,1]","row_half_mirror","row_mirror"):
        p(f"s_nop 1\nv_add_f32_dpp v{x}, v{x}, v{x} {c} {dp}")
    for sw in (16,32):
        p(f"""v_mov_b32 v{t}, v{x}
        s_nop 1
        v_permlane{sw}_swap_b32 v{x}, v{t}
        s_nop 0
        v_add_f32 v{x}, v{x}, v{t}""")
sPF=sT+16
def pf_group(n=5):
    for i in range(n): p(f"s_load_dwordx2 s[100:101], s[{sWO}:{sWO+1}], s{sPF} offset:{i*128+60}")
    p(f"""s_add_u32 s{sPF}, s{sPF}, {n*128}
    s_sub_u32 s{sPF+2}, s{sPF+2}, 1
    s_add_u32 s{sPF+3}, s{sPF+1}, 12800
    s_cmp_eq_u32 s{sPF}, s{sPF+3}
    s_cselect_b32 s{sPF}, s{sPF+1}, s{sPF}""")
def helperB(steps):
    A=sT+7; B=sT+8; vt=2; aD=140; aT=146; aLin=12; D=40; WRr=32
    sO=sT+1; sL=sT+2; sL0=sT+3; sL1=sT+4; C=sT+5
    p("L_helperB:")
    vM=23; x=10; a=sT+16
    clr_ids(a,a+1,a+2,a+3)
    p(f"""s_mul_i32 s{a+1}, s{HW}, 25
    s_sub_u32 s{a+1}, s{a+1}, 50
    v_min_u32 v{x}, 24, v0
    v_add_u32 v{x}, s{a+1}, v{x}
    v_min_u32 v{x}, 48, v{x}
    s_sub_u32 s{a+3}, s{a+3}, {40*128}
    s_and_b32 s{a+1}, s{sSLOT}, 15
    s_lshl_b32 s{a+2}, s{sG}, 4
    s_add_u32 s{a+1}, s{a+1}, s{a+2}
    s_lshl_b32 s{a+1}, s{a+1}, 7
    s_add_u32 s{a+1}, s{a+1}, {FL-48*128}
    v_mov_b32 v{x+1}, s{a}
    v_mov_b32 v{x+2}, s{a+3}
    v_cmp_le_u32 vcc, 40, v{x}
    v_mov_b32 v{x+3}, s{a+1}
    s_mul_i32 s{a+1}, s{sSLOT}, {200*128}
    v_cndmask_b32 v{x+1}, v{x+1}, v{x+2}, vcc
    v_cmp_le_u32 vcc, 48, v{x}
    s_mul_i32 s{a}, s{HW}, {100*128}
    s_add_u32 s{a+1}, s{a+1}, s{a}
    v_cndmask_b32 v{x+1}, v{x+1}, v{x+3}, vcc
    v_lshl_add_u32 v{vM}, v{x}, 7, v{x+1}
    s_sub_u32 s{sPF+1}, s{a+1}, {200*128}
    s_mul_i32 s{sPF}, s{sG}, 5
    s_lshr_b32 s{sPF}, s{sPF}, 1
    s_mul_i32 s{sPF}, s{sPF}, 640
    s_add_u32 s{sPF}, s{sPF}, s{sPF+1}
    s_mov_b32 s{sPF+2}, 20
    v_lshlrev_b32 v{vH+4}, 4, v0
    v_add_u32 v{vH+4}, {H1}, v{vH+4}
    v_mul_u32_u24 v{WRr+5}, 20, v0""")
    aB=130; sK=sT+11; sN=sT+16; sS=sT+17
    def wo_setup():
        va=96
        wo_ids()
        T=[[0,2],[1,3],[4,9],[5,7],[6,8]]
        NIB=[sum((10*((4*s5+g_)//5)+T[(4*s5+g_)%5][rd]-(8*s5+2*g_-2))<<(4*(4*rd+g_)) for rd in range(2) for g_ in range(4)) for s5 in range(5)]
        for i in range(5):
            p(f"""v_add_u32 v{va}, {64*i}, v0
            v_mul_u32_u24 v{va+1}, 6554, v{va}
            v_lshrrev_b32 v{va+1}, 16, v{va+1}
            v_mul_u32_u24 v{va+2}, 10, v{va+1}
            v_sub_u32 v{va}, v{va}, v{va+2}
            v_and_b32 v{aB+5+i}, 28, v{va+1}
            v_and_b32 v{va+2}, 3, v{va+1}
            v_mul_u32_u24 v{va+2}, 1280, v{va+2}
            v_lshl_add_u32 v{va}, v{va}, 4, v{va+2}
            v_bfe_u32 v{va+1}, v{va+1}, 2, 2
            v_mul_u32_u24 v{va+1}, 10240, v{va+1}
            v_add_u32 v{aB+i}, v{va}, v{va+1}""")
            if 0<i<4: p(f"v_subrev_u32 v{aB+i}, {i*1024}, v{aB+i}")
        p(f"""s_lshr_b32 s{A}, s{sSLOT}, 3
        s_mul_i32 s{A}, s{A}, 5
        s_lshr_b32 s{A}, s{A}, 1
        s_add_u32 s{A}, s{A}, s{HW}
        s_sub_u32 s{sK}, s{A}, 2
        v_mov_b32 v{va}, 5120""")
        def woaddr(n):
            p(f"""s_add_u32 s{A}, s{sK}, {2*n}
            s_sub_u32 s{B}, s{A}, 10
            s_cselect_b32 s{A}, s{A}, s{B}
            s_sub_u32 s{B}, s{A}, 5
            s_cselect_b32 s{B}, s{A}, s{B}
            s_mul_i32 s{sS}, s{A}, 40960
            s_sub_u32 s{sS}, s{sS}, 10240
            s_mov_b32 s{sN}, {hex(NIB[0])}""")
            for k in range(1,5): p(f"s_cmp_eq_u32 s{B}, {k}\ns_cselect_b32 s{sN}, {hex(NIB[k])}, s{sN}")
            for i in range(5):
                p(f"""v_bfe_u32 v{va+1}, s{sN}, v{aB+5+i}, 4
                v_mad_u32_u24 v{va+1}, v{va+1}, v{va}, v{aB+i}
                v_add_u32 v{aD+5*n+i}, s{sS}, v{va+1}""")
        for n in range(5): woaddr(n)
    if CFG['wose']==0: wo_setup()
    npf=CFG['npf']
    for _ in range(npf[0]): pf_group()
    def hook(c):
        if c==(100 if CFG['hstep']==CFG['stg'] else CFG['hstep']):
            p(f"buffer_load_dwordx4 v[{vH}:{vH+3}], v{vH+4}, {S4(sWS)}, 0 offen sc1"); OPS.append('h1')
        if c==100:
            p(f"buffer_load_dwordx4 {vr(WRr,4)}, v{WRr+5}, {S4(sWR)}, 0 offen\nbuffer_load_dword v{WRr+4}, v{WRr+5}, {S4(sWR)}, 0 offen offset:16"); OPS.extend(['wr','wr'])
        if c==CFG['pt']:
            qkv_touch()
            OPS.extend(['pt']*wtouch('w1',1))
        if c==CFG['wts']: OPS.extend(['pt']*touch(vTW,sWO,0))
        if c==CFG['pt2']: OPS.extend(['pt']*touch(vM,sWS,CFG['qpair2'],CFG['tpol']))
    steps(hook,1)
    st=dict(n=0)
    def dma(cnt):
        for _ in range(min(cnt,50-st['n'])):
            n=st['n']; i=n%5; k=(n//5)%5
            if n==0 or n==25:
                p(f"""s_xor_b32 s{A}, s{sHH}, {n//25}
                s_mul_i32 s{sO}, s{A}, {320*1280}
                s_mul_i32 s{sL0}, s{A}, 51200
                s_add_u32 s{sL0}, s{sL0}, {L_WO}
                s_mul_i32 s{A}, s{sJ}, 160
                s_add_u32 s{sO}, s{sO}, s{A}""")
            if i==0: p(f"""s_add_u32 s{A}, s{sK}, {2*k}
                s_sub_u32 s{B}, s{A}, 10
                s_cselect_b32 s{A}, s{A}, s{B}
                s_mul_i32 s{sL}, s{A}, 5120
                s_add_u32 s{sL}, s{sL}, s{sL0}
                s_mov_b32 m0, s{sL}
                s_nop 0""")
            if i==4: p(f"s_add_u32 m0, s{sL}, 4096\ns_nop 0")
            p(f"buffer_load_dwordx4 v{aD+5*k+i}, {S4(sWO)}, s{sO} offen offset:{(i&3)*1024} {CFG['wopol']} lds")
            OPS.append('wo%d'%(n//25))
            st['n']+=1
    ne=None
    def hello():
        vmwait('h1')
        nonlocal ne; lp=p.lab("hello"); ok=p.lab("hello_ok"); ne=p.lab("noep")
        p(f"""s_mov_b32 s{A}, {SPIN}
        {lp}:
        v_xor_b32 v{vH}, s{sTAG}, v{vH}
        v_xor_b32 v{vH+1}, s{sTAG}, v{vH+1}
        v_xor_b32 v{vH+2}, s{sTAG}, v{vH+2}
        v_xor_b32 v{vH+3}, s{sTAG}, v{vH+3}
        v_or3_b32 v{vt}, v{vH}, v{vH+1}, v{vH+2}
        v_or_b32 v{vt}, v{vt}, v{vH+3}
        v_cmp_lt_u32 vcc, 15, v{vt}
        s_nop 0
        s_cbranch_vccz {ok}""")
        spin(A,lp,ok,4)
        p(f"""buffer_load_dwordx4 v[{vH}:{vH+3}], v{vH+4}, {S4(sWS)}, 0 offen sc1
        s_waitcnt vmcnt(0)
        s_branch {lp}
        {ok}:
        v_lshl_or_b32 v{vH}, v{vH+1}, 4, v{vH}
        v_lshl_or_b32 v{vH+2}, v{vH+3}, 4, v{vH+2}
        v_lshl_or_b32 v{vH}, v{vH+2}, 8, v{vH}
        v_and_b32 v{vt}, 1, v0
        v_readlane_b32 s{A}, v{vH}, 0
        v_readlane_b32 s{B}, v{vH}, 1
        v_cmp_eq_u32 vcc, 0, v{vt}
        v_mov_b32 v{vt+1}, s{A}
        v_mov_b32 v{vt+2}, s{B}
        v_cndmask_b32 v{vt+1}, v{vt+2}, v{vt+1}, vcc
        v_cmp_ne_u32 vcc, v{vt+1}, v{vH}
        v_mov_b32 v{vt}, {L_MODE}
        s_cmp_lg_u64 vcc, 0
        s_cselect_b32 s{sMODE}, 1, {CFG['force_slow']}
        v_mov_b32 v{vt+1}, s{sMODE}
        ds_write_b32 v{vt}, v{vt+1}""")
    vmwait(8); p("s_barrier")
    if CFG['hpr']: p(f"s_setprio {CFG['hpr']}")
    if CFG['hme']==2: hello()
    if CFG['sfe']==2: stats_fin(96,B)
    hook(8)
    p(f"v_lshlrev_b32 v{aLin}, 4, v0")
    if CFG['hme']==1: hello()
    if CFG['sfe']==1: stats_fin(96,B)
    vmwait(9); p("s_barrier"); STAMP('hb9'); hook(9)
    if CFG['sf2']==1 or (CFG['sf2'] and CFG['sfe']): p("s_barrier")
    if not CFG['sfe']: stats_fin(96,B)
    if not CFG['hme']: hello()
    STAMP('h10')
    p(f"""{"s_waitcnt lgkmcnt(0)" if CFG['epi2']>1 and not CFG['sf2'] else ""}
    {"" if CFG['sf2'] else "s_barrier"}
    s_waitcnt lgkmcnt(0)
    s_barrier""")
    vmw=len(OPS)-1-max(i for i,t in enumerate(OPS) if t=='wr')
    STAMP('hE1')
    if CFG['hpr']: p("s_setprio 0")
    p(f"""v_mov_b32 v{vt}, 0x3f803f80
    v_mov_b32 v{vt+1}, 0
    s_waitcnt vmcnt({vmw})""")
    for k in range(5): p(f"v_dot2_f32_bf16 v{vt+1}, v{WRr+k}, v{vt}, v{vt+1}")
    p("s_nop 0")
    wave_sum(vt+1,vt+2)
    p(f"v_mov_b32 v{vt}, {L_SWS}\nds_write_b32 v{vt}, v{vt+1}")
    if CFG['wose']==1: wo_setup()
    if CFG['hst']: halo_copy(vt,A,B,C,wo_setup if CFG['wose']==2 else (lambda:None))
    else:
        if not CFG['hs2']: halo_flag(vt,A,B,C)
        if CFG['wose']==2: wo_setup()
    p(f"""s_add_u32 s{A}, s2, s{HW}
    s_cmp_lg_u32 s{A}, 2
    s_cbranch_scc1 {ne}
    s_add_u32 s{A}, s{sEP}, 1
    v_mov_b32 v{vt}, {EPO}
    v_mov_b32 v{vt+1}, s{A}
    s_mov_b64 exec, 1
    buffer_store_dword v{vt+1}, v{vt}, {S4(sWS)}, 0 offen sc1
    s_mov_b64 exec, -1
    {ne}:""")
    if CFG['hkv']:
        att_ids()
        p(f"s_mov_b32 s{sK1024}, 1024")
        kv_addr(aLin,13,vt)
        own_setup(14,vt)
        own_kv(aLin,13,14,vt,sHO)
    p(f"v_mov_b32 v{vt}, {F_G1}")
    if CFG['wburst']:
        p(f"""s_lshl_b32 s{B}, s{sSLOT}, 1
        s_add_u32 s{B}, s{B}, s{HW}
        s_sub_u32 s{B}, s{B}, 2
        s_mul_i32 s{B}, s{B}, 12800
        v_lshl_add_u32 v{vTW}, v0, 7, s{B}
        v_min_u32 v{vTW+1}, 35, v0
        v_lshl_add_u32 v{vTW+1}, v{vTW+1}, 7, s{B}
        v_add_u32 v{vTW+1}, 8192, v{vTW+1}""")
        if CFG['wburst']==2: touch(vTW,sWO,0); touch(vTW+1,sWO,0)
    lds_wait(vt,vt+1,A,'gt',4,1)
    if CFG['wburst']==1: touch(vTW,sWO,0); touch(vTW+1,sWO,0)
    wtouch('w3',1)
    if CFG['wog2']:
        p(f"v_mov_b32 v{vt+2}, {F_G2}")
        lds_wait(vt+2,vt+1,A,'gt',2,1)
    STAMP('wo_s')
    del OPS[:]
    thr=CFG['wothr']; gs=CFG['wogs']; thr1=CFG['wothr1']
    def more(n,dyn=False):
        while n>0 and st['n']<50:
            k=min(gs,n)
            if dyn and thr1<thr and st['n']>=thr1:
                sk=p.lab("wog")
                p(f"""ds_read_b32 v{vt+1}, v{vt} offset:{(F_G2 if CFG['wgf']=='G2' else F_M)-F_G1}
                s_waitcnt lgkmcnt(0)
                v_cmp_gt_u32 vcc, {2 if CFG['wgf']=='G2' else 1}, v{vt+1}
                s_nop 0
                s_cbranch_vccz {sk}
                s_waitcnt vmcnt({max(0,thr1-k)})
                {sk}:""")
            if CFG['wpause'] and st['n']==CFG['wpause']:
                p(f"v_mov_b32 v{vt+2}, {F_RI}"); lds_wait(vt+2,vt+1,A,'gt',1,1); STAMP('wo_p')
            if st['n']>=thr: p(f"s_waitcnt vmcnt({max(0,thr-k)})")
            gi=st['n']//gs; a_,b_=CFG['mtr']
            dma(k); n-=k
            if CFG['mtw']=='wo' and a_<=gi<b_:
                l0=60*(gi-a_)//(b_-a_); l1=60*(gi+1-a_)//(b_-a_); msk=((1<<l1)-1)^((1<<l0)-1)
                u=p.lab("tu"); j=p.lab("tj")
                p(f"s_mov_b32 exec_lo, {hex(msk&0xffffffff)}\ns_mov_b32 exec_hi, {hex(msk>>32)}\ns_cmp_eq_u32 s{HW}, 2\ns_cbranch_scc0 {u}")
                touch(vTM,sWG,0); p(f"s_branch {j}\n{u}:"); touch(vTM,sWU,0); p(f"{j}:\ns_mov_b64 exec, -1")
                OPS.append('mt')
    def sig(f):
        p(f"""v_mov_b32 v{vt+2}, {f}
        v_mov_b32 v{vt+3}, 1
        s_mov_b64 exec, 1
        ds_add_u32 v{vt+2}, v{vt+3}
        s_mov_b64 exec, -1""")
    more(25+min(thr,15),True)
    vmwait('wo0')
    sig(F_WOR)
    STAMP('wo_0')
    more(50)
    sig(F_WOD)
    STAMP('wo_1')
    p("s_waitcnt vmcnt(0)")
    sig(F_WO2)
    STAMP('wo')

ACC=64; CS=128; XF=132; WF=148; SEL=164; aX=168; aW=172; aST=174; aSG=178; vT=2
sWR_,sWC,sLC,sTY,sSO,sHALO,sFO,sSO2=range(sT,sT+8)
def gemm_setup():
    t=vT; A=sT+10; B=sT+11
    wave_ids(sWAVE,sWR_,sWC,sLC,sTY)
    if CFG['g16']:
        p(f"""v_and_b32 v{t}, 15, v0
        v_and_b32 v{t+1}, 8, v0
        s_cmp_eq_u32 s{sTY}, 2
        s_cselect_b32 s{A}, 1, 0
        v_mul_u32_u24 v{t+1}, s{A}, v{t+1}
        s_lshl_b32 s{A}, s{sWR_}, 6
        v_add3_u32 v{t+1}, v{t+1}, v{t}, s{A}
        v_lshlrev_b32 v{t+1}, 7, v{t+1}
        v_lshrrev_b32 v{t+2}, 4, v0
        v_lshrrev_b32 v{t+3}, 1, v{t}
        v_xor_b32 v{t+3}, v{t+3}, v{t+2}
        v_lshl_add_u32 v{aX}, v{t+3}, 4, v{t+1}
        v_xor_b32 v{aX+1}, 64, v{aX}
        v_bfe_u32 v{t+3}, v0, 2, 2
        v_lshl_add_u32 v{t+4}, v{t+2}, 3, v{t+3}
        v_lshlrev_b32 v{t+4}, 8, v{t+4}
        v_xor_b32 v{t+3}, s{sWAVE}, v{t+3}
        v_lshl_add_u32 v{t+4}, v{t+3}, 6, v{t+4}
        v_bfe_u32 v{t+3}, v0, 4, 1
        v_lshl_add_u32 v{t+4}, v{t+3}, 5, v{t+4}
        v_and_b32 v{t+5}, 3, v0
        v_lshl_add_u32 v{t+4}, v{t+5}, 3, v{t+4}
        v_add_u32 v{aW6}, 16384, v{t+4}
        v_xor_b32 v{aW6+1}, 32, v{aW6}
        v_xor_b32 v{aW6+2}, 64, v{aW6}
        v_xor_b32 v{aW6+3}, 96, v{aW6}""")
        for r in range(4): p(f"v_mov_b32 v{SEL+r}, 0x3f803f80\nv_mov_b32 v{CS2+r}, 0")
    else:
        p(f"""v_and_b32 v{t}, 31, v0
        s_lshl_b32 s{A}, s{sWR_}, 6
        v_add_u32 v{t+1}, s{A}, v{t}
        v_lshlrev_b32 v{t+1}, 7, v{t+1}
        v_lshrrev_b32 v{t+2}, 5, v0
        v_bfe_u32 v{t+3}, v0, 1, 3
        v_xor_b32 v{t+3}, v{t+3}, v{t+2}
        v_lshl_add_u32 v{aX}, v{t+3}, 4, v{t+1}""")
        for s in range(1,4): p(f"v_xor_b32 v{aX+s}, {32*s}, v{aX}")
        p(f"""v_bfe_u32 v{t+3}, v0, 2, 2
        v_lshl_add_u32 v{t+4}, v{t+2}, 3, v{t+3}
        v_lshlrev_b32 v{t+4}, 8, v{t+4}
        s_lshl_b32 s{A}, s{sWC}, 1
        s_or_b32 s{A}, s{A}, s{sWR_}
        v_xor_b32 v{t+3}, s{A}, v{t+3}
        v_lshl_add_u32 v{t+4}, v{t+3}, 6, v{t+4}
        v_bfe_u32 v{t+3}, v0, 4, 1
        v_lshl_add_u32 v{t+4}, v{t+3}, 5, v{t+4}
        v_and_b32 v{t+5}, 3, v0
        v_lshl_add_u32 v{t+4}, v{t+5}, 3, v{t+4}
        v_add_u32 v{aW}, 16384, v{t+4}
        v_xor_b32 v{aW+1}, 64, v{aW}
        v_bfe_u32 v{t+4}, v0, 2, 1
        v_cmp_eq_u32 vcc, v{t+3}, v{t+4}
        v_mov_b32 v{t+5}, 0x3f803f80
        s_nop 0
        v_cndmask_b32 v{SEL}, 0, v{t+5}, vcc
        v_cndmask_b32 v{SEL+1}, 0, v{t+5}, vcc
        v_cndmask_b32 v{SEL+2}, 0, v{t+5}, vcc
        v_cndmask_b32 v{SEL+3}, 0, v{t+5}, vcc""")
    for r in list(range(ACC,ACC+64))+list(range(CS,CS+4)): p(f"v_mov_b32 v{r}, 0")
    store_addr(sWR_,sLC,sTY,sSO,sSO2,sHALO,sFO,aST,sT+10,sT+11)
    p(f"s_mov_b32 s{sHAL2}, s{sHALO}")
    if CFG['dcs']:
        ta,tc,tg=[[int(x) for x in r] for r in CFG['rot']]
        assert ta==[0,0,5,5] and all((tg[g-2]-tg[g])%10==(9 if g>=2 else 3) for g in range(8))
        tb={'q':((0,0,5,5),((0,3),(3,2),(0,3),(3,2))),'lo':((0,0,5,8),((0,3),(3,2),(0,3),(0,2))),'hi':((0,0,5,4),((0,2),(2,2),(2,3),(0,3)))}
        for st_,fn in tb.values(): assert sorted((st_[r]+fn[r][0]+k)%10 for r in range(4) for k in range(fn[r][1]))==list(range(10))
        nb=lambda k: sum((f|(n-2)<<3)<<(4*r) for r,(f,n) in enumerate(tb[k][1]))
        mk=lambda n: ((2<<n)-1)|((2<<n)-2)<<10|((1<<n)-1)<<20
        p(f"""s_cmp_lt_u32 s{sG}, 2
        s_movk_i32 s{A}, {nb('hi')}
        s_cselect_b32 s{A}, {nb('lo')}, s{A}
        s_cmp_gt_u32 s{sCT}, 2
        s_cselect_b32 s{A}, s{A}, {nb('q')}
        s_and_b32 s{B}, s{sBK}, 3
        s_lshl_b32 s{B}, s{B}, 2
        s_lshr_b32 s{A}, s{A}, s{B}
        s_bitcmp1_b32 s{A}, 3
        s_mov_b32 s{sCSM}, {mk(2)}
        s_cselect_b32 s{sCSM}, {mk(3)}, s{sCSM}
        s_and_b32 s{A}, s{A}, 7
        s_lshl_b32 s{sCSM}, s{sCSM}, s{A}
        s_lshl_b32 s{A}, s{sG}, 3
        s_add_u32 s{A}, s{A}, s{sCT}
        s_lshl_b32 s{A}, s{A}, 1
        s_add_u32 s{A}, s{A}, s{sWC}
        s_lshl_b32 s{A}, s{A}, 2
        s_add_u32 s{A}, s{A}, s{sRB}
        s_lshl_b32 s{A}, s{A}, 1
        s_add_u32 s{A}, s{A}, s{sWR_}
        s_lshl_b32 s{A}, s{A}, 8
        s_add_u32 s{sCSO}, s{A}, {CSX}
        v_lshlrev_b32 v{aCP}, 3, v0""")
    if CFG['hs2']:
        p(f"""s_xor_b32 s{A}, s{sWR_}, s{sRB}
        s_and_b32 s{A}, s{A}, 1
        s_lshl_b32 s{sHAL2}, s{sHALO}, s{A}
        s_lshl_b32 s{B}, s{sG}, 4
        s_add_u32 s{B}, s{B}, s{sLC}
        s_lshl_b32 s{B}, s{B}, 2
        s_add_u32 s{B}, s{B}, s{sRB}
        s_lshl_b32 s{B}, s{B}, 1
        s_add_u32 s{B}, s{B}, s{A}
        s_lshl_b32 s{B}, s{B}, 7
        s_add_u32 s{sHFA}, s{B}, {FH}""")
    if CFG['hst']: p(f"""s_mul_i32 s{A}, s{sWAVE}, 9216
        s_add_u32 s{A}, s{A}, {L_WO}
        v_lshl_add_u32 v{aSG}, v0, 4, s{A}""")
sHAL2=sDBG; sHFA=25; vHF=190; sCSM=26; sCSO=27; aCP=179; sCSI=37; sM16=4; aW6=170; CS2=44; XF6=(132,12); WF6=(148,28)
def wave_ids(wave,wr,wc,lc,ty):
    p(f"""s_and_b32 s{wr}, s{wave}, 1
    s_lshr_b32 s{wc}, s{wave}, 1
    s_lshl_b32 s{lc}, s{sCT}, 1
    s_add_u32 s{lc}, s{lc}, s{wc}
    s_cmp_eq_u32 s{lc}, 5
    s_cselect_b32 s{lc}, 15, s{lc}
    s_cmp_gt_u32 s{sCT}, 2
    s_subb_u32 s{lc}, s{lc}, 0
    s_mul_i32 s{ty}, s{lc}, 52
    s_lshr_b32 s{ty}, s{ty}, 8""")
def store_addr(wr,lc,ty,so,so2,halo,fo,ast,A,B,t=2):
    p(f"""v_and_b32 v{t}, 31, v0
    v_lshrrev_b32 v{t+2}, 5, v0
    s_mul_i32 s{A}, s{ty}, 5
    s_sub_u32 s{A}, s{lc}, s{A}
    s_mul_i32 s{B}, s{sHH}, 5
    s_add_u32 s{A}, s{A}, s{B}
    s_lshl_b32 s{B}, s{sBK}, 1
    s_add_u32 s{B}, s{B}, s{wr}
    s_lshl_b32 s{B}, s{B}, 1""")
    isv=p.lab("isv"); jn=p.lab("stj")
    p(f"""s_cmp_ge_u32 s{ty}, 2
    s_cbranch_scc1 {isv}
    s_mul_i32 s{so}, s{B}, 2560
    s_mul_i32 s{B}, s{ty}, {KB}
    s_add_u32 s{so}, s{so}, s{B}
    s_add_u32 s{so2}, s{so}, 2560
    s_lshl_b32 s{A}, s{A}, 3""")
    for cb in range(2):
        for ip in range(2):
            p(f"""s_xor_b32 s{B}, s{wr}, {cb}
            s_lshl_b32 s{B}, s{B}, 2
            s_add_u32 s{B}, s{B}, s{A}
            s_add_u32 s{B}, s{B}, {2*ip}
            v_add_u32 v{t+3}, s{B}, v{t+2}
            v_mul_u32_u24 v{t+4}, 205, v{t+3}
            v_lshrrev_b32 v{t+4}, 10, v{t+4}
            v_mul_u32_u24 v{t+5}, 5, v{t+4}
            v_sub_u32 v{t+5}, v{t+3}, v{t+5}
            v_mul_u32_u24 v{t+4}, {64*2560}, v{t+4}
            v_lshl_add_u32 v{t+4}, v{t+5}, 9, v{t+4}
            v_lshl_add_u32 v{ast+2*cb+ip}, v{t}, 4, v{t+4}""")
    p(f"""s_branch {jn}
    {isv}:
    s_mul_i32 s{so}, s{B}, 1280
    s_add_u32 s{so}, s{so}, {VB}
    s_add_u32 s{so2}, s{so}, 1280
    s_lshl_b32 s{A}, s{A}, 6""")
    if CFG['g16']:
        p(f"""v_and_b32 v{t}, 15, v0
        v_bfe_u32 v{t+1}, v0, 4, 1
        v_lshl_add_u32 v{t+2}, v{t+2}, 1, v{t+1}
        v_mul_u32_u24 v{t+2}, 320, v{t+2}""")
        for j in range(4):
            p(f"""s_xor_b32 s{B}, s{wr}, {j>>1}
            s_lshl_b32 s{B}, s{B}, 5
            s_add_u32 s{B}, s{B}, s{A}
            s_add_u32 s{B}, s{B}, {16*(j&1)}
            v_add_u32 v{t+3}, s{B}, v{t}
            v_mul_u32_u24 v{t+4}, 3277, v{t+3}
            v_lshrrev_b32 v{t+4}, 16, v{t+4}
            v_mul_u32_u24 v{t+5}, 20, v{t+4}
            v_sub_u32 v{t+5}, v{t+3}, v{t+5}
            v_mul_u32_u24 v{t+4}, 81920, v{t+4}
            v_lshl_add_u32 v{t+4}, v{t+5}, 4, v{t+4}
            v_add_u32 v{ast+j}, v{t+4}, v{t+2}""")
    for cb in range(0 if CFG['g16'] else 2):
        p(f"""s_xor_b32 s{B}, s{wr}, {cb}
        s_lshl_b32 s{B}, s{B}, 5
        s_add_u32 s{B}, s{B}, s{A}
        v_add_u32 v{t+3}, s{B}, v{t}
        v_mul_u32_u24 v{t+4}, 3277, v{t+3}
        v_lshrrev_b32 v{t+4}, 16, v{t+4}
        v_mul_u32_u24 v{t+5}, 20, v{t+4}
        v_sub_u32 v{t+5}, v{t+3}, v{t+5}
        v_mul_u32_u24 v{t+4}, 81920, v{t+4}
        v_lshl_add_u32 v{t+4}, v{t+5}, 4, v{t+4}
        v_mul_u32_u24 v{t+5}, 320, v{t+2}
        v_add_u32 v{ast+2*cb}, v{t+4}, v{t+5}
        v_add_u32 v{ast+2*cb+1}, 640, v{ast+2*cb}""")
    p(f"{jn}:")
    halo_cond(halo,A)
    if CFG['honly']: p(f"s_mul_i32 s{A}, s{halo}, {KH-KB}\ns_add_u32 s{so}, s{so}, s{A}\ns_add_u32 s{so2}, s{so2}, s{A}")
    p(f"""s_lshl_b32 s{fo}, s{sG}, 4
    s_add_u32 s{fo}, s{fo}, s{lc}
    s_lshl_b32 s{fo}, s{fo}, 5
    s_lshl_b32 s{A}, s{sRB}, 1
    s_add_u32 s{A}, s{A}, s{wr}
    s_add_u32 s{fo}, s{fo}, s{A}
    s_lshl_b32 s{fo}, s{fo}, 2
    s_add_u32 s{fo}, s{fo}, {FL}""")
def xf(buf,xb): return XF+8*buf+4*xb
def wf(buf,cb): return WF+8*buf+4*cb
def reads(kind,buf,par,s):
    L=[]
    for xb in range(2): L.append(f"ds_read_b128 {vr(xf(buf,xb),4)}, v{aX+s} offset:{par*32768+xb*4096}")
    if kind!='S':
        for cb in range(2):
            for rd in range(2): L.append(f"ds_read_b64_tr_b16 {vr(wf(buf,cb)+2*rd,2)}, v{aW+cb} offset:{par*32768+s*4096+rd*1024}")
        L=[L[2],L[3],L[0],L[1],L[4],L[5]]
    return L
def mfmas(kind,buf):
    L=[]
    if kind=='S':
        for xb in range(2):
            x=xf(buf,xb)
            L.append(f"v_mfma_f32_16x16x32_bf16 {vr(ACC+4*xb,4)}, {vr(SEL,4)}, {vr(x,4)}, {vr(ACC+4*xb,4)}")
            L.append(f"v_mfma_f32_4x4x4_16b_bf16 {vr(ACC+8+8*xb,4)}, {vr(x,2)}, {vr(x,2)}, {vr(ACC+8+8*xb,4)}")
            L.append(f"v_mfma_f32_4x4x4_16b_bf16 {vr(ACC+12+8*xb,4)}, {vr(x+2,2)}, {vr(x+2,2)}, {vr(ACC+12+8*xb,4)}")
        return L
    for cb in range(2):
        for xb in range(2):
            a=ACC+16*(2*xb+cb); X=vr(xf(buf,xb),4); W=vr(wf(buf,cb),4)
            if 'm16' in CFG['xp']:
                a+=8*buf
                L.append("\n".join(f"v_mfma_f32_16x16x32_bf16 {vr(a+4*i,4)}, {W if kind=='T' else X}, {vr(xf(buf,xb^i),4) if kind=='T' else vr(wf(buf,cb^i),4)}, {vr(a+4*i,4)}" for i in range(2)))
                continue
            L.append(f"v_mfma_f32_32x32x16_bf16 {vr(a,16)}, {W if kind=='T' else X}, {X if kind=='T' else W}, {vr(a,16)}")
    if 'nocs' in CFG['xp']: return L
    cs=f"v_mfma_f32_16x16x32_bf16 {vr(CS,4)}, {vr(SEL,4)}, {vr(wf(buf,0),4)}, {vr(CS,4)}"
    if not CFG['dcs']: L.insert(2,cs)
    return L
CF_=48
def cs_gate(kind,par):
    p(f"""s_bitcmp1_b32 s{sCSM}, 0
    s_movk_i32 s{sCSI}, {par*32768-65536*par}
    s_cbranch_scc1 L_csb{kind}
    L_csr{kind}{par}:
    s_lshr_b32 s{sCSM}, s{sCSM}, 1""")
def cs_block(kind):
    assert CFG['g16']; K=kind
    p(f"L_csb{K}:\ns_bitcmp0_b32 s{sCSM}, 10\ns_cbranch_scc1 L_csrd{K}\ns_waitcnt lgkmcnt(12)")
    for k in range(4):
        c=(CS,CS2)[k&1]
        p(f"v_mfma_f32_16x16x32_bf16 {vr(c,4)}, {vr(SEL,4)}, {vr(CF_+4*k,4)}, {vr(c,4)}")
    p(f"""s_bitcmp1_b32 s{sCSM}, 20
    s_cbranch_scc1 L_csrd{K}
    s_mov_b32 vcc_lo, 0xffff0000
    s_mov_b32 vcc_hi, 0xffff0000
    v_mov_b32 v{CF_+1}, s{sTAG}
    s_nop 7
    v_cndmask_b32 v{CF_}, v{CS}, v{CS2}, vcc
    s_mov_b64 exec, s[{sLO}:{sLO+1}]
    buffer_store_dwordx2 {vr(CF_,2)}, v{aCP}, {S4(sWS)}, s{sCSO} offen sc1
    s_mov_b64 exec, -1
    s_branch L_csx{K}
    L_csrd{K}:
    s_and_b32 s{sCSI+1}, s{sCSI}, 32768
    v_add_u32 v{aCP-1}, s{sCSI+1}, v{aW6}
    v_add_u32 v{aCP+1}, s{sCSI+1}, v{aW6+1}""")
    for k in range(4):
        for rd in range(2): p(f"ds_read_b64_tr_b16 {vr(CF_+4*k+2*rd,2)}, v{aCP+1 if k&1 else aCP-1} offset:{(k>>1)*8192+rd*1024}")
    p(f"""L_csx{K}:
    s_cmp_eq_u32 s{sCSI}, 0
    s_cbranch_scc1 L_csr{K}0
    s_branch L_csr{K}1""")
def reads6(kind,buf,par,s):
    X=[f"ds_read_b128 {vr(XF6[buf]+4*tt,4)}, v{aX+((tt&1)^s)} offset:{par*32768+(tt>>1)*4096+(tt&1)*(2048 if kind=='T' else 1024)}" for tt in range(4)]
    W=[[f"ds_read_b64_tr_b16 {vr(WF6[buf]+4*j+2*rd,2)}, v{aW6+j} offset:{par*32768+s*8192+rd*1024}" for rd in range(2)] for j in range(4)]
    return W[0]+X[:2]+W[1]+X[2:]+W[2]+W[3]
acc6=lambda tt,j: ACC+16*(2*(tt>>1)+(j>>1))+8*(j&1)+4*(tt&1)
def mfmas6(kind,buf):
    L=[]
    for j in range(4):
        for tt in range(4):
            a=vr(acc6(tt,j),4); X=vr(XF6[buf]+4*tt,4); W=vr(WF6[buf]+4*j,4)
            L.append(f"v_mfma_f32_16x16x32_bf16 {a}, {W if kind=='T' else X}, {X if kind=='T' else W}, {a}")
    if not CFG['dcs'] and 'nocs' not in CFG['xp']:
        for h,i in enumerate(CFG['g16c']): c=vr((CS,CS2)[h],4); L.insert(i,f"v_mfma_f32_16x16x32_bf16 {c}, {vr(SEL,4)}, {vr(WF6[buf]+4*h,4)}, {c}")
    return L
def gemm_loop(kind):
    CNT=sT+10
    lp=p.lab("g"+kind)
    STAMP('rdy')
    p("s_barrier")
    STAMP('b0')
    for r in (reads6 if CFG['g16'] else reads)(kind,0,0,0): p(r)
    if CFG['clr']==1 and not CFG['hclr']: clears(1)
    cl_=p.lab("clr"); cr_=p.lab("clrr")
    if CFG['clr']>1:
        n0=len(p.L); p(f"{cl_}:"); clears(1); p(f"s_branch {cr_}")
        COLD.append("\n".join(p.L[n0:])); del p.L[n0:]
    hl=p.lab("hello"); hr=p.lab("hellor")
    if not CFG['hclr']:
        COLD.append(f"""{hl}:
        s_getreg_b32 s{CNT+1}, hwreg(HW_REG_XCC_ID, 0, 4)
        s_or_b32 s{CNT+1}, s{CNT+1}, s{sTAG}
        v_mov_b32 v{vT}, s{CNT+1}
        s_lshl_b32 s{CNT+1}, s2, 2
        s_add_u32 s{CNT+1}, s{CNT+1}, {H1}
        v_mov_b32 v{vT+1}, 0
        s_mov_b64 exec, 1
        buffer_store_dword v{vT}, v{vT+1}, {S4(sWS)}, s{CNT+1} offen sc1
        s_mov_b64 exec, -1
        s_branch {hr}""")
        p(f"s_lshl_b32 s{CNT+2}, s{sWAVE}, 3\ns_add_u32 s{CNT+2}, s{CNT+2}, {5-CFG['clr']}")
    p(f"s_mov_b32 s{CNT}, 5\n{lp}:")
    if CFG['clr']>1: p(f"s_cmp_eq_u32 s{CNT}, {6-CFG['clr']}\ns_cbranch_scc1 {cl_}\n{cr_}:")
    for k in range(1,5):
        if (CFG['cal'] and CFG['cal'][0]=='it%d'%(2*k)) or (CFG['amp'] and 'it%d'%(2*k) in CFG['amp'][:2]) or (CFG['prof'] and any('it%d'%(2*k) in n.split('|') for n in CFG['st'])):
            sk=p.lab("its"); p(f"s_cmp_lg_u32 s{CNT}, {5-k}\ns_cbranch_scc1 {sk}"); STAMP('it%d'%(2*k)); p(f"{sk}:")
    for par in range(2):
        if CFG['dcs']: cs_gate(kind,par)
        for s in range(2 if CFG['g16'] else 0):
            M=mfmas6(kind,s); R=reads6(kind,s^1,par^s,s^1)
            p("s_waitcnt lgkmcnt(0)")
            if s:
                if CFG['g16x']:
                    nb_=CFG['g16b']
                    for i in range(nb_):
                        p(M.pop(0))
                        for k in range(6*i//nb_,6*(i+1)//nb_):
                            if par: p(f"v_xor_b32 v{aX+k}, 0x10000, v{aX+k}")
                for _ in range(0 if CFG['g16x'] else CFG['g16b']): p(M.pop(0))
                if par and not CFG['g16x']:
                    for i in range(6):
                        p(f"v_xor_b32 v{aX+i}, 0x10000, v{aX+i}")
                        if i in (1,3): p(M.pop(0))
                if par==0:
                    w1=p.lab("cw"); w2=p.lab("cwr")
                    p(f"s_cmp_eq_u32 s{CNT}, {5-CFG['clr']}\ns_cbranch_scc1 {w1}\n{w2}:")
                    COLD.append(f"{w1}:\ns_waitcnt vmcnt(0)\ns_branch {w2}")
                p("s_barrier")
                if par==0: p(f"s_cmp_eq_u32 s{CNT}, s{CNT+2}\ns_cbranch_scc1 {hl}\n{hr}:")
            for n in CFG['g16r']:
                for _ in range(n): p(R.pop(0))
                p(M.pop(0))
            assert not R
            for m in M: p(m)
        for s in range(0 if CFG['g16'] else 4):
            buf=s&1
            last=(s==3)
            M=mfmas(kind,buf)
            if CFG['nomfma']: M=M[:1]
            if last and par==1:
                pre=[f"v_xor_b32 v{aX+i}, 0x10000, v{aX+i}" for i in range(4)]+[f"v_xor_b32 v{aW+i}, 0x10000, v{aW+i}" for i in range(2)]
            else: pre=[]
            R=reads(kind,buf^1,(par^1) if last else par,(s+1)&3)
            p("s_waitcnt lgkmcnt(0)")
            if last:
                p(M.pop(0))
                for x in pre: p(x)
                if par==0 and not CFG['hclr'] and not CFG['lclr']:
                    w1=p.lab("cw"); w2=p.lab("cwr")
                    p(f"s_cmp_eq_u32 s{CNT}, {5-CFG['clr']}\ns_cbranch_scc1 {w1}\n{w2}:")
                    COLD.append(f"{w1}:\ns_waitcnt vmcnt(0)\ns_branch {w2}")
                p("s_barrier")
                if par==0 and not CFG['hclr']: p(f"s_cmp_eq_u32 s{CNT}, s{CNT+2}\ns_cbranch_scc1 {hl}\n{hr}:")
            k=0
            while M or R:
                if R: p(R.pop(0))
                if R: p(R.pop(0))
                if M: p(M.pop(0))
    p(f"""s_sub_u32 s{CNT}, s{CNT}, 1
    s_cmp_lg_u32 s{CNT}, 0
    s_cbranch_scc1 {lp}""")
    STAMP('gend')
def bf16r(dst,src):
    p(f"v_cvt_pk_bf16_f32 v{dst}, v{src}, v{src}\nv_and_b32 v{dst}, 0xffff0000, v{dst}")
def mode_read():
    p(f"""v_mov_b32 v{vT+8}, {L_MODE}
    ds_read_b32 v{vT+9}, v{vT+8}""")
def mode_get():
    p(f"v_readfirstlane_b32 s{sMODE}, v{vT+9}")
def dual(stores,pol='',sMODE=sMODE):
    sl=p.lab("slow"); jn=p.lab("jn")
    p(f"s_cmp_lg_u32 s{sMODE}, 0\ns_cbranch_scc1 {sl}")
    for s in stores: p(s+" "+pol)
    p(f"s_branch {jn}\n{sl}:")
    for s in stores: p(s+" sc1")
    p(f"{jn}:")
def idle_gemm():
    vt=10; aI=20; acc=28; one=32; D=64; A=sT+10
    p(f"""s_lshl_b32 s{A}, s{sWR_}, 13
    v_bfe_u32 v{vt}, v0, 1, 3
    v_lshlrev_b32 v{vt}, 4, v{vt}
    v_lshl_add_u32 v{vt}, v0, 7, v{vt}
    v_add_u32 v{aI}, s{A}, v{vt}
    v_mov_b32 v{one}, 0x3f803f80
    s_lshl_b32 s{A}, s{sG}, 2
    s_add_u32 s{A}, s{A}, s{sRB}
    s_lshl_b32 s{A}, s{A}, 14
    s_lshl_b32 s{A+1}, s{sWR_}, 10
    s_add_u32 s{A}, s{A}, s{A+1}
    s_add_u32 s{A}, s{A}, {STP+2*2048}
    v_lshlrev_b32 v{vt}, 4, v0""")
    for i in range(1,8): p(f"v_xor_b32 v{aI+i}, {16*i}, v{aI}")
    for i in range(4): p(f"v_mov_b32 v{acc+i}, 0")
    k=CFG['clr']
    for c in range(11):
        if c==1+2*k and not CFG['hclr']: p(f"s_waitcnt vmcnt({1 if k==1 else 0})")
        p("s_barrier")
        if k and c==2*k-2 and c!=2: clears(1)
        if c<3:
            if c==2:
                for i in range(8): p(f"v_add_u32 v{aI+i}, 0x10000, v{aI+i}")
            for i in range(8): p(f"ds_read_b128 {vr(D+4*i,4)}, v{aI+i} offset:{(c&1)*32768}")
            for i in range(8):
                p(f"s_waitcnt lgkmcnt({7-i})")
                for j in range(4):
                    r=D+4*i+j
                    p(f"v_dot2_f32_bf16 v{acc+(j&1)}, v{r}, v{one}, v{acc+(j&1)}\nv_dot2_f32_bf16 v{acc+2+(j&1)}, v{r}, v{r}, v{acc+2+(j&1)}")
        if c==2: p(f"""s_nop 1
            v_add_f32 v{acc}, v{acc}, v{acc+1}
            v_add_f32 v{acc+1}, v{acc+2}, v{acc+3}
            v_mov_b32 v{acc+2}, s{sTAG}
            buffer_store_dwordx4 {vr(acc,4)}, v{vt}, {S4(sWS)}, s{A} offen sc1""")
        if k==2 and c==2: clears(1)
    p("s_barrier")
    mode_read()
    p("s_waitcnt lgkmcnt(0)")
    mode_get()
HST=[]
def gemm_epi(kind):
    t=vT; A=sT+10
    AU=20
    WA=24
    XA=28
    RS=32
    def split(cb):
        c=CS+cb
        p(f"""v_cndmask_b32 v{c}, 0, v{c}, s[{sLO}:{sLO+1}]
        v_cvt_pk_bf16_f32 v{t+5}, v{c}, v{c}
        v_and_b32 v{t+5}, 0xffff0000, v{t+5}
        v_sub_f32 v{t+6}, v{c}, v{t+5}
        v_cvt_pk_bf16_f32 v{WA+2*cb}, v{t+5}, v{t+6}""")
    if CFG['g16']:
        assert CFG['epi2']==2 and not CFG['honly']
        allst=[ACC+16*(2*xb+cb)+4*h for xb in range(2) for cb in range(2) for h in range(2)]
        sto=lambda xb,cb,h: f"buffer_store_dwordx4 {vr(ACC+16*(2*xb+cb)+4*h,4)}, v{aST+2*cb+h}, {S4(sWS)}, s{sSO2 if xb else sSO} offen"
        T=kind=='T'; CV=28 if T else 20; NM=48
        p(f"""v_and_b32 v{t}, 15, v0
        v_lshrrev_b32 v{t+4}, 4, v0
        s_lshl_b32 s{A}, s{sWAVE}, 7
        s_add_u32 s{A}, s{A}, {L_CS}""")
        if T: p(f"""s_lshl_b32 s{A+1}, s{sWR_}, 9
            s_add_u32 s{A+1}, s{A+1}, {L_SA}
            v_lshl_add_u32 v{t+3}, v{t}, 3, s{A+1}
            v_lshl_add_u32 v{t+1}, v{t+4}, 4, s{A}""")
        else: p(f"""v_lshrrev_b32 v{t+3}, 5, v0
            v_lshlrev_b32 v{t+3}, 6, v{t+3}
            v_and_b32 v{t+4}, 1, v{t+4}
            s_lshl_b32 s{A+1}, s{sWR_}, 8
            s_add_u32 s{A+1}, s{A+1}, {L_SM}
            v_lshl_add_u32 v{t+3}, v{t+4}, 4, v{t+3}
            v_add_u32 v{t+3}, s{A+1}, v{t+3}
            v_lshl_add_u32 v{t+1}, v{t}, 2, s{A}""")
        if not CFG['dcs']: p(f"""v_and_b32 v{t+5}, 31, v0
            v_lshl_add_u32 v{t+5}, v{t+5}, 2, s{A}
            s_mov_b32 vcc_lo, 0xffff0000
            s_mov_b32 vcc_hi, 0xffff0000
            v_cndmask_b32 v{CS}, v{CS}, v{CS2}, vcc
            ds_write_b32 v{t+5}, v{CS}""")
        p(f"v_xor_b32 v{t+2}, 128, v{t+1}")
        if CFG['sf2']: p("s_waitcnt lgkmcnt(0)\ns_barrier"); STAMP('E1')
        for tt in range(4):
            if T: p(f"ds_read_b64 {vr(AU+2*tt,2)}, v{t+3} offset:{128*tt}")
            else: p(f"ds_read_b128 {vr(NM+4*tt,4)}, v{t+3} offset:{128*(tt>>1)+32*(tt&1)}\nds_read_b128 {vr(RS+4*tt,4)}, v{t+3} offset:{128*(tt>>1)+32*(tt&1)+L_SR-L_SM}")
        mode_read()
        csr=lambda j: p(f"ds_read_{'b128' if T else 'b32'} {vr(CV+4*j,4) if T else 'v%d'%(CV+j)}, v{t+1+(j>>1)} offset:{64*(j&1)}")
        csr(0); csr(1)
        if CFG['dcs']: csr(2); csr(3)
        if CFG['sf2']:
            if not CFG['dcs']: csr(2); csr(3)
            p("s_waitcnt lgkmcnt(2)")
        else:
            p("s_waitcnt lgkmcnt(0)\ns_barrier")
            STAMP('E1')
            if not CFG['dcs']: csr(2); csr(3)
        mode_get()
        if T:
            p(f"s_cmp_eq_u32 s{sTY}, 0\ns_cselect_b32 s{A}, {hex(f2u(20**-0.5*math.log2(math.e)))}, 1.0")
            for tt in range(4): p(f"v_mul_f32 v{AU+2*tt+1}, s{A}, v{AU+2*tt+1}")
        for cb in range(2):
            if cb: p("s_waitcnt lgkmcnt(0)")
            for xb in range(2):
                for h in range(2):
                    j=2*cb+h; a=ACC+16*(2*xb+cb)
                    for k in range(4):
                        tt=2*xb+(k>>1); r=vr(a+8*h+2*k,2)
                        if T: p(f"v_pk_fma_f32 {r}, {vr(CV+4*j+2*(k&1),2)}, {vr(AU+2*tt,2)}, {r} op_sel:[0,0,0] op_sel_hi:[1,0,1]")
                        else: p(f"v_pk_fma_f32 {r}, {vr(NM+4*tt+2*(k&1),2)}, {vr(CV+2*cb,2)}, {r} op_sel:[0,{h},0] op_sel_hi:[1,{h},1]")
                    for k in range(4):
                        tt=2*xb+(k>>1); r=vr(a+8*h+2*k,2)
                        if T: p(f"v_pk_mul_f32 {r}, {r}, {vr(AU+2*tt,2)} op_sel:[0,1] op_sel_hi:[1,1]")
                        else: p(f"v_pk_mul_f32 {r}, {r}, {vr(RS+4*tt+2*(k&1),2)}")
                    for k in range(4*h,4*h+4): p(f"v_cvt_pk_bf16_f32 v{a+k}, v{a+2*k}, v{a+2*k+1}")
                    if T: p(f"s_nop 0\nv_permlane16_swap_b32 v{a+4*h}, v{a+4*h+2}\nv_permlane16_swap_b32 v{a+4*h+1}, v{a+4*h+3}")
                    p(sto(xb,cb,h)+" "+CFG['qpol'])
        sl=p.lab("qslow"); jn=p.lab("qjn")
        p(f"s_cmp_lg_u32 s{sMODE}, 0\ns_cbranch_scc1 {sl}\n{jn}:")
        COLD.append(f"{sl}:\n"+"\n".join(sto(xb,cb,h)+" sc1" for xb in range(2) for cb in range(2) for h in range(2))+f"\ns_branch {jn}")
    elif CFG['epi2']:
        assert not CFG['honly']
        E2=CFG['epi2']>1
        allst=[ACC+16*(2*xb+cb)+4*h for xb in range(2) for cb in range(2) for h in range(2)]
        sto=lambda xb,cb,h: f"buffer_store_dwordx4 {vr(ACC+16*(2*xb+cb)+4*h,4)}, v{aST+2*cb+h}, {S4(sWS)}, s{sSO2 if xb else sSO} offen"
        def aug(xb,cb):
            a=ACC+16*(2*xb+cb); X=vr(XA+2*xb,2); W=vr(WA+2*cb,2)
            p(f"v_mfma_f32_32x32x8_bf16 {vr(a,16)}, {W if kind=='T' else X}, {X if kind=='T' else W}, {vr(a,16)}")
        def half(xb,cb,h,mid=None):
            a=ACC+16*(2*xb+cb)
            for k in range(4*h,4*h+4):
                if kind=='T': p(f"v_pk_mul_f32 {vr(a+2*k,2)}, {vr(a+2*k,2)}, {vr(AU+2*xb,2)} op_sel:[0,1] op_sel_hi:[1,1]")
                else: p(f"v_pk_mul_f32 {vr(a+2*k,2)}, {vr(a+2*k,2)}, {vr(RS+16*xb+2*k,2)}")
            for k in range(4*h,4*h+4): p(f"v_cvt_pk_bf16_f32 v{a+k}, v{a+2*k}, v{a+2*k+1}")
            if kind=='T': p(f"s_nop 0\nv_permlane32_swap_b32 v{a+4*h}, v{a+4*h+2}\nv_permlane32_swap_b32 v{a+4*h+1}, v{a+4*h+3}")
            p(sto(xb,cb,h)+" "+CFG['qpol'])
        def stat_rd():
            p(f"""ds_read_b64 v[{AU}:{AU+1}], v{t+3}
            ds_read_b64 v[{AU+2}:{AU+3}], v{t+3} offset:256""")
            if kind=='V':
                for xb in range(2):
                    for i in range(4): p(f"ds_read_b128 {vr(RS+16*xb+4*i,4)}, v{t+4} offset:{xb*128+i*32}")
            mode_read()
        def stat_use():
            p(f"v_mov_b32 v{XA}, v{AU}\nv_mov_b32 v{XA+2}, v{AU+2}")
            if kind=='T':
                p(f"""s_cmp_eq_u32 s{sTY}, 0
                s_cselect_b32 s{A}, {hex(f2u(20**-0.5*math.log2(math.e)))}, 1.0
                v_mul_f32 v{AU+1}, s{A}, v{AU+1}
                v_mul_f32 v{AU+3}, s{A}, v{AU+3}""")
            else: p("s_nop 0")
        p(f"""v_and_b32 v{t}, 31, v0
        s_lshl_b32 s{A}, s{sWR_}, 9
        s_add_u32 s{A}, s{A}, {L_SA}
        v_lshl_add_u32 v{t+3}, v{t}, 3, s{A}""")
        if kind=='V':
            p(f"""v_lshrrev_b32 v{t+4}, 5, v0
            s_lshl_b32 s{A}, s{sWR_}, 8
            s_add_u32 s{A}, s{A}, {L_SR}
            v_lshl_add_u32 v{t+4}, v{t+4}, 4, s{A}""")
        if E2: stat_rd()
        p(f"""s_lshl_b32 s{A}, s{sWAVE}, 7
        s_add_u32 s{A}, s{A}, {L_CS}
        v_lshl_add_u32 v{t+1}, v{t}, 2, s{A}
        v_mov_b32 v{WA+1}, 0
        v_mov_b32 v{WA+3}, 0
        v_mov_b32 v{XA+1}, 0
        v_mov_b32 v{XA+3}, 0
        {f"ds_read_b32 v{CS}, v{t+1}" if CFG['dcs'] else f"ds_write_b32 v{t+1}, v{CS}"}
        v_xor_b32 v{t+2}, 128, v{t+1}""")
        nv=8 if kind=='V' else 0
        if CFG['dcs']:
            assert E2
            p(f"ds_read_b32 v{CS+1}, v{t+2}\ns_waitcnt lgkmcnt(1)")
            stat_use()
            split(0)
            p("s_waitcnt lgkmcnt(0)")
            mode_get()
            aug(0,0)
            split(1)
            p("s_barrier")
            STAMP('E1')
            aug(1,0); aug(0,1); aug(1,1)
            p("s_nop 2")
            order=[(0,0,0),(0,0,1),(1,0,0),(1,0,1),(0,1,0),(0,1,1),(1,1,0),(1,1,1)]
        elif E2:
            split(0)
            p(f"s_waitcnt lgkmcnt({2+nv})")
            stat_use()
            aug(0,0); aug(1,0)
            p("s_waitcnt lgkmcnt(0)\ns_barrier")
            STAMP('E1')
            p(f"ds_read_b32 v{CS+1}, v{t+2}")
            mode_get()
            p("s_nop 7\ns_nop 1")
            half(0,0,0)
            p("s_waitcnt lgkmcnt(0)")
            split(1)
            p("s_nop 1")
            aug(0,1); aug(1,1)
            order=[(0,0,1),(1,0,0),(1,0,1),(0,1,0),(0,1,1),(1,1,0),(1,1,1)]
        else:
            p("s_waitcnt lgkmcnt(0)\ns_barrier")
            STAMP('E1')
            p(f"ds_read_b32 v{CS+1}, v{t+2}")
            stat_rd()
            split(0)
            p(f"s_waitcnt lgkmcnt({1+nv})")
            stat_use()
            aug(0,0)
            split(1)
            p("s_nop 1")
            aug(0,1); aug(1,0); aug(1,1)
            p("s_waitcnt lgkmcnt(0)")
            mode_get()
            p("s_nop 4")
            order=[(xb,cb,h) for xb in range(2) for cb in range(2) for h in range(2)]
        for o in order: half(*o)
        sl=p.lab("qslow"); jn=p.lab("qjn")
        p(f"s_cmp_lg_u32 s{sMODE}, 0\ns_cbranch_scc1 {sl}\n{jn}:")
        COLD.append(f"{sl}:\n"+"\n".join(sto(xb,cb,h)+" sc1" for xb in range(2) for cb in range(2) for h in range(2))+f"\ns_branch {jn}")
    else:
        p(f"""v_and_b32 v{t}, 31, v0
        s_lshl_b32 s{A}, s{sWC}, 1
        s_or_b32 s{A}, s{A}, s{sWR_}
        s_lshl_b32 s{A}, s{A}, 7
        s_add_u32 s{A}, s{A}, {L_CS}
        v_lshl_add_u32 v{t+1}, v{t}, 2, s{A}
        s_lshl_b32 s{A}, s{sWR_}, 9
        s_add_u32 s{A}, s{A}, {L_SA}
        v_lshl_add_u32 v{t+3}, v{t}, 3, s{A}
        ds_write_b32 v{t+1}, v{CS}
        v_xor_b32 v{t+2}, 128, v{t+1}
        v_mov_b32 v{WA+1}, 0
        v_mov_b32 v{WA+3}, 0
        v_mov_b32 v{XA+1}, 0
        v_mov_b32 v{XA+3}, 0""")
        if kind=='V':
            p(f"""v_lshrrev_b32 v{t+4}, 5, v0
            s_lshl_b32 s{A}, s{sWR_}, 8
            s_add_u32 s{A}, s{A}, {L_SR}
            v_lshl_add_u32 v{t+4}, v{t+4}, 4, s{A}""")
        p("s_waitcnt lgkmcnt(0)\ns_barrier")
        STAMP('E1',1)
        p(f"""ds_read_b32 v{CS+1}, v{t+2}
        ds_read_b64 v[{AU}:{AU+1}], v{t+3}
        ds_read_b64 v[{AU+2}:{AU+3}], v{t+3} offset:256""")
        mode_read()
        if kind=='V':
            for xb in range(2):
                for i in range(4): p(f"ds_read_b128 {vr(RS+16*xb+4*i,4)}, v{t+4} offset:{xb*128+i*32}")
        def split(cb):
            c=CS+cb
            p(f"""v_cndmask_b32 v{c}, 0, v{c}, s[{sLO}:{sLO+1}]
            v_cvt_pk_bf16_f32 v{t+5}, v{c}, v{c}
            v_and_b32 v{t+5}, 0xffff0000, v{t+5}
            v_sub_f32 v{t+6}, v{c}, v{t+5}
            v_cvt_pk_bf16_f32 v{WA+2*cb}, v{t+5}, v{t+6}""")
        split(0)
        p(f"s_waitcnt lgkmcnt({8 if kind=='V' else 0})")
        split(1)
        p(f"v_mov_b32 v{XA}, v{AU}\nv_mov_b32 v{XA+2}, v{AU+2}")
        mode_get()
        if kind=='T':
            p(f"""s_cmp_eq_u32 s{sTY}, 0
            s_cselect_b32 s{A}, {hex(f2u(20**-0.5*math.log2(math.e)))}, 1.0
            v_mul_f32 v{AU+1}, s{A}, v{AU+1}
            v_mul_f32 v{AU+3}, s{A}, v{AU+3}""")
        else: p("s_nop 0")
        for xb in range(2):
            for cb in range(2):
                a=ACC+16*(2*xb+cb); X=vr(XA+2*xb,2); W=vr(WA+2*cb,2)
                p(f"v_mfma_f32_32x32x8_bf16 {vr(a,16)}, {W if kind=='T' else X}, {X if kind=='T' else W}, {vr(a,16)}")
        p("s_waitcnt lgkmcnt(0)\ns_nop 7")
        if CFG['honly']: p(f"s_or_b32 s{sHALO}, s{sHALO}, s{sMODE}")
        allst=[]
        for xb in range(2):
            st=[]
            for cb in range(2):
                a=ACC+16*(2*xb+cb)
                for k in range(8):
                    if kind=='T': p(f"v_pk_mul_f32 {vr(a+2*k,2)}, {vr(a+2*k,2)}, {vr(AU+2*xb,2)} op_sel:[0,1] op_sel_hi:[1,1]")
                    else: p(f"v_pk_mul_f32 {vr(a+2*k,2)}, {vr(a+2*k,2)}, {vr(RS+16*xb+2*k,2)}")
                for k in range(8): p(f"v_cvt_pk_bf16_f32 v{a+k}, v{a+2*k}, v{a+2*k+1}")
                if kind=='T':
                    p(f"""v_permlane32_swap_b32 v{a}, v{a+2}
                    v_permlane32_swap_b32 v{a+1}, v{a+3}
                    v_permlane32_swap_b32 v{a+4}, v{a+6}
                    v_permlane32_swap_b32 v{a+5}, v{a+7}""")
                for h in range(2):
                    st.append(f"buffer_store_dwordx4 {vr(a+4*h,4)}, v{aST+2*cb+h}, {S4(sWS)}, s{sSO2 if xb else sSO} offen")
                    allst.append(a+4*h)
            dual(st,CFG['qpol'],sHALO if CFG['honly'] else sMODE)
    STAMP('st')
    if CFG['honly']:
        p(f"""v_mov_b32 v{t}, 0
        v_mov_b32 v{t+1}, s{sTAG}
        s_lshl_b32 s{A}, s{sWC}, 2
        s_add_u32 s{A}, s{A}, {F_STG}
        v_mov_b32 v{t+2}, s{A}
        v_mov_b32 v{t+3}, 1
        s_mov_b64 exec, 1
        s_waitcnt vmcnt(0)
        ds_add_u32 v{t+2}, v{t+3}""")
        dual([f"buffer_store_dword v{t+1}, v{t}, {S4(sWS)}, s{sFO} offen"])
        p("s_mov_b64 exec, -1")
        STAMP('fl')
        return
    nh=p.lab("nohalo"); jh=p.lab("jhalo")
    if CFG['hdef']>=0 or CFG['hs2']: A=sT+18
    hst=[f"buffer_store_dwordx4 {vr(allst[i],4)}, v{aST+(i&3)}, {S4(sWS)}, s{A+(i>>2)} offen {CFG['hpol']}" for i in range(8)]
    p(f"""v_mov_b32 v{t}, 0
    v_mov_b32 v{t+1}, s{sTAG}
    s_add_u32 s{A}, s{sSO}, {KH-KB}
    s_add_u32 s{A+1}, s{sSO2}, {KH-KB}""")
    if CFG['hst']:
        p(f"s_cmp_eq_u32 s{sHALO}, 0\ns_cbranch_scc1 {nh}")
        for i in range(8): p(f"ds_write_b128 v{aSG}, {vr(allst[i],4)} offset:{i*1024}")
        for k in range(4): p(f"v_add_u32 v{t+4+k}, s{A}, v{aST+k}")
        p(f"""s_lshl_b32 s{A}, s{sWC}, 2
        s_add_u32 s{A}, s{A}, {F_STG}
        ds_write_b128 v{aSG}, {vr(t+4,4)} offset:8192
        v_mov_b32 v{t+2}, s{A}
        v_mov_b32 v{t+3}, 1
        s_mov_b64 exec, 1
        ds_add_u32 v{t+2}, v{t+3}
        s_waitcnt vmcnt(0)""")
        dual([f"buffer_store_dword v{t+1}, v{t}, {S4(sWS)}, s{sFO} offen"])
        p(f"""ds_add_u32 v{t+2}, v{t+3} offset:8
        s_branch {jh}
        {nh}:
        s_waitcnt vmcnt(0)
        s_mov_b64 exec, 1""")
        dual([f"buffer_store_dword v{t+1}, v{t}, {S4(sWS)}, s{sFO} offen"])
        p(f"{jh}:\ns_mov_b64 exec, -1")
        STAMP('fl')
        return
    if CFG['hdef']>=0:
        HST[:]=hst
        p("s_waitcnt vmcnt(0)")
    elif CFG['hearly']:
        p(f"s_cmp_eq_u32 s{sHALO}, 0\ns_cbranch_scc1 {nh}")
        for x in hst: p(x)
        p(f"s_waitcnt vmcnt(8)\ns_branch {jh}\n{nh}:\ns_waitcnt vmcnt(0)\n{jh}:")
    else: p("s_waitcnt vmcnt(0)")
    p("s_mov_b64 exec, 1")
    dual([f"buffer_store_dword v{t+1}, v{t}, {S4(sWS)}, s{sFO} offen"])
    p(f"s_mov_b64 exec, -1")
    if not CFG['hearly'] and CFG['hdef']<0:
        HST[:]=hst
        p(f"s_cmp_lg_u32 s{sHAL2}, 1\ns_cbranch_scc1 {nh}" if CFG['hs2'] else f"s_cmp_eq_u32 s{sHALO}, 0\ns_cbranch_scc1 {nh}")
        for x in hst: p(x)
        p(f"{nh}:")
    STAMP('fl')
import struct
def f2u(x): return struct.unpack("<I",struct.pack("<f",x))[0]

aLin,aTl,aKm,aKt,aV,aFl,aO,aQ0,aQ1=246,247,248,249,250,251,252,253,254
aKm1,aKt1,aV1=216,217,218
QM=[28,34]; QT=[32,38]; PP=40
KM=[48,62]; KT=[52,66]; VV=[[54,58],[68,72]]
SS=[80,96]; OO=[112,128]; CD=200; CF=230
cVM=8; sQ=[10,11]; sOm=[12,13]; sOt=[14,15]; cXO,cJ,cF,cK,cV,cL,cHO,cT0,cHX=range(16,25); sOSC=sT+15; sFB=sT+16; aWR=225
NINF="0xff800000"
def att_setup():
    t=vT; A=sT+7; B=sT+8; C=sT+17; sF=cF
    wo_pre1()
    att_ids()
    moe_role()
    p(f"v_mov_b32 v{aCLS}, 0x207")
    if CFG['hkv']: p(f"v_lshlrev_b32 v{aLin}, 4, v0\nv_mov_b32 v{aFl}, {F_G1}")
    else:
        flag_addr(aFl,t,1,A,B,C)
        p(f"""s_lshl_b32 s{sF}, s{sG}, 11
        s_lshl_b32 s{A}, s{sHF}, 4
        v_mov_b32 v{t}, s{A}
        v_cmp_gt_u32 vcc, 8, v0
        s_add_u32 s{sF}, s{sF}, {FL}
        s_mov_b32 s{sK1024}, 1024
        v_cndmask_b32 v{t}, 8, v{t}, vcc
        v_add_u32 v{aFl}, v{aFl}, v{t}""")
        kv_addr(aLin,aTl,t)
    p(f"""s_lshl_b32 s{A}, s{sHF}, 10
    s_add_u32 s{B}, s{A}, {L_KV}
    v_add_u32 v{aKm}, s{B}, v{aLin}
    s_sub_u32 s{B}, {L_KV+1024}, s{A}
    v_add_u32 v{aKm1}, s{B}, v{aLin}
    v_and_b32 v{t}, 31, v0
    v_lshrrev_b32 v{t+1}, 5, v0
    v_xor_b32 v{t+2}, s{sHO}, v{t+1}
    v_lshlrev_b32 v{t+2}, 3, v{t+2}
    v_lshl_add_u32 v{t+2}, v{t}, 4, v{t+2}
    s_lshl_b32 s{A}, s{sHF}, 9
    s_add_u32 s{B}, s{A}, {L_KV+2048}
    v_add_u32 v{aKt}, s{B}, v{t+2}
    s_sub_u32 s{B}, {L_KV+2048+512}, s{A}
    v_add_u32 v{aKt1}, s{B}, v{t+2}
    v_mul_u32_u24 v{t+2}, 320, v{t+1}
    v_lshl_add_u32 v{t+2}, v{t}, 4, v{t+2}
    s_mul_i32 s{A}, s{sHF}, 1280
    s_add_u32 s{B}, s{A}, {L_KV+3072}
    v_add_u32 v{aV}, s{B}, v{t+2}
    s_sub_u32 s{B}, {L_KV+3072+1280}, s{A}
    v_add_u32 v{aV1}, s{B}, v{t+2}
    v_lshlrev_b32 v{t+2}, 2, v{t+1}
    v_sub_u32 v{t+2}, v{t}, v{t+2}
    s_cmp_eq_u32 s{sHF}, 0
    s_cselect_b32 s{A}, {NINF}, 0
    s_cselect_b32 s{B}, 0, {NINF}
    v_mov_b32 v{t+3}, s{A}
    v_mov_b32 v{t+4}, s{B}""")
    for i in range(16):
        m=C+1+2*(i%2)+((C+1)%2)
        ri=8*(i>>2)+(i&3)
        p(f"v_cmp_le_i32 s[{m}:{m+1}], {ri}, v{t+2}")
        if i>0:
            m2=C+1+2*((i-1)%2)+((C+1)%2)
            if i==1: p("s_nop 0")
            p(f"v_cndmask_b32 v{CD+i-1}, v{t+3}, v{t+4}, s[{m2}:{m2+1}]\nv_cndmask_b32 v{CF+i-1}, v{t+4}, v{t+3}, s[{m2}:{m2+1}]")
    p(f"""s_nop 0
    v_cndmask_b32 v{CD+15}, v{t+3}, v{t+4}, s[{m}:{m+1}]
    v_cndmask_b32 v{CF+15}, v{t+4}, v{t+3}, s[{m}:{m+1}]
    v_cmp_eq_u32 s[{m}:{m+1}], 20, v{t}
    v_cmp_eq_u32 vcc, 24, v{t}
    s_mov_b32 s{cHO}, s{sHO}
    s_or_b64 s[{cVM}:{cVM+1}], vcc, s[{m}:{m+1}]""")
    p(f"""v_bfe_u32 v{t+2}, v0, 4, 1
    v_mul_u32_u24 v{t+2}, 20480, v{t+2}
    v_lshl_add_u32 v{t+2}, v{t+1}, 8, v{t+2}
    v_and_b32 v{t+3}, 15, v0
    v_lshl_add_u32 v{aO}, v{t+3}, 4, v{t+2}
    s_xor_b32 s{cHX}, s{sHF}, s{sHH}
    s_mov_b32 s{cT0}, s{sT0}
    s_lshl_b32 s{A}, s{sWAVE}, 1
    s_sub_u32 s{A}, 7, s{A}
    v_mul_u32_u24 v{t+2}, s{A}, v0
    s_add_u32 s{A}, s{sT0}, s{sWAVE}
    v_add_lshl_u32 v{aFO}, v{t+2}, s{A}, 12
    s_lshl_b32 s{A}, s{sHD}, 7
    s_add_u32 s{A}, s{A}, {FO}
    v_add_u32 v{aFO}, s{A}, v{aFO}""")
    for q in range(2):
        p(f"""s_sub_u32 s{A}, 7, s{sWAVE}
        s_cmp_eq_u32 s{sHF}, {q}
        s_cselect_b32 s{A}, s{A}, s{sWAVE}
        s_add_u32 s{A}, s{A}, s{sT0}""")
        p(f"""s_mul_i32 s{sQ[q]}, s{A}, 2560
        s_mul_i32 s{B}, s{sPH}, {64*2560}
        s_add_u32 s{sQ[q]}, s{sQ[q]}, s{B}
        s_mul_i32 s{A}, s{A}, 40960
        s_mul_i32 s{B}, s{sPH}, 1280
        s_add_u32 s{A}, s{A}, s{B}
        s_add_u32 s{A}, s{A}, {OB}
        s_mul_i32 s{B}, s{sHO}, 768
        s_add_u32 s{sOm[q]}, s{A}, s{B}
        s_lshl_b32 s{B}, s{sHO}, 3
        s_add_u32 s{sOt[q]}, s{A}, s{B}""")
    sK=cK; sV=cV; sL=cL
    if not CFG['hkv']: p(f"""s_lshl_b32 s{A}, s{sWAVE}, 1
    s_sub_u32 s{B}, -2, s{A}
    s_cmp_eq_u32 s{sHF}, 0
    s_cselect_b32 s{A}, s{A}, s{B}
    s_add_u32 s{A}, s{A}, s{sT0}
    s_mul_i32 s{sK}, s{A}, 2560
    s_mul_i32 s{sV}, s{A}, 1280
    s_mul_i32 s{A}, s{sPH}, {64*2560}
    s_add_u32 s{sK}, s{sK}, s{A}
    s_add_u32 s{sK}, s{sK}, {KB}
    s_mul_i32 s{A}, s{sHD}, 81920
    s_add_u32 s{sV}, s{sV}, s{A}
    s_add_u32 s{sV}, s{sV}, {VB}
    s_mul_i32 s{sL}, s{sWAVE}, 5632
    s_add_u32 s{sL}, s{sL}, {L_KV+4*5632}""")
    p(f"""s_mul_i32 s{A}, s{sHO}, 1536
    v_add_u32 v{aQ0}, s{A}, v{aLin}
    s_lshl_b32 s{A}, s{sHO}, 3
    v_add_u32 v{aQ1}, s{A}, v{aLin}""")
aXD=219; aXL=223; sLCX=25
def xr_loads():
    if CFG['xdma']:
        A=sT+7; B=sT+8
        p(f"""s_mul_i32 s{A}, s{sWAVE}, 2560
        s_add_u32 m0, s{A}, {L_STG}
        s_add_u32 s{A}, s{cXO}, 6720
        s_add_u32 s{B}, s{cXO}, 13440
        s_mov_b32 exec_hi, 0x0fffffff
        buffer_load_dwordx4 v{aXD}, {S4(sX)}, s{cXO} offen lds
        buffer_load_dwordx4 v{aXD}, {S4(sX)}, s{A} offen offset:960 lds
        s_mov_b32 exec_hi, 0xff
        buffer_load_dwordx4 v{aXD}, {S4(sX)}, s{B} offen offset:1920 lds
        s_mov_b32 m0, {L_SA}
        s_mov_b64 exec, 0x3ff
        buffer_load_dwordx4 v{aLin}, {S4(sWR)}, s{cJ} offen lds
        s_mov_b64 exec, -1""")
        return
    for o,n in ((0,4),(4,4),(8,2)): p(f"buffer_load_dwordx{n} {vr(XR+o,n)}, v{aX2}, {S4(sX)}, s{cXO} offen offset:{4*o}")
    for o,n in ((0,4),(4,4),(8,2)): p(f"buffer_load_dwordx{n} {vr(WR_+o,n)}, v{aWR}, {S4(sWR)}, s{cJ} offen offset:{4*o}")
def att_go():
    t=vT; A=sT+7; B=sT+8; C=sT+17
    nh=p.lab("nohs"); lp=p.lab("fp"); ok=p.lab("fpok"); md=p.lab("fpm")
    ld=f"buffer_load_dword v{t+10}, v{aFl}, {S4(sWS)}, s{cF} offen sc1"
    OWN=CFG['hsp']&2; sOWN=sT+19
    if OWN:
        assert not (CFG['hkv'] or CFG['hst'] or CFG['honly'] or CFG['hdef']>=0) and CFG['xru']>=0
        p(f"s_andn2_b32 s{sOWN}, s{sHAL2}, s{sMODE}\ns_cbranch_scc1 L_nold\n{ld}\nL_nold:")
    elif not CFG['hkv']: p(ld)
    p(f"""v_mov_b32 v{t+4}, 0x3f803f80
    s_or_b32 s{sOSC}, s{cHX}, s{sMODE}
    s_mov_b32 s{sFB}, 0
    s_mul_i32 s{A}, s{sMODE}, {OB2-OB}
    v_add_u32 v{aO}, s{A}, v{aO}""")
    HD=CFG['hdef']>=0
    def vvi(b_):
        for mm in range(2):
            for r in range(4): p(f"v_cndmask_b32 v{VV[b_][mm]+r}, 0, v{t+4}, s[{cVM}:{cVM+1}]")
    vvi(0)
    HS=CFG['hs2']
    if not HD and not HS: vvi(1)
    for q in range(2): p(f"v_mov_b32 v{QT[q]}, 0\nv_mov_b32 v{QT[q]+1}, 0")
    if CFG['lclr']:
        for r in range(4): p(f"v_mov_b32 v{PP+r}, -1")
        p(f"""s_lshl_b32 s{A}, s2, 2
        s_add_u32 s{A}, s{A}, s{sWAVE}
        s_mul_i32 s{B}, s{A}, 640
        s_add_u32 s{B}, s{B}, {CAND}
        v_mov_b32 v{PP+5}, s{B}
        s_min_u32 s{B}, s{A}, 191
        s_lshl_b32 s{B}, s{B}, 7
        s_add_u32 s{B}, s{B}, {ACT-640}
        v_mov_b32 v{PP+6}, s{B}
        v_cmp_gt_u32 vcc, 40, v0
        s_cmp_lt_u32 s{A}, 192
        s_cselect_b32 s{sLCX}, 0xff00, 0
        s_or_b32 s{sLCX}, s{sLCX}, 0xff
        v_cndmask_b32 v{PP+5}, v{PP+6}, v{PP+5}, vcc
        v_add_u32 v{PP+4}, v{PP+5}, v{aLin}""")
    if CFG['osent']: wo_scal()
    assert CFG['hsent'] or not CFG['hkv']
    if CFG['hkv']:
        p(f"v_mov_b32 v{t+4}, {F_FS}"); lds_wait(t+4,t+5,C,'gt',1,0)
    else:
        if CFG['hst'] or HD or HS or CFG['honly']: p(f"s_mov_b32 s{C}, {SPIN}\ns_waitcnt vmcnt(0)")
        else: p(f"""s_lshr_b32 s{A}, s{sWAVE}, 1
        s_lshl_b32 s{A}, s{A}, 2
        s_add_u32 s{A}, s{A}, {F_STG}
        v_mov_b32 v{t+4}, s{A}
        v_mov_b32 v{t+5}, 1
        {f"s_cmp_lg_u32 s{sOWN}, 0" if OWN else ""}
        {f"s_cbranch_scc1 L_own" if OWN else ""}
        s_mov_b32 s{C}, {SPIN}
        s_cmp_eq_u32 s{sHAL2}, 0
        s_waitcnt vmcnt(0)
        s_cbranch_scc1 {nh}
        s_mov_b64 exec, 1
        ds_add_u32 v{t+4}, v{t+5}
        s_mov_b64 exec, -1
        {nh}:""")
        STAMP('hack')
        p(f"""s_branch {md}
        {lp}:
        {ld}
        s_waitcnt vmcnt(0)
        {md}:
        v_cmp_ne_u32 vcc, s{sTAG}, v{t+10}
        s_nop 0
        s_cbranch_vccz {ok}""")
        spin(C,lp,ok)
        p(f"s_branch {lp}")
        if OWN:
            p(f"L_own:\nv_mov_b32 v{t+6}, {F_OWN}\ns_mov_b64 exec, 1\nds_add_u32 v{t+6}, v{t+5} offset:{F_FS-F_OWN+65536}\ns_mov_b64 exec, -1".replace(f"offset:{F_FS-F_OWN+65536}","") if 0 else f"L_own:\nv_mov_b32 v{t+6}, {F_FS}\ns_mov_b64 exec, 1\nds_add_u32 v{t+6}, v{t+5}\ns_mov_b64 exec, -1\nv_mov_b32 v{t+6}, {F_OWN}"); lds_wait(t+6,t+7,C,'gt',1,0)
        p(f"{ok}:")
    STAMP('fseen')
    if not CFG['hkv'] and not HS: kv_dma(aLin,aTl,cK,cV,cL,A,B,cHO)
    for q in range(2): p(f"buffer_load_dwordx4 {vr(QM[q],4)}, v{aQ0}, {S4(sWS)}, s{sQ[q]} offen {CFG['ldp']}")
    p(f"s_mov_b64 exec, s[{sLO}:{sLO+1}]")
    for q in range(2): p(f"buffer_load_dwordx2 {vr(QT[q],2)}, v{aQ1}, {S4(sWS)}, s{sQ[q]} offen offset:1024 {CFG['ldp']}")
    if CFG['lclr']:
        assert not (HD or CFG['hkv'] or OWN) and CFG['xru']>CFG['lcu']
        st=[f"buffer_store_dwordx2 {vr(PP,2)}, v{aO}, {S4(sWS)}, s{sOt[q]} offen offset:512" for q in range(2)]+["s_mov_b64 exec, -1"]+[f"buffer_store_dwordx4 {vr(PP,4)}, v{aO}, {S4(sWS)}, s{sOm[q]} offen" for q in range(2)]
        p(f"s_cmp_lg_u32 s{sOSC}, 0\ns_cbranch_scc1 L_lcs")
        for x in st: p(x)
        p("s_branch L_lcj\nL_lcs:")
        for x in st: p(x+(" sc1" if x.startswith("buffer") else ""))
        p(f"L_lcj:\ns_mov_b32 exec_hi, s{sLCX}\nbuffer_store_dwordx4 {vr(PP,4)}, v{PP+4}, {S4(sWS)}, 0 offen sc1")
    if HD:
        assert CFG['xru']>CFG['hdef']
        n2=p.lab("nohd"); j2=p.lab("jhd")
        p(f"""s_mov_b64 exec, 1
        v_mov_b32 v{t}, {F_G1}
        v_mov_b32 v{t+1}, 1
        ds_add_u32 v{t}, v{t+1} offset:{F_FS-F_G1}
        s_mov_b64 exec, -1
        v_mov_b32 v{aFl}, {F_G1}
        s_cmp_eq_u32 s{sHAL2}, 0
        s_cbranch_scc1 {n2}""")
        g1=lambda n: p(f"s_mov_b64 exec, 1\ns_waitcnt vmcnt({n})\nds_add_u32 v{t}, v{t+1}\ns_mov_b64 exec, -1")
        if CFG['hdg']=='G1':
            g1(4); lds_wait(aFl,t+5,C,'gt',4,0)
            for x in HST: p(x)
            p("s_nop 1"); vvi(1)
        else:
            if CFG['hdg']=='FS': p(f"v_mov_b32 v{t+6}, {F_FS}"); lds_wait(t+6,t+5,C,'gt',4,0)
            for x in HST: p(x)
            p("s_nop 1"); vvi(1)
            g1(12); lds_wait(aFl,t+5,C,'gt',4,0)
        p(f"s_waitcnt vmcnt(8)\ns_branch {j2}\n{n2}:")
        vvi(1); g1(4); lds_wait(aFl,t+5,C,'gt',4,0)
        p(f"""s_waitcnt vmcnt(0)
        {j2}:
        s_lshr_b32 s{A}, s{sWAVE}, 1
        s_lshl_b32 s{A}, s{A}, 2
        s_add_u32 s{A}, s{A}, {F_STG}
        v_mov_b32 v{t+4}, s{A}""")
    elif HS:
        assert CFG['xru']>CFG['hs2u'] and not (CFG['lclr'] or OWN or CFG['hkv'] or CFG['hst'] or CFG['honly'] or CFG['hearly'] or CFG['padk']==1)
        n2=p.lab("hsu"); n3=p.lab("hsd"); j2=p.lab("jhs"); j3=p.lab("jhs"); j4=p.lab("jhs")
        fs=f"ds_add_u32 v{t}, v{t+1} offset:{F_FS-F_G1}"
        p("s_mov_b64 exec, -1")
        kv_dma(aLin,aTl,cK,cV,cL,A,B,cHO)
        p(f"""v_mov_b32 v{t}, {F_G1}
        v_mov_b32 v{t+1}, 1
        v_mov_b32 v{aFl}, {F_G1}
        v_mov_b32 v{vHF}, s{sTAG}
        v_mov_b32 v{vHF+1}, 0
        s_cmp_eq_u32 s{sHAL2}, 2
        s_cbranch_scc1 {n3}""")
        vvi(1)
        p(f"""s_mov_b64 exec, 1
        s_cmp_eq_u32 s{sHAL2}, 1
        s_cbranch_scc1 {n2}
        {fs if 'FS' in CFG['gm']+CFG['gr'] else ""}
        s_waitcnt vmcnt(0)
        s_branch {j2}
        {n2}:
        buffer_store_dword v{vHF}, v{vHF+1}, {S4(sWS)}, s{sHFA} offen sc1
        {fs}
        s_waitcnt vmcnt(1)
        s_branch {j2}
        {n3}:
        s_mov_b64 exec, 1
        {fs}
        s_mov_b64 exec, -1""")
        if CFG['hs2g']=='FS': p(f"v_mov_b32 v{t+6}, {F_FS}"); lds_wait(t+6,t+5,C,'gt',4,0)
        elif CFG['hs2g']=='KV': p("s_waitcnt vmcnt(0)")
        for x in HST: p(x)
        p("s_nop 1"); vvi(1)
        p(f"""s_mov_b64 exec, 1
        s_waitcnt vmcnt(8)
        {j2}:
        ds_add_u32 v{t}, v{t+1}
        s_mov_b64 exec, -1""")
        lds_wait(aFl,t+5,C,'gt',4,0)
    elif CFG['hkv']: p("s_mov_b64 exec, -1")
    if CFG['lay'] and CFG['padk']==1:
        for w in range(3): p(f"s_cmp_eq_u32 s{sWAVE}, {w}\ns_cbranch_scc1 L_pv{w}")
        p("s_branch L_pv3\nL_kvb:")
    if not HD and not HS and not CFG['hkv']: p(f"""s_mov_b64 exec, 1
    v_mov_b32 v{t}, {F_G1}
    v_mov_b32 v{t+1}, 1
    {f"ds_add_u32 v{t}, v{t+1} offset:{F_FS-F_G1}" if 'FS' in CFG['gm']+CFG['gr'] else ""}
    {f"s_cmp_eq_u32 s{sOWN}, 0" if OWN else ""}
    {f"s_cbranch_scc1 L_nohk" if OWN else ""}
    {f"s_waitcnt vmcnt(10)" if OWN else ""}
    {f"ds_add_u32 v{t+4}, v{t+1}" if OWN else ""}
    {f"L_nohk:" if OWN else ""}
    s_waitcnt vmcnt({9 if CFG['lclr'] else 4})
    ds_add_u32 v{t}, v{t+1}
    s_mov_b64 exec, -1
    v_mov_b32 v{aFl}, {F_G1}""")
    if CFG['hkv']: lds_wait(aFl,t+5,C,'gt',4,0)
    if CFG['xru']<0: xr_loads()
    if not HD and not HS:
        if not CFG['hkv']: lds_wait(aFl,t+5,C,'gt',4,0)
        p(f"s_waitcnt vmcnt({6 if CFG['xru']<0 else 5 if CFG['lclr'] else 0})")
    STAMP('kv')
    p(f"""s_cmp_eq_u32 s{sWAVE}, 1
    s_cbranch_scc1 L_av1
    s_cmp_eq_u32 s{sWAVE}, 2
    s_cbranch_scc1 L_av2
    s_cmp_eq_u32 s{sWAVE}, 3
    s_cbranch_scc1 L_av3""")
    if CFG['lay']: p("s_branch L_av0")
PG=".p2alignl 12, 0xbf810000"
KVB=lambda b: 'L_kvb' if CFG['padk']==1 else f'L_pkb{b}'
def kreads(n,b_):
    o=(n>>1)*5632
    return [f"ds_read_b128 {vr(KM[b_],4)}, v{(aKm,aKm1)[n&1]} offset:{o}", f"ds_read_b64 {vr(KT[b_],2)}, v{(aKt,aKt1)[n&1]} offset:{o}"]
def vreads(n,b_):
    o=(n>>1)*5632; a=(aV,aV1)[n&1]
    return [f"s_mov_b64 exec, s[{sLO+2}:{sLO+3}]", f"ds_read_b128 {vr(VV[b_][0],4)}, v{a} offset:{o}", f"ds_read_b128 {vr(VV[b_][1],4)}, v{a} offset:{o+640}", "s_mov_b64 exec, -1"]
def att_variant(w):
    U=[]
    for n in range(15-w,8+w,-1): U.append((0,n))
    for n in range(8+w,6-w,-1): U+= [(0,n),(1,n)]
    for n in range(6-w,w-1,-1): U.append((1,n))
    assert len(U)==18
    diag=[15-w,8+w]
    tiles=[]; tau=[]
    for q,n in U:
        if not tiles or tiles[-1]!=n: tiles.append(n)
        tau.append(len(tiles)-1)
    first=[tau.index(i) for i in range(len(tiles))]
    started=[0,0]
    def QK(u):
        q,n=U[u]; b_=tau[u]&1; S=vr(SS[u&1],16)
        c=vr(CD,16) if n==diag[q] else (vr(CF,16) if n==diag[q]-8 else "0")
        return [f"v_mfma_f32_32x32x16_bf16 {S}, {vr(KM[b_],4)}, {vr(QM[q],4)}, {c}", f"v_mfma_f32_32x32x8_bf16 {S}, {vr(KT[b_],2)}, {vr(QT[q],2)}, {S}"]
    def PV(u,m):
        q,n=U[u]; O=vr(OO[q],16)
        c=O if started[q] else "0"; started[q]=1
        return f"v_mfma_f32_32x32x16_bf16 {O}, {vr(VV[tau[u]&1][m],4)}, {vr(PP+4*m,4)}, {c}"
    if CFG['lay']:
        p(PG)
        if CFG['padk']: p(f"L_pv{w}:\ns_branch {(('L_padW','L_padM',KVB(1),KVB(1)) if CFG['padk']<3 else ('L_pv1','L_pv2','L_pv3','L_padW'))[w]}")
    p(f"L_av{w}:")
    for i,f in enumerate(first):
        if f<=1:
            for x in kreads(tiles[i],i&1): p(x)
    for x in vreads(tiles[0],0): p(x)
    p("s_waitcnt lgkmcnt(0)")
    for x in QK(0): p(x)
    p("s_nop 7\ns_nop 3")
    pend=False
    H=first[tiles.index(7)]
    H2=first[tiles.index(3)]
    Hs=[H,H2]+([first[tiles.index(1)]] if CFG['hs2'] and 1 in tiles else [])
    for u in range(18):
        S=SS[u&1]
        e=lambda i: p(f"v_exp_f32 v{S+i}, v{S+i}")
        c=lambda k: p(f"v_cvt_pk_bf16_f32 v{PP+k}, v{S+2*k}, v{S+2*k+1}")
        kr=[x for i,f in enumerate(first) if f==u+2 for x in kreads(tiles[i],i&1)]
        vr_=[x for i,f in enumerate(first) if f==u+1 for x in vreads(tiles[i],i&1)]
        late=(u+2 in Hs); pre=(u+3 in Hs); hk=Hs.index(u+2) if late else Hs.index(u+3) if pre else None
        assert not (late and pre)
        STAMP('u%d'%u)
        e(0); e(1)
        if u>0: p(PV(u-1,1))
        if u==CFG['xru']: xr_loads()
        if u==CFG['hdef']:
            p(f"v_mov_b32 v{vT+5}, 1\ns_waitcnt vmcnt(0)\ns_mov_b64 exec, 1\nds_add_u32 v{vT+4}, v{vT+5}\ns_mov_b64 exec, -1")
            STAMP('hack')
        if CFG['hs2'] and u==CFG['hs2u']:
            p(f"s_cmp_eq_u32 s{sHAL2}, 2\ns_cbranch_scc1 L_hb{w}\nL_hr{w}:")
        if CFG['lclr'] and u==CFG['lcu']:
            assert u<7
            p(f"s_waitcnt vmcnt(0)\ns_mov_b64 exec, 1\nds_add_u32 v{aFl}, v{vT+1} offset:{F_CC-F_G1}\ns_mov_b64 exec, -1")
        e(2)
        if not late:
            for x in kr: p(x)
        if pre: p(f"ds_read_b32 v{vT}, v{aFl} offset:{F_M+4*hk-F_G1}")
        e(3); c(0); c(1)
        if pend: p(f"s_waitcnt lgkmcnt({(len(kr) if not late else 0)+(1 if pre else 0)})")
        qk=QK(u+1) if u<17 else [None,None]
        if qk[0]: p(qk[0])
        e(4)
        if late:
            p(f"v_cmp_gt_u32 vcc, 1, v{vT}")
        e(5)
        if late:
            p(f"s_cbranch_vccnz L_g2w{w}{hk}\nL_g2r{w}{hk}:")
            for x in kr: p(x)
        for x in vr_: p(x)
        e(6); e(7); c(2); c(3)
        if qk[1]: p(qk[1])
        e(8); e(9); e(10); e(11)
        p(PV(u,0))
        c(4); c(5); e(12); e(13); e(14); e(15); c(6); c(7)
        pend=bool(kr or vr_ or pre)
        if u==H-1:
            p(f"s_cmp_eq_u32 s{cT0}, 0\ns_cbranch_scc1 L_ex{w}")
            exq=PV(u,1)
    p("s_nop 1")
    p(PV(17,1))
    p("s_branch L_afin")
    if CFG['hs2']:
        p(f"""L_hb{w}:
        s_waitcnt vmcnt(0)
        s_mov_b64 exec, 1
        buffer_store_dword v{vHF}, v{vHF+1}, {S4(sWS)}, s{sHFA} offen sc1
        s_mov_b64 exec, -1""")
        STAMP('hb')
        p(f"s_branch L_hr{w}")
    for hk in range(len(Hs)):
        p(f"L_g2w{w}{hk}:")
        p(f"v_mov_b32 v{vT+1}, {F_M+4*hk}")
        lds_wait(vT+1,vT,sT+17,'gt',1,0)
        p(f"s_branch L_g2r{w}{hk}")
    p(f"L_ex{w}:\n{exq}")
    if 99>CFG['xru']>=H: xr_loads()
    p("s_waitcnt lgkmcnt(0)\ns_branch L_afin")
    p(f";@slot{w}")
def att_fin():
    t=vT; A=sT+7
    if CFG['lay']:
        p(PG)
        if CFG['padk']: p("L_padW:\ns_branch "+(KVB(0) if CFG['padk']<3 else 'L_padM'))
    p("L_afin:")
    STAMP('aend')
    p(f"s_mov_b32 s{A}, {hex(f2u(2.0**-40))}\ns_mov_b32 s{A+1}, {hex(f2u(2.0**40)-f2u(2.0**-40))}")
    for q in range(2):
        O=OO[q]
        p(f"""v_cndmask_b32 v{t}, v{O+8}, v{O+12}, s[{sLO}:{sLO+1}]
        v_pk_add_f32 v[{t+2}:{t+3}], v[{O}:{O+1}], v[{O+2}:{O+3}]
        v_rcp_f32 v{t+1}, v{t}
        v_pk_add_f32 v[{t+4}:{t+5}], v[{O+4}:{O+5}], v[{O+6}:{O+7}]
        v_pk_add_f32 v[{t+6}:{t+7}], v[{O+8}:{O+9}], v[{O+10}:{O+11}]
        v_subrev_u32 v{t}, s{A}, v{t}
        v_pk_add_f32 v[{t+2}:{t+3}], v[{t+2}:{t+3}], v[{t+4}:{t+5}]
        v_cmp_lt_u32 s[{A+11}:{A+12}], s{A+1}, v{t}
        v_pk_add_f32 v[{t+2}:{t+3}], v[{t+2}:{t+3}], v[{t+6}:{t+7}]
        v_add_f32 v{t+2}, v{t+2}, v{t+3}""")
        p(f"v_cmp_class_f32 vcc, v{t+2}, v{aCLS}")
        for k in range(6): p(f"v_pk_mul_f32 {vr(O+2*k,2)}, {vr(O+2*k,2)}, {vr(t,2)} op_sel:[0,1] op_sel_hi:[1,1]")
        p(f"""s_or_b64 vcc, vcc, s[{A+11}:{A+12}]
        s_cbranch_scc1 L_afb{q}
        L_afr{q}:""")
        for k in range(6): p(f"v_cvt_pk_bf16_f32 v{O+k}, v{O+2*k}, v{O+2*k+1}")
        p(f"s_cmp_lg_u32 s{sOSC}, 0")
        st=[f"buffer_store_dwordx4 {vr(O,4)}, v{aO}, {S4(sWS)}, s{sOm[q]} offen", f"s_mov_b64 exec, s[{sLO}:{sLO+1}]",
            f"buffer_store_dwordx2 {vr(O+4,2)}, v{aO}, {S4(sWS)}, s{sOt[q]} offen offset:512", "s_mov_b64 exec, -1"]
        p(f"s_cbranch_scc1 L_osc{q}")
        for x in st: p(x+(" "+CFG['apol'] if x.startswith("buffer") else ""))
        p(f"s_branch L_osr{q}\nL_osc{q}:")
        for x in st: p(x+(" "+CFG['ospol'] if x.startswith("buffer") else ""))
        p(f"L_osr{q}:")
    p(f"""v_mov_b32 v{t}, {F_DONE}
    v_mov_b32 v{t+1}, 1
    s_mov_b64 exec, 1
    ds_add_u32 v{t}, v{t+1}
    s_mov_b64 exec, -1""")
    STAMP('ost')
aCLS=255; aFO=226; aFR=227
def att_cold():
    t=vT; A=sT+7; B=sT+8; N=sT+17; J=sT+18; CN=sT+19; PA=sT+20
    for q in range(2): p(f"L_afb{q}:\ns_cmp_lg_u32 s{sFB}, 0\ns_cbranch_scc1 L_afr{q}\ns_branch L_afb")
    p(f"L_afb:\ns_mov_b32 s{sFB}, 1\ns_waitcnt lgkmcnt(0)")
    S=SS[0]; MX=t+10; xa=t+11
    for q in range(2):
        lp=p.lab("fb"); nd=p.lab("fbnd"); nf=p.lab("fbnf"); p2=p.lab("fbp2"); nx=p.lab("fbnx"); ps=p.lab("fbps"); dn=p.lab("fbdn")
        for r in range(16): p(f"v_mov_b32 v{OO[q]+r}, 0")
        p(f"""v_mov_b32 v{MX}, {NINF}
        s_mov_b32 s{PA}, 0
        {ps}:""")
        if q==0: p(f"s_sub_u32 s{N}, 15, s{sWAVE}")
        else: p(f"s_add_u32 s{N}, 8, s{sWAVE}")
        p(f"""s_sub_u32 s{CN}, s{N}, 7
        s_cmp_eq_u32 s{cT0}, 0
        s_cselect_b32 s{CN}, s{CN}, 9
        s_mov_b32 s{J}, 0
        {lp}:
        s_lshr_b32 s{A}, s{N}, 1
        s_mul_i32 s{A}, s{A}, 5632
        s_bitcmp1_b32 s{N}, 0
        s_cselect_b64 vcc, -1, 0
        s_nop 0
        v_cndmask_b32 v{xa}, v{aKm}, v{aKm1}, vcc
        v_cndmask_b32 v{xa+1}, v{aKt}, v{aKt1}, vcc
        v_cndmask_b32 v{xa+2}, v{aV}, v{aV1}, vcc
        v_add_u32 v{xa}, s{A}, v{xa}
        v_add_u32 v{xa+1}, s{A}, v{xa+1}
        v_add_u32 v{xa+2}, s{A}, v{xa+2}
        ds_read_b128 {vr(KM[0],4)}, v{xa}
        ds_read_b64 {vr(KT[0],2)}, v{xa+1}
        s_mov_b64 exec, s[{sLO+2}:{sLO+3}]
        ds_read_b128 {vr(VV[0][0],4)}, v{xa+2}
        ds_read_b128 {vr(VV[0][1],4)}, v{xa+2} offset:640
        s_mov_b64 exec, -1
        s_waitcnt lgkmcnt(0)
        v_mfma_f32_32x32x16_bf16 {vr(S,16)}, {vr(KM[0],4)}, {vr(QM[q],4)}, 0
        v_mfma_f32_32x32x8_bf16 {vr(S,16)}, {vr(KT[0],2)}, {vr(QT[q],2)}, {vr(S,16)}
        v_mov_b32 v{xa}, {NINF}
        s_nop 11
        s_cmp_lg_u32 s{J}, 0
        s_cbranch_scc1 {nd}""")
        for r in range(16): p(f"v_cmp_eq_u32 vcc, 0, v{CD+r}\ns_nop 1\nv_cndmask_b32 v{S+r}, v{xa}, v{S+r}, vcc")
        p(f"{nd}:\ns_cmp_lg_u32 s{J}, 8\ns_cbranch_scc1 {nf}")
        for r in range(16): p(f"v_cmp_eq_u32 vcc, 0, v{CF+r}\ns_nop 1\nv_cndmask_b32 v{S+r}, v{xa}, v{S+r}, vcc")
        p(f"{nf}:\ns_cmp_lg_u32 s{PA}, 0\ns_cbranch_scc1 {p2}")
        for r in range(0,16,2): p(f"v_max3_f32 v{MX}, v{S+r}, v{S+r+1}, v{MX}")
        p(f"s_branch {nx}\n{p2}:")
        for r in range(16): p(f"v_sub_f32 v{S+r}, v{S+r}, v{MX}")
        for r in range(16): p(f"v_exp_f32 v{S+r}, v{S+r}")
        p("s_nop 0")
        for k in range(8): p(f"v_cvt_pk_bf16_f32 v{PP+k}, v{S+2*k}, v{S+2*k+1}")
        p("s_nop 1")
        for m in range(2): p(f"v_mfma_f32_32x32x16_bf16 {vr(OO[q],16)}, {vr(VV[0][m],4)}, {vr(PP+4*m,4)}, {vr(OO[q],16)}")
        p(f"""s_nop 11
        {nx}:
        s_sub_u32 s{N}, s{N}, 1
        s_add_u32 s{J}, s{J}, 1
        s_cmp_lt_u32 s{J}, s{CN}
        s_cbranch_scc1 {lp}
        s_cmp_lg_u32 s{PA}, 0
        s_cbranch_scc1 {dn}
        v_mov_b32 v{xa}, v{MX}
        s_mov_b32 s{PA}, 1
        s_nop 0
        v_permlane32_swap_b32 v{xa}, v{MX}
        s_nop 1
        v_max_f32 v{MX}, v{MX}, v{xa}
        s_branch {ps}
        {dn}:""")
    p("s_branch L_afin")

BF=28; AF=108; WACC=200; XR=176; WR_=186; aX2=196; aPS=197; aAL=198; aAR=199; SW=220; aL4=221; aPR=222; aKY=223; aCD=224
HP=40; HF_=50; LP=70; OP=80
sRT=sT+1; sOL=sT+2; sOR=sT+5; sXO=cXO; sPSO=sT+12; sRETRY=sT+13; sPRB=sT+14; sFLO=sT+16; sFRE=sT+18
def acc_init():
    for k in range(10): p(f"v_lshlrev_b32 v{WACC+2*k}, 16, v{XR+k}\nv_and_b32 v{WACC+2*k+1}, 0xffff0000, v{XR+k}")
def wo_pre1():
    t=vT; A=sT+7; B=sT+8
    wo_ids()
    p(f"""v_and_b32 v{t}, 15, v0
    v_lshrrev_b32 v{t+1}, 4, v0
    v_mul_u32_u24 v{aWR}, 40, v{t+1}
    v_mov_b32 v{t+3}, 1280
    v_mad_u32_u24 v{aX2}, v{t}, v{t+3}, v{aWR}
    s_lshl_b32 s{A}, s{sBLK}, 2
    s_add_u32 s{A}, s{A}, s{sWAVE}
    s_mul_i32 s{A}, s{A}, 20480
    s_mul_i32 s{cJ}, s{sJ}, 160
    s_add_u32 s{cXO}, s{A}, s{cJ}
    v_lshlrev_b32 v{aPS}, 7, v{t}
    v_lshl_add_u32 v{aPS}, v{t+1}, 5, v{aPS}
    v_lshlrev_b32 v{aFR}, 7, v{t}
    v_mul_u32_u24 v{t+2}, 640, v{t+1}
    v_bfe_u32 v{t+3}, v0, 2, 2
    v_mul_u32_u24 v{t+3}, 160, v{t+3}
    v_and_b32 v{t+4}, 3, v0
    v_mul_u32_u24 v{t+4}, 40, v{t+4}
    v_add3_u32 v{t+2}, v{t+2}, v{t+3}, v{t+4}
    s_mul_i32 s{A}, s{sHH}, 51200
    s_add_u32 s{B}, s{A}, {L_WO}
    v_add_u32 v{aAL}, s{B}, v{t+2}
    s_sub_u32 s{B}, {L_WO+51200}, s{A}
    v_add_u32 v{aAR}, s{B}, v{t+2}
    v_and_b32 v{t+2}, 7, v0
    v_mul_u32_u24 v{t+2}, 1280, v{t+2}
    v_bfe_u32 v{t+3}, v0, 3, 1
    v_lshl_add_u32 v{aPR}, v{t+3}, 7, v{t+2}""")
    if CFG['xdma']:
        assert 0<=CFG['xru']<99 and CFG['odn']==1
        p(f"""v_mul_u32_u24 v{t+2}, 6554, v0
        v_lshrrev_b32 v{t+2}, 16, v{t+2}
        v_mul_u32_u24 v{t+2}, 1120, v{t+2}
        v_lshl_add_u32 v{aXD}, v0, 4, v{t+2}
        s_mul_i32 s{B}, s{sWAVE}, 2560
        s_add_u32 s{B}, s{B}, {L_STG}
        v_mul_u32_u24 v{t+2}, 160, v{t}
        v_add3_u32 v{aXL}, v{t+2}, v{aWR}, s{B}
        v_add_u32 v{aWR}, {L_SA}, v{aWR}""")
    if CFG['wsp']:
        p(f"""s_and_b32 s{B}, s{sWAVE}, 1
        s_mul_i32 s{B}, s{B}, 25600
        v_add_u32 v{aAL}, s{B}, v{aAL}
        v_add_u32 v{aAR}, s{B}, v{aAR}
        s_lshr_b32 s{B}, s{sWAVE}, 1
        s_mul_i32 s{B}, s{B}, 10240
        s_add_u32 s{A}, s{A}, s{B}
        s_and_b32 s{B}, s{sWAVE}, 1
        s_lshl_b32 s{B}, s{B}, 10
        s_add_u32 s{A}, s{A}, s{B}
        s_add_u32 s{A}, s{A}, {L_WO}
        v_lshlrev_b32 v{aL4}, 4, v0
        v_add_u32 v{aPR}, s{A}, v{aL4}
        v_add_u32 v{aL4}, 4096, v{aL4}""")
def wo_pre2():
    acc_init()
def probe(soff,cnt,first=True):
    t=vT
    lp=p.lab("pb"); ok=p.lab("pbok"); md=p.lab("pbm")
    p(f"s_mov_b32 s{cnt}, {SPIN}")
    if not first: p(f"s_branch {md}")
    p(f"""{lp}:
    buffer_load_dwordx3 v[{t+4}:{t+6}], v{aPR}, {S4(sWS)}, s{soff} offen offset:512 sc1""")
    if not first: p(f"{md}:")
    p(f"""s_waitcnt vmcnt(0)
    v_max_u32 v{t+4}, v{t+4}, v{t+6}
    v_cmp_eq_u32 vcc, -1, v{t+4}
    s_nop 0
    s_cbranch_vccz {ok}""")
    spin(cnt,lp,ok)
    p(f"s_branch {lp}\n{ok}:")
def red3(a,b,c,d):
    p(f"""v_mov_b32 v{d}, v{c}
    s_nop 0
    v_permlane32_swap_b32 v{a}, v{b}
    v_permlane32_swap_b32 v{c}, v{d}
    s_nop 0
    v_add_f32 v{a}, v{a}, v{b}
    v_add_f32 v{c}, v{c}, v{d}
    s_nop 1
    v_permlane16_swap_b32 v{a}, v{c}
    s_nop 0
    v_add_f32 v{a}, v{a}, v{c}
    v_add_f32 v{c}, v{a}, 0
    s_nop 1
    v_permlane16_swap_b32 v{a}, v{c}
    s_nop 0
    v_mov_b32 v{b}, v{a}
    s_nop 1
    v_permlane32_swap_b32 v{a}, v{b}""")
def wo_scal():
    A=sT+7; B=sT+8
    wo_ids()
    p(f"""s_lshl_b32 s{sRT}, s{sBLK}, 2
    s_add_u32 s{sRT}, s{sRT}, s{sWAVE}
    s_mul_i32 s{A}, s{sRT}, 20480
    s_mul_i32 s{B}, s{sMODE}, {OB2-OB}
    s_add_u32 s{A}, s{A}, s{B}
    s_add_u32 s{A}, s{A}, {OB}
    s_mul_i32 s{B}, s{sHH}, 10240
    s_add_u32 s{sOL}, s{A}, s{B}
    s_add_u32 s{sOL+1}, s{sOL}, 4096
    s_add_u32 s{sOL+2}, s{sOL}, 8192
    s_add_u32 s{A}, s{A}, 10240
    s_sub_u32 s{sOR}, s{A}, s{B}
    s_lshl_b32 s{sPSO}, s{sRT}, 11
    s_add_u32 s{sPSO}, s{sPSO}, {PS}
    s_mov_b32 s{sRETRY}, {1<<16}
    s_add_u32 s{sOR+1}, s{sOR}, 4096
    s_add_u32 s{sPRB}, s{sOR}, 8192""")
    if CFG['wsp']:
        p(f"""s_and_b32 s{A}, s{sWAVE}, 1
        s_mul_i32 s{B}, s{A}, 5120
        s_add_u32 s{sOL}, s{sOL}, s{B}
        s_add_u32 s{sOR}, s{sOR}, s{B}
        s_mul_i32 s{B}, s{A}, -40960
        s_add_u32 s{B}, s{B}, 20480
        s_add_u32 s{sOL+1}, s{sOL}, s{B}
        s_add_u32 s{sOR+1}, s{sOR}, s{B}""")
def wo_flags():
    A=sT+7; B=sT+8
    p(f"""s_lshr_b32 s{A}, s{sRT}, 1
    s_lshl_b32 s{A}, s{A}, 12
    s_lshl_b32 s{B}, s{sHH}, 11
    s_add_u32 s{A}, s{A}, {FO}
    s_add_u32 s{sFLO}, s{A}, s{B}
    s_xor_b32 s{sFRE}, s{sFLO}, 2048""")
def wo_gemm():
    t=vT; A=sT+7; B=sT+8; C=sT+17; MXS=t+8
    sROFF=[sOR,sOR+1,sPRB]
    LA=CFG['wla']; WE=CFG['wwe']
    LG=[]
    def af(m): return AF+4*(m%15)
    def aread(m):
        s_,t_=divmod(m,5)
        for rd in range(2):
            p(f"ds_read_b64_tr_b16 {vr(af(m)+2*rd,2)}, v{aAL if s_<10 else aAR} offset:{(s_%10)*5120+rd*2560+8*t_}"); LG.append(m)
    def lgw(m):
        k=[i for i,x in enumerate(LG) if x!='x' and x<=m]
        if not k: return None
        n=len(LG)-1-max(k); del LG[:max(k)+1]; return n
    def bload(s_):
        so=(sOL+(s_%10)//4) if s_<10 else sROFF[(s_%10)//4]
        return f"buffer_load_dwordx4 {vr(BF+4*s_,4)}, v{aLin}, {S4(sWS)}, s{so} offen offset:{(s_%10%4)*1024} sc1"
    def cold(f):
        n0=len(p.L); f(); COLD.append("\n".join(p.L[n0:])); del p.L[n0:]
    p(f"s_cmp_lg_u32 s{sMODE}, 0\ns_cbranch_scc1 L_plsl\nL_plr:")
    def slow():
        p("L_plsl:"); wo_flags()
        p(f"""v_mov_b32 v{t+1}, s{sTAG}
        s_mov_b64 exec, 3
        s_waitcnt vmcnt(0)
        buffer_store_dword v{t+1}, v{aFO}, {S4(sWS)}, 0 offen sc1
        s_mov_b64 exec, -1""")
        flag_poll(aFR,t+4,sFLO,C); flag_poll(aFR,t+4,sFRE,C); p("s_branch L_plr")
    cold(slow)
    NI=CFG['oini']
    def dn():
        if CFG['odn']:
            p(f"v_mov_b32 v{t}, {F_DONE}"); lds_wait(t,t+1,C,'gt',4,0)
    if CFG['oprb']:
        p(f"buffer_load_dwordx3 v[{t+4}:{t+6}], v{aPR}, {S4(sWS)}, s{sOL} offen offset:512 sc1\ns_waitcnt vmcnt(5)")
    else:
        dn()
        for s_ in range(NI): p(bload(s_))
        p(f"s_waitcnt vmcnt({NI+4})")
    acc_init()
    p(f"v_mov_b32 v{t}, {F_WOR}")
    STAMP('fo')
    lds_wait(t,t+1,C,'gt',2,0)
    p(f"ds_read_b32 v{SW}, v{t} offset:{L_SWS-F_WOR}"); LG.append('x')
    STAMP('wor')
    if CFG['oprb']: dn()
    for m in range(LA): aread(m)
    p(f"v_mov_b32 v{t+7}, {F_WO2}\ns_mov_b32 s{sRETRY}, {SPIN}")
    if CFG['oprb']:
        probe(sOL,C,first=False)
        STAMP('prb')
        for s_ in range(NI): p(bload(s_))
    G={}; a=0
    for n in CFG['ogr']: G[a]=a+n; a+=n
    assert a==20 and 10 in G
    def chain(a,b):
        return [f"v_max_u32 v{MXS}, v{BF+4*a}, v{BF+4*a+2}"]+[f"v_max3_u32 v{MXS}, v{BF+4*k}, v{BF+4*k+2}, v{MXS}" for k in range(a+1,b)]
    cmp_=f"v_cmp_eq_u32 vcc, -1, v{MXS}"
    def retry(a,b):
        e=20 if (CFG['opoll']=='all' or a>=10) else 10
        def f():
            p(f"L_og{a}:\ns_sub_u32 s{sRETRY}, s{sRETRY}, 1\ns_cbranch_scc1 L_ogr{a}")
            sl=CFG['osl'][a//10]
            if sl: p(f"s_sleep {sl}")
            if CFG['opoll']=='probe' and a==0: probe(sOL,C)
            for k in range(a,e): p(bload(k))
            p(f"s_waitcnt vmcnt({20-b if e==20 else 0})")
            for x in chain(a,b): p(x)
            p(f"{cmp_}\ns_nop 0\ns_cbranch_vccnz L_og{a}\ns_branch L_ogr{a}")
        cold(f)
    last=lambda s_: (NI if s_<NI else 20)-1
    p(f"s_waitcnt vmcnt({last(0)+1-G[0]})")
    for x in chain(0,G[0]): p(x)
    p(f"{cmp_}\ns_nop 0\ns_cbranch_vccnz L_og0\nL_ogr0:"); retry(0,G[0])
    STAMP('pl')
    for m in range(100):
        s_,t_=divmod(m,5)
        nx=s_+1 if s_+1 in G else None
        if m==50:
            STAMP('pr')
            if 'PR' in (CFG['gstart'],CFG['dstart'],CFG['dgate'],CFG['mtg']):
                p(f"""s_mov_b64 exec, 1
                v_mov_b32 v{t+4}, {F_PR}
                v_mov_b32 v{t+5}, 1
                ds_add_u32 v{t+4}, v{t+5}
                s_mov_b64 exec, -1"""); LG.append('x')
        w=[]
        if nx is not None and t_==1: w.append(f"vmcnt({(20 if m>CFG['orem'] else NI)-G[nx]}"); assert G[nx]<=NI or m>CFG['orem']
        if m%WE==0:
            n=lgw(m+WE-1)
            if n is not None: w.append(f"lgkmcnt({n}")
        if w: p("s_waitcnt "+") ".join(w)+")")
        a_=vr(WACC+4*t_,4)
        p(f"v_mfma_f32_16x16x32_bf16 {a_}, {vr(af(m),4)}, {vr(BF+4*s_,4)}, {a_}")
        if NI<20 and m==CFG['orem']:
            for k in range(NI,20): p(bload(k))
        if m+LA==50-10: p(f"ds_read_b32 v{t+6}, v{t+7}"); LG.append('x')
        if m+LA==50:
            assert nx is None or t_<3
            p(f"v_cmp_gt_u32 vcc, 2, v{t+6}\ns_nop 0\ns_cbranch_vccnz L_wo2w\nL_wo2r:")
            def f():
                p("L_wo2w:"); lds_wait(t+7,t+6,C,'gt',2,0); p("s_branch L_wo2r")
            cold(f)
        if m+LA<100: aread(m+LA)
        if nx is not None:
            ch=chain(nx,G[nx]); k=-(-len(ch)//2)
            if t_==1:
                for x in ch[:k]: p(x)
            if t_==2:
                for x in ch[k:]: p(x)
            if t_==3: p(cmp_)
            if t_==4:
                if nx==10: STAMP('loc')
                p(f"s_cbranch_vccnz L_og{nx}\nL_ogr{nx}:"); retry(nx,G[nx])
    p(f"""v_mov_b32 v{t}, 0x3f803f80
    v_mov_b32 v{t+2}, 0
    v_mov_b32 v{t+3}, 0
    v_mov_b32 v{t+4}, 0
    s_nop 3""")
ACC2=148; aXW=222; aPQ=172; aBP=173
def wo_gemm2():
    t=vT; A=sT+7; B=sT+8; C=sT+17; MXS=t+8
    LA=CFG['wla2']
    LG=[]
    def af(m): return AF+4*(m%10)
    def aread(m,rds=(0,1)):
        s_,t_=divmod(m,5)
        for rd in rds:
            if CFG['wnoa'] and m>=LA and rd<CFG['wnoa']: continue
            p(f"ds_read_b64_tr_b16 {vr(af(m)+2*rd,2)}, v{aAL if s_<5 else aAR} offset:{(s_%5)*5120+rd*2560+8*t_}"); LG.append(m)
    def lgw(m):
        k=[i for i,x in enumerate(LG) if x!='x' and x<=m]
        if not k: return None
        n=len(LG)-1-max(k); del LG[:max(k)+1]; return n
    def bload(s_,us=(0,1)):
        for u in us:
            so=(sOL if s_<5 else sOR)+u
            p(f"buffer_load_dwordx4 {vr(BF+8*s_+4*u,4)}, v{aLin if s_%5<4 else aL4}, {S4(sWS)}, s{so} offen offset:{(s_%5%4)*1024} {CFG['ldo'] if s_<5 else 'sc1'}")
    def cold(f):
        n0=len(p.L); f(); COLD.append("\n".join(p.L[n0:])); del p.L[n0:]
    p(f"s_cmp_lg_u32 s{sMODE}, 0\ns_cbranch_scc1 L_plsl\nL_plr:")
    def slow():
        p("L_plsl:"); wo_flags()
        p(f"""v_mov_b32 v{t+1}, s{sTAG}
        s_mov_b64 exec, 3
        s_waitcnt vmcnt(0)
        buffer_store_dword v{t+1}, v{aFO}, {S4(sWS)}, 0 offen sc1
        s_mov_b64 exec, -1""")
        flag_poll(aFR,t+4,sFLO,C); flag_poll(aFR,t+4,sFRE,C); p("s_branch L_plr")
    cold(slow)
    XL=CFG['xru']==99
    XF_=lambda k: (230+2*k if k<8 else 168+2*(k-8))
    p(f"v_mov_b32 v{t}, {F_DONE}")
    if not XL: p("s_waitcnt vmcnt(4)")
    if CFG['xdma']:
        for k in range(5): p(f"ds_read_b64 {vr(XR+2*k,2)}, v{aXL} offset:{8*k}")
        for k in range(5): p(f"ds_read_b64 {vr(WR_+2*k,2)}, v{aWR} offset:{8*k}")
    if CFG['odn']==2 and not XL: acc_init()
    if CFG['odn']: lds_wait(t,t+1,C,'gt',ND,0)
    for s_ in range(5): bload(s_)
    if CFG['odn']!=2 and not XL: acc_init()
    p(f"v_mov_b32 v{t}, {F_WOR}")
    STAMP('fo')
    lds_wait(t,t+1,C,'gt',2,0)
    p(f"ds_read_b32 v{SW}, v{t} offset:{L_SWS-F_WOR}"); LG.append('x')
    STAMP('wor')
    for m in range(LA): aread(m)
    if CFG['psq']: p(f"v_lshrrev_b32 v{t+7}, 2, v0\nv_and_b32 v{aPQ}, 3, v0\nv_lshlrev_b32 v{aPQ}, 4, v{aPQ}\nv_lshl_add_u32 v{aPQ}, v{t+7}, 7, v{aPQ}")
    p(f"""v_mov_b32 v{t+7}, {F_WO2}
    s_mov_b32 s{sRETRY}, {SPIN}
    s_lshl_b32 s{A}, s{sWAVE}, 2
    s_add_u32 s{A}, s{A}, {F_X}
    v_mov_b32 v{t+10}, s{A}
    v_xor_b32 v{t+11}, 4, v{t+10}
    v_mov_b32 v{t+12}, 1""")
    G={}; a=0
    for n in CFG['ogr2']: G[a]=a+n; a+=n
    assert a==10 and 5 in G
    def chain(a,b):
        return [f"v_max_u32 v{MXS}, v{BF+8*a}, v{BF+8*a+2}"]+[f"v_max3_u32 v{MXS}, v{BF+4*k}, v{BF+4*k+2}, v{MXS}" for k in range(2*a+1,2*b)]
    cmp_=f"v_cmp_eq_u32 vcc, -1, v{MXS}"
    def retry(a,b):
        e=10 if a>=5 else 5
        def f():
            p(f"L_og{a}:\ns_sub_u32 s{sRETRY}, s{sRETRY}, 1\ns_cbranch_scc1 L_ogr{a}")
            sl=CFG['osl'][a//5]
            if sl: p(f"s_sleep {sl}")
            for k in range(a,e): bload(k)
            p(f"s_waitcnt vmcnt({20-2*b if e==10 and not (XL and CFG['xrd']>=0) else 0})")
            for x in chain(a,b): p(x)
            p(f"{cmp_}\ns_nop 0\ns_cbranch_vccnz L_og{a}\ns_branch L_ogr{a}")
        cold(f)
    RM={}
    for j in range(10): RM.setdefault(max(-1,int(CFG['orem2'][0]+j*CFG['orem2'][1])),[]).append(j)
    assert max(RM)<=24
    nis=10
    for j in RM.get(-1,()): bload(5+j//2,(j&1,)); nis+=1
    p(f"s_waitcnt vmcnt({nis-2*G[0]})")
    for x in chain(0,G[0]): p(x)
    p(f"{cmp_}\ns_nop 0\ns_cbranch_vccnz L_og0\nL_ogr0:"); retry(0,G[0])
    STAMP('pl')
    def mf(m,u):
        s_,t_=divmod(m,5)
        a_=vr((WACC,ACC2)[u]+4*t_,4)
        p(f"v_mfma_f32_16x16x32_bf16 {a_}, {vr(af(m),4)}, {vr(BF+8*s_+4*u,4)}, {0 if (u or XL) and s_==0 else a_}")
    WE=CFG['wwe2']
    mX=max(RM)+CFG['xrd']; nx_=0; nxat=0
    if XL and mX<0: xr_loads(); nx_=6; nxat=nis
    for m in range(45):
        s_,t_=divmod(m,5)
        nx=s_+1 if s_+1 in G else None
        if m==25:
            STAMP('pr')
            p(f"""s_mov_b64 exec, 1
            ds_add_u32 v{t+7}, v{t+12} offset:{F_LD-F_WO2}"""); LG.append('x')
            if CFG['prm']==25 and 'PR' in (CFG['gstart'],CFG['dstart'],CFG['dgate'],CFG['mtg']):
                p(f"v_mov_b32 v{t+4}, {F_PR}\nds_add_u32 v{t+4}, v{t+12}"); LG.append('x')
            p("s_mov_b64 exec, -1")
        if m==CFG['prm']!=25 and 'PR' in (CFG['gstart'],CFG['dstart'],CFG['dgate'],CFG['mtg']):
            p(f"s_mov_b64 exec, 1\nds_add_u32 v{t+7}, v{t+12} offset:{F_PR-F_WO2+65536 if F_PR<F_WO2 else F_PR-F_WO2}\ns_mov_b64 exec, -1" if 0 else f"s_mov_b64 exec, 1\nv_mov_b32 v{t+4}, {F_PR}\nds_add_u32 v{t+4}, v{t+12}\ns_mov_b64 exec, -1"); LG.append('x')
        w=[]
        if nx is not None and t_==1: w.append(f"vmcnt({nis+(nx_ if 2*G[nx]<=nxat else 0)-2*G[nx]}"); assert nis>=2*G[nx]
        n=lgw(m+WE-1) if m%WE==0 else None
        if n is not None: w.append(f"lgkmcnt({n}")
        if w: p("s_waitcnt "+") ".join(w)+")")
        mf(m,1)
        if m==25-2*LA-1: p(f"ds_read_b32 v{t+6}, v{t+7}"); LG.append('x')
        if m+LA==25:
            assert nx is None or t_<3
            p(f"v_cmp_gt_u32 vcc, 2, v{t+6}\ns_nop 0\ns_cbranch_vccnz L_wo2w\nL_wo2r:")
            def f():
                p("L_wo2w:"); lds_wait(t+7,t+6,C,'gt',2,0); p("s_branch L_wo2r")
            cold(f)
        if m==44-LA: p(f"ds_read_b32 v{t+6}, v{t+7} offset:{F_LD-F_WO2}"); LG.append('x')
        if m+LA<50: aread(m+LA,(0,) if CFG['wsplit'] else (0,1))
        mf(m,0)
        if m+LA<50 and CFG['wsplit']: aread(m+LA,(1,))
        for j in RM.get(m,()): bload(5+j//2,(j&1,)); nis+=1
        if XL and m==mX: xr_loads(); nx_=6; nxat=nis
        if XL and m==40: p("s_waitcnt vmcnt(0)")
        if XL and 40<=m<45:
            for k in (2*(m-40),2*(m-40)+1): p(f"v_lshlrev_b32 v{XF_(k)}, 16, v{XR+k}\nv_and_b32 v{XF_(k)+1}, 0xffff0000, v{XR+k}")
        if CFG['mtg']=='RL' and m==max(RM)+CFG['rld']:
            p(f"s_mov_b64 exec, 1\nv_mov_b32 v{t+4}, {F_H2}\nds_add_u32 v{t+4}, v{t+12}\ns_mov_b64 exec, -1"); LG.append('x')
        if nx is not None:
            ch=chain(nx,G[nx]); k=-(-len(ch)//2)
            if t_==1:
                for x in ch[:k]: p(x)
            if t_==2:
                for x in ch[k:]: p(x)
            if t_==3: p(cmp_)
            if t_==4:
                if nx==5: STAMP('loc')
                p(f"s_cbranch_vccnz L_og{nx}\nL_ogr{nx}:"); retry(nx,G[nx])
                STAMP('og%d'%nx)
    assert LA>=5 and 9 not in G
    for m in range(45,50):
        n=lgw(m)
        if n is not None: p(f"s_waitcnt lgkmcnt({n})")
        mf(m,1)
        if m==45:
            p(f"v_cmp_gt_u32 vcc, 4, v{t+6}\nv_mov_b32 v{t}, 0x3f803f80\ns_cbranch_vccnz L_ldw\nL_ldr:")
            def f():
                p(f"L_ldw:\nv_add_u32 v{t+7}, {F_LD-F_WO2}, v{t+7}"); lds_wait(t+7,t+6,C,'gt',4,0); p("s_branch L_ldr")
            cold(f)
    p(f"""v_mov_b32 v{t+2}, 0
    v_mov_b32 v{t+3}, 0
    v_mov_b32 v{t+4}, 0
    v_xor_b32 v{t+5}, 1024, v{aXW}""")
    for k in range(5):
        p(f"ds_write_b128 v{aXW}, {vr(ACC2+4*k,4)} offset:{2048*k}")
        mf(45+k,0)
    lp=p.lab("xw"); ok=p.lab("xok")
    STAMP('xw')
    p(f"""ds_write_b32 v{t+10}, v{t+12}
    s_mov_b32 s{C}, {SPIN*4}""")
    if XL:
        md=p.lab("xwm")
        p(f"ds_read_b32 v{t+6}, v{t+11}")
        for k in range(5): p(f"ds_read_b128 {vr(BF+4*k,4)}, v{t+5} offset:{2048*k}")
        for k in range(10): p(f"v_pk_add_f32 {vr(WACC+2*k,2)}, {vr(WACC+2*k,2)}, {vr(XF_(k),2)}")
        p(f"s_branch {md}")
    p(f"""{lp}:
    ds_read_b32 v{t+6}, v{t+11}""")
    for k in range(5): p(f"ds_read_b128 {vr(BF+4*k,4)}, v{t+5} offset:{2048*k}")
    if XL: p(f"{md}:")
    p(f"""s_waitcnt lgkmcnt(5)
    v_cmp_eq_u32 vcc, 0, v{t+6}
    s_nop 0
    s_cbranch_vccz {ok}""")
    spin(C,lp,ok)
    p(f"s_waitcnt lgkmcnt(0)\ns_branch {lp}\n{ok}:")
    for k in range(5):
        p(f"s_waitcnt lgkmcnt({4-k})")
        for j in range(2): p(f"v_pk_add_f32 {vr(WACC+4*k+2*j,2)}, {vr(WACC+4*k+2*j,2)}, {vr(BF+4*k+2*j,2)}")
def wo_gemm_old():
    t=vT; A=sT+7; B=sT+8; C=sT+17; MXS=t+8
    wo_scal(); wo_flags()
    p("s_waitcnt vmcnt(4)")
    acc_init()
    p(f"""v_mov_b32 v{t}, {F_WOR}
    v_mov_b32 v{t+1}, s{sTAG}
    s_cmp_eq_u32 s{sOSC}, 0
    s_cbranch_scc1 L_nofo
    s_mov_b64 exec, 3
    s_waitcnt vmcnt(0)
    buffer_store_dword v{t+1}, v{aFO}, {S4(sWS)}, 0 offen sc1
    s_mov_b64 exec, -1
    L_nofo:""")
    STAMP('fo')
    lds_wait(t,t+1,C,'gt',2,0)
    p(f"""ds_read_b32 v{SW}, v{t} offset:{L_SWS-F_WOR}
    L_wo:""")
    STAMP('wor')
    sROFF=[sOR,sOR+1,sPRB]
    LA=CFG['wla']; WE=CFG['wwe']
    LG=[]
    def af(m): return AF+4*(m%15)
    def aread(m):
        s_,t_=divmod(m,5)
        for rd in range(2):
            p(f"ds_read_b64_tr_b16 {vr(af(m)+2*rd,2)}, v{aAL if s_<10 else aAR} offset:{(s_%10)*5120+rd*2560+8*t_}"); LG.append(m)
    def lgw(m):
        k=[i for i,x in enumerate(LG) if x!='x' and x<=m]
        if not k: return None
        n=len(LG)-1-max(k); del LG[:max(k)+1]; return n
    def bload(s_):
        so=(sOL+(s_%10)//4) if s_<10 else sROFF[(s_%10)//4]
        return f"buffer_load_dwordx4 {vr(BF+4*s_,4)}, v{aLin}, {S4(sWS)}, s{so} offen offset:{(s_%10%4)*1024} sc1"
    for m in range(LA): aread(m)
    p(f"v_mov_b32 v{MXS}, 0\nv_mov_b32 v{t+7}, {F_WO2}")
    p(f"s_cmp_lg_u32 s{sMODE}, 0\ns_cbranch_scc1 L_plsl")
    probe(sOL,C)
    p("L_plr:")
    n0=len(p.L)
    p("L_plsl:"); flag_poll(aFR,t+4,sFLO,C); p("s_branch L_plr")
    COLD.append("\n".join(p.L[n0:])); del p.L[n0:]
    STAMP('pl')
    for s_ in range(10): p(bload(s_))
    p(f"buffer_load_dword v{t+4}, v{aFR}, {S4(sWS)}, s{sFRE} offen sc1")
    for m in range(100):
        s_,t_=divmod(m,5)
        if m==50:
            STAMP('loc')
            flag_poll(aFR,t+4,sFRE,C,first=False)
            STAMP('pr')
            for k in range(10,20): p(bload(k))
            if 'PR' in (CFG['gstart'],CFG['dstart'],CFG['dgate'],CFG['mtg']):
                p(f"""s_mov_b64 exec, 1
                v_mov_b32 v{t+4}, {F_PR}
                v_mov_b32 v{t+5}, 1
                ds_add_u32 v{t+4}, v{t+5}
                s_mov_b64 exec, -1"""); LG.append('x')
        w=[]
        if t_==0: w.append(f"vmcnt({(10-s_) if s_<10 else (19-s_)}")
        if m%WE==0:
            n=lgw(m+WE-1)
            if n is not None: w.append(f"lgkmcnt({n}")
        if w: p("s_waitcnt "+") ".join(w)+")")
        a_=vr(WACC+4*t_,4)
        p(f"v_mfma_f32_16x16x32_bf16 {a_}, {vr(af(m),4)}, {vr(BF+4*s_,4)}, {a_}")
        if m+LA==50-10: p(f"ds_read_b32 v{t+6}, v{t+7}"); LG.append('x')
        if m+LA==50:
            p(f"v_cmp_gt_u32 vcc, 2, v{t+6}\ns_nop 0\ns_cbranch_vccnz L_wo2w\nL_wo2r:")
            n0=len(p.L)
            p("L_wo2w:"); lds_wait(t+7,t+6,C,'gt',2,0); p("s_branch L_wo2r")
            COLD.append("\n".join(p.L[n0:])); del p.L[n0:]
        if m+LA<100: aread(m+LA)
        if t_==0 and s_<10: p(f"v_max3_u32 v{MXS}, v{BF+4*s_}, v{BF+4*s_+2}, v{MXS}")
    p(f"""v_cmp_eq_u32 vcc, -1, v{MXS}
    v_mov_b32 v{t}, 0x3f803f80
    v_mov_b32 v{t+2}, 0
    v_mov_b32 v{t+3}, 0
    v_mov_b32 v{t+4}, 0
    s_cbranch_vccnz L_woredo
    L_wook:""")
    COLD.append(f"L_woredo:\ns_sub_u32 s{sRETRY}, s{sRETRY}, 1\ns_cbranch_scc1 L_wook\ns_nop 7")
    q=P();
    COLD.append("\n".join(f"v_lshlrev_b32 v{WACC+2*k}, 16, v{XR+k}\nv_and_b32 v{WACC+2*k+1}, 0xffff0000, v{XR+k}" for k in range(10))+"\ns_branch L_wo")
def wo_main():
    t=vT; A=sT+7; B=sT+8; C=sT+17
    (wo_gemm2 if CFG['wsp'] else wo_gemm if CFG['osent'] else wo_gemm_old)()
    STAMP('wend')
    for k in range(10): p(f"v_cvt_pk_bf16_f32 v{HP+k}, v{WACC+2*k}, v{WACC+2*k+1}")
    for k in range(10):
        p(f"""v_dot2_f32_bf16 v{t+2}, v{HP+k}, v{t}, v{t+2}
        v_dot2_f32_bf16 v{t+4}, v{HP+k}, v{HP+k}, v{t+4}
        v_dot2_f32_bf16 v{t+3}, v{HP+k}, v{WR_+k}, v{t+3}""")
    p(f"""s_lshl_b32 s{A}, s{sJ}, 4
    s_add_u32 s{A}, s{A}, s{sPSO}""")
    red3(t+2,t+3,t+4,t+5)
    p(f"""v_mov_b32 v{t+5}, s{sTAG}
    s_mov_b64 exec, 0xffff
    s_cmp_lg_u32 s{sMODE}, 0
    s_cbranch_scc1 L_pssc
    buffer_store_dwordx4 {vr(t+2,4)}, v{aPS}, {S4(sWS)}, s{A} offen
    L_psr:""")
    if 'WE' in (CFG['gstart'],CFG['g2nd'][0],CFG['mtg']): p(f"s_mov_b64 exec, 1\nv_mov_b32 v{t+10}, {F_SCP}\nv_mov_b32 v{t+11}, 1\nds_add_u32 v{t+10}, v{t+11}")
    p("s_mov_b64 exec, -1")
    COLD.append(f"L_pssc:\nbuffer_store_dwordx4 {vr(t+2,4)}, v{aPS}, {S4(sWS)}, s{A} offen sc1\ns_branch L_psr")
    STAMP('ps')
    G=t+10
    lp=p.lab("ps"); ok=p.lab("psok"); md=p.lab("psm")
    Q=CFG['psq']
    ld=f"""buffer_load_dwordx4 {vr(G,4)}, v{aPQ if Q else aPS}, {S4(sWS)}, s{sPSO} offen sc1
    buffer_load_dwordx4 {vr(G+4,4)}, v{aPQ if Q else aPS}, {S4(sWS)}, s{sPSO} offen offset:{64 if Q else 16} sc1"""
    p(ld)
    for k in range(10): p(f"v_lshlrev_b32 v{HF_+2*k}, 16, v{HP+k}\nv_and_b32 v{HF_+2*k+1}, 0xffff0000, v{HP+k}")
    if CFG['dbg']:
        p(f"s_add_u32 s{A}, s{sXO}, {HB}")
        for o,n in ((0,4),(4,4),(8,2)): p(f"buffer_store_dwordx{n} {vr(HP+o,n)}, v{aX2}, {S4(sWS)}, s{A} offen offset:{4*o}")
    p(f"""s_lshl_b32 s{A}, s{sRT}, 4
    s_sub_u32 s{A}, 2047, s{A}
    {f"v_lshrrev_b32 v{t}, 2, v0" if Q else f"v_and_b32 v{t}, 15, v0"}
    v_sub_u32 v{t+9}, s{A}, v{t}
    v_lshlrev_b32 v{t+9}, 3, v{t+9}
    s_lshl_b32 s{A}, s{sWAVE}, 6
    s_add_u32 s{A}, s{A}, {L_KEYS}
    v_lshl_add_u32 v{aKY}, v{t}, 2, s{A}
    v_and_b32 v{t}, {3 if Q else 48}, v0
    v_lshlrev_b32 v{t}, {6 if Q else 2}, v{t}
    v_add_u32 v{t+8}, {L_KEYS}, v{t}
    {f"v_and_b32 v{t}, 15, v0" if Q else ""}
    {f"v_lshlrev_b32 v{aBP}, 4, v{t}" if Q else ""}
    s_mov_b32 s{C}, {SPIN}
    s_branch {md}
    {PG if CFG['lay'] else ""}
    {"L_padM:" if CFG['lay'] and CFG['padk'] else ""}
    {"s_branch "+KVB(0) if CFG['lay'] and CFG['padk'] else ""}
    {lp}:
    {ld}
    {md}:
    s_waitcnt vmcnt(0)
    v_cmp_ne_u32 vcc, s{sTAG}, v{G+3}
    v_cmp_ne_u32 s[{sT+14}:{sT+15}], s{sTAG}, v{G+7}
    v_pk_add_f32 {vr(t+4,2)}, {vr(G,2)}, {vr(G+4,2)}
    v_add_f32 v{t+6}, v{G+2}, v{G+6}
    s_or_b64 vcc, vcc, s[{sT+14}:{sT+15}]
    s_cbranch_scc0 {ok}""")
    spin(C,lp,ok)
    p(f"""s_branch {lp}
    {ok}:""")
    STAMP('psr'); COUNT('npsr',C,SPIN)
    if 'PS' in (CFG['g2nd'][0],CFG['gstart'],CFG['dstart'],CFG['dgate'],CFG['mtg']): p(f"""s_mov_b64 exec, 1
    v_mov_b32 v{G}, {F_PS}
    v_mov_b32 v{G+1}, 1
    ds_add_u32 v{G}, v{G+1}
    s_mov_b64 exec, -1""")
    M=t+4
    if Q:
        for qp in ("[1,0,3,2]","[2,3,0,1]"):
            for k in range(3): p(f"v_add_f32_dpp v{M+k}, v{M+k}, v{M+k} quad_perm:{qp} row_mask:0xf bank_mask:0xf")
    else: red3(M,M+1,M+2,M+3)
    p(f"""v_mul_f32 v{M}, {1/640!r}, v{M}
    v_mul_f32 v{M+2}, {1/640!r}, v{M+2}
    v_fma_f32 v{M+2}, -v{M}, v{M}, v{M+2}
    v_max_f32 v{M+2}, 0, v{M+2}""")
    bf16r(M+2,M+2)
    p(f"v_add_f32 v{M+2}, 0x3727c5ac, v{M+2}")
    bf16r(M+2,M+2)
    p(f"v_sqrt_f32 v{M+2}, v{M+2}")
    bf16r(M,M)
    bf16r(M+2,M+2)
    RS=t+2
    p(f"""v_rcp_f32 v{RS}, v{M+2}
    v_fma_f32 v{M+1}, -v{M}, v{SW}, v{M+1}
    v_mul_f32 v{M+1}, v{M+1}, v{RS}
    v_cvt_pk_bf16_f32 v{M+1}, v{M+1}, v{M+1}
    v_mul_f32 v{RS+1}, -v{M}, v{RS}
    v_ashrrev_i32 v{M+2}, 31, v{M+1}
    v_or_b32 v{M+2}, 0x80000000, v{M+2}
    v_xor_b32 v{M+1}, v{M+1}, v{M+2}
    v_and_b32 v{M+1}, 0xffff0000, v{M+1}
    v_or_b32 v{KEY}, v{M+1}, v{t+9}
    ds_write_b32 v{aKY}, v{KEY}""")
    K16=AF
    lp=p.lab("ky"); ok=p.lab("kyok"); md=p.lab("kym")
    def lfma():
        for k in range(10): p(f"v_pk_fma_f32 {vr(WACC+2*k,2)}, {vr(HF_+2*k,2)}, {vr(RS,2)}, {vr(RS,2)} op_sel:[0,0,1] op_sel_hi:[1,0,1]")
    def kread():
        for i in range(4): p(f"ds_read_b128 {vr(K16+4*i,4)}, v{t+8} offset:{16*i}")
    if Q:
        p(f"ds_bpermute_b32 v{RS}, v{aBP}, v{RS}\nds_bpermute_b32 v{RS+1}, v{aBP}, v{RS+1}")
        kread()
        p(f"s_mov_b32 s{C}, {SPIN*4}\ns_waitcnt lgkmcnt(4)")
        lfma()
        p(f"s_branch {md}\n{lp}:")
        kread()
        p(f"{md}:")
    else:
        lfma()
        p(f"s_mov_b32 s{C}, {SPIN*4}\n{lp}:")
        kread()
    p("s_waitcnt lgkmcnt(0)")
    p(f"v_max3_u32 v{t}, v{K16}, v{K16+1}, v{K16+2}")
    for i in range(3,15,2): p(f"v_max3_u32 v{t}, v{K16+i}, v{K16+i+1}, v{t}")
    p(f"""v_max_u32 v{t}, v{t}, v{K16+15}
    v_cmp_eq_u32 vcc, -1, v{t}
    v_mov_b32 v{t}, 0
    s_cbranch_vccz {ok}""")
    spin(C,lp,ok)
    p(f"s_branch {lp}\n{ok}:")
    STAMP('keys')
    m0_=sT+18
    for i in range(18):
        if i<16: p(f"v_cmp_gt_u32 s[{m0_+2*(i%2)}:{m0_+2*(i%2)+1}], v{K16+i}, v{KEY}") if False else None
    MK=[sT+14,sT+16,sT+18]
    for i in range(18):
        if i<16: m=MK[i%3]; p(f"v_cmp_gt_u32 s[{m}:{m+1}], v{K16+i}, v{KEY}")
        elif i==16: p("s_nop 0")
        if i>=2: m=MK[(i-2)%3]; p(f"v_addc_co_u32 v{t}, vcc, 0, v{t}, s[{m}:{m+1}]")
    if Q: p(f"""v_cvt_pk_bf16_f32 v{LP}, v{WACC}, v{WACC+1}
    v_cvt_pk_bf16_f32 v{LP+1}, v{WACC+2}, v{WACC+3}
    v_add_u32_dpp v{t}, v{t}, v{t} quad_perm:[1,0,3,2] row_mask:0xf bank_mask:0xf
    v_cvt_pk_bf16_f32 v{LP+2}, v{WACC+4}, v{WACC+5}
    v_cvt_pk_bf16_f32 v{LP+3}, v{WACC+6}, v{WACC+7}
    v_add_u32_dpp v{t}, v{t}, v{t} quad_perm:[2,3,0,1] row_mask:0xf bank_mask:0xf""")
    else: p(f"""v_mov_b32 v{t+1}, v{t}
    v_cvt_pk_bf16_f32 v{LP}, v{WACC}, v{WACC+1}
    v_cvt_pk_bf16_f32 v{LP+1}, v{WACC+2}, v{WACC+3}
    v_permlane32_swap_b32 v{t}, v{t+1}
    v_cvt_pk_bf16_f32 v{LP+2}, v{WACC+4}, v{WACC+5}
    v_add_u32 v{t}, v{t}, v{t+1}
    v_mov_b32 v{t+1}, v{t}
    v_cvt_pk_bf16_f32 v{LP+3}, v{WACC+6}, v{WACC+7}
    v_cvt_pk_bf16_f32 v{LP+4}, v{WACC+8}, v{WACC+9}
    v_permlane16_swap_b32 v{t}, v{t+1}
    v_cvt_pk_bf16_f32 v{LP+5}, v{WACC+10}, v{WACC+11}
    v_add_u32 v{t}, v{t}, v{t+1}""")
    p(f"""v_cmp_gt_u32 s[{sCAND}:{sCAND+1}], 8, v{t}
    v_or_b32 v{KEY}, v{KEY}, v{t}
    v_mov_b32 v{t+1}, {L_CA&~0xffff}
    v_lshl_add_u32 v{t+1}, v{t}, 3, v{t+1}
    v_mov_b32 v{KEY+1}, s{sTAG}
    s_cmp_lg_u32 s{sJ}, 0
    s_cbranch_scc1 L_noca
    {f"s_and_b32 exec_lo, s{sCAND}, 0x11111111" if Q else f"s_and_b32 exec_lo, s{sCAND}, 0xffff"}
    {f"s_and_b32 exec_hi, s{sCAND+1}, 0x11111111" if Q else "s_mov_b32 exec_hi, 0"}
    ds_write_b64 v{t+1}, {vr(KEY,2)} offset:{L_CA&0xffff}
    s_mov_b64 exec, 0xff
    s_cmp_lg_u32 s{sWAVE}, 0
    s_cbranch_scc1 {"L_cab" if CFG['jb'] else "L_noca"}
    v_lshlrev_b32 v{t+2}, 3, v0
    v_add_u32 v{t+3}, {L_CA}, v{t+2}
    s_lshl_b32 s{A}, s{sBLK}, 7
    s_add_u32 s{A}, s{A}, {CA}
    s_mov_b32 s{C}, {SPIN*4}
    L_cal:
    ds_read_b64 v[{t+4}:{t+5}], v{t+3}
    s_waitcnt lgkmcnt(0)
    v_cmp_ne_u32 vcc, s{sTAG}, v{t+5}
    s_nop 0
    s_cbranch_vccz L_caok""")
    spin(C,"L_cal","L_caok")
    p(f"""s_branch L_cal
    L_caok:
    buffer_store_dwordx2 v[{t+4}:{t+5}], v{t+2}, {S4(sWS)}, s{A} offen sc1
    {"L_cab:" if CFG['jb'] else ""}
    {"s_barrier" if CFG['jb'] else ""}
    L_noca:
    s_mov_b64 exec, -1""")
    STAMP('ca')
    if Q: p(f"ds_bpermute_b32 v{t}, v{aBP}, v{t}\nds_bpermute_b32 v{KEY}, v{aBP}, v{KEY}")
    for k in range(4 if Q else 6,10): p(f"v_cvt_pk_bf16_f32 v{LP+k}, v{WACC+2*k}, v{WACC+2*k+1}")
    p(f"""v_lshrrev_b32 v{t+1}, 4, v0
    v_mul_u32_u24 v{t+1}, 40, v{t+1}
    {"s_waitcnt lgkmcnt(0)" if Q else ""}
    {f"v_cmp_gt_u32 s[{sCAND}:{sCAND+1}], 8, v{t}" if Q else ""}
    v_mul_u32_u24 v{t}, 2560, v{t}
    v_add_u32 v{aCD}, v{t}, v{t+1}
    s_mul_i32 s{A}, s{sBLK}, 20480
    s_mul_i32 s{B}, s{sJ}, 160
    s_add_u32 s{A}, s{A}, s{B}
    s_add_u32 s{A}, s{A}, {CAND}
    s_and_b64 exec, s[{sCAND}:{sCAND+1}], -1
    s_cbranch_scc0 L_nocd""")
    for base,off in ((LP,0),(HP,1280)):
        if 'nocand' in CFG['xp'] or ('noh' in CFG['xp'] and off): continue
        for o,n in ((0,4),(4,4),(8,2)): p(f"buffer_store_dwordx{n} {vr(base+o,n)}, v{aCD}, {S4(sWS)}, s{A} offen offset:{off+4*o} sc1")
    p("L_nocd:\ns_mov_b64 exec, -1")
    if CFG['cae']:
        assert not CFG['odf'] and not CFG['xp']
        p(f"""s_lshl_b32 s{A}, s{sWAVE}, 5
        s_add_u32 s{A}, s{A}, s{sMI}
        s_cmp_ge_u32 s{A}, 17
        s_cbranch_scc1 L_nocae
        v_lshrrev_b32 v{t}, 3, v0
        v_and_b32 v{t+1}, 7, v0
        v_lshlrev_b32 v{t+1}, 3, v{t+1}
        v_lshl_add_u32 v22, v{t}, 7, v{t+1}
        s_mov_b32 s{B}, {CA}""")
        for i in range(4): p(f"buffer_load_dwordx2 {vr(12+2*i,2)}, v22, {S4(sWS)}, s{B} offen offset:{i*1024} sc1")
        p("L_nocae:")
    for k in range(10): p(f"v_pk_add_f32 {vr(WACC+2*k,2)}, {vr(WACC+2*k,2)}, {vr(HF_+2*k,2)}")
    for k in range(10): p(f"v_cvt_pk_bf16_f32 v{OP+k}, v{WACC+2*k}, v{WACC+2*k+1}")
    if CFG['odf']: p(f"s_cmp_lt_u32 s{sMI}, {CFG['odf']}\ns_cbranch_scc1 L_noo1")
    p(f"s_andn2_b64 exec, -1, s[{sCAND}:{sCAND+1}]")
    if not CFG['cae']: p("s_cbranch_scc0 L_noo1")
    if 'noout' not in CFG['xp']: out_store()
    p("L_noo1:")
    if 1: p(f"""s_mov_b64 exec, 1
    v_mov_b32 v{t+4}, {F_O1}
    v_mov_b32 v{t+5}, 1
    ds_add_u32 v{t+4}, v{t+5}
    s_mov_b64 exec, -1""")
    else: p("s_mov_b64 exec, -1")
    STAMP('o1')
KEY=228; sCAND=sT+20
def out_store():
    for o,n in ((0,4),(4,4),(8,2)): p(f"buffer_store_dwordx{n} {vr(OP+o,n)}, v{aX2}, {S4(sOUT)}, s{sXO} offen offset:{4*o} {CFG['opol']}")

def moe_weights():
    A=sT+7; B=sT+8; vt=2; D=40; aW_=12
    gu=p.lab("mwgu"); wr=p.lab("mwwr"); en=p.lab("mwend")
    FA=dict(WOD=(F_WOD,2),PR=(F_PR,4),O1=(F_O1,4),DONE=(F_DONE,ND),G2=(F_G2,2),PS=(F_PS,4),WO2=(F_WO2,2),WE=(F_SCP,4),TOP=(L_TOP,0))
    def gate(k):
        p(f"v_mov_b32 v{vt+4}, {FA[k][0]}")
        if k=='TOP': lds_wait(vt+4,vt+5,sT+5,'eq',-1,2)
        else: lds_wait(vt+4,vt+5,sT+5,'gt',FA[k][1],2)
    pl_=p.lab("mwpl")
    p(f"""s_cmp_ge_u32 s{sMI}, 17
    s_cbranch_scc1 {pl_}
    v_bfe_u32 v{vt}, v0, 3, 2
    v_lshrrev_b32 v{vt+1}, 5, v0
    v_lshlrev_b32 v{vt}, 1, v{vt}
    v_add_lshl_u32 v{vt}, v{vt}, v{vt+1}, 2
    v_bfe_u32 v{vt+1}, v0, 1, 2
    v_add_u32 v{vt}, v{vt}, v{vt+1}
    v_and_b32 v{vt+1}, 1, v0
    v_lshlrev_b32 v{vt+1}, 4, v{vt+1}
    s_cmp_lt_u32 s{sMI}, 12
    s_cbranch_scc1 {gu}
    v_mul_u32_u24 v{vt}, 1280, v{vt}
    v_add_u32 v{aW_}, v{vt}, v{vt+1}
    s_mul_i32 s{A}, s{sG}, 5
    s_add_u32 s{A}, s{A}, s{sMI}
    s_sub_u32 s{A}, s{A}, 12
    s_lshl_b32 s{A}, s{A}, 5
    s_mul_i32 s{B}, s{HW}, {12*32*1280}
    s_add_u32 s{A}, s{A}, s{B}""")
    gate(CFG['dstart'])
    STAMP('mg')
    for s_ in range(12):
        if s_>=CFG['ddep']: p(f"s_waitcnt vmcnt({CFG['ddep']-1})")
        p(f"buffer_load_dwordx4 {vr(D+4*s_,4)}, v{aW_}, {S4(sWD)}, s{A} offen {CFG['mpol']}")
        if s_<11: p(f"s_add_u32 s{A}, s{A}, {32*1280}")
    p(f"""s_mul_i32 s{B}, s{HW}, 12288
    s_branch {wr}
    {pl_}:""")
    for g_,h_ in CFG['wb']:
        sk=p.lab("nowb")
        p(f"s_lshl_b32 s{A}, s{sSLOT}, 2\ns_add_u32 s{A}, s{A}, s{HW}\ns_cmp_lg_u32 s{A}, {4*CFG['wbs']+h_}\ns_cbranch_scc1 {sk}")
        if g_!='no': gate(g_)
        p(f"buffer_wbl2 sc1\ns_waitcnt vmcnt(0)\n{sk}:")
    if CFG['dgate']!='no' and not CFG['dw3']:
        if CFG['dtn']: p(f"s_cmp_ge_u32 s{sMI}, 28\ns_cbranch_scc1 {en}")
        gate(CFG['dgate'])
        touch(vTD,sWD,CFG['mpair'])
        if CFG['dtn']: p("s_mov_b64 exec, 63"); touch(vTD2,sWD,0); p("s_mov_b64 exec, -1")
        STAMP('mg')
        if CFG['prof']: p("s_waitcnt vmcnt(0)"); STAMP('mw')
    p(f"""s_branch {en}
    {gu}:
    v_mul_u32_u24 v{vt}, 3072, v{vt}
    v_add_u32 v{aW_}, v{vt}, v{vt+1}
    s_mul_i32 s{A}, s{sG}, 12
    s_add_u32 s{A}, s{A}, s{sMI}
    s_lshl_b32 s{A}, s{A}, 5
    s_mul_i32 s{B}, s{HW}, {5*32*3072}
    s_add_u32 s{A}, s{A}, s{B}""")
    gate(CFG['gstart'])
    STAMP('mg')
    for s_ in range(5):
        for m_ in range(2):
            if 2*s_+m_==CFG['g2nd'][1]: gate(CFG['g2nd'][0]); STAMP('mg2')
            if 2*s_+m_>=CFG['mdep']: p(f"s_waitcnt vmcnt({CFG['mdep']-1})")
            p(f"buffer_load_dwordx4 {vr(D+8*s_+4*m_,4)}, v{aW_}, {S4((sWG,sWU)[m_])}, s{A} offen {CFG['mpol']}")
        if s_<4: p(f"s_add_u32 s{A}, s{A}, {32*3072}")
    p(f"s_mul_i32 s{B}, s{HW}, 12288\n{wr}:\nv_lshl_add_u32 v{vt}, v0, 4, s{B}")
    gate('DONE')
    p("s_waitcnt vmcnt(0)")
    for s_ in range(12): p(f"ds_write_b128 v{vt}, {vr(D+4*s_,4)} offset:{L_MW+s_*1024}")
    p(f"""s_lshl_b32 s{A}, s{HW}, 2
    s_add_u32 s{A}, s{A}, {F_MW}
    v_mov_b32 v{vt}, s{A}
    ds_write_b32 v{vt}, v{vt}
    s_waitcnt lgkmcnt(0)""")
    STAMP('mw')
    if CFG['htop']:
        p(f"""s_lshl_b32 s{A}, s{HW}, 5
        s_add_u32 s{A}, s{A}, s{sMI}
        s_cmp_lt_u32 s{A}, 12
        s_cbranch_scc1 L_htop""")
        n0=len(p.L)
        t=2; R=12; K2=20; K1=21; aC=22; C=sT+5
        ld="\n".join(f"buffer_load_dwordx2 {vr(R+2*i,2)}, v{aC}, {S4(sWS)}, s{B} offen offset:{i*1024} sc1" for i in range(4))
        lp=p.lab("hca"); ok=p.lab("hcaok")
        p(f"""L_htop:
        v_lshrrev_b32 v{t}, 3, v0
        v_and_b32 v{t+1}, 7, v0
        v_lshlrev_b32 v{t+2}, 3, v{t+1}
        v_lshl_add_u32 v{aC}, v{t}, 7, v{t+2}
        s_mov_b32 s{B}, {CA}
        v_bfe_i32 v{K2}, v0, 1, 1
        v_bfe_i32 v{K1}, v0, 0, 1
        v_not_b32 v{K2}, v{K2}
        v_not_b32 v{K1}, v{K1}
        v_lshlrev_b32 v{t+1}, 2, v{t+1}
        v_add_u32 v{aC+1}, {L_TOP}, v{t+1}
        s_mov_b32 s{C}, {SPIN}
        {lp}:
        {ld}
        s_waitcnt vmcnt(0)
        v_xor_b32 v{t}, v{R+1}, v{R+3}
        v_xor_b32 v{t+1}, v{R+5}, v{R+7}
        v_xor_b32 v{R+1}, s{sTAG}, v{R+1}
        v_xor_b32 v{R+5}, s{sTAG}, v{R+5}
        v_or3_b32 v{t}, v{t}, v{t+1}, v{R+1}
        v_or_b32 v{t}, v{t}, v{R+5}
        v_cmp_ne_u32 vcc, 0, v{t}
        s_nop 0
        s_cbranch_vccz {ok}""")
        spin(C,lp,ok,CFG['casl'])
        p(f"s_branch {lp}\n{ok}:")
        STAMP('car'); COUNT('ncar',C,SPIN)
        top8(R,K2,K1,t,t+2)
        p(f"ds_write_b32 v{aC+1}, v{R}")
        STAMP('htp')
        END()
        COLD.append("\n".join(p.L[n0:])); del p.L[n0:]
    p(f"{en}:")
def top8(R,K2,K1,y,tt):
    def clean(chs):
        seq=[]
        for (x,y_,t_) in chs:
            seq.append([f"v_max_u32_dpp v{y_}, v{x}, v{x} row_shl:4 row_mask:0xf bank_mask:0x5",
                        f"v_min_u32_dpp v{y_}, v{x}, v{x} row_shr:4 row_mask:0xf bank_mask:0xa",
                        None,
                        f"v_mov_b32_dpp v{t_}, v{y_} quad_perm:[2,3,0,1] row_mask:0xf bank_mask:0xf",
                        f"v_med3_u32 v{y_}, v{y_}, v{t_}, v{K2}",
                        None,
                        f"v_mov_b32_dpp v{t_}, v{y_} quad_perm:[1,0,3,2] row_mask:0xf bank_mask:0xf",
                        f"v_med3_u32 v{x}, v{y_}, v{t_}, v{K1}"])
        n=len(chs)
        p(f"s_nop {2-n}")
        for i in range(8):
            if seq[0][i] is None: p(f"s_nop {2-n}")
            else:
                for c in seq: p(c[i])
                if i==0 and n==1: p("s_nop 1")
                elif i==0: p("s_nop 0")
    dp="row_mask:0xf bank_mask:0xf"
    p(f"v_max_u32_dpp v{R}, v{R+2}, v{R} row_half_mirror {dp}\nv_max_u32_dpp v{R+4}, v{R+6}, v{R+4} row_half_mirror {dp}")
    clean([(R,y,tt),(R+4,y+1,tt+1)])
    p(f"s_nop 1\nv_max_u32_dpp v{R}, v{R+4}, v{R} row_half_mirror {dp}")
    clean([(R,y,tt)])
    p(f"s_nop 1\nv_max_u32_dpp v{R}, v{R}, v{R} row_mirror {dp}")
    clean([(R,y,tt)])
    for msk,sw in ((0xa,16),(0xc,32)):
        p(f"""s_nop 1
        v_mov_b32_dpp v{R}, v{R} row_half_mirror row_mask:{hex(msk)} bank_mask:0xf
        v_mov_b32 v{tt}, v{R}
        s_nop 1
        v_permlane{sw}_swap_b32 v{R}, v{tt}
        s_nop 0
        v_max_u32 v{R}, v{R}, v{tt}""")
        clean([(R,y,tt)])
def moe():
    t=vT; A=sT+7; B=sT+8; C=sT+17; sTHR=sT+14; sKQ=sT+3
    R=12; K2=20; K1=21; aC=22; AW=108
    BL=160
    p(f"""s_cmp_ge_u32 s{sMI}, 17
    s_cbranch_scc1 L_plain""")
    if not CFG['cae']: p(f"""v_lshrrev_b32 v{t}, 3, v0
    v_and_b32 v{t+1}, 7, v0
    v_lshlrev_b32 v{t+1}, 3, v{t+1}
    v_lshl_add_u32 v{aC}, v{t}, 7, v{t+1}""")
    p(f"s_mov_b32 s{B}, {CA}")
    ld="\n".join(f"buffer_load_dwordx2 {vr(R+2*i,2)}, v{aC}, {S4(sWS)}, s{B} offen offset:{i*1024} sc1" for i in range(4))
    aMF=4; aMW=5
    def getw():
        lds_wait(AW-aMF,t+10 if False else AW,C,'eq',0,0)
        STAMP('mwr')
        for s_ in range(12):
            for rd in range(2): p(f"ds_read_b64_tr_b16 {vr(AW+4*s_+2*rd,2)}, v{AW-aMW} offset:{L_MW+s_*1024+rd*512}")
    if not CFG['cae'] and not CFG['htop']: p(f"""s_cmp_lg_u32 s{sWAVE}, 0
    s_cbranch_scc1 L_nocal
    {ld}""")
    p(f"""L_nocal:
    v_bfe_i32 v{K2}, v0, 1, 1
    v_bfe_i32 v{K1}, v0, 0, 1
    v_not_b32 v{K2}, v{K2}
    v_not_b32 v{K1}, v{K1}
    s_add_u32 s{sKQ}, s{sWAVE}, {CFG['kqr']}
    s_and_b32 s{sKQ}, s{sKQ}, 3
    s_lshl_b32 s{A}, s{sKQ}, 2
    s_add_u32 s{A}, s{A}, {F_MW}
    v_mov_b32 v{AW-aMF}, s{A}
    s_mul_i32 s{A}, s{sKQ}, 12288
    v_lshl_add_u32 v{AW-aMW}, v0, 3, s{A}
    v_and_b32 v{t}, 7, v0
    v_lshlrev_b32 v{t}, 2, v{t}
    v_add_u32 v{AW-6}, {L_TOP}, v{t}
    {f"v_add_u32 v{AW-9}, {L_TOP}, v{t}" if CFG['ldma'] else ""}
    s_cmp_ge_u32 s{sMI}, 12
    s_cbranch_scc1 L_now""")
    if CFG['ldma']:
        p(f"""v_lshrrev_b32 v{t}, 3, v0
        v_lshlrev_b32 v{t}, 2, v{t}
        v_add_u32 v{AW-9}, {L_TOP}, v{t}
        v_and_b32 v{AW-7}, 7, v0
        v_lshrrev_b32 v{t}, 4, v0
        v_lshlrev_b32 v{t}, 4, v{t}
        v_lshl_add_u32 v{t}, v{AW-7}, 7, v{t}
        s_mul_i32 s{A}, s{sWAVE}, 3072
        s_add_u32 s{A}, s{A}, {L_RED+8192}
        v_add_u32 v{AW-8}, s{A}, v{t}
        v_lshlrev_b32 v{AW-7}, 4, v{AW-7}
        s_mov_b32 m0, s{A}""")
    getw()
    if CFG['htop']: p("s_branch L_topw2")
    lp=p.lab("ca"); ok=p.lab("caok"); md=p.lab("cam")
    p(f"""L_now:
    s_cmp_lg_u32 s{sWAVE}, 0
    s_cbranch_scc1 L_topw
    s_mov_b32 s{C}, {SPIN}
    {"s_waitcnt vmcnt(3)" if CFG['cae'] else ""}
    {"" if CFG['htop'] else f"s_branch {md}"}
    {lp}:
    {ld}
    {"s_waitcnt vmcnt(0)" if CFG['cae'] else ""}
    {md}:
    {"" if CFG['cae'] else "s_waitcnt vmcnt(0)"}
    v_xor_b32 v{t}, v{R+1}, v{R+3}
    v_xor_b32 v{t+1}, v{R+5}, v{R+7}
    v_xor_b32 v{R+1}, s{sTAG}, v{R+1}
    v_xor_b32 v{R+5}, s{sTAG}, v{R+5}
    v_or3_b32 v{t}, v{t}, v{t+1}, v{R+1}
    v_or_b32 v{t}, v{t}, v{R+5}
    v_cmp_ne_u32 vcc, 0, v{t}
    s_nop 0
    s_cbranch_vccz {ok}""")
    spin(C,lp,ok,CFG['casl'])
    if CFG['dasl']: p(f"s_cmp_lt_u32 s{sMI}, 12\ns_cbranch_scc1 {lp}\ns_sleep {CFG['dasl']}")
    p(f"s_branch {lp}\n{ok}:")
    STAMP('car'); COUNT('ncar',C,SPIN)
    top8(R,K2,K1,t,t+2)
    p(f"ds_write_b32 v{AW-6}, v{R}")
    if CFG['htop']: assert CFG['ldma']; p(f"s_branch L_top\nL_topw:\ns_waitcnt vmcnt(0)\nL_topw2:")
    elif CFG['ldma']: p(f"s_cmp_ge_u32 s{sMI}, 12\ns_cbranch_scc1 L_top\nL_topw:\ns_waitcnt vmcnt(0)")
    else: p(f"s_branch L_top\nL_topw:\ns_waitcnt vmcnt(0)")
    lds_wait(AW-9 if CFG['ldma'] else AW-6,R,C,'eq',-1,0)
    TOK=t+1; aR=t+2
    def deferred(tag):
        allrows=CFG['odf']>=(12 if tag[0]=='g' else 17 if tag=='d' else 99)
        p(f"""v_cmp_gt_u32 vcc, s{sTHR}, v{KEY}
        s_nop 0
        {'s_orn2_b64' if allrows else 's_and_b64'} exec, vcc, s[{sCAND}:{sCAND+1}]
        s_cbranch_scc0 L_nd{tag}""")
        out_store()
        p(f"L_nd{tag}:\ns_mov_b64 exec, -1")
    XM="s_mov_b32 exec_lo, 0x00ff00ff\ns_mov_b32 exec_hi, 0x00ff00ff" if CFG['xm'] else "s_mov_b64 exec, -1"
    if CFG['ldma']:
        lp=p.lab("gl"); ok=p.lab("glok")
        p(f"""s_cmp_ge_u32 s{sMI}, 12
        s_cbranch_scc1 L_top""")
        STAMP('top')
        p(f"""v_bfe_u32 v{TOK}, v{R}, 9, 5
        v_and_b32 v{aR}, 7, v{R}
        v_xor_b32 v{TOK}, 31, v{TOK}
        s_mul_i32 s{A}, s{sKQ}, 320
        v_lshl_add_u32 v{aR}, v{TOK}, 3, v{aR}
        s_add_u32 s{A}, s{A}, {CAND}
        v_mov_b32 v{t}, 2560
        s_sub_u32 s{B}, s{A}, 896
        v_mad_u32_u24 v{aR}, v{aR}, v{t}, v{AW-7}
        s_sub_u32 s{sT+4}, s{A}, 1792
        s_mov_b32 s{C}, {SPIN}
        {lp}:
        s_mov_b64 exec, -1
        buffer_load_dwordx4 v{aR}, {S4(sWS)}, s{A} offen sc1 lds
        buffer_load_dwordx4 v{aR}, {S4(sWS)}, s{B} offen offset:1024 sc1 lds
        s_mov_b32 exec_lo, 0x0f0f0f0f
        s_mov_b32 exec_hi, 0x0f0f0f0f
        buffer_load_dwordx4 v{aR}, {S4(sWS)}, s{sT+4} offen offset:2048 sc1 lds
        s_mov_b64 exec, -1
        v_readlane_b32 s{sTHR}, v{R}, 56
        s_lshl_b32 s{sT+5}, s{sWAVE}, 11
        s_add_u32 s{sT+5}, s{sT+5}, {L_RED}
        v_lshl_add_u32 v{t+3}, v0, 4, s{sT+5}
        s_mov_b32 exec_lo, 0x00ff00ff
        s_mov_b32 exec_hi, 0x00ff00ff""")
        for i in range(5):
            if i%2==0: p(f"s_waitcnt vmcnt({2-i//2})")
            p(f"ds_read_b128 {vr(BL+4*i,4)}, v{AW-8} offset:{(i>>1)*1024+(i&1)*64}")
        if CFG['asp']:
            G=20; U=24
            p("s_mov_b64 exec, -1")
            for s_ in range(5):
                p(f"s_waitcnt lgkmcnt({4-s_})")
                for m_,a_ in ((0,G),(1,U)):
                    p(f"v_mfma_f32_16x16x32_bf16 {vr(a_,4)}, {vr(AW+8*s_+4*m_,4)}, {vr(BL+4*s_,4)}, {vr(a_,4) if s_ else 0}")
                    if m_==0: p(f"v_max3_u32 v{t+4}, v{BL+4*s_}, v{BL+4*s_+2}, {'v%d'%(t+4) if s_ else 0}")
            p(f"""v_cmp_eq_u32 vcc, -1, v{t+4}
            s_nop 0
            s_and_b32 vcc_lo, vcc_lo, 0x00ff00ff
            s_and_b32 vcc_hi, vcc_hi, 0x00ff00ff
            s_or_b32 s{sT+5}, vcc_lo, vcc_hi
            s_cbranch_scc0 L_glok""")
        else: p(f"""s_waitcnt lgkmcnt(2)
        v_max3_u32 v{t+4}, v{BL}, v{BL+2}, v{BL+4}
        v_max3_u32 v{t+5}, v{BL+6}, v{BL+8}, v{BL+10}
        s_waitcnt lgkmcnt(0)
        v_max3_u32 v{t+4}, v{BL+12}, v{BL+14}, v{t+4}
        v_max3_u32 v{t+5}, v{BL+16}, v{BL+18}, v{t+5}
        v_max_u32 v{t+4}, v{t+4}, v{t+5}
        v_cmp_eq_u32 vcc, -1, v{t+4}
        s_nop 0
        s_cbranch_vccz L_glok""")
        spin(C,lp,"L_glok")
        p(f"s_branch {lp}")
    p("L_top:")
    STAMP('top')
    p(f"""v_bfe_u32 v{TOK}, v{R}, 3, 11
    v_sub_u32 v{TOK}, 2047, v{TOK}
    v_lshrrev_b32 v{t}, 6, v{TOK}
    v_and_b32 v{aR}, 7, v{R}
    v_lshl_add_u32 v{aR}, v{t}, 3, v{aR}
    v_mul_u32_u24 v{aR}, 2560, v{aR}
    v_lshrrev_b32 v{t}, 4, v0
    v_readlane_b32 s{sTHR}, v{R}, 7
    {"" if CFG['ldma'] else f"s_cmp_ge_u32 s{sMI}, 12"}
    {"s_branch" if CFG['ldma'] else "s_cbranch_scc1"} L_down""")
    if not CFG['ldma']: l_old(t,A,B,C,BL,aR,sKQ,sTHR,XM)
    else: p("L_glok:")
    STAMP('lr'); COUNT('nlr',C,SPIN)
    SP=CFG['asp'] and CFG['ldma']
    if CFG['xm'] and not SP: p("s_mov_b64 exec, -1")
    G=20; U=24; X=28
    for s_ in range(0 if SP else 5):
        for m_,a_ in ((0,G),(1,U)):
            p(f"v_mfma_f32_16x16x32_bf16 {vr(a_,4)}, {vr(AW+8*s_+4*m_,4)}, {vr(BL+4*s_,4)}, {vr(a_,4) if s_ else 0}")
    w0=p.lab("guw0")
    def hint(sa,va,wv=None):
        sk=p.lab("nohint")
        if wv is not None: p(f"s_cmp_lg_u32 s{sWAVE}, {wv}\ns_cbranch_scc1 {sk}")
        p(f"""s_lshl_b32 s{sa}, s{sG}, 5
        s_add_u32 s{sa}, s{sa}, s{sMI}
        s_lshl_b32 s{sa}, s{sa}, 2
        s_add_u32 s{sa}, s{sa}, {AH}
        v_mov_b32 v{va}, 0
        v_mov_b32 v{va+1}, s{sTAG}
        s_mov_b64 exec, 1""")
        dual([f"buffer_store_dword v{va+1}, v{va}, {S4(sWS)}, s{sa} offen"])
        p(f"s_mov_b64 exec, -1\n{sk}:")
    p(f"""s_cmp_eq_u32 s{sWAVE}, 0
    s_cbranch_scc1 {w0}
    {"" if SP else "s_nop 5"}
    ds_write_b128 v{t+3}, {vr(G,4)}
    ds_write_b128 v{t+3}, {vr(U,4)} offset:1024""")
    if CFG['ahp']==4: hint(B,60,2)
    p("s_waitcnt lgkmcnt(0)\ns_barrier")
    if CFG['ahp']==3: hint(B,60,2)
    if CFG['ldma']:
        nt=p.lab("noth")
        p(f"""s_xor_b32 s{B}, s{sWAVE}, 1
        s_or_b32 s{B}, s{sMI}, s{B}
        s_cbranch_scc1 {nt}
        v_mov_b32 v{t+4}, s{sTHR}
        v_mov_b32 v{t+5}, s{sTAG}
        s_lshl_b32 s{B}, s{sG}, 7
        s_add_u32 s{B}, s{B}, {TH}
        v_mov_b32 v{t+6}, 0
        s_mov_b64 exec, 1
        buffer_store_dwordx2 v[{t+4}:{t+5}], v{t+6}, {S4(sWS)}, s{B} offen sc1
        s_mov_b64 exec, -1
        {nt}:""")
    if CFG['ob2']: p("s_barrier")
    deferred('g1')
    END()
    p(f"""{w0}:
    s_mul_i32 s{A}, s{sG}, 12
    s_add_u32 s{A}, s{A}, s{sMI}
    s_lshl_b32 s{A}, s{A}, 8
    s_add_u32 s{A}, s{A}, {ACT}
    v_and_b32 v{t+4}, 7, v0
    v_lshlrev_b32 v{t+4}, 4, v{t+4}
    v_lshrrev_b32 v{t+5}, 5, v0
    v_lshl_add_u32 v{t+4}, v{t+5}, 7, v{t+4}
    v_bfe_u32 v{t+5}, v0, 4, 1
    v_lshl_add_u32 v{t+4}, v{t+5}, 3, v{t+4}
    s_barrier""")
    STAMP('gb')
    for w_ in range(1,4):
        for m_ in range(2): p(f"ds_read_b128 {vr(X+8*(w_-1)+4*m_,4)}, v{t+3} offset:{w_*2048+m_*1024}")
    p(f"s_mov_b32 s{B}, {hex(f2u(-math.log2(math.e)))}")
    for w_ in range(3):
        p(f"s_waitcnt lgkmcnt({4-2*w_})")
        for k in range(4): p(f"v_pk_add_f32 {vr(G+2*k,2)}, {vr(G+2*k,2)}, {vr(X+8*w_+2*k,2)}")
    p(f"""v_cvt_pk_bf16_f32 v{X}, v{G}, v{G+1}
    v_cvt_pk_bf16_f32 v{X+1}, v{G+2}, v{G+3}
    v_cvt_pk_bf16_f32 v{X+2}, v{U}, v{U+1}
    v_cvt_pk_bf16_f32 v{X+3}, v{U+2}, v{U+3}""")
    for k in range(4): p(f"v_lshlrev_b32 v{G+2*k}, 16, v{X+k}\nv_and_b32 v{G+2*k+1}, 0xffff0000, v{X+k}")
    for k in range(4): p(f"v_mul_f32 v{X+k}, s{B}, v{G+k}")
    for k in range(4): p(f"v_exp_f32 v{X+k}, v{X+k}")
    if CFG['ahp']==2: hint(B,60)
    for k in range(4): p(f"v_add_f32 v{X+k}, 1.0, v{X+k}")
    for k in range(4): p(f"v_rcp_f32 v{X+k}, v{X+k}")
    for k in range(4): p(f"v_mul_f32 v{G+k}, v{G+k}, v{X+k}")
    if CFG['ahp']==1: hint(B,60)
    p(f"v_cvt_pk_bf16_f32 v{X}, v{G}, v{G+1}\nv_cvt_pk_bf16_f32 v{X+1}, v{G+2}, v{G+3}")
    for k in range(2): p(f"v_lshlrev_b32 v{G+2*k}, 16, v{X+k}\nv_and_b32 v{G+2*k+1}, 0xffff0000, v{X+k}")
    p(f"""v_pk_mul_f32 {vr(G,2)}, {vr(G,2)}, {vr(U,2)}
    v_pk_mul_f32 {vr(G+2,2)}, {vr(G+2,2)}, {vr(U+2,2)}
    v_cvt_pk_bf16_f32 v{X}, v{G}, v{G+1}
    v_cvt_pk_bf16_f32 v{X+1}, v{G+2}, v{G+3}
    s_mov_b32 exec_lo, 0x00ff00ff
    s_mov_b32 exec_hi, 0x00ff00ff
    buffer_store_dwordx2 {vr(X,2)}, v{t+4}, {S4(sWS)}, s{A} offen sc1""")
    if CFG['ahint'] and CFG['ahp']==0:
        p(f"""s_lshl_b32 s{A}, s{sG}, 5
        s_add_u32 s{A}, s{A}, s{sMI}
        s_lshl_b32 s{A}, s{A}, 2
        s_add_u32 s{A}, s{A}, {AH}
        v_mov_b32 v{t+4}, 0
        v_mov_b32 v{t+5}, s{sTAG}
        s_mov_b64 exec, 1""")
        dual([f"buffer_store_dword v{t+5}, v{t+4}, {S4(sWS)}, s{A} offen"])
    p("s_mov_b64 exec, -1")
    STAMP('act')
    if CFG['ob2']: p("s_barrier")
    deferred('g0')
    END()
    HL=20; Y=24; X=28; SG=t+8; aO2=t+9
    p(f"""L_down:
    v_lshl_add_u32 v{aR}, v{t}, 3, v{aR}
    v_mul_u32_u24 v{aO2}, 1280, v{TOK}
    v_lshl_add_u32 v{aO2}, v{t}, 3, v{aO2}
    v_and_b32 v{t+4}, 7, v0
    v_lshlrev_b32 v{t+4}, 4, v{t+4}
    v_lshl_add_u32 v{t+4}, v{t}, 7, v{t+4}
    {f"v_bfe_u32 v{t+5}, v0, 3, 1" if CFG['a2'] else ""}
    {f"v_lshl_add_u32 v{t+4}, v{t+5}, 9, v{t+4}" if CFG['a2'] else ""}
    s_mul_i32 s{sT+1}, s{sG}, 5
    s_add_u32 s{sT+1}, s{sT+1}, s{sMI}
    s_sub_u32 s{sT+1}, s{sT+1}, 12
    s_lshl_b32 s{sT+1}, s{sT+1}, 5
    s_add_u32 s{sT+2}, s{sT+1}, {CAND}
    s_mul_i32 s{A}, s{sKQ}, 6144
    s_add_u32 s{A}, s{A}, {ACT}
    s_add_u32 s{B}, s{A}, 4096""")
    ldh=f"buffer_load_dwordx2 {vr(HL,2)}, v{aR}, {S4(sWS)}, s{sT+2} offen sc1\nbuffer_load_dwordx2 {vr(HL+2,2)}, v{aR}, {S4(sWS)}, s{sT+2} offen offset:1280 sc1"
    if CFG['hll']: p(f"s_cmp_lg_u32 s{sWAVE}, 0\ns_cbranch_scc1 L_nohl\n{XM}\n{ldh}\ns_mov_b64 exec, -1\nL_nohl:")
    else: p(ldh)
    deferred('d')
    p(f"""v_ashrrev_i32 v{SG}, 31, v{R}
    v_not_b32 v{SG}, v{SG}
    v_or_b32 v{SG}, 0x80000000, v{SG}
    v_xor_b32 v{SG}, v{SG}, v{R}
    v_and_b32 v{SG}, 0xffff0000, v{SG}
    v_mul_f32 v{SG}, {hex(f2u(-math.log2(math.e)))}, v{SG}
    v_exp_f32 v{SG}, v{SG}
    s_lshl_b32 s{C}, s{sWAVE}, 10
    v_add_f32 v{SG}, 1.0, v{SG}
    v_rcp_f32 v{SG}, v{SG}
    s_add_u32 s{C}, s{C}, {L_RED}
    v_lshl_add_u32 v{t+3}, v0, 4, s{C}""")
    bf16r(SG,SG)
    lp=p.lab("hl"); ok=p.lab("hlok"); md=p.lab("hlm")
    if not CFG['hll']: p(f"""s_mov_b32 s{C}, {SPIN}
    s_branch {md}
    {lp}:
    {ldh}
    {md}:
    s_waitcnt vmcnt(0)
    v_max_u32 v{t+5}, v{HL}, v{HL+2}
    v_cmp_eq_u32 vcc, -1, v{t+5}
    s_nop 0
    {'s_branch' if CFG['xp'] else 's_cbranch_vccz'} {ok}""")
    if not CFG['hll']:
        spin(C,lp,ok)
        p(f"s_branch {lp}\n{ok}:")
    getw()
    ld="\n".join([f"buffer_load_dwordx4 {vr(BL+4*i,4)}, v{t+4}, {S4(sWS)}, s{A if i<8 else B} offen offset:{(i%8)*512} sc1" for i in range(12)])
    if CFG['ahint']:
        p(f"""v_min_u32 v{t+6}, {CFG['ahint']-1}, v0
        v_lshlrev_b32 v{t+6}, 2, v{t+6}
        s_lshl_b32 s{sT+4}, s{sG}, 7
        s_add_u32 s{sT+4}, s{sT+4}, {AH}""")
        flag_poll(t+6,t+5,sT+4,C)
        STAMP('ah')
    lp=p.lab("al"); ok=p.lab("alok")
    if CFG['a2']:
        Y2=BL+24
        ld="\n".join([f"buffer_load_dwordx4 {vr(BL+4*i,4)}, v{t+4}, {S4(sWS)}, s{A if i<4 else B} offen offset:{(i%4)*1024} sc1" for i in range(6)])
        if CFG['asp']:
            p(f"s_mov_b32 s{C}, {SPIN}\n{lp}:\n{ld}\ns_waitcnt lgkmcnt(0)")
            for i in range(6):
                p(f"s_waitcnt vmcnt({5-i})")
                for s_ in (2*i,2*i+1):
                    y=(Y,Y2)[s_&1]
                    p(f"v_mfma_f32_16x16x32_bf16 {vr(y,4)}, {vr(AW+4*s_,4)}, {vr(BL+4*(s_>>1),4)}, {vr(y,4) if s_>1 else 0}")
                    if s_&1==0: p(f"v_max3_u32 v{t+5}, v{BL+4*i}, v{BL+4*i+2}, {'v%d'%(t+5) if i else 0}")
            p(f"""v_cmp_eq_u32 vcc, -1, v{t+5}
            s_nop 0
            s_cbranch_vccz {ok}""")
            spin(C,lp,ok,CFG['acsl'])
            p(f"s_branch {lp}\n{ok}:")
            STAMP('ar'); COUNT('nar',C,SPIN)
            p("s_nop 4")
        else: p(f"""s_mov_b32 s{C}, {SPIN}
        {lp}:
        {ld}
        s_waitcnt vmcnt(3)
        v_max3_u32 v{t+5}, v{BL}, v{BL+2}, v{BL+4}
        v_max3_u32 v{t+6}, v{BL+6}, v{BL+8}, v{BL+10}
        s_waitcnt vmcnt(0)
        v_max3_u32 v{t+5}, v{BL+12}, v{BL+14}, v{t+5}
        v_max3_u32 v{t+6}, v{BL+16}, v{BL+18}, v{t+6}
        v_max3_u32 v{t+5}, v{BL+20}, v{BL+22}, v{t+5}
        v_max_u32 v{t+5}, v{t+5}, v{t+6}
        v_cmp_eq_u32 vcc, -1, v{t+5}
        s_waitcnt lgkmcnt(0)
        s_cbranch_vccz {ok}""")
        if not CFG['asp']:
            spin(C,lp,ok,CFG['acsl'])
            p(f"s_branch {lp}\n{ok}:")
            STAMP('ar'); COUNT('nar',C,SPIN)
            for s_ in range(12):
                y=(Y,Y2)[s_&1]
                p(f"v_mfma_f32_16x16x32_bf16 {vr(y,4)}, {vr(AW+4*s_,4)}, {vr(BL+4*(s_>>1),4)}, {vr(y,4) if s_>1 else 0}")
            p("s_nop 7")
        for k in range(4): p(f"v_add_f32_dpp v{Y+k}, v{Y2+k}, v{Y+k} row_ror:8 row_mask:0xf bank_mask:0xf")
    else: act_old(t,A,B,C,BL,AW,Y,XM,ld,lp,ok)
    w0=p.lab("dnw0")
    p(f"""s_cmp_eq_u32 s{sWAVE}, 0
    s_cbranch_scc1 {w0}
    {"" if CFG['a2'] else "s_nop 5"}
    ds_write_b128 v{t+3}, {vr(Y,4)}
    s_waitcnt lgkmcnt(0)
    s_barrier""")
    END()
    p(f"{w0}:")
    if CFG['hll']:
        p(f"""{XM}
        v_max_u32 v{t+5}, v{HL}, v{HL+2}
        v_cmp_eq_u32 vcc, -1, v{t+5}
        s_mov_b32 s{C}, {SPIN}
        s_cbranch_vccnz L_hlw
        L_hlr:
        s_mov_b64 exec, -1""")
        COLD.append(f"""L_hlw:
        s_sub_u32 s{C}, s{C}, 1
        s_cbranch_scc1 L_hlr
        {ldh}
        s_waitcnt vmcnt(0)
        v_max_u32 v{t+5}, v{HL}, v{HL+2}
        v_cmp_eq_u32 vcc, -1, v{t+5}
        s_nop 0
        s_cbranch_vccnz L_hlw
        s_branch L_hlr""")
    p(f"""v_lshlrev_b32 v{X+12}, 16, v{HL}
    v_and_b32 v{X+13}, 0xffff0000, v{HL}
    v_lshlrev_b32 v{X+14}, 16, v{HL+1}
    v_and_b32 v{X+15}, 0xffff0000, v{HL+1}
    v_lshlrev_b32 v{X+16}, 16, v{HL+2}
    v_and_b32 v{X+17}, 0xffff0000, v{HL+2}
    v_lshlrev_b32 v{X+18}, 16, v{HL+3}
    v_and_b32 v{X+19}, 0xffff0000, v{HL+3}
    s_barrier""")
    STAMP('db')
    for w_ in range(1,4): p(f"ds_read_b128 {vr(X+4*(w_-1),4)}, v{t+3} offset:{w_*1024}")
    for w_ in range(3):
        p(f"s_waitcnt lgkmcnt({2-w_})")
        for k in range(2): p(f"v_pk_add_f32 {vr(Y+2*k,2)}, {vr(Y+2*k,2)}, {vr(X+4*w_+2*k,2)}")
    def rnd():
        p(f"v_cvt_pk_bf16_f32 v{X}, v{Y}, v{Y+1}\nv_cvt_pk_bf16_f32 v{X+1}, v{Y+2}, v{Y+3}")
    def unp():
        for k in range(2): p(f"v_lshlrev_b32 v{Y+2*k}, 16, v{X+k}\nv_and_b32 v{Y+2*k+1}, 0xffff0000, v{X+k}")
    rnd(); unp()
    for k in range(4): p(f"v_mul_f32 v{Y+k}, v{SG}, v{Y+k}")
    rnd(); unp()
    for k in range(2): p(f"v_pk_add_f32 {vr(Y+2*k,2)}, {vr(Y+2*k,2)}, {vr(X+12+2*k,2)}")
    rnd(); unp()
    for k in range(2): p(f"v_pk_add_f32 {vr(Y+2*k,2)}, {vr(Y+2*k,2)}, {vr(X+16+2*k,2)}")
    rnd()
    p(f"""s_mov_b32 exec_lo, 0x00ff00ff
    s_mov_b32 exec_hi, 0x00ff00ff
    buffer_store_dwordx2 {vr(X,2)}, v{aO2}, {S4(sOUT)}, s{sT+1} offen {CFG['fpol']}""")
    STAMP('fin')
    END()
    lp=p.lab("th"); ok=p.lab("thok")
    p("L_plain:")
    if CFG['cpre']:
        sk=p.lab("nocp")
        p(f"""s_sub_u32 s{A}, s{sMI}, {CFG['cpb']}
        s_lshl_b32 s{A}, s{A}, 2
        s_add_u32 s{A}, s{A}, s{sWAVE}
        s_cmp_ge_u32 s{A}, 32
        s_cbranch_scc1 {sk}""")
        if CFG['cpre']==1:
            p(f"s_lshl_b32 s{B}, s{A}, 7\ns_add_u32 s{B}, s{B}, {CA+4}\nv_mov_b32 v{t}, 0")
            flag_poll(t,t+1,B,C,sleep=CFG['cpsl'])
        l2=p.lab("cp"); o2=p.lab("cpok")
        p(f"""s_mul_i32 s{B}, s{A}, 20480
        s_add_u32 s{B}, s{B}, {CAND+36}
        v_lshrrev_b32 v{t}, 5, v0
        v_mul_u32_u24 v{t}, 1280, v{t}
        v_mad_u32_u24 v{t}, v0, 40, v{t}
        s_mov_b32 s{C}, 64
        {l2}:
        buffer_load_dword v{t+1}, v{t}, {S4(sWS)}, s{B} offen sc1
        s_waitcnt vmcnt(0)
        v_cmp_eq_u32 vcc, -1, v{t+1}
        s_nop 0
        s_cbranch_vccz {o2}""")
        spin(C,l2,o2,CFG['cpsl'])
        p(f"s_branch {l2}\n{o2}:")
        STAMP('cp')
        p(f"{sk}:")
    p(f"""s_lshl_b32 s{B}, s{sG}, 7
    s_add_u32 s{B}, s{B}, {TH}
    v_mov_b32 v{t}, 0
    s_mov_b32 s{C}, {SPIN}
    {lp}:
    s_sleep 16
    buffer_load_dwordx2 v[{t+2}:{t+3}], v{t}, {S4(sWS)}, s{B} offen sc1
    s_waitcnt vmcnt(0)
    v_cmp_ne_u32 vcc, s{sTAG}, v{t+3}
    s_nop 0
    s_cbranch_vccz {ok}""")
    spin(C,lp,ok)
    p(f"""s_branch {lp}
    {ok}:
    v_readfirstlane_b32 s{sTHR}, v{t+2}
    s_nop 1""")
    deferred('p')
    STAMP('fin')

def l_old(t,A,B,C,BL,aR,sKQ,sTHR,XM):
    p(f"""v_lshl_add_u32 v{aR}, v{t}, 4, v{aR}
    s_mul_i32 s{A}, s{sKQ}, 320
    s_add_u32 s{A}, s{A}, {CAND}""")
    ld="\n".join(f"buffer_load_dwordx4 {vr(BL+4*i,4)}, v{aR}, {S4(sWS)}, s{A} offen offset:{i*64} sc1" for i in range(5))
    lp=p.lab("gl"); ok=p.lab("glok"); md=p.lab("glm"); nt=p.lab("noth")
    if CFG['xm']: p(XM)
    p(ld)
    p(f"""s_or_b32 s{B}, s{sMI}, s{sWAVE}
    s_cbranch_scc1 {nt}
    v_mov_b32 v{t+4}, s{sTHR}
    v_mov_b32 v{t+5}, s{sTAG}
    s_lshl_b32 s{B}, s{sG}, 7
    s_add_u32 s{B}, s{B}, {TH}
    v_mov_b32 v{t+6}, 0
    s_mov_b64 exec, 1
    buffer_store_dwordx2 v[{t+4}:{t+5}], v{t+6}, {S4(sWS)}, s{B} offen sc1
    {nt}:
    s_mov_b64 exec, -1
    s_lshl_b32 s{B}, s{sWAVE}, 11
    s_add_u32 s{B}, s{B}, {L_RED}
    v_lshl_add_u32 v{t+3}, v0, 4, s{B}
    {XM}
    s_mov_b32 s{C}, {SPIN}
    s_branch {md}
    {lp}:
    {ld}
    {md}:
    s_waitcnt vmcnt(0) lgkmcnt(0)
    v_max3_u32 v{t+4}, v{BL}, v{BL+2}, v{BL+4}
    v_max3_u32 v{t+5}, v{BL+6}, v{BL+8}, v{BL+10}
    v_max3_u32 v{t+4}, v{BL+12}, v{BL+14}, v{t+4}
    v_max3_u32 v{t+5}, v{BL+16}, v{BL+18}, v{t+5}
    v_max_u32 v{t+4}, v{t+4}, v{t+5}
    v_cmp_eq_u32 vcc, -1, v{t+4}
    s_nop 0
    {'s_branch' if 'nocand' in CFG['xp'] else 's_cbranch_vccz'} {ok}""")
    spin(C,lp,ok)
    p(f"s_branch {lp}\n{ok}:")
def act_old(t,A,B,C,BL,AW,Y,XM,ld,lp,ok):
    p(f"""{XM}
    s_mov_b32 s{C}, {SPIN}
    {lp}:
    {ld}
    s_waitcnt vmcnt(8)
    v_max3_u32 v{t+5}, v{BL}, v{BL+2}, v{BL+4}
    v_max3_u32 v{t+6}, v{BL+6}, v{BL+8}, v{BL+10}
    v_max3_u32 v{t+5}, v{BL+12}, v{BL+14}, v{t+5}""")
    for i in range(4,12):
        if i%4==0: p(f"s_waitcnt vmcnt({8-i})")
        p(f"v_max3_u32 v{t+5+(i&1)}, v{BL+4*i}, v{BL+4*i+2}, v{t+5+(i&1)}")
    p(f"""v_max_u32 v{t+5}, v{t+5}, v{t+6}
    v_cmp_eq_u32 vcc, -1, v{t+5}
    s_waitcnt lgkmcnt(0)
    s_cbranch_vccz {ok}""")
    spin(C,lp,ok,CFG['acsl'])
    p(f"s_branch {lp}\n{ok}:")
    STAMP('ar'); COUNT('nar',C,SPIN)
    if CFG['xm']: p("s_mov_b64 exec, -1")
    for s_ in range(12): p(f"v_mfma_f32_16x16x32_bf16 {vr(Y,4)}, {vr(AW+4*s_,4)}, {vr(BL+4*s_,4)}, {vr(Y,4) if s_ else 0}")

def build():
    prologue()
    steps=loader()
    helperA(steps)
    p("s_branch L_mw")
    helperB(steps)
    p("L_mw:")
    moe_weights()
    END()
    if CFG['lay']: p(PG)
    p("L_comp:")
    if CFG['prio']: p(f"s_setprio {CFG['prio']}")
    p("s_waitcnt lgkmcnt(0)")
    STAMP('start')
    prologue2(1)
    if CFG['cpf']: code_pf()
    if CFG['cpa']==2: cp_rest(sT+18); p("s_mov_b64 exec, -1")
    if CFG['tlb']==1:
        for k in range(12):
            p(f"s_mov_b32 s{sT+18}, {k*0x200000+0x1000}\ns_load_dword s100, s[{sWS}:{sWS+1}], s{sT+18}")
    if CFG['tlb']==2:
        p(f"v_lshlrev_b32 v228, 19, v0\nv_min_u32 v228, 0x1780000, v228\nbuffer_load_dword v229, v228, {S4(sWS)}, 0 offen")
    srd(((sX,2621440),))
    if CFG['hclr'] or CFG['lclr']: assert CFG['clr']==0 and CFG['odn'] and CFG['wsp']; CFG['clate']=9
    if CFG['clr']==0 and CFG['clate']==0: clears(0); clears(1)
    STAMP('c1')
    att_setup()
    STAMP('c2')
    if CFG['clr']==0 and CFG['clate']==1: clears(0); clears(1)
    gemm_setup()
    STAMP('c3')
    if CFG['clr']: clears(0)
    if CFG['clr']==0 and CFG['clate']==2: clears(0); clears(1)
    STAMP('c4')
    p("s_waitcnt lgkmcnt(0)")
    STAMP('c5')
    mktag()
    p(f"""    s_cmp_eq_u32 s{sLC}, 15
    s_cbranch_scc1 L_gS
    s_cmp_eq_u32 s{sTY}, 2
    s_cbranch_scc1 L_gV""")
    if CFG['lay']:
        p("s_branch L_gT")
        n0=len(p.L)
        p(PG)
        if CFG['pade']: p("L_padT:\ns_branch L_comp")
        p("L_gT:"); gemm_loop('T'); gemm_epi('T'); p("s_branch L_att")
        if CFG['dcs']: cs_block('T')
        n1=len(p.L)
        p("L_gS:"); idle_gemm(); p("s_branch L_att")
        COLD.insert(0,"\n".join(p.L[n1:])); del p.L[n1:]
        if CFG['pade']: p("L_padV:\ns_branch L_comp")
        if CFG['g16'] and CFG['gpg']: p(PG)
        p("L_gV:"); gemm_loop('V'); gemm_epi('V'); p("s_branch L_att")
        if CFG['dcs']: cs_block('V')
        G_=p.L[n0:]; del p.L[n0:]
        p("L_att:")
        att_go()
        p.L+=G_
    else:
        gemm_loop('T'); gemm_epi('T'); p("s_branch L_att")
        p("L_gS:"); idle_gemm(); p("s_branch L_att")
        p("L_gV:"); gemm_loop('V'); gemm_epi('V')
        p("L_att:")
        att_go()
    for w in range(4): att_variant(w)
    att_fin()
    wo_main()
    if CFG['stop']<=3:
        p(f"s_and_b64 exec, s[{sCAND}:{sCAND+1}], -1\ns_cbranch_scc0 L_noo2"); out_store(); p("L_noo2:")
    else: moe()
    END()
    att_cold()
    SL={3:('L_og0:','L_og1:','L_og3:'),2:('L_og5:','L_og7:'),1:('L_wo2w:','L_ldw:')+(() if CFG['hs2'] else ('L_hlw:',))} if CFG['cslot'] and CFG['lay'] else {}
    for w in range(4):
        i=p.L.index(f";@slot{w}"); mv=[c for c in COLD if c.strip().startswith(SL.get(w,('-',)))]
        q=P()
        for c in mv: q(c); COLD.remove(c)
        p.L[i:i+1]=q.L
    for c in COLD: p(c)
    p("L_exit:\ns_endpgm")
build()
errs=check(p.L)
hdr=f"""; generated by work/k/gen.py (own generator script)
; @launch grid=(256,1,1) block=(512,1,1) lds=163840
.amdgcn_target "amdgcn-amd-amdhsa--gfx950"
.text
.globl {NAME}_kernel
{".p2align 12" if CFG['pal'] else ""}
{f".fill {(CFG['pal']-1)*64}, 4, 0xbf810000" if CFG['pal']>1 else ""}
.p2align 8
.type {NAME}_kernel,@function
{NAME}_kernel:
"""
ftr=f""".section .rodata,"a"
.p2align 6
.amdhsa_kernel {NAME}_kernel
  .amdhsa_next_free_vgpr 256
  .amdhsa_next_free_sgpr 102
  .amdhsa_accum_offset 256
  .amdhsa_group_segment_fixed_size 0
  .amdhsa_kernarg_size 88
  .amdhsa_user_sgpr_count 2
  .amdhsa_user_sgpr_kernarg_segment_ptr 1
  .amdhsa_system_sgpr_workgroup_id_x 1
.end_amdhsa_kernel
"""
import align8
def fmt(L):
    q=P(); q.L=L; return q.text()
if CFG['al8']: print("align8",align8.align(p.L,hdr,ftr,fmt,sys.argv[1]+".tmp.s",CFG['al8']))
if CFG.get('alst'): print(align8.stat(p.L,hdr,ftr,fmt,sys.argv[1]+".tmp.s"))
open(sys.argv[1],"w").write(hdr+p.text()+ftr)

import subprocess
r=subprocess.run(["clang","-x","assembler","-target","amdgcn-amd-amdhsa","-mcpu=gfx950",sys.argv[1],"-o",sys.argv[1]+".co"],capture_output=True,text=True)
if r.returncode: print(r.stderr[:3000]); sys.exit(1)
r=subprocess.run(["python3","cdna_unwritten_srd_check.py",sys.argv[1]+".co"],capture_output=True,text=True)
if r.returncode: print("SRDCHECK:",r.stdout[-3000:],r.stderr[-1000:])
r=subprocess.run("llvm-size -A "+sys.argv[1]+".co | grep text",shell=True,capture_output=True,text=True); print(r.stdout.strip())
if errs:
    import os; os.remove(sys.argv[1]); sys.exit(1)
```

```python
import sys, math
from asmlib import *
NAME="sequential_preLN__sliding_block__moe_arch_mod__prompt"
CFG=dict(csv=0, csp=(4,5,6,7,8,9,10,11), g16x=1, hpr=0, hme=2, sf2=4, cpn=4, cpv=0, sfe=0, gpg=1, g16r=(1,)*12, g16c=(13,15), g16b=3, dcs=0, dcg=7, g16=1, hpol='sc1', ospol='sc1', qth=(), qthn=0, qb1=0, epi2=2, epo='cb', hs2p=0, hs2=0, hs2u=2, hs2g='FS', hs2s=1, lclr=0, lcu=3, lcs=8, lcg='G2', htop=0, cae=0, jb=1, cslot=1, pks=4, lay=1, padk=0, pade=0, cpa=1, cpe=8, epf=1, b1p=0, pal=1, ahp=0, fpol='sc1', xdma=1, prm=25, ob2=0, psq=1, ldma=1, asp=1, a2=1, cpre=0, cpsl=2, cpb=17, hsl2=2, ogate=4, honly=0, hsp=0, wpause=0, hdef=-1, hdg='FS', xru=17, xrd=0, ahint=12, ptc='', chint=0, dtn=1, hll=1, xm=1, kqr=0, dasl=0, dth=0, odf=0, mrm=1, g2nd=('O1',10), smx=2, smd=0, hst=0, wgf='M', shf=1, gm='no', gr='G1', tlb=0, rld=0, al8=0, ldp='sc1', ldo='sc1', wsp=1, wla2=7, ogr2=(1,2,2,2,3), orem2=(6,1), wwe2=2, smw=(), smo=(3,6), mtr=(0,10), mth=0, wburst=0, mtg='RL', wts=99, wsplit=1, wnoa=0, hclr=0, cst=(3,3), hsent=0, hkv=0, hgate='G1', hrs=0, osent=1, ogr=(2,3,5,2,3,5), opoll='half', osl=(0,0), oini=10, orem=25, clate=1, oprb=0, odn=1, hstep=6, qpol='', apol='', cpol='', wb=(), wbs=31, ht=0, hpoll=0, hsl=1, wog2=0, hearly=0, stg=6, stb=0, ord='xw,xw,xw,xw,xw,xw,xw,xw,xw,xw', amp=None, wose=2, late1=1, sdef=(1,1,1,1), pt2=8, qpair2=0, nacc=8, sfirst=1, prio=0, smode='dot', sfill=(), acsl=0, casl=0, xp=(), dw3=0, wla=7, wwe=2, dgate='PS', dstart='O1', gstart='WE', mdep=10, ddep=12, qpair=0, mpair=0, wpair=0, xnt=0, wnt=0, tpol2='', wtw='no', mtw='w3', wothr1=6, mb=(6,6), mg=('WOD','PR','PR','O1'), mpf=0, mgate='b3', hsplit=0, cpf=0, npf=(0,)*10, wogs=5, clr=0, wot=(), wtpol='', seqs=None, xpol='nt', wpol='', tpol='', wopol='', mpol='', cal=None, opol='', st=['start','b0|hb0','gend|hb9','E1|hE1','st|halo|clr','fl|g2|wo','fseen|h2','kv','aend','ost'], pt=8, wothr=12, wogate=1, h2sl=1, noh2=0, nowo=0, wos=(0,0,0), sched=(1,2,1,1,1,1,1,0,0,0), dbg=0, stop=99, prof=0, rot=('0055','36094758','05162738'), force_slow=0, noclr=0, pre=2, ldst=0, nomfma=0, nohello=0)
for a in sys.argv[2:]:
    k,v=a.split("="); CFG[k]=eval(v)
QB,KB,VB,KH,VH,OB=[i*0x280000 for i in range(6)]
CAND=0xF00000
PS=0xFA0000
CA=0xFE0000
ACT=0xFE1000
HB=0x1000000
PROF=0x1300000
H1=0x1280000; H2=0x1281000; EPO=0x1282000; TH=0x1283000; AH=0x1284000; CH_=0x1285000; H2B=0x1288000
STP=0x1680000; STX=0x1780000
FO=0x1700000; OB2=0x1400000; FL=0x12A0000; FH=0x1740000
CSX=0x12C0000
L_STG=0; L_KV=10240; L_WO=55296; L_MISC=157696; L_MW=0
L_CS=L_MISC
L_SA=L_MISC+512
L_SR=L_SA+1024
L_MODE=L_SR+512
L_FLG=L_MODE+64
F_G1,F_G2,F_H2,F_STG,F_SCP,F_DONE,F_WOR,F_MW=[L_FLG+4*i for i in (0,1,2,4,8,9,10,12)]
L_SWS=L_FLG+80; F_O1=L_FLG+44; F_WOD=L_FLG+64; F_PR=L_FLG+68; F_WO2=L_FLG+72; F_PS=L_FLG+76; F_FS=L_FLG+84; F_LD=L_FLG+88; F_X=L_FLG+96; F_M=L_FLG+112; F_HR=L_FLG+120; F_RI=L_FLG+124; F_OWN=L_FLG+92
F_CC=L_FLG+12; ND=5 if CFG['lclr'] else 4
L_KEYS=L_FLG+128
L_CA=L_KEYS+256; L_TOP=L_CA+64
L_SM=131072
L_RED=L_WO
sX,sW,sWO,sWG,sWU,sWD,sOUT,sWS,sDBG,sWR=[4+4*i for i in range(10)]
sWAVE,sG,sSLOT,sRQ,sHH,sRB,sCT,sMODE,sEP,sTAG=range(44,54)
sT=54
sMI=39
sBK=3
sLO=76
sPROF=80
p=P()
COLD=[]
CALI=lambda: 's_memtime' if CFG['cal'][1]>20000 else 's_memrealtime'
def STAMP(name,w=0):
    if CFG['amp']:
        a=CFG['amp']
        if name=='entry': p(f"s_memrealtime s[{sPROF+8}:{sPROF+9}]")
        for k in (0,1):
            if name==a[k]:
                p(f"{'s_memrealtime' if a[2]=='r' else 's_memtime'} s[{sPROF+2*k}:{sPROF+2*k+1}]")
                if w: p("s_waitcnt lgkmcnt(0)")
    if CFG['cal'] and name in CFG['cal'][0].split('|'):
        p(f"{CALI()} s[{sPROF}:{sPROF+1}]")
        if w: p("s_waitcnt lgkmcnt(0)")
    i=[k for k,n in enumerate(CFG['st']) if name in n.split('|')]
    if CFG['prof'] and i:
        i=i[0]
        p(f"{'s_memrealtime' if CFG['prof']==2 else 's_memtime'} s[{sPROF+2*i}:{sPROF+2*i+1}]")
        if w: p("s_waitcnt lgkmcnt(0)")
def COUNT(name,cnt,full):
    i=[k for k,n in enumerate(CFG['st']) if name in n.split('|')]
    if CFG['prof'] and i:
        r=sPROF+2*i[0]
        p(f"s_waitcnt lgkmcnt(0)\ns_sub_u32 s{r}, {full}, s{cnt}\ns_mul_i32 s{r}, s{r}, 100\ns_add_u32 s{r}, s{r}, s{sPROF}")
def PROFDUMP():
    if not CFG['prof']: return
    p("s_waitcnt vmcnt(0) lgkmcnt(0)")
    p("s_mov_b64 exec, -1")
    for i in range(10): p(f"v_mov_b32 v{2+i}, s{sPROF+2*i}")
    p(f"""s_lshl_b32 s{sT}, s2, 3
    s_add_u32 s{sT}, s{sT}, s{sWAVE}
    s_lshl_b32 s{sT}, s{sT}, 6
    s_add_u32 s{sT}, s{sT}, {PROF}
    v_mov_b32 v1, 0
    s_mov_b64 exec, 1
    buffer_store_dwordx4 v[2:5], v1, s[{sWS}:{sWS+3}], s{sT} offen
    buffer_store_dwordx4 v[6:9], v1, s[{sWS}:{sWS+3}], s{sT} offen offset:16
    s_getpc_b64 s[{sT+2}:{sT+3}]
    v_mov_b32 v12, s{sT+2}
    v_mov_b32 v13, s{sT+3}
    buffer_store_dwordx4 v[10:13], v1, s[{sWS}:{sWS+3}], s{sT} offen offset:32""")
def END():
    PROFDUMP()
    if CFG['amp']:
        a=CFG['amp']
        lp=p.lab("amp"); ok=p.lab("ampok")
        p(f"""s_waitcnt vmcnt(0) lgkmcnt(0)
        s_cmp_eq_u32 s{sPROF+2}, 0
        s_cbranch_scc1 {ok}
        s_cmp_lg_u32 s{sWAVE}, {a[5] if len(a)>5 else 0}
        s_cbranch_scc1 {ok}""")
        if a[4]>=0: p(f"s_cmp_lg_u32 s2, {a[4]}\ns_cbranch_scc1 {ok}")
        p(f"""s_sub_u32 s{sPROF+6}, s{sPROF+2}, s{sPROF}
        s_mul_i32 s{sPROF+6}, s{sPROF+6}, {a[3]}
        s_lshr_b32 s{sPROF+6}, s{sPROF+6}, 4
        s_min_u32 s{sPROF+6}, s{sPROF+6}, 100000
        s_add_u32 s{sPROF+6}, s{sPROF+6}, 3000
        s_mov_b32 s{sPROF+4}, 100000
        {lp}:
        s_sleep 2
        s_memrealtime s[{sPROF+2}:{sPROF+3}]
        s_sub_u32 s{sPROF+4}, s{sPROF+4}, 1
        s_cbranch_scc1 {ok}
        s_waitcnt lgkmcnt(0)
        s_sub_u32 s{sPROF+2}, s{sPROF+2}, s{sPROF+8}
        s_cmp_lt_u32 s{sPROF+2}, s{sPROF+6}
        s_cbranch_scc1 {lp}
        {ok}:""")
    if CFG['cal']:
        lp=p.lab("cal"); ok=p.lab("calok")
        p(f"""s_waitcnt vmcnt(0) lgkmcnt(0)
        s_cmp_eq_u32 s{sPROF}, 0
        s_cbranch_scc1 {ok}
        s_cmp_ge_u32 s{sWAVE}, 4
        s_cbranch_scc1 {ok}
        s_mov_b32 s{sPROF+4}, 100000
        {lp}:
        s_sleep 2
        {CALI()} s[{sPROF+2}:{sPROF+3}]
        s_sub_u32 s{sPROF+4}, s{sPROF+4}, 1
        s_cbranch_scc1 {ok}
        s_waitcnt lgkmcnt(0)
        s_sub_u32 s{sPROF+2}, s{sPROF+2}, s{sPROF}
        s_cmp_lt_u32 s{sPROF+2}, {CFG['cal'][1]}
        s_cbranch_scc1 {lp}
        {ok}:""")
    p("s_endpgm")
S4=lambda r:f"s[{r}:{r+3}]"
SPIN=1<<18

def srd(lst):
    for r,n in lst: p(f"s_mov_b32 s{r+2}, {n}\ns_mov_b32 s{r+3}, 0x20000")
def prologue():
    STAMP('entry')
    p(f"""s_cmp_ge_u32 s2, 256
    s_cbranch_scc1 L_exit
    s_load_dwordx2 s[{sX}:{sX+1}], s[0:1], 0
    s_load_dwordx2 s[{sW}:{sW+1}], s[0:1], 8
    s_load_dwordx2 s[{sWS}:{sWS+1}], s[0:1], 80
    v_lshrrev_b32 v1, 6, v0
    v_and_b32 v0, 63, v0
    v_readfirstlane_b32 s{sWAVE}, v1
    s_and_b32 s{sG}, s2, 7
    s_lshr_b32 s{sSLOT}, s2, 3
    s_lshr_b32 s{sRQ}, s{sG}, 1
    s_and_b32 s{sHH}, s{sG}, 1
    s_and_b32 s{sRB}, s{sSLOT}, 3
    s_lshr_b32 s{sCT}, s{sSLOT}, 2
    s_lshl_b32 s{sBK}, s{sRQ}, 2
    s_add_u32 s{sBK}, s{sBK}, s{sRB}
    s_cmp_gt_u32 s{sCT}, 2
    s_subb_u32 s{sBK}, s{sBK}, 0
    s_and_b32 s{sBK}, s{sBK}, 15""")
    if CFG['cal']: p(f"s_mov_b32 s{sPROF}, 0")
    if CFG['amp']: p(f"s_mov_b32 s{sPROF+2}, 0")
    if CFG['prof']:
        for i in range(1,10): p(f"s_mov_b32 s{sPROF+2*i}, 0")
    if not CFG['cpe']:
        p(f"""s_cmp_lt_u32 s{sWAVE}, 4
        s_cbranch_scc1 L_comp""")
        return
    A=sT+18; K=NAME+"_kernel"
    n=CFG['cpe']
    reg=[f"({K}+0x400-L_pc0)",f"(L_comp-L_pc0)",f"(L_comp+0x1000-L_pc0)",f"({K}+0x1400-L_pc0)"]
    if CFG['cpv']: reg[CFG['cpv']-1]="(L_comp+0x2000-L_pc0)"
    lit="|".join(f"((({r}>>8)&0xff)<<{8*i})" for i,r in enumerate(reg))
    p(f"""s_cmp_lt_u32 s{sWAVE}, 4
    s_cbranch_scc0 L_help
    s_getpc_b64 s[{A}:{A+1}]
    L_pc0:
    s_lshl_b32 s{A+2}, s{sWAVE}, 3
    s_lshr_b32 s{A+2}, {lit}, s{A+2}
    s_and_b32 s{A+2}, s{A+2}, 0xff
    s_and_b32 s{A+3}, s{sSLOT}, {32//n-1}
    s_lshl_b32 s{A+2}, s{A+2}, 8
    s_mul_i32 s{A+3}, s{A+3}, {n*128}
    s_and_b32 s{A}, s{A}, 0xffffff80
    s_add_u32 s{A+2}, s{A+2}, s{A+3}
    v_lshl_add_u32 v1, v0, 7, s{A+2}
    s_mov_b64 exec, {hex((1<<n)-1)}
    global_load_dwordx2 v[228:229], v1, s[{A}:{A+1}] offset:60""")
    if CFG['cpa']==1: cp_rest(A)
    p("s_mov_b64 exec, -1")
    if CFG['lay'] and CFG['pade']: p(f"""s_cmp_eq_u32 s{sWAVE}, 3
    s_cbranch_scc1 L_padT
    s_cmp_eq_u32 s{sWAVE}, 2
    s_cbranch_scc1 L_padV""")
    p(f"""s_branch L_comp
    L_help:""")
def cp_rest(A):
    p(f"""s_lshl_b32 s{A+2}, s{sSLOT}, 2
    s_add_u32 s{A+2}, s{A+2}, s{sWAVE}
    s_mul_i32 s{A+2}, s{A+2}, {128*CFG['cpn']}
    s_add_u32 s{A+2}, s{A+2}, ({NAME}_kernel+0x2400-L_pc0)&0xffffff00
    s_min_u32 s{A+2}, s{A+2}, (L_exit-L_pc0-{128*CFG['cpn']})&0xffffff80
    s_mov_b64 exec, {(1<<CFG['cpn'])-1}
    v_lshl_add_u32 v1, v0, 7, s{A+2}
    global_load_dwordx2 v[194:195], v1, s[{A}:{A+1}] offset:60""")
def prologue2(comp=0):
    if comp:
        p(f"""s_mov_b32 s{sTAG}, {EPO}
        s_load_dword s{sEP}, s[{sWS}:{sWS+1}], s{sTAG}
        s_load_dwordx2 s[{sWR}:{sWR+1}], s[0:1], 32
        s_load_dwordx2 s[{sOUT}:{sOUT+1}], s[0:1], 64""")
        srd(((sWS,268435456),(sWR,1280),(sOUT,2621440)))
        p(f"""s_mov_b32 s{sLO}, -1
        s_mov_b32 s{sLO+1}, 0
        s_mov_b32 s{sLO+2}, 0xfffff
        s_mov_b32 s{sLO+3}, 0xfffff""")
        return
    if not CFG['epf']: p(f"""s_mov_b32 s{sTAG}, {EPO}
    s_load_dword s{sEP}, s[{sWS}:{sWS+1}], s{sTAG}""")
    p(f"""s_load_dwordx2 s[{sWO}:{sWO+1}], s[0:1], 16
    s_load_dwordx2 s[{sWR}:{sWR+1}], s[0:1], 32
    s_load_dwordx2 s[{sWG}:{sWG+1}], s[0:1], 40
    s_load_dwordx2 s[{sWU}:{sWU+1}], s[0:1], 48
    s_load_dwordx2 s[{sWD}:{sWD+1}], s[0:1], 56
    s_load_dwordx2 s[{sOUT}:{sOUT+1}], s[0:1], 64""")
    srd(((sWS,268435456),(sWO,819200),(sWR,1280),(sWG,1966080),(sWU,1966080),(sWD,1966080),(sOUT,2621440)))
    p(f"""s_mov_b32 s{sLO}, -1
    s_mov_b32 s{sLO+1}, 0
    s_mov_b32 s{sLO+2}, 0xfffff
    s_mov_b32 s{sLO+3}, 0xfffff""")
def moe_role():
    A=sT+20
    if not CFG['mrm']: p(f"s_mov_b32 s{sMI}, s{sSLOT}"); return
    p(f"""s_lshr_b32 s{A}, s{sSLOT}, 3
    s_sub_u32 s{sMI}, s{sSLOT}, s{A}
    s_sub_u32 s{sMI}, s{sMI}, 1
    s_add_u32 s{A}, s{A}, 28
    s_and_b32 s{A+1}, s{sSLOT}, 7
    s_cselect_b32 s{sMI}, s{sMI}, s{A}""")
def mktag():
    p(f"""s_mul_i32 s{sTAG}, s{sEP}, 0x9e3779b1
    s_add_u32 s{sTAG}, s{sTAG}, 0x7f4a7c15
    s_and_b32 s{sTAG}, s{sTAG}, -16""")
def colbyte(dst, lc):
    t=sT+18
    p(f"""s_mul_i32 s{t}, s{lc}, 52
    s_lshr_b32 s{t}, s{t}, 8
    s_add_u32 s{t}, s{t}, s{sHH}
    s_mul_i32 s{t}, s{t}, 640
    s_lshl_b32 s{dst}, s{lc}, 7
    s_add_u32 s{dst}, s{dst}, s{t}""")

def loader():
    CA_=sT+1; CB_=sT+2; CH=sT+3; XO=sT+4; WO_=sT+5; LB=sT+6; A=sT+7; B=sT+8; OFF=sT+9; SEQ=sT+10
    vX=2; vW=6; vt=10
    p(f"""s_sub_u32 s{HW}, s{sWAVE}, 4
    s_lshl_b32 s{A}, s{sCT}, 1
    s_cmp_gt_u32 s{sCT}, 2
    s_subb_u32 s{A}, s{A}, 0
    s_cmp_lg_u32 s{sCT}, 2
    s_addc_u32 s{B}, s{A}, 0""")
    colbyte(CA_,A); colbyte(CB_,B)
    p(f"""v_lshrrev_b32 v{vt}, 3, v0
    v_mul_u32_u24 v{vX}, 1280, v{vt}
    v_lshrrev_b32 v{vt+1}, 4, v0
    v_and_b32 v{vt+2}, 7, v0
    v_xor_b32 v{vt+2}, v{vt+2}, v{vt+1}
    v_lshl_add_u32 v{vX}, v{vt+2}, 4, v{vX}
    v_xor_b32 v{vX+1}, 64, v{vX}
    v_add_u32 v{vX+1}, {10240-1024}, v{vX+1}
    v_add_u32 v{vX+2}, {(1 if CFG['g16'] else 2)*(10240-1024)}, v{vX+CFG['g16']}
    v_add_u32 v{vX+3}, {(3 if CFG['g16'] else 2)*(10240-1024)}, v{vX+1-CFG['g16']}
    v_lshlrev_b32 v{vt+2}, 2, v{vt+1}
    v_and_b32 v{vt+3}, 15, v0
    v_xor_b32 v{vt+2}, v{vt+2}, v{vt+3}
    v_cmp_lt_u32 vcc, 7, v{vt+2}
    v_mov_b32 v{vt+3}, s{CA_}
    v_mov_b32 v{vt+4}, s{CB_}
    v_cndmask_b32 v{vt+3}, v{vt+3}, v{vt+4}, vcc
    v_and_b32 v{vt+2}, 7, v{vt+2}
    v_lshl_add_u32 v{vt+3}, v{vt+2}, 4, v{vt+3}
    v_mul_u32_u24 v{vW}, 3840, v{vt+1}
    v_add_u32 v{vW}, v{vW}, v{vt+3}""")
    for i in range(1,4): p(f"v_add_u32 v{vW+i}, {i*(4*3840-1024)}, v{vW}")
    if CFG['g16']: p(f"v_xor_b32 v{vW+2}, 32, v{vW+2}\nv_xor_b32 v{vW+3}, 32, v{vW+3}")
    ta,tc,tg=CFG['rot']
    pk=lambda t: sum(int(v)<<(4*i) for i,v in enumerate(t))
    p(f"""s_and_b32 s{A}, s{sBK}, 3
    s_lshl_b32 s{A}, s{A}, 2
    s_lshr_b32 s{CH}, {pk(ta)}, s{A}
    s_and_b32 s{CH}, s{CH}, 15
    s_lshl_b32 s{A}, s{sCT}, 2
    s_lshr_b32 s{A}, {hex(pk(tc))}, s{A}
    s_and_b32 s{A}, s{A}, 15
    s_add_u32 s{CH}, s{CH}, s{A}
    s_lshr_b32 s{A}, s{sBK}, 2
    s_lshl_b32 s{A}, s{A}, 1
    s_add_u32 s{A}, s{A}, s{sHH}
    s_lshl_b32 s{A}, s{A}, 2
    s_lshr_b32 s{A}, {hex(pk(tg))}, s{A}
    s_and_b32 s{OFF}, s{A}, 15""")
    seqs=CFG['seqs']
    if seqs:
        n=len(seqs)
        p(f"""s_mul_i32 s{A}, s{CH}, {-(-2048//n)}
        s_lshr_b32 s{A}, s{A}, 11
        s_mul_i32 s{A}, s{A}, {n}
        s_sub_u32 s{CH}, s{CH}, s{A}""")
        for i,q in enumerate(seqs):
            assert sorted(q)==list("0123456789")
            if i: p(f"s_cmp_eq_u32 s{CH}, {i}\ns_cselect_b32 s{SEQ}, {hex(pk(q[:8]))}, s{SEQ}\ns_cselect_b32 s{SEQ+1}, {hex(pk(q[8:]))}, s{SEQ+1}")
            else: p(f"s_mov_b32 s{SEQ}, {hex(pk(q[:8]))}\ns_mov_b32 s{SEQ+1}, {hex(pk(q[8:]))}")
    else:
        p(f"""s_add_u32 s{CH}, s{CH}, s{OFF}
    s_mul_i32 s{A}, s{CH}, 205
    s_lshr_b32 s{A}, s{A}, 11
    s_mul_i32 s{A}, s{A}, 10
    s_sub_u32 s{CH}, s{CH}, s{A}""")
    p(f"""
    s_lshl_b32 s{A}, s{sBK}, 2
    s_add_u32 s{A}, s{A}, s{HW}
    s_mul_i32 s{XO}, s{A}, {32*1280}
    s_mul_i32 s{WO_}, s{HW}, {16*3840}
    s_lshl_b32 s{LB}, s{HW}, 12""")
    CHW=SEQ
    p(f"s_mov_b32 s{CHW}, s{CH}")
    nx=dict(x=0,w=0)
    def issue(order,lim):
        global OPS
        for k in order:
            if k in 'qh':
                ql=p.lab("qth")
                if k=='q': p(f"s_cmp_gt_u32 s{sCT}, 2")
                else: halo_cond(A,B)
                p(f"s_cbranch_scc1 {ql}\ns_waitcnt vmcnt({CFG['qthn']})\n{ql}:")
                continue
            c=nx[k]; nx[k]+=1; assert c<=min(9,lim)
            slot=(c%4)*32768; ch=CH if k=='x' else CHW
            if k=='x': p(f"""s_lshl_b32 s{A}, s{ch}, 7
                s_add_u32 m0, s{LB}, {slot}
                s_add_u32 s{A}, s{A}, s{XO}""")
            else: p(f"""s_mul_i32 s{A}, s{ch}, {64*3840}
                s_add_u32 m0, s{LB}, {slot+16384}
                s_add_u32 s{A}, s{A}, s{WO_}""")
            for i in range(4):
                if c>=5 and ('nol'+k) in CFG['xp']: p(f"s_mov_b64 exec, 1\nbuffer_load_dwordx4 v{vX+i}, {S4(sX)}, s{XO} offen lds\ns_mov_b64 exec, -1"); continue
                if k=='x': p(f"buffer_load_dwordx4 v{vX+i}, {S4(sX)}, s{A} offen offset:{i*1024} {CFG['xpol'] if c<CFG['xnt'] else ''} lds")
                else: p(f"buffer_load_dwordx4 v{vW+i}, {S4(sW)}, s{A} offen offset:{i*1024} {'nt' if c<CFG['wnt'] else CFG['wpol']} lds")
            p(f"""s_add_u32 s{ch}, s{ch}, 1
            s_cmp_eq_u32 s{ch}, 10
            s_cselect_b32 s{ch}, 0, s{ch}""")
            OPS+=[c]*4
    ORD=CFG['ord'].split(',')
    srd(((sX,2621440),(sW,2457600)))
    if CFG['epf']: p(f"s_mov_b32 s{sTAG}, {EPO}")
    p("s_waitcnt lgkmcnt(0)")
    if CFG['epf']: p(f"s_load_dword s{sEP}, s[{sWS}:{sWS+1}], s{sTAG}")
    STAMP('i0')
    def b1():
        STAMP('i1s')
        if CFG['qb1']:
            ql=p.lab("qth"); p(f"s_cmp_gt_u32 s{sCT}, 2\ns_cbranch_scc1 {ql}\ns_waitcnt vmcnt({CFG['qb1']-1})\n{ql}:")
        issue(ORD[1],3)
        STAMP('i1e')
    for c in range(1):
        issue(ORD[0],3); STAMP('i%d'%(c+1))
        if CFG['b1p']==2: b1()
        if c==0:
            prologue2()
            p(f"""v_cmp_lt_u32 vcc, 7, v0
            v_lshlrev_b32 v{vt}, 4, v0
            v_add_u32 v{vt}, {L_FLG}, v{vt}
            v_cndmask_b32 v{vt+2}, 0, -1, vcc
            v_cndmask_b32 v{vt+3}, 0, -1, vcc
            v_cndmask_b32 v{vt+4}, 0, -1, vcc
            v_cndmask_b32 v{vt+5}, 0, -1, vcc
            ds_write_b128 v{vt}, v[{vt+2}:{vt+5}]""")
            early()
    if CFG['b1p']==1: b1()
    p("s_waitcnt lgkmcnt(0)")
    STAMP('epo')
    mktag()
    stats_setup()
    p(f"s_cmp_ge_u32 s{HW}, 2\ns_cbranch_scc1 L_helperB")
    nx0=dict(nx); ops0=list(OPS)
    def steps(hook,isB):
        global OPS
        nx.update(nx0); OPS=list(ops0)
        if CFG['b1p']==0: b1()
        if CFG['hclr']: hclear_setup(isB)
        if CFG['smw'] or CFG['smo']: sm_setup()
        for c in range(8):
            sd=CFG['sdef']
            if c==0 and -1 in sd:
                assert ORD[0][0]=='x'; p(f"s_waitcnt vmcnt({len(OPS)-4})")
                STAMP('x0')
                fill=stats(0)
                for k in range(4):
                    if sd[k]==-1: p(fill[k])
                if max(sd)==-1: stats_red()
            vmwait(c)
            STAMP('d%d'%c)
            p("s_barrier")
            STAMP('ld%d'%c)
            if c==0 and -1 not in sd: fill=stats(0)
            if c==CFG['stg'] and CFG['stb']: stats_get(); hook(100)
            if CFG['hclr']: hclear(c,isB)
            if not isB: hook(200+c)
            if c in CFG['qth']:
                ql=p.lab("qth"); p(f"s_cmp_gt_u32 s{sCT}, 2\ns_cbranch_scc1 {ql}\ns_waitcnt vmcnt({CFG['qthn']})\n{ql}:")
            issue(ORD[2+c],c+3)
            if c==0: p("s_waitcnt lgkmcnt(0)")
            for k in range(4):
                if sd[k]==c: p(fill[k])
            if c==max(0,max(sd)):
                if max(sd)>=0: stats_red()
                stats_pub(); OPS.append('stw')
            if c==CFG['stg'] and not CFG['stb']: stats_get(); hook(100)
            hook(c)
            sm_touch(c,isB)
            if CFG['lay'] and CFG['padk']==2 and c==CFG['pks']:
                p(f"s_cmp_eq_u32 s{HW}, {2*isB}\ns_cbranch_scc1 L_pv{2*isB}\ns_branch L_pv{2*isB+1}\nL_pkb{isB}:")
        assert nx==dict(x=10,w=10)
    return steps
aS=44; dS=64; sacc=60; sone=43; sDBL=sDBG; sSTP=sDBG+1
def stats_setup():
    vt=10
    tc=[int(x) for x in CFG['rot'][1]]
    assert not CFG['seqs'] and sorted(tc+[(tc[2]+1)%10,(tc[2]+2)%10])==list(range(10))
    p(f"""s_lshl_b32 s{sT+16}, s{HW}, 12
    v_bfe_u32 v{vt}, v0, 1, 3
    v_lshrrev_b32 v{vt+1}, 5, v0
    v_lshlrev_b32 v{vt+1}, 2, v{vt+1}
    v_xor_b32 v{vt}, v{vt}, v{vt+1}
    v_lshlrev_b32 v{vt}, 4, v{vt}
    v_and_b32 v{vt+1}, 31, v0
    v_lshl_add_u32 v{vt}, v{vt+1}, 7, v{vt}
    v_add_u32 v{aS}, s{sT+16}, v{vt}
    v_mov_b32 v{sone}, 0x3f803f80
    s_and_b32 s{sSTP}, s{sBK}, 12
    s_add_u32 s{sSTP}, s{sSTP}, s{sBK}
    s_lshl_b32 s{sT+16}, s{sHH}, 2
    s_add_u32 s{sSTP}, s{sSTP}, s{sT+16}
    s_lshl_b32 s{sSTP}, s{sSTP}, 14
    s_lshl_b32 s{sT+16}, s{HW}, 9
    s_add_u32 s{sSTP}, s{sSTP}, s{sT+16}
    s_add_u32 s{sSTP}, s{sSTP}, {STP}
    v_lshrrev_b32 v{vt}, 5, v0
    v_lshlrev_b32 v{vt}, 11, v{vt}
    v_lshl_add_u32 v{aS+4}, v{vt+1}, 4, v{vt}
    s_lshl_b32 s{sT+16}, s{sCT}, 11
    s_cmp_eq_u32 s{sCT}, 2
    s_cselect_b32 s{sT+16}, {STX-STP}, s{sT+16}
    v_lshl_add_u32 v{aS+5}, v{vt+1}, 4, s{sT+16}""")
    for i in range(1,4): p(f"v_xor_b32 v{aS+i}, {16*i}, v{aS}")
    for i in range(4): p(f"v_mov_b32 v{sacc+i}, 0")
    if CFG['smode'] in ('dotx','dotc'):
        for i in range(2*CFG['nacc']): p(f"v_mov_b32 v{102+i}, 0")
def stats(c):
    if 'nostats' in CFG['xp']: return ['s_nop 0']*4
    for i in range(4): p(f"ds_read_b128 {vr(dS+4*i,4)}, v{aS+i} offset:{c*32768}")
    L=[]
    for i in range(4):
        g=f"s_waitcnt lgkmcnt({3-i})"
        for j in range(4):
            r=dS+4*i+j
            u=80+2*(j&1)
            if CFG['smode']=='dotx':
                a=102+2*((4*i+j)%CFG['nacc']); g+=f"\nv_dot2_f32_bf16 v{a}, v{r}, v{sone}, v{a}\nv_dot2_f32_bf16 v{a+1}, v{r}, v{r}, v{a+1}"
            elif CFG['smode']=='dotc':
                a=102+2*((4*i+j)%CFG['nacc']); g+=f"\nv_dot2c_f32_bf16 v{a}, v{r}, v{sone}\nv_dot2c_f32_bf16 v{a+1}, v{r}, v{r}"
            elif CFG['smode']=='dot': g+=f"\nv_dot2_f32_bf16 v{sacc+(j&1)}, v{r}, v{sone}, v{sacc+(j&1)}\nv_dot2_f32_bf16 v{sacc+2+(j&1)}, v{r}, v{r}, v{sacc+2+(j&1)}"
            elif CFG['smode']=='valu': g+=f"\nv_lshlrev_b32 v{u}, 16, v{r}\nv_and_b32 v{u+1}, 0xffff0000, v{r}\nv_add_f32 v{sacc}, v{sacc}, v{u}\nv_fmac_f32 v{sacc+2}, v{u}, v{u}\nv_add_f32 v{sacc+1}, v{sacc+1}, v{u+1}\nv_fmac_f32 v{sacc+3}, v{u+1}, v{u+1}"
            elif CFG['smode']=='pk': g+=f"\nv_lshlrev_b32 v{u}, 16, v{r}\nv_and_b32 v{u+1}, 0xffff0000, v{r}\nv_pk_add_f32 v[{sacc}:{sacc+1}], v[{sacc}:{sacc+1}], v[{u}:{u+1}]\nv_pk_fma_f32 v[{sacc+2}:{sacc+3}], v[{u}:{u+1}], v[{u}:{u+1}], v[{sacc+2}:{sacc+3}]"
        L.append(g)
    return L
def stats_red():
    t=sacc
    p(f"""s_nop 1
    v_add_f32 v{t}, v{t}, v{t+1}
    v_add_f32 v{t+1}, v{t+2}, v{t+3}
    v_mov_b32 v{t+2}, s{sTAG}
    s_nop 0
    v_permlane32_swap_b32 v{t}, v{t+1}
    s_nop 0
    v_add_f32 v{t}, v{t}, v{t+1}
    v_mov_b32 v{t+1}, v{t}
    s_nop 1
    v_permlane32_swap_b32 v{t}, v{t+1}""")
def stats_pub():
    t=sacc
    p(f"""s_mov_b64 exec, s[{sLO}:{sLO+1}]
    buffer_store_dwordx4 {vr(t,4)}, v{aS+5}, {S4(sWS)}, s{sSTP} offen sc1
    s_mov_b64 exec, -1""")
def stats_ld():
    return "\n".join(f"s_add_u32 s{sSTP+1}, s{sSTP}, {4096*i}\nbuffer_load_dwordx4 {vr(dS+4*i,4)}, v{aS+4}, {S4(sWS)}, s{sSTP+1} offen sc1" for i in range(4))
def stats_get():
    p(stats_ld()); OPS.extend(['stp']*4)
def stats_fin(t,B):
    vmwait('stp')
    lp=p.lab("stl"); ok=p.lab("stok"); rt=p.lab("strt")
    p(f"""s_mov_b32 s{B}, {SPIN}
    {lp}:
    v_xor_b32 v{t}, v{dS+2}, v{dS+6}
    v_xor_b32 v{t+1}, v{dS+10}, v{dS+14}
    v_xor_b32 v{t+2}, s{sTAG}, v{dS+2}
    v_xor_b32 v{t+3}, s{sTAG}, v{dS+10}
    v_or3_b32 v{t}, v{t}, v{t+1}, v{t+2}
    v_or_b32 v{t}, v{t}, v{t+3}
    v_cmp_ne_u32 vcc, 0, v{t}
    v_add_f32 v{t+1}, v{dS}, v{dS+4}
    v_add_f32 v{t+2}, v{dS+1}, v{dS+5}
    s_cbranch_vccnz {rt}
    {ok}:""")
    n0=len(p.L)
    p(f"{rt}:"); spin(B,lp,ok,1); p(stats_ld()); p(f"s_waitcnt vmcnt(0)\ns_branch {lp}")
    COLD.append("\n".join(p.L[n0:])); del p.L[n0:]
    if CFG['sf2']==3 and not CFG['sfe']: p("s_barrier")
    p(f"""v_add_f32 v{t+3}, v{dS+8}, v{dS+12}
    v_add_f32 v{t+4}, v{dS+9}, v{dS+13}
    v_add_f32 v{t+1}, v{t+1}, v{t+3}
    v_add_f32 v{t+2}, v{t+2}, v{t+4}
    s_nop 1
    v_permlane32_swap_b32 v{t+1}, v{t+2}
    s_nop 0
    v_add_f32 v{t+1}, v{t+1}, v{t+2}
    v_mul_f32 v{t+1}, {1/640!r}, v{t+1}
    v_mov_b32 v{t+2}, v{t+1}
    s_nop 1
    v_permlane32_swap_b32 v{t+1}, v{t+2}
    s_nop 0
    v_fma_f32 v{t+2}, -v{t+1}, v{t+1}, v{t+2}
    v_max_f32 v{t+2}, 0, v{t+2}""")
    if CFG['sf2']==2 and not CFG['sfe']: p("s_barrier")
    bf16r(t+2,t+2)
    p(f"v_add_f32 v{t+2}, 0x3727c5ac, v{t+2}")
    bf16r(t+2,t+2)
    p(f"""v_sqrt_f32 v{t+2}, v{t+2}
    v_xor_b32 v{t+1}, 0x80000000, v{t+1}""")
    if CFG['sf2']==4 and not CFG['sfe']: p("s_barrier")
    bf16r(t+2,t+2)
    p(f"""v_rcp_f32 v{t+5}, v{t+2}
    v_cvt_pk_bf16_f32 v{t+4}, v{t+1}, v{t+1}
    v_and_b32 v{t+3}, 31, v0
    s_lshl_b32 s{B}, s{HW}, 8
    s_add_u32 s{B}, s{B}, {L_SA}
    v_lshl_add_u32 v{t+1}, v{t+3}, 3, s{B}
    s_lshl_b32 s{B}, s{HW}, 7
    s_add_u32 s{B}, s{B}, {L_SM}
    v_lshl_add_u32 v{t+2}, v{t+3}, 2, s{B}
    {f"v_and_b32 v{t+4}, 0xffff0000, v{t+4}" if CFG['g16'] else ""}
    ds_write_b64 v{t+1}, v[{t+4}:{t+5}]
    ds_write_b32 v{t+2}, v{t+5} offset:{L_SR-L_SM}
    {f"ds_write_b32 v{t+2}, v{t+4}" if CFG['g16'] else ""}""" if CFG['g16'] else f"""v_rcp_f32 v{t+5}, v{t+2}
    v_cvt_pk_bf16_f32 v{t+4}, v{t+1}, v{t+1}
    v_and_b32 v{t+3}, 31, v0
    s_lshl_b32 s{B}, s{HW}, 8
    s_add_u32 s{B}, s{B}, {L_SA}
    v_lshl_add_u32 v{t+1}, v{t+3}, 3, s{B}
    s_lshl_b32 s{B}, s{HW}, 7
    s_add_u32 s{B}, s{B}, {L_SR}
    v_lshl_add_u32 v{t+2}, v{t+3}, 2, s{B}
    ds_write_b64 v{t+1}, v[{t+4}:{t+5}]
    ds_write_b32 v{t+2}, v{t+5}""")
vPT=21; vDUM=39
HS=sT+12; HA=28
def early():
    A=sT+20; B=sT+21; vt=10
    moe_role()
    p(f"""s_lshl_b32 s{A}, s{sSLOT}, 2
    s_add_u32 s{A}, s{A}, s{HW}
    s_mul_i32 s{A}, s{A}, 60
    v_min_u32 v{vt}, 59, v0
    v_add_u32 v{vt}, s{A}, v{vt}
    v_mul_u32_u24 v{vt+1}, 6554, v{vt}
    v_lshrrev_b32 v{vt+1}, 20, v{vt+1}
    v_mul_u32_u24 v{vt+2}, 160, v{vt+1}
    v_sub_u32 v{vt}, v{vt}, v{vt+2}
    v_lshlrev_b32 v{vt}, 7, v{vt}
    v_cmp_gt_u32 vcc, 32, v{vt+1}
    v_and_b32 v{vt+2}, 1, v{vt+1}
    v_mul_u32_u24 v{vt+2}, 20480, v{vt+2}
    v_lshrrev_b32 v{vt+3}, 4, v{vt+1}
    v_mul_u32_u24 v{vt+4}, 10240, v{vt+3}
    s_mul_i32 s{A}, s{sRQ}, 40960
    v_add3_u32 v{vt+2}, v{vt+2}, v{vt}, s{A}
    v_sub_u32 v{vt+2}, v{vt+2}, v{vt+4}
    v_add_u32 v{vt+4}, 163840, v{vt+2}
    v_min_u32 v{vt+2}, v{vt+2}, v{vt+4}
    v_mul_u32_u24 v{vt+3}, {KB}, v{vt+3}
    v_bfe_u32 v{vt+4}, v{vt+1}, 1, 3
    v_mul_u32_u24 v{vt+4}, 163840, v{vt+4}
    v_add3_u32 v{vt+2}, v{vt+2}, v{vt+3}, v{vt+4}
    s_mul_i32 s{A}, s{sRQ}, 20480
    s_sub_u32 s{A}, s{A}, 5120
    v_add_u32 v{vt}, s{A}, v{vt}
    v_add_u32 v{vt+4}, 81920, v{vt}
    v_min_u32 v{vt}, v{vt}, v{vt+4}
    v_and_b32 v{vt+3}, 15, v{vt+1}
    v_mul_u32_u24 v{vt+3}, 81920, v{vt+3}
    s_mov_b32 s{A}, {VB}
    v_add3_u32 v{vt+3}, v{vt+3}, v{vt}, s{A}
    v_cndmask_b32 v{vt+2}, v{vt+3}, v{vt+2}, vcc
    s_mul_i32 s{A}, s{sHH}, {8*163840}
    v_add_u32 v{vPT}, s{A}, v{vt+2}
""")
    if CFG['honly']:
        p(f"""s_lshl_b32 s{A}, s{sSLOT}, 2
        s_add_u32 s{A}, s{A}, s{HW}
        s_mul_i32 s{A}, s{A}, 60
        v_min_u32 v{vt}, 59, v0
        v_add_u32 v{vt}, s{A}, v{vt}
        v_mul_u32_u24 v{vt+2}, 160, v{vt+1}
        v_sub_u32 v{vt}, v{vt}, v{vt+2}
        v_and_b32 v{vt+2}, 1, v{vt+1}
        v_mul_u32_u24 v{vt+2}, 160, v{vt+2}
        v_add_u32 v{vt+2}, v{vt+2}, v{vt}
        v_lshlrev_b32 v{vt}, 1, v{vt}
        v_cndmask_b32 v{vt}, v{vt}, v{vt+2}, vcc
        s_cmp_lt_u32 s{sRQ}, 3
        s_cselect_b32 s{A}, 0, 80
        s_add_u32 s{A}, s{A}, 160
        v_subrev_u32 v{vt}, 80, v{vt}
        v_cmp_le_u32 vcc, s{A}, v{vt}
        v_cmp_lt_u32 s[{A}:{A+1}], 15, v{vt+1}
        v_mov_b32 v{vt+2}, {KH-KB}
        s_and_b64 vcc, vcc, s[{A}:{A+1}]
        s_nop 0
        v_cndmask_b32 v{vt+2}, 0, v{vt+2}, vcc
        v_add_u32 v{vPT}, v{vPT}, v{vt+2}""")
    if CFG['ht']: p(f"""s_lshl_b32 s{A}, s{sSLOT}, 2
    s_add_u32 s{A}, s{A}, s{HW}
    s_mul_i32 s{B}, s{A}, 20
    v_min_u32 v{vt}, 19, v0
    v_add_u32 v{vt}, s{B}, v{vt}
    v_mul_u32_u24 v{vt+1}, 13108, v{vt}
    v_lshrrev_b32 v{vt+1}, 20, v{vt+1}
    v_mul_u32_u24 v{vt+2}, 80, v{vt+1}
    v_sub_u32 v{vt}, v{vt}, v{vt+2}
    v_lshlrev_b32 v{vt}, 7, v{vt}
    v_cmp_gt_u32 vcc, 16, v{vt+1}
    v_and_b32 v{vt+2}, 1, v{vt+1}
    v_mul_u32_u24 v{vt+2}, 10240, v{vt+2}
    v_lshrrev_b32 v{vt+3}, 1, v{vt+1}
    v_mul_u32_u24 v{vt+3}, 163840, v{vt+3}
    s_mul_i32 s{B}, s{sRQ}, 40960
    s_add_u32 s{B}, s{B}, {KH+20480}
    v_add3_u32 v{vt+2}, v{vt+2}, v{vt+3}, s{B}
    v_and_b32 v{vt+3}, 15, v{vt+1}
    v_mul_u32_u24 v{vt+3}, 81920, v{vt+3}
    s_mul_i32 s{B}, s{sRQ}, 20480
    s_add_u32 s{B}, s{B}, {VH+10240}
    v_add_u32 v{vt+3}, s{B}, v{vt+3}
    v_cndmask_b32 v{vt+2}, v{vt+3}, v{vt+2}, vcc
    s_mul_i32 s{B}, s{sHH}, {8*163840}
    v_add3_u32 v{vHT}, v{vt}, v{vt+2}, s{B}
    s_lshl_b32 s{B}, s{sG}, 7
    s_add_u32 s{A}, s{A}, s{B}
    s_lshl_b32 s{A}, s{A}, 7
    s_add_u32 s{A}, s{A}, {FH}
    v_mov_b32 v{vt}, s{A}
    v_cmp_lt_u32 vcc, 19, v0
    s_nop 1
    v_cndmask_b32 v{vHT}, v{vHT}, v{vt}, vcc""")
    nsm=sum(CFG['npf']); per=(100-5*nsm)//2
    if per>0:
        p(f"""s_mul_i32 s{A}, s{sG}, 5
        s_lshr_b32 s{A}, s{A}, 1
        s_mul_i32 s{A}, s{A}, 5
        s_lshr_b32 s{B}, s{HW}, 1
        s_mul_i32 s{B}, s{B}, {per}
        s_add_u32 s{A}, s{A}, s{B}
        s_add_u32 s{A}, s{A}, {5*nsm}
        v_min_u32 v{vt}, {per-1}, v0
        v_add_u32 v{vt}, s{A}, v{vt}
        v_subrev_u32 v{vt+1}, 100, v{vt}
        v_min_u32 v{vt}, v{vt}, v{vt+1}
        s_lshl_b32 s{A}, s{sSLOT}, 1
        s_and_b32 s{B}, s{HW}, 1
        s_add_u32 s{A}, s{A}, s{B}
        s_mul_i32 s{A}, s{A}, 12800
        v_lshl_add_u32 v{vTW}, v{vt}, 7, s{A}""")
    ge=p.lab("mtge"); jn=p.lab("mtj")
    p(f"""v_min_u32 v{vt}, 59, v0
    v_mul_u32_u24 v{vt+1}, 86, v{vt}
    v_lshrrev_b32 v{vt+1}, 8, v{vt+1}
    v_mul_u32_u24 v{vt+1}, {3072-384}, v{vt+1}
    v_lshl_add_u32 v{vt}, v{vt}, 7, v{vt+1}
    s_mul_i32 s{A}, s{sSLOT}, {20*3072}
    s_mul_i32 s{B}, s{sG}, 384
    s_add_u32 s{A}, s{A}, s{B}
    v_add_u32 v{vTM}, s{A}, v{vt}
    s_sub_u32 s{A}, s{sMI}, {0 if CFG['dw3'] else 17}
    s_lshl_b32 s{A}, s{A}, {1 if CFG['dw3'] else 2}
    s_add_u32 s{A}, s{A}, s{HW}
    s_mul_i32 s{A}, s{A}, {24 if CFG['dw3'] else 35 if CFG['dtn'] else 26}
    v_min_u32 v{vt}, {47 if CFG['dw3'] else 63 if CFG['dtn'] else 51}, v0
    v_lshrrev_b32 v{vt+1}, 1, v{vt}
    v_add_u32 v{vt+1}, s{A}, v{vt+1}
    v_min_u32 v{vt+1}, 1535, v{vt+1}
    v_mul_u32_u24 v{vt+1}, 1280, v{vt+1}
    v_and_b32 v{vt}, 1, v{vt}
    v_lshl_add_u32 v{vt}, v{vt}, 7, v{vt+1}
    s_mul_i32 s{B}, s{sG}, 160
    s_and_b32 s{B}, s{B}, -128
    v_add_u32 v{vTD}, s{B}, v{vt}""")
    if CFG['dtn']: p(f"""s_add_u32 s{A}, s{A}, 32
    v_min_u32 v{vt}, 5, v0
    v_lshrrev_b32 v{vt+1}, 1, v{vt}
    v_add_u32 v{vt+1}, s{A}, v{vt+1}
    v_min_u32 v{vt+1}, 1535, v{vt+1}
    v_mul_u32_u24 v{vt+1}, 1280, v{vt+1}
    v_and_b32 v{vt}, 1, v{vt}
    v_lshl_add_u32 v{vt}, v{vt}, 7, v{vt+1}
    v_add_u32 v{vTD2}, s{B}, v{vt}""")
vTD=25; vHT=26; vTD2=27
vTW=22; vTM=24
def touch(va,srd_,pair,pol=''):
    if pair:
        p(f"buffer_load_dword v{vDUM}, v{va}, {S4(srd_)}, 0 offen nt\nbuffer_load_dword v{vDUM}, v{va}, {S4(srd_)}, 0 offen offset:64")
        return 2
    p(f"buffer_load_dword v{vDUM}, v{va}, {S4(srd_)}, 0 offen {pol}")
    return 1
def wtouch(win,isB):
    n=0
    if CFG['wtw']==win and 100-5*sum(CFG['npf'])>0:
        n+=touch(vTW,sWO,CFG['wpair'])
    if CFG['mtw']==win:
        if not isB:
            u=p.lab("tu"); j=p.lab("tj")
            p(f"s_cmp_eq_u32 s{HW}, 0\ns_cbranch_scc0 {u}")
            touch(vTM,sWG,CFG['mpair'])
            p(f"s_branch {j}\n{u}:")
            n+=touch(vTM,sWU,CFG['mpair'])
            p(f"{j}:")
    return n
def qkv_touch():
    if CFG['pt']==99: return
    if CFG['ht']==1: OPS.extend(['pt']*touch(vHT,sWS,0,''))
    OPS.extend(['pt']*touch(vPT,sWS,CFG['qpair'],CFG['tpol']))
    if CFG['ht']==2: OPS.extend(['pt']*touch(vHT,sWS,0,''))
vH=16
OPS=[]
def vmwait(*tags):
    last=max(i for i,t in enumerate(OPS) if t in tags)
    n=len(OPS)-1-last; assert n<64
    p(f"s_waitcnt vmcnt({n})")
HW=sT
def spin(cnt,lp,ok,sleep=0):
    p(f"s_sub_u32 s{cnt}, s{cnt}, 1\ns_cbranch_scc1 {ok}")
    if sleep: p(f"s_sleep {sleep}")
def lds_wait(addr_v,tmp,cnt,cmp,val,sleep=1):
    lp=p.lab("lw"); ok=p.lab("lwok")
    p(f"""s_mov_b32 s{cnt}, {SPIN*4}
    {lp}:
    ds_read_b32 v{tmp}, v{addr_v}
    s_waitcnt lgkmcnt(0)
    v_cmp_{cmp}_u32 vcc, {val}, v{tmp}
    s_nop 0
    s_cbranch_vccz {ok}""")
    spin(cnt,lp,ok,sleep)
    p(f"s_branch {lp}\n{ok}:")
sHL,sHF,sHO,sPH,sHD,sT0=range(sT+1,sT+7)
def att_ids():
    p(f"""s_lshr_b32 s{sHL}, s{sSLOT}, 1
    s_and_b32 s{sHF}, s{sSLOT}, 1
    s_and_b32 s{sHO}, s{sHL}, 1
    s_lshr_b32 s{sPH}, s{sHL}, 1
    s_lshl_b32 s{sHD}, s{sHH}, 3
    s_add_u32 s{sPH}, s{sPH}, s{sHD}
    s_lshl_b32 s{sHD}, s{sHH}, 4
    s_add_u32 s{sHD}, s{sHD}, s{sHL}
    s_lshl_b32 s{sT0}, s{sRQ}, 1
    s_add_u32 s{sT0}, s{sT0}, s{sHF}
    s_lshl_b32 s{sT0}, s{sT0}, 3""")
def flag_addr(vd,vt,withq,A,B,C):
    flag_nib(withq,A,B,C)
    p(f"""v_and_b32 v{vt}, 60, v0
    v_min_u32 v{vt}, 20, v{vt}
    v_bfe_u32 v{vt}, s{A}, v{vt}, 4
    v_and_b32 v{vd}, 3, v0
    v_lshlrev_b32 v{vd}, 2, v{vd}
    v_lshl_add_u32 v{vd}, v{vt}, 7, v{vd}""")
def flag_nib(withq,A,B,C):
    p(f"""s_lshr_b32 s{A}, s{sHL}, 1
    s_mul_i32 s{A}, s{A}, 5
    s_lshl_b32 s{B}, s{sHO}, 1
    s_add_u32 s{A}, s{A}, s{B}
    s_add_u32 s{B}, s{A}, 2
    s_lshr_b32 s{A}, s{A}, 3
    s_lshr_b32 s{B}, s{B}, 3
    s_lshl_b32 s{B}, s{B}, 4
    s_or_b32 s{A}, s{A}, s{B}
    s_add_u32 s{B}, s{A}, 0x55
    s_lshl_b32 s{C}, s{B}, 8
    s_or_b32 s{A}, s{C}, s{A if withq else B}
    s_mul_i32 s{B}, s{sHL}, 20
    s_add_u32 s{C}, s{B}, 19
    s_lshr_b32 s{B}, s{B}, 6
    s_lshr_b32 s{C}, s{C}, 6
    s_lshl_b32 s{C}, s{C}, 4
    s_or_b32 s{B}, s{B}, s{C}
    s_add_u32 s{B}, s{B}, 0xaa
    s_lshl_b32 s{B}, s{B}, 16
    s_or_b32 s{A}, s{A}, s{B}""")
def flag_poll(va,vt,soff,cnt,first=True,sleep=0):
    lp=p.lab("fp"); ok=p.lab("fpok");
    p(f"s_mov_b32 s{cnt}, {SPIN}")
    if not first:
        md=p.lab("fpm"); p(f"s_branch {md}")
    p(f"""{lp}:
    buffer_load_dword v{vt}, v{va}, {S4(sWS)}, s{soff} offen sc1""")
    if not first: p(f"{md}:")
    p(f"""s_waitcnt vmcnt(0)
    v_cmp_ne_u32 vcc, s{sTAG}, v{vt}
    s_nop 0
    s_cbranch_vccz {ok}""")
    spin(cnt,lp,ok,sleep)
    p(f"s_branch {lp}\n{ok}:")
def flag_poll2(va,vt,soff,cnt,n=2,gap=0):
    lp=p.lab("fq"); ok=p.lab("fqok")
    ld=lambda i: f"buffer_load_dword v{vt+i}, v{va}, {S4(sWS)}, s{soff} offen sc1"
    p(f"s_mov_b32 s{cnt}, {SPIN}")
    for i in range(n-1):
        p(ld(i))
        if gap: p(f"s_sleep {gap}")
    p(f"{lp}:")
    for i in range(n):
        p(f"""{ld((i+n-1)%n)}
        s_waitcnt vmcnt({n-1})
        v_cmp_ne_u32 vcc, s{sTAG}, v{vt+i}
        s_nop 0
        s_cbranch_vccz {ok}""")
    spin(cnt,lp,ok)
    p(f"s_branch {lp}\n{ok}:")
def kv_dma(aLin,aTl,sK,sV,sL,A,B,sHO=sHO):
    p(f"""s_mul_i32 s{A}, s{sHO}, 1536
    s_add_u32 s{A}, s{A}, s{sK}
    s_mov_b32 m0, s{sL}
    s_add_u32 s{B}, s{A}, 1536
    buffer_load_dwordx4 v{aLin}, {S4(sWS)}, s{A} offen {CFG['ldp']} lds
    buffer_load_dwordx4 v{aLin}, {S4(sWS)}, s{B} offen offset:1024 {CFG['ldp']} lds
    s_sub_u32 s{A}, s{sK}, 2048
    s_sub_u32 s{B}, s{sV}, 3072
    buffer_load_dwordx4 v{aTl}, {S4(sWS)}, s{A} offen offset:2048 {CFG['ldp']} lds
    buffer_load_dwordx4 v{aLin}, {S4(sWS)}, s{B} offen offset:3072 {CFG['ldp']} lds
    s_add_u32 m0, s{sL}, 4096
    s_add_u32 s{B}, s{sV}, 1024
    buffer_load_dwordx4 v{aLin}, {S4(sWS)}, s{B} offen {CFG['ldp']} lds
    s_mov_b64 exec, s[{sLO}:{sLO+1}]
    buffer_load_dwordx4 v{aLin}, {S4(sWS)}, s{B} offen offset:1024 {CFG['ldp']} lds
    s_mov_b64 exec, -1""")
def kv_addr(aLin,aTl,t):
    p(f"""v_lshlrev_b32 v{aLin}, 4, v0
    v_lshrrev_b32 v{t}, 5, v0
    v_mul_u32_u24 v{t}, {2560-512}, v{t}
    v_add3_u32 v{aTl}, v{aLin}, v{t}, s{sK1024}""")
sK1024=sT+21

def halo_cond(A,B):
    p(f"""s_lshr_b32 s{A}, 0x8ccc, s{sBK}
    s_cmp_gt_u32 s{sCT}, 2
    s_cselect_b32 s{A}, s{A}, 0
    s_and_b32 s{A}, s{A}, 1""")
def halo_flag(vt,A,B,C):
    sk=p.lab("nohalo")
    halo_cond(A,B)
    p(f"""s_cbranch_scc0 {sk}
    s_lshl_b32 s{A}, s{sCT}, 1
    s_add_u32 s{A}, s{A}, s{HW}
    s_sub_u32 s{A}, s{A}, 3
    s_lshl_b32 s{C}, s{sG}, 4
    s_add_u32 s{A}, s{A}, s{C}
    s_lshl_b32 s{A}, s{A}, 2
    s_add_u32 s{A}, s{A}, s{sRB}
    s_lshl_b32 s{A}, s{A}, 8
    s_add_u32 s{A}, s{A}, {FH}
    s_lshl_b32 s{B}, s{HW}, 2
    s_add_u32 s{B}, s{B}, {F_STG-8}
    v_mov_b32 v{vt}, s{B}
    v_lshlrev_b32 v{vt+2}, 7, v0
    v_mov_b32 v{vt+3}, s{sTAG}""")
    lds_wait(vt,vt+1,C,'gt',2,0)
    p(f"""s_mov_b64 exec, 3
    buffer_store_dword v{vt+3}, v{vt+2}, {S4(sWS)}, s{A} offen sc1
    s_mov_b64 exec, -1""")
    STAMP('halo')
    p(f"{sk}:")
def halo_copy(vt,A,B,C,mid):
    sk=p.lab("nohalo"); jn=p.lab("halo_j"); D=168; sD=sT+12; sFH=sT+13
    p(f"s_mov_b32 s{sFH}, 0")
    halo_cond(A,B)
    p(f"""s_cbranch_scc0 {sk}
    s_lshl_b32 s{A}, s{sCT}, 1
    s_add_u32 s{A}, s{A}, s{HW}
    s_sub_u32 s{A}, s{A}, 3
    s_cmp_lt_u32 s{A}, 10
    s_cselect_b32 s{sD}, 1, 0
    s_lshl_b32 s{sD}, 1280, s{sD}
    s_lshl_b32 s{C}, s{sG}, 4
    s_add_u32 s{A}, s{A}, s{C}
    s_lshl_b32 s{A}, s{A}, 2
    s_add_u32 s{A}, s{A}, s{sRB}
    s_lshl_b32 s{A}, s{A}, 8
    s_add_u32 s{sFH}, s{A}, {FH}
    s_lshl_b32 s{B}, s{HW}, 2
    s_add_u32 s{B}, s{B}, {F_STG-8}
    v_mov_b32 v{vt}, s{B}
    s_mul_i32 s{B}, s{HW}, {2*9216}
    s_add_u32 s{B}, s{B}, {L_WO-4*9216}
    v_lshl_add_u32 v{vt+2}, v0, 4, s{B}
    v_mov_b32 v{vt+3}, {F_HR}
    v_mov_b32 v{vt+4}, 1""")
    lds_wait(vt,vt+1,C,'gt',2,0)
    STAMP('hs1')
    for wr in range(2):
        for i in range(9): p(f"ds_read_b128 {vr(D+36*wr+4*i,4)}, v{vt+2} offset:{wr*9216+i*1024}")
        if wr==0: p("s_waitcnt lgkmcnt(6)")
    p(f"v_add_u32 v{vt}, 8, v{vt}")
    lds_wait(vt,vt+1,C,'gt',2,0)
    STAMP('hs2')
    for wr in range(2):
        for i in range(8): p(f"buffer_store_dwordx4 {vr(D+36*wr+4*i,4)}, v{D+36*wr+32+(i&3)}, {S4(sWS)}, {'s%d'%sD if i>>2 else 0} offen sc1")
    p(f"""s_mov_b64 exec, 1
    ds_add_u32 v{vt+3}, v{vt+4}
    s_mov_b64 exec, -1""")
    p(f"{sk}:")
    mid()
    p(f"""s_cmp_eq_u32 s{sFH}, 0
    s_cbranch_scc1 {jn}
    v_mov_b32 v{vt+2}, 0
    v_mov_b32 v{vt+4}, s{sTAG}
    s_waitcnt vmcnt(0)
    s_mov_b64 exec, 1
    buffer_store_dword v{vt+4}, v{vt+2}, {S4(sWS)}, s{sFH} offen sc1
    s_mov_b64 exec, -1""")
    STAMP('halo')
    lds_wait(vt+3,vt+1,C,'gt',2,0)
    p(f"{jn}:")
def own_setup(aF2,vt):
    A=sT+7; B=sT+8; sF,sK,sV,sL=range(sT+12,sT+16)
    flag_addr(aF2,vt,1,A,B,sT+18)
    p(f"""s_lshl_b32 s{sF}, s{sG}, 11
    s_lshl_b32 s{A}, s{sHF}, 4
    s_add_u32 s{sF}, s{sF}, s{A}
    s_add_u32 s{sF}, s{sF}, {FL}
    s_lshl_b32 s{A}, s{HW}, 1
    s_add_u32 s{A}, s{A}, s{sT0}
    s_mul_i32 s{sK}, s{A}, 2560
    s_mul_i32 s{sV}, s{A}, 1280
    s_mul_i32 s{A}, s{sPH}, {64*2560}
    s_add_u32 s{sK}, s{sK}, s{A}
    s_add_u32 s{sK}, s{sK}, {KB}
    s_mul_i32 s{A}, s{sHD}, 81920
    s_add_u32 s{sV}, s{sV}, s{A}
    s_add_u32 s{sV}, s{sV}, {VB}
    s_mul_i32 s{sL}, s{HW}, 5632
    s_add_u32 s{sL}, s{sL}, {L_KV+4*5632}""")
def own_kv(aLin,aTl,aF2,vt,sHO_):
    A=sT+7; B=sT+8; sF,sK,sV,sL=range(sT+12,sT+16); C=sT+18
    p(f"v_mov_b32 v{vt}, {F_FS}\nv_mov_b32 v{vt+1}, 1")
    flag_poll(aF2,vt+2,sF,C)
    p(f"ds_write_b32 v{vt}, v{vt+1}")
    STAMP('hfs')
    kv_dma(aLin,aTl,sK,sV,sL,A,B,sHO_)
    p(f"""s_mov_b64 exec, 1
    v_mov_b32 v{vt}, {F_G1}
    s_waitcnt vmcnt(0)
    ds_add_u32 v{vt}, v{vt+1}
    s_mov_b64 exec, -1""")
    STAMP('hg1')
def helperA(steps):
    A=sT+7; B=sT+8; vt=10
    def hook(c):
        if c==CFG['pt']:
            qkv_touch(); OPS.extend(['pt']*wtouch('w1',0))
        if c==CFG['wts']: OPS.extend(['pt']*touch(vTW,sWO,0))
        if CFG['dcs'] and c==CFG['dcg']:
            p(f"""s_lshl_b32 s{sG_}, s{sG}, 3
            s_add_u32 s{sG_}, s{sG_}, s{sCT}
            s_lshl_b32 s{sG_}, s{sG_}, 1
            s_cmp_lg_u32 s{sCT}, 2
            s_cselect_b32 s{A}, s{HW}, 0
            s_add_u32 s{sG_}, s{sG_}, s{A}
            s_lshl_b32 s{sG_}, s{sG_}, 11
            s_add_u32 s{sG_}, s{sG_}, {CSX}
            v_lshlrev_b32 v{vG+8}, 3, v0
            {csld}"""); OPS.extend(['cs']*4)
    vG=100; sG_=sT+13
    csld="\n".join(f"buffer_load_dwordx2 {vr(vG+2*i,2)}, v{vG+8}, {S4(sWS)}, s{sG_} offen offset:{512*i} sc1" for i in range(4))
    steps(hook,0)
    def cs_fin():
        vmwait('cs')
        lp=p.lab("csl"); ok=p.lab("csok"); rt=p.lab("csrt")
        p(f"""s_mov_b32 s{B}, {SPIN}
        s_lshl_b32 s{A}, s{HW}, 8
        s_add_u32 s{A}, s{A}, {L_CS}
        v_lshl_add_u32 v{vt+3}, v0, 2, s{A}
        {lp}:
        v_xor_b32 v{vt}, v{vG+1}, v{vG+3}
        v_xor_b32 v{vt+1}, v{vG+5}, v{vG+7}
        v_xor_b32 v{vG+1}, s{sTAG}, v{vG+1}
        v_xor_b32 v{vG+5}, s{sTAG}, v{vG+5}
        v_or3_b32 v{vt}, v{vt}, v{vt+1}, v{vG+1}
        v_or_b32 v{vt}, v{vt}, v{vG+5}
        v_cmp_ne_u32 vcc, 0, v{vt}
        v_add_f32 v{vt+1}, v{vG}, v{vG+2}
        v_add_f32 v{vt+2}, v{vG+4}, v{vG+6}
        s_cbranch_vccnz {rt}
        {ok}:
        v_add_f32 v{vt+1}, v{vt+1}, v{vt+2}
        ds_write_b32 v{vt+3}, v{vt+1}""")
        n0=len(p.L)
        p(f"{rt}:"); spin(B,lp,ok,1); p(csld); p(f"s_waitcnt vmcnt(0)\ns_branch {lp}")
        COLD.append("\n".join(p.L[n0:])); del p.L[n0:]
        STAMP('csf')
    for c in (8,9):
        vmwait(c); p("s_barrier"); STAMP('ld%d'%c)
        if c==9: STAMP('hb9')
        if c==8 and CFG['hpr']: p(f"s_setprio {CFG['hpr']}")
        if c==9 and CFG['dcs']==2: cs_fin()
        if c==8 and CFG['sfe']==2: stats_fin(vt,B)
        hook(c)
        if c==8 and CFG['sfe']==1: stats_fin(vt,B)
    if CFG['sf2']==1 or (CFG['sf2'] and CFG['sfe']): p("s_barrier")
    if not CFG['sfe']: stats_fin(vt,B)
    if CFG['dcs']==1: cs_fin()
    STAMP('h10')
    p("s_waitcnt lgkmcnt(0)\ns_barrier" if CFG['sf2'] else "s_waitcnt lgkmcnt(0)\ns_barrier\ns_barrier" if CFG['epi2']>1 else "s_barrier\ns_waitcnt lgkmcnt(0)\ns_barrier")
    STAMP('hE1')
    if CFG['hpr']: p("s_setprio 0")
    if CFG['hsp']&2: p(f"v_mov_b32 v{vt}, {L_MODE}\nds_read_b32 v{vt+1}, v{vt}")
    att_ids()
    if CFG['hsp']&2: p(f"s_waitcnt lgkmcnt(0)\nv_readfirstlane_b32 s{sMODE}, v{vt+1}")
    aLin=6; aTl=7; aF=8; D=40
    p(f"s_mov_b32 s{sK1024}, 1024")
    kv_addr(aLin,aTl,vt)
    flag_addr(aF,vt,0,A,B,sT+17)
    if CFG['hsp']: flag_nib(1,A,B,sT+17); p(f"s_mov_b32 s{sT+21}, s{A}")
    if CFG['hkv']: own_setup(9,vt)
    p(f"v_mov_b32 v{vt+1}, 1")
    sF=sT+9; sK=sT+10; sV=sT+11; sL=sT+16; C=sT+17; sD=sT+12
    dn=p.lab("g2done"); h1=p.lab("rem"); jn=p.lab("remj")
    assert not (CFG['hsent'] or CFG['hkv'])
    p(f"""v_and_b32 v{vt+2}, 4, v{aF}
    v_and_b32 v{aF}, -128, v{aF}
    s_cmp_lg_u32 s{HW}, 0
    s_cbranch_scc1 {h1}
    v_add_u32 v{aF}, v{aF}, v{vt+2}
    s_mul_i32 s{A}, s{sHF}, 24
    s_lshl_b32 s{sF}, s{sG}, 11
    s_add_u32 s{sF}, s{sF}, s{A}
    s_add_u32 s{sF}, s{sF}, {FL}
    {f"s_cmp_eq_u32 s{sT0}, 56" if CFG['honly'] else ""}
    {f"s_cselect_b32 s{B}, 0, {KH-KB}" if CFG['honly'] else f"s_mov_b32 s{B}, 0"}
    s_branch {jn}
    {h1}:
    v_lshlrev_b32 v{aF}, 3, v{aF}
    s_lshl_b32 s{A}, s{sHF}, 2
    s_add_u32 s{A}, s{A}, s{sG}
    s_sub_u32 s{A}, s{A}, 2
    s_and_b32 s{A}, s{A}, 7
    s_lshl_b32 s{sF}, s{A}, 14
    s_mul_i32 s{A}, s{sHF}, -768
    s_add_u32 s{sF}, s{sF}, s{A}
    s_add_u32 s{sF}, s{sF}, {FH+768}
    s_mov_b32 s{B}, {KH-KB}
    {jn}:
    s_lshl_b32 s{A}, s{HW}, 2
    s_sub_u32 s{sK}, -2, s{A}
    s_cmp_eq_u32 s{sHF}, 0
    s_cselect_b32 s{A}, s{sK}, s{A}
    s_mul_i32 s{sD}, s{sHF}, 5120
    s_sub_u32 s{sD}, s{sD}, 2560
    s_add_u32 s{A}, s{A}, s{sT0}
    s_mul_i32 s{sK}, s{A}, 2560
    s_mul_i32 s{sV}, s{A}, 1280
    s_mul_i32 s{A}, s{sPH}, {64*2560}
    s_add_u32 s{sK}, s{sK}, s{A}
    s_add_u32 s{sK}, s{sK}, s{B}
    s_add_u32 s{sK}, s{sK}, {KB}
    s_mul_i32 s{A}, s{sHD}, 81920
    s_add_u32 s{sV}, s{sV}, s{A}
    s_add_u32 s{sV}, s{sV}, s{B}
    s_add_u32 s{sV}, s{sV}, {VB}
    s_mul_i32 s{sL}, s{HW}, {-2*5632}
    s_add_u32 s{sL}, s{sL}, {L_KV+3*5632}""")
    if CFG['hsp']&2:
        sk=p.lab("noown"); sp=p.lab("ownp"); so=p.lab("ownok"); O=[sT+13,sT+14,sT+15,sT+18,sT+19,sT+20]; Rq=[4,8,12,28,40,96]
        halo_cond(A,B)
        p(f"""s_and_b32 s{A}, s{A}, s{HW}
        s_andn2_b32 s{A}, s{A}, s{sMODE}
        s_cbranch_scc0 {sk}
        s_lshl_b32 s{A}, s{sG}, 11
        s_add_u32 s{A}, s{A}, {FL}
        s_lshl_b32 s{B}, s{sHF}, 4
        s_add_u32 s{B}, s{B}, s{A}
        s_add_u32 s{A}, s{A}, 8""")
        for i in range(6): p(f"s_bfe_u32 s{O[i]}, s{sT+21}, {hex((4*i)|(4<<16))}\ns_lshl_b32 s{O[i]}, s{O[i]}, 7\ns_add_u32 s{O[i]}, s{O[i]}, s{B if i<2 else A}")
        assert 'FS' not in CFG['gm']+CFG['gr']
        if CFG['ogate']: p(f"v_mov_b32 v{vt}, {F_FS}"); lds_wait(vt,vt+5,C,'gt',CFG['ogate'],1)
        p(f"v_mov_b32 v{vt}, {F_OWN}\ns_mov_b32 s{C}, {SPIN}\n{sp}:")
        for i in range(6): p(f"s_load_dwordx4 s[{Rq[i]}:{Rq[i]+3}], s[{sWS}:{sWS+1}], s{O[i]} glc")
        p("s_waitcnt lgkmcnt(0)")
        for i in range(6):
            r=Rq[i]
            p(f"s_and_b64 s[{A+1}:{A+2}], s[{r}:{r+1}], s[{r+2}:{r+3}]" if 0 else "")
            p(f"s_xor_b64 s[{r}:{r+1}], s[{r}:{r+1}], s[{r+2}:{r+3}]\ns_xor_b32 s{r+2}, s{r+2}, s{sTAG}\ns_xor_b32 s{r+3}, s{r+3}, s{sTAG}\ns_or_b64 s[{r}:{r+1}], s[{r}:{r+1}], s[{r+2}:{r+3}]")
            if i: p(f"s_or_b64 s[4:5], s[4:5], s[{r}:{r+1}]")
        p(f"""s_cbranch_scc0 {so}
        s_sub_u32 s{C}, s{C}, 1
        {f"s_sleep {CFG['hsl2']}" if CFG['hsl2'] else ""}
        s_cbranch_scc0 {sp}
        {so}:
        ds_write_b32 v{vt}, v{vt+1}""")
        if CFG['prof']: p("s_mov_b64 s[96:97], 0\ns_mov_b64 s[98:99], 0")
        STAMP('own')
        p(f"{sk}:")
    if CFG['lay'] and CFG['padk']==3:
        p(f"s_cmp_eq_u32 s{HW}, 1\ns_cbranch_scc1 L_pv0\nL_pkb0:")
        STAMP('pk')
    p(f"s_cmp_eq_u32 s{sT0}, 0\ns_cbranch_scc1 {dn}")
    def both():
        kv_dma(aLin,aTl,sK,sV,sL,A,B)
        p(f"""s_add_u32 s{sK}, s{sK}, s{sD}
        s_add_u32 s{sK}, s{sK}, s{sD}
        s_add_u32 s{sV}, s{sV}, s{sD}
        s_sub_u32 s{sL}, s{sL}, 5632""")
        if CFG['hs2']:
            sk=p.lab("nob"); lp=p.lab("bp"); ok=p.lab("bpok")
            p(f"""s_cmp_eq_u32 s{HW}, 0
            s_cbranch_scc1 {sk}
            v_mov_b32 v{vt+2}, {F_M+4}""")
            if CFG['hs2p']:
                assert CFG['hsp']&1
                sp=p.lab("sbp")
                for i in range(4): p(f"s_add_u32 s{8+i}, s{8+i}, 128")
                if CFG['hs2p']==1: p(f"s_waitcnt vmcnt(0)\nds_write_b32 v{vt+2}, v{vt+1}")
                p(f"s_mov_b32 s{C}, 256\n{sp}:")
                for i in range(4): p(f"s_load_dword s{4+i}, s[{sWS}:{sWS+1}], s{8+i} glc")
                p("s_waitcnt lgkmcnt(0)")
                for i in range(4): p(f"s_xor_b32 s{4+i}, s{4+i}, s{sTAG}")
                p(f"""s_or_b32 s4, s4, s5
                s_or_b32 s6, s6, s7
                s_or_b32 s4, s4, s6
                s_cbranch_scc0 {ok}
                s_sub_u32 s{C}, s{C}, 1
                {f"s_sleep {CFG['hs2s']}" if CFG['hs2s'] else ""}
                s_cbranch_scc0 {sp}""")
            p(f"""s_mov_b32 s{C}, {SPIN}
            {lp}:
            buffer_load_dword v{vt+5}, v{aF}, {S4(sWS)}, s{sF} offen offset:128 sc1
            s_waitcnt vmcnt(0)
            ds_write_b32 v{vt+2}, v{vt+1}
            v_cmp_ne_u32 vcc, s{sTAG}, v{vt+5}
            s_nop 0
            s_cbranch_vccz {ok}""")
            spin(C,lp,ok,CFG['hs2s'])
            p(f"s_branch {lp}\n{ok}:")
            STAMP('hfb')
            if CFG['hs2p']==2:
                kv_dma(aLin,aTl,sK,sV,sL,A,B)
                p(f"s_waitcnt vmcnt(6)\nds_write_b32 v{vt+2}, v{vt+1}\ns_branch L_hs2j")
            p(f"{sk}:")
        kv_dma(aLin,aTl,sK,sV,sL,A,B)
        if CFG['hs2p']==2: p("L_hs2j:")
    GT=dict(G1=(F_G1,4),FS=(F_FS,1),FS4=(F_FS,4),M=(F_M,1))
    if CFG['gm']!='no' or CFG['gr']!='no':
        g0=p.lab("gate0"); g1=p.lab("gate1")
        p(f"s_cmp_lg_u32 s{HW}, 0\ns_cbranch_scc1 {g0}")
        if CFG['gm']!='no': p(f"v_mov_b32 v{vt}, {GT[CFG['gm']][0]}"); lds_wait(vt,vt+5,C,'gt',GT[CFG['gm']][1],0)
        p(f"s_branch {g1}\n{g0}:")
        if CFG['gr']!='no': p(f"v_mov_b32 v{vt}, {GT[CFG['gr']][0]}"); lds_wait(vt,vt+5,C,'gt',GT[CFG['gr']][1],0)
        p(f"{g1}:")
    if CFG['hsp']&1:
        vp=p.lab("vecp"); sp=p.lab("scp"); so=p.lab("scok")
        p(f"s_cmp_eq_u32 s{HW}, 0\ns_cbranch_scc1 {vp}")
        for i in range(4): p(f"s_bfe_u32 s{8+i}, s{sT+21}, {hex((8+4*i)|(4<<16))}\ns_lshl_b32 s{8+i}, s{8+i}, 10\ns_add_u32 s{8+i}, s{8+i}, s{sF}")
        p(f"s_mov_b32 s{C}, 256\n{sp}:")
        for i in range(4): p(f"s_load_dword s{4+i}, s[{sWS}:{sWS+1}], s{8+i} glc")
        p("s_waitcnt lgkmcnt(0)")
        for i in range(4): p(f"s_xor_b32 s{4+i}, s{4+i}, s{sTAG}")
        p(f"""s_or_b32 s4, s4, s5
        s_or_b32 s6, s6, s7
        s_or_b32 s4, s4, s6
        s_cbranch_scc0 {so}
        s_sub_u32 s{C}, s{C}, 1
        {f"s_sleep {CFG['hsl']}" if CFG['hsl'] else ""}
        s_cbranch_scc0 {sp}
        {vp}:""")
        flag_poll(aF,vt+5,sF,C,sleep=CFG['hsl'])
        p(f"{so}:")
    elif CFG['hpoll']: flag_poll2(aF,vt+5,sF,C,CFG['hpoll'],CFG['hsl'])
    else: flag_poll(aF,vt+5,sF,C,sleep=CFG['hsl'])
    STAMP('hf')
    both()
    if CFG['wpause']: p(f"s_lshl_b32 s{A}, s{HW}, 2\ns_add_u32 s{A}, s{A}, {F_RI-4}\nv_mov_b32 v{vt+2}, s{A}\nds_write_b32 v{vt+2}, v{vt+1}")
    if CFG['mtw'] in ('RI','MI'):
        nt_=p.lab("nori"); d2=p.lab("g2d")
        p(f"s_cmp_eq_u32 s{HW}, {int(CFG['mtw']=='RI')}\ns_cbranch_scc0 {nt_}")
        touch(vTM,sWG,0); touch(vTM,sWU,0)
        p(f"s_waitcnt vmcnt(2)\ns_branch {d2}\n{dn}:\ns_cmp_eq_u32 s{HW}, {int(CFG['mtw']=='RI')}\ns_cbranch_scc0 {d2}")
        touch(vTM,sWG,0); touch(vTM,sWU,0)
        p(f"s_branch {d2}\n{nt_}:"); dn=d2
    p(f"""s_waitcnt vmcnt(0)
    {dn}:
    s_lshl_b32 s{A}, s{HW}, {3 if CFG['hs2'] else 2}
    s_add_u32 s{A}, s{A}, {F_M}
    v_mov_b32 v{vt}, {F_G2}
    v_mov_b32 v{vt+2}, s{A}
    s_mov_b64 exec, 1
    ds_write_b32 v{vt+2}, v{vt+1}
    {f"ds_write_b32 v{vt+2}, v{vt+1} offset:{F_RI-4-F_M}" if CFG['wpause'] else ""}
    ds_add_u32 v{vt}, v{vt+1}
    s_mov_b64 exec, -1""")
    STAMP('g2')
    if CFG['lclr']:
        sk=p.lab("nolc"); na=p.lab("lcna"); lp=p.lab("lcp"); ok=p.lab("lcok"); D=40
        p(f"""s_cmp_lg_u32 s{HW}, 0
        s_cbranch_scc1 {sk}
        v_mov_b32 v{vt}, {F_CC}
        s_lshr_b32 s{A}, s2, 2
        s_lshl_b32 s{A}, s{A}, 5
        s_and_b32 s{B}, s2, 3
        s_add_u32 s{A}, s{A}, s{B}
        s_lshl_b32 s{A}, s{A}, 2
        s_add_u32 s{A}, s{A}, {H2B}
        s_mov_b32 s{B}, {H2B}
        v_mov_b32 v{D+4}, s{sTAG}
        v_mov_b32 v{D+5}, 0
        v_lshlrev_b32 v{D+6}, 7, v0""")
        lds_wait(vt,vt+5,C,'gt',4,1)
        p(f"""s_mov_b64 exec, 1
        buffer_store_dword v{D+4}, v{D+5}, {S4(sWS)}, s{A} offen sc1
        s_mov_b64 exec, -1""")
        STAMP('lc1')
        g=dict(G2=(F_G2,2),D1=(F_DONE,1),WOR=(F_WOR,2),WOD=(F_WOD,2))[CFG['lcg']]
        p(f"""s_cmp_eq_u32 s{sT0}, 0
        s_cselect_b32 s{A}, {F_DONE-L_FLG}, {g[0]-L_FLG}
        s_cselect_b32 s{sD}, 4, {g[1]}
        s_add_u32 s{A}, s{A}, {L_FLG}
        v_mov_b32 v{vt}, s{A}""")
        lds_wait(vt,vt+5,C,'gt',f"s{sD}",2)
        p(f"""s_mov_b32 s{C}, {SPIN}
        {lp}:
        buffer_load_dwordx4 {vr(D,4)}, v{D+6}, {S4(sWS)}, s{B} offen sc1
        s_waitcnt vmcnt(0)
        v_xor_b32 v{D}, v{D}, v{D+1}
        v_xor_b32 v{D+2}, v{D+2}, v{D+3}
        v_xor_b32 v{D+1}, s{sTAG}, v{D+1}
        v_xor_b32 v{D+3}, s{sTAG}, v{D+3}
        v_or3_b32 v{D}, v{D}, v{D+1}, v{D+2}
        v_or_b32 v{D}, v{D}, v{D+3}
        v_cmp_ne_u32 vcc, 0, v{D}
        s_nop 0
        s_cbranch_vccz {ok}""")
        spin(C,lp,ok,CFG['lcs'])
        p(f"""s_branch {lp}
        {ok}:
        v_mov_b32 v{vt}, {F_DONE}
        s_mov_b64 exec, 1
        ds_add_u32 v{vt}, v{vt+1}
        s_mov_b64 exec, -1""")
        STAMP('lc2'); COUNT('nlc',C,SPIN)
        p(f"{sk}:")
    if CFG['mtw']=='sm':
        u=p.lab("smu"); j=p.lab("smj")
        def run(r,n,f):
            for i in range(n):
                if CFG['smx']==2: p(f"s_load_dwordx2 s[100:101], s[{r}:{r+1}], s{A} offset:{f(i)+60}")
                else: p(f"s_load_dword s100, s[{r}:{r+1}], s{A} offset:{f(i)}")
        p(f"""s_mul_i32 s{A}, s{sSLOT}, {20*3072}
        s_mul_i32 s{B}, s{sG}, 384
        s_add_u32 s{A}, s{A}, s{B}
        s_cmp_eq_u32 s{HW}, 0
        s_cbranch_scc0 {u}""")
        run(sWG,60,lambda i:(i//3)*3072+(i%3)*128)
        p(f"s_branch {j}\n{u}:")
        run(sWU,60,lambda i:(i//3)*3072+(i%3)*128)
        p(f"{j}:")
        if CFG['smd']:
            p(f"""s_lshl_b32 s{A}, s{sSLOT}, 1
            s_add_u32 s{A}, s{A}, s{HW}
            s_mul_i32 s{A}, s{A}, {24*1280}
            s_mul_i32 s{B}, s{sG}, 160
            s_and_b32 s{B}, s{B}, -128
            s_add_u32 s{A}, s{A}, s{B}""")
            run(sWD,48,lambda i:(i//2)*1280+(i%2)*128)
        STAMP('mt')
        if CFG['prof'] and any('mt2' in x for x in CFG['st']): p("s_waitcnt lgkmcnt(0)"); STAMP('mt2')
    if 'w3' in (CFG['wtw'],CFG['mtw']):
        fa=dict(G1=(F_G1,4),WOR=(F_WOR,2),WOD=(F_WOD,2),WO2=(F_WO2,2),DONE=(F_DONE,ND),PR=(F_PR,4),LD=(F_LD,1),RL=(F_H2,4))[CFG['mtg']]
        p(f"v_mov_b32 v{vt}, {fa[0]}")
        if CFG['mth']:
            nt_=p.lab("nomt")
            p(f"s_cmp_eq_u32 s{sHF}, 0\ns_cbranch_scc1 {nt_}")
        lds_wait(vt,vt+5,C,'gt',fa[1],1)
        wtouch('w3',0)
        if CFG['mth']:
            p(f"v_subrev_u32 v{vTM}, {20*3072}, v{vTM}")
            if CFG['mth']==2: p("s_waitcnt vmcnt(0)")
            wtouch('w3',0)
            p(f"{nt_}:")
        if CFG['dw3']: touch(vTD,sWD,CFG['mpair'])
        STAMP('mt')
        if CFG['prof'] and any('mt2' in x for x in CFG['st']): p("s_waitcnt vmcnt(0)"); STAMP('mt2')

def tr_addr(a0,t):
    tab=[[0,8],[4,12],[16,36],[20,28],[24,32]]
    pk=[sum((tab[u][rd]//4)<<(4*u) for u in range(5)) for rd in range(2)]
    A=sT+7; B=sT+8
    p(f"""s_mov_b32 s{A}, {pk[0]}
    s_mov_b32 s{B}, {pk[1]}
    v_bfe_u32 v{t}, v0, 2, 2
    v_mul_u32_u24 v{t}, 160, v{t}
    v_and_b32 v{t+1}, 3, v0
    v_mad_u32_u24 v{t}, v{t+1}, 40, v{t}
    v_lshrrev_b32 v{t+1}, 4, v0""")
    for s_ in range(5):
        p(f"""v_add_u32 v{t+2}, {4*s_}, v{t+1}
        v_mul_u32_u24 v{t+4}, 52, v{t+2}
        v_lshrrev_b32 v{t+4}, 8, v{t+4}
        v_mul_u32_u24 v{t+5}, 5, v{t+4}
        v_sub_u32 v{t+2}, v{t+2}, v{t+5}
        v_lshlrev_b32 v{t+2}, 2, v{t+2}
        v_mul_u32_u24 v{t+4}, 10, v{t+4}""")
        for rd in range(2):
            p(f"""v_bfe_u32 v{t+3}, s{(A,B)[rd]}, v{t+2}, 4
            v_add_u32 v{t+3}, v{t+3}, v{t+4}
            v_mul_u32_u24 v{t+3}, 640, v{t+3}
            v_add_u32 v{a0+2*s_+rd}, v{t+3}, v{t}""")
sBLK,sJ=sT+9,sT+10
def wo_ids():
    p(f"""s_lshr_b32 s{sBLK}, s{sSLOT}, 3
    s_lshl_b32 s{sJ}, s{sG}, 2
    s_add_u32 s{sBLK}, s{sBLK}, s{sJ}
    s_and_b32 s{sJ}, s{sSLOT}, 7""")
def clr_ids(A,B,C,D_):
    p(f"""s_lshr_b32 s{C}, s{sSLOT}, 3
    s_lshl_b32 s{B}, s{sG}, 2
    s_add_u32 s{C}, s{C}, s{B}
    s_lshl_b32 s{C}, s{C}, 3
    s_and_b32 s{B}, s{sSLOT}, 7
    s_add_u32 s{D_}, s{C}, s{B}
    s_lshr_b32 s{A}, s{D_}, 1
    s_mul_i32 s{A}, s{A}, 20480
    s_and_b32 s{B}, s{B}, 1
    s_mul_i32 s{B}, s{B}, 5120
    s_add_u32 s{A}, s{A}, s{B}
    s_add_u32 s{A}, s{A}, {OB}
    s_mul_i32 s{B}, s{sHH}, 10240
    s_add_u32 s{C}, s{A}, 10240
    s_add_u32 s{A}, s{A}, s{B}
    s_sub_u32 s{C}, s{C}, s{B}
    s_lshl_b32 s{D_}, s{D_}, 10
    s_add_u32 s{D_}, s{D_}, {PS}""")
def clears(part):
    A=sT+13; B=sT+14; C=sT+15; D_=sT+16; D=12; aL=16
    if part==0:
        clr_ids(A,B,C,D_)
        p(f"v_lshlrev_b32 v{aL}, 4, v0")
        for r in range(4): p(f"v_mov_b32 v{D+r}, -1")
        return
    st4=lambda so,off,sc: f"buffer_store_dwordx4 v[{D}:{D+3}], v{aL}, {S4(sWS)}, s{so} offen offset:{off} {sc}" if not (CFG['noclr']>>(0 if sc!='sc1' else 1))&1 else "s_nop 0"
    w2=p.lab("clw2"); w3=p.lab("clw3"); dn=p.lab("cldn")
    if CFG['hsent']:
        H_=sT+17; nh=p.lab("clnh")
        p(f"""s_cmp_eq_u32 s{sWAVE}, 3
        s_cbranch_scc1 {nh}
        s_lshl_b32 s{B}, s{sWAVE}, 8
        s_add_u32 s{B}, s{B}, s2
        s_sub_u32 s{H_}, s{B}, 384
        s_cselect_b32 s{H_}, s{B}, s{H_}
        s_cselect_b32 s{H_+1}, 3, 2
        s_cselect_b32 s{H_+2}, 0, {VH+10240-KH-20480}
        s_cselect_b32 s{H_+3}, 1, 0
        s_lshr_b32 s{B}, s{H_}, s{H_+1}
        s_lshl_b32 s{H_+1}, s{B}, s{H_+1}
        s_sub_u32 s{H_}, s{H_}, s{H_+1}
        s_mul_i32 s{H_}, s{H_}, 2560
        s_add_u32 s{H_}, s{H_}, s{H_+2}
        s_mul_i32 s{H_+1}, s{B}, 171
        s_lshr_b32 s{H_+1}, s{H_+1}, 9
        s_add_u32 s{B}, s{B}, s{H_+1}
        s_mul_i32 s{B}, s{B}, 20480
        s_lshl_b32 s{B}, s{B}, s{H_+3}
        s_add_u32 s{H_}, s{H_}, s{B}
        s_add_u32 s{H_}, s{H_}, {KH+20480}""")
        for o in (0,1024,1536): p(st4(H_,o,"sc1"))
        p(f"{nh}:")
    p(f"""s_cmp_ge_u32 s{sWAVE}, 2
    s_cbranch_scc1 {w2}
    s_mul_i32 s{B}, s{sWAVE}, 2560
    s_add_u32 s{A}, s{A}, s{B}""")
    for o in (0,1024,1536): p(st4(A,o,CFG['cpol']))
    p(f"""s_branch {dn}
    {w2}:
    s_cmp_eq_u32 s{sWAVE}, 3
    s_cbranch_scc1 {w3}
    s_mul_i32 s{C}, s2, 2560
    s_add_u32 s{C}, s{C}, {CAND}""")
    if 'c' in CFG['ptc']: p(f"v_lshlrev_b32 v228, 7, v0\ns_mov_b64 exec, {0x3ff if 'l' in CFG['ptc'] else 0xfffff}\nbuffer_load_dword v229, v228, {S4(sWS)}, s{C} offen\ns_mov_b64 exec, -1")
    for o in (0,1024,1536): p(st4(C,o,"sc1"))
    p(f"""s_branch {dn}
    {w3}:""")
    if CFG['osent']:
        if 'o' in CFG['ptc']: p(f"v_lshlrev_b32 v228, 7, v0\ns_mov_b32 exec_hi, 0xff\nbuffer_load_dword v229, v228, {S4(sWS)}, s{C} offen\ns_mov_b64 exec, -1")
        for o in range(4): p(st4(C,o*1024,"sc1"))
        p(f"s_add_u32 s{C}, s{C}, 4096"); p(st4(C,0,"sc1"))
    p(f"""s_cmp_ge_u32 s2, 24
    s_cbranch_scc1 {dn}
    s_lshl_b32 s{C}, s2, 10
    s_add_u32 s{C}, s{C}, {ACT}""")
    if 'a' in CFG['ptc']: p(f"v_lshlrev_b32 v228, 7, v0\ns_mov_b64 exec, 0xff\nbuffer_load_dword v229, v228, {S4(sWS)}, s{C} offen\ns_mov_b64 exec, -1")
    p(st4(C,0,"sc1"))
    p(f"{dn}:")
cU=sT+13; vC=84
def hclear_setup(isB):
    A=sT+15; B=sT+16; C=sT+17; D_=sT+18; H_=sT+17
    clr_ids(A,B,C,D_)
    if isB: p(f"""s_mul_i32 s{B}, s2, 2560
        s_add_u32 s{B}, s{B}, {CAND}
        s_add_u32 s{A}, s{C}, 2560
        s_cmp_eq_u32 s{HW}, 2
        s_cselect_b32 s{cU+1}, s{B}, s{A}
        s_mov_b32 s{cU}, s{C}""")
    else: p(f"""s_mul_i32 s{B}, s{HW}, 2560
        s_add_u32 s{cU+1}, s{A}, s{B}""")
    p(f"""s_lshl_b32 s{B}, s{HW}, 8
    s_add_u32 s{B}, s{B}, s2
    s_sub_u32 s{H_}, s{B}, 384
    s_cselect_b32 s{H_}, s{B}, s{H_}
    s_cselect_b32 s{H_+1}, 3, 2
    s_cselect_b32 s{H_+2}, 0, {VH+10240-KH-20480}
    s_cselect_b32 s{H_+3}, 1, 0
    s_lshr_b32 s{B}, s{H_}, s{H_+1}
    s_lshl_b32 s{H_+1}, s{B}, s{H_+1}
    s_sub_u32 s{H_}, s{H_}, s{H_+1}
    s_mul_i32 s{H_}, s{H_}, 2560
    s_add_u32 s{H_}, s{H_}, s{H_+2}
    s_mul_i32 s{H_+1}, s{B}, 171
    s_lshr_b32 s{H_+1}, s{H_+1}, 9
    s_add_u32 s{B}, s{B}, s{H_+1}
    s_mul_i32 s{B}, s{B}, 20480
    s_lshl_b32 s{B}, s{B}, s{H_+3}
    s_add_u32 s{H_}, s{H_}, s{B}
    s_add_u32 s{H_}, s{H_}, {KH+20480}""")
    if isB: p(f"""s_cmp_eq_u32 s{HW}, 2
        s_cselect_b32 s{cU}, s{H_}, s{cU}
        s_cselect_b32 s{cU+3}, 256, s2
        s_lshl_b32 s{cU+2}, s2, 10
        s_cmp_lt_u32 s{cU+3}, 24
        s_cselect_b32 s{H_}, 0, {STX+0x20000-ACT}
        s_add_u32 s{cU+2}, s{cU+2}, s{H_}
        s_add_u32 s{cU+2}, s{cU+2}, {ACT}""")
    else: p(f"""s_mov_b32 s{cU}, s{H_}
        s_getreg_b32 s{A}, hwreg(HW_REG_XCC_ID, 0, 4)
        s_or_b32 s{A}, s{A}, s{sTAG}
        v_mov_b32 v{vC+5}, s{A}
        s_lshl_b32 s{cU+2}, s2, 2
        s_add_u32 s{cU+2}, s{cU+2}, {H1}""")
    p(f"v_lshlrev_b32 v{vC+4}, 4, v0")
    for r in range(4): p(f"v_mov_b32 v{vC+r}, -1")
def hclear(c,isB):
    st=lambda so,off,sc: (p(f"buffer_store_dwordx4 v[{vC}:{vC+3}], v{vC+4}, {S4(sWS)}, s{so} offen offset:{off} {sc}"),OPS.append('clr'))
    ks=[k for k in range(2) if CFG['cst'][k]==c and (CFG['hsent'] or k or isB)]
    pol=lambda k: "sc1" if isB or k==0 else CFG['cpol']
    for k in ks: st(cU+k,0,pol(k)); st(cU+k,1024,pol(k))
    if ks: p(f"s_mov_b64 exec, s[{sLO}:{sLO+1}]")
    for k in ks: st(cU+k,2048,pol(k))
    if ks: p("s_mov_b64 exec, -1")
    if isB and c==CFG['cst'][1]:
        sk=p.lab("noact")
        p(f"s_cmp_lt_u32 s{cU+3}, 24\ns_cselect_b64 exec, -1, 1"); st(cU+2,0,"sc1"); p("s_mov_b64 exec, -1")
    if not isB and c==max(CFG['cst'])+2:
        p(f"s_mov_b64 exec, 1\nbuffer_store_dword v{vC+5}, v{vC+4}, {S4(sWS)}, s{cU+2} offen sc1\ns_mov_b64 exec, -1"); OPS.append('clr')
sSM=sT+11
def sm_setup():
    A=sT+20
    p(f"""s_and_b32 s{A}, s{HW}, 1
    s_lshl_b32 s{sSM}, s{sSLOT}, 1
    s_add_u32 s{A}, s{A}, s{sSM}
    s_mul_i32 s{sSM}, s{A}, {10*3072}
    s_mul_i32 s{A}, s{sG}, 384
    s_add_u32 s{sSM}, s{sSM}, s{A}
    s_lshl_b32 s{A}, s2, 2
    s_add_u32 s{A}, s{A}, s{HW}
    s_mul_i32 s{sSM+1}, s{A}, 800
    s_and_b32 s{sSM+1}, s{sSM+1}, -128""")
def sm_touch(c,isB):
    for opt,n,f in ((CFG['smw'],30,lambda i: f"s_load_dword s100, s[{(sWG,sWU)[isB]}:{(sWG,sWU)[isB]+1}], s{sSM} offset:{(i//3)*3072+(i%3)*128}"),
                    (CFG['smo'],7,lambda i: f"s_load_dword s100, s[{sWO}:{sWO+1}], s{sSM+1} offset:{i*128}")):
        if opt and opt[0]<=c<opt[1]:
            k=opt[1]-opt[0]
            for i in range(n*(c-opt[0])//k,n*(c+1-opt[0])//k): p(f(i))
def code_pf():
    A=sT+18
    p(f"""s_getpc_b64 s[{A}:{A+1}]
    L_pc:
    s_sub_u32 s{A}, s{A}, L_pc-{NAME}_kernel
    s_subb_u32 s{A+1}, s{A+1}, 0
    s_lshl_b32 s{A+2}, s{sSLOT}, 2
    s_add_u32 s{A+2}, s{A+2}, s{sWAVE}
    s_mul_i32 s{A+2}, s{A+2}, 384
    s_min_u32 s{A+2}, s{A+2}, (L_exit-{NAME}_kernel-384)&0xffffff80""")
    for i in range(3): p(f"s_load_dwordx2 s[100:101], s[{A}:{A+1}], s{A+2} offset:{i*128+60}")
def wave_sum(x,t):
    dp="row_mask:0xf bank_mask:0xf"
    for c in ("quad_perm:[1,0,3,2]","quad_perm:[2,3,0,1]","row_half_mirror","row_mirror"):
        p(f"s_nop 1\nv_add_f32_dpp v{x}, v{x}, v{x} {c} {dp}")
    for sw in (16,32):
        p(f"""v_mov_b32 v{t}, v{x}
        s_nop 1
        v_permlane{sw}_swap_b32 v{x}, v{t}
        s_nop 0
        v_add_f32 v{x}, v{x}, v{t}""")
sPF=sT+16
def pf_group(n=5):
    for i in range(n): p(f"s_load_dwordx2 s[100:101], s[{sWO}:{sWO+1}], s{sPF} offset:{i*128+60}")
    p(f"""s_add_u32 s{sPF}, s{sPF}, {n*128}
    s_sub_u32 s{sPF+2}, s{sPF+2}, 1
    s_add_u32 s{sPF+3}, s{sPF+1}, 12800
    s_cmp_eq_u32 s{sPF}, s{sPF+3}
    s_cselect_b32 s{sPF}, s{sPF+1}, s{sPF}""")
def helperB(steps):
    A=sT+7; B=sT+8; vt=2; aD=140; aT=146; aLin=12; D=40; WRr=32
    sO=sT+1; sL=sT+2; sL0=sT+3; sL1=sT+4; C=sT+5
    p("L_helperB:")
    vM=23; x=10; a=sT+16
    clr_ids(a,a+1,a+2,a+3)
    p(f"""s_mul_i32 s{a+1}, s{HW}, 25
    s_sub_u32 s{a+1}, s{a+1}, 50
    v_min_u32 v{x}, 24, v0
    v_add_u32 v{x}, s{a+1}, v{x}
    v_min_u32 v{x}, 48, v{x}
    s_sub_u32 s{a+3}, s{a+3}, {40*128}
    s_and_b32 s{a+1}, s{sSLOT}, 15
    s_lshl_b32 s{a+2}, s{sG}, 4
    s_add_u32 s{a+1}, s{a+1}, s{a+2}
    s_lshl_b32 s{a+1}, s{a+1}, 7
    s_add_u32 s{a+1}, s{a+1}, {FL-48*128}
    v_mov_b32 v{x+1}, s{a}
    v_mov_b32 v{x+2}, s{a+3}
    v_cmp_le_u32 vcc, 40, v{x}
    v_mov_b32 v{x+3}, s{a+1}
    s_mul_i32 s{a+1}, s{sSLOT}, {200*128}
    v_cndmask_b32 v{x+1}, v{x+1}, v{x+2}, vcc
    v_cmp_le_u32 vcc, 48, v{x}
    s_mul_i32 s{a}, s{HW}, {100*128}
    s_add_u32 s{a+1}, s{a+1}, s{a}
    v_cndmask_b32 v{x+1}, v{x+1}, v{x+3}, vcc
    v_lshl_add_u32 v{vM}, v{x}, 7, v{x+1}
    s_sub_u32 s{sPF+1}, s{a+1}, {200*128}
    s_mul_i32 s{sPF}, s{sG}, 5
    s_lshr_b32 s{sPF}, s{sPF}, 1
    s_mul_i32 s{sPF}, s{sPF}, 640
    s_add_u32 s{sPF}, s{sPF}, s{sPF+1}
    s_mov_b32 s{sPF+2}, 20
    v_lshlrev_b32 v{vH+4}, 4, v0
    v_add_u32 v{vH+4}, {H1}, v{vH+4}
    v_mul_u32_u24 v{WRr+5}, 20, v0""")
    aB=130; sK=sT+11; sN=sT+16; sS=sT+17
    def wo_setup():
        va=96
        wo_ids()
        T=[[0,2],[1,3],[4,9],[5,7],[6,8]]
        NIB=[sum((10*((4*s5+g_)//5)+T[(4*s5+g_)%5][rd]-(8*s5+2*g_-2))<<(4*(4*rd+g_)) for rd in range(2) for g_ in range(4)) for s5 in range(5)]
        for i in range(5):
            p(f"""v_add_u32 v{va}, {64*i}, v0
            v_mul_u32_u24 v{va+1}, 6554, v{va}
            v_lshrrev_b32 v{va+1}, 16, v{va+1}
            v_mul_u32_u24 v{va+2}, 10, v{va+1}
            v_sub_u32 v{va}, v{va}, v{va+2}
            v_and_b32 v{aB+5+i}, 28, v{va+1}
            v_and_b32 v{va+2}, 3, v{va+1}
            v_mul_u32_u24 v{va+2}, 1280, v{va+2}
            v_lshl_add_u32 v{va}, v{va}, 4, v{va+2}
            v_bfe_u32 v{va+1}, v{va+1}, 2, 2
            v_mul_u32_u24 v{va+1}, 10240, v{va+1}
            v_add_u32 v{aB+i}, v{va}, v{va+1}""")
            if 0<i<4: p(f"v_subrev_u32 v{aB+i}, {i*1024}, v{aB+i}")
        p(f"""s_lshr_b32 s{A}, s{sSLOT}, 3
        s_mul_i32 s{A}, s{A}, 5
        s_lshr_b32 s{A}, s{A}, 1
        s_add_u32 s{A}, s{A}, s{HW}
        s_sub_u32 s{sK}, s{A}, 2
        v_mov_b32 v{va}, 5120""")
        def woaddr(n):
            p(f"""s_add_u32 s{A}, s{sK}, {2*n}
            s_sub_u32 s{B}, s{A}, 10
            s_cselect_b32 s{A}, s{A}, s{B}
            s_sub_u32 s{B}, s{A}, 5
            s_cselect_b32 s{B}, s{A}, s{B}
            s_mul_i32 s{sS}, s{A}, 40960
            s_sub_u32 s{sS}, s{sS}, 10240
            s_mov_b32 s{sN}, {hex(NIB[0])}""")
            for k in range(1,5): p(f"s_cmp_eq_u32 s{B}, {k}\ns_cselect_b32 s{sN}, {hex(NIB[k])}, s{sN}")
            for i in range(5):
                p(f"""v_bfe_u32 v{va+1}, s{sN}, v{aB+5+i}, 4
                v_mad_u32_u24 v{va+1}, v{va+1}, v{va}, v{aB+i}
                v_add_u32 v{aD+5*n+i}, s{sS}, v{va+1}""")
        for n in range(5): woaddr(n)
    if CFG['wose']==0: wo_setup()
    npf=CFG['npf']
    for _ in range(npf[0]): pf_group()
    def hook(c):
        if c==(100 if CFG['hstep']==CFG['stg'] else CFG['hstep']):
            p(f"buffer_load_dwordx4 v[{vH}:{vH+3}], v{vH+4}, {S4(sWS)}, 0 offen sc1"); OPS.append('h1')
        if c==100:
            p(f"buffer_load_dwordx4 {vr(WRr,4)}, v{WRr+5}, {S4(sWR)}, 0 offen\nbuffer_load_dword v{WRr+4}, v{WRr+5}, {S4(sWR)}, 0 offen offset:16"); OPS.extend(['wr','wr'])
        if c==CFG['pt']:
            qkv_touch()
            OPS.extend(['pt']*wtouch('w1',1))
        if c==CFG['wts']: OPS.extend(['pt']*touch(vTW,sWO,0))
        if c==CFG['pt2']: OPS.extend(['pt']*touch(vM,sWS,CFG['qpair2'],CFG['tpol']))
    steps(hook,1)
    st=dict(n=0)
    def dma(cnt):
        for _ in range(min(cnt,50-st['n'])):
            n=st['n']; i=n%5; k=(n//5)%5
            if n==0 or n==25:
                p(f"""s_xor_b32 s{A}, s{sHH}, {n//25}
                s_mul_i32 s{sO}, s{A}, {320*1280}
                s_mul_i32 s{sL0}, s{A}, 51200
                s_add_u32 s{sL0}, s{sL0}, {L_WO}
                s_mul_i32 s{A}, s{sJ}, 160
                s_add_u32 s{sO}, s{sO}, s{A}""")
            if i==0: p(f"""s_add_u32 s{A}, s{sK}, {2*k}
                s_sub_u32 s{B}, s{A}, 10
                s_cselect_b32 s{A}, s{A}, s{B}
                s_mul_i32 s{sL}, s{A}, 5120
                s_add_u32 s{sL}, s{sL}, s{sL0}
                s_mov_b32 m0, s{sL}
                s_nop 0""")
            if i==4: p(f"s_add_u32 m0, s{sL}, 4096\ns_nop 0")
            p(f"buffer_load_dwordx4 v{aD+5*k+i}, {S4(sWO)}, s{sO} offen offset:{(i&3)*1024} {CFG['wopol']} lds")
            OPS.append('wo%d'%(n//25))
            st['n']+=1
    ne=None
    def hello():
        vmwait('h1')
        nonlocal ne; lp=p.lab("hello"); ok=p.lab("hello_ok"); ne=p.lab("noep")
        p(f"""s_mov_b32 s{A}, {SPIN}
        {lp}:
        v_xor_b32 v{vH}, s{sTAG}, v{vH}
        v_xor_b32 v{vH+1}, s{sTAG}, v{vH+1}
        v_xor_b32 v{vH+2}, s{sTAG}, v{vH+2}
        v_xor_b32 v{vH+3}, s{sTAG}, v{vH+3}
        v_or3_b32 v{vt}, v{vH}, v{vH+1}, v{vH+2}
        v_or_b32 v{vt}, v{vt}, v{vH+3}
        v_cmp_lt_u32 vcc, 15, v{vt}
        s_nop 0
        s_cbranch_vccz {ok}""")
        spin(A,lp,ok,4)
        p(f"""buffer_load_dwordx4 v[{vH}:{vH+3}], v{vH+4}, {S4(sWS)}, 0 offen sc1
        s_waitcnt vmcnt(0)
        s_branch {lp}
        {ok}:
        v_lshl_or_b32 v{vH}, v{vH+1}, 4, v{vH}
        v_lshl_or_b32 v{vH+2}, v{vH+3}, 4, v{vH+2}
        v_lshl_or_b32 v{vH}, v{vH+2}, 8, v{vH}
        v_and_b32 v{vt}, 1, v0
        v_readlane_b32 s{A}, v{vH}, 0
        v_readlane_b32 s{B}, v{vH}, 1
        v_cmp_eq_u32 vcc, 0, v{vt}
        v_mov_b32 v{vt+1}, s{A}
        v_mov_b32 v{vt+2}, s{B}
        v_cndmask_b32 v{vt+1}, v{vt+2}, v{vt+1}, vcc
        v_cmp_ne_u32 vcc, v{vt+1}, v{vH}
        v_mov_b32 v{vt}, {L_MODE}
        s_cmp_lg_u64 vcc, 0
        s_cselect_b32 s{sMODE}, 1, {CFG['force_slow']}
        v_mov_b32 v{vt+1}, s{sMODE}
        ds_write_b32 v{vt}, v{vt+1}""")
    vmwait(8); p("s_barrier")
    if CFG['hpr']: p(f"s_setprio {CFG['hpr']}")
    if CFG['hme']==2: hello()
    if CFG['sfe']==2: stats_fin(96,B)
    hook(8)
    p(f"v_lshlrev_b32 v{aLin}, 4, v0")
    if CFG['hme']==1: hello()
    if CFG['sfe']==1: stats_fin(96,B)
    vmwait(9); p("s_barrier"); STAMP('hb9'); hook(9)
    if CFG['sf2']==1 or (CFG['sf2'] and CFG['sfe']): p("s_barrier")
    if not CFG['sfe']: stats_fin(96,B)
    if not CFG['hme']: hello()
    STAMP('h10')
    p(f"""{"s_waitcnt lgkmcnt(0)" if CFG['epi2']>1 and not CFG['sf2'] else ""}
    {"" if CFG['sf2'] else "s_barrier"}
    s_waitcnt lgkmcnt(0)
    s_barrier""")
    vmw=len(OPS)-1-max(i for i,t in enumerate(OPS) if t=='wr')
    STAMP('hE1')
    if CFG['hpr']: p("s_setprio 0")
    p(f"""v_mov_b32 v{vt}, 0x3f803f80
    v_mov_b32 v{vt+1}, 0
    s_waitcnt vmcnt({vmw})""")
    for k in range(5): p(f"v_dot2_f32_bf16 v{vt+1}, v{WRr+k}, v{vt}, v{vt+1}")
    p("s_nop 0")
    wave_sum(vt+1,vt+2)
    p(f"v_mov_b32 v{vt}, {L_SWS}\nds_write_b32 v{vt}, v{vt+1}")
    if CFG['wose']==1: wo_setup()
    if CFG['hst']: halo_copy(vt,A,B,C,wo_setup if CFG['wose']==2 else (lambda:None))
    else:
        if not CFG['hs2']: halo_flag(vt,A,B,C)
        if CFG['wose']==2: wo_setup()
    p(f"""s_add_u32 s{A}, s2, s{HW}
    s_cmp_lg_u32 s{A}, 2
    s_cbranch_scc1 {ne}
    s_add_u32 s{A}, s{sEP}, 1
    v_mov_b32 v{vt}, {EPO}
    v_mov_b32 v{vt+1}, s{A}
    s_mov_b64 exec, 1
    buffer_store_dword v{vt+1}, v{vt}, {S4(sWS)}, 0 offen sc1
    s_mov_b64 exec, -1
    {ne}:""")
    if CFG['hkv']:
        att_ids()
        p(f"s_mov_b32 s{sK1024}, 1024")
        kv_addr(aLin,13,vt)
        own_setup(14,vt)
        own_kv(aLin,13,14,vt,sHO)
    p(f"v_mov_b32 v{vt}, {F_G1}")
    if CFG['wburst']:
        p(f"""s_lshl_b32 s{B}, s{sSLOT}, 1
        s_add_u32 s{B}, s{B}, s{HW}
        s_sub_u32 s{B}, s{B}, 2
        s_mul_i32 s{B}, s{B}, 12800
        v_lshl_add_u32 v{vTW}, v0, 7, s{B}
        v_min_u32 v{vTW+1}, 35, v0
        v_lshl_add_u32 v{vTW+1}, v{vTW+1}, 7, s{B}
        v_add_u32 v{vTW+1}, 8192, v{vTW+1}""")
        if CFG['wburst']==2: touch(vTW,sWO,0); touch(vTW+1,sWO,0)
    lds_wait(vt,vt+1,A,'gt',4,1)
    if CFG['wburst']==1: touch(vTW,sWO,0); touch(vTW+1,sWO,0)
    wtouch('w3',1)
    if CFG['wog2']:
        p(f"v_mov_b32 v{vt+2}, {F_G2}")
        lds_wait(vt+2,vt+1,A,'gt',2,1)
    STAMP('wo_s')
    del OPS[:]
    thr=CFG['wothr']; gs=CFG['wogs']; thr1=CFG['wothr1']
    def more(n,dyn=False):
        while n>0 and st['n']<50:
            k=min(gs,n)
            if dyn and thr1<thr and st['n']>=thr1:
                sk=p.lab("wog")
                p(f"""ds_read_b32 v{vt+1}, v{vt} offset:{(F_G2 if CFG['wgf']=='G2' else F_M)-F_G1}
                s_waitcnt lgkmcnt(0)
                v_cmp_gt_u32 vcc, {2 if CFG['wgf']=='G2' else 1}, v{vt+1}
                s_nop 0
                s_cbranch_vccz {sk}
                s_waitcnt vmcnt({max(0,thr1-k)})
                {sk}:""")
            if CFG['wpause'] and st['n']==CFG['wpause']:
                p(f"v_mov_b32 v{vt+2}, {F_RI}"); lds_wait(vt+2,vt+1,A,'gt',1,1); STAMP('wo_p')
            if st['n']>=thr: p(f"s_waitcnt vmcnt({max(0,thr-k)})")
            gi=st['n']//gs; a_,b_=CFG['mtr']
            dma(k); n-=k
            if CFG['mtw']=='wo' and a_<=gi<b_:
                l0=60*(gi-a_)//(b_-a_); l1=60*(gi+1-a_)//(b_-a_); msk=((1<<l1)-1)^((1<<l0)-1)
                u=p.lab("tu"); j=p.lab("tj")
                p(f"s_mov_b32 exec_lo, {hex(msk&0xffffffff)}\ns_mov_b32 exec_hi, {hex(msk>>32)}\ns_cmp_eq_u32 s{HW}, 2\ns_cbranch_scc0 {u}")
                touch(vTM,sWG,0); p(f"s_branch {j}\n{u}:"); touch(vTM,sWU,0); p(f"{j}:\ns_mov_b64 exec, -1")
                OPS.append('mt')
    def sig(f):
        p(f"""v_mov_b32 v{vt+2}, {f}
        v_mov_b32 v{vt+3}, 1
        s_mov_b64 exec, 1
        ds_add_u32 v{vt+2}, v{vt+3}
        s_mov_b64 exec, -1""")
    more(25+min(thr,15),True)
    vmwait('wo0')
    sig(F_WOR)
    STAMP('wo_0')
    more(50)
    sig(F_WOD)
    STAMP('wo_1')
    p("s_waitcnt vmcnt(0)")
    sig(F_WO2)
    STAMP('wo')

ACC=64; CS=128; XF=132; WF=148; SEL=164; aX=168; aW=172; aST=174; aSG=178; vT=2
sWR_,sWC,sLC,sTY,sSO,sHALO,sFO,sSO2=range(sT,sT+8)
def gemm_setup():
    t=vT; A=sT+10; B=sT+11
    wave_ids(sWAVE,sWR_,sWC,sLC,sTY)
    if CFG['g16']:
        p(f"""v_and_b32 v{t}, 15, v0
        v_and_b32 v{t+1}, 8, v0
        s_cmp_eq_u32 s{sTY}, 2
        s_cselect_b32 s{A}, 1, 0
        v_mul_u32_u24 v{t+1}, s{A}, v{t+1}
        s_lshl_b32 s{A}, s{sWR_}, 6
        v_add3_u32 v{t+1}, v{t+1}, v{t}, s{A}
        v_lshlrev_b32 v{t+1}, 7, v{t+1}
        v_lshrrev_b32 v{t+2}, 4, v0
        v_lshrrev_b32 v{t+3}, 1, v{t}
        v_xor_b32 v{t+3}, v{t+3}, v{t+2}
        v_lshl_add_u32 v{aX}, v{t+3}, 4, v{t+1}
        v_xor_b32 v{aX+1}, 64, v{aX}
        v_bfe_u32 v{t+3}, v0, 2, 2
        v_lshl_add_u32 v{t+4}, v{t+2}, 3, v{t+3}
        v_lshlrev_b32 v{t+4}, 8, v{t+4}
        v_xor_b32 v{t+3}, s{sWAVE}, v{t+3}
        v_lshl_add_u32 v{t+4}, v{t+3}, 6, v{t+4}
        v_bfe_u32 v{t+3}, v0, 4, 1
        v_lshl_add_u32 v{t+4}, v{t+3}, 5, v{t+4}
        v_and_b32 v{t+5}, 3, v0
        v_lshl_add_u32 v{t+4}, v{t+5}, 3, v{t+4}
        v_add_u32 v{aW6}, 16384, v{t+4}
        v_xor_b32 v{aW6+1}, 32, v{aW6}
        v_xor_b32 v{aW6+2}, 64, v{aW6}
        v_xor_b32 v{aW6+3}, 96, v{aW6}""")
        for r in range(4): p(f"v_mov_b32 v{SEL+r}, 0x3f803f80\nv_mov_b32 v{CS2+r}, 0")
    else:
        p(f"""v_and_b32 v{t}, 31, v0
        s_lshl_b32 s{A}, s{sWR_}, 6
        v_add_u32 v{t+1}, s{A}, v{t}
        v_lshlrev_b32 v{t+1}, 7, v{t+1}
        v_lshrrev_b32 v{t+2}, 5, v0
        v_bfe_u32 v{t+3}, v0, 1, 3
        v_xor_b32 v{t+3}, v{t+3}, v{t+2}
        v_lshl_add_u32 v{aX}, v{t+3}, 4, v{t+1}""")
        for s in range(1,4): p(f"v_xor_b32 v{aX+s}, {32*s}, v{aX}")
        p(f"""v_bfe_u32 v{t+3}, v0, 2, 2
        v_lshl_add_u32 v{t+4}, v{t+2}, 3, v{t+3}
        v_lshlrev_b32 v{t+4}, 8, v{t+4}
        s_lshl_b32 s{A}, s{sWC}, 1
        s_or_b32 s{A}, s{A}, s{sWR_}
        v_xor_b32 v{t+3}, s{A}, v{t+3}
        v_lshl_add_u32 v{t+4}, v{t+3}, 6, v{t+4}
        v_bfe_u32 v{t+3}, v0, 4, 1
        v_lshl_add_u32 v{t+4}, v{t+3}, 5, v{t+4}
        v_and_b32 v{t+5}, 3, v0
        v_lshl_add_u32 v{t+4}, v{t+5}, 3, v{t+4}
        v_add_u32 v{aW}, 16384, v{t+4}
        v_xor_b32 v{aW+1}, 64, v{aW}
        v_bfe_u32 v{t+4}, v0, 2, 1
        v_cmp_eq_u32 vcc, v{t+3}, v{t+4}
        v_mov_b32 v{t+5}, 0x3f803f80
        s_nop 0
        v_cndmask_b32 v{SEL}, 0, v{t+5}, vcc
        v_cndmask_b32 v{SEL+1}, 0, v{t+5}, vcc
        v_cndmask_b32 v{SEL+2}, 0, v{t+5}, vcc
        v_cndmask_b32 v{SEL+3}, 0, v{t+5}, vcc""")
    for r in list(range(ACC,ACC+64))+list(range(CS,CS+4)): p(f"v_mov_b32 v{r}, 0")
    store_addr(sWR_,sLC,sTY,sSO,sSO2,sHALO,sFO,aST,sT+10,sT+11)
    p(f"s_mov_b32 s{sHAL2}, s{sHALO}")
    if CFG['dcs']:
        ta,tc,tg=[[int(x) for x in r] for r in CFG['rot']]
        assert ta==[0,0,5,5] and all((tg[g-2]-tg[g])%10==(9 if g>=2 else 3) for g in range(8))
        tb={'q':((0,0,5,5),((0,3),(3,2),(0,3),(3,2))),'lo':((0,0,5,8),((0,3),(3,2),(0,3),(0,2))),'hi':((0,0,5,4),((0,2),(2,2),(2,3),(0,3)))}
        for st_,fn in tb.values(): assert sorted((st_[r]+fn[r][0]+k)%10 for r in range(4) for k in range(fn[r][1]))==list(range(10))
        nb=lambda k: sum((f|(n-2)<<3)<<(4*r) for r,(f,n) in enumerate(tb[k][1]))
        mk=lambda n: ((2<<n)-1)|((2<<n)-2)<<10|((1<<n)-1)<<20
        p(f"""s_cmp_lt_u32 s{sG}, 2
        s_movk_i32 s{A}, {nb('hi')}
        s_cselect_b32 s{A}, {nb('lo')}, s{A}
        s_cmp_gt_u32 s{sCT}, 2
        s_cselect_b32 s{A}, s{A}, {nb('q')}
        s_and_b32 s{B}, s{sBK}, 3
        s_lshl_b32 s{B}, s{B}, 2
        s_lshr_b32 s{A}, s{A}, s{B}
        s_bitcmp1_b32 s{A}, 3
        s_mov_b32 s{sCSM}, {mk(2)}
        s_cselect_b32 s{sCSM}, {mk(3)}, s{sCSM}
        s_and_b32 s{A}, s{A}, 7
        s_lshl_b32 s{sCSM}, s{sCSM}, s{A}
        s_lshl_b32 s{A}, s{sG}, 3
        s_add_u32 s{A}, s{A}, s{sCT}
        s_lshl_b32 s{A}, s{A}, 1
        s_add_u32 s{A}, s{A}, s{sWC}
        s_lshl_b32 s{A}, s{A}, 2
        s_add_u32 s{A}, s{A}, s{sRB}
        s_lshl_b32 s{A}, s{A}, 1
        s_add_u32 s{A}, s{A}, s{sWR_}
        s_lshl_b32 s{A}, s{A}, 8
        s_add_u32 s{sCSO}, s{A}, {CSX}
        v_lshlrev_b32 v{aCP}, 3, v0""")
    if CFG['hs2']:
        p(f"""s_xor_b32 s{A}, s{sWR_}, s{sRB}
        s_and_b32 s{A}, s{A}, 1
        s_lshl_b32 s{sHAL2}, s{sHALO}, s{A}
        s_lshl_b32 s{B}, s{sG}, 4
        s_add_u32 s{B}, s{B}, s{sLC}
        s_lshl_b32 s{B}, s{B}, 2
        s_add_u32 s{B}, s{B}, s{sRB}
        s_lshl_b32 s{B}, s{B}, 1
        s_add_u32 s{B}, s{B}, s{A}
        s_lshl_b32 s{B}, s{B}, 7
        s_add_u32 s{sHFA}, s{B}, {FH}""")
    if CFG['hst']: p(f"""s_mul_i32 s{A}, s{sWAVE}, 9216
        s_add_u32 s{A}, s{A}, {L_WO}
        v_lshl_add_u32 v{aSG}, v0, 4, s{A}""")
sHAL2=sDBG; sHFA=25; vHF=190; sCSM=26; sCSO=27; aCP=179; sCSI=37; sM16=4; aW6=170; CS2=44; XF6=(132,12); WF6=(148,28)
def wave_ids(wave,wr,wc,lc,ty):
    p(f"""s_and_b32 s{wr}, s{wave}, 1
    s_lshr_b32 s{wc}, s{wave}, 1
    s_lshl_b32 s{lc}, s{sCT}, 1
    s_add_u32 s{lc}, s{lc}, s{wc}
    s_cmp_eq_u32 s{lc}, 5
    s_cselect_b32 s{lc}, 15, s{lc}
    s_cmp_gt_u32 s{sCT}, 2
    s_subb_u32 s{lc}, s{lc}, 0
    s_mul_i32 s{ty}, s{lc}, 52
    s_lshr_b32 s{ty}, s{ty}, 8""")
def store_addr(wr,lc,ty,so,so2,halo,fo,ast,A,B,t=2):
    p(f"""v_and_b32 v{t}, 31, v0
    v_lshrrev_b32 v{t+2}, 5, v0
    s_mul_i32 s{A}, s{ty}, 5
    s_sub_u32 s{A}, s{lc}, s{A}
    s_mul_i32 s{B}, s{sHH}, 5
    s_add_u32 s{A}, s{A}, s{B}
    s_lshl_b32 s{B}, s{sBK}, 1
    s_add_u32 s{B}, s{B}, s{wr}
    s_lshl_b32 s{B}, s{B}, 1""")
    isv=p.lab("isv"); jn=p.lab("stj")
    p(f"""s_cmp_ge_u32 s{ty}, 2
    s_cbranch_scc1 {isv}
    s_mul_i32 s{so}, s{B}, 2560
    s_mul_i32 s{B}, s{ty}, {KB}
    s_add_u32 s{so}, s{so}, s{B}
    s_add_u32 s{so2}, s{so}, 2560
    s_lshl_b32 s{A}, s{A}, 3""")
    for cb in range(2):
        for ip in range(2):
            p(f"""s_xor_b32 s{B}, s{wr}, {cb}
            s_lshl_b32 s{B}, s{B}, 2
            s_add_u32 s{B}, s{B}, s{A}
            s_add_u32 s{B}, s{B}, {2*ip}
            v_add_u32 v{t+3}, s{B}, v{t+2}
            v_mul_u32_u24 v{t+4}, 205, v{t+3}
            v_lshrrev_b32 v{t+4}, 10, v{t+4}
            v_mul_u32_u24 v{t+5}, 5, v{t+4}
            v_sub_u32 v{t+5}, v{t+3}, v{t+5}
            v_mul_u32_u24 v{t+4}, {64*2560}, v{t+4}
            v_lshl_add_u32 v{t+4}, v{t+5}, 9, v{t+4}
            v_lshl_add_u32 v{ast+2*cb+ip}, v{t}, 4, v{t+4}""")
    p(f"""s_branch {jn}
    {isv}:
    s_mul_i32 s{so}, s{B}, 1280
    s_add_u32 s{so}, s{so}, {VB}
    s_add_u32 s{so2}, s{so}, 1280
    s_lshl_b32 s{A}, s{A}, 6""")
    if CFG['g16']:
        p(f"""v_and_b32 v{t}, 15, v0
        v_bfe_u32 v{t+1}, v0, 4, 1
        v_lshl_add_u32 v{t+2}, v{t+2}, 1, v{t+1}
        v_mul_u32_u24 v{t+2}, 320, v{t+2}""")
        for j in range(4):
            p(f"""s_xor_b32 s{B}, s{wr}, {j>>1}
            s_lshl_b32 s{B}, s{B}, 5
            s_add_u32 s{B}, s{B}, s{A}
            s_add_u32 s{B}, s{B}, {16*(j&1)}
            v_add_u32 v{t+3}, s{B}, v{t}
            v_mul_u32_u24 v{t+4}, 3277, v{t+3}
            v_lshrrev_b32 v{t+4}, 16, v{t+4}
            v_mul_u32_u24 v{t+5}, 20, v{t+4}
            v_sub_u32 v{t+5}, v{t+3}, v{t+5}
            v_mul_u32_u24 v{t+4}, 81920, v{t+4}
            v_lshl_add_u32 v{t+4}, v{t+5}, 4, v{t+4}
            v_add_u32 v{ast+j}, v{t+4}, v{t+2}""")
    for cb in range(0 if CFG['g16'] else 2):
        p(f"""s_xor_b32 s{B}, s{wr}, {cb}
        s_lshl_b32 s{B}, s{B}, 5
        s_add_u32 s{B}, s{B}, s{A}
        v_add_u32 v{t+3}, s{B}, v{t}
        v_mul_u32_u24 v{t+4}, 3277, v{t+3}
        v_lshrrev_b32 v{t+4}, 16, v{t+4}
        v_mul_u32_u24 v{t+5}, 20, v{t+4}
        v_sub_u32 v{t+5}, v{t+3}, v{t+5}
        v_mul_u32_u24 v{t+4}, 81920, v{t+4}
        v_lshl_add_u32 v{t+4}, v{t+5}, 4, v{t+4}
        v_mul_u32_u24 v{t+5}, 320, v{t+2}
        v_add_u32 v{ast+2*cb}, v{t+4}, v{t+5}
        v_add_u32 v{ast+2*cb+1}, 640, v{ast+2*cb}""")
    p(f"{jn}:")
    halo_cond(halo,A)
    if CFG['honly']: p(f"s_mul_i32 s{A}, s{halo}, {KH-KB}\ns_add_u32 s{so}, s{so}, s{A}\ns_add_u32 s{so2}, s{so2}, s{A}")
    p(f"""s_lshl_b32 s{fo}, s{sG}, 4
    s_add_u32 s{fo}, s{fo}, s{lc}
    s_lshl_b32 s{fo}, s{fo}, 5
    s_lshl_b32 s{A}, s{sRB}, 1
    s_add_u32 s{A}, s{A}, s{wr}
    s_add_u32 s{fo}, s{fo}, s{A}
    s_lshl_b32 s{fo}, s{fo}, 2
    s_add_u32 s{fo}, s{fo}, {FL}""")
def xf(buf,xb): return XF+8*buf+4*xb
def wf(buf,cb): return WF+8*buf+4*cb
def reads(kind,buf,par,s):
    L=[]
    for xb in range(2): L.append(f"ds_read_b128 {vr(xf(buf,xb),4)}, v{aX+s} offset:{par*32768+xb*4096}")
    if kind!='S':
        for cb in range(2):
            for rd in range(2): L.append(f"ds_read_b64_tr_b16 {vr(wf(buf,cb)+2*rd,2)}, v{aW+cb} offset:{par*32768+s*4096+rd*1024}")
        L=[L[2],L[3],L[0],L[1],L[4],L[5]]
    return L
def mfmas(kind,buf):
    L=[]
    if kind=='S':
        for xb in range(2):
            x=xf(buf,xb)
            L.append(f"v_mfma_f32_16x16x32_bf16 {vr(ACC+4*xb,4)}, {vr(SEL,4)}, {vr(x,4)}, {vr(ACC+4*xb,4)}")
            L.append(f"v_mfma_f32_4x4x4_16b_bf16 {vr(ACC+8+8*xb,4)}, {vr(x,2)}, {vr(x,2)}, {vr(ACC+8+8*xb,4)}")
            L.append(f"v_mfma_f32_4x4x4_16b_bf16 {vr(ACC+12+8*xb,4)}, {vr(x+2,2)}, {vr(x+2,2)}, {vr(ACC+12+8*xb,4)}")
        return L
    for cb in range(2):
        for xb in range(2):
            a=ACC+16*(2*xb+cb); X=vr(xf(buf,xb),4); W=vr(wf(buf,cb),4)
            if 'm16' in CFG['xp']:
                a+=8*buf
                L.append("\n".join(f"v_mfma_f32_16x16x32_bf16 {vr(a+4*i,4)}, {W if kind=='T' else X}, {vr(xf(buf,xb^i),4) if kind=='T' else vr(wf(buf,cb^i),4)}, {vr(a+4*i,4)}" for i in range(2)))
                continue
            L.append(f"v_mfma_f32_32x32x16_bf16 {vr(a,16)}, {W if kind=='T' else X}, {X if kind=='T' else W}, {vr(a,16)}")
    if 'nocs' in CFG['xp']: return L
    cs=f"v_mfma_f32_16x16x32_bf16 {vr(CS,4)}, {vr(SEL,4)}, {vr(wf(buf,0),4)}, {vr(CS,4)}"
    if not CFG['dcs']: L.insert(2,cs)
    return L
CF_=48
def cs_gate(kind,par):
    p(f"""s_bitcmp1_b32 s{sCSM}, 0
    s_movk_i32 s{sCSI}, {par*32768-65536*par}
    s_cbranch_scc1 L_csb{kind}
    L_csr{kind}{par}:
    s_lshr_b32 s{sCSM}, s{sCSM}, 1""")
def cs_block(kind):
    assert CFG['g16']; K=kind
    p(f"L_csb{K}:\ns_bitcmp0_b32 s{sCSM}, 10\ns_cbranch_scc1 L_csrd{K}\ns_waitcnt lgkmcnt(12)")
    for k in range(4):
        c=(CS,CS2)[k&1]
        p(f"v_mfma_f32_16x16x32_bf16 {vr(c,4)}, {vr(SEL,4)}, {vr(CF_+4*k,4)}, {vr(c,4)}")
    p(f"""s_bitcmp1_b32 s{sCSM}, 20
    s_cbranch_scc1 L_csrd{K}
    s_mov_b32 vcc_lo, 0xffff0000
    s_mov_b32 vcc_hi, 0xffff0000
    v_mov_b32 v{CF_+1}, s{sTAG}
    s_nop 7
    v_cndmask_b32 v{CF_}, v{CS}, v{CS2}, vcc
    s_mov_b64 exec, s[{sLO}:{sLO+1}]
    buffer_store_dwordx2 {vr(CF_,2)}, v{aCP}, {S4(sWS)}, s{sCSO} offen sc1
    s_mov_b64 exec, -1
    s_branch L_csx{K}
    L_csrd{K}:
    s_and_b32 s{sCSI+1}, s{sCSI}, 32768
    v_add_u32 v{aCP-1}, s{sCSI+1}, v{aW6}
    v_add_u32 v{aCP+1}, s{sCSI+1}, v{aW6+1}""")
    for k in range(4):
        for rd in range(2): p(f"ds_read_b64_tr_b16 {vr(CF_+4*k+2*rd,2)}, v{aCP+1 if k&1 else aCP-1} offset:{(k>>1)*8192+rd*1024}")
    p(f"""L_csx{K}:
    s_cmp_eq_u32 s{sCSI}, 0
    s_cbranch_scc1 L_csr{K}0
    s_branch L_csr{K}1""")
def reads6(kind,buf,par,s):
    X=[f"ds_read_b128 {vr(XF6[buf]+4*tt,4)}, v{aX+((tt&1)^s)} offset:{par*32768+(tt>>1)*4096+(tt&1)*(2048 if kind=='T' else 1024)}" for tt in range(4)]
    W=[[f"ds_read_b64_tr_b16 {vr(WF6[buf]+4*j+2*rd,2)}, v{aW6+j} offset:{par*32768+s*8192+rd*1024}" for rd in range(2)] for j in range(4)]
    return W[0]+X[:2]+W[1]+X[2:]+W[2]+W[3]
acc6=lambda tt,j: ACC+16*(2*(tt>>1)+(j>>1))+8*(j&1)+4*(tt&1)
def mfmas6(kind,buf):
    L=[]
    for j in range(4):
        for tt in range(4):
            a=vr(acc6(tt,j),4); X=vr(XF6[buf]+4*tt,4); W=vr(WF6[buf]+4*j,4)
            L.append(f"v_mfma_f32_16x16x32_bf16 {a}, {W if kind=='T' else X}, {X if kind=='T' else W}, {a}")
    if CFG['csv']:
        for q,i in enumerate(CFG['csp']):
            h,r=(q>>2,q&3) if CFG['csv']==1 else (q&1,q>>1)
            c=(CS,CS2)[h]; L[i]+=f"\nv_dot2_f32_bf16 v{c}, v{WF6[buf]+4*h+r}, v{SEL}, v{c}"
    elif not CFG['dcs'] and 'nocs' not in CFG['xp']:
        for h,i in enumerate(CFG['g16c']): c=vr((CS,CS2)[h],4); L.insert(i,f"v_mfma_f32_16x16x32_bf16 {c}, {vr(SEL,4)}, {vr(WF6[buf]+4*h,4)}, {c}")
    return L
def gemm_loop(kind):
    CNT=sT+10
    lp=p.lab("g"+kind)
    STAMP('rdy')
    p("s_barrier")
    STAMP('b0')
    for r in (reads6 if CFG['g16'] else reads)(kind,0,0,0): p(r)
    if CFG['clr']==1 and not CFG['hclr']: clears(1)
    cl_=p.lab("clr"); cr_=p.lab("clrr")
    if CFG['clr']>1:
        n0=len(p.L); p(f"{cl_}:"); clears(1); p(f"s_branch {cr_}")
        COLD.append("\n".join(p.L[n0:])); del p.L[n0:]
    hl=p.lab("hello"); hr=p.lab("hellor")
    if not CFG['hclr']:
        COLD.append(f"""{hl}:
        s_getreg_b32 s{CNT+1}, hwreg(HW_REG_XCC_ID, 0, 4)
        s_or_b32 s{CNT+1}, s{CNT+1}, s{sTAG}
        v_mov_b32 v{vT}, s{CNT+1}
        s_lshl_b32 s{CNT+1}, s2, 2
        s_add_u32 s{CNT+1}, s{CNT+1}, {H1}
        v_mov_b32 v{vT+1}, 0
        s_mov_b64 exec, 1
        buffer_store_dword v{vT}, v{vT+1}, {S4(sWS)}, s{CNT+1} offen sc1
        s_mov_b64 exec, -1
        s_branch {hr}""")
        p(f"s_lshl_b32 s{CNT+2}, s{sWAVE}, 3\ns_add_u32 s{CNT+2}, s{CNT+2}, {5-CFG['clr']}")
    p(f"s_mov_b32 s{CNT}, 5\n{lp}:")
    if CFG['clr']>1: p(f"s_cmp_eq_u32 s{CNT}, {6-CFG['clr']}\ns_cbranch_scc1 {cl_}\n{cr_}:")
    for k in range(1,5):
        if (CFG['cal'] and CFG['cal'][0]=='it%d'%(2*k)) or (CFG['amp'] and 'it%d'%(2*k) in CFG['amp'][:2]) or (CFG['prof'] and any('it%d'%(2*k) in n.split('|') for n in CFG['st'])):
            sk=p.lab("its"); p(f"s_cmp_lg_u32 s{CNT}, {5-k}\ns_cbranch_scc1 {sk}"); STAMP('it%d'%(2*k)); p(f"{sk}:")
    for par in range(2):
        if CFG['dcs']: cs_gate(kind,par)
        for s in range(2 if CFG['g16'] else 0):
            M=mfmas6(kind,s); R=reads6(kind,s^1,par^s,s^1)
            p("s_waitcnt lgkmcnt(0)")
            if s:
                if CFG['g16x']:
                    nb_=CFG['g16b']
                    for i in range(nb_):
                        p(M.pop(0))
                        for k in range(6*i//nb_,6*(i+1)//nb_):
                            if par: p(f"v_xor_b32 v{aX+k}, 0x10000, v{aX+k}")
                for _ in range(0 if CFG['g16x'] else CFG['g16b']): p(M.pop(0))
                if par and not CFG['g16x']:
                    for i in range(6):
                        p(f"v_xor_b32 v{aX+i}, 0x10000, v{aX+i}")
                        if i in (1,3): p(M.pop(0))
                if par==0:
                    w1=p.lab("cw"); w2=p.lab("cwr")
                    p(f"s_cmp_eq_u32 s{CNT}, {5-CFG['clr']}\ns_cbranch_scc1 {w1}\n{w2}:")
                    COLD.append(f"{w1}:\ns_waitcnt vmcnt(0)\ns_branch {w2}")
                p("s_barrier")
                if par==0: p(f"s_cmp_eq_u32 s{CNT}, s{CNT+2}\ns_cbranch_scc1 {hl}\n{hr}:")
            for n in CFG['g16r']:
                for _ in range(n): p(R.pop(0))
                p(M.pop(0))
            assert not R
            for m in M: p(m)
        for s in range(0 if CFG['g16'] else 4):
            buf=s&1
            last=(s==3)
            M=mfmas(kind,buf)
            if CFG['nomfma']: M=M[:1]
            if last and par==1:
                pre=[f"v_xor_b32 v{aX+i}, 0x10000, v{aX+i}" for i in range(4)]+[f"v_xor_b32 v{aW+i}, 0x10000, v{aW+i}" for i in range(2)]
            else: pre=[]
            R=reads(kind,buf^1,(par^1) if last else par,(s+1)&3)
            p("s_waitcnt lgkmcnt(0)")
            if last:
                p(M.pop(0))
                for x in pre: p(x)
                if par==0 and not CFG['hclr'] and not CFG['lclr']:
                    w1=p.lab("cw"); w2=p.lab("cwr")
                    p(f"s_cmp_eq_u32 s{CNT}, {5-CFG['clr']}\ns_cbranch_scc1 {w1}\n{w2}:")
                    COLD.append(f"{w1}:\ns_waitcnt vmcnt(0)\ns_branch {w2}")
                p("s_barrier")
                if par==0 and not CFG['hclr']: p(f"s_cmp_eq_u32 s{CNT}, s{CNT+2}\ns_cbranch_scc1 {hl}\n{hr}:")
            k=0
            while M or R:
                if R: p(R.pop(0))
                if R: p(R.pop(0))
                if M: p(M.pop(0))
    p(f"""s_sub_u32 s{CNT}, s{CNT}, 1
    s_cmp_lg_u32 s{CNT}, 0
    s_cbranch_scc1 {lp}""")
    STAMP('gend')
def bf16r(dst,src):
    p(f"v_cvt_pk_bf16_f32 v{dst}, v{src}, v{src}\nv_and_b32 v{dst}, 0xffff0000, v{dst}")
def mode_read():
    p(f"""v_mov_b32 v{vT+8}, {L_MODE}
    ds_read_b32 v{vT+9}, v{vT+8}""")
def mode_get():
    p(f"v_readfirstlane_b32 s{sMODE}, v{vT+9}")
def dual(stores,pol='',sMODE=sMODE):
    sl=p.lab("slow"); jn=p.lab("jn")
    p(f"s_cmp_lg_u32 s{sMODE}, 0\ns_cbranch_scc1 {sl}")
    for s in stores: p(s+" "+pol)
    p(f"s_branch {jn}\n{sl}:")
    for s in stores: p(s+" sc1")
    p(f"{jn}:")
def idle_gemm():
    vt=10; aI=20; acc=28; one=32; D=64; A=sT+10
    p(f"""s_lshl_b32 s{A}, s{sWR_}, 13
    v_bfe_u32 v{vt}, v0, 1, 3
    v_lshlrev_b32 v{vt}, 4, v{vt}
    v_lshl_add_u32 v{vt}, v0, 7, v{vt}
    v_add_u32 v{aI}, s{A}, v{vt}
    v_mov_b32 v{one}, 0x3f803f80
    s_lshl_b32 s{A}, s{sG}, 2
    s_add_u32 s{A}, s{A}, s{sRB}
    s_lshl_b32 s{A}, s{A}, 14
    s_lshl_b32 s{A+1}, s{sWR_}, 10
    s_add_u32 s{A}, s{A}, s{A+1}
    s_add_u32 s{A}, s{A}, {STP+2*2048}
    v_lshlrev_b32 v{vt}, 4, v0""")
    for i in range(1,8): p(f"v_xor_b32 v{aI+i}, {16*i}, v{aI}")
    for i in range(4): p(f"v_mov_b32 v{acc+i}, 0")
    k=CFG['clr']
    for c in range(11):
        if c==1+2*k and not CFG['hclr']: p(f"s_waitcnt vmcnt({1 if k==1 else 0})")
        p("s_barrier")
        if k and c==2*k-2 and c!=2: clears(1)
        if c<3:
            if c==2:
                for i in range(8): p(f"v_add_u32 v{aI+i}, 0x10000, v{aI+i}")
            for i in range(8): p(f"ds_read_b128 {vr(D+4*i,4)}, v{aI+i} offset:{(c&1)*32768}")
            for i in range(8):
                p(f"s_waitcnt lgkmcnt({7-i})")
                for j in range(4):
                    r=D+4*i+j
                    p(f"v_dot2_f32_bf16 v{acc+(j&1)}, v{r}, v{one}, v{acc+(j&1)}\nv_dot2_f32_bf16 v{acc+2+(j&1)}, v{r}, v{r}, v{acc+2+(j&1)}")
        if c==2: p(f"""s_nop 1
            v_add_f32 v{acc}, v{acc}, v{acc+1}
            v_add_f32 v{acc+1}, v{acc+2}, v{acc+3}
            v_mov_b32 v{acc+2}, s{sTAG}
            buffer_store_dwordx4 {vr(acc,4)}, v{vt}, {S4(sWS)}, s{A} offen sc1""")
        if k==2 and c==2: clears(1)
    p("s_barrier")
    mode_read()
    p("s_waitcnt lgkmcnt(0)")
    mode_get()
HST=[]
def gemm_epi(kind):
    t=vT; A=sT+10
    AU=20
    WA=24
    XA=28
    RS=32
    def split(cb):
        c=CS+cb
        p(f"""v_cndmask_b32 v{c}, 0, v{c}, s[{sLO}:{sLO+1}]
        v_cvt_pk_bf16_f32 v{t+5}, v{c}, v{c}
        v_and_b32 v{t+5}, 0xffff0000, v{t+5}
        v_sub_f32 v{t+6}, v{c}, v{t+5}
        v_cvt_pk_bf16_f32 v{WA+2*cb}, v{t+5}, v{t+6}""")
    if CFG['g16']:
        assert CFG['epi2']==2 and not CFG['honly']
        allst=[ACC+16*(2*xb+cb)+4*h for xb in range(2) for cb in range(2) for h in range(2)]
        sto=lambda xb,cb,h: f"buffer_store_dwordx4 {vr(ACC+16*(2*xb+cb)+4*h,4)}, v{aST+2*cb+h}, {S4(sWS)}, s{sSO2 if xb else sSO} offen"
        T=kind=='T'; CV=28 if T else 20; NM=48
        p(f"""v_and_b32 v{t}, 15, v0
        v_lshrrev_b32 v{t+4}, 4, v0
        s_lshl_b32 s{A}, s{sWAVE}, 7
        s_add_u32 s{A}, s{A}, {L_CS}""")
        if T: p(f"""s_lshl_b32 s{A+1}, s{sWR_}, 9
            s_add_u32 s{A+1}, s{A+1}, {L_SA}
            v_lshl_add_u32 v{t+3}, v{t}, 3, s{A+1}
            v_lshl_add_u32 v{t+1}, v{t+4}, 4, s{A}""")
        else: p(f"""v_lshrrev_b32 v{t+3}, 5, v0
            v_lshlrev_b32 v{t+3}, 6, v{t+3}
            v_and_b32 v{t+4}, 1, v{t+4}
            s_lshl_b32 s{A+1}, s{sWR_}, 8
            s_add_u32 s{A+1}, s{A+1}, {L_SM}
            v_lshl_add_u32 v{t+3}, v{t+4}, 4, v{t+3}
            v_add_u32 v{t+3}, s{A+1}, v{t+3}
            v_lshl_add_u32 v{t+1}, v{t}, 2, s{A}""")
        if CFG['csv']: p(f"""v_permlane16_swap_b32 v{CS}, v{CS2}
            v_and_b32 v{t+5}, 31, v0
            v_add_f32 v{CS}, v{CS}, v{CS2}
            v_mov_b32 v{CS2}, v{CS}
            v_lshl_add_u32 v{t+5}, v{t+5}, 2, s{A}
            s_nop 0
            v_permlane32_swap_b32 v{CS}, v{CS2}
            s_nop 0
            v_add_f32 v{CS}, v{CS}, v{CS2}
            ds_write_b32 v{t+5}, v{CS}""")
        elif not CFG['dcs']: p(f"""v_and_b32 v{t+5}, 31, v0
            v_lshl_add_u32 v{t+5}, v{t+5}, 2, s{A}
            s_mov_b32 vcc_lo, 0xffff0000
            s_mov_b32 vcc_hi, 0xffff0000
            v_cndmask_b32 v{CS}, v{CS}, v{CS2}, vcc
            ds_write_b32 v{t+5}, v{CS}""")
        p(f"v_xor_b32 v{t+2}, 128, v{t+1}")
        if CFG['sf2']: p("s_waitcnt lgkmcnt(0)\ns_barrier"); STAMP('E1')
        for tt in range(4):
            if T: p(f"ds_read_b64 {vr(AU+2*tt,2)}, v{t+3} offset:{128*tt}")
            else: p(f"ds_read_b128 {vr(NM+4*tt,4)}, v{t+3} offset:{128*(tt>>1)+32*(tt&1)}\nds_read_b128 {vr(RS+4*tt,4)}, v{t+3} offset:{128*(tt>>1)+32*(tt&1)+L_SR-L_SM}")
        mode_read()
        csr=lambda j: p(f"ds_read_{'b128' if T else 'b32'} {vr(CV+4*j,4) if T else 'v%d'%(CV+j)}, v{t+1+(j>>1)} offset:{64*(j&1)}")
        csr(0); csr(1)
        if CFG['dcs']: csr(2); csr(3)
        if CFG['sf2']:
            if not CFG['dcs']: csr(2); csr(3)
            p("s_waitcnt lgkmcnt(2)")
        else:
            p("s_waitcnt lgkmcnt(0)\ns_barrier")
            STAMP('E1')
            if not CFG['dcs']: csr(2); csr(3)
        mode_get()
        if T:
            p(f"s_cmp_eq_u32 s{sTY}, 0\ns_cselect_b32 s{A}, {hex(f2u(20**-0.5*math.log2(math.e)))}, 1.0")
            for tt in range(4): p(f"v_mul_f32 v{AU+2*tt+1}, s{A}, v{AU+2*tt+1}")
        for cb in range(2):
            if cb: p("s_waitcnt lgkmcnt(0)")
            for xb in range(2):
                for h in range(2):
                    j=2*cb+h; a=ACC+16*(2*xb+cb)
                    for k in range(4):
                        tt=2*xb+(k>>1); r=vr(a+8*h+2*k,2)
                        if T: p(f"v_pk_fma_f32 {r}, {vr(CV+4*j+2*(k&1),2)}, {vr(AU+2*tt,2)}, {r} op_sel:[0,0,0] op_sel_hi:[1,0,1]")
                        else: p(f"v_pk_fma_f32 {r}, {vr(NM+4*tt+2*(k&1),2)}, {vr(CV+2*cb,2)}, {r} op_sel:[0,{h},0] op_sel_hi:[1,{h},1]")
                    for k in range(4):
                        tt=2*xb+(k>>1); r=vr(a+8*h+2*k,2)
                        if T: p(f"v_pk_mul_f32 {r}, {r}, {vr(AU+2*tt,2)} op_sel:[0,1] op_sel_hi:[1,1]")
                        else: p(f"v_pk_mul_f32 {r}, {r}, {vr(RS+4*tt+2*(k&1),2)}")
                    for k in range(4*h,4*h+4): p(f"v_cvt_pk_bf16_f32 v{a+k}, v{a+2*k}, v{a+2*k+1}")
                    if T: p(f"s_nop 0\nv_permlane16_swap_b32 v{a+4*h}, v{a+4*h+2}\nv_permlane16_swap_b32 v{a+4*h+1}, v{a+4*h+3}")
                    p(sto(xb,cb,h)+" "+CFG['qpol'])
        sl=p.lab("qslow"); jn=p.lab("qjn")
        p(f"s_cmp_lg_u32 s{sMODE}, 0\ns_cbranch_scc1 {sl}\n{jn}:")
        COLD.append(f"{sl}:\n"+"\n".join(sto(xb,cb,h)+" sc1" for xb in range(2) for cb in range(2) for h in range(2))+f"\ns_branch {jn}")
    elif CFG['epi2']:
        assert not CFG['honly']
        E2=CFG['epi2']>1
        allst=[ACC+16*(2*xb+cb)+4*h for xb in range(2) for cb in range(2) for h in range(2)]
        sto=lambda xb,cb,h: f"buffer_store_dwordx4 {vr(ACC+16*(2*xb+cb)+4*h,4)}, v{aST+2*cb+h}, {S4(sWS)}, s{sSO2 if xb else sSO} offen"
        def aug(xb,cb):
            a=ACC+16*(2*xb+cb); X=vr(XA+2*xb,2); W=vr(WA+2*cb,2)
            p(f"v_mfma_f32_32x32x8_bf16 {vr(a,16)}, {W if kind=='T' else X}, {X if kind=='T' else W}, {vr(a,16)}")
        def half(xb,cb,h,mid=None):
            a=ACC+16*(2*xb+cb)
            for k in range(4*h,4*h+4):
                if kind=='T': p(f"v_pk_mul_f32 {vr(a+2*k,2)}, {vr(a+2*k,2)}, {vr(AU+2*xb,2)} op_sel:[0,1] op_sel_hi:[1,1]")
                else: p(f"v_pk_mul_f32 {vr(a+2*k,2)}, {vr(a+2*k,2)}, {vr(RS+16*xb+2*k,2)}")
            for k in range(4*h,4*h+4): p(f"v_cvt_pk_bf16_f32 v{a+k}, v{a+2*k}, v{a+2*k+1}")
            if kind=='T': p(f"s_nop 0\nv_permlane32_swap_b32 v{a+4*h}, v{a+4*h+2}\nv_permlane32_swap_b32 v{a+4*h+1}, v{a+4*h+3}")
            p(sto(xb,cb,h)+" "+CFG['qpol'])
        def stat_rd():
            p(f"""ds_read_b64 v[{AU}:{AU+1}], v{t+3}
            ds_read_b64 v[{AU+2}:{AU+3}], v{t+3} offset:256""")
            if kind=='V':
                for xb in range(2):
                    for i in range(4): p(f"ds_read_b128 {vr(RS+16*xb+4*i,4)}, v{t+4} offset:{xb*128+i*32}")
            mode_read()
        def stat_use():
            p(f"v_mov_b32 v{XA}, v{AU}\nv_mov_b32 v{XA+2}, v{AU+2}")
            if kind=='T':
                p(f"""s_cmp_eq_u32 s{sTY}, 0
                s_cselect_b32 s{A}, {hex(f2u(20**-0.5*math.log2(math.e)))}, 1.0
                v_mul_f32 v{AU+1}, s{A}, v{AU+1}
                v_mul_f32 v{AU+3}, s{A}, v{AU+3}""")
            else: p("s_nop 0")
        p(f"""v_and_b32 v{t}, 31, v0
        s_lshl_b32 s{A}, s{sWR_}, 9
        s_add_u32 s{A}, s{A}, {L_SA}
        v_lshl_add_u32 v{t+3}, v{t}, 3, s{A}""")
        if kind=='V':
            p(f"""v_lshrrev_b32 v{t+4}, 5, v0
            s_lshl_b32 s{A}, s{sWR_}, 8
            s_add_u32 s{A}, s{A}, {L_SR}
            v_lshl_add_u32 v{t+4}, v{t+4}, 4, s{A}""")
        if E2: stat_rd()
        p(f"""s_lshl_b32 s{A}, s{sWAVE}, 7
        s_add_u32 s{A}, s{A}, {L_CS}
        v_lshl_add_u32 v{t+1}, v{t}, 2, s{A}
        v_mov_b32 v{WA+1}, 0
        v_mov_b32 v{WA+3}, 0
        v_mov_b32 v{XA+1}, 0
        v_mov_b32 v{XA+3}, 0
        {f"ds_read_b32 v{CS}, v{t+1}" if CFG['dcs'] else f"ds_write_b32 v{t+1}, v{CS}"}
        v_xor_b32 v{t+2}, 128, v{t+1}""")
        nv=8 if kind=='V' else 0
        if CFG['dcs']:
            assert E2
            p(f"ds_read_b32 v{CS+1}, v{t+2}\ns_waitcnt lgkmcnt(1)")
            stat_use()
            split(0)
            p("s_waitcnt lgkmcnt(0)")
            mode_get()
            aug(0,0)
            split(1)
            p("s_barrier")
            STAMP('E1')
            aug(1,0); aug(0,1); aug(1,1)
            p("s_nop 2")
            order=[(0,0,0),(0,0,1),(1,0,0),(1,0,1),(0,1,0),(0,1,1),(1,1,0),(1,1,1)]
        elif E2:
            split(0)
            p(f"s_waitcnt lgkmcnt({2+nv})")
            stat_use()
            aug(0,0); aug(1,0)
            p("s_waitcnt lgkmcnt(0)\ns_barrier")
            STAMP('E1')
            p(f"ds_read_b32 v{CS+1}, v{t+2}")
            mode_get()
            p("s_nop 7\ns_nop 1")
            half(0,0,0)
            p("s_waitcnt lgkmcnt(0)")
            split(1)
            p("s_nop 1")
            aug(0,1); aug(1,1)
            order=[(0,0,1),(1,0,0),(1,0,1),(0,1,0),(0,1,1),(1,1,0),(1,1,1)]
        else:
            p("s_waitcnt lgkmcnt(0)\ns_barrier")
            STAMP('E1')
            p(f"ds_read_b32 v{CS+1}, v{t+2}")
            stat_rd()
            split(0)
            p(f"s_waitcnt lgkmcnt({1+nv})")
            stat_use()
            aug(0,0)
            split(1)
            p("s_nop 1")
            aug(0,1); aug(1,0); aug(1,1)
            p("s_waitcnt lgkmcnt(0)")
            mode_get()
            p("s_nop 4")
            order=[(xb,cb,h) for xb in range(2) for cb in range(2) for h in range(2)]
        for o in order: half(*o)
        sl=p.lab("qslow"); jn=p.lab("qjn")
        p(f"s_cmp_lg_u32 s{sMODE}, 0\ns_cbranch_scc1 {sl}\n{jn}:")
        COLD.append(f"{sl}:\n"+"\n".join(sto(xb,cb,h)+" sc1" for xb in range(2) for cb in range(2) for h in range(2))+f"\ns_branch {jn}")
    else:
        p(f"""v_and_b32 v{t}, 31, v0
        s_lshl_b32 s{A}, s{sWC}, 1
        s_or_b32 s{A}, s{A}, s{sWR_}
        s_lshl_b32 s{A}, s{A}, 7
        s_add_u32 s{A}, s{A}, {L_CS}
        v_lshl_add_u32 v{t+1}, v{t}, 2, s{A}
        s_lshl_b32 s{A}, s{sWR_}, 9
        s_add_u32 s{A}, s{A}, {L_SA}
        v_lshl_add_u32 v{t+3}, v{t}, 3, s{A}
        ds_write_b32 v{t+1}, v{CS}
        v_xor_b32 v{t+2}, 128, v{t+1}
        v_mov_b32 v{WA+1}, 0
        v_mov_b32 v{WA+3}, 0
        v_mov_b32 v{XA+1}, 0
        v_mov_b32 v{XA+3}, 0""")
        if kind=='V':
            p(f"""v_lshrrev_b32 v{t+4}, 5, v0
            s_lshl_b32 s{A}, s{sWR_}, 8
            s_add_u32 s{A}, s{A}, {L_SR}
            v_lshl_add_u32 v{t+4}, v{t+4}, 4, s{A}""")
        p("s_waitcnt lgkmcnt(0)\ns_barrier")
        STAMP('E1',1)
        p(f"""ds_read_b32 v{CS+1}, v{t+2}
        ds_read_b64 v[{AU}:{AU+1}], v{t+3}
        ds_read_b64 v[{AU+2}:{AU+3}], v{t+3} offset:256""")
        mode_read()
        if kind=='V':
            for xb in range(2):
                for i in range(4): p(f"ds_read_b128 {vr(RS+16*xb+4*i,4)}, v{t+4} offset:{xb*128+i*32}")
        def split(cb):
            c=CS+cb
            p(f"""v_cndmask_b32 v{c}, 0, v{c}, s[{sLO}:{sLO+1}]
            v_cvt_pk_bf16_f32 v{t+5}, v{c}, v{c}
            v_and_b32 v{t+5}, 0xffff0000, v{t+5}
            v_sub_f32 v{t+6}, v{c}, v{t+5}
            v_cvt_pk_bf16_f32 v{WA+2*cb}, v{t+5}, v{t+6}""")
        split(0)
        p(f"s_waitcnt lgkmcnt({8 if kind=='V' else 0})")
        split(1)
        p(f"v_mov_b32 v{XA}, v{AU}\nv_mov_b32 v{XA+2}, v{AU+2}")
        mode_get()
        if kind=='T':
            p(f"""s_cmp_eq_u32 s{sTY}, 0
            s_cselect_b32 s{A}, {hex(f2u(20**-0.5*math.log2(math.e)))}, 1.0
            v_mul_f32 v{AU+1}, s{A}, v{AU+1}
            v_mul_f32 v{AU+3}, s{A}, v{AU+3}""")
        else: p("s_nop 0")
        for xb in range(2):
            for cb in range(2):
                a=ACC+16*(2*xb+cb); X=vr(XA+2*xb,2); W=vr(WA+2*cb,2)
                p(f"v_mfma_f32_32x32x8_bf16 {vr(a,16)}, {W if kind=='T' else X}, {X if kind=='T' else W}, {vr(a,16)}")
        p("s_waitcnt lgkmcnt(0)\ns_nop 7")
        if CFG['honly']: p(f"s_or_b32 s{sHALO}, s{sHALO}, s{sMODE}")
        allst=[]
        for xb in range(2):
            st=[]
            for cb in range(2):
                a=ACC+16*(2*xb+cb)
                for k in range(8):
                    if kind=='T': p(f"v_pk_mul_f32 {vr(a+2*k,2)}, {vr(a+2*k,2)}, {vr(AU+2*xb,2)} op_sel:[0,1] op_sel_hi:[1,1]")
                    else: p(f"v_pk_mul_f32 {vr(a+2*k,2)}, {vr(a+2*k,2)}, {vr(RS+16*xb+2*k,2)}")
                for k in range(8): p(f"v_cvt_pk_bf16_f32 v{a+k}, v{a+2*k}, v{a+2*k+1}")
                if kind=='T':
                    p(f"""v_permlane32_swap_b32 v{a}, v{a+2}
                    v_permlane32_swap_b32 v{a+1}, v{a+3}
                    v_permlane32_swap_b32 v{a+4}, v{a+6}
                    v_permlane32_swap_b32 v{a+5}, v{a+7}""")
                for h in range(2):
                    st.append(f"buffer_store_dwordx4 {vr(a+4*h,4)}, v{aST+2*cb+h}, {S4(sWS)}, s{sSO2 if xb else sSO} offen")
                    allst.append(a+4*h)
            dual(st,CFG['qpol'],sHALO if CFG['honly'] else sMODE)
    STAMP('st')
    if CFG['honly']:
        p(f"""v_mov_b32 v{t}, 0
        v_mov_b32 v{t+1}, s{sTAG}
        s_lshl_b32 s{A}, s{sWC}, 2
        s_add_u32 s{A}, s{A}, {F_STG}
        v_mov_b32 v{t+2}, s{A}
        v_mov_b32 v{t+3}, 1
        s_mov_b64 exec, 1
        s_waitcnt vmcnt(0)
        ds_add_u32 v{t+2}, v{t+3}""")
        dual([f"buffer_store_dword v{t+1}, v{t}, {S4(sWS)}, s{sFO} offen"])
        p("s_mov_b64 exec, -1")
        STAMP('fl')
        return
    nh=p.lab("nohalo"); jh=p.lab("jhalo")
    if CFG['hdef']>=0 or CFG['hs2']: A=sT+18
    hst=[f"buffer_store_dwordx4 {vr(allst[i],4)}, v{aST+(i&3)}, {S4(sWS)}, s{A+(i>>2)} offen {CFG['hpol']}" for i in range(8)]
    p(f"""v_mov_b32 v{t}, 0
    v_mov_b32 v{t+1}, s{sTAG}
    s_add_u32 s{A}, s{sSO}, {KH-KB}
    s_add_u32 s{A+1}, s{sSO2}, {KH-KB}""")
    if CFG['hst']:
        p(f"s_cmp_eq_u32 s{sHALO}, 0\ns_cbranch_scc1 {nh}")
        for i in range(8): p(f"ds_write_b128 v{aSG}, {vr(allst[i],4)} offset:{i*1024}")
        for k in range(4): p(f"v_add_u32 v{t+4+k}, s{A}, v{aST+k}")
        p(f"""s_lshl_b32 s{A}, s{sWC}, 2
        s_add_u32 s{A}, s{A}, {F_STG}
        ds_write_b128 v{aSG}, {vr(t+4,4)} offset:8192
        v_mov_b32 v{t+2}, s{A}
        v_mov_b32 v{t+3}, 1
        s_mov_b64 exec, 1
        ds_add_u32 v{t+2}, v{t+3}
        s_waitcnt vmcnt(0)""")
        dual([f"buffer_store_dword v{t+1}, v{t}, {S4(sWS)}, s{sFO} offen"])
        p(f"""ds_add_u32 v{t+2}, v{t+3} offset:8
        s_branch {jh}
        {nh}:
        s_waitcnt vmcnt(0)
        s_mov_b64 exec, 1""")
        dual([f"buffer_store_dword v{t+1}, v{t}, {S4(sWS)}, s{sFO} offen"])
        p(f"{jh}:\ns_mov_b64 exec, -1")
        STAMP('fl')
        return
    if CFG['hdef']>=0:
        HST[:]=hst
        p("s_waitcnt vmcnt(0)")
    elif CFG['hearly']:
        p(f"s_cmp_eq_u32 s{sHALO}, 0\ns_cbranch_scc1 {nh}")
        for x in hst: p(x)
        p(f"s_waitcnt vmcnt(8)\ns_branch {jh}\n{nh}:\ns_waitcnt vmcnt(0)\n{jh}:")
    else: p("s_waitcnt vmcnt(0)")
    p("s_mov_b64 exec, 1")
    dual([f"buffer_store_dword v{t+1}, v{t}, {S4(sWS)}, s{sFO} offen"])
    p(f"s_mov_b64 exec, -1")
    if not CFG['hearly'] and CFG['hdef']<0:
        HST[:]=hst
        p(f"s_cmp_lg_u32 s{sHAL2}, 1\ns_cbranch_scc1 {nh}" if CFG['hs2'] else f"s_cmp_eq_u32 s{sHALO}, 0\ns_cbranch_scc1 {nh}")
        for x in hst: p(x)
        p(f"{nh}:")
    STAMP('fl')
import struct
def f2u(x): return struct.unpack("<I",struct.pack("<f",x))[0]

aLin,aTl,aKm,aKt,aV,aFl,aO,aQ0,aQ1=246,247,248,249,250,251,252,253,254
aKm1,aKt1,aV1=216,217,218
QM=[28,34]; QT=[32,38]; PP=40
KM=[48,62]; KT=[52,66]; VV=[[54,58],[68,72]]
SS=[80,96]; OO=[112,128]; CD=200; CF=230
cVM=8; sQ=[10,11]; sOm=[12,13]; sOt=[14,15]; cXO,cJ,cF,cK,cV,cL,cHO,cT0,cHX=range(16,25); sOSC=sT+15; sFB=sT+16; aWR=225
NINF="0xff800000"
def att_setup():
    t=vT; A=sT+7; B=sT+8; C=sT+17; sF=cF
    wo_pre1()
    att_ids()
    moe_role()
    p(f"v_mov_b32 v{aCLS}, 0x207")
    if CFG['hkv']: p(f"v_lshlrev_b32 v{aLin}, 4, v0\nv_mov_b32 v{aFl}, {F_G1}")
    else:
        flag_addr(aFl,t,1,A,B,C)
        p(f"""s_lshl_b32 s{sF}, s{sG}, 11
        s_lshl_b32 s{A}, s{sHF}, 4
        v_mov_b32 v{t}, s{A}
        v_cmp_gt_u32 vcc, 8, v0
        s_add_u32 s{sF}, s{sF}, {FL}
        s_mov_b32 s{sK1024}, 1024
        v_cndmask_b32 v{t}, 8, v{t}, vcc
        v_add_u32 v{aFl}, v{aFl}, v{t}""")
        kv_addr(aLin,aTl,t)
    p(f"""s_lshl_b32 s{A}, s{sHF}, 10
    s_add_u32 s{B}, s{A}, {L_KV}
    v_add_u32 v{aKm}, s{B}, v{aLin}
    s_sub_u32 s{B}, {L_KV+1024}, s{A}
    v_add_u32 v{aKm1}, s{B}, v{aLin}
    v_and_b32 v{t}, 31, v0
    v_lshrrev_b32 v{t+1}, 5, v0
    v_xor_b32 v{t+2}, s{sHO}, v{t+1}
    v_lshlrev_b32 v{t+2}, 3, v{t+2}
    v_lshl_add_u32 v{t+2}, v{t}, 4, v{t+2}
    s_lshl_b32 s{A}, s{sHF}, 9
    s_add_u32 s{B}, s{A}, {L_KV+2048}
    v_add_u32 v{aKt}, s{B}, v{t+2}
    s_sub_u32 s{B}, {L_KV+2048+512}, s{A}
    v_add_u32 v{aKt1}, s{B}, v{t+2}
    v_mul_u32_u24 v{t+2}, 320, v{t+1}
    v_lshl_add_u32 v{t+2}, v{t}, 4, v{t+2}
    s_mul_i32 s{A}, s{sHF}, 1280
    s_add_u32 s{B}, s{A}, {L_KV+3072}
    v_add_u32 v{aV}, s{B}, v{t+2}
    s_sub_u32 s{B}, {L_KV+3072+1280}, s{A}
    v_add_u32 v{aV1}, s{B}, v{t+2}
    v_lshlrev_b32 v{t+2}, 2, v{t+1}
    v_sub_u32 v{t+2}, v{t}, v{t+2}
    s_cmp_eq_u32 s{sHF}, 0
    s_cselect_b32 s{A}, {NINF}, 0
    s_cselect_b32 s{B}, 0, {NINF}
    v_mov_b32 v{t+3}, s{A}
    v_mov_b32 v{t+4}, s{B}""")
    for i in range(16):
        m=C+1+2*(i%2)+((C+1)%2)
        ri=8*(i>>2)+(i&3)
        p(f"v_cmp_le_i32 s[{m}:{m+1}], {ri}, v{t+2}")
        if i>0:
            m2=C+1+2*((i-1)%2)+((C+1)%2)
            if i==1: p("s_nop 0")
            p(f"v_cndmask_b32 v{CD+i-1}, v{t+3}, v{t+4}, s[{m2}:{m2+1}]\nv_cndmask_b32 v{CF+i-1}, v{t+4}, v{t+3}, s[{m2}:{m2+1}]")
    p(f"""s_nop 0
    v_cndmask_b32 v{CD+15}, v{t+3}, v{t+4}, s[{m}:{m+1}]
    v_cndmask_b32 v{CF+15}, v{t+4}, v{t+3}, s[{m}:{m+1}]
    v_cmp_eq_u32 s[{m}:{m+1}], 20, v{t}
    v_cmp_eq_u32 vcc, 24, v{t}
    s_mov_b32 s{cHO}, s{sHO}
    s_or_b64 s[{cVM}:{cVM+1}], vcc, s[{m}:{m+1}]""")
    p(f"""v_bfe_u32 v{t+2}, v0, 4, 1
    v_mul_u32_u24 v{t+2}, 20480, v{t+2}
    v_lshl_add_u32 v{t+2}, v{t+1}, 8, v{t+2}
    v_and_b32 v{t+3}, 15, v0
    v_lshl_add_u32 v{aO}, v{t+3}, 4, v{t+2}
    s_xor_b32 s{cHX}, s{sHF}, s{sHH}
    s_mov_b32 s{cT0}, s{sT0}
    s_lshl_b32 s{A}, s{sWAVE}, 1
    s_sub_u32 s{A}, 7, s{A}
    v_mul_u32_u24 v{t+2}, s{A}, v0
    s_add_u32 s{A}, s{sT0}, s{sWAVE}
    v_add_lshl_u32 v{aFO}, v{t+2}, s{A}, 12
    s_lshl_b32 s{A}, s{sHD}, 7
    s_add_u32 s{A}, s{A}, {FO}
    v_add_u32 v{aFO}, s{A}, v{aFO}""")
    for q in range(2):
        p(f"""s_sub_u32 s{A}, 7, s{sWAVE}
        s_cmp_eq_u32 s{sHF}, {q}
        s_cselect_b32 s{A}, s{A}, s{sWAVE}
        s_add_u32 s{A}, s{A}, s{sT0}""")
        p(f"""s_mul_i32 s{sQ[q]}, s{A}, 2560
        s_mul_i32 s{B}, s{sPH}, {64*2560}
        s_add_u32 s{sQ[q]}, s{sQ[q]}, s{B}
        s_mul_i32 s{A}, s{A}, 40960
        s_mul_i32 s{B}, s{sPH}, 1280
        s_add_u32 s{A}, s{A}, s{B}
        s_add_u32 s{A}, s{A}, {OB}
        s_mul_i32 s{B}, s{sHO}, 768
        s_add_u32 s{sOm[q]}, s{A}, s{B}
        s_lshl_b32 s{B}, s{sHO}, 3
        s_add_u32 s{sOt[q]}, s{A}, s{B}""")
    sK=cK; sV=cV; sL=cL
    if not CFG['hkv']: p(f"""s_lshl_b32 s{A}, s{sWAVE}, 1
    s_sub_u32 s{B}, -2, s{A}
    s_cmp_eq_u32 s{sHF}, 0
    s_cselect_b32 s{A}, s{A}, s{B}
    s_add_u32 s{A}, s{A}, s{sT0}
    s_mul_i32 s{sK}, s{A}, 2560
    s_mul_i32 s{sV}, s{A}, 1280
    s_mul_i32 s{A}, s{sPH}, {64*2560}
    s_add_u32 s{sK}, s{sK}, s{A}
    s_add_u32 s{sK}, s{sK}, {KB}
    s_mul_i32 s{A}, s{sHD}, 81920
    s_add_u32 s{sV}, s{sV}, s{A}
    s_add_u32 s{sV}, s{sV}, {VB}
    s_mul_i32 s{sL}, s{sWAVE}, 5632
    s_add_u32 s{sL}, s{sL}, {L_KV+4*5632}""")
    p(f"""s_mul_i32 s{A}, s{sHO}, 1536
    v_add_u32 v{aQ0}, s{A}, v{aLin}
    s_lshl_b32 s{A}, s{sHO}, 3
    v_add_u32 v{aQ1}, s{A}, v{aLin}""")
aXD=219; aXL=223; sLCX=25
def xr_loads():
    if CFG['xdma']:
        A=sT+7; B=sT+8
        p(f"""s_mul_i32 s{A}, s{sWAVE}, 2560
        s_add_u32 m0, s{A}, {L_STG}
        s_add_u32 s{A}, s{cXO}, 6720
        s_add_u32 s{B}, s{cXO}, 13440
        s_mov_b32 exec_hi, 0x0fffffff
        buffer_load_dwordx4 v{aXD}, {S4(sX)}, s{cXO} offen lds
        buffer_load_dwordx4 v{aXD}, {S4(sX)}, s{A} offen offset:960 lds
        s_mov_b32 exec_hi, 0xff
        buffer_load_dwordx4 v{aXD}, {S4(sX)}, s{B} offen offset:1920 lds
        s_mov_b32 m0, {L_SA}
        s_mov_b64 exec, 0x3ff
        buffer_load_dwordx4 v{aLin}, {S4(sWR)}, s{cJ} offen lds
        s_mov_b64 exec, -1""")
        return
    for o,n in ((0,4),(4,4),(8,2)): p(f"buffer_load_dwordx{n} {vr(XR+o,n)}, v{aX2}, {S4(sX)}, s{cXO} offen offset:{4*o}")
    for o,n in ((0,4),(4,4),(8,2)): p(f"buffer_load_dwordx{n} {vr(WR_+o,n)}, v{aWR}, {S4(sWR)}, s{cJ} offen offset:{4*o}")
def att_go():
    t=vT; A=sT+7; B=sT+8; C=sT+17
    nh=p.lab("nohs"); lp=p.lab("fp"); ok=p.lab("fpok"); md=p.lab("fpm")
    ld=f"buffer_load_dword v{t+10}, v{aFl}, {S4(sWS)}, s{cF} offen sc1"
    OWN=CFG['hsp']&2; sOWN=sT+19
    if OWN:
        assert not (CFG['hkv'] or CFG['hst'] or CFG['honly'] or CFG['hdef']>=0) and CFG['xru']>=0
        p(f"s_andn2_b32 s{sOWN}, s{sHAL2}, s{sMODE}\ns_cbranch_scc1 L_nold\n{ld}\nL_nold:")
    elif not CFG['hkv']: p(ld)
    p(f"""v_mov_b32 v{t+4}, 0x3f803f80
    s_or_b32 s{sOSC}, s{cHX}, s{sMODE}
    s_mov_b32 s{sFB}, 0
    s_mul_i32 s{A}, s{sMODE}, {OB2-OB}
    v_add_u32 v{aO}, s{A}, v{aO}""")
    HD=CFG['hdef']>=0
    def vvi(b_):
        for mm in range(2):
            for r in range(4): p(f"v_cndmask_b32 v{VV[b_][mm]+r}, 0, v{t+4}, s[{cVM}:{cVM+1}]")
    vvi(0)
    HS=CFG['hs2']
    if not HD and not HS: vvi(1)
    for q in range(2): p(f"v_mov_b32 v{QT[q]}, 0\nv_mov_b32 v{QT[q]+1}, 0")
    if CFG['lclr']:
        for r in range(4): p(f"v_mov_b32 v{PP+r}, -1")
        p(f"""s_lshl_b32 s{A}, s2, 2
        s_add_u32 s{A}, s{A}, s{sWAVE}
        s_mul_i32 s{B}, s{A}, 640
        s_add_u32 s{B}, s{B}, {CAND}
        v_mov_b32 v{PP+5}, s{B}
        s_min_u32 s{B}, s{A}, 191
        s_lshl_b32 s{B}, s{B}, 7
        s_add_u32 s{B}, s{B}, {ACT-640}
        v_mov_b32 v{PP+6}, s{B}
        v_cmp_gt_u32 vcc, 40, v0
        s_cmp_lt_u32 s{A}, 192
        s_cselect_b32 s{sLCX}, 0xff00, 0
        s_or_b32 s{sLCX}, s{sLCX}, 0xff
        v_cndmask_b32 v{PP+5}, v{PP+6}, v{PP+5}, vcc
        v_add_u32 v{PP+4}, v{PP+5}, v{aLin}""")
    if CFG['osent']: wo_scal()
    assert CFG['hsent'] or not CFG['hkv']
    if CFG['hkv']:
        p(f"v_mov_b32 v{t+4}, {F_FS}"); lds_wait(t+4,t+5,C,'gt',1,0)
    else:
        if CFG['hst'] or HD or HS or CFG['honly']: p(f"s_mov_b32 s{C}, {SPIN}\ns_waitcnt vmcnt(0)")
        else: p(f"""s_lshr_b32 s{A}, s{sWAVE}, 1
        s_lshl_b32 s{A}, s{A}, 2
        s_add_u32 s{A}, s{A}, {F_STG}
        v_mov_b32 v{t+4}, s{A}
        v_mov_b32 v{t+5}, 1
        {f"s_cmp_lg_u32 s{sOWN}, 0" if OWN else ""}
        {f"s_cbranch_scc1 L_own" if OWN else ""}
        s_mov_b32 s{C}, {SPIN}
        s_cmp_eq_u32 s{sHAL2}, 0
        s_waitcnt vmcnt(0)
        s_cbranch_scc1 {nh}
        s_mov_b64 exec, 1
        ds_add_u32 v{t+4}, v{t+5}
        s_mov_b64 exec, -1
        {nh}:""")
        STAMP('hack')
        p(f"""s_branch {md}
        {lp}:
        {ld}
        s_waitcnt vmcnt(0)
        {md}:
        v_cmp_ne_u32 vcc, s{sTAG}, v{t+10}
        s_nop 0
        s_cbranch_vccz {ok}""")
        spin(C,lp,ok)
        p(f"s_branch {lp}")
        if OWN:
            p(f"L_own:\nv_mov_b32 v{t+6}, {F_OWN}\ns_mov_b64 exec, 1\nds_add_u32 v{t+6}, v{t+5} offset:{F_FS-F_OWN+65536}\ns_mov_b64 exec, -1".replace(f"offset:{F_FS-F_OWN+65536}","") if 0 else f"L_own:\nv_mov_b32 v{t+6}, {F_FS}\ns_mov_b64 exec, 1\nds_add_u32 v{t+6}, v{t+5}\ns_mov_b64 exec, -1\nv_mov_b32 v{t+6}, {F_OWN}"); lds_wait(t+6,t+7,C,'gt',1,0)
        p(f"{ok}:")
    STAMP('fseen')
    if not CFG['hkv'] and not HS: kv_dma(aLin,aTl,cK,cV,cL,A,B,cHO)
    for q in range(2): p(f"buffer_load_dwordx4 {vr(QM[q],4)}, v{aQ0}, {S4(sWS)}, s{sQ[q]} offen {CFG['ldp']}")
    p(f"s_mov_b64 exec, s[{sLO}:{sLO+1}]")
    for q in range(2): p(f"buffer_load_dwordx2 {vr(QT[q],2)}, v{aQ1}, {S4(sWS)}, s{sQ[q]} offen offset:1024 {CFG['ldp']}")
    if CFG['lclr']:
        assert not (HD or CFG['hkv'] or OWN) and CFG['xru']>CFG['lcu']
        st=[f"buffer_store_dwordx2 {vr(PP,2)}, v{aO}, {S4(sWS)}, s{sOt[q]} offen offset:512" for q in range(2)]+["s_mov_b64 exec, -1"]+[f"buffer_store_dwordx4 {vr(PP,4)}, v{aO}, {S4(sWS)}, s{sOm[q]} offen" for q in range(2)]
        p(f"s_cmp_lg_u32 s{sOSC}, 0\ns_cbranch_scc1 L_lcs")
        for x in st: p(x)
        p("s_branch L_lcj\nL_lcs:")
        for x in st: p(x+(" sc1" if x.startswith("buffer") else ""))
        p(f"L_lcj:\ns_mov_b32 exec_hi, s{sLCX}\nbuffer_store_dwordx4 {vr(PP,4)}, v{PP+4}, {S4(sWS)}, 0 offen sc1")
    if HD:
        assert CFG['xru']>CFG['hdef']
        n2=p.lab("nohd"); j2=p.lab("jhd")
        p(f"""s_mov_b64 exec, 1
        v_mov_b32 v{t}, {F_G1}
        v_mov_b32 v{t+1}, 1
        ds_add_u32 v{t}, v{t+1} offset:{F_FS-F_G1}
        s_mov_b64 exec, -1
        v_mov_b32 v{aFl}, {F_G1}
        s_cmp_eq_u32 s{sHAL2}, 0
        s_cbranch_scc1 {n2}""")
        g1=lambda n: p(f"s_mov_b64 exec, 1\ns_waitcnt vmcnt({n})\nds_add_u32 v{t}, v{t+1}\ns_mov_b64 exec, -1")
        if CFG['hdg']=='G1':
            g1(4); lds_wait(aFl,t+5,C,'gt',4,0)
            for x in HST: p(x)
            p("s_nop 1"); vvi(1)
        else:
            if CFG['hdg']=='FS': p(f"v_mov_b32 v{t+6}, {F_FS}"); lds_wait(t+6,t+5,C,'gt',4,0)
            for x in HST: p(x)
            p("s_nop 1"); vvi(1)
            g1(12); lds_wait(aFl,t+5,C,'gt',4,0)
        p(f"s_waitcnt vmcnt(8)\ns_branch {j2}\n{n2}:")
        vvi(1); g1(4); lds_wait(aFl,t+5,C,'gt',4,0)
        p(f"""s_waitcnt vmcnt(0)
        {j2}:
        s_lshr_b32 s{A}, s{sWAVE}, 1
        s_lshl_b32 s{A}, s{A}, 2
        s_add_u32 s{A}, s{A}, {F_STG}
        v_mov_b32 v{t+4}, s{A}""")
    elif HS:
        assert CFG['xru']>CFG['hs2u'] and not (CFG['lclr'] or OWN or CFG['hkv'] or CFG['hst'] or CFG['honly'] or CFG['hearly'] or CFG['padk']==1)
        n2=p.lab("hsu"); n3=p.lab("hsd"); j2=p.lab("jhs"); j3=p.lab("jhs"); j4=p.lab("jhs")
        fs=f"ds_add_u32 v{t}, v{t+1} offset:{F_FS-F_G1}"
        p("s_mov_b64 exec, -1")
        kv_dma(aLin,aTl,cK,cV,cL,A,B,cHO)
        p(f"""v_mov_b32 v{t}, {F_G1}
        v_mov_b32 v{t+1}, 1
        v_mov_b32 v{aFl}, {F_G1}
        v_mov_b32 v{vHF}, s{sTAG}
        v_mov_b32 v{vHF+1}, 0
        s_cmp_eq_u32 s{sHAL2}, 2
        s_cbranch_scc1 {n3}""")
        vvi(1)
        p(f"""s_mov_b64 exec, 1
        s_cmp_eq_u32 s{sHAL2}, 1
        s_cbranch_scc1 {n2}
        {fs if 'FS' in CFG['gm']+CFG['gr'] else ""}
        s_waitcnt vmcnt(0)
        s_branch {j2}
        {n2}:
        buffer_store_dword v{vHF}, v{vHF+1}, {S4(sWS)}, s{sHFA} offen sc1
        {fs}
        s_waitcnt vmcnt(1)
        s_branch {j2}
        {n3}:
        s_mov_b64 exec, 1
        {fs}
        s_mov_b64 exec, -1""")
        if CFG['hs2g']=='FS': p(f"v_mov_b32 v{t+6}, {F_FS}"); lds_wait(t+6,t+5,C,'gt',4,0)
        elif CFG['hs2g']=='KV': p("s_waitcnt vmcnt(0)")
        for x in HST: p(x)
        p("s_nop 1"); vvi(1)
        p(f"""s_mov_b64 exec, 1
        s_waitcnt vmcnt(8)
        {j2}:
        ds_add_u32 v{t}, v{t+1}
        s_mov_b64 exec, -1""")
        lds_wait(aFl,t+5,C,'gt',4,0)
    elif CFG['hkv']: p("s_mov_b64 exec, -1")
    if CFG['lay'] and CFG['padk']==1:
        for w in range(3): p(f"s_cmp_eq_u32 s{sWAVE}, {w}\ns_cbranch_scc1 L_pv{w}")
        p("s_branch L_pv3\nL_kvb:")
    if not HD and not HS and not CFG['hkv']: p(f"""s_mov_b64 exec, 1
    v_mov_b32 v{t}, {F_G1}
    v_mov_b32 v{t+1}, 1
    {f"ds_add_u32 v{t}, v{t+1} offset:{F_FS-F_G1}" if 'FS' in CFG['gm']+CFG['gr'] else ""}
    {f"s_cmp_eq_u32 s{sOWN}, 0" if OWN else ""}
    {f"s_cbranch_scc1 L_nohk" if OWN else ""}
    {f"s_waitcnt vmcnt(10)" if OWN else ""}
    {f"ds_add_u32 v{t+4}, v{t+1}" if OWN else ""}
    {f"L_nohk:" if OWN else ""}
    s_waitcnt vmcnt({9 if CFG['lclr'] else 4})
    ds_add_u32 v{t}, v{t+1}
    s_mov_b64 exec, -1
    v_mov_b32 v{aFl}, {F_G1}""")
    if CFG['hkv']: lds_wait(aFl,t+5,C,'gt',4,0)
    if CFG['xru']<0: xr_loads()
    if not HD and not HS:
        if not CFG['hkv']: lds_wait(aFl,t+5,C,'gt',4,0)
        p(f"s_waitcnt vmcnt({6 if CFG['xru']<0 else 5 if CFG['lclr'] else 0})")
    STAMP('kv')
    p(f"""s_cmp_eq_u32 s{sWAVE}, 1
    s_cbranch_scc1 L_av1
    s_cmp_eq_u32 s{sWAVE}, 2
    s_cbranch_scc1 L_av2
    s_cmp_eq_u32 s{sWAVE}, 3
    s_cbranch_scc1 L_av3""")
    if CFG['lay']: p("s_branch L_av0")
PG=".p2alignl 12, 0xbf810000"
KVB=lambda b: 'L_kvb' if CFG['padk']==1 else f'L_pkb{b}'
def kreads(n,b_):
    o=(n>>1)*5632
    return [f"ds_read_b128 {vr(KM[b_],4)}, v{(aKm,aKm1)[n&1]} offset:{o}", f"ds_read_b64 {vr(KT[b_],2)}, v{(aKt,aKt1)[n&1]} offset:{o}"]
def vreads(n,b_):
    o=(n>>1)*5632; a=(aV,aV1)[n&1]
    return [f"s_mov_b64 exec, s[{sLO+2}:{sLO+3}]", f"ds_read_b128 {vr(VV[b_][0],4)}, v{a} offset:{o}", f"ds_read_b128 {vr(VV[b_][1],4)}, v{a} offset:{o+640}", "s_mov_b64 exec, -1"]
def att_variant(w):
    U=[]
    for n in range(15-w,8+w,-1): U.append((0,n))
    for n in range(8+w,6-w,-1): U+= [(0,n),(1,n)]
    for n in range(6-w,w-1,-1): U.append((1,n))
    assert len(U)==18
    diag=[15-w,8+w]
    tiles=[]; tau=[]
    for q,n in U:
        if not tiles or tiles[-1]!=n: tiles.append(n)
        tau.append(len(tiles)-1)
    first=[tau.index(i) for i in range(len(tiles))]
    started=[0,0]
    def QK(u):
        q,n=U[u]; b_=tau[u]&1; S=vr(SS[u&1],16)
        c=vr(CD,16) if n==diag[q] else (vr(CF,16) if n==diag[q]-8 else "0")
        return [f"v_mfma_f32_32x32x16_bf16 {S}, {vr(KM[b_],4)}, {vr(QM[q],4)}, {c}", f"v_mfma_f32_32x32x8_bf16 {S}, {vr(KT[b_],2)}, {vr(QT[q],2)}, {S}"]
    def PV(u,m):
        q,n=U[u]; O=vr(OO[q],16)
        c=O if started[q] else "0"; started[q]=1
        return f"v_mfma_f32_32x32x16_bf16 {O}, {vr(VV[tau[u]&1][m],4)}, {vr(PP+4*m,4)}, {c}"
    if CFG['lay']:
        p(PG)
        if CFG['padk']: p(f"L_pv{w}:\ns_branch {(('L_padW','L_padM',KVB(1),KVB(1)) if CFG['padk']<3 else ('L_pv1','L_pv2','L_pv3','L_padW'))[w]}")
    p(f"L_av{w}:")
    for i,f in enumerate(first):
        if f<=1:
            for x in kreads(tiles[i],i&1): p(x)
    for x in vreads(tiles[0],0): p(x)
    p("s_waitcnt lgkmcnt(0)")
    for x in QK(0): p(x)
    p("s_nop 7\ns_nop 3")
    pend=False
    H=first[tiles.index(7)]
    H2=first[tiles.index(3)]
    Hs=[H,H2]+([first[tiles.index(1)]] if CFG['hs2'] and 1 in tiles else [])
    for u in range(18):
        S=SS[u&1]
        e=lambda i: p(f"v_exp_f32 v{S+i}, v{S+i}")
        c=lambda k: p(f"v_cvt_pk_bf16_f32 v{PP+k}, v{S+2*k}, v{S+2*k+1}")
        kr=[x for i,f in enumerate(first) if f==u+2 for x in kreads(tiles[i],i&1)]
        vr_=[x for i,f in enumerate(first) if f==u+1 for x in vreads(tiles[i],i&1)]
        late=(u+2 in Hs); pre=(u+3 in Hs); hk=Hs.index(u+2) if late else Hs.index(u+3) if pre else None
        assert not (late and pre)
        STAMP('u%d'%u)
        e(0); e(1)
        if u>0: p(PV(u-1,1))
        if u==CFG['xru']: xr_loads()
        if u==CFG['hdef']:
            p(f"v_mov_b32 v{vT+5}, 1\ns_waitcnt vmcnt(0)\ns_mov_b64 exec, 1\nds_add_u32 v{vT+4}, v{vT+5}\ns_mov_b64 exec, -1")
            STAMP('hack')
        if CFG['hs2'] and u==CFG['hs2u']:
            p(f"s_cmp_eq_u32 s{sHAL2}, 2\ns_cbranch_scc1 L_hb{w}\nL_hr{w}:")
        if CFG['lclr'] and u==CFG['lcu']:
            assert u<7
            p(f"s_waitcnt vmcnt(0)\ns_mov_b64 exec, 1\nds_add_u32 v{aFl}, v{vT+1} offset:{F_CC-F_G1}\ns_mov_b64 exec, -1")
        e(2)
        if not late:
            for x in kr: p(x)
        if pre: p(f"ds_read_b32 v{vT}, v{aFl} offset:{F_M+4*hk-F_G1}")
        e(3); c(0); c(1)
        if pend: p(f"s_waitcnt lgkmcnt({(len(kr) if not late else 0)+(1 if pre else 0)})")
        qk=QK(u+1) if u<17 else [None,None]
        if qk[0]: p(qk[0])
        e(4)
        if late:
            p(f"v_cmp_gt_u32 vcc, 1, v{vT}")
        e(5)
        if late:
            p(f"s_cbranch_vccnz L_g2w{w}{hk}\nL_g2r{w}{hk}:")
            for x in kr: p(x)
        for x in vr_: p(x)
        e(6); e(7); c(2); c(3)
        if qk[1]: p(qk[1])
        e(8); e(9); e(10); e(11)
        p(PV(u,0))
        c(4); c(5); e(12); e(13); e(14); e(15); c(6); c(7)
        pend=bool(kr or vr_ or pre)
        if u==H-1:
            p(f"s_cmp_eq_u32 s{cT0}, 0\ns_cbranch_scc1 L_ex{w}")
            exq=PV(u,1)
    p("s_nop 1")
    p(PV(17,1))
    p("s_branch L_afin")
    if CFG['hs2']:
        p(f"""L_hb{w}:
        s_waitcnt vmcnt(0)
        s_mov_b64 exec, 1
        buffer_store_dword v{vHF}, v{vHF+1}, {S4(sWS)}, s{sHFA} offen sc1
        s_mov_b64 exec, -1""")
        STAMP('hb')
        p(f"s_branch L_hr{w}")
    for hk in range(len(Hs)):
        p(f"L_g2w{w}{hk}:")
        p(f"v_mov_b32 v{vT+1}, {F_M+4*hk}")
        lds_wait(vT+1,vT,sT+17,'gt',1,0)
        p(f"s_branch L_g2r{w}{hk}")
    p(f"L_ex{w}:\n{exq}")
    if 99>CFG['xru']>=H: xr_loads()
    p("s_waitcnt lgkmcnt(0)\ns_branch L_afin")
    p(f";@slot{w}")
def att_fin():
    t=vT; A=sT+7
    if CFG['lay']:
        p(PG)
        if CFG['padk']: p("L_padW:\ns_branch "+(KVB(0) if CFG['padk']<3 else 'L_padM'))
    p("L_afin:")
    STAMP('aend')
    p(f"s_mov_b32 s{A}, {hex(f2u(2.0**-40))}\ns_mov_b32 s{A+1}, {hex(f2u(2.0**40)-f2u(2.0**-40))}")
    for q in range(2):
        O=OO[q]
        p(f"""v_cndmask_b32 v{t}, v{O+8}, v{O+12}, s[{sLO}:{sLO+1}]
        v_pk_add_f32 v[{t+2}:{t+3}], v[{O}:{O+1}], v[{O+2}:{O+3}]
        v_rcp_f32 v{t+1}, v{t}
        v_pk_add_f32 v[{t+4}:{t+5}], v[{O+4}:{O+5}], v[{O+6}:{O+7}]
        v_pk_add_f32 v[{t+6}:{t+7}], v[{O+8}:{O+9}], v[{O+10}:{O+11}]
        v_subrev_u32 v{t}, s{A}, v{t}
        v_pk_add_f32 v[{t+2}:{t+3}], v[{t+2}:{t+3}], v[{t+4}:{t+5}]
        v_cmp_lt_u32 s[{A+11}:{A+12}], s{A+1}, v{t}
        v_pk_add_f32 v[{t+2}:{t+3}], v[{t+2}:{t+3}], v[{t+6}:{t+7}]
        v_add_f32 v{t+2}, v{t+2}, v{t+3}""")
        p(f"v_cmp_class_f32 vcc, v{t+2}, v{aCLS}")
        for k in range(6): p(f"v_pk_mul_f32 {vr(O+2*k,2)}, {vr(O+2*k,2)}, {vr(t,2)} op_sel:[0,1] op_sel_hi:[1,1]")
        p(f"""s_or_b64 vcc, vcc, s[{A+11}:{A+12}]
        s_cbranch_scc1 L_afb{q}
        L_afr{q}:""")
        for k in range(6): p(f"v_cvt_pk_bf16_f32 v{O+k}, v{O+2*k}, v{O+2*k+1}")
        p(f"s_cmp_lg_u32 s{sOSC}, 0")
        st=[f"buffer_store_dwordx4 {vr(O,4)}, v{aO}, {S4(sWS)}, s{sOm[q]} offen", f"s_mov_b64 exec, s[{sLO}:{sLO+1}]",
            f"buffer_store_dwordx2 {vr(O+4,2)}, v{aO}, {S4(sWS)}, s{sOt[q]} offen offset:512", "s_mov_b64 exec, -1"]
        p(f"s_cbranch_scc1 L_osc{q}")
        for x in st: p(x+(" "+CFG['apol'] if x.startswith("buffer") else ""))
        p(f"s_branch L_osr{q}\nL_osc{q}:")
        for x in st: p(x+(" "+CFG['ospol'] if x.startswith("buffer") else ""))
        p(f"L_osr{q}:")
    p(f"""v_mov_b32 v{t}, {F_DONE}
    v_mov_b32 v{t+1}, 1
    s_mov_b64 exec, 1
    ds_add_u32 v{t}, v{t+1}
    s_mov_b64 exec, -1""")
    STAMP('ost')
aCLS=255; aFO=226; aFR=227
def att_cold():
    t=vT; A=sT+7; B=sT+8; N=sT+17; J=sT+18; CN=sT+19; PA=sT+20
    for q in range(2): p(f"L_afb{q}:\ns_cmp_lg_u32 s{sFB}, 0\ns_cbranch_scc1 L_afr{q}\ns_branch L_afb")
    p(f"L_afb:\ns_mov_b32 s{sFB}, 1\ns_waitcnt lgkmcnt(0)")
    S=SS[0]; MX=t+10; xa=t+11
    for q in range(2):
        lp=p.lab("fb"); nd=p.lab("fbnd"); nf=p.lab("fbnf"); p2=p.lab("fbp2"); nx=p.lab("fbnx"); ps=p.lab("fbps"); dn=p.lab("fbdn")
        for r in range(16): p(f"v_mov_b32 v{OO[q]+r}, 0")
        p(f"""v_mov_b32 v{MX}, {NINF}
        s_mov_b32 s{PA}, 0
        {ps}:""")
        if q==0: p(f"s_sub_u32 s{N}, 15, s{sWAVE}")
        else: p(f"s_add_u32 s{N}, 8, s{sWAVE}")
        p(f"""s_sub_u32 s{CN}, s{N}, 7
        s_cmp_eq_u32 s{cT0}, 0
        s_cselect_b32 s{CN}, s{CN}, 9
        s_mov_b32 s{J}, 0
        {lp}:
        s_lshr_b32 s{A}, s{N}, 1
        s_mul_i32 s{A}, s{A}, 5632
        s_bitcmp1_b32 s{N}, 0
        s_cselect_b64 vcc, -1, 0
        s_nop 0
        v_cndmask_b32 v{xa}, v{aKm}, v{aKm1}, vcc
        v_cndmask_b32 v{xa+1}, v{aKt}, v{aKt1}, vcc
        v_cndmask_b32 v{xa+2}, v{aV}, v{aV1}, vcc
        v_add_u32 v{xa}, s{A}, v{xa}
        v_add_u32 v{xa+1}, s{A}, v{xa+1}
        v_add_u32 v{xa+2}, s{A}, v{xa+2}
        ds_read_b128 {vr(KM[0],4)}, v{xa}
        ds_read_b64 {vr(KT[0],2)}, v{xa+1}
        s_mov_b64 exec, s[{sLO+2}:{sLO+3}]
        ds_read_b128 {vr(VV[0][0],4)}, v{xa+2}
        ds_read_b128 {vr(VV[0][1],4)}, v{xa+2} offset:640
        s_mov_b64 exec, -1
        s_waitcnt lgkmcnt(0)
        v_mfma_f32_32x32x16_bf16 {vr(S,16)}, {vr(KM[0],4)}, {vr(QM[q],4)}, 0
        v_mfma_f32_32x32x8_bf16 {vr(S,16)}, {vr(KT[0],2)}, {vr(QT[q],2)}, {vr(S,16)}
        v_mov_b32 v{xa}, {NINF}
        s_nop 11
        s_cmp_lg_u32 s{J}, 0
        s_cbranch_scc1 {nd}""")
        for r in range(16): p(f"v_cmp_eq_u32 vcc, 0, v{CD+r}\ns_nop 1\nv_cndmask_b32 v{S+r}, v{xa}, v{S+r}, vcc")
        p(f"{nd}:\ns_cmp_lg_u32 s{J}, 8\ns_cbranch_scc1 {nf}")
        for r in range(16): p(f"v_cmp_eq_u32 vcc, 0, v{CF+r}\ns_nop 1\nv_cndmask_b32 v{S+r}, v{xa}, v{S+r}, vcc")
        p(f"{nf}:\ns_cmp_lg_u32 s{PA}, 0\ns_cbranch_scc1 {p2}")
        for r in range(0,16,2): p(f"v_max3_f32 v{MX}, v{S+r}, v{S+r+1}, v{MX}")
        p(f"s_branch {nx}\n{p2}:")
        for r in range(16): p(f"v_sub_f32 v{S+r}, v{S+r}, v{MX}")
        for r in range(16): p(f"v_exp_f32 v{S+r}, v{S+r}")
        p("s_nop 0")
        for k in range(8): p(f"v_cvt_pk_bf16_f32 v{PP+k}, v{S+2*k}, v{S+2*k+1}")
        p("s_nop 1")
        for m in range(2): p(f"v_mfma_f32_32x32x16_bf16 {vr(OO[q],16)}, {vr(VV[0][m],4)}, {vr(PP+4*m,4)}, {vr(OO[q],16)}")
        p(f"""s_nop 11
        {nx}:
        s_sub_u32 s{N}, s{N}, 1
        s_add_u32 s{J}, s{J}, 1
        s_cmp_lt_u32 s{J}, s{CN}
        s_cbranch_scc1 {lp}
        s_cmp_lg_u32 s{PA}, 0
        s_cbranch_scc1 {dn}
        v_mov_b32 v{xa}, v{MX}
        s_mov_b32 s{PA}, 1
        s_nop 0
        v_permlane32_swap_b32 v{xa}, v{MX}
        s_nop 1
        v_max_f32 v{MX}, v{MX}, v{xa}
        s_branch {ps}
        {dn}:""")
    p("s_branch L_afin")

BF=28; AF=108; WACC=200; XR=176; WR_=186; aX2=196; aPS=197; aAL=198; aAR=199; SW=220; aL4=221; aPR=222; aKY=223; aCD=224
HP=40; HF_=50; LP=70; OP=80
sRT=sT+1; sOL=sT+2; sOR=sT+5; sXO=cXO; sPSO=sT+12; sRETRY=sT+13; sPRB=sT+14; sFLO=sT+16; sFRE=sT+18
def acc_init():
    for k in range(10): p(f"v_lshlrev_b32 v{WACC+2*k}, 16, v{XR+k}\nv_and_b32 v{WACC+2*k+1}, 0xffff0000, v{XR+k}")
def wo_pre1():
    t=vT; A=sT+7; B=sT+8
    wo_ids()
    p(f"""v_and_b32 v{t}, 15, v0
    v_lshrrev_b32 v{t+1}, 4, v0
    v_mul_u32_u24 v{aWR}, 40, v{t+1}
    v_mov_b32 v{t+3}, 1280
    v_mad_u32_u24 v{aX2}, v{t}, v{t+3}, v{aWR}
    s_lshl_b32 s{A}, s{sBLK}, 2
    s_add_u32 s{A}, s{A}, s{sWAVE}
    s_mul_i32 s{A}, s{A}, 20480
    s_mul_i32 s{cJ}, s{sJ}, 160
    s_add_u32 s{cXO}, s{A}, s{cJ}
    v_lshlrev_b32 v{aPS}, 7, v{t}
    v_lshl_add_u32 v{aPS}, v{t+1}, 5, v{aPS}
    v_lshlrev_b32 v{aFR}, 7, v{t}
    v_mul_u32_u24 v{t+2}, 640, v{t+1}
    v_bfe_u32 v{t+3}, v0, 2, 2
    v_mul_u32_u24 v{t+3}, 160, v{t+3}
    v_and_b32 v{t+4}, 3, v0
    v_mul_u32_u24 v{t+4}, 40, v{t+4}
    v_add3_u32 v{t+2}, v{t+2}, v{t+3}, v{t+4}
    s_mul_i32 s{A}, s{sHH}, 51200
    s_add_u32 s{B}, s{A}, {L_WO}
    v_add_u32 v{aAL}, s{B}, v{t+2}
    s_sub_u32 s{B}, {L_WO+51200}, s{A}
    v_add_u32 v{aAR}, s{B}, v{t+2}
    v_and_b32 v{t+2}, 7, v0
    v_mul_u32_u24 v{t+2}, 1280, v{t+2}
    v_bfe_u32 v{t+3}, v0, 3, 1
    v_lshl_add_u32 v{aPR}, v{t+3}, 7, v{t+2}""")
    if CFG['xdma']:
        assert 0<=CFG['xru']<99 and CFG['odn']==1
        p(f"""v_mul_u32_u24 v{t+2}, 6554, v0
        v_lshrrev_b32 v{t+2}, 16, v{t+2}
        v_mul_u32_u24 v{t+2}, 1120, v{t+2}
        v_lshl_add_u32 v{aXD}, v0, 4, v{t+2}
        s_mul_i32 s{B}, s{sWAVE}, 2560
        s_add_u32 s{B}, s{B}, {L_STG}
        v_mul_u32_u24 v{t+2}, 160, v{t}
        v_add3_u32 v{aXL}, v{t+2}, v{aWR}, s{B}
        v_add_u32 v{aWR}, {L_SA}, v{aWR}""")
    if CFG['wsp']:
        p(f"""s_and_b32 s{B}, s{sWAVE}, 1
        s_mul_i32 s{B}, s{B}, 25600
        v_add_u32 v{aAL}, s{B}, v{aAL}
        v_add_u32 v{aAR}, s{B}, v{aAR}
        s_lshr_b32 s{B}, s{sWAVE}, 1
        s_mul_i32 s{B}, s{B}, 10240
        s_add_u32 s{A}, s{A}, s{B}
        s_and_b32 s{B}, s{sWAVE}, 1
        s_lshl_b32 s{B}, s{B}, 10
        s_add_u32 s{A}, s{A}, s{B}
        s_add_u32 s{A}, s{A}, {L_WO}
        v_lshlrev_b32 v{aL4}, 4, v0
        v_add_u32 v{aPR}, s{A}, v{aL4}
        v_add_u32 v{aL4}, 4096, v{aL4}""")
def wo_pre2():
    acc_init()
def probe(soff,cnt,first=True):
    t=vT
    lp=p.lab("pb"); ok=p.lab("pbok"); md=p.lab("pbm")
    p(f"s_mov_b32 s{cnt}, {SPIN}")
    if not first: p(f"s_branch {md}")
    p(f"""{lp}:
    buffer_load_dwordx3 v[{t+4}:{t+6}], v{aPR}, {S4(sWS)}, s{soff} offen offset:512 sc1""")
    if not first: p(f"{md}:")
    p(f"""s_waitcnt vmcnt(0)
    v_max_u32 v{t+4}, v{t+4}, v{t+6}
    v_cmp_eq_u32 vcc, -1, v{t+4}
    s_nop 0
    s_cbranch_vccz {ok}""")
    spin(cnt,lp,ok)
    p(f"s_branch {lp}\n{ok}:")
def red3(a,b,c,d):
    p(f"""v_mov_b32 v{d}, v{c}
    s_nop 0
    v_permlane32_swap_b32 v{a}, v{b}
    v_permlane32_swap_b32 v{c}, v{d}
    s_nop 0
    v_add_f32 v{a}, v{a}, v{b}
    v_add_f32 v{c}, v{c}, v{d}
    s_nop 1
    v_permlane16_swap_b32 v{a}, v{c}
    s_nop 0
    v_add_f32 v{a}, v{a}, v{c}
    v_add_f32 v{c}, v{a}, 0
    s_nop 1
    v_permlane16_swap_b32 v{a}, v{c}
    s_nop 0
    v_mov_b32 v{b}, v{a}
    s_nop 1
    v_permlane32_swap_b32 v{a}, v{b}""")
def wo_scal():
    A=sT+7; B=sT+8
    wo_ids()
    p(f"""s_lshl_b32 s{sRT}, s{sBLK}, 2
    s_add_u32 s{sRT}, s{sRT}, s{sWAVE}
    s_mul_i32 s{A}, s{sRT}, 20480
    s_mul_i32 s{B}, s{sMODE}, {OB2-OB}
    s_add_u32 s{A}, s{A}, s{B}
    s_add_u32 s{A}, s{A}, {OB}
    s_mul_i32 s{B}, s{sHH}, 10240
    s_add_u32 s{sOL}, s{A}, s{B}
    s_add_u32 s{sOL+1}, s{sOL}, 4096
    s_add_u32 s{sOL+2}, s{sOL}, 8192
    s_add_u32 s{A}, s{A}, 10240
    s_sub_u32 s{sOR}, s{A}, s{B}
    s_lshl_b32 s{sPSO}, s{sRT}, 11
    s_add_u32 s{sPSO}, s{sPSO}, {PS}
    s_mov_b32 s{sRETRY}, {1<<16}
    s_add_u32 s{sOR+1}, s{sOR}, 4096
    s_add_u32 s{sPRB}, s{sOR}, 8192""")
    if CFG['wsp']:
        p(f"""s_and_b32 s{A}, s{sWAVE}, 1
        s_mul_i32 s{B}, s{A}, 5120
        s_add_u32 s{sOL}, s{sOL}, s{B}
        s_add_u32 s{sOR}, s{sOR}, s{B}
        s_mul_i32 s{B}, s{A}, -40960
        s_add_u32 s{B}, s{B}, 20480
        s_add_u32 s{sOL+1}, s{sOL}, s{B}
        s_add_u32 s{sOR+1}, s{sOR}, s{B}""")
def wo_flags():
    A=sT+7; B=sT+8
    p(f"""s_lshr_b32 s{A}, s{sRT}, 1
    s_lshl_b32 s{A}, s{A}, 12
    s_lshl_b32 s{B}, s{sHH}, 11
    s_add_u32 s{A}, s{A}, {FO}
    s_add_u32 s{sFLO}, s{A}, s{B}
    s_xor_b32 s{sFRE}, s{sFLO}, 2048""")
def wo_gemm():
    t=vT; A=sT+7; B=sT+8; C=sT+17; MXS=t+8
    sROFF=[sOR,sOR+1,sPRB]
    LA=CFG['wla']; WE=CFG['wwe']
    LG=[]
    def af(m): return AF+4*(m%15)
    def aread(m):
        s_,t_=divmod(m,5)
        for rd in range(2):
            p(f"ds_read_b64_tr_b16 {vr(af(m)+2*rd,2)}, v{aAL if s_<10 else aAR} offset:{(s_%10)*5120+rd*2560+8*t_}"); LG.append(m)
    def lgw(m):
        k=[i for i,x in enumerate(LG) if x!='x' and x<=m]
        if not k: return None
        n=len(LG)-1-max(k); del LG[:max(k)+1]; return n
    def bload(s_):
        so=(sOL+(s_%10)//4) if s_<10 else sROFF[(s_%10)//4]
        return f"buffer_load_dwordx4 {vr(BF+4*s_,4)}, v{aLin}, {S4(sWS)}, s{so} offen offset:{(s_%10%4)*1024} sc1"
    def cold(f):
        n0=len(p.L); f(); COLD.append("\n".join(p.L[n0:])); del p.L[n0:]
    p(f"s_cmp_lg_u32 s{sMODE}, 0\ns_cbranch_scc1 L_plsl\nL_plr:")
    def slow():
        p("L_plsl:"); wo_flags()
        p(f"""v_mov_b32 v{t+1}, s{sTAG}
        s_mov_b64 exec, 3
        s_waitcnt vmcnt(0)
        buffer_store_dword v{t+1}, v{aFO}, {S4(sWS)}, 0 offen sc1
        s_mov_b64 exec, -1""")
        flag_poll(aFR,t+4,sFLO,C); flag_poll(aFR,t+4,sFRE,C); p("s_branch L_plr")
    cold(slow)
    NI=CFG['oini']
    def dn():
        if CFG['odn']:
            p(f"v_mov_b32 v{t}, {F_DONE}"); lds_wait(t,t+1,C,'gt',4,0)
    if CFG['oprb']:
        p(f"buffer_load_dwordx3 v[{t+4}:{t+6}], v{aPR}, {S4(sWS)}, s{sOL} offen offset:512 sc1\ns_waitcnt vmcnt(5)")
    else:
        dn()
        for s_ in range(NI): p(bload(s_))
        p(f"s_waitcnt vmcnt({NI+4})")
    acc_init()
    p(f"v_mov_b32 v{t}, {F_WOR}")
    STAMP('fo')
    lds_wait(t,t+1,C,'gt',2,0)
    p(f"ds_read_b32 v{SW}, v{t} offset:{L_SWS-F_WOR}"); LG.append('x')
    STAMP('wor')
    if CFG['oprb']: dn()
    for m in range(LA): aread(m)
    p(f"v_mov_b32 v{t+7}, {F_WO2}\ns_mov_b32 s{sRETRY}, {SPIN}")
    if CFG['oprb']:
        probe(sOL,C,first=False)
        STAMP('prb')
        for s_ in range(NI): p(bload(s_))
    G={}; a=0
    for n in CFG['ogr']: G[a]=a+n; a+=n
    assert a==20 and 10 in G
    def chain(a,b):
        return [f"v_max_u32 v{MXS}, v{BF+4*a}, v{BF+4*a+2}"]+[f"v_max3_u32 v{MXS}, v{BF+4*k}, v{BF+4*k+2}, v{MXS}" for k in range(a+1,b)]
    cmp_=f"v_cmp_eq_u32 vcc, -1, v{MXS}"
    def retry(a,b):
        e=20 if (CFG['opoll']=='all' or a>=10) else 10
        def f():
            p(f"L_og{a}:\ns_sub_u32 s{sRETRY}, s{sRETRY}, 1\ns_cbranch_scc1 L_ogr{a}")
            sl=CFG['osl'][a//10]
            if sl: p(f"s_sleep {sl}")
            if CFG['opoll']=='probe' and a==0: probe(sOL,C)
            for k in range(a,e): p(bload(k))
            p(f"s_waitcnt vmcnt({20-b if e==20 else 0})")
            for x in chain(a,b): p(x)
            p(f"{cmp_}\ns_nop 0\ns_cbranch_vccnz L_og{a}\ns_branch L_ogr{a}")
        cold(f)
    last=lambda s_: (NI if s_<NI else 20)-1
    p(f"s_waitcnt vmcnt({last(0)+1-G[0]})")
    for x in chain(0,G[0]): p(x)
    p(f"{cmp_}\ns_nop 0\ns_cbranch_vccnz L_og0\nL_ogr0:"); retry(0,G[0])
    STAMP('pl')
    for m in range(100):
        s_,t_=divmod(m,5)
        nx=s_+1 if s_+1 in G else None
        if m==50:
            STAMP('pr')
            if 'PR' in (CFG['gstart'],CFG['dstart'],CFG['dgate'],CFG['mtg']):
                p(f"""s_mov_b64 exec, 1
                v_mov_b32 v{t+4}, {F_PR}
                v_mov_b32 v{t+5}, 1
                ds_add_u32 v{t+4}, v{t+5}
                s_mov_b64 exec, -1"""); LG.append('x')
        w=[]
        if nx is not None and t_==1: w.append(f"vmcnt({(20 if m>CFG['orem'] else NI)-G[nx]}"); assert G[nx]<=NI or m>CFG['orem']
        if m%WE==0:
            n=lgw(m+WE-1)
            if n is not None: w.append(f"lgkmcnt({n}")
        if w: p("s_waitcnt "+") ".join(w)+")")
        a_=vr(WACC+4*t_,4)
        p(f"v_mfma_f32_16x16x32_bf16 {a_}, {vr(af(m),4)}, {vr(BF+4*s_,4)}, {a_}")
        if NI<20 and m==CFG['orem']:
            for k in range(NI,20): p(bload(k))
        if m+LA==50-10: p(f"ds_read_b32 v{t+6}, v{t+7}"); LG.append('x')
        if m+LA==50:
            assert nx is None or t_<3
            p(f"v_cmp_gt_u32 vcc, 2, v{t+6}\ns_nop 0\ns_cbranch_vccnz L_wo2w\nL_wo2r:")
            def f():
                p("L_wo2w:"); lds_wait(t+7,t+6,C,'gt',2,0); p("s_branch L_wo2r")
            cold(f)
        if m+LA<100: aread(m+LA)
        if nx is not None:
            ch=chain(nx,G[nx]); k=-(-len(ch)//2)
            if t_==1:
                for x in ch[:k]: p(x)
            if t_==2:
                for x in ch[k:]: p(x)
            if t_==3: p(cmp_)
            if t_==4:
                if nx==10: STAMP('loc')
                p(f"s_cbranch_vccnz L_og{nx}\nL_ogr{nx}:"); retry(nx,G[nx])
    p(f"""v_mov_b32 v{t}, 0x3f803f80
    v_mov_b32 v{t+2}, 0
    v_mov_b32 v{t+3}, 0
    v_mov_b32 v{t+4}, 0
    s_nop 3""")
ACC2=148; aXW=222; aPQ=172; aBP=173
def wo_gemm2():
    t=vT; A=sT+7; B=sT+8; C=sT+17; MXS=t+8
    LA=CFG['wla2']
    LG=[]
    def af(m): return AF+4*(m%10)
    def aread(m,rds=(0,1)):
        s_,t_=divmod(m,5)
        for rd in rds:
            if CFG['wnoa'] and m>=LA and rd<CFG['wnoa']: continue
            p(f"ds_read_b64_tr_b16 {vr(af(m)+2*rd,2)}, v{aAL if s_<5 else aAR} offset:{(s_%5)*5120+rd*2560+8*t_}"); LG.append(m)
    def lgw(m):
        k=[i for i,x in enumerate(LG) if x!='x' and x<=m]
        if not k: return None
        n=len(LG)-1-max(k); del LG[:max(k)+1]; return n
    def bload(s_,us=(0,1)):
        for u in us:
            so=(sOL if s_<5 else sOR)+u
            p(f"buffer_load_dwordx4 {vr(BF+8*s_+4*u,4)}, v{aLin if s_%5<4 else aL4}, {S4(sWS)}, s{so} offen offset:{(s_%5%4)*1024} {CFG['ldo'] if s_<5 else 'sc1'}")
    def cold(f):
        n0=len(p.L); f(); COLD.append("\n".join(p.L[n0:])); del p.L[n0:]
    p(f"s_cmp_lg_u32 s{sMODE}, 0\ns_cbranch_scc1 L_plsl\nL_plr:")
    def slow():
        p("L_plsl:"); wo_flags()
        p(f"""v_mov_b32 v{t+1}, s{sTAG}
        s_mov_b64 exec, 3
        s_waitcnt vmcnt(0)
        buffer_store_dword v{t+1}, v{aFO}, {S4(sWS)}, 0 offen sc1
        s_mov_b64 exec, -1""")
        flag_poll(aFR,t+4,sFLO,C); flag_poll(aFR,t+4,sFRE,C); p("s_branch L_plr")
    cold(slow)
    XL=CFG['xru']==99
    XF_=lambda k: (230+2*k if k<8 else 168+2*(k-8))
    p(f"v_mov_b32 v{t}, {F_DONE}")
    if not XL: p("s_waitcnt vmcnt(4)")
    if CFG['xdma']:
        for k in range(5): p(f"ds_read_b64 {vr(XR+2*k,2)}, v{aXL} offset:{8*k}")
        for k in range(5): p(f"ds_read_b64 {vr(WR_+2*k,2)}, v{aWR} offset:{8*k}")
    if CFG['odn']==2 and not XL: acc_init()
    if CFG['odn']: lds_wait(t,t+1,C,'gt',ND,0)
    for s_ in range(5): bload(s_)
    if CFG['odn']!=2 and not XL: acc_init()
    p(f"v_mov_b32 v{t}, {F_WOR}")
    STAMP('fo')
    lds_wait(t,t+1,C,'gt',2,0)
    p(f"ds_read_b32 v{SW}, v{t} offset:{L_SWS-F_WOR}"); LG.append('x')
    STAMP('wor')
    for m in range(LA): aread(m)
    if CFG['psq']: p(f"v_lshrrev_b32 v{t+7}, 2, v0\nv_and_b32 v{aPQ}, 3, v0\nv_lshlrev_b32 v{aPQ}, 4, v{aPQ}\nv_lshl_add_u32 v{aPQ}, v{t+7}, 7, v{aPQ}")
    p(f"""v_mov_b32 v{t+7}, {F_WO2}
    s_mov_b32 s{sRETRY}, {SPIN}
    s_lshl_b32 s{A}, s{sWAVE}, 2
    s_add_u32 s{A}, s{A}, {F_X}
    v_mov_b32 v{t+10}, s{A}
    v_xor_b32 v{t+11}, 4, v{t+10}
    v_mov_b32 v{t+12}, 1""")
    G={}; a=0
    for n in CFG['ogr2']: G[a]=a+n; a+=n
    assert a==10 and 5 in G
    def chain(a,b):
        return [f"v_max_u32 v{MXS}, v{BF+8*a}, v{BF+8*a+2}"]+[f"v_max3_u32 v{MXS}, v{BF+4*k}, v{BF+4*k+2}, v{MXS}" for k in range(2*a+1,2*b)]
    cmp_=f"v_cmp_eq_u32 vcc, -1, v{MXS}"
    def retry(a,b):
        e=10 if a>=5 else 5
        def f():
            p(f"L_og{a}:\ns_sub_u32 s{sRETRY}, s{sRETRY}, 1\ns_cbranch_scc1 L_ogr{a}")
            sl=CFG['osl'][a//5]
            if sl: p(f"s_sleep {sl}")
            for k in range(a,e): bload(k)
            p(f"s_waitcnt vmcnt({20-2*b if e==10 and not (XL and CFG['xrd']>=0) else 0})")
            for x in chain(a,b): p(x)
            p(f"{cmp_}\ns_nop 0\ns_cbranch_vccnz L_og{a}\ns_branch L_ogr{a}")
        cold(f)
    RM={}
    for j in range(10): RM.setdefault(max(-1,int(CFG['orem2'][0]+j*CFG['orem2'][1])),[]).append(j)
    assert max(RM)<=24
    nis=10
    for j in RM.get(-1,()): bload(5+j//2,(j&1,)); nis+=1
    p(f"s_waitcnt vmcnt({nis-2*G[0]})")
    for x in chain(0,G[0]): p(x)
    p(f"{cmp_}\ns_nop 0\ns_cbranch_vccnz L_og0\nL_ogr0:"); retry(0,G[0])
    STAMP('pl')
    def mf(m,u):
        s_,t_=divmod(m,5)
        a_=vr((WACC,ACC2)[u]+4*t_,4)
        p(f"v_mfma_f32_16x16x32_bf16 {a_}, {vr(af(m),4)}, {vr(BF+8*s_+4*u,4)}, {0 if (u or XL) and s_==0 else a_}")
    WE=CFG['wwe2']
    mX=max(RM)+CFG['xrd']; nx_=0; nxat=0
    if XL and mX<0: xr_loads(); nx_=6; nxat=nis
    for m in range(45):
        s_,t_=divmod(m,5)
        nx=s_+1 if s_+1 in G else None
        if m==25:
            STAMP('pr')
            p(f"""s_mov_b64 exec, 1
            ds_add_u32 v{t+7}, v{t+12} offset:{F_LD-F_WO2}"""); LG.append('x')
            if CFG['prm']==25 and 'PR' in (CFG['gstart'],CFG['dstart'],CFG['dgate'],CFG['mtg']):
                p(f"v_mov_b32 v{t+4}, {F_PR}\nds_add_u32 v{t+4}, v{t+12}"); LG.append('x')
            p("s_mov_b64 exec, -1")
        if m==CFG['prm']!=25 and 'PR' in (CFG['gstart'],CFG['dstart'],CFG['dgate'],CFG['mtg']):
            p(f"s_mov_b64 exec, 1\nds_add_u32 v{t+7}, v{t+12} offset:{F_PR-F_WO2+65536 if F_PR<F_WO2 else F_PR-F_WO2}\ns_mov_b64 exec, -1" if 0 else f"s_mov_b64 exec, 1\nv_mov_b32 v{t+4}, {F_PR}\nds_add_u32 v{t+4}, v{t+12}\ns_mov_b64 exec, -1"); LG.append('x')
        w=[]
        if nx is not None and t_==1: w.append(f"vmcnt({nis+(nx_ if 2*G[nx]<=nxat else 0)-2*G[nx]}"); assert nis>=2*G[nx]
        n=lgw(m+WE-1) if m%WE==0 else None
        if n is not None: w.append(f"lgkmcnt({n}")
        if w: p("s_waitcnt "+") ".join(w)+")")
        mf(m,1)
        if m==25-2*LA-1: p(f"ds_read_b32 v{t+6}, v{t+7}"); LG.append('x')
        if m+LA==25:
            assert nx is None or t_<3
            p(f"v_cmp_gt_u32 vcc, 2, v{t+6}\ns_nop 0\ns_cbranch_vccnz L_wo2w\nL_wo2r:")
            def f():
                p("L_wo2w:"); lds_wait(t+7,t+6,C,'gt',2,0); p("s_branch L_wo2r")
            cold(f)
        if m==44-LA: p(f"ds_read_b32 v{t+6}, v{t+7} offset:{F_LD-F_WO2}"); LG.append('x')
        if m+LA<50: aread(m+LA,(0,) if CFG['wsplit'] else (0,1))
        mf(m,0)
        if m+LA<50 and CFG['wsplit']: aread(m+LA,(1,))
        for j in RM.get(m,()): bload(5+j//2,(j&1,)); nis+=1
        if XL and m==mX: xr_loads(); nx_=6; nxat=nis
        if XL and m==40: p("s_waitcnt vmcnt(0)")
        if XL and 40<=m<45:
            for k in (2*(m-40),2*(m-40)+1): p(f"v_lshlrev_b32 v{XF_(k)}, 16, v{XR+k}\nv_and_b32 v{XF_(k)+1}, 0xffff0000, v{XR+k}")
        if CFG['mtg']=='RL' and m==max(RM)+CFG['rld']:
            p(f"s_mov_b64 exec, 1\nv_mov_b32 v{t+4}, {F_H2}\nds_add_u32 v{t+4}, v{t+12}\ns_mov_b64 exec, -1"); LG.append('x')
        if nx is not None:
            ch=chain(nx,G[nx]); k=-(-len(ch)//2)
            if t_==1:
                for x in ch[:k]: p(x)
            if t_==2:
                for x in ch[k:]: p(x)
            if t_==3: p(cmp_)
            if t_==4:
                if nx==5: STAMP('loc')
                p(f"s_cbranch_vccnz L_og{nx}\nL_ogr{nx}:"); retry(nx,G[nx])
                STAMP('og%d'%nx)
    assert LA>=5 and 9 not in G
    for m in range(45,50):
        n=lgw(m)
        if n is not None: p(f"s_waitcnt lgkmcnt({n})")
        mf(m,1)
        if m==45:
            p(f"v_cmp_gt_u32 vcc, 4, v{t+6}\nv_mov_b32 v{t}, 0x3f803f80\ns_cbranch_vccnz L_ldw\nL_ldr:")
            def f():
                p(f"L_ldw:\nv_add_u32 v{t+7}, {F_LD-F_WO2}, v{t+7}"); lds_wait(t+7,t+6,C,'gt',4,0); p("s_branch L_ldr")
            cold(f)
    p(f"""v_mov_b32 v{t+2}, 0
    v_mov_b32 v{t+3}, 0
    v_mov_b32 v{t+4}, 0
    v_xor_b32 v{t+5}, 1024, v{aXW}""")
    for k in range(5):
        p(f"ds_write_b128 v{aXW}, {vr(ACC2+4*k,4)} offset:{2048*k}")
        mf(45+k,0)
    lp=p.lab("xw"); ok=p.lab("xok")
    STAMP('xw')
    p(f"""ds_write_b32 v{t+10}, v{t+12}
    s_mov_b32 s{C}, {SPIN*4}""")
    if XL:
        md=p.lab("xwm")
        p(f"ds_read_b32 v{t+6}, v{t+11}")
        for k in range(5): p(f"ds_read_b128 {vr(BF+4*k,4)}, v{t+5} offset:{2048*k}")
        for k in range(10): p(f"v_pk_add_f32 {vr(WACC+2*k,2)}, {vr(WACC+2*k,2)}, {vr(XF_(k),2)}")
        p(f"s_branch {md}")
    p(f"""{lp}:
    ds_read_b32 v{t+6}, v{t+11}""")
    for k in range(5): p(f"ds_read_b128 {vr(BF+4*k,4)}, v{t+5} offset:{2048*k}")
    if XL: p(f"{md}:")
    p(f"""s_waitcnt lgkmcnt(5)
    v_cmp_eq_u32 vcc, 0, v{t+6}
    s_nop 0
    s_cbranch_vccz {ok}""")
    spin(C,lp,ok)
    p(f"s_waitcnt lgkmcnt(0)\ns_branch {lp}\n{ok}:")
    for k in range(5):
        p(f"s_waitcnt lgkmcnt({4-k})")
        for j in range(2): p(f"v_pk_add_f32 {vr(WACC+4*k+2*j,2)}, {vr(WACC+4*k+2*j,2)}, {vr(BF+4*k+2*j,2)}")
def wo_gemm_old():
    t=vT; A=sT+7; B=sT+8; C=sT+17; MXS=t+8
    wo_scal(); wo_flags()
    p("s_waitcnt vmcnt(4)")
    acc_init()
    p(f"""v_mov_b32 v{t}, {F_WOR}
    v_mov_b32 v{t+1}, s{sTAG}
    s_cmp_eq_u32 s{sOSC}, 0
    s_cbranch_scc1 L_nofo
    s_mov_b64 exec, 3
    s_waitcnt vmcnt(0)
    buffer_store_dword v{t+1}, v{aFO}, {S4(sWS)}, 0 offen sc1
    s_mov_b64 exec, -1
    L_nofo:""")
    STAMP('fo')
    lds_wait(t,t+1,C,'gt',2,0)
    p(f"""ds_read_b32 v{SW}, v{t} offset:{L_SWS-F_WOR}
    L_wo:""")
    STAMP('wor')
    sROFF=[sOR,sOR+1,sPRB]
    LA=CFG['wla']; WE=CFG['wwe']
    LG=[]
    def af(m): return AF+4*(m%15)
    def aread(m):
        s_,t_=divmod(m,5)
        for rd in range(2):
            p(f"ds_read_b64_tr_b16 {vr(af(m)+2*rd,2)}, v{aAL if s_<10 else aAR} offset:{(s_%10)*5120+rd*2560+8*t_}"); LG.append(m)
    def lgw(m):
        k=[i for i,x in enumerate(LG) if x!='x' and x<=m]
        if not k: return None
        n=len(LG)-1-max(k); del LG[:max(k)+1]; return n
    def bload(s_):
        so=(sOL+(s_%10)//4) if s_<10 else sROFF[(s_%10)//4]
        return f"buffer_load_dwordx4 {vr(BF+4*s_,4)}, v{aLin}, {S4(sWS)}, s{so} offen offset:{(s_%10%4)*1024} sc1"
    for m in range(LA): aread(m)
    p(f"v_mov_b32 v{MXS}, 0\nv_mov_b32 v{t+7}, {F_WO2}")
    p(f"s_cmp_lg_u32 s{sMODE}, 0\ns_cbranch_scc1 L_plsl")
    probe(sOL,C)
    p("L_plr:")
    n0=len(p.L)
    p("L_plsl:"); flag_poll(aFR,t+4,sFLO,C); p("s_branch L_plr")
    COLD.append("\n".join(p.L[n0:])); del p.L[n0:]
    STAMP('pl')
    for s_ in range(10): p(bload(s_))
    p(f"buffer_load_dword v{t+4}, v{aFR}, {S4(sWS)}, s{sFRE} offen sc1")
    for m in range(100):
        s_,t_=divmod(m,5)
        if m==50:
            STAMP('loc')
            flag_poll(aFR,t+4,sFRE,C,first=False)
            STAMP('pr')
            for k in range(10,20): p(bload(k))
            if 'PR' in (CFG['gstart'],CFG['dstart'],CFG['dgate'],CFG['mtg']):
                p(f"""s_mov_b64 exec, 1
                v_mov_b32 v{t+4}, {F_PR}
                v_mov_b32 v{t+5}, 1
                ds_add_u32 v{t+4}, v{t+5}
                s_mov_b64 exec, -1"""); LG.append('x')
        w=[]
        if t_==0: w.append(f"vmcnt({(10-s_) if s_<10 else (19-s_)}")
        if m%WE==0:
            n=lgw(m+WE-1)
            if n is not None: w.append(f"lgkmcnt({n}")
        if w: p("s_waitcnt "+") ".join(w)+")")
        a_=vr(WACC+4*t_,4)
        p(f"v_mfma_f32_16x16x32_bf16 {a_}, {vr(af(m),4)}, {vr(BF+4*s_,4)}, {a_}")
        if m+LA==50-10: p(f"ds_read_b32 v{t+6}, v{t+7}"); LG.append('x')
        if m+LA==50:
            p(f"v_cmp_gt_u32 vcc, 2, v{t+6}\ns_nop 0\ns_cbranch_vccnz L_wo2w\nL_wo2r:")
            n0=len(p.L)
            p("L_wo2w:"); lds_wait(t+7,t+6,C,'gt',2,0); p("s_branch L_wo2r")
            COLD.append("\n".join(p.L[n0:])); del p.L[n0:]
        if m+LA<100: aread(m+LA)
        if t_==0 and s_<10: p(f"v_max3_u32 v{MXS}, v{BF+4*s_}, v{BF+4*s_+2}, v{MXS}")
    p(f"""v_cmp_eq_u32 vcc, -1, v{MXS}
    v_mov_b32 v{t}, 0x3f803f80
    v_mov_b32 v{t+2}, 0
    v_mov_b32 v{t+3}, 0
    v_mov_b32 v{t+4}, 0
    s_cbranch_vccnz L_woredo
    L_wook:""")
    COLD.append(f"L_woredo:\ns_sub_u32 s{sRETRY}, s{sRETRY}, 1\ns_cbranch_scc1 L_wook\ns_nop 7")
    q=P();
    COLD.append("\n".join(f"v_lshlrev_b32 v{WACC+2*k}, 16, v{XR+k}\nv_and_b32 v{WACC+2*k+1}, 0xffff0000, v{XR+k}" for k in range(10))+"\ns_branch L_wo")
def wo_main():
    t=vT; A=sT+7; B=sT+8; C=sT+17
    (wo_gemm2 if CFG['wsp'] else wo_gemm if CFG['osent'] else wo_gemm_old)()
    STAMP('wend')
    for k in range(10): p(f"v_cvt_pk_bf16_f32 v{HP+k}, v{WACC+2*k}, v{WACC+2*k+1}")
    for k in range(10):
        p(f"""v_dot2_f32_bf16 v{t+2}, v{HP+k}, v{t}, v{t+2}
        v_dot2_f32_bf16 v{t+4}, v{HP+k}, v{HP+k}, v{t+4}
        v_dot2_f32_bf16 v{t+3}, v{HP+k}, v{WR_+k}, v{t+3}""")
    p(f"""s_lshl_b32 s{A}, s{sJ}, 4
    s_add_u32 s{A}, s{A}, s{sPSO}""")
    red3(t+2,t+3,t+4,t+5)
    p(f"""v_mov_b32 v{t+5}, s{sTAG}
    s_mov_b64 exec, 0xffff
    s_cmp_lg_u32 s{sMODE}, 0
    s_cbranch_scc1 L_pssc
    buffer_store_dwordx4 {vr(t+2,4)}, v{aPS}, {S4(sWS)}, s{A} offen
    L_psr:""")
    if 'WE' in (CFG['gstart'],CFG['g2nd'][0],CFG['mtg']): p(f"s_mov_b64 exec, 1\nv_mov_b32 v{t+10}, {F_SCP}\nv_mov_b32 v{t+11}, 1\nds_add_u32 v{t+10}, v{t+11}")
    p("s_mov_b64 exec, -1")
    COLD.append(f"L_pssc:\nbuffer_store_dwordx4 {vr(t+2,4)}, v{aPS}, {S4(sWS)}, s{A} offen sc1\ns_branch L_psr")
    STAMP('ps')
    G=t+10
    lp=p.lab("ps"); ok=p.lab("psok"); md=p.lab("psm")
    Q=CFG['psq']
    ld=f"""buffer_load_dwordx4 {vr(G,4)}, v{aPQ if Q else aPS}, {S4(sWS)}, s{sPSO} offen sc1
    buffer_load_dwordx4 {vr(G+4,4)}, v{aPQ if Q else aPS}, {S4(sWS)}, s{sPSO} offen offset:{64 if Q else 16} sc1"""
    p(ld)
    for k in range(10): p(f"v_lshlrev_b32 v{HF_+2*k}, 16, v{HP+k}\nv_and_b32 v{HF_+2*k+1}, 0xffff0000, v{HP+k}")
    if CFG['dbg']:
        p(f"s_add_u32 s{A}, s{sXO}, {HB}")
        for o,n in ((0,4),(4,4),(8,2)): p(f"buffer_store_dwordx{n} {vr(HP+o,n)}, v{aX2}, {S4(sWS)}, s{A} offen offset:{4*o}")
    p(f"""s_lshl_b32 s{A}, s{sRT}, 4
    s_sub_u32 s{A}, 2047, s{A}
    {f"v_lshrrev_b32 v{t}, 2, v0" if Q else f"v_and_b32 v{t}, 15, v0"}
    v_sub_u32 v{t+9}, s{A}, v{t}
    v_lshlrev_b32 v{t+9}, 3, v{t+9}
    s_lshl_b32 s{A}, s{sWAVE}, 6
    s_add_u32 s{A}, s{A}, {L_KEYS}
    v_lshl_add_u32 v{aKY}, v{t}, 2, s{A}
    v_and_b32 v{t}, {3 if Q else 48}, v0
    v_lshlrev_b32 v{t}, {6 if Q else 2}, v{t}
    v_add_u32 v{t+8}, {L_KEYS}, v{t}
    {f"v_and_b32 v{t}, 15, v0" if Q else ""}
    {f"v_lshlrev_b32 v{aBP}, 4, v{t}" if Q else ""}
    s_mov_b32 s{C}, {SPIN}
    s_branch {md}
    {PG if CFG['lay'] else ""}
    {"L_padM:" if CFG['lay'] and CFG['padk'] else ""}
    {"s_branch "+KVB(0) if CFG['lay'] and CFG['padk'] else ""}
    {lp}:
    {ld}
    {md}:
    s_waitcnt vmcnt(0)
    v_cmp_ne_u32 vcc, s{sTAG}, v{G+3}
    v_cmp_ne_u32 s[{sT+14}:{sT+15}], s{sTAG}, v{G+7}
    v_pk_add_f32 {vr(t+4,2)}, {vr(G,2)}, {vr(G+4,2)}
    v_add_f32 v{t+6}, v{G+2}, v{G+6}
    s_or_b64 vcc, vcc, s[{sT+14}:{sT+15}]
    s_cbranch_scc0 {ok}""")
    spin(C,lp,ok)
    p(f"""s_branch {lp}
    {ok}:""")
    STAMP('psr'); COUNT('npsr',C,SPIN)
    if 'PS' in (CFG['g2nd'][0],CFG['gstart'],CFG['dstart'],CFG['dgate'],CFG['mtg']): p(f"""s_mov_b64 exec, 1
    v_mov_b32 v{G}, {F_PS}
    v_mov_b32 v{G+1}, 1
    ds_add_u32 v{G}, v{G+1}
    s_mov_b64 exec, -1""")
    M=t+4
    if Q:
        for qp in ("[1,0,3,2]","[2,3,0,1]"):
            for k in range(3): p(f"v_add_f32_dpp v{M+k}, v{M+k}, v{M+k} quad_perm:{qp} row_mask:0xf bank_mask:0xf")
    else: red3(M,M+1,M+2,M+3)
    p(f"""v_mul_f32 v{M}, {1/640!r}, v{M}
    v_mul_f32 v{M+2}, {1/640!r}, v{M+2}
    v_fma_f32 v{M+2}, -v{M}, v{M}, v{M+2}
    v_max_f32 v{M+2}, 0, v{M+2}""")
    bf16r(M+2,M+2)
    p(f"v_add_f32 v{M+2}, 0x3727c5ac, v{M+2}")
    bf16r(M+2,M+2)
    p(f"v_sqrt_f32 v{M+2}, v{M+2}")
    bf16r(M,M)
    bf16r(M+2,M+2)
    RS=t+2
    p(f"""v_rcp_f32 v{RS}, v{M+2}
    v_fma_f32 v{M+1}, -v{M}, v{SW}, v{M+1}
    v_mul_f32 v{M+1}, v{M+1}, v{RS}
    v_cvt_pk_bf16_f32 v{M+1}, v{M+1}, v{M+1}
    v_mul_f32 v{RS+1}, -v{M}, v{RS}
    v_ashrrev_i32 v{M+2}, 31, v{M+1}
    v_or_b32 v{M+2}, 0x80000000, v{M+2}
    v_xor_b32 v{M+1}, v{M+1}, v{M+2}
    v_and_b32 v{M+1}, 0xffff0000, v{M+1}
    v_or_b32 v{KEY}, v{M+1}, v{t+9}
    ds_write_b32 v{aKY}, v{KEY}""")
    K16=AF
    lp=p.lab("ky"); ok=p.lab("kyok"); md=p.lab("kym")
    def lfma():
        for k in range(10): p(f"v_pk_fma_f32 {vr(WACC+2*k,2)}, {vr(HF_+2*k,2)}, {vr(RS,2)}, {vr(RS,2)} op_sel:[0,0,1] op_sel_hi:[1,0,1]")
    def kread():
        for i in range(4): p(f"ds_read_b128 {vr(K16+4*i,4)}, v{t+8} offset:{16*i}")
    if Q:
        p(f"ds_bpermute_b32 v{RS}, v{aBP}, v{RS}\nds_bpermute_b32 v{RS+1}, v{aBP}, v{RS+1}")
        kread()
        p(f"s_mov_b32 s{C}, {SPIN*4}\ns_waitcnt lgkmcnt(4)")
        lfma()
        p(f"s_branch {md}\n{lp}:")
        kread()
        p(f"{md}:")
    else:
        lfma()
        p(f"s_mov_b32 s{C}, {SPIN*4}\n{lp}:")
        kread()
    p("s_waitcnt lgkmcnt(0)")
    p(f"v_max3_u32 v{t}, v{K16}, v{K16+1}, v{K16+2}")
    for i in range(3,15,2): p(f"v_max3_u32 v{t}, v{K16+i}, v{K16+i+1}, v{t}")
    p(f"""v_max_u32 v{t}, v{t}, v{K16+15}
    v_cmp_eq_u32 vcc, -1, v{t}
    v_mov_b32 v{t}, 0
    s_cbranch_vccz {ok}""")
    spin(C,lp,ok)
    p(f"s_branch {lp}\n{ok}:")
    STAMP('keys')
    m0_=sT+18
    for i in range(18):
        if i<16: p(f"v_cmp_gt_u32 s[{m0_+2*(i%2)}:{m0_+2*(i%2)+1}], v{K16+i}, v{KEY}") if False else None
    MK=[sT+14,sT+16,sT+18]
    for i in range(18):
        if i<16: m=MK[i%3]; p(f"v_cmp_gt_u32 s[{m}:{m+1}], v{K16+i}, v{KEY}")
        elif i==16: p("s_nop 0")
        if i>=2: m=MK[(i-2)%3]; p(f"v_addc_co_u32 v{t}, vcc, 0, v{t}, s[{m}:{m+1}]")
    if Q: p(f"""v_cvt_pk_bf16_f32 v{LP}, v{WACC}, v{WACC+1}
    v_cvt_pk_bf16_f32 v{LP+1}, v{WACC+2}, v{WACC+3}
    v_add_u32_dpp v{t}, v{t}, v{t} quad_perm:[1,0,3,2] row_mask:0xf bank_mask:0xf
    v_cvt_pk_bf16_f32 v{LP+2}, v{WACC+4}, v{WACC+5}
    v_cvt_pk_bf16_f32 v{LP+3}, v{WACC+6}, v{WACC+7}
    v_add_u32_dpp v{t}, v{t}, v{t} quad_perm:[2,3,0,1] row_mask:0xf bank_mask:0xf""")
    else: p(f"""v_mov_b32 v{t+1}, v{t}
    v_cvt_pk_bf16_f32 v{LP}, v{WACC}, v{WACC+1}
    v_cvt_pk_bf16_f32 v{LP+1}, v{WACC+2}, v{WACC+3}
    v_permlane32_swap_b32 v{t}, v{t+1}
    v_cvt_pk_bf16_f32 v{LP+2}, v{WACC+4}, v{WACC+5}
    v_add_u32 v{t}, v{t}, v{t+1}
    v_mov_b32 v{t+1}, v{t}
    v_cvt_pk_bf16_f32 v{LP+3}, v{WACC+6}, v{WACC+7}
    v_cvt_pk_bf16_f32 v{LP+4}, v{WACC+8}, v{WACC+9}
    v_permlane16_swap_b32 v{t}, v{t+1}
    v_cvt_pk_bf16_f32 v{LP+5}, v{WACC+10}, v{WACC+11}
    v_add_u32 v{t}, v{t}, v{t+1}""")
    p(f"""v_cmp_gt_u32 s[{sCAND}:{sCAND+1}], 8, v{t}
    v_or_b32 v{KEY}, v{KEY}, v{t}
    v_mov_b32 v{t+1}, {L_CA&~0xffff}
    v_lshl_add_u32 v{t+1}, v{t}, 3, v{t+1}
    v_mov_b32 v{KEY+1}, s{sTAG}
    s_cmp_lg_u32 s{sJ}, 0
    s_cbranch_scc1 L_noca
    {f"s_and_b32 exec_lo, s{sCAND}, 0x11111111" if Q else f"s_and_b32 exec_lo, s{sCAND}, 0xffff"}
    {f"s_and_b32 exec_hi, s{sCAND+1}, 0x11111111" if Q else "s_mov_b32 exec_hi, 0"}
    ds_write_b64 v{t+1}, {vr(KEY,2)} offset:{L_CA&0xffff}
    s_mov_b64 exec, 0xff
    s_cmp_lg_u32 s{sWAVE}, 0
    s_cbranch_scc1 {"L_cab" if CFG['jb'] else "L_noca"}
    v_lshlrev_b32 v{t+2}, 3, v0
    v_add_u32 v{t+3}, {L_CA}, v{t+2}
    s_lshl_b32 s{A}, s{sBLK}, 7
    s_add_u32 s{A}, s{A}, {CA}
    s_mov_b32 s{C}, {SPIN*4}
    L_cal:
    ds_read_b64 v[{t+4}:{t+5}], v{t+3}
    s_waitcnt lgkmcnt(0)
    v_cmp_ne_u32 vcc, s{sTAG}, v{t+5}
    s_nop 0
    s_cbranch_vccz L_caok""")
    spin(C,"L_cal","L_caok")
    p(f"""s_branch L_cal
    L_caok:
    buffer_store_dwordx2 v[{t+4}:{t+5}], v{t+2}, {S4(sWS)}, s{A} offen sc1
    {"L_cab:" if CFG['jb'] else ""}
    {"s_barrier" if CFG['jb'] else ""}
    L_noca:
    s_mov_b64 exec, -1""")
    STAMP('ca')
    if Q: p(f"ds_bpermute_b32 v{t}, v{aBP}, v{t}\nds_bpermute_b32 v{KEY}, v{aBP}, v{KEY}")
    for k in range(4 if Q else 6,10): p(f"v_cvt_pk_bf16_f32 v{LP+k}, v{WACC+2*k}, v{WACC+2*k+1}")
    p(f"""v_lshrrev_b32 v{t+1}, 4, v0
    v_mul_u32_u24 v{t+1}, 40, v{t+1}
    {"s_waitcnt lgkmcnt(0)" if Q else ""}
    {f"v_cmp_gt_u32 s[{sCAND}:{sCAND+1}], 8, v{t}" if Q else ""}
    v_mul_u32_u24 v{t}, 2560, v{t}
    v_add_u32 v{aCD}, v{t}, v{t+1}
    s_mul_i32 s{A}, s{sBLK}, 20480
    s_mul_i32 s{B}, s{sJ}, 160
    s_add_u32 s{A}, s{A}, s{B}
    s_add_u32 s{A}, s{A}, {CAND}
    s_and_b64 exec, s[{sCAND}:{sCAND+1}], -1
    s_cbranch_scc0 L_nocd""")
    for base,off in ((LP,0),(HP,1280)):
        if 'nocand' in CFG['xp'] or ('noh' in CFG['xp'] and off): continue
        for o,n in ((0,4),(4,4),(8,2)): p(f"buffer_store_dwordx{n} {vr(base+o,n)}, v{aCD}, {S4(sWS)}, s{A} offen offset:{off+4*o} sc1")
    p("L_nocd:\ns_mov_b64 exec, -1")
    if CFG['cae']:
        assert not CFG['odf'] and not CFG['xp']
        p(f"""s_lshl_b32 s{A}, s{sWAVE}, 5
        s_add_u32 s{A}, s{A}, s{sMI}
        s_cmp_ge_u32 s{A}, 17
        s_cbranch_scc1 L_nocae
        v_lshrrev_b32 v{t}, 3, v0
        v_and_b32 v{t+1}, 7, v0
        v_lshlrev_b32 v{t+1}, 3, v{t+1}
        v_lshl_add_u32 v22, v{t}, 7, v{t+1}
        s_mov_b32 s{B}, {CA}""")
        for i in range(4): p(f"buffer_load_dwordx2 {vr(12+2*i,2)}, v22, {S4(sWS)}, s{B} offen offset:{i*1024} sc1")
        p("L_nocae:")
    for k in range(10): p(f"v_pk_add_f32 {vr(WACC+2*k,2)}, {vr(WACC+2*k,2)}, {vr(HF_+2*k,2)}")
    for k in range(10): p(f"v_cvt_pk_bf16_f32 v{OP+k}, v{WACC+2*k}, v{WACC+2*k+1}")
    if CFG['odf']: p(f"s_cmp_lt_u32 s{sMI}, {CFG['odf']}\ns_cbranch_scc1 L_noo1")
    p(f"s_andn2_b64 exec, -1, s[{sCAND}:{sCAND+1}]")
    if not CFG['cae']: p("s_cbranch_scc0 L_noo1")
    if 'noout' not in CFG['xp']: out_store()
    p("L_noo1:")
    if 1: p(f"""s_mov_b64 exec, 1
    v_mov_b32 v{t+4}, {F_O1}
    v_mov_b32 v{t+5}, 1
    ds_add_u32 v{t+4}, v{t+5}
    s_mov_b64 exec, -1""")
    else: p("s_mov_b64 exec, -1")
    STAMP('o1')
KEY=228; sCAND=sT+20
def out_store():
    for o,n in ((0,4),(4,4),(8,2)): p(f"buffer_store_dwordx{n} {vr(OP+o,n)}, v{aX2}, {S4(sOUT)}, s{sXO} offen offset:{4*o} {CFG['opol']}")

def moe_weights():
    A=sT+7; B=sT+8; vt=2; D=40; aW_=12
    gu=p.lab("mwgu"); wr=p.lab("mwwr"); en=p.lab("mwend")
    FA=dict(WOD=(F_WOD,2),PR=(F_PR,4),O1=(F_O1,4),DONE=(F_DONE,ND),G2=(F_G2,2),PS=(F_PS,4),WO2=(F_WO2,2),WE=(F_SCP,4),TOP=(L_TOP,0))
    def gate(k):
        p(f"v_mov_b32 v{vt+4}, {FA[k][0]}")
        if k=='TOP': lds_wait(vt+4,vt+5,sT+5,'eq',-1,2)
        else: lds_wait(vt+4,vt+5,sT+5,'gt',FA[k][1],2)
    pl_=p.lab("mwpl")
    p(f"""s_cmp_ge_u32 s{sMI}, 17
    s_cbranch_scc1 {pl_}
    v_bfe_u32 v{vt}, v0, 3, 2
    v_lshrrev_b32 v{vt+1}, 5, v0
    v_lshlrev_b32 v{vt}, 1, v{vt}
    v_add_lshl_u32 v{vt}, v{vt}, v{vt+1}, 2
    v_bfe_u32 v{vt+1}, v0, 1, 2
    v_add_u32 v{vt}, v{vt}, v{vt+1}
    v_and_b32 v{vt+1}, 1, v0
    v_lshlrev_b32 v{vt+1}, 4, v{vt+1}
    s_cmp_lt_u32 s{sMI}, 12
    s_cbranch_scc1 {gu}
    v_mul_u32_u24 v{vt}, 1280, v{vt}
    v_add_u32 v{aW_}, v{vt}, v{vt+1}
    s_mul_i32 s{A}, s{sG}, 5
    s_add_u32 s{A}, s{A}, s{sMI}
    s_sub_u32 s{A}, s{A}, 12
    s_lshl_b32 s{A}, s{A}, 5
    s_mul_i32 s{B}, s{HW}, {12*32*1280}
    s_add_u32 s{A}, s{A}, s{B}""")
    gate(CFG['dstart'])
    STAMP('mg')
    for s_ in range(12):
        if s_>=CFG['ddep']: p(f"s_waitcnt vmcnt({CFG['ddep']-1})")
        p(f"buffer_load_dwordx4 {vr(D+4*s_,4)}, v{aW_}, {S4(sWD)}, s{A} offen {CFG['mpol']}")
        if s_<11: p(f"s_add_u32 s{A}, s{A}, {32*1280}")
    p(f"""s_mul_i32 s{B}, s{HW}, 12288
    s_branch {wr}
    {pl_}:""")
    for g_,h_ in CFG['wb']:
        sk=p.lab("nowb")
        p(f"s_lshl_b32 s{A}, s{sSLOT}, 2\ns_add_u32 s{A}, s{A}, s{HW}\ns_cmp_lg_u32 s{A}, {4*CFG['wbs']+h_}\ns_cbranch_scc1 {sk}")
        if g_!='no': gate(g_)
        p(f"buffer_wbl2 sc1\ns_waitcnt vmcnt(0)\n{sk}:")
    if CFG['dgate']!='no' and not CFG['dw3']:
        if CFG['dtn']: p(f"s_cmp_ge_u32 s{sMI}, 28\ns_cbranch_scc1 {en}")
        gate(CFG['dgate'])
        touch(vTD,sWD,CFG['mpair'])
        if CFG['dtn']: p("s_mov_b64 exec, 63"); touch(vTD2,sWD,0); p("s_mov_b64 exec, -1")
        STAMP('mg')
        if CFG['prof']: p("s_waitcnt vmcnt(0)"); STAMP('mw')
    p(f"""s_branch {en}
    {gu}:
    v_mul_u32_u24 v{vt}, 3072, v{vt}
    v_add_u32 v{aW_}, v{vt}, v{vt+1}
    s_mul_i32 s{A}, s{sG}, 12
    s_add_u32 s{A}, s{A}, s{sMI}
    s_lshl_b32 s{A}, s{A}, 5
    s_mul_i32 s{B}, s{HW}, {5*32*3072}
    s_add_u32 s{A}, s{A}, s{B}""")
    gate(CFG['gstart'])
    STAMP('mg')
    for s_ in range(5):
        for m_ in range(2):
            if 2*s_+m_==CFG['g2nd'][1]: gate(CFG['g2nd'][0]); STAMP('mg2')
            if 2*s_+m_>=CFG['mdep']: p(f"s_waitcnt vmcnt({CFG['mdep']-1})")
            p(f"buffer_load_dwordx4 {vr(D+8*s_+4*m_,4)}, v{aW_}, {S4((sWG,sWU)[m_])}, s{A} offen {CFG['mpol']}")
        if s_<4: p(f"s_add_u32 s{A}, s{A}, {32*3072}")
    p(f"s_mul_i32 s{B}, s{HW}, 12288\n{wr}:\nv_lshl_add_u32 v{vt}, v0, 4, s{B}")
    gate('DONE')
    p("s_waitcnt vmcnt(0)")
    for s_ in range(12): p(f"ds_write_b128 v{vt}, {vr(D+4*s_,4)} offset:{L_MW+s_*1024}")
    p(f"""s_lshl_b32 s{A}, s{HW}, 2
    s_add_u32 s{A}, s{A}, {F_MW}
    v_mov_b32 v{vt}, s{A}
    ds_write_b32 v{vt}, v{vt}
    s_waitcnt lgkmcnt(0)""")
    STAMP('mw')
    if CFG['htop']:
        p(f"""s_lshl_b32 s{A}, s{HW}, 5
        s_add_u32 s{A}, s{A}, s{sMI}
        s_cmp_lt_u32 s{A}, 12
        s_cbranch_scc1 L_htop""")
        n0=len(p.L)
        t=2; R=12; K2=20; K1=21; aC=22; C=sT+5
        ld="\n".join(f"buffer_load_dwordx2 {vr(R+2*i,2)}, v{aC}, {S4(sWS)}, s{B} offen offset:{i*1024} sc1" for i in range(4))
        lp=p.lab("hca"); ok=p.lab("hcaok")
        p(f"""L_htop:
        v_lshrrev_b32 v{t}, 3, v0
        v_and_b32 v{t+1}, 7, v0
        v_lshlrev_b32 v{t+2}, 3, v{t+1}
        v_lshl_add_u32 v{aC}, v{t}, 7, v{t+2}
        s_mov_b32 s{B}, {CA}
        v_bfe_i32 v{K2}, v0, 1, 1
        v_bfe_i32 v{K1}, v0, 0, 1
        v_not_b32 v{K2}, v{K2}
        v_not_b32 v{K1}, v{K1}
        v_lshlrev_b32 v{t+1}, 2, v{t+1}
        v_add_u32 v{aC+1}, {L_TOP}, v{t+1}
        s_mov_b32 s{C}, {SPIN}
        {lp}:
        {ld}
        s_waitcnt vmcnt(0)
        v_xor_b32 v{t}, v{R+1}, v{R+3}
        v_xor_b32 v{t+1}, v{R+5}, v{R+7}
        v_xor_b32 v{R+1}, s{sTAG}, v{R+1}
        v_xor_b32 v{R+5}, s{sTAG}, v{R+5}
        v_or3_b32 v{t}, v{t}, v{t+1}, v{R+1}
        v_or_b32 v{t}, v{t}, v{R+5}
        v_cmp_ne_u32 vcc, 0, v{t}
        s_nop 0
        s_cbranch_vccz {ok}""")
        spin(C,lp,ok,CFG['casl'])
        p(f"s_branch {lp}\n{ok}:")
        STAMP('car'); COUNT('ncar',C,SPIN)
        top8(R,K2,K1,t,t+2)
        p(f"ds_write_b32 v{aC+1}, v{R}")
        STAMP('htp')
        END()
        COLD.append("\n".join(p.L[n0:])); del p.L[n0:]
    p(f"{en}:")
def top8(R,K2,K1,y,tt):
    def clean(chs):
        seq=[]
        for (x,y_,t_) in chs:
            seq.append([f"v_max_u32_dpp v{y_}, v{x}, v{x} row_shl:4 row_mask:0xf bank_mask:0x5",
                        f"v_min_u32_dpp v{y_}, v{x}, v{x} row_shr:4 row_mask:0xf bank_mask:0xa",
                        None,
                        f"v_mov_b32_dpp v{t_}, v{y_} quad_perm:[2,3,0,1] row_mask:0xf bank_mask:0xf",
                        f"v_med3_u32 v{y_}, v{y_}, v{t_}, v{K2}",
                        None,
                        f"v_mov_b32_dpp v{t_}, v{y_} quad_perm:[1,0,3,2] row_mask:0xf bank_mask:0xf",
                        f"v_med3_u32 v{x}, v{y_}, v{t_}, v{K1}"])
        n=len(chs)
        p(f"s_nop {2-n}")
        for i in range(8):
            if seq[0][i] is None: p(f"s_nop {2-n}")
            else:
                for c in seq: p(c[i])
                if i==0 and n==1: p("s_nop 1")
                elif i==0: p("s_nop 0")
    dp="row_mask:0xf bank_mask:0xf"
    p(f"v_max_u32_dpp v{R}, v{R+2}, v{R} row_half_mirror {dp}\nv_max_u32_dpp v{R+4}, v{R+6}, v{R+4} row_half_mirror {dp}")
    clean([(R,y,tt),(R+4,y+1,tt+1)])
    p(f"s_nop 1\nv_max_u32_dpp v{R}, v{R+4}, v{R} row_half_mirror {dp}")
    clean([(R,y,tt)])
    p(f"s_nop 1\nv_max_u32_dpp v{R}, v{R}, v{R} row_mirror {dp}")
    clean([(R,y,tt)])
    for msk,sw in ((0xa,16),(0xc,32)):
        p(f"""s_nop 1
        v_mov_b32_dpp v{R}, v{R} row_half_mirror row_mask:{hex(msk)} bank_mask:0xf
        v_mov_b32 v{tt}, v{R}
        s_nop 1
        v_permlane{sw}_swap_b32 v{R}, v{tt}
        s_nop 0
        v_max_u32 v{R}, v{R}, v{tt}""")
        clean([(R,y,tt)])
def moe():
    t=vT; A=sT+7; B=sT+8; C=sT+17; sTHR=sT+14; sKQ=sT+3
    R=12; K2=20; K1=21; aC=22; AW=108
    BL=160
    p(f"""s_cmp_ge_u32 s{sMI}, 17
    s_cbranch_scc1 L_plain""")
    if not CFG['cae']: p(f"""v_lshrrev_b32 v{t}, 3, v0
    v_and_b32 v{t+1}, 7, v0
    v_lshlrev_b32 v{t+1}, 3, v{t+1}
    v_lshl_add_u32 v{aC}, v{t}, 7, v{t+1}""")
    p(f"s_mov_b32 s{B}, {CA}")
    ld="\n".join(f"buffer_load_dwordx2 {vr(R+2*i,2)}, v{aC}, {S4(sWS)}, s{B} offen offset:{i*1024} sc1" for i in range(4))
    aMF=4; aMW=5
    def getw():
        lds_wait(AW-aMF,t+10 if False else AW,C,'eq',0,0)
        STAMP('mwr')
        for s_ in range(12):
            for rd in range(2): p(f"ds_read_b64_tr_b16 {vr(AW+4*s_+2*rd,2)}, v{AW-aMW} offset:{L_MW+s_*1024+rd*512}")
    if not CFG['cae'] and not CFG['htop']: p(f"""s_cmp_lg_u32 s{sWAVE}, 0
    s_cbranch_scc1 L_nocal
    {ld}""")
    p(f"""L_nocal:
    v_bfe_i32 v{K2}, v0, 1, 1
    v_bfe_i32 v{K1}, v0, 0, 1
    v_not_b32 v{K2}, v{K2}
    v_not_b32 v{K1}, v{K1}
    s_add_u32 s{sKQ}, s{sWAVE}, {CFG['kqr']}
    s_and_b32 s{sKQ}, s{sKQ}, 3
    s_lshl_b32 s{A}, s{sKQ}, 2
    s_add_u32 s{A}, s{A}, {F_MW}
    v_mov_b32 v{AW-aMF}, s{A}
    s_mul_i32 s{A}, s{sKQ}, 12288
    v_lshl_add_u32 v{AW-aMW}, v0, 3, s{A}
    v_and_b32 v{t}, 7, v0
    v_lshlrev_b32 v{t}, 2, v{t}
    v_add_u32 v{AW-6}, {L_TOP}, v{t}
    {f"v_add_u32 v{AW-9}, {L_TOP}, v{t}" if CFG['ldma'] else ""}
    s_cmp_ge_u32 s{sMI}, 12
    s_cbranch_scc1 L_now""")
    if CFG['ldma']:
        p(f"""v_lshrrev_b32 v{t}, 3, v0
        v_lshlrev_b32 v{t}, 2, v{t}
        v_add_u32 v{AW-9}, {L_TOP}, v{t}
        v_and_b32 v{AW-7}, 7, v0
        v_lshrrev_b32 v{t}, 4, v0
        v_lshlrev_b32 v{t}, 4, v{t}
        v_lshl_add_u32 v{t}, v{AW-7}, 7, v{t}
        s_mul_i32 s{A}, s{sWAVE}, 3072
        s_add_u32 s{A}, s{A}, {L_RED+8192}
        v_add_u32 v{AW-8}, s{A}, v{t}
        v_lshlrev_b32 v{AW-7}, 4, v{AW-7}
        s_mov_b32 m0, s{A}""")
    getw()
    if CFG['htop']: p("s_branch L_topw2")
    lp=p.lab("ca"); ok=p.lab("caok"); md=p.lab("cam")
    p(f"""L_now:
    s_cmp_lg_u32 s{sWAVE}, 0
    s_cbranch_scc1 L_topw
    s_mov_b32 s{C}, {SPIN}
    {"s_waitcnt vmcnt(3)" if CFG['cae'] else ""}
    {"" if CFG['htop'] else f"s_branch {md}"}
    {lp}:
    {ld}
    {"s_waitcnt vmcnt(0)" if CFG['cae'] else ""}
    {md}:
    {"" if CFG['cae'] else "s_waitcnt vmcnt(0)"}
    v_xor_b32 v{t}, v{R+1}, v{R+3}
    v_xor_b32 v{t+1}, v{R+5}, v{R+7}
    v_xor_b32 v{R+1}, s{sTAG}, v{R+1}
    v_xor_b32 v{R+5}, s{sTAG}, v{R+5}
    v_or3_b32 v{t}, v{t}, v{t+1}, v{R+1}
    v_or_b32 v{t}, v{t}, v{R+5}
    v_cmp_ne_u32 vcc, 0, v{t}
    s_nop 0
    s_cbranch_vccz {ok}""")
    spin(C,lp,ok,CFG['casl'])
    if CFG['dasl']: p(f"s_cmp_lt_u32 s{sMI}, 12\ns_cbranch_scc1 {lp}\ns_sleep {CFG['dasl']}")
    p(f"s_branch {lp}\n{ok}:")
    STAMP('car'); COUNT('ncar',C,SPIN)
    top8(R,K2,K1,t,t+2)
    p(f"ds_write_b32 v{AW-6}, v{R}")
    if CFG['htop']: assert CFG['ldma']; p(f"s_branch L_top\nL_topw:\ns_waitcnt vmcnt(0)\nL_topw2:")
    elif CFG['ldma']: p(f"s_cmp_ge_u32 s{sMI}, 12\ns_cbranch_scc1 L_top\nL_topw:\ns_waitcnt vmcnt(0)")
    else: p(f"s_branch L_top\nL_topw:\ns_waitcnt vmcnt(0)")
    lds_wait(AW-9 if CFG['ldma'] else AW-6,R,C,'eq',-1,0)
    TOK=t+1; aR=t+2
    def deferred(tag):
        allrows=CFG['odf']>=(12 if tag[0]=='g' else 17 if tag=='d' else 99)
        p(f"""v_cmp_gt_u32 vcc, s{sTHR}, v{KEY}
        s_nop 0
        {'s_orn2_b64' if allrows else 's_and_b64'} exec, vcc, s[{sCAND}:{sCAND+1}]
        s_cbranch_scc0 L_nd{tag}""")
        out_store()
        p(f"L_nd{tag}:\ns_mov_b64 exec, -1")
    XM="s_mov_b32 exec_lo, 0x00ff00ff\ns_mov_b32 exec_hi, 0x00ff00ff" if CFG['xm'] else "s_mov_b64 exec, -1"
    if CFG['ldma']:
        lp=p.lab("gl"); ok=p.lab("glok")
        p(f"""s_cmp_ge_u32 s{sMI}, 12
        s_cbranch_scc1 L_top""")
        STAMP('top')
        p(f"""v_bfe_u32 v{TOK}, v{R}, 9, 5
        v_and_b32 v{aR}, 7, v{R}
        v_xor_b32 v{TOK}, 31, v{TOK}
        s_mul_i32 s{A}, s{sKQ}, 320
        v_lshl_add_u32 v{aR}, v{TOK}, 3, v{aR}
        s_add_u32 s{A}, s{A}, {CAND}
        v_mov_b32 v{t}, 2560
        s_sub_u32 s{B}, s{A}, 896
        v_mad_u32_u24 v{aR}, v{aR}, v{t}, v{AW-7}
        s_sub_u32 s{sT+4}, s{A}, 1792
        s_mov_b32 s{C}, {SPIN}
        {lp}:
        s_mov_b64 exec, -1
        buffer_load_dwordx4 v{aR}, {S4(sWS)}, s{A} offen sc1 lds
        buffer_load_dwordx4 v{aR}, {S4(sWS)}, s{B} offen offset:1024 sc1 lds
        s_mov_b32 exec_lo, 0x0f0f0f0f
        s_mov_b32 exec_hi, 0x0f0f0f0f
        buffer_load_dwordx4 v{aR}, {S4(sWS)}, s{sT+4} offen offset:2048 sc1 lds
        s_mov_b64 exec, -1
        v_readlane_b32 s{sTHR}, v{R}, 56
        s_lshl_b32 s{sT+5}, s{sWAVE}, 11
        s_add_u32 s{sT+5}, s{sT+5}, {L_RED}
        v_lshl_add_u32 v{t+3}, v0, 4, s{sT+5}
        s_mov_b32 exec_lo, 0x00ff00ff
        s_mov_b32 exec_hi, 0x00ff00ff""")
        for i in range(5):
            if i%2==0: p(f"s_waitcnt vmcnt({2-i//2})")
            p(f"ds_read_b128 {vr(BL+4*i,4)}, v{AW-8} offset:{(i>>1)*1024+(i&1)*64}")
        if CFG['asp']:
            G=20; U=24
            p("s_mov_b64 exec, -1")
            for s_ in range(5):
                p(f"s_waitcnt lgkmcnt({4-s_})")
                for m_,a_ in ((0,G),(1,U)):
                    p(f"v_mfma_f32_16x16x32_bf16 {vr(a_,4)}, {vr(AW+8*s_+4*m_,4)}, {vr(BL+4*s_,4)}, {vr(a_,4) if s_ else 0}")
                    if m_==0: p(f"v_max3_u32 v{t+4}, v{BL+4*s_}, v{BL+4*s_+2}, {'v%d'%(t+4) if s_ else 0}")
            p(f"""v_cmp_eq_u32 vcc, -1, v{t+4}
            s_nop 0
            s_and_b32 vcc_lo, vcc_lo, 0x00ff00ff
            s_and_b32 vcc_hi, vcc_hi, 0x00ff00ff
            s_or_b32 s{sT+5}, vcc_lo, vcc_hi
            s_cbranch_scc0 L_glok""")
        else: p(f"""s_waitcnt lgkmcnt(2)
        v_max3_u32 v{t+4}, v{BL}, v{BL+2}, v{BL+4}
        v_max3_u32 v{t+5}, v{BL+6}, v{BL+8}, v{BL+10}
        s_waitcnt lgkmcnt(0)
        v_max3_u32 v{t+4}, v{BL+12}, v{BL+14}, v{t+4}
        v_max3_u32 v{t+5}, v{BL+16}, v{BL+18}, v{t+5}
        v_max_u32 v{t+4}, v{t+4}, v{t+5}
        v_cmp_eq_u32 vcc, -1, v{t+4}
        s_nop 0
        s_cbranch_vccz L_glok""")
        spin(C,lp,"L_glok")
        p(f"s_branch {lp}")
    p("L_top:")
    STAMP('top')
    p(f"""v_bfe_u32 v{TOK}, v{R}, 3, 11
    v_sub_u32 v{TOK}, 2047, v{TOK}
    v_lshrrev_b32 v{t}, 6, v{TOK}
    v_and_b32 v{aR}, 7, v{R}
    v_lshl_add_u32 v{aR}, v{t}, 3, v{aR}
    v_mul_u32_u24 v{aR}, 2560, v{aR}
    v_lshrrev_b32 v{t}, 4, v0
    v_readlane_b32 s{sTHR}, v{R}, 7
    {"" if CFG['ldma'] else f"s_cmp_ge_u32 s{sMI}, 12"}
    {"s_branch" if CFG['ldma'] else "s_cbranch_scc1"} L_down""")
    if not CFG['ldma']: l_old(t,A,B,C,BL,aR,sKQ,sTHR,XM)
    else: p("L_glok:")
    STAMP('lr'); COUNT('nlr',C,SPIN)
    SP=CFG['asp'] and CFG['ldma']
    if CFG['xm'] and not SP: p("s_mov_b64 exec, -1")
    G=20; U=24; X=28
    for s_ in range(0 if SP else 5):
        for m_,a_ in ((0,G),(1,U)):
            p(f"v_mfma_f32_16x16x32_bf16 {vr(a_,4)}, {vr(AW+8*s_+4*m_,4)}, {vr(BL+4*s_,4)}, {vr(a_,4) if s_ else 0}")
    w0=p.lab("guw0")
    def hint(sa,va,wv=None):
        sk=p.lab("nohint")
        if wv is not None: p(f"s_cmp_lg_u32 s{sWAVE}, {wv}\ns_cbranch_scc1 {sk}")
        p(f"""s_lshl_b32 s{sa}, s{sG}, 5
        s_add_u32 s{sa}, s{sa}, s{sMI}
        s_lshl_b32 s{sa}, s{sa}, 2
        s_add_u32 s{sa}, s{sa}, {AH}
        v_mov_b32 v{va}, 0
        v_mov_b32 v{va+1}, s{sTAG}
        s_mov_b64 exec, 1""")
        dual([f"buffer_store_dword v{va+1}, v{va}, {S4(sWS)}, s{sa} offen"])
        p(f"s_mov_b64 exec, -1\n{sk}:")
    p(f"""s_cmp_eq_u32 s{sWAVE}, 0
    s_cbranch_scc1 {w0}
    {"" if SP else "s_nop 5"}
    ds_write_b128 v{t+3}, {vr(G,4)}
    ds_write_b128 v{t+3}, {vr(U,4)} offset:1024""")
    if CFG['ahp']==4: hint(B,60,2)
    p("s_waitcnt lgkmcnt(0)\ns_barrier")
    if CFG['ahp']==3: hint(B,60,2)
    if CFG['ldma']:
        nt=p.lab("noth")
        p(f"""s_xor_b32 s{B}, s{sWAVE}, 1
        s_or_b32 s{B}, s{sMI}, s{B}
        s_cbranch_scc1 {nt}
        v_mov_b32 v{t+4}, s{sTHR}
        v_mov_b32 v{t+5}, s{sTAG}
        s_lshl_b32 s{B}, s{sG}, 7
        s_add_u32 s{B}, s{B}, {TH}
        v_mov_b32 v{t+6}, 0
        s_mov_b64 exec, 1
        buffer_store_dwordx2 v[{t+4}:{t+5}], v{t+6}, {S4(sWS)}, s{B} offen sc1
        s_mov_b64 exec, -1
        {nt}:""")
    if CFG['ob2']: p("s_barrier")
    deferred('g1')
    END()
    p(f"""{w0}:
    s_mul_i32 s{A}, s{sG}, 12
    s_add_u32 s{A}, s{A}, s{sMI}
    s_lshl_b32 s{A}, s{A}, 8
    s_add_u32 s{A}, s{A}, {ACT}
    v_and_b32 v{t+4}, 7, v0
    v_lshlrev_b32 v{t+4}, 4, v{t+4}
    v_lshrrev_b32 v{t+5}, 5, v0
    v_lshl_add_u32 v{t+4}, v{t+5}, 7, v{t+4}
    v_bfe_u32 v{t+5}, v0, 4, 1
    v_lshl_add_u32 v{t+4}, v{t+5}, 3, v{t+4}
    s_barrier""")
    STAMP('gb')
    for w_ in range(1,4):
        for m_ in range(2): p(f"ds_read_b128 {vr(X+8*(w_-1)+4*m_,4)}, v{t+3} offset:{w_*2048+m_*1024}")
    p(f"s_mov_b32 s{B}, {hex(f2u(-math.log2(math.e)))}")
    for w_ in range(3):
        p(f"s_waitcnt lgkmcnt({4-2*w_})")
        for k in range(4): p(f"v_pk_add_f32 {vr(G+2*k,2)}, {vr(G+2*k,2)}, {vr(X+8*w_+2*k,2)}")
    p(f"""v_cvt_pk_bf16_f32 v{X}, v{G}, v{G+1}
    v_cvt_pk_bf16_f32 v{X+1}, v{G+2}, v{G+3}
    v_cvt_pk_bf16_f32 v{X+2}, v{U}, v{U+1}
    v_cvt_pk_bf16_f32 v{X+3}, v{U+2}, v{U+3}""")
    for k in range(4): p(f"v_lshlrev_b32 v{G+2*k}, 16, v{X+k}\nv_and_b32 v{G+2*k+1}, 0xffff0000, v{X+k}")
    for k in range(4): p(f"v_mul_f32 v{X+k}, s{B}, v{G+k}")
    for k in range(4): p(f"v_exp_f32 v{X+k}, v{X+k}")
    if CFG['ahp']==2: hint(B,60)
    for k in range(4): p(f"v_add_f32 v{X+k}, 1.0, v{X+k}")
    for k in range(4): p(f"v_rcp_f32 v{X+k}, v{X+k}")
    for k in range(4): p(f"v_mul_f32 v{G+k}, v{G+k}, v{X+k}")
    if CFG['ahp']==1: hint(B,60)
    p(f"v_cvt_pk_bf16_f32 v{X}, v{G}, v{G+1}\nv_cvt_pk_bf16_f32 v{X+1}, v{G+2}, v{G+3}")
    for k in range(2): p(f"v_lshlrev_b32 v{G+2*k}, 16, v{X+k}\nv_and_b32 v{G+2*k+1}, 0xffff0000, v{X+k}")
    p(f"""v_pk_mul_f32 {vr(G,2)}, {vr(G,2)}, {vr(U,2)}
    v_pk_mul_f32 {vr(G+2,2)}, {vr(G+2,2)}, {vr(U+2,2)}
    v_cvt_pk_bf16_f32 v{X}, v{G}, v{G+1}
    v_cvt_pk_bf16_f32 v{X+1}, v{G+2}, v{G+3}
    s_mov_b32 exec_lo, 0x00ff00ff
    s_mov_b32 exec_hi, 0x00ff00ff
    buffer_store_dwordx2 {vr(X,2)}, v{t+4}, {S4(sWS)}, s{A} offen sc1""")
    if CFG['ahint'] and CFG['ahp']==0:
        p(f"""s_lshl_b32 s{A}, s{sG}, 5
        s_add_u32 s{A}, s{A}, s{sMI}
        s_lshl_b32 s{A}, s{A}, 2
        s_add_u32 s{A}, s{A}, {AH}
        v_mov_b32 v{t+4}, 0
        v_mov_b32 v{t+5}, s{sTAG}
        s_mov_b64 exec, 1""")
        dual([f"buffer_store_dword v{t+5}, v{t+4}, {S4(sWS)}, s{A} offen"])
    p("s_mov_b64 exec, -1")
    STAMP('act')
    if CFG['ob2']: p("s_barrier")
    deferred('g0')
    END()
    HL=20; Y=24; X=28; SG=t+8; aO2=t+9
    p(f"""L_down:
    v_lshl_add_u32 v{aR}, v{t}, 3, v{aR}
    v_mul_u32_u24 v{aO2}, 1280, v{TOK}
    v_lshl_add_u32 v{aO2}, v{t}, 3, v{aO2}
    v_and_b32 v{t+4}, 7, v0
    v_lshlrev_b32 v{t+4}, 4, v{t+4}
    v_lshl_add_u32 v{t+4}, v{t}, 7, v{t+4}
    {f"v_bfe_u32 v{t+5}, v0, 3, 1" if CFG['a2'] else ""}
    {f"v_lshl_add_u32 v{t+4}, v{t+5}, 9, v{t+4}" if CFG['a2'] else ""}
    s_mul_i32 s{sT+1}, s{sG}, 5
    s_add_u32 s{sT+1}, s{sT+1}, s{sMI}
    s_sub_u32 s{sT+1}, s{sT+1}, 12
    s_lshl_b32 s{sT+1}, s{sT+1}, 5
    s_add_u32 s{sT+2}, s{sT+1}, {CAND}
    s_mul_i32 s{A}, s{sKQ}, 6144
    s_add_u32 s{A}, s{A}, {ACT}
    s_add_u32 s{B}, s{A}, 4096""")
    ldh=f"buffer_load_dwordx2 {vr(HL,2)}, v{aR}, {S4(sWS)}, s{sT+2} offen sc1\nbuffer_load_dwordx2 {vr(HL+2,2)}, v{aR}, {S4(sWS)}, s{sT+2} offen offset:1280 sc1"
    if CFG['hll']: p(f"s_cmp_lg_u32 s{sWAVE}, 0\ns_cbranch_scc1 L_nohl\n{XM}\n{ldh}\ns_mov_b64 exec, -1\nL_nohl:")
    else: p(ldh)
    deferred('d')
    p(f"""v_ashrrev_i32 v{SG}, 31, v{R}
    v_not_b32 v{SG}, v{SG}
    v_or_b32 v{SG}, 0x80000000, v{SG}
    v_xor_b32 v{SG}, v{SG}, v{R}
    v_and_b32 v{SG}, 0xffff0000, v{SG}
    v_mul_f32 v{SG}, {hex(f2u(-math.log2(math.e)))}, v{SG}
    v_exp_f32 v{SG}, v{SG}
    s_lshl_b32 s{C}, s{sWAVE}, 10
    v_add_f32 v{SG}, 1.0, v{SG}
    v_rcp_f32 v{SG}, v{SG}
    s_add_u32 s{C}, s{C}, {L_RED}
    v_lshl_add_u32 v{t+3}, v0, 4, s{C}""")
    bf16r(SG,SG)
    lp=p.lab("hl"); ok=p.lab("hlok"); md=p.lab("hlm")
    if not CFG['hll']: p(f"""s_mov_b32 s{C}, {SPIN}
    s_branch {md}
    {lp}:
    {ldh}
    {md}:
    s_waitcnt vmcnt(0)
    v_max_u32 v{t+5}, v{HL}, v{HL+2}
    v_cmp_eq_u32 vcc, -1, v{t+5}
    s_nop 0
    {'s_branch' if CFG['xp'] else 's_cbranch_vccz'} {ok}""")
    if not CFG['hll']:
        spin(C,lp,ok)
        p(f"s_branch {lp}\n{ok}:")
    getw()
    ld="\n".join([f"buffer_load_dwordx4 {vr(BL+4*i,4)}, v{t+4}, {S4(sWS)}, s{A if i<8 else B} offen offset:{(i%8)*512} sc1" for i in range(12)])
    if CFG['ahint']:
        p(f"""v_min_u32 v{t+6}, {CFG['ahint']-1}, v0
        v_lshlrev_b32 v{t+6}, 2, v{t+6}
        s_lshl_b32 s{sT+4}, s{sG}, 7
        s_add_u32 s{sT+4}, s{sT+4}, {AH}""")
        flag_poll(t+6,t+5,sT+4,C)
        STAMP('ah')
    lp=p.lab("al"); ok=p.lab("alok")
    if CFG['a2']:
        Y2=BL+24
        ld="\n".join([f"buffer_load_dwordx4 {vr(BL+4*i,4)}, v{t+4}, {S4(sWS)}, s{A if i<4 else B} offen offset:{(i%4)*1024} sc1" for i in range(6)])
        if CFG['asp']:
            p(f"s_mov_b32 s{C}, {SPIN}\n{lp}:\n{ld}\ns_waitcnt lgkmcnt(0)")
            for i in range(6):
                p(f"s_waitcnt vmcnt({5-i})")
                for s_ in (2*i,2*i+1):
                    y=(Y,Y2)[s_&1]
                    p(f"v_mfma_f32_16x16x32_bf16 {vr(y,4)}, {vr(AW+4*s_,4)}, {vr(BL+4*(s_>>1),4)}, {vr(y,4) if s_>1 else 0}")
                    if s_&1==0: p(f"v_max3_u32 v{t+5}, v{BL+4*i}, v{BL+4*i+2}, {'v%d'%(t+5) if i else 0}")
            p(f"""v_cmp_eq_u32 vcc, -1, v{t+5}
            s_nop 0
            s_cbranch_vccz {ok}""")
            spin(C,lp,ok,CFG['acsl'])
            p(f"s_branch {lp}\n{ok}:")
            STAMP('ar'); COUNT('nar',C,SPIN)
            p("s_nop 4")
        else: p(f"""s_mov_b32 s{C}, {SPIN}
        {lp}:
        {ld}
        s_waitcnt vmcnt(3)
        v_max3_u32 v{t+5}, v{BL}, v{BL+2}, v{BL+4}
        v_max3_u32 v{t+6}, v{BL+6}, v{BL+8}, v{BL+10}
        s_waitcnt vmcnt(0)
        v_max3_u32 v{t+5}, v{BL+12}, v{BL+14}, v{t+5}
        v_max3_u32 v{t+6}, v{BL+16}, v{BL+18}, v{t+6}
        v_max3_u32 v{t+5}, v{BL+20}, v{BL+22}, v{t+5}
        v_max_u32 v{t+5}, v{t+5}, v{t+6}
        v_cmp_eq_u32 vcc, -1, v{t+5}
        s_waitcnt lgkmcnt(0)
        s_cbranch_vccz {ok}""")
        if not CFG['asp']:
            spin(C,lp,ok,CFG['acsl'])
            p(f"s_branch {lp}\n{ok}:")
            STAMP('ar'); COUNT('nar',C,SPIN)
            for s_ in range(12):
                y=(Y,Y2)[s_&1]
                p(f"v_mfma_f32_16x16x32_bf16 {vr(y,4)}, {vr(AW+4*s_,4)}, {vr(BL+4*(s_>>1),4)}, {vr(y,4) if s_>1 else 0}")
            p("s_nop 7")
        for k in range(4): p(f"v_add_f32_dpp v{Y+k}, v{Y2+k}, v{Y+k} row_ror:8 row_mask:0xf bank_mask:0xf")
    else: act_old(t,A,B,C,BL,AW,Y,XM,ld,lp,ok)
    w0=p.lab("dnw0")
    p(f"""s_cmp_eq_u32 s{sWAVE}, 0
    s_cbranch_scc1 {w0}
    {"" if CFG['a2'] else "s_nop 5"}
    ds_write_b128 v{t+3}, {vr(Y,4)}
    s_waitcnt lgkmcnt(0)
    s_barrier""")
    END()
    p(f"{w0}:")
    if CFG['hll']:
        p(f"""{XM}
        v_max_u32 v{t+5}, v{HL}, v{HL+2}
        v_cmp_eq_u32 vcc, -1, v{t+5}
        s_mov_b32 s{C}, {SPIN}
        s_cbranch_vccnz L_hlw
        L_hlr:
        s_mov_b64 exec, -1""")
        COLD.append(f"""L_hlw:
        s_sub_u32 s{C}, s{C}, 1
        s_cbranch_scc1 L_hlr
        {ldh}
        s_waitcnt vmcnt(0)
        v_max_u32 v{t+5}, v{HL}, v{HL+2}
        v_cmp_eq_u32 vcc, -1, v{t+5}
        s_nop 0
        s_cbranch_vccnz L_hlw
        s_branch L_hlr""")
    p(f"""v_lshlrev_b32 v{X+12}, 16, v{HL}
    v_and_b32 v{X+13}, 0xffff0000, v{HL}
    v_lshlrev_b32 v{X+14}, 16, v{HL+1}
    v_and_b32 v{X+15}, 0xffff0000, v{HL+1}
    v_lshlrev_b32 v{X+16}, 16, v{HL+2}
    v_and_b32 v{X+17}, 0xffff0000, v{HL+2}
    v_lshlrev_b32 v{X+18}, 16, v{HL+3}
    v_and_b32 v{X+19}, 0xffff0000, v{HL+3}
    s_barrier""")
    STAMP('db')
    for w_ in range(1,4): p(f"ds_read_b128 {vr(X+4*(w_-1),4)}, v{t+3} offset:{w_*1024}")
    for w_ in range(3):
        p(f"s_waitcnt lgkmcnt({2-w_})")
        for k in range(2): p(f"v_pk_add_f32 {vr(Y+2*k,2)}, {vr(Y+2*k,2)}, {vr(X+4*w_+2*k,2)}")
    def rnd():
        p(f"v_cvt_pk_bf16_f32 v{X}, v{Y}, v{Y+1}\nv_cvt_pk_bf16_f32 v{X+1}, v{Y+2}, v{Y+3}")
    def unp():
        for k in range(2): p(f"v_lshlrev_b32 v{Y+2*k}, 16, v{X+k}\nv_and_b32 v{Y+2*k+1}, 0xffff0000, v{X+k}")
    rnd(); unp()
    for k in range(4): p(f"v_mul_f32 v{Y+k}, v{SG}, v{Y+k}")
    rnd(); unp()
    for k in range(2): p(f"v_pk_add_f32 {vr(Y+2*k,2)}, {vr(Y+2*k,2)}, {vr(X+12+2*k,2)}")
    rnd(); unp()
    for k in range(2): p(f"v_pk_add_f32 {vr(Y+2*k,2)}, {vr(Y+2*k,2)}, {vr(X+16+2*k,2)}")
    rnd()
    p(f"""s_mov_b32 exec_lo, 0x00ff00ff
    s_mov_b32 exec_hi, 0x00ff00ff
    buffer_store_dwordx2 {vr(X,2)}, v{aO2}, {S4(sOUT)}, s{sT+1} offen {CFG['fpol']}""")
    STAMP('fin')
    END()
    lp=p.lab("th"); ok=p.lab("thok")
    p("L_plain:")
    if CFG['cpre']:
        sk=p.lab("nocp")
        p(f"""s_sub_u32 s{A}, s{sMI}, {CFG['cpb']}
        s_lshl_b32 s{A}, s{A}, 2
        s_add_u32 s{A}, s{A}, s{sWAVE}
        s_cmp_ge_u32 s{A}, 32
        s_cbranch_scc1 {sk}""")
        if CFG['cpre']==1:
            p(f"s_lshl_b32 s{B}, s{A}, 7\ns_add_u32 s{B}, s{B}, {CA+4}\nv_mov_b32 v{t}, 0")
            flag_poll(t,t+1,B,C,sleep=CFG['cpsl'])
        l2=p.lab("cp"); o2=p.lab("cpok")
        p(f"""s_mul_i32 s{B}, s{A}, 20480
        s_add_u32 s{B}, s{B}, {CAND+36}
        v_lshrrev_b32 v{t}, 5, v0
        v_mul_u32_u24 v{t}, 1280, v{t}
        v_mad_u32_u24 v{t}, v0, 40, v{t}
        s_mov_b32 s{C}, 64
        {l2}:
        buffer_load_dword v{t+1}, v{t}, {S4(sWS)}, s{B} offen sc1
        s_waitcnt vmcnt(0)
        v_cmp_eq_u32 vcc, -1, v{t+1}
        s_nop 0
        s_cbranch_vccz {o2}""")
        spin(C,l2,o2,CFG['cpsl'])
        p(f"s_branch {l2}\n{o2}:")
        STAMP('cp')
        p(f"{sk}:")
    p(f"""s_lshl_b32 s{B}, s{sG}, 7
    s_add_u32 s{B}, s{B}, {TH}
    v_mov_b32 v{t}, 0
    s_mov_b32 s{C}, {SPIN}
    {lp}:
    s_sleep 16
    buffer_load_dwordx2 v[{t+2}:{t+3}], v{t}, {S4(sWS)}, s{B} offen sc1
    s_waitcnt vmcnt(0)
    v_cmp_ne_u32 vcc, s{sTAG}, v{t+3}
    s_nop 0
    s_cbranch_vccz {ok}""")
    spin(C,lp,ok)
    p(f"""s_branch {lp}
    {ok}:
    v_readfirstlane_b32 s{sTHR}, v{t+2}
    s_nop 1""")
    deferred('p')
    STAMP('fin')

def l_old(t,A,B,C,BL,aR,sKQ,sTHR,XM):
    p(f"""v_lshl_add_u32 v{aR}, v{t}, 4, v{aR}
    s_mul_i32 s{A}, s{sKQ}, 320
    s_add_u32 s{A}, s{A}, {CAND}""")
    ld="\n".join(f"buffer_load_dwordx4 {vr(BL+4*i,4)}, v{aR}, {S4(sWS)}, s{A} offen offset:{i*64} sc1" for i in range(5))
    lp=p.lab("gl"); ok=p.lab("glok"); md=p.lab("glm"); nt=p.lab("noth")
    if CFG['xm']: p(XM)
    p(ld)
    p(f"""s_or_b32 s{B}, s{sMI}, s{sWAVE}
    s_cbranch_scc1 {nt}
    v_mov_b32 v{t+4}, s{sTHR}
    v_mov_b32 v{t+5}, s{sTAG}
    s_lshl_b32 s{B}, s{sG}, 7
    s_add_u32 s{B}, s{B}, {TH}
    v_mov_b32 v{t+6}, 0
    s_mov_b64 exec, 1
    buffer_store_dwordx2 v[{t+4}:{t+5}], v{t+6}, {S4(sWS)}, s{B} offen sc1
    {nt}:
    s_mov_b64 exec, -1
    s_lshl_b32 s{B}, s{sWAVE}, 11
    s_add_u32 s{B}, s{B}, {L_RED}
    v_lshl_add_u32 v{t+3}, v0, 4, s{B}
    {XM}
    s_mov_b32 s{C}, {SPIN}
    s_branch {md}
    {lp}:
    {ld}
    {md}:
    s_waitcnt vmcnt(0) lgkmcnt(0)
    v_max3_u32 v{t+4}, v{BL}, v{BL+2}, v{BL+4}
    v_max3_u32 v{t+5}, v{BL+6}, v{BL+8}, v{BL+10}
    v_max3_u32 v{t+4}, v{BL+12}, v{BL+14}, v{t+4}
    v_max3_u32 v{t+5}, v{BL+16}, v{BL+18}, v{t+5}
    v_max_u32 v{t+4}, v{t+4}, v{t+5}
    v_cmp_eq_u32 vcc, -1, v{t+4}
    s_nop 0
    {'s_branch' if 'nocand' in CFG['xp'] else 's_cbranch_vccz'} {ok}""")
    spin(C,lp,ok)
    p(f"s_branch {lp}\n{ok}:")
def act_old(t,A,B,C,BL,AW,Y,XM,ld,lp,ok):
    p(f"""{XM}
    s_mov_b32 s{C}, {SPIN}
    {lp}:
    {ld}
    s_waitcnt vmcnt(8)
    v_max3_u32 v{t+5}, v{BL}, v{BL+2}, v{BL+4}
    v_max3_u32 v{t+6}, v{BL+6}, v{BL+8}, v{BL+10}
    v_max3_u32 v{t+5}, v{BL+12}, v{BL+14}, v{t+5}""")
    for i in range(4,12):
        if i%4==0: p(f"s_waitcnt vmcnt({8-i})")
        p(f"v_max3_u32 v{t+5+(i&1)}, v{BL+4*i}, v{BL+4*i+2}, v{t+5+(i&1)}")
    p(f"""v_max_u32 v{t+5}, v{t+5}, v{t+6}
    v_cmp_eq_u32 vcc, -1, v{t+5}
    s_waitcnt lgkmcnt(0)
    s_cbranch_vccz {ok}""")
    spin(C,lp,ok,CFG['acsl'])
    p(f"s_branch {lp}\n{ok}:")
    STAMP('ar'); COUNT('nar',C,SPIN)
    if CFG['xm']: p("s_mov_b64 exec, -1")
    for s_ in range(12): p(f"v_mfma_f32_16x16x32_bf16 {vr(Y,4)}, {vr(AW+4*s_,4)}, {vr(BL+4*s_,4)}, {vr(Y,4) if s_ else 0}")

def build():
    prologue()
    steps=loader()
    helperA(steps)
    p("s_branch L_mw")
    helperB(steps)
    p("L_mw:")
    moe_weights()
    END()
    if CFG['lay']: p(PG)
    p("L_comp:")
    if CFG['prio']: p(f"s_setprio {CFG['prio']}")
    p("s_waitcnt lgkmcnt(0)")
    STAMP('start')
    prologue2(1)
    if CFG['cpf']: code_pf()
    if CFG['cpa']==2: cp_rest(sT+18); p("s_mov_b64 exec, -1")
    if CFG['tlb']==1:
        for k in range(12):
            p(f"s_mov_b32 s{sT+18}, {k*0x200000+0x1000}\ns_load_dword s100, s[{sWS}:{sWS+1}], s{sT+18}")
    if CFG['tlb']==2:
        p(f"v_lshlrev_b32 v228, 19, v0\nv_min_u32 v228, 0x1780000, v228\nbuffer_load_dword v229, v228, {S4(sWS)}, 0 offen")
    srd(((sX,2621440),))
    if CFG['hclr'] or CFG['lclr']: assert CFG['clr']==0 and CFG['odn'] and CFG['wsp']; CFG['clate']=9
    if CFG['clr']==0 and CFG['clate']==0: clears(0); clears(1)
    STAMP('c1')
    att_setup()
    STAMP('c2')
    if CFG['clr']==0 and CFG['clate']==1: clears(0); clears(1)
    gemm_setup()
    STAMP('c3')
    if CFG['clr']: clears(0)
    if CFG['clr']==0 and CFG['clate']==2: clears(0); clears(1)
    STAMP('c4')
    p("s_waitcnt lgkmcnt(0)")
    STAMP('c5')
    mktag()
    p(f"""    s_cmp_eq_u32 s{sLC}, 15
    s_cbranch_scc1 L_gS
    s_cmp_eq_u32 s{sTY}, 2
    s_cbranch_scc1 L_gV""")
    if CFG['lay']:
        p("s_branch L_gT")
        n0=len(p.L)
        p(PG)
        if CFG['pade']: p("L_padT:\ns_branch L_comp")
        p("L_gT:"); gemm_loop('T'); gemm_epi('T'); p("s_branch L_att")
        if CFG['dcs']: cs_block('T')
        n1=len(p.L)
        p("L_gS:"); idle_gemm(); p("s_branch L_att")
        COLD.insert(0,"\n".join(p.L[n1:])); del p.L[n1:]
        if CFG['pade']: p("L_padV:\ns_branch L_comp")
        if CFG['g16'] and CFG['gpg']: p(PG)
        p("L_gV:"); gemm_loop('V'); gemm_epi('V'); p("s_branch L_att")
        if CFG['dcs']: cs_block('V')
        G_=p.L[n0:]; del p.L[n0:]
        p("L_att:")
        att_go()
        p.L+=G_
    else:
        gemm_loop('T'); gemm_epi('T'); p("s_branch L_att")
        p("L_gS:"); idle_gemm(); p("s_branch L_att")
        p("L_gV:"); gemm_loop('V'); gemm_epi('V')
        p("L_att:")
        att_go()
    for w in range(4): att_variant(w)
    att_fin()
    wo_main()
    if CFG['stop']<=3:
        p(f"s_and_b64 exec, s[{sCAND}:{sCAND+1}], -1\ns_cbranch_scc0 L_noo2"); out_store(); p("L_noo2:")
    else: moe()
    END()
    att_cold()
    SL={3:('L_og0:','L_og1:','L_og3:'),2:('L_og5:','L_og7:'),1:('L_wo2w:','L_ldw:')+(() if CFG['hs2'] else ('L_hlw:',))} if CFG['cslot'] and CFG['lay'] else {}
    for w in range(4):
        i=p.L.index(f";@slot{w}"); mv=[c for c in COLD if c.strip().startswith(SL.get(w,('-',)))]
        q=P()
        for c in mv: q(c); COLD.remove(c)
        p.L[i:i+1]=q.L
    for c in COLD: p(c)
    p("L_exit:\ns_endpgm")
build()
errs=check(p.L)
hdr=f"""; generated by work/k/gen.py (own generator script)
; @launch grid=(256,1,1) block=(512,1,1) lds=163840
.amdgcn_target "amdgcn-amd-amdhsa--gfx950"
.text
.globl {NAME}_kernel
{".p2align 12" if CFG['pal'] else ""}
{f".fill {(CFG['pal']-1)*64}, 4, 0xbf810000" if CFG['pal']>1 else ""}
.p2align 8
.type {NAME}_kernel,@function
{NAME}_kernel:
"""
ftr=f""".section .rodata,"a"
.p2align 6
.amdhsa_kernel {NAME}_kernel
  .amdhsa_next_free_vgpr 256
  .amdhsa_next_free_sgpr 102
  .amdhsa_accum_offset 256
  .amdhsa_group_segment_fixed_size 0
  .amdhsa_kernarg_size 88
  .amdhsa_user_sgpr_count 2
  .amdhsa_user_sgpr_kernarg_segment_ptr 1
  .amdhsa_system_sgpr_workgroup_id_x 1
.end_amdhsa_kernel
"""
import align8
def fmt(L):
    q=P(); q.L=L; return q.text()
if CFG['al8']: print("align8",align8.align(p.L,hdr,ftr,fmt,sys.argv[1]+".tmp.s",CFG['al8']))
if CFG.get('alst'): print(align8.stat(p.L,hdr,ftr,fmt,sys.argv[1]+".tmp.s"))
open(sys.argv[1],"w").write(hdr+p.text()+ftr)

import subprocess
r=subprocess.run(["clang","-x","assembler","-target","amdgcn-amd-amdhsa","-mcpu=gfx950",sys.argv[1],"-o",sys.argv[1]+".co"],capture_output=True,text=True)
if r.returncode: print(r.stderr[:3000]); sys.exit(1)
r=subprocess.run(["python3","cdna_unwritten_srd_check.py",sys.argv[1]+".co"],capture_output=True,text=True)
if r.returncode: print("SRDCHECK:",r.stdout[-3000:],r.stderr[-1000:])
r=subprocess.run("llvm-size -A "+sys.argv[1]+".co | grep text",shell=True,capture_output=True,text=True); print(r.stdout.strip())
if errs:
    import os; os.remove(sys.argv[1]); sys.exit(1)
```

```python
import sys, math
from asmlib import *
NAME="sequential_preLN__sliding_block__moe_arch_mod__prompt"
CFG=dict(eah=0, cse=0, csc=0, csv=0, csp=(4,5,6,7,8,9,10,11), g16x=1, hpr=0, hme=2, sf2=4, cpn=4, cpv=0, sfe=0, gpg=1, g16r=(1,)*12, g16c=(13,15), g16b=3, dcs=0, dcg=7, g16=1, hpol='sc1', ospol='sc1', qth=(), qthn=0, qb1=0, epi2=2, epo='cb', hs2p=0, hs2=0, hs2u=2, hs2g='FS', hs2s=1, lclr=0, lcu=3, lcs=8, lcg='G2', htop=0, cae=0, jb=1, cslot=1, pks=4, lay=1, padk=0, pade=0, cpa=1, cpe=8, epf=1, b1p=0, pal=1, ahp=0, fpol='sc1', xdma=1, prm=25, ob2=0, psq=1, ldma=1, asp=1, a2=1, cpre=0, cpsl=2, cpb=17, hsl2=2, ogate=4, honly=0, hsp=0, wpause=0, hdef=-1, hdg='FS', xru=17, xrd=0, ahint=12, ptc='', chint=0, dtn=1, hll=1, xm=1, kqr=0, dasl=0, dth=0, odf=0, mrm=1, g2nd=('O1',10), smx=2, smd=0, hst=0, wgf='M', shf=1, gm='no', gr='G1', tlb=0, rld=0, al8=0, ldp='sc1', ldo='sc1', wsp=1, wla2=7, ogr2=(1,2,2,2,3), orem2=(6,1), wwe2=2, smw=(), smo=(3,6), mtr=(0,10), mth=0, wburst=0, mtg='RL', wts=99, wsplit=1, wnoa=0, hclr=0, cst=(3,3), hsent=0, hkv=0, hgate='G1', hrs=0, osent=1, ogr=(2,3,5,2,3,5), opoll='half', osl=(0,0), oini=10, orem=25, clate=1, oprb=0, odn=1, hstep=6, qpol='', apol='', cpol='', wb=(), wbs=31, ht=0, hpoll=0, hsl=1, wog2=0, hearly=0, stg=6, stb=0, ord='xw,xw,xw,xw,xw,xw,xw,xw,xw,xw', amp=None, wose=2, late1=1, sdef=(1,1,1,1), pt2=8, qpair2=0, nacc=8, sfirst=1, prio=0, smode='dot', sfill=(), acsl=0, casl=0, xp=(), dw3=0, wla=7, wwe=2, dgate='PS', dstart='O1', gstart='WE', mdep=10, ddep=12, qpair=0, mpair=0, wpair=0, xnt=0, wnt=0, tpol2='', wtw='no', mtw='w3', wothr1=6, mb=(6,6), mg=('WOD','PR','PR','O1'), mpf=0, mgate='b3', hsplit=0, cpf=0, npf=(0,)*10, wogs=5, clr=0, wot=(), wtpol='', seqs=None, xpol='nt', wpol='', tpol='', wopol='', mpol='', cal=None, opol='', st=['start','b0|hb0','gend|hb9','E1|hE1','st|halo|clr','fl|g2|wo','fseen|h2','kv','aend','ost'], pt=8, wothr=12, wogate=1, h2sl=1, noh2=0, nowo=0, wos=(0,0,0), sched=(1,2,1,1,1,1,1,0,0,0), dbg=0, stop=99, prof=0, rot=('0055','36094758','05162738'), force_slow=0, noclr=0, pre=2, ldst=0, nomfma=0, nohello=0)
for a in sys.argv[2:]:
    k,v=a.split("="); CFG[k]=eval(v)
QB,KB,VB,KH,VH,OB=[i*0x280000 for i in range(6)]
CAND=0xF00000
PS=0xFA0000
CA=0xFE0000
ACT=0xFE1000
HB=0x1000000
PROF=0x1300000
H1=0x1280000; H2=0x1281000; EPO=0x1282000; TH=0x1283000; AH=0x1284000; CH_=0x1285000; H2B=0x1288000
STP=0x1680000; STX=0x1780000
FO=0x1700000; OB2=0x1400000; FL=0x12A0000; FH=0x1740000
CSX=0x12C0000
L_STG=0; L_KV=10240; L_WO=55296; L_MISC=157696; L_MW=0
L_CS=L_MISC
L_SA=L_MISC+512
L_SR=L_SA+1024
L_MODE=L_SR+512
L_FLG=L_MODE+64
F_G1,F_G2,F_H2,F_STG,F_SCP,F_DONE,F_WOR,F_MW=[L_FLG+4*i for i in (0,1,2,4,8,9,10,12)]
L_SWS=L_FLG+80; F_O1=L_FLG+44; F_WOD=L_FLG+64; F_PR=L_FLG+68; F_WO2=L_FLG+72; F_PS=L_FLG+76; F_FS=L_FLG+84; F_LD=L_FLG+88; F_X=L_FLG+96; F_M=L_FLG+112; F_HR=L_FLG+120; F_RI=L_FLG+124; F_OWN=L_FLG+92
F_CC=L_FLG+12; ND=5 if CFG['lclr'] else 4
L_KEYS=L_FLG+128
L_CA=L_KEYS+256; L_TOP=L_CA+64
L_SM=131072
L_RED=L_WO
sX,sW,sWO,sWG,sWU,sWD,sOUT,sWS,sDBG,sWR=[4+4*i for i in range(10)]
sWAVE,sG,sSLOT,sRQ,sHH,sRB,sCT,sMODE,sEP,sTAG=range(44,54)
sT=54
sMI=39
sBK=3
sLO=76
sPROF=80
p=P()
COLD=[]
CALI=lambda: 's_memtime' if CFG['cal'][1]>20000 else 's_memrealtime'
def STAMP(name,w=0):
    if CFG['amp']:
        a=CFG['amp']
        if name=='entry': p(f"s_memrealtime s[{sPROF+8}:{sPROF+9}]")
        for k in (0,1):
            if name==a[k]:
                p(f"{'s_memrealtime' if a[2]=='r' else 's_memtime'} s[{sPROF+2*k}:{sPROF+2*k+1}]")
                if w: p("s_waitcnt lgkmcnt(0)")
    if CFG['cal'] and name in CFG['cal'][0].split('|'):
        p(f"{CALI()} s[{sPROF}:{sPROF+1}]")
        if w: p("s_waitcnt lgkmcnt(0)")
    i=[k for k,n in enumerate(CFG['st']) if name in n.split('|')]
    if CFG['prof'] and i:
        i=i[0]
        p(f"{'s_memrealtime' if CFG['prof']==2 else 's_memtime'} s[{sPROF+2*i}:{sPROF+2*i+1}]")
        if w: p("s_waitcnt lgkmcnt(0)")
def COUNT(name,cnt,full):
    i=[k for k,n in enumerate(CFG['st']) if name in n.split('|')]
    if CFG['prof'] and i:
        r=sPROF+2*i[0]
        p(f"s_waitcnt lgkmcnt(0)\ns_sub_u32 s{r}, {full}, s{cnt}\ns_mul_i32 s{r}, s{r}, 100\ns_add_u32 s{r}, s{r}, s{sPROF}")
def PROFDUMP():
    if not CFG['prof']: return
    p("s_waitcnt vmcnt(0) lgkmcnt(0)")
    p("s_mov_b64 exec, -1")
    for i in range(10): p(f"v_mov_b32 v{2+i}, s{sPROF+2*i}")
    p(f"""s_lshl_b32 s{sT}, s2, 3
    s_add_u32 s{sT}, s{sT}, s{sWAVE}
    s_lshl_b32 s{sT}, s{sT}, 6
    s_add_u32 s{sT}, s{sT}, {PROF}
    v_mov_b32 v1, 0
    s_mov_b64 exec, 1
    buffer_store_dwordx4 v[2:5], v1, s[{sWS}:{sWS+3}], s{sT} offen
    buffer_store_dwordx4 v[6:9], v1, s[{sWS}:{sWS+3}], s{sT} offen offset:16
    s_getpc_b64 s[{sT+2}:{sT+3}]
    v_mov_b32 v12, s{sT+2}
    v_mov_b32 v13, s{sT+3}
    buffer_store_dwordx4 v[10:13], v1, s[{sWS}:{sWS+3}], s{sT} offen offset:32""")
def END():
    PROFDUMP()
    if CFG['amp']:
        a=CFG['amp']
        lp=p.lab("amp"); ok=p.lab("ampok")
        p(f"""s_waitcnt vmcnt(0) lgkmcnt(0)
        s_cmp_eq_u32 s{sPROF+2}, 0
        s_cbranch_scc1 {ok}
        s_cmp_lg_u32 s{sWAVE}, {a[5] if len(a)>5 else 0}
        s_cbranch_scc1 {ok}""")
        if a[4]>=0: p(f"s_cmp_lg_u32 s2, {a[4]}\ns_cbranch_scc1 {ok}")
        p(f"""s_sub_u32 s{sPROF+6}, s{sPROF+2}, s{sPROF}
        s_mul_i32 s{sPROF+6}, s{sPROF+6}, {a[3]}
        s_lshr_b32 s{sPROF+6}, s{sPROF+6}, 4
        s_min_u32 s{sPROF+6}, s{sPROF+6}, 100000
        s_add_u32 s{sPROF+6}, s{sPROF+6}, 3000
        s_mov_b32 s{sPROF+4}, 100000
        {lp}:
        s_sleep 2
        s_memrealtime s[{sPROF+2}:{sPROF+3}]
        s_sub_u32 s{sPROF+4}, s{sPROF+4}, 1
        s_cbranch_scc1 {ok}
        s_waitcnt lgkmcnt(0)
        s_sub_u32 s{sPROF+2}, s{sPROF+2}, s{sPROF+8}
        s_cmp_lt_u32 s{sPROF+2}, s{sPROF+6}
        s_cbranch_scc1 {lp}
        {ok}:""")
    if CFG['cal']:
        lp=p.lab("cal"); ok=p.lab("calok")
        p(f"""s_waitcnt vmcnt(0) lgkmcnt(0)
        s_cmp_eq_u32 s{sPROF}, 0
        s_cbranch_scc1 {ok}
        s_cmp_ge_u32 s{sWAVE}, 4
        s_cbranch_scc1 {ok}
        s_mov_b32 s{sPROF+4}, 100000
        {lp}:
        s_sleep 2
        {CALI()} s[{sPROF+2}:{sPROF+3}]
        s_sub_u32 s{sPROF+4}, s{sPROF+4}, 1
        s_cbranch_scc1 {ok}
        s_waitcnt lgkmcnt(0)
        s_sub_u32 s{sPROF+2}, s{sPROF+2}, s{sPROF}
        s_cmp_lt_u32 s{sPROF+2}, {CFG['cal'][1]}
        s_cbranch_scc1 {lp}
        {ok}:""")
    p("s_endpgm")
S4=lambda r:f"s[{r}:{r+3}]"
SPIN=1<<18

def srd(lst):
    for r,n in lst: p(f"s_mov_b32 s{r+2}, {n}\ns_mov_b32 s{r+3}, 0x20000")
def prologue():
    STAMP('entry')
    p(f"""s_cmp_ge_u32 s2, 256
    s_cbranch_scc1 L_exit
    s_load_dwordx2 s[{sX}:{sX+1}], s[0:1], 0
    s_load_dwordx2 s[{sW}:{sW+1}], s[0:1], 8
    s_load_dwordx2 s[{sWS}:{sWS+1}], s[0:1], 80
    v_lshrrev_b32 v1, 6, v0
    v_and_b32 v0, 63, v0
    v_readfirstlane_b32 s{sWAVE}, v1
    s_and_b32 s{sG}, s2, 7
    s_lshr_b32 s{sSLOT}, s2, 3
    s_lshr_b32 s{sRQ}, s{sG}, 1
    s_and_b32 s{sHH}, s{sG}, 1
    s_and_b32 s{sRB}, s{sSLOT}, 3
    s_lshr_b32 s{sCT}, s{sSLOT}, 2
    s_lshl_b32 s{sBK}, s{sRQ}, 2
    s_add_u32 s{sBK}, s{sBK}, s{sRB}
    s_cmp_gt_u32 s{sCT}, 2
    s_subb_u32 s{sBK}, s{sBK}, 0
    s_and_b32 s{sBK}, s{sBK}, 15""")
    if CFG['cal']: p(f"s_mov_b32 s{sPROF}, 0")
    if CFG['amp']: p(f"s_mov_b32 s{sPROF+2}, 0")
    if CFG['prof']:
        for i in range(1,10): p(f"s_mov_b32 s{sPROF+2*i}, 0")
    if not CFG['cpe']:
        p(f"""s_cmp_lt_u32 s{sWAVE}, 4
        s_cbranch_scc1 L_comp""")
        return
    A=sT+18; K=NAME+"_kernel"
    n=CFG['cpe']
    reg=[f"({K}+0x400-L_pc0)",f"(L_comp-L_pc0)",f"(L_comp+0x1000-L_pc0)",f"({K}+0x1400-L_pc0)"]
    if CFG['cpv']: reg[CFG['cpv']-1]="(L_comp+0x2000-L_pc0)"
    lit="|".join(f"((({r}>>8)&0xff)<<{8*i})" for i,r in enumerate(reg))
    p(f"""s_cmp_lt_u32 s{sWAVE}, 4
    s_cbranch_scc0 L_help
    s_getpc_b64 s[{A}:{A+1}]
    L_pc0:
    s_lshl_b32 s{A+2}, s{sWAVE}, 3
    s_lshr_b32 s{A+2}, {lit}, s{A+2}
    s_and_b32 s{A+2}, s{A+2}, 0xff
    s_and_b32 s{A+3}, s{sSLOT}, {32//n-1}
    s_lshl_b32 s{A+2}, s{A+2}, 8
    s_mul_i32 s{A+3}, s{A+3}, {n*128}
    s_and_b32 s{A}, s{A}, 0xffffff80
    s_add_u32 s{A+2}, s{A+2}, s{A+3}
    v_lshl_add_u32 v1, v0, 7, s{A+2}
    s_mov_b64 exec, {hex((1<<n)-1)}
    global_load_dwordx2 v[228:229], v1, s[{A}:{A+1}] offset:60""")
    if CFG['cpa']==1: cp_rest(A)
    p("s_mov_b64 exec, -1")
    if CFG['lay'] and CFG['pade']: p(f"""s_cmp_eq_u32 s{sWAVE}, 3
    s_cbranch_scc1 L_padT
    s_cmp_eq_u32 s{sWAVE}, 2
    s_cbranch_scc1 L_padV""")
    p(f"""s_branch L_comp
    L_help:""")
def cp_rest(A):
    p(f"""s_lshl_b32 s{A+2}, s{sSLOT}, 2
    s_add_u32 s{A+2}, s{A+2}, s{sWAVE}
    s_mul_i32 s{A+2}, s{A+2}, {128*CFG['cpn']}
    s_add_u32 s{A+2}, s{A+2}, ({NAME}_kernel+0x2400-L_pc0)&0xffffff00
    s_min_u32 s{A+2}, s{A+2}, (L_exit-L_pc0-{128*CFG['cpn']})&0xffffff80
    s_mov_b64 exec, {(1<<CFG['cpn'])-1}
    v_lshl_add_u32 v1, v0, 7, s{A+2}
    global_load_dwordx2 v[194:195], v1, s[{A}:{A+1}] offset:60""")
def prologue2(comp=0):
    if comp:
        p(f"""s_mov_b32 s{sTAG}, {EPO}
        s_load_dword s{sEP}, s[{sWS}:{sWS+1}], s{sTAG}
        s_load_dwordx2 s[{sWR}:{sWR+1}], s[0:1], 32
        s_load_dwordx2 s[{sOUT}:{sOUT+1}], s[0:1], 64""")
        srd(((sWS,268435456),(sWR,1280),(sOUT,2621440)))
        p(f"""s_mov_b32 s{sLO}, -1
        s_mov_b32 s{sLO+1}, 0
        s_mov_b32 s{sLO+2}, 0xfffff
        s_mov_b32 s{sLO+3}, 0xfffff""")
        return
    if not CFG['epf']: p(f"""s_mov_b32 s{sTAG}, {EPO}
    s_load_dword s{sEP}, s[{sWS}:{sWS+1}], s{sTAG}""")
    p(f"""s_load_dwordx2 s[{sWO}:{sWO+1}], s[0:1], 16
    s_load_dwordx2 s[{sWR}:{sWR+1}], s[0:1], 32
    s_load_dwordx2 s[{sWG}:{sWG+1}], s[0:1], 40
    s_load_dwordx2 s[{sWU}:{sWU+1}], s[0:1], 48
    s_load_dwordx2 s[{sWD}:{sWD+1}], s[0:1], 56
    s_load_dwordx2 s[{sOUT}:{sOUT+1}], s[0:1], 64""")
    srd(((sWS,268435456),(sWO,819200),(sWR,1280),(sWG,1966080),(sWU,1966080),(sWD,1966080),(sOUT,2621440)))
    p(f"""s_mov_b32 s{sLO}, -1
    s_mov_b32 s{sLO+1}, 0
    s_mov_b32 s{sLO+2}, 0xfffff
    s_mov_b32 s{sLO+3}, 0xfffff""")
def moe_role():
    A=sT+20
    if not CFG['mrm']: p(f"s_mov_b32 s{sMI}, s{sSLOT}"); return
    p(f"""s_lshr_b32 s{A}, s{sSLOT}, 3
    s_sub_u32 s{sMI}, s{sSLOT}, s{A}
    s_sub_u32 s{sMI}, s{sMI}, 1
    s_add_u32 s{A}, s{A}, 28
    s_and_b32 s{A+1}, s{sSLOT}, 7
    s_cselect_b32 s{sMI}, s{sMI}, s{A}""")
def mktag():
    p(f"""s_mul_i32 s{sTAG}, s{sEP}, 0x9e3779b1
    s_add_u32 s{sTAG}, s{sTAG}, 0x7f4a7c15
    s_and_b32 s{sTAG}, s{sTAG}, -16""")
def colbyte(dst, lc):
    t=sT+18
    p(f"""s_mul_i32 s{t}, s{lc}, 52
    s_lshr_b32 s{t}, s{t}, 8
    s_add_u32 s{t}, s{t}, s{sHH}
    s_mul_i32 s{t}, s{t}, 640
    s_lshl_b32 s{dst}, s{lc}, 7
    s_add_u32 s{dst}, s{dst}, s{t}""")

def loader():
    CA_=sT+1; CB_=sT+2; CH=sT+3; XO=sT+4; WO_=sT+5; LB=sT+6; A=sT+7; B=sT+8; OFF=sT+9; SEQ=sT+10
    vX=2; vW=6; vt=10
    p(f"""s_sub_u32 s{HW}, s{sWAVE}, 4
    s_lshl_b32 s{A}, s{sCT}, 1
    s_cmp_gt_u32 s{sCT}, 2
    s_subb_u32 s{A}, s{A}, 0
    s_cmp_lg_u32 s{sCT}, 2
    s_addc_u32 s{B}, s{A}, 0""")
    colbyte(CA_,A); colbyte(CB_,B)
    p(f"""v_lshrrev_b32 v{vt}, 3, v0
    v_mul_u32_u24 v{vX}, 1280, v{vt}
    v_lshrrev_b32 v{vt+1}, 4, v0
    v_and_b32 v{vt+2}, 7, v0
    v_xor_b32 v{vt+2}, v{vt+2}, v{vt+1}
    v_lshl_add_u32 v{vX}, v{vt+2}, 4, v{vX}
    v_xor_b32 v{vX+1}, 64, v{vX}
    v_add_u32 v{vX+1}, {10240-1024}, v{vX+1}
    v_add_u32 v{vX+2}, {(1 if CFG['g16'] else 2)*(10240-1024)}, v{vX+CFG['g16']}
    v_add_u32 v{vX+3}, {(3 if CFG['g16'] else 2)*(10240-1024)}, v{vX+1-CFG['g16']}
    v_lshlrev_b32 v{vt+2}, 2, v{vt+1}
    v_and_b32 v{vt+3}, 15, v0
    v_xor_b32 v{vt+2}, v{vt+2}, v{vt+3}
    v_cmp_lt_u32 vcc, 7, v{vt+2}
    v_mov_b32 v{vt+3}, s{CA_}
    v_mov_b32 v{vt+4}, s{CB_}
    v_cndmask_b32 v{vt+3}, v{vt+3}, v{vt+4}, vcc
    v_and_b32 v{vt+2}, 7, v{vt+2}
    v_lshl_add_u32 v{vt+3}, v{vt+2}, 4, v{vt+3}
    v_mul_u32_u24 v{vW}, 3840, v{vt+1}
    v_add_u32 v{vW}, v{vW}, v{vt+3}""")
    for i in range(1,4): p(f"v_add_u32 v{vW+i}, {i*(4*3840-1024)}, v{vW}")
    if CFG['g16']: p(f"v_xor_b32 v{vW+2}, 32, v{vW+2}\nv_xor_b32 v{vW+3}, 32, v{vW+3}")
    ta,tc,tg=CFG['rot']
    pk=lambda t: sum(int(v)<<(4*i) for i,v in enumerate(t))
    p(f"""s_and_b32 s{A}, s{sBK}, 3
    s_lshl_b32 s{A}, s{A}, 2
    s_lshr_b32 s{CH}, {pk(ta)}, s{A}
    s_and_b32 s{CH}, s{CH}, 15
    s_lshl_b32 s{A}, s{sCT}, 2
    s_lshr_b32 s{A}, {hex(pk(tc))}, s{A}
    s_and_b32 s{A}, s{A}, 15
    s_add_u32 s{CH}, s{CH}, s{A}
    s_lshr_b32 s{A}, s{sBK}, 2
    s_lshl_b32 s{A}, s{A}, 1
    s_add_u32 s{A}, s{A}, s{sHH}
    s_lshl_b32 s{A}, s{A}, 2
    s_lshr_b32 s{A}, {hex(pk(tg))}, s{A}
    s_and_b32 s{OFF}, s{A}, 15""")
    seqs=CFG['seqs']
    if seqs:
        n=len(seqs)
        p(f"""s_mul_i32 s{A}, s{CH}, {-(-2048//n)}
        s_lshr_b32 s{A}, s{A}, 11
        s_mul_i32 s{A}, s{A}, {n}
        s_sub_u32 s{CH}, s{CH}, s{A}""")
        for i,q in enumerate(seqs):
            assert sorted(q)==list("0123456789")
            if i: p(f"s_cmp_eq_u32 s{CH}, {i}\ns_cselect_b32 s{SEQ}, {hex(pk(q[:8]))}, s{SEQ}\ns_cselect_b32 s{SEQ+1}, {hex(pk(q[8:]))}, s{SEQ+1}")
            else: p(f"s_mov_b32 s{SEQ}, {hex(pk(q[:8]))}\ns_mov_b32 s{SEQ+1}, {hex(pk(q[8:]))}")
    else:
        p(f"""s_add_u32 s{CH}, s{CH}, s{OFF}
    s_mul_i32 s{A}, s{CH}, 205
    s_lshr_b32 s{A}, s{A}, 11
    s_mul_i32 s{A}, s{A}, 10
    s_sub_u32 s{CH}, s{CH}, s{A}""")
    p(f"""
    s_lshl_b32 s{A}, s{sBK}, 2
    s_add_u32 s{A}, s{A}, s{HW}
    s_mul_i32 s{XO}, s{A}, {32*1280}
    s_mul_i32 s{WO_}, s{HW}, {16*3840}
    s_lshl_b32 s{LB}, s{HW}, 12""")
    CHW=SEQ
    p(f"s_mov_b32 s{CHW}, s{CH}")
    nx=dict(x=0,w=0)
    def issue(order,lim):
        global OPS
        for k in order:
            if k in 'qh':
                ql=p.lab("qth")
                if k=='q': p(f"s_cmp_gt_u32 s{sCT}, 2")
                else: halo_cond(A,B)
                p(f"s_cbranch_scc1 {ql}\ns_waitcnt vmcnt({CFG['qthn']})\n{ql}:")
                continue
            c=nx[k]; nx[k]+=1; assert c<=min(9,lim)
            slot=(c%4)*32768; ch=CH if k=='x' else CHW
            if k=='x': p(f"""s_lshl_b32 s{A}, s{ch}, 7
                s_add_u32 m0, s{LB}, {slot}
                s_add_u32 s{A}, s{A}, s{XO}""")
            else: p(f"""s_mul_i32 s{A}, s{ch}, {64*3840}
                s_add_u32 m0, s{LB}, {slot+16384}
                s_add_u32 s{A}, s{A}, s{WO_}""")
            for i in range(4):
                if c>=5 and ('nol'+k) in CFG['xp']: p(f"s_mov_b64 exec, 1\nbuffer_load_dwordx4 v{vX+i}, {S4(sX)}, s{XO} offen lds\ns_mov_b64 exec, -1"); continue
                if k=='x': p(f"buffer_load_dwordx4 v{vX+i}, {S4(sX)}, s{A} offen offset:{i*1024} {CFG['xpol'] if c<CFG['xnt'] else ''} lds")
                else: p(f"buffer_load_dwordx4 v{vW+i}, {S4(sW)}, s{A} offen offset:{i*1024} {'nt' if c<CFG['wnt'] else CFG['wpol']} lds")
            p(f"""s_add_u32 s{ch}, s{ch}, 1
            s_cmp_eq_u32 s{ch}, 10
            s_cselect_b32 s{ch}, 0, s{ch}""")
            OPS+=[c]*4
    ORD=CFG['ord'].split(',')
    srd(((sX,2621440),(sW,2457600)))
    if CFG['epf']: p(f"s_mov_b32 s{sTAG}, {EPO}")
    p("s_waitcnt lgkmcnt(0)")
    if CFG['epf']: p(f"s_load_dword s{sEP}, s[{sWS}:{sWS+1}], s{sTAG}")
    STAMP('i0')
    def b1():
        STAMP('i1s')
        if CFG['qb1']:
            ql=p.lab("qth"); p(f"s_cmp_gt_u32 s{sCT}, 2\ns_cbranch_scc1 {ql}\ns_waitcnt vmcnt({CFG['qb1']-1})\n{ql}:")
        issue(ORD[1],3)
        STAMP('i1e')
    for c in range(1):
        issue(ORD[0],3); STAMP('i%d'%(c+1))
        if CFG['b1p']==2: b1()
        if c==0:
            prologue2()
            p(f"""v_cmp_lt_u32 vcc, 7, v0
            v_lshlrev_b32 v{vt}, 4, v0
            v_add_u32 v{vt}, {L_FLG}, v{vt}
            v_cndmask_b32 v{vt+2}, 0, -1, vcc
            v_cndmask_b32 v{vt+3}, 0, -1, vcc
            v_cndmask_b32 v{vt+4}, 0, -1, vcc
            v_cndmask_b32 v{vt+5}, 0, -1, vcc
            ds_write_b128 v{vt}, v[{vt+2}:{vt+5}]""")
            early()
    if CFG['b1p']==1: b1()
    p("s_waitcnt lgkmcnt(0)")
    STAMP('epo')
    mktag()
    stats_setup()
    p(f"s_cmp_ge_u32 s{HW}, 2\ns_cbranch_scc1 L_helperB")
    nx0=dict(nx); ops0=list(OPS)
    def steps(hook,isB):
        global OPS
        nx.update(nx0); OPS=list(ops0)
        if CFG['b1p']==0: b1()
        if CFG['hclr']: hclear_setup(isB)
        if CFG['smw'] or CFG['smo']: sm_setup()
        for c in range(8):
            sd=CFG['sdef']
            if c==0 and -1 in sd:
                assert ORD[0][0]=='x'; p(f"s_waitcnt vmcnt({len(OPS)-4})")
                STAMP('x0')
                fill=stats(0)
                for k in range(4):
                    if sd[k]==-1: p(fill[k])
                if max(sd)==-1: stats_red()
            vmwait(c)
            STAMP('d%d'%c)
            p("s_barrier")
            STAMP('ld%d'%c)
            if c==0 and -1 not in sd: fill=stats(0)
            if c==CFG['stg'] and CFG['stb']: stats_get(); hook(100)
            if CFG['hclr']: hclear(c,isB)
            if not isB: hook(200+c)
            if c in CFG['qth']:
                ql=p.lab("qth"); p(f"s_cmp_gt_u32 s{sCT}, 2\ns_cbranch_scc1 {ql}\ns_waitcnt vmcnt({CFG['qthn']})\n{ql}:")
            issue(ORD[2+c],c+3)
            if c==0: p("s_waitcnt lgkmcnt(0)")
            for k in range(4):
                if sd[k]==c: p(fill[k])
            if c==max(0,max(sd)):
                if max(sd)>=0: stats_red()
                stats_pub(); OPS.append('stw')
            if c==CFG['stg'] and not CFG['stb']: stats_get(); hook(100)
            hook(c)
            sm_touch(c,isB)
            if CFG['lay'] and CFG['padk']==2 and c==CFG['pks']:
                p(f"s_cmp_eq_u32 s{HW}, {2*isB}\ns_cbranch_scc1 L_pv{2*isB}\ns_branch L_pv{2*isB+1}\nL_pkb{isB}:")
        assert nx==dict(x=10,w=10)
    return steps
aS=44; dS=64; sacc=60; sone=43; sDBL=sDBG; sSTP=sDBG+1
def stats_setup():
    vt=10
    tc=[int(x) for x in CFG['rot'][1]]
    assert not CFG['seqs'] and sorted(tc+[(tc[2]+1)%10,(tc[2]+2)%10])==list(range(10))
    p(f"""s_lshl_b32 s{sT+16}, s{HW}, 12
    v_bfe_u32 v{vt}, v0, 1, 3
    v_lshrrev_b32 v{vt+1}, 5, v0
    v_lshlrev_b32 v{vt+1}, 2, v{vt+1}
    v_xor_b32 v{vt}, v{vt}, v{vt+1}
    v_lshlrev_b32 v{vt}, 4, v{vt}
    v_and_b32 v{vt+1}, 31, v0
    v_lshl_add_u32 v{vt}, v{vt+1}, 7, v{vt}
    v_add_u32 v{aS}, s{sT+16}, v{vt}
    v_mov_b32 v{sone}, 0x3f803f80
    s_and_b32 s{sSTP}, s{sBK}, 12
    s_add_u32 s{sSTP}, s{sSTP}, s{sBK}
    s_lshl_b32 s{sT+16}, s{sHH}, 2
    s_add_u32 s{sSTP}, s{sSTP}, s{sT+16}
    s_lshl_b32 s{sSTP}, s{sSTP}, 14
    s_lshl_b32 s{sT+16}, s{HW}, 9
    s_add_u32 s{sSTP}, s{sSTP}, s{sT+16}
    s_add_u32 s{sSTP}, s{sSTP}, {STP}
    v_lshrrev_b32 v{vt}, 5, v0
    v_lshlrev_b32 v{vt}, 11, v{vt}
    v_lshl_add_u32 v{aS+4}, v{vt+1}, 4, v{vt}
    s_lshl_b32 s{sT+16}, s{sCT}, 11
    s_cmp_eq_u32 s{sCT}, 2
    s_cselect_b32 s{sT+16}, {STX-STP}, s{sT+16}
    v_lshl_add_u32 v{aS+5}, v{vt+1}, 4, s{sT+16}""")
    for i in range(1,4): p(f"v_xor_b32 v{aS+i}, {16*i}, v{aS}")
    for i in range(4): p(f"v_mov_b32 v{sacc+i}, 0")
    if CFG['smode'] in ('dotx','dotc'):
        for i in range(2*CFG['nacc']): p(f"v_mov_b32 v{102+i}, 0")
def stats(c):
    if 'nostats' in CFG['xp']: return ['s_nop 0']*4
    for i in range(4): p(f"ds_read_b128 {vr(dS+4*i,4)}, v{aS+i} offset:{c*32768}")
    L=[]
    for i in range(4):
        g=f"s_waitcnt lgkmcnt({3-i})"
        for j in range(4):
            r=dS+4*i+j
            u=80+2*(j&1)
            if CFG['smode']=='dotx':
                a=102+2*((4*i+j)%CFG['nacc']); g+=f"\nv_dot2_f32_bf16 v{a}, v{r}, v{sone}, v{a}\nv_dot2_f32_bf16 v{a+1}, v{r}, v{r}, v{a+1}"
            elif CFG['smode']=='dotc':
                a=102+2*((4*i+j)%CFG['nacc']); g+=f"\nv_dot2c_f32_bf16 v{a}, v{r}, v{sone}\nv_dot2c_f32_bf16 v{a+1}, v{r}, v{r}"
            elif CFG['smode']=='dot': g+=f"\nv_dot2_f32_bf16 v{sacc+(j&1)}, v{r}, v{sone}, v{sacc+(j&1)}\nv_dot2_f32_bf16 v{sacc+2+(j&1)}, v{r}, v{r}, v{sacc+2+(j&1)}"
            elif CFG['smode']=='valu': g+=f"\nv_lshlrev_b32 v{u}, 16, v{r}\nv_and_b32 v{u+1}, 0xffff0000, v{r}\nv_add_f32 v{sacc}, v{sacc}, v{u}\nv_fmac_f32 v{sacc+2}, v{u}, v{u}\nv_add_f32 v{sacc+1}, v{sacc+1}, v{u+1}\nv_fmac_f32 v{sacc+3}, v{u+1}, v{u+1}"
            elif CFG['smode']=='pk': g+=f"\nv_lshlrev_b32 v{u}, 16, v{r}\nv_and_b32 v{u+1}, 0xffff0000, v{r}\nv_pk_add_f32 v[{sacc}:{sacc+1}], v[{sacc}:{sacc+1}], v[{u}:{u+1}]\nv_pk_fma_f32 v[{sacc+2}:{sacc+3}], v[{u}:{u+1}], v[{u}:{u+1}], v[{sacc+2}:{sacc+3}]"
        L.append(g)
    return L
def stats_red():
    t=sacc
    p(f"""s_nop 1
    v_add_f32 v{t}, v{t}, v{t+1}
    v_add_f32 v{t+1}, v{t+2}, v{t+3}
    v_mov_b32 v{t+2}, s{sTAG}
    s_nop 0
    v_permlane32_swap_b32 v{t}, v{t+1}
    s_nop 0
    v_add_f32 v{t}, v{t}, v{t+1}
    v_mov_b32 v{t+1}, v{t}
    s_nop 1
    v_permlane32_swap_b32 v{t}, v{t+1}""")
def stats_pub():
    t=sacc
    p(f"""s_mov_b64 exec, s[{sLO}:{sLO+1}]
    buffer_store_dwordx4 {vr(t,4)}, v{aS+5}, {S4(sWS)}, s{sSTP} offen sc1
    s_mov_b64 exec, -1""")
def stats_ld():
    return "\n".join(f"s_add_u32 s{sSTP+1}, s{sSTP}, {4096*i}\nbuffer_load_dwordx4 {vr(dS+4*i,4)}, v{aS+4}, {S4(sWS)}, s{sSTP+1} offen sc1" for i in range(4))
def stats_get():
    p(stats_ld()); OPS.extend(['stp']*4)
def stats_fin(t,B):
    vmwait('stp')
    lp=p.lab("stl"); ok=p.lab("stok"); rt=p.lab("strt")
    p(f"""s_mov_b32 s{B}, {SPIN}
    {lp}:
    v_xor_b32 v{t}, v{dS+2}, v{dS+6}
    v_xor_b32 v{t+1}, v{dS+10}, v{dS+14}
    v_xor_b32 v{t+2}, s{sTAG}, v{dS+2}
    v_xor_b32 v{t+3}, s{sTAG}, v{dS+10}
    v_or3_b32 v{t}, v{t}, v{t+1}, v{t+2}
    v_or_b32 v{t}, v{t}, v{t+3}
    v_cmp_ne_u32 vcc, 0, v{t}
    v_add_f32 v{t+1}, v{dS}, v{dS+4}
    v_add_f32 v{t+2}, v{dS+1}, v{dS+5}
    s_cbranch_vccnz {rt}
    {ok}:""")
    n0=len(p.L)
    p(f"{rt}:"); spin(B,lp,ok,1); p(stats_ld()); p(f"s_waitcnt vmcnt(0)\ns_branch {lp}")
    COLD.append("\n".join(p.L[n0:])); del p.L[n0:]
    if CFG['sf2']==3 and not CFG['sfe']: p("s_barrier")
    p(f"""v_add_f32 v{t+3}, v{dS+8}, v{dS+12}
    v_add_f32 v{t+4}, v{dS+9}, v{dS+13}
    v_add_f32 v{t+1}, v{t+1}, v{t+3}
    v_add_f32 v{t+2}, v{t+2}, v{t+4}
    s_nop 1
    v_permlane32_swap_b32 v{t+1}, v{t+2}
    s_nop 0
    v_add_f32 v{t+1}, v{t+1}, v{t+2}
    v_mul_f32 v{t+1}, {1/640!r}, v{t+1}
    v_mov_b32 v{t+2}, v{t+1}
    s_nop 1
    v_permlane32_swap_b32 v{t+1}, v{t+2}
    s_nop 0
    v_fma_f32 v{t+2}, -v{t+1}, v{t+1}, v{t+2}
    v_max_f32 v{t+2}, 0, v{t+2}""")
    if CFG['sf2']==2 and not CFG['sfe']: p("s_barrier")
    bf16r(t+2,t+2)
    p(f"v_add_f32 v{t+2}, 0x3727c5ac, v{t+2}")
    bf16r(t+2,t+2)
    p(f"""v_sqrt_f32 v{t+2}, v{t+2}
    v_xor_b32 v{t+1}, 0x80000000, v{t+1}""")
    if CFG['sf2']==4 and not CFG['sfe']: p("s_barrier")
    bf16r(t+2,t+2)
    p(f"""v_rcp_f32 v{t+5}, v{t+2}
    v_cvt_pk_bf16_f32 v{t+4}, v{t+1}, v{t+1}
    v_and_b32 v{t+3}, 31, v0
    s_lshl_b32 s{B}, s{HW}, 8
    s_add_u32 s{B}, s{B}, {L_SA}
    v_lshl_add_u32 v{t+1}, v{t+3}, 3, s{B}
    s_lshl_b32 s{B}, s{HW}, 7
    s_add_u32 s{B}, s{B}, {L_SM}
    v_lshl_add_u32 v{t+2}, v{t+3}, 2, s{B}
    {f"v_and_b32 v{t+4}, 0xffff0000, v{t+4}" if CFG['g16'] else ""}
    ds_write_b64 v{t+1}, v[{t+4}:{t+5}]
    ds_write_b32 v{t+2}, v{t+5} offset:{L_SR-L_SM}
    {f"ds_write_b32 v{t+2}, v{t+4}" if CFG['g16'] else ""}""" if CFG['g16'] else f"""v_rcp_f32 v{t+5}, v{t+2}
    v_cvt_pk_bf16_f32 v{t+4}, v{t+1}, v{t+1}
    v_and_b32 v{t+3}, 31, v0
    s_lshl_b32 s{B}, s{HW}, 8
    s_add_u32 s{B}, s{B}, {L_SA}
    v_lshl_add_u32 v{t+1}, v{t+3}, 3, s{B}
    s_lshl_b32 s{B}, s{HW}, 7
    s_add_u32 s{B}, s{B}, {L_SR}
    v_lshl_add_u32 v{t+2}, v{t+3}, 2, s{B}
    ds_write_b64 v{t+1}, v[{t+4}:{t+5}]
    ds_write_b32 v{t+2}, v{t+5}""")
vPT=21; vDUM=39
HS=sT+12; HA=28
def early():
    A=sT+20; B=sT+21; vt=10
    moe_role()
    p(f"""s_lshl_b32 s{A}, s{sSLOT}, 2
    s_add_u32 s{A}, s{A}, s{HW}
    s_mul_i32 s{A}, s{A}, 60
    v_min_u32 v{vt}, 59, v0
    v_add_u32 v{vt}, s{A}, v{vt}
    v_mul_u32_u24 v{vt+1}, 6554, v{vt}
    v_lshrrev_b32 v{vt+1}, 20, v{vt+1}
    v_mul_u32_u24 v{vt+2}, 160, v{vt+1}
    v_sub_u32 v{vt}, v{vt}, v{vt+2}
    v_lshlrev_b32 v{vt}, 7, v{vt}
    v_cmp_gt_u32 vcc, 32, v{vt+1}
    v_and_b32 v{vt+2}, 1, v{vt+1}
    v_mul_u32_u24 v{vt+2}, 20480, v{vt+2}
    v_lshrrev_b32 v{vt+3}, 4, v{vt+1}
    v_mul_u32_u24 v{vt+4}, 10240, v{vt+3}
    s_mul_i32 s{A}, s{sRQ}, 40960
    v_add3_u32 v{vt+2}, v{vt+2}, v{vt}, s{A}
    v_sub_u32 v{vt+2}, v{vt+2}, v{vt+4}
    v_add_u32 v{vt+4}, 163840, v{vt+2}
    v_min_u32 v{vt+2}, v{vt+2}, v{vt+4}
    v_mul_u32_u24 v{vt+3}, {KB}, v{vt+3}
    v_bfe_u32 v{vt+4}, v{vt+1}, 1, 3
    v_mul_u32_u24 v{vt+4}, 163840, v{vt+4}
    v_add3_u32 v{vt+2}, v{vt+2}, v{vt+3}, v{vt+4}
    s_mul_i32 s{A}, s{sRQ}, 20480
    s_sub_u32 s{A}, s{A}, 5120
    v_add_u32 v{vt}, s{A}, v{vt}
    v_add_u32 v{vt+4}, 81920, v{vt}
    v_min_u32 v{vt}, v{vt}, v{vt+4}
    v_and_b32 v{vt+3}, 15, v{vt+1}
    v_mul_u32_u24 v{vt+3}, 81920, v{vt+3}
    s_mov_b32 s{A}, {VB}
    v_add3_u32 v{vt+3}, v{vt+3}, v{vt}, s{A}
    v_cndmask_b32 v{vt+2}, v{vt+3}, v{vt+2}, vcc
    s_mul_i32 s{A}, s{sHH}, {8*163840}
    v_add_u32 v{vPT}, s{A}, v{vt+2}
""")
    if CFG['honly']:
        p(f"""s_lshl_b32 s{A}, s{sSLOT}, 2
        s_add_u32 s{A}, s{A}, s{HW}
        s_mul_i32 s{A}, s{A}, 60
        v_min_u32 v{vt}, 59, v0
        v_add_u32 v{vt}, s{A}, v{vt}
        v_mul_u32_u24 v{vt+2}, 160, v{vt+1}
        v_sub_u32 v{vt}, v{vt}, v{vt+2}
        v_and_b32 v{vt+2}, 1, v{vt+1}
        v_mul_u32_u24 v{vt+2}, 160, v{vt+2}
        v_add_u32 v{vt+2}, v{vt+2}, v{vt}
        v_lshlrev_b32 v{vt}, 1, v{vt}
        v_cndmask_b32 v{vt}, v{vt}, v{vt+2}, vcc
        s_cmp_lt_u32 s{sRQ}, 3
        s_cselect_b32 s{A}, 0, 80
        s_add_u32 s{A}, s{A}, 160
        v_subrev_u32 v{vt}, 80, v{vt}
        v_cmp_le_u32 vcc, s{A}, v{vt}
        v_cmp_lt_u32 s[{A}:{A+1}], 15, v{vt+1}
        v_mov_b32 v{vt+2}, {KH-KB}
        s_and_b64 vcc, vcc, s[{A}:{A+1}]
        s_nop 0
        v_cndmask_b32 v{vt+2}, 0, v{vt+2}, vcc
        v_add_u32 v{vPT}, v{vPT}, v{vt+2}""")
    if CFG['ht']: p(f"""s_lshl_b32 s{A}, s{sSLOT}, 2
    s_add_u32 s{A}, s{A}, s{HW}
    s_mul_i32 s{B}, s{A}, 20
    v_min_u32 v{vt}, 19, v0
    v_add_u32 v{vt}, s{B}, v{vt}
    v_mul_u32_u24 v{vt+1}, 13108, v{vt}
    v_lshrrev_b32 v{vt+1}, 20, v{vt+1}
    v_mul_u32_u24 v{vt+2}, 80, v{vt+1}
    v_sub_u32 v{vt}, v{vt}, v{vt+2}
    v_lshlrev_b32 v{vt}, 7, v{vt}
    v_cmp_gt_u32 vcc, 16, v{vt+1}
    v_and_b32 v{vt+2}, 1, v{vt+1}
    v_mul_u32_u24 v{vt+2}, 10240, v{vt+2}
    v_lshrrev_b32 v{vt+3}, 1, v{vt+1}
    v_mul_u32_u24 v{vt+3}, 163840, v{vt+3}
    s_mul_i32 s{B}, s{sRQ}, 40960
    s_add_u32 s{B}, s{B}, {KH+20480}
    v_add3_u32 v{vt+2}, v{vt+2}, v{vt+3}, s{B}
    v_and_b32 v{vt+3}, 15, v{vt+1}
    v_mul_u32_u24 v{vt+3}, 81920, v{vt+3}
    s_mul_i32 s{B}, s{sRQ}, 20480
    s_add_u32 s{B}, s{B}, {VH+10240}
    v_add_u32 v{vt+3}, s{B}, v{vt+3}
    v_cndmask_b32 v{vt+2}, v{vt+3}, v{vt+2}, vcc
    s_mul_i32 s{B}, s{sHH}, {8*163840}
    v_add3_u32 v{vHT}, v{vt}, v{vt+2}, s{B}
    s_lshl_b32 s{B}, s{sG}, 7
    s_add_u32 s{A}, s{A}, s{B}
    s_lshl_b32 s{A}, s{A}, 7
    s_add_u32 s{A}, s{A}, {FH}
    v_mov_b32 v{vt}, s{A}
    v_cmp_lt_u32 vcc, 19, v0
    s_nop 1
    v_cndmask_b32 v{vHT}, v{vHT}, v{vt}, vcc""")
    nsm=sum(CFG['npf']); per=(100-5*nsm)//2
    if per>0:
        p(f"""s_mul_i32 s{A}, s{sG}, 5
        s_lshr_b32 s{A}, s{A}, 1
        s_mul_i32 s{A}, s{A}, 5
        s_lshr_b32 s{B}, s{HW}, 1
        s_mul_i32 s{B}, s{B}, {per}
        s_add_u32 s{A}, s{A}, s{B}
        s_add_u32 s{A}, s{A}, {5*nsm}
        v_min_u32 v{vt}, {per-1}, v0
        v_add_u32 v{vt}, s{A}, v{vt}
        v_subrev_u32 v{vt+1}, 100, v{vt}
        v_min_u32 v{vt}, v{vt}, v{vt+1}
        s_lshl_b32 s{A}, s{sSLOT}, 1
        s_and_b32 s{B}, s{HW}, 1
        s_add_u32 s{A}, s{A}, s{B}
        s_mul_i32 s{A}, s{A}, 12800
        v_lshl_add_u32 v{vTW}, v{vt}, 7, s{A}""")
    ge=p.lab("mtge"); jn=p.lab("mtj")
    p(f"""v_min_u32 v{vt}, 59, v0
    v_mul_u32_u24 v{vt+1}, 86, v{vt}
    v_lshrrev_b32 v{vt+1}, 8, v{vt+1}
    v_mul_u32_u24 v{vt+1}, {3072-384}, v{vt+1}
    v_lshl_add_u32 v{vt}, v{vt}, 7, v{vt+1}
    s_mul_i32 s{A}, s{sSLOT}, {20*3072}
    s_mul_i32 s{B}, s{sG}, 384
    s_add_u32 s{A}, s{A}, s{B}
    v_add_u32 v{vTM}, s{A}, v{vt}
    s_sub_u32 s{A}, s{sMI}, {0 if CFG['dw3'] else 17}
    s_lshl_b32 s{A}, s{A}, {1 if CFG['dw3'] else 2}
    s_add_u32 s{A}, s{A}, s{HW}
    s_mul_i32 s{A}, s{A}, {24 if CFG['dw3'] else 35 if CFG['dtn'] else 26}
    v_min_u32 v{vt}, {47 if CFG['dw3'] else 63 if CFG['dtn'] else 51}, v0
    v_lshrrev_b32 v{vt+1}, 1, v{vt}
    v_add_u32 v{vt+1}, s{A}, v{vt+1}
    v_min_u32 v{vt+1}, 1535, v{vt+1}
    v_mul_u32_u24 v{vt+1}, 1280, v{vt+1}
    v_and_b32 v{vt}, 1, v{vt}
    v_lshl_add_u32 v{vt}, v{vt}, 7, v{vt+1}
    s_mul_i32 s{B}, s{sG}, 160
    s_and_b32 s{B}, s{B}, -128
    v_add_u32 v{vTD}, s{B}, v{vt}""")
    if CFG['dtn']: p(f"""s_add_u32 s{A}, s{A}, 32
    v_min_u32 v{vt}, 5, v0
    v_lshrrev_b32 v{vt+1}, 1, v{vt}
    v_add_u32 v{vt+1}, s{A}, v{vt+1}
    v_min_u32 v{vt+1}, 1535, v{vt+1}
    v_mul_u32_u24 v{vt+1}, 1280, v{vt+1}
    v_and_b32 v{vt}, 1, v{vt}
    v_lshl_add_u32 v{vt}, v{vt}, 7, v{vt+1}
    v_add_u32 v{vTD2}, s{B}, v{vt}""")
vTD=25; vHT=26; vTD2=27
vTW=22; vTM=24
def touch(va,srd_,pair,pol=''):
    if pair:
        p(f"buffer_load_dword v{vDUM}, v{va}, {S4(srd_)}, 0 offen nt\nbuffer_load_dword v{vDUM}, v{va}, {S4(srd_)}, 0 offen offset:64")
        return 2
    p(f"buffer_load_dword v{vDUM}, v{va}, {S4(srd_)}, 0 offen {pol}")
    return 1
def wtouch(win,isB):
    n=0
    if CFG['wtw']==win and 100-5*sum(CFG['npf'])>0:
        n+=touch(vTW,sWO,CFG['wpair'])
    if CFG['mtw']==win:
        if not isB:
            u=p.lab("tu"); j=p.lab("tj")
            p(f"s_cmp_eq_u32 s{HW}, 0\ns_cbranch_scc0 {u}")
            touch(vTM,sWG,CFG['mpair'])
            p(f"s_branch {j}\n{u}:")
            n+=touch(vTM,sWU,CFG['mpair'])
            p(f"{j}:")
    return n
def qkv_touch():
    if CFG['pt']==99: return
    if CFG['ht']==1: OPS.extend(['pt']*touch(vHT,sWS,0,''))
    OPS.extend(['pt']*touch(vPT,sWS,CFG['qpair'],CFG['tpol']))
    if CFG['ht']==2: OPS.extend(['pt']*touch(vHT,sWS,0,''))
vH=16
OPS=[]
def vmwait(*tags):
    last=max(i for i,t in enumerate(OPS) if t in tags)
    n=len(OPS)-1-last; assert n<64
    p(f"s_waitcnt vmcnt({n})")
HW=sT
def spin(cnt,lp,ok,sleep=0):
    p(f"s_sub_u32 s{cnt}, s{cnt}, 1\ns_cbranch_scc1 {ok}")
    if sleep: p(f"s_sleep {sleep}")
def lds_wait(addr_v,tmp,cnt,cmp,val,sleep=1):
    lp=p.lab("lw"); ok=p.lab("lwok")
    p(f"""s_mov_b32 s{cnt}, {SPIN*4}
    {lp}:
    ds_read_b32 v{tmp}, v{addr_v}
    s_waitcnt lgkmcnt(0)
    v_cmp_{cmp}_u32 vcc, {val}, v{tmp}
    s_nop 0
    s_cbranch_vccz {ok}""")
    spin(cnt,lp,ok,sleep)
    p(f"s_branch {lp}\n{ok}:")
sHL,sHF,sHO,sPH,sHD,sT0=range(sT+1,sT+7)
def att_ids():
    p(f"""s_lshr_b32 s{sHL}, s{sSLOT}, 1
    s_and_b32 s{sHF}, s{sSLOT}, 1
    s_and_b32 s{sHO}, s{sHL}, 1
    s_lshr_b32 s{sPH}, s{sHL}, 1
    s_lshl_b32 s{sHD}, s{sHH}, 3
    s_add_u32 s{sPH}, s{sPH}, s{sHD}
    s_lshl_b32 s{sHD}, s{sHH}, 4
    s_add_u32 s{sHD}, s{sHD}, s{sHL}
    s_lshl_b32 s{sT0}, s{sRQ}, 1
    s_add_u32 s{sT0}, s{sT0}, s{sHF}
    s_lshl_b32 s{sT0}, s{sT0}, 3""")
def flag_addr(vd,vt,withq,A,B,C):
    flag_nib(withq,A,B,C)
    p(f"""v_and_b32 v{vt}, 60, v0
    v_min_u32 v{vt}, 20, v{vt}
    v_bfe_u32 v{vt}, s{A}, v{vt}, 4
    v_and_b32 v{vd}, 3, v0
    v_lshlrev_b32 v{vd}, 2, v{vd}
    v_lshl_add_u32 v{vd}, v{vt}, 7, v{vd}""")
def flag_nib(withq,A,B,C):
    p(f"""s_lshr_b32 s{A}, s{sHL}, 1
    s_mul_i32 s{A}, s{A}, 5
    s_lshl_b32 s{B}, s{sHO}, 1
    s_add_u32 s{A}, s{A}, s{B}
    s_add_u32 s{B}, s{A}, 2
    s_lshr_b32 s{A}, s{A}, 3
    s_lshr_b32 s{B}, s{B}, 3
    s_lshl_b32 s{B}, s{B}, 4
    s_or_b32 s{A}, s{A}, s{B}
    s_add_u32 s{B}, s{A}, 0x55
    s_lshl_b32 s{C}, s{B}, 8
    s_or_b32 s{A}, s{C}, s{A if withq else B}
    s_mul_i32 s{B}, s{sHL}, 20
    s_add_u32 s{C}, s{B}, 19
    s_lshr_b32 s{B}, s{B}, 6
    s_lshr_b32 s{C}, s{C}, 6
    s_lshl_b32 s{C}, s{C}, 4
    s_or_b32 s{B}, s{B}, s{C}
    s_add_u32 s{B}, s{B}, 0xaa
    s_lshl_b32 s{B}, s{B}, 16
    s_or_b32 s{A}, s{A}, s{B}""")
def flag_poll(va,vt,soff,cnt,first=True,sleep=0):
    lp=p.lab("fp"); ok=p.lab("fpok");
    p(f"s_mov_b32 s{cnt}, {SPIN}")
    if not first:
        md=p.lab("fpm"); p(f"s_branch {md}")
    p(f"""{lp}:
    buffer_load_dword v{vt}, v{va}, {S4(sWS)}, s{soff} offen sc1""")
    if not first: p(f"{md}:")
    p(f"""s_waitcnt vmcnt(0)
    v_cmp_ne_u32 vcc, s{sTAG}, v{vt}
    s_nop 0
    s_cbranch_vccz {ok}""")
    spin(cnt,lp,ok,sleep)
    p(f"s_branch {lp}\n{ok}:")
def flag_poll2(va,vt,soff,cnt,n=2,gap=0):
    lp=p.lab("fq"); ok=p.lab("fqok")
    ld=lambda i: f"buffer_load_dword v{vt+i}, v{va}, {S4(sWS)}, s{soff} offen sc1"
    p(f"s_mov_b32 s{cnt}, {SPIN}")
    for i in range(n-1):
        p(ld(i))
        if gap: p(f"s_sleep {gap}")
    p(f"{lp}:")
    for i in range(n):
        p(f"""{ld((i+n-1)%n)}
        s_waitcnt vmcnt({n-1})
        v_cmp_ne_u32 vcc, s{sTAG}, v{vt+i}
        s_nop 0
        s_cbranch_vccz {ok}""")
    spin(cnt,lp,ok)
    p(f"s_branch {lp}\n{ok}:")
def kv_dma(aLin,aTl,sK,sV,sL,A,B,sHO=sHO):
    p(f"""s_mul_i32 s{A}, s{sHO}, 1536
    s_add_u32 s{A}, s{A}, s{sK}
    s_mov_b32 m0, s{sL}
    s_add_u32 s{B}, s{A}, 1536
    buffer_load_dwordx4 v{aLin}, {S4(sWS)}, s{A} offen {CFG['ldp']} lds
    buffer_load_dwordx4 v{aLin}, {S4(sWS)}, s{B} offen offset:1024 {CFG['ldp']} lds
    s_sub_u32 s{A}, s{sK}, 2048
    s_sub_u32 s{B}, s{sV}, 3072
    buffer_load_dwordx4 v{aTl}, {S4(sWS)}, s{A} offen offset:2048 {CFG['ldp']} lds
    buffer_load_dwordx4 v{aLin}, {S4(sWS)}, s{B} offen offset:3072 {CFG['ldp']} lds
    s_add_u32 m0, s{sL}, 4096
    s_add_u32 s{B}, s{sV}, 1024
    buffer_load_dwordx4 v{aLin}, {S4(sWS)}, s{B} offen {CFG['ldp']} lds
    s_mov_b64 exec, s[{sLO}:{sLO+1}]
    buffer_load_dwordx4 v{aLin}, {S4(sWS)}, s{B} offen offset:1024 {CFG['ldp']} lds
    s_mov_b64 exec, -1""")
def kv_addr(aLin,aTl,t):
    p(f"""v_lshlrev_b32 v{aLin}, 4, v0
    v_lshrrev_b32 v{t}, 5, v0
    v_mul_u32_u24 v{t}, {2560-512}, v{t}
    v_add3_u32 v{aTl}, v{aLin}, v{t}, s{sK1024}""")
sK1024=sT+21

def halo_cond(A,B):
    p(f"""s_lshr_b32 s{A}, 0x8ccc, s{sBK}
    s_cmp_gt_u32 s{sCT}, 2
    s_cselect_b32 s{A}, s{A}, 0
    s_and_b32 s{A}, s{A}, 1""")
def halo_flag(vt,A,B,C):
    sk=p.lab("nohalo")
    halo_cond(A,B)
    p(f"""s_cbranch_scc0 {sk}
    s_lshl_b32 s{A}, s{sCT}, 1
    s_add_u32 s{A}, s{A}, s{HW}
    s_sub_u32 s{A}, s{A}, 3
    s_lshl_b32 s{C}, s{sG}, 4
    s_add_u32 s{A}, s{A}, s{C}
    s_lshl_b32 s{A}, s{A}, 2
    s_add_u32 s{A}, s{A}, s{sRB}
    s_lshl_b32 s{A}, s{A}, 8
    s_add_u32 s{A}, s{A}, {FH}
    s_lshl_b32 s{B}, s{HW}, 2
    s_add_u32 s{B}, s{B}, {F_STG-8}
    v_mov_b32 v{vt}, s{B}
    v_lshlrev_b32 v{vt+2}, 7, v0
    v_mov_b32 v{vt+3}, s{sTAG}""")
    lds_wait(vt,vt+1,C,'gt',2,0)
    p(f"""s_mov_b64 exec, 3
    buffer_store_dword v{vt+3}, v{vt+2}, {S4(sWS)}, s{A} offen sc1
    s_mov_b64 exec, -1""")
    STAMP('halo')
    p(f"{sk}:")
def halo_copy(vt,A,B,C,mid):
    sk=p.lab("nohalo"); jn=p.lab("halo_j"); D=168; sD=sT+12; sFH=sT+13
    p(f"s_mov_b32 s{sFH}, 0")
    halo_cond(A,B)
    p(f"""s_cbranch_scc0 {sk}
    s_lshl_b32 s{A}, s{sCT}, 1
    s_add_u32 s{A}, s{A}, s{HW}
    s_sub_u32 s{A}, s{A}, 3
    s_cmp_lt_u32 s{A}, 10
    s_cselect_b32 s{sD}, 1, 0
    s_lshl_b32 s{sD}, 1280, s{sD}
    s_lshl_b32 s{C}, s{sG}, 4
    s_add_u32 s{A}, s{A}, s{C}
    s_lshl_b32 s{A}, s{A}, 2
    s_add_u32 s{A}, s{A}, s{sRB}
    s_lshl_b32 s{A}, s{A}, 8
    s_add_u32 s{sFH}, s{A}, {FH}
    s_lshl_b32 s{B}, s{HW}, 2
    s_add_u32 s{B}, s{B}, {F_STG-8}
    v_mov_b32 v{vt}, s{B}
    s_mul_i32 s{B}, s{HW}, {2*9216}
    s_add_u32 s{B}, s{B}, {L_WO-4*9216}
    v_lshl_add_u32 v{vt+2}, v0, 4, s{B}
    v_mov_b32 v{vt+3}, {F_HR}
    v_mov_b32 v{vt+4}, 1""")
    lds_wait(vt,vt+1,C,'gt',2,0)
    STAMP('hs1')
    for wr in range(2):
        for i in range(9): p(f"ds_read_b128 {vr(D+36*wr+4*i,4)}, v{vt+2} offset:{wr*9216+i*1024}")
        if wr==0: p("s_waitcnt lgkmcnt(6)")
    p(f"v_add_u32 v{vt}, 8, v{vt}")
    lds_wait(vt,vt+1,C,'gt',2,0)
    STAMP('hs2')
    for wr in range(2):
        for i in range(8): p(f"buffer_store_dwordx4 {vr(D+36*wr+4*i,4)}, v{D+36*wr+32+(i&3)}, {S4(sWS)}, {'s%d'%sD if i>>2 else 0} offen sc1")
    p(f"""s_mov_b64 exec, 1
    ds_add_u32 v{vt+3}, v{vt+4}
    s_mov_b64 exec, -1""")
    p(f"{sk}:")
    mid()
    p(f"""s_cmp_eq_u32 s{sFH}, 0
    s_cbranch_scc1 {jn}
    v_mov_b32 v{vt+2}, 0
    v_mov_b32 v{vt+4}, s{sTAG}
    s_waitcnt vmcnt(0)
    s_mov_b64 exec, 1
    buffer_store_dword v{vt+4}, v{vt+2}, {S4(sWS)}, s{sFH} offen sc1
    s_mov_b64 exec, -1""")
    STAMP('halo')
    lds_wait(vt+3,vt+1,C,'gt',2,0)
    p(f"{jn}:")
def own_setup(aF2,vt):
    A=sT+7; B=sT+8; sF,sK,sV,sL=range(sT+12,sT+16)
    flag_addr(aF2,vt,1,A,B,sT+18)
    p(f"""s_lshl_b32 s{sF}, s{sG}, 11
    s_lshl_b32 s{A}, s{sHF}, 4
    s_add_u32 s{sF}, s{sF}, s{A}
    s_add_u32 s{sF}, s{sF}, {FL}
    s_lshl_b32 s{A}, s{HW}, 1
    s_add_u32 s{A}, s{A}, s{sT0}
    s_mul_i32 s{sK}, s{A}, 2560
    s_mul_i32 s{sV}, s{A}, 1280
    s_mul_i32 s{A}, s{sPH}, {64*2560}
    s_add_u32 s{sK}, s{sK}, s{A}
    s_add_u32 s{sK}, s{sK}, {KB}
    s_mul_i32 s{A}, s{sHD}, 81920
    s_add_u32 s{sV}, s{sV}, s{A}
    s_add_u32 s{sV}, s{sV}, {VB}
    s_mul_i32 s{sL}, s{HW}, 5632
    s_add_u32 s{sL}, s{sL}, {L_KV+4*5632}""")
def own_kv(aLin,aTl,aF2,vt,sHO_):
    A=sT+7; B=sT+8; sF,sK,sV,sL=range(sT+12,sT+16); C=sT+18
    p(f"v_mov_b32 v{vt}, {F_FS}\nv_mov_b32 v{vt+1}, 1")
    flag_poll(aF2,vt+2,sF,C)
    p(f"ds_write_b32 v{vt}, v{vt+1}")
    STAMP('hfs')
    kv_dma(aLin,aTl,sK,sV,sL,A,B,sHO_)
    p(f"""s_mov_b64 exec, 1
    v_mov_b32 v{vt}, {F_G1}
    s_waitcnt vmcnt(0)
    ds_add_u32 v{vt}, v{vt+1}
    s_mov_b64 exec, -1""")
    STAMP('hg1')
def helperA(steps):
    A=sT+7; B=sT+8; vt=10
    def hook(c):
        if c==CFG['pt']:
            qkv_touch(); OPS.extend(['pt']*wtouch('w1',0))
        if c==CFG['wts']: OPS.extend(['pt']*touch(vTW,sWO,0))
        if CFG['dcs'] and c==CFG['dcg']:
            p(f"""s_lshl_b32 s{sG_}, s{sG}, 3
            s_add_u32 s{sG_}, s{sG_}, s{sCT}
            s_lshl_b32 s{sG_}, s{sG_}, 1
            s_cmp_lg_u32 s{sCT}, 2
            s_cselect_b32 s{A}, s{HW}, 0
            s_add_u32 s{sG_}, s{sG_}, s{A}
            s_lshl_b32 s{sG_}, s{sG_}, 11
            s_add_u32 s{sG_}, s{sG_}, {CSX}
            v_lshlrev_b32 v{vG+8}, 3, v0
            {csld}"""); OPS.extend(['cs']*4)
    vG=100; sG_=sT+13
    csld="\n".join(f"buffer_load_dwordx2 {vr(vG+2*i,2)}, v{vG+8}, {S4(sWS)}, s{sG_} offen offset:{512*i} sc1" for i in range(4))
    steps(hook,0)
    def cs_fin():
        vmwait('cs')
        lp=p.lab("csl"); ok=p.lab("csok"); rt=p.lab("csrt")
        p(f"""s_mov_b32 s{B}, {SPIN}
        s_lshl_b32 s{A}, s{HW}, 8
        s_add_u32 s{A}, s{A}, {L_CS}
        v_lshl_add_u32 v{vt+3}, v0, 2, s{A}
        {lp}:
        v_xor_b32 v{vt}, v{vG+1}, v{vG+3}
        v_xor_b32 v{vt+1}, v{vG+5}, v{vG+7}
        v_xor_b32 v{vG+1}, s{sTAG}, v{vG+1}
        v_xor_b32 v{vG+5}, s{sTAG}, v{vG+5}
        v_or3_b32 v{vt}, v{vt}, v{vt+1}, v{vG+1}
        v_or_b32 v{vt}, v{vt}, v{vG+5}
        v_cmp_ne_u32 vcc, 0, v{vt}
        v_add_f32 v{vt+1}, v{vG}, v{vG+2}
        v_add_f32 v{vt+2}, v{vG+4}, v{vG+6}
        s_cbranch_vccnz {rt}
        {ok}:
        v_add_f32 v{vt+1}, v{vt+1}, v{vt+2}
        ds_write_b32 v{vt+3}, v{vt+1}""")
        n0=len(p.L)
        p(f"{rt}:"); spin(B,lp,ok,1); p(csld); p(f"s_waitcnt vmcnt(0)\ns_branch {lp}")
        COLD.append("\n".join(p.L[n0:])); del p.L[n0:]
        STAMP('csf')
    for c in (8,9):
        vmwait(c); p("s_barrier"); STAMP('ld%d'%c)
        if c==9: STAMP('hb9')
        if c==8 and CFG['hpr']: p(f"s_setprio {CFG['hpr']}")
        if c==9 and CFG['dcs']==2: cs_fin()
        if c==8 and CFG['sfe']==2: stats_fin(vt,B)
        hook(c)
        if c==8 and CFG['sfe']==1: stats_fin(vt,B)
    if CFG['sf2']==1 or (CFG['sf2'] and CFG['sfe']): p("s_barrier")
    if not CFG['sfe']: stats_fin(vt,B)
    if CFG['dcs']==1: cs_fin()
    STAMP('h10')
    p("s_waitcnt lgkmcnt(0)\ns_barrier" if CFG['sf2'] else "s_waitcnt lgkmcnt(0)\ns_barrier\ns_barrier" if CFG['epi2']>1 else "s_barrier\ns_waitcnt lgkmcnt(0)\ns_barrier")
    STAMP('hE1')
    if CFG['hpr']: p("s_setprio 0")
    if CFG['hsp']&2: p(f"v_mov_b32 v{vt}, {L_MODE}\nds_read_b32 v{vt+1}, v{vt}")
    att_ids()
    if CFG['hsp']&2: p(f"s_waitcnt lgkmcnt(0)\nv_readfirstlane_b32 s{sMODE}, v{vt+1}")
    aLin=6; aTl=7; aF=8; D=40
    p(f"s_mov_b32 s{sK1024}, 1024")
    kv_addr(aLin,aTl,vt)
    flag_addr(aF,vt,0,A,B,sT+17)
    if CFG['hsp']: flag_nib(1,A,B,sT+17); p(f"s_mov_b32 s{sT+21}, s{A}")
    if CFG['hkv']: own_setup(9,vt)
    p(f"v_mov_b32 v{vt+1}, 1")
    sF=sT+9; sK=sT+10; sV=sT+11; sL=sT+16; C=sT+17; sD=sT+12
    dn=p.lab("g2done"); h1=p.lab("rem"); jn=p.lab("remj")
    assert not (CFG['hsent'] or CFG['hkv'])
    p(f"""v_and_b32 v{vt+2}, 4, v{aF}
    v_and_b32 v{aF}, -128, v{aF}
    s_cmp_lg_u32 s{HW}, 0
    s_cbranch_scc1 {h1}
    v_add_u32 v{aF}, v{aF}, v{vt+2}
    s_mul_i32 s{A}, s{sHF}, 24
    s_lshl_b32 s{sF}, s{sG}, 11
    s_add_u32 s{sF}, s{sF}, s{A}
    s_add_u32 s{sF}, s{sF}, {FL}
    {f"s_cmp_eq_u32 s{sT0}, 56" if CFG['honly'] else ""}
    {f"s_cselect_b32 s{B}, 0, {KH-KB}" if CFG['honly'] else f"s_mov_b32 s{B}, 0"}
    s_branch {jn}
    {h1}:
    v_lshlrev_b32 v{aF}, 3, v{aF}
    s_lshl_b32 s{A}, s{sHF}, 2
    s_add_u32 s{A}, s{A}, s{sG}
    s_sub_u32 s{A}, s{A}, 2
    s_and_b32 s{A}, s{A}, 7
    s_lshl_b32 s{sF}, s{A}, 14
    s_mul_i32 s{A}, s{sHF}, -768
    s_add_u32 s{sF}, s{sF}, s{A}
    s_add_u32 s{sF}, s{sF}, {FH+768}
    s_mov_b32 s{B}, {KH-KB}
    {jn}:
    s_lshl_b32 s{A}, s{HW}, 2
    s_sub_u32 s{sK}, -2, s{A}
    s_cmp_eq_u32 s{sHF}, 0
    s_cselect_b32 s{A}, s{sK}, s{A}
    s_mul_i32 s{sD}, s{sHF}, 5120
    s_sub_u32 s{sD}, s{sD}, 2560
    s_add_u32 s{A}, s{A}, s{sT0}
    s_mul_i32 s{sK}, s{A}, 2560
    s_mul_i32 s{sV}, s{A}, 1280
    s_mul_i32 s{A}, s{sPH}, {64*2560}
    s_add_u32 s{sK}, s{sK}, s{A}
    s_add_u32 s{sK}, s{sK}, s{B}
    s_add_u32 s{sK}, s{sK}, {KB}
    s_mul_i32 s{A}, s{sHD}, 81920
    s_add_u32 s{sV}, s{sV}, s{A}
    s_add_u32 s{sV}, s{sV}, s{B}
    s_add_u32 s{sV}, s{sV}, {VB}
    s_mul_i32 s{sL}, s{HW}, {-2*5632}
    s_add_u32 s{sL}, s{sL}, {L_KV+3*5632}""")
    if CFG['hsp']&2:
        sk=p.lab("noown"); sp=p.lab("ownp"); so=p.lab("ownok"); O=[sT+13,sT+14,sT+15,sT+18,sT+19,sT+20]; Rq=[4,8,12,28,40,96]
        halo_cond(A,B)
        p(f"""s_and_b32 s{A}, s{A}, s{HW}
        s_andn2_b32 s{A}, s{A}, s{sMODE}
        s_cbranch_scc0 {sk}
        s_lshl_b32 s{A}, s{sG}, 11
        s_add_u32 s{A}, s{A}, {FL}
        s_lshl_b32 s{B}, s{sHF}, 4
        s_add_u32 s{B}, s{B}, s{A}
        s_add_u32 s{A}, s{A}, 8""")
        for i in range(6): p(f"s_bfe_u32 s{O[i]}, s{sT+21}, {hex((4*i)|(4<<16))}\ns_lshl_b32 s{O[i]}, s{O[i]}, 7\ns_add_u32 s{O[i]}, s{O[i]}, s{B if i<2 else A}")
        assert 'FS' not in CFG['gm']+CFG['gr']
        if CFG['ogate']: p(f"v_mov_b32 v{vt}, {F_FS}"); lds_wait(vt,vt+5,C,'gt',CFG['ogate'],1)
        p(f"v_mov_b32 v{vt}, {F_OWN}\ns_mov_b32 s{C}, {SPIN}\n{sp}:")
        for i in range(6): p(f"s_load_dwordx4 s[{Rq[i]}:{Rq[i]+3}], s[{sWS}:{sWS+1}], s{O[i]} glc")
        p("s_waitcnt lgkmcnt(0)")
        for i in range(6):
            r=Rq[i]
            p(f"s_and_b64 s[{A+1}:{A+2}], s[{r}:{r+1}], s[{r+2}:{r+3}]" if 0 else "")
            p(f"s_xor_b64 s[{r}:{r+1}], s[{r}:{r+1}], s[{r+2}:{r+3}]\ns_xor_b32 s{r+2}, s{r+2}, s{sTAG}\ns_xor_b32 s{r+3}, s{r+3}, s{sTAG}\ns_or_b64 s[{r}:{r+1}], s[{r}:{r+1}], s[{r+2}:{r+3}]")
            if i: p(f"s_or_b64 s[4:5], s[4:5], s[{r}:{r+1}]")
        p(f"""s_cbranch_scc0 {so}
        s_sub_u32 s{C}, s{C}, 1
        {f"s_sleep {CFG['hsl2']}" if CFG['hsl2'] else ""}
        s_cbranch_scc0 {sp}
        {so}:
        ds_write_b32 v{vt}, v{vt+1}""")
        if CFG['prof']: p("s_mov_b64 s[96:97], 0\ns_mov_b64 s[98:99], 0")
        STAMP('own')
        p(f"{sk}:")
    if CFG['lay'] and CFG['padk']==3:
        p(f"s_cmp_eq_u32 s{HW}, 1\ns_cbranch_scc1 L_pv0\nL_pkb0:")
        STAMP('pk')
    p(f"s_cmp_eq_u32 s{sT0}, 0\ns_cbranch_scc1 {dn}")
    def both():
        kv_dma(aLin,aTl,sK,sV,sL,A,B)
        p(f"""s_add_u32 s{sK}, s{sK}, s{sD}
        s_add_u32 s{sK}, s{sK}, s{sD}
        s_add_u32 s{sV}, s{sV}, s{sD}
        s_sub_u32 s{sL}, s{sL}, 5632""")
        if CFG['hs2']:
            sk=p.lab("nob"); lp=p.lab("bp"); ok=p.lab("bpok")
            p(f"""s_cmp_eq_u32 s{HW}, 0
            s_cbranch_scc1 {sk}
            v_mov_b32 v{vt+2}, {F_M+4}""")
            if CFG['hs2p']:
                assert CFG['hsp']&1
                sp=p.lab("sbp")
                for i in range(4): p(f"s_add_u32 s{8+i}, s{8+i}, 128")
                if CFG['hs2p']==1: p(f"s_waitcnt vmcnt(0)\nds_write_b32 v{vt+2}, v{vt+1}")
                p(f"s_mov_b32 s{C}, 256\n{sp}:")
                for i in range(4): p(f"s_load_dword s{4+i}, s[{sWS}:{sWS+1}], s{8+i} glc")
                p("s_waitcnt lgkmcnt(0)")
                for i in range(4): p(f"s_xor_b32 s{4+i}, s{4+i}, s{sTAG}")
                p(f"""s_or_b32 s4, s4, s5
                s_or_b32 s6, s6, s7
                s_or_b32 s4, s4, s6
                s_cbranch_scc0 {ok}
                s_sub_u32 s{C}, s{C}, 1
                {f"s_sleep {CFG['hs2s']}" if CFG['hs2s'] else ""}
                s_cbranch_scc0 {sp}""")
            p(f"""s_mov_b32 s{C}, {SPIN}
            {lp}:
            buffer_load_dword v{vt+5}, v{aF}, {S4(sWS)}, s{sF} offen offset:128 sc1
            s_waitcnt vmcnt(0)
            ds_write_b32 v{vt+2}, v{vt+1}
            v_cmp_ne_u32 vcc, s{sTAG}, v{vt+5}
            s_nop 0
            s_cbranch_vccz {ok}""")
            spin(C,lp,ok,CFG['hs2s'])
            p(f"s_branch {lp}\n{ok}:")
            STAMP('hfb')
            if CFG['hs2p']==2:
                kv_dma(aLin,aTl,sK,sV,sL,A,B)
                p(f"s_waitcnt vmcnt(6)\nds_write_b32 v{vt+2}, v{vt+1}\ns_branch L_hs2j")
            p(f"{sk}:")
        kv_dma(aLin,aTl,sK,sV,sL,A,B)
        if CFG['hs2p']==2: p("L_hs2j:")
    GT=dict(G1=(F_G1,4),FS=(F_FS,1),FS4=(F_FS,4),M=(F_M,1))
    if CFG['gm']!='no' or CFG['gr']!='no':
        g0=p.lab("gate0"); g1=p.lab("gate1")
        p(f"s_cmp_lg_u32 s{HW}, 0\ns_cbranch_scc1 {g0}")
        if CFG['gm']!='no': p(f"v_mov_b32 v{vt}, {GT[CFG['gm']][0]}"); lds_wait(vt,vt+5,C,'gt',GT[CFG['gm']][1],0)
        p(f"s_branch {g1}\n{g0}:")
        if CFG['gr']!='no': p(f"v_mov_b32 v{vt}, {GT[CFG['gr']][0]}"); lds_wait(vt,vt+5,C,'gt',GT[CFG['gr']][1],0)
        p(f"{g1}:")
    if CFG['hsp']&1:
        vp=p.lab("vecp"); sp=p.lab("scp"); so=p.lab("scok")
        p(f"s_cmp_eq_u32 s{HW}, 0\ns_cbranch_scc1 {vp}")
        for i in range(4): p(f"s_bfe_u32 s{8+i}, s{sT+21}, {hex((8+4*i)|(4<<16))}\ns_lshl_b32 s{8+i}, s{8+i}, 10\ns_add_u32 s{8+i}, s{8+i}, s{sF}")
        p(f"s_mov_b32 s{C}, 256\n{sp}:")
        for i in range(4): p(f"s_load_dword s{4+i}, s[{sWS}:{sWS+1}], s{8+i} glc")
        p("s_waitcnt lgkmcnt(0)")
        for i in range(4): p(f"s_xor_b32 s{4+i}, s{4+i}, s{sTAG}")
        p(f"""s_or_b32 s4, s4, s5
        s_or_b32 s6, s6, s7
        s_or_b32 s4, s4, s6
        s_cbranch_scc0 {so}
        s_sub_u32 s{C}, s{C}, 1
        {f"s_sleep {CFG['hsl']}" if CFG['hsl'] else ""}
        s_cbranch_scc0 {sp}
        {vp}:""")
        flag_poll(aF,vt+5,sF,C,sleep=CFG['hsl'])
        p(f"{so}:")
    elif CFG['hpoll']: flag_poll2(aF,vt+5,sF,C,CFG['hpoll'],CFG['hsl'])
    else: flag_poll(aF,vt+5,sF,C,sleep=CFG['hsl'])
    STAMP('hf')
    both()
    if CFG['wpause']: p(f"s_lshl_b32 s{A}, s{HW}, 2\ns_add_u32 s{A}, s{A}, {F_RI-4}\nv_mov_b32 v{vt+2}, s{A}\nds_write_b32 v{vt+2}, v{vt+1}")
    if CFG['mtw'] in ('RI','MI'):
        nt_=p.lab("nori"); d2=p.lab("g2d")
        p(f"s_cmp_eq_u32 s{HW}, {int(CFG['mtw']=='RI')}\ns_cbranch_scc0 {nt_}")
        touch(vTM,sWG,0); touch(vTM,sWU,0)
        p(f"s_waitcnt vmcnt(2)\ns_branch {d2}\n{dn}:\ns_cmp_eq_u32 s{HW}, {int(CFG['mtw']=='RI')}\ns_cbranch_scc0 {d2}")
        touch(vTM,sWG,0); touch(vTM,sWU,0)
        p(f"s_branch {d2}\n{nt_}:"); dn=d2
    p(f"""s_waitcnt vmcnt(0)
    {dn}:
    s_lshl_b32 s{A}, s{HW}, {3 if CFG['hs2'] else 2}
    s_add_u32 s{A}, s{A}, {F_M}
    v_mov_b32 v{vt}, {F_G2}
    v_mov_b32 v{vt+2}, s{A}
    s_mov_b64 exec, 1
    ds_write_b32 v{vt+2}, v{vt+1}
    {f"ds_write_b32 v{vt+2}, v{vt+1} offset:{F_RI-4-F_M}" if CFG['wpause'] else ""}
    ds_add_u32 v{vt}, v{vt+1}
    s_mov_b64 exec, -1""")
    STAMP('g2')
    if CFG['lclr']:
        sk=p.lab("nolc"); na=p.lab("lcna"); lp=p.lab("lcp"); ok=p.lab("lcok"); D=40
        p(f"""s_cmp_lg_u32 s{HW}, 0
        s_cbranch_scc1 {sk}
        v_mov_b32 v{vt}, {F_CC}
        s_lshr_b32 s{A}, s2, 2
        s_lshl_b32 s{A}, s{A}, 5
        s_and_b32 s{B}, s2, 3
        s_add_u32 s{A}, s{A}, s{B}
        s_lshl_b32 s{A}, s{A}, 2
        s_add_u32 s{A}, s{A}, {H2B}
        s_mov_b32 s{B}, {H2B}
        v_mov_b32 v{D+4}, s{sTAG}
        v_mov_b32 v{D+5}, 0
        v_lshlrev_b32 v{D+6}, 7, v0""")
        lds_wait(vt,vt+5,C,'gt',4,1)
        p(f"""s_mov_b64 exec, 1
        buffer_store_dword v{D+4}, v{D+5}, {S4(sWS)}, s{A} offen sc1
        s_mov_b64 exec, -1""")
        STAMP('lc1')
        g=dict(G2=(F_G2,2),D1=(F_DONE,1),WOR=(F_WOR,2),WOD=(F_WOD,2))[CFG['lcg']]
        p(f"""s_cmp_eq_u32 s{sT0}, 0
        s_cselect_b32 s{A}, {F_DONE-L_FLG}, {g[0]-L_FLG}
        s_cselect_b32 s{sD}, 4, {g[1]}
        s_add_u32 s{A}, s{A}, {L_FLG}
        v_mov_b32 v{vt}, s{A}""")
        lds_wait(vt,vt+5,C,'gt',f"s{sD}",2)
        p(f"""s_mov_b32 s{C}, {SPIN}
        {lp}:
        buffer_load_dwordx4 {vr(D,4)}, v{D+6}, {S4(sWS)}, s{B} offen sc1
        s_waitcnt vmcnt(0)
        v_xor_b32 v{D}, v{D}, v{D+1}
        v_xor_b32 v{D+2}, v{D+2}, v{D+3}
        v_xor_b32 v{D+1}, s{sTAG}, v{D+1}
        v_xor_b32 v{D+3}, s{sTAG}, v{D+3}
        v_or3_b32 v{D}, v{D}, v{D+1}, v{D+2}
        v_or_b32 v{D}, v{D}, v{D+3}
        v_cmp_ne_u32 vcc, 0, v{D}
        s_nop 0
        s_cbranch_vccz {ok}""")
        spin(C,lp,ok,CFG['lcs'])
        p(f"""s_branch {lp}
        {ok}:
        v_mov_b32 v{vt}, {F_DONE}
        s_mov_b64 exec, 1
        ds_add_u32 v{vt}, v{vt+1}
        s_mov_b64 exec, -1""")
        STAMP('lc2'); COUNT('nlc',C,SPIN)
        p(f"{sk}:")
    if CFG['mtw']=='sm':
        u=p.lab("smu"); j=p.lab("smj")
        def run(r,n,f):
            for i in range(n):
                if CFG['smx']==2: p(f"s_load_dwordx2 s[100:101], s[{r}:{r+1}], s{A} offset:{f(i)+60}")
                else: p(f"s_load_dword s100, s[{r}:{r+1}], s{A} offset:{f(i)}")
        p(f"""s_mul_i32 s{A}, s{sSLOT}, {20*3072}
        s_mul_i32 s{B}, s{sG}, 384
        s_add_u32 s{A}, s{A}, s{B}
        s_cmp_eq_u32 s{HW}, 0
        s_cbranch_scc0 {u}""")
        run(sWG,60,lambda i:(i//3)*3072+(i%3)*128)
        p(f"s_branch {j}\n{u}:")
        run(sWU,60,lambda i:(i//3)*3072+(i%3)*128)
        p(f"{j}:")
        if CFG['smd']:
            p(f"""s_lshl_b32 s{A}, s{sSLOT}, 1
            s_add_u32 s{A}, s{A}, s{HW}
            s_mul_i32 s{A}, s{A}, {24*1280}
            s_mul_i32 s{B}, s{sG}, 160
            s_and_b32 s{B}, s{B}, -128
            s_add_u32 s{A}, s{A}, s{B}""")
            run(sWD,48,lambda i:(i//2)*1280+(i%2)*128)
        STAMP('mt')
        if CFG['prof'] and any('mt2' in x for x in CFG['st']): p("s_waitcnt lgkmcnt(0)"); STAMP('mt2')
    if 'w3' in (CFG['wtw'],CFG['mtw']):
        fa=dict(G1=(F_G1,4),WOR=(F_WOR,2),WOD=(F_WOD,2),WO2=(F_WO2,2),DONE=(F_DONE,ND),PR=(F_PR,4),LD=(F_LD,1),RL=(F_H2,4))[CFG['mtg']]
        p(f"v_mov_b32 v{vt}, {fa[0]}")
        if CFG['mth']:
            nt_=p.lab("nomt")
            p(f"s_cmp_eq_u32 s{sHF}, 0\ns_cbranch_scc1 {nt_}")
        lds_wait(vt,vt+5,C,'gt',fa[1],1)
        wtouch('w3',0)
        if CFG['mth']:
            p(f"v_subrev_u32 v{vTM}, {20*3072}, v{vTM}")
            if CFG['mth']==2: p("s_waitcnt vmcnt(0)")
            wtouch('w3',0)
            p(f"{nt_}:")
        if CFG['dw3']: touch(vTD,sWD,CFG['mpair'])
        STAMP('mt')
        if CFG['prof'] and any('mt2' in x for x in CFG['st']): p("s_waitcnt vmcnt(0)"); STAMP('mt2')

def tr_addr(a0,t):
    tab=[[0,8],[4,12],[16,36],[20,28],[24,32]]
    pk=[sum((tab[u][rd]//4)<<(4*u) for u in range(5)) for rd in range(2)]
    A=sT+7; B=sT+8
    p(f"""s_mov_b32 s{A}, {pk[0]}
    s_mov_b32 s{B}, {pk[1]}
    v_bfe_u32 v{t}, v0, 2, 2
    v_mul_u32_u24 v{t}, 160, v{t}
    v_and_b32 v{t+1}, 3, v0
    v_mad_u32_u24 v{t}, v{t+1}, 40, v{t}
    v_lshrrev_b32 v{t+1}, 4, v0""")
    for s_ in range(5):
        p(f"""v_add_u32 v{t+2}, {4*s_}, v{t+1}
        v_mul_u32_u24 v{t+4}, 52, v{t+2}
        v_lshrrev_b32 v{t+4}, 8, v{t+4}
        v_mul_u32_u24 v{t+5}, 5, v{t+4}
        v_sub_u32 v{t+2}, v{t+2}, v{t+5}
        v_lshlrev_b32 v{t+2}, 2, v{t+2}
        v_mul_u32_u24 v{t+4}, 10, v{t+4}""")
        for rd in range(2):
            p(f"""v_bfe_u32 v{t+3}, s{(A,B)[rd]}, v{t+2}, 4
            v_add_u32 v{t+3}, v{t+3}, v{t+4}
            v_mul_u32_u24 v{t+3}, 640, v{t+3}
            v_add_u32 v{a0+2*s_+rd}, v{t+3}, v{t}""")
sBLK,sJ=sT+9,sT+10
def wo_ids():
    p(f"""s_lshr_b32 s{sBLK}, s{sSLOT}, 3
    s_lshl_b32 s{sJ}, s{sG}, 2
    s_add_u32 s{sBLK}, s{sBLK}, s{sJ}
    s_and_b32 s{sJ}, s{sSLOT}, 7""")
def clr_ids(A,B,C,D_):
    p(f"""s_lshr_b32 s{C}, s{sSLOT}, 3
    s_lshl_b32 s{B}, s{sG}, 2
    s_add_u32 s{C}, s{C}, s{B}
    s_lshl_b32 s{C}, s{C}, 3
    s_and_b32 s{B}, s{sSLOT}, 7
    s_add_u32 s{D_}, s{C}, s{B}
    s_lshr_b32 s{A}, s{D_}, 1
    s_mul_i32 s{A}, s{A}, 20480
    s_and_b32 s{B}, s{B}, 1
    s_mul_i32 s{B}, s{B}, 5120
    s_add_u32 s{A}, s{A}, s{B}
    s_add_u32 s{A}, s{A}, {OB}
    s_mul_i32 s{B}, s{sHH}, 10240
    s_add_u32 s{C}, s{A}, 10240
    s_add_u32 s{A}, s{A}, s{B}
    s_sub_u32 s{C}, s{C}, s{B}
    s_lshl_b32 s{D_}, s{D_}, 10
    s_add_u32 s{D_}, s{D_}, {PS}""")
def clears(part):
    A=sT+13; B=sT+14; C=sT+15; D_=sT+16; D=12; aL=16
    if part==0:
        clr_ids(A,B,C,D_)
        p(f"v_lshlrev_b32 v{aL}, 4, v0")
        for r in range(4): p(f"v_mov_b32 v{D+r}, -1")
        return
    st4=lambda so,off,sc: f"buffer_store_dwordx4 v[{D}:{D+3}], v{aL}, {S4(sWS)}, s{so} offen offset:{off} {sc}" if not (CFG['noclr']>>(0 if sc!='sc1' else 1))&1 else "s_nop 0"
    w2=p.lab("clw2"); w3=p.lab("clw3"); dn=p.lab("cldn")
    if CFG['hsent']:
        H_=sT+17; nh=p.lab("clnh")
        p(f"""s_cmp_eq_u32 s{sWAVE}, 3
        s_cbranch_scc1 {nh}
        s_lshl_b32 s{B}, s{sWAVE}, 8
        s_add_u32 s{B}, s{B}, s2
        s_sub_u32 s{H_}, s{B}, 384
        s_cselect_b32 s{H_}, s{B}, s{H_}
        s_cselect_b32 s{H_+1}, 3, 2
        s_cselect_b32 s{H_+2}, 0, {VH+10240-KH-20480}
        s_cselect_b32 s{H_+3}, 1, 0
        s_lshr_b32 s{B}, s{H_}, s{H_+1}
        s_lshl_b32 s{H_+1}, s{B}, s{H_+1}
        s_sub_u32 s{H_}, s{H_}, s{H_+1}
        s_mul_i32 s{H_}, s{H_}, 2560
        s_add_u32 s{H_}, s{H_}, s{H_+2}
        s_mul_i32 s{H_+1}, s{B}, 171
        s_lshr_b32 s{H_+1}, s{H_+1}, 9
        s_add_u32 s{B}, s{B}, s{H_+1}
        s_mul_i32 s{B}, s{B}, 20480
        s_lshl_b32 s{B}, s{B}, s{H_+3}
        s_add_u32 s{H_}, s{H_}, s{B}
        s_add_u32 s{H_}, s{H_}, {KH+20480}""")
        for o in (0,1024,1536): p(st4(H_,o,"sc1"))
        p(f"{nh}:")
    p(f"""s_cmp_ge_u32 s{sWAVE}, 2
    s_cbranch_scc1 {w2}
    s_mul_i32 s{B}, s{sWAVE}, 2560
    s_add_u32 s{A}, s{A}, s{B}""")
    for o in (0,1024,1536): p(st4(A,o,CFG['cpol']))
    p(f"""s_branch {dn}
    {w2}:
    s_cmp_eq_u32 s{sWAVE}, 3
    s_cbranch_scc1 {w3}
    s_mul_i32 s{C}, s2, 2560
    s_add_u32 s{C}, s{C}, {CAND}""")
    if 'c' in CFG['ptc']: p(f"v_lshlrev_b32 v228, 7, v0\ns_mov_b64 exec, {0x3ff if 'l' in CFG['ptc'] else 0xfffff}\nbuffer_load_dword v229, v228, {S4(sWS)}, s{C} offen\ns_mov_b64 exec, -1")
    for o in (0,1024,1536): p(st4(C,o,"sc1"))
    p(f"""s_branch {dn}
    {w3}:""")
    if CFG['osent']:
        if 'o' in CFG['ptc']: p(f"v_lshlrev_b32 v228, 7, v0\ns_mov_b32 exec_hi, 0xff\nbuffer_load_dword v229, v228, {S4(sWS)}, s{C} offen\ns_mov_b64 exec, -1")
        for o in range(4): p(st4(C,o*1024,"sc1"))
        p(f"s_add_u32 s{C}, s{C}, 4096"); p(st4(C,0,"sc1"))
    p(f"""s_cmp_ge_u32 s2, 24
    s_cbranch_scc1 {dn}
    s_lshl_b32 s{C}, s2, 10
    s_add_u32 s{C}, s{C}, {ACT}""")
    if 'a' in CFG['ptc']: p(f"v_lshlrev_b32 v228, 7, v0\ns_mov_b64 exec, 0xff\nbuffer_load_dword v229, v228, {S4(sWS)}, s{C} offen\ns_mov_b64 exec, -1")
    p(st4(C,0,"sc1"))
    p(f"{dn}:")
cU=sT+13; vC=84
def hclear_setup(isB):
    A=sT+15; B=sT+16; C=sT+17; D_=sT+18; H_=sT+17
    clr_ids(A,B,C,D_)
    if isB: p(f"""s_mul_i32 s{B}, s2, 2560
        s_add_u32 s{B}, s{B}, {CAND}
        s_add_u32 s{A}, s{C}, 2560
        s_cmp_eq_u32 s{HW}, 2
        s_cselect_b32 s{cU+1}, s{B}, s{A}
        s_mov_b32 s{cU}, s{C}""")
    else: p(f"""s_mul_i32 s{B}, s{HW}, 2560
        s_add_u32 s{cU+1}, s{A}, s{B}""")
    p(f"""s_lshl_b32 s{B}, s{HW}, 8
    s_add_u32 s{B}, s{B}, s2
    s_sub_u32 s{H_}, s{B}, 384
    s_cselect_b32 s{H_}, s{B}, s{H_}
    s_cselect_b32 s{H_+1}, 3, 2
    s_cselect_b32 s{H_+2}, 0, {VH+10240-KH-20480}
    s_cselect_b32 s{H_+3}, 1, 0
    s_lshr_b32 s{B}, s{H_}, s{H_+1}
    s_lshl_b32 s{H_+1}, s{B}, s{H_+1}
    s_sub_u32 s{H_}, s{H_}, s{H_+1}
    s_mul_i32 s{H_}, s{H_}, 2560
    s_add_u32 s{H_}, s{H_}, s{H_+2}
    s_mul_i32 s{H_+1}, s{B}, 171
    s_lshr_b32 s{H_+1}, s{H_+1}, 9
    s_add_u32 s{B}, s{B}, s{H_+1}
    s_mul_i32 s{B}, s{B}, 20480
    s_lshl_b32 s{B}, s{B}, s{H_+3}
    s_add_u32 s{H_}, s{H_}, s{B}
    s_add_u32 s{H_}, s{H_}, {KH+20480}""")
    if isB: p(f"""s_cmp_eq_u32 s{HW}, 2
        s_cselect_b32 s{cU}, s{H_}, s{cU}
        s_cselect_b32 s{cU+3}, 256, s2
        s_lshl_b32 s{cU+2}, s2, 10
        s_cmp_lt_u32 s{cU+3}, 24
        s_cselect_b32 s{H_}, 0, {STX+0x20000-ACT}
        s_add_u32 s{cU+2}, s{cU+2}, s{H_}
        s_add_u32 s{cU+2}, s{cU+2}, {ACT}""")
    else: p(f"""s_mov_b32 s{cU}, s{H_}
        s_getreg_b32 s{A}, hwreg(HW_REG_XCC_ID, 0, 4)
        s_or_b32 s{A}, s{A}, s{sTAG}
        v_mov_b32 v{vC+5}, s{A}
        s_lshl_b32 s{cU+2}, s2, 2
        s_add_u32 s{cU+2}, s{cU+2}, {H1}""")
    p(f"v_lshlrev_b32 v{vC+4}, 4, v0")
    for r in range(4): p(f"v_mov_b32 v{vC+r}, -1")
def hclear(c,isB):
    st=lambda so,off,sc: (p(f"buffer_store_dwordx4 v[{vC}:{vC+3}], v{vC+4}, {S4(sWS)}, s{so} offen offset:{off} {sc}"),OPS.append('clr'))
    ks=[k for k in range(2) if CFG['cst'][k]==c and (CFG['hsent'] or k or isB)]
    pol=lambda k: "sc1" if isB or k==0 else CFG['cpol']
    for k in ks: st(cU+k,0,pol(k)); st(cU+k,1024,pol(k))
    if ks: p(f"s_mov_b64 exec, s[{sLO}:{sLO+1}]")
    for k in ks: st(cU+k,2048,pol(k))
    if ks: p("s_mov_b64 exec, -1")
    if isB and c==CFG['cst'][1]:
        sk=p.lab("noact")
        p(f"s_cmp_lt_u32 s{cU+3}, 24\ns_cselect_b64 exec, -1, 1"); st(cU+2,0,"sc1"); p("s_mov_b64 exec, -1")
    if not isB and c==max(CFG['cst'])+2:
        p(f"s_mov_b64 exec, 1\nbuffer_store_dword v{vC+5}, v{vC+4}, {S4(sWS)}, s{cU+2} offen sc1\ns_mov_b64 exec, -1"); OPS.append('clr')
sSM=sT+11
def sm_setup():
    A=sT+20
    p(f"""s_and_b32 s{A}, s{HW}, 1
    s_lshl_b32 s{sSM}, s{sSLOT}, 1
    s_add_u32 s{A}, s{A}, s{sSM}
    s_mul_i32 s{sSM}, s{A}, {10*3072}
    s_mul_i32 s{A}, s{sG}, 384
    s_add_u32 s{sSM}, s{sSM}, s{A}
    s_lshl_b32 s{A}, s2, 2
    s_add_u32 s{A}, s{A}, s{HW}
    s_mul_i32 s{sSM+1}, s{A}, 800
    s_and_b32 s{sSM+1}, s{sSM+1}, -128""")
def sm_touch(c,isB):
    for opt,n,f in ((CFG['smw'],30,lambda i: f"s_load_dword s100, s[{(sWG,sWU)[isB]}:{(sWG,sWU)[isB]+1}], s{sSM} offset:{(i//3)*3072+(i%3)*128}"),
                    (CFG['smo'],7,lambda i: f"s_load_dword s100, s[{sWO}:{sWO+1}], s{sSM+1} offset:{i*128}")):
        if opt and opt[0]<=c<opt[1]:
            k=opt[1]-opt[0]
            for i in range(n*(c-opt[0])//k,n*(c+1-opt[0])//k): p(f(i))
def code_pf():
    A=sT+18
    p(f"""s_getpc_b64 s[{A}:{A+1}]
    L_pc:
    s_sub_u32 s{A}, s{A}, L_pc-{NAME}_kernel
    s_subb_u32 s{A+1}, s{A+1}, 0
    s_lshl_b32 s{A+2}, s{sSLOT}, 2
    s_add_u32 s{A+2}, s{A+2}, s{sWAVE}
    s_mul_i32 s{A+2}, s{A+2}, 384
    s_min_u32 s{A+2}, s{A+2}, (L_exit-{NAME}_kernel-384)&0xffffff80""")
    for i in range(3): p(f"s_load_dwordx2 s[100:101], s[{A}:{A+1}], s{A+2} offset:{i*128+60}")
def wave_sum(x,t):
    dp="row_mask:0xf bank_mask:0xf"
    for c in ("quad_perm:[1,0,3,2]","quad_perm:[2,3,0,1]","row_half_mirror","row_mirror"):
        p(f"s_nop 1\nv_add_f32_dpp v{x}, v{x}, v{x} {c} {dp}")
    for sw in (16,32):
        p(f"""v_mov_b32 v{t}, v{x}
        s_nop 1
        v_permlane{sw}_swap_b32 v{x}, v{t}
        s_nop 0
        v_add_f32 v{x}, v{x}, v{t}""")
sPF=sT+16
def pf_group(n=5):
    for i in range(n): p(f"s_load_dwordx2 s[100:101], s[{sWO}:{sWO+1}], s{sPF} offset:{i*128+60}")
    p(f"""s_add_u32 s{sPF}, s{sPF}, {n*128}
    s_sub_u32 s{sPF+2}, s{sPF+2}, 1
    s_add_u32 s{sPF+3}, s{sPF+1}, 12800
    s_cmp_eq_u32 s{sPF}, s{sPF+3}
    s_cselect_b32 s{sPF}, s{sPF+1}, s{sPF}""")
def helperB(steps):
    A=sT+7; B=sT+8; vt=2; aD=140; aT=146; aLin=12; D=40; WRr=32
    sO=sT+1; sL=sT+2; sL0=sT+3; sL1=sT+4; C=sT+5
    p("L_helperB:")
    vM=23; x=10; a=sT+16
    clr_ids(a,a+1,a+2,a+3)
    p(f"""s_mul_i32 s{a+1}, s{HW}, 25
    s_sub_u32 s{a+1}, s{a+1}, 50
    v_min_u32 v{x}, 24, v0
    v_add_u32 v{x}, s{a+1}, v{x}
    v_min_u32 v{x}, 48, v{x}
    s_sub_u32 s{a+3}, s{a+3}, {40*128}
    s_and_b32 s{a+1}, s{sSLOT}, 15
    s_lshl_b32 s{a+2}, s{sG}, 4
    s_add_u32 s{a+1}, s{a+1}, s{a+2}
    s_lshl_b32 s{a+1}, s{a+1}, 7
    s_add_u32 s{a+1}, s{a+1}, {FL-48*128}
    v_mov_b32 v{x+1}, s{a}
    v_mov_b32 v{x+2}, s{a+3}
    v_cmp_le_u32 vcc, 40, v{x}
    v_mov_b32 v{x+3}, s{a+1}
    s_mul_i32 s{a+1}, s{sSLOT}, {200*128}
    v_cndmask_b32 v{x+1}, v{x+1}, v{x+2}, vcc
    v_cmp_le_u32 vcc, 48, v{x}
    s_mul_i32 s{a}, s{HW}, {100*128}
    s_add_u32 s{a+1}, s{a+1}, s{a}
    v_cndmask_b32 v{x+1}, v{x+1}, v{x+3}, vcc
    v_lshl_add_u32 v{vM}, v{x}, 7, v{x+1}
    s_sub_u32 s{sPF+1}, s{a+1}, {200*128}
    s_mul_i32 s{sPF}, s{sG}, 5
    s_lshr_b32 s{sPF}, s{sPF}, 1
    s_mul_i32 s{sPF}, s{sPF}, 640
    s_add_u32 s{sPF}, s{sPF}, s{sPF+1}
    s_mov_b32 s{sPF+2}, 20
    v_lshlrev_b32 v{vH+4}, 4, v0
    v_add_u32 v{vH+4}, {H1}, v{vH+4}
    v_mul_u32_u24 v{WRr+5}, 20, v0""")
    aB=130; sK=sT+11; sN=sT+16; sS=sT+17
    def wo_setup():
        va=96
        wo_ids()
        T=[[0,2],[1,3],[4,9],[5,7],[6,8]]
        NIB=[sum((10*((4*s5+g_)//5)+T[(4*s5+g_)%5][rd]-(8*s5+2*g_-2))<<(4*(4*rd+g_)) for rd in range(2) for g_ in range(4)) for s5 in range(5)]
        for i in range(5):
            p(f"""v_add_u32 v{va}, {64*i}, v0
            v_mul_u32_u24 v{va+1}, 6554, v{va}
            v_lshrrev_b32 v{va+1}, 16, v{va+1}
            v_mul_u32_u24 v{va+2}, 10, v{va+1}
            v_sub_u32 v{va}, v{va}, v{va+2}
            v_and_b32 v{aB+5+i}, 28, v{va+1}
            v_and_b32 v{va+2}, 3, v{va+1}
            v_mul_u32_u24 v{va+2}, 1280, v{va+2}
            v_lshl_add_u32 v{va}, v{va}, 4, v{va+2}
            v_bfe_u32 v{va+1}, v{va+1}, 2, 2
            v_mul_u32_u24 v{va+1}, 10240, v{va+1}
            v_add_u32 v{aB+i}, v{va}, v{va+1}""")
            if 0<i<4: p(f"v_subrev_u32 v{aB+i}, {i*1024}, v{aB+i}")
        p(f"""s_lshr_b32 s{A}, s{sSLOT}, 3
        s_mul_i32 s{A}, s{A}, 5
        s_lshr_b32 s{A}, s{A}, 1
        s_add_u32 s{A}, s{A}, s{HW}
        s_sub_u32 s{sK}, s{A}, 2
        v_mov_b32 v{va}, 5120""")
        def woaddr(n):
            p(f"""s_add_u32 s{A}, s{sK}, {2*n}
            s_sub_u32 s{B}, s{A}, 10
            s_cselect_b32 s{A}, s{A}, s{B}
            s_sub_u32 s{B}, s{A}, 5
            s_cselect_b32 s{B}, s{A}, s{B}
            s_mul_i32 s{sS}, s{A}, 40960
            s_sub_u32 s{sS}, s{sS}, 10240
            s_mov_b32 s{sN}, {hex(NIB[0])}""")
            for k in range(1,5): p(f"s_cmp_eq_u32 s{B}, {k}\ns_cselect_b32 s{sN}, {hex(NIB[k])}, s{sN}")
            for i in range(5):
                p(f"""v_bfe_u32 v{va+1}, s{sN}, v{aB+5+i}, 4
                v_mad_u32_u24 v{va+1}, v{va+1}, v{va}, v{aB+i}
                v_add_u32 v{aD+5*n+i}, s{sS}, v{va+1}""")
        for n in range(5): woaddr(n)
    if CFG['wose']==0: wo_setup()
    npf=CFG['npf']
    for _ in range(npf[0]): pf_group()
    def hook(c):
        if c==(100 if CFG['hstep']==CFG['stg'] else CFG['hstep']):
            p(f"buffer_load_dwordx4 v[{vH}:{vH+3}], v{vH+4}, {S4(sWS)}, 0 offen sc1"); OPS.append('h1')
        if c==100:
            p(f"buffer_load_dwordx4 {vr(WRr,4)}, v{WRr+5}, {S4(sWR)}, 0 offen\nbuffer_load_dword v{WRr+4}, v{WRr+5}, {S4(sWR)}, 0 offen offset:16"); OPS.extend(['wr','wr'])
        if c==CFG['pt']:
            qkv_touch()
            OPS.extend(['pt']*wtouch('w1',1))
        if c==CFG['wts']: OPS.extend(['pt']*touch(vTW,sWO,0))
        if c==CFG['pt2']: OPS.extend(['pt']*touch(vM,sWS,CFG['qpair2'],CFG['tpol']))
    steps(hook,1)
    st=dict(n=0)
    def dma(cnt):
        for _ in range(min(cnt,50-st['n'])):
            n=st['n']; i=n%5; k=(n//5)%5
            if n==0 or n==25:
                p(f"""s_xor_b32 s{A}, s{sHH}, {n//25}
                s_mul_i32 s{sO}, s{A}, {320*1280}
                s_mul_i32 s{sL0}, s{A}, 51200
                s_add_u32 s{sL0}, s{sL0}, {L_WO}
                s_mul_i32 s{A}, s{sJ}, 160
                s_add_u32 s{sO}, s{sO}, s{A}""")
            if i==0: p(f"""s_add_u32 s{A}, s{sK}, {2*k}
                s_sub_u32 s{B}, s{A}, 10
                s_cselect_b32 s{A}, s{A}, s{B}
                s_mul_i32 s{sL}, s{A}, 5120
                s_add_u32 s{sL}, s{sL}, s{sL0}
                s_mov_b32 m0, s{sL}
                s_nop 0""")
            if i==4: p(f"s_add_u32 m0, s{sL}, 4096\ns_nop 0")
            p(f"buffer_load_dwordx4 v{aD+5*k+i}, {S4(sWO)}, s{sO} offen offset:{(i&3)*1024} {CFG['wopol']} lds")
            OPS.append('wo%d'%(n//25))
            st['n']+=1
    ne=None
    def hello():
        vmwait('h1')
        nonlocal ne; lp=p.lab("hello"); ok=p.lab("hello_ok"); ne=p.lab("noep")
        p(f"""s_mov_b32 s{A}, {SPIN}
        {lp}:
        v_xor_b32 v{vH}, s{sTAG}, v{vH}
        v_xor_b32 v{vH+1}, s{sTAG}, v{vH+1}
        v_xor_b32 v{vH+2}, s{sTAG}, v{vH+2}
        v_xor_b32 v{vH+3}, s{sTAG}, v{vH+3}
        v_or3_b32 v{vt}, v{vH}, v{vH+1}, v{vH+2}
        v_or_b32 v{vt}, v{vt}, v{vH+3}
        v_cmp_lt_u32 vcc, 15, v{vt}
        s_nop 0
        s_cbranch_vccz {ok}""")
        spin(A,lp,ok,4)
        p(f"""buffer_load_dwordx4 v[{vH}:{vH+3}], v{vH+4}, {S4(sWS)}, 0 offen sc1
        s_waitcnt vmcnt(0)
        s_branch {lp}
        {ok}:
        v_lshl_or_b32 v{vH}, v{vH+1}, 4, v{vH}
        v_lshl_or_b32 v{vH+2}, v{vH+3}, 4, v{vH+2}
        v_lshl_or_b32 v{vH}, v{vH+2}, 8, v{vH}
        v_and_b32 v{vt}, 1, v0
        v_readlane_b32 s{A}, v{vH}, 0
        v_readlane_b32 s{B}, v{vH}, 1
        v_cmp_eq_u32 vcc, 0, v{vt}
        v_mov_b32 v{vt+1}, s{A}
        v_mov_b32 v{vt+2}, s{B}
        v_cndmask_b32 v{vt+1}, v{vt+2}, v{vt+1}, vcc
        v_cmp_ne_u32 vcc, v{vt+1}, v{vH}
        v_mov_b32 v{vt}, {L_MODE}
        s_cmp_lg_u64 vcc, 0
        s_cselect_b32 s{sMODE}, 1, {CFG['force_slow']}
        v_mov_b32 v{vt+1}, s{sMODE}
        ds_write_b32 v{vt}, v{vt+1}""")
    vmwait(8); p("s_barrier")
    if CFG['hpr']: p(f"s_setprio {CFG['hpr']}")
    if CFG['hme']==2: hello()
    if CFG['sfe']==2: stats_fin(96,B)
    hook(8)
    p(f"v_lshlrev_b32 v{aLin}, 4, v0")
    if CFG['hme']==1: hello()
    if CFG['sfe']==1: stats_fin(96,B)
    vmwait(9); p("s_barrier"); STAMP('hb9'); hook(9)
    if CFG['sf2']==1 or (CFG['sf2'] and CFG['sfe']): p("s_barrier")
    if not CFG['sfe']: stats_fin(96,B)
    if not CFG['hme']: hello()
    STAMP('h10')
    p(f"""{"s_waitcnt lgkmcnt(0)" if CFG['epi2']>1 and not CFG['sf2'] else ""}
    {"" if CFG['sf2'] else "s_barrier"}
    s_waitcnt lgkmcnt(0)
    s_barrier""")
    vmw=len(OPS)-1-max(i for i,t in enumerate(OPS) if t=='wr')
    STAMP('hE1')
    if CFG['hpr']: p("s_setprio 0")
    p(f"""v_mov_b32 v{vt}, 0x3f803f80
    v_mov_b32 v{vt+1}, 0
    s_waitcnt vmcnt({vmw})""")
    for k in range(5): p(f"v_dot2_f32_bf16 v{vt+1}, v{WRr+k}, v{vt}, v{vt+1}")
    p("s_nop 0")
    wave_sum(vt+1,vt+2)
    p(f"v_mov_b32 v{vt}, {L_SWS}\nds_write_b32 v{vt}, v{vt+1}")
    if CFG['wose']==1: wo_setup()
    if CFG['hst']: halo_copy(vt,A,B,C,wo_setup if CFG['wose']==2 else (lambda:None))
    else:
        if not CFG['hs2']: halo_flag(vt,A,B,C)
        if CFG['wose']==2: wo_setup()
    p(f"""s_add_u32 s{A}, s2, s{HW}
    s_cmp_lg_u32 s{A}, 2
    s_cbranch_scc1 {ne}
    s_add_u32 s{A}, s{sEP}, 1
    v_mov_b32 v{vt}, {EPO}
    v_mov_b32 v{vt+1}, s{A}
    s_mov_b64 exec, 1
    buffer_store_dword v{vt+1}, v{vt}, {S4(sWS)}, 0 offen sc1
    s_mov_b64 exec, -1
    {ne}:""")
    if CFG['hkv']:
        att_ids()
        p(f"s_mov_b32 s{sK1024}, 1024")
        kv_addr(aLin,13,vt)
        own_setup(14,vt)
        own_kv(aLin,13,14,vt,sHO)
    p(f"v_mov_b32 v{vt}, {F_G1}")
    if CFG['wburst']:
        p(f"""s_lshl_b32 s{B}, s{sSLOT}, 1
        s_add_u32 s{B}, s{B}, s{HW}
        s_sub_u32 s{B}, s{B}, 2
        s_mul_i32 s{B}, s{B}, 12800
        v_lshl_add_u32 v{vTW}, v0, 7, s{B}
        v_min_u32 v{vTW+1}, 35, v0
        v_lshl_add_u32 v{vTW+1}, v{vTW+1}, 7, s{B}
        v_add_u32 v{vTW+1}, 8192, v{vTW+1}""")
        if CFG['wburst']==2: touch(vTW,sWO,0); touch(vTW+1,sWO,0)
    lds_wait(vt,vt+1,A,'gt',4,1)
    if CFG['wburst']==1: touch(vTW,sWO,0); touch(vTW+1,sWO,0)
    wtouch('w3',1)
    if CFG['wog2']:
        p(f"v_mov_b32 v{vt+2}, {F_G2}")
        lds_wait(vt+2,vt+1,A,'gt',2,1)
    STAMP('wo_s')
    del OPS[:]
    thr=CFG['wothr']; gs=CFG['wogs']; thr1=CFG['wothr1']
    def more(n,dyn=False):
        while n>0 and st['n']<50:
            k=min(gs,n)
            if dyn and thr1<thr and st['n']>=thr1:
                sk=p.lab("wog")
                p(f"""ds_read_b32 v{vt+1}, v{vt} offset:{(F_G2 if CFG['wgf']=='G2' else F_M)-F_G1}
                s_waitcnt lgkmcnt(0)
                v_cmp_gt_u32 vcc, {2 if CFG['wgf']=='G2' else 1}, v{vt+1}
                s_nop 0
                s_cbranch_vccz {sk}
                s_waitcnt vmcnt({max(0,thr1-k)})
                {sk}:""")
            if CFG['wpause'] and st['n']==CFG['wpause']:
                p(f"v_mov_b32 v{vt+2}, {F_RI}"); lds_wait(vt+2,vt+1,A,'gt',1,1); STAMP('wo_p')
            if st['n']>=thr: p(f"s_waitcnt vmcnt({max(0,thr-k)})")
            gi=st['n']//gs; a_,b_=CFG['mtr']
            dma(k); n-=k
            if CFG['mtw']=='wo' and a_<=gi<b_:
                l0=60*(gi-a_)//(b_-a_); l1=60*(gi+1-a_)//(b_-a_); msk=((1<<l1)-1)^((1<<l0)-1)
                u=p.lab("tu"); j=p.lab("tj")
                p(f"s_mov_b32 exec_lo, {hex(msk&0xffffffff)}\ns_mov_b32 exec_hi, {hex(msk>>32)}\ns_cmp_eq_u32 s{HW}, 2\ns_cbranch_scc0 {u}")
                touch(vTM,sWG,0); p(f"s_branch {j}\n{u}:"); touch(vTM,sWU,0); p(f"{j}:\ns_mov_b64 exec, -1")
                OPS.append('mt')
    def sig(f):
        p(f"""v_mov_b32 v{vt+2}, {f}
        v_mov_b32 v{vt+3}, 1
        s_mov_b64 exec, 1
        ds_add_u32 v{vt+2}, v{vt+3}
        s_mov_b64 exec, -1""")
    more(25+min(thr,15),True)
    vmwait('wo0')
    sig(F_WOR)
    STAMP('wo_0')
    more(50)
    sig(F_WOD)
    STAMP('wo_1')
    p("s_waitcnt vmcnt(0)")
    sig(F_WO2)
    STAMP('wo')

ACC=64; CS=128; XF=132; WF=148; SEL=164; aX=168; aW=172; aST=174; aSG=178; vT=2
sWR_,sWC,sLC,sTY,sSO,sHALO,sFO,sSO2=range(sT,sT+8)
def gemm_setup():
    t=vT; A=sT+10; B=sT+11
    wave_ids(sWAVE,sWR_,sWC,sLC,sTY)
    if CFG['g16']:
        p(f"""v_and_b32 v{t}, 15, v0
        v_and_b32 v{t+1}, 8, v0
        s_cmp_eq_u32 s{sTY}, 2
        s_cselect_b32 s{A}, 1, 0
        v_mul_u32_u24 v{t+1}, s{A}, v{t+1}
        s_lshl_b32 s{A}, s{sWR_}, 6
        v_add3_u32 v{t+1}, v{t+1}, v{t}, s{A}
        v_lshlrev_b32 v{t+1}, 7, v{t+1}
        v_lshrrev_b32 v{t+2}, 4, v0
        v_lshrrev_b32 v{t+3}, 1, v{t}
        v_xor_b32 v{t+3}, v{t+3}, v{t+2}
        v_lshl_add_u32 v{aX}, v{t+3}, 4, v{t+1}
        v_xor_b32 v{aX+1}, 64, v{aX}
        v_bfe_u32 v{t+3}, v0, 2, 2
        v_lshl_add_u32 v{t+4}, v{t+2}, 3, v{t+3}
        v_lshlrev_b32 v{t+4}, 8, v{t+4}
        v_xor_b32 v{t+3}, s{sWAVE}, v{t+3}
        v_lshl_add_u32 v{t+4}, v{t+3}, 6, v{t+4}
        v_bfe_u32 v{t+3}, v0, 4, 1
        v_lshl_add_u32 v{t+4}, v{t+3}, 5, v{t+4}
        v_and_b32 v{t+5}, 3, v0
        v_lshl_add_u32 v{t+4}, v{t+5}, 3, v{t+4}
        v_add_u32 v{aW6}, 16384, v{t+4}
        v_xor_b32 v{aW6+1}, 32, v{aW6}
        v_xor_b32 v{aW6+2}, 64, v{aW6}
        v_xor_b32 v{aW6+3}, 96, v{aW6}""")
        for r in range(4): p(f"v_mov_b32 v{SEL+r}, 0x3f803f80\nv_mov_b32 v{CS2+r}, 0")
    else:
        p(f"""v_and_b32 v{t}, 31, v0
        s_lshl_b32 s{A}, s{sWR_}, 6
        v_add_u32 v{t+1}, s{A}, v{t}
        v_lshlrev_b32 v{t+1}, 7, v{t+1}
        v_lshrrev_b32 v{t+2}, 5, v0
        v_bfe_u32 v{t+3}, v0, 1, 3
        v_xor_b32 v{t+3}, v{t+3}, v{t+2}
        v_lshl_add_u32 v{aX}, v{t+3}, 4, v{t+1}""")
        for s in range(1,4): p(f"v_xor_b32 v{aX+s}, {32*s}, v{aX}")
        p(f"""v_bfe_u32 v{t+3}, v0, 2, 2
        v_lshl_add_u32 v{t+4}, v{t+2}, 3, v{t+3}
        v_lshlrev_b32 v{t+4}, 8, v{t+4}
        s_lshl_b32 s{A}, s{sWC}, 1
        s_or_b32 s{A}, s{A}, s{sWR_}
        v_xor_b32 v{t+3}, s{A}, v{t+3}
        v_lshl_add_u32 v{t+4}, v{t+3}, 6, v{t+4}
        v_bfe_u32 v{t+3}, v0, 4, 1
        v_lshl_add_u32 v{t+4}, v{t+3}, 5, v{t+4}
        v_and_b32 v{t+5}, 3, v0
        v_lshl_add_u32 v{t+4}, v{t+5}, 3, v{t+4}
        v_add_u32 v{aW}, 16384, v{t+4}
        v_xor_b32 v{aW+1}, 64, v{aW}
        v_bfe_u32 v{t+4}, v0, 2, 1
        v_cmp_eq_u32 vcc, v{t+3}, v{t+4}
        v_mov_b32 v{t+5}, 0x3f803f80
        s_nop 0
        v_cndmask_b32 v{SEL}, 0, v{t+5}, vcc
        v_cndmask_b32 v{SEL+1}, 0, v{t+5}, vcc
        v_cndmask_b32 v{SEL+2}, 0, v{t+5}, vcc
        v_cndmask_b32 v{SEL+3}, 0, v{t+5}, vcc""")
    for r in list(range(ACC,ACC+64))+list(range(CS,CS+4)): p(f"v_mov_b32 v{r}, 0")
    store_addr(sWR_,sLC,sTY,sSO,sSO2,sHALO,sFO,aST,sT+10,sT+11)
    p(f"s_mov_b32 s{sHAL2}, s{sHALO}")
    if CFG['dcs']:
        ta,tc,tg=[[int(x) for x in r] for r in CFG['rot']]
        assert ta==[0,0,5,5] and all((tg[g-2]-tg[g])%10==(9 if g>=2 else 3) for g in range(8))
        tb={'q':((0,0,5,5),((0,3),(3,2),(0,3),(3,2))),'lo':((0,0,5,8),((0,3),(3,2),(0,3),(0,2))),'hi':((0,0,5,4),((0,2),(2,2),(2,3),(0,3)))}
        for st_,fn in tb.values(): assert sorted((st_[r]+fn[r][0]+k)%10 for r in range(4) for k in range(fn[r][1]))==list(range(10))
        nb=lambda k: sum((f|(n-2)<<3)<<(4*r) for r,(f,n) in enumerate(tb[k][1]))
        mk=lambda n: ((2<<n)-1)|((2<<n)-2)<<10|((1<<n)-1)<<20
        p(f"""s_cmp_lt_u32 s{sG}, 2
        s_movk_i32 s{A}, {nb('hi')}
        s_cselect_b32 s{A}, {nb('lo')}, s{A}
        s_cmp_gt_u32 s{sCT}, 2
        s_cselect_b32 s{A}, s{A}, {nb('q')}
        s_and_b32 s{B}, s{sBK}, 3
        s_lshl_b32 s{B}, s{B}, 2
        s_lshr_b32 s{A}, s{A}, s{B}
        s_bitcmp1_b32 s{A}, 3
        s_mov_b32 s{sCSM}, {mk(2)}
        s_cselect_b32 s{sCSM}, {mk(3)}, s{sCSM}
        s_and_b32 s{A}, s{A}, 7
        s_lshl_b32 s{sCSM}, s{sCSM}, s{A}
        s_lshl_b32 s{A}, s{sG}, 3
        s_add_u32 s{A}, s{A}, s{sCT}
        s_lshl_b32 s{A}, s{A}, 1
        s_add_u32 s{A}, s{A}, s{sWC}
        s_lshl_b32 s{A}, s{A}, 2
        s_add_u32 s{A}, s{A}, s{sRB}
        s_lshl_b32 s{A}, s{A}, 1
        s_add_u32 s{A}, s{A}, s{sWR_}
        s_lshl_b32 s{A}, s{A}, 8
        s_add_u32 s{sCSO}, s{A}, {CSX}
        v_lshlrev_b32 v{aCP}, 3, v0""")
    if CFG['hs2']:
        p(f"""s_xor_b32 s{A}, s{sWR_}, s{sRB}
        s_and_b32 s{A}, s{A}, 1
        s_lshl_b32 s{sHAL2}, s{sHALO}, s{A}
        s_lshl_b32 s{B}, s{sG}, 4
        s_add_u32 s{B}, s{B}, s{sLC}
        s_lshl_b32 s{B}, s{B}, 2
        s_add_u32 s{B}, s{B}, s{sRB}
        s_lshl_b32 s{B}, s{B}, 1
        s_add_u32 s{B}, s{B}, s{A}
        s_lshl_b32 s{B}, s{B}, 7
        s_add_u32 s{sHFA}, s{B}, {FH}""")
    if CFG['hst']: p(f"""s_mul_i32 s{A}, s{sWAVE}, 9216
        s_add_u32 s{A}, s{A}, {L_WO}
        v_lshl_add_u32 v{aSG}, v0, 4, s{A}""")
sHAL2=sDBG; sHFA=25; vHF=190; sCSM=26; sCSO=27; aCP=179; sCSI=37; sM16=4; aW6=170; CS2=44; XF6=(132,12); WF6=(148,28)
def wave_ids(wave,wr,wc,lc,ty):
    p(f"""s_and_b32 s{wr}, s{wave}, 1
    s_lshr_b32 s{wc}, s{wave}, 1
    s_lshl_b32 s{lc}, s{sCT}, 1
    s_add_u32 s{lc}, s{lc}, s{wc}
    s_cmp_eq_u32 s{lc}, 5
    s_cselect_b32 s{lc}, 15, s{lc}
    s_cmp_gt_u32 s{sCT}, 2
    s_subb_u32 s{lc}, s{lc}, 0
    s_mul_i32 s{ty}, s{lc}, 52
    s_lshr_b32 s{ty}, s{ty}, 8""")
def store_addr(wr,lc,ty,so,so2,halo,fo,ast,A,B,t=2):
    p(f"""v_and_b32 v{t}, 31, v0
    v_lshrrev_b32 v{t+2}, 5, v0
    s_mul_i32 s{A}, s{ty}, 5
    s_sub_u32 s{A}, s{lc}, s{A}
    s_mul_i32 s{B}, s{sHH}, 5
    s_add_u32 s{A}, s{A}, s{B}
    s_lshl_b32 s{B}, s{sBK}, 1
    s_add_u32 s{B}, s{B}, s{wr}
    s_lshl_b32 s{B}, s{B}, 1""")
    isv=p.lab("isv"); jn=p.lab("stj")
    p(f"""s_cmp_ge_u32 s{ty}, 2
    s_cbranch_scc1 {isv}
    s_mul_i32 s{so}, s{B}, 2560
    s_mul_i32 s{B}, s{ty}, {KB}
    s_add_u32 s{so}, s{so}, s{B}
    s_add_u32 s{so2}, s{so}, 2560
    s_lshl_b32 s{A}, s{A}, 3""")
    for cb in range(2):
        for ip in range(2):
            p(f"""s_xor_b32 s{B}, s{wr}, {cb}
            s_lshl_b32 s{B}, s{B}, 2
            s_add_u32 s{B}, s{B}, s{A}
            s_add_u32 s{B}, s{B}, {2*ip}
            v_add_u32 v{t+3}, s{B}, v{t+2}
            v_mul_u32_u24 v{t+4}, 205, v{t+3}
            v_lshrrev_b32 v{t+4}, 10, v{t+4}
            v_mul_u32_u24 v{t+5}, 5, v{t+4}
            v_sub_u32 v{t+5}, v{t+3}, v{t+5}
            v_mul_u32_u24 v{t+4}, {64*2560}, v{t+4}
            v_lshl_add_u32 v{t+4}, v{t+5}, 9, v{t+4}
            v_lshl_add_u32 v{ast+2*cb+ip}, v{t}, 4, v{t+4}""")
    p(f"""s_branch {jn}
    {isv}:
    s_mul_i32 s{so}, s{B}, 1280
    s_add_u32 s{so}, s{so}, {VB}
    s_add_u32 s{so2}, s{so}, 1280
    s_lshl_b32 s{A}, s{A}, 6""")
    if CFG['g16']:
        p(f"""v_and_b32 v{t}, 15, v0
        v_bfe_u32 v{t+1}, v0, 4, 1
        v_lshl_add_u32 v{t+2}, v{t+2}, 1, v{t+1}
        v_mul_u32_u24 v{t+2}, 320, v{t+2}""")
        for j in range(4):
            p(f"""s_xor_b32 s{B}, s{wr}, {j>>1}
            s_lshl_b32 s{B}, s{B}, 5
            s_add_u32 s{B}, s{B}, s{A}
            s_add_u32 s{B}, s{B}, {16*(j&1)}
            v_add_u32 v{t+3}, s{B}, v{t}
            v_mul_u32_u24 v{t+4}, 3277, v{t+3}
            v_lshrrev_b32 v{t+4}, 16, v{t+4}
            v_mul_u32_u24 v{t+5}, 20, v{t+4}
            v_sub_u32 v{t+5}, v{t+3}, v{t+5}
            v_mul_u32_u24 v{t+4}, 81920, v{t+4}
            v_lshl_add_u32 v{t+4}, v{t+5}, 4, v{t+4}
            v_add_u32 v{ast+j}, v{t+4}, v{t+2}""")
    for cb in range(0 if CFG['g16'] else 2):
        p(f"""s_xor_b32 s{B}, s{wr}, {cb}
        s_lshl_b32 s{B}, s{B}, 5
        s_add_u32 s{B}, s{B}, s{A}
        v_add_u32 v{t+3}, s{B}, v{t}
        v_mul_u32_u24 v{t+4}, 3277, v{t+3}
        v_lshrrev_b32 v{t+4}, 16, v{t+4}
        v_mul_u32_u24 v{t+5}, 20, v{t+4}
        v_sub_u32 v{t+5}, v{t+3}, v{t+5}
        v_mul_u32_u24 v{t+4}, 81920, v{t+4}
        v_lshl_add_u32 v{t+4}, v{t+5}, 4, v{t+4}
        v_mul_u32_u24 v{t+5}, 320, v{t+2}
        v_add_u32 v{ast+2*cb}, v{t+4}, v{t+5}
        v_add_u32 v{ast+2*cb+1}, 640, v{ast+2*cb}""")
    p(f"{jn}:")
    halo_cond(halo,A)
    if CFG['honly']: p(f"s_mul_i32 s{A}, s{halo}, {KH-KB}\ns_add_u32 s{so}, s{so}, s{A}\ns_add_u32 s{so2}, s{so2}, s{A}")
    p(f"""s_lshl_b32 s{fo}, s{sG}, 4
    s_add_u32 s{fo}, s{fo}, s{lc}
    s_lshl_b32 s{fo}, s{fo}, 5
    s_lshl_b32 s{A}, s{sRB}, 1
    s_add_u32 s{A}, s{A}, s{wr}
    s_add_u32 s{fo}, s{fo}, s{A}
    s_lshl_b32 s{fo}, s{fo}, 2
    s_add_u32 s{fo}, s{fo}, {FL}""")
def xf(buf,xb): return XF+8*buf+4*xb
def wf(buf,cb): return WF+8*buf+4*cb
def reads(kind,buf,par,s):
    L=[]
    for xb in range(2): L.append(f"ds_read_b128 {vr(xf(buf,xb),4)}, v{aX+s} offset:{par*32768+xb*4096}")
    if kind!='S':
        for cb in range(2):
            for rd in range(2): L.append(f"ds_read_b64_tr_b16 {vr(wf(buf,cb)+2*rd,2)}, v{aW+cb} offset:{par*32768+s*4096+rd*1024}")
        L=[L[2],L[3],L[0],L[1],L[4],L[5]]
    return L
def mfmas(kind,buf):
    L=[]
    if kind=='S':
        for xb in range(2):
            x=xf(buf,xb)
            L.append(f"v_mfma_f32_16x16x32_bf16 {vr(ACC+4*xb,4)}, {vr(SEL,4)}, {vr(x,4)}, {vr(ACC+4*xb,4)}")
            L.append(f"v_mfma_f32_4x4x4_16b_bf16 {vr(ACC+8+8*xb,4)}, {vr(x,2)}, {vr(x,2)}, {vr(ACC+8+8*xb,4)}")
            L.append(f"v_mfma_f32_4x4x4_16b_bf16 {vr(ACC+12+8*xb,4)}, {vr(x+2,2)}, {vr(x+2,2)}, {vr(ACC+12+8*xb,4)}")
        return L
    for cb in range(2):
        for xb in range(2):
            a=ACC+16*(2*xb+cb); X=vr(xf(buf,xb),4); W=vr(wf(buf,cb),4)
            if 'm16' in CFG['xp']:
                a+=8*buf
                L.append("\n".join(f"v_mfma_f32_16x16x32_bf16 {vr(a+4*i,4)}, {W if kind=='T' else X}, {vr(xf(buf,xb^i),4) if kind=='T' else vr(wf(buf,cb^i),4)}, {vr(a+4*i,4)}" for i in range(2)))
                continue
            L.append(f"v_mfma_f32_32x32x16_bf16 {vr(a,16)}, {W if kind=='T' else X}, {X if kind=='T' else W}, {vr(a,16)}")
    if 'nocs' in CFG['xp']: return L
    cs=f"v_mfma_f32_16x16x32_bf16 {vr(CS,4)}, {vr(SEL,4)}, {vr(wf(buf,0),4)}, {vr(CS,4)}"
    if not CFG['dcs']: L.insert(2,cs)
    return L
CF_=48
def cs_gate(kind,par):
    p(f"""s_bitcmp1_b32 s{sCSM}, 0
    s_movk_i32 s{sCSI}, {par*32768-65536*par}
    s_cbranch_scc1 L_csb{kind}
    L_csr{kind}{par}:
    s_lshr_b32 s{sCSM}, s{sCSM}, 1""")
def cs_block(kind):
    assert CFG['g16']; K=kind
    p(f"L_csb{K}:\ns_bitcmp0_b32 s{sCSM}, 10\ns_cbranch_scc1 L_csrd{K}\ns_waitcnt lgkmcnt(12)")
    for k in range(4):
        c=(CS,CS2)[k&1]
        p(f"v_mfma_f32_16x16x32_bf16 {vr(c,4)}, {vr(SEL,4)}, {vr(CF_+4*k,4)}, {vr(c,4)}")
    p(f"""s_bitcmp1_b32 s{sCSM}, 20
    s_cbranch_scc1 L_csrd{K}
    s_mov_b32 vcc_lo, 0xffff0000
    s_mov_b32 vcc_hi, 0xffff0000
    v_mov_b32 v{CF_+1}, s{sTAG}
    s_nop 7
    v_cndmask_b32 v{CF_}, v{CS}, v{CS2}, vcc
    s_mov_b64 exec, s[{sLO}:{sLO+1}]
    buffer_store_dwordx2 {vr(CF_,2)}, v{aCP}, {S4(sWS)}, s{sCSO} offen sc1
    s_mov_b64 exec, -1
    s_branch L_csx{K}
    L_csrd{K}:
    s_and_b32 s{sCSI+1}, s{sCSI}, 32768
    v_add_u32 v{aCP-1}, s{sCSI+1}, v{aW6}
    v_add_u32 v{aCP+1}, s{sCSI+1}, v{aW6+1}""")
    for k in range(4):
        for rd in range(2): p(f"ds_read_b64_tr_b16 {vr(CF_+4*k+2*rd,2)}, v{aCP+1 if k&1 else aCP-1} offset:{(k>>1)*8192+rd*1024}")
    p(f"""L_csx{K}:
    s_cmp_eq_u32 s{sCSI}, 0
    s_cbranch_scc1 L_csr{K}0
    s_branch L_csr{K}1""")
def reads6(kind,buf,par,s):
    X=[f"ds_read_b128 {vr(XF6[buf]+4*tt,4)}, v{aX+((tt&1)^s)} offset:{par*32768+(tt>>1)*4096+(tt&1)*(2048 if kind=='T' else 1024)}" for tt in range(4)]
    W=[[f"ds_read_b64_tr_b16 {vr(WF6[buf]+4*j+2*rd,2)}, v{aW6+j} offset:{par*32768+s*8192+rd*1024}" for rd in range(2)] for j in range(4)]
    return W[0]+X[:2]+W[1]+X[2:]+W[2]+W[3]
acc6=lambda tt,j: ACC+16*(2*(tt>>1)+(j>>1))+8*(j&1)+4*(tt&1)
def mfmas6(kind,buf):
    L=[]
    for j in range(4):
        for tt in range(4):
            a=vr(acc6(tt,j),4); X=vr(XF6[buf]+4*tt,4); W=vr(WF6[buf]+4*j,4)
            L.append(f"v_mfma_f32_16x16x32_bf16 {a}, {W if kind=='T' else X}, {X if kind=='T' else W}, {a}")
    if CFG['csv']:
        for q,i in enumerate(CFG['csp']):
            h,r=(q>>2,q&3) if CFG['csv']==1 else (q&1,q>>1)
            c=(CS,CS2)[h]+((r&1) if CFG['csv']==3 else r if CFG['csv']==4 else 0); L[i]+=f"\nv_dot2c_f32_bf16 v{c}, v{WF6[buf]+4*h+r}, v{SEL}" if CFG['csc'] else f"\nv_dot2_f32_bf16 v{c}, v{WF6[buf]+4*h+r}, v{SEL}, v{c}"
    elif not CFG['dcs'] and 'nocs' not in CFG['xp']:
        for h,i in enumerate(CFG['g16c']): c=vr((CS,CS2)[h],4); L.insert(i,f"v_mfma_f32_16x16x32_bf16 {c}, {vr(SEL,4)}, {vr(WF6[buf]+4*h,4)}, {c}")
    return L
def epi_addr(kind):
    t=vT; A=sT+10; T=kind=='T'
    if 1:
        if CFG['cse']:
            assert CFG['csv']==2
            p(f"""s_lshl_b32 s{A}, s{sWAVE}, 7
            v_permlane16_swap_b32 v{CS}, v{CS2}
            s_add_u32 s{A}, s{A}, {L_CS}
            v_add_f32 v{CS}, v{CS}, v{CS2}
            v_mov_b32 v{CS2}, v{CS}
            v_and_b32 v{t+5}, 31, v0
            v_lshl_add_u32 v{t+5}, v{t+5}, 2, s{A}
            v_permlane32_swap_b32 v{CS}, v{CS2}
            v_and_b32 v{t}, 15, v0
            v_add_f32 v{CS}, v{CS}, v{CS2}
            ds_write_b32 v{t+5}, v{CS}
            v_lshrrev_b32 v{t+4}, 4, v0""")
        else: p(f"""v_and_b32 v{t}, 15, v0
        v_lshrrev_b32 v{t+4}, 4, v0
        s_lshl_b32 s{A}, s{sWAVE}, 7
        s_add_u32 s{A}, s{A}, {L_CS}""")
        if T: p(f"""s_lshl_b32 s{A+1}, s{sWR_}, 9
            s_add_u32 s{A+1}, s{A+1}, {L_SA}
            v_lshl_add_u32 v{t+3}, v{t}, 3, s{A+1}
            v_lshl_add_u32 v{t+1}, v{t+4}, 4, s{A}""")
        else: p(f"""v_lshrrev_b32 v{t+3}, 5, v0
            v_lshlrev_b32 v{t+3}, 6, v{t+3}
            v_and_b32 v{t+4}, 1, v{t+4}
            s_lshl_b32 s{A+1}, s{sWR_}, 8
            s_add_u32 s{A+1}, s{A+1}, {L_SM}
            v_lshl_add_u32 v{t+3}, v{t+4}, 4, v{t+3}
            v_add_u32 v{t+3}, s{A+1}, v{t+3}
            v_lshl_add_u32 v{t+1}, v{t}, 2, s{A}""")
        p(f"v_and_b32 v{t+5}, 31, v0\nv_lshl_add_u32 v{t+5}, v{t+5}, 2, s{A}\nv_xor_b32 v{t+2}, 128, v{t+1}")
def gemm_loop(kind):
    CNT=sT+10
    lp=p.lab("g"+kind)
    STAMP('rdy')
    p("s_barrier")
    STAMP('b0')
    for r in (reads6 if CFG['g16'] else reads)(kind,0,0,0): p(r)
    if CFG['eah']: epi_addr(kind)
    if CFG['clr']==1 and not CFG['hclr']: clears(1)
    cl_=p.lab("clr"); cr_=p.lab("clrr")
    if CFG['clr']>1:
        n0=len(p.L); p(f"{cl_}:"); clears(1); p(f"s_branch {cr_}")
        COLD.append("\n".join(p.L[n0:])); del p.L[n0:]
    hl=p.lab("hello"); hr=p.lab("hellor")
    if not CFG['hclr']:
        COLD.append(f"""{hl}:
        s_getreg_b32 s{CNT+1}, hwreg(HW_REG_XCC_ID, 0, 4)
        s_or_b32 s{CNT+1}, s{CNT+1}, s{sTAG}
        v_mov_b32 v{vT}, s{CNT+1}
        s_lshl_b32 s{CNT+1}, s2, 2
        s_add_u32 s{CNT+1}, s{CNT+1}, {H1}
        v_mov_b32 v{vT+(4 if CFG['eah'] else 1)}, 0
        s_mov_b64 exec, 1
        buffer_store_dword v{vT}, v{vT+(4 if CFG['eah'] else 1)}, {S4(sWS)}, s{CNT+1} offen sc1
        s_mov_b64 exec, -1
        s_branch {hr}""")
        p(f"s_lshl_b32 s{CNT+2}, s{sWAVE}, 3\ns_add_u32 s{CNT+2}, s{CNT+2}, {5-CFG['clr']}")
    p(f"s_mov_b32 s{CNT}, 5\n{lp}:")
    if CFG['clr']>1: p(f"s_cmp_eq_u32 s{CNT}, {6-CFG['clr']}\ns_cbranch_scc1 {cl_}\n{cr_}:")
    for k in range(1,5):
        if (CFG['cal'] and CFG['cal'][0]=='it%d'%(2*k)) or (CFG['amp'] and 'it%d'%(2*k) in CFG['amp'][:2]) or (CFG['prof'] and any('it%d'%(2*k) in n.split('|') for n in CFG['st'])):
            sk=p.lab("its"); p(f"s_cmp_lg_u32 s{CNT}, {5-k}\ns_cbranch_scc1 {sk}"); STAMP('it%d'%(2*k)); p(f"{sk}:")
    for par in range(2):
        if CFG['dcs']: cs_gate(kind,par)
        for s in range(2 if CFG['g16'] else 0):
            M=mfmas6(kind,s); R=reads6(kind,s^1,par^s,s^1)
            p("s_waitcnt lgkmcnt(0)")
            if s:
                if CFG['g16x']:
                    nb_=CFG['g16b']
                    for i in range(nb_):
                        p(M.pop(0))
                        for k in range(6*i//nb_,6*(i+1)//nb_):
                            if par: p(f"v_xor_b32 v{aX+k}, 0x10000, v{aX+k}")
                for _ in range(0 if CFG['g16x'] else CFG['g16b']): p(M.pop(0))
                if par and not CFG['g16x']:
                    for i in range(6):
                        p(f"v_xor_b32 v{aX+i}, 0x10000, v{aX+i}")
                        if i in (1,3): p(M.pop(0))
                if par==0:
                    w1=p.lab("cw"); w2=p.lab("cwr")
                    p(f"s_cmp_eq_u32 s{CNT}, {5-CFG['clr']}\ns_cbranch_scc1 {w1}\n{w2}:")
                    COLD.append(f"{w1}:\ns_waitcnt vmcnt(0)\ns_branch {w2}")
                p("s_barrier")
                if par==0: p(f"s_cmp_eq_u32 s{CNT}, s{CNT+2}\ns_cbranch_scc1 {hl}\n{hr}:")
            for n in CFG['g16r']:
                for _ in range(n): p(R.pop(0))
                p(M.pop(0))
            assert not R
            for m in M: p(m)
        for s in range(0 if CFG['g16'] else 4):
            buf=s&1
            last=(s==3)
            M=mfmas(kind,buf)
            if CFG['nomfma']: M=M[:1]
            if last and par==1:
                pre=[f"v_xor_b32 v{aX+i}, 0x10000, v{aX+i}" for i in range(4)]+[f"v_xor_b32 v{aW+i}, 0x10000, v{aW+i}" for i in range(2)]
            else: pre=[]
            R=reads(kind,buf^1,(par^1) if last else par,(s+1)&3)
            p("s_waitcnt lgkmcnt(0)")
            if last:
                p(M.pop(0))
                for x in pre: p(x)
                if par==0 and not CFG['hclr'] and not CFG['lclr']:
                    w1=p.lab("cw"); w2=p.lab("cwr")
                    p(f"s_cmp_eq_u32 s{CNT}, {5-CFG['clr']}\ns_cbranch_scc1 {w1}\n{w2}:")
                    COLD.append(f"{w1}:\ns_waitcnt vmcnt(0)\ns_branch {w2}")
                p("s_barrier")
                if par==0 and not CFG['hclr']: p(f"s_cmp_eq_u32 s{CNT}, s{CNT+2}\ns_cbranch_scc1 {hl}\n{hr}:")
            k=0
            while M or R:
                if R: p(R.pop(0))
                if R: p(R.pop(0))
                if M: p(M.pop(0))
    p(f"""s_sub_u32 s{CNT}, s{CNT}, 1
    s_cmp_lg_u32 s{CNT}, 0
    s_cbranch_scc1 {lp}""")
    STAMP('gend')
def bf16r(dst,src):
    p(f"v_cvt_pk_bf16_f32 v{dst}, v{src}, v{src}\nv_and_b32 v{dst}, 0xffff0000, v{dst}")
def mode_read():
    p(f"""v_mov_b32 v{vT+8}, {L_MODE}
    ds_read_b32 v{vT+9}, v{vT+8}""")
def mode_get():
    p(f"v_readfirstlane_b32 s{sMODE}, v{vT+9}")
def dual(stores,pol='',sMODE=sMODE):
    sl=p.lab("slow"); jn=p.lab("jn")
    p(f"s_cmp_lg_u32 s{sMODE}, 0\ns_cbranch_scc1 {sl}")
    for s in stores: p(s+" "+pol)
    p(f"s_branch {jn}\n{sl}:")
    for s in stores: p(s+" sc1")
    p(f"{jn}:")
def idle_gemm():
    vt=10; aI=20; acc=28; one=32; D=64; A=sT+10
    p(f"""s_lshl_b32 s{A}, s{sWR_}, 13
    v_bfe_u32 v{vt}, v0, 1, 3
    v_lshlrev_b32 v{vt}, 4, v{vt}
    v_lshl_add_u32 v{vt}, v0, 7, v{vt}
    v_add_u32 v{aI}, s{A}, v{vt}
    v_mov_b32 v{one}, 0x3f803f80
    s_lshl_b32 s{A}, s{sG}, 2
    s_add_u32 s{A}, s{A}, s{sRB}
    s_lshl_b32 s{A}, s{A}, 14
    s_lshl_b32 s{A+1}, s{sWR_}, 10
    s_add_u32 s{A}, s{A}, s{A+1}
    s_add_u32 s{A}, s{A}, {STP+2*2048}
    v_lshlrev_b32 v{vt}, 4, v0""")
    for i in range(1,8): p(f"v_xor_b32 v{aI+i}, {16*i}, v{aI}")
    for i in range(4): p(f"v_mov_b32 v{acc+i}, 0")
    k=CFG['clr']
    for c in range(11):
        if c==1+2*k and not CFG['hclr']: p(f"s_waitcnt vmcnt({1 if k==1 else 0})")
        p("s_barrier")
        if k and c==2*k-2 and c!=2: clears(1)
        if c<3:
            if c==2:
                for i in range(8): p(f"v_add_u32 v{aI+i}, 0x10000, v{aI+i}")
            for i in range(8): p(f"ds_read_b128 {vr(D+4*i,4)}, v{aI+i} offset:{(c&1)*32768}")
            for i in range(8):
                p(f"s_waitcnt lgkmcnt({7-i})")
                for j in range(4):
                    r=D+4*i+j
                    p(f"v_dot2_f32_bf16 v{acc+(j&1)}, v{r}, v{one}, v{acc+(j&1)}\nv_dot2_f32_bf16 v{acc+2+(j&1)}, v{r}, v{r}, v{acc+2+(j&1)}")
        if c==2: p(f"""s_nop 1
            v_add_f32 v{acc}, v{acc}, v{acc+1}
            v_add_f32 v{acc+1}, v{acc+2}, v{acc+3}
            v_mov_b32 v{acc+2}, s{sTAG}
            buffer_store_dwordx4 {vr(acc,4)}, v{vt}, {S4(sWS)}, s{A} offen sc1""")
        if k==2 and c==2: clears(1)
    p("s_barrier")
    mode_read()
    p("s_waitcnt lgkmcnt(0)")
    mode_get()
HST=[]
def gemm_epi(kind):
    t=vT; A=sT+10
    AU=20
    WA=24
    XA=28
    RS=32
    def split(cb):
        c=CS+cb
        p(f"""v_cndmask_b32 v{c}, 0, v{c}, s[{sLO}:{sLO+1}]
        v_cvt_pk_bf16_f32 v{t+5}, v{c}, v{c}
        v_and_b32 v{t+5}, 0xffff0000, v{t+5}
        v_sub_f32 v{t+6}, v{c}, v{t+5}
        v_cvt_pk_bf16_f32 v{WA+2*cb}, v{t+5}, v{t+6}""")
    if CFG['g16']:
        assert CFG['epi2']==2 and not CFG['honly']
        allst=[ACC+16*(2*xb+cb)+4*h for xb in range(2) for cb in range(2) for h in range(2)]
        sto=lambda xb,cb,h: f"buffer_store_dwordx4 {vr(ACC+16*(2*xb+cb)+4*h,4)}, v{aST+2*cb+h}, {S4(sWS)}, s{sSO2 if xb else sSO} offen"
        T=kind=='T'; CV=28 if T else 20; NM=48
        if not CFG['eah']:
            if CFG['cse']:
                assert CFG['csv']==2
                p(f"""s_lshl_b32 s{A}, s{sWAVE}, 7
                v_permlane16_swap_b32 v{CS}, v{CS2}
                s_add_u32 s{A}, s{A}, {L_CS}
                v_add_f32 v{CS}, v{CS}, v{CS2}
                v_mov_b32 v{CS2}, v{CS}
                v_and_b32 v{t+5}, 31, v0
                v_lshl_add_u32 v{t+5}, v{t+5}, 2, s{A}
                v_permlane32_swap_b32 v{CS}, v{CS2}
                v_and_b32 v{t}, 15, v0
                v_add_f32 v{CS}, v{CS}, v{CS2}
                ds_write_b32 v{t+5}, v{CS}
                v_lshrrev_b32 v{t+4}, 4, v0""")
            else: p(f"""v_and_b32 v{t}, 15, v0
            v_lshrrev_b32 v{t+4}, 4, v0
            s_lshl_b32 s{A}, s{sWAVE}, 7
            s_add_u32 s{A}, s{A}, {L_CS}""")
            if T: p(f"""s_lshl_b32 s{A+1}, s{sWR_}, 9
                s_add_u32 s{A+1}, s{A+1}, {L_SA}
                v_lshl_add_u32 v{t+3}, v{t}, 3, s{A+1}
                v_lshl_add_u32 v{t+1}, v{t+4}, 4, s{A}""")
            else: p(f"""v_lshrrev_b32 v{t+3}, 5, v0
                v_lshlrev_b32 v{t+3}, 6, v{t+3}
                v_and_b32 v{t+4}, 1, v{t+4}
                s_lshl_b32 s{A+1}, s{sWR_}, 8
                s_add_u32 s{A+1}, s{A+1}, {L_SM}
                v_lshl_add_u32 v{t+3}, v{t+4}, 4, v{t+3}
                v_add_u32 v{t+3}, s{A+1}, v{t+3}
                v_lshl_add_u32 v{t+1}, v{t}, 2, s{A}""")
        if CFG['csv']==4: p(f"v_add_f32 v{CS}, v{CS}, v{CS+2}\nv_add_f32 v{CS2}, v{CS2}, v{CS2+2}\nv_add_f32 v{CS+1}, v{CS+1}, v{CS+3}\nv_add_f32 v{CS2+1}, v{CS2+1}, v{CS2+3}")
        if CFG['csv']>=3: p(f"v_add_f32 v{CS}, v{CS}, v{CS+1}\nv_add_f32 v{CS2}, v{CS2}, v{CS2+1}\ns_nop 1")
        if CFG['cse']: pass
        elif CFG['csv']: p(f"""v_permlane16_swap_b32 v{CS}, v{CS2}
            v_and_b32 v{t+5}, 31, v0
            v_add_f32 v{CS}, v{CS}, v{CS2}
            v_mov_b32 v{CS2}, v{CS}
            v_lshl_add_u32 v{t+5}, v{t+5}, 2, s{A}
            s_nop 0
            v_permlane32_swap_b32 v{CS}, v{CS2}
            s_nop 0
            v_add_f32 v{CS}, v{CS}, v{CS2}
            ds_write_b32 v{t+5}, v{CS}""")
        elif CFG['eah']: p(f"""s_mov_b32 vcc_lo, 0xffff0000
            s_mov_b32 vcc_hi, 0xffff0000
            s_nop {CFG['eah']-1}
            v_cndmask_b32 v{CS}, v{CS}, v{CS2}, vcc
            ds_write_b32 v{t+5}, v{CS}""")
        elif not CFG['dcs']: p(f"""v_and_b32 v{t+5}, 31, v0
            v_lshl_add_u32 v{t+5}, v{t+5}, 2, s{A}
            s_mov_b32 vcc_lo, 0xffff0000
            s_mov_b32 vcc_hi, 0xffff0000
            v_cndmask_b32 v{CS}, v{CS}, v{CS2}, vcc
            ds_write_b32 v{t+5}, v{CS}""")
        if not CFG['eah']: p(f"v_xor_b32 v{t+2}, 128, v{t+1}")
        if CFG['sf2']: p("s_waitcnt lgkmcnt(0)\ns_barrier"); STAMP('E1')
        for tt in range(4):
            if T: p(f"ds_read_b64 {vr(AU+2*tt,2)}, v{t+3} offset:{128*tt}")
            else: p(f"ds_read_b128 {vr(NM+4*tt,4)}, v{t+3} offset:{128*(tt>>1)+32*(tt&1)}\nds_read_b128 {vr(RS+4*tt,4)}, v{t+3} offset:{128*(tt>>1)+32*(tt&1)+L_SR-L_SM}")
        mode_read()
        csr=lambda j: p(f"ds_read_{'b128' if T else 'b32'} {vr(CV+4*j,4) if T else 'v%d'%(CV+j)}, v{t+1+(j>>1)} offset:{64*(j&1)}")
        csr(0); csr(1)
        if CFG['dcs']: csr(2); csr(3)
        if CFG['sf2']:
            if not CFG['dcs']: csr(2); csr(3)
            p("s_waitcnt lgkmcnt(2)")
        else:
            p("s_waitcnt lgkmcnt(0)\ns_barrier")
            STAMP('E1')
            if not CFG['dcs']: csr(2); csr(3)
        mode_get()
        if T:
            p(f"s_cmp_eq_u32 s{sTY}, 0\ns_cselect_b32 s{A}, {hex(f2u(20**-0.5*math.log2(math.e)))}, 1.0")
            for tt in range(4): p(f"v_mul_f32 v{AU+2*tt+1}, s{A}, v{AU+2*tt+1}")
        for cb in range(2):
            if cb: p("s_waitcnt lgkmcnt(0)")
            for xb in range(2):
                for h in range(2):
                    j=2*cb+h; a=ACC+16*(2*xb+cb)
                    for k in range(4):
                        tt=2*xb+(k>>1); r=vr(a+8*h+2*k,2)
                        if T: p(f"v_pk_fma_f32 {r}, {vr(CV+4*j+2*(k&1),2)}, {vr(AU+2*tt,2)}, {r} op_sel:[0,0,0] op_sel_hi:[1,0,1]")
                        else: p(f"v_pk_fma_f32 {r}, {vr(NM+4*tt+2*(k&1),2)}, {vr(CV+2*cb,2)}, {r} op_sel:[0,{h},0] op_sel_hi:[1,{h},1]")
                    for k in range(4):
                        tt=2*xb+(k>>1); r=vr(a+8*h+2*k,2)
                        if T: p(f"v_pk_mul_f32 {r}, {r}, {vr(AU+2*tt,2)} op_sel:[0,1] op_sel_hi:[1,1]")
                        else: p(f"v_pk_mul_f32 {r}, {r}, {vr(RS+4*tt+2*(k&1),2)}")
                    for k in range(4*h,4*h+4): p(f"v_cvt_pk_bf16_f32 v{a+k}, v{a+2*k}, v{a+2*k+1}")
                    if T: p(f"s_nop 0\nv_permlane16_swap_b32 v{a+4*h}, v{a+4*h+2}\nv_permlane16_swap_b32 v{a+4*h+1}, v{a+4*h+3}")
                    p(sto(xb,cb,h)+" "+CFG['qpol'])
        sl=p.lab("qslow"); jn=p.lab("qjn")
        p(f"s_cmp_lg_u32 s{sMODE}, 0\ns_cbranch_scc1 {sl}\n{jn}:")
        COLD.append(f"{sl}:\n"+"\n".join(sto(xb,cb,h)+" sc1" for xb in range(2) for cb in range(2) for h in range(2))+f"\ns_branch {jn}")
    elif CFG['epi2']:
        assert not CFG['honly']
        E2=CFG['epi2']>1
        allst=[ACC+16*(2*xb+cb)+4*h for xb in range(2) for cb in range(2) for h in range(2)]
        sto=lambda xb,cb,h: f"buffer_store_dwordx4 {vr(ACC+16*(2*xb+cb)+4*h,4)}, v{aST+2*cb+h}, {S4(sWS)}, s{sSO2 if xb else sSO} offen"
        def aug(xb,cb):
            a=ACC+16*(2*xb+cb); X=vr(XA+2*xb,2); W=vr(WA+2*cb,2)
            p(f"v_mfma_f32_32x32x8_bf16 {vr(a,16)}, {W if kind=='T' else X}, {X if kind=='T' else W}, {vr(a,16)}")
        def half(xb,cb,h,mid=None):
            a=ACC+16*(2*xb+cb)
            for k in range(4*h,4*h+4):
                if kind=='T': p(f"v_pk_mul_f32 {vr(a+2*k,2)}, {vr(a+2*k,2)}, {vr(AU+2*xb,2)} op_sel:[0,1] op_sel_hi:[1,1]")
                else: p(f"v_pk_mul_f32 {vr(a+2*k,2)}, {vr(a+2*k,2)}, {vr(RS+16*xb+2*k,2)}")
            for k in range(4*h,4*h+4): p(f"v_cvt_pk_bf16_f32 v{a+k}, v{a+2*k}, v{a+2*k+1}")
            if kind=='T': p(f"s_nop 0\nv_permlane32_swap_b32 v{a+4*h}, v{a+4*h+2}\nv_permlane32_swap_b32 v{a+4*h+1}, v{a+4*h+3}")
            p(sto(xb,cb,h)+" "+CFG['qpol'])
        def stat_rd():
            p(f"""ds_read_b64 v[{AU}:{AU+1}], v{t+3}
            ds_read_b64 v[{AU+2}:{AU+3}], v{t+3} offset:256""")
            if kind=='V':
                for xb in range(2):
                    for i in range(4): p(f"ds_read_b128 {vr(RS+16*xb+4*i,4)}, v{t+4} offset:{xb*128+i*32}")
            mode_read()
        def stat_use():
            p(f"v_mov_b32 v{XA}, v{AU}\nv_mov_b32 v{XA+2}, v{AU+2}")
            if kind=='T':
                p(f"""s_cmp_eq_u32 s{sTY}, 0
                s_cselect_b32 s{A}, {hex(f2u(20**-0.5*math.log2(math.e)))}, 1.0
                v_mul_f32 v{AU+1}, s{A}, v{AU+1}
                v_mul_f32 v{AU+3}, s{A}, v{AU+3}""")
            else: p("s_nop 0")
        p(f"""v_and_b32 v{t}, 31, v0
        s_lshl_b32 s{A}, s{sWR_}, 9
        s_add_u32 s{A}, s{A}, {L_SA}
        v_lshl_add_u32 v{t+3}, v{t}, 3, s{A}""")
        if kind=='V':
            p(f"""v_lshrrev_b32 v{t+4}, 5, v0
            s_lshl_b32 s{A}, s{sWR_}, 8
            s_add_u32 s{A}, s{A}, {L_SR}
            v_lshl_add_u32 v{t+4}, v{t+4}, 4, s{A}""")
        if E2: stat_rd()
        p(f"""s_lshl_b32 s{A}, s{sWAVE}, 7
        s_add_u32 s{A}, s{A}, {L_CS}
        v_lshl_add_u32 v{t+1}, v{t}, 2, s{A}
        v_mov_b32 v{WA+1}, 0
        v_mov_b32 v{WA+3}, 0
        v_mov_b32 v{XA+1}, 0
        v_mov_b32 v{XA+3}, 0
        {f"ds_read_b32 v{CS}, v{t+1}" if CFG['dcs'] else f"ds_write_b32 v{t+1}, v{CS}"}
        v_xor_b32 v{t+2}, 128, v{t+1}""")
        nv=8 if kind=='V' else 0
        if CFG['dcs']:
            assert E2
            p(f"ds_read_b32 v{CS+1}, v{t+2}\ns_waitcnt lgkmcnt(1)")
            stat_use()
            split(0)
            p("s_waitcnt lgkmcnt(0)")
            mode_get()
            aug(0,0)
            split(1)
            p("s_barrier")
            STAMP('E1')
            aug(1,0); aug(0,1); aug(1,1)
            p("s_nop 2")
            order=[(0,0,0),(0,0,1),(1,0,0),(1,0,1),(0,1,0),(0,1,1),(1,1,0),(1,1,1)]
        elif E2:
            split(0)
            p(f"s_waitcnt lgkmcnt({2+nv})")
            stat_use()
            aug(0,0); aug(1,0)
            p("s_waitcnt lgkmcnt(0)\ns_barrier")
            STAMP('E1')
            p(f"ds_read_b32 v{CS+1}, v{t+2}")
            mode_get()
            p("s_nop 7\ns_nop 1")
            half(0,0,0)
            p("s_waitcnt lgkmcnt(0)")
            split(1)
            p("s_nop 1")
            aug(0,1); aug(1,1)
            order=[(0,0,1),(1,0,0),(1,0,1),(0,1,0),(0,1,1),(1,1,0),(1,1,1)]
        else:
            p("s_waitcnt lgkmcnt(0)\ns_barrier")
            STAMP('E1')
            p(f"ds_read_b32 v{CS+1}, v{t+2}")
            stat_rd()
            split(0)
            p(f"s_waitcnt lgkmcnt({1+nv})")
            stat_use()
            aug(0,0)
            split(1)
            p("s_nop 1")
            aug(0,1); aug(1,0); aug(1,1)
            p("s_waitcnt lgkmcnt(0)")
            mode_get()
            p("s_nop 4")
            order=[(xb,cb,h) for xb in range(2) for cb in range(2) for h in range(2)]
        for o in order: half(*o)
        sl=p.lab("qslow"); jn=p.lab("qjn")
        p(f"s_cmp_lg_u32 s{sMODE}, 0\ns_cbranch_scc1 {sl}\n{jn}:")
        COLD.append(f"{sl}:\n"+"\n".join(sto(xb,cb,h)+" sc1" for xb in range(2) for cb in range(2) for h in range(2))+f"\ns_branch {jn}")
    else:
        p(f"""v_and_b32 v{t}, 31, v0
        s_lshl_b32 s{A}, s{sWC}, 1
        s_or_b32 s{A}, s{A}, s{sWR_}
        s_lshl_b32 s{A}, s{A}, 7
        s_add_u32 s{A}, s{A}, {L_CS}
        v_lshl_add_u32 v{t+1}, v{t}, 2, s{A}
        s_lshl_b32 s{A}, s{sWR_}, 9
        s_add_u32 s{A}, s{A}, {L_SA}
        v_lshl_add_u32 v{t+3}, v{t}, 3, s{A}
        ds_write_b32 v{t+1}, v{CS}
        v_xor_b32 v{t+2}, 128, v{t+1}
        v_mov_b32 v{WA+1}, 0
        v_mov_b32 v{WA+3}, 0
        v_mov_b32 v{XA+1}, 0
        v_mov_b32 v{XA+3}, 0""")
        if kind=='V':
            p(f"""v_lshrrev_b32 v{t+4}, 5, v0
            s_lshl_b32 s{A}, s{sWR_}, 8
            s_add_u32 s{A}, s{A}, {L_SR}
            v_lshl_add_u32 v{t+4}, v{t+4}, 4, s{A}""")
        p("s_waitcnt lgkmcnt(0)\ns_barrier")
        STAMP('E1',1)
        p(f"""ds_read_b32 v{CS+1}, v{t+2}
        ds_read_b64 v[{AU}:{AU+1}], v{t+3}
        ds_read_b64 v[{AU+2}:{AU+3}], v{t+3} offset:256""")
        mode_read()
        if kind=='V':
            for xb in range(2):
                for i in range(4): p(f"ds_read_b128 {vr(RS+16*xb+4*i,4)}, v{t+4} offset:{xb*128+i*32}")
        def split(cb):
            c=CS+cb
            p(f"""v_cndmask_b32 v{c}, 0, v{c}, s[{sLO}:{sLO+1}]
            v_cvt_pk_bf16_f32 v{t+5}, v{c}, v{c}
            v_and_b32 v{t+5}, 0xffff0000, v{t+5}
            v_sub_f32 v{t+6}, v{c}, v{t+5}
            v_cvt_pk_bf16_f32 v{WA+2*cb}, v{t+5}, v{t+6}""")
        split(0)
        p(f"s_waitcnt lgkmcnt({8 if kind=='V' else 0})")
        split(1)
        p(f"v_mov_b32 v{XA}, v{AU}\nv_mov_b32 v{XA+2}, v{AU+2}")
        mode_get()
        if kind=='T':
            p(f"""s_cmp_eq_u32 s{sTY}, 0
            s_cselect_b32 s{A}, {hex(f2u(20**-0.5*math.log2(math.e)))}, 1.0
            v_mul_f32 v{AU+1}, s{A}, v{AU+1}
            v_mul_f32 v{AU+3}, s{A}, v{AU+3}""")
        else: p("s_nop 0")
        for xb in range(2):
            for cb in range(2):
                a=ACC+16*(2*xb+cb); X=vr(XA+2*xb,2); W=vr(WA+2*cb,2)
                p(f"v_mfma_f32_32x32x8_bf16 {vr(a,16)}, {W if kind=='T' else X}, {X if kind=='T' else W}, {vr(a,16)}")
        p("s_waitcnt lgkmcnt(0)\ns_nop 7")
        if CFG['honly']: p(f"s_or_b32 s{sHALO}, s{sHALO}, s{sMODE}")
        allst=[]
        for xb in range(2):
            st=[]
            for cb in range(2):
                a=ACC+16*(2*xb+cb)
                for k in range(8):
                    if kind=='T': p(f"v_pk_mul_f32 {vr(a+2*k,2)}, {vr(a+2*k,2)}, {vr(AU+2*xb,2)} op_sel:[0,1] op_sel_hi:[1,1]")
                    else: p(f"v_pk_mul_f32 {vr(a+2*k,2)}, {vr(a+2*k,2)}, {vr(RS+16*xb+2*k,2)}")
                for k in range(8): p(f"v_cvt_pk_bf16_f32 v{a+k}, v{a+2*k}, v{a+2*k+1}")
                if kind=='T':
                    p(f"""v_permlane32_swap_b32 v{a}, v{a+2}
                    v_permlane32_swap_b32 v{a+1}, v{a+3}
                    v_permlane32_swap_b32 v{a+4}, v{a+6}
                    v_permlane32_swap_b32 v{a+5}, v{a+7}""")
                for h in range(2):
                    st.append(f"buffer_store_dwordx4 {vr(a+4*h,4)}, v{aST+2*cb+h}, {S4(sWS)}, s{sSO2 if xb else sSO} offen")
                    allst.append(a+4*h)
            dual(st,CFG['qpol'],sHALO if CFG['honly'] else sMODE)
    STAMP('st')
    if CFG['honly']:
        p(f"""v_mov_b32 v{t}, 0
        v_mov_b32 v{t+1}, s{sTAG}
        s_lshl_b32 s{A}, s{sWC}, 2
        s_add_u32 s{A}, s{A}, {F_STG}
        v_mov_b32 v{t+2}, s{A}
        v_mov_b32 v{t+3}, 1
        s_mov_b64 exec, 1
        s_waitcnt vmcnt(0)
        ds_add_u32 v{t+2}, v{t+3}""")
        dual([f"buffer_store_dword v{t+1}, v{t}, {S4(sWS)}, s{sFO} offen"])
        p("s_mov_b64 exec, -1")
        STAMP('fl')
        return
    nh=p.lab("nohalo"); jh=p.lab("jhalo")
    if CFG['hdef']>=0 or CFG['hs2']: A=sT+18
    hst=[f"buffer_store_dwordx4 {vr(allst[i],4)}, v{aST+(i&3)}, {S4(sWS)}, s{A+(i>>2)} offen {CFG['hpol']}" for i in range(8)]
    p(f"""v_mov_b32 v{t}, 0
    v_mov_b32 v{t+1}, s{sTAG}
    s_add_u32 s{A}, s{sSO}, {KH-KB}
    s_add_u32 s{A+1}, s{sSO2}, {KH-KB}""")
    if CFG['hst']:
        p(f"s_cmp_eq_u32 s{sHALO}, 0\ns_cbranch_scc1 {nh}")
        for i in range(8): p(f"ds_write_b128 v{aSG}, {vr(allst[i],4)} offset:{i*1024}")
        for k in range(4): p(f"v_add_u32 v{t+4+k}, s{A}, v{aST+k}")
        p(f"""s_lshl_b32 s{A}, s{sWC}, 2
        s_add_u32 s{A}, s{A}, {F_STG}
        ds_write_b128 v{aSG}, {vr(t+4,4)} offset:8192
        v_mov_b32 v{t+2}, s{A}
        v_mov_b32 v{t+3}, 1
        s_mov_b64 exec, 1
        ds_add_u32 v{t+2}, v{t+3}
        s_waitcnt vmcnt(0)""")
        dual([f"buffer_store_dword v{t+1}, v{t}, {S4(sWS)}, s{sFO} offen"])
        p(f"""ds_add_u32 v{t+2}, v{t+3} offset:8
        s_branch {jh}
        {nh}:
        s_waitcnt vmcnt(0)
        s_mov_b64 exec, 1""")
        dual([f"buffer_store_dword v{t+1}, v{t}, {S4(sWS)}, s{sFO} offen"])
        p(f"{jh}:\ns_mov_b64 exec, -1")
        STAMP('fl')
        return
    if CFG['hdef']>=0:
        HST[:]=hst
        p("s_waitcnt vmcnt(0)")
    elif CFG['hearly']:
        p(f"s_cmp_eq_u32 s{sHALO}, 0\ns_cbranch_scc1 {nh}")
        for x in hst: p(x)
        p(f"s_waitcnt vmcnt(8)\ns_branch {jh}\n{nh}:\ns_waitcnt vmcnt(0)\n{jh}:")
    else: p("s_waitcnt vmcnt(0)")
    p("s_mov_b64 exec, 1")
    dual([f"buffer_store_dword v{t+1}, v{t}, {S4(sWS)}, s{sFO} offen"])
    p(f"s_mov_b64 exec, -1")
    if not CFG['hearly'] and CFG['hdef']<0:
        HST[:]=hst
        p(f"s_cmp_lg_u32 s{sHAL2}, 1\ns_cbranch_scc1 {nh}" if CFG['hs2'] else f"s_cmp_eq_u32 s{sHALO}, 0\ns_cbranch_scc1 {nh}")
        for x in hst: p(x)
        p(f"{nh}:")
    STAMP('fl')
import struct
def f2u(x): return struct.unpack("<I",struct.pack("<f",x))[0]

aLin,aTl,aKm,aKt,aV,aFl,aO,aQ0,aQ1=246,247,248,249,250,251,252,253,254
aKm1,aKt1,aV1=216,217,218
QM=[28,34]; QT=[32,38]; PP=40
KM=[48,62]; KT=[52,66]; VV=[[54,58],[68,72]]
SS=[80,96]; OO=[112,128]; CD=200; CF=230
cVM=8; sQ=[10,11]; sOm=[12,13]; sOt=[14,15]; cXO,cJ,cF,cK,cV,cL,cHO,cT0,cHX=range(16,25); sOSC=sT+15; sFB=sT+16; aWR=225
NINF="0xff800000"
def att_setup():
    t=vT; A=sT+7; B=sT+8; C=sT+17; sF=cF
    wo_pre1()
    att_ids()
    moe_role()
    p(f"v_mov_b32 v{aCLS}, 0x207")
    if CFG['hkv']: p(f"v_lshlrev_b32 v{aLin}, 4, v0\nv_mov_b32 v{aFl}, {F_G1}")
    else:
        flag_addr(aFl,t,1,A,B,C)
        p(f"""s_lshl_b32 s{sF}, s{sG}, 11
        s_lshl_b32 s{A}, s{sHF}, 4
        v_mov_b32 v{t}, s{A}
        v_cmp_gt_u32 vcc, 8, v0
        s_add_u32 s{sF}, s{sF}, {FL}
        s_mov_b32 s{sK1024}, 1024
        v_cndmask_b32 v{t}, 8, v{t}, vcc
        v_add_u32 v{aFl}, v{aFl}, v{t}""")
        kv_addr(aLin,aTl,t)
    p(f"""s_lshl_b32 s{A}, s{sHF}, 10
    s_add_u32 s{B}, s{A}, {L_KV}
    v_add_u32 v{aKm}, s{B}, v{aLin}
    s_sub_u32 s{B}, {L_KV+1024}, s{A}
    v_add_u32 v{aKm1}, s{B}, v{aLin}
    v_and_b32 v{t}, 31, v0
    v_lshrrev_b32 v{t+1}, 5, v0
    v_xor_b32 v{t+2}, s{sHO}, v{t+1}
    v_lshlrev_b32 v{t+2}, 3, v{t+2}
    v_lshl_add_u32 v{t+2}, v{t}, 4, v{t+2}
    s_lshl_b32 s{A}, s{sHF}, 9
    s_add_u32 s{B}, s{A}, {L_KV+2048}
    v_add_u32 v{aKt}, s{B}, v{t+2}
    s_sub_u32 s{B}, {L_KV+2048+512}, s{A}
    v_add_u32 v{aKt1}, s{B}, v{t+2}
    v_mul_u32_u24 v{t+2}, 320, v{t+1}
    v_lshl_add_u32 v{t+2}, v{t}, 4, v{t+2}
    s_mul_i32 s{A}, s{sHF}, 1280
    s_add_u32 s{B}, s{A}, {L_KV+3072}
    v_add_u32 v{aV}, s{B}, v{t+2}
    s_sub_u32 s{B}, {L_KV+3072+1280}, s{A}
    v_add_u32 v{aV1}, s{B}, v{t+2}
    v_lshlrev_b32 v{t+2}, 2, v{t+1}
    v_sub_u32 v{t+2}, v{t}, v{t+2}
    s_cmp_eq_u32 s{sHF}, 0
    s_cselect_b32 s{A}, {NINF}, 0
    s_cselect_b32 s{B}, 0, {NINF}
    v_mov_b32 v{t+3}, s{A}
    v_mov_b32 v{t+4}, s{B}""")
    for i in range(16):
        m=C+1+2*(i%2)+((C+1)%2)
        ri=8*(i>>2)+(i&3)
        p(f"v_cmp_le_i32 s[{m}:{m+1}], {ri}, v{t+2}")
        if i>0:
            m2=C+1+2*((i-1)%2)+((C+1)%2)
            if i==1: p("s_nop 0")
            p(f"v_cndmask_b32 v{CD+i-1}, v{t+3}, v{t+4}, s[{m2}:{m2+1}]\nv_cndmask_b32 v{CF+i-1}, v{t+4}, v{t+3}, s[{m2}:{m2+1}]")
    p(f"""s_nop 0
    v_cndmask_b32 v{CD+15}, v{t+3}, v{t+4}, s[{m}:{m+1}]
    v_cndmask_b32 v{CF+15}, v{t+4}, v{t+3}, s[{m}:{m+1}]
    v_cmp_eq_u32 s[{m}:{m+1}], 20, v{t}
    v_cmp_eq_u32 vcc, 24, v{t}
    s_mov_b32 s{cHO}, s{sHO}
    s_or_b64 s[{cVM}:{cVM+1}], vcc, s[{m}:{m+1}]""")
    p(f"""v_bfe_u32 v{t+2}, v0, 4, 1
    v_mul_u32_u24 v{t+2}, 20480, v{t+2}
    v_lshl_add_u32 v{t+2}, v{t+1}, 8, v{t+2}
    v_and_b32 v{t+3}, 15, v0
    v_lshl_add_u32 v{aO}, v{t+3}, 4, v{t+2}
    s_xor_b32 s{cHX}, s{sHF}, s{sHH}
    s_mov_b32 s{cT0}, s{sT0}
    s_lshl_b32 s{A}, s{sWAVE}, 1
    s_sub_u32 s{A}, 7, s{A}
    v_mul_u32_u24 v{t+2}, s{A}, v0
    s_add_u32 s{A}, s{sT0}, s{sWAVE}
    v_add_lshl_u32 v{aFO}, v{t+2}, s{A}, 12
    s_lshl_b32 s{A}, s{sHD}, 7
    s_add_u32 s{A}, s{A}, {FO}
    v_add_u32 v{aFO}, s{A}, v{aFO}""")
    for q in range(2):
        p(f"""s_sub_u32 s{A}, 7, s{sWAVE}
        s_cmp_eq_u32 s{sHF}, {q}
        s_cselect_b32 s{A}, s{A}, s{sWAVE}
        s_add_u32 s{A}, s{A}, s{sT0}""")
        p(f"""s_mul_i32 s{sQ[q]}, s{A}, 2560
        s_mul_i32 s{B}, s{sPH}, {64*2560}
        s_add_u32 s{sQ[q]}, s{sQ[q]}, s{B}
        s_mul_i32 s{A}, s{A}, 40960
        s_mul_i32 s{B}, s{sPH}, 1280
        s_add_u32 s{A}, s{A}, s{B}
        s_add_u32 s{A}, s{A}, {OB}
        s_mul_i32 s{B}, s{sHO}, 768
        s_add_u32 s{sOm[q]}, s{A}, s{B}
        s_lshl_b32 s{B}, s{sHO}, 3
        s_add_u32 s{sOt[q]}, s{A}, s{B}""")
    sK=cK; sV=cV; sL=cL
    if not CFG['hkv']: p(f"""s_lshl_b32 s{A}, s{sWAVE}, 1
    s_sub_u32 s{B}, -2, s{A}
    s_cmp_eq_u32 s{sHF}, 0
    s_cselect_b32 s{A}, s{A}, s{B}
    s_add_u32 s{A}, s{A}, s{sT0}
    s_mul_i32 s{sK}, s{A}, 2560
    s_mul_i32 s{sV}, s{A}, 1280
    s_mul_i32 s{A}, s{sPH}, {64*2560}
    s_add_u32 s{sK}, s{sK}, s{A}
    s_add_u32 s{sK}, s{sK}, {KB}
    s_mul_i32 s{A}, s{sHD}, 81920
    s_add_u32 s{sV}, s{sV}, s{A}
    s_add_u32 s{sV}, s{sV}, {VB}
    s_mul_i32 s{sL}, s{sWAVE}, 5632
    s_add_u32 s{sL}, s{sL}, {L_KV+4*5632}""")
    p(f"""s_mul_i32 s{A}, s{sHO}, 1536
    v_add_u32 v{aQ0}, s{A}, v{aLin}
    s_lshl_b32 s{A}, s{sHO}, 3
    v_add_u32 v{aQ1}, s{A}, v{aLin}""")
aXD=219; aXL=223; sLCX=25
def xr_loads():
    if CFG['xdma']:
        A=sT+7; B=sT+8
        p(f"""s_mul_i32 s{A}, s{sWAVE}, 2560
        s_add_u32 m0, s{A}, {L_STG}
        s_add_u32 s{A}, s{cXO}, 6720
        s_add_u32 s{B}, s{cXO}, 13440
        s_mov_b32 exec_hi, 0x0fffffff
        buffer_load_dwordx4 v{aXD}, {S4(sX)}, s{cXO} offen lds
        buffer_load_dwordx4 v{aXD}, {S4(sX)}, s{A} offen offset:960 lds
        s_mov_b32 exec_hi, 0xff
        buffer_load_dwordx4 v{aXD}, {S4(sX)}, s{B} offen offset:1920 lds
        s_mov_b32 m0, {L_SA}
        s_mov_b64 exec, 0x3ff
        buffer_load_dwordx4 v{aLin}, {S4(sWR)}, s{cJ} offen lds
        s_mov_b64 exec, -1""")
        return
    for o,n in ((0,4),(4,4),(8,2)): p(f"buffer_load_dwordx{n} {vr(XR+o,n)}, v{aX2}, {S4(sX)}, s{cXO} offen offset:{4*o}")
    for o,n in ((0,4),(4,4),(8,2)): p(f"buffer_load_dwordx{n} {vr(WR_+o,n)}, v{aWR}, {S4(sWR)}, s{cJ} offen offset:{4*o}")
def att_go():
    t=vT; A=sT+7; B=sT+8; C=sT+17
    nh=p.lab("nohs"); lp=p.lab("fp"); ok=p.lab("fpok"); md=p.lab("fpm")
    ld=f"buffer_load_dword v{t+10}, v{aFl}, {S4(sWS)}, s{cF} offen sc1"
    OWN=CFG['hsp']&2; sOWN=sT+19
    if OWN:
        assert not (CFG['hkv'] or CFG['hst'] or CFG['honly'] or CFG['hdef']>=0) and CFG['xru']>=0
        p(f"s_andn2_b32 s{sOWN}, s{sHAL2}, s{sMODE}\ns_cbranch_scc1 L_nold\n{ld}\nL_nold:")
    elif not CFG['hkv']: p(ld)
    p(f"""v_mov_b32 v{t+4}, 0x3f803f80
    s_or_b32 s{sOSC}, s{cHX}, s{sMODE}
    s_mov_b32 s{sFB}, 0
    s_mul_i32 s{A}, s{sMODE}, {OB2-OB}
    v_add_u32 v{aO}, s{A}, v{aO}""")
    HD=CFG['hdef']>=0
    def vvi(b_):
        for mm in range(2):
            for r in range(4): p(f"v_cndmask_b32 v{VV[b_][mm]+r}, 0, v{t+4}, s[{cVM}:{cVM+1}]")
    vvi(0)
    HS=CFG['hs2']
    if not HD and not HS: vvi(1)
    for q in range(2): p(f"v_mov_b32 v{QT[q]}, 0\nv_mov_b32 v{QT[q]+1}, 0")
    if CFG['lclr']:
        for r in range(4): p(f"v_mov_b32 v{PP+r}, -1")
        p(f"""s_lshl_b32 s{A}, s2, 2
        s_add_u32 s{A}, s{A}, s{sWAVE}
        s_mul_i32 s{B}, s{A}, 640
        s_add_u32 s{B}, s{B}, {CAND}
        v_mov_b32 v{PP+5}, s{B}
        s_min_u32 s{B}, s{A}, 191
        s_lshl_b32 s{B}, s{B}, 7
        s_add_u32 s{B}, s{B}, {ACT-640}
        v_mov_b32 v{PP+6}, s{B}
        v_cmp_gt_u32 vcc, 40, v0
        s_cmp_lt_u32 s{A}, 192
        s_cselect_b32 s{sLCX}, 0xff00, 0
        s_or_b32 s{sLCX}, s{sLCX}, 0xff
        v_cndmask_b32 v{PP+5}, v{PP+6}, v{PP+5}, vcc
        v_add_u32 v{PP+4}, v{PP+5}, v{aLin}""")
    if CFG['osent']: wo_scal()
    assert CFG['hsent'] or not CFG['hkv']
    if CFG['hkv']:
        p(f"v_mov_b32 v{t+4}, {F_FS}"); lds_wait(t+4,t+5,C,'gt',1,0)
    else:
        if CFG['hst'] or HD or HS or CFG['honly']: p(f"s_mov_b32 s{C}, {SPIN}\ns_waitcnt vmcnt(0)")
        else: p(f"""s_lshr_b32 s{A}, s{sWAVE}, 1
        s_lshl_b32 s{A}, s{A}, 2
        s_add_u32 s{A}, s{A}, {F_STG}
        v_mov_b32 v{t+4}, s{A}
        v_mov_b32 v{t+5}, 1
        {f"s_cmp_lg_u32 s{sOWN}, 0" if OWN else ""}
        {f"s_cbranch_scc1 L_own" if OWN else ""}
        s_mov_b32 s{C}, {SPIN}
        s_cmp_eq_u32 s{sHAL2}, 0
        s_waitcnt vmcnt(0)
        s_cbranch_scc1 {nh}
        s_mov_b64 exec, 1
        ds_add_u32 v{t+4}, v{t+5}
        s_mov_b64 exec, -1
        {nh}:""")
        STAMP('hack')
        p(f"""s_branch {md}
        {lp}:
        {ld}
        s_waitcnt vmcnt(0)
        {md}:
        v_cmp_ne_u32 vcc, s{sTAG}, v{t+10}
        s_nop 0
        s_cbranch_vccz {ok}""")
        spin(C,lp,ok)
        p(f"s_branch {lp}")
        if OWN:
            p(f"L_own:\nv_mov_b32 v{t+6}, {F_OWN}\ns_mov_b64 exec, 1\nds_add_u32 v{t+6}, v{t+5} offset:{F_FS-F_OWN+65536}\ns_mov_b64 exec, -1".replace(f"offset:{F_FS-F_OWN+65536}","") if 0 else f"L_own:\nv_mov_b32 v{t+6}, {F_FS}\ns_mov_b64 exec, 1\nds_add_u32 v{t+6}, v{t+5}\ns_mov_b64 exec, -1\nv_mov_b32 v{t+6}, {F_OWN}"); lds_wait(t+6,t+7,C,'gt',1,0)
        p(f"{ok}:")
    STAMP('fseen')
    if not CFG['hkv'] and not HS: kv_dma(aLin,aTl,cK,cV,cL,A,B,cHO)
    for q in range(2): p(f"buffer_load_dwordx4 {vr(QM[q],4)}, v{aQ0}, {S4(sWS)}, s{sQ[q]} offen {CFG['ldp']}")
    p(f"s_mov_b64 exec, s[{sLO}:{sLO+1}]")
    for q in range(2): p(f"buffer_load_dwordx2 {vr(QT[q],2)}, v{aQ1}, {S4(sWS)}, s{sQ[q]} offen offset:1024 {CFG['ldp']}")
    if CFG['lclr']:
        assert not (HD or CFG['hkv'] or OWN) and CFG['xru']>CFG['lcu']
        st=[f"buffer_store_dwordx2 {vr(PP,2)}, v{aO}, {S4(sWS)}, s{sOt[q]} offen offset:512" for q in range(2)]+["s_mov_b64 exec, -1"]+[f"buffer_store_dwordx4 {vr(PP,4)}, v{aO}, {S4(sWS)}, s{sOm[q]} offen" for q in range(2)]
        p(f"s_cmp_lg_u32 s{sOSC}, 0\ns_cbranch_scc1 L_lcs")
        for x in st: p(x)
        p("s_branch L_lcj\nL_lcs:")
        for x in st: p(x+(" sc1" if x.startswith("buffer") else ""))
        p(f"L_lcj:\ns_mov_b32 exec_hi, s{sLCX}\nbuffer_store_dwordx4 {vr(PP,4)}, v{PP+4}, {S4(sWS)}, 0 offen sc1")
    if HD:
        assert CFG['xru']>CFG['hdef']
        n2=p.lab("nohd"); j2=p.lab("jhd")
        p(f"""s_mov_b64 exec, 1
        v_mov_b32 v{t}, {F_G1}
        v_mov_b32 v{t+1}, 1
        ds_add_u32 v{t}, v{t+1} offset:{F_FS-F_G1}
        s_mov_b64 exec, -1
        v_mov_b32 v{aFl}, {F_G1}
        s_cmp_eq_u32 s{sHAL2}, 0
        s_cbranch_scc1 {n2}""")
        g1=lambda n: p(f"s_mov_b64 exec, 1\ns_waitcnt vmcnt({n})\nds_add_u32 v{t}, v{t+1}\ns_mov_b64 exec, -1")
        if CFG['hdg']=='G1':
            g1(4); lds_wait(aFl,t+5,C,'gt',4,0)
            for x in HST: p(x)
            p("s_nop 1"); vvi(1)
        else:
            if CFG['hdg']=='FS': p(f"v_mov_b32 v{t+6}, {F_FS}"); lds_wait(t+6,t+5,C,'gt',4,0)
            for x in HST: p(x)
            p("s_nop 1"); vvi(1)
            g1(12); lds_wait(aFl,t+5,C,'gt',4,0)
        p(f"s_waitcnt vmcnt(8)\ns_branch {j2}\n{n2}:")
        vvi(1); g1(4); lds_wait(aFl,t+5,C,'gt',4,0)
        p(f"""s_waitcnt vmcnt(0)
        {j2}:
        s_lshr_b32 s{A}, s{sWAVE}, 1
        s_lshl_b32 s{A}, s{A}, 2
        s_add_u32 s{A}, s{A}, {F_STG}
        v_mov_b32 v{t+4}, s{A}""")
    elif HS:
        assert CFG['xru']>CFG['hs2u'] and not (CFG['lclr'] or OWN or CFG['hkv'] or CFG['hst'] or CFG['honly'] or CFG['hearly'] or CFG['padk']==1)
        n2=p.lab("hsu"); n3=p.lab("hsd"); j2=p.lab("jhs"); j3=p.lab("jhs"); j4=p.lab("jhs")
        fs=f"ds_add_u32 v{t}, v{t+1} offset:{F_FS-F_G1}"
        p("s_mov_b64 exec, -1")
        kv_dma(aLin,aTl,cK,cV,cL,A,B,cHO)
        p(f"""v_mov_b32 v{t}, {F_G1}
        v_mov_b32 v{t+1}, 1
        v_mov_b32 v{aFl}, {F_G1}
        v_mov_b32 v{vHF}, s{sTAG}
        v_mov_b32 v{vHF+1}, 0
        s_cmp_eq_u32 s{sHAL2}, 2
        s_cbranch_scc1 {n3}""")
        vvi(1)
        p(f"""s_mov_b64 exec, 1
        s_cmp_eq_u32 s{sHAL2}, 1
        s_cbranch_scc1 {n2}
        {fs if 'FS' in CFG['gm']+CFG['gr'] else ""}
        s_waitcnt vmcnt(0)
        s_branch {j2}
        {n2}:
        buffer_store_dword v{vHF}, v{vHF+1}, {S4(sWS)}, s{sHFA} offen sc1
        {fs}
        s_waitcnt vmcnt(1)
        s_branch {j2}
        {n3}:
        s_mov_b64 exec, 1
        {fs}
        s_mov_b64 exec, -1""")
        if CFG['hs2g']=='FS': p(f"v_mov_b32 v{t+6}, {F_FS}"); lds_wait(t+6,t+5,C,'gt',4,0)
        elif CFG['hs2g']=='KV': p("s_waitcnt vmcnt(0)")
        for x in HST: p(x)
        p("s_nop 1"); vvi(1)
        p(f"""s_mov_b64 exec, 1
        s_waitcnt vmcnt(8)
        {j2}:
        ds_add_u32 v{t}, v{t+1}
        s_mov_b64 exec, -1""")
        lds_wait(aFl,t+5,C,'gt',4,0)
    elif CFG['hkv']: p("s_mov_b64 exec, -1")
    if CFG['lay'] and CFG['padk']==1:
        for w in range(3): p(f"s_cmp_eq_u32 s{sWAVE}, {w}\ns_cbranch_scc1 L_pv{w}")
        p("s_branch L_pv3\nL_kvb:")
    if not HD and not HS and not CFG['hkv']: p(f"""s_mov_b64 exec, 1
    v_mov_b32 v{t}, {F_G1}
    v_mov_b32 v{t+1}, 1
    {f"ds_add_u32 v{t}, v{t+1} offset:{F_FS-F_G1}" if 'FS' in CFG['gm']+CFG['gr'] else ""}
    {f"s_cmp_eq_u32 s{sOWN}, 0" if OWN else ""}
    {f"s_cbranch_scc1 L_nohk" if OWN else ""}
    {f"s_waitcnt vmcnt(10)" if OWN else ""}
    {f"ds_add_u32 v{t+4}, v{t+1}" if OWN else ""}
    {f"L_nohk:" if OWN else ""}
    s_waitcnt vmcnt({9 if CFG['lclr'] else 4})
    ds_add_u32 v{t}, v{t+1}
    s_mov_b64 exec, -1
    v_mov_b32 v{aFl}, {F_G1}""")
    if CFG['hkv']: lds_wait(aFl,t+5,C,'gt',4,0)
    if CFG['xru']<0: xr_loads()
    if not HD and not HS:
        if not CFG['hkv']: lds_wait(aFl,t+5,C,'gt',4,0)
        p(f"s_waitcnt vmcnt({6 if CFG['xru']<0 else 5 if CFG['lclr'] else 0})")
    STAMP('kv')
    p(f"""s_cmp_eq_u32 s{sWAVE}, 1
    s_cbranch_scc1 L_av1
    s_cmp_eq_u32 s{sWAVE}, 2
    s_cbranch_scc1 L_av2
    s_cmp_eq_u32 s{sWAVE}, 3
    s_cbranch_scc1 L_av3""")
    if CFG['lay']: p("s_branch L_av0")
PG=".p2alignl 12, 0xbf810000"
KVB=lambda b: 'L_kvb' if CFG['padk']==1 else f'L_pkb{b}'
def kreads(n,b_):
    o=(n>>1)*5632
    return [f"ds_read_b128 {vr(KM[b_],4)}, v{(aKm,aKm1)[n&1]} offset:{o}", f"ds_read_b64 {vr(KT[b_],2)}, v{(aKt,aKt1)[n&1]} offset:{o}"]
def vreads(n,b_):
    o=(n>>1)*5632; a=(aV,aV1)[n&1]
    return [f"s_mov_b64 exec, s[{sLO+2}:{sLO+3}]", f"ds_read_b128 {vr(VV[b_][0],4)}, v{a} offset:{o}", f"ds_read_b128 {vr(VV[b_][1],4)}, v{a} offset:{o+640}", "s_mov_b64 exec, -1"]
def att_variant(w):
    U=[]
    for n in range(15-w,8+w,-1): U.append((0,n))
    for n in range(8+w,6-w,-1): U+= [(0,n),(1,n)]
    for n in range(6-w,w-1,-1): U.append((1,n))
    assert len(U)==18
    diag=[15-w,8+w]
    tiles=[]; tau=[]
    for q,n in U:
        if not tiles or tiles[-1]!=n: tiles.append(n)
        tau.append(len(tiles)-1)
    first=[tau.index(i) for i in range(len(tiles))]
    started=[0,0]
    def QK(u):
        q,n=U[u]; b_=tau[u]&1; S=vr(SS[u&1],16)
        c=vr(CD,16) if n==diag[q] else (vr(CF,16) if n==diag[q]-8 else "0")
        return [f"v_mfma_f32_32x32x16_bf16 {S}, {vr(KM[b_],4)}, {vr(QM[q],4)}, {c}", f"v_mfma_f32_32x32x8_bf16 {S}, {vr(KT[b_],2)}, {vr(QT[q],2)}, {S}"]
    def PV(u,m):
        q,n=U[u]; O=vr(OO[q],16)
        c=O if started[q] else "0"; started[q]=1
        return f"v_mfma_f32_32x32x16_bf16 {O}, {vr(VV[tau[u]&1][m],4)}, {vr(PP+4*m,4)}, {c}"
    if CFG['lay']:
        p(PG)
        if CFG['padk']: p(f"L_pv{w}:\ns_branch {(('L_padW','L_padM',KVB(1),KVB(1)) if CFG['padk']<3 else ('L_pv1','L_pv2','L_pv3','L_padW'))[w]}")
    p(f"L_av{w}:")
    for i,f in enumerate(first):
        if f<=1:
            for x in kreads(tiles[i],i&1): p(x)
    for x in vreads(tiles[0],0): p(x)
    p("s_waitcnt lgkmcnt(0)")
    for x in QK(0): p(x)
    p("s_nop 7\ns_nop 3")
    pend=False
    H=first[tiles.index(7)]
    H2=first[tiles.index(3)]
    Hs=[H,H2]+([first[tiles.index(1)]] if CFG['hs2'] and 1 in tiles else [])
    for u in range(18):
        S=SS[u&1]
        e=lambda i: p(f"v_exp_f32 v{S+i}, v{S+i}")
        c=lambda k: p(f"v_cvt_pk_bf16_f32 v{PP+k}, v{S+2*k}, v{S+2*k+1}")
        kr=[x for i,f in enumerate(first) if f==u+2 for x in kreads(tiles[i],i&1)]
        vr_=[x for i,f in enumerate(first) if f==u+1 for x in vreads(tiles[i],i&1)]
        late=(u+2 in Hs); pre=(u+3 in Hs); hk=Hs.index(u+2) if late else Hs.index(u+3) if pre else None
        assert not (late and pre)
        STAMP('u%d'%u)
        e(0); e(1)
        if u>0: p(PV(u-1,1))
        if u==CFG['xru']: xr_loads()
        if u==CFG['hdef']:
            p(f"v_mov_b32 v{vT+5}, 1\ns_waitcnt vmcnt(0)\ns_mov_b64 exec, 1\nds_add_u32 v{vT+4}, v{vT+5}\ns_mov_b64 exec, -1")
            STAMP('hack')
        if CFG['hs2'] and u==CFG['hs2u']:
            p(f"s_cmp_eq_u32 s{sHAL2}, 2\ns_cbranch_scc1 L_hb{w}\nL_hr{w}:")
        if CFG['lclr'] and u==CFG['lcu']:
            assert u<7
            p(f"s_waitcnt vmcnt(0)\ns_mov_b64 exec, 1\nds_add_u32 v{aFl}, v{vT+1} offset:{F_CC-F_G1}\ns_mov_b64 exec, -1")
        e(2)
        if not late:
            for x in kr: p(x)
        if pre: p(f"ds_read_b32 v{vT}, v{aFl} offset:{F_M+4*hk-F_G1}")
        e(3); c(0); c(1)
        if pend: p(f"s_waitcnt lgkmcnt({(len(kr) if not late else 0)+(1 if pre else 0)})")
        qk=QK(u+1) if u<17 else [None,None]
        if qk[0]: p(qk[0])
        e(4)
        if late:
            p(f"v_cmp_gt_u32 vcc, 1, v{vT}")
        e(5)
        if late:
            p(f"s_cbranch_vccnz L_g2w{w}{hk}\nL_g2r{w}{hk}:")
            for x in kr: p(x)
        for x in vr_: p(x)
        e(6); e(7); c(2); c(3)
        if qk[1]: p(qk[1])
        e(8); e(9); e(10); e(11)
        p(PV(u,0))
        c(4); c(5); e(12); e(13); e(14); e(15); c(6); c(7)
        pend=bool(kr or vr_ or pre)
        if u==H-1:
            p(f"s_cmp_eq_u32 s{cT0}, 0\ns_cbranch_scc1 L_ex{w}")
            exq=PV(u,1)
    p("s_nop 1")
    p(PV(17,1))
    p("s_branch L_afin")
    if CFG['hs2']:
        p(f"""L_hb{w}:
        s_waitcnt vmcnt(0)
        s_mov_b64 exec, 1
        buffer_store_dword v{vHF}, v{vHF+1}, {S4(sWS)}, s{sHFA} offen sc1
        s_mov_b64 exec, -1""")
        STAMP('hb')
        p(f"s_branch L_hr{w}")
    for hk in range(len(Hs)):
        p(f"L_g2w{w}{hk}:")
        p(f"v_mov_b32 v{vT+1}, {F_M+4*hk}")
        lds_wait(vT+1,vT,sT+17,'gt',1,0)
        p(f"s_branch L_g2r{w}{hk}")
    p(f"L_ex{w}:\n{exq}")
    if 99>CFG['xru']>=H: xr_loads()
    p("s_waitcnt lgkmcnt(0)\ns_branch L_afin")
    p(f";@slot{w}")
def att_fin():
    t=vT; A=sT+7
    if CFG['lay']:
        p(PG)
        if CFG['padk']: p("L_padW:\ns_branch "+(KVB(0) if CFG['padk']<3 else 'L_padM'))
    p("L_afin:")
    STAMP('aend')
    p(f"s_mov_b32 s{A}, {hex(f2u(2.0**-40))}\ns_mov_b32 s{A+1}, {hex(f2u(2.0**40)-f2u(2.0**-40))}")
    for q in range(2):
        O=OO[q]
        p(f"""v_cndmask_b32 v{t}, v{O+8}, v{O+12}, s[{sLO}:{sLO+1}]
        v_pk_add_f32 v[{t+2}:{t+3}], v[{O}:{O+1}], v[{O+2}:{O+3}]
        v_rcp_f32 v{t+1}, v{t}
        v_pk_add_f32 v[{t+4}:{t+5}], v[{O+4}:{O+5}], v[{O+6}:{O+7}]
        v_pk_add_f32 v[{t+6}:{t+7}], v[{O+8}:{O+9}], v[{O+10}:{O+11}]
        v_subrev_u32 v{t}, s{A}, v{t}
        v_pk_add_f32 v[{t+2}:{t+3}], v[{t+2}:{t+3}], v[{t+4}:{t+5}]
        v_cmp_lt_u32 s[{A+11}:{A+12}], s{A+1}, v{t}
        v_pk_add_f32 v[{t+2}:{t+3}], v[{t+2}:{t+3}], v[{t+6}:{t+7}]
        v_add_f32 v{t+2}, v{t+2}, v{t+3}""")
        p(f"v_cmp_class_f32 vcc, v{t+2}, v{aCLS}")
        for k in range(6): p(f"v_pk_mul_f32 {vr(O+2*k,2)}, {vr(O+2*k,2)}, {vr(t,2)} op_sel:[0,1] op_sel_hi:[1,1]")
        p(f"""s_or_b64 vcc, vcc, s[{A+11}:{A+12}]
        s_cbranch_scc1 L_afb{q}
        L_afr{q}:""")
        for k in range(6): p(f"v_cvt_pk_bf16_f32 v{O+k}, v{O+2*k}, v{O+2*k+1}")
        p(f"s_cmp_lg_u32 s{sOSC}, 0")
        st=[f"buffer_store_dwordx4 {vr(O,4)}, v{aO}, {S4(sWS)}, s{sOm[q]} offen", f"s_mov_b64 exec, s[{sLO}:{sLO+1}]",
            f"buffer_store_dwordx2 {vr(O+4,2)}, v{aO}, {S4(sWS)}, s{sOt[q]} offen offset:512", "s_mov_b64 exec, -1"]
        p(f"s_cbranch_scc1 L_osc{q}")
        for x in st: p(x+(" "+CFG['apol'] if x.startswith("buffer") else ""))
        p(f"s_branch L_osr{q}\nL_osc{q}:")
        for x in st: p(x+(" "+CFG['ospol'] if x.startswith("buffer") else ""))
        p(f"L_osr{q}:")
    p(f"""v_mov_b32 v{t}, {F_DONE}
    v_mov_b32 v{t+1}, 1
    s_mov_b64 exec, 1
    ds_add_u32 v{t}, v{t+1}
    s_mov_b64 exec, -1""")
    STAMP('ost')
aCLS=255; aFO=226; aFR=227
def att_cold():
    t=vT; A=sT+7; B=sT+8; N=sT+17; J=sT+18; CN=sT+19; PA=sT+20
    for q in range(2): p(f"L_afb{q}:\ns_cmp_lg_u32 s{sFB}, 0\ns_cbranch_scc1 L_afr{q}\ns_branch L_afb")
    p(f"L_afb:\ns_mov_b32 s{sFB}, 1\ns_waitcnt lgkmcnt(0)")
    S=SS[0]; MX=t+10; xa=t+11
    for q in range(2):
        lp=p.lab("fb"); nd=p.lab("fbnd"); nf=p.lab("fbnf"); p2=p.lab("fbp2"); nx=p.lab("fbnx"); ps=p.lab("fbps"); dn=p.lab("fbdn")
        for r in range(16): p(f"v_mov_b32 v{OO[q]+r}, 0")
        p(f"""v_mov_b32 v{MX}, {NINF}
        s_mov_b32 s{PA}, 0
        {ps}:""")
        if q==0: p(f"s_sub_u32 s{N}, 15, s{sWAVE}")
        else: p(f"s_add_u32 s{N}, 8, s{sWAVE}")
        p(f"""s_sub_u32 s{CN}, s{N}, 7
        s_cmp_eq_u32 s{cT0}, 0
        s_cselect_b32 s{CN}, s{CN}, 9
        s_mov_b32 s{J}, 0
        {lp}:
        s_lshr_b32 s{A}, s{N}, 1
        s_mul_i32 s{A}, s{A}, 5632
        s_bitcmp1_b32 s{N}, 0
        s_cselect_b64 vcc, -1, 0
        s_nop 0
        v_cndmask_b32 v{xa}, v{aKm}, v{aKm1}, vcc
        v_cndmask_b32 v{xa+1}, v{aKt}, v{aKt1}, vcc
        v_cndmask_b32 v{xa+2}, v{aV}, v{aV1}, vcc
        v_add_u32 v{xa}, s{A}, v{xa}
        v_add_u32 v{xa+1}, s{A}, v{xa+1}
        v_add_u32 v{xa+2}, s{A}, v{xa+2}
        ds_read_b128 {vr(KM[0],4)}, v{xa}
        ds_read_b64 {vr(KT[0],2)}, v{xa+1}
        s_mov_b64 exec, s[{sLO+2}:{sLO+3}]
        ds_read_b128 {vr(VV[0][0],4)}, v{xa+2}
        ds_read_b128 {vr(VV[0][1],4)}, v{xa+2} offset:640
        s_mov_b64 exec, -1
        s_waitcnt lgkmcnt(0)
        v_mfma_f32_32x32x16_bf16 {vr(S,16)}, {vr(KM[0],4)}, {vr(QM[q],4)}, 0
        v_mfma_f32_32x32x8_bf16 {vr(S,16)}, {vr(KT[0],2)}, {vr(QT[q],2)}, {vr(S,16)}
        v_mov_b32 v{xa}, {NINF}
        s_nop 11
        s_cmp_lg_u32 s{J}, 0
        s_cbranch_scc1 {nd}""")
        for r in range(16): p(f"v_cmp_eq_u32 vcc, 0, v{CD+r}\ns_nop 1\nv_cndmask_b32 v{S+r}, v{xa}, v{S+r}, vcc")
        p(f"{nd}:\ns_cmp_lg_u32 s{J}, 8\ns_cbranch_scc1 {nf}")
        for r in range(16): p(f"v_cmp_eq_u32 vcc, 0, v{CF+r}\ns_nop 1\nv_cndmask_b32 v{S+r}, v{xa}, v{S+r}, vcc")
        p(f"{nf}:\ns_cmp_lg_u32 s{PA}, 0\ns_cbranch_scc1 {p2}")
        for r in range(0,16,2): p(f"v_max3_f32 v{MX}, v{S+r}, v{S+r+1}, v{MX}")
        p(f"s_branch {nx}\n{p2}:")
        for r in range(16): p(f"v_sub_f32 v{S+r}, v{S+r}, v{MX}")
        for r in range(16): p(f"v_exp_f32 v{S+r}, v{S+r}")
        p("s_nop 0")
        for k in range(8): p(f"v_cvt_pk_bf16_f32 v{PP+k}, v{S+2*k}, v{S+2*k+1}")
        p("s_nop 1")
        for m in range(2): p(f"v_mfma_f32_32x32x16_bf16 {vr(OO[q],16)}, {vr(VV[0][m],4)}, {vr(PP+4*m,4)}, {vr(OO[q],16)}")
        p(f"""s_nop 11
        {nx}:
        s_sub_u32 s{N}, s{N}, 1
        s_add_u32 s{J}, s{J}, 1
        s_cmp_lt_u32 s{J}, s{CN}
        s_cbranch_scc1 {lp}
        s_cmp_lg_u32 s{PA}, 0
        s_cbranch_scc1 {dn}
        v_mov_b32 v{xa}, v{MX}
        s_mov_b32 s{PA}, 1
        s_nop 0
        v_permlane32_swap_b32 v{xa}, v{MX}
        s_nop 1
        v_max_f32 v{MX}, v{MX}, v{xa}
        s_branch {ps}
        {dn}:""")
    p("s_branch L_afin")

BF=28; AF=108; WACC=200; XR=176; WR_=186; aX2=196; aPS=197; aAL=198; aAR=199; SW=220; aL4=221; aPR=222; aKY=223; aCD=224
HP=40; HF_=50; LP=70; OP=80
sRT=sT+1; sOL=sT+2; sOR=sT+5; sXO=cXO; sPSO=sT+12; sRETRY=sT+13; sPRB=sT+14; sFLO=sT+16; sFRE=sT+18
def acc_init():
    for k in range(10): p(f"v_lshlrev_b32 v{WACC+2*k}, 16, v{XR+k}\nv_and_b32 v{WACC+2*k+1}, 0xffff0000, v{XR+k}")
def wo_pre1():
    t=vT; A=sT+7; B=sT+8
    wo_ids()
    p(f"""v_and_b32 v{t}, 15, v0
    v_lshrrev_b32 v{t+1}, 4, v0
    v_mul_u32_u24 v{aWR}, 40, v{t+1}
    v_mov_b32 v{t+3}, 1280
    v_mad_u32_u24 v{aX2}, v{t}, v{t+3}, v{aWR}
    s_lshl_b32 s{A}, s{sBLK}, 2
    s_add_u32 s{A}, s{A}, s{sWAVE}
    s_mul_i32 s{A}, s{A}, 20480
    s_mul_i32 s{cJ}, s{sJ}, 160
    s_add_u32 s{cXO}, s{A}, s{cJ}
    v_lshlrev_b32 v{aPS}, 7, v{t}
    v_lshl_add_u32 v{aPS}, v{t+1}, 5, v{aPS}
    v_lshlrev_b32 v{aFR}, 7, v{t}
    v_mul_u32_u24 v{t+2}, 640, v{t+1}
    v_bfe_u32 v{t+3}, v0, 2, 2
    v_mul_u32_u24 v{t+3}, 160, v{t+3}
    v_and_b32 v{t+4}, 3, v0
    v_mul_u32_u24 v{t+4}, 40, v{t+4}
    v_add3_u32 v{t+2}, v{t+2}, v{t+3}, v{t+4}
    s_mul_i32 s{A}, s{sHH}, 51200
    s_add_u32 s{B}, s{A}, {L_WO}
    v_add_u32 v{aAL}, s{B}, v{t+2}
    s_sub_u32 s{B}, {L_WO+51200}, s{A}
    v_add_u32 v{aAR}, s{B}, v{t+2}
    v_and_b32 v{t+2}, 7, v0
    v_mul_u32_u24 v{t+2}, 1280, v{t+2}
    v_bfe_u32 v{t+3}, v0, 3, 1
    v_lshl_add_u32 v{aPR}, v{t+3}, 7, v{t+2}""")
    if CFG['xdma']:
        assert 0<=CFG['xru']<99 and CFG['odn']==1
        p(f"""v_mul_u32_u24 v{t+2}, 6554, v0
        v_lshrrev_b32 v{t+2}, 16, v{t+2}
        v_mul_u32_u24 v{t+2}, 1120, v{t+2}
        v_lshl_add_u32 v{aXD}, v0, 4, v{t+2}
        s_mul_i32 s{B}, s{sWAVE}, 2560
        s_add_u32 s{B}, s{B}, {L_STG}
        v_mul_u32_u24 v{t+2}, 160, v{t}
        v_add3_u32 v{aXL}, v{t+2}, v{aWR}, s{B}
        v_add_u32 v{aWR}, {L_SA}, v{aWR}""")
    if CFG['wsp']:
        p(f"""s_and_b32 s{B}, s{sWAVE}, 1
        s_mul_i32 s{B}, s{B}, 25600
        v_add_u32 v{aAL}, s{B}, v{aAL}
        v_add_u32 v{aAR}, s{B}, v{aAR}
        s_lshr_b32 s{B}, s{sWAVE}, 1
        s_mul_i32 s{B}, s{B}, 10240
        s_add_u32 s{A}, s{A}, s{B}
        s_and_b32 s{B}, s{sWAVE}, 1
        s_lshl_b32 s{B}, s{B}, 10
        s_add_u32 s{A}, s{A}, s{B}
        s_add_u32 s{A}, s{A}, {L_WO}
        v_lshlrev_b32 v{aL4}, 4, v0
        v_add_u32 v{aPR}, s{A}, v{aL4}
        v_add_u32 v{aL4}, 4096, v{aL4}""")
def wo_pre2():
    acc_init()
def probe(soff,cnt,first=True):
    t=vT
    lp=p.lab("pb"); ok=p.lab("pbok"); md=p.lab("pbm")
    p(f"s_mov_b32 s{cnt}, {SPIN}")
    if not first: p(f"s_branch {md}")
    p(f"""{lp}:
    buffer_load_dwordx3 v[{t+4}:{t+6}], v{aPR}, {S4(sWS)}, s{soff} offen offset:512 sc1""")
    if not first: p(f"{md}:")
    p(f"""s_waitcnt vmcnt(0)
    v_max_u32 v{t+4}, v{t+4}, v{t+6}
    v_cmp_eq_u32 vcc, -1, v{t+4}
    s_nop 0
    s_cbranch_vccz {ok}""")
    spin(cnt,lp,ok)
    p(f"s_branch {lp}\n{ok}:")
def red3(a,b,c,d):
    p(f"""v_mov_b32 v{d}, v{c}
    s_nop 0
    v_permlane32_swap_b32 v{a}, v{b}
    v_permlane32_swap_b32 v{c}, v{d}
    s_nop 0
    v_add_f32 v{a}, v{a}, v{b}
    v_add_f32 v{c}, v{c}, v{d}
    s_nop 1
    v_permlane16_swap_b32 v{a}, v{c}
    s_nop 0
    v_add_f32 v{a}, v{a}, v{c}
    v_add_f32 v{c}, v{a}, 0
    s_nop 1
    v_permlane16_swap_b32 v{a}, v{c}
    s_nop 0
    v_mov_b32 v{b}, v{a}
    s_nop 1
    v_permlane32_swap_b32 v{a}, v{b}""")
def wo_scal():
    A=sT+7; B=sT+8
    wo_ids()
    p(f"""s_lshl_b32 s{sRT}, s{sBLK}, 2
    s_add_u32 s{sRT}, s{sRT}, s{sWAVE}
    s_mul_i32 s{A}, s{sRT}, 20480
    s_mul_i32 s{B}, s{sMODE}, {OB2-OB}
    s_add_u32 s{A}, s{A}, s{B}
    s_add_u32 s{A}, s{A}, {OB}
    s_mul_i32 s{B}, s{sHH}, 10240
    s_add_u32 s{sOL}, s{A}, s{B}
    s_add_u32 s{sOL+1}, s{sOL}, 4096
    s_add_u32 s{sOL+2}, s{sOL}, 8192
    s_add_u32 s{A}, s{A}, 10240
    s_sub_u32 s{sOR}, s{A}, s{B}
    s_lshl_b32 s{sPSO}, s{sRT}, 11
    s_add_u32 s{sPSO}, s{sPSO}, {PS}
    s_mov_b32 s{sRETRY}, {1<<16}
    s_add_u32 s{sOR+1}, s{sOR}, 4096
    s_add_u32 s{sPRB}, s{sOR}, 8192""")
    if CFG['wsp']:
        p(f"""s_and_b32 s{A}, s{sWAVE}, 1
        s_mul_i32 s{B}, s{A}, 5120
        s_add_u32 s{sOL}, s{sOL}, s{B}
        s_add_u32 s{sOR}, s{sOR}, s{B}
        s_mul_i32 s{B}, s{A}, -40960
        s_add_u32 s{B}, s{B}, 20480
        s_add_u32 s{sOL+1}, s{sOL}, s{B}
        s_add_u32 s{sOR+1}, s{sOR}, s{B}""")
def wo_flags():
    A=sT+7; B=sT+8
    p(f"""s_lshr_b32 s{A}, s{sRT}, 1
    s_lshl_b32 s{A}, s{A}, 12
    s_lshl_b32 s{B}, s{sHH}, 11
    s_add_u32 s{A}, s{A}, {FO}
    s_add_u32 s{sFLO}, s{A}, s{B}
    s_xor_b32 s{sFRE}, s{sFLO}, 2048""")
def wo_gemm():
    t=vT; A=sT+7; B=sT+8; C=sT+17; MXS=t+8
    sROFF=[sOR,sOR+1,sPRB]
    LA=CFG['wla']; WE=CFG['wwe']
    LG=[]
    def af(m): return AF+4*(m%15)
    def aread(m):
        s_,t_=divmod(m,5)
        for rd in range(2):
            p(f"ds_read_b64_tr_b16 {vr(af(m)+2*rd,2)}, v{aAL if s_<10 else aAR} offset:{(s_%10)*5120+rd*2560+8*t_}"); LG.append(m)
    def lgw(m):
        k=[i for i,x in enumerate(LG) if x!='x' and x<=m]
        if not k: return None
        n=len(LG)-1-max(k); del LG[:max(k)+1]; return n
    def bload(s_):
        so=(sOL+(s_%10)//4) if s_<10 else sROFF[(s_%10)//4]
        return f"buffer_load_dwordx4 {vr(BF+4*s_,4)}, v{aLin}, {S4(sWS)}, s{so} offen offset:{(s_%10%4)*1024} sc1"
    def cold(f):
        n0=len(p.L); f(); COLD.append("\n".join(p.L[n0:])); del p.L[n0:]
    p(f"s_cmp_lg_u32 s{sMODE}, 0\ns_cbranch_scc1 L_plsl\nL_plr:")
    def slow():
        p("L_plsl:"); wo_flags()
        p(f"""v_mov_b32 v{t+1}, s{sTAG}
        s_mov_b64 exec, 3
        s_waitcnt vmcnt(0)
        buffer_store_dword v{t+1}, v{aFO}, {S4(sWS)}, 0 offen sc1
        s_mov_b64 exec, -1""")
        flag_poll(aFR,t+4,sFLO,C); flag_poll(aFR,t+4,sFRE,C); p("s_branch L_plr")
    cold(slow)
    NI=CFG['oini']
    def dn():
        if CFG['odn']:
            p(f"v_mov_b32 v{t}, {F_DONE}"); lds_wait(t,t+1,C,'gt',4,0)
    if CFG['oprb']:
        p(f"buffer_load_dwordx3 v[{t+4}:{t+6}], v{aPR}, {S4(sWS)}, s{sOL} offen offset:512 sc1\ns_waitcnt vmcnt(5)")
    else:
        dn()
        for s_ in range(NI): p(bload(s_))
        p(f"s_waitcnt vmcnt({NI+4})")
    acc_init()
    p(f"v_mov_b32 v{t}, {F_WOR}")
    STAMP('fo')
    lds_wait(t,t+1,C,'gt',2,0)
    p(f"ds_read_b32 v{SW}, v{t} offset:{L_SWS-F_WOR}"); LG.append('x')
    STAMP('wor')
    if CFG['oprb']: dn()
    for m in range(LA): aread(m)
    p(f"v_mov_b32 v{t+7}, {F_WO2}\ns_mov_b32 s{sRETRY}, {SPIN}")
    if CFG['oprb']:
        probe(sOL,C,first=False)
        STAMP('prb')
        for s_ in range(NI): p(bload(s_))
    G={}; a=0
    for n in CFG['ogr']: G[a]=a+n; a+=n
    assert a==20 and 10 in G
    def chain(a,b):
        return [f"v_max_u32 v{MXS}, v{BF+4*a}, v{BF+4*a+2}"]+[f"v_max3_u32 v{MXS}, v{BF+4*k}, v{BF+4*k+2}, v{MXS}" for k in range(a+1,b)]
    cmp_=f"v_cmp_eq_u32 vcc, -1, v{MXS}"
    def retry(a,b):
        e=20 if (CFG['opoll']=='all' or a>=10) else 10
        def f():
            p(f"L_og{a}:\ns_sub_u32 s{sRETRY}, s{sRETRY}, 1\ns_cbranch_scc1 L_ogr{a}")
            sl=CFG['osl'][a//10]
            if sl: p(f"s_sleep {sl}")
            if CFG['opoll']=='probe' and a==0: probe(sOL,C)
            for k in range(a,e): p(bload(k))
            p(f"s_waitcnt vmcnt({20-b if e==20 else 0})")
            for x in chain(a,b): p(x)
            p(f"{cmp_}\ns_nop 0\ns_cbranch_vccnz L_og{a}\ns_branch L_ogr{a}")
        cold(f)
    last=lambda s_: (NI if s_<NI else 20)-1
    p(f"s_waitcnt vmcnt({last(0)+1-G[0]})")
    for x in chain(0,G[0]): p(x)
    p(f"{cmp_}\ns_nop 0\ns_cbranch_vccnz L_og0\nL_ogr0:"); retry(0,G[0])
    STAMP('pl')
    for m in range(100):
        s_,t_=divmod(m,5)
        nx=s_+1 if s_+1 in G else None
        if m==50:
            STAMP('pr')
            if 'PR' in (CFG['gstart'],CFG['dstart'],CFG['dgate'],CFG['mtg']):
                p(f"""s_mov_b64 exec, 1
                v_mov_b32 v{t+4}, {F_PR}
                v_mov_b32 v{t+5}, 1
                ds_add_u32 v{t+4}, v{t+5}
                s_mov_b64 exec, -1"""); LG.append('x')
        w=[]
        if nx is not None and t_==1: w.append(f"vmcnt({(20 if m>CFG['orem'] else NI)-G[nx]}"); assert G[nx]<=NI or m>CFG['orem']
        if m%WE==0:
            n=lgw(m+WE-1)
            if n is not None: w.append(f"lgkmcnt({n}")
        if w: p("s_waitcnt "+") ".join(w)+")")
        a_=vr(WACC+4*t_,4)
        p(f"v_mfma_f32_16x16x32_bf16 {a_}, {vr(af(m),4)}, {vr(BF+4*s_,4)}, {a_}")
        if NI<20 and m==CFG['orem']:
            for k in range(NI,20): p(bload(k))
        if m+LA==50-10: p(f"ds_read_b32 v{t+6}, v{t+7}"); LG.append('x')
        if m+LA==50:
            assert nx is None or t_<3
            p(f"v_cmp_gt_u32 vcc, 2, v{t+6}\ns_nop 0\ns_cbranch_vccnz L_wo2w\nL_wo2r:")
            def f():
                p("L_wo2w:"); lds_wait(t+7,t+6,C,'gt',2,0); p("s_branch L_wo2r")
            cold(f)
        if m+LA<100: aread(m+LA)
        if nx is not None:
            ch=chain(nx,G[nx]); k=-(-len(ch)//2)
            if t_==1:
                for x in ch[:k]: p(x)
            if t_==2:
                for x in ch[k:]: p(x)
            if t_==3: p(cmp_)
            if t_==4:
                if nx==10: STAMP('loc')
                p(f"s_cbranch_vccnz L_og{nx}\nL_ogr{nx}:"); retry(nx,G[nx])
    p(f"""v_mov_b32 v{t}, 0x3f803f80
    v_mov_b32 v{t+2}, 0
    v_mov_b32 v{t+3}, 0
    v_mov_b32 v{t+4}, 0
    s_nop 3""")
ACC2=148; aXW=222; aPQ=172; aBP=173
def wo_gemm2():
    t=vT; A=sT+7; B=sT+8; C=sT+17; MXS=t+8
    LA=CFG['wla2']
    LG=[]
    def af(m): return AF+4*(m%10)
    def aread(m,rds=(0,1)):
        s_,t_=divmod(m,5)
        for rd in rds:
            if CFG['wnoa'] and m>=LA and rd<CFG['wnoa']: continue
            p(f"ds_read_b64_tr_b16 {vr(af(m)+2*rd,2)}, v{aAL if s_<5 else aAR} offset:{(s_%5)*5120+rd*2560+8*t_}"); LG.append(m)
    def lgw(m):
        k=[i for i,x in enumerate(LG) if x!='x' and x<=m]
        if not k: return None
        n=len(LG)-1-max(k); del LG[:max(k)+1]; return n
    def bload(s_,us=(0,1)):
        for u in us:
            so=(sOL if s_<5 else sOR)+u
            p(f"buffer_load_dwordx4 {vr(BF+8*s_+4*u,4)}, v{aLin if s_%5<4 else aL4}, {S4(sWS)}, s{so} offen offset:{(s_%5%4)*1024} {CFG['ldo'] if s_<5 else 'sc1'}")
    def cold(f):
        n0=len(p.L); f(); COLD.append("\n".join(p.L[n0:])); del p.L[n0:]
    p(f"s_cmp_lg_u32 s{sMODE}, 0\ns_cbranch_scc1 L_plsl\nL_plr:")
    def slow():
        p("L_plsl:"); wo_flags()
        p(f"""v_mov_b32 v{t+1}, s{sTAG}
        s_mov_b64 exec, 3
        s_waitcnt vmcnt(0)
        buffer_store_dword v{t+1}, v{aFO}, {S4(sWS)}, 0 offen sc1
        s_mov_b64 exec, -1""")
        flag_poll(aFR,t+4,sFLO,C); flag_poll(aFR,t+4,sFRE,C); p("s_branch L_plr")
    cold(slow)
    XL=CFG['xru']==99
    XF_=lambda k: (230+2*k if k<8 else 168+2*(k-8))
    p(f"v_mov_b32 v{t}, {F_DONE}")
    if not XL: p("s_waitcnt vmcnt(4)")
    if CFG['xdma']:
        for k in range(5): p(f"ds_read_b64 {vr(XR+2*k,2)}, v{aXL} offset:{8*k}")
        for k in range(5): p(f"ds_read_b64 {vr(WR_+2*k,2)}, v{aWR} offset:{8*k}")
    if CFG['odn']==2 and not XL: acc_init()
    if CFG['odn']: lds_wait(t,t+1,C,'gt',ND,0)
    for s_ in range(5): bload(s_)
    if CFG['odn']!=2 and not XL: acc_init()
    p(f"v_mov_b32 v{t}, {F_WOR}")
    STAMP('fo')
    lds_wait(t,t+1,C,'gt',2,0)
    p(f"ds_read_b32 v{SW}, v{t} offset:{L_SWS-F_WOR}"); LG.append('x')
    STAMP('wor')
    for m in range(LA): aread(m)
    if CFG['psq']: p(f"v_lshrrev_b32 v{t+7}, 2, v0\nv_and_b32 v{aPQ}, 3, v0\nv_lshlrev_b32 v{aPQ}, 4, v{aPQ}\nv_lshl_add_u32 v{aPQ}, v{t+7}, 7, v{aPQ}")
    p(f"""v_mov_b32 v{t+7}, {F_WO2}
    s_mov_b32 s{sRETRY}, {SPIN}
    s_lshl_b32 s{A}, s{sWAVE}, 2
    s_add_u32 s{A}, s{A}, {F_X}
    v_mov_b32 v{t+10}, s{A}
    v_xor_b32 v{t+11}, 4, v{t+10}
    v_mov_b32 v{t+12}, 1""")
    G={}; a=0
    for n in CFG['ogr2']: G[a]=a+n; a+=n
    assert a==10 and 5 in G
    def chain(a,b):
        return [f"v_max_u32 v{MXS}, v{BF+8*a}, v{BF+8*a+2}"]+[f"v_max3_u32 v{MXS}, v{BF+4*k}, v{BF+4*k+2}, v{MXS}" for k in range(2*a+1,2*b)]
    cmp_=f"v_cmp_eq_u32 vcc, -1, v{MXS}"
    def retry(a,b):
        e=10 if a>=5 else 5
        def f():
            p(f"L_og{a}:\ns_sub_u32 s{sRETRY}, s{sRETRY}, 1\ns_cbranch_scc1 L_ogr{a}")
            sl=CFG['osl'][a//5]
            if sl: p(f"s_sleep {sl}")
            for k in range(a,e): bload(k)
            p(f"s_waitcnt vmcnt({20-2*b if e==10 and not (XL and CFG['xrd']>=0) else 0})")
            for x in chain(a,b): p(x)
            p(f"{cmp_}\ns_nop 0\ns_cbranch_vccnz L_og{a}\ns_branch L_ogr{a}")
        cold(f)
    RM={}
    for j in range(10): RM.setdefault(max(-1,int(CFG['orem2'][0]+j*CFG['orem2'][1])),[]).append(j)
    assert max(RM)<=24
    nis=10
    for j in RM.get(-1,()): bload(5+j//2,(j&1,)); nis+=1
    p(f"s_waitcnt vmcnt({nis-2*G[0]})")
    for x in chain(0,G[0]): p(x)
    p(f"{cmp_}\ns_nop 0\ns_cbranch_vccnz L_og0\nL_ogr0:"); retry(0,G[0])
    STAMP('pl')
    def mf(m,u):
        s_,t_=divmod(m,5)
        a_=vr((WACC,ACC2)[u]+4*t_,4)
        p(f"v_mfma_f32_16x16x32_bf16 {a_}, {vr(af(m),4)}, {vr(BF+8*s_+4*u,4)}, {0 if (u or XL) and s_==0 else a_}")
    WE=CFG['wwe2']
    mX=max(RM)+CFG['xrd']; nx_=0; nxat=0
    if XL and mX<0: xr_loads(); nx_=6; nxat=nis
    for m in range(45):
        s_,t_=divmod(m,5)
        nx=s_+1 if s_+1 in G else None
        if m==25:
            STAMP('pr')
            p(f"""s_mov_b64 exec, 1
            ds_add_u32 v{t+7}, v{t+12} offset:{F_LD-F_WO2}"""); LG.append('x')
            if CFG['prm']==25 and 'PR' in (CFG['gstart'],CFG['dstart'],CFG['dgate'],CFG['mtg']):
                p(f"v_mov_b32 v{t+4}, {F_PR}\nds_add_u32 v{t+4}, v{t+12}"); LG.append('x')
            p("s_mov_b64 exec, -1")
        if m==CFG['prm']!=25 and 'PR' in (CFG['gstart'],CFG['dstart'],CFG['dgate'],CFG['mtg']):
            p(f"s_mov_b64 exec, 1\nds_add_u32 v{t+7}, v{t+12} offset:{F_PR-F_WO2+65536 if F_PR<F_WO2 else F_PR-F_WO2}\ns_mov_b64 exec, -1" if 0 else f"s_mov_b64 exec, 1\nv_mov_b32 v{t+4}, {F_PR}\nds_add_u32 v{t+4}, v{t+12}\ns_mov_b64 exec, -1"); LG.append('x')
        w=[]
        if nx is not None and t_==1: w.append(f"vmcnt({nis+(nx_ if 2*G[nx]<=nxat else 0)-2*G[nx]}"); assert nis>=2*G[nx]
        n=lgw(m+WE-1) if m%WE==0 else None
        if n is not None: w.append(f"lgkmcnt({n}")
        if w: p("s_waitcnt "+") ".join(w)+")")
        mf(m,1)
        if m==25-2*LA-1: p(f"ds_read_b32 v{t+6}, v{t+7}"); LG.append('x')
        if m+LA==25:
            assert nx is None or t_<3
            p(f"v_cmp_gt_u32 vcc, 2, v{t+6}\ns_nop 0\ns_cbranch_vccnz L_wo2w\nL_wo2r:")
            def f():
                p("L_wo2w:"); lds_wait(t+7,t+6,C,'gt',2,0); p("s_branch L_wo2r")
            cold(f)
        if m==44-LA: p(f"ds_read_b32 v{t+6}, v{t+7} offset:{F_LD-F_WO2}"); LG.append('x')
        if m+LA<50: aread(m+LA,(0,) if CFG['wsplit'] else (0,1))
        mf(m,0)
        if m+LA<50 and CFG['wsplit']: aread(m+LA,(1,))
        for j in RM.get(m,()): bload(5+j//2,(j&1,)); nis+=1
        if XL and m==mX: xr_loads(); nx_=6; nxat=nis
        if XL and m==40: p("s_waitcnt vmcnt(0)")
        if XL and 40<=m<45:
            for k in (2*(m-40),2*(m-40)+1): p(f"v_lshlrev_b32 v{XF_(k)}, 16, v{XR+k}\nv_and_b32 v{XF_(k)+1}, 0xffff0000, v{XR+k}")
        if CFG['mtg']=='RL' and m==max(RM)+CFG['rld']:
            p(f"s_mov_b64 exec, 1\nv_mov_b32 v{t+4}, {F_H2}\nds_add_u32 v{t+4}, v{t+12}\ns_mov_b64 exec, -1"); LG.append('x')
        if nx is not None:
            ch=chain(nx,G[nx]); k=-(-len(ch)//2)
            if t_==1:
                for x in ch[:k]: p(x)
            if t_==2:
                for x in ch[k:]: p(x)
            if t_==3: p(cmp_)
            if t_==4:
                if nx==5: STAMP('loc')
                p(f"s_cbranch_vccnz L_og{nx}\nL_ogr{nx}:"); retry(nx,G[nx])
                STAMP('og%d'%nx)
    assert LA>=5 and 9 not in G
    for m in range(45,50):
        n=lgw(m)
        if n is not None: p(f"s_waitcnt lgkmcnt({n})")
        mf(m,1)
        if m==45:
            p(f"v_cmp_gt_u32 vcc, 4, v{t+6}\nv_mov_b32 v{t}, 0x3f803f80\ns_cbranch_vccnz L_ldw\nL_ldr:")
            def f():
                p(f"L_ldw:\nv_add_u32 v{t+7}, {F_LD-F_WO2}, v{t+7}"); lds_wait(t+7,t+6,C,'gt',4,0); p("s_branch L_ldr")
            cold(f)
    p(f"""v_mov_b32 v{t+2}, 0
    v_mov_b32 v{t+3}, 0
    v_mov_b32 v{t+4}, 0
    v_xor_b32 v{t+5}, 1024, v{aXW}""")
    for k in range(5):
        p(f"ds_write_b128 v{aXW}, {vr(ACC2+4*k,4)} offset:{2048*k}")
        mf(45+k,0)
    lp=p.lab("xw"); ok=p.lab("xok")
    STAMP('xw')
    p(f"""ds_write_b32 v{t+10}, v{t+12}
    s_mov_b32 s{C}, {SPIN*4}""")
    if XL:
        md=p.lab("xwm")
        p(f"ds_read_b32 v{t+6}, v{t+11}")
        for k in range(5): p(f"ds_read_b128 {vr(BF+4*k,4)}, v{t+5} offset:{2048*k}")
        for k in range(10): p(f"v_pk_add_f32 {vr(WACC+2*k,2)}, {vr(WACC+2*k,2)}, {vr(XF_(k),2)}")
        p(f"s_branch {md}")
    p(f"""{lp}:
    ds_read_b32 v{t+6}, v{t+11}""")
    for k in range(5): p(f"ds_read_b128 {vr(BF+4*k,4)}, v{t+5} offset:{2048*k}")
    if XL: p(f"{md}:")
    p(f"""s_waitcnt lgkmcnt(5)
    v_cmp_eq_u32 vcc, 0, v{t+6}
    s_nop 0
    s_cbranch_vccz {ok}""")
    spin(C,lp,ok)
    p(f"s_waitcnt lgkmcnt(0)\ns_branch {lp}\n{ok}:")
    for k in range(5):
        p(f"s_waitcnt lgkmcnt({4-k})")
        for j in range(2): p(f"v_pk_add_f32 {vr(WACC+4*k+2*j,2)}, {vr(WACC+4*k+2*j,2)}, {vr(BF+4*k+2*j,2)}")
def wo_gemm_old():
    t=vT; A=sT+7; B=sT+8; C=sT+17; MXS=t+8
    wo_scal(); wo_flags()
    p("s_waitcnt vmcnt(4)")
    acc_init()
    p(f"""v_mov_b32 v{t}, {F_WOR}
    v_mov_b32 v{t+1}, s{sTAG}
    s_cmp_eq_u32 s{sOSC}, 0
    s_cbranch_scc1 L_nofo
    s_mov_b64 exec, 3
    s_waitcnt vmcnt(0)
    buffer_store_dword v{t+1}, v{aFO}, {S4(sWS)}, 0 offen sc1
    s_mov_b64 exec, -1
    L_nofo:""")
    STAMP('fo')
    lds_wait(t,t+1,C,'gt',2,0)
    p(f"""ds_read_b32 v{SW}, v{t} offset:{L_SWS-F_WOR}
    L_wo:""")
    STAMP('wor')
    sROFF=[sOR,sOR+1,sPRB]
    LA=CFG['wla']; WE=CFG['wwe']
    LG=[]
    def af(m): return AF+4*(m%15)
    def aread(m):
        s_,t_=divmod(m,5)
        for rd in range(2):
            p(f"ds_read_b64_tr_b16 {vr(af(m)+2*rd,2)}, v{aAL if s_<10 else aAR} offset:{(s_%10)*5120+rd*2560+8*t_}"); LG.append(m)
    def lgw(m):
        k=[i for i,x in enumerate(LG) if x!='x' and x<=m]
        if not k: return None
        n=len(LG)-1-max(k); del LG[:max(k)+1]; return n
    def bload(s_):
        so=(sOL+(s_%10)//4) if s_<10 else sROFF[(s_%10)//4]
        return f"buffer_load_dwordx4 {vr(BF+4*s_,4)}, v{aLin}, {S4(sWS)}, s{so} offen offset:{(s_%10%4)*1024} sc1"
    for m in range(LA): aread(m)
    p(f"v_mov_b32 v{MXS}, 0\nv_mov_b32 v{t+7}, {F_WO2}")
    p(f"s_cmp_lg_u32 s{sMODE}, 0\ns_cbranch_scc1 L_plsl")
    probe(sOL,C)
    p("L_plr:")
    n0=len(p.L)
    p("L_plsl:"); flag_poll(aFR,t+4,sFLO,C); p("s_branch L_plr")
    COLD.append("\n".join(p.L[n0:])); del p.L[n0:]
    STAMP('pl')
    for s_ in range(10): p(bload(s_))
    p(f"buffer_load_dword v{t+4}, v{aFR}, {S4(sWS)}, s{sFRE} offen sc1")
    for m in range(100):
        s_,t_=divmod(m,5)
        if m==50:
            STAMP('loc')
            flag_poll(aFR,t+4,sFRE,C,first=False)
            STAMP('pr')
            for k in range(10,20): p(bload(k))
            if 'PR' in (CFG['gstart'],CFG['dstart'],CFG['dgate'],CFG['mtg']):
                p(f"""s_mov_b64 exec, 1
                v_mov_b32 v{t+4}, {F_PR}
                v_mov_b32 v{t+5}, 1
                ds_add_u32 v{t+4}, v{t+5}
                s_mov_b64 exec, -1"""); LG.append('x')
        w=[]
        if t_==0: w.append(f"vmcnt({(10-s_) if s_<10 else (19-s_)}")
        if m%WE==0:
            n=lgw(m+WE-1)
            if n is not None: w.append(f"lgkmcnt({n}")
        if w: p("s_waitcnt "+") ".join(w)+")")
        a_=vr(WACC+4*t_,4)
        p(f"v_mfma_f32_16x16x32_bf16 {a_}, {vr(af(m),4)}, {vr(BF+4*s_,4)}, {a_}")
        if m+LA==50-10: p(f"ds_read_b32 v{t+6}, v{t+7}"); LG.append('x')
        if m+LA==50:
            p(f"v_cmp_gt_u32 vcc, 2, v{t+6}\ns_nop 0\ns_cbranch_vccnz L_wo2w\nL_wo2r:")
            n0=len(p.L)
            p("L_wo2w:"); lds_wait(t+7,t+6,C,'gt',2,0); p("s_branch L_wo2r")
            COLD.append("\n".join(p.L[n0:])); del p.L[n0:]
        if m+LA<100: aread(m+LA)
        if t_==0 and s_<10: p(f"v_max3_u32 v{MXS}, v{BF+4*s_}, v{BF+4*s_+2}, v{MXS}")
    p(f"""v_cmp_eq_u32 vcc, -1, v{MXS}
    v_mov_b32 v{t}, 0x3f803f80
    v_mov_b32 v{t+2}, 0
    v_mov_b32 v{t+3}, 0
    v_mov_b32 v{t+4}, 0
    s_cbranch_vccnz L_woredo
    L_wook:""")
    COLD.append(f"L_woredo:\ns_sub_u32 s{sRETRY}, s{sRETRY}, 1\ns_cbranch_scc1 L_wook\ns_nop 7")
    q=P();
    COLD.append("\n".join(f"v_lshlrev_b32 v{WACC+2*k}, 16, v{XR+k}\nv_and_b32 v{WACC+2*k+1}, 0xffff0000, v{XR+k}" for k in range(10))+"\ns_branch L_wo")
def wo_main():
    t=vT; A=sT+7; B=sT+8; C=sT+17
    (wo_gemm2 if CFG['wsp'] else wo_gemm if CFG['osent'] else wo_gemm_old)()
    STAMP('wend')
    for k in range(10): p(f"v_cvt_pk_bf16_f32 v{HP+k}, v{WACC+2*k}, v{WACC+2*k+1}")
    for k in range(10):
        p(f"""v_dot2_f32_bf16 v{t+2}, v{HP+k}, v{t}, v{t+2}
        v_dot2_f32_bf16 v{t+4}, v{HP+k}, v{HP+k}, v{t+4}
        v_dot2_f32_bf16 v{t+3}, v{HP+k}, v{WR_+k}, v{t+3}""")
    p(f"""s_lshl_b32 s{A}, s{sJ}, 4
    s_add_u32 s{A}, s{A}, s{sPSO}""")
    red3(t+2,t+3,t+4,t+5)
    p(f"""v_mov_b32 v{t+5}, s{sTAG}
    s_mov_b64 exec, 0xffff
    s_cmp_lg_u32 s{sMODE}, 0
    s_cbranch_scc1 L_pssc
    buffer_store_dwordx4 {vr(t+2,4)}, v{aPS}, {S4(sWS)}, s{A} offen
    L_psr:""")
    if 'WE' in (CFG['gstart'],CFG['g2nd'][0],CFG['mtg']): p(f"s_mov_b64 exec, 1\nv_mov_b32 v{t+10}, {F_SCP}\nv_mov_b32 v{t+11}, 1\nds_add_u32 v{t+10}, v{t+11}")
    p("s_mov_b64 exec, -1")
    COLD.append(f"L_pssc:\nbuffer_store_dwordx4 {vr(t+2,4)}, v{aPS}, {S4(sWS)}, s{A} offen sc1\ns_branch L_psr")
    STAMP('ps')
    G=t+10
    lp=p.lab("ps"); ok=p.lab("psok"); md=p.lab("psm")
    Q=CFG['psq']
    ld=f"""buffer_load_dwordx4 {vr(G,4)}, v{aPQ if Q else aPS}, {S4(sWS)}, s{sPSO} offen sc1
    buffer_load_dwordx4 {vr(G+4,4)}, v{aPQ if Q else aPS}, {S4(sWS)}, s{sPSO} offen offset:{64 if Q else 16} sc1"""
    p(ld)
    for k in range(10): p(f"v_lshlrev_b32 v{HF_+2*k}, 16, v{HP+k}\nv_and_b32 v{HF_+2*k+1}, 0xffff0000, v{HP+k}")
    if CFG['dbg']:
        p(f"s_add_u32 s{A}, s{sXO}, {HB}")
        for o,n in ((0,4),(4,4),(8,2)): p(f"buffer_store_dwordx{n} {vr(HP+o,n)}, v{aX2}, {S4(sWS)}, s{A} offen offset:{4*o}")
    p(f"""s_lshl_b32 s{A}, s{sRT}, 4
    s_sub_u32 s{A}, 2047, s{A}
    {f"v_lshrrev_b32 v{t}, 2, v0" if Q else f"v_and_b32 v{t}, 15, v0"}
    v_sub_u32 v{t+9}, s{A}, v{t}
    v_lshlrev_b32 v{t+9}, 3, v{t+9}
    s_lshl_b32 s{A}, s{sWAVE}, 6
    s_add_u32 s{A}, s{A}, {L_KEYS}
    v_lshl_add_u32 v{aKY}, v{t}, 2, s{A}
    v_and_b32 v{t}, {3 if Q else 48}, v0
    v_lshlrev_b32 v{t}, {6 if Q else 2}, v{t}
    v_add_u32 v{t+8}, {L_KEYS}, v{t}
    {f"v_and_b32 v{t}, 15, v0" if Q else ""}
    {f"v_lshlrev_b32 v{aBP}, 4, v{t}" if Q else ""}
    s_mov_b32 s{C}, {SPIN}
    s_branch {md}
    {PG if CFG['lay'] else ""}
    {"L_padM:" if CFG['lay'] and CFG['padk'] else ""}
    {"s_branch "+KVB(0) if CFG['lay'] and CFG['padk'] else ""}
    {lp}:
    {ld}
    {md}:
    s_waitcnt vmcnt(0)
    v_cmp_ne_u32 vcc, s{sTAG}, v{G+3}
    v_cmp_ne_u32 s[{sT+14}:{sT+15}], s{sTAG}, v{G+7}
    v_pk_add_f32 {vr(t+4,2)}, {vr(G,2)}, {vr(G+4,2)}
    v_add_f32 v{t+6}, v{G+2}, v{G+6}
    s_or_b64 vcc, vcc, s[{sT+14}:{sT+15}]
    s_cbranch_scc0 {ok}""")
    spin(C,lp,ok)
    p(f"""s_branch {lp}
    {ok}:""")
    STAMP('psr'); COUNT('npsr',C,SPIN)
    if 'PS' in (CFG['g2nd'][0],CFG['gstart'],CFG['dstart'],CFG['dgate'],CFG['mtg']): p(f"""s_mov_b64 exec, 1
    v_mov_b32 v{G}, {F_PS}
    v_mov_b32 v{G+1}, 1
    ds_add_u32 v{G}, v{G+1}
    s_mov_b64 exec, -1""")
    M=t+4
    if Q:
        for qp in ("[1,0,3,2]","[2,3,0,1]"):
            for k in range(3): p(f"v_add_f32_dpp v{M+k}, v{M+k}, v{M+k} quad_perm:{qp} row_mask:0xf bank_mask:0xf")
    else: red3(M,M+1,M+2,M+3)
    p(f"""v_mul_f32 v{M}, {1/640!r}, v{M}
    v_mul_f32 v{M+2}, {1/640!r}, v{M+2}
    v_fma_f32 v{M+2}, -v{M}, v{M}, v{M+2}
    v_max_f32 v{M+2}, 0, v{M+2}""")
    bf16r(M+2,M+2)
    p(f"v_add_f32 v{M+2}, 0x3727c5ac, v{M+2}")
    bf16r(M+2,M+2)
    p(f"v_sqrt_f32 v{M+2}, v{M+2}")
    bf16r(M,M)
    bf16r(M+2,M+2)
    RS=t+2
    p(f"""v_rcp_f32 v{RS}, v{M+2}
    v_fma_f32 v{M+1}, -v{M}, v{SW}, v{M+1}
    v_mul_f32 v{M+1}, v{M+1}, v{RS}
    v_cvt_pk_bf16_f32 v{M+1}, v{M+1}, v{M+1}
    v_mul_f32 v{RS+1}, -v{M}, v{RS}
    v_ashrrev_i32 v{M+2}, 31, v{M+1}
    v_or_b32 v{M+2}, 0x80000000, v{M+2}
    v_xor_b32 v{M+1}, v{M+1}, v{M+2}
    v_and_b32 v{M+1}, 0xffff0000, v{M+1}
    v_or_b32 v{KEY}, v{M+1}, v{t+9}
    ds_write_b32 v{aKY}, v{KEY}""")
    K16=AF
    lp=p.lab("ky"); ok=p.lab("kyok"); md=p.lab("kym")
    def lfma():
        for k in range(10): p(f"v_pk_fma_f32 {vr(WACC+2*k,2)}, {vr(HF_+2*k,2)}, {vr(RS,2)}, {vr(RS,2)} op_sel:[0,0,1] op_sel_hi:[1,0,1]")
    def kread():
        for i in range(4): p(f"ds_read_b128 {vr(K16+4*i,4)}, v{t+8} offset:{16*i}")
    if Q:
        p(f"ds_bpermute_b32 v{RS}, v{aBP}, v{RS}\nds_bpermute_b32 v{RS+1}, v{aBP}, v{RS+1}")
        kread()
        p(f"s_mov_b32 s{C}, {SPIN*4}\ns_waitcnt lgkmcnt(4)")
        lfma()
        p(f"s_branch {md}\n{lp}:")
        kread()
        p(f"{md}:")
    else:
        lfma()
        p(f"s_mov_b32 s{C}, {SPIN*4}\n{lp}:")
        kread()
    p("s_waitcnt lgkmcnt(0)")
    p(f"v_max3_u32 v{t}, v{K16}, v{K16+1}, v{K16+2}")
    for i in range(3,15,2): p(f"v_max3_u32 v{t}, v{K16+i}, v{K16+i+1}, v{t}")
    p(f"""v_max_u32 v{t}, v{t}, v{K16+15}
    v_cmp_eq_u32 vcc, -1, v{t}
    v_mov_b32 v{t}, 0
    s_cbranch_vccz {ok}""")
    spin(C,lp,ok)
    p(f"s_branch {lp}\n{ok}:")
    STAMP('keys')
    m0_=sT+18
    for i in range(18):
        if i<16: p(f"v_cmp_gt_u32 s[{m0_+2*(i%2)}:{m0_+2*(i%2)+1}], v{K16+i}, v{KEY}") if False else None
    MK=[sT+14,sT+16,sT+18]
    for i in range(18):
        if i<16: m=MK[i%3]; p(f"v_cmp_gt_u32 s[{m}:{m+1}], v{K16+i}, v{KEY}")
        elif i==16: p("s_nop 0")
        if i>=2: m=MK[(i-2)%3]; p(f"v_addc_co_u32 v{t}, vcc, 0, v{t}, s[{m}:{m+1}]")
    if Q: p(f"""v_cvt_pk_bf16_f32 v{LP}, v{WACC}, v{WACC+1}
    v_cvt_pk_bf16_f32 v{LP+1}, v{WACC+2}, v{WACC+3}
    v_add_u32_dpp v{t}, v{t}, v{t} quad_perm:[1,0,3,2] row_mask:0xf bank_mask:0xf
    v_cvt_pk_bf16_f32 v{LP+2}, v{WACC+4}, v{WACC+5}
    v_cvt_pk_bf16_f32 v{LP+3}, v{WACC+6}, v{WACC+7}
    v_add_u32_dpp v{t}, v{t}, v{t} quad_perm:[2,3,0,1] row_mask:0xf bank_mask:0xf""")
    else: p(f"""v_mov_b32 v{t+1}, v{t}
    v_cvt_pk_bf16_f32 v{LP}, v{WACC}, v{WACC+1}
    v_cvt_pk_bf16_f32 v{LP+1}, v{WACC+2}, v{WACC+3}
    v_permlane32_swap_b32 v{t}, v{t+1}
    v_cvt_pk_bf16_f32 v{LP+2}, v{WACC+4}, v{WACC+5}
    v_add_u32 v{t}, v{t}, v{t+1}
    v_mov_b32 v{t+1}, v{t}
    v_cvt_pk_bf16_f32 v{LP+3}, v{WACC+6}, v{WACC+7}
    v_cvt_pk_bf16_f32 v{LP+4}, v{WACC+8}, v{WACC+9}
    v_permlane16_swap_b32 v{t}, v{t+1}
    v_cvt_pk_bf16_f32 v{LP+5}, v{WACC+10}, v{WACC+11}
    v_add_u32 v{t}, v{t}, v{t+1}""")
    p(f"""v_cmp_gt_u32 s[{sCAND}:{sCAND+1}], 8, v{t}
    v_or_b32 v{KEY}, v{KEY}, v{t}
    v_mov_b32 v{t+1}, {L_CA&~0xffff}
    v_lshl_add_u32 v{t+1}, v{t}, 3, v{t+1}
    v_mov_b32 v{KEY+1}, s{sTAG}
    s_cmp_lg_u32 s{sJ}, 0
    s_cbranch_scc1 L_noca
    {f"s_and_b32 exec_lo, s{sCAND}, 0x11111111" if Q else f"s_and_b32 exec_lo, s{sCAND}, 0xffff"}
    {f"s_and_b32 exec_hi, s{sCAND+1}, 0x11111111" if Q else "s_mov_b32 exec_hi, 0"}
    ds_write_b64 v{t+1}, {vr(KEY,2)} offset:{L_CA&0xffff}
    s_mov_b64 exec, 0xff
    s_cmp_lg_u32 s{sWAVE}, 0
    s_cbranch_scc1 {"L_cab" if CFG['jb'] else "L_noca"}
    v_lshlrev_b32 v{t+2}, 3, v0
    v_add_u32 v{t+3}, {L_CA}, v{t+2}
    s_lshl_b32 s{A}, s{sBLK}, 7
    s_add_u32 s{A}, s{A}, {CA}
    s_mov_b32 s{C}, {SPIN*4}
    L_cal:
    ds_read_b64 v[{t+4}:{t+5}], v{t+3}
    s_waitcnt lgkmcnt(0)
    v_cmp_ne_u32 vcc, s{sTAG}, v{t+5}
    s_nop 0
    s_cbranch_vccz L_caok""")
    spin(C,"L_cal","L_caok")
    p(f"""s_branch L_cal
    L_caok:
    buffer_store_dwordx2 v[{t+4}:{t+5}], v{t+2}, {S4(sWS)}, s{A} offen sc1
    {"L_cab:" if CFG['jb'] else ""}
    {"s_barrier" if CFG['jb'] else ""}
    L_noca:
    s_mov_b64 exec, -1""")
    STAMP('ca')
    if Q: p(f"ds_bpermute_b32 v{t}, v{aBP}, v{t}\nds_bpermute_b32 v{KEY}, v{aBP}, v{KEY}")
    for k in range(4 if Q else 6,10): p(f"v_cvt_pk_bf16_f32 v{LP+k}, v{WACC+2*k}, v{WACC+2*k+1}")
    p(f"""v_lshrrev_b32 v{t+1}, 4, v0
    v_mul_u32_u24 v{t+1}, 40, v{t+1}
    {"s_waitcnt lgkmcnt(0)" if Q else ""}
    {f"v_cmp_gt_u32 s[{sCAND}:{sCAND+1}], 8, v{t}" if Q else ""}
    v_mul_u32_u24 v{t}, 2560, v{t}
    v_add_u32 v{aCD}, v{t}, v{t+1}
    s_mul_i32 s{A}, s{sBLK}, 20480
    s_mul_i32 s{B}, s{sJ}, 160
    s_add_u32 s{A}, s{A}, s{B}
    s_add_u32 s{A}, s{A}, {CAND}
    s_and_b64 exec, s[{sCAND}:{sCAND+1}], -1
    s_cbranch_scc0 L_nocd""")
    for base,off in ((LP,0),(HP,1280)):
        if 'nocand' in CFG['xp'] or ('noh' in CFG['xp'] and off): continue
        for o,n in ((0,4),(4,4),(8,2)): p(f"buffer_store_dwordx{n} {vr(base+o,n)}, v{aCD}, {S4(sWS)}, s{A} offen offset:{off+4*o} sc1")
    p("L_nocd:\ns_mov_b64 exec, -1")
    if CFG['cae']:
        assert not CFG['odf'] and not CFG['xp']
        p(f"""s_lshl_b32 s{A}, s{sWAVE}, 5
        s_add_u32 s{A}, s{A}, s{sMI}
        s_cmp_ge_u32 s{A}, 17
        s_cbranch_scc1 L_nocae
        v_lshrrev_b32 v{t}, 3, v0
        v_and_b32 v{t+1}, 7, v0
        v_lshlrev_b32 v{t+1}, 3, v{t+1}
        v_lshl_add_u32 v22, v{t}, 7, v{t+1}
        s_mov_b32 s{B}, {CA}""")
        for i in range(4): p(f"buffer_load_dwordx2 {vr(12+2*i,2)}, v22, {S4(sWS)}, s{B} offen offset:{i*1024} sc1")
        p("L_nocae:")
    for k in range(10): p(f"v_pk_add_f32 {vr(WACC+2*k,2)}, {vr(WACC+2*k,2)}, {vr(HF_+2*k,2)}")
    for k in range(10): p(f"v_cvt_pk_bf16_f32 v{OP+k}, v{WACC+2*k}, v{WACC+2*k+1}")
    if CFG['odf']: p(f"s_cmp_lt_u32 s{sMI}, {CFG['odf']}\ns_cbranch_scc1 L_noo1")
    p(f"s_andn2_b64 exec, -1, s[{sCAND}:{sCAND+1}]")
    if not CFG['cae']: p("s_cbranch_scc0 L_noo1")
    if 'noout' not in CFG['xp']: out_store()
    p("L_noo1:")
    if 1: p(f"""s_mov_b64 exec, 1
    v_mov_b32 v{t+4}, {F_O1}
    v_mov_b32 v{t+5}, 1
    ds_add_u32 v{t+4}, v{t+5}
    s_mov_b64 exec, -1""")
    else: p("s_mov_b64 exec, -1")
    STAMP('o1')
KEY=228; sCAND=sT+20
def out_store():
    for o,n in ((0,4),(4,4),(8,2)): p(f"buffer_store_dwordx{n} {vr(OP+o,n)}, v{aX2}, {S4(sOUT)}, s{sXO} offen offset:{4*o} {CFG['opol']}")

def moe_weights():
    A=sT+7; B=sT+8; vt=2; D=40; aW_=12
    gu=p.lab("mwgu"); wr=p.lab("mwwr"); en=p.lab("mwend")
    FA=dict(WOD=(F_WOD,2),PR=(F_PR,4),O1=(F_O1,4),DONE=(F_DONE,ND),G2=(F_G2,2),PS=(F_PS,4),WO2=(F_WO2,2),WE=(F_SCP,4),TOP=(L_TOP,0))
    def gate(k):
        p(f"v_mov_b32 v{vt+4}, {FA[k][0]}")
        if k=='TOP': lds_wait(vt+4,vt+5,sT+5,'eq',-1,2)
        else: lds_wait(vt+4,vt+5,sT+5,'gt',FA[k][1],2)
    pl_=p.lab("mwpl")
    p(f"""s_cmp_ge_u32 s{sMI}, 17
    s_cbranch_scc1 {pl_}
    v_bfe_u32 v{vt}, v0, 3, 2
    v_lshrrev_b32 v{vt+1}, 5, v0
    v_lshlrev_b32 v{vt}, 1, v{vt}
    v_add_lshl_u32 v{vt}, v{vt}, v{vt+1}, 2
    v_bfe_u32 v{vt+1}, v0, 1, 2
    v_add_u32 v{vt}, v{vt}, v{vt+1}
    v_and_b32 v{vt+1}, 1, v0
    v_lshlrev_b32 v{vt+1}, 4, v{vt+1}
    s_cmp_lt_u32 s{sMI}, 12
    s_cbranch_scc1 {gu}
    v_mul_u32_u24 v{vt}, 1280, v{vt}
    v_add_u32 v{aW_}, v{vt}, v{vt+1}
    s_mul_i32 s{A}, s{sG}, 5
    s_add_u32 s{A}, s{A}, s{sMI}
    s_sub_u32 s{A}, s{A}, 12
    s_lshl_b32 s{A}, s{A}, 5
    s_mul_i32 s{B}, s{HW}, {12*32*1280}
    s_add_u32 s{A}, s{A}, s{B}""")
    gate(CFG['dstart'])
    STAMP('mg')
    for s_ in range(12):
        if s_>=CFG['ddep']: p(f"s_waitcnt vmcnt({CFG['ddep']-1})")
        p(f"buffer_load_dwordx4 {vr(D+4*s_,4)}, v{aW_}, {S4(sWD)}, s{A} offen {CFG['mpol']}")
        if s_<11: p(f"s_add_u32 s{A}, s{A}, {32*1280}")
    p(f"""s_mul_i32 s{B}, s{HW}, 12288
    s_branch {wr}
    {pl_}:""")
    for g_,h_ in CFG['wb']:
        sk=p.lab("nowb")
        p(f"s_lshl_b32 s{A}, s{sSLOT}, 2\ns_add_u32 s{A}, s{A}, s{HW}\ns_cmp_lg_u32 s{A}, {4*CFG['wbs']+h_}\ns_cbranch_scc1 {sk}")
        if g_!='no': gate(g_)
        p(f"buffer_wbl2 sc1\ns_waitcnt vmcnt(0)\n{sk}:")
    if CFG['dgate']!='no' and not CFG['dw3']:
        if CFG['dtn']: p(f"s_cmp_ge_u32 s{sMI}, 28\ns_cbranch_scc1 {en}")
        gate(CFG['dgate'])
        touch(vTD,sWD,CFG['mpair'])
        if CFG['dtn']: p("s_mov_b64 exec, 63"); touch(vTD2,sWD,0); p("s_mov_b64 exec, -1")
        STAMP('mg')
        if CFG['prof']: p("s_waitcnt vmcnt(0)"); STAMP('mw')
    p(f"""s_branch {en}
    {gu}:
    v_mul_u32_u24 v{vt}, 3072, v{vt}
    v_add_u32 v{aW_}, v{vt}, v{vt+1}
    s_mul_i32 s{A}, s{sG}, 12
    s_add_u32 s{A}, s{A}, s{sMI}
    s_lshl_b32 s{A}, s{A}, 5
    s_mul_i32 s{B}, s{HW}, {5*32*3072}
    s_add_u32 s{A}, s{A}, s{B}""")
    gate(CFG['gstart'])
    STAMP('mg')
    for s_ in range(5):
        for m_ in range(2):
            if 2*s_+m_==CFG['g2nd'][1]: gate(CFG['g2nd'][0]); STAMP('mg2')
            if 2*s_+m_>=CFG['mdep']: p(f"s_waitcnt vmcnt({CFG['mdep']-1})")
            p(f"buffer_load_dwordx4 {vr(D+8*s_+4*m_,4)}, v{aW_}, {S4((sWG,sWU)[m_])}, s{A} offen {CFG['mpol']}")
        if s_<4: p(f"s_add_u32 s{A}, s{A}, {32*3072}")
    p(f"s_mul_i32 s{B}, s{HW}, 12288\n{wr}:\nv_lshl_add_u32 v{vt}, v0, 4, s{B}")
    gate('DONE')
    p("s_waitcnt vmcnt(0)")
    for s_ in range(12): p(f"ds_write_b128 v{vt}, {vr(D+4*s_,4)} offset:{L_MW+s_*1024}")
    p(f"""s_lshl_b32 s{A}, s{HW}, 2
    s_add_u32 s{A}, s{A}, {F_MW}
    v_mov_b32 v{vt}, s{A}
    ds_write_b32 v{vt}, v{vt}
    s_waitcnt lgkmcnt(0)""")
    STAMP('mw')
    if CFG['htop']:
        p(f"""s_lshl_b32 s{A}, s{HW}, 5
        s_add_u32 s{A}, s{A}, s{sMI}
        s_cmp_lt_u32 s{A}, 12
        s_cbranch_scc1 L_htop""")
        n0=len(p.L)
        t=2; R=12; K2=20; K1=21; aC=22; C=sT+5
        ld="\n".join(f"buffer_load_dwordx2 {vr(R+2*i,2)}, v{aC}, {S4(sWS)}, s{B} offen offset:{i*1024} sc1" for i in range(4))
        lp=p.lab("hca"); ok=p.lab("hcaok")
        p(f"""L_htop:
        v_lshrrev_b32 v{t}, 3, v0
        v_and_b32 v{t+1}, 7, v0
        v_lshlrev_b32 v{t+2}, 3, v{t+1}
        v_lshl_add_u32 v{aC}, v{t}, 7, v{t+2}
        s_mov_b32 s{B}, {CA}
        v_bfe_i32 v{K2}, v0, 1, 1
        v_bfe_i32 v{K1}, v0, 0, 1
        v_not_b32 v{K2}, v{K2}
        v_not_b32 v{K1}, v{K1}
        v_lshlrev_b32 v{t+1}, 2, v{t+1}
        v_add_u32 v{aC+1}, {L_TOP}, v{t+1}
        s_mov_b32 s{C}, {SPIN}
        {lp}:
        {ld}
        s_waitcnt vmcnt(0)
        v_xor_b32 v{t}, v{R+1}, v{R+3}
        v_xor_b32 v{t+1}, v{R+5}, v{R+7}
        v_xor_b32 v{R+1}, s{sTAG}, v{R+1}
        v_xor_b32 v{R+5}, s{sTAG}, v{R+5}
        v_or3_b32 v{t}, v{t}, v{t+1}, v{R+1}
        v_or_b32 v{t}, v{t}, v{R+5}
        v_cmp_ne_u32 vcc, 0, v{t}
        s_nop 0
        s_cbranch_vccz {ok}""")
        spin(C,lp,ok,CFG['casl'])
        p(f"s_branch {lp}\n{ok}:")
        STAMP('car'); COUNT('ncar',C,SPIN)
        top8(R,K2,K1,t,t+2)
        p(f"ds_write_b32 v{aC+1}, v{R}")
        STAMP('htp')
        END()
        COLD.append("\n".join(p.L[n0:])); del p.L[n0:]
    p(f"{en}:")
def top8(R,K2,K1,y,tt):
    def clean(chs):
        seq=[]
        for (x,y_,t_) in chs:
            seq.append([f"v_max_u32_dpp v{y_}, v{x}, v{x} row_shl:4 row_mask:0xf bank_mask:0x5",
                        f"v_min_u32_dpp v{y_}, v{x}, v{x} row_shr:4 row_mask:0xf bank_mask:0xa",
                        None,
                        f"v_mov_b32_dpp v{t_}, v{y_} quad_perm:[2,3,0,1] row_mask:0xf bank_mask:0xf",
                        f"v_med3_u32 v{y_}, v{y_}, v{t_}, v{K2}",
                        None,
                        f"v_mov_b32_dpp v{t_}, v{y_} quad_perm:[1,0,3,2] row_mask:0xf bank_mask:0xf",
                        f"v_med3_u32 v{x}, v{y_}, v{t_}, v{K1}"])
        n=len(chs)
        p(f"s_nop {2-n}")
        for i in range(8):
            if seq[0][i] is None: p(f"s_nop {2-n}")
            else:
                for c in seq: p(c[i])
                if i==0 and n==1: p("s_nop 1")
                elif i==0: p("s_nop 0")
    dp="row_mask:0xf bank_mask:0xf"
    p(f"v_max_u32_dpp v{R}, v{R+2}, v{R} row_half_mirror {dp}\nv_max_u32_dpp v{R+4}, v{R+6}, v{R+4} row_half_mirror {dp}")
    clean([(R,y,tt),(R+4,y+1,tt+1)])
    p(f"s_nop 1\nv_max_u32_dpp v{R}, v{R+4}, v{R} row_half_mirror {dp}")
    clean([(R,y,tt)])
    p(f"s_nop 1\nv_max_u32_dpp v{R}, v{R}, v{R} row_mirror {dp}")
    clean([(R,y,tt)])
    for msk,sw in ((0xa,16),(0xc,32)):
        p(f"""s_nop 1
        v_mov_b32_dpp v{R}, v{R} row_half_mirror row_mask:{hex(msk)} bank_mask:0xf
        v_mov_b32 v{tt}, v{R}
        s_nop 1
        v_permlane{sw}_swap_b32 v{R}, v{tt}
        s_nop 0
        v_max_u32 v{R}, v{R}, v{tt}""")
        clean([(R,y,tt)])
def moe():
    t=vT; A=sT+7; B=sT+8; C=sT+17; sTHR=sT+14; sKQ=sT+3
    R=12; K2=20; K1=21; aC=22; AW=108
    BL=160
    p(f"""s_cmp_ge_u32 s{sMI}, 17
    s_cbranch_scc1 L_plain""")
    if not CFG['cae']: p(f"""v_lshrrev_b32 v{t}, 3, v0
    v_and_b32 v{t+1}, 7, v0
    v_lshlrev_b32 v{t+1}, 3, v{t+1}
    v_lshl_add_u32 v{aC}, v{t}, 7, v{t+1}""")
    p(f"s_mov_b32 s{B}, {CA}")
    ld="\n".join(f"buffer_load_dwordx2 {vr(R+2*i,2)}, v{aC}, {S4(sWS)}, s{B} offen offset:{i*1024} sc1" for i in range(4))
    aMF=4; aMW=5
    def getw():
        lds_wait(AW-aMF,t+10 if False else AW,C,'eq',0,0)
        STAMP('mwr')
        for s_ in range(12):
            for rd in range(2): p(f"ds_read_b64_tr_b16 {vr(AW+4*s_+2*rd,2)}, v{AW-aMW} offset:{L_MW+s_*1024+rd*512}")
    if not CFG['cae'] and not CFG['htop']: p(f"""s_cmp_lg_u32 s{sWAVE}, 0
    s_cbranch_scc1 L_nocal
    {ld}""")
    p(f"""L_nocal:
    v_bfe_i32 v{K2}, v0, 1, 1
    v_bfe_i32 v{K1}, v0, 0, 1
    v_not_b32 v{K2}, v{K2}
    v_not_b32 v{K1}, v{K1}
    s_add_u32 s{sKQ}, s{sWAVE}, {CFG['kqr']}
    s_and_b32 s{sKQ}, s{sKQ}, 3
    s_lshl_b32 s{A}, s{sKQ}, 2
    s_add_u32 s{A}, s{A}, {F_MW}
    v_mov_b32 v{AW-aMF}, s{A}
    s_mul_i32 s{A}, s{sKQ}, 12288
    v_lshl_add_u32 v{AW-aMW}, v0, 3, s{A}
    v_and_b32 v{t}, 7, v0
    v_lshlrev_b32 v{t}, 2, v{t}
    v_add_u32 v{AW-6}, {L_TOP}, v{t}
    {f"v_add_u32 v{AW-9}, {L_TOP}, v{t}" if CFG['ldma'] else ""}
    s_cmp_ge_u32 s{sMI}, 12
    s_cbranch_scc1 L_now""")
    if CFG['ldma']:
        p(f"""v_lshrrev_b32 v{t}, 3, v0
        v_lshlrev_b32 v{t}, 2, v{t}
        v_add_u32 v{AW-9}, {L_TOP}, v{t}
        v_and_b32 v{AW-7}, 7, v0
        v_lshrrev_b32 v{t}, 4, v0
        v_lshlrev_b32 v{t}, 4, v{t}
        v_lshl_add_u32 v{t}, v{AW-7}, 7, v{t}
        s_mul_i32 s{A}, s{sWAVE}, 3072
        s_add_u32 s{A}, s{A}, {L_RED+8192}
        v_add_u32 v{AW-8}, s{A}, v{t}
        v_lshlrev_b32 v{AW-7}, 4, v{AW-7}
        s_mov_b32 m0, s{A}""")
    getw()
    if CFG['htop']: p("s_branch L_topw2")
    lp=p.lab("ca"); ok=p.lab("caok"); md=p.lab("cam")
    p(f"""L_now:
    s_cmp_lg_u32 s{sWAVE}, 0
    s_cbranch_scc1 L_topw
    s_mov_b32 s{C}, {SPIN}
    {"s_waitcnt vmcnt(3)" if CFG['cae'] else ""}
    {"" if CFG['htop'] else f"s_branch {md}"}
    {lp}:
    {ld}
    {"s_waitcnt vmcnt(0)" if CFG['cae'] else ""}
    {md}:
    {"" if CFG['cae'] else "s_waitcnt vmcnt(0)"}
    v_xor_b32 v{t}, v{R+1}, v{R+3}
    v_xor_b32 v{t+1}, v{R+5}, v{R+7}
    v_xor_b32 v{R+1}, s{sTAG}, v{R+1}
    v_xor_b32 v{R+5}, s{sTAG}, v{R+5}
    v_or3_b32 v{t}, v{t}, v{t+1}, v{R+1}
    v_or_b32 v{t}, v{t}, v{R+5}
    v_cmp_ne_u32 vcc, 0, v{t}
    s_nop 0
    s_cbranch_vccz {ok}""")
    spin(C,lp,ok,CFG['casl'])
    if CFG['dasl']: p(f"s_cmp_lt_u32 s{sMI}, 12\ns_cbranch_scc1 {lp}\ns_sleep {CFG['dasl']}")
    p(f"s_branch {lp}\n{ok}:")
    STAMP('car'); COUNT('ncar',C,SPIN)
    top8(R,K2,K1,t,t+2)
    p(f"ds_write_b32 v{AW-6}, v{R}")
    if CFG['htop']: assert CFG['ldma']; p(f"s_branch L_top\nL_topw:\ns_waitcnt vmcnt(0)\nL_topw2:")
    elif CFG['ldma']: p(f"s_cmp_ge_u32 s{sMI}, 12\ns_cbranch_scc1 L_top\nL_topw:\ns_waitcnt vmcnt(0)")
    else: p(f"s_branch L_top\nL_topw:\ns_waitcnt vmcnt(0)")
    lds_wait(AW-9 if CFG['ldma'] else AW-6,R,C,'eq',-1,0)
    TOK=t+1; aR=t+2
    def deferred(tag):
        allrows=CFG['odf']>=(12 if tag[0]=='g' else 17 if tag=='d' else 99)
        p(f"""v_cmp_gt_u32 vcc, s{sTHR}, v{KEY}
        s_nop 0
        {'s_orn2_b64' if allrows else 's_and_b64'} exec, vcc, s[{sCAND}:{sCAND+1}]
        s_cbranch_scc0 L_nd{tag}""")
        out_store()
        p(f"L_nd{tag}:\ns_mov_b64 exec, -1")
    XM="s_mov_b32 exec_lo, 0x00ff00ff\ns_mov_b32 exec_hi, 0x00ff00ff" if CFG['xm'] else "s_mov_b64 exec, -1"
    if CFG['ldma']:
        lp=p.lab("gl"); ok=p.lab("glok")
        p(f"""s_cmp_ge_u32 s{sMI}, 12
        s_cbranch_scc1 L_top""")
        STAMP('top')
        p(f"""v_bfe_u32 v{TOK}, v{R}, 9, 5
        v_and_b32 v{aR}, 7, v{R}
        v_xor_b32 v{TOK}, 31, v{TOK}
        s_mul_i32 s{A}, s{sKQ}, 320
        v_lshl_add_u32 v{aR}, v{TOK}, 3, v{aR}
        s_add_u32 s{A}, s{A}, {CAND}
        v_mov_b32 v{t}, 2560
        s_sub_u32 s{B}, s{A}, 896
        v_mad_u32_u24 v{aR}, v{aR}, v{t}, v{AW-7}
        s_sub_u32 s{sT+4}, s{A}, 1792
        s_mov_b32 s{C}, {SPIN}
        {lp}:
        s_mov_b64 exec, -1
        buffer_load_dwordx4 v{aR}, {S4(sWS)}, s{A} offen sc1 lds
        buffer_load_dwordx4 v{aR}, {S4(sWS)}, s{B} offen offset:1024 sc1 lds
        s_mov_b32 exec_lo, 0x0f0f0f0f
        s_mov_b32 exec_hi, 0x0f0f0f0f
        buffer_load_dwordx4 v{aR}, {S4(sWS)}, s{sT+4} offen offset:2048 sc1 lds
        s_mov_b64 exec, -1
        v_readlane_b32 s{sTHR}, v{R}, 56
        s_lshl_b32 s{sT+5}, s{sWAVE}, 11
        s_add_u32 s{sT+5}, s{sT+5}, {L_RED}
        v_lshl_add_u32 v{t+3}, v0, 4, s{sT+5}
        s_mov_b32 exec_lo, 0x00ff00ff
        s_mov_b32 exec_hi, 0x00ff00ff""")
        for i in range(5):
            if i%2==0: p(f"s_waitcnt vmcnt({2-i//2})")
            p(f"ds_read_b128 {vr(BL+4*i,4)}, v{AW-8} offset:{(i>>1)*1024+(i&1)*64}")
        if CFG['asp']:
            G=20; U=24
            p("s_mov_b64 exec, -1")
            for s_ in range(5):
                p(f"s_waitcnt lgkmcnt({4-s_})")
                for m_,a_ in ((0,G),(1,U)):
                    p(f"v_mfma_f32_16x16x32_bf16 {vr(a_,4)}, {vr(AW+8*s_+4*m_,4)}, {vr(BL+4*s_,4)}, {vr(a_,4) if s_ else 0}")
                    if m_==0: p(f"v_max3_u32 v{t+4}, v{BL+4*s_}, v{BL+4*s_+2}, {'v%d'%(t+4) if s_ else 0}")
            p(f"""v_cmp_eq_u32 vcc, -1, v{t+4}
            s_nop 0
            s_and_b32 vcc_lo, vcc_lo, 0x00ff00ff
            s_and_b32 vcc_hi, vcc_hi, 0x00ff00ff
            s_or_b32 s{sT+5}, vcc_lo, vcc_hi
            s_cbranch_scc0 L_glok""")
        else: p(f"""s_waitcnt lgkmcnt(2)
        v_max3_u32 v{t+4}, v{BL}, v{BL+2}, v{BL+4}
        v_max3_u32 v{t+5}, v{BL+6}, v{BL+8}, v{BL+10}
        s_waitcnt lgkmcnt(0)
        v_max3_u32 v{t+4}, v{BL+12}, v{BL+14}, v{t+4}
        v_max3_u32 v{t+5}, v{BL+16}, v{BL+18}, v{t+5}
        v_max_u32 v{t+4}, v{t+4}, v{t+5}
        v_cmp_eq_u32 vcc, -1, v{t+4}
        s_nop 0
        s_cbranch_vccz L_glok""")
        spin(C,lp,"L_glok")
        p(f"s_branch {lp}")
    p("L_top:")
    STAMP('top')
    p(f"""v_bfe_u32 v{TOK}, v{R}, 3, 11
    v_sub_u32 v{TOK}, 2047, v{TOK}
    v_lshrrev_b32 v{t}, 6, v{TOK}
    v_and_b32 v{aR}, 7, v{R}
    v_lshl_add_u32 v{aR}, v{t}, 3, v{aR}
    v_mul_u32_u24 v{aR}, 2560, v{aR}
    v_lshrrev_b32 v{t}, 4, v0
    v_readlane_b32 s{sTHR}, v{R}, 7
    {"" if CFG['ldma'] else f"s_cmp_ge_u32 s{sMI}, 12"}
    {"s_branch" if CFG['ldma'] else "s_cbranch_scc1"} L_down""")
    if not CFG['ldma']: l_old(t,A,B,C,BL,aR,sKQ,sTHR,XM)
    else: p("L_glok:")
    STAMP('lr'); COUNT('nlr',C,SPIN)
    SP=CFG['asp'] and CFG['ldma']
    if CFG['xm'] and not SP: p("s_mov_b64 exec, -1")
    G=20; U=24; X=28
    for s_ in range(0 if SP else 5):
        for m_,a_ in ((0,G),(1,U)):
            p(f"v_mfma_f32_16x16x32_bf16 {vr(a_,4)}, {vr(AW+8*s_+4*m_,4)}, {vr(BL+4*s_,4)}, {vr(a_,4) if s_ else 0}")
    w0=p.lab("guw0")
    def hint(sa,va,wv=None):
        sk=p.lab("nohint")
        if wv is not None: p(f"s_cmp_lg_u32 s{sWAVE}, {wv}\ns_cbranch_scc1 {sk}")
        p(f"""s_lshl_b32 s{sa}, s{sG}, 5
        s_add_u32 s{sa}, s{sa}, s{sMI}
        s_lshl_b32 s{sa}, s{sa}, 2
        s_add_u32 s{sa}, s{sa}, {AH}
        v_mov_b32 v{va}, 0
        v_mov_b32 v{va+1}, s{sTAG}
        s_mov_b64 exec, 1""")
        dual([f"buffer_store_dword v{va+1}, v{va}, {S4(sWS)}, s{sa} offen"])
        p(f"s_mov_b64 exec, -1\n{sk}:")
    p(f"""s_cmp_eq_u32 s{sWAVE}, 0
    s_cbranch_scc1 {w0}
    {"" if SP else "s_nop 5"}
    ds_write_b128 v{t+3}, {vr(G,4)}
    ds_write_b128 v{t+3}, {vr(U,4)} offset:1024""")
    if CFG['ahp']==4: hint(B,60,2)
    p("s_waitcnt lgkmcnt(0)\ns_barrier")
    if CFG['ahp']==3: hint(B,60,2)
    if CFG['ldma']:
        nt=p.lab("noth")
        p(f"""s_xor_b32 s{B}, s{sWAVE}, 1
        s_or_b32 s{B}, s{sMI}, s{B}
        s_cbranch_scc1 {nt}
        v_mov_b32 v{t+4}, s{sTHR}
        v_mov_b32 v{t+5}, s{sTAG}
        s_lshl_b32 s{B}, s{sG}, 7
        s_add_u32 s{B}, s{B}, {TH}
        v_mov_b32 v{t+6}, 0
        s_mov_b64 exec, 1
        buffer_store_dwordx2 v[{t+4}:{t+5}], v{t+6}, {S4(sWS)}, s{B} offen sc1
        s_mov_b64 exec, -1
        {nt}:""")
    if CFG['ob2']: p("s_barrier")
    deferred('g1')
    END()
    p(f"""{w0}:
    s_mul_i32 s{A}, s{sG}, 12
    s_add_u32 s{A}, s{A}, s{sMI}
    s_lshl_b32 s{A}, s{A}, 8
    s_add_u32 s{A}, s{A}, {ACT}
    v_and_b32 v{t+4}, 7, v0
    v_lshlrev_b32 v{t+4}, 4, v{t+4}
    v_lshrrev_b32 v{t+5}, 5, v0
    v_lshl_add_u32 v{t+4}, v{t+5}, 7, v{t+4}
    v_bfe_u32 v{t+5}, v0, 4, 1
    v_lshl_add_u32 v{t+4}, v{t+5}, 3, v{t+4}
    s_barrier""")
    STAMP('gb')
    for w_ in range(1,4):
        for m_ in range(2): p(f"ds_read_b128 {vr(X+8*(w_-1)+4*m_,4)}, v{t+3} offset:{w_*2048+m_*1024}")
    p(f"s_mov_b32 s{B}, {hex(f2u(-math.log2(math.e)))}")
    for w_ in range(3):
        p(f"s_waitcnt lgkmcnt({4-2*w_})")
        for k in range(4): p(f"v_pk_add_f32 {vr(G+2*k,2)}, {vr(G+2*k,2)}, {vr(X+8*w_+2*k,2)}")
    p(f"""v_cvt_pk_bf16_f32 v{X}, v{G}, v{G+1}
    v_cvt_pk_bf16_f32 v{X+1}, v{G+2}, v{G+3}
    v_cvt_pk_bf16_f32 v{X+2}, v{U}, v{U+1}
    v_cvt_pk_bf16_f32 v{X+3}, v{U+2}, v{U+3}""")
    for k in range(4): p(f"v_lshlrev_b32 v{G+2*k}, 16, v{X+k}\nv_and_b32 v{G+2*k+1}, 0xffff0000, v{X+k}")
    for k in range(4): p(f"v_mul_f32 v{X+k}, s{B}, v{G+k}")
    for k in range(4): p(f"v_exp_f32 v{X+k}, v{X+k}")
    if CFG['ahp']==2: hint(B,60)
    for k in range(4): p(f"v_add_f32 v{X+k}, 1.0, v{X+k}")
    for k in range(4): p(f"v_rcp_f32 v{X+k}, v{X+k}")
    for k in range(4): p(f"v_mul_f32 v{G+k}, v{G+k}, v{X+k}")
    if CFG['ahp']==1: hint(B,60)
    p(f"v_cvt_pk_bf16_f32 v{X}, v{G}, v{G+1}\nv_cvt_pk_bf16_f32 v{X+1}, v{G+2}, v{G+3}")
    for k in range(2): p(f"v_lshlrev_b32 v{G+2*k}, 16, v{X+k}\nv_and_b32 v{G+2*k+1}, 0xffff0000, v{X+k}")
    p(f"""v_pk_mul_f32 {vr(G,2)}, {vr(G,2)}, {vr(U,2)}
    v_pk_mul_f32 {vr(G+2,2)}, {vr(G+2,2)}, {vr(U+2,2)}
    v_cvt_pk_bf16_f32 v{X}, v{G}, v{G+1}
    v_cvt_pk_bf16_f32 v{X+1}, v{G+2}, v{G+3}
    s_mov_b32 exec_lo, 0x00ff00ff
    s_mov_b32 exec_hi, 0x00ff00ff
    buffer_store_dwordx2 {vr(X,2)}, v{t+4}, {S4(sWS)}, s{A} offen sc1""")
    if CFG['ahint'] and CFG['ahp']==0:
        p(f"""s_lshl_b32 s{A}, s{sG}, 5
        s_add_u32 s{A}, s{A}, s{sMI}
        s_lshl_b32 s{A}, s{A}, 2
        s_add_u32 s{A}, s{A}, {AH}
        v_mov_b32 v{t+4}, 0
        v_mov_b32 v{t+5}, s{sTAG}
        s_mov_b64 exec, 1""")
        dual([f"buffer_store_dword v{t+5}, v{t+4}, {S4(sWS)}, s{A} offen"])
    p("s_mov_b64 exec, -1")
    STAMP('act')
    if CFG['ob2']: p("s_barrier")
    deferred('g0')
    END()
    HL=20; Y=24; X=28; SG=t+8; aO2=t+9
    p(f"""L_down:
    v_lshl_add_u32 v{aR}, v{t}, 3, v{aR}
    v_mul_u32_u24 v{aO2}, 1280, v{TOK}
    v_lshl_add_u32 v{aO2}, v{t}, 3, v{aO2}
    v_and_b32 v{t+4}, 7, v0
    v_lshlrev_b32 v{t+4}, 4, v{t+4}
    v_lshl_add_u32 v{t+4}, v{t}, 7, v{t+4}
    {f"v_bfe_u32 v{t+5}, v0, 3, 1" if CFG['a2'] else ""}
    {f"v_lshl_add_u32 v{t+4}, v{t+5}, 9, v{t+4}" if CFG['a2'] else ""}
    s_mul_i32 s{sT+1}, s{sG}, 5
    s_add_u32 s{sT+1}, s{sT+1}, s{sMI}
    s_sub_u32 s{sT+1}, s{sT+1}, 12
    s_lshl_b32 s{sT+1}, s{sT+1}, 5
    s_add_u32 s{sT+2}, s{sT+1}, {CAND}
    s_mul_i32 s{A}, s{sKQ}, 6144
    s_add_u32 s{A}, s{A}, {ACT}
    s_add_u32 s{B}, s{A}, 4096""")
    ldh=f"buffer_load_dwordx2 {vr(HL,2)}, v{aR}, {S4(sWS)}, s{sT+2} offen sc1\nbuffer_load_dwordx2 {vr(HL+2,2)}, v{aR}, {S4(sWS)}, s{sT+2} offen offset:1280 sc1"
    if CFG['hll']: p(f"s_cmp_lg_u32 s{sWAVE}, 0\ns_cbranch_scc1 L_nohl\n{XM}\n{ldh}\ns_mov_b64 exec, -1\nL_nohl:")
    else: p(ldh)
    deferred('d')
    p(f"""v_ashrrev_i32 v{SG}, 31, v{R}
    v_not_b32 v{SG}, v{SG}
    v_or_b32 v{SG}, 0x80000000, v{SG}
    v_xor_b32 v{SG}, v{SG}, v{R}
    v_and_b32 v{SG}, 0xffff0000, v{SG}
    v_mul_f32 v{SG}, {hex(f2u(-math.log2(math.e)))}, v{SG}
    v_exp_f32 v{SG}, v{SG}
    s_lshl_b32 s{C}, s{sWAVE}, 10
    v_add_f32 v{SG}, 1.0, v{SG}
    v_rcp_f32 v{SG}, v{SG}
    s_add_u32 s{C}, s{C}, {L_RED}
    v_lshl_add_u32 v{t+3}, v0, 4, s{C}""")
    bf16r(SG,SG)
    lp=p.lab("hl"); ok=p.lab("hlok"); md=p.lab("hlm")
    if not CFG['hll']: p(f"""s_mov_b32 s{C}, {SPIN}
    s_branch {md}
    {lp}:
    {ldh}
    {md}:
    s_waitcnt vmcnt(0)
    v_max_u32 v{t+5}, v{HL}, v{HL+2}
    v_cmp_eq_u32 vcc, -1, v{t+5}
    s_nop 0
    {'s_branch' if CFG['xp'] else 's_cbranch_vccz'} {ok}""")
    if not CFG['hll']:
        spin(C,lp,ok)
        p(f"s_branch {lp}\n{ok}:")
    getw()
    ld="\n".join([f"buffer_load_dwordx4 {vr(BL+4*i,4)}, v{t+4}, {S4(sWS)}, s{A if i<8 else B} offen offset:{(i%8)*512} sc1" for i in range(12)])
    if CFG['ahint']:
        p(f"""v_min_u32 v{t+6}, {CFG['ahint']-1}, v0
        v_lshlrev_b32 v{t+6}, 2, v{t+6}
        s_lshl_b32 s{sT+4}, s{sG}, 7
        s_add_u32 s{sT+4}, s{sT+4}, {AH}""")
        flag_poll(t+6,t+5,sT+4,C)
        STAMP('ah')
    lp=p.lab("al"); ok=p.lab("alok")
    if CFG['a2']:
        Y2=BL+24
        ld="\n".join([f"buffer_load_dwordx4 {vr(BL+4*i,4)}, v{t+4}, {S4(sWS)}, s{A if i<4 else B} offen offset:{(i%4)*1024} sc1" for i in range(6)])
        if CFG['asp']:
            p(f"s_mov_b32 s{C}, {SPIN}\n{lp}:\n{ld}\ns_waitcnt lgkmcnt(0)")
            for i in range(6):
                p(f"s_waitcnt vmcnt({5-i})")
                for s_ in (2*i,2*i+1):
                    y=(Y,Y2)[s_&1]
                    p(f"v_mfma_f32_16x16x32_bf16 {vr(y,4)}, {vr(AW+4*s_,4)}, {vr(BL+4*(s_>>1),4)}, {vr(y,4) if s_>1 else 0}")
                    if s_&1==0: p(f"v_max3_u32 v{t+5}, v{BL+4*i}, v{BL+4*i+2}, {'v%d'%(t+5) if i else 0}")
            p(f"""v_cmp_eq_u32 vcc, -1, v{t+5}
            s_nop 0
            s_cbranch_vccz {ok}""")
            spin(C,lp,ok,CFG['acsl'])
            p(f"s_branch {lp}\n{ok}:")
            STAMP('ar'); COUNT('nar',C,SPIN)
            p("s_nop 4")
        else: p(f"""s_mov_b32 s{C}, {SPIN}
        {lp}:
        {ld}
        s_waitcnt vmcnt(3)
        v_max3_u32 v{t+5}, v{BL}, v{BL+2}, v{BL+4}
        v_max3_u32 v{t+6}, v{BL+6}, v{BL+8}, v{BL+10}
        s_waitcnt vmcnt(0)
        v_max3_u32 v{t+5}, v{BL+12}, v{BL+14}, v{t+5}
        v_max3_u32 v{t+6}, v{BL+16}, v{BL+18}, v{t+6}
        v_max3_u32 v{t+5}, v{BL+20}, v{BL+22}, v{t+5}
        v_max_u32 v{t+5}, v{t+5}, v{t+6}
        v_cmp_eq_u32 vcc, -1, v{t+5}
        s_waitcnt lgkmcnt(0)
        s_cbranch_vccz {ok}""")
        if not CFG['asp']:
            spin(C,lp,ok,CFG['acsl'])
            p(f"s_branch {lp}\n{ok}:")
            STAMP('ar'); COUNT('nar',C,SPIN)
            for s_ in range(12):
                y=(Y,Y2)[s_&1]
                p(f"v_mfma_f32_16x16x32_bf16 {vr(y,4)}, {vr(AW+4*s_,4)}, {vr(BL+4*(s_>>1),4)}, {vr(y,4) if s_>1 else 0}")
            p("s_nop 7")
        for k in range(4): p(f"v_add_f32_dpp v{Y+k}, v{Y2+k}, v{Y+k} row_ror:8 row_mask:0xf bank_mask:0xf")
    else: act_old(t,A,B,C,BL,AW,Y,XM,ld,lp,ok)
    w0=p.lab("dnw0")
    p(f"""s_cmp_eq_u32 s{sWAVE}, 0
    s_cbranch_scc1 {w0}
    {"" if CFG['a2'] else "s_nop 5"}
    ds_write_b128 v{t+3}, {vr(Y,4)}
    s_waitcnt lgkmcnt(0)
    s_barrier""")
    END()
    p(f"{w0}:")
    if CFG['hll']:
        p(f"""{XM}
        v_max_u32 v{t+5}, v{HL}, v{HL+2}
        v_cmp_eq_u32 vcc, -1, v{t+5}
        s_mov_b32 s{C}, {SPIN}
        s_cbranch_vccnz L_hlw
        L_hlr:
        s_mov_b64 exec, -1""")
        COLD.append(f"""L_hlw:
        s_sub_u32 s{C}, s{C}, 1
        s_cbranch_scc1 L_hlr
        {ldh}
        s_waitcnt vmcnt(0)
        v_max_u32 v{t+5}, v{HL}, v{HL+2}
        v_cmp_eq_u32 vcc, -1, v{t+5}
        s_nop 0
        s_cbranch_vccnz L_hlw
        s_branch L_hlr""")
    p(f"""v_lshlrev_b32 v{X+12}, 16, v{HL}
    v_and_b32 v{X+13}, 0xffff0000, v{HL}
    v_lshlrev_b32 v{X+14}, 16, v{HL+1}
    v_and_b32 v{X+15}, 0xffff0000, v{HL+1}
    v_lshlrev_b32 v{X+16}, 16, v{HL+2}
    v_and_b32 v{X+17}, 0xffff0000, v{HL+2}
    v_lshlrev_b32 v{X+18}, 16, v{HL+3}
    v_and_b32 v{X+19}, 0xffff0000, v{HL+3}
    s_barrier""")
    STAMP('db')
    for w_ in range(1,4): p(f"ds_read_b128 {vr(X+4*(w_-1),4)}, v{t+3} offset:{w_*1024}")
    for w_ in range(3):
        p(f"s_waitcnt lgkmcnt({2-w_})")
        for k in range(2): p(f"v_pk_add_f32 {vr(Y+2*k,2)}, {vr(Y+2*k,2)}, {vr(X+4*w_+2*k,2)}")
    def rnd():
        p(f"v_cvt_pk_bf16_f32 v{X}, v{Y}, v{Y+1}\nv_cvt_pk_bf16_f32 v{X+1}, v{Y+2}, v{Y+3}")
    def unp():
        for k in range(2): p(f"v_lshlrev_b32 v{Y+2*k}, 16, v{X+k}\nv_and_b32 v{Y+2*k+1}, 0xffff0000, v{X+k}")
    rnd(); unp()
    for k in range(4): p(f"v_mul_f32 v{Y+k}, v{SG}, v{Y+k}")
    rnd(); unp()
    for k in range(2): p(f"v_pk_add_f32 {vr(Y+2*k,2)}, {vr(Y+2*k,2)}, {vr(X+12+2*k,2)}")
    rnd(); unp()
    for k in range(2): p(f"v_pk_add_f32 {vr(Y+2*k,2)}, {vr(Y+2*k,2)}, {vr(X+16+2*k,2)}")
    rnd()
    p(f"""s_mov_b32 exec_lo, 0x00ff00ff
    s_mov_b32 exec_hi, 0x00ff00ff
    buffer_store_dwordx2 {vr(X,2)}, v{aO2}, {S4(sOUT)}, s{sT+1} offen {CFG['fpol']}""")
    STAMP('fin')
    END()
    lp=p.lab("th"); ok=p.lab("thok")
    p("L_plain:")
    if CFG['cpre']:
        sk=p.lab("nocp")
        p(f"""s_sub_u32 s{A}, s{sMI}, {CFG['cpb']}
        s_lshl_b32 s{A}, s{A}, 2
        s_add_u32 s{A}, s{A}, s{sWAVE}
        s_cmp_ge_u32 s{A}, 32
        s_cbranch_scc1 {sk}""")
        if CFG['cpre']==1:
            p(f"s_lshl_b32 s{B}, s{A}, 7\ns_add_u32 s{B}, s{B}, {CA+4}\nv_mov_b32 v{t}, 0")
            flag_poll(t,t+1,B,C,sleep=CFG['cpsl'])
        l2=p.lab("cp"); o2=p.lab("cpok")
        p(f"""s_mul_i32 s{B}, s{A}, 20480
        s_add_u32 s{B}, s{B}, {CAND+36}
        v_lshrrev_b32 v{t}, 5, v0
        v_mul_u32_u24 v{t}, 1280, v{t}
        v_mad_u32_u24 v{t}, v0, 40, v{t}
        s_mov_b32 s{C}, 64
        {l2}:
        buffer_load_dword v{t+1}, v{t}, {S4(sWS)}, s{B} offen sc1
        s_waitcnt vmcnt(0)
        v_cmp_eq_u32 vcc, -1, v{t+1}
        s_nop 0
        s_cbranch_vccz {o2}""")
        spin(C,l2,o2,CFG['cpsl'])
        p(f"s_branch {l2}\n{o2}:")
        STAMP('cp')
        p(f"{sk}:")
    p(f"""s_lshl_b32 s{B}, s{sG}, 7
    s_add_u32 s{B}, s{B}, {TH}
    v_mov_b32 v{t}, 0
    s_mov_b32 s{C}, {SPIN}
    {lp}:
    s_sleep 16
    buffer_load_dwordx2 v[{t+2}:{t+3}], v{t}, {S4(sWS)}, s{B} offen sc1
    s_waitcnt vmcnt(0)
    v_cmp_ne_u32 vcc, s{sTAG}, v{t+3}
    s_nop 0
    s_cbranch_vccz {ok}""")
    spin(C,lp,ok)
    p(f"""s_branch {lp}
    {ok}:
    v_readfirstlane_b32 s{sTHR}, v{t+2}
    s_nop 1""")
    deferred('p')
    STAMP('fin')

def l_old(t,A,B,C,BL,aR,sKQ,sTHR,XM):
    p(f"""v_lshl_add_u32 v{aR}, v{t}, 4, v{aR}
    s_mul_i32 s{A}, s{sKQ}, 320
    s_add_u32 s{A}, s{A}, {CAND}""")
    ld="\n".join(f"buffer_load_dwordx4 {vr(BL+4*i,4)}, v{aR}, {S4(sWS)}, s{A} offen offset:{i*64} sc1" for i in range(5))
    lp=p.lab("gl"); ok=p.lab("glok"); md=p.lab("glm"); nt=p.lab("noth")
    if CFG['xm']: p(XM)
    p(ld)
    p(f"""s_or_b32 s{B}, s{sMI}, s{sWAVE}
    s_cbranch_scc1 {nt}
    v_mov_b32 v{t+4}, s{sTHR}
    v_mov_b32 v{t+5}, s{sTAG}
    s_lshl_b32 s{B}, s{sG}, 7
    s_add_u32 s{B}, s{B}, {TH}
    v_mov_b32 v{t+6}, 0
    s_mov_b64 exec, 1
    buffer_store_dwordx2 v[{t+4}:{t+5}], v{t+6}, {S4(sWS)}, s{B} offen sc1
    {nt}:
    s_mov_b64 exec, -1
    s_lshl_b32 s{B}, s{sWAVE}, 11
    s_add_u32 s{B}, s{B}, {L_RED}
    v_lshl_add_u32 v{t+3}, v0, 4, s{B}
    {XM}
    s_mov_b32 s{C}, {SPIN}
    s_branch {md}
    {lp}:
    {ld}
    {md}:
    s_waitcnt vmcnt(0) lgkmcnt(0)
    v_max3_u32 v{t+4}, v{BL}, v{BL+2}, v{BL+4}
    v_max3_u32 v{t+5}, v{BL+6}, v{BL+8}, v{BL+10}
    v_max3_u32 v{t+4}, v{BL+12}, v{BL+14}, v{t+4}
    v_max3_u32 v{t+5}, v{BL+16}, v{BL+18}, v{t+5}
    v_max_u32 v{t+4}, v{t+4}, v{t+5}
    v_cmp_eq_u32 vcc, -1, v{t+4}
    s_nop 0
    {'s_branch' if 'nocand' in CFG['xp'] else 's_cbranch_vccz'} {ok}""")
    spin(C,lp,ok)
    p(f"s_branch {lp}\n{ok}:")
def act_old(t,A,B,C,BL,AW,Y,XM,ld,lp,ok):
    p(f"""{XM}
    s_mov_b32 s{C}, {SPIN}
    {lp}:
    {ld}
    s_waitcnt vmcnt(8)
    v_max3_u32 v{t+5}, v{BL}, v{BL+2}, v{BL+4}
    v_max3_u32 v{t+6}, v{BL+6}, v{BL+8}, v{BL+10}
    v_max3_u32 v{t+5}, v{BL+12}, v{BL+14}, v{t+5}""")
    for i in range(4,12):
        if i%4==0: p(f"s_waitcnt vmcnt({8-i})")
        p(f"v_max3_u32 v{t+5+(i&1)}, v{BL+4*i}, v{BL+4*i+2}, v{t+5+(i&1)}")
    p(f"""v_max_u32 v{t+5}, v{t+5}, v{t+6}
    v_cmp_eq_u32 vcc, -1, v{t+5}
    s_waitcnt lgkmcnt(0)
    s_cbranch_vccz {ok}""")
    spin(C,lp,ok,CFG['acsl'])
    p(f"s_branch {lp}\n{ok}:")
    STAMP('ar'); COUNT('nar',C,SPIN)
    if CFG['xm']: p("s_mov_b64 exec, -1")
    for s_ in range(12): p(f"v_mfma_f32_16x16x32_bf16 {vr(Y,4)}, {vr(AW+4*s_,4)}, {vr(BL+4*s_,4)}, {vr(Y,4) if s_ else 0}")

def build():
    prologue()
    steps=loader()
    helperA(steps)
    p("s_branch L_mw")
    helperB(steps)
    p("L_mw:")
    moe_weights()
    END()
    if CFG['lay']: p(PG)
    p("L_comp:")
    if CFG['prio']: p(f"s_setprio {CFG['prio']}")
    p("s_waitcnt lgkmcnt(0)")
    STAMP('start')
    prologue2(1)
    if CFG['cpf']: code_pf()
    if CFG['cpa']==2: cp_rest(sT+18); p("s_mov_b64 exec, -1")
    if CFG['tlb']==1:
        for k in range(12):
            p(f"s_mov_b32 s{sT+18}, {k*0x200000+0x1000}\ns_load_dword s100, s[{sWS}:{sWS+1}], s{sT+18}")
    if CFG['tlb']==2:
        p(f"v_lshlrev_b32 v228, 19, v0\nv_min_u32 v228, 0x1780000, v228\nbuffer_load_dword v229, v228, {S4(sWS)}, 0 offen")
    srd(((sX,2621440),))
    if CFG['hclr'] or CFG['lclr']: assert CFG['clr']==0 and CFG['odn'] and CFG['wsp']; CFG['clate']=9
    if CFG['clr']==0 and CFG['clate']==0: clears(0); clears(1)
    STAMP('c1')
    att_setup()
    STAMP('c2')
    if CFG['clr']==0 and CFG['clate']==1: clears(0); clears(1)
    gemm_setup()
    STAMP('c3')
    if CFG['clr']: clears(0)
    if CFG['clr']==0 and CFG['clate']==2: clears(0); clears(1)
    STAMP('c4')
    p("s_waitcnt lgkmcnt(0)")
    STAMP('c5')
    mktag()
    p(f"""    s_cmp_eq_u32 s{sLC}, 15
    s_cbranch_scc1 L_gS
    s_cmp_eq_u32 s{sTY}, 2
    s_cbranch_scc1 L_gV""")
    if CFG['lay']:
        p("s_branch L_gT")
        n0=len(p.L)
        p(PG)
        if CFG['pade']: p("L_padT:\ns_branch L_comp")
        p("L_gT:"); gemm_loop('T'); gemm_epi('T'); p("s_branch L_att")
        if CFG['dcs']: cs_block('T')
        n1=len(p.L)
        p("L_gS:"); idle_gemm(); p("s_branch L_att")
        COLD.insert(0,"\n".join(p.L[n1:])); del p.L[n1:]
        if CFG['pade']: p("L_padV:\ns_branch L_comp")
        if CFG['g16'] and CFG['gpg']: p(PG)
        p("L_gV:"); gemm_loop('V'); gemm_epi('V'); p("s_branch L_att")
        if CFG['dcs']: cs_block('V')
        G_=p.L[n0:]; del p.L[n0:]
        p("L_att:")
        att_go()
        p.L+=G_
    else:
        gemm_loop('T'); gemm_epi('T'); p("s_branch L_att")
        p("L_gS:"); idle_gemm(); p("s_branch L_att")
        p("L_gV:"); gemm_loop('V'); gemm_epi('V')
        p("L_att:")
        att_go()
    for w in range(4): att_variant(w)
    att_fin()
    wo_main()
    if CFG['stop']<=3:
        p(f"s_and_b64 exec, s[{sCAND}:{sCAND+1}], -1\ns_cbranch_scc0 L_noo2"); out_store(); p("L_noo2:")
    else: moe()
    END()
    att_cold()
    SL={3:('L_og0:','L_og1:','L_og3:'),2:('L_og5:','L_og7:'),1:('L_wo2w:','L_ldw:')+(() if CFG['hs2'] else ('L_hlw:',))} if CFG['cslot'] and CFG['lay'] else {}
    for w in range(4):
        i=p.L.index(f";@slot{w}"); mv=[c for c in COLD if c.strip().startswith(SL.get(w,('-',)))]
        q=P()
        for c in mv: q(c); COLD.remove(c)
        p.L[i:i+1]=q.L
    for c in COLD: p(c)
    p("L_exit:\ns_endpgm")
build()
errs=check(p.L)
hdr=f"""; generated by work/k/gen.py (own generator script)
; @launch grid=(256,1,1) block=(512,1,1) lds=163840
.amdgcn_target "amdgcn-amd-amdhsa--gfx950"
.text
.globl {NAME}_kernel
{".p2align 12" if CFG['pal'] else ""}
{f".fill {(CFG['pal']-1)*64}, 4, 0xbf810000" if CFG['pal']>1 else ""}
.p2align 8
.type {NAME}_kernel,@function
{NAME}_kernel:
"""
ftr=f""".section .rodata,"a"
.p2align 6
.amdhsa_kernel {NAME}_kernel
  .amdhsa_next_free_vgpr 256
  .amdhsa_next_free_sgpr 102
  .amdhsa_accum_offset 256
  .amdhsa_group_segment_fixed_size 0
  .amdhsa_kernarg_size 88
  .amdhsa_user_sgpr_count 2
  .amdhsa_user_sgpr_kernarg_segment_ptr 1
  .amdhsa_system_sgpr_workgroup_id_x 1
.end_amdhsa_kernel
"""
import align8
def fmt(L):
    q=P(); q.L=L; return q.text()
if CFG['al8']: print("align8",align8.align(p.L,hdr,ftr,fmt,sys.argv[1]+".tmp.s",CFG['al8']))
if CFG.get('alst'): print(align8.stat(p.L,hdr,ftr,fmt,sys.argv[1]+".tmp.s"))
open(sys.argv[1],"w").write(hdr+p.text()+ftr)

import subprocess
r=subprocess.run(["clang","-x","assembler","-target","amdgcn-amd-amdhsa","-mcpu=gfx950",sys.argv[1],"-o",sys.argv[1]+".co"],capture_output=True,text=True)
if r.returncode: print(r.stderr[:3000]); sys.exit(1)
r=subprocess.run(["python3","cdna_unwritten_srd_check.py",sys.argv[1]+".co"],capture_output=True,text=True)
if r.returncode: print("SRDCHECK:",r.stdout[-3000:],r.stderr[-1000:])
r=subprocess.run("llvm-size -A "+sys.argv[1]+".co | grep text",shell=True,capture_output=True,text=True); print(r.stdout.strip())
if errs:
    import os; os.remove(sys.argv[1]); sys.exit(1)
```
